```python
import torch

def _softmax(x, axis=-1):
    return torch.softmax(x, dim=axis)
def _gelu(x):
    return torch.nn.functional.gelu(x, approximate="tanh")
def _silu(x):
    return torch.nn.functional.silu(x)
def _sigmoid(x):
    return torch.sigmoid(x)
def _layernorm(x, axis=-1, eps=1e-5):
    m = x.mean(dim=axis, keepdim=True)
    v = x.var(dim=axis, keepdim=True, unbiased=False)
    return (x - m) / torch.sqrt(v + eps)
def _scatter_add(tgt, idx, src, axis=0):
    return tgt.clone().index_add_(axis, idx, src)
def _segment_sum(src, seg, n):
    out = torch.zeros((n,) + src.shape[1:], dtype=src.dtype)
    return out.index_add_(0, seg, src)
def _pad(x, pw):
    flat = tuple(v for pair in reversed(pw) for v in pair)
    return torch.nn.functional.pad(x, flat)

kernel_name = 'interleave_layers__ssm_conv_h3__mixer_s_mlp__prompt'

def setup_inputs():

    _w = (lambda a: (lambda t: t.to(torch.bfloat16) if t.is_floating_point() else t)(torch.as_tensor(a)))
    def _A_setup():
        B, S, D = 1, 2048, 1024
        ks = 4
        return {
            "q": _w((lambda *s: torch.randn(*s, dtype=torch.bfloat16) * 0.05)(B, S, D)),
            "k": _w((lambda *s: torch.randn(*s, dtype=torch.bfloat16) * 0.4)(B, S, D)),
            "v": _w((lambda *s: torch.randn(*s, dtype=torch.bfloat16) * 0.4)(B, S, D)),
            "shift_k": _w((lambda *s: torch.randn(*s, dtype=torch.bfloat16) * 0.4)(D, ks) * 0.5),
            "ssm_k": _w((lambda *s: torch.randn(*s, dtype=torch.bfloat16) * 0.4)(D, S) * (1.0 / S ** 0.5)),
            "ssm_D": _w((lambda *s: torch.randn(*s, dtype=torch.bfloat16) * 0.4)(D)),
        }
    _A_in = _A_setup()

    def _B_setup():
        B, S, D, F = 1, 2048, 1024, 3584
        return {
            "x":  _w((lambda *s: torch.randn(*s, dtype=torch.bfloat16) * 0.05)(B, S, D)),
            "w1": _w((lambda *s: torch.randn(*s, dtype=torch.bfloat16) * 1.6)(D, D) * (D ** -0.5)),
            "w2": _w((lambda *s: torch.randn(*s, dtype=torch.bfloat16) * 1.6)(D, D) * (D ** -0.5)),
            "w3": _w((lambda *s: torch.randn(*s, dtype=torch.bfloat16) * 1.6)(D, F) * (D ** -0.5)),
            "w4": _w((lambda *s: torch.randn(*s, dtype=torch.bfloat16) * 1.6)(F, D) * (F ** -0.5)),
        }
    _B_in = _B_setup()

    return {
        "A_q": _A_in["q"],
        "A_k": _A_in["k"],
        "A_v": _A_in["v"],
        "A_shift_k": _A_in["shift_k"],
        "A_ssm_k": _A_in["ssm_k"],
        "A_ssm_D": _A_in["ssm_D"],
        "B_x": _B_in["x"],
        "B_w1": _B_in["w1"],
        "B_w2": _B_in["w2"],
        "B_w3": _B_in["w3"],
        "B_w4": _B_in["w4"],
    }

def reference(A_q, A_k, A_v, A_shift_k, A_ssm_k, A_ssm_D, B_x, B_w1, B_w2, B_w3, B_w4):
    def _A_ref(q, k, v, shift_k, ssm_k, ssm_D):
        B, S, D = q.shape
        ks = shift_k.shape[-1]
        k_pad = _pad(k, ((0, 0), (ks - 1, 0), (0, 0)))
        k_shift = torch.zeros_like(k)
        for t in range(ks):
            k_shift = k_shift + k_pad[:, t:t + S, :] * shift_k[:, ks - 1 - t][None, None, :]
        kv = k_shift * v
        L = 2 * S
        kv_pad = _pad(kv, ((0, 0), (0, S), (0, 0)))
        kf_pad = _pad(ssm_k, ((0, 0), (0, S)))
        kv_f = (lambda x, axes=(-2,-1): torch.fft.rfft2(x.float(), dim=axes))(kv_pad[:, None, :, :], axes=(1, 2))
        kf_f = (lambda x, axes=(-2,-1): torch.fft.rfft2(x.float(), dim=axes))(kf_pad[:, None, :], axes=(1, 2))
        kf_f = (lambda x, *d: x.permute(*d))(kf_f, 1, 2, 0)
        y_f = kv_f * kf_f[None, :, :, :]
        y = (lambda x, s, axes=(-2,-1): torch.fft.irfft2(x, s=s, dim=axes).to(torch.bfloat16))(y_f, (1, L), axes=(1, 2))[:, 0, :S, :]
        y = y + kv * ssm_D[None, None, :]
        return q * y

    def _B_ref(x, w1, w2, w3, w4):
        B, S, D = x.shape
        h = _gelu(_layernorm(x, axis=-1) @ w1)
        c = D // 4
        g0 = _pad(h[:, :, 0*c:1*c], ((0, 0), (1, 0), (0, 0)))[:, :S, :]
        g1 = _pad(h[:, :, 1*c:2*c], ((0, 0), (0, 1), (0, 0)))[:, 1:, :]
        g2 = _pad(h[:, :, 2*c:3*c], ((0, 0), (2, 0), (0, 0)))[:, :S, :]
        g3 = _pad(h[:, :, 3*c:   ], ((0, 0), (0, 2), (0, 0)))[:, 2:, :]
        hs = torch.concatenate([g0, g1, g2, g3], axis=-1) @ w2
        x1 = x + hs
        h2 = _gelu(_layernorm(x1, axis=-1) @ w3) @ w4
        return x1 + h2

    x = A_q
    x = x + _A_ref(_layernorm(x, axis=-1), A_k, A_v, A_shift_k, A_ssm_k, A_ssm_D)
    x = x + _B_ref(_layernorm(x, axis=-1), B_w1, B_w2, B_w3, B_w4)
    x = x + _A_ref(_layernorm(x, axis=-1), A_k, A_v, A_shift_k, A_ssm_k, A_ssm_D)
    x = x + _B_ref(_layernorm(x, axis=-1), B_w1, B_w2, B_w3, B_w4)
    return x
```

```python
class Asm:
    def __init__(self):
        self.lines = []
        self.launches = []
        self.descs = []
        self._lab = 0
    def e(self, s):
        for l in s.strip("\n").split("\n"):
            l = l.strip()
            if l: self.lines.append(("" if l.endswith(":") else "    ") + l)
    def lab(self, base="L"):
        self._lab += 1
        return f"{base}_{self._lab}"
    def begin_kernel(self, name):
        self.lines.append(f".globl {name}")
        self.lines.append(".p2align 8")
        self.lines.append(f".type {name},@function")
        self.lines.append(f"{name}:")
    def end_kernel(self, name, vgpr, sgpr=102, accum=None, agpr=0):
        self.e("s_endpgm")
        if accum is None: accum = (vgpr + 3) // 4 * 4
        nfv = accum + agpr if agpr else vgpr
        self.descs.append(f""".amdhsa_kernel {name}
  .amdhsa_next_free_vgpr {nfv}
  .amdhsa_next_free_sgpr {sgpr}
  .amdhsa_accum_offset {accum}
  .amdhsa_group_segment_fixed_size 0
  .amdhsa_kernarg_size 112
  .amdhsa_user_sgpr_count 2
  .amdhsa_user_sgpr_kernarg_segment_ptr 1
  .amdhsa_system_sgpr_workgroup_id_x 1
  .amdhsa_float_denorm_mode_32 3
.end_amdhsa_kernel""")
    def launch(self, name, grid, block, lds):
        self.launches.append(f"; @launch kernel={name} grid=({grid},1,1) block=({block},1,1) lds={lds}")
    def text(self, header=""):
        out = []
        if header: out.append(header.rstrip("\n"))
        out += self.launches
        out.append('.amdgcn_target "amdgcn-amd-amdhsa--gfx950"')
        out.append(".text")
        import hazard
        fixed, n = hazard.fix(self.lines)
        self.nops_added = n
        out += fixed
        out.append('.section .rodata,"a"')
        for d in self.descs:
            out.append(".p2align 6")
            out.append(d)
        return "\n".join(out) + "\n"
    def srd(self, d, base, nbytes, off=0):
        if off:
            self.e(f"s_add_u32 s{d}, s{base}, {off:#x}")
            self.e(f"s_addc_u32 s{d+1}, s{base+1}, 0")
        else:
            self.e(f"s_mov_b32 s{d}, s{base}")
            self.e(f"s_mov_b32 s{d+1}, s{base+1}")
        self.e(f"s_mov_b32 s{d+2}, {nbytes:#x}")
        self.e(f"s_mov_b32 s{d+3}, 0x20000")
```

```python
import re

TRANS = ("v_exp_f32", "v_log_f32", "v_rcp_f32", "v_rsq_f32", "v_sqrt_f32", "v_sin_f32", "v_cos_f32", "v_rcp_iflag_f32")

def regs(tok):
    tok = tok.strip()
    tok = re.sub(r"^-|^\|(.*)\|$|^abs\((.*)\)$", lambda m: m.group(1) or m.group(2) or "", tok)
    m = re.fullmatch(r"([vsa])(\d+)", tok)
    if m: return {(m.group(1), int(m.group(2)))}
    m = re.fullmatch(r"([vsa])\[(\d+):(\d+)\]", tok)
    if m: return {(m.group(1), i) for i in range(int(m.group(2)), int(m.group(3)) + 1)}
    if tok in ("vcc", "vcc_lo", "vcc_hi"): return {("x", "vcc")}
    if tok in ("exec", "exec_lo", "exec_hi"): return {("x", "exec")}
    if tok == "m0": return {("x", "m0")}
    return set()

class I:
    def __init__(self, text):
        self.text = text
        t = text.split(";")[0].strip()
        self.op = t.split()[0] if t else ""
        rest = t[len(self.op):].strip()
        ops = [o.strip() for o in re.split(r",(?![^\[]*\])", rest)] if rest else []
        self.mods = ""
        if ops:
            parts = ops[-1].split(None, 1)
            if len(parts) == 2: ops[-1], self.mods = parts
        self.ops = ops
        op = self.op
        self.mfma = op.startswith("v_mfma")
        self.valu = op.startswith("v_") and not self.mfma
        self.trans = any(op.startswith(x) for x in TRANS)
        self.vmem = op.startswith(("buffer_", "global_", "flat_"))
        self.ds = op.startswith("ds_")
        self.salu = op.startswith("s_")
        self.dpp = "_dpp" in op or "row_" in self.mods or "quad_perm" in self.mods or "wave_" in self.mods
        self.permlane = op.startswith("v_permlane")
        self.states = 1
        if op == "s_nop": self.states = int(ops[0], 0) + 1
        R = [regs(o) for o in ops]
        W = set(); Rd = set()
        if self.mfma:
            W = R[0]; self.A = R[1]; self.B = R[2]; self.C = R[3]; Rd = R[1] | R[2] | R[3]
            self.passes = 8 if "32x32" in op else 4
        elif self.valu:
            W = set(R[0]); Rd = set().union(*R[1:]) if len(R) > 1 else set()
            if op.startswith(("v_add_co", "v_sub_co", "v_addc_co", "v_subb_co", "v_subrev_co", "v_div_scale", "v_mad_u64")):
                W |= R[1]; Rd = set().union(*R[2:])
            if op.startswith(("v_fmac", "v_dot2c", "v_pk_fmac", "v_writelane")) or self.dpp or "sdwa" in op: Rd |= R[0]
            if self.permlane: W |= R[1]; Rd |= R[0]
            if op.startswith("v_cmpx"): W |= {("x", "exec")}
        elif self.vmem:
            lds = " lds" in (" " + self.mods) or "_lds_" in op
            self.lds = lds
            if "store" in op or "atomic" in op:
                Rd = set().union(*R) if R else set()
                if op.startswith("buffer_"): self.data = R[0]
                elif R: self.data = R[1] if len(R) <= 3 else R[2]
                if "atomic" in op and "sc0" in self.mods: W = R[0]
            elif "load" in op:
                if lds: Rd = set().union(*R) | {("x", "m0")}
                else: W = R[0]; Rd = set().union(*R[1:])
        elif self.ds:
            if "read" in op or "permute" in op or "swizzle" in op: W = R[0]; Rd = set().union(*R[1:])
            else: Rd = set().union(*R)
        elif self.salu:
            if op.startswith(("s_cmp", "s_cbranch", "s_branch", "s_waitcnt", "s_barrier", "s_nop", "s_endpgm", "s_setprio", "s_sleep", "s_bitcmp")):
                Rd = set().union(*R) if R else set()
            else:
                W = set(R[0]) if R else set(); Rd = set().union(*R[1:]) if len(R) > 1 else set()
                if "saveexec" in op: W |= {("x", "exec")}
        self.W = W; self.R = Rd
        self.wide_store = self.vmem and ("store" in op) and op.endswith(("x3", "x4"))

def isv(r): return r[0] in "va"
def iss(r): return r[0] == "s" or r == ("x", "vcc")

def need(p, c):
    n = 0
    pv = {r for r in p.W if isv(r)}; ps = {r for r in p.W if iss(r)}
    if p.valu:
        if c.mfma and pv & c.R: n = max(n, 2)
        if c.valu and c.dpp and pv & c.R: n = max(n, 2)
        if c.permlane and pv & c.R: n = max(n, 2)
        if c.op.startswith(("v_readlane", "v_readfirstlane")) and pv & c.R: n = max(n, 1)
        if p.trans and c.valu and not c.trans and pv & c.R: n = max(n, 1)
        if p.op.startswith("v_dot") and (c.valu or c.vmem or c.ds or c.mfma) and pv & (c.R | c.W) and not (c.op == p.op and pv & regs(c.ops[-1]) and not pv & (regs(c.ops[1]) | regs(c.ops[2]))): n = max(n, 3)
        if p.trans and (c.mfma or c.vmem or c.ds) and pv & c.R: n = max(n, 2)
        if ("sdwa" in p.op or ("op_sel" in p.mods and not p.op.startswith("v_pk_"))) and c.valu and pv & (c.R | c.W): n = max(n, 1)
        if ps:
            if c.vmem and ps & c.R: n = max(n, 5)
            if c.valu and ps & c.R: n = max(n, 4 if c.op.startswith(("v_readlane", "v_writelane", "v_div_fmas")) else 2)
            if c.salu and ps & c.R: n = max(n, 1)
        if ("x", "exec") in p.W:
            if c.dpp: n = max(n, 5)
            if c.mfma or c.permlane or c.op.startswith(("v_readlane", "v_readfirstlane", "v_writelane")): n = max(n, 4)
    if p.salu and ("x", "m0") in p.W and c.vmem and getattr(c, "lds", False): n = max(n, 1)
    if p.wide_store and (c.valu or c.mfma) and p.data & c.W: n = max(n, 2)
    if p.wide_store and (c.ds or c.vmem) and p.data & c.W: n = max(n, 1)
    if p.mfma:
        big = {4: 8, 8: 12}[p.passes]
        if c.mfma:
            if p.W & (c.A | c.B): n = max(n, big)
            if p.W & c.C and not (p.W == c.C and p.passes == c.passes): n = max(n, {4: 6, 8: 10}[p.passes])
            if p.W & c.W and p.W != c.W: n = max(n, big)
        elif (c.valu or c.vmem or c.ds) and p.W & (c.R | c.W): n = max(n, big)
        if c.valu and p.C & c.W: n = max(n, {4: 3, 8: 7}[p.passes])
    return n

def fix(lines):
    out = []
    hist = []
    labels = {}
    def deficit(hist, c):
        d = 0; dist = 0
        for p in reversed(hist):
            if dist >= 20: break
            d = max(d, need(p, c) - dist)
            dist += p.states
        return d
    added = 0
    fwd = {}
    alts = []
    for ln in lines:
        s = ln.strip()
        if not s or s.startswith((".", ";")):
            out.append(ln); continue
        if s.endswith(":"):
            labels[s[:-1]] = len(hist); out.append(ln)
            for h in fwd.pop(s[:-1], []): alts.append([h, 20])
            continue
        c = I(s)
        d = max([deficit(hist, c)] + [deficit(h, c) for h, _ in alts])
        while d > 0:
            k = min(d, 16)
            nop = I(f"s_nop {k-1}")
            out.append(f"    s_nop {k-1}"); hist.append(nop); d -= k; added += 1
            for al in alts: al[0].append(nop)
        for al in alts: al[0].append(c); al[1] -= 1
        alts = [al for al in alts if al[1] > 0]
        if c.op.startswith(("s_cbranch", "s_branch")) and c.ops[0] not in labels:
            fwd.setdefault(c.ops[0], []).append(hist[-20:] + [c])
            for al in alts: fwd[c.ops[0]].append(list(al[0][-21:]))
        if c.op.startswith(("s_cbranch", "s_branch")) and c.ops[0] in labels:
            h2 = hist + [c]; worst = 0
            for t in hist[labels[c.ops[0]]: labels[c.ops[0]] + 20]:
                worst = max(worst, deficit(h2, t)); h2 = h2 + [t]
            if worst > 0:
                out.append(f"    s_nop {worst-1}"); hist.append(I(f"s_nop {worst-1}")); added += 1
        out.append(ln); hist.append(c)
        if c.op == "s_endpgm": hist = hist + [I("s_nop 15"), I("s_nop 15")]
    return out, added
```

```python
import sys, os, math, struct
sys.path.insert(0, "dev")
from asmgen import Asm

KNAME = "interleave_layers__ssm_conv_h3__mixer_s_mlp__prompt_kernel"
MB = 1 << 20
UT, Y = 24 * MB, 28 * MB
CSP = {1: 20 * MB, 3: 20 * MB + 128 * 1024}
A_Q, A_K, A_V, A_SH, A_SSMK, A_SSMD, B_X, B_W1, B_W2, B_W3, B_W4, D_OUT, D_DBG, D_WS = [8 * i for i in range(14)]
STAMP = int(os.environ.get("STAMP", "0"))
def f32(x): return "0x%08x" % struct.unpack("<I", struct.pack("<f", x))[0]
GC1 = -2.0 * math.sqrt(2.0 / math.pi) * math.log2(math.e)
GC2 = GC1 * 0.044715

class VA:
    def __init__(self, start=1): self.n = start; self.hi = start
    def __call__(self, cnt=1, al=None):
        if al is None: al = 2 if cnt > 1 else 1
        self.n = (self.n + al - 1) // al * al
        r = self.n; self.n += cnt; self.hi = max(self.hi, self.n); return r
def vr(b, n): return f"v[{b}:{b+n-1}]" if n > 1 else f"v{b}"

def unpack(a, lo, hi, src):
    a.e(f"v_lshlrev_b32 v{lo}, 16, v{src}")
    a.e(f"v_and_b32 v{hi}, 0xffff0000, v{src}")
def round2(a, x, y, tmp):
    a.e(f"v_cvt_pk_bf16_f32 v{tmp}, v{x}, v{y}")
    unpack(a, x, y, tmp)
def round1(a, x):
    a.e(f"v_cvt_pk_bf16_f32 v{x}, v{x}, v{x}")
    a.e(f"v_lshlrev_b32 v{x}, 16, v{x}")
def red_g(a, x, t):
    a.e(f"v_mov_b32 v{t}, v{x}"); a.e(f"v_permlane16_swap_b32 v{x}, v{t}"); a.e(f"v_add_f32 v{x}, v{x}, v{t}")
    a.e(f"v_mov_b32 v{t}, v{x}"); a.e(f"v_permlane32_swap_b32 v{x}, v{t}"); a.e(f"v_add_f32 v{x}, v{x}, v{t}")
def ln_finish(a, mean, var, rs, s=None):
    round1(a, mean); round1(a, var)
    a.e(f"v_add_f32 v{var}, {f32(1e-5)}, v{var}"); round1(a, var)
    a.e(f"v_sqrt_f32 v{var}, v{var}"); round1(a, var)
    if s is not None: a.e(f"v_mov_b32 v{s}, v{var}")
    a.e(f"v_rcp_f32 v{rs}, v{var}")


FLG = 22 * MB + int(os.environ.get("FOFF", "0"))
LB0, LSTR, GSTR = 32 * MB, 64 * MB, 8 * MB
oH2 = 0; oSM = 1792 * 1024; oFP = 16384; oST2 = oSM + 32768; oLNS = oSM + 65536
oX3, oX1P, oP0, oP1 = [4 * MB + i * 512 * 1024 for i in range(4)]
XSZ = 512 * 1024 - 8192; H2SZ = 1792 * 1024 - 8192
HSB = 160 * MB; PITCH = 65536 + int(os.environ.get("SKEW", "0")); oHS = None
def fso(stage): return int(stage * 256)
def spread(a, d, src):
    a.e(f"s_lshr_b32 s53, s{src}, 3"); a.e("s_lshl_b32 s53, s53, 14"); a.e(f"s_and_b32 s{d}, s{src}, 7"); a.e(f"s_lshl_b32 s{d}, s{d}, 10"); a.e(f"s_add_u32 s{d}, s{d}, s53")
ST_R, ST_G1, ST_G2, ST_G3, ST_G4, ST_R2, ST_G3B, ST_G3A = range(8); ST_G2S = 5.5
F_KVT, F_FRONT, F_CS = FLG, FLG + 32768, FLG + 49152
LDS_TOTAL = 163840
AUX = LDS_TOTAL - 4096
SC = "sc1"
PSLEEP = int(os.environ.get("PSLEEP", "5"))
ROT = int(os.environ.get("ROT", "1"))
PACE = int(os.environ.get("PACE", "8"))
PDEPTH = int(os.environ.get("PDEPTH", "1"))
WROT = int(os.environ.get("WROT", "1"))
PRIO = int(os.environ.get("PRIO", "0"))
STQ = int(os.environ.get("STQ", "12"))
CPRIO = int(os.environ.get("CPRIO", "0"))
FSLEEP = int(os.environ.get("FSLEEP", "3"))
CSPRIO = int(os.environ.get("CSPRIO", "0"))
NT = os.environ.get("NT", "nt"); HALO = int(os.environ.get("HALO", "0")); NTK = os.environ.get("NTK", "" if HALO else NT); NTH = os.environ.get("NTH", NT)
W1F = int(os.environ.get("W1F", "7"))
WSC = eval(os.environ.get("WSC", "{}"))
TLBW = int(os.environ.get("TLBW", "0"))
T12 = eval(os.environ.get("T12", "{}"))
T23 = eval(os.environ.get("T23", "()"))
OWN3 = int(os.environ.get("OWN3", "1"))
PUB2 = int(os.environ.get("PUB2", "4"))
MAP = int(os.environ.get("MAP", "4"))
HSPLIT = int(os.environ.get("HSPLIT", "2"))
W1G = int(os.environ.get("W1G", "9"))
PWAIT = int(os.environ.get("PWAIT", "8"))
DL = eval(os.environ.get("DL", "[2,4]"))
PACES = eval(os.environ.get("PACES", "{4:4}"))
C0PUB = int(os.environ.get("C0PUB", "5"))
LNSL = AUX + 1024

CFG = {1: dict(WM=4, WN=1, MT=2, NT=4, KBT=32, NS=16, NA=1.5, NW=16, A=oX3, W=B_W1, LDW=2048),
       2: dict(WM=4, WN=1, MT=2, NT=4, KBT=32, NS=16, NA=0, NW=16, A=oHS, W=B_W2, LDW=2048),
       3: dict(WM=2, WN=2, MT=4, NT=7, KBT=32, NS=16, NA=3, NW=3, A=oX1P, W=B_W3, LDW=7168, NPRE=2, WR=1, S0=2, WB=73728),
       4: dict(WM=2, WN=2, MT=4, NT=4, KBT=112, NS=28, NA=3, NW=6, A=oH2, W=B_W4, LDW=2048)}
for w, d in eval(os.environ.get("CFG", "{}")).items(): CFG[w].update(d)
for c in CFG.values():
    c.setdefault("NPRE", c["NW"]); c.setdefault("APRE", min(c["NA"], 3)); c.setdefault("WR", 1)
    c["TN16"] = c["WN"] * c["NT"]; c["STB"] = c["TN16"] * 2048; c.setdefault("WB", int(c["NA"] * 16384)); c.setdefault("S0", 0)
    c["RB"] = c["TN16"] * 32
    assert c["WB"] + c["NW"] * c["STB"] <= AUX
NX = 0
def nib(t): return sum(x << (4 * i) for i, x in enumerate(t))
CSO = {1: AUX + 3584, 3: AUX}

LW = AUX + 3072
def mstamp(a, force=False):
    if os.environ.get("JIT"):
        X = a.lab("jit")
        a.e("s_cselect_b32 s101, 1, 0"); a.e("s_memtime s[64:65]"); a.e("s_waitcnt lgkmcnt(0)"); a.e(f"s_and_b32 s64, s64, {os.environ['JIT']}"); a.e("s_cmp_lg_u32 s64, 0")
        a.e(f"s_cbranch_scc1 {X}"); a.e("s_sleep 50"); a.e(f"{X}:"); a.e("s_cmp_eq_u32 s101, 1")
        return
    if not STAMP or (os.environ.get("GST") and not force): return
    a.e(("s_memrealtime" if STAMP == 2 else "s_memtime") + " s[64:65]"); a.e("s_mov_b32 s100, m0"); a.e("s_mov_b32 m0, s66"); a.e("s_waitcnt lgkmcnt(0)")
    a.e("v_writelane_b32 v255, s64, m0"); a.e("s_mov_b32 m0, s100")
    a.e("s_add_u32 s66, s66, 1")

def lsrd(a, d, off, nbytes, prev=False):
    if prev:
        a.e(f"s_sub_u32 s{d}, s62, {LSTR - off:#x}"); a.e(f"s_subb_u32 s{d+1}, s63, 0")
        a.e(f"s_mov_b32 s{d+2}, {nbytes:#x}"); a.e(f"s_mov_b32 s{d+3}, 0x20000")
    else: a.srd(d, 62, nbytes, off=off)

def hs_srd(a, d):
    a.e("s_lshl_b32 s53, s60, 24"); a.e(f"s_add_u32 s53, s53, {HSB}")
    a.e(f"s_add_u32 s{d}, s4, s53"); a.e(f"s_addc_u32 s{d+1}, s5, 0"); a.e(f"s_mov_b32 s{d+2}, {128*PITCH}"); a.e(f"s_mov_b32 s{d+3}, 0x20000")

def group_off(a, d, m):
    a.e(f"s_lshr_b32 s53, s{m}, 3"); a.e("s_lshl_b32 s53, s53, 2"); a.e(f"s_and_b32 s54, s{m}, 3"); a.e("s_add_u32 s53, s53, s54"); a.e("s_lshl_b32 s53, s53, 23")
    a.e(f"s_lshr_b32 s54, s{m}, 2"); a.e("s_xor_b32 s54, s54, s94"); a.e("s_and_b32 s54, s54, 1"); a.e("s_lshl_b32 s54, s54, 13")
    a.e(f"s_add_u32 s{d}, s53, s54"); a.e(f"s_add_u32 s{d}, s{d}, {LB0}")

PV = 240
def poll_core(a, t, addrs, mask, extra=None, depth=1, cnt=0, nap=None):
    L = a.lab("poll"); D = a.lab("pok")
    n = len(addrs) + (1 if extra else 0)
    if depth > 1: t0 = t; regs = [PV + k * len(addrs) for k in range(depth)]; assert not extra and regs[-1] + len(addrs) <= 256
    else: regs = [t]
    def ld(r):
        for i, ad in enumerate(addrs): a.e(f"buffer_load_dword v{r+i}, v{ad}, s[56:59], 0 offen {SC}")
        if extra: a.e(extra[0])
    a.e("s_mov_b32 s53, 0"); a.e(f"s_add_u32 s54, s52, {cnt}")
    if mask != -1: a.e(f"s_bfm_b64 exec, {mask.bit_length()}, 0")
    for r in regs[:-1]: ld(r); a.e(f"s_sleep {PSLEEP}")
    a.e(f"{L}:")
    for k in range(depth):
        ld(regs[k - 1]); r = regs[k]
        a.e(f"s_waitcnt vmcnt({n*(depth-1)})")
        for i in range(len(addrs)): a.e(f"v_xor_b32 v{r+i}, s54, v{r+i}")
        for i in range(1, len(addrs)): a.e(f"v_or_b32 v{r}, v{r}, v{r+i}")
        if extra:
            for x in extra[1:]: a.e(x)
        a.e(f"v_cmp_eq_u32 vcc, 0, v{r}")
        a.e("s_cmp_eq_u64 vcc, exec"); a.e(f"s_cbranch_scc1 {D}")
        a.e(f"s_sleep {PSLEEP if nap is None else nap}")
    a.e("s_add_u32 s53, s53, 1"); a.e("s_cmp_lt_u32 s53, s61"); a.e(f"s_cbranch_scc1 {L}")
    a.e("s_mov_b32 s61, 0")
    a.e(f"{D}:")
    if mask != -1: a.e("s_mov_b64 exec, -1")

SPLIT = {ST_G1: "sign", ST_G3: "half", ST_G3A: "half", ST_G3B: "half"}
def flag_addr(a, r, stage, prev=False):
    so = fso(stage) - (LSTR if prev else 0)
    a.e(f"s_add_u32 s54, s55, {so & 0xffffffff:#x}")
    sp = SPLIT.get(stage)
    if sp == "half": a.e("s_lshl_b32 s53, s31, 7"); a.e("s_add_u32 s54, s54, s53")
    a.e(f"v_mov_b32 v{r}, s54")
    if sp == "sign":
        a.e("s_add_u32 s53, s54, 128"); a.e(f"v_writelane_b32 v{r}, s53, 1")
        a.e("s_add_u32 s53, s53, s93"); a.e(f"v_writelane_b32 v{r}, s53, 3")
        a.e("s_add_u32 s53, s54, s92"); a.e(f"v_writelane_b32 v{r}, s53, 2")
        return 0xf, 8
    return 1, 8 if sp else 16
def own_wait(a, stage, prev, t):
    if not PWAIT or stage == ST_R: return
    k = {ST_G1: 1, ST_G2: 2, ST_G3A: 3, ST_G4: 4}[stage] - (4 if prev else 0)
    a.e("s_lshl_b32 s54, s60, 2"); a.e(f"s_add_u32 s54, s54, {k}")
    lds_spin(a, LW + 56, "s54", t, nap=PWAIT)
def flag_try(a, r, ad):
    a.e("s_mov_b64 exec, 1"); a.e(f"buffer_load_dword v{r}, v{ad}, s[56:59], 0 offen {SC}"); a.e("s_mov_b64 exec, -1")
def flag_check(a, r, ad, cnt):
    D = a.lab("fok")
    a.e(f"v_readfirstlane_b32 s53, v{r}"); a.e(f"s_add_u32 s54, s52, {cnt}"); a.e("s_cmp_eq_u32 s53, s54"); a.e(f"s_cbranch_scc1 {D}")
    poll_core(a, r, [ad], 1, cnt=cnt)
    a.e(f"{D}:")

def poll(a, stage, t, prev=False):
    D = a.lab("pdone")
    a.e("s_cmp_lg_u32 s30, 4"); a.e(f"s_cbranch_scc1 {D}")
    own_wait(a, stage, prev, t)
    mask, cnt = flag_addr(a, t + 1, stage, prev)
    poll_core(a, t, [t + 1], mask, depth=PDEPTH, cnt=cnt)
    a.e(f"{D}:")
    if stage != ST_G4: mstamp(a)
    a.e("s_barrier")

def publish(a, stage, nw, t, off=None, wait=0, ctr=None, flag=False):
    D = a.lab("pub")
    mark = PWAIT and off is None and stage in (ST_G1, ST_G2, ST_G3A, ST_G4)
    if off is None:
        a.e(f"s_add_u32 s53, s55, {fso(stage)}"); off = 53
        sp = SPLIT.get(stage)
        if sp == "half": a.e("s_lshl_b32 s54, s31, 7"); a.e("s_add_u32 s53, s53, s54")
        if sp == "sign": a.e("s_and_b32 s54, s29, 4"); a.e("s_lshl_b32 s54, s54, 5"); a.e("s_add_u32 s53, s53, s54")
    a.e(f"v_mov_b32 v{t}, 1"); a.e(f"v_mov_b32 v{t+1}, {LW + (ctr if ctr is not None else 4 if nw == 8 else 0)}"); a.e(f"v_mov_b32 v{t+3}, 0")
    a.e("s_mov_b64 exec, 1")
    if wait is not None: a.e(f"s_waitcnt vmcnt({wait})")
    if nw > 1:
        a.e(f"ds_add_rtn_u32 v{t+2}, v{t+1}, v{t}")
        if flag: a.e(f"v_mov_b32 v{t+1}, s52")
        a.e("s_waitcnt lgkmcnt(0)")
        a.e(f"v_readfirstlane_b32 s54, v{t+2}")
        a.e(f"s_and_b32 s54, s54, {nw-1}"); a.e(f"s_cmp_lg_u32 s54, {nw-1}"); a.e(f"s_cbranch_scc1 {D}")
    if flag: a.e(f"buffer_store_dword v{t+1}, v{t+3}, s[56:59], s{off} offen {SC}")
    else: a.e(f"buffer_atomic_add v{t}, v{t+3}, s[56:59], s{off} offen {SC}")
    if stage == ST_R and not flag:
        a.e("s_cmp_lg_u32 s60, 0"); a.e(f"s_cbranch_scc1 {D}")
        a.e("s_lshl_b32 s53, s29, 7"); a.e(f"s_add_u32 s53, s53, {F_CS}")
        a.e(f"buffer_atomic_add v{t}, v{t+3}, s[56:59], s53 offen {SC}")
    if mark: a.e(f"v_mov_b32 v{t+1}, {LW+56}"); a.e(f"ds_add_u32 v{t+1}, v{t}")
    a.e(f"{D}:")
    a.e("s_mov_b64 exec, -1")

def lds_spin(a, addr, target, t, dst=53, nap=False):
    L = a.lab("spin")
    a.e(f"v_mov_b32 v{t}, {addr}")
    a.e(f"{L}:")
    if nap: a.e(f"s_sleep {int(nap)}")
    a.e(f"ds_read_b32 v{t+1}, v{t}"); a.e("s_waitcnt lgkmcnt(0)"); a.e(f"v_readfirstlane_b32 s{dst}, v{t+1}")
    a.e(f"s_cmp_ge_u32 s{dst}, {target}"); a.e(f"s_cbranch_scc0 {L}")
def lds_set(a, addr, val, t):
    a.e(f"v_mov_b32 v{t}, {addr}"); a.e(f"v_mov_b32 v{t+1}, {val}")
    a.e("s_waitcnt lgkmcnt(0)"); a.e(f"ds_write_b32 v{t}, v{t+1}")
def lbar(a, k, t):
    a.e(f"v_mov_b32 v{t}, {LW+8}"); a.e(f"v_mov_b32 v{t+1}, 1")
    a.e("s_waitcnt lgkmcnt(0)")
    a.e("s_mov_b64 exec, 1"); a.e(f"ds_add_u32 v{t}, v{t+1}"); a.e("s_mov_b64 exec, -1")
    lds_spin(a, LW + 8, 4 * k, t)

def gelu4(a, X, t, c1, c2):
    P = [(X, t), (X + 2, t + 2)]
    for x, u in P: a.e(f"v_pk_mul_f32 {vr(u,2)}, {vr(x,2)}, {vr(x,2)}")
    for x, u in P: a.e(f"v_pk_fma_f32 {vr(u,2)}, {vr(u,2)}, {vr(c2,2)}, {vr(c1,2)}")
    for x, u in P: a.e(f"v_pk_mul_f32 {vr(u,2)}, {vr(u,2)}, {vr(x,2)}")
    for i in range(4): a.e(f"v_exp_f32 v{t+i}, v{t+i}")
    for x, u in P: a.e(f"v_pk_add_f32 {vr(u,2)}, {vr(u,2)}, 1.0 op_sel_hi:[1,0]")
    for i in range(4): a.e(f"v_rcp_f32 v{t+i}, v{t+i}")
    for x, u in P: a.e(f"v_pk_mul_f32 {vr(x,2)}, {vr(x,2)}, {vr(u,2)}")

W2EARLY = int(os.environ.get("W2EARLY", "1")); QLATE = int(os.environ.get("QLATE", "0"))
TOUCH2 = [(A_Q, 4 * MB)] + ([] if W2EARLY else [(B_W2, 2 * MB)])
CODEPF = int(os.environ.get("CODEPF", "1")); NVOTE = 255; NSAMP = int(os.environ.get("NSAMP", "2"))
W4POS = os.environ.get("W4POS", "3C")
HSTR = 4160; CHB = 24576; UOFF = 4 * HSTR; US = 96
KVS = 4 * CHB

KV = dict(cq=6, tg=7, t=8, ro=9, wo=16, pt=18, kr=22, vv=36, w=44, d=52, hoff=70, tag=76, zz=78)
def front_loads(a):
    cq, tg, t, ro, wo, kr, vv, w = [KV[k] for k in "cq tg t ro wo kr vv w".split()]
    a.e(f"v_and_b32 v{cq}, 31, v0"); a.e(f"v_lshrrev_b32 v{tg}, 5, v0")
    a.e("s_and_b32 s34, s2, 7"); a.e("s_lshr_b32 s35, s2, 3")
    a.e("s_lshl_b32 s36, s35, 17"); a.e("s_lshl_b32 s37, s34, 8"); a.e("s_add_u32 s36, s36, s37")
    a.e(f"v_lshlrev_b32 v{t}, 13, v{tg}"); a.e(f"v_lshl_add_u32 v{t}, v{cq}, 3, v{t}"); a.e(f"v_add_u32 v{ro+3}, s36, v{t}")
    a.e(f"v_add_u32 v{ro+5}, 4096, v{ro+3}")
    a.e(f"s_mov_b32 s18, {4*MB}"); a.e("s_mov_b32 s19, 0x20000"); a.e("s_mov_b32 s22, s18"); a.e("s_mov_b32 s23, s19")
    a.e("s_waitcnt lgkmcnt(0)")
    tag, zz = KV["tag"], KV["zz"]
    a.e("s_mov_b32 s86, 256"); a.e("s_mov_b32 s87, 0x20000"); a.e(f"v_mov_b32 v{zz}, 0")
    a.e("s_lshl_b32 s45, s2, 3"); a.e("s_add_u32 s45, s45, s30"); a.e("s_cmp_lg_u32 s45, 4"); a.e("s_cbranch_scc1 KV_t0")
    a.e("s_lshl_b32 s44, s46, 6"); a.e("s_or_b32 s44, s44, 1"); a.e(f"v_mov_b32 v{tag}, s44")
    a.e("s_mov_b64 exec, 1"); a.e(f"buffer_store_dword v{tag}, v{zz}, s[84:87], 0 offen {SC}"); a.e("s_mov_b64 exec, -1")
    a.e("KV_t0:")
    a.e("s_mov_b64 s[16:17], s[8:9]"); a.e("s_mov_b64 s[20:21], s[10:11]")
    for i in range(4): a.e(f"buffer_load_dwordx2 {vr(kr+2*(i+3),2)}, v{ro+3+(i&2)}, s[16:19], 0 offen offset:{2048*(i&1)} {NTK}")
    for i in range(4): a.e(f"buffer_load_dwordx2 {vr(vv+2*i,2)}, v{ro+3+(i&2)}, s[20:23], 0 offen offset:{2048*(i&1)} {NT}")
    for i in range(3): a.e(f"v_subrev_u32 v{ro+i}, {2048*(3-i)}, v{ro+3}")
    a.e("s_lshl_b32 s37, s34, 10"); a.e(f"v_lshlrev_b32 v{wo}, 5, v{cq}"); a.e(f"v_add_u32 v{wo}, s37, v{wo}")
    a.srd(24, 12, 8192)
    for i in range(2): a.e(f"buffer_load_dwordx4 {vr(w+4*i,4)}, v{wo}, s[24:27], 0 offen offset:{16*i}")
    if HALO:
        a.e("s_cmp_lg_u32 s30, 0"); a.e("s_cbranch_scc1 KV_h0"); a.e("s_bfm_b64 exec, 32, 0")
    for i in range(3): a.e(f"buffer_load_dwordx2 {vr(kr+2*i,2)}, v{ro+i}, s[16:19], 0 offen {NTK}")
    if HALO: a.e("s_mov_b64 exec, -1"); a.e("KV_h0:")

def probe_base(a):
    a.e("s_and_b32 s42, s2, 31"); a.e("s_lshl_b32 s42, s42, 8"); a.e("s_lshr_b32 s43, s2, 5"); a.e("s_lshl_b32 s43, s43, 14"); a.e("s_add_u32 s42, s42, s43")
    a.e(f"s_add_u32 s42, s42, {LB0 + oSM + 131072}")
def front_arrive(a, wait):
    D = a.lab("fa"); t = 6
    a.e("s_and_b32 s36, s2, 7"); a.e("s_lshl_b32 s36, s36, 7"); a.e(f"s_add_u32 s36, s36, {F_FRONT}")
    a.e(f"v_mov_b32 v{t}, 1"); a.e(f"v_mov_b32 v{t+1}, {LW+4}"); a.e(f"v_lshlrev_b32 v{t+3}, 10, v1")
    a.e("s_mov_b64 exec, 1")
    if wait: a.e("s_waitcnt vmcnt(0)")
    a.e("s_waitcnt lgkmcnt(0)")
    a.e(f"ds_add_rtn_u32 v{t+2}, v{t+1}, v{t}"); a.e(f"ds_read_b32 v{t+4}, v{t+1} offset:28")
    a.e("s_waitcnt lgkmcnt(0)")
    a.e(f"v_readfirstlane_b32 s54, v{t+2}"); a.e(f"v_readfirstlane_b32 s53, v{t+4}")
    a.e("s_cmp_lg_u32 s54, 15"); a.e(f"s_cbranch_scc1 {D}")
    a.e("s_mov_b64 exec, 0xffff"); a.e("s_or_b32 s53, s53, 1"); a.e(f"v_mov_b32 v{t}, s53")
    a.e(f"buffer_atomic_add v{t}, v{t+3}, s[56:59], s36 offen {SC}")
    a.e(f"{D}:"); a.e("s_mov_b64 exec, -1")
def front_a(a):
    cq, tg, t, pt, kr, vv, w, d, hoff, tag, zz = [KV[k] for k in "cq tg t pt kr vv w d hoff tag zz".split()]
    v = VA(80)
    a.e("s_and_b32 s41, s30, 3"); chan_setup(a, 41)
    a.e("s_lshl_b32 s36, s39, 12")
    a.e("s_add_u32 s12, s14, s36"); a.e("s_addc_u32 s13, s15, 0"); a.e("s_mov_b32 s14, 4096"); a.e("s_mov_b32 s15, 0x20000")
    a.e("s_lshr_b32 s45, s30, 2"); a.e("s_lshl_b32 s45, s45, 11")
    for it in range(3):
        if it < 2: a.e(f"s_add_u32 s36, s45, {(1024*it - 64) & 0xffffffff:#x}")
        else: a.e(f"s_mov_b32 s36, {4096 - 64}")
        a.e(f"v_add_u32 v{hoff+2*it}, s36, v2"); a.e(f"v_add_u32 v{hoff+2*it+1}, 16, v{hoff+2*it}")
    a.srd(8, 6, 4 * MB)
    a.e("s_and_b32 s34, s2, 7"); a.e("s_lshr_b32 s35, s2, 3")
    z = v(4, 4); la = v(); t2 = v(); hw = v()
    for i in range(4): a.e(f"v_mov_b32 v{z+i}, 0")
    a.e(f"v_add_u32 v{hw}, s40, v2")
    a.e(f"ds_write_b128 v{hw}, {vr(z,4)} offset:{UOFF+64*US}")
    a.e(f"s_bfm_b64 exec, {(15*US - 1024)//16}, 0"); a.e(f"ds_write_b128 v{hw}, {vr(z,4)} offset:{UOFF+64*US+1024}"); a.e("s_mov_b64 exec, -1")
    a.e(f"v_lshlrev_b32 v{t}, 2, v{tg}"); a.e(f"v_sub_u32 v{t}, 60, v{t}")
    a.e(f"v_lshrrev_b32 v{t2}, 3, v{t}"); a.e(f"v_bfe_u32 v{la}, v{cq}, 1, 3"); a.e(f"v_xor_b32 v{t2}, v{t2}, v{la}"); a.e(f"v_lshlrev_b32 v{t2}, 4, v{t2}")
    a.e(f"v_and_b32 v{t}, 7, v{t}"); a.e(f"v_lshl_add_u32 v{t2}, v{t}, 1, v{t2}")
    a.e(f"v_lshl_add_u32 v{la}, v{cq}, 9, v{t2}"); a.e(f"v_add_u32 v{la}, {KVS}, v{la}")
    wf = v(8, 2); kf = v(14, 2); vf = v(8, 2); ks = v(8, 2); pr = v(8, 2); o = v(8, 4); tm = v(4, 1)
    a.e("s_waitcnt vmcnt(0)")
    if HALO:
        for i in range(3): a.e(f"buffer_load_dwordx2 {vr(kr+2*i,2)}, v{KV['ro']+i}, s[16:19], 0 offen {NTK}")
        if HALO == 1: a.e("s_waitcnt vmcnt(0)")
    a.e("s_cmp_lg_u32 s30, 4"); a.e("s_cbranch_scc1 KV_t1")
    a.e(f"buffer_load_dword v{tag}, v{zz}, s[84:87], 0 offen {SC}")
    a.e("KV_t1:")
    for it in range(3):
        a.e(f"buffer_load_dwordx4 {vr(d+6*it,4)}, v{hoff+2*it}, s[12:15], 0 offen {NTH}")
        a.e(f"buffer_load_dwordx2 {vr(d+6*it+4,2)}, v{hoff+2*it+1}, s[12:15], 0 offen {NTH}")
    for j in range(4): a.e(f"buffer_load_dwordx2 {vr(RXA+2*j,2)}, v{RRO}, s[8:11], 0 offen offset:{128*(j>>1) + 32*(j&1)} {NTH}")
    if HALO == 2: a.e("s_waitcnt vmcnt(10)")
    mstamp(a)
    for dd in range(2):
        for c in range(2):
            unpack(a, wf + 0 + c, wf + 2 + c, w + 2 * (2 * dd + c)); unpack(a, wf + 4 + c, wf + 6 + c, w + 2 * (2 * dd + c) + 1)
        for i in range(7): unpack(a, kf + 2 * i, kf + 2 * i + 1, kr + 2 * i + dd)
        for i in range(4): unpack(a, vf + 2 * i, vf + 2 * i + 1, vv + 2 * i + dd)
        def rnd(base):
            for i in range(4): a.e(f"v_cvt_pk_bf16_f32 v{tm+i}, v{base+2*i}, v{base+2*i+1}")
            for i in range(4): unpack(a, base + 2 * i, base + 2 * i + 1, tm + i)
        for i in range(4): a.e(f"v_pk_mul_f32 {vr(ks+2*i,2)}, {vr(kf+2*i,2)}, {vr(wf+6,2)}")
        rnd(ks)
        for j in range(1, 4):
            for i in range(4): a.e(f"v_pk_mul_f32 {vr(pr+2*i,2)}, {vr(kf+2*(i+j),2)}, {vr(wf+6-2*j,2)}")
            rnd(pr)
            for i in range(4): a.e(f"v_pk_add_f32 {vr(ks+2*i,2)}, {vr(ks+2*i,2)}, {vr(pr+2*i,2)}")
            rnd(ks)
        for i in range(4): a.e(f"v_pk_mul_f32 {vr(ks+2*i,2)}, {vr(ks+2*i,2)}, {vr(vf+2*i,2)}")
        for c in range(2):
            e = 2 * dd + c
            a.e(f"v_cvt_pk_bf16_f32 v{o+2*e}, v{ks+6+c}, v{ks+4+c}"); a.e(f"v_cvt_pk_bf16_f32 v{o+2*e+1}, v{ks+2+c}, v{ks+c}")
            a.e(f"ds_write_b64 v{la}, {vr(o+2*e,2)} offset:{e*128}")
    a.e("s_cmp_lg_u32 s30, 4"); a.e("s_cbranch_scc1 HB_2")
    a.e(f"v_add_u32 v{pt}, {LW}, v3"); a.e(f"ds_write_b32 v{pt}, v{zz}")
    a.e("s_mov_b32 s53, 0")
    a.e("s_waitcnt vmcnt(10)")
    a.e("HB_p:")
    a.e(f"v_readfirstlane_b32 s52, v{tag}"); a.e("s_cmp_lg_u32 s52, 0"); a.e("s_cbranch_scc1 HB_q")
    a.e(f"buffer_load_dword v{tag}, v{zz}, s[84:87], 0 offen {SC}"); a.e("s_waitcnt vmcnt(0)")
    a.e("s_add_u32 s53, s53, 1"); a.e("s_cmp_lt_u32 s53, s61"); a.e("s_cbranch_scc1 HB_p")
    a.e("s_mov_b32 s52, 1"); a.e("s_mov_b32 s61, 0")
    a.e("HB_q:")
    lds_set(a, LW + 12, "s52", pt)
    a.e("HB_2:")
    a.srd(16, 4, 4 * MB, off=UT)
    ra = v(); go = v(); ob = v(8, 4)
    a.e(f"v_lshrrev_b32 v{t}, 3, v0"); a.e(f"v_and_b32 v{t2}, 7, v0")
    a.e(f"v_lshlrev_b32 v{go}, 12, v{t}"); a.e(f"v_lshl_add_u32 v{go}, v{t2}, 4, v{go}")
    a.e("s_lshl_b32 s36, s34, 19"); a.e("s_sub_u32 s37, 31, s35"); a.e("s_lshl_b32 s37, s37, 7"); a.e("s_add_u32 s36, s36, s37")
    a.e(f"s_add_u32 s37, s36, {64*4096}")
    a.e(f"v_lshrrev_b32 v{ra}, 3, v{t}"); a.e(f"v_xor_b32 v{ra}, v{ra}, v{t2}"); a.e(f"v_lshlrev_b32 v{ra}, 4, v{ra}"); a.e(f"v_lshl_add_u32 v{ra}, v{t}, 7, v{ra}")
    a.e(f"v_add_u32 v{ra}, {KVS}, v{ra}"); a.e(f"v_mov_b32 v{pt}, {LW+12}")
    a.e("s_waitcnt lgkmcnt(0)"); a.e("s_barrier")
    for i in range(2): a.e(f"ds_read_b128 {vr(ob+4*i,4)}, v{ra} offset:{i*8192}")
    a.e(f"ds_read_b32 v{pt+1}, v{pt}")
    for i in range(2):
        a.e(f"s_waitcnt lgkmcnt({2-i})")
        a.e(f"buffer_store_dwordx4 {vr(ob+4*i,4)}, v{go}, s[16:19], s{36+i} offen {SC}")
    a.e("s_waitcnt lgkmcnt(0)"); a.e(f"v_readfirstlane_b32 s52, v{pt+1}")
    a.e("s_cmp_lg_u32 s30, 0"); a.e("s_cbranch_scc1 KV_ni"); a.e("s_cmp_ge_u32 s35, 16"); a.e("s_cbranch_scc1 KV_ni")
    a.e(f"v_mov_b32 v{t}, s52")
    a.e("s_lshl_b32 s37, s34, 7"); a.e("s_lshl_b32 s53, s35, 10"); a.e("s_add_u32 s37, s37, s53"); a.e(f"s_add_u32 s37, s37, {F_FRONT}")
    a.e("s_mov_b64 exec, 1"); a.e(f"buffer_store_dword v{t}, v{zz}, s[56:59], s37 offen {SC}"); a.e("s_mov_b64 exec, -1")
    a.e("KV_ni:")
    a.e(f"s_cmp_ge_u32 s2, {NVOTE}"); a.e("s_cbranch_scc1 KV_n3"); a.e("s_cmp_lg_u32 s30, 5"); a.e("s_cbranch_scc1 KV_n3")
    probe_base(a)
    a.e(f"v_and_b32 v{t}, 1, v1"); a.e(f"v_lshlrev_b32 v{t}, 13, v{t}"); a.e(f"v_lshrrev_b32 v{t2}, 1, v1"); a.e(f"v_lshl_add_u32 v{t}, v{t2}, 7, v{t}")
    a.e("s_mov_b64 exec, 0xf"); a.e(f"buffer_store_dword v{t}, v{t}, s[56:59], s42 offen {SC}"); a.e("s_mov_b64 exec, -1")
    a.e("KV_n3:")
    def pubk():
        a.e("s_lshl_b32 s36, s34, 5"); a.e("s_add_u32 s36, s36, s35"); a.e("s_lshl_b32 s36, s36, 7"); a.e(f"s_add_u32 s36, s36, {F_KVT}")
        mstamp(a)
        publish(a, 0, 8, pt, off=36, flag=True)
        mstamp(a)
    HF = int(os.environ.get("HF", "0"))
    if not HF: pubk()
    else: a.e("s_waitcnt vmcnt(2)")
    cc = wf; hw2 = v()
    a.e(f"v_add_u32 v{hw2}, s45, v{hw}")
    for it in range(3):
        D = d + 6 * it; c0 = cc + 12 * it; c1 = c0 + 4; c2 = c0 + 8
        for k in range(4):
            a.e(f"v_alignbit_b32 v{c0+k}, v{D+k+1}, v{D+k}, 16")
            a.e(f"v_mov_b32 v{c1+k}, v{D+k+1}")
            a.e(f"v_alignbit_b32 v{c2+k}, v{D+k+2}, v{D+k+1}, 16")
        if it == 2: a.e("s_mov_b64 exec, 0xf")
        ad, o0 = (hw2, 1024 * it) if it < 2 else (hw, 4096)
        a.e(f"ds_write_b128 v{ad}, {vr(c0,4)} offset:{o0}")
        a.e(f"ds_write_b128 v{ad}, {vr(c1,4)} offset:{HSTR+o0}")
        a.e(f"ds_write_b128 v{ad}, {vr(c2,4)} offset:{2*HSTR+o0}")
        a.e(f"ds_write_b128 v{ad}, {vr(D+2,4)} offset:{3*HSTR+o0}")
        if it == 2: a.e("s_mov_b64 exec, -1")
    if HF: pubk()
    assert v.hi <= RFO
    r_stage(a, "pre")
def chan_setup(a, wsg):
    a.e("s_and_b32 s38, s2, 7"); a.e("s_lshl_b32 s38, s38, 5"); a.e("s_lshr_b32 s39, s2, 3"); a.e("s_add_u32 s38, s38, s39")
    a.e("s_lshl_b32 s39, s38, 2"); a.e(f"s_add_u32 s39, s39, s{wsg}")
    a.e(f"s_mul_i32 s40, s{wsg}, {CHB}")

def touch(a, ka, nbytes, r):
    n = nbytes // 1024 // 512
    a.e(f"s_load_dwordx2 s[48:49], s[0:1], {ka}")
    a.e("s_lshl_b32 s45, s2, 1"); a.e("s_and_b32 s50, s30, 1"); a.e("s_add_u32 s45, s45, s50"); a.e(f"s_mul_i32 s45, s45, {n*1024}")
    a.e(f"s_mov_b32 s50, {nbytes}"); a.e("s_mov_b32 s51, 0x20000")
    a.e("s_waitcnt lgkmcnt(0)")
    for i in range(n):
        if i and i % 4 == 0: a.e("s_add_u32 s45, s45, 4096")
        a.e(f"buffer_load_dwordx4 {vr(r,4)}, v2, s[48:51], s45 offen offset:{(i&3)*1024}")
    return n

def w2_warm(a):
    a.e("s_mov_b64 s[48:49], s[70:71]"); a.e(f"s_mov_b32 s50, {2*MB}"); a.e("s_mov_b32 s51, 0x20000")
    a.e("s_and_b32 s45, s28, 3"); a.e("s_lshl_b32 s45, s45, 1"); a.e("s_and_b32 s46, s30, 1"); a.e("s_add_u32 s45, s45, s46"); a.e("s_lshl_b32 s45, s45, 18")
    a.e("s_lshl_b32 s46, s29, 7"); a.e("s_add_u32 s45, s45, s46"); a.e("v_lshlrev_b32 v245, 11, v1")
    a.e("buffer_load_dword v244, v245, s[48:51], s45 offen"); a.e(f"s_add_u32 s45, s45, {64*2048}"); a.e("buffer_load_dword v246, v245, s[48:51], s45 offen")
def cs_load(a, which, slot):
    w_setup(a, which, pre=False)
    a.e(f"s_mov_b32 s42, {slot}"); a.e("s_mov_b32 s44, s28")
    w_issue(a, which, direct=True)
CSEL, CFR, CAD, CACC, CSO_ = 16, 72, 144, 156, 164
def cs_prep(a, S1, S3):
    a.e(f"v_and_b32 v{CSO_}, 15, v1"); a.e(f"v_mov_b32 v{CSO_+1}, 0x3f803f80")
    for T in range(14):
        a.e(f"v_cmp_eq_u32 vcc, {T}, v{CSO_}")
        for e in range(4): a.e(f"v_cndmask_b32 v{CSEL+4*T+e}, 0, v{CSO_+1}, vcc")
    pos = {}
    for which, slot, r0, halves in ((1, S1, CAD, 1), (3, S3, CAD + 4, 2)):
        c = CFG[which]
        for hf in range(halves):
            a.e(f"s_mov_b32 s35, {hf}")
            nr, pos[which] = w_bases(a, which, r0 + 2 * hf, 35, c["TN16"] // halves, WV + 8, WV + 9)
            a.e("s_and_b32 s35, s30, 1"); a.e(f"s_mul_i32 s35, s35, {32*c['RB']}"); a.e(f"s_add_u32 s35, s35, {slot}")
            for i in range(nr): a.e(f"v_add_u32 v{r0+2*hf+i}, s35, v{r0+2*hf+i}")
    for i in range(8): a.e(f"v_mov_b32 v{CACC+i}, 0")
    a.e(f"v_lshrrev_b32 v{CSO_+2}, 4, v1"); a.e(f"v_lshlrev_b32 v{CSO_+2}, 4, v{CSO_+2}"); a.e(f"v_lshl_add_u32 v{CSO_+2}, v{CSO_}, 6, v{CSO_+2}")
    a.e(f"v_mov_b32 v{CSO_+1}, 0x7f000000")
    for k, n in ((3, 4), (4, 14)):
        a.e(f"v_cmp_gt_u32 vcc, {n}, v{CSO_}"); a.e(f"v_cndmask_b32 v{CSO_+k}, v{CSO_+1}, v{CSO_+2}, vcc")
    return pos
def cs_sum(a, which, pos):
    c = CFG[which]; ntl = c["TN16"]; N = c["LDW"] // 2
    F = CFR + (0 if which == 3 else 56); A = CACC + (0 if which == 3 else 4)
    for T in range(ntl):
        hf, nt = (T // 7, T % 7) if which == 3 else (0, T)
        for h in range(2):
            r, imm = pos[which](nt, 0, h)
            a.e(f"ds_read_b64_tr_b16 {vr(F+4*T+2*h,2)}, v{(CAD + 4 if which == 3 else CAD) + 2*hf + r} offset:{imm}")
    a.srd(20, 4, 32 * N * 4, off=CSP[which])
    a.e("s_lshl_b32 s35, s28, 1"); a.e("s_and_b32 s36, s30, 1"); a.e("s_add_u32 s35, s35, s36"); a.e(f"s_mul_i32 s35, s35, {N*4}")
    a.e(f"s_mul_i32 s36, s29, {ntl*64}"); a.e("s_add_u32 s35, s35, s36")
    a.e("s_waitcnt lgkmcnt(0)")
    for T in range(ntl): a.e(f"v_mfma_f32_16x16x32_bf16 {vr(A,4)}, {vr(F+4*T,4)}, {vr(CSEL+4*T,4)}, {vr(A,4)}")
    a.e(f"buffer_store_dwordx4 {vr(A,4)}, v{CSO_ + (4 if which == 3 else 3)}, s[20:23], s35 offen {SC}")

def front_b(a):
    pt, dm = 6, 232
    if TAB: tab_load(a)
    w_lanes(a)
    a.e("s_cmp_ge_u32 s30, 6"); a.e("s_cbranch_scc1 FB_cs")
    vd = 12
    a.e(f"s_cmp_ge_u32 s2, {NVOTE}"); a.e("s_cbranch_scc1 FB_np"); a.e("s_cmp_lg_u32 s30, 5"); a.e("s_cbranch_scc1 FB_np")
    probe_base(a); a.e(f"v_mov_b32 v{vd+2}, 0")
    a.e("s_mov_b64 exec, 1"); a.e("s_mov_b32 s46, -1"); a.e("s_mov_b32 s47, -1"); a.e("s_mov_b32 s43, 0")
    a.e("FB_ml:")
    for i in range(2):
        a.e(f"s_add_u32 s45, s42, {i * 8192}")
        a.e("s_memtime s[34:35]"); a.e("s_waitcnt lgkmcnt(0)")
        a.e(f"buffer_load_dword v{vd+1}, v{vd+2}, s[56:59], s45 offen {SC}"); a.e("s_waitcnt vmcnt(0)")
        a.e("s_memtime s[36:37]"); a.e("s_waitcnt lgkmcnt(0)")
        a.e("s_sub_u32 s36, s36, s34"); a.e(f"s_min_u32 s{46+i}, s{46+i}, s36")
    a.e("s_add_u32 s42, s42, 128"); a.e("s_add_u32 s43, s43, 1"); a.e(f"s_cmp_lt_u32 s43, {NSAMP}"); a.e("s_cbranch_scc1 FB_ml")
    a.e("s_cmp_lt_u32 s47, s46"); a.e("s_cselect_b32 s45, 1, 0")
    a.e("s_lshr_b32 s46, s28, 2"); a.e("s_xor_b32 s45, s45, s46"); a.e("s_and_b32 s45, s45, 1"); a.e("s_lshl_b32 s45, s45, 8")
    a.e("s_mov_b64 exec, -1")
    lds_set(a, LW + 32, "s45", pt)
    a.e("FB_np:")
    mstamp(a)
    a.e("s_cmp_lg_u32 s30, 4"); a.e("s_cbranch_scc1 FB_ni")
    a.e(f"v_mov_b32 v{vd}, s52")
    group_off(a, 37, 28); a.e("s_andn2_b32 s37, s37, 0x2000"); a.e("s_lshl_b32 s53, s29, 7"); a.e("s_add_u32 s37, s37, s53"); a.e(f"s_add_u32 s37, s37, {oSM}")
    a.e(f"v_and_b32 v{vd+1}, 1, v1"); a.e(f"v_lshlrev_b32 v{vd+1}, 13, v{vd+1}"); a.e(f"v_lshrrev_b32 v{vd+2}, 1, v1"); a.e(f"v_lshl_add_u32 v{vd+1}, v{vd+2}, 26, v{vd+1}")
    a.e("s_mov_b64 exec, 0xf"); a.e(f"buffer_store_dword v{vd}, v{vd+1}, s[56:59], s37 offen {SC}")
    a.e("s_cmp_lg_u32 s28, 0"); a.e("s_cbranch_scc1 FB_n2")
    a.e(f"s_add_u32 s37, s53, {F_CS}"); a.e("s_mov_b64 exec, 1"); a.e(f"buffer_store_dword v{vd}, v{vd+1}, s[56:59], s37 offen {SC}")
    a.e("FB_n2:")
    a.e("s_mov_b64 exec, -1")
    for i in range(4): a.e(f"v_mov_b32 v{vd+4+i}, 0")
    a.e("s_lshr_b32 s36, s2, 7"); a.e("s_lshl_b32 s36, s36, 24"); a.e(f"s_add_u32 s36, s36, {HSB}")
    a.e("s_add_u32 s20, s4, s36"); a.e("s_addc_u32 s21, s5, 0"); a.e(f"s_mov_b32 s22, {128*PITCH}"); a.e("s_mov_b32 s23, 0x20000")
    a.e("s_and_b32 s36, s2, 127"); a.e(f"s_mul_i32 s36, s36, {PITCH}"); a.e(f"s_add_u32 s36, s36, {16384 - 32}")
    a.e(f"v_and_b32 v{vd+1}, 1, v1"); a.e(f"v_lshlrev_b32 v{vd+1}, 4, v{vd+1}"); a.e(f"v_bfe_u32 v{vd+2}, v1, 1, 1"); a.e(f"v_lshl_add_u32 v{vd+1}, v{vd+2}, 13, v{vd+1}")
    a.e(f"v_bfe_u32 v{vd+2}, v1, 2, 1"); a.e(f"v_mul_u32_u24 v{vd+2}, {32768 + 32}, v{vd+2}"); a.e(f"v_add_u32 v{vd+1}, v{vd+1}, v{vd+2}")
    a.e("s_mov_b64 exec, 0xff"); a.e(f"buffer_store_dwordx4 {vr(vd+4,4)}, v{vd+1}, s[20:23], s36 offen {SC}"); a.e("s_mov_b64 exec, -1")
    a.e("FB_ni:")
    lds_spin(a, LW + 16, 1, pt, nap=2)
    mstamp(a)
    if TLBW:
        a.e("s_cmp_lg_u32 s30, 4"); a.e("s_cbranch_scc1 FB_nt")
        a.e(f"s_load_dwordx2 s[8:9], s[0:1], {D_OUT}")
        a.srd(20, 4, 192 * MB)
        group_off(a, 34, 28)
        a.e("s_sub_u32 s36, s28, 1"); a.e("s_max_i32 s36, s36, 0"); group_off(a, 35, 36)
        a.e("s_add_u32 s36, s28, 1"); a.e("s_min_u32 s36, s36, 15"); group_off(a, 37, 36)
        a.e(f"v_lshlrev_b32 v{vd}, 21, v1"); a.e(f"v_add_u32 v{vd}, {HSB - 8 * 2 * MB}, v{vd}")
        for l, (r, o) in enumerate([(34, 0), (34, oP0 if TLBW == 2 else 4 * MB), (35, 0), (37, 0)]):
            for ly in range(2):
                a.e(f"s_add_u32 s36, s{r}, {o + ly * LSTR}"); a.e(f"v_writelane_b32 v{vd}, s36, {2*l+ly}")
        a.e("s_bfm_b64 exec, 20, 0"); a.e(f"buffer_{'store' if TLBW == 2 else 'load'}_dword v{dm}, v{vd}, s[20:23], 0 offen {SC}")
        a.e("s_waitcnt lgkmcnt(0)"); a.e(f"s_mov_b32 s10, {4*MB}"); a.e("s_mov_b32 s11, 0x20000")
        a.e("s_mov_b64 exec, 1"); a.e(f"buffer_load_dword v{dm+1}, v{RRO}, s[8:11], 0 offen {SC}"); a.e("s_mov_b64 exec, -1")
        a.e("FB_nt:")
    if os.environ.get("W2T", "1") == "2": lds_spin(a, LW + 24, 2, pt, nap=4)
    if os.environ.get("W2T", "1") != "0": touch(a, B_W2, 2 * MB, dm)
    if W4POS == "F": lds_spin(a, LW + 24, 2, pt, nap=4); a.e("s_waitcnt vmcnt(0)")
    if W4POS in ("F", "F0"): touch(a, B_W4, 7 * MB, dm)
    PZF = int(os.environ.get("PZF", "0"))
    if PZF:
        a.srd(20, 4, 32 * MB, off=216 * MB)
        for i in range(4): a.e(f"v_mov_b32 v{216+i}, -1")
        a.e("s_lshl_b32 s45, s2, 1"); a.e("s_and_b32 s50, s30, 1"); a.e("s_add_u32 s45, s45, s50"); a.e(f"s_mul_i32 s45, s45, {PZF*1024}")
        for i in range(PZF):
            a.e(f"buffer_store_dwordx4 v[216:219], v2, s[20:23], s45 offen {SC}"); a.e("s_add_u32 s45, s45, 1024")
            if os.environ.get("PZP"): a.e(f"s_waitcnt vmcnt({os.environ['PZP']})")
    front_arrive(a, True)
    if TAB: tab_make(a, 0)
    PKW = int(os.environ.get("PKW", "2")); PKP = int(os.environ.get("PKP", "8"))
    def park(a): park_load(a, PKP)
    if PKW: lds_spin(a, LW + 24, PKW, pt, nap=4)
    call(a, park)
    W1S = int(os.environ.get("W1S", "4")); W1P = int(os.environ.get("W1P", "8"))
    lds_spin(a, LW + 24, 4, pt, nap=3)
    w_setup(a, 1, pre=False); w1_slots(a, range(9, 16), pace=W1P)
    lds_spin(a, LW + 4, 16, pt, nap=3)
    w1_slots(a, range(W1S, 9), pace=W1P)
    a.e("s_branch FR_end")
    a.e("FB_cs:")
    S1, S3 = KVS - CFG[1]["WB"], KVS + 8192 - CFG[3]["WB"]
    pos = cs_prep(a, S1, S3)
    lds_spin(a, LW + 16, 1, pt, nap=2)
    mstamp(a)
    if CSPRIO: a.e(f"s_setprio {CSPRIO}")
    cs_load(a, 1, S1); cs_load(a, 3, S3)
    a.e("s_waitcnt vmcnt(14)"); cs_sum(a, 1, pos)
    a.e("s_waitcnt vmcnt(1)")
    a.e(f"v_mov_b32 v{pt}, {LW+24}"); a.e(f"v_mov_b32 v{pt+1}, 1")
    a.e("s_mov_b64 exec, 1"); a.e(f"ds_add_u32 v{pt}, v{pt+1}"); a.e("s_mov_b64 exec, -1")
    mstamp(a)
    cs_sum(a, 3, pos)
    front_arrive(a, False)
    if TAB: tab_make(a, 1)
    a.e(f"v_mov_b32 v{pt}, {LW+24}"); a.e(f"v_mov_b32 v{pt+1}, 1")
    a.e("s_mov_b64 exec, 1"); a.e(f"ds_add_u32 v{pt}, v{pt+1}"); a.e("s_mov_b64 exec, -1")
    mstamp(a)
    a.e("s_setprio 0")
    assert CFG[1]["WB"] + 9 * 8192 == KVS
    call(a, park)
    w_setup(a, 1, pre=False)
    lds_spin(a, LW + 4, 16, pt, nap=3)
    w1_slots(a, range(W1S), pace=W1P)

def front_conv(a):
    v = VA(6); lane = 1; l16 = 2
    t = v(); pt = v(4, 2)
    a.e(f"s_load_dwordx2 s[10:11], s[0:1], {A_SSMD}")
    chan_setup(a, 30)
    a.e("s_lshl_b32 s36, s39, 12"); a.e(f"s_add_u32 s36, s36, {UT}")
    a.e("s_add_u32 s16, s4, s36"); a.e("s_addc_u32 s17, s5, 0"); a.e("s_mov_b32 s18, 4096"); a.e("s_mov_b32 s19, 0x20000")
    a.e("s_waitcnt lgkmcnt(0)")
    a.e("s_lshr_b32 s36, s39, 1"); a.e("s_lshl_b32 s36, s36, 2"); a.e("s_load_dword s41, s[10:11], s36")
    uw = v(); u = v(16, 4)
    a.e(f"v_lshrrev_b32 v{t}, 2, v{lane}"); a.e(f"v_mul_u32_u24 v{uw}, {US}, v{t}"); a.e(f"v_and_b32 v{t}, 3, v{lane}")
    a.e(f"v_lshl_add_u32 v{uw}, v{t}, 4, v{uw}"); a.e(f"v_add_u32 v{uw}, s40, v{uw}")
    aa = v(); ba = v(); ua = v(); J = v(); G = v()
    a.e(f"v_and_b32 v{J}, 15, v{lane}"); a.e(f"v_lshrrev_b32 v{G}, 4, v{lane}")
    a.e(f"v_and_b32 v{t}, 3, v{J}"); a.e(f"v_mul_u32_u24 v{aa}, {HSTR}, v{t}")
    a.e(f"v_lshl_add_u32 v{aa}, v{G}, 4, v{aa}"); a.e(f"v_lshrrev_b32 v{t}, 2, v{J}"); a.e(f"v_lshl_add_u32 v{aa}, v{t}, 3, v{aa}")
    a.e(f"v_add_u32 v{aa}, s40, v{aa}")
    a.e(f"v_sub_u32 v{t}, 15, v{J}"); a.e(f"v_mul_u32_u24 v{ua}, {US}, v{t}"); a.e(f"v_add_u32 v{ua}, s40, v{ua}")
    a.e(f"v_lshl_add_u32 v{ba}, v{G}, 4, v{ua}")
    acc = v(32, 4)
    for i in range(0, 32, 2): a.e(f"v_pk_mov_b32 {vr(acc+i,2)}, 0, 0")
    fa = v(64, 4); fb = v(32, 4)
    def rdA(p, o):
        return [f"ds_read_b64 {vr(fa+32*p+8*s_+4*mt+2*h,2)}, v{aa} offset:{64*(o+16*s_) + 32*mt + 8*h}" for s_ in range(4) for mt in range(2) for h in range(2)]
    def rdB(p, o):
        return [f"ds_read_b128 {vr(fb+16*p+4*k,4)}, v{ba} offset:{UOFF + (48 - 16*k + o)*US}" for k in range(4)]
    for x in rdA(0, 0): a.e(x)
    a.e("s_cmp_lg_u32 s30, 0"); a.e("s_cbranch_scc1 CV_w")
    a.e("s_and_b32 s36, s2, 7"); a.e("s_lshl_b32 s36, s36, 12"); a.e(f"s_add_u32 s36, s36, {F_KVT}")
    a.e(f"v_lshlrev_b32 v{pt+1}, 7, v{lane}"); a.e(f"v_add_u32 v{pt+1}, s36, v{pt+1}")
    poll_core(a, pt, [pt + 1], 0xffffffff)
    lds_set(a, LW + 16, 1, pt)
    a.e("CV_w:")
    lds_spin(a, LW + 16, 1, pt)
    mstamp(a)
    for it in range(4): a.e(f"buffer_load_dwordx4 {vr(u+4*it,4)}, v{l16}, s[16:19], 0 offen offset:{1024*it} {SC}")
    for it in range(4):
        a.e(f"s_waitcnt vmcnt({3-it})")
        a.e(f"ds_write_b128 v{uw}, {vr(u+4*it,4)} offset:{UOFF + 16*US*it}")
    a.e(f"v_mov_b32 v{pt}, {LW+20}"); a.e(f"v_mov_b32 v{pt+1}, 1")
    a.e("s_mov_b64 exec, 1"); a.e(f"ds_add_u32 v{pt}, v{pt+1}"); a.e("s_mov_b64 exec, -1")
    a.e("s_waitcnt lgkmcnt(0)")
    mstamp(a)
    for x in rdB(0, 0): a.e(x)
    def step(p, nxt, tail):
        a.e("s_waitcnt lgkmcnt(0)")
        mf = [(c_, s_, mt) for s_ in range(4) for mt in range(2) for c_ in range(s_, 4)]
        for i, (c_, s_, mt) in enumerate(mf):
            A = acc + 8 * c_ + 4 * mt
            a.e(f"v_mfma_f32_16x16x32_bf16 {vr(A,4)}, {vr(fa+32*p+8*s_+4*mt,4)}, {vr(fb+16*p+4*(c_-s_),4)}, {vr(A,4)}")
            for _ in range(2 if i % 3 == 0 else 1):
                if nxt: a.e(nxt.pop(0))
                elif tail and i < 19: a.e(tail.pop(0))
        assert not nxt and not tail
    a.e("s_mov_b32 s43, 0")
    NU = int(os.environ.get("NU", "3")); HP = int(os.environ.get("HP", "0"))
    if NU:
        a.e("CV_r:")
        for p in range(2):
            rd = rdB(1 - p, p + 1) + rdA(1 - p, p + 1)
            step(p, rd[:HP], [])
            for x in rd[HP:]: a.e(x)
        for x in [f"v_add_u32 v{aa}, 128, v{aa}", f"v_add_u32 v{ba}, {2*US}, v{ba}", "s_add_u32 s43, s43, 1", f"s_cmp_lt_u32 s43, {NU}"]: a.e(x)
        a.e("s_cbranch_scc1 CV_r")
    a.e("CV_l:")
    step(0, rdB(1, 1) + rdA(1, 1), [])
    step(1, rdB(0, 2) + rdA(0, 2), [f"v_add_u32 v{aa}, 128, v{aa}", f"v_add_u32 v{ba}, {2*US}, v{ba}", "s_add_u32 s43, s43, 1", "s_cmp_lt_u32 s43, 8"])
    a.e("s_cbranch_scc1 CV_l")
    mstamp(a)
    ya = v(); Dv = v(2, 2)
    a.e("s_bitcmp1_b32 s39, 0"); a.e("s_cselect_b32 s36, 0, 16"); a.e("s_lshl_b32 s41, s41, s36"); a.e("s_and_b32 s41, s41, 0xffff0000")
    a.e(f"v_mov_b32 v{Dv}, s41"); a.e(f"v_mov_b32 v{Dv+1}, s41")
    a.e(f"v_sub_u32 v{t}, 3, v{G}"); a.e(f"v_lshl_add_u32 v{ua}, v{t}, 3, v{ua}")
    for c_ in range(4):
        for mt in range(2):
            a.e(f"ds_read_b64 {vr(u + 2*(c_*2+mt), 2)}, v{ua} offset:{UOFF + (48 - 16*c_)*US + (1-mt)*32}")
    a.e(f"s_mul_i32 s36, s30, {CHB+64}")
    a.e(f"v_mul_u32_u24 v{ya}, 72, v{J}"); a.e(f"v_lshl_add_u32 v{ya}, v{G}, 3, v{ya}"); a.e(f"v_add_u32 v{ya}, s36, v{ya}")
    uf = fa + 56; tmp = fa + 60
    a.e("s_waitcnt lgkmcnt(0)")
    for c_ in range(4):
        for mt in range(2):
            A = acc + 8 * c_ + 4 * mt; U = u + 2 * (c_ * 2 + mt); O = fb + 16 + 2 * (c_ * 2 + mt)
            unpack(a, uf + 3, uf + 2, U); unpack(a, uf + 1, uf, U + 1)
            for r in range(2): a.e(f"v_pk_mul_f32 {vr(uf+2*r,2)}, {vr(uf+2*r,2)}, {vr(Dv,2)}")
            round2(a, uf, uf + 1, tmp); round2(a, uf + 2, uf + 3, tmp + 1)
            round2(a, A, A + 1, tmp); round2(a, A + 2, A + 3, tmp + 1)
            for r in range(2): a.e(f"v_pk_add_f32 {vr(A+2*r,2)}, {vr(A+2*r,2)}, {vr(uf+2*r,2)}")
            a.e(f"v_cvt_pk_bf16_f32 v{O}, v{A}, v{A+1}"); a.e(f"v_cvt_pk_bf16_f32 v{O+1}, v{A+2}, v{A+3}")
            a.e(f"ds_write_b64 v{ya}, {vr(O,2)} offset:{c_*16*72 + mt*32}")
    a.srd(12, 4, 4 * MB, off=Y)
    ta = v(); go = v()
    a.e(f"v_bfe_u32 v{t}, v{lane}, 2, 2"); a.e(f"v_mul_u32_u24 v{ta}, {CHB+64}, v{t}")
    a.e(f"v_lshrrev_b32 v{t}, 1, v{G}"); a.e(f"v_mul_u32_u24 v{t}, 72, v{t}"); a.e(f"v_add_u32 v{ta}, v{ta}, v{t}")
    a.e(f"v_and_b32 v{t}, 1, v{G}"); a.e(f"v_lshl_add_u32 v{ta}, v{t}, 5, v{ta}")
    a.e(f"v_and_b32 v{t}, 3, v{lane}"); a.e(f"v_lshl_add_u32 v{ta}, v{t}, 3, v{ta}")
    a.e(f"s_mul_i32 s36, s30, {16*72}"); a.e(f"v_add_u32 v{ta}, s36, v{ta}")
    a.e(f"v_lshlrev_b32 v{go}, 3, v{lane}")
    a.e("s_lshl_b32 s36, s38, 14"); a.e("s_lshl_b32 s37, s30, 12"); a.e("s_add_u32 s36, s36, s37")
    lbar(a, 1, pt)
    for i in range(8): a.e(f"ds_read_b64_tr_b16 {vr(fa+32+2*i,2)}, v{ta} offset:{144*i}")
    for i in range(8):
        a.e(f"s_waitcnt lgkmcnt({7-i})")
        a.e(f"buffer_store_dwordx2 {vr(fa+32+2*i,2)}, v{go}, s[12:15], s36 offen offset:{512*i} {SC}")
    assert v.hi <= RFO

PK = 48; W3S = 208
RFO, RYO, RRO, RI, RXA, RXB, RYY, RT = 176, 177, 178, 179, 180, 188, 196, 204
def r_addr(a):
    t, t2, I, fo, ro, yo = RT, RT + 1, RI, RFO, RRO, RYO
    a.e(f"v_and_b32 v{I}, 7, v0")
    a.e(f"v_lshrrev_b32 v{t}, 6, v0"); a.e(f"v_lshlrev_b32 v{t}, 4, v{t}"); a.e(f"v_bfe_u32 v{t2}, v0, 3, 3"); a.e(f"v_add_u32 v{t}, v{t}, v{t2}")
    a.e("s_lshr_b32 s78, s29, 1"); a.e("s_lshl_b32 s78, s78, 16"); a.e("s_and_b32 s79, s29, 1"); a.e("s_lshl_b32 s79, s79, 7"); a.e("s_add_u32 s78, s78, s79")
    a.e("s_lshr_b32 s79, s30, 1"); a.e("s_lshl_b32 s79, s79, 13"); a.e("s_add_u32 s78, s78, s79")
    a.e(f"v_lshlrev_b32 v{fo}, 8, v{t}"); a.e(f"v_lshl_add_u32 v{fo}, v{I}, 4, v{fo}"); a.e(f"v_add_u32 v{fo}, s78, v{fo}")
    a.e("s_lshl_b32 s78, s28, 7"); a.e("s_lshl_b32 s79, s29, 3"); a.e("s_add_u32 s78, s78, s79")
    a.e(f"v_add_u32 v{yo}, s78, v{I}"); a.e(f"v_lshlrev_b32 v{ro}, 11, v{yo}")
    a.e(f"v_lshrrev_b32 v{t2}, 2, v{t}"); a.e(f"v_lshlrev_b32 v{t2}, 3, v{t2}"); a.e(f"v_and_b32 v{t}, 3, v{t}"); a.e(f"v_add_u32 v{t}, v{t}, v{t2}")
    a.e(f"v_lshl_add_u32 v{ro}, v{t}, 3, v{ro}")
    a.e(f"v_lshlrev_b32 v{yo}, 3, v{yo}"); a.e(f"v_lshl_add_u32 v{yo}, v{t}, 14, v{yo}")
def load_y(a, skip_last=False):
    a.srd(80, 4, 4 * MB, off=Y)
    if skip_last: a.e("s_cmp_eq_u32 s60, 0"); a.e("s_cselect_b32 s82, s82, 0")
    for j in range(2):
        for hh in range(2):
            a.e(f"s_mov_b32 s78, {(16*j + 4*hh)*16384}")
            a.e(f"buffer_load_dwordx2 {vr(RYY+4*j+2*hh,2)}, v{RYO}, s[80:83], s78 offen {SC}")
def r_pre(a):
    r_addr(a)
    lsrd(a, 84, oX3, XSZ); lsrd(a, 88, oX1P, XSZ)
    for j in range(2):
        a.e(f"buffer_load_dwordx4 {vr(RXA+4*j,4)}, v{RFO}, s[84:87], 0 offen offset:{2048*j} {SC}")
        a.e(f"buffer_load_dwordx4 {vr(RXB+4*j,4)}, v{RFO}, s[88:91], 0 offen offset:{2048*j} {SC}")
    load_y(a)

def r_stage(a, final):
    v = VA(6)
    t = v(); t2 = v(); I = RI; fo = RFO; ro = RRO; pt = v(4, 2)
    xa = RXA; xb = RXB; yy = RYY; x = 206; yf = 222; w = v(16, 4); tmp = v()
    pre = final == "pre"
    S = v(2, 2); pp = v(2, 2); qq = v(2, 2); st = w; mean = v(2, 2); rs = mean + 1; var = v(); sw = v(); sr = v()
    def part(src, n):
        a.e(f"v_pk_add_f32 {vr(pp,2)}, {vr(src,2)}, {vr(src+2,2)}"); a.e(f"v_pk_mul_f32 {vr(qq,2)}, {vr(src,2)}, {vr(src,2)}")
        for i in range(1, 8):
            if i > 1: a.e(f"v_pk_add_f32 {vr(pp,2)}, {vr(pp,2)}, {vr(src+2*i,2)}")
            a.e(f"v_pk_fma_f32 {vr(qq,2)}, {vr(src+2*i,2)}, {vr(src+2*i,2)}, {vr(qq,2)}")
        a.e(f"v_add_f32 v{S}, v{pp}, v{pp+1}"); a.e(f"v_add_f32 v{S+1}, v{qq}, v{qq+1}")
        for k in range(2): a.e(f"v_add_f32_dpp v{S+k}, v{S+k}, v{S+k} row_ror:8 row_mask:0xf bank_mask:0xf")
        for op in ("v_permlane16_swap_b32", "v_permlane32_swap_b32"):
            for k in range(2): a.e(f"v_mov_b32 v{pp+k}, v{S+k}")
            for k in range(2): a.e(f"{op} v{S+k}, v{pp+k}")
            a.e(f"v_pk_add_f32 {vr(S,2)}, {vr(S,2)}, {vr(pp,2)}")
        a.e(f"ds_write_b64 v{sw}, {vr(S,2)} offset:{n*512}")
    def comb(n):
        for k in range(4): a.e(f"ds_read_b128 {vr(st+4*k,4)}, v{sr} offset:{n*512+16*k}")
        a.e("s_waitcnt lgkmcnt(0)")
        for k in range(4): a.e(f"v_pk_add_f32 {vr(st+4*k,2)}, {vr(st+4*k,2)}, {vr(st+4*k+2,2)}")
        a.e(f"v_pk_add_f32 {vr(st,2)}, {vr(st,2)}, {vr(st+4,2)}"); a.e(f"v_pk_add_f32 {vr(st+8,2)}, {vr(st+8,2)}, {vr(st+12,2)}")
        a.e(f"v_pk_add_f32 {vr(st,2)}, {vr(st,2)}, {vr(st+8,2)}")
        a.e(f"v_mul_f32 v{mean}, {f32(1/1024)}, v{st}"); a.e(f"v_mul_f32 v{var}, {f32(1/1024)}, v{st+1}")
        a.e(f"v_fma_f32 v{var}, -v{mean}, v{mean}, v{var}"); a.e(f"v_max_f32 v{var}, 0, v{var}")
    SUBM = f"{vr(mean,2)} op_sel_hi:[1,0] neg_lo:[0,1] neg_hi:[0,1]"; MULR = f"{vr(mean,2)} op_sel:[0,1] op_sel_hi:[1,1]"
    if pre: a.e("s_waitcnt lgkmcnt(0)")
    if final is not True:
        a.e(f"v_lshlrev_b32 v{sr}, 6, v{I}"); a.e(f"v_add_u32 v{sr}, {AUX+2048}, v{sr}")
        a.e(f"s_lshl_b32 s35, s30, 3"); a.e(f"v_add_u32 v{sw}, s35, v{sr}")
    if pre:
        a.e("s_waitcnt vmcnt(0)")
        for i in range(8): unpack(a, x + 2 * i, x + 2 * i + 1, xa + i)
        part(x, 0)
        a.e("s_waitcnt lgkmcnt(0)"); a.e("s_barrier")
        comb(0); ln_finish(a, mean, var, rs)
        for i in range(8):
            D = w + 2 * i
            if i == 0:
                for k in range(2): a.e(f"v_sub_f32 v{pp+k}, 0, v{mean}"); a.e(f"v_mov_b32 v{qq+k}, v{rs}")
            a.e(f"v_pk_add_f32 {vr(D,2)}, {vr(x+2*i,2)}, {vr(pp,2)}"); round2(a, D, D + 1, tmp)
            a.e(f"v_pk_mul_f32 {vr(D,2)}, {vr(D,2)}, {vr(qq,2)}"); a.e(f"v_cvt_pk_bf16_f32 v{xb+i}, v{D}, v{D+1}")
        return
    if not final:
        a.e(f"s_cmp_eq_u32 s60, 0"); a.e(f"s_cbranch_scc1 R_l0")
    else:
        a.e(f"s_load_dwordx2 s[6:7], s[0:1], {D_OUT}")
    lsrd(a, 8, oP0, XSZ, prev=True); lsrd(a, 12, oP1, XSZ, prev=True)
    a.e("s_waitcnt vmcnt(0)")
    for i in range(8):
        if not final: unpack(a, yf + 2 * i, yf + 2 * i + 1, yy + i)
        unpack(a, x + 2 * i, x + 2 * i + 1, xa + i); unpack(a, w + 2 * i, w + 2 * i + 1, xb + i)
        a.e(f"v_pk_add_f32 {vr(x+2*i,2)}, {vr(x+2*i,2)}, {vr(w+2*i,2)}")
    poll(a, ST_G4, pt, prev=True)
    mstamp(a)
    for j in range(2):
        a.e(f"buffer_load_dwordx4 {vr(xa+4*j,4)}, v{fo}, s[8:11], 0 offen offset:{2048*j} {SC}")
        a.e(f"buffer_load_dwordx4 {vr(xb+4*j,4)}, v{fo}, s[12:15], 0 offen offset:{2048*j} {SC}")
    for i in range(8):
        if i % 4 == 0: a.e(f"s_waitcnt vmcnt({2 - i // 2})")
        u = w + 4 * (i & 3)
        unpack(a, u, u + 1, xa + i); unpack(a, u + 2, u + 3, xb + i)
        a.e(f"v_pk_add_f32 {vr(u,2)}, {vr(u,2)}, {vr(u+2,2)}")
        a.e(f"v_pk_add_f32 {vr(x+2*i,2)}, {vr(x+2*i,2)}, {vr(u,2)}")
        if final: a.e(f"v_cvt_pk_bf16_f32 v{xa+i}, v{x+2*i}, v{x+2*i+1}")
        else: round2(a, x + 2 * i, x + 2 * i + 1, tmp)
    if final:
        a.e("s_waitcnt lgkmcnt(0)")
        a.srd(20, 6, 4 * MB)
        OS = os.environ.get("OS", "sc1")
        if os.environ.get("OWIDE", "1") == "1":
            a.e(f"v_bfe_u32 v{t}, v1, 3, 1"); a.e(f"v_cmp_eq_u32 vcc, 1, v{t}")
            for j in range(2):
                lo, hi = xa + 4 * j, xa + 4 * j + 2
                for e in range(2):
                    a.e(f"v_cndmask_b32 v{x+e}, v{hi+e}, v{lo+e}, vcc")
                for e in range(2):
                    a.e(f"v_mov_b32_dpp v{x+2+e}, v{x+e} row_ror:8 row_mask:0xf bank_mask:0xf")
                for e in range(2):
                    a.e(f"v_cndmask_b32 v{x+4+e}, v{lo+e}, v{x+2+e}, vcc"); a.e(f"v_cndmask_b32 v{hi+e}, v{x+2+e}, v{hi+e}, vcc")
                for e in range(2): a.e(f"v_mov_b32 v{lo+e}, v{x+4+e}")
            a.e(f"v_bfe_u32 v{t2}, v1, 4, 1"); a.e(f"v_lshlrev_b32 v{t}, 5, v{t}"); a.e(f"v_lshl_add_u32 v{t}, v{t2}, 4, v{t}")
            a.e(f"v_and_b32 v{t2}, 0xffffffc0, v{ro}"); a.e(f"v_add_u32 v{t}, v{t}, v{t2}")
            for j in range(2): a.e(f"buffer_store_dwordx4 {vr(xa+4*j,4)}, v{t}, s[20:23], 0 offen offset:{128*j} {OS}")
        else:
            for j in range(4): a.e(f"buffer_store_dwordx2 {vr(xa+2*j,2)}, v{ro}, s[20:23], 0 offen offset:{128*(j>>1) + 32*(j&1)} {OS}")
        return v.hi
    part(x, 0)
    a.e("s_waitcnt lgkmcnt(0)"); a.e("s_barrier")
    comb(0)
    ln_finish(a, mean, var, rs)
    lsrd(a, 20, oX3, XSZ)
    for i in range(8):
        D = w + 2 * i
        a.e(f"v_pk_add_f32 {vr(D,2)}, {vr(x+2*i,2)}, {SUBM}"); a.e(f"v_pk_mul_f32 {vr(D,2)}, {vr(D,2)}, {MULR}")
        a.e(f"v_pk_fma_f32 {vr(x+2*i,2)}, {vr(D,2)}, {vr(yf+2*i,2)}, {vr(x+2*i,2)}")
        a.e(f"v_cvt_pk_bf16_f32 v{xa+i}, v{x+2*i}, v{x+2*i+1}")
        if i % 4 == 3: a.e(f"buffer_store_dwordx4 {vr(xa+i-3,4)}, v{fo}, s[20:23], 0 offen offset:{2048*(i//4)} {SC}")
    a.e("s_branch R_s2")
    a.e("R_l0:")
    st_ = st; st = yf
    for i in range(8): unpack(a, x + 2 * i, x + 2 * i + 1, xa + i); unpack(a, w + 2 * i, w + 2 * i + 1, xb + i)
    a.e("s_cmp_lg_u32 s30, 4"); a.e("s_cbranch_scc1 R_fw")
    lds_spin(a, LW + 4, 16, st, nap=int(os.environ.get("NAP4", "4")))
    a.e("s_lshl_b32 s36, s28, 10"); a.e(f"s_add_u32 s36, s36, {F_FRONT}")
    a.e(f"v_lshlrev_b32 v{st+4}, 7, v1"); a.e(f"v_add_u32 v{st+4}, s36, v{st+4}")
    a.e("s_mov_b32 s53, 0"); a.e("s_mov_b64 exec, 0xff")
    a.e("R_fp:")
    a.e(f"buffer_load_dword v{st}, v{st+4}, s[56:59], 0 offen {SC}"); a.e("s_waitcnt vmcnt(0)")
    a.e(f"v_subrev_u32 v{st}, s52, v{st}"); a.e(f"v_and_b32 v{st+1}, 0xffffc0ff, v{st}"); a.e(f"v_cmp_eq_u32 vcc, 32, v{st+1}")
    a.e("s_cmp_eq_u64 vcc, exec"); a.e("s_cbranch_scc1 R_fq")
    a.e(f"s_sleep {FSLEEP}")
    a.e("s_add_u32 s53, s53, 1"); a.e("s_cmp_lt_u32 s53, s61"); a.e("s_cbranch_scc1 R_fp")
    a.e("s_mov_b32 s61, 0")
    a.e("R_fq:")
    a.e(f"v_lshrrev_b32 v{st}, 8, v{st}"); a.e(f"v_mov_b32 v{st+1}, {LW+28}"); a.e(f"ds_add_u32 v{st+1}, v{st}")
    a.e("s_mov_b64 exec, -1"); a.e("s_waitcnt lgkmcnt(0)")
    a.e("R_fw:")
    a.e("s_barrier")
    mstamp(a)
    load_y(a)
    a.e(f"v_mov_b32 v{st}, {LW+28}"); a.e(f"ds_read_b32 v{st+1}, v{st}"); a.e("s_waitcnt lgkmcnt(0)"); a.e(f"v_readfirstlane_b32 s94, v{st+1}")
    if STAMP: a.e("s_mov_b32 s95, s94")
    a.e(f"s_cmp_gt_u32 s94, {NVOTE // 2}"); a.e("s_cselect_b32 s94, 1, 0")
    group_off(a, 55, 28)
    a.e("s_add_u32 s62, s4, s55"); a.e("s_addc_u32 s63, s5, 0")
    a.e("s_sub_u32 s36, s28, 1"); a.e("s_max_i32 s36, s36, 0"); group_off(a, 92, 36); a.e("s_sub_u32 s92, s92, s55")
    a.e("s_add_u32 s36, s28, 1"); a.e("s_min_u32 s36, s36, 15"); group_off(a, 93, 36); a.e("s_sub_u32 s93, s93, s55")
    a.e(f"s_add_u32 s55, s55, {oSM}")
    lsrd(a, 20, oX3, XSZ)
    a.e("s_waitcnt vmcnt(0)")
    for i in range(8):
        D = w + 2 * i
        unpack(a, st, st + 1, yy + i)
        a.e(f"v_pk_mul_f32 {vr(D,2)}, {vr(D,2)}, {vr(st,2)}"); round2(a, D, D + 1, tmp)
        a.e(f"v_pk_add_f32 {vr(x+2*i,2)}, {vr(x+2*i,2)}, {vr(D,2)}"); a.e(f"v_cvt_pk_bf16_f32 v{xa+i}, v{x+2*i}, v{x+2*i+1}")
        if i % 4 == 3: a.e(f"buffer_store_dwordx4 {vr(xa+i-3,4)}, v{fo}, s[20:23], 0 offen offset:{2048*(i//4)} {SC}")
    a.e("R_s2:")
    st = st_
    for i in range(8): unpack(a, x + 2 * i, x + 2 * i + 1, xa + i)
    part(x, 1)
    publish(a, ST_R, 8, pt)
    a.e("s_barrier")
    a.e("s_cmp_lg_u32 s30, 0"); a.e("s_cbranch_scc1 R_nl")
    comb(1)
    outv = yf + 2; s3 = v(); m4 = v(); v4_ = v(); r4 = v()
    assert v.hi <= PK
    a.e(f"v_mov_b32 v{m4}, v{mean}"); a.e(f"v_mov_b32 v{v4_}, v{var}")
    ln_finish(a, mean, var, rs, s3)
    a.e(f"v_sub_f32 v{m4}, v{m4}, v{mean}"); a.e(f"v_mul_f32 v{m4}, v{m4}, v{rs}")
    a.e(f"v_mul_f32 v{v4_}, v{v4_}, v{rs}"); a.e(f"v_mul_f32 v{v4_}, v{v4_}, v{rs}")
    ln_finish(a, m4, v4_, r4)
    a.e(f"v_mov_b32 v{outv}, v{mean}"); a.e(f"v_mov_b32 v{outv+1}, v{rs}")
    a.e(f"v_fma_f32 v{outv+2}, v{m4}, v{s3}, v{mean}"); a.e(f"v_mul_f32 v{outv+3}, v{rs}, v{r4}")
    lsrd(a, 24, oLNS, 2048)
    a.e("s_lshl_b32 s36, s29, 3"); a.e(f"v_add_u32 v{t}, s36, v{I}"); a.e(f"v_lshlrev_b32 v{t}, 4, v{t}")
    a.e("s_mov_b64 exec, 0xff")
    a.e(f"buffer_store_dwordx4 {vr(outv,4)}, v{t}, s[24:27], 0 offen {SC}")
    a.e("s_mov_b64 exec, -1")
    publish(a, ST_R2, 1, pt)
    a.e("R_nl:")
    return v.hi

TAB = int(os.environ.get("TAB", "1")); TV = 248
def lead(seq, r, L, P=4):
    if L == 0: return list(seq)
    return [x for _, x in sorted(((i - L - 0.5 if i % P == r else i), x) for i, x in enumerate(seq))]
def order3(j, gi):
    mode, L = eval(os.environ.get("O3", "('r',0)"))
    if mode == "r": return [(gi + t) & 15 for t in range(16)]
    if mode == "n": return [gi] + [x for x in lead(range(16), (j + gi) & 3, L) if x != gi]
    if mode == "s": return [gi] + lead([x for x in range(16) if x != gi], (j + gi) & 3, L)
    if mode == "h": return [gi] + [x for x in lead([(t + (gi & 8)) & 15 for t in range(16)], (j + gi) & 3, L) if x != gi]
def order4(j, n):
    mode, L = eval(os.environ.get("O4", "('r',0)"))
    own = [(7 * n + i, 7 * n + 4 + i) for i in range(3)]
    ps = [(n + t) & 7 for t in range(8)] if mode == "r" else list(range(8))
    ab = [(7 * p + i, 7 * p + 4 + i) for i in range(2) for p in ps if p != n]
    c = [7 * p + o for p in ps for o in (2, 6, 3) if p != n or o == 3]
    rest = ab + [(c[2 * i], c[2 * i + 1]) for i in range(11)]
    if mode != "r": rest = lead(rest, (j + n + int(os.environ.get("O4R", "0"))) & 3, L)
    return own + rest
L4 = eval(os.environ.get("O4", "('r',0)"))[1] if TAB else 0
def tab_data(a):
    a.lines.append(".p2align 6"); a.lines.append("K_tab:")
    for gi in range(16):
        for j in range(4):
            o3 = order3(j, gi) + [0] * 16; o4 = order4(j, gi & 7) + [(0, 0)] * 4
            assert sorted(o3[:16]) == list(range(16)) and sorted(sum(o4[:28], ())) == list(range(56))
            a.lines.append(".short " + ",".join(str(o3[t] | o4[t][0] << 4 | o4[t][1] << 10) for t in range(32)))
def tab_load(a):
    a.e("s_getpc_b64 s[34:35]"); a.e("K_tpc:")
    a.e("s_lshl_b32 s36, s29, 2"); a.e("s_and_b32 s37, s28, 3"); a.e("s_add_u32 s36, s36, s37"); a.e("s_lshl_b32 s36, s36, 6")
    a.e("s_add_u32 s36, s36, K_tab-K_tpc"); a.e("s_add_u32 s34, s34, s36"); a.e("s_addc_u32 s35, s35, 0")
    a.e(f"v_and_b32 v{TV}, 31, v1"); a.e(f"v_lshlrev_b32 v{TV}, 1, v{TV}"); a.e(f"global_load_ushort v{TV+3}, v{TV}, s[34:35]")
def tab_make(a, w):
    T, x = TV + 3, TV + 4
    if not w:
        a.e(f"v_bfe_u32 v{x}, v{T}, 2, 2"); a.e(f"v_lshlrev_b32 v{TV}, 14, v{x}"); a.e(f"v_and_b32 v{x}, 3, v{T}"); a.e(f"v_lshl_add_u32 v{TV}, v{x}, 11, v{TV}")
        for lw in range(2):
            a.e(f"v_bfe_u32 v{x}, v{T}, {7+6*lw}, 3"); a.e(f"v_lshlrev_b32 v{TV+1+lw}, 14, v{x}"); a.e(f"v_bfe_u32 v{x}, v{T}, {4+6*lw}, 3"); a.e(f"v_lshl_add_u32 v{TV+1+lw}, v{x}, 10, v{TV+1+lw}")
    else:
        a.e(f"v_and_b32 v{x}, 15, v{T}"); a.e(f"v_mul_u32_u24 v{TV}, {64*7168}, v{x}")
        a.e("s_and_b32 s36, s30, 1"); a.e("s_mul_i32 s36, s36, 6"); a.e("s_add_u32 s36, s36, 4"); a.e(f"v_bfe_u32 v{x}, v{T}, s36, 6")
        assert all((q * 37) >> 8 == q // 7 for q in range(56))
        a.e(f"v_mul_u32_u24 v{TV+2}, 37, v{x}"); a.e(f"v_lshrrev_b32 v{TV+2}, 8, v{TV+2}"); a.e(f"v_mul_u32_u24 v{TV+2}, 7, v{TV+2}"); a.e(f"v_sub_u32 v{TV+2}, v{x}, v{TV+2}")
        a.e(f"v_cmp_eq_u32 vcc, 3, v{TV+2}"); a.e(f"v_cndmask_b32 v{TV+2}, 0, 1, vcc"); a.e(f"v_lshl_add_u32 v{TV+1}, v{x}, 16, v{TV+2}")
def rot_init(a, which):
    if which == 3 and TAB: a.e("s_mov_b32 s44, 0")
    elif which == 3 and OWN3: a.e("s_mov_b32 s44, s29")
    elif which != 4: a.e("s_mov_b32 s44, s67")
    else: a.e("s_mov_b32 s44, 0")
def rot_next(a, which):
    a.e("s_add_u32 s44, s44, 1")
    if which != 4: a.e("s_and_b32 s44, s44, 15")
def kb4(a, d, lw):
    a.e("s_lshl_b32 s45, s44, 1"); a.e(f"s_add_u32 s45, s45, {lw}"); a.e("s_sub_u32 s45, s45, 32")
    a.e("s_mul_i32 s46, s45, 86"); a.e("s_lshr_b32 s46, s46, 8")
    a.e("s_mul_i32 s47, s46, 3"); a.e("s_sub_u32 s47, s45, s47"); a.e("s_lshl_b32 s47, s47, 2"); a.e("s_lshr_b32 s47, 0x362, s47"); a.e("s_and_b32 s47, s47, 7")
    a.e("s_cmp_ge_u32 s44, 10"); a.e("s_cselect_b32 s45, 9, 2"); a.e("s_cselect_b32 s51, 1, 0"); a.e("s_sub_u32 s45, s44, s45")
    a.e("s_cmp_lt_u32 s44, 3"); a.e("s_cselect_b32 s45, 0, s45"); a.e("s_cselect_b32 s51, s44, s51")
    a.e(f"s_lshl2_add_u32 s51, {lw}, s51")
    a.e("s_cmp_lt_u32 s44, 17"); a.e("s_cselect_b32 s47, s51, s47"); a.e("s_cselect_b32 s46, s45, s46")
    a.e("s_add_u32 s46, s46, s33"); a.e("s_and_b32 s46, s46, 7"); a.e("s_mul_i32 s46, s46, 7"); a.e(f"s_add_u32 s{d}, s46, s47")
assert all((q * 86) >> 8 == q // 3 for q in range(24))
WVB = {1: 238, 2: 238, 4: 239, 3: 241}
WV = 245
def w_lanes(a):
    t, t2 = WV + 8, WV + 9
    R = WVB[1]
    a.e(f"v_lshrrev_b32 v{t}, 3, v1"); a.e(f"v_lshlrev_b32 v{R}, 11, v{t}")
    a.e(f"v_and_b32 v{t}, 6, v{t}"); a.e(f"v_and_b32 v{t2}, 7, v1"); a.e(f"v_xor_b32 v{t}, v{t}, v{t2}"); a.e(f"v_lshl_add_u32 v{R}, v{t}, 4, v{R}")
    R = WVB[4]
    for p in range(2):
        a.e(f"v_lshrrev_b32 v{t}, 4, v1"); a.e(f"v_lshlrev_b32 v{R+p}, 11, v{t}")
        a.e(f"v_add_u32 v{t}, {4*p}, v{t}"); a.e(f"v_lshlrev_b32 v{t}, 1, v{t}"); a.e(f"v_and_b32 v{t2}, 15, v1"); a.e(f"v_xor_b32 v{t}, v{t}, v{t2}")
        a.e(f"v_lshl_add_u32 v{R+p}, v{t}, 4, v{R+p}")
    R = WVB[3]
    assert all((p * 2341) >> 16 == p // 28 for p in range(448))
    for ii in range(7):
        a.e(f"v_add_u32 v{t2}, {64*ii}, v1"); a.e(f"v_mul_u32_u24 v{t}, 2341, v{t2}"); a.e(f"v_lshrrev_b32 v{t}, 16, v{t}")
        a.e(f"v_mul_u32_u24 v{R+ii}, 28, v{t}"); a.e(f"v_sub_u32 v{t2}, v{t2}, v{R+ii}")
        a.e(f"v_mul_u32_u24 v{R+ii}, 7168, v{t}")
        a.e(f"v_lshrrev_b32 v{t}, 1, v{t}"); a.e(f"v_and_b32 v{t}, 2, v{t}"); a.e(f"v_xor_b32 v{t2}, v{t2}, v{t}")
        a.e(f"v_lshl_add_u32 v{R+ii}, v{t2}, 4, v{R+ii}")
def w_srd(a, which):
    c = CFG[which]
    a.e(f"s_mov_b64 s[12:13], s[{66+2*which}:{67+2*which}]")
    a.e(f"s_mov_b32 s14, {c['KBT'] * 32 * c['LDW']}"); a.e("s_mov_b32 s15, 0x20000")
def w_setup(a, which, pre=True, lo=0):
    c = CFG[which]; STB = c["STB"]; BW = STB // 2
    w_srd(a, which)
    a.e("s_and_b32 s35, s30, 1")
    a.e(f"s_mul_i32 s38, s{29 if which != 4 else 33}, {c['RB']}");
    if which != 4: a.e(f"s_mul_i32 s41, s35, {32*c['LDW']}"); a.e("s_add_u32 s38, s38, s41")
    if which == 4: a.e(f"s_mul_i32 s41, s31, {1792*c['LDW']}"); a.e("s_add_u32 s38, s38, s41")
    a.e(f"s_mul_i32 s41, s35, {BW}"); a.e(f"s_add_u32 s41, s41, {c['WB']}")
    a.e("s_mov_b32 s42, 0"); rot_init(a, which)
    if not pre: return
    NP = c["NPRE"]
    a.e("s_mov_b32 s49, s44"); a.e("s_and_b32 s43, s28, 3"); a.e(f"s_mul_i32 s43, s43, {NP - lo}"); a.e("s_lshr_b32 s43, s43, 2"); a.e(f"s_mov_b32 s50, {lo}")
    if not WROT: a.e("s_mov_b32 s43, 0")
    if lo: a.e(f"s_add_u32 s43, s43, {lo}")
    L = a.lab("wpre"); a.e(f"{L}:")
    a.e(f"s_mul_i32 s42, s43, {STB}"); a.e("s_add_u32 s44, s49, s43")
    if which != 4: a.e("s_and_b32 s44, s44, 15")
    w_issue(a, which, pace=PACES.get(which, PACE))
    a.e("s_add_u32 s43, s43, 1"); a.e(f"s_cmp_eq_u32 s43, {NP}"); a.e(f"s_cselect_b32 s43, {lo}, s43")
    a.e("s_add_u32 s50, s50, 1"); a.e(f"s_cmp_lt_u32 s50, {NP}"); a.e(f"s_cbranch_scc1 {L}")
    mstamp(a)
    a.e(f"s_mov_b32 s42, {(NP % c['NW']) * STB}"); a.e(f"s_add_u32 s44, s49, {NP}")
    if which != 4: a.e("s_and_b32 s44, s44, 15")
def park_load(a, pace):
    w_srd(a, 2)
    a.e("s_and_b32 s35, s30, 3"); a.e("s_lshl_b32 s35, s35, 19"); a.e("s_lshl_b32 s39, s29, 7"); a.e("s_add_u32 s39, s39, s35")
    for q in range(32):
        a.e(f"buffer_load_dwordx4 {vr(PK+4*q,4)}, v{WVB[2]}, s[12:15], s39 offen"); a.e("s_add_u32 s39, s39, 16384")
        if pace and q % 4 == 3: a.e(f"s_waitcnt vmcnt({pace})")
def after_g1(a):
    c = CFG[3]
    w_srd(a, 3)
    a.e(f"v_readlane_b32 s36, v{TV+3}, 0"); a.e(f"v_readlane_b32 s37, v{TV+3}, 1")
    a.e("s_and_b32 s35, s30, 3"); a.e(f"s_mul_i32 s38, s35, {16*7168}"); a.e("s_mul_i32 s39, s29, 448"); a.e("s_add_u32 s38, s38, s39")
    for r in (36, 37): a.e(f"s_and_b32 s{r}, s{r}, 15"); a.e(f"s_mul_i32 s{r}, s{r}, {64*7168}"); a.e(f"s_add_u32 s{r}, s{r}, s38")
    a.e("s_mul_i32 s39, s35, 7168"); a.e(f"s_add_u32 m0, s39, {c['WB'] + c['S0'] * c['STB']}")
    for i in range(7):
        if i: a.e("s_add_u32 m0, m0, 1024")
        a.e(f"buffer_load_dwordx4 v{WVB[3]+i}, s[12:15], s36 offen lds")
    for i in range(7): a.e(f"buffer_load_dwordx4 {vr(W3S+4*i,4)}, v{WVB[3]+i}, s[12:15], s37 offen")
    a.e("s_lshr_b32 s36, s67, 2"); a.e("s_sub_u32 s36, s35, s36"); a.e("s_and_b32 s36, s36, 3"); a.e("s_lshl_b32 s36, s36, 15"); a.e(f"v_add_u32 v6, s36, v2")
    for q in range(32): a.e(f"ds_write_b128 v6, {vr(PK+4*q,4)} offset:{CFG[2]['WB'] + 1024*q}")
    a.e("s_waitcnt vmcnt(0) lgkmcnt(0)")
def after_g2(a):
    c = CFG[3]
    a.e("s_and_b32 s35, s30, 3"); a.e("s_mul_i32 s39, s35, 7168"); a.e(f"s_add_u32 s39, s39, {c['WB'] + (c['S0'] + 1) % c['NW'] * c['STB']}"); a.e("v_add_u32 v6, s39, v2")
    for i in range(7): a.e(f"ds_write_b128 v6, {vr(W3S+4*i,4)} offset:{1024*i}")
    a.e("s_waitcnt lgkmcnt(0)")
SUBX = {}
def call(a, f):
    SUBX[f.__name__] = f; a.e(f"s_call_b64 s[76:77], SUB_{f.__name__}")
def w1_slots(a, js, pace=0):
    for j in js:
        a.e(f"s_mov_b32 s42, {j*8192}"); a.e("s_mov_b32 s44, s67"); a.e(f"s_add_u32 s44, s44, {j}"); a.e("s_and_b32 s44, s44, 15")
        call_issue(a, w_issue, 1)
        if pace: a.e(f"s_waitcnt vmcnt({pace})")
def w1_done(a):
    a.e("s_mov_b32 s42, 0"); a.e("s_mov_b32 s44, s67"); a.e("s_add_u32 s44, s44, 13"); a.e("s_and_b32 s44, s44, 15")
class Rec:
    def __init__(s_): s_.l = []
    def e(s_, x): s_.l.append(x)
    srd = Asm.srd
def w_parts(which, direct=False):
    c = CFG[which]; STB = c["STB"]; n = STB // 2048; LDW = c["LDW"]; b = Rec()
    b.e("s_add_u32 s19, s41, s42")
    arm = ["s_mov_b32 m0, s19", "s_mov_b32 s39, s16"]
    if which == 4 and TAB:
        b.e(f"v_readlane_b32 s16, v{TV+1}, s44")
        b.e("s_bitcmp1_b32 s16, 0"); b.e(f"s_cselect_b32 s17, {8*2048}, {4*2048}".replace(f"{4*2048}", "s45")); b.e(f"s_cselect_b32 s18, {-20*2048}, s45")
        b.e("s_andn2_b32 s16, s16, 1"); b.e("s_add_u32 s16, s16, s38")
        b.l.insert(0, f"s_mov_b32 s45, {4*2048}")
        arm += ["s_mov_b32 s32, s17", "s_mov_b32 s3, s18"]
    elif which == 3 and TAB and not direct:
        b.e(f"v_readlane_b32 s16, v{TV}, s44"); b.e("s_add_u32 s16, s16, s38")
    elif which == 4:
        b.e("s_and_b32 s40, s30, 1"); kb4(b, 16, "s40")
        b.e(f"s_mul_i32 s16, s16, {32*LDW}"); b.e("s_add_u32 s16, s16, s38")
        b.e("s_cmp_eq_u32 s47, 3"); b.e("s_cselect_b32 s17, 8, 4"); b.e("s_cselect_b32 s18, -20, 4")
        b.e("s_lshl_b32 s17, s17, 11"); b.e("s_lshl_b32 s18, s18, 11")
        arm += ["s_mov_b32 s32, s17", "s_mov_b32 s3, s18"]
    else:
        b.e(f"s_mul_i32 s16, s44, {64*LDW}"); b.e("s_add_u32 s16, s16, s38")
    if f"w{which}" in os.environ.get("HOT", ""): b.e("s_mov_b32 s16, s38")
    rot_next(b, which)
    b.e(f"s_add_u32 s42, s42, {STB}"); b.e(f"s_cmp_eq_u32 s42, {c['NW']*STB}"); b.e("s_cselect_b32 s42, 0, s42")
    fire = []
    for i in range(n):
        g = []
        if i:
            g.append("s_add_u32 m0, m0, 1024")
            if which in (1, 2): g.append(f"s_add_u32 s39, s39, {8*LDW}")
            elif which == 4: g.append(f"s_add_u32 s39, s39, s{3 if i == 4 else 32}")
            elif i == 7: g.append(f"s_add_u32 s39, s39, {16*LDW}")
        vo = WVB[which] + (0 if which in (1, 2) else (i & 1) if which == 4 else i % 7)
        fire.append(g + [f"buffer_load_dwordx4 v{vo}, s[12:15], s39 offen lds"])
    if f"w{which}" in os.environ.get("NOLD", ""): fire = [[x for x in g if not x.startswith("buffer_load")] + ["s_nop 0"] for g in fire]
    return b.l, arm, fire
def w_issue(a, which, pace=0, direct=False):
    prep, arm, fire = w_parts(which, direct)
    for x in prep + arm: a.e(x)
    for i, g in enumerate(fire):
        for x in g: a.e(x)
        if pace and (i % 4 == 3 or i == len(fire) - 1): a.e(f"s_waitcnt vmcnt({pace})")

def w_bases(a, which, dst, swn, ntl, t, t2):
    c = CFG[which]; RB = c["RB"]
    a.e(f"v_lshrrev_b32 v{t}, 2, v1")
    a.e(f"v_mul_u32_u24 v{dst}, {RB}, v{t}"); a.e(f"v_and_b32 v{t2}, 3, v1"); a.e(f"v_lshl_add_u32 v{dst}, v{t2}, 3, v{dst}")
    a.e(f"v_add_u32 v{dst}, {c['WB']}, v{dst}")
    if which == 3:
        a.e(f"s_mul_i32 s36, s{swn}, {7*32}"); a.e(f"v_add_u32 v{dst}, s36, v{dst}")
        a.e(f"v_bfe_u32 v{t}, v1, 4, 1"); a.e(f"v_lshlrev_b32 v{t}, 5, v{t}")
        a.e(f"s_cmp_eq_u32 s{swn}, 0"); a.e("s_cselect_b32 s36, 1, -1"); a.e(f"v_mul_lo_u32 v{t}, v{t}, s36")
        a.e(f"v_sub_u32 v{dst+1}, v{dst}, v{t}"); a.e(f"v_add_u32 v{dst}, v{dst}, v{t}")
        return 2, lambda nt, kk, h: (nt & 1, (32 * kk + 16 * h) * RB + 32 * nt)
    if which == 4: a.e(f"v_and_b32 v{t}, 7, v{t}")
    else: a.e(f"v_bfe_u32 v{t}, v{t}, 1, 2")
    for nt in range(ntl - 1, -1, -1):
        a.e(f"s_mul_i32 s36, s{swn}, {ntl}"); a.e(f"s_add_u32 s36, s36, {nt}")
        a.e(f"v_xor_b32 v{t2}, s36, v{t}"); a.e(f"v_lshl_add_u32 v{dst+nt}, v{t2}, 5, v{dst}")
    return ntl, lambda nt, kk, h: (nt, (32 * kk + 16 * h) * RB)

def a_parts(which):
    c = CFG[which]; b = Rec()
    if which <= 2 and NX:
        b.e("s_and_b32 s42, s48, 7"); b.e("s_lshl_b32 s42, s42, 14"); b.e("s_lshr_b64 s[48:49], s[48:49], 4")
    b.e("s_add_u32 s19, s41, s42")
    arm = ["s_mov_b32 m0, s19", "s_mov_b32 s39, s16"]; fire = []
    if which == 2:
        b.e(f"s_mul_i32 s16, s44, {8*PITCH}"); b.e("s_add_u32 s16, s16, s38")
        b.e("s_lshr_b32 s45, s44, 2"); b.e("s_xor_b32 s45, s45, s94"); b.e("s_and_b32 s45, s45, 1"); b.e("s_lshl_b32 s45, s45, 13"); b.e("s_add_u32 s16, s16, s45")
        b.e("s_lshr_b32 s45, s44, 3"); b.e("s_lshl_b32 s45, s45, 4"); b.e("s_add_u32 s45, s45, 16")
        b.e("s_sub_u32 s46, 0, s45"); b.e("s_bitcmp1_b32 s44, 2"); b.e("s_cselect_b32 s45, s45, s46"); b.e("s_add_u32 s16, s16, s45")
        step = PITCH
    elif which == 4:
        for lw in range(2):
            if TAB: b.e(f"v_readlane_b32 s{16+lw}, v{TV+1+lw}, s44")
            else: kb4(b, 16 + lw, lw); spread(b, 16 + lw, 16 + lw)
        for lw in range(2): b.e(f"s_add_u32 s{16+lw}, s{16+lw}, s38")
        arm.append("s_mov_b32 s40, s17")
        for i in range(4):
            for lw in range(2):
                fire.append((["s_add_u32 m0, m0, 1024"] if i or lw else []) + ([f"s_add_u32 s{39+lw}, s{39+lw}, {c['KBT']*2048}"] if i else []) +
                            [f"buffer_load_dwordx4 v2, s[12:15], s{39+lw} offen {SC} lds"])
    elif which == 3 and TAB:
        b.e(f"v_readlane_b32 s16, v{TV}, s44"); b.e("s_add_u32 s16, s16, s38"); step = c['KBT'] * 2048
    else:
        b.e("s_lshr_b32 s45, s44, 2"); b.e("s_lshl_b32 s45, s45, 14"); b.e("s_and_b32 s16, s44, 3"); b.e("s_lshl_b32 s16, s16, 11")
        b.e("s_add_u32 s16, s16, s45"); b.e("s_add_u32 s16, s16, s38"); step = c['KBT'] * 2048
    if f"a{which}" in os.environ.get("HOT", ""):
        b.e("s_mov_b32 s16, s38")
        if which == 4: b.e("s_add_u32 s17, s38, 1024")
    for i in range(4 if which != 4 else 0):
        fire.append((["s_add_u32 m0, m0, 2048", f"s_add_u32 s39, s39, {step}"] if i else []) + [f"buffer_load_dwordx4 v2, s[12:15], s39 offen {SC} lds"])
        fire.append([f"buffer_load_dwordx4 v2, s[12:15], s39 offen offset:1024 {SC} lds"])
    rot_next(b, which)
    if not (which <= 2 and NX):
        b.e(f"s_add_u32 s42, s42, 16384"); b.e(f"s_cmp_eq_u32 s42, {c['NA']*16384}"); b.e("s_cselect_b32 s42, 0, s42")
    if f"a{which}" in os.environ.get("NOLD", ""): fire = [[x for x in g if not x.startswith("buffer_load")] + ["s_nop 0"] for g in fire]
    return b.l, arm, fire
def a_issue(a, which):
    prep, arm, fire = a_parts(which)
    for x in prep + arm + sum(fire, []): a.e(x)
SUBS = {}
def call_issue(a, issue, which):
    nm = f"SUB_{issue.__name__}_{which}"; SUBS[nm] = (issue, which)
    a.e(f"s_call_b64 s[76:77], {nm}")
def emit_subs(a):
    for nm, f in SUBX.items(): a.e(f"SUB_{nm}:"); f(a); a.e("s_setpc_b64 s[76:77]")
    for nm, (issue, which) in SUBS.items():
        a.e(f"{nm}:"); issue(a, which); a.e("s_setpc_b64 s[76:77]")
def ld_steps(a, which, N, per, issue, npre, rate=2, plan={}, lo=0, hi=None, last=None, hold=(), sched=None, armed=False):
    NS = CFG[which]["NS"]
    prep, arm, fire = (w_parts if issue is w_issue else a_parts)(which); h = max(1, per * HSPLIT // 8)
    plan = {b: (x if isinstance(x, list) else [x]) for b, x in plan.items()}
    q = [s_ for s_ in range(npre) for _ in range(per)]
    def after(tag):
        if issue is w_issue and isinstance(tag, int) and tag < npre: tag = npre - 1
        return len(q) - 1 - max(i for i, x in enumerate(q) if x == tag)
    issued = npre; steps = []
    for b in range(NS):
        acts = plan.get(b, []); was = {}
        def do(pos):
            for n_, act in enumerate(acts):
                if act[0] != pos: continue
                if act[1] is not None: was[n_] = after(act[1])
                q.extend([act[4]] * act[3])
        do(True)
        k = 0
        if (b > 0 or (sched is not None and issue is a_issue)) and b not in hold:
            k = max(0, min(rate, min(NS, b - 1 + N) - issued)) if sched is None else sched[b]
        assert k or not any(x[0] == "mid" for x in acts)
        for j in range(k):
            q.extend([issued] * h)
            if j == 0: do("mid")
            q.extend([issued] * (per - h)); issued += 1
        do(False)
        w = after(b); assert w <= 63
        steps.append((k, w, b if acts else None, tuple(sorted(was.items())), issued < NS))
    def em(l):
        for x in l:
            a.e(x)
            if x == "s_barrier" and os.environ.get("JIT"): mstamp(a)
    F1, F2 = sum(fire[:h], []), sum(fire[h:], [])
    lprep = prep
    if len(prep) > 8:
        nm = f"PREP_{issue.__name__}_{which}"; SUBS[nm] = ((lambda a_, w_, l=prep: [a_.e(x) for x in l]), which)
        prep = [f"s_call_b64 s[76:77], {nm}"]
    if lo == 0 and npre < NS and not armed: em(prep + arm)
    i = lo; HI = NS if hi is None else hi
    while i < HI:
        j = i
        while j < HI and steps[j] == steps[i]: j += 1
        k, w, ab, was, more = steps[i]; n = j - i; was = dict(was)
        def run(pos):
            for n_, act in enumerate(plan.get(ab, [])):
                if act[0] != pos: continue
                if n_ in was: a.e(f"s_waitcnt vmcnt({was[n_]})")
                act[2]()
        tail = [f"s_waitcnt vmcnt({w})", "s_barrier"]
        if n > 2 and k == 1:
            em(F1); a.e("s_mov_b32 s43, 1"); L = a.lab("ld"); a.e(f"{L}:")
            em(lprep + F2 + arm + tail + F1)
            a.e("s_add_u32 s43, s43, 1"); a.e(f"s_cmp_lt_u32 s43, {n}"); a.e(f"s_cbranch_scc1 {L}")
            em(prep + F2 + arm + tail)
        else:
            for r in range(n):
                run(True)
                for jj in range(k):
                    nxt = more or jj < k - 1
                    em(F1)
                    if jj == 0: run("mid")
                    em((prep if nxt else []) + F2 + (arm if nxt else []))
                run(False)
                em(tail)
        i = j
    if hi is not None: return
    if which == 4:
        if issue is a_issue: a.e("s_cmp_eq_u32 s60, 1"); a.e("s_cbranch_scc1 K_fin")
        elif hold is HOLD: a.e("s_branch K_fin"); return
        r_pre(a)
    if last: last()
    late = os.environ.get("TLATE", "0") == "1"
    if late: a.e("s_barrier")
    if issue is a_issue and W4POS == f"{which}C":
        X = a.lab("tw4"); a.e("s_cmp_lg_u32 s60, 0"); a.e(f"s_cbranch_scc1 {X}"); touch(a, B_W4, 7 * MB, 232); a.e(f"{X}:")
    if not late: a.e("s_barrier")

HOLD = eval(os.environ.get("HOLD", "[2,3,4]"))
def a_loader(a, which):
    c = CFG[which]
    if which <= 2:
        plan = side_jobs(a, 1) if which == 1 else {}
        poll(a, which - 1, 8); mstamp(a)
        for b in sorted(plan):
            for act in (plan[b] if isinstance(plan[b], list) else [plan[b]]):
                if act[1] is not None: a.e("s_waitcnt vmcnt(0)")
                act[2]()
        a.e("s_barrier")
        call(a, after_g1 if which == 1 else after_g2)
        return
    a.e("s_and_b32 s35, s30, 1")
    if which == 2:
        hs_srd(a, 12)
        a.e("s_lshl_b32 s38, s28, 11"); a.e("s_add_u32 s38, s38, 16384"); a.e(f"s_mul_i32 s36, s35, {4*PITCH}"); a.e("s_add_u32 s38, s38, s36")
    else:
        lsrd(a, 12, c["A"], XSZ if which != 4 else H2SZ)
        a.e(f"s_mul_i32 s38, s35, {4*c['KBT']*2048}")
        if which == 4: a.e(f"s_mul_i32 s36, s31, {7*16384}"); a.e("s_add_u32 s38, s38, s36")
    a.e("s_lshl_b32 s41, s35, 13"); a.e("s_mov_b32 s42, 0"); rot_init(a, which)
    assert c["NA"] == 3
    prep, arm, fire = a_parts(which)
    if which == 4:
        flag_addr(a, 9, ST_G3A); flag_addr(a, 10, ST_G3B); flag_addr(a, 12, ST_G3)
        own_wait(a, ST_G3A, False, 14)
        poll_core(a, 8, [9], 1, cnt=8); mstamp(a)
        plan = {6 - L4: ("mid", None, lambda: flag_try(a, 11, 10), 1, "f"), 8 - L4: ("mid", "f", lambda: flag_check(a, 11, 10, 8), 0, None),
                13 - L4: ("mid", None, lambda: flag_try(a, 11, 12), 1, "g"), 15 - L4: ("mid", "g", lambda: flag_check(a, 11, 12, 8), 0, None)}
        a.e("s_mov_b32 s44, 3")
        ld_steps(a, which, 3, 8, a_issue, 3, plan=plan); return
    if which == 3:
        mask, cnt = flag_addr(a, 9, ST_G2)
        def wait2():
            poll_core(a, 8, [9], mask, cnt=cnt); mstamp(a); mstamp(a)
            if W3H: a.e("s_add_u32 s54, s60, 1"); lds_set(a, LW + 60, "s54", 10)
        rot_next(a, 3); a.e("s_mov_b32 s42, 16384")
        plan = side_jobs(a, 3)
        if os.environ.get("P30", "0") == "1":
            def wait0(): own_wait(a, ST_G2, False, 14); wait2()
            plan[0] = (True, None, wait0, 0, None)
            ld_steps(a, which, 3, 8, a_issue, 1, plan=plan, sched=[int(os.environ.get("P3N", "1")), 2 - int(os.environ.get("P3N", "1"))] + [1] * 13 + [0]); return
        plan[1] = (True, None, wait2, 0, None)
        PZ3 = int(os.environ.get("PZ3", "0"))
        if PZ3:
            a.srd(84, 4, 32 * MB, off=216 * MB)
            a.e("s_cmp_eq_u32 s60, 0"); a.e("s_cselect_b32 s86, s86, 0")
            for i in range(4): a.e(f"v_mov_b32 v{216+i}, -1")
            a.e("s_lshl_b32 s88, s2, 1"); a.e("s_and_b32 s50, s30, 1"); a.e("s_add_u32 s88, s88, s50"); a.e(f"s_mul_i32 s88, s88, {PZ3*12*1024}")
            def pz():
                for i in range(PZ3): a.e(f"buffer_store_dwordx4 v[216:219], v2, s[84:87], s88 offen offset:{i*1024} {SC}")
                a.e(f"s_add_u32 s88, s88, {PZ3*1024}")
            for b in range(2, 14):
                p_ = plan.get(b, []); p_ = p_ if isinstance(p_, list) else [p_]
                plan[b] = p_ + [(False, None, pz, PZ3, "z")]
        ld_steps(a, which, 3, 8, a_issue, 1, plan=plan); return
    assert 0

def side_jobs(a, which):
    c = CFG[which]; plan = {}
    sv = 16; S, Q, mean, rs, tt, ad, fa, fr = 176, 177, 178, 179, 180, 181, 182, 183
    cv = 192 if which == 3 else 24; N = c["LDW"] // 2; co_ = 184; HB = c["TN16"] * 32
    lg = 3 if which == 1 else 5
    def cld(k0=0, k1=4):
        if k0 == 0:
            a.srd(24, 4, 32 * N * 4, off=CSP[which])
            a.e("s_cmp_eq_u32 s60, 0"); a.e("s_cselect_b32 s26, s26, 0")
            a.e("s_and_b32 s36, s30, 1"); a.e(f"s_mul_i32 s36, s36, {HB}"); a.e(f"s_mul_i32 s37, s29, {2*HB}"); a.e("s_add_u32 s37, s36, s37")
            a.e(f"v_lshrrev_b32 v{co_}, {lg}, v1"); a.e(f"v_mul_u32_u24 v{co_}, {N*4}, v{co_}")
            a.e(f"v_and_b32 v{cv-1}, {16*((1 << lg) - 1)}, v2"); a.e(f"v_add_u32 v{co_}, v{co_}, v{cv-1}")
        for k in range(k0, k1):
            a.e(f"buffer_load_dwordx4 {vr(cv+4*(k if k < 9 else k - 8),4)}, v{co_}, s[24:27], s37 offen {SC}"); a.e(f"s_add_u32 s37, s37, {N*4*(64 >> lg)}")
    def piece(lines, l0=False):
        def f():
            X = a.lab("pc")
            if l0: a.e("s_cmp_lg_u32 s60, 0"); a.e(f"s_cbranch_scc1 {X}")
            for x in lines: a.e(x)
            if l0: a.e(f"{X}:")
        return f
    def cadd(k0, k1): return [f"v_pk_add_f32 {vr(cv+2*h,2)}, {vr(cv+2*h,2)}, {vr(cv+4*k+2*h,2)}" for k in range(k0, k1) for h in range(2)]
    def sw(op): return [f"v_mov_b32 v{cv+4+e}, v{cv+e}" for e in range(4)] + [f"{op} v{cv+e}, v{cv+4+e}" for e in range(4)] + cadd(1, 2)
    if which in (1, 3):
        cout = ["s_and_b32 s36, s30, 1", f"s_mul_i32 s36, s36, {HB}", f"s_add_u32 s36, s36, {CSO[which]}", f"v_add_u32 v{cv-1}, s36, v2",
                f"s_bfm_b64 exec, {HB//16}, 0", f"ds_write_b128 v{cv-1}, {vr(cv,4)}", "s_mov_b64 exec, -1", "s_waitcnt lgkmcnt(0)"]
    if which == 1:
        flag_addr(a, fa, ST_R2)
        def ld():
            flag_check(a, fr, fa, 16)
            lsrd(a, 20, oLNS, 2048); a.e("s_and_b32 s35, s30, 1"); a.e("s_lshl_b32 s35, s35, 10")
            a.e(f"buffer_load_dwordx4 {vr(sv,4)}, v2, s[20:23], s35 offen {SC}")
        fin = piece(["s_and_b32 s36, s30, 1", "s_lshl_b32 s36, s36, 10", f"s_add_u32 s36, s36, {LNSL}", f"v_add_u32 v{ad}, s36, v2", f"ds_write_b128 v{ad}, {vr(sv,4)}", "s_waitcnt lgkmcnt(0)"])
        a.e("s_lshl_b32 s53, s29, 7"); a.e(f"s_add_u32 s53, s53, {F_CS}"); a.e(f"v_mov_b32 v{fa+4}, s53")
        def cld1(): flag_check(a, fr + 4, fa + 4, 16); cld()
        work = cadd(1, 4) + [f"v_add_f32_dpp v{cv+e}, v{cv+e}, v{cv+e} row_ror:8 row_mask:0xf bank_mask:0xf" for e in range(4)] + \
               sw("v_permlane16_swap_b32") + sw("v_permlane32_swap_b32")
        plan = {2: (False, None, lambda: flag_try(a, fr + 4, fa + 4), 1, "e"), 5: [(False, "e", cld1, 4, "c"), (False, None, lambda: flag_try(a, fr, fa), 1, "f")],
                8: (False, "f", ld, 1, "d"), 15: [(False, None, piece(cout, 1), 0, None), (False, "d", fin, 0, None)]}
        for i in range(6): plan[9 + i] = (False, None, piece(work[5*i:5*i+5], 1), 0, None)
    if which == 3:
        flag_addr(a, fa, ST_G2S)
        a.e(f"v_lshlrev_b32 v{ad}, 3, v1")
        def ld(k0):
            def f():
                if k0 == 0:
                    flag_check(a, fr, fa, 16)
                    lsrd(a, 20, oST2, 24576)
                    a.e("s_and_b32 s35, s30, 1"); a.e("s_lshl_b32 s35, s35, 9")
                a.e(f"s_add_u32 s36, s35, {k0*2048}")
                for k in range(k0, k0 + 8):
                    if k % 8 == 4: a.e("s_add_u32 s36, s36, 4096")
                    a.e(f"buffer_load_dwordx2 {vr(sv+2*k,2)}, v{ad}, s[20:23], s36 offen offset:{(k&3)*1024} {SC}")
            return f
        b = Rec()
        for st_ in (8, 4, 2, 1):
            for k in range(st_): b.e(f"v_pk_add_f32 {vr(sv+2*k,2)}, {vr(sv+2*k,2)}, {vr(sv+2*(k+st_),2)}")
        b.e(f"v_mul_f32 v{mean}, {f32(1/1024)}, v{sv}"); b.e(f"v_mul_f32 v{Q}, {f32(1/1024)}, v{sv+1}")
        b.e(f"v_fma_f32 v{Q}, -v{mean}, v{mean}, v{Q}"); b.e(f"v_max_f32 v{Q}, 0, v{Q}")
        ln_finish(b, mean, Q, rs)
        b.e(f"s_add_u32 s35, s35, {AUX+1024}"); b.e(f"v_add_u32 v{tt}, s35, v{ad}")
        b.e(f"ds_write_b64 v{tt}, {vr(mean,2)}"); b.e("s_waitcnt lgkmcnt(0)")
        def both(f, g):
            def h(): f(); g()
            return h
        plan = {2: (False, None, cld, 4, "c"), 3: (False, None, lambda: cld(4, 9), 5, "c"),
                5: [(False, "c", piece(cadd(1, 5), 1), 0, None), (False, None, lambda: flag_try(a, fr, fa), 1, "f")],
                6: (False, None, both(piece(cadd(5, 9), 1), lambda: cld(9, 16)), 7, "e"),
                7: (False, "f", ld(0), 8, "d"), 8: (False, None, ld(8), 8, "d"),
                9: (False, "e", piece(cadd(1, 5), 1), 0, None), 10: (False, None, piece(cadd(5, 8), 1), 0, None), 11: (False, None, piece(sw("v_permlane32_swap_b32") + cout, 1), 0, None),
                12: (False, "d", piece(b.l[:12]), 0, None), 13: (False, None, piece(b.l[12:23]), 0, None), 14: (False, None, piece(b.l[23:]), 0, None)}
    return plan

W2E = int(os.environ.get("W2E", "3"))
def w2_early(a):
    if W2E: w_setup(a, 2, pre=False); w1_slots(a, range(W2E), pace=8)
def w_loader(a, which):
    c = CFG[which]
    if which < 3:
        if which == 1: a.e("s_waitcnt vmcnt(0)")
        a.e("s_barrier"); a.e("s_barrier")
        call(a, after_g1 if which == 1 else after_g2); mstamp(a)
        return
    args = (a, which, c["NW"], c["STB"] // 2048, w_issue, c["NPRE"], c["WR"])
    if which == 4:
        assert c["NW"] == 6 and c["WB"] == CFG[1]["WB"] + 3 * 8192
        a.e("s_cmp_eq_u32 s60, 1"); a.e("s_cbranch_scc1 WL_t1")
        ld_steps(*args, hi=24)
        def first(): w_setup(a, 1, pre=False); w1_slots(a, (11, 12, 15))
        plan = {24: (False, None, first, 12, "w"), 25: (False, None, lambda: w1_slots(a, (13, 14)), 8, "w"),
                26: (False, None, lambda: w1_slots(a, (3, 4)), 8, "w"), 27: (False, None, lambda: w1_slots(a, (5, 6)), 8, "w")}
        ld_steps(*args, plan=plan, lo=24, last=lambda: w1_slots(a, (7, 8)))
        w1_slots(a, (9, 10)); w1_slots(a, range(3 - W1L, 3), pace=8); mstamp(a)
        a.e("s_branch NEXT")
        a.e("WL_t1:")
        ld_steps(*args, hold=HOLD)
        return
    plan = {}
    if W3H: plan[1] = (True, None, lambda: (a.e("s_add_u32 s54, s60, 1"), lds_spin(a, LW + 60, "s54", 6, nap=1)), 0, None)
    ld_steps(*args, plan=plan)
W3H = int(os.environ.get("W3H", "0"))
W1L = int(os.environ.get("W1L", "3"))

LF1 = os.environ.get("LF1", ""); LF2 = os.environ.get("LF2", "")
RES2 = 160; C2R = 200; SO3 = 238; RES4 = [172, 176, 180, 184, 188, 192, 196, 240]
def g_compute(a, which):
    c = CFG[which]
    WM, WN, MT, NT, KBT, NS, NA, NW, TN16, STB, WB = [c[k] for k in "WM WN MT NT KBT NS NA NW TN16 STB WB".split()]
    v = VA(6); nm = f"G{which}"
    lane = 1; l16 = 2
    t = v(); t2 = v(); pt = v(4, 2)
    NTILE = 29 if which != 4 else 33
    if WN == 2: a.e("s_lshr_b32 s34, s30, 1"); a.e("s_and_b32 s35, s30, 1")
    else: a.e("s_mov_b32 s34, s30"); a.e("s_mov_b32 s35, 0")
    a0 = v(); w0 = v(4, 1); aa = v(); wa = v(4, 1); J = v(); G = v()
    a.e(f"v_and_b32 v{J}, 15, v{lane}"); a.e(f"v_lshrrev_b32 v{G}, 4, v{lane}")
    a.e(f"s_mul_i32 s37, s34, {MT}")
    a.e(f"s_mul_i32 s38, s{NTILE}, {TN16}"); a.e(f"s_mul_i32 s36, s35, {NT}"); a.e("s_add_u32 s38, s38, s36")
    acc = v(MT * NT * 4, 4); NF = MT + NT if which > 2 else 8
    fX = v(NF * 4, 4); fY = v(NF * 4, 4); tmp = v(); tp = v(4, 2)
    def A_(mt, nt): return acc + 4 * (mt * NT + nt)
    def SUBM(r): return f"{vr(r,2)} op_sel_hi:[1,0] neg_lo:[0,1] neg_hi:[0,1]"
    def MULR(r): return f"{vr(r,2)} op_sel:[0,1] op_sel_hi:[1,1]"
    if which in (2, 4):
        res = RES2
        a.e("s_lshr_b32 s36, s38, 1"); spread(a, 39, 36); a.e("s_lshl_b32 s36, s37, 16"); a.e("s_add_u32 s39, s39, s36")
    if which <= 2:
        AB = 176; LO = v(8, 1)
        if which == 1:
            lsrd(a, 8, oX3, XSZ); OOB = MB
            for i in range(4): a.e(f"v_add_u32 v{LO+i}, {(i & 1) * 65536 + (i >> 1) * 4096}, v{l16}")
        else:
            hs_srd(a, 8); OOB = 128 * PITCH
            a.e(f"v_mul_u32_u24 v{LO}, {PITCH}, v{G}"); a.e(f"v_lshl_add_u32 v{LO}, v{J}, 4, v{LO}")
            for i in range(1, 8): a.e(f"v_add_u32 v{LO+i}, {4*PITCH*i}, v{LO}")
        for i in range(4):
            a.e("s_lshr_b32 s36, s67, 2"); a.e(f"s_add_u32 s36, s36, {i}"); a.e("s_and_b32 s36, s36, 3")
            if which == 1: a.e(f"s_lshl_b32 s{44+i}, s36, 14"); a.e("s_lshl_b32 s36, s34, 17")
            else:
                a.e(f"s_mul_i32 s{44+i}, s36, {32*PITCH}")
                a.e("s_xor_b32 s53, s36, s94"); a.e("s_and_b32 s53, s53, 1"); a.e("s_lshl_b32 s53, s53, 13"); a.e(f"s_add_u32 s{44+i}, s{44+i}, s53")
                a.e("s_lshr_b32 s53, s36, 1"); a.e("s_lshl_b32 s53, s53, 4"); a.e("s_add_u32 s53, s53, 16")
                a.e("s_sub_u32 s54, 0, s53"); a.e("s_bitcmp1_b32 s36, 0"); a.e("s_cselect_b32 s53, s53, s54"); a.e(f"s_add_u32 s{44+i}, s{44+i}, s53")
                a.e("s_lshl_b32 s36, s28, 2"); a.e("s_add_u32 s36, s36, s34"); a.e("s_lshl_b32 s36, s36, 9"); a.e("s_add_u32 s36, s36, 16384")
            a.e(f"s_add_u32 s{44+i}, s{44+i}, s36")
        def aload(b, kk):
            if which == 1: return [f"buffer_load_dwordx4 {vr(AB+16*b+8*kk+4*mt,4)}, v{LO+mt+(b&2)}, s[8:11], s44 offen offset:{(b&1)*2048+kk*1024} {LF1}" for mt in range(2)]
            return [f"buffer_load_dwordx4 {vr(AB+16*b+8*kk+4*mt,4)}, v{LO+2*b+kk}, s[8:11], s44 offen offset:{mt*256} {LF2}" for mt in range(2)]
    else:
        a.e(f"s_mul_i32 s36, s34, {MT*2048}"); a.e(f"v_add_u32 v{a0}, s36, v{l16}")
    nwr, wpos = w_bases(a, which, w0, 35, NT, t, t2)
    if which == 3: publish(a, ST_G2S, 4, pt, ctr=48)
    if which == 2:
        a.e(f"s_lshl_b32 s36, s37, 8"); a.e(f"s_add_u32 s36, s36, {LNSL}"); a.e(f"v_lshlrev_b32 v{t2}, 4, v{J}"); a.e(f"v_add_u32 v{t2}, s36, v{t2}")
        for mt in range(MT): a.e(f"ds_read_b64 {vr(fX+2*mt,2)}, v{t2} offset:{mt*256}")
        a.e("s_waitcnt lgkmcnt(0)")
        for mt in range(MT):
            for p in range(NT // 2):
                for e in range(4):
                    X = A_(mt, 2 * p) + 2 * e
                    unpack(a, X, X + 1, res + (mt * (NT // 2) + p) * 4 + e)
                    a.e(f"v_pk_add_f32 {vr(X,2)}, {vr(X,2)}, {SUBM(fX+2*mt)}"); round2(a, X, X + 1, tmp)
                    a.e(f"v_pk_mul_f32 {vr(X,2)}, {vr(X,2)}, {MULR(fX+2*mt)}"); round2(a, X, X + 1, tmp)
    else:
        for i in range(0, MT * NT * 4, 2): a.e(f"v_pk_mov_b32 {vr(acc+i,2)}, 0, 0")
    def reads(F, kk):
        o = []
        for mt in range(MT): o.append(f"ds_read_b128 {vr(F+4*mt,4)}, v{aa} offset:{mt*256+kk*8192 if which == 2 else mt*2048+kk*1024}")
        for nt in range(NT):
            for h in range(2):
                r, imm = wpos(nt, kk, h)
                o.append(f"ds_read_b64_tr_b16 {vr(F+4*(MT+nt)+2*h,2)}, v{wa+r} offset:{imm}")
        NR = os.environ.get("NOREAD")
        if NR == "N": o = []
        if NR == "A": o = o[MT:]
        if NR == "W": o = o[:MT]
        if NR == "H": o = o[::2]
        if NR == "X": o = o + o[:2]
        if NR == "XX": o = o + o[:MT]
        return o
    def mix(rd, ex):
        rd = list(rd)
        for i, x in enumerate(ex): rd.insert(min(len(rd), (i + 1) * len(rd) // (len(ex) + 1)), x)
        return rd
    def mfmas(F, rd, tail=()):
        n = MT * NT; k = 0; tot = len(rd); span = max(1, n * 3 // 4); done = 0; tail = list(tail); per = -(-len(tail) // max(1, n - span))
        OR = os.environ.get("ORDER", "2")
        order = {"0": [(nt, mt) for nt in range(NT) for mt in range(MT)],
                 "1": [(nt, mt) for mt in range(MT) for nt in range(NT)],
                 "2": [(nt, mt if nt % 2 == 0 else MT - 1 - mt) for nt in range(NT) for mt in range(MT)],
                 "3": [(nt if mt % 2 == 0 else NT - 1 - nt, mt) for mt in range(MT) for nt in range(NT)]}[OR]
        for nt, mt in order:
            if True:
                cc = acc + 4 * (mt * NT + nt)
                if str(which) not in os.environ.get("NOMF", ""): a.e(f"v_mfma_f32_16x16x32_bf16 {vr(cc,4)}, {vr(F+4*(MT+nt),4)}, {vr(F+4*mt,4)}, {vr(cc,4)}")
                k += 1
                while rd and done < (tot * k + span - 1) // span: a.e(rd.pop(0)); done += 1
                if k >= span and k < n:
                    for _ in range(min(per, len(tail))): a.e(tail.pop(0))
        assert not rd and not tail
    def stage(ex=(), ey=(), lim=NS-1, late=False):
        if str(which) in os.environ.get("GST", "") or os.environ.get("JIT"): mstamp(a, True)
        a.e("s_waitcnt lgkmcnt(0)")
        book = ["s_add_u32 s42, s42, 16384", f"s_cmp_eq_u32 s42, {NA*16384}", "s_cselect_b32 s42, 0, s42",
                f"s_add_u32 s48, s48, {STB}", f"s_cmp_eq_u32 s48, {NW*STB}", "s_cselect_b32 s48, 0, s48", f"v_add_u32 v{aa}, s42, v{a0}"]
        if which <= 2 and NX:
            book = ["s_lshr_b64 s[44:45], s[44:45], 4", "s_lshr_b64 s[46:47], s[46:47], 4", "s_and_b32 s42, s44, 7", "s_lshl_b32 s42, s42, 14",
                    "s_and_b32 s48, s46, 15", "s_lshl_b32 s48, s48, 13", f"v_add_u32 v{aa}, s42, v{a0}"]
        book += [f"v_add_u32 v{wa+i}, s48, v{w0+i}" for i in range(nwr)]
        mfmas(fX, mix(reads(fY, 1), ex), book)
        if late:
            a.e("s_waitcnt lgkmcnt(0)"); mfmas(fY, [], ["s_add_u32 s43, s43, 1"]); a.e("s_barrier")
            for x in reads(fX, 0): a.e(x)
            return
        a.e("s_waitcnt lgkmcnt(0)"); a.e("s_barrier")
        mfmas(fY, mix(reads(fX, 0), ey), ["s_add_u32 s43, s43, 1", f"s_cmp_lt_u32 s43, {lim}"])
    w00 = c["S0"] * STB
    if which <= 2:
        def wrd(p, b): return [f"ds_read_b64_tr_b16 {vr((fX, fY)[p]+16*kk+4*nt+2*h,2)}, v{w0+nt} offset:{b*STB + wpos(nt, kk, h)[1]}" for kk in range(2) for nt in range(4) for h in range(2)]
        def dmf(b, fill, lo=0, hi=16):
            k = 0
            for kk in range(2):
                for nt in range(4):
                    for mt in ((0, 1) if nt % 2 == 0 else (1, 0)):
                        if lo <= k < hi:
                            a.e(f"v_mfma_f32_16x16x32_bf16 {vr(A_(mt,nt),4)}, {vr((fX, fY)[b&1]+16*kk+4*nt,4)}, {vr(AB+16*b+8*kk+4*mt,4)}, {vr(A_(mt,nt),4)}")
                            for x in fill[k]: a.e(x)
                        k += 1
        def spreadf(l, lo, hi):
            f = [[] for _ in range(16)]
            for i, x in enumerate(l): f[lo + i * (hi - lo) // len(l)].append(x)
            return f
        a.e("s_mov_b32 s43, 0")
        a.e("s_waitcnt lgkmcnt(0)"); a.e("s_barrier")
        for x in aload(0, 0) + aload(0, 1) + aload(1, 0) + aload(1, 1) + wrd(0, 0) + aload(2, 0) + aload(2, 1) + aload(3, 0): a.e(x)
        a.e("s_waitcnt vmcnt(10) lgkmcnt(0)")
        mstamp(a)
        L = a.lab("dm"); a.e(f"{L}:")
        for b in range(4):
            rd = wrd(1 - (b & 1), (b + 1) & 3); ex = [[] for _ in range(16)]
            ex[0], ex[1] = [[x] for x in aload((b - 1) & 3, 1)]
            if b == 0:
                for i, x in enumerate(["s_mov_b32 s44, s45", "s_mov_b32 s45, s46", "s_mov_b32 s46, s47", f"s_mov_b32 s47, {OOB}"]): ex[2 + i].append(x)
            if b == 2:
                ex[2].append("s_add_u32 s43, s43, 1"); ex[3].append("s_cmp_eq_u32 s43, 4")
                for nt, g_ in enumerate((11, 12, 13, 15)): ex[g_].append(f"v_add_u32 v{w0+nt}, {4*STB}, v{w0+nt}")
            ex[7].append("s_waitcnt lgkmcnt(8)")
            ex[8], ex[9] = [[x] for x in aload(b, 0)]
            ex[10].append("s_waitcnt vmcnt(10)")
            fill = [rd[i:i+1] + ex[i] for i in range(16)]
            fill[14] = rd[14:16] + ex[14]; fill[15] = ex[15] + ["s_waitcnt lgkmcnt(8)"]
            if b == 2: fill[15].append(f"s_cbranch_scc1 {L}x")
            if b == 3: fill[15].append(f"s_branch {L}")
            dmf(b, fill)
        a.e(f"{L}x:")
    else:
        a.e("s_mov_b32 s42, 0"); a.e("s_mov_b32 s43, 0"); a.e(f"s_mov_b32 s48, {w00}")
        a.e(f"v_mov_b32 v{aa}, v{a0}")
        for i in range(nwr): a.e(f"v_add_u32 v{wa+i}, {w00}, v{w0+i}")
        a.e("s_waitcnt lgkmcnt(0)"); a.e("s_barrier")
        mstamp(a)
        for x in reads(fX, 0): a.e(x)
    if which == 4:
        def st2(j): return [f"s_add_u32 s36, s44, {j*224*1024}\nbuffer_store_dwordx4 {vr(C2R+4*j,4)}, v{l16}, s[16:19], s36 offen {SC}",
                            f"s_add_u32 s36, s45, {j*224*1024}\nbuffer_store_dwordx2 {vr(C2R+16+2*j,2)}, v{SO3}, s[16:19], s36 offen {SC}"]
        stage(st2(0), st2(1)); stage(st2(2), st2(3)); publish(a, ST_G3B, 4, pt, wait=8)
        L0 = a.lab("mm"); a.e(f"{L0}:"); stage(lim=PUB2); a.e(f"s_cbranch_scc1 {L0}")
        publish(a, ST_G3, 4, pt)
    if which == 3 and os.environ.get("PEEL3", "1") == "1": stage(late=True)
    if which > 2:
        L = a.lab("mm"); a.e(f"{L}:")
        stage()
        a.e(f"s_cbranch_scc1 {L}")
        a.e("s_waitcnt lgkmcnt(0)")
    b0 = Rec()
    if which == 4:
        a.e("s_cmp_eq_u32 s60, 1"); a.e("s_cbranch_scc1 G4_last")
        r_pre(b0)
    if which == 1:
        lsrd(b0, 24, oX3, XSZ)
        b0.e("s_lshr_b32 s36, s38, 1"); spread(b0, 40, 36); b0.e("s_lshl_b32 s36, s37, 16"); b0.e("s_add_u32 s40, s40, s36")
        for mt in range(MT):
            b0.e(f"s_add_u32 s36, s40, {mt*65536}")
            for p in range(NT // 2): b0.e(f"buffer_load_dwordx4 {vr(RES2+(mt*(NT//2)+p)*4,4)}, v{l16}, s[24:27], s36 offen offset:{p*1024} {SC}")
    early = os.environ.get("EARLY", "1") == "1"
    if which <= 2: dmf(3, spreadf(b0.l, 0, 8), 0, 8)
    else: mfmas(fX, reads(fY, 1) + (b0.l if early else []))
    a.e("s_waitcnt lgkmcnt(0)")
    if which not in DL: a.e("s_barrier")
    b = Rec()
    if not early: b.l += b0.l
    if which in (1, 3):
        so = SO3 if which == 3 else a0; cs = fX; lns = fX + 4 * NT
        assert which == 1 or (fY <= C2R and C2R + 24 <= fY + 4 * NF)
        b.e(f"s_mul_i32 s36, s35, {NT*64}"); b.e(f"s_add_u32 s36, s36, {CSO[which]}"); b.e(f"v_lshlrev_b32 v{t}, 4, v{G}"); b.e(f"v_add_u32 v{t}, s36, v{t}")
        for nt in range(NT): b.e(f"ds_read_b128 {vr(cs+4*nt,4)}, v{t} offset:{nt*64}")
        if which == 3:
            b.e(f"s_lshl_b32 s36, s34, 9"); b.e(f"s_add_u32 s36, s36, {AUX+1024}")
            b.e(f"v_lshlrev_b32 v{t2}, 3, v{J}"); b.e(f"v_add_u32 v{t2}, s36, v{t2}")
            for mt in range(MT): b.e(f"ds_read_b64 {vr(lns+2*mt,2)}, v{t2} offset:{mt*128}")
            lsrd(b, 16, oH2, H2SZ)
            b.e(f"s_mul_i32 s39, s37, {224*1024}")
            for P in range(4):
                b.e("s_lshr_b32 s36, s38, 1"); b.e(f"s_add_u32 s36, s36, {P}"); spread(b, 44 + P, 36); b.e(f"s_add_u32 s{44+P}, s{44+P}, s39")
            b.e("s_lshl_b32 s36, s37, 1"); b.e("s_add_u32 s36, s36, s35"); b.e("s_lshl_b32 s36, s36, 10"); b.e(f"v_add_u32 v{a0}, s36, v{l16}")
            b.e(f"v_lshrrev_b32 v{so}, 1, v{G}"); b.e(f"v_lshlrev_b32 v{so}, 8, v{so}"); b.e(f"v_lshl_add_u32 v{so}, v{J}, 4, v{so}")
            b.e(f"v_and_b32 v{tmp}, 1, v{G}"); b.e(f"v_lshl_add_u32 v{so}, v{tmp}, 3, v{so}")
        else:
            b.e(f"s_lshl_b32 s36, s37, 8"); b.e(f"s_add_u32 s36, s36, {LNSL+8}"); b.e(f"v_lshlrev_b32 v{t2}, 4, v{J}"); b.e(f"v_add_u32 v{t2}, s36, v{t2}")
            for mt in range(MT): b.e(f"ds_read_b64 {vr(lns+2*mt,2)}, v{t2} offset:{mt*256}")
            hs_srd(b, 16)
            b.e(f"v_mul_u32_u24 v{so}, {PITCH}, v{G}"); b.e(f"v_lshl_add_u32 v{so}, v{J}, 4, v{so}")
            b.e(f"s_mul_i32 s39, s38, {2*PITCH}"); b.e("s_lshl_b32 s36, s37, 8"); b.e("s_add_u32 s39, s39, s36"); b.e("s_add_u32 s39, s39, 16384")
            b.e("s_lshl_b32 s36, s28, 11"); b.e("s_add_u32 s39, s39, s36")
            b.e("s_lshr_b32 s36, s29, 2"); b.e("s_xor_b32 s36, s36, s94"); b.e("s_and_b32 s36, s36, 1"); b.e("s_lshl_b32 s36, s36, 13"); b.e("s_add_u32 s39, s39, s36")
            b.e(f"s_add_u32 s40, s39, {4*PITCH}")
    if which == 2:
        lsrd(b, 16, oX1P, XSZ); lsrd(b, 44, oST2, 24576)
    if which == 4:
        b.e(f"s_mul_i32 s36, s31, {oP1-oP0}"); b.e(f"s_add_u32 s36, s36, {oP0}")
        b.e("s_add_u32 s16, s62, s36"); b.e("s_addc_u32 s17, s63, 0"); b.e(f"s_mov_b32 s18, {XSZ}"); b.e("s_mov_b32 s19, 0x20000")
    if which <= 2: dmf(3, spreadf(b.l, 8, 15), 8, 16)
    else: mfmas(fY, b.l)
    mstamp(a)
    if which in (1, 3):
        AB = v(2 * MT, 2) if which == 1 else fY + 4
        def consts():
            for mt in range(MT):
                r = lns + 2 * mt + 1
                a.e(f"v_mul_f32 v{AB+2*mt}, {f32(GC1)}, v{r}"); a.e(f"v_mul_f32 v{AB+2*mt+1}, v{r}, v{r}")
                a.e(f"v_mul_f32 v{AB+2*mt+1}, v{AB+2*mt+1}, v{AB+2*mt}"); a.e(f"v_mul_f32 v{AB+2*mt+1}, {f32(0.044715)}, v{AB+2*mt+1}")
                a.e(f"v_rcp_f32 v{r}, v{r}")
        def act(mt, nt):
            A = A_(mt, nt); P_ = [(A, tp), (A + 2, tp + 2)]; L_ = vr(lns + 2 * mt, 2); K_ = vr(AB + 2 * mt, 2)
            for h in range(2):
                a.e(f"v_pk_fma_f32 {vr(A+2*h,2)}, {L_}, {vr(cs+4*nt+2*h,2)}, {vr(A+2*h,2)} op_sel_hi:[0,1,1] neg_lo:[1,0,0] neg_hi:[1,0,0]")
            for x, u in P_: a.e(f"v_pk_mul_f32 {vr(u,2)}, {vr(x,2)}, {vr(x,2)}")
            for x, u in P_: a.e(f"v_pk_fma_f32 {vr(u,2)}, {vr(u,2)}, {K_}, {K_} op_sel:[0,1,0] op_sel_hi:[1,1,0]")
            for x, u in P_: a.e(f"v_pk_mul_f32 {vr(u,2)}, {vr(u,2)}, {vr(x,2)}")
            for i in range(4): a.e(f"v_exp_f32 v{tp+i}, v{tp+i}")
            for x, u in P_: a.e(f"v_pk_fma_f32 {vr(u,2)}, {vr(u,2)}, {L_}, {L_} op_sel:[0,1,1] op_sel_hi:[1,1,1]")
            for i in range(4): a.e(f"v_rcp_f32 v{tp+i}, v{tp+i}")
            for x, u in P_: a.e(f"v_pk_mul_f32 {vr(x,2)}, {vr(x,2)}, {vr(u,2)}")
        def group(par, mt, nts, dst=None):
            for nt in nts: act(mt, nt)
            T = par * NT + nts[0]; P = (T >> 1) - ((par * NT) >> 1); B = A_(mt, nts[0]); D = B if dst is None else dst
            for k in range(2 * len(nts)): a.e(f"v_cvt_pk_bf16_f32 v{D+k}, v{B+2*k}, v{B+2*k+1}")
            if which == 3: return [f"s_add_u32 s36, s{44+P}, {mt*224*1024}", f"buffer_store_dwordx4 {vr(B,4)}, v{l16}, s[16:19], s36 offen {SC}"]
            return [f"buffer_store_dwordx4 {vr(B,4)}, v{so}, s[16:19], s{39+P} offen offset:{mt*256} {SC}"]
        def body(par):
            if which == 1: gs = [(0, 1), (2, 3)]
            else: gs = [(0, 1), (2, 3), (4, 5), (6,)] if par == 0 else [(1, 2), (3, 4), (5, 6), (0,)]
            k = 0; pend = []; sent = 0
            for gi_, g_ in enumerate(gs):
                for mt in range(MT):
                    if which == 3 and k == C0PUB: publish(a, ST_G3A, 4, pt, wait=sent - 4, ctr=48); mstamp(a)
                    st_ = group(par, mt, g_, None if gi_ < 2 else C2R + 4 * mt if gi_ == 2 else C2R + 16 + 2 * mt); k += 1
                    if which == 3 and gi_ < 3:
                        a.e(f"ds_write_b128 v{a0}, {vr(A_(mt, g_[0]) if gi_ < 2 else C2R + 4 * mt, 4)} offset:{gi_*16384 + mt*2048}")
                    if gi_ < 2: pend.append(st_)
                    n = len(pend) if (which == 1 or k <= 4 or k == 16) else 0 if k <= STQ else min(1, len(pend))
                    for _ in range(n):
                        for x in pend.pop(0): a.e(x)
                        sent += 1
            if which == 3:
                a.e("s_waitcnt lgkmcnt(0)")
                if par == 0: a.e("s_mov_b32 s44, s46"); a.e("s_mov_b32 s45, s47")
                else: a.e("s_add_u32 s45, s44, 512"); a.e("s_mov_b32 s44, s47")
        a.e("s_waitcnt lgkmcnt(0)")
        consts()
        if which == 3:
            a.e("s_cmp_eq_u32 s35, 1"); a.e(f"s_cbranch_scc1 {nm}_e1")
            body(0); a.e(f"s_branch {nm}_e2"); a.e(f"{nm}_e1:"); body(1); a.e(f"{nm}_e2:")
        else: body(0)
    if which == 2:
        xf = v(2, 2); S = v(2 * MT, 2); pp = v(2, 2); mn = v(2, 2)
        for mt in range(MT):
            a.e(f"s_add_u32 s36, s39, {mt*65536}")
            for p in range(NT // 2):
                R = res + (mt * (NT // 2) + p) * 4
                for e in range(4):
                    X = A_(mt, 2 * p) + 2 * e
                    a.e(f"v_cvt_pk_bf16_f32 v{R+e}, v{X}, v{X+1}")
                a.e(f"buffer_store_dwordx4 {vr(R,4)}, v{l16}, s[16:19], s36 offen offset:{p*1024} {SC}")
        if which in DL: a.e("s_barrier")
        if OWN3:
            a.e("s_lshl_b32 s36, s37, 11"); a.e(f"v_add_u32 v{t2}, s36, v{l16}")
            for i in range(4): a.e(f"ds_write_b128 v{t2}, {vr(res+4*i,4)} offset:{1024*i}")
        for i in range(MT * NT * 2): unpack(a, acc + 2 * i, acc + 2 * i + 1, res + i)
        mstamp(a)
        publish(a, which, 4, pt)
        mstamp(a)
        for mt in range(MT):
            B = A_(mt, 0); Sm = S + 2 * mt
            a.e(f"v_pk_add_f32 {vr(pp,2)}, {vr(B,2)}, {vr(B+2,2)}"); a.e(f"v_pk_mul_f32 {vr(xf,2)}, {vr(B,2)}, {vr(B,2)}")
            for i in range(1, NT * 2):
                if i > 1: a.e(f"v_pk_add_f32 {vr(pp,2)}, {vr(pp,2)}, {vr(B+2*i,2)}")
                a.e(f"v_pk_fma_f32 {vr(xf,2)}, {vr(B+2*i,2)}, {vr(B+2*i,2)}, {vr(xf,2)}")
            a.e(f"v_add_f32 v{Sm}, v{pp}, v{pp+1}"); a.e(f"v_add_f32 v{Sm+1}, v{xf}, v{xf+1}")
            for op in ("v_permlane16_swap_b32", "v_permlane32_swap_b32"):
                for k in range(2): a.e(f"v_mov_b32 v{pp+k}, v{Sm+k}")
                for k in range(2): a.e(f"{op} v{Sm+k}, v{pp+k}")
                a.e(f"v_pk_add_f32 {vr(Sm,2)}, {vr(Sm,2)}, {vr(pp,2)}")
        a.e(f"v_cmp_eq_u32 vcc, 0, v{G}"); a.e(f"v_cndmask_b32 v{S}, v{S+2}, v{S}, vcc"); a.e(f"v_cndmask_b32 v{S+1}, v{S+3}, v{S+1}, vcc")
        spread(a, 40, 29); a.e("s_lshl_b32 s36, s34, 8"); a.e("s_add_u32 s40, s40, s36")
        a.e(f"v_lshlrev_b32 v{t2}, 3, v{lane}")
        a.e("s_bfm_b64 exec, 32, 0")
        a.e(f"buffer_store_dwordx2 {vr(S,2)}, v{t2}, s[44:47], s40 offen {SC}")
        a.e("s_mov_b64 exec, -1")
    if which == 4:
        for mt in range(MT):
            a.e(f"s_add_u32 s36, s39, {mt*65536}")
            for p in range(NT // 2):
                B = A_(mt, 2 * p)
                for e in range(4): a.e(f"v_cvt_pk_bf16_f32 v{B+e}, v{B+2*e}, v{B+2*e+1}")
                a.e(f"buffer_store_dwordx4 {vr(B,4)}, v{l16}, s[16:19], s36 offen offset:{p*1024} {SC}")
    if which != 2:
        if which in DL: a.e("s_barrier")
        mstamp(a)
        if which != 3: publish(a, which, 4, pt)
        mstamp(a)
    if which == 4:
        a.e("s_branch NEXT")
        a.e("G4_last:")
        RX = 176; PX = 208; oa = 224; xf = 226
        b0 = Rec()
        b0.e(f"s_load_dwordx2 s[6:7], s[0:1], {D_OUT}")
        lsrd(b0, 84, oX3, XSZ); lsrd(b0, 88, oX1P, XSZ)
        b0.e("s_lshl_b32 s40, s31, 17"); b0.e("s_add_u32 s40, s40, s39")
        b0.e("s_xor_b32 s41, s31, 1"); b0.e("s_lshl_b32 s41, s41, 17"); b0.e("s_add_u32 s41, s41, s39")
        for i in range(2):
            b0.e(f"s_add_u32 s36, s40, {i*65536}")
            for p in range(2):
                b0.e(f"buffer_load_dwordx4 {vr(RX+8*(2*i+p),4)}, v{l16}, s[84:87], s36 offen offset:{p*1024} {SC}")
                b0.e(f"buffer_load_dwordx4 {vr(RX+8*(2*i+p)+4,4)}, v{l16}, s[88:91], s36 offen offset:{p*1024} {SC}")
        mfmas(fX, reads(fY, 1) + b0.l)
        a.e("s_waitcnt lgkmcnt(0)")
        b = Rec()
        lsrd(b, 16, oP0, XSZ)
        b.srd(20, 6, 4 * MB)
        b.e("s_lshl_b32 s44, s29, 2"); b.e("s_add_u32 s44, s44, s30"); b.e("s_lshl_b32 s44, s44, 7"); b.e("s_xor_b32 s45, s44, 4096")
        b.e("s_add_u32 s44, s44, s55"); b.e(f"s_add_u32 s44, s44, {oFP}"); b.e("s_add_u32 s45, s45, s55"); b.e(f"s_add_u32 s45, s45, {oFP}")
        b.e(f"v_mov_b32 v{pt+1}, s45"); b.e(f"v_mov_b32 v{pt+2}, s52"); b.e(f"v_mov_b32 v{pt+3}, 0")
        b.e("s_lshl_b32 s46, s28, 3"); b.e("s_add_u32 s46, s46, s37"); b.e("s_lshl_b32 s47, s31, 1"); b.e("s_add_u32 s46, s46, s47"); b.e("s_lshl_b32 s46, s46, 15")
        b.e("s_lshl_b32 s47, s38, 5"); b.e("s_add_u32 s46, s46, s47"); b.e(f"s_add_u32 s47, s46, {16*2048}")
        b.e(f"v_and_b32 v{oa+1}, 1, v{G}"); b.e(f"v_lshlrev_b32 v{oa}, 11, v{J}"); b.e(f"v_lshl_add_u32 v{oa}, v{oa+1}, 5, v{oa}")
        b.e(f"v_lshrrev_b32 v{oa+1}, 1, v{G}"); b.e(f"v_lshl_add_u32 v{oa}, v{oa+1}, 4, v{oa}")
        FULLN = os.environ.get("FULLN", "1") == "1"
        if FULLN:
            b.e(f"v_cmp_gt_u32 s[48:49], 8, v{J}")
            b.e(f"v_lshrrev_b32 v{oa+1}, 3, v{J}"); b.e(f"v_mul_u32_u24 v{oa+1}, {8*2048 - 64}, v{oa+1}"); b.e(f"v_sub_u32 v{oa}, v{oa}, v{oa+1}")
            b.e(f"v_add_u32 v{oa+1}, {8*2048}, v{oa}")
        mfmas(fY, b.l)
        mstamp(a)
        a.e("s_cmp_eq_u32 s31, 0"); a.e("s_cbranch_scc1 G4_k0")
        for i in range(32): a.e(f"v_swap_b32 v{acc+i}, v{acc+32+i}")
        a.e("G4_k0:")
        for i in range(2):
            a.e(f"s_add_u32 s36, s41, {i*65536}")
            for p in range(2):
                B = A_(2 + i, 2 * p)
                for e in range(4): a.e(f"v_cvt_pk_bf16_f32 v{B+e}, v{B+2*e}, v{B+2*e+1}")
                a.e(f"buffer_store_dwordx4 {vr(B,4)}, v{l16}, s[16:19], s36 offen offset:{p*1024} {SC}")
        def addp(k, R):
            B = A_(k >> 1, 2 * (k & 1))
            for e in range(4):
                unpack(a, xf + 2 * (e & 1), xf + 1 + 2 * (e & 1), R + e)
                a.e(f"v_pk_add_f32 {vr(B+2*e,2)}, {vr(B+2*e,2)}, {vr(xf+2*(e&1),2)}")
        a.e("s_waitcnt vmcnt(4)")
        for k in range(4): addp(k, RX + 8 * k)
        a.e("s_waitcnt vmcnt(0)")
        a.e("s_mov_b64 exec, 1"); a.e(f"buffer_store_dword v{pt+2}, v{pt+3}, s[56:59], s44 offen {SC}"); a.e("s_mov_b64 exec, -1")
        mstamp(a)
        for k in range(4): addp(k, RX + 8 * k + 4)
        poll_core(a, pt, [pt + 1], 1, nap=2)
        mstamp(a)
        for i in range(2):
            a.e(f"s_add_u32 s36, s40, {i*65536}")
            for p in range(2): a.e(f"buffer_load_dwordx4 {vr(PX+4*(2*i+p),4)}, v{l16}, s[16:19], s36 offen offset:{p*1024} {SC}")
        for k in range(4):
            a.e(f"s_waitcnt vmcnt({3 - (k & 1) if FULLN else 3})")
            addp(k, PX + 4 * k)
            B = A_(k >> 1, 2 * (k & 1))
            for e in range(4): a.e(f"v_cvt_pk_bf16_f32 v{B+e}, v{B+2*e}, v{B+2*e+1}")
            for e in range(2): a.e(f"v_permlane16_swap_b32 v{B+e}, v{B+2+e}")
            if not FULLN: a.e(f"buffer_store_dwordx4 {vr(B,4)}, v{oa}, s[20:23], s{46+(k>>1)} offen offset:{64*(k&1)} {os.environ.get('OS', '')}")
            elif k & 1:
                X, Y, T = B - 8, B, B + 4
                for e in range(4): a.e(f"v_cndmask_b32 v{T+e}, v{X+e}, v{Y+e}, s[48:49]")
                for e in range(4): a.e(f"v_mov_b32_dpp v{X+4+e}, v{T+e} row_ror:8 row_mask:0xf bank_mask:0xf")
                for e in range(4): a.e(f"v_cndmask_b32 v{X+e}, v{X+4+e}, v{X+e}, s[48:49]"); a.e(f"v_cndmask_b32 v{Y+e}, v{Y+e}, v{X+4+e}, s[48:49]")
                a.e(f"buffer_store_dwordx4 {vr(X,4)}, v{oa}, s[20:23], s{46+(k>>1)} offen {SC}")
                a.e(f"buffer_store_dwordx4 {vr(Y,4)}, v{oa+1}, s[20:23], s{46+(k>>1)} offen {SC}")
        a.e("s_branch K_fin")
    assert v.hi <= {1: RES2, 2: RES2, 3: SO3, 4: RFO}[which], v.hi
    return v.hi

def k_mega(a):
    nm = KNAME; a.begin_kernel(nm)
    a.e("s_cmp_ge_u32 s2, 256"); a.e("s_cbranch_scc1 K_end")
    a.e(f"s_load_dwordx8 s[8:15], s[0:1], {A_K}"); a.e(f"s_load_dwordx2 s[6:7], s[0:1], {A_Q}"); a.e(f"s_load_dwordx8 s[68:75], s[0:1], {B_W1}")
    a.e(f"s_load_dwordx2 s[4:5], s[0:1], {D_WS}"); a.e(f"s_load_dwordx2 s[84:85], s[0:1], {D_DBG}"); a.e("s_memrealtime s[46:47]")
    a.e("v_lshrrev_b32 v1, 6, v0"); a.e("v_readfirstlane_b32 s30, v1")
    if CODEPF:
        a.e("s_getpc_b64 s[48:49]"); a.e("K_pc:")
        a.e("s_lshr_b32 s36, s2, 3"); a.e("s_lshl_b32 s36, s36, 11")
        a.e("v_lshlrev_b32 v4, 2, v0"); a.e("v_add_u32 v4, s36, v4")
        a.e("v_cmp_gt_u32 vcc, K_end-K_pc-8, v4"); a.e("s_and_saveexec_b64 s[36:37], vcc"); a.e("s_cbranch_execz K_3")
        a.e("v_mov_b32 v5, s49"); a.e("v_add_co_u32 v4, vcc, s48, v4"); a.e("v_addc_co_u32 v5, vcc, 0, v5, vcc")
        a.e("global_load_dword v250, v[4:5], off")
        a.e("K_3:"); a.e("s_mov_b64 exec, -1")
    for _ in range(int(os.environ.get("SDELAY", "0"))): a.e("s_sleep 127")
    front_loads(a)
    a.e("v_and_b32 v1, 63, v0"); a.e("v_lshlrev_b32 v2, 4, v1"); a.e("v_lshlrev_b32 v3, 2, v1")
    a.e("s_and_b32 s32, s2, 7"); a.e("s_lshr_b32 s33, s2, 3")
    a.e("s_and_b32 s28, s32, 2"); a.e("s_lshr_b32 s34, s32, 2"); a.e("s_or_b32 s28, s28, s34")
    a.e("s_lshl_b32 s28, s28, 2"); a.e("s_and_b32 s34, s33, 3"); a.e("s_add_u32 s28, s28, s34")
    a.e("s_and_b32 s31, s32, 1"); a.e("s_lshr_b32 s33, s33, 2")
    a.e("s_lshl_b32 s29, s31, 3"); a.e("s_add_u32 s29, s29, s33")
    if MAP == 8:
        a.e("s_lshr_b32 s33, s2, 3")
        a.e("s_and_b32 s28, s33, 4"); a.e("s_lshl_b32 s28, s28, 1"); a.e("s_and_b32 s34, s32, 4"); a.e("s_or_b32 s28, s28, s34"); a.e("s_and_b32 s34, s33, 3"); a.e("s_or_b32 s28, s28, s34")
        a.e("s_and_b32 s29, s32, 3"); a.e("s_lshl_b32 s29, s29, 2"); a.e("s_lshr_b32 s33, s33, 3"); a.e("s_or_b32 s29, s29, s33")
        a.e("s_lshr_b32 s31, s29, 3"); a.e("s_and_b32 s33, s29, 7")
    if MAP == 2:
        a.e("s_lshr_b32 s33, s2, 3")
        a.e("s_and_b32 s28, s32, 2"); a.e("s_lshl_b32 s28, s28, 2"); a.e("s_and_b32 s34, s32, 4"); a.e("s_or_b32 s28, s28, s34")
        a.e("s_and_b32 s34, s32, 1"); a.e("s_lshl_b32 s34, s34, 1"); a.e("s_or_b32 s28, s28, s34"); a.e("s_and_b32 s34, s33, 1"); a.e("s_or_b32 s28, s28, s34")
        a.e("s_lshr_b32 s29, s33, 1"); a.e("s_lshr_b32 s31, s29, 3"); a.e("s_and_b32 s33, s29, 7")
    a.e({4: "s_lshl_b32 s67, s33, 1", 8: "s_lshl_b32 s67, s33, 2", 2: "s_mov_b32 s67, s29"}[MAP]); a.e(f"s_and_b32 s67, s67, {int(os.environ.get('RMASK', '0'))}")
    a.e("s_mov_b32 s60, 0"); a.e("s_mov_b32 s61, 40000"); a.e("s_mov_b32 s52, 0")
    a.e("s_mov_b32 s55, 0"); a.e("s_mov_b32 s92, 0"); a.e("s_mov_b32 s93, 0"); a.e("s_mov_b32 s94, 0")
    a.srd(56, 4, HSB)
    if os.environ.get("FIXT"): a.e("s_mov_b32 s101, s46")
    r_addr(a)
    a.e(f"s_add_u32 s62, s4, {LB0}"); a.e("s_addc_u32 s63, s5, 0")
    if STAMP:
        a.e("s_mov_b32 s66, 1"); a.e("v_mov_b32 v255, -1"); a.e("s_mov_b32 s95, 0"); a.e("v_writelane_b32 v255, s46, 0")
    mstamp(a)
    if os.environ.get("WBENCH"):
        a.e("s_waitcnt vmcnt(0)"); a.e("s_barrier")
        a.e("s_cmp_lt_u32 s30, 6"); a.e("s_cbranch_scc1 WB_end")
        for w in (1, 2, 3, 4):
            mstamp(a); w_setup(a, w); a.e("s_waitcnt vmcnt(0)"); mstamp(a); a.e("s_sleep 40")
        a.e("WB_end:"); a.e("s_branch K_dump")
    front_a(a); mstamp(a)
    for r in range(238, 248): a.e(f"v_mov_b32 v{r}, 0")
    a.e("s_cmp_ge_u32 s30, 4"); a.e("s_cbranch_scc1 FR_b")
    front_conv(a); hi = 0
    mstamp(a)
    front_arrive(a, True)
    a.e("s_branch FR_end")
    a.e("FR_b:")
    front_b(a)
    a.e("FR_end:")
    mstamp(a)
    a.e("LAYER:")
    if os.environ.get("XDELAY"): a.e(f"s_sleep {os.environ['XDELAY']}")
    hi = max(hi, r_stage(a, False))
    mstamp(a)
    a.e("s_cmp_ge_u32 s30, 4"); a.e("s_cbranch_scc1 LOADERS")
    if CPRIO: a.e(f"s_setprio {CPRIO}")
    for w in (1, 2, 3, 4):
        a.lines.append(f"; ---- G{w}: compute waves (set-up, K loop, epilogue, publish)")
        hi = max(hi, g_compute(a, w))
    a.e("LOADERS:")
    if PRIO: a.e(f"s_setprio {PRIO}")
    a.e("s_cmp_ge_u32 s30, 6"); a.e("s_cbranch_scc1 WLOAD")
    for w in (1, 2, 3, 4): a_loader(a, w)
    a.e("s_branch NEXT")
    a.e("WLOAD:")
    a.e("s_cmp_eq_u32 s60, 1"); a.e("s_cbranch_scc1 WL_1")
    w_setup(a, 1, pre=False); w1_slots(a, range(9 - W1G), pace=12); mstamp(a)
    a.e("s_branch WL_2")
    a.e("WL_1:")
    w_setup(a, 1, pre=False); w1_slots(a, range(3 - W1L), pace=12)
    a.e("WL_2:")
    for w in (1, 2, 3, 4):
        w_loader(a, w)
        if w == 2:
            c = CFG[3]; w_setup(a, 3, pre=False); a.e(f"s_mov_b32 s42, {(c['S0'] + 2) % c['NW'] * c['STB']}"); a.e("s_mov_b32 s44, 2")
        if w == 3: w_setup(a, 4)
    a.e("NEXT:")
    a.e("s_setprio 0")
    a.e("s_add_u32 s60, s60, 1"); a.e(f"s_add_u32 s55, s55, {LSTR}")
    a.e(f"s_add_u32 s62, s62, {LSTR}"); a.e("s_addc_u32 s63, s63, 0")
    a.e("s_branch LAYER")
    a.e("K_fin:")
    if os.environ.get("FIXT"):
        a.e("FX_l:"); a.e("s_sleep 4"); a.e("s_memrealtime s[64:65]"); a.e("s_waitcnt lgkmcnt(0)"); a.e("s_sub_u32 s64, s64, s101")
        if os.environ.get("FIX0"): a.e("s_add_u32 s64, s64, s101"); a.e("s_lshl_b32 s64, s64, 6"); a.e("s_sub_u32 s64, s64, s52"); a.e("s_lshr_b32 s64, s64, 6")
        a.e(f"s_cmp_lt_u32 s64, {os.environ['FIXT']}"); a.e("s_cbranch_scc1 FX_l")
    if STAMP:
        a.e("K_dump:")
        a.e("s_waitcnt vmcnt(0)")
        mstamp(a)
        a.srd(96, 4, 16 * MB, off=200 * MB)
        a.e("s_lshl_b32 s66, s2, 3"); a.e("s_add_u32 s66, s66, s30"); a.e("s_lshl_b32 s66, s66, 8")
        a.e("v_writelane_b32 v255, s95, 63")
        a.e("buffer_store_dword v255, v3, s[96:99], s66 offen")
        if os.environ.get("DBGOUT"):
            a.e("s_cmp_lg_u32 s66, 0"); a.e("s_cbranch_scc1 K_end")
            a.e(f"s_load_dwordx2 s[96:97], s[0:1], {D_DBG}"); a.e("s_mov_b32 s98, 64"); a.e("s_waitcnt lgkmcnt(0)")
            a.e("v_readlane_b32 s64, v255, 0"); a.e("v_mov_b32 v10, 0")
            for i, j in enumerate(eval(os.environ["DBGOUT"])):
                a.e(f"v_readlane_b32 s65, v255, {j}"); a.e("s_sub_u32 s65, s65, s64"); a.e("v_mov_b32 v11, s65")
                a.e(f"buffer_store_dword v11, v10, s[96:99], 0 offen offset:{8+4*i}")
    a.e("s_endpgm")
    emit_subs(a)
    a.e("K_end:")
    assert hi <= PV
    a.end_kernel(nm, 256)
    if TAB: tab_data(a)
    a.launches.append(f"; @launch grid=(256,1,1) block=(512,1,1) lds={LDS_TOTAL}")

HEADER = open("interleave_layers__ssm_conv_h3__mixer_s_mlp__prompt.s.ref").read().split("; Override launch")[0]
DOC = """; One persistent kernel, 256 workgroups x 8 waves (one per CU), generated by dev/gen19.py.
"""
def main(out):
    a = Asm()
    k_mega(a)
    DS = os.environ.get("DS")
    if DS:
        o = []
        for l in a.lines:
            o.append(l)
            if "buffer_store_dwordx" in l and "sc1" in l and any(k in l for k in DS.split(",")): o.append(l.replace(" sc1", ""))
        a.lines = o
    notes = {
        "K_pc:": "each workgroup reads 2 KB of this kernel's code so that later instruction fetches are served on chip",
        "KV_t0:": "k / v / tap loads of the u^T tile (64 times x 128 channels); workgroup 0 has posted the launch tag (a clock value) in d_debug",
        "HB_2:": "u^T tile out, arrival counters initialised to the tag, shifted filter copies into LDS, LayerNorm(q)",
        "CV_w:": "long causal convolution as Toeplitz MFMAs, one channel per wave",
        "FR_b:": "waves 4-7 beside the convolution: memory-locality vote (timed loads, layout choice only), weight column sums, weight touches",
        "LAYER:": "row stage: residual sums, LayerNorm chain, x + LN(x)*y for 8 rows per workgroup",
        "LOADERS:": "waves 4,5: activation tiles by LDS-DMA (after the producers' counters are complete)",
        "WLOAD:": "waves 6,7: weight tiles by LDS-DMA in their original layout (read back with transposing LDS loads)",
        "G4_last:": "last layer: the two K halves exchange half tiles, add the residuals and write the output",
    }
    o = []
    for l in a.lines:
        if l.strip() in notes: o.append("; ---- " + notes[l.strip()])
        if l.strip().startswith("s_sleep"): l += "    ; back-off inside a wait loop"
        o.append(l)
    a.lines = o
    open(out, "w").write(a.text(HEADER + DOC))
    print("nops added:", a.nops_added)

if __name__ == "__main__":
    main(sys.argv[1] if len(sys.argv) > 1 else "interleave_layers__ssm_conv_h3__mixer_s_mlp__prompt.s")
```

```python
import sys, os, math, struct
sys.path.insert(0, "dev")
from asmgen import Asm

KNAME = "interleave_layers__ssm_conv_h3__mixer_s_mlp__prompt_kernel"
MB = 1 << 20
UT, Y = 24 * MB, 28 * MB
CSP = {1: 20 * MB, 3: 20 * MB + 128 * 1024}
A_Q, A_K, A_V, A_SH, A_SSMK, A_SSMD, B_X, B_W1, B_W2, B_W3, B_W4, D_OUT, D_DBG, D_WS = [8 * i for i in range(14)]
STAMP = int(os.environ.get("STAMP", "0"))
def f32(x): return "0x%08x" % struct.unpack("<I", struct.pack("<f", x))[0]
GC1 = -2.0 * math.sqrt(2.0 / math.pi) * math.log2(math.e)
GC2 = GC1 * 0.044715

class VA:
    def __init__(self, start=1): self.n = start; self.hi = start
    def __call__(self, cnt=1, al=None):
        if al is None: al = 2 if cnt > 1 else 1
        self.n = (self.n + al - 1) // al * al
        r = self.n; self.n += cnt; self.hi = max(self.hi, self.n); return r
def vr(b, n): return f"v[{b}:{b+n-1}]" if n > 1 else f"v{b}"

def unpack(a, lo, hi, src):
    a.e(f"v_lshlrev_b32 v{lo}, 16, v{src}")
    a.e(f"v_and_b32 v{hi}, 0xffff0000, v{src}")
def round2(a, x, y, tmp):
    a.e(f"v_cvt_pk_bf16_f32 v{tmp}, v{x}, v{y}")
    unpack(a, x, y, tmp)
def round1(a, x):
    a.e(f"v_cvt_pk_bf16_f32 v{x}, v{x}, v{x}")
    a.e(f"v_lshlrev_b32 v{x}, 16, v{x}")
def red_g(a, x, t):
    a.e(f"v_mov_b32 v{t}, v{x}"); a.e(f"v_permlane16_swap_b32 v{x}, v{t}"); a.e(f"v_add_f32 v{x}, v{x}, v{t}")
    a.e(f"v_mov_b32 v{t}, v{x}"); a.e(f"v_permlane32_swap_b32 v{x}, v{t}"); a.e(f"v_add_f32 v{x}, v{x}, v{t}")
def ln_finish(a, mean, var, rs, s=None):
    round1(a, mean); round1(a, var)
    a.e(f"v_add_f32 v{var}, {f32(1e-5)}, v{var}"); round1(a, var)
    a.e(f"v_sqrt_f32 v{var}, v{var}"); round1(a, var)
    if s is not None: a.e(f"v_mov_b32 v{s}, v{var}")
    a.e(f"v_rcp_f32 v{rs}, v{var}")


FLG = 22 * MB + int(os.environ.get("FOFF", "0"))
LB0, LSTR, GSTR = 32 * MB, 64 * MB, 8 * MB
oH2 = 0; oSM = 1792 * 1024; oFP = 16384; oST2 = oSM + 32768; oLNS = oSM + 65536
oX3, oX1P, oP0, oP1 = [4 * MB + i * 512 * 1024 for i in range(4)]
XSZ = 512 * 1024 - 8192; H2SZ = 1792 * 1024 - 8192
HSB = 160 * MB; PITCH = 65536 + int(os.environ.get("SKEW", "0")); oHS = None
def fso(stage): return int(stage * 256)
def spread(a, d, src):
    a.e(f"s_lshr_b32 s53, s{src}, 3"); a.e("s_lshl_b32 s53, s53, 14"); a.e(f"s_and_b32 s{d}, s{src}, 7"); a.e(f"s_lshl_b32 s{d}, s{d}, 10"); a.e(f"s_add_u32 s{d}, s{d}, s53")
ST_R, ST_G1, ST_G2, ST_G3, ST_G4, ST_R2, ST_G3B, ST_G3A = range(8); ST_G2S = 5.5
F_KVT, F_FRONT, F_CS = FLG, FLG + 32768, FLG + 49152
LDS_TOTAL = 163840
AUX = LDS_TOTAL - 4096
SC = "sc1"
PSLEEP = int(os.environ.get("PSLEEP", "5"))
ROT = int(os.environ.get("ROT", "1"))
PACE = int(os.environ.get("PACE", "8"))
PDEPTH = int(os.environ.get("PDEPTH", "1"))
WROT = int(os.environ.get("WROT", "1"))
PRIO = int(os.environ.get("PRIO", "0"))
STQ = int(os.environ.get("STQ", "12"))
CPRIO = int(os.environ.get("CPRIO", "0"))
FSLEEP = int(os.environ.get("FSLEEP", "3"))
CSPRIO = int(os.environ.get("CSPRIO", "0"))
NT = os.environ.get("NT", "nt"); HALO = int(os.environ.get("HALO", "0")); NTK = os.environ.get("NTK", "" if HALO else NT); NTH = os.environ.get("NTH", NT)
W1F = int(os.environ.get("W1F", "7"))
WSC = eval(os.environ.get("WSC", "{}"))
TLBW = int(os.environ.get("TLBW", "0"))
T12 = eval(os.environ.get("T12", "{}"))
T23 = eval(os.environ.get("T23", "()"))
OWN3 = int(os.environ.get("OWN3", "1"))
PUB2 = int(os.environ.get("PUB2", "4"))
MAP = int(os.environ.get("MAP", "4"))
HSPLIT = int(os.environ.get("HSPLIT", "2"))
W1G = int(os.environ.get("W1G", "9"))
PWAIT = int(os.environ.get("PWAIT", "8"))
DL = eval(os.environ.get("DL", "[2,4]"))
PACES = eval(os.environ.get("PACES", "{4:4}"))
C0PUB = int(os.environ.get("C0PUB", "5"))
LNSL = AUX + 1024

CFG = {1: dict(WM=4, WN=1, MT=2, NT=4, KBT=32, NS=16, NA=1.5, NW=16, A=oX3, W=B_W1, LDW=2048),
       2: dict(WM=4, WN=1, MT=2, NT=4, KBT=32, NS=16, NA=0, NW=16, A=oHS, W=B_W2, LDW=2048),
       3: dict(WM=2, WN=2, MT=4, NT=7, KBT=32, NS=16, NA=3, NW=3, A=oX1P, W=B_W3, LDW=7168, NPRE=2, WR=1, S0=2, WB=73728),
       4: dict(WM=2, WN=2, MT=4, NT=4, KBT=112, NS=28, NA=3, NW=6, A=oH2, W=B_W4, LDW=2048)}
for w, d in eval(os.environ.get("CFG", "{}")).items(): CFG[w].update(d)
for c in CFG.values():
    c.setdefault("NPRE", c["NW"]); c.setdefault("APRE", min(c["NA"], 3)); c.setdefault("WR", 1)
    c["TN16"] = c["WN"] * c["NT"]; c["STB"] = c["TN16"] * 2048; c.setdefault("WB", int(c["NA"] * 16384)); c.setdefault("S0", 0)
    c["RB"] = c["TN16"] * 32
    assert c["WB"] + c["NW"] * c["STB"] <= AUX
NX = 0
def nib(t): return sum(x << (4 * i) for i, x in enumerate(t))
CSO = {1: AUX + 3584, 3: AUX}

LW = AUX + 3072
def mstamp(a, force=False):
    if os.environ.get("JIT"):
        X = a.lab("jit")
        a.e("s_cselect_b32 s101, 1, 0"); a.e("s_memtime s[64:65]"); a.e("s_waitcnt lgkmcnt(0)"); a.e(f"s_and_b32 s64, s64, {os.environ['JIT']}"); a.e("s_cmp_lg_u32 s64, 0")
        a.e(f"s_cbranch_scc1 {X}"); a.e("s_sleep 50"); a.e(f"{X}:"); a.e("s_cmp_eq_u32 s101, 1")
        return
    if not STAMP or (os.environ.get("GST") and not force): return
    a.e(("s_memrealtime" if STAMP == 2 else "s_memtime") + " s[64:65]"); a.e("s_mov_b32 s100, m0"); a.e("s_mov_b32 m0, s66"); a.e("s_waitcnt lgkmcnt(0)")
    a.e("v_writelane_b32 v255, s64, m0"); a.e("s_mov_b32 m0, s100")
    a.e("s_add_u32 s66, s66, 1")

def lsrd(a, d, off, nbytes, prev=False):
    if prev:
        a.e(f"s_sub_u32 s{d}, s62, {LSTR - off:#x}"); a.e(f"s_subb_u32 s{d+1}, s63, 0")
        a.e(f"s_mov_b32 s{d+2}, {nbytes:#x}"); a.e(f"s_mov_b32 s{d+3}, 0x20000")
    else: a.srd(d, 62, nbytes, off=off)

def hs_srd(a, d):
    a.e("s_lshl_b32 s53, s60, 24"); a.e(f"s_add_u32 s53, s53, {HSB}")
    a.e(f"s_add_u32 s{d}, s4, s53"); a.e(f"s_addc_u32 s{d+1}, s5, 0"); a.e(f"s_mov_b32 s{d+2}, {128*PITCH}"); a.e(f"s_mov_b32 s{d+3}, 0x20000")

def group_off(a, d, m):
    a.e(f"s_lshr_b32 s53, s{m}, 3"); a.e("s_lshl_b32 s53, s53, 2"); a.e(f"s_and_b32 s54, s{m}, 3"); a.e("s_add_u32 s53, s53, s54"); a.e("s_lshl_b32 s53, s53, 23")
    a.e(f"s_lshr_b32 s54, s{m}, 2"); a.e("s_xor_b32 s54, s54, s94"); a.e("s_and_b32 s54, s54, 1"); a.e("s_lshl_b32 s54, s54, 13")
    a.e(f"s_add_u32 s{d}, s53, s54"); a.e(f"s_add_u32 s{d}, s{d}, {LB0}")

PV = 240
def poll_core(a, t, addrs, mask, extra=None, depth=1, cnt=0, nap=None):
    L = a.lab("poll"); D = a.lab("pok")
    n = len(addrs) + (1 if extra else 0)
    if depth > 1: t0 = t; regs = [PV + k * len(addrs) for k in range(depth)]; assert not extra and regs[-1] + len(addrs) <= 256
    else: regs = [t]
    def ld(r):
        for i, ad in enumerate(addrs): a.e(f"buffer_load_dword v{r+i}, v{ad}, s[56:59], 0 offen {SC}")
        if extra: a.e(extra[0])
    a.e("s_mov_b32 s53, 0"); a.e(f"s_add_u32 s54, s52, {cnt}")
    if mask != -1: a.e(f"s_bfm_b64 exec, {mask.bit_length()}, 0")
    for r in regs[:-1]: ld(r); a.e(f"s_sleep {PSLEEP}")
    a.e(f"{L}:")
    for k in range(depth):
        ld(regs[k - 1]); r = regs[k]
        a.e(f"s_waitcnt vmcnt({n*(depth-1)})")
        for i in range(len(addrs)): a.e(f"v_xor_b32 v{r+i}, s54, v{r+i}")
        for i in range(1, len(addrs)): a.e(f"v_or_b32 v{r}, v{r}, v{r+i}")
        if extra:
            for x in extra[1:]: a.e(x)
        a.e(f"v_cmp_eq_u32 vcc, 0, v{r}")
        a.e("s_cmp_eq_u64 vcc, exec"); a.e(f"s_cbranch_scc1 {D}")
        a.e(f"s_sleep {PSLEEP if nap is None else nap}")
    a.e("s_add_u32 s53, s53, 1"); a.e("s_cmp_lt_u32 s53, s61"); a.e(f"s_cbranch_scc1 {L}")
    a.e("s_mov_b32 s61, 0")
    a.e(f"{D}:")
    if mask != -1: a.e("s_mov_b64 exec, -1")

SPLIT = {ST_G1: "sign", ST_G3: "half", ST_G3A: "half", ST_G3B: "half"}
def flag_addr(a, r, stage, prev=False):
    so = fso(stage) - (LSTR if prev else 0)
    a.e(f"s_add_u32 s54, s55, {so & 0xffffffff:#x}")
    sp = SPLIT.get(stage)
    if sp == "half": a.e("s_lshl_b32 s53, s31, 7"); a.e("s_add_u32 s54, s54, s53")
    a.e(f"v_mov_b32 v{r}, s54")
    if sp == "sign":
        a.e("s_add_u32 s53, s54, 128"); a.e(f"v_writelane_b32 v{r}, s53, 1")
        a.e("s_add_u32 s53, s53, s93"); a.e(f"v_writelane_b32 v{r}, s53, 3")
        a.e("s_add_u32 s53, s54, s92"); a.e(f"v_writelane_b32 v{r}, s53, 2")
        return 0xf, 8
    return 1, 8 if sp else 16
def own_wait(a, stage, prev, t):
    if not PWAIT or stage == ST_R: return
    k = {ST_G1: 1, ST_G2: 2, ST_G3A: 3, ST_G4: 4}[stage] - (4 if prev else 0)
    a.e("s_lshl_b32 s54, s60, 2"); a.e(f"s_add_u32 s54, s54, {k}")
    lds_spin(a, LW + 56, "s54", t, nap=PWAIT)
def flag_try(a, r, ad):
    a.e("s_mov_b64 exec, 1"); a.e(f"buffer_load_dword v{r}, v{ad}, s[56:59], 0 offen {SC}"); a.e("s_mov_b64 exec, -1")
def flag_check(a, r, ad, cnt):
    D = a.lab("fok")
    a.e(f"v_readfirstlane_b32 s53, v{r}"); a.e(f"s_add_u32 s54, s52, {cnt}"); a.e("s_cmp_eq_u32 s53, s54"); a.e(f"s_cbranch_scc1 {D}")
    poll_core(a, r, [ad], 1, cnt=cnt)
    a.e(f"{D}:")

def poll(a, stage, t, prev=False):
    D = a.lab("pdone")
    a.e("s_cmp_lg_u32 s30, 4"); a.e(f"s_cbranch_scc1 {D}")
    own_wait(a, stage, prev, t)
    mask, cnt = flag_addr(a, t + 1, stage, prev)
    poll_core(a, t, [t + 1], mask, depth=PDEPTH, cnt=cnt)
    a.e(f"{D}:")
    if stage != ST_G4: mstamp(a)
    a.e("s_barrier")

def publish(a, stage, nw, t, off=None, wait=0, ctr=None, flag=False):
    D = a.lab("pub")
    mark = PWAIT and off is None and stage in (ST_G1, ST_G2, ST_G3A, ST_G4)
    if off is None:
        a.e(f"s_add_u32 s53, s55, {fso(stage)}"); off = 53
        sp = SPLIT.get(stage)
        if sp == "half": a.e("s_lshl_b32 s54, s31, 7"); a.e("s_add_u32 s53, s53, s54")
        if sp == "sign": a.e("s_and_b32 s54, s29, 4"); a.e("s_lshl_b32 s54, s54, 5"); a.e("s_add_u32 s53, s53, s54")
    a.e(f"v_mov_b32 v{t}, 1"); a.e(f"v_mov_b32 v{t+1}, {LW + (ctr if ctr is not None else 4 if nw == 8 else 0)}"); a.e(f"v_mov_b32 v{t+3}, 0")
    a.e("s_mov_b64 exec, 1")
    if wait is not None: a.e(f"s_waitcnt vmcnt({wait})")
    if nw > 1:
        a.e(f"ds_add_rtn_u32 v{t+2}, v{t+1}, v{t}")
        if flag: a.e(f"v_mov_b32 v{t+1}, s52")
        a.e("s_waitcnt lgkmcnt(0)")
        a.e(f"v_readfirstlane_b32 s54, v{t+2}")
        a.e(f"s_and_b32 s54, s54, {nw-1}"); a.e(f"s_cmp_lg_u32 s54, {nw-1}"); a.e(f"s_cbranch_scc1 {D}")
    if flag: a.e(f"buffer_store_dword v{t+1}, v{t+3}, s[56:59], s{off} offen {SC}")
    else: a.e(f"buffer_atomic_add v{t}, v{t+3}, s[56:59], s{off} offen {SC}")
    if stage == ST_R and not flag:
        a.e("s_cmp_lg_u32 s60, 0"); a.e(f"s_cbranch_scc1 {D}")
        a.e("s_lshl_b32 s53, s29, 7"); a.e(f"s_add_u32 s53, s53, {F_CS}")
        a.e(f"buffer_atomic_add v{t}, v{t+3}, s[56:59], s53 offen {SC}")
    if mark: a.e(f"v_mov_b32 v{t+1}, {LW+56}"); a.e(f"ds_add_u32 v{t+1}, v{t}")
    a.e(f"{D}:")
    a.e("s_mov_b64 exec, -1")

def lds_spin(a, addr, target, t, dst=53, nap=False):
    L = a.lab("spin")
    a.e(f"v_mov_b32 v{t}, {addr}")
    a.e(f"{L}:")
    if nap: a.e(f"s_sleep {int(nap)}")
    a.e(f"ds_read_b32 v{t+1}, v{t}"); a.e("s_waitcnt lgkmcnt(0)"); a.e(f"v_readfirstlane_b32 s{dst}, v{t+1}")
    a.e(f"s_cmp_ge_u32 s{dst}, {target}"); a.e(f"s_cbranch_scc0 {L}")
def lds_set(a, addr, val, t):
    a.e(f"v_mov_b32 v{t}, {addr}"); a.e(f"v_mov_b32 v{t+1}, {val}")
    a.e("s_waitcnt lgkmcnt(0)"); a.e(f"ds_write_b32 v{t}, v{t+1}")
def lbar(a, k, t):
    a.e(f"v_mov_b32 v{t}, {LW+8}"); a.e(f"v_mov_b32 v{t+1}, 1")
    a.e("s_waitcnt lgkmcnt(0)")
    a.e("s_mov_b64 exec, 1"); a.e(f"ds_add_u32 v{t}, v{t+1}"); a.e("s_mov_b64 exec, -1")
    lds_spin(a, LW + 8, 4 * k, t)

def gelu4(a, X, t, c1, c2):
    P = [(X, t), (X + 2, t + 2)]
    for x, u in P: a.e(f"v_pk_mul_f32 {vr(u,2)}, {vr(x,2)}, {vr(x,2)}")
    for x, u in P: a.e(f"v_pk_fma_f32 {vr(u,2)}, {vr(u,2)}, {vr(c2,2)}, {vr(c1,2)}")
    for x, u in P: a.e(f"v_pk_mul_f32 {vr(u,2)}, {vr(u,2)}, {vr(x,2)}")
    for i in range(4): a.e(f"v_exp_f32 v{t+i}, v{t+i}")
    for x, u in P: a.e(f"v_pk_add_f32 {vr(u,2)}, {vr(u,2)}, 1.0 op_sel_hi:[1,0]")
    for i in range(4): a.e(f"v_rcp_f32 v{t+i}, v{t+i}")
    for x, u in P: a.e(f"v_pk_mul_f32 {vr(x,2)}, {vr(x,2)}, {vr(u,2)}")

W2EARLY = int(os.environ.get("W2EARLY", "1")); QLATE = int(os.environ.get("QLATE", "0"))
TOUCH2 = [(A_Q, 4 * MB)] + ([] if W2EARLY else [(B_W2, 2 * MB)])
CODEPF = int(os.environ.get("CODEPF", "1")); NVOTE = 255; NSAMP = int(os.environ.get("NSAMP", "2"))
W4POS = os.environ.get("W4POS", "3C")
HSTR = 4160; CHB = 24576; UOFF = 4 * HSTR; US = 96
KVS = 4 * CHB

KV = dict(cq=6, tg=7, t=8, ro=9, wo=16, pt=18, kr=22, vv=36, w=44, d=52, hoff=70, tag=76, zz=78)
def front_loads(a):
    cq, tg, t, ro, wo, kr, vv, w = [KV[k] for k in "cq tg t ro wo kr vv w".split()]
    a.e(f"v_and_b32 v{cq}, 31, v0"); a.e(f"v_lshrrev_b32 v{tg}, 5, v0")
    a.e("s_and_b32 s34, s2, 7"); a.e("s_lshr_b32 s35, s2, 3")
    a.e("s_lshl_b32 s36, s35, 17"); a.e("s_lshl_b32 s37, s34, 8"); a.e("s_add_u32 s36, s36, s37")
    a.e(f"v_lshlrev_b32 v{t}, 13, v{tg}"); a.e(f"v_lshl_add_u32 v{t}, v{cq}, 3, v{t}"); a.e(f"v_add_u32 v{ro+3}, s36, v{t}")
    a.e(f"v_add_u32 v{ro+5}, 4096, v{ro+3}")
    a.e(f"s_mov_b32 s18, {4*MB}"); a.e("s_mov_b32 s19, 0x20000"); a.e("s_mov_b32 s22, s18"); a.e("s_mov_b32 s23, s19")
    a.e("s_waitcnt lgkmcnt(0)")
    tag, zz = KV["tag"], KV["zz"]
    a.e("s_mov_b32 s86, 256"); a.e("s_mov_b32 s87, 0x20000"); a.e(f"v_mov_b32 v{zz}, 0")
    a.e("s_lshl_b32 s45, s2, 3"); a.e("s_add_u32 s45, s45, s30"); a.e("s_cmp_lg_u32 s45, 4"); a.e("s_cbranch_scc1 KV_t0")
    a.e("s_lshl_b32 s44, s46, 6"); a.e("s_or_b32 s44, s44, 1"); a.e(f"v_mov_b32 v{tag}, s44")
    a.e("s_mov_b64 exec, 1"); a.e(f"buffer_store_dword v{tag}, v{zz}, s[84:87], 0 offen {SC}"); a.e("s_mov_b64 exec, -1")
    a.e("KV_t0:")
    a.e("s_mov_b64 s[16:17], s[8:9]"); a.e("s_mov_b64 s[20:21], s[10:11]")
    for i in range(4): a.e(f"buffer_load_dwordx2 {vr(kr+2*(i+3),2)}, v{ro+3+(i&2)}, s[16:19], 0 offen offset:{2048*(i&1)} {NTK}")
    for i in range(4): a.e(f"buffer_load_dwordx2 {vr(vv+2*i,2)}, v{ro+3+(i&2)}, s[20:23], 0 offen offset:{2048*(i&1)} {NT}")
    for i in range(3): a.e(f"v_subrev_u32 v{ro+i}, {2048*(3-i)}, v{ro+3}")
    a.e("s_lshl_b32 s37, s34, 10"); a.e(f"v_lshlrev_b32 v{wo}, 5, v{cq}"); a.e(f"v_add_u32 v{wo}, s37, v{wo}")
    a.srd(24, 12, 8192)
    for i in range(2): a.e(f"buffer_load_dwordx4 {vr(w+4*i,4)}, v{wo}, s[24:27], 0 offen offset:{16*i}")
    if HALO:
        a.e("s_cmp_lg_u32 s30, 0"); a.e("s_cbranch_scc1 KV_h0"); a.e("s_bfm_b64 exec, 32, 0")
    for i in range(3): a.e(f"buffer_load_dwordx2 {vr(kr+2*i,2)}, v{ro+i}, s[16:19], 0 offen {NTK}")
    if HALO: a.e("s_mov_b64 exec, -1"); a.e("KV_h0:")

def probe_base(a):
    a.e("s_and_b32 s42, s2, 31"); a.e("s_lshl_b32 s42, s42, 8"); a.e("s_lshr_b32 s43, s2, 5"); a.e("s_lshl_b32 s43, s43, 14"); a.e("s_add_u32 s42, s42, s43")
    a.e(f"s_add_u32 s42, s42, {LB0 + oSM + 131072}")
def front_arrive(a, wait):
    D = a.lab("fa"); t = 6
    a.e("s_and_b32 s36, s2, 7"); a.e("s_lshl_b32 s36, s36, 7"); a.e(f"s_add_u32 s36, s36, {F_FRONT}")
    a.e(f"v_mov_b32 v{t}, 1"); a.e(f"v_mov_b32 v{t+1}, {LW+4}"); a.e(f"v_lshlrev_b32 v{t+3}, 10, v1")
    a.e("s_mov_b64 exec, 1")
    if wait: a.e("s_waitcnt vmcnt(0)")
    a.e("s_waitcnt lgkmcnt(0)")
    a.e(f"ds_add_rtn_u32 v{t+2}, v{t+1}, v{t}"); a.e(f"ds_read_b32 v{t+4}, v{t+1} offset:28")
    a.e("s_waitcnt lgkmcnt(0)")
    a.e(f"v_readfirstlane_b32 s54, v{t+2}"); a.e(f"v_readfirstlane_b32 s53, v{t+4}")
    a.e("s_cmp_lg_u32 s54, 15"); a.e(f"s_cbranch_scc1 {D}")
    a.e("s_mov_b64 exec, 0xffff"); a.e("s_or_b32 s53, s53, 1"); a.e(f"v_mov_b32 v{t}, s53")
    a.e(f"buffer_atomic_add v{t}, v{t+3}, s[56:59], s36 offen {SC}")
    a.e(f"{D}:"); a.e("s_mov_b64 exec, -1")
def front_a(a):
    cq, tg, t, pt, kr, vv, w, d, hoff, tag, zz = [KV[k] for k in "cq tg t pt kr vv w d hoff tag zz".split()]
    v = VA(80)
    a.e("s_and_b32 s41, s30, 3"); chan_setup(a, 41)
    a.e("s_lshl_b32 s36, s39, 12")
    a.e("s_add_u32 s12, s14, s36"); a.e("s_addc_u32 s13, s15, 0"); a.e("s_mov_b32 s14, 4096"); a.e("s_mov_b32 s15, 0x20000")
    a.e("s_lshr_b32 s45, s30, 2"); a.e("s_lshl_b32 s45, s45, 11")
    for it in range(3):
        if it < 2: a.e(f"s_add_u32 s36, s45, {(1024*it - 64) & 0xffffffff:#x}")
        else: a.e(f"s_mov_b32 s36, {4096 - 64}")
        a.e(f"v_add_u32 v{hoff+2*it}, s36, v2"); a.e(f"v_add_u32 v{hoff+2*it+1}, 16, v{hoff+2*it}")
    a.srd(8, 6, 4 * MB)
    a.e("s_and_b32 s34, s2, 7"); a.e("s_lshr_b32 s35, s2, 3")
    z = v(4, 4); la = v(); t2 = v(); hw = v()
    for i in range(4): a.e(f"v_mov_b32 v{z+i}, 0")
    a.e(f"v_add_u32 v{hw}, s40, v2")
    a.e(f"ds_write_b128 v{hw}, {vr(z,4)} offset:{UOFF+64*US}")
    a.e(f"s_bfm_b64 exec, {(15*US - 1024)//16}, 0"); a.e(f"ds_write_b128 v{hw}, {vr(z,4)} offset:{UOFF+64*US+1024}"); a.e("s_mov_b64 exec, -1")
    a.e(f"v_lshlrev_b32 v{t}, 2, v{tg}"); a.e(f"v_sub_u32 v{t}, 60, v{t}")
    a.e(f"v_lshrrev_b32 v{t2}, 3, v{t}"); a.e(f"v_bfe_u32 v{la}, v{cq}, 1, 3"); a.e(f"v_xor_b32 v{t2}, v{t2}, v{la}"); a.e(f"v_lshlrev_b32 v{t2}, 4, v{t2}")
    a.e(f"v_and_b32 v{t}, 7, v{t}"); a.e(f"v_lshl_add_u32 v{t2}, v{t}, 1, v{t2}")
    a.e(f"v_lshl_add_u32 v{la}, v{cq}, 9, v{t2}"); a.e(f"v_add_u32 v{la}, {KVS}, v{la}")
    wf = v(8, 2); kf = v(14, 2); vf = v(8, 2); ks = v(8, 2); pr = v(8, 2); o = v(8, 4); tm = v(4, 1)
    a.e("s_waitcnt vmcnt(0)")
    if HALO:
        for i in range(3): a.e(f"buffer_load_dwordx2 {vr(kr+2*i,2)}, v{KV['ro']+i}, s[16:19], 0 offen {NTK}")
        if HALO == 1: a.e("s_waitcnt vmcnt(0)")
    a.e("s_cmp_lg_u32 s30, 4"); a.e("s_cbranch_scc1 KV_t1")
    a.e(f"buffer_load_dword v{tag}, v{zz}, s[84:87], 0 offen {SC}")
    a.e("KV_t1:")
    for it in range(3):
        a.e(f"buffer_load_dwordx4 {vr(d+6*it,4)}, v{hoff+2*it}, s[12:15], 0 offen {NTH}")
        a.e(f"buffer_load_dwordx2 {vr(d+6*it+4,2)}, v{hoff+2*it+1}, s[12:15], 0 offen {NTH}")
    for j in range(4): a.e(f"buffer_load_dwordx2 {vr(RXA+2*j,2)}, v{RRO}, s[8:11], 0 offen offset:{128*(j>>1) + 32*(j&1)} {NTH}")
    if HALO == 2: a.e("s_waitcnt vmcnt(10)")
    mstamp(a)
    for dd in range(2):
        for c in range(2):
            unpack(a, wf + 0 + c, wf + 2 + c, w + 2 * (2 * dd + c)); unpack(a, wf + 4 + c, wf + 6 + c, w + 2 * (2 * dd + c) + 1)
        for i in range(7): unpack(a, kf + 2 * i, kf + 2 * i + 1, kr + 2 * i + dd)
        for i in range(4): unpack(a, vf + 2 * i, vf + 2 * i + 1, vv + 2 * i + dd)
        def rnd(base):
            for i in range(4): a.e(f"v_cvt_pk_bf16_f32 v{tm+i}, v{base+2*i}, v{base+2*i+1}")
            for i in range(4): unpack(a, base + 2 * i, base + 2 * i + 1, tm + i)
        for i in range(4): a.e(f"v_pk_mul_f32 {vr(ks+2*i,2)}, {vr(kf+2*i,2)}, {vr(wf+6,2)}")
        rnd(ks)
        for j in range(1, 4):
            for i in range(4): a.e(f"v_pk_mul_f32 {vr(pr+2*i,2)}, {vr(kf+2*(i+j),2)}, {vr(wf+6-2*j,2)}")
            rnd(pr)
            for i in range(4): a.e(f"v_pk_add_f32 {vr(ks+2*i,2)}, {vr(ks+2*i,2)}, {vr(pr+2*i,2)}")
            rnd(ks)
        for i in range(4): a.e(f"v_pk_mul_f32 {vr(ks+2*i,2)}, {vr(ks+2*i,2)}, {vr(vf+2*i,2)}")
        for c in range(2):
            e = 2 * dd + c
            a.e(f"v_cvt_pk_bf16_f32 v{o+2*e}, v{ks+6+c}, v{ks+4+c}"); a.e(f"v_cvt_pk_bf16_f32 v{o+2*e+1}, v{ks+2+c}, v{ks+c}")
            a.e(f"ds_write_b64 v{la}, {vr(o+2*e,2)} offset:{e*128}")
    a.e("s_cmp_lg_u32 s30, 4"); a.e("s_cbranch_scc1 HB_2")
    a.e(f"v_add_u32 v{pt}, {LW}, v3"); a.e(f"ds_write_b32 v{pt}, v{zz}")
    a.e("s_mov_b32 s53, 0")
    a.e("s_waitcnt vmcnt(10)")
    a.e("HB_p:")
    a.e(f"v_readfirstlane_b32 s52, v{tag}"); a.e("s_cmp_lg_u32 s52, 0"); a.e("s_cbranch_scc1 HB_q")
    a.e(f"buffer_load_dword v{tag}, v{zz}, s[84:87], 0 offen {SC}"); a.e("s_waitcnt vmcnt(0)")
    a.e("s_add_u32 s53, s53, 1"); a.e("s_cmp_lt_u32 s53, s61"); a.e("s_cbranch_scc1 HB_p")
    a.e("s_mov_b32 s52, 1"); a.e("s_mov_b32 s61, 0")
    a.e("HB_q:")
    lds_set(a, LW + 12, "s52", pt)
    a.e("HB_2:")
    a.srd(16, 4, 4 * MB, off=UT)
    ra = v(); go = v(); ob = v(8, 4)
    a.e(f"v_lshrrev_b32 v{t}, 3, v0"); a.e(f"v_and_b32 v{t2}, 7, v0")
    a.e(f"v_lshlrev_b32 v{go}, 12, v{t}"); a.e(f"v_lshl_add_u32 v{go}, v{t2}, 4, v{go}")
    a.e("s_lshl_b32 s36, s34, 19"); a.e("s_sub_u32 s37, 31, s35"); a.e("s_lshl_b32 s37, s37, 7"); a.e("s_add_u32 s36, s36, s37")
    a.e(f"s_add_u32 s37, s36, {64*4096}")
    a.e(f"v_lshrrev_b32 v{ra}, 3, v{t}"); a.e(f"v_xor_b32 v{ra}, v{ra}, v{t2}"); a.e(f"v_lshlrev_b32 v{ra}, 4, v{ra}"); a.e(f"v_lshl_add_u32 v{ra}, v{t}, 7, v{ra}")
    a.e(f"v_add_u32 v{ra}, {KVS}, v{ra}"); a.e(f"v_mov_b32 v{pt}, {LW+12}")
    a.e("s_waitcnt lgkmcnt(0)"); a.e("s_barrier")
    for i in range(2): a.e(f"ds_read_b128 {vr(ob+4*i,4)}, v{ra} offset:{i*8192}")
    a.e(f"ds_read_b32 v{pt+1}, v{pt}")
    for i in range(2):
        a.e(f"s_waitcnt lgkmcnt({2-i})")
        a.e(f"buffer_store_dwordx4 {vr(ob+4*i,4)}, v{go}, s[16:19], s{36+i} offen {SC}")
    a.e("s_waitcnt lgkmcnt(0)"); a.e(f"v_readfirstlane_b32 s52, v{pt+1}")
    a.e("s_cmp_lg_u32 s30, 0"); a.e("s_cbranch_scc1 KV_ni"); a.e("s_cmp_ge_u32 s35, 16"); a.e("s_cbranch_scc1 KV_ni")
    a.e(f"v_mov_b32 v{t}, s52")
    a.e("s_lshl_b32 s37, s34, 7"); a.e("s_lshl_b32 s53, s35, 10"); a.e("s_add_u32 s37, s37, s53"); a.e(f"s_add_u32 s37, s37, {F_FRONT}")
    a.e("s_mov_b64 exec, 1"); a.e(f"buffer_store_dword v{t}, v{zz}, s[56:59], s37 offen {SC}"); a.e("s_mov_b64 exec, -1")
    a.e("KV_ni:")
    a.e(f"s_cmp_ge_u32 s2, {NVOTE}"); a.e("s_cbranch_scc1 KV_n3"); a.e("s_cmp_lg_u32 s30, 5"); a.e("s_cbranch_scc1 KV_n3")
    probe_base(a)
    a.e(f"v_and_b32 v{t}, 1, v1"); a.e(f"v_lshlrev_b32 v{t}, 13, v{t}"); a.e(f"v_lshrrev_b32 v{t2}, 1, v1"); a.e(f"v_lshl_add_u32 v{t}, v{t2}, 7, v{t}")
    a.e("s_mov_b64 exec, 0xf"); a.e(f"buffer_store_dword v{t}, v{t}, s[56:59], s42 offen {SC}"); a.e("s_mov_b64 exec, -1")
    a.e("KV_n3:")
    def pubk():
        a.e("s_lshl_b32 s36, s34, 5"); a.e("s_add_u32 s36, s36, s35"); a.e("s_lshl_b32 s36, s36, 7"); a.e(f"s_add_u32 s36, s36, {F_KVT}")
        mstamp(a)
        publish(a, 0, 8, pt, off=36, flag=True)
        mstamp(a)
    HF = int(os.environ.get("HF", "0"))
    if not HF: pubk()
    else: a.e("s_waitcnt vmcnt(2)")
    cc = wf; hw2 = v()
    a.e(f"v_add_u32 v{hw2}, s45, v{hw}")
    for it in range(3):
        D = d + 6 * it; c0 = cc + 12 * it; c1 = c0 + 4; c2 = c0 + 8
        for k in range(4):
            a.e(f"v_alignbit_b32 v{c0+k}, v{D+k+1}, v{D+k}, 16")
            a.e(f"v_mov_b32 v{c1+k}, v{D+k+1}")
            a.e(f"v_alignbit_b32 v{c2+k}, v{D+k+2}, v{D+k+1}, 16")
        if it == 2: a.e("s_mov_b64 exec, 0xf")
        ad, o0 = (hw2, 1024 * it) if it < 2 else (hw, 4096)
        a.e(f"ds_write_b128 v{ad}, {vr(c0,4)} offset:{o0}")
        a.e(f"ds_write_b128 v{ad}, {vr(c1,4)} offset:{HSTR+o0}")
        a.e(f"ds_write_b128 v{ad}, {vr(c2,4)} offset:{2*HSTR+o0}")
        a.e(f"ds_write_b128 v{ad}, {vr(D+2,4)} offset:{3*HSTR+o0}")
        if it == 2: a.e("s_mov_b64 exec, -1")
    if HF: pubk()
    assert v.hi <= RFO
    r_stage(a, "pre")
def chan_setup(a, wsg):
    a.e("s_and_b32 s38, s2, 7"); a.e("s_lshl_b32 s38, s38, 5"); a.e("s_lshr_b32 s39, s2, 3"); a.e("s_add_u32 s38, s38, s39")
    a.e("s_lshl_b32 s39, s38, 2"); a.e(f"s_add_u32 s39, s39, s{wsg}")
    a.e(f"s_mul_i32 s40, s{wsg}, {CHB}")

def touch(a, ka, nbytes, r):
    n = nbytes // 1024 // 512
    a.e(f"s_load_dwordx2 s[48:49], s[0:1], {ka}")
    a.e("s_lshl_b32 s45, s2, 1"); a.e("s_and_b32 s50, s30, 1"); a.e("s_add_u32 s45, s45, s50"); a.e(f"s_mul_i32 s45, s45, {n*1024}")
    a.e(f"s_mov_b32 s50, {nbytes}"); a.e("s_mov_b32 s51, 0x20000")
    a.e("s_waitcnt lgkmcnt(0)")
    for i in range(n):
        if i and i % 4 == 0: a.e("s_add_u32 s45, s45, 4096")
        a.e(f"buffer_load_dwordx4 {vr(r,4)}, v2, s[48:51], s45 offen offset:{(i&3)*1024}")
    return n

def w2_warm(a):
    a.e("s_mov_b64 s[48:49], s[70:71]"); a.e(f"s_mov_b32 s50, {2*MB}"); a.e("s_mov_b32 s51, 0x20000")
    a.e("s_and_b32 s45, s28, 3"); a.e("s_lshl_b32 s45, s45, 1"); a.e("s_and_b32 s46, s30, 1"); a.e("s_add_u32 s45, s45, s46"); a.e("s_lshl_b32 s45, s45, 18")
    a.e("s_lshl_b32 s46, s29, 7"); a.e("s_add_u32 s45, s45, s46"); a.e("v_lshlrev_b32 v245, 11, v1")
    a.e("buffer_load_dword v244, v245, s[48:51], s45 offen"); a.e(f"s_add_u32 s45, s45, {64*2048}"); a.e("buffer_load_dword v246, v245, s[48:51], s45 offen")
def cs_load(a, which, slot):
    w_setup(a, which, pre=False)
    a.e(f"s_mov_b32 s42, {slot}"); a.e("s_mov_b32 s44, s28")
    w_issue(a, which, direct=True)
CSEL, CFR, CAD, CACC, CSO_ = 16, 72, 144, 156, 164
def cs_prep(a, S1, S3):
    a.e(f"v_and_b32 v{CSO_}, 15, v1"); a.e(f"v_mov_b32 v{CSO_+1}, 0x3f803f80")
    for T in range(14):
        a.e(f"v_cmp_eq_u32 vcc, {T}, v{CSO_}")
        for e in range(4): a.e(f"v_cndmask_b32 v{CSEL+4*T+e}, 0, v{CSO_+1}, vcc")
    pos = {}
    for which, slot, r0, halves in ((1, S1, CAD, 1), (3, S3, CAD + 4, 2)):
        c = CFG[which]
        for hf in range(halves):
            a.e(f"s_mov_b32 s35, {hf}")
            nr, pos[which] = w_bases(a, which, r0 + 2 * hf, 35, c["TN16"] // halves, WV + 8, WV + 9)
            a.e("s_and_b32 s35, s30, 1"); a.e(f"s_mul_i32 s35, s35, {32*c['RB']}"); a.e(f"s_add_u32 s35, s35, {slot}")
            for i in range(nr): a.e(f"v_add_u32 v{r0+2*hf+i}, s35, v{r0+2*hf+i}")
    for i in range(8): a.e(f"v_mov_b32 v{CACC+i}, 0")
    a.e(f"v_lshrrev_b32 v{CSO_+2}, 4, v1"); a.e(f"v_lshlrev_b32 v{CSO_+2}, 4, v{CSO_+2}"); a.e(f"v_lshl_add_u32 v{CSO_+2}, v{CSO_}, 6, v{CSO_+2}")
    a.e(f"v_mov_b32 v{CSO_+1}, 0x7f000000")
    for k, n in ((3, 4), (4, 14)):
        a.e(f"v_cmp_gt_u32 vcc, {n}, v{CSO_}"); a.e(f"v_cndmask_b32 v{CSO_+k}, v{CSO_+1}, v{CSO_+2}, vcc")
    return pos
def cs_sum(a, which, pos):
    c = CFG[which]; ntl = c["TN16"]; N = c["LDW"] // 2
    F = CFR + (0 if which == 3 else 56); A = CACC + (0 if which == 3 else 4)
    for T in range(ntl):
        hf, nt = (T // 7, T % 7) if which == 3 else (0, T)
        for h in range(2):
            r, imm = pos[which](nt, 0, h)
            a.e(f"ds_read_b64_tr_b16 {vr(F+4*T+2*h,2)}, v{(CAD + 4 if which == 3 else CAD) + 2*hf + r} offset:{imm}")
    a.srd(20, 4, 32 * N * 4, off=CSP[which])
    a.e("s_lshl_b32 s35, s28, 1"); a.e("s_and_b32 s36, s30, 1"); a.e("s_add_u32 s35, s35, s36"); a.e(f"s_mul_i32 s35, s35, {N*4}")
    a.e(f"s_mul_i32 s36, s29, {ntl*64}"); a.e("s_add_u32 s35, s35, s36")
    a.e("s_waitcnt lgkmcnt(0)")
    for T in range(ntl): a.e(f"v_mfma_f32_16x16x32_bf16 {vr(A,4)}, {vr(F+4*T,4)}, {vr(CSEL+4*T,4)}, {vr(A,4)}")
    a.e(f"buffer_store_dwordx4 {vr(A,4)}, v{CSO_ + (4 if which == 3 else 3)}, s[20:23], s35 offen {SC}")

def front_b(a):
    pt, dm = 6, 20
    if TAB: tab_load(a)
    w_lanes(a)
    a.e("s_cmp_ge_u32 s30, 6"); a.e("s_cbranch_scc1 FB_cs")
    vd = 12
    a.e(f"s_cmp_ge_u32 s2, {NVOTE}"); a.e("s_cbranch_scc1 FB_np"); a.e("s_cmp_lg_u32 s30, 5"); a.e("s_cbranch_scc1 FB_np")
    probe_base(a); a.e(f"v_mov_b32 v{vd+2}, 0")
    a.e("s_mov_b64 exec, 1"); a.e("s_mov_b32 s46, -1"); a.e("s_mov_b32 s47, -1"); a.e("s_mov_b32 s43, 0")
    a.e("FB_ml:")
    for i in range(2):
        a.e(f"s_add_u32 s45, s42, {i * 8192}")
        a.e("s_memtime s[34:35]"); a.e("s_waitcnt lgkmcnt(0)")
        a.e(f"buffer_load_dword v{vd+1}, v{vd+2}, s[56:59], s45 offen {SC}"); a.e("s_waitcnt vmcnt(0)")
        a.e("s_memtime s[36:37]"); a.e("s_waitcnt lgkmcnt(0)")
        a.e("s_sub_u32 s36, s36, s34"); a.e(f"s_min_u32 s{46+i}, s{46+i}, s36")
    a.e("s_add_u32 s42, s42, 128"); a.e("s_add_u32 s43, s43, 1"); a.e(f"s_cmp_lt_u32 s43, {NSAMP}"); a.e("s_cbranch_scc1 FB_ml")
    a.e("s_cmp_lt_u32 s47, s46"); a.e("s_cselect_b32 s45, 1, 0")
    a.e("s_lshr_b32 s46, s28, 2"); a.e("s_xor_b32 s45, s45, s46"); a.e("s_and_b32 s45, s45, 1"); a.e("s_lshl_b32 s45, s45, 8")
    a.e("s_mov_b64 exec, -1")
    lds_set(a, LW + 32, "s45", pt)
    a.e("FB_np:")
    mstamp(a)
    a.e("s_cmp_lg_u32 s30, 4"); a.e("s_cbranch_scc1 FB_ni")
    a.e(f"v_mov_b32 v{vd}, s52")
    group_off(a, 37, 28); a.e("s_andn2_b32 s37, s37, 0x2000"); a.e("s_lshl_b32 s53, s29, 7"); a.e("s_add_u32 s37, s37, s53"); a.e(f"s_add_u32 s37, s37, {oSM}")
    a.e(f"v_and_b32 v{vd+1}, 1, v1"); a.e(f"v_lshlrev_b32 v{vd+1}, 13, v{vd+1}"); a.e(f"v_lshrrev_b32 v{vd+2}, 1, v1"); a.e(f"v_lshl_add_u32 v{vd+1}, v{vd+2}, 26, v{vd+1}")
    a.e("s_mov_b64 exec, 0xf"); a.e(f"buffer_store_dword v{vd}, v{vd+1}, s[56:59], s37 offen {SC}")
    a.e("s_cmp_lg_u32 s28, 0"); a.e("s_cbranch_scc1 FB_n2")
    a.e(f"s_add_u32 s37, s53, {F_CS}"); a.e("s_mov_b64 exec, 1"); a.e(f"buffer_store_dword v{vd}, v{vd+1}, s[56:59], s37 offen {SC}")
    a.e("FB_n2:")
    a.e("s_mov_b64 exec, -1")
    for i in range(4): a.e(f"v_mov_b32 v{vd+4+i}, 0")
    a.e("s_lshr_b32 s36, s2, 7"); a.e("s_lshl_b32 s36, s36, 24"); a.e(f"s_add_u32 s36, s36, {HSB}")
    a.e("s_add_u32 s20, s4, s36"); a.e("s_addc_u32 s21, s5, 0"); a.e(f"s_mov_b32 s22, {128*PITCH}"); a.e("s_mov_b32 s23, 0x20000")
    a.e("s_and_b32 s36, s2, 127"); a.e(f"s_mul_i32 s36, s36, {PITCH}"); a.e(f"s_add_u32 s36, s36, {16384 - 32}")
    a.e(f"v_and_b32 v{vd+1}, 1, v1"); a.e(f"v_lshlrev_b32 v{vd+1}, 4, v{vd+1}"); a.e(f"v_bfe_u32 v{vd+2}, v1, 1, 1"); a.e(f"v_lshl_add_u32 v{vd+1}, v{vd+2}, 13, v{vd+1}")
    a.e(f"v_bfe_u32 v{vd+2}, v1, 2, 1"); a.e(f"v_mul_u32_u24 v{vd+2}, {32768 + 32}, v{vd+2}"); a.e(f"v_add_u32 v{vd+1}, v{vd+1}, v{vd+2}")
    a.e("s_mov_b64 exec, 0xff"); a.e(f"buffer_store_dwordx4 {vr(vd+4,4)}, v{vd+1}, s[20:23], s36 offen {SC}"); a.e("s_mov_b64 exec, -1")
    a.e("FB_ni:")
    lds_spin(a, LW + 16, 1, pt, nap=2)
    mstamp(a)
    if TLBW:
        a.e("s_cmp_lg_u32 s30, 4"); a.e("s_cbranch_scc1 FB_nt")
        a.e(f"s_load_dwordx2 s[8:9], s[0:1], {D_OUT}")
        a.srd(20, 4, 192 * MB)
        group_off(a, 34, 28)
        a.e("s_sub_u32 s36, s28, 1"); a.e("s_max_i32 s36, s36, 0"); group_off(a, 35, 36)
        a.e("s_add_u32 s36, s28, 1"); a.e("s_min_u32 s36, s36, 15"); group_off(a, 37, 36)
        a.e(f"v_lshlrev_b32 v{vd}, 21, v1"); a.e(f"v_add_u32 v{vd}, {HSB - 8 * 2 * MB}, v{vd}")
        for l, (r, o) in enumerate([(34, 0), (34, oP0 if TLBW == 2 else 4 * MB), (35, 0), (37, 0)]):
            for ly in range(2):
                a.e(f"s_add_u32 s36, s{r}, {o + ly * LSTR}"); a.e(f"v_writelane_b32 v{vd}, s36, {2*l+ly}")
        a.e("s_bfm_b64 exec, 20, 0"); a.e(f"buffer_{'store' if TLBW == 2 else 'load'}_dword v{dm}, v{vd}, s[20:23], 0 offen {SC}")
        a.e("s_waitcnt lgkmcnt(0)"); a.e(f"s_mov_b32 s10, {4*MB}"); a.e("s_mov_b32 s11, 0x20000")
        a.e("s_mov_b64 exec, 1"); a.e(f"buffer_load_dword v{dm+1}, v{RRO}, s[8:11], 0 offen {SC}"); a.e("s_mov_b64 exec, -1")
        a.e("FB_nt:")
    if os.environ.get("W2T", "1") == "2": lds_spin(a, LW + 24, 2, pt, nap=4)
    if os.environ.get("W2T", "1") != "0": touch(a, B_W2, 2 * MB, dm)
    if W4POS == "F": lds_spin(a, LW + 24, 2, pt, nap=4); a.e("s_waitcnt vmcnt(0)")
    if W4POS in ("F", "F0"): touch(a, B_W4, 7 * MB, dm)
    PZF = int(os.environ.get("PZF", "0"))
    if PZF:
        a.srd(20, 4, 32 * MB, off=216 * MB)
        for i in range(4): a.e(f"v_mov_b32 v{216+i}, -1")
        a.e("s_lshl_b32 s45, s2, 1"); a.e("s_and_b32 s50, s30, 1"); a.e("s_add_u32 s45, s45, s50"); a.e(f"s_mul_i32 s45, s45, {PZF*1024}")
        for i in range(PZF):
            a.e(f"buffer_store_dwordx4 v[216:219], v2, s[20:23], s45 offen {SC}"); a.e("s_add_u32 s45, s45, 1024")
            if os.environ.get("PZP"): a.e(f"s_waitcnt vmcnt({os.environ['PZP']})")
    front_arrive(a, True)
    if TAB: tab_make(a, 0)
    PKW = int(os.environ.get("PKW", "2")); PKP = int(os.environ.get("PKP", "8"))
    def park(a): park_load(a, PKP)
    if PKW: lds_spin(a, LW + 24, PKW, pt, nap=4)
    call(a, park)
    W1S = int(os.environ.get("W1S", "4")); W1P = int(os.environ.get("W1P", "8"))
    lds_spin(a, LW + 24, 4, pt, nap=3)
    w_setup(a, 1, pre=False); w1_slots(a, range(9, 16), pace=W1P)
    lds_spin(a, LW + 4, 16, pt, nap=3)
    w1_slots(a, range(W1S, 9), pace=W1P)
    a.e("s_branch FR_end")
    a.e("FB_cs:")
    S1, S3 = KVS - CFG[1]["WB"], KVS + 8192 - CFG[3]["WB"]
    pos = cs_prep(a, S1, S3)
    lds_spin(a, LW + 16, 1, pt, nap=2)
    mstamp(a)
    if CSPRIO: a.e(f"s_setprio {CSPRIO}")
    cs_load(a, 1, S1); cs_load(a, 3, S3)
    a.e("s_waitcnt vmcnt(14)"); cs_sum(a, 1, pos)
    a.e("s_waitcnt vmcnt(1)")
    a.e(f"v_mov_b32 v{pt}, {LW+24}"); a.e(f"v_mov_b32 v{pt+1}, 1")
    a.e("s_mov_b64 exec, 1"); a.e(f"ds_add_u32 v{pt}, v{pt+1}"); a.e("s_mov_b64 exec, -1")
    mstamp(a)
    cs_sum(a, 3, pos)
    front_arrive(a, False)
    if TAB: tab_make(a, 1)
    a.e(f"v_mov_b32 v{pt}, {LW+24}"); a.e(f"v_mov_b32 v{pt+1}, 1")
    a.e("s_mov_b64 exec, 1"); a.e(f"ds_add_u32 v{pt}, v{pt+1}"); a.e("s_mov_b64 exec, -1")
    mstamp(a)
    a.e("s_setprio 0")
    assert CFG[1]["WB"] + 9 * 8192 == KVS
    call(a, park)
    w_setup(a, 1, pre=False)
    lds_spin(a, LW + 4, 16, pt, nap=3)
    w1_slots(a, range(W1S), pace=W1P)

def front_conv(a):
    v = VA(6); lane = 1; l16 = 2
    t = v(); pt = v(4, 2)
    a.e(f"s_load_dwordx2 s[10:11], s[0:1], {A_SSMD}")
    chan_setup(a, 30)
    a.e("s_lshl_b32 s36, s39, 12"); a.e(f"s_add_u32 s36, s36, {UT}")
    a.e("s_add_u32 s16, s4, s36"); a.e("s_addc_u32 s17, s5, 0"); a.e("s_mov_b32 s18, 4096"); a.e("s_mov_b32 s19, 0x20000")
    a.e("s_waitcnt lgkmcnt(0)")
    a.e("s_lshr_b32 s36, s39, 1"); a.e("s_lshl_b32 s36, s36, 2"); a.e("s_load_dword s41, s[10:11], s36")
    uw = v(); u = v(16, 4)
    a.e(f"v_lshrrev_b32 v{t}, 2, v{lane}"); a.e(f"v_mul_u32_u24 v{uw}, {US}, v{t}"); a.e(f"v_and_b32 v{t}, 3, v{lane}")
    a.e(f"v_lshl_add_u32 v{uw}, v{t}, 4, v{uw}"); a.e(f"v_add_u32 v{uw}, s40, v{uw}")
    aa = v(); ba = v(); ua = v(); J = v(); G = v()
    a.e(f"v_and_b32 v{J}, 15, v{lane}"); a.e(f"v_lshrrev_b32 v{G}, 4, v{lane}")
    a.e(f"v_and_b32 v{t}, 3, v{J}"); a.e(f"v_mul_u32_u24 v{aa}, {HSTR}, v{t}")
    a.e(f"v_lshl_add_u32 v{aa}, v{G}, 4, v{aa}"); a.e(f"v_lshrrev_b32 v{t}, 2, v{J}"); a.e(f"v_lshl_add_u32 v{aa}, v{t}, 3, v{aa}")
    a.e(f"v_add_u32 v{aa}, s40, v{aa}")
    a.e(f"v_sub_u32 v{t}, 15, v{J}"); a.e(f"v_mul_u32_u24 v{ua}, {US}, v{t}"); a.e(f"v_add_u32 v{ua}, s40, v{ua}")
    a.e(f"v_lshl_add_u32 v{ba}, v{G}, 4, v{ua}")
    acc = v(32, 4)
    for i in range(0, 32, 2): a.e(f"v_pk_mov_b32 {vr(acc+i,2)}, 0, 0")
    fa = v(64, 4); fb = v(32, 4)
    def rdA(p, o):
        return [f"ds_read_b64 {vr(fa+32*p+8*s_+4*mt+2*h,2)}, v{aa} offset:{64*(o+16*s_) + 32*mt + 8*h}" for s_ in range(4) for mt in range(2) for h in range(2)]
    def rdB(p, o):
        return [f"ds_read_b128 {vr(fb+16*p+4*k,4)}, v{ba} offset:{UOFF + (48 - 16*k + o)*US}" for k in range(4)]
    for x in rdA(0, 0): a.e(x)
    a.e("s_cmp_lg_u32 s30, 0"); a.e("s_cbranch_scc1 CV_w")
    a.e("s_and_b32 s36, s2, 7"); a.e("s_lshl_b32 s36, s36, 12"); a.e(f"s_add_u32 s36, s36, {F_KVT}")
    a.e(f"v_lshlrev_b32 v{pt+1}, 7, v{lane}"); a.e(f"v_add_u32 v{pt+1}, s36, v{pt+1}")
    poll_core(a, pt, [pt + 1], 0xffffffff)
    lds_set(a, LW + 16, 1, pt)
    a.e("CV_w:")
    lds_spin(a, LW + 16, 1, pt)
    mstamp(a)
    for it in range(4): a.e(f"buffer_load_dwordx4 {vr(u+4*it,4)}, v{l16}, s[16:19], 0 offen offset:{1024*it} {SC}")
    for it in range(4):
        a.e(f"s_waitcnt vmcnt({3-it})")
        a.e(f"ds_write_b128 v{uw}, {vr(u+4*it,4)} offset:{UOFF + 16*US*it}")
    a.e(f"v_mov_b32 v{pt}, {LW+20}"); a.e(f"v_mov_b32 v{pt+1}, 1")
    a.e("s_mov_b64 exec, 1"); a.e(f"ds_add_u32 v{pt}, v{pt+1}"); a.e("s_mov_b64 exec, -1")
    a.e("s_waitcnt lgkmcnt(0)")
    mstamp(a)
    for x in rdB(0, 0): a.e(x)
    def step(p, nxt, tail):
        a.e("s_waitcnt lgkmcnt(0)")
        mf = [(c_, s_, mt) for s_ in range(4) for mt in range(2) for c_ in range(s_, 4)]
        for i, (c_, s_, mt) in enumerate(mf):
            A = acc + 8 * c_ + 4 * mt
            a.e(f"v_mfma_f32_16x16x32_bf16 {vr(A,4)}, {vr(fa+32*p+8*s_+4*mt,4)}, {vr(fb+16*p+4*(c_-s_),4)}, {vr(A,4)}")
            for _ in range(2 if i % 3 == 0 else 1):
                if nxt: a.e(nxt.pop(0))
                elif tail and i < 19: a.e(tail.pop(0))
        assert not nxt and not tail
    a.e("s_mov_b32 s43, 0")
    NU = int(os.environ.get("NU", "3")); HP = int(os.environ.get("HP", "0"))
    if NU:
        a.e("CV_r:")
        for p in range(2):
            rd = rdB(1 - p, p + 1) + rdA(1 - p, p + 1)
            step(p, rd[:HP], [])
            for x in rd[HP:]: a.e(x)
        for x in [f"v_add_u32 v{aa}, 128, v{aa}", f"v_add_u32 v{ba}, {2*US}, v{ba}", "s_add_u32 s43, s43, 1", f"s_cmp_lt_u32 s43, {NU}"]: a.e(x)
        a.e("s_cbranch_scc1 CV_r")
    a.e("CV_l:")
    step(0, rdB(1, 1) + rdA(1, 1), [])
    step(1, rdB(0, 2) + rdA(0, 2), [f"v_add_u32 v{aa}, 128, v{aa}", f"v_add_u32 v{ba}, {2*US}, v{ba}", "s_add_u32 s43, s43, 1", "s_cmp_lt_u32 s43, 8"])
    a.e("s_cbranch_scc1 CV_l")
    mstamp(a)
    ya = v(); Dv = v(2, 2)
    a.e("s_bitcmp1_b32 s39, 0"); a.e("s_cselect_b32 s36, 0, 16"); a.e("s_lshl_b32 s41, s41, s36"); a.e("s_and_b32 s41, s41, 0xffff0000")
    a.e(f"v_mov_b32 v{Dv}, s41"); a.e(f"v_mov_b32 v{Dv+1}, s41")
    a.e(f"v_sub_u32 v{t}, 3, v{G}"); a.e(f"v_lshl_add_u32 v{ua}, v{t}, 3, v{ua}")
    for c_ in range(4):
        for mt in range(2):
            a.e(f"ds_read_b64 {vr(u + 2*(c_*2+mt), 2)}, v{ua} offset:{UOFF + (48 - 16*c_)*US + (1-mt)*32}")
    a.e(f"s_mul_i32 s36, s30, {CHB+64}")
    a.e(f"v_mul_u32_u24 v{ya}, 72, v{J}"); a.e(f"v_lshl_add_u32 v{ya}, v{G}, 3, v{ya}"); a.e(f"v_add_u32 v{ya}, s36, v{ya}")
    uf = fa + 56; tmp = fa + 60
    a.e("s_waitcnt lgkmcnt(0)")
    for c_ in range(4):
        for mt in range(2):
            A = acc + 8 * c_ + 4 * mt; U = u + 2 * (c_ * 2 + mt); O = fb + 16 + 2 * (c_ * 2 + mt)
            unpack(a, uf + 3, uf + 2, U); unpack(a, uf + 1, uf, U + 1)
            for r in range(2): a.e(f"v_pk_mul_f32 {vr(uf+2*r,2)}, {vr(uf+2*r,2)}, {vr(Dv,2)}")
            round2(a, uf, uf + 1, tmp); round2(a, uf + 2, uf + 3, tmp + 1)
            round2(a, A, A + 1, tmp); round2(a, A + 2, A + 3, tmp + 1)
            for r in range(2): a.e(f"v_pk_add_f32 {vr(A+2*r,2)}, {vr(A+2*r,2)}, {vr(uf+2*r,2)}")
            a.e(f"v_cvt_pk_bf16_f32 v{O}, v{A}, v{A+1}"); a.e(f"v_cvt_pk_bf16_f32 v{O+1}, v{A+2}, v{A+3}")
            a.e(f"ds_write_b64 v{ya}, {vr(O,2)} offset:{c_*16*72 + mt*32}")
    a.srd(12, 4, 4 * MB, off=Y)
    ta = v(); go = v()
    a.e(f"v_bfe_u32 v{t}, v{lane}, 2, 2"); a.e(f"v_mul_u32_u24 v{ta}, {CHB+64}, v{t}")
    a.e(f"v_lshrrev_b32 v{t}, 1, v{G}"); a.e(f"v_mul_u32_u24 v{t}, 72, v{t}"); a.e(f"v_add_u32 v{ta}, v{ta}, v{t}")
    a.e(f"v_and_b32 v{t}, 1, v{G}"); a.e(f"v_lshl_add_u32 v{ta}, v{t}, 5, v{ta}")
    a.e(f"v_and_b32 v{t}, 3, v{lane}"); a.e(f"v_lshl_add_u32 v{ta}, v{t}, 3, v{ta}")
    a.e(f"s_mul_i32 s36, s30, {16*72}"); a.e(f"v_add_u32 v{ta}, s36, v{ta}")
    a.e(f"v_lshlrev_b32 v{go}, 3, v{lane}")
    a.e("s_lshl_b32 s36, s38, 14"); a.e("s_lshl_b32 s37, s30, 12"); a.e("s_add_u32 s36, s36, s37")
    lbar(a, 1, pt)
    for i in range(8): a.e(f"ds_read_b64_tr_b16 {vr(fa+32+2*i,2)}, v{ta} offset:{144*i}")
    for i in range(8):
        a.e(f"s_waitcnt lgkmcnt({7-i})")
        a.e(f"buffer_store_dwordx2 {vr(fa+32+2*i,2)}, v{go}, s[12:15], s36 offen offset:{512*i} {SC}")
    assert v.hi <= RFO

PK = 48; W3S = 208
RFO, RYO, RRO, RI, RXA, RXB, RYY, RT = 176, 177, 178, 179, 180, 188, 230, 196
def r_addr(a):
    t, t2, I, fo, ro, yo = RT, RT + 1, RI, RFO, RRO, RYO
    a.e(f"v_and_b32 v{I}, 7, v0")
    a.e(f"v_lshrrev_b32 v{t}, 6, v0"); a.e(f"v_lshlrev_b32 v{t}, 4, v{t}"); a.e(f"v_bfe_u32 v{t2}, v0, 3, 3"); a.e(f"v_add_u32 v{t}, v{t}, v{t2}")
    a.e("s_lshr_b32 s78, s29, 1"); a.e("s_lshl_b32 s78, s78, 16"); a.e("s_and_b32 s79, s29, 1"); a.e("s_lshl_b32 s79, s79, 7"); a.e("s_add_u32 s78, s78, s79")
    a.e("s_lshr_b32 s79, s30, 1"); a.e("s_lshl_b32 s79, s79, 13"); a.e("s_add_u32 s78, s78, s79")
    a.e(f"v_lshlrev_b32 v{fo}, 8, v{t}"); a.e(f"v_lshl_add_u32 v{fo}, v{I}, 4, v{fo}"); a.e(f"v_add_u32 v{fo}, s78, v{fo}")
    a.e("s_lshl_b32 s78, s28, 7"); a.e("s_lshl_b32 s79, s29, 3"); a.e("s_add_u32 s78, s78, s79")
    a.e(f"v_add_u32 v{yo}, s78, v{I}"); a.e(f"v_lshlrev_b32 v{ro}, 11, v{yo}")
    a.e(f"v_lshrrev_b32 v{t2}, 2, v{t}"); a.e(f"v_lshlrev_b32 v{t2}, 3, v{t2}"); a.e(f"v_and_b32 v{t}, 3, v{t}"); a.e(f"v_add_u32 v{t}, v{t}, v{t2}")
    a.e(f"v_lshl_add_u32 v{ro}, v{t}, 3, v{ro}")
    a.e(f"v_lshlrev_b32 v{yo}, 3, v{yo}"); a.e(f"v_lshl_add_u32 v{yo}, v{t}, 14, v{yo}")
def load_y(a, skip_last=False):
    a.srd(80, 4, 4 * MB, off=Y)
    if skip_last: a.e("s_cmp_eq_u32 s60, 0"); a.e("s_cselect_b32 s82, s82, 0")
    for j in range(2):
        for hh in range(2):
            a.e(f"s_mov_b32 s78, {(16*j + 4*hh)*16384}")
            a.e(f"buffer_load_dwordx2 {vr(RYY+4*j+2*hh,2)}, v{RYO}, s[80:83], s78 offen {SC}")
def r_pre(a, l0=False):
    r_addr(a)
    lsrd(a, 84, oX3, XSZ); lsrd(a, 88, oX1P, XSZ)
    if l0: a.e("s_cmp_eq_u32 s60, 0"); a.e("s_cselect_b32 s86, s86, 0"); a.e("s_cselect_b32 s90, s90, 0")
    for j in range(2):
        a.e(f"buffer_load_dwordx4 {vr(RXA+4*j,4)}, v{RFO}, s[84:87], 0 offen offset:{2048*j} {SC}")
        a.e(f"buffer_load_dwordx4 {vr(RXB+4*j,4)}, v{RFO}, s[88:91], 0 offen offset:{2048*j} {SC}")
    load_y(a, l0)
def r_pre0(a): r_pre(a, True)

def r_stage(a, final):
    v = VA(6)
    t = v(); t2 = v(); I = RI; fo = RFO; ro = RRO; pt = v(4, 2)
    xa = RXA; xb = RXB; yy = RYY; x = 206; yf = 222; w = v(16, 4); tmp = v()
    pre = final == "pre"
    S = v(2, 2); pp = v(2, 2); qq = v(2, 2); st = w; mean = v(2, 2); rs = mean + 1; var = v(); sw = v(); sr = v()
    def part(src, n):
        a.e(f"v_pk_add_f32 {vr(pp,2)}, {vr(src,2)}, {vr(src+2,2)}"); a.e(f"v_pk_mul_f32 {vr(qq,2)}, {vr(src,2)}, {vr(src,2)}")
        for i in range(1, 8):
            if i > 1: a.e(f"v_pk_add_f32 {vr(pp,2)}, {vr(pp,2)}, {vr(src+2*i,2)}")
            a.e(f"v_pk_fma_f32 {vr(qq,2)}, {vr(src+2*i,2)}, {vr(src+2*i,2)}, {vr(qq,2)}")
        a.e(f"v_add_f32 v{S}, v{pp}, v{pp+1}"); a.e(f"v_add_f32 v{S+1}, v{qq}, v{qq+1}")
        for k in range(2): a.e(f"v_add_f32_dpp v{S+k}, v{S+k}, v{S+k} row_ror:8 row_mask:0xf bank_mask:0xf")
        for op in ("v_permlane16_swap_b32", "v_permlane32_swap_b32"):
            for k in range(2): a.e(f"v_mov_b32 v{pp+k}, v{S+k}")
            for k in range(2): a.e(f"{op} v{S+k}, v{pp+k}")
            a.e(f"v_pk_add_f32 {vr(S,2)}, {vr(S,2)}, {vr(pp,2)}")
        a.e(f"ds_write_b64 v{sw}, {vr(S,2)} offset:{n*512}")
    def comb(n):
        for k in range(4): a.e(f"ds_read_b128 {vr(st+4*k,4)}, v{sr} offset:{n*512+16*k}")
        a.e("s_waitcnt lgkmcnt(0)")
        for k in range(4): a.e(f"v_pk_add_f32 {vr(st+4*k,2)}, {vr(st+4*k,2)}, {vr(st+4*k+2,2)}")
        a.e(f"v_pk_add_f32 {vr(st,2)}, {vr(st,2)}, {vr(st+4,2)}"); a.e(f"v_pk_add_f32 {vr(st+8,2)}, {vr(st+8,2)}, {vr(st+12,2)}")
        a.e(f"v_pk_add_f32 {vr(st,2)}, {vr(st,2)}, {vr(st+8,2)}")
        a.e(f"v_mul_f32 v{mean}, {f32(1/1024)}, v{st}"); a.e(f"v_mul_f32 v{var}, {f32(1/1024)}, v{st+1}")
        a.e(f"v_fma_f32 v{var}, -v{mean}, v{mean}, v{var}"); a.e(f"v_max_f32 v{var}, 0, v{var}")
    SUBM = f"{vr(mean,2)} op_sel_hi:[1,0] neg_lo:[0,1] neg_hi:[0,1]"; MULR = f"{vr(mean,2)} op_sel:[0,1] op_sel_hi:[1,1]"
    if pre: a.e("s_waitcnt lgkmcnt(0)")
    if final is not True:
        a.e(f"v_lshlrev_b32 v{sr}, 6, v{I}"); a.e(f"v_add_u32 v{sr}, {AUX+2048}, v{sr}")
        a.e(f"s_lshl_b32 s35, s30, 3"); a.e(f"v_add_u32 v{sw}, s35, v{sr}")
    if pre:
        a.e("s_waitcnt vmcnt(0)")
        for i in range(8): unpack(a, x + 2 * i, x + 2 * i + 1, xa + i)
        part(x, 0)
        a.e("s_waitcnt lgkmcnt(0)"); a.e("s_barrier")
        comb(0); ln_finish(a, mean, var, rs)
        for i in range(8):
            D = w + 2 * i
            if i == 0:
                for k in range(2): a.e(f"v_sub_f32 v{pp+k}, 0, v{mean}"); a.e(f"v_mov_b32 v{qq+k}, v{rs}")
            a.e(f"v_pk_add_f32 {vr(D,2)}, {vr(x+2*i,2)}, {vr(pp,2)}"); round2(a, D, D + 1, tmp)
            a.e(f"v_pk_mul_f32 {vr(D,2)}, {vr(D,2)}, {vr(qq,2)}"); a.e(f"v_cvt_pk_bf16_f32 v{xb+i}, v{D}, v{D+1}")
        return
    if not final:
        a.e(f"s_cmp_eq_u32 s60, 0"); a.e(f"s_cbranch_scc1 R_l0")
    else:
        a.e(f"s_load_dwordx2 s[6:7], s[0:1], {D_OUT}")
    lsrd(a, 8, oP0, XSZ, prev=True); lsrd(a, 12, oP1, XSZ, prev=True)
    a.e("s_waitcnt vmcnt(0)")
    for i in range(8):
        if not final: unpack(a, yf + 2 * i, yf + 2 * i + 1, yy + i)
        unpack(a, x + 2 * i, x + 2 * i + 1, xa + i); unpack(a, w + 2 * i, w + 2 * i + 1, xb + i)
        a.e(f"v_pk_add_f32 {vr(x+2*i,2)}, {vr(x+2*i,2)}, {vr(w+2*i,2)}")
    poll(a, ST_G4, pt, prev=True)
    mstamp(a)
    for j in range(2):
        a.e(f"buffer_load_dwordx4 {vr(xa+4*j,4)}, v{fo}, s[8:11], 0 offen offset:{2048*j} {SC}")
        a.e(f"buffer_load_dwordx4 {vr(xb+4*j,4)}, v{fo}, s[12:15], 0 offen offset:{2048*j} {SC}")
    for i in range(8):
        if i % 4 == 0: a.e(f"s_waitcnt vmcnt({2 - i // 2})")
        u = w + 4 * (i & 3)
        unpack(a, u, u + 1, xa + i); unpack(a, u + 2, u + 3, xb + i)
        a.e(f"v_pk_add_f32 {vr(u,2)}, {vr(u,2)}, {vr(u+2,2)}")
        a.e(f"v_pk_add_f32 {vr(x+2*i,2)}, {vr(x+2*i,2)}, {vr(u,2)}")
        if final: a.e(f"v_cvt_pk_bf16_f32 v{xa+i}, v{x+2*i}, v{x+2*i+1}")
        else: round2(a, x + 2 * i, x + 2 * i + 1, tmp)
    if final:
        a.e("s_waitcnt lgkmcnt(0)")
        a.srd(20, 6, 4 * MB)
        OS = os.environ.get("OS", "sc1")
        if os.environ.get("OWIDE", "1") == "1":
            a.e(f"v_bfe_u32 v{t}, v1, 3, 1"); a.e(f"v_cmp_eq_u32 vcc, 1, v{t}")
            for j in range(2):
                lo, hi = xa + 4 * j, xa + 4 * j + 2
                for e in range(2):
                    a.e(f"v_cndmask_b32 v{x+e}, v{hi+e}, v{lo+e}, vcc")
                for e in range(2):
                    a.e(f"v_mov_b32_dpp v{x+2+e}, v{x+e} row_ror:8 row_mask:0xf bank_mask:0xf")
                for e in range(2):
                    a.e(f"v_cndmask_b32 v{x+4+e}, v{lo+e}, v{x+2+e}, vcc"); a.e(f"v_cndmask_b32 v{hi+e}, v{x+2+e}, v{hi+e}, vcc")
                for e in range(2): a.e(f"v_mov_b32 v{lo+e}, v{x+4+e}")
            a.e(f"v_bfe_u32 v{t2}, v1, 4, 1"); a.e(f"v_lshlrev_b32 v{t}, 5, v{t}"); a.e(f"v_lshl_add_u32 v{t}, v{t2}, 4, v{t}")
            a.e(f"v_and_b32 v{t2}, 0xffffffc0, v{ro}"); a.e(f"v_add_u32 v{t}, v{t}, v{t2}")
            for j in range(2): a.e(f"buffer_store_dwordx4 {vr(xa+4*j,4)}, v{t}, s[20:23], 0 offen offset:{128*j} {OS}")
        else:
            for j in range(4): a.e(f"buffer_store_dwordx2 {vr(xa+2*j,2)}, v{ro}, s[20:23], 0 offen offset:{128*(j>>1) + 32*(j&1)} {OS}")
        return v.hi
    part(x, 0)
    a.e("s_waitcnt lgkmcnt(0)"); a.e("s_barrier")
    comb(0)
    ln_finish(a, mean, var, rs)
    lsrd(a, 20, oX3, XSZ)
    for i in range(8):
        D = w + 2 * i
        a.e(f"v_pk_add_f32 {vr(D,2)}, {vr(x+2*i,2)}, {SUBM}"); a.e(f"v_pk_mul_f32 {vr(D,2)}, {vr(D,2)}, {MULR}")
        a.e(f"v_pk_fma_f32 {vr(x+2*i,2)}, {vr(D,2)}, {vr(yf+2*i,2)}, {vr(x+2*i,2)}")
        a.e(f"v_cvt_pk_bf16_f32 v{xa+i}, v{x+2*i}, v{x+2*i+1}")
        if i % 4 == 3: a.e(f"buffer_store_dwordx4 {vr(xa+i-3,4)}, v{fo}, s[20:23], 0 offen offset:{2048*(i//4)} {SC}")
    a.e("s_branch R_s2")
    a.e("R_l0:")
    st_ = st; st = yf
    for i in range(8): unpack(a, x + 2 * i, x + 2 * i + 1, xa + i); unpack(a, w + 2 * i, w + 2 * i + 1, xb + i)
    a.e("s_cmp_lg_u32 s30, 4"); a.e("s_cbranch_scc1 R_fw")
    lds_spin(a, LW + 4, 16, st, nap=int(os.environ.get("NAP4", "4")))
    a.e("s_lshl_b32 s36, s28, 10"); a.e(f"s_add_u32 s36, s36, {F_FRONT}")
    a.e(f"v_lshlrev_b32 v{st+4}, 7, v1"); a.e(f"v_add_u32 v{st+4}, s36, v{st+4}")
    a.e("s_mov_b32 s53, 0"); a.e("s_mov_b64 exec, 0xff")
    a.e("R_fp:")
    a.e(f"buffer_load_dword v{st}, v{st+4}, s[56:59], 0 offen {SC}"); a.e("s_waitcnt vmcnt(0)")
    a.e(f"v_subrev_u32 v{st}, s52, v{st}"); a.e(f"v_and_b32 v{st+1}, 0xffffc0ff, v{st}"); a.e(f"v_cmp_eq_u32 vcc, 32, v{st+1}")
    a.e("s_cmp_eq_u64 vcc, exec"); a.e("s_cbranch_scc1 R_fq")
    a.e(f"s_sleep {FSLEEP}")
    a.e("s_add_u32 s53, s53, 1"); a.e("s_cmp_lt_u32 s53, s61"); a.e("s_cbranch_scc1 R_fp")
    a.e("s_mov_b32 s61, 0")
    a.e("R_fq:")
    a.e(f"v_lshrrev_b32 v{st}, 8, v{st}"); a.e(f"v_mov_b32 v{st+1}, {LW+28}"); a.e(f"ds_add_u32 v{st+1}, v{st}")
    a.e("s_mov_b64 exec, -1"); a.e("s_waitcnt lgkmcnt(0)")
    a.e("R_fw:")
    a.e("s_barrier")
    mstamp(a)
    load_y(a)
    a.e(f"v_mov_b32 v{st}, {LW+28}"); a.e(f"ds_read_b32 v{st+1}, v{st}"); a.e("s_waitcnt lgkmcnt(0)"); a.e(f"v_readfirstlane_b32 s94, v{st+1}")
    if STAMP: a.e("s_mov_b32 s95, s94")
    a.e(f"s_cmp_gt_u32 s94, {NVOTE // 2}"); a.e("s_cselect_b32 s94, 1, 0")
    group_off(a, 55, 28)
    a.e("s_add_u32 s62, s4, s55"); a.e("s_addc_u32 s63, s5, 0")
    a.e("s_sub_u32 s36, s28, 1"); a.e("s_max_i32 s36, s36, 0"); group_off(a, 92, 36); a.e("s_sub_u32 s92, s92, s55")
    a.e("s_add_u32 s36, s28, 1"); a.e("s_min_u32 s36, s36, 15"); group_off(a, 93, 36); a.e("s_sub_u32 s93, s93, s55")
    a.e(f"s_add_u32 s55, s55, {oSM}")
    lsrd(a, 20, oX3, XSZ)
    a.e("s_waitcnt vmcnt(0)")
    for i in range(8):
        D = w + 2 * i
        unpack(a, st, st + 1, yy + i)
        a.e(f"v_pk_mul_f32 {vr(D,2)}, {vr(D,2)}, {vr(st,2)}"); round2(a, D, D + 1, tmp)
        a.e(f"v_pk_add_f32 {vr(x+2*i,2)}, {vr(x+2*i,2)}, {vr(D,2)}"); a.e(f"v_cvt_pk_bf16_f32 v{xa+i}, v{x+2*i}, v{x+2*i+1}")
        if i % 4 == 3: a.e(f"buffer_store_dwordx4 {vr(xa+i-3,4)}, v{fo}, s[20:23], 0 offen offset:{2048*(i//4)} {SC}")
    a.e("R_s2:")
    st = st_
    for i in range(8): unpack(a, x + 2 * i, x + 2 * i + 1, xa + i)
    part(x, 1)
    publish(a, ST_R, 8, pt)
    a.e("s_barrier")
    a.e("s_cmp_lg_u32 s30, 0"); a.e("s_cbranch_scc1 R_nl")
    comb(1)
    outv = yf + 2; s3 = v(); m4 = v(); v4_ = v(); r4 = v()
    assert v.hi <= PK
    a.e(f"v_mov_b32 v{m4}, v{mean}"); a.e(f"v_mov_b32 v{v4_}, v{var}")
    ln_finish(a, mean, var, rs, s3)
    a.e(f"v_sub_f32 v{m4}, v{m4}, v{mean}"); a.e(f"v_mul_f32 v{m4}, v{m4}, v{rs}")
    a.e(f"v_mul_f32 v{v4_}, v{v4_}, v{rs}"); a.e(f"v_mul_f32 v{v4_}, v{v4_}, v{rs}")
    ln_finish(a, m4, v4_, r4)
    a.e(f"v_mov_b32 v{outv}, v{mean}"); a.e(f"v_mov_b32 v{outv+1}, v{rs}")
    a.e(f"v_fma_f32 v{outv+2}, v{m4}, v{s3}, v{mean}"); a.e(f"v_mul_f32 v{outv+3}, v{rs}, v{r4}")
    lsrd(a, 24, oLNS, 2048)
    a.e("s_lshl_b32 s36, s29, 3"); a.e(f"v_add_u32 v{t}, s36, v{I}"); a.e(f"v_lshlrev_b32 v{t}, 4, v{t}")
    a.e("s_mov_b64 exec, 0xff")
    a.e(f"buffer_store_dwordx4 {vr(outv,4)}, v{t}, s[24:27], 0 offen {SC}")
    a.e("s_mov_b64 exec, -1")
    publish(a, ST_R2, 1, pt)
    a.e("R_nl:")
    return v.hi

TAB = int(os.environ.get("TAB", "1")); TV = 248
def lead(seq, r, L, P=4):
    if L == 0: return list(seq)
    return [x for _, x in sorted(((i - L - 0.5 if i % P == r else i), x) for i, x in enumerate(seq))]
def order3(j, gi):
    mode, L = eval(os.environ.get("O3", "('r',0)"))
    if mode == "r": return [(gi + t) & 15 for t in range(16)]
    if mode == "n": return [gi] + [x for x in lead(range(16), (j + gi) & 3, L) if x != gi]
    if mode == "s": return [gi] + lead([x for x in range(16) if x != gi], (j + gi) & 3, L)
    if mode == "h": return [gi] + [x for x in lead([(t + (gi & 8)) & 15 for t in range(16)], (j + gi) & 3, L) if x != gi]
def order4(j, n):
    mode, L = eval(os.environ.get("O4", "('r',0)"))
    own = [(7 * n + i, 7 * n + 4 + i) for i in range(3)]
    ps = [(n + t) & 7 for t in range(8)] if mode == "r" else list(range(8))
    ab = [(7 * p + i, 7 * p + 4 + i) for i in range(2) for p in ps if p != n]
    c = [7 * p + o for p in ps for o in (2, 6, 3) if p != n or o == 3]
    rest = ab + [(c[2 * i], c[2 * i + 1]) for i in range(11)]
    if mode != "r": rest = lead(rest, (j + n + int(os.environ.get("O4R", "0"))) & 3, L)
    return own + rest
L4 = eval(os.environ.get("O4", "('r',0)"))[1] if TAB else 0
def tab_data(a):
    a.lines.append(".p2align 6"); a.lines.append("K_tab:")
    for gi in range(16):
        for j in range(4):
            o3 = order3(j, gi) + [0] * 16; o4 = order4(j, gi & 7) + [(0, 0)] * 4
            assert sorted(o3[:16]) == list(range(16)) and sorted(sum(o4[:28], ())) == list(range(56))
            a.lines.append(".short " + ",".join(str(o3[t] | o4[t][0] << 4 | o4[t][1] << 10) for t in range(32)))
def tab_load(a):
    a.e("s_getpc_b64 s[34:35]"); a.e("K_tpc:")
    a.e("s_lshl_b32 s36, s29, 2"); a.e("s_and_b32 s37, s28, 3"); a.e("s_add_u32 s36, s36, s37"); a.e("s_lshl_b32 s36, s36, 6")
    a.e("s_add_u32 s36, s36, K_tab-K_tpc"); a.e("s_add_u32 s34, s34, s36"); a.e("s_addc_u32 s35, s35, 0")
    a.e(f"v_and_b32 v{TV}, 31, v1"); a.e(f"v_lshlrev_b32 v{TV}, 1, v{TV}"); a.e(f"global_load_ushort v{TV+3}, v{TV}, s[34:35]")
def tab_make(a, w):
    T, x = TV + 3, TV + 4
    if not w:
        a.e(f"v_bfe_u32 v{x}, v{T}, 2, 2"); a.e(f"v_lshlrev_b32 v{TV}, 14, v{x}"); a.e(f"v_and_b32 v{x}, 3, v{T}"); a.e(f"v_lshl_add_u32 v{TV}, v{x}, 11, v{TV}")
        for lw in range(2):
            a.e(f"v_bfe_u32 v{x}, v{T}, {7+6*lw}, 3"); a.e(f"v_lshlrev_b32 v{TV+1+lw}, 14, v{x}"); a.e(f"v_bfe_u32 v{x}, v{T}, {4+6*lw}, 3"); a.e(f"v_lshl_add_u32 v{TV+1+lw}, v{x}, 10, v{TV+1+lw}")
    else:
        a.e(f"v_and_b32 v{x}, 15, v{T}"); a.e(f"v_mul_u32_u24 v{TV}, {64*7168}, v{x}")
        a.e("s_and_b32 s36, s30, 1"); a.e("s_mul_i32 s36, s36, 6"); a.e("s_add_u32 s36, s36, 4"); a.e(f"v_bfe_u32 v{x}, v{T}, s36, 6")
        assert all((q * 37) >> 8 == q // 7 for q in range(56))
        a.e(f"v_mul_u32_u24 v{TV+2}, 37, v{x}"); a.e(f"v_lshrrev_b32 v{TV+2}, 8, v{TV+2}"); a.e(f"v_mul_u32_u24 v{TV+2}, 7, v{TV+2}"); a.e(f"v_sub_u32 v{TV+2}, v{x}, v{TV+2}")
        a.e(f"v_cmp_eq_u32 vcc, 3, v{TV+2}"); a.e(f"v_cndmask_b32 v{TV+2}, 0, 1, vcc"); a.e(f"v_lshl_add_u32 v{TV+1}, v{x}, 16, v{TV+2}")
def rot_init(a, which):
    if which == 3 and TAB: a.e("s_mov_b32 s44, 0")
    elif which == 3 and OWN3: a.e("s_mov_b32 s44, s29")
    elif which != 4: a.e("s_mov_b32 s44, s67")
    else: a.e("s_mov_b32 s44, 0")
def rot_next(a, which):
    a.e("s_add_u32 s44, s44, 1")
    if which != 4: a.e("s_and_b32 s44, s44, 15")
def kb4(a, d, lw):
    a.e("s_lshl_b32 s45, s44, 1"); a.e(f"s_add_u32 s45, s45, {lw}"); a.e("s_sub_u32 s45, s45, 32")
    a.e("s_mul_i32 s46, s45, 86"); a.e("s_lshr_b32 s46, s46, 8")
    a.e("s_mul_i32 s47, s46, 3"); a.e("s_sub_u32 s47, s45, s47"); a.e("s_lshl_b32 s47, s47, 2"); a.e("s_lshr_b32 s47, 0x362, s47"); a.e("s_and_b32 s47, s47, 7")
    a.e("s_cmp_ge_u32 s44, 10"); a.e("s_cselect_b32 s45, 9, 2"); a.e("s_cselect_b32 s51, 1, 0"); a.e("s_sub_u32 s45, s44, s45")
    a.e("s_cmp_lt_u32 s44, 3"); a.e("s_cselect_b32 s45, 0, s45"); a.e("s_cselect_b32 s51, s44, s51")
    a.e(f"s_lshl2_add_u32 s51, {lw}, s51")
    a.e("s_cmp_lt_u32 s44, 17"); a.e("s_cselect_b32 s47, s51, s47"); a.e("s_cselect_b32 s46, s45, s46")
    a.e("s_add_u32 s46, s46, s33"); a.e("s_and_b32 s46, s46, 7"); a.e("s_mul_i32 s46, s46, 7"); a.e(f"s_add_u32 s{d}, s46, s47")
assert all((q * 86) >> 8 == q // 3 for q in range(24))
WVB = {1: 238, 2: 238, 4: 239, 3: 241}
WV = 245
def w_lanes(a):
    t, t2 = WV + 8, WV + 9
    R = WVB[1]
    a.e(f"v_lshrrev_b32 v{t}, 3, v1"); a.e(f"v_lshlrev_b32 v{R}, 11, v{t}")
    a.e(f"v_and_b32 v{t}, 6, v{t}"); a.e(f"v_and_b32 v{t2}, 7, v1"); a.e(f"v_xor_b32 v{t}, v{t}, v{t2}"); a.e(f"v_lshl_add_u32 v{R}, v{t}, 4, v{R}")
    R = WVB[4]
    for p in range(2):
        a.e(f"v_lshrrev_b32 v{t}, 4, v1"); a.e(f"v_lshlrev_b32 v{R+p}, 11, v{t}")
        a.e(f"v_add_u32 v{t}, {4*p}, v{t}"); a.e(f"v_lshlrev_b32 v{t}, 1, v{t}"); a.e(f"v_and_b32 v{t2}, 15, v1"); a.e(f"v_xor_b32 v{t}, v{t}, v{t2}")
        a.e(f"v_lshl_add_u32 v{R+p}, v{t}, 4, v{R+p}")
    R = WVB[3]
    assert all((p * 2341) >> 16 == p // 28 for p in range(448))
    for ii in range(7):
        a.e(f"v_add_u32 v{t2}, {64*ii}, v1"); a.e(f"v_mul_u32_u24 v{t}, 2341, v{t2}"); a.e(f"v_lshrrev_b32 v{t}, 16, v{t}")
        a.e(f"v_mul_u32_u24 v{R+ii}, 28, v{t}"); a.e(f"v_sub_u32 v{t2}, v{t2}, v{R+ii}")
        a.e(f"v_mul_u32_u24 v{R+ii}, 7168, v{t}")
        a.e(f"v_lshrrev_b32 v{t}, 1, v{t}"); a.e(f"v_and_b32 v{t}, 2, v{t}"); a.e(f"v_xor_b32 v{t2}, v{t2}, v{t}")
        a.e(f"v_lshl_add_u32 v{R+ii}, v{t2}, 4, v{R+ii}")
def w_srd(a, which):
    c = CFG[which]
    a.e(f"s_mov_b64 s[12:13], s[{66+2*which}:{67+2*which}]")
    a.e(f"s_mov_b32 s14, {c['KBT'] * 32 * c['LDW']}"); a.e("s_mov_b32 s15, 0x20000")
def w_setup(a, which, pre=True, lo=0):
    c = CFG[which]; STB = c["STB"]; BW = STB // 2
    w_srd(a, which)
    a.e("s_and_b32 s35, s30, 1")
    a.e(f"s_mul_i32 s38, s{29 if which != 4 else 33}, {c['RB']}");
    if which != 4: a.e(f"s_mul_i32 s41, s35, {32*c['LDW']}"); a.e("s_add_u32 s38, s38, s41")
    if which == 4: a.e(f"s_mul_i32 s41, s31, {1792*c['LDW']}"); a.e("s_add_u32 s38, s38, s41")
    a.e(f"s_mul_i32 s41, s35, {BW}"); a.e(f"s_add_u32 s41, s41, {c['WB']}")
    a.e("s_mov_b32 s42, 0"); rot_init(a, which)
    if not pre: return
    NP = c["NPRE"]
    a.e("s_mov_b32 s49, s44"); a.e("s_and_b32 s43, s28, 3"); a.e(f"s_mul_i32 s43, s43, {NP - lo}"); a.e("s_lshr_b32 s43, s43, 2"); a.e(f"s_mov_b32 s50, {lo}")
    if not WROT: a.e("s_mov_b32 s43, 0")
    if lo: a.e(f"s_add_u32 s43, s43, {lo}")
    L = a.lab("wpre"); a.e(f"{L}:")
    a.e(f"s_mul_i32 s42, s43, {STB}"); a.e("s_add_u32 s44, s49, s43")
    if which != 4: a.e("s_and_b32 s44, s44, 15")
    w_issue(a, which, pace=PACES.get(which, PACE))
    a.e("s_add_u32 s43, s43, 1"); a.e(f"s_cmp_eq_u32 s43, {NP}"); a.e(f"s_cselect_b32 s43, {lo}, s43")
    a.e("s_add_u32 s50, s50, 1"); a.e(f"s_cmp_lt_u32 s50, {NP}"); a.e(f"s_cbranch_scc1 {L}")
    mstamp(a)
    a.e(f"s_mov_b32 s42, {(NP % c['NW']) * STB}"); a.e(f"s_add_u32 s44, s49, {NP}")
    if which != 4: a.e("s_and_b32 s44, s44, 15")
def park_load(a, pace):
    w_srd(a, 2)
    a.e("s_and_b32 s35, s30, 3"); a.e("s_lshl_b32 s35, s35, 19"); a.e("s_lshl_b32 s39, s29, 7"); a.e("s_add_u32 s39, s39, s35")
    for q in range(32):
        a.e(f"buffer_load_dwordx4 {vr(PK+4*q,4)}, v{WVB[2]}, s[12:15], s39 offen"); a.e("s_add_u32 s39, s39, 16384")
        if pace and q % 4 == 3: a.e(f"s_waitcnt vmcnt({pace})")
def after_g1(a):
    c = CFG[3]
    w_srd(a, 3)
    a.e(f"v_readlane_b32 s36, v{TV+3}, 0"); a.e(f"v_readlane_b32 s37, v{TV+3}, 1")
    a.e("s_and_b32 s35, s30, 3"); a.e(f"s_mul_i32 s38, s35, {16*7168}"); a.e("s_mul_i32 s39, s29, 448"); a.e("s_add_u32 s38, s38, s39")
    for r in (36, 37): a.e(f"s_and_b32 s{r}, s{r}, 15"); a.e(f"s_mul_i32 s{r}, s{r}, {64*7168}"); a.e(f"s_add_u32 s{r}, s{r}, s38")
    a.e("s_mul_i32 s39, s35, 7168"); a.e(f"s_add_u32 m0, s39, {c['WB'] + c['S0'] * c['STB']}")
    for i in range(7):
        if i: a.e("s_add_u32 m0, m0, 1024")
        a.e(f"buffer_load_dwordx4 v{WVB[3]+i}, s[12:15], s36 offen lds")
    for i in range(7): a.e(f"buffer_load_dwordx4 {vr(W3S+4*i,4)}, v{WVB[3]+i}, s[12:15], s37 offen")
    a.e("s_lshr_b32 s36, s67, 2"); a.e("s_sub_u32 s36, s35, s36"); a.e("s_and_b32 s36, s36, 3"); a.e("s_lshl_b32 s36, s36, 15"); a.e(f"v_add_u32 v6, s36, v2")
    for q in range(32): a.e(f"ds_write_b128 v6, {vr(PK+4*q,4)} offset:{CFG[2]['WB'] + 1024*q}")
    a.e("s_waitcnt vmcnt(0) lgkmcnt(0)")
def after_g2(a):
    c = CFG[3]
    a.e("s_and_b32 s35, s30, 3"); a.e("s_mul_i32 s39, s35, 7168"); a.e(f"s_add_u32 s39, s39, {c['WB'] + (c['S0'] + 1) % c['NW'] * c['STB']}"); a.e("v_add_u32 v6, s39, v2")
    for i in range(7): a.e(f"ds_write_b128 v6, {vr(W3S+4*i,4)} offset:{1024*i}")
    a.e("s_waitcnt lgkmcnt(0)")
SUBX = {}
def call(a, f):
    SUBX[f.__name__] = f; a.e(f"s_call_b64 s[76:77], SUB_{f.__name__}")
def w1_slots(a, js, pace=0):
    for j in js:
        a.e(f"s_mov_b32 s42, {j*8192}"); a.e("s_mov_b32 s44, s67"); a.e(f"s_add_u32 s44, s44, {j}"); a.e("s_and_b32 s44, s44, 15")
        call_issue(a, w_issue, 1)
        if pace: a.e(f"s_waitcnt vmcnt({pace})")
def w1_done(a):
    a.e("s_mov_b32 s42, 0"); a.e("s_mov_b32 s44, s67"); a.e("s_add_u32 s44, s44, 13"); a.e("s_and_b32 s44, s44, 15")
class Rec:
    def __init__(s_): s_.l = []
    def e(s_, x): s_.l.append(x)
    srd = Asm.srd
def w_parts(which, direct=False):
    c = CFG[which]; STB = c["STB"]; n = STB // 2048; LDW = c["LDW"]; b = Rec()
    b.e("s_add_u32 s19, s41, s42")
    arm = ["s_mov_b32 m0, s19", "s_mov_b32 s39, s16"]
    if which == 4 and TAB:
        b.e(f"v_readlane_b32 s16, v{TV+1}, s44")
        b.e("s_bitcmp1_b32 s16, 0"); b.e(f"s_cselect_b32 s17, {8*2048}, {4*2048}".replace(f"{4*2048}", "s45")); b.e(f"s_cselect_b32 s18, {-20*2048}, s45")
        b.e("s_andn2_b32 s16, s16, 1"); b.e("s_add_u32 s16, s16, s38")
        b.l.insert(0, f"s_mov_b32 s45, {4*2048}")
        arm += ["s_mov_b32 s32, s17", "s_mov_b32 s3, s18"]
    elif which == 3 and TAB and not direct:
        b.e(f"v_readlane_b32 s16, v{TV}, s44"); b.e("s_add_u32 s16, s16, s38")
    elif which == 4:
        b.e("s_and_b32 s40, s30, 1"); kb4(b, 16, "s40")
        b.e(f"s_mul_i32 s16, s16, {32*LDW}"); b.e("s_add_u32 s16, s16, s38")
        b.e("s_cmp_eq_u32 s47, 3"); b.e("s_cselect_b32 s17, 8, 4"); b.e("s_cselect_b32 s18, -20, 4")
        b.e("s_lshl_b32 s17, s17, 11"); b.e("s_lshl_b32 s18, s18, 11")
        arm += ["s_mov_b32 s32, s17", "s_mov_b32 s3, s18"]
    else:
        b.e(f"s_mul_i32 s16, s44, {64*LDW}"); b.e("s_add_u32 s16, s16, s38")
    if f"w{which}" in os.environ.get("HOT", ""): b.e("s_mov_b32 s16, s38")
    rot_next(b, which)
    b.e(f"s_add_u32 s42, s42, {STB}"); b.e(f"s_cmp_eq_u32 s42, {c['NW']*STB}"); b.e("s_cselect_b32 s42, 0, s42")
    fire = []
    for i in range(n):
        g = []
        if i:
            g.append("s_add_u32 m0, m0, 1024")
            if which in (1, 2): g.append(f"s_add_u32 s39, s39, {8*LDW}")
            elif which == 4: g.append(f"s_add_u32 s39, s39, s{3 if i == 4 else 32}")
            elif i == 7: g.append(f"s_add_u32 s39, s39, {16*LDW}")
        vo = WVB[which] + (0 if which in (1, 2) else (i & 1) if which == 4 else i % 7)
        fire.append(g + [f"buffer_load_dwordx4 v{vo}, s[12:15], s39 offen lds"])
    if f"w{which}" in os.environ.get("NOLD", ""): fire = [[x for x in g if not x.startswith("buffer_load")] + ["s_nop 0"] for g in fire]
    return b.l, arm, fire
def w_issue(a, which, pace=0, direct=False):
    prep, arm, fire = w_parts(which, direct)
    for x in prep + arm: a.e(x)
    for i, g in enumerate(fire):
        for x in g: a.e(x)
        if pace and (i % 4 == 3 or i == len(fire) - 1): a.e(f"s_waitcnt vmcnt({pace})")

def w_bases(a, which, dst, swn, ntl, t, t2):
    c = CFG[which]; RB = c["RB"]
    a.e(f"v_lshrrev_b32 v{t}, 2, v1")
    a.e(f"v_mul_u32_u24 v{dst}, {RB}, v{t}"); a.e(f"v_and_b32 v{t2}, 3, v1"); a.e(f"v_lshl_add_u32 v{dst}, v{t2}, 3, v{dst}")
    a.e(f"v_add_u32 v{dst}, {c['WB']}, v{dst}")
    if which == 3:
        a.e(f"s_mul_i32 s36, s{swn}, {7*32}"); a.e(f"v_add_u32 v{dst}, s36, v{dst}")
        a.e(f"v_bfe_u32 v{t}, v1, 4, 1"); a.e(f"v_lshlrev_b32 v{t}, 5, v{t}")
        a.e(f"s_cmp_eq_u32 s{swn}, 0"); a.e("s_cselect_b32 s36, 1, -1"); a.e(f"v_mul_lo_u32 v{t}, v{t}, s36")
        a.e(f"v_sub_u32 v{dst+1}, v{dst}, v{t}"); a.e(f"v_add_u32 v{dst}, v{dst}, v{t}")
        return 2, lambda nt, kk, h: (nt & 1, (32 * kk + 16 * h) * RB + 32 * nt)
    if which == 4: a.e(f"v_and_b32 v{t}, 7, v{t}")
    else: a.e(f"v_bfe_u32 v{t}, v{t}, 1, 2")
    for nt in range(ntl - 1, -1, -1):
        a.e(f"s_mul_i32 s36, s{swn}, {ntl}"); a.e(f"s_add_u32 s36, s36, {nt}")
        a.e(f"v_xor_b32 v{t2}, s36, v{t}"); a.e(f"v_lshl_add_u32 v{dst+nt}, v{t2}, 5, v{dst}")
    return ntl, lambda nt, kk, h: (nt, (32 * kk + 16 * h) * RB)

def a_parts(which):
    c = CFG[which]; b = Rec()
    if which <= 2 and NX:
        b.e("s_and_b32 s42, s48, 7"); b.e("s_lshl_b32 s42, s42, 14"); b.e("s_lshr_b64 s[48:49], s[48:49], 4")
    b.e("s_add_u32 s19, s41, s42")
    arm = ["s_mov_b32 m0, s19", "s_mov_b32 s39, s16"]; fire = []
    if which == 2:
        b.e(f"s_mul_i32 s16, s44, {8*PITCH}"); b.e("s_add_u32 s16, s16, s38")
        b.e("s_lshr_b32 s45, s44, 2"); b.e("s_xor_b32 s45, s45, s94"); b.e("s_and_b32 s45, s45, 1"); b.e("s_lshl_b32 s45, s45, 13"); b.e("s_add_u32 s16, s16, s45")
        b.e("s_lshr_b32 s45, s44, 3"); b.e("s_lshl_b32 s45, s45, 4"); b.e("s_add_u32 s45, s45, 16")
        b.e("s_sub_u32 s46, 0, s45"); b.e("s_bitcmp1_b32 s44, 2"); b.e("s_cselect_b32 s45, s45, s46"); b.e("s_add_u32 s16, s16, s45")
        step = PITCH
    elif which == 4:
        for lw in range(2):
            if TAB: b.e(f"v_readlane_b32 s{16+lw}, v{TV+1+lw}, s44")
            else: kb4(b, 16 + lw, lw); spread(b, 16 + lw, 16 + lw)
        for lw in range(2): b.e(f"s_add_u32 s{16+lw}, s{16+lw}, s38")
        arm.append("s_mov_b32 s40, s17")
        for i in range(4):
            for lw in range(2):
                fire.append((["s_add_u32 m0, m0, 1024"] if i or lw else []) + ([f"s_add_u32 s{39+lw}, s{39+lw}, {c['KBT']*2048}"] if i else []) +
                            [f"buffer_load_dwordx4 v2, s[12:15], s{39+lw} offen {SC} lds"])
    elif which == 3 and TAB:
        b.e(f"v_readlane_b32 s16, v{TV}, s44"); b.e("s_add_u32 s16, s16, s38"); step = c['KBT'] * 2048
    else:
        b.e("s_lshr_b32 s45, s44, 2"); b.e("s_lshl_b32 s45, s45, 14"); b.e("s_and_b32 s16, s44, 3"); b.e("s_lshl_b32 s16, s16, 11")
        b.e("s_add_u32 s16, s16, s45"); b.e("s_add_u32 s16, s16, s38"); step = c['KBT'] * 2048
    if f"a{which}" in os.environ.get("HOT", ""):
        b.e("s_mov_b32 s16, s38")
        if which == 4: b.e("s_add_u32 s17, s38, 1024")
    for i in range(4 if which != 4 else 0):
        fire.append((["s_add_u32 m0, m0, 2048", f"s_add_u32 s39, s39, {step}"] if i else []) + [f"buffer_load_dwordx4 v2, s[12:15], s39 offen {SC} lds"])
        fire.append([f"buffer_load_dwordx4 v2, s[12:15], s39 offen offset:1024 {SC} lds"])
    rot_next(b, which)
    if not (which <= 2 and NX):
        b.e(f"s_add_u32 s42, s42, 16384"); b.e(f"s_cmp_eq_u32 s42, {c['NA']*16384}"); b.e("s_cselect_b32 s42, 0, s42")
    if f"a{which}" in os.environ.get("NOLD", ""): fire = [[x for x in g if not x.startswith("buffer_load")] + ["s_nop 0"] for g in fire]
    return b.l, arm, fire
def a_issue(a, which):
    prep, arm, fire = a_parts(which)
    for x in prep + arm + sum(fire, []): a.e(x)
SUBS = {}
def call_issue(a, issue, which):
    nm = f"SUB_{issue.__name__}_{which}"; SUBS[nm] = (issue, which)
    a.e(f"s_call_b64 s[76:77], {nm}")
def emit_subs(a):
    for nm, f in SUBX.items(): a.e(f"SUB_{nm}:"); f(a); a.e("s_setpc_b64 s[76:77]")
    for nm, (issue, which) in SUBS.items():
        a.e(f"{nm}:"); issue(a, which); a.e("s_setpc_b64 s[76:77]")
def ld_steps(a, which, N, per, issue, npre, rate=2, plan={}, lo=0, hi=None, last=None, hold=(), sched=None, armed=False):
    NS = CFG[which]["NS"]
    prep, arm, fire = (w_parts if issue is w_issue else a_parts)(which); h = max(1, per * HSPLIT // 8)
    plan = {b: (x if isinstance(x, list) else [x]) for b, x in plan.items()}
    q = [s_ for s_ in range(npre) for _ in range(per)]
    def after(tag):
        if issue is w_issue and isinstance(tag, int) and tag < npre: tag = npre - 1
        return len(q) - 1 - max(i for i, x in enumerate(q) if x == tag)
    issued = npre; steps = []
    for b in range(NS):
        acts = plan.get(b, []); was = {}
        def do(pos):
            for n_, act in enumerate(acts):
                if act[0] != pos: continue
                if act[1] is not None: was[n_] = after(act[1])
                q.extend([act[4]] * act[3])
        do(True)
        k = 0
        if (b > 0 or (sched is not None and issue is a_issue)) and b not in hold:
            k = max(0, min(rate, min(NS, b - 1 + N) - issued)) if sched is None else sched[b]
        assert k or not any(x[0] == "mid" for x in acts)
        for j in range(k):
            q.extend([issued] * h)
            if j == 0: do("mid")
            q.extend([issued] * (per - h)); issued += 1
        do(False)
        w = after(b); assert w <= 63
        steps.append((k, w, b if acts else None, tuple(sorted(was.items())), issued < NS))
    def em(l):
        for x in l:
            a.e(x)
            if x == "s_barrier" and os.environ.get("JIT"): mstamp(a)
    F1, F2 = sum(fire[:h], []), sum(fire[h:], [])
    lprep = prep
    if len(prep) > 8:
        nm = f"PREP_{issue.__name__}_{which}"; SUBS[nm] = ((lambda a_, w_, l=prep: [a_.e(x) for x in l]), which)
        prep = [f"s_call_b64 s[76:77], {nm}"]
    if lo == 0 and npre < NS and not armed: em(prep + arm)
    i = lo; HI = NS if hi is None else hi
    while i < HI:
        j = i
        while j < HI and steps[j] == steps[i]: j += 1
        k, w, ab, was, more = steps[i]; n = j - i; was = dict(was)
        def run(pos):
            for n_, act in enumerate(plan.get(ab, [])):
                if act[0] != pos: continue
                if n_ in was: a.e(f"s_waitcnt vmcnt({was[n_]})")
                act[2]()
        tail = [f"s_waitcnt vmcnt({w})", "s_barrier"]
        if n > 2 and k == 1:
            em(F1); a.e("s_mov_b32 s43, 1"); L = a.lab("ld"); a.e(f"{L}:")
            em(lprep + F2 + arm + tail + F1)
            a.e("s_add_u32 s43, s43, 1"); a.e(f"s_cmp_lt_u32 s43, {n}"); a.e(f"s_cbranch_scc1 {L}")
            em(prep + F2 + arm + tail)
        else:
            for r in range(n):
                run(True)
                for jj in range(k):
                    nxt = more or jj < k - 1
                    em(F1)
                    if jj == 0: run("mid")
                    em((prep if nxt else []) + F2 + (arm if nxt else []))
                run(False)
                em(tail)
        i = j
    if hi is not None: return
    if which == 4:
        if issue is a_issue: a.e("s_cmp_eq_u32 s60, 1"); a.e("s_cbranch_scc1 K_fin")
        elif hold is HOLD: a.e("s_branch K_fin"); return
        if not RPL: r_pre(a)
    if last: last()
    late = os.environ.get("TLATE", "0") == "1"
    if late: a.e("s_barrier")
    if issue is a_issue and W4POS == f"{which}C":
        X = a.lab("tw4"); a.e("s_cmp_lg_u32 s60, 0"); a.e(f"s_cbranch_scc1 {X}"); touch(a, B_W4, 7 * MB, 20); a.e(f"{X}:")
    if not late: a.e("s_barrier")

HOLD = eval(os.environ.get("HOLD", "[2,3,4]"))
def a_loader(a, which):
    c = CFG[which]
    if which <= 2:
        plan = side_jobs(a, 1) if which == 1 else {}
        poll(a, which - 1, 8); mstamp(a)
        for b in sorted(plan):
            for act in (plan[b] if isinstance(plan[b], list) else [plan[b]]):
                if act[1] is not None: a.e("s_waitcnt vmcnt(0)")
                act[2]()
        a.e("s_barrier")
        call(a, after_g1 if which == 1 else after_g2)
        return
    a.e("s_and_b32 s35, s30, 1")
    if which == 2:
        hs_srd(a, 12)
        a.e("s_lshl_b32 s38, s28, 11"); a.e("s_add_u32 s38, s38, 16384"); a.e(f"s_mul_i32 s36, s35, {4*PITCH}"); a.e("s_add_u32 s38, s38, s36")
    else:
        lsrd(a, 12, c["A"], XSZ if which != 4 else H2SZ)
        a.e(f"s_mul_i32 s38, s35, {4*c['KBT']*2048}")
        if which == 4: a.e(f"s_mul_i32 s36, s31, {7*16384}"); a.e("s_add_u32 s38, s38, s36")
    a.e("s_lshl_b32 s41, s35, 13"); a.e("s_mov_b32 s42, 0"); rot_init(a, which)
    assert c["NA"] == 3
    prep, arm, fire = a_parts(which)
    if which == 4:
        flag_addr(a, 9, ST_G3A); flag_addr(a, 10, ST_G3B); flag_addr(a, 12, ST_G3)
        own_wait(a, ST_G3A, False, 14)
        poll_core(a, 8, [9], 1, cnt=8); mstamp(a)
        plan = {6 - L4: ("mid", None, lambda: flag_try(a, 11, 10), 1, "f"), 8 - L4: ("mid", "f", lambda: flag_check(a, 11, 10, 8), 0, None),
                13 - L4: ("mid", None, lambda: flag_try(a, 11, 12), 1, "g"), 15 - L4: ("mid", "g", lambda: flag_check(a, 11, 12, 8), 0, None)}
        a.e("s_mov_b32 s44, 3")
        ld_steps(a, which, 3, 8, a_issue, 3, plan=plan); return
    if which == 3:
        mask, cnt = flag_addr(a, 9, ST_G2)
        def wait2():
            if B0E > 1: a.e(f"s_sleep {B0E}")
            poll_core(a, 8, [9], mask, cnt=cnt); mstamp(a); mstamp(a)
            if W3H: a.e("s_add_u32 s54, s60, 1"); lds_set(a, LW + 60, "s54", 10)
        rot_next(a, 3); a.e("s_mov_b32 s42, 16384")
        plan = side_jobs(a, 3)
        if os.environ.get("P30", "0") == "1":
            def wait0(): own_wait(a, ST_G2, False, 14); wait2()
            plan[0] = (True, None, wait0, 0, None)
            ld_steps(a, which, 3, 8, a_issue, 1, plan=plan, sched=[int(os.environ.get("P3N", "1")), 2 - int(os.environ.get("P3N", "1"))] + [1] * 13 + [0]); return
        plan[1] = (True, None, wait2, 0, None)
        if RPL: plan[15] = (False, None, lambda: call(a, r_pre0), 8, "r")
        PZ3 = int(os.environ.get("PZ3", "0"))
        if PZ3:
            a.srd(84, 4, 32 * MB, off=216 * MB)
            a.e("s_cmp_eq_u32 s60, 0"); a.e("s_cselect_b32 s86, s86, 0")
            for i in range(4): a.e(f"v_mov_b32 v{216+i}, -1")
            a.e("s_lshl_b32 s88, s2, 1"); a.e("s_and_b32 s50, s30, 1"); a.e("s_add_u32 s88, s88, s50"); a.e(f"s_mul_i32 s88, s88, {PZ3*12*1024}")
            def pz():
                for i in range(PZ3): a.e(f"buffer_store_dwordx4 v[216:219], v2, s[84:87], s88 offen offset:{i*1024} {SC}")
                a.e(f"s_add_u32 s88, s88, {PZ3*1024}")
            for b in range(2, 14):
                p_ = plan.get(b, []); p_ = p_ if isinstance(p_, list) else [p_]
                plan[b] = p_ + [(False, None, pz, PZ3, "z")]
        ld_steps(a, which, 3, 8, a_issue, 1, plan=plan); return
    assert 0

def side_jobs(a, which):
    c = CFG[which]; plan = {}
    sv = 16; S, Q, mean, rs, tt, ad, fa, fr = 216, 217, 218, 219, 220, 221, 222, 223
    cv = 180 if which == 3 else 24; N = c["LDW"] // 2; co_ = 224; HB = c["TN16"] * 32
    lg = 3 if which == 1 else 5
    def cld(k0=0, k1=4):
        if k0 == 0:
            a.srd(24, 4, 32 * N * 4, off=CSP[which])
            a.e("s_cmp_eq_u32 s60, 0"); a.e("s_cselect_b32 s26, s26, 0")
            a.e("s_and_b32 s36, s30, 1"); a.e(f"s_mul_i32 s36, s36, {HB}"); a.e(f"s_mul_i32 s37, s29, {2*HB}"); a.e("s_add_u32 s37, s36, s37")
            a.e(f"v_lshrrev_b32 v{co_}, {lg}, v1"); a.e(f"v_mul_u32_u24 v{co_}, {N*4}, v{co_}")
            a.e(f"v_and_b32 v{cv-1}, {16*((1 << lg) - 1)}, v2"); a.e(f"v_add_u32 v{co_}, v{co_}, v{cv-1}")
        for k in range(k0, k1):
            a.e(f"buffer_load_dwordx4 {vr(cv+4*(k if k < 9 else k - 8),4)}, v{co_}, s[24:27], s37 offen {SC}"); a.e(f"s_add_u32 s37, s37, {N*4*(64 >> lg)}")
    def piece(lines, l0=False):
        def f():
            X = a.lab("pc")
            if l0: a.e("s_cmp_lg_u32 s60, 0"); a.e(f"s_cbranch_scc1 {X}")
            for x in lines: a.e(x)
            if l0: a.e(f"{X}:")
        return f
    def cadd(k0, k1): return [f"v_pk_add_f32 {vr(cv+2*h,2)}, {vr(cv+2*h,2)}, {vr(cv+4*k+2*h,2)}" for k in range(k0, k1) for h in range(2)]
    def sw(op): return [f"v_mov_b32 v{cv+4+e}, v{cv+e}" for e in range(4)] + [f"{op} v{cv+e}, v{cv+4+e}" for e in range(4)] + cadd(1, 2)
    if which in (1, 3):
        cout = ["s_and_b32 s36, s30, 1", f"s_mul_i32 s36, s36, {HB}", f"s_add_u32 s36, s36, {CSO[which]}", f"v_add_u32 v{cv-1}, s36, v2",
                f"s_bfm_b64 exec, {HB//16}, 0", f"ds_write_b128 v{cv-1}, {vr(cv,4)}", "s_mov_b64 exec, -1", "s_waitcnt lgkmcnt(0)"]
    if which == 1:
        flag_addr(a, fa, ST_R2)
        def ld():
            flag_check(a, fr, fa, 16)
            lsrd(a, 20, oLNS, 2048); a.e("s_and_b32 s35, s30, 1"); a.e("s_lshl_b32 s35, s35, 10")
            a.e(f"buffer_load_dwordx4 {vr(sv,4)}, v2, s[20:23], s35 offen {SC}")
        fin = piece(["s_and_b32 s36, s30, 1", "s_lshl_b32 s36, s36, 10", f"s_add_u32 s36, s36, {LNSL}", f"v_add_u32 v{ad}, s36, v2", f"ds_write_b128 v{ad}, {vr(sv,4)}", "s_waitcnt lgkmcnt(0)"])
        a.e("s_lshl_b32 s53, s29, 7"); a.e(f"s_add_u32 s53, s53, {F_CS}"); a.e(f"v_mov_b32 v{fa+4}, s53")
        def cld1(): flag_check(a, fr + 4, fa + 4, 16); cld()
        work = cadd(1, 4) + [f"v_add_f32_dpp v{cv+e}, v{cv+e}, v{cv+e} row_ror:8 row_mask:0xf bank_mask:0xf" for e in range(4)] + \
               sw("v_permlane16_swap_b32") + sw("v_permlane32_swap_b32")
        plan = {2: (False, None, lambda: flag_try(a, fr + 4, fa + 4), 1, "e"), 5: [(False, "e", cld1, 4, "c"), (False, None, lambda: flag_try(a, fr, fa), 1, "f")],
                8: (False, "f", ld, 1, "d"), 15: [(False, None, piece(cout, 1), 0, None), (False, "d", fin, 0, None)]}
        for i in range(6): plan[9 + i] = (False, None, piece(work[5*i:5*i+5], 1), 0, None)
    if which == 3:
        flag_addr(a, fa, ST_G2S)
        a.e(f"v_lshlrev_b32 v{ad}, 3, v1")
        def ld(k0):
            def f():
                if k0 == 0:
                    flag_check(a, fr, fa, 16)
                    lsrd(a, 20, oST2, 24576)
                    a.e("s_and_b32 s35, s30, 1"); a.e("s_lshl_b32 s35, s35, 9")
                a.e(f"s_add_u32 s36, s35, {k0*2048}")
                for k in range(k0, k0 + 8):
                    if k % 8 == 4: a.e("s_add_u32 s36, s36, 4096")
                    a.e(f"buffer_load_dwordx2 {vr(sv+2*k,2)}, v{ad}, s[20:23], s36 offen offset:{(k&3)*1024} {SC}")
            return f
        b = Rec()
        for st_ in (8, 4, 2, 1):
            for k in range(st_): b.e(f"v_pk_add_f32 {vr(sv+2*k,2)}, {vr(sv+2*k,2)}, {vr(sv+2*(k+st_),2)}")
        b.e(f"v_mul_f32 v{mean}, {f32(1/1024)}, v{sv}"); b.e(f"v_mul_f32 v{Q}, {f32(1/1024)}, v{sv+1}")
        b.e(f"v_fma_f32 v{Q}, -v{mean}, v{mean}, v{Q}"); b.e(f"v_max_f32 v{Q}, 0, v{Q}")
        ln_finish(b, mean, Q, rs)
        b.e(f"s_add_u32 s35, s35, {AUX+1024}"); b.e(f"v_add_u32 v{tt}, s35, v{ad}")
        b.e(f"ds_write_b64 v{tt}, {vr(mean,2)}"); b.e("s_waitcnt lgkmcnt(0)")
        def both(f, g):
            def h(): f(); g()
            return h
        plan = {2: (False, None, cld, 4, "c"), 3: (False, None, lambda: cld(4, 9), 5, "c"),
                5: [(False, "c", piece(cadd(1, 5), 1), 0, None), (False, None, lambda: flag_try(a, fr, fa), 1, "f")],
                6: (False, None, both(piece(cadd(5, 9), 1), lambda: cld(9, 16)), 7, "e"),
                7: (False, "f", ld(0), 8, "d"), 8: (False, None, ld(8), 8, "d"),
                9: (False, "e", piece(cadd(1, 5), 1), 0, None), 10: (False, None, piece(cadd(5, 8), 1), 0, None), 11: (False, None, piece(sw("v_permlane32_swap_b32") + cout, 1), 0, None),
                12: (False, "d", piece(b.l[:12]), 0, None), 13: (False, None, piece(b.l[12:23]), 0, None), 14: (False, None, piece(b.l[23:]), 0, None)}
    return plan

W2E = int(os.environ.get("W2E", "3"))
def w2_early(a):
    if W2E: w_setup(a, 2, pre=False); w1_slots(a, range(W2E), pace=8)
def w_loader(a, which):
    c = CFG[which]
    if which < 3:
        if which == 1: a.e("s_waitcnt vmcnt(0)")
        a.e("s_barrier"); a.e("s_barrier")
        call(a, after_g1 if which == 1 else after_g2); mstamp(a)
        return
    args = (a, which, c["NW"], c["STB"] // 2048, w_issue, c["NPRE"], c["WR"])
    if which == 4:
        assert c["NW"] == 6 and c["WB"] == CFG[1]["WB"] + 3 * 8192
        a.e("s_cmp_eq_u32 s60, 1"); a.e("s_cbranch_scc1 WL_t1")
        ld_steps(*args, hi=24)
        def first(): w_setup(a, 1, pre=False); w1_slots(a, (11, 12, 15))
        plan = {24: (False, None, first, 12, "w"), 25: (False, None, lambda: w1_slots(a, (13, 14)), 8, "w"),
                26: (False, None, lambda: w1_slots(a, (3, 4)), 8, "w"), 27: (False, None, lambda: w1_slots(a, (5, 6)), 8, "w")}
        ld_steps(*args, plan=plan, lo=24, last=lambda: w1_slots(a, (7, 8)))
        w1_slots(a, (9, 10)); w1_slots(a, range(3 - W1L, 3), pace=8); mstamp(a)
        a.e("s_branch NEXT")
        a.e("WL_t1:")
        ld_steps(*args, hold=HOLD)
        return
    plan = {}
    if W3H: plan[1] = (True, None, lambda: (a.e("s_add_u32 s54, s60, 1"), lds_spin(a, LW + 60, "s54", 6, nap=1)), 0, None)
    if RPL: plan[int(os.environ.get("RPW", "15"))] = (False, None, lambda: call(a, r_pre0), 8, "r")
    ld_steps(*args, plan=plan)
W3H = int(os.environ.get("W3H", "0"))
W1L = int(os.environ.get("W1L", "3"))

B0E = int(os.environ.get("B0E", "1")); RPL = int(os.environ.get("RPL", "1")); RPC = int(os.environ.get("RPC", "1"))
LF1 = os.environ.get("LF1", ""); LF2 = os.environ.get("LF2", "")
RES2 = 160; C2R = 200; SO3 = 238; RES4 = [172, 176, 180, 184, 188, 192, 196, 240]
def g_compute(a, which):
    c = CFG[which]
    WM, WN, MT, NT, KBT, NS, NA, NW, TN16, STB, WB = [c[k] for k in "WM WN MT NT KBT NS NA NW TN16 STB WB".split()]
    v = VA(6); nm = f"G{which}"
    lane = 1; l16 = 2
    t = v(); t2 = v(); pt = v(4, 2)
    NTILE = 29 if which != 4 else 33
    if WN == 2: a.e("s_lshr_b32 s34, s30, 1"); a.e("s_and_b32 s35, s30, 1")
    else: a.e("s_mov_b32 s34, s30"); a.e("s_mov_b32 s35, 0")
    a0 = v(); w0 = v(4, 1); aa = v(); wa = v(4, 1); J = v(); G = v()
    a.e(f"v_and_b32 v{J}, 15, v{lane}"); a.e(f"v_lshrrev_b32 v{G}, 4, v{lane}")
    a.e(f"s_mul_i32 s37, s34, {MT}")
    a.e(f"s_mul_i32 s38, s{NTILE}, {TN16}"); a.e(f"s_mul_i32 s36, s35, {NT}"); a.e("s_add_u32 s38, s38, s36")
    acc = v(MT * NT * 4, 4); NF = MT + NT if which > 2 else 8
    fX = v(NF * 4, 4); fY = v(NF * 4, 4); tmp = v(); tp = v(4, 2)
    def A_(mt, nt): return acc + 4 * (mt * NT + nt)
    def SUBM(r): return f"{vr(r,2)} op_sel_hi:[1,0] neg_lo:[0,1] neg_hi:[0,1]"
    def MULR(r): return f"{vr(r,2)} op_sel:[0,1] op_sel_hi:[1,1]"
    if which in (2, 4):
        res = RES2
        a.e("s_lshr_b32 s36, s38, 1"); spread(a, 39, 36); a.e("s_lshl_b32 s36, s37, 16"); a.e("s_add_u32 s39, s39, s36")
    if which <= 2:
        AB = 176; LO = v(8, 1)
        if which == 1:
            lsrd(a, 8, oX3, XSZ); OOB = MB
            for i in range(4): a.e(f"v_add_u32 v{LO+i}, {(i & 1) * 65536 + (i >> 1) * 4096}, v{l16}")
        else:
            hs_srd(a, 8); OOB = 128 * PITCH
            a.e(f"v_mul_u32_u24 v{LO}, {PITCH}, v{G}"); a.e(f"v_lshl_add_u32 v{LO}, v{J}, 4, v{LO}")
            for i in range(1, 8): a.e(f"v_add_u32 v{LO+i}, {4*PITCH*i}, v{LO}")
        for i in range(4):
            a.e("s_lshr_b32 s36, s67, 2"); a.e(f"s_add_u32 s36, s36, {i}"); a.e("s_and_b32 s36, s36, 3")
            if which == 1: a.e(f"s_lshl_b32 s{44+i}, s36, 14"); a.e("s_lshl_b32 s36, s34, 17")
            else:
                a.e(f"s_mul_i32 s{44+i}, s36, {32*PITCH}")
                a.e("s_xor_b32 s53, s36, s94"); a.e("s_and_b32 s53, s53, 1"); a.e("s_lshl_b32 s53, s53, 13"); a.e(f"s_add_u32 s{44+i}, s{44+i}, s53")
                a.e("s_lshr_b32 s53, s36, 1"); a.e("s_lshl_b32 s53, s53, 4"); a.e("s_add_u32 s53, s53, 16")
                a.e("s_sub_u32 s54, 0, s53"); a.e("s_bitcmp1_b32 s36, 0"); a.e("s_cselect_b32 s53, s53, s54"); a.e(f"s_add_u32 s{44+i}, s{44+i}, s53")
                a.e("s_lshl_b32 s36, s28, 2"); a.e("s_add_u32 s36, s36, s34"); a.e("s_lshl_b32 s36, s36, 9"); a.e("s_add_u32 s36, s36, 16384")
            a.e(f"s_add_u32 s{44+i}, s{44+i}, s36")
        def aload(b, kk):
            if which == 1: return [f"buffer_load_dwordx4 {vr(AB+16*b+8*kk+4*mt,4)}, v{LO+mt+(b&2)}, s[8:11], s44 offen offset:{(b&1)*2048+kk*1024} {LF1}" for mt in range(2)]
            return [f"buffer_load_dwordx4 {vr(AB+16*b+8*kk+4*mt,4)}, v{LO+2*b+kk}, s[8:11], s44 offen offset:{mt*256} {LF2}" for mt in range(2)]
    else:
        a.e(f"s_mul_i32 s36, s34, {MT*2048}"); a.e(f"v_add_u32 v{a0}, s36, v{l16}")
    nwr, wpos = w_bases(a, which, w0, 35, NT, t, t2)
    if which == 3 and not B0E: publish(a, ST_G2S, 4, pt, ctr=48)
    if which == 2:
        a.e(f"s_lshl_b32 s36, s37, 8"); a.e(f"s_add_u32 s36, s36, {LNSL}"); a.e(f"v_lshlrev_b32 v{t2}, 4, v{J}"); a.e(f"v_add_u32 v{t2}, s36, v{t2}")
        for mt in range(MT): a.e(f"ds_read_b64 {vr(fX+2*mt,2)}, v{t2} offset:{mt*256}")
        a.e("s_waitcnt lgkmcnt(0)")
        for mt in range(MT):
            for p in range(NT // 2):
                for e in range(4):
                    X = A_(mt, 2 * p) + 2 * e
                    unpack(a, X, X + 1, res + (mt * (NT // 2) + p) * 4 + e)
                    a.e(f"v_pk_add_f32 {vr(X,2)}, {vr(X,2)}, {SUBM(fX+2*mt)}"); round2(a, X, X + 1, tmp)
                    a.e(f"v_pk_mul_f32 {vr(X,2)}, {vr(X,2)}, {MULR(fX+2*mt)}"); round2(a, X, X + 1, tmp)
    else:
        for i in range(0, MT * NT * 4, 2): a.e(f"v_pk_mov_b32 {vr(acc+i,2)}, 0, 0")
    RX = 160
    def last_res():
        b0 = Rec()
        lsrd(b0, 84, oX3, XSZ); lsrd(b0, 88, oX1P, XSZ)
        b0.e("s_lshl_b32 s40, s31, 17"); b0.e("s_add_u32 s40, s40, s39")
        b0.e("s_xor_b32 s41, s31, 1"); b0.e("s_lshl_b32 s41, s41, 17"); b0.e("s_add_u32 s41, s41, s39")
        for i in range(2):
            b0.e(f"s_add_u32 s36, s40, {i*65536}")
            for p in range(2):
                b0.e(f"buffer_load_dwordx4 {vr(RX+8*(2*i+p),4)}, v{l16}, s[84:87], s36 offen offset:{p*1024} {SC}")
                b0.e(f"buffer_load_dwordx4 {vr(RX+8*(2*i+p)+4,4)}, v{l16}, s[88:91], s36 offen offset:{p*1024} {SC}")
        return b0.l
    def reads(F, kk):
        o = []
        for mt in range(MT): o.append(f"ds_read_b128 {vr(F+4*mt,4)}, v{aa} offset:{mt*256+kk*8192 if which == 2 else mt*2048+kk*1024}")
        for nt in range(NT):
            for h in range(2):
                r, imm = wpos(nt, kk, h)
                o.append(f"ds_read_b64_tr_b16 {vr(F+4*(MT+nt)+2*h,2)}, v{wa+r} offset:{imm}")
        NR = os.environ.get("NOREAD")
        if NR == "N": o = []
        if NR == "A": o = o[MT:]
        if NR == "W": o = o[:MT]
        if NR == "H": o = o[::2]
        if NR == "X": o = o + o[:2]
        if NR == "XX": o = o + o[:MT]
        return o
    def mix(rd, ex):
        rd = list(rd)
        for i, x in enumerate(ex): rd.insert(min(len(rd), (i + 1) * len(rd) // (len(ex) + 1)), x)
        return rd
    def mfmas(F, rd, tail=()):
        n = MT * NT; k = 0; tot = len(rd); span = max(1, n * 3 // 4); done = 0; tail = list(tail); per = -(-len(tail) // max(1, n - span))
        OR = os.environ.get("ORDER", "2")
        order = {"0": [(nt, mt) for nt in range(NT) for mt in range(MT)],
                 "1": [(nt, mt) for mt in range(MT) for nt in range(NT)],
                 "2": [(nt, mt if nt % 2 == 0 else MT - 1 - mt) for nt in range(NT) for mt in range(MT)],
                 "3": [(nt if mt % 2 == 0 else NT - 1 - nt, mt) for mt in range(MT) for nt in range(NT)]}[OR]
        for nt, mt in order:
            if True:
                cc = acc + 4 * (mt * NT + nt)
                if str(which) not in os.environ.get("NOMF", ""): a.e(f"v_mfma_f32_16x16x32_bf16 {vr(cc,4)}, {vr(F+4*(MT+nt),4)}, {vr(F+4*mt,4)}, {vr(cc,4)}")
                k += 1
                while rd and done < (tot * k + span - 1) // span: a.e(rd.pop(0)); done += 1
                if k >= span and k < n:
                    for _ in range(min(per, len(tail))): a.e(tail.pop(0))
        assert not rd and not tail
    def stage(ex=(), ey=(), lim=NS-1, late=False):
        if str(which) in os.environ.get("GST", "") or os.environ.get("JIT"): mstamp(a, True)
        a.e("s_waitcnt lgkmcnt(0)")
        book = ["s_add_u32 s42, s42, 16384", f"s_cmp_eq_u32 s42, {NA*16384}", "s_cselect_b32 s42, 0, s42",
                f"s_add_u32 s48, s48, {STB}", f"s_cmp_eq_u32 s48, {NW*STB}", "s_cselect_b32 s48, 0, s48", f"v_add_u32 v{aa}, s42, v{a0}"]
        if which <= 2 and NX:
            book = ["s_lshr_b64 s[44:45], s[44:45], 4", "s_lshr_b64 s[46:47], s[46:47], 4", "s_and_b32 s42, s44, 7", "s_lshl_b32 s42, s42, 14",
                    "s_and_b32 s48, s46, 15", "s_lshl_b32 s48, s48, 13", f"v_add_u32 v{aa}, s42, v{a0}"]
        book += [f"v_add_u32 v{wa+i}, s48, v{w0+i}" for i in range(nwr)]
        mfmas(fX, mix(reads(fY, 1), ex), book)
        if late:
            a.e("s_waitcnt lgkmcnt(0)"); mfmas(fY, [], ["s_add_u32 s43, s43, 1"])
            if B0E: publish(a, ST_G2S, 4, pt, ctr=48)
            a.e("s_barrier")
            for x in reads(fX, 0): a.e(x)
            return
        a.e("s_waitcnt lgkmcnt(0)"); a.e("s_barrier")
        mfmas(fY, mix(reads(fX, 0), ey), ["s_add_u32 s43, s43, 1", f"s_cmp_lt_u32 s43, {lim}"])
    w00 = c["S0"] * STB
    if which <= 2:
        def wrd(p, b): return [f"ds_read_b64_tr_b16 {vr((fX, fY)[p]+16*kk+4*nt+2*h,2)}, v{w0+nt} offset:{b*STB + wpos(nt, kk, h)[1]}" for kk in range(2) for nt in range(4) for h in range(2)]
        def dmf(b, fill, lo=0, hi=16):
            k = 0
            for kk in range(2):
                for nt in range(4):
                    for mt in ((0, 1) if nt % 2 == 0 else (1, 0)):
                        if lo <= k < hi:
                            a.e(f"v_mfma_f32_16x16x32_bf16 {vr(A_(mt,nt),4)}, {vr((fX, fY)[b&1]+16*kk+4*nt,4)}, {vr(AB+16*b+8*kk+4*mt,4)}, {vr(A_(mt,nt),4)}")
                            for x in fill[k]: a.e(x)
                        k += 1
        def spreadf(l, lo, hi):
            f = [[] for _ in range(16)]
            for i, x in enumerate(l): f[lo + i * (hi - lo) // len(l)].append(x)
            return f
        a.e("s_mov_b32 s43, 0")
        a.e("s_waitcnt lgkmcnt(0)"); a.e("s_barrier")
        for x in aload(0, 0) + aload(0, 1) + aload(1, 0) + aload(1, 1) + wrd(0, 0) + aload(2, 0) + aload(2, 1) + aload(3, 0): a.e(x)
        a.e("s_waitcnt vmcnt(10) lgkmcnt(0)")
        mstamp(a)
        L = a.lab("dm"); a.e(f"{L}:")
        for b in range(4):
            rd = wrd(1 - (b & 1), (b + 1) & 3); ex = [[] for _ in range(16)]
            ex[0], ex[1] = [[x] for x in aload((b - 1) & 3, 1)]
            if b == 0:
                for i, x in enumerate(["s_mov_b32 s44, s45", "s_mov_b32 s45, s46", "s_mov_b32 s46, s47", f"s_mov_b32 s47, {OOB}"]): ex[2 + i].append(x)
            if b == 2:
                ex[2].append("s_add_u32 s43, s43, 1"); ex[3].append("s_cmp_eq_u32 s43, 4")
                for nt, g_ in enumerate((11, 12, 13, 15)): ex[g_].append(f"v_add_u32 v{w0+nt}, {4*STB}, v{w0+nt}")
            ex[7].append("s_waitcnt lgkmcnt(8)")
            ex[8], ex[9] = [[x] for x in aload(b, 0)]
            ex[10].append("s_waitcnt vmcnt(10)")
            fill = [rd[i:i+1] + ex[i] for i in range(16)]
            fill[14] = rd[14:16] + ex[14]; fill[15] = ex[15] + ["s_waitcnt lgkmcnt(8)"]
            if b == 2: fill[15].append(f"s_cbranch_scc1 {L}x")
            if b == 3: fill[15].append(f"s_branch {L}")
            dmf(b, fill)
        a.e(f"{L}x:")
    else:
        a.e("s_mov_b32 s42, 0"); a.e("s_mov_b32 s43, 0"); a.e(f"s_mov_b32 s48, {w00}")
        a.e(f"v_mov_b32 v{aa}, v{a0}")
        for i in range(nwr): a.e(f"v_add_u32 v{wa+i}, {w00}, v{w0+i}")
        if RPC and which == 4:
            a.e("s_cmp_eq_u32 s60, 1"); a.e("s_cbranch_scc1 G4_p1")
            r_pre(a); a.e("s_branch G4_p2"); a.e("G4_p1:")
            for x in last_res(): a.e(x)
            a.e("G4_p2:")
        if not (which == 3 and B0E): a.e("s_waitcnt lgkmcnt(0)"); a.e("s_barrier")
        mstamp(a)
        for x in reads(fX, 0): a.e(x)
    if which == 4:
        def st2(j): return [f"s_add_u32 s36, s44, {j*224*1024}\nbuffer_store_dwordx4 {vr(C2R+4*j,4)}, v{l16}, s[16:19], s36 offen {SC}",
                            f"s_add_u32 s36, s45, {j*224*1024}\nbuffer_store_dwordx2 {vr(C2R+16+2*j,2)}, v{SO3}, s[16:19], s36 offen {SC}"]
        stage(st2(0), st2(1)); stage(st2(2), st2(3)); publish(a, ST_G3B, 4, pt, wait=8)
        L0 = a.lab("mm"); a.e(f"{L0}:"); stage(lim=PUB2); a.e(f"s_cbranch_scc1 {L0}")
        publish(a, ST_G3, 4, pt)
    if which == 3 and os.environ.get("PEEL3", "1") == "1": stage(late=True)
    if which > 2:
        L = a.lab("mm"); a.e(f"{L}:")
        stage()
        a.e(f"s_cbranch_scc1 {L}")
        a.e("s_waitcnt lgkmcnt(0)")
    b0 = Rec()
    if which == 4:
        a.e("s_cmp_eq_u32 s60, 1"); a.e("s_cbranch_scc1 G4_last")
        if not RPC: r_pre(b0)
    if which == 1:
        lsrd(b0, 24, oX3, XSZ)
        b0.e("s_lshr_b32 s36, s38, 1"); spread(b0, 40, 36); b0.e("s_lshl_b32 s36, s37, 16"); b0.e("s_add_u32 s40, s40, s36")
        for mt in range(MT):
            b0.e(f"s_add_u32 s36, s40, {mt*65536}")
            for p in range(NT // 2): b0.e(f"buffer_load_dwordx4 {vr(RES2+(mt*(NT//2)+p)*4,4)}, v{l16}, s[24:27], s36 offen offset:{p*1024} {SC}")
    early = os.environ.get("EARLY", "1") == "1"
    if which <= 2: dmf(3, spreadf(b0.l, 0, 8), 0, 8)
    else: mfmas(fX, reads(fY, 1) + (b0.l if early else []))
    a.e("s_waitcnt lgkmcnt(0)")
    if which not in DL: a.e("s_barrier")
    b = Rec()
    if not early: b.l += b0.l
    if which in (1, 3):
        so = SO3 if which == 3 else a0; cs = fX; lns = fX + 4 * NT
        assert which == 1 or (fY <= C2R and C2R + 24 <= fY + 4 * NF)
        b.e(f"s_mul_i32 s36, s35, {NT*64}"); b.e(f"s_add_u32 s36, s36, {CSO[which]}"); b.e(f"v_lshlrev_b32 v{t}, 4, v{G}"); b.e(f"v_add_u32 v{t}, s36, v{t}")
        for nt in range(NT): b.e(f"ds_read_b128 {vr(cs+4*nt,4)}, v{t} offset:{nt*64}")
        if which == 3:
            b.e(f"s_lshl_b32 s36, s34, 9"); b.e(f"s_add_u32 s36, s36, {AUX+1024}")
            b.e(f"v_lshlrev_b32 v{t2}, 3, v{J}"); b.e(f"v_add_u32 v{t2}, s36, v{t2}")
            for mt in range(MT): b.e(f"ds_read_b64 {vr(lns+2*mt,2)}, v{t2} offset:{mt*128}")
            lsrd(b, 16, oH2, H2SZ)
            b.e(f"s_mul_i32 s39, s37, {224*1024}")
            for P in range(4):
                b.e("s_lshr_b32 s36, s38, 1"); b.e(f"s_add_u32 s36, s36, {P}"); spread(b, 44 + P, 36); b.e(f"s_add_u32 s{44+P}, s{44+P}, s39")
            b.e("s_lshl_b32 s36, s37, 1"); b.e("s_add_u32 s36, s36, s35"); b.e("s_lshl_b32 s36, s36, 10"); b.e(f"v_add_u32 v{a0}, s36, v{l16}")
            b.e(f"v_lshrrev_b32 v{so}, 1, v{G}"); b.e(f"v_lshlrev_b32 v{so}, 8, v{so}"); b.e(f"v_lshl_add_u32 v{so}, v{J}, 4, v{so}")
            b.e(f"v_and_b32 v{tmp}, 1, v{G}"); b.e(f"v_lshl_add_u32 v{so}, v{tmp}, 3, v{so}")
        else:
            b.e(f"s_lshl_b32 s36, s37, 8"); b.e(f"s_add_u32 s36, s36, {LNSL+8}"); b.e(f"v_lshlrev_b32 v{t2}, 4, v{J}"); b.e(f"v_add_u32 v{t2}, s36, v{t2}")
            for mt in range(MT): b.e(f"ds_read_b64 {vr(lns+2*mt,2)}, v{t2} offset:{mt*256}")
            hs_srd(b, 16)
            b.e(f"v_mul_u32_u24 v{so}, {PITCH}, v{G}"); b.e(f"v_lshl_add_u32 v{so}, v{J}, 4, v{so}")
            b.e(f"s_mul_i32 s39, s38, {2*PITCH}"); b.e("s_lshl_b32 s36, s37, 8"); b.e("s_add_u32 s39, s39, s36"); b.e("s_add_u32 s39, s39, 16384")
            b.e("s_lshl_b32 s36, s28, 11"); b.e("s_add_u32 s39, s39, s36")
            b.e("s_lshr_b32 s36, s29, 2"); b.e("s_xor_b32 s36, s36, s94"); b.e("s_and_b32 s36, s36, 1"); b.e("s_lshl_b32 s36, s36, 13"); b.e("s_add_u32 s39, s39, s36")
            b.e(f"s_add_u32 s40, s39, {4*PITCH}")
    if which == 2:
        lsrd(b, 16, oX1P, XSZ); lsrd(b, 44, oST2, 24576)
    if which == 4:
        b.e(f"s_mul_i32 s36, s31, {oP1-oP0}"); b.e(f"s_add_u32 s36, s36, {oP0}")
        b.e("s_add_u32 s16, s62, s36"); b.e("s_addc_u32 s17, s63, 0"); b.e(f"s_mov_b32 s18, {XSZ}"); b.e("s_mov_b32 s19, 0x20000")
    if which <= 2: dmf(3, spreadf(b.l, 8, 15), 8, 16)
    else: mfmas(fY, b.l)
    mstamp(a)
    if which in (1, 3):
        AB = v(2 * MT, 2) if which == 1 else fY + 4
        def consts():
            for mt in range(MT):
                r = lns + 2 * mt + 1
                a.e(f"v_mul_f32 v{AB+2*mt}, {f32(GC1)}, v{r}"); a.e(f"v_mul_f32 v{AB+2*mt+1}, v{r}, v{r}")
                a.e(f"v_mul_f32 v{AB+2*mt+1}, v{AB+2*mt+1}, v{AB+2*mt}"); a.e(f"v_mul_f32 v{AB+2*mt+1}, {f32(0.044715)}, v{AB+2*mt+1}")
                a.e(f"v_rcp_f32 v{r}, v{r}")
        def act(mt, nt):
            A = A_(mt, nt); P_ = [(A, tp), (A + 2, tp + 2)]; L_ = vr(lns + 2 * mt, 2); K_ = vr(AB + 2 * mt, 2)
            for h in range(2):
                a.e(f"v_pk_fma_f32 {vr(A+2*h,2)}, {L_}, {vr(cs+4*nt+2*h,2)}, {vr(A+2*h,2)} op_sel_hi:[0,1,1] neg_lo:[1,0,0] neg_hi:[1,0,0]")
            for x, u in P_: a.e(f"v_pk_mul_f32 {vr(u,2)}, {vr(x,2)}, {vr(x,2)}")
            for x, u in P_: a.e(f"v_pk_fma_f32 {vr(u,2)}, {vr(u,2)}, {K_}, {K_} op_sel:[0,1,0] op_sel_hi:[1,1,0]")
            for x, u in P_: a.e(f"v_pk_mul_f32 {vr(u,2)}, {vr(u,2)}, {vr(x,2)}")
            for i in range(4): a.e(f"v_exp_f32 v{tp+i}, v{tp+i}")
            for x, u in P_: a.e(f"v_pk_fma_f32 {vr(u,2)}, {vr(u,2)}, {L_}, {L_} op_sel:[0,1,1] op_sel_hi:[1,1,1]")
            for i in range(4): a.e(f"v_rcp_f32 v{tp+i}, v{tp+i}")
            for x, u in P_: a.e(f"v_pk_mul_f32 {vr(x,2)}, {vr(x,2)}, {vr(u,2)}")
        def group(par, mt, nts, dst=None):
            for nt in nts: act(mt, nt)
            T = par * NT + nts[0]; P = (T >> 1) - ((par * NT) >> 1); B = A_(mt, nts[0]); D = B if dst is None else dst
            for k in range(2 * len(nts)): a.e(f"v_cvt_pk_bf16_f32 v{D+k}, v{B+2*k}, v{B+2*k+1}")
            if which == 3: return [f"s_add_u32 s36, s{44+P}, {mt*224*1024}", f"buffer_store_dwordx4 {vr(B,4)}, v{l16}, s[16:19], s36 offen {SC}"]
            return [f"buffer_store_dwordx4 {vr(B,4)}, v{so}, s[16:19], s{39+P} offen offset:{mt*256} {SC}"]
        def body(par):
            if which == 1: gs = [(0, 1), (2, 3)]
            else: gs = [(0, 1), (2, 3), (4, 5), (6,)] if par == 0 else [(1, 2), (3, 4), (5, 6), (0,)]
            k = 0; pend = []; sent = 0
            for gi_, g_ in enumerate(gs):
                for mt in range(MT):
                    if which == 3 and k == C0PUB: publish(a, ST_G3A, 4, pt, wait=sent - 4, ctr=48); mstamp(a)
                    st_ = group(par, mt, g_, None if gi_ < 2 else C2R + 4 * mt if gi_ == 2 else C2R + 16 + 2 * mt); k += 1
                    if which == 3 and gi_ < 3:
                        a.e(f"ds_write_b128 v{a0}, {vr(A_(mt, g_[0]) if gi_ < 2 else C2R + 4 * mt, 4)} offset:{gi_*16384 + mt*2048}")
                    if gi_ < 2: pend.append(st_)
                    n = len(pend) if (which == 1 or k <= 4 or k == 16) else 0 if k <= STQ else min(1, len(pend))
                    for _ in range(n):
                        for x in pend.pop(0): a.e(x)
                        sent += 1
            if which == 3:
                a.e("s_waitcnt lgkmcnt(0)")
                if par == 0: a.e("s_mov_b32 s44, s46"); a.e("s_mov_b32 s45, s47")
                else: a.e("s_add_u32 s45, s44, 512"); a.e("s_mov_b32 s44, s47")
        a.e("s_waitcnt lgkmcnt(0)")
        consts()
        if which == 3:
            a.e("s_cmp_eq_u32 s35, 1"); a.e(f"s_cbranch_scc1 {nm}_e1")
            body(0); a.e(f"s_branch {nm}_e2"); a.e(f"{nm}_e1:"); body(1); a.e(f"{nm}_e2:")
        else: body(0)
    if which == 2:
        xf = v(2, 2); S = v(2 * MT, 2); pp = v(2, 2); mn = v(2, 2)
        for mt in range(MT):
            a.e(f"s_add_u32 s36, s39, {mt*65536}")
            for p in range(NT // 2):
                R = res + (mt * (NT // 2) + p) * 4
                for e in range(4):
                    X = A_(mt, 2 * p) + 2 * e
                    a.e(f"v_cvt_pk_bf16_f32 v{R+e}, v{X}, v{X+1}")
                a.e(f"buffer_store_dwordx4 {vr(R,4)}, v{l16}, s[16:19], s36 offen offset:{p*1024} {SC}")
        if which in DL: a.e("s_barrier")
        if OWN3:
            a.e("s_lshl_b32 s36, s37, 11"); a.e(f"v_add_u32 v{t2}, s36, v{l16}")
            for i in range(4): a.e(f"ds_write_b128 v{t2}, {vr(res+4*i,4)} offset:{1024*i}")
        for i in range(MT * NT * 2): unpack(a, acc + 2 * i, acc + 2 * i + 1, res + i)
        mstamp(a)
        publish(a, which, 4, pt)
        if B0E: a.e("s_waitcnt lgkmcnt(0)"); a.e("s_barrier")
        mstamp(a)
        for mt in range(MT):
            B = A_(mt, 0); Sm = S + 2 * mt
            a.e(f"v_pk_add_f32 {vr(pp,2)}, {vr(B,2)}, {vr(B+2,2)}"); a.e(f"v_pk_mul_f32 {vr(xf,2)}, {vr(B,2)}, {vr(B,2)}")
            for i in range(1, NT * 2):
                if i > 1: a.e(f"v_pk_add_f32 {vr(pp,2)}, {vr(pp,2)}, {vr(B+2*i,2)}")
                a.e(f"v_pk_fma_f32 {vr(xf,2)}, {vr(B+2*i,2)}, {vr(B+2*i,2)}, {vr(xf,2)}")
            a.e(f"v_add_f32 v{Sm}, v{pp}, v{pp+1}"); a.e(f"v_add_f32 v{Sm+1}, v{xf}, v{xf+1}")
            for op in ("v_permlane16_swap_b32", "v_permlane32_swap_b32"):
                for k in range(2): a.e(f"v_mov_b32 v{pp+k}, v{Sm+k}")
                for k in range(2): a.e(f"{op} v{Sm+k}, v{pp+k}")
                a.e(f"v_pk_add_f32 {vr(Sm,2)}, {vr(Sm,2)}, {vr(pp,2)}")
        a.e(f"v_cmp_eq_u32 vcc, 0, v{G}"); a.e(f"v_cndmask_b32 v{S}, v{S+2}, v{S}, vcc"); a.e(f"v_cndmask_b32 v{S+1}, v{S+3}, v{S+1}, vcc")
        spread(a, 40, 29); a.e("s_lshl_b32 s36, s34, 8"); a.e("s_add_u32 s40, s40, s36")
        a.e(f"v_lshlrev_b32 v{t2}, 3, v{lane}")
        a.e("s_bfm_b64 exec, 32, 0")
        a.e(f"buffer_store_dwordx2 {vr(S,2)}, v{t2}, s[44:47], s40 offen {SC}")
        a.e("s_mov_b64 exec, -1")
    if which == 4:
        for mt in range(MT):
            a.e(f"s_add_u32 s36, s39, {mt*65536}")
            for p in range(NT // 2):
                B = A_(mt, 2 * p)
                for e in range(4): a.e(f"v_cvt_pk_bf16_f32 v{B+e}, v{B+2*e}, v{B+2*e+1}")
                a.e(f"buffer_store_dwordx4 {vr(B,4)}, v{l16}, s[16:19], s36 offen offset:{p*1024} {SC}")
    if which != 2:
        if which in DL: a.e("s_barrier")
        mstamp(a)
        if which != 3: publish(a, which, 4, pt)
        mstamp(a)
    if which == 4:
        a.e("s_branch NEXT")
        a.e("G4_last:")
        PX = 208; oa = 224; xf = 226
        mfmas(fX, reads(fY, 1) + [f"s_load_dwordx2 s[6:7], s[0:1], {D_OUT}"] + ([] if RPC else last_res()))
        a.e("s_waitcnt lgkmcnt(0)")
        b = Rec()
        lsrd(b, 16, oP0, XSZ)
        b.srd(20, 6, 4 * MB)
        b.e("s_lshl_b32 s44, s29, 2"); b.e("s_add_u32 s44, s44, s30"); b.e("s_lshl_b32 s44, s44, 7"); b.e("s_xor_b32 s45, s44, 4096")
        b.e("s_add_u32 s44, s44, s55"); b.e(f"s_add_u32 s44, s44, {oFP}"); b.e("s_add_u32 s45, s45, s55"); b.e(f"s_add_u32 s45, s45, {oFP}")
        b.e(f"v_mov_b32 v{pt+1}, s45"); b.e(f"v_mov_b32 v{pt+2}, s52"); b.e(f"v_mov_b32 v{pt+3}, 0")
        b.e("s_lshl_b32 s46, s28, 3"); b.e("s_add_u32 s46, s46, s37"); b.e("s_lshl_b32 s47, s31, 1"); b.e("s_add_u32 s46, s46, s47"); b.e("s_lshl_b32 s46, s46, 15")
        b.e("s_lshl_b32 s47, s38, 5"); b.e("s_add_u32 s46, s46, s47"); b.e(f"s_add_u32 s47, s46, {16*2048}")
        b.e(f"v_and_b32 v{oa+1}, 1, v{G}"); b.e(f"v_lshlrev_b32 v{oa}, 11, v{J}"); b.e(f"v_lshl_add_u32 v{oa}, v{oa+1}, 5, v{oa}")
        b.e(f"v_lshrrev_b32 v{oa+1}, 1, v{G}"); b.e(f"v_lshl_add_u32 v{oa}, v{oa+1}, 4, v{oa}")
        FULLN = os.environ.get("FULLN", "1") == "1"
        if FULLN:
            b.e(f"v_cmp_gt_u32 s[48:49], 8, v{J}")
            b.e(f"v_lshrrev_b32 v{oa+1}, 3, v{J}"); b.e(f"v_mul_u32_u24 v{oa+1}, {8*2048 - 64}, v{oa+1}"); b.e(f"v_sub_u32 v{oa}, v{oa}, v{oa+1}")
            b.e(f"v_add_u32 v{oa+1}, {8*2048}, v{oa}")
        mfmas(fY, b.l)
        mstamp(a)
        a.e("s_cmp_eq_u32 s31, 0"); a.e("s_cbranch_scc1 G4_k0")
        for i in range(32): a.e(f"v_swap_b32 v{acc+i}, v{acc+32+i}")
        a.e("G4_k0:")
        for i in range(2):
            a.e(f"s_add_u32 s36, s41, {i*65536}")
            for p in range(2):
                B = A_(2 + i, 2 * p)
                for e in range(4): a.e(f"v_cvt_pk_bf16_f32 v{B+e}, v{B+2*e}, v{B+2*e+1}")
                a.e(f"buffer_store_dwordx4 {vr(B,4)}, v{l16}, s[16:19], s36 offen offset:{p*1024} {SC}")
        def addp(k, R):
            B = A_(k >> 1, 2 * (k & 1))
            for e in range(4):
                unpack(a, xf + 2 * (e & 1), xf + 1 + 2 * (e & 1), R + e)
                a.e(f"v_pk_add_f32 {vr(B+2*e,2)}, {vr(B+2*e,2)}, {vr(xf+2*(e&1),2)}")
        a.e("s_waitcnt vmcnt(4)")
        for k in range(4): addp(k, RX + 8 * k)
        a.e("s_waitcnt vmcnt(0)")
        a.e("s_mov_b64 exec, 1"); a.e(f"buffer_store_dword v{pt+2}, v{pt+3}, s[56:59], s44 offen {SC}"); a.e("s_mov_b64 exec, -1")
        mstamp(a)
        for k in range(4): addp(k, RX + 8 * k + 4)
        poll_core(a, pt, [pt + 1], 1, nap=2)
        mstamp(a)
        for i in range(2):
            a.e(f"s_add_u32 s36, s40, {i*65536}")
            for p in range(2): a.e(f"buffer_load_dwordx4 {vr(PX+4*(2*i+p),4)}, v{l16}, s[16:19], s36 offen offset:{p*1024} {SC}")
        for k in range(4):
            a.e(f"s_waitcnt vmcnt({3 - (k & 1) if FULLN else 3})")
            addp(k, PX + 4 * k)
            B = A_(k >> 1, 2 * (k & 1))
            if os.environ.get("EPS"):
                for e in range(8): a.e(f"v_mul_f32 v{B+e}, {f32(1 + float(os.environ['EPS']) * (1 if e & 1 else -1))}, v{B+e}")
            for e in range(4): a.e(f"v_cvt_pk_bf16_f32 v{B+e}, v{B+2*e}, v{B+2*e+1}")
            for e in range(2): a.e(f"v_permlane16_swap_b32 v{B+e}, v{B+2+e}")
            if not FULLN: a.e(f"buffer_store_dwordx4 {vr(B,4)}, v{oa}, s[20:23], s{46+(k>>1)} offen offset:{64*(k&1)} {os.environ.get('OS', '')}")
            elif k & 1:
                X, Y, T = B - 8, B, B + 4
                for e in range(4): a.e(f"v_cndmask_b32 v{T+e}, v{X+e}, v{Y+e}, s[48:49]")
                for e in range(4): a.e(f"v_mov_b32_dpp v{X+4+e}, v{T+e} row_ror:8 row_mask:0xf bank_mask:0xf")
                for e in range(4): a.e(f"v_cndmask_b32 v{X+e}, v{X+4+e}, v{X+e}, s[48:49]"); a.e(f"v_cndmask_b32 v{Y+e}, v{Y+e}, v{X+4+e}, s[48:49]")
                a.e(f"buffer_store_dwordx4 {vr(X,4)}, v{oa}, s[20:23], s{46+(k>>1)} offen {SC}")
                a.e(f"buffer_store_dwordx4 {vr(Y,4)}, v{oa+1}, s[20:23], s{46+(k>>1)} offen {SC}")
        a.e("s_branch K_fin")
    assert v.hi <= {1: RES2, 2: RES2, 3: SO3, 4: RX}[which], v.hi
    return v.hi

def k_mega(a):
    nm = KNAME; a.begin_kernel(nm)
    a.e("s_cmp_ge_u32 s2, 256"); a.e("s_cbranch_scc1 K_end")
    a.e(f"s_load_dwordx8 s[8:15], s[0:1], {A_K}"); a.e(f"s_load_dwordx2 s[6:7], s[0:1], {A_Q}"); a.e(f"s_load_dwordx8 s[68:75], s[0:1], {B_W1}")
    a.e(f"s_load_dwordx2 s[4:5], s[0:1], {D_WS}"); a.e(f"s_load_dwordx2 s[84:85], s[0:1], {D_DBG}"); a.e("s_memrealtime s[46:47]")
    a.e("v_lshrrev_b32 v1, 6, v0"); a.e("v_readfirstlane_b32 s30, v1")
    if CODEPF:
        a.e("s_getpc_b64 s[48:49]"); a.e("K_pc:")
        a.e("s_lshr_b32 s36, s2, 3"); a.e("s_lshl_b32 s36, s36, 11")
        a.e("v_lshlrev_b32 v4, 2, v0"); a.e("v_add_u32 v4, s36, v4")
        a.e("v_cmp_gt_u32 vcc, K_end-K_pc-8, v4"); a.e("s_and_saveexec_b64 s[36:37], vcc"); a.e("s_cbranch_execz K_3")
        a.e("v_mov_b32 v5, s49"); a.e("v_add_co_u32 v4, vcc, s48, v4"); a.e("v_addc_co_u32 v5, vcc, 0, v5, vcc")
        a.e("global_load_dword v250, v[4:5], off")
        a.e("K_3:"); a.e("s_mov_b64 exec, -1")
    for _ in range(int(os.environ.get("SDELAY", "0"))): a.e("s_sleep 127")
    front_loads(a)
    a.e("v_and_b32 v1, 63, v0"); a.e("v_lshlrev_b32 v2, 4, v1"); a.e("v_lshlrev_b32 v3, 2, v1")
    a.e("s_and_b32 s32, s2, 7"); a.e("s_lshr_b32 s33, s2, 3")
    a.e("s_and_b32 s28, s32, 2"); a.e("s_lshr_b32 s34, s32, 2"); a.e("s_or_b32 s28, s28, s34")
    a.e("s_lshl_b32 s28, s28, 2"); a.e("s_and_b32 s34, s33, 3"); a.e("s_add_u32 s28, s28, s34")
    a.e("s_and_b32 s31, s32, 1"); a.e("s_lshr_b32 s33, s33, 2")
    a.e("s_lshl_b32 s29, s31, 3"); a.e("s_add_u32 s29, s29, s33")
    if MAP == 8:
        a.e("s_lshr_b32 s33, s2, 3")
        a.e("s_and_b32 s28, s33, 4"); a.e("s_lshl_b32 s28, s28, 1"); a.e("s_and_b32 s34, s32, 4"); a.e("s_or_b32 s28, s28, s34"); a.e("s_and_b32 s34, s33, 3"); a.e("s_or_b32 s28, s28, s34")
        a.e("s_and_b32 s29, s32, 3"); a.e("s_lshl_b32 s29, s29, 2"); a.e("s_lshr_b32 s33, s33, 3"); a.e("s_or_b32 s29, s29, s33")
        a.e("s_lshr_b32 s31, s29, 3"); a.e("s_and_b32 s33, s29, 7")
    if MAP == 2:
        a.e("s_lshr_b32 s33, s2, 3")
        a.e("s_and_b32 s28, s32, 2"); a.e("s_lshl_b32 s28, s28, 2"); a.e("s_and_b32 s34, s32, 4"); a.e("s_or_b32 s28, s28, s34")
        a.e("s_and_b32 s34, s32, 1"); a.e("s_lshl_b32 s34, s34, 1"); a.e("s_or_b32 s28, s28, s34"); a.e("s_and_b32 s34, s33, 1"); a.e("s_or_b32 s28, s28, s34")
        a.e("s_lshr_b32 s29, s33, 1"); a.e("s_lshr_b32 s31, s29, 3"); a.e("s_and_b32 s33, s29, 7")
    a.e({4: "s_lshl_b32 s67, s33, 1", 8: "s_lshl_b32 s67, s33, 2", 2: "s_mov_b32 s67, s29"}[MAP]); a.e(f"s_and_b32 s67, s67, {int(os.environ.get('RMASK', '0'))}")
    a.e("s_mov_b32 s60, 0"); a.e("s_mov_b32 s61, 40000"); a.e("s_mov_b32 s52, 0")
    a.e("s_mov_b32 s55, 0"); a.e("s_mov_b32 s92, 0"); a.e("s_mov_b32 s93, 0"); a.e("s_mov_b32 s94, 0")
    a.srd(56, 4, HSB)
    if os.environ.get("FIXT"): a.e("s_mov_b32 s101, s46")
    r_addr(a)
    a.e(f"s_add_u32 s62, s4, {LB0}"); a.e("s_addc_u32 s63, s5, 0")
    if STAMP:
        a.e("s_mov_b32 s66, 1"); a.e("v_mov_b32 v255, -1"); a.e("s_mov_b32 s95, 0"); a.e("v_writelane_b32 v255, s46, 0")
    mstamp(a)
    if os.environ.get("WBENCH"):
        a.e("s_waitcnt vmcnt(0)"); a.e("s_barrier")
        a.e("s_cmp_lt_u32 s30, 6"); a.e("s_cbranch_scc1 WB_end")
        for w in (1, 2, 3, 4):
            mstamp(a); w_setup(a, w); a.e("s_waitcnt vmcnt(0)"); mstamp(a); a.e("s_sleep 40")
        a.e("WB_end:"); a.e("s_branch K_dump")
    front_a(a); mstamp(a)
    for r in range(238, 248): a.e(f"v_mov_b32 v{r}, 0")
    a.e("s_cmp_ge_u32 s30, 4"); a.e("s_cbranch_scc1 FR_b")
    front_conv(a); hi = 0
    mstamp(a)
    front_arrive(a, True)
    a.e("s_branch FR_end")
    a.e("FR_b:")
    front_b(a)
    a.e("FR_end:")
    mstamp(a)
    a.e("LAYER:")
    if os.environ.get("XDELAY"): a.e(f"s_sleep {os.environ['XDELAY']}")
    hi = max(hi, r_stage(a, False))
    mstamp(a)
    a.e("s_cmp_ge_u32 s30, 4"); a.e("s_cbranch_scc1 LOADERS")
    if CPRIO: a.e(f"s_setprio {CPRIO}")
    for w in (1, 2, 3, 4):
        a.lines.append(f"; ---- G{w}: compute waves (set-up, K loop, epilogue, publish)")
        hi = max(hi, g_compute(a, w))
    a.e("LOADERS:")
    if PRIO: a.e(f"s_setprio {PRIO}")
    a.e("s_cmp_ge_u32 s30, 6"); a.e("s_cbranch_scc1 WLOAD")
    for w in (1, 2, 3, 4): a_loader(a, w)
    a.e("s_branch NEXT")
    a.e("WLOAD:")
    a.e("s_cmp_eq_u32 s60, 1"); a.e("s_cbranch_scc1 WL_1")
    w_setup(a, 1, pre=False); w1_slots(a, range(9 - W1G), pace=12); mstamp(a)
    a.e("s_branch WL_2")
    a.e("WL_1:")
    w_setup(a, 1, pre=False); w1_slots(a, range(3 - W1L), pace=12)
    a.e("WL_2:")
    for w in (1, 2, 3, 4):
        w_loader(a, w)
        if w == 2:
            c = CFG[3]; w_setup(a, 3, pre=False); a.e(f"s_mov_b32 s42, {(c['S0'] + 2) % c['NW'] * c['STB']}"); a.e("s_mov_b32 s44, 2")
        if w == 3: w_setup(a, 4)
    a.e("NEXT:")
    a.e("s_setprio 0")
    a.e("s_add_u32 s60, s60, 1"); a.e(f"s_add_u32 s55, s55, {LSTR}")
    a.e(f"s_add_u32 s62, s62, {LSTR}"); a.e("s_addc_u32 s63, s63, 0")
    a.e("s_branch LAYER")
    a.e("K_fin:")
    if os.environ.get("FIXT"):
        a.e("FX_l:"); a.e("s_sleep 4"); a.e("s_memrealtime s[64:65]"); a.e("s_waitcnt lgkmcnt(0)"); a.e("s_sub_u32 s64, s64, s101")
        if os.environ.get("FIX0"): a.e("s_add_u32 s64, s64, s101"); a.e("s_lshl_b32 s64, s64, 6"); a.e("s_sub_u32 s64, s64, s52"); a.e("s_lshr_b32 s64, s64, 6")
        a.e(f"s_cmp_lt_u32 s64, {os.environ['FIXT']}"); a.e("s_cbranch_scc1 FX_l")
    if STAMP:
        a.e("K_dump:")
        a.e("s_waitcnt vmcnt(0)")
        mstamp(a)
        a.srd(96, 4, 16 * MB, off=200 * MB)
        a.e("s_lshl_b32 s66, s2, 3"); a.e("s_add_u32 s66, s66, s30"); a.e("s_lshl_b32 s66, s66, 8")
        a.e("v_writelane_b32 v255, s95, 63")
        a.e("buffer_store_dword v255, v3, s[96:99], s66 offen")
        if os.environ.get("DBGOUT"):
            a.e("s_cmp_lg_u32 s66, 0"); a.e("s_cbranch_scc1 K_end")
            a.e(f"s_load_dwordx2 s[96:97], s[0:1], {D_DBG}"); a.e("s_mov_b32 s98, 64"); a.e("s_waitcnt lgkmcnt(0)")
            a.e("v_readlane_b32 s64, v255, 0"); a.e("v_mov_b32 v10, 0")
            for i, j in enumerate(eval(os.environ["DBGOUT"])):
                a.e(f"v_readlane_b32 s65, v255, {j}"); a.e("s_sub_u32 s65, s65, s64"); a.e("v_mov_b32 v11, s65")
                a.e(f"buffer_store_dword v11, v10, s[96:99], 0 offen offset:{8+4*i}")
    a.e("s_endpgm")
    emit_subs(a)
    a.e("K_end:")
    assert hi <= PV
    a.end_kernel(nm, 256)
    if TAB: tab_data(a)
    a.launches.append(f"; @launch grid=(256,1,1) block=(512,1,1) lds={LDS_TOTAL}")

HEADER = open("interleave_layers__ssm_conv_h3__mixer_s_mlp__prompt.s.ref").read().split("; Override launch")[0]
DOC = """; One persistent kernel, 256 workgroups x 8 waves (one per CU), generated by dev/gen23.py.
"""
def main(out):
    a = Asm()
    k_mega(a)
    DS = os.environ.get("DS")
    if DS:
        o = []
        for l in a.lines:
            o.append(l)
            if "buffer_store_dwordx" in l and "sc1" in l and any(k in l for k in DS.split(",")): o.append(l.replace(" sc1", ""))
        a.lines = o
    notes = {
        "K_pc:": "each workgroup reads 2 KB of this kernel's code so that later instruction fetches are served on chip",
        "KV_t0:": "k / v / tap loads of the u^T tile (64 times x 128 channels); workgroup 0 has posted the launch tag (a clock value) in d_debug",
        "HB_2:": "u^T tile out, arrival counters initialised to the tag, shifted filter copies into LDS, LayerNorm(q)",
        "CV_w:": "long causal convolution as Toeplitz MFMAs, one channel per wave",
        "FR_b:": "waves 4-7 beside the convolution: memory-locality vote (timed loads, layout choice only), weight column sums, weight touches",
        "LAYER:": "row stage: residual sums, LayerNorm chain, x + LN(x)*y for 8 rows per workgroup",
        "LOADERS:": "waves 4,5: activation tiles by LDS-DMA (after the producers' counters are complete)",
        "WLOAD:": "waves 6,7: weight tiles by LDS-DMA in their original layout (read back with transposing LDS loads)",
        "G4_last:": "last layer: the two K halves exchange half tiles, add the residuals and write the output",
    }
    o = []
    for l in a.lines:
        if l.strip() in notes: o.append("; ---- " + notes[l.strip()])
        if l.strip().startswith("s_sleep"): l += "    ; back-off inside a wait loop"
        o.append(l)
    a.lines = o
    open(out, "w").write(a.text(HEADER + DOC))
    print("nops added:", a.nops_added)

if __name__ == "__main__":
    main(sys.argv[1] if len(sys.argv) > 1 else "interleave_layers__ssm_conv_h3__mixer_s_mlp__prompt.s")
```

```python
import sys, os, math, struct
sys.path.insert(0, "dev")
from asmgen import Asm

KNAME = "interleave_layers__ssm_conv_h3__mixer_s_mlp__prompt_kernel"
MB = 1 << 20
UT, Y = 24 * MB, 28 * MB
CSP = {1: 20 * MB, 3: 20 * MB + 128 * 1024}
A_Q, A_K, A_V, A_SH, A_SSMK, A_SSMD, B_X, B_W1, B_W2, B_W3, B_W4, D_OUT, D_DBG, D_WS = [8 * i for i in range(14)]
STAMP = int(os.environ.get("STAMP", "0"))
def f32(x): return "0x%08x" % struct.unpack("<I", struct.pack("<f", x))[0]
GC1 = -2.0 * math.sqrt(2.0 / math.pi) * math.log2(math.e)
GC2 = GC1 * 0.044715

class VA:
    def __init__(self, start=1): self.n = start; self.hi = start
    def __call__(self, cnt=1, al=None):
        if al is None: al = 2 if cnt > 1 else 1
        self.n = (self.n + al - 1) // al * al
        r = self.n; self.n += cnt; self.hi = max(self.hi, self.n); return r
def vr(b, n): return f"v[{b}:{b+n-1}]" if n > 1 else f"v{b}"

def unpack(a, lo, hi, src):
    a.e(f"v_lshlrev_b32 v{lo}, 16, v{src}")
    a.e(f"v_and_b32 v{hi}, 0xffff0000, v{src}")
RND = int(os.environ.get("RND", "0"))
def round2(a, x, y, tmp):
    if not RND: return
    a.e(f"v_cvt_pk_bf16_f32 v{tmp}, v{x}, v{y}")
    unpack(a, x, y, tmp)
def round1(a, x):
    if not RND: return
    a.e(f"v_cvt_pk_bf16_f32 v{x}, v{x}, v{x}")
    a.e(f"v_lshlrev_b32 v{x}, 16, v{x}")
def red_g(a, x, t):
    a.e(f"v_mov_b32 v{t}, v{x}"); a.e(f"v_permlane16_swap_b32 v{x}, v{t}"); a.e(f"v_add_f32 v{x}, v{x}, v{t}")
    a.e(f"v_mov_b32 v{t}, v{x}"); a.e(f"v_permlane32_swap_b32 v{x}, v{t}"); a.e(f"v_add_f32 v{x}, v{x}, v{t}")
def ln_finish(a, mean, var, rs, s=None):
    round1(a, mean); round1(a, var)
    a.e(f"v_add_f32 v{var}, {f32(1e-5)}, v{var}"); round1(a, var)
    if not RND and s is None: a.e(f"v_rsq_f32 v{rs}, v{var}"); return
    a.e(f"v_sqrt_f32 v{var}, v{var}"); round1(a, var)
    if s is not None: a.e(f"v_mov_b32 v{s}, v{var}")
    a.e(f"v_rcp_f32 v{rs}, v{var}")


FLG = 22 * MB + int(os.environ.get("FOFF", "0"))
LB0, LSTR, GSTR = 32 * MB, 64 * MB, 8 * MB
oH2 = 0; oSM = 1792 * 1024; oFP = 16384; oST2 = oSM + 32768; oLNS = oSM + 65536
oX3, oX1P, oP0, oP1 = [4 * MB + i * 512 * 1024 for i in range(4)]
XSZ = 512 * 1024 - 8192; H2SZ = 1792 * 1024 - 8192
HSB = 160 * MB; PITCH = 65536 + int(os.environ.get("SKEW", "0")); oHS = None
def fso(stage): return int(stage * 256)
def spread(a, d, src):
    a.e(f"s_lshr_b32 s53, s{src}, 3"); a.e("s_lshl_b32 s53, s53, 14"); a.e(f"s_and_b32 s{d}, s{src}, 7"); a.e(f"s_lshl_b32 s{d}, s{d}, 10"); a.e(f"s_add_u32 s{d}, s{d}, s53")
ST_R, ST_G1, ST_G2, ST_G3, ST_G4, ST_R2, ST_G3B, ST_G3A = range(8); ST_G2S = 5.5
F_KVT, F_FRONT, F_CS = FLG, FLG + 32768, FLG + 49152
LDS_TOTAL = 163840
AUX = LDS_TOTAL - 4096
SC = "sc1"
PSLEEP = int(os.environ.get("PSLEEP", "5"))
ROT = int(os.environ.get("ROT", "1"))
PACE = int(os.environ.get("PACE", "8"))
PDEPTH = int(os.environ.get("PDEPTH", "1"))
WROT = int(os.environ.get("WROT", "1"))
PRIO = int(os.environ.get("PRIO", "0"))
STQ = int(os.environ.get("STQ", "12"))
CPRIO = int(os.environ.get("CPRIO", "0"))
FSLEEP = int(os.environ.get("FSLEEP", "3"))
CSPRIO = int(os.environ.get("CSPRIO", "0"))
NT = os.environ.get("NT", "nt"); HALO = int(os.environ.get("HALO", "0")); NTK = os.environ.get("NTK", "" if HALO else NT); NTH = os.environ.get("NTH", NT)
W1F = int(os.environ.get("W1F", "7"))
WSC = eval(os.environ.get("WSC", "{}"))
TLBW = int(os.environ.get("TLBW", "0"))
T12 = eval(os.environ.get("T12", "{}"))
T23 = eval(os.environ.get("T23", "()"))
OWN3 = int(os.environ.get("OWN3", "1"))
PUB2 = int(os.environ.get("PUB2", "4"))
MAP = int(os.environ.get("MAP", "4"))
HSPLIT = int(os.environ.get("HSPLIT", "2"))
W1G = int(os.environ.get("W1G", "9"))
PWAIT = int(os.environ.get("PWAIT", "8"))
DL = eval(os.environ.get("DL", "[2,4]"))
PACES = eval(os.environ.get("PACES", "{4:4}"))
C0PUB = int(os.environ.get("C0PUB", "5"))
LNSL = AUX + 1024

CFG = {1: dict(WM=4, WN=1, MT=2, NT=4, KBT=32, NS=16, NA=1.5, NW=16, A=oX3, W=B_W1, LDW=2048),
       2: dict(WM=4, WN=1, MT=2, NT=4, KBT=32, NS=16, NA=0, NW=16, A=oHS, W=B_W2, LDW=2048),
       3: dict(WM=2, WN=2, MT=4, NT=7, KBT=32, NS=16, NA=3, NW=3, A=oX1P, W=B_W3, LDW=7168, NPRE=2, WR=1, S0=2, WB=73728),
       4: dict(WM=2, WN=2, MT=4, NT=4, KBT=112, NS=28, NA=3, NW=6, A=oH2, W=B_W4, LDW=2048)}
for w, d in eval(os.environ.get("CFG", "{}")).items(): CFG[w].update(d)
for c in CFG.values():
    c.setdefault("NPRE", c["NW"]); c.setdefault("APRE", min(c["NA"], 3)); c.setdefault("WR", 1)
    c["TN16"] = c["WN"] * c["NT"]; c["STB"] = c["TN16"] * 2048; c.setdefault("WB", int(c["NA"] * 16384)); c.setdefault("S0", 0)
    c["RB"] = c["TN16"] * 32
    assert c["WB"] + c["NW"] * c["STB"] <= AUX
NX = 0
def nib(t): return sum(x << (4 * i) for i, x in enumerate(t))
CSO = {1: AUX + 3584, 3: AUX}

LW = AUX + 3072
def mstamp(a, force=False):
    if os.environ.get("JIT"):
        X = a.lab("jit")
        a.e("s_cselect_b32 s101, 1, 0"); a.e("s_memtime s[64:65]"); a.e("s_waitcnt lgkmcnt(0)"); a.e(f"s_and_b32 s64, s64, {os.environ['JIT']}"); a.e("s_cmp_lg_u32 s64, 0")
        a.e(f"s_cbranch_scc1 {X}"); a.e("s_sleep 50"); a.e(f"{X}:"); a.e("s_cmp_eq_u32 s101, 1")
        return
    if not STAMP or (os.environ.get("GST") and not force): return
    a.e(("s_memrealtime" if STAMP == 2 else "s_memtime") + " s[64:65]"); a.e("s_mov_b32 s100, m0"); a.e("s_mov_b32 m0, s66"); a.e("s_waitcnt lgkmcnt(0)")
    a.e("v_writelane_b32 v255, s64, m0"); a.e("s_mov_b32 m0, s100")
    a.e("s_add_u32 s66, s66, 1")

def lsrd(a, d, off, nbytes, prev=False):
    if prev:
        a.e(f"s_sub_u32 s{d}, s62, {LSTR - off:#x}"); a.e(f"s_subb_u32 s{d+1}, s63, 0")
        a.e(f"s_mov_b32 s{d+2}, {nbytes:#x}"); a.e(f"s_mov_b32 s{d+3}, 0x20000")
    else: a.srd(d, 62, nbytes, off=off)

def hs_srd(a, d):
    a.e("s_lshl_b32 s53, s60, 24"); a.e(f"s_add_u32 s53, s53, {HSB}")
    a.e(f"s_add_u32 s{d}, s4, s53"); a.e(f"s_addc_u32 s{d+1}, s5, 0"); a.e(f"s_mov_b32 s{d+2}, {128*PITCH}"); a.e(f"s_mov_b32 s{d+3}, 0x20000")

def group_off(a, d, m):
    a.e(f"s_lshr_b32 s53, s{m}, 3"); a.e("s_lshl_b32 s53, s53, 2"); a.e(f"s_and_b32 s54, s{m}, 3"); a.e("s_add_u32 s53, s53, s54"); a.e("s_lshl_b32 s53, s53, 23")
    a.e(f"s_lshr_b32 s54, s{m}, 2"); a.e("s_xor_b32 s54, s54, s94"); a.e("s_and_b32 s54, s54, 1"); a.e("s_lshl_b32 s54, s54, 13")
    a.e(f"s_add_u32 s{d}, s53, s54"); a.e(f"s_add_u32 s{d}, s{d}, {LB0}")

PV = 240
def poll_core(a, t, addrs, mask, extra=None, depth=1, cnt=0, nap=None):
    L = a.lab("poll"); D = a.lab("pok")
    n = len(addrs) + (1 if extra else 0)
    if depth > 1: t0 = t; regs = [PV + k * len(addrs) for k in range(depth)]; assert not extra and regs[-1] + len(addrs) <= 256
    else: regs = [t]
    def ld(r):
        for i, ad in enumerate(addrs): a.e(f"buffer_load_dword v{r+i}, v{ad}, s[56:59], 0 offen {SC}")
        if extra: a.e(extra[0])
    a.e("s_mov_b32 s53, 0"); a.e(f"s_add_u32 s54, s52, {cnt}")
    if mask != -1: a.e(f"s_bfm_b64 exec, {mask.bit_length()}, 0")
    for r in regs[:-1]: ld(r); a.e(f"s_sleep {PSLEEP}")
    a.e(f"{L}:")
    for k in range(depth):
        ld(regs[k - 1]); r = regs[k]
        a.e(f"s_waitcnt vmcnt({n*(depth-1)})")
        for i in range(len(addrs)): a.e(f"v_xor_b32 v{r+i}, s54, v{r+i}")
        for i in range(1, len(addrs)): a.e(f"v_or_b32 v{r}, v{r}, v{r+i}")
        if extra:
            for x in extra[1:]: a.e(x)
        a.e(f"v_cmp_eq_u32 vcc, 0, v{r}")
        a.e("s_cmp_eq_u64 vcc, exec"); a.e(f"s_cbranch_scc1 {D}")
        a.e(f"s_sleep {PSLEEP if nap is None else nap}")
    a.e("s_add_u32 s53, s53, 1"); a.e("s_cmp_lt_u32 s53, s61"); a.e(f"s_cbranch_scc1 {L}")
    a.e("s_mov_b32 s61, 0")
    a.e(f"{D}:")
    if mask != -1: a.e("s_mov_b64 exec, -1")

SPLIT = {ST_G1: "sign", ST_G3: "half", ST_G3A: "half", ST_G3B: "half"}
def flag_addr(a, r, stage, prev=False):
    so = fso(stage) - (LSTR if prev else 0)
    a.e(f"s_add_u32 s54, s55, {so & 0xffffffff:#x}")
    sp = SPLIT.get(stage)
    if sp == "half": a.e("s_lshl_b32 s53, s31, 7"); a.e("s_add_u32 s54, s54, s53")
    a.e(f"v_mov_b32 v{r}, s54")
    if sp == "sign":
        a.e("s_add_u32 s53, s54, 128"); a.e(f"v_writelane_b32 v{r}, s53, 1")
        a.e("s_add_u32 s53, s53, s93"); a.e(f"v_writelane_b32 v{r}, s53, 3")
        a.e("s_add_u32 s53, s54, s92"); a.e(f"v_writelane_b32 v{r}, s53, 2")
        return 0xf, 8
    return 1, 8 if sp else 16
def own_wait(a, stage, prev, t):
    if not PWAIT or stage == ST_R: return
    k = {ST_G1: 1, ST_G2: 2, ST_G3A: 3, ST_G4: 4}[stage] - (4 if prev else 0)
    a.e("s_lshl_b32 s54, s60, 2"); a.e(f"s_add_u32 s54, s54, {k}")
    lds_spin(a, LW + 56, "s54", t, nap=PWAIT)
def flag_try(a, r, ad):
    a.e("s_mov_b64 exec, 1"); a.e(f"buffer_load_dword v{r}, v{ad}, s[56:59], 0 offen {SC}"); a.e("s_mov_b64 exec, -1")
def flag_check(a, r, ad, cnt):
    D = a.lab("fok")
    a.e(f"v_readfirstlane_b32 s53, v{r}"); a.e(f"s_add_u32 s54, s52, {cnt}"); a.e("s_cmp_eq_u32 s53, s54"); a.e(f"s_cbranch_scc1 {D}")
    poll_core(a, r, [ad], 1, cnt=cnt)
    a.e(f"{D}:")

def poll(a, stage, t, prev=False):
    D = a.lab("pdone")
    a.e("s_cmp_lg_u32 s30, 4"); a.e(f"s_cbranch_scc1 {D}")
    own_wait(a, stage, prev, t)
    mask, cnt = flag_addr(a, t + 1, stage, prev)
    poll_core(a, t, [t + 1], mask, depth=PDEPTH, cnt=cnt)
    a.e(f"{D}:")
    if stage != ST_G4: mstamp(a)
    a.e("s_barrier")

def publish(a, stage, nw, t, off=None, wait=0, ctr=None, flag=False):
    D = a.lab("pub")
    mark = PWAIT and off is None and stage in (ST_G1, ST_G2, ST_G3A, ST_G4)
    if off is None:
        a.e(f"s_add_u32 s53, s55, {fso(stage)}"); off = 53
        sp = SPLIT.get(stage)
        if sp == "half": a.e("s_lshl_b32 s54, s31, 7"); a.e("s_add_u32 s53, s53, s54")
        if sp == "sign": a.e("s_and_b32 s54, s29, 4"); a.e("s_lshl_b32 s54, s54, 5"); a.e("s_add_u32 s53, s53, s54")
    a.e(f"v_mov_b32 v{t}, 1"); a.e(f"v_mov_b32 v{t+1}, {LW + (ctr if ctr is not None else 4 if nw == 8 else 0)}"); a.e(f"v_mov_b32 v{t+3}, 0")
    a.e("s_mov_b64 exec, 1")
    if wait is not None: a.e(f"s_waitcnt vmcnt({wait})")
    if nw > 1:
        a.e(f"ds_add_rtn_u32 v{t+2}, v{t+1}, v{t}")
        if flag: a.e(f"v_mov_b32 v{t+1}, s52")
        a.e("s_waitcnt lgkmcnt(0)")
        a.e(f"v_readfirstlane_b32 s54, v{t+2}")
        a.e(f"s_and_b32 s54, s54, {nw-1}"); a.e(f"s_cmp_lg_u32 s54, {nw-1}"); a.e(f"s_cbranch_scc1 {D}")
    if flag: a.e(f"buffer_store_dword v{t+1}, v{t+3}, s[56:59], s{off} offen {SC}")
    else: a.e(f"buffer_atomic_add v{t}, v{t+3}, s[56:59], s{off} offen {SC}")
    if stage == ST_R and not flag:
        a.e("s_cmp_lg_u32 s60, 0"); a.e(f"s_cbranch_scc1 {D}")
        a.e("s_lshl_b32 s53, s29, 7"); a.e(f"s_add_u32 s53, s53, {F_CS}")
        a.e(f"buffer_atomic_add v{t}, v{t+3}, s[56:59], s53 offen {SC}")
    if mark: a.e(f"v_mov_b32 v{t+1}, {LW+56}"); a.e(f"ds_add_u32 v{t+1}, v{t}")
    a.e(f"{D}:")
    a.e("s_mov_b64 exec, -1")

def lds_spin(a, addr, target, t, dst=53, nap=False):
    L = a.lab("spin")
    a.e(f"v_mov_b32 v{t}, {addr}")
    a.e(f"{L}:")
    if nap: a.e(f"s_sleep {int(nap)}")
    a.e(f"ds_read_b32 v{t+1}, v{t}"); a.e("s_waitcnt lgkmcnt(0)"); a.e(f"v_readfirstlane_b32 s{dst}, v{t+1}")
    a.e(f"s_cmp_ge_u32 s{dst}, {target}"); a.e(f"s_cbranch_scc0 {L}")
def lds_set(a, addr, val, t):
    a.e(f"v_mov_b32 v{t}, {addr}"); a.e(f"v_mov_b32 v{t+1}, {val}")
    a.e("s_waitcnt lgkmcnt(0)"); a.e(f"ds_write_b32 v{t}, v{t+1}")
def lbar(a, k, t):
    a.e(f"v_mov_b32 v{t}, {LW+8}"); a.e(f"v_mov_b32 v{t+1}, 1")
    a.e("s_waitcnt lgkmcnt(0)")
    a.e("s_mov_b64 exec, 1"); a.e(f"ds_add_u32 v{t}, v{t+1}"); a.e("s_mov_b64 exec, -1")
    lds_spin(a, LW + 8, 4 * k, t)

def gelu4(a, X, t, c1, c2):
    P = [(X, t), (X + 2, t + 2)]
    for x, u in P: a.e(f"v_pk_mul_f32 {vr(u,2)}, {vr(x,2)}, {vr(x,2)}")
    for x, u in P: a.e(f"v_pk_fma_f32 {vr(u,2)}, {vr(u,2)}, {vr(c2,2)}, {vr(c1,2)}")
    for x, u in P: a.e(f"v_pk_mul_f32 {vr(u,2)}, {vr(u,2)}, {vr(x,2)}")
    for i in range(4): a.e(f"v_exp_f32 v{t+i}, v{t+i}")
    for x, u in P: a.e(f"v_pk_add_f32 {vr(u,2)}, {vr(u,2)}, 1.0 op_sel_hi:[1,0]")
    for i in range(4): a.e(f"v_rcp_f32 v{t+i}, v{t+i}")
    for x, u in P: a.e(f"v_pk_mul_f32 {vr(x,2)}, {vr(x,2)}, {vr(u,2)}")

W2EARLY = int(os.environ.get("W2EARLY", "1")); QLATE = int(os.environ.get("QLATE", "0"))
TOUCH2 = [(A_Q, 4 * MB)] + ([] if W2EARLY else [(B_W2, 2 * MB)])
CODEPF = int(os.environ.get("CODEPF", "1")); NVOTE = 255; NSAMP = int(os.environ.get("NSAMP", "2"))
W4POS = os.environ.get("W4POS", "3C")
HSTR = 4160; CHB = 24576; UOFF = 4 * HSTR; US = 96
KVS = 4 * CHB

KV = dict(cq=6, tg=7, t=8, ro=9, wo=16, pt=18, kr=22, vv=36, w=44, d=52, hoff=70, tag=76, zz=78)
def front_loads(a):
    cq, tg, t, ro, wo, kr, vv, w = [KV[k] for k in "cq tg t ro wo kr vv w".split()]
    a.e(f"v_and_b32 v{cq}, 31, v0"); a.e(f"v_lshrrev_b32 v{tg}, 5, v0")
    a.e("s_and_b32 s34, s2, 7"); a.e("s_lshr_b32 s35, s2, 3")
    a.e("s_lshl_b32 s36, s35, 17"); a.e("s_lshl_b32 s37, s34, 8"); a.e("s_add_u32 s36, s36, s37")
    a.e(f"v_lshlrev_b32 v{t}, 13, v{tg}"); a.e(f"v_lshl_add_u32 v{t}, v{cq}, 3, v{t}"); a.e(f"v_add_u32 v{ro+3}, s36, v{t}")
    a.e(f"v_add_u32 v{ro+5}, 4096, v{ro+3}")
    a.e(f"s_mov_b32 s18, {4*MB}"); a.e("s_mov_b32 s19, 0x20000"); a.e("s_mov_b32 s22, s18"); a.e("s_mov_b32 s23, s19")
    a.e("s_waitcnt lgkmcnt(0)")
    tag, zz = KV["tag"], KV["zz"]
    a.e("s_mov_b32 s86, 256"); a.e("s_mov_b32 s87, 0x20000"); a.e(f"v_mov_b32 v{zz}, 0")
    a.e("s_lshl_b32 s45, s2, 3"); a.e("s_add_u32 s45, s45, s30"); a.e("s_cmp_lg_u32 s45, 4"); a.e("s_cbranch_scc1 KV_t0")
    a.e("s_lshl_b32 s44, s46, 6"); a.e("s_or_b32 s44, s44, 1"); a.e(f"v_mov_b32 v{tag}, s44")
    a.e("s_mov_b64 exec, 1"); a.e(f"buffer_store_dword v{tag}, v{zz}, s[84:87], 0 offen {SC}"); a.e("s_mov_b64 exec, -1")
    a.e("KV_t0:")
    a.e("s_mov_b64 s[16:17], s[8:9]"); a.e("s_mov_b64 s[20:21], s[10:11]")
    for i in range(4): a.e(f"buffer_load_dwordx2 {vr(kr+2*(i+3),2)}, v{ro+3+(i&2)}, s[16:19], 0 offen offset:{2048*(i&1)} {NTK}")
    for i in range(4): a.e(f"buffer_load_dwordx2 {vr(vv+2*i,2)}, v{ro+3+(i&2)}, s[20:23], 0 offen offset:{2048*(i&1)} {NT}")
    for i in range(3): a.e(f"v_subrev_u32 v{ro+i}, {2048*(3-i)}, v{ro+3}")
    a.e("s_lshl_b32 s37, s34, 10"); a.e(f"v_lshlrev_b32 v{wo}, 5, v{cq}"); a.e(f"v_add_u32 v{wo}, s37, v{wo}")
    a.srd(24, 12, 8192)
    XP = os.environ.get("XP", "g")
    for i in range(0 if "t" in XP else 2): a.e(f"buffer_load_dwordx4 {vr(w+4*i,4)}, v{wo}, s[24:27], 0 offen offset:{16*i}")
    if "g" in XP:
        a.e("s_cmp_lg_u32 s30, 4"); a.e("s_cbranch_scc1 KV_t2")
        a.e(f"buffer_load_dword v{tag}, v{zz}, s[84:87], 0 offen {SC}")
        a.e("KV_t2:")
    if "h" in XP: return
    if HALO:
        a.e("s_cmp_lg_u32 s30, 0"); a.e("s_cbranch_scc1 KV_h0"); a.e("s_bfm_b64 exec, 32, 0")
    for i in range(3): a.e(f"buffer_load_dwordx2 {vr(kr+2*i,2)}, v{ro+i}, s[16:19], 0 offen {NTK}")
    if HALO: a.e("s_mov_b64 exec, -1"); a.e("KV_h0:")

def probe_base(a):
    a.e("s_and_b32 s42, s2, 31"); a.e("s_lshl_b32 s42, s42, 8"); a.e("s_lshr_b32 s43, s2, 5"); a.e("s_lshl_b32 s43, s43, 14"); a.e("s_add_u32 s42, s42, s43")
    a.e(f"s_add_u32 s42, s42, {LB0 + oSM + 131072}")
def front_arrive(a, wait):
    D = a.lab("fa"); t = 6
    a.e("s_and_b32 s36, s2, 7"); a.e("s_lshl_b32 s36, s36, 7"); a.e(f"s_add_u32 s36, s36, {F_FRONT}")
    a.e(f"v_mov_b32 v{t}, 1"); a.e(f"v_mov_b32 v{t+1}, {LW+4}"); a.e(f"v_lshlrev_b32 v{t+3}, 10, v1")
    a.e("s_mov_b64 exec, 1")
    if wait: a.e("s_waitcnt vmcnt(0)")
    a.e("s_waitcnt lgkmcnt(0)")
    a.e(f"ds_add_rtn_u32 v{t+2}, v{t+1}, v{t}"); a.e(f"ds_read_b32 v{t+4}, v{t+1} offset:28")
    a.e("s_waitcnt lgkmcnt(0)")
    a.e(f"v_readfirstlane_b32 s54, v{t+2}"); a.e(f"v_readfirstlane_b32 s53, v{t+4}")
    a.e("s_cmp_lg_u32 s54, 15"); a.e(f"s_cbranch_scc1 {D}")
    a.e("s_mov_b64 exec, 0xffff"); a.e("s_or_b32 s53, s53, 1"); a.e(f"v_mov_b32 v{t}, s53")
    a.e(f"buffer_atomic_add v{t}, v{t+3}, s[56:59], s36 offen {SC}")
    a.e(f"{D}:"); a.e("s_mov_b64 exec, -1")
def front_a(a):
    cq, tg, t, pt, kr, vv, w, d, hoff, tag, zz = [KV[k] for k in "cq tg t pt kr vv w d hoff tag zz".split()]
    v = VA(80)
    a.e("s_and_b32 s41, s30, 3"); chan_setup(a, 41)
    a.e("s_lshr_b32 s36, s39, 1"); a.e("s_lshl_b32 s36, s36, 2"); a.e("s_load_dword s98, s[96:97], s36")
    a.e("s_lshl_b32 s36, s39, 12")
    a.e("s_add_u32 s12, s14, s36"); a.e("s_addc_u32 s13, s15, 0"); a.e("s_mov_b32 s14, 4096"); a.e("s_mov_b32 s15, 0x20000")
    a.e("s_lshr_b32 s45, s30, 2"); a.e("s_lshl_b32 s45, s45, 11")
    for it in range(3):
        if it < 2: a.e(f"s_add_u32 s36, s45, {(1024*it - 64) & 0xffffffff:#x}")
        else: a.e(f"s_mov_b32 s36, {4096 - 64}")
        a.e(f"v_add_u32 v{hoff+2*it}, s36, v2"); a.e(f"v_add_u32 v{hoff+2*it+1}, 16, v{hoff+2*it}")
    a.e("s_and_b32 s34, s2, 7"); a.e("s_lshr_b32 s35, s2, 3")
    z = v(4, 4); la = v(); t2 = v(); hw = v()
    for i in range(4): a.e(f"v_mov_b32 v{z+i}, 0")
    a.e(f"v_add_u32 v{hw}, s40, v2")
    a.e(f"ds_write_b128 v{hw}, {vr(z,4)} offset:{UOFF+64*US}")
    a.e(f"s_bfm_b64 exec, {(15*US - 1024)//16}, 0"); a.e(f"ds_write_b128 v{hw}, {vr(z,4)} offset:{UOFF+64*US+1024}"); a.e("s_mov_b64 exec, -1")
    a.e(f"v_lshlrev_b32 v{t}, 2, v{tg}"); a.e(f"v_sub_u32 v{t}, 60, v{t}")
    a.e(f"v_lshrrev_b32 v{t2}, 3, v{t}"); a.e(f"v_bfe_u32 v{la}, v{cq}, 1, 3"); a.e(f"v_xor_b32 v{t2}, v{t2}, v{la}"); a.e(f"v_lshlrev_b32 v{t2}, 4, v{t2}")
    a.e(f"v_and_b32 v{t}, 7, v{t}"); a.e(f"v_lshl_add_u32 v{t2}, v{t}, 1, v{t2}")
    a.e(f"v_lshl_add_u32 v{la}, v{cq}, 9, v{t2}"); a.e(f"v_add_u32 v{la}, {KVS}, v{la}")
    wf = v(8, 2); kf = v(14, 2); vf = v(8, 2); ks = v(8, 2); pr = v(8, 2); o = v(8, 4); tm = v(4, 1)
    a.e("s_waitcnt vmcnt(0)")
    if HALO:
        for i in range(3): a.e(f"buffer_load_dwordx2 {vr(kr+2*i,2)}, v{KV['ro']+i}, s[16:19], 0 offen {NTK}")
        if HALO == 1: a.e("s_waitcnt vmcnt(0)")
    a.e("s_cmp_lg_u32 s30, 4"); a.e("s_cbranch_scc1 KV_t1")
    if "g" not in os.environ.get("XP", "g"): a.e(f"buffer_load_dword v{tag}, v{zz}, s[84:87], 0 offen {SC}")
    a.e("KV_t1:")
    for it in range(3):
        a.e(f"buffer_load_dwordx4 {vr(d+6*it,4)}, v{hoff+2*it}, s[12:15], 0 offen {NTH}")
        a.e(f"buffer_load_dwordx2 {vr(d+6*it+4,2)}, v{hoff+2*it+1}, s[12:15], 0 offen {NTH}")
    if HALO == 2: a.e("s_waitcnt vmcnt(10)")
    mstamp(a)
    for dd in range(2):
        for c in range(2):
            unpack(a, wf + 0 + c, wf + 2 + c, w + 2 * (2 * dd + c)); unpack(a, wf + 4 + c, wf + 6 + c, w + 2 * (2 * dd + c) + 1)
        for i in range(7): unpack(a, kf + 2 * i, kf + 2 * i + 1, kr + 2 * i + dd)
        for i in range(4): unpack(a, vf + 2 * i, vf + 2 * i + 1, vv + 2 * i + dd)
        def rnd(base):
            for i in range(4): a.e(f"v_cvt_pk_bf16_f32 v{tm+i}, v{base+2*i}, v{base+2*i+1}")
            for i in range(4): unpack(a, base + 2 * i, base + 2 * i + 1, tm + i)
        for i in range(4): a.e(f"v_pk_mul_f32 {vr(ks+2*i,2)}, {vr(kf+2*i,2)}, {vr(wf+6,2)}")
        if RND: rnd(ks)
        for j in range(1, 4):
            if not RND:
                for i in range(4): a.e(f"v_pk_fma_f32 {vr(ks+2*i,2)}, {vr(kf+2*(i+j),2)}, {vr(wf+6-2*j,2)}, {vr(ks+2*i,2)}")
                continue
            for i in range(4): a.e(f"v_pk_mul_f32 {vr(pr+2*i,2)}, {vr(kf+2*(i+j),2)}, {vr(wf+6-2*j,2)}")
            rnd(pr)
            for i in range(4): a.e(f"v_pk_add_f32 {vr(ks+2*i,2)}, {vr(ks+2*i,2)}, {vr(pr+2*i,2)}")
            rnd(ks)
        for i in range(4): a.e(f"v_pk_mul_f32 {vr(ks+2*i,2)}, {vr(ks+2*i,2)}, {vr(vf+2*i,2)}")
        for c in range(2):
            e = 2 * dd + c
            a.e(f"v_cvt_pk_bf16_f32 v{o+2*e}, v{ks+6+c}, v{ks+4+c}"); a.e(f"v_cvt_pk_bf16_f32 v{o+2*e+1}, v{ks+2+c}, v{ks+c}")
            a.e(f"ds_write_b64 v{la}, {vr(o+2*e,2)} offset:{e*128}")
    a.e("s_cmp_lg_u32 s30, 4"); a.e("s_cbranch_scc1 HB_2")
    a.e(f"v_add_u32 v{pt}, {LW}, v3"); a.e(f"ds_write_b32 v{pt}, v{zz}")
    a.e("s_mov_b32 s53, 0")
    a.e("s_waitcnt vmcnt(6)")
    a.e("HB_p:")
    a.e(f"v_readfirstlane_b32 s52, v{tag}"); a.e("s_cmp_lg_u32 s52, 0"); a.e("s_cbranch_scc1 HB_q")
    a.e(f"buffer_load_dword v{tag}, v{zz}, s[84:87], 0 offen {SC}"); a.e("s_waitcnt vmcnt(0)")
    a.e("s_add_u32 s53, s53, 1"); a.e("s_cmp_lt_u32 s53, s61"); a.e("s_cbranch_scc1 HB_p")
    a.e("s_mov_b32 s52, 1"); a.e("s_mov_b32 s61, 0")
    a.e("HB_q:")
    lds_set(a, LW + 12, "s52", pt)
    a.e("HB_2:")
    a.srd(16, 4, 4 * MB, off=UT)
    ra = v(); go = v(); ob = v(8, 4)
    a.e(f"v_lshrrev_b32 v{t}, 3, v0"); a.e(f"v_and_b32 v{t2}, 7, v0")
    a.e(f"v_lshlrev_b32 v{go}, 12, v{t}"); a.e(f"v_lshl_add_u32 v{go}, v{t2}, 4, v{go}")
    a.e("s_lshl_b32 s36, s34, 19"); a.e("s_sub_u32 s37, 31, s35"); a.e("s_lshl_b32 s37, s37, 7"); a.e("s_add_u32 s36, s36, s37")
    a.e(f"s_add_u32 s37, s36, {64*4096}")
    a.e(f"v_lshrrev_b32 v{ra}, 3, v{t}"); a.e(f"v_xor_b32 v{ra}, v{ra}, v{t2}"); a.e(f"v_lshlrev_b32 v{ra}, 4, v{ra}"); a.e(f"v_lshl_add_u32 v{ra}, v{t}, 7, v{ra}")
    a.e(f"v_add_u32 v{ra}, {KVS}, v{ra}"); a.e(f"v_mov_b32 v{pt}, {LW+12}")
    a.e("s_waitcnt lgkmcnt(0)"); a.e("s_barrier")
    for i in range(2): a.e(f"ds_read_b128 {vr(ob+4*i,4)}, v{ra} offset:{i*8192}")
    a.e(f"ds_read_b32 v{pt+1}, v{pt}")
    for i in range(2):
        a.e(f"s_waitcnt lgkmcnt({2-i})")
        a.e(f"buffer_store_dwordx4 {vr(ob+4*i,4)}, v{go}, s[16:19], s{36+i} offen {SC}")
    a.e("s_waitcnt lgkmcnt(0)"); a.e(f"v_readfirstlane_b32 s52, v{pt+1}")
    a.e("s_cmp_lg_u32 s30, 0"); a.e("s_cbranch_scc1 KV_ni"); a.e("s_cmp_ge_u32 s35, 16"); a.e("s_cbranch_scc1 KV_ni")
    a.e(f"v_mov_b32 v{t}, s52")
    a.e("s_lshl_b32 s37, s34, 7"); a.e("s_lshl_b32 s53, s35, 10"); a.e("s_add_u32 s37, s37, s53"); a.e(f"s_add_u32 s37, s37, {F_FRONT}")
    a.e("s_mov_b64 exec, 1"); a.e(f"buffer_store_dword v{t}, v{zz}, s[56:59], s37 offen {SC}"); a.e("s_mov_b64 exec, -1")
    a.e("KV_ni:")
    a.e(f"s_cmp_ge_u32 s2, {NVOTE}"); a.e("s_cbranch_scc1 KV_n3"); a.e("s_cmp_lg_u32 s30, 5"); a.e("s_cbranch_scc1 KV_n3")
    probe_base(a)
    a.e(f"v_and_b32 v{t}, 1, v1"); a.e(f"v_lshlrev_b32 v{t}, 13, v{t}"); a.e(f"v_lshrrev_b32 v{t2}, 1, v1"); a.e(f"v_lshl_add_u32 v{t}, v{t2}, 7, v{t}")
    a.e("s_mov_b64 exec, 0xf"); a.e(f"buffer_store_dword v{t}, v{t}, s[56:59], s42 offen {SC}"); a.e("s_mov_b64 exec, -1")
    a.e("KV_n3:")
    def pubk():
        a.e("s_lshl_b32 s36, s34, 5"); a.e("s_add_u32 s36, s36, s35"); a.e("s_lshl_b32 s36, s36, 7"); a.e(f"s_add_u32 s36, s36, {F_KVT}")
        mstamp(a)
        publish(a, 0, 8, pt, off=36, flag=True)
        mstamp(a)
    HF = int(os.environ.get("HF", "0"))
    if not HF: pubk()
    else: a.e("s_waitcnt vmcnt(2)")
    cc = wf; hw2 = v()
    a.e(f"v_add_u32 v{hw2}, s45, v{hw}")
    for it in range(3):
        D = d + 6 * it; c0 = cc + 12 * it; c1 = c0 + 4; c2 = c0 + 8
        for k in range(4):
            a.e(f"v_alignbit_b32 v{c0+k}, v{D+k+1}, v{D+k}, 16")
            a.e(f"v_mov_b32 v{c1+k}, v{D+k+1}")
            a.e(f"v_alignbit_b32 v{c2+k}, v{D+k+2}, v{D+k+1}, 16")
        if it == 2: a.e("s_mov_b64 exec, 0xf")
        ad, o0 = (hw2, 1024 * it) if it < 2 else (hw, 4096)
        a.e(f"ds_write_b128 v{ad}, {vr(c0,4)} offset:{o0}")
        a.e(f"ds_write_b128 v{ad}, {vr(c1,4)} offset:{HSTR+o0}")
        a.e(f"ds_write_b128 v{ad}, {vr(c2,4)} offset:{2*HSTR+o0}")
        a.e(f"ds_write_b128 v{ad}, {vr(D+2,4)} offset:{3*HSTR+o0}")
        if it == 2: a.e("s_mov_b64 exec, -1")
    if HF: pubk()
    assert v.hi <= RFO
    a.e("s_waitcnt lgkmcnt(0)"); a.e("s_barrier")
def load_q(a):
    a.srd(8, 6, 4 * MB)
    for j in range(4): a.e(f"buffer_load_dwordx2 {vr(RXA+2*j,2)}, v{RRO}, s[8:11], 0 offen offset:{128*(j>>1) + 32*(j&1)} {NTH}")
def chan_setup(a, wsg):
    a.e("s_and_b32 s38, s2, 7"); a.e("s_lshl_b32 s38, s38, 5"); a.e("s_lshr_b32 s39, s2, 3"); a.e("s_add_u32 s38, s38, s39")
    a.e("s_lshl_b32 s39, s38, 2"); a.e(f"s_add_u32 s39, s39, s{wsg}")
    a.e(f"s_mul_i32 s40, s{wsg}, {CHB}")

def touch(a, ka, nbytes, r):
    n = nbytes // 1024 // 512
    a.e(f"s_load_dwordx2 s[48:49], s[0:1], {ka}")
    a.e("s_lshl_b32 s45, s2, 1"); a.e("s_and_b32 s50, s30, 1"); a.e("s_add_u32 s45, s45, s50"); a.e(f"s_mul_i32 s45, s45, {n*1024}")
    a.e(f"s_mov_b32 s50, {nbytes}"); a.e("s_mov_b32 s51, 0x20000")
    a.e("s_waitcnt lgkmcnt(0)")
    for i in range(n):
        if i and i % 4 == 0: a.e("s_add_u32 s45, s45, 4096")
        a.e(f"buffer_load_dwordx4 {vr(r,4)}, v2, s[48:51], s45 offen offset:{(i&3)*1024}")
    return n

def w2_warm(a):
    a.e("s_mov_b64 s[48:49], s[70:71]"); a.e(f"s_mov_b32 s50, {2*MB}"); a.e("s_mov_b32 s51, 0x20000")
    a.e("s_and_b32 s45, s28, 3"); a.e("s_lshl_b32 s45, s45, 1"); a.e("s_and_b32 s46, s30, 1"); a.e("s_add_u32 s45, s45, s46"); a.e("s_lshl_b32 s45, s45, 18")
    a.e("s_lshl_b32 s46, s29, 7"); a.e("s_add_u32 s45, s45, s46"); a.e("v_lshlrev_b32 v245, 11, v1")
    a.e("buffer_load_dword v244, v245, s[48:51], s45 offen"); a.e(f"s_add_u32 s45, s45, {64*2048}"); a.e("buffer_load_dword v246, v245, s[48:51], s45 offen")
def cs_load(a, which, slot):
    w_setup(a, which, pre=False)
    a.e(f"s_mov_b32 s42, {slot}"); a.e("s_mov_b32 s44, s28")
    w_issue(a, which, direct=True)
CSEL, CFR, CAD, CACC, CSO_ = 16, 72, 144, 156, 164
def cs_prep(a, S1, S3):
    a.e(f"v_and_b32 v{CSO_}, 15, v1"); a.e(f"v_mov_b32 v{CSO_+1}, 0x3f803f80")
    for T in range(14):
        a.e(f"v_cmp_eq_u32 vcc, {T}, v{CSO_}")
        for e in range(4): a.e(f"v_cndmask_b32 v{CSEL+4*T+e}, 0, v{CSO_+1}, vcc")
    pos = {}
    for which, slot, r0, halves in ((1, S1, CAD, 1), (3, S3, CAD + 4, 2)):
        c = CFG[which]
        for hf in range(halves):
            a.e(f"s_mov_b32 s35, {hf}")
            nr, pos[which] = w_bases(a, which, r0 + 2 * hf, 35, c["TN16"] // halves, WV + 8, WV + 9)
            a.e("s_and_b32 s35, s30, 1"); a.e(f"s_mul_i32 s35, s35, {32*c['RB']}"); a.e(f"s_add_u32 s35, s35, {slot}")
            for i in range(nr): a.e(f"v_add_u32 v{r0+2*hf+i}, s35, v{r0+2*hf+i}")
    for i in range(8): a.e(f"v_mov_b32 v{CACC+i}, 0")
    a.e(f"v_lshrrev_b32 v{CSO_+2}, 4, v1"); a.e(f"v_lshlrev_b32 v{CSO_+2}, 4, v{CSO_+2}"); a.e(f"v_lshl_add_u32 v{CSO_+2}, v{CSO_}, 6, v{CSO_+2}")
    a.e(f"v_mov_b32 v{CSO_+1}, 0x7f000000")
    for k, n in ((3, 4), (4, 14)):
        a.e(f"v_cmp_gt_u32 vcc, {n}, v{CSO_}"); a.e(f"v_cndmask_b32 v{CSO_+k}, v{CSO_+1}, v{CSO_+2}, vcc")
    return pos
def cs_sum(a, which, pos):
    c = CFG[which]; ntl = c["TN16"]; N = c["LDW"] // 2
    F = CFR + (0 if which == 3 else 56); A = CACC + (0 if which == 3 else 4)
    for T in range(ntl):
        hf, nt = (T // 7, T % 7) if which == 3 else (0, T)
        for h in range(2):
            r, imm = pos[which](nt, 0, h)
            a.e(f"ds_read_b64_tr_b16 {vr(F+4*T+2*h,2)}, v{(CAD + 4 if which == 3 else CAD) + 2*hf + r} offset:{imm}")
    a.srd(20, 4, 32 * N * 4, off=CSP[which])
    a.e("s_lshl_b32 s35, s28, 1"); a.e("s_and_b32 s36, s30, 1"); a.e("s_add_u32 s35, s35, s36"); a.e(f"s_mul_i32 s35, s35, {N*4}")
    a.e(f"s_mul_i32 s36, s29, {ntl*64}"); a.e("s_add_u32 s35, s35, s36")
    a.e("s_waitcnt lgkmcnt(0)")
    for T in range(ntl): a.e(f"v_mfma_f32_16x16x32_bf16 {vr(A,4)}, {vr(F+4*T,4)}, {vr(CSEL+4*T,4)}, {vr(A,4)}")
    a.e(f"buffer_store_dwordx4 {vr(A,4)}, v{CSO_ + (4 if which == 3 else 3)}, s[20:23], s35 offen {SC}")

NOCS3 = int(os.environ.get("NOCS3", "0")); STO = os.environ.get("STOUCH", "")
def stouch(a, which, gran, nw):
    X = a.lab("st"); L = a.lab("sl"); n = 28672 // nw
    a.e("s_cmp_lg_u32 s60, 0"); a.e(f"s_cbranch_scc1 {X}")
    a.e(f"s_mul_i32 s36, s2, 28672"); a.e(f"s_and_b32 s37, s30, {nw-1}"); a.e(f"s_mul_i32 s37, s37, {n}"); a.e("s_add_u32 s36, s36, s37")
    a.e(f"s_add_u32 s34, s{66+2*which}, s36"); a.e(f"s_addc_u32 s35, s{67+2*which}, 0"); a.e("s_mov_b32 s36, 0")
    a.e(f"{L}:")
    for i in range(14): a.e(f"s_load_dword s37, s[34:35], {i*gran}")
    a.e(f"s_add_u32 s34, s34, {14*gran}"); a.e("s_addc_u32 s35, s35, 0"); a.e("s_add_u32 s36, s36, 1"); a.e(f"s_cmp_lt_u32 s36, {n // (14*gran)}"); a.e(f"s_cbranch_scc1 {L}")
    a.e("s_waitcnt lgkmcnt(0)")
    a.e(f"{X}:")
SB = eval(os.environ.get("SB", "(0,0,0)"))
SG = eval(os.environ.get("SG", "(0,0,0,0)"))
def sg(a, n):
    if not n: return
    X = a.lab("st"); L = a.lab("sl")
    a.e("s_cmp_lg_u32 s60, 0"); a.e(f"s_cbranch_scc1 {X}"); a.e("s_mov_b32 s36, 0"); a.e(f"{L}:"); sb(a, 14)
    a.e("s_add_u32 s36, s36, 1"); a.e(f"s_cmp_lt_u32 s36, {n}"); a.e(f"s_cbranch_scc1 {L}"); a.e("s_waitcnt lgkmcnt(0)"); a.e(f"{X}:"); mstamp(a)
def sb_init(a):
    nw = 2 if sum(SG) else 4
    a.e(f"s_mul_i32 s36, s2, 28672"); a.e(f"s_and_b32 s37, s30, {nw-1}"); a.e(f"s_mul_i32 s37, s37, {28672//nw}"); a.e("s_add_u32 s36, s36, s37")
    a.e(f"s_add_u32 s90, s72, s36"); a.e(f"s_addc_u32 s91, s73, 0")
def sb(a, n):
    for i in range(n): a.e(f"s_load_dword s101, s[90:91], {i*64}")
    if n: a.e(f"s_add_u32 s90, s90, {n*64}"); a.e("s_addc_u32 s91, s91, 0")
def front_b(a):
    pt, dm = 6, 20
    if TAB: tab_load(a)
    TE = int(os.environ.get("TE", "0"))
    if TE:
        a.e("s_cmp_ge_u32 s30, 6"); a.e("s_cbranch_scc1 FB_t1"); touch(a, B_W2, 2 * MB, dm); a.e("s_branch FB_t2"); a.e("FB_t1:"); touch(a, B_W1, 2 * MB, 200); a.e("FB_t2:")
    w_lanes(a)
    sb_init(a); sb(a, SB[0])
    a.e("s_cmp_ge_u32 s30, 6"); a.e("s_cbranch_scc1 FB_cs")
    vd = 12
    a.e(f"s_cmp_ge_u32 s2, {NVOTE}"); a.e("s_cbranch_scc1 FB_np"); a.e("s_cmp_lg_u32 s30, 5"); a.e("s_cbranch_scc1 FB_np")
    probe_base(a); a.e(f"v_mov_b32 v{vd+2}, 0")
    a.e("s_mov_b64 exec, 1"); a.e("s_mov_b32 s46, -1"); a.e("s_mov_b32 s47, -1"); a.e("s_mov_b32 s43, 0")
    a.e("FB_ml:")
    for i in range(2):
        a.e(f"s_add_u32 s45, s42, {i * 8192}")
        a.e("s_memtime s[34:35]"); a.e("s_waitcnt lgkmcnt(0)")
        a.e(f"buffer_load_dword v{vd+1}, v{vd+2}, s[56:59], s45 offen {SC}"); a.e("s_waitcnt vmcnt(0)")
        a.e("s_memtime s[36:37]"); a.e("s_waitcnt lgkmcnt(0)")
        a.e("s_sub_u32 s36, s36, s34"); a.e(f"s_min_u32 s{46+i}, s{46+i}, s36")
    a.e("s_add_u32 s42, s42, 128"); a.e("s_add_u32 s43, s43, 1"); a.e(f"s_cmp_lt_u32 s43, {NSAMP}"); a.e("s_cbranch_scc1 FB_ml")
    a.e("s_cmp_lt_u32 s47, s46"); a.e("s_cselect_b32 s45, 1, 0")
    a.e("s_lshr_b32 s46, s28, 2"); a.e("s_xor_b32 s45, s45, s46"); a.e("s_and_b32 s45, s45, 1"); a.e("s_lshl_b32 s45, s45, 8")
    a.e("s_mov_b64 exec, -1")
    lds_set(a, LW + 32, "s45", pt)
    a.e("FB_np:")
    mstamp(a)
    a.e("s_cmp_lg_u32 s30, 4"); a.e("s_cbranch_scc1 FB_ni")
    a.e(f"v_mov_b32 v{vd}, s52")
    group_off(a, 37, 28); a.e("s_andn2_b32 s37, s37, 0x2000"); a.e("s_lshl_b32 s53, s29, 7"); a.e("s_add_u32 s37, s37, s53"); a.e(f"s_add_u32 s37, s37, {oSM}")
    a.e(f"v_and_b32 v{vd+1}, 1, v1"); a.e(f"v_lshlrev_b32 v{vd+1}, 13, v{vd+1}"); a.e(f"v_lshrrev_b32 v{vd+2}, 1, v1"); a.e(f"v_lshl_add_u32 v{vd+1}, v{vd+2}, 26, v{vd+1}")
    a.e("s_mov_b64 exec, 0xf"); a.e(f"buffer_store_dword v{vd}, v{vd+1}, s[56:59], s37 offen {SC}")
    a.e("s_cmp_lg_u32 s28, 0"); a.e("s_cbranch_scc1 FB_n2")
    a.e(f"s_add_u32 s37, s53, {F_CS}"); a.e("s_mov_b64 exec, 1"); a.e(f"buffer_store_dword v{vd}, v{vd+1}, s[56:59], s37 offen {SC}")
    a.e("FB_n2:")
    a.e("s_mov_b64 exec, -1")
    for i in range(4): a.e(f"v_mov_b32 v{vd+4+i}, 0")
    a.e("s_lshr_b32 s36, s2, 7"); a.e("s_lshl_b32 s36, s36, 24"); a.e(f"s_add_u32 s36, s36, {HSB}")
    a.e("s_add_u32 s20, s4, s36"); a.e("s_addc_u32 s21, s5, 0"); a.e(f"s_mov_b32 s22, {128*PITCH}"); a.e("s_mov_b32 s23, 0x20000")
    a.e("s_and_b32 s36, s2, 127"); a.e(f"s_mul_i32 s36, s36, {PITCH}"); a.e(f"s_add_u32 s36, s36, {16384 - 32}")
    a.e(f"v_and_b32 v{vd+1}, 1, v1"); a.e(f"v_lshlrev_b32 v{vd+1}, 4, v{vd+1}"); a.e(f"v_bfe_u32 v{vd+2}, v1, 1, 1"); a.e(f"v_lshl_add_u32 v{vd+1}, v{vd+2}, 13, v{vd+1}")
    a.e(f"v_bfe_u32 v{vd+2}, v1, 2, 1"); a.e(f"v_mul_u32_u24 v{vd+2}, {32768 + 32}, v{vd+2}"); a.e(f"v_add_u32 v{vd+1}, v{vd+1}, v{vd+2}")
    a.e("s_mov_b64 exec, 0xff"); a.e(f"buffer_store_dwordx4 {vr(vd+4,4)}, v{vd+1}, s[20:23], s36 offen {SC}"); a.e("s_mov_b64 exec, -1")
    a.e("FB_ni:")
    UG = (LW + 20, 4) if os.environ.get("UG") else (LW + 16, 1)
    lds_spin(a, *UG, pt, nap=2)
    mstamp(a)
    if TLBW:
        a.e("s_cmp_lg_u32 s30, 4"); a.e("s_cbranch_scc1 FB_nt")
        a.e(f"s_load_dwordx2 s[8:9], s[0:1], {D_OUT}")
        a.srd(20, 4, 192 * MB)
        group_off(a, 34, 28)
        a.e("s_sub_u32 s36, s28, 1"); a.e("s_max_i32 s36, s36, 0"); group_off(a, 35, 36)
        a.e("s_add_u32 s36, s28, 1"); a.e("s_min_u32 s36, s36, 15"); group_off(a, 37, 36)
        a.e(f"v_lshlrev_b32 v{vd}, 21, v1"); a.e(f"v_add_u32 v{vd}, {HSB - 8 * 2 * MB}, v{vd}")
        for l, (r, o) in enumerate([(34, 0), (34, oP0 if TLBW == 2 else 4 * MB), (35, 0), (37, 0)]):
            for ly in range(2):
                a.e(f"s_add_u32 s36, s{r}, {o + ly * LSTR}"); a.e(f"v_writelane_b32 v{vd}, s36, {2*l+ly}")
        a.e("s_bfm_b64 exec, 20, 0"); a.e(f"buffer_{'store' if TLBW == 2 else 'load'}_dword v{dm}, v{vd}, s[20:23], 0 offen {SC}")
        a.e("s_waitcnt lgkmcnt(0)"); a.e(f"s_mov_b32 s10, {4*MB}"); a.e("s_mov_b32 s11, 0x20000")
        a.e("s_mov_b64 exec, 1"); a.e(f"buffer_load_dword v{dm+1}, v{RRO}, s[8:11], 0 offen {SC}"); a.e("s_mov_b64 exec, -1")
        a.e("FB_nt:")
    if os.environ.get("W2T", "1") == "2": lds_spin(a, LW + 24, 2, pt, nap=4)
    if os.environ.get("W2T", "1") != "0" and not TE: touch(a, B_W2, 2 * MB, dm)
    QL = int(os.environ.get("QL", "0"))
    if not QL: load_q(a)
    if W4POS == "F": lds_spin(a, LW + 24, 2, pt, nap=4); a.e("s_waitcnt vmcnt(0)")
    if W4POS in ("F", "F0"): touch(a, B_W4, 7 * MB, dm)
    PZF = int(os.environ.get("PZF", "0"))
    if PZF:
        a.srd(20, 4, 32 * MB, off=216 * MB)
        for i in range(4): a.e(f"v_mov_b32 v{216+i}, -1")
        a.e("s_lshl_b32 s45, s2, 1"); a.e("s_and_b32 s50, s30, 1"); a.e("s_add_u32 s45, s45, s50"); a.e(f"s_mul_i32 s45, s45, {PZF*1024}")
        for i in range(PZF):
            a.e(f"buffer_store_dwordx4 v[216:219], v2, s[20:23], s45 offen {SC}"); a.e("s_add_u32 s45, s45, 1024")
            if os.environ.get("PZP"): a.e(f"s_waitcnt vmcnt({os.environ['PZP']})")
    front_arrive(a, True)
    if TAB: tab_make(a, 0)
    PKW = int(os.environ.get("PKW", "2")); PKP = int(os.environ.get("PKP", "8"))
    W1P = int(os.environ.get("W1P", "8")); FO = os.environ.get("FO", "1pd"); FO2 = os.environ.get("FO2", "1")
    R1 = [196 + 4 * i for i in range(10)] + [16 + 4 * i for i in range(8)]
    def w1_regs(a):
        w_srd(a, 1)
        a.e("s_and_b32 s35, s30, 3"); a.e(f"s_mul_i32 s35, s35, {18*16384}"); a.e("s_lshl_b32 s39, s29, 7"); a.e("s_add_u32 s39, s39, s35")
        for q in range(18):
            a.e(f"buffer_load_dwordx4 {vr(R1[q],4)}, v{WVB[1]}, s[12:15], s39 offen"); a.e("s_add_u32 s39, s39, 16384")
            if q % 4 == 3: sb(a, SB[1])
            if PKP and q % 4 == 3: a.e(f"s_waitcnt vmcnt({PKP})")
        if QL: load_q(a)
    def w1_put(a):
        a.e("s_and_b32 s35, s30, 3"); a.e(f"s_mul_i32 s35, s35, {18*1024}"); a.e("v_add_u32 v8, s35, v2")
        lds_spin(a, LW + 4, 16, pt, nap=2)
        a.e("s_waitcnt vmcnt(0)")
        for q in range(18): a.e(f"ds_write_b128 v8, {vr(R1[q],4)} offset:{CFG[1]['WB'] + 1024*q}")
        a.e("s_waitcnt lgkmcnt(0)")
    def w1_dma(a, js):
        lds_spin(a, LW + 24, 4, pt, nap=3)
        w_setup(a, 1, pre=False); w1_slots(a, js, pace=W1P)
    DS_ = int(os.environ.get("DSPL", "16"))
    if PKW: lds_spin(a, LW + 24, PKW, pt, nap=4)
    for ch in FO:
        if ch == "d": w1_dma(a, range(9, DS_))
        else: call(a, {"1": w1_regs, "p": park}[ch])
    mstamp(a)
    call(a, w1_put)
    a.e("s_branch FR_end")
    a.e("FB_cs:")
    S1, S3 = KVS - CFG[1]["WB"], KVS + 8192 - CFG[3]["WB"]
    pos = cs_prep(a, S1, S3)
    lds_spin(a, *UG, pt, nap=2)
    mstamp(a)
    if not QL: load_q(a)
    cs_load(a, 1, S1)
    if not NOCS3: cs_load(a, 3, S3)
    a.e(f"s_waitcnt vmcnt({0 if NOCS3 else 14})")
    if CSPRIO: a.e(f"s_setprio {CSPRIO}")
    cs_sum(a, 1, pos)
    a.e("s_waitcnt vmcnt(1)")
    a.e(f"v_mov_b32 v{pt}, {LW+24}"); a.e(f"v_mov_b32 v{pt+1}, 1")
    a.e("s_mov_b64 exec, 1"); a.e(f"ds_add_u32 v{pt}, v{pt+1}"); a.e("s_mov_b64 exec, -1")
    mstamp(a)
    if not NOCS3: cs_sum(a, 3, pos)
    front_arrive(a, False)
    if TAB: tab_make(a, 1)
    a.e(f"v_mov_b32 v{pt}, {LW+24}"); a.e(f"v_mov_b32 v{pt+1}, 1")
    a.e("s_mov_b64 exec, 1"); a.e(f"ds_add_u32 v{pt}, v{pt+1}"); a.e("s_mov_b64 exec, -1")
    mstamp(a)
    a.e("s_setprio 0")
    assert CFG[1]["WB"] + 9 * 8192 == KVS
    for ch in FO2:
        if ch == "d": w1_dma(a, range(DS_, 16))
        else: call(a, {"1": w1_regs, "p": park}[ch])
    mstamp(a)
    call(a, w1_put)

def front_conv(a):
    v = VA(6); lane = 1; l16 = 2
    t = v(); pt = v(4, 2)
    chan_setup(a, 30)
    a.e("s_lshl_b32 s36, s39, 12"); a.e(f"s_add_u32 s36, s36, {UT}")
    a.e("s_add_u32 s16, s4, s36"); a.e("s_addc_u32 s17, s5, 0"); a.e("s_mov_b32 s18, 4096"); a.e("s_mov_b32 s19, 0x20000")
    uw = v(); u = v(16, 4)
    a.e(f"v_lshrrev_b32 v{t}, 2, v{lane}"); a.e(f"v_mul_u32_u24 v{uw}, {US}, v{t}"); a.e(f"v_and_b32 v{t}, 3, v{lane}")
    a.e(f"v_lshl_add_u32 v{uw}, v{t}, 4, v{uw}"); a.e(f"v_add_u32 v{uw}, s40, v{uw}")
    aa = v(); ba = v(); ua = v(); J = v(); G = v()
    a.e(f"v_and_b32 v{J}, 15, v{lane}"); a.e(f"v_lshrrev_b32 v{G}, 4, v{lane}")
    a.e(f"v_and_b32 v{t}, 3, v{J}"); a.e(f"v_mul_u32_u24 v{aa}, {HSTR}, v{t}")
    a.e(f"v_lshl_add_u32 v{aa}, v{G}, 4, v{aa}"); a.e(f"v_lshrrev_b32 v{t}, 2, v{J}"); a.e(f"v_lshl_add_u32 v{aa}, v{t}, 3, v{aa}")
    a.e(f"v_add_u32 v{aa}, s40, v{aa}")
    a.e(f"v_sub_u32 v{t}, 15, v{J}"); a.e(f"v_mul_u32_u24 v{ua}, {US}, v{t}"); a.e(f"v_add_u32 v{ua}, s40, v{ua}")
    a.e(f"v_lshl_add_u32 v{ba}, v{G}, 4, v{ua}")
    acc = v(32, 4)
    fa = v(64, 4); fb = v(32, 4)
    def rdA(p, o):
        return [f"ds_read_b64 {vr(fa+32*p+8*s_+4*mt+2*h,2)}, v{aa} offset:{64*(o+16*s_) + 32*mt + 8*h}" for s_ in range(4) for mt in range(2) for h in range(2)]
    def rdB(p, o):
        return [f"ds_read_b128 {vr(fb+16*p+4*k,4)}, v{ba} offset:{UOFF + (48 - 16*k + o)*US}" for k in range(4)]
    for x in rdA(0, 0): a.e(x)
    dm_ = fb + 16; Dv = pt + 2
    a.e("s_bitcmp1_b32 s39, 0"); a.e("s_cselect_b32 s36, 0, 16"); a.e("s_lshl_b32 s41, s98, s36"); a.e("s_and_b32 s41, s41, 0xffff0000"); a.e("s_lshr_b32 s36, s41, 16")
    a.e(f"v_lshl_add_u32 v{t}, v{G}, 3, v{J}"); a.e(f"v_sub_u32 v{t}, 31, v{t}")
    a.e(f"v_mov_b32 v{Dv}, s36"); a.e(f"v_mov_b32 v{Dv+1}, s41"); a.e(f"v_and_b32 v{pt}, 1, v{t}"); a.e(f"v_cmp_eq_u32 vcc, 1, v{pt}")
    a.e(f"v_cndmask_b32 v{Dv}, v{Dv}, v{Dv+1}, vcc"); a.e(f"v_ashrrev_i32 v{t}, 1, v{t}")
    for mt in range(2):
        for d_ in range(4): a.e(f"v_cmp_eq_u32 vcc, {8*mt+d_}, v{t}"); a.e(f"v_cndmask_b32 v{dm_+4*mt+d_}, 0, v{Dv}, vcc")
    a.srd(12, 4, 4 * MB, off=Y)
    ta = v(); go = v()
    a.e(f"v_bfe_u32 v{t}, v{lane}, 2, 2"); a.e(f"v_mul_u32_u24 v{ta}, {CHB+64}, v{t}")
    a.e(f"v_lshrrev_b32 v{t}, 1, v{G}"); a.e(f"v_mul_u32_u24 v{t}, 72, v{t}"); a.e(f"v_add_u32 v{ta}, v{ta}, v{t}")
    a.e(f"v_and_b32 v{t}, 1, v{G}"); a.e(f"v_lshl_add_u32 v{ta}, v{t}, 5, v{ta}")
    a.e(f"v_and_b32 v{t}, 3, v{lane}"); a.e(f"v_lshl_add_u32 v{ta}, v{t}, 3, v{ta}")
    a.e(f"s_mul_i32 s36, s30, {16*72}"); a.e(f"v_add_u32 v{ta}, s36, v{ta}")
    a.e(f"v_lshlrev_b32 v{go}, 3, v{lane}")
    a.e("s_lshl_b32 s44, s38, 14"); a.e("s_lshl_b32 s37, s30, 12"); a.e("s_add_u32 s44, s44, s37")
    ya = v()
    a.e(f"s_mul_i32 s36, s30, {CHB+64}")
    a.e(f"v_mul_u32_u24 v{ya}, 72, v{J}"); a.e(f"v_lshl_add_u32 v{ya}, v{G}, 3, v{ya}"); a.e(f"v_add_u32 v{ya}, s36, v{ya}")
    a.e("s_cmp_lg_u32 s30, 0"); a.e("s_cbranch_scc1 CV_w")
    a.e("s_and_b32 s36, s2, 7"); a.e("s_lshl_b32 s36, s36, 12"); a.e(f"s_add_u32 s36, s36, {F_KVT}")
    a.e(f"v_lshlrev_b32 v{pt+1}, 7, v{lane}"); a.e(f"v_add_u32 v{pt+1}, s36, v{pt+1}")
    poll_core(a, pt, [pt + 1], 0xffffffff)
    lds_set(a, LW + 16, 1, pt)
    a.e("CV_w:")
    lds_spin(a, LW + 16, 1, pt)
    mstamp(a)
    for it in range(4): a.e(f"buffer_load_dwordx4 {vr(u+4*it,4)}, v{l16}, s[16:19], 0 offen offset:{1024*it} {SC}")
    QL = int(os.environ.get("QL", "0"))
    if not QL: load_q(a)
    for it in range(4):
        a.e(f"s_waitcnt vmcnt({(3 if QL else 7)-it})")
        a.e(f"ds_write_b128 v{uw}, {vr(u+4*it,4)} offset:{UOFF + 16*US*it}")
    a.e(f"v_mov_b32 v{pt}, {LW+20}"); a.e(f"v_mov_b32 v{pt+1}, 1")
    a.e("s_mov_b64 exec, 1"); a.e(f"ds_add_u32 v{pt}, v{pt+1}"); a.e("s_mov_b64 exec, -1")
    a.e("s_waitcnt lgkmcnt(0)")
    mstamp(a)
    for x in rdB(0, 0): a.e(x)
    for c_ in range(4):
        a.e(f"s_waitcnt lgkmcnt({3-c_})")
        for mt in range(2): a.e(f"v_mfma_f32_16x16x32_bf16 {vr(acc+8*c_+4*mt,4)}, {vr(dm_+4*mt,4)}, {vr(fb+4*c_,4)}, 0")
    def step(p, nxt, tail, piped=False):
        a.e(f"s_waitcnt lgkmcnt({10 if piped else 0})")
        mf = [(c_, s_, mt) for s_ in range(4) for mt in range(2) for c_ in range(s_, 4)]
        for i, (c_, s_, mt) in enumerate(mf):
            A = acc + 8 * c_ + 4 * mt
            a.e(f"v_mfma_f32_16x16x32_bf16 {vr(A,4)}, {vr(fa+32*p+8*s_+4*mt,4)}, {vr(fb+16*p+4*(c_-s_),4)}, {vr(A,4)}")
            if nxt: a.e(nxt.pop(0))
            if piped and i == 9: a.e("s_waitcnt lgkmcnt(10)")
            for x in tail.pop(i, []) if tail else []: a.e(x)
        assert not nxt and not tail
    a.e("s_mov_b32 s43, 0")
    NU = int(os.environ.get("NU", "3")); HP = int(os.environ.get("HP", "0"))
    if NU:
        a.e("CV_r:")
        for p in range(2):
            rd = rdB(1 - p, p + 1) + rdA(1 - p, p + 1)
            step(p, rd[:HP], [])
            for x in rd[HP:]: a.e(x)
        for x in [f"v_add_u32 v{aa}, 128, v{aa}", f"v_add_u32 v{ba}, {2*US}, v{ba}", "s_add_u32 s43, s43, 1", f"s_cmp_lt_u32 s43, {NU}"]: a.e(x)
        a.e("s_cbranch_scc1 CV_r")
    if QL: load_q(a)
    a.e("CV_l:")
    step(0, rdB(1, 1) + rdA(1, 1), [], True)
    step(1, rdB(0, 2) + rdA(0, 2), {19: [f"v_add_u32 v{aa}, 128, v{aa}"], 5: [f"v_add_u32 v{ba}, {2*US}, v{ba}"], 6: ["s_add_u32 s43, s43, 1"], 7: ["s_cmp_lt_u32 s43, 8"]}, True)
    a.e("s_cbranch_scc1 CV_l")
    mstamp(a)
    a.e("s_waitcnt lgkmcnt(0)")
    for c_ in range(4):
        for mt in range(2):
            A = acc + 8 * c_ + 4 * mt; O = u + 2 * (c_ * 2 + mt)
            a.e(f"v_cvt_pk_bf16_f32 v{O}, v{A}, v{A+1}"); a.e(f"v_cvt_pk_bf16_f32 v{O+1}, v{A+2}, v{A+3}")
            a.e(f"ds_write_b64 v{ya}, {vr(O,2)} offset:{c_*16*72 + mt*32}")
    lbar(a, 1, pt)
    for i in range(8): a.e(f"ds_read_b64_tr_b16 {vr(fa+32+2*i,2)}, v{ta} offset:{144*i}")
    for i in range(8):
        a.e(f"s_waitcnt lgkmcnt({7-i})")
        a.e(f"buffer_store_dwordx2 {vr(fa+32+2*i,2)}, v{go}, s[12:15], s44 offen offset:{512*i} {SC}")
    assert v.hi <= RFO

PK = 48; W3S = 208
RFO, RYO, RRO, RI, RXA, RXB, RYY, RT = 176, 177, 178, 179, 180, 188, 230, 196
def r_addr(a):
    t, t2, I, fo, ro, yo = RT, RT + 1, RI, RFO, RRO, RYO
    a.e(f"v_and_b32 v{I}, 7, v0")
    a.e(f"v_lshrrev_b32 v{t}, 6, v0"); a.e(f"v_lshlrev_b32 v{t}, 4, v{t}"); a.e(f"v_bfe_u32 v{t2}, v0, 3, 3"); a.e(f"v_add_u32 v{t}, v{t}, v{t2}")
    a.e("s_lshr_b32 s78, s29, 1"); a.e("s_lshl_b32 s78, s78, 16"); a.e("s_and_b32 s79, s29, 1"); a.e("s_lshl_b32 s79, s79, 7"); a.e("s_add_u32 s78, s78, s79")
    a.e("s_lshr_b32 s79, s30, 1"); a.e("s_lshl_b32 s79, s79, 13"); a.e("s_add_u32 s78, s78, s79")
    a.e(f"v_lshlrev_b32 v{fo}, 8, v{t}"); a.e(f"v_lshl_add_u32 v{fo}, v{I}, 4, v{fo}"); a.e(f"v_add_u32 v{fo}, s78, v{fo}")
    a.e("s_lshl_b32 s78, s28, 7"); a.e("s_lshl_b32 s79, s29, 3"); a.e("s_add_u32 s78, s78, s79")
    a.e(f"v_add_u32 v{yo}, s78, v{I}"); a.e(f"v_lshlrev_b32 v{ro}, 11, v{yo}")
    a.e(f"v_lshrrev_b32 v{t2}, 2, v{t}"); a.e(f"v_lshlrev_b32 v{t2}, 3, v{t2}"); a.e(f"v_and_b32 v{t}, 3, v{t}"); a.e(f"v_add_u32 v{t}, v{t}, v{t2}")
    a.e(f"v_lshl_add_u32 v{ro}, v{t}, 3, v{ro}")
    a.e(f"v_lshlrev_b32 v{yo}, 3, v{yo}"); a.e(f"v_lshl_add_u32 v{yo}, v{t}, 14, v{yo}")
def load_y(a, skip_last=False):
    a.srd(80, 4, 4 * MB, off=Y)
    if skip_last: a.e("s_cmp_eq_u32 s60, 0"); a.e("s_cselect_b32 s82, s82, 0")
    for j in range(2):
        for hh in range(2):
            a.e(f"s_mov_b32 s78, {(16*j + 4*hh)*16384}")
            a.e(f"buffer_load_dwordx2 {vr(RYY+4*j+2*hh,2)}, v{RYO}, s[80:83], s78 offen {SC}")
def r_pre(a, l0=False):
    r_addr(a)
    lsrd(a, 84, oX3, XSZ); lsrd(a, 88, oX1P, XSZ)
    if l0: a.e("s_cmp_eq_u32 s60, 0"); a.e("s_cselect_b32 s86, s86, 0"); a.e("s_cselect_b32 s90, s90, 0")
    for j in range(2):
        a.e(f"buffer_load_dwordx4 {vr(RXA+4*j,4)}, v{RFO}, s[84:87], 0 offen offset:{2048*j} {SC}")
        a.e(f"buffer_load_dwordx4 {vr(RXB+4*j,4)}, v{RFO}, s[88:91], 0 offen offset:{2048*j} {SC}")
    load_y(a, l0)
def r_pre0(a): r_pre(a, True)

def r_stage(a, final):
    v = VA(6)
    t = v(); t2 = v(); I = RI; fo = RFO; ro = RRO; pt = v(4, 2)
    xa = RXA; xb = RXB; yy = RYY; x = 206; yf = 222; w = v(16, 4); tmp = v()
    pre = final == "pre"
    S = v(2, 2); pp = v(2, 2); qq = v(2, 2); st = w; mean = v(2, 2); rs = mean + 1; var = v(); sw = v(); sr = v()
    def part(src, n):
        a.e(f"v_pk_add_f32 {vr(pp,2)}, {vr(src,2)}, {vr(src+2,2)}"); a.e(f"v_pk_mul_f32 {vr(qq,2)}, {vr(src,2)}, {vr(src,2)}")
        for i in range(1, 8):
            if i > 1: a.e(f"v_pk_add_f32 {vr(pp,2)}, {vr(pp,2)}, {vr(src+2*i,2)}")
            a.e(f"v_pk_fma_f32 {vr(qq,2)}, {vr(src+2*i,2)}, {vr(src+2*i,2)}, {vr(qq,2)}")
        a.e(f"v_add_f32 v{S}, v{pp}, v{pp+1}"); a.e(f"v_add_f32 v{S+1}, v{qq}, v{qq+1}")
        for k in range(2): a.e(f"v_add_f32_dpp v{S+k}, v{S+k}, v{S+k} row_ror:8 row_mask:0xf bank_mask:0xf")
        for op in ("v_permlane16_swap_b32", "v_permlane32_swap_b32"):
            for k in range(2): a.e(f"v_mov_b32 v{pp+k}, v{S+k}")
            for k in range(2): a.e(f"{op} v{S+k}, v{pp+k}")
            a.e(f"v_pk_add_f32 {vr(S,2)}, {vr(S,2)}, {vr(pp,2)}")
        a.e(f"ds_write_b64 v{sw}, {vr(S,2)} offset:{n*512}")
    def comb(n):
        for k in range(4): a.e(f"ds_read_b128 {vr(st+4*k,4)}, v{sr} offset:{n*512+16*k}")
        a.e("s_waitcnt lgkmcnt(0)")
        for k in range(4): a.e(f"v_pk_add_f32 {vr(st+4*k,2)}, {vr(st+4*k,2)}, {vr(st+4*k+2,2)}")
        a.e(f"v_pk_add_f32 {vr(st,2)}, {vr(st,2)}, {vr(st+4,2)}"); a.e(f"v_pk_add_f32 {vr(st+8,2)}, {vr(st+8,2)}, {vr(st+12,2)}")
        a.e(f"v_pk_add_f32 {vr(st,2)}, {vr(st,2)}, {vr(st+8,2)}")
        a.e(f"v_mul_f32 v{mean}, {f32(1/1024)}, v{st}"); a.e(f"v_mul_f32 v{var}, {f32(1/1024)}, v{st+1}")
        a.e(f"v_fma_f32 v{var}, -v{mean}, v{mean}, v{var}"); a.e(f"v_max_f32 v{var}, 0, v{var}")
    SUBM = f"{vr(mean,2)} op_sel_hi:[1,0] neg_lo:[0,1] neg_hi:[0,1]"; MULR = f"{vr(mean,2)} op_sel:[0,1] op_sel_hi:[1,1]"
    if pre: a.e("s_waitcnt lgkmcnt(0)")
    if final is not True:
        a.e(f"v_lshlrev_b32 v{sr}, 6, v{I}"); a.e(f"v_add_u32 v{sr}, {AUX+2048}, v{sr}")
        a.e(f"s_lshl_b32 s35, s30, 3"); a.e(f"v_add_u32 v{sw}, s35, v{sr}")
    if pre:
        a.e("s_waitcnt vmcnt(0)")
        for i in range(8): unpack(a, x + 2 * i, x + 2 * i + 1, xa + i)
        part(x, 0)
        a.e("s_waitcnt lgkmcnt(0)"); a.e("s_barrier")
        return
    if not final:
        a.e(f"s_cmp_eq_u32 s60, 0"); a.e(f"s_cbranch_scc1 R_l0")
    else:
        a.e(f"s_load_dwordx2 s[6:7], s[0:1], {D_OUT}")
    lsrd(a, 8, oP0, XSZ, prev=True); lsrd(a, 12, oP1, XSZ, prev=True)
    a.e("s_waitcnt vmcnt(0)")
    for i in range(8):
        if not final: unpack(a, yf + 2 * i, yf + 2 * i + 1, yy + i)
        unpack(a, x + 2 * i, x + 2 * i + 1, xa + i); unpack(a, w + 2 * i, w + 2 * i + 1, xb + i)
        a.e(f"v_pk_add_f32 {vr(x+2*i,2)}, {vr(x+2*i,2)}, {vr(w+2*i,2)}")
    poll(a, ST_G4, pt, prev=True)
    mstamp(a)
    for j in range(2):
        a.e(f"buffer_load_dwordx4 {vr(xa+4*j,4)}, v{fo}, s[8:11], 0 offen offset:{2048*j} {SC}")
        a.e(f"buffer_load_dwordx4 {vr(xb+4*j,4)}, v{fo}, s[12:15], 0 offen offset:{2048*j} {SC}")
    for i in range(8):
        if i % 4 == 0: a.e(f"s_waitcnt vmcnt({2 - i // 2})")
        u = w + 4 * (i & 3)
        unpack(a, u, u + 1, xa + i); unpack(a, u + 2, u + 3, xb + i)
        a.e(f"v_pk_add_f32 {vr(u,2)}, {vr(u,2)}, {vr(u+2,2)}")
        a.e(f"v_pk_add_f32 {vr(x+2*i,2)}, {vr(x+2*i,2)}, {vr(u,2)}")
        if final: a.e(f"v_cvt_pk_bf16_f32 v{xa+i}, v{x+2*i}, v{x+2*i+1}")
        else: round2(a, x + 2 * i, x + 2 * i + 1, tmp)
    if final:
        a.e("s_waitcnt lgkmcnt(0)")
        a.srd(20, 6, 4 * MB)
        OS = os.environ.get("OS", "sc1")
        if os.environ.get("OWIDE", "1") == "1":
            a.e(f"v_bfe_u32 v{t}, v1, 3, 1"); a.e(f"v_cmp_eq_u32 vcc, 1, v{t}")
            for j in range(2):
                lo, hi = xa + 4 * j, xa + 4 * j + 2
                for e in range(2):
                    a.e(f"v_cndmask_b32 v{x+e}, v{hi+e}, v{lo+e}, vcc")
                for e in range(2):
                    a.e(f"v_mov_b32_dpp v{x+2+e}, v{x+e} row_ror:8 row_mask:0xf bank_mask:0xf")
                for e in range(2):
                    a.e(f"v_cndmask_b32 v{x+4+e}, v{lo+e}, v{x+2+e}, vcc"); a.e(f"v_cndmask_b32 v{hi+e}, v{x+2+e}, v{hi+e}, vcc")
                for e in range(2): a.e(f"v_mov_b32 v{lo+e}, v{x+4+e}")
            a.e(f"v_bfe_u32 v{t2}, v1, 4, 1"); a.e(f"v_lshlrev_b32 v{t}, 5, v{t}"); a.e(f"v_lshl_add_u32 v{t}, v{t2}, 4, v{t}")
            a.e(f"v_and_b32 v{t2}, 0xffffffc0, v{ro}"); a.e(f"v_add_u32 v{t}, v{t}, v{t2}")
            for j in range(2): a.e(f"buffer_store_dwordx4 {vr(xa+4*j,4)}, v{t}, s[20:23], 0 offen offset:{128*j} {OS}")
        else:
            for j in range(4): a.e(f"buffer_store_dwordx2 {vr(xa+2*j,2)}, v{ro}, s[20:23], 0 offen offset:{128*(j>>1) + 32*(j&1)} {OS}")
        return v.hi
    part(x, 0)
    a.e("s_waitcnt lgkmcnt(0)"); a.e("s_barrier")
    comb(0)
    ln_finish(a, mean, var, rs)
    lsrd(a, 20, oX3, XSZ)
    for i in range(8):
        D = w + 2 * i
        a.e(f"v_pk_add_f32 {vr(D,2)}, {vr(x+2*i,2)}, {SUBM}"); a.e(f"v_pk_mul_f32 {vr(D,2)}, {vr(D,2)}, {MULR}")
        a.e(f"v_pk_fma_f32 {vr(x+2*i,2)}, {vr(D,2)}, {vr(yf+2*i,2)}, {vr(x+2*i,2)}")
        a.e(f"v_cvt_pk_bf16_f32 v{xa+i}, v{x+2*i}, v{x+2*i+1}")
        if i % 4 == 3: a.e(f"buffer_store_dwordx4 {vr(xa+i-3,4)}, v{fo}, s[20:23], 0 offen offset:{2048*(i//4)} {SC}")
    a.e("s_branch R_s2")
    a.e("R_l0:")
    for i in range(8): unpack(a, x + 2 * i, x + 2 * i + 1, xa + i)
    part(x, 0)
    a.e("s_waitcnt lgkmcnt(0)")
    st_ = st; st = yf
    a.e(f"s_cmp_lg_u32 s30, {os.environ.get('FPW', '4')}"); a.e("s_cbranch_scc1 R_fw")
    lds_spin(a, LW + 4, 16, st, nap=int(os.environ.get("NAP4", "4")))
    a.e("s_lshl_b32 s36, s28, 10"); a.e(f"s_add_u32 s36, s36, {F_FRONT}")
    a.e(f"v_lshlrev_b32 v{st+4}, 7, v1"); a.e(f"v_add_u32 v{st+4}, s36, v{st+4}")
    a.e("s_mov_b32 s53, 0"); a.e("s_mov_b64 exec, 0xff")
    a.e("R_fp:")
    a.e(f"buffer_load_dword v{st}, v{st+4}, s[56:59], 0 offen {SC}"); a.e("s_waitcnt vmcnt(0)")
    a.e(f"v_subrev_u32 v{st}, s52, v{st}"); a.e(f"v_and_b32 v{st+1}, 0xffffc0ff, v{st}"); a.e(f"v_cmp_eq_u32 vcc, 32, v{st+1}")
    a.e("s_cmp_eq_u64 vcc, exec"); a.e("s_cbranch_scc1 R_fq")
    a.e(f"s_sleep {FSLEEP}")
    a.e("s_add_u32 s53, s53, 1"); a.e("s_cmp_lt_u32 s53, s61"); a.e("s_cbranch_scc1 R_fp")
    a.e("s_mov_b32 s61, 0")
    a.e("R_fq:")
    a.e(f"v_lshrrev_b32 v{st}, 8, v{st}"); a.e(f"v_mov_b32 v{st+1}, {LW+28}"); a.e(f"ds_add_u32 v{st+1}, v{st}")
    a.e("s_mov_b64 exec, -1"); a.e("s_waitcnt lgkmcnt(0)")
    a.e("R_fw:")
    a.e("s_barrier")
    mstamp(a)
    load_y(a)
    a.e(f"v_mov_b32 v{st}, {LW+28}"); a.e(f"ds_read_b32 v{st+1}, v{st}"); a.e("s_waitcnt lgkmcnt(0)"); a.e(f"v_readfirstlane_b32 s94, v{st+1}")
    if STAMP: a.e("s_mov_b32 s95, s94")
    a.e(f"s_cmp_gt_u32 s94, {NVOTE // 2}"); a.e("s_cselect_b32 s94, 1, 0")
    group_off(a, 55, 28)
    a.e("s_add_u32 s62, s4, s55"); a.e("s_addc_u32 s63, s5, 0")
    a.e("s_sub_u32 s36, s28, 1"); a.e("s_max_i32 s36, s36, 0"); group_off(a, 92, 36); a.e("s_sub_u32 s92, s92, s55")
    a.e("s_add_u32 s36, s28, 1"); a.e("s_min_u32 s36, s36, 15"); group_off(a, 93, 36); a.e("s_sub_u32 s93, s93, s55")
    a.e(f"s_add_u32 s55, s55, {oSM}")
    lsrd(a, 20, oX3, XSZ)
    st = st_; comb(0); ln_finish(a, mean, var, rs); st = yf
    for i in range(8):
        D = w + 2 * i
        a.e(f"v_pk_add_f32 {vr(D,2)}, {vr(x+2*i,2)}, {SUBM}"); a.e(f"v_pk_mul_f32 {vr(D,2)}, {vr(D,2)}, {MULR}")
    a.e("s_waitcnt vmcnt(0)")
    for i in range(8):
        D = w + 2 * i
        unpack(a, st, st + 1, yy + i)
        a.e(f"v_pk_fma_f32 {vr(x+2*i,2)}, {vr(D,2)}, {vr(st,2)}, {vr(x+2*i,2)}"); a.e(f"v_cvt_pk_bf16_f32 v{xa+i}, v{x+2*i}, v{x+2*i+1}")
        if i % 4 == 3: a.e(f"buffer_store_dwordx4 {vr(xa+i-3,4)}, v{fo}, s[20:23], 0 offen offset:{2048*(i//4)} {SC}")
    a.e("R_s2:")
    st = st_
    for i in range(8): unpack(a, x + 2 * i, x + 2 * i + 1, xa + i)
    part(x, 1)
    publish(a, ST_R, 8, pt)
    a.e("s_barrier")
    a.e("s_cmp_lg_u32 s30, 0"); a.e("s_cbranch_scc1 R_nl")
    comb(1)
    outv = yf + 2; s3 = v(); m4 = v(); v4_ = v(); r4 = v()
    assert v.hi <= PK
    a.e(f"v_mov_b32 v{m4}, v{mean}"); a.e(f"v_mov_b32 v{v4_}, v{var}")
    ln_finish(a, mean, var, rs, s3)
    a.e(f"v_sub_f32 v{m4}, v{m4}, v{mean}"); a.e(f"v_mul_f32 v{m4}, v{m4}, v{rs}")
    a.e(f"v_mul_f32 v{v4_}, v{v4_}, v{rs}"); a.e(f"v_mul_f32 v{v4_}, v{v4_}, v{rs}")
    ln_finish(a, m4, v4_, r4)
    a.e(f"v_mov_b32 v{outv}, v{mean}"); a.e(f"v_mov_b32 v{outv+1}, v{rs}")
    a.e(f"v_fma_f32 v{outv+2}, v{m4}, v{s3}, v{mean}"); a.e(f"v_mul_f32 v{outv+3}, v{rs}, v{r4}")
    lsrd(a, 24, oLNS, 2048)
    a.e("s_lshl_b32 s36, s29, 3"); a.e(f"v_add_u32 v{t}, s36, v{I}"); a.e(f"v_lshlrev_b32 v{t}, 4, v{t}")
    a.e("s_mov_b64 exec, 0xff")
    a.e(f"buffer_store_dwordx4 {vr(outv,4)}, v{t}, s[24:27], 0 offen {SC}")
    a.e("s_mov_b64 exec, -1")
    publish(a, ST_R2, 1, pt)
    a.e("R_nl:")
    return v.hi

TAB = int(os.environ.get("TAB", "1")); TV = 248
def lead(seq, r, L, P=4):
    if L == 0: return list(seq)
    return [x for _, x in sorted(((i - L - 0.5 if i % P == r else i), x) for i, x in enumerate(seq))]
def order3(j, gi):
    mode, L = eval(os.environ.get("O3", "('r',0)"))
    if mode == "r": return [(gi + t) & 15 for t in range(16)]
    if mode == "n": return [gi] + [x for x in lead(range(16), (j + gi) & 3, L) if x != gi]
    if mode == "s": return [gi] + lead([x for x in range(16) if x != gi], (j + gi) & 3, L)
    if mode == "h": return [gi] + [x for x in lead([(t + (gi & 8)) & 15 for t in range(16)], (j + gi) & 3, L) if x != gi]
def order4(j, n):
    mode, L = eval(os.environ.get("O4", "('r',0)"))
    own = [(7 * n + i, 7 * n + 4 + i) for i in range(3)]
    ps = [(n + t) & 7 for t in range(8)] if mode == "r" else list(range(8))
    ab = [(7 * p + i, 7 * p + 4 + i) for i in range(2) for p in ps if p != n]
    c = [7 * p + o for p in ps for o in (2, 6, 3) if p != n or o == 3]
    rest = ab + [(c[2 * i], c[2 * i + 1]) for i in range(11)]
    if mode != "r": rest = lead(rest, (j + n + int(os.environ.get("O4R", "0"))) & 3, L)
    return own + rest
L4 = eval(os.environ.get("O4", "('r',0)"))[1] if TAB else 0
def tab_data(a):
    a.lines.append(".p2align 6"); a.lines.append("K_tab:")
    for gi in range(16):
        for j in range(4):
            o3 = order3(j, gi) + [0] * 16; o4 = order4(j, gi & 7) + [(0, 0)] * 4
            assert sorted(o3[:16]) == list(range(16)) and sorted(sum(o4[:28], ())) == list(range(56))
            a.lines.append(".short " + ",".join(str(o3[t] | o4[t][0] << 4 | o4[t][1] << 10) for t in range(32)))
def tab_load(a):
    a.e("s_getpc_b64 s[34:35]"); a.e("K_tpc:")
    a.e("s_lshl_b32 s36, s29, 2"); a.e("s_and_b32 s37, s28, 3"); a.e("s_add_u32 s36, s36, s37"); a.e("s_lshl_b32 s36, s36, 6")
    a.e("s_add_u32 s36, s36, K_tab-K_tpc"); a.e("s_add_u32 s34, s34, s36"); a.e("s_addc_u32 s35, s35, 0")
    a.e(f"v_and_b32 v{TV}, 31, v1"); a.e(f"v_lshlrev_b32 v{TV}, 1, v{TV}"); a.e(f"global_load_ushort v{TV+3}, v{TV}, s[34:35]")
def tab_make(a, w):
    T, x = TV + 3, TV + 4
    if not w:
        a.e(f"v_bfe_u32 v{x}, v{T}, 2, 2"); a.e(f"v_lshlrev_b32 v{TV}, 14, v{x}"); a.e(f"v_and_b32 v{x}, 3, v{T}"); a.e(f"v_lshl_add_u32 v{TV}, v{x}, 11, v{TV}")
        for lw in range(2):
            a.e(f"v_bfe_u32 v{x}, v{T}, {7+6*lw}, 3"); a.e(f"v_lshlrev_b32 v{TV+1+lw}, 14, v{x}"); a.e(f"v_bfe_u32 v{x}, v{T}, {4+6*lw}, 3"); a.e(f"v_lshl_add_u32 v{TV+1+lw}, v{x}, 10, v{TV+1+lw}")
    else:
        a.e(f"v_and_b32 v{x}, 15, v{T}"); a.e(f"v_mul_u32_u24 v{TV}, {64*7168}, v{x}")
        a.e("s_and_b32 s36, s30, 1"); a.e("s_mul_i32 s36, s36, 6"); a.e("s_add_u32 s36, s36, 4"); a.e(f"v_bfe_u32 v{x}, v{T}, s36, 6")
        assert all((q * 37) >> 8 == q // 7 for q in range(56))
        a.e(f"v_mul_u32_u24 v{TV+2}, 37, v{x}"); a.e(f"v_lshrrev_b32 v{TV+2}, 8, v{TV+2}"); a.e(f"v_mul_u32_u24 v{TV+2}, 7, v{TV+2}"); a.e(f"v_sub_u32 v{TV+2}, v{x}, v{TV+2}")
        a.e(f"v_cmp_eq_u32 vcc, 3, v{TV+2}"); a.e(f"v_cndmask_b32 v{TV+2}, 0, 1, vcc"); a.e(f"v_lshl_add_u32 v{TV+1}, v{x}, 16, v{TV+2}")
def rot_init(a, which):
    if which == 3 and TAB: a.e("s_mov_b32 s44, 0")
    elif which == 3 and OWN3: a.e("s_mov_b32 s44, s29")
    elif which != 4: a.e("s_mov_b32 s44, s67")
    else: a.e("s_mov_b32 s44, 0")
def rot_next(a, which):
    a.e("s_add_u32 s44, s44, 1")
    if which != 4: a.e("s_and_b32 s44, s44, 15")
def kb4(a, d, lw):
    a.e("s_lshl_b32 s45, s44, 1"); a.e(f"s_add_u32 s45, s45, {lw}"); a.e("s_sub_u32 s45, s45, 32")
    a.e("s_mul_i32 s46, s45, 86"); a.e("s_lshr_b32 s46, s46, 8")
    a.e("s_mul_i32 s47, s46, 3"); a.e("s_sub_u32 s47, s45, s47"); a.e("s_lshl_b32 s47, s47, 2"); a.e("s_lshr_b32 s47, 0x362, s47"); a.e("s_and_b32 s47, s47, 7")
    a.e("s_cmp_ge_u32 s44, 10"); a.e("s_cselect_b32 s45, 9, 2"); a.e("s_cselect_b32 s51, 1, 0"); a.e("s_sub_u32 s45, s44, s45")
    a.e("s_cmp_lt_u32 s44, 3"); a.e("s_cselect_b32 s45, 0, s45"); a.e("s_cselect_b32 s51, s44, s51")
    a.e(f"s_lshl2_add_u32 s51, {lw}, s51")
    a.e("s_cmp_lt_u32 s44, 17"); a.e("s_cselect_b32 s47, s51, s47"); a.e("s_cselect_b32 s46, s45, s46")
    a.e("s_add_u32 s46, s46, s33"); a.e("s_and_b32 s46, s46, 7"); a.e("s_mul_i32 s46, s46, 7"); a.e(f"s_add_u32 s{d}, s46, s47")
assert all((q * 86) >> 8 == q // 3 for q in range(24))
WVB = {1: 238, 2: 238, 4: 239, 3: 241}
WV = 245
def w_lanes(a):
    t, t2 = WV + 8, WV + 9
    R = WVB[1]
    a.e(f"v_lshrrev_b32 v{t}, 3, v1"); a.e(f"v_lshlrev_b32 v{R}, 11, v{t}")
    a.e(f"v_and_b32 v{t}, 6, v{t}"); a.e(f"v_and_b32 v{t2}, 7, v1"); a.e(f"v_xor_b32 v{t}, v{t}, v{t2}"); a.e(f"v_lshl_add_u32 v{R}, v{t}, 4, v{R}")
    R = WVB[4]
    for p in range(2):
        a.e(f"v_lshrrev_b32 v{t}, 4, v1"); a.e(f"v_lshlrev_b32 v{R+p}, 11, v{t}")
        a.e(f"v_add_u32 v{t}, {4*p}, v{t}"); a.e(f"v_lshlrev_b32 v{t}, 1, v{t}"); a.e(f"v_and_b32 v{t2}, 15, v1"); a.e(f"v_xor_b32 v{t}, v{t}, v{t2}")
        a.e(f"v_lshl_add_u32 v{R+p}, v{t}, 4, v{R+p}")
    R = WVB[3]
    assert all((p * 2341) >> 16 == p // 28 for p in range(448))
    for ii in range(7):
        a.e(f"v_add_u32 v{t2}, {64*ii}, v1"); a.e(f"v_mul_u32_u24 v{t}, 2341, v{t2}"); a.e(f"v_lshrrev_b32 v{t}, 16, v{t}")
        a.e(f"v_mul_u32_u24 v{R+ii}, 28, v{t}"); a.e(f"v_sub_u32 v{t2}, v{t2}, v{R+ii}")
        a.e(f"v_mul_u32_u24 v{R+ii}, 7168, v{t}")
        a.e(f"v_lshrrev_b32 v{t}, 1, v{t}"); a.e(f"v_and_b32 v{t}, 2, v{t}"); a.e(f"v_xor_b32 v{t2}, v{t2}, v{t}")
        a.e(f"v_lshl_add_u32 v{R+ii}, v{t2}, 4, v{R+ii}")
def w_srd(a, which):
    c = CFG[which]
    a.e(f"s_mov_b64 s[12:13], s[{66+2*which}:{67+2*which}]")
    a.e(f"s_mov_b32 s14, {c['KBT'] * 32 * c['LDW']}"); a.e("s_mov_b32 s15, 0x20000")
def w_setup(a, which, pre=True, lo=0):
    c = CFG[which]; STB = c["STB"]; BW = STB // 2
    w_srd(a, which)
    a.e("s_and_b32 s35, s30, 1")
    a.e(f"s_mul_i32 s38, s{29 if which != 4 else 33}, {c['RB']}");
    if which != 4: a.e(f"s_mul_i32 s41, s35, {32*c['LDW']}"); a.e("s_add_u32 s38, s38, s41")
    if which == 4: a.e(f"s_mul_i32 s41, s31, {1792*c['LDW']}"); a.e("s_add_u32 s38, s38, s41")
    a.e(f"s_mul_i32 s41, s35, {BW}"); a.e(f"s_add_u32 s41, s41, {c['WB']}")
    a.e("s_mov_b32 s42, 0"); rot_init(a, which)
    if not pre: return
    NP = c["NPRE"]
    a.e("s_mov_b32 s49, s44"); a.e("s_and_b32 s43, s28, 3"); a.e(f"s_mul_i32 s43, s43, {NP - lo}"); a.e("s_lshr_b32 s43, s43, 2"); a.e(f"s_mov_b32 s50, {lo}")
    if not WROT: a.e("s_mov_b32 s43, 0")
    if lo: a.e(f"s_add_u32 s43, s43, {lo}")
    L = a.lab("wpre"); a.e(f"{L}:")
    a.e(f"s_mul_i32 s42, s43, {STB}"); a.e("s_add_u32 s44, s49, s43")
    if which != 4: a.e("s_and_b32 s44, s44, 15")
    w_issue(a, which, pace=PACES.get(which, PACE))
    a.e("s_add_u32 s43, s43, 1"); a.e(f"s_cmp_eq_u32 s43, {NP}"); a.e(f"s_cselect_b32 s43, {lo}, s43")
    a.e("s_add_u32 s50, s50, 1"); a.e(f"s_cmp_lt_u32 s50, {NP}"); a.e(f"s_cbranch_scc1 {L}")
    mstamp(a)
    a.e(f"s_mov_b32 s42, {(NP % c['NW']) * STB}"); a.e(f"s_add_u32 s44, s49, {NP}")
    if which != 4: a.e("s_and_b32 s44, s44, 15")
def park_load(a, pace):
    w_srd(a, 2)
    a.e("s_and_b32 s35, s30, 3"); a.e("s_lshl_b32 s35, s35, 19"); a.e("s_lshl_b32 s39, s29, 7"); a.e("s_add_u32 s39, s39, s35")
    for q in range(32):
        a.e(f"buffer_load_dwordx4 {vr(PK+4*q,4)}, v{WVB[2]}, s[12:15], s39 offen"); a.e("s_add_u32 s39, s39, 16384")
        if q % 4 == 3: sb(a, SB[1])
        if pace and q % 4 == 3: a.e(f"s_waitcnt vmcnt({pace})")
def park(a): park_load(a, int(os.environ.get("PKP", "8")))
def late_park(a):
    X = a.lab("lp"); a.e("s_cmp_lg_u32 s60, 0"); a.e(f"s_cbranch_scc1 {X}"); call(a, park); a.e(f"{X}:")
def after_g1(a):
    c = CFG[3]
    w_srd(a, 3)
    a.e(f"v_readlane_b32 s36, v{TV+3}, 0"); a.e(f"v_readlane_b32 s37, v{TV+3}, 1")
    a.e("s_and_b32 s35, s30, 3"); a.e(f"s_mul_i32 s38, s35, {16*7168}"); a.e("s_mul_i32 s39, s29, 448"); a.e("s_add_u32 s38, s38, s39")
    for r in (36, 37): a.e(f"s_and_b32 s{r}, s{r}, 15"); a.e(f"s_mul_i32 s{r}, s{r}, {64*7168}"); a.e(f"s_add_u32 s{r}, s{r}, s38")
    a.e("s_mul_i32 s39, s35, 7168"); a.e(f"s_add_u32 m0, s39, {c['WB'] + c['S0'] * c['STB']}")
    for i in range(7):
        if i: a.e("s_add_u32 m0, m0, 1024")
        a.e(f"buffer_load_dwordx4 v{WVB[3]+i}, s[12:15], s36 offen lds")
    for i in range(7): a.e(f"buffer_load_dwordx4 {vr(W3S+4*i,4)}, v{WVB[3]+i}, s[12:15], s37 offen")
    a.e("s_lshr_b32 s36, s67, 2"); a.e("s_sub_u32 s36, s35, s36"); a.e("s_and_b32 s36, s36, 3"); a.e("s_lshl_b32 s36, s36, 15"); a.e(f"v_add_u32 v6, s36, v2")
    a.e("s_waitcnt vmcnt(14)")
    for q in range(32): a.e(f"ds_write_b128 v6, {vr(PK+4*q,4)} offset:{CFG[2]['WB'] + 1024*q}")
    a.e("s_waitcnt vmcnt(0) lgkmcnt(0)")
def after_g2(a):
    c = CFG[3]
    a.e("s_and_b32 s35, s30, 3"); a.e("s_mul_i32 s39, s35, 7168"); a.e(f"s_add_u32 s39, s39, {c['WB'] + (c['S0'] + 1) % c['NW'] * c['STB']}"); a.e("v_add_u32 v6, s39, v2")
    for i in range(7): a.e(f"ds_write_b128 v6, {vr(W3S+4*i,4)} offset:{1024*i}")
    a.e("s_waitcnt lgkmcnt(0)")
SUBX = {}
def call(a, f):
    SUBX[f.__name__] = f; a.e(f"s_call_b64 s[76:77], SUB_{f.__name__}")
def w1_slots(a, js, pace=0):
    for j in js:
        a.e(f"s_mov_b32 s42, {j*8192}"); a.e("s_mov_b32 s44, s67"); a.e(f"s_add_u32 s44, s44, {j}"); a.e("s_and_b32 s44, s44, 15")
        call_issue(a, w_issue, 1)
        if pace: a.e(f"s_waitcnt vmcnt({pace})")
def w1_done(a):
    a.e("s_mov_b32 s42, 0"); a.e("s_mov_b32 s44, s67"); a.e("s_add_u32 s44, s44, 13"); a.e("s_and_b32 s44, s44, 15")
class Rec:
    def __init__(s_): s_.l = []
    def e(s_, x): s_.l.append(x)
    srd = Asm.srd
def w_parts(which, direct=False):
    c = CFG[which]; STB = c["STB"]; n = STB // 2048; LDW = c["LDW"]; b = Rec()
    b.e("s_add_u32 s19, s41, s42")
    arm = ["s_mov_b32 m0, s19", "s_mov_b32 s39, s16"]
    if which == 4 and TAB:
        b.e(f"v_readlane_b32 s16, v{TV+1}, s44")
        b.e("s_bitcmp1_b32 s16, 0"); b.e(f"s_cselect_b32 s17, {8*2048}, {4*2048}".replace(f"{4*2048}", "s45")); b.e(f"s_cselect_b32 s18, {-20*2048}, s45")
        b.e("s_andn2_b32 s16, s16, 1"); b.e("s_add_u32 s16, s16, s38")
        b.l.insert(0, f"s_mov_b32 s45, {4*2048}")
        arm += ["s_mov_b32 s32, s17", "s_mov_b32 s3, s18"]
    elif which == 3 and TAB and not direct:
        b.e(f"v_readlane_b32 s16, v{TV}, s44"); b.e("s_add_u32 s16, s16, s38")
    elif which == 4:
        b.e("s_and_b32 s40, s30, 1"); kb4(b, 16, "s40")
        b.e(f"s_mul_i32 s16, s16, {32*LDW}"); b.e("s_add_u32 s16, s16, s38")
        b.e("s_cmp_eq_u32 s47, 3"); b.e("s_cselect_b32 s17, 8, 4"); b.e("s_cselect_b32 s18, -20, 4")
        b.e("s_lshl_b32 s17, s17, 11"); b.e("s_lshl_b32 s18, s18, 11")
        arm += ["s_mov_b32 s32, s17", "s_mov_b32 s3, s18"]
    else:
        b.e(f"s_mul_i32 s16, s44, {64*LDW}"); b.e("s_add_u32 s16, s16, s38")
    if f"w{which}" in os.environ.get("HOT", ""): b.e("s_mov_b32 s16, s38")
    rot_next(b, which)
    b.e(f"s_add_u32 s42, s42, {STB}"); b.e(f"s_cmp_eq_u32 s42, {c['NW']*STB}"); b.e("s_cselect_b32 s42, 0, s42")
    fire = []
    for i in range(n):
        g = []
        if i:
            g.append("s_add_u32 m0, m0, 1024")
            if which in (1, 2): g.append(f"s_add_u32 s39, s39, {8*LDW}")
            elif which == 4: g.append(f"s_add_u32 s39, s39, s{3 if i == 4 else 32}")
            elif i == 7: g.append(f"s_add_u32 s39, s39, {16*LDW}")
        vo = WVB[which] + (0 if which in (1, 2) else (i & 1) if which == 4 else i % 7)
        fire.append(g + [f"buffer_load_dwordx4 v{vo}, s[12:15], s39 offen lds"])
    if f"w{which}" in os.environ.get("NOLD", ""): fire = [[x for x in g if not x.startswith("buffer_load")] + ["s_nop 0"] for g in fire]
    return b.l, arm, fire
def w_issue(a, which, pace=0, direct=False):
    prep, arm, fire = w_parts(which, direct)
    for x in prep + arm: a.e(x)
    for i, g in enumerate(fire):
        for x in g: a.e(x)
        if pace and (i % 4 == 3 or i == len(fire) - 1): a.e(f"s_waitcnt vmcnt({pace})")

def w_bases(a, which, dst, swn, ntl, t, t2):
    c = CFG[which]; RB = c["RB"]
    a.e(f"v_lshrrev_b32 v{t}, 2, v1")
    a.e(f"v_mul_u32_u24 v{dst}, {RB}, v{t}"); a.e(f"v_and_b32 v{t2}, 3, v1"); a.e(f"v_lshl_add_u32 v{dst}, v{t2}, 3, v{dst}")
    a.e(f"v_add_u32 v{dst}, {c['WB']}, v{dst}")
    if which == 3:
        a.e(f"s_mul_i32 s36, s{swn}, {7*32}"); a.e(f"v_add_u32 v{dst}, s36, v{dst}")
        a.e(f"v_bfe_u32 v{t}, v1, 4, 1"); a.e(f"v_lshlrev_b32 v{t}, 5, v{t}")
        a.e(f"s_cmp_eq_u32 s{swn}, 0"); a.e("s_cselect_b32 s36, 1, -1"); a.e(f"v_mul_lo_u32 v{t}, v{t}, s36")
        a.e(f"v_sub_u32 v{dst+1}, v{dst}, v{t}"); a.e(f"v_add_u32 v{dst}, v{dst}, v{t}")
        return 2, lambda nt, kk, h: (nt & 1, (32 * kk + 16 * h) * RB + 32 * nt)
    if which == 4: a.e(f"v_and_b32 v{t}, 7, v{t}")
    else: a.e(f"v_bfe_u32 v{t}, v{t}, 1, 2")
    for nt in range(ntl - 1, -1, -1):
        a.e(f"s_mul_i32 s36, s{swn}, {ntl}"); a.e(f"s_add_u32 s36, s36, {nt}")
        a.e(f"v_xor_b32 v{t2}, s36, v{t}"); a.e(f"v_lshl_add_u32 v{dst+nt}, v{t2}, 5, v{dst}")
    return ntl, lambda nt, kk, h: (nt, (32 * kk + 16 * h) * RB)

def a_parts(which):
    c = CFG[which]; b = Rec()
    if which <= 2 and NX:
        b.e("s_and_b32 s42, s48, 7"); b.e("s_lshl_b32 s42, s42, 14"); b.e("s_lshr_b64 s[48:49], s[48:49], 4")
    b.e("s_add_u32 s19, s41, s42")
    arm = ["s_mov_b32 m0, s19", "s_mov_b32 s39, s16"]; fire = []
    if which == 2:
        b.e(f"s_mul_i32 s16, s44, {8*PITCH}"); b.e("s_add_u32 s16, s16, s38")
        b.e("s_lshr_b32 s45, s44, 2"); b.e("s_xor_b32 s45, s45, s94"); b.e("s_and_b32 s45, s45, 1"); b.e("s_lshl_b32 s45, s45, 13"); b.e("s_add_u32 s16, s16, s45")
        b.e("s_lshr_b32 s45, s44, 3"); b.e("s_lshl_b32 s45, s45, 4"); b.e("s_add_u32 s45, s45, 16")
        b.e("s_sub_u32 s46, 0, s45"); b.e("s_bitcmp1_b32 s44, 2"); b.e("s_cselect_b32 s45, s45, s46"); b.e("s_add_u32 s16, s16, s45")
        step = PITCH
    elif which == 4:
        for lw in range(2):
            if TAB: b.e(f"v_readlane_b32 s{16+lw}, v{TV+1+lw}, s44")
            else: kb4(b, 16 + lw, lw); spread(b, 16 + lw, 16 + lw)
        for lw in range(2): b.e(f"s_add_u32 s{16+lw}, s{16+lw}, s38")
        arm.append("s_mov_b32 s40, s17")
        for i in range(4):
            for lw in range(2):
                fire.append((["s_add_u32 m0, m0, 1024"] if i or lw else []) + ([f"s_add_u32 s{39+lw}, s{39+lw}, {c['KBT']*2048}"] if i else []) +
                            [f"buffer_load_dwordx4 v2, s[12:15], s{39+lw} offen {SC} lds"])
    elif which == 3 and TAB:
        b.e(f"v_readlane_b32 s16, v{TV}, s44"); b.e("s_add_u32 s16, s16, s38"); step = c['KBT'] * 2048
    else:
        b.e("s_lshr_b32 s45, s44, 2"); b.e("s_lshl_b32 s45, s45, 14"); b.e("s_and_b32 s16, s44, 3"); b.e("s_lshl_b32 s16, s16, 11")
        b.e("s_add_u32 s16, s16, s45"); b.e("s_add_u32 s16, s16, s38"); step = c['KBT'] * 2048
    if f"a{which}" in os.environ.get("HOT", ""):
        b.e("s_mov_b32 s16, s38")
        if which == 4: b.e("s_add_u32 s17, s38, 1024")
    for i in range(4 if which != 4 else 0):
        fire.append((["s_add_u32 m0, m0, 2048", f"s_add_u32 s39, s39, {step}"] if i else []) + [f"buffer_load_dwordx4 v2, s[12:15], s39 offen {SC} lds"])
        fire.append([f"buffer_load_dwordx4 v2, s[12:15], s39 offen offset:1024 {SC} lds"])
    rot_next(b, which)
    if not (which <= 2 and NX):
        b.e(f"s_add_u32 s42, s42, 16384"); b.e(f"s_cmp_eq_u32 s42, {c['NA']*16384}"); b.e("s_cselect_b32 s42, 0, s42")
    if f"a{which}" in os.environ.get("NOLD", ""): fire = [[x for x in g if not x.startswith("buffer_load")] + ["s_nop 0"] for g in fire]
    return b.l, arm, fire
def a_issue(a, which):
    prep, arm, fire = a_parts(which)
    for x in prep + arm + sum(fire, []): a.e(x)
SUBS = {}
def call_issue(a, issue, which):
    nm = f"SUB_{issue.__name__}_{which}"; SUBS[nm] = (issue, which)
    a.e(f"s_call_b64 s[76:77], {nm}")
def emit_subs(a):
    for nm, f in SUBX.items(): a.e(f"SUB_{nm}:"); f(a); a.e("s_setpc_b64 s[76:77]")
    for nm, (issue, which) in SUBS.items():
        a.e(f"{nm}:"); issue(a, which); a.e("s_setpc_b64 s[76:77]")
def ld_steps(a, which, N, per, issue, npre, rate=2, plan={}, lo=0, hi=None, last=None, hold=(), sched=None, armed=False):
    NS = CFG[which]["NS"]
    prep, arm, fire = (w_parts if issue is w_issue else a_parts)(which); h = max(1, per * HSPLIT // 8)
    plan = {b: (x if isinstance(x, list) else [x]) for b, x in plan.items()}
    q = [s_ for s_ in range(npre) for _ in range(per)]
    def after(tag):
        if issue is w_issue and isinstance(tag, int) and tag < npre: tag = npre - 1
        return len(q) - 1 - max(i for i, x in enumerate(q) if x == tag)
    issued = npre; steps = []
    for b in range(NS):
        acts = plan.get(b, []); was = {}
        def do(pos):
            for n_, act in enumerate(acts):
                if act[0] != pos: continue
                if act[1] is not None: was[n_] = after(act[1])
                q.extend([act[4]] * act[3])
        do(True)
        k = 0
        if (b > 0 or (sched is not None and issue is a_issue)) and b not in hold:
            k = max(0, min(rate, min(NS, b - 1 + N) - issued)) if sched is None else sched[b]
        assert k or not any(x[0] == "mid" for x in acts)
        for j in range(k):
            q.extend([issued] * h)
            if j == 0: do("mid")
            q.extend([issued] * (per - h)); issued += 1
        do(False)
        w = after(b); assert w <= 63
        steps.append((k, w, b if acts else None, tuple(sorted(was.items())), issued < NS))
    def em(l):
        for x in l:
            a.e(x)
            if x == "s_barrier" and os.environ.get("JIT"): mstamp(a)
    F1, F2 = sum(fire[:h], []), sum(fire[h:], [])
    lprep = prep
    if len(prep) > 8:
        nm = f"PREP_{issue.__name__}_{which}"; SUBS[nm] = ((lambda a_, w_, l=prep: [a_.e(x) for x in l]), which)
        prep = [f"s_call_b64 s[76:77], {nm}"]
    if lo == 0 and npre < NS and not armed: em(prep + arm)
    i = lo; HI = NS if hi is None else hi
    while i < HI:
        j = i
        while j < HI and steps[j] == steps[i]: j += 1
        k, w, ab, was, more = steps[i]; n = j - i; was = dict(was)
        def run(pos):
            for n_, act in enumerate(plan.get(ab, [])):
                if act[0] != pos: continue
                if n_ in was: a.e(f"s_waitcnt vmcnt({was[n_]})")
                act[2]()
        tail = [f"s_waitcnt vmcnt({w})", "s_barrier"]
        if n > 2 and k == 1:
            em(F1); a.e("s_mov_b32 s43, 1"); L = a.lab("ld"); a.e(f"{L}:")
            em(lprep + F2 + arm + tail + F1)
            a.e("s_add_u32 s43, s43, 1"); a.e(f"s_cmp_lt_u32 s43, {n}"); a.e(f"s_cbranch_scc1 {L}")
            em(prep + F2 + arm + tail)
        else:
            for r in range(n):
                run(True)
                for jj in range(k):
                    nxt = more or jj < k - 1
                    em(F1)
                    if jj == 0: run("mid")
                    em((prep if nxt else []) + F2 + (arm if nxt else []))
                run(False)
                em(tail)
        i = j
    if hi is not None: return
    if which == 4:
        if issue is a_issue: a.e("s_cmp_eq_u32 s60, 1"); a.e("s_cbranch_scc1 K_fin")
        elif hold is HOLD: a.e("s_branch K_fin"); return
        if not RPL: r_pre(a)
    if last: last()
    late = os.environ.get("TLATE", "0") == "1"
    if late: a.e("s_barrier")
    if issue is a_issue and W4POS == f"{which}C":
        X = a.lab("tw4"); a.e("s_cmp_lg_u32 s60, 0"); a.e(f"s_cbranch_scc1 {X}"); touch(a, B_W4, 7 * MB, 20); a.e(f"{X}:")
    if not late: a.e("s_barrier")

HOLD = eval(os.environ.get("HOLD", "[2,3,4]"))
def a_loader(a, which):
    c = CFG[which]
    if which <= 2:
        plan = side_jobs(a, 1) if which == 1 else {}
        poll(a, which - 1, 8); mstamp(a)
        for b in sorted(plan):
            for act in (plan[b] if isinstance(plan[b], list) else [plan[b]]):
                if act[1] is not None: a.e("s_waitcnt vmcnt(0)")
                act[2]()
        a.e("s_barrier")
        if which == 1 and "p" not in os.environ.get("FO", "1pd"): late_park(a)
        call(a, after_g1 if which == 1 else after_g2)
        return
    a.e("s_and_b32 s35, s30, 1")
    if which == 2:
        hs_srd(a, 12)
        a.e("s_lshl_b32 s38, s28, 11"); a.e("s_add_u32 s38, s38, 16384"); a.e(f"s_mul_i32 s36, s35, {4*PITCH}"); a.e("s_add_u32 s38, s38, s36")
    else:
        lsrd(a, 12, c["A"], XSZ if which != 4 else H2SZ)
        a.e(f"s_mul_i32 s38, s35, {4*c['KBT']*2048}")
        if which == 4: a.e(f"s_mul_i32 s36, s31, {7*16384}"); a.e("s_add_u32 s38, s38, s36")
    a.e("s_lshl_b32 s41, s35, 13"); a.e("s_mov_b32 s42, 0"); rot_init(a, which)
    assert c["NA"] == 3
    prep, arm, fire = a_parts(which)
    if which == 4:
        flag_addr(a, 9, ST_G3A); flag_addr(a, 10, ST_G3B); flag_addr(a, 12, ST_G3)
        own_wait(a, ST_G3A, False, 14)
        poll_core(a, 8, [9], 1, cnt=8); mstamp(a)
        plan = {6 - L4: ("mid", None, lambda: flag_try(a, 11, 10), 1, "f"), 8 - L4: ("mid", "f", lambda: flag_check(a, 11, 10, 8), 0, None),
                13 - L4: ("mid", None, lambda: flag_try(a, 11, 12), 1, "g"), 15 - L4: ("mid", "g", lambda: flag_check(a, 11, 12, 8), 0, None)}
        a.e("s_mov_b32 s44, 3")
        ld_steps(a, which, 3, 8, a_issue, 3, plan=plan); return
    if which == 3:
        mask, cnt = flag_addr(a, 9, ST_G2)
        def wait2():
            if B0E > 1: a.e(f"s_sleep {B0E}")
            poll_core(a, 8, [9], mask, cnt=cnt); mstamp(a); mstamp(a)
            if W3H: a.e("s_add_u32 s54, s60, 1"); lds_set(a, LW + 60, "s54", 10)
        rot_next(a, 3); a.e("s_mov_b32 s42, 16384")
        plan = side_jobs(a, 3)
        if os.environ.get("P30", "0") == "1":
            def wait0(): own_wait(a, ST_G2, False, 14); wait2()
            plan[0] = (True, None, wait0, 0, None)
            ld_steps(a, which, 3, 8, a_issue, 1, plan=plan, sched=[int(os.environ.get("P3N", "1")), 2 - int(os.environ.get("P3N", "1"))] + [1] * 13 + [0]); return
        plan[1] = (True, None, wait2, 0, None)
        if RPL: plan[15] = (False, None, lambda: call(a, r_pre0), 8, "r")
        PZ3 = int(os.environ.get("PZ3", "0"))
        if PZ3:
            a.srd(84, 4, 32 * MB, off=216 * MB)
            a.e("s_cmp_eq_u32 s60, 0"); a.e("s_cselect_b32 s86, s86, 0")
            for i in range(4): a.e(f"v_mov_b32 v{216+i}, -1")
            a.e("s_lshl_b32 s88, s2, 1"); a.e("s_and_b32 s50, s30, 1"); a.e("s_add_u32 s88, s88, s50"); a.e(f"s_mul_i32 s88, s88, {PZ3*12*1024}")
            def pz():
                for i in range(PZ3): a.e(f"buffer_store_dwordx4 v[216:219], v2, s[84:87], s88 offen offset:{i*1024} {SC}")
                a.e(f"s_add_u32 s88, s88, {PZ3*1024}")
            for b in range(2, 14):
                p_ = plan.get(b, []); p_ = p_ if isinstance(p_, list) else [p_]
                plan[b] = p_ + [(False, None, pz, PZ3, "z")]
        ld_steps(a, which, 3, 8, a_issue, 1, plan=plan); return
    assert 0

def side_jobs(a, which):
    c = CFG[which]; plan = {}
    sv = 16; S, Q, mean, rs, tt, ad, fa, fr = 216, 217, 218, 219, 220, 221, 222, 223
    cv = 180 if which == 3 else 24; N = c["LDW"] // 2; co_ = 224; HB = c["TN16"] * 32
    lg = 3 if which == 1 else 5
    def cld(k0=0, k1=4):
        if k0 == 0:
            a.srd(24, 4, 32 * N * 4, off=CSP[which])
            a.e("s_cmp_eq_u32 s60, 0"); a.e("s_cselect_b32 s26, s26, 0")
            if NOCS3 and which == 3: a.e("s_mov_b32 s26, 0")
            a.e("s_and_b32 s36, s30, 1"); a.e(f"s_mul_i32 s36, s36, {HB}"); a.e(f"s_mul_i32 s37, s29, {2*HB}"); a.e("s_add_u32 s37, s36, s37")
            a.e(f"v_lshrrev_b32 v{co_}, {lg}, v1"); a.e(f"v_mul_u32_u24 v{co_}, {N*4}, v{co_}")
            a.e(f"v_and_b32 v{cv-1}, {16*((1 << lg) - 1)}, v2"); a.e(f"v_add_u32 v{co_}, v{co_}, v{cv-1}")
        for k in range(k0, k1):
            a.e(f"buffer_load_dwordx4 {vr(cv+4*(k if k < 9 else k - 8),4)}, v{co_}, s[24:27], s37 offen {SC}"); a.e(f"s_add_u32 s37, s37, {N*4*(64 >> lg)}")
    def piece(lines, l0=False):
        def f():
            X = a.lab("pc")
            if l0: a.e("s_cmp_lg_u32 s60, 0"); a.e(f"s_cbranch_scc1 {X}")
            for x in lines: a.e(x)
            if l0: a.e(f"{X}:")
        return f
    def cadd(k0, k1): return [f"v_pk_add_f32 {vr(cv+2*h,2)}, {vr(cv+2*h,2)}, {vr(cv+4*k+2*h,2)}" for k in range(k0, k1) for h in range(2)]
    def sw(op): return [f"v_mov_b32 v{cv+4+e}, v{cv+e}" for e in range(4)] + [f"{op} v{cv+e}, v{cv+4+e}" for e in range(4)] + cadd(1, 2)
    if which in (1, 3):
        cout = ["s_and_b32 s36, s30, 1", f"s_mul_i32 s36, s36, {HB}", f"s_add_u32 s36, s36, {CSO[which]}", f"v_add_u32 v{cv-1}, s36, v2",
                f"s_bfm_b64 exec, {HB//16}, 0", f"ds_write_b128 v{cv-1}, {vr(cv,4)}", "s_mov_b64 exec, -1", "s_waitcnt lgkmcnt(0)"]
    if which == 1:
        flag_addr(a, fa, ST_R2)
        def ld():
            flag_check(a, fr, fa, 16)
            lsrd(a, 20, oLNS, 2048); a.e("s_and_b32 s35, s30, 1"); a.e("s_lshl_b32 s35, s35, 10")
            a.e(f"buffer_load_dwordx4 {vr(sv,4)}, v2, s[20:23], s35 offen {SC}")
        fin = piece(["s_and_b32 s36, s30, 1", "s_lshl_b32 s36, s36, 10", f"s_add_u32 s36, s36, {LNSL}", f"v_add_u32 v{ad}, s36, v2", f"ds_write_b128 v{ad}, {vr(sv,4)}", "s_waitcnt lgkmcnt(0)"])
        a.e("s_lshl_b32 s53, s29, 7"); a.e(f"s_add_u32 s53, s53, {F_CS}"); a.e(f"v_mov_b32 v{fa+4}, s53")
        def cld1(): flag_check(a, fr + 4, fa + 4, 16); cld()
        work = cadd(1, 4) + [f"v_add_f32_dpp v{cv+e}, v{cv+e}, v{cv+e} row_ror:8 row_mask:0xf bank_mask:0xf" for e in range(4)] + \
               sw("v_permlane16_swap_b32") + sw("v_permlane32_swap_b32")
        plan = {2: (False, None, lambda: flag_try(a, fr + 4, fa + 4), 1, "e"), 5: [(False, "e", cld1, 4, "c"), (False, None, lambda: flag_try(a, fr, fa), 1, "f")],
                8: (False, "f", ld, 1, "d"), 15: [(False, None, piece(cout, 1), 0, None), (False, "d", fin, 0, None)]}
        for i in range(6): plan[9 + i] = (False, None, piece(work[5*i:5*i+5], 1), 0, None)
    if which == 3:
        flag_addr(a, fa, ST_G2S)
        a.e(f"v_lshlrev_b32 v{ad}, 3, v1")
        def ld(k0):
            def f():
                if k0 == 0:
                    flag_check(a, fr, fa, 16)
                    lsrd(a, 20, oST2, 24576)
                    a.e("s_and_b32 s35, s30, 1"); a.e("s_lshl_b32 s35, s35, 9")
                a.e(f"s_add_u32 s36, s35, {k0*2048}")
                for k in range(k0, k0 + 8):
                    if k % 8 == 4: a.e("s_add_u32 s36, s36, 4096")
                    a.e(f"buffer_load_dwordx2 {vr(sv+2*k,2)}, v{ad}, s[20:23], s36 offen offset:{(k&3)*1024} {SC}")
            return f
        b = Rec()
        for st_ in (8, 4, 2, 1):
            for k in range(st_): b.e(f"v_pk_add_f32 {vr(sv+2*k,2)}, {vr(sv+2*k,2)}, {vr(sv+2*(k+st_),2)}")
        b.e(f"v_mul_f32 v{mean}, {f32(1/1024)}, v{sv}"); b.e(f"v_mul_f32 v{Q}, {f32(1/1024)}, v{sv+1}")
        b.e(f"v_fma_f32 v{Q}, -v{mean}, v{mean}, v{Q}"); b.e(f"v_max_f32 v{Q}, 0, v{Q}")
        ln_finish(b, mean, Q, rs)
        b.e(f"s_add_u32 s35, s35, {AUX+1024}"); b.e(f"v_add_u32 v{tt}, s35, v{ad}")
        b.e(f"ds_write_b64 v{tt}, {vr(mean,2)}"); b.e("s_waitcnt lgkmcnt(0)")
        def both(f, g):
            def h(): f(); g()
            return h
        plan = {2: (False, None, cld, 4, "c"), 3: (False, None, lambda: cld(4, 9), 5, "c"),
                5: [(False, "c", piece(cadd(1, 5), 1), 0, None), (False, None, lambda: flag_try(a, fr, fa), 1, "f")],
                6: (False, None, both(piece(cadd(5, 9), 1), lambda: cld(9, 16)), 7, "e"),
                7: (False, "f", ld(0), 8, "d"), 8: (False, None, ld(8), 8, "d"),
                9: (False, "e", piece(cadd(1, 5), 1), 0, None), 10: (False, None, piece(cadd(5, 8), 1), 0, None), 11: (False, None, piece(sw("v_permlane32_swap_b32") + cout, 1), 0, None),
                12: (False, "d", piece(b.l[:10]), 0, None), 13: (False, None, piece(b.l[10:18]), 0, None), 14: (False, None, piece(b.l[18:]), 0, None)}
    return plan

W2E = int(os.environ.get("W2E", "3"))
def w2_early(a):
    if W2E: w_setup(a, 2, pre=False); w1_slots(a, range(W2E), pace=8)
def w_loader(a, which):
    c = CFG[which]
    if which < 3:
        if which == 1: a.e("s_waitcnt vmcnt(0)")
        if which == 1 and "a" in STO: stouch(a, 3, 128 if "8" in STO else 64, 2); mstamp(a)
        if which == 1 and sum(SG): sb_init(a)
        sg(a, SG[2*which-2])
        a.e("s_barrier")
        sg(a, SG[2*which-1])
        if which == 1 and "b" in STO: stouch(a, 3, 128 if "8" in STO else 64, 2); mstamp(a)
        if which == 2 and "4" in STO: stouch(a, 4, 128 if "8" in STO else 64, 2); mstamp(a)
        a.e("s_barrier")
        if which == 1 and "p" not in os.environ.get("FO2", "1"): late_park(a)
        call(a, after_g1 if which == 1 else after_g2); mstamp(a)
        return
    args = (a, which, c["NW"], c["STB"] // 2048, w_issue, c["NPRE"], c["WR"])
    if which == 4:
        assert c["NW"] == 6 and c["WB"] == CFG[1]["WB"] + 3 * 8192
        a.e("s_cmp_eq_u32 s60, 1"); a.e("s_cbranch_scc1 WL_t1")
        ld_steps(*args, hi=24)
        def first(): w_setup(a, 1, pre=False); w1_slots(a, (11, 12, 15))
        plan = {24: (False, None, first, 12, "w"), 25: (False, None, lambda: w1_slots(a, (13, 14)), 8, "w"),
                26: (False, None, lambda: w1_slots(a, (3, 4)), 8, "w"), 27: (False, None, lambda: w1_slots(a, (5, 6)), 8, "w")}
        ld_steps(*args, plan=plan, lo=24, last=lambda: w1_slots(a, (7, 8)))
        w1_slots(a, (9, 10)); w1_slots(a, range(3 - W1L, 3), pace=8); mstamp(a)
        a.e("s_branch NEXT")
        a.e("WL_t1:")
        ld_steps(*args, hold=HOLD)
        return
    plan = {}
    if W3H: plan[1] = (True, None, lambda: (a.e("s_add_u32 s54, s60, 1"), lds_spin(a, LW + 60, "s54", 6, nap=1)), 0, None)
    if RPL: plan[int(os.environ.get("RPW", "15"))] = (False, None, lambda: call(a, r_pre0), 8, "r")
    ld_steps(*args, plan=plan)
W3H = int(os.environ.get("W3H", "0"))
W1L = int(os.environ.get("W1L", "3"))

B0E = int(os.environ.get("B0E", "6")); RPL = int(os.environ.get("RPL", "1")); RPC = int(os.environ.get("RPC", "1"))
LF1 = os.environ.get("LF1", ""); LF2 = os.environ.get("LF2", "")
RES2 = 160; C2R = 200; SO3 = 238; RES4 = [172, 176, 180, 184, 188, 192, 196, 240]
def g_compute(a, which):
    c = CFG[which]
    WM, WN, MT, NT, KBT, NS, NA, NW, TN16, STB, WB = [c[k] for k in "WM WN MT NT KBT NS NA NW TN16 STB WB".split()]
    v = VA(6); nm = f"G{which}"
    lane = 1; l16 = 2
    t = v(); t2 = v(); pt = v(4, 2)
    NTILE = 29 if which != 4 else 33
    if WN == 2: a.e("s_lshr_b32 s34, s30, 1"); a.e("s_and_b32 s35, s30, 1")
    else: a.e("s_mov_b32 s34, s30"); a.e("s_mov_b32 s35, 0")
    a0 = v(); w0 = v(4, 1); aa = v(); wa = v(4, 1); J = v(); G = v()
    a.e(f"v_and_b32 v{J}, 15, v{lane}"); a.e(f"v_lshrrev_b32 v{G}, 4, v{lane}")
    a.e(f"s_mul_i32 s37, s34, {MT}")
    a.e(f"s_mul_i32 s38, s{NTILE}, {TN16}"); a.e(f"s_mul_i32 s36, s35, {NT}"); a.e("s_add_u32 s38, s38, s36")
    acc = v(MT * NT * 4, 4); NF = MT + NT if which > 2 else 8
    fX = v(NF * 4, 4); fY = v(NF * 4, 4); tmp = v(); tp = v(4, 2)
    def A_(mt, nt): return acc + 4 * (mt * NT + nt)
    def SUBM(r): return f"{vr(r,2)} op_sel_hi:[1,0] neg_lo:[0,1] neg_hi:[0,1]"
    def MULR(r): return f"{vr(r,2)} op_sel:[0,1] op_sel_hi:[1,1]"
    if which in (2, 4):
        res = RES2
        a.e("s_lshr_b32 s36, s38, 1"); spread(a, 39, 36); a.e("s_lshl_b32 s36, s37, 16"); a.e("s_add_u32 s39, s39, s36")
    if which <= 2:
        AB = 176; LO = v(8, 1)
        if which == 1:
            lsrd(a, 8, oX3, XSZ); OOB = MB
            for i in range(4): a.e(f"v_add_u32 v{LO+i}, {(i & 1) * 65536 + (i >> 1) * 4096}, v{l16}")
        else:
            hs_srd(a, 8); OOB = 128 * PITCH
            a.e(f"v_mul_u32_u24 v{LO}, {PITCH}, v{G}"); a.e(f"v_lshl_add_u32 v{LO}, v{J}, 4, v{LO}")
            for i in range(1, 8): a.e(f"v_add_u32 v{LO+i}, {4*PITCH*i}, v{LO}")
        for i in range(4):
            a.e("s_lshr_b32 s36, s67, 2"); a.e(f"s_add_u32 s36, s36, {i}"); a.e("s_and_b32 s36, s36, 3")
            if which == 1: a.e(f"s_lshl_b32 s{44+i}, s36, 14"); a.e("s_lshl_b32 s36, s34, 17")
            else:
                a.e(f"s_mul_i32 s{44+i}, s36, {32*PITCH}")
                a.e("s_xor_b32 s53, s36, s94"); a.e("s_and_b32 s53, s53, 1"); a.e("s_lshl_b32 s53, s53, 13"); a.e(f"s_add_u32 s{44+i}, s{44+i}, s53")
                a.e("s_lshr_b32 s53, s36, 1"); a.e("s_lshl_b32 s53, s53, 4"); a.e("s_add_u32 s53, s53, 16")
                a.e("s_sub_u32 s54, 0, s53"); a.e("s_bitcmp1_b32 s36, 0"); a.e("s_cselect_b32 s53, s53, s54"); a.e(f"s_add_u32 s{44+i}, s{44+i}, s53")
                a.e("s_lshl_b32 s36, s28, 2"); a.e("s_add_u32 s36, s36, s34"); a.e("s_lshl_b32 s36, s36, 9"); a.e("s_add_u32 s36, s36, 16384")
            a.e(f"s_add_u32 s{44+i}, s{44+i}, s36")
        def aload(b, kk):
            if which == 1: return [f"buffer_load_dwordx4 {vr(AB+16*b+8*kk+4*mt,4)}, v{LO+mt+(b&2)}, s[8:11], s44 offen offset:{(b&1)*2048+kk*1024} {LF1}" for mt in range(2)]
            return [f"buffer_load_dwordx4 {vr(AB+16*b+8*kk+4*mt,4)}, v{LO+2*b+kk}, s[8:11], s44 offen offset:{mt*256} {LF2}" for mt in range(2)]
    else:
        a.e(f"s_mul_i32 s36, s34, {MT*2048}"); a.e(f"v_add_u32 v{a0}, s36, v{l16}")
    nwr, wpos = w_bases(a, which, w0, 35, NT, t, t2)
    if which == 3 and not B0E: publish(a, ST_G2S, 4, pt, ctr=48)
    if which == 2:
        a.e(f"s_lshl_b32 s36, s37, 8"); a.e(f"s_add_u32 s36, s36, {LNSL}"); a.e(f"v_lshlrev_b32 v{t2}, 4, v{J}"); a.e(f"v_add_u32 v{t2}, s36, v{t2}")
        for mt in range(MT): a.e(f"ds_read_b64 {vr(fX+2*mt,2)}, v{t2} offset:{mt*256}")
        a.e("s_waitcnt lgkmcnt(0)")
        for mt in range(MT):
            for p in range(NT // 2):
                for e in range(4):
                    X = A_(mt, 2 * p) + 2 * e
                    unpack(a, X, X + 1, res + (mt * (NT // 2) + p) * 4 + e)
                    a.e(f"v_pk_add_f32 {vr(X,2)}, {vr(X,2)}, {SUBM(fX+2*mt)}"); round2(a, X, X + 1, tmp)
                    a.e(f"v_pk_mul_f32 {vr(X,2)}, {vr(X,2)}, {MULR(fX+2*mt)}"); round2(a, X, X + 1, tmp)
    else:
        for i in range(0, MT * NT * 4, 2): a.e(f"v_pk_mov_b32 {vr(acc+i,2)}, 0, 0")
    RX = 160
    def last_res():
        b0 = Rec()
        lsrd(b0, 84, oX3, XSZ); lsrd(b0, 88, oX1P, XSZ)
        b0.e("s_lshl_b32 s40, s31, 17"); b0.e("s_add_u32 s40, s40, s39")
        b0.e("s_xor_b32 s41, s31, 1"); b0.e("s_lshl_b32 s41, s41, 17"); b0.e("s_add_u32 s41, s41, s39")
        for i in range(2):
            b0.e(f"s_add_u32 s36, s40, {i*65536}")
            for p in range(2):
                b0.e(f"buffer_load_dwordx4 {vr(RX+8*(2*i+p),4)}, v{l16}, s[84:87], s36 offen offset:{p*1024} {SC}")
                b0.e(f"buffer_load_dwordx4 {vr(RX+8*(2*i+p)+4,4)}, v{l16}, s[88:91], s36 offen offset:{p*1024} {SC}")
        return b0.l
    def reads(F, kk):
        o = []
        for mt in range(MT): o.append(f"ds_read_b128 {vr(F+4*mt,4)}, v{aa} offset:{mt*256+kk*8192 if which == 2 else mt*2048+kk*1024}")
        for nt in range(NT):
            for h in range(2):
                r, imm = wpos(nt, kk, h)
                o.append(f"ds_read_b64_tr_b16 {vr(F+4*(MT+nt)+2*h,2)}, v{wa+r} offset:{imm}")
        NR = os.environ.get("NOREAD")
        if NR == "N": o = []
        if NR == "A": o = o[MT:]
        if NR == "W": o = o[:MT]
        if NR == "H": o = o[::2]
        if NR == "X": o = o + o[:2]
        if NR == "XX": o = o + o[:MT]
        return o
    def mix(rd, ex):
        rd = list(rd)
        for i, x in enumerate(ex): rd.insert(min(len(rd), (i + 1) * len(rd) // (len(ex) + 1)), x)
        return rd
    def mfmas(F, rd, tail=()):
        n = MT * NT; k = 0; tot = len(rd); span = max(1, n * 3 // 4); done = 0; tail = list(tail); per = -(-len(tail) // max(1, n - span))
        OR = os.environ.get("ORDER", "2")
        order = {"0": [(nt, mt) for nt in range(NT) for mt in range(MT)],
                 "1": [(nt, mt) for mt in range(MT) for nt in range(NT)],
                 "2": [(nt, mt if nt % 2 == 0 else MT - 1 - mt) for nt in range(NT) for mt in range(MT)],
                 "3": [(nt if mt % 2 == 0 else NT - 1 - nt, mt) for mt in range(MT) for nt in range(NT)]}[OR]
        for nt, mt in order:
            if True:
                cc = acc + 4 * (mt * NT + nt)
                if str(which) not in os.environ.get("NOMF", ""): a.e(f"v_mfma_f32_16x16x32_bf16 {vr(cc,4)}, {vr(F+4*(MT+nt),4)}, {vr(F+4*mt,4)}, {vr(cc,4)}")
                k += 1
                while rd and done < (tot * k + span - 1) // span: a.e(rd.pop(0)); done += 1
                if k >= span and k < n:
                    for _ in range(min(per, len(tail))): a.e(tail.pop(0))
        assert not rd and not tail
    def stage(ex=(), ey=(), lim=NS-1, late=False):
        if str(which) in os.environ.get("GST", "") or os.environ.get("JIT"): mstamp(a, True)
        a.e("s_waitcnt lgkmcnt(0)")
        book = ["s_add_u32 s42, s42, 16384", f"s_cmp_eq_u32 s42, {NA*16384}", "s_cselect_b32 s42, 0, s42",
                f"s_add_u32 s48, s48, {STB}", f"s_cmp_eq_u32 s48, {NW*STB}", "s_cselect_b32 s48, 0, s48", f"v_add_u32 v{aa}, s42, v{a0}"]
        if which <= 2 and NX:
            book = ["s_lshr_b64 s[44:45], s[44:45], 4", "s_lshr_b64 s[46:47], s[46:47], 4", "s_and_b32 s42, s44, 7", "s_lshl_b32 s42, s42, 14",
                    "s_and_b32 s48, s46, 15", "s_lshl_b32 s48, s48, 13", f"v_add_u32 v{aa}, s42, v{a0}"]
        book += [f"v_add_u32 v{wa+i}, s48, v{w0+i}" for i in range(nwr)]
        mfmas(fX, mix(reads(fY, 1), ex), book)
        if late:
            a.e("s_waitcnt lgkmcnt(0)"); mfmas(fY, [], ["s_add_u32 s43, s43, 1"])
            if B0E: publish(a, ST_G2S, 4, pt, ctr=48)
            a.e("s_barrier")
            for x in reads(fX, 0): a.e(x)
            return
        a.e("s_waitcnt lgkmcnt(0)"); a.e("s_barrier")
        mfmas(fY, mix(reads(fX, 0), ey), ["s_add_u32 s43, s43, 1", f"s_cmp_lt_u32 s43, {lim}"])
    w00 = c["S0"] * STB
    if which <= 2:
        def wrd(p, b): return [f"ds_read_b64_tr_b16 {vr((fX, fY)[p]+16*kk+4*nt+2*h,2)}, v{w0+nt} offset:{b*STB + wpos(nt, kk, h)[1]}" for kk in range(2) for nt in range(4) for h in range(2)]
        def dmf(b, fill, lo=0, hi=16):
            k = 0
            for kk in range(2):
                for nt in range(4):
                    for mt in ((0, 1) if nt % 2 == 0 else (1, 0)):
                        if lo <= k < hi:
                            a.e(f"v_mfma_f32_16x16x32_bf16 {vr(A_(mt,nt),4)}, {vr((fX, fY)[b&1]+16*kk+4*nt,4)}, {vr(AB+16*b+8*kk+4*mt,4)}, {vr(A_(mt,nt),4)}")
                            for x in fill[k]: a.e(x)
                        k += 1
        def spreadf(l, lo, hi):
            f = [[] for _ in range(16)]
            for i, x in enumerate(l): f[lo + i * (hi - lo) // len(l)].append(x)
            return f
        a.e("s_mov_b32 s43, 0")
        a.e("s_waitcnt lgkmcnt(0)"); a.e("s_barrier")
        for x in aload(0, 0) + aload(0, 1) + aload(1, 0) + aload(1, 1) + wrd(0, 0) + aload(2, 0) + aload(2, 1) + aload(3, 0): a.e(x)
        a.e("s_waitcnt vmcnt(10) lgkmcnt(0)")
        mstamp(a)
        L = a.lab("dm"); a.e(f"{L}:")
        for b in range(4):
            rd = wrd(1 - (b & 1), (b + 1) & 3); ex = [[] for _ in range(16)]
            ex[0], ex[1] = [[x] for x in aload((b - 1) & 3, 1)]
            if b == 0:
                for i, x in enumerate(["s_mov_b32 s44, s45", "s_mov_b32 s45, s46", "s_mov_b32 s46, s47", f"s_mov_b32 s47, {OOB}"]): ex[2 + i].append(x)
            if b == 2:
                ex[2].append("s_add_u32 s43, s43, 1"); ex[3].append("s_cmp_eq_u32 s43, 4")
                for nt, g_ in enumerate((11, 12, 13, 15)): ex[g_].append(f"v_add_u32 v{w0+nt}, {4*STB}, v{w0+nt}")
            ex[7].append("s_waitcnt lgkmcnt(8)")
            ex[8], ex[9] = [[x] for x in aload(b, 0)]
            ex[10].append("s_waitcnt vmcnt(10)")
            fill = [rd[i:i+1] + ex[i] for i in range(16)]
            fill[14] = rd[14:16] + ex[14]; fill[15] = ex[15] + ["s_waitcnt lgkmcnt(8)"]
            if b == 2: fill[15].append(f"s_cbranch_scc1 {L}x")
            if b == 3: fill[15].append(f"s_branch {L}")
            dmf(b, fill)
        a.e(f"{L}x:")
    else:
        a.e("s_mov_b32 s42, 0"); a.e("s_mov_b32 s43, 0"); a.e(f"s_mov_b32 s48, {w00}")
        a.e(f"v_mov_b32 v{aa}, v{a0}")
        for i in range(nwr): a.e(f"v_add_u32 v{wa+i}, {w00}, v{w0+i}")
        if RPC and which == 4:
            a.e("s_cmp_eq_u32 s60, 1"); a.e("s_cbranch_scc1 G4_p1")
            r_pre(a); a.e("s_branch G4_p2"); a.e("G4_p1:")
            for x in last_res(): a.e(x)
            a.e("G4_p2:")
        if not (which == 3 and B0E): a.e("s_waitcnt lgkmcnt(0)"); a.e("s_barrier")
        mstamp(a)
        for x in reads(fX, 0): a.e(x)
    if which == 4:
        def st2(j): return [f"s_add_u32 s36, s44, {j*224*1024}\nbuffer_store_dwordx4 {vr(C2R+4*j,4)}, v{l16}, s[16:19], s36 offen {SC}",
                            f"s_add_u32 s36, s45, {j*224*1024}\nbuffer_store_dwordx2 {vr(C2R+16+2*j,2)}, v{SO3}, s[16:19], s36 offen {SC}"]
        stage(st2(0), st2(1)); stage(st2(2), st2(3)); publish(a, ST_G3B, 4, pt, wait=8)
        L0 = a.lab("mm"); a.e(f"{L0}:"); stage(lim=PUB2); a.e(f"s_cbranch_scc1 {L0}")
        publish(a, ST_G3, 4, pt)
    if which == 3 and os.environ.get("PEEL3", "1") == "1": stage(late=True)
    if which > 2:
        L = a.lab("mm"); a.e(f"{L}:")
        stage()
        a.e(f"s_cbranch_scc1 {L}")
        a.e("s_waitcnt lgkmcnt(0)")
    b0 = Rec()
    if which == 4:
        a.e("s_cmp_eq_u32 s60, 1"); a.e("s_cbranch_scc1 G4_last")
        if not RPC: r_pre(b0)
    if which == 1:
        lsrd(b0, 24, oX3, XSZ)
        b0.e("s_lshr_b32 s36, s38, 1"); spread(b0, 40, 36); b0.e("s_lshl_b32 s36, s37, 16"); b0.e("s_add_u32 s40, s40, s36")
        for mt in range(MT):
            b0.e(f"s_add_u32 s36, s40, {mt*65536}")
            for p in range(NT // 2): b0.e(f"buffer_load_dwordx4 {vr(RES2+(mt*(NT//2)+p)*4,4)}, v{l16}, s[24:27], s36 offen offset:{p*1024} {SC}")
    early = os.environ.get("EARLY", "1") == "1"
    if which <= 2: dmf(3, spreadf(b0.l, 0, 8), 0, 8)
    else: mfmas(fX, reads(fY, 1) + (b0.l if early else []))
    a.e("s_waitcnt lgkmcnt(0)")
    if which not in DL: a.e("s_barrier")
    b = Rec()
    if not early: b.l += b0.l
    if which in (1, 3):
        so = SO3 if which == 3 else a0; cs = fX; lns = fX + 4 * NT
        assert which == 1 or (fY <= C2R and C2R + 24 <= fY + 4 * NF)
        b.e(f"s_mul_i32 s36, s35, {NT*64}"); b.e(f"s_add_u32 s36, s36, {CSO[which]}"); b.e(f"v_lshlrev_b32 v{t}, 4, v{G}"); b.e(f"v_add_u32 v{t}, s36, v{t}")
        for nt in range(NT): b.e(f"ds_read_b128 {vr(cs+4*nt,4)}, v{t} offset:{nt*64}")
        if which == 3:
            b.e(f"s_lshl_b32 s36, s34, 9"); b.e(f"s_add_u32 s36, s36, {AUX+1024}")
            b.e(f"v_lshlrev_b32 v{t2}, 3, v{J}"); b.e(f"v_add_u32 v{t2}, s36, v{t2}")
            for mt in range(MT): b.e(f"ds_read_b64 {vr(lns+2*mt,2)}, v{t2} offset:{mt*128}")
            lsrd(b, 16, oH2, H2SZ)
            b.e(f"s_mul_i32 s39, s37, {224*1024}")
            for P in range(4):
                b.e("s_lshr_b32 s36, s38, 1"); b.e(f"s_add_u32 s36, s36, {P}"); spread(b, 44 + P, 36); b.e(f"s_add_u32 s{44+P}, s{44+P}, s39")
            b.e("s_lshl_b32 s36, s37, 1"); b.e("s_add_u32 s36, s36, s35"); b.e("s_lshl_b32 s36, s36, 10"); b.e(f"v_add_u32 v{a0}, s36, v{l16}")
            b.e(f"v_lshrrev_b32 v{so}, 1, v{G}"); b.e(f"v_lshlrev_b32 v{so}, 8, v{so}"); b.e(f"v_lshl_add_u32 v{so}, v{J}, 4, v{so}")
            b.e(f"v_and_b32 v{tmp}, 1, v{G}"); b.e(f"v_lshl_add_u32 v{so}, v{tmp}, 3, v{so}")
        else:
            b.e(f"s_lshl_b32 s36, s37, 8"); b.e(f"s_add_u32 s36, s36, {LNSL+8}"); b.e(f"v_lshlrev_b32 v{t2}, 4, v{J}"); b.e(f"v_add_u32 v{t2}, s36, v{t2}")
            for mt in range(MT): b.e(f"ds_read_b64 {vr(lns+2*mt,2)}, v{t2} offset:{mt*256}")
            hs_srd(b, 16)
            b.e(f"v_mul_u32_u24 v{so}, {PITCH}, v{G}"); b.e(f"v_lshl_add_u32 v{so}, v{J}, 4, v{so}")
            b.e(f"s_mul_i32 s39, s38, {2*PITCH}"); b.e("s_lshl_b32 s36, s37, 8"); b.e("s_add_u32 s39, s39, s36"); b.e("s_add_u32 s39, s39, 16384")
            b.e("s_lshl_b32 s36, s28, 11"); b.e("s_add_u32 s39, s39, s36")
            b.e("s_lshr_b32 s36, s29, 2"); b.e("s_xor_b32 s36, s36, s94"); b.e("s_and_b32 s36, s36, 1"); b.e("s_lshl_b32 s36, s36, 13"); b.e("s_add_u32 s39, s39, s36")
            b.e(f"s_add_u32 s40, s39, {4*PITCH}")
    if which == 2:
        lsrd(b, 16, oX1P, XSZ); lsrd(b, 44, oST2, 24576)
    if which == 4:
        b.e(f"s_mul_i32 s36, s31, {oP1-oP0}"); b.e(f"s_add_u32 s36, s36, {oP0}")
        b.e("s_add_u32 s16, s62, s36"); b.e("s_addc_u32 s17, s63, 0"); b.e(f"s_mov_b32 s18, {XSZ}"); b.e("s_mov_b32 s19, 0x20000")
    if which <= 2: dmf(3, spreadf(b.l, 8, 15), 8, 16)
    else: mfmas(fY, b.l)
    mstamp(a)
    if which in (1, 3):
        AB = v(2 * MT, 2) if which == 1 else fY + 4
        def consts():
            for mt in range(MT):
                r = lns + 2 * mt + 1
                a.e(f"v_mul_f32 v{AB+2*mt}, {f32(GC1)}, v{r}"); a.e(f"v_mul_f32 v{AB+2*mt+1}, v{r}, v{r}")
                a.e(f"v_mul_f32 v{AB+2*mt+1}, v{AB+2*mt+1}, v{AB+2*mt}"); a.e(f"v_mul_f32 v{AB+2*mt+1}, {f32(0.044715)}, v{AB+2*mt+1}")
                a.e(f"v_rcp_f32 v{r}, v{r}")
        def act(mt, nt):
            A = A_(mt, nt); P_ = [(A, tp), (A + 2, tp + 2)]; L_ = vr(lns + 2 * mt, 2); K_ = vr(AB + 2 * mt, 2)
            for h in range(2):
                a.e(f"v_pk_fma_f32 {vr(A+2*h,2)}, {L_}, {vr(cs+4*nt+2*h,2)}, {vr(A+2*h,2)} op_sel_hi:[0,1,1] neg_lo:[1,0,0] neg_hi:[1,0,0]")
            for x, u in P_: a.e(f"v_pk_mul_f32 {vr(u,2)}, {vr(x,2)}, {vr(x,2)}")
            for x, u in P_: a.e(f"v_pk_fma_f32 {vr(u,2)}, {vr(u,2)}, {K_}, {K_} op_sel:[0,1,0] op_sel_hi:[1,1,0]")
            for x, u in P_: a.e(f"v_pk_mul_f32 {vr(u,2)}, {vr(u,2)}, {vr(x,2)}")
            for i in range(4): a.e(f"v_exp_f32 v{tp+i}, v{tp+i}")
            for x, u in P_: a.e(f"v_pk_fma_f32 {vr(u,2)}, {vr(u,2)}, {L_}, {L_} op_sel:[0,1,1] op_sel_hi:[1,1,1]")
            for i in range(4): a.e(f"v_rcp_f32 v{tp+i}, v{tp+i}")
            for x, u in P_: a.e(f"v_pk_mul_f32 {vr(x,2)}, {vr(x,2)}, {vr(u,2)}")
        def group(par, mt, nts, dst=None):
            for nt in nts: act(mt, nt)
            T = par * NT + nts[0]; P = (T >> 1) - ((par * NT) >> 1); B = A_(mt, nts[0]); D = B if dst is None else dst
            for k in range(2 * len(nts)): a.e(f"v_cvt_pk_bf16_f32 v{D+k}, v{B+2*k}, v{B+2*k+1}")
            if which == 3: return [f"s_add_u32 s36, s{44+P}, {mt*224*1024}", f"buffer_store_dwordx4 {vr(B,4)}, v{l16}, s[16:19], s36 offen {SC}"]
            return [f"buffer_store_dwordx4 {vr(B,4)}, v{so}, s[16:19], s{39+P} offen offset:{mt*256} {SC}"]
        def body(par):
            if which == 1: gs = [(0, 1), (2, 3)]
            else: gs = [(0, 1), (2, 3), (4, 5), (6,)] if par == 0 else [(1, 2), (3, 4), (5, 6), (0,)]
            k = 0; pend = []; sent = 0
            for gi_, g_ in enumerate(gs):
                for mt in range(MT):
                    if which == 3 and k == C0PUB: publish(a, ST_G3A, 4, pt, wait=sent - 4, ctr=48); mstamp(a)
                    st_ = group(par, mt, g_, None if gi_ < 2 else C2R + 4 * mt if gi_ == 2 else C2R + 16 + 2 * mt); k += 1
                    if which == 3 and gi_ < 3:
                        a.e(f"ds_write_b128 v{a0}, {vr(A_(mt, g_[0]) if gi_ < 2 else C2R + 4 * mt, 4)} offset:{gi_*16384 + mt*2048}")
                    if gi_ < 2: pend.append(st_)
                    n = len(pend) if (which == 1 or k <= 4 or k == 16) else 0 if k <= STQ else min(1, len(pend))
                    for _ in range(n):
                        for x in pend.pop(0): a.e(x)
                        sent += 1
            if which == 3:
                a.e("s_waitcnt lgkmcnt(0)")
                if par == 0: a.e("s_mov_b32 s44, s46"); a.e("s_mov_b32 s45, s47")
                else: a.e("s_add_u32 s45, s44, 512"); a.e("s_mov_b32 s44, s47")
        a.e("s_waitcnt lgkmcnt(0)")
        consts()
        if which == 3:
            a.e("s_cmp_eq_u32 s35, 1"); a.e(f"s_cbranch_scc1 {nm}_e1")
            body(0); a.e(f"s_branch {nm}_e2"); a.e(f"{nm}_e1:"); body(1); a.e(f"{nm}_e2:")
        else: body(0)
    if which == 2:
        xf = v(2, 2); S = v(2 * MT, 2); pp = v(2, 2); mn = v(2, 2)
        for mt in range(MT):
            a.e(f"s_add_u32 s36, s39, {mt*65536}")
            for p in range(NT // 2):
                R = res + (mt * (NT // 2) + p) * 4
                for e in range(4):
                    X = A_(mt, 2 * p) + 2 * e
                    a.e(f"v_cvt_pk_bf16_f32 v{R+e}, v{X}, v{X+1}")
                a.e(f"buffer_store_dwordx4 {vr(R,4)}, v{l16}, s[16:19], s36 offen offset:{p*1024} {SC}")
        if which in DL: a.e("s_barrier")
        if OWN3:
            a.e("s_lshl_b32 s36, s37, 11"); a.e(f"v_add_u32 v{t2}, s36, v{l16}")
            for i in range(4): a.e(f"ds_write_b128 v{t2}, {vr(res+4*i,4)} offset:{1024*i}")
        for i in range(MT * NT * 2): unpack(a, acc + 2 * i, acc + 2 * i + 1, res + i)
        mstamp(a)
        publish(a, which, 4, pt)
        if B0E: a.e("s_waitcnt lgkmcnt(0)"); a.e("s_barrier")
        mstamp(a)
        for mt in range(MT):
            B = A_(mt, 0); Sm = S + 2 * mt
            a.e(f"v_pk_add_f32 {vr(pp,2)}, {vr(B,2)}, {vr(B+2,2)}"); a.e(f"v_pk_mul_f32 {vr(xf,2)}, {vr(B,2)}, {vr(B,2)}")
            for i in range(1, NT * 2):
                if i > 1: a.e(f"v_pk_add_f32 {vr(pp,2)}, {vr(pp,2)}, {vr(B+2*i,2)}")
                a.e(f"v_pk_fma_f32 {vr(xf,2)}, {vr(B+2*i,2)}, {vr(B+2*i,2)}, {vr(xf,2)}")
            a.e(f"v_add_f32 v{Sm}, v{pp}, v{pp+1}"); a.e(f"v_add_f32 v{Sm+1}, v{xf}, v{xf+1}")
            for op in ("v_permlane16_swap_b32", "v_permlane32_swap_b32"):
                for k in range(2): a.e(f"v_mov_b32 v{pp+k}, v{Sm+k}")
                for k in range(2): a.e(f"{op} v{Sm+k}, v{pp+k}")
                a.e(f"v_pk_add_f32 {vr(Sm,2)}, {vr(Sm,2)}, {vr(pp,2)}")
        a.e(f"v_cmp_eq_u32 vcc, 0, v{G}"); a.e(f"v_cndmask_b32 v{S}, v{S+2}, v{S}, vcc"); a.e(f"v_cndmask_b32 v{S+1}, v{S+3}, v{S+1}, vcc")
        spread(a, 40, 29); a.e("s_lshl_b32 s36, s34, 8"); a.e("s_add_u32 s40, s40, s36")
        a.e(f"v_lshlrev_b32 v{t2}, 3, v{lane}")
        a.e("s_bfm_b64 exec, 32, 0")
        a.e(f"buffer_store_dwordx2 {vr(S,2)}, v{t2}, s[44:47], s40 offen {SC}")
        a.e("s_mov_b64 exec, -1")
    if which == 4:
        for mt in range(MT):
            a.e(f"s_add_u32 s36, s39, {mt*65536}")
            for p in range(NT // 2):
                B = A_(mt, 2 * p)
                for e in range(4): a.e(f"v_cvt_pk_bf16_f32 v{B+e}, v{B+2*e}, v{B+2*e+1}")
                a.e(f"buffer_store_dwordx4 {vr(B,4)}, v{l16}, s[16:19], s36 offen offset:{p*1024} {SC}")
    if which != 2:
        if which in DL: a.e("s_barrier")
        mstamp(a)
        if which != 3: publish(a, which, 4, pt)
        mstamp(a)
    if which == 4:
        a.e("s_branch NEXT")
        a.e("G4_last:")
        PX = 208; oa = 224; xf = 226
        mfmas(fX, reads(fY, 1) + [f"s_load_dwordx2 s[6:7], s[0:1], {D_OUT}"] + ([] if RPC else last_res()))
        a.e("s_waitcnt lgkmcnt(0)")
        b = Rec()
        lsrd(b, 16, oP0, XSZ)
        b.srd(20, 6, 4 * MB)
        b.e("s_lshl_b32 s44, s29, 2"); b.e("s_add_u32 s44, s44, s30"); b.e("s_lshl_b32 s44, s44, 7"); b.e("s_xor_b32 s45, s44, 4096")
        b.e("s_add_u32 s44, s44, s55"); b.e(f"s_add_u32 s44, s44, {oFP}"); b.e("s_add_u32 s45, s45, s55"); b.e(f"s_add_u32 s45, s45, {oFP}")
        b.e(f"v_mov_b32 v{pt+1}, s45"); b.e(f"v_mov_b32 v{pt+2}, s52"); b.e(f"v_mov_b32 v{pt+3}, 0")
        b.e("s_lshl_b32 s46, s28, 3"); b.e("s_add_u32 s46, s46, s37"); b.e("s_lshl_b32 s47, s31, 1"); b.e("s_add_u32 s46, s46, s47"); b.e("s_lshl_b32 s46, s46, 15")
        b.e("s_lshl_b32 s47, s38, 5"); b.e("s_add_u32 s46, s46, s47"); b.e(f"s_add_u32 s47, s46, {16*2048}")
        b.e(f"v_and_b32 v{oa+1}, 1, v{G}"); b.e(f"v_lshlrev_b32 v{oa}, 11, v{J}"); b.e(f"v_lshl_add_u32 v{oa}, v{oa+1}, 5, v{oa}")
        b.e(f"v_lshrrev_b32 v{oa+1}, 1, v{G}"); b.e(f"v_lshl_add_u32 v{oa}, v{oa+1}, 4, v{oa}")
        FULLN = os.environ.get("FULLN", "1") == "1"
        if FULLN:
            b.e(f"v_cmp_gt_u32 s[48:49], 8, v{J}")
            b.e(f"v_lshrrev_b32 v{oa+1}, 3, v{J}"); b.e(f"v_mul_u32_u24 v{oa+1}, {8*2048 - 64}, v{oa+1}"); b.e(f"v_sub_u32 v{oa}, v{oa}, v{oa+1}")
            b.e(f"v_add_u32 v{oa+1}, {8*2048}, v{oa}")
        mfmas(fY, b.l)
        mstamp(a)
        a.e("s_cmp_eq_u32 s31, 0"); a.e("s_cbranch_scc1 G4_k0")
        for i in range(32): a.e(f"v_swap_b32 v{acc+i}, v{acc+32+i}")
        a.e("G4_k0:")
        for i in range(2):
            a.e(f"s_add_u32 s36, s41, {i*65536}")
            for p in range(2):
                B = A_(2 + i, 2 * p)
                for e in range(4): a.e(f"v_cvt_pk_bf16_f32 v{B+e}, v{B+2*e}, v{B+2*e+1}")
                a.e(f"buffer_store_dwordx4 {vr(B,4)}, v{l16}, s[16:19], s36 offen offset:{p*1024} {SC}")
        def addp(k, R):
            B = A_(k >> 1, 2 * (k & 1))
            for e in range(4):
                unpack(a, xf + 2 * (e & 1), xf + 1 + 2 * (e & 1), R + e)
                a.e(f"v_pk_add_f32 {vr(B+2*e,2)}, {vr(B+2*e,2)}, {vr(xf+2*(e&1),2)}")
        a.e("s_waitcnt vmcnt(4)")
        for k in range(4): addp(k, RX + 8 * k)
        a.e("s_waitcnt vmcnt(0)")
        a.e("s_mov_b64 exec, 1"); a.e(f"buffer_store_dword v{pt+2}, v{pt+3}, s[56:59], s44 offen {SC}"); a.e("s_mov_b64 exec, -1")
        mstamp(a)
        for k in range(4): addp(k, RX + 8 * k + 4)
        poll_core(a, pt, [pt + 1], 1, nap=2)
        mstamp(a)
        for i in range(2):
            a.e(f"s_add_u32 s36, s40, {i*65536}")
            for p in range(2): a.e(f"buffer_load_dwordx4 {vr(PX+4*(2*i+p),4)}, v{l16}, s[16:19], s36 offen offset:{p*1024} {SC}")
        for k in range(4):
            a.e(f"s_waitcnt vmcnt({3 - (k & 1) if FULLN else 3})")
            addp(k, PX + 4 * k)
            B = A_(k >> 1, 2 * (k & 1))
            if os.environ.get("EPS"):
                for e in range(8): a.e(f"v_mul_f32 v{B+e}, {f32(1 + float(os.environ['EPS']) * (1 if e & 1 else -1))}, v{B+e}")
            for e in range(4): a.e(f"v_cvt_pk_bf16_f32 v{B+e}, v{B+2*e}, v{B+2*e+1}")
            for e in range(2): a.e(f"v_permlane16_swap_b32 v{B+e}, v{B+2+e}")
            if not FULLN: a.e(f"buffer_store_dwordx4 {vr(B,4)}, v{oa}, s[20:23], s{46+(k>>1)} offen offset:{64*(k&1)} {os.environ.get('OS', '')}")
            elif k & 1:
                X, Y, T = B - 8, B, B + 4
                for e in range(4): a.e(f"v_cndmask_b32 v{T+e}, v{X+e}, v{Y+e}, s[48:49]")
                for e in range(4): a.e(f"v_mov_b32_dpp v{X+4+e}, v{T+e} row_ror:8 row_mask:0xf bank_mask:0xf")
                for e in range(4): a.e(f"v_cndmask_b32 v{X+e}, v{X+4+e}, v{X+e}, s[48:49]"); a.e(f"v_cndmask_b32 v{Y+e}, v{Y+e}, v{X+4+e}, s[48:49]")
                a.e(f"buffer_store_dwordx4 {vr(X,4)}, v{oa}, s[20:23], s{46+(k>>1)} offen {SC}")
                a.e(f"buffer_store_dwordx4 {vr(Y,4)}, v{oa+1}, s[20:23], s{46+(k>>1)} offen {SC}")
        a.e("s_branch K_fin")
    assert v.hi <= {1: RES2, 2: RES2, 3: SO3, 4: RX}[which], v.hi
    return v.hi

def k_mega(a):
    nm = KNAME; a.begin_kernel(nm)
    a.e("s_cmp_ge_u32 s2, 256"); a.e("s_cbranch_scc1 K_end")
    a.e(f"s_load_dwordx8 s[8:15], s[0:1], {A_K}"); a.e(f"s_load_dwordx2 s[6:7], s[0:1], {A_Q}"); a.e(f"s_load_dwordx8 s[68:75], s[0:1], {B_W1}")
    a.e(f"s_load_dwordx2 s[4:5], s[0:1], {D_WS}"); a.e(f"s_load_dwordx2 s[84:85], s[0:1], {D_DBG}"); a.e("s_memrealtime s[46:47]")
    a.e(f"s_load_dwordx2 s[96:97], s[0:1], {A_SSMD}")
    a.e("v_lshrrev_b32 v1, 6, v0"); a.e("v_readfirstlane_b32 s30, v1")
    if CODEPF:
        a.e("s_getpc_b64 s[48:49]"); a.e("K_pc:")
        a.e("s_lshr_b32 s36, s2, 3"); a.e("s_lshl_b32 s36, s36, 11")
        a.e("v_lshlrev_b32 v4, 2, v0"); a.e("v_add_u32 v4, s36, v4")
        a.e("v_cmp_gt_u32 vcc, K_end-K_pc-8, v4"); a.e("s_and_saveexec_b64 s[36:37], vcc"); a.e("s_cbranch_execz K_3")
        a.e("v_mov_b32 v5, s49"); a.e("v_add_co_u32 v4, vcc, s48, v4"); a.e("v_addc_co_u32 v5, vcc, 0, v5, vcc")
        a.e("global_load_dword v250, v[4:5], off")
        a.e("K_3:"); a.e("s_mov_b64 exec, -1")
    for _ in range(int(os.environ.get("SDELAY", "0"))): a.e("s_sleep 127")
    front_loads(a)
    a.e("v_and_b32 v1, 63, v0"); a.e("v_lshlrev_b32 v2, 4, v1"); a.e("v_lshlrev_b32 v3, 2, v1")
    a.e("s_and_b32 s32, s2, 7"); a.e("s_lshr_b32 s33, s2, 3")
    a.e("s_and_b32 s28, s32, 2"); a.e("s_lshr_b32 s34, s32, 2"); a.e("s_or_b32 s28, s28, s34")
    a.e("s_lshl_b32 s28, s28, 2"); a.e("s_and_b32 s34, s33, 3"); a.e("s_add_u32 s28, s28, s34")
    a.e("s_and_b32 s31, s32, 1"); a.e("s_lshr_b32 s33, s33, 2")
    a.e("s_lshl_b32 s29, s31, 3"); a.e("s_add_u32 s29, s29, s33")
    if MAP == 8:
        a.e("s_lshr_b32 s33, s2, 3")
        a.e("s_and_b32 s28, s33, 4"); a.e("s_lshl_b32 s28, s28, 1"); a.e("s_and_b32 s34, s32, 4"); a.e("s_or_b32 s28, s28, s34"); a.e("s_and_b32 s34, s33, 3"); a.e("s_or_b32 s28, s28, s34")
        a.e("s_and_b32 s29, s32, 3"); a.e("s_lshl_b32 s29, s29, 2"); a.e("s_lshr_b32 s33, s33, 3"); a.e("s_or_b32 s29, s29, s33")
        a.e("s_lshr_b32 s31, s29, 3"); a.e("s_and_b32 s33, s29, 7")
    if MAP == 2:
        a.e("s_lshr_b32 s33, s2, 3")
        a.e("s_and_b32 s28, s32, 2"); a.e("s_lshl_b32 s28, s28, 2"); a.e("s_and_b32 s34, s32, 4"); a.e("s_or_b32 s28, s28, s34")
        a.e("s_and_b32 s34, s32, 1"); a.e("s_lshl_b32 s34, s34, 1"); a.e("s_or_b32 s28, s28, s34"); a.e("s_and_b32 s34, s33, 1"); a.e("s_or_b32 s28, s28, s34")
        a.e("s_lshr_b32 s29, s33, 1"); a.e("s_lshr_b32 s31, s29, 3"); a.e("s_and_b32 s33, s29, 7")
    a.e({4: "s_lshl_b32 s67, s33, 1", 8: "s_lshl_b32 s67, s33, 2", 2: "s_mov_b32 s67, s29"}[MAP]); a.e(f"s_and_b32 s67, s67, {int(os.environ.get('RMASK', '0'))}")
    a.e("s_mov_b32 s60, 0"); a.e("s_mov_b32 s61, 40000"); a.e("s_mov_b32 s52, 0")
    a.e("s_mov_b32 s55, 0"); a.e("s_mov_b32 s92, 0"); a.e("s_mov_b32 s93, 0"); a.e("s_mov_b32 s94, 0")
    a.srd(56, 4, HSB)
    if os.environ.get("FIXT"): a.e("s_mov_b32 s101, s46")
    r_addr(a)
    a.e(f"s_add_u32 s62, s4, {LB0}"); a.e("s_addc_u32 s63, s5, 0")
    if STAMP:
        a.e("s_mov_b32 s66, 1"); a.e("v_mov_b32 v255, -1"); a.e("s_mov_b32 s95, 0"); a.e("v_writelane_b32 v255, s46, 0")
    mstamp(a)
    if os.environ.get("WBENCH"):
        a.e("s_waitcnt vmcnt(0)"); a.e("s_barrier")
        a.e("s_cmp_lt_u32 s30, 6"); a.e("s_cbranch_scc1 WB_end")
        for w in (1, 2, 3, 4):
            mstamp(a); w_setup(a, w); a.e("s_waitcnt vmcnt(0)"); mstamp(a); a.e("s_sleep 40")
        a.e("WB_end:"); a.e("s_branch K_dump")
    front_a(a); mstamp(a)
    for r in range(238, 248): a.e(f"v_mov_b32 v{r}, 0")
    a.e("s_cmp_ge_u32 s30, 4"); a.e("s_cbranch_scc1 FR_b")
    front_conv(a); hi = 0
    mstamp(a)
    front_arrive(a, True)
    a.e("s_branch FR_end")
    a.e("FR_b:")
    front_b(a)
    a.e("FR_end:")
    mstamp(a)
    a.e("LAYER:")
    if os.environ.get("XDELAY"): a.e(f"s_sleep {os.environ['XDELAY']}")
    hi = max(hi, r_stage(a, False))
    mstamp(a)
    a.e("s_cmp_ge_u32 s30, 4"); a.e("s_cbranch_scc1 LOADERS")
    if CPRIO: a.e(f"s_setprio {CPRIO}")
    for w in (1, 2, 3, 4):
        a.lines.append(f"; ---- G{w}: compute waves (set-up, K loop, epilogue, publish)")
        hi = max(hi, g_compute(a, w))
    a.e("LOADERS:")
    if SB[2]:
        a.e("s_cmp_lg_u32 s60, 0"); a.e("s_cbranch_scc1 LD_0"); sb(a, SB[2]); a.e("LD_0:")
    if PRIO: a.e(f"s_setprio {PRIO}")
    a.e("s_cmp_ge_u32 s30, 6"); a.e("s_cbranch_scc1 WLOAD")
    for w in (1, 2, 3, 4): a_loader(a, w)
    a.e("s_branch NEXT")
    a.e("WLOAD:")
    a.e("s_cmp_eq_u32 s60, 1"); a.e("s_cbranch_scc1 WL_1")
    w_setup(a, 1, pre=False); w1_slots(a, range(9 - W1G), pace=12); mstamp(a)
    a.e("s_branch WL_2")
    a.e("WL_1:")
    w_setup(a, 1, pre=False); w1_slots(a, range(3 - W1L), pace=12)
    a.e("WL_2:")
    for w in (1, 2, 3, 4):
        w_loader(a, w)
        if w == 2:
            c = CFG[3]; w_setup(a, 3, pre=False); a.e(f"s_mov_b32 s42, {(c['S0'] + 2) % c['NW'] * c['STB']}"); a.e("s_mov_b32 s44, 2")
        if w == 3: w_setup(a, 4)
    a.e("NEXT:")
    a.e("s_setprio 0")
    a.e("s_add_u32 s60, s60, 1"); a.e(f"s_add_u32 s55, s55, {LSTR}")
    a.e(f"s_add_u32 s62, s62, {LSTR}"); a.e("s_addc_u32 s63, s63, 0")
    a.e("s_branch LAYER")
    a.e("K_fin:")
    if os.environ.get("FIXT"):
        a.e("FX_l:"); a.e("s_sleep 4"); a.e("s_memrealtime s[64:65]"); a.e("s_waitcnt lgkmcnt(0)"); a.e("s_sub_u32 s64, s64, s101")
        if os.environ.get("FIX0"): a.e("s_add_u32 s64, s64, s101"); a.e("s_lshl_b32 s64, s64, 6"); a.e("s_sub_u32 s64, s64, s52"); a.e("s_lshr_b32 s64, s64, 6")
        a.e(f"s_cmp_lt_u32 s64, {os.environ['FIXT']}"); a.e("s_cbranch_scc1 FX_l")
    if STAMP:
        a.e("K_dump:")
        a.e("s_waitcnt vmcnt(0)")
        mstamp(a)
        a.srd(96, 4, 16 * MB, off=200 * MB)
        a.e("s_lshl_b32 s66, s2, 3"); a.e("s_add_u32 s66, s66, s30"); a.e("s_lshl_b32 s66, s66, 8")
        a.e("v_writelane_b32 v255, s95, 63")
        a.e("buffer_store_dword v255, v3, s[96:99], s66 offen")
        if os.environ.get("DBGOUT"):
            a.e("s_cmp_lg_u32 s66, 0"); a.e("s_cbranch_scc1 K_end")
            a.e(f"s_load_dwordx2 s[96:97], s[0:1], {D_DBG}"); a.e("s_mov_b32 s98, 64"); a.e("s_waitcnt lgkmcnt(0)")
            a.e("v_readlane_b32 s64, v255, 0"); a.e("v_mov_b32 v10, 0")
            for i, j in enumerate(eval(os.environ["DBGOUT"])):
                a.e(f"v_readlane_b32 s65, v255, {j}"); a.e("s_sub_u32 s65, s65, s64"); a.e("v_mov_b32 v11, s65")
                a.e(f"buffer_store_dword v11, v10, s[96:99], 0 offen offset:{8+4*i}")
    a.e("s_endpgm")
    emit_subs(a)
    a.e("K_end:")
    assert hi <= PV
    a.end_kernel(nm, 256)
    if TAB: tab_data(a)
    a.launches.append(f"; @launch grid=(256,1,1) block=(512,1,1) lds={LDS_TOTAL}")

HEADER = open("interleave_layers__ssm_conv_h3__mixer_s_mlp__prompt.s.ref").read().split("; Override launch")[0]
DOC = """; One persistent kernel, 256 workgroups x 8 waves (one per CU), generated by dev/gen23.py.
"""
def main(out):
    a = Asm()
    k_mega(a)
    DS = os.environ.get("DS")
    if DS:
        o = []
        for l in a.lines:
            o.append(l)
            if "buffer_store_dwordx" in l and "sc1" in l and any(k in l for k in DS.split(",")): o.append(l.replace(" sc1", ""))
        a.lines = o
    notes = {
        "K_pc:": "each workgroup reads 2 KB of this kernel's code so that later instruction fetches are served on chip",
        "KV_t0:": "k / v / tap loads of the u^T tile (64 times x 128 channels); workgroup 0 has posted the launch tag (a clock value) in d_debug",
        "HB_2:": "u^T tile out, arrival counters initialised to the tag, shifted filter copies into LDS, LayerNorm(q)",
        "CV_w:": "long causal convolution as Toeplitz MFMAs, one channel per wave",
        "FR_b:": "waves 4-7 beside the convolution: memory-locality vote (timed loads, layout choice only), weight column sums, weight touches",
        "LAYER:": "row stage: residual sums, LayerNorm chain, x + LN(x)*y for 8 rows per workgroup",
        "LOADERS:": "waves 4,5: activation tiles by LDS-DMA (after the producers' counters are complete)",
        "WLOAD:": "waves 6,7: weight tiles by LDS-DMA in their original layout (read back with transposing LDS loads)",
        "G4_last:": "last layer: the two K halves exchange half tiles, add the residuals and write the output",
    }
    o = []
    for l in a.lines:
        if l.strip() in notes: o.append("; ---- " + notes[l.strip()])
        if l.strip().startswith("s_sleep"): l += "    ; back-off inside a wait loop"
        o.append(l)
    a.lines = o
    open(out, "w").write(a.text(HEADER + DOC))
    print("nops added:", a.nops_added)

if __name__ == "__main__":
    main(sys.argv[1] if len(sys.argv) > 1 else "interleave_layers__ssm_conv_h3__mixer_s_mlp__prompt.s")
```

```python
import sys, os, math, struct
sys.path.insert(0, "dev")
from asmgen import Asm

KNAME = "interleave_layers__ssm_conv_h3__mixer_s_mlp__prompt_kernel"
MB = 1 << 20
UT, Y = 24 * MB, 28 * MB
CSP = {1: 20 * MB, 3: 20 * MB + 128 * 1024}
A_Q, A_K, A_V, A_SH, A_SSMK, A_SSMD, B_X, B_W1, B_W2, B_W3, B_W4, D_OUT, D_DBG, D_WS = [8 * i for i in range(14)]
STAMP = int(os.environ.get("STAMP", "0"))
def f32(x): return "0x%08x" % struct.unpack("<I", struct.pack("<f", x))[0]
GC1 = -2.0 * math.sqrt(2.0 / math.pi) * math.log2(math.e)
GC2 = GC1 * 0.044715

class VA:
    def __init__(self, start=1): self.n = start; self.hi = start
    def __call__(self, cnt=1, al=None):
        if al is None: al = 2 if cnt > 1 else 1
        self.n = (self.n + al - 1) // al * al
        r = self.n; self.n += cnt; self.hi = max(self.hi, self.n); return r
def vr(b, n): return f"v[{b}:{b+n-1}]" if n > 1 else f"v{b}"

def unpack(a, lo, hi, src):
    a.e(f"v_lshlrev_b32 v{lo}, 16, v{src}")
    a.e(f"v_and_b32 v{hi}, 0xffff0000, v{src}")
RND = int(os.environ.get("RND", "0"))
def round2(a, x, y, tmp):
    if not RND: return
    a.e(f"v_cvt_pk_bf16_f32 v{tmp}, v{x}, v{y}")
    unpack(a, x, y, tmp)
def round1(a, x):
    if not RND: return
    a.e(f"v_cvt_pk_bf16_f32 v{x}, v{x}, v{x}")
    a.e(f"v_lshlrev_b32 v{x}, 16, v{x}")
def red_g(a, x, t):
    a.e(f"v_mov_b32 v{t}, v{x}"); a.e(f"v_permlane16_swap_b32 v{x}, v{t}"); a.e(f"v_add_f32 v{x}, v{x}, v{t}")
    a.e(f"v_mov_b32 v{t}, v{x}"); a.e(f"v_permlane32_swap_b32 v{x}, v{t}"); a.e(f"v_add_f32 v{x}, v{x}, v{t}")
def ln_finish(a, mean, var, rs, s=None):
    round1(a, mean); round1(a, var)
    a.e(f"v_add_f32 v{var}, {f32(1e-5)}, v{var}"); round1(a, var)
    if not RND and s is None: a.e(f"v_rsq_f32 v{rs}, v{var}"); return
    a.e(f"v_sqrt_f32 v{var}, v{var}"); round1(a, var)
    if s is not None: a.e(f"v_mov_b32 v{s}, v{var}")
    a.e(f"v_rcp_f32 v{rs}, v{var}")


FLG = 22 * MB + int(os.environ.get("FOFF", "0"))
LB0, LSTR, GSTR = 32 * MB, 64 * MB, 8 * MB
oH2 = 0; oSM = 1792 * 1024; oFP = 16384; oST2 = oSM + 32768; oLNS = oSM + 65536
oX3, oX1P, oP0, oP1 = [4 * MB + i * 512 * 1024 for i in range(4)]
XSZ = 512 * 1024 - 8192; H2SZ = 1792 * 1024 - 8192
HSB = 160 * MB; PITCH = 65536 + int(os.environ.get("SKEW", "0")); oHS = None
def fso(stage): return int(stage * 256)
def spread(a, d, src):
    a.e(f"s_lshr_b32 s53, s{src}, 3"); a.e("s_lshl_b32 s53, s53, 14"); a.e(f"s_and_b32 s{d}, s{src}, 7"); a.e(f"s_lshl_b32 s{d}, s{d}, 10"); a.e(f"s_add_u32 s{d}, s{d}, s53")
ST_R, ST_G1, ST_G2, ST_G3, ST_G4, ST_R2, ST_G3B, ST_G3A = range(8); ST_G2S = 5.5
F_KVT, F_FRONT, F_CS = FLG, FLG + 32768, FLG + 49152
LDS_TOTAL = 163840
AUX = LDS_TOTAL - 4096
SC = "sc1"
PSLEEP = int(os.environ.get("PSLEEP", "5"))
ROT = int(os.environ.get("ROT", "1"))
PACE = int(os.environ.get("PACE", "8"))
PDEPTH = int(os.environ.get("PDEPTH", "1"))
WROT = int(os.environ.get("WROT", "1"))
PRIO = int(os.environ.get("PRIO", "0"))
STQ = int(os.environ.get("STQ", "12"))
CPRIO = int(os.environ.get("CPRIO", "0"))
FSLEEP = int(os.environ.get("FSLEEP", "3"))
CSPRIO = int(os.environ.get("CSPRIO", "1"))
NT = os.environ.get("NT", "nt"); HALO = int(os.environ.get("HALO", "0")); NTK = os.environ.get("NTK", "" if HALO else NT); NTH = os.environ.get("NTH", NT)
W1F = int(os.environ.get("W1F", "7"))
WSC = eval(os.environ.get("WSC", "{}"))
TLBW = int(os.environ.get("TLBW", "0"))
T12 = eval(os.environ.get("T12", "{}"))
T23 = eval(os.environ.get("T23", "()"))
OWN3 = int(os.environ.get("OWN3", "1"))
PUB2 = int(os.environ.get("PUB2", "4"))
MAP = int(os.environ.get("MAP", "4"))
HSPLIT = int(os.environ.get("HSPLIT", "2"))
W1G = int(os.environ.get("W1G", "9"))
PWAIT = int(os.environ.get("PWAIT", "8"))
DL = eval(os.environ.get("DL", "[2,4]"))
PACES = eval(os.environ.get("PACES", "{4:6}"))
C0PUB = int(os.environ.get("C0PUB", "6"))
LNSL = AUX + 1024

CFG = {1: dict(WM=4, WN=1, MT=2, NT=4, KBT=32, NS=16, NA=1.5, NW=16, A=oX3, W=B_W1, LDW=2048),
       2: dict(WM=4, WN=1, MT=2, NT=4, KBT=32, NS=16, NA=0, NW=16, A=oHS, W=B_W2, LDW=2048),
       3: dict(WM=2, WN=2, MT=4, NT=7, KBT=32, NS=16, NA=3, NW=3, A=oX1P, W=B_W3, LDW=7168, NPRE=2, WR=1, S0=2, WB=73728),
       4: dict(WM=2, WN=2, MT=4, NT=4, KBT=112, NS=28, NA=3, NW=6, A=oH2, W=B_W4, LDW=2048)}
for w, d in eval(os.environ.get("CFG", "{}")).items(): CFG[w].update(d)
for c in CFG.values():
    c.setdefault("NPRE", c["NW"]); c.setdefault("APRE", min(c["NA"], 3)); c.setdefault("WR", 1)
    c["TN16"] = c["WN"] * c["NT"]; c["STB"] = c["TN16"] * 2048; c.setdefault("WB", int(c["NA"] * 16384)); c.setdefault("S0", 0)
    c["RB"] = c["TN16"] * 32
    assert c["WB"] + c["NW"] * c["STB"] <= AUX
NX = 0
def nib(t): return sum(x << (4 * i) for i, x in enumerate(t))
CSO = {1: AUX + 3584, 3: AUX}

LW = AUX + 3072
def mstamp(a, force=False):
    if os.environ.get("JIT"):
        X = a.lab("jit")
        a.e("s_cselect_b32 s101, 1, 0"); a.e("s_memtime s[64:65]"); a.e("s_waitcnt lgkmcnt(0)"); a.e(f"s_and_b32 s64, s64, {os.environ['JIT']}"); a.e("s_cmp_lg_u32 s64, 0")
        a.e(f"s_cbranch_scc1 {X}"); a.e("s_sleep 50"); a.e(f"{X}:"); a.e("s_cmp_eq_u32 s101, 1")
        return
    if not STAMP or (os.environ.get("GST") and not force): return
    a.e(("s_memrealtime" if STAMP == 2 else "s_memtime") + " s[64:65]"); a.e("s_mov_b32 s100, m0"); a.e("s_mov_b32 m0, s66"); a.e("s_waitcnt lgkmcnt(0)")
    a.e("v_writelane_b32 v255, s64, m0"); a.e("s_mov_b32 m0, s100")
    a.e("s_add_u32 s66, s66, 1")

def lsrd(a, d, off, nbytes, prev=False):
    if prev:
        a.e(f"s_sub_u32 s{d}, s62, {LSTR - off:#x}"); a.e(f"s_subb_u32 s{d+1}, s63, 0")
        a.e(f"s_mov_b32 s{d+2}, {nbytes:#x}"); a.e(f"s_mov_b32 s{d+3}, 0x20000")
    else: a.srd(d, 62, nbytes, off=off)

def hs_srd(a, d):
    a.e("s_lshl_b32 s53, s60, 24"); a.e(f"s_add_u32 s53, s53, {HSB}")
    a.e(f"s_add_u32 s{d}, s4, s53"); a.e(f"s_addc_u32 s{d+1}, s5, 0"); a.e(f"s_mov_b32 s{d+2}, {128*PITCH}"); a.e(f"s_mov_b32 s{d+3}, 0x20000")

def group_off(a, d, m):
    a.e(f"s_lshr_b32 s53, s{m}, 3"); a.e("s_lshl_b32 s53, s53, 2"); a.e(f"s_and_b32 s54, s{m}, 3"); a.e("s_add_u32 s53, s53, s54"); a.e("s_lshl_b32 s53, s53, 23")
    a.e(f"s_lshr_b32 s54, s{m}, 2"); a.e("s_xor_b32 s54, s54, s94"); a.e("s_and_b32 s54, s54, 1"); a.e("s_lshl_b32 s54, s54, 13")
    a.e(f"s_add_u32 s{d}, s53, s54"); a.e(f"s_add_u32 s{d}, s{d}, {LB0}")

PV = 240
def poll_core(a, t, addrs, mask, extra=None, depth=1, cnt=0, nap=None):
    L = a.lab("poll"); D = a.lab("pok")
    n = len(addrs) + (1 if extra else 0)
    if depth > 1: t0 = t; regs = [PV + k * len(addrs) for k in range(depth)]; assert not extra and regs[-1] + len(addrs) <= 256
    else: regs = [t]
    def ld(r):
        for i, ad in enumerate(addrs): a.e(f"buffer_load_dword v{r+i}, v{ad}, s[56:59], 0 offen {SC}")
        if extra: a.e(extra[0])
    a.e("s_mov_b32 s53, 0"); a.e(f"s_add_u32 s54, s52, {cnt}")
    if mask != -1: a.e(f"s_bfm_b64 exec, {mask.bit_length()}, 0")
    for r in regs[:-1]: ld(r); a.e(f"s_sleep {PSLEEP}")
    a.e(f"{L}:")
    for k in range(depth):
        ld(regs[k - 1]); r = regs[k]
        a.e(f"s_waitcnt vmcnt({n*(depth-1)})")
        for i in range(len(addrs)): a.e(f"v_xor_b32 v{r+i}, s54, v{r+i}")
        for i in range(1, len(addrs)): a.e(f"v_or_b32 v{r}, v{r}, v{r+i}")
        if extra:
            for x in extra[1:]: a.e(x)
        a.e(f"v_cmp_eq_u32 vcc, 0, v{r}")
        a.e("s_cmp_eq_u64 vcc, exec"); a.e(f"s_cbranch_scc1 {D}")
        a.e(f"s_sleep {PSLEEP if nap is None else nap}")
    a.e("s_add_u32 s53, s53, 1"); a.e("s_cmp_lt_u32 s53, s61"); a.e(f"s_cbranch_scc1 {L}")
    a.e("s_mov_b32 s61, 0")
    a.e(f"{D}:")
    if mask != -1: a.e("s_mov_b64 exec, -1")

SPLIT = {ST_G1: "sign", ST_G3: "half", ST_G3A: "half", ST_G3B: "half"}
def flag_addr(a, r, stage, prev=False):
    so = fso(stage) - (LSTR if prev else 0)
    a.e(f"s_add_u32 s54, s55, {so & 0xffffffff:#x}")
    sp = SPLIT.get(stage)
    if sp == "half": a.e("s_lshl_b32 s53, s31, 7"); a.e("s_add_u32 s54, s54, s53")
    a.e(f"v_mov_b32 v{r}, s54")
    if sp == "sign":
        a.e("s_add_u32 s53, s54, 128"); a.e(f"v_writelane_b32 v{r}, s53, 1")
        a.e("s_add_u32 s53, s53, s93"); a.e(f"v_writelane_b32 v{r}, s53, 3")
        a.e("s_add_u32 s53, s54, s92"); a.e(f"v_writelane_b32 v{r}, s53, 2")
        return 0xf, 8
    return 1, 8 if sp else 16
def own_wait(a, stage, prev, t):
    if not PWAIT or stage == ST_R: return
    k = {ST_G1: 1, ST_G2: 2, ST_G4: 3}[stage] - (3 if prev else 0)
    a.e("s_mul_i32 s54, s60, 3"); a.e(f"s_add_u32 s54, s54, {k}")
    lds_spin(a, LW + 56, "s54", t, nap=PWAIT)
def flag_try(a, r, ad):
    a.e("s_mov_b64 exec, 1"); a.e(f"buffer_load_dword v{r}, v{ad}, s[56:59], 0 offen {SC}"); a.e("s_mov_b64 exec, -1")
def flag_check(a, r, ad, cnt):
    D = a.lab("fok")
    a.e(f"v_readfirstlane_b32 s53, v{r}"); a.e(f"s_add_u32 s54, s52, {cnt}"); a.e("s_cmp_eq_u32 s53, s54"); a.e(f"s_cbranch_scc1 {D}")
    poll_core(a, r, [ad], 1, cnt=cnt)
    a.e(f"{D}:")

def poll(a, stage, t, prev=False):
    D = a.lab("pdone")
    a.e("s_cmp_lg_u32 s30, 4"); a.e(f"s_cbranch_scc1 {D}")
    own_wait(a, stage, prev, t)
    mask, cnt = flag_addr(a, t + 1, stage, prev)
    poll_core(a, t, [t + 1], mask, depth=PDEPTH, cnt=cnt)
    a.e(f"{D}:")
    if stage != ST_G4: mstamp(a)
    a.e("s_barrier")

def publish(a, stage, nw, t, off=None, wait=0, ctr=None, flag=False):
    D = a.lab("pub")
    mark = PWAIT and off is None and stage in (ST_G1, ST_G2, ST_G4)
    if off is None:
        a.e(f"s_add_u32 s53, s55, {fso(stage)}"); off = 53
        sp = SPLIT.get(stage)
        if sp == "half": a.e("s_lshl_b32 s54, s31, 7"); a.e("s_add_u32 s53, s53, s54")
        if sp == "sign": a.e("s_and_b32 s54, s29, 4"); a.e("s_lshl_b32 s54, s54, 5"); a.e("s_add_u32 s53, s53, s54")
    a.e(f"v_mov_b32 v{t}, 1"); a.e(f"v_mov_b32 v{t+1}, {LW + (ctr if ctr is not None else 4 if nw == 8 else 0)}"); a.e(f"v_mov_b32 v{t+3}, 0")
    a.e("s_mov_b64 exec, 1")
    if wait is not None: a.e(f"s_waitcnt vmcnt({wait})")
    if nw > 1:
        a.e(f"ds_add_rtn_u32 v{t+2}, v{t+1}, v{t}")
        if flag: a.e(f"v_mov_b32 v{t+1}, s52")
        a.e("s_waitcnt lgkmcnt(0)")
        a.e(f"v_readfirstlane_b32 s54, v{t+2}")
        a.e(f"s_and_b32 s54, s54, {nw-1}"); a.e(f"s_cmp_lg_u32 s54, {nw-1}"); a.e(f"s_cbranch_scc1 {D}")
    if flag: a.e(f"buffer_store_dword v{t+1}, v{t+3}, s[56:59], s{off} offen {SC}")
    else: a.e(f"buffer_atomic_add v{t}, v{t+3}, s[56:59], s{off} offen {SC}")
    if stage == ST_R and not flag:
        a.e("s_cmp_lg_u32 s60, 0"); a.e(f"s_cbranch_scc1 {D}")
        a.e("s_lshl_b32 s53, s29, 7"); a.e(f"s_add_u32 s53, s53, {F_CS}")
        a.e(f"buffer_atomic_add v{t}, v{t+3}, s[56:59], s53 offen {SC}")
    if mark: a.e(f"v_mov_b32 v{t+1}, {LW+56}"); a.e(f"ds_add_u32 v{t+1}, v{t}")
    a.e(f"{D}:")
    a.e("s_mov_b64 exec, -1")

def lds_spin(a, addr, target, t, dst=53, nap=False):
    L = a.lab("spin")
    a.e(f"v_mov_b32 v{t}, {addr}")
    a.e(f"{L}:")
    if nap: a.e(f"s_sleep {int(nap)}")
    a.e(f"ds_read_b32 v{t+1}, v{t}"); a.e("s_waitcnt lgkmcnt(0)"); a.e(f"v_readfirstlane_b32 s{dst}, v{t+1}")
    a.e(f"s_cmp_ge_u32 s{dst}, {target}"); a.e(f"s_cbranch_scc0 {L}")
def lds_set(a, addr, val, t):
    a.e(f"v_mov_b32 v{t}, {addr}"); a.e(f"v_mov_b32 v{t+1}, {val}")
    a.e("s_waitcnt lgkmcnt(0)"); a.e(f"ds_write_b32 v{t}, v{t+1}")
def lbar(a, k, t):
    a.e(f"v_mov_b32 v{t}, {LW+8}"); a.e(f"v_mov_b32 v{t+1}, 1")
    a.e("s_waitcnt lgkmcnt(0)")
    a.e("s_mov_b64 exec, 1"); a.e(f"ds_add_u32 v{t}, v{t+1}"); a.e("s_mov_b64 exec, -1")
    lds_spin(a, LW + 8, 4 * k, t)

def gelu4(a, X, t, c1, c2):
    P = [(X, t), (X + 2, t + 2)]
    for x, u in P: a.e(f"v_pk_mul_f32 {vr(u,2)}, {vr(x,2)}, {vr(x,2)}")
    for x, u in P: a.e(f"v_pk_fma_f32 {vr(u,2)}, {vr(u,2)}, {vr(c2,2)}, {vr(c1,2)}")
    for x, u in P: a.e(f"v_pk_mul_f32 {vr(u,2)}, {vr(u,2)}, {vr(x,2)}")
    for i in range(4): a.e(f"v_exp_f32 v{t+i}, v{t+i}")
    for x, u in P: a.e(f"v_pk_add_f32 {vr(u,2)}, {vr(u,2)}, 1.0 op_sel_hi:[1,0]")
    for i in range(4): a.e(f"v_rcp_f32 v{t+i}, v{t+i}")
    for x, u in P: a.e(f"v_pk_mul_f32 {vr(x,2)}, {vr(x,2)}, {vr(u,2)}")

W2EARLY = int(os.environ.get("W2EARLY", "1")); QLATE = int(os.environ.get("QLATE", "0"))
TOUCH2 = [(A_Q, 4 * MB)] + ([] if W2EARLY else [(B_W2, 2 * MB)])
CODEPF = int(os.environ.get("CODEPF", "1")); NVOTE = 255; NSAMP = int(os.environ.get("NSAMP", "2"))
W4POS = os.environ.get("W4POS", "3C")
HSTR = 4160; CHB = 24576; UOFF = 4 * HSTR; US = 96
KVS = 4 * CHB

KV = dict(cq=6, tg=7, t=8, ro=9, wo=16, pt=18, kr=22, vv=36, w=44, d=52, hoff=70, tag=76, zz=78)
def front_loads(a):
    cq, tg, t, ro, wo, kr, vv, w = [KV[k] for k in "cq tg t ro wo kr vv w".split()]
    a.e(f"v_and_b32 v{cq}, 31, v0"); a.e(f"v_lshrrev_b32 v{tg}, 5, v0")
    a.e("s_and_b32 s34, s2, 7"); a.e("s_lshr_b32 s35, s2, 3")
    a.e("s_lshl_b32 s36, s35, 17"); a.e("s_lshl_b32 s37, s34, 8"); a.e("s_add_u32 s36, s36, s37")
    a.e(f"v_lshlrev_b32 v{t}, 13, v{tg}"); a.e(f"v_lshl_add_u32 v{t}, v{cq}, 3, v{t}"); a.e(f"v_add_u32 v{ro+3}, s36, v{t}")
    a.e(f"v_add_u32 v{ro+5}, 4096, v{ro+3}")
    a.e(f"s_mov_b32 s18, {4*MB}"); a.e("s_mov_b32 s19, 0x20000"); a.e("s_mov_b32 s22, s18"); a.e("s_mov_b32 s23, s19")
    a.e("s_waitcnt lgkmcnt(0)")
    tag, zz = KV["tag"], KV["zz"]
    a.e("s_mov_b32 s86, 256"); a.e("s_mov_b32 s87, 0x20000"); a.e(f"v_mov_b32 v{zz}, 0")
    a.e("s_lshl_b32 s45, s2, 3"); a.e("s_add_u32 s45, s45, s30"); a.e("s_cmp_lg_u32 s45, 4"); a.e("s_cbranch_scc1 KV_t0")
    a.e("s_lshl_b32 s44, s46, 6"); a.e("s_or_b32 s44, s44, 1"); a.e(f"v_mov_b32 v{tag}, s44")
    a.e("s_mov_b64 exec, 1"); a.e(f"buffer_store_dword v{tag}, v{zz}, s[84:87], 0 offen {SC}"); a.e("s_mov_b64 exec, -1")
    a.e("KV_t0:")
    a.e("s_mov_b64 s[16:17], s[8:9]"); a.e("s_mov_b64 s[20:21], s[10:11]")
    for i in range(4): a.e(f"buffer_load_dwordx2 {vr(kr+2*(i+3),2)}, v{ro+3+(i&2)}, s[16:19], 0 offen offset:{2048*(i&1)} {NTK}")
    for i in range(4): a.e(f"buffer_load_dwordx2 {vr(vv+2*i,2)}, v{ro+3+(i&2)}, s[20:23], 0 offen offset:{2048*(i&1)} {NT}")
    for i in range(3): a.e(f"v_subrev_u32 v{ro+i}, {2048*(3-i)}, v{ro+3}")
    a.e("s_lshl_b32 s37, s34, 10"); a.e(f"v_lshlrev_b32 v{wo}, 5, v{cq}"); a.e(f"v_add_u32 v{wo}, s37, v{wo}")
    a.srd(24, 12, 8192)
    XP = os.environ.get("XP", "g")
    for i in range(0 if "t" in XP else 2): a.e(f"buffer_load_dwordx4 {vr(w+4*i,4)}, v{wo}, s[24:27], 0 offen offset:{16*i}")
    if "g" in XP:
        a.e("s_cmp_lg_u32 s30, 4"); a.e("s_cbranch_scc1 KV_t2")
        a.e(f"buffer_load_dword v{tag}, v{zz}, s[84:87], 0 offen {SC}")
        a.e("KV_t2:")
    if "h" in XP: return
    if HALO:
        a.e("s_cmp_lg_u32 s30, 0"); a.e("s_cbranch_scc1 KV_h0"); a.e("s_bfm_b64 exec, 32, 0")
    for i in range(3): a.e(f"buffer_load_dwordx2 {vr(kr+2*i,2)}, v{ro+i}, s[16:19], 0 offen {NTK}")
    if HALO: a.e("s_mov_b64 exec, -1"); a.e("KV_h0:")

def probe_base(a):
    a.e("s_and_b32 s42, s2, 31"); a.e("s_lshl_b32 s42, s42, 8"); a.e("s_lshr_b32 s43, s2, 5"); a.e("s_lshl_b32 s43, s43, 14"); a.e("s_add_u32 s42, s42, s43")
    a.e(f"s_add_u32 s42, s42, {LB0 + oSM + 131072}")
def front_arrive(a, wait):
    D = a.lab("fa"); t = 6
    a.e("s_and_b32 s36, s2, 7"); a.e("s_lshl_b32 s36, s36, 7"); a.e(f"s_add_u32 s36, s36, {F_FRONT}")
    a.e(f"v_mov_b32 v{t}, 1"); a.e(f"v_mov_b32 v{t+1}, {LW+4}"); a.e(f"v_lshlrev_b32 v{t+3}, 10, v1")
    a.e("s_mov_b64 exec, 1")
    if wait: a.e("s_waitcnt vmcnt(0)")
    a.e("s_waitcnt lgkmcnt(0)")
    a.e(f"ds_add_rtn_u32 v{t+2}, v{t+1}, v{t}"); a.e(f"ds_read_b32 v{t+4}, v{t+1} offset:28")
    a.e("s_waitcnt lgkmcnt(0)")
    a.e(f"v_readfirstlane_b32 s54, v{t+2}"); a.e(f"v_readfirstlane_b32 s53, v{t+4}")
    a.e("s_cmp_lg_u32 s54, 15"); a.e(f"s_cbranch_scc1 {D}")
    a.e("s_mov_b64 exec, 0xffff"); a.e("s_or_b32 s53, s53, 1"); a.e(f"v_mov_b32 v{t}, s53")
    a.e(f"buffer_atomic_add v{t}, v{t+3}, s[56:59], s36 offen {SC}")
    a.e(f"{D}:"); a.e("s_mov_b64 exec, -1")
def front_a(a):
    cq, tg, t, pt, kr, vv, w, d, hoff, tag, zz = [KV[k] for k in "cq tg t pt kr vv w d hoff tag zz".split()]
    v = VA(80)
    a.e("s_and_b32 s41, s30, 3"); chan_setup(a, 41)
    a.e("s_lshr_b32 s36, s39, 1"); a.e("s_lshl_b32 s36, s36, 2"); a.e("s_load_dword s98, s[96:97], s36")
    a.e("s_lshl_b32 s36, s39, 12")
    a.e("s_add_u32 s12, s14, s36"); a.e("s_addc_u32 s13, s15, 0"); a.e("s_mov_b32 s14, 4096"); a.e("s_mov_b32 s15, 0x20000")
    a.e("s_lshr_b32 s45, s30, 2"); a.e("s_lshl_b32 s45, s45, 11")
    for it in range(3):
        if it < 2: a.e(f"s_add_u32 s36, s45, {(1024*it - 64) & 0xffffffff:#x}")
        else: a.e(f"s_mov_b32 s36, {4096 - 64}")
        a.e(f"v_add_u32 v{hoff+2*it}, s36, v2"); a.e(f"v_add_u32 v{hoff+2*it+1}, 16, v{hoff+2*it}")
    a.e("s_and_b32 s34, s2, 7"); a.e("s_lshr_b32 s35, s2, 3")
    z = v(4, 4); la = v(); t2 = v(); hw = v()
    for i in range(4): a.e(f"v_mov_b32 v{z+i}, 0")
    a.e(f"v_add_u32 v{hw}, s40, v2")
    a.e(f"ds_write_b128 v{hw}, {vr(z,4)} offset:{UOFF+64*US}")
    a.e(f"s_bfm_b64 exec, {(15*US - 1024)//16}, 0"); a.e(f"ds_write_b128 v{hw}, {vr(z,4)} offset:{UOFF+64*US+1024}"); a.e("s_mov_b64 exec, -1")
    a.e(f"v_lshlrev_b32 v{t}, 2, v{tg}"); a.e(f"v_sub_u32 v{t}, 60, v{t}")
    a.e(f"v_lshrrev_b32 v{t2}, 3, v{t}"); a.e(f"v_bfe_u32 v{la}, v{cq}, 1, 3"); a.e(f"v_xor_b32 v{t2}, v{t2}, v{la}"); a.e(f"v_lshlrev_b32 v{t2}, 4, v{t2}")
    a.e(f"v_and_b32 v{t}, 7, v{t}"); a.e(f"v_lshl_add_u32 v{t2}, v{t}, 1, v{t2}")
    a.e(f"v_lshl_add_u32 v{la}, v{cq}, 9, v{t2}"); a.e(f"v_add_u32 v{la}, {KVS}, v{la}")
    wf = v(8, 2); kf = v(14, 2); vf = v(8, 2); ks = v(8, 2); pr = v(8, 2); o = v(8, 4); tm = v(4, 1)
    a.e("s_waitcnt vmcnt(0)")
    if HALO:
        for i in range(3): a.e(f"buffer_load_dwordx2 {vr(kr+2*i,2)}, v{KV['ro']+i}, s[16:19], 0 offen {NTK}")
        if HALO == 1: a.e("s_waitcnt vmcnt(0)")
    a.e("s_cmp_lg_u32 s30, 4"); a.e("s_cbranch_scc1 KV_t1")
    if "g" not in os.environ.get("XP", "g"): a.e(f"buffer_load_dword v{tag}, v{zz}, s[84:87], 0 offen {SC}")
    a.e("KV_t1:")
    for it in range(3):
        a.e(f"buffer_load_dwordx4 {vr(d+6*it,4)}, v{hoff+2*it}, s[12:15], 0 offen {NTH}")
        a.e(f"buffer_load_dwordx2 {vr(d+6*it+4,2)}, v{hoff+2*it+1}, s[12:15], 0 offen {NTH}")
    if HALO == 2: a.e("s_waitcnt vmcnt(10)")
    mstamp(a)
    for dd in range(2):
        for c in range(2):
            unpack(a, wf + 0 + c, wf + 2 + c, w + 2 * (2 * dd + c)); unpack(a, wf + 4 + c, wf + 6 + c, w + 2 * (2 * dd + c) + 1)
        for i in range(7): unpack(a, kf + 2 * i, kf + 2 * i + 1, kr + 2 * i + dd)
        for i in range(4): unpack(a, vf + 2 * i, vf + 2 * i + 1, vv + 2 * i + dd)
        def rnd(base):
            for i in range(4): a.e(f"v_cvt_pk_bf16_f32 v{tm+i}, v{base+2*i}, v{base+2*i+1}")
            for i in range(4): unpack(a, base + 2 * i, base + 2 * i + 1, tm + i)
        for i in range(4): a.e(f"v_pk_mul_f32 {vr(ks+2*i,2)}, {vr(kf+2*i,2)}, {vr(wf+6,2)}")
        if RND: rnd(ks)
        for j in range(1, 4):
            if not RND:
                for i in range(4): a.e(f"v_pk_fma_f32 {vr(ks+2*i,2)}, {vr(kf+2*(i+j),2)}, {vr(wf+6-2*j,2)}, {vr(ks+2*i,2)}")
                continue
            for i in range(4): a.e(f"v_pk_mul_f32 {vr(pr+2*i,2)}, {vr(kf+2*(i+j),2)}, {vr(wf+6-2*j,2)}")
            rnd(pr)
            for i in range(4): a.e(f"v_pk_add_f32 {vr(ks+2*i,2)}, {vr(ks+2*i,2)}, {vr(pr+2*i,2)}")
            rnd(ks)
        for i in range(4): a.e(f"v_pk_mul_f32 {vr(ks+2*i,2)}, {vr(ks+2*i,2)}, {vr(vf+2*i,2)}")
        for c in range(2):
            e = 2 * dd + c
            a.e(f"v_cvt_pk_bf16_f32 v{o+2*e}, v{ks+6+c}, v{ks+4+c}"); a.e(f"v_cvt_pk_bf16_f32 v{o+2*e+1}, v{ks+2+c}, v{ks+c}")
            a.e(f"ds_write_b64 v{la}, {vr(o+2*e,2)} offset:{e*128}")
    a.e("s_cmp_lg_u32 s30, 4"); a.e("s_cbranch_scc1 HB_2")
    a.e(f"v_add_u32 v{pt}, {LW}, v3"); a.e(f"ds_write_b32 v{pt}, v{zz}")
    a.e("s_mov_b32 s53, 0")
    a.e("s_waitcnt vmcnt(6)")
    a.e("HB_p:")
    a.e(f"v_readfirstlane_b32 s52, v{tag}"); a.e("s_cmp_lg_u32 s52, 0"); a.e("s_cbranch_scc1 HB_q")
    a.e(f"buffer_load_dword v{tag}, v{zz}, s[84:87], 0 offen {SC}"); a.e("s_waitcnt vmcnt(0)")
    a.e("s_add_u32 s53, s53, 1"); a.e("s_cmp_lt_u32 s53, s61"); a.e("s_cbranch_scc1 HB_p")
    a.e("s_mov_b32 s52, 1"); a.e("s_mov_b32 s61, 0")
    a.e("HB_q:")
    lds_set(a, LW + 12, "s52", pt)
    a.e("HB_2:")
    a.srd(16, 4, 4 * MB, off=UT)
    ra = v(); go = v(); ob = v(8, 4)
    a.e(f"v_lshrrev_b32 v{t}, 3, v0"); a.e(f"v_and_b32 v{t2}, 7, v0")
    a.e(f"v_lshlrev_b32 v{go}, 12, v{t}"); a.e(f"v_lshl_add_u32 v{go}, v{t2}, 4, v{go}")
    a.e("s_lshl_b32 s36, s34, 19"); a.e("s_sub_u32 s37, 31, s35"); a.e("s_lshl_b32 s37, s37, 7"); a.e("s_add_u32 s36, s36, s37")
    a.e(f"s_add_u32 s37, s36, {64*4096}")
    a.e(f"v_lshrrev_b32 v{ra}, 3, v{t}"); a.e(f"v_xor_b32 v{ra}, v{ra}, v{t2}"); a.e(f"v_lshlrev_b32 v{ra}, 4, v{ra}"); a.e(f"v_lshl_add_u32 v{ra}, v{t}, 7, v{ra}")
    a.e(f"v_add_u32 v{ra}, {KVS}, v{ra}"); a.e(f"v_mov_b32 v{pt}, {LW+12}")
    a.e("s_waitcnt lgkmcnt(0)"); a.e("s_barrier")
    for i in range(2): a.e(f"ds_read_b128 {vr(ob+4*i,4)}, v{ra} offset:{i*8192}")
    a.e(f"ds_read_b32 v{pt+1}, v{pt}")
    for i in range(2):
        a.e(f"s_waitcnt lgkmcnt({2-i})")
        a.e(f"buffer_store_dwordx4 {vr(ob+4*i,4)}, v{go}, s[16:19], s{36+i} offen {SC}")
    a.e("s_waitcnt lgkmcnt(0)"); a.e(f"v_readfirstlane_b32 s52, v{pt+1}")
    a.e("s_cmp_lg_u32 s30, 0"); a.e("s_cbranch_scc1 KV_ni"); a.e("s_cmp_ge_u32 s35, 16"); a.e("s_cbranch_scc1 KV_ni")
    a.e(f"v_mov_b32 v{t}, s52")
    a.e("s_lshl_b32 s37, s34, 7"); a.e("s_lshl_b32 s53, s35, 10"); a.e("s_add_u32 s37, s37, s53"); a.e(f"s_add_u32 s37, s37, {F_FRONT}")
    a.e("s_mov_b64 exec, 1"); a.e(f"buffer_store_dword v{t}, v{zz}, s[56:59], s37 offen {SC}"); a.e("s_mov_b64 exec, -1")
    a.e("KV_ni:")
    a.e(f"s_cmp_ge_u32 s2, {NVOTE}"); a.e("s_cbranch_scc1 KV_n3"); a.e("s_cmp_lg_u32 s30, 5"); a.e("s_cbranch_scc1 KV_n3")
    probe_base(a)
    a.e(f"v_and_b32 v{t}, 1, v1"); a.e(f"v_lshlrev_b32 v{t}, 13, v{t}"); a.e(f"v_lshrrev_b32 v{t2}, 1, v1"); a.e(f"v_lshl_add_u32 v{t}, v{t2}, 7, v{t}")
    a.e("s_mov_b64 exec, 0xf"); a.e(f"buffer_store_dword v{t}, v{t}, s[56:59], s42 offen {SC}"); a.e("s_mov_b64 exec, -1")
    a.e("KV_n3:")
    def pubk():
        a.e("s_lshl_b32 s36, s34, 5"); a.e("s_add_u32 s36, s36, s35"); a.e("s_lshl_b32 s36, s36, 7"); a.e(f"s_add_u32 s36, s36, {F_KVT}")
        mstamp(a)
        publish(a, 0, 8, pt, off=36, flag=True)
        mstamp(a)
    HF = int(os.environ.get("HF", "0"))
    if not HF: pubk()
    else: a.e("s_waitcnt vmcnt(2)")
    cc = wf; hw2 = v()
    a.e(f"v_add_u32 v{hw2}, s45, v{hw}")
    for it in range(3):
        D = d + 6 * it; c0 = cc + 12 * it; c1 = c0 + 4; c2 = c0 + 8
        for k in range(4):
            a.e(f"v_alignbit_b32 v{c0+k}, v{D+k+1}, v{D+k}, 16")
            a.e(f"v_mov_b32 v{c1+k}, v{D+k+1}")
            a.e(f"v_alignbit_b32 v{c2+k}, v{D+k+2}, v{D+k+1}, 16")
        if it == 2: a.e("s_mov_b64 exec, 0xf")
        ad, o0 = (hw2, 1024 * it) if it < 2 else (hw, 4096)
        a.e(f"ds_write_b128 v{ad}, {vr(c0,4)} offset:{o0}")
        a.e(f"ds_write_b128 v{ad}, {vr(c1,4)} offset:{HSTR+o0}")
        a.e(f"ds_write_b128 v{ad}, {vr(c2,4)} offset:{2*HSTR+o0}")
        a.e(f"ds_write_b128 v{ad}, {vr(D+2,4)} offset:{3*HSTR+o0}")
        if it == 2: a.e("s_mov_b64 exec, -1")
    if HF: pubk()
    assert v.hi <= 176
    a.e("s_waitcnt lgkmcnt(0)"); a.e("s_barrier")
def load_q(a):
    a.srd(8, 6, 4 * MB)
    for j in range(4): a.e(f"buffer_load_dwordx2 {vr(RXA+2*j,2)}, v{RRO}, s[8:11], 0 offen offset:{128*(j>>1) + 32*(j&1)} {NTH}")
def chan_setup(a, wsg):
    a.e("s_and_b32 s38, s2, 7"); a.e("s_lshl_b32 s38, s38, 5"); a.e("s_lshr_b32 s39, s2, 3"); a.e("s_add_u32 s38, s38, s39")
    a.e("s_lshl_b32 s39, s38, 2"); a.e(f"s_add_u32 s39, s39, s{wsg}")
    a.e(f"s_mul_i32 s40, s{wsg}, {CHB}")

def touch(a, ka, nbytes, r):
    n = nbytes // 1024 // 512
    a.e(f"s_load_dwordx2 s[48:49], s[0:1], {ka}")
    a.e("s_lshl_b32 s45, s2, 1"); a.e("s_and_b32 s50, s30, 1"); a.e("s_add_u32 s45, s45, s50"); a.e(f"s_mul_i32 s45, s45, {n*1024}")
    a.e(f"s_mov_b32 s50, {nbytes}"); a.e("s_mov_b32 s51, 0x20000")
    a.e("s_waitcnt lgkmcnt(0)")
    for i in range(n):
        if i and i % 4 == 0: a.e("s_add_u32 s45, s45, 4096")
        a.e(f"buffer_load_dwordx4 {vr(r,4)}, v2, s[48:51], s45 offen offset:{(i&3)*1024}")
    return n

def w2_warm(a):
    a.e("s_mov_b64 s[48:49], s[70:71]"); a.e(f"s_mov_b32 s50, {2*MB}"); a.e("s_mov_b32 s51, 0x20000")
    a.e("s_and_b32 s45, s28, 3"); a.e("s_lshl_b32 s45, s45, 1"); a.e("s_and_b32 s46, s30, 1"); a.e("s_add_u32 s45, s45, s46"); a.e("s_lshl_b32 s45, s45, 18")
    a.e("s_lshl_b32 s46, s29, 7"); a.e("s_add_u32 s45, s45, s46"); a.e("v_lshlrev_b32 v245, 11, v1")
    a.e("buffer_load_dword v244, v245, s[48:51], s45 offen"); a.e(f"s_add_u32 s45, s45, {64*2048}"); a.e("buffer_load_dword v246, v245, s[48:51], s45 offen")
def cs_load(a, which, slot):
    w_setup(a, which, pre=False)
    a.e(f"s_mov_b32 s42, {slot}"); a.e("s_mov_b32 s44, s28")
    w_issue(a, which, direct=True)
CSEL, CFR, CAD, CACC, CSO_ = 16, 72, 144, 156, 164
def cs_prep(a, S1, S3):
    a.e(f"v_and_b32 v{CSO_}, 15, v1"); a.e(f"v_mov_b32 v{CSO_+1}, 0x3f803f80")
    for T in range(14):
        a.e(f"v_cmp_eq_u32 vcc, {T}, v{CSO_}")
        for e in range(4): a.e(f"v_cndmask_b32 v{CSEL+4*T+e}, 0, v{CSO_+1}, vcc")
    pos = {}
    for which, slot, r0, halves in ((1, S1, CAD, 1), (3, S3, CAD + 4, 2)):
        c = CFG[which]
        for hf in range(halves):
            a.e(f"s_mov_b32 s35, {hf}")
            nr, pos[which] = w_bases(a, which, r0 + 2 * hf, 35, c["TN16"] // halves, WV + 8, WV + 9)
            a.e("s_and_b32 s35, s30, 1"); a.e(f"s_mul_i32 s35, s35, {32*c['RB']}"); a.e(f"s_add_u32 s35, s35, {slot}")
            for i in range(nr): a.e(f"v_add_u32 v{r0+2*hf+i}, s35, v{r0+2*hf+i}")
    for i in range(8): a.e(f"v_mov_b32 v{CACC+i}, 0")
    a.e(f"v_lshrrev_b32 v{CSO_+2}, 4, v1"); a.e(f"v_lshlrev_b32 v{CSO_+2}, 4, v{CSO_+2}"); a.e(f"v_lshl_add_u32 v{CSO_+2}, v{CSO_}, 6, v{CSO_+2}")
    a.e(f"v_mov_b32 v{CSO_+1}, 0x7f000000")
    for k, n in ((3, 4), (4, 14)):
        a.e(f"v_cmp_gt_u32 vcc, {n}, v{CSO_}"); a.e(f"v_cndmask_b32 v{CSO_+k}, v{CSO_+1}, v{CSO_+2}, vcc")
    return pos
def cs_sum(a, which, pos):
    c = CFG[which]; ntl = c["TN16"]; N = c["LDW"] // 2
    F = CFR + (0 if which == 3 else 56); A = CACC + (0 if which == 3 else 4)
    for T in range(ntl):
        hf, nt = (T // 7, T % 7) if which == 3 else (0, T)
        for h in range(2):
            r, imm = pos[which](nt, 0, h)
            a.e(f"ds_read_b64_tr_b16 {vr(F+4*T+2*h,2)}, v{(CAD + 4 if which == 3 else CAD) + 2*hf + r} offset:{imm}")
    a.srd(20, 4, 32 * N * 4, off=CSP[which])
    a.e("s_lshl_b32 s35, s28, 1"); a.e("s_and_b32 s36, s30, 1"); a.e("s_add_u32 s35, s35, s36"); a.e(f"s_mul_i32 s35, s35, {N*4}")
    a.e(f"s_mul_i32 s36, s29, {ntl*64}"); a.e("s_add_u32 s35, s35, s36")
    a.e("s_waitcnt lgkmcnt(0)")
    for T in range(ntl): a.e(f"v_mfma_f32_16x16x32_bf16 {vr(A,4)}, {vr(F+4*T,4)}, {vr(CSEL+4*T,4)}, {vr(A,4)}")
    a.e(f"buffer_store_dwordx4 {vr(A,4)}, v{CSO_ + (4 if which == 3 else 3)}, s[20:23], s35 offen {SC}")

NOCS3 = int(os.environ.get("NOCS3", "0")); STO = os.environ.get("STOUCH", "")
def stouch(a, which, gran, nw):
    X = a.lab("st"); L = a.lab("sl"); n = 28672 // nw
    a.e("s_cmp_lg_u32 s60, 0"); a.e(f"s_cbranch_scc1 {X}")
    a.e(f"s_mul_i32 s36, s2, 28672"); a.e(f"s_and_b32 s37, s30, {nw-1}"); a.e(f"s_mul_i32 s37, s37, {n}"); a.e("s_add_u32 s36, s36, s37")
    a.e(f"s_add_u32 s34, s{66+2*which}, s36"); a.e(f"s_addc_u32 s35, s{67+2*which}, 0"); a.e("s_mov_b32 s36, 0")
    a.e(f"{L}:")
    for i in range(14): a.e(f"s_load_dword s37, s[34:35], {i*gran}")
    a.e(f"s_add_u32 s34, s34, {14*gran}"); a.e("s_addc_u32 s35, s35, 0"); a.e("s_add_u32 s36, s36, 1"); a.e(f"s_cmp_lt_u32 s36, {n // (14*gran)}"); a.e(f"s_cbranch_scc1 {L}")
    a.e("s_waitcnt lgkmcnt(0)")
    a.e(f"{X}:")
SB = eval(os.environ.get("SB", "(0,0,0)"))
SG = eval(os.environ.get("SG", "(0,0,0,0)"))
def sg(a, n):
    if not n: return
    X = a.lab("st"); L = a.lab("sl")
    a.e("s_cmp_lg_u32 s60, 0"); a.e(f"s_cbranch_scc1 {X}"); a.e("s_mov_b32 s36, 0"); a.e(f"{L}:"); sb(a, 14)
    a.e("s_add_u32 s36, s36, 1"); a.e(f"s_cmp_lt_u32 s36, {n}"); a.e(f"s_cbranch_scc1 {L}"); a.e("s_waitcnt lgkmcnt(0)"); a.e(f"{X}:"); mstamp(a)
def sb_init(a):
    nw = 2 if sum(SG) else 4
    a.e(f"s_mul_i32 s36, s2, 28672"); a.e(f"s_and_b32 s37, s30, {nw-1}"); a.e(f"s_mul_i32 s37, s37, {28672//nw}"); a.e("s_add_u32 s36, s36, s37")
    SW = 66 + 2 * int(os.environ.get("SGW", "3"))
    a.e(f"s_add_u32 s90, s{SW}, s36"); a.e(f"s_addc_u32 s91, s{SW+1}, 0")
def sb(a, n):
    for i in range(n): a.e(f"s_load_dword s101, s[90:91], {i*64}")
    if n: a.e(f"s_add_u32 s90, s90, {n*64}"); a.e("s_addc_u32 s91, s91, 0")
def front_b(a):
    pt, dm = 6, 20
    if TAB: tab_load(a)
    TE = int(os.environ.get("TE", "0"))
    if TE:
        a.e("s_cmp_ge_u32 s30, 6"); a.e("s_cbranch_scc1 FB_t1"); touch(a, B_W2, 2 * MB, dm); a.e("s_branch FB_t2"); a.e("FB_t1:"); touch(a, B_W1, 2 * MB, 200); a.e("FB_t2:")
    w_lanes(a)
    sb_init(a); sb(a, SB[0])
    a.e("s_cmp_ge_u32 s30, 6"); a.e("s_cbranch_scc1 FB_cs")
    vd = 12
    a.e(f"s_cmp_ge_u32 s2, {NVOTE}"); a.e("s_cbranch_scc1 FB_np"); a.e("s_cmp_lg_u32 s30, 5"); a.e("s_cbranch_scc1 FB_np")
    probe_base(a); a.e(f"v_mov_b32 v{vd+2}, 0")
    a.e("s_mov_b64 exec, 1"); a.e("s_mov_b32 s46, -1"); a.e("s_mov_b32 s47, -1"); a.e("s_mov_b32 s43, 0")
    a.e("FB_ml:")
    for i in range(2):
        a.e(f"s_add_u32 s45, s42, {i * 8192}")
        a.e("s_memtime s[34:35]"); a.e("s_waitcnt lgkmcnt(0)")
        a.e(f"buffer_load_dword v{vd+1}, v{vd+2}, s[56:59], s45 offen {SC}"); a.e("s_waitcnt vmcnt(0)")
        a.e("s_memtime s[36:37]"); a.e("s_waitcnt lgkmcnt(0)")
        a.e("s_sub_u32 s36, s36, s34"); a.e(f"s_min_u32 s{46+i}, s{46+i}, s36")
    a.e("s_add_u32 s42, s42, 128"); a.e("s_add_u32 s43, s43, 1"); a.e(f"s_cmp_lt_u32 s43, {NSAMP}"); a.e("s_cbranch_scc1 FB_ml")
    a.e("s_cmp_lt_u32 s47, s46"); a.e("s_cselect_b32 s45, 1, 0")
    a.e("s_lshr_b32 s46, s28, 2"); a.e("s_xor_b32 s45, s45, s46"); a.e("s_and_b32 s45, s45, 1"); a.e("s_lshl_b32 s45, s45, 8")
    a.e("s_mov_b64 exec, -1")
    lds_set(a, LW + 32, "s45", pt)
    a.e("FB_np:")
    mstamp(a)
    a.e("s_cmp_lg_u32 s30, 4"); a.e("s_cbranch_scc1 FB_ni")
    a.e(f"v_mov_b32 v{vd}, s52")
    group_off(a, 37, 28); a.e("s_andn2_b32 s37, s37, 0x2000"); a.e("s_lshl_b32 s53, s29, 7"); a.e("s_add_u32 s37, s37, s53"); a.e(f"s_add_u32 s37, s37, {oSM}")
    a.e(f"v_and_b32 v{vd+1}, 1, v1"); a.e(f"v_lshlrev_b32 v{vd+1}, 13, v{vd+1}"); a.e(f"v_lshrrev_b32 v{vd+2}, 1, v1"); a.e(f"v_lshl_add_u32 v{vd+1}, v{vd+2}, 26, v{vd+1}")
    a.e("s_mov_b64 exec, 0xf"); a.e(f"buffer_store_dword v{vd}, v{vd+1}, s[56:59], s37 offen {SC}")
    a.e("s_cmp_lg_u32 s28, 0"); a.e("s_cbranch_scc1 FB_n2")
    a.e(f"s_add_u32 s37, s53, {F_CS}"); a.e("s_mov_b64 exec, 1"); a.e(f"buffer_store_dword v{vd}, v{vd+1}, s[56:59], s37 offen {SC}")
    a.e("FB_n2:")
    a.e("s_mov_b64 exec, -1")
    for i in range(4): a.e(f"v_mov_b32 v{vd+4+i}, 0")
    a.e("s_lshr_b32 s36, s2, 7"); a.e("s_lshl_b32 s36, s36, 24"); a.e(f"s_add_u32 s36, s36, {HSB}")
    a.e("s_add_u32 s20, s4, s36"); a.e("s_addc_u32 s21, s5, 0"); a.e(f"s_mov_b32 s22, {128*PITCH}"); a.e("s_mov_b32 s23, 0x20000")
    a.e("s_and_b32 s36, s2, 127"); a.e(f"s_mul_i32 s36, s36, {PITCH}"); a.e(f"s_add_u32 s36, s36, {16384 - 32}")
    a.e(f"v_and_b32 v{vd+1}, 1, v1"); a.e(f"v_lshlrev_b32 v{vd+1}, 4, v{vd+1}"); a.e(f"v_bfe_u32 v{vd+2}, v1, 1, 1"); a.e(f"v_lshl_add_u32 v{vd+1}, v{vd+2}, 13, v{vd+1}")
    a.e(f"v_bfe_u32 v{vd+2}, v1, 2, 1"); a.e(f"v_mul_u32_u24 v{vd+2}, {32768 + 32}, v{vd+2}"); a.e(f"v_add_u32 v{vd+1}, v{vd+1}, v{vd+2}")
    a.e("s_mov_b64 exec, 0xff"); a.e(f"buffer_store_dwordx4 {vr(vd+4,4)}, v{vd+1}, s[20:23], s36 offen {SC}"); a.e("s_mov_b64 exec, -1")
    a.e("FB_ni:")
    UG = (LW + 20, 4) if os.environ.get("UG") else (LW + 16, 1)
    lds_spin(a, *UG, pt, nap=2)
    mstamp(a)
    if TLBW:
        a.e("s_cmp_lg_u32 s30, 4"); a.e("s_cbranch_scc1 FB_nt")
        a.e(f"s_load_dwordx2 s[8:9], s[0:1], {D_OUT}")
        a.srd(20, 4, 192 * MB)
        group_off(a, 34, 28)
        a.e("s_sub_u32 s36, s28, 1"); a.e("s_max_i32 s36, s36, 0"); group_off(a, 35, 36)
        a.e("s_add_u32 s36, s28, 1"); a.e("s_min_u32 s36, s36, 15"); group_off(a, 37, 36)
        a.e(f"v_lshlrev_b32 v{vd}, 21, v1"); a.e(f"v_add_u32 v{vd}, {HSB - 8 * 2 * MB}, v{vd}")
        for l, (r, o) in enumerate([(34, 0), (34, oP0 if TLBW == 2 else 4 * MB), (35, 0), (37, 0)]):
            for ly in range(2):
                a.e(f"s_add_u32 s36, s{r}, {o + ly * LSTR}"); a.e(f"v_writelane_b32 v{vd}, s36, {2*l+ly}")
        a.e("s_bfm_b64 exec, 20, 0"); a.e(f"buffer_{'store' if TLBW == 2 else 'load'}_dword v{dm}, v{vd}, s[20:23], 0 offen {SC}")
        a.e("s_waitcnt lgkmcnt(0)"); a.e(f"s_mov_b32 s10, {4*MB}"); a.e("s_mov_b32 s11, 0x20000")
        a.e("s_mov_b64 exec, 1"); a.e(f"buffer_load_dword v{dm+1}, v{RRO}, s[8:11], 0 offen {SC}"); a.e("s_mov_b64 exec, -1")
        a.e("FB_nt:")
    if os.environ.get("W2T", "1") == "2": lds_spin(a, LW + 24, 2, pt, nap=4)
    if os.environ.get("W2T", "1") != "0" and not TE: touch(a, B_W2, 2 * MB, dm)
    QL = int(os.environ.get("QL", "0"))
    if not QL: load_q(a)
    if W4POS == "F": lds_spin(a, LW + 24, 2, pt, nap=4); a.e("s_waitcnt vmcnt(0)")
    if W4POS in ("F", "F0"): touch(a, B_W4, 7 * MB, dm)
    PZF = int(os.environ.get("PZF", "0"))
    if PZF:
        a.srd(20, 4, 32 * MB, off=216 * MB)
        for i in range(4): a.e(f"v_mov_b32 v{216+i}, -1")
        a.e("s_lshl_b32 s45, s2, 1"); a.e("s_and_b32 s50, s30, 1"); a.e("s_add_u32 s45, s45, s50"); a.e(f"s_mul_i32 s45, s45, {PZF*1024}")
        for i in range(PZF):
            a.e(f"buffer_store_dwordx4 v[216:219], v2, s[20:23], s45 offen {SC}"); a.e("s_add_u32 s45, s45, 1024")
            if os.environ.get("PZP"): a.e(f"s_waitcnt vmcnt({os.environ['PZP']})")
    front_arrive(a, True)
    if TAB: tab_make(a, 0)
    PKW = int(os.environ.get("PKW", "2")); PKP = int(os.environ.get("PKP", "8"))
    W1P = int(os.environ.get("W1P", "8")); FO = os.environ.get("FO", "1pd"); FO2 = os.environ.get("FO2", "1pd")
    R1 = [176, 188, 192] + [200 + 4 * i for i in range(7)] + [16 + 4 * i for i in range(8)]
    def w1_regs(a):
        w_srd(a, 1)
        a.e("s_and_b32 s35, s30, 3"); a.e(f"s_mul_i32 s35, s35, {18*16384}"); a.e("s_lshl_b32 s39, s29, 7"); a.e("s_add_u32 s39, s39, s35")
        for q in range(18):
            a.e(f"buffer_load_dwordx4 {vr(R1[q],4)}, v{WVB[1]}, s[12:15], s39 offen"); a.e("s_add_u32 s39, s39, 16384")
            if q % 4 == 3: sb(a, SB[1])
            if PKP and q % 4 == 3: a.e(f"s_waitcnt vmcnt({PKP})")
        if QL: load_q(a)
    def w1_put(a):
        a.e("s_and_b32 s35, s30, 3"); a.e(f"s_mul_i32 s35, s35, {18*1024}"); a.e("v_add_u32 v8, s35, v2")
        lds_spin(a, LW + 4, 16, pt, nap=2)
        a.e("s_waitcnt vmcnt(0)")
        for q in range(18): a.e(f"ds_write_b128 v8, {vr(R1[q],4)} offset:{CFG[1]['WB'] + 1024*q}")
        a.e("s_waitcnt lgkmcnt(0)")
    def w1_dma(a, js):
        lds_spin(a, LW + 24, 4, pt, nap=3)
        w_setup(a, 1, pre=False); w1_slots(a, js, pace=W1P)
    DS_ = int(os.environ.get("DSPL", "12"))
    if PKW: lds_spin(a, LW + 24, PKW, pt, nap=4)
    for ch in FO:
        if ch == "d": w1_dma(a, range(9, DS_))
        else: call(a, {"1": w1_regs, "p": park}[ch])
    mstamp(a)
    call(a, w1_put)
    a.e("s_branch FR_end")
    a.e("FB_cs:")
    S1, S3 = KVS - CFG[1]["WB"], KVS + 8192 - CFG[3]["WB"]
    pos = cs_prep(a, S1, S3)
    lds_spin(a, *UG, pt, nap=2)
    mstamp(a)
    if not QL: load_q(a)
    cs_load(a, 1, S1)
    if not NOCS3: cs_load(a, 3, S3)
    a.e(f"s_waitcnt vmcnt({0 if NOCS3 else 14})")
    if CSPRIO: a.e(f"s_setprio {CSPRIO}")
    cs_sum(a, 1, pos)
    a.e("s_waitcnt vmcnt(1)")
    a.e(f"v_mov_b32 v{pt}, {LW+24}"); a.e(f"v_mov_b32 v{pt+1}, 1")
    a.e("s_mov_b64 exec, 1"); a.e(f"ds_add_u32 v{pt}, v{pt+1}"); a.e("s_mov_b64 exec, -1")
    mstamp(a)
    if not NOCS3: cs_sum(a, 3, pos)
    front_arrive(a, False)
    if TAB: tab_make(a, 1)
    a.e(f"v_mov_b32 v{pt}, {LW+24}"); a.e(f"v_mov_b32 v{pt+1}, 1")
    a.e("s_mov_b64 exec, 1"); a.e(f"ds_add_u32 v{pt}, v{pt+1}"); a.e("s_mov_b64 exec, -1")
    mstamp(a)
    a.e("s_setprio 0")
    assert CFG[1]["WB"] + 9 * 8192 == KVS
    for ch in FO2:
        if ch == "d": w1_dma(a, range(DS_, 16))
        else: call(a, {"1": w1_regs, "p": park}[ch])
    mstamp(a)
    call(a, w1_put)

def front_conv(a):
    v = VA(6); lane = 1; l16 = 2
    t = v(); pt = v(4, 2)
    chan_setup(a, 30)
    a.e("s_lshl_b32 s36, s39, 12"); a.e(f"s_add_u32 s36, s36, {UT}")
    a.e("s_add_u32 s16, s4, s36"); a.e("s_addc_u32 s17, s5, 0"); a.e("s_mov_b32 s18, 4096"); a.e("s_mov_b32 s19, 0x20000")
    uw = v(); u = v(16, 4)
    a.e(f"v_lshrrev_b32 v{t}, 2, v{lane}"); a.e(f"v_mul_u32_u24 v{uw}, {US}, v{t}"); a.e(f"v_and_b32 v{t}, 3, v{lane}")
    a.e(f"v_lshl_add_u32 v{uw}, v{t}, 4, v{uw}"); a.e(f"v_add_u32 v{uw}, s40, v{uw}")
    aa = v(); ba = v(); ua = v(); J = v(); G = v()
    a.e(f"v_and_b32 v{J}, 15, v{lane}"); a.e(f"v_lshrrev_b32 v{G}, 4, v{lane}")
    a.e(f"v_and_b32 v{t}, 3, v{J}"); a.e(f"v_mul_u32_u24 v{aa}, {HSTR}, v{t}")
    a.e(f"v_lshl_add_u32 v{aa}, v{G}, 4, v{aa}"); a.e(f"v_lshrrev_b32 v{t}, 2, v{J}"); a.e(f"v_lshl_add_u32 v{aa}, v{t}, 3, v{aa}")
    a.e(f"v_add_u32 v{aa}, s40, v{aa}")
    a.e(f"v_sub_u32 v{t}, 15, v{J}"); a.e(f"v_mul_u32_u24 v{ua}, {US}, v{t}"); a.e(f"v_add_u32 v{ua}, s40, v{ua}")
    a.e(f"v_lshl_add_u32 v{ba}, v{G}, 4, v{ua}")
    acc = v(32, 4)
    fa = v(64, 4); fb = v(32, 4)
    def rdA(p, o):
        return [f"ds_read_b64 {vr(fa+32*p+8*s_+4*mt+2*h,2)}, v{aa} offset:{64*(o+16*s_) + 32*mt + 8*h}" for s_ in range(4) for mt in range(2) for h in range(2)]
    def rdB(p, o):
        return [f"ds_read_b128 {vr(fb+16*p+4*k,4)}, v{ba} offset:{UOFF + (48 - 16*k + o)*US}" for k in range(4)]
    for x in rdA(0, 0): a.e(x)
    dm_ = fb + 16; Dv = pt + 2
    a.e("s_bitcmp1_b32 s39, 0"); a.e("s_cselect_b32 s36, 0, 16"); a.e("s_lshl_b32 s41, s98, s36"); a.e("s_and_b32 s41, s41, 0xffff0000"); a.e("s_lshr_b32 s36, s41, 16")
    a.e(f"v_lshl_add_u32 v{t}, v{G}, 3, v{J}"); a.e(f"v_sub_u32 v{t}, 31, v{t}")
    a.e(f"v_mov_b32 v{Dv}, s36"); a.e(f"v_mov_b32 v{Dv+1}, s41"); a.e(f"v_and_b32 v{pt}, 1, v{t}"); a.e(f"v_cmp_eq_u32 vcc, 1, v{pt}")
    a.e(f"v_cndmask_b32 v{Dv}, v{Dv}, v{Dv+1}, vcc"); a.e(f"v_ashrrev_i32 v{t}, 1, v{t}")
    for mt in range(2):
        for d_ in range(4): a.e(f"v_cmp_eq_u32 vcc, {8*mt+d_}, v{t}"); a.e(f"v_cndmask_b32 v{dm_+4*mt+d_}, 0, v{Dv}, vcc")
    a.srd(12, 4, 4 * MB, off=Y)
    ta = v(); go = v()
    a.e(f"v_bfe_u32 v{t}, v{lane}, 2, 2"); a.e(f"v_mul_u32_u24 v{ta}, {CHB+64}, v{t}")
    a.e(f"v_lshrrev_b32 v{t}, 1, v{G}"); a.e(f"v_mul_u32_u24 v{t}, 72, v{t}"); a.e(f"v_add_u32 v{ta}, v{ta}, v{t}")
    a.e(f"v_and_b32 v{t}, 1, v{G}"); a.e(f"v_lshl_add_u32 v{ta}, v{t}, 5, v{ta}")
    a.e(f"v_and_b32 v{t}, 3, v{lane}"); a.e(f"v_lshl_add_u32 v{ta}, v{t}, 3, v{ta}")
    a.e(f"s_mul_i32 s36, s30, {16*72}"); a.e(f"v_add_u32 v{ta}, s36, v{ta}")
    a.e(f"v_lshlrev_b32 v{go}, 3, v{lane}")
    a.e("s_lshl_b32 s44, s38, 14"); a.e("s_lshl_b32 s37, s30, 12"); a.e("s_add_u32 s44, s44, s37")
    ya = v()
    a.e(f"s_mul_i32 s36, s30, {CHB+64}")
    a.e(f"v_mul_u32_u24 v{ya}, 72, v{J}"); a.e(f"v_lshl_add_u32 v{ya}, v{G}, 3, v{ya}"); a.e(f"v_add_u32 v{ya}, s36, v{ya}")
    a.e("s_cmp_lg_u32 s30, 0"); a.e("s_cbranch_scc1 CV_w")
    a.e("s_and_b32 s36, s2, 7"); a.e("s_lshl_b32 s36, s36, 12"); a.e(f"s_add_u32 s36, s36, {F_KVT}")
    a.e(f"v_lshlrev_b32 v{pt+1}, 7, v{lane}"); a.e(f"v_add_u32 v{pt+1}, s36, v{pt+1}")
    poll_core(a, pt, [pt + 1], 0xffffffff)
    lds_set(a, LW + 16, 1, pt)
    a.e("CV_w:")
    lds_spin(a, LW + 16, 1, pt)
    mstamp(a)
    for it in range(4): a.e(f"buffer_load_dwordx4 {vr(u+4*it,4)}, v{l16}, s[16:19], 0 offen offset:{1024*it} {SC}")
    QL = int(os.environ.get("QL", "0"))
    if not QL: load_q(a)
    for it in range(4):
        a.e(f"s_waitcnt vmcnt({(3 if QL else 7)-it})")
        a.e(f"ds_write_b128 v{uw}, {vr(u+4*it,4)} offset:{UOFF + 16*US*it}")
    a.e(f"v_mov_b32 v{pt}, {LW+20}"); a.e(f"v_mov_b32 v{pt+1}, 1")
    a.e("s_mov_b64 exec, 1"); a.e(f"ds_add_u32 v{pt}, v{pt+1}"); a.e("s_mov_b64 exec, -1")
    a.e("s_waitcnt lgkmcnt(0)")
    mstamp(a)
    for x in rdB(0, 0): a.e(x)
    for c_ in range(4):
        a.e(f"s_waitcnt lgkmcnt({3-c_})")
        for mt in range(2): a.e(f"v_mfma_f32_16x16x32_bf16 {vr(acc+8*c_+4*mt,4)}, {vr(dm_+4*mt,4)}, {vr(fb+4*c_,4)}, 0")
    def step(p, nxt, tail, piped=False):
        a.e(f"s_waitcnt lgkmcnt({10 if piped else 0})")
        mf = [(c_, s_, mt) for s_ in range(4) for mt in range(2) for c_ in range(s_, 4)]
        for i, (c_, s_, mt) in enumerate(mf):
            A = acc + 8 * c_ + 4 * mt
            a.e(f"v_mfma_f32_16x16x32_bf16 {vr(A,4)}, {vr(fa+32*p+8*s_+4*mt,4)}, {vr(fb+16*p+4*(c_-s_),4)}, {vr(A,4)}")
            if nxt: a.e(nxt.pop(0))
            if piped and i == 9: a.e("s_waitcnt lgkmcnt(10)")
            for x in tail.pop(i, []) if tail else []: a.e(x)
        assert not nxt and not tail
    a.e("s_mov_b32 s43, 0")
    NU = int(os.environ.get("NU", "3")); HP = int(os.environ.get("HP", "0"))
    if NU:
        a.e("CV_r:")
        for p in range(2):
            rd = rdB(1 - p, p + 1) + rdA(1 - p, p + 1)
            step(p, rd[:HP], [])
            for x in rd[HP:]: a.e(x)
        for x in [f"v_add_u32 v{aa}, 128, v{aa}", f"v_add_u32 v{ba}, {2*US}, v{ba}", "s_add_u32 s43, s43, 1", f"s_cmp_lt_u32 s43, {NU}"]: a.e(x)
        a.e("s_cbranch_scc1 CV_r")
    if QL: load_q(a)
    a.e("CV_l:")
    step(0, rdB(1, 1) + rdA(1, 1), [], True)
    step(1, rdB(0, 2) + rdA(0, 2), {19: [f"v_add_u32 v{aa}, 128, v{aa}"], 5: [f"v_add_u32 v{ba}, {2*US}, v{ba}"], 6: ["s_add_u32 s43, s43, 1"], 7: ["s_cmp_lt_u32 s43, 8"]}, True)
    a.e("s_cbranch_scc1 CV_l")
    mstamp(a)
    a.e("s_waitcnt lgkmcnt(0)")
    for c_ in range(4):
        for mt in range(2):
            A = acc + 8 * c_ + 4 * mt; O = u + 2 * (c_ * 2 + mt)
            a.e(f"v_cvt_pk_bf16_f32 v{O}, v{A}, v{A+1}"); a.e(f"v_cvt_pk_bf16_f32 v{O+1}, v{A+2}, v{A+3}")
            a.e(f"ds_write_b64 v{ya}, {vr(O,2)} offset:{c_*16*72 + mt*32}")
    lbar(a, 1, pt)
    for i in range(8): a.e(f"ds_read_b64_tr_b16 {vr(fa+32+2*i,2)}, v{ta} offset:{144*i}")
    for i in range(8):
        a.e(f"s_waitcnt lgkmcnt({7-i})")
        a.e(f"buffer_store_dwordx2 {vr(fa+32+2*i,2)}, v{go}, s[12:15], s44 offen offset:{512*i} {SC}")
    assert v.hi <= 176

PK = 48; W3S = 208
RFO, RYO, RRO, RI, RXA, RXB, RYY, RT = 196, 197, 198, 199, 180, 188, 230, 236
def r_addr(a):
    t, t2, I, fo, ro, yo = RT, RT + 1, RI, RFO, RRO, RYO
    a.e(f"v_and_b32 v{I}, 7, v0")
    a.e(f"v_lshrrev_b32 v{t}, 6, v0"); a.e(f"v_lshlrev_b32 v{t}, 4, v{t}"); a.e(f"v_bfe_u32 v{t2}, v0, 3, 3"); a.e(f"v_add_u32 v{t}, v{t}, v{t2}")
    a.e("s_lshr_b32 s78, s29, 1"); a.e("s_lshl_b32 s78, s78, 16"); a.e("s_and_b32 s79, s29, 1"); a.e("s_lshl_b32 s79, s79, 7"); a.e("s_add_u32 s78, s78, s79")
    a.e("s_lshr_b32 s79, s30, 1"); a.e("s_lshl_b32 s79, s79, 13"); a.e("s_add_u32 s78, s78, s79")
    a.e(f"v_lshlrev_b32 v{fo}, 8, v{t}"); a.e(f"v_lshl_add_u32 v{fo}, v{I}, 4, v{fo}"); a.e(f"v_add_u32 v{fo}, s78, v{fo}")
    a.e("s_lshl_b32 s78, s28, 7"); a.e("s_lshl_b32 s79, s29, 3"); a.e("s_add_u32 s78, s78, s79")
    a.e(f"v_add_u32 v{yo}, s78, v{I}"); a.e(f"v_lshlrev_b32 v{ro}, 11, v{yo}")
    a.e(f"v_lshrrev_b32 v{t2}, 2, v{t}"); a.e(f"v_lshlrev_b32 v{t2}, 3, v{t2}"); a.e(f"v_and_b32 v{t}, 3, v{t}"); a.e(f"v_add_u32 v{t}, v{t}, v{t2}")
    a.e(f"v_lshl_add_u32 v{ro}, v{t}, 3, v{ro}")
    a.e(f"v_lshlrev_b32 v{yo}, 3, v{yo}"); a.e(f"v_lshl_add_u32 v{yo}, v{t}, 14, v{yo}")
def load_y(a, skip_last=False):
    a.srd(80, 4, 4 * MB, off=Y)
    if skip_last: a.e("s_cmp_eq_u32 s60, 0"); a.e("s_cselect_b32 s82, s82, 0")
    for j in range(2):
        for hh in range(2):
            a.e(f"s_mov_b32 s78, {(16*j + 4*hh)*16384}")
            a.e(f"buffer_load_dwordx2 {vr(RYY+4*j+2*hh,2)}, v{RYO}, s[80:83], s78 offen {SC}")
def r_pre(a, l0=False):
    r_addr(a)
    lsrd(a, 84, oX3, XSZ); lsrd(a, 88, oX1P, XSZ)
    if l0: a.e("s_cmp_eq_u32 s60, 0"); a.e("s_cselect_b32 s86, s86, 0"); a.e("s_cselect_b32 s90, s90, 0")
    for j in range(2):
        a.e(f"buffer_load_dwordx4 {vr(RXA+4*j,4)}, v{RFO}, s[84:87], 0 offen offset:{2048*j} {SC}")
        a.e(f"buffer_load_dwordx4 {vr(RXB+4*j,4)}, v{RFO}, s[88:91], 0 offen offset:{2048*j} {SC}")
    load_y(a, l0)
def r_pre0(a): a.e("s_waitcnt lgkmcnt(0)"); r_pre(a, True)

def r_stage(a, final):
    v = VA(6)
    t = v(); t2 = v(); I = RI; fo = RFO; ro = RRO; pt = v(4, 2)
    xa = RXA; xb = RXB; yy = RYY; x = 206; yf = 222; w = v(16, 4); tmp = v()
    pre = final == "pre"
    S = v(2, 2); pp = v(2, 2); qq = v(2, 2); st = w; mean = v(2, 2); rs = mean + 1; var = v(); sw = v(); sr = v()
    def part(src, n):
        a.e(f"v_pk_add_f32 {vr(pp,2)}, {vr(src,2)}, {vr(src+2,2)}"); a.e(f"v_pk_mul_f32 {vr(qq,2)}, {vr(src,2)}, {vr(src,2)}")
        for i in range(1, 8):
            if i > 1: a.e(f"v_pk_add_f32 {vr(pp,2)}, {vr(pp,2)}, {vr(src+2*i,2)}")
            a.e(f"v_pk_fma_f32 {vr(qq,2)}, {vr(src+2*i,2)}, {vr(src+2*i,2)}, {vr(qq,2)}")
        a.e(f"v_add_f32 v{S}, v{pp}, v{pp+1}"); a.e(f"v_add_f32 v{S+1}, v{qq}, v{qq+1}")
        for k in range(2): a.e(f"v_add_f32_dpp v{S+k}, v{S+k}, v{S+k} row_ror:8 row_mask:0xf bank_mask:0xf")
        for op in ("v_permlane16_swap_b32", "v_permlane32_swap_b32"):
            for k in range(2): a.e(f"v_mov_b32 v{pp+k}, v{S+k}")
            for k in range(2): a.e(f"{op} v{S+k}, v{pp+k}")
            a.e(f"v_pk_add_f32 {vr(S,2)}, {vr(S,2)}, {vr(pp,2)}")
        a.e(f"ds_write_b64 v{sw}, {vr(S,2)} offset:{n*512}")
    def comb(n):
        for k in range(4): a.e(f"ds_read_b128 {vr(st+4*k,4)}, v{sr} offset:{n*512+16*k}")
        a.e("s_waitcnt lgkmcnt(0)")
        for k in range(4): a.e(f"v_pk_add_f32 {vr(st+4*k,2)}, {vr(st+4*k,2)}, {vr(st+4*k+2,2)}")
        a.e(f"v_pk_add_f32 {vr(st,2)}, {vr(st,2)}, {vr(st+4,2)}"); a.e(f"v_pk_add_f32 {vr(st+8,2)}, {vr(st+8,2)}, {vr(st+12,2)}")
        a.e(f"v_pk_add_f32 {vr(st,2)}, {vr(st,2)}, {vr(st+8,2)}")
        a.e(f"v_mul_f32 v{mean}, {f32(1/1024)}, v{st}"); a.e(f"v_mul_f32 v{var}, {f32(1/1024)}, v{st+1}")
        a.e(f"v_fma_f32 v{var}, -v{mean}, v{mean}, v{var}"); a.e(f"v_max_f32 v{var}, 0, v{var}")
    SUBM = f"{vr(mean,2)} op_sel_hi:[1,0] neg_lo:[0,1] neg_hi:[0,1]"; MULR = f"{vr(mean,2)} op_sel:[0,1] op_sel_hi:[1,1]"
    if pre: a.e("s_waitcnt lgkmcnt(0)")
    if final is not True:
        a.e(f"v_lshlrev_b32 v{sr}, 6, v{I}"); a.e(f"v_add_u32 v{sr}, {AUX+2048}, v{sr}")
        a.e(f"s_lshl_b32 s35, s30, 3"); a.e(f"v_add_u32 v{sw}, s35, v{sr}")
    if pre:
        a.e("s_waitcnt vmcnt(0)")
        for i in range(8): unpack(a, x + 2 * i, x + 2 * i + 1, xa + i)
        part(x, 0)
        a.e("s_waitcnt lgkmcnt(0)"); a.e("s_barrier")
        return
    if not final:
        a.e(f"s_cmp_eq_u32 s60, 0"); a.e(f"s_cbranch_scc1 R_l0")
    else:
        a.e(f"s_load_dwordx2 s[6:7], s[0:1], {D_OUT}")
    lsrd(a, 8, oP0, XSZ, prev=True); lsrd(a, 12, oP1, XSZ, prev=True)
    a.e("s_waitcnt vmcnt(0)")
    for i in range(8):
        if not final: unpack(a, yf + 2 * i, yf + 2 * i + 1, yy + i)
        unpack(a, x + 2 * i, x + 2 * i + 1, xa + i); unpack(a, w + 2 * i, w + 2 * i + 1, xb + i)
        a.e(f"v_pk_add_f32 {vr(x+2*i,2)}, {vr(x+2*i,2)}, {vr(w+2*i,2)}")
    poll(a, ST_G4, pt, prev=True)
    mstamp(a)
    for j in range(2):
        a.e(f"buffer_load_dwordx4 {vr(xa+4*j,4)}, v{fo}, s[8:11], 0 offen offset:{2048*j} {SC}")
        a.e(f"buffer_load_dwordx4 {vr(xb+4*j,4)}, v{fo}, s[12:15], 0 offen offset:{2048*j} {SC}")
    for i in range(8):
        if i % 4 == 0: a.e(f"s_waitcnt vmcnt({2 - i // 2})")
        u = w + 4 * (i & 3)
        unpack(a, u, u + 1, xa + i); unpack(a, u + 2, u + 3, xb + i)
        a.e(f"v_pk_add_f32 {vr(u,2)}, {vr(u,2)}, {vr(u+2,2)}")
        a.e(f"v_pk_add_f32 {vr(x+2*i,2)}, {vr(x+2*i,2)}, {vr(u,2)}")
        if final: a.e(f"v_cvt_pk_bf16_f32 v{xa+i}, v{x+2*i}, v{x+2*i+1}")
        else: round2(a, x + 2 * i, x + 2 * i + 1, tmp)
    if final:
        a.e("s_waitcnt lgkmcnt(0)")
        a.srd(20, 6, 4 * MB)
        OS = os.environ.get("OS", "sc1")
        if os.environ.get("OWIDE", "1") == "1":
            a.e(f"v_bfe_u32 v{t}, v1, 3, 1"); a.e(f"v_cmp_eq_u32 vcc, 1, v{t}")
            for j in range(2):
                lo, hi = xa + 4 * j, xa + 4 * j + 2
                for e in range(2):
                    a.e(f"v_cndmask_b32 v{x+e}, v{hi+e}, v{lo+e}, vcc")
                for e in range(2):
                    a.e(f"v_mov_b32_dpp v{x+2+e}, v{x+e} row_ror:8 row_mask:0xf bank_mask:0xf")
                for e in range(2):
                    a.e(f"v_cndmask_b32 v{x+4+e}, v{lo+e}, v{x+2+e}, vcc"); a.e(f"v_cndmask_b32 v{hi+e}, v{x+2+e}, v{hi+e}, vcc")
                for e in range(2): a.e(f"v_mov_b32 v{lo+e}, v{x+4+e}")
            a.e(f"v_bfe_u32 v{t2}, v1, 4, 1"); a.e(f"v_lshlrev_b32 v{t}, 5, v{t}"); a.e(f"v_lshl_add_u32 v{t}, v{t2}, 4, v{t}")
            a.e(f"v_and_b32 v{t2}, 0xffffffc0, v{ro}"); a.e(f"v_add_u32 v{t}, v{t}, v{t2}")
            for j in range(2): a.e(f"buffer_store_dwordx4 {vr(xa+4*j,4)}, v{t}, s[20:23], 0 offen offset:{128*j} {OS}")
        else:
            for j in range(4): a.e(f"buffer_store_dwordx2 {vr(xa+2*j,2)}, v{ro}, s[20:23], 0 offen offset:{128*(j>>1) + 32*(j&1)} {OS}")
        return v.hi
    part(x, 0)
    a.e("s_waitcnt lgkmcnt(0)"); a.e("s_barrier")
    comb(0)
    ln_finish(a, mean, var, rs)
    lsrd(a, 20, oX3, XSZ)
    for i in range(8):
        D = w + 2 * i
        a.e(f"v_pk_add_f32 {vr(D,2)}, {vr(x+2*i,2)}, {SUBM}"); a.e(f"v_pk_mul_f32 {vr(D,2)}, {vr(D,2)}, {MULR}")
        a.e(f"v_pk_fma_f32 {vr(x+2*i,2)}, {vr(D,2)}, {vr(yf+2*i,2)}, {vr(x+2*i,2)}")
        a.e(f"v_cvt_pk_bf16_f32 v{xa+i}, v{x+2*i}, v{x+2*i+1}")
        if i % 4 == 3: a.e(f"buffer_store_dwordx4 {vr(xa+i-3,4)}, v{fo}, s[20:23], 0 offen offset:{2048*(i//4)} {SC}")
    a.e("s_branch R_s2")
    a.e("R_l0:")
    for i in range(8): unpack(a, x + 2 * i, x + 2 * i + 1, xa + i)
    part(x, 0)
    a.e("s_waitcnt lgkmcnt(0)")
    st_ = st; st = yf
    a.e(f"s_cmp_lg_u32 s30, {os.environ.get('FPW', '4')}"); a.e("s_cbranch_scc1 R_fw")
    lds_spin(a, LW + 4, 16, st, nap=int(os.environ.get("NAP4", "4")))
    a.e("s_lshl_b32 s36, s28, 10"); a.e(f"s_add_u32 s36, s36, {F_FRONT}")
    a.e(f"v_lshlrev_b32 v{st+4}, 7, v1"); a.e(f"v_add_u32 v{st+4}, s36, v{st+4}")
    a.e("s_mov_b32 s53, 0"); a.e("s_mov_b64 exec, 0xff")
    a.e("R_fp:")
    a.e(f"buffer_load_dword v{st}, v{st+4}, s[56:59], 0 offen {SC}"); a.e("s_waitcnt vmcnt(0)")
    a.e(f"v_subrev_u32 v{st}, s52, v{st}"); a.e(f"v_and_b32 v{st+1}, 0xffffc0ff, v{st}"); a.e(f"v_cmp_eq_u32 vcc, 32, v{st+1}")
    a.e("s_cmp_eq_u64 vcc, exec"); a.e("s_cbranch_scc1 R_fq")
    a.e(f"s_sleep {FSLEEP}")
    a.e("s_add_u32 s53, s53, 1"); a.e("s_cmp_lt_u32 s53, s61"); a.e("s_cbranch_scc1 R_fp")
    a.e("s_mov_b32 s61, 0")
    a.e("R_fq:")
    a.e(f"v_lshrrev_b32 v{st}, 8, v{st}"); a.e(f"v_mov_b32 v{st+1}, {LW+28}"); a.e(f"ds_add_u32 v{st+1}, v{st}")
    a.e("s_mov_b64 exec, -1"); a.e("s_waitcnt lgkmcnt(0)")
    a.e("R_fw:")
    a.e("s_barrier")
    mstamp(a)
    load_y(a)
    a.e(f"v_mov_b32 v{st}, {LW+28}"); a.e(f"ds_read_b32 v{st+1}, v{st}"); a.e("s_waitcnt lgkmcnt(0)"); a.e(f"v_readfirstlane_b32 s94, v{st+1}")
    if STAMP: a.e("s_mov_b32 s95, s94")
    a.e(f"s_cmp_gt_u32 s94, {NVOTE // 2}"); a.e("s_cselect_b32 s94, 1, 0")
    group_off(a, 55, 28)
    a.e("s_add_u32 s62, s4, s55"); a.e("s_addc_u32 s63, s5, 0")
    a.e("s_sub_u32 s36, s28, 1"); a.e("s_max_i32 s36, s36, 0"); group_off(a, 92, 36); a.e("s_sub_u32 s92, s92, s55")
    a.e("s_add_u32 s36, s28, 1"); a.e("s_min_u32 s36, s36, 15"); group_off(a, 93, 36); a.e("s_sub_u32 s93, s93, s55")
    a.e(f"s_add_u32 s55, s55, {oSM}")
    lsrd(a, 20, oX3, XSZ)
    st = st_; comb(0); ln_finish(a, mean, var, rs); st = yf
    for i in range(8):
        D = w + 2 * i
        a.e(f"v_pk_add_f32 {vr(D,2)}, {vr(x+2*i,2)}, {SUBM}"); a.e(f"v_pk_mul_f32 {vr(D,2)}, {vr(D,2)}, {MULR}")
    a.e("s_waitcnt vmcnt(0)")
    for i in range(8):
        D = w + 2 * i
        unpack(a, st, st + 1, yy + i)
        a.e(f"v_pk_fma_f32 {vr(x+2*i,2)}, {vr(D,2)}, {vr(st,2)}, {vr(x+2*i,2)}"); a.e(f"v_cvt_pk_bf16_f32 v{xa+i}, v{x+2*i}, v{x+2*i+1}")
        if i % 4 == 3: a.e(f"buffer_store_dwordx4 {vr(xa+i-3,4)}, v{fo}, s[20:23], 0 offen offset:{2048*(i//4)} {SC}")
    a.e("R_s2:")
    st = st_
    for i in range(8): unpack(a, x + 2 * i, x + 2 * i + 1, xa + i)
    part(x, 1)
    publish(a, ST_R, 8, pt)
    a.e("s_barrier")
    a.e("s_cmp_lg_u32 s30, 0"); a.e("s_cbranch_scc1 R_nl")
    comb(1)
    outv = yf + 2; s3 = v(); m4 = v(); v4_ = v(); r4 = v()
    assert v.hi <= PK
    a.e(f"v_mov_b32 v{m4}, v{mean}"); a.e(f"v_mov_b32 v{v4_}, v{var}")
    ln_finish(a, mean, var, rs, s3)
    a.e(f"v_sub_f32 v{m4}, v{m4}, v{mean}"); a.e(f"v_mul_f32 v{m4}, v{m4}, v{rs}")
    a.e(f"v_mul_f32 v{v4_}, v{v4_}, v{rs}"); a.e(f"v_mul_f32 v{v4_}, v{v4_}, v{rs}")
    ln_finish(a, m4, v4_, r4)
    a.e(f"v_mov_b32 v{outv}, v{mean}"); a.e(f"v_mov_b32 v{outv+1}, v{rs}")
    a.e(f"v_fma_f32 v{outv+2}, v{m4}, v{s3}, v{mean}"); a.e(f"v_mul_f32 v{outv+3}, v{rs}, v{r4}")
    lsrd(a, 24, oLNS, 2048)
    a.e("s_lshl_b32 s36, s29, 3"); a.e(f"v_add_u32 v{t}, s36, v{I}"); a.e(f"v_lshlrev_b32 v{t}, 4, v{t}")
    a.e("s_mov_b64 exec, 0xff")
    a.e(f"buffer_store_dwordx4 {vr(outv,4)}, v{t}, s[24:27], 0 offen {SC}")
    a.e("s_mov_b64 exec, -1")
    publish(a, ST_R2, 1, pt)
    a.e("R_nl:")
    return v.hi

TAB = int(os.environ.get("TAB", "1")); TV = 248
def lead(seq, r, L, P=4):
    if L == 0: return list(seq)
    return [x for _, x in sorted(((i - L - 0.5 if i % P == r else i), x) for i, x in enumerate(seq))]
def order3(j, gi):
    mode, L = eval(os.environ.get("O3", "('r',0)"))
    if mode == "r": return [(gi + t) & 15 for t in range(16)]
    if mode == "n": return [gi] + [x for x in lead(range(16), (j + gi) & 3, L) if x != gi]
    if mode == "s": return [gi] + lead([x for x in range(16) if x != gi], (j + gi) & 3, L)
    if mode == "h": return [gi] + [x for x in lead([(t + (gi & 8)) & 15 for t in range(16)], (j + gi) & 3, L) if x != gi]
def order4(j, n):
    mode, L = eval(os.environ.get("O4", "('r',0)"))
    own = [(7 * n + i, 7 * n + 4 + i) for i in range(3)]
    ps = [(n + t) & 7 for t in range(8)] if mode == "r" else list(range(8))
    ab = [(7 * p + i, 7 * p + 4 + i) for i in range(2) for p in ps if p != n]
    c = [7 * p + o for p in ps for o in (2, 6, 3) if p != n or o == 3]
    rest = ab + [(c[2 * i], c[2 * i + 1]) for i in range(11)]
    if mode != "r": rest = lead(rest, (j + n + int(os.environ.get("O4R", "0"))) & 3, L)
    return own + rest
L4 = eval(os.environ.get("O4", "('r',0)"))[1] if TAB else 0
def tab_data(a):
    a.lines.append(".p2align 6"); a.lines.append("K_tab:")
    for gi in range(16):
        for j in range(4):
            o3 = order3(j, gi) + [0] * 16; o4 = order4(j, gi & 7) + [(0, 0)] * 4
            assert sorted(o3[:16]) == list(range(16)) and sorted(sum(o4[:28], ())) == list(range(56))
            a.lines.append(".short " + ",".join(str(o3[t] | o4[t][0] << 4 | o4[t][1] << 10) for t in range(32)))
def tab_load(a):
    a.e("s_getpc_b64 s[34:35]"); a.e("K_tpc:")
    a.e("s_lshl_b32 s36, s29, 2"); a.e("s_and_b32 s37, s28, 3"); a.e("s_add_u32 s36, s36, s37"); a.e("s_lshl_b32 s36, s36, 6")
    a.e("s_add_u32 s36, s36, K_tab-K_tpc"); a.e("s_add_u32 s34, s34, s36"); a.e("s_addc_u32 s35, s35, 0")
    a.e(f"v_and_b32 v{TV}, 31, v1"); a.e(f"v_lshlrev_b32 v{TV}, 1, v{TV}"); a.e(f"global_load_ushort v{TV+3}, v{TV}, s[34:35]")
def tab_make(a, w):
    T, x = TV + 3, TV + 4
    if not w:
        a.e(f"v_bfe_u32 v{x}, v{T}, 2, 2"); a.e(f"v_lshlrev_b32 v{TV}, 14, v{x}"); a.e(f"v_and_b32 v{x}, 3, v{T}"); a.e(f"v_lshl_add_u32 v{TV}, v{x}, 11, v{TV}")
        for lw in range(2):
            a.e(f"v_bfe_u32 v{x}, v{T}, {7+6*lw}, 3"); a.e(f"v_lshlrev_b32 v{TV+1+lw}, 14, v{x}"); a.e(f"v_bfe_u32 v{x}, v{T}, {4+6*lw}, 3"); a.e(f"v_lshl_add_u32 v{TV+1+lw}, v{x}, 10, v{TV+1+lw}")
    else:
        a.e(f"v_and_b32 v{x}, 15, v{T}"); a.e(f"v_mul_u32_u24 v{TV}, {64*7168}, v{x}")
        a.e("s_and_b32 s36, s30, 1"); a.e("s_mul_i32 s36, s36, 6"); a.e("s_add_u32 s36, s36, 4"); a.e(f"v_bfe_u32 v{x}, v{T}, s36, 6")
        assert all((q * 37) >> 8 == q // 7 for q in range(56))
        a.e(f"v_mul_u32_u24 v{TV+2}, 37, v{x}"); a.e(f"v_lshrrev_b32 v{TV+2}, 8, v{TV+2}"); a.e(f"v_mul_u32_u24 v{TV+2}, 7, v{TV+2}"); a.e(f"v_sub_u32 v{TV+2}, v{x}, v{TV+2}")
        a.e(f"v_cmp_eq_u32 vcc, 3, v{TV+2}"); a.e(f"v_cndmask_b32 v{TV+2}, 0, 1, vcc"); a.e(f"v_lshl_add_u32 v{TV+1}, v{x}, 16, v{TV+2}")
def rot_init(a, which):
    if which == 3 and TAB: a.e("s_mov_b32 s44, 0")
    elif which == 3 and OWN3: a.e("s_mov_b32 s44, s29")
    elif which != 4: a.e("s_mov_b32 s44, s67")
    else: a.e("s_mov_b32 s44, 0")
def rot_next(a, which):
    a.e("s_add_u32 s44, s44, 1")
    if which != 4: a.e("s_and_b32 s44, s44, 15")
def kb4(a, d, lw):
    a.e("s_lshl_b32 s45, s44, 1"); a.e(f"s_add_u32 s45, s45, {lw}"); a.e("s_sub_u32 s45, s45, 32")
    a.e("s_mul_i32 s46, s45, 86"); a.e("s_lshr_b32 s46, s46, 8")
    a.e("s_mul_i32 s47, s46, 3"); a.e("s_sub_u32 s47, s45, s47"); a.e("s_lshl_b32 s47, s47, 2"); a.e("s_lshr_b32 s47, 0x362, s47"); a.e("s_and_b32 s47, s47, 7")
    a.e("s_cmp_ge_u32 s44, 10"); a.e("s_cselect_b32 s45, 9, 2"); a.e("s_cselect_b32 s51, 1, 0"); a.e("s_sub_u32 s45, s44, s45")
    a.e("s_cmp_lt_u32 s44, 3"); a.e("s_cselect_b32 s45, 0, s45"); a.e("s_cselect_b32 s51, s44, s51")
    a.e(f"s_lshl2_add_u32 s51, {lw}, s51")
    a.e("s_cmp_lt_u32 s44, 17"); a.e("s_cselect_b32 s47, s51, s47"); a.e("s_cselect_b32 s46, s45, s46")
    a.e("s_add_u32 s46, s46, s33"); a.e("s_and_b32 s46, s46, 7"); a.e("s_mul_i32 s46, s46, 7"); a.e(f"s_add_u32 s{d}, s46, s47")
assert all((q * 86) >> 8 == q // 3 for q in range(24))
WVB = {1: 238, 2: 238, 4: 239, 3: 241}
WV = 245
def w_lanes(a):
    t, t2 = WV + 8, WV + 9
    R = WVB[1]
    a.e(f"v_lshrrev_b32 v{t}, 3, v1"); a.e(f"v_lshlrev_b32 v{R}, 11, v{t}")
    a.e(f"v_and_b32 v{t}, 6, v{t}"); a.e(f"v_and_b32 v{t2}, 7, v1"); a.e(f"v_xor_b32 v{t}, v{t}, v{t2}"); a.e(f"v_lshl_add_u32 v{R}, v{t}, 4, v{R}")
    R = WVB[4]
    for p in range(2):
        a.e(f"v_lshrrev_b32 v{t}, 4, v1"); a.e(f"v_lshlrev_b32 v{R+p}, 11, v{t}")
        a.e(f"v_add_u32 v{t}, {4*p}, v{t}"); a.e(f"v_lshlrev_b32 v{t}, 1, v{t}"); a.e(f"v_and_b32 v{t2}, 15, v1"); a.e(f"v_xor_b32 v{t}, v{t}, v{t2}")
        a.e(f"v_lshl_add_u32 v{R+p}, v{t}, 4, v{R+p}")
    R = WVB[3]
    assert all((p * 2341) >> 16 == p // 28 for p in range(448))
    for ii in range(7):
        a.e(f"v_add_u32 v{t2}, {64*ii}, v1"); a.e(f"v_mul_u32_u24 v{t}, 2341, v{t2}"); a.e(f"v_lshrrev_b32 v{t}, 16, v{t}")
        a.e(f"v_mul_u32_u24 v{R+ii}, 28, v{t}"); a.e(f"v_sub_u32 v{t2}, v{t2}, v{R+ii}")
        a.e(f"v_mul_u32_u24 v{R+ii}, 7168, v{t}")
        a.e(f"v_lshrrev_b32 v{t}, 1, v{t}"); a.e(f"v_and_b32 v{t}, 2, v{t}"); a.e(f"v_xor_b32 v{t2}, v{t2}, v{t}")
        a.e(f"v_lshl_add_u32 v{R+ii}, v{t2}, 4, v{R+ii}")
def w_srd(a, which):
    c = CFG[which]
    a.e(f"s_mov_b64 s[12:13], s[{66+2*which}:{67+2*which}]")
    a.e(f"s_mov_b32 s14, {c['KBT'] * 32 * c['LDW']}"); a.e("s_mov_b32 s15, 0x20000")
def w_setup(a, which, pre=True, lo=0):
    c = CFG[which]; STB = c["STB"]; BW = STB // 2
    w_srd(a, which)
    a.e("s_and_b32 s35, s30, 1")
    a.e(f"s_mul_i32 s38, s{29 if which != 4 else 33}, {c['RB']}");
    if which != 4: a.e(f"s_mul_i32 s41, s35, {32*c['LDW']}"); a.e("s_add_u32 s38, s38, s41")
    if which == 4: a.e(f"s_mul_i32 s41, s31, {1792*c['LDW']}"); a.e("s_add_u32 s38, s38, s41")
    a.e(f"s_mul_i32 s41, s35, {BW}"); a.e(f"s_add_u32 s41, s41, {c['WB']}")
    a.e("s_mov_b32 s42, 0"); rot_init(a, which)
    if not pre: return
    NP = c["NPRE"]
    a.e("s_mov_b32 s49, s44"); a.e("s_and_b32 s43, s28, 3"); a.e(f"s_mul_i32 s43, s43, {NP - lo}"); a.e("s_lshr_b32 s43, s43, 2"); a.e(f"s_mov_b32 s50, {lo}")
    if not WROT: a.e("s_mov_b32 s43, 0")
    if lo: a.e(f"s_add_u32 s43, s43, {lo}")
    L = a.lab("wpre"); a.e(f"{L}:")
    a.e(f"s_mul_i32 s42, s43, {STB}"); a.e("s_add_u32 s44, s49, s43")
    if which != 4: a.e("s_and_b32 s44, s44, 15")
    w_issue(a, which, pace=PACES.get(which, PACE))
    a.e("s_add_u32 s43, s43, 1"); a.e(f"s_cmp_eq_u32 s43, {NP}"); a.e(f"s_cselect_b32 s43, {lo}, s43")
    a.e("s_add_u32 s50, s50, 1"); a.e(f"s_cmp_lt_u32 s50, {NP}"); a.e(f"s_cbranch_scc1 {L}")
    mstamp(a)
    a.e(f"s_mov_b32 s42, {(NP % c['NW']) * STB}"); a.e(f"s_add_u32 s44, s49, {NP}")
    if which != 4: a.e("s_and_b32 s44, s44, 15")
def park_load(a, pace):
    w_srd(a, 2)
    a.e("s_and_b32 s35, s30, 3"); a.e("s_lshl_b32 s35, s35, 19"); a.e("s_lshl_b32 s39, s29, 7"); a.e("s_add_u32 s39, s39, s35")
    for q in range(32):
        a.e(f"buffer_load_dwordx4 {vr(PK+4*q,4)}, v{WVB[2]}, s[12:15], s39 offen"); a.e("s_add_u32 s39, s39, 16384")
        if q % 4 == 3: sb(a, SB[1])
        if pace and q % 4 == 3: a.e(f"s_waitcnt vmcnt({pace})")
def park(a): park_load(a, int(os.environ.get("PKP", "8")))
def late_park(a):
    X = a.lab("lp"); a.e("s_cmp_lg_u32 s60, 0"); a.e(f"s_cbranch_scc1 {X}"); call(a, park); a.e(f"{X}:")
def after_g1(a):
    c = CFG[3]
    w_srd(a, 3)
    a.e(f"v_readlane_b32 s36, v{TV+3}, 0"); a.e(f"v_readlane_b32 s37, v{TV+3}, 1")
    a.e("s_and_b32 s35, s30, 3"); a.e(f"s_mul_i32 s38, s35, {16*7168}"); a.e("s_mul_i32 s39, s29, 448"); a.e("s_add_u32 s38, s38, s39")
    for r in (36, 37): a.e(f"s_and_b32 s{r}, s{r}, 15"); a.e(f"s_mul_i32 s{r}, s{r}, {64*7168}"); a.e(f"s_add_u32 s{r}, s{r}, s38")
    a.e("s_mul_i32 s39, s35, 7168"); a.e(f"s_add_u32 m0, s39, {c['WB'] + c['S0'] * c['STB']}")
    for i in range(7):
        if i: a.e("s_add_u32 m0, m0, 1024")
        a.e(f"buffer_load_dwordx4 v{WVB[3]+i}, s[12:15], s36 offen lds")
    for i in range(7): a.e(f"buffer_load_dwordx4 {vr(W3S+4*i,4)}, v{WVB[3]+i}, s[12:15], s37 offen")
    a.e("s_lshr_b32 s36, s67, 2"); a.e("s_sub_u32 s36, s35, s36"); a.e("s_and_b32 s36, s36, 3"); a.e("s_lshl_b32 s36, s36, 15"); a.e(f"v_add_u32 v6, s36, v2")
    a.e("s_waitcnt vmcnt(14)")
    for q in range(32): a.e(f"ds_write_b128 v6, {vr(PK+4*q,4)} offset:{CFG[2]['WB'] + 1024*q}")
    a.e("s_waitcnt vmcnt(0) lgkmcnt(0)")
def after_g2(a):
    c = CFG[3]
    a.e("s_and_b32 s35, s30, 3"); a.e("s_mul_i32 s39, s35, 7168"); a.e(f"s_add_u32 s39, s39, {c['WB'] + (c['S0'] + 1) % c['NW'] * c['STB']}"); a.e("v_add_u32 v6, s39, v2")
    for i in range(7): a.e(f"ds_write_b128 v6, {vr(W3S+4*i,4)} offset:{1024*i}")
    a.e("s_waitcnt lgkmcnt(0)")
SUBX = {}
def call(a, f):
    SUBX[f.__name__] = f; a.e(f"s_call_b64 s[76:77], SUB_{f.__name__}")
def w1_slots(a, js, pace=0):
    for j in js:
        a.e(f"s_mov_b32 s42, {j*8192}"); a.e("s_mov_b32 s44, s67"); a.e(f"s_add_u32 s44, s44, {j}"); a.e("s_and_b32 s44, s44, 15")
        call_issue(a, w_issue, 1)
        if pace: a.e(f"s_waitcnt vmcnt({pace})")
def w1_done(a):
    a.e("s_mov_b32 s42, 0"); a.e("s_mov_b32 s44, s67"); a.e("s_add_u32 s44, s44, 13"); a.e("s_and_b32 s44, s44, 15")
class Rec:
    def __init__(s_): s_.l = []
    def e(s_, x): s_.l.append(x)
    srd = Asm.srd
def w_parts(which, direct=False):
    c = CFG[which]; STB = c["STB"]; n = STB // 2048; LDW = c["LDW"]; b = Rec()
    b.e("s_add_u32 s19, s41, s42")
    arm = ["s_mov_b32 m0, s19", "s_mov_b32 s39, s16"]
    if which == 4 and TAB:
        b.e(f"v_readlane_b32 s16, v{TV+1}, s44")
        b.e("s_bitcmp1_b32 s16, 0"); b.e(f"s_cselect_b32 s17, {8*2048}, {4*2048}".replace(f"{4*2048}", "s45")); b.e(f"s_cselect_b32 s18, {-20*2048}, s45")
        b.e("s_andn2_b32 s16, s16, 1"); b.e("s_add_u32 s16, s16, s38")
        b.l.insert(0, f"s_mov_b32 s45, {4*2048}")
        arm += ["s_mov_b32 s32, s17", "s_mov_b32 s3, s18"]
    elif which == 3 and TAB and not direct:
        b.e(f"v_readlane_b32 s16, v{TV}, s44"); b.e("s_add_u32 s16, s16, s38")
    elif which == 4:
        b.e("s_and_b32 s40, s30, 1"); kb4(b, 16, "s40")
        b.e(f"s_mul_i32 s16, s16, {32*LDW}"); b.e("s_add_u32 s16, s16, s38")
        b.e("s_cmp_eq_u32 s47, 3"); b.e("s_cselect_b32 s17, 8, 4"); b.e("s_cselect_b32 s18, -20, 4")
        b.e("s_lshl_b32 s17, s17, 11"); b.e("s_lshl_b32 s18, s18, 11")
        arm += ["s_mov_b32 s32, s17", "s_mov_b32 s3, s18"]
    else:
        b.e(f"s_mul_i32 s16, s44, {64*LDW}"); b.e("s_add_u32 s16, s16, s38")
    if f"w{which}" in os.environ.get("HOT", ""): b.e("s_mov_b32 s16, s38")
    rot_next(b, which)
    b.e(f"s_add_u32 s42, s42, {STB}"); b.e(f"s_cmp_eq_u32 s42, {c['NW']*STB}"); b.e("s_cselect_b32 s42, 0, s42")
    fire = []
    for i in range(n):
        g = []
        if i:
            g.append("s_add_u32 m0, m0, 1024")
            if which in (1, 2): g.append(f"s_add_u32 s39, s39, {8*LDW}")
            elif which == 4: g.append(f"s_add_u32 s39, s39, s{3 if i == 4 else 32}")
            elif i == 7: g.append(f"s_add_u32 s39, s39, {16*LDW}")
        vo = WVB[which] + (0 if which in (1, 2) else (i & 1) if which == 4 else i % 7)
        fire.append(g + [f"buffer_load_dwordx4 v{vo}, s[12:15], s39 offen lds"])
    if f"w{which}" in os.environ.get("NOLD", ""): fire = [[x for x in g if not x.startswith("buffer_load")] + ["s_nop 0"] for g in fire]
    return b.l, arm, fire
def w_issue(a, which, pace=0, direct=False):
    prep, arm, fire = w_parts(which, direct)
    for x in prep + arm: a.e(x)
    for i, g in enumerate(fire):
        for x in g: a.e(x)
        if pace and (i % 4 == 3 or i == len(fire) - 1): a.e(f"s_waitcnt vmcnt({pace})")

def w_bases(a, which, dst, swn, ntl, t, t2):
    c = CFG[which]; RB = c["RB"]
    a.e(f"v_lshrrev_b32 v{t}, 2, v1")
    a.e(f"v_mul_u32_u24 v{dst}, {RB}, v{t}"); a.e(f"v_and_b32 v{t2}, 3, v1"); a.e(f"v_lshl_add_u32 v{dst}, v{t2}, 3, v{dst}")
    a.e(f"v_add_u32 v{dst}, {c['WB']}, v{dst}")
    if which == 3:
        a.e(f"s_mul_i32 s36, s{swn}, {7*32}"); a.e(f"v_add_u32 v{dst}, s36, v{dst}")
        a.e(f"v_bfe_u32 v{t}, v1, 4, 1"); a.e(f"v_lshlrev_b32 v{t}, 5, v{t}")
        a.e(f"s_cmp_eq_u32 s{swn}, 0"); a.e("s_cselect_b32 s36, 1, -1"); a.e(f"v_mul_lo_u32 v{t}, v{t}, s36")
        a.e(f"v_sub_u32 v{dst+1}, v{dst}, v{t}"); a.e(f"v_add_u32 v{dst}, v{dst}, v{t}")
        return 2, lambda nt, kk, h: (nt & 1, (32 * kk + 16 * h) * RB + 32 * nt)
    if which == 4: a.e(f"v_and_b32 v{t}, 7, v{t}")
    else: a.e(f"v_bfe_u32 v{t}, v{t}, 1, 2")
    for nt in range(ntl - 1, -1, -1):
        a.e(f"s_mul_i32 s36, s{swn}, {ntl}"); a.e(f"s_add_u32 s36, s36, {nt}")
        a.e(f"v_xor_b32 v{t2}, s36, v{t}"); a.e(f"v_lshl_add_u32 v{dst+nt}, v{t2}, 5, v{dst}")
    return ntl, lambda nt, kk, h: (nt, (32 * kk + 16 * h) * RB)

def a_parts(which):
    c = CFG[which]; b = Rec()
    if which <= 2 and NX:
        b.e("s_and_b32 s42, s48, 7"); b.e("s_lshl_b32 s42, s42, 14"); b.e("s_lshr_b64 s[48:49], s[48:49], 4")
    b.e("s_add_u32 s19, s41, s42")
    arm = ["s_mov_b32 m0, s19", "s_mov_b32 s39, s16"]; fire = []
    if which == 2:
        b.e(f"s_mul_i32 s16, s44, {8*PITCH}"); b.e("s_add_u32 s16, s16, s38")
        b.e("s_lshr_b32 s45, s44, 2"); b.e("s_xor_b32 s45, s45, s94"); b.e("s_and_b32 s45, s45, 1"); b.e("s_lshl_b32 s45, s45, 13"); b.e("s_add_u32 s16, s16, s45")
        b.e("s_lshr_b32 s45, s44, 3"); b.e("s_lshl_b32 s45, s45, 4"); b.e("s_add_u32 s45, s45, 16")
        b.e("s_sub_u32 s46, 0, s45"); b.e("s_bitcmp1_b32 s44, 2"); b.e("s_cselect_b32 s45, s45, s46"); b.e("s_add_u32 s16, s16, s45")
        step = PITCH
    elif which == 4:
        for lw in range(2):
            if TAB: b.e(f"v_readlane_b32 s{16+lw}, v{TV+1+lw}, s44")
            else: kb4(b, 16 + lw, lw); spread(b, 16 + lw, 16 + lw)
        for lw in range(2): b.e(f"s_add_u32 s{16+lw}, s{16+lw}, s38")
        arm.append("s_mov_b32 s40, s17")
        for i in range(4):
            for lw in range(2):
                fire.append((["s_add_u32 m0, m0, 1024"] if i or lw else []) + ([f"s_add_u32 s{39+lw}, s{39+lw}, {c['KBT']*2048}"] if i else []) +
                            [f"buffer_load_dwordx4 v2, s[12:15], s{39+lw} offen {SC} lds"])
    elif which == 3 and TAB:
        b.e(f"v_readlane_b32 s16, v{TV}, s44"); b.e("s_add_u32 s16, s16, s38"); step = c['KBT'] * 2048
    else:
        b.e("s_lshr_b32 s45, s44, 2"); b.e("s_lshl_b32 s45, s45, 14"); b.e("s_and_b32 s16, s44, 3"); b.e("s_lshl_b32 s16, s16, 11")
        b.e("s_add_u32 s16, s16, s45"); b.e("s_add_u32 s16, s16, s38"); step = c['KBT'] * 2048
    if f"a{which}" in os.environ.get("HOT", ""):
        b.e("s_mov_b32 s16, s38")
        if which == 4: b.e("s_add_u32 s17, s38, 1024")
    for i in range(4 if which != 4 else 0):
        fire.append((["s_add_u32 m0, m0, 2048", f"s_add_u32 s39, s39, {step}"] if i else []) + [f"buffer_load_dwordx4 v2, s[12:15], s39 offen {SC} lds"])
        fire.append([f"buffer_load_dwordx4 v2, s[12:15], s39 offen offset:1024 {SC} lds"])
    rot_next(b, which)
    if not (which <= 2 and NX):
        b.e(f"s_add_u32 s42, s42, 16384"); b.e(f"s_cmp_eq_u32 s42, {c['NA']*16384}"); b.e("s_cselect_b32 s42, 0, s42")
    if f"a{which}" in os.environ.get("NOLD", ""): fire = [[x for x in g if not x.startswith("buffer_load")] + ["s_nop 0"] for g in fire]
    return b.l, arm, fire
def a_issue(a, which):
    prep, arm, fire = a_parts(which)
    for x in prep + arm + sum(fire, []): a.e(x)
SUBS = {}
def call_issue(a, issue, which):
    nm = f"SUB_{issue.__name__}_{which}"; SUBS[nm] = (issue, which)
    a.e(f"s_call_b64 s[76:77], {nm}")
def emit_subs(a):
    for nm, f in SUBX.items(): a.e(f"SUB_{nm}:"); f(a); a.e("s_setpc_b64 s[76:77]")
    for nm, (issue, which) in SUBS.items():
        a.e(f"{nm}:"); issue(a, which); a.e("s_setpc_b64 s[76:77]")
def ld_steps(a, which, N, per, issue, npre, rate=2, plan={}, lo=0, hi=None, last=None, hold=(), sched=None, armed=False):
    NS = CFG[which]["NS"]
    prep, arm, fire = (w_parts if issue is w_issue else a_parts)(which); h = max(1, per * HSPLIT // 8)
    plan = {b: (x if isinstance(x, list) else [x]) for b, x in plan.items()}
    q = [s_ for s_ in range(npre) for _ in range(per)]
    def after(tag):
        if issue is w_issue and isinstance(tag, int) and tag < npre: tag = npre - 1
        return len(q) - 1 - max(i for i, x in enumerate(q) if x == tag)
    issued = npre; steps = []
    for b in range(NS):
        acts = plan.get(b, []); was = {}
        def do(pos):
            for n_, act in enumerate(acts):
                if act[0] != pos: continue
                if act[1] is not None: was[n_] = after(act[1])
                q.extend([act[4]] * act[3])
        do(True)
        k = 0
        if (b > 0 or (sched is not None and issue is a_issue)) and b not in hold:
            k = max(0, min(rate, min(NS, b - 1 + N) - issued)) if sched is None else sched[b]
        assert k or not any(x[0] == "mid" for x in acts)
        for j in range(k):
            q.extend([issued] * h)
            if j == 0: do("mid")
            q.extend([issued] * (per - h)); issued += 1
        do(False)
        w = after(b); assert w <= 63
        steps.append((k, w, b if acts else None, tuple(sorted(was.items())), issued < NS))
    def em(l):
        for x in l:
            a.e(x)
            if x == "s_barrier" and os.environ.get("JIT"): mstamp(a)
    F1, F2 = sum(fire[:h], []), sum(fire[h:], [])
    lprep = prep
    if len(prep) > 8:
        nm = f"PREP_{issue.__name__}_{which}"; SUBS[nm] = ((lambda a_, w_, l=prep: [a_.e(x) for x in l]), which)
        prep = [f"s_call_b64 s[76:77], {nm}"]
    if lo == 0 and npre < NS and not armed: em(prep + arm)
    i = lo; HI = NS if hi is None else hi
    while i < HI:
        j = i
        while j < HI and steps[j] == steps[i]: j += 1
        k, w, ab, was, more = steps[i]; n = j - i; was = dict(was)
        def run(pos):
            for n_, act in enumerate(plan.get(ab, [])):
                if act[0] != pos: continue
                if n_ in was: a.e(f"s_waitcnt vmcnt({was[n_]})")
                act[2]()
        tail = [f"s_waitcnt vmcnt({w})", "s_barrier"]
        if n > 2 and k == 1:
            em(F1); a.e("s_mov_b32 s43, 1"); L = a.lab("ld"); a.e(f"{L}:")
            em(lprep + F2 + arm + tail + F1)
            a.e("s_add_u32 s43, s43, 1"); a.e(f"s_cmp_lt_u32 s43, {n}"); a.e(f"s_cbranch_scc1 {L}")
            em(prep + F2 + arm + tail)
        else:
            for r in range(n):
                run(True)
                for jj in range(k):
                    nxt = more or jj < k - 1
                    em(F1)
                    if jj == 0: run("mid")
                    em((prep if nxt else []) + F2 + (arm if nxt else []))
                run(False)
                em(tail)
        i = j
    if hi is not None: return
    if which == 4:
        if issue is a_issue: a.e("s_cmp_eq_u32 s60, 1"); a.e("s_cbranch_scc1 K_fin")
        elif hold is HOLD: a.e("s_branch K_fin"); return
        if not RPL: r_pre(a)
    if last: last()
    late = os.environ.get("TLATE", "0") == "1"
    if late: a.e("s_barrier")
    if issue is a_issue and W4POS == f"{which}C":
        X = a.lab("tw4"); a.e("s_cmp_lg_u32 s60, 0"); a.e(f"s_cbranch_scc1 {X}"); touch(a, B_W4, 7 * MB, 20); a.e(f"{X}:")
    if not late: a.e("s_barrier")

RK = int(os.environ.get("RK", "7")); assert RK == 0 or 4 <= RK <= STQ
PA2 = int(os.environ.get("PA2", "1")); PBB = int(os.environ.get("PBB", "2")); PC0 = int(os.environ.get("PC0", "4"))
HOLD = eval(os.environ.get("HOLD", "[2,3,4]"))
def a_loader(a, which):
    c = CFG[which]
    if which <= 2:
        plan = side_jobs(a, 1) if which == 1 else {}
        poll(a, which - 1, 8); mstamp(a)
        for b in sorted(plan):
            for act in (plan[b] if isinstance(plan[b], list) else [plan[b]]):
                if act[1] is not None: a.e("s_waitcnt vmcnt(0)")
                act[2]()
        a.e("s_barrier")
        if which == 1 and "p" not in os.environ.get("FO", "1pd"): late_park(a)
        call(a, after_g1 if which == 1 else after_g2)
        return
    a.e("s_and_b32 s35, s30, 1")
    if which == 2:
        hs_srd(a, 12)
        a.e("s_lshl_b32 s38, s28, 11"); a.e("s_add_u32 s38, s38, 16384"); a.e(f"s_mul_i32 s36, s35, {4*PITCH}"); a.e("s_add_u32 s38, s38, s36")
    else:
        lsrd(a, 12, c["A"], XSZ if which != 4 else H2SZ)
        a.e(f"s_mul_i32 s38, s35, {4*c['KBT']*2048}")
        if which == 4: a.e(f"s_mul_i32 s36, s31, {7*16384}"); a.e("s_add_u32 s38, s38, s36")
    a.e("s_lshl_b32 s41, s35, 13"); a.e("s_mov_b32 s42, 0"); rot_init(a, which)
    assert c["NA"] == 3
    prep, arm, fire = a_parts(which)
    if which == 4:
        flag_addr(a, 9, ST_G3A); flag_addr(a, 10, ST_G3B); flag_addr(a, 12, ST_G3)
        a.e("v_mov_b32 v13, 1"); a.e("s_and_b32 s51, s30, 1"); a.e("s_lshl_b32 s51, s51, 30")
        def signal(r): a.e("s_mov_b64 exec, 1"); a.e(f"buffer_atomic_add v13, v{r}, s[56:59], s51 offen {SC}"); a.e("s_mov_b64 exec, -1")
        a.e("s_lshl_b32 s54, s60, 2"); a.e("s_add_u32 s54, s54, 4"); lds_spin(a, LW + 64, "s54", 14, nap=2)
        signal(9)
        if not PA2: poll_core(a, 8, [9], 1, cnt=8)
        mstamp(a)
        plan = {6 - L4: ("mid", None, lambda: flag_try(a, 11, 10), 1, "f"), 8 - L4: ("mid", "f", lambda: flag_check(a, 11, 10, 8), 0, None),
                13 - L4: ("mid", None, lambda: flag_try(a, 11, 12), 1, "g"), 15 - L4: ("mid", "g", lambda: flag_check(a, 11, 12, 8), 0, None)}
        plan = {k_: [x] for k_, x in plan.items()}
        if PA2:
            plan[1] = [(False, None, lambda: flag_try(a, 8, 9), 1, "a")]
            plan[2] = [(True, "a", lambda: flag_check(a, 8, 9, 8), 0, None)]
        plan.setdefault(PBB + 1, []).insert(0, (True, None, lambda: signal(10), 1, "s"))
        plan.setdefault(PC0 + 2, []).insert(0, (True, None, lambda: signal(12), 1, "s"))
        a.e("s_mov_b32 s44, 3")
        ld_steps(a, which, 3, 8, a_issue, 3, plan=plan); return
    if which == 3:
        mask, cnt = flag_addr(a, 9, ST_G2)
        def wait2():
            if B0E > 1: a.e(f"s_sleep {B0E}")
            poll_core(a, 8, [9], mask, cnt=cnt); mstamp(a); mstamp(a)
            if W3H: a.e("s_add_u32 s54, s60, 1"); lds_set(a, LW + 60, "s54", 10)
        rot_next(a, 3); a.e("s_mov_b32 s42, 16384")
        plan = side_jobs(a, 3)
        if os.environ.get("P30", "0") == "1":
            def wait0(): own_wait(a, ST_G2, False, 14); wait2()
            plan[0] = (True, None, wait0, 0, None)
            ld_steps(a, which, 3, 8, a_issue, 1, plan=plan, sched=[int(os.environ.get("P3N", "1")), 2 - int(os.environ.get("P3N", "1"))] + [1] * 13 + [0]); return
        plan[1] = (True, None, wait2, 0, None)
        if RPL: plan[15] = (False, None, lambda: call(a, r_pre0), 8, "r")
        PZ3 = int(os.environ.get("PZ3", "0"))
        if PZ3:
            a.srd(84, 4, 32 * MB, off=216 * MB)
            a.e("s_cmp_eq_u32 s60, 0"); a.e("s_cselect_b32 s86, s86, 0")
            for i in range(4): a.e(f"v_mov_b32 v{216+i}, -1")
            a.e("s_lshl_b32 s88, s2, 1"); a.e("s_and_b32 s50, s30, 1"); a.e("s_add_u32 s88, s88, s50"); a.e(f"s_mul_i32 s88, s88, {PZ3*12*1024}")
            def pz():
                for i in range(PZ3): a.e(f"buffer_store_dwordx4 v[216:219], v2, s[84:87], s88 offen offset:{i*1024} {SC}")
                a.e(f"s_add_u32 s88, s88, {PZ3*1024}")
            for b in range(2, 14):
                p_ = plan.get(b, []); p_ = p_ if isinstance(p_, list) else [p_]
                plan[b] = p_ + [(False, None, pz, PZ3, "z")]
        ld_steps(a, which, 3, 8, a_issue, 1, plan=plan); return
    assert 0

def side_jobs(a, which):
    c = CFG[which]; plan = {}
    sv = 16; S, Q, mean, rs, tt, ad, fa, fr = 216, 217, 218, 219, 220, 221, 222, 223
    cv = 180 if which == 3 else 24; N = c["LDW"] // 2; co_ = 224; HB = c["TN16"] * 32
    lg = 3 if which == 1 else 5
    def cld(k0=0, k1=4):
        if k0 == 0:
            a.srd(24, 4, 32 * N * 4, off=CSP[which])
            a.e("s_cmp_eq_u32 s60, 0"); a.e("s_cselect_b32 s26, s26, 0")
            if NOCS3 and which == 3: a.e("s_mov_b32 s26, 0")
            a.e("s_and_b32 s36, s30, 1"); a.e(f"s_mul_i32 s36, s36, {HB}"); a.e(f"s_mul_i32 s37, s29, {2*HB}"); a.e("s_add_u32 s37, s36, s37")
            a.e(f"v_lshrrev_b32 v{co_}, {lg}, v1"); a.e(f"v_mul_u32_u24 v{co_}, {N*4}, v{co_}")
            a.e(f"v_and_b32 v{cv-1}, {16*((1 << lg) - 1)}, v2"); a.e(f"v_add_u32 v{co_}, v{co_}, v{cv-1}")
        for k in range(k0, k1):
            a.e(f"buffer_load_dwordx4 {vr(cv+4*(k if k < 9 else k - 8),4)}, v{co_}, s[24:27], s37 offen {SC}"); a.e(f"s_add_u32 s37, s37, {N*4*(64 >> lg)}")
    def piece(lines, l0=False):
        def f():
            X = a.lab("pc")
            if l0: a.e("s_cmp_lg_u32 s60, 0"); a.e(f"s_cbranch_scc1 {X}")
            for x in lines: a.e(x)
            if l0: a.e(f"{X}:")
        return f
    def cadd(k0, k1): return [f"v_add_f32 v{cv+h}, v{cv+h}, v{cv+4*k+h}" for k in range(k0, k1) for h in range(4)]
    def sw(op): return [f"v_mov_b32 v{cv+4+e}, v{cv+e}" for e in range(4)] + [f"{op} v{cv+e}, v{cv+4+e}" for e in range(4)] + cadd(1, 2)
    if which in (1, 3):
        cout = ["s_and_b32 s36, s30, 1", f"s_mul_i32 s36, s36, {HB}", f"s_add_u32 s36, s36, {CSO[which]}", f"v_add_u32 v{cv-1}, s36, v2",
                f"s_bfm_b64 exec, {HB//16}, 0", f"ds_write_b128 v{cv-1}, {vr(cv,4)}", "s_mov_b64 exec, -1", "s_waitcnt lgkmcnt(0)"]
    if which == 1:
        flag_addr(a, fa, ST_R2)
        def ld():
            flag_check(a, fr, fa, 16)
            lsrd(a, 20, oLNS, 2048); a.e("s_and_b32 s35, s30, 1"); a.e("s_lshl_b32 s35, s35, 10")
            a.e(f"buffer_load_dwordx4 {vr(sv,4)}, v2, s[20:23], s35 offen {SC}")
        fin = piece(["s_and_b32 s36, s30, 1", "s_lshl_b32 s36, s36, 10", f"s_add_u32 s36, s36, {LNSL}", f"v_add_u32 v{ad}, s36, v2", f"ds_write_b128 v{ad}, {vr(sv,4)}", "s_waitcnt lgkmcnt(0)"])
        a.e("s_lshl_b32 s53, s29, 7"); a.e(f"s_add_u32 s53, s53, {F_CS}"); a.e(f"v_mov_b32 v{fa+4}, s53")
        def cld1(): flag_check(a, fr + 4, fa + 4, 16); cld()
        work = cadd(1, 4) + [f"v_add_f32_dpp v{cv+e}, v{cv+e}, v{cv+e} row_ror:8 row_mask:0xf bank_mask:0xf" for e in range(4)] + \
               sw("v_permlane16_swap_b32") + sw("v_permlane32_swap_b32")
        plan = {2: (False, None, lambda: flag_try(a, fr + 4, fa + 4), 1, "e"), 5: [(False, "e", cld1, 4, "c"), (False, None, lambda: flag_try(a, fr, fa), 1, "f")],
                8: (False, "f", ld, 1, "d"), 15: [(False, None, piece(cout, 1), 0, None), (False, "d", fin, 0, None)]}
        plan[9] = (False, None, piece(work, 1), 0, None)
    if which == 3:
        flag_addr(a, fa, ST_G2S)
        a.e(f"v_lshlrev_b32 v{ad}, 3, v1")
        def ld(k0):
            def f():
                if k0 == 0:
                    flag_check(a, fr, fa, 16)
                    lsrd(a, 20, oST2, 24576)
                    a.e("s_and_b32 s35, s30, 1"); a.e("s_lshl_b32 s35, s35, 9")
                a.e(f"s_add_u32 s36, s35, {k0*2048}")
                for k in range(k0, k0 + 8):
                    if k % 8 == 4: a.e("s_add_u32 s36, s36, 4096")
                    a.e(f"buffer_load_dwordx2 {vr(sv+2*k,2)}, v{ad}, s[20:23], s36 offen offset:{(k&3)*1024} {SC}")
            return f
        b = Rec()
        for st_ in (8, 4, 2, 1):
            for k in range(2 * st_): b.e(f"v_add_f32 v{sv+k}, v{sv+k}, v{sv+2*st_+k}")
        o_ = sv + 4
        b.e(f"v_mul_f32 v{o_}, {f32(1/1024)}, v{sv}"); b.e(f"v_mul_f32 v{Q}, {f32(1/1024)}, v{sv+1}")
        b.e(f"v_fma_f32 v{Q}, -v{o_}, v{o_}, v{Q}"); b.e(f"v_max_f32 v{Q}, 0, v{Q}")
        ln_finish(b, o_, Q, rs, o_ + 1)
        b.e(f"v_mul_f32 v{o_+2}, {f32(GC1)}, v{rs}"); b.e(f"v_mul_f32 v{o_+3}, v{rs}, v{rs}")
        b.e(f"v_mul_f32 v{o_+3}, v{o_+3}, v{o_+2}"); b.e(f"v_mul_f32 v{o_+3}, {f32(0.044715)}, v{o_+3}")
        b.e("s_lshl_b32 s35, s35, 1"); b.e(f"s_add_u32 s35, s35, {LNSL}"); b.e(f"v_add_u32 v{tt}, s35, v2")
        b.e(f"ds_write_b128 v{tt}, {vr(o_,4)}"); b.e("s_waitcnt lgkmcnt(0)")
        def both(f, g):
            def h(): f(); g()
            return h
        plan = {2: (False, None, cld, 4, "c"), 3: (False, None, lambda: cld(4, 9), 5, "c"),
                5: [(False, "c", piece(cadd(1, 5), 1), 0, None), (False, None, lambda: flag_try(a, fr, fa), 1, "f")],
                6: (False, None, both(piece(cadd(5, 9), 1), lambda: cld(9, 16)), 7, "e"),
                7: (False, "f", ld(0), 8, "d"), 8: (False, None, ld(8), 8, "d"),
                9: (False, "e", piece(cadd(1, 5), 1), 0, None), 10: (False, None, piece(cadd(5, 8), 1), 0, None), 11: (False, None, piece(sw("v_permlane32_swap_b32") + cout, 1), 0, None),
                12: (False, "d", piece(b.l[:16]), 0, None), 13: (False, None, piece(b.l[16:32]), 0, None), 14: (False, None, piece(b.l[32:]), 0, None)}
    return plan

W2E = int(os.environ.get("W2E", "3"))
def w2_early(a):
    if W2E: w_setup(a, 2, pre=False); w1_slots(a, range(W2E), pace=8)
def w_loader(a, which):
    c = CFG[which]
    if which < 3:
        if which == 1: a.e("s_waitcnt vmcnt(0)")
        if which == 1 and "a" in STO: stouch(a, 3, 128 if "8" in STO else 64, 2); mstamp(a)
        if which == 1 and sum(SG): sb_init(a)
        sg(a, SG[2*which-2])
        a.e("s_barrier")
        sg(a, SG[2*which-1])
        if which == 1 and "b" in STO: stouch(a, 3, 128 if "8" in STO else 64, 2); mstamp(a)
        if which == 2 and "4" in STO: stouch(a, 4, 128 if "8" in STO else 64, 2); mstamp(a)
        a.e("s_barrier")
        if which == 1 and "p" not in os.environ.get("FO2", "1pd"): late_park(a)
        call(a, after_g1 if which == 1 else after_g2); mstamp(a)
        return
    args = (a, which, c["NW"], c["STB"] // 2048, w_issue, c["NPRE"], c["WR"])
    if which == 4:
        assert c["NW"] == 6 and c["WB"] == CFG[1]["WB"] + 3 * 8192
        a.e("s_cmp_eq_u32 s60, 1"); a.e("s_cbranch_scc1 WL_t1")
        ld_steps(*args, hi=24)
        def first(): w_setup(a, 1, pre=False); w1_slots(a, (11, 12, 15))
        plan = {24: (False, None, first, 12, "w"), 25: (False, None, lambda: w1_slots(a, (13, 14)), 8, "w"),
                26: (False, None, lambda: w1_slots(a, (3, 4)), 8, "w"), 27: (False, None, lambda: w1_slots(a, (5, 6)), 8, "w")}
        ld_steps(*args, plan=plan, lo=24, last=lambda: w1_slots(a, (7, 8)))
        w1_slots(a, (9, 10)); w1_slots(a, range(3 - W1L, 3), pace=8); mstamp(a)
        a.e("s_branch NEXT")
        a.e("WL_t1:")
        ld_steps(*args, hold=HOLD)
        return
    plan = {}
    if W3H: plan[1] = (True, None, lambda: (a.e("s_add_u32 s54, s60, 1"), lds_spin(a, LW + 60, "s54", 6, nap=1)), 0, None)
    def sg3(n):
        def f():
            X = a.lab("st"); a.e("s_cmp_lg_u32 s60, 0"); a.e(f"s_cbranch_scc1 {X}"); sb(a, n); a.e(f"{X}:")
        return f
    for b_, n_ in eval(os.environ.get("SG3", "{}")).items(): plan[b_] = (False, None, sg3(n_), 0, None)
    if RPL: plan[int(os.environ.get("RPW", "15"))] = (False, None, lambda: call(a, r_pre0), 8, "r")
    ld_steps(*args, plan=plan)
W3H = int(os.environ.get("W3H", "0"))
W1L = int(os.environ.get("W1L", "3"))

B0E = int(os.environ.get("B0E", "6")); RPL = int(os.environ.get("RPL", "1")); RPC = int(os.environ.get("RPC", "1"))
LF1 = os.environ.get("LF1", ""); LF2 = os.environ.get("LF2", "")
RES2 = 160; C2R = 200; SO3 = 238; RES4 = [172, 176, 180, 184, 188, 192, 196, 240]
def g_compute(a, which):
    c = CFG[which]
    WM, WN, MT, NT, KBT, NS, NA, NW, TN16, STB, WB = [c[k] for k in "WM WN MT NT KBT NS NA NW TN16 STB WB".split()]
    v = VA(6); nm = f"G{which}"
    lane = 1; l16 = 2
    t = v(); t2 = v(); pt = v(4, 2)
    NTILE = 29 if which != 4 else 33
    a_ = a
    if which == 4: a = Rec()
    if WN == 2: a.e("s_lshr_b32 s34, s30, 1"); a.e("s_and_b32 s35, s30, 1")
    else: a.e("s_mov_b32 s34, s30"); a.e("s_mov_b32 s35, 0")
    a0 = v(); w0 = v(4, 1); aa = v(); wa = v(4, 1); J = v(); G = v()
    a.e(f"v_and_b32 v{J}, 15, v{lane}"); a.e(f"v_lshrrev_b32 v{G}, 4, v{lane}")
    a.e(f"s_mul_i32 s37, s34, {MT}")
    a.e(f"s_mul_i32 s38, s{NTILE}, {TN16}"); a.e(f"s_mul_i32 s36, s35, {NT}"); a.e("s_add_u32 s38, s38, s36")
    acc = v(MT * NT * 4, 4); NF = MT + NT if which > 2 else 8
    fX = v(NF * 4, 4); fY = v(NF * 4, 4); tmp = v(); tp = v(4, 2)
    def A_(mt, nt): return acc + 4 * (mt * NT + nt)
    def SUBM(r): return f"{vr(r,2)} op_sel_hi:[1,0] neg_lo:[0,1] neg_hi:[0,1]"
    def MULR(r): return f"{vr(r,2)} op_sel:[0,1] op_sel_hi:[1,1]"
    if which in (2, 4):
        res = RES2
        a.e("s_lshr_b32 s36, s38, 1"); spread(a, 39, 36); a.e("s_lshl_b32 s36, s37, 16"); a.e("s_add_u32 s39, s39, s36")
    if which <= 2:
        AB = 176; LO = v(8, 1)
        if which == 1:
            lsrd(a, 8, oX3, XSZ); OOB = MB
            for i in range(4): a.e(f"v_add_u32 v{LO+i}, {(i & 1) * 65536 + (i >> 1) * 4096}, v{l16}")
        else:
            hs_srd(a, 8); OOB = 128 * PITCH
            a.e(f"v_mul_u32_u24 v{LO}, {PITCH}, v{G}"); a.e(f"v_lshl_add_u32 v{LO}, v{J}, 4, v{LO}")
            for i in range(1, 8): a.e(f"v_add_u32 v{LO+i}, {4*PITCH*i}, v{LO}")
        for i in range(4):
            a.e("s_lshr_b32 s36, s67, 2"); a.e(f"s_add_u32 s36, s36, {i}"); a.e("s_and_b32 s36, s36, 3")
            if which == 1: a.e(f"s_lshl_b32 s{44+i}, s36, 14"); a.e("s_lshl_b32 s36, s34, 17")
            else:
                a.e(f"s_mul_i32 s{44+i}, s36, {32*PITCH}")
                a.e("s_xor_b32 s53, s36, s94"); a.e("s_and_b32 s53, s53, 1"); a.e("s_lshl_b32 s53, s53, 13"); a.e(f"s_add_u32 s{44+i}, s{44+i}, s53")
                a.e("s_lshr_b32 s53, s36, 1"); a.e("s_lshl_b32 s53, s53, 4"); a.e("s_add_u32 s53, s53, 16")
                a.e("s_sub_u32 s54, 0, s53"); a.e("s_bitcmp1_b32 s36, 0"); a.e("s_cselect_b32 s53, s53, s54"); a.e(f"s_add_u32 s{44+i}, s{44+i}, s53")
                a.e("s_lshl_b32 s36, s28, 2"); a.e("s_add_u32 s36, s36, s34"); a.e("s_lshl_b32 s36, s36, 9"); a.e("s_add_u32 s36, s36, 16384")
            a.e(f"s_add_u32 s{44+i}, s{44+i}, s36")
        def aload(b, kk):
            if which == 1: return [f"buffer_load_dwordx4 {vr(AB+16*b+8*kk+4*mt,4)}, v{LO+mt+(b&2)}, s[8:11], s44 offen offset:{(b&1)*2048+kk*1024} {LF1}" for mt in range(2)]
            return [f"buffer_load_dwordx4 {vr(AB+16*b+8*kk+4*mt,4)}, v{LO+2*b+kk}, s[8:11], s44 offen offset:{mt*256} {LF2}" for mt in range(2)]
    else:
        a.e(f"s_mul_i32 s36, s34, {MT*2048}"); a.e(f"v_add_u32 v{a0}, s36, v{l16}")
    nwr, wpos = w_bases(a, which, w0, 35, NT, t, t2)
    a = a_
    if which == 3 and not B0E: publish(a, ST_G2S, 4, pt, ctr=48)
    if which == 2:
        a.e(f"s_lshl_b32 s36, s37, 8"); a.e(f"s_add_u32 s36, s36, {LNSL}"); a.e(f"v_lshlrev_b32 v{t2}, 4, v{J}"); a.e(f"v_add_u32 v{t2}, s36, v{t2}")
        for mt in range(MT): a.e(f"ds_read_b64 {vr(fX+2*mt,2)}, v{t2} offset:{mt*256}")
        a.e("s_waitcnt lgkmcnt(0)")
        for mt in range(MT):
            for p in range(NT // 2):
                for e in range(4):
                    X = A_(mt, 2 * p) + 2 * e
                    unpack(a, X, X + 1, res + (mt * (NT // 2) + p) * 4 + e)
                    a.e(f"v_pk_add_f32 {vr(X,2)}, {vr(X,2)}, {SUBM(fX+2*mt)}"); round2(a, X, X + 1, tmp)
                    a.e(f"v_pk_mul_f32 {vr(X,2)}, {vr(X,2)}, {MULR(fX+2*mt)}"); round2(a, X, X + 1, tmp)
    elif which == 1:
        for i in range(0, MT * NT * 4, 2): a.e(f"v_pk_mov_b32 {vr(acc+i,2)}, 0, 0")
    RX = [180, 184, 188, 192, 196, 230, 234, 248]
    def last_res():
        b0 = Rec()
        for i in range(2):
            b0.e(f"s_add_u32 s36, s40, {i*65536}")
            for p in range(2):
                b0.e(f"buffer_load_dwordx4 {vr(RX[2*(2*i+p)],4)}, v{l16}, s[84:87], s36 offen offset:{p*1024} {SC}")
                b0.e(f"buffer_load_dwordx4 {vr(RX[2*(2*i+p)+1],4)}, v{l16}, s[88:91], s36 offen offset:{p*1024} {SC}")
        return b0.l
    def reads(F, kk):
        o = []
        for mt in range(MT): o.append(f"ds_read_b128 {vr(F+4*mt,4)}, v{aa} offset:{mt*256+kk*8192 if which == 2 else mt*2048+kk*1024}")
        for nt in range(NT):
            for h in range(2):
                r, imm = wpos(nt, kk, h)
                o.append(f"ds_read_b64_tr_b16 {vr(F+4*(MT+nt)+2*h,2)}, v{wa+r} offset:{imm}")
        NR = os.environ.get("NOREAD")
        if NR == "N": o = []
        if NR == "A": o = o[MT:]
        if NR == "W": o = o[:MT]
        if NR == "H": o = o[::2]
        if NR == "X": o = o + o[:2]
        if NR == "XX": o = o + o[:MT]
        return o
    def mix(rd, ex):
        rd = list(rd)
        for i, x in enumerate(ex): rd.insert(min(len(rd), (i + 1) * len(rd) // (len(ex) + 1)), x)
        return rd
    def mfmas(F, rd, tail=()):
        n = MT * NT; k = 0; tot = len(rd); span = max(1, n * 3 // 4); done = 0; tail = list(tail); per = -(-len(tail) // max(1, n - span))
        OR = os.environ.get("ORDER", "2")
        order = {"0": [(nt, mt) for nt in range(NT) for mt in range(MT)],
                 "1": [(nt, mt) for mt in range(MT) for nt in range(NT)],
                 "2": [(nt, mt if nt % 2 == 0 else MT - 1 - mt) for nt in range(NT) for mt in range(MT)],
                 "3": [(nt if mt % 2 == 0 else NT - 1 - nt, mt) for mt in range(MT) for nt in range(NT)]}[OR]
        for nt, mt in order:
            if True:
                cc = acc + 4 * (mt * NT + nt)
                if str(which) not in os.environ.get("NOMF", ""): a.e(f"v_mfma_f32_16x16x32_bf16 {vr(cc,4)}, {vr(F+4*(MT+nt),4)}, {vr(F+4*mt,4)}, {vr(cc,4)}")
                k += 1
                while rd and done < (tot * k + span - 1) // span: a.e(rd.pop(0)); done += 1
                if k >= span and k < n:
                    for _ in range(min(per, len(tail))): a.e(tail.pop(0))
        assert not rd and not tail
    so = SO3 if which == 3 else a0; cs = fX; lns = fX + 4 * NT; G4W = 240; EA = 244
    def ep_setup(b):
        if which in (1, 3):
            assert which == 1 or (fY <= C2R and C2R + 24 <= fY + 4 * NF)
            b.e(f"s_mul_i32 s36, s35, {NT*64}"); b.e(f"s_add_u32 s36, s36, {CSO[which]}"); b.e(f"v_lshlrev_b32 v{t}, 4, v{G}"); b.e(f"v_add_u32 v{t}, s36, v{t}")
            b.e(f"s_lshl_b32 s36, s37, 8"); b.e(f"s_add_u32 s36, s36, {LNSL + (8 if which == 1 else 0)}"); b.e(f"v_lshlrev_b32 v{t2}, 4, v{J}"); b.e(f"v_add_u32 v{t2}, s36, v{t2}")
        if which == 3:
            lsrd(b, 16, oH2, H2SZ)
            b.e(f"s_mul_i32 s39, s37, {224*1024}")
            for P in range(4):
                b.e("s_lshr_b32 s36, s38, 1"); b.e(f"s_add_u32 s36, s36, {P}"); spread(b, 44 + P, 36); b.e(f"s_add_u32 s{44+P}, s{44+P}, s39")
            w_bases(b, 4, G4W, 35, 4, tp, tp + 1)
            b.e("s_lshl_b32 s38, s33, 3"); b.e("s_lshl_b32 s36, s35, 2"); b.e("s_add_u32 s38, s38, s36")
            b.e("s_lshr_b32 s36, s38, 1"); spread(b, 39, 36); b.e("s_lshl_b32 s36, s37, 16"); b.e("s_add_u32 s39, s39, s36")
            b.e("s_lshl_b32 s40, s31, 17"); b.e("s_add_u32 s40, s40, s39")
            b.e("s_xor_b32 s41, s31, 1"); b.e("s_lshl_b32 s41, s41, 17"); b.e("s_add_u32 s41, s41, s39")
            lsrd(b, 84, oX3, XSZ); lsrd(b, 88, oX1P, XSZ); b.srd(80, 4, 4 * MB, off=globals()["Y"])
            b.e("s_lshl_b32 s36, s37, 1"); b.e("s_add_u32 s36, s36, s35"); b.e("s_lshl_b32 s36, s36, 10"); b.e(f"v_add_u32 v{EA}, s36, v{l16}")
            b.e(f"v_mov_b32 v{EA+1}, 1"); b.e(f"v_mov_b32 v{EA+2}, {LW+64}")
            b.e(f"v_lshrrev_b32 v{so}, 1, v{G}"); b.e(f"v_lshlrev_b32 v{so}, 8, v{so}"); b.e(f"v_lshl_add_u32 v{so}, v{J}, 4, v{so}")
            b.e(f"v_and_b32 v{tmp}, 1, v{G}"); b.e(f"v_lshl_add_u32 v{so}, v{tmp}, 3, v{so}")
        if which == 1:
            hs_srd(b, 16)
            b.e(f"v_mul_u32_u24 v{so}, {PITCH}, v{G}"); b.e(f"v_lshl_add_u32 v{so}, v{J}, 4, v{so}")
            b.e(f"s_mul_i32 s39, s38, {2*PITCH}"); b.e("s_lshl_b32 s36, s37, 8"); b.e("s_add_u32 s39, s39, s36"); b.e("s_add_u32 s39, s39, 16384")
            b.e("s_lshl_b32 s36, s28, 11"); b.e("s_add_u32 s39, s39, s36")
            b.e("s_lshr_b32 s36, s29, 2"); b.e("s_xor_b32 s36, s36, s94"); b.e("s_and_b32 s36, s36, 1"); b.e("s_lshl_b32 s36, s36, 13"); b.e("s_add_u32 s39, s39, s36")
            b.e(f"s_add_u32 s40, s39, {4*PITCH}")
            b.e("s_lshr_b32 s36, s38, 1"); spread(b, 41, 36); b.e("s_lshl_b32 s36, s37, 16"); b.e("s_add_u32 s41, s41, s36")
        if which == 2: lsrd(b, 16, oX1P, XSZ)
    def cost(x): return sum(8 if y.startswith("ds_") else 4 for y in x.split("\n"))
    def group(F, rd, r0, ex, fixed={}, zero=False):
        n = MT * NT; ex = [x if isinstance(x, tuple) else (x, -1) for x in ex]; done = 0
        order = [(nt, mt if nt % 2 == 0 else MT - 1 - mt) for nt in range(NT) for mt in range(MT)]
        need = sum(cost(x) for x, _ in ex) + 8 * len(rd) + sum(cost(x) for l in fixed.values() for x in l)
        cap = max(12, -(-need // (4 * n)) * 4)
        for k, (nt, mt) in enumerate(order):
            cc = A_(mt, nt)
            if str(which) not in os.environ.get("NOMF", ""): a.e(f"v_mfma_f32_16x16x32_bf16 {vr(cc,4)}, {vr(F+4*(MT+nt),4)}, {vr(F+4*mt,4)}, {0 if zero else vr(cc,4)}")
            b_ = cap - sum(cost(x) for x in fixed.get(k, [])); nv = 0
            if k >= r0 and done < len(rd): a.e(rd[done]); done += 1; b_ -= 8
            while ex and ex[0][1] < done and (cost(ex[0][0]) <= b_ or k == n - 1) and not (nv >= (1 if rd else 2) and ex[0][0].startswith("v_") and cap == 12 and k < n - 1):
                x = ex.pop(0)[0]; a.e(x); b_ -= cost(x); nv += x.startswith("v_")
            for x in fixed.get(k, []): a.e(x)
        assert done == len(rd) and not ex
    NR_ = MT + 2 * NT; BP = eval(os.environ.get("BP", "{3:3,4:2}")).get(which, 0)
    def stage(ex=(), ey=(), lim=NS-1, late=False, zero=False, pre=()):
        if str(which) in os.environ.get("GST", "") or os.environ.get("JIT"): mstamp(a, True)
        if which == 3: last = {0: NR_ - 1, 1: NR_ - 3}
        else: last = {i: MT + 2 * i + 1 for i in range(4)}
        book = ["s_add_u32 s42, s42, 16384", f"s_cmp_eq_u32 s42, {NA*16384}", "s_cselect_b32 s42, 0, s42",
                f"s_add_u32 s48, s48, {STB}", f"s_cmp_eq_u32 s48, {NW*STB}", "s_cselect_b32 s48, 0, s48", (f"v_add_u32 v{aa}, s42, v{a0}", MT - 1)]
        book += sorted([(f"v_add_u32 v{wa+i}, s48, v{w0+i}", last[i]) for i in range(nwr)], key=lambda x: x[1])
        n = MT * NT
        group(fX, reads(fY, 1), 0, book[:7] + list(ex) + book[7:], {3: [f"s_waitcnt lgkmcnt({min(15, NR_ - MT - 4 + 4)})"], 7: ["s_waitcnt lgkmcnt(8)"], n - 1: [f"s_waitcnt lgkmcnt({NR_ - MT - 2})"]}, zero)
        if late:
            b_ = Rec(); ep_setup(b_)
            group(fY, [], 0, ["s_add_u32 s43, s43, 1"] + b_.l, {min(BP, 3): ["s_waitcnt lgkmcnt(0)"]})
            if B0E: publish(a, ST_G2S, 4, pt, ctr=48)
            a.e("s_barrier")
            for x in reads(fX, 0): a.e(x)
            a.e(f"s_waitcnt lgkmcnt({NR_ - MT - 2})")
            return
        group(fY, reads(fX, 0), BP + 1, list(ey) + ["s_add_u32 s43, s43, 1", f"s_cmp_lt_u32 s43, {lim}"],
              {BP - 1: list(pre), BP: ["s_waitcnt lgkmcnt(0)", "s_barrier"], n - 1: [f"s_waitcnt lgkmcnt({NR_ - MT - 2})"]})
    w00 = c["S0"] * STB
    if which <= 2:
        def wrd(p, b): return [f"ds_read_b64_tr_b16 {vr((fX, fY)[p]+16*kk+4*nt+2*h,2)}, v{w0+nt} offset:{b*STB + wpos(nt, kk, h)[1]}" for kk in range(2) for nt in range(4) for h in range(2)]
        def dmf(b, fill, lo=0, hi=16):
            k = 0
            for kk in range(2):
                for nt in range(4):
                    for mt in ((0, 1) if nt % 2 == 0 else (1, 0)):
                        if lo <= k < hi:
                            a.e(f"v_mfma_f32_16x16x32_bf16 {vr(A_(mt,nt),4)}, {vr((fX, fY)[b&1]+16*kk+4*nt,4)}, {vr(AB+16*b+8*kk+4*mt,4)}, {vr(A_(mt,nt),4)}")
                            for x in fill[k]: a.e(x)
                        k += 1
        def spreadf(l, lo, hi):
            f = [[] for _ in range(16)]
            for i, x in enumerate(l): f[lo + i * (hi - lo) // len(l)].append(x)
            return f
        a.e("s_mov_b32 s43, 0"); ep_setup(a)
        a.e("s_waitcnt lgkmcnt(0)"); a.e("s_barrier")
        for x in aload(0, 0) + aload(0, 1) + aload(1, 0) + aload(1, 1) + wrd(0, 0) + aload(2, 0) + aload(2, 1) + aload(3, 0): a.e(x)
        a.e("s_waitcnt vmcnt(10) lgkmcnt(0)")
        mstamp(a)
        L = a.lab("dm"); a.e(f"{L}:")
        for b in range(4):
            rd = wrd(1 - (b & 1), (b + 1) & 3); ex = [[] for _ in range(16)]
            ex[0], ex[1] = [[x] for x in aload((b - 1) & 3, 1)]
            if b == 0:
                for i, x in enumerate(["s_mov_b32 s44, s45", "s_mov_b32 s45, s46", "s_mov_b32 s46, s47", f"s_mov_b32 s47, {OOB}"]): ex[2 + i].append(x)
            if b == 2:
                ex[2].append("s_add_u32 s43, s43, 1"); ex[3].append("s_cmp_eq_u32 s43, 4")
                for nt, g_ in enumerate((11, 12, 13, 15)): ex[g_].append(f"v_add_u32 v{w0+nt}, {4*STB}, v{w0+nt}")
            ex[7].append("s_waitcnt lgkmcnt(8)")
            ex[8], ex[9] = [[x] for x in aload(b, 0)]
            ex[10].append("s_waitcnt vmcnt(10)")
            fill = [rd[i:i+1] + ex[i] for i in range(16)]
            fill[14] = rd[14:16] + ex[14]; fill[15] = ex[15] + ["s_waitcnt lgkmcnt(8)"]
            if b == 2: fill[15].append(f"s_cbranch_scc1 {L}x")
            if b == 3: fill[15].append(f"s_branch {L}")
            dmf(b, fill)
        a.e(f"{L}x:")
    else:
        if which == 3:
            a.e(f"v_mov_b32 v{aa}, v{a0}")
            a.e("s_mov_b32 s42, 0"); a.e("s_mov_b32 s43, 0"); a.e(f"s_mov_b32 s48, {w00}")
            for i in range(nwr): a.e(f"v_add_u32 v{wa+i}, {w00}, v{w0+i}")
        if not (which == 3 and B0E): a.e("s_waitcnt lgkmcnt(0)"); a.e("s_barrier")
        mstamp(a)
        for x in reads(fX, 0): a.e(x)
        a.e(f"s_waitcnt lgkmcnt({NR_ - MT - 2})")
    if which == 4:
        def st2(j): return [(x, 0) for x in [f"s_add_u32 s36, s44, {j*224*1024}", f"buffer_store_dwordx4 {vr(C2R+4*j,4)}, v{l16}, s[16:19], s36 offen {SC}",
                            f"s_add_u32 s36, s45, {j*224*1024}", f"buffer_store_dwordx2 {vr(C2R+16+2*j,2)}, v{SO3}, s[16:19], s36 offen {SC}"]]
        assert PBB in (1, 2) and PC0 >= 2
        for st_ in range(2): stage(st2(2 * st_), st2(2 * st_ + 1), zero=st_ == 0, pre=[f"s_waitcnt vmcnt({4 * st_ + 2})"] if PBB == st_ + 1 else [])
        CW = 0
        if PC0 > 3:
            L0 = a.lab("mm"); a.e(f"{L0}:"); stage(lim=PC0); a.e(f"s_cbranch_scc1 {L0}")
        elif PC0 == 3: stage()
    if which == 3 and os.environ.get("PEEL3", "1") == "1": stage(late=True, zero=True)
    if which > 2:
        L = a.lab("mm"); a.e(f"{L}:")
        stage(pre=[f"s_waitcnt vmcnt({CW})"] if which == 4 else [])
        a.e(f"s_cbranch_scc1 {L}")
    b0 = Rec()
    if which == 4:
        a.e("s_cmp_eq_u32 s60, 1"); a.e("s_cbranch_scc1 G4_last")
        if not RPC: r_pre(b0)
    if which == 1:
        for mt in range(MT):
            for p in range(NT // 2): b0.e(f"buffer_load_dwordx4 {vr(RES2+(mt*(NT//2)+p)*4,4)}, v{LO+mt}, s[8:11], s41 offen offset:{p*1024} {SC}")
    early = True
    XW = {3: [f"s_waitcnt lgkmcnt({min(15, NR_ - MT)})"], 7: ["s_waitcnt lgkmcnt(8)"]}
    if which <= 2: dmf(3, spreadf(b0.l, 0, 8), 0, 8)
    else: group(fX, reads(fY, 1), 0, b0.l, XW)
    a.e("s_waitcnt lgkmcnt(0)")
    if which not in DL: a.e("s_barrier")
    b = Rec()
    if which in (1, 3):
        for nt in range(NT): b.e(f"ds_read_b128 {vr(cs+4*nt,4)}, v{t} offset:{nt*64}")
        if which == 3:
            for mt in range(MT): b.e(f"ds_read_b128 {vr(lns+4*mt,4)}, v{t2} offset:{mt*256}")
            for i in range(4): b.e(f"v_mov_b32 v{w0+i}, v{G4W+i}"); b.e(f"v_add_u32 v{wa+i}, {CFG[4]['S0']*CFG[4]['STB']}, v{G4W+i}")
            b.e("s_mov_b32 s42, 0"); b.e("s_mov_b32 s43, 0"); b.e(f"s_mov_b32 s48, {CFG[4]['S0']*CFG[4]['STB']}"); b.e(f"v_mov_b32 v{aa}, v{a0}")
            assert fY + 16 == RFO; r_addr(b)
        else:
            for mt in range(MT): b.e(f"ds_read_b64 {vr(lns+2*mt,2)}, v{t2} offset:{mt*256}")
    if which == 2: lsrd(b, 44, oST2, 24576)
    if which == 4:
        b.e(f"s_mul_i32 s36, s31, {oP1-oP0}"); b.e(f"s_add_u32 s36, s36, {oP0}")
        b.e("s_add_u32 s16, s62, s36"); b.e("s_addc_u32 s17, s63, 0"); b.e(f"s_mov_b32 s18, {XSZ}"); b.e("s_mov_b32 s19, 0x20000")
    if which <= 2: dmf(3, spreadf(b.l, 8, 15), 8, 16)
    else: group(fY, [], 0, b.l)
    mstamp(a)
    if which in (1, 3):
        AB = v(2 * MT, 2) if which == 1 else fY + 4
        def consts():
            for mt in range(MT if which == 1 else 0):
                r = lns + 2 * mt + 1
                a.e(f"v_mul_f32 v{AB+2*mt}, {f32(GC1)}, v{r}"); a.e(f"v_mul_f32 v{AB+2*mt+1}, v{r}, v{r}")
                a.e(f"v_mul_f32 v{AB+2*mt+1}, v{AB+2*mt+1}, v{AB+2*mt}"); a.e(f"v_mul_f32 v{AB+2*mt+1}, {f32(0.044715)}, v{AB+2*mt+1}")
                a.e(f"v_rcp_f32 v{r}, v{r}")
        def act(mt, nt):
            A = A_(mt, nt); P_ = [(A, tp), (A + 2, tp + 2)]; L_ = vr(lns + 2 * mt, 2); K_ = vr(AB + 2 * mt, 2)
            if which == 3: L_ = vr(lns + 4 * mt, 2); K_ = vr(lns + 4 * mt + 2, 2)
            for h in range(2):
                a.e(f"v_pk_fma_f32 {vr(A+2*h,2)}, {L_}, {vr(cs+4*nt+2*h,2)}, {vr(A+2*h,2)} op_sel_hi:[0,1,1] neg_lo:[1,0,0] neg_hi:[1,0,0]")
            for x, u in P_: a.e(f"v_pk_mul_f32 {vr(u,2)}, {vr(x,2)}, {vr(x,2)}")
            for x, u in P_: a.e(f"v_pk_fma_f32 {vr(u,2)}, {vr(u,2)}, {K_}, {K_} op_sel:[0,1,0] op_sel_hi:[1,1,0]")
            for x, u in P_: a.e(f"v_pk_mul_f32 {vr(u,2)}, {vr(u,2)}, {vr(x,2)}")
            for i in range(4): a.e(f"v_exp_f32 v{tp+i}, v{tp+i}")
            for x, u in P_: a.e(f"v_pk_fma_f32 {vr(u,2)}, {vr(u,2)}, {L_}, {L_} op_sel:[0,1,1] op_sel_hi:[1,1,1]")
            for i in range(4): a.e(f"v_rcp_f32 v{tp+i}, v{tp+i}")
            for x, u in P_: a.e(f"v_pk_mul_f32 {vr(x,2)}, {vr(x,2)}, {vr(u,2)}")
        def egroup(par, mt, nts, dst=None):
            for nt in nts: act(mt, nt)
            T = par * NT + nts[0]; P = (T >> 1) - ((par * NT) >> 1); B = A_(mt, nts[0]); D = B if dst is None else dst
            for k in range(2 * len(nts)): a.e(f"v_cvt_pk_bf16_f32 v{D+k}, v{B+2*k}, v{B+2*k+1}")
            if which == 3: return [f"s_add_u32 s36, s{44+P}, {mt*224*1024}", f"buffer_store_dwordx4 {vr(B,4)}, v{l16}, s[16:19], s36 offen {SC}"]
            return [f"buffer_store_dwordx4 {vr(B,4)}, v{so}, s[16:19], s{39+P} offen offset:{mt*256} {SC}"]
        def body(par):
            if which == 1: gs = [(0, 1), (2, 3)]
            else: gs = [(0, 1), (2, 3), (4, 5), (6,)] if par == 0 else [(1, 2), (3, 4), (5, 6), (0,)]
            k = 0; pend = []; sent = 0
            for gi_, g_ in enumerate(gs):
                for mt in range(MT):
                    if which == 3 and k == C0PUB:
                        a.e(f"s_waitcnt vmcnt({sent - 4})"); a.e("s_mov_b64 exec, 1"); a.e(f"ds_add_u32 v{EA+2}, v{EA+1}"); a.e("s_mov_b64 exec, -1"); mstamp(a)
                    if which == 3 and k == RK:
                        b_ = Rec(); r_pre(b_); l_ = [x for x in b_.l if x.startswith(("buffer", "s_mov_b32 s78"))]
                        a.e("s_cmp_eq_u32 s60, 1"); a.e(f"s_cbranch_scc1 G4_p1{par}")
                        for x in l_: a.e(x)
                        a.e(f"s_branch G4_p2{par}"); a.e(f"G4_p1{par}:")
                        for x in last_res(): a.e(x)
                        a.e(f"G4_p2{par}:")
                        if 4 <= k < C0PUB: sent += 8
                    st_ = egroup(par, mt, g_, None if gi_ < 2 else C2R + 4 * mt if gi_ == 2 else C2R + 16 + 2 * mt); k += 1
                    if which == 3 and gi_ < 3:
                        a.e(f"ds_write_b128 v{EA}, {vr(A_(mt, g_[0]) if gi_ < 2 else C2R + 4 * mt, 4)} offset:{gi_*16384 + mt*2048}")
                    if gi_ < 2: pend.append(st_)
                    n = len(pend) if (which == 1 or k <= 4 or k == 16) else 0 if k <= STQ else min(1, len(pend))
                    for _ in range(n):
                        for x in pend.pop(0): a.e(x)
                        sent += 1
            if which == 3:
                a.e("s_waitcnt lgkmcnt(0)")
                if par == 0: a.e("s_mov_b32 s44, s46"); a.e("s_mov_b32 s45, s47")
                else: a.e("s_add_u32 s45, s44, 512"); a.e("s_mov_b32 s44, s47")
        a.e("s_waitcnt lgkmcnt(0)")
        consts()
        if which == 3:
            a.e("s_cmp_eq_u32 s35, 1"); a.e(f"s_cbranch_scc1 {nm}_e1")
            body(0); a.e(f"s_branch {nm}_e2"); a.e(f"{nm}_e1:"); body(1); a.e(f"{nm}_e2:")
        else: body(0)
    if which == 2:
        xf = v(2, 2); S = v(2 * MT, 2); pp = v(2, 2); mn = v(2, 2)
        for mt in range(MT):
            a.e(f"s_add_u32 s36, s39, {mt*65536}")
            for p in range(NT // 2):
                R = res + (mt * (NT // 2) + p) * 4
                for e in range(4):
                    X = A_(mt, 2 * p) + 2 * e
                    a.e(f"v_cvt_pk_bf16_f32 v{R+e}, v{X}, v{X+1}")
                a.e(f"buffer_store_dwordx4 {vr(R,4)}, v{l16}, s[16:19], s36 offen offset:{p*1024} {SC}")
        if which in DL: a.e("s_barrier")
        if OWN3:
            a.e("s_lshl_b32 s36, s37, 11"); a.e(f"v_add_u32 v{t2}, s36, v{l16}")
            for i in range(4): a.e(f"ds_write_b128 v{t2}, {vr(res+4*i,4)} offset:{1024*i}")
        for i in range(MT * NT * 2): unpack(a, acc + 2 * i, acc + 2 * i + 1, res + i)
        mstamp(a)
        publish(a, which, 4, pt)
        if B0E: a.e("s_waitcnt lgkmcnt(0)"); a.e("s_barrier")
        mstamp(a)
        for mt in range(MT):
            B = A_(mt, 0); Sm = S + 2 * mt
            a.e(f"v_pk_add_f32 {vr(pp,2)}, {vr(B,2)}, {vr(B+2,2)}"); a.e(f"v_pk_mul_f32 {vr(xf,2)}, {vr(B,2)}, {vr(B,2)}")
            for i in range(1, NT * 2):
                if i > 1: a.e(f"v_pk_add_f32 {vr(pp,2)}, {vr(pp,2)}, {vr(B+2*i,2)}")
                a.e(f"v_pk_fma_f32 {vr(xf,2)}, {vr(B+2*i,2)}, {vr(B+2*i,2)}, {vr(xf,2)}")
            a.e(f"v_add_f32 v{Sm}, v{pp}, v{pp+1}"); a.e(f"v_add_f32 v{Sm+1}, v{xf}, v{xf+1}")
            for op in ("v_permlane16_swap_b32", "v_permlane32_swap_b32"):
                for k in range(2): a.e(f"v_mov_b32 v{pp+k}, v{Sm+k}")
                for k in range(2): a.e(f"{op} v{Sm+k}, v{pp+k}")
                a.e(f"v_pk_add_f32 {vr(Sm,2)}, {vr(Sm,2)}, {vr(pp,2)}")
        a.e(f"v_cmp_eq_u32 vcc, 0, v{G}"); a.e(f"v_cndmask_b32 v{S}, v{S+2}, v{S}, vcc"); a.e(f"v_cndmask_b32 v{S+1}, v{S+3}, v{S+1}, vcc")
        spread(a, 40, 29); a.e("s_lshl_b32 s36, s34, 8"); a.e("s_add_u32 s40, s40, s36")
        a.e(f"v_lshlrev_b32 v{t2}, 3, v{lane}")
        a.e("s_bfm_b64 exec, 32, 0")
        a.e(f"buffer_store_dwordx2 {vr(S,2)}, v{t2}, s[44:47], s40 offen {SC}")
        a.e("s_mov_b64 exec, -1")
    if which == 4:
        for mt in range(MT):
            a.e(f"s_add_u32 s36, s39, {mt*65536}")
            for p in range(NT // 2):
                B = A_(mt, 2 * p)
                for e in range(4): a.e(f"v_cvt_pk_bf16_f32 v{B+e}, v{B+2*e}, v{B+2*e+1}")
                a.e(f"buffer_store_dwordx4 {vr(B,4)}, v{l16}, s[16:19], s36 offen offset:{p*1024} {SC}")
    if which != 2:
        if which in DL: a.e("s_barrier")
        mstamp(a)
        if which != 3: publish(a, which, 4, pt)
        mstamp(a)
    if which == 4:
        a.e("s_branch NEXT")
        a.e("G4_last:")
        PX = 208; oa = 224; xf = 226
        group(fX, reads(fY, 1), 0, [(f"s_load_dwordx2 s[6:7], s[0:1], {D_OUT}", 9)], XW)
        a.e("s_waitcnt lgkmcnt(0)")
        b = Rec()
        lsrd(b, 16, oP0, XSZ)
        b.srd(20, 6, 4 * MB)
        b.e("s_lshl_b32 s44, s29, 2"); b.e("s_add_u32 s44, s44, s30"); b.e("s_lshl_b32 s44, s44, 7"); b.e("s_xor_b32 s45, s44, 4096")
        b.e("s_add_u32 s44, s44, s55"); b.e(f"s_add_u32 s44, s44, {oFP}"); b.e("s_add_u32 s45, s45, s55"); b.e(f"s_add_u32 s45, s45, {oFP}")
        b.e(f"v_mov_b32 v{pt+1}, s45"); b.e(f"v_mov_b32 v{pt+2}, s52"); b.e(f"v_mov_b32 v{pt+3}, 0")
        b.e("s_lshl_b32 s46, s28, 3"); b.e("s_add_u32 s46, s46, s37"); b.e("s_lshl_b32 s47, s31, 1"); b.e("s_add_u32 s46, s46, s47"); b.e("s_lshl_b32 s46, s46, 15")
        b.e("s_lshl_b32 s47, s38, 5"); b.e("s_add_u32 s46, s46, s47"); b.e(f"s_add_u32 s47, s46, {16*2048}")
        b.e(f"v_and_b32 v{oa+1}, 1, v{G}"); b.e(f"v_lshlrev_b32 v{oa}, 11, v{J}"); b.e(f"v_lshl_add_u32 v{oa}, v{oa+1}, 5, v{oa}")
        b.e(f"v_lshrrev_b32 v{oa+1}, 1, v{G}"); b.e(f"v_lshl_add_u32 v{oa}, v{oa+1}, 4, v{oa}")
        FULLN = os.environ.get("FULLN", "1") == "1"
        if FULLN:
            b.e(f"v_cmp_gt_u32 s[48:49], 8, v{J}")
            b.e(f"v_lshrrev_b32 v{oa+1}, 3, v{J}"); b.e(f"v_mul_u32_u24 v{oa+1}, {8*2048 - 64}, v{oa+1}"); b.e(f"v_sub_u32 v{oa}, v{oa}, v{oa+1}")
            b.e(f"v_add_u32 v{oa+1}, {8*2048}, v{oa}")
        group(fY, [], 0, b.l)
        mstamp(a)
        a.e("s_cmp_eq_u32 s31, 0"); a.e("s_cbranch_scc1 G4_k0")
        for i in range(32): a.e(f"v_swap_b32 v{acc+i}, v{acc+32+i}")
        a.e("G4_k0:")
        for i in range(2):
            a.e(f"s_add_u32 s36, s41, {i*65536}")
            for p in range(2):
                B = A_(2 + i, 2 * p)
                for e in range(4): a.e(f"v_cvt_pk_bf16_f32 v{B+e}, v{B+2*e}, v{B+2*e+1}")
                a.e(f"buffer_store_dwordx4 {vr(B,4)}, v{l16}, s[16:19], s36 offen offset:{p*1024} {SC}")
        def addp(k, R):
            B = A_(k >> 1, 2 * (k & 1))
            for e in range(4):
                unpack(a, xf + 2 * (e & 1), xf + 1 + 2 * (e & 1), R + e)
                a.e(f"v_pk_add_f32 {vr(B+2*e,2)}, {vr(B+2*e,2)}, {vr(xf+2*(e&1),2)}")
        a.e("s_waitcnt vmcnt(4)")
        for k in range(4): addp(k, RX[2 * k])
        a.e("s_waitcnt vmcnt(0)")
        a.e("s_mov_b64 exec, 1"); a.e(f"buffer_store_dword v{pt+2}, v{pt+3}, s[56:59], s44 offen {SC}"); a.e("s_mov_b64 exec, -1")
        mstamp(a)
        for k in range(4): addp(k, RX[2 * k + 1])
        poll_core(a, pt, [pt + 1], 1, nap=2)
        mstamp(a)
        for i in range(2):
            a.e(f"s_add_u32 s36, s40, {i*65536}")
            for p in range(2): a.e(f"buffer_load_dwordx4 {vr(PX+4*(2*i+p),4)}, v{l16}, s[16:19], s36 offen offset:{p*1024} {SC}")
        for k in range(4):
            a.e(f"s_waitcnt vmcnt({3 - (k & 1) if FULLN else 3})")
            addp(k, PX + 4 * k)
            B = A_(k >> 1, 2 * (k & 1))
            if os.environ.get("EPS"):
                for e in range(8): a.e(f"v_mul_f32 v{B+e}, {f32(1 + float(os.environ['EPS']) * (1 if e & 1 else -1))}, v{B+e}")
            for e in range(4): a.e(f"v_cvt_pk_bf16_f32 v{B+e}, v{B+2*e}, v{B+2*e+1}")
            for e in range(2): a.e(f"v_permlane16_swap_b32 v{B+e}, v{B+2+e}")
            if not FULLN: a.e(f"buffer_store_dwordx4 {vr(B,4)}, v{oa}, s[20:23], s{46+(k>>1)} offen offset:{64*(k&1)} {os.environ.get('OS', '')}")
            elif k & 1:
                X, Y, T = B - 8, B, B + 4
                for e in range(4): a.e(f"v_cndmask_b32 v{T+e}, v{X+e}, v{Y+e}, s[48:49]")
                for e in range(4): a.e(f"v_mov_b32_dpp v{X+4+e}, v{T+e} row_ror:8 row_mask:0xf bank_mask:0xf")
                for e in range(4): a.e(f"v_cndmask_b32 v{X+e}, v{X+4+e}, v{X+e}, s[48:49]"); a.e(f"v_cndmask_b32 v{Y+e}, v{Y+e}, v{X+4+e}, s[48:49]")
                a.e(f"buffer_store_dwordx4 {vr(X,4)}, v{oa}, s[20:23], s{46+(k>>1)} offen {SC}")
                a.e(f"buffer_store_dwordx4 {vr(Y,4)}, v{oa+1}, s[20:23], s{46+(k>>1)} offen {SC}")
        a.e("s_branch K_fin")
    assert v.hi <= {1: RES2, 2: RES2, 3: RYY, 4: 176}[which], v.hi
    return v.hi

def k_mega(a):
    nm = KNAME; a.begin_kernel(nm)
    a.e("s_cmp_ge_u32 s2, 256"); a.e("s_cbranch_scc1 K_end")
    a.e(f"s_load_dwordx8 s[8:15], s[0:1], {A_K}"); a.e(f"s_load_dwordx2 s[6:7], s[0:1], {A_Q}"); a.e(f"s_load_dwordx8 s[68:75], s[0:1], {B_W1}")
    a.e(f"s_load_dwordx2 s[4:5], s[0:1], {D_WS}"); a.e(f"s_load_dwordx2 s[84:85], s[0:1], {D_DBG}"); a.e("s_memrealtime s[46:47]")
    a.e(f"s_load_dwordx2 s[96:97], s[0:1], {A_SSMD}")
    a.e("v_lshrrev_b32 v1, 6, v0"); a.e("v_readfirstlane_b32 s30, v1")
    if CODEPF:
        a.e("s_getpc_b64 s[48:49]"); a.e("K_pc:")
        a.e("s_lshr_b32 s36, s2, 3"); a.e("s_lshl_b32 s36, s36, 11")
        a.e("v_lshlrev_b32 v4, 2, v0"); a.e("v_add_u32 v4, s36, v4")
        a.e("v_cmp_gt_u32 vcc, K_end-K_pc-8, v4"); a.e("s_and_saveexec_b64 s[36:37], vcc"); a.e("s_cbranch_execz K_3")
        a.e("v_mov_b32 v5, s49"); a.e("v_add_co_u32 v4, vcc, s48, v4"); a.e("v_addc_co_u32 v5, vcc, 0, v5, vcc")
        a.e("global_load_dword v250, v[4:5], off")
        a.e("K_3:"); a.e("s_mov_b64 exec, -1")
    for _ in range(int(os.environ.get("SDELAY", "0"))): a.e("s_sleep 127")
    front_loads(a)
    a.e("v_and_b32 v1, 63, v0"); a.e("v_lshlrev_b32 v2, 4, v1"); a.e("v_lshlrev_b32 v3, 2, v1")
    a.e("s_and_b32 s32, s2, 7"); a.e("s_lshr_b32 s33, s2, 3")
    a.e("s_and_b32 s28, s32, 2"); a.e("s_lshr_b32 s34, s32, 2"); a.e("s_or_b32 s28, s28, s34")
    a.e("s_lshl_b32 s28, s28, 2"); a.e("s_and_b32 s34, s33, 3"); a.e("s_add_u32 s28, s28, s34")
    a.e("s_and_b32 s31, s32, 1"); a.e("s_lshr_b32 s33, s33, 2")
    a.e("s_lshl_b32 s29, s31, 3"); a.e("s_add_u32 s29, s29, s33")
    if MAP == 8:
        a.e("s_lshr_b32 s33, s2, 3")
        a.e("s_and_b32 s28, s33, 4"); a.e("s_lshl_b32 s28, s28, 1"); a.e("s_and_b32 s34, s32, 4"); a.e("s_or_b32 s28, s28, s34"); a.e("s_and_b32 s34, s33, 3"); a.e("s_or_b32 s28, s28, s34")
        a.e("s_and_b32 s29, s32, 3"); a.e("s_lshl_b32 s29, s29, 2"); a.e("s_lshr_b32 s33, s33, 3"); a.e("s_or_b32 s29, s29, s33")
        a.e("s_lshr_b32 s31, s29, 3"); a.e("s_and_b32 s33, s29, 7")
    if MAP == 2:
        a.e("s_lshr_b32 s33, s2, 3")
        a.e("s_and_b32 s28, s32, 2"); a.e("s_lshl_b32 s28, s28, 2"); a.e("s_and_b32 s34, s32, 4"); a.e("s_or_b32 s28, s28, s34")
        a.e("s_and_b32 s34, s32, 1"); a.e("s_lshl_b32 s34, s34, 1"); a.e("s_or_b32 s28, s28, s34"); a.e("s_and_b32 s34, s33, 1"); a.e("s_or_b32 s28, s28, s34")
        a.e("s_lshr_b32 s29, s33, 1"); a.e("s_lshr_b32 s31, s29, 3"); a.e("s_and_b32 s33, s29, 7")
    a.e({4: "s_lshl_b32 s67, s33, 1", 8: "s_lshl_b32 s67, s33, 2", 2: "s_mov_b32 s67, s29"}[MAP]); a.e(f"s_and_b32 s67, s67, {int(os.environ.get('RMASK', '0'))}")
    a.e("s_mov_b32 s60, 0"); a.e("s_mov_b32 s61, 40000"); a.e("s_mov_b32 s52, 0")
    a.e("s_mov_b32 s55, 0"); a.e("s_mov_b32 s92, 0"); a.e("s_mov_b32 s93, 0"); a.e("s_mov_b32 s94, 0")
    a.srd(56, 4, HSB)
    if os.environ.get("FIXT"): a.e("s_mov_b32 s101, s46")
    r_addr(a)
    a.e(f"s_add_u32 s62, s4, {LB0}"); a.e("s_addc_u32 s63, s5, 0")
    if STAMP:
        a.e("s_mov_b32 s66, 1"); a.e("v_mov_b32 v255, -1"); a.e("s_mov_b32 s95, 0"); a.e("v_writelane_b32 v255, s46, 0")
    mstamp(a)
    if os.environ.get("WBENCH"):
        a.e("s_waitcnt vmcnt(0)"); a.e("s_barrier")
        a.e("s_cmp_lt_u32 s30, 6"); a.e("s_cbranch_scc1 WB_end")
        for w in (1, 2, 3, 4):
            mstamp(a); w_setup(a, w); a.e("s_waitcnt vmcnt(0)"); mstamp(a); a.e("s_sleep 40")
        a.e("WB_end:"); a.e("s_branch K_dump")
    front_a(a); mstamp(a)
    for r in range(238, 248): a.e(f"v_mov_b32 v{r}, 0")
    a.e("s_cmp_ge_u32 s30, 4"); a.e("s_cbranch_scc1 FR_b")
    front_conv(a); hi = 0
    mstamp(a)
    front_arrive(a, True)
    a.e("s_branch FR_end")
    a.e("FR_b:")
    front_b(a)
    a.e("FR_end:")
    mstamp(a)
    a.e("LAYER:")
    if os.environ.get("XDELAY"): a.e(f"s_sleep {os.environ['XDELAY']}")
    hi = max(hi, r_stage(a, False))
    mstamp(a)
    a.e("s_cmp_ge_u32 s30, 4"); a.e("s_cbranch_scc1 LOADERS")
    if CPRIO: a.e(f"s_setprio {CPRIO}")
    for w in (1, 2, 3, 4):
        a.lines.append(f"; ---- G{w}: compute waves (set-up, K loop, epilogue, publish)")
        hi = max(hi, g_compute(a, w))
    a.e("LOADERS:")
    if SB[2]:
        a.e("s_cmp_lg_u32 s60, 0"); a.e("s_cbranch_scc1 LD_0"); sb(a, SB[2]); a.e("LD_0:")
    if PRIO: a.e(f"s_setprio {PRIO}")
    a.e("s_cmp_ge_u32 s30, 6"); a.e("s_cbranch_scc1 WLOAD")
    for w in (1, 2, 3, 4): a_loader(a, w)
    a.e("s_branch NEXT")
    a.e("WLOAD:")
    a.e("s_cmp_eq_u32 s60, 1"); a.e("s_cbranch_scc1 WL_1")
    w_setup(a, 1, pre=False); w1_slots(a, range(9 - W1G), pace=12); mstamp(a)
    a.e("s_branch WL_2")
    a.e("WL_1:")
    w_setup(a, 1, pre=False); w1_slots(a, range(3 - W1L), pace=12)
    a.e("WL_2:")
    for w in (1, 2, 3, 4):
        w_loader(a, w)
        if w == 2:
            c = CFG[3]; w_setup(a, 3, pre=False); a.e(f"s_mov_b32 s42, {(c['S0'] + 2) % c['NW'] * c['STB']}"); a.e("s_mov_b32 s44, 2")
        if w == 3: w_setup(a, 4)
    a.e("NEXT:")
    a.e("s_setprio 0")
    a.e("s_add_u32 s60, s60, 1"); a.e(f"s_add_u32 s55, s55, {LSTR}")
    a.e(f"s_add_u32 s62, s62, {LSTR}"); a.e("s_addc_u32 s63, s63, 0")
    a.e("s_branch LAYER")
    a.e("K_fin:")
    if os.environ.get("FIXT"):
        a.e("FX_l:"); a.e("s_sleep 4"); a.e("s_memrealtime s[64:65]"); a.e("s_waitcnt lgkmcnt(0)"); a.e("s_sub_u32 s64, s64, s101")
        if os.environ.get("FIX0"): a.e("s_add_u32 s64, s64, s101"); a.e("s_lshl_b32 s64, s64, 6"); a.e("s_sub_u32 s64, s64, s52"); a.e("s_lshr_b32 s64, s64, 6")
        a.e(f"s_cmp_lt_u32 s64, {os.environ['FIXT']}"); a.e("s_cbranch_scc1 FX_l")
    if STAMP:
        a.e("K_dump:")
        a.e("s_waitcnt vmcnt(0)")
        mstamp(a)
        a.srd(96, 4, 16 * MB, off=200 * MB)
        a.e("s_lshl_b32 s66, s2, 3"); a.e("s_add_u32 s66, s66, s30"); a.e("s_lshl_b32 s66, s66, 8")
        a.e("v_writelane_b32 v255, s95, 63")
        a.e("buffer_store_dword v255, v3, s[96:99], s66 offen")
        if os.environ.get("DBGOUT"):
            a.e("s_cmp_lg_u32 s66, 0"); a.e("s_cbranch_scc1 K_end")
            a.e(f"s_load_dwordx2 s[96:97], s[0:1], {D_DBG}"); a.e("s_mov_b32 s98, 64"); a.e("s_waitcnt lgkmcnt(0)")
            a.e("v_readlane_b32 s64, v255, 0"); a.e("v_mov_b32 v10, 0")
            for i, j in enumerate(eval(os.environ["DBGOUT"])):
                a.e(f"v_readlane_b32 s65, v255, {j}"); a.e("s_sub_u32 s65, s65, s64"); a.e("v_mov_b32 v11, s65")
                a.e(f"buffer_store_dword v11, v10, s[96:99], 0 offen offset:{8+4*i}")
    a.e("s_endpgm")
    emit_subs(a)
    a.e("K_end:")
    assert hi <= PV
    a.end_kernel(nm, 256)
    if TAB: tab_data(a)
    a.launches.append(f"; @launch grid=(256,1,1) block=(512,1,1) lds={LDS_TOTAL}")

HEADER = open("interleave_layers__ssm_conv_h3__mixer_s_mlp__prompt.s.ref").read().split("; Override launch")[0]
DOC = """; One persistent kernel, 256 workgroups x 8 waves (one per CU), generated by dev/gen24.py.
"""
def main(out):
    a = Asm()
    k_mega(a)
    DS = os.environ.get("DS")
    if DS:
        o = []
        for l in a.lines:
            o.append(l)
            if "buffer_store_dwordx" in l and "sc1" in l and any(k in l for k in DS.split(",")): o.append(l.replace(" sc1", ""))
        a.lines = o
    notes = {
        "K_pc:": "each workgroup reads 2 KB of this kernel's code so that later instruction fetches are served on chip",
        "KV_t0:": "k / v / tap loads of the u^T tile (64 times x 128 channels); workgroup 0 has posted the launch tag (a clock value) in d_debug",
        "HB_2:": "u^T tile out, arrival counters initialised to the tag, shifted filter copies into LDS, LayerNorm(q)",
        "CV_w:": "long causal convolution as Toeplitz MFMAs, one channel per wave",
        "FR_b:": "waves 4-7 beside the convolution: memory-locality vote (timed loads, layout choice only), weight column sums, weight touches",
        "LAYER:": "row stage: residual sums, LayerNorm chain, x + LN(x)*y for 8 rows per workgroup",
        "LOADERS:": "waves 4,5: activation tiles by LDS-DMA (after the producers' counters are complete)",
        "WLOAD:": "waves 6,7: weight tiles by LDS-DMA in their original layout (read back with transposing LDS loads)",
        "G4_last:": "last layer: the two K halves exchange half tiles, add the residuals and write the output",
    }
    o = []
    for l in a.lines:
        if l.strip() in notes: o.append("; ---- " + notes[l.strip()])
        if l.strip().startswith("s_sleep"): l += "    ; back-off inside a wait loop"
        o.append(l)
    a.lines = o
    open(out, "w").write(a.text(HEADER + DOC))
    print("nops added:", a.nops_added)

if __name__ == "__main__":
    main(sys.argv[1] if len(sys.argv) > 1 else "interleave_layers__ssm_conv_h3__mixer_s_mlp__prompt.s")
```

```python
import sys, os, math, struct
sys.path.insert(0, "dev")
from asmgen import Asm

KNAME = "interleave_layers__ssm_conv_h3__mixer_s_mlp__prompt_kernel"
MB = 1 << 20
UT, Y = 24 * MB, 28 * MB
CSP = {1: 20 * MB, 3: 20 * MB + 128 * 1024}
A_Q, A_K, A_V, A_SH, A_SSMK, A_SSMD, B_X, B_W1, B_W2, B_W3, B_W4, D_OUT, D_DBG, D_WS = [8 * i for i in range(14)]
STAMP = int(os.environ.get("STAMP", "0"))
def f32(x): return "0x%08x" % struct.unpack("<I", struct.pack("<f", x))[0]
GC1 = -2.0 * math.sqrt(2.0 / math.pi) * math.log2(math.e)
GC2 = GC1 * 0.044715

class VA:
    def __init__(self, start=1): self.n = start; self.hi = start
    def __call__(self, cnt=1, al=None):
        if al is None: al = 2 if cnt > 1 else 1
        self.n = (self.n + al - 1) // al * al
        r = self.n; self.n += cnt; self.hi = max(self.hi, self.n); return r
def vr(b, n): return f"v[{b}:{b+n-1}]" if n > 1 else f"v{b}"

def unpack(a, lo, hi, src):
    a.e(f"v_lshlrev_b32 v{lo}, 16, v{src}")
    a.e(f"v_and_b32 v{hi}, 0xffff0000, v{src}")
RND = int(os.environ.get("RND", "0"))
def round2(a, x, y, tmp):
    if not RND: return
    a.e(f"v_cvt_pk_bf16_f32 v{tmp}, v{x}, v{y}")
    unpack(a, x, y, tmp)
def round1(a, x):
    if not RND: return
    a.e(f"v_cvt_pk_bf16_f32 v{x}, v{x}, v{x}")
    a.e(f"v_lshlrev_b32 v{x}, 16, v{x}")
def red_g(a, x, t):
    a.e(f"v_mov_b32 v{t}, v{x}"); a.e(f"v_permlane16_swap_b32 v{x}, v{t}"); a.e(f"v_add_f32 v{x}, v{x}, v{t}")
    a.e(f"v_mov_b32 v{t}, v{x}"); a.e(f"v_permlane32_swap_b32 v{x}, v{t}"); a.e(f"v_add_f32 v{x}, v{x}, v{t}")
def ln_finish(a, mean, var, rs, s=None):
    round1(a, mean); round1(a, var)
    a.e(f"v_add_f32 v{var}, {f32(1e-5)}, v{var}"); round1(a, var)
    if not RND and s is None: a.e(f"v_rsq_f32 v{rs}, v{var}"); return
    a.e(f"v_sqrt_f32 v{var}, v{var}"); round1(a, var)
    if s is not None: a.e(f"v_mov_b32 v{s}, v{var}")
    a.e(f"v_rcp_f32 v{rs}, v{var}")


FLG = 22 * MB + int(os.environ.get("FOFF", "0"))
LB0, LSTR, GSTR = 32 * MB, 4 * MB, 16 * MB
oH2 = 4 * MB; oSM = oH2 + 1792 * 1024; oFP = 16384; oST2 = oSM + 32768; oLNS = oSM + 65536
oX3, oX1P, oP0, oP1 = [i * 512 * 1024 for i in range(4)]
DP = os.environ.get("DP", "rf12")
if "r" in DP: oP0, oP1 = oX3, oX1P
def mark(a, r, bit): a.e(f"v_or_b32 v{r}, 1, v{r}" if bit else f"v_and_b32 v{r}, -2, v{r}")
def data_poll(a, loads, regs, t, nap, first=0, canary=False):
    L = a.lab("dp"); D = a.lab("dq")
    if canary:
        a.e("s_bfm_b64 exec, 1, 63"); data_poll(a, loads, regs, t, nap, first); a.e("s_mov_b64 exec, -1"); first = 0
    a.e("s_mov_b32 s53, 0")
    if first: a.e(f"s_sleep {first}")
    a.e(f"{L}:")
    for x in loads: a.e(x)
    a.e("s_waitcnt vmcnt(0)")
    a.e(f"v_bitop3_b32 v{t}, v{regs[0]}, v{regs[1]}, v{regs[2]} bitop3:0x80"); a.e(f"v_bitop3_b32 v{t}, v{t}, v{regs[3]}, 1 bitop3:0x80")
    a.e(f"v_cmp_eq_u32 vcc, 0, v{t}"); a.e(f"s_cbranch_vccz {D}")
    a.e(f"s_sleep {nap}")
    a.e("s_add_u32 s53, s53, 1"); a.e("s_cmp_lt_u32 s53, s61"); a.e(f"s_cbranch_scc1 {L}")
    a.e("s_mov_b32 s61, 0")
    a.e(f"{D}:")
XSZ = 512 * 1024 - 8192; H2SZ = 1792 * 1024 - 8192
HSB = 160 * MB; PITCH = 65536 + int(os.environ.get("SKEW", "0")); oHS = None
def fso(stage): return int(stage * 256)
def spread(a, d, src):
    a.e(f"s_lshr_b32 s53, s{src}, 3"); a.e("s_lshl_b32 s53, s53, 14"); a.e(f"s_and_b32 s{d}, s{src}, 7"); a.e(f"s_lshl_b32 s{d}, s{d}, 10"); a.e(f"s_add_u32 s{d}, s{d}, s53")
ST_R, ST_G1, ST_G2, ST_G3, ST_G4, ST_R2, ST_G3B, ST_G3A = range(8); ST_G2S = 5.5
F_KVT, F_FRONT, F_CS = FLG, FLG + 32768, FLG + 49152
LDS_TOTAL = 163840
AUX = LDS_TOTAL - 4096
SC = "sc1"
PSLEEP = int(os.environ.get("PSLEEP", "5"))
ROT = int(os.environ.get("ROT", "1"))
PACE = int(os.environ.get("PACE", "8"))
PDEPTH = int(os.environ.get("PDEPTH", "1"))
WROT = int(os.environ.get("WROT", "1"))
PRIO = int(os.environ.get("PRIO", "0"))
STQ = int(os.environ.get("STQ", "12"))
CPRIO = int(os.environ.get("CPRIO", "0"))
FSLEEP = int(os.environ.get("FSLEEP", "3"))
CSPRIO = int(os.environ.get("CSPRIO", "1"))
NT = os.environ.get("NT", "nt"); HALO = int(os.environ.get("HALO", "0")); NTK = os.environ.get("NTK", "" if HALO else NT); NTH = os.environ.get("NTH", NT)
W1F = int(os.environ.get("W1F", "7"))
WSC = eval(os.environ.get("WSC", "{}"))
TLBW = int(os.environ.get("TLBW", "0"))
T12 = eval(os.environ.get("T12", "{}"))
T23 = eval(os.environ.get("T23", "()"))
OWN3 = int(os.environ.get("OWN3", "1"))
PUB2 = int(os.environ.get("PUB2", "4"))
MAP = int(os.environ.get("MAP", "4"))
HSPLIT = int(os.environ.get("HSPLIT", "2"))
W1G = int(os.environ.get("W1G", "9"))
PWAIT = int(os.environ.get("PWAIT", "8"))
DL = eval(os.environ.get("DL", "[2,4]"))
PACES = eval(os.environ.get("PACES", "{4:6}"))
C0PUB = int(os.environ.get("C0PUB", "6"))
LNSL = AUX + 1024

CFG = {1: dict(WM=4, WN=1, MT=2, NT=4, KBT=32, NS=16, NA=1.5, NW=16, A=oX3, W=B_W1, LDW=2048),
       2: dict(WM=4, WN=1, MT=2, NT=4, KBT=32, NS=16, NA=0, NW=16, A=oHS, W=B_W2, LDW=2048),
       3: dict(WM=2, WN=2, MT=4, NT=7, KBT=32, NS=16, NA=3, NW=3, A=oX1P, W=B_W3, LDW=7168, NPRE=2, WR=1, S0=2, WB=73728),
       4: dict(WM=2, WN=2, MT=4, NT=4, KBT=112, NS=28, NA=3, NW=6, A=oH2, W=B_W4, LDW=2048)}
for w, d in eval(os.environ.get("CFG", "{}")).items(): CFG[w].update(d)
for c in CFG.values():
    c.setdefault("NPRE", c["NW"]); c.setdefault("APRE", min(c["NA"], 3)); c.setdefault("WR", 1)
    c["TN16"] = c["WN"] * c["NT"]; c["STB"] = c["TN16"] * 2048; c.setdefault("WB", int(c["NA"] * 16384)); c.setdefault("S0", 0)
    c["RB"] = c["TN16"] * 32
    assert c["WB"] + c["NW"] * c["STB"] <= AUX
NX = 0
def nib(t): return sum(x << (4 * i) for i, x in enumerate(t))
CSO = {1: AUX + 3584, 3: AUX}

LW = AUX + 3072
def mstamp(a, force=False):
    if os.environ.get("JIT"):
        X = a.lab("jit")
        a.e("s_cselect_b32 s101, 1, 0"); a.e("s_memtime s[64:65]"); a.e("s_waitcnt lgkmcnt(0)"); a.e(f"s_and_b32 s64, s64, {os.environ['JIT']}"); a.e("s_cmp_lg_u32 s64, 0")
        a.e(f"s_cbranch_scc1 {X}"); a.e("s_sleep 50"); a.e(f"{X}:"); a.e("s_cmp_eq_u32 s101, 1")
        return
    if not STAMP or (os.environ.get("GST") and not force): return
    a.e(("s_memrealtime" if STAMP == 2 else "s_memtime") + " s[64:65]"); a.e("s_mov_b32 s100, m0"); a.e("s_mov_b32 m0, s66"); a.e("s_waitcnt lgkmcnt(0)")
    a.e("v_writelane_b32 v255, s64, m0"); a.e("s_mov_b32 m0, s100")
    a.e("s_add_u32 s66, s66, 1")

def lsrd(a, d, off, nbytes, prev=False):
    if prev:
        a.e(f"s_sub_u32 s{d}, s62, {LSTR - off:#x}"); a.e(f"s_subb_u32 s{d+1}, s63, 0")
        a.e(f"s_mov_b32 s{d+2}, {nbytes:#x}"); a.e(f"s_mov_b32 s{d+3}, 0x20000")
    else: a.srd(d, 62, nbytes, off=off)

def hs_srd(a, d):
    if "2" in DP: a.srd(d, 4, 128 * PITCH, off=HSB); return
    a.e("s_lshl_b32 s53, s60, 24"); a.e(f"s_add_u32 s53, s53, {HSB}")
    a.e(f"s_add_u32 s{d}, s4, s53"); a.e(f"s_addc_u32 s{d+1}, s5, 0"); a.e(f"s_mov_b32 s{d+2}, {128*PITCH}"); a.e(f"s_mov_b32 s{d+3}, 0x20000")

def group_off(a, d, m):
    a.e(f"s_lshr_b32 s53, s{m}, 3"); a.e("s_lshl_b32 s53, s53, 2"); a.e(f"s_and_b32 s54, s{m}, 3"); a.e("s_add_u32 s53, s53, s54"); a.e("s_lshl_b32 s53, s53, 24")
    a.e(f"s_lshr_b32 s54, s{m}, 2"); a.e("s_xor_b32 s54, s54, s94"); a.e("s_and_b32 s54, s54, 1"); a.e("s_lshl_b32 s54, s54, 13")
    a.e(f"s_add_u32 s{d}, s53, s54"); a.e(f"s_add_u32 s{d}, s{d}, {LB0}")

PV = 240
def poll_core(a, t, addrs, mask, extra=None, depth=1, cnt=0, nap=None):
    L = a.lab("poll"); D = a.lab("pok")
    n = len(addrs) + (1 if extra else 0)
    if depth > 1: t0 = t; regs = [PV + k * len(addrs) for k in range(depth)]; assert not extra and regs[-1] + len(addrs) <= 256
    else: regs = [t]
    def ld(r):
        for i, ad in enumerate(addrs): a.e(f"buffer_load_dword v{r+i}, v{ad}, s[56:59], 0 offen {SC}")
        if extra: a.e(extra[0])
    a.e("s_mov_b32 s53, 0"); a.e(f"s_add_u32 s54, s52, {cnt}")
    if mask != -1: a.e(f"s_bfm_b64 exec, {mask.bit_length()}, 0")
    for r in regs[:-1]: ld(r); a.e(f"s_sleep {PSLEEP}")
    a.e(f"{L}:")
    for k in range(depth):
        ld(regs[k - 1]); r = regs[k]
        a.e(f"s_waitcnt vmcnt({n*(depth-1)})")
        for i in range(len(addrs)): a.e(f"v_xor_b32 v{r+i}, s54, v{r+i}")
        for i in range(1, len(addrs)): a.e(f"v_or_b32 v{r}, v{r}, v{r+i}")
        if extra:
            for x in extra[1:]: a.e(x)
        a.e(f"v_cmp_eq_u32 vcc, 0, v{r}")
        a.e("s_cmp_eq_u64 vcc, exec"); a.e(f"s_cbranch_scc1 {D}")
        a.e(f"s_sleep {PSLEEP if nap is None else nap}")
    a.e("s_add_u32 s53, s53, 1"); a.e("s_cmp_lt_u32 s53, s61"); a.e(f"s_cbranch_scc1 {L}")
    a.e("s_mov_b32 s61, 0")
    a.e(f"{D}:")
    if mask != -1: a.e("s_mov_b64 exec, -1")

SPLIT = {ST_G1: "sign", ST_G3: "half", ST_G3A: "half", ST_G3B: "half"}
def flag_addr(a, r, stage, prev=False):
    so = fso(stage) - (LSTR if prev else 0)
    a.e(f"s_add_u32 s54, s55, {so & 0xffffffff:#x}")
    sp = SPLIT.get(stage)
    if sp == "half": a.e("s_lshl_b32 s53, s31, 7"); a.e("s_add_u32 s54, s54, s53")
    a.e(f"v_mov_b32 v{r}, s54")
    if sp == "sign":
        a.e("s_add_u32 s53, s54, 128"); a.e(f"v_writelane_b32 v{r}, s53, 1")
        a.e("s_add_u32 s53, s53, s93"); a.e(f"v_writelane_b32 v{r}, s53, 3")
        a.e("s_add_u32 s53, s54, s92"); a.e(f"v_writelane_b32 v{r}, s53, 2")
        return 0xf, 8
    return 1, 8 if sp else 16
def own_wait(a, stage, prev, t):
    if not PWAIT or stage == ST_R: return
    k = {ST_G1: 1, ST_G2: 2, ST_G4: 3}[stage] - (3 if prev else 0)
    a.e(f"s_mul_i32 s54, s60, {2 if 'r' in DP else 3}"); a.e(f"s_add_u32 s54, s54, {k}")
    lds_spin(a, LW + 56, "s54", t, nap=PWAIT)
def flag_try(a, r, ad):
    a.e("s_mov_b64 exec, 1"); a.e(f"buffer_load_dword v{r}, v{ad}, s[56:59], 0 offen {SC}"); a.e("s_mov_b64 exec, -1")
def flag_check(a, r, ad, cnt):
    D = a.lab("fok")
    a.e(f"v_readfirstlane_b32 s53, v{r}"); a.e(f"s_add_u32 s54, s52, {cnt}"); a.e("s_cmp_eq_u32 s53, s54"); a.e(f"s_cbranch_scc1 {D}")
    poll_core(a, r, [ad], 1, cnt=cnt)
    a.e(f"{D}:")

def poll(a, stage, t, prev=False):
    D = a.lab("pdone")
    a.e("s_cmp_lg_u32 s30, 4"); a.e(f"s_cbranch_scc1 {D}")
    if stage == ST_G1 and "2" in DP: a.e("s_cmp_lg_u32 s60, 0"); a.e(f"s_cbranch_scc1 {D}")
    own_wait(a, stage, prev, t)
    mask, cnt = flag_addr(a, t + 1, stage, prev)
    poll_core(a, t, [t + 1], mask, depth=PDEPTH, cnt=cnt)
    a.e(f"{D}:")
    if stage != ST_G4: mstamp(a)
    a.e("s_barrier")

def publish(a, stage, nw, t, off=None, wait=0, ctr=None, flag=False):
    D = a.lab("pub")
    mark = PWAIT and off is None and stage in (ST_G1, ST_G2, ST_G4)
    if off is None:
        a.e(f"s_add_u32 s53, s55, {fso(stage)}"); off = 53
        sp = SPLIT.get(stage)
        if sp == "half": a.e("s_lshl_b32 s54, s31, 7"); a.e("s_add_u32 s53, s53, s54")
        if sp == "sign": a.e("s_and_b32 s54, s29, 4"); a.e("s_lshl_b32 s54, s54, 5"); a.e("s_add_u32 s53, s53, s54")
    a.e(f"v_mov_b32 v{t}, 1"); a.e(f"v_mov_b32 v{t+1}, {LW + (ctr if ctr is not None else 4 if nw == 8 else 0)}"); a.e(f"v_mov_b32 v{t+3}, 0")
    a.e("s_mov_b64 exec, 1")
    if wait is not None: a.e(f"s_waitcnt vmcnt({wait})")
    if nw > 1:
        a.e(f"ds_add_rtn_u32 v{t+2}, v{t+1}, v{t}")
        if flag: a.e(f"v_mov_b32 v{t+1}, s52")
        a.e("s_waitcnt lgkmcnt(0)")
        a.e(f"v_readfirstlane_b32 s54, v{t+2}")
        a.e(f"s_and_b32 s54, s54, {nw-1}"); a.e(f"s_cmp_lg_u32 s54, {nw-1}"); a.e(f"s_cbranch_scc1 {D}")
    if flag: a.e(f"buffer_store_dword v{t+1}, v{t+3}, s[56:59], s{off} offen {SC}")
    else: a.e(f"buffer_atomic_add v{t}, v{t+3}, s[56:59], s{off} offen {SC}")
    if stage == ST_R and not flag:
        a.e("s_cmp_lg_u32 s60, 0"); a.e(f"s_cbranch_scc1 {D}")
        a.e("s_lshl_b32 s53, s29, 7"); a.e(f"s_add_u32 s53, s53, {F_CS}")
        a.e(f"buffer_atomic_add v{t}, v{t+3}, s[56:59], s53 offen {SC}")
    if mark: a.e(f"v_mov_b32 v{t+1}, {LW+56}"); a.e(f"ds_add_u32 v{t+1}, v{t}")
    a.e(f"{D}:")
    a.e("s_mov_b64 exec, -1")

def lds_spin(a, addr, target, t, dst=53, nap=False):
    L = a.lab("spin")
    a.e(f"v_mov_b32 v{t}, {addr}")
    a.e(f"{L}:")
    if nap: a.e(f"s_sleep {int(nap)}")
    a.e(f"ds_read_b32 v{t+1}, v{t}"); a.e("s_waitcnt lgkmcnt(0)"); a.e(f"v_readfirstlane_b32 s{dst}, v{t+1}")
    a.e(f"s_cmp_ge_u32 s{dst}, {target}"); a.e(f"s_cbranch_scc0 {L}")
def lds_set(a, addr, val, t):
    a.e(f"v_mov_b32 v{t}, {addr}"); a.e(f"v_mov_b32 v{t+1}, {val}")
    a.e("s_waitcnt lgkmcnt(0)"); a.e(f"ds_write_b32 v{t}, v{t+1}")
def lbar(a, k, t):
    a.e(f"v_mov_b32 v{t}, {LW+8}"); a.e(f"v_mov_b32 v{t+1}, 1")
    a.e("s_waitcnt lgkmcnt(0)")
    a.e("s_mov_b64 exec, 1"); a.e(f"ds_add_u32 v{t}, v{t+1}"); a.e("s_mov_b64 exec, -1")
    lds_spin(a, LW + 8, 4 * k, t)

def gelu4(a, X, t, c1, c2):
    P = [(X, t), (X + 2, t + 2)]
    for x, u in P: a.e(f"v_pk_mul_f32 {vr(u,2)}, {vr(x,2)}, {vr(x,2)}")
    for x, u in P: a.e(f"v_pk_fma_f32 {vr(u,2)}, {vr(u,2)}, {vr(c2,2)}, {vr(c1,2)}")
    for x, u in P: a.e(f"v_pk_mul_f32 {vr(u,2)}, {vr(u,2)}, {vr(x,2)}")
    for i in range(4): a.e(f"v_exp_f32 v{t+i}, v{t+i}")
    for x, u in P: a.e(f"v_pk_add_f32 {vr(u,2)}, {vr(u,2)}, 1.0 op_sel_hi:[1,0]")
    for i in range(4): a.e(f"v_rcp_f32 v{t+i}, v{t+i}")
    for x, u in P: a.e(f"v_pk_mul_f32 {vr(x,2)}, {vr(x,2)}, {vr(u,2)}")

W2EARLY = int(os.environ.get("W2EARLY", "1")); QLATE = int(os.environ.get("QLATE", "0"))
TOUCH2 = [(A_Q, 4 * MB)] + ([] if W2EARLY else [(B_W2, 2 * MB)])
CODEPF = int(os.environ.get("CODEPF", "1")); NVOTE = 255; NSAMP = int(os.environ.get("NSAMP", "2"))
W4POS = os.environ.get("W4POS", "3C")
HSTR = 4160; CHB = 24576; UOFF = 4 * HSTR; US = 96
KVS = 4 * CHB

KV = dict(cq=6, tg=7, t=8, ro=9, wo=16, pt=18, kr=22, vv=36, w=44, d=52, hoff=70, tag=76, zz=78)
def front_loads(a):
    cq, tg, t, ro, wo, kr, vv, w = [KV[k] for k in "cq tg t ro wo kr vv w".split()]
    a.e(f"v_and_b32 v{cq}, 31, v0"); a.e(f"v_lshrrev_b32 v{tg}, 5, v0")
    a.e("s_and_b32 s34, s2, 7"); a.e("s_lshr_b32 s35, s2, 3")
    a.e("s_lshl_b32 s36, s35, 17"); a.e("s_lshl_b32 s37, s34, 8"); a.e("s_add_u32 s36, s36, s37")
    a.e(f"v_lshlrev_b32 v{t}, 13, v{tg}"); a.e(f"v_lshl_add_u32 v{t}, v{cq}, 3, v{t}"); a.e(f"v_add_u32 v{ro+3}, s36, v{t}")
    a.e(f"v_add_u32 v{ro+5}, 4096, v{ro+3}")
    a.e(f"s_mov_b32 s18, {4*MB}"); a.e("s_mov_b32 s19, 0x20000"); a.e("s_mov_b32 s22, s18"); a.e("s_mov_b32 s23, s19")
    a.e("s_waitcnt lgkmcnt(0)")
    tag, zz = KV["tag"], KV["zz"]
    a.e("s_mov_b32 s86, 256"); a.e("s_mov_b32 s87, 0x20000"); a.e(f"v_mov_b32 v{zz}, 0")
    a.e("s_lshl_b32 s45, s2, 3"); a.e("s_add_u32 s45, s45, s30"); a.e("s_cmp_lg_u32 s45, 4"); a.e("s_cbranch_scc1 KV_t0")
    a.e("s_lshl_b32 s44, s46, 6"); a.e("s_or_b32 s44, s44, 1"); a.e(f"v_mov_b32 v{tag}, s44")
    a.e("s_mov_b64 exec, 1"); a.e(f"buffer_store_dword v{tag}, v{zz}, s[84:87], 0 offen {SC}"); a.e("s_mov_b64 exec, -1")
    a.e("KV_t0:")
    a.e("s_mov_b64 s[16:17], s[8:9]"); a.e("s_mov_b64 s[20:21], s[10:11]")
    for i in range(4): a.e(f"buffer_load_dwordx2 {vr(kr+2*(i+3),2)}, v{ro+3+(i&2)}, s[16:19], 0 offen offset:{2048*(i&1)} {NTK}")
    for i in range(4): a.e(f"buffer_load_dwordx2 {vr(vv+2*i,2)}, v{ro+3+(i&2)}, s[20:23], 0 offen offset:{2048*(i&1)} {NT}")
    for i in range(3): a.e(f"v_subrev_u32 v{ro+i}, {2048*(3-i)}, v{ro+3}")
    a.e("s_lshl_b32 s37, s34, 10"); a.e(f"v_lshlrev_b32 v{wo}, 5, v{cq}"); a.e(f"v_add_u32 v{wo}, s37, v{wo}")
    a.srd(24, 12, 8192)
    XP = os.environ.get("XP", "g")
    for i in range(0 if "t" in XP else 2): a.e(f"buffer_load_dwordx4 {vr(w+4*i,4)}, v{wo}, s[24:27], 0 offen offset:{16*i}")
    if "g" in XP:
        a.e("s_cmp_lg_u32 s30, 4"); a.e("s_cbranch_scc1 KV_t2")
        a.e(f"buffer_load_dword v{tag}, v{zz}, s[84:87], 0 offen {SC}")
        a.e("KV_t2:")
    if "h" in XP: return
    if HALO:
        a.e("s_cmp_lg_u32 s30, 0"); a.e("s_cbranch_scc1 KV_h0"); a.e("s_bfm_b64 exec, 32, 0")
    for i in range(3): a.e(f"buffer_load_dwordx2 {vr(kr+2*i,2)}, v{ro+i}, s[16:19], 0 offen {NTK}")
    if HALO: a.e("s_mov_b64 exec, -1"); a.e("KV_h0:")

def probe_base(a):
    a.e("s_and_b32 s42, s2, 31"); a.e("s_lshl_b32 s42, s42, 8"); a.e("s_lshr_b32 s43, s2, 5"); a.e("s_lshl_b32 s43, s43, 14"); a.e("s_add_u32 s42, s42, s43")
    a.e(f"s_add_u32 s42, s42, {LB0 + oSM + 131072}")
def front_arrive(a, wait):
    D = a.lab("fa"); t = 6
    a.e("s_and_b32 s36, s2, 7"); a.e("s_lshl_b32 s36, s36, 7"); a.e(f"s_add_u32 s36, s36, {F_FRONT}")
    a.e(f"v_mov_b32 v{t}, 1"); a.e(f"v_mov_b32 v{t+1}, {LW+4}"); a.e(f"v_lshlrev_b32 v{t+3}, 10, v1")
    a.e("s_mov_b64 exec, 1")
    if wait: a.e("s_waitcnt vmcnt(0)")
    a.e("s_waitcnt lgkmcnt(0)")
    a.e(f"ds_add_rtn_u32 v{t+2}, v{t+1}, v{t}"); a.e(f"ds_read_b32 v{t+4}, v{t+1} offset:28")
    a.e("s_waitcnt lgkmcnt(0)")
    a.e(f"v_readfirstlane_b32 s54, v{t+2}"); a.e(f"v_readfirstlane_b32 s53, v{t+4}")
    a.e("s_cmp_lg_u32 s54, 15"); a.e(f"s_cbranch_scc1 {D}")
    a.e("s_mov_b64 exec, 0xffff"); a.e("s_or_b32 s53, s53, 1"); a.e(f"v_mov_b32 v{t}, s53")
    a.e(f"buffer_atomic_add v{t}, v{t+3}, s[56:59], s36 offen {SC}")
    a.e(f"{D}:"); a.e("s_mov_b64 exec, -1")
def front_a(a):
    cq, tg, t, pt, kr, vv, w, d, hoff, tag, zz = [KV[k] for k in "cq tg t pt kr vv w d hoff tag zz".split()]
    v = VA(80)
    a.e("s_and_b32 s41, s30, 3"); chan_setup(a, 41)
    a.e("s_lshr_b32 s36, s39, 1"); a.e("s_lshl_b32 s36, s36, 2"); a.e("s_load_dword s98, s[96:97], s36")
    a.e("s_lshl_b32 s36, s39, 12")
    a.e("s_add_u32 s12, s14, s36"); a.e("s_addc_u32 s13, s15, 0"); a.e("s_mov_b32 s14, 4096"); a.e("s_mov_b32 s15, 0x20000")
    a.e("s_lshr_b32 s45, s30, 2"); a.e("s_lshl_b32 s45, s45, 11")
    for it in range(3):
        if it < 2: a.e(f"s_add_u32 s36, s45, {(1024*it - 64) & 0xffffffff:#x}")
        else: a.e(f"s_mov_b32 s36, {4096 - 64}")
        a.e(f"v_add_u32 v{hoff+2*it}, s36, v2"); a.e(f"v_add_u32 v{hoff+2*it+1}, 16, v{hoff+2*it}")
    a.e("s_and_b32 s34, s2, 7"); a.e("s_lshr_b32 s35, s2, 3")
    z = v(4, 4); la = v(); t2 = v(); hw = v()
    for i in range(4): a.e(f"v_mov_b32 v{z+i}, 0")
    a.e(f"v_add_u32 v{hw}, s40, v2")
    a.e(f"ds_write_b128 v{hw}, {vr(z,4)} offset:{UOFF+64*US}")
    a.e(f"s_bfm_b64 exec, {(15*US - 1024)//16}, 0"); a.e(f"ds_write_b128 v{hw}, {vr(z,4)} offset:{UOFF+64*US+1024}"); a.e("s_mov_b64 exec, -1")
    a.e(f"v_lshlrev_b32 v{t}, 2, v{tg}"); a.e(f"v_sub_u32 v{t}, 60, v{t}")
    a.e(f"v_lshrrev_b32 v{t2}, 3, v{t}"); a.e(f"v_bfe_u32 v{la}, v{cq}, 1, 3"); a.e(f"v_xor_b32 v{t2}, v{t2}, v{la}"); a.e(f"v_lshlrev_b32 v{t2}, 4, v{t2}")
    a.e(f"v_and_b32 v{t}, 7, v{t}"); a.e(f"v_lshl_add_u32 v{t2}, v{t}, 1, v{t2}")
    a.e(f"v_lshl_add_u32 v{la}, v{cq}, 9, v{t2}"); a.e(f"v_add_u32 v{la}, {KVS}, v{la}")
    wf = v(8, 2); kf = v(14, 2); vf = v(8, 2); ks = v(8, 2); pr = v(8, 2); o = v(8, 4); tm = v(4, 1)
    a.e("s_waitcnt vmcnt(0)")
    if HALO:
        for i in range(3): a.e(f"buffer_load_dwordx2 {vr(kr+2*i,2)}, v{KV['ro']+i}, s[16:19], 0 offen {NTK}")
        if HALO == 1: a.e("s_waitcnt vmcnt(0)")
    a.e("s_cmp_lg_u32 s30, 4"); a.e("s_cbranch_scc1 KV_t1")
    if "g" not in os.environ.get("XP", "g"): a.e(f"buffer_load_dword v{tag}, v{zz}, s[84:87], 0 offen {SC}")
    a.e("KV_t1:")
    for it in range(3):
        a.e(f"buffer_load_dwordx4 {vr(d+6*it,4)}, v{hoff+2*it}, s[12:15], 0 offen {NTH}")
        a.e(f"buffer_load_dwordx2 {vr(d+6*it+4,2)}, v{hoff+2*it+1}, s[12:15], 0 offen {NTH}")
    if HALO == 2: a.e("s_waitcnt vmcnt(10)")
    mstamp(a)
    for dd in range(2):
        for c in range(2):
            unpack(a, wf + 0 + c, wf + 2 + c, w + 2 * (2 * dd + c)); unpack(a, wf + 4 + c, wf + 6 + c, w + 2 * (2 * dd + c) + 1)
        for i in range(7): unpack(a, kf + 2 * i, kf + 2 * i + 1, kr + 2 * i + dd)
        for i in range(4): unpack(a, vf + 2 * i, vf + 2 * i + 1, vv + 2 * i + dd)
        def rnd(base):
            for i in range(4): a.e(f"v_cvt_pk_bf16_f32 v{tm+i}, v{base+2*i}, v{base+2*i+1}")
            for i in range(4): unpack(a, base + 2 * i, base + 2 * i + 1, tm + i)
        for i in range(4): a.e(f"v_pk_mul_f32 {vr(ks+2*i,2)}, {vr(kf+2*i,2)}, {vr(wf+6,2)}")
        if RND: rnd(ks)
        for j in range(1, 4):
            if not RND:
                for i in range(4): a.e(f"v_pk_fma_f32 {vr(ks+2*i,2)}, {vr(kf+2*(i+j),2)}, {vr(wf+6-2*j,2)}, {vr(ks+2*i,2)}")
                continue
            for i in range(4): a.e(f"v_pk_mul_f32 {vr(pr+2*i,2)}, {vr(kf+2*(i+j),2)}, {vr(wf+6-2*j,2)}")
            rnd(pr)
            for i in range(4): a.e(f"v_pk_add_f32 {vr(ks+2*i,2)}, {vr(ks+2*i,2)}, {vr(pr+2*i,2)}")
            rnd(ks)
        for i in range(4): a.e(f"v_pk_mul_f32 {vr(ks+2*i,2)}, {vr(ks+2*i,2)}, {vr(vf+2*i,2)}")
        for c in range(2):
            e = 2 * dd + c
            a.e(f"v_cvt_pk_bf16_f32 v{o+2*e}, v{ks+6+c}, v{ks+4+c}"); a.e(f"v_cvt_pk_bf16_f32 v{o+2*e+1}, v{ks+2+c}, v{ks+c}")
            a.e(f"ds_write_b64 v{la}, {vr(o+2*e,2)} offset:{e*128}")
    a.e("s_cmp_lg_u32 s30, 4"); a.e("s_cbranch_scc1 HB_2")
    a.e(f"v_add_u32 v{pt}, {LW}, v3"); a.e(f"ds_write_b32 v{pt}, v{zz}")
    a.e("s_mov_b32 s53, 0")
    a.e("s_waitcnt vmcnt(6)")
    a.e("HB_p:")
    a.e(f"v_readfirstlane_b32 s52, v{tag}"); a.e("s_cmp_eq_u32 s52, 0"); a.e("s_cbranch_scc1 HB_r")
    a.e("s_cmp_ge_u32 s53, 400"); a.e("s_cbranch_scc1 HB_q")
    a.e("s_add_u32 s54, s46, 8192"); a.e("s_lshl_b32 s54, s54, 6"); a.e("s_sub_u32 s54, s54, s52"); a.e(f"s_cmp_lt_u32 s54, {12288*64}"); a.e("s_cbranch_scc1 HB_q")
    a.e("HB_r:")
    a.e(f"buffer_load_dword v{tag}, v{zz}, s[84:87], 0 offen {SC}"); a.e("s_waitcnt vmcnt(0)")
    a.e("s_add_u32 s53, s53, 1"); a.e("s_cmp_lt_u32 s53, s61"); a.e("s_cbranch_scc1 HB_p")
    a.e("s_mov_b32 s52, 1"); a.e("s_mov_b32 s61, 0")
    a.e("HB_q:")
    lds_set(a, LW + 12, "s52", pt)
    a.e("HB_2:")
    a.srd(16, 4, 8 * GSTR, off=LB0 + oX3)
    ra = v(); go = v(); ob = v(8, 4)
    a.e(f"v_lshrrev_b32 v{t}, 3, v0"); a.e(f"v_and_b32 v{t2}, 7, v0")
    a.e(f"v_lshlrev_b32 v{go}, 12, v{t}"); a.e(f"v_lshl_add_u32 v{go}, v{t2}, 4, v{go}")
    a.e("s_lshl_b32 s36, s34, 24"); a.e("s_sub_u32 s37, 31, s35"); a.e("s_lshl_b32 s37, s37, 7"); a.e("s_add_u32 s36, s36, s37")
    a.e(f"s_add_u32 s37, s36, {64*4096}")
    a.e(f"v_lshrrev_b32 v{ra}, 3, v{t}"); a.e(f"v_xor_b32 v{ra}, v{ra}, v{t2}"); a.e(f"v_lshlrev_b32 v{ra}, 4, v{ra}"); a.e(f"v_lshl_add_u32 v{ra}, v{t}, 7, v{ra}")
    a.e(f"v_add_u32 v{ra}, {KVS}, v{ra}"); a.e(f"v_mov_b32 v{pt}, {LW+12}")
    a.e("s_waitcnt lgkmcnt(0)"); a.e("s_barrier")
    for i in range(2): a.e(f"ds_read_b128 {vr(ob+4*i,4)}, v{ra} offset:{i*8192}")
    a.e(f"ds_read_b32 v{pt+1}, v{pt}")
    for i in range(2):
        a.e(f"s_waitcnt lgkmcnt({2-i})")
        if "1" in DP: mark(a, ob + 4 * i, 1)
        a.e(f"buffer_store_dwordx4 {vr(ob+4*i,4)}, v{go}, s[16:19], s{36+i} offen {SC}")
    a.e("s_waitcnt lgkmcnt(0)"); a.e(f"v_readfirstlane_b32 s52, v{pt+1}")
    a.e("s_cmp_lg_u32 s30, 0"); a.e("s_cbranch_scc1 KV_ni"); a.e("s_cmp_ge_u32 s35, 16"); a.e("s_cbranch_scc1 KV_ni")
    a.e(f"v_mov_b32 v{t}, s52")
    a.e("s_lshl_b32 s37, s34, 7"); a.e("s_lshl_b32 s53, s35, 10"); a.e("s_add_u32 s37, s37, s53"); a.e(f"s_add_u32 s37, s37, {F_FRONT}")
    a.e("s_mov_b64 exec, 1"); a.e(f"buffer_store_dword v{t}, v{zz}, s[56:59], s37 offen {SC}"); a.e("s_mov_b64 exec, -1")
    a.e("KV_ni:")
    a.e(f"s_cmp_ge_u32 s2, {NVOTE}"); a.e("s_cbranch_scc1 KV_n3"); a.e("s_cmp_lg_u32 s30, 5"); a.e("s_cbranch_scc1 KV_n3")
    probe_base(a)
    a.e(f"v_and_b32 v{t}, 1, v1"); a.e(f"v_lshlrev_b32 v{t}, 13, v{t}"); a.e(f"v_lshrrev_b32 v{t2}, 1, v1"); a.e(f"v_lshl_add_u32 v{t}, v{t2}, 7, v{t}")
    a.e("s_mov_b64 exec, 0xf"); a.e(f"buffer_store_dword v{t}, v{t}, s[56:59], s42 offen {SC}"); a.e("s_mov_b64 exec, -1")
    a.e("KV_n3:")
    def pubk():
        a.e("s_lshl_b32 s36, s34, 5"); a.e("s_add_u32 s36, s36, s35"); a.e("s_lshl_b32 s36, s36, 7"); a.e(f"s_add_u32 s36, s36, {F_KVT}")
        mstamp(a)
        publish(a, 0, 8, pt, off=36, flag=True)
        mstamp(a)
    HF = int(os.environ.get("HF", "0"))
    if not HF: pubk()
    else: a.e("s_waitcnt vmcnt(2)")
    cc = wf; hw2 = v()
    a.e(f"v_add_u32 v{hw2}, s45, v{hw}")
    for it in range(3):
        D = d + 6 * it; c0 = cc + 12 * it; c1 = c0 + 4; c2 = c0 + 8
        for k in range(4):
            a.e(f"v_alignbit_b32 v{c0+k}, v{D+k+1}, v{D+k}, 16")
            a.e(f"v_mov_b32 v{c1+k}, v{D+k+1}")
            a.e(f"v_alignbit_b32 v{c2+k}, v{D+k+2}, v{D+k+1}, 16")
        if it == 2: a.e("s_mov_b64 exec, 0xf")
        ad, o0 = (hw2, 1024 * it) if it < 2 else (hw, 4096)
        a.e(f"ds_write_b128 v{ad}, {vr(c0,4)} offset:{o0}")
        a.e(f"ds_write_b128 v{ad}, {vr(c1,4)} offset:{HSTR+o0}")
        a.e(f"ds_write_b128 v{ad}, {vr(c2,4)} offset:{2*HSTR+o0}")
        a.e(f"ds_write_b128 v{ad}, {vr(D+2,4)} offset:{3*HSTR+o0}")
        if it == 2: a.e("s_mov_b64 exec, -1")
    if HF: pubk()
    assert v.hi <= 176
    a.e("s_waitcnt lgkmcnt(0)"); a.e("s_barrier")
def load_q(a):
    a.srd(8, 6, 4 * MB)
    for j in range(4): a.e(f"buffer_load_dwordx2 {vr(RXA+2*j,2)}, v{RRO}, s[8:11], 0 offen offset:{128*(j>>1) + 32*(j&1)} {NTH}")
def chan_setup(a, wsg):
    a.e("s_and_b32 s38, s2, 7"); a.e("s_lshl_b32 s38, s38, 5"); a.e("s_lshr_b32 s39, s2, 3"); a.e("s_add_u32 s38, s38, s39")
    a.e("s_lshl_b32 s39, s38, 2"); a.e(f"s_add_u32 s39, s39, s{wsg}")
    a.e(f"s_mul_i32 s40, s{wsg}, {CHB}")

def touch(a, ka, nbytes, r):
    n = nbytes // 1024 // 512
    a.e(f"s_load_dwordx2 s[48:49], s[0:1], {ka}")
    a.e("s_lshl_b32 s45, s2, 1"); a.e("s_and_b32 s50, s30, 1"); a.e("s_add_u32 s45, s45, s50"); a.e(f"s_mul_i32 s45, s45, {n*1024}")
    a.e(f"s_mov_b32 s50, {nbytes}"); a.e("s_mov_b32 s51, 0x20000")
    a.e("s_waitcnt lgkmcnt(0)")
    for i in range(n):
        if i and i % 4 == 0: a.e("s_add_u32 s45, s45, 4096")
        a.e(f"buffer_load_dwordx4 {vr(r,4)}, v2, s[48:51], s45 offen offset:{(i&3)*1024}")
    return n

def w2_warm(a):
    a.e("s_mov_b64 s[48:49], s[70:71]"); a.e(f"s_mov_b32 s50, {2*MB}"); a.e("s_mov_b32 s51, 0x20000")
    a.e("s_and_b32 s45, s28, 3"); a.e("s_lshl_b32 s45, s45, 1"); a.e("s_and_b32 s46, s30, 1"); a.e("s_add_u32 s45, s45, s46"); a.e("s_lshl_b32 s45, s45, 18")
    a.e("s_lshl_b32 s46, s29, 7"); a.e("s_add_u32 s45, s45, s46"); a.e("v_lshlrev_b32 v245, 11, v1")
    a.e("buffer_load_dword v244, v245, s[48:51], s45 offen"); a.e(f"s_add_u32 s45, s45, {64*2048}"); a.e("buffer_load_dword v246, v245, s[48:51], s45 offen")
def cs_load(a, which, slot):
    w_setup(a, which, pre=False)
    a.e(f"s_mov_b32 s42, {slot}"); a.e("s_mov_b32 s44, s28")
    w_issue(a, which, direct=True)
CSEL, CFR, CAD, CACC, CSO_ = 16, 72, 144, 156, 164
def cs_prep(a, S1, S3):
    a.e(f"v_and_b32 v{CSO_}, 15, v1"); a.e(f"v_mov_b32 v{CSO_+1}, 0x3f803f80")
    for T in range(14):
        a.e(f"v_cmp_eq_u32 vcc, {T}, v{CSO_}")
        for e in range(4): a.e(f"v_cndmask_b32 v{CSEL+4*T+e}, 0, v{CSO_+1}, vcc")
    pos = {}
    for which, slot, r0, halves in ((1, S1, CAD, 1), (3, S3, CAD + 4, 2)):
        c = CFG[which]
        for hf in range(halves):
            a.e(f"s_mov_b32 s35, {hf}")
            nr, pos[which] = w_bases(a, which, r0 + 2 * hf, 35, c["TN16"] // halves, WV + 8, WV + 9)
            a.e("s_and_b32 s35, s30, 1"); a.e(f"s_mul_i32 s35, s35, {32*c['RB']}"); a.e(f"s_add_u32 s35, s35, {slot}")
            for i in range(nr): a.e(f"v_add_u32 v{r0+2*hf+i}, s35, v{r0+2*hf+i}")
    for i in range(8): a.e(f"v_mov_b32 v{CACC+i}, 0")
    a.e(f"v_lshrrev_b32 v{CSO_+2}, 4, v1"); a.e(f"v_lshlrev_b32 v{CSO_+2}, 4, v{CSO_+2}"); a.e(f"v_lshl_add_u32 v{CSO_+2}, v{CSO_}, 6, v{CSO_+2}")
    a.e(f"v_mov_b32 v{CSO_+1}, 0x7f000000")
    for k, n in ((3, 4), (4, 14)):
        a.e(f"v_cmp_gt_u32 vcc, {n}, v{CSO_}"); a.e(f"v_cndmask_b32 v{CSO_+k}, v{CSO_+1}, v{CSO_+2}, vcc")
    return pos
def cs_sum(a, which, pos):
    c = CFG[which]; ntl = c["TN16"]; N = c["LDW"] // 2
    F = CFR + (0 if which == 3 else 56); A = CACC + (0 if which == 3 else 4)
    for T in range(ntl):
        hf, nt = (T // 7, T % 7) if which == 3 else (0, T)
        for h in range(2):
            r, imm = pos[which](nt, 0, h)
            a.e(f"ds_read_b64_tr_b16 {vr(F+4*T+2*h,2)}, v{(CAD + 4 if which == 3 else CAD) + 2*hf + r} offset:{imm}")
    a.srd(20, 4, 32 * N * 4, off=CSP[which])
    a.e("s_lshl_b32 s35, s28, 1"); a.e("s_and_b32 s36, s30, 1"); a.e("s_add_u32 s35, s35, s36"); a.e(f"s_mul_i32 s35, s35, {N*4}")
    a.e(f"s_mul_i32 s36, s29, {ntl*64}"); a.e("s_add_u32 s35, s35, s36")
    a.e("s_waitcnt lgkmcnt(0)")
    for T in range(ntl): a.e(f"v_mfma_f32_16x16x32_bf16 {vr(A,4)}, {vr(F+4*T,4)}, {vr(CSEL+4*T,4)}, {vr(A,4)}")
    a.e(f"buffer_store_dwordx4 {vr(A,4)}, v{CSO_ + (4 if which == 3 else 3)}, s[20:23], s35 offen {SC}")

NOCS3 = int(os.environ.get("NOCS3", "0")); STO = os.environ.get("STOUCH", "")
def stouch(a, which, gran, nw):
    X = a.lab("st"); L = a.lab("sl"); n = 28672 // nw
    a.e("s_cmp_lg_u32 s60, 0"); a.e(f"s_cbranch_scc1 {X}")
    a.e(f"s_mul_i32 s36, s2, 28672"); a.e(f"s_and_b32 s37, s30, {nw-1}"); a.e(f"s_mul_i32 s37, s37, {n}"); a.e("s_add_u32 s36, s36, s37")
    a.e(f"s_add_u32 s34, s{66+2*which}, s36"); a.e(f"s_addc_u32 s35, s{67+2*which}, 0"); a.e("s_mov_b32 s36, 0")
    a.e(f"{L}:")
    for i in range(14): a.e(f"s_load_dword s37, s[34:35], {i*gran}")
    a.e(f"s_add_u32 s34, s34, {14*gran}"); a.e("s_addc_u32 s35, s35, 0"); a.e("s_add_u32 s36, s36, 1"); a.e(f"s_cmp_lt_u32 s36, {n // (14*gran)}"); a.e(f"s_cbranch_scc1 {L}")
    a.e("s_waitcnt lgkmcnt(0)")
    a.e(f"{X}:")
SB = eval(os.environ.get("SB", "(0,0,0)"))
SG = eval(os.environ.get("SG", "(0,0,0,0)"))
def sg(a, n):
    if not n: return
    X = a.lab("st"); L = a.lab("sl")
    a.e("s_cmp_lg_u32 s60, 0"); a.e(f"s_cbranch_scc1 {X}"); a.e("s_mov_b32 s36, 0"); a.e(f"{L}:"); sb(a, 14)
    a.e("s_add_u32 s36, s36, 1"); a.e(f"s_cmp_lt_u32 s36, {n}"); a.e(f"s_cbranch_scc1 {L}"); a.e("s_waitcnt lgkmcnt(0)"); a.e(f"{X}:"); mstamp(a)
def sb_init(a):
    nw = 2 if sum(SG) else 4
    a.e(f"s_mul_i32 s36, s2, 28672"); a.e(f"s_and_b32 s37, s30, {nw-1}"); a.e(f"s_mul_i32 s37, s37, {28672//nw}"); a.e("s_add_u32 s36, s36, s37")
    SW = 66 + 2 * int(os.environ.get("SGW", "3"))
    a.e(f"s_add_u32 s90, s{SW}, s36"); a.e(f"s_addc_u32 s91, s{SW+1}, 0")
def sb(a, n):
    for i in range(n): a.e(f"s_load_dword s101, s[90:91], {i*64}")
    if n: a.e(f"s_add_u32 s90, s90, {n*64}"); a.e("s_addc_u32 s91, s91, 0")
def front_b(a):
    pt, dm = 6, 20
    if TAB: tab_load(a)
    TE = int(os.environ.get("TE", "0"))
    if TE:
        a.e("s_cmp_ge_u32 s30, 6"); a.e("s_cbranch_scc1 FB_t1"); touch(a, B_W2, 2 * MB, dm); a.e("s_branch FB_t2"); a.e("FB_t1:"); touch(a, B_W1, 2 * MB, 200); a.e("FB_t2:")
    w_lanes(a)
    sb_init(a); sb(a, SB[0])
    a.e("s_cmp_ge_u32 s30, 6"); a.e("s_cbranch_scc1 FB_cs")
    vd = 12
    a.e(f"s_cmp_ge_u32 s2, {NVOTE}"); a.e("s_cbranch_scc1 FB_np"); a.e("s_cmp_lg_u32 s30, 5"); a.e("s_cbranch_scc1 FB_np")
    probe_base(a); a.e(f"v_mov_b32 v{vd+2}, 0")
    a.e("s_mov_b64 exec, 1"); a.e("s_mov_b32 s46, -1"); a.e("s_mov_b32 s47, -1"); a.e("s_mov_b32 s43, 0")
    a.e("FB_ml:")
    for i in range(2):
        a.e(f"s_add_u32 s45, s42, {i * 8192}")
        a.e("s_memtime s[34:35]"); a.e("s_waitcnt lgkmcnt(0)")
        a.e(f"buffer_load_dword v{vd+1}, v{vd+2}, s[56:59], s45 offen {SC}"); a.e("s_waitcnt vmcnt(0)")
        a.e("s_memtime s[36:37]"); a.e("s_waitcnt lgkmcnt(0)")
        a.e("s_sub_u32 s36, s36, s34"); a.e(f"s_min_u32 s{46+i}, s{46+i}, s36")
    a.e("s_add_u32 s42, s42, 128"); a.e("s_add_u32 s43, s43, 1"); a.e(f"s_cmp_lt_u32 s43, {NSAMP}"); a.e("s_cbranch_scc1 FB_ml")
    a.e("s_cmp_lt_u32 s47, s46"); a.e("s_cselect_b32 s45, 1, 0")
    a.e("s_lshr_b32 s46, s28, 2"); a.e("s_xor_b32 s45, s45, s46"); a.e("s_and_b32 s45, s45, 1"); a.e("s_lshl_b32 s45, s45, 8")
    a.e("s_mov_b64 exec, -1")
    lds_set(a, LW + 32, "s45", pt)
    a.e("FB_np:")
    mstamp(a)
    a.e("s_cmp_lg_u32 s30, 4"); a.e("s_cbranch_scc1 FB_ni")
    a.e(f"v_mov_b32 v{vd}, s52")
    group_off(a, 37, 28); a.e("s_andn2_b32 s37, s37, 0x2000"); a.e("s_lshl_b32 s53, s29, 7"); a.e("s_add_u32 s37, s37, s53"); a.e(f"s_add_u32 s37, s37, {oSM}")
    a.e(f"v_and_b32 v{vd+1}, 1, v1"); a.e(f"v_lshlrev_b32 v{vd+1}, 13, v{vd+1}"); a.e(f"v_lshrrev_b32 v{vd+2}, 1, v1"); a.e(f"v_lshl_add_u32 v{vd+1}, v{vd+2}, 22, v{vd+1}")
    a.e("s_mov_b64 exec, 0xf"); a.e(f"buffer_store_dword v{vd}, v{vd+1}, s[56:59], s37 offen {SC}")
    a.e("s_cmp_lg_u32 s28, 0"); a.e("s_cbranch_scc1 FB_n2")
    a.e(f"s_add_u32 s37, s53, {F_CS}"); a.e("s_mov_b64 exec, 1"); a.e(f"buffer_store_dword v{vd}, v{vd+1}, s[56:59], s37 offen {SC}")
    a.e("FB_n2:")
    a.e("s_mov_b64 exec, -1")
    for i in range(4): a.e(f"v_mov_b32 v{vd+4+i}, {1 if i == 0 and '2' in DP else 0}")
    a.e("s_lshr_b32 s36, s2, 7"); a.e("s_lshl_b32 s36, s36, 24"); a.e(f"s_add_u32 s36, s36, {HSB}")
    a.e("s_add_u32 s20, s4, s36"); a.e("s_addc_u32 s21, s5, 0"); a.e(f"s_mov_b32 s22, {128*PITCH}"); a.e("s_mov_b32 s23, 0x20000")
    a.e("s_and_b32 s36, s2, 127"); a.e(f"s_mul_i32 s36, s36, {PITCH}"); a.e(f"s_add_u32 s36, s36, {16384 - 32}")
    a.e(f"v_and_b32 v{vd+1}, 1, v1"); a.e(f"v_lshlrev_b32 v{vd+1}, 4, v{vd+1}"); a.e(f"v_bfe_u32 v{vd+2}, v1, 1, 1"); a.e(f"v_lshl_add_u32 v{vd+1}, v{vd+2}, 13, v{vd+1}")
    a.e(f"v_bfe_u32 v{vd+2}, v1, 2, 1"); a.e(f"v_mul_u32_u24 v{vd+2}, {32768 + 32}, v{vd+2}"); a.e(f"v_add_u32 v{vd+1}, v{vd+1}, v{vd+2}")
    a.e("s_mov_b64 exec, 0xff"); a.e(f"buffer_store_dwordx4 {vr(vd+4,4)}, v{vd+1}, s[20:23], s36 offen {SC}"); a.e("s_mov_b64 exec, -1")
    a.e("FB_ni:")
    UG = (LW + 20, 4) if os.environ.get("UG") else (LW + 16, 1)
    lds_spin(a, *UG, pt, nap=2)
    mstamp(a)
    if TLBW:
        a.e("s_cmp_lg_u32 s30, 4"); a.e("s_cbranch_scc1 FB_nt")
        a.e(f"s_load_dwordx2 s[8:9], s[0:1], {D_OUT}")
        a.srd(20, 4, 192 * MB)
        group_off(a, 34, 28)
        a.e("s_sub_u32 s36, s28, 1"); a.e("s_max_i32 s36, s36, 0"); group_off(a, 35, 36)
        a.e("s_add_u32 s36, s28, 1"); a.e("s_min_u32 s36, s36, 15"); group_off(a, 37, 36)
        a.e(f"v_lshlrev_b32 v{vd}, 21, v1"); a.e(f"v_add_u32 v{vd}, {HSB - 8 * 2 * MB}, v{vd}")
        for l, (r, o) in enumerate([(34, 0), (34, oP0 if TLBW == 2 else 4 * MB), (35, 0), (37, 0)]):
            for ly in range(2):
                a.e(f"s_add_u32 s36, s{r}, {o + ly * LSTR}"); a.e(f"v_writelane_b32 v{vd}, s36, {2*l+ly}")
        a.e("s_bfm_b64 exec, 20, 0"); a.e(f"buffer_{'store' if TLBW == 2 else 'load'}_dword v{dm}, v{vd}, s[20:23], 0 offen {SC}")
        a.e("s_waitcnt lgkmcnt(0)"); a.e(f"s_mov_b32 s10, {4*MB}"); a.e("s_mov_b32 s11, 0x20000")
        a.e("s_mov_b64 exec, 1"); a.e(f"buffer_load_dword v{dm+1}, v{RRO}, s[8:11], 0 offen {SC}"); a.e("s_mov_b64 exec, -1")
        a.e("FB_nt:")
    if os.environ.get("W2T", "1") == "2": lds_spin(a, LW + 24, 2, pt, nap=4)
    if os.environ.get("W2T", "1") != "0" and not TE: touch(a, B_W2, 2 * MB, dm)
    QL = int(os.environ.get("QL", "0"))
    if not QL: load_q(a)
    if W4POS == "F": lds_spin(a, LW + 24, 2, pt, nap=4); a.e("s_waitcnt vmcnt(0)")
    if W4POS in ("F", "F0"): touch(a, B_W4, 7 * MB, dm)
    PZF = int(os.environ.get("PZF", "0"))
    if PZF:
        a.srd(20, 4, 32 * MB, off=216 * MB)
        for i in range(4): a.e(f"v_mov_b32 v{216+i}, -1")
        a.e("s_lshl_b32 s45, s2, 1"); a.e("s_and_b32 s50, s30, 1"); a.e("s_add_u32 s45, s45, s50"); a.e(f"s_mul_i32 s45, s45, {PZF*1024}")
        for i in range(PZF):
            a.e(f"buffer_store_dwordx4 v[216:219], v2, s[20:23], s45 offen {SC}"); a.e("s_add_u32 s45, s45, 1024")
            if os.environ.get("PZP"): a.e(f"s_waitcnt vmcnt({os.environ['PZP']})")
    front_arrive(a, True)
    if TAB: tab_make(a, 0)
    PKW = int(os.environ.get("PKW", "2")); PKP = int(os.environ.get("PKP", "8"))
    W1P = int(os.environ.get("W1P", "8")); FO = os.environ.get("FO", "1pd"); FO2 = os.environ.get("FO2", "1pd")
    R1 = [176, 188, 192] + [200 + 4 * i for i in range(7)] + [16 + 4 * i for i in range(8)]
    def w1_regs(a):
        w_srd(a, 1)
        a.e("s_and_b32 s35, s30, 3"); a.e(f"s_mul_i32 s35, s35, {18*16384}"); a.e("s_lshl_b32 s39, s29, 7"); a.e("s_add_u32 s39, s39, s35")
        for q in range(18):
            a.e(f"buffer_load_dwordx4 {vr(R1[q],4)}, v{WVB[1]}, s[12:15], s39 offen"); a.e("s_add_u32 s39, s39, 16384")
            if q % 4 == 3: sb(a, SB[1])
            if PKP and q % 4 == 3: a.e(f"s_waitcnt vmcnt({PKP})")
        if QL: load_q(a)
    def w1_put(a):
        a.e("s_and_b32 s35, s30, 3"); a.e(f"s_mul_i32 s35, s35, {18*1024}"); a.e("v_add_u32 v8, s35, v2")
        lds_spin(a, LW + 4, 16, pt, nap=2)
        a.e("s_waitcnt vmcnt(0)")
        for q in range(18): a.e(f"ds_write_b128 v8, {vr(R1[q],4)} offset:{CFG[1]['WB'] + 1024*q}")
        a.e("s_waitcnt lgkmcnt(0)")
    def w1_dma(a, js):
        lds_spin(a, LW + 24, 4, pt, nap=3)
        w_setup(a, 1, pre=False); w1_slots(a, js, pace=W1P)
    DS_ = int(os.environ.get("DSPL", "12"))
    if PKW: lds_spin(a, LW + 24, PKW, pt, nap=4)
    for ch in FO:
        if ch == "d": w1_dma(a, range(9, DS_))
        else: call(a, {"1": w1_regs, "p": park}[ch])
    mstamp(a)
    call(a, w1_put)
    a.e("s_branch FR_end")
    a.e("FB_cs:")
    S1, S3 = KVS - CFG[1]["WB"], KVS + 8192 - CFG[3]["WB"]
    pos = cs_prep(a, S1, S3)
    lds_spin(a, *UG, pt, nap=2)
    mstamp(a)
    if not QL: load_q(a)
    cs_load(a, 1, S1)
    if not NOCS3: cs_load(a, 3, S3)
    a.e(f"s_waitcnt vmcnt({0 if NOCS3 else 14})")
    if CSPRIO: a.e(f"s_setprio {CSPRIO}")
    cs_sum(a, 1, pos)
    a.e("s_waitcnt vmcnt(1)")
    a.e(f"v_mov_b32 v{pt}, {LW+24}"); a.e(f"v_mov_b32 v{pt+1}, 1")
    a.e("s_mov_b64 exec, 1"); a.e(f"ds_add_u32 v{pt}, v{pt+1}"); a.e("s_mov_b64 exec, -1")
    mstamp(a)
    if not NOCS3: cs_sum(a, 3, pos)
    front_arrive(a, False)
    if TAB: tab_make(a, 1)
    a.e(f"v_mov_b32 v{pt}, {LW+24}"); a.e(f"v_mov_b32 v{pt+1}, 1")
    a.e("s_mov_b64 exec, 1"); a.e(f"ds_add_u32 v{pt}, v{pt+1}"); a.e("s_mov_b64 exec, -1")
    mstamp(a)
    a.e("s_setprio 0")
    assert CFG[1]["WB"] + 9 * 8192 == KVS
    for ch in FO2:
        if ch == "d": w1_dma(a, range(DS_, 16))
        else: call(a, {"1": w1_regs, "p": park}[ch])
    mstamp(a)
    call(a, w1_put)

def front_conv(a):
    v = VA(6); lane = 1; l16 = 2
    t = v(); pt = v(4, 2)
    chan_setup(a, 30)
    a.e("s_and_b32 s36, s39, 127"); a.e("s_lshl_b32 s36, s36, 12"); a.e("s_lshr_b32 s37, s39, 7"); a.e("s_lshl_b32 s37, s37, 24")
    a.e("s_add_u32 s36, s36, s37"); a.e(f"s_add_u32 s36, s36, {LB0 + oX3}")
    a.e("s_add_u32 s16, s4, s36"); a.e("s_addc_u32 s17, s5, 0"); a.e("s_mov_b32 s18, 4096"); a.e("s_mov_b32 s19, 0x20000")
    uw = v(); u = v(16, 4)
    a.e(f"v_lshrrev_b32 v{t}, 2, v{lane}"); a.e(f"v_mul_u32_u24 v{uw}, {US}, v{t}"); a.e(f"v_and_b32 v{t}, 3, v{lane}")
    a.e(f"v_lshl_add_u32 v{uw}, v{t}, 4, v{uw}"); a.e(f"v_add_u32 v{uw}, s40, v{uw}")
    aa = v(); ba = v(); ua = v(); J = v(); G = v()
    a.e(f"v_and_b32 v{J}, 15, v{lane}"); a.e(f"v_lshrrev_b32 v{G}, 4, v{lane}")
    a.e(f"v_and_b32 v{t}, 3, v{J}"); a.e(f"v_mul_u32_u24 v{aa}, {HSTR}, v{t}")
    a.e(f"v_lshl_add_u32 v{aa}, v{G}, 4, v{aa}"); a.e(f"v_lshrrev_b32 v{t}, 2, v{J}"); a.e(f"v_lshl_add_u32 v{aa}, v{t}, 3, v{aa}")
    a.e(f"v_add_u32 v{aa}, s40, v{aa}")
    a.e(f"v_sub_u32 v{t}, 15, v{J}"); a.e(f"v_mul_u32_u24 v{ua}, {US}, v{t}"); a.e(f"v_add_u32 v{ua}, s40, v{ua}")
    a.e(f"v_lshl_add_u32 v{ba}, v{G}, 4, v{ua}")
    acc = v(32, 4)
    fa = v(64, 4); fb = v(32, 4)
    def rdA(p, o):
        return [f"ds_read_b64 {vr(fa+32*p+8*s_+4*mt+2*h,2)}, v{aa} offset:{64*(o+16*s_) + 32*mt + 8*h}" for s_ in range(4) for mt in range(2) for h in range(2)]
    def rdB(p, o):
        return [f"ds_read_b128 {vr(fb+16*p+4*k,4)}, v{ba} offset:{UOFF + (48 - 16*k + o)*US}" for k in range(4)]
    for x in rdA(0, 0): a.e(x)
    dm_ = fb + 16; Dv = pt + 2
    a.e("s_bitcmp1_b32 s39, 0"); a.e("s_cselect_b32 s36, 0, 16"); a.e("s_lshl_b32 s41, s98, s36"); a.e("s_and_b32 s41, s41, 0xffff0000"); a.e("s_lshr_b32 s36, s41, 16")
    a.e(f"v_lshl_add_u32 v{t}, v{G}, 3, v{J}"); a.e(f"v_sub_u32 v{t}, 31, v{t}")
    a.e(f"v_mov_b32 v{Dv}, s36"); a.e(f"v_mov_b32 v{Dv+1}, s41"); a.e(f"v_and_b32 v{pt}, 1, v{t}"); a.e(f"v_cmp_eq_u32 vcc, 1, v{pt}")
    a.e(f"v_cndmask_b32 v{Dv}, v{Dv}, v{Dv+1}, vcc"); a.e(f"v_ashrrev_i32 v{t}, 1, v{t}")
    for mt in range(2):
        for d_ in range(4): a.e(f"v_cmp_eq_u32 vcc, {8*mt+d_}, v{t}"); a.e(f"v_cndmask_b32 v{dm_+4*mt+d_}, 0, v{Dv}, vcc")
    a.srd(12, 4, 4 * MB, off=Y)
    ta = v(); go = v()
    a.e(f"v_bfe_u32 v{t}, v{lane}, 2, 2"); a.e(f"v_mul_u32_u24 v{ta}, {CHB+64}, v{t}")
    a.e(f"v_lshrrev_b32 v{t}, 1, v{G}"); a.e(f"v_mul_u32_u24 v{t}, 72, v{t}"); a.e(f"v_add_u32 v{ta}, v{ta}, v{t}")
    a.e(f"v_and_b32 v{t}, 1, v{G}"); a.e(f"v_lshl_add_u32 v{ta}, v{t}, 5, v{ta}")
    a.e(f"v_and_b32 v{t}, 3, v{lane}"); a.e(f"v_lshl_add_u32 v{ta}, v{t}, 3, v{ta}")
    a.e(f"s_mul_i32 s36, s30, {16*72}"); a.e(f"v_add_u32 v{ta}, s36, v{ta}")
    a.e(f"v_lshlrev_b32 v{go}, 3, v{lane}")
    a.e("s_lshl_b32 s44, s38, 14"); a.e("s_lshl_b32 s37, s30, 12"); a.e("s_add_u32 s44, s44, s37")
    ya = v()
    a.e(f"s_mul_i32 s36, s30, {CHB+64}")
    a.e(f"v_mul_u32_u24 v{ya}, 72, v{J}"); a.e(f"v_lshl_add_u32 v{ya}, v{G}, 3, v{ya}"); a.e(f"v_add_u32 v{ya}, s36, v{ya}")
    a.e("s_cmp_lg_u32 s30, 0"); a.e("s_cbranch_scc1 CV_w")
    a.e("s_and_b32 s36, s2, 7"); a.e("s_lshl_b32 s36, s36, 12"); a.e(f"s_add_u32 s36, s36, {F_KVT}")
    a.e(f"v_lshlrev_b32 v{pt+1}, 7, v{lane}"); a.e(f"v_add_u32 v{pt+1}, s36, v{pt+1}")
    poll_core(a, pt, [pt + 1], 0xffffffff)
    lds_set(a, LW + 16, 1, pt)
    a.e("CV_w:")
    lds_spin(a, LW + 16, 1, pt)
    mstamp(a)
    for it in range(4): a.e(f"buffer_load_dwordx4 {vr(u+4*it,4)}, v{l16}, s[16:19], 0 offen offset:{1024*it} {SC}")
    QL = int(os.environ.get("QL", "0"))
    if not QL: load_q(a)
    for it in range(4):
        a.e(f"s_waitcnt vmcnt({(3 if QL else 7)-it})")
        a.e(f"ds_write_b128 v{uw}, {vr(u+4*it,4)} offset:{UOFF + 16*US*it}")
    a.e(f"v_mov_b32 v{pt}, {LW+20}"); a.e(f"v_mov_b32 v{pt+1}, 1")
    a.e("s_mov_b64 exec, 1"); a.e(f"ds_add_u32 v{pt}, v{pt+1}"); a.e("s_mov_b64 exec, -1")
    a.e("s_waitcnt lgkmcnt(0)")
    mstamp(a)
    for x in rdB(0, 0): a.e(x)
    for c_ in range(4):
        a.e(f"s_waitcnt lgkmcnt({3-c_})")
        for mt in range(2): a.e(f"v_mfma_f32_16x16x32_bf16 {vr(acc+8*c_+4*mt,4)}, {vr(dm_+4*mt,4)}, {vr(fb+4*c_,4)}, 0")
    def step(p, nxt, tail, piped=False):
        a.e(f"s_waitcnt lgkmcnt({10 if piped else 0})")
        mf = [(c_, s_, mt) for s_ in range(4) for mt in range(2) for c_ in range(s_, 4)]
        for i, (c_, s_, mt) in enumerate(mf):
            A = acc + 8 * c_ + 4 * mt
            a.e(f"v_mfma_f32_16x16x32_bf16 {vr(A,4)}, {vr(fa+32*p+8*s_+4*mt,4)}, {vr(fb+16*p+4*(c_-s_),4)}, {vr(A,4)}")
            if nxt: a.e(nxt.pop(0))
            if piped and i == 9: a.e("s_waitcnt lgkmcnt(10)")
            for x in tail.pop(i, []) if tail else []: a.e(x)
        assert not nxt and not tail
    a.e("s_mov_b32 s43, 0")
    NU = int(os.environ.get("NU", "3")); HP = int(os.environ.get("HP", "0"))
    if NU:
        a.e("CV_r:")
        for p in range(2):
            rd = rdB(1 - p, p + 1) + rdA(1 - p, p + 1)
            step(p, rd[:HP], [])
            for x in rd[HP:]: a.e(x)
        for x in [f"v_add_u32 v{aa}, 128, v{aa}", f"v_add_u32 v{ba}, {2*US}, v{ba}", "s_add_u32 s43, s43, 1", f"s_cmp_lt_u32 s43, {NU}"]: a.e(x)
        a.e("s_cbranch_scc1 CV_r")
    if QL: load_q(a)
    a.e("CV_l:")
    step(0, rdB(1, 1) + rdA(1, 1), [], True)
    step(1, rdB(0, 2) + rdA(0, 2), {19: [f"v_add_u32 v{aa}, 128, v{aa}"], 5: [f"v_add_u32 v{ba}, {2*US}, v{ba}"], 6: ["s_add_u32 s43, s43, 1"], 7: ["s_cmp_lt_u32 s43, 8"]}, True)
    a.e("s_cbranch_scc1 CV_l")
    mstamp(a)
    a.e("s_waitcnt lgkmcnt(0)")
    for c_ in range(4):
        for mt in range(2):
            A = acc + 8 * c_ + 4 * mt; O = u + 2 * (c_ * 2 + mt)
            a.e(f"v_cvt_pk_bf16_f32 v{O}, v{A}, v{A+1}"); a.e(f"v_cvt_pk_bf16_f32 v{O+1}, v{A+2}, v{A+3}")
            a.e(f"ds_write_b64 v{ya}, {vr(O,2)} offset:{c_*16*72 + mt*32}")
    lbar(a, 1, pt)
    for i in range(8): a.e(f"ds_read_b64_tr_b16 {vr(fa+32+2*i,2)}, v{ta} offset:{144*i}")
    for i in range(8):
        a.e(f"s_waitcnt lgkmcnt({7-i})")
        a.e(f"buffer_store_dwordx2 {vr(fa+32+2*i,2)}, v{go}, s[12:15], s44 offen offset:{512*i} {SC}")
    assert v.hi <= 176

PK = 48; W3S = 208
RFO, RYO, RRO, RI, RXA, RXB, RYY, RT = 196, 197, 198, 199, 180, 188, 230, 236
def r_addr(a):
    t, t2, I, fo, ro, yo = RT, RT + 1, RI, RFO, RRO, RYO
    a.e(f"v_and_b32 v{I}, 7, v0")
    a.e(f"v_lshrrev_b32 v{t}, 6, v0"); a.e(f"v_lshlrev_b32 v{t}, 4, v{t}"); a.e(f"v_bfe_u32 v{t2}, v0, 3, 3"); a.e(f"v_add_u32 v{t}, v{t}, v{t2}")
    a.e("s_lshr_b32 s78, s29, 1"); a.e("s_lshl_b32 s78, s78, 16"); a.e("s_and_b32 s79, s29, 1"); a.e("s_lshl_b32 s79, s79, 7"); a.e("s_add_u32 s78, s78, s79")
    a.e("s_lshr_b32 s79, s30, 1"); a.e("s_lshl_b32 s79, s79, 13"); a.e("s_add_u32 s78, s78, s79")
    a.e(f"v_lshlrev_b32 v{fo}, 8, v{t}"); a.e(f"v_lshl_add_u32 v{fo}, v{I}, 4, v{fo}"); a.e(f"v_add_u32 v{fo}, s78, v{fo}")
    a.e("s_lshl_b32 s78, s28, 7"); a.e("s_lshl_b32 s79, s29, 3"); a.e("s_add_u32 s78, s78, s79")
    a.e(f"v_add_u32 v{yo}, s78, v{I}"); a.e(f"v_lshlrev_b32 v{ro}, 11, v{yo}")
    a.e(f"v_lshrrev_b32 v{t2}, 2, v{t}"); a.e(f"v_lshlrev_b32 v{t2}, 3, v{t2}"); a.e(f"v_and_b32 v{t}, 3, v{t}"); a.e(f"v_add_u32 v{t}, v{t}, v{t2}")
    a.e(f"v_lshl_add_u32 v{ro}, v{t}, 3, v{ro}")
    a.e(f"v_lshlrev_b32 v{yo}, 3, v{yo}"); a.e(f"v_lshl_add_u32 v{yo}, v{t}, 14, v{yo}")
def load_y(a, skip_last=False):
    a.srd(80, 4, 4 * MB, off=Y)
    if skip_last: a.e("s_cmp_eq_u32 s60, 0"); a.e("s_cselect_b32 s82, s82, 0")
    for j in range(2):
        for hh in range(2):
            a.e(f"s_mov_b32 s78, {(16*j + 4*hh)*16384}")
            a.e(f"buffer_load_dwordx2 {vr(RYY+4*j+2*hh,2)}, v{RYO}, s[80:83], s78 offen {SC}")
def r_pre(a, l0=False):
    r_addr(a)
    lsrd(a, 84, oX3, XSZ); lsrd(a, 88, oX1P, XSZ)
    if l0: a.e("s_cmp_eq_u32 s60, 0"); a.e("s_cselect_b32 s86, s86, 0"); a.e("s_cselect_b32 s90, s90, 0")
    for j in range(2):
        a.e(f"buffer_load_dwordx4 {vr(RXA+4*j,4)}, v{RFO}, s[84:87], 0 offen offset:{2048*j} {SC}")
        a.e(f"buffer_load_dwordx4 {vr(RXB+4*j,4)}, v{RFO}, s[88:91], 0 offen offset:{2048*j} {SC}")
    load_y(a, l0)
def r_pre0(a): a.e("s_waitcnt lgkmcnt(0)"); r_pre(a, True)

def r_stage(a, final):
    v = VA(6)
    t = v(); t2 = v(); I = RI; fo = RFO; ro = RRO; pt = v(4, 2)
    xa = RXA; xb = RXB; yy = RYY; x = 206; yf = 222; w = v(16, 4); tmp = v()
    pre = final == "pre"
    S = v(2, 2); pp = v(2, 2); qq = v(2, 2); st = w; mean = v(2, 2); rs = mean + 1; var = v(); sw = v(); sr = v()
    def part(src, n):
        a.e(f"v_pk_add_f32 {vr(pp,2)}, {vr(src,2)}, {vr(src+2,2)}"); a.e(f"v_pk_mul_f32 {vr(qq,2)}, {vr(src,2)}, {vr(src,2)}")
        for i in range(1, 8):
            if i > 1: a.e(f"v_pk_add_f32 {vr(pp,2)}, {vr(pp,2)}, {vr(src+2*i,2)}")
            a.e(f"v_pk_fma_f32 {vr(qq,2)}, {vr(src+2*i,2)}, {vr(src+2*i,2)}, {vr(qq,2)}")
        a.e(f"v_add_f32 v{S}, v{pp}, v{pp+1}"); a.e(f"v_add_f32 v{S+1}, v{qq}, v{qq+1}")
        for k in range(2): a.e(f"v_add_f32_dpp v{S+k}, v{S+k}, v{S+k} row_ror:8 row_mask:0xf bank_mask:0xf")
        for op in ("v_permlane16_swap_b32", "v_permlane32_swap_b32"):
            for k in range(2): a.e(f"v_mov_b32 v{pp+k}, v{S+k}")
            for k in range(2): a.e(f"{op} v{S+k}, v{pp+k}")
            a.e(f"v_pk_add_f32 {vr(S,2)}, {vr(S,2)}, {vr(pp,2)}")
        a.e(f"ds_write_b64 v{sw}, {vr(S,2)} offset:{n*512}")
    def comb(n):
        for k in range(4): a.e(f"ds_read_b128 {vr(st+4*k,4)}, v{sr} offset:{n*512+16*k}")
        a.e("s_waitcnt lgkmcnt(0)")
        for k in range(4): a.e(f"v_pk_add_f32 {vr(st+4*k,2)}, {vr(st+4*k,2)}, {vr(st+4*k+2,2)}")
        a.e(f"v_pk_add_f32 {vr(st,2)}, {vr(st,2)}, {vr(st+4,2)}"); a.e(f"v_pk_add_f32 {vr(st+8,2)}, {vr(st+8,2)}, {vr(st+12,2)}")
        a.e(f"v_pk_add_f32 {vr(st,2)}, {vr(st,2)}, {vr(st+8,2)}")
        a.e(f"v_mul_f32 v{mean}, {f32(1/1024)}, v{st}"); a.e(f"v_mul_f32 v{var}, {f32(1/1024)}, v{st+1}")
        a.e(f"v_fma_f32 v{var}, -v{mean}, v{mean}, v{var}"); a.e(f"v_max_f32 v{var}, 0, v{var}")
    SUBM = f"{vr(mean,2)} op_sel_hi:[1,0] neg_lo:[0,1] neg_hi:[0,1]"; MULR = f"{vr(mean,2)} op_sel:[0,1] op_sel_hi:[1,1]"
    if pre: a.e("s_waitcnt lgkmcnt(0)")
    if final is not True:
        a.e(f"v_lshlrev_b32 v{sr}, 6, v{I}"); a.e(f"v_add_u32 v{sr}, {AUX+2048}, v{sr}")
        a.e(f"s_lshl_b32 s35, s30, 3"); a.e(f"v_add_u32 v{sw}, s35, v{sr}")
    if pre:
        a.e("s_waitcnt vmcnt(0)")
        for i in range(8): unpack(a, x + 2 * i, x + 2 * i + 1, xa + i)
        part(x, 0)
        a.e("s_waitcnt lgkmcnt(0)"); a.e("s_barrier")
        return
    if not final:
        a.e(f"s_cmp_eq_u32 s60, 0"); a.e(f"s_cbranch_scc1 R_l0")
    else:
        a.e(f"s_load_dwordx2 s[6:7], s[0:1], {D_OUT}")
    lsrd(a, 8, oP0, XSZ, prev=True); lsrd(a, 12, oP1, XSZ, prev=True)
    if "r" not in DP: a.e("s_waitcnt vmcnt(0)")
    for i in range(8):
        if not final: unpack(a, yf + 2 * i, yf + 2 * i + 1, yy + i)
        unpack(a, x + 2 * i, x + 2 * i + 1, xa + i); unpack(a, w + 2 * i, w + 2 * i + 1, xb + i)
        a.e(f"v_pk_add_f32 {vr(x+2*i,2)}, {vr(x+2*i,2)}, {vr(w+2*i,2)}")
    lds_ = [f"buffer_load_dwordx4 {vr(r+4*j,4)}, v{fo}, s[{q}:{q+3}], 0 offen offset:{2048*j} {SC}" for j in range(2) for r, q in ((xa, 8), (xb, 12))]
    if "r" in DP: data_poll(a, lds_, (xa, xa + 4, xb, xb + 4), t, int(os.environ.get("RNAP", "4")), int(os.environ.get("RFIRST", "24")), int(os.environ.get("RCAN", "0"))); mstamp(a)
    else:
        poll(a, ST_G4, pt, prev=True)
        mstamp(a)
        for x_ in lds_: a.e(x_)
    for i in range(8):
        if i % 4 == 0 and "r" not in DP: a.e(f"s_waitcnt vmcnt({2 - i // 2})")
        u = w + 4 * (i & 3)
        unpack(a, u, u + 1, xa + i); unpack(a, u + 2, u + 3, xb + i)
        a.e(f"v_pk_add_f32 {vr(u,2)}, {vr(u,2)}, {vr(u+2,2)}")
        a.e(f"v_pk_add_f32 {vr(x+2*i,2)}, {vr(x+2*i,2)}, {vr(u,2)}")
        if final: a.e(f"v_cvt_pk_bf16_f32 v{xa+i}, v{x+2*i}, v{x+2*i+1}")
        else: round2(a, x + 2 * i, x + 2 * i + 1, tmp)
    if final:
        a.e("s_waitcnt lgkmcnt(0)")
        a.srd(20, 6, 4 * MB)
        OS = os.environ.get("OS", "sc1")
        if os.environ.get("OWIDE", "1") == "1":
            a.e(f"v_bfe_u32 v{t}, v1, 3, 1"); a.e(f"v_cmp_eq_u32 vcc, 1, v{t}")
            for j in range(2):
                lo, hi = xa + 4 * j, xa + 4 * j + 2
                for e in range(2):
                    a.e(f"v_cndmask_b32 v{x+e}, v{hi+e}, v{lo+e}, vcc")
                for e in range(2):
                    a.e(f"v_mov_b32_dpp v{x+2+e}, v{x+e} row_ror:8 row_mask:0xf bank_mask:0xf")
                for e in range(2):
                    a.e(f"v_cndmask_b32 v{x+4+e}, v{lo+e}, v{x+2+e}, vcc"); a.e(f"v_cndmask_b32 v{hi+e}, v{x+2+e}, v{hi+e}, vcc")
                for e in range(2): a.e(f"v_mov_b32 v{lo+e}, v{x+4+e}")
            a.e(f"v_bfe_u32 v{t2}, v1, 4, 1"); a.e(f"v_lshlrev_b32 v{t}, 5, v{t}"); a.e(f"v_lshl_add_u32 v{t}, v{t2}, 4, v{t}")
            a.e(f"v_and_b32 v{t2}, 0xffffffc0, v{ro}"); a.e(f"v_add_u32 v{t}, v{t}, v{t2}")
            for j in range(2): a.e(f"buffer_store_dwordx4 {vr(xa+4*j,4)}, v{t}, s[20:23], 0 offen offset:{128*j} {OS}")
        else:
            for j in range(4): a.e(f"buffer_store_dwordx2 {vr(xa+2*j,2)}, v{ro}, s[20:23], 0 offen offset:{128*(j>>1) + 32*(j&1)} {OS}")
        return v.hi
    part(x, 0)
    a.e("s_waitcnt lgkmcnt(0)"); a.e("s_barrier")
    comb(0)
    ln_finish(a, mean, var, rs)
    lsrd(a, 20, oX3, XSZ)
    for i in range(8):
        D = w + 2 * i
        a.e(f"v_pk_add_f32 {vr(D,2)}, {vr(x+2*i,2)}, {SUBM}"); a.e(f"v_pk_mul_f32 {vr(D,2)}, {vr(D,2)}, {MULR}")
        a.e(f"v_pk_fma_f32 {vr(x+2*i,2)}, {vr(D,2)}, {vr(yf+2*i,2)}, {vr(x+2*i,2)}")
        a.e(f"v_cvt_pk_bf16_f32 v{xa+i}, v{x+2*i}, v{x+2*i+1}")
        if i % 4 == 1 and DP: mark(a, xa + i - 1, 0)
        if i % 4 == 3: a.e(f"buffer_store_dwordx4 {vr(xa+i-3,4)}, v{fo}, s[20:23], 0 offen offset:{2048*(i//4)} {SC}")
    a.e("s_branch R_s2")
    a.e("R_l0:")
    for i in range(8): unpack(a, x + 2 * i, x + 2 * i + 1, xa + i)
    part(x, 0)
    a.e("s_waitcnt lgkmcnt(0)")
    st_ = st; st = yf
    a.e(f"s_cmp_lg_u32 s30, {os.environ.get('FPW', '4')}"); a.e("s_cbranch_scc1 R_fw")
    lds_spin(a, LW + 4, 16, st, nap=int(os.environ.get("NAP4", "4")))
    a.e("s_lshl_b32 s36, s28, 10"); a.e(f"s_add_u32 s36, s36, {F_FRONT}")
    a.e(f"v_lshlrev_b32 v{st+4}, 7, v1"); a.e(f"v_add_u32 v{st+4}, s36, v{st+4}")
    a.e("s_mov_b32 s53, 0"); a.e("s_mov_b64 exec, 0xff")
    a.e("R_fp:")
    a.e(f"buffer_load_dword v{st}, v{st+4}, s[56:59], 0 offen {SC}"); a.e("s_waitcnt vmcnt(0)")
    a.e(f"v_subrev_u32 v{st}, s52, v{st}"); a.e(f"v_and_b32 v{st+1}, 0xffffc0ff, v{st}"); a.e(f"v_cmp_eq_u32 vcc, 32, v{st+1}")
    a.e("s_cmp_eq_u64 vcc, exec"); a.e("s_cbranch_scc1 R_fq")
    a.e(f"s_sleep {FSLEEP}")
    a.e("s_add_u32 s53, s53, 1"); a.e("s_cmp_lt_u32 s53, s61"); a.e("s_cbranch_scc1 R_fp")
    a.e("s_mov_b32 s61, 0")
    a.e("R_fq:")
    a.e(f"v_lshrrev_b32 v{st}, 8, v{st}"); a.e(f"v_mov_b32 v{st+1}, {LW+28}"); a.e(f"ds_add_u32 v{st+1}, v{st}")
    a.e("s_mov_b64 exec, -1"); a.e("s_waitcnt lgkmcnt(0)")
    a.e("R_fw:")
    a.e("s_barrier")
    mstamp(a)
    load_y(a)
    a.e(f"v_mov_b32 v{st}, {LW+28}"); a.e(f"ds_read_b32 v{st+1}, v{st}"); a.e("s_waitcnt lgkmcnt(0)"); a.e(f"v_readfirstlane_b32 s94, v{st+1}")
    if STAMP: a.e("s_mov_b32 s95, s94")
    a.e(f"s_cmp_gt_u32 s94, {NVOTE // 2}"); a.e("s_cselect_b32 s94, 1, 0")
    group_off(a, 55, 28)
    a.e("s_add_u32 s62, s4, s55"); a.e("s_addc_u32 s63, s5, 0")
    a.e("s_sub_u32 s36, s28, 1"); a.e("s_max_i32 s36, s36, 0"); group_off(a, 92, 36); a.e("s_sub_u32 s92, s92, s55")
    a.e("s_add_u32 s36, s28, 1"); a.e("s_min_u32 s36, s36, 15"); group_off(a, 93, 36); a.e("s_sub_u32 s93, s93, s55")
    a.e(f"s_add_u32 s55, s55, {oSM}")
    lsrd(a, 20, oX3, XSZ)
    st = st_; comb(0); ln_finish(a, mean, var, rs); st = yf
    for i in range(8):
        D = w + 2 * i
        a.e(f"v_pk_add_f32 {vr(D,2)}, {vr(x+2*i,2)}, {SUBM}"); a.e(f"v_pk_mul_f32 {vr(D,2)}, {vr(D,2)}, {MULR}")
    a.e("s_waitcnt vmcnt(0)")
    for i in range(8):
        D = w + 2 * i
        unpack(a, st, st + 1, yy + i)
        a.e(f"v_pk_fma_f32 {vr(x+2*i,2)}, {vr(D,2)}, {vr(st,2)}, {vr(x+2*i,2)}"); a.e(f"v_cvt_pk_bf16_f32 v{xa+i}, v{x+2*i}, v{x+2*i+1}")
        if i % 4 == 1 and DP: mark(a, xa + i - 1, 0)
        if i % 4 == 3: a.e(f"buffer_store_dwordx4 {vr(xa+i-3,4)}, v{fo}, s[20:23], 0 offen offset:{2048*(i//4)} {SC}")
    a.e("R_s2:")
    st = st_
    for i in range(8): unpack(a, x + 2 * i, x + 2 * i + 1, xa + i)
    part(x, 1)
    if "1" in DP:
        a.e("s_waitcnt lgkmcnt(0)"); a.e("s_barrier")
        a.e("s_cmp_lg_u32 s30, 6"); a.e("s_cbranch_scc1 R_n6"); a.e("s_cmp_lg_u32 s60, 0"); a.e("s_cbranch_scc1 R_n6")
        a.e("s_lshl_b32 s53, s29, 7"); a.e(f"s_add_u32 s53, s53, {F_CS}"); a.e(f"v_mov_b32 v{pt}, 1"); a.e(f"v_mov_b32 v{pt+1}, 0")
        a.e("s_mov_b64 exec, 1"); a.e(f"buffer_atomic_add v{pt}, v{pt+1}, s[56:59], s53 offen {SC}"); a.e("s_mov_b64 exec, -1")
        a.e("R_n6:")
    else:
        publish(a, ST_R, 8, pt)
        a.e("s_barrier")
    a.e(f"s_cmp_lg_u32 s30, {7 if '1' in DP else 0}"); a.e("s_cbranch_scc1 R_nl")
    comb(1)
    outv = yf + 2; s3 = v(); m4 = v(); v4_ = v(); r4 = v()
    assert v.hi <= PK
    a.e(f"v_mov_b32 v{m4}, v{mean}"); a.e(f"v_mov_b32 v{v4_}, v{var}")
    ln_finish(a, mean, var, rs, s3)
    a.e(f"v_sub_f32 v{m4}, v{m4}, v{mean}"); a.e(f"v_mul_f32 v{m4}, v{m4}, v{rs}")
    a.e(f"v_mul_f32 v{v4_}, v{v4_}, v{rs}"); a.e(f"v_mul_f32 v{v4_}, v{v4_}, v{rs}")
    ln_finish(a, m4, v4_, r4)
    a.e(f"v_mov_b32 v{outv}, v{mean}"); a.e(f"v_mov_b32 v{outv+1}, v{rs}")
    a.e(f"v_fma_f32 v{outv+2}, v{m4}, v{s3}, v{mean}"); a.e(f"v_mul_f32 v{outv+3}, v{rs}, v{r4}")
    lsrd(a, 24, oLNS, 2048)
    a.e("s_lshl_b32 s36, s29, 3"); a.e(f"v_add_u32 v{t}, s36, v{I}"); a.e(f"v_lshlrev_b32 v{t}, 4, v{t}")
    a.e("s_mov_b64 exec, 0xff")
    a.e(f"buffer_store_dwordx4 {vr(outv,4)}, v{t}, s[24:27], 0 offen {SC}")
    a.e("s_mov_b64 exec, -1")
    publish(a, ST_R2, 1, pt)
    a.e("R_nl:")
    return v.hi

TAB = int(os.environ.get("TAB", "1")); TV = 248
def lead(seq, r, L, P=4):
    if L == 0: return list(seq)
    return [x for _, x in sorted(((i - L - 0.5 if i % P == r else i), x) for i, x in enumerate(seq))]
def order3(j, gi):
    mode, L = eval(os.environ.get("O3", "('r',0)"))
    if mode == "r": return [(gi + t) & 15 for t in range(16)]
    if mode == "n": return [gi] + [x for x in lead(range(16), (j + gi) & 3, L) if x != gi]
    if mode == "s": return [gi] + lead([x for x in range(16) if x != gi], (j + gi) & 3, L)
    if mode == "h": return [gi] + [x for x in lead([(t + (gi & 8)) & 15 for t in range(16)], (j + gi) & 3, L) if x != gi]
def order4(j, n):
    mode, L = eval(os.environ.get("O4", "('r',0)"))
    own = [(7 * n + i, 7 * n + 4 + i) for i in range(3)]
    ps = [(n + t) & 7 for t in range(8)] if mode == "r" else list(range(8))
    ab = [(7 * p + i, 7 * p + 4 + i) for i in range(2) for p in ps if p != n]
    c = [7 * p + o for p in ps for o in (2, 6, 3) if p != n or o == 3]
    rest = ab + [(c[2 * i], c[2 * i + 1]) for i in range(11)]
    if mode != "r": rest = lead(rest, (j + n + int(os.environ.get("O4R", "0"))) & 3, L)
    return own + rest
L4 = eval(os.environ.get("O4", "('r',0)"))[1] if TAB else 0
def tab_data(a):
    a.lines.append(".p2align 6"); a.lines.append("K_tab:")
    for gi in range(16):
        for j in range(4):
            o3 = order3(j, gi) + [0] * 16; o4 = order4(j, gi & 7) + [(0, 0)] * 4
            assert sorted(o3[:16]) == list(range(16)) and sorted(sum(o4[:28], ())) == list(range(56))
            a.lines.append(".short " + ",".join(str(o3[t] | o4[t][0] << 4 | o4[t][1] << 10) for t in range(32)))
def tab_load(a):
    a.e("s_getpc_b64 s[34:35]"); a.e("K_tpc:")
    a.e("s_lshl_b32 s36, s29, 2"); a.e("s_and_b32 s37, s28, 3"); a.e("s_add_u32 s36, s36, s37"); a.e("s_lshl_b32 s36, s36, 6")
    a.e("s_add_u32 s36, s36, K_tab-K_tpc"); a.e("s_add_u32 s34, s34, s36"); a.e("s_addc_u32 s35, s35, 0")
    a.e(f"v_and_b32 v{TV}, 31, v1"); a.e(f"v_lshlrev_b32 v{TV}, 1, v{TV}"); a.e(f"global_load_ushort v{TV+3}, v{TV}, s[34:35]")
def tab_make(a, w):
    T, x = TV + 3, TV + 4
    if not w:
        a.e(f"v_bfe_u32 v{x}, v{T}, 2, 2"); a.e(f"v_lshlrev_b32 v{TV}, 14, v{x}"); a.e(f"v_and_b32 v{x}, 3, v{T}"); a.e(f"v_lshl_add_u32 v{TV}, v{x}, 11, v{TV}")
        for lw in range(2):
            a.e(f"v_bfe_u32 v{x}, v{T}, {7+6*lw}, 3"); a.e(f"v_lshlrev_b32 v{TV+1+lw}, 14, v{x}"); a.e(f"v_bfe_u32 v{x}, v{T}, {4+6*lw}, 3"); a.e(f"v_lshl_add_u32 v{TV+1+lw}, v{x}, 10, v{TV+1+lw}")
    else:
        a.e(f"v_and_b32 v{x}, 15, v{T}"); a.e(f"v_mul_u32_u24 v{TV}, {64*7168}, v{x}")
        a.e("s_and_b32 s36, s30, 1"); a.e("s_mul_i32 s36, s36, 6"); a.e("s_add_u32 s36, s36, 4"); a.e(f"v_bfe_u32 v{x}, v{T}, s36, 6")
        assert all((q * 37) >> 8 == q // 7 for q in range(56))
        a.e(f"v_mul_u32_u24 v{TV+2}, 37, v{x}"); a.e(f"v_lshrrev_b32 v{TV+2}, 8, v{TV+2}"); a.e(f"v_mul_u32_u24 v{TV+2}, 7, v{TV+2}"); a.e(f"v_sub_u32 v{TV+2}, v{x}, v{TV+2}")
        a.e(f"v_cmp_eq_u32 vcc, 3, v{TV+2}"); a.e(f"v_cndmask_b32 v{TV+2}, 0, 1, vcc"); a.e(f"v_lshl_add_u32 v{TV+1}, v{x}, 16, v{TV+2}")
def rot_init(a, which):
    if which == 3 and TAB: a.e("s_mov_b32 s44, 0")
    elif which == 3 and OWN3: a.e("s_mov_b32 s44, s29")
    elif which != 4: a.e("s_mov_b32 s44, s67")
    else: a.e("s_mov_b32 s44, 0")
def rot_next(a, which):
    a.e("s_add_u32 s44, s44, 1")
    if which != 4: a.e("s_and_b32 s44, s44, 15")
def kb4(a, d, lw):
    a.e("s_lshl_b32 s45, s44, 1"); a.e(f"s_add_u32 s45, s45, {lw}"); a.e("s_sub_u32 s45, s45, 32")
    a.e("s_mul_i32 s46, s45, 86"); a.e("s_lshr_b32 s46, s46, 8")
    a.e("s_mul_i32 s47, s46, 3"); a.e("s_sub_u32 s47, s45, s47"); a.e("s_lshl_b32 s47, s47, 2"); a.e("s_lshr_b32 s47, 0x362, s47"); a.e("s_and_b32 s47, s47, 7")
    a.e("s_cmp_ge_u32 s44, 10"); a.e("s_cselect_b32 s45, 9, 2"); a.e("s_cselect_b32 s51, 1, 0"); a.e("s_sub_u32 s45, s44, s45")
    a.e("s_cmp_lt_u32 s44, 3"); a.e("s_cselect_b32 s45, 0, s45"); a.e("s_cselect_b32 s51, s44, s51")
    a.e(f"s_lshl2_add_u32 s51, {lw}, s51")
    a.e("s_cmp_lt_u32 s44, 17"); a.e("s_cselect_b32 s47, s51, s47"); a.e("s_cselect_b32 s46, s45, s46")
    a.e("s_add_u32 s46, s46, s33"); a.e("s_and_b32 s46, s46, 7"); a.e("s_mul_i32 s46, s46, 7"); a.e(f"s_add_u32 s{d}, s46, s47")
assert all((q * 86) >> 8 == q // 3 for q in range(24))
WVB = {1: 238, 2: 238, 4: 239, 3: 241}
WV = 245
def w_lanes(a):
    t, t2 = WV + 8, WV + 9
    R = WVB[1]
    a.e(f"v_lshrrev_b32 v{t}, 3, v1"); a.e(f"v_lshlrev_b32 v{R}, 11, v{t}")
    a.e(f"v_and_b32 v{t}, 6, v{t}"); a.e(f"v_and_b32 v{t2}, 7, v1"); a.e(f"v_xor_b32 v{t}, v{t}, v{t2}"); a.e(f"v_lshl_add_u32 v{R}, v{t}, 4, v{R}")
    R = WVB[4]
    for p in range(2):
        a.e(f"v_lshrrev_b32 v{t}, 4, v1"); a.e(f"v_lshlrev_b32 v{R+p}, 11, v{t}")
        a.e(f"v_add_u32 v{t}, {4*p}, v{t}"); a.e(f"v_lshlrev_b32 v{t}, 1, v{t}"); a.e(f"v_and_b32 v{t2}, 15, v1"); a.e(f"v_xor_b32 v{t}, v{t}, v{t2}")
        a.e(f"v_lshl_add_u32 v{R+p}, v{t}, 4, v{R+p}")
    R = WVB[3]
    assert all((p * 2341) >> 16 == p // 28 for p in range(448))
    for ii in range(7):
        a.e(f"v_add_u32 v{t2}, {64*ii}, v1"); a.e(f"v_mul_u32_u24 v{t}, 2341, v{t2}"); a.e(f"v_lshrrev_b32 v{t}, 16, v{t}")
        a.e(f"v_mul_u32_u24 v{R+ii}, 28, v{t}"); a.e(f"v_sub_u32 v{t2}, v{t2}, v{R+ii}")
        a.e(f"v_mul_u32_u24 v{R+ii}, 7168, v{t}")
        a.e(f"v_lshrrev_b32 v{t}, 1, v{t}"); a.e(f"v_and_b32 v{t}, 2, v{t}"); a.e(f"v_xor_b32 v{t2}, v{t2}, v{t}")
        a.e(f"v_lshl_add_u32 v{R+ii}, v{t2}, 4, v{R+ii}")
def w_srd(a, which):
    c = CFG[which]
    a.e(f"s_mov_b64 s[12:13], s[{66+2*which}:{67+2*which}]")
    a.e(f"s_mov_b32 s14, {c['KBT'] * 32 * c['LDW']}"); a.e("s_mov_b32 s15, 0x20000")
def w_setup(a, which, pre=True, lo=0):
    c = CFG[which]; STB = c["STB"]; BW = STB // 2
    w_srd(a, which)
    a.e("s_and_b32 s35, s30, 1")
    a.e(f"s_mul_i32 s38, s{29 if which != 4 else 33}, {c['RB']}");
    if which != 4: a.e(f"s_mul_i32 s41, s35, {32*c['LDW']}"); a.e("s_add_u32 s38, s38, s41")
    if which == 4: a.e(f"s_mul_i32 s41, s31, {1792*c['LDW']}"); a.e("s_add_u32 s38, s38, s41")
    a.e(f"s_mul_i32 s41, s35, {BW}"); a.e(f"s_add_u32 s41, s41, {c['WB']}")
    a.e("s_mov_b32 s42, 0"); rot_init(a, which)
    if not pre: return
    NP = c["NPRE"]
    a.e("s_mov_b32 s49, s44"); a.e("s_and_b32 s43, s28, 3"); a.e(f"s_mul_i32 s43, s43, {NP - lo}"); a.e("s_lshr_b32 s43, s43, 2"); a.e(f"s_mov_b32 s50, {lo}")
    if not WROT: a.e("s_mov_b32 s43, 0")
    if lo: a.e(f"s_add_u32 s43, s43, {lo}")
    L = a.lab("wpre"); a.e(f"{L}:")
    a.e(f"s_mul_i32 s42, s43, {STB}"); a.e("s_add_u32 s44, s49, s43")
    if which != 4: a.e("s_and_b32 s44, s44, 15")
    w_issue(a, which, pace=PACES.get(which, PACE))
    a.e("s_add_u32 s43, s43, 1"); a.e(f"s_cmp_eq_u32 s43, {NP}"); a.e(f"s_cselect_b32 s43, {lo}, s43")
    a.e("s_add_u32 s50, s50, 1"); a.e(f"s_cmp_lt_u32 s50, {NP}"); a.e(f"s_cbranch_scc1 {L}")
    mstamp(a)
    a.e(f"s_mov_b32 s42, {(NP % c['NW']) * STB}"); a.e(f"s_add_u32 s44, s49, {NP}")
    if which != 4: a.e("s_and_b32 s44, s44, 15")
def park_load(a, pace):
    w_srd(a, 2)
    a.e("s_and_b32 s35, s30, 3"); a.e("s_lshl_b32 s35, s35, 19"); a.e("s_lshl_b32 s39, s29, 7"); a.e("s_add_u32 s39, s39, s35")
    for q in range(32):
        a.e(f"buffer_load_dwordx4 {vr(PK+4*q,4)}, v{WVB[2]}, s[12:15], s39 offen"); a.e("s_add_u32 s39, s39, 16384")
        if q % 4 == 3: sb(a, SB[1])
        if pace and q % 4 == 3: a.e(f"s_waitcnt vmcnt({pace})")
def park(a): park_load(a, int(os.environ.get("PKP", "8")))
def late_park(a):
    X = a.lab("lp"); a.e("s_cmp_lg_u32 s60, 0"); a.e(f"s_cbranch_scc1 {X}"); call(a, park); a.e(f"{X}:")
def after_g1(a):
    c = CFG[3]
    w_srd(a, 3)
    a.e(f"v_readlane_b32 s36, v{TV+3}, 0"); a.e(f"v_readlane_b32 s37, v{TV+3}, 1")
    a.e("s_and_b32 s35, s30, 3"); a.e(f"s_mul_i32 s38, s35, {16*7168}"); a.e("s_mul_i32 s39, s29, 448"); a.e("s_add_u32 s38, s38, s39")
    for r in (36, 37): a.e(f"s_and_b32 s{r}, s{r}, 15"); a.e(f"s_mul_i32 s{r}, s{r}, {64*7168}"); a.e(f"s_add_u32 s{r}, s{r}, s38")
    a.e("s_mul_i32 s39, s35, 7168"); a.e(f"s_add_u32 m0, s39, {c['WB'] + c['S0'] * c['STB']}")
    for i in range(7):
        if i: a.e("s_add_u32 m0, m0, 1024")
        a.e(f"buffer_load_dwordx4 v{WVB[3]+i}, s[12:15], s36 offen lds")
    for i in range(7): a.e(f"buffer_load_dwordx4 {vr(W3S+4*i,4)}, v{WVB[3]+i}, s[12:15], s37 offen")
    a.e("s_lshr_b32 s36, s67, 2"); a.e("s_sub_u32 s36, s35, s36"); a.e("s_and_b32 s36, s36, 3"); a.e("s_lshl_b32 s36, s36, 15"); a.e(f"v_add_u32 v6, s36, v2")
    a.e("s_waitcnt vmcnt(14)")
    for q in range(32): a.e(f"ds_write_b128 v6, {vr(PK+4*q,4)} offset:{CFG[2]['WB'] + 1024*q}")
    a.e("s_waitcnt lgkmcnt(0)")
def after_g2(a):
    c = CFG[3]
    a.e("s_and_b32 s35, s30, 3"); a.e("s_mul_i32 s39, s35, 7168"); a.e(f"s_add_u32 s39, s39, {c['WB'] + (c['S0'] + 1) % c['NW'] * c['STB']}"); a.e("v_add_u32 v6, s39, v2")
    for i in range(7): a.e(f"ds_write_b128 v6, {vr(W3S+4*i,4)} offset:{1024*i}")
    a.e("s_waitcnt lgkmcnt(0)")
SUBX = {}
def call(a, f):
    SUBX[f.__name__] = f; a.e(f"s_call_b64 s[76:77], SUB_{f.__name__}")
def w1_slots(a, js, pace=0):
    for j in js:
        a.e(f"s_mov_b32 s42, {j*8192}"); a.e("s_mov_b32 s44, s67"); a.e(f"s_add_u32 s44, s44, {j}"); a.e("s_and_b32 s44, s44, 15")
        call_issue(a, w_issue, 1)
        if pace: a.e(f"s_waitcnt vmcnt({pace})")
def w1_done(a):
    a.e("s_mov_b32 s42, 0"); a.e("s_mov_b32 s44, s67"); a.e("s_add_u32 s44, s44, 13"); a.e("s_and_b32 s44, s44, 15")
class Rec:
    def __init__(s_): s_.l = []
    def e(s_, x): s_.l.append(x)
    srd = Asm.srd
def w_parts(which, direct=False):
    c = CFG[which]; STB = c["STB"]; n = STB // 2048; LDW = c["LDW"]; b = Rec()
    b.e("s_add_u32 s19, s41, s42")
    arm = ["s_mov_b32 m0, s19", "s_mov_b32 s39, s16"]
    if which == 4 and TAB:
        b.e(f"v_readlane_b32 s16, v{TV+1}, s44")
        b.e("s_bitcmp1_b32 s16, 0"); b.e(f"s_cselect_b32 s17, {8*2048}, {4*2048}".replace(f"{4*2048}", "s45")); b.e(f"s_cselect_b32 s18, {-20*2048}, s45")
        b.e("s_andn2_b32 s16, s16, 1"); b.e("s_add_u32 s16, s16, s38")
        b.l.insert(0, f"s_mov_b32 s45, {4*2048}")
        arm += ["s_mov_b32 s32, s17", "s_mov_b32 s3, s18"]
    elif which == 3 and TAB and not direct:
        b.e(f"v_readlane_b32 s16, v{TV}, s44"); b.e("s_add_u32 s16, s16, s38")
    elif which == 4:
        b.e("s_and_b32 s40, s30, 1"); kb4(b, 16, "s40")
        b.e(f"s_mul_i32 s16, s16, {32*LDW}"); b.e("s_add_u32 s16, s16, s38")
        b.e("s_cmp_eq_u32 s47, 3"); b.e("s_cselect_b32 s17, 8, 4"); b.e("s_cselect_b32 s18, -20, 4")
        b.e("s_lshl_b32 s17, s17, 11"); b.e("s_lshl_b32 s18, s18, 11")
        arm += ["s_mov_b32 s32, s17", "s_mov_b32 s3, s18"]
    else:
        b.e(f"s_mul_i32 s16, s44, {64*LDW}"); b.e("s_add_u32 s16, s16, s38")
    if f"w{which}" in os.environ.get("HOT", ""): b.e("s_mov_b32 s16, s38")
    rot_next(b, which)
    b.e(f"s_add_u32 s42, s42, {STB}"); b.e(f"s_cmp_eq_u32 s42, {c['NW']*STB}"); b.e("s_cselect_b32 s42, 0, s42")
    fire = []
    for i in range(n):
        g = []
        if i:
            g.append("s_add_u32 m0, m0, 1024")
            if which in (1, 2): g.append(f"s_add_u32 s39, s39, {8*LDW}")
            elif which == 4: g.append(f"s_add_u32 s39, s39, s{3 if i == 4 else 32}")
            elif i == 7: g.append(f"s_add_u32 s39, s39, {16*LDW}")
        vo = WVB[which] + (0 if which in (1, 2) else (i & 1) if which == 4 else i % 7)
        fire.append(g + [f"buffer_load_dwordx4 v{vo}, s[12:15], s39 offen lds"])
    if f"w{which}" in os.environ.get("NOLD", ""): fire = [[x for x in g if not x.startswith("buffer_load")] + ["s_nop 0"] for g in fire]
    return b.l, arm, fire
def w_issue(a, which, pace=0, direct=False):
    prep, arm, fire = w_parts(which, direct)
    for x in prep + arm: a.e(x)
    for i, g in enumerate(fire):
        for x in g: a.e(x)
        if pace and (i % 4 == 3 or i == len(fire) - 1): a.e(f"s_waitcnt vmcnt({pace})")

def w_bases(a, which, dst, swn, ntl, t, t2):
    c = CFG[which]; RB = c["RB"]
    a.e(f"v_lshrrev_b32 v{t}, 2, v1")
    a.e(f"v_mul_u32_u24 v{dst}, {RB}, v{t}"); a.e(f"v_and_b32 v{t2}, 3, v1"); a.e(f"v_lshl_add_u32 v{dst}, v{t2}, 3, v{dst}")
    a.e(f"v_add_u32 v{dst}, {c['WB']}, v{dst}")
    if which == 3:
        a.e(f"s_mul_i32 s36, s{swn}, {7*32}"); a.e(f"v_add_u32 v{dst}, s36, v{dst}")
        a.e(f"v_bfe_u32 v{t}, v1, 4, 1"); a.e(f"v_lshlrev_b32 v{t}, 5, v{t}")
        a.e(f"s_cmp_eq_u32 s{swn}, 0"); a.e("s_cselect_b32 s36, 1, -1"); a.e(f"v_mul_lo_u32 v{t}, v{t}, s36")
        a.e(f"v_sub_u32 v{dst+1}, v{dst}, v{t}"); a.e(f"v_add_u32 v{dst}, v{dst}, v{t}")
        return 2, lambda nt, kk, h: (nt & 1, (32 * kk + 16 * h) * RB + 32 * nt)
    if which == 4: a.e(f"v_and_b32 v{t}, 7, v{t}")
    else: a.e(f"v_bfe_u32 v{t}, v{t}, 1, 2")
    for nt in range(ntl - 1, -1, -1):
        a.e(f"s_mul_i32 s36, s{swn}, {ntl}"); a.e(f"s_add_u32 s36, s36, {nt}")
        a.e(f"v_xor_b32 v{t2}, s36, v{t}"); a.e(f"v_lshl_add_u32 v{dst+nt}, v{t2}, 5, v{dst}")
    return ntl, lambda nt, kk, h: (nt, (32 * kk + 16 * h) * RB)

def a_parts(which):
    c = CFG[which]; b = Rec()
    if which <= 2 and NX:
        b.e("s_and_b32 s42, s48, 7"); b.e("s_lshl_b32 s42, s42, 14"); b.e("s_lshr_b64 s[48:49], s[48:49], 4")
    b.e("s_add_u32 s19, s41, s42")
    arm = ["s_mov_b32 m0, s19", "s_mov_b32 s39, s16"]; fire = []
    if which == 2:
        b.e(f"s_mul_i32 s16, s44, {8*PITCH}"); b.e("s_add_u32 s16, s16, s38")
        b.e("s_lshr_b32 s45, s44, 2"); b.e("s_xor_b32 s45, s45, s94"); b.e("s_and_b32 s45, s45, 1"); b.e("s_lshl_b32 s45, s45, 13"); b.e("s_add_u32 s16, s16, s45")
        b.e("s_lshr_b32 s45, s44, 3"); b.e("s_lshl_b32 s45, s45, 4"); b.e("s_add_u32 s45, s45, 16")
        b.e("s_sub_u32 s46, 0, s45"); b.e("s_bitcmp1_b32 s44, 2"); b.e("s_cselect_b32 s45, s45, s46"); b.e("s_add_u32 s16, s16, s45")
        step = PITCH
    elif which == 4:
        for lw in range(2):
            if TAB: b.e(f"v_readlane_b32 s{16+lw}, v{TV+1+lw}, s44")
            else: kb4(b, 16 + lw, lw); spread(b, 16 + lw, 16 + lw)
        for lw in range(2): b.e(f"s_add_u32 s{16+lw}, s{16+lw}, s38")
        arm.append("s_mov_b32 s40, s17")
        for i in range(4):
            for lw in range(2):
                fire.append((["s_add_u32 m0, m0, 1024"] if i or lw else []) + ([f"s_add_u32 s{39+lw}, s{39+lw}, {c['KBT']*2048}"] if i else []) +
                            [f"buffer_load_dwordx4 v2, s[12:15], s{39+lw} offen {SC} lds"])
    elif which == 3 and TAB:
        b.e(f"v_readlane_b32 s16, v{TV}, s44"); b.e("s_add_u32 s16, s16, s38"); step = c['KBT'] * 2048
    else:
        b.e("s_lshr_b32 s45, s44, 2"); b.e("s_lshl_b32 s45, s45, 14"); b.e("s_and_b32 s16, s44, 3"); b.e("s_lshl_b32 s16, s16, 11")
        b.e("s_add_u32 s16, s16, s45"); b.e("s_add_u32 s16, s16, s38"); step = c['KBT'] * 2048
    if f"a{which}" in os.environ.get("HOT", ""):
        b.e("s_mov_b32 s16, s38")
        if which == 4: b.e("s_add_u32 s17, s38, 1024")
    for i in range(4 if which != 4 else 0):
        fire.append((["s_add_u32 m0, m0, 2048", f"s_add_u32 s39, s39, {step}"] if i else []) + [f"buffer_load_dwordx4 v2, s[12:15], s39 offen {SC} lds"])
        fire.append([f"buffer_load_dwordx4 v2, s[12:15], s39 offen offset:1024 {SC} lds"])
    rot_next(b, which)
    if not (which <= 2 and NX):
        b.e(f"s_add_u32 s42, s42, 16384"); b.e(f"s_cmp_eq_u32 s42, {c['NA']*16384}"); b.e("s_cselect_b32 s42, 0, s42")
    if f"a{which}" in os.environ.get("NOLD", ""): fire = [[x for x in g if not x.startswith("buffer_load")] + ["s_nop 0"] for g in fire]
    return b.l, arm, fire
def a_issue(a, which):
    prep, arm, fire = a_parts(which)
    for x in prep + arm + sum(fire, []): a.e(x)
SUBS = {}
def call_issue(a, issue, which):
    nm = f"SUB_{issue.__name__}_{which}"; SUBS[nm] = (issue, which)
    a.e(f"s_call_b64 s[76:77], {nm}")
def emit_subs(a):
    for nm, f in SUBX.items(): a.e(f"SUB_{nm}:"); f(a); a.e("s_setpc_b64 s[76:77]")
    for nm, (issue, which) in SUBS.items():
        a.e(f"{nm}:"); issue(a, which); a.e("s_setpc_b64 s[76:77]")
def ld_steps(a, which, N, per, issue, npre, rate=2, plan={}, lo=0, hi=None, last=None, hold=(), sched=None, armed=False):
    NS = CFG[which]["NS"]
    prep, arm, fire = (w_parts if issue is w_issue else a_parts)(which); h = max(1, per * HSPLIT // 8)
    plan = {b: (x if isinstance(x, list) else [x]) for b, x in plan.items()}
    q = [s_ for s_ in range(npre) for _ in range(per)]
    def after(tag):
        if issue is w_issue and isinstance(tag, int) and tag < npre: tag = npre - 1
        return len(q) - 1 - max(i for i, x in enumerate(q) if x == tag)
    issued = npre; steps = []
    for b in range(NS):
        acts = plan.get(b, []); was = {}
        def do(pos):
            for n_, act in enumerate(acts):
                if act[0] != pos: continue
                if act[1] is not None: was[n_] = after(act[1])
                q.extend([act[4]] * act[3])
        do(True)
        k = 0
        if (b > 0 or (sched is not None and issue is a_issue)) and b not in hold:
            k = max(0, min(rate, min(NS, b - 1 + N) - issued)) if sched is None else sched[b]
        assert k or not any(x[0] == "mid" for x in acts)
        for j in range(k):
            q.extend([issued] * h)
            if j == 0: do("mid")
            q.extend([issued] * (per - h)); issued += 1
        do(False)
        w = after(b); assert w <= 63
        steps.append((k, w, b if acts else None, tuple(sorted(was.items())), issued < NS))
    def em(l):
        for x in l:
            a.e(x)
            if x == "s_barrier" and os.environ.get("JIT"): mstamp(a)
    F1, F2 = sum(fire[:h], []), sum(fire[h:], [])
    lprep = prep
    if len(prep) > 8:
        nm = f"PREP_{issue.__name__}_{which}"; SUBS[nm] = ((lambda a_, w_, l=prep: [a_.e(x) for x in l]), which)
        prep = [f"s_call_b64 s[76:77], {nm}"]
    if lo == 0 and npre < NS and not armed: em(prep + arm)
    i = lo; HI = NS if hi is None else hi
    while i < HI:
        j = i
        while j < HI and steps[j] == steps[i]: j += 1
        k, w, ab, was, more = steps[i]; n = j - i; was = dict(was)
        def run(pos):
            for n_, act in enumerate(plan.get(ab, [])):
                if act[0] != pos: continue
                if n_ in was: a.e(f"s_waitcnt vmcnt({was[n_]})")
                act[2]()
        tail = [f"s_waitcnt vmcnt({w})", "s_barrier"]
        if n > 2 and k == 1:
            em(F1); a.e("s_mov_b32 s43, 1"); L = a.lab("ld"); a.e(f"{L}:")
            em(lprep + F2 + arm + tail + F1)
            a.e("s_add_u32 s43, s43, 1"); a.e(f"s_cmp_lt_u32 s43, {n}"); a.e(f"s_cbranch_scc1 {L}")
            em(prep + F2 + arm + tail)
        else:
            for r in range(n):
                run(True)
                for jj in range(k):
                    nxt = more or jj < k - 1
                    em(F1)
                    if jj == 0: run("mid")
                    em((prep if nxt else []) + F2 + (arm if nxt else []))
                run(False)
                em(tail)
        i = j
    if hi is not None: return
    if which == 4:
        if issue is a_issue: a.e("s_cmp_eq_u32 s60, 1"); a.e("s_cbranch_scc1 K_fin")
        elif hold is HOLD: a.e("s_branch K_fin"); return
        if not RPL: r_pre(a)
    if last: last()
    late = os.environ.get("TLATE", "0") == "1"
    if late: a.e("s_barrier")
    if issue is a_issue and W4POS == f"{which}C":
        X = a.lab("tw4"); a.e("s_cmp_lg_u32 s60, 0"); a.e(f"s_cbranch_scc1 {X}"); touch(a, B_W4, 7 * MB, 20); a.e(f"{X}:")
    if not late: a.e("s_barrier")

RK = int(os.environ.get("RK", "7")); assert RK == 0 or 4 <= RK <= STQ
PA2 = int(os.environ.get("PA2", "1")); PBB = int(os.environ.get("PBB", "2")); PC0 = int(os.environ.get("PC0", "4"))
HOLD = eval(os.environ.get("HOLD", "[2,3,4]"))
def a_loader(a, which):
    c = CFG[which]
    if which <= 2:
        plan = side_jobs(a, 1) if which == 1 else {}
        if which == 1 and "1" in DP: mstamp(a); a.e(f"s_sleep {os.environ.get('SJD', '30')}")
        else: poll(a, which - 1, 8)
        mstamp(a)
        for b in sorted(plan):
            for act in (plan[b] if isinstance(plan[b], list) else [plan[b]]):
                if act[1] is not None: a.e("s_waitcnt vmcnt(0)")
                act[2]()
        if which == 1 and "2" in DP:
            a.e("s_cmp_eq_u32 s60, 0"); a.e("s_cbranch_scc1 AL_nw"); a.e("s_cmp_lg_u32 s30, 4"); a.e("s_cbranch_scc1 AL_nw")
            a.e(f"s_add_u32 s54, s55, {(fso(ST_G2) - LSTR) & 0xffffffff:#x}"); a.e("s_add_u32 s53, s54, s92"); a.e("v_mov_b32 v9, s53")
            a.e("s_add_u32 s53, s54, s93"); a.e("v_writelane_b32 v9, s53, 1")
            poll_core(a, 8, [9], 3, cnt=16)
            a.e("AL_nw:")
        if which == 2: a.e("s_waitcnt vmcnt(0)")
        a.e("s_barrier")
        if which == 1 and "p" not in os.environ.get("FO", "1pd"): late_park(a)
        call(a, after_g1 if which == 1 else after_g2)
        return
    a.e("s_and_b32 s35, s30, 1")
    if which == 2:
        hs_srd(a, 12)
        a.e("s_lshl_b32 s38, s28, 11"); a.e("s_add_u32 s38, s38, 16384"); a.e(f"s_mul_i32 s36, s35, {4*PITCH}"); a.e("s_add_u32 s38, s38, s36")
    else:
        lsrd(a, 12, c["A"], XSZ if which != 4 else H2SZ)
        a.e(f"s_mul_i32 s38, s35, {4*c['KBT']*2048}")
        if which == 4: a.e(f"s_mul_i32 s36, s31, {7*16384}"); a.e("s_add_u32 s38, s38, s36")
    a.e("s_lshl_b32 s41, s35, 13"); a.e("s_mov_b32 s42, 0"); rot_init(a, which)
    assert c["NA"] == 3
    prep, arm, fire = a_parts(which)
    if which == 4:
        flag_addr(a, 9, ST_G3A); flag_addr(a, 10, ST_G3B); flag_addr(a, 12, ST_G3)
        a.e("v_mov_b32 v13, 1"); a.e("s_and_b32 s51, s30, 1"); a.e("s_lshl_b32 s51, s51, 30")
        def signal(r): a.e("s_mov_b64 exec, 1"); a.e(f"buffer_atomic_add v13, v{r}, s[56:59], s51 offen {SC}"); a.e("s_mov_b64 exec, -1")
        a.e("s_lshl_b32 s54, s60, 2"); a.e("s_add_u32 s54, s54, 4"); lds_spin(a, LW + 64, "s54", 14, nap=2)
        signal(9)
        if not PA2: poll_core(a, 8, [9], 1, cnt=8)
        mstamp(a)
        plan = {6 - L4: ("mid", None, lambda: flag_try(a, 11, 10), 1, "f"), 8 - L4: ("mid", "f", lambda: flag_check(a, 11, 10, 8), 0, None),
                13 - L4: ("mid", None, lambda: flag_try(a, 11, 12), 1, "g"), 15 - L4: ("mid", "g", lambda: flag_check(a, 11, 12, 8), 0, None)}
        plan = {k_: [x] for k_, x in plan.items()}
        if PA2:
            plan[1] = [(False, None, lambda: flag_try(a, 8, 9), 1, "a")]
            plan[2] = [(True, "a", lambda: flag_check(a, 8, 9, 8), 0, None)]
        if DP:
            a.e("v_xor_b32 v15, 128, v12")
            plan[20] = [("mid", None, lambda: flag_try(a, 11, 15), 1, "h")]; plan[22] = [("mid", "h", lambda: flag_check(a, 11, 15, 8), 0, None)]
        plan.setdefault(PBB + 1, []).insert(0, (True, None, lambda: signal(10), 1, "s"))
        plan.setdefault(PC0 + 2, []).insert(0, (True, None, lambda: signal(12), 1, "s"))
        a.e("s_mov_b32 s44, 3")
        ld_steps(a, which, 3, 8, a_issue, 3, plan=plan); return
    if which == 3:
        mask, cnt = flag_addr(a, 9, ST_G2)
        def wait2():
            if B0E > 1: a.e(f"s_sleep {B0E}")
            poll_core(a, 8, [9], mask, cnt=cnt); mstamp(a); mstamp(a)
            if W3H: a.e("s_add_u32 s54, s60, 1"); lds_set(a, LW + 60, "s54", 10)
        rot_next(a, 3); a.e("s_mov_b32 s42, 16384")
        plan = side_jobs(a, 3)
        if os.environ.get("P30", "0") == "1":
            def wait0(): own_wait(a, ST_G2, False, 14); wait2()
            plan[0] = (True, None, wait0, 0, None)
            ld_steps(a, which, 3, 8, a_issue, 1, plan=plan, sched=[int(os.environ.get("P3N", "1")), 2 - int(os.environ.get("P3N", "1"))] + [1] * 13 + [0]); return
        plan[1] = (True, None, wait2, 0, None)
        if RPL: plan[15] = (False, None, lambda: call(a, r_pre0), 8, "r")
        PZ3 = int(os.environ.get("PZ3", "0"))
        if PZ3:
            a.srd(84, 4, 32 * MB, off=216 * MB)
            a.e("s_cmp_eq_u32 s60, 0"); a.e("s_cselect_b32 s86, s86, 0")
            for i in range(4): a.e(f"v_mov_b32 v{216+i}, -1")
            a.e("s_lshl_b32 s88, s2, 1"); a.e("s_and_b32 s50, s30, 1"); a.e("s_add_u32 s88, s88, s50"); a.e(f"s_mul_i32 s88, s88, {PZ3*12*1024}")
            def pz():
                for i in range(PZ3): a.e(f"buffer_store_dwordx4 v[216:219], v2, s[84:87], s88 offen offset:{i*1024} {SC}")
                a.e(f"s_add_u32 s88, s88, {PZ3*1024}")
            for b in range(2, 14):
                p_ = plan.get(b, []); p_ = p_ if isinstance(p_, list) else [p_]
                plan[b] = p_ + [(False, None, pz, PZ3, "z")]
        ld_steps(a, which, 3, 8, a_issue, 1, plan=plan); return
    assert 0

def side_jobs(a, which):
    c = CFG[which]; plan = {}
    sv = 16; S, Q, mean, rs, tt, ad, fa, fr = 216, 217, 218, 219, 220, 221, 222, 223
    cv = 180 if which == 3 else 24; N = c["LDW"] // 2; co_ = 224; HB = c["TN16"] * 32
    lg = 3 if which == 1 else 5
    def cld(k0=0, k1=4):
        if k0 == 0:
            a.srd(24, 4, 32 * N * 4, off=CSP[which])
            a.e("s_cmp_eq_u32 s60, 0"); a.e("s_cselect_b32 s26, s26, 0")
            if NOCS3 and which == 3: a.e("s_mov_b32 s26, 0")
            a.e("s_and_b32 s36, s30, 1"); a.e(f"s_mul_i32 s36, s36, {HB}"); a.e(f"s_mul_i32 s37, s29, {2*HB}"); a.e("s_add_u32 s37, s36, s37")
            a.e(f"v_lshrrev_b32 v{co_}, {lg}, v1"); a.e(f"v_mul_u32_u24 v{co_}, {N*4}, v{co_}")
            a.e(f"v_and_b32 v{cv-1}, {16*((1 << lg) - 1)}, v2"); a.e(f"v_add_u32 v{co_}, v{co_}, v{cv-1}")
        for k in range(k0, k1):
            a.e(f"buffer_load_dwordx4 {vr(cv+4*(k if k < 9 else k - 8),4)}, v{co_}, s[24:27], s37 offen {SC}"); a.e(f"s_add_u32 s37, s37, {N*4*(64 >> lg)}")
    def piece(lines, l0=False):
        def f():
            X = a.lab("pc")
            if l0: a.e("s_cmp_lg_u32 s60, 0"); a.e(f"s_cbranch_scc1 {X}")
            for x in lines: a.e(x)
            if l0: a.e(f"{X}:")
        return f
    def cadd(k0, k1): return [f"v_add_f32 v{cv+h}, v{cv+h}, v{cv+4*k+h}" for k in range(k0, k1) for h in range(4)]
    def sw(op): return [f"v_mov_b32 v{cv+4+e}, v{cv+e}" for e in range(4)] + [f"{op} v{cv+e}, v{cv+4+e}" for e in range(4)] + cadd(1, 2)
    if which in (1, 3):
        cout = ["s_and_b32 s36, s30, 1", f"s_mul_i32 s36, s36, {HB}", f"s_add_u32 s36, s36, {CSO[which]}", f"v_add_u32 v{cv-1}, s36, v2",
                f"s_bfm_b64 exec, {HB//16}, 0", f"ds_write_b128 v{cv-1}, {vr(cv,4)}", "s_mov_b64 exec, -1", "s_waitcnt lgkmcnt(0)"]
    if which == 1:
        flag_addr(a, fa, ST_R2)
        def ld():
            flag_check(a, fr, fa, 16)
            lsrd(a, 20, oLNS, 2048); a.e("s_and_b32 s35, s30, 1"); a.e("s_lshl_b32 s35, s35, 10")
            a.e(f"buffer_load_dwordx4 {vr(sv,4)}, v2, s[20:23], s35 offen {SC}")
        fin = piece(["s_and_b32 s36, s30, 1", "s_lshl_b32 s36, s36, 10", f"s_add_u32 s36, s36, {LNSL}", f"v_add_u32 v{ad}, s36, v2", f"ds_write_b128 v{ad}, {vr(sv,4)}", "s_waitcnt lgkmcnt(0)"])
        a.e("s_lshl_b32 s53, s29, 7"); a.e(f"s_add_u32 s53, s53, {F_CS}"); a.e(f"v_mov_b32 v{fa+4}, s53")
        def cld1(): flag_check(a, fr + 4, fa + 4, 16); cld()
        work = cadd(1, 4) + [f"v_add_f32_dpp v{cv+e}, v{cv+e}, v{cv+e} row_ror:8 row_mask:0xf bank_mask:0xf" for e in range(4)] + \
               sw("v_permlane16_swap_b32") + sw("v_permlane32_swap_b32")
        plan = {2: (False, None, lambda: flag_try(a, fr + 4, fa + 4), 1, "e"), 5: [(False, "e", cld1, 4, "c"), (False, None, lambda: flag_try(a, fr, fa), 1, "f")],
                8: (False, "f", ld, 1, "d"), 15: [(False, None, piece(cout, 1), 0, None), (False, "d", fin, 0, None)]}
        plan[9] = (False, None, piece(work, 1), 0, None)
    if which == 3:
        flag_addr(a, fa, ST_G2S)
        a.e(f"v_lshlrev_b32 v{ad}, 3, v1")
        def ld(k0):
            def f():
                if k0 == 0:
                    flag_check(a, fr, fa, 16)
                    lsrd(a, 20, oST2, 24576)
                    a.e("s_and_b32 s35, s30, 1"); a.e("s_lshl_b32 s35, s35, 9")
                a.e(f"s_add_u32 s36, s35, {k0*2048}")
                for k in range(k0, k0 + 8):
                    if k % 8 == 4: a.e("s_add_u32 s36, s36, 4096")
                    a.e(f"buffer_load_dwordx2 {vr(sv+2*k,2)}, v{ad}, s[20:23], s36 offen offset:{(k&3)*1024} {SC}")
            return f
        b = Rec()
        for st_ in (8, 4, 2, 1):
            for k in range(2 * st_): b.e(f"v_add_f32 v{sv+k}, v{sv+k}, v{sv+2*st_+k}")
        o_ = sv + 4
        b.e(f"v_mul_f32 v{o_}, {f32(1/1024)}, v{sv}"); b.e(f"v_mul_f32 v{Q}, {f32(1/1024)}, v{sv+1}")
        b.e(f"v_fma_f32 v{Q}, -v{o_}, v{o_}, v{Q}"); b.e(f"v_max_f32 v{Q}, 0, v{Q}")
        ln_finish(b, o_, Q, rs, o_ + 1)
        b.e(f"v_mul_f32 v{o_+2}, {f32(GC1)}, v{rs}"); b.e(f"v_mul_f32 v{o_+3}, v{rs}, v{rs}")
        b.e(f"v_mul_f32 v{o_+3}, v{o_+3}, v{o_+2}"); b.e(f"v_mul_f32 v{o_+3}, {f32(0.044715)}, v{o_+3}")
        b.e("s_lshl_b32 s35, s35, 1"); b.e(f"s_add_u32 s35, s35, {LNSL}"); b.e(f"v_add_u32 v{tt}, s35, v2")
        b.e(f"ds_write_b128 v{tt}, {vr(o_,4)}"); b.e("s_waitcnt lgkmcnt(0)")
        def both(f, g):
            def h(): f(); g()
            return h
        plan = {2: (False, None, cld, 4, "c"), 3: (False, None, lambda: cld(4, 9), 5, "c"),
                5: [(False, "c", piece(cadd(1, 5), 1), 0, None), (False, None, lambda: flag_try(a, fr, fa), 1, "f")],
                6: (False, None, both(piece(cadd(5, 9), 1), lambda: cld(9, 16)), 7, "e"),
                7: (False, "f", ld(0), 8, "d"), 8: (False, None, ld(8), 8, "d"),
                9: (False, "e", piece(cadd(1, 5), 1), 0, None), 10: (False, None, piece(cadd(5, 8), 1), 0, None), 11: (False, None, piece(sw("v_permlane32_swap_b32") + cout, 1), 0, None),
                12: (False, "d", piece(b.l[:16]), 0, None), 13: (False, None, piece(b.l[16:32]), 0, None), 14: (False, None, piece(b.l[32:]), 0, None)}
    return plan

W2E = int(os.environ.get("W2E", "3"))
def w2_early(a):
    if W2E: w_setup(a, 2, pre=False); w1_slots(a, range(W2E), pace=8)
def w_loader(a, which):
    c = CFG[which]
    if which < 3:
        if which == 1: a.e("s_waitcnt vmcnt(0)")
        if which == 1 and "a" in STO: stouch(a, 3, 128 if "8" in STO else 64, 2); mstamp(a)
        if which == 1 and sum(SG): sb_init(a)
        sg(a, SG[2*which-2])
        if not (which == 1 and "1" in DP): a.e("s_barrier")
        sg(a, SG[2*which-1])
        if which == 1 and "b" in STO: stouch(a, 3, 128 if "8" in STO else 64, 2); mstamp(a)
        if which == 2: a.e("s_waitcnt vmcnt(0)")
        a.e("s_barrier")
        if which == 1 and "p" not in os.environ.get("FO2", "1pd"): late_park(a)
        call(a, after_g1 if which == 1 else after_g2); mstamp(a)
        return
    args = (a, which, c["NW"], c["STB"] // 2048, w_issue, c["NPRE"], c["WR"])
    if which == 4:
        assert c["NW"] == 6 and c["WB"] == CFG[1]["WB"] + 3 * 8192
        a.e("s_cmp_eq_u32 s60, 1"); a.e("s_cbranch_scc1 WL_t1")
        ld_steps(*args, hi=24)
        WT = eval(os.environ.get("WT", "[(11,12,15,9),(13,14,10),(3,4),(5,6,0),(7,8,1,2),()]"))
        def some(js):
            def f():
                if js is WT[0]: w_setup(a, 1, pre=False)
                for j in js:
                    if j in (9, 10) and js is not WT[5]:
                        a.e(f"s_add_u32 s39, s38, {j*64*2048}")
                        for i in range(4): a.e(f"buffer_load_dwordx4 {vr(16+16*(j-9)+4*i,4)}, v{WVB[1]}, s[12:15], s39 offen"); a.e("s_add_u32 s39, s39, 16384")
                    else: w1_slots(a, (j,), pace=8 if js is WT[5] else 0)
            return f
        plan = {24 + i: (False, None, some(WT[i]), 4 * len(WT[i]), "w") for i in range(4) if WT[i]}
        ld_steps(*args, plan=plan, lo=24, last=some(WT[4]))
        rg = [j for j in (9, 10) if j not in WT[5]]
        if rg:
            a.e(f"s_add_u32 s36, s41, {9*8192}"); a.e("v_add_u32 v6, s36, v2"); a.e("s_waitcnt vmcnt(0)")
            for j in rg:
                for i in range(4): a.e(f"ds_write_b128 v6, {vr(16+16*(j-9)+4*i,4)} offset:{(j-9)*8192+i*1024}")
            a.e("s_waitcnt lgkmcnt(0)")
        some(WT[5])(); mstamp(a)
        a.e("s_branch NEXT")
        a.e("WL_t1:")
        ld_steps(*args, hold=HOLD)
        return
    plan = {}
    if W3H: plan[1] = (True, None, lambda: (a.e("s_add_u32 s54, s60, 1"), lds_spin(a, LW + 60, "s54", 6, nap=1)), 0, None)
    def sg3(n):
        def f():
            X = a.lab("st"); a.e("s_cmp_lg_u32 s60, 0"); a.e(f"s_cbranch_scc1 {X}"); sb(a, n); a.e(f"{X}:")
        return f
    for b_, n_ in eval(os.environ.get("SG3", "{}")).items(): plan[b_] = (False, None, sg3(n_), 0, None)
    if RPL: plan[int(os.environ.get("RPW", "15"))] = (False, None, lambda: call(a, r_pre0), 8, "r")
    ld_steps(*args, plan=plan)
W3H = int(os.environ.get("W3H", "0"))
W1L = int(os.environ.get("W1L", "3"))

B0E = int(os.environ.get("B0E", "6")); RPL = int(os.environ.get("RPL", "1")); RPC = int(os.environ.get("RPC", "1"))
LF1 = os.environ.get("LF1", "sc1"); LF2 = os.environ.get("LF2", "")
RES2 = 160; C2R = 200; SO3 = 238; RES4 = [172, 176, 180, 184, 188, 192, 196, 240]
def g_compute(a, which):
    c = CFG[which]
    WM, WN, MT, NT, KBT, NS, NA, NW, TN16, STB, WB = [c[k] for k in "WM WN MT NT KBT NS NA NW TN16 STB WB".split()]
    v = VA(6); nm = f"G{which}"
    lane = 1; l16 = 2
    t = v(); t2 = v(); pt = v(4, 2)
    NTILE = 29 if which != 4 else 33
    a_ = a
    if which == 4: a = Rec()
    if WN == 2: a.e("s_lshr_b32 s34, s30, 1"); a.e("s_and_b32 s35, s30, 1")
    else: a.e("s_mov_b32 s34, s30"); a.e("s_mov_b32 s35, 0")
    a0 = v(); w0 = v(4, 1); aa = v(); wa = v(4, 1); J = v(); G = v()
    a.e(f"v_and_b32 v{J}, 15, v{lane}"); a.e(f"v_lshrrev_b32 v{G}, 4, v{lane}")
    a.e(f"s_mul_i32 s37, s34, {MT}")
    a.e(f"s_mul_i32 s38, s{NTILE}, {TN16}"); a.e(f"s_mul_i32 s36, s35, {NT}"); a.e("s_add_u32 s38, s38, s36")
    acc = v(MT * NT * 4, 4); NF = MT + NT if which > 2 else 8
    fX = v(NF * 4, 4); fY = v(NF * 4, 4); tmp = v(); tp = v(4, 2)
    def A_(mt, nt): return acc + 4 * (mt * NT + nt)
    def SUBM(r): return f"{vr(r,2)} op_sel_hi:[1,0] neg_lo:[0,1] neg_hi:[0,1]"
    def MULR(r): return f"{vr(r,2)} op_sel:[0,1] op_sel_hi:[1,1]"
    if which in (2, 4):
        res = RES2
        a.e("s_lshr_b32 s36, s38, 1"); spread(a, 39, 36); a.e("s_lshl_b32 s36, s37, 16"); a.e("s_add_u32 s39, s39, s36")
    if which <= 2:
        AB = 176; LO = v(8, 1)
        if which == 1:
            lsrd(a, 8, oX3, XSZ); OOB = MB
            for i in range(4): a.e(f"v_add_u32 v{LO+i}, {(i & 1) * 65536 + (i >> 1) * 4096}, v{l16}")
        else:
            hs_srd(a, 8); OOB = 128 * PITCH
            a.e(f"v_mul_u32_u24 v{LO}, {PITCH}, v{G}"); a.e(f"v_lshl_add_u32 v{LO}, v{J}, 4, v{LO}")
            for i in range(1, 8): a.e(f"v_add_u32 v{LO+i}, {4*PITCH*i}, v{LO}")
        for i in range(4):
            a.e("s_lshr_b32 s36, s67, 2"); a.e(f"s_add_u32 s36, s36, {i}"); a.e("s_and_b32 s36, s36, 3")
            if which == 1: a.e(f"s_lshl_b32 s{44+i}, s36, 14"); a.e("s_lshl_b32 s36, s34, 17")
            else:
                a.e(f"s_mul_i32 s{44+i}, s36, {32*PITCH}")
                a.e("s_xor_b32 s53, s36, s94"); a.e("s_and_b32 s53, s53, 1"); a.e("s_lshl_b32 s53, s53, 13"); a.e(f"s_add_u32 s{44+i}, s{44+i}, s53")
                a.e("s_lshr_b32 s53, s36, 1"); a.e("s_lshl_b32 s53, s53, 4"); a.e("s_add_u32 s53, s53, 16")
                a.e("s_sub_u32 s54, 0, s53"); a.e("s_bitcmp1_b32 s36, 0"); a.e("s_cselect_b32 s53, s53, s54"); a.e(f"s_add_u32 s{44+i}, s{44+i}, s53")
                a.e("s_lshl_b32 s36, s28, 2"); a.e("s_add_u32 s36, s36, s34"); a.e("s_lshl_b32 s36, s36, 9"); a.e("s_add_u32 s36, s36, 16384")
            a.e(f"s_add_u32 s{44+i}, s{44+i}, s36")
        def aload(b, kk):
            if which == 1: return [f"buffer_load_dwordx4 {vr(AB+16*b+8*kk+4*mt,4)}, v{LO+mt+(b&2)}, s[8:11], s44 offen offset:{(b&1)*2048+kk*1024} {LF1}" for mt in range(2)]
            return [f"buffer_load_dwordx4 {vr(AB+16*b+8*kk+4*mt,4)}, v{LO+2*b+kk}, s[8:11], s44 offen offset:{mt*256} {LF2}" for mt in range(2)]
    else:
        a.e(f"s_mul_i32 s36, s34, {MT*2048}"); a.e(f"v_add_u32 v{a0}, s36, v{l16}")
    nwr, wpos = w_bases(a, which, w0, 35, NT, t, t2)
    a = a_
    if which == 3 and not B0E: publish(a, ST_G2S, 4, pt, ctr=48)
    if which == 2:
        a.e(f"s_lshl_b32 s36, s37, 8"); a.e(f"s_add_u32 s36, s36, {LNSL}"); a.e(f"v_lshlrev_b32 v{t2}, 4, v{J}"); a.e(f"v_add_u32 v{t2}, s36, v{t2}")
        for mt in range(MT): a.e(f"ds_read_b64 {vr(fX+2*mt,2)}, v{t2} offset:{mt*256}")
        a.e("s_waitcnt vmcnt(4) lgkmcnt(0)")
        for mt in range(MT):
            for p in range(NT // 2):
                for e in range(4):
                    X = A_(mt, 2 * p) + 2 * e
                    unpack(a, X, X + 1, res + (mt * (NT // 2) + p) * 4 + e)
                    a.e(f"v_pk_add_f32 {vr(X,2)}, {vr(X,2)}, {SUBM(fX+2*mt)}"); round2(a, X, X + 1, tmp)
                    a.e(f"v_pk_mul_f32 {vr(X,2)}, {vr(X,2)}, {MULR(fX+2*mt)}"); round2(a, X, X + 1, tmp)
    elif which == 1:
        for i in range(0, MT * NT * 4, 2): a.e(f"v_pk_mov_b32 {vr(acc+i,2)}, 0, 0")
    RX = [180, 184, 188, 192, 196, 230, 234, 248]
    def last_res():
        b0 = Rec()
        for i in range(2):
            b0.e(f"s_add_u32 s36, s40, {i*65536}")
            for p in range(2):
                b0.e(f"buffer_load_dwordx4 {vr(RX[2*(2*i+p)],4)}, v{l16}, s[84:87], s36 offen offset:{p*1024} {SC}")
                b0.e(f"buffer_load_dwordx4 {vr(RX[2*(2*i+p)+1],4)}, v{l16}, s[88:91], s36 offen offset:{p*1024} {SC}")
        return b0.l
    def reads(F, kk):
        o = []
        for mt in range(MT): o.append(f"ds_read_b128 {vr(F+4*mt,4)}, v{aa} offset:{mt*256+kk*8192 if which == 2 else mt*2048+kk*1024}")
        for nt in range(NT):
            for h in range(2):
                r, imm = wpos(nt, kk, h)
                o.append(f"ds_read_b64_tr_b16 {vr(F+4*(MT+nt)+2*h,2)}, v{wa+r} offset:{imm}")
        NR = os.environ.get("NOREAD")
        if NR == "N": o = []
        if NR == "A": o = o[MT:]
        if NR == "W": o = o[:MT]
        if NR == "H": o = o[::2]
        if NR == "X": o = o + o[:2]
        if NR == "XX": o = o + o[:MT]
        return o
    def mix(rd, ex):
        rd = list(rd)
        for i, x in enumerate(ex): rd.insert(min(len(rd), (i + 1) * len(rd) // (len(ex) + 1)), x)
        return rd
    def mfmas(F, rd, tail=()):
        n = MT * NT; k = 0; tot = len(rd); span = max(1, n * 3 // 4); done = 0; tail = list(tail); per = -(-len(tail) // max(1, n - span))
        OR = os.environ.get("ORDER", "2")
        order = {"0": [(nt, mt) for nt in range(NT) for mt in range(MT)],
                 "1": [(nt, mt) for mt in range(MT) for nt in range(NT)],
                 "2": [(nt, mt if nt % 2 == 0 else MT - 1 - mt) for nt in range(NT) for mt in range(MT)],
                 "3": [(nt if mt % 2 == 0 else NT - 1 - nt, mt) for mt in range(MT) for nt in range(NT)]}[OR]
        for nt, mt in order:
            if True:
                cc = acc + 4 * (mt * NT + nt)
                if str(which) not in os.environ.get("NOMF", ""): a.e(f"v_mfma_f32_16x16x32_bf16 {vr(cc,4)}, {vr(F+4*(MT+nt),4)}, {vr(F+4*mt,4)}, {vr(cc,4)}")
                k += 1
                while rd and done < (tot * k + span - 1) // span: a.e(rd.pop(0)); done += 1
                if k >= span and k < n:
                    for _ in range(min(per, len(tail))): a.e(tail.pop(0))
        assert not rd and not tail
    so = SO3 if which == 3 else a0; cs = fX; lns = fX + 4 * NT; G4W = 240; EA = 244
    def ep_setup(b):
        if which in (1, 3):
            assert which == 1 or (fY <= C2R and C2R + 24 <= fY + 4 * NF)
            b.e(f"s_mul_i32 s36, s35, {NT*64}"); b.e(f"s_add_u32 s36, s36, {CSO[which]}"); b.e(f"v_lshlrev_b32 v{t}, 4, v{G}"); b.e(f"v_add_u32 v{t}, s36, v{t}")
            b.e(f"s_lshl_b32 s36, s37, 8"); b.e(f"s_add_u32 s36, s36, {LNSL + (8 if which == 1 else 0)}"); b.e(f"v_lshlrev_b32 v{t2}, 4, v{J}"); b.e(f"v_add_u32 v{t2}, s36, v{t2}")
        if which == 3:
            lsrd(b, 16, oH2, H2SZ)
            b.e(f"s_mul_i32 s39, s37, {224*1024}")
            for P in range(4):
                b.e("s_lshr_b32 s36, s38, 1"); b.e(f"s_add_u32 s36, s36, {P}"); spread(b, 44 + P, 36); b.e(f"s_add_u32 s{44+P}, s{44+P}, s39")
            w_bases(b, 4, G4W, 35, 4, tp, tp + 1)
            b.e("s_lshl_b32 s38, s33, 3"); b.e("s_lshl_b32 s36, s35, 2"); b.e("s_add_u32 s38, s38, s36")
            b.e("s_lshr_b32 s36, s38, 1"); spread(b, 39, 36); b.e("s_lshl_b32 s36, s37, 16"); b.e("s_add_u32 s39, s39, s36")
            b.e("s_lshl_b32 s40, s31, 17"); b.e("s_add_u32 s40, s40, s39")
            b.e("s_xor_b32 s41, s31, 1"); b.e("s_lshl_b32 s41, s41, 17"); b.e("s_add_u32 s41, s41, s39")
            lsrd(b, 84, oX3, XSZ); lsrd(b, 88, oX1P, XSZ); b.srd(80, 4, 4 * MB, off=globals()["Y"])
            b.e("s_lshl_b32 s36, s37, 1"); b.e("s_add_u32 s36, s36, s35"); b.e("s_lshl_b32 s36, s36, 10"); b.e(f"v_add_u32 v{EA}, s36, v{l16}")
            b.e(f"v_mov_b32 v{EA+1}, 1"); b.e(f"v_mov_b32 v{EA+2}, {LW+64}")
            b.e(f"v_lshrrev_b32 v{so}, 1, v{G}"); b.e(f"v_lshlrev_b32 v{so}, 8, v{so}"); b.e(f"v_lshl_add_u32 v{so}, v{J}, 4, v{so}")
            b.e(f"v_and_b32 v{tmp}, 1, v{G}"); b.e(f"v_lshl_add_u32 v{so}, v{tmp}, 3, v{so}")
        if which == 1:
            hs_srd(b, 16)
            b.e(f"v_mul_u32_u24 v{so}, {PITCH}, v{G}"); b.e(f"v_lshl_add_u32 v{so}, v{J}, 4, v{so}")
            b.e(f"s_mul_i32 s39, s38, {2*PITCH}"); b.e("s_lshl_b32 s36, s37, 8"); b.e("s_add_u32 s39, s39, s36"); b.e("s_add_u32 s39, s39, 16384")
            b.e("s_lshl_b32 s36, s28, 11"); b.e("s_add_u32 s39, s39, s36")
            b.e("s_lshr_b32 s36, s29, 2"); b.e("s_xor_b32 s36, s36, s94"); b.e("s_and_b32 s36, s36, 1"); b.e("s_lshl_b32 s36, s36, 13"); b.e("s_add_u32 s39, s39, s36")
            b.e(f"s_add_u32 s40, s39, {4*PITCH}")
            b.e("s_lshr_b32 s36, s38, 1"); spread(b, 41, 36); b.e("s_lshl_b32 s36, s37, 16"); b.e("s_add_u32 s41, s41, s36")
        if which == 2: lsrd(b, 16, oX1P, XSZ)
    def cost(x): return sum(8 if y.startswith("ds_") else 4 for y in x.split("\n"))
    def group(F, rd, r0, ex, fixed={}, zero=False):
        n = MT * NT; ex = [x if isinstance(x, tuple) else (x, -1) for x in ex]; done = 0
        order = [(nt, mt if nt % 2 == 0 else MT - 1 - mt) for nt in range(NT) for mt in range(MT)]
        need = sum(cost(x) for x, _ in ex) + 8 * len(rd) + sum(cost(x) for l in fixed.values() for x in l)
        cap = max(12, -(-need // (4 * n)) * 4)
        for k, (nt, mt) in enumerate(order):
            cc = A_(mt, nt)
            if str(which) not in os.environ.get("NOMF", ""): a.e(f"v_mfma_f32_16x16x32_bf16 {vr(cc,4)}, {vr(F+4*(MT+nt),4)}, {vr(F+4*mt,4)}, {0 if zero else vr(cc,4)}")
            b_ = cap - sum(cost(x) for x in fixed.get(k, [])); nv = 0
            if k >= r0 and done < len(rd): a.e(rd[done]); done += 1; b_ -= 8
            while ex and ex[0][1] < done and (cost(ex[0][0]) <= b_ or k == n - 1) and not (nv >= (1 if rd else 2) and ex[0][0].startswith("v_") and cap == 12 and k < n - 1):
                x = ex.pop(0)[0]; a.e(x); b_ -= cost(x); nv += x.startswith("v_")
            for x in fixed.get(k, []): a.e(x)
        assert done == len(rd) and not ex
    NR_ = MT + 2 * NT; BP = eval(os.environ.get("BP", "{3:3,4:2}")).get(which, 0)
    def stage(ex=(), ey=(), lim=NS-1, late=False, zero=False, pre=()):
        if str(which) in os.environ.get("GST", "") or os.environ.get("JIT"): mstamp(a, True)
        if which == 3: last = {0: NR_ - 1, 1: NR_ - 3}
        else: last = {i: MT + 2 * i + 1 for i in range(4)}
        book = ["s_add_u32 s42, s42, 16384", f"s_cmp_eq_u32 s42, {NA*16384}", "s_cselect_b32 s42, 0, s42",
                f"s_add_u32 s48, s48, {STB}", f"s_cmp_eq_u32 s48, {NW*STB}", "s_cselect_b32 s48, 0, s48", (f"v_add_u32 v{aa}, s42, v{a0}", MT - 1)]
        book += sorted([(f"v_add_u32 v{wa+i}, s48, v{w0+i}", last[i]) for i in range(nwr)], key=lambda x: x[1])
        n = MT * NT
        group(fX, reads(fY, 1), 0, book[:7] + list(ex) + book[7:], {3: [f"s_waitcnt lgkmcnt({min(15, NR_ - MT - 4 + 4)})"], 7: ["s_waitcnt lgkmcnt(8)"], n - 1: [f"s_waitcnt lgkmcnt({NR_ - MT - 2})"]}, zero)
        if late:
            b_ = Rec(); ep_setup(b_)
            group(fY, [], 0, ["s_add_u32 s43, s43, 1"] + b_.l, {min(BP, 3): ["s_waitcnt lgkmcnt(0)"]})
            if B0E: publish(a, ST_G2S, 4, pt, ctr=48)
            a.e("s_barrier")
            for x in reads(fX, 0): a.e(x)
            a.e(f"s_waitcnt lgkmcnt({NR_ - MT - 2})")
            return
        group(fY, reads(fX, 0), BP + 1, list(ey) + ["s_add_u32 s43, s43, 1", f"s_cmp_lt_u32 s43, {lim}"],
              {BP - 1: list(pre), BP: ["s_waitcnt lgkmcnt(0)", "s_barrier"], n - 1: [f"s_waitcnt lgkmcnt({NR_ - MT - 2})"]})
    w00 = c["S0"] * STB
    if which <= 2:
        def wrd(p, b): return [f"ds_read_b64_tr_b16 {vr((fX, fY)[p]+16*kk+4*nt+2*h,2)}, v{w0+nt} offset:{b*STB + wpos(nt, kk, h)[1]}" for kk in range(2) for nt in range(4) for h in range(2)]
        def dmf(b, fill, lo=0, hi=16):
            k = 0
            for kk in range(2):
                for nt in range(4):
                    for mt in ((0, 1) if nt % 2 == 0 else (1, 0)):
                        if lo <= k < hi:
                            a.e(f"v_mfma_f32_16x16x32_bf16 {vr(A_(mt,nt),4)}, {vr((fX, fY)[b&1]+16*kk+4*nt,4)}, {vr(AB+16*b+8*kk+4*mt,4)}, {vr(A_(mt,nt),4)}")
                            for x in fill[k]: a.e(x)
                        k += 1
        def spreadf(l, lo, hi):
            f = [[] for _ in range(16)]
            for i, x in enumerate(l): f[lo + i * (hi - lo) // len(l)].append(x)
            return f
        a.e("s_mov_b32 s43, 0"); ep_setup(a)
        CK = str(which) in DP; ck_ = aa
        def check(b):
            B = AB + 16 * b
            if which == 2: return [f"v_bitop3_b32 v{ck_}, v{B}, v{B+4}, v{B+8} bitop3:0x80", f"v_bitop3_b32 v{ck_}, v{ck_}, v{B+12}, s60 bitop3:0x2a", f"v_cmp_ne_u32 vcc, 0, v{ck_}"]
            return [f"v_or3_b32 v{ck_}, v{B}, v{B+4}, v{B+8}", f"v_bitop3_b32 v{ck_}, v{ck_}, v{B+12}, 1 bitop3:0xa8", f"v_cmp_ne_u32 vcc, 0, v{ck_}"]
        L = a.lab("dm"); allp = [x for b in range(4) for kk in range(2) for x in aload(b, kk)][:14]
        if CK:
            NSP = 4 * eval(os.environ.get("NSP", "(0,2,2)"))[which]; NSP = min(NSP, 14); GF = eval(os.environ.get("GFIRST", "(0,4,4)"))[which]
            a.e("s_mov_b32 s53, 0"); a.e("s_mov_b32 s49, s44")
            if which == 2:
                a.e("s_barrier")
                a.e("s_cmp_eq_u32 s60, 0"); a.e(f"s_cbranch_scc1 {L}z")
            for x in wrd(0, 0): a.e(x)
            if GF: a.e(f"s_sleep {GF}")
            a.e(f"{L}p:")
            for x in allp[:NSP]: a.e(x + ("" if SC in x else SC))
            a.e(f"s_waitcnt vmcnt({NSP - 4})")
            for x in check(0): a.e(x)
            a.e(f"s_cbranch_vccz {L}q"); a.e(f"s_sleep {os.environ.get('GNAP', '2')}")
            a.e("s_add_u32 s53, s53, 1"); a.e("s_cmp_lt_u32 s53, s61"); a.e(f"s_cbranch_scc1 {L}p"); a.e("s_mov_b32 s61, 0")
            a.e(f"{L}q:")
            mstamp(a)
            for x in allp[NSP:]: a.e(x)
            a.e("s_waitcnt lgkmcnt(0)")
            if which == 2:
                a.e(f"s_branch {L}"); a.e(f"{L}z:")
                for x in allp[:8] + wrd(0, 0) + allp[8:]: a.e(x)
                a.e("s_waitcnt vmcnt(10) lgkmcnt(0)")
                mstamp(a)
        else:
            a.e("s_waitcnt lgkmcnt(0)"); a.e("s_barrier")
            for x in allp[:8] + wrd(0, 0) + allp[8:]: a.e(x)
            a.e("s_waitcnt vmcnt(10) lgkmcnt(0)")
            mstamp(a)
        a.e(f"{L}:")
        for b in range(4):
            rd = wrd(1 - (b & 1), (b + 1) & 3); ex = [[] for _ in range(16)]
            ex[0], ex[1] = [[x] for x in aload((b - 1) & 3, 1)]
            if b == 0:
                for i, x in enumerate(["s_mov_b32 s44, s45", "s_mov_b32 s45, s46", "s_mov_b32 s46, s47", f"s_mov_b32 s47, {OOB}"]): ex[2 + i].append(x)
            if b == 2:
                ex[2].append("s_add_u32 s43, s43, 1"); ex[3].append("s_cmp_eq_u32 s43, 4")
                for nt, g_ in enumerate((11, 12, 13, 15)): ex[g_].append(f"v_add_u32 v{w0+nt}, {4*STB}, v{w0+nt}")
            if b == 3 and CK: ex[2].append("s_mov_b32 s49, s44")
            ex[7].append("s_waitcnt lgkmcnt(8)")
            ex[8], ex[9] = [[x] for x in aload(b, 0)]
            ex[10].append("s_waitcnt vmcnt(10)")
            if CK:
                for i, x in enumerate(check((b + 1) & 3)): ex[11 + i].append(x)
            fill = [rd[i:i+1] + ex[i] for i in range(16)]
            fill[14] = rd[14:16] + ex[14]; fill[15] = ex[15] + ["s_waitcnt lgkmcnt(8)"]
            if CK: fill[15] += [f"s_cbranch_vccnz {L}f{b}", f"{L}g{b}:"]
            if b == 2: fill[15].append(f"s_cbranch_scc1 {L}x")
            if b == 3: fill[15].append(f"s_branch {L}")
            dmf(b, fill)
        for b in range(4 if CK else 0):
            nb = (b + 1) & 3
            a.e(f"{L}f{b}:"); a.e("s_cselect_b32 s50, 1, 0")
            a.e(f"{L}h{b}:"); a.e(f"s_sleep {os.environ.get('GNAP', '2')}")
            for j in range(4):
                bb = (nb + j) & 3
                for kk in range(2 if j < 3 else 1):
                    for x in aload(bb, kk): a.e(x.replace("s44", "s49" if bb >= nb else "s44") + ("" if SC in x else SC))
            a.e("s_waitcnt vmcnt(10)")
            for x in check(nb): a.e(x)
            a.e("s_add_u32 s53, s53, 1"); a.e("s_cmp_ge_u32 s53, s61"); a.e("s_cselect_b32 s61, 0, s61"); a.e(f"s_cbranch_scc1 {L}k{b}")
            a.e(f"s_cbranch_vccnz {L}h{b}")
            a.e(f"{L}k{b}:"); a.e("s_cmp_eq_u32 s50, 1"); a.e(f"s_branch {L}g{b}")
        a.e(f"{L}x:")
    else:
        if which == 3:
            a.e(f"v_mov_b32 v{aa}, v{a0}")
            a.e("s_mov_b32 s42, 0"); a.e("s_mov_b32 s43, 0"); a.e(f"s_mov_b32 s48, {w00}")
            for i in range(nwr): a.e(f"v_add_u32 v{wa+i}, {w00}, v{w0+i}")
        if not (which == 3 and B0E): a.e("s_waitcnt lgkmcnt(0)"); a.e("s_barrier")
        mstamp(a)
        for x in reads(fX, 0): a.e(x)
        a.e(f"s_waitcnt lgkmcnt({NR_ - MT - 2})")
    if which == 4:
        def st2(j): return [(x, 0) for x in [f"s_add_u32 s36, s44, {j*224*1024}", f"buffer_store_dwordx4 {vr(C2R+4*j,4)}, v{l16}, s[16:19], s36 offen {SC}",
                            f"s_add_u32 s36, s45, {j*224*1024}", f"buffer_store_dwordx2 {vr(C2R+16+2*j,2)}, v{SO3}, s[16:19], s36 offen {SC}"]]
        assert PBB in (1, 2) and PC0 >= 2
        for st_ in range(2): stage(st2(2 * st_), st2(2 * st_ + 1), zero=st_ == 0, pre=[f"s_waitcnt vmcnt({4 * st_ + 2})"] if PBB == st_ + 1 else [])
        CW = 0
        if PC0 > 3:
            L0 = a.lab("mm"); a.e(f"{L0}:"); stage(lim=PC0); a.e(f"s_cbranch_scc1 {L0}")
        elif PC0 == 3: stage()
    if which == 3 and os.environ.get("PEEL3", "1") == "1": stage(late=True, zero=True)
    if which > 2:
        L = a.lab("mm"); a.e(f"{L}:")
        stage(pre=[f"s_waitcnt vmcnt({CW})"] if which == 4 else [])
        a.e(f"s_cbranch_scc1 {L}")
    b0 = Rec()
    if which == 4:
        a.e("s_cmp_eq_u32 s60, 1"); a.e("s_cbranch_scc1 G4_last")
        if not RPC: r_pre(b0)
    if which == 1:
        for mt in range(MT):
            for p in range(NT // 2): b0.e(f"buffer_load_dwordx4 {vr(RES2+(mt*(NT//2)+p)*4,4)}, v{LO+mt}, s[8:11], s41 offen offset:{p*1024} {SC}")
    early = True
    XW = {3: [f"s_waitcnt lgkmcnt({min(15, NR_ - MT)})"], 7: ["s_waitcnt lgkmcnt(8)"]}
    if which <= 2: dmf(3, spreadf(b0.l, 0, 8), 0, 8)
    else: group(fX, reads(fY, 1), 0, b0.l, XW)
    a.e("s_waitcnt lgkmcnt(0)")
    if which not in DL: a.e("s_barrier")
    b = Rec()
    if which in (1, 3):
        for nt in range(NT): b.e(f"ds_read_b128 {vr(cs+4*nt,4)}, v{t} offset:{nt*64}")
        if which == 3:
            for mt in range(MT): b.e(f"ds_read_b128 {vr(lns+4*mt,4)}, v{t2} offset:{mt*256}")
            for i in range(4): b.e(f"v_mov_b32 v{w0+i}, v{G4W+i}"); b.e(f"v_add_u32 v{wa+i}, {CFG[4]['S0']*CFG[4]['STB']}, v{G4W+i}")
            b.e("s_mov_b32 s42, 0"); b.e("s_mov_b32 s43, 0"); b.e(f"s_mov_b32 s48, {CFG[4]['S0']*CFG[4]['STB']}"); b.e(f"v_mov_b32 v{aa}, v{a0}")
            assert fY + 16 == RFO; r_addr(b)
        else:
            for mt in range(MT): b.e(f"ds_read_b64 {vr(lns+2*mt,2)}, v{t2} offset:{mt*256}")
    if which == 2: lsrd(b, 44, oST2, 24576)
    if which == 4:
        b.e(f"s_mul_i32 s36, s31, {oP1-oP0}"); b.e(f"s_add_u32 s36, s36, {oP0}")
        b.e("s_add_u32 s16, s62, s36"); b.e("s_addc_u32 s17, s63, 0"); b.e(f"s_mov_b32 s18, {XSZ}"); b.e("s_mov_b32 s19, 0x20000")
    if which <= 2: dmf(3, spreadf(b.l, 8, 15), 8, 16)
    else: group(fY, [], 0, b.l)
    mstamp(a)
    if which in (1, 3):
        AB = v(2 * MT, 2) if which == 1 else fY + 4
        def consts():
            for mt in range(MT if which == 1 else 0):
                r = lns + 2 * mt + 1
                a.e(f"v_mul_f32 v{AB+2*mt}, {f32(GC1)}, v{r}"); a.e(f"v_mul_f32 v{AB+2*mt+1}, v{r}, v{r}")
                a.e(f"v_mul_f32 v{AB+2*mt+1}, v{AB+2*mt+1}, v{AB+2*mt}"); a.e(f"v_mul_f32 v{AB+2*mt+1}, {f32(0.044715)}, v{AB+2*mt+1}")
                a.e(f"v_rcp_f32 v{r}, v{r}")
        def act(mt, nt):
            A = A_(mt, nt); P_ = [(A, tp), (A + 2, tp + 2)]; L_ = vr(lns + 2 * mt, 2); K_ = vr(AB + 2 * mt, 2)
            if which == 3: L_ = vr(lns + 4 * mt, 2); K_ = vr(lns + 4 * mt + 2, 2)
            for h in range(2):
                a.e(f"v_pk_fma_f32 {vr(A+2*h,2)}, {L_}, {vr(cs+4*nt+2*h,2)}, {vr(A+2*h,2)} op_sel_hi:[0,1,1] neg_lo:[1,0,0] neg_hi:[1,0,0]")
            for x, u in P_: a.e(f"v_pk_mul_f32 {vr(u,2)}, {vr(x,2)}, {vr(x,2)}")
            for x, u in P_: a.e(f"v_pk_fma_f32 {vr(u,2)}, {vr(u,2)}, {K_}, {K_} op_sel:[0,1,0] op_sel_hi:[1,1,0]")
            for x, u in P_: a.e(f"v_pk_mul_f32 {vr(u,2)}, {vr(u,2)}, {vr(x,2)}")
            for i in range(4): a.e(f"v_exp_f32 v{tp+i}, v{tp+i}")
            for x, u in P_: a.e(f"v_pk_fma_f32 {vr(u,2)}, {vr(u,2)}, {L_}, {L_} op_sel:[0,1,1] op_sel_hi:[1,1,1]")
            for i in range(4): a.e(f"v_rcp_f32 v{tp+i}, v{tp+i}")
            for x, u in P_: a.e(f"v_pk_mul_f32 {vr(x,2)}, {vr(x,2)}, {vr(u,2)}")
        def egroup(par, mt, nts, dst=None):
            for nt in nts: act(mt, nt)
            T = par * NT + nts[0]; P = (T >> 1) - ((par * NT) >> 1); B = A_(mt, nts[0]); D = B if dst is None else dst
            for k in range(2 * len(nts)): a.e(f"v_cvt_pk_bf16_f32 v{D+k}, v{B+2*k}, v{B+2*k+1}")
            if which == 3 and mt < 3 and "1" in DP: mark(a, D, 1)
            if which == 1 and "2" in DP: a.e(f"v_and_or_b32 v{D}, v{D}, -2, s60")
            if which == 3: return [f"s_add_u32 s36, s{44+P}, {mt*224*1024}", f"buffer_store_dwordx4 {vr(B,4)}, v{l16}, s[16:19], s36 offen {SC}"]
            return [f"buffer_store_dwordx4 {vr(B,4)}, v{so}, s[16:19], s{39+P} offen offset:{mt*256} {SC}"]
        def body(par):
            if which == 1: gs = [(0, 1), (2, 3)]
            else: gs = [(0, 1), (2, 3), (4, 5), (6,)] if par == 0 else [(1, 2), (3, 4), (5, 6), (0,)]
            k = 0; pend = []; sent = 0
            for gi_, g_ in enumerate(gs):
                for mt in range(MT):
                    if which == 3 and k == C0PUB:
                        a.e(f"s_waitcnt vmcnt({sent - 4})"); a.e("s_mov_b64 exec, 1"); a.e(f"ds_add_u32 v{EA+2}, v{EA+1}"); a.e("s_mov_b64 exec, -1"); mstamp(a)
                    if which == 3 and k == RK:
                        b_ = Rec(); r_pre(b_); l_ = [x for x in b_.l if x.startswith(("buffer", "s_mov_b32 s78"))]
                        a.e("s_cmp_eq_u32 s60, 1"); a.e(f"s_cbranch_scc1 G4_p1{par}")
                        for x in l_: a.e(x)
                        a.e(f"s_branch G4_p2{par}"); a.e(f"G4_p1{par}:")
                        for x in last_res(): a.e(x)
                        a.e(f"G4_p2{par}:")
                        if 4 <= k < C0PUB: sent += 8
                    st_ = egroup(par, mt, g_, None if gi_ < 2 else C2R + 4 * mt if gi_ == 2 else C2R + 16 + 2 * mt); k += 1
                    if which == 3 and gi_ < 3:
                        a.e(f"ds_write_b128 v{EA}, {vr(A_(mt, g_[0]) if gi_ < 2 else C2R + 4 * mt, 4)} offset:{gi_*16384 + mt*2048}")
                    if gi_ < 2: pend.append(st_)
                    n = len(pend) if (which == 1 or k <= 4 or k == 16) else 0 if k <= STQ else min(1, len(pend))
                    for _ in range(n):
                        for x in pend.pop(0): a.e(x)
                        sent += 1
            if which == 3:
                a.e("s_waitcnt lgkmcnt(0)")
                if par == 0: a.e("s_mov_b32 s44, s46"); a.e("s_mov_b32 s45, s47")
                else: a.e("s_add_u32 s45, s44, 512"); a.e("s_mov_b32 s44, s47")
        a.e("s_waitcnt lgkmcnt(0)")
        consts()
        if which == 3:
            a.e("s_cmp_eq_u32 s35, 1"); a.e(f"s_cbranch_scc1 {nm}_e1")
            body(0); a.e(f"s_branch {nm}_e2"); a.e(f"{nm}_e1:"); body(1); a.e(f"{nm}_e2:")
        else: body(0)
    if which == 2:
        xf = v(2, 2); S = v(2 * MT, 2); pp = v(2, 2); mn = v(2, 2)
        for mt in range(MT):
            a.e(f"s_add_u32 s36, s39, {mt*65536}")
            for p in range(NT // 2):
                R = res + (mt * (NT // 2) + p) * 4
                for e in range(4):
                    X = A_(mt, 2 * p) + 2 * e
                    a.e(f"v_cvt_pk_bf16_f32 v{R+e}, v{X}, v{X+1}")
                if DP: mark(a, R, 0)
                a.e(f"buffer_store_dwordx4 {vr(R,4)}, v{l16}, s[16:19], s36 offen offset:{p*1024} {SC}")
        if which in DL: a.e("s_barrier")
        if OWN3:
            a.e("s_lshl_b32 s36, s37, 11"); a.e(f"v_add_u32 v{t2}, s36, v{l16}")
            for i in range(4): a.e(f"ds_write_b128 v{t2}, {vr(res+4*i,4)} offset:{1024*i}")
        for i in range(MT * NT * 2): unpack(a, acc + 2 * i, acc + 2 * i + 1, res + i)
        mstamp(a)
        publish(a, which, 4, pt)
        if B0E: a.e("s_waitcnt lgkmcnt(0)"); a.e("s_barrier")
        mstamp(a)
        for mt in range(MT):
            B = A_(mt, 0); Sm = S + 2 * mt
            a.e(f"v_pk_add_f32 {vr(pp,2)}, {vr(B,2)}, {vr(B+2,2)}"); a.e(f"v_pk_mul_f32 {vr(xf,2)}, {vr(B,2)}, {vr(B,2)}")
            for i in range(1, NT * 2):
                if i > 1: a.e(f"v_pk_add_f32 {vr(pp,2)}, {vr(pp,2)}, {vr(B+2*i,2)}")
                a.e(f"v_pk_fma_f32 {vr(xf,2)}, {vr(B+2*i,2)}, {vr(B+2*i,2)}, {vr(xf,2)}")
            a.e(f"v_add_f32 v{Sm}, v{pp}, v{pp+1}"); a.e(f"v_add_f32 v{Sm+1}, v{xf}, v{xf+1}")
            for op in ("v_permlane16_swap_b32", "v_permlane32_swap_b32"):
                for k in range(2): a.e(f"v_mov_b32 v{pp+k}, v{Sm+k}")
                for k in range(2): a.e(f"{op} v{Sm+k}, v{pp+k}")
                a.e(f"v_pk_add_f32 {vr(Sm,2)}, {vr(Sm,2)}, {vr(pp,2)}")
        a.e(f"v_cmp_eq_u32 vcc, 0, v{G}"); a.e(f"v_cndmask_b32 v{S}, v{S+2}, v{S}, vcc"); a.e(f"v_cndmask_b32 v{S+1}, v{S+3}, v{S+1}, vcc")
        spread(a, 40, 29); a.e("s_lshl_b32 s36, s34, 8"); a.e("s_add_u32 s40, s40, s36")
        a.e(f"v_lshlrev_b32 v{t2}, 3, v{lane}")
        a.e("s_bfm_b64 exec, 32, 0")
        a.e(f"buffer_store_dwordx2 {vr(S,2)}, v{t2}, s[44:47], s40 offen {SC}")
        a.e("s_mov_b64 exec, -1")
    if which == 4:
        for mt in range(MT):
            a.e(f"s_add_u32 s36, s39, {mt*65536}")
            for p in range(NT // 2):
                B = A_(mt, 2 * p)
                for e in range(4): a.e(f"v_cvt_pk_bf16_f32 v{B+e}, v{B+2*e}, v{B+2*e+1}")
                if "r" in DP: mark(a, B, 1)
                a.e(f"buffer_store_dwordx4 {vr(B,4)}, v{l16}, s[16:19], s36 offen offset:{p*1024} {SC}")
    if which != 2:
        if which in DL: a.e("s_barrier")
        mstamp(a)
        if which == 1 and "2" in DP: a.e("s_cmp_lg_u32 s60, 0"); a.e("s_cbranch_scc1 G1_np")
        if which != 3 and not (which == 4 and "r" in DP): publish(a, which, 4, pt)
        if which == 1 and "2" in DP: a.e("G1_np:")
        mstamp(a)
    if which == 4:
        a.e("s_branch NEXT")
        a.e("G4_last:")
        PX = 208; oa = 224; xf = 226
        group(fX, reads(fY, 1), 0, [(f"s_load_dwordx2 s[6:7], s[0:1], {D_OUT}", 9)], XW)
        a.e("s_waitcnt lgkmcnt(0)")
        b = Rec()
        lsrd(b, 16, oX1P if "f" in DP else MB, XSZ)
        b.srd(20, 6, 4 * MB)
        if "f" not in DP:
            b.e("s_lshl_b32 s44, s29, 2"); b.e("s_add_u32 s44, s44, s30"); b.e("s_lshl_b32 s44, s44, 7"); b.e("s_xor_b32 s45, s44, 4096")
            b.e("s_add_u32 s44, s44, s55"); b.e(f"s_add_u32 s44, s44, {oFP}"); b.e("s_add_u32 s45, s45, s55"); b.e(f"s_add_u32 s45, s45, {oFP}")
            b.e(f"v_mov_b32 v{pt+1}, s45"); b.e(f"v_mov_b32 v{pt+2}, s52"); b.e(f"v_mov_b32 v{pt+3}, 0")
        else: b.e("s_add_u32 s44, s40, 65536")
        b.e("s_lshl_b32 s46, s28, 3"); b.e("s_add_u32 s46, s46, s37"); b.e("s_lshl_b32 s47, s31, 1"); b.e("s_add_u32 s46, s46, s47"); b.e("s_lshl_b32 s46, s46, 15")
        b.e("s_lshl_b32 s47, s38, 5"); b.e("s_add_u32 s46, s46, s47"); b.e(f"s_add_u32 s47, s46, {16*2048}")
        b.e(f"v_and_b32 v{oa+1}, 1, v{G}"); b.e(f"v_lshlrev_b32 v{oa}, 11, v{J}"); b.e(f"v_lshl_add_u32 v{oa}, v{oa+1}, 5, v{oa}")
        b.e(f"v_lshrrev_b32 v{oa+1}, 1, v{G}"); b.e(f"v_lshl_add_u32 v{oa}, v{oa+1}, 4, v{oa}")
        FULLN = os.environ.get("FULLN", "1") == "1"
        if FULLN:
            b.e(f"v_cmp_gt_u32 s[48:49], 8, v{J}")
            b.e(f"v_lshrrev_b32 v{oa+1}, 3, v{J}"); b.e(f"v_mul_u32_u24 v{oa+1}, {8*2048 - 64}, v{oa+1}"); b.e(f"v_sub_u32 v{oa}, v{oa}, v{oa+1}")
            b.e(f"v_add_u32 v{oa+1}, {8*2048}, v{oa}")
        group(fY, [], 0, b.l)
        mstamp(a)
        a.e("s_cmp_eq_u32 s31, 0"); a.e("s_cbranch_scc1 G4_k0")
        for i in range(32): a.e(f"v_swap_b32 v{acc+i}, v{acc+32+i}")
        a.e("G4_k0:")
        for i in range(2):
            a.e(f"s_add_u32 s36, s41, {i*65536}")
            for p in range(2):
                B = A_(2 + i, 2 * p)
                for e in range(4): a.e(f"v_cvt_pk_bf16_f32 v{B+e}, v{B+2*e}, v{B+2*e+1}")
                if "f" in DP: mark(a, B, 1)
                a.e(f"buffer_store_dwordx4 {vr(B,4)}, v{l16}, s[16:19], s36 offen offset:{p*1024} {SC}")
        def addp(k, R):
            B = A_(k >> 1, 2 * (k & 1))
            for e in range(4):
                unpack(a, xf + 2 * (e & 1), xf + 1 + 2 * (e & 1), R + e)
                a.e(f"v_pk_add_f32 {vr(B+2*e,2)}, {vr(B+2*e,2)}, {vr(xf+2*(e&1),2)}")
        for k in range(4): addp(k, RX[2 * k])
        if "f" not in DP:
            a.e("s_waitcnt vmcnt(0)")
            a.e("s_mov_b64 exec, 1"); a.e(f"buffer_store_dword v{pt+2}, v{pt+3}, s[56:59], s44 offen {SC}"); a.e("s_mov_b64 exec, -1")
        mstamp(a)
        for k in range(4): addp(k, RX[2 * k + 1])
        if "f" in DP:
            data_poll(a, [f"buffer_load_dwordx4 {vr(PX+4*(2*i+p),4)}, v{l16}, s[16:19], s{(40, 44)[i]} offen offset:{p*1024} {SC}" for i in range(2) for p in range(2)],
                      [PX + 4 * k for k in range(4)], t, int(os.environ.get("FNAP", "2")), 0, int(os.environ.get("FCAN", "0")))
            mstamp(a)
        else:
            poll_core(a, pt, [pt + 1], 1, nap=2)
            mstamp(a)
            for i in range(2):
                a.e(f"s_add_u32 s36, s40, {i*65536}")
                for p in range(2): a.e(f"buffer_load_dwordx4 {vr(PX+4*(2*i+p),4)}, v{l16}, s[16:19], s36 offen offset:{p*1024} {SC}")
        for k in range(4):
            if "f" not in DP: a.e(f"s_waitcnt vmcnt({3 - (k & 1) if FULLN else 3})")
            addp(k, PX + 4 * k)
            B = A_(k >> 1, 2 * (k & 1))
            if os.environ.get("EPS"):
                for e in range(8): a.e(f"v_mul_f32 v{B+e}, {f32(1 + float(os.environ['EPS']) * (1 if e & 1 else -1))}, v{B+e}")
            for e in range(4): a.e(f"v_cvt_pk_bf16_f32 v{B+e}, v{B+2*e}, v{B+2*e+1}")
            for e in range(2): a.e(f"v_permlane16_swap_b32 v{B+e}, v{B+2+e}")
            if not FULLN: a.e(f"buffer_store_dwordx4 {vr(B,4)}, v{oa}, s[20:23], s{46+(k>>1)} offen offset:{64*(k&1)} {os.environ.get('OS', '')}")
            elif k & 1:
                X, Y, T = B - 8, B, B + 4
                for e in range(4): a.e(f"v_cndmask_b32 v{T+e}, v{X+e}, v{Y+e}, s[48:49]")
                for e in range(4): a.e(f"v_mov_b32_dpp v{X+4+e}, v{T+e} row_ror:8 row_mask:0xf bank_mask:0xf")
                for e in range(4): a.e(f"v_cndmask_b32 v{X+e}, v{X+4+e}, v{X+e}, s[48:49]"); a.e(f"v_cndmask_b32 v{Y+e}, v{Y+e}, v{X+4+e}, s[48:49]")
                a.e(f"buffer_store_dwordx4 {vr(X,4)}, v{oa}, s[20:23], s{46+(k>>1)} offen {SC}")
                a.e(f"buffer_store_dwordx4 {vr(Y,4)}, v{oa+1}, s[20:23], s{46+(k>>1)} offen {SC}")
        a.e("s_branch K_fin")
    assert v.hi <= {1: RES2, 2: RES2, 3: RYY, 4: 176}[which], v.hi
    return v.hi

def k_mega(a):
    nm = KNAME; a.begin_kernel(nm)
    a.e("s_cmp_ge_u32 s2, 256"); a.e("s_cbranch_scc1 K_end")
    a.e(f"s_load_dwordx8 s[8:15], s[0:1], {A_K}"); a.e(f"s_load_dwordx2 s[6:7], s[0:1], {A_Q}"); a.e(f"s_load_dwordx8 s[68:75], s[0:1], {B_W1}")
    a.e(f"s_load_dwordx2 s[4:5], s[0:1], {D_WS}"); a.e(f"s_load_dwordx2 s[84:85], s[0:1], {D_DBG}"); a.e("s_memrealtime s[46:47]")
    a.e(f"s_load_dwordx2 s[96:97], s[0:1], {A_SSMD}")
    a.e("v_lshrrev_b32 v1, 6, v0"); a.e("v_readfirstlane_b32 s30, v1")
    if CODEPF:
        a.e("s_getpc_b64 s[48:49]"); a.e("K_pc:")
        a.e("s_lshr_b32 s36, s2, 3"); a.e("s_lshl_b32 s36, s36, 11")
        a.e("v_lshlrev_b32 v4, 2, v0"); a.e("v_add_u32 v4, s36, v4")
        a.e("v_cmp_gt_u32 vcc, K_end-K_pc-8, v4"); a.e("s_and_saveexec_b64 s[36:37], vcc"); a.e("s_cbranch_execz K_3")
        a.e("v_mov_b32 v5, s49"); a.e("v_add_co_u32 v4, vcc, s48, v4"); a.e("v_addc_co_u32 v5, vcc, 0, v5, vcc")
        a.e("global_load_dword v250, v[4:5], off")
        a.e("K_3:"); a.e("s_mov_b64 exec, -1")
    for _ in range(int(os.environ.get("SDELAY", "0"))): a.e("s_sleep 127")
    front_loads(a)
    a.e("v_and_b32 v1, 63, v0"); a.e("v_lshlrev_b32 v2, 4, v1"); a.e("v_lshlrev_b32 v3, 2, v1")
    a.e("s_and_b32 s32, s2, 7"); a.e("s_lshr_b32 s33, s2, 3")
    a.e("s_and_b32 s28, s32, 2"); a.e("s_lshr_b32 s34, s32, 2"); a.e("s_or_b32 s28, s28, s34")
    a.e("s_lshl_b32 s28, s28, 2"); a.e("s_and_b32 s34, s33, 3"); a.e("s_add_u32 s28, s28, s34")
    a.e("s_and_b32 s31, s32, 1"); a.e("s_lshr_b32 s33, s33, 2")
    a.e("s_lshl_b32 s29, s31, 3"); a.e("s_add_u32 s29, s29, s33")
    if MAP == 8:
        a.e("s_lshr_b32 s33, s2, 3")
        a.e("s_and_b32 s28, s33, 4"); a.e("s_lshl_b32 s28, s28, 1"); a.e("s_and_b32 s34, s32, 4"); a.e("s_or_b32 s28, s28, s34"); a.e("s_and_b32 s34, s33, 3"); a.e("s_or_b32 s28, s28, s34")
        a.e("s_and_b32 s29, s32, 3"); a.e("s_lshl_b32 s29, s29, 2"); a.e("s_lshr_b32 s33, s33, 3"); a.e("s_or_b32 s29, s29, s33")
        a.e("s_lshr_b32 s31, s29, 3"); a.e("s_and_b32 s33, s29, 7")
    if MAP == 2:
        a.e("s_lshr_b32 s33, s2, 3")
        a.e("s_and_b32 s28, s32, 2"); a.e("s_lshl_b32 s28, s28, 2"); a.e("s_and_b32 s34, s32, 4"); a.e("s_or_b32 s28, s28, s34")
        a.e("s_and_b32 s34, s32, 1"); a.e("s_lshl_b32 s34, s34, 1"); a.e("s_or_b32 s28, s28, s34"); a.e("s_and_b32 s34, s33, 1"); a.e("s_or_b32 s28, s28, s34")
        a.e("s_lshr_b32 s29, s33, 1"); a.e("s_lshr_b32 s31, s29, 3"); a.e("s_and_b32 s33, s29, 7")
    a.e({4: "s_lshl_b32 s67, s33, 1", 8: "s_lshl_b32 s67, s33, 2", 2: "s_mov_b32 s67, s29"}[MAP]); a.e(f"s_and_b32 s67, s67, {int(os.environ.get('RMASK', '0'))}")
    a.e("s_mov_b32 s60, 0"); a.e("s_mov_b32 s61, 40000"); a.e("s_mov_b32 s52, 0")
    a.e("s_mov_b32 s55, 0"); a.e("s_mov_b32 s92, 0"); a.e("s_mov_b32 s93, 0"); a.e("s_mov_b32 s94, 0")
    a.srd(56, 4, HSB)
    if os.environ.get("FIXT"): a.e("s_mov_b32 s101, s46")
    r_addr(a)
    a.e(f"s_add_u32 s62, s4, {LB0}"); a.e("s_addc_u32 s63, s5, 0")
    if STAMP:
        a.e("s_mov_b32 s66, 1"); a.e("v_mov_b32 v255, -1"); a.e("s_mov_b32 s95, 0"); a.e("v_writelane_b32 v255, s46, 0")
    mstamp(a)
    if os.environ.get("WBENCH"):
        a.e("s_waitcnt vmcnt(0)"); a.e("s_barrier")
        a.e("s_cmp_lt_u32 s30, 6"); a.e("s_cbranch_scc1 WB_end")
        for w in (1, 2, 3, 4):
            mstamp(a); w_setup(a, w); a.e("s_waitcnt vmcnt(0)"); mstamp(a); a.e("s_sleep 40")
        a.e("WB_end:"); a.e("s_branch K_dump")
    front_a(a); mstamp(a)
    for r in range(238, 248): a.e(f"v_mov_b32 v{r}, 0")
    a.e("s_cmp_ge_u32 s30, 4"); a.e("s_cbranch_scc1 FR_b")
    front_conv(a); hi = 0
    mstamp(a)
    front_arrive(a, True)
    a.e("s_branch FR_end")
    a.e("FR_b:")
    front_b(a)
    a.e("FR_end:")
    mstamp(a)
    a.e("LAYER:")
    if os.environ.get("XDELAY"): a.e(f"s_sleep {os.environ['XDELAY']}")
    hi = max(hi, r_stage(a, False))
    mstamp(a)
    a.e("s_cmp_ge_u32 s30, 4"); a.e("s_cbranch_scc1 LOADERS")
    if CPRIO: a.e(f"s_setprio {CPRIO}")
    for w in (1, 2, 3, 4):
        a.lines.append(f"; ---- G{w}: compute waves (set-up, K loop, epilogue, publish)")
        hi = max(hi, g_compute(a, w))
    a.e("LOADERS:")
    if SB[2]:
        a.e("s_cmp_lg_u32 s60, 0"); a.e("s_cbranch_scc1 LD_0"); sb(a, SB[2]); a.e("LD_0:")
    if PRIO: a.e(f"s_setprio {PRIO}")
    a.e("s_cmp_ge_u32 s30, 6"); a.e("s_cbranch_scc1 WLOAD")
    for w in (1, 2, 3, 4): a_loader(a, w)
    a.e("s_branch NEXT")
    a.e("WLOAD:")
    a.e("s_cmp_eq_u32 s60, 1"); a.e("s_cbranch_scc1 WL_1")
    w_setup(a, 1, pre=False); w1_slots(a, range(9 - W1G), pace=12); mstamp(a)
    a.e("s_branch WL_2")
    a.e("WL_1:")
    w_setup(a, 1, pre=False); w1_slots(a, range(3 - W1L), pace=12)
    a.e("WL_2:")
    for w in (1, 2, 3, 4):
        w_loader(a, w)
        if w == 2:
            c = CFG[3]; w_setup(a, 3, pre=False); a.e(f"s_mov_b32 s42, {(c['S0'] + 2) % c['NW'] * c['STB']}"); a.e("s_mov_b32 s44, 2")
        if w == 3: w_setup(a, 4)
    a.e("NEXT:")
    a.e("s_setprio 0")
    a.e("s_add_u32 s60, s60, 1"); a.e(f"s_add_u32 s55, s55, {LSTR}")
    a.e(f"s_add_u32 s62, s62, {LSTR}"); a.e("s_addc_u32 s63, s63, 0")
    a.e("s_branch LAYER")
    a.e("K_fin:")
    if os.environ.get("FIXT"):
        a.e("FX_l:"); a.e("s_sleep 4"); a.e("s_memrealtime s[64:65]"); a.e("s_waitcnt lgkmcnt(0)"); a.e("s_sub_u32 s64, s64, s101")
        if os.environ.get("FIX0"): a.e("s_add_u32 s64, s64, s101"); a.e("s_lshl_b32 s64, s64, 6"); a.e("s_sub_u32 s64, s64, s52"); a.e("s_lshr_b32 s64, s64, 6")
        a.e(f"s_cmp_lt_u32 s64, {os.environ['FIXT']}"); a.e("s_cbranch_scc1 FX_l")
    if STAMP:
        a.e("K_dump:")
        a.e("s_waitcnt vmcnt(0)")
        mstamp(a)
        a.srd(96, 4, 16 * MB, off=200 * MB)
        a.e("s_lshl_b32 s66, s2, 3"); a.e("s_add_u32 s66, s66, s30"); a.e("s_lshl_b32 s66, s66, 8")
        a.e("v_writelane_b32 v255, s95, 63")
        a.e("buffer_store_dword v255, v3, s[96:99], s66 offen")
        if os.environ.get("DBGOUT"):
            a.e("s_cmp_lg_u32 s66, 0"); a.e("s_cbranch_scc1 K_end")
            a.e(f"s_load_dwordx2 s[96:97], s[0:1], {D_DBG}"); a.e("s_mov_b32 s98, 64"); a.e("s_waitcnt lgkmcnt(0)")
            a.e("v_readlane_b32 s64, v255, 0"); a.e("v_mov_b32 v10, 0")
            for i, j in enumerate(eval(os.environ["DBGOUT"])):
                a.e(f"v_readlane_b32 s65, v255, {j}"); a.e("s_sub_u32 s65, s65, s64"); a.e("v_mov_b32 v11, s65")
                a.e(f"buffer_store_dword v11, v10, s[96:99], 0 offen offset:{8+4*i}")
    a.e("s_endpgm")
    emit_subs(a)
    a.e("K_end:")
    assert hi <= PV
    a.end_kernel(nm, 256)
    if TAB: tab_data(a)
    a.launches.append(f"; @launch grid=(256,1,1) block=(512,1,1) lds={LDS_TOTAL}")

HEADER = open("interleave_layers__ssm_conv_h3__mixer_s_mlp__prompt.s.ref").read().split("; Override launch")[0]
DOC = """; One persistent kernel, 256 workgroups x 8 waves (one per CU), generated by dev/gen25.py.
"""
def main(out):
    a = Asm()
    k_mega(a)
    DS = os.environ.get("DS")
    if DS:
        o = []
        for l in a.lines:
            o.append(l)
            if "buffer_store_dwordx" in l and "sc1" in l and any(k in l for k in DS.split(",")): o.append(l.replace(" sc1", ""))
        a.lines = o
    notes = {
        "K_pc:": "each workgroup reads 2 KB of this kernel's code so that later instruction fetches are served on chip",
        "KV_t0:": "k / v / tap loads of the u^T tile (64 times x 128 channels); workgroup 0 has posted the launch tag (a clock value) in d_debug",
        "HB_2:": "u^T tile out, arrival counters initialised to the tag, shifted filter copies into LDS, LayerNorm(q)",
        "CV_w:": "long causal convolution as Toeplitz MFMAs, one channel per wave",
        "FR_b:": "waves 4-7 beside the convolution: memory-locality vote (timed loads, layout choice only), weight column sums, weight touches",
        "LAYER:": "row stage: residual sums, LayerNorm chain, x + LN(x)*y for 8 rows per workgroup",
        "LOADERS:": "waves 4,5: activation tiles by LDS-DMA (after the producers' counters are complete)",
        "WLOAD:": "waves 6,7: weight tiles by LDS-DMA in their original layout (read back with transposing LDS loads)",
        "G4_last:": "last layer: the two K halves exchange half tiles, add the residuals and write the output",
    }
    o = []
    for l in a.lines:
        if l.strip() in notes: o.append("; ---- " + notes[l.strip()])
        if l.strip().startswith("s_sleep"): l += "    ; back-off inside a wait loop"
        o.append(l)
    a.lines = o
    open(out, "w").write(a.text(HEADER + DOC))
    print("nops added:", a.nops_added)

if __name__ == "__main__":
    main(sys.argv[1] if len(sys.argv) > 1 else "interleave_layers__ssm_conv_h3__mixer_s_mlp__prompt.s")
```

```python
import sys, os, math, struct
sys.path.insert(0, "dev")
from asmgen import Asm

KNAME = "interleave_layers__ssm_conv_h3__mixer_s_mlp__prompt_kernel"
MB = 1 << 20
UT, Y = 24 * MB, 28 * MB
CSP = {1: 20 * MB, 3: 20 * MB + 128 * 1024}
A_Q, A_K, A_V, A_SH, A_SSMK, A_SSMD, B_X, B_W1, B_W2, B_W3, B_W4, D_OUT, D_DBG, D_WS = [8 * i for i in range(14)]
STAMP = int(os.environ.get("STAMP", "0"))
def f32(x): return "0x%08x" % struct.unpack("<I", struct.pack("<f", x))[0]
GC1 = -2.0 * math.sqrt(2.0 / math.pi) * math.log2(math.e)
GC2 = GC1 * 0.044715

class VA:
    def __init__(self, start=1): self.n = start; self.hi = start
    def __call__(self, cnt=1, al=None):
        if al is None: al = 2 if cnt > 1 else 1
        self.n = (self.n + al - 1) // al * al
        r = self.n; self.n += cnt; self.hi = max(self.hi, self.n); return r
def vr(b, n): return f"v[{b}:{b+n-1}]" if n > 1 else f"v{b}"

def unpack(a, lo, hi, src):
    a.e(f"v_lshlrev_b32 v{lo}, 16, v{src}")
    a.e(f"v_and_b32 v{hi}, 0xffff0000, v{src}")
RND = int(os.environ.get("RND", "0"))
def round2(a, x, y, tmp):
    if not RND: return
    a.e(f"v_cvt_pk_bf16_f32 v{tmp}, v{x}, v{y}")
    unpack(a, x, y, tmp)
def round1(a, x):
    if not RND: return
    a.e(f"v_cvt_pk_bf16_f32 v{x}, v{x}, v{x}")
    a.e(f"v_lshlrev_b32 v{x}, 16, v{x}")
def red_g(a, x, t):
    a.e(f"v_mov_b32 v{t}, v{x}"); a.e(f"v_permlane16_swap_b32 v{x}, v{t}"); a.e(f"v_add_f32 v{x}, v{x}, v{t}")
    a.e(f"v_mov_b32 v{t}, v{x}"); a.e(f"v_permlane32_swap_b32 v{x}, v{t}"); a.e(f"v_add_f32 v{x}, v{x}, v{t}")
def ln_finish(a, mean, var, rs, s=None):
    round1(a, mean); round1(a, var)
    a.e(f"v_add_f32 v{var}, {f32(1e-5)}, v{var}"); round1(a, var)
    if not RND and s is None: a.e(f"v_rsq_f32 v{rs}, v{var}"); return
    a.e(f"v_sqrt_f32 v{var}, v{var}"); round1(a, var)
    if s is not None: a.e(f"v_mov_b32 v{s}, v{var}")
    a.e(f"v_rcp_f32 v{rs}, v{var}")


FLG = 22 * MB + int(os.environ.get("FOFF", "0"))
LB0, LSTR, GSTR = 32 * MB, 4 * MB, 16 * MB
oH2 = 4 * MB; oSM = oH2 + 1792 * 1024; oFP = 16384; oST2 = oSM + 32768; oLNS = oSM + 65536
oX3, oX1P, oP0, oP1 = [i * 512 * 1024 for i in range(4)]
DP = os.environ.get("DP", "rf12")
if "r" in DP: oP0, oP1 = oX3, oX1P
def mark(a, r, bit): a.e(f"v_or_b32 v{r}, 1, v{r}" if bit else f"v_and_b32 v{r}, -2, v{r}")
def data_poll(a, loads, regs, t, nap, first=0, canary=False):
    L = a.lab("dp"); D = a.lab("dq")
    if canary:
        a.e("s_bfm_b64 exec, 1, 63"); data_poll(a, loads, regs, t, nap, first); a.e("s_mov_b64 exec, -1"); first = 0
    a.e("s_mov_b32 s53, 0")
    if first: a.e(f"s_sleep {first}")
    a.e(f"{L}:")
    for x in loads: a.e(x)
    a.e("s_waitcnt vmcnt(0)")
    a.e(f"v_bitop3_b32 v{t}, v{regs[0]}, v{regs[1]}, v{regs[2]} bitop3:0x80"); a.e(f"v_bitop3_b32 v{t}, v{t}, v{regs[3]}, 1 bitop3:0x80")
    a.e(f"v_cmp_eq_u32 vcc, 0, v{t}"); a.e(f"s_cbranch_vccz {D}")
    a.e(f"s_sleep {nap}")
    a.e("s_add_u32 s53, s53, 1"); a.e("s_cmp_lt_u32 s53, s61"); a.e(f"s_cbranch_scc1 {L}")
    a.e("s_mov_b32 s61, 0")
    a.e(f"{D}:")
XSZ = 512 * 1024 - 8192; H2SZ = 1792 * 1024 - 8192
HSB = 160 * MB; PITCH = 65536 + int(os.environ.get("SKEW", "0")); oHS = None
def fso(stage): return int(stage * 256)
def spread(a, d, src):
    a.e(f"s_lshr_b32 s53, s{src}, 3"); a.e("s_lshl_b32 s53, s53, 14"); a.e(f"s_and_b32 s{d}, s{src}, 7"); a.e(f"s_lshl_b32 s{d}, s{d}, 10"); a.e(f"s_add_u32 s{d}, s{d}, s53")
ST_R, ST_G1, ST_G2, ST_G3, ST_G4, ST_R2, ST_G3B, ST_G3A = range(8); ST_G2S = 5.5
F_KVT, F_FRONT, F_CS = FLG, FLG + 32768, FLG + 49152
LDS_TOTAL = 163840
AUX = LDS_TOTAL - 4096
SC = "sc1"
PSLEEP = int(os.environ.get("PSLEEP", "5"))
ROT = int(os.environ.get("ROT", "1"))
PACE = int(os.environ.get("PACE", "8"))
PDEPTH = int(os.environ.get("PDEPTH", "1"))
WROT = int(os.environ.get("WROT", "1"))
PRIO = int(os.environ.get("PRIO", "0"))
STQ = int(os.environ.get("STQ", "12"))
CPRIO = int(os.environ.get("CPRIO", "0"))
FSLEEP = int(os.environ.get("FSLEEP", "3"))
CSPRIO = int(os.environ.get("CSPRIO", "1"))
NT = os.environ.get("NT", "nt"); HALO = int(os.environ.get("HALO", "0")); NTK = os.environ.get("NTK", "" if HALO else NT); NTH = os.environ.get("NTH", NT)
W1F = int(os.environ.get("W1F", "7"))
WSC = eval(os.environ.get("WSC", "{}"))
TLBW = int(os.environ.get("TLBW", "0"))
T12 = eval(os.environ.get("T12", "{}"))
T23 = eval(os.environ.get("T23", "()"))
OWN3 = int(os.environ.get("OWN3", "1"))
PUB2 = int(os.environ.get("PUB2", "4"))
MAP = int(os.environ.get("MAP", "4"))
HSPLIT = int(os.environ.get("HSPLIT", "2"))
W1G = int(os.environ.get("W1G", "9"))
PWAIT = int(os.environ.get("PWAIT", "8"))
DL = eval(os.environ.get("DL", "[2,4]"))
PACES = eval(os.environ.get("PACES", "{4:6}"))
C0PUB = int(os.environ.get("C0PUB", "6"))
LNSL = AUX + 1024

CFG = {1: dict(WM=4, WN=1, MT=2, NT=4, KBT=32, NS=16, NA=1.5, NW=16, A=oX3, W=B_W1, LDW=2048),
       2: dict(WM=4, WN=1, MT=2, NT=4, KBT=32, NS=16, NA=0, NW=16, A=oHS, W=B_W2, LDW=2048),
       3: dict(WM=2, WN=2, MT=4, NT=7, KBT=32, NS=16, NA=3, NW=3, A=oX1P, W=B_W3, LDW=7168, NPRE=2, WR=1, S0=2, WB=73728),
       4: dict(WM=2, WN=2, MT=4, NT=4, KBT=112, NS=28, NA=3, NW=6, A=oH2, W=B_W4, LDW=2048)}
for w, d in eval(os.environ.get("CFG", "{}")).items(): CFG[w].update(d)
for c in CFG.values():
    c.setdefault("NPRE", c["NW"]); c.setdefault("APRE", min(c["NA"], 3)); c.setdefault("WR", 1)
    c["TN16"] = c["WN"] * c["NT"]; c["STB"] = c["TN16"] * 2048; c.setdefault("WB", int(c["NA"] * 16384)); c.setdefault("S0", 0)
    c["RB"] = c["TN16"] * 32
    assert c["WB"] + c["NW"] * c["STB"] <= AUX
NX = 0
def nib(t): return sum(x << (4 * i) for i, x in enumerate(t))
CSO = {1: AUX + 3584, 3: AUX}

LW = AUX + 3072
def mstamp(a, force=False):
    if os.environ.get("JIT"):
        X = a.lab("jit")
        a.e("s_cselect_b32 s101, 1, 0"); a.e("s_memtime s[64:65]"); a.e("s_waitcnt lgkmcnt(0)"); a.e(f"s_and_b32 s64, s64, {os.environ['JIT']}"); a.e("s_cmp_lg_u32 s64, 0")
        a.e(f"s_cbranch_scc1 {X}"); a.e("s_sleep 50"); a.e(f"{X}:"); a.e("s_cmp_eq_u32 s101, 1")
        return
    if not STAMP or (os.environ.get("GST") and not force): return
    a.e(("s_memrealtime" if STAMP == 2 else "s_memtime") + " s[64:65]"); a.e("s_mov_b32 s100, m0"); a.e("s_mov_b32 m0, s66"); a.e("s_waitcnt lgkmcnt(0)")
    a.e("v_writelane_b32 v255, s64, m0"); a.e("s_mov_b32 m0, s100")
    a.e("s_add_u32 s66, s66, 1")

def lsrd(a, d, off, nbytes, prev=False):
    if prev:
        a.e(f"s_sub_u32 s{d}, s62, {LSTR - off:#x}"); a.e(f"s_subb_u32 s{d+1}, s63, 0")
        a.e(f"s_mov_b32 s{d+2}, {nbytes:#x}"); a.e(f"s_mov_b32 s{d+3}, 0x20000")
    else: a.srd(d, 62, nbytes, off=off)

def hs_srd(a, d):
    if "2" in DP: a.srd(d, 4, 128 * PITCH, off=HSB); return
    a.e("s_lshl_b32 s53, s60, 24"); a.e(f"s_add_u32 s53, s53, {HSB}")
    a.e(f"s_add_u32 s{d}, s4, s53"); a.e(f"s_addc_u32 s{d+1}, s5, 0"); a.e(f"s_mov_b32 s{d+2}, {128*PITCH}"); a.e(f"s_mov_b32 s{d+3}, 0x20000")

def group_off(a, d, m):
    a.e(f"s_lshr_b32 s53, s{m}, 3"); a.e("s_lshl_b32 s53, s53, 2"); a.e(f"s_and_b32 s54, s{m}, 3"); a.e("s_add_u32 s53, s53, s54"); a.e("s_lshl_b32 s53, s53, 24")
    a.e(f"s_lshr_b32 s54, s{m}, 2"); a.e("s_xor_b32 s54, s54, s94"); a.e("s_and_b32 s54, s54, 1"); a.e("s_lshl_b32 s54, s54, 13")
    a.e(f"s_add_u32 s{d}, s53, s54"); a.e(f"s_add_u32 s{d}, s{d}, {LB0}")

PV = 240
def poll_core(a, t, addrs, mask, extra=None, depth=1, cnt=0, nap=None):
    L = a.lab("poll"); D = a.lab("pok")
    n = len(addrs) + (1 if extra else 0)
    if depth > 1: t0 = t; regs = [PV + k * len(addrs) for k in range(depth)]; assert not extra and regs[-1] + len(addrs) <= 256
    else: regs = [t]
    def ld(r):
        for i, ad in enumerate(addrs): a.e(f"buffer_load_dword v{r+i}, v{ad}, s[56:59], 0 offen {SC}")
        if extra: a.e(extra[0])
    a.e("s_mov_b32 s53, 0"); a.e(f"s_add_u32 s54, s52, {cnt}")
    if mask != -1: a.e(f"s_bfm_b64 exec, {mask.bit_length()}, 0")
    for r in regs[:-1]: ld(r); a.e(f"s_sleep {PSLEEP}")
    a.e(f"{L}:")
    for k in range(depth):
        ld(regs[k - 1]); r = regs[k]
        a.e(f"s_waitcnt vmcnt({n*(depth-1)})")
        for i in range(len(addrs)): a.e(f"v_xor_b32 v{r+i}, s54, v{r+i}")
        for i in range(1, len(addrs)): a.e(f"v_or_b32 v{r}, v{r}, v{r+i}")
        if extra:
            for x in extra[1:]: a.e(x)
        a.e(f"v_cmp_eq_u32 vcc, 0, v{r}")
        a.e("s_cmp_eq_u64 vcc, exec"); a.e(f"s_cbranch_scc1 {D}")
        a.e(f"s_sleep {PSLEEP if nap is None else nap}")
    a.e("s_add_u32 s53, s53, 1"); a.e("s_cmp_lt_u32 s53, s61"); a.e(f"s_cbranch_scc1 {L}")
    a.e("s_mov_b32 s61, 0")
    a.e(f"{D}:")
    if mask != -1: a.e("s_mov_b64 exec, -1")

SPLIT = {ST_G1: "sign", ST_G3: "half", ST_G3A: "half", ST_G3B: "half"}
def flag_addr(a, r, stage, prev=False):
    so = fso(stage) - (LSTR if prev else 0)
    a.e(f"s_add_u32 s54, s55, {so & 0xffffffff:#x}")
    sp = SPLIT.get(stage)
    if sp == "half": a.e("s_lshl_b32 s53, s31, 7"); a.e("s_add_u32 s54, s54, s53")
    a.e(f"v_mov_b32 v{r}, s54")
    if sp == "sign":
        a.e("s_add_u32 s53, s54, 128"); a.e(f"v_writelane_b32 v{r}, s53, 1")
        a.e("s_add_u32 s53, s53, s93"); a.e(f"v_writelane_b32 v{r}, s53, 3")
        a.e("s_add_u32 s53, s54, s92"); a.e(f"v_writelane_b32 v{r}, s53, 2")
        return 0xf, 8
    return 1, 8 if sp else 16
def own_wait(a, stage, prev, t):
    if not PWAIT or stage == ST_R: return
    k = {ST_G1: 1, ST_G2: 2, ST_G4: 3}[stage] - (3 if prev else 0)
    a.e(f"s_mul_i32 s54, s60, {2 if 'r' in DP else 3}"); a.e(f"s_add_u32 s54, s54, {k}")
    lds_spin(a, LW + 56, "s54", t, nap=PWAIT)
def flag_try(a, r, ad):
    a.e("s_mov_b64 exec, 1"); a.e(f"buffer_load_dword v{r}, v{ad}, s[56:59], 0 offen {SC}"); a.e("s_mov_b64 exec, -1")
def flag_check(a, r, ad, cnt):
    D = a.lab("fok")
    a.e(f"v_readfirstlane_b32 s53, v{r}"); a.e(f"s_add_u32 s54, s52, {cnt}"); a.e("s_cmp_eq_u32 s53, s54"); a.e(f"s_cbranch_scc1 {D}")
    poll_core(a, r, [ad], 1, cnt=cnt)
    a.e(f"{D}:")

def poll(a, stage, t, prev=False):
    D = a.lab("pdone")
    a.e("s_cmp_lg_u32 s30, 4"); a.e(f"s_cbranch_scc1 {D}")
    if stage == ST_G1 and "2" in DP: a.e("s_cmp_lg_u32 s60, 0"); a.e(f"s_cbranch_scc1 {D}")
    own_wait(a, stage, prev, t)
    mask, cnt = flag_addr(a, t + 1, stage, prev)
    poll_core(a, t, [t + 1], mask, depth=PDEPTH, cnt=cnt)
    a.e(f"{D}:")
    if stage != ST_G4: mstamp(a)
    a.e("s_barrier")

def publish(a, stage, nw, t, off=None, wait=0, ctr=None, flag=False):
    D = a.lab("pub")
    mark = PWAIT and off is None and stage in (ST_G1, ST_G2, ST_G4)
    if off is None:
        a.e(f"s_add_u32 s53, s55, {fso(stage)}"); off = 53
        sp = SPLIT.get(stage)
        if sp == "half": a.e("s_lshl_b32 s54, s31, 7"); a.e("s_add_u32 s53, s53, s54")
        if sp == "sign": a.e("s_and_b32 s54, s29, 4"); a.e("s_lshl_b32 s54, s54, 5"); a.e("s_add_u32 s53, s53, s54")
    a.e(f"v_mov_b32 v{t}, 1"); a.e(f"v_mov_b32 v{t+1}, {LW + (ctr if ctr is not None else 4 if nw == 8 else 0)}"); a.e(f"v_mov_b32 v{t+3}, 0")
    a.e("s_mov_b64 exec, 1")
    if wait is not None: a.e(f"s_waitcnt vmcnt({wait})")
    if nw > 1:
        a.e(f"ds_add_rtn_u32 v{t+2}, v{t+1}, v{t}")
        if flag: a.e(f"v_mov_b32 v{t+1}, s52")
        a.e("s_waitcnt lgkmcnt(0)")
        a.e(f"v_readfirstlane_b32 s54, v{t+2}")
        a.e(f"s_and_b32 s54, s54, {nw-1}"); a.e(f"s_cmp_lg_u32 s54, {nw-1}"); a.e(f"s_cbranch_scc1 {D}")
    if flag: a.e(f"buffer_store_dword v{t+1}, v{t+3}, s[56:59], s{off} offen {SC}")
    else: a.e(f"buffer_atomic_add v{t}, v{t+3}, s[56:59], s{off} offen {SC}")
    if stage == ST_R and not flag:
        a.e("s_cmp_lg_u32 s60, 0"); a.e(f"s_cbranch_scc1 {D}")
        a.e("s_lshl_b32 s53, s29, 7"); a.e(f"s_add_u32 s53, s53, {F_CS}")
        a.e(f"buffer_atomic_add v{t}, v{t+3}, s[56:59], s53 offen {SC}")
    if mark: a.e(f"v_mov_b32 v{t+1}, {LW+56}"); a.e(f"ds_add_u32 v{t+1}, v{t}")
    a.e(f"{D}:")
    a.e("s_mov_b64 exec, -1")

def lds_spin(a, addr, target, t, dst=53, nap=False):
    L = a.lab("spin")
    a.e(f"v_mov_b32 v{t}, {addr}")
    a.e(f"{L}:")
    if nap: a.e(f"s_sleep {int(nap)}")
    a.e(f"ds_read_b32 v{t+1}, v{t}"); a.e("s_waitcnt lgkmcnt(0)"); a.e(f"v_readfirstlane_b32 s{dst}, v{t+1}")
    a.e(f"s_cmp_ge_u32 s{dst}, {target}"); a.e(f"s_cbranch_scc0 {L}")
def lds_set(a, addr, val, t):
    a.e(f"v_mov_b32 v{t}, {addr}"); a.e(f"v_mov_b32 v{t+1}, {val}")
    a.e("s_waitcnt lgkmcnt(0)"); a.e(f"ds_write_b32 v{t}, v{t+1}")
def lbar(a, k, t):
    a.e(f"v_mov_b32 v{t}, {LW+8}"); a.e(f"v_mov_b32 v{t+1}, 1")
    a.e("s_waitcnt lgkmcnt(0)")
    a.e("s_mov_b64 exec, 1"); a.e(f"ds_add_u32 v{t}, v{t+1}"); a.e("s_mov_b64 exec, -1")
    lds_spin(a, LW + 8, 4 * k, t)

def gelu4(a, X, t, c1, c2):
    P = [(X, t), (X + 2, t + 2)]
    for x, u in P: a.e(f"v_pk_mul_f32 {vr(u,2)}, {vr(x,2)}, {vr(x,2)}")
    for x, u in P: a.e(f"v_pk_fma_f32 {vr(u,2)}, {vr(u,2)}, {vr(c2,2)}, {vr(c1,2)}")
    for x, u in P: a.e(f"v_pk_mul_f32 {vr(u,2)}, {vr(u,2)}, {vr(x,2)}")
    for i in range(4): a.e(f"v_exp_f32 v{t+i}, v{t+i}")
    for x, u in P: a.e(f"v_pk_add_f32 {vr(u,2)}, {vr(u,2)}, 1.0 op_sel_hi:[1,0]")
    for i in range(4): a.e(f"v_rcp_f32 v{t+i}, v{t+i}")
    for x, u in P: a.e(f"v_pk_mul_f32 {vr(x,2)}, {vr(x,2)}, {vr(u,2)}")

W2EARLY = int(os.environ.get("W2EARLY", "1")); QLATE = int(os.environ.get("QLATE", "0"))
TOUCH2 = [(A_Q, 4 * MB)] + ([] if W2EARLY else [(B_W2, 2 * MB)])
CODEPF = int(os.environ.get("CODEPF", "1")); NVOTE = 255; NSAMP = int(os.environ.get("NSAMP", "2"))
W4POS = os.environ.get("W4POS", "3C")
HSTR = 4160; CHB = 24576; UOFF = 4 * HSTR; US = 96
KVS = 4 * CHB

KV = dict(cq=6, tg=7, t=8, ro=9, wo=16, pt=18, kr=22, vv=36, w=44, d=52, hoff=70, tag=76, zz=78)
def front_loads(a):
    cq, tg, t, ro, wo, kr, vv, w = [KV[k] for k in "cq tg t ro wo kr vv w".split()]
    a.e(f"v_and_b32 v{cq}, 31, v0"); a.e(f"v_lshrrev_b32 v{tg}, 5, v0")
    a.e("s_and_b32 s34, s2, 7"); a.e("s_lshr_b32 s35, s2, 3")
    a.e("s_lshl_b32 s36, s35, 17"); a.e("s_lshl_b32 s37, s34, 8"); a.e("s_add_u32 s36, s36, s37")
    a.e(f"v_lshlrev_b32 v{t}, 13, v{tg}"); a.e(f"v_lshl_add_u32 v{t}, v{cq}, 3, v{t}"); a.e(f"v_add_u32 v{ro+3}, s36, v{t}")
    a.e(f"v_add_u32 v{ro+5}, 4096, v{ro+3}")
    a.e(f"s_mov_b32 s18, {4*MB}"); a.e("s_mov_b32 s19, 0x20000"); a.e("s_mov_b32 s22, s18"); a.e("s_mov_b32 s23, s19")
    a.e("s_waitcnt lgkmcnt(0)")
    tag, zz = KV["tag"], KV["zz"]
    a.e("s_mov_b32 s86, 256"); a.e("s_mov_b32 s87, 0x20000"); a.e(f"v_mov_b32 v{zz}, 0")
    a.e("s_lshl_b32 s45, s2, 3"); a.e("s_add_u32 s45, s45, s30"); a.e("s_cmp_lg_u32 s45, 4"); a.e("s_cbranch_scc1 KV_t0")
    a.e("s_lshl_b32 s44, s46, 6"); a.e("s_or_b32 s44, s44, 1"); a.e(f"v_mov_b32 v{tag}, s44")
    a.e("s_mov_b64 exec, 1"); a.e(f"buffer_store_dword v{tag}, v{zz}, s[84:87], 0 offen {SC}"); a.e("s_mov_b64 exec, -1")
    a.e("KV_t0:")
    a.e("s_mov_b64 s[16:17], s[8:9]"); a.e("s_mov_b64 s[20:21], s[10:11]")
    for i in range(4): a.e(f"buffer_load_dwordx2 {vr(kr+2*(i+3),2)}, v{ro+3+(i&2)}, s[16:19], 0 offen offset:{2048*(i&1)} {NTK}")
    for i in range(4): a.e(f"buffer_load_dwordx2 {vr(vv+2*i,2)}, v{ro+3+(i&2)}, s[20:23], 0 offen offset:{2048*(i&1)} {NT}")
    for i in range(3): a.e(f"v_subrev_u32 v{ro+i}, {2048*(3-i)}, v{ro+3}")
    a.e("s_lshl_b32 s37, s34, 10"); a.e(f"v_lshlrev_b32 v{wo}, 5, v{cq}"); a.e(f"v_add_u32 v{wo}, s37, v{wo}")
    a.srd(24, 12, 8192)
    XP = os.environ.get("XP", "g")
    for i in range(0 if "t" in XP else 2): a.e(f"buffer_load_dwordx4 {vr(w+4*i,4)}, v{wo}, s[24:27], 0 offen offset:{16*i}")
    if "g" in XP:
        a.e("s_cmp_lg_u32 s30, 4"); a.e("s_cbranch_scc1 KV_t2")
        a.e(f"buffer_load_dword v{tag}, v{zz}, s[84:87], 0 offen {SC}")
        a.e("KV_t2:")
    if "h" in XP: return
    if HALO:
        a.e("s_cmp_lg_u32 s30, 0"); a.e("s_cbranch_scc1 KV_h0"); a.e("s_bfm_b64 exec, 32, 0")
    for i in range(3): a.e(f"buffer_load_dwordx2 {vr(kr+2*i,2)}, v{ro+i}, s[16:19], 0 offen {NTK}")
    if HALO: a.e("s_mov_b64 exec, -1"); a.e("KV_h0:")

def probe_base(a):
    a.e("s_and_b32 s42, s2, 31"); a.e("s_lshl_b32 s42, s42, 8"); a.e("s_lshr_b32 s43, s2, 5"); a.e("s_lshl_b32 s43, s43, 14"); a.e("s_add_u32 s42, s42, s43")
    a.e(f"s_add_u32 s42, s42, {LB0 + oSM + 131072}")
def front_arrive(a, wait):
    D = a.lab("fa"); t = 6
    a.e("s_and_b32 s36, s2, 7"); a.e("s_lshl_b32 s36, s36, 7"); a.e(f"s_add_u32 s36, s36, {F_FRONT}")
    a.e(f"v_mov_b32 v{t}, 1"); a.e(f"v_mov_b32 v{t+1}, {LW+4}"); a.e(f"v_lshlrev_b32 v{t+3}, 10, v1")
    a.e("s_mov_b64 exec, 1")
    if wait: a.e("s_waitcnt vmcnt(0)")
    a.e("s_waitcnt lgkmcnt(0)")
    a.e(f"ds_add_rtn_u32 v{t+2}, v{t+1}, v{t}"); a.e(f"ds_read_b32 v{t+4}, v{t+1} offset:28")
    a.e("s_waitcnt lgkmcnt(0)")
    a.e(f"v_readfirstlane_b32 s54, v{t+2}"); a.e(f"v_readfirstlane_b32 s53, v{t+4}")
    a.e("s_cmp_lg_u32 s54, 15"); a.e(f"s_cbranch_scc1 {D}")
    a.e("s_mov_b64 exec, 0xffff"); a.e("s_or_b32 s53, s53, 1"); a.e(f"v_mov_b32 v{t}, s53")
    a.e(f"buffer_atomic_add v{t}, v{t+3}, s[56:59], s36 offen {SC}")
    a.e(f"{D}:"); a.e("s_mov_b64 exec, -1")
def front_a(a):
    cq, tg, t, pt, kr, vv, w, d, hoff, tag, zz = [KV[k] for k in "cq tg t pt kr vv w d hoff tag zz".split()]
    v = VA(80)
    a.e("s_and_b32 s41, s30, 3"); chan_setup(a, 41)
    a.e("s_lshr_b32 s36, s39, 1"); a.e("s_lshl_b32 s36, s36, 2"); a.e("s_load_dword s98, s[96:97], s36")
    a.e("s_lshl_b32 s36, s39, 12")
    a.e("s_add_u32 s12, s14, s36"); a.e("s_addc_u32 s13, s15, 0"); a.e("s_mov_b32 s14, 4096"); a.e("s_mov_b32 s15, 0x20000")
    a.e("s_lshr_b32 s45, s30, 2"); a.e("s_lshl_b32 s45, s45, 11")
    for it in range(3):
        if it < 2: a.e(f"s_add_u32 s36, s45, {(1024*it - 64) & 0xffffffff:#x}")
        else: a.e(f"s_mov_b32 s36, {4096 - 64}")
        a.e(f"v_add_u32 v{hoff+2*it}, s36, v2"); a.e(f"v_add_u32 v{hoff+2*it+1}, 16, v{hoff+2*it}")
    a.e("s_and_b32 s34, s2, 7"); a.e("s_lshr_b32 s35, s2, 3")
    z = v(4, 4); la = v(); t2 = v(); hw = v()
    for i in range(4): a.e(f"v_mov_b32 v{z+i}, 0")
    a.e(f"v_add_u32 v{hw}, s40, v2")
    a.e(f"ds_write_b128 v{hw}, {vr(z,4)} offset:{UOFF+64*US}")
    a.e(f"s_bfm_b64 exec, {(15*US - 1024)//16}, 0"); a.e(f"ds_write_b128 v{hw}, {vr(z,4)} offset:{UOFF+64*US+1024}"); a.e("s_mov_b64 exec, -1")
    a.e(f"v_lshlrev_b32 v{t}, 2, v{tg}"); a.e(f"v_sub_u32 v{t}, 60, v{t}")
    a.e(f"v_lshrrev_b32 v{t2}, 3, v{t}"); a.e(f"v_bfe_u32 v{la}, v{cq}, 1, 3"); a.e(f"v_xor_b32 v{t2}, v{t2}, v{la}"); a.e(f"v_lshlrev_b32 v{t2}, 4, v{t2}")
    a.e(f"v_and_b32 v{t}, 7, v{t}"); a.e(f"v_lshl_add_u32 v{t2}, v{t}, 1, v{t2}")
    a.e(f"v_lshl_add_u32 v{la}, v{cq}, 9, v{t2}"); a.e(f"v_add_u32 v{la}, {KVS}, v{la}")
    wf = v(8, 2); kf = v(14, 2); vf = v(8, 2); ks = v(8, 2); pr = v(8, 2); o = v(8, 4); tm = v(4, 1)
    a.e("s_waitcnt vmcnt(0)")
    if HALO:
        for i in range(3): a.e(f"buffer_load_dwordx2 {vr(kr+2*i,2)}, v{KV['ro']+i}, s[16:19], 0 offen {NTK}")
        if HALO == 1: a.e("s_waitcnt vmcnt(0)")
    a.e("s_cmp_lg_u32 s30, 4"); a.e("s_cbranch_scc1 KV_t1")
    if "g" not in os.environ.get("XP", "g"): a.e(f"buffer_load_dword v{tag}, v{zz}, s[84:87], 0 offen {SC}")
    a.e("KV_t1:")
    for it in range(3):
        a.e(f"buffer_load_dwordx4 {vr(d+6*it,4)}, v{hoff+2*it}, s[12:15], 0 offen {NTH}")
        a.e(f"buffer_load_dwordx2 {vr(d+6*it+4,2)}, v{hoff+2*it+1}, s[12:15], 0 offen {NTH}")
    if HALO == 2: a.e("s_waitcnt vmcnt(10)")
    mstamp(a)
    for dd in range(2):
        for c in range(2):
            unpack(a, wf + 0 + c, wf + 2 + c, w + 2 * (2 * dd + c)); unpack(a, wf + 4 + c, wf + 6 + c, w + 2 * (2 * dd + c) + 1)
        for i in range(7): unpack(a, kf + 2 * i, kf + 2 * i + 1, kr + 2 * i + dd)
        for i in range(4): unpack(a, vf + 2 * i, vf + 2 * i + 1, vv + 2 * i + dd)
        def rnd(base):
            for i in range(4): a.e(f"v_cvt_pk_bf16_f32 v{tm+i}, v{base+2*i}, v{base+2*i+1}")
            for i in range(4): unpack(a, base + 2 * i, base + 2 * i + 1, tm + i)
        for i in range(4): a.e(f"v_pk_mul_f32 {vr(ks+2*i,2)}, {vr(kf+2*i,2)}, {vr(wf+6,2)}")
        if RND: rnd(ks)
        for j in range(1, 4):
            if not RND:
                for i in range(4): a.e(f"v_pk_fma_f32 {vr(ks+2*i,2)}, {vr(kf+2*(i+j),2)}, {vr(wf+6-2*j,2)}, {vr(ks+2*i,2)}")
                continue
            for i in range(4): a.e(f"v_pk_mul_f32 {vr(pr+2*i,2)}, {vr(kf+2*(i+j),2)}, {vr(wf+6-2*j,2)}")
            rnd(pr)
            for i in range(4): a.e(f"v_pk_add_f32 {vr(ks+2*i,2)}, {vr(ks+2*i,2)}, {vr(pr+2*i,2)}")
            rnd(ks)
        for i in range(4): a.e(f"v_pk_mul_f32 {vr(ks+2*i,2)}, {vr(ks+2*i,2)}, {vr(vf+2*i,2)}")
        for c in range(2):
            e = 2 * dd + c
            a.e(f"v_cvt_pk_bf16_f32 v{o+2*e}, v{ks+6+c}, v{ks+4+c}"); a.e(f"v_cvt_pk_bf16_f32 v{o+2*e+1}, v{ks+2+c}, v{ks+c}")
            a.e(f"ds_write_b64 v{la}, {vr(o+2*e,2)} offset:{e*128}")
    a.e("s_cmp_lg_u32 s30, 4"); a.e("s_cbranch_scc1 HB_2")
    a.e(f"v_add_u32 v{pt}, {LW}, v3"); a.e(f"ds_write_b32 v{pt}, v{zz}")
    a.e("s_mov_b32 s53, 0")
    a.e("s_waitcnt vmcnt(6)")
    a.e("HB_p:")
    a.e(f"v_readfirstlane_b32 s52, v{tag}"); a.e("s_cmp_eq_u32 s52, 0"); a.e("s_cbranch_scc1 HB_r")
    a.e("s_cmp_ge_u32 s53, 400"); a.e("s_cbranch_scc1 HB_q")
    a.e("s_add_u32 s54, s46, 8192"); a.e("s_lshl_b32 s54, s54, 6"); a.e("s_sub_u32 s54, s54, s52"); a.e(f"s_cmp_lt_u32 s54, {12288*64}"); a.e("s_cbranch_scc1 HB_q")
    a.e("HB_r:")
    a.e(f"buffer_load_dword v{tag}, v{zz}, s[84:87], 0 offen {SC}"); a.e("s_waitcnt vmcnt(0)")
    a.e("s_add_u32 s53, s53, 1"); a.e("s_cmp_lt_u32 s53, s61"); a.e("s_cbranch_scc1 HB_p")
    a.e("s_mov_b32 s52, 1"); a.e("s_mov_b32 s61, 0")
    a.e("HB_q:")
    lds_set(a, LW + 12, "s52", pt)
    a.e("HB_2:")
    a.srd(16, 4, 8 * GSTR, off=LB0 + oX3)
    ra = v(); go = v(); ob = v(8, 4)
    a.e(f"v_lshrrev_b32 v{t}, 3, v0"); a.e(f"v_and_b32 v{t2}, 7, v0")
    a.e(f"v_lshlrev_b32 v{go}, 12, v{t}"); a.e(f"v_lshl_add_u32 v{go}, v{t2}, 4, v{go}")
    a.e("s_lshl_b32 s36, s34, 24"); a.e("s_sub_u32 s37, 31, s35"); a.e("s_lshl_b32 s37, s37, 7"); a.e("s_add_u32 s36, s36, s37")
    a.e(f"s_add_u32 s37, s36, {64*4096}")
    a.e(f"v_lshrrev_b32 v{ra}, 3, v{t}"); a.e(f"v_xor_b32 v{ra}, v{ra}, v{t2}"); a.e(f"v_lshlrev_b32 v{ra}, 4, v{ra}"); a.e(f"v_lshl_add_u32 v{ra}, v{t}, 7, v{ra}")
    a.e(f"v_add_u32 v{ra}, {KVS}, v{ra}"); a.e(f"v_mov_b32 v{pt}, {LW+12}")
    a.e("s_waitcnt lgkmcnt(0)"); a.e("s_barrier")
    for i in range(2): a.e(f"ds_read_b128 {vr(ob+4*i,4)}, v{ra} offset:{i*8192}")
    a.e(f"ds_read_b32 v{pt+1}, v{pt}")
    for i in range(2):
        a.e(f"s_waitcnt lgkmcnt({2-i})")
        if "1" in DP: mark(a, ob + 4 * i, 1)
        a.e(f"buffer_store_dwordx4 {vr(ob+4*i,4)}, v{go}, s[16:19], s{36+i} offen {SC}")
    a.e("s_waitcnt lgkmcnt(0)"); a.e(f"v_readfirstlane_b32 s52, v{pt+1}")
    a.e("s_cmp_lg_u32 s30, 0"); a.e("s_cbranch_scc1 KV_ni"); a.e("s_cmp_ge_u32 s35, 16"); a.e("s_cbranch_scc1 KV_ni")
    a.e(f"v_mov_b32 v{t}, s52")
    a.e("s_lshl_b32 s37, s34, 7"); a.e("s_lshl_b32 s53, s35, 10"); a.e("s_add_u32 s37, s37, s53"); a.e(f"s_add_u32 s37, s37, {F_FRONT}")
    a.e("s_mov_b64 exec, 1"); a.e(f"buffer_store_dword v{t}, v{zz}, s[56:59], s37 offen {SC}"); a.e("s_mov_b64 exec, -1")
    a.e("KV_ni:")
    a.e(f"s_cmp_ge_u32 s2, {NVOTE}"); a.e("s_cbranch_scc1 KV_n3"); a.e("s_cmp_lg_u32 s30, 5"); a.e("s_cbranch_scc1 KV_n3")
    probe_base(a)
    a.e(f"v_and_b32 v{t}, 1, v1"); a.e(f"v_lshlrev_b32 v{t}, 13, v{t}"); a.e(f"v_lshrrev_b32 v{t2}, 1, v1"); a.e(f"v_lshl_add_u32 v{t}, v{t2}, 7, v{t}")
    a.e("s_mov_b64 exec, 0xf"); a.e(f"buffer_store_dword v{t}, v{t}, s[56:59], s42 offen {SC}"); a.e("s_mov_b64 exec, -1")
    a.e("KV_n3:")
    def pubk():
        a.e("s_lshl_b32 s36, s34, 5"); a.e("s_add_u32 s36, s36, s35"); a.e("s_lshl_b32 s36, s36, 7"); a.e(f"s_add_u32 s36, s36, {F_KVT}")
        mstamp(a)
        publish(a, 0, 8, pt, off=36, flag=True)
        mstamp(a)
    HF = int(os.environ.get("HF", "0"))
    if not HF: pubk()
    else: a.e("s_waitcnt vmcnt(2)")
    cc = wf; hw2 = v()
    a.e(f"v_add_u32 v{hw2}, s45, v{hw}")
    for it in range(3):
        D = d + 6 * it; c0 = cc + 12 * it; c1 = c0 + 4; c2 = c0 + 8
        for k in range(4):
            a.e(f"v_alignbit_b32 v{c0+k}, v{D+k+1}, v{D+k}, 16")
            a.e(f"v_mov_b32 v{c1+k}, v{D+k+1}")
            a.e(f"v_alignbit_b32 v{c2+k}, v{D+k+2}, v{D+k+1}, 16")
        if it == 2: a.e("s_mov_b64 exec, 0xf")
        ad, o0 = (hw2, 1024 * it) if it < 2 else (hw, 4096)
        a.e(f"ds_write_b128 v{ad}, {vr(c0,4)} offset:{o0}")
        a.e(f"ds_write_b128 v{ad}, {vr(c1,4)} offset:{HSTR+o0}")
        a.e(f"ds_write_b128 v{ad}, {vr(c2,4)} offset:{2*HSTR+o0}")
        a.e(f"ds_write_b128 v{ad}, {vr(D+2,4)} offset:{3*HSTR+o0}")
        if it == 2: a.e("s_mov_b64 exec, -1")
    if HF: pubk()
    assert v.hi <= 176
    a.e("s_waitcnt lgkmcnt(0)"); a.e("s_barrier")
def load_q(a):
    a.srd(8, 6, 4 * MB)
    for j in range(4): a.e(f"buffer_load_dwordx2 {vr(RXA+2*j,2)}, v{RRO}, s[8:11], 0 offen offset:{128*(j>>1) + 32*(j&1)} {os.environ.get('NTQ', NTH)}")
def chan_setup(a, wsg):
    a.e("s_and_b32 s38, s2, 7"); a.e("s_lshl_b32 s38, s38, 5"); a.e("s_lshr_b32 s39, s2, 3"); a.e("s_add_u32 s38, s38, s39")
    a.e("s_lshl_b32 s39, s38, 2"); a.e(f"s_add_u32 s39, s39, s{wsg}")
    a.e(f"s_mul_i32 s40, s{wsg}, {CHB}")

def touch(a, ka, nbytes, r):
    n = nbytes // 1024 // 512
    a.e(f"s_load_dwordx2 s[48:49], s[0:1], {ka}")
    a.e("s_lshl_b32 s45, s2, 1"); a.e("s_and_b32 s50, s30, 1"); a.e("s_add_u32 s45, s45, s50"); a.e(f"s_mul_i32 s45, s45, {n*1024}")
    a.e(f"s_mov_b32 s50, {nbytes}"); a.e("s_mov_b32 s51, 0x20000")
    a.e("s_waitcnt lgkmcnt(0)")
    for i in range(n):
        if i and i % 4 == 0: a.e("s_add_u32 s45, s45, 4096")
        a.e(f"buffer_load_dwordx4 {vr(r,4)}, v2, s[48:51], s45 offen offset:{(i&3)*1024}")
    return n

def w2_warm(a):
    a.e("s_mov_b64 s[48:49], s[70:71]"); a.e(f"s_mov_b32 s50, {2*MB}"); a.e("s_mov_b32 s51, 0x20000")
    a.e("s_and_b32 s45, s28, 3"); a.e("s_lshl_b32 s45, s45, 1"); a.e("s_and_b32 s46, s30, 1"); a.e("s_add_u32 s45, s45, s46"); a.e("s_lshl_b32 s45, s45, 18")
    a.e("s_lshl_b32 s46, s29, 7"); a.e("s_add_u32 s45, s45, s46"); a.e("v_lshlrev_b32 v245, 11, v1")
    a.e("buffer_load_dword v244, v245, s[48:51], s45 offen"); a.e(f"s_add_u32 s45, s45, {64*2048}"); a.e("buffer_load_dword v246, v245, s[48:51], s45 offen")
def cs_load(a, which, slot):
    w_setup(a, which, pre=False)
    a.e(f"s_mov_b32 s42, {slot}"); a.e("s_mov_b32 s44, s28")
    w_issue(a, which, direct=True)
CSEL, CFR, CAD, CACC, CSO_ = 16, 72, 144, 156, 164
def cs_prep(a, S1, S3):
    a.e(f"v_and_b32 v{CSO_}, 15, v1"); a.e(f"v_mov_b32 v{CSO_+1}, 0x3f803f80")
    for T in range(14):
        a.e(f"v_cmp_eq_u32 vcc, {T}, v{CSO_}")
        for e in range(4): a.e(f"v_cndmask_b32 v{CSEL+4*T+e}, 0, v{CSO_+1}, vcc")
    pos = {}
    for which, slot, r0, halves in ((1, S1, CAD, 1), (3, S3, CAD + 4, 2)):
        c = CFG[which]
        for hf in range(halves):
            a.e(f"s_mov_b32 s35, {hf}")
            nr, pos[which] = w_bases(a, which, r0 + 2 * hf, 35, c["TN16"] // halves, WV + 8, WV + 9)
            a.e("s_and_b32 s35, s30, 1"); a.e(f"s_mul_i32 s35, s35, {32*c['RB']}"); a.e(f"s_add_u32 s35, s35, {slot}")
            for i in range(nr): a.e(f"v_add_u32 v{r0+2*hf+i}, s35, v{r0+2*hf+i}")
    for i in range(8): a.e(f"v_mov_b32 v{CACC+i}, 0")
    a.e(f"v_lshrrev_b32 v{CSO_+2}, 4, v1"); a.e(f"v_lshlrev_b32 v{CSO_+2}, 4, v{CSO_+2}"); a.e(f"v_lshl_add_u32 v{CSO_+2}, v{CSO_}, 6, v{CSO_+2}")
    a.e(f"v_mov_b32 v{CSO_+1}, 0x7f000000")
    for k, n in ((3, 4), (4, 14)):
        a.e(f"v_cmp_gt_u32 vcc, {n}, v{CSO_}"); a.e(f"v_cndmask_b32 v{CSO_+k}, v{CSO_+1}, v{CSO_+2}, vcc")
    return pos
def cs_sum(a, which, pos):
    c = CFG[which]; ntl = c["TN16"]; N = c["LDW"] // 2
    F = CFR + (0 if which == 3 else 56); A = CACC + (0 if which == 3 else 4)
    for T in range(ntl):
        hf, nt = (T // 7, T % 7) if which == 3 else (0, T)
        for h in range(2):
            r, imm = pos[which](nt, 0, h)
            a.e(f"ds_read_b64_tr_b16 {vr(F+4*T+2*h,2)}, v{(CAD + 4 if which == 3 else CAD) + 2*hf + r} offset:{imm}")
    a.srd(20, 4, 32 * N * 4, off=CSP[which])
    a.e("s_lshl_b32 s35, s28, 1"); a.e("s_and_b32 s36, s30, 1"); a.e("s_add_u32 s35, s35, s36"); a.e(f"s_mul_i32 s35, s35, {N*4}")
    a.e(f"s_mul_i32 s36, s29, {ntl*64}"); a.e("s_add_u32 s35, s35, s36")
    a.e("s_waitcnt lgkmcnt(0)")
    for T in range(ntl): a.e(f"v_mfma_f32_16x16x32_bf16 {vr(A,4)}, {vr(F+4*T,4)}, {vr(CSEL+4*T,4)}, {vr(A,4)}")
    a.e(f"buffer_store_dwordx4 {vr(A,4)}, v{CSO_ + (4 if which == 3 else 3)}, s[20:23], s35 offen {SC}")

NOCS3 = int(os.environ.get("NOCS3", "0")); STO = os.environ.get("STOUCH", "")
def stouch(a, which, gran, nw):
    X = a.lab("st"); L = a.lab("sl"); n = 28672 // nw
    a.e("s_cmp_lg_u32 s60, 0"); a.e(f"s_cbranch_scc1 {X}")
    a.e(f"s_mul_i32 s36, s2, 28672"); a.e(f"s_and_b32 s37, s30, {nw-1}"); a.e(f"s_mul_i32 s37, s37, {n}"); a.e("s_add_u32 s36, s36, s37")
    a.e(f"s_add_u32 s34, s{66+2*which}, s36"); a.e(f"s_addc_u32 s35, s{67+2*which}, 0"); a.e("s_mov_b32 s36, 0")
    a.e(f"{L}:")
    for i in range(14): a.e(f"s_load_dword s37, s[34:35], {i*gran}")
    a.e(f"s_add_u32 s34, s34, {14*gran}"); a.e("s_addc_u32 s35, s35, 0"); a.e("s_add_u32 s36, s36, 1"); a.e(f"s_cmp_lt_u32 s36, {n // (14*gran)}"); a.e(f"s_cbranch_scc1 {L}")
    a.e("s_waitcnt lgkmcnt(0)")
    a.e(f"{X}:")
SB = eval(os.environ.get("SB", "(0,0,0)"))
SG = eval(os.environ.get("SG", "(0,0,0,0)"))
def sg(a, n):
    if not n: return
    X = a.lab("st"); L = a.lab("sl")
    a.e("s_cmp_lg_u32 s60, 0"); a.e(f"s_cbranch_scc1 {X}"); a.e("s_mov_b32 s36, 0"); a.e(f"{L}:"); sb(a, 14)
    a.e("s_add_u32 s36, s36, 1"); a.e(f"s_cmp_lt_u32 s36, {n}"); a.e(f"s_cbranch_scc1 {L}"); a.e("s_waitcnt lgkmcnt(0)"); a.e(f"{X}:"); mstamp(a)
def sb_init(a):
    nw = 2 if sum(SG) else 4
    a.e(f"s_mul_i32 s36, s2, 28672"); a.e(f"s_and_b32 s37, s30, {nw-1}"); a.e(f"s_mul_i32 s37, s37, {28672//nw}"); a.e("s_add_u32 s36, s36, s37")
    SW = 66 + 2 * int(os.environ.get("SGW", "3"))
    a.e(f"s_add_u32 s90, s{SW}, s36"); a.e(f"s_addc_u32 s91, s{SW+1}, 0")
def sb(a, n):
    for i in range(n): a.e(f"s_load_dword s101, s[90:91], {i*64}")
    if n: a.e(f"s_add_u32 s90, s90, {n*64}"); a.e("s_addc_u32 s91, s91, 0")
def front_b(a):
    pt, dm = 6, 20
    PZE = int(os.environ.get("PZE", "0"))
    if PZE:
        a.srd(20, 4, 32 * MB, off=216 * MB)
        for i in range(4): a.e(f"v_mov_b32 v{216+i}, -1")
        a.e("s_lshl_b32 s45, s2, 2"); a.e("s_and_b32 s50, s30, 3"); a.e("s_add_u32 s45, s45, s50"); a.e(f"s_mul_i32 s45, s45, {PZE*1024}")
        for i in range(PZE):
            a.e(f"buffer_store_dwordx4 v[216:219], v2, s[20:23], s45 offen {SC}"); a.e("s_add_u32 s45, s45, 1024")
    if TAB: tab_load(a)
    TE = int(os.environ.get("TE", "0"))
    if TE:
        a.e("s_cmp_ge_u32 s30, 6"); a.e("s_cbranch_scc1 FB_t1"); touch(a, B_W2, 2 * MB, dm); a.e("s_branch FB_t2"); a.e("FB_t1:"); touch(a, B_W1, 2 * MB, 200); a.e("FB_t2:")
    w_lanes(a)
    a.e("s_cmp_ge_u32 s30, 6"); a.e("s_cbranch_scc1 FB_cs")
    vd = 12
    a.e(f"s_cmp_ge_u32 s2, {NVOTE}"); a.e("s_cbranch_scc1 FB_np"); a.e("s_cmp_lg_u32 s30, 5"); a.e("s_cbranch_scc1 FB_np")
    probe_base(a); a.e(f"v_mov_b32 v{vd+2}, 0")
    a.e("s_mov_b64 exec, 1"); a.e("s_mov_b32 s46, -1"); a.e("s_mov_b32 s47, -1"); a.e("s_mov_b32 s43, 0")
    a.e("FB_ml:")
    for i in range(2):
        a.e(f"s_add_u32 s45, s42, {i * 8192}")
        a.e("s_memtime s[34:35]"); a.e("s_waitcnt lgkmcnt(0)")
        a.e(f"buffer_load_dword v{vd+1}, v{vd+2}, s[56:59], s45 offen {SC}"); a.e("s_waitcnt vmcnt(0)")
        a.e("s_memtime s[36:37]"); a.e("s_waitcnt lgkmcnt(0)")
        a.e("s_sub_u32 s36, s36, s34"); a.e(f"s_min_u32 s{46+i}, s{46+i}, s36")
    a.e("s_add_u32 s42, s42, 128"); a.e("s_add_u32 s43, s43, 1"); a.e(f"s_cmp_lt_u32 s43, {NSAMP}"); a.e("s_cbranch_scc1 FB_ml")
    a.e("s_cmp_lt_u32 s47, s46"); a.e("s_cselect_b32 s45, 1, 0")
    a.e("s_lshr_b32 s46, s28, 2"); a.e("s_xor_b32 s45, s45, s46"); a.e("s_and_b32 s45, s45, 1"); a.e("s_lshl_b32 s45, s45, 8")
    a.e("s_mov_b64 exec, -1")
    lds_set(a, LW + 32, "s45", pt)
    a.e("FB_np:")
    mstamp(a)
    a.e("s_cmp_lg_u32 s30, 4"); a.e("s_cbranch_scc1 FB_ni")
    a.e(f"v_mov_b32 v{vd}, s52")
    group_off(a, 37, 28); a.e("s_andn2_b32 s37, s37, 0x2000"); a.e("s_lshl_b32 s53, s29, 7"); a.e("s_add_u32 s37, s37, s53"); a.e(f"s_add_u32 s37, s37, {oSM}")
    a.e(f"v_and_b32 v{vd+1}, 1, v1"); a.e(f"v_lshlrev_b32 v{vd+1}, 13, v{vd+1}"); a.e(f"v_lshrrev_b32 v{vd+2}, 1, v1"); a.e(f"v_lshl_add_u32 v{vd+1}, v{vd+2}, 22, v{vd+1}")
    a.e("s_mov_b64 exec, 0xf"); a.e(f"buffer_store_dword v{vd}, v{vd+1}, s[56:59], s37 offen {SC}")
    a.e("s_cmp_lg_u32 s28, 0"); a.e("s_cbranch_scc1 FB_n2")
    a.e(f"s_add_u32 s37, s53, {F_CS}"); a.e("s_mov_b64 exec, 1"); a.e(f"buffer_store_dword v{vd}, v{vd+1}, s[56:59], s37 offen {SC}")
    a.e("FB_n2:")
    a.e("s_mov_b64 exec, -1")
    for i in range(4): a.e(f"v_mov_b32 v{vd+4+i}, {1 if i == 0 and '2' in DP else 0}")
    a.e("s_lshr_b32 s36, s2, 7"); a.e("s_lshl_b32 s36, s36, 24"); a.e(f"s_add_u32 s36, s36, {HSB}")
    a.e("s_add_u32 s20, s4, s36"); a.e("s_addc_u32 s21, s5, 0"); a.e(f"s_mov_b32 s22, {128*PITCH}"); a.e("s_mov_b32 s23, 0x20000")
    a.e("s_and_b32 s36, s2, 127"); a.e(f"s_mul_i32 s36, s36, {PITCH}"); a.e(f"s_add_u32 s36, s36, {16384 - 32}")
    a.e(f"v_and_b32 v{vd+1}, 1, v1"); a.e(f"v_lshlrev_b32 v{vd+1}, 4, v{vd+1}"); a.e(f"v_bfe_u32 v{vd+2}, v1, 1, 1"); a.e(f"v_lshl_add_u32 v{vd+1}, v{vd+2}, 13, v{vd+1}")
    a.e(f"v_bfe_u32 v{vd+2}, v1, 2, 1"); a.e(f"v_mul_u32_u24 v{vd+2}, {32768 + 32}, v{vd+2}"); a.e(f"v_add_u32 v{vd+1}, v{vd+1}, v{vd+2}")
    a.e("s_mov_b64 exec, 0xff"); a.e(f"buffer_store_dwordx4 {vr(vd+4,4)}, v{vd+1}, s[20:23], s36 offen {SC}"); a.e("s_mov_b64 exec, -1")
    a.e("FB_ni:")
    UG = (LW + 20, 4) if os.environ.get("UG") else (LW + 16, 1)
    lds_spin(a, *UG, pt, nap=2)
    mstamp(a)
    if TLBW:
        a.e("s_cmp_lg_u32 s30, 4"); a.e("s_cbranch_scc1 FB_nt")
        a.e(f"s_load_dwordx2 s[8:9], s[0:1], {D_OUT}")
        a.srd(20, 4, 192 * MB)
        group_off(a, 34, 28)
        a.e("s_sub_u32 s36, s28, 1"); a.e("s_max_i32 s36, s36, 0"); group_off(a, 35, 36)
        a.e("s_add_u32 s36, s28, 1"); a.e("s_min_u32 s36, s36, 15"); group_off(a, 37, 36)
        a.e(f"v_lshlrev_b32 v{vd}, 21, v1"); a.e(f"v_add_u32 v{vd}, {HSB - 8 * 2 * MB}, v{vd}")
        for l, (r, o) in enumerate([(34, 0), (34, oP0 if TLBW == 2 else 4 * MB), (35, 0), (37, 0)]):
            for ly in range(2):
                a.e(f"s_add_u32 s36, s{r}, {o + ly * LSTR}"); a.e(f"v_writelane_b32 v{vd}, s36, {2*l+ly}")
        a.e("s_bfm_b64 exec, 20, 0"); a.e(f"buffer_{'store' if TLBW == 2 else 'load'}_dword v{dm}, v{vd}, s[20:23], 0 offen {SC}")
        a.e("s_waitcnt lgkmcnt(0)"); a.e(f"s_mov_b32 s10, {4*MB}"); a.e("s_mov_b32 s11, 0x20000")
        a.e("s_mov_b64 exec, 1"); a.e(f"buffer_load_dword v{dm+1}, v{RRO}, s[8:11], 0 offen {SC}"); a.e("s_mov_b64 exec, -1")
        a.e("FB_nt:")
    if os.environ.get("W2T", "1") == "2": lds_spin(a, LW + 24, 2, pt, nap=4)
    if os.environ.get("W2T", "1") == "3":
        w_srd(a, 2); a.e("s_lshl_b32 s39, s28, 1"); a.e("s_and_b32 s36, s30, 1"); a.e("s_add_u32 s39, s39, s36"); a.e("s_lshl_b32 s39, s39, 16"); a.e("s_lshl_b32 s36, s29, 7"); a.e("s_add_u32 s39, s39, s36")
        for i in range(4): a.e(f"buffer_load_dwordx4 {vr(dm,4)}, v{WVB[2]}, s[12:15], s39 offen"); a.e("s_add_u32 s39, s39, 16384")
    elif os.environ.get("W2T", "1") != "0" and not TE: touch(a, B_W2, 2 * MB, dm)
    QL = int(os.environ.get("QL", "0"))
    if not QL: load_q(a)
    if W4POS == "F": lds_spin(a, LW + 24, 2, pt, nap=4); a.e("s_waitcnt vmcnt(0)")
    if W4POS in ("F", "F0"): touch(a, B_W4, 7 * MB, dm)
    PZF = int(os.environ.get("PZF", "0"))
    if PZF:
        a.srd(20, 4, 32 * MB, off=216 * MB)
        for i in range(4): a.e(f"v_mov_b32 v{216+i}, -1")
        a.e("s_lshl_b32 s45, s2, 1"); a.e("s_and_b32 s50, s30, 1"); a.e("s_add_u32 s45, s45, s50"); a.e(f"s_mul_i32 s45, s45, {PZF*1024}")
        for i in range(PZF):
            a.e(f"buffer_store_dwordx4 v[216:219], v2, s[20:23], s45 offen {SC}"); a.e("s_add_u32 s45, s45, 1024")
            if os.environ.get("PZP"): a.e(f"s_waitcnt vmcnt({os.environ['PZP']})")
    front_arrive(a, True)
    if TAB: tab_make(a, 0)
    PKW = int(os.environ.get("PKW", "2")); PKP = int(os.environ.get("PKP", "8"))
    W1P = int(os.environ.get("W1P", "8")); FO = os.environ.get("FO", "1pd"); FO2 = os.environ.get("FO2", "1pd")
    R1 = [176, 188, 192] + [200 + 4 * i for i in range(7)] + [16 + 4 * i for i in range(8)]
    def w1_regs(a):
        w_srd(a, 1)
        a.e("s_and_b32 s35, s30, 3"); a.e(f"s_mul_i32 s35, s35, {18*16384}"); a.e("s_lshl_b32 s39, s99, 7"); a.e("s_add_u32 s39, s39, s35")
        for q in range(18):
            a.e(f"buffer_load_dwordx4 {vr(R1[q],4)}, v{WVB[1]}, s[12:15], s39 offen"); a.e("s_add_u32 s39, s39, 16384")
            if q % 4 == 3: sb(a, SB[1])
            if PKP and q % 4 == 3: a.e(f"s_waitcnt vmcnt({PKP})")
        if QL: load_q(a)
    def w1_put(a):
        a.e("s_and_b32 s35, s30, 3"); a.e(f"s_mul_i32 s35, s35, {18*1024}"); a.e("v_add_u32 v8, s35, v2")
        lds_spin(a, LW + 4, 16, pt, nap=2)
        a.e("s_waitcnt vmcnt(0)")
        for q in range(18): a.e(f"ds_write_b128 v8, {vr(R1[q],4)} offset:{CFG[1]['WB'] + 1024*q}")
        a.e("s_waitcnt lgkmcnt(0)")
    def w1_dma(a, js):
        lds_spin(a, LW + 24, 4, pt, nap=3)
        w_setup(a, 1, pre=False); w1_slots(a, js, pace=W1P)
    DS_ = int(os.environ.get("DSPL", "12"))
    if PKW: lds_spin(a, LW + 24, PKW, pt, nap=4)
    for ch in FO:
        if ch == "d": w1_dma(a, range(9, DS_))
        else: call(a, {"1": w1_regs, "p": park}[ch])
    mstamp(a)
    call(a, w1_put)
    a.e("s_branch FR_end")
    a.e("FB_cs:")
    S1, S3 = KVS - CFG[1]["WB"], KVS + 8192 - CFG[3]["WB"]
    pos = cs_prep(a, S1, S3)
    lds_spin(a, *UG, pt, nap=2)
    mstamp(a)
    if not QL: load_q(a)
    cs_load(a, 1, S1)
    if not NOCS3: cs_load(a, 3, S3)
    a.e(f"s_waitcnt vmcnt({0 if NOCS3 else 14})")
    if CSPRIO: a.e(f"s_setprio {CSPRIO}")
    cs_sum(a, 1, pos)
    a.e("s_waitcnt vmcnt(1)")
    a.e(f"v_mov_b32 v{pt}, {LW+24}"); a.e(f"v_mov_b32 v{pt+1}, 1")
    a.e("s_mov_b64 exec, 1"); a.e(f"ds_add_u32 v{pt}, v{pt+1}"); a.e("s_mov_b64 exec, -1")
    mstamp(a)
    if not NOCS3: cs_sum(a, 3, pos)
    front_arrive(a, False)
    if TAB: tab_make(a, 1)
    a.e(f"v_mov_b32 v{pt}, {LW+24}"); a.e(f"v_mov_b32 v{pt+1}, 1")
    a.e("s_mov_b64 exec, 1"); a.e(f"ds_add_u32 v{pt}, v{pt+1}"); a.e("s_mov_b64 exec, -1")
    mstamp(a)
    a.e("s_setprio 0")
    assert CFG[1]["WB"] + 9 * 8192 == KVS
    for ch in FO2:
        if ch == "d": w1_dma(a, range(DS_, 16))
        else: call(a, {"1": w1_regs, "p": park}[ch])
    mstamp(a)
    call(a, w1_put)

def front_conv(a):
    v = VA(6); lane = 1; l16 = 2
    t = v(); pt = v(4, 2)
    chan_setup(a, 30)
    a.e("s_and_b32 s36, s39, 127"); a.e("s_lshl_b32 s36, s36, 12"); a.e("s_lshr_b32 s37, s39, 7"); a.e("s_lshl_b32 s37, s37, 24")
    a.e("s_add_u32 s36, s36, s37"); a.e(f"s_add_u32 s36, s36, {LB0 + oX3}")
    a.e("s_add_u32 s16, s4, s36"); a.e("s_addc_u32 s17, s5, 0"); a.e("s_mov_b32 s18, 4096"); a.e("s_mov_b32 s19, 0x20000")
    uw = v(); u = v(16, 4)
    a.e(f"v_lshrrev_b32 v{t}, 2, v{lane}"); a.e(f"v_mul_u32_u24 v{uw}, {US}, v{t}"); a.e(f"v_and_b32 v{t}, 3, v{lane}")
    a.e(f"v_lshl_add_u32 v{uw}, v{t}, 4, v{uw}"); a.e(f"v_add_u32 v{uw}, s40, v{uw}")
    aa = v(); ba = v(); ua = v(); J = v(); G = v()
    a.e(f"v_and_b32 v{J}, 15, v{lane}"); a.e(f"v_lshrrev_b32 v{G}, 4, v{lane}")
    a.e(f"v_and_b32 v{t}, 3, v{J}"); a.e(f"v_mul_u32_u24 v{aa}, {HSTR}, v{t}")
    a.e(f"v_lshl_add_u32 v{aa}, v{G}, 4, v{aa}"); a.e(f"v_lshrrev_b32 v{t}, 2, v{J}"); a.e(f"v_lshl_add_u32 v{aa}, v{t}, 3, v{aa}")
    a.e(f"v_add_u32 v{aa}, s40, v{aa}")
    a.e(f"v_sub_u32 v{t}, 15, v{J}"); a.e(f"v_mul_u32_u24 v{ua}, {US}, v{t}"); a.e(f"v_add_u32 v{ua}, s40, v{ua}")
    a.e(f"v_lshl_add_u32 v{ba}, v{G}, 4, v{ua}")
    acc = v(32, 4)
    fa = v(64, 4); fb = v(32, 4)
    def rdA(p, o):
        return [f"ds_read_b64 {vr(fa+32*p+8*s_+4*mt+2*h,2)}, v{aa} offset:{64*(o+16*s_) + 32*mt + 8*h}" for s_ in range(4) for mt in range(2) for h in range(2)]
    def rdB(p, o):
        return [f"ds_read_b128 {vr(fb+16*p+4*k,4)}, v{ba} offset:{UOFF + (48 - 16*k + o)*US}" for k in range(4)]
    for x in rdA(0, 0): a.e(x)
    dm_ = fb + 16; Dv = pt + 2
    a.e("s_bitcmp1_b32 s39, 0"); a.e("s_cselect_b32 s36, 0, 16"); a.e("s_lshl_b32 s41, s98, s36"); a.e("s_and_b32 s41, s41, 0xffff0000"); a.e("s_lshr_b32 s36, s41, 16")
    a.e(f"v_lshl_add_u32 v{t}, v{G}, 3, v{J}"); a.e(f"v_sub_u32 v{t}, 31, v{t}")
    a.e(f"v_mov_b32 v{Dv}, s36"); a.e(f"v_mov_b32 v{Dv+1}, s41"); a.e(f"v_and_b32 v{pt}, 1, v{t}"); a.e(f"v_cmp_eq_u32 vcc, 1, v{pt}")
    a.e(f"v_cndmask_b32 v{Dv}, v{Dv}, v{Dv+1}, vcc"); a.e(f"v_ashrrev_i32 v{t}, 1, v{t}")
    for mt in range(2):
        for d_ in range(4): a.e(f"v_cmp_eq_u32 vcc, {8*mt+d_}, v{t}"); a.e(f"v_cndmask_b32 v{dm_+4*mt+d_}, 0, v{Dv}, vcc")
    a.srd(12, 4, 4 * MB, off=Y)
    ta = v(); go = v()
    a.e(f"v_bfe_u32 v{t}, v{lane}, 2, 2"); a.e(f"v_mul_u32_u24 v{ta}, {CHB+64}, v{t}")
    a.e(f"v_lshrrev_b32 v{t}, 1, v{G}"); a.e(f"v_mul_u32_u24 v{t}, 72, v{t}"); a.e(f"v_add_u32 v{ta}, v{ta}, v{t}")
    a.e(f"v_and_b32 v{t}, 1, v{G}"); a.e(f"v_lshl_add_u32 v{ta}, v{t}, 5, v{ta}")
    a.e(f"v_and_b32 v{t}, 3, v{lane}"); a.e(f"v_lshl_add_u32 v{ta}, v{t}, 3, v{ta}")
    a.e(f"s_mul_i32 s36, s30, {16*72}"); a.e(f"v_add_u32 v{ta}, s36, v{ta}")
    a.e(f"v_lshlrev_b32 v{go}, 3, v{lane}")
    a.e("s_lshl_b32 s44, s38, 14"); a.e("s_lshl_b32 s37, s30, 12"); a.e("s_add_u32 s44, s44, s37")
    ya = v()
    a.e(f"s_mul_i32 s36, s30, {CHB+64}")
    a.e(f"v_mul_u32_u24 v{ya}, 72, v{J}"); a.e(f"v_lshl_add_u32 v{ya}, v{G}, 3, v{ya}"); a.e(f"v_add_u32 v{ya}, s36, v{ya}")
    a.e("s_cmp_lg_u32 s30, 0"); a.e("s_cbranch_scc1 CV_w")
    a.e("s_and_b32 s36, s2, 7"); a.e("s_lshl_b32 s36, s36, 12"); a.e(f"s_add_u32 s36, s36, {F_KVT}")
    a.e(f"v_lshlrev_b32 v{pt+1}, 7, v{lane}"); a.e(f"v_add_u32 v{pt+1}, s36, v{pt+1}")
    poll_core(a, pt, [pt + 1], 0xffffffff)
    lds_set(a, LW + 16, 1, pt)
    a.e("CV_w:")
    lds_spin(a, LW + 16, 1, pt)
    mstamp(a)
    for it in range(4): a.e(f"buffer_load_dwordx4 {vr(u+4*it,4)}, v{l16}, s[16:19], 0 offen offset:{1024*it} {SC}")
    QL = int(os.environ.get("QL", "0"))
    if not QL: load_q(a)
    for it in range(4):
        a.e(f"s_waitcnt vmcnt({(3 if QL else 7)-it})")
        a.e(f"ds_write_b128 v{uw}, {vr(u+4*it,4)} offset:{UOFF + 16*US*it}")
    a.e(f"v_mov_b32 v{pt}, {LW+20}"); a.e(f"v_mov_b32 v{pt+1}, 1")
    a.e("s_mov_b64 exec, 1"); a.e(f"ds_add_u32 v{pt}, v{pt+1}"); a.e("s_mov_b64 exec, -1")
    a.e("s_waitcnt lgkmcnt(0)")
    mstamp(a)
    for x in rdB(0, 0): a.e(x)
    for c_ in range(4):
        a.e(f"s_waitcnt lgkmcnt({3-c_})")
        for mt in range(2): a.e(f"v_mfma_f32_16x16x32_bf16 {vr(acc+8*c_+4*mt,4)}, {vr(dm_+4*mt,4)}, {vr(fb+4*c_,4)}, 0")
    def step(p, nxt, tail, piped=False):
        a.e(f"s_waitcnt lgkmcnt({10 if piped else 0})")
        mf = [(c_, s_, mt) for s_ in range(4) for mt in range(2) for c_ in range(s_, 4)]
        for i, (c_, s_, mt) in enumerate(mf):
            A = acc + 8 * c_ + 4 * mt
            a.e(f"v_mfma_f32_16x16x32_bf16 {vr(A,4)}, {vr(fa+32*p+8*s_+4*mt,4)}, {vr(fb+16*p+4*(c_-s_),4)}, {vr(A,4)}")
            if nxt: a.e(nxt.pop(0))
            if piped and i == 9: a.e("s_waitcnt lgkmcnt(10)")
            for x in tail.pop(i, []) if tail else []: a.e(x)
        assert not nxt and not tail
    a.e("s_mov_b32 s43, 0")
    NU = int(os.environ.get("NU", "4")); HP = int(os.environ.get("HP", "0"))
    if NU:
        a.e("CV_r:")
        for p in range(2):
            rd = rdB(1 - p, p + 1) + rdA(1 - p, p + 1)
            step(p, rd[:HP], [])
            for x in rd[HP:]: a.e(x)
        for x in [f"v_add_u32 v{aa}, 128, v{aa}", f"v_add_u32 v{ba}, {2*US}, v{ba}", "s_add_u32 s43, s43, 1", f"s_cmp_lt_u32 s43, {NU}"]: a.e(x)
        a.e("s_cbranch_scc1 CV_r")
    if QL: load_q(a)
    a.e("CV_l:")
    step(0, rdB(1, 1) + rdA(1, 1), [], True)
    step(1, rdB(0, 2) + rdA(0, 2), {19: [f"v_add_u32 v{aa}, 128, v{aa}"], 5: [f"v_add_u32 v{ba}, {2*US}, v{ba}"], 6: ["s_add_u32 s43, s43, 1"], 7: ["s_cmp_lt_u32 s43, 8"]}, True)
    a.e("s_cbranch_scc1 CV_l")
    mstamp(a)
    a.e("s_waitcnt lgkmcnt(0)")
    for c_ in range(4):
        for mt in range(2):
            A = acc + 8 * c_ + 4 * mt; O = u + 2 * (c_ * 2 + mt)
            a.e(f"v_cvt_pk_bf16_f32 v{O}, v{A}, v{A+1}"); a.e(f"v_cvt_pk_bf16_f32 v{O+1}, v{A+2}, v{A+3}")
            a.e(f"ds_write_b64 v{ya}, {vr(O,2)} offset:{c_*16*72 + mt*32}")
    lbar(a, 1, pt)
    for i in range(8): a.e(f"ds_read_b64_tr_b16 {vr(fa+32+2*i,2)}, v{ta} offset:{144*i}")
    for i in range(8):
        a.e(f"s_waitcnt lgkmcnt({7-i})")
        a.e(f"buffer_store_dwordx2 {vr(fa+32+2*i,2)}, v{go}, s[12:15], s44 offen offset:{512*i} {SC}")
    assert v.hi <= 176

PK = 48; W3S = 208
RFO, RYO, RRO, RI, RXA, RXB, RYY, RT = 196, 197, 198, 199, 180, 188, 230, 236
def r_addr(a):
    t, t2, I, fo, ro, yo = RT, RT + 1, RI, RFO, RRO, RYO
    a.e(f"v_and_b32 v{I}, 7, v0")
    a.e(f"v_lshrrev_b32 v{t}, 6, v0"); a.e(f"v_lshlrev_b32 v{t}, 4, v{t}"); a.e(f"v_bfe_u32 v{t2}, v0, 3, 3"); a.e(f"v_add_u32 v{t}, v{t}, v{t2}")
    a.e("s_lshr_b32 s78, s29, 1"); a.e("s_lshl_b32 s78, s78, 16"); a.e("s_and_b32 s79, s29, 1"); a.e("s_lshl_b32 s79, s79, 7"); a.e("s_add_u32 s78, s78, s79")
    a.e("s_lshr_b32 s79, s30, 1"); a.e("s_lshl_b32 s79, s79, 13"); a.e("s_add_u32 s78, s78, s79")
    a.e(f"v_lshlrev_b32 v{fo}, 8, v{t}"); a.e(f"v_lshl_add_u32 v{fo}, v{I}, 4, v{fo}"); a.e(f"v_add_u32 v{fo}, s78, v{fo}")
    a.e("s_lshl_b32 s78, s28, 7"); a.e("s_lshl_b32 s79, s29, 3"); a.e("s_add_u32 s78, s78, s79")
    a.e(f"v_add_u32 v{yo}, s78, v{I}"); a.e(f"v_lshlrev_b32 v{ro}, 11, v{yo}")
    a.e(f"v_lshrrev_b32 v{t2}, 2, v{t}"); a.e(f"v_lshlrev_b32 v{t2}, 3, v{t2}"); a.e(f"v_and_b32 v{t}, 3, v{t}"); a.e(f"v_add_u32 v{t}, v{t}, v{t2}")
    a.e(f"v_lshl_add_u32 v{ro}, v{t}, 3, v{ro}")
    a.e(f"v_lshlrev_b32 v{yo}, 3, v{yo}"); a.e(f"v_lshl_add_u32 v{yo}, v{t}, 14, v{yo}")
def load_y(a, skip_last=False):
    a.srd(80, 4, 4 * MB, off=Y)
    if skip_last: a.e("s_cmp_eq_u32 s60, 0"); a.e("s_cselect_b32 s82, s82, 0")
    for j in range(2):
        for hh in range(2):
            a.e(f"s_mov_b32 s78, {(16*j + 4*hh)*16384}")
            a.e(f"buffer_load_dwordx2 {vr(RYY+4*j+2*hh,2)}, v{RYO}, s[80:83], s78 offen {SC}")
def r_pre(a, l0=False):
    r_addr(a)
    lsrd(a, 84, oX3, XSZ); lsrd(a, 88, oX1P, XSZ)
    if l0: a.e("s_cmp_eq_u32 s60, 0"); a.e("s_cselect_b32 s86, s86, 0"); a.e("s_cselect_b32 s90, s90, 0")
    for j in range(2):
        a.e(f"buffer_load_dwordx4 {vr(RXA+4*j,4)}, v{RFO}, s[84:87], 0 offen offset:{2048*j} {SC}")
        a.e(f"buffer_load_dwordx4 {vr(RXB+4*j,4)}, v{RFO}, s[88:91], 0 offen offset:{2048*j} {SC}")
    load_y(a, l0)
def r_pre0(a): a.e("s_waitcnt lgkmcnt(0)"); r_pre(a, True)

def r_stage(a, final):
    v = VA(6)
    t = v(); t2 = v(); I = RI; fo = RFO; ro = RRO; pt = v(4, 2)
    xa = RXA; xb = RXB; yy = RYY; x = 206; yf = 222; w = v(16, 4); tmp = v()
    pre = final == "pre"
    S = v(2, 2); pp = v(2, 2); qq = v(2, 2); st = w; mean = v(2, 2); rs = mean + 1; var = v(); sw = v(); sr = v()
    def part(src, n):
        a.e(f"v_pk_add_f32 {vr(pp,2)}, {vr(src,2)}, {vr(src+2,2)}"); a.e(f"v_pk_mul_f32 {vr(qq,2)}, {vr(src,2)}, {vr(src,2)}")
        for i in range(1, 8):
            if i > 1: a.e(f"v_pk_add_f32 {vr(pp,2)}, {vr(pp,2)}, {vr(src+2*i,2)}")
            a.e(f"v_pk_fma_f32 {vr(qq,2)}, {vr(src+2*i,2)}, {vr(src+2*i,2)}, {vr(qq,2)}")
        a.e(f"v_add_f32 v{S}, v{pp}, v{pp+1}"); a.e(f"v_add_f32 v{S+1}, v{qq}, v{qq+1}")
        for k in range(2): a.e(f"v_add_f32_dpp v{S+k}, v{S+k}, v{S+k} row_ror:8 row_mask:0xf bank_mask:0xf")
        for op in ("v_permlane16_swap_b32", "v_permlane32_swap_b32"):
            for k in range(2): a.e(f"v_mov_b32 v{pp+k}, v{S+k}")
            for k in range(2): a.e(f"{op} v{S+k}, v{pp+k}")
            a.e(f"v_pk_add_f32 {vr(S,2)}, {vr(S,2)}, {vr(pp,2)}")
        a.e(f"ds_write_b64 v{sw}, {vr(S,2)} offset:{n*512}")
    def comb(n):
        for k in range(4): a.e(f"ds_read_b128 {vr(st+4*k,4)}, v{sr} offset:{n*512+16*k}")
        a.e("s_waitcnt lgkmcnt(0)")
        for k in range(4): a.e(f"v_pk_add_f32 {vr(st+4*k,2)}, {vr(st+4*k,2)}, {vr(st+4*k+2,2)}")
        a.e(f"v_pk_add_f32 {vr(st,2)}, {vr(st,2)}, {vr(st+4,2)}"); a.e(f"v_pk_add_f32 {vr(st+8,2)}, {vr(st+8,2)}, {vr(st+12,2)}")
        a.e(f"v_pk_add_f32 {vr(st,2)}, {vr(st,2)}, {vr(st+8,2)}")
        a.e(f"v_mul_f32 v{mean}, {f32(1/1024)}, v{st}"); a.e(f"v_mul_f32 v{var}, {f32(1/1024)}, v{st+1}")
        a.e(f"v_fma_f32 v{var}, -v{mean}, v{mean}, v{var}"); a.e(f"v_max_f32 v{var}, 0, v{var}")
    SUBM = f"{vr(mean,2)} op_sel_hi:[1,0] neg_lo:[0,1] neg_hi:[0,1]"; MULR = f"{vr(mean,2)} op_sel:[0,1] op_sel_hi:[1,1]"
    if pre: a.e("s_waitcnt lgkmcnt(0)")
    if final is not True:
        a.e(f"v_lshlrev_b32 v{sr}, 6, v{I}"); a.e(f"v_add_u32 v{sr}, {AUX+2048}, v{sr}")
        a.e(f"s_lshl_b32 s35, s30, 3"); a.e(f"v_add_u32 v{sw}, s35, v{sr}")
    if pre:
        a.e("s_waitcnt vmcnt(0)")
        for i in range(8): unpack(a, x + 2 * i, x + 2 * i + 1, xa + i)
        part(x, 0)
        a.e("s_waitcnt lgkmcnt(0)"); a.e("s_barrier")
        return
    if not final:
        a.e(f"s_cmp_eq_u32 s60, 0"); a.e(f"s_cbranch_scc1 R_l0")
    else:
        a.e(f"s_load_dwordx2 s[6:7], s[0:1], {D_OUT}")
    lsrd(a, 8, oP0, XSZ, prev=True); lsrd(a, 12, oP1, XSZ, prev=True)
    if "r" not in DP: a.e("s_waitcnt vmcnt(0)")
    for i in range(8):
        if not final: unpack(a, yf + 2 * i, yf + 2 * i + 1, yy + i)
        unpack(a, x + 2 * i, x + 2 * i + 1, xa + i); unpack(a, w + 2 * i, w + 2 * i + 1, xb + i)
        a.e(f"v_pk_add_f32 {vr(x+2*i,2)}, {vr(x+2*i,2)}, {vr(w+2*i,2)}")
    lds_ = [f"buffer_load_dwordx4 {vr(r+4*j,4)}, v{fo}, s[{q}:{q+3}], 0 offen offset:{2048*j} {SC}" for j in range(2) for r, q in ((xa, 8), (xb, 12))]
    if "r" in DP: data_poll(a, lds_, (xa, xa + 4, xb, xb + 4), t, int(os.environ.get("RNAP", "4")), int(os.environ.get("RFIRST", "24")), int(os.environ.get("RCAN", "0"))); mstamp(a)
    else:
        poll(a, ST_G4, pt, prev=True)
        mstamp(a)
        for x_ in lds_: a.e(x_)
    for i in range(8):
        if i % 4 == 0 and "r" not in DP: a.e(f"s_waitcnt vmcnt({2 - i // 2})")
        u = w + 4 * (i & 3)
        unpack(a, u, u + 1, xa + i); unpack(a, u + 2, u + 3, xb + i)
        a.e(f"v_pk_add_f32 {vr(u,2)}, {vr(u,2)}, {vr(u+2,2)}")
        a.e(f"v_pk_add_f32 {vr(x+2*i,2)}, {vr(x+2*i,2)}, {vr(u,2)}")
        if final: a.e(f"v_cvt_pk_bf16_f32 v{xa+i}, v{x+2*i}, v{x+2*i+1}")
        else: round2(a, x + 2 * i, x + 2 * i + 1, tmp)
    if final:
        a.e("s_waitcnt lgkmcnt(0)")
        a.srd(20, 6, 4 * MB)
        OS = os.environ.get("OS", "sc1")
        if os.environ.get("OWIDE", "1") == "1":
            a.e(f"v_bfe_u32 v{t}, v1, 3, 1"); a.e(f"v_cmp_eq_u32 vcc, 1, v{t}")
            for j in range(2):
                lo, hi = xa + 4 * j, xa + 4 * j + 2
                for e in range(2):
                    a.e(f"v_cndmask_b32 v{x+e}, v{hi+e}, v{lo+e}, vcc")
                for e in range(2):
                    a.e(f"v_mov_b32_dpp v{x+2+e}, v{x+e} row_ror:8 row_mask:0xf bank_mask:0xf")
                for e in range(2):
                    a.e(f"v_cndmask_b32 v{x+4+e}, v{lo+e}, v{x+2+e}, vcc"); a.e(f"v_cndmask_b32 v{hi+e}, v{x+2+e}, v{hi+e}, vcc")
                for e in range(2): a.e(f"v_mov_b32 v{lo+e}, v{x+4+e}")
            a.e(f"v_bfe_u32 v{t2}, v1, 4, 1"); a.e(f"v_lshlrev_b32 v{t}, 5, v{t}"); a.e(f"v_lshl_add_u32 v{t}, v{t2}, 4, v{t}")
            a.e(f"v_and_b32 v{t2}, 0xffffffc0, v{ro}"); a.e(f"v_add_u32 v{t}, v{t}, v{t2}")
            for j in range(2): a.e(f"buffer_store_dwordx4 {vr(xa+4*j,4)}, v{t}, s[20:23], 0 offen offset:{128*j} {OS}")
        else:
            for j in range(4): a.e(f"buffer_store_dwordx2 {vr(xa+2*j,2)}, v{ro}, s[20:23], 0 offen offset:{128*(j>>1) + 32*(j&1)} {OS}")
        return v.hi
    part(x, 0)
    a.e("s_waitcnt lgkmcnt(0)"); a.e("s_barrier")
    comb(0)
    ln_finish(a, mean, var, rs)
    lsrd(a, 20, oX3, XSZ)
    for i in range(8):
        D = w + 2 * i
        a.e(f"v_pk_add_f32 {vr(D,2)}, {vr(x+2*i,2)}, {SUBM}"); a.e(f"v_pk_mul_f32 {vr(D,2)}, {vr(D,2)}, {MULR}")
        a.e(f"v_pk_fma_f32 {vr(x+2*i,2)}, {vr(D,2)}, {vr(yf+2*i,2)}, {vr(x+2*i,2)}")
        a.e(f"v_cvt_pk_bf16_f32 v{xa+i}, v{x+2*i}, v{x+2*i+1}")
        if i % 4 == 1 and DP: mark(a, xa + i - 1, 0)
        if i % 4 == 3: a.e(f"buffer_store_dwordx4 {vr(xa+i-3,4)}, v{fo}, s[20:23], 0 offen offset:{2048*(i//4)} {SC}")
    a.e("s_branch R_s2")
    a.e("R_l0:")
    for i in range(8): unpack(a, x + 2 * i, x + 2 * i + 1, xa + i)
    part(x, 0)
    a.e("s_waitcnt lgkmcnt(0)")
    st_ = st; st = yf
    a.e(f"s_cmp_lg_u32 s30, {os.environ.get('FPW', '4')}"); a.e("s_cbranch_scc1 R_fw")
    lds_spin(a, LW + 4, 16, st, nap=int(os.environ.get("NAP4", "4")))
    a.e("s_lshl_b32 s36, s28, 10"); a.e(f"s_add_u32 s36, s36, {F_FRONT}")
    a.e(f"v_lshlrev_b32 v{st+4}, 7, v1"); a.e(f"v_add_u32 v{st+4}, s36, v{st+4}")
    a.e("s_mov_b32 s53, 0"); a.e("s_mov_b64 exec, 0xff")
    a.e("R_fp:")
    a.e(f"buffer_load_dword v{st}, v{st+4}, s[56:59], 0 offen {SC}"); a.e("s_waitcnt vmcnt(0)")
    a.e(f"v_subrev_u32 v{st}, s52, v{st}"); a.e(f"v_and_b32 v{st+1}, 0xffffc0ff, v{st}"); a.e(f"v_cmp_eq_u32 vcc, 32, v{st+1}")
    a.e("s_cmp_eq_u64 vcc, exec"); a.e("s_cbranch_scc1 R_fq")
    a.e(f"s_sleep {FSLEEP}")
    a.e("s_add_u32 s53, s53, 1"); a.e("s_cmp_lt_u32 s53, s61"); a.e("s_cbranch_scc1 R_fp")
    a.e("s_mov_b32 s61, 0")
    a.e("R_fq:")
    a.e(f"v_lshrrev_b32 v{st}, 8, v{st}"); a.e(f"v_mov_b32 v{st+1}, {LW+28}"); a.e(f"ds_add_u32 v{st+1}, v{st}")
    a.e("s_mov_b64 exec, -1"); a.e("s_waitcnt lgkmcnt(0)")
    a.e("R_fw:")
    a.e("s_barrier")
    mstamp(a)
    load_y(a)
    a.e(f"v_mov_b32 v{st}, {LW+28}"); a.e(f"ds_read_b32 v{st+1}, v{st}"); a.e("s_waitcnt lgkmcnt(0)"); a.e(f"v_readfirstlane_b32 s94, v{st+1}")
    if STAMP: a.e("s_mov_b32 s95, s94")
    a.e(f"s_cmp_gt_u32 s94, {NVOTE // 2}"); a.e("s_cselect_b32 s94, 1, 0")
    group_off(a, 55, 28)
    a.e("s_add_u32 s62, s4, s55"); a.e("s_addc_u32 s63, s5, 0")
    a.e("s_sub_u32 s36, s28, 1"); a.e("s_max_i32 s36, s36, 0"); group_off(a, 92, 36); a.e("s_sub_u32 s92, s92, s55")
    a.e("s_add_u32 s36, s28, 1"); a.e("s_min_u32 s36, s36, 15"); group_off(a, 93, 36); a.e("s_sub_u32 s93, s93, s55")
    a.e(f"s_add_u32 s55, s55, {oSM}")
    lsrd(a, 20, oX3, XSZ)
    st = st_; comb(0); ln_finish(a, mean, var, rs); st = yf
    for i in range(8):
        D = w + 2 * i
        a.e(f"v_pk_add_f32 {vr(D,2)}, {vr(x+2*i,2)}, {SUBM}"); a.e(f"v_pk_mul_f32 {vr(D,2)}, {vr(D,2)}, {MULR}")
    a.e("s_waitcnt vmcnt(0)")
    for i in range(8):
        D = w + 2 * i
        unpack(a, st, st + 1, yy + i)
        a.e(f"v_pk_fma_f32 {vr(x+2*i,2)}, {vr(D,2)}, {vr(st,2)}, {vr(x+2*i,2)}"); a.e(f"v_cvt_pk_bf16_f32 v{xa+i}, v{x+2*i}, v{x+2*i+1}")
        if i % 4 == 1 and DP: mark(a, xa + i - 1, 0)
        if i % 4 == 3: a.e(f"buffer_store_dwordx4 {vr(xa+i-3,4)}, v{fo}, s[20:23], 0 offen offset:{2048*(i//4)} {SC}")
    a.e("R_s2:")
    st = st_
    for i in range(8): unpack(a, x + 2 * i, x + 2 * i + 1, xa + i)
    part(x, 1)
    if "1" in DP:
        a.e("s_waitcnt lgkmcnt(0)"); a.e("s_barrier")
        a.e("s_cmp_lg_u32 s30, 6"); a.e("s_cbranch_scc1 R_n6"); a.e("s_cmp_lg_u32 s60, 0"); a.e("s_cbranch_scc1 R_n6")
        a.e("s_lshl_b32 s53, s29, 7"); a.e(f"s_add_u32 s53, s53, {F_CS}"); a.e(f"v_mov_b32 v{pt}, 1"); a.e(f"v_mov_b32 v{pt+1}, 0")
        a.e("s_mov_b64 exec, 1"); a.e(f"buffer_atomic_add v{pt}, v{pt+1}, s[56:59], s53 offen {SC}"); a.e("s_mov_b64 exec, -1")
        a.e("R_n6:")
    else:
        publish(a, ST_R, 8, pt)
        a.e("s_barrier")
    a.e(f"s_cmp_lg_u32 s30, {7 if '1' in DP else 0}"); a.e("s_cbranch_scc1 R_nl")
    comb(1)
    outv = yf + 2; s3 = v(); m4 = v(); v4_ = v(); r4 = v()
    assert v.hi <= PK
    a.e(f"v_mov_b32 v{m4}, v{mean}"); a.e(f"v_mov_b32 v{v4_}, v{var}")
    ln_finish(a, mean, var, rs, s3)
    a.e(f"v_sub_f32 v{m4}, v{m4}, v{mean}"); a.e(f"v_mul_f32 v{m4}, v{m4}, v{rs}")
    a.e(f"v_mul_f32 v{v4_}, v{v4_}, v{rs}"); a.e(f"v_mul_f32 v{v4_}, v{v4_}, v{rs}")
    ln_finish(a, m4, v4_, r4)
    a.e(f"v_mov_b32 v{outv}, v{mean}"); a.e(f"v_mov_b32 v{outv+1}, v{rs}")
    a.e(f"v_fma_f32 v{outv+2}, v{m4}, v{s3}, v{mean}"); a.e(f"v_mul_f32 v{outv+3}, v{rs}, v{r4}")
    lsrd(a, 24, oLNS, 2048)
    a.e("s_lshl_b32 s36, s29, 3"); a.e(f"v_add_u32 v{t}, s36, v{I}"); a.e(f"v_lshlrev_b32 v{t}, 4, v{t}")
    a.e("s_mov_b64 exec, 0xff")
    a.e(f"buffer_store_dwordx4 {vr(outv,4)}, v{t}, s[24:27], 0 offen {SC}")
    a.e("s_mov_b64 exec, -1")
    publish(a, ST_R2, 1, pt)
    a.e("R_nl:")
    return v.hi

TAB = int(os.environ.get("TAB", "1")); TV = 248
def lead(seq, r, L, P=4):
    if L == 0: return list(seq)
    return [x for _, x in sorted(((i - L - 0.5 if i % P == r else i), x) for i, x in enumerate(seq))]
def order3(j, gi):
    mode, L = eval(os.environ.get("O3", "('r',0)"))
    if mode == "r": return [(gi + t) & 15 for t in range(16)]
    if mode == "n": return [gi] + [x for x in lead(range(16), (j + gi) & 3, L) if x != gi]
    if mode == "s": return [gi] + lead([x for x in range(16) if x != gi], (j + gi) & 3, L)
    if mode == "h": return [gi] + [x for x in lead([(t + (gi & 8)) & 15 for t in range(16)], (j + gi) & 3, L) if x != gi]
def order4(j, n):
    mode, L = eval(os.environ.get("O4", "('n',1)"))
    own = [(7 * n + i, 7 * n + 4 + i) for i in range(3)]
    ps = [(n + t) & 7 for t in range(8)] if mode == "r" else list(range(8))
    ab = [(7 * p + i, 7 * p + 4 + i) for i in range(2) for p in ps if p != n]
    c = [7 * p + o for p in ps for o in (2, 6, 3) if p != n or o == 3]
    rest = ab + [(c[2 * i], c[2 * i + 1]) for i in range(11)]
    if mode != "r": rest = lead(rest, (j + n + int(os.environ.get("O4R", "0"))) & 3, L)
    return own + rest
L4 = eval(os.environ.get("O4", "('n',1)"))[1] if TAB else 0
def tab_data(a):
    a.lines.append(".p2align 6"); a.lines.append("K_tab:")
    for gi in range(16):
        for j in range(4):
            o3 = order3(j, gi) + [0] * 16; o4 = order4(j, gi & 7) + [(0, 0)] * 4
            assert sorted(o3[:16]) == list(range(16)) and sorted(sum(o4[:28], ())) == list(range(56))
            a.lines.append(".short " + ",".join(str(o3[t] | o4[t][0] << 4 | o4[t][1] << 10) for t in range(32)))
def tab_load(a):
    a.e("s_getpc_b64 s[34:35]"); a.e("K_tpc:")
    a.e("s_lshl_b32 s36, s29, 2"); a.e("s_and_b32 s37, s28, 3"); a.e("s_add_u32 s36, s36, s37"); a.e("s_lshl_b32 s36, s36, 6")
    a.e("s_add_u32 s36, s36, K_tab-K_tpc"); a.e("s_add_u32 s34, s34, s36"); a.e("s_addc_u32 s35, s35, 0")
    a.e(f"v_and_b32 v{TV}, 31, v1"); a.e(f"v_lshlrev_b32 v{TV}, 1, v{TV}"); a.e(f"global_load_ushort v{TV+3}, v{TV}, s[34:35]")
def tab_make(a, w):
    T, x = TV + 3, TV + 4
    if not w:
        a.e(f"v_bfe_u32 v{x}, v{T}, 2, 2"); a.e(f"v_lshlrev_b32 v{TV}, 14, v{x}"); a.e(f"v_and_b32 v{x}, 3, v{T}"); a.e(f"v_lshl_add_u32 v{TV}, v{x}, 11, v{TV}")
        for lw in range(2):
            a.e(f"v_bfe_u32 v{x}, v{T}, {7+6*lw}, 3"); a.e(f"v_lshlrev_b32 v{TV+1+lw}, 14, v{x}"); a.e(f"v_bfe_u32 v{x}, v{T}, {4+6*lw}, 3"); a.e(f"v_lshl_add_u32 v{TV+1+lw}, v{x}, 10, v{TV+1+lw}")
    else:
        a.e(f"v_and_b32 v{x}, 15, v{T}"); a.e(f"v_mul_u32_u24 v{TV}, {64*7168}, v{x}")
        a.e("s_and_b32 s36, s30, 1"); a.e("s_mul_i32 s36, s36, 6"); a.e("s_add_u32 s36, s36, 4"); a.e(f"v_bfe_u32 v{x}, v{T}, s36, 6")
        assert all((q * 37) >> 8 == q // 7 for q in range(56))
        a.e(f"v_mul_u32_u24 v{TV+2}, 37, v{x}"); a.e(f"v_lshrrev_b32 v{TV+2}, 8, v{TV+2}"); a.e(f"v_mul_u32_u24 v{TV+2}, 7, v{TV+2}"); a.e(f"v_sub_u32 v{TV+2}, v{x}, v{TV+2}")
        a.e(f"v_cmp_eq_u32 vcc, 3, v{TV+2}"); a.e(f"v_cndmask_b32 v{TV+2}, 0, 1, vcc"); a.e(f"v_lshl_add_u32 v{TV+1}, v{x}, 16, v{TV+2}")
def rot_init(a, which):
    if which == 3 and TAB: a.e("s_mov_b32 s44, 0")
    elif which == 3 and OWN3: a.e("s_mov_b32 s44, s29")
    elif which != 4: a.e("s_mov_b32 s44, s67")
    else: a.e("s_mov_b32 s44, 0")
def rot_next(a, which):
    a.e("s_add_u32 s44, s44, 1")
    if which != 4: a.e("s_and_b32 s44, s44, 15")
def kb4(a, d, lw):
    a.e("s_lshl_b32 s45, s44, 1"); a.e(f"s_add_u32 s45, s45, {lw}"); a.e("s_sub_u32 s45, s45, 32")
    a.e("s_mul_i32 s46, s45, 86"); a.e("s_lshr_b32 s46, s46, 8")
    a.e("s_mul_i32 s47, s46, 3"); a.e("s_sub_u32 s47, s45, s47"); a.e("s_lshl_b32 s47, s47, 2"); a.e("s_lshr_b32 s47, 0x362, s47"); a.e("s_and_b32 s47, s47, 7")
    a.e("s_cmp_ge_u32 s44, 10"); a.e("s_cselect_b32 s45, 9, 2"); a.e("s_cselect_b32 s51, 1, 0"); a.e("s_sub_u32 s45, s44, s45")
    a.e("s_cmp_lt_u32 s44, 3"); a.e("s_cselect_b32 s45, 0, s45"); a.e("s_cselect_b32 s51, s44, s51")
    a.e(f"s_lshl2_add_u32 s51, {lw}, s51")
    a.e("s_cmp_lt_u32 s44, 17"); a.e("s_cselect_b32 s47, s51, s47"); a.e("s_cselect_b32 s46, s45, s46")
    a.e("s_add_u32 s46, s46, s33"); a.e("s_and_b32 s46, s46, 7"); a.e("s_mul_i32 s46, s46, 7"); a.e(f"s_add_u32 s{d}, s46, s47")
assert all((q * 86) >> 8 == q // 3 for q in range(24))
WVB = {1: 238, 2: 238, 4: 239, 3: 241}
WV = 245
def w_lanes(a):
    t, t2 = WV + 8, WV + 9
    R = WVB[1]
    a.e(f"v_lshrrev_b32 v{t}, 3, v1"); a.e(f"v_lshlrev_b32 v{R}, 11, v{t}")
    a.e(f"v_and_b32 v{t}, 6, v{t}"); a.e(f"v_and_b32 v{t2}, 7, v1"); a.e(f"v_xor_b32 v{t}, v{t}, v{t2}"); a.e(f"v_lshl_add_u32 v{R}, v{t}, 4, v{R}")
    R = WVB[4]
    for p in range(2):
        a.e(f"v_lshrrev_b32 v{t}, 4, v1"); a.e(f"v_lshlrev_b32 v{R+p}, 11, v{t}")
        a.e(f"v_add_u32 v{t}, {4*p}, v{t}"); a.e(f"v_lshlrev_b32 v{t}, 1, v{t}"); a.e(f"v_and_b32 v{t2}, 15, v1"); a.e(f"v_xor_b32 v{t}, v{t}, v{t2}")
        a.e(f"v_lshl_add_u32 v{R+p}, v{t}, 4, v{R+p}")
    R = WVB[3]
    assert all((p * 2341) >> 16 == p // 28 for p in range(448))
    for ii in range(7):
        a.e(f"v_add_u32 v{t2}, {64*ii}, v1"); a.e(f"v_mul_u32_u24 v{t}, 2341, v{t2}"); a.e(f"v_lshrrev_b32 v{t}, 16, v{t}")
        a.e(f"v_mul_u32_u24 v{R+ii}, 28, v{t}"); a.e(f"v_sub_u32 v{t2}, v{t2}, v{R+ii}")
        a.e(f"v_mul_u32_u24 v{R+ii}, 7168, v{t}")
        a.e(f"v_lshrrev_b32 v{t}, 1, v{t}"); a.e(f"v_and_b32 v{t}, 2, v{t}"); a.e(f"v_xor_b32 v{t2}, v{t2}, v{t}")
        a.e(f"v_lshl_add_u32 v{R+ii}, v{t2}, 4, v{R+ii}")
def w_srd(a, which):
    c = CFG[which]
    a.e(f"s_mov_b64 s[12:13], s[{66+2*which}:{67+2*which}]")
    a.e(f"s_mov_b32 s14, {c['KBT'] * 32 * c['LDW']}"); a.e("s_mov_b32 s15, 0x20000")
def w_setup(a, which, pre=True, lo=0):
    c = CFG[which]; STB = c["STB"]; BW = STB // 2
    w_srd(a, which)
    a.e("s_and_b32 s35, s30, 1")
    a.e(f"s_mul_i32 s38, s{(0, 99, 29, 29, 33)[which]}, {c['RB']}");
    if which != 4: a.e(f"s_mul_i32 s41, s35, {32*c['LDW']}"); a.e("s_add_u32 s38, s38, s41")
    if which == 4: a.e(f"s_mul_i32 s41, s31, {1792*c['LDW']}"); a.e("s_add_u32 s38, s38, s41")
    a.e(f"s_mul_i32 s41, s35, {BW}"); a.e(f"s_add_u32 s41, s41, {c['WB']}")
    a.e("s_mov_b32 s42, 0"); rot_init(a, which)
    if not pre: return
    NP = c["NPRE"]
    a.e("s_mov_b32 s49, s44"); a.e("s_and_b32 s43, s28, 3"); a.e(f"s_mul_i32 s43, s43, {NP - lo}"); a.e("s_lshr_b32 s43, s43, 2"); a.e(f"s_mov_b32 s50, {lo}")
    if not WROT: a.e("s_mov_b32 s43, 0")
    if lo: a.e(f"s_add_u32 s43, s43, {lo}")
    L = a.lab("wpre"); a.e(f"{L}:")
    a.e(f"s_mul_i32 s42, s43, {STB}"); a.e("s_add_u32 s44, s49, s43")
    if which != 4: a.e("s_and_b32 s44, s44, 15")
    w_issue(a, which, pace=PACES.get(which, PACE))
    a.e("s_add_u32 s43, s43, 1"); a.e(f"s_cmp_eq_u32 s43, {NP}"); a.e(f"s_cselect_b32 s43, {lo}, s43")
    a.e("s_add_u32 s50, s50, 1"); a.e(f"s_cmp_lt_u32 s50, {NP}"); a.e(f"s_cbranch_scc1 {L}")
    mstamp(a)
    a.e(f"s_mov_b32 s42, {(NP % c['NW']) * STB}"); a.e(f"s_add_u32 s44, s49, {NP}")
    if which != 4: a.e("s_and_b32 s44, s44, 15")
def park_load(a, pace):
    w_srd(a, 2)
    a.e("s_and_b32 s35, s30, 3"); a.e("s_lshl_b32 s35, s35, 19"); a.e("s_lshl_b32 s39, s29, 7"); a.e("s_add_u32 s39, s39, s35")
    for q in range(32):
        a.e(f"buffer_load_dwordx4 {vr(PK+4*q,4)}, v{WVB[2]}, s[12:15], s39 offen"); a.e("s_add_u32 s39, s39, 16384")
        if q % 4 == 3: sb(a, SB[1])
        if pace and q % 4 == 3: a.e(f"s_waitcnt vmcnt({pace})")
def park(a): park_load(a, int(os.environ.get("PKP", "8")))
def late_park(a):
    X = a.lab("lp"); a.e("s_cmp_lg_u32 s60, 0"); a.e(f"s_cbranch_scc1 {X}"); call(a, park); a.e(f"{X}:")
def after_g1(a):
    c = CFG[3]
    w_srd(a, 3)
    a.e(f"v_readlane_b32 s36, v{TV+3}, 0"); a.e(f"v_readlane_b32 s37, v{TV+3}, 1")
    a.e("s_and_b32 s35, s30, 3"); a.e(f"s_mul_i32 s38, s35, {16*7168}"); a.e("s_mul_i32 s39, s29, 448"); a.e("s_add_u32 s38, s38, s39")
    for r in (36, 37): a.e(f"s_and_b32 s{r}, s{r}, 15"); a.e(f"s_mul_i32 s{r}, s{r}, {64*7168}"); a.e(f"s_add_u32 s{r}, s{r}, s38")
    a.e("s_mul_i32 s39, s35, 7168"); a.e(f"s_add_u32 m0, s39, {c['WB'] + c['S0'] * c['STB']}")
    for i in range(7):
        if i: a.e("s_add_u32 m0, m0, 1024")
        a.e(f"buffer_load_dwordx4 v{WVB[3]+i}, s[12:15], s36 offen lds")
    for i in range(7): a.e(f"buffer_load_dwordx4 {vr(W3S+4*i,4)}, v{WVB[3]+i}, s[12:15], s37 offen")
    a.e("s_lshr_b32 s36, s67, 2"); a.e("s_sub_u32 s36, s35, s36"); a.e("s_and_b32 s36, s36, 3"); a.e("s_lshl_b32 s36, s36, 15"); a.e(f"v_add_u32 v6, s36, v2")
    a.e("s_waitcnt vmcnt(14)")
    for q in range(32): a.e(f"ds_write_b128 v6, {vr(PK+4*q,4)} offset:{CFG[2]['WB'] + 1024*q}")
    a.e("s_waitcnt lgkmcnt(0)")
def after_g2(a):
    c = CFG[3]
    a.e("s_and_b32 s35, s30, 3"); a.e("s_mul_i32 s39, s35, 7168"); a.e(f"s_add_u32 s39, s39, {c['WB'] + (c['S0'] + 1) % c['NW'] * c['STB']}"); a.e("v_add_u32 v6, s39, v2")
    for i in range(7): a.e(f"ds_write_b128 v6, {vr(W3S+4*i,4)} offset:{1024*i}")
    a.e("s_waitcnt lgkmcnt(0)")
SUBX = {}
def call(a, f):
    SUBX[f.__name__] = f; a.e(f"s_call_b64 s[76:77], SUB_{f.__name__}")
def w1_slots(a, js, pace=0):
    for j in js:
        a.e(f"s_mov_b32 s42, {j*8192}"); a.e("s_mov_b32 s44, s67"); a.e(f"s_add_u32 s44, s44, {j}"); a.e("s_and_b32 s44, s44, 15")
        call_issue(a, w_issue, 1)
        if pace: a.e(f"s_waitcnt vmcnt({pace})")
def w1_done(a):
    a.e("s_mov_b32 s42, 0"); a.e("s_mov_b32 s44, s67"); a.e("s_add_u32 s44, s44, 13"); a.e("s_and_b32 s44, s44, 15")
class Rec:
    def __init__(s_): s_.l = []
    def e(s_, x): s_.l.append(x)
    srd = Asm.srd
def w_parts(which, direct=False):
    c = CFG[which]; STB = c["STB"]; n = STB // 2048; LDW = c["LDW"]; b = Rec()
    b.e("s_add_u32 s19, s41, s42")
    arm = ["s_mov_b32 m0, s19", "s_mov_b32 s39, s16"]
    if which == 4 and TAB:
        b.e(f"v_readlane_b32 s16, v{TV+1}, s44")
        b.e("s_bitcmp1_b32 s16, 0"); b.e(f"s_cselect_b32 s17, {8*2048}, {4*2048}".replace(f"{4*2048}", "s45")); b.e(f"s_cselect_b32 s18, {-20*2048}, s45")
        b.e("s_andn2_b32 s16, s16, 1"); b.e("s_add_u32 s16, s16, s38")
        b.l.insert(0, f"s_mov_b32 s45, {4*2048}")
        arm += ["s_mov_b32 s32, s17", "s_mov_b32 s3, s18"]
    elif which == 3 and TAB and not direct:
        b.e(f"v_readlane_b32 s16, v{TV}, s44"); b.e("s_add_u32 s16, s16, s38")
    elif which == 4:
        b.e("s_and_b32 s40, s30, 1"); kb4(b, 16, "s40")
        b.e(f"s_mul_i32 s16, s16, {32*LDW}"); b.e("s_add_u32 s16, s16, s38")
        b.e("s_cmp_eq_u32 s47, 3"); b.e("s_cselect_b32 s17, 8, 4"); b.e("s_cselect_b32 s18, -20, 4")
        b.e("s_lshl_b32 s17, s17, 11"); b.e("s_lshl_b32 s18, s18, 11")
        arm += ["s_mov_b32 s32, s17", "s_mov_b32 s3, s18"]
    else:
        b.e(f"s_mul_i32 s16, s44, {64*LDW}"); b.e("s_add_u32 s16, s16, s38")
    if f"w{which}" in os.environ.get("HOT", ""): b.e("s_mov_b32 s16, s38")
    rot_next(b, which)
    b.e(f"s_add_u32 s42, s42, {STB}"); b.e(f"s_cmp_eq_u32 s42, {c['NW']*STB}"); b.e("s_cselect_b32 s42, 0, s42")
    fire = []
    for i in range(n):
        g = []
        if i:
            g.append("s_add_u32 m0, m0, 1024")
            if which in (1, 2): g.append(f"s_add_u32 s39, s39, {8*LDW}")
            elif which == 4: g.append(f"s_add_u32 s39, s39, s{3 if i == 4 else 32}")
            elif i == 7: g.append(f"s_add_u32 s39, s39, {16*LDW}")
        vo = WVB[which] + (0 if which in (1, 2) else (i & 1) if which == 4 else i % 7)
        fire.append(g + [f"buffer_load_dwordx4 v{vo}, s[12:15], s39 offen lds"])
    if f"w{which}" in os.environ.get("NOLD", ""): fire = [[x for x in g if not x.startswith("buffer_load")] + ["s_nop 0"] for g in fire]
    return b.l, arm, fire
def w_issue(a, which, pace=0, direct=False):
    prep, arm, fire = w_parts(which, direct)
    for x in prep + arm: a.e(x)
    for i, g in enumerate(fire):
        for x in g: a.e(x)
        if pace and (i % 4 == 3 or i == len(fire) - 1): a.e(f"s_waitcnt vmcnt({pace})")

def w_bases(a, which, dst, swn, ntl, t, t2):
    c = CFG[which]; RB = c["RB"]
    a.e(f"v_lshrrev_b32 v{t}, 2, v1")
    a.e(f"v_mul_u32_u24 v{dst}, {RB}, v{t}"); a.e(f"v_and_b32 v{t2}, 3, v1"); a.e(f"v_lshl_add_u32 v{dst}, v{t2}, 3, v{dst}")
    a.e(f"v_add_u32 v{dst}, {c['WB']}, v{dst}")
    if which == 3:
        a.e(f"s_mul_i32 s36, s{swn}, {7*32}"); a.e(f"v_add_u32 v{dst}, s36, v{dst}")
        a.e(f"v_bfe_u32 v{t}, v1, 4, 1"); a.e(f"v_lshlrev_b32 v{t}, 5, v{t}")
        a.e(f"s_cmp_eq_u32 s{swn}, 0"); a.e("s_cselect_b32 s36, 1, -1"); a.e(f"v_mul_lo_u32 v{t}, v{t}, s36")
        a.e(f"v_sub_u32 v{dst+1}, v{dst}, v{t}"); a.e(f"v_add_u32 v{dst}, v{dst}, v{t}")
        return 2, lambda nt, kk, h: (nt & 1, (32 * kk + 16 * h) * RB + 32 * nt)
    if which == 4: a.e(f"v_and_b32 v{t}, 7, v{t}")
    else: a.e(f"v_bfe_u32 v{t}, v{t}, 1, 2")
    for nt in range(ntl - 1, -1, -1):
        a.e(f"s_mul_i32 s36, s{swn}, {ntl}"); a.e(f"s_add_u32 s36, s36, {nt}")
        a.e(f"v_xor_b32 v{t2}, s36, v{t}"); a.e(f"v_lshl_add_u32 v{dst+nt}, v{t2}, 5, v{dst}")
    return ntl, lambda nt, kk, h: (nt, (32 * kk + 16 * h) * RB)

def a_parts(which):
    c = CFG[which]; b = Rec()
    if which <= 2 and NX:
        b.e("s_and_b32 s42, s48, 7"); b.e("s_lshl_b32 s42, s42, 14"); b.e("s_lshr_b64 s[48:49], s[48:49], 4")
    b.e("s_add_u32 s19, s41, s42")
    arm = ["s_mov_b32 m0, s19", "s_mov_b32 s39, s16"]; fire = []
    if which == 2:
        b.e(f"s_mul_i32 s16, s44, {8*PITCH}"); b.e("s_add_u32 s16, s16, s38")
        b.e("s_lshr_b32 s45, s44, 2"); b.e("s_xor_b32 s45, s45, s94"); b.e("s_and_b32 s45, s45, 1"); b.e("s_lshl_b32 s45, s45, 13"); b.e("s_add_u32 s16, s16, s45")
        b.e("s_lshr_b32 s45, s44, 3"); b.e("s_lshl_b32 s45, s45, 4"); b.e("s_add_u32 s45, s45, 16")
        b.e("s_sub_u32 s46, 0, s45"); b.e("s_bitcmp1_b32 s44, 2"); b.e("s_cselect_b32 s45, s45, s46"); b.e("s_add_u32 s16, s16, s45")
        step = PITCH
    elif which == 4:
        for lw in range(2):
            if TAB: b.e(f"v_readlane_b32 s{16+lw}, v{TV+1+lw}, s44")
            else: kb4(b, 16 + lw, lw); spread(b, 16 + lw, 16 + lw)
        for lw in range(2): b.e(f"s_add_u32 s{16+lw}, s{16+lw}, s38")
        arm.append("s_mov_b32 s40, s17")
        for i in range(4):
            for lw in range(2):
                fire.append((["s_add_u32 m0, m0, 1024"] if i or lw else []) + ([f"s_add_u32 s{39+lw}, s{39+lw}, {c['KBT']*2048}"] if i else []) +
                            [f"buffer_load_dwordx4 v2, s[12:15], s{39+lw} offen {SC} lds"])
    elif which == 3 and TAB:
        b.e(f"v_readlane_b32 s16, v{TV}, s44"); b.e("s_add_u32 s16, s16, s38"); step = c['KBT'] * 2048
    else:
        b.e("s_lshr_b32 s45, s44, 2"); b.e("s_lshl_b32 s45, s45, 14"); b.e("s_and_b32 s16, s44, 3"); b.e("s_lshl_b32 s16, s16, 11")
        b.e("s_add_u32 s16, s16, s45"); b.e("s_add_u32 s16, s16, s38"); step = c['KBT'] * 2048
    if f"a{which}" in os.environ.get("HOT", ""):
        b.e("s_mov_b32 s16, s38")
        if which == 4: b.e("s_add_u32 s17, s38, 1024")
    for i in range(4 if which != 4 else 0):
        fire.append((["s_add_u32 m0, m0, 2048", f"s_add_u32 s39, s39, {step}"] if i else []) + [f"buffer_load_dwordx4 v2, s[12:15], s39 offen {SC} lds"])
        fire.append([f"buffer_load_dwordx4 v2, s[12:15], s39 offen offset:1024 {SC} lds"])
    rot_next(b, which)
    if not (which <= 2 and NX):
        b.e(f"s_add_u32 s42, s42, 16384"); b.e(f"s_cmp_eq_u32 s42, {c['NA']*16384}"); b.e("s_cselect_b32 s42, 0, s42")
    if f"a{which}" in os.environ.get("NOLD", ""): fire = [[x for x in g if not x.startswith("buffer_load")] + ["s_nop 0"] for g in fire]
    return b.l, arm, fire
def a_issue(a, which):
    prep, arm, fire = a_parts(which)
    for x in prep + arm + sum(fire, []): a.e(x)
SUBS = {}
def call_issue(a, issue, which):
    nm = f"SUB_{issue.__name__}_{which}"; SUBS[nm] = (issue, which)
    a.e(f"s_call_b64 s[76:77], {nm}")
def emit_subs(a):
    for nm, f in SUBX.items(): a.e(f"SUB_{nm}:"); f(a); a.e("s_setpc_b64 s[76:77]")
    for nm, (issue, which) in SUBS.items():
        a.e(f"{nm}:"); issue(a, which); a.e("s_setpc_b64 s[76:77]")
def ld_steps(a, which, N, per, issue, npre, rate=2, plan={}, lo=0, hi=None, last=None, hold=(), sched=None, armed=False):
    NS = CFG[which]["NS"]
    prep, arm, fire = (w_parts if issue is w_issue else a_parts)(which); h = max(1, per * HSPLIT // 8)
    plan = {b: (x if isinstance(x, list) else [x]) for b, x in plan.items()}
    q = [s_ for s_ in range(npre) for _ in range(per)]
    def after(tag):
        if issue is w_issue and isinstance(tag, int) and tag < npre: tag = npre - 1
        return len(q) - 1 - max(i for i, x in enumerate(q) if x == tag)
    issued = npre; steps = []
    for b in range(NS):
        acts = plan.get(b, []); was = {}
        def do(pos):
            for n_, act in enumerate(acts):
                if act[0] != pos: continue
                if act[1] is not None: was[n_] = after(act[1])
                q.extend([act[4]] * act[3])
        do(True)
        k = 0
        if (b > 0 or (sched is not None and issue is a_issue)) and b not in hold:
            k = max(0, min(rate, min(NS, b - 1 + N) - issued)) if sched is None else sched[b]
        assert k or not any(x[0] == "mid" for x in acts)
        for j in range(k):
            q.extend([issued] * h)
            if j == 0: do("mid")
            q.extend([issued] * (per - h)); issued += 1
        do(False)
        w = after(b); assert w <= 63
        steps.append((k, w, b if acts else None, tuple(sorted(was.items())), issued < NS))
    def em(l):
        for x in l:
            a.e(x)
            if x == "s_barrier" and os.environ.get("JIT"): mstamp(a)
    F1, F2 = sum(fire[:h], []), sum(fire[h:], [])
    lprep = prep
    if len(prep) > 8:
        nm = f"PREP_{issue.__name__}_{which}"; SUBS[nm] = ((lambda a_, w_, l=prep: [a_.e(x) for x in l]), which)
        prep = [f"s_call_b64 s[76:77], {nm}"]
    if lo == 0 and npre < NS and not armed: em(prep + arm)
    i = lo; HI = NS if hi is None else hi
    while i < HI:
        j = i
        while j < HI and steps[j] == steps[i]: j += 1
        k, w, ab, was, more = steps[i]; n = j - i; was = dict(was)
        def run(pos):
            for n_, act in enumerate(plan.get(ab, [])):
                if act[0] != pos: continue
                if n_ in was: a.e(f"s_waitcnt vmcnt({was[n_]})")
                act[2]()
        tail = [f"s_waitcnt vmcnt({w})", "s_barrier"]
        if n > 2 and k == 1:
            em(F1); a.e("s_mov_b32 s43, 1"); L = a.lab("ld"); a.e(f"{L}:")
            em(lprep + F2 + arm + tail + F1)
            a.e("s_add_u32 s43, s43, 1"); a.e(f"s_cmp_lt_u32 s43, {n}"); a.e(f"s_cbranch_scc1 {L}")
            em(prep + F2 + arm + tail)
        else:
            for r in range(n):
                run(True)
                for jj in range(k):
                    nxt = more or jj < k - 1
                    em(F1)
                    if jj == 0: run("mid")
                    em((prep if nxt else []) + F2 + (arm if nxt else []))
                run(False)
                em(tail)
        i = j
    if hi is not None: return
    if which == 4:
        if issue is a_issue: a.e("s_cmp_eq_u32 s60, 1"); a.e("s_cbranch_scc1 K_fin")
        elif hold is HOLD: a.e("s_branch K_fin"); return
        if not RPL: r_pre(a)
    if last: last()
    late = os.environ.get("TLATE", "0") == "1"
    if late: a.e("s_barrier")
    if issue is a_issue and W4POS == f"{which}C":
        X = a.lab("tw4"); a.e("s_cmp_lg_u32 s60, 0"); a.e(f"s_cbranch_scc1 {X}"); touch(a, B_W4, 7 * MB, 20); a.e(f"{X}:")
    if not late: a.e("s_barrier")

RK = int(os.environ.get("RK", "7")); assert RK == 0 or 4 <= RK <= STQ
PA2 = int(os.environ.get("PA2", "1")); PBB = int(os.environ.get("PBB", "2")); PC0 = int(os.environ.get("PC0", "4"))
HOLD = eval(os.environ.get("HOLD", "[2,3,4]"))
def a_loader(a, which):
    c = CFG[which]
    if which <= 2:
        plan = side_jobs(a, 1) if which == 1 else {}
        if which == 1 and "1" in DP: mstamp(a); a.e(f"s_sleep {os.environ.get('SJD', '30')}")
        else: poll(a, which - 1, 8)
        mstamp(a)
        for b in sorted(plan):
            for act in (plan[b] if isinstance(plan[b], list) else [plan[b]]):
                if act[1] is not None: a.e("s_waitcnt vmcnt(0)")
                act[2]()
        if which == 1 and "2" in DP:
            a.e("s_cmp_eq_u32 s60, 0"); a.e("s_cbranch_scc1 AL_nw"); a.e("s_cmp_lg_u32 s30, 4"); a.e("s_cbranch_scc1 AL_nw")
            a.e(f"s_add_u32 s54, s55, {(fso(ST_G2) - LSTR) & 0xffffffff:#x}"); a.e("s_add_u32 s53, s54, s92"); a.e("v_mov_b32 v9, s53")
            a.e("s_add_u32 s53, s54, s93"); a.e("v_writelane_b32 v9, s53, 1")
            poll_core(a, 8, [9], 3, cnt=16)
            a.e("AL_nw:")
        if which == 2: a.e("s_waitcnt vmcnt(0)")
        a.e("s_barrier")
        if which == 1 and "p" not in os.environ.get("FO", "1pd"): late_park(a)
        call(a, after_g1 if which == 1 else after_g2)
        return
    a.e("s_and_b32 s35, s30, 1")
    if which == 2:
        hs_srd(a, 12)
        a.e("s_lshl_b32 s38, s28, 11"); a.e("s_add_u32 s38, s38, 16384"); a.e(f"s_mul_i32 s36, s35, {4*PITCH}"); a.e("s_add_u32 s38, s38, s36")
    else:
        lsrd(a, 12, c["A"], XSZ if which != 4 else H2SZ)
        a.e(f"s_mul_i32 s38, s35, {4*c['KBT']*2048}")
        if which == 4: a.e(f"s_mul_i32 s36, s31, {7*16384}"); a.e("s_add_u32 s38, s38, s36")
    a.e("s_lshl_b32 s41, s35, 13"); a.e("s_mov_b32 s42, 0"); rot_init(a, which)
    assert c["NA"] == 3
    prep, arm, fire = a_parts(which)
    if which == 4:
        flag_addr(a, 9, ST_G3A); flag_addr(a, 10, ST_G3B); flag_addr(a, 12, ST_G3)
        a.e("v_mov_b32 v13, 1"); a.e("s_and_b32 s51, s30, 1"); a.e("s_lshl_b32 s51, s51, 30")
        def signal(r): a.e("s_mov_b64 exec, 1"); a.e(f"buffer_atomic_add v13, v{r}, s[56:59], s51 offen {SC}"); a.e("s_mov_b64 exec, -1")
        a.e("s_lshl_b32 s54, s60, 2"); a.e("s_add_u32 s54, s54, 4"); lds_spin(a, LW + 64, "s54", 14, nap=2)
        signal(9)
        if not PA2: poll_core(a, 8, [9], 1, cnt=8)
        mstamp(a)
        plan = {6 - L4: ("mid", None, lambda: flag_try(a, 11, 10), 1, "f"), 8 - L4: ("mid", "f", lambda: flag_check(a, 11, 10, 8), 0, None),
                13 - L4: ("mid", None, lambda: flag_try(a, 11, 12), 1, "g"), 15 - L4: ("mid", "g", lambda: flag_check(a, 11, 12, 8), 0, None)}
        plan = {k_: [x] for k_, x in plan.items()}
        if PA2:
            plan[1] = [(False, None, lambda: flag_try(a, 8, 9), 1, "a")]
            plan[2] = [(True, "a", lambda: flag_check(a, 8, 9, 8), 0, None)]
        if DP:
            a.e("v_xor_b32 v15, 128, v12")
            plan[20] = [("mid", None, lambda: flag_try(a, 11, 15), 1, "h")]; plan[22] = [("mid", "h", lambda: flag_check(a, 11, 15, 8), 0, None)]
        plan.setdefault(PBB + 1, []).insert(0, (True, None, lambda: signal(10), 1, "s"))
        plan.setdefault(PC0 + 2, []).insert(0, (True, None, lambda: signal(12), 1, "s"))
        a.e("s_mov_b32 s44, 3")
        ld_steps(a, which, 3, 8, a_issue, 3, plan=plan); return
    if which == 3:
        mask, cnt = flag_addr(a, 9, ST_G2)
        def wait2():
            if B0E > 1: a.e(f"s_sleep {B0E}")
            poll_core(a, 8, [9], mask, cnt=cnt); mstamp(a); mstamp(a)
            if W3H: a.e("s_add_u32 s54, s60, 1"); lds_set(a, LW + 60, "s54", 10)
        rot_next(a, 3); a.e("s_mov_b32 s42, 16384")
        plan = side_jobs(a, 3)
        if os.environ.get("P30", "0") == "1":
            def wait0(): own_wait(a, ST_G2, False, 14); wait2()
            plan[0] = (True, None, wait0, 0, None)
            ld_steps(a, which, 3, 8, a_issue, 1, plan=plan, sched=[int(os.environ.get("P3N", "1")), 2 - int(os.environ.get("P3N", "1"))] + [1] * 13 + [0]); return
        plan[1] = (True, None, wait2, 0, None)
        if RPL: plan[15] = (False, None, lambda: call(a, r_pre0), 8, "r")
        PZ3 = int(os.environ.get("PZ3", "0"))
        if PZ3:
            a.srd(84, 4, 32 * MB, off=216 * MB)
            a.e("s_cmp_eq_u32 s60, 0"); a.e("s_cselect_b32 s86, s86, 0")
            for i in range(4): a.e(f"v_mov_b32 v{216+i}, -1")
            a.e("s_lshl_b32 s88, s2, 1"); a.e("s_and_b32 s50, s30, 1"); a.e("s_add_u32 s88, s88, s50"); a.e(f"s_mul_i32 s88, s88, {PZ3*12*1024}")
            def pz():
                for i in range(PZ3): a.e(f"buffer_store_dwordx4 v[216:219], v2, s[84:87], s88 offen offset:{i*1024} {SC}")
                a.e(f"s_add_u32 s88, s88, {PZ3*1024}")
            for b in range(2, 14):
                p_ = plan.get(b, []); p_ = p_ if isinstance(p_, list) else [p_]
                plan[b] = p_ + [(False, None, pz, PZ3, "z")]
        ld_steps(a, which, 3, 8, a_issue, 1, plan=plan); return
    assert 0

def side_jobs(a, which):
    c = CFG[which]; plan = {}
    sv = 16; S, Q, mean, rs, tt, ad, fa, fr = 216, 217, 218, 219, 220, 221, 222, 223
    cv = 180 if which == 3 else 24; N = c["LDW"] // 2; co_ = 224; HB = c["TN16"] * 32
    lg = 3 if which == 1 else 5
    def cld(k0=0, k1=4):
        if k0 == 0:
            a.srd(24, 4, 32 * N * 4, off=CSP[which])
            a.e("s_cmp_eq_u32 s60, 0"); a.e("s_cselect_b32 s26, s26, 0")
            if NOCS3 and which == 3: a.e("s_mov_b32 s26, 0")
            a.e("s_and_b32 s36, s30, 1"); a.e(f"s_mul_i32 s36, s36, {HB}"); a.e(f"s_mul_i32 s37, s29, {2*HB}"); a.e("s_add_u32 s37, s36, s37")
            a.e(f"v_lshrrev_b32 v{co_}, {lg}, v1"); a.e(f"v_mul_u32_u24 v{co_}, {N*4}, v{co_}")
            a.e(f"v_and_b32 v{cv-1}, {16*((1 << lg) - 1)}, v2"); a.e(f"v_add_u32 v{co_}, v{co_}, v{cv-1}")
        for k in range(k0, k1):
            a.e(f"buffer_load_dwordx4 {vr(cv+4*(k if k < 9 else k - 8),4)}, v{co_}, s[24:27], s37 offen {SC}"); a.e(f"s_add_u32 s37, s37, {N*4*(64 >> lg)}")
    def piece(lines, l0=False):
        def f():
            X = a.lab("pc")
            if l0: a.e("s_cmp_lg_u32 s60, 0"); a.e(f"s_cbranch_scc1 {X}")
            for x in lines: a.e(x)
            if l0: a.e(f"{X}:")
        return f
    def cadd(k0, k1): return [f"v_add_f32 v{cv+h}, v{cv+h}, v{cv+4*k+h}" for k in range(k0, k1) for h in range(4)]
    def sw(op): return [f"v_mov_b32 v{cv+4+e}, v{cv+e}" for e in range(4)] + [f"{op} v{cv+e}, v{cv+4+e}" for e in range(4)] + cadd(1, 2)
    if which in (1, 3):
        cout = ["s_and_b32 s36, s30, 1", f"s_mul_i32 s36, s36, {HB}", f"s_add_u32 s36, s36, {CSO[which]}", f"v_add_u32 v{cv-1}, s36, v2",
                f"s_bfm_b64 exec, {HB//16}, 0", f"ds_write_b128 v{cv-1}, {vr(cv,4)}", "s_mov_b64 exec, -1", "s_waitcnt lgkmcnt(0)"]
    if which == 1:
        flag_addr(a, fa, ST_R2)
        def ld():
            flag_check(a, fr, fa, 16)
            lsrd(a, 20, oLNS, 2048); a.e("s_and_b32 s35, s30, 1"); a.e("s_lshl_b32 s35, s35, 10")
            a.e(f"buffer_load_dwordx4 {vr(sv,4)}, v2, s[20:23], s35 offen {SC}")
        fin = piece(["s_and_b32 s36, s30, 1", "s_lshl_b32 s36, s36, 10", f"s_add_u32 s36, s36, {LNSL}", f"v_add_u32 v{ad}, s36, v2", f"ds_write_b128 v{ad}, {vr(sv,4)}", "s_waitcnt lgkmcnt(0)"])
        a.e("s_lshl_b32 s53, s29, 7"); a.e(f"s_add_u32 s53, s53, {F_CS}"); a.e(f"v_mov_b32 v{fa+4}, s53")
        def cld1(): flag_check(a, fr + 4, fa + 4, 16); cld()
        work = cadd(1, 4) + [f"v_add_f32_dpp v{cv+e}, v{cv+e}, v{cv+e} row_ror:8 row_mask:0xf bank_mask:0xf" for e in range(4)] + \
               sw("v_permlane16_swap_b32") + sw("v_permlane32_swap_b32")
        plan = {2: (False, None, lambda: flag_try(a, fr + 4, fa + 4), 1, "e"), 5: [(False, "e", cld1, 4, "c"), (False, None, lambda: flag_try(a, fr, fa), 1, "f")],
                8: (False, "f", ld, 1, "d"), 15: [(False, None, piece(cout, 1), 0, None), (False, "d", fin, 0, None)]}
        plan[9] = (False, None, piece(work, 1), 0, None)
    if which == 3:
        flag_addr(a, fa, ST_G2S)
        a.e(f"v_lshlrev_b32 v{ad}, 3, v1")
        def ld(k0):
            def f():
                if k0 == 0:
                    flag_check(a, fr, fa, 16)
                    lsrd(a, 20, oST2, 24576)
                    a.e("s_and_b32 s35, s30, 1"); a.e("s_lshl_b32 s35, s35, 9")
                a.e(f"s_add_u32 s36, s35, {k0*2048}")
                for k in range(k0, k0 + 8):
                    if k % 8 == 4: a.e("s_add_u32 s36, s36, 4096")
                    a.e(f"buffer_load_dwordx2 {vr(sv+2*k,2)}, v{ad}, s[20:23], s36 offen offset:{(k&3)*1024} {SC}")
            return f
        b = Rec()
        for st_ in (8, 4, 2, 1):
            for k in range(2 * st_): b.e(f"v_add_f32 v{sv+k}, v{sv+k}, v{sv+2*st_+k}")
        o_ = sv + 4
        b.e(f"v_mul_f32 v{o_}, {f32(1/1024)}, v{sv}"); b.e(f"v_mul_f32 v{Q}, {f32(1/1024)}, v{sv+1}")
        b.e(f"v_fma_f32 v{Q}, -v{o_}, v{o_}, v{Q}"); b.e(f"v_max_f32 v{Q}, 0, v{Q}")
        ln_finish(b, o_, Q, rs, o_ + 1)
        b.e(f"v_mul_f32 v{o_+2}, {f32(GC1)}, v{rs}"); b.e(f"v_mul_f32 v{o_+3}, v{rs}, v{rs}")
        b.e(f"v_mul_f32 v{o_+3}, v{o_+3}, v{o_+2}"); b.e(f"v_mul_f32 v{o_+3}, {f32(0.044715)}, v{o_+3}")
        b.e("s_lshl_b32 s35, s35, 1"); b.e(f"s_add_u32 s35, s35, {LNSL}"); b.e(f"v_add_u32 v{tt}, s35, v2")
        b.e(f"ds_write_b128 v{tt}, {vr(o_,4)}"); b.e("s_waitcnt lgkmcnt(0)")
        def both(f, g):
            def h(): f(); g()
            return h
        plan = {2: (False, None, cld, 4, "c"), 3: (False, None, lambda: cld(4, 9), 5, "c"),
                5: [(False, "c", piece(cadd(1, 5), 1), 0, None), (False, None, lambda: flag_try(a, fr, fa), 1, "f")],
                6: (False, None, both(piece(cadd(5, 9), 1), lambda: cld(9, 16)), 7, "e"),
                7: (False, "f", ld(0), 8, "d"), 8: (False, None, ld(8), 8, "d"),
                9: (False, "e", piece(cadd(1, 5), 1), 0, None), 10: (False, None, piece(cadd(5, 8), 1), 0, None), 11: (False, None, piece(sw("v_permlane32_swap_b32") + cout, 1), 0, None),
                12: (False, "d", piece(b.l[:16]), 0, None), 13: (False, None, piece(b.l[16:32]), 0, None), 14: (False, None, piece(b.l[32:]), 0, None)}
    return plan

W2E = int(os.environ.get("W2E", "3"))
def w2_early(a):
    if W2E: w_setup(a, 2, pre=False); w1_slots(a, range(W2E), pace=8)
def w_loader(a, which):
    c = CFG[which]
    if which < 3:
        if which == 1: a.e("s_waitcnt vmcnt(0)")
        if which == 1 and "a" in STO: stouch(a, 3, 128 if "8" in STO else 64, 2); mstamp(a)
        if which == 1 and sum(SG): sb_init(a)
        sg(a, SG[2*which-2])
        if not (which == 1 and "1" in DP): a.e("s_barrier")
        sg(a, SG[2*which-1])
        if which == 1 and "b" in STO: stouch(a, 3, 128 if "8" in STO else 64, 2); mstamp(a)
        if which == 2: a.e("s_waitcnt vmcnt(0)")
        a.e("s_barrier")
        if which == 1 and "p" not in os.environ.get("FO2", "1pd"): late_park(a)
        call(a, after_g1 if which == 1 else after_g2); mstamp(a)
        return
    args = (a, which, c["NW"], c["STB"] // 2048, w_issue, c["NPRE"], c["WR"])
    if which == 4:
        assert c["NW"] == 6 and c["WB"] == CFG[1]["WB"] + 3 * 8192
        a.e("s_cmp_eq_u32 s60, 1"); a.e("s_cbranch_scc1 WL_t1")
        ld_steps(*args, hi=24)
        WT = eval(os.environ.get("WT", "[(11,12,15,9),(13,14,10),(3,4),(5,6,0),(7,8,1,2),()]"))
        def some(js):
            def f():
                if js is WT[0]: w_setup(a, 1, pre=False)
                for j in js:
                    if j in (9, 10) and js is not WT[5]:
                        a.e(f"s_add_u32 s39, s38, {j*64*2048}")
                        for i in range(4): a.e(f"buffer_load_dwordx4 {vr(16+16*(j-9)+4*i,4)}, v{WVB[1]}, s[12:15], s39 offen"); a.e("s_add_u32 s39, s39, 16384")
                    else: w1_slots(a, (j,), pace=8 if js is WT[5] else 0)
            return f
        plan = {24 + i: (False, None, some(WT[i]), 4 * len(WT[i]), "w") for i in range(4) if WT[i]}
        ld_steps(*args, plan=plan, lo=24, last=some(WT[4]))
        rg = [j for j in (9, 10) if j not in WT[5]]
        if rg:
            a.e(f"s_add_u32 s36, s41, {9*8192}"); a.e("v_add_u32 v6, s36, v2"); a.e("s_waitcnt vmcnt(0)")
            for j in rg:
                for i in range(4): a.e(f"ds_write_b128 v6, {vr(16+16*(j-9)+4*i,4)} offset:{(j-9)*8192+i*1024}")
            a.e("s_waitcnt lgkmcnt(0)")
        some(WT[5])(); mstamp(a)
        a.e("s_branch NEXT")
        a.e("WL_t1:")
        ld_steps(*args, hold=HOLD)
        return
    plan = {}
    if W3H: plan[1] = (True, None, lambda: (a.e("s_add_u32 s54, s60, 1"), lds_spin(a, LW + 60, "s54", 6, nap=1)), 0, None)
    def sg3(n):
        def f():
            X = a.lab("st"); a.e("s_cmp_lg_u32 s60, 0"); a.e(f"s_cbranch_scc1 {X}"); sb(a, n); a.e(f"{X}:")
        return f
    for b_, n_ in eval(os.environ.get("SG3", "{}")).items(): plan[b_] = (False, None, sg3(n_), 0, None)
    if RPL: plan[int(os.environ.get("RPW", "15"))] = (False, None, lambda: call(a, r_pre0), 8, "r")
    ld_steps(*args, plan=plan)
W3H = int(os.environ.get("W3H", "0"))
W1L = int(os.environ.get("W1L", "3"))

B0E = int(os.environ.get("B0E", "6")); RPL = int(os.environ.get("RPL", "1")); RPC = int(os.environ.get("RPC", "1"))
LF1 = os.environ.get("LF1", "sc1"); LF2 = os.environ.get("LF2", "")
RES2 = 160; C2R = 200; SO3 = 238; RES4 = [172, 176, 180, 184, 188, 192, 196, 240]
def g_compute(a, which):
    c = CFG[which]
    WM, WN, MT, NT, KBT, NS, NA, NW, TN16, STB, WB = [c[k] for k in "WM WN MT NT KBT NS NA NW TN16 STB WB".split()]
    v = VA(6); nm = f"G{which}"
    lane = 1; l16 = 2
    t = v(); t2 = v(); pt = v(4, 2)
    NTILE = (0, 99, 29, 29, 33)[which]
    a_ = a
    if which == 4: a = Rec()
    if WN == 2: a.e("s_lshr_b32 s34, s30, 1"); a.e("s_and_b32 s35, s30, 1")
    else: a.e("s_mov_b32 s34, s30"); a.e("s_mov_b32 s35, 0")
    a0 = v(); w0 = v(4, 1); aa = v(); wa = v(4, 1); J = v(); G = v()
    a.e(f"v_and_b32 v{J}, 15, v{lane}"); a.e(f"v_lshrrev_b32 v{G}, 4, v{lane}")
    a.e(f"s_mul_i32 s37, s34, {MT}")
    a.e(f"s_mul_i32 s38, s{NTILE}, {TN16}"); a.e(f"s_mul_i32 s36, s35, {NT}"); a.e("s_add_u32 s38, s38, s36")
    acc = v(MT * NT * 4, 4); NF = MT + NT if which > 2 else 8
    fX = v(NF * 4, 4); fY = v(NF * 4, 4); tmp = v(); tp = v(4, 2)
    def A_(mt, nt): return acc + 4 * (mt * NT + nt)
    def SUBM(r): return f"{vr(r,2)} op_sel_hi:[1,0] neg_lo:[0,1] neg_hi:[0,1]"
    def MULR(r): return f"{vr(r,2)} op_sel:[0,1] op_sel_hi:[1,1]"
    if which in (2, 4):
        res = RES2
        a.e("s_lshr_b32 s36, s38, 1"); spread(a, 39, 36); a.e("s_lshl_b32 s36, s37, 16"); a.e("s_add_u32 s39, s39, s36")
    if which <= 2:
        AB = 176; LO = v(8, 1)
        if which == 1:
            lsrd(a, 8, oX3, XSZ); OOB = MB
            for i in range(4): a.e(f"v_add_u32 v{LO+i}, {(i & 1) * 65536 + (i >> 1) * 4096}, v{l16}")
        else:
            hs_srd(a, 8); OOB = 128 * PITCH
            a.e(f"v_mul_u32_u24 v{LO}, {PITCH}, v{G}"); a.e(f"v_lshl_add_u32 v{LO}, v{J}, 4, v{LO}")
            for i in range(1, 8): a.e(f"v_add_u32 v{LO+i}, {4*PITCH*i}, v{LO}")
        for i in range(4):
            a.e("s_lshr_b32 s36, s67, 2"); a.e(f"s_add_u32 s36, s36, {i}"); a.e("s_and_b32 s36, s36, 3")
            if which == 1: a.e(f"s_lshl_b32 s{44+i}, s36, 14"); a.e("s_lshl_b32 s36, s34, 17")
            else:
                a.e(f"s_mul_i32 s{44+i}, s36, {32*PITCH}")
                a.e("s_xor_b32 s53, s36, s94"); a.e("s_and_b32 s53, s53, 1"); a.e("s_lshl_b32 s53, s53, 13"); a.e(f"s_add_u32 s{44+i}, s{44+i}, s53")
                a.e("s_lshr_b32 s53, s36, 1"); a.e("s_lshl_b32 s53, s53, 4"); a.e("s_add_u32 s53, s53, 16")
                a.e("s_sub_u32 s54, 0, s53"); a.e("s_bitcmp1_b32 s36, 0"); a.e("s_cselect_b32 s53, s53, s54"); a.e(f"s_add_u32 s{44+i}, s{44+i}, s53")
                a.e("s_lshl_b32 s36, s28, 2"); a.e("s_add_u32 s36, s36, s34"); a.e("s_lshl_b32 s36, s36, 9"); a.e("s_add_u32 s36, s36, 16384")
            a.e(f"s_add_u32 s{44+i}, s{44+i}, s36")
        def aload(b, kk):
            if which == 1: return [f"buffer_load_dwordx4 {vr(AB+16*b+8*kk+4*mt,4)}, v{LO+mt+(b&2)}, s[8:11], s44 offen offset:{(b&1)*2048+kk*1024} {LF1}" for mt in range(2)]
            return [f"buffer_load_dwordx4 {vr(AB+16*b+8*kk+4*mt,4)}, v{LO+2*b+kk}, s[8:11], s44 offen offset:{mt*256} {LF2}" for mt in range(2)]
    else:
        a.e(f"s_mul_i32 s36, s34, {MT*2048}"); a.e(f"v_add_u32 v{a0}, s36, v{l16}")
    nwr, wpos = w_bases(a, which, w0, 35, NT, t, t2)
    a = a_
    if which == 3 and not B0E: publish(a, ST_G2S, 4, pt, ctr=48)
    if which == 2:
        a.e(f"s_lshl_b32 s36, s37, 8"); a.e(f"s_add_u32 s36, s36, {LNSL}"); a.e(f"v_lshlrev_b32 v{t2}, 4, v{J}"); a.e(f"v_add_u32 v{t2}, s36, v{t2}")
        for mt in range(MT): a.e(f"ds_read_b64 {vr(fX+2*mt,2)}, v{t2} offset:{mt*256}")
        a.e("s_waitcnt vmcnt(4) lgkmcnt(0)")
        for mt in range(MT):
            for p in range(NT // 2):
                for e in range(4):
                    X = A_(mt, 2 * p) + 2 * e
                    unpack(a, X, X + 1, res + (mt * (NT // 2) + p) * 4 + e)
                    a.e(f"v_pk_add_f32 {vr(X,2)}, {vr(X,2)}, {SUBM(fX+2*mt)}"); round2(a, X, X + 1, tmp)
                    a.e(f"v_pk_mul_f32 {vr(X,2)}, {vr(X,2)}, {MULR(fX+2*mt)}"); round2(a, X, X + 1, tmp)
    elif which == 1:
        for i in range(0, MT * NT * 4, 2): a.e(f"v_pk_mov_b32 {vr(acc+i,2)}, 0, 0")
    RX = [180, 184, 188, 192, 196, 230, 234, 248]
    def last_res():
        b0 = Rec()
        for i in range(2):
            b0.e(f"s_add_u32 s36, s40, {i*65536}")
            for p in range(2):
                b0.e(f"buffer_load_dwordx4 {vr(RX[2*(2*i+p)],4)}, v{l16}, s[84:87], s36 offen offset:{p*1024} {SC}")
                b0.e(f"buffer_load_dwordx4 {vr(RX[2*(2*i+p)+1],4)}, v{l16}, s[88:91], s36 offen offset:{p*1024} {SC}")
        return b0.l
    def reads(F, kk):
        o = []
        for mt in range(MT): o.append(f"ds_read_b128 {vr(F+4*mt,4)}, v{aa} offset:{mt*256+kk*8192 if which == 2 else mt*2048+kk*1024}")
        for nt in range(NT):
            for h in range(2):
                r, imm = wpos(nt, kk, h)
                o.append(f"ds_read_b64_tr_b16 {vr(F+4*(MT+nt)+2*h,2)}, v{wa+r} offset:{imm}")
        NR = os.environ.get("NOREAD")
        if NR == "N": o = []
        if NR == "A": o = o[MT:]
        if NR == "W": o = o[:MT]
        if NR == "H": o = o[::2]
        if NR == "X": o = o + o[:2]
        if NR == "XX": o = o + o[:MT]
        return o
    def mix(rd, ex):
        rd = list(rd)
        for i, x in enumerate(ex): rd.insert(min(len(rd), (i + 1) * len(rd) // (len(ex) + 1)), x)
        return rd
    def mfmas(F, rd, tail=()):
        n = MT * NT; k = 0; tot = len(rd); span = max(1, n * 3 // 4); done = 0; tail = list(tail); per = -(-len(tail) // max(1, n - span))
        OR = os.environ.get("ORDER", "2")
        order = {"0": [(nt, mt) for nt in range(NT) for mt in range(MT)],
                 "1": [(nt, mt) for mt in range(MT) for nt in range(NT)],
                 "2": [(nt, mt if nt % 2 == 0 else MT - 1 - mt) for nt in range(NT) for mt in range(MT)],
                 "3": [(nt if mt % 2 == 0 else NT - 1 - nt, mt) for mt in range(MT) for nt in range(NT)]}[OR]
        for nt, mt in order:
            if True:
                cc = acc + 4 * (mt * NT + nt)
                if str(which) not in os.environ.get("NOMF", ""): a.e(f"v_mfma_f32_16x16x32_bf16 {vr(cc,4)}, {vr(F+4*(MT+nt),4)}, {vr(F+4*mt,4)}, {vr(cc,4)}")
                k += 1
                while rd and done < (tot * k + span - 1) // span: a.e(rd.pop(0)); done += 1
                if k >= span and k < n:
                    for _ in range(min(per, len(tail))): a.e(tail.pop(0))
        assert not rd and not tail
    so = SO3 if which == 3 else a0; cs = fX; lns = fX + 4 * NT; G4W = 240; EA = 244
    def ep_setup(b):
        if which in (1, 3):
            assert which == 1 or (fY <= C2R and C2R + 24 <= fY + 4 * NF)
            b.e(f"s_mul_i32 s36, s35, {NT*64}"); b.e(f"s_add_u32 s36, s36, {CSO[which]}"); b.e(f"v_lshlrev_b32 v{t}, 4, v{G}"); b.e(f"v_add_u32 v{t}, s36, v{t}")
            b.e(f"s_lshl_b32 s36, s37, 8"); b.e(f"s_add_u32 s36, s36, {LNSL + (8 if which == 1 else 0)}"); b.e(f"v_lshlrev_b32 v{t2}, 4, v{J}"); b.e(f"v_add_u32 v{t2}, s36, v{t2}")
        if which == 3:
            lsrd(b, 16, oH2, H2SZ)
            b.e(f"s_mul_i32 s39, s37, {224*1024}")
            for P in range(4):
                b.e("s_lshr_b32 s36, s38, 1"); b.e(f"s_add_u32 s36, s36, {P}"); spread(b, 44 + P, 36); b.e(f"s_add_u32 s{44+P}, s{44+P}, s39")
            w_bases(b, 4, G4W, 35, 4, tp, tp + 1)
            b.e("s_lshl_b32 s38, s33, 3"); b.e("s_lshl_b32 s36, s35, 2"); b.e("s_add_u32 s38, s38, s36")
            b.e("s_lshr_b32 s36, s38, 1"); spread(b, 39, 36); b.e("s_lshl_b32 s36, s37, 16"); b.e("s_add_u32 s39, s39, s36")
            b.e("s_lshl_b32 s40, s31, 17"); b.e("s_add_u32 s40, s40, s39")
            b.e("s_xor_b32 s41, s31, 1"); b.e("s_lshl_b32 s41, s41, 17"); b.e("s_add_u32 s41, s41, s39")
            lsrd(b, 84, oX3, XSZ); lsrd(b, 88, oX1P, XSZ); b.srd(80, 4, 4 * MB, off=globals()["Y"])
            b.e("s_lshl_b32 s36, s37, 1"); b.e("s_add_u32 s36, s36, s35"); b.e("s_lshl_b32 s36, s36, 10"); b.e(f"v_add_u32 v{EA}, s36, v{l16}")
            b.e(f"v_mov_b32 v{EA+1}, 1"); b.e(f"v_mov_b32 v{EA+2}, {LW+64}")
            b.e(f"v_lshrrev_b32 v{so}, 1, v{G}"); b.e(f"v_lshlrev_b32 v{so}, 8, v{so}"); b.e(f"v_lshl_add_u32 v{so}, v{J}, 4, v{so}")
            b.e(f"v_and_b32 v{tmp}, 1, v{G}"); b.e(f"v_lshl_add_u32 v{so}, v{tmp}, 3, v{so}")
        if which == 1:
            hs_srd(b, 16)
            b.e(f"v_mul_u32_u24 v{so}, {PITCH}, v{G}"); b.e(f"v_lshl_add_u32 v{so}, v{J}, 4, v{so}")
            b.e(f"s_mul_i32 s39, s38, {2*PITCH}"); b.e("s_lshl_b32 s36, s37, 8"); b.e("s_add_u32 s39, s39, s36"); b.e("s_add_u32 s39, s39, 16384")
            b.e("s_lshl_b32 s36, s28, 11"); b.e("s_add_u32 s39, s39, s36")
            b.e("s_lshr_b32 s36, s29, 2"); b.e("s_xor_b32 s36, s36, s94"); b.e("s_and_b32 s36, s36, 1"); b.e("s_lshl_b32 s36, s36, 13"); b.e("s_add_u32 s39, s39, s36")
            b.e(f"s_add_u32 s40, s39, {4*PITCH}")
            b.e("s_lshl_b32 s36, s29, 1"); spread(b, 41, 36); b.e("s_lshl_b32 s36, s37, 16"); b.e("s_add_u32 s41, s41, s36")
        if which == 2: lsrd(b, 16, oX1P, XSZ)
    def cost(x): return sum(8 if y.startswith("ds_") else 4 for y in x.split("\n"))
    def group(F, rd, r0, ex, fixed={}, zero=False):
        n = MT * NT; ex = [x if isinstance(x, tuple) else (x, -1) for x in ex]; done = 0
        order = [(nt, mt if nt % 2 == 0 else MT - 1 - mt) for nt in range(NT) for mt in range(MT)]
        need = sum(cost(x) for x, _ in ex) + 8 * len(rd) + sum(cost(x) for l in fixed.values() for x in l)
        cap = max(12, -(-need // (4 * n)) * 4)
        for k, (nt, mt) in enumerate(order):
            cc = A_(mt, nt)
            if str(which) not in os.environ.get("NOMF", ""): a.e(f"v_mfma_f32_16x16x32_bf16 {vr(cc,4)}, {vr(F+4*(MT+nt),4)}, {vr(F+4*mt,4)}, {0 if zero else vr(cc,4)}")
            b_ = cap - sum(cost(x) for x in fixed.get(k, [])); nv = 0
            if k >= r0 and done < len(rd): a.e(rd[done]); done += 1; b_ -= 8
            while ex and ex[0][1] < done and (cost(ex[0][0]) <= b_ or k == n - 1) and not (nv >= (1 if rd else 2) and ex[0][0].startswith("v_") and cap == 12 and k < n - 1):
                x = ex.pop(0)[0]; a.e(x); b_ -= cost(x); nv += x.startswith("v_")
            for x in fixed.get(k, []): a.e(x)
        assert done == len(rd) and not ex
    NR_ = MT + 2 * NT; BP = eval(os.environ.get("BP", "{3:3,4:2}")).get(which, 0)
    def stage(ex=(), ey=(), lim=NS-1, late=False, zero=False, pre=()):
        if str(which) in os.environ.get("GST", "") or os.environ.get("JIT"): mstamp(a, True)
        if which == 3: last = {0: NR_ - 1, 1: NR_ - 3}
        else: last = {i: MT + 2 * i + 1 for i in range(4)}
        book = ["s_add_u32 s42, s42, 16384", f"s_cmp_eq_u32 s42, {NA*16384}", "s_cselect_b32 s42, 0, s42",
                f"s_add_u32 s48, s48, {STB}", f"s_cmp_eq_u32 s48, {NW*STB}", "s_cselect_b32 s48, 0, s48", (f"v_add_u32 v{aa}, s42, v{a0}", MT - 1)]
        book += sorted([(f"v_add_u32 v{wa+i}, s48, v{w0+i}", last[i]) for i in range(nwr)], key=lambda x: x[1])
        n = MT * NT
        group(fX, reads(fY, 1), 0, book[:7] + list(ex) + book[7:], {3: [f"s_waitcnt lgkmcnt({min(15, NR_ - MT - 4 + 4)})"], 7: ["s_waitcnt lgkmcnt(8)"], n - 1: [f"s_waitcnt lgkmcnt({NR_ - MT - 2})"]}, zero)
        if late:
            b_ = Rec(); ep_setup(b_)
            group(fY, [], 0, ["s_add_u32 s43, s43, 1"] + b_.l, {min(BP, 3): ["s_waitcnt lgkmcnt(0)"]})
            if B0E: publish(a, ST_G2S, 4, pt, ctr=48)
            a.e("s_barrier")
            for x in reads(fX, 0): a.e(x)
            a.e(f"s_waitcnt lgkmcnt({NR_ - MT - 2})")
            return
        group(fY, reads(fX, 0), BP + 1, list(ey) + ["s_add_u32 s43, s43, 1", f"s_cmp_lt_u32 s43, {lim}"],
              {BP - 1: list(pre), BP: ["s_waitcnt lgkmcnt(0)", "s_barrier"], n - 1: [f"s_waitcnt lgkmcnt({NR_ - MT - 2})"]})
    w00 = c["S0"] * STB
    if which <= 2:
        def wrd(p, b): return [f"ds_read_b64_tr_b16 {vr((fX, fY)[p]+16*kk+4*nt+2*h,2)}, v{w0+nt} offset:{b*STB + wpos(nt, kk, h)[1]}" for kk in range(2) for nt in range(4) for h in range(2)]
        def dmf(b, fill, lo=0, hi=16):
            k = 0
            for kk in range(2):
                for nt in range(4):
                    for mt in ((0, 1) if nt % 2 == 0 else (1, 0)):
                        if lo <= k < hi:
                            a.e(f"v_mfma_f32_16x16x32_bf16 {vr(A_(mt,nt),4)}, {vr((fX, fY)[b&1]+16*kk+4*nt,4)}, {vr(AB+16*b+8*kk+4*mt,4)}, {vr(A_(mt,nt),4)}")
                            for x in fill[k]: a.e(x)
                        k += 1
        def spreadf(l, lo, hi):
            f = [[] for _ in range(16)]
            for i, x in enumerate(l): f[lo + i * (hi - lo) // len(l)].append(x)
            return f
        a.e("s_mov_b32 s43, 0"); ep_setup(a)
        CK = str(which) in DP; ck_ = aa
        def check(b):
            B = AB + 16 * b
            if which == 2: return [f"v_bitop3_b32 v{ck_}, v{B}, v{B+4}, v{B+8} bitop3:0x80", f"v_bitop3_b32 v{ck_}, v{ck_}, v{B+12}, s60 bitop3:0x2a", f"v_cmp_ne_u32 vcc, 0, v{ck_}"]
            return [f"v_or3_b32 v{ck_}, v{B}, v{B+4}, v{B+8}", f"v_bitop3_b32 v{ck_}, v{ck_}, v{B+12}, 1 bitop3:0xa8", f"v_cmp_ne_u32 vcc, 0, v{ck_}"]
        L = a.lab("dm"); allp = [x for b in range(4) for kk in range(2) for x in aload(b, kk)][:14]
        if CK:
            NSP = 4 * eval(os.environ.get("NSP", "(0,1,1)"))[which]; NSP = min(NSP, 14); GF = eval(os.environ.get("GFIRST", "(0,0,0)"))[which]
            a.e("s_mov_b32 s53, 0"); a.e("s_mov_b32 s49, s44")
            if which == 2:
                a.e("s_barrier")
                a.e("s_cmp_eq_u32 s60, 0"); a.e(f"s_cbranch_scc1 {L}z")
            for x in wrd(0, 0): a.e(x)
            if GF: a.e(f"s_sleep {GF}")
            a.e(f"{L}p:")
            for x in allp[:NSP]: a.e(x + ("" if SC in x else SC))
            a.e(f"s_waitcnt vmcnt({NSP - 4})")
            for x in check(0): a.e(x)
            a.e(f"s_cbranch_vccz {L}q"); a.e(f"s_sleep {os.environ.get('GNAP', '2')}")
            a.e("s_add_u32 s53, s53, 1"); a.e("s_cmp_lt_u32 s53, s61"); a.e(f"s_cbranch_scc1 {L}p"); a.e("s_mov_b32 s61, 0")
            a.e(f"{L}q:")
            mstamp(a)
            for x in allp[NSP:]: a.e(x)
            a.e("s_waitcnt lgkmcnt(0)")
            if which == 2:
                a.e(f"s_branch {L}"); a.e(f"{L}z:")
                for x in allp[:8] + wrd(0, 0) + allp[8:]: a.e(x)
                a.e("s_waitcnt vmcnt(10) lgkmcnt(0)")
                mstamp(a)
        else:
            a.e("s_waitcnt lgkmcnt(0)"); a.e("s_barrier")
            for x in allp[:8] + wrd(0, 0) + allp[8:]: a.e(x)
            a.e("s_waitcnt vmcnt(10) lgkmcnt(0)")
            mstamp(a)
        a.e(f"{L}:")
        for b in range(4):
            rd = wrd(1 - (b & 1), (b + 1) & 3); ex = [[] for _ in range(16)]
            ex[0], ex[1] = [[x] for x in aload((b - 1) & 3, 1)]
            if b == 0:
                for i, x in enumerate(["s_mov_b32 s44, s45", "s_mov_b32 s45, s46", "s_mov_b32 s46, s47", f"s_mov_b32 s47, {OOB}"]): ex[2 + i].append(x)
            if b == 2:
                ex[2].append("s_add_u32 s43, s43, 1"); ex[3].append("s_cmp_eq_u32 s43, 4")
                for nt, g_ in enumerate((11, 12, 13, 15)): ex[g_].append(f"v_add_u32 v{w0+nt}, {4*STB}, v{w0+nt}")
            if b == 3 and CK: ex[2].append("s_mov_b32 s49, s44")
            ex[7].append("s_waitcnt lgkmcnt(8)")
            ex[8], ex[9] = [[x] for x in aload(b, 0)]
            ex[10].append("s_waitcnt vmcnt(10)")
            if CK:
                for i, x in enumerate(check((b + 1) & 3)): ex[11 + i].append(x)
            fill = [rd[i:i+1] + ex[i] for i in range(16)]
            fill[14] = rd[14:16] + ex[14]; fill[15] = ex[15] + ["s_waitcnt lgkmcnt(8)"]
            if CK: fill[15] += [f"s_cbranch_vccnz {L}f{b}", f"{L}g{b}:"]
            if b == 2: fill[15].append(f"s_cbranch_scc1 {L}x")
            if b == 3: fill[15].append(f"s_branch {L}")
            dmf(b, fill)
        for b in range(4 if CK else 0):
            nb = (b + 1) & 3
            a.e(f"{L}f{b}:"); a.e("s_cselect_b32 s50, 1, 0")
            a.e(f"{L}h{b}:"); a.e(f"s_sleep {os.environ.get('GNAP', '2')}")
            for j in range(4):
                bb = (nb + j) & 3
                for kk in range(2 if j < 3 else 1):
                    for x in aload(bb, kk): a.e(x.replace("s44", "s49" if bb >= nb else "s44") + ("" if SC in x else SC))
            a.e("s_waitcnt vmcnt(10)")
            for x in check(nb): a.e(x)
            a.e("s_add_u32 s53, s53, 1"); a.e("s_cmp_ge_u32 s53, s61"); a.e("s_cselect_b32 s61, 0, s61"); a.e(f"s_cbranch_scc1 {L}k{b}")
            a.e(f"s_cbranch_vccnz {L}h{b}")
            a.e(f"{L}k{b}:"); a.e("s_cmp_eq_u32 s50, 1"); a.e(f"s_branch {L}g{b}")
        a.e(f"{L}x:")
    else:
        if which == 3:
            a.e(f"v_mov_b32 v{aa}, v{a0}")
            a.e("s_mov_b32 s42, 0"); a.e("s_mov_b32 s43, 0"); a.e(f"s_mov_b32 s48, {w00}")
            for i in range(nwr): a.e(f"v_add_u32 v{wa+i}, {w00}, v{w0+i}")
        if not (which == 3 and B0E): a.e("s_waitcnt lgkmcnt(0)"); a.e("s_barrier")
        mstamp(a)
        for x in reads(fX, 0): a.e(x)
        a.e(f"s_waitcnt lgkmcnt({NR_ - MT - 2})")
    if which == 4:
        def st2(j): return [(x, 0) for x in [f"s_add_u32 s36, s44, {j*224*1024}", f"buffer_store_dwordx4 {vr(C2R+4*j,4)}, v{l16}, s[16:19], s36 offen {SC}",
                            f"s_add_u32 s36, s45, {j*224*1024}", f"buffer_store_dwordx2 {vr(C2R+16+2*j,2)}, v{SO3}, s[16:19], s36 offen {SC}"]]
        assert PBB in (1, 2) and PC0 >= 2
        for st_ in range(2): stage(st2(2 * st_), st2(2 * st_ + 1), zero=st_ == 0, pre=[f"s_waitcnt vmcnt({4 * st_ + 2})"] if PBB == st_ + 1 else [])
        CW = 0
        if PC0 > 3:
            L0 = a.lab("mm"); a.e(f"{L0}:"); stage(lim=PC0); a.e(f"s_cbranch_scc1 {L0}")
        elif PC0 == 3: stage()
    if which == 3 and os.environ.get("PEEL3", "1") == "1": stage(late=True, zero=True)
    if which > 2:
        L = a.lab("mm"); a.e(f"{L}:")
        stage(pre=[f"s_waitcnt vmcnt({CW})"] if which == 4 else [])
        a.e(f"s_cbranch_scc1 {L}")
    b0 = Rec()
    if which == 4:
        a.e("s_cmp_eq_u32 s60, 1"); a.e("s_cbranch_scc1 G4_last")
        if not RPC: r_pre(b0)
    if which == 1:
        for mt in range(MT):
            for p in range(NT // 2): b0.e(f"buffer_load_dwordx4 {vr(RES2+(mt*(NT//2)+p)*4,4)}, v{LO+mt}, s[8:11], s41 offen offset:{p*1024} {SC}")
    early = True
    XW = {3: [f"s_waitcnt lgkmcnt({min(15, NR_ - MT)})"], 7: ["s_waitcnt lgkmcnt(8)"]}
    if which <= 2: dmf(3, spreadf(b0.l, 0, 8), 0, 8)
    else: group(fX, reads(fY, 1), 0, b0.l, XW)
    a.e("s_waitcnt lgkmcnt(0)")
    if which not in DL: a.e("s_barrier")
    b = Rec()
    if which in (1, 3):
        for nt in range(NT): b.e(f"ds_read_b128 {vr(cs+4*nt,4)}, v{t} offset:{nt*64}")
        if which == 3:
            for mt in range(MT): b.e(f"ds_read_b128 {vr(lns+4*mt,4)}, v{t2} offset:{mt*256}")
            for i in range(4): b.e(f"v_mov_b32 v{w0+i}, v{G4W+i}"); b.e(f"v_add_u32 v{wa+i}, {CFG[4]['S0']*CFG[4]['STB']}, v{G4W+i}")
            b.e("s_mov_b32 s42, 0"); b.e("s_mov_b32 s43, 0"); b.e(f"s_mov_b32 s48, {CFG[4]['S0']*CFG[4]['STB']}"); b.e(f"v_mov_b32 v{aa}, v{a0}")
            assert fY + 16 == RFO; r_addr(b)
        else:
            for mt in range(MT): b.e(f"ds_read_b64 {vr(lns+2*mt,2)}, v{t2} offset:{mt*256}")
    if which == 2: lsrd(b, 44, oST2, 24576)
    if which == 4:
        b.e(f"s_mul_i32 s36, s31, {oP1-oP0}"); b.e(f"s_add_u32 s36, s36, {oP0}")
        b.e("s_add_u32 s16, s62, s36"); b.e("s_addc_u32 s17, s63, 0"); b.e(f"s_mov_b32 s18, {XSZ}"); b.e("s_mov_b32 s19, 0x20000")
    if which <= 2: dmf(3, spreadf(b.l, 8, 15), 8, 16)
    else: group(fY, [], 0, b.l)
    mstamp(a)
    if which in (1, 3):
        AB = v(2 * MT, 2) if which == 1 else fY + 4
        def consts():
            for mt in range(MT if which == 1 else 0):
                r = lns + 2 * mt + 1
                a.e(f"v_mul_f32 v{AB+2*mt}, {f32(GC1)}, v{r}"); a.e(f"v_mul_f32 v{AB+2*mt+1}, v{r}, v{r}")
                a.e(f"v_mul_f32 v{AB+2*mt+1}, v{AB+2*mt+1}, v{AB+2*mt}"); a.e(f"v_mul_f32 v{AB+2*mt+1}, {f32(0.044715)}, v{AB+2*mt+1}")
                a.e(f"v_rcp_f32 v{r}, v{r}")
        def act(mt, nt):
            A = A_(mt, nt); P_ = [(A, tp), (A + 2, tp + 2)]; L_ = vr(lns + 2 * mt, 2); K_ = vr(AB + 2 * mt, 2)
            if which == 3: L_ = vr(lns + 4 * mt, 2); K_ = vr(lns + 4 * mt + 2, 2)
            for h in range(2):
                a.e(f"v_pk_fma_f32 {vr(A+2*h,2)}, {L_}, {vr(cs+4*nt+2*h,2)}, {vr(A+2*h,2)} op_sel_hi:[0,1,1] neg_lo:[1,0,0] neg_hi:[1,0,0]")
            for x, u in P_: a.e(f"v_pk_mul_f32 {vr(u,2)}, {vr(x,2)}, {vr(x,2)}")
            for x, u in P_: a.e(f"v_pk_fma_f32 {vr(u,2)}, {vr(u,2)}, {K_}, {K_} op_sel:[0,1,0] op_sel_hi:[1,1,0]")
            for x, u in P_: a.e(f"v_pk_mul_f32 {vr(u,2)}, {vr(u,2)}, {vr(x,2)}")
            for i in range(4): a.e(f"v_exp_f32 v{tp+i}, v{tp+i}")
            for x, u in P_: a.e(f"v_pk_fma_f32 {vr(u,2)}, {vr(u,2)}, {L_}, {L_} op_sel:[0,1,1] op_sel_hi:[1,1,1]")
            for i in range(4): a.e(f"v_rcp_f32 v{tp+i}, v{tp+i}")
            for x, u in P_: a.e(f"v_pk_mul_f32 {vr(x,2)}, {vr(x,2)}, {vr(u,2)}")
        def egroup(par, mt, nts, dst=None):
            for nt in nts: act(mt, nt)
            T = par * NT + nts[0]; P = (T >> 1) - ((par * NT) >> 1); B = A_(mt, nts[0]); D = B if dst is None else dst
            for k in range(2 * len(nts)): a.e(f"v_cvt_pk_bf16_f32 v{D+k}, v{B+2*k}, v{B+2*k+1}")
            if which == 3 and mt < 3 and "1" in DP: mark(a, D, 1)
            if which == 1 and "2" in DP: a.e(f"v_and_or_b32 v{D}, v{D}, -2, s60")
            if which == 3: return [f"s_add_u32 s36, s{44+P}, {mt*224*1024}", f"buffer_store_dwordx4 {vr(B,4)}, v{l16}, s[16:19], s36 offen {SC}"]
            return [f"buffer_store_dwordx4 {vr(B,4)}, v{so}, s[16:19], s{39+P} offen offset:{mt*256} {SC}"]
        def body(par):
            if which == 1: gs = [(0, 1), (2, 3)]
            else: gs = [(0, 1), (2, 3), (4, 5), (6,)] if par == 0 else [(1, 2), (3, 4), (5, 6), (0,)]
            k = 0; pend = []; sent = 0
            for gi_, g_ in enumerate(gs):
                for mt in range(MT):
                    if which == 3 and k == C0PUB:
                        a.e(f"s_waitcnt vmcnt({sent - 4})"); a.e("s_mov_b64 exec, 1"); a.e(f"ds_add_u32 v{EA+2}, v{EA+1}"); a.e("s_mov_b64 exec, -1"); mstamp(a)
                    if which == 3 and k == RK:
                        b_ = Rec(); r_pre(b_); l_ = [x for x in b_.l if x.startswith(("buffer", "s_mov_b32 s78"))]
                        a.e("s_cmp_eq_u32 s60, 1"); a.e(f"s_cbranch_scc1 G4_p1{par}")
                        for x in l_: a.e(x)
                        a.e(f"s_branch G4_p2{par}"); a.e(f"G4_p1{par}:")
                        for x in last_res(): a.e(x)
                        a.e(f"G4_p2{par}:")
                        if 4 <= k < C0PUB: sent += 8
                    st_ = egroup(par, mt, g_, None if gi_ < 2 else C2R + 4 * mt if gi_ == 2 else C2R + 16 + 2 * mt); k += 1
                    if which == 3 and gi_ < 3:
                        a.e(f"ds_write_b128 v{EA}, {vr(A_(mt, g_[0]) if gi_ < 2 else C2R + 4 * mt, 4)} offset:{gi_*16384 + mt*2048}")
                    if gi_ < 2: pend.append(st_)
                    n = len(pend) if (which == 1 or k <= 4 or k == 16) else 0 if k <= STQ else min(1, len(pend))
                    for _ in range(n):
                        for x in pend.pop(0): a.e(x)
                        sent += 1
            if which == 3:
                a.e("s_waitcnt lgkmcnt(0)")
                if par == 0: a.e("s_mov_b32 s44, s46"); a.e("s_mov_b32 s45, s47")
                else: a.e("s_add_u32 s45, s44, 512"); a.e("s_mov_b32 s44, s47")
        a.e("s_waitcnt lgkmcnt(0)")
        consts()
        if which == 3:
            a.e("s_cmp_eq_u32 s35, 1"); a.e(f"s_cbranch_scc1 {nm}_e1")
            body(0); a.e(f"s_branch {nm}_e2"); a.e(f"{nm}_e1:"); body(1); a.e(f"{nm}_e2:")
        else: body(0)
    if which == 2:
        xf = v(2, 2); S = v(2 * MT, 2); pp = v(2, 2); mn = v(2, 2)
        for mt in range(MT):
            a.e(f"s_add_u32 s36, s39, {mt*65536}")
            for p in range(NT // 2):
                R = res + (mt * (NT // 2) + p) * 4
                for e in range(4):
                    X = A_(mt, 2 * p) + 2 * e
                    a.e(f"v_cvt_pk_bf16_f32 v{R+e}, v{X}, v{X+1}")
                if DP: mark(a, R, 0)
                a.e(f"buffer_store_dwordx4 {vr(R,4)}, v{l16}, s[16:19], s36 offen offset:{p*1024} {SC}")
        if which in DL: a.e("s_barrier")
        if OWN3:
            a.e("s_lshl_b32 s36, s37, 11"); a.e(f"v_add_u32 v{t2}, s36, v{l16}")
            for i in range(4): a.e(f"ds_write_b128 v{t2}, {vr(res+4*i,4)} offset:{1024*i}")
        for i in range(MT * NT * 2): unpack(a, acc + 2 * i, acc + 2 * i + 1, res + i)
        mstamp(a)
        publish(a, which, 4, pt)
        if B0E: a.e("s_waitcnt lgkmcnt(0)"); a.e("s_barrier")
        mstamp(a)
        for mt in range(MT):
            B = A_(mt, 0); Sm = S + 2 * mt
            a.e(f"v_pk_add_f32 {vr(pp,2)}, {vr(B,2)}, {vr(B+2,2)}"); a.e(f"v_pk_mul_f32 {vr(xf,2)}, {vr(B,2)}, {vr(B,2)}")
            for i in range(1, NT * 2):
                if i > 1: a.e(f"v_pk_add_f32 {vr(pp,2)}, {vr(pp,2)}, {vr(B+2*i,2)}")
                a.e(f"v_pk_fma_f32 {vr(xf,2)}, {vr(B+2*i,2)}, {vr(B+2*i,2)}, {vr(xf,2)}")
            a.e(f"v_add_f32 v{Sm}, v{pp}, v{pp+1}"); a.e(f"v_add_f32 v{Sm+1}, v{xf}, v{xf+1}")
            for op in ("v_permlane16_swap_b32", "v_permlane32_swap_b32"):
                for k in range(2): a.e(f"v_mov_b32 v{pp+k}, v{Sm+k}")
                for k in range(2): a.e(f"{op} v{Sm+k}, v{pp+k}")
                a.e(f"v_pk_add_f32 {vr(Sm,2)}, {vr(Sm,2)}, {vr(pp,2)}")
        a.e(f"v_cmp_eq_u32 vcc, 0, v{G}"); a.e(f"v_cndmask_b32 v{S}, v{S+2}, v{S}, vcc"); a.e(f"v_cndmask_b32 v{S+1}, v{S+3}, v{S+1}, vcc")
        spread(a, 40, 29); a.e("s_lshl_b32 s36, s34, 8"); a.e("s_add_u32 s40, s40, s36")
        a.e(f"v_lshlrev_b32 v{t2}, 3, v{lane}")
        a.e("s_bfm_b64 exec, 32, 0")
        a.e(f"buffer_store_dwordx2 {vr(S,2)}, v{t2}, s[44:47], s40 offen {SC}")
        a.e("s_mov_b64 exec, -1")
    if which == 4:
        for mt in range(MT):
            a.e(f"s_add_u32 s36, s39, {mt*65536}")
            for p in range(NT // 2):
                B = A_(mt, 2 * p)
                for e in range(4): a.e(f"v_cvt_pk_bf16_f32 v{B+e}, v{B+2*e}, v{B+2*e+1}")
                if "r" in DP: mark(a, B, 1)
                a.e(f"buffer_store_dwordx4 {vr(B,4)}, v{l16}, s[16:19], s36 offen offset:{p*1024} {SC}")
    if which != 2:
        if which in DL: a.e("s_barrier")
        mstamp(a)
        if which == 1 and "2" in DP: a.e("s_cmp_lg_u32 s60, 0"); a.e("s_cbranch_scc1 G1_np")
        if which != 3 and not (which == 4 and "r" in DP): publish(a, which, 4, pt)
        if which == 1 and "2" in DP: a.e("G1_np:")
        mstamp(a)
    if which == 4:
        a.e("s_branch NEXT")
        a.e("G4_last:")
        PX = 208; oa = 224; xf = 226
        group(fX, reads(fY, 1), 0, [(f"s_load_dwordx2 s[6:7], s[0:1], {D_OUT}", 9)], XW)
        a.e("s_waitcnt lgkmcnt(0)")
        b = Rec()
        lsrd(b, 16, oX1P if "f" in DP else MB, XSZ)
        b.srd(20, 6, 4 * MB)
        if "f" not in DP:
            b.e("s_lshl_b32 s44, s29, 2"); b.e("s_add_u32 s44, s44, s30"); b.e("s_lshl_b32 s44, s44, 7"); b.e("s_xor_b32 s45, s44, 4096")
            b.e("s_add_u32 s44, s44, s55"); b.e(f"s_add_u32 s44, s44, {oFP}"); b.e("s_add_u32 s45, s45, s55"); b.e(f"s_add_u32 s45, s45, {oFP}")
            b.e(f"v_mov_b32 v{pt+1}, s45"); b.e(f"v_mov_b32 v{pt+2}, s52"); b.e(f"v_mov_b32 v{pt+3}, 0")
        else: b.e("s_add_u32 s44, s40, 65536")
        b.e("s_lshl_b32 s46, s28, 3"); b.e("s_add_u32 s46, s46, s37"); b.e("s_lshl_b32 s47, s31, 1"); b.e("s_add_u32 s46, s46, s47"); b.e("s_lshl_b32 s46, s46, 15")
        b.e("s_lshl_b32 s47, s38, 5"); b.e("s_add_u32 s46, s46, s47"); b.e(f"s_add_u32 s47, s46, {16*2048}")
        b.e(f"v_and_b32 v{oa+1}, 1, v{G}"); b.e(f"v_lshlrev_b32 v{oa}, 11, v{J}"); b.e(f"v_lshl_add_u32 v{oa}, v{oa+1}, 5, v{oa}")
        b.e(f"v_lshrrev_b32 v{oa+1}, 1, v{G}"); b.e(f"v_lshl_add_u32 v{oa}, v{oa+1}, 4, v{oa}")
        FULLN = os.environ.get("FULLN", "1") == "1"
        if FULLN:
            b.e(f"v_cmp_gt_u32 s[48:49], 8, v{J}")
            b.e(f"v_lshrrev_b32 v{oa+1}, 3, v{J}"); b.e(f"v_mul_u32_u24 v{oa+1}, {8*2048 - 64}, v{oa+1}"); b.e(f"v_sub_u32 v{oa}, v{oa}, v{oa+1}")
            b.e(f"v_add_u32 v{oa+1}, {8*2048}, v{oa}")
        group(fY, [], 0, b.l)
        mstamp(a)
        a.e("s_cmp_eq_u32 s31, 0"); a.e("s_cbranch_scc1 G4_k0")
        for i in range(32): a.e(f"v_swap_b32 v{acc+i}, v{acc+32+i}")
        a.e("G4_k0:")
        for i in range(2):
            a.e(f"s_add_u32 s36, s41, {i*65536}")
            for p in range(2):
                B = A_(2 + i, 2 * p)
                for e in range(4): a.e(f"v_cvt_pk_bf16_f32 v{B+e}, v{B+2*e}, v{B+2*e+1}")
                if "f" in DP: mark(a, B, 1)
                a.e(f"buffer_store_dwordx4 {vr(B,4)}, v{l16}, s[16:19], s36 offen offset:{p*1024} {SC}")
        def addp(k, R):
            B = A_(k >> 1, 2 * (k & 1))
            for e in range(4):
                unpack(a, xf + 2 * (e & 1), xf + 1 + 2 * (e & 1), R + e)
                a.e(f"v_pk_add_f32 {vr(B+2*e,2)}, {vr(B+2*e,2)}, {vr(xf+2*(e&1),2)}")
        for k in range(4): addp(k, RX[2 * k])
        if "f" not in DP:
            a.e("s_waitcnt vmcnt(0)")
            a.e("s_mov_b64 exec, 1"); a.e(f"buffer_store_dword v{pt+2}, v{pt+3}, s[56:59], s44 offen {SC}"); a.e("s_mov_b64 exec, -1")
        mstamp(a)
        for k in range(4): addp(k, RX[2 * k + 1])
        if "f" in DP:
            data_poll(a, [f"buffer_load_dwordx4 {vr(PX+4*(2*i+p),4)}, v{l16}, s[16:19], s{(40, 44)[i]} offen offset:{p*1024} {SC}" for i in range(2) for p in range(2)],
                      [PX + 4 * k for k in range(4)], t, int(os.environ.get("FNAP", "2")), 0, int(os.environ.get("FCAN", "0")))
            mstamp(a)
        else:
            poll_core(a, pt, [pt + 1], 1, nap=2)
            mstamp(a)
            for i in range(2):
                a.e(f"s_add_u32 s36, s40, {i*65536}")
                for p in range(2): a.e(f"buffer_load_dwordx4 {vr(PX+4*(2*i+p),4)}, v{l16}, s[16:19], s36 offen offset:{p*1024} {SC}")
        for k in range(4):
            if "f" not in DP: a.e(f"s_waitcnt vmcnt({3 - (k & 1) if FULLN else 3})")
            addp(k, PX + 4 * k)
            B = A_(k >> 1, 2 * (k & 1))
            if os.environ.get("EPS"):
                for e in range(8): a.e(f"v_mul_f32 v{B+e}, {f32(1 + float(os.environ['EPS']) * (1 if e & 1 else -1))}, v{B+e}")
            for e in range(4): a.e(f"v_cvt_pk_bf16_f32 v{B+e}, v{B+2*e}, v{B+2*e+1}")
            for e in range(2): a.e(f"v_permlane16_swap_b32 v{B+e}, v{B+2+e}")
            if not FULLN: a.e(f"buffer_store_dwordx4 {vr(B,4)}, v{oa}, s[20:23], s{46+(k>>1)} offen offset:{64*(k&1)} {os.environ.get('OS', '')}")
            elif k & 1:
                X, Y, T = B - 8, B, B + 4
                for e in range(4): a.e(f"v_cndmask_b32 v{T+e}, v{X+e}, v{Y+e}, s[48:49]")
                for e in range(4): a.e(f"v_mov_b32_dpp v{X+4+e}, v{T+e} row_ror:8 row_mask:0xf bank_mask:0xf")
                for e in range(4): a.e(f"v_cndmask_b32 v{X+e}, v{X+4+e}, v{X+e}, s[48:49]"); a.e(f"v_cndmask_b32 v{Y+e}, v{Y+e}, v{X+4+e}, s[48:49]")
                a.e(f"buffer_store_dwordx4 {vr(X,4)}, v{oa}, s[20:23], s{46+(k>>1)} offen {SC}")
                a.e(f"buffer_store_dwordx4 {vr(Y,4)}, v{oa+1}, s[20:23], s{46+(k>>1)} offen {SC}")
        a.e("s_branch K_fin")
    assert v.hi <= {1: RES2, 2: RES2, 3: RYY, 4: 176}[which], v.hi
    return v.hi

def k_mega(a):
    nm = KNAME; a.begin_kernel(nm)
    a.e("s_cmp_ge_u32 s2, 256"); a.e("s_cbranch_scc1 K_end")
    a.e(f"s_load_dwordx8 s[8:15], s[0:1], {A_K}"); a.e(f"s_load_dwordx2 s[6:7], s[0:1], {A_Q}"); a.e(f"s_load_dwordx8 s[68:75], s[0:1], {B_W1}")
    a.e(f"s_load_dwordx2 s[4:5], s[0:1], {D_WS}"); a.e(f"s_load_dwordx2 s[84:85], s[0:1], {D_DBG}"); a.e("s_memrealtime s[46:47]")
    a.e(f"s_load_dwordx2 s[96:97], s[0:1], {A_SSMD}")
    a.e("v_lshrrev_b32 v1, 6, v0"); a.e("v_readfirstlane_b32 s30, v1")
    if CODEPF:
        a.e("s_getpc_b64 s[48:49]"); a.e("K_pc:")
        a.e("s_lshr_b32 s36, s2, 3"); a.e("s_lshl_b32 s36, s36, 11")
        a.e("v_lshlrev_b32 v4, 2, v0"); a.e("v_add_u32 v4, s36, v4")
        a.e("v_cmp_gt_u32 vcc, K_end-K_pc-8, v4"); a.e("s_and_saveexec_b64 s[36:37], vcc"); a.e("s_cbranch_execz K_3")
        a.e("v_mov_b32 v5, s49"); a.e("v_add_co_u32 v4, vcc, s48, v4"); a.e("v_addc_co_u32 v5, vcc, 0, v5, vcc")
        a.e("global_load_dword v250, v[4:5], off")
        a.e("K_3:"); a.e("s_mov_b64 exec, -1")
    for _ in range(int(os.environ.get("SDELAY", "0"))): a.e("s_sleep 127")
    front_loads(a)
    a.e("v_and_b32 v1, 63, v0"); a.e("v_lshlrev_b32 v2, 4, v1"); a.e("v_lshlrev_b32 v3, 2, v1")
    a.e("s_and_b32 s32, s2, 7"); a.e("s_lshr_b32 s33, s2, 3")
    a.e("s_and_b32 s28, s32, 2"); a.e("s_lshr_b32 s34, s32, 2"); a.e("s_or_b32 s28, s28, s34")
    a.e("s_lshl_b32 s28, s28, 2"); a.e("s_and_b32 s34, s33, 3"); a.e("s_add_u32 s28, s28, s34")
    a.e("s_and_b32 s31, s32, 1"); a.e("s_lshr_b32 s33, s33, 2")
    a.e("s_lshl_b32 s29, s31, 3"); a.e("s_add_u32 s29, s29, s33")
    if MAP == 8:
        a.e("s_lshr_b32 s33, s2, 3")
        a.e("s_and_b32 s28, s33, 4"); a.e("s_lshl_b32 s28, s28, 1"); a.e("s_and_b32 s34, s32, 4"); a.e("s_or_b32 s28, s28, s34"); a.e("s_and_b32 s34, s33, 3"); a.e("s_or_b32 s28, s28, s34")
        a.e("s_and_b32 s29, s32, 3"); a.e("s_lshl_b32 s29, s29, 2"); a.e("s_lshr_b32 s33, s33, 3"); a.e("s_or_b32 s29, s29, s33")
        a.e("s_lshr_b32 s31, s29, 3"); a.e("s_and_b32 s33, s29, 7")
    if MAP == 2:
        a.e("s_lshr_b32 s33, s2, 3")
        a.e("s_and_b32 s28, s32, 2"); a.e("s_lshl_b32 s28, s28, 2"); a.e("s_and_b32 s34, s32, 4"); a.e("s_or_b32 s28, s28, s34")
        a.e("s_and_b32 s34, s32, 1"); a.e("s_lshl_b32 s34, s34, 1"); a.e("s_or_b32 s28, s28, s34"); a.e("s_and_b32 s34, s33, 1"); a.e("s_or_b32 s28, s28, s34")
        a.e("s_lshr_b32 s29, s33, 1"); a.e("s_lshr_b32 s31, s29, 3"); a.e("s_and_b32 s33, s29, 7")
    a.e({4: "s_lshl_b32 s67, s33, 1", 8: "s_lshl_b32 s67, s33, 2", 2: "s_mov_b32 s67, s29"}[MAP]); a.e(f"s_and_b32 s67, s67, {int(os.environ.get('RMASK', '0'))}")
    a.e(f"s_xor_b32 s99, s29, {os.environ.get('G1X', '1')}")
    a.e("s_mov_b32 s60, 0"); a.e("s_mov_b32 s61, 40000"); a.e("s_mov_b32 s52, 0")
    a.e("s_mov_b32 s55, 0"); a.e("s_mov_b32 s92, 0"); a.e("s_mov_b32 s93, 0"); a.e("s_mov_b32 s94, 0")
    a.srd(56, 4, HSB)
    if os.environ.get("FIXT"): a.e("s_mov_b32 s101, s46")
    r_addr(a)
    a.e(f"s_add_u32 s62, s4, {LB0}"); a.e("s_addc_u32 s63, s5, 0")
    if STAMP:
        a.e("s_mov_b32 s66, 1"); a.e("v_mov_b32 v255, -1"); a.e("s_mov_b32 s95, 0"); a.e("v_writelane_b32 v255, s46, 0")
    mstamp(a)
    if os.environ.get("WBENCH"):
        a.e("s_waitcnt vmcnt(0)"); a.e("s_barrier")
        a.e("s_cmp_lt_u32 s30, 6"); a.e("s_cbranch_scc1 WB_end")
        for w in (1, 2, 3, 4):
            mstamp(a); w_setup(a, w); a.e("s_waitcnt vmcnt(0)"); mstamp(a); a.e("s_sleep 40")
        a.e("WB_end:"); a.e("s_branch K_dump")
    front_a(a); mstamp(a)
    for r in range(238, 248): a.e(f"v_mov_b32 v{r}, 0")
    a.e("s_cmp_ge_u32 s30, 4"); a.e("s_cbranch_scc1 FR_b")
    front_conv(a); hi = 0
    mstamp(a)
    front_arrive(a, True)
    a.e("s_branch FR_end")
    a.e("FR_b:")
    front_b(a)
    a.e("FR_end:")
    mstamp(a)
    a.e("LAYER:")
    if os.environ.get("XDELAY"): a.e(f"s_sleep {os.environ['XDELAY']}")
    hi = max(hi, r_stage(a, False))
    mstamp(a)
    a.e("s_cmp_ge_u32 s30, 4"); a.e("s_cbranch_scc1 LOADERS")
    if CPRIO: a.e(f"s_setprio {CPRIO}")
    for w in (1, 2, 3, 4):
        a.lines.append(f"; ---- G{w}: compute waves (set-up, K loop, epilogue, publish)")
        hi = max(hi, g_compute(a, w))
    a.e("LOADERS:")
    if SB[2]:
        a.e("s_cmp_lg_u32 s60, 0"); a.e("s_cbranch_scc1 LD_0"); sb(a, SB[2]); a.e("LD_0:")
    if PRIO: a.e(f"s_setprio {PRIO}")
    a.e("s_cmp_ge_u32 s30, 6"); a.e("s_cbranch_scc1 WLOAD")
    for w in (1, 2, 3, 4): a_loader(a, w)
    a.e("s_branch NEXT")
    a.e("WLOAD:")
    a.e("s_cmp_eq_u32 s60, 1"); a.e("s_cbranch_scc1 WL_1")
    w_setup(a, 1, pre=False); w1_slots(a, range(9 - W1G), pace=12); mstamp(a)
    a.e("s_branch WL_2")
    a.e("WL_1:")
    w_setup(a, 1, pre=False); w1_slots(a, range(3 - W1L), pace=12)
    a.e("WL_2:")
    for w in (1, 2, 3, 4):
        w_loader(a, w)
        if w == 2:
            c = CFG[3]; w_setup(a, 3, pre=False); a.e(f"s_mov_b32 s42, {(c['S0'] + 2) % c['NW'] * c['STB']}"); a.e("s_mov_b32 s44, 2")
        if w == 3: w_setup(a, 4)
    a.e("NEXT:")
    a.e("s_setprio 0")
    a.e("s_add_u32 s60, s60, 1"); a.e(f"s_add_u32 s55, s55, {LSTR}")
    a.e(f"s_add_u32 s62, s62, {LSTR}"); a.e("s_addc_u32 s63, s63, 0")
    a.e("s_branch LAYER")
    a.e("K_fin:")
    if os.environ.get("FIXT"):
        a.e("FX_l:"); a.e("s_sleep 4"); a.e("s_memrealtime s[64:65]"); a.e("s_waitcnt lgkmcnt(0)"); a.e("s_sub_u32 s64, s64, s101")
        if os.environ.get("FIX0"): a.e("s_add_u32 s64, s64, s101"); a.e("s_lshl_b32 s64, s64, 6"); a.e("s_sub_u32 s64, s64, s52"); a.e("s_lshr_b32 s64, s64, 6")
        a.e(f"s_cmp_lt_u32 s64, {os.environ['FIXT']}"); a.e("s_cbranch_scc1 FX_l")
    if STAMP:
        a.e("K_dump:")
        a.e("s_waitcnt vmcnt(0)")
        mstamp(a)
        a.srd(96, 4, 16 * MB, off=200 * MB)
        a.e("s_lshl_b32 s66, s2, 3"); a.e("s_add_u32 s66, s66, s30"); a.e("s_lshl_b32 s66, s66, 8")
        a.e("v_writelane_b32 v255, s95, 63")
        a.e("buffer_store_dword v255, v3, s[96:99], s66 offen")
        if os.environ.get("DBGOUT"):
            a.e("s_cmp_lg_u32 s66, 0"); a.e("s_cbranch_scc1 K_end")
            a.e(f"s_load_dwordx2 s[96:97], s[0:1], {D_DBG}"); a.e("s_mov_b32 s98, 64"); a.e("s_waitcnt lgkmcnt(0)")
            a.e("v_readlane_b32 s64, v255, 0"); a.e("v_mov_b32 v10, 0")
            for i, j in enumerate(eval(os.environ["DBGOUT"])):
                a.e(f"v_readlane_b32 s65, v255, {j}"); a.e("s_sub_u32 s65, s65, s64"); a.e("v_mov_b32 v11, s65")
                a.e(f"buffer_store_dword v11, v10, s[96:99], 0 offen offset:{8+4*i}")
    a.e("s_endpgm")
    emit_subs(a)
    a.e("K_end:")
    assert hi <= PV
    a.end_kernel(nm, 256)
    if TAB: tab_data(a)
    a.launches.append(f"; @launch grid=(256,1,1) block=(512,1,1) lds={LDS_TOTAL}")

HEADER = open("interleave_layers__ssm_conv_h3__mixer_s_mlp__prompt.s.ref").read().split("; Override launch")[0]
DOC = """; One persistent kernel, 256 workgroups x 8 waves (one per CU), generated by dev/gen26.py.
"""
def main(out):
    a = Asm()
    k_mega(a)
    DS = os.environ.get("DS")
    if DS:
        o = []
        for l in a.lines:
            o.append(l)
            if "buffer_store_dwordx" in l and "sc1" in l and any(k in l for k in DS.split(",")): o.append(l.replace(" sc1", ""))
        a.lines = o
    notes = {
        "K_pc:": "each workgroup reads 2 KB of this kernel's code so that later instruction fetches are served on chip",
        "KV_t0:": "k / v / tap loads of the u^T tile (64 times x 128 channels); workgroup 0 has posted the launch tag (a clock value) in d_debug",
        "HB_2:": "u^T tile out, arrival counters initialised to the tag, shifted filter copies into LDS, LayerNorm(q)",
        "CV_w:": "long causal convolution as Toeplitz MFMAs, one channel per wave",
        "FR_b:": "waves 4-7 beside the convolution: memory-locality vote (timed loads, layout choice only), weight column sums, weight touches",
        "LAYER:": "row stage: residual sums, LayerNorm chain, x + LN(x)*y for 8 rows per workgroup",
        "LOADERS:": "waves 4,5: activation tiles by LDS-DMA (after the producers' counters are complete)",
        "WLOAD:": "waves 6,7: weight tiles by LDS-DMA in their original layout (read back with transposing LDS loads)",
        "G4_last:": "last layer: the two K halves exchange half tiles, add the residuals and write the output",
    }
    o = []
    for l in a.lines:
        if l.strip() in notes: o.append("; ---- " + notes[l.strip()])
        if l.strip().startswith("s_sleep"): l += "    ; back-off inside a wait loop"
        o.append(l)
    a.lines = o
    open(out, "w").write(a.text(HEADER + DOC))
    print("nops added:", a.nops_added)

if __name__ == "__main__":
    main(sys.argv[1] if len(sys.argv) > 1 else "interleave_layers__ssm_conv_h3__mixer_s_mlp__prompt.s")
```

```python
import sys, os, math, struct
sys.path.insert(0, "dev")
from asmgen import Asm

KNAME = "interleave_layers__ssm_conv_h3__mixer_s_mlp__prompt_kernel"
MB = 1 << 20
UT, Y = 24 * MB, 28 * MB
CSP = {1: 20 * MB, 3: 20 * MB + 128 * 1024}
A_Q, A_K, A_V, A_SH, A_SSMK, A_SSMD, B_X, B_W1, B_W2, B_W3, B_W4, D_OUT, D_DBG, D_WS = [8 * i for i in range(14)]
STAMP = int(os.environ.get("STAMP", "0"))
def f32(x): return "0x%08x" % struct.unpack("<I", struct.pack("<f", x))[0]
GC1 = -2.0 * math.sqrt(2.0 / math.pi) * math.log2(math.e)
GC2 = GC1 * 0.044715

class VA:
    def __init__(self, start=1): self.n = start; self.hi = start
    def __call__(self, cnt=1, al=None):
        if al is None: al = 2 if cnt > 1 else 1
        self.n = (self.n + al - 1) // al * al
        r = self.n; self.n += cnt; self.hi = max(self.hi, self.n); return r
def vr(b, n): return f"v[{b}:{b+n-1}]" if n > 1 else f"v{b}"

def unpack(a, lo, hi, src):
    a.e(f"v_lshlrev_b32 v{lo}, 16, v{src}")
    a.e(f"v_and_b32 v{hi}, 0xffff0000, v{src}")
RND = int(os.environ.get("RND", "0"))
def round2(a, x, y, tmp):
    if not RND: return
    a.e(f"v_cvt_pk_bf16_f32 v{tmp}, v{x}, v{y}")
    unpack(a, x, y, tmp)
def round1(a, x):
    if not RND: return
    a.e(f"v_cvt_pk_bf16_f32 v{x}, v{x}, v{x}")
    a.e(f"v_lshlrev_b32 v{x}, 16, v{x}")
def red_g(a, x, t):
    a.e(f"v_mov_b32 v{t}, v{x}"); a.e(f"v_permlane16_swap_b32 v{x}, v{t}"); a.e(f"v_add_f32 v{x}, v{x}, v{t}")
    a.e(f"v_mov_b32 v{t}, v{x}"); a.e(f"v_permlane32_swap_b32 v{x}, v{t}"); a.e(f"v_add_f32 v{x}, v{x}, v{t}")
def ln_finish(a, mean, var, rs, s=None):
    round1(a, mean); round1(a, var)
    a.e(f"v_add_f32 v{var}, {f32(1e-5)}, v{var}"); round1(a, var)
    if not RND and s is None: a.e(f"v_rsq_f32 v{rs}, v{var}"); return
    a.e(f"v_sqrt_f32 v{var}, v{var}"); round1(a, var)
    if s is not None: a.e(f"v_mov_b32 v{s}, v{var}")
    a.e(f"v_rcp_f32 v{rs}, v{var}")


FLG = 22 * MB + int(os.environ.get("FOFF", "0"))
LB0, LSTR, GSTR = 32 * MB, 4 * MB, 16 * MB
oH2 = 4 * MB; oSM = oH2 + 1792 * 1024; oFP = 16384; oST2 = oSM + 32768; oLNS = oSM + 65536
oX3, oX1P, oP0, oP1 = [i * 512 * 1024 for i in range(4)]
DP = os.environ.get("DP", "rf12")
if "r" in DP: oP0, oP1 = oX3, oX1P
def mark(a, r, bit): a.e(f"v_or_b32 v{r}, 1, v{r}" if bit else f"v_and_b32 v{r}, -2, v{r}")
def data_poll(a, loads, regs, t, nap, first=0, canary=False):
    L = a.lab("dp"); D = a.lab("dq")
    if canary:
        a.e("s_bfm_b64 exec, 1, 63"); data_poll(a, loads, regs, t, nap, first); a.e("s_mov_b64 exec, -1"); first = 0
    a.e("s_mov_b32 s53, 0")
    if first: a.e(f"s_sleep {first}")
    a.e(f"{L}:")
    for x in loads: a.e(x)
    a.e("s_waitcnt vmcnt(0)")
    a.e(f"v_bitop3_b32 v{t}, v{regs[0]}, v{regs[1]}, v{regs[2]} bitop3:0x80"); a.e(f"v_bitop3_b32 v{t}, v{t}, v{regs[3]}, 1 bitop3:0x80")
    a.e(f"v_cmp_eq_u32 vcc, 0, v{t}"); a.e(f"s_cbranch_vccz {D}")
    a.e(f"s_sleep {nap}")
    a.e("s_add_u32 s53, s53, 1"); a.e("s_cmp_lt_u32 s53, s61"); a.e(f"s_cbranch_scc1 {L}")
    a.e("s_mov_b32 s61, 0")
    a.e(f"{D}:")
XSZ = 512 * 1024 - 8192; H2SZ = 1792 * 1024 - 8192
HSB = 160 * MB; PITCH = 65536 + int(os.environ.get("SKEW", "0")); oHS = None
def fso(stage): return int(stage * 256)
def spread(a, d, src):
    a.e(f"s_lshr_b32 s53, s{src}, 3"); a.e("s_lshl_b32 s53, s53, 14"); a.e(f"s_and_b32 s{d}, s{src}, 7"); a.e(f"s_lshl_b32 s{d}, s{d}, 10"); a.e(f"s_add_u32 s{d}, s{d}, s53")
ST_R, ST_G1, ST_G2, ST_G3, ST_G4, ST_R2, ST_G3B, ST_G3A = range(8); ST_G2S = 5.5
F_KVT, F_FRONT, F_CS = FLG, FLG + 32768, FLG + 49152
LDS_TOTAL = 163840
AUX = LDS_TOTAL - 4096
SC = "sc1"
PSLEEP = int(os.environ.get("PSLEEP", "5"))
ROT = int(os.environ.get("ROT", "1"))
PACE = int(os.environ.get("PACE", "8"))
PDEPTH = int(os.environ.get("PDEPTH", "1"))
WROT = int(os.environ.get("WROT", "1"))
PRIO = int(os.environ.get("PRIO", "0"))
STQ = int(os.environ.get("STQ", "12"))
CPRIO = int(os.environ.get("CPRIO", "0"))
FSLEEP = int(os.environ.get("FSLEEP", "3"))
CSPRIO = int(os.environ.get("CSPRIO", "1"))
NT = os.environ.get("NT", "nt"); HALO = int(os.environ.get("HALO", "0")); NTK = os.environ.get("NTK", "" if HALO else NT); NTH = os.environ.get("NTH", NT)
W1F = int(os.environ.get("W1F", "7"))
WSC = eval(os.environ.get("WSC", "{}"))
TLBW = int(os.environ.get("TLBW", "0"))
T12 = eval(os.environ.get("T12", "{}"))
T23 = eval(os.environ.get("T23", "()"))
OWN3 = int(os.environ.get("OWN3", "1"))
PUB2 = int(os.environ.get("PUB2", "4"))
MAP = int(os.environ.get("MAP", "4"))
HSPLIT = int(os.environ.get("HSPLIT", "2"))
W1G = int(os.environ.get("W1G", "9"))
PWAIT = int(os.environ.get("PWAIT", "8"))
DL = eval(os.environ.get("DL", "[2,4]"))
PACES = eval(os.environ.get("PACES", "{4:6}"))
C0PUB = int(os.environ.get("C0PUB", "6"))
LNSL = AUX + 1024

CFG = {1: dict(WM=4, WN=1, MT=2, NT=4, KBT=32, NS=16, NA=1.5, NW=16, A=oX3, W=B_W1, LDW=2048),
       2: dict(WM=4, WN=1, MT=2, NT=4, KBT=32, NS=16, NA=0, NW=16, A=oHS, W=B_W2, LDW=2048),
       3: dict(WM=2, WN=2, MT=4, NT=7, KBT=32, NS=16, NA=3, NW=3, A=oX1P, W=B_W3, LDW=7168, NPRE=2, WR=1, S0=2, WB=73728),
       4: dict(WM=2, WN=2, MT=4, NT=4, KBT=112, NS=28, NA=3, NW=6, A=oH2, W=B_W4, LDW=2048)}
for w, d in eval(os.environ.get("CFG", "{}")).items(): CFG[w].update(d)
for c in CFG.values():
    c.setdefault("NPRE", c["NW"]); c.setdefault("APRE", min(c["NA"], 3)); c.setdefault("WR", 1)
    c["TN16"] = c["WN"] * c["NT"]; c["STB"] = c["TN16"] * 2048; c.setdefault("WB", int(c["NA"] * 16384)); c.setdefault("S0", 0)
    c["RB"] = c["TN16"] * 32
    assert c["WB"] + c["NW"] * c["STB"] <= AUX
NX = 0
def nib(t): return sum(x << (4 * i) for i, x in enumerate(t))
CSO = {1: AUX + 3584, 3: AUX}

LW = AUX + 3072
def mstamp(a, force=False):
    if os.environ.get("JIT"):
        X = a.lab("jit")
        a.e("s_cselect_b32 s101, 1, 0"); a.e("s_memtime s[64:65]"); a.e("s_waitcnt lgkmcnt(0)"); a.e(f"s_and_b32 s64, s64, {os.environ['JIT']}"); a.e("s_cmp_lg_u32 s64, 0")
        a.e(f"s_cbranch_scc1 {X}"); a.e("s_sleep 50"); a.e(f"{X}:"); a.e("s_cmp_eq_u32 s101, 1")
        return
    if not STAMP or (os.environ.get("GST") and not force): return
    a.e(("s_memrealtime" if STAMP == 2 else "s_memtime") + " s[64:65]"); a.e("s_mov_b32 s100, m0"); a.e("s_mov_b32 m0, s66"); a.e("s_waitcnt lgkmcnt(0)")
    a.e("v_writelane_b32 v255, s64, m0"); a.e("s_mov_b32 m0, s100")
    a.e("s_add_u32 s66, s66, 1")

def lsrd(a, d, off, nbytes, prev=False):
    if prev:
        a.e(f"s_sub_u32 s{d}, s62, {LSTR - off:#x}"); a.e(f"s_subb_u32 s{d+1}, s63, 0")
        a.e(f"s_mov_b32 s{d+2}, {nbytes:#x}"); a.e(f"s_mov_b32 s{d+3}, 0x20000")
    else: a.srd(d, 62, nbytes, off=off)

def hs_srd(a, d):
    if "2" in DP: a.srd(d, 4, 128 * PITCH, off=HSB); return
    a.e("s_lshl_b32 s53, s60, 24"); a.e(f"s_add_u32 s53, s53, {HSB}")
    a.e(f"s_add_u32 s{d}, s4, s53"); a.e(f"s_addc_u32 s{d+1}, s5, 0"); a.e(f"s_mov_b32 s{d+2}, {128*PITCH}"); a.e(f"s_mov_b32 s{d+3}, 0x20000")

def group_off(a, d, m):
    a.e(f"s_lshr_b32 s53, s{m}, 3"); a.e("s_lshl_b32 s53, s53, 2"); a.e(f"s_and_b32 s54, s{m}, 3"); a.e("s_add_u32 s53, s53, s54"); a.e("s_lshl_b32 s53, s53, 24")
    a.e(f"s_lshr_b32 s54, s{m}, 2"); a.e("s_xor_b32 s54, s54, s94"); a.e("s_and_b32 s54, s54, 1"); a.e("s_lshl_b32 s54, s54, 13")
    a.e(f"s_add_u32 s{d}, s53, s54"); a.e(f"s_add_u32 s{d}, s{d}, {LB0}")

PV = 240
def poll_core(a, t, addrs, mask, extra=None, depth=1, cnt=0, nap=None):
    L = a.lab("poll"); D = a.lab("pok")
    n = len(addrs) + (1 if extra else 0)
    if depth > 1: t0 = t; regs = [PV + k * len(addrs) for k in range(depth)]; assert not extra and regs[-1] + len(addrs) <= 256
    else: regs = [t]
    def ld(r):
        for i, ad in enumerate(addrs): a.e(f"buffer_load_dword v{r+i}, v{ad}, s[56:59], 0 offen {SC}")
        if extra: a.e(extra[0])
    a.e("s_mov_b32 s53, 0"); a.e(f"s_add_u32 s54, s52, {cnt}")
    if mask != -1: a.e(f"s_bfm_b64 exec, {mask.bit_length()}, 0")
    for r in regs[:-1]: ld(r); a.e(f"s_sleep {PSLEEP}")
    a.e(f"{L}:")
    for k in range(depth):
        ld(regs[k - 1]); r = regs[k]
        a.e(f"s_waitcnt vmcnt({n*(depth-1)})")
        for i in range(len(addrs)): a.e(f"v_xor_b32 v{r+i}, s54, v{r+i}")
        for i in range(1, len(addrs)): a.e(f"v_or_b32 v{r}, v{r}, v{r+i}")
        if extra:
            for x in extra[1:]: a.e(x)
        a.e(f"v_cmp_eq_u32 vcc, 0, v{r}")
        a.e("s_cmp_eq_u64 vcc, exec"); a.e(f"s_cbranch_scc1 {D}")
        a.e(f"s_sleep {PSLEEP if nap is None else nap}")
    a.e("s_add_u32 s53, s53, 1"); a.e("s_cmp_lt_u32 s53, s61"); a.e(f"s_cbranch_scc1 {L}")
    a.e("s_mov_b32 s61, 0")
    a.e(f"{D}:")
    if mask != -1: a.e("s_mov_b64 exec, -1")

SPLIT = {ST_G1: "sign", ST_G3: "half", ST_G3A: "half", ST_G3B: "half"}
def flag_addr(a, r, stage, prev=False):
    so = fso(stage) - (LSTR if prev else 0)
    a.e(f"s_add_u32 s54, s55, {so & 0xffffffff:#x}")
    sp = SPLIT.get(stage)
    if sp == "half": a.e("s_lshl_b32 s53, s31, 7"); a.e("s_add_u32 s54, s54, s53")
    a.e(f"v_mov_b32 v{r}, s54")
    if sp == "sign":
        a.e("s_add_u32 s53, s54, 128"); a.e(f"v_writelane_b32 v{r}, s53, 1")
        a.e("s_add_u32 s53, s53, s93"); a.e(f"v_writelane_b32 v{r}, s53, 3")
        a.e("s_add_u32 s53, s54, s92"); a.e(f"v_writelane_b32 v{r}, s53, 2")
        return 0xf, 8
    return 1, 8 if sp else 16
def own_wait(a, stage, prev, t):
    if not PWAIT or stage == ST_R: return
    k = {ST_G1: 1, ST_G2: 2, ST_G4: 3}[stage] - (3 if prev else 0)
    a.e(f"s_mul_i32 s54, s60, {2 if 'r' in DP else 3}"); a.e(f"s_add_u32 s54, s54, {k}")
    lds_spin(a, LW + 56, "s54", t, nap=PWAIT)
def flag_try(a, r, ad):
    a.e("s_mov_b64 exec, 1"); a.e(f"buffer_load_dword v{r}, v{ad}, s[56:59], 0 offen {SC}"); a.e("s_mov_b64 exec, -1")
def flag_check(a, r, ad, cnt):
    D = a.lab("fok")
    a.e(f"v_readfirstlane_b32 s53, v{r}"); a.e(f"s_add_u32 s54, s52, {cnt}"); a.e("s_cmp_eq_u32 s53, s54"); a.e(f"s_cbranch_scc1 {D}")
    poll_core(a, r, [ad], 1, cnt=cnt)
    a.e(f"{D}:")

def poll(a, stage, t, prev=False):
    D = a.lab("pdone")
    a.e("s_cmp_lg_u32 s30, 4"); a.e(f"s_cbranch_scc1 {D}")
    if stage == ST_G1 and "2" in DP: a.e("s_cmp_lg_u32 s60, 0"); a.e(f"s_cbranch_scc1 {D}")
    own_wait(a, stage, prev, t)
    mask, cnt = flag_addr(a, t + 1, stage, prev)
    poll_core(a, t, [t + 1], mask, depth=PDEPTH, cnt=cnt)
    a.e(f"{D}:")
    if stage != ST_G4: mstamp(a)
    a.e("s_barrier")

def publish(a, stage, nw, t, off=None, wait=0, ctr=None, flag=False):
    D = a.lab("pub")
    mark = PWAIT and off is None and stage in (ST_G1, ST_G2, ST_G4)
    if off is None:
        a.e(f"s_add_u32 s53, s55, {fso(stage)}"); off = 53
        sp = SPLIT.get(stage)
        if sp == "half": a.e("s_lshl_b32 s54, s31, 7"); a.e("s_add_u32 s53, s53, s54")
        if sp == "sign": a.e("s_and_b32 s54, s29, 4"); a.e("s_lshl_b32 s54, s54, 5"); a.e("s_add_u32 s53, s53, s54")
    a.e(f"v_mov_b32 v{t}, 1"); a.e(f"v_mov_b32 v{t+1}, {LW + (ctr if ctr is not None else 4 if nw == 8 else 0)}"); a.e(f"v_mov_b32 v{t+3}, 0")
    a.e("s_mov_b64 exec, 1")
    if wait is not None: a.e(f"s_waitcnt vmcnt({wait})")
    if nw > 1:
        a.e(f"ds_add_rtn_u32 v{t+2}, v{t+1}, v{t}")
        if flag: a.e(f"v_mov_b32 v{t+1}, s52")
        a.e("s_waitcnt lgkmcnt(0)")
        a.e(f"v_readfirstlane_b32 s54, v{t+2}")
        a.e(f"s_and_b32 s54, s54, {nw-1}"); a.e(f"s_cmp_lg_u32 s54, {nw-1}"); a.e(f"s_cbranch_scc1 {D}")
    if flag: a.e(f"buffer_store_dword v{t+1}, v{t+3}, s[56:59], s{off} offen {SC}")
    else: a.e(f"buffer_atomic_add v{t}, v{t+3}, s[56:59], s{off} offen {SC}")
    if stage == ST_R and not flag:
        a.e("s_cmp_lg_u32 s60, 0"); a.e(f"s_cbranch_scc1 {D}")
        a.e("s_lshl_b32 s53, s29, 7"); a.e(f"s_add_u32 s53, s53, {F_CS}")
        a.e(f"buffer_atomic_add v{t}, v{t+3}, s[56:59], s53 offen {SC}")
    if mark: a.e(f"v_mov_b32 v{t+1}, {LW+56}"); a.e(f"ds_add_u32 v{t+1}, v{t}")
    a.e(f"{D}:")
    a.e("s_mov_b64 exec, -1")

def lds_spin(a, addr, target, t, dst=53, nap=False):
    L = a.lab("spin")
    a.e(f"v_mov_b32 v{t}, {addr}")
    a.e(f"{L}:")
    if nap: a.e(f"s_sleep {int(nap)}")
    a.e(f"ds_read_b32 v{t+1}, v{t}"); a.e("s_waitcnt lgkmcnt(0)"); a.e(f"v_readfirstlane_b32 s{dst}, v{t+1}")
    a.e(f"s_cmp_ge_u32 s{dst}, {target}"); a.e(f"s_cbranch_scc0 {L}")
def lds_set(a, addr, val, t):
    a.e(f"v_mov_b32 v{t}, {addr}"); a.e(f"v_mov_b32 v{t+1}, {val}")
    a.e("s_waitcnt lgkmcnt(0)"); a.e(f"ds_write_b32 v{t}, v{t+1}")
def lbar(a, k, t):
    a.e(f"v_mov_b32 v{t}, {LW+8}"); a.e(f"v_mov_b32 v{t+1}, 1")
    a.e("s_waitcnt lgkmcnt(0)")
    a.e("s_mov_b64 exec, 1"); a.e(f"ds_add_u32 v{t}, v{t+1}"); a.e("s_mov_b64 exec, -1")
    lds_spin(a, LW + 8, 4 * k, t)

def gelu4(a, X, t, c1, c2):
    P = [(X, t), (X + 2, t + 2)]
    for x, u in P: a.e(f"v_pk_mul_f32 {vr(u,2)}, {vr(x,2)}, {vr(x,2)}")
    for x, u in P: a.e(f"v_pk_fma_f32 {vr(u,2)}, {vr(u,2)}, {vr(c2,2)}, {vr(c1,2)}")
    for x, u in P: a.e(f"v_pk_mul_f32 {vr(u,2)}, {vr(u,2)}, {vr(x,2)}")
    for i in range(4): a.e(f"v_exp_f32 v{t+i}, v{t+i}")
    for x, u in P: a.e(f"v_pk_add_f32 {vr(u,2)}, {vr(u,2)}, 1.0 op_sel_hi:[1,0]")
    for i in range(4): a.e(f"v_rcp_f32 v{t+i}, v{t+i}")
    for x, u in P: a.e(f"v_pk_mul_f32 {vr(x,2)}, {vr(x,2)}, {vr(u,2)}")

W2EARLY = int(os.environ.get("W2EARLY", "1")); QLATE = int(os.environ.get("QLATE", "0"))
TOUCH2 = [(A_Q, 4 * MB)] + ([] if W2EARLY else [(B_W2, 2 * MB)])
CODEPF = int(os.environ.get("CODEPF", "1")); NVOTE = 255; NSAMP = int(os.environ.get("NSAMP", "2"))
W4POS = os.environ.get("W4POS", "3C")
HSTR = 4160; CHB = 24576; UOFF = 4 * HSTR; US = 96
KVS = 4 * CHB

KV = dict(cq=6, tg=7, t=8, ro=9, wo=16, pt=18, kr=22, vv=36, w=44, d=52, hoff=70, tag=76, zz=78)
def front_loads(a):
    cq, tg, t, ro, wo, kr, vv, w = [KV[k] for k in "cq tg t ro wo kr vv w".split()]
    a.e(f"v_and_b32 v{cq}, 31, v0"); a.e(f"v_lshrrev_b32 v{tg}, 5, v0")
    a.e("s_and_b32 s34, s2, 7"); a.e("s_lshr_b32 s35, s2, 3")
    a.e("s_lshl_b32 s36, s35, 17"); a.e("s_lshl_b32 s37, s34, 8"); a.e("s_add_u32 s36, s36, s37")
    a.e(f"v_lshlrev_b32 v{t}, 13, v{tg}"); a.e(f"v_lshl_add_u32 v{t}, v{cq}, 3, v{t}"); a.e(f"v_add_u32 v{ro+3}, s36, v{t}")
    a.e(f"v_add_u32 v{ro+5}, 4096, v{ro+3}")
    a.e(f"s_mov_b32 s18, {4*MB}"); a.e("s_mov_b32 s19, 0x20000"); a.e("s_mov_b32 s22, s18"); a.e("s_mov_b32 s23, s19")
    a.e("s_waitcnt lgkmcnt(0)")
    tag, zz = KV["tag"], KV["zz"]
    a.e("s_mov_b32 s86, 256"); a.e("s_mov_b32 s87, 0x20000"); a.e(f"v_mov_b32 v{zz}, 0")
    a.e("s_lshl_b32 s45, s2, 3"); a.e("s_add_u32 s45, s45, s30"); a.e("s_cmp_lg_u32 s45, 4"); a.e("s_cbranch_scc1 KV_t0")
    a.e("s_lshl_b32 s44, s46, 6"); a.e("s_or_b32 s44, s44, 1"); a.e(f"v_mov_b32 v{tag}, s44")
    a.e("s_mov_b64 exec, 1"); a.e(f"buffer_store_dword v{tag}, v{zz}, s[84:87], 0 offen {SC}"); a.e("s_mov_b64 exec, -1")
    a.e("KV_t0:")
    a.e("s_mov_b64 s[16:17], s[8:9]"); a.e("s_mov_b64 s[20:21], s[10:11]")
    for i in range(4): a.e(f"buffer_load_dwordx2 {vr(kr+2*(i+3),2)}, v{ro+3+(i&2)}, s[16:19], 0 offen offset:{2048*(i&1)} {NTK}")
    for i in range(4): a.e(f"buffer_load_dwordx2 {vr(vv+2*i,2)}, v{ro+3+(i&2)}, s[20:23], 0 offen offset:{2048*(i&1)} {NT}")
    for i in range(3): a.e(f"v_subrev_u32 v{ro+i}, {2048*(3-i)}, v{ro+3}")
    a.e("s_lshl_b32 s37, s34, 10"); a.e(f"v_lshlrev_b32 v{wo}, 5, v{cq}"); a.e(f"v_add_u32 v{wo}, s37, v{wo}")
    a.srd(24, 12, 8192)
    XP = os.environ.get("XP", "g")
    for i in range(0 if "t" in XP else 2): a.e(f"buffer_load_dwordx4 {vr(w+4*i,4)}, v{wo}, s[24:27], 0 offen offset:{16*i}")
    if "g" in XP:
        a.e("s_cmp_lg_u32 s30, 4"); a.e("s_cbranch_scc1 KV_t2")
        a.e(f"buffer_load_dword v{tag}, v{zz}, s[84:87], 0 offen {SC}")
        a.e("KV_t2:")
    if "h" in XP: return
    if HALO:
        a.e("s_cmp_lg_u32 s30, 0"); a.e("s_cbranch_scc1 KV_h0"); a.e("s_bfm_b64 exec, 32, 0")
    for i in range(3): a.e(f"buffer_load_dwordx2 {vr(kr+2*i,2)}, v{ro+i}, s[16:19], 0 offen {NTK}")
    if HALO: a.e("s_mov_b64 exec, -1"); a.e("KV_h0:")

def probe_base(a):
    a.e("s_and_b32 s42, s2, 31"); a.e("s_lshl_b32 s42, s42, 8"); a.e("s_lshr_b32 s43, s2, 5"); a.e("s_lshl_b32 s43, s43, 14"); a.e("s_add_u32 s42, s42, s43")
    a.e(f"s_add_u32 s42, s42, {LB0 + oSM + 131072}")
def front_arrive(a, wait):
    D = a.lab("fa"); t = 6
    a.e("s_and_b32 s36, s2, 7"); a.e("s_lshl_b32 s36, s36, 7"); a.e(f"s_add_u32 s36, s36, {F_FRONT}")
    a.e(f"v_mov_b32 v{t}, 1"); a.e(f"v_mov_b32 v{t+1}, {LW+4}"); a.e(f"v_lshlrev_b32 v{t+3}, 10, v1")
    a.e("s_mov_b64 exec, 1")
    if wait: a.e("s_waitcnt vmcnt(0)")
    a.e("s_waitcnt lgkmcnt(0)")
    a.e(f"ds_add_rtn_u32 v{t+2}, v{t+1}, v{t}"); a.e(f"ds_read_b32 v{t+4}, v{t+1} offset:28")
    a.e("s_waitcnt lgkmcnt(0)")
    a.e(f"v_readfirstlane_b32 s54, v{t+2}"); a.e(f"v_readfirstlane_b32 s53, v{t+4}")
    a.e("s_cmp_lg_u32 s54, 15"); a.e(f"s_cbranch_scc1 {D}")
    a.e("s_mov_b64 exec, 0xffff"); a.e("s_or_b32 s53, s53, 1"); a.e(f"v_mov_b32 v{t}, s53")
    a.e(f"buffer_atomic_add v{t}, v{t+3}, s[56:59], s36 offen {SC}")
    a.e(f"{D}:"); a.e("s_mov_b64 exec, -1")
def front_a(a):
    cq, tg, t, pt, kr, vv, w, d, hoff, tag, zz = [KV[k] for k in "cq tg t pt kr vv w d hoff tag zz".split()]
    v = VA(80)
    a.e("s_and_b32 s41, s30, 3"); chan_setup(a, 41)
    a.e("s_lshr_b32 s36, s39, 1"); a.e("s_lshl_b32 s36, s36, 2"); a.e("s_load_dword s98, s[96:97], s36")
    a.e("s_lshl_b32 s36, s39, 12")
    a.e("s_add_u32 s12, s14, s36"); a.e("s_addc_u32 s13, s15, 0"); a.e("s_mov_b32 s14, 4096"); a.e("s_mov_b32 s15, 0x20000")
    a.e("s_lshr_b32 s45, s30, 2"); a.e("s_lshl_b32 s45, s45, 11")
    for it in range(3):
        if it < 2: a.e(f"s_add_u32 s36, s45, {(1024*it - 64) & 0xffffffff:#x}")
        else: a.e(f"s_mov_b32 s36, {4096 - 64}")
        a.e(f"v_add_u32 v{hoff+2*it}, s36, v2"); a.e(f"v_add_u32 v{hoff+2*it+1}, 16, v{hoff+2*it}")
    a.e("s_and_b32 s34, s2, 7"); a.e("s_lshr_b32 s35, s2, 3")
    z = v(4, 4); la = v(); t2 = v(); hw = v()
    for i in range(4): a.e(f"v_mov_b32 v{z+i}, 0")
    a.e(f"v_add_u32 v{hw}, s40, v2")
    a.e(f"ds_write_b128 v{hw}, {vr(z,4)} offset:{UOFF+64*US}")
    a.e(f"s_bfm_b64 exec, {(15*US - 1024)//16}, 0"); a.e(f"ds_write_b128 v{hw}, {vr(z,4)} offset:{UOFF+64*US+1024}"); a.e("s_mov_b64 exec, -1")
    a.e(f"v_lshlrev_b32 v{t}, 2, v{tg}"); a.e(f"v_sub_u32 v{t}, 60, v{t}")
    a.e(f"v_lshrrev_b32 v{t2}, 3, v{t}"); a.e(f"v_bfe_u32 v{la}, v{cq}, 1, 3"); a.e(f"v_xor_b32 v{t2}, v{t2}, v{la}"); a.e(f"v_lshlrev_b32 v{t2}, 4, v{t2}")
    a.e(f"v_and_b32 v{t}, 7, v{t}"); a.e(f"v_lshl_add_u32 v{t2}, v{t}, 1, v{t2}")
    a.e(f"v_lshl_add_u32 v{la}, v{cq}, 9, v{t2}"); a.e(f"v_add_u32 v{la}, {KVS}, v{la}")
    wf = v(8, 2); kf = v(14, 2); vf = v(8, 2); ks = v(8, 2); pr = v(8, 2); o = v(8, 4); tm = v(4, 1)
    a.e("s_waitcnt vmcnt(0)")
    if HALO:
        for i in range(3): a.e(f"buffer_load_dwordx2 {vr(kr+2*i,2)}, v{KV['ro']+i}, s[16:19], 0 offen {NTK}")
        if HALO == 1: a.e("s_waitcnt vmcnt(0)")
    a.e("s_cmp_lg_u32 s30, 4"); a.e("s_cbranch_scc1 KV_t1")
    if "g" not in os.environ.get("XP", "g"): a.e(f"buffer_load_dword v{tag}, v{zz}, s[84:87], 0 offen {SC}")
    a.e("KV_t1:")
    for it in range(3):
        a.e(f"buffer_load_dwordx4 {vr(d+6*it,4)}, v{hoff+2*it}, s[12:15], 0 offen {NTH}")
        a.e(f"buffer_load_dwordx2 {vr(d+6*it+4,2)}, v{hoff+2*it+1}, s[12:15], 0 offen {NTH}")
    if HALO == 2: a.e("s_waitcnt vmcnt(10)")
    mstamp(a)
    for dd in range(2):
        for c in range(2):
            unpack(a, wf + 0 + c, wf + 2 + c, w + 2 * (2 * dd + c)); unpack(a, wf + 4 + c, wf + 6 + c, w + 2 * (2 * dd + c) + 1)
        for i in range(7): unpack(a, kf + 2 * i, kf + 2 * i + 1, kr + 2 * i + dd)
        for i in range(4): unpack(a, vf + 2 * i, vf + 2 * i + 1, vv + 2 * i + dd)
        def rnd(base):
            for i in range(4): a.e(f"v_cvt_pk_bf16_f32 v{tm+i}, v{base+2*i}, v{base+2*i+1}")
            for i in range(4): unpack(a, base + 2 * i, base + 2 * i + 1, tm + i)
        for i in range(4): a.e(f"v_pk_mul_f32 {vr(ks+2*i,2)}, {vr(kf+2*i,2)}, {vr(wf+6,2)}")
        if RND: rnd(ks)
        for j in range(1, 4):
            if not RND:
                for i in range(4): a.e(f"v_pk_fma_f32 {vr(ks+2*i,2)}, {vr(kf+2*(i+j),2)}, {vr(wf+6-2*j,2)}, {vr(ks+2*i,2)}")
                continue
            for i in range(4): a.e(f"v_pk_mul_f32 {vr(pr+2*i,2)}, {vr(kf+2*(i+j),2)}, {vr(wf+6-2*j,2)}")
            rnd(pr)
            for i in range(4): a.e(f"v_pk_add_f32 {vr(ks+2*i,2)}, {vr(ks+2*i,2)}, {vr(pr+2*i,2)}")
            rnd(ks)
        for i in range(4): a.e(f"v_pk_mul_f32 {vr(ks+2*i,2)}, {vr(ks+2*i,2)}, {vr(vf+2*i,2)}")
        for c in range(2):
            e = 2 * dd + c
            a.e(f"v_cvt_pk_bf16_f32 v{o+2*e}, v{ks+6+c}, v{ks+4+c}"); a.e(f"v_cvt_pk_bf16_f32 v{o+2*e+1}, v{ks+2+c}, v{ks+c}")
            a.e(f"ds_write_b64 v{la}, {vr(o+2*e,2)} offset:{e*128}")
    a.e("s_cmp_lg_u32 s30, 4"); a.e("s_cbranch_scc1 HB_2")
    a.e(f"v_add_u32 v{pt}, {LW}, v3"); a.e(f"ds_write_b32 v{pt}, v{zz}")
    a.e("s_mov_b32 s53, 0")
    a.e("s_waitcnt vmcnt(6)")
    a.e("HB_p:")
    a.e(f"v_readfirstlane_b32 s52, v{tag}"); a.e("s_cmp_eq_u32 s52, 0"); a.e("s_cbranch_scc1 HB_r")
    a.e("s_cmp_ge_u32 s53, 400"); a.e("s_cbranch_scc1 HB_q")
    a.e("s_add_u32 s54, s46, 8192"); a.e("s_lshl_b32 s54, s54, 6"); a.e("s_sub_u32 s54, s54, s52"); a.e(f"s_cmp_lt_u32 s54, {12288*64}"); a.e("s_cbranch_scc1 HB_q")
    a.e("HB_r:")
    a.e(f"buffer_load_dword v{tag}, v{zz}, s[84:87], 0 offen {SC}"); a.e("s_waitcnt vmcnt(0)")
    a.e("s_add_u32 s53, s53, 1"); a.e("s_cmp_lt_u32 s53, s61"); a.e("s_cbranch_scc1 HB_p")
    a.e("s_mov_b32 s52, 1"); a.e("s_mov_b32 s61, 0")
    a.e("HB_q:")
    lds_set(a, LW + 12, "s52", pt)
    a.e("HB_2:")
    a.srd(16, 4, 8 * GSTR, off=LB0 + oX3)
    ra = v(); go = v(); ob = v(8, 4)
    a.e(f"v_lshrrev_b32 v{t}, 3, v0"); a.e(f"v_and_b32 v{t2}, 7, v0")
    a.e(f"v_lshlrev_b32 v{go}, 12, v{t}"); a.e(f"v_lshl_add_u32 v{go}, v{t2}, 4, v{go}")
    a.e("s_lshl_b32 s36, s34, 24"); a.e("s_sub_u32 s37, 31, s35"); a.e("s_lshl_b32 s37, s37, 7"); a.e("s_add_u32 s36, s36, s37")
    a.e(f"s_add_u32 s37, s36, {64*4096}")
    a.e(f"v_lshrrev_b32 v{ra}, 3, v{t}"); a.e(f"v_xor_b32 v{ra}, v{ra}, v{t2}"); a.e(f"v_lshlrev_b32 v{ra}, 4, v{ra}"); a.e(f"v_lshl_add_u32 v{ra}, v{t}, 7, v{ra}")
    a.e(f"v_add_u32 v{ra}, {KVS}, v{ra}"); a.e(f"v_mov_b32 v{pt}, {LW+12}")
    a.e("s_waitcnt lgkmcnt(0)"); a.e("s_barrier")
    for i in range(2): a.e(f"ds_read_b128 {vr(ob+4*i,4)}, v{ra} offset:{i*8192}")
    a.e(f"ds_read_b32 v{pt+1}, v{pt}")
    for i in range(2):
        a.e(f"s_waitcnt lgkmcnt({2-i})")
        if "1" in DP: mark(a, ob + 4 * i, 1)
        a.e(f"buffer_store_dwordx4 {vr(ob+4*i,4)}, v{go}, s[16:19], s{36+i} offen {SC}")
    a.e("s_waitcnt lgkmcnt(0)"); a.e(f"v_readfirstlane_b32 s52, v{pt+1}")
    a.e("s_cmp_lg_u32 s30, 0"); a.e("s_cbranch_scc1 KV_ni"); a.e("s_cmp_ge_u32 s35, 16"); a.e("s_cbranch_scc1 KV_ni")
    a.e(f"v_mov_b32 v{t}, s52")
    a.e("s_lshl_b32 s37, s34, 7"); a.e("s_lshl_b32 s53, s35, 10"); a.e("s_add_u32 s37, s37, s53"); a.e(f"s_add_u32 s37, s37, {F_FRONT}")
    a.e("s_mov_b64 exec, 1"); a.e(f"buffer_store_dword v{t}, v{zz}, s[56:59], s37 offen {SC}"); a.e("s_mov_b64 exec, -1")
    a.e("KV_ni:")
    a.e(f"s_cmp_ge_u32 s2, {NVOTE}"); a.e("s_cbranch_scc1 KV_n3"); a.e("s_cmp_lg_u32 s30, 5"); a.e("s_cbranch_scc1 KV_n3")
    probe_base(a)
    a.e(f"v_and_b32 v{t}, 1, v1"); a.e(f"v_lshlrev_b32 v{t}, 13, v{t}"); a.e(f"v_lshrrev_b32 v{t2}, 1, v1"); a.e(f"v_lshl_add_u32 v{t}, v{t2}, 7, v{t}")
    a.e("s_mov_b64 exec, 0xf"); a.e(f"buffer_store_dword v{t}, v{t}, s[56:59], s42 offen {SC}"); a.e("s_mov_b64 exec, -1")
    a.e("KV_n3:")
    def pubk():
        a.e("s_lshl_b32 s36, s34, 5"); a.e("s_add_u32 s36, s36, s35"); a.e("s_lshl_b32 s36, s36, 7"); a.e(f"s_add_u32 s36, s36, {F_KVT}")
        mstamp(a)
        QL = int(os.environ.get("QL", "3"))
        if QL == 2: load_q(a)
        publish(a, 0, 8, pt, off=36, flag=True, wait=4 if QL == 2 else 0)
        if QL == 3: load_q(a)
        mstamp(a)
    HF = int(os.environ.get("HF", "0"))
    if not HF: pubk()
    else: a.e("s_waitcnt vmcnt(2)")
    cc = wf; hw2 = v()
    a.e(f"v_add_u32 v{hw2}, s45, v{hw}")
    for it in range(3):
        D = d + 6 * it; c0 = cc + 12 * it; c1 = c0 + 4; c2 = c0 + 8
        for k in range(4):
            a.e(f"v_alignbit_b32 v{c0+k}, v{D+k+1}, v{D+k}, 16")
            a.e(f"v_mov_b32 v{c1+k}, v{D+k+1}")
            a.e(f"v_alignbit_b32 v{c2+k}, v{D+k+2}, v{D+k+1}, 16")
        if it == 2: a.e("s_mov_b64 exec, 0xf")
        ad, o0 = (hw2, 1024 * it) if it < 2 else (hw, 4096)
        a.e(f"ds_write_b128 v{ad}, {vr(c0,4)} offset:{o0}")
        a.e(f"ds_write_b128 v{ad}, {vr(c1,4)} offset:{HSTR+o0}")
        a.e(f"ds_write_b128 v{ad}, {vr(c2,4)} offset:{2*HSTR+o0}")
        a.e(f"ds_write_b128 v{ad}, {vr(D+2,4)} offset:{3*HSTR+o0}")
        if it == 2: a.e("s_mov_b64 exec, -1")
    if HF: pubk()
    assert v.hi <= 176
    a.e("s_waitcnt lgkmcnt(0)"); a.e("s_barrier")
def load_q(a):
    a.srd(8, 6, 4 * MB)
    for j in range(4): a.e(f"buffer_load_dwordx2 {vr(RXA+2*j,2)}, v{RRO}, s[8:11], 0 offen offset:{128*(j>>1) + 32*(j&1)} {os.environ.get('NTQ', NTH)}")
def chan_setup(a, wsg):
    a.e("s_and_b32 s38, s2, 7"); a.e("s_lshl_b32 s38, s38, 5"); a.e("s_lshr_b32 s39, s2, 3"); a.e("s_add_u32 s38, s38, s39")
    a.e("s_lshl_b32 s39, s38, 2"); a.e(f"s_add_u32 s39, s39, s{wsg}")
    a.e(f"s_mul_i32 s40, s{wsg}, {CHB}")

def touch(a, ka, nbytes, r):
    n = nbytes // 1024 // 512
    a.e(f"s_load_dwordx2 s[48:49], s[0:1], {ka}")
    a.e("s_lshl_b32 s45, s2, 1"); a.e("s_and_b32 s50, s30, 1"); a.e("s_add_u32 s45, s45, s50"); a.e(f"s_mul_i32 s45, s45, {n*1024}")
    a.e(f"s_mov_b32 s50, {nbytes}"); a.e("s_mov_b32 s51, 0x20000")
    a.e("s_waitcnt lgkmcnt(0)")
    for i in range(n):
        if i and i % 4 == 0: a.e("s_add_u32 s45, s45, 4096")
        a.e(f"buffer_load_dwordx4 {vr(r,4)}, v2, s[48:51], s45 offen offset:{(i&3)*1024}")
    return n

def w2_warm(a):
    a.e("s_mov_b64 s[48:49], s[70:71]"); a.e(f"s_mov_b32 s50, {2*MB}"); a.e("s_mov_b32 s51, 0x20000")
    a.e("s_and_b32 s45, s28, 3"); a.e("s_lshl_b32 s45, s45, 1"); a.e("s_and_b32 s46, s30, 1"); a.e("s_add_u32 s45, s45, s46"); a.e("s_lshl_b32 s45, s45, 18")
    a.e("s_lshl_b32 s46, s29, 7"); a.e("s_add_u32 s45, s45, s46"); a.e("v_lshlrev_b32 v245, 11, v1")
    a.e("buffer_load_dword v244, v245, s[48:51], s45 offen"); a.e(f"s_add_u32 s45, s45, {64*2048}"); a.e("buffer_load_dword v246, v245, s[48:51], s45 offen")
def cs_load(a, which, slot):
    w_setup(a, which, pre=False)
    a.e(f"s_mov_b32 s42, {slot}"); a.e("s_mov_b32 s44, s28")
    w_issue(a, which, direct=True)
CSEL, CFR, CAD, CACC, CSO_ = 16, 72, 144, 156, 164
def cs_prep(a, S1, S3):
    a.e(f"v_and_b32 v{CSO_}, 15, v1"); a.e(f"v_mov_b32 v{CSO_+1}, 0x3f803f80")
    for T in range(14):
        a.e(f"v_cmp_eq_u32 vcc, {T}, v{CSO_}")
        for e in range(4): a.e(f"v_cndmask_b32 v{CSEL+4*T+e}, 0, v{CSO_+1}, vcc")
    pos = {}
    for which, slot, r0, halves in ((1, S1, CAD, 1), (3, S3, CAD + 4, 2)):
        c = CFG[which]
        for hf in range(halves):
            a.e(f"s_mov_b32 s35, {hf}")
            nr, pos[which] = w_bases(a, which, r0 + 2 * hf, 35, c["TN16"] // halves, WV + 8, WV + 9)
            a.e("s_and_b32 s35, s30, 1"); a.e(f"s_mul_i32 s35, s35, {32*c['RB']}"); a.e(f"s_add_u32 s35, s35, {slot}")
            for i in range(nr): a.e(f"v_add_u32 v{r0+2*hf+i}, s35, v{r0+2*hf+i}")
    for i in range(8): a.e(f"v_mov_b32 v{CACC+i}, 0")
    a.e(f"v_lshrrev_b32 v{CSO_+2}, 4, v1"); a.e(f"v_lshlrev_b32 v{CSO_+2}, 4, v{CSO_+2}"); a.e(f"v_lshl_add_u32 v{CSO_+2}, v{CSO_}, 6, v{CSO_+2}")
    a.e(f"v_mov_b32 v{CSO_+1}, 0x7f000000")
    for k, n in ((3, 4), (4, 14)):
        a.e(f"v_cmp_gt_u32 vcc, {n}, v{CSO_}"); a.e(f"v_cndmask_b32 v{CSO_+k}, v{CSO_+1}, v{CSO_+2}, vcc")
    return pos
def cs_sum(a, which, pos):
    c = CFG[which]; ntl = c["TN16"]; N = c["LDW"] // 2
    F = CFR + (0 if which == 3 else 56); A = CACC + (0 if which == 3 else 4)
    for T in range(ntl):
        hf, nt = (T // 7, T % 7) if which == 3 else (0, T)
        for h in range(2):
            r, imm = pos[which](nt, 0, h)
            a.e(f"ds_read_b64_tr_b16 {vr(F+4*T+2*h,2)}, v{(CAD + 4 if which == 3 else CAD) + 2*hf + r} offset:{imm}")
    a.srd(20, 4, 32 * N * 4, off=CSP[which])
    a.e("s_lshl_b32 s35, s28, 1"); a.e("s_and_b32 s36, s30, 1"); a.e("s_add_u32 s35, s35, s36"); a.e(f"s_mul_i32 s35, s35, {N*4}")
    a.e(f"s_mul_i32 s36, s29, {ntl*64}"); a.e("s_add_u32 s35, s35, s36")
    a.e("s_waitcnt lgkmcnt(0)")
    for T in range(ntl): a.e(f"v_mfma_f32_16x16x32_bf16 {vr(A,4)}, {vr(F+4*T,4)}, {vr(CSEL+4*T,4)}, {vr(A,4)}")
    a.e(f"buffer_store_dwordx4 {vr(A,4)}, v{CSO_ + (4 if which == 3 else 3)}, s[20:23], s35 offen {SC}")

NOCS3 = int(os.environ.get("NOCS3", "0")); STO = os.environ.get("STOUCH", "")
def stouch(a, which, gran, nw):
    X = a.lab("st"); L = a.lab("sl"); n = 28672 // nw
    a.e("s_cmp_lg_u32 s60, 0"); a.e(f"s_cbranch_scc1 {X}")
    a.e(f"s_mul_i32 s36, s2, 28672"); a.e(f"s_and_b32 s37, s30, {nw-1}"); a.e(f"s_mul_i32 s37, s37, {n}"); a.e("s_add_u32 s36, s36, s37")
    a.e(f"s_add_u32 s34, s{66+2*which}, s36"); a.e(f"s_addc_u32 s35, s{67+2*which}, 0"); a.e("s_mov_b32 s36, 0")
    a.e(f"{L}:")
    for i in range(14): a.e(f"s_load_dword s37, s[34:35], {i*gran}")
    a.e(f"s_add_u32 s34, s34, {14*gran}"); a.e("s_addc_u32 s35, s35, 0"); a.e("s_add_u32 s36, s36, 1"); a.e(f"s_cmp_lt_u32 s36, {n // (14*gran)}"); a.e(f"s_cbranch_scc1 {L}")
    a.e("s_waitcnt lgkmcnt(0)")
    a.e(f"{X}:")
SB = eval(os.environ.get("SB", "(0,0,0)"))
SG = eval(os.environ.get("SG", "(0,0,0,0)"))
def sg(a, n):
    if not n: return
    X = a.lab("st"); L = a.lab("sl")
    a.e("s_cmp_lg_u32 s60, 0"); a.e(f"s_cbranch_scc1 {X}"); a.e("s_mov_b32 s36, 0"); a.e(f"{L}:"); sb(a, 14)
    a.e("s_add_u32 s36, s36, 1"); a.e(f"s_cmp_lt_u32 s36, {n}"); a.e(f"s_cbranch_scc1 {L}"); a.e("s_waitcnt lgkmcnt(0)"); a.e(f"{X}:"); mstamp(a)
def sb_init(a):
    nw = 2 if sum(SG) else 4
    a.e(f"s_mul_i32 s36, s2, 28672"); a.e(f"s_and_b32 s37, s30, {nw-1}"); a.e(f"s_mul_i32 s37, s37, {28672//nw}"); a.e("s_add_u32 s36, s36, s37")
    SW = 66 + 2 * int(os.environ.get("SGW", "3"))
    a.e(f"s_add_u32 s90, s{SW}, s36"); a.e(f"s_addc_u32 s91, s{SW+1}, 0")
def sb(a, n):
    for i in range(n): a.e(f"s_load_dword s101, s[90:91], {i*64}")
    if n: a.e(f"s_add_u32 s90, s90, {n*64}"); a.e("s_addc_u32 s91, s91, 0")
PUTE = int(os.environ.get("PUTE", "1"))
def front_b(a):
    pt, dm = 6, 20
    PZE = int(os.environ.get("PZE", "0"))
    if PZE:
        a.srd(20, 4, 32 * MB, off=216 * MB)
        for i in range(4): a.e(f"v_mov_b32 v{216+i}, -1")
        a.e("s_lshl_b32 s45, s2, 2"); a.e("s_and_b32 s50, s30, 3"); a.e("s_add_u32 s45, s45, s50"); a.e(f"s_mul_i32 s45, s45, {PZE*1024}")
        for i in range(PZE):
            a.e(f"buffer_store_dwordx4 v[216:219], v2, s[20:23], s45 offen {SC}"); a.e("s_add_u32 s45, s45, 1024")
    if TAB: tab_load(a)
    TE = int(os.environ.get("TE", "0"))
    if TE:
        a.e("s_cmp_ge_u32 s30, 6"); a.e("s_cbranch_scc1 FB_t1"); touch(a, B_W2, 2 * MB, dm); a.e("s_branch FB_t2"); a.e("FB_t1:"); touch(a, B_W1, 2 * MB, 200); a.e("FB_t2:")
    w_lanes(a)
    a.e("s_cmp_ge_u32 s30, 6"); a.e("s_cbranch_scc1 FB_cs")
    vd = 12
    a.e(f"s_cmp_ge_u32 s2, {NVOTE}"); a.e("s_cbranch_scc1 FB_np"); a.e("s_cmp_lg_u32 s30, 5"); a.e("s_cbranch_scc1 FB_np")
    probe_base(a); a.e(f"v_mov_b32 v{vd+2}, 0")
    a.e("s_mov_b64 exec, 1"); a.e("s_mov_b32 s46, -1"); a.e("s_mov_b32 s47, -1"); a.e("s_mov_b32 s43, 0")
    a.e("FB_ml:")
    for i in range(2):
        a.e(f"s_add_u32 s45, s42, {i * 8192}")
        a.e("s_memtime s[34:35]"); a.e("s_waitcnt lgkmcnt(0)")
        a.e(f"buffer_load_dword v{vd+1}, v{vd+2}, s[56:59], s45 offen {SC}"); a.e("s_waitcnt vmcnt(0)")
        a.e("s_memtime s[36:37]"); a.e("s_waitcnt lgkmcnt(0)")
        a.e("s_sub_u32 s36, s36, s34"); a.e(f"s_min_u32 s{46+i}, s{46+i}, s36")
    a.e("s_add_u32 s42, s42, 128"); a.e("s_add_u32 s43, s43, 1"); a.e(f"s_cmp_lt_u32 s43, {NSAMP}"); a.e("s_cbranch_scc1 FB_ml")
    a.e("s_cmp_lt_u32 s47, s46"); a.e("s_cselect_b32 s45, 1, 0")
    a.e("s_lshr_b32 s46, s28, 2"); a.e("s_xor_b32 s45, s45, s46"); a.e("s_and_b32 s45, s45, 1"); a.e("s_lshl_b32 s45, s45, 8")
    a.e("s_mov_b64 exec, -1")
    lds_set(a, LW + 32, "s45", pt)
    a.e("FB_np:")
    mstamp(a)
    a.e("s_cmp_lg_u32 s30, 4"); a.e("s_cbranch_scc1 FB_ni")
    a.e(f"v_mov_b32 v{vd}, s52")
    group_off(a, 37, 28); a.e("s_andn2_b32 s37, s37, 0x2000"); a.e("s_lshl_b32 s53, s29, 7"); a.e("s_add_u32 s37, s37, s53"); a.e(f"s_add_u32 s37, s37, {oSM}")
    a.e(f"v_and_b32 v{vd+1}, 1, v1"); a.e(f"v_lshlrev_b32 v{vd+1}, 13, v{vd+1}"); a.e(f"v_lshrrev_b32 v{vd+2}, 1, v1"); a.e(f"v_lshl_add_u32 v{vd+1}, v{vd+2}, 22, v{vd+1}")
    a.e("s_mov_b64 exec, 0xf"); a.e(f"buffer_store_dword v{vd}, v{vd+1}, s[56:59], s37 offen {SC}")
    a.e("s_cmp_lg_u32 s28, 0"); a.e("s_cbranch_scc1 FB_n2")
    a.e(f"s_add_u32 s37, s53, {F_CS}"); a.e("s_mov_b64 exec, 1"); a.e(f"buffer_store_dword v{vd}, v{vd+1}, s[56:59], s37 offen {SC}")
    a.e("FB_n2:")
    a.e("s_mov_b64 exec, -1")
    for i in range(4): a.e(f"v_mov_b32 v{vd+4+i}, {1 if i == 0 and '2' in DP else 0}")
    a.e("s_lshr_b32 s36, s2, 7"); a.e("s_lshl_b32 s36, s36, 24"); a.e(f"s_add_u32 s36, s36, {HSB}")
    a.e("s_add_u32 s20, s4, s36"); a.e("s_addc_u32 s21, s5, 0"); a.e(f"s_mov_b32 s22, {128*PITCH}"); a.e("s_mov_b32 s23, 0x20000")
    a.e("s_and_b32 s36, s2, 127"); a.e(f"s_mul_i32 s36, s36, {PITCH}"); a.e(f"s_add_u32 s36, s36, {16384 - 32}")
    a.e(f"v_and_b32 v{vd+1}, 1, v1"); a.e(f"v_lshlrev_b32 v{vd+1}, 4, v{vd+1}"); a.e(f"v_bfe_u32 v{vd+2}, v1, 1, 1"); a.e(f"v_lshl_add_u32 v{vd+1}, v{vd+2}, 13, v{vd+1}")
    a.e(f"v_bfe_u32 v{vd+2}, v1, 2, 1"); a.e(f"v_mul_u32_u24 v{vd+2}, {32768 + 32}, v{vd+2}"); a.e(f"v_add_u32 v{vd+1}, v{vd+1}, v{vd+2}")
    a.e("s_mov_b64 exec, 0xff"); a.e(f"buffer_store_dwordx4 {vr(vd+4,4)}, v{vd+1}, s[20:23], s36 offen {SC}"); a.e("s_mov_b64 exec, -1")
    a.e("FB_ni:")
    UG = (LW + 20, 4) if os.environ.get("UG", "1") == "1" else (LW + 16, 1)
    lds_spin(a, *UG, pt, nap=2)
    mstamp(a)
    if TLBW:
        a.e("s_cmp_lg_u32 s30, 4"); a.e("s_cbranch_scc1 FB_nt")
        a.e(f"s_load_dwordx2 s[8:9], s[0:1], {D_OUT}")
        a.srd(20, 4, 192 * MB)
        group_off(a, 34, 28)
        a.e("s_sub_u32 s36, s28, 1"); a.e("s_max_i32 s36, s36, 0"); group_off(a, 35, 36)
        a.e("s_add_u32 s36, s28, 1"); a.e("s_min_u32 s36, s36, 15"); group_off(a, 37, 36)
        a.e(f"v_lshlrev_b32 v{vd}, 21, v1"); a.e(f"v_add_u32 v{vd}, {HSB - 8 * 2 * MB}, v{vd}")
        for l, (r, o) in enumerate([(34, 0), (34, oP0 if TLBW == 2 else 4 * MB), (35, 0), (37, 0)]):
            for ly in range(2):
                a.e(f"s_add_u32 s36, s{r}, {o + ly * LSTR}"); a.e(f"v_writelane_b32 v{vd}, s36, {2*l+ly}")
        a.e("s_bfm_b64 exec, 20, 0"); a.e(f"buffer_{'store' if TLBW == 2 else 'load'}_dword v{dm}, v{vd}, s[20:23], 0 offen {SC}")
        a.e("s_waitcnt lgkmcnt(0)"); a.e(f"s_mov_b32 s10, {4*MB}"); a.e("s_mov_b32 s11, 0x20000")
        a.e("s_mov_b64 exec, 1"); a.e(f"buffer_load_dword v{dm+1}, v{RRO}, s[8:11], 0 offen {SC}"); a.e("s_mov_b64 exec, -1")
        a.e("FB_nt:")
    if os.environ.get("W2T", "1") == "2": lds_spin(a, LW + 24, 2, pt, nap=4)
    if os.environ.get("W2T", "1") == "3":
        w_srd(a, 2); a.e("s_lshl_b32 s39, s28, 1"); a.e("s_and_b32 s36, s30, 1"); a.e("s_add_u32 s39, s39, s36"); a.e("s_lshl_b32 s39, s39, 16"); a.e("s_lshl_b32 s36, s29, 7"); a.e("s_add_u32 s39, s39, s36")
        for i in range(4): a.e(f"buffer_load_dwordx4 {vr(dm,4)}, v{WVB[2]}, s[12:15], s39 offen"); a.e("s_add_u32 s39, s39, 16384")
    elif os.environ.get("W2T", "1") != "0" and not TE: touch(a, B_W2, 2 * MB, dm)
    QL = int(os.environ.get("QL", "3"))
    if not QL: load_q(a)
    if W4POS == "F": lds_spin(a, LW + 24, 2, pt, nap=4); a.e("s_waitcnt vmcnt(0)")
    if W4POS in ("F", "F0"): touch(a, B_W4, 7 * MB, dm)
    PZF = int(os.environ.get("PZF", "0"))
    if PZF:
        a.srd(20, 4, 32 * MB, off=216 * MB)
        for i in range(4): a.e(f"v_mov_b32 v{216+i}, -1")
        a.e("s_lshl_b32 s45, s2, 1"); a.e("s_and_b32 s50, s30, 1"); a.e("s_add_u32 s45, s45, s50"); a.e(f"s_mul_i32 s45, s45, {PZF*1024}")
        for i in range(PZF):
            a.e(f"buffer_store_dwordx4 v[216:219], v2, s[20:23], s45 offen {SC}"); a.e("s_add_u32 s45, s45, 1024")
            if os.environ.get("PZP"): a.e(f"s_waitcnt vmcnt({os.environ['PZP']})")
    front_arrive(a, True)
    if TAB: tab_make(a, 0)
    PKW = int(os.environ.get("PKW", "2")); PKP = int(os.environ.get("PKP", "8"))
    W1P = int(os.environ.get("W1P", "8")); FO = os.environ.get("FO", "1pd"); FO2 = os.environ.get("FO2", "1pd")
    R1 = [176, 188, 192] + [200 + 4 * i for i in range(7)] + [16 + 4 * i for i in range(8)]
    def w1_regs(a):
        w_srd(a, 1)
        a.e("s_and_b32 s35, s30, 3"); a.e(f"s_mul_i32 s35, s35, {18*16384}"); a.e("s_lshl_b32 s39, s99, 7"); a.e("s_add_u32 s39, s39, s35")
        for q in range(18):
            a.e(f"buffer_load_dwordx4 {vr(R1[q],4)}, v{WVB[1]}, s[12:15], s39 offen"); a.e("s_add_u32 s39, s39, 16384")
            if q % 4 == 3: sb(a, SB[1])
            if PKP and q % 4 == 3: a.e(f"s_waitcnt vmcnt({PKP})")
        if QL == 1: load_q(a)
    def w1_put(a):
        a.e("s_and_b32 s35, s30, 3"); a.e(f"s_mul_i32 s35, s35, {18*1024}"); a.e("v_add_u32 v8, s35, v2")
        if PUTE: lds_spin(a, LW + 20, 8, pt, nap=2)
        else: lds_spin(a, LW + 4, 16, pt, nap=2)
        a.e("s_waitcnt vmcnt(0)")
        for q in range(18): a.e(f"ds_write_b128 v8, {vr(R1[q],4)} offset:{CFG[1]['WB'] + 1024*q}")
        a.e("s_waitcnt lgkmcnt(0)")
    def w1_dma(a, js):
        lds_spin(a, LW + 24, 4, pt, nap=3)
        w_setup(a, 1, pre=False)
        for j in js: w1_slots(a, (j,), pace=W1P); ypause(a)
    DS_ = int(os.environ.get("DSPL", "12"))
    if PKW: lds_spin(a, LW + 24, PKW, pt, nap=4)
    for ch in FO:
        if ch == "d": w1_dma(a, range(9, DS_))
        else: call(a, {"1": w1_regs, "p": park}[ch])
    mstamp(a)
    call(a, w1_put)
    a.e("s_branch FR_end")
    a.e("FB_cs:")
    S1, S3 = KVS - CFG[1]["WB"], KVS + 8192 - CFG[3]["WB"]
    pos = cs_prep(a, S1, S3)
    lds_spin(a, *UG, pt, nap=2)
    mstamp(a)
    if not QL: load_q(a)
    cs_load(a, 1, S1)
    if not NOCS3: cs_load(a, 3, S3)
    a.e(f"s_waitcnt vmcnt({0 if NOCS3 else 14})")
    if CSPRIO: a.e(f"s_setprio {CSPRIO}")
    cs_sum(a, 1, pos)
    a.e("s_waitcnt vmcnt(1)")
    a.e(f"v_mov_b32 v{pt}, {LW+24}"); a.e(f"v_mov_b32 v{pt+1}, 1")
    a.e("s_mov_b64 exec, 1"); a.e(f"ds_add_u32 v{pt}, v{pt+1}"); a.e("s_mov_b64 exec, -1")
    mstamp(a)
    if not NOCS3: cs_sum(a, 3, pos)
    front_arrive(a, False)
    if TAB: tab_make(a, 1)
    a.e(f"v_mov_b32 v{pt}, {LW+24}"); a.e(f"v_mov_b32 v{pt+1}, 1")
    a.e("s_mov_b64 exec, 1"); a.e(f"ds_add_u32 v{pt}, v{pt+1}"); a.e("s_mov_b64 exec, -1")
    mstamp(a)
    a.e("s_setprio 0")
    assert CFG[1]["WB"] + 9 * 8192 == KVS
    for ch in FO2:
        if ch == "d": w1_dma(a, range(DS_, 16))
        else: call(a, {"1": w1_regs, "p": park}[ch])
    mstamp(a)
    call(a, w1_put)

def front_conv(a):
    v = VA(6); lane = 1; l16 = 2
    t = v(); pt = v(4, 2)
    chan_setup(a, 30)
    a.e("s_and_b32 s36, s39, 127"); a.e("s_lshl_b32 s36, s36, 12"); a.e("s_lshr_b32 s37, s39, 7"); a.e("s_lshl_b32 s37, s37, 24")
    a.e("s_add_u32 s36, s36, s37"); a.e(f"s_add_u32 s36, s36, {LB0 + oX3}")
    a.e("s_add_u32 s16, s4, s36"); a.e("s_addc_u32 s17, s5, 0"); a.e("s_mov_b32 s18, 4096"); a.e("s_mov_b32 s19, 0x20000")
    uw = v(); u = v(16, 4)
    a.e(f"v_lshrrev_b32 v{t}, 2, v{lane}"); a.e(f"v_mul_u32_u24 v{uw}, {US}, v{t}"); a.e(f"v_and_b32 v{t}, 3, v{lane}")
    a.e(f"v_lshl_add_u32 v{uw}, v{t}, 4, v{uw}"); a.e(f"v_add_u32 v{uw}, s40, v{uw}")
    aa = v(); ba = v(); ua = v(); J = v(); G = v()
    a.e(f"v_and_b32 v{J}, 15, v{lane}"); a.e(f"v_lshrrev_b32 v{G}, 4, v{lane}")
    a.e(f"v_and_b32 v{t}, 3, v{J}"); a.e(f"v_mul_u32_u24 v{aa}, {HSTR}, v{t}")
    a.e(f"v_lshl_add_u32 v{aa}, v{G}, 4, v{aa}"); a.e(f"v_lshrrev_b32 v{t}, 2, v{J}"); a.e(f"v_lshl_add_u32 v{aa}, v{t}, 3, v{aa}")
    a.e(f"v_add_u32 v{aa}, s40, v{aa}")
    a.e(f"v_sub_u32 v{t}, 15, v{J}"); a.e(f"v_mul_u32_u24 v{ua}, {US}, v{t}"); a.e(f"v_add_u32 v{ua}, s40, v{ua}")
    a.e(f"v_lshl_add_u32 v{ba}, v{G}, 4, v{ua}")
    acc = v(32, 4)
    fa = v(64, 4); fb = v(32, 4)
    def rdA(p, o):
        return [f"ds_read_b64 {vr(fa+32*p+8*s_+4*mt+2*h,2)}, v{aa} offset:{64*(o+16*s_) + 32*mt + 8*h}" for s_ in range(4) for mt in range(2) for h in range(2)]
    def rdB(p, o):
        return [f"ds_read_b128 {vr(fb+16*p+4*k,4)}, v{ba} offset:{UOFF + (48 - 16*k + o)*US}" for k in range(4)]
    for x in rdA(0, 0): a.e(x)
    dm_ = fb + 16; Dv = pt + 2
    a.e("s_bitcmp1_b32 s39, 0"); a.e("s_cselect_b32 s36, 0, 16"); a.e("s_lshl_b32 s41, s98, s36"); a.e("s_and_b32 s41, s41, 0xffff0000"); a.e("s_lshr_b32 s36, s41, 16")
    a.e(f"v_lshl_add_u32 v{t}, v{G}, 3, v{J}"); a.e(f"v_sub_u32 v{t}, 31, v{t}")
    a.e(f"v_mov_b32 v{Dv}, s36"); a.e(f"v_mov_b32 v{Dv+1}, s41"); a.e(f"v_and_b32 v{pt}, 1, v{t}"); a.e(f"v_cmp_eq_u32 vcc, 1, v{pt}")
    a.e(f"v_cndmask_b32 v{Dv}, v{Dv}, v{Dv+1}, vcc"); a.e(f"v_ashrrev_i32 v{t}, 1, v{t}")
    for mt in range(2):
        for d_ in range(4): a.e(f"v_cmp_eq_u32 vcc, {8*mt+d_}, v{t}"); a.e(f"v_cndmask_b32 v{dm_+4*mt+d_}, 0, v{Dv}, vcc")
    a.srd(12, 4, 4 * MB, off=Y)
    ta = v(); go = v()
    a.e(f"v_bfe_u32 v{t}, v{lane}, 2, 2"); a.e(f"v_mul_u32_u24 v{ta}, {CHB+64}, v{t}")
    a.e(f"v_lshrrev_b32 v{t}, 1, v{G}"); a.e(f"v_mul_u32_u24 v{t}, 72, v{t}"); a.e(f"v_add_u32 v{ta}, v{ta}, v{t}")
    a.e(f"v_and_b32 v{t}, 1, v{G}"); a.e(f"v_lshl_add_u32 v{ta}, v{t}, 5, v{ta}")
    a.e(f"v_and_b32 v{t}, 3, v{lane}"); a.e(f"v_lshl_add_u32 v{ta}, v{t}, 3, v{ta}")
    a.e(f"s_mul_i32 s36, s30, {16*72}"); a.e(f"v_add_u32 v{ta}, s36, v{ta}")
    a.e(f"v_lshlrev_b32 v{go}, 3, v{lane}")
    a.e("s_lshl_b32 s44, s38, 14"); a.e("s_lshl_b32 s37, s30, 12"); a.e("s_add_u32 s44, s44, s37")
    ya = v()
    a.e(f"s_mul_i32 s36, s30, {CHB+64}")
    a.e(f"v_mul_u32_u24 v{ya}, 72, v{J}"); a.e(f"v_lshl_add_u32 v{ya}, v{G}, 3, v{ya}"); a.e(f"v_add_u32 v{ya}, s36, v{ya}")
    a.e("s_cmp_lg_u32 s30, 0"); a.e("s_cbranch_scc1 CV_w")
    a.e("s_and_b32 s36, s2, 7"); a.e("s_lshl_b32 s36, s36, 12"); a.e(f"s_add_u32 s36, s36, {F_KVT}")
    a.e(f"v_lshlrev_b32 v{pt+1}, 7, v{lane}"); a.e(f"v_add_u32 v{pt+1}, s36, v{pt+1}")
    poll_core(a, pt, [pt + 1], 0xffffffff)
    lds_set(a, LW + 16, 1, pt)
    a.e("CV_w:")
    lds_spin(a, LW + 16, 1, pt)
    mstamp(a)
    for it in range(4): a.e(f"buffer_load_dwordx4 {vr(u+4*it,4)}, v{l16}, s[16:19], 0 offen offset:{1024*it} {SC}")
    QL = int(os.environ.get("QL", "3"))
    if not QL: load_q(a)
    for it in range(4):
        a.e(f"s_waitcnt vmcnt({(3 if QL else 7)-it})")
        a.e(f"ds_write_b128 v{uw}, {vr(u+4*it,4)} offset:{UOFF + 16*US*it}")
    a.e(f"v_mov_b32 v{pt}, {LW+20}"); a.e(f"v_mov_b32 v{pt+1}, 1")
    a.e("s_mov_b64 exec, 1"); a.e(f"ds_add_u32 v{pt}, v{pt+1}"); a.e("s_mov_b64 exec, -1")
    a.e("s_waitcnt lgkmcnt(0)")
    mstamp(a)
    for x in rdB(0, 0): a.e(x)
    for c_ in range(4):
        a.e(f"s_waitcnt lgkmcnt({3-c_})")
        for mt in range(2): a.e(f"v_mfma_f32_16x16x32_bf16 {vr(acc+8*c_+4*mt,4)}, {vr(dm_+4*mt,4)}, {vr(fb+4*c_,4)}, 0")
    def step(p, nxt, tail, piped=False):
        a.e(f"s_waitcnt lgkmcnt({10 if piped else 0})")
        mf = [(c_, s_, mt) for s_ in range(4) for mt in range(2) for c_ in range(s_, 4)]
        for i, (c_, s_, mt) in enumerate(mf):
            A = acc + 8 * c_ + 4 * mt
            a.e(f"v_mfma_f32_16x16x32_bf16 {vr(A,4)}, {vr(fa+32*p+8*s_+4*mt,4)}, {vr(fb+16*p+4*(c_-s_),4)}, {vr(A,4)}")
            if nxt: a.e(nxt.pop(0))
            if piped and i == 9: a.e("s_waitcnt lgkmcnt(10)")
            for x in tail.pop(i, []) if tail else []: a.e(x)
        assert not nxt and not tail
    a.e("s_mov_b32 s43, 0")
    NU = int(os.environ.get("NU", "4")); HP = int(os.environ.get("HP", "0"))
    if NU:
        a.e("CV_r:")
        for p in range(2):
            rd = rdB(1 - p, p + 1) + rdA(1 - p, p + 1)
            step(p, rd[:HP], [])
            for x in rd[HP:]: a.e(x)
        for x in [f"v_add_u32 v{aa}, 128, v{aa}", f"v_add_u32 v{ba}, {2*US}, v{ba}", "s_add_u32 s43, s43, 1", f"s_cmp_lt_u32 s43, {NU}"]: a.e(x)
        a.e("s_cbranch_scc1 CV_r")
    if QL == 1: load_q(a)
    a.e("CV_l:")
    step(0, rdB(1, 1) + rdA(1, 1), [], True)
    step(1, rdB(0, 2) + rdA(0, 2), {19: [f"v_add_u32 v{aa}, 128, v{aa}"], 5: [f"v_add_u32 v{ba}, {2*US}, v{ba}"], 6: ["s_add_u32 s43, s43, 1"], 7: ["s_cmp_lt_u32 s43, 8"]}, True)
    a.e("s_cbranch_scc1 CV_l")
    mstamp(a)
    a.e("s_waitcnt lgkmcnt(0)")
    for c_ in range(4):
        for mt in range(2):
            A = acc + 8 * c_ + 4 * mt; O = u + 2 * (c_ * 2 + mt)
            a.e(f"v_cvt_pk_bf16_f32 v{O}, v{A}, v{A+1}"); a.e(f"v_cvt_pk_bf16_f32 v{O+1}, v{A+2}, v{A+3}")
            a.e(f"ds_write_b64 v{ya}, {vr(O,2)} offset:{c_*16*72 + mt*32}")
    lbar(a, 1, pt)
    for i in range(8): a.e(f"ds_read_b64_tr_b16 {vr(fa+32+2*i,2)}, v{ta} offset:{144*i}")
    for i in range(8):
        a.e(f"s_waitcnt lgkmcnt({7-i})")
        a.e(f"buffer_store_dwordx2 {vr(fa+32+2*i,2)}, v{go}, s[12:15], s44 offen offset:{512*i} {SC}")
    if PUTE:
        a.e(f"v_mov_b32 v{pt}, {LW+20}"); a.e(f"v_mov_b32 v{pt+1}, 1")
        a.e("s_mov_b64 exec, 1"); a.e(f"ds_add_u32 v{pt}, v{pt+1}"); a.e("s_mov_b64 exec, -1")
    assert v.hi <= 176

PK = 48; W3S = 208
RFO, RYO, RRO, RI, RXA, RXB, RYY, RT = 196, 197, 198, 199, 180, 188, 230, 236
def r_addr(a):
    t, t2, I, fo, ro, yo = RT, RT + 1, RI, RFO, RRO, RYO
    a.e(f"v_and_b32 v{I}, 7, v0")
    a.e(f"v_lshrrev_b32 v{t}, 6, v0"); a.e(f"v_lshlrev_b32 v{t}, 4, v{t}"); a.e(f"v_bfe_u32 v{t2}, v0, 3, 3"); a.e(f"v_add_u32 v{t}, v{t}, v{t2}")
    a.e("s_lshr_b32 s78, s29, 1"); a.e("s_lshl_b32 s78, s78, 16"); a.e("s_and_b32 s79, s29, 1"); a.e("s_lshl_b32 s79, s79, 7"); a.e("s_add_u32 s78, s78, s79")
    a.e("s_lshr_b32 s79, s30, 1"); a.e("s_lshl_b32 s79, s79, 13"); a.e("s_add_u32 s78, s78, s79")
    a.e(f"v_lshlrev_b32 v{fo}, 8, v{t}"); a.e(f"v_lshl_add_u32 v{fo}, v{I}, 4, v{fo}"); a.e(f"v_add_u32 v{fo}, s78, v{fo}")
    a.e("s_lshl_b32 s78, s28, 7"); a.e("s_lshl_b32 s79, s29, 3"); a.e("s_add_u32 s78, s78, s79")
    a.e(f"v_add_u32 v{yo}, s78, v{I}"); a.e(f"v_lshlrev_b32 v{ro}, 11, v{yo}")
    a.e(f"v_lshrrev_b32 v{t2}, 2, v{t}"); a.e(f"v_lshlrev_b32 v{t2}, 3, v{t2}"); a.e(f"v_and_b32 v{t}, 3, v{t}"); a.e(f"v_add_u32 v{t}, v{t}, v{t2}")
    a.e(f"v_lshl_add_u32 v{ro}, v{t}, 3, v{ro}")
    a.e(f"v_lshlrev_b32 v{yo}, 3, v{yo}"); a.e(f"v_lshl_add_u32 v{yo}, v{t}, 14, v{yo}")
def load_y(a, skip_last=False):
    a.srd(80, 4, 4 * MB, off=Y)
    if skip_last: a.e("s_cmp_eq_u32 s60, 0"); a.e("s_cselect_b32 s82, s82, 0")
    for j in range(2):
        for hh in range(2):
            a.e(f"s_mov_b32 s78, {(16*j + 4*hh)*16384}")
            a.e(f"buffer_load_dwordx2 {vr(RYY+4*j+2*hh,2)}, v{RYO}, s[80:83], s78 offen {SC}")
def r_pre(a, l0=False):
    r_addr(a)
    lsrd(a, 84, oX3, XSZ); lsrd(a, 88, oX1P, XSZ)
    if l0: a.e("s_cmp_eq_u32 s60, 0"); a.e("s_cselect_b32 s86, s86, 0"); a.e("s_cselect_b32 s90, s90, 0")
    for j in range(2):
        a.e(f"buffer_load_dwordx4 {vr(RXA+4*j,4)}, v{RFO}, s[84:87], 0 offen offset:{2048*j} {SC}")
        a.e(f"buffer_load_dwordx4 {vr(RXB+4*j,4)}, v{RFO}, s[88:91], 0 offen offset:{2048*j} {SC}")
    load_y(a, l0)
def r_pre0(a): a.e("s_waitcnt lgkmcnt(0)"); r_pre(a, True)

def r_stage(a, final):
    v = VA(6)
    t = v(); t2 = v(); I = RI; fo = RFO; ro = RRO; pt = v(4, 2)
    xa = RXA; xb = RXB; yy = RYY; x = 206; yf = 222; w = v(16, 4); tmp = v()
    pre = final == "pre"
    S = v(2, 2); pp = v(2, 2); qq = v(2, 2); st = w; mean = v(2, 2); rs = mean + 1; var = v(); sw = v(); sr = v()
    def part(src, n):
        a.e(f"v_pk_add_f32 {vr(pp,2)}, {vr(src,2)}, {vr(src+2,2)}"); a.e(f"v_pk_mul_f32 {vr(qq,2)}, {vr(src,2)}, {vr(src,2)}")
        for i in range(1, 8):
            if i > 1: a.e(f"v_pk_add_f32 {vr(pp,2)}, {vr(pp,2)}, {vr(src+2*i,2)}")
            a.e(f"v_pk_fma_f32 {vr(qq,2)}, {vr(src+2*i,2)}, {vr(src+2*i,2)}, {vr(qq,2)}")
        a.e(f"v_add_f32 v{S}, v{pp}, v{pp+1}"); a.e(f"v_add_f32 v{S+1}, v{qq}, v{qq+1}")
        for k in range(2): a.e(f"v_add_f32_dpp v{S+k}, v{S+k}, v{S+k} row_ror:8 row_mask:0xf bank_mask:0xf")
        for op in ("v_permlane16_swap_b32", "v_permlane32_swap_b32"):
            for k in range(2): a.e(f"v_mov_b32 v{pp+k}, v{S+k}")
            for k in range(2): a.e(f"{op} v{S+k}, v{pp+k}")
            a.e(f"v_pk_add_f32 {vr(S,2)}, {vr(S,2)}, {vr(pp,2)}")
        a.e(f"ds_write_b64 v{sw}, {vr(S,2)} offset:{n*512}")
    def comb(n):
        for k in range(4): a.e(f"ds_read_b128 {vr(st+4*k,4)}, v{sr} offset:{n*512+16*k}")
        a.e("s_waitcnt lgkmcnt(0)")
        for k in range(4): a.e(f"v_pk_add_f32 {vr(st+4*k,2)}, {vr(st+4*k,2)}, {vr(st+4*k+2,2)}")
        a.e(f"v_pk_add_f32 {vr(st,2)}, {vr(st,2)}, {vr(st+4,2)}"); a.e(f"v_pk_add_f32 {vr(st+8,2)}, {vr(st+8,2)}, {vr(st+12,2)}")
        a.e(f"v_pk_add_f32 {vr(st,2)}, {vr(st,2)}, {vr(st+8,2)}")
        a.e(f"v_mul_f32 v{mean}, {f32(1/1024)}, v{st}"); a.e(f"v_mul_f32 v{var}, {f32(1/1024)}, v{st+1}")
        a.e(f"v_fma_f32 v{var}, -v{mean}, v{mean}, v{var}"); a.e(f"v_max_f32 v{var}, 0, v{var}")
    SUBM = f"{vr(mean,2)} op_sel_hi:[1,0] neg_lo:[0,1] neg_hi:[0,1]"; MULR = f"{vr(mean,2)} op_sel:[0,1] op_sel_hi:[1,1]"
    if pre: a.e("s_waitcnt lgkmcnt(0)")
    if final is not True:
        a.e(f"v_lshlrev_b32 v{sr}, 6, v{I}"); a.e(f"v_add_u32 v{sr}, {AUX+2048}, v{sr}")
        a.e(f"s_lshl_b32 s35, s30, 3"); a.e(f"v_add_u32 v{sw}, s35, v{sr}")
    if pre:
        a.e("s_waitcnt vmcnt(0)")
        for i in range(8): unpack(a, x + 2 * i, x + 2 * i + 1, xa + i)
        part(x, 0)
        a.e("s_waitcnt lgkmcnt(0)"); a.e("s_barrier")
        return
    if not final:
        a.e(f"s_cmp_eq_u32 s60, 0"); a.e(f"s_cbranch_scc1 R_l0")
    else:
        a.e(f"s_load_dwordx2 s[6:7], s[0:1], {D_OUT}")
    lsrd(a, 8, oP0, XSZ, prev=True); lsrd(a, 12, oP1, XSZ, prev=True)
    if "r" not in DP: a.e("s_waitcnt vmcnt(0)")
    for i in range(8):
        if not final: unpack(a, yf + 2 * i, yf + 2 * i + 1, yy + i)
        unpack(a, x + 2 * i, x + 2 * i + 1, xa + i); unpack(a, w + 2 * i, w + 2 * i + 1, xb + i)
        a.e(f"v_pk_add_f32 {vr(x+2*i,2)}, {vr(x+2*i,2)}, {vr(w+2*i,2)}")
    lds_ = [f"buffer_load_dwordx4 {vr(r+4*j,4)}, v{fo}, s[{q}:{q+3}], 0 offen offset:{2048*j} {SC}" for j in range(2) for r, q in ((xa, 8), (xb, 12))]
    if "r" in DP: data_poll(a, lds_, (xa, xa + 4, xb, xb + 4), t, int(os.environ.get("RNAP", "4")), int(os.environ.get("RFIRST", "24")), int(os.environ.get("RCAN", "0"))); mstamp(a)
    else:
        poll(a, ST_G4, pt, prev=True)
        mstamp(a)
        for x_ in lds_: a.e(x_)
    for i in range(8):
        if i % 4 == 0 and "r" not in DP: a.e(f"s_waitcnt vmcnt({2 - i // 2})")
        u = w + 4 * (i & 3)
        unpack(a, u, u + 1, xa + i); unpack(a, u + 2, u + 3, xb + i)
        a.e(f"v_pk_add_f32 {vr(u,2)}, {vr(u,2)}, {vr(u+2,2)}")
        a.e(f"v_pk_add_f32 {vr(x+2*i,2)}, {vr(x+2*i,2)}, {vr(u,2)}")
        if final: a.e(f"v_cvt_pk_bf16_f32 v{xa+i}, v{x+2*i}, v{x+2*i+1}")
        else: round2(a, x + 2 * i, x + 2 * i + 1, tmp)
    if final:
        a.e("s_waitcnt lgkmcnt(0)")
        a.srd(20, 6, 4 * MB)
        OS = os.environ.get("OS", "sc1")
        if os.environ.get("OWIDE", "1") == "1":
            a.e(f"v_bfe_u32 v{t}, v1, 3, 1"); a.e(f"v_cmp_eq_u32 vcc, 1, v{t}")
            for j in range(2):
                lo, hi = xa + 4 * j, xa + 4 * j + 2
                for e in range(2):
                    a.e(f"v_cndmask_b32 v{x+e}, v{hi+e}, v{lo+e}, vcc")
                for e in range(2):
                    a.e(f"v_mov_b32_dpp v{x+2+e}, v{x+e} row_ror:8 row_mask:0xf bank_mask:0xf")
                for e in range(2):
                    a.e(f"v_cndmask_b32 v{x+4+e}, v{lo+e}, v{x+2+e}, vcc"); a.e(f"v_cndmask_b32 v{hi+e}, v{x+2+e}, v{hi+e}, vcc")
                for e in range(2): a.e(f"v_mov_b32 v{lo+e}, v{x+4+e}")
            a.e(f"v_bfe_u32 v{t2}, v1, 4, 1"); a.e(f"v_lshlrev_b32 v{t}, 5, v{t}"); a.e(f"v_lshl_add_u32 v{t}, v{t2}, 4, v{t}")
            a.e(f"v_and_b32 v{t2}, 0xffffffc0, v{ro}"); a.e(f"v_add_u32 v{t}, v{t}, v{t2}")
            for j in range(2): a.e(f"buffer_store_dwordx4 {vr(xa+4*j,4)}, v{t}, s[20:23], 0 offen offset:{128*j} {OS}")
        else:
            for j in range(4): a.e(f"buffer_store_dwordx2 {vr(xa+2*j,2)}, v{ro}, s[20:23], 0 offen offset:{128*(j>>1) + 32*(j&1)} {OS}")
        return v.hi
    part(x, 0)
    a.e("s_waitcnt lgkmcnt(0)"); a.e("s_barrier")
    comb(0)
    ln_finish(a, mean, var, rs)
    lsrd(a, 20, oX3, XSZ)
    for i in range(8):
        D = w + 2 * i
        a.e(f"v_pk_add_f32 {vr(D,2)}, {vr(x+2*i,2)}, {SUBM}"); a.e(f"v_pk_mul_f32 {vr(D,2)}, {vr(D,2)}, {MULR}")
        a.e(f"v_pk_fma_f32 {vr(x+2*i,2)}, {vr(D,2)}, {vr(yf+2*i,2)}, {vr(x+2*i,2)}")
        a.e(f"v_cvt_pk_bf16_f32 v{xa+i}, v{x+2*i}, v{x+2*i+1}")
        if i % 4 == 1 and DP: mark(a, xa + i - 1, 0)
        if i % 4 == 3: a.e(f"buffer_store_dwordx4 {vr(xa+i-3,4)}, v{fo}, s[20:23], 0 offen offset:{2048*(i//4)} {SC}")
    a.e("s_branch R_s2")
    a.e("R_l0:")
    for i in range(8): unpack(a, x + 2 * i, x + 2 * i + 1, xa + i)
    part(x, 0)
    a.e("s_waitcnt lgkmcnt(0)")
    st_ = st; st = yf
    a.e(f"s_cmp_lg_u32 s30, {os.environ.get('FPW', '4')}"); a.e("s_cbranch_scc1 R_fw")
    lds_spin(a, LW + 4, 16, st, nap=int(os.environ.get("NAP4", "4")))
    a.e("s_lshl_b32 s36, s28, 10"); a.e(f"s_add_u32 s36, s36, {F_FRONT}")
    a.e(f"v_lshlrev_b32 v{st+4}, 7, v1"); a.e(f"v_add_u32 v{st+4}, s36, v{st+4}")
    a.e("s_mov_b32 s53, 0"); a.e("s_mov_b64 exec, 0xff")
    a.e("R_fp:")
    a.e(f"buffer_load_dword v{st}, v{st+4}, s[56:59], 0 offen {SC}"); a.e("s_waitcnt vmcnt(0)")
    a.e(f"v_subrev_u32 v{st}, s52, v{st}"); a.e(f"v_and_b32 v{st+1}, 0xffffc0ff, v{st}"); a.e(f"v_cmp_eq_u32 vcc, 32, v{st+1}")
    a.e("s_cmp_eq_u64 vcc, exec"); a.e("s_cbranch_scc1 R_fq")
    a.e(f"s_sleep {FSLEEP}")
    a.e("s_add_u32 s53, s53, 1"); a.e("s_cmp_lt_u32 s53, s61"); a.e("s_cbranch_scc1 R_fp")
    a.e("s_mov_b32 s61, 0")
    a.e("R_fq:")
    a.e(f"v_lshrrev_b32 v{st}, 8, v{st}"); a.e(f"v_mov_b32 v{st+1}, {LW+28}"); a.e(f"ds_add_u32 v{st+1}, v{st}")
    a.e("s_mov_b64 exec, -1"); a.e("s_waitcnt lgkmcnt(0)")
    a.e("R_fw:")
    a.e("s_barrier")
    mstamp(a)
    load_y(a)
    a.e(f"v_mov_b32 v{st}, {LW+28}"); a.e(f"ds_read_b32 v{st+1}, v{st}"); a.e("s_waitcnt lgkmcnt(0)"); a.e(f"v_readfirstlane_b32 s94, v{st+1}")
    if STAMP: a.e("s_mov_b32 s95, s94")
    a.e(f"s_cmp_gt_u32 s94, {NVOTE // 2}"); a.e("s_cselect_b32 s94, 1, 0")
    group_off(a, 55, 28)
    a.e("s_add_u32 s62, s4, s55"); a.e("s_addc_u32 s63, s5, 0")
    a.e("s_sub_u32 s36, s28, 1"); a.e("s_max_i32 s36, s36, 0"); group_off(a, 92, 36); a.e("s_sub_u32 s92, s92, s55")
    a.e("s_add_u32 s36, s28, 1"); a.e("s_min_u32 s36, s36, 15"); group_off(a, 93, 36); a.e("s_sub_u32 s93, s93, s55")
    a.e(f"s_add_u32 s55, s55, {oSM}")
    lsrd(a, 20, oX3, XSZ)
    st = st_; comb(0); ln_finish(a, mean, var, rs); st = yf
    for i in range(8):
        D = w + 2 * i
        a.e(f"v_pk_add_f32 {vr(D,2)}, {vr(x+2*i,2)}, {SUBM}"); a.e(f"v_pk_mul_f32 {vr(D,2)}, {vr(D,2)}, {MULR}")
    a.e("s_waitcnt vmcnt(0)")
    for i in range(8):
        D = w + 2 * i
        unpack(a, st, st + 1, yy + i)
        a.e(f"v_pk_fma_f32 {vr(x+2*i,2)}, {vr(D,2)}, {vr(st,2)}, {vr(x+2*i,2)}"); a.e(f"v_cvt_pk_bf16_f32 v{xa+i}, v{x+2*i}, v{x+2*i+1}")
        if i % 4 == 1 and DP: mark(a, xa + i - 1, 0)
        if i % 4 == 3: a.e(f"buffer_store_dwordx4 {vr(xa+i-3,4)}, v{fo}, s[20:23], 0 offen offset:{2048*(i//4)} {SC}")
    a.e("R_s2:")
    st = st_
    for i in range(8): unpack(a, x + 2 * i, x + 2 * i + 1, xa + i)
    part(x, 1)
    if "1" in DP:
        a.e("s_waitcnt lgkmcnt(0)"); a.e("s_barrier")
        a.e("s_cmp_lg_u32 s30, 6"); a.e("s_cbranch_scc1 R_n6"); a.e("s_cmp_lg_u32 s60, 0"); a.e("s_cbranch_scc1 R_n6")
        a.e("s_lshl_b32 s53, s29, 7"); a.e(f"s_add_u32 s53, s53, {F_CS}"); a.e(f"v_mov_b32 v{pt}, 1"); a.e(f"v_mov_b32 v{pt+1}, 0")
        a.e("s_mov_b64 exec, 1"); a.e(f"buffer_atomic_add v{pt}, v{pt+1}, s[56:59], s53 offen {SC}"); a.e("s_mov_b64 exec, -1")
        a.e("R_n6:")
    else:
        publish(a, ST_R, 8, pt)
        a.e("s_barrier")
    a.e(f"s_cmp_lg_u32 s30, {7 if '1' in DP else 0}"); a.e("s_cbranch_scc1 R_nl")
    comb(1)
    outv = yf + 2; s3 = v(); m4 = v(); v4_ = v(); r4 = v()
    assert v.hi <= PK
    a.e(f"v_mov_b32 v{m4}, v{mean}"); a.e(f"v_mov_b32 v{v4_}, v{var}")
    ln_finish(a, mean, var, rs, s3)
    a.e(f"v_sub_f32 v{m4}, v{m4}, v{mean}"); a.e(f"v_mul_f32 v{m4}, v{m4}, v{rs}")
    a.e(f"v_mul_f32 v{v4_}, v{v4_}, v{rs}"); a.e(f"v_mul_f32 v{v4_}, v{v4_}, v{rs}")
    ln_finish(a, m4, v4_, r4)
    a.e(f"v_mov_b32 v{outv}, v{mean}"); a.e(f"v_mov_b32 v{outv+1}, v{rs}")
    a.e(f"v_fma_f32 v{outv+2}, v{m4}, v{s3}, v{mean}"); a.e(f"v_mul_f32 v{outv+3}, v{rs}, v{r4}")
    lsrd(a, 24, oLNS, 2048)
    a.e("s_lshl_b32 s36, s29, 3"); a.e(f"v_add_u32 v{t}, s36, v{I}"); a.e(f"v_lshlrev_b32 v{t}, 4, v{t}")
    a.e("s_mov_b64 exec, 0xff")
    a.e(f"buffer_store_dwordx4 {vr(outv,4)}, v{t}, s[24:27], 0 offen {SC}")
    a.e("s_mov_b64 exec, -1")
    publish(a, ST_R2, 1, pt)
    a.e("R_nl:")
    return v.hi

TAB = int(os.environ.get("TAB", "1")); TV = 248
def lead(seq, r, L, P=4):
    if L == 0: return list(seq)
    return [x for _, x in sorted(((i - L - 0.5 if i % P == r else i), x) for i, x in enumerate(seq))]
def order3(j, gi):
    mode, L = eval(os.environ.get("O3", "('r',0)"))
    if mode == "r": return [(gi + t) & 15 for t in range(16)]
    if mode == "n": return [gi] + [x for x in lead(range(16), (j + gi) & 3, L) if x != gi]
    if mode == "s": return [gi] + lead([x for x in range(16) if x != gi], (j + gi) & 3, L)
    if mode == "h": return [gi] + [x for x in lead([(t + (gi & 8)) & 15 for t in range(16)], (j + gi) & 3, L) if x != gi]
def order4(j, n):
    mode, L = eval(os.environ.get("O4", "('n',1)"))
    own = [(7 * n + i, 7 * n + 4 + i) for i in range(3)]
    ps = [(n + t) & 7 for t in range(8)] if mode == "r" else list(range(8))
    ab = [(7 * p + i, 7 * p + 4 + i) for i in range(2) for p in ps if p != n]
    c = [7 * p + o for p in ps for o in (2, 6, 3) if p != n or o == 3]
    rest = ab + [(c[2 * i], c[2 * i + 1]) for i in range(11)]
    if mode != "r": rest = lead(rest, (j + n + int(os.environ.get("O4R", "0"))) & 3, L)
    return own + rest
L4 = eval(os.environ.get("O4", "('n',1)"))[1] if TAB else 0
def tab_data(a):
    a.lines.append(".p2align 6"); a.lines.append("K_tab:")
    for gi in range(16):
        for j in range(4):
            o3 = order3(j, gi) + [0] * 16; o4 = order4(j, gi & 7) + [(0, 0)] * 4
            assert sorted(o3[:16]) == list(range(16)) and sorted(sum(o4[:28], ())) == list(range(56))
            a.lines.append(".short " + ",".join(str(o3[t] | o4[t][0] << 4 | o4[t][1] << 10) for t in range(32)))
def tab_load(a):
    a.e("s_getpc_b64 s[34:35]"); a.e("K_tpc:")
    a.e("s_lshl_b32 s36, s29, 2"); a.e("s_and_b32 s37, s28, 3"); a.e("s_add_u32 s36, s36, s37"); a.e("s_lshl_b32 s36, s36, 6")
    a.e("s_add_u32 s36, s36, K_tab-K_tpc"); a.e("s_add_u32 s34, s34, s36"); a.e("s_addc_u32 s35, s35, 0")
    a.e(f"v_and_b32 v{TV}, 31, v1"); a.e(f"v_lshlrev_b32 v{TV}, 1, v{TV}"); a.e(f"global_load_ushort v{TV+3}, v{TV}, s[34:35]")
def tab_make(a, w):
    T, x = TV + 3, TV + 4
    if not w:
        a.e(f"v_bfe_u32 v{x}, v{T}, 2, 2"); a.e(f"v_lshlrev_b32 v{TV}, 14, v{x}"); a.e(f"v_and_b32 v{x}, 3, v{T}"); a.e(f"v_lshl_add_u32 v{TV}, v{x}, 11, v{TV}")
        for lw in range(2):
            a.e(f"v_bfe_u32 v{x}, v{T}, {7+6*lw}, 3"); a.e(f"v_lshlrev_b32 v{TV+1+lw}, 14, v{x}"); a.e(f"v_bfe_u32 v{x}, v{T}, {4+6*lw}, 3"); a.e(f"v_lshl_add_u32 v{TV+1+lw}, v{x}, 10, v{TV+1+lw}")
    else:
        a.e(f"v_and_b32 v{x}, 15, v{T}"); a.e(f"v_mul_u32_u24 v{TV}, {64*7168}, v{x}")
        a.e("s_and_b32 s36, s30, 1"); a.e("s_mul_i32 s36, s36, 6"); a.e("s_add_u32 s36, s36, 4"); a.e(f"v_bfe_u32 v{x}, v{T}, s36, 6")
        assert all((q * 37) >> 8 == q // 7 for q in range(56))
        a.e(f"v_mul_u32_u24 v{TV+2}, 37, v{x}"); a.e(f"v_lshrrev_b32 v{TV+2}, 8, v{TV+2}"); a.e(f"v_mul_u32_u24 v{TV+2}, 7, v{TV+2}"); a.e(f"v_sub_u32 v{TV+2}, v{x}, v{TV+2}")
        a.e(f"v_cmp_eq_u32 vcc, 3, v{TV+2}"); a.e(f"v_cndmask_b32 v{TV+2}, 0, 1, vcc"); a.e(f"v_lshl_add_u32 v{TV+1}, v{x}, 16, v{TV+2}")
def rot_init(a, which):
    if which == 3 and TAB: a.e("s_mov_b32 s44, 0")
    elif which == 3 and OWN3: a.e("s_mov_b32 s44, s29")
    elif which != 4: a.e("s_mov_b32 s44, s67")
    else: a.e("s_mov_b32 s44, 0")
def rot_next(a, which):
    a.e("s_add_u32 s44, s44, 1")
    if which != 4: a.e("s_and_b32 s44, s44, 15")
def kb4(a, d, lw):
    a.e("s_lshl_b32 s45, s44, 1"); a.e(f"s_add_u32 s45, s45, {lw}"); a.e("s_sub_u32 s45, s45, 32")
    a.e("s_mul_i32 s46, s45, 86"); a.e("s_lshr_b32 s46, s46, 8")
    a.e("s_mul_i32 s47, s46, 3"); a.e("s_sub_u32 s47, s45, s47"); a.e("s_lshl_b32 s47, s47, 2"); a.e("s_lshr_b32 s47, 0x362, s47"); a.e("s_and_b32 s47, s47, 7")
    a.e("s_cmp_ge_u32 s44, 10"); a.e("s_cselect_b32 s45, 9, 2"); a.e("s_cselect_b32 s51, 1, 0"); a.e("s_sub_u32 s45, s44, s45")
    a.e("s_cmp_lt_u32 s44, 3"); a.e("s_cselect_b32 s45, 0, s45"); a.e("s_cselect_b32 s51, s44, s51")
    a.e(f"s_lshl2_add_u32 s51, {lw}, s51")
    a.e("s_cmp_lt_u32 s44, 17"); a.e("s_cselect_b32 s47, s51, s47"); a.e("s_cselect_b32 s46, s45, s46")
    a.e("s_add_u32 s46, s46, s33"); a.e("s_and_b32 s46, s46, 7"); a.e("s_mul_i32 s46, s46, 7"); a.e(f"s_add_u32 s{d}, s46, s47")
assert all((q * 86) >> 8 == q // 3 for q in range(24))
WVB = {1: 238, 2: 238, 4: 239, 3: 241}
WV = 245
def w_lanes(a):
    t, t2 = WV + 8, WV + 9
    R = WVB[1]
    a.e(f"v_lshrrev_b32 v{t}, 3, v1"); a.e(f"v_lshlrev_b32 v{R}, 11, v{t}")
    a.e(f"v_and_b32 v{t}, 6, v{t}"); a.e(f"v_and_b32 v{t2}, 7, v1"); a.e(f"v_xor_b32 v{t}, v{t}, v{t2}"); a.e(f"v_lshl_add_u32 v{R}, v{t}, 4, v{R}")
    R = WVB[4]
    for p in range(2):
        a.e(f"v_lshrrev_b32 v{t}, 4, v1"); a.e(f"v_lshlrev_b32 v{R+p}, 11, v{t}")
        a.e(f"v_add_u32 v{t}, {4*p}, v{t}"); a.e(f"v_lshlrev_b32 v{t}, 1, v{t}"); a.e(f"v_and_b32 v{t2}, 15, v1"); a.e(f"v_xor_b32 v{t}, v{t}, v{t2}")
        a.e(f"v_lshl_add_u32 v{R+p}, v{t}, 4, v{R+p}")
    R = WVB[3]
    assert all((p * 2341) >> 16 == p // 28 for p in range(448))
    for ii in range(7):
        a.e(f"v_add_u32 v{t2}, {64*ii}, v1"); a.e(f"v_mul_u32_u24 v{t}, 2341, v{t2}"); a.e(f"v_lshrrev_b32 v{t}, 16, v{t}")
        a.e(f"v_mul_u32_u24 v{R+ii}, 28, v{t}"); a.e(f"v_sub_u32 v{t2}, v{t2}, v{R+ii}")
        a.e(f"v_mul_u32_u24 v{R+ii}, 7168, v{t}")
        a.e(f"v_lshrrev_b32 v{t}, 1, v{t}"); a.e(f"v_and_b32 v{t}, 2, v{t}"); a.e(f"v_xor_b32 v{t2}, v{t2}, v{t}")
        a.e(f"v_lshl_add_u32 v{R+ii}, v{t2}, 4, v{R+ii}")
def w_srd(a, which):
    c = CFG[which]
    a.e(f"s_mov_b64 s[12:13], s[{66+2*which}:{67+2*which}]")
    a.e(f"s_mov_b32 s14, {c['KBT'] * 32 * c['LDW']}"); a.e("s_mov_b32 s15, 0x20000")
def w_setup(a, which, pre=True, lo=0):
    c = CFG[which]; STB = c["STB"]; BW = STB // 2
    w_srd(a, which)
    a.e("s_and_b32 s35, s30, 1")
    a.e(f"s_mul_i32 s38, s{(0, 99, 29, 29, 33)[which]}, {c['RB']}");
    if which != 4: a.e(f"s_mul_i32 s41, s35, {32*c['LDW']}"); a.e("s_add_u32 s38, s38, s41")
    if which == 4: a.e(f"s_mul_i32 s41, s31, {1792*c['LDW']}"); a.e("s_add_u32 s38, s38, s41")
    a.e(f"s_mul_i32 s41, s35, {BW}"); a.e(f"s_add_u32 s41, s41, {c['WB']}")
    a.e("s_mov_b32 s42, 0"); rot_init(a, which)
    if not pre: return
    NP = c["NPRE"]
    a.e("s_mov_b32 s49, s44"); a.e("s_and_b32 s43, s28, 3"); a.e(f"s_mul_i32 s43, s43, {NP - lo}"); a.e("s_lshr_b32 s43, s43, 2"); a.e(f"s_mov_b32 s50, {lo}")
    if not WROT: a.e("s_mov_b32 s43, 0")
    if lo: a.e(f"s_add_u32 s43, s43, {lo}")
    L = a.lab("wpre"); a.e(f"{L}:")
    a.e(f"s_mul_i32 s42, s43, {STB}"); a.e("s_add_u32 s44, s49, s43")
    if which != 4: a.e("s_and_b32 s44, s44, 15")
    w_issue(a, which, pace=PACES.get(which, PACE))
    a.e("s_add_u32 s43, s43, 1"); a.e(f"s_cmp_eq_u32 s43, {NP}"); a.e(f"s_cselect_b32 s43, {lo}, s43")
    a.e("s_add_u32 s50, s50, 1"); a.e(f"s_cmp_lt_u32 s50, {NP}"); a.e(f"s_cbranch_scc1 {L}")
    mstamp(a)
    a.e(f"s_mov_b32 s42, {(NP % c['NW']) * STB}"); a.e(f"s_add_u32 s44, s49, {NP}")
    if which != 4: a.e("s_and_b32 s44, s44, 15")
YP = int(os.environ.get("YP", "0"))
def ypause(a):
    if not YP: return
    X = a.lab("yp")
    a.e(f"v_mov_b32 v6, {LW+4}"); a.e("ds_read2_b32 v[14:15], v6 offset0:0 offset1:1"); a.e("s_waitcnt lgkmcnt(0)"); a.e("v_readfirstlane_b32 s53, v15")
    a.e(f"s_cmp_lt_u32 s53, {YP}"); a.e(f"s_cbranch_scc1 {X}")
    lds_spin(a, LW + 4, 16, 6, nap=2)
    a.e(f"{X}:")
def park_load(a, pace):
    w_srd(a, 2)
    a.e("s_and_b32 s35, s30, 3"); a.e("s_lshl_b32 s35, s35, 19"); a.e("s_lshl_b32 s39, s29, 7"); a.e("s_add_u32 s39, s39, s35")
    for q in range(32):
        a.e(f"buffer_load_dwordx4 {vr(PK+4*q,4)}, v{WVB[2]}, s[12:15], s39 offen"); a.e("s_add_u32 s39, s39, 16384")
        if pace and q % 4 == 3: a.e(f"s_waitcnt vmcnt({pace})"); ypause(a)
def park(a): park_load(a, int(os.environ.get("PKP", "8")))
def late_park(a):
    X = a.lab("lp"); a.e("s_cmp_lg_u32 s60, 0"); a.e(f"s_cbranch_scc1 {X}"); call(a, park); a.e(f"{X}:")
def after_g1(a):
    c = CFG[3]
    w_srd(a, 3)
    a.e(f"v_readlane_b32 s36, v{TV+3}, 0"); a.e(f"v_readlane_b32 s37, v{TV+3}, 1")
    a.e("s_and_b32 s35, s30, 3"); a.e(f"s_mul_i32 s38, s35, {16*7168}"); a.e("s_mul_i32 s39, s29, 448"); a.e("s_add_u32 s38, s38, s39")
    for r in (36, 37): a.e(f"s_and_b32 s{r}, s{r}, 15"); a.e(f"s_mul_i32 s{r}, s{r}, {64*7168}"); a.e(f"s_add_u32 s{r}, s{r}, s38")
    a.e("s_mul_i32 s39, s35, 7168"); a.e(f"s_add_u32 m0, s39, {c['WB'] + c['S0'] * c['STB']}")
    for i in range(7):
        if i: a.e("s_add_u32 m0, m0, 1024")
        a.e(f"buffer_load_dwordx4 v{WVB[3]+i}, s[12:15], s36 offen lds")
    for i in range(7): a.e(f"buffer_load_dwordx4 {vr(W3S+4*i,4)}, v{WVB[3]+i}, s[12:15], s37 offen")
    a.e("s_lshr_b32 s36, s67, 2"); a.e("s_sub_u32 s36, s35, s36"); a.e("s_and_b32 s36, s36, 3"); a.e("s_lshl_b32 s36, s36, 15"); a.e(f"v_add_u32 v6, s36, v2")
    a.e("s_waitcnt vmcnt(14)")
    for q in range(32): a.e(f"ds_write_b128 v6, {vr(PK+4*q,4)} offset:{CFG[2]['WB'] + 1024*q}")
    a.e("s_waitcnt lgkmcnt(0)")
def after_g2(a):
    c = CFG[3]
    a.e("s_and_b32 s35, s30, 3"); a.e("s_mul_i32 s39, s35, 7168"); a.e(f"s_add_u32 s39, s39, {c['WB'] + (c['S0'] + 1) % c['NW'] * c['STB']}"); a.e("v_add_u32 v6, s39, v2")
    for i in range(7): a.e(f"ds_write_b128 v6, {vr(W3S+4*i,4)} offset:{1024*i}")
    a.e("s_waitcnt lgkmcnt(0)")
SUBX = {}
def call(a, f):
    SUBX[f.__name__] = f; a.e(f"s_call_b64 s[76:77], SUB_{f.__name__}")
def w1_slots(a, js, pace=0):
    for j in js:
        a.e(f"s_mov_b32 s42, {j*8192}"); a.e("s_mov_b32 s44, s67"); a.e(f"s_add_u32 s44, s44, {j}"); a.e("s_and_b32 s44, s44, 15")
        call_issue(a, w_issue, 1)
        if pace: a.e(f"s_waitcnt vmcnt({pace})")
def w1_done(a):
    a.e("s_mov_b32 s42, 0"); a.e("s_mov_b32 s44, s67"); a.e("s_add_u32 s44, s44, 13"); a.e("s_and_b32 s44, s44, 15")
class Rec:
    def __init__(s_): s_.l = []
    def e(s_, x): s_.l.append(x)
    srd = Asm.srd
def w_parts(which, direct=False):
    c = CFG[which]; STB = c["STB"]; n = STB // 2048; LDW = c["LDW"]; b = Rec()
    b.e("s_add_u32 s19, s41, s42")
    arm = ["s_mov_b32 m0, s19", "s_mov_b32 s39, s16"]
    if which == 4 and TAB:
        b.e(f"v_readlane_b32 s16, v{TV+1}, s44")
        b.e("s_bitcmp1_b32 s16, 0"); b.e(f"s_cselect_b32 s17, {8*2048}, {4*2048}".replace(f"{4*2048}", "s45")); b.e(f"s_cselect_b32 s18, {-20*2048}, s45")
        b.e("s_andn2_b32 s16, s16, 1"); b.e("s_add_u32 s16, s16, s38")
        b.l.insert(0, f"s_mov_b32 s45, {4*2048}")
        arm += ["s_mov_b32 s32, s17", "s_mov_b32 s3, s18"]
    elif which == 3 and TAB and not direct:
        b.e(f"v_readlane_b32 s16, v{TV}, s44"); b.e("s_add_u32 s16, s16, s38")
    elif which == 4:
        b.e("s_and_b32 s40, s30, 1"); kb4(b, 16, "s40")
        b.e(f"s_mul_i32 s16, s16, {32*LDW}"); b.e("s_add_u32 s16, s16, s38")
        b.e("s_cmp_eq_u32 s47, 3"); b.e("s_cselect_b32 s17, 8, 4"); b.e("s_cselect_b32 s18, -20, 4")
        b.e("s_lshl_b32 s17, s17, 11"); b.e("s_lshl_b32 s18, s18, 11")
        arm += ["s_mov_b32 s32, s17", "s_mov_b32 s3, s18"]
    else:
        b.e(f"s_mul_i32 s16, s44, {64*LDW}"); b.e("s_add_u32 s16, s16, s38")
    if f"w{which}" in os.environ.get("HOT", ""): b.e("s_mov_b32 s16, s38")
    rot_next(b, which)
    b.e(f"s_add_u32 s42, s42, {STB}"); b.e(f"s_cmp_eq_u32 s42, {c['NW']*STB}"); b.e("s_cselect_b32 s42, 0, s42")
    fire = []
    for i in range(n):
        g = []
        if i:
            g.append("s_add_u32 m0, m0, 1024")
            if which in (1, 2): g.append(f"s_add_u32 s39, s39, {8*LDW}")
            elif which == 4: g.append(f"s_add_u32 s39, s39, s{3 if i == 4 else 32}")
            elif i == 7: g.append(f"s_add_u32 s39, s39, {16*LDW}")
        vo = WVB[which] + (0 if which in (1, 2) else (i & 1) if which == 4 else i % 7)
        fire.append(g + [f"buffer_load_dwordx4 v{vo}, s[12:15], s39 offen lds"])
    if f"w{which}" in os.environ.get("NOLD", ""): fire = [[x for x in g if not x.startswith("buffer_load")] + ["s_nop 0"] for g in fire]
    return b.l, arm, fire
def w_issue(a, which, pace=0, direct=False):
    prep, arm, fire = w_parts(which, direct)
    for x in prep + arm: a.e(x)
    for i, g in enumerate(fire):
        for x in g: a.e(x)
        if pace and (i % 4 == 3 or i == len(fire) - 1): a.e(f"s_waitcnt vmcnt({pace})")

def w_bases(a, which, dst, swn, ntl, t, t2):
    c = CFG[which]; RB = c["RB"]
    a.e(f"v_lshrrev_b32 v{t}, 2, v1")
    a.e(f"v_mul_u32_u24 v{dst}, {RB}, v{t}"); a.e(f"v_and_b32 v{t2}, 3, v1"); a.e(f"v_lshl_add_u32 v{dst}, v{t2}, 3, v{dst}")
    a.e(f"v_add_u32 v{dst}, {c['WB']}, v{dst}")
    if which == 3:
        a.e(f"s_mul_i32 s36, s{swn}, {7*32}"); a.e(f"v_add_u32 v{dst}, s36, v{dst}")
        a.e(f"v_bfe_u32 v{t}, v1, 4, 1"); a.e(f"v_lshlrev_b32 v{t}, 5, v{t}")
        a.e(f"s_cmp_eq_u32 s{swn}, 0"); a.e("s_cselect_b32 s36, 1, -1"); a.e(f"v_mul_lo_u32 v{t}, v{t}, s36")
        a.e(f"v_sub_u32 v{dst+1}, v{dst}, v{t}"); a.e(f"v_add_u32 v{dst}, v{dst}, v{t}")
        return 2, lambda nt, kk, h: (nt & 1, (32 * kk + 16 * h) * RB + 32 * nt)
    if which == 4: a.e(f"v_and_b32 v{t}, 7, v{t}")
    else: a.e(f"v_bfe_u32 v{t}, v{t}, 1, 2")
    for nt in range(ntl - 1, -1, -1):
        a.e(f"s_mul_i32 s36, s{swn}, {ntl}"); a.e(f"s_add_u32 s36, s36, {nt}")
        a.e(f"v_xor_b32 v{t2}, s36, v{t}"); a.e(f"v_lshl_add_u32 v{dst+nt}, v{t2}, 5, v{dst}")
    return ntl, lambda nt, kk, h: (nt, (32 * kk + 16 * h) * RB)

def a_parts(which):
    c = CFG[which]; b = Rec()
    if which <= 2 and NX:
        b.e("s_and_b32 s42, s48, 7"); b.e("s_lshl_b32 s42, s42, 14"); b.e("s_lshr_b64 s[48:49], s[48:49], 4")
    b.e("s_add_u32 s19, s41, s42")
    arm = ["s_mov_b32 m0, s19", "s_mov_b32 s39, s16"]; fire = []
    if which == 2:
        b.e(f"s_mul_i32 s16, s44, {8*PITCH}"); b.e("s_add_u32 s16, s16, s38")
        b.e("s_lshr_b32 s45, s44, 2"); b.e("s_xor_b32 s45, s45, s94"); b.e("s_and_b32 s45, s45, 1"); b.e("s_lshl_b32 s45, s45, 13"); b.e("s_add_u32 s16, s16, s45")
        b.e("s_lshr_b32 s45, s44, 3"); b.e("s_lshl_b32 s45, s45, 4"); b.e("s_add_u32 s45, s45, 16")
        b.e("s_sub_u32 s46, 0, s45"); b.e("s_bitcmp1_b32 s44, 2"); b.e("s_cselect_b32 s45, s45, s46"); b.e("s_add_u32 s16, s16, s45")
        step = PITCH
    elif which == 4:
        for lw in range(2):
            if TAB: b.e(f"v_readlane_b32 s{16+lw}, v{TV+1+lw}, s44")
            else: kb4(b, 16 + lw, lw); spread(b, 16 + lw, 16 + lw)
        for lw in range(2): b.e(f"s_add_u32 s{16+lw}, s{16+lw}, s38")
        arm.append("s_mov_b32 s40, s17")
        for i in range(4):
            for lw in range(2):
                fire.append((["s_add_u32 m0, m0, 1024"] if i or lw else []) + ([f"s_add_u32 s{39+lw}, s{39+lw}, {c['KBT']*2048}"] if i else []) +
                            [f"buffer_load_dwordx4 v2, s[12:15], s{39+lw} offen {SC} lds"])
    elif which == 3 and TAB:
        b.e(f"v_readlane_b32 s16, v{TV}, s44"); b.e("s_add_u32 s16, s16, s38"); step = c['KBT'] * 2048
    else:
        b.e("s_lshr_b32 s45, s44, 2"); b.e("s_lshl_b32 s45, s45, 14"); b.e("s_and_b32 s16, s44, 3"); b.e("s_lshl_b32 s16, s16, 11")
        b.e("s_add_u32 s16, s16, s45"); b.e("s_add_u32 s16, s16, s38"); step = c['KBT'] * 2048
    if f"a{which}" in os.environ.get("HOT", ""):
        b.e("s_mov_b32 s16, s38")
        if which == 4: b.e("s_add_u32 s17, s38, 1024")
    for i in range(4 if which != 4 else 0):
        fire.append((["s_add_u32 m0, m0, 2048", f"s_add_u32 s39, s39, {step}"] if i else []) + [f"buffer_load_dwordx4 v2, s[12:15], s39 offen {SC} lds"])
        fire.append([f"buffer_load_dwordx4 v2, s[12:15], s39 offen offset:1024 {SC} lds"])
    rot_next(b, which)
    if not (which <= 2 and NX):
        b.e(f"s_add_u32 s42, s42, 16384"); b.e(f"s_cmp_eq_u32 s42, {c['NA']*16384}"); b.e("s_cselect_b32 s42, 0, s42")
    if f"a{which}" in os.environ.get("NOLD", ""): fire = [[x for x in g if not x.startswith("buffer_load")] + ["s_nop 0"] for g in fire]
    return b.l, arm, fire
def a_issue(a, which):
    prep, arm, fire = a_parts(which)
    for x in prep + arm + sum(fire, []): a.e(x)
SUBS = {}
def call_issue(a, issue, which):
    nm = f"SUB_{issue.__name__}_{which}"; SUBS[nm] = (issue, which)
    a.e(f"s_call_b64 s[76:77], {nm}")
def emit_subs(a):
    for nm, f in SUBX.items(): a.e(f"SUB_{nm}:"); f(a); a.e("s_setpc_b64 s[76:77]")
    for nm, (issue, which) in SUBS.items():
        a.e(f"{nm}:"); issue(a, which); a.e("s_setpc_b64 s[76:77]")
def ld_steps(a, which, N, per, issue, npre, rate=2, plan={}, lo=0, hi=None, last=None, hold=(), sched=None, armed=False):
    NS = CFG[which]["NS"]
    prep, arm, fire = (w_parts if issue is w_issue else a_parts)(which); h = max(1, per * HSPLIT // 8)
    plan = {b: (x if isinstance(x, list) else [x]) for b, x in plan.items()}
    q = [s_ for s_ in range(npre) for _ in range(per)]
    def after(tag):
        if issue is w_issue and isinstance(tag, int) and tag < npre: tag = npre - 1
        return len(q) - 1 - max(i for i, x in enumerate(q) if x == tag)
    issued = npre; steps = []
    for b in range(NS):
        acts = plan.get(b, []); was = {}
        def do(pos):
            for n_, act in enumerate(acts):
                if act[0] != pos: continue
                if act[1] is not None: was[n_] = after(act[1])
                q.extend([act[4]] * act[3])
        do(True)
        k = 0
        if (b > 0 or (sched is not None and issue is a_issue)) and b not in hold:
            k = max(0, min(rate, min(NS, b - 1 + N) - issued)) if sched is None else sched[b]
        assert k or not any(x[0] == "mid" for x in acts)
        for j in range(k):
            q.extend([issued] * h)
            if j == 0: do("mid")
            q.extend([issued] * (per - h)); issued += 1
        do(False)
        w = after(b); assert w <= 63
        steps.append((k, w, b if acts else None, tuple(sorted(was.items())), issued < NS))
    def em(l):
        for x in l:
            a.e(x)
            if x == "s_barrier" and os.environ.get("JIT"): mstamp(a)
    F1, F2 = sum(fire[:h], []), sum(fire[h:], [])
    lprep = prep
    if len(prep) > 8:
        nm = f"PREP_{issue.__name__}_{which}"; SUBS[nm] = ((lambda a_, w_, l=prep: [a_.e(x) for x in l]), which)
        prep = [f"s_call_b64 s[76:77], {nm}"]
    if lo == 0 and npre < NS and not armed: em(prep + arm)
    i = lo; HI = NS if hi is None else hi
    while i < HI:
        j = i
        while j < HI and steps[j] == steps[i]: j += 1
        k, w, ab, was, more = steps[i]; n = j - i; was = dict(was)
        def run(pos):
            for n_, act in enumerate(plan.get(ab, [])):
                if act[0] != pos: continue
                if n_ in was: a.e(f"s_waitcnt vmcnt({was[n_]})")
                act[2]()
        tail = [f"s_waitcnt vmcnt({w})", "s_barrier"]
        if n > 2 and k == 1:
            em(F1); a.e("s_mov_b32 s43, 1"); L = a.lab("ld"); a.e(f"{L}:")
            em(lprep + F2 + arm + tail + F1)
            a.e("s_add_u32 s43, s43, 1"); a.e(f"s_cmp_lt_u32 s43, {n}"); a.e(f"s_cbranch_scc1 {L}")
            em(prep + F2 + arm + tail)
        else:
            for r in range(n):
                run(True)
                for jj in range(k):
                    nxt = more or jj < k - 1
                    em(F1)
                    if jj == 0: run("mid")
                    em((prep if nxt else []) + F2 + (arm if nxt else []))
                run(False)
                em(tail)
        i = j
    if hi is not None: return
    if which == 4:
        if issue is a_issue: a.e("s_cmp_eq_u32 s60, 1"); a.e("s_cbranch_scc1 K_fin")
        elif hold is HOLD: a.e("s_branch K_fin"); return
        if not RPL: r_pre(a)
    if last: last()
    late = os.environ.get("TLATE", "0") == "1"
    if late: a.e("s_barrier")
    if issue is a_issue and W4POS == f"{which}C":
        X = a.lab("tw4"); a.e("s_cmp_lg_u32 s60, 0"); a.e(f"s_cbranch_scc1 {X}"); touch(a, B_W4, 7 * MB, 20); a.e(f"{X}:")
    if not late: a.e("s_barrier")

RK = int(os.environ.get("RK", "7")); assert RK == 0 or 4 <= RK <= STQ
PA2 = int(os.environ.get("PA2", "1")); PBB = int(os.environ.get("PBB", "2")); PC0 = int(os.environ.get("PC0", "4"))
HOLD = eval(os.environ.get("HOLD", "[2,3,4]"))
def a_loader(a, which):
    c = CFG[which]
    if which <= 2:
        plan = side_jobs(a, 1) if which == 1 else {}
        if which == 1 and "1" in DP: mstamp(a); a.e(f"s_sleep {os.environ.get('SJD', '30')}")
        else: poll(a, which - 1, 8)
        mstamp(a)
        for b in sorted(plan):
            for act in (plan[b] if isinstance(plan[b], list) else [plan[b]]):
                if act[1] is not None: a.e("s_waitcnt vmcnt(0)")
                act[2]()
        if which == 1 and "2" in DP:
            a.e("s_cmp_eq_u32 s60, 0"); a.e("s_cbranch_scc1 AL_nw"); a.e("s_cmp_lg_u32 s30, 4"); a.e("s_cbranch_scc1 AL_nw")
            a.e(f"s_add_u32 s54, s55, {(fso(ST_G2) - LSTR) & 0xffffffff:#x}"); a.e("s_add_u32 s53, s54, s92"); a.e("v_mov_b32 v9, s53")
            a.e("s_add_u32 s53, s54, s93"); a.e("v_writelane_b32 v9, s53, 1")
            poll_core(a, 8, [9], 3, cnt=16)
            a.e("AL_nw:")
        if which == 2: a.e("s_waitcnt vmcnt(0)")
        a.e("s_barrier")
        if which == 1 and "p" not in os.environ.get("FO", "1pd"): late_park(a)
        call(a, after_g1 if which == 1 else after_g2)
        return
    a.e("s_and_b32 s35, s30, 1")
    if which == 2:
        hs_srd(a, 12)
        a.e("s_lshl_b32 s38, s28, 11"); a.e("s_add_u32 s38, s38, 16384"); a.e(f"s_mul_i32 s36, s35, {4*PITCH}"); a.e("s_add_u32 s38, s38, s36")
    else:
        lsrd(a, 12, c["A"], XSZ if which != 4 else H2SZ)
        a.e(f"s_mul_i32 s38, s35, {4*c['KBT']*2048}")
        if which == 4: a.e(f"s_mul_i32 s36, s31, {7*16384}"); a.e("s_add_u32 s38, s38, s36")
    a.e("s_lshl_b32 s41, s35, 13"); a.e("s_mov_b32 s42, 0"); rot_init(a, which)
    assert c["NA"] == 3
    prep, arm, fire = a_parts(which)
    if which == 4:
        flag_addr(a, 9, ST_G3A); flag_addr(a, 10, ST_G3B); flag_addr(a, 12, ST_G3)
        a.e("v_mov_b32 v13, 1"); a.e("s_and_b32 s51, s30, 1"); a.e("s_lshl_b32 s51, s51, 30")
        def signal(r): a.e("s_mov_b64 exec, 1"); a.e(f"buffer_atomic_add v13, v{r}, s[56:59], s51 offen {SC}"); a.e("s_mov_b64 exec, -1")
        a.e("s_lshl_b32 s54, s60, 2"); a.e("s_add_u32 s54, s54, 4"); lds_spin(a, LW + 64, "s54", 14, nap=2)
        signal(9)
        if not PA2: poll_core(a, 8, [9], 1, cnt=8)
        mstamp(a)
        plan = {6 - L4: ("mid", None, lambda: flag_try(a, 11, 10), 1, "f"), 8 - L4: ("mid", "f", lambda: flag_check(a, 11, 10, 8), 0, None),
                13 - L4: ("mid", None, lambda: flag_try(a, 11, 12), 1, "g"), 15 - L4: ("mid", "g", lambda: flag_check(a, 11, 12, 8), 0, None)}
        plan = {k_: [x] for k_, x in plan.items()}
        if PA2:
            plan[1] = [(False, None, lambda: flag_try(a, 8, 9), 1, "a")]
            plan[2] = [(True, "a", lambda: flag_check(a, 8, 9, 8), 0, None)]
        if DP:
            a.e("v_xor_b32 v15, 128, v12")
            plan[20] = [("mid", None, lambda: flag_try(a, 11, 15), 1, "h")]; plan[22] = [("mid", "h", lambda: flag_check(a, 11, 15, 8), 0, None)]
        plan.setdefault(PBB + 1, []).insert(0, (True, None, lambda: signal(10), 1, "s"))
        plan.setdefault(PC0 + 2, []).insert(0, (True, None, lambda: signal(12), 1, "s"))
        a.e("s_mov_b32 s44, 3")
        ld_steps(a, which, 3, 8, a_issue, 3, plan=plan); return
    if which == 3:
        mask, cnt = flag_addr(a, 9, ST_G2)
        def wait2():
            if B0E > 1: a.e(f"s_sleep {B0E}")
            poll_core(a, 8, [9], mask, cnt=cnt); mstamp(a); mstamp(a)
            if W3H: a.e("s_add_u32 s54, s60, 1"); lds_set(a, LW + 60, "s54", 10)
        rot_next(a, 3); a.e("s_mov_b32 s42, 16384")
        plan = side_jobs(a, 3)
        if os.environ.get("P30", "0") == "1":
            def wait0(): own_wait(a, ST_G2, False, 14); wait2()
            plan[0] = (True, None, wait0, 0, None)
            ld_steps(a, which, 3, 8, a_issue, 1, plan=plan, sched=[int(os.environ.get("P3N", "1")), 2 - int(os.environ.get("P3N", "1"))] + [1] * 13 + [0]); return
        plan[1] = (True, None, wait2, 0, None)
        if RPL: plan[15] = (False, None, lambda: call(a, r_pre0), 8, "r")
        PZ3 = int(os.environ.get("PZ3", "0"))
        if PZ3:
            a.srd(84, 4, 32 * MB, off=216 * MB)
            a.e("s_cmp_eq_u32 s60, 0"); a.e("s_cselect_b32 s86, s86, 0")
            for i in range(4): a.e(f"v_mov_b32 v{216+i}, -1")
            a.e("s_lshl_b32 s88, s2, 1"); a.e("s_and_b32 s50, s30, 1"); a.e("s_add_u32 s88, s88, s50"); a.e(f"s_mul_i32 s88, s88, {PZ3*12*1024}")
            def pz():
                for i in range(PZ3): a.e(f"buffer_store_dwordx4 v[216:219], v2, s[84:87], s88 offen offset:{i*1024} {SC}")
                a.e(f"s_add_u32 s88, s88, {PZ3*1024}")
            for b in range(2, 14):
                p_ = plan.get(b, []); p_ = p_ if isinstance(p_, list) else [p_]
                plan[b] = p_ + [(False, None, pz, PZ3, "z")]
        ld_steps(a, which, 3, 8, a_issue, 1, plan=plan); return
    assert 0

def side_jobs(a, which):
    c = CFG[which]; plan = {}
    sv = 16; S, Q, mean, rs, tt, ad, fa, fr = 216, 217, 218, 219, 220, 221, 222, 223
    cv = 180 if which == 3 else 24; N = c["LDW"] // 2; co_ = 224; HB = c["TN16"] * 32
    lg = 3 if which == 1 else 5
    def cld(k0=0, k1=4):
        if k0 == 0:
            a.srd(24, 4, 32 * N * 4, off=CSP[which])
            a.e("s_cmp_eq_u32 s60, 0"); a.e("s_cselect_b32 s26, s26, 0")
            if NOCS3 and which == 3: a.e("s_mov_b32 s26, 0")
            a.e("s_and_b32 s36, s30, 1"); a.e(f"s_mul_i32 s36, s36, {HB}"); a.e(f"s_mul_i32 s37, s29, {2*HB}"); a.e("s_add_u32 s37, s36, s37")
            a.e(f"v_lshrrev_b32 v{co_}, {lg}, v1"); a.e(f"v_mul_u32_u24 v{co_}, {N*4}, v{co_}")
            a.e(f"v_and_b32 v{cv-1}, {16*((1 << lg) - 1)}, v2"); a.e(f"v_add_u32 v{co_}, v{co_}, v{cv-1}")
        for k in range(k0, k1):
            a.e(f"buffer_load_dwordx4 {vr(cv+4*(k if k < 9 else k - 8),4)}, v{co_}, s[24:27], s37 offen {SC}"); a.e(f"s_add_u32 s37, s37, {N*4*(64 >> lg)}")
    def piece(lines, l0=False):
        def f():
            X = a.lab("pc")
            if l0: a.e("s_cmp_lg_u32 s60, 0"); a.e(f"s_cbranch_scc1 {X}")
            for x in lines: a.e(x)
            if l0: a.e(f"{X}:")
        return f
    def cadd(k0, k1): return [f"v_add_f32 v{cv+h}, v{cv+h}, v{cv+4*k+h}" for k in range(k0, k1) for h in range(4)]
    def sw(op): return [f"v_mov_b32 v{cv+4+e}, v{cv+e}" for e in range(4)] + [f"{op} v{cv+e}, v{cv+4+e}" for e in range(4)] + cadd(1, 2)
    if which in (1, 3):
        cout = ["s_and_b32 s36, s30, 1", f"s_mul_i32 s36, s36, {HB}", f"s_add_u32 s36, s36, {CSO[which]}", f"v_add_u32 v{cv-1}, s36, v2",
                f"s_bfm_b64 exec, {HB//16}, 0", f"ds_write_b128 v{cv-1}, {vr(cv,4)}", "s_mov_b64 exec, -1", "s_waitcnt lgkmcnt(0)"]
    if which == 1:
        flag_addr(a, fa, ST_R2)
        def ld():
            flag_check(a, fr, fa, 16)
            lsrd(a, 20, oLNS, 2048); a.e("s_and_b32 s35, s30, 1"); a.e("s_lshl_b32 s35, s35, 10")
            a.e(f"buffer_load_dwordx4 {vr(sv,4)}, v2, s[20:23], s35 offen {SC}")
        fin = piece(["s_and_b32 s36, s30, 1", "s_lshl_b32 s36, s36, 10", f"s_add_u32 s36, s36, {LNSL}", f"v_add_u32 v{ad}, s36, v2", f"ds_write_b128 v{ad}, {vr(sv,4)}", "s_waitcnt lgkmcnt(0)"])
        a.e("s_lshl_b32 s53, s29, 7"); a.e(f"s_add_u32 s53, s53, {F_CS}"); a.e(f"v_mov_b32 v{fa+4}, s53")
        def cld1(): flag_check(a, fr + 4, fa + 4, 16); cld()
        work = cadd(1, 4) + [f"v_add_f32_dpp v{cv+e}, v{cv+e}, v{cv+e} row_ror:8 row_mask:0xf bank_mask:0xf" for e in range(4)] + \
               sw("v_permlane16_swap_b32") + sw("v_permlane32_swap_b32")
        plan = {2: (False, None, lambda: flag_try(a, fr + 4, fa + 4), 1, "e"), 5: [(False, "e", cld1, 4, "c"), (False, None, lambda: flag_try(a, fr, fa), 1, "f")],
                8: (False, "f", ld, 1, "d"), 15: [(False, None, piece(cout, 1), 0, None), (False, "d", fin, 0, None)]}
        plan[9] = (False, None, piece(work, 1), 0, None)
    if which == 3:
        flag_addr(a, fa, ST_G2S)
        a.e(f"v_lshlrev_b32 v{ad}, 3, v1")
        def ld(k0):
            def f():
                if k0 == 0:
                    flag_check(a, fr, fa, 16)
                    lsrd(a, 20, oST2, 24576)
                    a.e("s_and_b32 s35, s30, 1"); a.e("s_lshl_b32 s35, s35, 9")
                a.e(f"s_add_u32 s36, s35, {k0*2048}")
                for k in range(k0, k0 + 8):
                    if k % 8 == 4: a.e("s_add_u32 s36, s36, 4096")
                    a.e(f"buffer_load_dwordx2 {vr(sv+2*k,2)}, v{ad}, s[20:23], s36 offen offset:{(k&3)*1024} {SC}")
            return f
        b = Rec()
        for st_ in (8, 4, 2, 1):
            for k in range(2 * st_): b.e(f"v_add_f32 v{sv+k}, v{sv+k}, v{sv+2*st_+k}")
        o_ = sv + 4
        b.e(f"v_mul_f32 v{o_}, {f32(1/1024)}, v{sv}"); b.e(f"v_mul_f32 v{Q}, {f32(1/1024)}, v{sv+1}")
        b.e(f"v_fma_f32 v{Q}, -v{o_}, v{o_}, v{Q}"); b.e(f"v_max_f32 v{Q}, 0, v{Q}")
        ln_finish(b, o_, Q, rs, o_ + 1)
        b.e(f"v_mul_f32 v{o_+2}, {f32(GC1)}, v{rs}"); b.e(f"v_mul_f32 v{o_+3}, v{rs}, v{rs}")
        b.e(f"v_mul_f32 v{o_+3}, v{o_+3}, v{o_+2}"); b.e(f"v_mul_f32 v{o_+3}, {f32(0.044715)}, v{o_+3}")
        b.e("s_lshl_b32 s35, s35, 1"); b.e(f"s_add_u32 s35, s35, {LNSL}"); b.e(f"v_add_u32 v{tt}, s35, v2")
        b.e(f"ds_write_b128 v{tt}, {vr(o_,4)}"); b.e("s_waitcnt lgkmcnt(0)")
        def both(f, g):
            def h(): f(); g()
            return h
        plan = {2: (False, None, cld, 4, "c"), 3: (False, None, lambda: cld(4, 9), 5, "c"),
                5: [(False, "c", piece(cadd(1, 5), 1), 0, None), (False, None, lambda: flag_try(a, fr, fa), 1, "f")],
                6: (False, None, both(piece(cadd(5, 9), 1), lambda: cld(9, 16)), 7, "e"),
                7: (False, "f", ld(0), 8, "d"), 8: (False, None, ld(8), 8, "d"),
                9: (False, "e", piece(cadd(1, 5), 1), 0, None), 10: (False, None, piece(cadd(5, 8), 1), 0, None), 11: (False, None, piece(sw("v_permlane32_swap_b32") + cout, 1), 0, None),
                12: (False, "d", piece(b.l[:16]), 0, None), 13: (False, None, piece(b.l[16:32]), 0, None), 14: (False, None, piece(b.l[32:]), 0, None)}
    return plan

W2E = int(os.environ.get("W2E", "3"))
def w2_early(a):
    if W2E: w_setup(a, 2, pre=False); w1_slots(a, range(W2E), pace=8)
def w_loader(a, which):
    c = CFG[which]
    if which < 3:
        if which == 1: a.e("s_waitcnt vmcnt(0)")
        if which == 1 and "a" in STO: stouch(a, 3, 128 if "8" in STO else 64, 2); mstamp(a)
        if which == 1 and sum(SG): sb_init(a)
        sg(a, SG[2*which-2])
        if not (which == 1 and "1" in DP): a.e("s_barrier")
        sg(a, SG[2*which-1])
        if which == 1 and "b" in STO: stouch(a, 3, 128 if "8" in STO else 64, 2); mstamp(a)
        if which == 2: a.e("s_waitcnt vmcnt(0)")
        a.e("s_barrier")
        if which == 1 and "p" not in os.environ.get("FO2", "1pd"): late_park(a)
        call(a, after_g1 if which == 1 else after_g2); mstamp(a)
        return
    args = (a, which, c["NW"], c["STB"] // 2048, w_issue, c["NPRE"], c["WR"])
    if which == 4:
        assert c["NW"] == 6 and c["WB"] == CFG[1]["WB"] + 3 * 8192
        a.e("s_cmp_eq_u32 s60, 1"); a.e("s_cbranch_scc1 WL_t1")
        ld_steps(*args, hi=24)
        WT = eval(os.environ.get("WT", "[(11,12,15,9),(13,14,10),(3,4),(5,6,0),(7,8,1,2),()]"))
        def some(js):
            def f():
                if js is WT[0]: w_setup(a, 1, pre=False)
                for j in js:
                    if j in (9, 10) and js is not WT[5]:
                        a.e(f"s_add_u32 s39, s38, {j*64*2048}")
                        for i in range(4): a.e(f"buffer_load_dwordx4 {vr(16+16*(j-9)+4*i,4)}, v{WVB[1]}, s[12:15], s39 offen"); a.e("s_add_u32 s39, s39, 16384")
                    else: w1_slots(a, (j,), pace=8 if js is WT[5] else 0)
            return f
        plan = {24 + i: (False, None, some(WT[i]), 4 * len(WT[i]), "w") for i in range(4) if WT[i]}
        ld_steps(*args, plan=plan, lo=24, last=some(WT[4]))
        rg = [j for j in (9, 10) if j not in WT[5]]
        if rg:
            a.e(f"s_add_u32 s36, s41, {9*8192}"); a.e("v_add_u32 v6, s36, v2"); a.e("s_waitcnt vmcnt(0)")
            for j in rg:
                for i in range(4): a.e(f"ds_write_b128 v6, {vr(16+16*(j-9)+4*i,4)} offset:{(j-9)*8192+i*1024}")
            a.e("s_waitcnt lgkmcnt(0)")
        some(WT[5])(); mstamp(a)
        a.e("s_branch NEXT")
        a.e("WL_t1:")
        ld_steps(*args, hold=HOLD)
        return
    plan = {}
    if W3H: plan[1] = (True, None, lambda: (a.e("s_add_u32 s54, s60, 1"), lds_spin(a, LW + 60, "s54", 6, nap=1)), 0, None)
    def sg3(n):
        def f():
            X = a.lab("st"); a.e("s_cmp_lg_u32 s60, 0"); a.e(f"s_cbranch_scc1 {X}"); sb(a, n); a.e(f"{X}:")
        return f
    for b_, n_ in eval(os.environ.get("SG3", "{}")).items(): plan[b_] = (False, None, sg3(n_), 0, None)
    if RPL: plan[int(os.environ.get("RPW", "15"))] = (False, None, lambda: call(a, r_pre0), 8, "r")
    ld_steps(*args, plan=plan)
W3H = int(os.environ.get("W3H", "0"))
W1L = int(os.environ.get("W1L", "3"))

B0E = int(os.environ.get("B0E", "6")); RPL = int(os.environ.get("RPL", "1")); RPC = int(os.environ.get("RPC", "1"))
LF1 = os.environ.get("LF1", "sc1"); LF2 = os.environ.get("LF2", "")
RES2 = 160; C2R = 200; SO3 = 238; RES4 = [172, 176, 180, 184, 188, 192, 196, 240]
def g_compute(a, which):
    c = CFG[which]
    WM, WN, MT, NT, KBT, NS, NA, NW, TN16, STB, WB = [c[k] for k in "WM WN MT NT KBT NS NA NW TN16 STB WB".split()]
    v = VA(6); nm = f"G{which}"
    lane = 1; l16 = 2
    t = v(); t2 = v(); pt = v(4, 2)
    NTILE = (0, 99, 29, 29, 33)[which]
    a_ = a
    if which == 4: a = Rec()
    if WN == 2: a.e("s_lshr_b32 s34, s30, 1"); a.e("s_and_b32 s35, s30, 1")
    else: a.e("s_mov_b32 s34, s30"); a.e("s_mov_b32 s35, 0")
    a0 = v(); w0 = v(4, 1); aa = v(); wa = v(4, 1); J = v(); G = v()
    a.e(f"v_and_b32 v{J}, 15, v{lane}"); a.e(f"v_lshrrev_b32 v{G}, 4, v{lane}")
    a.e(f"s_mul_i32 s37, s34, {MT}")
    a.e(f"s_mul_i32 s38, s{NTILE}, {TN16}"); a.e(f"s_mul_i32 s36, s35, {NT}"); a.e("s_add_u32 s38, s38, s36")
    acc = v(MT * NT * 4, 4); NF = MT + NT if which > 2 else 8
    fX = v(NF * 4, 4); fY = v(NF * 4, 4); tmp = v(); tp = v(4, 2)
    def A_(mt, nt): return acc + 4 * (mt * NT + nt)
    def SUBM(r): return f"{vr(r,2)} op_sel_hi:[1,0] neg_lo:[0,1] neg_hi:[0,1]"
    def MULR(r): return f"{vr(r,2)} op_sel:[0,1] op_sel_hi:[1,1]"
    if which in (2, 4):
        res = RES2
        a.e("s_lshr_b32 s36, s38, 1"); spread(a, 39, 36); a.e("s_lshl_b32 s36, s37, 16"); a.e("s_add_u32 s39, s39, s36")
    if which <= 2:
        AB = 176; LO = v(8, 1)
        if which == 1:
            lsrd(a, 8, oX3, XSZ); OOB = MB
            for i in range(4): a.e(f"v_add_u32 v{LO+i}, {(i & 1) * 65536 + (i >> 1) * 4096}, v{l16}")
        else:
            hs_srd(a, 8); OOB = 128 * PITCH
            a.e(f"v_mul_u32_u24 v{LO}, {PITCH}, v{G}"); a.e(f"v_lshl_add_u32 v{LO}, v{J}, 4, v{LO}")
            for i in range(1, 8): a.e(f"v_add_u32 v{LO+i}, {4*PITCH*i}, v{LO}")
        for i in range(4):
            a.e("s_lshr_b32 s36, s67, 2"); a.e(f"s_add_u32 s36, s36, {i}"); a.e("s_and_b32 s36, s36, 3")
            if which == 1: a.e(f"s_lshl_b32 s{44+i}, s36, 14"); a.e("s_lshl_b32 s36, s34, 17")
            else:
                a.e(f"s_mul_i32 s{44+i}, s36, {32*PITCH}")
                a.e("s_xor_b32 s53, s36, s94"); a.e("s_and_b32 s53, s53, 1"); a.e("s_lshl_b32 s53, s53, 13"); a.e(f"s_add_u32 s{44+i}, s{44+i}, s53")
                a.e("s_lshr_b32 s53, s36, 1"); a.e("s_lshl_b32 s53, s53, 4"); a.e("s_add_u32 s53, s53, 16")
                a.e("s_sub_u32 s54, 0, s53"); a.e("s_bitcmp1_b32 s36, 0"); a.e("s_cselect_b32 s53, s53, s54"); a.e(f"s_add_u32 s{44+i}, s{44+i}, s53")
                a.e("s_lshl_b32 s36, s28, 2"); a.e("s_add_u32 s36, s36, s34"); a.e("s_lshl_b32 s36, s36, 9"); a.e("s_add_u32 s36, s36, 16384")
            a.e(f"s_add_u32 s{44+i}, s{44+i}, s36")
        def aload(b, kk):
            if which == 1: return [f"buffer_load_dwordx4 {vr(AB+16*b+8*kk+4*mt,4)}, v{LO+mt+(b&2)}, s[8:11], s44 offen offset:{(b&1)*2048+kk*1024} {LF1}" for mt in range(2)]
            return [f"buffer_load_dwordx4 {vr(AB+16*b+8*kk+4*mt,4)}, v{LO+2*b+kk}, s[8:11], s44 offen offset:{mt*256} {LF2}" for mt in range(2)]
    else:
        a.e(f"s_mul_i32 s36, s34, {MT*2048}"); a.e(f"v_add_u32 v{a0}, s36, v{l16}")
    nwr, wpos = w_bases(a, which, w0, 35, NT, t, t2)
    a = a_
    if which == 3 and not B0E: publish(a, ST_G2S, 4, pt, ctr=48)
    if which == 2:
        a.e(f"s_lshl_b32 s36, s37, 8"); a.e(f"s_add_u32 s36, s36, {LNSL}"); a.e(f"v_lshlrev_b32 v{t2}, 4, v{J}"); a.e(f"v_add_u32 v{t2}, s36, v{t2}")
        for mt in range(MT): a.e(f"ds_read_b64 {vr(fX+2*mt,2)}, v{t2} offset:{mt*256}")
        a.e("s_waitcnt vmcnt(4) lgkmcnt(0)")
        for mt in range(MT):
            for p in range(NT // 2):
                for e in range(4):
                    X = A_(mt, 2 * p) + 2 * e
                    unpack(a, X, X + 1, res + (mt * (NT // 2) + p) * 4 + e)
                    a.e(f"v_pk_add_f32 {vr(X,2)}, {vr(X,2)}, {SUBM(fX+2*mt)}"); round2(a, X, X + 1, tmp)
                    a.e(f"v_pk_mul_f32 {vr(X,2)}, {vr(X,2)}, {MULR(fX+2*mt)}"); round2(a, X, X + 1, tmp)
    elif which == 1:
        for i in range(0, MT * NT * 4, 2): a.e(f"v_pk_mov_b32 {vr(acc+i,2)}, 0, 0")
    RX = [180, 184, 188, 192, 196, 230, 234, 248]
    def last_res():
        b0 = Rec()
        for i in range(2):
            b0.e(f"s_add_u32 s36, s40, {i*65536}")
            for p in range(2):
                b0.e(f"buffer_load_dwordx4 {vr(RX[2*(2*i+p)],4)}, v{l16}, s[84:87], s36 offen offset:{p*1024} {SC}")
                b0.e(f"buffer_load_dwordx4 {vr(RX[2*(2*i+p)+1],4)}, v{l16}, s[88:91], s36 offen offset:{p*1024} {SC}")
        return b0.l
    def reads(F, kk):
        o = []
        for mt in range(MT): o.append(f"ds_read_b128 {vr(F+4*mt,4)}, v{aa} offset:{mt*256+kk*8192 if which == 2 else mt*2048+kk*1024}")
        for nt in range(NT):
            for h in range(2):
                r, imm = wpos(nt, kk, h)
                o.append(f"ds_read_b64_tr_b16 {vr(F+4*(MT+nt)+2*h,2)}, v{wa+r} offset:{imm}")
        NR = os.environ.get("NOREAD")
        if NR == "N": o = []
        if NR == "A": o = o[MT:]
        if NR == "W": o = o[:MT]
        if NR == "H": o = o[::2]
        if NR == "X": o = o + o[:2]
        if NR == "XX": o = o + o[:MT]
        return o
    def mix(rd, ex):
        rd = list(rd)
        for i, x in enumerate(ex): rd.insert(min(len(rd), (i + 1) * len(rd) // (len(ex) + 1)), x)
        return rd
    def mfmas(F, rd, tail=()):
        n = MT * NT; k = 0; tot = len(rd); span = max(1, n * 3 // 4); done = 0; tail = list(tail); per = -(-len(tail) // max(1, n - span))
        OR = os.environ.get("ORDER", "2")
        order = {"0": [(nt, mt) for nt in range(NT) for mt in range(MT)],
                 "1": [(nt, mt) for mt in range(MT) for nt in range(NT)],
                 "2": [(nt, mt if nt % 2 == 0 else MT - 1 - mt) for nt in range(NT) for mt in range(MT)],
                 "3": [(nt if mt % 2 == 0 else NT - 1 - nt, mt) for mt in range(MT) for nt in range(NT)]}[OR]
        for nt, mt in order:
            if True:
                cc = acc + 4 * (mt * NT + nt)
                if str(which) not in os.environ.get("NOMF", ""): a.e(f"v_mfma_f32_16x16x32_bf16 {vr(cc,4)}, {vr(F+4*(MT+nt),4)}, {vr(F+4*mt,4)}, {vr(cc,4)}")
                k += 1
                while rd and done < (tot * k + span - 1) // span: a.e(rd.pop(0)); done += 1
                if k >= span and k < n:
                    for _ in range(min(per, len(tail))): a.e(tail.pop(0))
        assert not rd and not tail
    so = SO3 if which == 3 else a0; cs = fX; lns = fX + 4 * NT; G4W = 240; EA = 244
    def ep_setup(b):
        if which in (1, 3):
            assert which == 1 or (fY <= C2R and C2R + 24 <= fY + 4 * NF)
            b.e(f"s_mul_i32 s36, s35, {NT*64}"); b.e(f"s_add_u32 s36, s36, {CSO[which]}"); b.e(f"v_lshlrev_b32 v{t}, 4, v{G}"); b.e(f"v_add_u32 v{t}, s36, v{t}")
            b.e(f"s_lshl_b32 s36, s37, 8"); b.e(f"s_add_u32 s36, s36, {LNSL + (8 if which == 1 else 0)}"); b.e(f"v_lshlrev_b32 v{t2}, 4, v{J}"); b.e(f"v_add_u32 v{t2}, s36, v{t2}")
        if which == 3:
            lsrd(b, 16, oH2, H2SZ)
            b.e(f"s_mul_i32 s39, s37, {224*1024}")
            for P in range(4):
                b.e("s_lshr_b32 s36, s38, 1"); b.e(f"s_add_u32 s36, s36, {P}"); spread(b, 44 + P, 36); b.e(f"s_add_u32 s{44+P}, s{44+P}, s39")
            w_bases(b, 4, G4W, 35, 4, tp, tp + 1)
            b.e("s_lshl_b32 s38, s33, 3"); b.e("s_lshl_b32 s36, s35, 2"); b.e("s_add_u32 s38, s38, s36")
            b.e("s_lshr_b32 s36, s38, 1"); spread(b, 39, 36); b.e("s_lshl_b32 s36, s37, 16"); b.e("s_add_u32 s39, s39, s36")
            b.e("s_lshl_b32 s40, s31, 17"); b.e("s_add_u32 s40, s40, s39")
            b.e("s_xor_b32 s41, s31, 1"); b.e("s_lshl_b32 s41, s41, 17"); b.e("s_add_u32 s41, s41, s39")
            lsrd(b, 84, oX3, XSZ); lsrd(b, 88, oX1P, XSZ); b.srd(80, 4, 4 * MB, off=globals()["Y"])
            b.e("s_lshl_b32 s36, s37, 1"); b.e("s_add_u32 s36, s36, s35"); b.e("s_lshl_b32 s36, s36, 10"); b.e(f"v_add_u32 v{EA}, s36, v{l16}")
            b.e(f"v_mov_b32 v{EA+1}, 1"); b.e(f"v_mov_b32 v{EA+2}, {LW+64}")
            b.e(f"v_lshrrev_b32 v{so}, 1, v{G}"); b.e(f"v_lshlrev_b32 v{so}, 8, v{so}"); b.e(f"v_lshl_add_u32 v{so}, v{J}, 4, v{so}")
            b.e(f"v_and_b32 v{tmp}, 1, v{G}"); b.e(f"v_lshl_add_u32 v{so}, v{tmp}, 3, v{so}")
        if which == 1:
            hs_srd(b, 16)
            b.e(f"v_mul_u32_u24 v{so}, {PITCH}, v{G}"); b.e(f"v_lshl_add_u32 v{so}, v{J}, 4, v{so}")
            b.e(f"s_mul_i32 s39, s38, {2*PITCH}"); b.e("s_lshl_b32 s36, s37, 8"); b.e("s_add_u32 s39, s39, s36"); b.e("s_add_u32 s39, s39, 16384")
            b.e("s_lshl_b32 s36, s28, 11"); b.e("s_add_u32 s39, s39, s36")
            b.e("s_lshr_b32 s36, s29, 2"); b.e("s_xor_b32 s36, s36, s94"); b.e("s_and_b32 s36, s36, 1"); b.e("s_lshl_b32 s36, s36, 13"); b.e("s_add_u32 s39, s39, s36")
            b.e(f"s_add_u32 s40, s39, {4*PITCH}")
            b.e("s_lshl_b32 s36, s29, 1"); spread(b, 41, 36); b.e("s_lshl_b32 s36, s37, 16"); b.e("s_add_u32 s41, s41, s36")
        if which == 2: lsrd(b, 16, oX1P, XSZ)
    def cost(x): return sum(8 if y.startswith("ds_") else 4 for y in x.split("\n"))
    def group(F, rd, r0, ex, fixed={}, zero=False):
        n = MT * NT; ex = [x if isinstance(x, tuple) else (x, -1) for x in ex]; done = 0
        order = [(nt, mt if nt % 2 == 0 else MT - 1 - mt) for nt in range(NT) for mt in range(MT)]
        need = sum(cost(x) for x, _ in ex) + 8 * len(rd) + sum(cost(x) for l in fixed.values() for x in l)
        cap = max(12, -(-need // (4 * n)) * 4)
        for k, (nt, mt) in enumerate(order):
            cc = A_(mt, nt)
            if str(which) not in os.environ.get("NOMF", ""): a.e(f"v_mfma_f32_16x16x32_bf16 {vr(cc,4)}, {vr(F+4*(MT+nt),4)}, {vr(F+4*mt,4)}, {0 if zero else vr(cc,4)}")
            b_ = cap - sum(cost(x) for x in fixed.get(k, [])); nv = 0
            if k >= r0 and done < len(rd): a.e(rd[done]); done += 1; b_ -= 8
            while ex and ex[0][1] < done and (cost(ex[0][0]) <= b_ or k == n - 1) and not (nv >= (1 if rd else 2) and ex[0][0].startswith("v_") and cap == 12 and k < n - 1):
                x = ex.pop(0)[0]; a.e(x); b_ -= cost(x); nv += x.startswith("v_")
            for x in fixed.get(k, []): a.e(x)
        assert done == len(rd) and not ex
    NR_ = MT + 2 * NT; BP = eval(os.environ.get("BP", "{3:3,4:2}")).get(which, 0)
    def stage(ex=(), ey=(), lim=NS-1, late=False, zero=False, pre=()):
        if str(which) in os.environ.get("GST", "") or os.environ.get("JIT"): mstamp(a, True)
        if which == 3: last = {0: NR_ - 1, 1: NR_ - 3}
        else: last = {i: MT + 2 * i + 1 for i in range(4)}
        book = ["s_add_u32 s42, s42, 16384", f"s_cmp_eq_u32 s42, {NA*16384}", "s_cselect_b32 s42, 0, s42",
                f"s_add_u32 s48, s48, {STB}", f"s_cmp_eq_u32 s48, {NW*STB}", "s_cselect_b32 s48, 0, s48", (f"v_add_u32 v{aa}, s42, v{a0}", MT - 1)]
        book += sorted([(f"v_add_u32 v{wa+i}, s48, v{w0+i}", last[i]) for i in range(nwr)], key=lambda x: x[1])
        n = MT * NT
        group(fX, reads(fY, 1), 0, book[:7] + list(ex) + book[7:], {3: [f"s_waitcnt lgkmcnt({min(15, NR_ - MT - 4 + 4)})"], 7: ["s_waitcnt lgkmcnt(8)"], n - 1: [f"s_waitcnt lgkmcnt({NR_ - MT - 2})"]}, zero)
        if late:
            b_ = Rec(); ep_setup(b_)
            group(fY, [], 0, ["s_add_u32 s43, s43, 1"] + b_.l, {min(BP, 3): ["s_waitcnt lgkmcnt(0)"]})
            if B0E: publish(a, ST_G2S, 4, pt, ctr=48)
            a.e("s_barrier")
            for x in reads(fX, 0): a.e(x)
            a.e(f"s_waitcnt lgkmcnt({NR_ - MT - 2})")
            return
        group(fY, reads(fX, 0), BP + 1, list(ey) + ["s_add_u32 s43, s43, 1", f"s_cmp_lt_u32 s43, {lim}"],
              {BP - 1: list(pre), BP: ["s_waitcnt lgkmcnt(0)", "s_barrier"], n - 1: [f"s_waitcnt lgkmcnt({NR_ - MT - 2})"]})
    w00 = c["S0"] * STB
    if which <= 2:
        def wrd(p, b): return [f"ds_read_b64_tr_b16 {vr((fX, fY)[p]+16*kk+4*nt+2*h,2)}, v{w0+nt} offset:{b*STB + wpos(nt, kk, h)[1]}" for kk in range(2) for nt in range(4) for h in range(2)]
        def dmf(b, fill, lo=0, hi=16):
            k = 0
            for kk in range(2):
                for nt in range(4):
                    for mt in ((0, 1) if nt % 2 == 0 else (1, 0)):
                        if lo <= k < hi:
                            a.e(f"v_mfma_f32_16x16x32_bf16 {vr(A_(mt,nt),4)}, {vr((fX, fY)[b&1]+16*kk+4*nt,4)}, {vr(AB+16*b+8*kk+4*mt,4)}, {vr(A_(mt,nt),4)}")
                            for x in fill[k]: a.e(x)
                        k += 1
        def spreadf(l, lo, hi):
            f = [[] for _ in range(16)]
            for i, x in enumerate(l): f[lo + i * (hi - lo) // len(l)].append(x)
            return f
        a.e("s_mov_b32 s43, 0"); ep_setup(a)
        CK = str(which) in DP; ck_ = aa
        def check(b):
            B = AB + 16 * b
            if which == 2: return [f"v_bitop3_b32 v{ck_}, v{B}, v{B+4}, v{B+8} bitop3:0x80", f"v_bitop3_b32 v{ck_}, v{ck_}, v{B+12}, s60 bitop3:0x2a", f"v_cmp_ne_u32 vcc, 0, v{ck_}"]
            return [f"v_or3_b32 v{ck_}, v{B}, v{B+4}, v{B+8}", f"v_bitop3_b32 v{ck_}, v{ck_}, v{B+12}, 1 bitop3:0xa8", f"v_cmp_ne_u32 vcc, 0, v{ck_}"]
        L = a.lab("dm"); allp = [x for b in range(4) for kk in range(2) for x in aload(b, kk)][:14]
        if CK:
            NSP = 4 * eval(os.environ.get("NSP", "(0,1,1)"))[which]; NSP = min(NSP, 14); GF = eval(os.environ.get("GFIRST", "(0,0,0)"))[which]
            a.e("s_mov_b32 s53, 0"); a.e("s_mov_b32 s49, s44")
            if which == 2:
                a.e("s_barrier")
                a.e("s_cmp_eq_u32 s60, 0"); a.e(f"s_cbranch_scc1 {L}z")
            for x in wrd(0, 0): a.e(x)
            if GF: a.e(f"s_sleep {GF}")
            a.e(f"{L}p:")
            for x in allp[:NSP]: a.e(x + ("" if SC in x else SC))
            a.e(f"s_waitcnt vmcnt({NSP - 4})")
            for x in check(0): a.e(x)
            a.e(f"s_cbranch_vccz {L}q"); a.e(f"s_sleep {os.environ.get('GNAP', '2')}")
            a.e("s_add_u32 s53, s53, 1"); a.e("s_cmp_lt_u32 s53, s61"); a.e(f"s_cbranch_scc1 {L}p"); a.e("s_mov_b32 s61, 0")
            a.e(f"{L}q:")
            mstamp(a)
            for x in allp[NSP:]: a.e(x)
            a.e("s_waitcnt lgkmcnt(0)")
            if which == 2:
                a.e(f"s_branch {L}"); a.e(f"{L}z:")
                for x in allp[:8] + wrd(0, 0) + allp[8:]: a.e(x)
                a.e("s_waitcnt vmcnt(10) lgkmcnt(0)")
                mstamp(a)
        else:
            a.e("s_waitcnt lgkmcnt(0)"); a.e("s_barrier")
            for x in allp[:8] + wrd(0, 0) + allp[8:]: a.e(x)
            a.e("s_waitcnt vmcnt(10) lgkmcnt(0)")
            mstamp(a)
        a.e(f"{L}:")
        for b in range(4):
            rd = wrd(1 - (b & 1), (b + 1) & 3); ex = [[] for _ in range(16)]
            ex[0], ex[1] = [[x] for x in aload((b - 1) & 3, 1)]
            if b == 0:
                for i, x in enumerate(["s_mov_b32 s44, s45", "s_mov_b32 s45, s46", "s_mov_b32 s46, s47", f"s_mov_b32 s47, {OOB}"]): ex[2 + i].append(x)
            if b == 2:
                ex[2].append("s_add_u32 s43, s43, 1"); ex[3].append("s_cmp_eq_u32 s43, 4")
                for nt, g_ in enumerate((11, 12, 13, 15)): ex[g_].append(f"v_add_u32 v{w0+nt}, {4*STB}, v{w0+nt}")
            if b == 3 and CK: ex[2].append("s_mov_b32 s49, s44")
            ex[7].append("s_waitcnt lgkmcnt(8)")
            ex[8], ex[9] = [[x] for x in aload(b, 0)]
            ex[10].append("s_waitcnt vmcnt(10)")
            if CK:
                for i, x in enumerate(check((b + 1) & 3)): ex[11 + i].append(x)
            fill = [rd[i:i+1] + ex[i] for i in range(16)]
            fill[14] = rd[14:16] + ex[14]; fill[15] = ex[15] + ["s_waitcnt lgkmcnt(8)"]
            if CK: fill[15] += [f"s_cbranch_vccnz {L}f{b}", f"{L}g{b}:"]
            if b == 2: fill[15].append(f"s_cbranch_scc1 {L}x")
            if b == 3: fill[15].append(f"s_branch {L}")
            dmf(b, fill)
        for b in range(4 if CK else 0):
            nb = (b + 1) & 3
            a.e(f"{L}f{b}:"); a.e("s_cselect_b32 s50, 1, 0")
            a.e(f"{L}h{b}:"); a.e(f"s_sleep {os.environ.get('GNAP', '2')}")
            for j in range(4):
                bb = (nb + j) & 3
                for kk in range(2 if j < 3 else 1):
                    for x in aload(bb, kk): a.e(x.replace("s44", "s49" if bb >= nb else "s44") + ("" if SC in x else SC))
            a.e("s_waitcnt vmcnt(10)")
            for x in check(nb): a.e(x)
            a.e("s_add_u32 s53, s53, 1"); a.e("s_cmp_ge_u32 s53, s61"); a.e("s_cselect_b32 s61, 0, s61"); a.e(f"s_cbranch_scc1 {L}k{b}")
            a.e(f"s_cbranch_vccnz {L}h{b}")
            a.e(f"{L}k{b}:"); a.e("s_cmp_eq_u32 s50, 1"); a.e(f"s_branch {L}g{b}")
        a.e(f"{L}x:")
    else:
        if which == 3:
            a.e(f"v_mov_b32 v{aa}, v{a0}")
            a.e("s_mov_b32 s42, 0"); a.e("s_mov_b32 s43, 0"); a.e(f"s_mov_b32 s48, {w00}")
            for i in range(nwr): a.e(f"v_add_u32 v{wa+i}, {w00}, v{w0+i}")
        if not (which == 3 and B0E): a.e("s_waitcnt lgkmcnt(0)"); a.e("s_barrier")
        mstamp(a)
        for x in reads(fX, 0): a.e(x)
        a.e(f"s_waitcnt lgkmcnt({NR_ - MT - 2})")
    if which == 4:
        def st2(j): return [(x, 0) for x in [f"s_add_u32 s36, s44, {j*224*1024}", f"buffer_store_dwordx4 {vr(C2R+4*j,4)}, v{l16}, s[16:19], s36 offen {SC}",
                            f"s_add_u32 s36, s45, {j*224*1024}", f"buffer_store_dwordx2 {vr(C2R+16+2*j,2)}, v{SO3}, s[16:19], s36 offen {SC}"]]
        assert PBB in (1, 2) and PC0 >= 2
        for st_ in range(2): stage(st2(2 * st_), st2(2 * st_ + 1), zero=st_ == 0, pre=[f"s_waitcnt vmcnt({4 * st_ + 2})"] if PBB == st_ + 1 else [])
        CW = 0
        if PC0 > 3:
            L0 = a.lab("mm"); a.e(f"{L0}:"); stage(lim=PC0); a.e(f"s_cbranch_scc1 {L0}")
        elif PC0 == 3: stage()
    if which == 3 and os.environ.get("PEEL3", "1") == "1": stage(late=True, zero=True)
    if which > 2:
        L = a.lab("mm"); a.e(f"{L}:")
        stage(pre=[f"s_waitcnt vmcnt({CW})"] if which == 4 else [])
        a.e(f"s_cbranch_scc1 {L}")
    b0 = Rec()
    if which == 4:
        a.e("s_cmp_eq_u32 s60, 1"); a.e("s_cbranch_scc1 G4_last")
        if not RPC: r_pre(b0)
    if which == 1:
        for mt in range(MT):
            for p in range(NT // 2): b0.e(f"buffer_load_dwordx4 {vr(RES2+(mt*(NT//2)+p)*4,4)}, v{LO+mt}, s[8:11], s41 offen offset:{p*1024} {SC}")
    early = True
    XW = {3: [f"s_waitcnt lgkmcnt({min(15, NR_ - MT)})"], 7: ["s_waitcnt lgkmcnt(8)"]}
    if which <= 2: dmf(3, spreadf(b0.l, 0, 8), 0, 8)
    else: group(fX, reads(fY, 1), 0, b0.l, XW)
    a.e("s_waitcnt lgkmcnt(0)")
    if which not in DL: a.e("s_barrier")
    b = Rec()
    if which in (1, 3):
        for nt in range(NT): b.e(f"ds_read_b128 {vr(cs+4*nt,4)}, v{t} offset:{nt*64}")
        if which == 3:
            for mt in range(MT): b.e(f"ds_read_b128 {vr(lns+4*mt,4)}, v{t2} offset:{mt*256}")
            for i in range(4): b.e(f"v_mov_b32 v{w0+i}, v{G4W+i}"); b.e(f"v_add_u32 v{wa+i}, {CFG[4]['S0']*CFG[4]['STB']}, v{G4W+i}")
            b.e("s_mov_b32 s42, 0"); b.e("s_mov_b32 s43, 0"); b.e(f"s_mov_b32 s48, {CFG[4]['S0']*CFG[4]['STB']}"); b.e(f"v_mov_b32 v{aa}, v{a0}")
            assert fY + 16 == RFO; r_addr(b)
        else:
            for mt in range(MT): b.e(f"ds_read_b64 {vr(lns+2*mt,2)}, v{t2} offset:{mt*256}")
    if which == 2: lsrd(b, 44, oST2, 24576)
    if which == 4:
        b.e(f"s_mul_i32 s36, s31, {oP1-oP0}"); b.e(f"s_add_u32 s36, s36, {oP0}")
        b.e("s_add_u32 s16, s62, s36"); b.e("s_addc_u32 s17, s63, 0"); b.e(f"s_mov_b32 s18, {XSZ}"); b.e("s_mov_b32 s19, 0x20000")
    if which <= 2: dmf(3, spreadf(b.l, 8, 15), 8, 16)
    else: group(fY, [], 0, b.l)
    mstamp(a)
    if which in (1, 3):
        AB = v(2 * MT, 2) if which == 1 else fY + 4
        def consts():
            for mt in range(MT if which == 1 else 0):
                r = lns + 2 * mt + 1
                a.e(f"v_mul_f32 v{AB+2*mt}, {f32(GC1)}, v{r}"); a.e(f"v_mul_f32 v{AB+2*mt+1}, v{r}, v{r}")
                a.e(f"v_mul_f32 v{AB+2*mt+1}, v{AB+2*mt+1}, v{AB+2*mt}"); a.e(f"v_mul_f32 v{AB+2*mt+1}, {f32(0.044715)}, v{AB+2*mt+1}")
                a.e(f"v_rcp_f32 v{r}, v{r}")
        def act(mt, nt):
            A = A_(mt, nt); P_ = [(A, tp), (A + 2, tp + 2)]; L_ = vr(lns + 2 * mt, 2); K_ = vr(AB + 2 * mt, 2)
            if which == 3: L_ = vr(lns + 4 * mt, 2); K_ = vr(lns + 4 * mt + 2, 2)
            for h in range(2):
                a.e(f"v_pk_fma_f32 {vr(A+2*h,2)}, {L_}, {vr(cs+4*nt+2*h,2)}, {vr(A+2*h,2)} op_sel_hi:[0,1,1] neg_lo:[1,0,0] neg_hi:[1,0,0]")
            for x, u in P_: a.e(f"v_pk_mul_f32 {vr(u,2)}, {vr(x,2)}, {vr(x,2)}")
            for x, u in P_: a.e(f"v_pk_fma_f32 {vr(u,2)}, {vr(u,2)}, {K_}, {K_} op_sel:[0,1,0] op_sel_hi:[1,1,0]")
            for x, u in P_: a.e(f"v_pk_mul_f32 {vr(u,2)}, {vr(u,2)}, {vr(x,2)}")
            for i in range(4): a.e(f"v_exp_f32 v{tp+i}, v{tp+i}")
            for x, u in P_: a.e(f"v_pk_fma_f32 {vr(u,2)}, {vr(u,2)}, {L_}, {L_} op_sel:[0,1,1] op_sel_hi:[1,1,1]")
            for i in range(4): a.e(f"v_rcp_f32 v{tp+i}, v{tp+i}")
            for x, u in P_: a.e(f"v_pk_mul_f32 {vr(x,2)}, {vr(x,2)}, {vr(u,2)}")
        def egroup(par, mt, nts, dst=None):
            for nt in nts: act(mt, nt)
            T = par * NT + nts[0]; P = (T >> 1) - ((par * NT) >> 1); B = A_(mt, nts[0]); D = B if dst is None else dst
            for k in range(2 * len(nts)): a.e(f"v_cvt_pk_bf16_f32 v{D+k}, v{B+2*k}, v{B+2*k+1}")
            if which == 3 and mt < 3 and "1" in DP: mark(a, D, 1)
            if which == 1 and "2" in DP: a.e(f"v_and_or_b32 v{D}, v{D}, -2, s60")
            if which == 3: return [f"s_add_u32 s36, s{44+P}, {mt*224*1024}", f"buffer_store_dwordx4 {vr(B,4)}, v{l16}, s[16:19], s36 offen {SC}"]
            return [f"buffer_store_dwordx4 {vr(B,4)}, v{so}, s[16:19], s{39+P} offen offset:{mt*256} {SC}"]
        def body(par):
            if which == 1: gs = [(0, 1), (2, 3)]
            else: gs = [(0, 1), (2, 3), (4, 5), (6,)] if par == 0 else [(1, 2), (3, 4), (5, 6), (0,)]
            k = 0; pend = []; sent = 0
            for gi_, g_ in enumerate(gs):
                for mt in range(MT):
                    if which == 3 and k == C0PUB:
                        a.e(f"s_waitcnt vmcnt({sent - 4})"); a.e("s_mov_b64 exec, 1"); a.e(f"ds_add_u32 v{EA+2}, v{EA+1}"); a.e("s_mov_b64 exec, -1"); mstamp(a)
                    if which == 3 and k == RK:
                        b_ = Rec(); r_pre(b_); l_ = [x for x in b_.l if x.startswith(("buffer", "s_mov_b32 s78"))]
                        a.e("s_cmp_eq_u32 s60, 1"); a.e(f"s_cbranch_scc1 G4_p1{par}")
                        for x in l_: a.e(x)
                        a.e(f"s_branch G4_p2{par}"); a.e(f"G4_p1{par}:")
                        for x in last_res(): a.e(x)
                        a.e(f"G4_p2{par}:")
                        if 4 <= k < C0PUB: sent += 8
                    st_ = egroup(par, mt, g_, None if gi_ < 2 else C2R + 4 * mt if gi_ == 2 else C2R + 16 + 2 * mt); k += 1
                    if which == 3 and gi_ < 3:
                        a.e(f"ds_write_b128 v{EA}, {vr(A_(mt, g_[0]) if gi_ < 2 else C2R + 4 * mt, 4)} offset:{gi_*16384 + mt*2048}")
                    if gi_ < 2: pend.append(st_)
                    n = len(pend) if (which == 1 or k <= 4 or k == 16) else 0 if k <= STQ else min(1, len(pend))
                    for _ in range(n):
                        for x in pend.pop(0): a.e(x)
                        sent += 1
            if which == 3:
                a.e("s_waitcnt lgkmcnt(0)")
                if par == 0: a.e("s_mov_b32 s44, s46"); a.e("s_mov_b32 s45, s47")
                else: a.e("s_add_u32 s45, s44, 512"); a.e("s_mov_b32 s44, s47")
        a.e("s_waitcnt lgkmcnt(0)")
        consts()
        if which == 3:
            a.e("s_cmp_eq_u32 s35, 1"); a.e(f"s_cbranch_scc1 {nm}_e1")
            body(0); a.e(f"s_branch {nm}_e2"); a.e(f"{nm}_e1:"); body(1); a.e(f"{nm}_e2:")
        else: body(0)
    if which == 2:
        xf = v(2, 2); S = v(2 * MT, 2); pp = v(2, 2); mn = v(2, 2)
        for mt in range(MT):
            a.e(f"s_add_u32 s36, s39, {mt*65536}")
            for p in range(NT // 2):
                R = res + (mt * (NT // 2) + p) * 4
                for e in range(4):
                    X = A_(mt, 2 * p) + 2 * e
                    a.e(f"v_cvt_pk_bf16_f32 v{R+e}, v{X}, v{X+1}")
                if DP: mark(a, R, 0)
                a.e(f"buffer_store_dwordx4 {vr(R,4)}, v{l16}, s[16:19], s36 offen offset:{p*1024} {SC}")
        if which in DL: a.e("s_barrier")
        if OWN3:
            a.e("s_lshl_b32 s36, s37, 11"); a.e(f"v_add_u32 v{t2}, s36, v{l16}")
            for i in range(4): a.e(f"ds_write_b128 v{t2}, {vr(res+4*i,4)} offset:{1024*i}")
        for i in range(MT * NT * 2): unpack(a, acc + 2 * i, acc + 2 * i + 1, res + i)
        mstamp(a)
        publish(a, which, 4, pt)
        if B0E: a.e("s_waitcnt lgkmcnt(0)"); a.e("s_barrier")
        mstamp(a)
        for mt in range(MT):
            B = A_(mt, 0); Sm = S + 2 * mt
            a.e(f"v_pk_add_f32 {vr(pp,2)}, {vr(B,2)}, {vr(B+2,2)}"); a.e(f"v_pk_mul_f32 {vr(xf,2)}, {vr(B,2)}, {vr(B,2)}")
            for i in range(1, NT * 2):
                if i > 1: a.e(f"v_pk_add_f32 {vr(pp,2)}, {vr(pp,2)}, {vr(B+2*i,2)}")
                a.e(f"v_pk_fma_f32 {vr(xf,2)}, {vr(B+2*i,2)}, {vr(B+2*i,2)}, {vr(xf,2)}")
            a.e(f"v_add_f32 v{Sm}, v{pp}, v{pp+1}"); a.e(f"v_add_f32 v{Sm+1}, v{xf}, v{xf+1}")
            for op in ("v_permlane16_swap_b32", "v_permlane32_swap_b32"):
                for k in range(2): a.e(f"v_mov_b32 v{pp+k}, v{Sm+k}")
                for k in range(2): a.e(f"{op} v{Sm+k}, v{pp+k}")
                a.e(f"v_pk_add_f32 {vr(Sm,2)}, {vr(Sm,2)}, {vr(pp,2)}")
        a.e(f"v_cmp_eq_u32 vcc, 0, v{G}"); a.e(f"v_cndmask_b32 v{S}, v{S+2}, v{S}, vcc"); a.e(f"v_cndmask_b32 v{S+1}, v{S+3}, v{S+1}, vcc")
        spread(a, 40, 29); a.e("s_lshl_b32 s36, s34, 8"); a.e("s_add_u32 s40, s40, s36")
        a.e(f"v_lshlrev_b32 v{t2}, 3, v{lane}")
        a.e("s_bfm_b64 exec, 32, 0")
        a.e(f"buffer_store_dwordx2 {vr(S,2)}, v{t2}, s[44:47], s40 offen {SC}")
        a.e("s_mov_b64 exec, -1")
    if which == 4:
        for mt in range(MT):
            a.e(f"s_add_u32 s36, s39, {mt*65536}")
            for p in range(NT // 2):
                B = A_(mt, 2 * p)
                for e in range(4): a.e(f"v_cvt_pk_bf16_f32 v{B+e}, v{B+2*e}, v{B+2*e+1}")
                if "r" in DP: mark(a, B, 1)
                a.e(f"buffer_store_dwordx4 {vr(B,4)}, v{l16}, s[16:19], s36 offen offset:{p*1024} {SC}")
    if which != 2:
        if which in DL: a.e("s_barrier")
        mstamp(a)
        if which == 1 and "2" in DP: a.e("s_cmp_lg_u32 s60, 0"); a.e("s_cbranch_scc1 G1_np")
        if which != 3 and not (which == 4 and "r" in DP): publish(a, which, 4, pt)
        if which == 1 and "2" in DP: a.e("G1_np:")
        mstamp(a)
    if which == 4:
        a.e("s_branch NEXT")
        a.e("G4_last:")
        PX = 208; oa = 224; xf = 226
        group(fX, reads(fY, 1), 0, [(f"s_load_dwordx2 s[6:7], s[0:1], {D_OUT}", 9)], XW)
        a.e("s_waitcnt lgkmcnt(0)")
        b = Rec()
        lsrd(b, 16, oX1P if "f" in DP else MB, XSZ)
        b.srd(20, 6, 4 * MB)
        if "f" not in DP:
            b.e("s_lshl_b32 s44, s29, 2"); b.e("s_add_u32 s44, s44, s30"); b.e("s_lshl_b32 s44, s44, 7"); b.e("s_xor_b32 s45, s44, 4096")
            b.e("s_add_u32 s44, s44, s55"); b.e(f"s_add_u32 s44, s44, {oFP}"); b.e("s_add_u32 s45, s45, s55"); b.e(f"s_add_u32 s45, s45, {oFP}")
            b.e(f"v_mov_b32 v{pt+1}, s45"); b.e(f"v_mov_b32 v{pt+2}, s52"); b.e(f"v_mov_b32 v{pt+3}, 0")
        else: b.e("s_add_u32 s44, s40, 65536")
        b.e("s_lshl_b32 s46, s28, 3"); b.e("s_add_u32 s46, s46, s37"); b.e("s_lshl_b32 s47, s31, 1"); b.e("s_add_u32 s46, s46, s47"); b.e("s_lshl_b32 s46, s46, 15")
        b.e("s_lshl_b32 s47, s38, 5"); b.e("s_add_u32 s46, s46, s47"); b.e(f"s_add_u32 s47, s46, {16*2048}")
        b.e(f"v_and_b32 v{oa+1}, 1, v{G}"); b.e(f"v_lshlrev_b32 v{oa}, 11, v{J}"); b.e(f"v_lshl_add_u32 v{oa}, v{oa+1}, 5, v{oa}")
        b.e(f"v_lshrrev_b32 v{oa+1}, 1, v{G}"); b.e(f"v_lshl_add_u32 v{oa}, v{oa+1}, 4, v{oa}")
        FULLN = os.environ.get("FULLN", "1") == "1"
        if FULLN:
            b.e(f"v_cmp_gt_u32 s[48:49], 8, v{J}")
            b.e(f"v_lshrrev_b32 v{oa+1}, 3, v{J}"); b.e(f"v_mul_u32_u24 v{oa+1}, {8*2048 - 64}, v{oa+1}"); b.e(f"v_sub_u32 v{oa}, v{oa}, v{oa+1}")
            b.e(f"v_add_u32 v{oa+1}, {8*2048}, v{oa}")
        group(fY, [], 0, b.l)
        mstamp(a)
        a.e("s_cmp_eq_u32 s31, 0"); a.e("s_cbranch_scc1 G4_k0")
        for i in range(32): a.e(f"v_swap_b32 v{acc+i}, v{acc+32+i}")
        a.e("G4_k0:")
        for i in range(2):
            a.e(f"s_add_u32 s36, s41, {i*65536}")
            for p in range(2):
                B = A_(2 + i, 2 * p)
                for e in range(4): a.e(f"v_cvt_pk_bf16_f32 v{B+e}, v{B+2*e}, v{B+2*e+1}")
                if "f" in DP: mark(a, B, 1)
                a.e(f"buffer_store_dwordx4 {vr(B,4)}, v{l16}, s[16:19], s36 offen offset:{p*1024} {SC}")
        def addp(k, R):
            B = A_(k >> 1, 2 * (k & 1))
            for e in range(4):
                unpack(a, xf + 2 * (e & 1), xf + 1 + 2 * (e & 1), R + e)
                a.e(f"v_pk_add_f32 {vr(B+2*e,2)}, {vr(B+2*e,2)}, {vr(xf+2*(e&1),2)}")
        for k in range(4): addp(k, RX[2 * k])
        if "f" not in DP:
            a.e("s_waitcnt vmcnt(0)")
            a.e("s_mov_b64 exec, 1"); a.e(f"buffer_store_dword v{pt+2}, v{pt+3}, s[56:59], s44 offen {SC}"); a.e("s_mov_b64 exec, -1")
        mstamp(a)
        for k in range(4): addp(k, RX[2 * k + 1])
        if "f" in DP:
            data_poll(a, [f"buffer_load_dwordx4 {vr(PX+4*(2*i+p),4)}, v{l16}, s[16:19], s{(40, 44)[i]} offen offset:{p*1024} {SC}" for i in range(2) for p in range(2)],
                      [PX + 4 * k for k in range(4)], t, int(os.environ.get("FNAP", "2")), 0, int(os.environ.get("FCAN", "0")))
            mstamp(a)
        else:
            poll_core(a, pt, [pt + 1], 1, nap=2)
            mstamp(a)
            for i in range(2):
                a.e(f"s_add_u32 s36, s40, {i*65536}")
                for p in range(2): a.e(f"buffer_load_dwordx4 {vr(PX+4*(2*i+p),4)}, v{l16}, s[16:19], s36 offen offset:{p*1024} {SC}")
        for k in range(4):
            if "f" not in DP: a.e(f"s_waitcnt vmcnt({3 - (k & 1) if FULLN else 3})")
            addp(k, PX + 4 * k)
            B = A_(k >> 1, 2 * (k & 1))
            if os.environ.get("EPS"):
                for e in range(8): a.e(f"v_mul_f32 v{B+e}, {f32(1 + float(os.environ['EPS']) * (1 if e & 1 else -1))}, v{B+e}")
            for e in range(4): a.e(f"v_cvt_pk_bf16_f32 v{B+e}, v{B+2*e}, v{B+2*e+1}")
            for e in range(2): a.e(f"v_permlane16_swap_b32 v{B+e}, v{B+2+e}")
            if not FULLN: a.e(f"buffer_store_dwordx4 {vr(B,4)}, v{oa}, s[20:23], s{46+(k>>1)} offen offset:{64*(k&1)} {os.environ.get('OS', '')}")
            elif k & 1:
                X, Y, T = B - 8, B, B + 4
                for e in range(4): a.e(f"v_cndmask_b32 v{T+e}, v{X+e}, v{Y+e}, s[48:49]")
                for e in range(4): a.e(f"v_mov_b32_dpp v{X+4+e}, v{T+e} row_ror:8 row_mask:0xf bank_mask:0xf")
                for e in range(4): a.e(f"v_cndmask_b32 v{X+e}, v{X+4+e}, v{X+e}, s[48:49]"); a.e(f"v_cndmask_b32 v{Y+e}, v{Y+e}, v{X+4+e}, s[48:49]")
                a.e(f"buffer_store_dwordx4 {vr(X,4)}, v{oa}, s[20:23], s{46+(k>>1)} offen {SC}")
                a.e(f"buffer_store_dwordx4 {vr(Y,4)}, v{oa+1}, s[20:23], s{46+(k>>1)} offen {SC}")
        a.e("s_branch K_fin")
    assert v.hi <= {1: RES2, 2: RES2, 3: RYY, 4: 176}[which], v.hi
    return v.hi

def k_mega(a):
    nm = KNAME; a.begin_kernel(nm)
    a.e("s_cmp_ge_u32 s2, 256"); a.e("s_cbranch_scc1 K_end")
    a.e(f"s_load_dwordx8 s[8:15], s[0:1], {A_K}"); a.e(f"s_load_dwordx2 s[6:7], s[0:1], {A_Q}"); a.e(f"s_load_dwordx8 s[68:75], s[0:1], {B_W1}")
    a.e(f"s_load_dwordx2 s[4:5], s[0:1], {D_WS}"); a.e(f"s_load_dwordx2 s[84:85], s[0:1], {D_DBG}"); a.e("s_memrealtime s[46:47]")
    a.e(f"s_load_dwordx2 s[96:97], s[0:1], {A_SSMD}")
    a.e("v_lshrrev_b32 v1, 6, v0"); a.e("v_readfirstlane_b32 s30, v1")
    if CODEPF:
        a.e("s_getpc_b64 s[48:49]"); a.e("K_pc:")
        a.e("s_lshr_b32 s36, s2, 3"); a.e("s_lshl_b32 s36, s36, 11")
        a.e("v_lshlrev_b32 v4, 2, v0"); a.e("v_add_u32 v4, s36, v4")
        a.e("v_cmp_gt_u32 vcc, K_end-K_pc-8, v4"); a.e("s_and_saveexec_b64 s[36:37], vcc"); a.e("s_cbranch_execz K_3")
        a.e("v_mov_b32 v5, s49"); a.e("v_add_co_u32 v4, vcc, s48, v4"); a.e("v_addc_co_u32 v5, vcc, 0, v5, vcc")
        a.e("global_load_dword v250, v[4:5], off")
        a.e("K_3:"); a.e("s_mov_b64 exec, -1")
    for _ in range(int(os.environ.get("SDELAY", "0"))): a.e("s_sleep 127")
    front_loads(a)
    a.e("v_and_b32 v1, 63, v0"); a.e("v_lshlrev_b32 v2, 4, v1"); a.e("v_lshlrev_b32 v3, 2, v1")
    a.e("s_and_b32 s32, s2, 7"); a.e("s_lshr_b32 s33, s2, 3")
    a.e("s_and_b32 s28, s32, 2"); a.e("s_lshr_b32 s34, s32, 2"); a.e("s_or_b32 s28, s28, s34")
    a.e("s_lshl_b32 s28, s28, 2"); a.e("s_and_b32 s34, s33, 3"); a.e("s_add_u32 s28, s28, s34")
    a.e("s_and_b32 s31, s32, 1"); a.e("s_lshr_b32 s33, s33, 2")
    a.e("s_lshl_b32 s29, s31, 3"); a.e("s_add_u32 s29, s29, s33")
    if MAP == 8:
        a.e("s_lshr_b32 s33, s2, 3")
        a.e("s_and_b32 s28, s33, 4"); a.e("s_lshl_b32 s28, s28, 1"); a.e("s_and_b32 s34, s32, 4"); a.e("s_or_b32 s28, s28, s34"); a.e("s_and_b32 s34, s33, 3"); a.e("s_or_b32 s28, s28, s34")
        a.e("s_and_b32 s29, s32, 3"); a.e("s_lshl_b32 s29, s29, 2"); a.e("s_lshr_b32 s33, s33, 3"); a.e("s_or_b32 s29, s29, s33")
        a.e("s_lshr_b32 s31, s29, 3"); a.e("s_and_b32 s33, s29, 7")
    if MAP == 2:
        a.e("s_lshr_b32 s33, s2, 3")
        a.e("s_and_b32 s28, s32, 2"); a.e("s_lshl_b32 s28, s28, 2"); a.e("s_and_b32 s34, s32, 4"); a.e("s_or_b32 s28, s28, s34")
        a.e("s_and_b32 s34, s32, 1"); a.e("s_lshl_b32 s34, s34, 1"); a.e("s_or_b32 s28, s28, s34"); a.e("s_and_b32 s34, s33, 1"); a.e("s_or_b32 s28, s28, s34")
        a.e("s_lshr_b32 s29, s33, 1"); a.e("s_lshr_b32 s31, s29, 3"); a.e("s_and_b32 s33, s29, 7")
    a.e({4: "s_lshl_b32 s67, s33, 1", 8: "s_lshl_b32 s67, s33, 2", 2: "s_mov_b32 s67, s29"}[MAP]); a.e(f"s_and_b32 s67, s67, {int(os.environ.get('RMASK', '0'))}")
    a.e(f"s_xor_b32 s99, s29, {os.environ.get('G1X', '1')}")
    a.e("s_mov_b32 s60, 0"); a.e("s_mov_b32 s61, 40000"); a.e("s_mov_b32 s52, 0")
    a.e("s_mov_b32 s55, 0"); a.e("s_mov_b32 s92, 0"); a.e("s_mov_b32 s93, 0"); a.e("s_mov_b32 s94, 0")
    a.srd(56, 4, HSB)
    if os.environ.get("FIXT"): a.e("s_mov_b32 s101, s46")
    r_addr(a)
    a.e(f"s_add_u32 s62, s4, {LB0}"); a.e("s_addc_u32 s63, s5, 0")
    if STAMP:
        a.e("s_mov_b32 s66, 1"); a.e("v_mov_b32 v255, -1"); a.e("s_mov_b32 s95, 0"); a.e("v_writelane_b32 v255, s46, 0")
    mstamp(a)
    if os.environ.get("WBENCH"):
        a.e("s_waitcnt vmcnt(0)"); a.e("s_barrier")
        a.e("s_cmp_lt_u32 s30, 6"); a.e("s_cbranch_scc1 WB_end")
        for w in (1, 2, 3, 4):
            mstamp(a); w_setup(a, w); a.e("s_waitcnt vmcnt(0)"); mstamp(a); a.e("s_sleep 40")
        a.e("WB_end:"); a.e("s_branch K_dump")
    front_a(a); mstamp(a)
    for r in range(238, 248): a.e(f"v_mov_b32 v{r}, 0")
    a.e("s_cmp_ge_u32 s30, 4"); a.e("s_cbranch_scc1 FR_b")
    front_conv(a); hi = 0
    mstamp(a)
    front_arrive(a, True)
    a.e("s_branch FR_end")
    a.e("FR_b:")
    front_b(a)
    a.e("FR_end:")
    mstamp(a)
    a.e("LAYER:")
    if os.environ.get("XDELAY"): a.e(f"s_sleep {os.environ['XDELAY']}")
    hi = max(hi, r_stage(a, False))
    mstamp(a)
    a.e("s_cmp_ge_u32 s30, 4"); a.e("s_cbranch_scc1 LOADERS")
    if CPRIO: a.e(f"s_setprio {CPRIO}")
    for w in (1, 2, 3, 4):
        a.lines.append(f"; ---- G{w}: compute waves (set-up, K loop, epilogue, publish)")
        hi = max(hi, g_compute(a, w))
    a.e("LOADERS:")
    if SB[2]:
        a.e("s_cmp_lg_u32 s60, 0"); a.e("s_cbranch_scc1 LD_0"); sb(a, SB[2]); a.e("LD_0:")
    if PRIO: a.e(f"s_setprio {PRIO}")
    a.e("s_cmp_ge_u32 s30, 6"); a.e("s_cbranch_scc1 WLOAD")
    for w in (1, 2, 3, 4): a_loader(a, w)
    a.e("s_branch NEXT")
    a.e("WLOAD:")
    a.e("s_cmp_eq_u32 s60, 1"); a.e("s_cbranch_scc1 WL_1")
    w_setup(a, 1, pre=False); w1_slots(a, range(9 - W1G), pace=12); mstamp(a)
    a.e("s_branch WL_2")
    a.e("WL_1:")
    w_setup(a, 1, pre=False); w1_slots(a, range(3 - W1L), pace=12)
    a.e("WL_2:")
    for w in (1, 2, 3, 4):
        w_loader(a, w)
        if w == 2:
            c = CFG[3]; w_setup(a, 3, pre=False); a.e(f"s_mov_b32 s42, {(c['S0'] + 2) % c['NW'] * c['STB']}"); a.e("s_mov_b32 s44, 2")
        if w == 3: w_setup(a, 4)
    a.e("NEXT:")
    a.e("s_setprio 0")
    a.e("s_add_u32 s60, s60, 1"); a.e(f"s_add_u32 s55, s55, {LSTR}")
    a.e(f"s_add_u32 s62, s62, {LSTR}"); a.e("s_addc_u32 s63, s63, 0")
    a.e("s_branch LAYER")
    a.e("K_fin:")
    if os.environ.get("FIXT"):
        a.e("FX_l:"); a.e("s_sleep 4"); a.e("s_memrealtime s[64:65]"); a.e("s_waitcnt lgkmcnt(0)"); a.e("s_sub_u32 s64, s64, s101")
        if os.environ.get("FIX0"): a.e("s_add_u32 s64, s64, s101"); a.e("s_lshl_b32 s64, s64, 6"); a.e("s_sub_u32 s64, s64, s52"); a.e("s_lshr_b32 s64, s64, 6")
        a.e(f"s_cmp_lt_u32 s64, {os.environ['FIXT']}"); a.e("s_cbranch_scc1 FX_l")
    if STAMP:
        a.e("K_dump:")
        a.e("s_waitcnt vmcnt(0)")
        mstamp(a)
        a.srd(96, 4, 16 * MB, off=200 * MB)
        a.e("s_lshl_b32 s66, s2, 3"); a.e("s_add_u32 s66, s66, s30"); a.e("s_lshl_b32 s66, s66, 8")
        a.e("v_writelane_b32 v255, s95, 63")
        a.e("buffer_store_dword v255, v3, s[96:99], s66 offen")
        if os.environ.get("DBGOUT"):
            a.e("s_cmp_lg_u32 s66, 0"); a.e("s_cbranch_scc1 K_end")
            a.e(f"s_load_dwordx2 s[96:97], s[0:1], {D_DBG}"); a.e("s_mov_b32 s98, 64"); a.e("s_waitcnt lgkmcnt(0)")
            a.e("v_readlane_b32 s64, v255, 0"); a.e("v_mov_b32 v10, 0")
            for i, j in enumerate(eval(os.environ["DBGOUT"])):
                a.e(f"v_readlane_b32 s65, v255, {j}"); a.e("s_sub_u32 s65, s65, s64"); a.e("v_mov_b32 v11, s65")
                a.e(f"buffer_store_dword v11, v10, s[96:99], 0 offen offset:{8+4*i}")
    a.e("s_endpgm")
    emit_subs(a)
    a.e("K_end:")
    assert hi <= PV
    a.end_kernel(nm, 256)
    if TAB: tab_data(a)
    a.launches.append(f"; @launch grid=(256,1,1) block=(512,1,1) lds={LDS_TOTAL}")

HEADER = open("interleave_layers__ssm_conv_h3__mixer_s_mlp__prompt.s.ref").read().split("; Override launch")[0]
DOC = """; One persistent kernel, 256 workgroups x 8 waves (one per CU), generated by dev/gen26.py.
"""
def main(out):
    a = Asm()
    k_mega(a)
    DS = os.environ.get("DS")
    if DS:
        o = []
        for l in a.lines:
            o.append(l)
            if "buffer_store_dwordx" in l and "sc1" in l and any(k in l for k in DS.split(",")): o.append(l.replace(" sc1", ""))
        a.lines = o
    notes = {
        "K_pc:": "each workgroup reads 2 KB of this kernel's code so that later instruction fetches are served on chip",
        "KV_t0:": "k / v / tap loads of the u^T tile (64 times x 128 channels); workgroup 0 has posted the launch tag (a clock value) in d_debug",
        "HB_2:": "u^T tile out, arrival counters initialised to the tag, shifted filter copies into LDS, LayerNorm(q)",
        "CV_w:": "long causal convolution as Toeplitz MFMAs, one channel per wave",
        "FR_b:": "waves 4-7 beside the convolution: memory-locality vote (timed loads, layout choice only), weight column sums, weight touches",
        "LAYER:": "row stage: residual sums, LayerNorm chain, x + LN(x)*y for 8 rows per workgroup",
        "LOADERS:": "waves 4,5: activation tiles by LDS-DMA (after the producers' counters are complete)",
        "WLOAD:": "waves 6,7: weight tiles by LDS-DMA in their original layout (read back with transposing LDS loads)",
        "G4_last:": "last layer: the two K halves exchange half tiles, add the residuals and write the output",
    }
    o = []
    for l in a.lines:
        if l.strip() in notes: o.append("; ---- " + notes[l.strip()])
        if l.strip().startswith("s_sleep"): l += "    ; back-off inside a wait loop"
        o.append(l)
    a.lines = o
    open(out, "w").write(a.text(HEADER + DOC))
    print("nops added:", a.nops_added)

if __name__ == "__main__":
    main(sys.argv[1] if len(sys.argv) > 1 else "interleave_layers__ssm_conv_h3__mixer_s_mlp__prompt.s")
```

```python
import sys, os, math, struct
sys.path.insert(0, "dev")
from asmgen import Asm

KNAME = "interleave_layers__ssm_conv_h3__mixer_s_mlp__prompt_kernel"
MB = 1 << 20
UT, Y = 24 * MB, 28 * MB
CSP = {1: 20 * MB, 3: 20 * MB + 128 * 1024}
A_Q, A_K, A_V, A_SH, A_SSMK, A_SSMD, B_X, B_W1, B_W2, B_W3, B_W4, D_OUT, D_DBG, D_WS = [8 * i for i in range(14)]
STAMP = int(os.environ.get("STAMP", "0"))
def f32(x): return "0x%08x" % struct.unpack("<I", struct.pack("<f", x))[0]
GC1 = -2.0 * math.sqrt(2.0 / math.pi) * math.log2(math.e)
GC2 = GC1 * 0.044715

class VA:
    def __init__(self, start=1): self.n = start; self.hi = start
    def __call__(self, cnt=1, al=None):
        if al is None: al = 2 if cnt > 1 else 1
        self.n = (self.n + al - 1) // al * al
        r = self.n; self.n += cnt; self.hi = max(self.hi, self.n); return r
def vr(b, n): return f"v[{b}:{b+n-1}]" if n > 1 else f"v{b}"

def unpack(a, lo, hi, src):
    a.e(f"v_lshlrev_b32 v{lo}, 16, v{src}")
    a.e(f"v_and_b32 v{hi}, 0xffff0000, v{src}")
RND = int(os.environ.get("RND", "0"))
def round2(a, x, y, tmp):
    if not RND: return
    a.e(f"v_cvt_pk_bf16_f32 v{tmp}, v{x}, v{y}")
    unpack(a, x, y, tmp)
def round1(a, x):
    if not RND: return
    a.e(f"v_cvt_pk_bf16_f32 v{x}, v{x}, v{x}")
    a.e(f"v_lshlrev_b32 v{x}, 16, v{x}")
def red_g(a, x, t):
    a.e(f"v_mov_b32 v{t}, v{x}"); a.e(f"v_permlane16_swap_b32 v{x}, v{t}"); a.e(f"v_add_f32 v{x}, v{x}, v{t}")
    a.e(f"v_mov_b32 v{t}, v{x}"); a.e(f"v_permlane32_swap_b32 v{x}, v{t}"); a.e(f"v_add_f32 v{x}, v{x}, v{t}")
def ln_finish(a, mean, var, rs, s=None):
    round1(a, mean); round1(a, var)
    a.e(f"v_add_f32 v{var}, {f32(1e-5)}, v{var}"); round1(a, var)
    if not RND and s is None: a.e(f"v_rsq_f32 v{rs}, v{var}"); return
    a.e(f"v_sqrt_f32 v{var}, v{var}"); round1(a, var)
    if s is not None: a.e(f"v_mov_b32 v{s}, v{var}")
    a.e(f"v_rcp_f32 v{rs}, v{var}")


FLG = 22 * MB + int(os.environ.get("FOFF", "0"))
LB0, LSTR, GSTR = 32 * MB, 4 * MB, 16 * MB
oH2 = 4 * MB; oSM = oH2 + 1792 * 1024; oFP = 16384; oST2 = oSM + 32768; oLNS = oSM + 65536
oX3, oX1P, oP0, oP1 = [i * 512 * 1024 for i in range(4)]
DP = os.environ.get("DP", "rf12")
if "r" in DP: oP0, oP1 = oX3, oX1P
def mark(a, r, bit): a.e(f"v_or_b32 v{r}, 1, v{r}" if bit else f"v_and_b32 v{r}, -2, v{r}")
DOT = int(os.environ.get("DOT", "1"))
def data_poll(a, loads, regs, t, nap, first=0, canary=False):
    L = a.lab("dp"); D = a.lab("dq")
    if canary:
        a.e("s_bfm_b64 exec, 1, 63"); data_poll(a, loads, regs, t, nap, first); a.e("s_mov_b64 exec, -1"); first = 0
    a.e("s_mov_b32 s53, 0")
    if first:
        f2 = int(os.environ.get("RFIRST2", "10"))
        if f2: a.e(f"s_sleep {f2}")
        a.e("s_cmp_ge_u32 s30, 6"); a.e(f"s_cbranch_scc1 {L}"); a.e(f"s_sleep {first - f2}")
    a.e(f"{L}:")
    for x in loads: a.e(x)
    a.e("s_waitcnt vmcnt(0)")
    a.e(f"v_bitop3_b32 v{t}, v{regs[0]}, v{regs[1]}, v{regs[2]} bitop3:0x80"); a.e(f"v_bitop3_b32 v{t}, v{t}, v{regs[3]}, 1 bitop3:0x80")
    a.e(f"v_cmp_eq_u32 vcc, 0, v{t}"); a.e(f"s_cbranch_vccz {D}")
    a.e(f"s_sleep {nap}")
    a.e("s_add_u32 s53, s53, 1"); a.e("s_cmp_lt_u32 s53, s61"); a.e(f"s_cbranch_scc1 {L}")
    a.e("s_mov_b32 s61, 0")
    a.e(f"{D}:")
XSZ = 512 * 1024 - 8192; H2SZ = 1792 * 1024 - 8192
HSB = 160 * MB; PITCH = 65536 + int(os.environ.get("SKEW", "0")); oHS = MB
def fso(stage): return int(stage * 256)
def spread(a, d, src):
    a.e(f"s_lshr_b32 s53, s{src}, 3"); a.e("s_lshl_b32 s53, s53, 14"); a.e(f"s_and_b32 s{d}, s{src}, 7"); a.e(f"s_lshl_b32 s{d}, s{d}, 10"); a.e(f"s_add_u32 s{d}, s{d}, s53")
ST_R, ST_G1, ST_G2, ST_G3, ST_G4, ST_R2, ST_G3B, ST_G3A = range(8); ST_G2S = 5.5
F_KVT, F_FRONT, F_CS = FLG, FLG + 32768, FLG + 49152
LDS_TOTAL = 163840
AUX = LDS_TOTAL - 4096
SC = "sc1"
PSLEEP = int(os.environ.get("PSLEEP", "5"))
ROT = int(os.environ.get("ROT", "1"))
PACE = int(os.environ.get("PACE", "8"))
PDEPTH = int(os.environ.get("PDEPTH", "1"))
WROT = int(os.environ.get("WROT", "1"))
PRIO = int(os.environ.get("PRIO", "0"))
STQ = int(os.environ.get("STQ", "12"))
CPRIO = int(os.environ.get("CPRIO", "0"))
FSLEEP = int(os.environ.get("FSLEEP", "3"))
CSPRIO = int(os.environ.get("CSPRIO", "1"))
NT = os.environ.get("NT", "nt"); HALO = int(os.environ.get("HALO", "0")); NTK = os.environ.get("NTK", "" if HALO else NT); NTH = os.environ.get("NTH", NT)
W1F = int(os.environ.get("W1F", "7"))
WSC = eval(os.environ.get("WSC", "{}"))
TLBW = int(os.environ.get("TLBW", "0"))
T12 = eval(os.environ.get("T12", "{}"))
T23 = eval(os.environ.get("T23", "()"))
OWN3 = int(os.environ.get("OWN3", "1"))
PUB2 = int(os.environ.get("PUB2", "4"))
MAP = int(os.environ.get("MAP", "4"))
HSPLIT = int(os.environ.get("HSPLIT", "2"))
W1G = int(os.environ.get("W1G", "9"))
PWAIT = int(os.environ.get("PWAIT", "8"))
DL = eval(os.environ.get("DL", "[2,4]"))
PACES = eval(os.environ.get("PACES", "{4:6}"))
C0PUB = int(os.environ.get("C0PUB", "6"))
LNSL = AUX + 1024

CFG = {1: dict(WM=4, WN=1, MT=2, NT=4, KBT=32, NS=16, NA=1.5, NW=16, A=oX3, W=B_W1, LDW=2048),
       2: dict(WM=4, WN=1, MT=2, NT=4, KBT=32, NS=16, NA=0, NW=16, A=oHS, W=B_W2, LDW=2048),
       3: dict(WM=2, WN=2, MT=4, NT=7, KBT=32, NS=16, NA=3, NW=3, A=oX1P, W=B_W3, LDW=7168, NPRE=2, WR=1, S0=2, WB=73728),
       4: dict(WM=2, WN=2, MT=4, NT=4, KBT=112, NS=28, NA=3, NW=6, A=oH2, W=B_W4, LDW=2048)}
for w, d in eval(os.environ.get("CFG", "{}")).items(): CFG[w].update(d)
for c in CFG.values():
    c.setdefault("NPRE", c["NW"]); c.setdefault("APRE", min(c["NA"], 3)); c.setdefault("WR", 1)
    c["TN16"] = c["WN"] * c["NT"]; c["STB"] = c["TN16"] * 2048; c.setdefault("WB", int(c["NA"] * 16384)); c.setdefault("S0", 0)
    c["RB"] = c["TN16"] * 32
    assert c["WB"] + c["NW"] * c["STB"] <= AUX
NX = 0
def nib(t): return sum(x << (4 * i) for i, x in enumerate(t))
CSO = {1: AUX + 3584, 3: AUX}

LW = AUX + 3072
def mstamp(a, force=False):
    if os.environ.get("JIT"):
        X = a.lab("jit")
        a.e("s_cselect_b32 s101, 1, 0"); a.e("s_memtime s[64:65]"); a.e("s_waitcnt lgkmcnt(0)"); a.e(f"s_and_b32 s64, s64, {os.environ['JIT']}"); a.e("s_cmp_lg_u32 s64, 0")
        a.e(f"s_cbranch_scc1 {X}"); a.e("s_sleep 50"); a.e(f"{X}:"); a.e("s_cmp_eq_u32 s101, 1")
        return
    if not STAMP or (os.environ.get("GST") and not force): return
    a.e(("s_memrealtime" if STAMP == 2 else "s_memtime") + " s[64:65]"); a.e("s_mov_b32 s100, m0"); a.e("s_mov_b32 m0, s66"); a.e("s_waitcnt lgkmcnt(0)")
    a.e("v_writelane_b32 v255, s64, m0"); a.e("s_mov_b32 m0, s100")
    a.e("s_add_u32 s66, s66, 1")

def lsrd(a, d, off, nbytes, prev=False):
    if prev:
        a.e(f"s_sub_u32 s{d}, s62, {LSTR - off:#x}"); a.e(f"s_subb_u32 s{d+1}, s63, 0")
        a.e(f"s_mov_b32 s{d+2}, {nbytes:#x}"); a.e(f"s_mov_b32 s{d+3}, 0x20000")
    else: a.srd(d, 62, nbytes, off=off)

def hs_srd(a, d):
    if "2" in DP: a.srd(d, 4, 128 * PITCH, off=HSB); return
    a.e("s_lshl_b32 s53, s60, 24"); a.e(f"s_add_u32 s53, s53, {HSB}")
    a.e(f"s_add_u32 s{d}, s4, s53"); a.e(f"s_addc_u32 s{d+1}, s5, 0"); a.e(f"s_mov_b32 s{d+2}, {128*PITCH}"); a.e(f"s_mov_b32 s{d+3}, 0x20000")

def group_off(a, d, m):
    a.e(f"s_lshr_b32 s53, s{m}, 3"); a.e("s_lshl_b32 s53, s53, 2"); a.e(f"s_and_b32 s54, s{m}, 3"); a.e("s_add_u32 s53, s53, s54"); a.e("s_lshl_b32 s53, s53, 24")
    a.e(f"s_lshr_b32 s54, s{m}, 2"); a.e("s_xor_b32 s54, s54, s94"); a.e("s_and_b32 s54, s54, 1"); a.e("s_lshl_b32 s54, s54, 13")
    a.e(f"s_add_u32 s{d}, s53, s54"); a.e(f"s_add_u32 s{d}, s{d}, {LB0}")

PV = 240
def poll_core(a, t, addrs, mask, extra=None, depth=1, cnt=0, nap=None):
    L = a.lab("poll"); D = a.lab("pok")
    n = len(addrs) + (1 if extra else 0)
    if depth > 1: t0 = t; regs = [PV + k * len(addrs) for k in range(depth)]; assert not extra and regs[-1] + len(addrs) <= 256
    else: regs = [t]
    def ld(r):
        for i, ad in enumerate(addrs): a.e(f"buffer_load_dword v{r+i}, v{ad}, s[56:59], 0 offen {SC}")
        if extra: a.e(extra[0])
    a.e("s_mov_b32 s53, 0"); a.e(f"s_add_u32 s54, s52, {cnt}")
    if mask != -1: a.e(f"s_bfm_b64 exec, {mask.bit_length()}, 0")
    for r in regs[:-1]: ld(r); a.e(f"s_sleep {PSLEEP}")
    a.e(f"{L}:")
    for k in range(depth):
        ld(regs[k - 1]); r = regs[k]
        a.e(f"s_waitcnt vmcnt({n*(depth-1)})")
        for i in range(len(addrs)): a.e(f"v_xor_b32 v{r+i}, s54, v{r+i}")
        for i in range(1, len(addrs)): a.e(f"v_or_b32 v{r}, v{r}, v{r+i}")
        if extra:
            for x in extra[1:]: a.e(x)
        a.e(f"v_cmp_eq_u32 vcc, 0, v{r}")
        a.e("s_cmp_eq_u64 vcc, exec"); a.e(f"s_cbranch_scc1 {D}")
        a.e(f"s_sleep {PSLEEP if nap is None else nap}")
    a.e("s_add_u32 s53, s53, 1"); a.e("s_cmp_lt_u32 s53, s61"); a.e(f"s_cbranch_scc1 {L}")
    a.e("s_mov_b32 s61, 0")
    a.e(f"{D}:")
    if mask != -1: a.e("s_mov_b64 exec, -1")

SPLIT = {ST_G1: "sign", ST_G3: "half", ST_G3A: "half", ST_G3B: "half"}
def flag_addr(a, r, stage, prev=False):
    so = fso(stage) - (LSTR if prev else 0)
    a.e(f"s_add_u32 s54, s55, {so & 0xffffffff:#x}")
    sp = SPLIT.get(stage)
    if sp == "half": a.e("s_lshl_b32 s53, s31, 7"); a.e("s_add_u32 s54, s54, s53")
    a.e(f"v_mov_b32 v{r}, s54")
    if sp == "sign":
        a.e("s_add_u32 s53, s54, 128"); a.e(f"v_writelane_b32 v{r}, s53, 1")
        a.e("s_add_u32 s53, s53, s93"); a.e(f"v_writelane_b32 v{r}, s53, 3")
        a.e("s_add_u32 s53, s54, s92"); a.e(f"v_writelane_b32 v{r}, s53, 2")
        return 0xf, 8
    return 1, 8 if sp else 16
def own_wait(a, stage, prev, t):
    if not PWAIT or stage == ST_R: return
    k = {ST_G1: 1, ST_G2: 2, ST_G4: 3}[stage] - (3 if prev else 0)
    a.e(f"s_mul_i32 s54, s60, {2 if 'r' in DP else 3}"); a.e(f"s_add_u32 s54, s54, {k}")
    lds_spin(a, LW + 56, "s54", t, nap=PWAIT)
def flag_try(a, r, ad):
    a.e("s_mov_b64 exec, 1"); a.e(f"buffer_load_dword v{r}, v{ad}, s[56:59], 0 offen {SC}"); a.e("s_mov_b64 exec, -1")
def flag_check(a, r, ad, cnt):
    D = a.lab("fok")
    a.e(f"v_readfirstlane_b32 s53, v{r}"); a.e(f"s_add_u32 s54, s52, {cnt}"); a.e("s_cmp_eq_u32 s53, s54"); a.e(f"s_cbranch_scc1 {D}")
    poll_core(a, r, [ad], 1, cnt=cnt)
    a.e(f"{D}:")

def poll(a, stage, t, prev=False):
    D = a.lab("pdone")
    a.e("s_cmp_lg_u32 s30, 4"); a.e(f"s_cbranch_scc1 {D}")
    own_wait(a, stage, prev, t)
    mask, cnt = flag_addr(a, t + 1, stage, prev)
    poll_core(a, t, [t + 1], mask, depth=PDEPTH, cnt=cnt)
    a.e(f"{D}:")
    if stage != ST_G4: mstamp(a)
    a.e("s_barrier")

def publish(a, stage, nw, t, off=None, wait=0, ctr=None, flag=False):
    D = a.lab("pub")
    mark = PWAIT and off is None and stage in (ST_G1, ST_G2, ST_G4)
    if off is None:
        a.e(f"s_add_u32 s53, s55, {fso(stage)}"); off = 53
        sp = SPLIT.get(stage)
        if sp == "half": a.e("s_lshl_b32 s54, s31, 7"); a.e("s_add_u32 s53, s53, s54")
        if sp == "sign": a.e("s_and_b32 s54, s29, 4"); a.e("s_lshl_b32 s54, s54, 5"); a.e("s_add_u32 s53, s53, s54")
    a.e(f"v_mov_b32 v{t}, 1"); a.e(f"v_mov_b32 v{t+1}, {LW + (ctr if ctr is not None else 4 if nw == 8 else 0)}"); a.e(f"v_mov_b32 v{t+3}, 0")
    a.e("s_mov_b64 exec, 1")
    if wait is not None: a.e(f"s_waitcnt vmcnt({wait})")
    if nw > 1:
        a.e(f"ds_add_rtn_u32 v{t+2}, v{t+1}, v{t}")
        if flag: a.e(f"v_mov_b32 v{t+1}, s52")
        a.e("s_waitcnt lgkmcnt(0)")
        a.e(f"v_readfirstlane_b32 s54, v{t+2}")
        a.e(f"s_and_b32 s54, s54, {nw-1}"); a.e(f"s_cmp_lg_u32 s54, {nw-1}"); a.e(f"s_cbranch_scc1 {D}")
    if flag: a.e(f"buffer_store_dword v{t+1}, v{t+3}, s[56:59], s{off} offen {SC}")
    else: a.e(f"buffer_atomic_add v{t}, v{t+3}, s[56:59], s{off} offen {SC}")
    if stage == ST_R and not flag:
        a.e("s_cmp_lg_u32 s60, 0"); a.e(f"s_cbranch_scc1 {D}")
        a.e("s_lshl_b32 s53, s29, 7"); a.e(f"s_add_u32 s53, s53, {F_CS}")
        a.e(f"buffer_atomic_add v{t}, v{t+3}, s[56:59], s53 offen {SC}")
    if mark: a.e(f"v_mov_b32 v{t+1}, {LW+56}"); a.e(f"ds_add_u32 v{t+1}, v{t}")
    a.e(f"{D}:")
    a.e("s_mov_b64 exec, -1")

def lds_spin(a, addr, target, t, dst=53, nap=False):
    L = a.lab("spin")
    a.e(f"v_mov_b32 v{t}, {addr}")
    a.e(f"{L}:")
    if nap: a.e(f"s_sleep {int(nap)}")
    a.e(f"ds_read_b32 v{t+1}, v{t}"); a.e("s_waitcnt lgkmcnt(0)"); a.e(f"v_readfirstlane_b32 s{dst}, v{t+1}")
    a.e(f"s_cmp_ge_u32 s{dst}, {target}"); a.e(f"s_cbranch_scc0 {L}")
def lds_set(a, addr, val, t):
    a.e(f"v_mov_b32 v{t}, {addr}"); a.e(f"v_mov_b32 v{t+1}, {val}")
    a.e("s_waitcnt lgkmcnt(0)"); a.e(f"ds_write_b32 v{t}, v{t+1}")
def lbar(a, k, t):
    a.e(f"v_mov_b32 v{t}, {LW+8}"); a.e(f"v_mov_b32 v{t+1}, 1")
    a.e("s_waitcnt lgkmcnt(0)")
    a.e("s_mov_b64 exec, 1"); a.e(f"ds_add_u32 v{t}, v{t+1}"); a.e("s_mov_b64 exec, -1")
    lds_spin(a, LW + 8, 4 * k, t)

def gelu4(a, X, t, c1, c2):
    P = [(X, t), (X + 2, t + 2)]
    for x, u in P: a.e(f"v_pk_mul_f32 {vr(u,2)}, {vr(x,2)}, {vr(x,2)}")
    for x, u in P: a.e(f"v_pk_fma_f32 {vr(u,2)}, {vr(u,2)}, {vr(c2,2)}, {vr(c1,2)}")
    for x, u in P: a.e(f"v_pk_mul_f32 {vr(u,2)}, {vr(u,2)}, {vr(x,2)}")
    for i in range(4): a.e(f"v_exp_f32 v{t+i}, v{t+i}")
    for x, u in P: a.e(f"v_pk_add_f32 {vr(u,2)}, {vr(u,2)}, 1.0 op_sel_hi:[1,0]")
    for i in range(4): a.e(f"v_rcp_f32 v{t+i}, v{t+i}")
    for x, u in P: a.e(f"v_pk_mul_f32 {vr(x,2)}, {vr(x,2)}, {vr(u,2)}")

W2EARLY = int(os.environ.get("W2EARLY", "1")); QLATE = int(os.environ.get("QLATE", "0"))
TOUCH2 = [(A_Q, 4 * MB)] + ([] if W2EARLY else [(B_W2, 2 * MB)])
CODEPF = int(os.environ.get("CODEPF", "1")); NVOTE = 255; NSAMP = int(os.environ.get("NSAMP", "2"))
W4POS = os.environ.get("W4POS", "3C")
HSTR = 4160; CHB = 24576; UOFF = 4 * HSTR; US = 96
KVS = 4 * CHB

KT = int(os.environ.get("KT", "1"))
KV = dict(cq=6, tg=7, t=8, ro=9, wo=16, pt=18, kr=22, vv=36, w=44, d=52, hoff=70, tag=76, zz=78)
def front_loads(a):
    cq, tg, t, ro, wo, kr, vv, w = [KV[k] for k in "cq tg t ro wo kr vv w".split()]
    a.e(f"v_and_b32 v{cq}, 31, v0"); a.e(f"v_lshrrev_b32 v{tg}, 5, v0")
    a.e("s_and_b32 s34, s2, 7"); a.e("s_lshr_b32 s35, s2, 3")
    a.e("s_lshl_b32 s36, s35, 17"); a.e("s_lshl_b32 s37, s34, 8"); a.e("s_add_u32 s36, s36, s37")
    a.e(f"v_lshlrev_b32 v{t}, 13, v{tg}"); a.e(f"v_lshl_add_u32 v{t}, v{cq}, 3, v{t}"); a.e(f"v_add_u32 v{ro+3}, s36, v{t}")
    a.e(f"v_add_u32 v{ro+5}, 4096, v{ro+3}")
    a.e(f"s_mov_b32 s18, {4*MB}"); a.e("s_mov_b32 s19, 0x20000"); a.e("s_mov_b32 s22, s18"); a.e("s_mov_b32 s23, s19")
    a.e("s_waitcnt lgkmcnt(0)")
    tag, zz = KV["tag"], KV["zz"]
    a.e("s_mov_b32 s86, 256"); a.e("s_mov_b32 s87, 0x20000"); a.e(f"v_mov_b32 v{zz}, 0")
    a.e("s_lshl_b32 s45, s2, 3"); a.e("s_add_u32 s45, s45, s30"); a.e("s_cmp_lg_u32 s45, 4"); a.e("s_cbranch_scc1 KV_t0")
    a.e("s_lshl_b32 s44, s46, 6"); a.e("s_or_b32 s44, s44, 1"); a.e(f"v_mov_b32 v{tag}, s44")
    a.e("s_mov_b64 exec, 1"); a.e(f"buffer_store_dword v{tag}, v{zz}, s[84:87], 0 offen {SC}"); a.e("s_mov_b64 exec, -1")
    a.e("KV_t0:")
    a.e("s_mov_b64 s[16:17], s[8:9]"); a.e("s_mov_b64 s[20:21], s[10:11]")
    for i in range(4): a.e(f"buffer_load_dwordx2 {vr(kr+2*(i+3),2)}, v{ro+3+(i&2)}, s[16:19], 0 offen offset:{2048*(i&1)} {NTK}")
    for i in range(4): a.e(f"buffer_load_dwordx2 {vr(vv+2*i,2)}, v{ro+3+(i&2)}, s[20:23], 0 offen offset:{2048*(i&1)} {NT}")
    for i in range(3): a.e(f"v_subrev_u32 v{ro+i}, {2048*(3-i)}, v{ro+3}")
    a.e("s_lshl_b32 s37, s34, 10"); a.e(f"v_lshlrev_b32 v{wo}, 5, v{cq}"); a.e(f"v_add_u32 v{wo}, s37, v{wo}")
    a.srd(24, 12, 8192)
    XP = os.environ.get("XP", "g")
    if KT:
        a.e(f"v_and_b32 v{t}, 1, v{tg}"); a.e(f"v_lshl_add_u32 v{wo}, v{t}, 4, v{wo}")
        a.e(f"buffer_load_dwordx4 {vr(w,4)}, v{wo}, s[24:27], 0 offen")
    for i in range(0 if "t" in XP or KT else 2): a.e(f"buffer_load_dwordx4 {vr(w+4*i,4)}, v{wo}, s[24:27], 0 offen offset:{16*i}")
    if "g" in XP:
        a.e("s_cmp_lg_u32 s30, 4"); a.e("s_cbranch_scc1 KV_t2")
        a.e(f"buffer_load_dword v{tag}, v{zz}, s[84:87], 0 offen {SC}")
        a.e("KV_t2:")
    if "h" in XP: return
    if HALO:
        a.e("s_cmp_lg_u32 s30, 0"); a.e("s_cbranch_scc1 KV_h0"); a.e("s_bfm_b64 exec, 32, 0")
    if KT: a.e("s_bfm_b64 exec, 32, 0")
    for i in range(3): a.e(f"buffer_load_dwordx2 {vr(kr+2*i,2)}, v{ro+i}, s[16:19], 0 offen {NTK}")
    if KT: a.e("s_mov_b64 exec, -1")
    if HALO: a.e("s_mov_b64 exec, -1"); a.e("KV_h0:")

def probe_base(a):
    a.e("s_and_b32 s42, s2, 31"); a.e("s_lshl_b32 s42, s42, 8"); a.e("s_lshr_b32 s43, s2, 5"); a.e("s_lshl_b32 s43, s43, 14"); a.e("s_add_u32 s42, s42, s43")
    a.e(f"s_add_u32 s42, s42, {LB0 + oSM + 131072}")
def front_arrive(a, wait):
    D = a.lab("fa"); t = 6
    a.e("s_and_b32 s36, s2, 7"); a.e("s_lshl_b32 s36, s36, 7"); a.e(f"s_add_u32 s36, s36, {F_FRONT}")
    a.e(f"v_mov_b32 v{t}, 1"); a.e(f"v_mov_b32 v{t+1}, {LW+4}"); a.e(f"v_lshlrev_b32 v{t+3}, 10, v1")
    a.e("s_mov_b64 exec, 1")
    if wait: a.e("s_waitcnt vmcnt(0)")
    a.e("s_waitcnt lgkmcnt(0)")
    a.e(f"ds_add_rtn_u32 v{t+2}, v{t+1}, v{t}"); a.e(f"ds_read_b32 v{t+4}, v{t+1} offset:28")
    a.e("s_waitcnt lgkmcnt(0)")
    a.e(f"v_readfirstlane_b32 s54, v{t+2}"); a.e(f"v_readfirstlane_b32 s53, v{t+4}")
    a.e("s_cmp_lg_u32 s54, 15"); a.e(f"s_cbranch_scc1 {D}")
    a.e("s_mov_b64 exec, 0xffff"); a.e("s_or_b32 s53, s53, 1"); a.e(f"v_mov_b32 v{t}, s53")
    a.e(f"buffer_atomic_add v{t}, v{t+3}, s[56:59], s36 offen {SC}")
    a.e(f"{D}:"); a.e("s_mov_b64 exec, -1")
def front_a(a):
    cq, tg, t, pt, kr, vv, w, d, hoff, tag, zz = [KV[k] for k in "cq tg t pt kr vv w d hoff tag zz".split()]
    v = VA(80)
    a.e("s_and_b32 s41, s30, 3"); chan_setup(a, 41)
    a.e("s_lshr_b32 s36, s39, 1"); a.e("s_lshl_b32 s36, s36, 2"); a.e("s_load_dword s98, s[96:97], s36")
    a.e("s_lshl_b32 s36, s39, 12")
    a.e("s_add_u32 s12, s14, s36"); a.e("s_addc_u32 s13, s15, 0"); a.e("s_mov_b32 s14, 4096"); a.e("s_mov_b32 s15, 0x20000")
    a.e("s_lshr_b32 s45, s30, 2"); a.e("s_lshl_b32 s45, s45, 11")
    for it in range(3):
        if it < 2: a.e(f"s_add_u32 s36, s45, {(1024*it - 64) & 0xffffffff:#x}")
        else: a.e(f"s_mov_b32 s36, {4096 - 64}")
        a.e(f"v_add_u32 v{hoff+2*it}, s36, v2"); a.e(f"v_add_u32 v{hoff+2*it+1}, 16, v{hoff+2*it}")
    a.e("s_and_b32 s34, s2, 7"); a.e("s_lshr_b32 s35, s2, 3")
    z = v(4, 4); la = v(); t2 = v(); hw = v()
    for i in range(4): a.e(f"v_mov_b32 v{z+i}, 0")
    a.e(f"v_add_u32 v{hw}, s40, v2")
    a.e(f"ds_write_b128 v{hw}, {vr(z,4)} offset:{UOFF+64*US}")
    a.e(f"s_bfm_b64 exec, {(15*US - 1024)//16}, 0"); a.e(f"ds_write_b128 v{hw}, {vr(z,4)} offset:{UOFF+64*US+1024}"); a.e("s_mov_b64 exec, -1")
    a.e(f"v_lshlrev_b32 v{t}, 2, v{tg}"); a.e(f"v_sub_u32 v{t}, 60, v{t}")
    a.e(f"v_lshrrev_b32 v{t2}, 3, v{t}"); a.e(f"v_bfe_u32 v{la}, v{cq}, 1, 3"); a.e(f"v_xor_b32 v{t2}, v{t2}, v{la}"); a.e(f"v_lshlrev_b32 v{t2}, 4, v{t2}")
    a.e(f"v_and_b32 v{t}, 7, v{t}"); a.e(f"v_lshl_add_u32 v{t2}, v{t}, 1, v{t2}")
    a.e(f"v_lshl_add_u32 v{la}, v{cq}, 9, v{t2}"); a.e(f"v_add_u32 v{la}, {KVS}, v{la}")
    wf = v(8, 2); kf = v(14, 2); vf = v(8, 2); ks = v(8, 2); pr = v(8, 2); o = v(8, 4); tm = v(4, 1)
    a.e("s_waitcnt vmcnt(0)")
    if HALO:
        for i in range(3): a.e(f"buffer_load_dwordx2 {vr(kr+2*i,2)}, v{KV['ro']+i}, s[16:19], 0 offen {NTK}")
        if HALO == 1: a.e("s_waitcnt vmcnt(0)")
    a.e("s_cmp_lg_u32 s30, 4"); a.e("s_cbranch_scc1 KV_t1")
    if "g" not in os.environ.get("XP", "g"): a.e(f"buffer_load_dword v{tag}, v{zz}, s[84:87], 0 offen {SC}")
    a.e("KV_t1:")
    for it in range(3):
        a.e(f"buffer_load_dwordx4 {vr(d+6*it,4)}, v{hoff+2*it}, s[12:15], 0 offen {NTH}")
        a.e(f"buffer_load_dwordx2 {vr(d+6*it+4,2)}, v{hoff+2*it+1}, s[12:15], 0 offen {NTH}")
    if HALO == 2: a.e("s_waitcnt vmcnt(10)")
    mstamp(a)
    if KT:
        for e in range(4): a.e(f"v_mov_b32 v{w+4+e}, v{w+e}")
        for e in range(6): a.e(f"v_mov_b32 v{pr+e}, v{kr+8+e}")
        for e in range(4): a.e(f"v_permlane32_swap_b32 v{w+e}, v{w+4+e}")
        for e in range(6): a.e(f"v_permlane32_swap_b32 v{kr+e}, v{pr+e}")
    for dd in range(2):
        for c in range(2):
            unpack(a, wf + 0 + c, wf + 2 + c, w + 2 * (2 * dd + c)); unpack(a, wf + 4 + c, wf + 6 + c, w + 2 * (2 * dd + c) + 1)
        for i in range(7): unpack(a, kf + 2 * i, kf + 2 * i + 1, kr + 2 * i + dd)
        for i in range(4): unpack(a, vf + 2 * i, vf + 2 * i + 1, vv + 2 * i + dd)
        def rnd(base):
            for i in range(4): a.e(f"v_cvt_pk_bf16_f32 v{tm+i}, v{base+2*i}, v{base+2*i+1}")
            for i in range(4): unpack(a, base + 2 * i, base + 2 * i + 1, tm + i)
        for i in range(4): a.e(f"v_pk_mul_f32 {vr(ks+2*i,2)}, {vr(kf+2*i,2)}, {vr(wf+6,2)}")
        if RND: rnd(ks)
        for j in range(1, 4):
            if not RND:
                for i in range(4): a.e(f"v_pk_fma_f32 {vr(ks+2*i,2)}, {vr(kf+2*(i+j),2)}, {vr(wf+6-2*j,2)}, {vr(ks+2*i,2)}")
                continue
            for i in range(4): a.e(f"v_pk_mul_f32 {vr(pr+2*i,2)}, {vr(kf+2*(i+j),2)}, {vr(wf+6-2*j,2)}")
            rnd(pr)
            for i in range(4): a.e(f"v_pk_add_f32 {vr(ks+2*i,2)}, {vr(ks+2*i,2)}, {vr(pr+2*i,2)}")
            rnd(ks)
        for i in range(4): a.e(f"v_pk_mul_f32 {vr(ks+2*i,2)}, {vr(ks+2*i,2)}, {vr(vf+2*i,2)}")
        for c in range(2):
            e = 2 * dd + c
            a.e(f"v_cvt_pk_bf16_f32 v{o+2*e}, v{ks+6+c}, v{ks+4+c}"); a.e(f"v_cvt_pk_bf16_f32 v{o+2*e+1}, v{ks+2+c}, v{ks+c}")
            a.e(f"ds_write_b64 v{la}, {vr(o+2*e,2)} offset:{e*128}")
    a.e("s_cmp_lg_u32 s30, 4"); a.e("s_cbranch_scc1 HB_2")
    a.e(f"v_add_u32 v{pt}, {LW}, v3"); a.e(f"ds_write_b32 v{pt}, v{zz}")
    a.e("s_mov_b32 s53, 0")
    a.e("s_waitcnt vmcnt(6)")
    a.e("HB_p:")
    a.e(f"v_readfirstlane_b32 s52, v{tag}"); a.e("s_cmp_eq_u32 s52, 0"); a.e("s_cbranch_scc1 HB_r")
    a.e("s_cmp_ge_u32 s53, 400"); a.e("s_cbranch_scc1 HB_q")
    a.e("s_add_u32 s54, s46, 8192"); a.e("s_lshl_b32 s54, s54, 6"); a.e("s_sub_u32 s54, s54, s52"); a.e(f"s_cmp_lt_u32 s54, {12288*64}"); a.e("s_cbranch_scc1 HB_q")
    a.e("HB_r:")
    a.e(f"buffer_load_dword v{tag}, v{zz}, s[84:87], 0 offen {SC}"); a.e("s_waitcnt vmcnt(0)")
    a.e("s_add_u32 s53, s53, 1"); a.e("s_cmp_lt_u32 s53, s61"); a.e("s_cbranch_scc1 HB_p")
    a.e("s_mov_b32 s52, 1"); a.e("s_mov_b32 s61, 0")
    a.e("HB_q:")
    lds_set(a, LW + 12, "s52", pt)
    a.e("HB_2:")
    a.srd(16, 4, 8 * GSTR, off=LB0 + oX3)
    ra = v(); go = v(); ob = v(8, 4)
    a.e(f"v_lshrrev_b32 v{t}, 3, v0"); a.e(f"v_and_b32 v{t2}, 7, v0")
    a.e(f"v_lshlrev_b32 v{go}, 12, v{t}"); a.e(f"v_lshl_add_u32 v{go}, v{t2}, 4, v{go}")
    a.e("s_lshl_b32 s36, s34, 24"); a.e("s_sub_u32 s37, 31, s35"); a.e("s_lshl_b32 s37, s37, 7"); a.e("s_add_u32 s36, s36, s37")
    a.e(f"s_add_u32 s37, s36, {64*4096}")
    a.e(f"v_lshrrev_b32 v{ra}, 3, v{t}"); a.e(f"v_xor_b32 v{ra}, v{ra}, v{t2}"); a.e(f"v_lshlrev_b32 v{ra}, 4, v{ra}"); a.e(f"v_lshl_add_u32 v{ra}, v{t}, 7, v{ra}")
    a.e(f"v_add_u32 v{ra}, {KVS}, v{ra}"); a.e(f"v_mov_b32 v{pt}, {LW+12}")
    a.e("s_waitcnt lgkmcnt(0)"); a.e("s_barrier")
    for i in range(2): a.e(f"ds_read_b128 {vr(ob+4*i,4)}, v{ra} offset:{i*8192}")
    a.e(f"ds_read_b32 v{pt+1}, v{pt}")
    for i in range(2):
        a.e(f"s_waitcnt lgkmcnt({2-i})")
        if "1" in DP: mark(a, ob + 4 * i, 1)
        a.e(f"buffer_store_dwordx4 {vr(ob+4*i,4)}, v{go}, s[16:19], s{36+i} offen {SC}")
    a.e("s_waitcnt lgkmcnt(0)"); a.e(f"v_readfirstlane_b32 s52, v{pt+1}")
    a.e("s_cmp_lg_u32 s30, 0"); a.e("s_cbranch_scc1 KV_ni"); a.e("s_cmp_ge_u32 s35, 16"); a.e("s_cbranch_scc1 KV_ni")
    a.e(f"v_mov_b32 v{t}, s52")
    a.e("s_lshl_b32 s37, s34, 7"); a.e("s_lshl_b32 s53, s35, 10"); a.e("s_add_u32 s37, s37, s53"); a.e(f"s_add_u32 s37, s37, {F_FRONT}")
    a.e("s_mov_b64 exec, 1"); a.e(f"buffer_store_dword v{t}, v{zz}, s[56:59], s37 offen {SC}"); a.e("s_mov_b64 exec, -1")
    a.e("KV_ni:")
    a.e(f"s_cmp_ge_u32 s2, {NVOTE}"); a.e("s_cbranch_scc1 KV_n3"); a.e("s_cmp_lg_u32 s30, 5"); a.e("s_cbranch_scc1 KV_n3")
    probe_base(a)
    a.e(f"v_and_b32 v{t}, 1, v1"); a.e(f"v_lshlrev_b32 v{t}, 13, v{t}"); a.e(f"v_lshrrev_b32 v{t2}, 1, v1"); a.e(f"v_lshl_add_u32 v{t}, v{t2}, 7, v{t}")
    a.e("s_mov_b64 exec, 0xf"); a.e(f"buffer_store_dword v{t}, v{t}, s[56:59], s42 offen {SC}"); a.e("s_mov_b64 exec, -1")
    a.e("KV_n3:")
    def pubk():
        a.e("s_lshl_b32 s36, s34, 5"); a.e("s_add_u32 s36, s36, s35"); a.e("s_lshl_b32 s36, s36, 7"); a.e(f"s_add_u32 s36, s36, {F_KVT}")
        mstamp(a)
        QL = int(os.environ.get("QL", "3"))
        if QL == 2: load_q(a)
        publish(a, 0, 8, pt, off=36, flag=True, wait=4 if QL == 2 else 0)
        if QL == 3: load_q(a)
        mstamp(a)
    HF = int(os.environ.get("HF", "0"))
    if not HF: pubk()
    else: a.e("s_waitcnt vmcnt(2)")
    cc = wf; hw2 = v()
    a.e(f"v_add_u32 v{hw2}, s45, v{hw}")
    for it in range(3):
        D = d + 6 * it; c0 = cc + 12 * it; c1 = c0 + 4; c2 = c0 + 8
        for k in range(4):
            a.e(f"v_alignbit_b32 v{c0+k}, v{D+k+1}, v{D+k}, 16")
            a.e(f"v_mov_b32 v{c1+k}, v{D+k+1}")
            a.e(f"v_alignbit_b32 v{c2+k}, v{D+k+2}, v{D+k+1}, 16")
        if it == 2: a.e("s_mov_b64 exec, 0xf")
        ad, o0 = (hw2, 1024 * it) if it < 2 else (hw, 4096)
        a.e(f"ds_write_b128 v{ad}, {vr(c0,4)} offset:{o0}")
        a.e(f"ds_write_b128 v{ad}, {vr(c1,4)} offset:{HSTR+o0}")
        a.e(f"ds_write_b128 v{ad}, {vr(c2,4)} offset:{2*HSTR+o0}")
        a.e(f"ds_write_b128 v{ad}, {vr(D+2,4)} offset:{3*HSTR+o0}")
        if it == 2: a.e("s_mov_b64 exec, -1")
    if HF: pubk()
    assert v.hi <= 176
    a.e("s_waitcnt lgkmcnt(0)"); a.e("s_barrier")
def load_q(a):
    a.srd(8, 6, 4 * MB)
    for j in range(4): a.e(f"buffer_load_dwordx2 {vr(RXA+2*j,2)}, v{RRO}, s[8:11], 0 offen offset:{128*(j>>1) + 32*(j&1)} {os.environ.get('NTQ', NTH)}")
def chan_setup(a, wsg):
    a.e("s_and_b32 s38, s2, 7"); a.e("s_lshl_b32 s38, s38, 5"); a.e("s_lshr_b32 s39, s2, 3"); a.e("s_add_u32 s38, s38, s39")
    a.e("s_lshl_b32 s39, s38, 2"); a.e(f"s_add_u32 s39, s39, s{wsg}")
    a.e(f"s_mul_i32 s40, s{wsg}, {CHB}")

def touch(a, ka, nbytes, r):
    n = nbytes // 1024 // 512
    a.e(f"s_load_dwordx2 s[48:49], s[0:1], {ka}")
    a.e("s_lshl_b32 s45, s2, 1"); a.e("s_and_b32 s50, s30, 1"); a.e("s_add_u32 s45, s45, s50"); a.e(f"s_mul_i32 s45, s45, {n*1024}")
    a.e(f"s_mov_b32 s50, {nbytes}"); a.e("s_mov_b32 s51, 0x20000")
    a.e("s_waitcnt lgkmcnt(0)")
    for i in range(n):
        if i and i % 4 == 0: a.e("s_add_u32 s45, s45, 4096")
        a.e(f"buffer_load_dwordx4 {vr(r,4)}, v2, s[48:51], s45 offen offset:{(i&3)*1024}")
    return n

def w2_warm(a):
    a.e("s_mov_b64 s[48:49], s[70:71]"); a.e(f"s_mov_b32 s50, {2*MB}"); a.e("s_mov_b32 s51, 0x20000")
    a.e("s_and_b32 s45, s28, 3"); a.e("s_lshl_b32 s45, s45, 1"); a.e("s_and_b32 s46, s30, 1"); a.e("s_add_u32 s45, s45, s46"); a.e("s_lshl_b32 s45, s45, 18")
    a.e("s_lshl_b32 s46, s29, 7"); a.e("s_add_u32 s45, s45, s46"); a.e("v_lshlrev_b32 v245, 11, v1")
    a.e("buffer_load_dword v244, v245, s[48:51], s45 offen"); a.e(f"s_add_u32 s45, s45, {64*2048}"); a.e("buffer_load_dword v246, v245, s[48:51], s45 offen")
def cs_load(a, which, slot):
    w_setup(a, which, pre=False)
    a.e(f"s_mov_b32 s42, {slot}"); a.e("s_mov_b32 s44, s28")
    w_issue(a, which, direct=True)
CSEL, CFR, CAD, CACC, CSO_ = 16, 72, 144, 156, 164
def cs_prep(a, S1, S3):
    a.e(f"v_and_b32 v{CSO_}, 15, v1"); a.e(f"v_mov_b32 v{CSO_+1}, 0x3f803f80")
    for T in range(14):
        a.e(f"v_cmp_eq_u32 vcc, {T}, v{CSO_}")
        for e in range(4): a.e(f"v_cndmask_b32 v{CSEL+4*T+e}, 0, v{CSO_+1}, vcc")
    pos = {}
    for which, slot, r0, halves in ((1, S1, CAD, 1), (3, S3, CAD + 4, 2)):
        c = CFG[which]
        for hf in range(halves):
            a.e(f"s_mov_b32 s35, {hf}")
            nr, pos[which] = w_bases(a, which, r0 + 2 * hf, 35, c["TN16"] // halves, WV + 8, WV + 9)
            a.e("s_and_b32 s35, s30, 1"); a.e(f"s_mul_i32 s35, s35, {32*c['RB']}"); a.e(f"s_add_u32 s35, s35, {slot}")
            for i in range(nr): a.e(f"v_add_u32 v{r0+2*hf+i}, s35, v{r0+2*hf+i}")
    for i in range(8): a.e(f"v_mov_b32 v{CACC+i}, 0")
    a.e(f"v_lshrrev_b32 v{CSO_+2}, 4, v1"); a.e(f"v_lshlrev_b32 v{CSO_+2}, 4, v{CSO_+2}"); a.e(f"v_lshl_add_u32 v{CSO_+2}, v{CSO_}, 6, v{CSO_+2}")
    a.e(f"v_mov_b32 v{CSO_+1}, 0x7f000000")
    for k, n in ((3, 4), (4, 14)):
        a.e(f"v_cmp_gt_u32 vcc, {n}, v{CSO_}"); a.e(f"v_cndmask_b32 v{CSO_+k}, v{CSO_+1}, v{CSO_+2}, vcc")
    return pos
def cs_sum(a, which, pos):
    c = CFG[which]; ntl = c["TN16"]; N = c["LDW"] // 2
    F = CFR + (0 if which == 3 else 56); A = CACC + (0 if which == 3 else 4)
    for T in range(ntl):
        hf, nt = (T // 7, T % 7) if which == 3 else (0, T)
        for h in range(2):
            r, imm = pos[which](nt, 0, h)
            a.e(f"ds_read_b64_tr_b16 {vr(F+4*T+2*h,2)}, v{(CAD + 4 if which == 3 else CAD) + 2*hf + r} offset:{imm}")
    a.srd(20, 4, 32 * N * 4, off=CSP[which])
    a.e("s_lshl_b32 s35, s28, 1"); a.e("s_and_b32 s36, s30, 1"); a.e("s_add_u32 s35, s35, s36"); a.e(f"s_mul_i32 s35, s35, {N*4}")
    a.e(f"s_mul_i32 s36, s29, {ntl*64}"); a.e("s_add_u32 s35, s35, s36")
    a.e("s_waitcnt lgkmcnt(0)")
    for T in range(ntl): a.e(f"v_mfma_f32_16x16x32_bf16 {vr(A,4)}, {vr(F+4*T,4)}, {vr(CSEL+4*T,4)}, {vr(A,4)}")
    a.e(f"buffer_store_dwordx4 {vr(A,4)}, v{CSO_ + (4 if which == 3 else 3)}, s[20:23], s35 offen {SC}")

NOCS3 = int(os.environ.get("NOCS3", "0")); STO = os.environ.get("STOUCH", "")
def stouch(a, which, gran, nw):
    X = a.lab("st"); L = a.lab("sl"); n = 28672 // nw
    a.e("s_cmp_lg_u32 s60, 0"); a.e(f"s_cbranch_scc1 {X}")
    a.e(f"s_mul_i32 s36, s2, 28672"); a.e(f"s_and_b32 s37, s30, {nw-1}"); a.e(f"s_mul_i32 s37, s37, {n}"); a.e("s_add_u32 s36, s36, s37")
    a.e(f"s_add_u32 s34, s{66+2*which}, s36"); a.e(f"s_addc_u32 s35, s{67+2*which}, 0"); a.e("s_mov_b32 s36, 0")
    a.e(f"{L}:")
    for i in range(14): a.e(f"s_load_dword s37, s[34:35], {i*gran}")
    a.e(f"s_add_u32 s34, s34, {14*gran}"); a.e("s_addc_u32 s35, s35, 0"); a.e("s_add_u32 s36, s36, 1"); a.e(f"s_cmp_lt_u32 s36, {n // (14*gran)}"); a.e(f"s_cbranch_scc1 {L}")
    a.e("s_waitcnt lgkmcnt(0)")
    a.e(f"{X}:")
SB = eval(os.environ.get("SB", "(0,0,0)"))
SG = eval(os.environ.get("SG", "(0,0,0,0)"))
def sg(a, n):
    if not n: return
    X = a.lab("st"); L = a.lab("sl")
    a.e("s_cmp_lg_u32 s60, 0"); a.e(f"s_cbranch_scc1 {X}"); a.e("s_mov_b32 s36, 0"); a.e(f"{L}:"); sb(a, 14)
    a.e("s_add_u32 s36, s36, 1"); a.e(f"s_cmp_lt_u32 s36, {n}"); a.e(f"s_cbranch_scc1 {L}"); a.e("s_waitcnt lgkmcnt(0)"); a.e(f"{X}:"); mstamp(a)
def sb_init(a):
    nw = 2 if sum(SG) else 4
    a.e(f"s_mul_i32 s36, s2, 28672"); a.e(f"s_and_b32 s37, s30, {nw-1}"); a.e(f"s_mul_i32 s37, s37, {28672//nw}"); a.e("s_add_u32 s36, s36, s37")
    SW = 66 + 2 * int(os.environ.get("SGW", "3"))
    a.e(f"s_add_u32 s90, s{SW}, s36"); a.e(f"s_addc_u32 s91, s{SW+1}, 0")
def sb(a, n):
    for i in range(n): a.e(f"s_load_dword s101, s[90:91], {i*64}")
    if n: a.e(f"s_add_u32 s90, s90, {n*64}"); a.e("s_addc_u32 s91, s91, 0")
PUTE = int(os.environ.get("PUTE", "1"))
def front_b(a):
    pt, dm = 6, 20
    PZE = int(os.environ.get("PZE", "0"))
    if PZE:
        a.srd(20, 4, 32 * MB, off=216 * MB)
        for i in range(4): a.e(f"v_mov_b32 v{216+i}, -1")
        a.e("s_lshl_b32 s45, s2, 2"); a.e("s_and_b32 s50, s30, 3"); a.e("s_add_u32 s45, s45, s50"); a.e(f"s_mul_i32 s45, s45, {PZE*1024}")
        for i in range(PZE):
            a.e(f"buffer_store_dwordx4 v[216:219], v2, s[20:23], s45 offen {SC}"); a.e("s_add_u32 s45, s45, 1024")
    if TAB: tab_load(a)
    TE = int(os.environ.get("TE", "0"))
    if TE:
        a.e("s_cmp_ge_u32 s30, 6"); a.e("s_cbranch_scc1 FB_t1"); touch(a, B_W2, 2 * MB, dm); a.e("s_branch FB_t2"); a.e("FB_t1:"); touch(a, B_W1, 2 * MB, 200); a.e("FB_t2:")
    w_lanes(a)
    a.e("s_cmp_ge_u32 s30, 6"); a.e("s_cbranch_scc1 FB_cs")
    vd = 12
    a.e(f"s_cmp_ge_u32 s2, {NVOTE}"); a.e("s_cbranch_scc1 FB_np"); a.e("s_cmp_lg_u32 s30, 5"); a.e("s_cbranch_scc1 FB_np")
    probe_base(a); a.e(f"v_mov_b32 v{vd+2}, 0")
    a.e("s_mov_b64 exec, 1"); a.e("s_mov_b32 s46, -1"); a.e("s_mov_b32 s47, -1"); a.e("s_mov_b32 s43, 0")
    a.e("FB_ml:")
    for i in range(2):
        a.e(f"s_add_u32 s45, s42, {i * 8192}")
        a.e("s_memtime s[34:35]"); a.e("s_waitcnt lgkmcnt(0)")
        a.e(f"buffer_load_dword v{vd+1}, v{vd+2}, s[56:59], s45 offen {SC}"); a.e("s_waitcnt vmcnt(0)")
        a.e("s_memtime s[36:37]"); a.e("s_waitcnt lgkmcnt(0)")
        a.e("s_sub_u32 s36, s36, s34"); a.e(f"s_min_u32 s{46+i}, s{46+i}, s36")
    a.e("s_add_u32 s42, s42, 128"); a.e("s_add_u32 s43, s43, 1"); a.e(f"s_cmp_lt_u32 s43, {NSAMP}"); a.e("s_cbranch_scc1 FB_ml")
    a.e("s_cmp_lt_u32 s47, s46"); a.e("s_cselect_b32 s45, 1, 0")
    a.e("s_lshr_b32 s46, s28, 2"); a.e("s_xor_b32 s45, s45, s46"); a.e("s_and_b32 s45, s45, 1"); a.e("s_lshl_b32 s45, s45, 8")
    a.e("s_mov_b64 exec, -1")
    lds_set(a, LW + 32, "s45", pt)
    a.e("FB_np:")
    mstamp(a)
    a.e("s_cmp_lg_u32 s30, 4"); a.e("s_cbranch_scc1 FB_ni")
    a.e(f"v_mov_b32 v{vd}, s52")
    group_off(a, 37, 28); a.e("s_andn2_b32 s37, s37, 0x2000"); a.e("s_lshl_b32 s53, s29, 7"); a.e("s_add_u32 s37, s37, s53"); a.e(f"s_add_u32 s37, s37, {oSM}")
    a.e(f"v_and_b32 v{vd+1}, 1, v1"); a.e(f"v_lshlrev_b32 v{vd+1}, 13, v{vd+1}"); a.e(f"v_lshrrev_b32 v{vd+2}, 1, v1"); a.e(f"v_lshl_add_u32 v{vd+1}, v{vd+2}, 22, v{vd+1}")
    a.e("s_mov_b64 exec, 0xf"); a.e(f"buffer_store_dword v{vd}, v{vd+1}, s[56:59], s37 offen {SC}")
    a.e("s_cmp_lg_u32 s28, 0"); a.e("s_cbranch_scc1 FB_n2")
    a.e(f"s_add_u32 s37, s53, {F_CS}"); a.e("s_mov_b64 exec, 1"); a.e(f"buffer_store_dword v{vd}, v{vd+1}, s[56:59], s37 offen {SC}")
    a.e("FB_n2:")
    a.e("s_mov_b64 exec, -1")
    a.e("FB_ni:")
    UG = (LW + 20, 4) if os.environ.get("UG", "1") == "1" else (LW + 16, 1)
    lds_spin(a, *UG, pt, nap=2)
    mstamp(a)
    if TLBW:
        a.e("s_cmp_lg_u32 s30, 4"); a.e("s_cbranch_scc1 FB_nt")
        a.e(f"s_load_dwordx2 s[8:9], s[0:1], {D_OUT}")
        a.srd(20, 4, 192 * MB)
        group_off(a, 34, 28)
        a.e("s_sub_u32 s36, s28, 1"); a.e("s_max_i32 s36, s36, 0"); group_off(a, 35, 36)
        a.e("s_add_u32 s36, s28, 1"); a.e("s_min_u32 s36, s36, 15"); group_off(a, 37, 36)
        a.e(f"v_lshlrev_b32 v{vd}, 21, v1"); a.e(f"v_add_u32 v{vd}, {HSB - 8 * 2 * MB}, v{vd}")
        for l, (r, o) in enumerate([(34, 0), (34, oP0 if TLBW == 2 else 4 * MB), (35, 0), (37, 0)]):
            for ly in range(2):
                a.e(f"s_add_u32 s36, s{r}, {o + ly * LSTR}"); a.e(f"v_writelane_b32 v{vd}, s36, {2*l+ly}")
        a.e("s_bfm_b64 exec, 20, 0"); a.e(f"buffer_{'store' if TLBW == 2 else 'load'}_dword v{dm}, v{vd}, s[20:23], 0 offen {SC}")
        a.e("s_waitcnt lgkmcnt(0)"); a.e(f"s_mov_b32 s10, {4*MB}"); a.e("s_mov_b32 s11, 0x20000")
        a.e("s_mov_b64 exec, 1"); a.e(f"buffer_load_dword v{dm+1}, v{RRO}, s[8:11], 0 offen {SC}"); a.e("s_mov_b64 exec, -1")
        a.e("FB_nt:")
    if os.environ.get("W2T", "1") == "2": lds_spin(a, LW + 24, 2, pt, nap=4)
    if os.environ.get("W2T", "1") == "3":
        w_srd(a, 2); a.e("s_lshl_b32 s39, s28, 1"); a.e("s_and_b32 s36, s30, 1"); a.e("s_add_u32 s39, s39, s36"); a.e("s_lshl_b32 s39, s39, 16"); a.e("s_lshl_b32 s36, s29, 7"); a.e("s_add_u32 s39, s39, s36")
        for i in range(4): a.e(f"buffer_load_dwordx4 {vr(dm,4)}, v{WVB[2]}, s[12:15], s39 offen"); a.e("s_add_u32 s39, s39, 16384")
    elif os.environ.get("W2T", "1") != "0" and not TE: touch(a, B_W2, 2 * MB, dm)
    QL = int(os.environ.get("QL", "3"))
    if not QL: load_q(a)
    if W4POS == "F": lds_spin(a, LW + 24, 2, pt, nap=4); a.e("s_waitcnt vmcnt(0)")
    if W4POS in ("F", "F0"): touch(a, B_W4, 7 * MB, dm)
    PZF = int(os.environ.get("PZF", "0"))
    if PZF:
        a.srd(20, 4, 32 * MB, off=216 * MB)
        for i in range(4): a.e(f"v_mov_b32 v{216+i}, -1")
        a.e("s_lshl_b32 s45, s2, 1"); a.e("s_and_b32 s50, s30, 1"); a.e("s_add_u32 s45, s45, s50"); a.e(f"s_mul_i32 s45, s45, {PZF*1024}")
        for i in range(PZF):
            a.e(f"buffer_store_dwordx4 v[216:219], v2, s[20:23], s45 offen {SC}"); a.e("s_add_u32 s45, s45, 1024")
            if os.environ.get("PZP"): a.e(f"s_waitcnt vmcnt({os.environ['PZP']})")
    front_arrive(a, True)
    if TAB: tab_make(a, 0)
    PKW = int(os.environ.get("PKW", "2")); PKP = int(os.environ.get("PKP", "8"))
    W1P = int(os.environ.get("W1P", "8")); FO = os.environ.get("FO", "1pd"); FO2 = os.environ.get("FO2", "1pd")
    R1 = [176, 188, 192] + [200 + 4 * i for i in range(7)] + [16 + 4 * i for i in range(8)]
    def w1_regs(a):
        w_srd(a, 1)
        a.e("s_and_b32 s35, s30, 3"); a.e(f"s_mul_i32 s35, s35, {18*16384}"); a.e("s_lshl_b32 s39, s99, 7"); a.e("s_add_u32 s39, s39, s35")
        for q in range(18):
            a.e(f"buffer_load_dwordx4 {vr(R1[q],4)}, v{WVB[1]}, s[12:15], s39 offen"); a.e("s_add_u32 s39, s39, 16384")
            if q % 4 == 3: sb(a, SB[1])
            if PKP and q % 4 == 3: a.e(f"s_waitcnt vmcnt({PKP})")
        if QL == 1: load_q(a)
    def w1_put(a):
        a.e("s_and_b32 s35, s30, 3"); a.e(f"s_mul_i32 s35, s35, {18*1024}"); a.e("v_add_u32 v8, s35, v2")
        if PUTE: lds_spin(a, LW + 20, 8, pt, nap=2)
        else: lds_spin(a, LW + 4, 16, pt, nap=2)
        a.e("s_waitcnt vmcnt(0)")
        for q in range(18): a.e(f"ds_write_b128 v8, {vr(R1[q],4)} offset:{CFG[1]['WB'] + 1024*q}")
        a.e("s_waitcnt lgkmcnt(0)")
    def w1_dma(a, js):
        lds_spin(a, LW + 24, 4, pt, nap=3)
        w_setup(a, 1, pre=False)
        for j in js: w1_slots(a, (j,), pace=W1P); ypause(a)
    DS_ = int(os.environ.get("DSPL", "12"))
    if PKW: lds_spin(a, LW + 24, PKW, pt, nap=4)
    for ch in FO:
        if ch == "d": w1_dma(a, range(9, DS_))
        else: call(a, {"1": w1_regs, "p": park}[ch])
    mstamp(a)
    call(a, w1_put)
    a.e("s_branch FR_end")
    a.e("FB_cs:")
    S1, S3 = KVS - CFG[1]["WB"], KVS + 8192 - CFG[3]["WB"]
    pos = cs_prep(a, S1, S3)
    lds_spin(a, *UG, pt, nap=2)
    mstamp(a)
    if not QL: load_q(a)
    cs_load(a, 1, S1)
    if not NOCS3: cs_load(a, 3, S3)
    a.e(f"s_waitcnt vmcnt({0 if NOCS3 else 14})")
    if CSPRIO: a.e(f"s_setprio {CSPRIO}")
    cs_sum(a, 1, pos)
    a.e("s_waitcnt vmcnt(1)")
    a.e(f"v_mov_b32 v{pt}, {LW+24}"); a.e(f"v_mov_b32 v{pt+1}, 1")
    a.e("s_mov_b64 exec, 1"); a.e(f"ds_add_u32 v{pt}, v{pt+1}"); a.e("s_mov_b64 exec, -1")
    mstamp(a)
    if not NOCS3: cs_sum(a, 3, pos)
    front_arrive(a, False)
    if TAB: tab_make(a, 1)
    a.e(f"v_mov_b32 v{pt}, {LW+24}"); a.e(f"v_mov_b32 v{pt+1}, 1")
    a.e("s_mov_b64 exec, 1"); a.e(f"ds_add_u32 v{pt}, v{pt+1}"); a.e("s_mov_b64 exec, -1")
    mstamp(a)
    a.e("s_setprio 0")
    assert CFG[1]["WB"] + 9 * 8192 == KVS
    for ch in FO2:
        if ch == "d": w1_dma(a, range(DS_, 16))
        else: call(a, {"1": w1_regs, "p": park}[ch])
    mstamp(a)
    call(a, w1_put)

def front_conv(a):
    v = VA(6); lane = 1; l16 = 2
    t = v(); pt = v(4, 2)
    chan_setup(a, 30)
    a.e("s_and_b32 s36, s39, 127"); a.e("s_lshl_b32 s36, s36, 12"); a.e("s_lshr_b32 s37, s39, 7"); a.e("s_lshl_b32 s37, s37, 24")
    a.e("s_add_u32 s36, s36, s37"); a.e(f"s_add_u32 s36, s36, {LB0 + oX3}")
    a.e("s_add_u32 s16, s4, s36"); a.e("s_addc_u32 s17, s5, 0"); a.e("s_mov_b32 s18, 4096"); a.e("s_mov_b32 s19, 0x20000")
    uw = v(); u = v(16, 4)
    a.e(f"v_lshrrev_b32 v{t}, 2, v{lane}"); a.e(f"v_mul_u32_u24 v{uw}, {US}, v{t}"); a.e(f"v_and_b32 v{t}, 3, v{lane}")
    a.e(f"v_lshl_add_u32 v{uw}, v{t}, 4, v{uw}"); a.e(f"v_add_u32 v{uw}, s40, v{uw}")
    aa = v(); ba = v(); ua = v(); J = v(); G = v()
    a.e(f"v_and_b32 v{J}, 15, v{lane}"); a.e(f"v_lshrrev_b32 v{G}, 4, v{lane}")
    a.e(f"v_and_b32 v{t}, 3, v{J}"); a.e(f"v_mul_u32_u24 v{aa}, {HSTR}, v{t}")
    a.e(f"v_lshl_add_u32 v{aa}, v{G}, 4, v{aa}"); a.e(f"v_lshrrev_b32 v{t}, 2, v{J}"); a.e(f"v_lshl_add_u32 v{aa}, v{t}, 3, v{aa}")
    a.e(f"v_add_u32 v{aa}, s40, v{aa}")
    a.e(f"v_sub_u32 v{t}, 15, v{J}"); a.e(f"v_mul_u32_u24 v{ua}, {US}, v{t}"); a.e(f"v_add_u32 v{ua}, s40, v{ua}")
    a.e(f"v_lshl_add_u32 v{ba}, v{G}, 4, v{ua}")
    acc = v(32, 4)
    fa = v(64, 4); fb = v(32, 4)
    def rdA(p, o):
        return [f"ds_read_b64 {vr(fa+32*p+8*s_+4*mt+2*h,2)}, v{aa} offset:{64*(o+16*s_) + 32*mt + 8*h}" for s_ in range(4) for mt in range(2) for h in range(2)]
    def rdB(p, o):
        return [f"ds_read_b128 {vr(fb+16*p+4*k,4)}, v{ba} offset:{UOFF + (48 - 16*k + o)*US}" for k in range(4)]
    for x in rdA(0, 0): a.e(x)
    dm_ = fb + 16; Dv = pt + 2
    a.e("s_bitcmp1_b32 s39, 0"); a.e("s_cselect_b32 s36, 0, 16"); a.e("s_lshl_b32 s41, s98, s36"); a.e("s_and_b32 s41, s41, 0xffff0000"); a.e("s_lshr_b32 s36, s41, 16")
    a.e(f"v_lshl_add_u32 v{t}, v{G}, 3, v{J}"); a.e(f"v_sub_u32 v{t}, 31, v{t}")
    a.e(f"v_mov_b32 v{Dv}, s36"); a.e(f"v_mov_b32 v{Dv+1}, s41"); a.e(f"v_and_b32 v{pt}, 1, v{t}"); a.e(f"v_cmp_eq_u32 vcc, 1, v{pt}")
    a.e(f"v_cndmask_b32 v{Dv}, v{Dv}, v{Dv+1}, vcc"); a.e(f"v_ashrrev_i32 v{t}, 1, v{t}")
    for mt in range(2):
        for d_ in range(4): a.e(f"v_cmp_eq_u32 vcc, {8*mt+d_}, v{t}"); a.e(f"v_cndmask_b32 v{dm_+4*mt+d_}, 0, v{Dv}, vcc")
    a.srd(12, 4, 8 * GSTR - oHS, off=LB0 + oHS)
    ta = v(); go = v()
    a.e(f"v_bfe_u32 v{t}, v{lane}, 2, 2"); a.e(f"v_mul_u32_u24 v{ta}, {CHB+64}, v{t}")
    a.e(f"v_lshrrev_b32 v{t}, 1, v{G}"); a.e(f"v_mul_u32_u24 v{t}, 72, v{t}"); a.e(f"v_add_u32 v{ta}, v{ta}, v{t}")
    a.e(f"v_and_b32 v{t}, 1, v{G}"); a.e(f"v_lshl_add_u32 v{ta}, v{t}, 5, v{ta}")
    a.e(f"v_and_b32 v{t}, 3, v{lane}"); a.e(f"v_lshl_add_u32 v{ta}, v{t}, 3, v{ta}")
    a.e(f"s_mul_i32 s36, s30, {16*72}"); a.e(f"v_add_u32 v{ta}, s36, v{ta}")
    a.e(f"v_lshlrev_b32 v{go}, 3, v{lane}")
    a.e("s_lshl_b32 s44, s38, 11"); a.e("s_and_b32 s37, s30, 1"); a.e("s_lshl_b32 s37, s37, 10"); a.e("s_add_u32 s44, s44, s37")
    a.e("s_lshr_b32 s37, s30, 1"); a.e("s_lshl_b32 s37, s37, 26"); a.e("s_add_u32 s44, s44, s37")
    ev = ua; a.e(f"v_not_b32 v{ev}, v{lane}"); a.e(f"v_and_b32 v{ev}, 1, v{ev}")
    ya = v()
    a.e(f"s_mul_i32 s36, s30, {CHB+64}")
    a.e(f"v_mul_u32_u24 v{ya}, 72, v{J}"); a.e(f"v_lshl_add_u32 v{ya}, v{G}, 3, v{ya}"); a.e(f"v_add_u32 v{ya}, s36, v{ya}")
    a.e("s_cmp_lg_u32 s30, 0"); a.e("s_cbranch_scc1 CV_w")
    a.e("s_and_b32 s36, s2, 7"); a.e("s_lshl_b32 s36, s36, 12"); a.e(f"s_add_u32 s36, s36, {F_KVT}")
    a.e(f"v_lshlrev_b32 v{pt+1}, 7, v{lane}"); a.e(f"v_add_u32 v{pt+1}, s36, v{pt+1}")
    poll_core(a, pt, [pt + 1], 0xffffffff)
    lds_set(a, LW + 16, 1, pt)
    a.e("CV_w:")
    lds_spin(a, LW + 16, 1, pt)
    mstamp(a)
    for it in range(4): a.e(f"buffer_load_dwordx4 {vr(u+4*it,4)}, v{l16}, s[16:19], 0 offen offset:{1024*it} {os.environ.get('UF', SC)}")
    QL = int(os.environ.get("QL", "3"))
    if not QL: load_q(a)
    for it in range(4):
        a.e(f"s_waitcnt vmcnt({(3 if QL else 7)-it})")
        a.e(f"ds_write_b128 v{uw}, {vr(u+4*it,4)} offset:{UOFF + 16*US*it}")
    a.e(f"v_mov_b32 v{pt}, {LW+20}"); a.e(f"v_mov_b32 v{pt+1}, 1")
    a.e("s_mov_b64 exec, 1"); a.e(f"ds_add_u32 v{pt}, v{pt+1}"); a.e("s_mov_b64 exec, -1")
    a.e("s_waitcnt lgkmcnt(0)")
    mstamp(a)
    for x in rdB(0, 0): a.e(x)
    for c_ in range(4):
        a.e(f"s_waitcnt lgkmcnt({3-c_})")
        for mt in range(2): a.e(f"v_mfma_f32_16x16x32_bf16 {vr(acc+8*c_+4*mt,4)}, {vr(dm_+4*mt,4)}, {vr(fb+4*c_,4)}, 0")
    def step(p, nxt, tail, piped=False):
        a.e(f"s_waitcnt lgkmcnt({10 if piped else 0})")
        mf = [(c_, s_, mt) for s_ in range(4) for mt in range(2) for c_ in range(s_, 4)]
        for i, (c_, s_, mt) in enumerate(mf):
            A = acc + 8 * c_ + 4 * mt
            a.e(f"v_mfma_f32_16x16x32_bf16 {vr(A,4)}, {vr(fa+32*p+8*s_+4*mt,4)}, {vr(fb+16*p+4*(c_-s_),4)}, {vr(A,4)}")
            if nxt: a.e(nxt.pop(0))
            if piped and i == 9: a.e("s_waitcnt lgkmcnt(10)")
            for x in tail.pop(i, []) if tail else []: a.e(x)
        assert not nxt and not tail
    a.e("s_mov_b32 s43, 0")
    NU = int(os.environ.get("NU", "4")); HP = int(os.environ.get("HP", "0"))
    if NU:
        a.e("CV_r:")
        for p in range(2):
            rd = rdB(1 - p, p + 1) + rdA(1 - p, p + 1)
            step(p, rd[:HP], [])
            for x in rd[HP:]: a.e(x)
        for x in [f"v_add_u32 v{aa}, 128, v{aa}", f"v_add_u32 v{ba}, {2*US}, v{ba}", "s_add_u32 s43, s43, 1", f"s_cmp_lt_u32 s43, {NU}"]: a.e(x)
        a.e("s_cbranch_scc1 CV_r")
    if QL == 1: load_q(a)
    a.e("CV_l:")
    step(0, rdB(1, 1) + rdA(1, 1), [], True)
    step(1, rdB(0, 2) + rdA(0, 2), {19: [f"v_add_u32 v{aa}, 128, v{aa}"], 5: [f"v_add_u32 v{ba}, {2*US}, v{ba}"], 6: ["s_add_u32 s43, s43, 1"], 7: ["s_cmp_lt_u32 s43, 8"]}, True)
    a.e("s_cbranch_scc1 CV_l")
    mstamp(a)
    a.e("s_waitcnt lgkmcnt(0)")
    for c_ in range(4):
        for mt in range(2):
            A = acc + 8 * c_ + 4 * mt; O = u + 2 * (c_ * 2 + mt)
            a.e(f"v_cvt_pk_bf16_f32 v{O}, v{A}, v{A+1}"); a.e(f"v_cvt_pk_bf16_f32 v{O+1}, v{A+2}, v{A+3}")
            a.e(f"ds_write_b64 v{ya}, {vr(O,2)} offset:{c_*16*72 + mt*32}")
    lbar(a, 1, pt)
    for i in range(8): a.e(f"ds_read_b64_tr_b16 {vr(fa+32+2*i,2)}, v{ta} offset:{144*i}")
    for i in range(8):
        a.e(f"s_waitcnt lgkmcnt({7-i})")
        a.e(f"v_or_b32 v{fa+32+2*i}, v{ev}, v{fa+32+2*i}")
        a.e(f"buffer_store_dwordx2 {vr(fa+32+2*i,2)}, v{go}, s[12:15], s44 offen offset:{512*(i&1)} {SC}")
        if i & 1: a.e(f"s_add_u32 s44, s44, {GSTR}")
    if PUTE:
        a.e(f"v_mov_b32 v{pt}, {LW+20}"); a.e(f"v_mov_b32 v{pt+1}, 1")
        a.e("s_mov_b64 exec, 1"); a.e(f"ds_add_u32 v{pt}, v{pt+1}"); a.e("s_mov_b64 exec, -1")
    assert v.hi <= 176

PK = 48; W3S = 176
RFO, RYO, RRO, RI, RXA, RXB, RYY, RT = 196, 197, 198, 199, 180, 188, 230, 228
def r_addr(a, full=True):
    t, t2, I, fo, ro, yo = RT, RT + 1, RI, RFO, RRO, RYO
    a.e(f"v_and_b32 v{I}, 7, v0")
    a.e(f"v_lshrrev_b32 v{t}, 6, v0"); a.e(f"v_lshlrev_b32 v{t}, 4, v{t}"); a.e(f"v_bfe_u32 v{t2}, v0, 3, 3"); a.e(f"v_add_u32 v{t}, v{t}, v{t2}")
    a.e("s_lshr_b32 s78, s29, 1"); a.e("s_lshl_b32 s78, s78, 16"); a.e("s_and_b32 s79, s29, 1"); a.e("s_lshl_b32 s79, s79, 7"); a.e("s_add_u32 s78, s78, s79")
    a.e("s_lshr_b32 s79, s30, 1"); a.e("s_lshl_b32 s79, s79, 13"); a.e("s_add_u32 s78, s78, s79")
    a.e(f"v_lshlrev_b32 v{fo}, 8, v{t}"); a.e(f"v_lshl_add_u32 v{fo}, v{I}, 4, v{fo}"); a.e(f"v_add_u32 v{fo}, s78, v{fo}")
    if not full: return
    a.e("s_lshl_b32 s78, s28, 7"); a.e("s_lshl_b32 s79, s29, 3"); a.e("s_add_u32 s78, s78, s79")
    a.e(f"v_add_u32 v{yo}, s78, v{I}"); a.e(f"v_lshlrev_b32 v{ro}, 11, v{yo}")
    a.e(f"v_lshrrev_b32 v{t2}, 2, v{t}"); a.e(f"v_lshlrev_b32 v{t2}, 3, v{t2}"); a.e(f"v_and_b32 v{t}, 3, v{t}"); a.e(f"v_add_u32 v{t}, v{t}, v{t2}")
    a.e(f"v_lshl_add_u32 v{ro}, v{t}, 3, v{ro}")
    a.e(f"v_and_b32 v{yo}, 127, v{yo}"); a.e(f"v_lshlrev_b32 v{yo}, 3, v{yo}"); a.e(f"v_lshl_add_u32 v{yo}, v{t}, 11, v{yo}")
    a.e("s_lshr_b32 s78, s28, 3"); a.e("s_lshl_b32 s78, s78, 2"); a.e("s_and_b32 s79, s28, 3"); a.e("s_add_u32 s78, s78, s79"); a.e("s_lshl_b32 s78, s78, 24")
    a.e("s_and_b32 s79, s28, 4"); a.e("s_lshl_b32 s79, s79, 8"); a.e("s_add_u32 s78, s78, s79"); a.e(f"v_add_u32 v{yo}, s78, v{yo}")
def load_y(a, skip_last=False):
    a.srd(80, 4, 8 * GSTR - oHS, off=LB0 + oHS)
    for j in range(2):
        for hh in range(2):
            a.e(f"s_mov_b32 s78, {(16*j + 4*hh)*2048}")
            a.e(f"buffer_load_dwordx2 {vr(RYY+4*j+2*hh,2)}, v{RYO}, s[80:83], s78 offen {os.environ.get('YF', SC)}")
def r_pre(a, l0=False):
    r_addr(a, False)
    lsrd(a, 84, oX3, XSZ); lsrd(a, 88, oX1P, XSZ)
    if l0: a.e("s_cmp_eq_u32 s60, 0"); a.e("s_cselect_b32 s86, s86, 0"); a.e("s_cselect_b32 s90, s90, 0")
    for j in range(2):
        a.e(f"buffer_load_dwordx4 {vr(RXA+4*j,4)}, v{RFO}, s[84:87], 0 offen offset:{2048*j} {SC}")
        a.e(f"buffer_load_dwordx4 {vr(RXB+4*j,4)}, v{RFO}, s[88:91], 0 offen offset:{2048*j} {SC}")
def r_pre0(a): a.e("s_waitcnt lgkmcnt(0)"); r_pre(a, True)

def r_stage(a, final):
    v = VA(6)
    t = v(); t2 = v(); I = RI; fo = RFO; ro = RRO; pt = v(4, 2)
    xa = RXA; xb = RXB; yy = RYY; x = 206; yf = 222; w = v(16, 4); tmp = v()
    pre = final == "pre"
    S = v(2, 2); pp = v(2, 2); qq = v(2, 2); st = w; mean = v(2, 2); rs = mean + 1; var = v(); sw = v(); sr = v()
    def part(src, n):
        a.e(f"v_pk_add_f32 {vr(pp,2)}, {vr(src,2)}, {vr(src+2,2)}"); a.e(f"v_pk_mul_f32 {vr(qq,2)}, {vr(src,2)}, {vr(src,2)}")
        for i in range(1, 8):
            if i > 1: a.e(f"v_pk_add_f32 {vr(pp,2)}, {vr(pp,2)}, {vr(src+2*i,2)}")
            a.e(f"v_pk_fma_f32 {vr(qq,2)}, {vr(src+2*i,2)}, {vr(src+2*i,2)}, {vr(qq,2)}")
        a.e(f"v_add_f32 v{S}, v{pp}, v{pp+1}"); a.e(f"v_add_f32 v{S+1}, v{qq}, v{qq+1}")
        for k in range(2): a.e(f"v_add_f32_dpp v{S+k}, v{S+k}, v{S+k} row_ror:8 row_mask:0xf bank_mask:0xf")
        for op in ("v_permlane16_swap_b32", "v_permlane32_swap_b32"):
            for k in range(2): a.e(f"v_mov_b32 v{pp+k}, v{S+k}")
            for k in range(2): a.e(f"{op} v{S+k}, v{pp+k}")
            a.e(f"v_pk_add_f32 {vr(S,2)}, {vr(S,2)}, {vr(pp,2)}")
        a.e(f"ds_write_b64 v{sw}, {vr(S,2)} offset:{n*512}")
    def comb(n):
        for k in range(4): a.e(f"ds_read_b128 {vr(st+4*k,4)}, v{sr} offset:{n*512+16*k}")
        a.e("s_waitcnt lgkmcnt(0)")
        for k in range(4): a.e(f"v_pk_add_f32 {vr(st+4*k,2)}, {vr(st+4*k,2)}, {vr(st+4*k+2,2)}")
        a.e(f"v_pk_add_f32 {vr(st,2)}, {vr(st,2)}, {vr(st+4,2)}"); a.e(f"v_pk_add_f32 {vr(st+8,2)}, {vr(st+8,2)}, {vr(st+12,2)}")
        a.e(f"v_pk_add_f32 {vr(st,2)}, {vr(st,2)}, {vr(st+8,2)}")
        a.e(f"v_mul_f32 v{mean}, {f32(1/1024)}, v{st}"); a.e(f"v_mul_f32 v{var}, {f32(1/1024)}, v{st+1}")
        a.e(f"v_fma_f32 v{var}, -v{mean}, v{mean}, v{var}"); a.e(f"v_max_f32 v{var}, 0, v{var}")
    SUBM = f"{vr(mean,2)} op_sel_hi:[1,0] neg_lo:[0,1] neg_hi:[0,1]"; MULR = f"{vr(mean,2)} op_sel:[0,1] op_sel_hi:[1,1]"
    if pre: a.e("s_waitcnt lgkmcnt(0)")
    if final is not True:
        a.e(f"v_lshlrev_b32 v{sr}, 6, v{I}"); a.e(f"v_add_u32 v{sr}, {AUX+2048}, v{sr}")
        a.e(f"s_lshl_b32 s35, s30, 3"); a.e(f"v_add_u32 v{sw}, s35, v{sr}")
    if pre:
        a.e("s_waitcnt vmcnt(0)")
        for i in range(8): unpack(a, x + 2 * i, x + 2 * i + 1, xa + i)
        part(x, 0)
        a.e("s_waitcnt lgkmcnt(0)"); a.e("s_barrier")
        return
    if not final:
        a.e(f"s_cmp_eq_u32 s60, 0"); a.e(f"s_cbranch_scc1 R_l0")
    else:
        a.e(f"s_load_dwordx2 s[6:7], s[0:1], {D_OUT}")
    lsrd(a, 8, oP0, XSZ, prev=True); lsrd(a, 12, oP1, XSZ, prev=True)
    lsrd(a, 20, oX3, XSZ); a.e("s_mov_b32 s78, 0x3f80"); a.e("s_mov_b32 s79, 0x3f800000")
    if "r" not in DP: a.e("s_waitcnt vmcnt(0)")
    for i in range(8):
        if not final: unpack(a, yf + 2 * i, yf + 2 * i + 1, yy + i)
        unpack(a, x + 2 * i, x + 2 * i + 1, xa + i); unpack(a, w + 2 * i, w + 2 * i + 1, xb + i)
        a.e(f"v_pk_add_f32 {vr(x+2*i,2)}, {vr(x+2*i,2)}, {vr(w+2*i,2)}")
    lds_ = [f"buffer_load_dwordx4 {vr(r+4*j,4)}, v{fo}, s[{q}:{q+3}], 0 offen offset:{2048*j} {SC}" for j in range(2) for r, q in ((xa, 8), (xb, 12))]
    if "r" in DP: data_poll(a, lds_, (xa, xa + 4, xb, xb + 4), t, int(os.environ.get("RNAP", "4")), int(os.environ.get("RFIRST", "24")), int(os.environ.get("RCAN", "0"))); mstamp(a)
    else:
        poll(a, ST_G4, pt, prev=True)
        mstamp(a)
        for x_ in lds_: a.e(x_)
    for i in range(8):
        if i % 4 == 0 and "r" not in DP: a.e(f"s_waitcnt vmcnt({2 - i // 2})")
        u = w + 4 * (i & 3)
        if DOT:
            if i == 0:
                for r_ in (xa, xb):
                    for k in range(16): a.e(f"v_dot2_f32_bf16 v{x+k}, v{r_+k//2}, s{78+(k&1)}, v{x+k}")
                a.e("s_nop 2")
            continue
        unpack(a, u, u + 1, xa + i); unpack(a, u + 2, u + 3, xb + i)
        a.e(f"v_pk_add_f32 {vr(u,2)}, {vr(u,2)}, {vr(u+2,2)}")
        a.e(f"v_pk_add_f32 {vr(x+2*i,2)}, {vr(x+2*i,2)}, {vr(u,2)}")
        if final: a.e(f"v_cvt_pk_bf16_f32 v{xa+i}, v{x+2*i}, v{x+2*i+1}")
        else: round2(a, x + 2 * i, x + 2 * i + 1, tmp)
    if final:
        a.e("s_waitcnt lgkmcnt(0)")
        a.srd(20, 6, 4 * MB)
        OS = os.environ.get("OS", "sc1")
        if os.environ.get("OWIDE", "1") == "1":
            a.e(f"v_bfe_u32 v{t}, v1, 3, 1"); a.e(f"v_cmp_eq_u32 vcc, 1, v{t}")
            for j in range(2):
                lo, hi = xa + 4 * j, xa + 4 * j + 2
                for e in range(2):
                    a.e(f"v_cndmask_b32 v{x+e}, v{hi+e}, v{lo+e}, vcc")
                for e in range(2):
                    a.e(f"v_mov_b32_dpp v{x+2+e}, v{x+e} row_ror:8 row_mask:0xf bank_mask:0xf")
                for e in range(2):
                    a.e(f"v_cndmask_b32 v{x+4+e}, v{lo+e}, v{x+2+e}, vcc"); a.e(f"v_cndmask_b32 v{hi+e}, v{x+2+e}, v{hi+e}, vcc")
                for e in range(2): a.e(f"v_mov_b32 v{lo+e}, v{x+4+e}")
            a.e(f"v_bfe_u32 v{t2}, v1, 4, 1"); a.e(f"v_lshlrev_b32 v{t}, 5, v{t}"); a.e(f"v_lshl_add_u32 v{t}, v{t2}, 4, v{t}")
            a.e(f"v_and_b32 v{t2}, 0xffffffc0, v{ro}"); a.e(f"v_add_u32 v{t}, v{t}, v{t2}")
            for j in range(2): a.e(f"buffer_store_dwordx4 {vr(xa+4*j,4)}, v{t}, s[20:23], 0 offen offset:{128*j} {OS}")
        else:
            for j in range(4): a.e(f"buffer_store_dwordx2 {vr(xa+2*j,2)}, v{ro}, s[20:23], 0 offen offset:{128*(j>>1) + 32*(j&1)} {OS}")
        return v.hi
    part(x, 0)
    if os.environ.get("RST"): mstamp(a)
    a.e("s_waitcnt lgkmcnt(0)"); a.e("s_barrier")
    if os.environ.get("RST"): mstamp(a)
    comb(0)
    ln_finish(a, mean, var, rs)
    if os.environ.get("RST"): mstamp(a)
    a.e(f"v_mul_f32 v{mean}, v{mean}, v{rs}")
    for i in range(8): a.e(f"v_pk_fma_f32 {vr(w+2*i,2)}, {vr(x+2*i,2)}, {vr(mean,2)}, {vr(mean,2)} op_sel:[0,1,0] op_sel_hi:[1,1,0] neg_lo:[0,0,1] neg_hi:[0,0,1]")
    for i in range(8):
        D = w + 2 * i
        a.e(f"v_pk_fma_f32 {vr(x+2*i,2)}, {vr(D,2)}, {vr(yf+2*i,2)}, {vr(x+2*i,2)}")
        a.e(f"v_cvt_pk_bf16_f32 v{xa+i}, v{x+2*i}, v{x+2*i+1}")
        if i % 4 == 1 and DP: mark(a, xa + i - 1, 0)
        if i % 4 == 3: a.e(f"buffer_store_dwordx4 {vr(xa+i-3,4)}, v{fo}, s[20:23], 0 offen offset:{2048*(i//4)} {SC}")
    if os.environ.get("RST"): mstamp(a)
    a.e("s_branch R_s2")
    a.e("R_l0:")
    for i in range(8): unpack(a, x + 2 * i, x + 2 * i + 1, xa + i)
    part(x, 0)
    a.e("s_waitcnt lgkmcnt(0)")
    st_ = st; st = yf
    a.e(f"s_cmp_lg_u32 s30, {os.environ.get('FPW', '4')}"); a.e("s_cbranch_scc1 R_fw")
    lds_spin(a, LW + 4, 16, st, nap=int(os.environ.get("NAP4", "4")))
    a.e("s_lshl_b32 s36, s28, 10"); a.e(f"s_add_u32 s36, s36, {F_FRONT}")
    a.e(f"v_lshlrev_b32 v{st+4}, 7, v1"); a.e(f"v_add_u32 v{st+4}, s36, v{st+4}")
    a.e("s_mov_b32 s53, 0"); a.e("s_mov_b64 exec, 0xff")
    a.e("R_fp:")
    a.e(f"buffer_load_dword v{st}, v{st+4}, s[56:59], 0 offen {SC}"); a.e("s_waitcnt vmcnt(0)")
    a.e(f"v_subrev_u32 v{st}, s52, v{st}"); a.e(f"v_and_b32 v{st+1}, 0xffffc0ff, v{st}"); a.e(f"v_cmp_eq_u32 vcc, 32, v{st+1}")
    a.e("s_cmp_eq_u64 vcc, exec"); a.e("s_cbranch_scc1 R_fq")
    a.e(f"s_sleep {FSLEEP}")
    a.e("s_add_u32 s53, s53, 1"); a.e("s_cmp_lt_u32 s53, s61"); a.e("s_cbranch_scc1 R_fp")
    a.e("s_mov_b32 s61, 0")
    a.e("R_fq:")
    a.e(f"v_lshrrev_b32 v{st}, 8, v{st}"); a.e(f"v_mov_b32 v{st+1}, {LW+28}"); a.e(f"ds_add_u32 v{st+1}, v{st}")
    a.e("s_mov_b64 exec, -1"); a.e("s_waitcnt lgkmcnt(0)")
    a.e("R_fw:")
    a.e("s_barrier")
    mstamp(a)
    load_y(a)
    a.e(f"v_mov_b32 v{st}, {LW+28}"); a.e(f"ds_read_b32 v{st+1}, v{st}"); a.e("s_waitcnt lgkmcnt(0)"); a.e(f"v_readfirstlane_b32 s94, v{st+1}")
    if STAMP: a.e("s_mov_b32 s95, s94")
    a.e(f"s_cmp_gt_u32 s94, {NVOTE // 2}"); a.e("s_cselect_b32 s94, 1, 0")
    group_off(a, 55, 28)
    a.e("s_add_u32 s62, s4, s55"); a.e("s_addc_u32 s63, s5, 0")
    a.e("s_sub_u32 s36, s28, 1"); a.e("s_max_i32 s36, s36, 0"); group_off(a, 92, 36); a.e("s_sub_u32 s92, s92, s55")
    a.e("s_add_u32 s36, s28, 1"); a.e("s_min_u32 s36, s36, 15"); group_off(a, 93, 36); a.e("s_sub_u32 s93, s93, s55")
    a.e(f"s_add_u32 s55, s55, {oSM}")
    lsrd(a, 20, oX3, XSZ)
    st = st_; comb(0); ln_finish(a, mean, var, rs); st = yf
    for i in range(8):
        D = w + 2 * i
        a.e(f"v_pk_add_f32 {vr(D,2)}, {vr(x+2*i,2)}, {SUBM}"); a.e(f"v_pk_mul_f32 {vr(D,2)}, {vr(D,2)}, {MULR}")
    a.e("s_waitcnt vmcnt(0)")
    for i in range(8):
        D = w + 2 * i
        unpack(a, st, st + 1, yy + i)
        a.e(f"v_pk_fma_f32 {vr(x+2*i,2)}, {vr(D,2)}, {vr(st,2)}, {vr(x+2*i,2)}"); a.e(f"v_cvt_pk_bf16_f32 v{xa+i}, v{x+2*i}, v{x+2*i+1}")
        if i % 4 == 1 and DP: mark(a, xa + i - 1, 0)
        if i % 4 == 3: a.e(f"buffer_store_dwordx4 {vr(xa+i-3,4)}, v{fo}, s[20:23], 0 offen offset:{2048*(i//4)} {SC}")
    a.e("R_s2:")
    st = st_
    for i in range(8): unpack(a, x + 2 * i, x + 2 * i + 1, xa + i)
    part(x, 1)
    if "1" in DP:
        a.e("s_waitcnt lgkmcnt(0)"); a.e("s_barrier")
        a.e("s_cmp_lg_u32 s30, 6"); a.e("s_cbranch_scc1 R_n6"); a.e("s_cmp_lg_u32 s60, 0"); a.e("s_cbranch_scc1 R_n6")
        a.e("s_lshl_b32 s53, s29, 7"); a.e(f"s_add_u32 s53, s53, {F_CS}"); a.e(f"v_mov_b32 v{pt}, 1"); a.e(f"v_mov_b32 v{pt+1}, 0")
        a.e("s_mov_b64 exec, 1"); a.e(f"buffer_atomic_add v{pt}, v{pt+1}, s[56:59], s53 offen {SC}"); a.e("s_mov_b64 exec, -1")
        a.e("R_n6:")
    else:
        publish(a, ST_R, 8, pt)
        a.e("s_barrier")
    a.e(f"s_cmp_lg_u32 s30, {7 if '1' in DP else 0}"); a.e("s_cbranch_scc1 R_nl")
    comb(1)
    outv = yf + 2; s3 = v(); m4 = v(); v4_ = v(); r4 = v()
    assert v.hi <= PK
    a.e(f"v_mov_b32 v{m4}, v{mean}"); a.e(f"v_mov_b32 v{v4_}, v{var}")
    ln_finish(a, mean, var, rs, s3)
    a.e(f"v_sub_f32 v{m4}, v{m4}, v{mean}"); a.e(f"v_mul_f32 v{m4}, v{m4}, v{rs}")
    a.e(f"v_mul_f32 v{v4_}, v{v4_}, v{rs}"); a.e(f"v_mul_f32 v{v4_}, v{v4_}, v{rs}")
    ln_finish(a, m4, v4_, r4)
    a.e(f"v_mov_b32 v{outv}, v{mean}"); a.e(f"v_mov_b32 v{outv+1}, v{rs}")
    a.e(f"v_fma_f32 v{outv+2}, v{m4}, v{s3}, v{mean}"); a.e(f"v_mul_f32 v{outv+3}, v{rs}, v{r4}")
    lsrd(a, 24, oLNS, 2048)
    a.e("s_lshl_b32 s36, s29, 3"); a.e(f"v_add_u32 v{t}, s36, v{I}"); a.e(f"v_lshlrev_b32 v{t}, 4, v{t}")
    a.e("s_mov_b64 exec, 0xff")
    a.e(f"buffer_store_dwordx4 {vr(outv,4)}, v{t}, s[24:27], 0 offen {SC}")
    a.e("s_mov_b64 exec, -1")
    publish(a, ST_R2, 1, pt)
    a.e("R_nl:")
    return v.hi

TAB = int(os.environ.get("TAB", "1")); TV = 248
def lead(seq, r, L, P=4):
    if L == 0: return list(seq)
    return [x for _, x in sorted(((i - L - 0.5 if i % P == r else i), x) for i, x in enumerate(seq))]
def order3(j, gi):
    mode, L = eval(os.environ.get("O3", "('r',0)"))
    if mode == "r": return [(gi + t) & 15 for t in range(16)]
    if mode == "n": return [gi] + [x for x in lead(range(16), (j + gi) & 3, L) if x != gi]
    if mode == "s": return [gi] + lead([x for x in range(16) if x != gi], (j + gi) & 3, L)
    if mode == "h": return [gi] + [x for x in lead([(t + (gi & 8)) & 15 for t in range(16)], (j + gi) & 3, L) if x != gi]
def order4(j, n):
    mode, L = eval(os.environ.get("O4", "('n',1)"))
    own = [(7 * n + i, 7 * n + 4 + i) for i in range(3)]
    ps = [(n + t) & 7 for t in range(8)] if mode == "r" else list(range(8))
    ab = [(7 * p + i, 7 * p + 4 + i) for i in range(2) for p in ps if p != n]
    c = [7 * p + o for p in ps for o in (2, 6, 3) if p != n or o == 3]
    rest = ab + [(c[2 * i], c[2 * i + 1]) for i in range(11)]
    if mode != "r": rest = lead(rest, (j + n + int(os.environ.get("O4R", "0"))) & 3, L)
    return own + rest
L4 = eval(os.environ.get("O4", "('n',1)"))[1] if TAB else 0
def tab_data(a):
    a.lines.append(".p2align 6"); a.lines.append("K_tab:")
    for gi in range(16):
        for j in range(4):
            o3 = order3(j, gi) + [0] * 16; o4 = order4(j, gi & 7) + [(0, 0)] * 4
            assert sorted(o3[:16]) == list(range(16)) and sorted(sum(o4[:28], ())) == list(range(56))
            a.lines.append(".short " + ",".join(str(o3[t] | o4[t][0] << 4 | o4[t][1] << 10) for t in range(32)))
def tab_load(a):
    a.e("s_getpc_b64 s[34:35]"); a.e("K_tpc:")
    a.e("s_lshl_b32 s36, s29, 2"); a.e("s_and_b32 s37, s28, 3"); a.e("s_add_u32 s36, s36, s37"); a.e("s_lshl_b32 s36, s36, 6")
    a.e("s_add_u32 s36, s36, K_tab-K_tpc"); a.e("s_add_u32 s34, s34, s36"); a.e("s_addc_u32 s35, s35, 0")
    a.e(f"v_and_b32 v{TV}, 31, v1"); a.e(f"v_lshlrev_b32 v{TV}, 1, v{TV}"); a.e(f"global_load_ushort v{TV+3}, v{TV}, s[34:35]")
def tab_make(a, w):
    T, x = TV + 3, TV + 4
    if not w:
        a.e(f"v_bfe_u32 v{x}, v{T}, 2, 2"); a.e(f"v_lshlrev_b32 v{TV}, 14, v{x}"); a.e(f"v_and_b32 v{x}, 3, v{T}"); a.e(f"v_lshl_add_u32 v{TV}, v{x}, 11, v{TV}")
        for lw in range(2):
            a.e(f"v_bfe_u32 v{x}, v{T}, {7+6*lw}, 3"); a.e(f"v_lshlrev_b32 v{TV+1+lw}, 14, v{x}"); a.e(f"v_bfe_u32 v{x}, v{T}, {4+6*lw}, 3"); a.e(f"v_lshl_add_u32 v{TV+1+lw}, v{x}, 10, v{TV+1+lw}")
    else:
        a.e(f"v_and_b32 v{x}, 15, v{T}"); a.e(f"v_mul_u32_u24 v{TV}, {64*7168}, v{x}")
        a.e("s_and_b32 s36, s30, 1"); a.e("s_mul_i32 s36, s36, 6"); a.e("s_add_u32 s36, s36, 4"); a.e(f"v_bfe_u32 v{x}, v{T}, s36, 6")
        assert all((q * 37) >> 8 == q // 7 for q in range(56))
        a.e(f"v_mul_u32_u24 v{TV+2}, 37, v{x}"); a.e(f"v_lshrrev_b32 v{TV+2}, 8, v{TV+2}"); a.e(f"v_mul_u32_u24 v{TV+2}, 7, v{TV+2}"); a.e(f"v_sub_u32 v{TV+2}, v{x}, v{TV+2}")
        a.e(f"v_cmp_eq_u32 vcc, 3, v{TV+2}"); a.e(f"v_cndmask_b32 v{TV+2}, 0, 1, vcc"); a.e(f"v_lshl_add_u32 v{TV+1}, v{x}, 16, v{TV+2}")
        for p_ in eval(os.environ.get("W4SKIP", "[]")): a.e("s_mov_b32 s36, 0x40000000"); a.e(f"v_writelane_b32 v{TV+1}, s36, {p_}")
def rot_init(a, which):
    if which == 3 and TAB: a.e("s_mov_b32 s44, 0")
    elif which == 3 and OWN3: a.e("s_mov_b32 s44, s29")
    elif which != 4: a.e("s_mov_b32 s44, s67")
    else: a.e("s_mov_b32 s44, 0")
def rot_next(a, which):
    a.e("s_add_u32 s44, s44, 1")
    if which != 4: a.e("s_and_b32 s44, s44, 15")
def kb4(a, d, lw):
    a.e("s_lshl_b32 s45, s44, 1"); a.e(f"s_add_u32 s45, s45, {lw}"); a.e("s_sub_u32 s45, s45, 32")
    a.e("s_mul_i32 s46, s45, 86"); a.e("s_lshr_b32 s46, s46, 8")
    a.e("s_mul_i32 s47, s46, 3"); a.e("s_sub_u32 s47, s45, s47"); a.e("s_lshl_b32 s47, s47, 2"); a.e("s_lshr_b32 s47, 0x362, s47"); a.e("s_and_b32 s47, s47, 7")
    a.e("s_cmp_ge_u32 s44, 10"); a.e("s_cselect_b32 s45, 9, 2"); a.e("s_cselect_b32 s51, 1, 0"); a.e("s_sub_u32 s45, s44, s45")
    a.e("s_cmp_lt_u32 s44, 3"); a.e("s_cselect_b32 s45, 0, s45"); a.e("s_cselect_b32 s51, s44, s51")
    a.e(f"s_lshl2_add_u32 s51, {lw}, s51")
    a.e("s_cmp_lt_u32 s44, 17"); a.e("s_cselect_b32 s47, s51, s47"); a.e("s_cselect_b32 s46, s45, s46")
    a.e("s_add_u32 s46, s46, s33"); a.e("s_and_b32 s46, s46, 7"); a.e("s_mul_i32 s46, s46, 7"); a.e(f"s_add_u32 s{d}, s46, s47")
assert all((q * 86) >> 8 == q // 3 for q in range(24))
WVB = {1: 238, 2: 238, 4: 239, 3: 241}
WV = 245
def w_lanes(a):
    t, t2 = WV + 8, WV + 9
    R = WVB[1]
    a.e(f"v_lshrrev_b32 v{t}, 3, v1"); a.e(f"v_lshlrev_b32 v{R}, 11, v{t}")
    a.e(f"v_and_b32 v{t}, 6, v{t}"); a.e(f"v_and_b32 v{t2}, 7, v1"); a.e(f"v_xor_b32 v{t}, v{t}, v{t2}"); a.e(f"v_lshl_add_u32 v{R}, v{t}, 4, v{R}")
    R = WVB[4]
    for p in range(2):
        a.e(f"v_lshrrev_b32 v{t}, 4, v1"); a.e(f"v_lshlrev_b32 v{R+p}, 11, v{t}")
        a.e(f"v_add_u32 v{t}, {4*p}, v{t}"); a.e(f"v_lshlrev_b32 v{t}, 1, v{t}"); a.e(f"v_and_b32 v{t2}, 15, v1"); a.e(f"v_xor_b32 v{t}, v{t}, v{t2}")
        a.e(f"v_lshl_add_u32 v{R+p}, v{t}, 4, v{R+p}")
    R = WVB[3]
    assert all((p * 2341) >> 16 == p // 28 for p in range(448))
    for ii in range(7):
        a.e(f"v_add_u32 v{t2}, {64*ii}, v1"); a.e(f"v_mul_u32_u24 v{t}, 2341, v{t2}"); a.e(f"v_lshrrev_b32 v{t}, 16, v{t}")
        a.e(f"v_mul_u32_u24 v{R+ii}, 28, v{t}"); a.e(f"v_sub_u32 v{t2}, v{t2}, v{R+ii}")
        a.e(f"v_mul_u32_u24 v{R+ii}, 7168, v{t}")
        a.e(f"v_lshrrev_b32 v{t}, 1, v{t}"); a.e(f"v_and_b32 v{t}, 2, v{t}"); a.e(f"v_xor_b32 v{t2}, v{t2}, v{t}")
        a.e(f"v_lshl_add_u32 v{R+ii}, v{t2}, 4, v{R+ii}")
def w_srd(a, which):
    c = CFG[which]
    a.e(f"s_mov_b64 s[12:13], s[{66+2*which}:{67+2*which}]")
    a.e(f"s_mov_b32 s14, {c['KBT'] * 32 * c['LDW']}"); a.e("s_mov_b32 s15, 0x20000")
def w_setup(a, which, pre=True, lo=0):
    c = CFG[which]; STB = c["STB"]; BW = STB // 2
    w_srd(a, which)
    a.e("s_and_b32 s35, s30, 1")
    a.e(f"s_mul_i32 s38, s{(0, 99, 29, 29, 33)[which]}, {c['RB']}");
    if which != 4: a.e(f"s_mul_i32 s41, s35, {32*c['LDW']}"); a.e("s_add_u32 s38, s38, s41")
    if which == 4: a.e(f"s_mul_i32 s41, s31, {1792*c['LDW']}"); a.e("s_add_u32 s38, s38, s41")
    a.e(f"s_mul_i32 s41, s35, {BW}"); a.e(f"s_add_u32 s41, s41, {c['WB']}")
    a.e("s_mov_b32 s42, 0"); rot_init(a, which)
    if not pre: return
    NP = c["NPRE"]
    a.e("s_mov_b32 s49, s44"); a.e("s_and_b32 s43, s28, 3"); a.e(f"s_mul_i32 s43, s43, {NP - lo}"); a.e("s_lshr_b32 s43, s43, 2"); a.e(f"s_mov_b32 s50, {lo}")
    if not WROT: a.e("s_mov_b32 s43, 0")
    if lo: a.e(f"s_add_u32 s43, s43, {lo}")
    L = a.lab("wpre"); a.e(f"{L}:")
    a.e(f"s_mul_i32 s42, s43, {STB}"); a.e("s_add_u32 s44, s49, s43")
    if which != 4: a.e("s_and_b32 s44, s44, 15")
    w_issue(a, which, pace=PACES.get(which, PACE))
    a.e("s_add_u32 s43, s43, 1"); a.e(f"s_cmp_eq_u32 s43, {NP}"); a.e(f"s_cselect_b32 s43, {lo}, s43")
    a.e("s_add_u32 s50, s50, 1"); a.e(f"s_cmp_lt_u32 s50, {NP}"); a.e(f"s_cbranch_scc1 {L}")
    mstamp(a)
    a.e(f"s_mov_b32 s42, {(NP % c['NW']) * STB}"); a.e(f"s_add_u32 s44, s49, {NP}")
    if which != 4: a.e("s_and_b32 s44, s44, 15")
YP = int(os.environ.get("YP", "0"))
def ypause(a):
    if not YP: return
    X = a.lab("yp")
    a.e(f"v_mov_b32 v6, {LW+4}"); a.e("ds_read2_b32 v[14:15], v6 offset0:0 offset1:1"); a.e("s_waitcnt lgkmcnt(0)"); a.e("v_readfirstlane_b32 s53, v15")
    a.e(f"s_cmp_lt_u32 s53, {YP}"); a.e(f"s_cbranch_scc1 {X}")
    lds_spin(a, LW + 4, 16, 6, nap=2)
    a.e(f"{X}:")
def park_load(a, pace):
    w_srd(a, 2)
    a.e("s_and_b32 s35, s30, 3"); a.e("s_lshl_b32 s35, s35, 19"); a.e("s_lshl_b32 s39, s29, 7"); a.e("s_add_u32 s39, s39, s35")
    for q in range(32):
        a.e(f"buffer_load_dwordx4 {vr(PK+4*q,4)}, v{WVB[2]}, s[12:15], s39 offen"); a.e("s_add_u32 s39, s39, 16384")
        if pace and q % 4 == 3: a.e(f"s_waitcnt vmcnt({pace})"); ypause(a)
def park(a): park_load(a, int(os.environ.get("PKP", "8")))
def late_park(a):
    X = a.lab("lp"); a.e("s_cmp_lg_u32 s60, 0"); a.e(f"s_cbranch_scc1 {X}"); call(a, park); a.e(f"{X}:")
def after_g1(a):
    c = CFG[3]
    w_srd(a, 3)
    a.e(f"v_readlane_b32 s36, v{TV+3}, 0"); a.e(f"v_readlane_b32 s37, v{TV+3}, 1")
    a.e("s_and_b32 s35, s30, 3"); a.e(f"s_mul_i32 s38, s35, {16*7168}"); a.e("s_mul_i32 s39, s29, 448"); a.e("s_add_u32 s38, s38, s39")
    for r in (36, 37): a.e(f"s_and_b32 s{r}, s{r}, 15"); a.e(f"s_mul_i32 s{r}, s{r}, {64*7168}"); a.e(f"s_add_u32 s{r}, s{r}, s38")
    a.e("s_mul_i32 s39, s35, 7168"); a.e(f"s_add_u32 m0, s39, {c['WB'] + c['S0'] * c['STB']}")
    for i in range(7):
        if i: a.e("s_add_u32 m0, m0, 1024")
        a.e(f"buffer_load_dwordx4 v{WVB[3]+i}, s[12:15], s36 offen lds")
    for i in range(7): a.e(f"buffer_load_dwordx4 {vr(W3S+4*i,4)}, v{WVB[3]+i}, s[12:15], s37 offen")
    a.e("s_lshr_b32 s36, s67, 2"); a.e("s_sub_u32 s36, s35, s36"); a.e("s_and_b32 s36, s36, 3"); a.e("s_lshl_b32 s36, s36, 15"); a.e(f"v_add_u32 v6, s36, v2")
    a.e("s_waitcnt vmcnt(14)")
    for q in range(32): a.e(f"ds_write_b128 v6, {vr(PK+4*q,4)} offset:{CFG[2]['WB'] + 1024*q}")
    a.e("s_waitcnt lgkmcnt(0)")
def after_g2(a):
    c = CFG[3]
    a.e("s_and_b32 s35, s30, 3"); a.e("s_mul_i32 s39, s35, 7168"); a.e(f"s_add_u32 s39, s39, {c['WB'] + (c['S0'] + 1) % c['NW'] * c['STB']}"); a.e("v_add_u32 v6, s39, v2")
    for i in range(7): a.e(f"ds_write_b128 v6, {vr(W3S+4*i,4)} offset:{1024*i}")
    a.e("s_waitcnt lgkmcnt(0)")
SUBX = {}
def call(a, f):
    SUBX[f.__name__] = f; a.e(f"s_call_b64 s[76:77], SUB_{f.__name__}")
def w1_slots(a, js, pace=0):
    for j in js:
        a.e(f"s_mov_b32 s42, {j*8192}"); a.e("s_mov_b32 s44, s67"); a.e(f"s_add_u32 s44, s44, {j}"); a.e("s_and_b32 s44, s44, 15")
        call_issue(a, w_issue, 1)
        if pace: a.e(f"s_waitcnt vmcnt({pace})")
def w1_done(a):
    a.e("s_mov_b32 s42, 0"); a.e("s_mov_b32 s44, s67"); a.e("s_add_u32 s44, s44, 13"); a.e("s_and_b32 s44, s44, 15")
class Rec:
    def __init__(s_): s_.l = []
    def e(s_, x): s_.l.append(x)
    srd = Asm.srd
def w_parts(which, direct=False):
    c = CFG[which]; STB = c["STB"]; n = STB // 2048; LDW = c["LDW"]; b = Rec()
    b.e("s_add_u32 s19, s41, s42")
    arm = ["s_mov_b32 m0, s19", "s_mov_b32 s39, s16"]
    if which == 4 and TAB:
        b.e(f"v_readlane_b32 s16, v{TV+1}, s44")
        b.e("s_bitcmp1_b32 s16, 0"); b.e(f"s_cselect_b32 s17, {8*2048}, {4*2048}".replace(f"{4*2048}", "s45")); b.e(f"s_cselect_b32 s18, {-20*2048}, s45")
        b.e("s_andn2_b32 s16, s16, 1"); b.e("s_add_u32 s16, s16, s38")
        b.l.insert(0, f"s_mov_b32 s45, {4*2048}")
        arm += ["s_mov_b32 s32, s17", "s_mov_b32 s3, s18"]
        if os.environ.get("W4SKIP"): arm += ["s_bitcmp1_b32 s16, 30", "s_cselect_b64 exec, 0, -1"]
    elif which == 3 and TAB and not direct:
        b.e(f"v_readlane_b32 s16, v{TV}, s44"); b.e("s_add_u32 s16, s16, s38")
    elif which == 4:
        b.e("s_and_b32 s40, s30, 1"); kb4(b, 16, "s40")
        b.e(f"s_mul_i32 s16, s16, {32*LDW}"); b.e("s_add_u32 s16, s16, s38")
        b.e("s_cmp_eq_u32 s47, 3"); b.e("s_cselect_b32 s17, 8, 4"); b.e("s_cselect_b32 s18, -20, 4")
        b.e("s_lshl_b32 s17, s17, 11"); b.e("s_lshl_b32 s18, s18, 11")
        arm += ["s_mov_b32 s32, s17", "s_mov_b32 s3, s18"]
    else:
        b.e(f"s_mul_i32 s16, s44, {64*LDW}"); b.e("s_add_u32 s16, s16, s38")
    if f"w{which}" in os.environ.get("HOT", ""): b.e("s_mov_b32 s16, s38")
    rot_next(b, which)
    b.e(f"s_add_u32 s42, s42, {STB}"); b.e(f"s_cmp_eq_u32 s42, {c['NW']*STB}"); b.e("s_cselect_b32 s42, 0, s42")
    fire = []
    for i in range(n):
        g = []
        if i:
            g.append("s_add_u32 m0, m0, 1024")
            if which in (1, 2): g.append(f"s_add_u32 s39, s39, {8*LDW}")
            elif which == 4: g.append(f"s_add_u32 s39, s39, s{3 if i == 4 else 32}")
            elif i == 7: g.append(f"s_add_u32 s39, s39, {16*LDW}")
        vo = WVB[which] + (0 if which in (1, 2) else (i & 1) if which == 4 else i % 7)
        fire.append(g + [f"buffer_load_dwordx4 v{vo}, s[12:15], s39 offen lds"])
    if f"w{which}" in os.environ.get("NOLD", ""): fire = [[x for x in g if not x.startswith("buffer_load")] + ["s_nop 0"] for g in fire]
    return b.l, arm, fire
def w_issue(a, which, pace=0, direct=False):
    prep, arm, fire = w_parts(which, direct)
    for x in prep + arm: a.e(x)
    for i, g in enumerate(fire):
        for x in g: a.e(x)
        if pace and (i % 4 == 3 or i == len(fire) - 1): a.e(f"s_waitcnt vmcnt({pace})")

def w_bases(a, which, dst, swn, ntl, t, t2):
    c = CFG[which]; RB = c["RB"]
    a.e(f"v_lshrrev_b32 v{t}, 2, v1")
    a.e(f"v_mul_u32_u24 v{dst}, {RB}, v{t}"); a.e(f"v_and_b32 v{t2}, 3, v1"); a.e(f"v_lshl_add_u32 v{dst}, v{t2}, 3, v{dst}")
    a.e(f"v_add_u32 v{dst}, {c['WB']}, v{dst}")
    if which == 3:
        a.e(f"s_mul_i32 s36, s{swn}, {7*32}"); a.e(f"v_add_u32 v{dst}, s36, v{dst}")
        a.e(f"v_bfe_u32 v{t}, v1, 4, 1"); a.e(f"v_lshlrev_b32 v{t}, 5, v{t}")
        a.e(f"s_cmp_eq_u32 s{swn}, 0"); a.e("s_cselect_b32 s36, 1, -1"); a.e(f"v_mul_lo_u32 v{t}, v{t}, s36")
        a.e(f"v_sub_u32 v{dst+1}, v{dst}, v{t}"); a.e(f"v_add_u32 v{dst}, v{dst}, v{t}")
        return 2, lambda nt, kk, h: (nt & 1, (32 * kk + 16 * h) * RB + 32 * nt)
    if which == 4: a.e(f"v_and_b32 v{t}, 7, v{t}")
    else: a.e(f"v_bfe_u32 v{t}, v{t}, 1, 2")
    for nt in range(ntl - 1, -1, -1):
        a.e(f"s_mul_i32 s36, s{swn}, {ntl}"); a.e(f"s_add_u32 s36, s36, {nt}")
        a.e(f"v_xor_b32 v{t2}, s36, v{t}"); a.e(f"v_lshl_add_u32 v{dst+nt}, v{t2}, 5, v{dst}")
    return ntl, lambda nt, kk, h: (nt, (32 * kk + 16 * h) * RB)

def a_parts(which):
    c = CFG[which]; b = Rec()
    if which <= 2 and NX:
        b.e("s_and_b32 s42, s48, 7"); b.e("s_lshl_b32 s42, s42, 14"); b.e("s_lshr_b64 s[48:49], s[48:49], 4")
    b.e("s_add_u32 s19, s41, s42")
    arm = ["s_mov_b32 m0, s19", "s_mov_b32 s39, s16"]; fire = []
    if which == 2:
        b.e(f"s_mul_i32 s16, s44, {8*PITCH}"); b.e("s_add_u32 s16, s16, s38")
        b.e("s_lshr_b32 s45, s44, 2"); b.e("s_xor_b32 s45, s45, s94"); b.e("s_and_b32 s45, s45, 1"); b.e("s_lshl_b32 s45, s45, 13"); b.e("s_add_u32 s16, s16, s45")
        b.e("s_lshr_b32 s45, s44, 3"); b.e("s_lshl_b32 s45, s45, 4"); b.e("s_add_u32 s45, s45, 16")
        b.e("s_sub_u32 s46, 0, s45"); b.e("s_bitcmp1_b32 s44, 2"); b.e("s_cselect_b32 s45, s45, s46"); b.e("s_add_u32 s16, s16, s45")
        step = PITCH
    elif which == 4:
        for lw in range(2):
            if TAB: b.e(f"v_readlane_b32 s{16+lw}, v{TV+1+lw}, s44")
            else: kb4(b, 16 + lw, lw); spread(b, 16 + lw, 16 + lw)
        for lw in range(2): b.e(f"s_add_u32 s{16+lw}, s{16+lw}, s38")
        arm.append("s_mov_b32 s40, s17")
        for i in range(4):
            for lw in range(2):
                fire.append((["s_add_u32 m0, m0, 1024"] if i or lw else []) + ([f"s_add_u32 s{39+lw}, s{39+lw}, {c['KBT']*2048}"] if i else []) +
                            [f"buffer_load_dwordx4 v2, s[12:15], s{39+lw} offen {SC} lds"])
    elif which == 3 and TAB:
        b.e(f"v_readlane_b32 s16, v{TV}, s44"); b.e("s_add_u32 s16, s16, s38"); step = c['KBT'] * 2048
    else:
        b.e("s_lshr_b32 s45, s44, 2"); b.e("s_lshl_b32 s45, s45, 14"); b.e("s_and_b32 s16, s44, 3"); b.e("s_lshl_b32 s16, s16, 11")
        b.e("s_add_u32 s16, s16, s45"); b.e("s_add_u32 s16, s16, s38"); step = c['KBT'] * 2048
    if f"a{which}" in os.environ.get("HOT", ""):
        b.e("s_mov_b32 s16, s38")
        if which == 4: b.e("s_add_u32 s17, s38, 1024")
    for i in range(4 if which != 4 else 0):
        fire.append((["s_add_u32 m0, m0, 2048", f"s_add_u32 s39, s39, {step}"] if i else []) + [f"buffer_load_dwordx4 v2, s[12:15], s39 offen {SC} lds"])
        fire.append([f"buffer_load_dwordx4 v2, s[12:15], s39 offen offset:1024 {SC} lds"])
    rot_next(b, which)
    if not (which <= 2 and NX):
        b.e(f"s_add_u32 s42, s42, 16384"); b.e(f"s_cmp_eq_u32 s42, {c['NA']*16384}"); b.e("s_cselect_b32 s42, 0, s42")
    if f"a{which}" in os.environ.get("NOLD", ""): fire = [[x for x in g if not x.startswith("buffer_load")] + ["s_nop 0"] for g in fire]
    return b.l, arm, fire
def a_issue(a, which):
    prep, arm, fire = a_parts(which)
    for x in prep + arm + sum(fire, []): a.e(x)
SUBS = {}
def call_issue(a, issue, which):
    nm = f"SUB_{issue.__name__}_{which}"; SUBS[nm] = (issue, which)
    a.e(f"s_call_b64 s[76:77], {nm}")
def emit_subs(a):
    for nm, f in SUBX.items(): a.e(f"SUB_{nm}:"); f(a); a.e("s_setpc_b64 s[76:77]")
    for nm, (issue, which) in SUBS.items():
        a.e(f"{nm}:"); issue(a, which); a.e("s_setpc_b64 s[76:77]")
def ld_steps(a, which, N, per, issue, npre, rate=2, plan={}, lo=0, hi=None, last=None, hold=(), sched=None, armed=False):
    NS = CFG[which]["NS"]
    prep, arm, fire = (w_parts if issue is w_issue else a_parts)(which); h = max(1, per * HSPLIT // 8)
    plan = {b: (x if isinstance(x, list) else [x]) for b, x in plan.items()}
    q = [s_ for s_ in range(npre) for _ in range(per)]
    def after(tag):
        if issue is w_issue and which == 4 and isinstance(tag, int) and tag < npre: tag = npre - 1
        return len(q) - 1 - max(i for i, x in enumerate(q) if x == tag)
    issued = npre; steps = []
    for b in range(NS):
        acts = plan.get(b, []); was = {}
        def do(pos):
            for n_, act in enumerate(acts):
                if act[0] != pos: continue
                if act[1] is not None: was[n_] = after(act[1])
                q.extend([act[4]] * act[3])
        do(True)
        k = 0
        if (b > 0 or (sched is not None and issue is a_issue)) and b not in hold:
            k = max(0, min(rate, min(NS, b - 1 + N) - issued)) if sched is None else sched[b]
        assert k or not any(x[0] == "mid" for x in acts)
        for j in range(k):
            q.extend([issued] * h)
            if j == 0: do("mid")
            q.extend([issued] * (per - h)); issued += 1
        do(False)
        w = after(b); assert w <= 63
        steps.append((k, w, b if acts else None, tuple(sorted(was.items())), issued < NS))
    def em(l):
        for x in l:
            a.e(x)
            if x == "s_barrier" and os.environ.get("JIT"): mstamp(a)
    F1, F2 = sum(fire[:h], []), sum(fire[h:], [])
    lprep = prep
    if len(prep) > 8:
        nm = f"PREP_{issue.__name__}_{which}"; SUBS[nm] = ((lambda a_, w_, l=prep: [a_.e(x) for x in l]), which)
        prep = [f"s_call_b64 s[76:77], {nm}"]
    if lo == 0 and npre < NS and not armed: em(prep + arm)
    i = lo; HI = NS if hi is None else hi
    while i < HI:
        j = i
        while j < HI and steps[j] == steps[i]: j += 1
        k, w, ab, was, more = steps[i]; n = j - i; was = dict(was)
        def run(pos):
            for n_, act in enumerate(plan.get(ab, [])):
                if act[0] != pos: continue
                if n_ in was: a.e(f"s_waitcnt vmcnt({was[n_]})")
                act[2]()
        tail = [f"s_waitcnt vmcnt({w})", "s_barrier"]
        if n > 2 and k == 1:
            em(F1); a.e("s_mov_b32 s43, 1"); L = a.lab("ld"); a.e(f"{L}:")
            em(lprep + F2 + arm + tail + F1)
            a.e("s_add_u32 s43, s43, 1"); a.e(f"s_cmp_lt_u32 s43, {n}"); a.e(f"s_cbranch_scc1 {L}")
            em(prep + F2 + arm + tail)
        else:
            for r in range(n):
                run(True)
                for jj in range(k):
                    nxt = more or jj < k - 1
                    em(F1)
                    if jj == 0: run("mid")
                    em((prep if nxt else []) + F2 + (arm if nxt else []))
                run(False)
                em(tail)
        i = j
    if hi is not None: return
    if which == 4:
        if issue is a_issue: a.e("s_cmp_eq_u32 s60, 1"); a.e("s_cbranch_scc1 K_fin")
        elif hold is HOLD: a.e("s_branch K_fin"); return
        if not RPL: r_pre(a)
    if last: last()
    late = os.environ.get("TLATE", "0") == "1"
    if late: a.e("s_barrier")
    if issue is a_issue and W4POS == f"{which}C":
        X = a.lab("tw4"); a.e("s_cmp_lg_u32 s60, 0"); a.e(f"s_cbranch_scc1 {X}"); touch(a, B_W4, 7 * MB, 20); a.e(f"{X}:")
    if not late: a.e("s_barrier")

RK = int(os.environ.get("RK", "7")); assert RK == 0 or C0PUB <= RK <= STQ
PA2 = int(os.environ.get("PA2", "1")); PBB = int(os.environ.get("PBB", "2")); PC0 = int(os.environ.get("PC0", "4"))
HOLD = eval(os.environ.get("HOLD", "[2,3,4]"))
def a_loader(a, which):
    c = CFG[which]
    if which <= 2:
        plan = side_jobs(a, 1) if which == 1 else {}
        if which == 1 and "1" in DP: mstamp(a); a.e(f"s_sleep {os.environ.get('SJD', '30')}")
        else: mstamp(a); a.e("s_barrier")
        mstamp(a)
        for b in sorted(plan):
            for act in (plan[b] if isinstance(plan[b], list) else [plan[b]]):
                if act[1] is not None: a.e("s_waitcnt vmcnt(0)")
                act[2]()
        if which == 1:
            a.e("s_cmp_lg_u32 s30, 4"); a.e("s_cbranch_scc1 AL_nw"); a.e("s_cmp_eq_u32 s60, 0"); a.e("s_cbranch_scc1 AL_l0")
            a.e(f"s_add_u32 s54, s55, {(fso(ST_G3) - LSTR) & 0xffffffff:#x}"); a.e("s_add_u32 s53, s54, s92"); a.e("v_mov_b32 v9, s53")
            a.e("s_add_u32 s53, s53, 128"); a.e("v_writelane_b32 v9, s53, 1")
            a.e("s_add_u32 s53, s54, s93"); a.e("v_writelane_b32 v9, s53, 2"); a.e("s_add_u32 s53, s53, 128"); a.e("v_writelane_b32 v9, s53, 3")
            poll_core(a, 8, [9], 15, cnt=8)
            a.e("s_branch AL_nw")
            a.e("AL_l0:")
            a.e(f"s_add_u32 s54, s55, {fso(ST_R2)}"); a.e("s_xor_b32 s54, s54, 0x2000"); a.e("v_mov_b32 v9, s54")
            poll_core(a, 8, [9], 1, cnt=16)
            a.e("AL_nw:")
        if which == 2: a.e("s_waitcnt vmcnt(0)")
        a.e("s_barrier")
        if which == 1 and "p" not in os.environ.get("FO", "1pd"): late_park(a)
        call(a, after_g1 if which == 1 else after_g2)
        return
    a.e("s_and_b32 s35, s30, 1")
    if which == 2:
        hs_srd(a, 12)
        a.e("s_lshl_b32 s38, s28, 11"); a.e("s_add_u32 s38, s38, 16384"); a.e(f"s_mul_i32 s36, s35, {4*PITCH}"); a.e("s_add_u32 s38, s38, s36")
    else:
        lsrd(a, 12, c["A"], XSZ if which != 4 else H2SZ)
        a.e(f"s_mul_i32 s38, s35, {4*c['KBT']*2048}")
        if which == 4: a.e(f"s_mul_i32 s36, s31, {7*16384}"); a.e("s_add_u32 s38, s38, s36")
    a.e("s_lshl_b32 s41, s35, 13"); a.e("s_mov_b32 s42, 0"); rot_init(a, which)
    assert c["NA"] == 3 or which == 3
    prep, arm, fire = a_parts(which)
    if which == 4:
        flag_addr(a, 9, ST_G3A); flag_addr(a, 10, ST_G3B); flag_addr(a, 12, ST_G3)
        a.e("v_mov_b32 v13, 1"); a.e("s_and_b32 s51, s30, 1"); a.e("s_lshl_b32 s51, s51, 30")
        def signal(r): a.e("s_mov_b64 exec, 1"); a.e(f"buffer_atomic_add v13, v{r}, s[56:59], s51 offen {SC}"); a.e("s_mov_b64 exec, -1")
        a.e("s_lshl_b32 s54, s60, 2"); a.e("s_add_u32 s54, s54, 4"); lds_spin(a, LW + 64, "s54", 14, nap=2)
        signal(9)
        if not PA2: poll_core(a, 8, [9], 1, cnt=8)
        mstamp(a)
        plan = {6 - L4: ("mid", None, lambda: flag_try(a, 11, 10), 1, "f"), 8 - L4: ("mid", "f", lambda: flag_check(a, 11, 10, 8), 0, None),
                13 - L4: ("mid", None, lambda: flag_try(a, 11, 12), 1, "g"), 15 - L4: ("mid", "g", lambda: flag_check(a, 11, 12, 8), 0, None)}
        plan = {k_: [x] for k_, x in plan.items()}
        if PA2:
            plan[1] = [(False, None, lambda: flag_try(a, 8, 9), 1, "a")]
            plan[2] = [(True, "a", lambda: flag_check(a, 8, 9, 8), 0, None)]
        if DP:
            a.e("v_xor_b32 v15, 128, v12")
            plan[20] = [("mid", None, lambda: flag_try(a, 11, 15), 1, "h")]; plan[22] = [("mid", "h", lambda: flag_check(a, 11, 15, 8), 0, None)]
        plan.setdefault(PBB + 1, []).insert(0, (True, None, lambda: signal(10), 1, "s"))
        plan.setdefault(PC0 + 2, []).insert(0, (True, None, lambda: signal(12), 1, "s"))
        a.e("s_mov_b32 s44, 3")
        ld_steps(a, which, 3, 8, a_issue, 3, plan=plan); return
    if which == 3:
        mask, cnt = flag_addr(a, 9, ST_G2)
        def wait2():
            if B0E > 1: a.e(f"s_sleep {B0E}")
            poll_core(a, 8, [9], mask, cnt=cnt); mstamp(a); mstamp(a)
            if W3H: a.e("s_add_u32 s54, s60, 1"); lds_set(a, LW + 60, "s54", 10)
        N3 = 2 if "3" in DP else 1
        a.e(f"s_mov_b32 s44, {N3}"); a.e(f"s_mov_b32 s42, {16384*N3}")
        plan = side_jobs(a, 3)
        if os.environ.get("P30", "0") == "1":
            def wait0(): own_wait(a, ST_G2, False, 14); wait2()
            plan[0] = (True, None, wait0, 0, None)
            ld_steps(a, which, 3, 8, a_issue, 1, plan=plan, sched=[int(os.environ.get("P3N", "1")), 2 - int(os.environ.get("P3N", "1"))] + [1] * 13 + [0]); return
        plan[1] = (True, None, wait2, 0, None)
        if RPL: plan[15] = (False, None, lambda: call(a, r_pre0), 4, "r")
        PZ3 = int(os.environ.get("PZ3", "0"))
        if PZ3:
            a.srd(84, 4, 32 * MB, off=216 * MB)
            a.e("s_cmp_eq_u32 s60, 0"); a.e("s_cselect_b32 s86, s86, 0")
            for i in range(4): a.e(f"v_mov_b32 v{216+i}, -1")
            a.e("s_lshl_b32 s88, s2, 1"); a.e("s_and_b32 s50, s30, 1"); a.e("s_add_u32 s88, s88, s50"); a.e(f"s_mul_i32 s88, s88, {PZ3*12*1024}")
            def pz():
                for i in range(PZ3): a.e(f"buffer_store_dwordx4 v[216:219], v2, s[84:87], s88 offen offset:{i*1024} {SC}")
                a.e(f"s_add_u32 s88, s88, {PZ3*1024}")
            for b in range(2, 14):
                p_ = plan.get(b, []); p_ = p_ if isinstance(p_, list) else [p_]
                plan[b] = p_ + [(False, None, pz, PZ3, "z")]
        if os.environ.get("A3L", "0") == "1":
            def w1_():
                X = a.lab("w1"); a.e("s_cmp_lg_u32 s60, 0"); a.e(f"s_cbranch_scc1 {X}"); poll_core(a, 8, [9], mask, cnt=cnt); lds_set(a, LW + 60, 1, 10); a.e(f"{X}:")
            def w2_(): poll_core(a, 8, [9], mask, cnt=cnt, nap=2); mstamp(a); mstamp(a)
            plan[1] = (True, None, w1_, 0, None)
            p2 = plan[2] if isinstance(plan[2], list) else [plan[2]]
            plan[2] = [(True, None, w2_, 0, None)] + p2
            ld_steps(a, which, 3, 8, a_issue, N3, plan=plan, hold=(1,)); return
        ld_steps(a, which, c["NA"], 8, a_issue, N3, plan=plan, sched=eval(os.environ.get("A3S", "None"))); return
    assert 0

def side_jobs(a, which):
    c = CFG[which]; plan = {}
    sv = 16; S, Q, mean, rs, tt, ad, fa, fr = 216, 217, 218, 219, 220, 221, 222, 223
    cv = 180 if which == 3 else 24; N = c["LDW"] // 2; co_ = 224; HB = c["TN16"] * 32
    lg = 3 if which == 1 else 5
    def cld(k0=0, k1=4):
        if k0 == 0:
            a.srd(24, 4, 32 * N * 4, off=CSP[which])
            a.e("s_cmp_eq_u32 s60, 0"); a.e("s_cselect_b32 s26, s26, 0")
            if NOCS3 and which == 3: a.e("s_mov_b32 s26, 0")
            a.e("s_and_b32 s36, s30, 1"); a.e(f"s_mul_i32 s36, s36, {HB}"); a.e(f"s_mul_i32 s37, s29, {2*HB}"); a.e("s_add_u32 s37, s36, s37")
            a.e(f"v_lshrrev_b32 v{co_}, {lg}, v1"); a.e(f"v_mul_u32_u24 v{co_}, {N*4}, v{co_}")
            a.e(f"v_and_b32 v{cv-1}, {16*((1 << lg) - 1)}, v2"); a.e(f"v_add_u32 v{co_}, v{co_}, v{cv-1}")
        for k in range(k0, k1):
            a.e(f"buffer_load_dwordx4 {vr(cv+4*(k if k < 9 else k - 8),4)}, v{co_}, s[24:27], s37 offen {SC}"); a.e(f"s_add_u32 s37, s37, {N*4*(64 >> lg)}")
    def piece(lines, l0=False):
        def f():
            X = a.lab("pc")
            if l0: a.e("s_cmp_lg_u32 s60, 0"); a.e(f"s_cbranch_scc1 {X}")
            for x in lines: a.e(x)
            if l0: a.e(f"{X}:")
        return f
    def cadd(k0, k1): return [f"v_add_f32 v{cv+h}, v{cv+h}, v{cv+4*k+h}" for k in range(k0, k1) for h in range(4)]
    def sw(op): return [f"v_mov_b32 v{cv+4+e}, v{cv+e}" for e in range(4)] + [f"{op} v{cv+e}, v{cv+4+e}" for e in range(4)] + cadd(1, 2)
    if which in (1, 3):
        cout = ["s_and_b32 s36, s30, 1", f"s_mul_i32 s36, s36, {HB}", f"s_add_u32 s36, s36, {CSO[which]}", f"v_add_u32 v{cv-1}, s36, v2",
                f"s_bfm_b64 exec, {HB//16}, 0", f"ds_write_b128 v{cv-1}, {vr(cv,4)}", "s_mov_b64 exec, -1", "s_waitcnt lgkmcnt(0)"]
    if which == 1:
        flag_addr(a, fa, ST_R2)
        def ld():
            flag_check(a, fr, fa, 16)
            lsrd(a, 20, oLNS, 2048); a.e("s_and_b32 s35, s30, 1"); a.e("s_lshl_b32 s35, s35, 10")
            a.e(f"buffer_load_dwordx4 {vr(sv,4)}, v2, s[20:23], s35 offen {SC}")
        fin = piece(["s_and_b32 s36, s30, 1", "s_lshl_b32 s36, s36, 10", f"s_add_u32 s36, s36, {LNSL}", f"v_add_u32 v{ad}, s36, v2", f"ds_write_b128 v{ad}, {vr(sv,4)}", "s_waitcnt lgkmcnt(0)"])
        a.e("s_lshl_b32 s53, s29, 7"); a.e(f"s_add_u32 s53, s53, {F_CS}"); a.e(f"v_mov_b32 v{fa+4}, s53")
        def cld1(): flag_check(a, fr + 4, fa + 4, 16); cld()
        work = cadd(1, 4) + [f"v_add_f32_dpp v{cv+e}, v{cv+e}, v{cv+e} row_ror:8 row_mask:0xf bank_mask:0xf" for e in range(4)] + \
               sw("v_permlane16_swap_b32") + sw("v_permlane32_swap_b32")
        plan = {2: (False, None, lambda: flag_try(a, fr + 4, fa + 4), 1, "e"), 5: [(False, "e", cld1, 4, "c"), (False, None, lambda: flag_try(a, fr, fa), 1, "f")],
                8: (False, "f", ld, 1, "d"), 15: [(False, None, piece(cout, 1), 0, None), (False, "d", fin, 0, None)]}
        plan[9] = (False, None, piece(work, 1), 0, None)
    if which == 3:
        flag_addr(a, fa, ST_G2S)
        a.e(f"v_lshlrev_b32 v{ad}, 3, v1")
        def ld(k0):
            def f():
                if k0 == 0:
                    flag_check(a, fr, fa, 16)
                    lsrd(a, 20, oST2, 24576)
                    a.e("s_and_b32 s35, s30, 1"); a.e("s_lshl_b32 s35, s35, 9")
                a.e(f"s_add_u32 s36, s35, {k0*2048}")
                for k in range(k0, k0 + 8):
                    if k % 8 == 4: a.e("s_add_u32 s36, s36, 4096")
                    a.e(f"buffer_load_dwordx2 {vr(sv+2*k,2)}, v{ad}, s[20:23], s36 offen offset:{(k&3)*1024} {SC}")
            return f
        b = Rec()
        for st_ in (8, 4, 2, 1):
            for k in range(2 * st_): b.e(f"v_add_f32 v{sv+k}, v{sv+k}, v{sv+2*st_+k}")
        o_ = sv + 4
        b.e(f"v_mul_f32 v{o_}, {f32(1/1024)}, v{sv}"); b.e(f"v_mul_f32 v{Q}, {f32(1/1024)}, v{sv+1}")
        b.e(f"v_fma_f32 v{Q}, -v{o_}, v{o_}, v{Q}"); b.e(f"v_max_f32 v{Q}, 0, v{Q}")
        ln_finish(b, o_, Q, rs, o_ + 1)
        b.e(f"v_mul_f32 v{o_+2}, {f32(GC1)}, v{rs}"); b.e(f"v_mul_f32 v{o_+3}, v{rs}, v{rs}")
        b.e(f"v_mul_f32 v{o_+3}, v{o_+3}, v{o_+2}"); b.e(f"v_mul_f32 v{o_+3}, {f32(0.044715)}, v{o_+3}")
        b.e("s_lshl_b32 s35, s35, 1"); b.e(f"s_add_u32 s35, s35, {LNSL}"); b.e(f"v_add_u32 v{tt}, s35, v2")
        b.e(f"ds_write_b128 v{tt}, {vr(o_,4)}"); b.e("s_waitcnt lgkmcnt(0)")
        def both(f, g):
            def h(): f(); g()
            return h
        plan = {2: (False, None, cld, 4, "c"), 3: (False, None, lambda: cld(4, 9), 5, "c"),
                5: [(False, "c", piece(cadd(1, 5), 1), 0, None), (False, None, lambda: flag_try(a, fr, fa), 1, "f")],
                6: (False, None, both(piece(cadd(5, 9), 1), lambda: cld(9, 16)), 7, "e"),
                7: (False, "f", ld(0), 8, "d"), 8: (False, None, ld(8), 8, "d"),
                9: (False, "e", piece(cadd(1, 5), 1), 0, None), 10: (False, None, piece(cadd(5, 8), 1), 0, None), 11: (False, None, piece(sw("v_permlane32_swap_b32") + cout, 1), 0, None),
                12: (False, "d", piece(b.l[:16]), 0, None), 13: (False, None, piece(b.l[16:32]), 0, None), 14: (False, None, piece(b.l[32:]), 0, None)}
    return plan

W2E = int(os.environ.get("W2E", "3"))
def w2_early(a):
    if W2E: w_setup(a, 2, pre=False); w1_slots(a, range(W2E), pace=8)
def w_loader(a, which):
    c = CFG[which]
    if which < 3:
        if which == 1: a.e("s_waitcnt vmcnt(0)")
        if which == 1 and "a" in STO: stouch(a, 3, 128 if "8" in STO else 64, 2); mstamp(a)
        if which == 1 and sum(SG): sb_init(a)
        sg(a, SG[2*which-2])
        if not (which == 1 and "1" in DP): a.e("s_barrier")
        sg(a, SG[2*which-1])
        if which == 1 and "b" in STO: stouch(a, 3, 128 if "8" in STO else 64, 2); mstamp(a)
        if which == 2: a.e("s_waitcnt vmcnt(0)")
        a.e("s_barrier")
        if which == 1 and "p" not in os.environ.get("FO2", "1pd"): late_park(a)
        call(a, after_g1 if which == 1 else after_g2); mstamp(a)
        return
    args = (a, which, c["NW"], c["STB"] // 2048, w_issue, c["NPRE"], c["WR"])
    if which == 4:
        assert c["NW"] == 6 and c["WB"] == CFG[1]["WB"] + 3 * 8192
        a.e("s_cmp_eq_u32 s60, 1"); a.e("s_cbranch_scc1 WL_t1")
        ld_steps(*args, hi=24)
        WT = eval(os.environ.get("WT", "[(11,12,15,9),(13,14,10),(3,4),(5,6,0),(7,8,1,2),()]"))
        def some(js):
            def f():
                if js is WT[0]: w_setup(a, 1, pre=False)
                for j in js:
                    if j in (9, 10) and js is not WT[5]:
                        a.e(f"s_add_u32 s39, s38, {j*64*2048}")
                        for i in range(4): a.e(f"buffer_load_dwordx4 {vr(16+16*(j-9)+4*i,4)}, v{WVB[1]}, s[12:15], s39 offen"); a.e("s_add_u32 s39, s39, 16384")
                    else: w1_slots(a, (j,), pace=8 if js is WT[5] else 0)
            return f
        plan = {24 + i: (False, None, some(WT[i]), 4 * len(WT[i]), "w") for i in range(4) if WT[i]}
        ld_steps(*args, plan=plan, lo=24, last=some(WT[4]))
        rg = [j for j in (9, 10) if j not in WT[5]]
        if rg:
            a.e(f"s_add_u32 s36, s41, {9*8192}"); a.e("v_add_u32 v6, s36, v2"); a.e("s_waitcnt vmcnt(0)")
            for j in rg:
                for i in range(4): a.e(f"ds_write_b128 v6, {vr(16+16*(j-9)+4*i,4)} offset:{(j-9)*8192+i*1024}")
            a.e("s_waitcnt lgkmcnt(0)")
        some(WT[5])(); mstamp(a)
        a.e("s_branch NEXT")
        a.e("WL_t1:")
        ld_steps(*args, hold=HOLD)
        return
    plan = {}
    if "3" in DP:
        lsrd(a, 20, oX1P, XSZ)
        a.e(f"v_readlane_b32 s36, v{TV+3}, 1"); a.e("s_and_b32 s35, s30, 1"); a.e("s_lshl_b32 s46, s35, 18"); a.e("s_lshl_b32 s47, s35, 13"); a.e("s_add_u32 s47, s47, 16384")
        a.e("s_bfe_u32 s37, s36, 0x20002"); a.e("s_lshl_b32 s37, s37, 14"); a.e("s_and_b32 s36, s36, 3"); a.e("s_lshl_b32 s36, s36, 11"); a.e("s_add_u32 s46, s46, s36"); a.e("s_add_u32 s46, s46, s37")
        a.e("v_add_u32 v8, s47, v2")
        if W3E: w_issue(a, 3); args = args[:5] + (3,) + args[6:]
        def second():
            L = a.lab("sp"); D = a.lab("sq")
            a.e("s_mov_b32 s34, m0"); a.e("s_cmp_lg_u32 s60, 0"); a.e(f"s_cbranch_scc1 {L}a")
            lds_spin(a, LW + 60, 1, 6, nap=1)
            a.e(f"{L}a:"); a.e("s_mov_b32 s53, 0")
            if int(os.environ.get("S3D", "0")): a.e("s_sleep " + os.environ["S3D"])
            a.e(f"{L}:"); a.e("s_mov_b32 m0, s47"); a.e("s_mov_b32 s36, s46")
            for i in range(4):
                if i: a.e("s_add_u32 m0, m0, 2048"); a.e("s_add_u32 s36, s36, 65536")
                for k in range(2): a.e(f"buffer_load_dwordx4 v2, s[20:23], s36 offen offset:{1024*k} {SC} lds")
            a.e("s_waitcnt vmcnt(0)")
            for i in range(8): a.e(f"ds_read_b32 v{10+i}, v8 offset:{1024*i}")
            a.e("s_waitcnt lgkmcnt(0)")
            a.e("v_or3_b32 v10, v10, v11, v12"); a.e("v_or3_b32 v13, v13, v14, v15"); a.e("v_or3_b32 v10, v10, v16, v17"); a.e("v_bitop3_b32 v10, v10, v13, s60 bitop3:0xa8")
            a.e("v_cmp_ne_u32 vcc, 0, v10"); a.e(f"s_cbranch_vccz {D}"); a.e("s_sleep 1")
            a.e("s_add_u32 s53, s53, 1"); a.e("s_cmp_lt_u32 s53, s61"); a.e(f"s_cbranch_scc1 {L}"); a.e("s_mov_b32 s61, 0")
            a.e(f"{D}:"); a.e("s_mov_b32 m0, s34")
        plan[1] = (True, None, second, 8, "x")
    elif W3H: plan[1] = (True, None, lambda: (a.e("s_add_u32 s54, s60, 1"), lds_spin(a, LW + 60, "s54", 6, nap=1)), 0, None)
    def sg3(n):
        def f():
            X = a.lab("st"); a.e("s_cmp_lg_u32 s60, 0"); a.e(f"s_cbranch_scc1 {X}"); sb(a, n); a.e(f"{X}:")
        return f
    for b_, n_ in eval(os.environ.get("SG3", "{}")).items(): plan[b_] = (False, None, sg3(n_), 0, None)
    if RPL: plan[int(os.environ.get("RPW", "15"))] = (False, None, lambda: call(a, r_pre0), 4, "r")
    ld_steps(*args, plan=plan)
W3H = int(os.environ.get("W3H", "0")) or "3" in DP; W3E = int(os.environ.get("W3E", "1"))
W1L = int(os.environ.get("W1L", "3"))

B0E = int(os.environ.get("B0E", "6")); RPL = int(os.environ.get("RPL", "1")); RPC = int(os.environ.get("RPC", "1"))
LF1 = os.environ.get("LF1", "sc1"); LF2 = os.environ.get("LF2", "")
RES2 = 148; C2R = 200; SO3 = 238; RES4 = [172, 176, 180, 184, 188, 192, 196, 240]
def g_compute(a, which):
    c = CFG[which]
    WM, WN, MT, NT, KBT, NS, NA, NW, TN16, STB, WB = [c[k] for k in "WM WN MT NT KBT NS NA NW TN16 STB WB".split()]
    v = VA(6); nm = f"G{which}"
    lane = 1; l16 = 2
    t = v(); t2 = v(); pt = v(4, 2)
    NTILE = (0, 99, 29, 29, 33)[which]
    a_ = a
    if which != 3: a = Rec()
    if WN == 2: a.e("s_lshr_b32 s34, s30, 1"); a.e("s_and_b32 s35, s30, 1")
    else: a.e("s_mov_b32 s34, s30"); a.e("s_mov_b32 s35, 0")
    a0 = v(); w0 = v(4, 1); aa = v(); wa = v(4, 1); J = v(); G = v()
    a.e(f"v_and_b32 v{J}, 15, v{lane}"); a.e(f"v_lshrrev_b32 v{G}, 4, v{lane}")
    a.e(f"s_mul_i32 s37, s34, {MT}")
    a.e(f"s_mul_i32 s38, s{NTILE}, {TN16}"); a.e(f"s_mul_i32 s36, s35, {NT}"); a.e("s_add_u32 s38, s38, s36")
    acc = v(MT * NT * 4, 4); NF = MT + NT if which > 2 else 8
    fX = v(NF * 4, 4); fY = v(NF * 4, 4); tmp = v(); tp = v(4, 2)
    def A_(mt, nt): return acc + 4 * (mt * NT + nt)
    def SUBM(r): return f"{vr(r,2)} op_sel_hi:[1,0] neg_lo:[0,1] neg_hi:[0,1]"
    def MULR(r): return f"{vr(r,2)} op_sel:[0,1] op_sel_hi:[1,1]"
    if which in (2, 4):
        res = RES2
        a.e("s_lshr_b32 s36, s38, 1"); spread(a, 39, 36); a.e("s_lshl_b32 s36, s37, 16"); a.e("s_add_u32 s39, s39, s36")
    if which <= 2:
        AB = 164; LO = v(8, 1)
        def aload(b, kk):
            if which == 1: return [f"buffer_load_dwordx4 {vr(AB+16*b+8*kk+4*mt,4)}, v{LO+mt+(b&2)}, s[8:11], s44 offen offset:{(b&1)*2048+kk*1024} {LF1}" for mt in range(2)]
            return [f"buffer_load_dwordx4 {vr(AB+16*b+8*kk+4*mt,4)}, v{LO+mt}, s[8:11], s44 offen {LF2}" for mt in range(2)]
        def seq(pairs, s0):
            if which == 1: return [x for b, kk in pairs for x in aload(b, kk)]
            return ([f"s_mov_b32 s44, {s0}"] if s0 is not None else []) + [x for b, kk in pairs for x in aload(b, kk) + ["s_add_u32 s44, s44, 16384"]]
        def past(l): return [x + (SC if x.startswith("buffer") and SC not in x else "") for x in l]
        PR = [(i >> 1, i & 1) for i in range(7)]
        h = Rec()
        if which == 1:
            lsrd(h, 8, oX3, XSZ); OOB = MB
            for i in range(4): (h if i < 2 else a).e(f"v_add_u32 v{LO+i}, {(i & 1) * 65536 + (i >> 1) * 4096}, v{l16}")
            h.e("s_lshl_b32 s44, s30, 17")
            for i in range(1, 4): a.e(f"s_add_u32 s{44+i}, s44, {16384*i}")
        else:
            OOB = 0x40000000; LP = v(2, 1)
            h.srd(8, 4, 8 * GSTR + LSTR, off=LB0 + oHS)
            h.e(f"s_sub_u32 s47, s55, {LB0 + oSM}"); h.e("s_lshl_b32 s46, s30, 9"); h.e("s_add_u32 s47, s47, s46")
            h.e("s_add_u32 s45, s92, 2048"); h.e("s_cmp_eq_u32 s28, 0"); h.e(f"s_cselect_b32 s45, {OOB}, s45"); h.e("s_cmp_eq_u32 s30, 0"); h.e("s_cselect_b32 s45, s45, 0")
            a.e("s_sub_u32 s46, s93, 2048"); a.e("s_cmp_eq_u32 s28, 15"); a.e(f"s_cselect_b32 s46, {OOB}, s46"); a.e("s_cmp_eq_u32 s30, 3"); a.e("s_cselect_b32 s46, s46, 0")
            for q_, sh in enumerate((1, -1, 2, -2)):
                e_ = h if q_ == 0 else a
                e_.e(f"s_add_u32 s53, s47, {(-16 * sh) & 0xffffffff:#x}"); e_.e(f"v_add_u32 v{LO+2*q_}, s53, v{a0}"); e_.e(f"v_add_u32 v{LO+2*q_+1}, 256, v{LO+2*q_}")
                R_ = LO + 2 * q_ + (0 if sh > 0 else 1)
                e_.e(f"v_add_u32 v{LP}, s{45 if sh > 0 else 46}, v{R_}")
                e_.e(f"v_cmp_gt_u32 vcc, {sh}, v{J}" if sh > 0 else f"v_cmp_le_u32 vcc, {16 + sh}, v{J}"); e_.e(f"v_cndmask_b32 v{R_}, v{R_}, v{LP}, vcc")
            for k in range(2): a.e(f"v_mov_b32 v{LP+k}, v{LO+k}")
        EARLY = str(which) in DP and str(which) in os.environ.get("EP", "2")
        try0 = past(seq(PR[:2], 0))
        for x in h.l: a_.e(x)
        if EARLY and which == 1:
            for x in try0: a_.e(x)
    else:
        a.e(f"s_mul_i32 s36, s34, {MT*2048}"); a.e(f"v_add_u32 v{a0}, s36, v{l16}")
    nwr, wpos = w_bases(a, which, w0, 35, NT, t, t2)
    if which <= 2:
        for x in a.l: a_.e(x)
    a = a_
    if which == 3 and not B0E: publish(a, ST_G2S, 4, pt, ctr=48)
    if which == 2:
        a.e(f"s_lshl_b32 s36, s37, 8"); a.e(f"s_add_u32 s36, s36, {LNSL}"); a.e(f"v_lshlrev_b32 v{t2}, 4, v{J}"); a.e(f"v_add_u32 v{t2}, s36, v{t2}")
        for mt in range(MT): a.e(f"ds_read_b64 {vr(fX+2*mt,2)}, v{t2} offset:{mt*256}")
        a.e("s_waitcnt vmcnt(4) lgkmcnt(0)")
        if EARLY:
            if int(os.environ.get("G2D", "3")): a.e("s_sleep " + os.environ.get("G2D", "3"))
            if int(os.environ.get("G2D0", "0")): a.e("s_cmp_lg_u32 s60, 0"); a.e("s_cbranch_scc1 G2_nd"); a.e("s_sleep " + os.environ["G2D0"]); a.e("G2_nd:")
            for x in try0: a.e(x)
        for mt in range(MT):
            for p in range(NT // 2):
                for e in range(4):
                    X = A_(mt, 2 * p) + 2 * e
                    unpack(a, X, X + 1, res + (mt * (NT // 2) + p) * 4 + e)
                    a.e(f"v_pk_add_f32 {vr(X,2)}, {vr(X,2)}, {SUBM(fX+2*mt)}"); round2(a, X, X + 1, tmp)
                    a.e(f"v_pk_mul_f32 {vr(X,2)}, {vr(X,2)}, {MULR(fX+2*mt)}"); round2(a, X, X + 1, tmp)
    elif which == 1:
        for i in range(0, MT * NT * 4, 2): a.e(f"v_pk_mov_b32 {vr(acc+i,2)}, 0, 0")
    RX = [180, 184, 188, 192, 196, 230, 234, 248]
    def last_res():
        b0 = Rec()
        for i in range(2):
            b0.e(f"s_add_u32 s36, s40, {i*65536}")
            for p in range(2):
                b0.e(f"buffer_load_dwordx4 {vr(RX[2*(2*i+p)],4)}, v{l16}, s[84:87], s36 offen offset:{p*1024} {SC}")
                b0.e(f"buffer_load_dwordx4 {vr(RX[2*(2*i+p)+1],4)}, v{l16}, s[88:91], s36 offen offset:{p*1024} {SC}")
        return b0.l
    def reads(F, kk):
        o = []
        for mt in range(MT): o.append(f"ds_read_b128 {vr(F+4*mt,4)}, v{aa} offset:{mt*256+kk*8192 if which == 2 else mt*2048+kk*1024}")
        for nt in range(NT):
            for h in range(2):
                r, imm = wpos(nt, kk, h)
                o.append(f"ds_read_b64_tr_b16 {vr(F+4*(MT+nt)+2*h,2)}, v{wa+r} offset:{imm}")
        NR = os.environ.get("NOREAD")
        if NR == "N": o = []
        if NR == "A": o = o[MT:]
        if NR == "W": o = o[:MT]
        if NR == "H": o = o[::2]
        if NR == "X": o = o + o[:2]
        if NR == "XX": o = o + o[:MT]
        return o
    def mix(rd, ex):
        rd = list(rd)
        for i, x in enumerate(ex): rd.insert(min(len(rd), (i + 1) * len(rd) // (len(ex) + 1)), x)
        return rd
    def mfmas(F, rd, tail=()):
        n = MT * NT; k = 0; tot = len(rd); span = max(1, n * 3 // 4); done = 0; tail = list(tail); per = -(-len(tail) // max(1, n - span))
        OR = os.environ.get("ORDER", "2")
        order = {"0": [(nt, mt) for nt in range(NT) for mt in range(MT)],
                 "1": [(nt, mt) for mt in range(MT) for nt in range(NT)],
                 "2": [(nt, mt if nt % 2 == 0 else MT - 1 - mt) for nt in range(NT) for mt in range(MT)],
                 "3": [(nt if mt % 2 == 0 else NT - 1 - nt, mt) for mt in range(MT) for nt in range(NT)]}[OR]
        for nt, mt in order:
            if True:
                cc = acc + 4 * (mt * NT + nt)
                if str(which) not in os.environ.get("NOMF", ""): a.e(f"v_mfma_f32_16x16x32_bf16 {vr(cc,4)}, {vr(F+4*(MT+nt),4)}, {vr(F+4*mt,4)}, {vr(cc,4)}")
                k += 1
                while rd and done < (tot * k + span - 1) // span: a.e(rd.pop(0)); done += 1
                if k >= span and k < n:
                    for _ in range(min(per, len(tail))): a.e(tail.pop(0))
        assert not rd and not tail
    so = SO3 if which == 3 else a0; cs = fX; lns = fX + 4 * NT; G4W = 240; EA = 244
    def ep_setup(b):
        if which in (1, 3):
            assert which == 1 or (fY <= C2R and C2R + 24 <= fY + 4 * NF)
            b.e(f"s_mul_i32 s36, s35, {NT*64}"); b.e(f"s_add_u32 s36, s36, {CSO[which]}"); b.e(f"v_lshlrev_b32 v{t}, 4, v{G}"); b.e(f"v_add_u32 v{t}, s36, v{t}")
            b.e(f"s_lshl_b32 s36, s37, 8"); b.e(f"s_add_u32 s36, s36, {LNSL + (8 if which == 1 else 0)}"); b.e(f"v_lshlrev_b32 v{t2}, 4, v{J}"); b.e(f"v_add_u32 v{t2}, s36, v{t2}")
        if which == 3:
            lsrd(b, 16, oH2, H2SZ)
            b.e(f"s_mul_i32 s39, s37, {224*1024}")
            for P in range(4):
                b.e("s_lshr_b32 s36, s38, 1"); b.e(f"s_add_u32 s36, s36, {P}"); spread(b, 44 + P, 36); b.e(f"s_add_u32 s{44+P}, s{44+P}, s39")
            w_bases(b, 4, G4W, 35, 4, tp, tp + 1)
            b.e("s_lshl_b32 s38, s33, 3"); b.e("s_lshl_b32 s36, s35, 2"); b.e("s_add_u32 s38, s38, s36")
            b.e("s_lshr_b32 s36, s38, 1"); spread(b, 39, 36); b.e("s_lshl_b32 s36, s37, 16"); b.e("s_add_u32 s39, s39, s36")
            b.e("s_lshl_b32 s40, s31, 17"); b.e("s_add_u32 s40, s40, s39")
            b.e("s_xor_b32 s41, s31, 1"); b.e("s_lshl_b32 s41, s41, 17"); b.e("s_add_u32 s41, s41, s39")
            lsrd(b, 84, oX3, XSZ); lsrd(b, 88, oX1P, XSZ)
            b.e("s_lshl_b32 s36, s37, 1"); b.e("s_add_u32 s36, s36, s35"); b.e("s_lshl_b32 s36, s36, 10"); b.e(f"v_add_u32 v{EA}, s36, v{l16}")
            b.e(f"v_mov_b32 v{EA+1}, 1"); b.e(f"v_mov_b32 v{EA+2}, {LW+64}")
            b.e(f"v_lshrrev_b32 v{so}, 1, v{G}"); b.e(f"v_lshlrev_b32 v{so}, 8, v{so}"); b.e(f"v_lshl_add_u32 v{so}, v{J}, 4, v{so}")
            b.e(f"v_and_b32 v{tmp}, 1, v{G}"); b.e(f"v_lshl_add_u32 v{so}, v{tmp}, 3, v{so}")
        if which == 1:
            lsrd(b, 16, oHS, XSZ)
            b.e(f"v_lshlrev_b32 v{so}, 11, v{G}"); b.e(f"v_lshl_add_u32 v{so}, v{J}, 4, v{so}")
            b.e("s_lshl_b32 s39, s38, 13"); b.e("s_lshl_b32 s36, s37, 8"); b.e("s_add_u32 s39, s39, s36"); b.e("s_add_u32 s40, s39, 16384")
            b.e("s_lshl_b32 s36, s29, 1"); spread(b, 41, 36); b.e("s_lshl_b32 s36, s37, 16"); b.e("s_add_u32 s41, s41, s36")
        if which == 2: lsrd(b, 16, oX1P, XSZ)
    def cost(x): return sum(8 if y.startswith("ds_") else 4 for y in x.split("\n"))
    def group(F, rd, r0, ex, fixed={}, zero=False):
        n = MT * NT; ex = [x if isinstance(x, tuple) else (x, -1) for x in ex]; done = 0
        order = [(nt, mt if nt % 2 == 0 else MT - 1 - mt) for nt in range(NT) for mt in range(MT)]
        need = sum(cost(x) for x, _ in ex) + 8 * len(rd) + sum(cost(x) for l in fixed.values() for x in l)
        cap = max(12, -(-need // (4 * n)) * 4)
        for k, (nt, mt) in enumerate(order):
            cc = A_(mt, nt)
            if str(which) not in os.environ.get("NOMF", ""): a.e(f"v_mfma_f32_16x16x32_bf16 {vr(cc,4)}, {vr(F+4*(MT+nt),4)}, {vr(F+4*mt,4)}, {0 if zero else vr(cc,4)}")
            b_ = cap - sum(cost(x) for x in fixed.get(k, [])); nv = 0
            if k >= r0 and done < len(rd): a.e(rd[done]); done += 1; b_ -= 8
            while ex and ex[0][1] < done and (cost(ex[0][0]) <= b_ or k == n - 1) and not (nv >= (1 if rd else 2) and ex[0][0].startswith("v_") and cap == 12 and k < n - 1):
                x = ex.pop(0)[0]; a.e(x); b_ -= cost(x); nv += x.startswith("v_")
            for x in fixed.get(k, []): a.e(x)
        assert done == len(rd) and not ex
    NR_ = MT + 2 * NT; BP = eval(os.environ.get("BP", "{3:3,4:2}")).get(which, 0)
    def stage(ex=(), ey=(), lim=NS-1, late=False, zero=False, pre=()):
        if str(which) in os.environ.get("GST", "") or os.environ.get("JIT"): mstamp(a, True)
        if which == 3: last = {0: NR_ - 1, 1: NR_ - 3}
        else: last = {i: MT + 2 * i + 1 for i in range(4)}
        book = ["s_add_u32 s42, s42, 16384", f"s_cmp_eq_u32 s42, {NA*16384}", "s_cselect_b32 s42, 0, s42",
                f"s_add_u32 s48, s48, {STB}", f"s_cmp_eq_u32 s48, {NW*STB}", "s_cselect_b32 s48, 0, s48", (f"v_add_u32 v{aa}, s42, v{a0}", MT - 1)]
        book += sorted([(f"v_add_u32 v{wa+i}, s48, v{w0+i}", last[i]) for i in range(nwr)], key=lambda x: x[1])
        n = MT * NT
        group(fX, reads(fY, 1), 0, book[:7] + list(ex) + book[7:], {3: [f"s_waitcnt lgkmcnt({min(15, NR_ - MT - 4 + 4)})"], 7: ["s_waitcnt lgkmcnt(8)"], n - 1: [f"s_waitcnt lgkmcnt({NR_ - MT - 2})"]}, zero)
        if late:
            b_ = Rec(); ep_setup(b_)
            group(fY, [], 0, ["s_add_u32 s43, s43, 1"] + b_.l, {min(BP, 3): ["s_waitcnt lgkmcnt(0)"]})
            if B0E: publish(a, ST_G2S, 4, pt, ctr=48)
            a.e("s_barrier")
            for x in reads(fX, 0): a.e(x)
            a.e(f"s_waitcnt lgkmcnt({NR_ - MT - 2})")
            return
        group(fY, reads(fX, 0), BP + 1, list(ey) + ["s_add_u32 s43, s43, 1", f"s_cmp_lt_u32 s43, {lim}"],
              {BP - 1: list(pre), BP: ["s_waitcnt lgkmcnt(0)", "s_barrier"], n - 1: [f"s_waitcnt lgkmcnt({NR_ - MT - 2})"]})
    w00 = c["S0"] * STB
    if which <= 2:
        def wrd(p, b): return [f"ds_read_b64_tr_b16 {vr((fX, fY)[p]+16*kk+4*nt+2*h,2)}, v{w0+nt} offset:{b*STB + wpos(nt, kk, h)[1]}" for kk in range(2) for nt in range(4) for h in range(2)]
        def dmf(b, fill, lo=0, hi=16):
            k = 0
            for kk in range(2):
                for nt in range(4):
                    for mt in ((0, 1) if nt % 2 == 0 else (1, 0)):
                        if lo <= k < hi:
                            a.e(f"v_mfma_f32_16x16x32_bf16 {vr(A_(mt,nt),4)}, {vr((fX, fY)[b&1]+16*kk+4*nt,4)}, {vr(AB+16*b+8*kk+4*mt,4)}, {vr(A_(mt,nt),4)}")
                            for x in fill[k]: a.e(x)
                        k += 1
        def spreadf(l, lo, hi):
            f = [[] for _ in range(16)]
            for i, x in enumerate(l): f[lo + i * (hi - lo) // len(l)].append(x)
            return f
        a.e("s_mov_b32 s43, 0"); ep_setup(a)
        CK = str(which) in DP; ck_ = aa
        def check(b):
            B = AB + 16 * b
            return [f"v_or3_b32 v{ck_}, v{B}, v{B+4}, v{B+8}", f"v_bitop3_b32 v{ck_}, v{ck_}, v{B+12}, 1 bitop3:0xa8", f"v_cmp_ne_u32 vcc, 0, v{ck_}"]
        L = a.lab("dm"); assert CK
        a.e("s_mov_b32 s53, 0"); a.e("s_mov_b32 s49, s44")
        if which == 2: a.e("s_barrier")
        for x in wrd(0, 0): a.e(x)
        if EARLY: a.e(f"s_branch {L}w")
        a.e(f"{L}p:")
        for x in try0: a.e(x)
        a.e(f"{L}w:")
        a.e("s_waitcnt vmcnt(0)")
        for x in check(0): a.e(x)
        a.e(f"s_cbranch_vccz {L}q"); a.e(f"s_sleep {os.environ.get('GNAP', '2')}")
        a.e("s_add_u32 s53, s53, 1"); a.e("s_cmp_lt_u32 s53, s61"); a.e(f"s_cbranch_scc1 {L}p"); a.e("s_mov_b32 s61, 0")
        a.e(f"{L}q:")
        mstamp(a)
        for x in seq(PR[2:], None): a.e(x)
        a.e("s_waitcnt lgkmcnt(0)")
        a.e(f"{L}:")
        for b in range(4):
            rd = wrd(1 - (b & 1), (b + 1) & 3); ex = [[] for _ in range(16)]
            ex[0], ex[1] = [[x] for x in aload((b - 1) & 3, 1)]
            if b == 0 and which == 1:
                for i, x in enumerate(["s_mov_b32 s44, s45", "s_mov_b32 s45, s46", "s_mov_b32 s46, s47", f"s_mov_b32 s47, {OOB}"]): ex[2 + i].append(x)
            if which == 2:
                ex[2].append("s_add_u32 s44, s44, 16384"); ex[10].append("s_add_u32 s44, s44, 16384")
                mv = [f"v_mov_b32 v{LO+k}, v{LO+k+2}" for k in range(6)] + [f"v_mov_b32 v{LO+6+k}, {OOB}" for k in range(2)]
                if b < 2:
                    for i, x in enumerate(mv[4*b:4*b+4]): ex[3 + i].append(x)
                if b == 3:
                    for k in range(2): ex[3 + k].append(f"v_mov_b32 v{LP+k}, v{LO+k}")
            if b == 2:
                ex[4].append("s_add_u32 s43, s43, 1"); ex[14].append("s_cmp_eq_u32 s43, 4")
                for nt, g_ in enumerate((11, 12, 13, 15)): ex[g_].append(f"v_add_u32 v{w0+nt}, {4*STB}, v{w0+nt}")
            if b == 3 and which == 1: ex[2].append("s_mov_b32 s49, s44")
            ex[7].append("s_waitcnt lgkmcnt(8)")
            ex[8], ex[9] = [[x] for x in aload(b, 0)]
            ex[10].append("s_waitcnt vmcnt(10)")
            if CK:
                for i, x in enumerate(check((b + 1) & 3)): ex[11 + i].append(x)
            fill = [rd[i:i+1] + ex[i] for i in range(16)]
            fill[14] = rd[14:16] + ex[14]; fill[15] = ex[15] + ["s_waitcnt lgkmcnt(8)"]
            if CK: fill[15] += [f"s_cbranch_vccnz {L}f{b}", f"{L}g{b}:"]
            if b == 2: fill[15].append(f"s_cbranch_scc1 {L}x")
            if b == 3: fill[15].append(f"s_branch {L}")
            dmf(b, fill)
        for b in range(4 if CK else 0):
            nb = (b + 1) & 3
            a.e(f"{L}f{b}:"); a.e("s_cselect_b32 s50, 1, 0")
            a.e(f"{L}h{b}:"); a.e(f"s_sleep {os.environ.get('GNAP', '2')}")
            if which == 2: a.e(f"s_sub_u32 s44, s44, {7*16384}")
            for j in range(4):
                bb = (nb + j) & 3
                for kk in range(2 if j < 3 else 1):
                    for x in past(seq([(bb, kk)], None)):
                        if bb >= nb and which == 1: x = x.replace("s44", "s49")
                        if bb >= nb and which == 2: x = x.replace(f", v{LO}, ", f", v{LP}, ").replace(f", v{LO+1}, ", f", v{LP+1}, ")
                        a.e(x)
            a.e("s_waitcnt vmcnt(10)")
            for x in check(nb): a.e(x)
            a.e("s_add_u32 s53, s53, 1"); a.e("s_cmp_ge_u32 s53, s61"); a.e("s_cselect_b32 s61, 0, s61"); a.e(f"s_cbranch_scc1 {L}k{b}")
            a.e(f"s_cbranch_vccnz {L}h{b}")
            a.e(f"{L}k{b}:"); a.e("s_cmp_eq_u32 s50, 1"); a.e(f"s_branch {L}g{b}")
        a.e(f"{L}x:")
    else:
        if which == 3:
            a.e(f"v_mov_b32 v{aa}, v{a0}")
            a.e("s_mov_b32 s42, 0"); a.e("s_mov_b32 s43, 0"); a.e(f"s_mov_b32 s48, {w00}")
            for i in range(nwr): a.e(f"v_add_u32 v{wa+i}, {w00}, v{w0+i}")
        if not (which == 3 and B0E): a.e("s_waitcnt lgkmcnt(0)"); a.e("s_barrier")
        mstamp(a)
        for x in reads(fX, 0): a.e(x)
        a.e(f"s_waitcnt lgkmcnt({NR_ - MT - 2})")
    if which == 4:
        def st2(j): return [(x, 0) for x in [f"s_add_u32 s36, s44, {j*224*1024}", f"buffer_store_dwordx4 {vr(C2R+4*j,4)}, v{l16}, s[16:19], s36 offen {SC}",
                            f"s_add_u32 s36, s45, {j*224*1024}", f"buffer_store_dwordx2 {vr(C2R+16+2*j,2)}, v{SO3}, s[16:19], s36 offen {SC}"]]
        assert PBB in (1, 2) and PC0 >= 2
        for st_ in range(2): stage(st2(2 * st_), st2(2 * st_ + 1), zero=st_ == 0, pre=[f"s_waitcnt vmcnt({4 * st_ + 2})"] if PBB == st_ + 1 else [])
        CW = 0
        if PC0 > 3:
            L0 = a.lab("mm"); a.e(f"{L0}:"); stage(lim=PC0); a.e(f"s_cbranch_scc1 {L0}")
        elif PC0 == 3: stage()
    if which == 3 and os.environ.get("PEEL3", "1") == "1": stage(late=True, zero=True)
    if which > 2:
        L = a.lab("mm"); a.e(f"{L}:")
        stage(pre=[f"s_waitcnt vmcnt({CW})"] if which == 4 else [])
        a.e(f"s_cbranch_scc1 {L}")
    b0 = Rec()
    if which == 4:
        a.e("s_cmp_eq_u32 s60, 1"); a.e("s_cbranch_scc1 G4_last")
        if not RPC: r_pre(b0)
    if which == 1:
        for mt in range(MT):
            for p in range(NT // 2): b0.e(f"buffer_load_dwordx4 {vr(RES2+(mt*(NT//2)+p)*4,4)}, v{LO+mt}, s[8:11], s41 offen offset:{p*1024} {SC}")
    early = True
    XW = {3: [f"s_waitcnt lgkmcnt({min(15, NR_ - MT)})"], 7: ["s_waitcnt lgkmcnt(8)"]}
    if which <= 2: dmf(3, spreadf(b0.l, 0, 8), 0, 8)
    else: group(fX, reads(fY, 1), 0, b0.l, XW)
    a.e("s_waitcnt lgkmcnt(0)")
    if which not in DL: a.e("s_barrier")
    b = Rec()
    if which in (1, 3):
        for nt in range(NT): b.e(f"ds_read_b128 {vr(cs+4*nt,4)}, v{t} offset:{nt*64}")
        if which == 3:
            for mt in range(MT): b.e(f"ds_read_b128 {vr(lns+4*mt,4)}, v{t2} offset:{mt*256}")
            for i in range(4): b.e(f"v_mov_b32 v{w0+i}, v{G4W+i}"); b.e(f"v_add_u32 v{wa+i}, {CFG[4]['S0']*CFG[4]['STB']}, v{G4W+i}")
            b.e("s_mov_b32 s42, 0"); b.e("s_mov_b32 s43, 0"); b.e(f"s_mov_b32 s48, {CFG[4]['S0']*CFG[4]['STB']}"); b.e(f"v_mov_b32 v{aa}, v{a0}")
            assert fY + 16 == RFO; r_addr(b, False)
        else:
            for mt in range(MT): b.e(f"ds_read_b64 {vr(lns+2*mt,2)}, v{t2} offset:{mt*256}")
    if which == 2: lsrd(b, 44, oST2, 24576)
    if which == 4:
        b.e(f"s_mul_i32 s36, s31, {oP1-oP0}"); b.e(f"s_add_u32 s36, s36, {oP0}")
        b.e("s_add_u32 s16, s62, s36"); b.e("s_addc_u32 s17, s63, 0"); b.e(f"s_mov_b32 s18, {XSZ}"); b.e("s_mov_b32 s19, 0x20000")
    if which <= 2: dmf(3, spreadf(b.l, 8, 15), 8, 16)
    else: group(fY, [], 0, b.l)
    mstamp(a)
    if which in (1, 3):
        AB = v(2 * MT, 2) if which == 1 else fY + 4
        def consts():
            for mt in range(MT if which == 1 else 0):
                r = lns + 2 * mt + 1
                a.e(f"v_mul_f32 v{AB+2*mt}, {f32(GC1)}, v{r}"); a.e(f"v_mul_f32 v{AB+2*mt+1}, v{r}, v{r}")
                a.e(f"v_mul_f32 v{AB+2*mt+1}, v{AB+2*mt+1}, v{AB+2*mt}"); a.e(f"v_mul_f32 v{AB+2*mt+1}, {f32(0.044715)}, v{AB+2*mt+1}")
                a.e(f"v_rcp_f32 v{r}, v{r}")
        def act(mt, nt):
            A = A_(mt, nt); P_ = [(A, tp), (A + 2, tp + 2)]; L_ = vr(lns + 2 * mt, 2); K_ = vr(AB + 2 * mt, 2)
            if which == 3: L_ = vr(lns + 4 * mt, 2); K_ = vr(lns + 4 * mt + 2, 2)
            for h in range(2):
                a.e(f"v_pk_fma_f32 {vr(A+2*h,2)}, {L_}, {vr(cs+4*nt+2*h,2)}, {vr(A+2*h,2)} op_sel_hi:[0,1,1] neg_lo:[1,0,0] neg_hi:[1,0,0]")
            for x, u in P_: a.e(f"v_pk_mul_f32 {vr(u,2)}, {vr(x,2)}, {vr(x,2)}")
            for x, u in P_: a.e(f"v_pk_fma_f32 {vr(u,2)}, {vr(u,2)}, {K_}, {K_} op_sel:[0,1,0] op_sel_hi:[1,1,0]")
            for x, u in P_: a.e(f"v_pk_mul_f32 {vr(u,2)}, {vr(u,2)}, {vr(x,2)}")
            for i in range(4): a.e(f"v_exp_f32 v{tp+i}, v{tp+i}")
            for x, u in P_: a.e(f"v_pk_fma_f32 {vr(u,2)}, {vr(u,2)}, {L_}, {L_} op_sel:[0,1,1] op_sel_hi:[1,1,1]")
            for i in range(4): a.e(f"v_rcp_f32 v{tp+i}, v{tp+i}")
            for x, u in P_: a.e(f"v_pk_mul_f32 {vr(x,2)}, {vr(x,2)}, {vr(u,2)}")
        def egroup(par, mt, nts, dst=None):
            for nt in nts: act(mt, nt)
            T = par * NT + nts[0]; P = (T >> 1) - ((par * NT) >> 1); B = A_(mt, nts[0]); D = B if dst is None else dst
            for k in range(2 * len(nts)): a.e(f"v_cvt_pk_bf16_f32 v{D+k}, v{B+2*k}, v{B+2*k+1}")
            if which == 3 and (mt < 3 or "3" in DP) and "1" in DP: mark(a, D, 1)
            if which == 1: mark(a, D, 0)
            if which == 3: return [f"s_add_u32 s36, s{44+P}, {mt*224*1024}", f"buffer_store_dwordx4 {vr(B,4)}, v{l16}, s[16:19], s36 offen {SC}"]
            return [f"buffer_store_dwordx4 {vr(B,4)}, v{so}, s[16:19], s{39+P} offen offset:{mt*256} {SC}"]
        def body(par):
            if which == 1: gs = [(0, 1), (2, 3)]
            else: gs = [(0, 1), (2, 3), (4, 5), (6,)] if par == 0 else [(1, 2), (3, 4), (5, 6), (0,)]
            k = 0; pend = []; sent = 0
            for gi_, g_ in enumerate(gs):
                for mt in range(MT):
                    if which == 3 and k == C0PUB:
                        a.e(f"s_waitcnt vmcnt({sent - 4})"); a.e("s_mov_b64 exec, 1"); a.e(f"ds_add_u32 v{EA+2}, v{EA+1}"); a.e("s_mov_b64 exec, -1"); mstamp(a)
                    if which == 3 and k == RK:
                        b_ = Rec(); r_pre(b_); l_ = [x for x in b_.l if x.startswith(("buffer", "s_mov_b32 s78"))]
                        a.e("s_cmp_eq_u32 s60, 1"); a.e(f"s_cbranch_scc1 G4_p1{par}")
                        for x in l_: a.e(x)
                        a.e(f"s_branch G4_p2{par}"); a.e(f"G4_p1{par}:")
                        for x in last_res(): a.e(x)
                        a.e(f"G4_p2{par}:")
                        if 4 <= k < C0PUB: sent += 8
                    st_ = egroup(par, mt, g_, None if gi_ < 2 else C2R + 4 * mt if gi_ == 2 else C2R + 16 + 2 * mt); k += 1
                    if which == 3 and gi_ < 3:
                        a.e(f"ds_write_b128 v{EA}, {vr(A_(mt, g_[0]) if gi_ < 2 else C2R + 4 * mt, 4)} offset:{gi_*16384 + mt*2048}")
                    if gi_ < 2: pend.append(st_)
                    n = len(pend) if (which == 1 or k <= 4 or k == 16) else 0 if k <= STQ else min(1, len(pend))
                    for _ in range(n):
                        for x in pend.pop(0): a.e(x)
                        sent += 1
            if which == 3:
                a.e("s_waitcnt lgkmcnt(0)")
                if par == 0: a.e("s_mov_b32 s44, s46"); a.e("s_mov_b32 s45, s47")
                else: a.e("s_add_u32 s45, s44, 512"); a.e("s_mov_b32 s44, s47")
        a.e("s_waitcnt lgkmcnt(0)")
        consts()
        if which == 3:
            a.e("s_cmp_eq_u32 s35, 1"); a.e(f"s_cbranch_scc1 {nm}_e1")
            body(0); a.e(f"s_branch {nm}_e2"); a.e(f"{nm}_e1:"); body(1); a.e(f"{nm}_e2:")
        else: body(0)
    if which == 2:
        xf = v(2, 2); S = v(2 * MT, 2); pp = v(2, 2); mn = v(2, 2)
        for mt in range(MT):
            a.e(f"s_add_u32 s36, s39, {mt*65536}")
            for p in range(NT // 2):
                R = res + (mt * (NT // 2) + p) * 4
                for e in range(4):
                    X = A_(mt, 2 * p) + 2 * e
                    a.e(f"v_cvt_pk_bf16_f32 v{R+e}, v{X}, v{X+1}")
                if DP: mark(a, R, 0)
                a.e(f"buffer_store_dwordx4 {vr(R,4)}, v{l16}, s[16:19], s36 offen offset:{p*1024} {SC}")
        if which in DL: a.e("s_barrier")
        if OWN3:
            a.e("s_lshl_b32 s36, s37, 11"); a.e(f"v_add_u32 v{t2}, s36, v{l16}")
            for i in range(4): a.e(f"ds_write_b128 v{t2}, {vr(res+4*i,4)} offset:{1024*i}")
        for i in range(MT * NT * 2): unpack(a, acc + 2 * i, acc + 2 * i + 1, res + i)
        mstamp(a)
        publish(a, which, 4, pt)
        if B0E: a.e("s_waitcnt lgkmcnt(0)"); a.e("s_barrier")
        mstamp(a)
        for mt in range(MT):
            B = A_(mt, 0); Sm = S + 2 * mt
            a.e(f"v_pk_add_f32 {vr(pp,2)}, {vr(B,2)}, {vr(B+2,2)}"); a.e(f"v_pk_mul_f32 {vr(xf,2)}, {vr(B,2)}, {vr(B,2)}")
            for i in range(1, NT * 2):
                if i > 1: a.e(f"v_pk_add_f32 {vr(pp,2)}, {vr(pp,2)}, {vr(B+2*i,2)}")
                a.e(f"v_pk_fma_f32 {vr(xf,2)}, {vr(B+2*i,2)}, {vr(B+2*i,2)}, {vr(xf,2)}")
            a.e(f"v_add_f32 v{Sm}, v{pp}, v{pp+1}"); a.e(f"v_add_f32 v{Sm+1}, v{xf}, v{xf+1}")
            for op in ("v_permlane16_swap_b32", "v_permlane32_swap_b32"):
                for k in range(2): a.e(f"v_mov_b32 v{pp+k}, v{Sm+k}")
                for k in range(2): a.e(f"{op} v{Sm+k}, v{pp+k}")
                a.e(f"v_pk_add_f32 {vr(Sm,2)}, {vr(Sm,2)}, {vr(pp,2)}")
        a.e(f"v_cmp_eq_u32 vcc, 0, v{G}"); a.e(f"v_cndmask_b32 v{S}, v{S+2}, v{S}, vcc"); a.e(f"v_cndmask_b32 v{S+1}, v{S+3}, v{S+1}, vcc")
        spread(a, 40, 29); a.e("s_lshl_b32 s36, s34, 8"); a.e("s_add_u32 s40, s40, s36")
        a.e(f"v_lshlrev_b32 v{t2}, 3, v{lane}")
        a.e("s_bfm_b64 exec, 32, 0")
        a.e(f"buffer_store_dwordx2 {vr(S,2)}, v{t2}, s[44:47], s40 offen {SC}")
        a.e("s_mov_b64 exec, -1")
    if which == 4:
        for mt in range(MT):
            a.e(f"s_add_u32 s36, s39, {mt*65536}")
            for p in range(NT // 2):
                B = A_(mt, 2 * p)
                for e in range(4): a.e(f"v_cvt_pk_bf16_f32 v{B+e}, v{B+2*e}, v{B+2*e+1}")
                if "r" in DP: mark(a, B, 1)
                a.e(f"buffer_store_dwordx4 {vr(B,4)}, v{l16}, s[16:19], s36 offen offset:{p*1024} {SC}")
    if which != 2:
        if which in DL: a.e("s_barrier")
        mstamp(a)
        if which == 4 and "r" not in DP: publish(a, which, 4, pt)
        mstamp(a)
    if which == 4:
        a.e("s_branch NEXT")
        a.e("G4_last:")
        PX = 208; oa = 224; xf = 226
        group(fX, reads(fY, 1), 0, [(f"s_load_dwordx2 s[6:7], s[0:1], {D_OUT}", 9)], XW)
        a.e("s_waitcnt lgkmcnt(0)")
        b = Rec()
        lsrd(b, 16, oX1P if "f" in DP else MB, XSZ)
        b.srd(20, 6, 4 * MB)
        if "f" not in DP:
            b.e("s_lshl_b32 s44, s29, 2"); b.e("s_add_u32 s44, s44, s30"); b.e("s_lshl_b32 s44, s44, 7"); b.e("s_xor_b32 s45, s44, 4096")
            b.e("s_add_u32 s44, s44, s55"); b.e(f"s_add_u32 s44, s44, {oFP}"); b.e("s_add_u32 s45, s45, s55"); b.e(f"s_add_u32 s45, s45, {oFP}")
            b.e(f"v_mov_b32 v{pt+1}, s45"); b.e(f"v_mov_b32 v{pt+2}, s52"); b.e(f"v_mov_b32 v{pt+3}, 0")
        else: b.e("s_add_u32 s44, s40, 65536")
        b.e("s_lshl_b32 s46, s28, 3"); b.e("s_add_u32 s46, s46, s37"); b.e("s_lshl_b32 s47, s31, 1"); b.e("s_add_u32 s46, s46, s47"); b.e("s_lshl_b32 s46, s46, 15")
        b.e("s_lshl_b32 s47, s38, 5"); b.e("s_add_u32 s46, s46, s47"); b.e(f"s_add_u32 s47, s46, {16*2048}")
        b.e(f"v_and_b32 v{oa+1}, 1, v{G}"); b.e(f"v_lshlrev_b32 v{oa}, 11, v{J}"); b.e(f"v_lshl_add_u32 v{oa}, v{oa+1}, 5, v{oa}")
        b.e(f"v_lshrrev_b32 v{oa+1}, 1, v{G}"); b.e(f"v_lshl_add_u32 v{oa}, v{oa+1}, 4, v{oa}")
        FULLN = os.environ.get("FULLN", "1") == "1"
        if FULLN:
            b.e(f"v_lshrrev_b32 v{oa+1}, 3, v{J}"); b.e(f"v_mul_u32_u24 v{oa+1}, {8*2048 - 64}, v{oa+1}"); b.e(f"v_sub_u32 v{oa}, v{oa}, v{oa+1}")
            b.e(f"v_add_u32 v{oa+1}, {8*2048}, v{oa}")
        group(fY, [], 0, b.l)
        mstamp(a)
        def send(m0_):
            for i in range(2):
                a.e(f"s_add_u32 s36, s41, {i*65536}")
                for p in range(2):
                    B = A_(m0_ + i, 2 * p)
                    for e in range(4): a.e(f"v_cvt_pk_bf16_f32 v{B+e}, v{B+2*e}, v{B+2*e+1}")
                    if "f" in DP: mark(a, B, 1)
                    a.e(f"buffer_store_dwordx4 {vr(B,4)}, v{l16}, s[16:19], s36 offen offset:{p*1024} {SC}")
        a.e("s_cmp_eq_u32 s31, 0"); a.e("s_cbranch_scc1 G4_k0")
        send(0)
        for i in range(0, 32, 2): a.e(f"v_pk_mov_b32 {vr(acc+i,2)}, {vr(acc+32+i,2)}, {vr(acc+32+i,2)} op_sel:[0,1]")
        a.e("s_branch G4_k1")
        a.e("G4_k0:")
        send(2)
        a.e("G4_k1:")
        a.e("s_mov_b32 s78, 0x3f80"); a.e("s_mov_b32 s79, 0x3f800000")
        def addp(k, R):
            B = A_(k >> 1, 2 * (k & 1))
            if DOT:
                for e in range(8): a.e(f"v_dot2_f32_bf16 v{B+e}, v{R+e//2}, s{78+(e&1)}, v{B+e}")
                return
            for e in range(4):
                unpack(a, xf + 2 * (e & 1), xf + 1 + 2 * (e & 1), R + e)
                a.e(f"v_pk_add_f32 {vr(B+2*e,2)}, {vr(B+2*e,2)}, {vr(xf+2*(e&1),2)}")
        for k in range(4): addp(k, RX[2 * k])
        if "f" not in DP:
            a.e("s_waitcnt vmcnt(0)")
            a.e("s_mov_b64 exec, 1"); a.e(f"buffer_store_dword v{pt+2}, v{pt+3}, s[56:59], s44 offen {SC}"); a.e("s_mov_b64 exec, -1")
        mstamp(a)
        for k in range(4): addp(k, RX[2 * k + 1])
        if "f" in DP:
            data_poll(a, [f"buffer_load_dwordx4 {vr(PX+4*(2*i+p),4)}, v{l16}, s[16:19], s{(40, 44)[i]} offen offset:{p*1024} {SC}" for i in range(2) for p in range(2)],
                      [PX + 4 * k for k in range(4)], t, int(os.environ.get("FNAP", "2")), 0, int(os.environ.get("FCAN", "0")))
            mstamp(a)
        else:
            poll_core(a, pt, [pt + 1], 1, nap=2)
            mstamp(a)
            for i in range(2):
                a.e(f"s_add_u32 s36, s40, {i*65536}")
                for p in range(2): a.e(f"buffer_load_dwordx4 {vr(PX+4*(2*i+p),4)}, v{l16}, s[16:19], s36 offen offset:{p*1024} {SC}")
        for k in range(4):
            if "f" not in DP: a.e(f"s_waitcnt vmcnt({3 - (k & 1) if FULLN else 3})")
            addp(k, PX + 4 * k)
            B = A_(k >> 1, 2 * (k & 1))
            if os.environ.get("EPS"):
                for e in range(8): a.e(f"v_mul_f32 v{B+e}, {f32(1 + float(os.environ['EPS']) * (1 if e & 1 else -1))}, v{B+e}")
            for e in range(4): a.e(f"v_cvt_pk_bf16_f32 v{B+e}, v{B+2*e}, v{B+2*e+1}")
            for e in range(2): a.e(f"v_permlane16_swap_b32 v{B+e}, v{B+2+e}")
            if not FULLN: a.e(f"buffer_store_dwordx4 {vr(B,4)}, v{oa}, s[20:23], s{46+(k>>1)} offen offset:{64*(k&1)} {os.environ.get('OS', '')}")
            elif k & 1:
                X, Y, T = B - 8, B, B + 4
                for e in range(4): a.e(f"v_mov_b32 v{T+e}, v{X+e}")
                for e in range(4): a.e(f"v_mov_b32_dpp v{X+e}, v{Y+e} row_ror:8 row_mask:0xf bank_mask:0xc")
                for e in range(4): a.e(f"v_mov_b32_dpp v{Y+e}, v{T+e} row_ror:8 row_mask:0xf bank_mask:0x3")
                a.e(f"buffer_store_dwordx4 {vr(X,4)}, v{oa}, s[20:23], s{46+(k>>1)} offen {SC}")
                a.e(f"buffer_store_dwordx4 {vr(Y,4)}, v{oa+1}, s[20:23], s{46+(k>>1)} offen {SC}")
        a.e("s_branch K_fin")
    assert v.hi <= {1: RES2, 2: RES2, 3: RYY, 4: 176}[which], v.hi
    return v.hi

def k_mega(a):
    nm = KNAME; a.begin_kernel(nm)
    a.e("s_cmp_ge_u32 s2, 256"); a.e("s_cbranch_scc1 K_end")
    a.e(f"s_load_dwordx8 s[8:15], s[0:1], {A_K}"); a.e(f"s_load_dwordx2 s[6:7], s[0:1], {A_Q}"); a.e(f"s_load_dwordx8 s[68:75], s[0:1], {B_W1}")
    a.e(f"s_load_dwordx2 s[4:5], s[0:1], {D_WS}"); a.e(f"s_load_dwordx2 s[84:85], s[0:1], {D_DBG}"); a.e("s_memrealtime s[46:47]")
    a.e(f"s_load_dwordx2 s[96:97], s[0:1], {A_SSMD}")
    a.e("v_lshrrev_b32 v1, 6, v0"); a.e("v_readfirstlane_b32 s30, v1")
    if CODEPF:
        a.e("s_getpc_b64 s[48:49]"); a.e("K_pc:")
        a.e("s_lshr_b32 s36, s2, 3"); a.e("s_lshl_b32 s36, s36, 11")
        a.e("v_lshlrev_b32 v4, 2, v0"); a.e("v_add_u32 v4, s36, v4")
        a.e("v_cmp_gt_u32 vcc, K_end-K_pc-8, v4"); a.e("s_and_saveexec_b64 s[36:37], vcc"); a.e("s_cbranch_execz K_3")
        a.e("v_mov_b32 v5, s49"); a.e("v_add_co_u32 v4, vcc, s48, v4"); a.e("v_addc_co_u32 v5, vcc, 0, v5, vcc")
        a.e("global_load_dword v250, v[4:5], off")
        a.e("K_3:"); a.e("s_mov_b64 exec, -1")
    for _ in range(int(os.environ.get("SDELAY", "0"))): a.e("s_sleep 127")
    front_loads(a)
    a.e("v_and_b32 v1, 63, v0"); a.e("v_lshlrev_b32 v2, 4, v1"); a.e("v_lshlrev_b32 v3, 2, v1")
    a.e("s_and_b32 s32, s2, 7"); a.e("s_lshr_b32 s33, s2, 3")
    a.e("s_and_b32 s28, s32, 2"); a.e("s_lshr_b32 s34, s32, 2"); a.e("s_or_b32 s28, s28, s34")
    a.e("s_lshl_b32 s28, s28, 2"); a.e("s_and_b32 s34, s33, 3"); a.e("s_add_u32 s28, s28, s34")
    a.e("s_and_b32 s31, s32, 1"); a.e("s_lshr_b32 s33, s33, 2")
    a.e("s_lshl_b32 s29, s31, 3"); a.e("s_add_u32 s29, s29, s33")
    if MAP == 8:
        a.e("s_lshr_b32 s33, s2, 3")
        a.e("s_and_b32 s28, s33, 4"); a.e("s_lshl_b32 s28, s28, 1"); a.e("s_and_b32 s34, s32, 4"); a.e("s_or_b32 s28, s28, s34"); a.e("s_and_b32 s34, s33, 3"); a.e("s_or_b32 s28, s28, s34")
        a.e("s_and_b32 s29, s32, 3"); a.e("s_lshl_b32 s29, s29, 2"); a.e("s_lshr_b32 s33, s33, 3"); a.e("s_or_b32 s29, s29, s33")
        a.e("s_lshr_b32 s31, s29, 3"); a.e("s_and_b32 s33, s29, 7")
    if MAP == 2:
        a.e("s_lshr_b32 s33, s2, 3")
        a.e("s_and_b32 s28, s32, 2"); a.e("s_lshl_b32 s28, s28, 2"); a.e("s_and_b32 s34, s32, 4"); a.e("s_or_b32 s28, s28, s34")
        a.e("s_and_b32 s34, s32, 1"); a.e("s_lshl_b32 s34, s34, 1"); a.e("s_or_b32 s28, s28, s34"); a.e("s_and_b32 s34, s33, 1"); a.e("s_or_b32 s28, s28, s34")
        a.e("s_lshr_b32 s29, s33, 1"); a.e("s_lshr_b32 s31, s29, 3"); a.e("s_and_b32 s33, s29, 7")
    a.e({4: "s_lshl_b32 s67, s33, 1", 8: "s_lshl_b32 s67, s33, 2", 2: "s_mov_b32 s67, s29"}[MAP]); a.e(f"s_and_b32 s67, s67, {int(os.environ.get('RMASK', '0'))}")
    a.e(f"s_xor_b32 s99, s29, {os.environ.get('G1X', '1')}")
    a.e("s_mov_b32 s60, 0"); a.e("s_mov_b32 s61, 40000"); a.e("s_mov_b32 s52, 0")
    a.e("s_mov_b32 s55, 0"); a.e("s_mov_b32 s92, 0"); a.e("s_mov_b32 s93, 0"); a.e("s_mov_b32 s94, 0")
    a.srd(56, 4, HSB)
    if os.environ.get("FIXT"): a.e("s_mov_b32 s101, s46")
    r_addr(a)
    a.e(f"s_add_u32 s62, s4, {LB0}"); a.e("s_addc_u32 s63, s5, 0")
    if STAMP:
        a.e("s_mov_b32 s66, 1"); a.e("v_mov_b32 v255, -1"); a.e("s_mov_b32 s95, 0"); a.e("v_writelane_b32 v255, s46, 0")
    mstamp(a)
    if os.environ.get("WBENCH"):
        a.e("s_waitcnt vmcnt(0)"); a.e("s_barrier")
        a.e("s_cmp_lt_u32 s30, 6"); a.e("s_cbranch_scc1 WB_end")
        for w in (1, 2, 3, 4):
            mstamp(a); w_setup(a, w); a.e("s_waitcnt vmcnt(0)"); mstamp(a); a.e("s_sleep 40")
        a.e("WB_end:"); a.e("s_branch K_dump")
    front_a(a); mstamp(a)
    for r in range(238, 248): a.e(f"v_mov_b32 v{r}, 0")
    a.e("s_cmp_ge_u32 s30, 4"); a.e("s_cbranch_scc1 FR_b")
    front_conv(a); hi = 0
    mstamp(a)
    front_arrive(a, True)
    a.e("s_branch FR_end")
    a.e("FR_b:")
    front_b(a)
    a.e("FR_end:")
    mstamp(a)
    a.e("LAYER:")
    if os.environ.get("XDELAY"): a.e(f"s_sleep {os.environ['XDELAY']}")
    hi = max(hi, r_stage(a, False))
    mstamp(a)
    a.e("s_cmp_ge_u32 s30, 4"); a.e("s_cbranch_scc1 LOADERS")
    if CPRIO: a.e(f"s_setprio {CPRIO}")
    for w in (1, 2, 3, 4):
        a.lines.append(f"; ---- G{w}: compute waves (set-up, K loop, epilogue, publish)")
        hi = max(hi, g_compute(a, w))
    a.e("LOADERS:")
    if SB[2]:
        a.e("s_cmp_lg_u32 s60, 0"); a.e("s_cbranch_scc1 LD_0"); sb(a, SB[2]); a.e("LD_0:")
    if PRIO: a.e(f"s_setprio {PRIO}")
    a.e("s_cmp_ge_u32 s30, 6"); a.e("s_cbranch_scc1 WLOAD")
    for w in (1, 2, 3, 4): a_loader(a, w)
    a.e("s_branch NEXT")
    a.e("WLOAD:")
    a.e("s_cmp_eq_u32 s60, 1"); a.e("s_cbranch_scc1 WL_1")
    w_setup(a, 1, pre=False); w1_slots(a, range(9 - W1G), pace=12); mstamp(a)
    a.e("s_branch WL_2")
    a.e("WL_1:")
    w_setup(a, 1, pre=False); w1_slots(a, range(3 - W1L), pace=12)
    a.e("WL_2:")
    for w in (1, 2, 3, 4):
        w_loader(a, w)
        if w == 2:
            c = CFG[3]; w_setup(a, 3, pre=False); a.e(f"s_mov_b32 s42, {(c['S0'] + 2) % c['NW'] * c['STB']}"); a.e("s_mov_b32 s44, 2")
        if w == 3: w_setup(a, 4)
    a.e("NEXT:")
    a.e("s_setprio 0")
    a.e("s_add_u32 s60, s60, 1"); a.e(f"s_add_u32 s55, s55, {LSTR}")
    a.e(f"s_add_u32 s62, s62, {LSTR}"); a.e("s_addc_u32 s63, s63, 0")
    a.e("s_branch LAYER")
    a.e("K_fin:")
    if os.environ.get("FIXT"):
        a.e("FX_l:"); a.e("s_sleep 4"); a.e("s_memrealtime s[64:65]"); a.e("s_waitcnt lgkmcnt(0)"); a.e("s_sub_u32 s64, s64, s101")
        if os.environ.get("FIX0"): a.e("s_add_u32 s64, s64, s101"); a.e("s_lshl_b32 s64, s64, 6"); a.e("s_sub_u32 s64, s64, s52"); a.e("s_lshr_b32 s64, s64, 6")
        a.e(f"s_cmp_lt_u32 s64, {os.environ['FIXT']}"); a.e("s_cbranch_scc1 FX_l")
    if STAMP:
        a.e("K_dump:")
        a.e("s_waitcnt vmcnt(0)")
        mstamp(a)
        a.srd(96, 4, 16 * MB, off=200 * MB)
        a.e("s_lshl_b32 s66, s2, 3"); a.e("s_add_u32 s66, s66, s30"); a.e("s_lshl_b32 s66, s66, 8")
        a.e("v_writelane_b32 v255, s95, 63")
        a.e("buffer_store_dword v255, v3, s[96:99], s66 offen")
        if os.environ.get("DBGOUT"):
            a.e("s_cmp_lg_u32 s66, 0"); a.e("s_cbranch_scc1 K_end")
            a.e(f"s_load_dwordx2 s[96:97], s[0:1], {D_DBG}"); a.e("s_mov_b32 s98, 64"); a.e("s_waitcnt lgkmcnt(0)")
            a.e("v_readlane_b32 s64, v255, 0"); a.e("v_mov_b32 v10, 0")
            for i, j in enumerate(eval(os.environ["DBGOUT"])):
                a.e(f"v_readlane_b32 s65, v255, {j}"); a.e("s_sub_u32 s65, s65, s64"); a.e("v_mov_b32 v11, s65")
                a.e(f"buffer_store_dword v11, v10, s[96:99], 0 offen offset:{8+4*i}")
    a.e("s_endpgm")
    emit_subs(a)
    a.e("K_end:")
    assert hi <= PV
    a.end_kernel(nm, 256)
    if TAB: tab_data(a)
    a.launches.append(f"; @launch grid=(256,1,1) block=(512,1,1) lds={LDS_TOTAL}")

HEADER = open("interleave_layers__ssm_conv_h3__mixer_s_mlp__prompt.s.ref").read().split("; Override launch")[0]
DOC = """; One persistent kernel, 256 workgroups x 8 waves (one per CU), generated by dev/gen28.py.
"""
def main(out):
    a = Asm()
    k_mega(a)
    DS = os.environ.get("DS")
    if DS:
        o = []
        for l in a.lines:
            o.append(l)
            if "buffer_store_dwordx" in l and "sc1" in l and any(k in l for k in DS.split(",")): o.append(l.replace(" sc1", ""))
        a.lines = o
    notes = {
        "K_pc:": "each workgroup reads 2 KB of this kernel's code so that later instruction fetches are served on chip",
        "KV_t0:": "k / v / tap loads of the u^T tile (64 times x 128 channels); workgroup 0 has posted the launch tag (a clock value) in d_debug",
        "HB_2:": "u^T tile out, arrival counters initialised to the tag, shifted filter copies into LDS, LayerNorm(q)",
        "CV_w:": "long causal convolution as Toeplitz MFMAs, one channel per wave",
        "FR_b:": "waves 4-7 beside the convolution: memory-locality vote (timed loads, layout choice only), weight column sums, weight touches",
        "LAYER:": "row stage: residual sums, LayerNorm chain, x + LN(x)*y for 8 rows per workgroup",
        "LOADERS:": "waves 4,5: activation tiles by LDS-DMA (after the producers' counters are complete)",
        "WLOAD:": "waves 6,7: weight tiles by LDS-DMA in their original layout (read back with transposing LDS loads)",
        "G4_last:": "last layer: the two K halves exchange half tiles, add the residuals and write the output",
    }
    o = []
    for l in a.lines:
        if l.strip() in notes: o.append("; ---- " + notes[l.strip()])
        if l.strip().startswith("s_sleep"): l += "    ; back-off inside a wait loop"
        o.append(l)
    a.lines = o
    open(out, "w").write(a.text(HEADER + DOC))
    print("nops added:", a.nops_added)

if __name__ == "__main__":
    main(sys.argv[1] if len(sys.argv) > 1 else "interleave_layers__ssm_conv_h3__mixer_s_mlp__prompt.s")
```

```python
import sys, os, math, struct
sys.path.insert(0, "dev")
from asmgen import Asm

KNAME = "interleave_layers__ssm_conv_h3__mixer_s_mlp__prompt_kernel"
MB = 1 << 20
UT, Y = 24 * MB, 28 * MB
CSP = {1: 20 * MB, 3: 20 * MB + 128 * 1024}
A_Q, A_K, A_V, A_SH, A_SSMK, A_SSMD, B_X, B_W1, B_W2, B_W3, B_W4, D_OUT, D_DBG, D_WS = [8 * i for i in range(14)]
STAMP = int(os.environ.get("STAMP", "0"))
def f32(x): return "0x%08x" % struct.unpack("<I", struct.pack("<f", x))[0]
GC1 = -2.0 * math.sqrt(2.0 / math.pi) * math.log2(math.e)
GC2 = GC1 * 0.044715

class VA:
    def __init__(self, start=1): self.n = start; self.hi = start
    def __call__(self, cnt=1, al=None):
        if al is None: al = 2 if cnt > 1 else 1
        self.n = (self.n + al - 1) // al * al
        r = self.n; self.n += cnt; self.hi = max(self.hi, self.n); return r
def vr(b, n): return f"v[{b}:{b+n-1}]" if n > 1 else f"v{b}"

def unpack(a, lo, hi, src):
    a.e(f"v_lshlrev_b32 v{lo}, 16, v{src}")
    a.e(f"v_and_b32 v{hi}, 0xffff0000, v{src}")
RND = int(os.environ.get("RND", "0"))
def round2(a, x, y, tmp):
    if not RND: return
    a.e(f"v_cvt_pk_bf16_f32 v{tmp}, v{x}, v{y}")
    unpack(a, x, y, tmp)
def round1(a, x):
    if not RND: return
    a.e(f"v_cvt_pk_bf16_f32 v{x}, v{x}, v{x}")
    a.e(f"v_lshlrev_b32 v{x}, 16, v{x}")
def red_g(a, x, t):
    a.e(f"v_mov_b32 v{t}, v{x}"); a.e(f"v_permlane16_swap_b32 v{x}, v{t}"); a.e(f"v_add_f32 v{x}, v{x}, v{t}")
    a.e(f"v_mov_b32 v{t}, v{x}"); a.e(f"v_permlane32_swap_b32 v{x}, v{t}"); a.e(f"v_add_f32 v{x}, v{x}, v{t}")
def ln_finish(a, mean, var, rs, s=None):
    round1(a, mean); round1(a, var)
    a.e(f"v_add_f32 v{var}, {f32(1e-5)}, v{var}"); round1(a, var)
    if not RND and s is None: a.e(f"v_rsq_f32 v{rs}, v{var}"); return
    a.e(f"v_sqrt_f32 v{var}, v{var}"); round1(a, var)
    if s is not None: a.e(f"v_mov_b32 v{s}, v{var}")
    a.e(f"v_rcp_f32 v{rs}, v{var}")


FLG = 22 * MB + int(os.environ.get("FOFF", "0"))
LB0, LSTR, GSTR = 32 * MB, 4 * MB, 16 * MB
oH2 = 4 * MB; oSM = oH2 + 1792 * 1024; oFP = 16384; oST2 = oSM + 32768; oLNS = oSM + 65536
oX3, oX1P, oP0, oP1 = [i * 512 * 1024 for i in range(4)]
DP = os.environ.get("DP", "rf12")
if "r" in DP: oP0, oP1 = oX3, oX1P
def mark(a, r, bit): a.e(f"v_or_b32 v{r}, 1, v{r}" if bit else f"v_and_b32 v{r}, -2, v{r}")
DOT = int(os.environ.get("DOT", "1"))
def data_poll(a, loads, regs, t, nap, first=0, canary=False):
    L = a.lab("dp"); D = a.lab("dq")
    if canary:
        a.e("s_bfm_b64 exec, 1, 63"); data_poll(a, loads, regs, t, nap, first); a.e("s_mov_b64 exec, -1"); first = 0
    a.e("s_mov_b32 s53, 0")
    if first:
        f2 = int(os.environ.get("RFIRST2", "10"))
        if f2: a.e(f"s_sleep {f2}")
        a.e("s_cmp_ge_u32 s30, 6"); a.e(f"s_cbranch_scc1 {L}"); a.e(f"s_sleep {first - f2}")
    a.e(f"{L}:")
    for x in loads: a.e(x)
    a.e("s_waitcnt vmcnt(0)")
    a.e(f"v_bitop3_b32 v{t}, v{regs[0]}, v{regs[1]}, v{regs[2]} bitop3:0x80"); a.e(f"v_bitop3_b32 v{t}, v{t}, v{regs[3]}, 1 bitop3:0x80")
    a.e(f"v_cmp_eq_u32 vcc, 0, v{t}"); a.e(f"s_cbranch_vccz {D}")
    a.e(f"s_sleep {nap}")
    a.e("s_add_u32 s53, s53, 1"); a.e("s_cmp_lt_u32 s53, s61"); a.e(f"s_cbranch_scc1 {L}")
    a.e("s_mov_b32 s61, 0")
    a.e(f"{D}:")
XSZ = 512 * 1024 - 8192; H2SZ = 1792 * 1024 - 8192
HSB = 160 * MB; PITCH = 65536 + int(os.environ.get("SKEW", "0")); oHS = MB
def fso(stage): return int(stage * 256)
def spread(a, d, src):
    a.e(f"s_lshr_b32 s53, s{src}, 3"); a.e("s_lshl_b32 s53, s53, 14"); a.e(f"s_and_b32 s{d}, s{src}, 7"); a.e(f"s_lshl_b32 s{d}, s{d}, 10"); a.e(f"s_add_u32 s{d}, s{d}, s53")
ST_R, ST_G1, ST_G2, ST_G3, ST_G4, ST_R2, ST_G3B, ST_G3A = range(8); ST_G2S = 5.5
F_KVT, F_FRONT, F_CS = FLG, FLG + 32768, FLG + 49152
LDS_TOTAL = 163840
AUX = LDS_TOTAL - 4096
SC = "sc1"
PSLEEP = int(os.environ.get("PSLEEP", "5"))
ROT = int(os.environ.get("ROT", "1"))
PACE = int(os.environ.get("PACE", "8"))
PDEPTH = int(os.environ.get("PDEPTH", "1"))
WROT = int(os.environ.get("WROT", "1"))
PRIO = int(os.environ.get("PRIO", "0"))
STQ = int(os.environ.get("STQ", "12"))
CPRIO = int(os.environ.get("CPRIO", "0"))
FSLEEP = int(os.environ.get("FSLEEP", "3"))
CSPRIO = int(os.environ.get("CSPRIO", "1"))
NT = os.environ.get("NT", "nt"); HALO = int(os.environ.get("HALO", "0")); NTK = os.environ.get("NTK", "" if HALO else NT); NTH = os.environ.get("NTH", NT)
W1F = int(os.environ.get("W1F", "7"))
WSC = eval(os.environ.get("WSC", "{}"))
TLBW = int(os.environ.get("TLBW", "0"))
T12 = eval(os.environ.get("T12", "{}"))
T23 = eval(os.environ.get("T23", "()"))
OWN3 = int(os.environ.get("OWN3", "1"))
PUB2 = int(os.environ.get("PUB2", "4"))
MAP = int(os.environ.get("MAP", "4"))
HSPLIT = int(os.environ.get("HSPLIT", "2"))
W1G = int(os.environ.get("W1G", "9"))
PWAIT = int(os.environ.get("PWAIT", "8"))
DL = eval(os.environ.get("DL", "[2,4]"))
PACES = eval(os.environ.get("PACES", "{4:6}"))
C0PUB = int(os.environ.get("C0PUB", "6"))
LNSL = AUX + 1024

CFG = {1: dict(WM=4, WN=1, MT=2, NT=4, KBT=32, NS=16, NA=1.5, NW=16, A=oX3, W=B_W1, LDW=2048),
       2: dict(WM=4, WN=1, MT=2, NT=4, KBT=32, NS=16, NA=0, NW=16, A=oHS, W=B_W2, LDW=2048),
       3: dict(WM=2, WN=2, MT=4, NT=7, KBT=32, NS=16, NA=3, NW=3, A=oX1P, W=B_W3, LDW=7168, NPRE=2, WR=1, S0=2, WB=73728),
       4: dict(WM=2, WN=2, MT=4, NT=4, KBT=112, NS=28, NA=3, NW=6, A=oH2, W=B_W4, LDW=2048)}
for w, d in eval(os.environ.get("CFG", "{}")).items(): CFG[w].update(d)
for c in CFG.values():
    c.setdefault("NPRE", c["NW"]); c.setdefault("APRE", min(c["NA"], 3)); c.setdefault("WR", 1)
    c["TN16"] = c["WN"] * c["NT"]; c["STB"] = c["TN16"] * 2048; c.setdefault("WB", int(c["NA"] * 16384)); c.setdefault("S0", 0)
    c["RB"] = c["TN16"] * 32
    assert c["WB"] + c["NW"] * c["STB"] <= AUX
NX = 0
def nib(t): return sum(x << (4 * i) for i, x in enumerate(t))
CSO = {1: AUX + 3584, 3: AUX}

LW = AUX + 3072
def mstamp(a, force=False):
    if os.environ.get("JIT"):
        X = a.lab("jit")
        a.e("s_cselect_b32 s101, 1, 0"); a.e("s_memtime s[64:65]"); a.e("s_waitcnt lgkmcnt(0)"); a.e(f"s_and_b32 s64, s64, {os.environ['JIT']}"); a.e("s_cmp_lg_u32 s64, 0")
        a.e(f"s_cbranch_scc1 {X}"); a.e("s_sleep 50"); a.e(f"{X}:"); a.e("s_cmp_eq_u32 s101, 1")
        return
    if not STAMP or (os.environ.get("GST") and not force): return
    a.e(("s_memrealtime" if STAMP == 2 else "s_memtime") + " s[64:65]"); a.e("s_mov_b32 s100, m0"); a.e("s_mov_b32 m0, s66"); a.e("s_waitcnt lgkmcnt(0)")
    a.e("v_writelane_b32 v255, s64, m0"); a.e("s_mov_b32 m0, s100")
    a.e("s_add_u32 s66, s66, 1")

def lsrd(a, d, off, nbytes, prev=False):
    if prev:
        a.e(f"s_sub_u32 s{d}, s62, {LSTR - off:#x}"); a.e(f"s_subb_u32 s{d+1}, s63, 0")
        a.e(f"s_mov_b32 s{d+2}, {nbytes:#x}"); a.e(f"s_mov_b32 s{d+3}, 0x20000")
    else: a.srd(d, 62, nbytes, off=off)

def hs_srd(a, d):
    if "2" in DP: a.srd(d, 4, 128 * PITCH, off=HSB); return
    a.e("s_lshl_b32 s53, s60, 24"); a.e(f"s_add_u32 s53, s53, {HSB}")
    a.e(f"s_add_u32 s{d}, s4, s53"); a.e(f"s_addc_u32 s{d+1}, s5, 0"); a.e(f"s_mov_b32 s{d+2}, {128*PITCH}"); a.e(f"s_mov_b32 s{d+3}, 0x20000")

def group_off(a, d, m):
    a.e(f"s_lshr_b32 s53, s{m}, 3"); a.e("s_lshl_b32 s53, s53, 2"); a.e(f"s_and_b32 s54, s{m}, 3"); a.e("s_add_u32 s53, s53, s54"); a.e("s_lshl_b32 s53, s53, 24")
    a.e(f"s_lshr_b32 s54, s{m}, 2"); a.e("s_xor_b32 s54, s54, s94"); a.e("s_and_b32 s54, s54, 1"); a.e("s_lshl_b32 s54, s54, 13")
    a.e(f"s_add_u32 s{d}, s53, s54"); a.e(f"s_add_u32 s{d}, s{d}, {LB0}")

PV = 240
def poll_core(a, t, addrs, mask, extra=None, depth=1, cnt=0, nap=None):
    L = a.lab("poll"); D = a.lab("pok")
    n = len(addrs) + (1 if extra else 0)
    if depth > 1: t0 = t; regs = [PV + k * len(addrs) for k in range(depth)]; assert not extra and regs[-1] + len(addrs) <= 256
    else: regs = [t]
    def ld(r):
        for i, ad in enumerate(addrs): a.e(f"buffer_load_dword v{r+i}, v{ad}, s[56:59], 0 offen {SC}")
        if extra: a.e(extra[0])
    a.e("s_mov_b32 s53, 0"); a.e(f"s_add_u32 s54, s52, {cnt}")
    if mask != -1: a.e(f"s_bfm_b64 exec, {mask.bit_length()}, 0")
    for r in regs[:-1]: ld(r); a.e(f"s_sleep {PSLEEP}")
    a.e(f"{L}:")
    for k in range(depth):
        ld(regs[k - 1]); r = regs[k]
        a.e(f"s_waitcnt vmcnt({n*(depth-1)})")
        for i in range(len(addrs)): a.e(f"v_xor_b32 v{r+i}, s54, v{r+i}")
        for i in range(1, len(addrs)): a.e(f"v_or_b32 v{r}, v{r}, v{r+i}")
        if extra:
            for x in extra[1:]: a.e(x)
        a.e(f"v_cmp_eq_u32 vcc, 0, v{r}")
        a.e("s_cmp_eq_u64 vcc, exec"); a.e(f"s_cbranch_scc1 {D}")
        a.e(f"s_sleep {PSLEEP if nap is None else nap}")
    a.e("s_add_u32 s53, s53, 1"); a.e("s_cmp_lt_u32 s53, s61"); a.e(f"s_cbranch_scc1 {L}")
    a.e("s_mov_b32 s61, 0")
    a.e(f"{D}:")
    if mask != -1: a.e("s_mov_b64 exec, -1")

SPLIT = {ST_G1: "sign", ST_G3: "half", ST_G3A: "half", ST_G3B: "half"}
def flag_addr(a, r, stage, prev=False):
    so = fso(stage) - (LSTR if prev else 0)
    a.e(f"s_add_u32 s54, s55, {so & 0xffffffff:#x}")
    sp = SPLIT.get(stage)
    if sp == "half": a.e("s_lshl_b32 s53, s31, 7"); a.e("s_add_u32 s54, s54, s53")
    a.e(f"v_mov_b32 v{r}, s54")
    if sp == "sign":
        a.e("s_add_u32 s53, s54, 128"); a.e(f"v_writelane_b32 v{r}, s53, 1")
        a.e("s_add_u32 s53, s53, s93"); a.e(f"v_writelane_b32 v{r}, s53, 3")
        a.e("s_add_u32 s53, s54, s92"); a.e(f"v_writelane_b32 v{r}, s53, 2")
        return 0xf, 8
    return 1, 8 if sp else 16
def own_wait(a, stage, prev, t):
    if not PWAIT or stage == ST_R: return
    k = {ST_G1: 1, ST_G2: 2, ST_G4: 3}[stage] - (3 if prev else 0)
    a.e(f"s_mul_i32 s54, s60, {2 if 'r' in DP else 3}"); a.e(f"s_add_u32 s54, s54, {k}")
    lds_spin(a, LW + 56, "s54", t, nap=PWAIT)
def flag_try(a, r, ad):
    a.e("s_mov_b64 exec, 1"); a.e(f"buffer_load_dword v{r}, v{ad}, s[56:59], 0 offen {SC}"); a.e("s_mov_b64 exec, -1")
def flag_check(a, r, ad, cnt):
    D = a.lab("fok")
    a.e(f"v_readfirstlane_b32 s53, v{r}"); a.e(f"s_add_u32 s54, s52, {cnt}"); a.e("s_cmp_eq_u32 s53, s54"); a.e(f"s_cbranch_scc1 {D}")
    poll_core(a, r, [ad], 1, cnt=cnt)
    a.e(f"{D}:")

def poll(a, stage, t, prev=False):
    D = a.lab("pdone")
    a.e("s_cmp_lg_u32 s30, 4"); a.e(f"s_cbranch_scc1 {D}")
    own_wait(a, stage, prev, t)
    mask, cnt = flag_addr(a, t + 1, stage, prev)
    poll_core(a, t, [t + 1], mask, depth=PDEPTH, cnt=cnt)
    a.e(f"{D}:")
    if stage != ST_G4: mstamp(a)
    a.e("s_barrier")

def publish(a, stage, nw, t, off=None, wait=0, ctr=None, flag=False):
    D = a.lab("pub")
    mark = PWAIT and off is None and stage in (ST_G1, ST_G2, ST_G4)
    if off is None:
        a.e(f"s_add_u32 s53, s55, {fso(stage)}"); off = 53
        sp = SPLIT.get(stage)
        if sp == "half": a.e("s_lshl_b32 s54, s31, 7"); a.e("s_add_u32 s53, s53, s54")
        if sp == "sign": a.e("s_and_b32 s54, s29, 4"); a.e("s_lshl_b32 s54, s54, 5"); a.e("s_add_u32 s53, s53, s54")
    a.e(f"v_mov_b32 v{t}, 1"); a.e(f"v_mov_b32 v{t+1}, {LW + (ctr if ctr is not None else 4 if nw == 8 else 0)}"); a.e(f"v_mov_b32 v{t+3}, 0")
    a.e("s_mov_b64 exec, 1")
    if wait is not None: a.e(f"s_waitcnt vmcnt({wait})")
    if nw > 1:
        a.e(f"ds_add_rtn_u32 v{t+2}, v{t+1}, v{t}")
        if flag: a.e(f"v_mov_b32 v{t+1}, s52")
        a.e("s_waitcnt lgkmcnt(0)")
        a.e(f"v_readfirstlane_b32 s54, v{t+2}")
        a.e(f"s_and_b32 s54, s54, {nw-1}"); a.e(f"s_cmp_lg_u32 s54, {nw-1}"); a.e(f"s_cbranch_scc1 {D}")
    if flag: a.e(f"buffer_store_dword v{t+1}, v{t+3}, s[56:59], s{off} offen {SC}")
    else: a.e(f"buffer_atomic_add v{t}, v{t+3}, s[56:59], s{off} offen {SC}")
    if stage == ST_R and not flag:
        a.e("s_cmp_lg_u32 s60, 0"); a.e(f"s_cbranch_scc1 {D}")
        a.e("s_lshl_b32 s53, s29, 7"); a.e(f"s_add_u32 s53, s53, {F_CS}")
        a.e(f"buffer_atomic_add v{t}, v{t+3}, s[56:59], s53 offen {SC}")
    if mark: a.e(f"v_mov_b32 v{t+1}, {LW+56}"); a.e(f"ds_add_u32 v{t+1}, v{t}")
    a.e(f"{D}:")
    a.e("s_mov_b64 exec, -1")

def lds_spin(a, addr, target, t, dst=53, nap=False):
    L = a.lab("spin")
    a.e(f"v_mov_b32 v{t}, {addr}")
    a.e(f"{L}:")
    if nap: a.e(f"s_sleep {int(nap)}")
    a.e(f"ds_read_b32 v{t+1}, v{t}"); a.e("s_waitcnt lgkmcnt(0)"); a.e(f"v_readfirstlane_b32 s{dst}, v{t+1}")
    a.e(f"s_cmp_ge_u32 s{dst}, {target}"); a.e(f"s_cbranch_scc0 {L}")
def lds_set(a, addr, val, t):
    a.e(f"v_mov_b32 v{t}, {addr}"); a.e(f"v_mov_b32 v{t+1}, {val}")
    a.e("s_waitcnt lgkmcnt(0)"); a.e(f"ds_write_b32 v{t}, v{t+1}")
def lbar(a, k, t):
    a.e(f"v_mov_b32 v{t}, {LW+8}"); a.e(f"v_mov_b32 v{t+1}, 1")
    a.e("s_waitcnt lgkmcnt(0)")
    a.e("s_mov_b64 exec, 1"); a.e(f"ds_add_u32 v{t}, v{t+1}"); a.e("s_mov_b64 exec, -1")
    lds_spin(a, LW + 8, 4 * k, t)

def gelu4(a, X, t, c1, c2):
    P = [(X, t), (X + 2, t + 2)]
    for x, u in P: a.e(f"v_pk_mul_f32 {vr(u,2)}, {vr(x,2)}, {vr(x,2)}")
    for x, u in P: a.e(f"v_pk_fma_f32 {vr(u,2)}, {vr(u,2)}, {vr(c2,2)}, {vr(c1,2)}")
    for x, u in P: a.e(f"v_pk_mul_f32 {vr(u,2)}, {vr(u,2)}, {vr(x,2)}")
    for i in range(4): a.e(f"v_exp_f32 v{t+i}, v{t+i}")
    for x, u in P: a.e(f"v_pk_add_f32 {vr(u,2)}, {vr(u,2)}, 1.0 op_sel_hi:[1,0]")
    for i in range(4): a.e(f"v_rcp_f32 v{t+i}, v{t+i}")
    for x, u in P: a.e(f"v_pk_mul_f32 {vr(x,2)}, {vr(x,2)}, {vr(u,2)}")

W2EARLY = int(os.environ.get("W2EARLY", "1")); QLATE = int(os.environ.get("QLATE", "0"))
TOUCH2 = [(A_Q, 4 * MB)] + ([] if W2EARLY else [(B_W2, 2 * MB)])
CODEPF = int(os.environ.get("CODEPF", "1")); NVOTE = 255; NSAMP = int(os.environ.get("NSAMP", "2"))
W4POS = os.environ.get("W4POS", "3C")
HSTR = 4160; CHB = 24576; UOFF = 4 * HSTR; US = 96
KVS = 4 * CHB

KT = int(os.environ.get("KT", "1"))
KV = dict(cq=6, tg=7, t=8, ro=9, wo=16, pt=18, kr=22, vv=36, w=44, d=52, hoff=70, tag=76, zz=78)
def front_loads(a):
    cq, tg, t, ro, wo, kr, vv, w = [KV[k] for k in "cq tg t ro wo kr vv w".split()]
    a.e(f"v_and_b32 v{cq}, 31, v0"); a.e(f"v_lshrrev_b32 v{tg}, 5, v0")
    a.e("s_and_b32 s34, s2, 7"); a.e("s_lshr_b32 s35, s2, 3")
    a.e("s_lshl_b32 s36, s35, 17"); a.e("s_lshl_b32 s37, s34, 8"); a.e("s_add_u32 s36, s36, s37")
    a.e(f"v_lshlrev_b32 v{t}, 13, v{tg}"); a.e(f"v_lshl_add_u32 v{t}, v{cq}, 3, v{t}"); a.e(f"v_add_u32 v{ro+3}, s36, v{t}")
    a.e(f"v_add_u32 v{ro+5}, 4096, v{ro+3}")
    a.e(f"s_mov_b32 s18, {4*MB}"); a.e("s_mov_b32 s19, 0x20000"); a.e("s_mov_b32 s22, s18"); a.e("s_mov_b32 s23, s19")
    a.e("s_waitcnt lgkmcnt(0)")
    tag, zz = KV["tag"], KV["zz"]
    a.e("s_mov_b32 s86, 256"); a.e("s_mov_b32 s87, 0x20000"); a.e(f"v_mov_b32 v{zz}, 0")
    a.e("s_lshl_b32 s45, s2, 3"); a.e("s_add_u32 s45, s45, s30"); a.e("s_cmp_lg_u32 s45, 4"); a.e("s_cbranch_scc1 KV_t0")
    a.e("s_lshl_b32 s44, s46, 6"); a.e("s_or_b32 s44, s44, 1"); a.e(f"v_mov_b32 v{tag}, s44")
    a.e("s_mov_b64 exec, 1"); a.e(f"buffer_store_dword v{tag}, v{zz}, s[84:87], 0 offen {SC}"); a.e("s_mov_b64 exec, -1")
    a.e("KV_t0:")
    a.e("s_mov_b64 s[16:17], s[8:9]"); a.e("s_mov_b64 s[20:21], s[10:11]")
    for i in range(4): a.e(f"buffer_load_dwordx2 {vr(kr+2*(i+3),2)}, v{ro+3+(i&2)}, s[16:19], 0 offen offset:{2048*(i&1)} {NTK}")
    for i in range(4): a.e(f"buffer_load_dwordx2 {vr(vv+2*i,2)}, v{ro+3+(i&2)}, s[20:23], 0 offen offset:{2048*(i&1)} {NT}")
    for i in range(3): a.e(f"v_subrev_u32 v{ro+i}, {2048*(3-i)}, v{ro+3}")
    a.e("s_lshl_b32 s37, s34, 10"); a.e(f"v_lshlrev_b32 v{wo}, 5, v{cq}"); a.e(f"v_add_u32 v{wo}, s37, v{wo}")
    a.srd(24, 12, 8192)
    XP = os.environ.get("XP", "g")
    if KT:
        a.e(f"v_and_b32 v{t}, 1, v{tg}"); a.e(f"v_lshl_add_u32 v{wo}, v{t}, 4, v{wo}")
        a.e(f"buffer_load_dwordx4 {vr(w,4)}, v{wo}, s[24:27], 0 offen")
    for i in range(0 if "t" in XP or KT else 2): a.e(f"buffer_load_dwordx4 {vr(w+4*i,4)}, v{wo}, s[24:27], 0 offen offset:{16*i}")
    if "g" in XP:
        a.e("s_cmp_lg_u32 s30, 4"); a.e("s_cbranch_scc1 KV_t2")
        a.e(f"buffer_load_dword v{tag}, v{zz}, s[84:87], 0 offen {SC}")
        a.e("KV_t2:")
    if "h" in XP: return
    if HALO:
        a.e("s_cmp_lg_u32 s30, 0"); a.e("s_cbranch_scc1 KV_h0"); a.e("s_bfm_b64 exec, 32, 0")
    if KT: a.e("s_bfm_b64 exec, 32, 0")
    for i in range(3): a.e(f"buffer_load_dwordx2 {vr(kr+2*i,2)}, v{ro+i}, s[16:19], 0 offen {NTK}")
    if KT: a.e("s_mov_b64 exec, -1")
    if HALO: a.e("s_mov_b64 exec, -1"); a.e("KV_h0:")

def probe_base(a):
    a.e("s_and_b32 s42, s2, 31"); a.e("s_lshl_b32 s42, s42, 8"); a.e("s_lshr_b32 s43, s2, 5"); a.e("s_lshl_b32 s43, s43, 14"); a.e("s_add_u32 s42, s42, s43")
    a.e(f"s_add_u32 s42, s42, {LB0 + oSM + 131072}")
def front_arrive(a, wait):
    D = a.lab("fa"); t = 6
    a.e("s_and_b32 s36, s2, 7"); a.e("s_lshl_b32 s36, s36, 7"); a.e(f"s_add_u32 s36, s36, {F_FRONT}")
    a.e(f"v_mov_b32 v{t}, 1"); a.e(f"v_mov_b32 v{t+1}, {LW+4}"); a.e(f"v_lshlrev_b32 v{t+3}, 10, v1")
    a.e("s_mov_b64 exec, 1")
    if wait: a.e("s_waitcnt vmcnt(0)")
    a.e("s_waitcnt lgkmcnt(0)")
    a.e(f"ds_add_rtn_u32 v{t+2}, v{t+1}, v{t}"); a.e(f"ds_read_b32 v{t+4}, v{t+1} offset:28")
    a.e("s_waitcnt lgkmcnt(0)")
    a.e(f"v_readfirstlane_b32 s54, v{t+2}"); a.e(f"v_readfirstlane_b32 s53, v{t+4}")
    a.e("s_cmp_lg_u32 s54, 15"); a.e(f"s_cbranch_scc1 {D}")
    a.e("s_mov_b64 exec, 0xffff"); a.e("s_or_b32 s53, s53, 1"); a.e(f"v_mov_b32 v{t}, s53")
    a.e(f"buffer_atomic_add v{t}, v{t+3}, s[56:59], s36 offen {SC}")
    a.e(f"{D}:"); a.e("s_mov_b64 exec, -1")
def front_a(a):
    cq, tg, t, pt, kr, vv, w, d, hoff, tag, zz = [KV[k] for k in "cq tg t pt kr vv w d hoff tag zz".split()]
    v = VA(80)
    a.e("s_and_b32 s41, s30, 3"); chan_setup(a, 41)
    a.e("s_lshr_b32 s36, s39, 1"); a.e("s_lshl_b32 s36, s36, 2"); a.e("s_load_dword s98, s[96:97], s36")
    a.e("s_lshl_b32 s36, s39, 12")
    a.e("s_add_u32 s12, s14, s36"); a.e("s_addc_u32 s13, s15, 0"); a.e("s_mov_b32 s14, 4096"); a.e("s_mov_b32 s15, 0x20000")
    a.e("s_lshr_b32 s45, s30, 2"); a.e("s_lshl_b32 s45, s45, 11")
    for it in range(3):
        if it < 2: a.e(f"s_add_u32 s36, s45, {(1024*it - 64) & 0xffffffff:#x}")
        else: a.e(f"s_mov_b32 s36, {4096 - 64}")
        a.e(f"v_add_u32 v{hoff+2*it}, s36, v2"); a.e(f"v_add_u32 v{hoff+2*it+1}, 16, v{hoff+2*it}")
    a.e("s_and_b32 s34, s2, 7"); a.e("s_lshr_b32 s35, s2, 3")
    z = v(4, 4); la = v(); t2 = v(); hw = v()
    for i in range(4): a.e(f"v_mov_b32 v{z+i}, 0")
    a.e(f"v_add_u32 v{hw}, s40, v2")
    a.e(f"ds_write_b128 v{hw}, {vr(z,4)} offset:{UOFF+64*US}")
    a.e(f"s_bfm_b64 exec, {(15*US - 1024)//16}, 0"); a.e(f"ds_write_b128 v{hw}, {vr(z,4)} offset:{UOFF+64*US+1024}"); a.e("s_mov_b64 exec, -1")
    a.e(f"v_lshlrev_b32 v{t}, 2, v{tg}"); a.e(f"v_sub_u32 v{t}, 60, v{t}")
    a.e(f"v_lshrrev_b32 v{t2}, 3, v{t}"); a.e(f"v_bfe_u32 v{la}, v{cq}, 1, 3"); a.e(f"v_xor_b32 v{t2}, v{t2}, v{la}"); a.e(f"v_lshlrev_b32 v{t2}, 4, v{t2}")
    a.e(f"v_and_b32 v{t}, 7, v{t}"); a.e(f"v_lshl_add_u32 v{t2}, v{t}, 1, v{t2}")
    a.e(f"v_lshl_add_u32 v{la}, v{cq}, 9, v{t2}"); a.e(f"v_add_u32 v{la}, {KVS}, v{la}")
    wf = v(8, 2); kf = v(14, 2); vf = v(8, 2); ks = v(8, 2); pr = v(8, 2); o = v(8, 4); tm = v(4, 1)
    a.e("s_waitcnt vmcnt(0)")
    if HALO:
        for i in range(3): a.e(f"buffer_load_dwordx2 {vr(kr+2*i,2)}, v{KV['ro']+i}, s[16:19], 0 offen {NTK}")
        if HALO == 1: a.e("s_waitcnt vmcnt(0)")
    a.e("s_cmp_lg_u32 s30, 4"); a.e("s_cbranch_scc1 KV_t1")
    if "g" not in os.environ.get("XP", "g"): a.e(f"buffer_load_dword v{tag}, v{zz}, s[84:87], 0 offen {SC}")
    a.e("KV_t1:")
    for it in range(3):
        a.e(f"buffer_load_dwordx4 {vr(d+6*it,4)}, v{hoff+2*it}, s[12:15], 0 offen {NTH}")
        a.e(f"buffer_load_dwordx2 {vr(d+6*it+4,2)}, v{hoff+2*it+1}, s[12:15], 0 offen {NTH}")
    if HALO == 2: a.e("s_waitcnt vmcnt(10)")
    mstamp(a)
    if KT:
        for e in range(4): a.e(f"v_mov_b32 v{w+4+e}, v{w+e}")
        for e in range(6): a.e(f"v_mov_b32 v{pr+e}, v{kr+8+e}")
        for e in range(4): a.e(f"v_permlane32_swap_b32 v{w+e}, v{w+4+e}")
        for e in range(6): a.e(f"v_permlane32_swap_b32 v{kr+e}, v{pr+e}")
    for dd in range(2):
        for c in range(2):
            unpack(a, wf + 0 + c, wf + 2 + c, w + 2 * (2 * dd + c)); unpack(a, wf + 4 + c, wf + 6 + c, w + 2 * (2 * dd + c) + 1)
        for i in range(7): unpack(a, kf + 2 * i, kf + 2 * i + 1, kr + 2 * i + dd)
        for i in range(4): unpack(a, vf + 2 * i, vf + 2 * i + 1, vv + 2 * i + dd)
        def rnd(base):
            for i in range(4): a.e(f"v_cvt_pk_bf16_f32 v{tm+i}, v{base+2*i}, v{base+2*i+1}")
            for i in range(4): unpack(a, base + 2 * i, base + 2 * i + 1, tm + i)
        for i in range(4): a.e(f"v_pk_mul_f32 {vr(ks+2*i,2)}, {vr(kf+2*i,2)}, {vr(wf+6,2)}")
        if RND: rnd(ks)
        for j in range(1, 4):
            if not RND:
                for i in range(4): a.e(f"v_pk_fma_f32 {vr(ks+2*i,2)}, {vr(kf+2*(i+j),2)}, {vr(wf+6-2*j,2)}, {vr(ks+2*i,2)}")
                continue
            for i in range(4): a.e(f"v_pk_mul_f32 {vr(pr+2*i,2)}, {vr(kf+2*(i+j),2)}, {vr(wf+6-2*j,2)}")
            rnd(pr)
            for i in range(4): a.e(f"v_pk_add_f32 {vr(ks+2*i,2)}, {vr(ks+2*i,2)}, {vr(pr+2*i,2)}")
            rnd(ks)
        for i in range(4): a.e(f"v_pk_mul_f32 {vr(ks+2*i,2)}, {vr(ks+2*i,2)}, {vr(vf+2*i,2)}")
        for c in range(2):
            e = 2 * dd + c
            a.e(f"v_cvt_pk_bf16_f32 v{o+2*e}, v{ks+6+c}, v{ks+4+c}"); a.e(f"v_cvt_pk_bf16_f32 v{o+2*e+1}, v{ks+2+c}, v{ks+c}")
            a.e(f"ds_write_b64 v{la}, {vr(o+2*e,2)} offset:{e*128}")
    a.e("s_cmp_lg_u32 s30, 4"); a.e("s_cbranch_scc1 HB_2")
    a.e(f"v_add_u32 v{pt}, {LW}, v3"); a.e(f"ds_write_b32 v{pt}, v{zz}")
    a.e("s_mov_b32 s53, 0")
    a.e("s_waitcnt vmcnt(6)")
    a.e("HB_p:")
    a.e(f"v_readfirstlane_b32 s52, v{tag}"); a.e("s_cmp_eq_u32 s52, 0"); a.e("s_cbranch_scc1 HB_r")
    a.e("s_cmp_ge_u32 s53, 400"); a.e("s_cbranch_scc1 HB_q")
    a.e("s_add_u32 s54, s46, 8192"); a.e("s_lshl_b32 s54, s54, 6"); a.e("s_sub_u32 s54, s54, s52"); a.e(f"s_cmp_lt_u32 s54, {12288*64}"); a.e("s_cbranch_scc1 HB_q")
    a.e("HB_r:")
    a.e(f"buffer_load_dword v{tag}, v{zz}, s[84:87], 0 offen {SC}"); a.e("s_waitcnt vmcnt(0)")
    a.e("s_add_u32 s53, s53, 1"); a.e("s_cmp_lt_u32 s53, s61"); a.e("s_cbranch_scc1 HB_p")
    a.e("s_mov_b32 s52, 1"); a.e("s_mov_b32 s61, 0")
    a.e("HB_q:")
    lds_set(a, LW + 12, "s52", pt)
    a.e("HB_2:")
    a.srd(16, 4, 8 * GSTR, off=LB0 + oX3)
    ra = v(); go = v(); ob = v(8, 4)
    a.e(f"v_lshrrev_b32 v{t}, 3, v0"); a.e(f"v_and_b32 v{t2}, 7, v0")
    a.e(f"v_lshlrev_b32 v{go}, 12, v{t}"); a.e(f"v_lshl_add_u32 v{go}, v{t2}, 4, v{go}")
    a.e("s_lshl_b32 s36, s34, 24"); a.e("s_sub_u32 s37, 31, s35"); a.e("s_lshl_b32 s37, s37, 7"); a.e("s_add_u32 s36, s36, s37")
    a.e(f"s_add_u32 s37, s36, {64*4096}")
    a.e(f"v_lshrrev_b32 v{ra}, 3, v{t}"); a.e(f"v_xor_b32 v{ra}, v{ra}, v{t2}"); a.e(f"v_lshlrev_b32 v{ra}, 4, v{ra}"); a.e(f"v_lshl_add_u32 v{ra}, v{t}, 7, v{ra}")
    a.e(f"v_add_u32 v{ra}, {KVS}, v{ra}"); a.e(f"v_mov_b32 v{pt}, {LW+12}")
    a.e("s_waitcnt lgkmcnt(0)"); a.e("s_barrier")
    for i in range(2): a.e(f"ds_read_b128 {vr(ob+4*i,4)}, v{ra} offset:{i*8192}")
    a.e(f"ds_read_b32 v{pt+1}, v{pt}")
    for i in range(2):
        a.e(f"s_waitcnt lgkmcnt({2-i})")
        if "1" in DP: mark(a, ob + 4 * i, 1)
        a.e(f"buffer_store_dwordx4 {vr(ob+4*i,4)}, v{go}, s[16:19], s{36+i} offen {SC}")
    a.e("s_waitcnt lgkmcnt(0)"); a.e(f"v_readfirstlane_b32 s52, v{pt+1}")
    a.e("s_cmp_lg_u32 s30, 0"); a.e("s_cbranch_scc1 KV_ni"); a.e("s_cmp_ge_u32 s35, 16"); a.e("s_cbranch_scc1 KV_ni")
    a.e(f"v_mov_b32 v{t}, s52")
    a.e("s_lshl_b32 s37, s34, 7"); a.e("s_lshl_b32 s53, s35, 10"); a.e("s_add_u32 s37, s37, s53"); a.e(f"s_add_u32 s37, s37, {F_FRONT}")
    a.e("s_mov_b64 exec, 1"); a.e(f"buffer_store_dword v{t}, v{zz}, s[56:59], s37 offen {SC}"); a.e("s_mov_b64 exec, -1")
    a.e("KV_ni:")
    a.e(f"s_cmp_ge_u32 s2, {NVOTE}"); a.e("s_cbranch_scc1 KV_n3"); a.e("s_cmp_lg_u32 s30, 5"); a.e("s_cbranch_scc1 KV_n3")
    probe_base(a)
    a.e(f"v_and_b32 v{t}, 1, v1"); a.e(f"v_lshlrev_b32 v{t}, 13, v{t}"); a.e(f"v_lshrrev_b32 v{t2}, 1, v1"); a.e(f"v_lshl_add_u32 v{t}, v{t2}, 7, v{t}")
    a.e("s_mov_b64 exec, 0xf"); a.e(f"buffer_store_dword v{t}, v{t}, s[56:59], s42 offen {SC}"); a.e("s_mov_b64 exec, -1")
    a.e("KV_n3:")
    def pubk():
        a.e("s_lshl_b32 s36, s34, 5"); a.e("s_add_u32 s36, s36, s35"); a.e("s_lshl_b32 s36, s36, 7"); a.e(f"s_add_u32 s36, s36, {F_KVT}")
        mstamp(a)
        QL = int(os.environ.get("QL", "3"))
        if QL == 2: load_q(a)
        publish(a, 0, 8, pt, off=36, flag=True, wait=4 if QL == 2 else 0)
        if QL == 3: load_q(a)
        mstamp(a)
    HF = int(os.environ.get("HF", "0"))
    if not HF: pubk()
    else: a.e("s_waitcnt vmcnt(2)")
    cc = wf; hw2 = v()
    a.e(f"v_add_u32 v{hw2}, s45, v{hw}")
    for it in range(3):
        D = d + 6 * it; c0 = cc + 12 * it; c1 = c0 + 4; c2 = c0 + 8
        for k in range(4):
            a.e(f"v_alignbit_b32 v{c0+k}, v{D+k+1}, v{D+k}, 16")
            a.e(f"v_mov_b32 v{c1+k}, v{D+k+1}")
            a.e(f"v_alignbit_b32 v{c2+k}, v{D+k+2}, v{D+k+1}, 16")
        if it == 2: a.e("s_mov_b64 exec, 0xf")
        ad, o0 = (hw2, 1024 * it) if it < 2 else (hw, 4096)
        a.e(f"ds_write_b128 v{ad}, {vr(c0,4)} offset:{o0}")
        a.e(f"ds_write_b128 v{ad}, {vr(c1,4)} offset:{HSTR+o0}")
        a.e(f"ds_write_b128 v{ad}, {vr(c2,4)} offset:{2*HSTR+o0}")
        a.e(f"ds_write_b128 v{ad}, {vr(D+2,4)} offset:{3*HSTR+o0}")
        if it == 2: a.e("s_mov_b64 exec, -1")
    if HF: pubk()
    assert v.hi <= 176
    a.e("s_waitcnt lgkmcnt(0)"); a.e("s_barrier")
def load_q(a):
    a.srd(8, 6, 4 * MB)
    for j in range(4): a.e(f"buffer_load_dwordx2 {vr(RXA+2*j,2)}, v{RRO}, s[8:11], 0 offen offset:{128*(j>>1) + 32*(j&1)} {os.environ.get('NTQ', NTH)}")
def chan_setup(a, wsg):
    a.e("s_and_b32 s38, s2, 7"); a.e("s_lshl_b32 s38, s38, 5"); a.e("s_lshr_b32 s39, s2, 3"); a.e("s_add_u32 s38, s38, s39")
    a.e("s_lshl_b32 s39, s38, 2"); a.e(f"s_add_u32 s39, s39, s{wsg}")
    a.e(f"s_mul_i32 s40, s{wsg}, {CHB}")

def touch(a, ka, nbytes, r):
    n = nbytes // 1024 // 512
    a.e(f"s_load_dwordx2 s[48:49], s[0:1], {ka}")
    a.e("s_lshl_b32 s45, s2, 1"); a.e("s_and_b32 s50, s30, 1"); a.e("s_add_u32 s45, s45, s50"); a.e(f"s_mul_i32 s45, s45, {n*1024}")
    a.e(f"s_mov_b32 s50, {nbytes}"); a.e("s_mov_b32 s51, 0x20000")
    a.e("s_waitcnt lgkmcnt(0)")
    for i in range(n):
        if i and i % 4 == 0: a.e("s_add_u32 s45, s45, 4096")
        a.e(f"buffer_load_dwordx4 {vr(r,4)}, v2, s[48:51], s45 offen offset:{(i&3)*1024}")
    return n

def w2_warm(a):
    a.e("s_mov_b64 s[48:49], s[70:71]"); a.e(f"s_mov_b32 s50, {2*MB}"); a.e("s_mov_b32 s51, 0x20000")
    a.e("s_and_b32 s45, s28, 3"); a.e("s_lshl_b32 s45, s45, 1"); a.e("s_and_b32 s46, s30, 1"); a.e("s_add_u32 s45, s45, s46"); a.e("s_lshl_b32 s45, s45, 18")
    a.e("s_lshl_b32 s46, s29, 7"); a.e("s_add_u32 s45, s45, s46"); a.e("v_lshlrev_b32 v245, 11, v1")
    a.e("buffer_load_dword v244, v245, s[48:51], s45 offen"); a.e(f"s_add_u32 s45, s45, {64*2048}"); a.e("buffer_load_dword v246, v245, s[48:51], s45 offen")
def cs_load(a, which, slot):
    w_setup(a, which, pre=False)
    a.e(f"s_mov_b32 s42, {slot}"); a.e("s_mov_b32 s44, s28")
    w_issue(a, which, direct=True)
CSEL, CFR, CAD, CACC, CSO_ = 16, 72, 144, 156, 164
def cs_prep(a, S1, S3):
    a.e(f"v_and_b32 v{CSO_}, 15, v1"); a.e(f"v_mov_b32 v{CSO_+1}, 0x3f803f80")
    for T in range(14):
        a.e(f"v_cmp_eq_u32 vcc, {T}, v{CSO_}")
        for e in range(4): a.e(f"v_cndmask_b32 v{CSEL+4*T+e}, 0, v{CSO_+1}, vcc")
    pos = {}
    for which, slot, r0, halves in ((1, S1, CAD, 1), (3, S3, CAD + 4, 2)):
        c = CFG[which]
        for hf in range(halves):
            a.e(f"s_mov_b32 s35, {hf}")
            nr, pos[which] = w_bases(a, which, r0 + 2 * hf, 35, c["TN16"] // halves, WV + 8, WV + 9)
            a.e("s_and_b32 s35, s30, 1"); a.e(f"s_mul_i32 s35, s35, {32*c['RB']}"); a.e(f"s_add_u32 s35, s35, {slot}")
            for i in range(nr): a.e(f"v_add_u32 v{r0+2*hf+i}, s35, v{r0+2*hf+i}")
    for i in range(8): a.e(f"v_mov_b32 v{CACC+i}, 0")
    a.e(f"v_lshrrev_b32 v{CSO_+2}, 4, v1"); a.e(f"v_lshlrev_b32 v{CSO_+2}, 4, v{CSO_+2}"); a.e(f"v_lshl_add_u32 v{CSO_+2}, v{CSO_}, 6, v{CSO_+2}")
    a.e(f"v_mov_b32 v{CSO_+1}, 0x7f000000")
    for k, n in ((3, 4), (4, 14)):
        a.e(f"v_cmp_gt_u32 vcc, {n}, v{CSO_}"); a.e(f"v_cndmask_b32 v{CSO_+k}, v{CSO_+1}, v{CSO_+2}, vcc")
    return pos
def cs_sum(a, which, pos):
    c = CFG[which]; ntl = c["TN16"]; N = c["LDW"] // 2
    F = CFR + (0 if which == 3 else 56); A = CACC + (0 if which == 3 else 4)
    for T in range(ntl):
        hf, nt = (T // 7, T % 7) if which == 3 else (0, T)
        for h in range(2):
            r, imm = pos[which](nt, 0, h)
            a.e(f"ds_read_b64_tr_b16 {vr(F+4*T+2*h,2)}, v{(CAD + 4 if which == 3 else CAD) + 2*hf + r} offset:{imm}")
    a.srd(20, 4, 32 * N * 4, off=CSP[which])
    a.e("s_lshl_b32 s35, s28, 1"); a.e("s_and_b32 s36, s30, 1"); a.e("s_add_u32 s35, s35, s36"); a.e(f"s_mul_i32 s35, s35, {N*4}")
    a.e(f"s_mul_i32 s36, s29, {ntl*64}"); a.e("s_add_u32 s35, s35, s36")
    a.e("s_waitcnt lgkmcnt(0)")
    for T in range(ntl): a.e(f"v_mfma_f32_16x16x32_bf16 {vr(A,4)}, {vr(F+4*T,4)}, {vr(CSEL+4*T,4)}, {vr(A,4)}")
    a.e(f"buffer_store_dwordx4 {vr(A,4)}, v{CSO_ + (4 if which == 3 else 3)}, s[20:23], s35 offen {SC}")

NOCS3 = int(os.environ.get("NOCS3", "0")); STO = os.environ.get("STOUCH", "")
def stouch(a, which, gran, nw):
    X = a.lab("st"); L = a.lab("sl"); n = 28672 // nw
    a.e("s_cmp_lg_u32 s60, 0"); a.e(f"s_cbranch_scc1 {X}")
    a.e(f"s_mul_i32 s36, s2, 28672"); a.e(f"s_and_b32 s37, s30, {nw-1}"); a.e(f"s_mul_i32 s37, s37, {n}"); a.e("s_add_u32 s36, s36, s37")
    a.e(f"s_add_u32 s34, s{66+2*which}, s36"); a.e(f"s_addc_u32 s35, s{67+2*which}, 0"); a.e("s_mov_b32 s36, 0")
    a.e(f"{L}:")
    for i in range(14): a.e(f"s_load_dword s37, s[34:35], {i*gran}")
    a.e(f"s_add_u32 s34, s34, {14*gran}"); a.e("s_addc_u32 s35, s35, 0"); a.e("s_add_u32 s36, s36, 1"); a.e(f"s_cmp_lt_u32 s36, {n // (14*gran)}"); a.e(f"s_cbranch_scc1 {L}")
    a.e("s_waitcnt lgkmcnt(0)")
    a.e(f"{X}:")
SB = eval(os.environ.get("SB", "(0,0,0)"))
SG = eval(os.environ.get("SG", "(0,0,0,0)"))
def sg(a, n):
    if not n: return
    X = a.lab("st"); L = a.lab("sl")
    a.e("s_cmp_lg_u32 s60, 0"); a.e(f"s_cbranch_scc1 {X}"); a.e("s_mov_b32 s36, 0"); a.e(f"{L}:"); sb(a, 14)
    a.e("s_add_u32 s36, s36, 1"); a.e(f"s_cmp_lt_u32 s36, {n}"); a.e(f"s_cbranch_scc1 {L}"); a.e("s_waitcnt lgkmcnt(0)"); a.e(f"{X}:"); mstamp(a)
def sb_init(a):
    nw = 2 if sum(SG) else 4
    a.e(f"s_mul_i32 s36, s2, 28672"); a.e(f"s_and_b32 s37, s30, {nw-1}"); a.e(f"s_mul_i32 s37, s37, {28672//nw}"); a.e("s_add_u32 s36, s36, s37")
    SW = 66 + 2 * int(os.environ.get("SGW", "3"))
    a.e(f"s_add_u32 s90, s{SW}, s36"); a.e(f"s_addc_u32 s91, s{SW+1}, 0")
def sb(a, n):
    for i in range(n): a.e(f"s_load_dword s101, s[90:91], {i*64}")
    if n: a.e(f"s_add_u32 s90, s90, {n*64}"); a.e("s_addc_u32 s91, s91, 0")
PUTE = int(os.environ.get("PUTE", "1"))
def front_b(a):
    pt, dm = 6, 20
    PZE = int(os.environ.get("PZE", "0"))
    if PZE:
        a.srd(20, 4, 32 * MB, off=216 * MB)
        for i in range(4): a.e(f"v_mov_b32 v{216+i}, -1")
        a.e("s_lshl_b32 s45, s2, 2"); a.e("s_and_b32 s50, s30, 3"); a.e("s_add_u32 s45, s45, s50"); a.e(f"s_mul_i32 s45, s45, {PZE*1024}")
        for i in range(PZE):
            a.e(f"buffer_store_dwordx4 v[216:219], v2, s[20:23], s45 offen {SC}"); a.e("s_add_u32 s45, s45, 1024")
    if TAB: tab_load(a)
    TE = int(os.environ.get("TE", "0"))
    if TE:
        a.e("s_cmp_ge_u32 s30, 6"); a.e("s_cbranch_scc1 FB_t1"); touch(a, B_W2, 2 * MB, dm); a.e("s_branch FB_t2"); a.e("FB_t1:"); touch(a, B_W1, 2 * MB, 200); a.e("FB_t2:")
    w_lanes(a)
    a.e("s_cmp_ge_u32 s30, 6"); a.e("s_cbranch_scc1 FB_cs")
    vd = 12
    a.e(f"s_cmp_ge_u32 s2, {NVOTE}"); a.e("s_cbranch_scc1 FB_np"); a.e("s_cmp_lg_u32 s30, 5"); a.e("s_cbranch_scc1 FB_np")
    probe_base(a); a.e(f"v_mov_b32 v{vd+2}, 0")
    a.e("s_mov_b64 exec, 1"); a.e("s_mov_b32 s46, -1"); a.e("s_mov_b32 s47, -1"); a.e("s_mov_b32 s43, 0")
    a.e("FB_ml:")
    for i in range(2):
        a.e(f"s_add_u32 s45, s42, {i * 8192}")
        a.e("s_memtime s[34:35]"); a.e("s_waitcnt lgkmcnt(0)")
        a.e(f"buffer_load_dword v{vd+1}, v{vd+2}, s[56:59], s45 offen {SC}"); a.e("s_waitcnt vmcnt(0)")
        a.e("s_memtime s[36:37]"); a.e("s_waitcnt lgkmcnt(0)")
        a.e("s_sub_u32 s36, s36, s34"); a.e(f"s_min_u32 s{46+i}, s{46+i}, s36")
    a.e("s_add_u32 s42, s42, 128"); a.e("s_add_u32 s43, s43, 1"); a.e(f"s_cmp_lt_u32 s43, {NSAMP}"); a.e("s_cbranch_scc1 FB_ml")
    a.e("s_cmp_lt_u32 s47, s46"); a.e("s_cselect_b32 s45, 1, 0")
    a.e("s_lshr_b32 s46, s28, 2"); a.e("s_xor_b32 s45, s45, s46"); a.e("s_and_b32 s45, s45, 1"); a.e("s_lshl_b32 s45, s45, 8")
    a.e("s_mov_b64 exec, -1")
    lds_set(a, LW + 32, "s45", pt)
    a.e("FB_np:")
    mstamp(a)
    a.e("s_cmp_lg_u32 s30, 4"); a.e("s_cbranch_scc1 FB_ni")
    a.e(f"v_mov_b32 v{vd}, s52")
    group_off(a, 37, 28); a.e("s_andn2_b32 s37, s37, 0x2000"); a.e("s_lshl_b32 s53, s29, 7"); a.e("s_add_u32 s37, s37, s53"); a.e(f"s_add_u32 s37, s37, {oSM}")
    a.e(f"v_and_b32 v{vd+1}, 1, v1"); a.e(f"v_lshlrev_b32 v{vd+1}, 13, v{vd+1}"); a.e(f"v_lshrrev_b32 v{vd+2}, 1, v1"); a.e(f"v_lshl_add_u32 v{vd+1}, v{vd+2}, 22, v{vd+1}")
    a.e("s_mov_b64 exec, 0xf"); a.e(f"buffer_store_dword v{vd}, v{vd+1}, s[56:59], s37 offen {SC}")
    a.e("s_cmp_lg_u32 s28, 0"); a.e("s_cbranch_scc1 FB_n2")
    a.e(f"s_add_u32 s37, s53, {F_CS}"); a.e("s_mov_b64 exec, 1"); a.e(f"buffer_store_dword v{vd}, v{vd+1}, s[56:59], s37 offen {SC}")
    a.e("FB_n2:")
    a.e("s_mov_b64 exec, -1")
    a.e("FB_ni:")
    UG = (LW + 20, 4) if os.environ.get("UG", "1") == "1" else (LW + 16, 1)
    lds_spin(a, *UG, pt, nap=2)
    mstamp(a)
    if TLBW:
        a.e("s_cmp_lg_u32 s30, 4"); a.e("s_cbranch_scc1 FB_nt")
        a.e(f"s_load_dwordx2 s[8:9], s[0:1], {D_OUT}")
        a.srd(20, 4, 192 * MB)
        group_off(a, 34, 28)
        a.e("s_sub_u32 s36, s28, 1"); a.e("s_max_i32 s36, s36, 0"); group_off(a, 35, 36)
        a.e("s_add_u32 s36, s28, 1"); a.e("s_min_u32 s36, s36, 15"); group_off(a, 37, 36)
        a.e(f"v_lshlrev_b32 v{vd}, 21, v1"); a.e(f"v_add_u32 v{vd}, {HSB - 8 * 2 * MB}, v{vd}")
        for l, (r, o) in enumerate([(34, 0), (34, oP0 if TLBW == 2 else 4 * MB), (35, 0), (37, 0)]):
            for ly in range(2):
                a.e(f"s_add_u32 s36, s{r}, {o + ly * LSTR}"); a.e(f"v_writelane_b32 v{vd}, s36, {2*l+ly}")
        a.e("s_bfm_b64 exec, 20, 0"); a.e(f"buffer_{'store' if TLBW == 2 else 'load'}_dword v{dm}, v{vd}, s[20:23], 0 offen {SC}")
        a.e("s_waitcnt lgkmcnt(0)"); a.e(f"s_mov_b32 s10, {4*MB}"); a.e("s_mov_b32 s11, 0x20000")
        a.e("s_mov_b64 exec, 1"); a.e(f"buffer_load_dword v{dm+1}, v{RRO}, s[8:11], 0 offen {SC}"); a.e("s_mov_b64 exec, -1")
        a.e("FB_nt:")
    if os.environ.get("W2T", "1") == "2": lds_spin(a, LW + 24, 2, pt, nap=4)
    if os.environ.get("W2T", "1") == "3":
        w_srd(a, 2); a.e("s_lshl_b32 s39, s28, 1"); a.e("s_and_b32 s36, s30, 1"); a.e("s_add_u32 s39, s39, s36"); a.e("s_lshl_b32 s39, s39, 16"); a.e("s_lshl_b32 s36, s29, 7"); a.e("s_add_u32 s39, s39, s36")
        for i in range(4): a.e(f"buffer_load_dwordx4 {vr(dm,4)}, v{WVB[2]}, s[12:15], s39 offen"); a.e("s_add_u32 s39, s39, 16384")
    elif os.environ.get("W2T", "1") != "0" and not TE: touch(a, B_W2, 2 * MB, dm)
    QL = int(os.environ.get("QL", "3"))
    if not QL: load_q(a)
    if W4POS == "F": lds_spin(a, LW + 24, 2, pt, nap=4); a.e("s_waitcnt vmcnt(0)")
    if W4POS in ("F", "F0"): touch(a, B_W4, 7 * MB, dm)
    PZF = int(os.environ.get("PZF", "0"))
    if PZF:
        a.srd(20, 4, 32 * MB, off=216 * MB)
        for i in range(4): a.e(f"v_mov_b32 v{216+i}, -1")
        a.e("s_lshl_b32 s45, s2, 1"); a.e("s_and_b32 s50, s30, 1"); a.e("s_add_u32 s45, s45, s50"); a.e(f"s_mul_i32 s45, s45, {PZF*1024}")
        for i in range(PZF):
            a.e(f"buffer_store_dwordx4 v[216:219], v2, s[20:23], s45 offen {SC}"); a.e("s_add_u32 s45, s45, 1024")
            if os.environ.get("PZP"): a.e(f"s_waitcnt vmcnt({os.environ['PZP']})")
    front_arrive(a, True)
    if TAB: tab_make(a, 0)
    PKW = int(os.environ.get("PKW", "2")); PKP = int(os.environ.get("PKP", "8"))
    W1P = int(os.environ.get("W1P", "8")); FO = os.environ.get("FO", "1pd"); FO2 = os.environ.get("FO2", "1pd")
    R1 = [176, 188, 192] + [200 + 4 * i for i in range(7)] + [16 + 4 * i for i in range(8)]
    def w1_regs(a):
        w_srd(a, 1)
        a.e("s_and_b32 s35, s30, 3"); a.e(f"s_mul_i32 s35, s35, {18*16384}"); a.e("s_lshl_b32 s39, s99, 7"); a.e("s_add_u32 s39, s39, s35")
        for q in range(18):
            a.e(f"buffer_load_dwordx4 {vr(R1[q],4)}, v{WVB[1]}, s[12:15], s39 offen"); a.e("s_add_u32 s39, s39, 16384")
            if q % 4 == 3: sb(a, SB[1])
            if PKP and q % 4 == 3: a.e(f"s_waitcnt vmcnt({PKP})")
        if QL == 1: load_q(a)
    def w1_put(a):
        a.e("s_and_b32 s35, s30, 3"); a.e(f"s_mul_i32 s35, s35, {18*1024}"); a.e("v_add_u32 v8, s35, v2")
        if PUTE: lds_spin(a, LW + 20, 8, pt, nap=2)
        else: lds_spin(a, LW + 4, 16, pt, nap=2)
        a.e("s_waitcnt vmcnt(0)")
        for q in range(18): a.e(f"ds_write_b128 v8, {vr(R1[q],4)} offset:{CFG[1]['WB'] + 1024*q}")
        a.e("s_waitcnt lgkmcnt(0)")
    def w1_dma(a, js):
        lds_spin(a, LW + 24, 4, pt, nap=3)
        w_setup(a, 1, pre=False)
        for j in js: w1_slots(a, (j,), pace=W1P); ypause(a)
    DS_ = int(os.environ.get("DSPL", "12"))
    if PKW: lds_spin(a, LW + 24, PKW, pt, nap=4)
    for ch in FO:
        if ch == "d": w1_dma(a, range(9, DS_))
        else: call(a, {"1": w1_regs, "p": park}[ch])
    mstamp(a)
    call(a, w1_put)
    a.e("s_branch FR_end")
    a.e("FB_cs:")
    S1, S3 = KVS - CFG[1]["WB"], KVS + 8192 - CFG[3]["WB"]
    pos = cs_prep(a, S1, S3)
    lds_spin(a, *UG, pt, nap=2)
    mstamp(a)
    if not QL: load_q(a)
    cs_load(a, 1, S1)
    if not NOCS3: cs_load(a, 3, S3)
    a.e(f"s_waitcnt vmcnt({0 if NOCS3 else 14})")
    if CSPRIO: a.e(f"s_setprio {CSPRIO}")
    cs_sum(a, 1, pos)
    a.e("s_waitcnt vmcnt(1)")
    a.e(f"v_mov_b32 v{pt}, {LW+24}"); a.e(f"v_mov_b32 v{pt+1}, 1")
    a.e("s_mov_b64 exec, 1"); a.e(f"ds_add_u32 v{pt}, v{pt+1}"); a.e("s_mov_b64 exec, -1")
    mstamp(a)
    if not NOCS3: cs_sum(a, 3, pos)
    front_arrive(a, False)
    if TAB: tab_make(a, 1)
    a.e(f"v_mov_b32 v{pt}, {LW+24}"); a.e(f"v_mov_b32 v{pt+1}, 1")
    a.e("s_mov_b64 exec, 1"); a.e(f"ds_add_u32 v{pt}, v{pt+1}"); a.e("s_mov_b64 exec, -1")
    mstamp(a)
    a.e("s_setprio 0")
    assert CFG[1]["WB"] + 9 * 8192 == KVS
    for ch in FO2:
        if ch == "d": w1_dma(a, range(DS_, 16))
        else: call(a, {"1": w1_regs, "p": park}[ch])
    mstamp(a)
    call(a, w1_put)

def front_conv(a):
    v = VA(6); lane = 1; l16 = 2
    t = v(); pt = v(4, 2)
    chan_setup(a, 30)
    a.e("s_and_b32 s36, s39, 127"); a.e("s_lshl_b32 s36, s36, 12"); a.e("s_lshr_b32 s37, s39, 7"); a.e("s_lshl_b32 s37, s37, 24")
    a.e("s_add_u32 s36, s36, s37"); a.e(f"s_add_u32 s36, s36, {LB0 + oX3}")
    a.e("s_add_u32 s16, s4, s36"); a.e("s_addc_u32 s17, s5, 0"); a.e("s_mov_b32 s18, 4096"); a.e("s_mov_b32 s19, 0x20000")
    uw = v(); u = v(16, 4)
    a.e(f"v_lshrrev_b32 v{t}, 2, v{lane}"); a.e(f"v_mul_u32_u24 v{uw}, {US}, v{t}"); a.e(f"v_and_b32 v{t}, 3, v{lane}")
    a.e(f"v_lshl_add_u32 v{uw}, v{t}, 4, v{uw}"); a.e(f"v_add_u32 v{uw}, s40, v{uw}")
    aa = v(); ba = v(); ua = v(); J = v(); G = v()
    a.e(f"v_and_b32 v{J}, 15, v{lane}"); a.e(f"v_lshrrev_b32 v{G}, 4, v{lane}")
    a.e(f"v_and_b32 v{t}, 3, v{J}"); a.e(f"v_mul_u32_u24 v{aa}, {HSTR}, v{t}")
    a.e(f"v_lshl_add_u32 v{aa}, v{G}, 4, v{aa}"); a.e(f"v_lshrrev_b32 v{t}, 2, v{J}"); a.e(f"v_lshl_add_u32 v{aa}, v{t}, 3, v{aa}")
    a.e(f"v_add_u32 v{aa}, s40, v{aa}")
    a.e(f"v_sub_u32 v{t}, 15, v{J}"); a.e(f"v_mul_u32_u24 v{ua}, {US}, v{t}"); a.e(f"v_add_u32 v{ua}, s40, v{ua}")
    a.e(f"v_lshl_add_u32 v{ba}, v{G}, 4, v{ua}")
    acc = v(32, 4)
    fa = v(64, 4); fb = v(32, 4)
    def rdA(p, o):
        return [f"ds_read_b64 {vr(fa+32*p+8*s_+4*mt+2*h,2)}, v{aa} offset:{64*(o+16*s_) + 32*mt + 8*h}" for s_ in range(4) for mt in range(2) for h in range(2)]
    def rdB(p, o):
        return [f"ds_read_b128 {vr(fb+16*p+4*k,4)}, v{ba} offset:{UOFF + (48 - 16*k + o)*US}" for k in range(4)]
    for x in rdA(0, 0): a.e(x)
    dm_ = fb + 16; Dv = pt + 2
    a.e("s_bitcmp1_b32 s39, 0"); a.e("s_cselect_b32 s36, 0, 16"); a.e("s_lshl_b32 s41, s98, s36"); a.e("s_and_b32 s41, s41, 0xffff0000"); a.e("s_lshr_b32 s36, s41, 16")
    a.e(f"v_lshl_add_u32 v{t}, v{G}, 3, v{J}"); a.e(f"v_sub_u32 v{t}, 31, v{t}")
    a.e(f"v_mov_b32 v{Dv}, s36"); a.e(f"v_mov_b32 v{Dv+1}, s41"); a.e(f"v_and_b32 v{pt}, 1, v{t}"); a.e(f"v_cmp_eq_u32 vcc, 1, v{pt}")
    a.e(f"v_cndmask_b32 v{Dv}, v{Dv}, v{Dv+1}, vcc"); a.e(f"v_ashrrev_i32 v{t}, 1, v{t}")
    for mt in range(2):
        for d_ in range(4): a.e(f"v_cmp_eq_u32 vcc, {8*mt+d_}, v{t}"); a.e(f"v_cndmask_b32 v{dm_+4*mt+d_}, 0, v{Dv}, vcc")
    a.srd(12, 4, 8 * GSTR - oHS, off=LB0 + oHS)
    ta = v(); go = v()
    a.e(f"v_bfe_u32 v{t}, v{lane}, 2, 2"); a.e(f"v_mul_u32_u24 v{ta}, {CHB+64}, v{t}")
    a.e(f"v_lshrrev_b32 v{t}, 1, v{G}"); a.e(f"v_mul_u32_u24 v{t}, 72, v{t}"); a.e(f"v_add_u32 v{ta}, v{ta}, v{t}")
    a.e(f"v_and_b32 v{t}, 1, v{G}"); a.e(f"v_lshl_add_u32 v{ta}, v{t}, 5, v{ta}")
    a.e(f"v_and_b32 v{t}, 3, v{lane}"); a.e(f"v_lshl_add_u32 v{ta}, v{t}, 3, v{ta}")
    a.e(f"s_mul_i32 s36, s30, {16*72}"); a.e(f"v_add_u32 v{ta}, s36, v{ta}")
    a.e(f"v_lshlrev_b32 v{go}, 3, v{lane}")
    a.e("s_lshl_b32 s44, s38, 11"); a.e("s_and_b32 s37, s30, 1"); a.e("s_lshl_b32 s37, s37, 10"); a.e("s_add_u32 s44, s44, s37")
    a.e("s_lshr_b32 s37, s30, 1"); a.e("s_lshl_b32 s37, s37, 26"); a.e("s_add_u32 s44, s44, s37")
    ev = ua; a.e(f"v_not_b32 v{ev}, v{lane}"); a.e(f"v_and_b32 v{ev}, 1, v{ev}")
    ya = v()
    a.e(f"s_mul_i32 s36, s30, {CHB+64}")
    a.e(f"v_mul_u32_u24 v{ya}, 72, v{J}"); a.e(f"v_lshl_add_u32 v{ya}, v{G}, 3, v{ya}"); a.e(f"v_add_u32 v{ya}, s36, v{ya}")
    a.e("s_cmp_lg_u32 s30, 0"); a.e("s_cbranch_scc1 CV_w")
    a.e("s_and_b32 s36, s2, 7"); a.e("s_lshl_b32 s36, s36, 12"); a.e(f"s_add_u32 s36, s36, {F_KVT}")
    a.e(f"v_lshlrev_b32 v{pt+1}, 7, v{lane}"); a.e(f"v_add_u32 v{pt+1}, s36, v{pt+1}")
    poll_core(a, pt, [pt + 1], 0xffffffff)
    lds_set(a, LW + 16, 1, pt)
    a.e("CV_w:")
    lds_spin(a, LW + 16, 1, pt)
    mstamp(a)
    for it in range(4): a.e(f"buffer_load_dwordx4 {vr(u+4*it,4)}, v{l16}, s[16:19], 0 offen offset:{1024*it} {os.environ.get('UF', SC)}")
    QL = int(os.environ.get("QL", "3"))
    if not QL: load_q(a)
    for it in range(4):
        a.e(f"s_waitcnt vmcnt({(3 if QL else 7)-it})")
        a.e(f"ds_write_b128 v{uw}, {vr(u+4*it,4)} offset:{UOFF + 16*US*it}")
    a.e(f"v_mov_b32 v{pt}, {LW+20}"); a.e(f"v_mov_b32 v{pt+1}, 1")
    a.e("s_mov_b64 exec, 1"); a.e(f"ds_add_u32 v{pt}, v{pt+1}"); a.e("s_mov_b64 exec, -1")
    a.e("s_waitcnt lgkmcnt(0)")
    mstamp(a)
    for x in rdB(0, 0): a.e(x)
    for c_ in range(4):
        a.e(f"s_waitcnt lgkmcnt({3-c_})")
        for mt in range(2): a.e(f"v_mfma_f32_16x16x32_bf16 {vr(acc+8*c_+4*mt,4)}, {vr(dm_+4*mt,4)}, {vr(fb+4*c_,4)}, 0")
    def step(p, nxt, tail, piped=False):
        a.e(f"s_waitcnt lgkmcnt({10 if piped else 0})")
        mf = [(c_, s_, mt) for s_ in range(4) for mt in range(2) for c_ in range(s_, 4)]
        for i, (c_, s_, mt) in enumerate(mf):
            A = acc + 8 * c_ + 4 * mt
            a.e(f"v_mfma_f32_16x16x32_bf16 {vr(A,4)}, {vr(fa+32*p+8*s_+4*mt,4)}, {vr(fb+16*p+4*(c_-s_),4)}, {vr(A,4)}")
            if nxt: a.e(nxt.pop(0))
            if piped and i == 9: a.e("s_waitcnt lgkmcnt(10)")
            for x in tail.pop(i, []) if tail else []: a.e(x)
        assert not nxt and not tail
    a.e("s_mov_b32 s43, 0")
    NU = int(os.environ.get("NU", "4")); HP = int(os.environ.get("HP", "0"))
    if NU:
        a.e("CV_r:")
        for p in range(2):
            rd = rdB(1 - p, p + 1) + rdA(1 - p, p + 1)
            step(p, rd[:HP], [])
            for x in rd[HP:]: a.e(x)
        for x in [f"v_add_u32 v{aa}, 128, v{aa}", f"v_add_u32 v{ba}, {2*US}, v{ba}", "s_add_u32 s43, s43, 1", f"s_cmp_lt_u32 s43, {NU}"]: a.e(x)
        a.e("s_cbranch_scc1 CV_r")
    if QL == 1: load_q(a)
    a.e("CV_l:")
    step(0, rdB(1, 1) + rdA(1, 1), [], True)
    step(1, rdB(0, 2) + rdA(0, 2), {19: [f"v_add_u32 v{aa}, 128, v{aa}"], 5: [f"v_add_u32 v{ba}, {2*US}, v{ba}"], 6: ["s_add_u32 s43, s43, 1"], 7: ["s_cmp_lt_u32 s43, 8"]}, True)
    a.e("s_cbranch_scc1 CV_l")
    mstamp(a)
    a.e("s_waitcnt lgkmcnt(0)")
    for c_ in range(4):
        for mt in range(2):
            A = acc + 8 * c_ + 4 * mt; O = u + 2 * (c_ * 2 + mt)
            a.e(f"v_cvt_pk_bf16_f32 v{O}, v{A}, v{A+1}"); a.e(f"v_cvt_pk_bf16_f32 v{O+1}, v{A+2}, v{A+3}")
            a.e(f"ds_write_b64 v{ya}, {vr(O,2)} offset:{c_*16*72 + mt*32}")
    lbar(a, 1, pt)
    for i in range(8): a.e(f"ds_read_b64_tr_b16 {vr(fa+32+2*i,2)}, v{ta} offset:{144*i}")
    for i in range(8):
        a.e(f"s_waitcnt lgkmcnt({7-i})")
        a.e(f"v_or_b32 v{fa+32+2*i}, v{ev}, v{fa+32+2*i}")
        a.e(f"buffer_store_dwordx2 {vr(fa+32+2*i,2)}, v{go}, s[12:15], s44 offen offset:{512*(i&1)} {SC}")
        if i & 1: a.e(f"s_add_u32 s44, s44, {GSTR}")
    if PUTE:
        a.e(f"v_mov_b32 v{pt}, {LW+20}"); a.e(f"v_mov_b32 v{pt+1}, 1")
        a.e("s_mov_b64 exec, 1"); a.e(f"ds_add_u32 v{pt}, v{pt+1}"); a.e("s_mov_b64 exec, -1")
    assert v.hi <= 176

PK = 48; W3S = 176
RFO, RYO, RRO, RI, RXA, RXB, RYY, RT = 196, 197, 198, 199, 180, 188, 230, 228
def r_addr(a, full=True):
    t, t2, I, fo, ro, yo = RT, RT + 1, RI, RFO, RRO, RYO
    a.e(f"v_and_b32 v{I}, 7, v0")
    a.e(f"v_lshrrev_b32 v{t}, 6, v0"); a.e(f"v_lshlrev_b32 v{t}, 4, v{t}"); a.e(f"v_bfe_u32 v{t2}, v0, 3, 3"); a.e(f"v_add_u32 v{t}, v{t}, v{t2}")
    a.e("s_lshr_b32 s78, s29, 1"); a.e("s_lshl_b32 s78, s78, 16"); a.e("s_and_b32 s79, s29, 1"); a.e("s_lshl_b32 s79, s79, 7"); a.e("s_add_u32 s78, s78, s79")
    a.e("s_lshr_b32 s79, s30, 1"); a.e("s_lshl_b32 s79, s79, 13"); a.e("s_add_u32 s78, s78, s79")
    a.e(f"v_lshlrev_b32 v{fo}, 8, v{t}"); a.e(f"v_lshl_add_u32 v{fo}, v{I}, 4, v{fo}"); a.e(f"v_add_u32 v{fo}, s78, v{fo}")
    if not full: return
    a.e("s_lshl_b32 s78, s28, 7"); a.e("s_lshl_b32 s79, s29, 3"); a.e("s_add_u32 s78, s78, s79")
    a.e(f"v_add_u32 v{yo}, s78, v{I}"); a.e(f"v_lshlrev_b32 v{ro}, 11, v{yo}")
    a.e(f"v_lshrrev_b32 v{t2}, 2, v{t}"); a.e(f"v_lshlrev_b32 v{t2}, 3, v{t2}"); a.e(f"v_and_b32 v{t}, 3, v{t}"); a.e(f"v_add_u32 v{t}, v{t}, v{t2}")
    a.e(f"v_lshl_add_u32 v{ro}, v{t}, 3, v{ro}")
    a.e(f"v_and_b32 v{yo}, 127, v{yo}"); a.e(f"v_lshlrev_b32 v{yo}, 3, v{yo}"); a.e(f"v_lshl_add_u32 v{yo}, v{t}, 11, v{yo}")
    a.e("s_lshr_b32 s78, s28, 3"); a.e("s_lshl_b32 s78, s78, 2"); a.e("s_and_b32 s79, s28, 3"); a.e("s_add_u32 s78, s78, s79"); a.e("s_lshl_b32 s78, s78, 24")
    a.e("s_and_b32 s79, s28, 4"); a.e("s_lshl_b32 s79, s79, 8"); a.e("s_add_u32 s78, s78, s79"); a.e(f"v_add_u32 v{yo}, s78, v{yo}")
def load_y(a, skip_last=False):
    a.srd(80, 4, 8 * GSTR - oHS, off=LB0 + oHS)
    for j in range(2):
        for hh in range(2):
            a.e(f"s_mov_b32 s78, {(16*j + 4*hh)*2048}")
            a.e(f"buffer_load_dwordx2 {vr(RYY+4*j+2*hh,2)}, v{RYO}, s[80:83], s78 offen {os.environ.get('YF', SC)}")
def r_pre(a, l0=False):
    r_addr(a, False)
    lsrd(a, 84, oX3, XSZ); lsrd(a, 88, oX1P, XSZ)
    if l0: a.e("s_cmp_eq_u32 s60, 0"); a.e("s_cselect_b32 s86, s86, 0"); a.e("s_cselect_b32 s90, s90, 0")
    for j in range(2):
        a.e(f"buffer_load_dwordx4 {vr(RXA+4*j,4)}, v{RFO}, s[84:87], 0 offen offset:{2048*j} {SC}")
        a.e(f"buffer_load_dwordx4 {vr(RXB+4*j,4)}, v{RFO}, s[88:91], 0 offen offset:{2048*j} {SC}")
def r_pre0(a): a.e("s_waitcnt lgkmcnt(0)"); r_pre(a, True)

def r_stage(a, final):
    v = VA(6)
    t = v(); t2 = v(); I = RI; fo = RFO; ro = RRO; pt = v(4, 2)
    xa = RXA; xb = RXB; yy = RYY; x = 206; yf = 222; w = v(16, 4); tmp = v()
    pre = final == "pre"
    S = v(2, 2); pp = v(2, 2); qq = v(2, 2); st = w; mean = v(2, 2); rs = mean + 1; var = v(); sw = v(); sr = v()
    def part(src, n):
        a.e(f"v_pk_add_f32 {vr(pp,2)}, {vr(src,2)}, {vr(src+2,2)}"); a.e(f"v_pk_mul_f32 {vr(qq,2)}, {vr(src,2)}, {vr(src,2)}")
        for i in range(1, 8):
            if i > 1: a.e(f"v_pk_add_f32 {vr(pp,2)}, {vr(pp,2)}, {vr(src+2*i,2)}")
            a.e(f"v_pk_fma_f32 {vr(qq,2)}, {vr(src+2*i,2)}, {vr(src+2*i,2)}, {vr(qq,2)}")
        a.e(f"v_add_f32 v{S}, v{pp}, v{pp+1}"); a.e(f"v_add_f32 v{S+1}, v{qq}, v{qq+1}")
        for k in range(2): a.e(f"v_add_f32_dpp v{S+k}, v{S+k}, v{S+k} row_ror:8 row_mask:0xf bank_mask:0xf")
        for op in ("v_permlane16_swap_b32", "v_permlane32_swap_b32"):
            for k in range(2): a.e(f"v_mov_b32 v{pp+k}, v{S+k}")
            for k in range(2): a.e(f"{op} v{S+k}, v{pp+k}")
            a.e(f"v_pk_add_f32 {vr(S,2)}, {vr(S,2)}, {vr(pp,2)}")
        a.e(f"ds_write_b64 v{sw}, {vr(S,2)} offset:{n*512}")
    def comb(n):
        for k in range(4): a.e(f"ds_read_b128 {vr(st+4*k,4)}, v{sr} offset:{n*512+16*k}")
        a.e("s_waitcnt lgkmcnt(0)")
        for k in range(4): a.e(f"v_pk_add_f32 {vr(st+4*k,2)}, {vr(st+4*k,2)}, {vr(st+4*k+2,2)}")
        a.e(f"v_pk_add_f32 {vr(st,2)}, {vr(st,2)}, {vr(st+4,2)}"); a.e(f"v_pk_add_f32 {vr(st+8,2)}, {vr(st+8,2)}, {vr(st+12,2)}")
        a.e(f"v_pk_add_f32 {vr(st,2)}, {vr(st,2)}, {vr(st+8,2)}")
        a.e(f"v_mul_f32 v{mean}, {f32(1/1024)}, v{st}"); a.e(f"v_mul_f32 v{var}, {f32(1/1024)}, v{st+1}")
        a.e(f"v_fma_f32 v{var}, -v{mean}, v{mean}, v{var}"); a.e(f"v_max_f32 v{var}, 0, v{var}")
    SUBM = f"{vr(mean,2)} op_sel_hi:[1,0] neg_lo:[0,1] neg_hi:[0,1]"; MULR = f"{vr(mean,2)} op_sel:[0,1] op_sel_hi:[1,1]"
    if pre: a.e("s_waitcnt lgkmcnt(0)")
    if final is not True:
        a.e(f"v_lshlrev_b32 v{sr}, 6, v{I}"); a.e(f"v_add_u32 v{sr}, {AUX+2048}, v{sr}")
        a.e(f"s_lshl_b32 s35, s30, 3"); a.e(f"v_add_u32 v{sw}, s35, v{sr}")
    if pre:
        a.e("s_waitcnt vmcnt(0)")
        for i in range(8): unpack(a, x + 2 * i, x + 2 * i + 1, xa + i)
        part(x, 0)
        a.e("s_waitcnt lgkmcnt(0)"); a.e("s_barrier")
        return
    if not final:
        a.e(f"s_cmp_eq_u32 s60, 0"); a.e(f"s_cbranch_scc1 R_l0")
    else:
        a.e(f"s_load_dwordx2 s[6:7], s[0:1], {D_OUT}")
    lsrd(a, 8, oP0, XSZ, prev=True); lsrd(a, 12, oP1, XSZ, prev=True)
    lsrd(a, 20, oX3, XSZ); a.e("s_mov_b32 s78, 0x3f80"); a.e("s_mov_b32 s79, 0x3f800000")
    if "r" not in DP: a.e("s_waitcnt vmcnt(0)")
    for i in range(8):
        if not final: unpack(a, yf + 2 * i, yf + 2 * i + 1, yy + i)
        unpack(a, x + 2 * i, x + 2 * i + 1, xa + i); unpack(a, w + 2 * i, w + 2 * i + 1, xb + i)
        a.e(f"v_pk_add_f32 {vr(x+2*i,2)}, {vr(x+2*i,2)}, {vr(w+2*i,2)}")
    lds_ = [f"buffer_load_dwordx4 {vr(r+4*j,4)}, v{fo}, s[{q}:{q+3}], 0 offen offset:{2048*j} {SC}" for j in range(2) for r, q in ((xa, 8), (xb, 12))]
    if "r" in DP: data_poll(a, lds_, (xa, xa + 4, xb, xb + 4), t, int(os.environ.get("RNAP", "4")), int(os.environ.get("RFIRST", "24")), int(os.environ.get("RCAN", "0"))); mstamp(a)
    else:
        poll(a, ST_G4, pt, prev=True)
        mstamp(a)
        for x_ in lds_: a.e(x_)
    for i in range(8):
        if i % 4 == 0 and "r" not in DP: a.e(f"s_waitcnt vmcnt({2 - i // 2})")
        u = w + 4 * (i & 3)
        if DOT:
            if i == 0:
                for r_ in (xa, xb):
                    for k in range(16): a.e(f"v_dot2_f32_bf16 v{x+k}, v{r_+k//2}, s{78+(k&1)}, v{x+k}")
                a.e("s_nop 2")
            continue
        unpack(a, u, u + 1, xa + i); unpack(a, u + 2, u + 3, xb + i)
        a.e(f"v_pk_add_f32 {vr(u,2)}, {vr(u,2)}, {vr(u+2,2)}")
        a.e(f"v_pk_add_f32 {vr(x+2*i,2)}, {vr(x+2*i,2)}, {vr(u,2)}")
        if final: a.e(f"v_cvt_pk_bf16_f32 v{xa+i}, v{x+2*i}, v{x+2*i+1}")
        else: round2(a, x + 2 * i, x + 2 * i + 1, tmp)
    if final:
        a.e("s_waitcnt lgkmcnt(0)")
        a.srd(20, 6, 4 * MB)
        OS = os.environ.get("OS", "sc1")
        if os.environ.get("OWIDE", "1") == "1":
            a.e(f"v_bfe_u32 v{t}, v1, 3, 1"); a.e(f"v_cmp_eq_u32 vcc, 1, v{t}")
            for j in range(2):
                lo, hi = xa + 4 * j, xa + 4 * j + 2
                for e in range(2):
                    a.e(f"v_cndmask_b32 v{x+e}, v{hi+e}, v{lo+e}, vcc")
                for e in range(2):
                    a.e(f"v_mov_b32_dpp v{x+2+e}, v{x+e} row_ror:8 row_mask:0xf bank_mask:0xf")
                for e in range(2):
                    a.e(f"v_cndmask_b32 v{x+4+e}, v{lo+e}, v{x+2+e}, vcc"); a.e(f"v_cndmask_b32 v{hi+e}, v{x+2+e}, v{hi+e}, vcc")
                for e in range(2): a.e(f"v_mov_b32 v{lo+e}, v{x+4+e}")
            a.e(f"v_bfe_u32 v{t2}, v1, 4, 1"); a.e(f"v_lshlrev_b32 v{t}, 5, v{t}"); a.e(f"v_lshl_add_u32 v{t}, v{t2}, 4, v{t}")
            a.e(f"v_and_b32 v{t2}, 0xffffffc0, v{ro}"); a.e(f"v_add_u32 v{t}, v{t}, v{t2}")
            for j in range(2): a.e(f"buffer_store_dwordx4 {vr(xa+4*j,4)}, v{t}, s[20:23], 0 offen offset:{128*j} {OS}")
        else:
            for j in range(4): a.e(f"buffer_store_dwordx2 {vr(xa+2*j,2)}, v{ro}, s[20:23], 0 offen offset:{128*(j>>1) + 32*(j&1)} {OS}")
        return v.hi
    part(x, 0)
    if os.environ.get("RST"): mstamp(a)
    a.e("s_waitcnt lgkmcnt(0)"); a.e("s_barrier")
    if os.environ.get("RST"): mstamp(a)
    comb(0)
    ln_finish(a, mean, var, rs)
    if os.environ.get("RST"): mstamp(a)
    a.e(f"v_mul_f32 v{mean}, v{mean}, v{rs}")
    for i in range(8): a.e(f"v_pk_fma_f32 {vr(w+2*i,2)}, {vr(x+2*i,2)}, {vr(mean,2)}, {vr(mean,2)} op_sel:[0,1,0] op_sel_hi:[1,1,0] neg_lo:[0,0,1] neg_hi:[0,0,1]")
    for i in range(8):
        D = w + 2 * i
        a.e(f"v_pk_fma_f32 {vr(x+2*i,2)}, {vr(D,2)}, {vr(yf+2*i,2)}, {vr(x+2*i,2)}")
        a.e(f"v_cvt_pk_bf16_f32 v{xa+i}, v{x+2*i}, v{x+2*i+1}")
        if i % 4 == 1 and DP: mark(a, xa + i - 1, 0)
        if i % 4 == 3: a.e(f"buffer_store_dwordx4 {vr(xa+i-3,4)}, v{fo}, s[20:23], 0 offen offset:{2048*(i//4)} {SC}")
    if os.environ.get("RST"): mstamp(a)
    a.e("s_branch R_s2")
    a.e("R_l0:")
    for i in range(8): unpack(a, x + 2 * i, x + 2 * i + 1, xa + i)
    part(x, 0)
    a.e("s_waitcnt lgkmcnt(0)")
    st_ = st; st = yf
    a.e(f"s_cmp_lg_u32 s30, {os.environ.get('FPW', '4')}"); a.e("s_cbranch_scc1 R_fw")
    lds_spin(a, LW + 4, 16, st, nap=int(os.environ.get("NAP4", "4")))
    a.e("s_lshl_b32 s36, s28, 10"); a.e(f"s_add_u32 s36, s36, {F_FRONT}")
    a.e(f"v_lshlrev_b32 v{st+4}, 7, v1"); a.e(f"v_add_u32 v{st+4}, s36, v{st+4}")
    a.e("s_mov_b32 s53, 0"); a.e("s_mov_b64 exec, 0xff")
    a.e("R_fp:")
    a.e(f"buffer_load_dword v{st}, v{st+4}, s[56:59], 0 offen {SC}"); a.e("s_waitcnt vmcnt(0)")
    a.e(f"v_subrev_u32 v{st}, s52, v{st}"); a.e(f"v_and_b32 v{st+1}, 0xffffc0ff, v{st}"); a.e(f"v_cmp_eq_u32 vcc, 32, v{st+1}")
    a.e("s_cmp_eq_u64 vcc, exec"); a.e("s_cbranch_scc1 R_fq")
    a.e(f"s_sleep {FSLEEP}")
    a.e("s_add_u32 s53, s53, 1"); a.e("s_cmp_lt_u32 s53, s61"); a.e("s_cbranch_scc1 R_fp")
    a.e("s_mov_b32 s61, 0")
    a.e("R_fq:")
    a.e(f"v_lshrrev_b32 v{st}, 8, v{st}"); a.e(f"v_mov_b32 v{st+1}, {LW+28}"); a.e(f"ds_add_u32 v{st+1}, v{st}")
    a.e("s_mov_b64 exec, -1"); a.e("s_waitcnt lgkmcnt(0)")
    a.e("R_fw:")
    a.e("s_barrier")
    mstamp(a)
    load_y(a)
    a.e(f"v_mov_b32 v{st}, {LW+28}"); a.e(f"ds_read_b32 v{st+1}, v{st}"); a.e("s_waitcnt lgkmcnt(0)"); a.e(f"v_readfirstlane_b32 s94, v{st+1}")
    if STAMP: a.e("s_mov_b32 s95, s94")
    a.e(f"s_cmp_gt_u32 s94, {NVOTE // 2}"); a.e("s_cselect_b32 s94, 1, 0")
    group_off(a, 55, 28)
    a.e("s_add_u32 s62, s4, s55"); a.e("s_addc_u32 s63, s5, 0")
    a.e("s_sub_u32 s36, s28, 1"); a.e("s_max_i32 s36, s36, 0"); group_off(a, 92, 36); a.e("s_sub_u32 s92, s92, s55")
    a.e("s_add_u32 s36, s28, 1"); a.e("s_min_u32 s36, s36, 15"); group_off(a, 93, 36); a.e("s_sub_u32 s93, s93, s55")
    a.e(f"s_add_u32 s55, s55, {oSM}")
    lsrd(a, 20, oX3, XSZ)
    st = st_; comb(0); ln_finish(a, mean, var, rs); st = yf
    for i in range(8):
        D = w + 2 * i
        a.e(f"v_pk_add_f32 {vr(D,2)}, {vr(x+2*i,2)}, {SUBM}"); a.e(f"v_pk_mul_f32 {vr(D,2)}, {vr(D,2)}, {MULR}")
    a.e("s_waitcnt vmcnt(0)")
    for i in range(8):
        D = w + 2 * i
        unpack(a, st, st + 1, yy + i)
        a.e(f"v_pk_fma_f32 {vr(x+2*i,2)}, {vr(D,2)}, {vr(st,2)}, {vr(x+2*i,2)}"); a.e(f"v_cvt_pk_bf16_f32 v{xa+i}, v{x+2*i}, v{x+2*i+1}")
        if i % 4 == 1 and DP: mark(a, xa + i - 1, 0)
        if i % 4 == 3: a.e(f"buffer_store_dwordx4 {vr(xa+i-3,4)}, v{fo}, s[20:23], 0 offen offset:{2048*(i//4)} {SC}")
    a.e("R_s2:")
    st = st_
    for i in range(8): unpack(a, x + 2 * i, x + 2 * i + 1, xa + i)
    part(x, 1)
    if "1" in DP:
        a.e("s_waitcnt lgkmcnt(0)"); a.e("s_barrier")
        a.e("s_cmp_lg_u32 s30, 6"); a.e("s_cbranch_scc1 R_n6"); a.e("s_cmp_lg_u32 s60, 0"); a.e("s_cbranch_scc1 R_n6")
        a.e("s_lshl_b32 s53, s29, 7"); a.e(f"s_add_u32 s53, s53, {F_CS}"); a.e(f"v_mov_b32 v{pt}, 1"); a.e(f"v_mov_b32 v{pt+1}, 0")
        a.e("s_mov_b64 exec, 1"); a.e(f"buffer_atomic_add v{pt}, v{pt+1}, s[56:59], s53 offen {SC}"); a.e("s_mov_b64 exec, -1")
        a.e("R_n6:")
    else:
        publish(a, ST_R, 8, pt)
        a.e("s_barrier")
    a.e(f"s_cmp_lg_u32 s30, {7 if '1' in DP else 0}"); a.e("s_cbranch_scc1 R_nl")
    comb(1)
    outv = yf + 2; s3 = v(); m4 = v(); v4_ = v(); r4 = v()
    assert v.hi <= PK
    a.e(f"v_mov_b32 v{m4}, v{mean}"); a.e(f"v_mov_b32 v{v4_}, v{var}")
    ln_finish(a, mean, var, rs, s3)
    a.e(f"v_sub_f32 v{m4}, v{m4}, v{mean}"); a.e(f"v_mul_f32 v{m4}, v{m4}, v{rs}")
    a.e(f"v_mul_f32 v{v4_}, v{v4_}, v{rs}"); a.e(f"v_mul_f32 v{v4_}, v{v4_}, v{rs}")
    ln_finish(a, m4, v4_, r4)
    a.e(f"v_mov_b32 v{outv}, v{mean}"); a.e(f"v_mov_b32 v{outv+1}, v{rs}")
    a.e(f"v_fma_f32 v{outv+2}, v{m4}, v{s3}, v{mean}"); a.e(f"v_mul_f32 v{outv+3}, v{rs}, v{r4}")
    lsrd(a, 24, oLNS, 2048)
    a.e("s_lshl_b32 s36, s29, 3"); a.e(f"v_add_u32 v{t}, s36, v{I}"); a.e(f"v_lshlrev_b32 v{t}, 4, v{t}")
    a.e("s_mov_b64 exec, 0xff")
    a.e(f"buffer_store_dwordx4 {vr(outv,4)}, v{t}, s[24:27], 0 offen {SC}")
    a.e("s_mov_b64 exec, -1")
    publish(a, ST_R2, 1, pt)
    a.e("R_nl:")
    return v.hi

TAB = int(os.environ.get("TAB", "1")); TV = 248
def lead(seq, r, L, P=4):
    if L == 0: return list(seq)
    return [x for _, x in sorted(((i - L - 0.5 if i % P == r else i), x) for i, x in enumerate(seq))]
def order3(j, gi):
    mode, L = eval(os.environ.get("O3", "('r',0)"))
    if mode == "r": return [(gi + t) & 15 for t in range(16)]
    if mode == "n": return [gi] + [x for x in lead(range(16), (j + gi) & 3, L) if x != gi]
    if mode == "s": return [gi] + lead([x for x in range(16) if x != gi], (j + gi) & 3, L)
    if mode == "h": return [gi] + [x for x in lead([(t + (gi & 8)) & 15 for t in range(16)], (j + gi) & 3, L) if x != gi]
def order4(j, n):
    mode, L = eval(os.environ.get("O4", "('n',1)"))
    own = [(7 * n + i, 7 * n + 4 + i) for i in range(3)]
    ps = [(n + t) & 7 for t in range(8)] if mode == "r" else list(range(8))
    ab = [(7 * p + i, 7 * p + 4 + i) for i in range(2) for p in ps if p != n]
    c = [7 * p + o for p in ps for o in (2, 6, 3) if p != n or o == 3]
    rest = ab + [(c[2 * i], c[2 * i + 1]) for i in range(11)]
    if mode != "r": rest = lead(rest, (j + n + int(os.environ.get("O4R", "0"))) & 3, L)
    return own + rest
L4 = eval(os.environ.get("O4", "('n',1)"))[1] if TAB else 0
def tab_data(a):
    a.lines.append(".p2align 6"); a.lines.append("K_tab:")
    for gi in range(16):
        for j in range(4):
            o3 = order3(j, gi) + [0] * 16; o4 = order4(j, gi & 7) + [(0, 0)] * 4
            assert sorted(o3[:16]) == list(range(16)) and sorted(sum(o4[:28], ())) == list(range(56))
            a.lines.append(".short " + ",".join(str(o3[t] | o4[t][0] << 4 | o4[t][1] << 10) for t in range(32)))
def tab_load(a):
    a.e("s_getpc_b64 s[34:35]"); a.e("K_tpc:")
    a.e("s_lshl_b32 s36, s29, 2"); a.e("s_and_b32 s37, s28, 3"); a.e("s_add_u32 s36, s36, s37"); a.e("s_lshl_b32 s36, s36, 6")
    a.e("s_add_u32 s36, s36, K_tab-K_tpc"); a.e("s_add_u32 s34, s34, s36"); a.e("s_addc_u32 s35, s35, 0")
    a.e(f"v_and_b32 v{TV}, 31, v1"); a.e(f"v_lshlrev_b32 v{TV}, 1, v{TV}"); a.e(f"global_load_ushort v{TV+3}, v{TV}, s[34:35]")
def tab_make(a, w):
    T, x = TV + 3, TV + 4
    if not w:
        a.e(f"v_bfe_u32 v{x}, v{T}, 2, 2"); a.e(f"v_lshlrev_b32 v{TV}, 14, v{x}"); a.e(f"v_and_b32 v{x}, 3, v{T}"); a.e(f"v_lshl_add_u32 v{TV}, v{x}, 11, v{TV}")
        for lw in range(2):
            a.e(f"v_bfe_u32 v{x}, v{T}, {7+6*lw}, 3"); a.e(f"v_lshlrev_b32 v{TV+1+lw}, 14, v{x}"); a.e(f"v_bfe_u32 v{x}, v{T}, {4+6*lw}, 3"); a.e(f"v_lshl_add_u32 v{TV+1+lw}, v{x}, 10, v{TV+1+lw}")
    else:
        a.e(f"v_and_b32 v{x}, 15, v{T}"); a.e(f"v_mul_u32_u24 v{TV}, {64*7168}, v{x}")
        a.e("s_and_b32 s36, s30, 1"); a.e("s_mul_i32 s36, s36, 6"); a.e("s_add_u32 s36, s36, 4"); a.e(f"v_bfe_u32 v{x}, v{T}, s36, 6")
        assert all((q * 37) >> 8 == q // 7 for q in range(56))
        a.e(f"v_mul_u32_u24 v{TV+2}, 37, v{x}"); a.e(f"v_lshrrev_b32 v{TV+2}, 8, v{TV+2}"); a.e(f"v_mul_u32_u24 v{TV+2}, 7, v{TV+2}"); a.e(f"v_sub_u32 v{TV+2}, v{x}, v{TV+2}")
        a.e(f"v_cmp_eq_u32 vcc, 3, v{TV+2}"); a.e(f"v_cndmask_b32 v{TV+2}, 0, 1, vcc"); a.e(f"v_lshl_add_u32 v{TV+1}, v{x}, 16, v{TV+2}")
        for p_ in eval(os.environ.get("W4SKIP", "[]")): a.e("s_mov_b32 s36, 0x40000000"); a.e(f"v_writelane_b32 v{TV+1}, s36, {p_}")
def rot_init(a, which):
    if which == 3 and TAB: a.e("s_mov_b32 s44, 0")
    elif which == 3 and OWN3: a.e("s_mov_b32 s44, s29")
    elif which != 4: a.e("s_mov_b32 s44, s67")
    else: a.e("s_mov_b32 s44, 0")
def rot_next(a, which):
    a.e("s_add_u32 s44, s44, 1")
    if which != 4: a.e("s_and_b32 s44, s44, 15")
def kb4(a, d, lw):
    a.e("s_lshl_b32 s45, s44, 1"); a.e(f"s_add_u32 s45, s45, {lw}"); a.e("s_sub_u32 s45, s45, 32")
    a.e("s_mul_i32 s46, s45, 86"); a.e("s_lshr_b32 s46, s46, 8")
    a.e("s_mul_i32 s47, s46, 3"); a.e("s_sub_u32 s47, s45, s47"); a.e("s_lshl_b32 s47, s47, 2"); a.e("s_lshr_b32 s47, 0x362, s47"); a.e("s_and_b32 s47, s47, 7")
    a.e("s_cmp_ge_u32 s44, 10"); a.e("s_cselect_b32 s45, 9, 2"); a.e("s_cselect_b32 s51, 1, 0"); a.e("s_sub_u32 s45, s44, s45")
    a.e("s_cmp_lt_u32 s44, 3"); a.e("s_cselect_b32 s45, 0, s45"); a.e("s_cselect_b32 s51, s44, s51")
    a.e(f"s_lshl2_add_u32 s51, {lw}, s51")
    a.e("s_cmp_lt_u32 s44, 17"); a.e("s_cselect_b32 s47, s51, s47"); a.e("s_cselect_b32 s46, s45, s46")
    a.e("s_add_u32 s46, s46, s33"); a.e("s_and_b32 s46, s46, 7"); a.e("s_mul_i32 s46, s46, 7"); a.e(f"s_add_u32 s{d}, s46, s47")
assert all((q * 86) >> 8 == q // 3 for q in range(24))
WVB = {1: 238, 2: 238, 4: 239, 3: 241}
WV = 245
def w_lanes(a):
    t, t2 = WV + 8, WV + 9
    R = WVB[1]
    a.e(f"v_lshrrev_b32 v{t}, 3, v1"); a.e(f"v_lshlrev_b32 v{R}, 11, v{t}")
    a.e(f"v_and_b32 v{t}, 6, v{t}"); a.e(f"v_and_b32 v{t2}, 7, v1"); a.e(f"v_xor_b32 v{t}, v{t}, v{t2}"); a.e(f"v_lshl_add_u32 v{R}, v{t}, 4, v{R}")
    R = WVB[4]
    for p in range(2):
        a.e(f"v_lshrrev_b32 v{t}, 4, v1"); a.e(f"v_lshlrev_b32 v{R+p}, 11, v{t}")
        a.e(f"v_add_u32 v{t}, {4*p}, v{t}"); a.e(f"v_lshlrev_b32 v{t}, 1, v{t}"); a.e(f"v_and_b32 v{t2}, 15, v1"); a.e(f"v_xor_b32 v{t}, v{t}, v{t2}")
        a.e(f"v_lshl_add_u32 v{R+p}, v{t}, 4, v{R+p}")
    R = WVB[3]
    assert all((p * 2341) >> 16 == p // 28 for p in range(448))
    for ii in range(7):
        a.e(f"v_add_u32 v{t2}, {64*ii}, v1"); a.e(f"v_mul_u32_u24 v{t}, 2341, v{t2}"); a.e(f"v_lshrrev_b32 v{t}, 16, v{t}")
        a.e(f"v_mul_u32_u24 v{R+ii}, 28, v{t}"); a.e(f"v_sub_u32 v{t2}, v{t2}, v{R+ii}")
        a.e(f"v_mul_u32_u24 v{R+ii}, 7168, v{t}")
        a.e(f"v_lshrrev_b32 v{t}, 1, v{t}"); a.e(f"v_and_b32 v{t}, 2, v{t}"); a.e(f"v_xor_b32 v{t2}, v{t2}, v{t}")
        a.e(f"v_lshl_add_u32 v{R+ii}, v{t2}, 4, v{R+ii}")
def w_srd(a, which):
    c = CFG[which]
    a.e(f"s_mov_b64 s[12:13], s[{66+2*which}:{67+2*which}]")
    a.e(f"s_mov_b32 s14, {c['KBT'] * 32 * c['LDW']}"); a.e("s_mov_b32 s15, 0x20000")
def w_setup(a, which, pre=True, lo=0):
    c = CFG[which]; STB = c["STB"]; BW = STB // 2
    w_srd(a, which)
    a.e("s_and_b32 s35, s30, 1")
    a.e(f"s_mul_i32 s38, s{(0, 99, 29, 29, 33)[which]}, {c['RB']}");
    if which != 4: a.e(f"s_mul_i32 s41, s35, {32*c['LDW']}"); a.e("s_add_u32 s38, s38, s41")
    if which == 4: a.e(f"s_mul_i32 s41, s31, {1792*c['LDW']}"); a.e("s_add_u32 s38, s38, s41")
    a.e(f"s_mul_i32 s41, s35, {BW}"); a.e(f"s_add_u32 s41, s41, {c['WB']}")
    a.e("s_mov_b32 s42, 0"); rot_init(a, which)
    if not pre: return
    NP = c["NPRE"]
    a.e("s_mov_b32 s49, s44"); a.e("s_and_b32 s43, s28, 3"); a.e(f"s_mul_i32 s43, s43, {NP - lo}"); a.e("s_lshr_b32 s43, s43, 2"); a.e(f"s_mov_b32 s50, {lo}")
    if not WROT: a.e("s_mov_b32 s43, 0")
    if lo: a.e(f"s_add_u32 s43, s43, {lo}")
    L = a.lab("wpre"); a.e(f"{L}:")
    a.e(f"s_mul_i32 s42, s43, {STB}"); a.e("s_add_u32 s44, s49, s43")
    if which != 4: a.e("s_and_b32 s44, s44, 15")
    w_issue(a, which, pace=PACES.get(which, PACE))
    a.e("s_add_u32 s43, s43, 1"); a.e(f"s_cmp_eq_u32 s43, {NP}"); a.e(f"s_cselect_b32 s43, {lo}, s43")
    a.e("s_add_u32 s50, s50, 1"); a.e(f"s_cmp_lt_u32 s50, {NP}"); a.e(f"s_cbranch_scc1 {L}")
    mstamp(a)
    a.e(f"s_mov_b32 s42, {(NP % c['NW']) * STB}"); a.e(f"s_add_u32 s44, s49, {NP}")
    if which != 4: a.e("s_and_b32 s44, s44, 15")
YP = int(os.environ.get("YP", "0"))
def ypause(a):
    if not YP: return
    X = a.lab("yp")
    a.e(f"v_mov_b32 v6, {LW+4}"); a.e("ds_read2_b32 v[14:15], v6 offset0:0 offset1:1"); a.e("s_waitcnt lgkmcnt(0)"); a.e("v_readfirstlane_b32 s53, v15")
    a.e(f"s_cmp_lt_u32 s53, {YP}"); a.e(f"s_cbranch_scc1 {X}")
    lds_spin(a, LW + 4, 16, 6, nap=2)
    a.e(f"{X}:")
def park_load(a, pace):
    w_srd(a, 2)
    a.e("s_and_b32 s35, s30, 3"); a.e("s_lshl_b32 s35, s35, 19"); a.e("s_lshl_b32 s39, s29, 7"); a.e("s_add_u32 s39, s39, s35")
    for q in range(32):
        a.e(f"buffer_load_dwordx4 {vr(PK+4*q,4)}, v{WVB[2]}, s[12:15], s39 offen"); a.e("s_add_u32 s39, s39, 16384")
        if pace and q % 4 == 3: a.e(f"s_waitcnt vmcnt({pace})"); ypause(a)
def park(a): park_load(a, int(os.environ.get("PKP", "8")))
def late_park(a):
    X = a.lab("lp"); a.e("s_cmp_lg_u32 s60, 0"); a.e(f"s_cbranch_scc1 {X}"); call(a, park); a.e(f"{X}:")
def after_g1(a):
    c = CFG[3]
    if os.environ.get("UPD0"): a.e("s_sleep " + os.environ["UPD0"])
    w_srd(a, 3)
    a.e(f"v_readlane_b32 s36, v{TV+3}, 0"); a.e(f"v_readlane_b32 s37, v{TV+3}, 1")
    a.e("s_and_b32 s35, s30, 3"); a.e(f"s_mul_i32 s38, s35, {16*7168}"); a.e("s_mul_i32 s39, s29, 448"); a.e("s_add_u32 s38, s38, s39")
    for r in (36, 37): a.e(f"s_and_b32 s{r}, s{r}, 15"); a.e(f"s_mul_i32 s{r}, s{r}, {64*7168}"); a.e(f"s_add_u32 s{r}, s{r}, s38")
    a.e("s_mul_i32 s39, s35, 7168"); a.e(f"s_add_u32 m0, s39, {c['WB'] + c['S0'] * c['STB']}")
    for i in range(7):
        if i: a.e("s_add_u32 m0, m0, 1024")
        a.e(f"buffer_load_dwordx4 v{WVB[3]+i}, s[12:15], s36 offen lds")
    for i in range(7): a.e(f"buffer_load_dwordx4 {vr(W3S+4*i,4)}, v{WVB[3]+i}, s[12:15], s37 offen")
    a.e("s_lshr_b32 s36, s67, 2"); a.e("s_sub_u32 s36, s35, s36"); a.e("s_and_b32 s36, s36, 3"); a.e("s_lshl_b32 s36, s36, 15"); a.e(f"v_add_u32 v6, s36, v2")
    a.e("s_waitcnt vmcnt(14)")
    if os.environ.get("UPD"): a.e("s_sleep " + os.environ["UPD"])
    for q in range(32): a.e(f"ds_write_b128 v6, {vr(PK+4*q,4)} offset:{CFG[2]['WB'] + 1024*q}")
    a.e("s_waitcnt lgkmcnt(0)")
def after_g2(a):
    c = CFG[3]
    a.e("s_and_b32 s35, s30, 3"); a.e("s_mul_i32 s39, s35, 7168"); a.e(f"s_add_u32 s39, s39, {c['WB'] + (c['S0'] + 1) % c['NW'] * c['STB']}"); a.e("v_add_u32 v6, s39, v2")
    for i in range(7): a.e(f"ds_write_b128 v6, {vr(W3S+4*i,4)} offset:{1024*i}")
    a.e("s_waitcnt lgkmcnt(0)")
SUBX = {}
def call(a, f):
    SUBX[f.__name__] = f; a.e(f"s_call_b64 s[76:77], SUB_{f.__name__}")
def w1_slots(a, js, pace=0):
    for j in js:
        a.e(f"s_mov_b32 s42, {j*8192}"); a.e("s_mov_b32 s44, s67"); a.e(f"s_add_u32 s44, s44, {j}"); a.e("s_and_b32 s44, s44, 15")
        call_issue(a, w_issue, 1)
        if pace: a.e(f"s_waitcnt vmcnt({pace})")
def w1_done(a):
    a.e("s_mov_b32 s42, 0"); a.e("s_mov_b32 s44, s67"); a.e("s_add_u32 s44, s44, 13"); a.e("s_and_b32 s44, s44, 15")
class Rec:
    def __init__(s_): s_.l = []
    def e(s_, x): s_.l.append(x)
    srd = Asm.srd
def w_parts(which, direct=False):
    c = CFG[which]; STB = c["STB"]; n = STB // 2048; LDW = c["LDW"]; b = Rec()
    b.e("s_add_u32 s19, s41, s42")
    arm = ["s_mov_b32 m0, s19", "s_mov_b32 s39, s16"]
    if which == 4 and TAB:
        b.e(f"v_readlane_b32 s16, v{TV+1}, s44")
        b.e("s_bitcmp1_b32 s16, 0"); b.e(f"s_cselect_b32 s17, {8*2048}, {4*2048}".replace(f"{4*2048}", "s45")); b.e(f"s_cselect_b32 s18, {-20*2048}, s45")
        b.e("s_andn2_b32 s16, s16, 1"); b.e("s_add_u32 s16, s16, s38")
        b.l.insert(0, f"s_mov_b32 s45, {4*2048}")
        arm += ["s_mov_b32 s32, s17", "s_mov_b32 s3, s18"]
        if os.environ.get("W4SKIP"): arm += ["s_bitcmp1_b32 s16, 30", "s_cselect_b64 exec, 0, -1"]
    elif which == 3 and TAB and not direct:
        b.e(f"v_readlane_b32 s16, v{TV}, s44"); b.e("s_add_u32 s16, s16, s38")
    elif which == 4:
        b.e("s_and_b32 s40, s30, 1"); kb4(b, 16, "s40")
        b.e(f"s_mul_i32 s16, s16, {32*LDW}"); b.e("s_add_u32 s16, s16, s38")
        b.e("s_cmp_eq_u32 s47, 3"); b.e("s_cselect_b32 s17, 8, 4"); b.e("s_cselect_b32 s18, -20, 4")
        b.e("s_lshl_b32 s17, s17, 11"); b.e("s_lshl_b32 s18, s18, 11")
        arm += ["s_mov_b32 s32, s17", "s_mov_b32 s3, s18"]
    else:
        b.e(f"s_mul_i32 s16, s44, {64*LDW}"); b.e("s_add_u32 s16, s16, s38")
    if f"w{which}" in os.environ.get("HOT", ""): b.e("s_mov_b32 s16, s38")
    rot_next(b, which)
    b.e(f"s_add_u32 s42, s42, {STB}"); b.e(f"s_cmp_eq_u32 s42, {c['NW']*STB}"); b.e("s_cselect_b32 s42, 0, s42")
    fire = []
    for i in range(n):
        g = []
        if i:
            g.append("s_add_u32 m0, m0, 1024")
            if which in (1, 2): g.append(f"s_add_u32 s39, s39, {8*LDW}")
            elif which == 4: g.append(f"s_add_u32 s39, s39, s{3 if i == 4 else 32}")
            elif i == 7: g.append(f"s_add_u32 s39, s39, {16*LDW}")
        vo = WVB[which] + (0 if which in (1, 2) else (i & 1) if which == 4 else i % 7)
        fire.append(g + [f"buffer_load_dwordx4 v{vo}, s[12:15], s39 offen lds"])
    if f"w{which}" in os.environ.get("NOLD", ""): fire = [[x for x in g if not x.startswith("buffer_load")] + ["s_nop 0"] for g in fire]
    return b.l, arm, fire
def w_issue(a, which, pace=0, direct=False):
    prep, arm, fire = w_parts(which, direct)
    for x in prep + arm: a.e(x)
    for i, g in enumerate(fire):
        for x in g: a.e(x)
        if pace and (i % 4 == 3 or i == len(fire) - 1): a.e(f"s_waitcnt vmcnt({pace})")

def w_bases(a, which, dst, swn, ntl, t, t2):
    c = CFG[which]; RB = c["RB"]
    a.e(f"v_lshrrev_b32 v{t}, 2, v1")
    a.e(f"v_mul_u32_u24 v{dst}, {RB}, v{t}"); a.e(f"v_and_b32 v{t2}, 3, v1"); a.e(f"v_lshl_add_u32 v{dst}, v{t2}, 3, v{dst}")
    a.e(f"v_add_u32 v{dst}, {c['WB']}, v{dst}")
    if which == 3:
        a.e(f"s_mul_i32 s36, s{swn}, {7*32}"); a.e(f"v_add_u32 v{dst}, s36, v{dst}")
        a.e(f"v_bfe_u32 v{t}, v1, 4, 1"); a.e(f"v_lshlrev_b32 v{t}, 5, v{t}")
        a.e(f"s_cmp_eq_u32 s{swn}, 0"); a.e("s_cselect_b32 s36, 1, -1"); a.e(f"v_mul_lo_u32 v{t}, v{t}, s36")
        a.e(f"v_sub_u32 v{dst+1}, v{dst}, v{t}"); a.e(f"v_add_u32 v{dst}, v{dst}, v{t}")
        return 2, lambda nt, kk, h: (nt & 1, (32 * kk + 16 * h) * RB + 32 * nt)
    if which == 4: a.e(f"v_and_b32 v{t}, 7, v{t}")
    else: a.e(f"v_bfe_u32 v{t}, v{t}, 1, 2")
    for nt in range(ntl - 1, -1, -1):
        a.e(f"s_mul_i32 s36, s{swn}, {ntl}"); a.e(f"s_add_u32 s36, s36, {nt}")
        a.e(f"v_xor_b32 v{t2}, s36, v{t}"); a.e(f"v_lshl_add_u32 v{dst+nt}, v{t2}, 5, v{dst}")
    return ntl, lambda nt, kk, h: (nt, (32 * kk + 16 * h) * RB)

def a_parts(which):
    c = CFG[which]; b = Rec()
    if which <= 2 and NX:
        b.e("s_and_b32 s42, s48, 7"); b.e("s_lshl_b32 s42, s42, 14"); b.e("s_lshr_b64 s[48:49], s[48:49], 4")
    b.e("s_add_u32 s19, s41, s42")
    arm = ["s_mov_b32 m0, s19", "s_mov_b32 s39, s16"]; fire = []
    if which == 2:
        b.e(f"s_mul_i32 s16, s44, {8*PITCH}"); b.e("s_add_u32 s16, s16, s38")
        b.e("s_lshr_b32 s45, s44, 2"); b.e("s_xor_b32 s45, s45, s94"); b.e("s_and_b32 s45, s45, 1"); b.e("s_lshl_b32 s45, s45, 13"); b.e("s_add_u32 s16, s16, s45")
        b.e("s_lshr_b32 s45, s44, 3"); b.e("s_lshl_b32 s45, s45, 4"); b.e("s_add_u32 s45, s45, 16")
        b.e("s_sub_u32 s46, 0, s45"); b.e("s_bitcmp1_b32 s44, 2"); b.e("s_cselect_b32 s45, s45, s46"); b.e("s_add_u32 s16, s16, s45")
        step = PITCH
    elif which == 4:
        for lw in range(2):
            if TAB: b.e(f"v_readlane_b32 s{16+lw}, v{TV+1+lw}, s44")
            else: kb4(b, 16 + lw, lw); spread(b, 16 + lw, 16 + lw)
        for lw in range(2): b.e(f"s_add_u32 s{16+lw}, s{16+lw}, s38")
        arm.append("s_mov_b32 s40, s17")
        for i in range(4):
            for lw in range(2):
                fire.append((["s_add_u32 m0, m0, 1024"] if i or lw else []) + ([f"s_add_u32 s{39+lw}, s{39+lw}, {c['KBT']*2048}"] if i else []) +
                            [f"buffer_load_dwordx4 v2, s[12:15], s{39+lw} offen {SC} lds"])
    elif which == 3 and TAB:
        b.e(f"v_readlane_b32 s16, v{TV}, s44"); b.e("s_add_u32 s16, s16, s38"); step = c['KBT'] * 2048
    else:
        b.e("s_lshr_b32 s45, s44, 2"); b.e("s_lshl_b32 s45, s45, 14"); b.e("s_and_b32 s16, s44, 3"); b.e("s_lshl_b32 s16, s16, 11")
        b.e("s_add_u32 s16, s16, s45"); b.e("s_add_u32 s16, s16, s38"); step = c['KBT'] * 2048
    if f"a{which}" in os.environ.get("HOT", ""):
        b.e("s_mov_b32 s16, s38")
        if which == 4: b.e("s_add_u32 s17, s38, 1024")
    for i in range(4 if which != 4 else 0):
        fire.append((["s_add_u32 m0, m0, 2048", f"s_add_u32 s39, s39, {step}"] if i else []) + [f"buffer_load_dwordx4 v2, s[12:15], s39 offen {SC} lds"])
        fire.append([f"buffer_load_dwordx4 v2, s[12:15], s39 offen offset:1024 {SC} lds"])
    rot_next(b, which)
    if not (which <= 2 and NX):
        b.e(f"s_add_u32 s42, s42, 16384"); b.e(f"s_cmp_eq_u32 s42, {c['NA']*16384}"); b.e("s_cselect_b32 s42, 0, s42")
    if f"a{which}" in os.environ.get("NOLD", ""): fire = [[x for x in g if not x.startswith("buffer_load")] + ["s_nop 0"] for g in fire]
    return b.l, arm, fire
def a_issue(a, which):
    prep, arm, fire = a_parts(which)
    for x in prep + arm + sum(fire, []): a.e(x)
SUBS = {}
def call_issue(a, issue, which):
    nm = f"SUB_{issue.__name__}_{which}"; SUBS[nm] = (issue, which)
    a.e(f"s_call_b64 s[76:77], {nm}")
def emit_subs(a):
    for nm, f in SUBX.items(): a.e(f"SUB_{nm}:"); f(a); a.e("s_setpc_b64 s[76:77]")
    for nm, (issue, which) in SUBS.items():
        a.e(f"{nm}:"); issue(a, which); a.e("s_setpc_b64 s[76:77]")
def ld_steps(a, which, N, per, issue, npre, rate=2, plan={}, lo=0, hi=None, last=None, hold=(), sched=None, armed=False):
    NS = CFG[which]["NS"]
    prep, arm, fire = (w_parts if issue is w_issue else a_parts)(which); h = max(1, per * HSPLIT // 8)
    plan = {b: (x if isinstance(x, list) else [x]) for b, x in plan.items()}
    q = [s_ for s_ in range(npre) for _ in range(per)]
    def after(tag):
        if issue is w_issue and which == 4 and isinstance(tag, int) and tag < npre: tag = npre - 1
        return len(q) - 1 - max(i for i, x in enumerate(q) if x == tag)
    issued = npre; steps = []
    for b in range(NS):
        acts = plan.get(b, []); was = {}
        def do(pos):
            for n_, act in enumerate(acts):
                if act[0] != pos: continue
                if act[1] is not None: was[n_] = after(act[1])
                q.extend([act[4]] * act[3])
        do(True)
        k = 0
        if (b > 0 or (sched is not None and issue is a_issue)) and b not in hold:
            k = max(0, min(rate, min(NS, b - 1 + N) - issued)) if sched is None else sched[b]
        assert k or not any(x[0] == "mid" for x in acts)
        for j in range(k):
            q.extend([issued] * h)
            if j == 0: do("mid")
            q.extend([issued] * (per - h)); issued += 1
        do(False)
        w = after(b); assert w <= 63
        steps.append((k, w, b if acts else None, tuple(sorted(was.items())), issued < NS))
    def em(l):
        for x in l:
            a.e(x)
            if x == "s_barrier" and os.environ.get("JIT"): mstamp(a)
    F1, F2 = sum(fire[:h], []), sum(fire[h:], [])
    lprep = prep
    if len(prep) > 8:
        nm = f"PREP_{issue.__name__}_{which}"; SUBS[nm] = ((lambda a_, w_, l=prep: [a_.e(x) for x in l]), which)
        prep = [f"s_call_b64 s[76:77], {nm}"]
    if lo == 0 and npre < NS and not armed: em(prep + arm)
    i = lo; HI = NS if hi is None else hi
    while i < HI:
        j = i
        while j < HI and steps[j] == steps[i]: j += 1
        k, w, ab, was, more = steps[i]; n = j - i; was = dict(was)
        def run(pos):
            for n_, act in enumerate(plan.get(ab, [])):
                if act[0] != pos: continue
                if n_ in was: a.e(f"s_waitcnt vmcnt({was[n_]})")
                act[2]()
        tail = [f"s_waitcnt vmcnt({w})", "s_barrier"]
        if n > 2 and k == 1:
            em(F1); a.e("s_mov_b32 s43, 1"); L = a.lab("ld"); a.e(f"{L}:")
            em(lprep + F2 + arm + tail + F1)
            a.e("s_add_u32 s43, s43, 1"); a.e(f"s_cmp_lt_u32 s43, {n}"); a.e(f"s_cbranch_scc1 {L}")
            em(prep + F2 + arm + tail)
        else:
            for r in range(n):
                run(True)
                for jj in range(k):
                    nxt = more or jj < k - 1
                    em(F1)
                    if jj == 0: run("mid")
                    em((prep if nxt else []) + F2 + (arm if nxt else []))
                run(False)
                em(tail)
        i = j
    if hi is not None: return
    if which == 4:
        if issue is a_issue: a.e("s_cmp_eq_u32 s60, 1"); a.e("s_cbranch_scc1 K_fin")
        elif hold is HOLD: a.e("s_branch K_fin"); return
        if not RPL: r_pre(a)
    if last: last()
    late = os.environ.get("TLATE", "0") == "1"
    if late: a.e("s_barrier")
    if issue is a_issue and W4POS == f"{which}C":
        X = a.lab("tw4"); a.e("s_cmp_lg_u32 s60, 0"); a.e(f"s_cbranch_scc1 {X}"); touch(a, B_W4, 7 * MB, 20); a.e(f"{X}:")
    if not late: a.e("s_barrier")

RK = int(os.environ.get("RK", "7")); assert RK == 0 or C0PUB <= RK <= STQ
PA2 = int(os.environ.get("PA2", "1")); PBB = int(os.environ.get("PBB", "2")); PC0 = int(os.environ.get("PC0", "4"))
HOLD = eval(os.environ.get("HOLD", "[2,3,4]"))
def a_loader(a, which):
    c = CFG[which]
    if which <= 2:
        plan = side_jobs(a, 1) if which == 1 else {}
        if which == 1 and "1" in DP: mstamp(a); a.e(f"s_sleep {os.environ.get('SJD', '30')}")
        else: mstamp(a); a.e("s_barrier")
        mstamp(a)
        for b in sorted(plan):
            for act in (plan[b] if isinstance(plan[b], list) else [plan[b]]):
                if act[1] is not None: a.e("s_waitcnt vmcnt(0)")
                act[2]()
        if which == 1:
            a.e("s_cmp_lg_u32 s30, 4"); a.e("s_cbranch_scc1 AL_nw"); a.e("s_cmp_eq_u32 s60, 0"); a.e("s_cbranch_scc1 AL_l0")
            a.e(f"s_add_u32 s54, s55, {(fso(ST_G3) - LSTR) & 0xffffffff:#x}"); a.e("s_add_u32 s53, s54, s92"); a.e("v_mov_b32 v9, s53")
            a.e("s_add_u32 s53, s53, 128"); a.e("v_writelane_b32 v9, s53, 1")
            a.e("s_add_u32 s53, s54, s93"); a.e("v_writelane_b32 v9, s53, 2"); a.e("s_add_u32 s53, s53, 128"); a.e("v_writelane_b32 v9, s53, 3")
            poll_core(a, 8, [9], 15, cnt=8)
            a.e("s_branch AL_nw")
            a.e("AL_l0:")
            a.e(f"s_add_u32 s54, s55, {fso(ST_R2)}"); a.e("s_xor_b32 s54, s54, 0x2000"); a.e("v_mov_b32 v9, s54")
            poll_core(a, 8, [9], 1, cnt=16)
            a.e("AL_nw:")
        if which == 2: a.e("s_waitcnt vmcnt(0)")
        a.e("s_barrier")
        if which == 1 and "p" not in os.environ.get("FO", "1pd"): late_park(a)
        call(a, after_g1 if which == 1 else after_g2)
        return
    a.e("s_and_b32 s35, s30, 1")
    if which == 2:
        hs_srd(a, 12)
        a.e("s_lshl_b32 s38, s28, 11"); a.e("s_add_u32 s38, s38, 16384"); a.e(f"s_mul_i32 s36, s35, {4*PITCH}"); a.e("s_add_u32 s38, s38, s36")
    else:
        lsrd(a, 12, c["A"], XSZ if which != 4 else H2SZ)
        a.e(f"s_mul_i32 s38, s35, {4*c['KBT']*2048}")
        if which == 4: a.e(f"s_mul_i32 s36, s31, {7*16384}"); a.e("s_add_u32 s38, s38, s36")
    a.e("s_lshl_b32 s41, s35, 13"); a.e("s_mov_b32 s42, 0"); rot_init(a, which)
    assert c["NA"] == 3 or which == 3
    prep, arm, fire = a_parts(which)
    if which == 4:
        flag_addr(a, 9, ST_G3A); flag_addr(a, 10, ST_G3B); flag_addr(a, 12, ST_G3)
        a.e("v_mov_b32 v13, 1"); a.e("s_and_b32 s51, s30, 1"); a.e("s_lshl_b32 s51, s51, 30")
        def signal(r): a.e("s_mov_b64 exec, 1"); a.e(f"buffer_atomic_add v13, v{r}, s[56:59], s51 offen {SC}"); a.e("s_mov_b64 exec, -1")
        a.e("s_lshl_b32 s54, s60, 2"); a.e("s_add_u32 s54, s54, 4"); lds_spin(a, LW + 64, "s54", 14, nap=2)
        signal(9)
        if not PA2: poll_core(a, 8, [9], 1, cnt=8)
        mstamp(a)
        plan = {6 - L4: ("mid", None, lambda: flag_try(a, 11, 10), 1, "f"), 8 - L4: ("mid", "f", lambda: flag_check(a, 11, 10, 8), 0, None),
                13 - L4: ("mid", None, lambda: flag_try(a, 11, 12), 1, "g"), 15 - L4: ("mid", "g", lambda: flag_check(a, 11, 12, 8), 0, None)}
        plan = {k_: [x] for k_, x in plan.items()}
        if PA2:
            plan[1] = [(False, None, lambda: flag_try(a, 8, 9), 1, "a")]
            plan[2] = [(True, "a", lambda: flag_check(a, 8, 9, 8), 0, None)]
        if DP:
            a.e("v_xor_b32 v15, 128, v12")
            plan[20] = [("mid", None, lambda: flag_try(a, 11, 15), 1, "h")]; plan[22] = [("mid", "h", lambda: flag_check(a, 11, 15, 8), 0, None)]
        plan.setdefault(PBB + 1, []).insert(0, (True, None, lambda: signal(10), 1, "s"))
        plan.setdefault(PC0 + 2, []).insert(0, (True, None, lambda: signal(12), 1, "s"))
        a.e("s_mov_b32 s44, 3")
        ld_steps(a, which, 3, 8, a_issue, 3, plan=plan); return
    if which == 3:
        mask, cnt = flag_addr(a, 9, ST_G2)
        def wait2():
            if B0E > 1: a.e(f"s_sleep {B0E}")
            poll_core(a, 8, [9], mask, cnt=cnt); mstamp(a); mstamp(a)
            if W3H: a.e("s_add_u32 s54, s60, 1"); lds_set(a, LW + 60, "s54", 10)
        N3 = 2 if "3" in DP else 1
        a.e(f"s_mov_b32 s44, {N3}"); a.e(f"s_mov_b32 s42, {16384*N3}")
        plan = side_jobs(a, 3)
        if os.environ.get("P30", "0") == "1":
            def wait0(): own_wait(a, ST_G2, False, 14); wait2()
            plan[0] = (True, None, wait0, 0, None)
            ld_steps(a, which, 3, 8, a_issue, 1, plan=plan, sched=[int(os.environ.get("P3N", "1")), 2 - int(os.environ.get("P3N", "1"))] + [1] * 13 + [0]); return
        plan[1] = (True, None, wait2, 0, None)
        if RPL: plan[15] = (False, None, lambda: call(a, r_pre0), 4, "r")
        PZ3 = int(os.environ.get("PZ3", "0"))
        if PZ3:
            a.srd(84, 4, 32 * MB, off=216 * MB)
            a.e("s_cmp_eq_u32 s60, 0"); a.e("s_cselect_b32 s86, s86, 0")
            for i in range(4): a.e(f"v_mov_b32 v{216+i}, -1")
            a.e("s_lshl_b32 s88, s2, 1"); a.e("s_and_b32 s50, s30, 1"); a.e("s_add_u32 s88, s88, s50"); a.e(f"s_mul_i32 s88, s88, {PZ3*12*1024}")
            def pz():
                for i in range(PZ3): a.e(f"buffer_store_dwordx4 v[216:219], v2, s[84:87], s88 offen offset:{i*1024} {SC}")
                a.e(f"s_add_u32 s88, s88, {PZ3*1024}")
            for b in range(2, 14):
                p_ = plan.get(b, []); p_ = p_ if isinstance(p_, list) else [p_]
                plan[b] = p_ + [(False, None, pz, PZ3, "z")]
        if os.environ.get("A3L", "0") == "1":
            def w1_():
                X = a.lab("w1"); a.e("s_cmp_lg_u32 s60, 0"); a.e(f"s_cbranch_scc1 {X}"); poll_core(a, 8, [9], mask, cnt=cnt); lds_set(a, LW + 60, 1, 10); a.e(f"{X}:")
            def w2_(): poll_core(a, 8, [9], mask, cnt=cnt, nap=2); mstamp(a); mstamp(a)
            plan[1] = (True, None, w1_, 0, None)
            p2 = plan[2] if isinstance(plan[2], list) else [plan[2]]
            plan[2] = [(True, None, w2_, 0, None)] + p2
            ld_steps(a, which, 3, 8, a_issue, N3, plan=plan, hold=(1,)); return
        ld_steps(a, which, c["NA"], 8, a_issue, N3, plan=plan, sched=eval(os.environ.get("A3S", "None"))); return
    assert 0

def side_jobs(a, which):
    c = CFG[which]; plan = {}
    sv = 16; S, Q, mean, rs, tt, ad, fa, fr = 216, 217, 218, 219, 220, 221, 222, 223
    cv = 180 if which == 3 else 24; N = c["LDW"] // 2; co_ = 224; HB = c["TN16"] * 32
    lg = 3 if which == 1 else 5
    def cld(k0=0, k1=4):
        if k0 == 0:
            a.srd(24, 4, 32 * N * 4, off=CSP[which])
            a.e("s_cmp_eq_u32 s60, 0"); a.e("s_cselect_b32 s26, s26, 0")
            if NOCS3 and which == 3: a.e("s_mov_b32 s26, 0")
            a.e("s_and_b32 s36, s30, 1"); a.e(f"s_mul_i32 s36, s36, {HB}"); a.e(f"s_mul_i32 s37, s29, {2*HB}"); a.e("s_add_u32 s37, s36, s37")
            a.e(f"v_lshrrev_b32 v{co_}, {lg}, v1"); a.e(f"v_mul_u32_u24 v{co_}, {N*4}, v{co_}")
            a.e(f"v_and_b32 v{cv-1}, {16*((1 << lg) - 1)}, v2"); a.e(f"v_add_u32 v{co_}, v{co_}, v{cv-1}")
        for k in range(k0, k1):
            a.e(f"buffer_load_dwordx4 {vr(cv+4*(k if k < 9 else k - 8),4)}, v{co_}, s[24:27], s37 offen {SC}"); a.e(f"s_add_u32 s37, s37, {N*4*(64 >> lg)}")
    def piece(lines, l0=False):
        def f():
            X = a.lab("pc")
            if l0: a.e("s_cmp_lg_u32 s60, 0"); a.e(f"s_cbranch_scc1 {X}")
            for x in lines: a.e(x)
            if l0: a.e(f"{X}:")
        return f
    def cadd(k0, k1): return [f"v_add_f32 v{cv+h}, v{cv+h}, v{cv+4*k+h}" for k in range(k0, k1) for h in range(4)]
    def sw(op): return [f"v_mov_b32 v{cv+4+e}, v{cv+e}" for e in range(4)] + [f"{op} v{cv+e}, v{cv+4+e}" for e in range(4)] + cadd(1, 2)
    if which in (1, 3):
        cout = ["s_and_b32 s36, s30, 1", f"s_mul_i32 s36, s36, {HB}", f"s_add_u32 s36, s36, {CSO[which]}", f"v_add_u32 v{cv-1}, s36, v2",
                f"s_bfm_b64 exec, {HB//16}, 0", f"ds_write_b128 v{cv-1}, {vr(cv,4)}", "s_mov_b64 exec, -1", "s_waitcnt lgkmcnt(0)"]
    if which == 1:
        flag_addr(a, fa, ST_R2)
        def ld():
            flag_check(a, fr, fa, 16)
            lsrd(a, 20, oLNS, 2048); a.e("s_and_b32 s35, s30, 1"); a.e("s_lshl_b32 s35, s35, 10")
            a.e(f"buffer_load_dwordx4 {vr(sv,4)}, v2, s[20:23], s35 offen {SC}")
        fin = piece(["s_and_b32 s36, s30, 1", "s_lshl_b32 s36, s36, 10", f"s_add_u32 s36, s36, {LNSL}", f"v_add_u32 v{ad}, s36, v2", f"ds_write_b128 v{ad}, {vr(sv,4)}", "s_waitcnt lgkmcnt(0)"])
        a.e("s_lshl_b32 s53, s29, 7"); a.e(f"s_add_u32 s53, s53, {F_CS}"); a.e(f"v_mov_b32 v{fa+4}, s53")
        def cld1(): flag_check(a, fr + 4, fa + 4, 16); cld()
        work = cadd(1, 4) + [f"v_add_f32_dpp v{cv+e}, v{cv+e}, v{cv+e} row_ror:8 row_mask:0xf bank_mask:0xf" for e in range(4)] + \
               sw("v_permlane16_swap_b32") + sw("v_permlane32_swap_b32")
        plan = {2: (False, None, lambda: flag_try(a, fr + 4, fa + 4), 1, "e"), 5: [(False, "e", cld1, 4, "c"), (False, None, lambda: flag_try(a, fr, fa), 1, "f")],
                8: (False, "f", ld, 1, "d"), 15: [(False, None, piece(cout, 1), 0, None), (False, "d", fin, 0, None)]}
        plan[9] = (False, None, piece(work, 1), 0, None)
    if which == 3:
        flag_addr(a, fa, ST_G2S)
        a.e(f"v_lshlrev_b32 v{ad}, 3, v1")
        def ld(k0):
            def f():
                if k0 == 0:
                    flag_check(a, fr, fa, 16)
                    lsrd(a, 20, oST2, 24576)
                    a.e("s_and_b32 s35, s30, 1"); a.e("s_lshl_b32 s35, s35, 9")
                a.e(f"s_add_u32 s36, s35, {k0*2048}")
                for k in range(k0, k0 + 8):
                    if k % 8 == 4: a.e("s_add_u32 s36, s36, 4096")
                    a.e(f"buffer_load_dwordx2 {vr(sv+2*k,2)}, v{ad}, s[20:23], s36 offen offset:{(k&3)*1024} {SC}")
            return f
        b = Rec()
        for st_ in (8, 4, 2, 1):
            for k in range(2 * st_): b.e(f"v_add_f32 v{sv+k}, v{sv+k}, v{sv+2*st_+k}")
        o_ = sv + 4
        b.e(f"v_mul_f32 v{o_}, {f32(1/1024)}, v{sv}"); b.e(f"v_mul_f32 v{Q}, {f32(1/1024)}, v{sv+1}")
        b.e(f"v_fma_f32 v{Q}, -v{o_}, v{o_}, v{Q}"); b.e(f"v_max_f32 v{Q}, 0, v{Q}")
        ln_finish(b, o_, Q, rs, o_ + 1)
        b.e(f"v_mul_f32 v{o_+2}, {f32(GC1)}, v{rs}"); b.e(f"v_mul_f32 v{o_+3}, v{rs}, v{rs}")
        b.e(f"v_mul_f32 v{o_+3}, v{o_+3}, v{o_+2}"); b.e(f"v_mul_f32 v{o_+3}, {f32(0.044715)}, v{o_+3}")
        b.e("s_lshl_b32 s35, s35, 1"); b.e(f"s_add_u32 s35, s35, {LNSL}"); b.e(f"v_add_u32 v{tt}, s35, v2")
        b.e(f"ds_write_b128 v{tt}, {vr(o_,4)}"); b.e("s_waitcnt lgkmcnt(0)")
        def both(f, g):
            def h(): f(); g()
            return h
        plan = {2: (False, None, cld, 4, "c"), 3: (False, None, lambda: cld(4, 9), 5, "c"),
                5: [(False, "c", piece(cadd(1, 5), 1), 0, None), (False, None, lambda: flag_try(a, fr, fa), 1, "f")],
                6: (False, None, both(piece(cadd(5, 9), 1), lambda: cld(9, 16)), 7, "e"),
                7: (False, "f", ld(0), 8, "d"), 8: (False, None, ld(8), 8, "d"),
                9: (False, "e", piece(cadd(1, 5), 1), 0, None), 10: (False, None, piece(cadd(5, 8), 1), 0, None), 11: (False, None, piece(sw("v_permlane32_swap_b32") + cout, 1), 0, None),
                12: (False, "d", piece(b.l[:16]), 0, None), 13: (False, None, piece(b.l[16:32]), 0, None), 14: (False, None, piece(b.l[32:]), 0, None)}
    return plan

W2E = int(os.environ.get("W2E", "3"))
def w2_early(a):
    if W2E: w_setup(a, 2, pre=False); w1_slots(a, range(W2E), pace=8)
def w_loader(a, which):
    c = CFG[which]
    if which < 3:
        if which == 1: a.e("s_waitcnt vmcnt(0)")
        if which == 1 and "a" in STO: stouch(a, 3, 128 if "8" in STO else 64, 2); mstamp(a)
        if which == 1 and sum(SG): sb_init(a)
        sg(a, SG[2*which-2])
        if not (which == 1 and "1" in DP): a.e("s_barrier")
        sg(a, SG[2*which-1])
        if which == 1 and "b" in STO: stouch(a, 3, 128 if "8" in STO else 64, 2); mstamp(a)
        if which == 2: a.e("s_waitcnt vmcnt(0)")
        a.e("s_barrier")
        if which == 1 and "p" not in os.environ.get("FO2", "1pd"): late_park(a)
        call(a, after_g1 if which == 1 else after_g2); mstamp(a)
        return
    args = (a, which, c["NW"], c["STB"] // 2048, w_issue, c["NPRE"], c["WR"])
    if which == 4:
        assert c["NW"] == 6 and c["WB"] == CFG[1]["WB"] + 3 * 8192
        a.e("s_cmp_eq_u32 s60, 1"); a.e("s_cbranch_scc1 WL_t1")
        ld_steps(*args, hi=24)
        WT = eval(os.environ.get("WT", "[(11,12,15,9),(13,14,10),(3,4),(5,6,0),(7,8,1,2),()]"))
        def some(js):
            def f():
                if js is WT[0]: w_setup(a, 1, pre=False)
                for j in js:
                    if j in (9, 10) and js is not WT[5]:
                        a.e(f"s_add_u32 s39, s38, {j*64*2048}")
                        for i in range(4): a.e(f"buffer_load_dwordx4 {vr(16+16*(j-9)+4*i,4)}, v{WVB[1]}, s[12:15], s39 offen"); a.e("s_add_u32 s39, s39, 16384")
                    else: w1_slots(a, (j,), pace=8 if js is WT[5] else 0)
            return f
        plan = {24 + i: (False, None, some(WT[i]), 4 * len(WT[i]), "w") for i in range(4) if WT[i]}
        ld_steps(*args, plan=plan, lo=24, last=some(WT[4]))
        rg = [j for j in (9, 10) if j not in WT[5]]
        if rg:
            a.e(f"s_add_u32 s36, s41, {9*8192}"); a.e("v_add_u32 v6, s36, v2"); a.e("s_waitcnt vmcnt(0)")
            for j in rg:
                for i in range(4): a.e(f"ds_write_b128 v6, {vr(16+16*(j-9)+4*i,4)} offset:{(j-9)*8192+i*1024}")
            a.e("s_waitcnt lgkmcnt(0)")
        some(WT[5])(); mstamp(a)
        a.e("s_branch NEXT")
        a.e("WL_t1:")
        ld_steps(*args, hold=HOLD)
        return
    plan = {}
    if "3" in DP:
        lsrd(a, 20, oX1P, XSZ)
        a.e(f"v_readlane_b32 s36, v{TV+3}, 1"); a.e("s_and_b32 s35, s30, 1"); a.e("s_lshl_b32 s46, s35, 18"); a.e("s_lshl_b32 s47, s35, 13"); a.e("s_add_u32 s47, s47, 16384")
        a.e("s_bfe_u32 s37, s36, 0x20002"); a.e("s_lshl_b32 s37, s37, 14"); a.e("s_and_b32 s36, s36, 3"); a.e("s_lshl_b32 s36, s36, 11"); a.e("s_add_u32 s46, s46, s36"); a.e("s_add_u32 s46, s46, s37")
        a.e("v_add_u32 v8, s47, v2")
        if W3E: w_issue(a, 3); args = args[:5] + (3,) + args[6:]
        def second():
            L = a.lab("sp"); D = a.lab("sq")
            a.e("s_mov_b32 s34, m0"); a.e("s_cmp_lg_u32 s60, 0"); a.e(f"s_cbranch_scc1 {L}a")
            lds_spin(a, LW + 60, 1, 6, nap=1)
            a.e(f"{L}a:"); a.e("s_mov_b32 s53, 0")
            if int(os.environ.get("S3D", "0")): a.e("s_sleep " + os.environ["S3D"])
            a.e(f"{L}:"); a.e("s_mov_b32 m0, s47"); a.e("s_mov_b32 s36, s46")
            for i in range(4):
                if i: a.e("s_add_u32 m0, m0, 2048"); a.e("s_add_u32 s36, s36, 65536")
                for k in range(2): a.e(f"buffer_load_dwordx4 v2, s[20:23], s36 offen offset:{1024*k} {SC} lds")
            a.e("s_waitcnt vmcnt(0)")
            for i in range(8): a.e(f"ds_read_b32 v{10+i}, v8 offset:{1024*i}")
            a.e("s_waitcnt lgkmcnt(0)")
            a.e("v_or3_b32 v10, v10, v11, v12"); a.e("v_or3_b32 v13, v13, v14, v15"); a.e("v_or3_b32 v10, v10, v16, v17"); a.e("v_bitop3_b32 v10, v10, v13, s60 bitop3:0xa8")
            a.e("v_cmp_ne_u32 vcc, 0, v10"); a.e(f"s_cbranch_vccz {D}"); a.e("s_sleep 1")
            a.e("s_add_u32 s53, s53, 1"); a.e("s_cmp_lt_u32 s53, s61"); a.e(f"s_cbranch_scc1 {L}"); a.e("s_mov_b32 s61, 0")
            a.e(f"{D}:"); a.e("s_mov_b32 m0, s34")
        plan[1] = (True, None, second, 8, "x")
    elif W3H: plan[1] = (True, None, lambda: (a.e("s_add_u32 s54, s60, 1"), lds_spin(a, LW + 60, "s54", 6, nap=1)), 0, None)
    def sg3(n):
        def f():
            X = a.lab("st"); a.e("s_cmp_lg_u32 s60, 0"); a.e(f"s_cbranch_scc1 {X}"); sb(a, n); a.e(f"{X}:")
        return f
    for b_, n_ in eval(os.environ.get("SG3", "{}")).items(): plan[b_] = (False, None, sg3(n_), 0, None)
    if RPL: plan[int(os.environ.get("RPW", "15"))] = (False, None, lambda: call(a, r_pre0), 4, "r")
    ld_steps(*args, plan=plan)
W3H = int(os.environ.get("W3H", "0")) or "3" in DP; W3E = int(os.environ.get("W3E", "1"))
W1L = int(os.environ.get("W1L", "3"))

B0E = int(os.environ.get("B0E", "6")); RPL = int(os.environ.get("RPL", "1")); RPC = int(os.environ.get("RPC", "1"))
LF1 = os.environ.get("LF1", "sc1"); LF2 = os.environ.get("LF2", "")
RES2 = 148; C2R = 200; SO3 = 238; RES4 = [172, 176, 180, 184, 188, 192, 196, 240]
def g_compute(a, which):
    c = CFG[which]
    WM, WN, MT, NT, KBT, NS, NA, NW, TN16, STB, WB = [c[k] for k in "WM WN MT NT KBT NS NA NW TN16 STB WB".split()]
    v = VA(6); nm = f"G{which}"
    lane = 1; l16 = 2
    t = v(); t2 = v(); pt = v(4, 2)
    NTILE = (0, 99, 29, 29, 33)[which]
    a_ = a
    if which != 3: a = Rec()
    if WN == 2: a.e("s_lshr_b32 s34, s30, 1"); a.e("s_and_b32 s35, s30, 1")
    else: a.e("s_mov_b32 s34, s30"); a.e("s_mov_b32 s35, 0")
    a0 = v(); w0 = v(4, 1); aa = v(); wa = v(4, 1); J = v(); G = v()
    a.e(f"v_and_b32 v{J}, 15, v{lane}"); a.e(f"v_lshrrev_b32 v{G}, 4, v{lane}")
    a.e(f"s_mul_i32 s37, s34, {MT}")
    a.e(f"s_mul_i32 s38, s{NTILE}, {TN16}"); a.e(f"s_mul_i32 s36, s35, {NT}"); a.e("s_add_u32 s38, s38, s36")
    acc = v(MT * NT * 4, 4); NF = MT + NT if which > 2 else 8
    fX = v(NF * 4, 4); fY = v(NF * 4, 4); tmp = v(); tp = v(4, 2)
    def A_(mt, nt): return acc + 4 * (mt * NT + nt)
    def SUBM(r): return f"{vr(r,2)} op_sel_hi:[1,0] neg_lo:[0,1] neg_hi:[0,1]"
    def MULR(r): return f"{vr(r,2)} op_sel:[0,1] op_sel_hi:[1,1]"
    if which in (2, 4):
        res = RES2
        a.e("s_lshr_b32 s36, s38, 1"); spread(a, 39, 36); a.e("s_lshl_b32 s36, s37, 16"); a.e("s_add_u32 s39, s39, s36")
    if which <= 2:
        AB = 164; LO = v(8, 1)
        def aload(b, kk):
            if which == 1: return [f"buffer_load_dwordx4 {vr(AB+16*b+8*kk+4*mt,4)}, v{LO+mt+(b&2)}, s[8:11], s44 offen offset:{(b&1)*2048+kk*1024} {LF1}" for mt in range(2)]
            return [f"buffer_load_dwordx4 {vr(AB+16*b+8*kk+4*mt,4)}, v{LO+mt}, s[8:11], s44 offen {LF2}" for mt in range(2)]
        def seq(pairs, s0):
            if which == 1: return [x for b, kk in pairs for x in aload(b, kk)]
            return ([f"s_mov_b32 s44, {s0}"] if s0 is not None else []) + [x for b, kk in pairs for x in aload(b, kk) + ["s_add_u32 s44, s44, 16384"]]
        def past(l): return [x + (SC if x.startswith("buffer") and SC not in x else "") for x in l]
        PR = [(i >> 1, i & 1) for i in range(7)]
        h = Rec()
        if which == 1:
            lsrd(h, 8, oX3, XSZ); OOB = MB
            for i in range(4): (h if i < 2 else a).e(f"v_add_u32 v{LO+i}, {(i & 1) * 65536 + (i >> 1) * 4096}, v{l16}")
            h.e("s_lshl_b32 s44, s30, 17")
            for i in range(1, 4): a.e(f"s_add_u32 s{44+i}, s44, {16384*i}")
        else:
            OOB = 0x40000000; LP = v(2, 1)
            h.srd(8, 4, 8 * GSTR + LSTR, off=LB0 + oHS)
            h.e(f"s_sub_u32 s47, s55, {LB0 + oSM}"); h.e("s_lshl_b32 s46, s30, 9"); h.e("s_add_u32 s47, s47, s46")
            h.e("s_add_u32 s45, s92, 2048"); h.e("s_cmp_eq_u32 s28, 0"); h.e(f"s_cselect_b32 s45, {OOB}, s45"); h.e("s_cmp_eq_u32 s30, 0"); h.e("s_cselect_b32 s45, s45, 0")
            a.e("s_sub_u32 s46, s93, 2048"); a.e("s_cmp_eq_u32 s28, 15"); a.e(f"s_cselect_b32 s46, {OOB}, s46"); a.e("s_cmp_eq_u32 s30, 3"); a.e("s_cselect_b32 s46, s46, 0")
            for q_, sh in enumerate((1, -1, 2, -2)):
                e_ = h if q_ == 0 else a
                e_.e(f"s_add_u32 s53, s47, {(-16 * sh) & 0xffffffff:#x}"); e_.e(f"v_add_u32 v{LO+2*q_}, s53, v{a0}"); e_.e(f"v_add_u32 v{LO+2*q_+1}, 256, v{LO+2*q_}")
                R_ = LO + 2 * q_ + (0 if sh > 0 else 1)
                e_.e(f"v_add_u32 v{LP}, s{45 if sh > 0 else 46}, v{R_}")
                e_.e(f"v_cmp_gt_u32 vcc, {sh}, v{J}" if sh > 0 else f"v_cmp_le_u32 vcc, {16 + sh}, v{J}"); e_.e(f"v_cndmask_b32 v{R_}, v{R_}, v{LP}, vcc")
            for k in range(2): a.e(f"v_mov_b32 v{LP+k}, v{LO+k}")
        EARLY = str(which) in DP and str(which) in os.environ.get("EP", "2")
        try0 = past(seq(PR[:2], 0))
        for x in h.l: a_.e(x)
        if EARLY and which == 1:
            for x in try0: a_.e(x)
    else:
        a.e(f"s_mul_i32 s36, s34, {MT*2048}"); a.e(f"v_add_u32 v{a0}, s36, v{l16}")
    nwr, wpos = w_bases(a, which, w0, 35, NT, t, t2)
    if which <= 2:
        for x in a.l: a_.e(x)
    a = a_
    if which == 3 and not B0E: publish(a, ST_G2S, 4, pt, ctr=48)
    if which == 2:
        a.e(f"s_lshl_b32 s36, s37, 8"); a.e(f"s_add_u32 s36, s36, {LNSL}"); a.e(f"v_lshlrev_b32 v{t2}, 4, v{J}"); a.e(f"v_add_u32 v{t2}, s36, v{t2}")
        for mt in range(MT): a.e(f"ds_read_b64 {vr(fX+2*mt,2)}, v{t2} offset:{mt*256}")
        a.e("s_waitcnt vmcnt(4) lgkmcnt(0)")
        if EARLY:
            if int(os.environ.get("G2D", "3")): a.e("s_sleep " + os.environ.get("G2D", "3"))
            if int(os.environ.get("G2D0", "20")): a.e("s_cmp_lg_u32 s60, 0"); a.e("s_cbranch_scc1 G2_nd"); a.e("s_sleep " + os.environ.get("G2D0", "20")); a.e("G2_nd:")
            for x in try0: a.e(x)
        for mt in range(MT):
            for p in range(NT // 2):
                for e in range(4):
                    X = A_(mt, 2 * p) + 2 * e
                    unpack(a, X, X + 1, res + (mt * (NT // 2) + p) * 4 + e)
                    a.e(f"v_pk_add_f32 {vr(X,2)}, {vr(X,2)}, {SUBM(fX+2*mt)}"); round2(a, X, X + 1, tmp)
                    a.e(f"v_pk_mul_f32 {vr(X,2)}, {vr(X,2)}, {MULR(fX+2*mt)}"); round2(a, X, X + 1, tmp)
    elif which == 1:
        for i in range(0, MT * NT * 4, 2): a.e(f"v_pk_mov_b32 {vr(acc+i,2)}, 0, 0")
    RX = [180, 184, 188, 192, 196, 230, 234, 248]
    def last_res():
        b0 = Rec()
        for i in range(2):
            b0.e(f"s_add_u32 s36, s40, {i*65536}")
            for p in range(2):
                b0.e(f"buffer_load_dwordx4 {vr(RX[2*(2*i+p)],4)}, v{l16}, s[84:87], s36 offen offset:{p*1024} {SC}")
                b0.e(f"buffer_load_dwordx4 {vr(RX[2*(2*i+p)+1],4)}, v{l16}, s[88:91], s36 offen offset:{p*1024} {SC}")
        return b0.l
    def reads(F, kk):
        o = []
        for mt in range(MT): o.append(f"ds_read_b128 {vr(F+4*mt,4)}, v{aa} offset:{mt*256+kk*8192 if which == 2 else mt*2048+kk*1024}")
        for nt in range(NT):
            for h in range(2):
                r, imm = wpos(nt, kk, h)
                o.append(f"ds_read_b64_tr_b16 {vr(F+4*(MT+nt)+2*h,2)}, v{wa+r} offset:{imm}")
        NR = os.environ.get("NOREAD")
        if NR == "N": o = []
        if NR == "A": o = o[MT:]
        if NR == "W": o = o[:MT]
        if NR == "H": o = o[::2]
        if NR == "X": o = o + o[:2]
        if NR == "XX": o = o + o[:MT]
        return o
    def mix(rd, ex):
        rd = list(rd)
        for i, x in enumerate(ex): rd.insert(min(len(rd), (i + 1) * len(rd) // (len(ex) + 1)), x)
        return rd
    def mfmas(F, rd, tail=()):
        n = MT * NT; k = 0; tot = len(rd); span = max(1, n * 3 // 4); done = 0; tail = list(tail); per = -(-len(tail) // max(1, n - span))
        OR = os.environ.get("ORDER", "2")
        order = {"0": [(nt, mt) for nt in range(NT) for mt in range(MT)],
                 "1": [(nt, mt) for mt in range(MT) for nt in range(NT)],
                 "2": [(nt, mt if nt % 2 == 0 else MT - 1 - mt) for nt in range(NT) for mt in range(MT)],
                 "3": [(nt if mt % 2 == 0 else NT - 1 - nt, mt) for mt in range(MT) for nt in range(NT)]}[OR]
        for nt, mt in order:
            if True:
                cc = acc + 4 * (mt * NT + nt)
                if str(which) not in os.environ.get("NOMF", ""): a.e(f"v_mfma_f32_16x16x32_bf16 {vr(cc,4)}, {vr(F+4*(MT+nt),4)}, {vr(F+4*mt,4)}, {vr(cc,4)}")
                k += 1
                while rd and done < (tot * k + span - 1) // span: a.e(rd.pop(0)); done += 1
                if k >= span and k < n:
                    for _ in range(min(per, len(tail))): a.e(tail.pop(0))
        assert not rd and not tail
    so = SO3 if which == 3 else a0; cs = fX; lns = fX + 4 * NT; G4W = 240; EA = 244
    def ep_setup(b):
        if which in (1, 3):
            assert which == 1 or (fY <= C2R and C2R + 24 <= fY + 4 * NF)
            b.e(f"s_mul_i32 s36, s35, {NT*64}"); b.e(f"s_add_u32 s36, s36, {CSO[which]}"); b.e(f"v_lshlrev_b32 v{t}, 4, v{G}"); b.e(f"v_add_u32 v{t}, s36, v{t}")
            b.e(f"s_lshl_b32 s36, s37, 8"); b.e(f"s_add_u32 s36, s36, {LNSL + (8 if which == 1 else 0)}"); b.e(f"v_lshlrev_b32 v{t2}, 4, v{J}"); b.e(f"v_add_u32 v{t2}, s36, v{t2}")
        if which == 3:
            lsrd(b, 16, oH2, H2SZ)
            b.e(f"s_mul_i32 s39, s37, {224*1024}")
            for P in range(4):
                b.e("s_lshr_b32 s36, s38, 1"); b.e(f"s_add_u32 s36, s36, {P}"); spread(b, 44 + P, 36); b.e(f"s_add_u32 s{44+P}, s{44+P}, s39")
            w_bases(b, 4, G4W, 35, 4, tp, tp + 1)
            b.e("s_lshl_b32 s38, s33, 3"); b.e("s_lshl_b32 s36, s35, 2"); b.e("s_add_u32 s38, s38, s36")
            b.e("s_lshr_b32 s36, s38, 1"); spread(b, 39, 36); b.e("s_lshl_b32 s36, s37, 16"); b.e("s_add_u32 s39, s39, s36")
            b.e("s_lshl_b32 s40, s31, 17"); b.e("s_add_u32 s40, s40, s39")
            b.e("s_xor_b32 s41, s31, 1"); b.e("s_lshl_b32 s41, s41, 17"); b.e("s_add_u32 s41, s41, s39")
            lsrd(b, 84, oX3, XSZ); lsrd(b, 88, oX1P, XSZ)
            b.e("s_lshl_b32 s36, s37, 1"); b.e("s_add_u32 s36, s36, s35"); b.e("s_lshl_b32 s36, s36, 10"); b.e(f"v_add_u32 v{EA}, s36, v{l16}")
            b.e(f"v_mov_b32 v{EA+1}, 1"); b.e(f"v_mov_b32 v{EA+2}, {LW+64}")
            b.e(f"v_lshrrev_b32 v{so}, 1, v{G}"); b.e(f"v_lshlrev_b32 v{so}, 8, v{so}"); b.e(f"v_lshl_add_u32 v{so}, v{J}, 4, v{so}")
            b.e(f"v_and_b32 v{tmp}, 1, v{G}"); b.e(f"v_lshl_add_u32 v{so}, v{tmp}, 3, v{so}")
        if which == 1:
            lsrd(b, 16, oHS, XSZ)
            b.e(f"v_lshlrev_b32 v{so}, 11, v{G}"); b.e(f"v_lshl_add_u32 v{so}, v{J}, 4, v{so}")
            b.e("s_lshl_b32 s39, s38, 13"); b.e("s_lshl_b32 s36, s37, 8"); b.e("s_add_u32 s39, s39, s36"); b.e("s_add_u32 s40, s39, 16384")
            b.e("s_lshl_b32 s36, s29, 1"); spread(b, 41, 36); b.e("s_lshl_b32 s36, s37, 16"); b.e("s_add_u32 s41, s41, s36")
        if which == 2: lsrd(b, 16, oX1P, XSZ)
    def cost(x): return sum(8 if y.startswith("ds_") else 4 for y in x.split("\n"))
    def group(F, rd, r0, ex, fixed={}, zero=False):
        n = MT * NT; ex = [x if isinstance(x, tuple) else (x, -1) for x in ex]; done = 0
        order = [(nt, mt if nt % 2 == 0 else MT - 1 - mt) for nt in range(NT) for mt in range(MT)]
        need = sum(cost(x) for x, _ in ex) + 8 * len(rd) + sum(cost(x) for l in fixed.values() for x in l)
        cap = max(12, -(-need // (4 * n)) * 4)
        for k, (nt, mt) in enumerate(order):
            cc = A_(mt, nt)
            if str(which) not in os.environ.get("NOMF", ""): a.e(f"v_mfma_f32_16x16x32_bf16 {vr(cc,4)}, {vr(F+4*(MT+nt),4)}, {vr(F+4*mt,4)}, {0 if zero else vr(cc,4)}")
            b_ = cap - sum(cost(x) for x in fixed.get(k, [])); nv = 0
            if k >= r0 and done < len(rd): a.e(rd[done]); done += 1; b_ -= 8
            while ex and ex[0][1] < done and (cost(ex[0][0]) <= b_ or k == n - 1) and not (nv >= (1 if rd else 2) and ex[0][0].startswith("v_") and cap == 12 and k < n - 1):
                x = ex.pop(0)[0]; a.e(x); b_ -= cost(x); nv += x.startswith("v_")
            for x in fixed.get(k, []): a.e(x)
        assert done == len(rd) and not ex
    NR_ = MT + 2 * NT; BP = eval(os.environ.get("BP", "{3:3,4:2}")).get(which, 0)
    def stage(ex=(), ey=(), lim=NS-1, late=False, zero=False, pre=()):
        if str(which) in os.environ.get("GST", "") or os.environ.get("JIT"): mstamp(a, True)
        if which == 3: last = {0: NR_ - 1, 1: NR_ - 3}
        else: last = {i: MT + 2 * i + 1 for i in range(4)}
        book = ["s_add_u32 s42, s42, 16384", f"s_cmp_eq_u32 s42, {NA*16384}", "s_cselect_b32 s42, 0, s42",
                f"s_add_u32 s48, s48, {STB}", f"s_cmp_eq_u32 s48, {NW*STB}", "s_cselect_b32 s48, 0, s48", (f"v_add_u32 v{aa}, s42, v{a0}", MT - 1)]
        book += sorted([(f"v_add_u32 v{wa+i}, s48, v{w0+i}", last[i]) for i in range(nwr)], key=lambda x: x[1])
        n = MT * NT
        group(fX, reads(fY, 1), 0, book[:7] + list(ex) + book[7:], {3: [f"s_waitcnt lgkmcnt({min(15, NR_ - MT - 4 + 4)})"], 7: ["s_waitcnt lgkmcnt(8)"], n - 1: [f"s_waitcnt lgkmcnt({NR_ - MT - 2})"]}, zero)
        if late:
            b_ = Rec(); ep_setup(b_)
            group(fY, [], 0, ["s_add_u32 s43, s43, 1"] + b_.l, {min(BP, 3): ["s_waitcnt lgkmcnt(0)"]})
            if B0E: publish(a, ST_G2S, 4, pt, ctr=48)
            a.e("s_barrier")
            for x in reads(fX, 0): a.e(x)
            a.e(f"s_waitcnt lgkmcnt({NR_ - MT - 2})")
            return
        group(fY, reads(fX, 0), BP + 1, list(ey) + ["s_add_u32 s43, s43, 1", f"s_cmp_lt_u32 s43, {lim}"],
              {BP - 1: list(pre), BP: ["s_waitcnt lgkmcnt(0)", "s_barrier"], n - 1: [f"s_waitcnt lgkmcnt({NR_ - MT - 2})"]})
    w00 = c["S0"] * STB
    if which <= 2:
        def wrd(p, b): return [f"ds_read_b64_tr_b16 {vr((fX, fY)[p]+16*kk+4*nt+2*h,2)}, v{w0+nt} offset:{b*STB + wpos(nt, kk, h)[1]}" for kk in range(2) for nt in range(4) for h in range(2)]
        def dmf(b, fill, lo=0, hi=16):
            k = 0
            for kk in range(2):
                for nt in range(4):
                    for mt in ((0, 1) if nt % 2 == 0 else (1, 0)):
                        if lo <= k < hi:
                            a.e(f"v_mfma_f32_16x16x32_bf16 {vr(A_(mt,nt),4)}, {vr((fX, fY)[b&1]+16*kk+4*nt,4)}, {vr(AB+16*b+8*kk+4*mt,4)}, {vr(A_(mt,nt),4)}")
                            for x in fill[k]: a.e(x)
                        k += 1
        def spreadf(l, lo, hi):
            f = [[] for _ in range(16)]
            for i, x in enumerate(l): f[lo + i * (hi - lo) // len(l)].append(x)
            return f
        a.e("s_mov_b32 s43, 0"); ep_setup(a)
        CK = str(which) in DP; ck_ = aa
        def check(b):
            B = AB + 16 * b
            return [f"v_or3_b32 v{ck_}, v{B}, v{B+4}, v{B+8}", f"v_bitop3_b32 v{ck_}, v{ck_}, v{B+12}, 1 bitop3:0xa8", f"v_cmp_ne_u32 vcc, 0, v{ck_}"]
        L = a.lab("dm"); assert CK
        a.e("s_mov_b32 s53, 0"); a.e("s_mov_b32 s49, s44")
        if which == 2: a.e("s_barrier")
        for x in wrd(0, 0): a.e(x)
        if EARLY: a.e(f"s_branch {L}w")
        a.e(f"{L}p:")
        for x in try0: a.e(x)
        a.e(f"{L}w:")
        a.e("s_waitcnt vmcnt(0)")
        for x in check(0): a.e(x)
        a.e(f"s_cbranch_vccz {L}q"); a.e(f"s_sleep {os.environ.get('GNAP', '2')}")
        a.e("s_add_u32 s53, s53, 1"); a.e("s_cmp_lt_u32 s53, s61"); a.e(f"s_cbranch_scc1 {L}p"); a.e("s_mov_b32 s61, 0")
        a.e(f"{L}q:")
        mstamp(a)
        for x in seq(PR[2:], None): a.e(x)
        a.e("s_waitcnt lgkmcnt(0)")
        a.e(f"{L}:")
        for b in range(4):
            rd = wrd(1 - (b & 1), (b + 1) & 3); ex = [[] for _ in range(16)]
            ex[0], ex[1] = [[x] for x in aload((b - 1) & 3, 1)]
            if b == 0 and which == 1:
                for i, x in enumerate(["s_mov_b32 s44, s45", "s_mov_b32 s45, s46", "s_mov_b32 s46, s47", f"s_mov_b32 s47, {OOB}"]): ex[2 + i].append(x)
            if which == 2:
                ex[2].append("s_add_u32 s44, s44, 16384"); ex[10].append("s_add_u32 s44, s44, 16384")
                mv = [f"v_mov_b32 v{LO+k}, v{LO+k+2}" for k in range(6)] + [f"v_mov_b32 v{LO+6+k}, {OOB}" for k in range(2)]
                if b < 2:
                    for i, x in enumerate(mv[4*b:4*b+4]): ex[3 + i].append(x)
                if b == 3:
                    for k in range(2): ex[3 + k].append(f"v_mov_b32 v{LP+k}, v{LO+k}")
            if b == 2:
                ex[4].append("s_add_u32 s43, s43, 1"); ex[14].append("s_cmp_eq_u32 s43, 4")
                for nt, g_ in enumerate((11, 12, 13, 15)): ex[g_].append(f"v_add_u32 v{w0+nt}, {4*STB}, v{w0+nt}")
            if b == 3 and which == 1: ex[2].append("s_mov_b32 s49, s44")
            ex[7].append("s_waitcnt lgkmcnt(8)")
            ex[8], ex[9] = [[x] for x in aload(b, 0)]
            ex[10].append("s_waitcnt vmcnt(10)")
            if CK:
                for i, x in enumerate(check((b + 1) & 3)): ex[11 + i].append(x)
            fill = [rd[i:i+1] + ex[i] for i in range(16)]
            fill[14] = rd[14:16] + ex[14]; fill[15] = ex[15] + ["s_waitcnt lgkmcnt(8)"]
            if CK: fill[15] += [f"s_cbranch_vccnz {L}f{b}", f"{L}g{b}:"]
            if b == 2: fill[15].append(f"s_cbranch_scc1 {L}x")
            if b == 3: fill[15].append(f"s_branch {L}")
            dmf(b, fill)
        for b in range(4 if CK else 0):
            nb = (b + 1) & 3
            a.e(f"{L}f{b}:"); a.e("s_cselect_b32 s50, 1, 0")
            a.e(f"{L}h{b}:"); a.e(f"s_sleep {os.environ.get('GNAP', '2')}")
            if which == 2: a.e(f"s_sub_u32 s44, s44, {7*16384}")
            for j in range(4):
                bb = (nb + j) & 3
                for kk in range(2 if j < 3 else 1):
                    for x in past(seq([(bb, kk)], None)):
                        if bb >= nb and which == 1: x = x.replace("s44", "s49")
                        if bb >= nb and which == 2: x = x.replace(f", v{LO}, ", f", v{LP}, ").replace(f", v{LO+1}, ", f", v{LP+1}, ")
                        a.e(x)
            a.e("s_waitcnt vmcnt(10)")
            for x in check(nb): a.e(x)
            a.e("s_add_u32 s53, s53, 1"); a.e("s_cmp_ge_u32 s53, s61"); a.e("s_cselect_b32 s61, 0, s61"); a.e(f"s_cbranch_scc1 {L}k{b}")
            a.e(f"s_cbranch_vccnz {L}h{b}")
            a.e(f"{L}k{b}:"); a.e("s_cmp_eq_u32 s50, 1"); a.e(f"s_branch {L}g{b}")
        a.e(f"{L}x:")
    else:
        if which == 3:
            a.e(f"v_mov_b32 v{aa}, v{a0}")
            a.e("s_mov_b32 s42, 0"); a.e("s_mov_b32 s43, 0"); a.e(f"s_mov_b32 s48, {w00}")
            for i in range(nwr): a.e(f"v_add_u32 v{wa+i}, {w00}, v{w0+i}")
        if not (which == 3 and B0E): a.e("s_waitcnt lgkmcnt(0)"); a.e("s_barrier")
        mstamp(a)
        for x in reads(fX, 0): a.e(x)
        a.e(f"s_waitcnt lgkmcnt({NR_ - MT - 2})")
    if which == 4:
        def st2(j): return [(x, 0) for x in [f"s_add_u32 s36, s44, {j*224*1024}", f"buffer_store_dwordx4 {vr(C2R+4*j,4)}, v{l16}, s[16:19], s36 offen {SC}",
                            f"s_add_u32 s36, s45, {j*224*1024}", f"buffer_store_dwordx2 {vr(C2R+16+2*j,2)}, v{SO3}, s[16:19], s36 offen {SC}"]]
        assert PBB in (1, 2) and PC0 >= 2
        for st_ in range(2): stage(st2(2 * st_), st2(2 * st_ + 1), zero=st_ == 0, pre=[f"s_waitcnt vmcnt({4 * st_ + 2})"] if PBB == st_ + 1 else [])
        CW = 0
        if PC0 > 3:
            L0 = a.lab("mm"); a.e(f"{L0}:"); stage(lim=PC0); a.e(f"s_cbranch_scc1 {L0}")
        elif PC0 == 3: stage()
    if which == 3 and os.environ.get("PEEL3", "1") == "1": stage(late=True, zero=True)
    if which > 2:
        L = a.lab("mm"); a.e(f"{L}:")
        stage(pre=[f"s_waitcnt vmcnt({CW})"] if which == 4 else [])
        a.e(f"s_cbranch_scc1 {L}")
    b0 = Rec()
    if which == 4:
        a.e("s_cmp_eq_u32 s60, 1"); a.e("s_cbranch_scc1 G4_last")
        if not RPC: r_pre(b0)
    if which == 1:
        for mt in range(MT):
            for p in range(NT // 2): b0.e(f"buffer_load_dwordx4 {vr(RES2+(mt*(NT//2)+p)*4,4)}, v{LO+mt}, s[8:11], s41 offen offset:{p*1024} {SC}")
    early = True
    XW = {3: [f"s_waitcnt lgkmcnt({min(15, NR_ - MT)})"], 7: ["s_waitcnt lgkmcnt(8)"]}
    if which <= 2: dmf(3, spreadf(b0.l, 0, 8), 0, 8)
    else: group(fX, reads(fY, 1), 0, b0.l, XW)
    a.e("s_waitcnt lgkmcnt(0)")
    if which not in DL: a.e("s_barrier")
    b = Rec()
    if which in (1, 3):
        for nt in range(NT): b.e(f"ds_read_b128 {vr(cs+4*nt,4)}, v{t} offset:{nt*64}")
        if which == 3:
            for mt in range(MT): b.e(f"ds_read_b128 {vr(lns+4*mt,4)}, v{t2} offset:{mt*256}")
            for i in range(4): b.e(f"v_mov_b32 v{w0+i}, v{G4W+i}"); b.e(f"v_add_u32 v{wa+i}, {CFG[4]['S0']*CFG[4]['STB']}, v{G4W+i}")
            b.e("s_mov_b32 s42, 0"); b.e("s_mov_b32 s43, 0"); b.e(f"s_mov_b32 s48, {CFG[4]['S0']*CFG[4]['STB']}"); b.e(f"v_mov_b32 v{aa}, v{a0}")
            assert fY + 16 == RFO; r_addr(b, False)
        else:
            for mt in range(MT): b.e(f"ds_read_b64 {vr(lns+2*mt,2)}, v{t2} offset:{mt*256}")
    if which == 2: lsrd(b, 44, oST2, 24576)
    if which == 4:
        b.e(f"s_mul_i32 s36, s31, {oP1-oP0}"); b.e(f"s_add_u32 s36, s36, {oP0}")
        b.e("s_add_u32 s16, s62, s36"); b.e("s_addc_u32 s17, s63, 0"); b.e(f"s_mov_b32 s18, {XSZ}"); b.e("s_mov_b32 s19, 0x20000")
    if which <= 2: dmf(3, spreadf(b.l, 8, 15), 8, 16)
    else: group(fY, [], 0, b.l)
    mstamp(a)
    if which in (1, 3):
        AB = v(2 * MT, 2) if which == 1 else fY + 4
        def consts():
            for mt in range(MT if which == 1 else 0):
                r = lns + 2 * mt + 1
                a.e(f"v_mul_f32 v{AB+2*mt}, {f32(GC1)}, v{r}"); a.e(f"v_mul_f32 v{AB+2*mt+1}, v{r}, v{r}")
                a.e(f"v_mul_f32 v{AB+2*mt+1}, v{AB+2*mt+1}, v{AB+2*mt}"); a.e(f"v_mul_f32 v{AB+2*mt+1}, {f32(0.044715)}, v{AB+2*mt+1}")
                a.e(f"v_rcp_f32 v{r}, v{r}")
        def act(mt, nt):
            A = A_(mt, nt); P_ = [(A, tp), (A + 2, tp + 2)]; L_ = vr(lns + 2 * mt, 2); K_ = vr(AB + 2 * mt, 2)
            if which == 3: L_ = vr(lns + 4 * mt, 2); K_ = vr(lns + 4 * mt + 2, 2)
            for h in range(2):
                a.e(f"v_pk_fma_f32 {vr(A+2*h,2)}, {L_}, {vr(cs+4*nt+2*h,2)}, {vr(A+2*h,2)} op_sel_hi:[0,1,1] neg_lo:[1,0,0] neg_hi:[1,0,0]")
            for x, u in P_: a.e(f"v_pk_mul_f32 {vr(u,2)}, {vr(x,2)}, {vr(x,2)}")
            for x, u in P_: a.e(f"v_pk_fma_f32 {vr(u,2)}, {vr(u,2)}, {K_}, {K_} op_sel:[0,1,0] op_sel_hi:[1,1,0]")
            for x, u in P_: a.e(f"v_pk_mul_f32 {vr(u,2)}, {vr(u,2)}, {vr(x,2)}")
            for i in range(4): a.e(f"v_exp_f32 v{tp+i}, v{tp+i}")
            for x, u in P_: a.e(f"v_pk_fma_f32 {vr(u,2)}, {vr(u,2)}, {L_}, {L_} op_sel:[0,1,1] op_sel_hi:[1,1,1]")
            for i in range(4): a.e(f"v_rcp_f32 v{tp+i}, v{tp+i}")
            for x, u in P_: a.e(f"v_pk_mul_f32 {vr(x,2)}, {vr(x,2)}, {vr(u,2)}")
        def egroup(par, mt, nts, dst=None):
            for nt in nts: act(mt, nt)
            T = par * NT + nts[0]; P = (T >> 1) - ((par * NT) >> 1); B = A_(mt, nts[0]); D = B if dst is None else dst
            for k in range(2 * len(nts)): a.e(f"v_cvt_pk_bf16_f32 v{D+k}, v{B+2*k}, v{B+2*k+1}")
            if which == 3 and (mt < 3 or "3" in DP) and "1" in DP: mark(a, D, 1)
            if which == 1: mark(a, D, 0)
            if which == 3: return [f"s_add_u32 s36, s{44+P}, {mt*224*1024}", f"buffer_store_dwordx4 {vr(B,4)}, v{l16}, s[16:19], s36 offen {SC}"]
            return [f"buffer_store_dwordx4 {vr(B,4)}, v{so}, s[16:19], s{39+P} offen offset:{mt*256} {SC}"]
        def body(par):
            if which == 1: gs = [(0, 1), (2, 3)]
            else: gs = [(0, 1), (2, 3), (4, 5), (6,)] if par == 0 else [(1, 2), (3, 4), (5, 6), (0,)]
            k = 0; pend = []; sent = 0
            for gi_, g_ in enumerate(gs):
                for mt in range(MT):
                    if which == 3 and k == C0PUB:
                        a.e(f"s_waitcnt vmcnt({sent - 4})"); a.e("s_mov_b64 exec, 1"); a.e(f"ds_add_u32 v{EA+2}, v{EA+1}"); a.e("s_mov_b64 exec, -1"); mstamp(a)
                    if which == 3 and k == RK:
                        b_ = Rec(); r_pre(b_); l_ = [x for x in b_.l if x.startswith(("buffer", "s_mov_b32 s78"))]
                        a.e("s_cmp_eq_u32 s60, 1"); a.e(f"s_cbranch_scc1 G4_p1{par}")
                        for x in l_: a.e(x)
                        a.e(f"s_branch G4_p2{par}"); a.e(f"G4_p1{par}:")
                        for x in last_res(): a.e(x)
                        a.e(f"G4_p2{par}:")
                        if 4 <= k < C0PUB: sent += 8
                    st_ = egroup(par, mt, g_, None if gi_ < 2 else C2R + 4 * mt if gi_ == 2 else C2R + 16 + 2 * mt); k += 1
                    if which == 3 and gi_ < 3:
                        a.e(f"ds_write_b128 v{EA}, {vr(A_(mt, g_[0]) if gi_ < 2 else C2R + 4 * mt, 4)} offset:{gi_*16384 + mt*2048}")
                    if gi_ < 2: pend.append(st_)
                    n = len(pend) if (which == 1 or k <= 4 or k == 16) else 0 if k <= STQ else min(1, len(pend))
                    for _ in range(n):
                        for x in pend.pop(0): a.e(x)
                        sent += 1
            if which == 3:
                a.e("s_waitcnt lgkmcnt(0)")
                if par == 0: a.e("s_mov_b32 s44, s46"); a.e("s_mov_b32 s45, s47")
                else: a.e("s_add_u32 s45, s44, 512"); a.e("s_mov_b32 s44, s47")
        a.e("s_waitcnt lgkmcnt(0)")
        consts()
        if which == 3:
            a.e("s_cmp_eq_u32 s35, 1"); a.e(f"s_cbranch_scc1 {nm}_e1")
            body(0); a.e(f"s_branch {nm}_e2"); a.e(f"{nm}_e1:"); body(1); a.e(f"{nm}_e2:")
        else: body(0)
    if which == 2:
        xf = v(2, 2); S = v(2 * MT, 2); pp = v(2, 2); mn = v(2, 2)
        for mt in range(MT):
            a.e(f"s_add_u32 s36, s39, {mt*65536}")
            for p in range(NT // 2):
                R = res + (mt * (NT // 2) + p) * 4
                for e in range(4):
                    X = A_(mt, 2 * p) + 2 * e
                    a.e(f"v_cvt_pk_bf16_f32 v{R+e}, v{X}, v{X+1}")
                if DP: mark(a, R, 0)
                a.e(f"buffer_store_dwordx4 {vr(R,4)}, v{l16}, s[16:19], s36 offen offset:{p*1024} {SC}")
        if which in DL: a.e("s_barrier")
        if OWN3:
            a.e("s_lshl_b32 s36, s37, 11"); a.e(f"v_add_u32 v{t2}, s36, v{l16}")
            for i in range(4): a.e(f"ds_write_b128 v{t2}, {vr(res+4*i,4)} offset:{1024*i}")
        for i in range(MT * NT * 2): unpack(a, acc + 2 * i, acc + 2 * i + 1, res + i)
        mstamp(a)
        publish(a, which, 4, pt)
        if B0E: a.e("s_waitcnt lgkmcnt(0)"); a.e("s_barrier")
        mstamp(a)
        for mt in range(MT):
            B = A_(mt, 0); Sm = S + 2 * mt
            a.e(f"v_pk_add_f32 {vr(pp,2)}, {vr(B,2)}, {vr(B+2,2)}"); a.e(f"v_pk_mul_f32 {vr(xf,2)}, {vr(B,2)}, {vr(B,2)}")
            for i in range(1, NT * 2):
                if i > 1: a.e(f"v_pk_add_f32 {vr(pp,2)}, {vr(pp,2)}, {vr(B+2*i,2)}")
                a.e(f"v_pk_fma_f32 {vr(xf,2)}, {vr(B+2*i,2)}, {vr(B+2*i,2)}, {vr(xf,2)}")
            a.e(f"v_add_f32 v{Sm}, v{pp}, v{pp+1}"); a.e(f"v_add_f32 v{Sm+1}, v{xf}, v{xf+1}")
            for op in ("v_permlane16_swap_b32", "v_permlane32_swap_b32"):
                for k in range(2): a.e(f"v_mov_b32 v{pp+k}, v{Sm+k}")
                for k in range(2): a.e(f"{op} v{Sm+k}, v{pp+k}")
                a.e(f"v_pk_add_f32 {vr(Sm,2)}, {vr(Sm,2)}, {vr(pp,2)}")
        a.e(f"v_cmp_eq_u32 vcc, 0, v{G}"); a.e(f"v_cndmask_b32 v{S}, v{S+2}, v{S}, vcc"); a.e(f"v_cndmask_b32 v{S+1}, v{S+3}, v{S+1}, vcc")
        spread(a, 40, 29); a.e("s_lshl_b32 s36, s34, 8"); a.e("s_add_u32 s40, s40, s36")
        a.e(f"v_lshlrev_b32 v{t2}, 3, v{lane}")
        a.e("s_bfm_b64 exec, 32, 0")
        a.e(f"buffer_store_dwordx2 {vr(S,2)}, v{t2}, s[44:47], s40 offen {SC}")
        a.e("s_mov_b64 exec, -1")
    if which == 4:
        for mt in range(MT):
            a.e(f"s_add_u32 s36, s39, {mt*65536}")
            for p in range(NT // 2):
                B = A_(mt, 2 * p)
                for e in range(4): a.e(f"v_cvt_pk_bf16_f32 v{B+e}, v{B+2*e}, v{B+2*e+1}")
                if "r" in DP: mark(a, B, 1)
                a.e(f"buffer_store_dwordx4 {vr(B,4)}, v{l16}, s[16:19], s36 offen offset:{p*1024} {SC}")
    if which != 2:
        if which in DL: a.e("s_barrier")
        mstamp(a)
        if which == 4 and "r" not in DP: publish(a, which, 4, pt)
        mstamp(a)
    if which == 4:
        a.e("s_branch NEXT")
        a.e("G4_last:")
        PX = 208; oa = 224; xf = 226
        group(fX, reads(fY, 1), 0, [(f"s_load_dwordx2 s[6:7], s[0:1], {D_OUT}", 9)], XW)
        a.e("s_waitcnt lgkmcnt(0)")
        b = Rec()
        lsrd(b, 16, oX1P if "f" in DP else MB, XSZ)
        b.srd(20, 6, 4 * MB)
        if "f" not in DP:
            b.e("s_lshl_b32 s44, s29, 2"); b.e("s_add_u32 s44, s44, s30"); b.e("s_lshl_b32 s44, s44, 7"); b.e("s_xor_b32 s45, s44, 4096")
            b.e("s_add_u32 s44, s44, s55"); b.e(f"s_add_u32 s44, s44, {oFP}"); b.e("s_add_u32 s45, s45, s55"); b.e(f"s_add_u32 s45, s45, {oFP}")
            b.e(f"v_mov_b32 v{pt+1}, s45"); b.e(f"v_mov_b32 v{pt+2}, s52"); b.e(f"v_mov_b32 v{pt+3}, 0")
        else: b.e("s_add_u32 s44, s40, 65536")
        b.e("s_lshl_b32 s46, s28, 3"); b.e("s_add_u32 s46, s46, s37"); b.e("s_lshl_b32 s47, s31, 1"); b.e("s_add_u32 s46, s46, s47"); b.e("s_lshl_b32 s46, s46, 15")
        b.e("s_lshl_b32 s47, s38, 5"); b.e("s_add_u32 s46, s46, s47"); b.e(f"s_add_u32 s47, s46, {16*2048}")
        b.e(f"v_and_b32 v{oa+1}, 1, v{G}"); b.e(f"v_lshlrev_b32 v{oa}, 11, v{J}"); b.e(f"v_lshl_add_u32 v{oa}, v{oa+1}, 5, v{oa}")
        b.e(f"v_lshrrev_b32 v{oa+1}, 1, v{G}"); b.e(f"v_lshl_add_u32 v{oa}, v{oa+1}, 4, v{oa}")
        FULLN = os.environ.get("FULLN", "1") == "1"
        if FULLN:
            b.e(f"v_lshrrev_b32 v{oa+1}, 3, v{J}"); b.e(f"v_mul_u32_u24 v{oa+1}, {8*2048 - 64}, v{oa+1}"); b.e(f"v_sub_u32 v{oa}, v{oa}, v{oa+1}")
            b.e(f"v_add_u32 v{oa+1}, {8*2048}, v{oa}")
        OT = int(os.environ.get("OT", "0"))
        if OT == 1: b.e("s_mov_b64 exec, 1"); b.e(f"buffer_load_dword v{xf}, v{oa}, s[20:23], s46 offen {SC}"); b.e("s_mov_b64 exec, -1")
        if OT == 2:
            for k in range(4): b.e(f"buffer_load_dword v{xf}, v{oa+(k&1)}, s[20:23], s{46+(k>>1)} offen {SC}")
        group(fY, [], 0, b.l)
        mstamp(a)
        def send(m0_):
            for i in range(2):
                a.e(f"s_add_u32 s36, s41, {i*65536}")
                for p in range(2):
                    B = A_(m0_ + i, 2 * p)
                    for e in range(4): a.e(f"v_cvt_pk_bf16_f32 v{B+e}, v{B+2*e}, v{B+2*e+1}")
                    if "f" in DP: mark(a, B, 1)
                    a.e(f"buffer_store_dwordx4 {vr(B,4)}, v{l16}, s[16:19], s36 offen offset:{p*1024} {SC}")
        a.e("s_cmp_eq_u32 s31, 0"); a.e("s_cbranch_scc1 G4_k0")
        send(0)
        for i in range(0, 32, 2): a.e(f"v_pk_mov_b32 {vr(acc+i,2)}, {vr(acc+32+i,2)}, {vr(acc+32+i,2)} op_sel:[0,1]")
        a.e("s_branch G4_k1")
        a.e("G4_k0:")
        send(2)
        a.e("G4_k1:")
        a.e("s_mov_b32 s78, 0x3f80"); a.e("s_mov_b32 s79, 0x3f800000")
        def addp(k, R):
            B = A_(k >> 1, 2 * (k & 1))
            if DOT:
                for e in range(8): a.e(f"v_dot2_f32_bf16 v{B+e}, v{R+e//2}, s{78+(e&1)}, v{B+e}")
                return
            for e in range(4):
                unpack(a, xf + 2 * (e & 1), xf + 1 + 2 * (e & 1), R + e)
                a.e(f"v_pk_add_f32 {vr(B+2*e,2)}, {vr(B+2*e,2)}, {vr(xf+2*(e&1),2)}")
        for k in range(4): addp(k, RX[2 * k])
        if "f" not in DP:
            a.e("s_waitcnt vmcnt(0)")
            a.e("s_mov_b64 exec, 1"); a.e(f"buffer_store_dword v{pt+2}, v{pt+3}, s[56:59], s44 offen {SC}"); a.e("s_mov_b64 exec, -1")
        mstamp(a)
        for k in range(4): addp(k, RX[2 * k + 1])
        if "f" in DP:
            data_poll(a, [f"buffer_load_dwordx4 {vr(PX+4*(2*i+p),4)}, v{l16}, s[16:19], s{(40, 44)[i]} offen offset:{p*1024} {SC}" for i in range(2) for p in range(2)],
                      [PX + 4 * k for k in range(4)], t, int(os.environ.get("FNAP", "2")), 0, int(os.environ.get("FCAN", "0")))
            mstamp(a)
        else:
            poll_core(a, pt, [pt + 1], 1, nap=2)
            mstamp(a)
            for i in range(2):
                a.e(f"s_add_u32 s36, s40, {i*65536}")
                for p in range(2): a.e(f"buffer_load_dwordx4 {vr(PX+4*(2*i+p),4)}, v{l16}, s[16:19], s36 offen offset:{p*1024} {SC}")
        for k in range(4):
            if "f" not in DP: a.e(f"s_waitcnt vmcnt({3 - (k & 1) if FULLN else 3})")
            addp(k, PX + 4 * k)
            B = A_(k >> 1, 2 * (k & 1))
            if os.environ.get("EPS"):
                for e in range(8): a.e(f"v_mul_f32 v{B+e}, {f32(1 + float(os.environ['EPS']) * (1 if e & 1 else -1))}, v{B+e}")
            for e in range(4): a.e(f"v_cvt_pk_bf16_f32 v{B+e}, v{B+2*e}, v{B+2*e+1}")
            for e in range(2): a.e(f"v_permlane16_swap_b32 v{B+e}, v{B+2+e}")
            if not FULLN: a.e(f"buffer_store_dwordx4 {vr(B,4)}, v{oa}, s[20:23], s{46+(k>>1)} offen offset:{64*(k&1)} {os.environ.get('OS', '')}")
            elif k & 1:
                X, Y, T = B - 8, B, B + 4
                for e in range(4): a.e(f"v_mov_b32 v{T+e}, v{X+e}")
                for e in range(4): a.e(f"v_mov_b32_dpp v{X+e}, v{Y+e} row_ror:8 row_mask:0xf bank_mask:0xc")
                for e in range(4): a.e(f"v_mov_b32_dpp v{Y+e}, v{T+e} row_ror:8 row_mask:0xf bank_mask:0x3")
                a.e(f"buffer_store_dwordx4 {vr(X,4)}, v{oa}, s[20:23], s{46+(k>>1)} offen {os.environ.get('OS', SC)}")
                a.e(f"buffer_store_dwordx4 {vr(Y,4)}, v{oa+1}, s[20:23], s{46+(k>>1)} offen {os.environ.get('OS', SC)}")
        a.e("s_branch K_fin")
    assert v.hi <= {1: RES2, 2: RES2, 3: RYY, 4: 176}[which], v.hi
    return v.hi

def k_mega(a):
    nm = KNAME; a.begin_kernel(nm)
    a.e("s_cmp_ge_u32 s2, 256"); a.e("s_cbranch_scc1 K_end")
    a.e(f"s_load_dwordx8 s[8:15], s[0:1], {A_K}"); a.e(f"s_load_dwordx2 s[6:7], s[0:1], {A_Q}"); a.e(f"s_load_dwordx8 s[68:75], s[0:1], {B_W1}")
    a.e(f"s_load_dwordx2 s[4:5], s[0:1], {D_WS}"); a.e(f"s_load_dwordx2 s[84:85], s[0:1], {D_DBG}"); a.e("s_memrealtime s[46:47]")
    a.e(f"s_load_dwordx2 s[96:97], s[0:1], {A_SSMD}")
    a.e("v_lshrrev_b32 v1, 6, v0"); a.e("v_readfirstlane_b32 s30, v1")
    if CODEPF:
        a.e("s_getpc_b64 s[48:49]"); a.e("K_pc:")
        a.e("s_lshr_b32 s36, s2, 3"); a.e("s_lshl_b32 s36, s36, 11")
        a.e("v_lshlrev_b32 v4, 2, v0"); a.e("v_add_u32 v4, s36, v4")
        a.e("v_cmp_gt_u32 vcc, K_end-K_pc-8, v4"); a.e("s_and_saveexec_b64 s[36:37], vcc"); a.e("s_cbranch_execz K_3")
        a.e("v_mov_b32 v5, s49"); a.e("v_add_co_u32 v4, vcc, s48, v4"); a.e("v_addc_co_u32 v5, vcc, 0, v5, vcc")
        a.e("global_load_dword v250, v[4:5], off")
        a.e("K_3:"); a.e("s_mov_b64 exec, -1")
    for _ in range(int(os.environ.get("SDELAY", "0"))): a.e("s_sleep 127")
    front_loads(a)
    a.e("v_and_b32 v1, 63, v0"); a.e("v_lshlrev_b32 v2, 4, v1"); a.e("v_lshlrev_b32 v3, 2, v1")
    a.e("s_and_b32 s32, s2, 7"); a.e("s_lshr_b32 s33, s2, 3")
    a.e("s_and_b32 s28, s32, 2"); a.e("s_lshr_b32 s34, s32, 2"); a.e("s_or_b32 s28, s28, s34")
    a.e("s_lshl_b32 s28, s28, 2"); a.e("s_and_b32 s34, s33, 3"); a.e("s_add_u32 s28, s28, s34")
    a.e("s_and_b32 s31, s32, 1"); a.e("s_lshr_b32 s33, s33, 2")
    a.e("s_lshl_b32 s29, s31, 3"); a.e("s_add_u32 s29, s29, s33")
    if MAP == 8:
        a.e("s_lshr_b32 s33, s2, 3")
        a.e("s_and_b32 s28, s33, 4"); a.e("s_lshl_b32 s28, s28, 1"); a.e("s_and_b32 s34, s32, 4"); a.e("s_or_b32 s28, s28, s34"); a.e("s_and_b32 s34, s33, 3"); a.e("s_or_b32 s28, s28, s34")
        a.e("s_and_b32 s29, s32, 3"); a.e("s_lshl_b32 s29, s29, 2"); a.e("s_lshr_b32 s33, s33, 3"); a.e("s_or_b32 s29, s29, s33")
        a.e("s_lshr_b32 s31, s29, 3"); a.e("s_and_b32 s33, s29, 7")
    if MAP == 2:
        a.e("s_lshr_b32 s33, s2, 3")
        a.e("s_and_b32 s28, s32, 2"); a.e("s_lshl_b32 s28, s28, 2"); a.e("s_and_b32 s34, s32, 4"); a.e("s_or_b32 s28, s28, s34")
        a.e("s_and_b32 s34, s32, 1"); a.e("s_lshl_b32 s34, s34, 1"); a.e("s_or_b32 s28, s28, s34"); a.e("s_and_b32 s34, s33, 1"); a.e("s_or_b32 s28, s28, s34")
        a.e("s_lshr_b32 s29, s33, 1"); a.e("s_lshr_b32 s31, s29, 3"); a.e("s_and_b32 s33, s29, 7")
    a.e({4: "s_lshl_b32 s67, s33, 1", 8: "s_lshl_b32 s67, s33, 2", 2: "s_mov_b32 s67, s29"}[MAP]); a.e(f"s_and_b32 s67, s67, {int(os.environ.get('RMASK', '0'))}")
    a.e(f"s_xor_b32 s99, s29, {os.environ.get('G1X', '1')}")
    a.e("s_mov_b32 s60, 0"); a.e("s_mov_b32 s61, 40000"); a.e("s_mov_b32 s52, 0")
    a.e("s_mov_b32 s55, 0"); a.e("s_mov_b32 s92, 0"); a.e("s_mov_b32 s93, 0"); a.e("s_mov_b32 s94, 0")
    a.srd(56, 4, HSB)
    if os.environ.get("FIXT"): a.e("s_mov_b32 s101, s46")
    r_addr(a)
    a.e(f"s_add_u32 s62, s4, {LB0}"); a.e("s_addc_u32 s63, s5, 0")
    if STAMP:
        a.e("s_mov_b32 s66, 1"); a.e("v_mov_b32 v255, -1"); a.e("s_mov_b32 s95, 0"); a.e("v_writelane_b32 v255, s46, 0")
    mstamp(a)
    if os.environ.get("WBENCH"):
        a.e("s_waitcnt vmcnt(0)"); a.e("s_barrier")
        a.e("s_cmp_lt_u32 s30, 6"); a.e("s_cbranch_scc1 WB_end")
        for w in (1, 2, 3, 4):
            mstamp(a); w_setup(a, w); a.e("s_waitcnt vmcnt(0)"); mstamp(a); a.e("s_sleep 40")
        a.e("WB_end:"); a.e("s_branch K_dump")
    front_a(a); mstamp(a)
    for r in range(238, 248): a.e(f"v_mov_b32 v{r}, 0")
    a.e("s_cmp_ge_u32 s30, 4"); a.e("s_cbranch_scc1 FR_b")
    front_conv(a); hi = 0
    mstamp(a)
    front_arrive(a, True)
    a.e("s_branch FR_end")
    a.e("FR_b:")
    front_b(a)
    a.e("FR_end:")
    mstamp(a)
    a.e("LAYER:")
    if os.environ.get("XDELAY"): a.e(f"s_sleep {os.environ['XDELAY']}")
    hi = max(hi, r_stage(a, False))
    mstamp(a)
    a.e("s_cmp_ge_u32 s30, 4"); a.e("s_cbranch_scc1 LOADERS")
    if CPRIO: a.e(f"s_setprio {CPRIO}")
    for w in (1, 2, 3, 4):
        a.lines.append(f"; ---- G{w}: compute waves (set-up, K loop, epilogue, publish)")
        hi = max(hi, g_compute(a, w))
    a.e("LOADERS:")
    if SB[2]:
        a.e("s_cmp_lg_u32 s60, 0"); a.e("s_cbranch_scc1 LD_0"); sb(a, SB[2]); a.e("LD_0:")
    if PRIO: a.e(f"s_setprio {PRIO}")
    a.e("s_cmp_ge_u32 s30, 6"); a.e("s_cbranch_scc1 WLOAD")
    for w in (1, 2, 3, 4): a_loader(a, w)
    a.e("s_branch NEXT")
    a.e("WLOAD:")
    a.e("s_cmp_eq_u32 s60, 1"); a.e("s_cbranch_scc1 WL_1")
    w_setup(a, 1, pre=False); w1_slots(a, range(9 - W1G), pace=12); mstamp(a)
    a.e("s_branch WL_2")
    a.e("WL_1:")
    w_setup(a, 1, pre=False); w1_slots(a, range(3 - W1L), pace=12)
    a.e("WL_2:")
    for w in (1, 2, 3, 4):
        w_loader(a, w)
        if w == 2:
            c = CFG[3]; w_setup(a, 3, pre=False); a.e(f"s_mov_b32 s42, {(c['S0'] + 2) % c['NW'] * c['STB']}"); a.e("s_mov_b32 s44, 2")
        if w == 3: w_setup(a, 4)
    a.e("NEXT:")
    a.e("s_setprio 0")
    a.e("s_add_u32 s60, s60, 1"); a.e(f"s_add_u32 s55, s55, {LSTR}")
    a.e(f"s_add_u32 s62, s62, {LSTR}"); a.e("s_addc_u32 s63, s63, 0")
    a.e("s_branch LAYER")
    a.e("K_fin:")
    if os.environ.get("FIXT"):
        a.e("FX_l:"); a.e("s_sleep 4"); a.e("s_memrealtime s[64:65]"); a.e("s_waitcnt lgkmcnt(0)"); a.e("s_sub_u32 s64, s64, s101")
        if os.environ.get("FIX0"): a.e("s_add_u32 s64, s64, s101"); a.e("s_lshl_b32 s64, s64, 6"); a.e("s_sub_u32 s64, s64, s52"); a.e("s_lshr_b32 s64, s64, 6")
        a.e(f"s_cmp_lt_u32 s64, {os.environ['FIXT']}"); a.e("s_cbranch_scc1 FX_l")
    if STAMP:
        a.e("K_dump:")
        a.e("s_waitcnt vmcnt(0)")
        mstamp(a)
        a.srd(96, 4, 16 * MB, off=200 * MB)
        a.e("s_lshl_b32 s66, s2, 3"); a.e("s_add_u32 s66, s66, s30"); a.e("s_lshl_b32 s66, s66, 8")
        a.e("v_writelane_b32 v255, s95, 63")
        a.e("buffer_store_dword v255, v3, s[96:99], s66 offen")
        if os.environ.get("DBGOUT"):
            a.e("s_cmp_lg_u32 s66, 0"); a.e("s_cbranch_scc1 K_end")
            a.e(f"s_load_dwordx2 s[96:97], s[0:1], {D_DBG}"); a.e("s_mov_b32 s98, 64"); a.e("s_waitcnt lgkmcnt(0)")
            a.e("v_readlane_b32 s64, v255, 0"); a.e("v_mov_b32 v10, 0")
            for i, j in enumerate(eval(os.environ["DBGOUT"])):
                a.e(f"v_readlane_b32 s65, v255, {j}"); a.e("s_sub_u32 s65, s65, s64"); a.e("v_mov_b32 v11, s65")
                a.e(f"buffer_store_dword v11, v10, s[96:99], 0 offen offset:{8+4*i}")
    a.e("s_endpgm")
    emit_subs(a)
    a.e("K_end:")
    assert hi <= PV
    a.end_kernel(nm, 256)
    if TAB: tab_data(a)
    a.launches.append(f"; @launch grid=(256,1,1) block=(512,1,1) lds={LDS_TOTAL}")

HEADER = open("interleave_layers__ssm_conv_h3__mixer_s_mlp__prompt.s.ref").read().split("; Override launch")[0]
DOC = """; One persistent kernel, 256 workgroups x 8 waves (one per CU), generated by dev/gen28.py.
"""
def main(out):
    a = Asm()
    k_mega(a)
    DS = os.environ.get("DS")
    if DS:
        o = []
        for l in a.lines:
            o.append(l)
            if "buffer_store_dwordx" in l and "sc1" in l and any(k in l for k in DS.split(",")): o.append(l.replace(" sc1", ""))
        a.lines = o
    notes = {
        "K_pc:": "each workgroup reads 2 KB of this kernel's code so that later instruction fetches are served on chip",
        "KV_t0:": "k / v / tap loads of the u^T tile (64 times x 128 channels); workgroup 0 has posted the launch tag (a clock value) in d_debug",
        "HB_2:": "u^T tile out, arrival counters initialised to the tag, shifted filter copies into LDS, LayerNorm(q)",
        "CV_w:": "long causal convolution as Toeplitz MFMAs, one channel per wave",
        "FR_b:": "waves 4-7 beside the convolution: memory-locality vote (timed loads, layout choice only), weight column sums, weight touches",
        "LAYER:": "row stage: residual sums, LayerNorm chain, x + LN(x)*y for 8 rows per workgroup",
        "LOADERS:": "waves 4,5: activation tiles by LDS-DMA (after the producers' counters are complete)",
        "WLOAD:": "waves 6,7: weight tiles by LDS-DMA in their original layout (read back with transposing LDS loads)",
        "G4_last:": "last layer: the two K halves exchange half tiles, add the residuals and write the output",
    }
    o = []
    for l in a.lines:
        if l.strip() in notes: o.append("; ---- " + notes[l.strip()])
        if l.strip().startswith("s_sleep"): l += "    ; back-off inside a wait loop"
        o.append(l)
    a.lines = o
    open(out, "w").write(a.text(HEADER + DOC))
    print("nops added:", a.nops_added)

if __name__ == "__main__":
    main(sys.argv[1] if len(sys.argv) > 1 else "interleave_layers__ssm_conv_h3__mixer_s_mlp__prompt.s")
```

```python
import sys, os, math, struct
sys.path.insert(0, "dev")
from asmgen import Asm

KNAME = "interleave_layers__ssm_conv_h3__mixer_s_mlp__prompt_kernel"
MB = 1 << 20
UT, Y = 24 * MB, 28 * MB
CSP = {1: 20 * MB, 3: 20 * MB + 128 * 1024}
A_Q, A_K, A_V, A_SH, A_SSMK, A_SSMD, B_X, B_W1, B_W2, B_W3, B_W4, D_OUT, D_DBG, D_WS = [8 * i for i in range(14)]
STAMP = int(os.environ.get("STAMP", "0"))
def f32(x): return "0x%08x" % struct.unpack("<I", struct.pack("<f", x))[0]
GC1 = -2.0 * math.sqrt(2.0 / math.pi) * math.log2(math.e)
GC2 = GC1 * 0.044715

class VA:
    def __init__(self, start=1): self.n = start; self.hi = start
    def __call__(self, cnt=1, al=None):
        if al is None: al = 2 if cnt > 1 else 1
        self.n = (self.n + al - 1) // al * al
        r = self.n; self.n += cnt; self.hi = max(self.hi, self.n); return r
def vr(b, n): return f"v[{b}:{b+n-1}]" if n > 1 else f"v{b}"

def unpack(a, lo, hi, src):
    a.e(f"v_lshlrev_b32 v{lo}, 16, v{src}")
    a.e(f"v_and_b32 v{hi}, 0xffff0000, v{src}")
RND = int(os.environ.get("RND", "0"))
def round2(a, x, y, tmp):
    if not RND: return
    a.e(f"v_cvt_pk_bf16_f32 v{tmp}, v{x}, v{y}")
    unpack(a, x, y, tmp)
def round1(a, x):
    if not RND: return
    a.e(f"v_cvt_pk_bf16_f32 v{x}, v{x}, v{x}")
    a.e(f"v_lshlrev_b32 v{x}, 16, v{x}")
def red_g(a, x, t):
    a.e(f"v_mov_b32 v{t}, v{x}"); a.e(f"v_permlane16_swap_b32 v{x}, v{t}"); a.e(f"v_add_f32 v{x}, v{x}, v{t}")
    a.e(f"v_mov_b32 v{t}, v{x}"); a.e(f"v_permlane32_swap_b32 v{x}, v{t}"); a.e(f"v_add_f32 v{x}, v{x}, v{t}")
def ln_finish(a, mean, var, rs, s=None):
    round1(a, mean); round1(a, var)
    a.e(f"v_add_f32 v{var}, {f32(1e-5)}, v{var}"); round1(a, var)
    if not RND and s is None: a.e(f"v_rsq_f32 v{rs}, v{var}"); return
    a.e(f"v_sqrt_f32 v{var}, v{var}"); round1(a, var)
    if s is not None: a.e(f"v_mov_b32 v{s}, v{var}")
    a.e(f"v_rcp_f32 v{rs}, v{var}")


FLG = 22 * MB + int(os.environ.get("FOFF", "0"))
LB0, LSTR, GSTR = 32 * MB, 4 * MB, 16 * MB
oH2 = 4 * MB; oSM = oH2 + 1792 * 1024; oFP = 16384; oST2 = oSM + 32768; oLNS = oSM + 65536
oX3, oX1P, oP0, oP1 = [i * 512 * 1024 for i in range(4)]
DP = os.environ.get("DP", "rf12")
if "r" in DP: oP0, oP1 = oX3, oX1P
def mark(a, r, bit): a.e(f"v_or_b32 v{r}, 1, v{r}" if bit else f"v_and_b32 v{r}, -2, v{r}")
DOT = int(os.environ.get("DOT", "1"))
def data_poll(a, loads, regs, t, nap, first=0, canary=False):
    L = a.lab("dp"); D = a.lab("dq")
    if canary:
        a.e("s_bfm_b64 exec, 1, 63"); data_poll(a, loads, regs, t, nap, first); a.e("s_mov_b64 exec, -1"); first = 0
    a.e("s_mov_b32 s53, 0")
    if first:
        f2 = int(os.environ.get("RFIRST2", "10"))
        if f2: a.e(f"s_sleep {f2}")
        a.e("s_cmp_ge_u32 s30, 6"); a.e(f"s_cbranch_scc1 {L}"); a.e(f"s_sleep {first - f2}")
    a.e(f"{L}:")
    for x in loads: a.e(x)
    a.e("s_waitcnt vmcnt(0)")
    a.e(f"v_bitop3_b32 v{t}, v{regs[0]}, v{regs[1]}, v{regs[2]} bitop3:0x80"); a.e(f"v_bitop3_b32 v{t}, v{t}, v{regs[3]}, 1 bitop3:0x80")
    a.e(f"v_cmp_eq_u32 vcc, 0, v{t}"); a.e(f"s_cbranch_vccz {D}")
    a.e(f"s_sleep {nap}")
    a.e("s_add_u32 s53, s53, 1"); a.e("s_cmp_lt_u32 s53, s61"); a.e(f"s_cbranch_scc1 {L}")
    a.e("s_mov_b32 s61, 0")
    a.e(f"{D}:")
XSZ = 512 * 1024 - 8192; H2SZ = 1792 * 1024 - 8192
HSB = 160 * MB; PITCH = 65536 + int(os.environ.get("SKEW", "0")); oHS = MB
def fso(stage): return int(stage * 256)
def spread(a, d, src):
    a.e(f"s_lshr_b32 s53, s{src}, 3"); a.e("s_lshl_b32 s53, s53, 14"); a.e(f"s_and_b32 s{d}, s{src}, 7"); a.e(f"s_lshl_b32 s{d}, s{d}, 10"); a.e(f"s_add_u32 s{d}, s{d}, s53")
ST_R, ST_G1, ST_G2, ST_G3, ST_G4, ST_R2, ST_G3B, ST_G3A = range(8); ST_G2S = 5.5
F_KVT, F_FRONT, F_CS = FLG, FLG + 32768, FLG + 49152
LDS_TOTAL = 163840
AUX = LDS_TOTAL - 4096
SC = "sc1"
PSLEEP = int(os.environ.get("PSLEEP", "5"))
ROT = int(os.environ.get("ROT", "1"))
PACE = int(os.environ.get("PACE", "8"))
PDEPTH = int(os.environ.get("PDEPTH", "1"))
WROT = int(os.environ.get("WROT", "1"))
PRIO = int(os.environ.get("PRIO", "0"))
STQ = int(os.environ.get("STQ", "12"))
CPRIO = int(os.environ.get("CPRIO", "0"))
FSLEEP = int(os.environ.get("FSLEEP", "3"))
CSPRIO = int(os.environ.get("CSPRIO", "1"))
NT = os.environ.get("NT", "nt"); HALO = int(os.environ.get("HALO", "0")); NTK = os.environ.get("NTK", "" if HALO else NT); NTH = os.environ.get("NTH", NT)
W1F = int(os.environ.get("W1F", "7"))
WSC = eval(os.environ.get("WSC", "{}"))
TLBW = int(os.environ.get("TLBW", "0"))
T12 = eval(os.environ.get("T12", "{}"))
T23 = eval(os.environ.get("T23", "()"))
OWN3 = int(os.environ.get("OWN3", "1"))
PUB2 = int(os.environ.get("PUB2", "4"))
MAP = int(os.environ.get("MAP", "4"))
HSPLIT = int(os.environ.get("HSPLIT", "2"))
W1G = int(os.environ.get("W1G", "9"))
PWAIT = int(os.environ.get("PWAIT", "8"))
DL = eval(os.environ.get("DL", "[2,4]"))
PACES = eval(os.environ.get("PACES", "{4:6}"))
C0PUB = int(os.environ.get("C0PUB", "6"))
LNSL = AUX + 1024

CFG = {1: dict(WM=4, WN=1, MT=2, NT=4, KBT=32, NS=16, NA=1.5, NW=16, A=oX3, W=B_W1, LDW=2048),
       2: dict(WM=4, WN=1, MT=2, NT=4, KBT=32, NS=16, NA=0, NW=16, A=oHS, W=B_W2, LDW=2048),
       3: dict(WM=2, WN=2, MT=4, NT=7, KBT=32, NS=16, NA=3, NW=3, A=oX1P, W=B_W3, LDW=7168, NPRE=2, WR=1, S0=2, WB=73728),
       4: dict(WM=2, WN=2, MT=4, NT=4, KBT=112, NS=28, NA=3, NW=6, A=oH2, W=B_W4, LDW=2048)}
for w, d in eval(os.environ.get("CFG", "{}")).items(): CFG[w].update(d)
for c in CFG.values():
    c.setdefault("NPRE", c["NW"]); c.setdefault("APRE", min(c["NA"], 3)); c.setdefault("WR", 1)
    c["TN16"] = c["WN"] * c["NT"]; c["STB"] = c["TN16"] * 2048; c.setdefault("WB", int(c["NA"] * 16384)); c.setdefault("S0", 0)
    c["RB"] = c["TN16"] * 32
    assert c["WB"] + c["NW"] * c["STB"] <= AUX
NX = 0
def nib(t): return sum(x << (4 * i) for i, x in enumerate(t))
CSO = {1: AUX + 3584, 3: AUX}

LW = AUX + 3072
def mstamp(a, force=False):
    if os.environ.get("JIT"):
        X = a.lab("jit")
        a.e("s_cselect_b32 s101, 1, 0"); a.e("s_memtime s[64:65]"); a.e("s_waitcnt lgkmcnt(0)"); a.e(f"s_and_b32 s64, s64, {os.environ['JIT']}"); a.e("s_cmp_lg_u32 s64, 0")
        a.e(f"s_cbranch_scc1 {X}"); a.e("s_sleep 50"); a.e(f"{X}:"); a.e("s_cmp_eq_u32 s101, 1")
        return
    if not STAMP or (os.environ.get("GST") and not force): return
    a.e(("s_memrealtime" if STAMP == 2 else "s_memtime") + " s[64:65]"); a.e("s_mov_b32 s100, m0"); a.e("s_mov_b32 m0, s66"); a.e("s_waitcnt lgkmcnt(0)")
    a.e("v_writelane_b32 v255, s64, m0"); a.e("s_mov_b32 m0, s100")
    a.e("s_add_u32 s66, s66, 1")

def lsrd(a, d, off, nbytes, prev=False):
    if prev:
        a.e(f"s_sub_u32 s{d}, s62, {LSTR - off:#x}"); a.e(f"s_subb_u32 s{d+1}, s63, 0")
        a.e(f"s_mov_b32 s{d+2}, {nbytes:#x}"); a.e(f"s_mov_b32 s{d+3}, 0x20000")
    else: a.srd(d, 62, nbytes, off=off)

def hs_srd(a, d):
    if "2" in DP: a.srd(d, 4, 128 * PITCH, off=HSB); return
    a.e("s_lshl_b32 s53, s60, 24"); a.e(f"s_add_u32 s53, s53, {HSB}")
    a.e(f"s_add_u32 s{d}, s4, s53"); a.e(f"s_addc_u32 s{d+1}, s5, 0"); a.e(f"s_mov_b32 s{d+2}, {128*PITCH}"); a.e(f"s_mov_b32 s{d+3}, 0x20000")

def group_off(a, d, m):
    a.e(f"s_lshr_b32 s53, s{m}, 3"); a.e("s_lshl_b32 s53, s53, 2"); a.e(f"s_and_b32 s54, s{m}, 3"); a.e("s_add_u32 s53, s53, s54"); a.e("s_lshl_b32 s53, s53, 24")
    a.e(f"s_lshr_b32 s54, s{m}, 2"); a.e("s_xor_b32 s54, s54, s94"); a.e("s_and_b32 s54, s54, 1"); a.e("s_lshl_b32 s54, s54, 13")
    a.e(f"s_add_u32 s{d}, s53, s54"); a.e(f"s_add_u32 s{d}, s{d}, {LB0}")

PV = 240
def poll_core(a, t, addrs, mask, extra=None, depth=1, cnt=0, nap=None):
    L = a.lab("poll"); D = a.lab("pok")
    n = len(addrs) + (1 if extra else 0)
    if depth > 1: t0 = t; regs = [PV + k * len(addrs) for k in range(depth)]; assert not extra and regs[-1] + len(addrs) <= 256
    else: regs = [t]
    def ld(r):
        for i, ad in enumerate(addrs): a.e(f"buffer_load_dword v{r+i}, v{ad}, s[56:59], 0 offen {SC}")
        if extra: a.e(extra[0])
    a.e("s_mov_b32 s53, 0"); a.e(f"s_add_u32 s54, s52, {cnt}")
    if mask != -1: a.e(f"s_bfm_b64 exec, {mask.bit_length()}, 0")
    for r in regs[:-1]: ld(r); a.e(f"s_sleep {PSLEEP}")
    a.e(f"{L}:")
    for k in range(depth):
        ld(regs[k - 1]); r = regs[k]
        a.e(f"s_waitcnt vmcnt({n*(depth-1)})")
        for i in range(len(addrs)): a.e(f"v_xor_b32 v{r+i}, s54, v{r+i}")
        for i in range(1, len(addrs)): a.e(f"v_or_b32 v{r}, v{r}, v{r+i}")
        if extra:
            for x in extra[1:]: a.e(x)
        a.e(f"v_cmp_eq_u32 vcc, 0, v{r}")
        a.e("s_cmp_eq_u64 vcc, exec"); a.e(f"s_cbranch_scc1 {D}")
        a.e(f"s_sleep {PSLEEP if nap is None else nap}")
    a.e("s_add_u32 s53, s53, 1"); a.e("s_cmp_lt_u32 s53, s61"); a.e(f"s_cbranch_scc1 {L}")
    a.e("s_mov_b32 s61, 0")
    a.e(f"{D}:")
    if mask != -1: a.e("s_mov_b64 exec, -1")

SPLIT = {ST_G1: "sign", ST_G3: "half", ST_G3A: "half", ST_G3B: "half"}
def flag_addr(a, r, stage, prev=False):
    so = fso(stage) - (LSTR if prev else 0)
    a.e(f"s_add_u32 s54, s55, {so & 0xffffffff:#x}")
    sp = SPLIT.get(stage)
    if sp == "half": a.e("s_lshl_b32 s53, s31, 7"); a.e("s_add_u32 s54, s54, s53")
    a.e(f"v_mov_b32 v{r}, s54")
    if sp == "sign":
        a.e("s_add_u32 s53, s54, 128"); a.e(f"v_writelane_b32 v{r}, s53, 1")
        a.e("s_add_u32 s53, s53, s93"); a.e(f"v_writelane_b32 v{r}, s53, 3")
        a.e("s_add_u32 s53, s54, s92"); a.e(f"v_writelane_b32 v{r}, s53, 2")
        return 0xf, 8
    return 1, 8 if sp else 16
def own_wait(a, stage, prev, t):
    if not PWAIT or stage == ST_R: return
    k = {ST_G1: 1, ST_G2: 2, ST_G4: 3}[stage] - (3 if prev else 0)
    a.e(f"s_mul_i32 s54, s60, {2 if 'r' in DP else 3}"); a.e(f"s_add_u32 s54, s54, {k}")
    lds_spin(a, LW + 56, "s54", t, nap=PWAIT)
def flag_try(a, r, ad):
    a.e("s_mov_b64 exec, 1"); a.e(f"buffer_load_dword v{r}, v{ad}, s[56:59], 0 offen {SC}"); a.e("s_mov_b64 exec, -1")
def flag_check(a, r, ad, cnt):
    D = a.lab("fok")
    a.e(f"v_readfirstlane_b32 s53, v{r}"); a.e(f"s_add_u32 s54, s52, {cnt}"); a.e("s_cmp_eq_u32 s53, s54"); a.e(f"s_cbranch_scc1 {D}")
    poll_core(a, r, [ad], 1, cnt=cnt)
    a.e(f"{D}:")

def poll(a, stage, t, prev=False):
    D = a.lab("pdone")
    a.e("s_cmp_lg_u32 s30, 4"); a.e(f"s_cbranch_scc1 {D}")
    own_wait(a, stage, prev, t)
    mask, cnt = flag_addr(a, t + 1, stage, prev)
    poll_core(a, t, [t + 1], mask, depth=PDEPTH, cnt=cnt)
    a.e(f"{D}:")
    if stage != ST_G4: mstamp(a)
    a.e("s_barrier")

def publish(a, stage, nw, t, off=None, wait=0, ctr=None, flag=False):
    D = a.lab("pub")
    mark = PWAIT and off is None and stage in (ST_G1, ST_G2, ST_G4)
    if off is None:
        a.e(f"s_add_u32 s53, s55, {fso(stage)}"); off = 53
        sp = SPLIT.get(stage)
        if sp == "half": a.e("s_lshl_b32 s54, s31, 7"); a.e("s_add_u32 s53, s53, s54")
        if sp == "sign": a.e("s_and_b32 s54, s29, 4"); a.e("s_lshl_b32 s54, s54, 5"); a.e("s_add_u32 s53, s53, s54")
    a.e(f"v_mov_b32 v{t}, 1"); a.e(f"v_mov_b32 v{t+1}, {LW + (ctr if ctr is not None else 4 if nw == 8 else 0)}"); a.e(f"v_mov_b32 v{t+3}, 0")
    a.e("s_mov_b64 exec, 1")
    if wait is not None: a.e(f"s_waitcnt vmcnt({wait})")
    if nw > 1:
        a.e(f"ds_add_rtn_u32 v{t+2}, v{t+1}, v{t}")
        if flag: a.e(f"v_mov_b32 v{t+1}, s52")
        a.e("s_waitcnt lgkmcnt(0)")
        a.e(f"v_readfirstlane_b32 s54, v{t+2}")
        a.e(f"s_and_b32 s54, s54, {nw-1}"); a.e(f"s_cmp_lg_u32 s54, {nw-1}"); a.e(f"s_cbranch_scc1 {D}")
    if flag: a.e(f"buffer_store_dword v{t+1}, v{t+3}, s[56:59], s{off} offen {SC}")
    else: a.e(f"buffer_atomic_add v{t}, v{t+3}, s[56:59], s{off} offen {SC}")
    if stage == ST_R and not flag:
        a.e("s_cmp_lg_u32 s60, 0"); a.e(f"s_cbranch_scc1 {D}")
        a.e("s_lshl_b32 s53, s29, 7"); a.e(f"s_add_u32 s53, s53, {F_CS}")
        a.e(f"buffer_atomic_add v{t}, v{t+3}, s[56:59], s53 offen {SC}")
    if mark: a.e(f"v_mov_b32 v{t+1}, {LW+56}"); a.e(f"ds_add_u32 v{t+1}, v{t}")
    a.e(f"{D}:")
    a.e("s_mov_b64 exec, -1")

def lds_spin(a, addr, target, t, dst=53, nap=False):
    L = a.lab("spin")
    a.e(f"v_mov_b32 v{t}, {addr}")
    a.e(f"{L}:")
    if nap: a.e(f"s_sleep {int(nap)}")
    a.e(f"ds_read_b32 v{t+1}, v{t}"); a.e("s_waitcnt lgkmcnt(0)"); a.e(f"v_readfirstlane_b32 s{dst}, v{t+1}")
    a.e(f"s_cmp_ge_u32 s{dst}, {target}"); a.e(f"s_cbranch_scc0 {L}")
def lds_set(a, addr, val, t):
    a.e(f"v_mov_b32 v{t}, {addr}"); a.e(f"v_mov_b32 v{t+1}, {val}")
    a.e("s_waitcnt lgkmcnt(0)"); a.e(f"ds_write_b32 v{t}, v{t+1}")
def lbar(a, k, t):
    a.e(f"v_mov_b32 v{t}, {LW+8}"); a.e(f"v_mov_b32 v{t+1}, 1")
    a.e("s_waitcnt lgkmcnt(0)")
    a.e("s_mov_b64 exec, 1"); a.e(f"ds_add_u32 v{t}, v{t+1}"); a.e("s_mov_b64 exec, -1")
    lds_spin(a, LW + 8, 4 * k, t)

def gelu4(a, X, t, c1, c2):
    P = [(X, t), (X + 2, t + 2)]
    for x, u in P: a.e(f"v_pk_mul_f32 {vr(u,2)}, {vr(x,2)}, {vr(x,2)}")
    for x, u in P: a.e(f"v_pk_fma_f32 {vr(u,2)}, {vr(u,2)}, {vr(c2,2)}, {vr(c1,2)}")
    for x, u in P: a.e(f"v_pk_mul_f32 {vr(u,2)}, {vr(u,2)}, {vr(x,2)}")
    for i in range(4): a.e(f"v_exp_f32 v{t+i}, v{t+i}")
    for x, u in P: a.e(f"v_pk_add_f32 {vr(u,2)}, {vr(u,2)}, 1.0 op_sel_hi:[1,0]")
    for i in range(4): a.e(f"v_rcp_f32 v{t+i}, v{t+i}")
    for x, u in P: a.e(f"v_pk_mul_f32 {vr(x,2)}, {vr(x,2)}, {vr(u,2)}")

W2EARLY = int(os.environ.get("W2EARLY", "1")); QLATE = int(os.environ.get("QLATE", "0"))
TOUCH2 = [(A_Q, 4 * MB)] + ([] if W2EARLY else [(B_W2, 2 * MB)])
CODEPF = int(os.environ.get("CODEPF", "1")); NVOTE = 255; NSAMP = int(os.environ.get("NSAMP", "2"))
W4POS = os.environ.get("W4POS", "3C")
HSTR = 4160; CHB = 24576; UOFF = 4 * HSTR; US = 96
KVS = 4 * CHB

KT = int(os.environ.get("KT", "1"))
KV = dict(cq=6, tg=7, t=8, ro=9, wo=16, pt=18, kr=22, vv=36, w=44, d=52, hoff=70, tag=76, zz=78)
def front_loads(a):
    cq, tg, t, ro, wo, kr, vv, w = [KV[k] for k in "cq tg t ro wo kr vv w".split()]
    a.e(f"v_and_b32 v{cq}, 31, v0"); a.e(f"v_lshrrev_b32 v{tg}, 5, v0")
    a.e("s_and_b32 s34, s2, 7"); a.e("s_lshr_b32 s35, s2, 3")
    a.e("s_lshl_b32 s36, s35, 17"); a.e("s_lshl_b32 s37, s34, 8"); a.e("s_add_u32 s36, s36, s37")
    a.e(f"v_lshlrev_b32 v{t}, 13, v{tg}"); a.e(f"v_lshl_add_u32 v{t}, v{cq}, 3, v{t}"); a.e(f"v_add_u32 v{ro+3}, s36, v{t}")
    a.e(f"v_add_u32 v{ro+5}, 4096, v{ro+3}")
    a.e(f"s_mov_b32 s18, {4*MB}"); a.e("s_mov_b32 s19, 0x20000"); a.e("s_mov_b32 s22, s18"); a.e("s_mov_b32 s23, s19")
    a.e("s_waitcnt lgkmcnt(0)")
    tag, zz = KV["tag"], KV["zz"]
    a.e("s_mov_b32 s86, 256"); a.e("s_mov_b32 s87, 0x20000"); a.e(f"v_mov_b32 v{zz}, 0")
    a.e("s_lshl_b32 s45, s2, 3"); a.e("s_add_u32 s45, s45, s30"); a.e("s_cmp_lg_u32 s45, 4"); a.e("s_cbranch_scc1 KV_t0")
    a.e("s_lshl_b32 s44, s46, 6"); a.e("s_or_b32 s44, s44, 1"); a.e(f"v_mov_b32 v{tag}, s44")
    a.e("s_mov_b64 exec, 1"); a.e(f"buffer_store_dword v{tag}, v{zz}, s[84:87], 0 offen {SC}"); a.e("s_mov_b64 exec, -1")
    a.e("KV_t0:")
    a.e("s_mov_b64 s[16:17], s[8:9]"); a.e("s_mov_b64 s[20:21], s[10:11]")
    for i in range(4): a.e(f"buffer_load_dwordx2 {vr(kr+2*(i+3),2)}, v{ro+3+(i&2)}, s[16:19], 0 offen offset:{2048*(i&1)} {NTK}")
    for i in range(4): a.e(f"buffer_load_dwordx2 {vr(vv+2*i,2)}, v{ro+3+(i&2)}, s[20:23], 0 offen offset:{2048*(i&1)} {NT}")
    for i in range(3): a.e(f"v_subrev_u32 v{ro+i}, {2048*(3-i)}, v{ro+3}")
    a.e("s_lshl_b32 s37, s34, 10"); a.e(f"v_lshlrev_b32 v{wo}, 5, v{cq}"); a.e(f"v_add_u32 v{wo}, s37, v{wo}")
    a.srd(24, 12, 8192)
    XP = os.environ.get("XP", "g")
    if KT:
        a.e(f"v_and_b32 v{t}, 1, v{tg}"); a.e(f"v_lshl_add_u32 v{wo}, v{t}, 4, v{wo}")
        a.e(f"buffer_load_dwordx4 {vr(w,4)}, v{wo}, s[24:27], 0 offen")
    for i in range(0 if "t" in XP or KT else 2): a.e(f"buffer_load_dwordx4 {vr(w+4*i,4)}, v{wo}, s[24:27], 0 offen offset:{16*i}")
    if "g" in XP:
        a.e("s_cmp_lg_u32 s30, 4"); a.e("s_cbranch_scc1 KV_t2")
        a.e(f"buffer_load_dword v{tag}, v{zz}, s[84:87], 0 offen {SC}")
        a.e("KV_t2:")
    if "h" in XP: return
    if HALO:
        a.e("s_cmp_lg_u32 s30, 0"); a.e("s_cbranch_scc1 KV_h0"); a.e("s_bfm_b64 exec, 32, 0")
    if KT: a.e("s_bfm_b64 exec, 32, 0")
    for i in range(3): a.e(f"buffer_load_dwordx2 {vr(kr+2*i,2)}, v{ro+i}, s[16:19], 0 offen {NTK}")
    if KT: a.e("s_mov_b64 exec, -1")
    if HALO: a.e("s_mov_b64 exec, -1"); a.e("KV_h0:")

def probe_base(a):
    a.e("s_and_b32 s42, s2, 31"); a.e("s_lshl_b32 s42, s42, 8"); a.e("s_lshr_b32 s43, s2, 5"); a.e("s_lshl_b32 s43, s43, 14"); a.e("s_add_u32 s42, s42, s43")
    a.e(f"s_add_u32 s42, s42, {LB0 + oSM + 131072}")
def front_arrive(a, wait):
    D = a.lab("fa"); t = 6
    a.e("s_and_b32 s36, s2, 7"); a.e("s_lshl_b32 s36, s36, 7"); a.e(f"s_add_u32 s36, s36, {F_FRONT}")
    a.e(f"v_mov_b32 v{t}, 1"); a.e(f"v_mov_b32 v{t+1}, {LW+4}"); a.e(f"v_lshlrev_b32 v{t+3}, 10, v1")
    a.e("s_mov_b64 exec, 1")
    if wait: a.e("s_waitcnt vmcnt(0)")
    a.e("s_waitcnt lgkmcnt(0)")
    a.e(f"ds_add_rtn_u32 v{t+2}, v{t+1}, v{t}"); a.e(f"ds_read_b32 v{t+4}, v{t+1} offset:28")
    a.e("s_waitcnt lgkmcnt(0)")
    a.e(f"v_readfirstlane_b32 s54, v{t+2}"); a.e(f"v_readfirstlane_b32 s53, v{t+4}")
    a.e("s_cmp_lg_u32 s54, 15"); a.e(f"s_cbranch_scc1 {D}")
    a.e("s_mov_b64 exec, 0xffff"); a.e("s_or_b32 s53, s53, 1"); a.e(f"v_mov_b32 v{t}, s53")
    a.e(f"buffer_atomic_add v{t}, v{t+3}, s[56:59], s36 offen {SC}")
    a.e(f"{D}:"); a.e("s_mov_b64 exec, -1")
def front_a(a):
    cq, tg, t, pt, kr, vv, w, d, hoff, tag, zz = [KV[k] for k in "cq tg t pt kr vv w d hoff tag zz".split()]
    v = VA(80)
    a.e("s_and_b32 s41, s30, 3"); chan_setup(a, 41)
    a.e("s_lshr_b32 s36, s39, 1"); a.e("s_lshl_b32 s36, s36, 2"); a.e("s_load_dword s98, s[96:97], s36")
    a.e("s_lshl_b32 s36, s39, 12")
    a.e("s_add_u32 s12, s14, s36"); a.e("s_addc_u32 s13, s15, 0"); a.e("s_mov_b32 s14, 4096"); a.e("s_mov_b32 s15, 0x20000")
    a.e("s_lshr_b32 s45, s30, 2"); a.e("s_lshl_b32 s45, s45, 11")
    for it in range(3):
        if it < 2: a.e(f"s_add_u32 s36, s45, {(1024*it - 64) & 0xffffffff:#x}")
        else: a.e(f"s_mov_b32 s36, {4096 - 64}")
        a.e(f"v_add_u32 v{hoff+2*it}, s36, v2"); a.e(f"v_add_u32 v{hoff+2*it+1}, 16, v{hoff+2*it}")
    a.e("s_and_b32 s34, s2, 7"); a.e("s_lshr_b32 s35, s2, 3")
    z = v(4, 4); la = v(); t2 = v(); hw = v()
    for i in range(4): a.e(f"v_mov_b32 v{z+i}, 0")
    a.e(f"v_add_u32 v{hw}, s40, v2")
    a.e(f"ds_write_b128 v{hw}, {vr(z,4)} offset:{UOFF+64*US}")
    a.e(f"s_bfm_b64 exec, {(15*US - 1024)//16}, 0"); a.e(f"ds_write_b128 v{hw}, {vr(z,4)} offset:{UOFF+64*US+1024}"); a.e("s_mov_b64 exec, -1")
    a.e(f"v_lshlrev_b32 v{t}, 2, v{tg}"); a.e(f"v_sub_u32 v{t}, 60, v{t}")
    a.e(f"v_lshrrev_b32 v{t2}, 3, v{t}"); a.e(f"v_bfe_u32 v{la}, v{cq}, 1, 3"); a.e(f"v_xor_b32 v{t2}, v{t2}, v{la}"); a.e(f"v_lshlrev_b32 v{t2}, 4, v{t2}")
    a.e(f"v_and_b32 v{t}, 7, v{t}"); a.e(f"v_lshl_add_u32 v{t2}, v{t}, 1, v{t2}")
    a.e(f"v_lshl_add_u32 v{la}, v{cq}, 9, v{t2}"); a.e(f"v_add_u32 v{la}, {KVS}, v{la}")
    wf = v(8, 2); kf = v(14, 2); vf = v(8, 2); ks = v(8, 2); pr = v(8, 2); o = v(8, 4); tm = v(4, 1)
    a.e("s_waitcnt vmcnt(0)")
    if HALO:
        for i in range(3): a.e(f"buffer_load_dwordx2 {vr(kr+2*i,2)}, v{KV['ro']+i}, s[16:19], 0 offen {NTK}")
        if HALO == 1: a.e("s_waitcnt vmcnt(0)")
    a.e("s_cmp_lg_u32 s30, 4"); a.e("s_cbranch_scc1 KV_t1")
    if "g" not in os.environ.get("XP", "g"): a.e(f"buffer_load_dword v{tag}, v{zz}, s[84:87], 0 offen {SC}")
    a.e("KV_t1:")
    for it in range(3):
        a.e(f"buffer_load_dwordx4 {vr(d+6*it,4)}, v{hoff+2*it}, s[12:15], 0 offen {NTH}")
        a.e(f"buffer_load_dwordx2 {vr(d+6*it+4,2)}, v{hoff+2*it+1}, s[12:15], 0 offen {NTH}")
    if HALO == 2: a.e("s_waitcnt vmcnt(10)")
    mstamp(a)
    if KT:
        for e in range(4): a.e(f"v_mov_b32 v{w+4+e}, v{w+e}")
        for e in range(6): a.e(f"v_mov_b32 v{pr+e}, v{kr+8+e}")
        for e in range(4): a.e(f"v_permlane32_swap_b32 v{w+e}, v{w+4+e}")
        for e in range(6): a.e(f"v_permlane32_swap_b32 v{kr+e}, v{pr+e}")
    for dd in range(2):
        for c in range(2):
            unpack(a, wf + 0 + c, wf + 2 + c, w + 2 * (2 * dd + c)); unpack(a, wf + 4 + c, wf + 6 + c, w + 2 * (2 * dd + c) + 1)
        for i in range(7): unpack(a, kf + 2 * i, kf + 2 * i + 1, kr + 2 * i + dd)
        for i in range(4): unpack(a, vf + 2 * i, vf + 2 * i + 1, vv + 2 * i + dd)
        def rnd(base):
            for i in range(4): a.e(f"v_cvt_pk_bf16_f32 v{tm+i}, v{base+2*i}, v{base+2*i+1}")
            for i in range(4): unpack(a, base + 2 * i, base + 2 * i + 1, tm + i)
        for i in range(4): a.e(f"v_pk_mul_f32 {vr(ks+2*i,2)}, {vr(kf+2*i,2)}, {vr(wf+6,2)}")
        if RND: rnd(ks)
        for j in range(1, 4):
            if not RND:
                for i in range(4): a.e(f"v_pk_fma_f32 {vr(ks+2*i,2)}, {vr(kf+2*(i+j),2)}, {vr(wf+6-2*j,2)}, {vr(ks+2*i,2)}")
                continue
            for i in range(4): a.e(f"v_pk_mul_f32 {vr(pr+2*i,2)}, {vr(kf+2*(i+j),2)}, {vr(wf+6-2*j,2)}")
            rnd(pr)
            for i in range(4): a.e(f"v_pk_add_f32 {vr(ks+2*i,2)}, {vr(ks+2*i,2)}, {vr(pr+2*i,2)}")
            rnd(ks)
        for i in range(4): a.e(f"v_pk_mul_f32 {vr(ks+2*i,2)}, {vr(ks+2*i,2)}, {vr(vf+2*i,2)}")
        for c in range(2):
            e = 2 * dd + c
            a.e(f"v_cvt_pk_bf16_f32 v{o+2*e}, v{ks+6+c}, v{ks+4+c}"); a.e(f"v_cvt_pk_bf16_f32 v{o+2*e+1}, v{ks+2+c}, v{ks+c}")
            a.e(f"ds_write_b64 v{la}, {vr(o+2*e,2)} offset:{e*128}")
    a.e("s_cmp_lg_u32 s30, 4"); a.e("s_cbranch_scc1 HB_2")
    a.e(f"v_add_u32 v{pt}, {LW}, v3"); a.e(f"ds_write_b32 v{pt}, v{zz}")
    a.e("s_mov_b32 s53, 0")
    a.e("s_waitcnt vmcnt(6)")
    a.e("HB_p:")
    a.e(f"v_readfirstlane_b32 s52, v{tag}"); a.e("s_cmp_eq_u32 s52, 0"); a.e("s_cbranch_scc1 HB_r")
    a.e("s_cmp_ge_u32 s53, 400"); a.e("s_cbranch_scc1 HB_q")
    a.e("s_add_u32 s54, s46, 8192"); a.e("s_lshl_b32 s54, s54, 6"); a.e("s_sub_u32 s54, s54, s52"); a.e(f"s_cmp_lt_u32 s54, {12288*64}"); a.e("s_cbranch_scc1 HB_q")
    a.e("HB_r:")
    a.e(f"buffer_load_dword v{tag}, v{zz}, s[84:87], 0 offen {SC}"); a.e("s_waitcnt vmcnt(0)")
    a.e("s_add_u32 s53, s53, 1"); a.e("s_cmp_lt_u32 s53, s61"); a.e("s_cbranch_scc1 HB_p")
    a.e("s_mov_b32 s52, 1"); a.e("s_mov_b32 s61, 0")
    a.e("HB_q:")
    lds_set(a, LW + 12, "s52", pt)
    a.e("HB_2:")
    a.srd(16, 4, 8 * GSTR, off=LB0 + oX3)
    ra = v(); go = v(); ob = v(8, 4)
    a.e(f"v_lshrrev_b32 v{t}, 3, v0"); a.e(f"v_and_b32 v{t2}, 7, v0")
    a.e(f"v_lshlrev_b32 v{go}, 12, v{t}"); a.e(f"v_lshl_add_u32 v{go}, v{t2}, 4, v{go}")
    a.e("s_lshl_b32 s36, s34, 24"); a.e("s_sub_u32 s37, 31, s35"); a.e("s_lshl_b32 s37, s37, 7"); a.e("s_add_u32 s36, s36, s37")
    a.e(f"s_add_u32 s37, s36, {64*4096}")
    a.e(f"v_lshrrev_b32 v{ra}, 3, v{t}"); a.e(f"v_xor_b32 v{ra}, v{ra}, v{t2}"); a.e(f"v_lshlrev_b32 v{ra}, 4, v{ra}"); a.e(f"v_lshl_add_u32 v{ra}, v{t}, 7, v{ra}")
    a.e(f"v_add_u32 v{ra}, {KVS}, v{ra}"); a.e(f"v_mov_b32 v{pt}, {LW+12}")
    a.e("s_waitcnt lgkmcnt(0)"); a.e("s_barrier")
    for i in range(2): a.e(f"ds_read_b128 {vr(ob+4*i,4)}, v{ra} offset:{i*8192}")
    a.e(f"ds_read_b32 v{pt+1}, v{pt}")
    for i in range(2):
        a.e(f"s_waitcnt lgkmcnt({2-i})")
        if "1" in DP: mark(a, ob + 4 * i, 1)
        a.e(f"buffer_store_dwordx4 {vr(ob+4*i,4)}, v{go}, s[16:19], s{36+i} offen {SC}")
    a.e("s_waitcnt lgkmcnt(0)"); a.e(f"v_readfirstlane_b32 s52, v{pt+1}")
    a.e("s_cmp_lg_u32 s30, 0"); a.e("s_cbranch_scc1 KV_ni"); a.e("s_cmp_ge_u32 s35, 16"); a.e("s_cbranch_scc1 KV_ni")
    a.e(f"v_mov_b32 v{t}, s52")
    a.e("s_lshl_b32 s37, s34, 7"); a.e("s_lshl_b32 s53, s35, 10"); a.e("s_add_u32 s37, s37, s53"); a.e(f"s_add_u32 s37, s37, {F_FRONT}")
    a.e("s_mov_b64 exec, 1"); a.e(f"buffer_store_dword v{t}, v{zz}, s[56:59], s37 offen {SC}"); a.e("s_mov_b64 exec, -1")
    a.e("KV_ni:")
    a.e(f"s_cmp_ge_u32 s2, {NVOTE}"); a.e("s_cbranch_scc1 KV_n3"); a.e("s_cmp_lg_u32 s30, 5"); a.e("s_cbranch_scc1 KV_n3")
    probe_base(a)
    a.e(f"v_and_b32 v{t}, 1, v1"); a.e(f"v_lshlrev_b32 v{t}, 13, v{t}"); a.e(f"v_lshrrev_b32 v{t2}, 1, v1"); a.e(f"v_lshl_add_u32 v{t}, v{t2}, 7, v{t}")
    a.e("s_mov_b64 exec, 0xf"); a.e(f"buffer_store_dword v{t}, v{t}, s[56:59], s42 offen {SC}"); a.e("s_mov_b64 exec, -1")
    a.e("KV_n3:")
    def pubk():
        a.e("s_lshl_b32 s36, s34, 5"); a.e("s_add_u32 s36, s36, s35"); a.e("s_lshl_b32 s36, s36, 7"); a.e(f"s_add_u32 s36, s36, {F_KVT}")
        mstamp(a)
        QL = int(os.environ.get("QL", "3"))
        if QL == 2: load_q(a)
        publish(a, 0, 8, pt, off=36, flag=True, wait=4 if QL == 2 else 0)
        if QL == 3: load_q(a)
        mstamp(a)
    HF = int(os.environ.get("HF", "0"))
    if not HF: pubk()
    else: a.e("s_waitcnt vmcnt(2)")
    cc = wf; hw2 = v()
    a.e(f"v_add_u32 v{hw2}, s45, v{hw}")
    for it in range(3):
        D = d + 6 * it; c0 = cc + 12 * it; c1 = c0 + 4; c2 = c0 + 8
        for k in range(4):
            a.e(f"v_alignbit_b32 v{c0+k}, v{D+k+1}, v{D+k}, 16")
            a.e(f"v_mov_b32 v{c1+k}, v{D+k+1}")
            a.e(f"v_alignbit_b32 v{c2+k}, v{D+k+2}, v{D+k+1}, 16")
        if it == 2: a.e("s_mov_b64 exec, 0xf")
        ad, o0 = (hw2, 1024 * it) if it < 2 else (hw, 4096)
        a.e(f"ds_write_b128 v{ad}, {vr(c0,4)} offset:{o0}")
        a.e(f"ds_write_b128 v{ad}, {vr(c1,4)} offset:{HSTR+o0}")
        a.e(f"ds_write_b128 v{ad}, {vr(c2,4)} offset:{2*HSTR+o0}")
        a.e(f"ds_write_b128 v{ad}, {vr(D+2,4)} offset:{3*HSTR+o0}")
        if it == 2: a.e("s_mov_b64 exec, -1")
    if HF: pubk()
    assert v.hi <= 176
    a.e("s_waitcnt lgkmcnt(0)"); a.e("s_barrier")
def load_q(a):
    a.srd(8, 6, 4 * MB)
    for j in range(4): a.e(f"buffer_load_dwordx2 {vr(RXA+2*j,2)}, v{RRO}, s[8:11], 0 offen offset:{128*(j>>1) + 32*(j&1)} {os.environ.get('NTQ', NTH)}")
def chan_setup(a, wsg):
    a.e("s_and_b32 s38, s2, 7"); a.e("s_lshl_b32 s38, s38, 5"); a.e("s_lshr_b32 s39, s2, 3"); a.e("s_add_u32 s38, s38, s39")
    a.e("s_lshl_b32 s39, s38, 2"); a.e(f"s_add_u32 s39, s39, s{wsg}")
    a.e(f"s_mul_i32 s40, s{wsg}, {CHB}")

def touch(a, ka, nbytes, r):
    n = nbytes // 1024 // 512
    a.e(f"s_load_dwordx2 s[48:49], s[0:1], {ka}")
    a.e("s_lshl_b32 s45, s2, 1"); a.e("s_and_b32 s50, s30, 1"); a.e("s_add_u32 s45, s45, s50"); a.e(f"s_mul_i32 s45, s45, {n*1024}")
    a.e(f"s_mov_b32 s50, {nbytes}"); a.e("s_mov_b32 s51, 0x20000")
    a.e("s_waitcnt lgkmcnt(0)")
    for i in range(n):
        if i and i % 4 == 0: a.e("s_add_u32 s45, s45, 4096")
        a.e(f"buffer_load_dwordx4 {vr(r,4)}, v2, s[48:51], s45 offen offset:{(i&3)*1024}")
    return n

def w2_warm(a):
    a.e("s_mov_b64 s[48:49], s[70:71]"); a.e(f"s_mov_b32 s50, {2*MB}"); a.e("s_mov_b32 s51, 0x20000")
    a.e("s_and_b32 s45, s28, 3"); a.e("s_lshl_b32 s45, s45, 1"); a.e("s_and_b32 s46, s30, 1"); a.e("s_add_u32 s45, s45, s46"); a.e("s_lshl_b32 s45, s45, 18")
    a.e("s_lshl_b32 s46, s29, 7"); a.e("s_add_u32 s45, s45, s46"); a.e("v_lshlrev_b32 v245, 11, v1")
    a.e("buffer_load_dword v244, v245, s[48:51], s45 offen"); a.e(f"s_add_u32 s45, s45, {64*2048}"); a.e("buffer_load_dword v246, v245, s[48:51], s45 offen")
def cs_load(a, which, slot):
    w_setup(a, which, pre=False)
    a.e(f"s_mov_b32 s42, {slot}"); a.e("s_mov_b32 s44, s28")
    w_issue(a, which, direct=True)
CSEL, CFR, CAD, CACC, CSO_ = 16, 72, 144, 156, 164
def cs_prep(a, S1, S3):
    a.e(f"v_and_b32 v{CSO_}, 15, v1"); a.e(f"v_mov_b32 v{CSO_+1}, 0x3f803f80")
    for T in range(14):
        a.e(f"v_cmp_eq_u32 vcc, {T}, v{CSO_}")
        for e in range(4): a.e(f"v_cndmask_b32 v{CSEL+4*T+e}, 0, v{CSO_+1}, vcc")
    pos = {}
    for which, slot, r0, halves in ((1, S1, CAD, 1), (3, S3, CAD + 4, 2)):
        c = CFG[which]
        for hf in range(halves):
            a.e(f"s_mov_b32 s35, {hf}")
            nr, pos[which] = w_bases(a, which, r0 + 2 * hf, 35, c["TN16"] // halves, WV + 8, WV + 9)
            a.e("s_and_b32 s35, s30, 1"); a.e(f"s_mul_i32 s35, s35, {32*c['RB']}"); a.e(f"s_add_u32 s35, s35, {slot}")
            for i in range(nr): a.e(f"v_add_u32 v{r0+2*hf+i}, s35, v{r0+2*hf+i}")
    for i in range(8): a.e(f"v_mov_b32 v{CACC+i}, 0")
    a.e(f"v_lshrrev_b32 v{CSO_+2}, 4, v1"); a.e(f"v_lshlrev_b32 v{CSO_+2}, 4, v{CSO_+2}"); a.e(f"v_lshl_add_u32 v{CSO_+2}, v{CSO_}, 6, v{CSO_+2}")
    a.e(f"v_mov_b32 v{CSO_+1}, 0x7f000000")
    for k, n in ((3, 4), (4, 14)):
        a.e(f"v_cmp_gt_u32 vcc, {n}, v{CSO_}"); a.e(f"v_cndmask_b32 v{CSO_+k}, v{CSO_+1}, v{CSO_+2}, vcc")
    return pos
def cs_sum(a, which, pos):
    c = CFG[which]; ntl = c["TN16"]; N = c["LDW"] // 2
    F = CFR + (0 if which == 3 else 56); A = CACC + (0 if which == 3 else 4)
    for T in range(ntl):
        hf, nt = (T // 7, T % 7) if which == 3 else (0, T)
        for h in range(2):
            r, imm = pos[which](nt, 0, h)
            a.e(f"ds_read_b64_tr_b16 {vr(F+4*T+2*h,2)}, v{(CAD + 4 if which == 3 else CAD) + 2*hf + r} offset:{imm}")
    a.srd(20, 4, 32 * N * 4, off=CSP[which])
    a.e("s_lshl_b32 s35, s28, 1"); a.e("s_and_b32 s36, s30, 1"); a.e("s_add_u32 s35, s35, s36"); a.e(f"s_mul_i32 s35, s35, {N*4}")
    a.e(f"s_mul_i32 s36, s29, {ntl*64}"); a.e("s_add_u32 s35, s35, s36")
    a.e("s_waitcnt lgkmcnt(0)")
    for T in range(ntl): a.e(f"v_mfma_f32_16x16x32_bf16 {vr(A,4)}, {vr(F+4*T,4)}, {vr(CSEL+4*T,4)}, {vr(A,4)}")
    a.e(f"buffer_store_dwordx4 {vr(A,4)}, v{CSO_ + (4 if which == 3 else 3)}, s[20:23], s35 offen {SC}")

NOCS3 = int(os.environ.get("NOCS3", "0")); STO = os.environ.get("STOUCH", "")
def stouch(a, which, gran, nw):
    X = a.lab("st"); L = a.lab("sl"); n = 28672 // nw
    a.e("s_cmp_lg_u32 s60, 0"); a.e(f"s_cbranch_scc1 {X}")
    a.e(f"s_mul_i32 s36, s2, 28672"); a.e(f"s_and_b32 s37, s30, {nw-1}"); a.e(f"s_mul_i32 s37, s37, {n}"); a.e("s_add_u32 s36, s36, s37")
    a.e(f"s_add_u32 s34, s{66+2*which}, s36"); a.e(f"s_addc_u32 s35, s{67+2*which}, 0"); a.e("s_mov_b32 s36, 0")
    a.e(f"{L}:")
    for i in range(14): a.e(f"s_load_dword s37, s[34:35], {i*gran}")
    a.e(f"s_add_u32 s34, s34, {14*gran}"); a.e("s_addc_u32 s35, s35, 0"); a.e("s_add_u32 s36, s36, 1"); a.e(f"s_cmp_lt_u32 s36, {n // (14*gran)}"); a.e(f"s_cbranch_scc1 {L}")
    a.e("s_waitcnt lgkmcnt(0)")
    a.e(f"{X}:")
SB = eval(os.environ.get("SB", "(0,0,0)"))
SG = eval(os.environ.get("SG", "(0,0,0,0)"))
def sg(a, n):
    if not n: return
    X = a.lab("st"); L = a.lab("sl")
    a.e("s_cmp_lg_u32 s60, 0"); a.e(f"s_cbranch_scc1 {X}"); a.e("s_mov_b32 s36, 0"); a.e(f"{L}:"); sb(a, 14)
    a.e("s_add_u32 s36, s36, 1"); a.e(f"s_cmp_lt_u32 s36, {n}"); a.e(f"s_cbranch_scc1 {L}"); a.e("s_waitcnt lgkmcnt(0)"); a.e(f"{X}:"); mstamp(a)
def sb_init(a):
    nw = 2 if sum(SG) else 4
    a.e(f"s_mul_i32 s36, s2, 28672"); a.e(f"s_and_b32 s37, s30, {nw-1}"); a.e(f"s_mul_i32 s37, s37, {28672//nw}"); a.e("s_add_u32 s36, s36, s37")
    SW = 66 + 2 * int(os.environ.get("SGW", "3"))
    a.e(f"s_add_u32 s90, s{SW}, s36"); a.e(f"s_addc_u32 s91, s{SW+1}, 0")
def sb(a, n):
    for i in range(n): a.e(f"s_load_dword s101, s[90:91], {i*64}")
    if n: a.e(f"s_add_u32 s90, s90, {n*64}"); a.e("s_addc_u32 s91, s91, 0")
PUTE = int(os.environ.get("PUTE", "1"))
def front_b(a):
    pt, dm = 6, 20
    PZE = int(os.environ.get("PZE", "0"))
    if PZE:
        a.srd(20, 4, 32 * MB, off=216 * MB)
        for i in range(4): a.e(f"v_mov_b32 v{216+i}, -1")
        a.e("s_lshl_b32 s45, s2, 2"); a.e("s_and_b32 s50, s30, 3"); a.e("s_add_u32 s45, s45, s50"); a.e(f"s_mul_i32 s45, s45, {PZE*1024}")
        for i in range(PZE):
            a.e(f"buffer_store_dwordx4 v[216:219], v2, s[20:23], s45 offen {SC}"); a.e("s_add_u32 s45, s45, 1024")
    if TAB: tab_load(a)
    TE = int(os.environ.get("TE", "0"))
    if TE:
        a.e("s_cmp_ge_u32 s30, 6"); a.e("s_cbranch_scc1 FB_t1"); touch(a, B_W2, 2 * MB, dm); a.e("s_branch FB_t2"); a.e("FB_t1:"); touch(a, B_W1, 2 * MB, 200); a.e("FB_t2:")
    w_lanes(a)
    a.e("s_cmp_ge_u32 s30, 6"); a.e("s_cbranch_scc1 FB_cs")
    vd = 12
    a.e(f"s_cmp_ge_u32 s2, {NVOTE}"); a.e("s_cbranch_scc1 FB_np"); a.e("s_cmp_lg_u32 s30, 5"); a.e("s_cbranch_scc1 FB_np")
    probe_base(a); a.e(f"v_mov_b32 v{vd+2}, 0")
    a.e("s_mov_b64 exec, 1"); a.e("s_mov_b32 s46, -1"); a.e("s_mov_b32 s47, -1"); a.e("s_mov_b32 s43, 0")
    a.e("FB_ml:")
    for i in range(2):
        a.e(f"s_add_u32 s45, s42, {i * 8192}")
        a.e("s_memtime s[34:35]"); a.e("s_waitcnt lgkmcnt(0)")
        a.e(f"buffer_load_dword v{vd+1}, v{vd+2}, s[56:59], s45 offen {SC}"); a.e("s_waitcnt vmcnt(0)")
        a.e("s_memtime s[36:37]"); a.e("s_waitcnt lgkmcnt(0)")
        a.e("s_sub_u32 s36, s36, s34"); a.e(f"s_min_u32 s{46+i}, s{46+i}, s36")
    a.e("s_add_u32 s42, s42, 128"); a.e("s_add_u32 s43, s43, 1"); a.e(f"s_cmp_lt_u32 s43, {NSAMP}"); a.e("s_cbranch_scc1 FB_ml")
    a.e("s_cmp_lt_u32 s47, s46"); a.e("s_cselect_b32 s45, 1, 0")
    a.e("s_lshr_b32 s46, s28, 2"); a.e("s_xor_b32 s45, s45, s46"); a.e("s_and_b32 s45, s45, 1"); a.e("s_lshl_b32 s45, s45, 8")
    a.e("s_mov_b64 exec, -1")
    lds_set(a, LW + 32, "s45", pt)
    a.e("FB_np:")
    mstamp(a)
    a.e("s_cmp_lg_u32 s30, 4"); a.e("s_cbranch_scc1 FB_ni")
    a.e(f"v_mov_b32 v{vd}, s52")
    group_off(a, 37, 28); a.e("s_andn2_b32 s37, s37, 0x2000"); a.e("s_lshl_b32 s53, s29, 7"); a.e("s_add_u32 s37, s37, s53"); a.e(f"s_add_u32 s37, s37, {oSM}")
    a.e(f"v_and_b32 v{vd+1}, 1, v1"); a.e(f"v_lshlrev_b32 v{vd+1}, 13, v{vd+1}"); a.e(f"v_lshrrev_b32 v{vd+2}, 1, v1"); a.e(f"v_lshl_add_u32 v{vd+1}, v{vd+2}, 22, v{vd+1}")
    a.e("s_mov_b64 exec, 0xf"); a.e(f"buffer_store_dword v{vd}, v{vd+1}, s[56:59], s37 offen {SC}")
    a.e("s_cmp_lg_u32 s28, 0"); a.e("s_cbranch_scc1 FB_n2")
    a.e(f"s_add_u32 s37, s53, {F_CS}"); a.e("s_mov_b64 exec, 1"); a.e(f"buffer_store_dword v{vd}, v{vd+1}, s[56:59], s37 offen {SC}")
    a.e("FB_n2:")
    a.e("s_mov_b64 exec, -1")
    a.e("FB_ni:")
    UG = (LW + 20, 4) if os.environ.get("UG", "1") == "1" else (LW + 16, 1)
    lds_spin(a, *UG, pt, nap=2)
    mstamp(a)
    if TLBW:
        a.e("s_cmp_lg_u32 s30, 5"); a.e("s_cbranch_scc1 FB_nt")
        a.e(f"v_and_b32 v{vd}, 7, v1"); a.e(f"v_lshlrev_b32 v{vd}, 24, v{vd}"); a.e(f"v_lshrrev_b32 v{vd+1}, 3, v1"); a.e(f"v_lshl_add_u32 v{vd}, v{vd+1}, 22, v{vd}")
        a.e("s_lshl_b32 s36, s2, 7"); a.e(f"s_add_u32 s36, s36, {LB0 + 2 * MB - 65536}")
        a.e(f"s_bfm_b64 exec, {8 * TLBW}, 0"); a.e(f"buffer_load_dword v{dm+4}, v{vd}, s[56:59], s36 offen {SC}"); a.e("s_mov_b64 exec, -1")
        a.e("FB_nt:")
    if os.environ.get("W2T", "1") == "2": lds_spin(a, LW + 24, 2, pt, nap=4)
    if os.environ.get("W2T", "1") == "3":
        w_srd(a, 2); a.e("s_lshl_b32 s39, s28, 1"); a.e("s_and_b32 s36, s30, 1"); a.e("s_add_u32 s39, s39, s36"); a.e("s_lshl_b32 s39, s39, 16"); a.e("s_lshl_b32 s36, s29, 7"); a.e("s_add_u32 s39, s39, s36")
        for i in range(4): a.e(f"buffer_load_dwordx4 {vr(dm,4)}, v{WVB[2]}, s[12:15], s39 offen"); a.e("s_add_u32 s39, s39, 16384")
    elif os.environ.get("W2T", "1") != "0" and not TE: touch(a, B_W2, 2 * MB, dm)
    QL = int(os.environ.get("QL", "3"))
    if not QL: load_q(a)
    if W4POS == "F": lds_spin(a, LW + 24, 2, pt, nap=4); a.e("s_waitcnt vmcnt(0)")
    if W4POS in ("F", "F0"): touch(a, B_W4, 7 * MB, dm)
    PZF = int(os.environ.get("PZF", "0"))
    if PZF:
        a.srd(20, 4, 32 * MB, off=216 * MB)
        for i in range(4): a.e(f"v_mov_b32 v{216+i}, -1")
        a.e("s_lshl_b32 s45, s2, 1"); a.e("s_and_b32 s50, s30, 1"); a.e("s_add_u32 s45, s45, s50"); a.e(f"s_mul_i32 s45, s45, {PZF*1024}")
        for i in range(PZF):
            a.e(f"buffer_store_dwordx4 v[216:219], v2, s[20:23], s45 offen {SC}"); a.e("s_add_u32 s45, s45, 1024")
            if os.environ.get("PZP"): a.e(f"s_waitcnt vmcnt({os.environ['PZP']})")
    front_arrive(a, True)
    if TAB: tab_make(a, 0)
    PKW = int(os.environ.get("PKW", "2")); PKP = int(os.environ.get("PKP", "8"))
    W1P = int(os.environ.get("W1P", "8")); FO = os.environ.get("FO", "1pd"); FO2 = os.environ.get("FO2", "1pd")
    R1 = [176, 188, 192] + [200 + 4 * i for i in range(7)] + [16 + 4 * i for i in range(8)]
    def w1_regs(a):
        w_srd(a, 1)
        a.e("s_and_b32 s35, s30, 3"); a.e(f"s_mul_i32 s35, s35, {18*16384}"); a.e("s_lshl_b32 s39, s99, 7"); a.e("s_add_u32 s39, s39, s35")
        for q in range(18):
            a.e(f"buffer_load_dwordx4 {vr(R1[q],4)}, v{WVB[1]}, s[12:15], s39 offen"); a.e("s_add_u32 s39, s39, 16384")
            if q % 4 == 3: sb(a, SB[1])
            if PKP and q % 4 == 3: a.e(f"s_waitcnt vmcnt({PKP})")
        if QL == 1: load_q(a)
    def w1_put(a):
        a.e("s_and_b32 s35, s30, 3"); a.e(f"s_mul_i32 s35, s35, {18*1024}"); a.e("v_add_u32 v8, s35, v2")
        if PUTE: lds_spin(a, LW + 20, 8, pt, nap=2)
        else: lds_spin(a, LW + 4, 16, pt, nap=2)
        a.e("s_waitcnt vmcnt(0)")
        for q in range(18): a.e(f"ds_write_b128 v8, {vr(R1[q],4)} offset:{CFG[1]['WB'] + 1024*q}")
        a.e("s_waitcnt lgkmcnt(0)")
    def w1_dma(a, js):
        lds_spin(a, LW + 24, 4, pt, nap=3)
        w_setup(a, 1, pre=False)
        for j in js: w1_slots(a, (j,), pace=W1P); ypause(a)
    DS_ = int(os.environ.get("DSPL", "12"))
    if PKW: lds_spin(a, LW + 24, PKW, pt, nap=4)
    for ch in FO:
        if ch == "d": w1_dma(a, range(9, DS_))
        else: call(a, {"1": w1_regs, "p": park}[ch])
    mstamp(a)
    call(a, w1_put)
    a.e("s_branch FR_end")
    a.e("FB_cs:")
    S1, S3 = KVS - CFG[1]["WB"], KVS + 8192 - CFG[3]["WB"]
    pos = cs_prep(a, S1, S3)
    lds_spin(a, *UG, pt, nap=2)
    mstamp(a)
    if not QL: load_q(a)
    cs_load(a, 1, S1)
    if not NOCS3: cs_load(a, 3, S3)
    a.e(f"s_waitcnt vmcnt({0 if NOCS3 else 14})")
    if CSPRIO: a.e(f"s_setprio {CSPRIO}")
    cs_sum(a, 1, pos)
    a.e("s_waitcnt vmcnt(1)")
    a.e(f"v_mov_b32 v{pt}, {LW+24}"); a.e(f"v_mov_b32 v{pt+1}, 1")
    a.e("s_mov_b64 exec, 1"); a.e(f"ds_add_u32 v{pt}, v{pt+1}"); a.e("s_mov_b64 exec, -1")
    mstamp(a)
    if not NOCS3: cs_sum(a, 3, pos)
    front_arrive(a, False)
    if TAB: tab_make(a, 1)
    a.e(f"v_mov_b32 v{pt}, {LW+24}"); a.e(f"v_mov_b32 v{pt+1}, 1")
    a.e("s_mov_b64 exec, 1"); a.e(f"ds_add_u32 v{pt}, v{pt+1}"); a.e("s_mov_b64 exec, -1")
    mstamp(a)
    a.e("s_setprio 0")
    assert CFG[1]["WB"] + 9 * 8192 == KVS
    for ch in FO2:
        if ch == "d": w1_dma(a, range(DS_, 16))
        else: call(a, {"1": w1_regs, "p": park}[ch])
    mstamp(a)
    call(a, w1_put)

def front_conv(a):
    v = VA(6); lane = 1; l16 = 2
    t = v(); pt = v(4, 2)
    chan_setup(a, 30)
    a.e("s_and_b32 s36, s39, 127"); a.e("s_lshl_b32 s36, s36, 12"); a.e("s_lshr_b32 s37, s39, 7"); a.e("s_lshl_b32 s37, s37, 24")
    a.e("s_add_u32 s36, s36, s37"); a.e(f"s_add_u32 s36, s36, {LB0 + oX3}")
    a.e("s_add_u32 s16, s4, s36"); a.e("s_addc_u32 s17, s5, 0"); a.e("s_mov_b32 s18, 4096"); a.e("s_mov_b32 s19, 0x20000")
    uw = v(); u = v(16, 4)
    a.e(f"v_lshrrev_b32 v{t}, 2, v{lane}"); a.e(f"v_mul_u32_u24 v{uw}, {US}, v{t}"); a.e(f"v_and_b32 v{t}, 3, v{lane}")
    a.e(f"v_lshl_add_u32 v{uw}, v{t}, 4, v{uw}"); a.e(f"v_add_u32 v{uw}, s40, v{uw}")
    aa = v(); ba = v(); ua = v(); J = v(); G = v()
    a.e(f"v_and_b32 v{J}, 15, v{lane}"); a.e(f"v_lshrrev_b32 v{G}, 4, v{lane}")
    a.e(f"v_and_b32 v{t}, 3, v{J}"); a.e(f"v_mul_u32_u24 v{aa}, {HSTR}, v{t}")
    a.e(f"v_lshl_add_u32 v{aa}, v{G}, 4, v{aa}"); a.e(f"v_lshrrev_b32 v{t}, 2, v{J}"); a.e(f"v_lshl_add_u32 v{aa}, v{t}, 3, v{aa}")
    a.e(f"v_add_u32 v{aa}, s40, v{aa}")
    a.e(f"v_sub_u32 v{t}, 15, v{J}"); a.e(f"v_mul_u32_u24 v{ua}, {US}, v{t}"); a.e(f"v_add_u32 v{ua}, s40, v{ua}")
    a.e(f"v_lshl_add_u32 v{ba}, v{G}, 4, v{ua}")
    acc = v(32, 4)
    fa = v(64, 4); fb = v(32, 4)
    def rdA(p, o):
        return [f"ds_read_b64 {vr(fa+32*p+8*s_+4*mt+2*h,2)}, v{aa} offset:{64*(o+16*s_) + 32*mt + 8*h}" for s_ in range(4) for mt in range(2) for h in range(2)]
    def rdB(p, o):
        return [f"ds_read_b128 {vr(fb+16*p+4*k,4)}, v{ba} offset:{UOFF + (48 - 16*k + o)*US}" for k in range(4)]
    for x in rdA(0, 0): a.e(x)
    dm_ = fb + 16; Dv = pt + 2
    a.e("s_bitcmp1_b32 s39, 0"); a.e("s_cselect_b32 s36, 0, 16"); a.e("s_lshl_b32 s41, s98, s36"); a.e("s_and_b32 s41, s41, 0xffff0000"); a.e("s_lshr_b32 s36, s41, 16")
    a.e(f"v_lshl_add_u32 v{t}, v{G}, 3, v{J}"); a.e(f"v_sub_u32 v{t}, 31, v{t}")
    a.e(f"v_mov_b32 v{Dv}, s36"); a.e(f"v_mov_b32 v{Dv+1}, s41"); a.e(f"v_and_b32 v{pt}, 1, v{t}"); a.e(f"v_cmp_eq_u32 vcc, 1, v{pt}")
    a.e(f"v_cndmask_b32 v{Dv}, v{Dv}, v{Dv+1}, vcc"); a.e(f"v_ashrrev_i32 v{t}, 1, v{t}")
    for mt in range(2):
        for d_ in range(4): a.e(f"v_cmp_eq_u32 vcc, {8*mt+d_}, v{t}"); a.e(f"v_cndmask_b32 v{dm_+4*mt+d_}, 0, v{Dv}, vcc")
    a.srd(12, 4, 8 * GSTR - oHS, off=LB0 + oHS)
    ta = v(); go = v()
    a.e(f"v_bfe_u32 v{t}, v{lane}, 2, 2"); a.e(f"v_mul_u32_u24 v{ta}, {CHB+64}, v{t}")
    a.e(f"v_lshrrev_b32 v{t}, 1, v{G}"); a.e(f"v_mul_u32_u24 v{t}, 72, v{t}"); a.e(f"v_add_u32 v{ta}, v{ta}, v{t}")
    a.e(f"v_and_b32 v{t}, 1, v{G}"); a.e(f"v_lshl_add_u32 v{ta}, v{t}, 5, v{ta}")
    a.e(f"v_and_b32 v{t}, 3, v{lane}"); a.e(f"v_lshl_add_u32 v{ta}, v{t}, 3, v{ta}")
    a.e(f"s_mul_i32 s36, s30, {16*72}"); a.e(f"v_add_u32 v{ta}, s36, v{ta}")
    a.e(f"v_lshlrev_b32 v{go}, 3, v{lane}")
    a.e("s_lshl_b32 s44, s38, 11"); a.e("s_and_b32 s37, s30, 1"); a.e("s_lshl_b32 s37, s37, 10"); a.e("s_add_u32 s44, s44, s37")
    a.e("s_lshr_b32 s37, s30, 1"); a.e("s_lshl_b32 s37, s37, 26"); a.e("s_add_u32 s44, s44, s37")
    ev = ua; a.e(f"v_not_b32 v{ev}, v{lane}"); a.e(f"v_and_b32 v{ev}, 1, v{ev}")
    ya = v()
    a.e(f"s_mul_i32 s36, s30, {CHB+64}")
    a.e(f"v_mul_u32_u24 v{ya}, 72, v{J}"); a.e(f"v_lshl_add_u32 v{ya}, v{G}, 3, v{ya}"); a.e(f"v_add_u32 v{ya}, s36, v{ya}")
    a.e("s_cmp_lg_u32 s30, 0"); a.e("s_cbranch_scc1 CV_w")
    a.e("s_and_b32 s36, s2, 7"); a.e("s_lshl_b32 s36, s36, 12"); a.e(f"s_add_u32 s36, s36, {F_KVT}")
    a.e(f"v_lshlrev_b32 v{pt+1}, 7, v{lane}"); a.e(f"v_add_u32 v{pt+1}, s36, v{pt+1}")
    poll_core(a, pt, [pt + 1], 0xffffffff)
    lds_set(a, LW + 16, 1, pt)
    a.e("CV_w:")
    lds_spin(a, LW + 16, 1, pt)
    mstamp(a)
    for it in range(4): a.e(f"buffer_load_dwordx4 {vr(u+4*it,4)}, v{l16}, s[16:19], 0 offen offset:{1024*it} {os.environ.get('UF', SC)}")
    QL = int(os.environ.get("QL", "3"))
    if not QL: load_q(a)
    for it in range(4):
        a.e(f"s_waitcnt vmcnt({(3 if QL else 7)-it})")
        a.e(f"ds_write_b128 v{uw}, {vr(u+4*it,4)} offset:{UOFF + 16*US*it}")
    a.e(f"v_mov_b32 v{pt}, {LW+20}"); a.e(f"v_mov_b32 v{pt+1}, 1")
    a.e("s_mov_b64 exec, 1"); a.e(f"ds_add_u32 v{pt}, v{pt+1}"); a.e("s_mov_b64 exec, -1")
    a.e("s_waitcnt lgkmcnt(0)")
    mstamp(a)
    for x in rdB(0, 0): a.e(x)
    for c_ in range(4):
        a.e(f"s_waitcnt lgkmcnt({3-c_})")
        for mt in range(2): a.e(f"v_mfma_f32_16x16x32_bf16 {vr(acc+8*c_+4*mt,4)}, {vr(dm_+4*mt,4)}, {vr(fb+4*c_,4)}, 0")
    def step(p, nxt, tail, piped=False):
        a.e(f"s_waitcnt lgkmcnt({10 if piped else 0})")
        mf = [(c_, s_, mt) for s_ in range(4) for mt in range(2) for c_ in range(s_, 4)]
        for i, (c_, s_, mt) in enumerate(mf):
            A = acc + 8 * c_ + 4 * mt
            a.e(f"v_mfma_f32_16x16x32_bf16 {vr(A,4)}, {vr(fa+32*p+8*s_+4*mt,4)}, {vr(fb+16*p+4*(c_-s_),4)}, {vr(A,4)}")
            if nxt: a.e(nxt.pop(0))
            if piped and i == 9: a.e("s_waitcnt lgkmcnt(10)")
            for x in tail.pop(i, []) if tail else []: a.e(x)
        assert not nxt and not tail
    a.e("s_mov_b32 s43, 0")
    NU = int(os.environ.get("NU", "4")); HP = int(os.environ.get("HP", "0"))
    if NU:
        a.e("CV_r:")
        for p in range(2):
            rd = rdB(1 - p, p + 1) + rdA(1 - p, p + 1)
            step(p, rd[:HP], [])
            for x in rd[HP:]: a.e(x)
        for x in [f"v_add_u32 v{aa}, 128, v{aa}", f"v_add_u32 v{ba}, {2*US}, v{ba}", "s_add_u32 s43, s43, 1", f"s_cmp_lt_u32 s43, {NU}"]: a.e(x)
        a.e("s_cbranch_scc1 CV_r")
    if QL == 1: load_q(a)
    a.e("CV_l:")
    step(0, rdB(1, 1) + rdA(1, 1), [], True)
    step(1, rdB(0, 2) + rdA(0, 2), {19: [f"v_add_u32 v{aa}, 128, v{aa}"], 5: [f"v_add_u32 v{ba}, {2*US}, v{ba}"], 6: ["s_add_u32 s43, s43, 1"], 7: ["s_cmp_lt_u32 s43, 8"]}, True)
    a.e("s_cbranch_scc1 CV_l")
    mstamp(a)
    a.e("s_waitcnt lgkmcnt(0)")
    for c_ in range(4):
        for mt in range(2):
            A = acc + 8 * c_ + 4 * mt; O = u + 2 * (c_ * 2 + mt)
            a.e(f"v_cvt_pk_bf16_f32 v{O}, v{A}, v{A+1}"); a.e(f"v_cvt_pk_bf16_f32 v{O+1}, v{A+2}, v{A+3}")
            a.e(f"ds_write_b64 v{ya}, {vr(O,2)} offset:{c_*16*72 + mt*32}")
    lbar(a, 1, pt)
    for i in range(8): a.e(f"ds_read_b64_tr_b16 {vr(fa+32+2*i,2)}, v{ta} offset:{144*i}")
    for i in range(8):
        a.e(f"s_waitcnt lgkmcnt({7-i})")
        a.e(f"v_or_b32 v{fa+32+2*i}, v{ev}, v{fa+32+2*i}")
        a.e(f"buffer_store_dwordx2 {vr(fa+32+2*i,2)}, v{go}, s[12:15], s44 offen offset:{512*(i&1)} {SC}")
        if i & 1: a.e(f"s_add_u32 s44, s44, {GSTR}")
    if PUTE:
        a.e(f"v_mov_b32 v{pt}, {LW+20}"); a.e(f"v_mov_b32 v{pt+1}, 1")
        a.e("s_mov_b64 exec, 1"); a.e(f"ds_add_u32 v{pt}, v{pt+1}"); a.e("s_mov_b64 exec, -1")
    assert v.hi <= 176

PK = 48; W3S = 176
RFO, RYO, RRO, RI, RXA, RXB, RYY, RT = 196, 197, 198, 199, 180, 188, 230, 228
def r_addr(a, full=True):
    t, t2, I, fo, ro, yo = RT, RT + 1, RI, RFO, RRO, RYO
    a.e(f"v_and_b32 v{I}, 7, v0")
    a.e(f"v_lshrrev_b32 v{t}, 6, v0"); a.e(f"v_lshlrev_b32 v{t}, 4, v{t}"); a.e(f"v_bfe_u32 v{t2}, v0, 3, 3"); a.e(f"v_add_u32 v{t}, v{t}, v{t2}")
    a.e("s_lshr_b32 s78, s29, 1"); a.e("s_lshl_b32 s78, s78, 16"); a.e("s_and_b32 s79, s29, 1"); a.e("s_lshl_b32 s79, s79, 7"); a.e("s_add_u32 s78, s78, s79")
    a.e("s_lshr_b32 s79, s30, 1"); a.e("s_lshl_b32 s79, s79, 13"); a.e("s_add_u32 s78, s78, s79")
    a.e(f"v_lshlrev_b32 v{fo}, 8, v{t}"); a.e(f"v_lshl_add_u32 v{fo}, v{I}, 4, v{fo}"); a.e(f"v_add_u32 v{fo}, s78, v{fo}")
    if not full: return
    a.e("s_lshl_b32 s78, s28, 7"); a.e("s_lshl_b32 s79, s29, 3"); a.e("s_add_u32 s78, s78, s79")
    a.e(f"v_add_u32 v{yo}, s78, v{I}"); a.e(f"v_lshlrev_b32 v{ro}, 11, v{yo}")
    a.e(f"v_lshrrev_b32 v{t2}, 2, v{t}"); a.e(f"v_lshlrev_b32 v{t2}, 3, v{t2}"); a.e(f"v_and_b32 v{t}, 3, v{t}"); a.e(f"v_add_u32 v{t}, v{t}, v{t2}")
    a.e(f"v_lshl_add_u32 v{ro}, v{t}, 3, v{ro}")
    a.e(f"v_and_b32 v{yo}, 127, v{yo}"); a.e(f"v_lshlrev_b32 v{yo}, 3, v{yo}"); a.e(f"v_lshl_add_u32 v{yo}, v{t}, 11, v{yo}")
    a.e("s_lshr_b32 s78, s28, 3"); a.e("s_lshl_b32 s78, s78, 2"); a.e("s_and_b32 s79, s28, 3"); a.e("s_add_u32 s78, s78, s79"); a.e("s_lshl_b32 s78, s78, 24")
    a.e("s_and_b32 s79, s28, 4"); a.e("s_lshl_b32 s79, s79, 8"); a.e("s_add_u32 s78, s78, s79"); a.e(f"v_add_u32 v{yo}, s78, v{yo}")
def load_y(a, skip_last=False):
    a.srd(80, 4, 8 * GSTR - oHS, off=LB0 + oHS)
    for j in range(2):
        for hh in range(2):
            a.e(f"s_mov_b32 s78, {(16*j + 4*hh)*2048}")
            a.e(f"buffer_load_dwordx2 {vr(RYY+4*j+2*hh,2)}, v{RYO}, s[80:83], s78 offen {os.environ.get('YF', SC)}")
def r_pre(a, l0=False):
    r_addr(a, False)
    lsrd(a, 84, oX3, XSZ); lsrd(a, 88, oX1P, XSZ)
    if l0: a.e("s_cmp_eq_u32 s60, 0"); a.e("s_cselect_b32 s86, s86, 0"); a.e("s_cselect_b32 s90, s90, 0")
    for j in range(2):
        a.e(f"buffer_load_dwordx4 {vr(RXA+4*j,4)}, v{RFO}, s[84:87], 0 offen offset:{2048*j} {SC}")
        a.e(f"buffer_load_dwordx4 {vr(RXB+4*j,4)}, v{RFO}, s[88:91], 0 offen offset:{2048*j} {SC}")
def r_pre0(a): a.e("s_waitcnt lgkmcnt(0)"); r_pre(a, True)

def r_stage(a, final):
    v = VA(6)
    t = v(); t2 = v(); I = RI; fo = RFO; ro = RRO; pt = v(4, 2)
    xa = RXA; xb = RXB; yy = RYY; x = 206; yf = 222; w = v(16, 4); tmp = v()
    pre = final == "pre"
    S = v(2, 2); pp = v(2, 2); qq = v(2, 2); st = w; mean = v(2, 2); rs = mean + 1; var = v(); sw = v(); sr = v()
    def part(src, n):
        a.e(f"v_pk_add_f32 {vr(pp,2)}, {vr(src,2)}, {vr(src+2,2)}"); a.e(f"v_pk_mul_f32 {vr(qq,2)}, {vr(src,2)}, {vr(src,2)}")
        for i in range(1, 8):
            if i > 1: a.e(f"v_pk_add_f32 {vr(pp,2)}, {vr(pp,2)}, {vr(src+2*i,2)}")
            a.e(f"v_pk_fma_f32 {vr(qq,2)}, {vr(src+2*i,2)}, {vr(src+2*i,2)}, {vr(qq,2)}")
        a.e(f"v_add_f32 v{S}, v{pp}, v{pp+1}"); a.e(f"v_add_f32 v{S+1}, v{qq}, v{qq+1}")
        for k in range(2): a.e(f"v_add_f32_dpp v{S+k}, v{S+k}, v{S+k} row_ror:8 row_mask:0xf bank_mask:0xf")
        for op in ("v_permlane16_swap_b32", "v_permlane32_swap_b32"):
            for k in range(2): a.e(f"v_mov_b32 v{pp+k}, v{S+k}")
            for k in range(2): a.e(f"{op} v{S+k}, v{pp+k}")
            a.e(f"v_pk_add_f32 {vr(S,2)}, {vr(S,2)}, {vr(pp,2)}")
        a.e(f"ds_write_b64 v{sw}, {vr(S,2)} offset:{n*512}")
    def comb(n):
        for k in range(4): a.e(f"ds_read_b128 {vr(st+4*k,4)}, v{sr} offset:{n*512+16*k}")
        a.e("s_waitcnt lgkmcnt(0)")
        for k in range(4): a.e(f"v_pk_add_f32 {vr(st+4*k,2)}, {vr(st+4*k,2)}, {vr(st+4*k+2,2)}")
        a.e(f"v_pk_add_f32 {vr(st,2)}, {vr(st,2)}, {vr(st+4,2)}"); a.e(f"v_pk_add_f32 {vr(st+8,2)}, {vr(st+8,2)}, {vr(st+12,2)}")
        a.e(f"v_pk_add_f32 {vr(st,2)}, {vr(st,2)}, {vr(st+8,2)}")
        a.e(f"v_mul_f32 v{mean}, {f32(1/1024)}, v{st}"); a.e(f"v_mul_f32 v{var}, {f32(1/1024)}, v{st+1}")
        a.e(f"v_fma_f32 v{var}, -v{mean}, v{mean}, v{var}"); a.e(f"v_max_f32 v{var}, 0, v{var}")
    SUBM = f"{vr(mean,2)} op_sel_hi:[1,0] neg_lo:[0,1] neg_hi:[0,1]"; MULR = f"{vr(mean,2)} op_sel:[0,1] op_sel_hi:[1,1]"
    if pre: a.e("s_waitcnt lgkmcnt(0)")
    if final is not True:
        a.e(f"v_lshlrev_b32 v{sr}, 6, v{I}"); a.e(f"v_add_u32 v{sr}, {AUX+2048}, v{sr}")
        a.e(f"s_lshl_b32 s35, s30, 3"); a.e(f"v_add_u32 v{sw}, s35, v{sr}")
    if pre:
        a.e("s_waitcnt vmcnt(0)")
        for i in range(8): unpack(a, x + 2 * i, x + 2 * i + 1, xa + i)
        part(x, 0)
        a.e("s_waitcnt lgkmcnt(0)"); a.e("s_barrier")
        return
    if not final:
        a.e(f"s_cmp_eq_u32 s60, 0"); a.e(f"s_cbranch_scc1 R_l0")
    else:
        a.e(f"s_load_dwordx2 s[6:7], s[0:1], {D_OUT}")
    lsrd(a, 8, oP0, XSZ, prev=True); lsrd(a, 12, oP1, XSZ, prev=True)
    lsrd(a, 20, oX3, XSZ); a.e("s_mov_b32 s78, 0x3f80"); a.e("s_mov_b32 s79, 0x3f800000")
    if "r" not in DP: a.e("s_waitcnt vmcnt(0)")
    for i in range(8):
        if not final: unpack(a, yf + 2 * i, yf + 2 * i + 1, yy + i)
        unpack(a, x + 2 * i, x + 2 * i + 1, xa + i); unpack(a, w + 2 * i, w + 2 * i + 1, xb + i)
        a.e(f"v_pk_add_f32 {vr(x+2*i,2)}, {vr(x+2*i,2)}, {vr(w+2*i,2)}")
    lds_ = [f"buffer_load_dwordx4 {vr(r+4*j,4)}, v{fo}, s[{q}:{q+3}], 0 offen offset:{2048*j} {SC}" for j in range(2) for r, q in ((xa, 8), (xb, 12))]
    if "r" in DP: data_poll(a, lds_, (xa, xa + 4, xb, xb + 4), t, int(os.environ.get("RNAP", "4")), int(os.environ.get("RFIRST", "24")), int(os.environ.get("RCAN", "0"))); mstamp(a)
    else:
        poll(a, ST_G4, pt, prev=True)
        mstamp(a)
        for x_ in lds_: a.e(x_)
    for i in range(8):
        if i % 4 == 0 and "r" not in DP: a.e(f"s_waitcnt vmcnt({2 - i // 2})")
        u = w + 4 * (i & 3)
        if DOT:
            if i == 0:
                for r_ in (xa, xb):
                    for k in range(16): a.e(f"v_dot2_f32_bf16 v{x+k}, v{r_+k//2}, s{78+(k&1)}, v{x+k}")
                a.e("s_nop 2")
            continue
        unpack(a, u, u + 1, xa + i); unpack(a, u + 2, u + 3, xb + i)
        a.e(f"v_pk_add_f32 {vr(u,2)}, {vr(u,2)}, {vr(u+2,2)}")
        a.e(f"v_pk_add_f32 {vr(x+2*i,2)}, {vr(x+2*i,2)}, {vr(u,2)}")
        if final: a.e(f"v_cvt_pk_bf16_f32 v{xa+i}, v{x+2*i}, v{x+2*i+1}")
        else: round2(a, x + 2 * i, x + 2 * i + 1, tmp)
    if final:
        a.e("s_waitcnt lgkmcnt(0)")
        a.srd(20, 6, 4 * MB)
        OS = os.environ.get("OS", "sc1")
        if os.environ.get("OWIDE", "1") == "1":
            a.e(f"v_bfe_u32 v{t}, v1, 3, 1"); a.e(f"v_cmp_eq_u32 vcc, 1, v{t}")
            for j in range(2):
                lo, hi = xa + 4 * j, xa + 4 * j + 2
                for e in range(2):
                    a.e(f"v_cndmask_b32 v{x+e}, v{hi+e}, v{lo+e}, vcc")
                for e in range(2):
                    a.e(f"v_mov_b32_dpp v{x+2+e}, v{x+e} row_ror:8 row_mask:0xf bank_mask:0xf")
                for e in range(2):
                    a.e(f"v_cndmask_b32 v{x+4+e}, v{lo+e}, v{x+2+e}, vcc"); a.e(f"v_cndmask_b32 v{hi+e}, v{x+2+e}, v{hi+e}, vcc")
                for e in range(2): a.e(f"v_mov_b32 v{lo+e}, v{x+4+e}")
            a.e(f"v_bfe_u32 v{t2}, v1, 4, 1"); a.e(f"v_lshlrev_b32 v{t}, 5, v{t}"); a.e(f"v_lshl_add_u32 v{t}, v{t2}, 4, v{t}")
            a.e(f"v_and_b32 v{t2}, 0xffffffc0, v{ro}"); a.e(f"v_add_u32 v{t}, v{t}, v{t2}")
            for j in range(2): a.e(f"buffer_store_dwordx4 {vr(xa+4*j,4)}, v{t}, s[20:23], 0 offen offset:{128*j} {OS}")
        else:
            for j in range(4): a.e(f"buffer_store_dwordx2 {vr(xa+2*j,2)}, v{ro}, s[20:23], 0 offen offset:{128*(j>>1) + 32*(j&1)} {OS}")
        return v.hi
    part(x, 0)
    if os.environ.get("RST"): mstamp(a)
    a.e("s_waitcnt lgkmcnt(0)"); a.e("s_barrier")
    if os.environ.get("RST"): mstamp(a)
    comb(0)
    ln_finish(a, mean, var, rs)
    if os.environ.get("RST"): mstamp(a)
    a.e(f"v_mul_f32 v{mean}, v{mean}, v{rs}")
    for i in range(8): a.e(f"v_pk_fma_f32 {vr(w+2*i,2)}, {vr(x+2*i,2)}, {vr(mean,2)}, {vr(mean,2)} op_sel:[0,1,0] op_sel_hi:[1,1,0] neg_lo:[0,0,1] neg_hi:[0,0,1]")
    for i in range(8):
        D = w + 2 * i
        a.e(f"v_pk_fma_f32 {vr(x+2*i,2)}, {vr(D,2)}, {vr(yf+2*i,2)}, {vr(x+2*i,2)}")
        a.e(f"v_cvt_pk_bf16_f32 v{xa+i}, v{x+2*i}, v{x+2*i+1}")
        if i % 4 == 1 and DP: mark(a, xa + i - 1, 0)
        if i % 4 == 3: a.e(f"buffer_store_dwordx4 {vr(xa+i-3,4)}, v{fo}, s[20:23], 0 offen offset:{2048*(i//4)} {SC}")
    if os.environ.get("RST"): mstamp(a)
    a.e("s_branch R_s2")
    a.e("R_l0:")
    for i in range(8): unpack(a, x + 2 * i, x + 2 * i + 1, xa + i)
    part(x, 0)
    a.e("s_waitcnt lgkmcnt(0)")
    st_ = st; st = yf
    a.e(f"s_cmp_lg_u32 s30, {os.environ.get('FPW', '4')}"); a.e("s_cbranch_scc1 R_fw")
    lds_spin(a, LW + 4, 16, st, nap=int(os.environ.get("NAP4", "4")))
    a.e("s_lshl_b32 s36, s28, 10"); a.e(f"s_add_u32 s36, s36, {F_FRONT}")
    a.e(f"v_lshlrev_b32 v{st+4}, 7, v1"); a.e(f"v_add_u32 v{st+4}, s36, v{st+4}")
    a.e("s_mov_b32 s53, 0"); a.e("s_mov_b64 exec, 0xff")
    a.e("R_fp:")
    a.e(f"buffer_load_dword v{st}, v{st+4}, s[56:59], 0 offen {SC}"); a.e("s_waitcnt vmcnt(0)")
    a.e(f"v_subrev_u32 v{st}, s52, v{st}"); a.e(f"v_and_b32 v{st+1}, 0xffffc0ff, v{st}"); a.e(f"v_cmp_eq_u32 vcc, 32, v{st+1}")
    a.e("s_cmp_eq_u64 vcc, exec"); a.e("s_cbranch_scc1 R_fq")
    a.e(f"s_sleep {FSLEEP}")
    a.e("s_add_u32 s53, s53, 1"); a.e("s_cmp_lt_u32 s53, s61"); a.e("s_cbranch_scc1 R_fp")
    a.e("s_mov_b32 s61, 0")
    a.e("R_fq:")
    a.e(f"v_lshrrev_b32 v{st}, 8, v{st}"); a.e(f"v_mov_b32 v{st+1}, {LW+28}"); a.e(f"ds_add_u32 v{st+1}, v{st}")
    a.e("s_mov_b64 exec, -1"); a.e("s_waitcnt lgkmcnt(0)")
    a.e("R_fw:")
    a.e("s_barrier")
    mstamp(a)
    load_y(a)
    a.e(f"v_mov_b32 v{st}, {LW+28}"); a.e(f"ds_read_b32 v{st+1}, v{st}"); a.e("s_waitcnt lgkmcnt(0)"); a.e(f"v_readfirstlane_b32 s94, v{st+1}")
    if STAMP: a.e("s_mov_b32 s95, s94")
    a.e(f"s_cmp_gt_u32 s94, {NVOTE // 2}"); a.e("s_cselect_b32 s94, 1, 0")
    group_off(a, 55, 28)
    a.e("s_add_u32 s62, s4, s55"); a.e("s_addc_u32 s63, s5, 0")
    a.e("s_sub_u32 s36, s28, 1"); a.e("s_max_i32 s36, s36, 0"); group_off(a, 92, 36); a.e("s_sub_u32 s92, s92, s55")
    a.e("s_add_u32 s36, s28, 1"); a.e("s_min_u32 s36, s36, 15"); group_off(a, 93, 36); a.e("s_sub_u32 s93, s93, s55")
    a.e(f"s_add_u32 s55, s55, {oSM}")
    lsrd(a, 20, oX3, XSZ)
    st = st_; comb(0); ln_finish(a, mean, var, rs); st = yf
    for i in range(8):
        D = w + 2 * i
        a.e(f"v_pk_add_f32 {vr(D,2)}, {vr(x+2*i,2)}, {SUBM}"); a.e(f"v_pk_mul_f32 {vr(D,2)}, {vr(D,2)}, {MULR}")
    a.e("s_waitcnt vmcnt(0)")
    for i in range(8):
        D = w + 2 * i
        unpack(a, st, st + 1, yy + i)
        a.e(f"v_pk_fma_f32 {vr(x+2*i,2)}, {vr(D,2)}, {vr(st,2)}, {vr(x+2*i,2)}"); a.e(f"v_cvt_pk_bf16_f32 v{xa+i}, v{x+2*i}, v{x+2*i+1}")
        if i % 4 == 1 and DP: mark(a, xa + i - 1, 0)
        if i % 4 == 3: a.e(f"buffer_store_dwordx4 {vr(xa+i-3,4)}, v{fo}, s[20:23], 0 offen offset:{2048*(i//4)} {SC}")
    a.e("R_s2:")
    st = st_
    for i in range(8): unpack(a, x + 2 * i, x + 2 * i + 1, xa + i)
    part(x, 1)
    if "1" in DP:
        a.e("s_waitcnt lgkmcnt(0)"); a.e("s_barrier")
        a.e("s_cmp_lg_u32 s30, 6"); a.e("s_cbranch_scc1 R_n6"); a.e("s_cmp_lg_u32 s60, 0"); a.e("s_cbranch_scc1 R_n6")
        a.e("s_lshl_b32 s53, s29, 7"); a.e(f"s_add_u32 s53, s53, {F_CS}"); a.e(f"v_mov_b32 v{pt}, 1"); a.e(f"v_mov_b32 v{pt+1}, 0")
        a.e("s_mov_b64 exec, 1"); a.e(f"buffer_atomic_add v{pt}, v{pt+1}, s[56:59], s53 offen {SC}"); a.e("s_mov_b64 exec, -1")
        a.e("R_n6:")
    else:
        publish(a, ST_R, 8, pt)
        a.e("s_barrier")
    a.e(f"s_cmp_lg_u32 s30, {7 if '1' in DP else 0}"); a.e("s_cbranch_scc1 R_nl")
    comb(1)
    outv = yf + 2; s3 = v(); m4 = v(); v4_ = v(); r4 = v()
    assert v.hi <= PK
    a.e(f"v_mov_b32 v{m4}, v{mean}"); a.e(f"v_mov_b32 v{v4_}, v{var}")
    ln_finish(a, mean, var, rs, s3)
    a.e(f"v_sub_f32 v{m4}, v{m4}, v{mean}"); a.e(f"v_mul_f32 v{m4}, v{m4}, v{rs}")
    a.e(f"v_mul_f32 v{v4_}, v{v4_}, v{rs}"); a.e(f"v_mul_f32 v{v4_}, v{v4_}, v{rs}")
    ln_finish(a, m4, v4_, r4)
    a.e(f"v_mov_b32 v{outv}, v{mean}"); a.e(f"v_mov_b32 v{outv+1}, v{rs}")
    a.e(f"v_fma_f32 v{outv+2}, v{m4}, v{s3}, v{mean}"); a.e(f"v_mul_f32 v{outv+3}, v{rs}, v{r4}")
    lsrd(a, 24, oLNS, 2048)
    a.e("s_lshl_b32 s36, s29, 3"); a.e(f"v_add_u32 v{t}, s36, v{I}"); a.e(f"v_lshlrev_b32 v{t}, 4, v{t}")
    a.e("s_mov_b64 exec, 0xff")
    a.e(f"buffer_store_dwordx4 {vr(outv,4)}, v{t}, s[24:27], 0 offen {SC}")
    a.e("s_mov_b64 exec, -1")
    publish(a, ST_R2, 1, pt)
    a.e("R_nl:")
    return v.hi

TAB = int(os.environ.get("TAB", "1")); TV = 248
def lead(seq, r, L, P=4):
    if L == 0: return list(seq)
    return [x for _, x in sorted(((i - L - 0.5 if i % P == r else i), x) for i, x in enumerate(seq))]
def order3(j, gi):
    mode, L = eval(os.environ.get("O3", "('r',0)"))
    if mode == "r": return [(gi + t) & 15 for t in range(16)]
    if mode == "n": return [gi] + [x for x in lead(range(16), (j + gi) & 3, L) if x != gi]
    if mode == "s": return [gi] + lead([x for x in range(16) if x != gi], (j + gi) & 3, L)
    if mode == "h": return [gi] + [x for x in lead([(t + (gi & 8)) & 15 for t in range(16)], (j + gi) & 3, L) if x != gi]
def order4(j, n):
    mode, L = eval(os.environ.get("O4", "('n',1)"))
    own = [(7 * n + i, 7 * n + 4 + i) for i in range(3)]
    ps = [(n + t) & 7 for t in range(8)] if mode == "r" else list(range(8))
    ab = [(7 * p + i, 7 * p + 4 + i) for i in range(2) for p in ps if p != n]
    c = [7 * p + o for p in ps for o in (2, 6, 3) if p != n or o == 3]
    rest = ab + [(c[2 * i], c[2 * i + 1]) for i in range(11)]
    if mode != "r": rest = lead(rest, (j + n + int(os.environ.get("O4R", "0"))) & 3, L)
    return own + rest
L4 = eval(os.environ.get("O4", "('n',1)"))[1] if TAB else 0
def tab_data(a):
    a.lines.append(".p2align 6"); a.lines.append("K_tab:")
    for gi in range(16):
        for j in range(4):
            o3 = order3(j, gi) + [0] * 16; o4 = order4(j, gi & 7) + [(0, 0)] * 4
            assert sorted(o3[:16]) == list(range(16)) and sorted(sum(o4[:28], ())) == list(range(56))
            a.lines.append(".short " + ",".join(str(o3[t] | o4[t][0] << 4 | o4[t][1] << 10) for t in range(32)))
def tab_load(a):
    a.e("s_getpc_b64 s[34:35]"); a.e("K_tpc:")
    a.e("s_lshl_b32 s36, s29, 2"); a.e("s_and_b32 s37, s28, 3"); a.e("s_add_u32 s36, s36, s37"); a.e("s_lshl_b32 s36, s36, 6")
    a.e("s_add_u32 s36, s36, K_tab-K_tpc"); a.e("s_add_u32 s34, s34, s36"); a.e("s_addc_u32 s35, s35, 0")
    a.e(f"v_and_b32 v{TV}, 31, v1"); a.e(f"v_lshlrev_b32 v{TV}, 1, v{TV}"); a.e(f"global_load_ushort v{TV+3}, v{TV}, s[34:35]")
def tab_make(a, w):
    T, x = TV + 3, TV + 4
    if not w:
        a.e(f"v_bfe_u32 v{x}, v{T}, 2, 2"); a.e(f"v_lshlrev_b32 v{TV}, 14, v{x}"); a.e(f"v_and_b32 v{x}, 3, v{T}"); a.e(f"v_lshl_add_u32 v{TV}, v{x}, 11, v{TV}")
        for lw in range(2):
            a.e(f"v_bfe_u32 v{x}, v{T}, {7+6*lw}, 3"); a.e(f"v_lshlrev_b32 v{TV+1+lw}, 14, v{x}"); a.e(f"v_bfe_u32 v{x}, v{T}, {4+6*lw}, 3"); a.e(f"v_lshl_add_u32 v{TV+1+lw}, v{x}, 10, v{TV+1+lw}")
    else:
        a.e(f"v_and_b32 v{x}, 15, v{T}"); a.e(f"v_mul_u32_u24 v{TV}, {64*7168}, v{x}")
        a.e("s_and_b32 s36, s30, 1"); a.e("s_mul_i32 s36, s36, 6"); a.e("s_add_u32 s36, s36, 4"); a.e(f"v_bfe_u32 v{x}, v{T}, s36, 6")
        assert all((q * 37) >> 8 == q // 7 for q in range(56))
        a.e(f"v_mul_u32_u24 v{TV+2}, 37, v{x}"); a.e(f"v_lshrrev_b32 v{TV+2}, 8, v{TV+2}"); a.e(f"v_mul_u32_u24 v{TV+2}, 7, v{TV+2}"); a.e(f"v_sub_u32 v{TV+2}, v{x}, v{TV+2}")
        a.e(f"v_cmp_eq_u32 vcc, 3, v{TV+2}"); a.e(f"v_cndmask_b32 v{TV+2}, 0, 1, vcc"); a.e(f"v_lshl_add_u32 v{TV+1}, v{x}, 16, v{TV+2}")
        for p_ in eval(os.environ.get("W4SKIP", "[]")): a.e("s_mov_b32 s36, 0x40000000"); a.e(f"v_writelane_b32 v{TV+1}, s36, {p_}")
def rot_init(a, which):
    if which == 3 and TAB: a.e("s_mov_b32 s44, 0")
    elif which == 3 and OWN3: a.e("s_mov_b32 s44, s29")
    elif which != 4: a.e("s_mov_b32 s44, s67")
    else: a.e("s_mov_b32 s44, 0")
def rot_next(a, which):
    a.e("s_add_u32 s44, s44, 1")
    if which != 4: a.e("s_and_b32 s44, s44, 15")
def kb4(a, d, lw):
    a.e("s_lshl_b32 s45, s44, 1"); a.e(f"s_add_u32 s45, s45, {lw}"); a.e("s_sub_u32 s45, s45, 32")
    a.e("s_mul_i32 s46, s45, 86"); a.e("s_lshr_b32 s46, s46, 8")
    a.e("s_mul_i32 s47, s46, 3"); a.e("s_sub_u32 s47, s45, s47"); a.e("s_lshl_b32 s47, s47, 2"); a.e("s_lshr_b32 s47, 0x362, s47"); a.e("s_and_b32 s47, s47, 7")
    a.e("s_cmp_ge_u32 s44, 10"); a.e("s_cselect_b32 s45, 9, 2"); a.e("s_cselect_b32 s51, 1, 0"); a.e("s_sub_u32 s45, s44, s45")
    a.e("s_cmp_lt_u32 s44, 3"); a.e("s_cselect_b32 s45, 0, s45"); a.e("s_cselect_b32 s51, s44, s51")
    a.e(f"s_lshl2_add_u32 s51, {lw}, s51")
    a.e("s_cmp_lt_u32 s44, 17"); a.e("s_cselect_b32 s47, s51, s47"); a.e("s_cselect_b32 s46, s45, s46")
    a.e("s_add_u32 s46, s46, s33"); a.e("s_and_b32 s46, s46, 7"); a.e("s_mul_i32 s46, s46, 7"); a.e(f"s_add_u32 s{d}, s46, s47")
assert all((q * 86) >> 8 == q // 3 for q in range(24))
WVB = {1: 238, 2: 238, 4: 239, 3: 241}
WV = 245
def w_lanes(a):
    t, t2 = WV + 8, WV + 9
    R = WVB[1]
    a.e(f"v_lshrrev_b32 v{t}, 3, v1"); a.e(f"v_lshlrev_b32 v{R}, 11, v{t}")
    a.e(f"v_and_b32 v{t}, 6, v{t}"); a.e(f"v_and_b32 v{t2}, 7, v1"); a.e(f"v_xor_b32 v{t}, v{t}, v{t2}"); a.e(f"v_lshl_add_u32 v{R}, v{t}, 4, v{R}")
    R = WVB[4]
    for p in range(2):
        a.e(f"v_lshrrev_b32 v{t}, 4, v1"); a.e(f"v_lshlrev_b32 v{R+p}, 11, v{t}")
        a.e(f"v_add_u32 v{t}, {4*p}, v{t}"); a.e(f"v_lshlrev_b32 v{t}, 1, v{t}"); a.e(f"v_and_b32 v{t2}, 15, v1"); a.e(f"v_xor_b32 v{t}, v{t}, v{t2}")
        a.e(f"v_lshl_add_u32 v{R+p}, v{t}, 4, v{R+p}")
    R = WVB[3]
    assert all((p * 2341) >> 16 == p // 28 for p in range(448))
    for ii in range(7):
        a.e(f"v_add_u32 v{t2}, {64*ii}, v1"); a.e(f"v_mul_u32_u24 v{t}, 2341, v{t2}"); a.e(f"v_lshrrev_b32 v{t}, 16, v{t}")
        a.e(f"v_mul_u32_u24 v{R+ii}, 28, v{t}"); a.e(f"v_sub_u32 v{t2}, v{t2}, v{R+ii}")
        a.e(f"v_mul_u32_u24 v{R+ii}, 7168, v{t}")
        a.e(f"v_lshrrev_b32 v{t}, 1, v{t}"); a.e(f"v_and_b32 v{t}, 2, v{t}"); a.e(f"v_xor_b32 v{t2}, v{t2}, v{t}")
        a.e(f"v_lshl_add_u32 v{R+ii}, v{t2}, 4, v{R+ii}")
def w_srd(a, which):
    c = CFG[which]
    a.e(f"s_mov_b64 s[12:13], s[{66+2*which}:{67+2*which}]")
    a.e(f"s_mov_b32 s14, {c['KBT'] * 32 * c['LDW']}"); a.e("s_mov_b32 s15, 0x20000")
def w_setup(a, which, pre=True, lo=0):
    c = CFG[which]; STB = c["STB"]; BW = STB // 2
    w_srd(a, which)
    a.e("s_and_b32 s35, s30, 1")
    a.e(f"s_mul_i32 s38, s{(0, 99, 29, 29, 33)[which]}, {c['RB']}");
    if which != 4: a.e(f"s_mul_i32 s41, s35, {32*c['LDW']}"); a.e("s_add_u32 s38, s38, s41")
    if which == 4: a.e(f"s_mul_i32 s41, s31, {1792*c['LDW']}"); a.e("s_add_u32 s38, s38, s41")
    a.e(f"s_mul_i32 s41, s35, {BW}"); a.e(f"s_add_u32 s41, s41, {c['WB']}")
    a.e("s_mov_b32 s42, 0"); rot_init(a, which)
    if not pre: return
    NP = c["NPRE"]
    a.e("s_mov_b32 s49, s44"); a.e("s_and_b32 s43, s28, 3"); a.e(f"s_mul_i32 s43, s43, {NP - lo}"); a.e("s_lshr_b32 s43, s43, 2"); a.e(f"s_mov_b32 s50, {lo}")
    if not WROT: a.e("s_mov_b32 s43, 0")
    if lo: a.e(f"s_add_u32 s43, s43, {lo}")
    L = a.lab("wpre"); a.e(f"{L}:")
    a.e(f"s_mul_i32 s42, s43, {STB}"); a.e("s_add_u32 s44, s49, s43")
    if which != 4: a.e("s_and_b32 s44, s44, 15")
    w_issue(a, which, pace=PACES.get(which, PACE))
    a.e("s_add_u32 s43, s43, 1"); a.e(f"s_cmp_eq_u32 s43, {NP}"); a.e(f"s_cselect_b32 s43, {lo}, s43")
    a.e("s_add_u32 s50, s50, 1"); a.e(f"s_cmp_lt_u32 s50, {NP}"); a.e(f"s_cbranch_scc1 {L}")
    mstamp(a)
    a.e(f"s_mov_b32 s42, {(NP % c['NW']) * STB}"); a.e(f"s_add_u32 s44, s49, {NP}")
    if which != 4: a.e("s_and_b32 s44, s44, 15")
YP = int(os.environ.get("YP", "0"))
def ypause(a):
    if not YP: return
    X = a.lab("yp")
    a.e(f"v_mov_b32 v6, {LW+4}"); a.e("ds_read2_b32 v[14:15], v6 offset0:0 offset1:1"); a.e("s_waitcnt lgkmcnt(0)"); a.e("v_readfirstlane_b32 s53, v15")
    a.e(f"s_cmp_lt_u32 s53, {YP}"); a.e(f"s_cbranch_scc1 {X}")
    lds_spin(a, LW + 4, 16, 6, nap=2)
    a.e(f"{X}:")
def park_load(a, pace):
    w_srd(a, 2)
    a.e("s_and_b32 s35, s30, 3"); a.e("s_lshl_b32 s35, s35, 19"); a.e("s_lshl_b32 s39, s29, 7"); a.e("s_add_u32 s39, s39, s35")
    for q in range(32):
        a.e(f"buffer_load_dwordx4 {vr(PK+4*q,4)}, v{WVB[2]}, s[12:15], s39 offen"); a.e("s_add_u32 s39, s39, 16384")
        if pace and q % 4 == 3: a.e(f"s_waitcnt vmcnt({pace})"); ypause(a)
def park(a): park_load(a, int(os.environ.get("PKP", "8")))
def late_park(a):
    X = a.lab("lp"); a.e("s_cmp_lg_u32 s60, 0"); a.e(f"s_cbranch_scc1 {X}"); call(a, park); a.e(f"{X}:")
def after_g1(a):
    c = CFG[3]
    if os.environ.get("UPD0"): a.e("s_sleep " + os.environ["UPD0"])
    w_srd(a, 3)
    a.e(f"v_readlane_b32 s36, v{TV+3}, 0"); a.e(f"v_readlane_b32 s37, v{TV+3}, 1")
    a.e("s_and_b32 s35, s30, 3"); a.e(f"s_mul_i32 s38, s35, {16*7168}"); a.e("s_mul_i32 s39, s29, 448"); a.e("s_add_u32 s38, s38, s39")
    for r in (36, 37): a.e(f"s_and_b32 s{r}, s{r}, 15"); a.e(f"s_mul_i32 s{r}, s{r}, {64*7168}"); a.e(f"s_add_u32 s{r}, s{r}, s38")
    a.e("s_mul_i32 s39, s35, 7168"); a.e(f"s_add_u32 m0, s39, {c['WB'] + c['S0'] * c['STB']}")
    for i in range(7):
        if i: a.e("s_add_u32 m0, m0, 1024")
        a.e(f"buffer_load_dwordx4 v{WVB[3]+i}, s[12:15], s36 offen lds")
    for i in range(7): a.e(f"buffer_load_dwordx4 {vr(W3S+4*i,4)}, v{WVB[3]+i}, s[12:15], s37 offen")
    a.e("s_lshr_b32 s36, s67, 2"); a.e("s_sub_u32 s36, s35, s36"); a.e("s_and_b32 s36, s36, 3"); a.e("s_lshl_b32 s36, s36, 15"); a.e(f"v_add_u32 v6, s36, v2")
    a.e("s_waitcnt vmcnt(14)")
    if os.environ.get("UPD"): a.e("s_sleep " + os.environ["UPD"])
    for q in range(32): a.e(f"ds_write_b128 v6, {vr(PK+4*q,4)} offset:{CFG[2]['WB'] + 1024*q}")
    a.e("s_waitcnt lgkmcnt(0)")
def after_g2(a):
    c = CFG[3]
    a.e("s_and_b32 s35, s30, 3"); a.e("s_mul_i32 s39, s35, 7168"); a.e(f"s_add_u32 s39, s39, {c['WB'] + (c['S0'] + 1) % c['NW'] * c['STB']}"); a.e("v_add_u32 v6, s39, v2")
    for i in range(7): a.e(f"ds_write_b128 v6, {vr(W3S+4*i,4)} offset:{1024*i}")
    a.e("s_waitcnt lgkmcnt(0)")
SUBX = {}
def call(a, f):
    SUBX[f.__name__] = f; a.e(f"s_call_b64 s[76:77], SUB_{f.__name__}")
def w1_slots(a, js, pace=0):
    for j in js:
        a.e(f"s_mov_b32 s42, {j*8192}"); a.e("s_mov_b32 s44, s67"); a.e(f"s_add_u32 s44, s44, {j}"); a.e("s_and_b32 s44, s44, 15")
        call_issue(a, w_issue, 1)
        if pace: a.e(f"s_waitcnt vmcnt({pace})")
def w1_done(a):
    a.e("s_mov_b32 s42, 0"); a.e("s_mov_b32 s44, s67"); a.e("s_add_u32 s44, s44, 13"); a.e("s_and_b32 s44, s44, 15")
class Rec:
    def __init__(s_): s_.l = []
    def e(s_, x): s_.l.append(x)
    srd = Asm.srd
def w_parts(which, direct=False):
    c = CFG[which]; STB = c["STB"]; n = STB // 2048; LDW = c["LDW"]; b = Rec()
    b.e("s_add_u32 s19, s41, s42")
    arm = ["s_mov_b32 m0, s19", "s_mov_b32 s39, s16"]
    if which == 4 and TAB:
        b.e(f"v_readlane_b32 s16, v{TV+1}, s44")
        b.e("s_bitcmp1_b32 s16, 0"); b.e(f"s_cselect_b32 s17, {8*2048}, {4*2048}".replace(f"{4*2048}", "s45")); b.e(f"s_cselect_b32 s18, {-20*2048}, s45")
        b.e("s_andn2_b32 s16, s16, 1"); b.e("s_add_u32 s16, s16, s38")
        b.l.insert(0, f"s_mov_b32 s45, {4*2048}")
        arm += ["s_mov_b32 s32, s17", "s_mov_b32 s3, s18"]
        if os.environ.get("W4SKIP"): arm += ["s_bitcmp1_b32 s16, 30", "s_cselect_b64 exec, 0, -1"]
    elif which == 3 and TAB and not direct:
        b.e(f"v_readlane_b32 s16, v{TV}, s44"); b.e("s_add_u32 s16, s16, s38")
    elif which == 4:
        b.e("s_and_b32 s40, s30, 1"); kb4(b, 16, "s40")
        b.e(f"s_mul_i32 s16, s16, {32*LDW}"); b.e("s_add_u32 s16, s16, s38")
        b.e("s_cmp_eq_u32 s47, 3"); b.e("s_cselect_b32 s17, 8, 4"); b.e("s_cselect_b32 s18, -20, 4")
        b.e("s_lshl_b32 s17, s17, 11"); b.e("s_lshl_b32 s18, s18, 11")
        arm += ["s_mov_b32 s32, s17", "s_mov_b32 s3, s18"]
    else:
        b.e(f"s_mul_i32 s16, s44, {64*LDW}"); b.e("s_add_u32 s16, s16, s38")
    if f"w{which}" in os.environ.get("HOT", ""): b.e("s_mov_b32 s16, s38")
    rot_next(b, which)
    b.e(f"s_add_u32 s42, s42, {STB}"); b.e(f"s_cmp_eq_u32 s42, {c['NW']*STB}"); b.e("s_cselect_b32 s42, 0, s42")
    fire = []
    for i in range(n):
        g = []
        if i:
            g.append("s_add_u32 m0, m0, 1024")
            if which in (1, 2): g.append(f"s_add_u32 s39, s39, {8*LDW}")
            elif which == 4: g.append(f"s_add_u32 s39, s39, s{3 if i == 4 else 32}")
            elif i == 7: g.append(f"s_add_u32 s39, s39, {16*LDW}")
        vo = WVB[which] + (0 if which in (1, 2) else (i & 1) if which == 4 else i % 7)
        fire.append(g + [f"buffer_load_dwordx4 v{vo}, s[12:15], s39 offen lds"])
    if f"w{which}" in os.environ.get("NOLD", ""): fire = [[x for x in g if not x.startswith("buffer_load")] + ["s_nop 0"] for g in fire]
    return b.l, arm, fire
def w_issue(a, which, pace=0, direct=False):
    prep, arm, fire = w_parts(which, direct)
    for x in prep + arm: a.e(x)
    for i, g in enumerate(fire):
        for x in g: a.e(x)
        if pace and (i % 4 == 3 or i == len(fire) - 1): a.e(f"s_waitcnt vmcnt({pace})")

def w_bases(a, which, dst, swn, ntl, t, t2):
    c = CFG[which]; RB = c["RB"]
    a.e(f"v_lshrrev_b32 v{t}, 2, v1")
    a.e(f"v_mul_u32_u24 v{dst}, {RB}, v{t}"); a.e(f"v_and_b32 v{t2}, 3, v1"); a.e(f"v_lshl_add_u32 v{dst}, v{t2}, 3, v{dst}")
    a.e(f"v_add_u32 v{dst}, {c['WB']}, v{dst}")
    if which == 3:
        a.e(f"s_mul_i32 s36, s{swn}, {7*32}"); a.e(f"v_add_u32 v{dst}, s36, v{dst}")
        a.e(f"v_bfe_u32 v{t}, v1, 4, 1"); a.e(f"v_lshlrev_b32 v{t}, 5, v{t}")
        a.e(f"s_cmp_eq_u32 s{swn}, 0"); a.e("s_cselect_b32 s36, 1, -1"); a.e(f"v_mul_lo_u32 v{t}, v{t}, s36")
        a.e(f"v_sub_u32 v{dst+1}, v{dst}, v{t}"); a.e(f"v_add_u32 v{dst}, v{dst}, v{t}")
        return 2, lambda nt, kk, h: (nt & 1, (32 * kk + 16 * h) * RB + 32 * nt)
    if which == 4: a.e(f"v_and_b32 v{t}, 7, v{t}")
    else: a.e(f"v_bfe_u32 v{t}, v{t}, 1, 2")
    for nt in range(ntl - 1, -1, -1):
        a.e(f"s_mul_i32 s36, s{swn}, {ntl}"); a.e(f"s_add_u32 s36, s36, {nt}")
        a.e(f"v_xor_b32 v{t2}, s36, v{t}"); a.e(f"v_lshl_add_u32 v{dst+nt}, v{t2}, 5, v{dst}")
    return ntl, lambda nt, kk, h: (nt, (32 * kk + 16 * h) * RB)

def a_parts(which):
    c = CFG[which]; b = Rec()
    if which <= 2 and NX:
        b.e("s_and_b32 s42, s48, 7"); b.e("s_lshl_b32 s42, s42, 14"); b.e("s_lshr_b64 s[48:49], s[48:49], 4")
    b.e("s_add_u32 s19, s41, s42")
    arm = ["s_mov_b32 m0, s19", "s_mov_b32 s39, s16"]; fire = []
    if which == 2:
        b.e(f"s_mul_i32 s16, s44, {8*PITCH}"); b.e("s_add_u32 s16, s16, s38")
        b.e("s_lshr_b32 s45, s44, 2"); b.e("s_xor_b32 s45, s45, s94"); b.e("s_and_b32 s45, s45, 1"); b.e("s_lshl_b32 s45, s45, 13"); b.e("s_add_u32 s16, s16, s45")
        b.e("s_lshr_b32 s45, s44, 3"); b.e("s_lshl_b32 s45, s45, 4"); b.e("s_add_u32 s45, s45, 16")
        b.e("s_sub_u32 s46, 0, s45"); b.e("s_bitcmp1_b32 s44, 2"); b.e("s_cselect_b32 s45, s45, s46"); b.e("s_add_u32 s16, s16, s45")
        step = PITCH
    elif which == 4:
        for lw in range(2):
            if TAB: b.e(f"v_readlane_b32 s{16+lw}, v{TV+1+lw}, s44")
            else: kb4(b, 16 + lw, lw); spread(b, 16 + lw, 16 + lw)
        for lw in range(2): b.e(f"s_add_u32 s{16+lw}, s{16+lw}, s38")
        arm.append("s_mov_b32 s40, s17")
        for i in range(4):
            for lw in range(2):
                fire.append((["s_add_u32 m0, m0, 1024"] if i or lw else []) + ([f"s_add_u32 s{39+lw}, s{39+lw}, {c['KBT']*2048}"] if i else []) +
                            [f"buffer_load_dwordx4 v2, s[12:15], s{39+lw} offen {SC} lds"])
    elif which == 3 and TAB:
        b.e(f"v_readlane_b32 s16, v{TV}, s44"); b.e("s_add_u32 s16, s16, s38"); step = c['KBT'] * 2048
    else:
        b.e("s_lshr_b32 s45, s44, 2"); b.e("s_lshl_b32 s45, s45, 14"); b.e("s_and_b32 s16, s44, 3"); b.e("s_lshl_b32 s16, s16, 11")
        b.e("s_add_u32 s16, s16, s45"); b.e("s_add_u32 s16, s16, s38"); step = c['KBT'] * 2048
    if f"a{which}" in os.environ.get("HOT", ""):
        b.e("s_mov_b32 s16, s38")
        if which == 4: b.e("s_add_u32 s17, s38, 1024")
    for i in range(4 if which != 4 else 0):
        fire.append((["s_add_u32 m0, m0, 2048", f"s_add_u32 s39, s39, {step}"] if i else []) + [f"buffer_load_dwordx4 v2, s[12:15], s39 offen {SC} lds"])
        fire.append([f"buffer_load_dwordx4 v2, s[12:15], s39 offen offset:1024 {SC} lds"])
    rot_next(b, which)
    if not (which <= 2 and NX):
        b.e(f"s_add_u32 s42, s42, 16384"); b.e(f"s_cmp_eq_u32 s42, {c['NA']*16384}"); b.e("s_cselect_b32 s42, 0, s42")
    if f"a{which}" in os.environ.get("NOLD", ""): fire = [[x for x in g if not x.startswith("buffer_load")] + ["s_nop 0"] for g in fire]
    return b.l, arm, fire
def a_issue(a, which):
    prep, arm, fire = a_parts(which)
    for x in prep + arm + sum(fire, []): a.e(x)
SUBS = {}
def call_issue(a, issue, which):
    nm = f"SUB_{issue.__name__}_{which}"; SUBS[nm] = (issue, which)
    a.e(f"s_call_b64 s[76:77], {nm}")
def emit_subs(a):
    for nm, f in SUBX.items(): a.e(f"SUB_{nm}:"); f(a); a.e("s_setpc_b64 s[76:77]")
    for nm, (issue, which) in SUBS.items():
        a.e(f"{nm}:"); issue(a, which); a.e("s_setpc_b64 s[76:77]")
def ld_steps(a, which, N, per, issue, npre, rate=2, plan={}, lo=0, hi=None, last=None, hold=(), sched=None, armed=False):
    NS = CFG[which]["NS"]
    prep, arm, fire = (w_parts if issue is w_issue else a_parts)(which); h = max(1, per * HSPLIT // 8)
    plan = {b: (x if isinstance(x, list) else [x]) for b, x in plan.items()}
    q = [s_ for s_ in range(npre) for _ in range(per)]
    def after(tag):
        if issue is w_issue and which == 4 and isinstance(tag, int) and tag < npre: tag = npre - 1
        return len(q) - 1 - max(i for i, x in enumerate(q) if x == tag)
    issued = npre; steps = []
    for b in range(NS):
        acts = plan.get(b, []); was = {}
        def do(pos):
            for n_, act in enumerate(acts):
                if act[0] != pos: continue
                if act[1] is not None: was[n_] = after(act[1])
                q.extend([act[4]] * act[3])
        do(True)
        k = 0
        if (b > 0 or (sched is not None and issue is a_issue)) and b not in hold:
            k = max(0, min(rate, min(NS, b - 1 + N) - issued)) if sched is None else sched[b]
        assert k or not any(x[0] == "mid" for x in acts)
        for j in range(k):
            q.extend([issued] * h)
            if j == 0: do("mid")
            q.extend([issued] * (per - h)); issued += 1
        do(False)
        w = after(b); assert w <= 63
        steps.append((k, w, b if acts else None, tuple(sorted(was.items())), issued < NS))
    def em(l):
        for x in l:
            a.e(x)
            if x == "s_barrier" and os.environ.get("JIT"): mstamp(a)
    F1, F2 = sum(fire[:h], []), sum(fire[h:], [])
    lprep = prep
    if len(prep) > 8:
        nm = f"PREP_{issue.__name__}_{which}"; SUBS[nm] = ((lambda a_, w_, l=prep: [a_.e(x) for x in l]), which)
        prep = [f"s_call_b64 s[76:77], {nm}"]
    if lo == 0 and npre < NS and not armed: em(prep + arm)
    i = lo; HI = NS if hi is None else hi
    while i < HI:
        j = i
        while j < HI and steps[j] == steps[i]: j += 1
        k, w, ab, was, more = steps[i]; n = j - i; was = dict(was)
        def run(pos):
            for n_, act in enumerate(plan.get(ab, [])):
                if act[0] != pos: continue
                if n_ in was: a.e(f"s_waitcnt vmcnt({was[n_]})")
                act[2]()
        tail = [f"s_waitcnt vmcnt({w})", "s_barrier"]
        if n > 2 and k == 1:
            em(F1); a.e("s_mov_b32 s43, 1"); L = a.lab("ld"); a.e(f"{L}:")
            em(lprep + F2 + arm + tail + F1)
            a.e("s_add_u32 s43, s43, 1"); a.e(f"s_cmp_lt_u32 s43, {n}"); a.e(f"s_cbranch_scc1 {L}")
            em(prep + F2 + arm + tail)
        else:
            for r in range(n):
                run(True)
                for jj in range(k):
                    nxt = more or jj < k - 1
                    em(F1)
                    if jj == 0: run("mid")
                    em((prep if nxt else []) + F2 + (arm if nxt else []))
                run(False)
                em(tail)
        i = j
    if hi is not None: return
    if which == 4:
        if issue is a_issue: a.e("s_cmp_eq_u32 s60, 1"); a.e("s_cbranch_scc1 K_fin")
        elif hold is HOLD: a.e("s_branch K_fin"); return
        if not RPL: r_pre(a)
    if last: last()
    late = os.environ.get("TLATE", "0") == "1"
    if late: a.e("s_barrier")
    if issue is a_issue and W4POS == f"{which}C":
        X = a.lab("tw4"); a.e("s_cmp_lg_u32 s60, 0"); a.e(f"s_cbranch_scc1 {X}"); touch(a, B_W4, 7 * MB, 20); a.e(f"{X}:")
    if not late: a.e("s_barrier")

RK = int(os.environ.get("RK", "7")); assert RK == 0 or C0PUB <= RK <= STQ
PA2 = int(os.environ.get("PA2", "1")); PBB = int(os.environ.get("PBB", "2")); PC0 = int(os.environ.get("PC0", "4"))
HOLD = eval(os.environ.get("HOLD", "[2,3,4]"))
def a_loader(a, which):
    c = CFG[which]
    if which <= 2:
        plan = side_jobs(a, 1) if which == 1 else {}
        if which == 1 and "1" in DP: mstamp(a); a.e(f"s_sleep {os.environ.get('SJD', '30')}")
        else: mstamp(a); a.e("s_barrier")
        mstamp(a)
        for b in sorted(plan):
            for act in (plan[b] if isinstance(plan[b], list) else [plan[b]]):
                if act[1] is not None: a.e("s_waitcnt vmcnt(0)")
                act[2]()
        if which == 1:
            a.e("s_cmp_lg_u32 s30, 4"); a.e("s_cbranch_scc1 AL_nw"); a.e("s_cmp_eq_u32 s60, 0"); a.e("s_cbranch_scc1 AL_l0")
            a.e(f"s_add_u32 s54, s55, {(fso(ST_G3) - LSTR) & 0xffffffff:#x}"); a.e("s_add_u32 s53, s54, s92"); a.e("v_mov_b32 v9, s53")
            a.e("s_add_u32 s53, s53, 128"); a.e("v_writelane_b32 v9, s53, 1")
            a.e("s_add_u32 s53, s54, s93"); a.e("v_writelane_b32 v9, s53, 2"); a.e("s_add_u32 s53, s53, 128"); a.e("v_writelane_b32 v9, s53, 3")
            poll_core(a, 8, [9], 15, cnt=8)
            a.e("s_branch AL_nw")
            a.e("AL_l0:")
            a.e(f"s_add_u32 s54, s55, {fso(ST_R2)}"); a.e("s_xor_b32 s54, s54, 0x2000"); a.e("v_mov_b32 v9, s54")
            poll_core(a, 8, [9], 1, cnt=16)
            a.e("AL_nw:")
        if which == 2: a.e("s_waitcnt vmcnt(0)")
        a.e("s_barrier")
        if which == 1 and "p" not in os.environ.get("FO", "1pd"): late_park(a)
        call(a, after_g1 if which == 1 else after_g2)
        return
    a.e("s_and_b32 s35, s30, 1")
    if which == 2:
        hs_srd(a, 12)
        a.e("s_lshl_b32 s38, s28, 11"); a.e("s_add_u32 s38, s38, 16384"); a.e(f"s_mul_i32 s36, s35, {4*PITCH}"); a.e("s_add_u32 s38, s38, s36")
    else:
        lsrd(a, 12, c["A"], XSZ if which != 4 else H2SZ)
        a.e(f"s_mul_i32 s38, s35, {4*c['KBT']*2048}")
        if which == 4: a.e(f"s_mul_i32 s36, s31, {7*16384}"); a.e("s_add_u32 s38, s38, s36")
    a.e("s_lshl_b32 s41, s35, 13"); a.e("s_mov_b32 s42, 0"); rot_init(a, which)
    assert c["NA"] == 3 or which == 3
    prep, arm, fire = a_parts(which)
    if which == 4:
        flag_addr(a, 9, ST_G3A); flag_addr(a, 10, ST_G3B); flag_addr(a, 12, ST_G3)
        a.e("v_mov_b32 v13, 1"); a.e("s_and_b32 s51, s30, 1"); a.e("s_lshl_b32 s51, s51, 30")
        def signal(r): a.e("s_mov_b64 exec, 1"); a.e(f"buffer_atomic_add v13, v{r}, s[56:59], s51 offen {SC}"); a.e("s_mov_b64 exec, -1")
        a.e("s_lshl_b32 s54, s60, 2"); a.e("s_add_u32 s54, s54, 4"); lds_spin(a, LW + 64, "s54", 14, nap=2)
        signal(9)
        if not PA2: poll_core(a, 8, [9], 1, cnt=8)
        mstamp(a)
        plan = {6 - L4: ("mid", None, lambda: flag_try(a, 11, 10), 1, "f"), 8 - L4: ("mid", "f", lambda: flag_check(a, 11, 10, 8), 0, None),
                13 - L4: ("mid", None, lambda: flag_try(a, 11, 12), 1, "g"), 15 - L4: ("mid", "g", lambda: flag_check(a, 11, 12, 8), 0, None)}
        plan = {k_: [x] for k_, x in plan.items()}
        if PA2:
            plan[1] = [(False, None, lambda: flag_try(a, 8, 9), 1, "a")]
            plan[2] = [(True, "a", lambda: flag_check(a, 8, 9, 8), 0, None)]
        if DP:
            a.e("v_xor_b32 v15, 128, v12")
            plan[20] = [("mid", None, lambda: flag_try(a, 11, 15), 1, "h")]; plan[22] = [("mid", "h", lambda: flag_check(a, 11, 15, 8), 0, None)]
        if int(os.environ.get("OT", "0")) >= 3:
            def ot():
                a.e(f"s_load_dwordx2 s[20:21], s[0:1], {D_OUT}"); a.e(f"s_mul_i32 s22, s60, {4*MB}"); a.e("s_mov_b32 s23, 0x20000"); a.e("s_lshl_b32 s36, s28, 18"); a.e("s_lshl_b32 s37, s29, 11")
                a.e("s_add_u32 s36, s36, s37"); a.e("s_waitcnt lgkmcnt(0)")
                a.e("s_mov_b64 exec, 1"); a.e(f"buffer_load_dword v16, v2, s[20:23], s36 offen {SC}"); a.e("s_mov_b64 exec, -1")
            plan.setdefault(int(os.environ["OT"]) % 100, []).append((False, None, ot, 1, "o"))
        plan.setdefault(PBB + 1, []).insert(0, (True, None, lambda: signal(10), 1, "s"))
        plan.setdefault(PC0 + 2, []).insert(0, (True, None, lambda: signal(12), 1, "s"))
        a.e("s_mov_b32 s44, 3")
        ld_steps(a, which, 3, 8, a_issue, 3, plan=plan); return
    if which == 3:
        mask, cnt = flag_addr(a, 9, ST_G2)
        def wait2():
            if B0E > 1: a.e(f"s_sleep {B0E}")
            poll_core(a, 8, [9], mask, cnt=cnt); mstamp(a); mstamp(a)
            if W3H: a.e("s_add_u32 s54, s60, 1"); lds_set(a, LW + 60, "s54", 10)
        N3 = 2 if "3" in DP else 1
        a.e(f"s_mov_b32 s44, {N3}"); a.e(f"s_mov_b32 s42, {16384*N3}")
        plan = side_jobs(a, 3)
        if os.environ.get("P30", "0") == "1":
            def wait0(): own_wait(a, ST_G2, False, 14); wait2()
            plan[0] = (True, None, wait0, 0, None)
            ld_steps(a, which, 3, 8, a_issue, 1, plan=plan, sched=[int(os.environ.get("P3N", "1")), 2 - int(os.environ.get("P3N", "1"))] + [1] * 13 + [0]); return
        plan[1] = (True, None, wait2, 0, None)
        if RPL: plan[15] = (False, None, lambda: call(a, r_pre0), 4, "r")
        PZ3 = int(os.environ.get("PZ3", "0"))
        if PZ3:
            a.srd(84, 4, 32 * MB, off=216 * MB)
            a.e("s_cmp_eq_u32 s60, 0"); a.e("s_cselect_b32 s86, s86, 0")
            for i in range(4): a.e(f"v_mov_b32 v{216+i}, -1")
            a.e("s_lshl_b32 s88, s2, 1"); a.e("s_and_b32 s50, s30, 1"); a.e("s_add_u32 s88, s88, s50"); a.e(f"s_mul_i32 s88, s88, {PZ3*12*1024}")
            def pz():
                for i in range(PZ3): a.e(f"buffer_store_dwordx4 v[216:219], v2, s[84:87], s88 offen offset:{i*1024} {SC}")
                a.e(f"s_add_u32 s88, s88, {PZ3*1024}")
            for b in range(2, 14):
                p_ = plan.get(b, []); p_ = p_ if isinstance(p_, list) else [p_]
                plan[b] = p_ + [(False, None, pz, PZ3, "z")]
        if os.environ.get("A3L", "0") == "1":
            def w1_():
                X = a.lab("w1"); a.e("s_cmp_lg_u32 s60, 0"); a.e(f"s_cbranch_scc1 {X}"); poll_core(a, 8, [9], mask, cnt=cnt); lds_set(a, LW + 60, 1, 10); a.e(f"{X}:")
            def w2_(): poll_core(a, 8, [9], mask, cnt=cnt, nap=2); mstamp(a); mstamp(a)
            plan[1] = (True, None, w1_, 0, None)
            p2 = plan[2] if isinstance(plan[2], list) else [plan[2]]
            plan[2] = [(True, None, w2_, 0, None)] + p2
            ld_steps(a, which, 3, 8, a_issue, N3, plan=plan, hold=(1,)); return
        ld_steps(a, which, c["NA"], 8, a_issue, N3, plan=plan, sched=eval(os.environ.get("A3S", "None"))); return
    assert 0

def side_jobs(a, which):
    c = CFG[which]; plan = {}
    sv = 16; S, Q, mean, rs, tt, ad, fa, fr = 216, 217, 218, 219, 220, 221, 222, 223
    cv = 180 if which == 3 else 24; N = c["LDW"] // 2; co_ = 224; HB = c["TN16"] * 32
    lg = 3 if which == 1 else 5
    def cld(k0=0, k1=4):
        if k0 == 0:
            a.srd(24, 4, 32 * N * 4, off=CSP[which])
            a.e("s_cmp_eq_u32 s60, 0"); a.e("s_cselect_b32 s26, s26, 0")
            if NOCS3 and which == 3: a.e("s_mov_b32 s26, 0")
            a.e("s_and_b32 s36, s30, 1"); a.e(f"s_mul_i32 s36, s36, {HB}"); a.e(f"s_mul_i32 s37, s29, {2*HB}"); a.e("s_add_u32 s37, s36, s37")
            a.e(f"v_lshrrev_b32 v{co_}, {lg}, v1"); a.e(f"v_mul_u32_u24 v{co_}, {N*4}, v{co_}")
            a.e(f"v_and_b32 v{cv-1}, {16*((1 << lg) - 1)}, v2"); a.e(f"v_add_u32 v{co_}, v{co_}, v{cv-1}")
        for k in range(k0, k1):
            a.e(f"buffer_load_dwordx4 {vr(cv+4*(k if k < 9 else k - 8),4)}, v{co_}, s[24:27], s37 offen {SC}"); a.e(f"s_add_u32 s37, s37, {N*4*(64 >> lg)}")
    def piece(lines, l0=False):
        def f():
            X = a.lab("pc")
            if l0: a.e("s_cmp_lg_u32 s60, 0"); a.e(f"s_cbranch_scc1 {X}")
            for x in lines: a.e(x)
            if l0: a.e(f"{X}:")
        return f
    def cadd(k0, k1): return [f"v_add_f32 v{cv+h}, v{cv+h}, v{cv+4*k+h}" for k in range(k0, k1) for h in range(4)]
    def sw(op): return [f"v_mov_b32 v{cv+4+e}, v{cv+e}" for e in range(4)] + [f"{op} v{cv+e}, v{cv+4+e}" for e in range(4)] + cadd(1, 2)
    if which in (1, 3):
        cout = ["s_and_b32 s36, s30, 1", f"s_mul_i32 s36, s36, {HB}", f"s_add_u32 s36, s36, {CSO[which]}", f"v_add_u32 v{cv-1}, s36, v2",
                f"s_bfm_b64 exec, {HB//16}, 0", f"ds_write_b128 v{cv-1}, {vr(cv,4)}", "s_mov_b64 exec, -1", "s_waitcnt lgkmcnt(0)"]
    if which == 1:
        flag_addr(a, fa, ST_R2)
        def ld():
            flag_check(a, fr, fa, 16)
            lsrd(a, 20, oLNS, 2048); a.e("s_and_b32 s35, s30, 1"); a.e("s_lshl_b32 s35, s35, 10")
            a.e(f"buffer_load_dwordx4 {vr(sv,4)}, v2, s[20:23], s35 offen {SC}")
        fin = piece(["s_and_b32 s36, s30, 1", "s_lshl_b32 s36, s36, 10", f"s_add_u32 s36, s36, {LNSL}", f"v_add_u32 v{ad}, s36, v2", f"ds_write_b128 v{ad}, {vr(sv,4)}", "s_waitcnt lgkmcnt(0)"])
        a.e("s_lshl_b32 s53, s29, 7"); a.e(f"s_add_u32 s53, s53, {F_CS}"); a.e(f"v_mov_b32 v{fa+4}, s53")
        def cld1(): flag_check(a, fr + 4, fa + 4, 16); cld()
        work = cadd(1, 4) + [f"v_add_f32_dpp v{cv+e}, v{cv+e}, v{cv+e} row_ror:8 row_mask:0xf bank_mask:0xf" for e in range(4)] + \
               sw("v_permlane16_swap_b32") + sw("v_permlane32_swap_b32")
        plan = {2: (False, None, lambda: flag_try(a, fr + 4, fa + 4), 1, "e"), 5: [(False, "e", cld1, 4, "c"), (False, None, lambda: flag_try(a, fr, fa), 1, "f")],
                8: (False, "f", ld, 1, "d"), 15: [(False, None, piece(cout, 1), 0, None), (False, "d", fin, 0, None)]}
        plan[9] = (False, None, piece(work, 1), 0, None)
    if which == 3:
        flag_addr(a, fa, ST_G2S)
        a.e(f"v_lshlrev_b32 v{ad}, 3, v1")
        def ld(k0):
            def f():
                if k0 == 0:
                    flag_check(a, fr, fa, 16)
                    lsrd(a, 20, oST2, 24576)
                    a.e("s_and_b32 s35, s30, 1"); a.e("s_lshl_b32 s35, s35, 9")
                a.e(f"s_add_u32 s36, s35, {k0*2048}")
                for k in range(k0, k0 + 8):
                    if k % 8 == 4: a.e("s_add_u32 s36, s36, 4096")
                    a.e(f"buffer_load_dwordx2 {vr(sv+2*k,2)}, v{ad}, s[20:23], s36 offen offset:{(k&3)*1024} {SC}")
            return f
        b = Rec()
        for st_ in (8, 4, 2, 1):
            for k in range(2 * st_): b.e(f"v_add_f32 v{sv+k}, v{sv+k}, v{sv+2*st_+k}")
        o_ = sv + 4
        b.e(f"v_mul_f32 v{o_}, {f32(1/1024)}, v{sv}"); b.e(f"v_mul_f32 v{Q}, {f32(1/1024)}, v{sv+1}")
        b.e(f"v_fma_f32 v{Q}, -v{o_}, v{o_}, v{Q}"); b.e(f"v_max_f32 v{Q}, 0, v{Q}")
        ln_finish(b, o_, Q, rs, o_ + 1)
        b.e(f"v_mul_f32 v{o_+2}, {f32(GC1)}, v{rs}"); b.e(f"v_mul_f32 v{o_+3}, v{rs}, v{rs}")
        b.e(f"v_mul_f32 v{o_+3}, v{o_+3}, v{o_+2}"); b.e(f"v_mul_f32 v{o_+3}, {f32(0.044715)}, v{o_+3}")
        b.e("s_lshl_b32 s35, s35, 1"); b.e(f"s_add_u32 s35, s35, {LNSL}"); b.e(f"v_add_u32 v{tt}, s35, v2")
        b.e(f"ds_write_b128 v{tt}, {vr(o_,4)}"); b.e("s_waitcnt lgkmcnt(0)")
        def both(f, g):
            def h(): f(); g()
            return h
        plan = {2: (False, None, cld, 4, "c"), 3: (False, None, lambda: cld(4, 9), 5, "c"),
                5: [(False, "c", piece(cadd(1, 5), 1), 0, None), (False, None, lambda: flag_try(a, fr, fa), 1, "f")],
                6: (False, None, both(piece(cadd(5, 9), 1), lambda: cld(9, 16)), 7, "e"),
                7: (False, "f", ld(0), 8, "d"), 8: (False, None, ld(8), 8, "d"),
                9: (False, "e", piece(cadd(1, 5), 1), 0, None), 10: (False, None, piece(cadd(5, 8), 1), 0, None), 11: (False, None, piece(sw("v_permlane32_swap_b32") + cout, 1), 0, None),
                12: (False, "d", piece(b.l[:16]), 0, None), 13: (False, None, piece(b.l[16:32]), 0, None), 14: (False, None, piece(b.l[32:]), 0, None)}
    return plan

W2E = int(os.environ.get("W2E", "3"))
def w2_early(a):
    if W2E: w_setup(a, 2, pre=False); w1_slots(a, range(W2E), pace=8)
def w_loader(a, which):
    c = CFG[which]
    if which < 3:
        if which == 1: a.e("s_waitcnt vmcnt(0)")
        if which == 1 and "a" in STO: stouch(a, 3, 128 if "8" in STO else 64, 2); mstamp(a)
        if which == 1 and sum(SG): sb_init(a)
        sg(a, SG[2*which-2])
        if not (which == 1 and "1" in DP): a.e("s_barrier")
        sg(a, SG[2*which-1])
        if which == 1 and "b" in STO: stouch(a, 3, 128 if "8" in STO else 64, 2); mstamp(a)
        if which == 2: a.e("s_waitcnt vmcnt(0)")
        a.e("s_barrier")
        if which == 1 and "p" not in os.environ.get("FO2", "1pd"): late_park(a)
        call(a, after_g1 if which == 1 else after_g2); mstamp(a)
        return
    args = (a, which, c["NW"], c["STB"] // 2048, w_issue, c["NPRE"], c["WR"])
    if which == 4:
        assert c["NW"] == 6 and c["WB"] == CFG[1]["WB"] + 3 * 8192
        a.e("s_cmp_eq_u32 s60, 1"); a.e("s_cbranch_scc1 WL_t1")
        ld_steps(*args, hi=24)
        WT = eval(os.environ.get("WT", "[(11,12,15,9),(13,14,10),(3,4),(5,6,0),(7,8,1,2),()]"))
        def some(js):
            def f():
                if js is WT[0]: w_setup(a, 1, pre=False)
                for j in js:
                    if j in (9, 10) and js is not WT[5]:
                        a.e(f"s_add_u32 s39, s38, {j*64*2048}")
                        for i in range(4): a.e(f"buffer_load_dwordx4 {vr(16+16*(j-9)+4*i,4)}, v{WVB[1]}, s[12:15], s39 offen"); a.e("s_add_u32 s39, s39, 16384")
                    else: w1_slots(a, (j,), pace=8 if js is WT[5] else 0)
            return f
        plan = {24 + i: (False, None, some(WT[i]), 4 * len(WT[i]), "w") for i in range(4) if WT[i]}
        ld_steps(*args, plan=plan, lo=24, last=some(WT[4]))
        rg = [j for j in (9, 10) if j not in WT[5]]
        if rg:
            a.e(f"s_add_u32 s36, s41, {9*8192}"); a.e("v_add_u32 v6, s36, v2"); a.e("s_waitcnt vmcnt(0)")
            for j in rg:
                for i in range(4): a.e(f"ds_write_b128 v6, {vr(16+16*(j-9)+4*i,4)} offset:{(j-9)*8192+i*1024}")
            a.e("s_waitcnt lgkmcnt(0)")
        some(WT[5])(); mstamp(a)
        a.e("s_branch NEXT")
        a.e("WL_t1:")
        ld_steps(*args, hold=HOLD)
        return
    plan = {}
    if "3" in DP:
        lsrd(a, 20, oX1P, XSZ)
        a.e(f"v_readlane_b32 s36, v{TV+3}, 1"); a.e("s_and_b32 s35, s30, 1"); a.e("s_lshl_b32 s46, s35, 18"); a.e("s_lshl_b32 s47, s35, 13"); a.e("s_add_u32 s47, s47, 16384")
        a.e("s_bfe_u32 s37, s36, 0x20002"); a.e("s_lshl_b32 s37, s37, 14"); a.e("s_and_b32 s36, s36, 3"); a.e("s_lshl_b32 s36, s36, 11"); a.e("s_add_u32 s46, s46, s36"); a.e("s_add_u32 s46, s46, s37")
        a.e("v_add_u32 v8, s47, v2")
        if W3E: w_issue(a, 3); args = args[:5] + (3,) + args[6:]
        def second():
            L = a.lab("sp"); D = a.lab("sq")
            a.e("s_mov_b32 s34, m0"); a.e("s_cmp_lg_u32 s60, 0"); a.e(f"s_cbranch_scc1 {L}a")
            lds_spin(a, LW + 60, 1, 6, nap=1)
            a.e(f"{L}a:"); a.e("s_mov_b32 s53, 0")
            if int(os.environ.get("S3D", "0")): a.e("s_sleep " + os.environ["S3D"])
            a.e(f"{L}:"); a.e("s_mov_b32 m0, s47"); a.e("s_mov_b32 s36, s46")
            for i in range(4):
                if i: a.e("s_add_u32 m0, m0, 2048"); a.e("s_add_u32 s36, s36, 65536")
                for k in range(2): a.e(f"buffer_load_dwordx4 v2, s[20:23], s36 offen offset:{1024*k} {SC} lds")
            a.e("s_waitcnt vmcnt(0)")
            for i in range(8): a.e(f"ds_read_b32 v{10+i}, v8 offset:{1024*i}")
            a.e("s_waitcnt lgkmcnt(0)")
            a.e("v_or3_b32 v10, v10, v11, v12"); a.e("v_or3_b32 v13, v13, v14, v15"); a.e("v_or3_b32 v10, v10, v16, v17"); a.e("v_bitop3_b32 v10, v10, v13, s60 bitop3:0xa8")
            a.e("v_cmp_ne_u32 vcc, 0, v10"); a.e(f"s_cbranch_vccz {D}"); a.e("s_sleep 1")
            a.e("s_add_u32 s53, s53, 1"); a.e("s_cmp_lt_u32 s53, s61"); a.e(f"s_cbranch_scc1 {L}"); a.e("s_mov_b32 s61, 0")
            a.e(f"{D}:"); a.e("s_mov_b32 m0, s34")
        plan[1] = (True, None, second, 8, "x")
    elif W3H: plan[1] = (True, None, lambda: (a.e("s_add_u32 s54, s60, 1"), lds_spin(a, LW + 60, "s54", 6, nap=1)), 0, None)
    def sg3(n):
        def f():
            X = a.lab("st"); a.e("s_cmp_lg_u32 s60, 0"); a.e(f"s_cbranch_scc1 {X}"); sb(a, n); a.e(f"{X}:")
        return f
    for b_, n_ in eval(os.environ.get("SG3", "{}")).items(): plan[b_] = (False, None, sg3(n_), 0, None)
    if RPL: plan[int(os.environ.get("RPW", "15"))] = (False, None, lambda: call(a, r_pre0), 4, "r")
    ld_steps(*args, plan=plan)
W3H = int(os.environ.get("W3H", "0")) or "3" in DP; W3E = int(os.environ.get("W3E", "1"))
W1L = int(os.environ.get("W1L", "3"))

B0E = int(os.environ.get("B0E", "6")); RPL = int(os.environ.get("RPL", "1")); RPC = int(os.environ.get("RPC", "1"))
LF1 = os.environ.get("LF1", "sc1"); LF2 = os.environ.get("LF2", "")
RES2 = 148; C2R = 200; SO3 = 238; RES4 = [172, 176, 180, 184, 188, 192, 196, 240]
def g_compute(a, which):
    c = CFG[which]
    WM, WN, MT, NT, KBT, NS, NA, NW, TN16, STB, WB = [c[k] for k in "WM WN MT NT KBT NS NA NW TN16 STB WB".split()]
    v = VA(6); nm = f"G{which}"
    lane = 1; l16 = 2
    t = v(); t2 = v(); pt = v(4, 2)
    NTILE = (0, 99, 29, 29, 33)[which]
    a_ = a
    if which != 3: a = Rec()
    if WN == 2: a.e("s_lshr_b32 s34, s30, 1"); a.e("s_and_b32 s35, s30, 1")
    else: a.e("s_mov_b32 s34, s30"); a.e("s_mov_b32 s35, 0")
    a0 = v(); w0 = v(4, 1); aa = v(); wa = v(4, 1); J = v(); G = v()
    a.e(f"v_and_b32 v{J}, 15, v{lane}"); a.e(f"v_lshrrev_b32 v{G}, 4, v{lane}")
    a.e(f"s_mul_i32 s37, s34, {MT}")
    a.e(f"s_mul_i32 s38, s{NTILE}, {TN16}"); a.e(f"s_mul_i32 s36, s35, {NT}"); a.e("s_add_u32 s38, s38, s36")
    acc = v(MT * NT * 4, 4); NF = MT + NT if which > 2 else 8
    fX = v(NF * 4, 4); fY = v(NF * 4, 4); tmp = v(); tp = v(4, 2)
    def A_(mt, nt): return acc + 4 * (mt * NT + nt)
    def SUBM(r): return f"{vr(r,2)} op_sel_hi:[1,0] neg_lo:[0,1] neg_hi:[0,1]"
    def MULR(r): return f"{vr(r,2)} op_sel:[0,1] op_sel_hi:[1,1]"
    if which in (2, 4):
        res = RES2
        a.e("s_lshr_b32 s36, s38, 1"); spread(a, 39, 36); a.e("s_lshl_b32 s36, s37, 16"); a.e("s_add_u32 s39, s39, s36")
    if which <= 2:
        AB = 164; LO = v(8, 1)
        def aload(b, kk):
            if which == 1: return [f"buffer_load_dwordx4 {vr(AB+16*b+8*kk+4*mt,4)}, v{LO+mt+(b&2)}, s[8:11], s44 offen offset:{(b&1)*2048+kk*1024} {LF1}" for mt in range(2)]
            return [f"buffer_load_dwordx4 {vr(AB+16*b+8*kk+4*mt,4)}, v{LO+mt}, s[8:11], s44 offen {LF2}" for mt in range(2)]
        def seq(pairs, s0):
            if which == 1: return [x for b, kk in pairs for x in aload(b, kk)]
            return ([f"s_mov_b32 s44, {s0}"] if s0 is not None else []) + [x for b, kk in pairs for x in aload(b, kk) + ["s_add_u32 s44, s44, 16384"]]
        def past(l): return [x + (SC if x.startswith("buffer") and SC not in x else "") for x in l]
        PR = [(i >> 1, i & 1) for i in range(7)]
        h = Rec()
        if which == 1:
            lsrd(h, 8, oX3, XSZ); OOB = MB
            for i in range(4): (h if i < 2 else a).e(f"v_add_u32 v{LO+i}, {(i & 1) * 65536 + (i >> 1) * 4096}, v{l16}")
            h.e("s_lshl_b32 s44, s30, 17")
            for i in range(1, 4): a.e(f"s_add_u32 s{44+i}, s44, {16384*i}")
        else:
            OOB = 0x40000000; LP = v(2, 1)
            h.srd(8, 4, 8 * GSTR + LSTR, off=LB0 + oHS)
            h.e(f"s_sub_u32 s47, s55, {LB0 + oSM}"); h.e("s_lshl_b32 s46, s30, 9"); h.e("s_add_u32 s47, s47, s46")
            h.e("s_add_u32 s45, s92, 2048"); h.e("s_cmp_eq_u32 s28, 0"); h.e(f"s_cselect_b32 s45, {OOB}, s45"); h.e("s_cmp_eq_u32 s30, 0"); h.e("s_cselect_b32 s45, s45, 0")
            a.e("s_sub_u32 s46, s93, 2048"); a.e("s_cmp_eq_u32 s28, 15"); a.e(f"s_cselect_b32 s46, {OOB}, s46"); a.e("s_cmp_eq_u32 s30, 3"); a.e("s_cselect_b32 s46, s46, 0")
            for q_, sh in enumerate((1, -1, 2, -2)):
                e_ = h if q_ == 0 else a
                e_.e(f"s_add_u32 s53, s47, {(-16 * sh) & 0xffffffff:#x}"); e_.e(f"v_add_u32 v{LO+2*q_}, s53, v{a0}"); e_.e(f"v_add_u32 v{LO+2*q_+1}, 256, v{LO+2*q_}")
                R_ = LO + 2 * q_ + (0 if sh > 0 else 1)
                e_.e(f"v_add_u32 v{LP}, s{45 if sh > 0 else 46}, v{R_}")
                e_.e(f"v_cmp_gt_u32 vcc, {sh}, v{J}" if sh > 0 else f"v_cmp_le_u32 vcc, {16 + sh}, v{J}"); e_.e(f"v_cndmask_b32 v{R_}, v{R_}, v{LP}, vcc")
            for k in range(2): a.e(f"v_mov_b32 v{LP+k}, v{LO+k}")
        EARLY = str(which) in DP and str(which) in os.environ.get("EP", "2")
        try0 = past(seq(PR[:2], 0))
        for x in h.l: a_.e(x)
        if EARLY and which == 1:
            for x in try0: a_.e(x)
    else:
        a.e(f"s_mul_i32 s36, s34, {MT*2048}"); a.e(f"v_add_u32 v{a0}, s36, v{l16}")
    nwr, wpos = w_bases(a, which, w0, 35, NT, t, t2)
    if which <= 2:
        for x in a.l: a_.e(x)
    a = a_
    if which == 3 and not B0E: publish(a, ST_G2S, 4, pt, ctr=48)
    if which == 2:
        a.e(f"s_lshl_b32 s36, s37, 8"); a.e(f"s_add_u32 s36, s36, {LNSL}"); a.e(f"v_lshlrev_b32 v{t2}, 4, v{J}"); a.e(f"v_add_u32 v{t2}, s36, v{t2}")
        for mt in range(MT): a.e(f"ds_read_b64 {vr(fX+2*mt,2)}, v{t2} offset:{mt*256}")
        a.e("s_waitcnt vmcnt(4) lgkmcnt(0)")
        if EARLY:
            if int(os.environ.get("G2D", "3")): a.e("s_sleep " + os.environ.get("G2D", "3"))
            if int(os.environ.get("G2D0", "20")): a.e("s_cmp_lg_u32 s60, 0"); a.e("s_cbranch_scc1 G2_nd"); a.e("s_sleep " + os.environ.get("G2D0", "20")); a.e("G2_nd:")
            for x in try0: a.e(x)
        for mt in range(MT):
            for p in range(NT // 2):
                for e in range(4):
                    X = A_(mt, 2 * p) + 2 * e
                    unpack(a, X, X + 1, res + (mt * (NT // 2) + p) * 4 + e)
                    a.e(f"v_pk_add_f32 {vr(X,2)}, {vr(X,2)}, {SUBM(fX+2*mt)}"); round2(a, X, X + 1, tmp)
                    a.e(f"v_pk_mul_f32 {vr(X,2)}, {vr(X,2)}, {MULR(fX+2*mt)}"); round2(a, X, X + 1, tmp)
    elif which == 1:
        for i in range(0, MT * NT * 4, 2): a.e(f"v_pk_mov_b32 {vr(acc+i,2)}, 0, 0")
    RX = [180, 184, 188, 192, 196, 230, 234, 248]
    def last_res():
        b0 = Rec()
        for i in range(2):
            b0.e(f"s_add_u32 s36, s40, {i*65536}")
            for p in range(2):
                b0.e(f"buffer_load_dwordx4 {vr(RX[2*(2*i+p)],4)}, v{l16}, s[84:87], s36 offen offset:{p*1024} {SC}")
                b0.e(f"buffer_load_dwordx4 {vr(RX[2*(2*i+p)+1],4)}, v{l16}, s[88:91], s36 offen offset:{p*1024} {SC}")
        return b0.l
    def reads(F, kk):
        o = []
        for mt in range(MT): o.append(f"ds_read_b128 {vr(F+4*mt,4)}, v{aa} offset:{mt*256+kk*8192 if which == 2 else mt*2048+kk*1024}")
        for nt in range(NT):
            for h in range(2):
                r, imm = wpos(nt, kk, h)
                o.append(f"ds_read_b64_tr_b16 {vr(F+4*(MT+nt)+2*h,2)}, v{wa+r} offset:{imm}")
        NR = os.environ.get("NOREAD")
        if NR == "N": o = []
        if NR == "A": o = o[MT:]
        if NR == "W": o = o[:MT]
        if NR == "H": o = o[::2]
        if NR == "X": o = o + o[:2]
        if NR == "XX": o = o + o[:MT]
        return o
    def mix(rd, ex):
        rd = list(rd)
        for i, x in enumerate(ex): rd.insert(min(len(rd), (i + 1) * len(rd) // (len(ex) + 1)), x)
        return rd
    def mfmas(F, rd, tail=()):
        n = MT * NT; k = 0; tot = len(rd); span = max(1, n * 3 // 4); done = 0; tail = list(tail); per = -(-len(tail) // max(1, n - span))
        OR = os.environ.get("ORDER", "2")
        order = {"0": [(nt, mt) for nt in range(NT) for mt in range(MT)],
                 "1": [(nt, mt) for mt in range(MT) for nt in range(NT)],
                 "2": [(nt, mt if nt % 2 == 0 else MT - 1 - mt) for nt in range(NT) for mt in range(MT)],
                 "3": [(nt if mt % 2 == 0 else NT - 1 - nt, mt) for mt in range(MT) for nt in range(NT)]}[OR]
        for nt, mt in order:
            if True:
                cc = acc + 4 * (mt * NT + nt)
                if str(which) not in os.environ.get("NOMF", ""): a.e(f"v_mfma_f32_16x16x32_bf16 {vr(cc,4)}, {vr(F+4*(MT+nt),4)}, {vr(F+4*mt,4)}, {vr(cc,4)}")
                k += 1
                while rd and done < (tot * k + span - 1) // span: a.e(rd.pop(0)); done += 1
                if k >= span and k < n:
                    for _ in range(min(per, len(tail))): a.e(tail.pop(0))
        assert not rd and not tail
    so = SO3 if which == 3 else a0; cs = fX; lns = fX + 4 * NT; G4W = 240; EA = 244
    def ep_setup(b):
        if which in (1, 3):
            assert which == 1 or (fY <= C2R and C2R + 24 <= fY + 4 * NF)
            b.e(f"s_mul_i32 s36, s35, {NT*64}"); b.e(f"s_add_u32 s36, s36, {CSO[which]}"); b.e(f"v_lshlrev_b32 v{t}, 4, v{G}"); b.e(f"v_add_u32 v{t}, s36, v{t}")
            b.e(f"s_lshl_b32 s36, s37, 8"); b.e(f"s_add_u32 s36, s36, {LNSL + (8 if which == 1 else 0)}"); b.e(f"v_lshlrev_b32 v{t2}, 4, v{J}"); b.e(f"v_add_u32 v{t2}, s36, v{t2}")
        if which == 3:
            lsrd(b, 16, oH2, H2SZ)
            b.e(f"s_mul_i32 s39, s37, {224*1024}")
            for P in range(4):
                b.e("s_lshr_b32 s36, s38, 1"); b.e(f"s_add_u32 s36, s36, {P}"); spread(b, 44 + P, 36); b.e(f"s_add_u32 s{44+P}, s{44+P}, s39")
            w_bases(b, 4, G4W, 35, 4, tp, tp + 1)
            b.e("s_lshl_b32 s38, s33, 3"); b.e("s_lshl_b32 s36, s35, 2"); b.e("s_add_u32 s38, s38, s36")
            b.e("s_lshr_b32 s36, s38, 1"); spread(b, 39, 36); b.e("s_lshl_b32 s36, s37, 16"); b.e("s_add_u32 s39, s39, s36")
            b.e("s_lshl_b32 s40, s31, 17"); b.e("s_add_u32 s40, s40, s39")
            b.e("s_xor_b32 s41, s31, 1"); b.e("s_lshl_b32 s41, s41, 17"); b.e("s_add_u32 s41, s41, s39")
            lsrd(b, 84, oX3, XSZ); lsrd(b, 88, oX1P, XSZ)
            b.e("s_lshl_b32 s36, s37, 1"); b.e("s_add_u32 s36, s36, s35"); b.e("s_lshl_b32 s36, s36, 10"); b.e(f"v_add_u32 v{EA}, s36, v{l16}")
            b.e(f"v_mov_b32 v{EA+1}, 1"); b.e(f"v_mov_b32 v{EA+2}, {LW+64}")
            b.e(f"v_lshrrev_b32 v{so}, 1, v{G}"); b.e(f"v_lshlrev_b32 v{so}, 8, v{so}"); b.e(f"v_lshl_add_u32 v{so}, v{J}, 4, v{so}")
            b.e(f"v_and_b32 v{tmp}, 1, v{G}"); b.e(f"v_lshl_add_u32 v{so}, v{tmp}, 3, v{so}")
        if which == 1:
            lsrd(b, 16, oHS, XSZ)
            b.e(f"v_lshlrev_b32 v{so}, 11, v{G}"); b.e(f"v_lshl_add_u32 v{so}, v{J}, 4, v{so}")
            b.e("s_lshl_b32 s39, s38, 13"); b.e("s_lshl_b32 s36, s37, 8"); b.e("s_add_u32 s39, s39, s36"); b.e("s_add_u32 s40, s39, 16384")
            b.e("s_lshl_b32 s36, s29, 1"); spread(b, 41, 36); b.e("s_lshl_b32 s36, s37, 16"); b.e("s_add_u32 s41, s41, s36")
        if which == 2: lsrd(b, 16, oX1P, XSZ)
    def cost(x): return sum(8 if y.startswith("ds_") else 4 for y in x.split("\n"))
    def group(F, rd, r0, ex, fixed={}, zero=False):
        n = MT * NT; ex = [x if isinstance(x, tuple) else (x, -1) for x in ex]; done = 0
        order = [(nt, mt if nt % 2 == 0 else MT - 1 - mt) for nt in range(NT) for mt in range(MT)]
        need = sum(cost(x) for x, _ in ex) + 8 * len(rd) + sum(cost(x) for l in fixed.values() for x in l)
        cap = max(12, -(-need // (4 * n)) * 4)
        for k, (nt, mt) in enumerate(order):
            cc = A_(mt, nt)
            if str(which) not in os.environ.get("NOMF", ""): a.e(f"v_mfma_f32_16x16x32_bf16 {vr(cc,4)}, {vr(F+4*(MT+nt),4)}, {vr(F+4*mt,4)}, {0 if zero else vr(cc,4)}")
            b_ = cap - sum(cost(x) for x in fixed.get(k, [])); nv = 0
            if k >= r0 and done < len(rd): a.e(rd[done]); done += 1; b_ -= 8
            while ex and ex[0][1] < done and (cost(ex[0][0]) <= b_ or k == n - 1) and not (nv >= (1 if rd else 2) and ex[0][0].startswith("v_") and cap == 12 and k < n - 1):
                x = ex.pop(0)[0]; a.e(x); b_ -= cost(x); nv += x.startswith("v_")
            for x in fixed.get(k, []): a.e(x)
        assert done == len(rd) and not ex
    NR_ = MT + 2 * NT; BP = eval(os.environ.get("BP", "{3:3,4:2}")).get(which, 0)
    def stage(ex=(), ey=(), lim=NS-1, late=False, zero=False, pre=()):
        if str(which) in os.environ.get("GST", "") or os.environ.get("JIT"): mstamp(a, True)
        if which == 3: last = {0: NR_ - 1, 1: NR_ - 3}
        else: last = {i: MT + 2 * i + 1 for i in range(4)}
        book = ["s_add_u32 s42, s42, 16384", f"s_cmp_eq_u32 s42, {NA*16384}", "s_cselect_b32 s42, 0, s42",
                f"s_add_u32 s48, s48, {STB}", f"s_cmp_eq_u32 s48, {NW*STB}", "s_cselect_b32 s48, 0, s48", (f"v_add_u32 v{aa}, s42, v{a0}", MT - 1)]
        book += sorted([(f"v_add_u32 v{wa+i}, s48, v{w0+i}", last[i]) for i in range(nwr)], key=lambda x: x[1])
        n = MT * NT
        group(fX, reads(fY, 1), 0, book[:7] + list(ex) + book[7:], {3: [f"s_waitcnt lgkmcnt({min(15, NR_ - MT - 4 + 4)})"], 7: ["s_waitcnt lgkmcnt(8)"], n - 1: [f"s_waitcnt lgkmcnt({NR_ - MT - 2})"]}, zero)
        if late:
            b_ = Rec(); ep_setup(b_)
            group(fY, [], 0, ["s_add_u32 s43, s43, 1"] + b_.l, {min(BP, 3): ["s_waitcnt lgkmcnt(0)"]})
            if B0E: publish(a, ST_G2S, 4, pt, ctr=48)
            a.e("s_barrier")
            for x in reads(fX, 0): a.e(x)
            a.e(f"s_waitcnt lgkmcnt({NR_ - MT - 2})")
            return
        group(fY, reads(fX, 0), BP + 1, list(ey) + ["s_add_u32 s43, s43, 1", f"s_cmp_lt_u32 s43, {lim}"],
              {BP - 1: list(pre), BP: ["s_waitcnt lgkmcnt(0)", "s_barrier"], n - 1: [f"s_waitcnt lgkmcnt({NR_ - MT - 2})"]})
    w00 = c["S0"] * STB
    if which <= 2:
        def wrd(p, b): return [f"ds_read_b64_tr_b16 {vr((fX, fY)[p]+16*kk+4*nt+2*h,2)}, v{w0+nt} offset:{b*STB + wpos(nt, kk, h)[1]}" for kk in range(2) for nt in range(4) for h in range(2)]
        def dmf(b, fill, lo=0, hi=16):
            k = 0
            for kk in range(2):
                for nt in range(4):
                    for mt in ((0, 1) if nt % 2 == 0 else (1, 0)):
                        if lo <= k < hi:
                            a.e(f"v_mfma_f32_16x16x32_bf16 {vr(A_(mt,nt),4)}, {vr((fX, fY)[b&1]+16*kk+4*nt,4)}, {vr(AB+16*b+8*kk+4*mt,4)}, {vr(A_(mt,nt),4)}")
                            for x in fill[k]: a.e(x)
                        k += 1
        def spreadf(l, lo, hi):
            f = [[] for _ in range(16)]
            for i, x in enumerate(l): f[lo + i * (hi - lo) // len(l)].append(x)
            return f
        a.e("s_mov_b32 s43, 0"); ep_setup(a)
        CK = str(which) in DP; ck_ = aa
        def check(b):
            B = AB + 16 * b
            return [f"v_or3_b32 v{ck_}, v{B}, v{B+4}, v{B+8}", f"v_bitop3_b32 v{ck_}, v{ck_}, v{B+12}, 1 bitop3:0xa8", f"v_cmp_ne_u32 vcc, 0, v{ck_}"]
        L = a.lab("dm"); assert CK
        a.e("s_mov_b32 s53, 0"); a.e("s_mov_b32 s49, s44")
        if which == 2: a.e("s_barrier")
        for x in wrd(0, 0): a.e(x)
        if EARLY: a.e(f"s_branch {L}w")
        a.e(f"{L}p:")
        for x in try0: a.e(x)
        a.e(f"{L}w:")
        a.e("s_waitcnt vmcnt(0)")
        for x in check(0): a.e(x)
        a.e(f"s_cbranch_vccz {L}q"); a.e(f"s_sleep {os.environ.get('GNAP', '2')}")
        a.e("s_add_u32 s53, s53, 1"); a.e("s_cmp_lt_u32 s53, s61"); a.e(f"s_cbranch_scc1 {L}p"); a.e("s_mov_b32 s61, 0")
        a.e(f"{L}q:")
        mstamp(a)
        for x in seq(PR[2:], None): a.e(x)
        a.e("s_waitcnt lgkmcnt(0)")
        a.e(f"{L}:")
        for b in range(4):
            rd = wrd(1 - (b & 1), (b + 1) & 3); ex = [[] for _ in range(16)]
            ex[0], ex[1] = [[x] for x in aload((b - 1) & 3, 1)]
            if b == 0 and which == 1:
                for i, x in enumerate(["s_mov_b32 s44, s45", "s_mov_b32 s45, s46", "s_mov_b32 s46, s47", f"s_mov_b32 s47, {OOB}"]): ex[2 + i].append(x)
            if which == 2:
                ex[2].append("s_add_u32 s44, s44, 16384"); ex[10].append("s_add_u32 s44, s44, 16384")
                mv = [f"v_mov_b32 v{LO+k}, v{LO+k+2}" for k in range(6)] + [f"v_mov_b32 v{LO+6+k}, {OOB}" for k in range(2)]
                if b < 2:
                    for i, x in enumerate(mv[4*b:4*b+4]): ex[3 + i].append(x)
                if b == 3:
                    for k in range(2): ex[3 + k].append(f"v_mov_b32 v{LP+k}, v{LO+k}")
            if b == 2:
                ex[4].append("s_add_u32 s43, s43, 1"); ex[14].append("s_cmp_eq_u32 s43, 4")
                for nt, g_ in enumerate((11, 12, 13, 15)): ex[g_].append(f"v_add_u32 v{w0+nt}, {4*STB}, v{w0+nt}")
            if b == 3 and which == 1: ex[2].append("s_mov_b32 s49, s44")
            ex[7].append("s_waitcnt lgkmcnt(8)")
            ex[8], ex[9] = [[x] for x in aload(b, 0)]
            ex[10].append("s_waitcnt vmcnt(10)")
            if CK:
                for i, x in enumerate(check((b + 1) & 3)): ex[11 + i].append(x)
            fill = [rd[i:i+1] + ex[i] for i in range(16)]
            fill[14] = rd[14:16] + ex[14]; fill[15] = ex[15] + ["s_waitcnt lgkmcnt(8)"]
            if CK: fill[15] += [f"s_cbranch_vccnz {L}f{b}", f"{L}g{b}:"]
            if b == 2: fill[15].append(f"s_cbranch_scc1 {L}x")
            if b == 3: fill[15].append(f"s_branch {L}")
            dmf(b, fill)
        for b in range(4 if CK else 0):
            nb = (b + 1) & 3
            a.e(f"{L}f{b}:"); a.e("s_cselect_b32 s50, 1, 0")
            a.e(f"{L}h{b}:"); a.e(f"s_sleep {os.environ.get('GNAP', '2')}")
            if which == 2: a.e(f"s_sub_u32 s44, s44, {7*16384}")
            for j in range(4):
                bb = (nb + j) & 3
                for kk in range(2 if j < 3 else 1):
                    for x in past(seq([(bb, kk)], None)):
                        if bb >= nb and which == 1: x = x.replace("s44", "s49")
                        if bb >= nb and which == 2: x = x.replace(f", v{LO}, ", f", v{LP}, ").replace(f", v{LO+1}, ", f", v{LP+1}, ")
                        a.e(x)
            a.e("s_waitcnt vmcnt(10)")
            for x in check(nb): a.e(x)
            a.e("s_add_u32 s53, s53, 1"); a.e("s_cmp_ge_u32 s53, s61"); a.e("s_cselect_b32 s61, 0, s61"); a.e(f"s_cbranch_scc1 {L}k{b}")
            a.e(f"s_cbranch_vccnz {L}h{b}")
            a.e(f"{L}k{b}:"); a.e("s_cmp_eq_u32 s50, 1"); a.e(f"s_branch {L}g{b}")
        a.e(f"{L}x:")
    else:
        if which == 3:
            a.e(f"v_mov_b32 v{aa}, v{a0}")
            a.e("s_mov_b32 s42, 0"); a.e("s_mov_b32 s43, 0"); a.e(f"s_mov_b32 s48, {w00}")
            for i in range(nwr): a.e(f"v_add_u32 v{wa+i}, {w00}, v{w0+i}")
        if not (which == 3 and B0E): a.e("s_waitcnt lgkmcnt(0)"); a.e("s_barrier")
        mstamp(a)
        for x in reads(fX, 0): a.e(x)
        a.e(f"s_waitcnt lgkmcnt({NR_ - MT - 2})")
    if which == 4:
        def st2(j): return [(x, 0) for x in [f"s_add_u32 s36, s44, {j*224*1024}", f"buffer_store_dwordx4 {vr(C2R+4*j,4)}, v{l16}, s[16:19], s36 offen {SC}",
                            f"s_add_u32 s36, s45, {j*224*1024}", f"buffer_store_dwordx2 {vr(C2R+16+2*j,2)}, v{SO3}, s[16:19], s36 offen {SC}"]]
        assert PBB in (1, 2) and PC0 >= 2
        for st_ in range(2): stage(st2(2 * st_), st2(2 * st_ + 1), zero=st_ == 0, pre=[f"s_waitcnt vmcnt({4 * st_ + 2})"] if PBB == st_ + 1 else [])
        CW = 0
        if PC0 > 3:
            L0 = a.lab("mm"); a.e(f"{L0}:"); stage(lim=PC0); a.e(f"s_cbranch_scc1 {L0}")
        elif PC0 == 3: stage()
    if which == 3 and os.environ.get("PEEL3", "1") == "1": stage(late=True, zero=True)
    if which > 2:
        L = a.lab("mm"); a.e(f"{L}:")
        stage(pre=[f"s_waitcnt vmcnt({CW})"] if which == 4 else [])
        a.e(f"s_cbranch_scc1 {L}")
    b0 = Rec()
    if which == 4:
        a.e("s_cmp_eq_u32 s60, 1"); a.e("s_cbranch_scc1 G4_last")
        if not RPC: r_pre(b0)
    if which == 1:
        for mt in range(MT):
            for p in range(NT // 2): b0.e(f"buffer_load_dwordx4 {vr(RES2+(mt*(NT//2)+p)*4,4)}, v{LO+mt}, s[8:11], s41 offen offset:{p*1024} {SC}")
    early = True
    XW = {3: [f"s_waitcnt lgkmcnt({min(15, NR_ - MT)})"], 7: ["s_waitcnt lgkmcnt(8)"]}
    if which <= 2: dmf(3, spreadf(b0.l, 0, 8), 0, 8)
    else: group(fX, reads(fY, 1), 0, b0.l, XW)
    a.e("s_waitcnt lgkmcnt(0)")
    if which not in DL: a.e("s_barrier")
    b = Rec()
    if which in (1, 3):
        for nt in range(NT): b.e(f"ds_read_b128 {vr(cs+4*nt,4)}, v{t} offset:{nt*64}")
        if which == 3:
            for mt in range(MT): b.e(f"ds_read_b128 {vr(lns+4*mt,4)}, v{t2} offset:{mt*256}")
            for i in range(4): b.e(f"v_mov_b32 v{w0+i}, v{G4W+i}"); b.e(f"v_add_u32 v{wa+i}, {CFG[4]['S0']*CFG[4]['STB']}, v{G4W+i}")
            b.e("s_mov_b32 s42, 0"); b.e("s_mov_b32 s43, 0"); b.e(f"s_mov_b32 s48, {CFG[4]['S0']*CFG[4]['STB']}"); b.e(f"v_mov_b32 v{aa}, v{a0}")
            assert fY + 16 == RFO; r_addr(b, False)
        else:
            for mt in range(MT): b.e(f"ds_read_b64 {vr(lns+2*mt,2)}, v{t2} offset:{mt*256}")
    if which == 2: lsrd(b, 44, oST2, 24576)
    if which == 4:
        b.e(f"s_mul_i32 s36, s31, {oP1-oP0}"); b.e(f"s_add_u32 s36, s36, {oP0}")
        b.e("s_add_u32 s16, s62, s36"); b.e("s_addc_u32 s17, s63, 0"); b.e(f"s_mov_b32 s18, {XSZ}"); b.e("s_mov_b32 s19, 0x20000")
    if which <= 2: dmf(3, spreadf(b.l, 8, 15), 8, 16)
    else: group(fY, [], 0, b.l)
    mstamp(a)
    if which in (1, 3):
        AB = v(2 * MT, 2) if which == 1 else fY + 4
        def consts():
            for mt in range(MT if which == 1 else 0):
                r = lns + 2 * mt + 1
                a.e(f"v_mul_f32 v{AB+2*mt}, {f32(GC1)}, v{r}"); a.e(f"v_mul_f32 v{AB+2*mt+1}, v{r}, v{r}")
                a.e(f"v_mul_f32 v{AB+2*mt+1}, v{AB+2*mt+1}, v{AB+2*mt}"); a.e(f"v_mul_f32 v{AB+2*mt+1}, {f32(0.044715)}, v{AB+2*mt+1}")
                a.e(f"v_rcp_f32 v{r}, v{r}")
        def act(mt, nt):
            A = A_(mt, nt); P_ = [(A, tp), (A + 2, tp + 2)]; L_ = vr(lns + 2 * mt, 2); K_ = vr(AB + 2 * mt, 2)
            if which == 3: L_ = vr(lns + 4 * mt, 2); K_ = vr(lns + 4 * mt + 2, 2)
            for h in range(2):
                a.e(f"v_pk_fma_f32 {vr(A+2*h,2)}, {L_}, {vr(cs+4*nt+2*h,2)}, {vr(A+2*h,2)} op_sel_hi:[0,1,1] neg_lo:[1,0,0] neg_hi:[1,0,0]")
            for x, u in P_: a.e(f"v_pk_mul_f32 {vr(u,2)}, {vr(x,2)}, {vr(x,2)}")
            for x, u in P_: a.e(f"v_pk_fma_f32 {vr(u,2)}, {vr(u,2)}, {K_}, {K_} op_sel:[0,1,0] op_sel_hi:[1,1,0]")
            for x, u in P_: a.e(f"v_pk_mul_f32 {vr(u,2)}, {vr(u,2)}, {vr(x,2)}")
            for i in range(4): a.e(f"v_exp_f32 v{tp+i}, v{tp+i}")
            for x, u in P_: a.e(f"v_pk_fma_f32 {vr(u,2)}, {vr(u,2)}, {L_}, {L_} op_sel:[0,1,1] op_sel_hi:[1,1,1]")
            for i in range(4): a.e(f"v_rcp_f32 v{tp+i}, v{tp+i}")
            for x, u in P_: a.e(f"v_pk_mul_f32 {vr(x,2)}, {vr(x,2)}, {vr(u,2)}")
        def egroup(par, mt, nts, dst=None):
            for nt in nts: act(mt, nt)
            T = par * NT + nts[0]; P = (T >> 1) - ((par * NT) >> 1); B = A_(mt, nts[0]); D = B if dst is None else dst
            for k in range(2 * len(nts)): a.e(f"v_cvt_pk_bf16_f32 v{D+k}, v{B+2*k}, v{B+2*k+1}")
            if which == 3 and (mt < 3 or "3" in DP) and "1" in DP: mark(a, D, 1)
            if which == 1: mark(a, D, 0)
            if which == 3: return [f"s_add_u32 s36, s{44+P}, {mt*224*1024}", f"buffer_store_dwordx4 {vr(B,4)}, v{l16}, s[16:19], s36 offen {SC}"]
            return [f"buffer_store_dwordx4 {vr(B,4)}, v{so}, s[16:19], s{39+P} offen offset:{mt*256} {SC}"]
        def body(par):
            if which == 1: gs = [(0, 1), (2, 3)]
            else: gs = [(0, 1), (2, 3), (4, 5), (6,)] if par == 0 else [(1, 2), (3, 4), (5, 6), (0,)]
            k = 0; pend = []; sent = 0
            for gi_, g_ in enumerate(gs):
                for mt in range(MT):
                    if which == 3 and k == C0PUB:
                        a.e(f"s_waitcnt vmcnt({sent - 4})"); a.e("s_mov_b64 exec, 1"); a.e(f"ds_add_u32 v{EA+2}, v{EA+1}"); a.e("s_mov_b64 exec, -1"); mstamp(a)
                    if which == 3 and k == RK:
                        b_ = Rec(); r_pre(b_); l_ = [x for x in b_.l if x.startswith(("buffer", "s_mov_b32 s78"))]
                        a.e("s_cmp_eq_u32 s60, 1"); a.e(f"s_cbranch_scc1 G4_p1{par}")
                        for x in l_: a.e(x)
                        a.e(f"s_branch G4_p2{par}"); a.e(f"G4_p1{par}:")
                        for x in last_res(): a.e(x)
                        a.e(f"G4_p2{par}:")
                        if 4 <= k < C0PUB: sent += 8
                    st_ = egroup(par, mt, g_, None if gi_ < 2 else C2R + 4 * mt if gi_ == 2 else C2R + 16 + 2 * mt); k += 1
                    if which == 3 and gi_ < 3:
                        a.e(f"ds_write_b128 v{EA}, {vr(A_(mt, g_[0]) if gi_ < 2 else C2R + 4 * mt, 4)} offset:{gi_*16384 + mt*2048}")
                    if gi_ < 2: pend.append(st_)
                    n = len(pend) if (which == 1 or k <= 4 or k == 16) else 0 if k <= STQ else min(1, len(pend))
                    for _ in range(n):
                        for x in pend.pop(0): a.e(x)
                        sent += 1
            if which == 3:
                a.e("s_waitcnt lgkmcnt(0)")
                if par == 0: a.e("s_mov_b32 s44, s46"); a.e("s_mov_b32 s45, s47")
                else: a.e("s_add_u32 s45, s44, 512"); a.e("s_mov_b32 s44, s47")
        a.e("s_waitcnt lgkmcnt(0)")
        consts()
        if which == 3:
            a.e("s_cmp_eq_u32 s35, 1"); a.e(f"s_cbranch_scc1 {nm}_e1")
            body(0); a.e(f"s_branch {nm}_e2"); a.e(f"{nm}_e1:"); body(1); a.e(f"{nm}_e2:")
        else: body(0)
    if which == 2:
        xf = v(2, 2); S = v(2 * MT, 2); pp = v(2, 2); mn = v(2, 2)
        for mt in range(MT):
            a.e(f"s_add_u32 s36, s39, {mt*65536}")
            for p in range(NT // 2):
                R = res + (mt * (NT // 2) + p) * 4
                for e in range(4):
                    X = A_(mt, 2 * p) + 2 * e
                    a.e(f"v_cvt_pk_bf16_f32 v{R+e}, v{X}, v{X+1}")
                if DP: mark(a, R, 0)
                a.e(f"buffer_store_dwordx4 {vr(R,4)}, v{l16}, s[16:19], s36 offen offset:{p*1024} {SC}")
        if which in DL: a.e("s_barrier")
        if OWN3:
            a.e("s_lshl_b32 s36, s37, 11"); a.e(f"v_add_u32 v{t2}, s36, v{l16}")
            for i in range(4): a.e(f"ds_write_b128 v{t2}, {vr(res+4*i,4)} offset:{1024*i}")
        for i in range(MT * NT * 2): unpack(a, acc + 2 * i, acc + 2 * i + 1, res + i)
        mstamp(a)
        publish(a, which, 4, pt)
        if B0E: a.e("s_waitcnt lgkmcnt(0)"); a.e("s_barrier")
        mstamp(a)
        for mt in range(MT):
            B = A_(mt, 0); Sm = S + 2 * mt
            a.e(f"v_pk_add_f32 {vr(pp,2)}, {vr(B,2)}, {vr(B+2,2)}"); a.e(f"v_pk_mul_f32 {vr(xf,2)}, {vr(B,2)}, {vr(B,2)}")
            for i in range(1, NT * 2):
                if i > 1: a.e(f"v_pk_add_f32 {vr(pp,2)}, {vr(pp,2)}, {vr(B+2*i,2)}")
                a.e(f"v_pk_fma_f32 {vr(xf,2)}, {vr(B+2*i,2)}, {vr(B+2*i,2)}, {vr(xf,2)}")
            a.e(f"v_add_f32 v{Sm}, v{pp}, v{pp+1}"); a.e(f"v_add_f32 v{Sm+1}, v{xf}, v{xf+1}")
            for op in ("v_permlane16_swap_b32", "v_permlane32_swap_b32"):
                for k in range(2): a.e(f"v_mov_b32 v{pp+k}, v{Sm+k}")
                for k in range(2): a.e(f"{op} v{Sm+k}, v{pp+k}")
                a.e(f"v_pk_add_f32 {vr(Sm,2)}, {vr(Sm,2)}, {vr(pp,2)}")
        a.e(f"v_cmp_eq_u32 vcc, 0, v{G}"); a.e(f"v_cndmask_b32 v{S}, v{S+2}, v{S}, vcc"); a.e(f"v_cndmask_b32 v{S+1}, v{S+3}, v{S+1}, vcc")
        spread(a, 40, 29); a.e("s_lshl_b32 s36, s34, 8"); a.e("s_add_u32 s40, s40, s36")
        a.e(f"v_lshlrev_b32 v{t2}, 3, v{lane}")
        a.e("s_bfm_b64 exec, 32, 0")
        a.e(f"buffer_store_dwordx2 {vr(S,2)}, v{t2}, s[44:47], s40 offen {SC}")
        a.e("s_mov_b64 exec, -1")
    if which == 4:
        for mt in range(MT):
            a.e(f"s_add_u32 s36, s39, {mt*65536}")
            for p in range(NT // 2):
                B = A_(mt, 2 * p)
                for e in range(4): a.e(f"v_cvt_pk_bf16_f32 v{B+e}, v{B+2*e}, v{B+2*e+1}")
                if "r" in DP: mark(a, B, 1)
                a.e(f"buffer_store_dwordx4 {vr(B,4)}, v{l16}, s[16:19], s36 offen offset:{p*1024} {SC}")
    if which != 2:
        if which in DL: a.e("s_barrier")
        mstamp(a)
        if which == 4 and "r" not in DP: publish(a, which, 4, pt)
        mstamp(a)
    if which == 4:
        a.e("s_branch NEXT")
        a.e("G4_last:")
        PX = 208; oa = 224; xf = 226
        group(fX, reads(fY, 1), 0, [(f"s_load_dwordx2 s[6:7], s[0:1], {D_OUT}", 9)], XW)
        a.e("s_waitcnt lgkmcnt(0)")
        b = Rec()
        lsrd(b, 16, oX1P if "f" in DP else MB, XSZ)
        b.srd(20, 6, 4 * MB)
        if "f" not in DP:
            b.e("s_lshl_b32 s44, s29, 2"); b.e("s_add_u32 s44, s44, s30"); b.e("s_lshl_b32 s44, s44, 7"); b.e("s_xor_b32 s45, s44, 4096")
            b.e("s_add_u32 s44, s44, s55"); b.e(f"s_add_u32 s44, s44, {oFP}"); b.e("s_add_u32 s45, s45, s55"); b.e(f"s_add_u32 s45, s45, {oFP}")
            b.e(f"v_mov_b32 v{pt+1}, s45"); b.e(f"v_mov_b32 v{pt+2}, s52"); b.e(f"v_mov_b32 v{pt+3}, 0")
        else: b.e("s_add_u32 s44, s40, 65536")
        b.e("s_lshl_b32 s46, s28, 3"); b.e("s_add_u32 s46, s46, s37"); b.e("s_lshl_b32 s47, s31, 1"); b.e("s_add_u32 s46, s46, s47"); b.e("s_lshl_b32 s46, s46, 15")
        b.e("s_lshl_b32 s47, s38, 5"); b.e("s_add_u32 s46, s46, s47"); b.e(f"s_add_u32 s47, s46, {16*2048}")
        b.e(f"v_and_b32 v{oa+1}, 1, v{G}"); b.e(f"v_lshlrev_b32 v{oa}, 11, v{J}"); b.e(f"v_lshl_add_u32 v{oa}, v{oa+1}, 5, v{oa}")
        b.e(f"v_lshrrev_b32 v{oa+1}, 1, v{G}"); b.e(f"v_lshl_add_u32 v{oa}, v{oa+1}, 4, v{oa}")
        FULLN = os.environ.get("FULLN", "1") == "1"
        if FULLN:
            b.e(f"v_lshrrev_b32 v{oa+1}, 3, v{J}"); b.e(f"v_mul_u32_u24 v{oa+1}, {8*2048 - 64}, v{oa+1}"); b.e(f"v_sub_u32 v{oa}, v{oa}, v{oa+1}")
            b.e(f"v_add_u32 v{oa+1}, {8*2048}, v{oa}")
        OT = int(os.environ.get("OT", "0"))
        if OT == 1: b.e("s_mov_b64 exec, 1"); b.e(f"buffer_load_dword v{xf}, v{oa}, s[20:23], s46 offen {SC}"); b.e("s_mov_b64 exec, -1")
        if OT == 2:
            for k in range(4): b.e(f"buffer_load_dword v{xf}, v{oa+(k&1)}, s[20:23], s{46+(k>>1)} offen {SC}")
        group(fY, [], 0, b.l)
        mstamp(a)
        def send(m0_):
            for i in range(2):
                a.e(f"s_add_u32 s36, s41, {i*65536}")
                for p in range(2):
                    B = A_(m0_ + i, 2 * p)
                    for e in range(4): a.e(f"v_cvt_pk_bf16_f32 v{B+e}, v{B+2*e}, v{B+2*e+1}")
                    if "f" in DP: mark(a, B, 1)
                    a.e(f"buffer_store_dwordx4 {vr(B,4)}, v{l16}, s[16:19], s36 offen offset:{p*1024} {SC}")
        a.e("s_cmp_eq_u32 s31, 0"); a.e("s_cbranch_scc1 G4_k0")
        send(0)
        for i in range(0, 32, 2): a.e(f"v_pk_mov_b32 {vr(acc+i,2)}, {vr(acc+32+i,2)}, {vr(acc+32+i,2)} op_sel:[0,1]")
        a.e("s_branch G4_k1")
        a.e("G4_k0:")
        send(2)
        a.e("G4_k1:")
        a.e("s_mov_b32 s78, 0x3f80"); a.e("s_mov_b32 s79, 0x3f800000")
        def addp(k, R):
            B = A_(k >> 1, 2 * (k & 1))
            if DOT:
                for e in range(8): a.e(f"v_dot2_f32_bf16 v{B+e}, v{R+e//2}, s{78+(e&1)}, v{B+e}")
                return
            for e in range(4):
                unpack(a, xf + 2 * (e & 1), xf + 1 + 2 * (e & 1), R + e)
                a.e(f"v_pk_add_f32 {vr(B+2*e,2)}, {vr(B+2*e,2)}, {vr(xf+2*(e&1),2)}")
        for k in range(4): addp(k, RX[2 * k])
        if "f" not in DP:
            a.e("s_waitcnt vmcnt(0)")
            a.e("s_mov_b64 exec, 1"); a.e(f"buffer_store_dword v{pt+2}, v{pt+3}, s[56:59], s44 offen {SC}"); a.e("s_mov_b64 exec, -1")
        mstamp(a)
        for k in range(4): addp(k, RX[2 * k + 1])
        if "f" in DP:
            data_poll(a, [f"buffer_load_dwordx4 {vr(PX+4*(2*i+p),4)}, v{l16}, s[16:19], s{(40, 44)[i]} offen offset:{p*1024} {SC}" for i in range(2) for p in range(2)],
                      [PX + 4 * k for k in range(4)], t, int(os.environ.get("FNAP", "2")), 0, int(os.environ.get("FCAN", "0")))
            mstamp(a)
        else:
            poll_core(a, pt, [pt + 1], 1, nap=2)
            mstamp(a)
            for i in range(2):
                a.e(f"s_add_u32 s36, s40, {i*65536}")
                for p in range(2): a.e(f"buffer_load_dwordx4 {vr(PX+4*(2*i+p),4)}, v{l16}, s[16:19], s36 offen offset:{p*1024} {SC}")
        for k in range(4):
            if "f" not in DP: a.e(f"s_waitcnt vmcnt({3 - (k & 1) if FULLN else 3})")
            addp(k, PX + 4 * k)
            B = A_(k >> 1, 2 * (k & 1))
            if os.environ.get("EPS"):
                for e in range(8): a.e(f"v_mul_f32 v{B+e}, {f32(1 + float(os.environ['EPS']) * (1 if e & 1 else -1))}, v{B+e}")
            for e in range(4): a.e(f"v_cvt_pk_bf16_f32 v{B+e}, v{B+2*e}, v{B+2*e+1}")
            for e in range(2): a.e(f"v_permlane16_swap_b32 v{B+e}, v{B+2+e}")
            if not FULLN: a.e(f"buffer_store_dwordx4 {vr(B,4)}, v{oa}, s[20:23], s{46+(k>>1)} offen offset:{64*(k&1)} {os.environ.get('OS', '')}")
            elif k & 1:
                X, Y, T = B - 8, B, B + 4
                for e in range(4): a.e(f"v_mov_b32 v{T+e}, v{X+e}")
                for e in range(4): a.e(f"v_mov_b32_dpp v{X+e}, v{Y+e} row_ror:8 row_mask:0xf bank_mask:0xc")
                for e in range(4): a.e(f"v_mov_b32_dpp v{Y+e}, v{T+e} row_ror:8 row_mask:0xf bank_mask:0x3")
                a.e(f"buffer_store_dwordx4 {vr(X,4)}, v{oa}, s[20:23], s{46+(k>>1)} offen {os.environ.get('OS', SC)}")
                a.e(f"buffer_store_dwordx4 {vr(Y,4)}, v{oa+1}, s[20:23], s{46+(k>>1)} offen {os.environ.get('OS', SC)}")
        a.e("s_branch K_fin")
    assert v.hi <= {1: RES2, 2: RES2, 3: RYY, 4: 176}[which], v.hi
    return v.hi

def k_mega(a):
    nm = KNAME; a.begin_kernel(nm)
    a.e("s_cmp_ge_u32 s2, 256"); a.e("s_cbranch_scc1 K_end")
    a.e(f"s_load_dwordx8 s[8:15], s[0:1], {A_K}"); a.e(f"s_load_dwordx2 s[6:7], s[0:1], {A_Q}"); a.e(f"s_load_dwordx8 s[68:75], s[0:1], {B_W1}")
    a.e(f"s_load_dwordx2 s[4:5], s[0:1], {D_WS}"); a.e(f"s_load_dwordx2 s[84:85], s[0:1], {D_DBG}"); a.e("s_memrealtime s[46:47]")
    a.e(f"s_load_dwordx2 s[96:97], s[0:1], {A_SSMD}")
    a.e("v_lshrrev_b32 v1, 6, v0"); a.e("v_readfirstlane_b32 s30, v1")
    if CODEPF:
        a.e("s_getpc_b64 s[48:49]"); a.e("K_pc:")
        a.e("s_lshr_b32 s36, s2, 3"); a.e("s_lshl_b32 s36, s36, 11")
        a.e("v_lshlrev_b32 v4, 2, v0"); a.e("v_add_u32 v4, s36, v4")
        a.e("v_cmp_gt_u32 vcc, K_end-K_pc-8, v4"); a.e("s_and_saveexec_b64 s[36:37], vcc"); a.e("s_cbranch_execz K_3")
        a.e("v_mov_b32 v5, s49"); a.e("v_add_co_u32 v4, vcc, s48, v4"); a.e("v_addc_co_u32 v5, vcc, 0, v5, vcc")
        a.e("global_load_dword v250, v[4:5], off")
        a.e("K_3:"); a.e("s_mov_b64 exec, -1")
    for _ in range(int(os.environ.get("SDELAY", "0"))): a.e("s_sleep 127")
    front_loads(a)
    a.e("v_and_b32 v1, 63, v0"); a.e("v_lshlrev_b32 v2, 4, v1"); a.e("v_lshlrev_b32 v3, 2, v1")
    a.e("s_and_b32 s32, s2, 7"); a.e("s_lshr_b32 s33, s2, 3")
    a.e("s_and_b32 s28, s32, 2"); a.e("s_lshr_b32 s34, s32, 2"); a.e("s_or_b32 s28, s28, s34")
    a.e("s_lshl_b32 s28, s28, 2"); a.e("s_and_b32 s34, s33, 3"); a.e("s_add_u32 s28, s28, s34")
    a.e("s_and_b32 s31, s32, 1"); a.e("s_lshr_b32 s33, s33, 2")
    a.e("s_lshl_b32 s29, s31, 3"); a.e("s_add_u32 s29, s29, s33")
    if MAP == 8:
        a.e("s_lshr_b32 s33, s2, 3")
        a.e("s_and_b32 s28, s33, 4"); a.e("s_lshl_b32 s28, s28, 1"); a.e("s_and_b32 s34, s32, 4"); a.e("s_or_b32 s28, s28, s34"); a.e("s_and_b32 s34, s33, 3"); a.e("s_or_b32 s28, s28, s34")
        a.e("s_and_b32 s29, s32, 3"); a.e("s_lshl_b32 s29, s29, 2"); a.e("s_lshr_b32 s33, s33, 3"); a.e("s_or_b32 s29, s29, s33")
        a.e("s_lshr_b32 s31, s29, 3"); a.e("s_and_b32 s33, s29, 7")
    if MAP == 2:
        a.e("s_lshr_b32 s33, s2, 3")
        a.e("s_and_b32 s28, s32, 2"); a.e("s_lshl_b32 s28, s28, 2"); a.e("s_and_b32 s34, s32, 4"); a.e("s_or_b32 s28, s28, s34")
        a.e("s_and_b32 s34, s32, 1"); a.e("s_lshl_b32 s34, s34, 1"); a.e("s_or_b32 s28, s28, s34"); a.e("s_and_b32 s34, s33, 1"); a.e("s_or_b32 s28, s28, s34")
        a.e("s_lshr_b32 s29, s33, 1"); a.e("s_lshr_b32 s31, s29, 3"); a.e("s_and_b32 s33, s29, 7")
    a.e({4: "s_lshl_b32 s67, s33, 1", 8: "s_lshl_b32 s67, s33, 2", 2: "s_mov_b32 s67, s29"}[MAP]); a.e(f"s_and_b32 s67, s67, {int(os.environ.get('RMASK', '0'))}")
    a.e(f"s_xor_b32 s99, s29, {os.environ.get('G1X', '1')}")
    a.e("s_mov_b32 s60, 0"); a.e("s_mov_b32 s61, 40000"); a.e("s_mov_b32 s52, 0")
    a.e("s_mov_b32 s55, 0"); a.e("s_mov_b32 s92, 0"); a.e("s_mov_b32 s93, 0"); a.e("s_mov_b32 s94, 0")
    a.srd(56, 4, HSB)
    if os.environ.get("FIXT"): a.e("s_mov_b32 s101, s46")
    r_addr(a)
    a.e(f"s_add_u32 s62, s4, {LB0}"); a.e("s_addc_u32 s63, s5, 0")
    if STAMP:
        a.e("s_mov_b32 s66, 1"); a.e("v_mov_b32 v255, -1"); a.e("s_mov_b32 s95, 0"); a.e("v_writelane_b32 v255, s46, 0")
    mstamp(a)
    if os.environ.get("WBENCH"):
        a.e("s_waitcnt vmcnt(0)"); a.e("s_barrier")
        a.e("s_cmp_lt_u32 s30, 6"); a.e("s_cbranch_scc1 WB_end")
        for w in (1, 2, 3, 4):
            mstamp(a); w_setup(a, w); a.e("s_waitcnt vmcnt(0)"); mstamp(a); a.e("s_sleep 40")
        a.e("WB_end:"); a.e("s_branch K_dump")
    front_a(a); mstamp(a)
    for r in range(238, 248): a.e(f"v_mov_b32 v{r}, 0")
    a.e("s_cmp_ge_u32 s30, 4"); a.e("s_cbranch_scc1 FR_b")
    front_conv(a); hi = 0
    mstamp(a)
    front_arrive(a, True)
    a.e("s_branch FR_end")
    a.e("FR_b:")
    front_b(a)
    a.e("FR_end:")
    mstamp(a)
    a.e("LAYER:")
    if os.environ.get("XDELAY"): a.e(f"s_sleep {os.environ['XDELAY']}")
    hi = max(hi, r_stage(a, False))
    mstamp(a)
    a.e("s_cmp_ge_u32 s30, 4"); a.e("s_cbranch_scc1 LOADERS")
    if CPRIO: a.e(f"s_setprio {CPRIO}")
    for w in (1, 2, 3, 4):
        a.lines.append(f"; ---- G{w}: compute waves (set-up, K loop, epilogue, publish)")
        hi = max(hi, g_compute(a, w))
    a.e("LOADERS:")
    if SB[2]:
        a.e("s_cmp_lg_u32 s60, 0"); a.e("s_cbranch_scc1 LD_0"); sb(a, SB[2]); a.e("LD_0:")
    if PRIO: a.e(f"s_setprio {PRIO}")
    a.e("s_cmp_ge_u32 s30, 6"); a.e("s_cbranch_scc1 WLOAD")
    for w in (1, 2, 3, 4): a_loader(a, w)
    a.e("s_branch NEXT")
    a.e("WLOAD:")
    a.e("s_cmp_eq_u32 s60, 1"); a.e("s_cbranch_scc1 WL_1")
    w_setup(a, 1, pre=False); w1_slots(a, range(9 - W1G), pace=12); mstamp(a)
    a.e("s_branch WL_2")
    a.e("WL_1:")
    w_setup(a, 1, pre=False); w1_slots(a, range(3 - W1L), pace=12)
    a.e("WL_2:")
    for w in (1, 2, 3, 4):
        w_loader(a, w)
        if w == 2:
            c = CFG[3]; w_setup(a, 3, pre=False); a.e(f"s_mov_b32 s42, {(c['S0'] + 2) % c['NW'] * c['STB']}"); a.e("s_mov_b32 s44, 2")
        if w == 3: w_setup(a, 4)
    a.e("NEXT:")
    a.e("s_setprio 0")
    a.e("s_add_u32 s60, s60, 1"); a.e(f"s_add_u32 s55, s55, {LSTR}")
    a.e(f"s_add_u32 s62, s62, {LSTR}"); a.e("s_addc_u32 s63, s63, 0")
    a.e("s_branch LAYER")
    a.e("K_fin:")
    if os.environ.get("FIXT"):
        a.e("FX_l:"); a.e("s_sleep 4"); a.e("s_memrealtime s[64:65]"); a.e("s_waitcnt lgkmcnt(0)"); a.e("s_sub_u32 s64, s64, s101")
        if os.environ.get("FIX0"): a.e("s_add_u32 s64, s64, s101"); a.e("s_lshl_b32 s64, s64, 6"); a.e("s_sub_u32 s64, s64, s52"); a.e("s_lshr_b32 s64, s64, 6")
        a.e(f"s_cmp_lt_u32 s64, {os.environ['FIXT']}"); a.e("s_cbranch_scc1 FX_l")
    if STAMP:
        a.e("K_dump:")
        a.e("s_waitcnt vmcnt(0)")
        mstamp(a)
        a.srd(96, 4, 16 * MB, off=200 * MB)
        a.e("s_lshl_b32 s66, s2, 3"); a.e("s_add_u32 s66, s66, s30"); a.e("s_lshl_b32 s66, s66, 8")
        a.e("v_writelane_b32 v255, s95, 63")
        a.e("buffer_store_dword v255, v3, s[96:99], s66 offen")
        if os.environ.get("DBGOUT"):
            a.e("s_cmp_lg_u32 s66, 0"); a.e("s_cbranch_scc1 K_end")
            a.e(f"s_load_dwordx2 s[96:97], s[0:1], {D_DBG}"); a.e("s_mov_b32 s98, 64"); a.e("s_waitcnt lgkmcnt(0)")
            a.e("v_readlane_b32 s64, v255, 0"); a.e("v_mov_b32 v10, 0")
            for i, j in enumerate(eval(os.environ["DBGOUT"])):
                a.e(f"v_readlane_b32 s65, v255, {j}"); a.e("s_sub_u32 s65, s65, s64"); a.e("v_mov_b32 v11, s65")
                a.e(f"buffer_store_dword v11, v10, s[96:99], 0 offen offset:{8+4*i}")
    a.e("s_endpgm")
    emit_subs(a)
    a.e("K_end:")
    assert hi <= PV
    a.end_kernel(nm, 256)
    if TAB: tab_data(a)
    a.launches.append(f"; @launch grid=(256,1,1) block=(512,1,1) lds={LDS_TOTAL}")

HEADER = open("interleave_layers__ssm_conv_h3__mixer_s_mlp__prompt.s.ref").read().split("; Override launch")[0]
DOC = """; One persistent kernel, 256 workgroups x 8 waves (one per CU), generated by dev/gen28.py.
"""
def main(out):
    a = Asm()
    k_mega(a)
    DS = os.environ.get("DS")
    if DS:
        o = []
        for l in a.lines:
            o.append(l)
            if "buffer_store_dwordx" in l and "sc1" in l and any(k in l for k in DS.split(",")): o.append(l.replace(" sc1", ""))
        a.lines = o
    notes = {
        "K_pc:": "each workgroup reads 2 KB of this kernel's code so that later instruction fetches are served on chip",
        "KV_t0:": "k / v / tap loads of the u^T tile (64 times x 128 channels); workgroup 0 has posted the launch tag (a clock value) in d_debug",
        "HB_2:": "u^T tile out, arrival counters initialised to the tag, shifted filter copies into LDS, LayerNorm(q)",
        "CV_w:": "long causal convolution as Toeplitz MFMAs, one channel per wave",
        "FR_b:": "waves 4-7 beside the convolution: memory-locality vote (timed loads, layout choice only), weight column sums, weight touches",
        "LAYER:": "row stage: residual sums, LayerNorm chain, x + LN(x)*y for 8 rows per workgroup",
        "LOADERS:": "waves 4,5: activation tiles by LDS-DMA (after the producers' counters are complete)",
        "WLOAD:": "waves 6,7: weight tiles by LDS-DMA in their original layout (read back with transposing LDS loads)",
        "G4_last:": "last layer: the two K halves exchange half tiles, add the residuals and write the output",
    }
    o = []
    for l in a.lines:
        if l.strip() in notes: o.append("; ---- " + notes[l.strip()])
        if l.strip().startswith("s_sleep"): l += "    ; back-off inside a wait loop"
        o.append(l)
    a.lines = o
    open(out, "w").write(a.text(HEADER + DOC))
    print("nops added:", a.nops_added)

if __name__ == "__main__":
    main(sys.argv[1] if len(sys.argv) > 1 else "interleave_layers__ssm_conv_h3__mixer_s_mlp__prompt.s")
```

```python
import sys, os, math, struct
sys.path.insert(0, "dev")
from asmgen import Asm

KNAME = "interleave_layers__ssm_conv_h3__mixer_s_mlp__prompt_kernel"
MB = 1 << 20
UT, Y = 24 * MB, 28 * MB
CSP = {1: 20 * MB, 3: 20 * MB + 128 * 1024}
A_Q, A_K, A_V, A_SH, A_SSMK, A_SSMD, B_X, B_W1, B_W2, B_W3, B_W4, D_OUT, D_DBG, D_WS = [8 * i for i in range(14)]
STAMP = int(os.environ.get("STAMP", "0"))
def f32(x): return "0x%08x" % struct.unpack("<I", struct.pack("<f", x))[0]
GC1 = -2.0 * math.sqrt(2.0 / math.pi) * math.log2(math.e)
GC2 = GC1 * 0.044715

class VA:
    def __init__(self, start=1): self.n = start; self.hi = start
    def __call__(self, cnt=1, al=None):
        if al is None: al = 2 if cnt > 1 else 1
        self.n = (self.n + al - 1) // al * al
        r = self.n; self.n += cnt; self.hi = max(self.hi, self.n); return r
def vr(b, n): return f"v[{b}:{b+n-1}]" if n > 1 else f"v{b}"

def unpack(a, lo, hi, src):
    a.e(f"v_lshlrev_b32 v{lo}, 16, v{src}")
    a.e(f"v_and_b32 v{hi}, 0xffff0000, v{src}")
RND = int(os.environ.get("RND", "0"))
def round2(a, x, y, tmp):
    if not RND: return
    a.e(f"v_cvt_pk_bf16_f32 v{tmp}, v{x}, v{y}")
    unpack(a, x, y, tmp)
def round1(a, x):
    if not RND: return
    a.e(f"v_cvt_pk_bf16_f32 v{x}, v{x}, v{x}")
    a.e(f"v_lshlrev_b32 v{x}, 16, v{x}")
def red_g(a, x, t):
    a.e(f"v_mov_b32 v{t}, v{x}"); a.e(f"v_permlane16_swap_b32 v{x}, v{t}"); a.e(f"v_add_f32 v{x}, v{x}, v{t}")
    a.e(f"v_mov_b32 v{t}, v{x}"); a.e(f"v_permlane32_swap_b32 v{x}, v{t}"); a.e(f"v_add_f32 v{x}, v{x}, v{t}")
def ln_finish(a, mean, var, rs, s=None):
    round1(a, mean); round1(a, var)
    a.e(f"v_add_f32 v{var}, {f32(1e-5)}, v{var}"); round1(a, var)
    if not RND and s is None: a.e(f"v_rsq_f32 v{rs}, v{var}"); return
    a.e(f"v_sqrt_f32 v{var}, v{var}"); round1(a, var)
    if s is not None: a.e(f"v_mov_b32 v{s}, v{var}")
    a.e(f"v_rcp_f32 v{rs}, v{var}")


FLG = 22 * MB + int(os.environ.get("FOFF", "0"))
LB0, LSTR, GSTR = 32 * MB, 4 * MB, 16 * MB
oH2 = 4 * MB; oSM = oH2 + 1792 * 1024; oFP = 16384; oST2 = oSM + 32768; oLNS = oSM + 65536
oX3, oX1P, oP0, oP1 = [i * 512 * 1024 for i in range(4)]
DP = os.environ.get("DP", "rf12")
if "r" in DP: oP0, oP1 = oX3, oX1P
def mark(a, r, bit): a.e(f"v_or_b32 v{r}, 1, v{r}" if bit else f"v_and_b32 v{r}, -2, v{r}")
DOT = int(os.environ.get("DOT", "1"))
def data_poll(a, loads, regs, t, nap, first=0, canary=False):
    L = a.lab("dp"); D = a.lab("dq")
    if canary:
        a.e("s_bfm_b64 exec, 1, 63"); data_poll(a, loads, regs, t, nap, first); a.e("s_mov_b64 exec, -1"); first = 0
    a.e("s_mov_b32 s53, 0")
    if first:
        f2 = int(os.environ.get("RFIRST2", "10"))
        if f2: a.e(f"s_sleep {f2}")
        a.e("s_cmp_ge_u32 s30, 6"); a.e(f"s_cbranch_scc1 {L}"); a.e(f"s_sleep {first - f2}")
    a.e(f"{L}:")
    for x in loads: a.e(x)
    a.e("s_waitcnt vmcnt(0)")
    a.e(f"v_bitop3_b32 v{t}, v{regs[0]}, v{regs[1]}, v{regs[2]} bitop3:0x80"); a.e(f"v_bitop3_b32 v{t}, v{t}, v{regs[3]}, 1 bitop3:0x80")
    a.e(f"v_cmp_eq_u32 vcc, 0, v{t}"); a.e(f"s_cbranch_vccz {D}")
    a.e(f"s_sleep {nap}")
    a.e("s_add_u32 s53, s53, 1"); a.e("s_cmp_lt_u32 s53, s61"); a.e(f"s_cbranch_scc1 {L}")
    a.e("s_mov_b32 s61, 0")
    a.e(f"{D}:")
XSZ = 512 * 1024 - 8192; H2SZ = 1792 * 1024 - 8192
HSB = 160 * MB; PITCH = 65536 + int(os.environ.get("SKEW", "0")); oHS = MB
def fso(stage): return int(stage * 256)
def spread(a, d, src):
    a.e(f"s_lshr_b32 s53, s{src}, 3"); a.e("s_lshl_b32 s53, s53, 14"); a.e(f"s_and_b32 s{d}, s{src}, 7"); a.e(f"s_lshl_b32 s{d}, s{d}, 10"); a.e(f"s_add_u32 s{d}, s{d}, s53")
ST_R, ST_G1, ST_G2, ST_G3, ST_G4, ST_R2, ST_G3B, ST_G3A = range(8); ST_G2S = 5.5
F_KVT, F_FRONT, F_CS = FLG, FLG + 32768, FLG + 53248; F_VOTE = F_FRONT + 16384; F_RES = F_VOTE
LDS_TOTAL = 163840
AUX = LDS_TOTAL - 4096
SC = "sc1"
PSLEEP = int(os.environ.get("PSLEEP", "5"))
ROT = int(os.environ.get("ROT", "1"))
PACE = int(os.environ.get("PACE", "8"))
PDEPTH = int(os.environ.get("PDEPTH", "1"))
WROT = int(os.environ.get("WROT", "1"))
PRIO = int(os.environ.get("PRIO", "0"))
STQ = int(os.environ.get("STQ", "12"))
CPRIO = int(os.environ.get("CPRIO", "0"))
FSLEEP = int(os.environ.get("FSLEEP", "6"))
CSPRIO = int(os.environ.get("CSPRIO", "1"))
NT = os.environ.get("NT", "nt"); HALO = int(os.environ.get("HALO", "0")); NTK = os.environ.get("NTK", "" if HALO else NT); NTH = os.environ.get("NTH", NT)
W1F = int(os.environ.get("W1F", "7"))
WSC = eval(os.environ.get("WSC", "{}"))
TLBW = int(os.environ.get("TLBW", "0"))
T12 = eval(os.environ.get("T12", "{}"))
T23 = eval(os.environ.get("T23", "()"))
OWN3 = int(os.environ.get("OWN3", "1"))
PUB2 = int(os.environ.get("PUB2", "4"))
MAP = int(os.environ.get("MAP", "4"))
HSPLIT = int(os.environ.get("HSPLIT", "2"))
W1G = int(os.environ.get("W1G", "9"))
PWAIT = int(os.environ.get("PWAIT", "8"))
DL = eval(os.environ.get("DL", "[2,4]"))
PACES = eval(os.environ.get("PACES", "{4:6}"))
C0PUB = int(os.environ.get("C0PUB", "6"))
LNSL = AUX + 1024

CFG = {1: dict(WM=4, WN=1, MT=2, NT=4, KBT=32, NS=16, NA=1.5, NW=16, A=oX3, W=B_W1, LDW=2048),
       2: dict(WM=4, WN=1, MT=2, NT=4, KBT=32, NS=16, NA=0, NW=16, A=oHS, W=B_W2, LDW=2048),
       3: dict(WM=2, WN=2, MT=4, NT=7, KBT=32, NS=16, NA=3, NW=3, A=oX1P, W=B_W3, LDW=7168, NPRE=2, WR=1, S0=2, WB=73728),
       4: dict(WM=2, WN=2, MT=4, NT=4, KBT=112, NS=28, NA=3, NW=6, A=oH2, W=B_W4, LDW=2048)}
for w, d in eval(os.environ.get("CFG", "{}")).items(): CFG[w].update(d)
for c in CFG.values():
    c.setdefault("NPRE", c["NW"]); c.setdefault("APRE", min(c["NA"], 3)); c.setdefault("WR", 1)
    c["TN16"] = c["WN"] * c["NT"]; c["STB"] = c["TN16"] * 2048; c.setdefault("WB", int(c["NA"] * 16384)); c.setdefault("S0", 0)
    c["RB"] = c["TN16"] * 32
    assert c["WB"] + c["NW"] * c["STB"] <= AUX
NX = 0
def nib(t): return sum(x << (4 * i) for i, x in enumerate(t))
CSO = {1: AUX + 3584, 3: AUX}

LW = AUX + 3072
def mstamp(a, force=False):
    if os.environ.get("JIT"):
        X = a.lab("jit")
        a.e("s_cselect_b32 s101, 1, 0"); a.e("s_memtime s[64:65]"); a.e("s_waitcnt lgkmcnt(0)"); a.e(f"s_and_b32 s64, s64, {os.environ['JIT']}"); a.e("s_cmp_lg_u32 s64, 0")
        a.e(f"s_cbranch_scc1 {X}"); a.e("s_sleep 50"); a.e(f"{X}:"); a.e("s_cmp_eq_u32 s101, 1")
        return
    if not STAMP or (os.environ.get("GST") and not force): return
    a.e(("s_memrealtime" if STAMP == 2 else "s_memtime") + " s[64:65]"); a.e("s_mov_b32 s100, m0"); a.e("s_mov_b32 m0, s66"); a.e("s_waitcnt lgkmcnt(0)")
    a.e("v_writelane_b32 v255, s64, m0"); a.e("s_mov_b32 m0, s100")
    a.e("s_add_u32 s66, s66, 1")

def lsrd(a, d, off, nbytes, prev=False):
    if prev:
        a.e(f"s_sub_u32 s{d}, s62, {LSTR - off:#x}"); a.e(f"s_subb_u32 s{d+1}, s63, 0")
        a.e(f"s_mov_b32 s{d+2}, {nbytes:#x}"); a.e(f"s_mov_b32 s{d+3}, 0x20000")
    else: a.srd(d, 62, nbytes, off=off)

def hs_srd(a, d):
    if "2" in DP: a.srd(d, 4, 128 * PITCH, off=HSB); return
    a.e("s_lshl_b32 s53, s60, 24"); a.e(f"s_add_u32 s53, s53, {HSB}")
    a.e(f"s_add_u32 s{d}, s4, s53"); a.e(f"s_addc_u32 s{d+1}, s5, 0"); a.e(f"s_mov_b32 s{d+2}, {128*PITCH}"); a.e(f"s_mov_b32 s{d+3}, 0x20000")

def group_off(a, d, m):
    a.e(f"s_lshr_b32 s53, s{m}, 3"); a.e("s_lshl_b32 s53, s53, 2"); a.e(f"s_and_b32 s54, s{m}, 3"); a.e("s_add_u32 s53, s53, s54"); a.e("s_lshl_b32 s53, s53, 24")
    a.e(f"s_lshr_b32 s54, s{m}, 2"); a.e("s_xor_b32 s54, s54, s94"); a.e("s_and_b32 s54, s54, 1"); a.e("s_lshl_b32 s54, s54, 13")
    a.e(f"s_add_u32 s{d}, s53, s54"); a.e(f"s_add_u32 s{d}, s{d}, {LB0}")

PV = 240
def poll_core(a, t, addrs, mask, extra=None, depth=1, cnt=0, nap=None):
    L = a.lab("poll"); D = a.lab("pok")
    n = len(addrs) + (1 if extra else 0)
    if depth > 1: t0 = t; regs = [PV + k * len(addrs) for k in range(depth)]; assert not extra and regs[-1] + len(addrs) <= 256
    else: regs = [t]
    def ld(r):
        for i, ad in enumerate(addrs): a.e(f"buffer_load_dword v{r+i}, v{ad}, s[56:59], 0 offen {SC}")
        if extra: a.e(extra[0])
    a.e("s_mov_b32 s53, 0"); a.e(f"s_add_u32 s54, s52, {cnt}")
    if mask != -1: a.e(f"s_bfm_b64 exec, {mask.bit_length()}, 0")
    for r in regs[:-1]: ld(r); a.e(f"s_sleep {PSLEEP}")
    a.e(f"{L}:")
    for k in range(depth):
        ld(regs[k - 1]); r = regs[k]
        a.e(f"s_waitcnt vmcnt({n*(depth-1)})")
        for i in range(len(addrs)): a.e(f"v_xor_b32 v{r+i}, s54, v{r+i}")
        for i in range(1, len(addrs)): a.e(f"v_or_b32 v{r}, v{r}, v{r+i}")
        if extra:
            for x in extra[1:]: a.e(x)
        a.e(f"v_cmp_eq_u32 vcc, 0, v{r}")
        a.e("s_cmp_eq_u64 vcc, exec"); a.e(f"s_cbranch_scc1 {D}")
        a.e(f"s_sleep {PSLEEP if nap is None else nap}")
    a.e("s_add_u32 s53, s53, 1"); a.e("s_cmp_lt_u32 s53, s61"); a.e(f"s_cbranch_scc1 {L}")
    a.e("s_mov_b32 s61, 0")
    a.e(f"{D}:")
    if mask != -1: a.e("s_mov_b64 exec, -1")

SPLIT = {ST_G1: "sign", ST_G3: "half", ST_G3A: "half", ST_G3B: "half"}
def flag_addr(a, r, stage, prev=False):
    so = fso(stage) - (LSTR if prev else 0)
    a.e(f"s_add_u32 s54, s55, {so & 0xffffffff:#x}")
    sp = SPLIT.get(stage)
    if sp == "half": a.e("s_lshl_b32 s53, s31, 7"); a.e("s_add_u32 s54, s54, s53")
    a.e(f"v_mov_b32 v{r}, s54")
    if sp == "sign":
        a.e("s_add_u32 s53, s54, 128"); a.e(f"v_writelane_b32 v{r}, s53, 1")
        a.e("s_add_u32 s53, s53, s93"); a.e(f"v_writelane_b32 v{r}, s53, 3")
        a.e("s_add_u32 s53, s54, s92"); a.e(f"v_writelane_b32 v{r}, s53, 2")
        return 0xf, 8
    return 1, 8 if sp else 16
def own_wait(a, stage, prev, t):
    if not PWAIT or stage == ST_R: return
    k = {ST_G1: 1, ST_G2: 2, ST_G4: 3}[stage] - (3 if prev else 0)
    a.e(f"s_mul_i32 s54, s60, {2 if 'r' in DP else 3}"); a.e(f"s_add_u32 s54, s54, {k}")
    lds_spin(a, LW + 56, "s54", t, nap=PWAIT)
def flag_try(a, r, ad):
    a.e("s_mov_b64 exec, 1"); a.e(f"buffer_load_dword v{r}, v{ad}, s[56:59], 0 offen {SC}"); a.e("s_mov_b64 exec, -1")
def flag_check(a, r, ad, cnt):
    D = a.lab("fok")
    a.e(f"v_readfirstlane_b32 s53, v{r}"); a.e(f"s_add_u32 s54, s52, {cnt}"); a.e("s_cmp_eq_u32 s53, s54"); a.e(f"s_cbranch_scc1 {D}")
    poll_core(a, r, [ad], 1, cnt=cnt)
    a.e(f"{D}:")

def poll(a, stage, t, prev=False):
    D = a.lab("pdone")
    a.e("s_cmp_lg_u32 s30, 4"); a.e(f"s_cbranch_scc1 {D}")
    own_wait(a, stage, prev, t)
    mask, cnt = flag_addr(a, t + 1, stage, prev)
    poll_core(a, t, [t + 1], mask, depth=PDEPTH, cnt=cnt)
    a.e(f"{D}:")
    if stage != ST_G4: mstamp(a)
    a.e("s_barrier")

def publish(a, stage, nw, t, off=None, wait=0, ctr=None, flag=False):
    D = a.lab("pub")
    mark = PWAIT and off is None and stage in (ST_G1, ST_G2, ST_G4)
    if off is None:
        a.e(f"s_add_u32 s53, s55, {fso(stage)}"); off = 53
        sp = SPLIT.get(stage)
        if sp == "half": a.e("s_lshl_b32 s54, s31, 7"); a.e("s_add_u32 s53, s53, s54")
        if sp == "sign": a.e("s_and_b32 s54, s29, 4"); a.e("s_lshl_b32 s54, s54, 5"); a.e("s_add_u32 s53, s53, s54")
    a.e(f"v_mov_b32 v{t}, 1"); a.e(f"v_mov_b32 v{t+1}, {LW + (ctr if ctr is not None else 4 if nw == 8 else 0)}"); a.e(f"v_mov_b32 v{t+3}, 0")
    a.e("s_mov_b64 exec, 1")
    if wait is not None: a.e(f"s_waitcnt vmcnt({wait})")
    if nw > 1:
        a.e(f"ds_add_rtn_u32 v{t+2}, v{t+1}, v{t}")
        if flag: a.e(f"v_mov_b32 v{t+1}, s52")
        a.e("s_waitcnt lgkmcnt(0)")
        a.e(f"v_readfirstlane_b32 s54, v{t+2}")
        a.e(f"s_and_b32 s54, s54, {nw-1}"); a.e(f"s_cmp_lg_u32 s54, {nw-1}"); a.e(f"s_cbranch_scc1 {D}")
    if flag: a.e(f"buffer_store_dword v{t+1}, v{t+3}, s[56:59], s{off} offen {SC}")
    else: a.e(f"buffer_atomic_add v{t}, v{t+3}, s[56:59], s{off} offen {SC}")
    if stage == ST_R and not flag:
        a.e("s_cmp_lg_u32 s60, 0"); a.e(f"s_cbranch_scc1 {D}")
        a.e("s_lshl_b32 s53, s29, 7"); a.e(f"s_add_u32 s53, s53, {F_CS}")
        a.e(f"buffer_atomic_add v{t}, v{t+3}, s[56:59], s53 offen {SC}")
    if mark: a.e(f"v_mov_b32 v{t+1}, {LW+56}"); a.e(f"ds_add_u32 v{t+1}, v{t}")
    a.e(f"{D}:")
    a.e("s_mov_b64 exec, -1")

def lds_spin(a, addr, target, t, dst=53, nap=False):
    L = a.lab("spin")
    a.e(f"v_mov_b32 v{t}, {addr}")
    a.e(f"{L}:")
    if nap: a.e(f"s_sleep {int(nap)}")
    a.e(f"ds_read_b32 v{t+1}, v{t}"); a.e("s_waitcnt lgkmcnt(0)"); a.e(f"v_readfirstlane_b32 s{dst}, v{t+1}")
    a.e(f"s_cmp_ge_u32 s{dst}, {target}"); a.e(f"s_cbranch_scc0 {L}")
def lds_set(a, addr, val, t):
    a.e(f"v_mov_b32 v{t}, {addr}"); a.e(f"v_mov_b32 v{t+1}, {val}")
    a.e("s_waitcnt lgkmcnt(0)"); a.e(f"ds_write_b32 v{t}, v{t+1}")
def lbar(a, k, t):
    a.e(f"v_mov_b32 v{t}, {LW+8}"); a.e(f"v_mov_b32 v{t+1}, 1")
    a.e("s_waitcnt lgkmcnt(0)")
    a.e("s_mov_b64 exec, 1"); a.e(f"ds_add_u32 v{t}, v{t+1}"); a.e("s_mov_b64 exec, -1")
    lds_spin(a, LW + 8, 4 * k, t)

def gelu4(a, X, t, c1, c2):
    P = [(X, t), (X + 2, t + 2)]
    for x, u in P: a.e(f"v_pk_mul_f32 {vr(u,2)}, {vr(x,2)}, {vr(x,2)}")
    for x, u in P: a.e(f"v_pk_fma_f32 {vr(u,2)}, {vr(u,2)}, {vr(c2,2)}, {vr(c1,2)}")
    for x, u in P: a.e(f"v_pk_mul_f32 {vr(u,2)}, {vr(u,2)}, {vr(x,2)}")
    for i in range(4): a.e(f"v_exp_f32 v{t+i}, v{t+i}")
    for x, u in P: a.e(f"v_pk_add_f32 {vr(u,2)}, {vr(u,2)}, 1.0 op_sel_hi:[1,0]")
    for i in range(4): a.e(f"v_rcp_f32 v{t+i}, v{t+i}")
    for x, u in P: a.e(f"v_pk_mul_f32 {vr(x,2)}, {vr(x,2)}, {vr(u,2)}")

W2EARLY = int(os.environ.get("W2EARLY", "1")); QLATE = int(os.environ.get("QLATE", "0"))
TOUCH2 = [(A_Q, 4 * MB)] + ([] if W2EARLY else [(B_W2, 2 * MB)])
CODEPF = int(os.environ.get("CODEPF", "1")); NVOTE = int(os.environ.get("NVOTE", "64")); QUO = int(os.environ.get("QUO", "41")); NSAMP = int(os.environ.get("NSAMP", "2"))
W4POS = os.environ.get("W4POS", "3C")
HSTR = 4160; CHB = 24576; UOFF = 4 * HSTR; US = 96
KVS = 4 * CHB

KT = int(os.environ.get("KT", "1"))
KV = dict(cq=6, tg=7, t=8, ro=9, wo=16, pt=18, kr=22, vv=36, w=44, d=52, hoff=70, tag=76, zz=78)
FAST = int(os.environ.get("FAST", "0"))
def front_first(a):
    cq, tg, t, ro, wo, kr, vv, w = [KV[k] for k in "cq tg t ro wo kr vv w".split()]
    a.e(f"v_and_b32 v{cq}, 31, v0"); a.e(f"v_lshrrev_b32 v{tg}, 5, v0")
    a.e("s_and_b32 s34, s2, 7"); a.e("s_lshr_b32 s35, s2, 3")
    a.e("s_lshl_b32 s36, s35, 17"); a.e("s_lshl_b32 s37, s34, 8"); a.e("s_add_u32 s36, s36, s37")
    a.e(f"v_lshlrev_b32 v{t}, 13, v{tg}"); a.e(f"v_lshl_add_u32 v{t}, v{cq}, 3, v{t}"); a.e(f"v_add_u32 v{ro+3}, s36, v{t}")
    a.e(f"v_add_u32 v{ro+5}, 4096, v{ro+3}")
    a.e("s_waitcnt lgkmcnt(0)")
    for i in range(4): a.e(f"global_load_dwordx2 {vr(kr+2*(i+3),2)}, v{ro+3+(i&2)}, s[8:9] offset:{2048*(i&1)} {NTK}")
    for i in range(4): a.e(f"global_load_dwordx2 {vr(vv+2*i,2)}, v{ro+3+(i&2)}, s[10:11] offset:{2048*(i&1)} {NT}")
def front_loads(a):
    cq, tg, t, ro, wo, kr, vv, w = [KV[k] for k in "cq tg t ro wo kr vv w".split()]
    a_ = a
    if FAST: a = Rec()
    a.e(f"v_and_b32 v{cq}, 31, v0"); a.e(f"v_lshrrev_b32 v{tg}, 5, v0")
    a.e("s_and_b32 s34, s2, 7"); a.e("s_lshr_b32 s35, s2, 3")
    a.e("s_lshl_b32 s36, s35, 17"); a.e("s_lshl_b32 s37, s34, 8"); a.e("s_add_u32 s36, s36, s37")
    a.e(f"v_lshlrev_b32 v{t}, 13, v{tg}"); a.e(f"v_lshl_add_u32 v{t}, v{cq}, 3, v{t}"); a.e(f"v_add_u32 v{ro+3}, s36, v{t}")
    a.e(f"v_add_u32 v{ro+5}, 4096, v{ro+3}")
    a = a_
    a.e(f"s_mov_b32 s18, {4*MB}"); a.e("s_mov_b32 s19, 0x20000"); a.e("s_mov_b32 s22, s18"); a.e("s_mov_b32 s23, s19")
    a.e("s_waitcnt lgkmcnt(0)")
    tag, zz = KV["tag"], KV["zz"]
    a.e("s_mov_b32 s86, 256"); a.e("s_mov_b32 s87, 0x20000"); a.e(f"v_mov_b32 v{zz}, 0")
    a.e("s_lshl_b32 s45, s2, 3"); a.e("s_add_u32 s45, s45, s30"); a.e("s_cmp_lg_u32 s45, 4"); a.e("s_cbranch_scc1 KV_t0")
    a.e("s_lshl_b32 s44, s46, 6"); a.e("s_or_b32 s44, s44, 1"); a.e(f"v_mov_b32 v{tag}, s44"); a.e(f"v_mov_b32 v{tag+1}, 0")
    a.e("s_mov_b64 exec, 1"); a.e(f"buffer_store_dwordx2 {vr(tag,2)}, v{zz}, s[84:87], 0 offen {SC}"); a.e("s_mov_b64 exec, -1")
    a.e("KV_t0:")
    a.e("s_mov_b64 s[16:17], s[8:9]"); a.e("s_mov_b64 s[20:21], s[10:11]")
    for i in range(0 if FAST else 4): a.e(f"buffer_load_dwordx2 {vr(kr+2*(i+3),2)}, v{ro+3+(i&2)}, s[16:19], 0 offen offset:{2048*(i&1)} {NTK}")
    for i in range(0 if FAST else 4): a.e(f"buffer_load_dwordx2 {vr(vv+2*i,2)}, v{ro+3+(i&2)}, s[20:23], 0 offen offset:{2048*(i&1)} {NT}")
    for i in range(3): a.e(f"v_subrev_u32 v{ro+i}, {2048*(3-i)}, v{ro+3}")
    a.e("s_lshl_b32 s37, s34, 10"); a.e(f"v_lshlrev_b32 v{wo}, 5, v{cq}"); a.e(f"v_add_u32 v{wo}, s37, v{wo}")
    a.srd(24, 12, 8192)
    XP = os.environ.get("XP", "g")
    if KT:
        a.e(f"v_and_b32 v{t}, 1, v{tg}"); a.e(f"v_lshl_add_u32 v{wo}, v{t}, 4, v{wo}")
        a.e(f"buffer_load_dwordx4 {vr(w,4)}, v{wo}, s[24:27], 0 offen")
    for i in range(0 if "t" in XP or KT else 2): a.e(f"buffer_load_dwordx4 {vr(w+4*i,4)}, v{wo}, s[24:27], 0 offen offset:{16*i}")
    if "g" in XP:
        a.e("s_cmp_lg_u32 s30, 4"); a.e("s_cbranch_scc1 KV_t2")
        a.e(f"buffer_load_dword v{tag}, v{zz}, s[84:87], 0 offen {SC}")
        a.e("KV_t2:")
    if "h" in XP: return
    if HALO:
        a.e("s_cmp_lg_u32 s30, 0"); a.e("s_cbranch_scc1 KV_h0"); a.e("s_bfm_b64 exec, 32, 0")
    if KT: a.e("s_bfm_b64 exec, 32, 0")
    for i in range(3): a.e(f"buffer_load_dwordx2 {vr(kr+2*i,2)}, v{ro+i}, s[16:19], 0 offen {NTK}")
    if KT: a.e("s_mov_b64 exec, -1")
    if HALO: a.e("s_mov_b64 exec, -1"); a.e("KV_h0:")

def probe_base(a):
    a.e("s_and_b32 s42, s2, 31"); a.e("s_lshl_b32 s42, s42, 8"); a.e("s_lshr_b32 s43, s2, 5"); a.e("s_lshl_b32 s43, s43, 14"); a.e("s_add_u32 s42, s42, s43")
    a.e(f"s_add_u32 s42, s42, {LB0 + oSM + 131072}")
def front_arrive(a, wait):
    D = a.lab("fa"); t = 6
    a.e("s_and_b32 s36, s2, 7"); a.e("s_lshl_b32 s36, s36, 7"); a.e(f"s_add_u32 s36, s36, {F_FRONT}")
    a.e(f"v_mov_b32 v{t}, 1"); a.e(f"v_mov_b32 v{t+1}, {LW+4}"); a.e(f"v_lshlrev_b32 v{t+3}, 10, v1")
    a.e("s_mov_b64 exec, 1")
    if wait: a.e("s_waitcnt vmcnt(0)")
    a.e("s_waitcnt lgkmcnt(0)")
    a.e(f"ds_add_rtn_u32 v{t+2}, v{t+1}, v{t}")
    a.e("s_waitcnt lgkmcnt(0)")
    a.e(f"v_readfirstlane_b32 s54, v{t+2}")
    a.e("s_cmp_lg_u32 s54, 15"); a.e(f"s_cbranch_scc1 {D}")
    a.e("s_mov_b64 exec, 0xffff")
    a.e(f"buffer_atomic_add v{t}, v{t+3}, s[56:59], s36 offen {SC}")
    a.e(f"{D}:"); a.e("s_mov_b64 exec, -1")
def front_a(a):
    cq, tg, t, pt, kr, vv, w, d, hoff, tag, zz = [KV[k] for k in "cq tg t pt kr vv w d hoff tag zz".split()]
    v = VA(80)
    a.e("s_and_b32 s41, s30, 3"); chan_setup(a, 41)
    a.e("s_lshr_b32 s36, s39, 1"); a.e("s_lshl_b32 s36, s36, 2"); a.e("s_load_dword s98, s[96:97], s36")
    a.e("s_lshl_b32 s36, s39, 12")
    a.e("s_add_u32 s12, s14, s36"); a.e("s_addc_u32 s13, s15, 0"); a.e("s_mov_b32 s14, 4096"); a.e("s_mov_b32 s15, 0x20000")
    a.e("s_lshr_b32 s45, s30, 2"); a.e("s_lshl_b32 s45, s45, 11")
    for it in range(3):
        if it < 2: a.e(f"s_add_u32 s36, s45, {(1024*it - 64) & 0xffffffff:#x}")
        else: a.e(f"s_mov_b32 s36, {4096 - 64}")
        a.e(f"v_add_u32 v{hoff+2*it}, s36, v2"); a.e(f"v_add_u32 v{hoff+2*it+1}, 16, v{hoff+2*it}")
    a.e("s_and_b32 s34, s2, 7"); a.e("s_lshr_b32 s35, s2, 3")
    z = v(4, 4); la = v(); t2 = v(); hw = v()
    for i in range(4): a.e(f"v_mov_b32 v{z+i}, 0")
    a.e(f"v_add_u32 v{hw}, s40, v2")
    a.e(f"ds_write_b128 v{hw}, {vr(z,4)} offset:{UOFF+64*US}")
    a.e(f"s_bfm_b64 exec, {(15*US - 1024)//16}, 0"); a.e(f"ds_write_b128 v{hw}, {vr(z,4)} offset:{UOFF+64*US+1024}"); a.e("s_mov_b64 exec, -1")
    a.e(f"v_lshlrev_b32 v{t}, 2, v{tg}"); a.e(f"v_sub_u32 v{t}, 60, v{t}")
    a.e(f"v_lshrrev_b32 v{t2}, 3, v{t}"); a.e(f"v_bfe_u32 v{la}, v{cq}, 1, 3"); a.e(f"v_xor_b32 v{t2}, v{t2}, v{la}"); a.e(f"v_lshlrev_b32 v{t2}, 4, v{t2}")
    a.e(f"v_and_b32 v{t}, 7, v{t}"); a.e(f"v_lshl_add_u32 v{t2}, v{t}, 1, v{t2}")
    a.e(f"v_lshl_add_u32 v{la}, v{cq}, 9, v{t2}"); a.e(f"v_add_u32 v{la}, {KVS}, v{la}")
    wf = v(8, 2); kf = v(14, 2); vf = v(8, 2); ks = v(8, 2); pr = v(8, 2); o = v(8, 4); tm = v(4, 1)
    a.e("s_waitcnt vmcnt(0)")
    if HALO:
        for i in range(3): a.e(f"buffer_load_dwordx2 {vr(kr+2*i,2)}, v{KV['ro']+i}, s[16:19], 0 offen {NTK}")
        if HALO == 1: a.e("s_waitcnt vmcnt(0)")
    a.e("s_cmp_lg_u32 s30, 4"); a.e("s_cbranch_scc1 KV_t1")
    if "g" not in os.environ.get("XP", "g"): a.e(f"buffer_load_dword v{tag}, v{zz}, s[84:87], 0 offen {SC}")
    a.e("KV_t1:")
    for it in range(3):
        a.e(f"buffer_load_dwordx4 {vr(d+6*it,4)}, v{hoff+2*it}, s[12:15], 0 offen {NTH}")
        a.e(f"buffer_load_dwordx2 {vr(d+6*it+4,2)}, v{hoff+2*it+1}, s[12:15], 0 offen {NTH}")
    if HALO == 2: a.e("s_waitcnt vmcnt(10)")
    mstamp(a)
    if KT:
        for e in range(4): a.e(f"v_mov_b32 v{w+4+e}, v{w+e}")
        for e in range(6): a.e(f"v_mov_b32 v{pr+e}, v{kr+8+e}")
        for e in range(4): a.e(f"v_permlane32_swap_b32 v{w+e}, v{w+4+e}")
        for e in range(6): a.e(f"v_permlane32_swap_b32 v{kr+e}, v{pr+e}")
    for dd in range(2):
        for c in range(2):
            unpack(a, wf + 0 + c, wf + 2 + c, w + 2 * (2 * dd + c)); unpack(a, wf + 4 + c, wf + 6 + c, w + 2 * (2 * dd + c) + 1)
        for i in range(7): unpack(a, kf + 2 * i, kf + 2 * i + 1, kr + 2 * i + dd)
        for i in range(4): unpack(a, vf + 2 * i, vf + 2 * i + 1, vv + 2 * i + dd)
        def rnd(base):
            for i in range(4): a.e(f"v_cvt_pk_bf16_f32 v{tm+i}, v{base+2*i}, v{base+2*i+1}")
            for i in range(4): unpack(a, base + 2 * i, base + 2 * i + 1, tm + i)
        for i in range(4): a.e(f"v_pk_mul_f32 {vr(ks+2*i,2)}, {vr(kf+2*i,2)}, {vr(wf+6,2)}")
        if RND: rnd(ks)
        for j in range(1, 4):
            if not RND:
                for i in range(4): a.e(f"v_pk_fma_f32 {vr(ks+2*i,2)}, {vr(kf+2*(i+j),2)}, {vr(wf+6-2*j,2)}, {vr(ks+2*i,2)}")
                continue
            for i in range(4): a.e(f"v_pk_mul_f32 {vr(pr+2*i,2)}, {vr(kf+2*(i+j),2)}, {vr(wf+6-2*j,2)}")
            rnd(pr)
            for i in range(4): a.e(f"v_pk_add_f32 {vr(ks+2*i,2)}, {vr(ks+2*i,2)}, {vr(pr+2*i,2)}")
            rnd(ks)
        for i in range(4): a.e(f"v_pk_mul_f32 {vr(ks+2*i,2)}, {vr(ks+2*i,2)}, {vr(vf+2*i,2)}")
        for c in range(2):
            e = 2 * dd + c
            a.e(f"v_cvt_pk_bf16_f32 v{o+2*e}, v{ks+6+c}, v{ks+4+c}"); a.e(f"v_cvt_pk_bf16_f32 v{o+2*e+1}, v{ks+2+c}, v{ks+c}")
            a.e(f"ds_write_b64 v{la}, {vr(o+2*e,2)} offset:{e*128}")
    a.e("s_cmp_lg_u32 s30, 4"); a.e("s_cbranch_scc1 HB_2")
    a.e(f"v_add_u32 v{pt}, {LW}, v3"); a.e(f"ds_write_b32 v{pt}, v{zz}")
    a.e("s_mov_b32 s53, 0")
    a.e("s_waitcnt vmcnt(6)")
    a.e("HB_p:")
    a.e(f"v_readfirstlane_b32 s52, v{tag}"); a.e("s_cmp_eq_u32 s52, 0"); a.e("s_cbranch_scc1 HB_r")
    a.e("s_cmp_ge_u32 s53, 400"); a.e("s_cbranch_scc1 HB_q")
    a.e("s_add_u32 s54, s46, 8192"); a.e("s_lshl_b32 s54, s54, 6"); a.e("s_sub_u32 s54, s54, s52"); a.e(f"s_cmp_lt_u32 s54, {12288*64}"); a.e("s_cbranch_scc1 HB_q")
    a.e("HB_r:")
    a.e(f"buffer_load_dword v{tag}, v{zz}, s[84:87], 0 offen {SC}"); a.e("s_waitcnt vmcnt(0)")
    a.e("s_add_u32 s53, s53, 1"); a.e("s_cmp_lt_u32 s53, s61"); a.e("s_cbranch_scc1 HB_p")
    a.e("s_mov_b32 s52, 1"); a.e("s_mov_b32 s61, 0")
    a.e("HB_q:")
    lds_set(a, LW + 12, "s52", pt)
    a.e("HB_2:")
    a.srd(16, 4, 8 * GSTR, off=LB0 + oX3)
    ra = v(); go = v(); ob = v(8, 4)
    a.e(f"v_lshrrev_b32 v{t}, 3, v0"); a.e(f"v_and_b32 v{t2}, 7, v0")
    a.e(f"v_lshlrev_b32 v{go}, 12, v{t}"); a.e(f"v_lshl_add_u32 v{go}, v{t2}, 4, v{go}")
    a.e("s_lshl_b32 s36, s34, 24"); a.e("s_sub_u32 s37, 31, s35"); a.e("s_lshl_b32 s37, s37, 7"); a.e("s_add_u32 s36, s36, s37")
    a.e(f"s_add_u32 s37, s36, {64*4096}")
    a.e(f"v_lshrrev_b32 v{ra}, 3, v{t}"); a.e(f"v_xor_b32 v{ra}, v{ra}, v{t2}"); a.e(f"v_lshlrev_b32 v{ra}, 4, v{ra}"); a.e(f"v_lshl_add_u32 v{ra}, v{t}, 7, v{ra}")
    a.e(f"v_add_u32 v{ra}, {KVS}, v{ra}"); a.e(f"v_mov_b32 v{pt}, {LW+12}")
    a.e("s_waitcnt lgkmcnt(0)"); a.e("s_barrier")
    for i in range(2): a.e(f"ds_read_b128 {vr(ob+4*i,4)}, v{ra} offset:{i*8192}")
    a.e(f"ds_read_b32 v{pt+1}, v{pt}")
    for i in range(2):
        a.e(f"s_waitcnt lgkmcnt({2-i})")
        if "1" in DP: mark(a, ob + 4 * i, 1)
        a.e(f"buffer_store_dwordx4 {vr(ob+4*i,4)}, v{go}, s[16:19], s{36+i} offen {SC}")
    a.e("s_waitcnt lgkmcnt(0)"); a.e(f"v_readfirstlane_b32 s52, v{pt+1}")
    a.e("s_cmp_lg_u32 s30, 0"); a.e("s_cbranch_scc1 KV_ni"); a.e("s_cmp_ge_u32 s35, 16"); a.e("s_cbranch_scc1 KV_ni")
    a.e(f"v_mov_b32 v{t}, s52")
    a.e("s_lshl_b32 s37, s34, 7"); a.e("s_lshl_b32 s53, s35, 10"); a.e("s_add_u32 s37, s37, s53"); a.e(f"s_add_u32 s37, s37, {F_FRONT}")
    a.e("s_mov_b64 exec, 1"); a.e(f"buffer_store_dword v{t}, v{zz}, s[56:59], s37 offen {SC}"); a.e("s_mov_b64 exec, -1")
    a.e("KV_ni:")
    a.e(f"s_cmp_ge_u32 s2, {NVOTE}"); a.e("s_cbranch_scc1 KV_n3"); a.e("s_cmp_lg_u32 s30, 5"); a.e("s_cbranch_scc1 KV_n3")
    probe_base(a)
    a.e(f"v_and_b32 v{t}, 1, v1"); a.e(f"v_lshlrev_b32 v{t}, 13, v{t}"); a.e(f"v_lshrrev_b32 v{t2}, 1, v1"); a.e(f"v_lshl_add_u32 v{t}, v{t2}, 7, v{t}")
    a.e("s_mov_b64 exec, 0xf"); a.e(f"buffer_store_dword v{t}, v{t}, s[56:59], s42 offen {SC}"); a.e("s_mov_b64 exec, -1")
    a.e("KV_n3:")
    def pubk():
        a.e("s_lshl_b32 s36, s34, 5"); a.e("s_add_u32 s36, s36, s35"); a.e("s_lshl_b32 s36, s36, 7"); a.e(f"s_add_u32 s36, s36, {F_KVT}")
        mstamp(a)
        QL = int(os.environ.get("QL", "3"))
        if QL == 2: load_q(a)
        publish(a, 0, 8, pt, off=36, flag=True, wait=4 if QL == 2 else 0)
        if QL == 3: load_q(a)
        mstamp(a)
    HF = int(os.environ.get("HF", "0"))
    if not HF: pubk()
    else: a.e("s_waitcnt vmcnt(2)")
    cc = wf; hw2 = v()
    a.e(f"v_add_u32 v{hw2}, s45, v{hw}")
    for it in range(3):
        D = d + 6 * it; c0 = cc + 12 * it; c1 = c0 + 4; c2 = c0 + 8
        for k in range(4):
            a.e(f"v_alignbit_b32 v{c0+k}, v{D+k+1}, v{D+k}, 16")
            a.e(f"v_mov_b32 v{c1+k}, v{D+k+1}")
            a.e(f"v_alignbit_b32 v{c2+k}, v{D+k+2}, v{D+k+1}, 16")
        if it == 2: a.e("s_mov_b64 exec, 0xf")
        ad, o0 = (hw2, 1024 * it) if it < 2 else (hw, 4096)
        a.e(f"ds_write_b128 v{ad}, {vr(c0,4)} offset:{o0}")
        a.e(f"ds_write_b128 v{ad}, {vr(c1,4)} offset:{HSTR+o0}")
        a.e(f"ds_write_b128 v{ad}, {vr(c2,4)} offset:{2*HSTR+o0}")
        a.e(f"ds_write_b128 v{ad}, {vr(D+2,4)} offset:{3*HSTR+o0}")
        if it == 2: a.e("s_mov_b64 exec, -1")
    if HF: pubk()
    assert v.hi <= 176
    a.e("s_waitcnt lgkmcnt(0)"); a.e("s_barrier")
def load_q(a):
    a.srd(8, 6, 4 * MB)
    for j in range(4): a.e(f"buffer_load_dwordx2 {vr(RXA+2*j,2)}, v{RRO}, s[8:11], 0 offen offset:{128*(j>>1) + 32*(j&1)} {os.environ.get('NTQ', NTH)}")
def chan_setup(a, wsg):
    a.e("s_and_b32 s38, s2, 7"); a.e("s_lshl_b32 s38, s38, 5"); a.e("s_lshr_b32 s39, s2, 3"); a.e("s_add_u32 s38, s38, s39")
    a.e("s_lshl_b32 s39, s38, 2"); a.e(f"s_add_u32 s39, s39, s{wsg}")
    a.e(f"s_mul_i32 s40, s{wsg}, {CHB}")

def touch(a, ka, nbytes, r):
    n = nbytes // 1024 // 512
    a.e(f"s_load_dwordx2 s[48:49], s[0:1], {ka}")
    a.e("s_lshl_b32 s45, s2, 1"); a.e("s_and_b32 s50, s30, 1"); a.e("s_add_u32 s45, s45, s50"); a.e(f"s_mul_i32 s45, s45, {n*1024}")
    a.e(f"s_mov_b32 s50, {nbytes}"); a.e("s_mov_b32 s51, 0x20000")
    a.e("s_waitcnt lgkmcnt(0)")
    for i in range(n):
        if i and i % 4 == 0: a.e("s_add_u32 s45, s45, 4096")
        a.e(f"buffer_load_dwordx4 {vr(r,4)}, v2, s[48:51], s45 offen offset:{(i&3)*1024}")
    return n

def w2_warm(a):
    a.e("s_mov_b64 s[48:49], s[70:71]"); a.e(f"s_mov_b32 s50, {2*MB}"); a.e("s_mov_b32 s51, 0x20000")
    a.e("s_and_b32 s45, s28, 3"); a.e("s_lshl_b32 s45, s45, 1"); a.e("s_and_b32 s46, s30, 1"); a.e("s_add_u32 s45, s45, s46"); a.e("s_lshl_b32 s45, s45, 18")
    a.e("s_lshl_b32 s46, s29, 7"); a.e("s_add_u32 s45, s45, s46"); a.e("v_lshlrev_b32 v245, 11, v1")
    a.e("buffer_load_dword v244, v245, s[48:51], s45 offen"); a.e(f"s_add_u32 s45, s45, {64*2048}"); a.e("buffer_load_dword v246, v245, s[48:51], s45 offen")
def cs_load(a, which, slot):
    w_setup(a, which, pre=False)
    a.e(f"s_mov_b32 s42, {slot}"); a.e("s_mov_b32 s44, s28")
    w_issue(a, which, direct=True)
CSEL, CFR, CAD, CACC, CSO_ = 16, 72, 144, 156, 164
def cs_prep(a, S1, S3):
    a.e(f"v_and_b32 v{CSO_}, 15, v1"); a.e(f"v_mov_b32 v{CSO_+1}, 0x3f803f80")
    for T in range(14):
        a.e(f"v_cmp_eq_u32 vcc, {T}, v{CSO_}")
        for e in range(4): a.e(f"v_cndmask_b32 v{CSEL+4*T+e}, 0, v{CSO_+1}, vcc")
    pos = {}
    for which, slot, r0, halves in ((1, S1, CAD, 1), (3, S3, CAD + 4, 2)):
        c = CFG[which]
        for hf in range(halves):
            a.e(f"s_mov_b32 s35, {hf}")
            nr, pos[which] = w_bases(a, which, r0 + 2 * hf, 35, c["TN16"] // halves, WV + 8, WV + 9)
            a.e("s_and_b32 s35, s30, 1"); a.e(f"s_mul_i32 s35, s35, {32*c['RB']}"); a.e(f"s_add_u32 s35, s35, {slot}")
            for i in range(nr): a.e(f"v_add_u32 v{r0+2*hf+i}, s35, v{r0+2*hf+i}")
    for i in range(8): a.e(f"v_mov_b32 v{CACC+i}, 0")
    a.e(f"v_lshrrev_b32 v{CSO_+2}, 4, v1"); a.e(f"v_lshlrev_b32 v{CSO_+2}, 4, v{CSO_+2}"); a.e(f"v_lshl_add_u32 v{CSO_+2}, v{CSO_}, 6, v{CSO_+2}")
    a.e(f"v_mov_b32 v{CSO_+1}, 0x7f000000")
    for k, n in ((3, 4), (4, 14)):
        a.e(f"v_cmp_gt_u32 vcc, {n}, v{CSO_}"); a.e(f"v_cndmask_b32 v{CSO_+k}, v{CSO_+1}, v{CSO_+2}, vcc")
    return pos
def cs_sum(a, which, pos):
    c = CFG[which]; ntl = c["TN16"]; N = c["LDW"] // 2
    F = CFR + (0 if which == 3 else 56); A = CACC + (0 if which == 3 else 4)
    for T in range(ntl):
        hf, nt = (T // 7, T % 7) if which == 3 else (0, T)
        for h in range(2):
            r, imm = pos[which](nt, 0, h)
            a.e(f"ds_read_b64_tr_b16 {vr(F+4*T+2*h,2)}, v{(CAD + 4 if which == 3 else CAD) + 2*hf + r} offset:{imm}")
    a.srd(20, 4, 32 * N * 4, off=CSP[which])
    a.e("s_lshl_b32 s35, s28, 1"); a.e("s_and_b32 s36, s30, 1"); a.e("s_add_u32 s35, s35, s36"); a.e(f"s_mul_i32 s35, s35, {N*4}")
    a.e(f"s_mul_i32 s36, s29, {ntl*64}"); a.e("s_add_u32 s35, s35, s36")
    a.e("s_waitcnt lgkmcnt(0)")
    for T in range(ntl): a.e(f"v_mfma_f32_16x16x32_bf16 {vr(A,4)}, {vr(F+4*T,4)}, {vr(CSEL+4*T,4)}, {vr(A,4)}")
    a.e(f"buffer_store_dwordx4 {vr(A,4)}, v{CSO_ + (4 if which == 3 else 3)}, s[20:23], s35 offen {SC}")

NOCS3 = int(os.environ.get("NOCS3", "0")); STO = os.environ.get("STOUCH", "")
def stouch(a, which, gran, nw):
    X = a.lab("st"); L = a.lab("sl"); n = 28672 // nw
    a.e("s_cmp_lg_u32 s60, 0"); a.e(f"s_cbranch_scc1 {X}")
    a.e(f"s_mul_i32 s36, s2, 28672"); a.e(f"s_and_b32 s37, s30, {nw-1}"); a.e(f"s_mul_i32 s37, s37, {n}"); a.e("s_add_u32 s36, s36, s37")
    a.e(f"s_add_u32 s34, s{66+2*which}, s36"); a.e(f"s_addc_u32 s35, s{67+2*which}, 0"); a.e("s_mov_b32 s36, 0")
    a.e(f"{L}:")
    for i in range(14): a.e(f"s_load_dword s37, s[34:35], {i*gran}")
    a.e(f"s_add_u32 s34, s34, {14*gran}"); a.e("s_addc_u32 s35, s35, 0"); a.e("s_add_u32 s36, s36, 1"); a.e(f"s_cmp_lt_u32 s36, {n // (14*gran)}"); a.e(f"s_cbranch_scc1 {L}")
    a.e("s_waitcnt lgkmcnt(0)")
    a.e(f"{X}:")
SB = eval(os.environ.get("SB", "(0,0,0)"))
SG = eval(os.environ.get("SG", "(0,0,0,0)"))
def sg(a, n):
    if not n: return
    X = a.lab("st"); L = a.lab("sl")
    a.e("s_cmp_lg_u32 s60, 0"); a.e(f"s_cbranch_scc1 {X}"); a.e("s_mov_b32 s36, 0"); a.e(f"{L}:"); sb(a, 14)
    a.e("s_add_u32 s36, s36, 1"); a.e(f"s_cmp_lt_u32 s36, {n}"); a.e(f"s_cbranch_scc1 {L}"); a.e("s_waitcnt lgkmcnt(0)"); a.e(f"{X}:"); mstamp(a)
def sb_init(a):
    nw = 2 if sum(SG) else 4
    a.e(f"s_mul_i32 s36, s2, 28672"); a.e(f"s_and_b32 s37, s30, {nw-1}"); a.e(f"s_mul_i32 s37, s37, {28672//nw}"); a.e("s_add_u32 s36, s36, s37")
    SW = 66 + 2 * int(os.environ.get("SGW", "3"))
    a.e(f"s_add_u32 s90, s{SW}, s36"); a.e(f"s_addc_u32 s91, s{SW+1}, 0")
def sb(a, n):
    for i in range(n): a.e(f"s_load_dword s101, s[90:91], {i*64}")
    if n: a.e(f"s_add_u32 s90, s90, {n*64}"); a.e("s_addc_u32 s91, s91, 0")
PUTE = int(os.environ.get("PUTE", "1"))
def front_b(a):
    pt, dm = 6, 20
    PZE = int(os.environ.get("PZE", "0"))
    if PZE:
        a.srd(20, 4, 32 * MB, off=216 * MB)
        for i in range(4): a.e(f"v_mov_b32 v{216+i}, -1")
        a.e("s_lshl_b32 s45, s2, 2"); a.e("s_and_b32 s50, s30, 3"); a.e("s_add_u32 s45, s45, s50"); a.e(f"s_mul_i32 s45, s45, {PZE*1024}")
        for i in range(PZE):
            a.e(f"buffer_store_dwordx4 v[216:219], v2, s[20:23], s45 offen {SC}"); a.e("s_add_u32 s45, s45, 1024")
    if TAB: tab_load(a)
    TE = int(os.environ.get("TE", "0"))
    if TE:
        a.e("s_cmp_ge_u32 s30, 6"); a.e("s_cbranch_scc1 FB_t1"); touch(a, B_W2, 2 * MB, dm); a.e("s_branch FB_t2"); a.e("FB_t1:"); touch(a, B_W1, 2 * MB, 200); a.e("FB_t2:")
    w_lanes(a)
    a.e("s_cmp_ge_u32 s30, 6"); a.e("s_cbranch_scc1 FB_cs")
    vd = 12
    a.e(f"s_cmp_ge_u32 s2, {NVOTE}"); a.e("s_cbranch_scc1 FB_np"); a.e("s_cmp_lg_u32 s30, 5"); a.e("s_cbranch_scc1 FB_np")
    probe_base(a); a.e(f"v_mov_b32 v{vd+2}, 0")
    a.e("s_mov_b64 exec, 1"); a.e("s_mov_b32 s46, -1"); a.e("s_mov_b32 s47, -1"); a.e("s_mov_b32 s43, 0")
    a.e("FB_ml:")
    for i in range(2):
        a.e(f"s_add_u32 s45, s42, {i * 8192}")
        a.e("s_memtime s[34:35]"); a.e("s_waitcnt lgkmcnt(0)")
        a.e(f"buffer_load_dword v{vd+1}, v{vd+2}, s[56:59], s45 offen {SC}"); a.e("s_waitcnt vmcnt(0)")
        a.e("s_memtime s[36:37]"); a.e("s_waitcnt lgkmcnt(0)")
        a.e("s_sub_u32 s36, s36, s34"); a.e(f"s_min_u32 s{46+i}, s{46+i}, s36")
    a.e("s_add_u32 s42, s42, 128"); a.e("s_add_u32 s43, s43, 1"); a.e(f"s_cmp_lt_u32 s43, {NSAMP}"); a.e("s_cbranch_scc1 FB_ml")
    a.e("s_cmp_lt_u32 s47, s46"); a.e("s_cselect_b32 s45, 1, 0")
    a.e("s_lshr_b32 s46, s28, 2"); a.e("s_xor_b32 s45, s45, s46"); a.e("s_and_b32 s45, s45, 1"); a.e("s_lshl_b32 s45, s45, 8")
    a.e("s_or_b32 s43, s45, 1"); a.e(f"v_mov_b32 v{vd}, s43")
    a.e(f"buffer_atomic_add v{vd}, v{vd+2}, s[84:87], 0 offen offset:4 sc0 {SC}"); a.e("s_waitcnt vmcnt(0)")
    a.e(f"v_readfirstlane_b32 s36, v{vd}"); a.e("s_add_u32 s36, s36, s43"); a.e("s_and_b32 s37, s36, 255"); a.e(f"s_cmp_lg_u32 s37, {QUO}"); a.e("s_cbranch_scc1 FB_np")
    a.e("s_lshr_b32 s36, s36, 8"); a.e("s_lshl_b32 s36, s36, 1"); a.e("s_add_u32 s36, s36, s52"); a.e("s_bfm_b64 exec, 32, 0")
    a.e(f"v_mov_b32 v{vd}, s36"); a.e(f"v_lshlrev_b32 v{vd+1}, 7, v1"); a.e(f"s_mov_b32 s36, {F_RES}"); a.e(f"buffer_store_dword v{vd}, v{vd+1}, s[56:59], s36 offen {SC}")
    a.e("FB_np:")
    a.e("s_mov_b64 exec, -1")
    VG = int(os.environ.get("VG", "0"))
    if VG:
        a.e("s_cmp_lg_u32 s30, 5"); a.e("s_cbranch_scc1 FB_ng")
        a.e(f"v_mov_b32 v{pt}, {LW+20}"); a.e(f"v_mov_b32 v{pt+1}, 1"); a.e("s_mov_b64 exec, 1"); a.e(f"ds_add_u32 v{pt}, v{pt+1}"); a.e("s_mov_b64 exec, -1")
        a.e("FB_ng:")
    mstamp(a)
    a.e("s_cmp_lg_u32 s30, 4"); a.e("s_cbranch_scc1 FB_ni")
    a.e(f"v_mov_b32 v{vd}, s52")
    group_off(a, 37, 28); a.e("s_andn2_b32 s37, s37, 0x2000"); a.e("s_lshl_b32 s53, s29, 7"); a.e("s_add_u32 s37, s37, s53"); a.e(f"s_add_u32 s37, s37, {oSM}")
    a.e(f"v_and_b32 v{vd+1}, 1, v1"); a.e(f"v_lshlrev_b32 v{vd+1}, 13, v{vd+1}"); a.e(f"v_lshrrev_b32 v{vd+2}, 1, v1"); a.e(f"v_lshl_add_u32 v{vd+1}, v{vd+2}, 22, v{vd+1}")
    a.e("s_mov_b64 exec, 0xf"); a.e(f"buffer_store_dword v{vd}, v{vd+1}, s[56:59], s37 offen {SC}")
    a.e("s_cmp_lg_u32 s28, 0"); a.e("s_cbranch_scc1 FB_n2")
    a.e(f"s_add_u32 s37, s53, {F_CS}"); a.e("s_mov_b64 exec, 1"); a.e(f"buffer_store_dword v{vd}, v{vd+1}, s[56:59], s37 offen {SC}")
    a.e("FB_n2:")
    a.e("s_mov_b64 exec, -1")
    a.e("FB_ni:")
    UG = (LW + 20, 4 + VG) if os.environ.get("UG", "1") == "1" else (LW + 16, 1)
    lds_spin(a, *UG, pt, nap=2)
    mstamp(a)
    if TLBW:
        a.e("s_cmp_lg_u32 s30, 5"); a.e("s_cbranch_scc1 FB_nt")
        a.e(f"v_and_b32 v{vd}, 7, v1"); a.e(f"v_lshlrev_b32 v{vd}, 24, v{vd}"); a.e(f"v_lshrrev_b32 v{vd+1}, 3, v1"); a.e(f"v_lshl_add_u32 v{vd}, v{vd+1}, 22, v{vd}")
        a.e("s_lshl_b32 s36, s2, 7"); a.e(f"s_add_u32 s36, s36, {LB0 + 2 * MB - 65536}")
        a.e(f"s_bfm_b64 exec, {8 * TLBW}, 0"); a.e(f"buffer_load_dword v{dm+4}, v{vd}, s[56:59], s36 offen {SC}"); a.e("s_mov_b64 exec, -1")
        a.e("FB_nt:")
    if os.environ.get("W2T", "1") == "2": lds_spin(a, LW + 24, 2, pt, nap=4)
    if os.environ.get("W2T", "1") == "3":
        w_srd(a, 2); a.e("s_lshl_b32 s39, s28, 1"); a.e("s_and_b32 s36, s30, 1"); a.e("s_add_u32 s39, s39, s36"); a.e("s_lshl_b32 s39, s39, 16"); a.e("s_lshl_b32 s36, s29, 7"); a.e("s_add_u32 s39, s39, s36")
        for i in range(4): a.e(f"buffer_load_dwordx4 {vr(dm,4)}, v{WVB[2]}, s[12:15], s39 offen"); a.e("s_add_u32 s39, s39, 16384")
    elif os.environ.get("W2T", "1") != "0" and not TE: touch(a, B_W2, 2 * MB, dm)
    QL = int(os.environ.get("QL", "3"))
    if not QL: load_q(a)
    if W4POS == "F": lds_spin(a, LW + 24, 2, pt, nap=4); a.e("s_waitcnt vmcnt(0)")
    if W4POS in ("F", "F0"): touch(a, B_W4, 7 * MB, dm)
    PZF = int(os.environ.get("PZF", "0"))
    if PZF:
        a.srd(20, 4, 32 * MB, off=216 * MB)
        for i in range(4): a.e(f"v_mov_b32 v{216+i}, -1")
        a.e("s_lshl_b32 s45, s2, 1"); a.e("s_and_b32 s50, s30, 1"); a.e("s_add_u32 s45, s45, s50"); a.e(f"s_mul_i32 s45, s45, {PZF*1024}")
        for i in range(PZF):
            a.e(f"buffer_store_dwordx4 v[216:219], v2, s[20:23], s45 offen {SC}"); a.e("s_add_u32 s45, s45, 1024")
            if os.environ.get("PZP"): a.e(f"s_waitcnt vmcnt({os.environ['PZP']})")
    front_arrive(a, True)
    if TAB: tab_make(a, 0)
    PKW = int(os.environ.get("PKW", "2")); PKP = int(os.environ.get("PKP", "8"))
    W1P = int(os.environ.get("W1P", "8")); FO = os.environ.get("FO", "1pd"); FO2 = os.environ.get("FO2", "1pd")
    R1 = [176, 188, 192] + [200 + 4 * i for i in range(7)] + [16 + 4 * i for i in range(8)]
    def w1_regs(a):
        w_srd(a, 1)
        a.e("s_and_b32 s35, s30, 3"); a.e(f"s_mul_i32 s35, s35, {18*16384}"); a.e("s_lshl_b32 s39, s99, 7"); a.e("s_add_u32 s39, s39, s35")
        for q in range(18):
            a.e(f"buffer_load_dwordx4 {vr(R1[q],4)}, v{WVB[1]}, s[12:15], s39 offen"); a.e("s_add_u32 s39, s39, 16384")
            if q % 4 == 3: sb(a, SB[1])
            if PKP and q % 4 == 3: a.e(f"s_waitcnt vmcnt({PKP})")
        if QL == 1: load_q(a)
    def w1_put(a):
        a.e("s_and_b32 s35, s30, 3"); a.e(f"s_mul_i32 s35, s35, {18*1024}"); a.e("v_add_u32 v8, s35, v2")
        if PUTE: lds_spin(a, LW + 20, 8 + VG, pt, nap=2)
        else: lds_spin(a, LW + 4, 16, pt, nap=2)
        PV0 = int(os.environ.get("PV0", "1")); assert not PV0 or (FO[0] == "1" and FO2[0] == "1" and "p" in FO and "p" in FO2)
        a.e(f"s_waitcnt vmcnt({32 if PV0 else 0})")
        for q in range(18): a.e(f"ds_write_b128 v8, {vr(R1[q],4)} offset:{CFG[1]['WB'] + 1024*q}")
        a.e("s_waitcnt lgkmcnt(0)")
    def w1_dma(a, js):
        lds_spin(a, LW + 24, 4, pt, nap=3)
        w_setup(a, 1, pre=False)
        for j in js: w1_slots(a, (j,), pace=W1P); ypause(a)
    DS_ = int(os.environ.get("DSPL", "12"))
    if PKW: lds_spin(a, LW + 24, PKW, pt, nap=4)
    for i_, ch in enumerate(FO):
        if ch == "d": w1_dma(a, range(9, DS_))
        else: call(a, {"1": w1_regs, "p": park}[ch])
    mstamp(a)
    call(a, w1_put)
    a.e("s_branch FR_end")
    a.e("FB_cs:")
    S1, S3 = KVS - CFG[1]["WB"], KVS + 8192 - CFG[3]["WB"]
    pos = cs_prep(a, S1, S3)
    lds_spin(a, *UG, pt, nap=2)
    mstamp(a)
    if not QL: load_q(a)
    cs_load(a, 1, S1)
    if not NOCS3: cs_load(a, 3, S3)
    a.e(f"s_waitcnt vmcnt({0 if NOCS3 else 14})")
    if CSPRIO: a.e(f"s_setprio {CSPRIO}")
    cs_sum(a, 1, pos)
    a.e("s_waitcnt vmcnt(1)")
    a.e(f"v_mov_b32 v{pt}, {LW+24}"); a.e(f"v_mov_b32 v{pt+1}, 1")
    a.e("s_mov_b64 exec, 1"); a.e(f"ds_add_u32 v{pt}, v{pt+1}"); a.e("s_mov_b64 exec, -1")
    mstamp(a)
    if not NOCS3: cs_sum(a, 3, pos)
    front_arrive(a, False)
    if TAB: tab_make(a, 1)
    a.e(f"v_mov_b32 v{pt}, {LW+24}"); a.e(f"v_mov_b32 v{pt+1}, 1")
    a.e("s_mov_b64 exec, 1"); a.e(f"ds_add_u32 v{pt}, v{pt+1}"); a.e("s_mov_b64 exec, -1")
    mstamp(a)
    a.e("s_setprio 0")
    assert CFG[1]["WB"] + 9 * 8192 == KVS
    for ch in FO2:
        if ch == "d": w1_dma(a, range(DS_, 16))
        else: call(a, {"1": w1_regs, "p": park}[ch])
    mstamp(a)
    call(a, w1_put)

PG = int(os.environ.get("PG", "0"))
def front_conv(a):
    v = VA(6); lane = 1; l16 = 2
    t = v(); pt = v(4, 2)
    chan_setup(a, 30)
    a.e("s_and_b32 s36, s39, 127"); a.e("s_lshl_b32 s36, s36, 12"); a.e("s_lshr_b32 s37, s39, 7"); a.e("s_lshl_b32 s37, s37, 24")
    a.e("s_add_u32 s36, s36, s37"); a.e(f"s_add_u32 s36, s36, {LB0 + oX3}")
    a.e("s_add_u32 s16, s4, s36"); a.e("s_addc_u32 s17, s5, 0"); a.e("s_mov_b32 s18, 4096"); a.e("s_mov_b32 s19, 0x20000")
    uw = v(); u = v(16, 4)
    a.e(f"v_lshrrev_b32 v{t}, 2, v{lane}"); a.e(f"v_mul_u32_u24 v{uw}, {US}, v{t}"); a.e(f"v_and_b32 v{t}, 3, v{lane}")
    a.e(f"v_lshl_add_u32 v{uw}, v{t}, 4, v{uw}"); a.e(f"v_add_u32 v{uw}, s40, v{uw}")
    aa = v(); ba = v(); ua = v(); J = v(); G = v()
    a.e(f"v_and_b32 v{J}, 15, v{lane}"); a.e(f"v_lshrrev_b32 v{G}, 4, v{lane}")
    a.e(f"v_and_b32 v{t}, 3, v{J}"); a.e(f"v_mul_u32_u24 v{aa}, {HSTR}, v{t}")
    a.e(f"v_lshl_add_u32 v{aa}, v{G}, 4, v{aa}"); a.e(f"v_lshrrev_b32 v{t}, 2, v{J}"); a.e(f"v_lshl_add_u32 v{aa}, v{t}, 3, v{aa}")
    a.e(f"v_add_u32 v{aa}, s40, v{aa}")
    a.e(f"v_sub_u32 v{t}, 15, v{J}"); a.e(f"v_mul_u32_u24 v{ua}, {US}, v{t}"); a.e(f"v_add_u32 v{ua}, s40, v{ua}")
    a.e(f"v_lshl_add_u32 v{ba}, v{G}, 4, v{ua}")
    acc = v(32, 4)
    fa = v(64, 4); fb = v(32, 4)
    def rdA(p, o):
        return [f"ds_read_b64 {vr(fa+32*p+8*s_+4*mt+2*h,2)}, v{aa} offset:{64*(o+16*s_) + 32*mt + 8*h}" for s_ in range(4) for mt in range(2) for h in range(2)]
    def rdB(p, o):
        return [f"ds_read_b128 {vr(fb+16*p+4*k,4)}, v{ba} offset:{UOFF + (48 - 16*k + o)*US}" for k in range(4)]
    for x in rdA(0, 0): a.e(x)
    dm_ = fb + 16; Dv = pt + 2
    a.e("s_bitcmp1_b32 s39, 0"); a.e("s_cselect_b32 s36, 0, 16"); a.e("s_lshl_b32 s41, s98, s36"); a.e("s_and_b32 s41, s41, 0xffff0000"); a.e("s_lshr_b32 s36, s41, 16")
    a.e(f"v_lshl_add_u32 v{t}, v{G}, 3, v{J}"); a.e(f"v_sub_u32 v{t}, 31, v{t}")
    a.e(f"v_mov_b32 v{Dv}, s36"); a.e(f"v_mov_b32 v{Dv+1}, s41"); a.e(f"v_and_b32 v{pt}, 1, v{t}"); a.e(f"v_cmp_eq_u32 vcc, 1, v{pt}")
    a.e(f"v_cndmask_b32 v{Dv}, v{Dv}, v{Dv+1}, vcc"); a.e(f"v_ashrrev_i32 v{t}, 1, v{t}")
    for mt in range(2):
        for d_ in range(4): a.e(f"v_cmp_eq_u32 vcc, {8*mt+d_}, v{t}"); a.e(f"v_cndmask_b32 v{dm_+4*mt+d_}, 0, v{Dv}, vcc")
    a.srd(12, 4, 8 * GSTR - oHS, off=LB0 + oHS)
    ta = v(); go = v()
    a.e(f"v_bfe_u32 v{t}, v{lane}, 2, 2"); a.e(f"v_mul_u32_u24 v{ta}, {CHB+64}, v{t}")
    a.e(f"v_lshrrev_b32 v{t}, 1, v{G}"); a.e(f"v_mul_u32_u24 v{t}, 72, v{t}"); a.e(f"v_add_u32 v{ta}, v{ta}, v{t}")
    a.e(f"v_and_b32 v{t}, 1, v{G}"); a.e(f"v_lshl_add_u32 v{ta}, v{t}, 5, v{ta}")
    a.e(f"v_and_b32 v{t}, 3, v{lane}"); a.e(f"v_lshl_add_u32 v{ta}, v{t}, 3, v{ta}")
    a.e(f"s_mul_i32 s36, s30, {16*72}"); a.e(f"v_add_u32 v{ta}, s36, v{ta}")
    a.e(f"v_lshlrev_b32 v{go}, 3, v{lane}")
    a.e("s_lshr_b32 s44, s38, 4"); a.e("s_lshl_b32 s44, s44, 14"); a.e("s_and_b32 s37, s38, 15"); a.e("s_lshl_b32 s37, s37, 9"); a.e("s_add_u32 s44, s44, s37")
    a.e("s_and_b32 s37, s30, 1"); a.e("s_lshl_b32 s37, s37, 13"); a.e("s_add_u32 s44, s44, s37")
    a.e("s_lshr_b32 s37, s30, 1"); a.e("s_lshl_b32 s37, s37, 26"); a.e("s_add_u32 s44, s44, s37")
    ev = ua; a.e(f"v_not_b32 v{ev}, v{lane}"); a.e(f"v_and_b32 v{ev}, 1, v{ev}")
    ya = v()
    a.e(f"s_mul_i32 s36, s30, {CHB+64}")
    a.e(f"v_mul_u32_u24 v{ya}, 72, v{J}"); a.e(f"v_lshl_add_u32 v{ya}, v{G}, 3, v{ya}"); a.e(f"v_add_u32 v{ya}, s36, v{ya}")
    a.e(f"v_mov_b32 v{J}, 0"); a.e("s_and_b32 s45, s2, 31"); a.e("s_lshl_b32 s45, s45, 7"); a.e(f"s_add_u32 s45, s45, {F_RES}")
    a.e("s_cmp_lg_u32 s30, 0"); a.e("s_cbranch_scc1 CV_w")
    a.e("s_and_b32 s36, s2, 7"); a.e("s_lshl_b32 s36, s36, 12"); a.e(f"s_add_u32 s36, s36, {F_KVT}")
    a.e(f"v_lshlrev_b32 v{pt+1}, 7, v{lane}"); a.e(f"v_add_u32 v{pt+1}, s36, v{pt+1}")
    poll_core(a, pt, [pt + 1], 0xffffffff)
    lds_set(a, LW + 16, 1, pt)
    a.e("CV_w:")
    lds_spin(a, LW + 16, 1, pt)
    mstamp(a)
    for it in range(4): a.e(f"buffer_load_dwordx4 {vr(u+4*it,4)}, v{l16}, s[16:19], 0 offen offset:{1024*it} {os.environ.get('UF', SC + ' nt')}")
    QL = int(os.environ.get("QL", "3"))
    if not QL: load_q(a)
    for it in range(4):
        a.e(f"s_waitcnt vmcnt({(3 if QL else 7)-it})")
        a.e(f"ds_write_b128 v{uw}, {vr(u+4*it,4)} offset:{UOFF + 16*US*it}")
    a.e(f"v_mov_b32 v{pt}, {LW+20}"); a.e(f"v_mov_b32 v{pt+1}, 1")
    a.e("s_mov_b64 exec, 1"); a.e(f"ds_add_u32 v{pt}, v{pt+1}"); a.e("s_mov_b64 exec, -1")
    a.e("s_waitcnt lgkmcnt(0)")
    mstamp(a)
    for x in rdB(0, 0): a.e(x)
    for c_ in range(4):
        a.e(f"s_waitcnt lgkmcnt({3-c_})")
        for mt in range(2): a.e(f"v_mfma_f32_16x16x32_bf16 {vr(acc+8*c_+4*mt,4)}, {vr(dm_+4*mt,4)}, {vr(fb+4*c_,4)}, 0")
    def step(p, nxt, tail, piped=False):
        a.e(f"s_waitcnt lgkmcnt({10 if piped else 0})")
        mf = [(c_, s_, mt) for s_ in range(4) for mt in range(2) for c_ in range(s_, 4)]
        for i, (c_, s_, mt) in enumerate(mf):
            A = acc + 8 * c_ + 4 * mt
            a.e(f"v_mfma_f32_16x16x32_bf16 {vr(A,4)}, {vr(fa+32*p+8*s_+4*mt,4)}, {vr(fb+16*p+4*(c_-s_),4)}, {vr(A,4)}")
            if nxt: a.e(nxt.pop(0))
            if piped and i == 9: a.e("s_waitcnt lgkmcnt(10)")
            for x in tail.pop(i, []) if tail else []: a.e(x)
        assert not nxt and not tail
    a.e("s_mov_b32 s43, 0")
    NU = int(os.environ.get("NU", "4")); HP = int(os.environ.get("HP", "0"))
    if NU:
        a.e("CV_r:")
        for p in range(2):
            rd = rdB(1 - p, p + 1) + rdA(1 - p, p + 1)
            step(p, rd[:HP], [])
            for x in rd[HP:]: a.e(x)
        for x in [f"v_add_u32 v{aa}, 128, v{aa}", f"v_add_u32 v{ba}, {2*US}, v{ba}", "s_add_u32 s43, s43, 1", f"s_cmp_lt_u32 s43, {NU}"]: a.e(x)
        a.e("s_cbranch_scc1 CV_r")
    if QL == 1: load_q(a)
    a.e("CV_l:")
    step(0, rdB(1, 1) + rdA(1, 1), {1: [f"s_cmp_eq_u32 s43, {os.environ.get('VT', '6')}"], 2: ["s_cselect_b64 exec, 1, 0", f"buffer_load_dword v{uw}, v{J}, s[56:59], s45 offen {SC}", "s_mov_b64 exec, -1"]}, True)
    step(1, rdB(0, 2) + rdA(0, 2), {19: [f"v_add_u32 v{aa}, 128, v{aa}"], 5: [f"v_add_u32 v{ba}, {2*US}, v{ba}"], 6: ["s_add_u32 s43, s43, 1"], 7: ["s_cmp_lt_u32 s43, 8"]}, True)
    a.e("s_cbranch_scc1 CV_l")
    mstamp(a)
    a.e("s_waitcnt lgkmcnt(0)")
    for c_ in range(4):
        for mt in range(2):
            A = acc + 8 * c_ + 4 * mt; O = u + 2 * (c_ * 2 + mt)
            a.e(f"v_cvt_pk_bf16_f32 v{O}, v{A}, v{A+1}"); a.e(f"v_cvt_pk_bf16_f32 v{O+1}, v{A+2}, v{A+3}")
            a.e(f"ds_write_b64 v{ya}, {vr(O,2)} offset:{c_*16*72 + mt*32}")
    a.e("s_mov_b32 s53, 0"); a.e("s_waitcnt vmcnt(0)")
    a.e("CV_v:")
    a.e(f"v_readfirstlane_b32 s94, v{uw}"); a.e("s_sub_u32 s94, s94, s52"); a.e("s_and_b32 s37, s94, 0xfffffe01"); a.e("s_cbranch_scc0 CV_k")
    a.e(f"buffer_load_dword v{uw}, v{J}, s[56:59], s45 offen {SC}"); a.e("s_waitcnt vmcnt(0)")
    a.e("s_add_u32 s53, s53, 1"); a.e("s_cmp_lt_u32 s53, s61"); a.e("s_cbranch_scc1 CV_v"); a.e("s_mov_b32 s61, 0"); a.e("s_mov_b32 s94, 0")
    a.e("CV_k:")
    a.e("s_lshr_b32 s94, s94, 1"); a.e("s_add_u32 s37, s94, 65536"); a.e(f"v_mov_b32 v{pt}, {LW+28}"); a.e(f"v_mov_b32 v{pt+1}, s37"); a.e(f"ds_write_b32 v{pt}, v{pt+1}")
    a.e(f"s_cmp_gt_u32 s94, {QUO // 2}"); a.e("s_cselect_b32 s37, 0x2000, 0"); a.e("s_xor_b32 s44, s44, s37")
    lbar(a, 1, pt)
    for i in range(8): a.e(f"ds_read_b64_tr_b16 {vr(fa+32+2*i,2)}, v{ta} offset:{144*i}")
    for i in range(8):
        a.e(f"s_waitcnt lgkmcnt({7-i})")
        a.e(f"v_or_b32 v{fa+32+2*i}, v{ev}, v{fa+32+2*i}")
        a.e(f"buffer_store_dwordx2 {vr(fa+32+2*i,2)}, v{go}, s[12:15], s44 offen {SC}")
        a.e(f"s_add_u32 s44, s44, {GSTR - 262144 if i & 1 else 262144}")
    if PUTE:
        a.e(f"v_mov_b32 v{pt}, {LW+20}"); a.e(f"v_mov_b32 v{pt+1}, 1")
        a.e("s_mov_b64 exec, 1"); a.e(f"ds_add_u32 v{pt}, v{pt+1}"); a.e("s_mov_b64 exec, -1")
    assert v.hi <= 176

PK = 48; W3S = 176
RFO, RYO, RRO, RI, RXA, RXB, RYY, RT = 196, 197, 198, 199, 180, 188, 230, 228
def r_addr(a, full=True):
    t, t2, I, fo, ro, yo = RT, RT + 1, RI, RFO, RRO, RYO
    a.e(f"v_and_b32 v{I}, 7, v0")
    a.e(f"v_lshrrev_b32 v{t}, 6, v0"); a.e(f"v_lshlrev_b32 v{t}, 4, v{t}"); a.e(f"v_bfe_u32 v{t2}, v0, 3, 3"); a.e(f"v_add_u32 v{t}, v{t}, v{t2}")
    a.e("s_lshr_b32 s78, s29, 1"); a.e("s_lshl_b32 s78, s78, 16"); a.e("s_and_b32 s79, s29, 1"); a.e("s_lshl_b32 s79, s79, 7"); a.e("s_add_u32 s78, s78, s79")
    a.e("s_lshr_b32 s79, s30, 1"); a.e("s_lshl_b32 s79, s79, 13"); a.e("s_add_u32 s78, s78, s79")
    a.e(f"v_lshlrev_b32 v{fo}, 8, v{t}"); a.e(f"v_lshl_add_u32 v{fo}, v{I}, 4, v{fo}"); a.e(f"v_add_u32 v{fo}, s78, v{fo}")
    if not full: return
    a.e("s_lshl_b32 s78, s28, 7"); a.e("s_lshl_b32 s79, s29, 3"); a.e("s_add_u32 s78, s78, s79")
    a.e(f"v_add_u32 v{yo}, s78, v{I}"); a.e(f"v_lshlrev_b32 v{ro}, 11, v{yo}")
    a.e(f"v_lshrrev_b32 v{t2}, 2, v{t}"); a.e(f"v_lshlrev_b32 v{t2}, 3, v{t2}"); a.e(f"v_and_b32 v{t}, 3, v{t}"); a.e(f"v_add_u32 v{t}, v{t}, v{t2}")
    a.e(f"v_lshl_add_u32 v{ro}, v{t}, 3, v{ro}")
    a.e(f"v_and_b32 v{yo}, 63, v{yo}"); a.e(f"v_lshlrev_b32 v{yo}, 3, v{yo}"); a.e(f"v_and_b32 v{t2}, 15, v{t}"); a.e(f"v_lshl_add_u32 v{yo}, v{t2}, 9, v{yo}")
    a.e(f"v_lshrrev_b32 v{t2}, 4, v{t}"); a.e(f"v_lshl_add_u32 v{yo}, v{t2}, 14, v{yo}")
    a.e("s_lshr_b32 s78, s28, 3"); a.e("s_lshl_b32 s78, s78, 2"); a.e("s_and_b32 s79, s28, 3"); a.e("s_add_u32 s78, s78, s79"); a.e("s_lshl_b32 s78, s78, 24")
    a.e("s_and_b32 s79, s28, 4"); a.e("s_lshl_b32 s79, s79, 11"); a.e("s_add_u32 s78, s78, s79")
    a.e("s_lshl_b32 s79, s31, 18"); a.e("s_add_u32 s78, s78, s79"); a.e(f"v_add_u32 v{yo}, s78, v{yo}")
def load_y(a, skip_last=False):
    a.srd(80, 4, 8 * GSTR - oHS, off=LB0 + oHS)
    for j in range(2):
        for hh in range(2):
            a.e(f"s_mov_b32 s78, {j*16384 + hh*2048}")
            a.e(f"buffer_load_dwordx2 {vr(RYY+4*j+2*hh,2)}, v{RYO}, s[80:83], s78 offen {os.environ.get('YF', SC)}")
def r_pre(a, l0=False):
    r_addr(a, False)
    lsrd(a, 84, oX3, XSZ); lsrd(a, 88, oX1P, XSZ)
    if l0: a.e("s_cmp_eq_u32 s60, 0"); a.e("s_cselect_b64 exec, -1, 0")
    for j in range(2):
        a.e(f"buffer_load_dwordx4 {vr(RXA+4*j,4)}, v{RFO}, s[84:87], 0 offen offset:{2048*j} {SC}")
        a.e(f"buffer_load_dwordx4 {vr(RXB+4*j,4)}, v{RFO}, s[88:91], 0 offen offset:{2048*j} {SC}")
    if l0: a.e("s_mov_b64 exec, -1")
def r_pre0(a): r_pre(a, True)
def r_pre1(a):
    X = a.lab("rp"); a.e("s_cmp_lg_u32 s60, 0"); a.e(f"s_cbranch_scc1 {X}"); call(a, r_pre); a.e(f"{X}:")

def r_stage(a, final):
    v = VA(6)
    t = v(); t2 = v(); I = RI; fo = RFO; ro = RRO; pt = v(4, 2)
    xa = RXA; xb = RXB; yy = RYY; x = 206; yf = 222; w = v(16, 4); tmp = v()
    pre = final == "pre"
    S = v(2, 2); pp = v(2, 2); qq = v(2, 2); st = w; mean = v(2, 2); rs = mean + 1; var = v(); sw = v(); sr = v()
    def part(src, n):
        a.e(f"v_pk_add_f32 {vr(pp,2)}, {vr(src,2)}, {vr(src+2,2)}"); a.e(f"v_pk_mul_f32 {vr(qq,2)}, {vr(src,2)}, {vr(src,2)}")
        for i in range(1, 8):
            if i > 1: a.e(f"v_pk_add_f32 {vr(pp,2)}, {vr(pp,2)}, {vr(src+2*i,2)}")
            a.e(f"v_pk_fma_f32 {vr(qq,2)}, {vr(src+2*i,2)}, {vr(src+2*i,2)}, {vr(qq,2)}")
        a.e(f"v_add_f32 v{S}, v{pp}, v{pp+1}"); a.e(f"v_add_f32 v{S+1}, v{qq}, v{qq+1}")
        for k in range(2): a.e(f"v_add_f32_dpp v{S+k}, v{S+k}, v{S+k} row_ror:8 row_mask:0xf bank_mask:0xf")
        for op in ("v_permlane16_swap_b32", "v_permlane32_swap_b32"):
            for k in range(2): a.e(f"v_mov_b32 v{pp+k}, v{S+k}")
            for k in range(2): a.e(f"{op} v{S+k}, v{pp+k}")
            a.e(f"v_pk_add_f32 {vr(S,2)}, {vr(S,2)}, {vr(pp,2)}")
        a.e(f"ds_write_b64 v{sw}, {vr(S,2)} offset:{n*512}")
    def comb(n):
        for k in range(4): a.e(f"ds_read_b128 {vr(st+4*k,4)}, v{sr} offset:{n*512+16*k}")
        a.e("s_waitcnt lgkmcnt(0)")
        for k in range(4): a.e(f"v_pk_add_f32 {vr(st+4*k,2)}, {vr(st+4*k,2)}, {vr(st+4*k+2,2)}")
        a.e(f"v_pk_add_f32 {vr(st,2)}, {vr(st,2)}, {vr(st+4,2)}"); a.e(f"v_pk_add_f32 {vr(st+8,2)}, {vr(st+8,2)}, {vr(st+12,2)}")
        a.e(f"v_pk_add_f32 {vr(st,2)}, {vr(st,2)}, {vr(st+8,2)}")
        a.e(f"v_mul_f32 v{mean}, {f32(1/1024)}, v{st}"); a.e(f"v_mul_f32 v{var}, {f32(1/1024)}, v{st+1}")
        a.e(f"v_fma_f32 v{var}, -v{mean}, v{mean}, v{var}"); a.e(f"v_max_f32 v{var}, 0, v{var}")
    SUBM = f"{vr(mean,2)} op_sel_hi:[1,0] neg_lo:[0,1] neg_hi:[0,1]"; MULR = f"{vr(mean,2)} op_sel:[0,1] op_sel_hi:[1,1]"
    if pre: a.e("s_waitcnt lgkmcnt(0)")
    if final is not True:
        a.e(f"v_lshlrev_b32 v{sr}, 6, v{I}"); a.e(f"v_add_u32 v{sr}, {AUX+2048}, v{sr}")
        a.e(f"s_lshl_b32 s35, s30, 3"); a.e(f"v_add_u32 v{sw}, s35, v{sr}")
    if pre:
        a.e("s_waitcnt vmcnt(0)")
        for i in range(8): unpack(a, x + 2 * i, x + 2 * i + 1, xa + i)
        part(x, 0)
        a.e("s_waitcnt lgkmcnt(0)"); a.e("s_barrier")
        return
    if not final:
        a.e(f"s_cmp_eq_u32 s60, 0"); a.e(f"s_cbranch_scc1 R_l0")
    else:
        a.e(f"s_load_dwordx2 s[6:7], s[0:1], {D_OUT}")
    lsrd(a, 8, oP0, XSZ, prev=True); lsrd(a, 12, oP1, XSZ, prev=True)
    lsrd(a, 20, oX3, XSZ); a.e("s_mov_b32 s78, 0x3f80"); a.e("s_mov_b32 s79, 0x3f800000")
    if "r" not in DP: a.e("s_waitcnt vmcnt(0)")
    for i in range(8):
        if not final: unpack(a, yf + 2 * i, yf + 2 * i + 1, yy + i)
        unpack(a, x + 2 * i, x + 2 * i + 1, xa + i); unpack(a, w + 2 * i, w + 2 * i + 1, xb + i)
        a.e(f"v_pk_add_f32 {vr(x+2*i,2)}, {vr(x+2*i,2)}, {vr(w+2*i,2)}")
    lds_ = [f"buffer_load_dwordx4 {vr(r+4*j,4)}, v{fo}, s[{q}:{q+3}], 0 offen offset:{2048*j} {SC}" for j in range(2) for r, q in ((xa, 8), (xb, 12))]
    if "r" in DP: data_poll(a, lds_, (xa, xa + 4, xb, xb + 4), t, int(os.environ.get("RNAP", "4")), int(os.environ.get("RFIRST", "24")), int(os.environ.get("RCAN", "0"))); mstamp(a)
    else:
        poll(a, ST_G4, pt, prev=True)
        mstamp(a)
        for x_ in lds_: a.e(x_)
    for i in range(8):
        if i % 4 == 0 and "r" not in DP: a.e(f"s_waitcnt vmcnt({2 - i // 2})")
        u = w + 4 * (i & 3)
        if DOT:
            if i == 0:
                for r_ in (xa, xb):
                    for k in range(16): a.e(f"v_dot2_f32_bf16 v{x+k}, v{r_+k//2}, s{78+(k&1)}, v{x+k}")
                a.e("s_nop 2")
            continue
        unpack(a, u, u + 1, xa + i); unpack(a, u + 2, u + 3, xb + i)
        a.e(f"v_pk_add_f32 {vr(u,2)}, {vr(u,2)}, {vr(u+2,2)}")
        a.e(f"v_pk_add_f32 {vr(x+2*i,2)}, {vr(x+2*i,2)}, {vr(u,2)}")
        if final: a.e(f"v_cvt_pk_bf16_f32 v{xa+i}, v{x+2*i}, v{x+2*i+1}")
        else: round2(a, x + 2 * i, x + 2 * i + 1, tmp)
    if final:
        a.e("s_waitcnt lgkmcnt(0)")
        a.srd(20, 6, 4 * MB)
        OS = os.environ.get("OS", "sc1")
        if os.environ.get("OWIDE", "1") == "1":
            a.e(f"v_bfe_u32 v{t}, v1, 3, 1"); a.e(f"v_cmp_eq_u32 vcc, 1, v{t}")
            for j in range(2):
                lo, hi = xa + 4 * j, xa + 4 * j + 2
                for e in range(2):
                    a.e(f"v_cndmask_b32 v{x+e}, v{hi+e}, v{lo+e}, vcc")
                for e in range(2):
                    a.e(f"v_mov_b32_dpp v{x+2+e}, v{x+e} row_ror:8 row_mask:0xf bank_mask:0xf")
                for e in range(2):
                    a.e(f"v_cndmask_b32 v{x+4+e}, v{lo+e}, v{x+2+e}, vcc"); a.e(f"v_cndmask_b32 v{hi+e}, v{x+2+e}, v{hi+e}, vcc")
                for e in range(2): a.e(f"v_mov_b32 v{lo+e}, v{x+4+e}")
            a.e(f"v_bfe_u32 v{t2}, v1, 4, 1"); a.e(f"v_lshlrev_b32 v{t}, 5, v{t}"); a.e(f"v_lshl_add_u32 v{t}, v{t2}, 4, v{t}")
            a.e(f"v_and_b32 v{t2}, 0xffffffc0, v{ro}"); a.e(f"v_add_u32 v{t}, v{t}, v{t2}")
            for j in range(2): a.e(f"buffer_store_dwordx4 {vr(xa+4*j,4)}, v{t}, s[20:23], 0 offen offset:{128*j} {OS}")
        else:
            for j in range(4): a.e(f"buffer_store_dwordx2 {vr(xa+2*j,2)}, v{ro}, s[20:23], 0 offen offset:{128*(j>>1) + 32*(j&1)} {OS}")
        return v.hi
    part(x, 0)
    if os.environ.get("RST"): mstamp(a)
    a.e("s_waitcnt lgkmcnt(0)"); a.e("s_barrier")
    if os.environ.get("RST"): mstamp(a)
    comb(0)
    ln_finish(a, mean, var, rs)
    if os.environ.get("RST"): mstamp(a)
    a.e(f"v_mul_f32 v{mean}, v{mean}, v{rs}")
    for i in range(8): a.e(f"v_pk_fma_f32 {vr(w+2*i,2)}, {vr(x+2*i,2)}, {vr(mean,2)}, {vr(mean,2)} op_sel:[0,1,0] op_sel_hi:[1,1,0] neg_lo:[0,0,1] neg_hi:[0,0,1]")
    for i in range(8):
        D = w + 2 * i
        a.e(f"v_pk_fma_f32 {vr(x+2*i,2)}, {vr(D,2)}, {vr(yf+2*i,2)}, {vr(x+2*i,2)}")
        a.e(f"v_cvt_pk_bf16_f32 v{xa+i}, v{x+2*i}, v{x+2*i+1}")
        if i % 4 == 1 and DP: mark(a, xa + i - 1, 0)
        if i % 4 == 3: a.e(f"buffer_store_dwordx4 {vr(xa+i-3,4)}, v{fo}, s[20:23], 0 offen offset:{2048*(i//4)} {SC}")
    if os.environ.get("RST"): mstamp(a)
    a.e("s_branch R_s2")
    a.e("R_l0:")
    for i in range(8): unpack(a, x + 2 * i, x + 2 * i + 1, xa + i)
    part(x, 0)
    a.e("s_waitcnt lgkmcnt(0)")
    st_ = st; st = yf
    a.e("s_lshl_b32 s36, s28, 10"); a.e(f"s_add_u32 s36, s36, {F_FRONT}"); a.e("s_lshl_b32 s53, s30, 7"); a.e("s_add_u32 s36, s36, s53"); a.e(f"v_mov_b32 v{st+4}, s36")
    lds_spin(a, LW + 28, 65536, st, dst=94)
    if STAMP: a.e("s_and_b32 s95, s94, 0xffff")
    a.e(f"s_cmp_gt_u32 s94, {65536 + QUO // 2}"); a.e("s_cselect_b32 s94, 1, 0")
    a.e("s_lshl_b32 s53, s94, 13"); a.e(f"v_xor_b32 v{RYO}, s53, v{RYO}")
    a.e("s_waitcnt vmcnt(0)"); a.e("s_barrier")
    poll_core(a, st, [st + 4], 1, cnt=32, nap=FSLEEP)
    load_y(a)
    group_off(a, 55, 28)
    a.e("s_add_u32 s62, s4, s55"); a.e("s_addc_u32 s63, s5, 0")
    a.e("s_sub_u32 s36, s28, 1"); a.e("s_max_i32 s36, s36, 0"); group_off(a, 92, 36); a.e("s_sub_u32 s92, s92, s55")
    a.e("s_add_u32 s36, s28, 1"); a.e("s_min_u32 s36, s36, 15"); group_off(a, 93, 36); a.e("s_sub_u32 s93, s93, s55")
    a.e(f"s_add_u32 s55, s55, {oSM}")
    lsrd(a, 20, oX3, XSZ)
    st = st_; comb(0); ln_finish(a, mean, var, rs); st = yf
    for i in range(8):
        D = w + 2 * i
        a.e(f"v_pk_add_f32 {vr(D,2)}, {vr(x+2*i,2)}, {SUBM}"); a.e(f"v_pk_mul_f32 {vr(D,2)}, {vr(D,2)}, {MULR}")
    a.e("s_barrier")
    mstamp(a)
    a.e("s_waitcnt vmcnt(0)")
    for i in range(8):
        D = w + 2 * i
        unpack(a, st, st + 1, yy + i)
        a.e(f"v_pk_fma_f32 {vr(x+2*i,2)}, {vr(D,2)}, {vr(st,2)}, {vr(x+2*i,2)}"); a.e(f"v_cvt_pk_bf16_f32 v{xa+i}, v{x+2*i}, v{x+2*i+1}")
        if i % 4 == 1 and DP: mark(a, xa + i - 1, 0)
        if i % 4 == 3: a.e(f"buffer_store_dwordx4 {vr(xa+i-3,4)}, v{fo}, s[20:23], 0 offen offset:{2048*(i//4)} {SC}")
    a.e("R_s2:")
    st = st_
    for i in range(8): unpack(a, x + 2 * i, x + 2 * i + 1, xa + i)
    part(x, 1)
    if "1" in DP:
        a.e("s_waitcnt lgkmcnt(0)"); a.e("s_barrier")
        a.e("s_cmp_lg_u32 s30, 6"); a.e("s_cbranch_scc1 R_n6"); a.e("s_cmp_lg_u32 s60, 0"); a.e("s_cbranch_scc1 R_n6")
        a.e("s_lshl_b32 s53, s29, 7"); a.e(f"s_add_u32 s53, s53, {F_CS}"); a.e(f"v_mov_b32 v{pt}, 1"); a.e(f"v_mov_b32 v{pt+1}, 0")
        a.e("s_mov_b64 exec, 1"); a.e(f"buffer_atomic_add v{pt}, v{pt+1}, s[56:59], s53 offen {SC}"); a.e("s_mov_b64 exec, -1")
        a.e("R_n6:")
    else:
        publish(a, ST_R, 8, pt)
        a.e("s_barrier")
    a.e(f"s_cmp_lg_u32 s30, {7 if '1' in DP else 0}"); a.e("s_cbranch_scc1 R_nl")
    comb(1)
    outv = yf + 2; s3 = v(); m4 = v(); v4_ = v(); r4 = v()
    assert v.hi <= PK
    a.e(f"v_mov_b32 v{m4}, v{mean}"); a.e(f"v_mov_b32 v{v4_}, v{var}")
    ln_finish(a, mean, var, rs, s3)
    a.e(f"v_sub_f32 v{m4}, v{m4}, v{mean}"); a.e(f"v_mul_f32 v{m4}, v{m4}, v{rs}")
    a.e(f"v_mul_f32 v{v4_}, v{v4_}, v{rs}"); a.e(f"v_mul_f32 v{v4_}, v{v4_}, v{rs}")
    ln_finish(a, m4, v4_, r4)
    a.e(f"v_mov_b32 v{outv}, v{mean}"); a.e(f"v_mov_b32 v{outv+1}, v{rs}")
    a.e(f"v_fma_f32 v{outv+2}, v{m4}, v{s3}, v{mean}"); a.e(f"v_mul_f32 v{outv+3}, v{rs}, v{r4}")
    lsrd(a, 24, oLNS, 2048)
    a.e("s_lshl_b32 s36, s29, 3"); a.e(f"v_add_u32 v{t}, s36, v{I}"); a.e(f"v_lshlrev_b32 v{t}, 4, v{t}")
    a.e("s_mov_b64 exec, 0xff")
    a.e(f"buffer_store_dwordx4 {vr(outv,4)}, v{t}, s[24:27], 0 offen {SC}")
    a.e("s_mov_b64 exec, -1")
    publish(a, ST_R2, 1, pt)
    a.e("R_nl:")
    return v.hi

TAB = int(os.environ.get("TAB", "1")); TV = 248
def lead(seq, r, L, P=4):
    if L == 0: return list(seq)
    return [x for _, x in sorted(((i - L - 0.5 if i % P == r else i), x) for i, x in enumerate(seq))]
def order3(j, gi):
    mode, L = eval(os.environ.get("O3", "('r',0)"))
    if mode == "r": return [(gi + t) & 15 for t in range(16)]
    if mode == "n": return [gi] + [x for x in lead(range(16), (j + gi) & 3, L) if x != gi]
    if mode == "s": return [gi] + lead([x for x in range(16) if x != gi], (j + gi) & 3, L)
    if mode == "h": return [gi] + [x for x in lead([(t + (gi & 8)) & 15 for t in range(16)], (j + gi) & 3, L) if x != gi]
def order4(j, n):
    mode, L = eval(os.environ.get("O4", "('n',1)"))
    own = [(7 * n + i, 7 * n + 4 + i) for i in range(3)]
    ps = [(n + t) & 7 for t in range(8)] if mode == "r" else list(range(8))
    ab = [(7 * p + i, 7 * p + 4 + i) for i in range(2) for p in ps if p != n]
    c = [7 * p + o for p in ps for o in (2, 6, 3) if p != n or o == 3]
    rest = ab + [(c[2 * i], c[2 * i + 1]) for i in range(11)]
    if mode != "r": rest = lead(rest, (j + n + int(os.environ.get("O4R", "0"))) & 3, L)
    return own + rest
L4 = eval(os.environ.get("O4", "('n',1)"))[1] if TAB else 0
def tab_data(a):
    a.lines.append(".p2align 6"); a.lines.append("K_tab:")
    for gi in range(16):
        for j in range(4):
            o3 = order3(j, gi) + [0] * 16; o4 = order4(j, gi & 7) + [(0, 0)] * 4
            assert sorted(o3[:16]) == list(range(16)) and sorted(sum(o4[:28], ())) == list(range(56))
            a.lines.append(".short " + ",".join(str(o3[t] | o4[t][0] << 4 | o4[t][1] << 10) for t in range(32)))
def tab_load(a):
    a.e("s_getpc_b64 s[34:35]"); a.e("K_tpc:")
    a.e("s_lshl_b32 s36, s29, 2"); a.e("s_and_b32 s37, s28, 3"); a.e("s_add_u32 s36, s36, s37"); a.e("s_lshl_b32 s36, s36, 6")
    a.e("s_add_u32 s36, s36, K_tab-K_tpc"); a.e("s_add_u32 s34, s34, s36"); a.e("s_addc_u32 s35, s35, 0")
    a.e(f"v_and_b32 v{TV}, 31, v1"); a.e(f"v_lshlrev_b32 v{TV}, 1, v{TV}"); a.e(f"global_load_ushort v{TV+3}, v{TV}, s[34:35]")
def tab_make(a, w):
    T, x = TV + 3, TV + 4
    if not w:
        a.e(f"v_bfe_u32 v{x}, v{T}, 2, 2"); a.e(f"v_lshlrev_b32 v{TV}, 14, v{x}"); a.e(f"v_and_b32 v{x}, 3, v{T}"); a.e(f"v_lshl_add_u32 v{TV}, v{x}, 11, v{TV}")
        for lw in range(2):
            a.e(f"v_bfe_u32 v{x}, v{T}, {7+6*lw}, 3"); a.e(f"v_lshlrev_b32 v{TV+1+lw}, 14, v{x}"); a.e(f"v_bfe_u32 v{x}, v{T}, {4+6*lw}, 3"); a.e(f"v_lshl_add_u32 v{TV+1+lw}, v{x}, 10, v{TV+1+lw}")
    else:
        a.e(f"v_and_b32 v{x}, 15, v{T}"); a.e(f"v_mul_u32_u24 v{TV}, {64*7168}, v{x}")
        a.e("s_and_b32 s36, s30, 1"); a.e("s_mul_i32 s36, s36, 6"); a.e("s_add_u32 s36, s36, 4"); a.e(f"v_bfe_u32 v{x}, v{T}, s36, 6")
        assert all((q * 37) >> 8 == q // 7 for q in range(56))
        a.e(f"v_mul_u32_u24 v{TV+2}, 37, v{x}"); a.e(f"v_lshrrev_b32 v{TV+2}, 8, v{TV+2}"); a.e(f"v_mul_u32_u24 v{TV+2}, 7, v{TV+2}"); a.e(f"v_sub_u32 v{TV+2}, v{x}, v{TV+2}")
        a.e(f"v_cmp_eq_u32 vcc, 3, v{TV+2}"); a.e(f"v_cndmask_b32 v{TV+2}, 0, 1, vcc"); a.e(f"v_lshl_add_u32 v{TV+1}, v{x}, 16, v{TV+2}")
        for p_ in eval(os.environ.get("W4SKIP", "[]")): a.e("s_mov_b32 s36, 0x40000000"); a.e(f"v_writelane_b32 v{TV+1}, s36, {p_}")
def rot_init(a, which):
    if which == 3 and TAB: a.e("s_mov_b32 s44, 0")
    elif which == 3 and OWN3: a.e("s_mov_b32 s44, s29")
    elif which != 4: a.e("s_mov_b32 s44, s67")
    else: a.e("s_mov_b32 s44, 0")
def rot_next(a, which):
    a.e("s_add_u32 s44, s44, 1")
    if which != 4: a.e("s_and_b32 s44, s44, 15")
def kb4(a, d, lw):
    a.e("s_lshl_b32 s45, s44, 1"); a.e(f"s_add_u32 s45, s45, {lw}"); a.e("s_sub_u32 s45, s45, 32")
    a.e("s_mul_i32 s46, s45, 86"); a.e("s_lshr_b32 s46, s46, 8")
    a.e("s_mul_i32 s47, s46, 3"); a.e("s_sub_u32 s47, s45, s47"); a.e("s_lshl_b32 s47, s47, 2"); a.e("s_lshr_b32 s47, 0x362, s47"); a.e("s_and_b32 s47, s47, 7")
    a.e("s_cmp_ge_u32 s44, 10"); a.e("s_cselect_b32 s45, 9, 2"); a.e("s_cselect_b32 s51, 1, 0"); a.e("s_sub_u32 s45, s44, s45")
    a.e("s_cmp_lt_u32 s44, 3"); a.e("s_cselect_b32 s45, 0, s45"); a.e("s_cselect_b32 s51, s44, s51")
    a.e(f"s_lshl2_add_u32 s51, {lw}, s51")
    a.e("s_cmp_lt_u32 s44, 17"); a.e("s_cselect_b32 s47, s51, s47"); a.e("s_cselect_b32 s46, s45, s46")
    a.e("s_add_u32 s46, s46, s33"); a.e("s_and_b32 s46, s46, 7"); a.e("s_mul_i32 s46, s46, 7"); a.e(f"s_add_u32 s{d}, s46, s47")
assert all((q * 86) >> 8 == q // 3 for q in range(24))
WVB = {1: 238, 2: 238, 4: 239, 3: 241}
WV = 245
def w_lanes(a):
    t, t2 = WV + 8, WV + 9
    R = WVB[1]
    a.e(f"v_lshrrev_b32 v{t}, 3, v1"); a.e(f"v_lshlrev_b32 v{R}, 11, v{t}")
    a.e(f"v_and_b32 v{t}, 6, v{t}"); a.e(f"v_and_b32 v{t2}, 7, v1"); a.e(f"v_xor_b32 v{t}, v{t}, v{t2}"); a.e(f"v_lshl_add_u32 v{R}, v{t}, 4, v{R}")
    R = WVB[4]
    for p in range(2):
        a.e(f"v_lshrrev_b32 v{t}, 4, v1"); a.e(f"v_lshlrev_b32 v{R+p}, 11, v{t}")
        a.e(f"v_add_u32 v{t}, {4*p}, v{t}"); a.e(f"v_lshlrev_b32 v{t}, 1, v{t}"); a.e(f"v_and_b32 v{t2}, 15, v1"); a.e(f"v_xor_b32 v{t}, v{t}, v{t2}")
        a.e(f"v_lshl_add_u32 v{R+p}, v{t}, 4, v{R+p}")
    R = WVB[3]
    assert all((p * 2341) >> 16 == p // 28 for p in range(448))
    for ii in range(7):
        a.e(f"v_add_u32 v{t2}, {64*ii}, v1"); a.e(f"v_mul_u32_u24 v{t}, 2341, v{t2}"); a.e(f"v_lshrrev_b32 v{t}, 16, v{t}")
        a.e(f"v_mul_u32_u24 v{R+ii}, 28, v{t}"); a.e(f"v_sub_u32 v{t2}, v{t2}, v{R+ii}")
        a.e(f"v_mul_u32_u24 v{R+ii}, 7168, v{t}")
        a.e(f"v_lshrrev_b32 v{t}, 1, v{t}"); a.e(f"v_and_b32 v{t}, 2, v{t}"); a.e(f"v_xor_b32 v{t2}, v{t2}, v{t}")
        a.e(f"v_lshl_add_u32 v{R+ii}, v{t2}, 4, v{R+ii}")
def w_srd(a, which):
    c = CFG[which]
    a.e(f"s_mov_b64 s[12:13], s[{66+2*which}:{67+2*which}]")
    a.e(f"s_mov_b32 s14, {c['KBT'] * 32 * c['LDW']}"); a.e("s_mov_b32 s15, 0x20000")
def w_setup(a, which, pre=True, lo=0):
    c = CFG[which]; STB = c["STB"]; BW = STB // 2
    w_srd(a, which)
    a.e("s_and_b32 s35, s30, 1")
    a.e(f"s_mul_i32 s38, s{(0, 99, 29, 29, 33)[which]}, {c['RB']}");
    if which != 4: a.e(f"s_mul_i32 s41, s35, {32*c['LDW']}"); a.e("s_add_u32 s38, s38, s41")
    if which == 4: a.e(f"s_mul_i32 s41, s31, {1792*c['LDW']}"); a.e("s_add_u32 s38, s38, s41")
    a.e(f"s_mul_i32 s41, s35, {BW}"); a.e(f"s_add_u32 s41, s41, {c['WB']}")
    a.e("s_mov_b32 s42, 0"); rot_init(a, which)
    if not pre: return
    NP = c["NPRE"]
    a.e("s_mov_b32 s49, s44"); a.e("s_and_b32 s43, s28, 3"); a.e(f"s_mul_i32 s43, s43, {NP - lo}"); a.e("s_lshr_b32 s43, s43, 2"); a.e(f"s_mov_b32 s50, {lo}")
    if not WROT: a.e("s_mov_b32 s43, 0")
    if lo: a.e(f"s_add_u32 s43, s43, {lo}")
    L = a.lab("wpre"); a.e(f"{L}:")
    a.e(f"s_mul_i32 s42, s43, {STB}"); a.e("s_add_u32 s44, s49, s43")
    if which != 4: a.e("s_and_b32 s44, s44, 15")
    w_issue(a, which, pace=PACES.get(which, PACE))
    a.e("s_add_u32 s43, s43, 1"); a.e(f"s_cmp_eq_u32 s43, {NP}"); a.e(f"s_cselect_b32 s43, {lo}, s43")
    a.e("s_add_u32 s50, s50, 1"); a.e(f"s_cmp_lt_u32 s50, {NP}"); a.e(f"s_cbranch_scc1 {L}")
    mstamp(a)
    a.e(f"s_mov_b32 s42, {(NP % c['NW']) * STB}"); a.e(f"s_add_u32 s44, s49, {NP}")
    if which != 4: a.e("s_and_b32 s44, s44, 15")
YP = int(os.environ.get("YP", "0"))
def ypause(a):
    if not YP: return
    X = a.lab("yp")
    a.e(f"v_mov_b32 v6, {LW+4}"); a.e("ds_read2_b32 v[14:15], v6 offset0:0 offset1:1"); a.e("s_waitcnt lgkmcnt(0)"); a.e("v_readfirstlane_b32 s53, v15")
    a.e(f"s_cmp_lt_u32 s53, {YP}"); a.e(f"s_cbranch_scc1 {X}")
    lds_spin(a, LW + 4, 16, 6, nap=2)
    a.e(f"{X}:")
def park_load(a, pace):
    w_srd(a, 2)
    a.e("s_and_b32 s35, s30, 3"); a.e("s_lshl_b32 s35, s35, 19"); a.e("s_lshl_b32 s39, s29, 7"); a.e("s_add_u32 s39, s39, s35")
    for q in range(32):
        a.e(f"buffer_load_dwordx4 {vr(PK+4*q,4)}, v{WVB[2]}, s[12:15], s39 offen"); a.e("s_add_u32 s39, s39, 16384")
        if pace and q % 4 == 3: a.e(f"s_waitcnt vmcnt({pace})"); ypause(a)
def park(a): park_load(a, int(os.environ.get("PKP", "8")))
def late_park(a):
    X = a.lab("lp"); a.e("s_cmp_lg_u32 s60, 0"); a.e(f"s_cbranch_scc1 {X}"); call(a, park); a.e(f"{X}:")
def after_g1(a):
    c = CFG[3]
    if os.environ.get("UPD0"): a.e("s_sleep " + os.environ["UPD0"])
    w_srd(a, 3)
    a.e(f"v_readlane_b32 s36, v{TV+3}, 0"); a.e(f"v_readlane_b32 s37, v{TV+3}, 1"); a.e(f"v_readlane_b32 s34, v{TV+3}, 2")
    a.e("s_and_b32 s35, s30, 3"); a.e(f"s_mul_i32 s38, s35, {16*7168}"); a.e("s_mul_i32 s39, s29, 448"); a.e("s_add_u32 s38, s38, s39")
    for r in (36, 37, 34): a.e(f"s_and_b32 s{r}, s{r}, 15"); a.e(f"s_mul_i32 s{r}, s{r}, {64*7168}"); a.e(f"s_add_u32 s{r}, s{r}, s38")
    a.e("s_mul_i32 s39, s35, 7168"); a.e(f"s_add_u32 m0, s39, {c['WB'] + c['S0'] * c['STB']}")
    for i in range(7):
        if i: a.e("s_add_u32 m0, m0, 1024")
        a.e(f"buffer_load_dwordx4 v{WVB[3]+i}, s[12:15], s36 offen lds")
    for i in range(7 if W3N == 2 else 0): a.e(f"buffer_load_dwordx4 {vr(W3S+4*i,4)}, v{WVB[3]+i}, s[12:15], s37 offen")
    a.e("s_lshr_b32 s36, s67, 2"); a.e("s_sub_u32 s36, s35, s36"); a.e("s_and_b32 s36, s36, 3"); a.e("s_lshl_b32 s36, s36, 15"); a.e(f"v_add_u32 v6, s36, v2")
    if W33 == 1:
        for i in range(7): a.e(f"buffer_load_dwordx4 {vr(16+4*i,4)}, v{WVB[3]+i}, s[12:15], s34 offen")
    a.e(f"s_waitcnt vmcnt({21 if W33 == 1 else 7 * W3N})")
    if os.environ.get("UPD"): a.e("s_sleep " + os.environ["UPD"])
    for q in range(32): a.e(f"ds_write_b128 v6, {vr(PK+4*q,4)} offset:{CFG[2]['WB'] + 1024*q}")
    a.e("s_waitcnt lgkmcnt(0)")
W3N = int(os.environ.get("W3N", "2"))
W33 = int(os.environ.get("W33", "0"))
def third_late(a):
    a.e(f"s_sleep {W33}")
    for i in range(7): a.e(f"buffer_load_dwordx4 {vr(16+4*i,4)}, v{WVB[3]+i}, s[12:15], s34 offen")
def third_put(a):
    c = CFG[3]
    for i in range(7): a.e(f"ds_write_b128 v7, {vr(16+4*i,4)} offset:{c['STB'] + 1024*i}")
    a.e("s_waitcnt lgkmcnt(0)")
def after_g2(a):
    c = CFG[3]
    if W3N == 1:
        a.e("s_and_b32 s35, s30, 3"); a.e("s_mul_i32 s39, s35, 7168"); a.e(f"s_add_u32 m0, s39, {c['WB'] + (c['S0'] + 1) % c['NW'] * c['STB']}")
        for i in range(7):
            if i: a.e("s_add_u32 m0, m0, 1024")
            a.e(f"buffer_load_dwordx4 v{WVB[3]+i}, s[12:15], s37 offen lds")
        return
    a.e("s_and_b32 s35, s30, 3"); a.e("s_mul_i32 s39, s35, 7168"); a.e(f"s_add_u32 s39, s39, {c['WB'] + (c['S0'] + 1) % c['NW'] * c['STB']}"); a.e("v_add_u32 v7, s39, v2")
    for i in range(7): a.e(f"ds_write_b128 v7, {vr(W3S+4*i,4)} offset:{1024*i}")
    a.e("s_waitcnt lgkmcnt(0)")
SUBX = {}
def call(a, f):
    SUBX[f.__name__] = f; a.e(f"s_call_b64 s[76:77], SUB_{f.__name__}")
def w1_slots(a, js, pace=0):
    for j in js:
        a.e(f"s_mov_b32 s42, {j*8192}"); a.e("s_mov_b32 s44, s67"); a.e(f"s_add_u32 s44, s44, {j}"); a.e("s_and_b32 s44, s44, 15")
        call_issue(a, w_issue, 1)
        if pace: a.e(f"s_waitcnt vmcnt({pace})")
def w1_done(a):
    a.e("s_mov_b32 s42, 0"); a.e("s_mov_b32 s44, s67"); a.e("s_add_u32 s44, s44, 13"); a.e("s_and_b32 s44, s44, 15")
class Rec:
    def __init__(s_): s_.l = []
    def e(s_, x): s_.l.append(x)
    srd = Asm.srd
def w_parts(which, direct=False):
    c = CFG[which]; STB = c["STB"]; n = STB // 2048; LDW = c["LDW"]; b = Rec()
    b.e("s_add_u32 s19, s41, s42")
    arm = ["s_mov_b32 m0, s19", "s_mov_b32 s39, s16"]
    if which == 4 and TAB:
        b.e(f"v_readlane_b32 s16, v{TV+1}, s44")
        b.e("s_bitcmp1_b32 s16, 0"); b.e(f"s_cselect_b32 s17, {8*2048}, {4*2048}".replace(f"{4*2048}", "s45")); b.e(f"s_cselect_b32 s18, {-20*2048}, s45")
        b.e("s_andn2_b32 s16, s16, 1"); b.e("s_add_u32 s16, s16, s38")
        b.l.insert(0, f"s_mov_b32 s45, {4*2048}")
        arm += ["s_mov_b32 s32, s17", "s_mov_b32 s3, s18"]
        if os.environ.get("W4SKIP"): arm += ["s_bitcmp1_b32 s16, 30", "s_cselect_b64 exec, 0, -1"]
    elif which == 3 and TAB and not direct:
        b.e(f"v_readlane_b32 s16, v{TV}, s44"); b.e("s_add_u32 s16, s16, s38")
    elif which == 4:
        b.e("s_and_b32 s40, s30, 1"); kb4(b, 16, "s40")
        b.e(f"s_mul_i32 s16, s16, {32*LDW}"); b.e("s_add_u32 s16, s16, s38")
        b.e("s_cmp_eq_u32 s47, 3"); b.e("s_cselect_b32 s17, 8, 4"); b.e("s_cselect_b32 s18, -20, 4")
        b.e("s_lshl_b32 s17, s17, 11"); b.e("s_lshl_b32 s18, s18, 11")
        arm += ["s_mov_b32 s32, s17", "s_mov_b32 s3, s18"]
    else:
        b.e(f"s_mul_i32 s16, s44, {64*LDW}"); b.e("s_add_u32 s16, s16, s38")
    if f"w{which}" in os.environ.get("HOT", ""): b.e("s_mov_b32 s16, s38")
    rot_next(b, which)
    b.e(f"s_add_u32 s42, s42, {STB}"); b.e(f"s_cmp_eq_u32 s42, {c['NW']*STB}"); b.e("s_cselect_b32 s42, 0, s42")
    fire = []
    for i in range(n):
        g = []
        if i:
            g.append("s_add_u32 m0, m0, 1024")
            if which in (1, 2): g.append(f"s_add_u32 s39, s39, {8*LDW}")
            elif which == 4: g.append(f"s_add_u32 s39, s39, s{3 if i == 4 else 32}")
            elif i == 7: g.append(f"s_add_u32 s39, s39, {16*LDW}")
        vo = WVB[which] + (0 if which in (1, 2) else (i & 1) if which == 4 else i % 7)
        fire.append(g + [f"buffer_load_dwordx4 v{vo}, s[12:15], s39 offen lds"])
    if f"w{which}" in os.environ.get("NOLD", ""): fire = [[x for x in g if not x.startswith("buffer_load")] + ["s_nop 0"] for g in fire]
    return b.l, arm, fire
def w_issue(a, which, pace=0, direct=False):
    prep, arm, fire = w_parts(which, direct)
    for x in prep + arm: a.e(x)
    for i, g in enumerate(fire):
        for x in g: a.e(x)
        if pace and (i % 4 == 3 or i == len(fire) - 1): a.e(f"s_waitcnt vmcnt({pace})")

def w_bases(a, which, dst, swn, ntl, t, t2):
    c = CFG[which]; RB = c["RB"]
    a.e(f"v_lshrrev_b32 v{t}, 2, v1")
    a.e(f"v_mul_u32_u24 v{dst}, {RB}, v{t}"); a.e(f"v_and_b32 v{t2}, 3, v1"); a.e(f"v_lshl_add_u32 v{dst}, v{t2}, 3, v{dst}")
    a.e(f"v_add_u32 v{dst}, {c['WB']}, v{dst}")
    if which == 3:
        a.e(f"s_mul_i32 s36, s{swn}, {7*32}"); a.e(f"v_add_u32 v{dst}, s36, v{dst}")
        a.e(f"v_bfe_u32 v{t}, v1, 4, 1"); a.e(f"v_lshlrev_b32 v{t}, 5, v{t}")
        a.e(f"s_cmp_eq_u32 s{swn}, 0"); a.e("s_cselect_b32 s36, 1, -1"); a.e(f"v_mul_lo_u32 v{t}, v{t}, s36")
        a.e(f"v_sub_u32 v{dst+1}, v{dst}, v{t}"); a.e(f"v_add_u32 v{dst}, v{dst}, v{t}")
        return 2, lambda nt, kk, h: (nt & 1, (32 * kk + 16 * h) * RB + 32 * nt)
    if which == 4: a.e(f"v_and_b32 v{t}, 7, v{t}")
    else: a.e(f"v_bfe_u32 v{t}, v{t}, 1, 2")
    for nt in range(ntl - 1, -1, -1):
        a.e(f"s_mul_i32 s36, s{swn}, {ntl}"); a.e(f"s_add_u32 s36, s36, {nt}")
        a.e(f"v_xor_b32 v{t2}, s36, v{t}"); a.e(f"v_lshl_add_u32 v{dst+nt}, v{t2}, 5, v{dst}")
    return ntl, lambda nt, kk, h: (nt, (32 * kk + 16 * h) * RB)

def a_parts(which):
    c = CFG[which]; b = Rec()
    if which <= 2 and NX:
        b.e("s_and_b32 s42, s48, 7"); b.e("s_lshl_b32 s42, s42, 14"); b.e("s_lshr_b64 s[48:49], s[48:49], 4")
    b.e("s_add_u32 s19, s41, s42")
    arm = ["s_mov_b32 m0, s19", "s_mov_b32 s39, s16"]; fire = []
    if which == 2:
        b.e(f"s_mul_i32 s16, s44, {8*PITCH}"); b.e("s_add_u32 s16, s16, s38")
        b.e("s_lshr_b32 s45, s44, 2"); b.e("s_xor_b32 s45, s45, s94"); b.e("s_and_b32 s45, s45, 1"); b.e("s_lshl_b32 s45, s45, 13"); b.e("s_add_u32 s16, s16, s45")
        b.e("s_lshr_b32 s45, s44, 3"); b.e("s_lshl_b32 s45, s45, 4"); b.e("s_add_u32 s45, s45, 16")
        b.e("s_sub_u32 s46, 0, s45"); b.e("s_bitcmp1_b32 s44, 2"); b.e("s_cselect_b32 s45, s45, s46"); b.e("s_add_u32 s16, s16, s45")
        step = PITCH
    elif which == 4:
        for lw in range(2):
            if TAB: b.e(f"v_readlane_b32 s{16+lw}, v{TV+1+lw}, s44")
            else: kb4(b, 16 + lw, lw); spread(b, 16 + lw, 16 + lw)
        for lw in range(2): b.e(f"s_add_u32 s{16+lw}, s{16+lw}, s38")
        arm.append("s_mov_b32 s40, s17")
        for i in range(4):
            for lw in range(2):
                fire.append((["s_add_u32 m0, m0, 1024"] if i or lw else []) + ([f"s_add_u32 s{39+lw}, s{39+lw}, {c['KBT']*2048}"] if i else []) +
                            [f"buffer_load_dwordx4 v2, s[12:15], s{39+lw} offen {SC} lds"])
    elif which == 3 and TAB:
        b.e(f"v_readlane_b32 s16, v{TV}, s44"); b.e("s_add_u32 s16, s16, s38"); step = c['KBT'] * 2048
    else:
        b.e("s_lshr_b32 s45, s44, 2"); b.e("s_lshl_b32 s45, s45, 14"); b.e("s_and_b32 s16, s44, 3"); b.e("s_lshl_b32 s16, s16, 11")
        b.e("s_add_u32 s16, s16, s45"); b.e("s_add_u32 s16, s16, s38"); step = c['KBT'] * 2048
    if f"a{which}" in os.environ.get("HOT", ""):
        b.e("s_mov_b32 s16, s38")
        if which == 4: b.e("s_add_u32 s17, s38, 1024")
    for i in range(4 if which != 4 else 0):
        fire.append((["s_add_u32 m0, m0, 2048", f"s_add_u32 s39, s39, {step}"] if i else []) + [f"buffer_load_dwordx4 v2, s[12:15], s39 offen {SC} lds"])
        fire.append([f"buffer_load_dwordx4 v2, s[12:15], s39 offen offset:1024 {SC} lds"])
    rot_next(b, which)
    if not (which <= 2 and NX):
        b.e(f"s_add_u32 s42, s42, 16384"); b.e(f"s_cmp_eq_u32 s42, {c['NA']*16384}"); b.e("s_cselect_b32 s42, 0, s42")
    if f"a{which}" in os.environ.get("NOLD", ""): fire = [[x for x in g if not x.startswith("buffer_load")] + ["s_nop 0"] for g in fire]
    return b.l, arm, fire
def a_issue(a, which):
    prep, arm, fire = a_parts(which)
    for x in prep + arm + sum(fire, []): a.e(x)
SUBS = {}
def call_issue(a, issue, which):
    nm = f"SUB_{issue.__name__}_{which}"; SUBS[nm] = (issue, which)
    a.e(f"s_call_b64 s[76:77], {nm}")
def emit_subs(a):
    for nm, f in SUBX.items(): a.e(f"SUB_{nm}:"); f(a); a.e("s_setpc_b64 s[76:77]")
    for nm, (issue, which) in SUBS.items():
        a.e(f"{nm}:"); issue(a, which); a.e("s_setpc_b64 s[76:77]")
def ld_steps(a, which, N, per, issue, npre, rate=2, plan={}, lo=0, hi=None, last=None, hold=(), sched=None, armed=False):
    NS = CFG[which]["NS"]
    prep, arm, fire = (w_parts if issue is w_issue else a_parts)(which); h = max(1, per * HSPLIT // 8)
    plan = {b: (x if isinstance(x, list) else [x]) for b, x in plan.items()}
    q = [s_ for s_ in range(npre) for _ in range(per)]
    def after(tag):
        if issue is w_issue and which == 4 and isinstance(tag, int) and tag < npre: tag = npre - 1
        return len(q) - 1 - max(i for i, x in enumerate(q) if x == tag)
    issued = npre; steps = []
    for b in range(NS):
        acts = plan.get(b, []); was = {}
        def do(pos):
            for n_, act in enumerate(acts):
                if act[0] != pos: continue
                if act[1] is not None: was[n_] = after(act[1])
                q.extend([act[4]] * act[3])
        do(True)
        k = 0
        if (b > 0 or (sched is not None and issue is a_issue)) and b not in hold:
            k = max(0, min(rate, min(NS, b - 1 + N) - issued)) if sched is None else sched[b]
        assert k or not any(x[0] == "mid" for x in acts)
        for j in range(k):
            q.extend([issued] * h)
            if j == 0: do("mid")
            q.extend([issued] * (per - h)); issued += 1
        do(False)
        w = after(b); assert w <= 63
        if which == 3 and b == 0: w = 63
        steps.append((k, w, b if acts else None, tuple(sorted(was.items())), issued < NS))
    def em(l):
        for x in l:
            a.e(x)
            if x == "s_barrier" and os.environ.get("JIT"): mstamp(a)
    F1, F2 = sum(fire[:h], []), sum(fire[h:], [])
    lprep = prep
    if len(prep) > 8:
        nm = f"PREP_{issue.__name__}_{which}"; SUBS[nm] = ((lambda a_, w_, l=prep: [a_.e(x) for x in l]), which)
        prep = [f"s_call_b64 s[76:77], {nm}"]
    if lo == 0 and npre < NS and not armed: em(prep + arm)
    i = lo; HI = NS if hi is None else hi
    while i < HI:
        j = i
        while j < HI and steps[j] == steps[i]: j += 1
        k, w, ab, was, more = steps[i]; n = j - i; was = dict(was)
        def run(pos):
            for n_, act in enumerate(plan.get(ab, [])):
                if act[0] != pos: continue
                if n_ in was: a.e(f"s_waitcnt vmcnt({was[n_]})")
                act[2]()
        tail = [f"s_waitcnt vmcnt({w})", "s_barrier"]
        if n > 2 and k == 1:
            em(F1); a.e("s_mov_b32 s43, 1"); L = a.lab("ld"); a.e(f"{L}:")
            em(lprep + F2 + arm + tail + F1)
            a.e("s_add_u32 s43, s43, 1"); a.e(f"s_cmp_lt_u32 s43, {n}"); a.e(f"s_cbranch_scc1 {L}")
            em(prep + F2 + arm + tail)
        else:
            for r in range(n):
                run(True)
                for jj in range(k):
                    nxt = more or jj < k - 1
                    em(F1)
                    if jj == 0: run("mid")
                    em((prep if nxt else []) + F2 + (arm if nxt else []))
                run(False)
                em(tail)
        i = j
    if hi is not None: return
    if which == 4:
        if issue is a_issue: a.e("s_cmp_eq_u32 s60, 1"); a.e("s_cbranch_scc1 K_fin")
        elif hold is HOLD: a.e("s_branch K_fin"); return
        if not RPL: r_pre(a)
    TF = os.environ.get("TF", "1") == "1" and issue is a_issue and which == 3
    if last and not TF: last()
    late = os.environ.get("TLATE", "0") == "1"
    if late: a.e("s_barrier")
    if issue is a_issue and W4POS == f"{which}C":
        X = a.lab("tw4"); a.e("s_cmp_lg_u32 s60, 0"); a.e(f"s_cbranch_scc1 {X}"); touch(a, B_W4, 7 * MB, 20); a.e(f"{X}:")
    if not late: a.e("s_barrier")
    if TF: last()

RK = int(os.environ.get("RK", "7")); assert RK == 0 or C0PUB <= RK <= STQ
PA2 = int(os.environ.get("PA2", "1")); PBB = int(os.environ.get("PBB", "2")); PC0 = int(os.environ.get("PC0", "4"))
HOLD = eval(os.environ.get("HOLD", "[2,3,4]"))
def a_loader(a, which):
    c = CFG[which]
    if which <= 2:
        plan = side_jobs(a, 1) if which == 1 else {}
        if which == 1 and "1" in DP: mstamp(a); a.e(f"s_sleep {os.environ.get('SJD', '30')}")
        else: mstamp(a); a.e("s_barrier")
        mstamp(a)
        for b in sorted(plan):
            for act in (plan[b] if isinstance(plan[b], list) else [plan[b]]):
                if act[1] is not None: a.e("s_waitcnt vmcnt(0)")
                act[2]()
        if which == 1:
            a.e("s_cmp_lg_u32 s30, 4"); a.e("s_cbranch_scc1 AL_nw"); a.e("s_cmp_eq_u32 s60, 0"); a.e("s_cbranch_scc1 AL_nw")
            a.e(f"s_add_u32 s54, s55, {(fso(ST_G3) - LSTR) & 0xffffffff:#x}"); a.e("s_add_u32 s53, s54, s92"); a.e("v_mov_b32 v9, s53")
            a.e("s_add_u32 s53, s53, 128"); a.e("v_writelane_b32 v9, s53, 1")
            a.e("s_add_u32 s53, s54, s93"); a.e("v_writelane_b32 v9, s53, 2"); a.e("s_add_u32 s53, s53, 128"); a.e("v_writelane_b32 v9, s53, 3")
            poll_core(a, 8, [9], 15, cnt=8)
            a.e("AL_nw:")
        if which == 2 and W33 > 1: call(a, third_late)
        if which == 2: a.e("s_waitcnt vmcnt(0)")
        a.e("s_barrier")
        if which == 1 and "p" not in os.environ.get("FO", "1pd"): late_park(a)
        call(a, after_g1 if which == 1 else after_g2)
        return
    a.e("s_and_b32 s35, s30, 1")
    if which == 2:
        hs_srd(a, 12)
        a.e("s_lshl_b32 s38, s28, 11"); a.e("s_add_u32 s38, s38, 16384"); a.e(f"s_mul_i32 s36, s35, {4*PITCH}"); a.e("s_add_u32 s38, s38, s36")
    else:
        lsrd(a, 12, c["A"], XSZ if which != 4 else H2SZ)
        a.e(f"s_mul_i32 s38, s35, {4*c['KBT']*2048}")
        if which == 4: a.e(f"s_mul_i32 s36, s31, {7*16384}"); a.e("s_add_u32 s38, s38, s36")
    a.e("s_lshl_b32 s41, s35, 13"); a.e("s_mov_b32 s42, 0"); rot_init(a, which)
    assert c["NA"] == 3 or which == 3
    prep, arm, fire = a_parts(which)
    if which == 4:
        flag_addr(a, 9, ST_G3A); flag_addr(a, 10, ST_G3B); flag_addr(a, 12, ST_G3)
        a.e("v_mov_b32 v13, 1"); a.e("s_and_b32 s51, s30, 1"); a.e("s_lshl_b32 s51, s51, 30")
        def signal(r): a.e("s_mov_b64 exec, 1"); a.e(f"buffer_atomic_add v13, v{r}, s[56:59], s51 offen {SC}"); a.e("s_mov_b64 exec, -1")
        a.e("s_lshl_b32 s54, s60, 2"); a.e("s_add_u32 s54, s54, 4"); lds_spin(a, LW + 64, "s54", 14, nap=2)
        signal(9)
        if not PA2: poll_core(a, 8, [9], 1, cnt=8)
        mstamp(a)
        plan = {6 - L4: ("mid", None, lambda: flag_try(a, 11, 10), 1, "f"), 8 - L4: ("mid", "f", lambda: flag_check(a, 11, 10, 8), 0, None),
                13 - L4: ("mid", None, lambda: flag_try(a, 11, 12), 1, "g"), 15 - L4: ("mid", "g", lambda: flag_check(a, 11, 12, 8), 0, None)}
        plan = {k_: [x] for k_, x in plan.items()}
        if PA2:
            plan[1] = [(False, None, lambda: flag_try(a, 8, 9), 1, "a")]
            plan[2] = [(True, "a", lambda: flag_check(a, 8, 9, 8), 0, None)]
        if DP:
            a.e("v_xor_b32 v15, 128, v12")
            plan[20] = [("mid", None, lambda: flag_try(a, 11, 15), 1, "h")]; plan[22] = [("mid", "h", lambda: flag_check(a, 11, 15, 8), 0, None)]
        if int(os.environ.get("OT", "0")) >= 3:
            def ot():
                a.e(f"s_load_dwordx2 s[20:21], s[0:1], {D_OUT}"); a.e(f"s_mul_i32 s22, s60, {4*MB}"); a.e("s_mov_b32 s23, 0x20000"); a.e("s_lshl_b32 s36, s28, 18"); a.e("s_lshl_b32 s37, s29, 11")
                a.e("s_add_u32 s36, s36, s37"); a.e("s_waitcnt lgkmcnt(0)")
                a.e("s_mov_b64 exec, 1"); a.e(f"buffer_load_dword v16, v2, s[20:23], s36 offen {SC}"); a.e("s_mov_b64 exec, -1")
            plan.setdefault(int(os.environ["OT"]) % 100, []).append((False, None, ot, 1, "o"))
        plan.setdefault(PBB + 1, []).insert(0, (True, None, lambda: signal(10), 1, "s"))
        plan.setdefault(PC0 + 2, []).insert(0, (True, None, lambda: signal(12), 1, "s"))
        a.e("s_mov_b32 s44, 3")
        ld_steps(a, which, 3, 8, a_issue, 3, plan=plan); return
    if which == 3:
        mask, cnt = flag_addr(a, 9, ST_G2)
        def wait2():
            if W33: call(a, third_put)
            elif B0E > 1: a.e(f"s_sleep {B0E}")
            poll_core(a, 8, [9], mask, cnt=cnt); mstamp(a); mstamp(a)
            if W3H: a.e("s_add_u32 s54, s60, 1"); lds_set(a, LW + 60, "s54", 10)
        N3 = 2 if "3" in DP else 1
        a.e(f"s_mov_b32 s44, {N3}"); a.e(f"s_mov_b32 s42, {16384*N3}")
        plan = side_jobs(a, 3)
        if os.environ.get("P30", "0") == "1":
            def wait0(): own_wait(a, ST_G2, False, 14); wait2()
            plan[0] = (True, None, wait0, 0, None)
            ld_steps(a, which, 3, 8, a_issue, 1, plan=plan, sched=[int(os.environ.get("P3N", "1")), 2 - int(os.environ.get("P3N", "1"))] + [1] * 13 + [0]); return
        plan[1] = (True, None, wait2, 0, None)
        PZ3 = int(os.environ.get("PZ3", "0"))
        if PZ3:
            a.srd(84, 4, 32 * MB, off=216 * MB)
            a.e("s_cmp_eq_u32 s60, 0"); a.e("s_cselect_b32 s86, s86, 0")
            for i in range(4): a.e(f"v_mov_b32 v{216+i}, -1")
            a.e("s_lshl_b32 s88, s2, 1"); a.e("s_and_b32 s50, s30, 1"); a.e("s_add_u32 s88, s88, s50"); a.e(f"s_mul_i32 s88, s88, {PZ3*12*1024}")
            def pz():
                for i in range(PZ3): a.e(f"buffer_store_dwordx4 v[216:219], v2, s[84:87], s88 offen offset:{i*1024} {SC}")
                a.e(f"s_add_u32 s88, s88, {PZ3*1024}")
            for b in range(2, 14):
                p_ = plan.get(b, []); p_ = p_ if isinstance(p_, list) else [p_]
                plan[b] = p_ + [(False, None, pz, PZ3, "z")]
        if os.environ.get("A3L", "0") == "1":
            def w1_():
                X = a.lab("w1"); a.e("s_cmp_lg_u32 s60, 0"); a.e(f"s_cbranch_scc1 {X}"); poll_core(a, 8, [9], mask, cnt=cnt); lds_set(a, LW + 60, 1, 10); a.e(f"{X}:")
            def w2_(): poll_core(a, 8, [9], mask, cnt=cnt, nap=2); mstamp(a); mstamp(a)
            plan[1] = (True, None, w1_, 0, None)
            p2 = plan[2] if isinstance(plan[2], list) else [plan[2]]
            plan[2] = [(True, None, w2_, 0, None)] + p2
            ld_steps(a, which, 3, 8, a_issue, N3, plan=plan, hold=(1,)); return
        ld_steps(a, which, c["NA"], 8, a_issue, N3, plan=plan, sched=eval(os.environ.get("A3S", "None")), last=lambda: r_pre1(a)); return
    assert 0

def side_jobs(a, which):
    c = CFG[which]; plan = {}
    sv = 16; S, Q, mean, rs, tt, ad, fa, fr = 216, 217, 218, 219, 220, 221, 222, 223
    cv = 180 if which == 3 else 24; N = c["LDW"] // 2; co_ = 224; HB = c["TN16"] * 32
    lg = 3 if which == 1 else 5
    def cld(k0=0, k1=4):
        if k0 == 0:
            a.srd(24, 4, 32 * N * 4, off=CSP[which])
            a.e("s_cmp_eq_u32 s60, 0"); a.e("s_cselect_b32 s26, s26, 0")
            if NOCS3 and which == 3: a.e("s_mov_b32 s26, 0")
            a.e("s_and_b32 s36, s30, 1"); a.e(f"s_mul_i32 s36, s36, {HB}"); a.e(f"s_mul_i32 s37, s29, {2*HB}"); a.e("s_add_u32 s37, s36, s37")
            a.e(f"v_lshrrev_b32 v{co_}, {lg}, v1"); a.e(f"v_mul_u32_u24 v{co_}, {N*4}, v{co_}")
            a.e(f"v_and_b32 v{cv-1}, {16*((1 << lg) - 1)}, v2"); a.e(f"v_add_u32 v{co_}, v{co_}, v{cv-1}")
        a.e("s_cmp_eq_u32 s60, 0"); a.e("s_cselect_b64 exec, -1, 0")
        for k in range(k0, k1):
            a.e(f"buffer_load_dwordx4 {vr(cv+4*(k if k < 9 else k - 8),4)}, v{co_}, s[24:27], s37 offen {SC}"); a.e(f"s_add_u32 s37, s37, {N*4*(64 >> lg)}")
        a.e("s_mov_b64 exec, -1")
    def piece(lines, l0=False):
        def f():
            X = a.lab("pc")
            if l0: a.e("s_cmp_lg_u32 s60, 0"); a.e(f"s_cbranch_scc1 {X}")
            for x in lines: a.e(x)
            if l0: a.e(f"{X}:")
        return f
    def cadd(k0, k1): return [f"v_add_f32 v{cv+h}, v{cv+h}, v{cv+4*k+h}" for k in range(k0, k1) for h in range(4)]
    def sw(op): return [f"v_mov_b32 v{cv+4+e}, v{cv+e}" for e in range(4)] + [f"{op} v{cv+e}, v{cv+4+e}" for e in range(4)] + cadd(1, 2)
    if which in (1, 3):
        cout = ["s_and_b32 s36, s30, 1", f"s_mul_i32 s36, s36, {HB}", f"s_add_u32 s36, s36, {CSO[which]}", f"v_add_u32 v{cv-1}, s36, v2",
                f"s_bfm_b64 exec, {HB//16}, 0", f"ds_write_b128 v{cv-1}, {vr(cv,4)}", "s_mov_b64 exec, -1", "s_waitcnt lgkmcnt(0)"]
    if which == 1:
        flag_addr(a, fa, ST_R2)
        def ld():
            flag_check(a, fr, fa, 16)
            lsrd(a, 20, oLNS, 2048); a.e("s_and_b32 s35, s30, 1"); a.e("s_lshl_b32 s35, s35, 10")
            a.e(f"buffer_load_dwordx4 {vr(sv,4)}, v2, s[20:23], s35 offen {SC}")
        fin = piece(["s_and_b32 s36, s30, 1", "s_lshl_b32 s36, s36, 10", f"s_add_u32 s36, s36, {LNSL}", f"v_add_u32 v{ad}, s36, v2", f"ds_write_b128 v{ad}, {vr(sv,4)}", "s_waitcnt lgkmcnt(0)"])
        a.e("s_lshl_b32 s53, s29, 7"); a.e(f"s_add_u32 s53, s53, {F_CS}"); a.e(f"v_mov_b32 v{fa+4}, s53")
        def cld1(): flag_check(a, fr + 4, fa + 4, 16); cld()
        work = cadd(1, 4) + [f"v_add_f32_dpp v{cv+e}, v{cv+e}, v{cv+e} row_ror:8 row_mask:0xf bank_mask:0xf" for e in range(4)] + \
               sw("v_permlane16_swap_b32") + sw("v_permlane32_swap_b32")
        plan = {2: (False, None, lambda: flag_try(a, fr + 4, fa + 4), 1, "e"), 5: [(False, "e", cld1, 4, "c"), (False, None, lambda: flag_try(a, fr, fa), 1, "f")],
                8: (False, "f", ld, 1, "d"), 15: [(False, None, piece(cout, 1), 0, None), (False, "d", fin, 0, None)]}
        plan[9] = (False, None, piece(work, 1), 0, None)
    if which == 3:
        flag_addr(a, fa, ST_G2S)
        a.e(f"v_lshlrev_b32 v{ad}, 3, v1")
        def ld(k0, n_=8):
            def f():
                if k0 == 0:
                    flag_check(a, fr, fa, 16)
                    lsrd(a, 20, oST2, 24576)
                    a.e("s_and_b32 s35, s30, 1"); a.e("s_lshl_b32 s35, s35, 9")
                for k in range(k0, k0 + n_):
                    if k % 4 == 0 or k == k0: a.e(f"s_add_u32 s36, s35, {(k >> 3) * 16384 + (k & 4) * 1024}")
                    a.e(f"buffer_load_dwordx2 {vr(sv+2*k,2)}, v{ad}, s[20:23], s36 offen offset:{(k&3)*1024} {SC}")
            return f
        b = Rec()
        for st_ in (8, 4, 2, 1):
            for k in range(2 * st_): b.e(f"v_add_f32 v{sv+k}, v{sv+k}, v{sv+2*st_+k}")
        o_ = sv + 4
        b.e(f"v_mul_f32 v{o_}, {f32(1/1024)}, v{sv}"); b.e(f"v_mul_f32 v{Q}, {f32(1/1024)}, v{sv+1}")
        b.e(f"v_fma_f32 v{Q}, -v{o_}, v{o_}, v{Q}"); b.e(f"v_max_f32 v{Q}, 0, v{Q}")
        ln_finish(b, o_, Q, rs, o_ + 1)
        b.e(f"v_mul_f32 v{o_+2}, {f32(GC1)}, v{rs}"); b.e(f"v_mul_f32 v{o_+3}, v{rs}, v{rs}")
        b.e(f"v_mul_f32 v{o_+3}, v{o_+3}, v{o_+2}"); b.e(f"v_mul_f32 v{o_+3}, {f32(0.044715)}, v{o_+3}")
        b.e("s_lshl_b32 s35, s35, 1"); b.e(f"s_add_u32 s35, s35, {LNSL}"); b.e(f"v_add_u32 v{tt}, s35, v2")
        b.e(f"ds_write_b128 v{tt}, {vr(o_,4)}"); b.e("s_waitcnt lgkmcnt(0)")
        def both(f, g):
            def h(): f(); g()
            return h
        if os.environ.get("SJ3", "1") == "1":
            plan = {2: (False, None, lambda: cld(0, 3), 3, "c"), 3: (False, None, lambda: cld(3, 6), 3, "c"), 4: [(False, None, lambda: cld(6, 9), 3, "c"), (False, None, lambda: flag_try(a, fr, fa), 1, "f")],
                    6: [(False, "f", ld(0, 4), 4, "d"), (False, None, piece(cadd(1, 5), 1), 0, None)],
                    7: [(False, None, ld(4, 4), 4, "d"), (False, None, both(piece(cadd(5, 9), 1), lambda: cld(9, 12)), 3, "e")],
                    8: [(False, None, ld(8, 4), 4, "d"), (False, None, lambda: cld(12, 14), 2, "e")], 9: [(False, None, ld(12, 4), 4, "d"), (False, None, lambda: cld(14, 16), 2, "e")],
                    11: [(False, "e", piece(b.l[:16]), 0, None)], 12: [(False, None, piece(b.l[16:32]), 0, None), (False, None, piece(cadd(1, 4), 1), 0, None)],
                    13: [(False, None, piece(b.l[32:]), 0, None)], 14: (False, None, piece(cadd(4, 8), 1), 0, None), 15: (False, None, piece(sw("v_permlane32_swap_b32") + cout, 1), 0, None)}
        else:
            plan = {2: (False, None, cld, 4, "c"), 3: (False, None, lambda: cld(4, 9), 5, "c"),
                    5: [(False, "c", piece(cadd(1, 5), 1), 0, None), (False, None, lambda: flag_try(a, fr, fa), 1, "f")],
                    6: (False, None, both(piece(cadd(5, 9), 1), lambda: cld(9, 16)), 7, "e"),
                    7: (False, "f", ld(0), 8, "d"), 8: (False, None, ld(8), 8, "d"),
                    9: (False, "e", piece(cadd(1, 5), 1), 0, None), 10: (False, None, piece(cadd(5, 8), 1), 0, None), 11: (False, None, piece(sw("v_permlane32_swap_b32") + cout, 1), 0, None),
                    12: (False, "d", piece(b.l[:16]), 0, None), 13: (False, None, piece(b.l[16:32]), 0, None), 14: (False, None, piece(b.l[32:]), 0, None)}
    return plan

W2E = int(os.environ.get("W2E", "3"))
def w2_early(a):
    if W2E: w_setup(a, 2, pre=False); w1_slots(a, range(W2E), pace=8)
def w_loader(a, which):
    c = CFG[which]
    if which < 3:
        if which == 1: a.e("s_waitcnt vmcnt(0)")
        if which == 1 and "a" in STO: stouch(a, 3, 128 if "8" in STO else 64, 2); mstamp(a)
        if which == 1 and sum(SG): sb_init(a)
        sg(a, SG[2*which-2])
        if not (which == 1 and "1" in DP): a.e("s_barrier")
        sg(a, SG[2*which-1])
        if which == 1 and "b" in STO: stouch(a, 3, 128 if "8" in STO else 64, 2); mstamp(a)
        if which == 2 and W33 > 1: call(a, third_late)
        if which == 2: a.e("s_waitcnt vmcnt(0)")
        a.e("s_barrier")
        if which == 1 and "p" not in os.environ.get("FO2", "1pd"): late_park(a)
        call(a, after_g1 if which == 1 else after_g2); mstamp(a)
        return
    args = (a, which, c["NW"], c["STB"] // 2048, w_issue, c["NPRE"], c["WR"])
    if which == 4:
        assert c["NW"] == 6 and c["WB"] == CFG[1]["WB"] + 3 * 8192
        a.e("s_cmp_eq_u32 s60, 1"); a.e("s_cbranch_scc1 WL_t1")
        ld_steps(*args, hi=24)
        WT = eval(os.environ.get("WT", "[(11,12,15,9),(13,14,10),(3,4),(5,6,0),(7,8,1,2),()]"))
        def some(js):
            def f():
                if js is WT[0]: w_setup(a, 1, pre=False)
                for j in js:
                    if j in (9, 10) and js is not WT[5]:
                        a.e(f"s_add_u32 s39, s38, {j*64*2048}")
                        for i in range(4): a.e(f"buffer_load_dwordx4 {vr(16+16*(j-9)+4*i,4)}, v{WVB[1]}, s[12:15], s39 offen"); a.e("s_add_u32 s39, s39, 16384")
                    else: w1_slots(a, (j,), pace=8 if js is WT[5] else 0)
            return f
        plan = {24 + i: (False, None, some(WT[i]), 4 * len(WT[i]), "w") for i in range(4) if WT[i]}
        ld_steps(*args, plan=plan, lo=24, last=some(WT[4]))
        rg = [j for j in (9, 10) if j not in WT[5]]
        if rg:
            a.e(f"s_add_u32 s36, s41, {9*8192}"); a.e("v_add_u32 v6, s36, v2"); a.e("s_waitcnt vmcnt(0)")
            for j in rg:
                for i in range(4): a.e(f"ds_write_b128 v6, {vr(16+16*(j-9)+4*i,4)} offset:{(j-9)*8192+i*1024}")
            a.e("s_waitcnt lgkmcnt(0)")
        some(WT[5])(); mstamp(a)
        a.e("s_branch NEXT")
        a.e("WL_t1:")
        ld_steps(*args, hold=HOLD)
        return
    plan = {}
    if "3" in DP:
        lsrd(a, 20, oX1P, XSZ)
        a.e(f"v_readlane_b32 s36, v{TV+3}, 1"); a.e("s_and_b32 s35, s30, 1"); a.e("s_lshl_b32 s46, s35, 18"); a.e("s_lshl_b32 s47, s35, 13"); a.e("s_add_u32 s47, s47, 16384")
        a.e("s_bfe_u32 s37, s36, 0x20002"); a.e("s_lshl_b32 s37, s37, 14"); a.e("s_and_b32 s36, s36, 3"); a.e("s_lshl_b32 s36, s36, 11"); a.e("s_add_u32 s46, s46, s36"); a.e("s_add_u32 s46, s46, s37")
        a.e("v_add_u32 v8, s47, v2")
        if W3E: w_issue(a, 3); args = args[:5] + (3,) + args[6:]
        def second():
            L = a.lab("sp"); D = a.lab("sq")
            a.e("s_mov_b32 s34, m0"); a.e("s_cmp_lg_u32 s60, 0"); a.e(f"s_cbranch_scc1 {L}a")
            lds_spin(a, LW + 60, 1, 6, nap=1)
            a.e(f"{L}a:"); a.e("s_mov_b32 s53, 0")
            if int(os.environ.get("S3D", "0")): a.e("s_sleep " + os.environ["S3D"])
            a.e(f"{L}:"); a.e("s_mov_b32 m0, s47"); a.e("s_mov_b32 s36, s46")
            for i in range(4):
                if i: a.e("s_add_u32 m0, m0, 2048"); a.e("s_add_u32 s36, s36, 65536")
                for k in range(2): a.e(f"buffer_load_dwordx4 v2, s[20:23], s36 offen offset:{1024*k} {SC} lds")
            a.e("s_waitcnt vmcnt(0)")
            for i in range(8): a.e(f"ds_read_b32 v{10+i}, v8 offset:{1024*i}")
            a.e("s_waitcnt lgkmcnt(0)")
            a.e("v_or3_b32 v10, v10, v11, v12"); a.e("v_or3_b32 v13, v13, v14, v15"); a.e("v_or3_b32 v10, v10, v16, v17"); a.e("v_bitop3_b32 v10, v10, v13, s60 bitop3:0xa8")
            a.e("v_cmp_ne_u32 vcc, 0, v10"); a.e(f"s_cbranch_vccz {D}"); a.e("s_sleep 1")
            a.e("s_add_u32 s53, s53, 1"); a.e("s_cmp_lt_u32 s53, s61"); a.e(f"s_cbranch_scc1 {L}"); a.e("s_mov_b32 s61, 0")
            a.e(f"{D}:"); a.e("s_mov_b32 m0, s34")
        plan[1] = (True, None, second, 8, "x")
    elif W33:
        plan[1] = (True, None, lambda: call(a, third_put), 0, None); args = args[:5] + (3,) + args[6:]
    elif W3H: plan[1] = (True, None, lambda: (a.e("s_add_u32 s54, s60, 1"), lds_spin(a, LW + 60, "s54", 6, nap=1)), 0, None)
    def sg3(n):
        def f():
            X = a.lab("st"); a.e("s_cmp_lg_u32 s60, 0"); a.e(f"s_cbranch_scc1 {X}"); sb(a, n); a.e(f"{X}:")
        return f
    for b_, n_ in eval(os.environ.get("SG3", "{}")).items(): plan[b_] = (False, None, sg3(n_), 0, None)
    RPW = int(os.environ.get("RPW", "15"))
    if RPW < 16: plan[RPW] = (False, None, lambda: call(a, r_pre0), 4, "r")
    ld_steps(*args, plan=plan, last=(lambda: r_pre1(a)) if RPW == 16 else None)
W3H = int(os.environ.get("W3H", "0")) or "3" in DP; W3E = int(os.environ.get("W3E", "1"))
W1L = int(os.environ.get("W1L", "3"))

B0E = int(os.environ.get("B0E", "6")); RPL = int(os.environ.get("RPL", "1")); RPC = int(os.environ.get("RPC", "1"))
LF1 = os.environ.get("LF1", "sc1"); LF2 = os.environ.get("LF2", "")
RES2 = 148; C2R = 200; SO3 = 238; RES4 = [172, 176, 180, 184, 188, 192, 196, 240]
def g_compute(a, which):
    c = CFG[which]
    WM, WN, MT, NT, KBT, NS, NA, NW, TN16, STB, WB = [c[k] for k in "WM WN MT NT KBT NS NA NW TN16 STB WB".split()]
    v = VA(6); nm = f"G{which}"
    lane = 1; l16 = 2
    t = v(); t2 = v(); pt = v(4, 2)
    NTILE = (0, 99, 29, 29, 33)[which]
    a_ = a
    if which != 3: a = Rec()
    if WN == 2: a.e("s_lshr_b32 s34, s30, 1"); a.e("s_and_b32 s35, s30, 1")
    else: a.e("s_mov_b32 s34, s30"); a.e("s_mov_b32 s35, 0")
    a0 = v(); w0 = v(4, 1); aa = v(); wa = v(4, 1); J = v(); G = v()
    a.e(f"v_and_b32 v{J}, 15, v{lane}"); a.e(f"v_lshrrev_b32 v{G}, 4, v{lane}")
    a.e(f"s_mul_i32 s37, s34, {MT}")
    a.e(f"s_mul_i32 s38, s{NTILE}, {TN16}"); a.e(f"s_mul_i32 s36, s35, {NT}"); a.e("s_add_u32 s38, s38, s36")
    acc = v(MT * NT * 4, 4); NF = MT + NT if which > 2 else 8
    fX = v(NF * 4, 4); fY = v(NF * 4, 4); tmp = v(); tp = v(4, 2)
    def A_(mt, nt): return acc + 4 * (mt * NT + nt)
    def SUBM(r): return f"{vr(r,2)} op_sel_hi:[1,0] neg_lo:[0,1] neg_hi:[0,1]"
    def MULR(r): return f"{vr(r,2)} op_sel:[0,1] op_sel_hi:[1,1]"
    if which in (2, 4):
        res = RES2
        a.e("s_lshr_b32 s36, s38, 1"); spread(a, 39, 36); a.e("s_lshl_b32 s36, s37, 16"); a.e("s_add_u32 s39, s39, s36")
    if which <= 2:
        AB = 164; LO = v(8, 1)
        def aload(b, kk):
            if which == 1: return [f"buffer_load_dwordx4 {vr(AB+16*b+8*kk+4*mt,4)}, v{LO+mt+(b&2)}, s[8:11], s44 offen offset:{(b&1)*2048+kk*1024} {LF1}" for mt in range(2)]
            return [f"buffer_load_dwordx4 {vr(AB+16*b+8*kk+4*mt,4)}, v{LO+mt}, s[8:11], s44 offen {LF2}" for mt in range(2)]
        def seq(pairs, s0):
            if which == 1: return [x for b, kk in pairs for x in aload(b, kk)]
            return ([f"s_mov_b32 s44, {s0}"] if s0 is not None else []) + [x for b, kk in pairs for x in aload(b, kk) + ["s_add_u32 s44, s44, 16384"]]
        def past(l): return [x + (SC if x.startswith("buffer") and SC not in x else "") for x in l]
        PR = [(i >> 1, i & 1) for i in range(7)]
        h = Rec()
        if which == 1:
            lsrd(h, 8, oX3, XSZ); OOB = MB
            for i in range(4): (h if i < 2 else a).e(f"v_add_u32 v{LO+i}, {(i & 1) * 65536 + (i >> 1) * 4096}, v{l16}")
            h.e("s_lshl_b32 s44, s30, 17")
            for i in range(1, 4): a.e(f"s_add_u32 s{44+i}, s44, {16384*i}")
        else:
            OOB = 0x40000000; LP = v(2, 1)
            h.srd(8, 4, 8 * GSTR + LSTR, off=LB0 + oHS)
            h.e(f"s_sub_u32 s47, s55, {LB0 + oSM}"); h.e("s_lshl_b32 s46, s30, 9"); h.e("s_add_u32 s47, s47, s46")
            h.e("s_add_u32 s45, s92, 2048"); h.e("s_cmp_eq_u32 s28, 0"); h.e(f"s_cselect_b32 s45, {OOB}, s45"); h.e("s_cmp_eq_u32 s30, 0"); h.e("s_cselect_b32 s45, s45, 0")
            a.e("s_sub_u32 s46, s93, 2048"); a.e("s_cmp_eq_u32 s28, 15"); a.e(f"s_cselect_b32 s46, {OOB}, s46"); a.e("s_cmp_eq_u32 s30, 3"); a.e("s_cselect_b32 s46, s46, 0")
            for q_, sh in enumerate((1, -1, 2, -2)):
                e_ = h if q_ == 0 else a
                e_.e(f"s_add_u32 s53, s47, {(-16 * sh) & 0xffffffff:#x}"); e_.e(f"v_add_u32 v{LO+2*q_}, s53, v{a0}"); e_.e(f"v_add_u32 v{LO+2*q_+1}, 256, v{LO+2*q_}")
                R_ = LO + 2 * q_ + (0 if sh > 0 else 1)
                e_.e(f"v_add_u32 v{LP}, s{45 if sh > 0 else 46}, v{R_}")
                e_.e(f"v_cmp_gt_u32 vcc, {sh}, v{J}" if sh > 0 else f"v_cmp_le_u32 vcc, {16 + sh}, v{J}"); e_.e(f"v_cndmask_b32 v{R_}, v{R_}, v{LP}, vcc")
            for k in range(2): a.e(f"v_mov_b32 v{LP+k}, v{LO+k}")
        EARLY = str(which) in DP and str(which) in os.environ.get("EP", "2")
        try0 = past(seq(PR[:2], 0))
        for x in h.l: a_.e(x)
        if EARLY and which == 1:
            for x in try0: a_.e(x)
    else:
        a.e(f"s_mul_i32 s36, s34, {MT*2048}"); a.e(f"v_add_u32 v{a0}, s36, v{l16}")
    nwr, wpos = w_bases(a, which, w0, 35, NT, t, t2)
    if which <= 2:
        for x in a.l: a_.e(x)
    a = a_
    if which == 3 and not B0E: publish(a, ST_G2S, 4, pt, ctr=48)
    if which == 2:
        a.e(f"s_lshl_b32 s36, s37, 8"); a.e(f"s_add_u32 s36, s36, {LNSL}"); a.e(f"v_lshlrev_b32 v{t2}, 4, v{J}"); a.e(f"v_add_u32 v{t2}, s36, v{t2}")
        for mt in range(MT): a.e(f"ds_read_b64 {vr(fX+2*mt,2)}, v{t2} offset:{mt*256}")
        a.e("s_waitcnt vmcnt(4) lgkmcnt(0)")
        if EARLY:
            if int(os.environ.get("G2D", "3")): a.e("s_sleep " + os.environ.get("G2D", "3"))
            if int(os.environ.get("G2D0", "2")): a.e("s_cmp_lg_u32 s60, 0"); a.e("s_cbranch_scc1 G2_nd"); a.e("s_sleep " + os.environ.get("G2D0", "2")); a.e("G2_nd:")
            for x in try0: a.e(x)
        for mt in range(MT):
            for p in range(NT // 2):
                for e in range(4):
                    X = A_(mt, 2 * p) + 2 * e
                    unpack(a, X, X + 1, res + (mt * (NT // 2) + p) * 4 + e)
                    a.e(f"v_pk_add_f32 {vr(X,2)}, {vr(X,2)}, {SUBM(fX+2*mt)}"); round2(a, X, X + 1, tmp)
                    a.e(f"v_pk_mul_f32 {vr(X,2)}, {vr(X,2)}, {MULR(fX+2*mt)}"); round2(a, X, X + 1, tmp)
    elif which == 1:
        for i in range(0, MT * NT * 4, 2): a.e(f"v_pk_mov_b32 {vr(acc+i,2)}, 0, 0")
    RX = [180, 184, 188, 192, 196, 230, 234, 248]
    def last_res():
        b0 = Rec()
        for i in range(2):
            b0.e(f"s_add_u32 s36, s40, {i*65536}")
            for p in range(2):
                b0.e(f"buffer_load_dwordx4 {vr(RX[2*(2*i+p)],4)}, v{l16}, s[84:87], s36 offen offset:{p*1024} {SC}")
                b0.e(f"buffer_load_dwordx4 {vr(RX[2*(2*i+p)+1],4)}, v{l16}, s[88:91], s36 offen offset:{p*1024} {SC}")
        return b0.l
    def reads(F, kk):
        o = []
        for mt in range(MT): o.append(f"ds_read_b128 {vr(F+4*mt,4)}, v{aa} offset:{mt*256+kk*8192 if which == 2 else mt*2048+kk*1024}")
        for nt in range(NT):
            for h in range(2):
                r, imm = wpos(nt, kk, h)
                o.append(f"ds_read_b64_tr_b16 {vr(F+4*(MT+nt)+2*h,2)}, v{wa+r} offset:{imm}")
        NR = os.environ.get("NOREAD")
        if NR == "N": o = []
        if NR == "A": o = o[MT:]
        if NR == "W": o = o[:MT]
        if NR == "H": o = o[::2]
        if NR == "X": o = o + o[:2]
        if NR == "XX": o = o + o[:MT]
        return o
    def mix(rd, ex):
        rd = list(rd)
        for i, x in enumerate(ex): rd.insert(min(len(rd), (i + 1) * len(rd) // (len(ex) + 1)), x)
        return rd
    def mfmas(F, rd, tail=()):
        n = MT * NT; k = 0; tot = len(rd); span = max(1, n * 3 // 4); done = 0; tail = list(tail); per = -(-len(tail) // max(1, n - span))
        OR = os.environ.get("ORDER", "2")
        order = {"0": [(nt, mt) for nt in range(NT) for mt in range(MT)],
                 "1": [(nt, mt) for mt in range(MT) for nt in range(NT)],
                 "2": [(nt, mt if nt % 2 == 0 else MT - 1 - mt) for nt in range(NT) for mt in range(MT)],
                 "3": [(nt if mt % 2 == 0 else NT - 1 - nt, mt) for mt in range(MT) for nt in range(NT)]}[OR]
        for nt, mt in order:
            if True:
                cc = acc + 4 * (mt * NT + nt)
                if str(which) not in os.environ.get("NOMF", ""): a.e(f"v_mfma_f32_16x16x32_bf16 {vr(cc,4)}, {vr(F+4*(MT+nt),4)}, {vr(F+4*mt,4)}, {vr(cc,4)}")
                k += 1
                while rd and done < (tot * k + span - 1) // span: a.e(rd.pop(0)); done += 1
                if k >= span and k < n:
                    for _ in range(min(per, len(tail))): a.e(tail.pop(0))
        assert not rd and not tail
    so = SO3 if which == 3 else a0; cs = fX; lns = fX + 4 * NT; G4W = 240; EA = 244
    def ep_setup(b):
        if which in (1, 3):
            assert which == 1 or (fY <= C2R and C2R + 24 <= fY + 4 * NF)
            b.e(f"s_mul_i32 s36, s35, {NT*64}"); b.e(f"s_add_u32 s36, s36, {CSO[which]}"); b.e(f"v_lshlrev_b32 v{t}, 4, v{G}"); b.e(f"v_add_u32 v{t}, s36, v{t}")
            b.e(f"s_lshl_b32 s36, s37, 8"); b.e(f"s_add_u32 s36, s36, {LNSL + (8 if which == 1 else 0)}"); b.e(f"v_lshlrev_b32 v{t2}, 4, v{J}"); b.e(f"v_add_u32 v{t2}, s36, v{t2}")
        if which == 3:
            lsrd(b, 16, oH2, H2SZ)
            b.e(f"s_mul_i32 s39, s37, {224*1024}")
            for P in range(4):
                b.e("s_lshr_b32 s36, s38, 1"); b.e(f"s_add_u32 s36, s36, {P}"); spread(b, 44 + P, 36); b.e(f"s_add_u32 s{44+P}, s{44+P}, s39")
            w_bases(b, 4, G4W, 35, 4, tp, tp + 1)
            b.e("s_lshl_b32 s38, s33, 3"); b.e("s_lshl_b32 s36, s35, 2"); b.e("s_add_u32 s38, s38, s36")
            b.e("s_lshr_b32 s36, s38, 1"); spread(b, 39, 36); b.e("s_lshl_b32 s36, s37, 16"); b.e("s_add_u32 s39, s39, s36")
            b.e("s_lshl_b32 s40, s31, 17"); b.e("s_add_u32 s40, s40, s39")
            b.e("s_xor_b32 s41, s31, 1"); b.e("s_lshl_b32 s41, s41, 17"); b.e("s_add_u32 s41, s41, s39")
            lsrd(b, 84, oX3, XSZ); lsrd(b, 88, oX1P, XSZ)
            b.e("s_lshl_b32 s36, s37, 1"); b.e("s_add_u32 s36, s36, s35"); b.e("s_lshl_b32 s36, s36, 10"); b.e(f"v_add_u32 v{EA}, s36, v{l16}")
            b.e(f"v_mov_b32 v{EA+1}, 1"); b.e(f"v_mov_b32 v{EA+2}, {LW+64}")
            b.e(f"v_lshrrev_b32 v{so}, 1, v{G}"); b.e(f"v_lshlrev_b32 v{so}, 8, v{so}"); b.e(f"v_lshl_add_u32 v{so}, v{J}, 4, v{so}")
            b.e(f"v_and_b32 v{tmp}, 1, v{G}"); b.e(f"v_lshl_add_u32 v{so}, v{tmp}, 3, v{so}")
        if which == 1:
            lsrd(b, 16, oHS, XSZ)
            b.e(f"v_lshlrev_b32 v{so}, 11, v{G}"); b.e(f"v_lshl_add_u32 v{so}, v{J}, 4, v{so}")
            b.e("s_lshl_b32 s39, s38, 13"); b.e("s_lshl_b32 s36, s37, 8"); b.e("s_add_u32 s39, s39, s36"); b.e("s_add_u32 s40, s39, 16384")
            b.e("s_lshl_b32 s36, s29, 1"); spread(b, 41, 36); b.e("s_lshl_b32 s36, s37, 16"); b.e("s_add_u32 s41, s41, s36")
        if which == 2: lsrd(b, 16, oX1P, XSZ)
    def cost(x): return sum(8 if y.startswith("ds_") else 4 for y in x.split("\n"))
    def group(F, rd, r0, ex, fixed={}, zero=False):
        n = MT * NT; ex = [x if isinstance(x, tuple) else (x, -1) for x in ex]; done = 0
        order = [(nt, mt if nt % 2 == 0 else MT - 1 - mt) for nt in range(NT) for mt in range(MT)]
        need = sum(cost(x) for x, _ in ex) + 8 * len(rd) + sum(cost(x) for l in fixed.values() for x in l)
        cap = max(12, -(-need // (4 * n)) * 4)
        for k, (nt, mt) in enumerate(order):
            cc = A_(mt, nt)
            if str(which) not in os.environ.get("NOMF", ""): a.e(f"v_mfma_f32_16x16x32_bf16 {vr(cc,4)}, {vr(F+4*(MT+nt),4)}, {vr(F+4*mt,4)}, {0 if zero else vr(cc,4)}")
            b_ = cap - sum(cost(x) for x in fixed.get(k, [])); nv = 0
            if k >= r0 and done < len(rd): a.e(rd[done]); done += 1; b_ -= 8
            while ex and ex[0][1] < done and (cost(ex[0][0]) <= b_ or k == n - 1) and not (nv >= (1 if rd else 2) and ex[0][0].startswith("v_") and cap == 12 and k < n - 1):
                x = ex.pop(0)[0]; a.e(x); b_ -= cost(x); nv += x.startswith("v_")
            for x in fixed.get(k, []): a.e(x)
        assert done == len(rd) and not ex
    NR_ = MT + 2 * NT; BP = eval(os.environ.get("BP", "{3:3,4:2}")).get(which, 0)
    def stage(ex=(), ey=(), lim=NS-1, late=False, zero=False, pre=()):
        if str(which) in os.environ.get("GST", "") or os.environ.get("JIT"): mstamp(a, True)
        if which == 3: last = {0: NR_ - 1, 1: NR_ - 3}
        else: last = {i: MT + 2 * i + 1 for i in range(4)}
        book = ["s_add_u32 s42, s42, 16384", f"s_cmp_eq_u32 s42, {NA*16384}", "s_cselect_b32 s42, 0, s42",
                f"s_add_u32 s48, s48, {STB}", f"s_cmp_eq_u32 s48, {NW*STB}", "s_cselect_b32 s48, 0, s48", (f"v_add_u32 v{aa}, s42, v{a0}", MT - 1)]
        book += sorted([(f"v_add_u32 v{wa+i}, s48, v{w0+i}", last[i]) for i in range(nwr)], key=lambda x: x[1])
        n = MT * NT
        group(fX, reads(fY, 1), 0, book[:7] + list(ex) + book[7:], {3: [f"s_waitcnt lgkmcnt({min(15, NR_ - MT - 4 + 4)})"], 7: ["s_waitcnt lgkmcnt(8)"], n - 1: [f"s_waitcnt lgkmcnt({NR_ - MT - 2})"]}, zero)
        if late:
            b_ = Rec(); ep_setup(b_)
            group(fY, [], 0, ["s_add_u32 s43, s43, 1"] + b_.l, {min(BP, 3): ["s_waitcnt lgkmcnt(0)"]})
            if B0E: publish(a, ST_G2S, 4, pt, ctr=48)
            a.e("s_barrier")
            for x in reads(fX, 0): a.e(x)
            a.e(f"s_waitcnt lgkmcnt({NR_ - MT - 2})")
            return
        group(fY, reads(fX, 0), BP + 1, list(ey) + ["s_add_u32 s43, s43, 1", f"s_cmp_lt_u32 s43, {lim}"],
              {BP - 1: list(pre), BP: ["s_waitcnt lgkmcnt(0)", "s_barrier"], n - 1: [f"s_waitcnt lgkmcnt({NR_ - MT - 2})"]})
    w00 = c["S0"] * STB
    if which <= 2:
        def wrd(p, b): return [f"ds_read_b64_tr_b16 {vr((fX, fY)[p]+16*kk+4*nt+2*h,2)}, v{w0+nt} offset:{b*STB + wpos(nt, kk, h)[1]}" for kk in range(2) for nt in range(4) for h in range(2)]
        def dmf(b, fill, lo=0, hi=16):
            k = 0
            for kk in range(2):
                for nt in range(4):
                    for mt in ((0, 1) if nt % 2 == 0 else (1, 0)):
                        if lo <= k < hi:
                            a.e(f"v_mfma_f32_16x16x32_bf16 {vr(A_(mt,nt),4)}, {vr((fX, fY)[b&1]+16*kk+4*nt,4)}, {vr(AB+16*b+8*kk+4*mt,4)}, {vr(A_(mt,nt),4)}")
                            for x in fill[k]: a.e(x)
                        k += 1
        def spreadf(l, lo, hi):
            f = [[] for _ in range(16)]
            for i, x in enumerate(l): f[lo + i * (hi - lo) // len(l)].append(x)
            return f
        a.e("s_mov_b32 s43, 0"); ep_setup(a)
        CK = str(which) in DP; ck_ = aa
        def check(b):
            B = AB + 16 * b
            return [f"v_or3_b32 v{ck_}, v{B}, v{B+4}, v{B+8}", f"v_bitop3_b32 v{ck_}, v{ck_}, v{B+12}, 1 bitop3:0xa8", f"v_cmp_ne_u32 vcc, 0, v{ck_}"]
        L = a.lab("dm"); assert CK
        a.e("s_mov_b32 s53, 0"); a.e("s_mov_b32 s49, s44")
        if which == 2: a.e("s_barrier")
        for x in wrd(0, 0): a.e(x)
        if EARLY: a.e(f"s_branch {L}w")
        a.e(f"{L}p:")
        for x in try0: a.e(x)
        a.e(f"{L}w:")
        a.e("s_waitcnt vmcnt(0)")
        for x in check(0): a.e(x)
        a.e(f"s_cbranch_vccz {L}q"); a.e(f"s_sleep {os.environ.get('GNAP', '2')}")
        a.e("s_add_u32 s53, s53, 1"); a.e("s_cmp_lt_u32 s53, s61"); a.e(f"s_cbranch_scc1 {L}p"); a.e("s_mov_b32 s61, 0")
        a.e(f"{L}q:")
        mstamp(a)
        for x in seq(PR[2:], None): a.e(x)
        a.e("s_waitcnt lgkmcnt(0)")
        a.e(f"{L}:")
        for b in range(4):
            rd = wrd(1 - (b & 1), (b + 1) & 3); ex = [[] for _ in range(16)]
            ex[0], ex[1] = [[x] for x in aload((b - 1) & 3, 1)]
            if b == 0 and which == 1:
                for i, x in enumerate(["s_mov_b32 s44, s45", "s_mov_b32 s45, s46", "s_mov_b32 s46, s47", f"s_mov_b32 s47, {OOB}"]): ex[2 + i].append(x)
            if which == 2:
                ex[2].append("s_add_u32 s44, s44, 16384"); ex[10].append("s_add_u32 s44, s44, 16384")
                mv = [f"v_mov_b32 v{LO+k}, v{LO+k+2}" for k in range(6)] + [f"v_mov_b32 v{LO+6+k}, {OOB}" for k in range(2)]
                if b < 2:
                    for i, x in enumerate(mv[4*b:4*b+4]): ex[3 + i].append(x)
                if b == 3:
                    for k in range(2): ex[3 + k].append(f"v_mov_b32 v{LP+k}, v{LO+k}")
            if b == 2:
                ex[4].append("s_add_u32 s43, s43, 1"); ex[14].append("s_cmp_eq_u32 s43, 4")
                for nt, g_ in enumerate((11, 12, 13, 15)): ex[g_].append(f"v_add_u32 v{w0+nt}, {4*STB}, v{w0+nt}")
            if b == 3 and which == 1: ex[2].append("s_mov_b32 s49, s44")
            ex[7].append("s_waitcnt lgkmcnt(8)")
            ex[8], ex[9] = [[x] for x in aload(b, 0)]
            ex[10].append("s_waitcnt vmcnt(10)")
            if CK:
                for i, x in enumerate(check((b + 1) & 3)): ex[11 + i].append(x)
            fill = [rd[i:i+1] + ex[i] for i in range(16)]
            fill[14] = rd[14:16] + ex[14]; fill[15] = ex[15] + ["s_waitcnt lgkmcnt(8)"]
            if CK: fill[15] += [f"s_cbranch_vccnz {L}f{b}", f"{L}g{b}:"]
            if b == 2: fill[15].append(f"s_cbranch_scc1 {L}x")
            if b == 3: fill[15].append(f"s_branch {L}")
            dmf(b, fill)
        for b in range(4 if CK else 0):
            nb = (b + 1) & 3
            a.e(f"{L}f{b}:"); a.e("s_cselect_b32 s50, 1, 0")
            a.e(f"{L}h{b}:"); a.e(f"s_sleep {os.environ.get('GNAP', '2')}")
            if which == 2: a.e(f"s_sub_u32 s44, s44, {7*16384}")
            for j in range(4):
                bb = (nb + j) & 3
                for kk in range(2 if j < 3 else 1):
                    for x in past(seq([(bb, kk)], None)):
                        if bb >= nb and which == 1: x = x.replace("s44", "s49")
                        if bb >= nb and which == 2: x = x.replace(f", v{LO}, ", f", v{LP}, ").replace(f", v{LO+1}, ", f", v{LP+1}, ")
                        a.e(x)
            a.e("s_waitcnt vmcnt(10)")
            for x in check(nb): a.e(x)
            a.e("s_add_u32 s53, s53, 1"); a.e("s_cmp_ge_u32 s53, s61"); a.e("s_cselect_b32 s61, 0, s61"); a.e(f"s_cbranch_scc1 {L}k{b}")
            a.e(f"s_cbranch_vccnz {L}h{b}")
            a.e(f"{L}k{b}:"); a.e("s_cmp_eq_u32 s50, 1"); a.e(f"s_branch {L}g{b}")
        a.e(f"{L}x:")
    else:
        if which == 3:
            a.e(f"v_mov_b32 v{aa}, v{a0}")
            a.e("s_mov_b32 s42, 0"); a.e("s_mov_b32 s43, 0"); a.e(f"s_mov_b32 s48, {w00}")
            for i in range(nwr): a.e(f"v_add_u32 v{wa+i}, {w00}, v{w0+i}")
        if not (which == 3 and B0E): a.e("s_waitcnt lgkmcnt(0)"); a.e("s_barrier")
        mstamp(a)
        for x in reads(fX, 0): a.e(x)
        a.e(f"s_waitcnt lgkmcnt({NR_ - MT - 2})")
    if which == 4:
        def st2(j): return [(x, 0) for x in [f"s_add_u32 s36, s44, {j*224*1024}", f"buffer_store_dwordx4 {vr(C2R+4*j,4)}, v{l16}, s[16:19], s36 offen {SC}",
                            f"s_add_u32 s36, s45, {j*224*1024}", f"buffer_store_dwordx2 {vr(C2R+16+2*j,2)}, v{SO3}, s[16:19], s36 offen {SC}"]]
        assert PBB in (1, 2) and PC0 >= 2
        for st_ in range(2): stage(st2(2 * st_), st2(2 * st_ + 1), zero=st_ == 0, pre=[f"s_waitcnt vmcnt({4 * st_ + 2})"] if PBB == st_ + 1 else [])
        CW = 0
        if PC0 > 3:
            L0 = a.lab("mm"); a.e(f"{L0}:"); stage(lim=PC0); a.e(f"s_cbranch_scc1 {L0}")
        elif PC0 == 3: stage()
    if which == 3 and os.environ.get("PEEL3", "1") == "1": stage(late=True, zero=True)
    if which > 2:
        L = a.lab("mm"); a.e(f"{L}:")
        stage(pre=[f"s_waitcnt vmcnt({CW})"] if which == 4 else [])
        a.e(f"s_cbranch_scc1 {L}")
    b0 = Rec()
    if which == 4:
        a.e("s_cmp_eq_u32 s60, 1"); a.e("s_cbranch_scc1 G4_last")
        if not RPC: r_pre(b0)
    if which == 1:
        for mt in range(MT):
            for p in range(NT // 2): b0.e(f"buffer_load_dwordx4 {vr(RES2+(mt*(NT//2)+p)*4,4)}, v{LO+mt}, s[8:11], s41 offen offset:{p*1024} {SC}")
    early = True
    XW = {3: [f"s_waitcnt lgkmcnt({min(15, NR_ - MT)})"], 7: ["s_waitcnt lgkmcnt(8)"]}
    if which <= 2: dmf(3, spreadf(b0.l, 0, 8), 0, 8)
    else: group(fX, reads(fY, 1), 0, b0.l, XW)
    a.e("s_waitcnt lgkmcnt(0)")
    if which not in DL: a.e("s_barrier")
    b = Rec()
    if which in (1, 3):
        for nt in range(NT): b.e(f"ds_read_b128 {vr(cs+4*nt,4)}, v{t} offset:{nt*64}")
        if which == 3:
            for mt in range(MT): b.e(f"ds_read_b128 {vr(lns+4*mt,4)}, v{t2} offset:{mt*256}")
            for i in range(4): b.e(f"v_mov_b32 v{w0+i}, v{G4W+i}"); b.e(f"v_add_u32 v{wa+i}, {CFG[4]['S0']*CFG[4]['STB']}, v{G4W+i}")
            b.e("s_mov_b32 s42, 0"); b.e("s_mov_b32 s43, 0"); b.e(f"s_mov_b32 s48, {CFG[4]['S0']*CFG[4]['STB']}"); b.e(f"v_mov_b32 v{aa}, v{a0}")
            assert fY + 16 == RFO; r_addr(b, False)
        else:
            for mt in range(MT): b.e(f"ds_read_b64 {vr(lns+2*mt,2)}, v{t2} offset:{mt*256}")
    if which == 2: lsrd(b, 44, oST2, 24576)
    if which == 4:
        b.e(f"s_mul_i32 s36, s31, {oP1-oP0}"); b.e(f"s_add_u32 s36, s36, {oP0}")
        b.e("s_add_u32 s16, s62, s36"); b.e("s_addc_u32 s17, s63, 0"); b.e(f"s_mov_b32 s18, {XSZ}"); b.e("s_mov_b32 s19, 0x20000")
    if which <= 2: dmf(3, spreadf(b.l, 8, 15), 8, 16)
    else: group(fY, [], 0, b.l)
    mstamp(a)
    if which in (1, 3):
        AB = v(2 * MT, 2) if which == 1 else fY + 4
        def consts():
            for mt in range(MT if which == 1 else 0):
                r = lns + 2 * mt + 1
                a.e(f"v_mul_f32 v{AB+2*mt}, {f32(GC1)}, v{r}"); a.e(f"v_mul_f32 v{AB+2*mt+1}, v{r}, v{r}")
                a.e(f"v_mul_f32 v{AB+2*mt+1}, v{AB+2*mt+1}, v{AB+2*mt}"); a.e(f"v_mul_f32 v{AB+2*mt+1}, {f32(0.044715)}, v{AB+2*mt+1}")
                a.e(f"v_rcp_f32 v{r}, v{r}")
        def act(mt, nt):
            A = A_(mt, nt); P_ = [(A, tp), (A + 2, tp + 2)]; L_ = vr(lns + 2 * mt, 2); K_ = vr(AB + 2 * mt, 2)
            if which == 3: L_ = vr(lns + 4 * mt, 2); K_ = vr(lns + 4 * mt + 2, 2)
            for h in range(2):
                a.e(f"v_pk_fma_f32 {vr(A+2*h,2)}, {L_}, {vr(cs+4*nt+2*h,2)}, {vr(A+2*h,2)} op_sel_hi:[0,1,1] neg_lo:[1,0,0] neg_hi:[1,0,0]")
            for x, u in P_: a.e(f"v_pk_mul_f32 {vr(u,2)}, {vr(x,2)}, {vr(x,2)}")
            for x, u in P_: a.e(f"v_pk_fma_f32 {vr(u,2)}, {vr(u,2)}, {K_}, {K_} op_sel:[0,1,0] op_sel_hi:[1,1,0]")
            for x, u in P_: a.e(f"v_pk_mul_f32 {vr(u,2)}, {vr(u,2)}, {vr(x,2)}")
            for i in range(4): a.e(f"v_exp_f32 v{tp+i}, v{tp+i}")
            for x, u in P_: a.e(f"v_pk_fma_f32 {vr(u,2)}, {vr(u,2)}, {L_}, {L_} op_sel:[0,1,1] op_sel_hi:[1,1,1]")
            for i in range(4): a.e(f"v_rcp_f32 v{tp+i}, v{tp+i}")
            for x, u in P_: a.e(f"v_pk_mul_f32 {vr(x,2)}, {vr(x,2)}, {vr(u,2)}")
        def egroup(par, mt, nts, dst=None):
            for nt in nts: act(mt, nt)
            T = par * NT + nts[0]; P = (T >> 1) - ((par * NT) >> 1); B = A_(mt, nts[0]); D = B if dst is None else dst
            for k in range(2 * len(nts)): a.e(f"v_cvt_pk_bf16_f32 v{D+k}, v{B+2*k}, v{B+2*k+1}")
            if which == 3 and (mt < 3 or "3" in DP) and "1" in DP: mark(a, D, 1)
            if which == 1: mark(a, D, 0)
            if which == 3: return [f"s_add_u32 s36, s{44+P}, {mt*224*1024}", f"buffer_store_dwordx4 {vr(B,4)}, v{l16}, s[16:19], s36 offen {SC}"]
            return [f"buffer_store_dwordx4 {vr(B,4)}, v{so}, s[16:19], s{39+P} offen offset:{mt*256} {SC}"]
        def body(par):
            if which == 1: gs = [(0, 1), (2, 3)]
            else: gs = [(0, 1), (2, 3), (4, 5), (6,)] if par == 0 else [(1, 2), (3, 4), (5, 6), (0,)]
            k = 0; pend = []; sent = 0
            for gi_, g_ in enumerate(gs):
                for mt in range(MT):
                    if which == 3 and k == C0PUB:
                        a.e(f"s_waitcnt vmcnt({sent - 4})"); a.e("s_mov_b64 exec, 1"); a.e(f"ds_add_u32 v{EA+2}, v{EA+1}"); a.e("s_mov_b64 exec, -1"); mstamp(a)
                    if which == 3 and k == RK:
                        b_ = Rec(); r_pre(b_); l_ = [x for x in b_.l if x.startswith(("buffer", "s_mov_b32 s78"))]
                        a.e("s_cmp_eq_u32 s60, 1"); a.e(f"s_cbranch_scc1 G4_p1{par}")
                        for x in l_: a.e(x)
                        a.e(f"s_branch G4_p2{par}"); a.e(f"G4_p1{par}:")
                        for x in last_res(): a.e(x)
                        a.e(f"G4_p2{par}:")
                        if 4 <= k < C0PUB: sent += 8
                    st_ = egroup(par, mt, g_, None if gi_ < 2 else C2R + 4 * mt if gi_ == 2 else C2R + 16 + 2 * mt); k += 1
                    if which == 3 and gi_ < 3:
                        a.e(f"ds_write_b128 v{EA}, {vr(A_(mt, g_[0]) if gi_ < 2 else C2R + 4 * mt, 4)} offset:{gi_*16384 + mt*2048}")
                    if gi_ < 2: pend.append(st_)
                    n = len(pend) if (which == 1 or k <= 4 or k == 16) else 0 if k <= STQ else min(1, len(pend))
                    for _ in range(n):
                        for x in pend.pop(0): a.e(x)
                        sent += 1
            if which == 3:
                a.e("s_waitcnt lgkmcnt(0)")
                if par == 0: a.e("s_mov_b32 s44, s46"); a.e("s_mov_b32 s45, s47")
                else: a.e("s_add_u32 s45, s44, 512"); a.e("s_mov_b32 s44, s47")
        a.e("s_waitcnt lgkmcnt(0)")
        consts()
        if which == 3:
            a.e("s_cmp_eq_u32 s35, 1"); a.e(f"s_cbranch_scc1 {nm}_e1")
            body(0); a.e(f"s_branch {nm}_e2"); a.e(f"{nm}_e1:"); body(1); a.e(f"{nm}_e2:")
        else: body(0)
    if which == 2:
        xf = v(2, 2); S = v(2 * MT, 2); pp = v(2, 2); mn = v(2, 2)
        for mt in range(MT):
            a.e(f"s_add_u32 s36, s39, {mt*65536}")
            for p in range(NT // 2):
                R = res + (mt * (NT // 2) + p) * 4
                for e in range(4):
                    X = A_(mt, 2 * p) + 2 * e
                    a.e(f"v_cvt_pk_bf16_f32 v{R+e}, v{X}, v{X+1}")
                if DP: mark(a, R, 0)
                a.e(f"buffer_store_dwordx4 {vr(R,4)}, v{l16}, s[16:19], s36 offen offset:{p*1024} {SC}")
        if which in DL: a.e("s_barrier")
        if OWN3:
            a.e("s_lshl_b32 s36, s37, 11"); a.e(f"v_add_u32 v{t2}, s36, v{l16}")
            for i in range(4): a.e(f"ds_write_b128 v{t2}, {vr(res+4*i,4)} offset:{1024*i}")
        for i in range(MT * NT * 2): unpack(a, acc + 2 * i, acc + 2 * i + 1, res + i)
        mstamp(a)
        publish(a, which, 4, pt)
        if B0E: a.e("s_waitcnt lgkmcnt(0)"); a.e("s_barrier")
        mstamp(a)
        for mt in range(MT):
            B = A_(mt, 0); Sm = S + 2 * mt
            a.e(f"v_pk_add_f32 {vr(pp,2)}, {vr(B,2)}, {vr(B+2,2)}"); a.e(f"v_pk_mul_f32 {vr(xf,2)}, {vr(B,2)}, {vr(B,2)}")
            for i in range(1, NT * 2):
                if i > 1: a.e(f"v_pk_add_f32 {vr(pp,2)}, {vr(pp,2)}, {vr(B+2*i,2)}")
                a.e(f"v_pk_fma_f32 {vr(xf,2)}, {vr(B+2*i,2)}, {vr(B+2*i,2)}, {vr(xf,2)}")
            a.e(f"v_add_f32 v{Sm}, v{pp}, v{pp+1}"); a.e(f"v_add_f32 v{Sm+1}, v{xf}, v{xf+1}")
            for op in ("v_permlane16_swap_b32", "v_permlane32_swap_b32"):
                for k in range(2): a.e(f"v_mov_b32 v{pp+k}, v{Sm+k}")
                for k in range(2): a.e(f"{op} v{Sm+k}, v{pp+k}")
                a.e(f"v_pk_add_f32 {vr(Sm,2)}, {vr(Sm,2)}, {vr(pp,2)}")
        a.e(f"v_cmp_eq_u32 vcc, 0, v{G}"); a.e(f"v_cndmask_b32 v{S}, v{S+2}, v{S}, vcc"); a.e(f"v_cndmask_b32 v{S+1}, v{S+3}, v{S+1}, vcc")
        spread(a, 40, 29); a.e("s_lshl_b32 s36, s34, 8"); a.e("s_add_u32 s40, s40, s36")
        a.e(f"v_lshlrev_b32 v{t2}, 3, v{lane}")
        a.e("s_bfm_b64 exec, 32, 0")
        a.e(f"buffer_store_dwordx2 {vr(S,2)}, v{t2}, s[44:47], s40 offen {SC}")
        a.e("s_mov_b64 exec, -1")
    if which == 4:
        for mt in range(MT):
            a.e(f"s_add_u32 s36, s39, {mt*65536}")
            for p in range(NT // 2):
                B = A_(mt, 2 * p)
                for e in range(4): a.e(f"v_cvt_pk_bf16_f32 v{B+e}, v{B+2*e}, v{B+2*e+1}")
                if "r" in DP: mark(a, B, 1)
                a.e(f"buffer_store_dwordx4 {vr(B,4)}, v{l16}, s[16:19], s36 offen offset:{p*1024} {SC}")
    if which != 2:
        if which in DL: a.e("s_barrier")
        mstamp(a)
        if which == 4 and "r" not in DP: publish(a, which, 4, pt)
        mstamp(a)
    if which == 4:
        a.e("s_branch NEXT")
        a.e("G4_last:")
        PX = 208; oa = 224; xf = 226
        group(fX, reads(fY, 1), 0, [(f"s_load_dwordx2 s[6:7], s[0:1], {D_OUT}", 9)], XW)
        a.e("s_waitcnt lgkmcnt(0)")
        b = Rec()
        lsrd(b, 16, oX1P if "f" in DP else MB, XSZ)
        b.srd(20, 6, 4 * MB)
        if "f" not in DP:
            b.e("s_lshl_b32 s44, s29, 2"); b.e("s_add_u32 s44, s44, s30"); b.e("s_lshl_b32 s44, s44, 7"); b.e("s_xor_b32 s45, s44, 4096")
            b.e("s_add_u32 s44, s44, s55"); b.e(f"s_add_u32 s44, s44, {oFP}"); b.e("s_add_u32 s45, s45, s55"); b.e(f"s_add_u32 s45, s45, {oFP}")
            b.e(f"v_mov_b32 v{pt+1}, s45"); b.e(f"v_mov_b32 v{pt+2}, s52"); b.e(f"v_mov_b32 v{pt+3}, 0")
        else: b.e("s_add_u32 s44, s40, 65536")
        b.e("s_lshl_b32 s46, s28, 3"); b.e("s_add_u32 s46, s46, s37"); b.e("s_lshl_b32 s47, s31, 1"); b.e("s_add_u32 s46, s46, s47"); b.e("s_lshl_b32 s46, s46, 15")
        b.e("s_lshl_b32 s47, s38, 5"); b.e("s_add_u32 s46, s46, s47"); b.e(f"s_add_u32 s47, s46, {16*2048}")
        b.e(f"v_and_b32 v{oa+1}, 1, v{G}"); b.e(f"v_lshlrev_b32 v{oa}, 11, v{J}"); b.e(f"v_lshl_add_u32 v{oa}, v{oa+1}, 5, v{oa}")
        b.e(f"v_lshrrev_b32 v{oa+1}, 1, v{G}"); b.e(f"v_lshl_add_u32 v{oa}, v{oa+1}, 4, v{oa}")
        FULLN = os.environ.get("FULLN", "1") == "1"
        if FULLN:
            b.e(f"v_lshrrev_b32 v{oa+1}, 3, v{J}"); b.e(f"v_mul_u32_u24 v{oa+1}, {8*2048 - 64}, v{oa+1}"); b.e(f"v_sub_u32 v{oa}, v{oa}, v{oa+1}")
            b.e(f"v_add_u32 v{oa+1}, {8*2048}, v{oa}")
        OT = int(os.environ.get("OT", "0"))
        if OT == 1: b.e("s_mov_b64 exec, 1"); b.e(f"buffer_load_dword v{xf}, v{oa}, s[20:23], s46 offen {SC}"); b.e("s_mov_b64 exec, -1")
        if OT == 2:
            for k in range(4): b.e(f"buffer_load_dword v{xf}, v{oa+(k&1)}, s[20:23], s{46+(k>>1)} offen {SC}")
        group(fY, [], 0, b.l)
        mstamp(a)
        def send(m0_):
            for i in range(2):
                a.e(f"s_add_u32 s36, s41, {i*65536}")
                for p in range(2):
                    B = A_(m0_ + i, 2 * p)
                    for e in range(4): a.e(f"v_cvt_pk_bf16_f32 v{B+e}, v{B+2*e}, v{B+2*e+1}")
                    if "f" in DP: mark(a, B, 1)
                    a.e(f"buffer_store_dwordx4 {vr(B,4)}, v{l16}, s[16:19], s36 offen offset:{p*1024} {SC}")
        a.e("s_cmp_eq_u32 s31, 0"); a.e("s_cbranch_scc1 G4_k0")
        send(0)
        for i in range(0, 32, 2): a.e(f"v_pk_mov_b32 {vr(acc+i,2)}, {vr(acc+32+i,2)}, {vr(acc+32+i,2)} op_sel:[0,1]")
        a.e("s_branch G4_k1")
        a.e("G4_k0:")
        send(2)
        a.e("G4_k1:")
        a.e("s_mov_b32 s78, 0x3f80"); a.e("s_mov_b32 s79, 0x3f800000")
        def addp(k, R):
            B = A_(k >> 1, 2 * (k & 1))
            if DOT:
                for e in range(8): a.e(f"v_dot2_f32_bf16 v{B+e}, v{R+e//2}, s{78+(e&1)}, v{B+e}")
                return
            for e in range(4):
                unpack(a, xf + 2 * (e & 1), xf + 1 + 2 * (e & 1), R + e)
                a.e(f"v_pk_add_f32 {vr(B+2*e,2)}, {vr(B+2*e,2)}, {vr(xf+2*(e&1),2)}")
        for k in range(4): addp(k, RX[2 * k])
        if "f" not in DP:
            a.e("s_waitcnt vmcnt(0)")
            a.e("s_mov_b64 exec, 1"); a.e(f"buffer_store_dword v{pt+2}, v{pt+3}, s[56:59], s44 offen {SC}"); a.e("s_mov_b64 exec, -1")
        mstamp(a)
        for k in range(4): addp(k, RX[2 * k + 1])
        if "f" in DP:
            data_poll(a, [f"buffer_load_dwordx4 {vr(PX+4*(2*i+p),4)}, v{l16}, s[16:19], s{(40, 44)[i]} offen offset:{p*1024} {SC}" for i in range(2) for p in range(2)],
                      [PX + 4 * k for k in range(4)], t, int(os.environ.get("FNAP", "2")), 0, int(os.environ.get("FCAN", "0")))
            mstamp(a)
        else:
            poll_core(a, pt, [pt + 1], 1, nap=2)
            mstamp(a)
            for i in range(2):
                a.e(f"s_add_u32 s36, s40, {i*65536}")
                for p in range(2): a.e(f"buffer_load_dwordx4 {vr(PX+4*(2*i+p),4)}, v{l16}, s[16:19], s36 offen offset:{p*1024} {SC}")
        for k in range(4):
            if "f" not in DP: a.e(f"s_waitcnt vmcnt({3 - (k & 1) if FULLN else 3})")
            addp(k, PX + 4 * k)
            B = A_(k >> 1, 2 * (k & 1))
            if os.environ.get("EPS"):
                for e in range(8): a.e(f"v_mul_f32 v{B+e}, {f32(1 + float(os.environ['EPS']) * (1 if e & 1 else -1))}, v{B+e}")
            for e in range(4): a.e(f"v_cvt_pk_bf16_f32 v{B+e}, v{B+2*e}, v{B+2*e+1}")
            for e in range(2): a.e(f"v_permlane16_swap_b32 v{B+e}, v{B+2+e}")
            if not FULLN: a.e(f"buffer_store_dwordx4 {vr(B,4)}, v{oa}, s[20:23], s{46+(k>>1)} offen offset:{64*(k&1)} {os.environ.get('OS', '')}")
            elif k & 1:
                X, Y, T = B - 8, B, B + 4
                for e in range(4): a.e(f"v_mov_b32 v{T+e}, v{X+e}")
                for e in range(4): a.e(f"v_mov_b32_dpp v{X+e}, v{Y+e} row_ror:8 row_mask:0xf bank_mask:0xc")
                for e in range(4): a.e(f"v_mov_b32_dpp v{Y+e}, v{T+e} row_ror:8 row_mask:0xf bank_mask:0x3")
                a.e(f"buffer_store_dwordx4 {vr(X,4)}, v{oa}, s[20:23], s{46+(k>>1)} offen {os.environ.get('OS', SC)}")
                a.e(f"buffer_store_dwordx4 {vr(Y,4)}, v{oa+1}, s[20:23], s{46+(k>>1)} offen {os.environ.get('OS', SC)}")
        a.e("s_branch K_fin")
    assert v.hi <= {1: RES2, 2: RES2, 3: RYY, 4: 176}[which], v.hi
    return v.hi

def k_mega(a):
    nm = KNAME; a.begin_kernel(nm)
    a.e("s_cmp_ge_u32 s2, 256"); a.e("s_cbranch_scc1 K_end")
    a.e(f"s_load_dwordx8 s[8:15], s[0:1], {A_K}")
    if FAST:
        if STAMP: a.e("s_memrealtime s[46:47]")
        front_first(a)
    a.e(f"s_load_dwordx2 s[6:7], s[0:1], {A_Q}"); a.e(f"s_load_dwordx8 s[68:75], s[0:1], {B_W1}")
    a.e(f"s_load_dwordx2 s[4:5], s[0:1], {D_WS}"); a.e(f"s_load_dwordx2 s[84:85], s[0:1], {D_DBG}")
    if not (FAST and STAMP): a.e("s_memrealtime s[46:47]")
    a.e(f"s_load_dwordx2 s[96:97], s[0:1], {A_SSMD}")
    a.e("v_lshrrev_b32 v1, 6, v0"); a.e("v_readfirstlane_b32 s30, v1")
    if CODEPF:
        a.e("s_getpc_b64 s[48:49]"); a.e("K_pc:")
        a.e("s_lshr_b32 s36, s2, 3"); a.e("s_lshl_b32 s36, s36, 11")
        a.e("v_lshlrev_b32 v4, 2, v0"); a.e("v_add_u32 v4, s36, v4")
        a.e("v_cmp_gt_u32 vcc, K_end-K_pc-8, v4"); a.e("s_and_saveexec_b64 s[36:37], vcc"); a.e("s_cbranch_execz K_3")
        a.e("v_mov_b32 v5, s49"); a.e("v_add_co_u32 v4, vcc, s48, v4"); a.e("v_addc_co_u32 v5, vcc, 0, v5, vcc")
        a.e("global_load_dword v250, v[4:5], off")
        a.e("K_3:"); a.e("s_mov_b64 exec, -1")
    for _ in range(int(os.environ.get("SDELAY", "0"))): a.e("s_sleep 127")
    front_loads(a)
    a.e("v_and_b32 v1, 63, v0"); a.e("v_lshlrev_b32 v2, 4, v1"); a.e("v_lshlrev_b32 v3, 2, v1")
    a.e("s_and_b32 s32, s2, 7"); a.e("s_lshr_b32 s33, s2, 3")
    a.e("s_and_b32 s28, s32, 2"); a.e("s_lshr_b32 s34, s32, 2"); a.e("s_or_b32 s28, s28, s34")
    a.e("s_lshl_b32 s28, s28, 2"); a.e("s_and_b32 s34, s33, 3"); a.e("s_add_u32 s28, s28, s34")
    a.e("s_and_b32 s31, s32, 1"); a.e("s_lshr_b32 s33, s33, 2")
    a.e("s_lshl_b32 s29, s31, 3"); a.e("s_add_u32 s29, s29, s33")
    if MAP == 8:
        a.e("s_lshr_b32 s33, s2, 3")
        a.e("s_and_b32 s28, s33, 4"); a.e("s_lshl_b32 s28, s28, 1"); a.e("s_and_b32 s34, s32, 4"); a.e("s_or_b32 s28, s28, s34"); a.e("s_and_b32 s34, s33, 3"); a.e("s_or_b32 s28, s28, s34")
        a.e("s_and_b32 s29, s32, 3"); a.e("s_lshl_b32 s29, s29, 2"); a.e("s_lshr_b32 s33, s33, 3"); a.e("s_or_b32 s29, s29, s33")
        a.e("s_lshr_b32 s31, s29, 3"); a.e("s_and_b32 s33, s29, 7")
    if MAP == 2:
        a.e("s_lshr_b32 s33, s2, 3")
        a.e("s_and_b32 s28, s32, 2"); a.e("s_lshl_b32 s28, s28, 2"); a.e("s_and_b32 s34, s32, 4"); a.e("s_or_b32 s28, s28, s34")
        a.e("s_and_b32 s34, s32, 1"); a.e("s_lshl_b32 s34, s34, 1"); a.e("s_or_b32 s28, s28, s34"); a.e("s_and_b32 s34, s33, 1"); a.e("s_or_b32 s28, s28, s34")
        a.e("s_lshr_b32 s29, s33, 1"); a.e("s_lshr_b32 s31, s29, 3"); a.e("s_and_b32 s33, s29, 7")
    a.e({4: "s_lshl_b32 s67, s33, 1", 8: "s_lshl_b32 s67, s33, 2", 2: "s_mov_b32 s67, s29"}[MAP]); a.e(f"s_and_b32 s67, s67, {int(os.environ.get('RMASK', '0'))}")
    a.e(f"s_xor_b32 s99, s29, {os.environ.get('G1X', '1')}")
    a.e("s_mov_b32 s60, 0"); a.e("s_mov_b32 s61, 40000"); a.e("s_mov_b32 s52, 0")
    a.e("s_mov_b32 s55, 0"); a.e("s_mov_b32 s92, 0"); a.e("s_mov_b32 s93, 0"); a.e("s_mov_b32 s94, 0")
    a.srd(56, 4, HSB)
    if os.environ.get("FIXT"): a.e("s_mov_b32 s101, s46")
    r_addr(a)
    a.e(f"s_add_u32 s62, s4, {LB0}"); a.e("s_addc_u32 s63, s5, 0")
    if STAMP:
        a.e("s_mov_b32 s66, 1"); a.e("v_mov_b32 v255, -1"); a.e("s_mov_b32 s95, 0"); a.e("v_writelane_b32 v255, s46, 0")
    mstamp(a)
    if os.environ.get("WBENCH"):
        a.e("s_waitcnt vmcnt(0)"); a.e("s_barrier")
        a.e("s_cmp_lt_u32 s30, 6"); a.e("s_cbranch_scc1 WB_end")
        for w in (1, 2, 3, 4):
            mstamp(a); w_setup(a, w); a.e("s_waitcnt vmcnt(0)"); mstamp(a); a.e("s_sleep 40")
        a.e("WB_end:"); a.e("s_branch K_dump")
    front_a(a); mstamp(a)
    for r in range(238, 248): a.e(f"v_mov_b32 v{r}, 0")
    a.e("s_cmp_ge_u32 s30, 4"); a.e("s_cbranch_scc1 FR_b")
    front_conv(a); hi = 0
    mstamp(a)
    front_arrive(a, True)
    a.e("s_branch FR_end")
    a.e("FR_b:")
    front_b(a)
    a.e("FR_end:")
    mstamp(a)
    a.e("LAYER:")
    if os.environ.get("XDELAY"): a.e(f"s_sleep {os.environ['XDELAY']}")
    hi = max(hi, r_stage(a, False))
    mstamp(a)
    a.e("s_cmp_ge_u32 s30, 4"); a.e("s_cbranch_scc1 LOADERS")
    if CPRIO: a.e(f"s_setprio {CPRIO}")
    for w in (1, 2, 3, 4):
        a.lines.append(f"; ---- G{w}: compute waves (set-up, K loop, epilogue, publish)")
        hi = max(hi, g_compute(a, w))
    a.e("LOADERS:")
    if SB[2]:
        a.e("s_cmp_lg_u32 s60, 0"); a.e("s_cbranch_scc1 LD_0"); sb(a, SB[2]); a.e("LD_0:")
    if PRIO: a.e(f"s_setprio {PRIO}")
    a.e("s_cmp_ge_u32 s30, 6"); a.e("s_cbranch_scc1 WLOAD")
    for w in (1, 2, 3, 4): a_loader(a, w)
    a.e("s_branch NEXT")
    a.e("WLOAD:")
    a.e("s_cmp_eq_u32 s60, 1"); a.e("s_cbranch_scc1 WL_1")
    w_setup(a, 1, pre=False); w1_slots(a, range(9 - W1G), pace=12); mstamp(a)
    a.e("s_branch WL_2")
    a.e("WL_1:")
    w_setup(a, 1, pre=False); w1_slots(a, range(3 - W1L), pace=12)
    a.e("WL_2:")
    for w in (1, 2, 3, 4):
        w_loader(a, w)
        if w == 2:
            c = CFG[3]; w_setup(a, 3, pre=False); n_ = 3 if W33 else 2; a.e(f"s_mov_b32 s42, {(c['S0'] + n_) % c['NW'] * c['STB']}"); a.e(f"s_mov_b32 s44, {n_}")
        if w == 3: w_setup(a, 4)
    a.e("NEXT:")
    a.e("s_setprio 0")
    a.e("s_add_u32 s60, s60, 1"); a.e(f"s_add_u32 s55, s55, {LSTR}")
    a.e(f"s_add_u32 s62, s62, {LSTR}"); a.e("s_addc_u32 s63, s63, 0")
    a.e("s_branch LAYER")
    a.e("K_fin:")
    if os.environ.get("FIXT"):
        a.e("FX_l:"); a.e("s_sleep 4"); a.e("s_memrealtime s[64:65]"); a.e("s_waitcnt lgkmcnt(0)"); a.e("s_sub_u32 s64, s64, s101")
        if os.environ.get("FIX0"): a.e("s_add_u32 s64, s64, s101"); a.e("s_lshl_b32 s64, s64, 6"); a.e("s_sub_u32 s64, s64, s52"); a.e("s_lshr_b32 s64, s64, 6")
        a.e(f"s_cmp_lt_u32 s64, {os.environ['FIXT']}"); a.e("s_cbranch_scc1 FX_l")
    if STAMP:
        a.e("K_dump:")
        a.e("s_waitcnt vmcnt(0)")
        mstamp(a)
        a.srd(96, 4, 16 * MB, off=200 * MB)
        a.e("s_lshl_b32 s66, s2, 3"); a.e("s_add_u32 s66, s66, s30"); a.e("s_lshl_b32 s66, s66, 8")
        a.e("v_writelane_b32 v255, s95, 63")
        a.e("buffer_store_dword v255, v3, s[96:99], s66 offen")
        if os.environ.get("DBGOUT"):
            a.e("s_cmp_lg_u32 s66, 0"); a.e("s_cbranch_scc1 K_end")
            a.e(f"s_load_dwordx2 s[96:97], s[0:1], {D_DBG}"); a.e("s_mov_b32 s98, 64"); a.e("s_waitcnt lgkmcnt(0)")
            a.e("v_readlane_b32 s64, v255, 0"); a.e("v_mov_b32 v10, 0")
            for i, j in enumerate(eval(os.environ["DBGOUT"])):
                a.e(f"v_readlane_b32 s65, v255, {j}"); a.e("s_sub_u32 s65, s65, s64"); a.e("v_mov_b32 v11, s65")
                a.e(f"buffer_store_dword v11, v10, s[96:99], 0 offen offset:{8+4*i}")
    a.e("s_endpgm")
    emit_subs(a)
    a.e("K_end:")
    assert hi <= PV
    a.end_kernel(nm, 256)
    if TAB: tab_data(a)
    a.launches.append(f"; @launch grid=(256,1,1) block=(512,1,1) lds={LDS_TOTAL}")

HEADER = open("interleave_layers__ssm_conv_h3__mixer_s_mlp__prompt.s.ref").read().split("; Override launch")[0]
DOC = """; One persistent kernel, 256 workgroups x 8 waves (one per CU), generated by dev/gen30.py.
"""
def main(out):
    a = Asm()
    k_mega(a)
    DS = os.environ.get("DS")
    if DS:
        o = []
        for l in a.lines:
            o.append(l)
            if "buffer_store_dwordx" in l and "sc1" in l and any(k in l for k in DS.split(",")): o.append(l.replace(" sc1", ""))
        a.lines = o
    notes = {
        "K_pc:": "each workgroup reads 2 KB of this kernel's code so that later instruction fetches are served on chip",
        "KV_t0:": "k / v / tap loads of the u^T tile (64 times x 128 channels); workgroup 0 has posted the launch tag (a clock value) in d_debug",
        "HB_2:": "u^T tile out, arrival counters initialised to the tag, shifted filter copies into LDS, LayerNorm(q)",
        "CV_w:": "long causal convolution as Toeplitz MFMAs, one channel per wave",
        "FR_b:": "waves 4-7 beside the convolution: memory-locality vote (timed loads, layout choice only), weight column sums, weight touches",
        "LAYER:": "row stage: residual sums, LayerNorm chain, x + LN(x)*y for 8 rows per workgroup",
        "LOADERS:": "waves 4,5: activation tiles by LDS-DMA (after the producers' counters are complete)",
        "WLOAD:": "waves 6,7: weight tiles by LDS-DMA in their original layout (read back with transposing LDS loads)",
        "G4_last:": "last layer: the two K halves exchange half tiles, add the residuals and write the output",
    }
    o = []
    for l in a.lines:
        if l.strip() in notes: o.append("; ---- " + notes[l.strip()])
        if l.strip().startswith("s_sleep"): l += "    ; back-off inside a wait loop"
        o.append(l)
    a.lines = o
    open(out, "w").write(a.text(HEADER + DOC))
    print("nops added:", a.nops_added)

if __name__ == "__main__":
    main(sys.argv[1] if len(sys.argv) > 1 else "interleave_layers__ssm_conv_h3__mixer_s_mlp__prompt.s")
```

```python
import sys, os, math, struct
sys.path.insert(0, "dev")
from asmgen import Asm

KNAME = "interleave_layers__ssm_conv_h3__mixer_s_mlp__prompt_kernel"
MB = 1 << 20
UT, Y = 24 * MB, 28 * MB
CSP = {1: 20 * MB, 3: 20 * MB + 128 * 1024}
A_Q, A_K, A_V, A_SH, A_SSMK, A_SSMD, B_X, B_W1, B_W2, B_W3, B_W4, D_OUT, D_DBG, D_WS = [8 * i for i in range(14)]
STAMP = int(os.environ.get("STAMP", "0"))
def f32(x): return "0x%08x" % struct.unpack("<I", struct.pack("<f", x))[0]
GC1 = -2.0 * math.sqrt(2.0 / math.pi) * math.log2(math.e)
GC2 = GC1 * 0.044715

class VA:
    def __init__(self, start=1): self.n = start; self.hi = start
    def __call__(self, cnt=1, al=None):
        if al is None: al = 2 if cnt > 1 else 1
        self.n = (self.n + al - 1) // al * al
        r = self.n; self.n += cnt; self.hi = max(self.hi, self.n); return r
def vr(b, n): return f"v[{b}:{b+n-1}]" if n > 1 else f"v{b}"

def unpack(a, lo, hi, src):
    a.e(f"v_lshlrev_b32 v{lo}, 16, v{src}")
    a.e(f"v_and_b32 v{hi}, 0xffff0000, v{src}")
RND = int(os.environ.get("RND", "0"))
def round2(a, x, y, tmp):
    if not RND: return
    a.e(f"v_cvt_pk_bf16_f32 v{tmp}, v{x}, v{y}")
    unpack(a, x, y, tmp)
def round1(a, x):
    if not RND: return
    a.e(f"v_cvt_pk_bf16_f32 v{x}, v{x}, v{x}")
    a.e(f"v_lshlrev_b32 v{x}, 16, v{x}")
def red_g(a, x, t):
    a.e(f"v_mov_b32 v{t}, v{x}"); a.e(f"v_permlane16_swap_b32 v{x}, v{t}"); a.e(f"v_add_f32 v{x}, v{x}, v{t}")
    a.e(f"v_mov_b32 v{t}, v{x}"); a.e(f"v_permlane32_swap_b32 v{x}, v{t}"); a.e(f"v_add_f32 v{x}, v{x}, v{t}")
def ln_finish(a, mean, var, rs, s=None):
    round1(a, mean); round1(a, var)
    a.e(f"v_add_f32 v{var}, {f32(1e-5)}, v{var}"); round1(a, var)
    if not RND and s is None: a.e(f"v_rsq_f32 v{rs}, v{var}"); return
    a.e(f"v_sqrt_f32 v{var}, v{var}"); round1(a, var)
    if s is not None: a.e(f"v_mov_b32 v{s}, v{var}")
    a.e(f"v_rcp_f32 v{rs}, v{var}")


FLG = 22 * MB + int(os.environ.get("FOFF", "0"))
LB0, LSTR, GSTR = 32 * MB, 4 * MB, 16 * MB
oH2 = 4 * MB; oSM = oH2 + 1792 * 1024; oFP = 16384; oST2 = oSM + 32768; oLNS = oSM + 65536
oX3, oX1P, oP0, oP1 = [i * 512 * 1024 for i in range(4)]
DP = os.environ.get("DP", "rf12")
if "r" in DP: oP0, oP1 = oX3, oX1P
def mark(a, r, bit): a.e(f"v_or_b32 v{r}, 1, v{r}" if bit else f"v_and_b32 v{r}, -2, v{r}")
DOT = int(os.environ.get("DOT", "1"))
def data_poll(a, loads, regs, t, nap, first=0, canary=False):
    L = a.lab("dp"); D = a.lab("dq")
    if canary:
        a.e("s_bfm_b64 exec, 1, 63"); data_poll(a, loads, regs, t, nap, first); a.e("s_mov_b64 exec, -1"); first = 0
    a.e("s_mov_b32 s53, 0")
    if first:
        f2 = int(os.environ.get("RFIRST2", "10"))
        if f2: a.e(f"s_sleep {f2}")
        a.e("s_cmp_ge_u32 s30, 6"); a.e(f"s_cbranch_scc1 {L}"); a.e(f"s_sleep {first - f2}")
    a.e(f"{L}:")
    for x in loads: a.e(x)
    a.e("s_waitcnt vmcnt(0)")
    a.e(f"v_bitop3_b32 v{t}, v{regs[0]}, v{regs[1]}, v{regs[2]} bitop3:0x80"); a.e(f"v_bitop3_b32 v{t}, v{t}, v{regs[3]}, 1 bitop3:0x80")
    a.e(f"v_cmp_eq_u32 vcc, 0, v{t}"); a.e(f"s_cbranch_vccz {D}")
    a.e(f"s_sleep {nap}")
    a.e("s_add_u32 s53, s53, 1"); a.e("s_cmp_lt_u32 s53, s61"); a.e(f"s_cbranch_scc1 {L}")
    a.e("s_mov_b32 s61, 0")
    a.e(f"{D}:")
XSZ = 512 * 1024 - 8192; H2SZ = 1792 * 1024 - 8192
HSB = 160 * MB; PITCH = 65536 + int(os.environ.get("SKEW", "0")); oHS = MB
def fso(stage): return int(stage * 256)
def spread(a, d, src):
    a.e(f"s_lshr_b32 s53, s{src}, 3"); a.e("s_lshl_b32 s53, s53, 14"); a.e(f"s_and_b32 s{d}, s{src}, 7"); a.e(f"s_lshl_b32 s{d}, s{d}, 10"); a.e(f"s_add_u32 s{d}, s{d}, s53")
ST_R, ST_G1, ST_G2, ST_G3, ST_G4, ST_R2, ST_G3B, ST_G3A = range(8); ST_G2S = 5.5
F_KVT, F_FRONT, F_CS = FLG, FLG + 32768, FLG + 53248; F_VOTE = F_FRONT + 16384; F_RES = F_VOTE
LDS_TOTAL = 163840
AUX = LDS_TOTAL - 4096
SC = "sc1"
PSLEEP = int(os.environ.get("PSLEEP", "5"))
ROT = int(os.environ.get("ROT", "1"))
PACE = int(os.environ.get("PACE", "8"))
PDEPTH = int(os.environ.get("PDEPTH", "1"))
WROT = int(os.environ.get("WROT", "1"))
PRIO = int(os.environ.get("PRIO", "0"))
STQ = int(os.environ.get("STQ", "12"))
CPRIO = int(os.environ.get("CPRIO", "0"))
FSLEEP = int(os.environ.get("FSLEEP", "6"))
CSPRIO = int(os.environ.get("CSPRIO", "1"))
NT = os.environ.get("NT", "nt"); HALO = int(os.environ.get("HALO", "0")); NTK = os.environ.get("NTK", "" if HALO else NT); NTH = os.environ.get("NTH", NT)
W1F = int(os.environ.get("W1F", "7"))
WSC = eval(os.environ.get("WSC", "{}"))
TLBW = int(os.environ.get("TLBW", "0"))
T12 = eval(os.environ.get("T12", "{}"))
T23 = eval(os.environ.get("T23", "()"))
OWN3 = int(os.environ.get("OWN3", "1"))
PUB2 = int(os.environ.get("PUB2", "4"))
MAP = int(os.environ.get("MAP", "4"))
HSPLIT = int(os.environ.get("HSPLIT", "2"))
W1G = int(os.environ.get("W1G", "9"))
PWAIT = int(os.environ.get("PWAIT", "8"))
DL = eval(os.environ.get("DL", "[2,4]"))
PACES = eval(os.environ.get("PACES", "{4:6}"))
C0PUB = int(os.environ.get("C0PUB", "6"))
LNSL = AUX + 1024

CFG = {1: dict(WM=4, WN=1, MT=2, NT=4, KBT=32, NS=16, NA=1.5, NW=16, A=oX3, W=B_W1, LDW=2048),
       2: dict(WM=4, WN=1, MT=2, NT=4, KBT=32, NS=16, NA=0, NW=16, A=oHS, W=B_W2, LDW=2048),
       3: dict(WM=2, WN=2, MT=4, NT=7, KBT=32, NS=16, NA=3, NW=3, A=oX1P, W=B_W3, LDW=7168, NPRE=2, WR=1, S0=2, WB=73728),
       4: dict(WM=2, WN=2, MT=4, NT=4, KBT=112, NS=28, NA=3, NW=6, A=oH2, W=B_W4, LDW=2048)}
for w, d in eval(os.environ.get("CFG", "{}")).items(): CFG[w].update(d)
for c in CFG.values():
    c.setdefault("NPRE", c["NW"]); c.setdefault("APRE", min(c["NA"], 3)); c.setdefault("WR", 1)
    c["TN16"] = c["WN"] * c["NT"]; c["STB"] = c["TN16"] * 2048; c.setdefault("WB", int(c["NA"] * 16384)); c.setdefault("S0", 0)
    c["RB"] = c["TN16"] * 32
    assert c["WB"] + c["NW"] * c["STB"] <= AUX
NX = 0
def nib(t): return sum(x << (4 * i) for i, x in enumerate(t))
CSO = {1: AUX + 3584, 3: AUX}

LW = AUX + 3072
def mstamp(a, force=False):
    if os.environ.get("JIT"):
        X = a.lab("jit")
        a.e("s_cselect_b32 s101, 1, 0"); a.e("s_memtime s[64:65]"); a.e("s_waitcnt lgkmcnt(0)"); a.e(f"s_and_b32 s64, s64, {os.environ['JIT']}"); a.e("s_cmp_lg_u32 s64, 0")
        a.e(f"s_cbranch_scc1 {X}"); a.e("s_sleep 50"); a.e(f"{X}:"); a.e("s_cmp_eq_u32 s101, 1")
        return
    if not STAMP or (os.environ.get("GST") and not force): return
    a.e(("s_memrealtime" if STAMP == 2 else "s_memtime") + " s[64:65]"); a.e("s_mov_b32 s100, m0"); a.e("s_mov_b32 m0, s66"); a.e("s_waitcnt lgkmcnt(0)")
    a.e("v_writelane_b32 v255, s64, m0"); a.e("s_mov_b32 m0, s100")
    a.e("s_add_u32 s66, s66, 1")

def lsrd(a, d, off, nbytes, prev=False):
    if prev:
        a.e(f"s_sub_u32 s{d}, s62, {LSTR - off:#x}"); a.e(f"s_subb_u32 s{d+1}, s63, 0")
        a.e(f"s_mov_b32 s{d+2}, {nbytes:#x}"); a.e(f"s_mov_b32 s{d+3}, 0x20000")
    else: a.srd(d, 62, nbytes, off=off)

def hs_srd(a, d):
    if "2" in DP: a.srd(d, 4, 128 * PITCH, off=HSB); return
    a.e("s_lshl_b32 s53, s60, 24"); a.e(f"s_add_u32 s53, s53, {HSB}")
    a.e(f"s_add_u32 s{d}, s4, s53"); a.e(f"s_addc_u32 s{d+1}, s5, 0"); a.e(f"s_mov_b32 s{d+2}, {128*PITCH}"); a.e(f"s_mov_b32 s{d+3}, 0x20000")

def group_off(a, d, m):
    a.e(f"s_lshr_b32 s53, s{m}, 3"); a.e("s_lshl_b32 s53, s53, 2"); a.e(f"s_and_b32 s54, s{m}, 3"); a.e("s_add_u32 s53, s53, s54"); a.e("s_lshl_b32 s53, s53, 24")
    a.e(f"s_lshr_b32 s54, s{m}, 2"); a.e("s_xor_b32 s54, s54, s94"); a.e("s_and_b32 s54, s54, 1"); a.e("s_lshl_b32 s54, s54, 13")
    a.e(f"s_add_u32 s{d}, s53, s54"); a.e(f"s_add_u32 s{d}, s{d}, {LB0}")

PV = 240
def poll_core(a, t, addrs, mask, extra=None, depth=1, cnt=0, nap=None):
    L = a.lab("poll"); D = a.lab("pok")
    n = len(addrs) + (1 if extra else 0)
    if depth > 1: t0 = t; regs = [PV + k * len(addrs) for k in range(depth)]; assert not extra and regs[-1] + len(addrs) <= 256
    else: regs = [t]
    def ld(r):
        for i, ad in enumerate(addrs): a.e(f"buffer_load_dword v{r+i}, v{ad}, s[56:59], 0 offen {SC}")
        if extra: a.e(extra[0])
    a.e("s_mov_b32 s53, 0"); a.e(f"s_add_u32 s54, s52, {cnt}")
    if mask != -1: a.e(f"s_bfm_b64 exec, {mask.bit_length()}, 0")
    for r in regs[:-1]: ld(r); a.e(f"s_sleep {PSLEEP}")
    a.e(f"{L}:")
    for k in range(depth):
        ld(regs[k - 1]); r = regs[k]
        a.e(f"s_waitcnt vmcnt({n*(depth-1)})")
        for i in range(len(addrs)): a.e(f"v_xor_b32 v{r+i}, s54, v{r+i}")
        for i in range(1, len(addrs)): a.e(f"v_or_b32 v{r}, v{r}, v{r+i}")
        if extra:
            for x in extra[1:]: a.e(x)
        a.e(f"v_cmp_eq_u32 vcc, 0, v{r}")
        a.e("s_cmp_eq_u64 vcc, exec"); a.e(f"s_cbranch_scc1 {D}")
        a.e(f"s_sleep {PSLEEP if nap is None else nap}")
    a.e("s_add_u32 s53, s53, 1"); a.e("s_cmp_lt_u32 s53, s61"); a.e(f"s_cbranch_scc1 {L}")
    a.e("s_mov_b32 s61, 0")
    a.e(f"{D}:")
    if mask != -1: a.e("s_mov_b64 exec, -1")

SPLIT = {ST_G1: "sign", ST_G3: "half", ST_G3A: "half", ST_G3B: "half"}
def flag_addr(a, r, stage, prev=False):
    so = fso(stage) - (LSTR if prev else 0)
    a.e(f"s_add_u32 s54, s55, {so & 0xffffffff:#x}")
    sp = SPLIT.get(stage)
    if sp == "half": a.e("s_lshl_b32 s53, s31, 7"); a.e("s_add_u32 s54, s54, s53")
    a.e(f"v_mov_b32 v{r}, s54")
    if sp == "sign":
        a.e("s_add_u32 s53, s54, 128"); a.e(f"v_writelane_b32 v{r}, s53, 1")
        a.e("s_add_u32 s53, s53, s93"); a.e(f"v_writelane_b32 v{r}, s53, 3")
        a.e("s_add_u32 s53, s54, s92"); a.e(f"v_writelane_b32 v{r}, s53, 2")
        return 0xf, 8
    return 1, 8 if sp else 16
def own_wait(a, stage, prev, t):
    if not PWAIT or stage == ST_R: return
    k = {ST_G1: 1, ST_G2: 2, ST_G4: 3}[stage] - (3 if prev else 0)
    a.e(f"s_mul_i32 s54, s60, {2 if 'r' in DP else 3}"); a.e(f"s_add_u32 s54, s54, {k}")
    lds_spin(a, LW + 56, "s54", t, nap=PWAIT)
def flag_try(a, r, ad):
    a.e("s_mov_b64 exec, 1"); a.e(f"buffer_load_dword v{r}, v{ad}, s[56:59], 0 offen {SC}"); a.e("s_mov_b64 exec, -1")
def flag_check(a, r, ad, cnt):
    D = a.lab("fok")
    a.e(f"v_readfirstlane_b32 s53, v{r}"); a.e(f"s_add_u32 s54, s52, {cnt}"); a.e("s_cmp_eq_u32 s53, s54"); a.e(f"s_cbranch_scc1 {D}")
    poll_core(a, r, [ad], 1, cnt=cnt)
    a.e(f"{D}:")

def poll(a, stage, t, prev=False):
    D = a.lab("pdone")
    a.e("s_cmp_lg_u32 s30, 4"); a.e(f"s_cbranch_scc1 {D}")
    own_wait(a, stage, prev, t)
    mask, cnt = flag_addr(a, t + 1, stage, prev)
    poll_core(a, t, [t + 1], mask, depth=PDEPTH, cnt=cnt)
    a.e(f"{D}:")
    if stage != ST_G4: mstamp(a)
    a.e("s_barrier")

def publish(a, stage, nw, t, off=None, wait=0, ctr=None, flag=False):
    D = a.lab("pub")
    mark = PWAIT and off is None and stage in (ST_G1, ST_G2, ST_G4)
    if off is None:
        a.e(f"s_add_u32 s53, s55, {fso(stage)}"); off = 53
        sp = SPLIT.get(stage)
        if sp == "half": a.e("s_lshl_b32 s54, s31, 7"); a.e("s_add_u32 s53, s53, s54")
        if sp == "sign": a.e("s_and_b32 s54, s29, 4"); a.e("s_lshl_b32 s54, s54, 5"); a.e("s_add_u32 s53, s53, s54")
    a.e(f"v_mov_b32 v{t}, 1"); a.e(f"v_mov_b32 v{t+1}, {LW + (ctr if ctr is not None else 4 if nw == 8 else 0)}"); a.e(f"v_mov_b32 v{t+3}, 0")
    a.e("s_mov_b64 exec, 1")
    if wait is not None: a.e(f"s_waitcnt vmcnt({wait})")
    if nw > 1:
        a.e(f"ds_add_rtn_u32 v{t+2}, v{t+1}, v{t}")
        if flag: a.e(f"v_mov_b32 v{t+1}, s52")
        a.e("s_waitcnt lgkmcnt(0)")
        a.e(f"v_readfirstlane_b32 s54, v{t+2}")
        a.e(f"s_and_b32 s54, s54, {nw-1}"); a.e(f"s_cmp_lg_u32 s54, {nw-1}"); a.e(f"s_cbranch_scc1 {D}")
    if flag: a.e(f"buffer_store_dword v{t+1}, v{t+3}, s[56:59], s{off} offen {SC}")
    else: a.e(f"buffer_atomic_add v{t}, v{t+3}, s[56:59], s{off} offen {SC}")
    if stage == ST_R and not flag:
        a.e("s_cmp_lg_u32 s60, 0"); a.e(f"s_cbranch_scc1 {D}")
        a.e("s_lshl_b32 s53, s29, 7"); a.e(f"s_add_u32 s53, s53, {F_CS}")
        a.e(f"buffer_atomic_add v{t}, v{t+3}, s[56:59], s53 offen {SC}")
    if mark: a.e(f"v_mov_b32 v{t+1}, {LW+56}"); a.e(f"ds_add_u32 v{t+1}, v{t}")
    a.e(f"{D}:")
    a.e("s_mov_b64 exec, -1")

def lds_spin(a, addr, target, t, dst=53, nap=False):
    L = a.lab("spin")
    a.e(f"v_mov_b32 v{t}, {addr}")
    a.e(f"{L}:")
    if nap: a.e(f"s_sleep {int(nap)}")
    a.e(f"ds_read_b32 v{t+1}, v{t}"); a.e("s_waitcnt lgkmcnt(0)"); a.e(f"v_readfirstlane_b32 s{dst}, v{t+1}")
    a.e(f"s_cmp_ge_u32 s{dst}, {target}"); a.e(f"s_cbranch_scc0 {L}")
def lds_set(a, addr, val, t):
    a.e(f"v_mov_b32 v{t}, {addr}"); a.e(f"v_mov_b32 v{t+1}, {val}")
    a.e("s_waitcnt lgkmcnt(0)"); a.e(f"ds_write_b32 v{t}, v{t+1}")
def lbar(a, k, t):
    a.e(f"v_mov_b32 v{t}, {LW+8}"); a.e(f"v_mov_b32 v{t+1}, 1")
    a.e("s_waitcnt lgkmcnt(0)")
    a.e("s_mov_b64 exec, 1"); a.e(f"ds_add_u32 v{t}, v{t+1}"); a.e("s_mov_b64 exec, -1")
    lds_spin(a, LW + 8, 4 * k, t)

def gelu4(a, X, t, c1, c2):
    P = [(X, t), (X + 2, t + 2)]
    for x, u in P: a.e(f"v_pk_mul_f32 {vr(u,2)}, {vr(x,2)}, {vr(x,2)}")
    for x, u in P: a.e(f"v_pk_fma_f32 {vr(u,2)}, {vr(u,2)}, {vr(c2,2)}, {vr(c1,2)}")
    for x, u in P: a.e(f"v_pk_mul_f32 {vr(u,2)}, {vr(u,2)}, {vr(x,2)}")
    for i in range(4): a.e(f"v_exp_f32 v{t+i}, v{t+i}")
    for x, u in P: a.e(f"v_pk_add_f32 {vr(u,2)}, {vr(u,2)}, 1.0 op_sel_hi:[1,0]")
    for i in range(4): a.e(f"v_rcp_f32 v{t+i}, v{t+i}")
    for x, u in P: a.e(f"v_pk_mul_f32 {vr(x,2)}, {vr(x,2)}, {vr(u,2)}")

W2EARLY = int(os.environ.get("W2EARLY", "1")); QLATE = int(os.environ.get("QLATE", "0"))
TOUCH2 = [(A_Q, 4 * MB)] + ([] if W2EARLY else [(B_W2, 2 * MB)])
CODEPF = int(os.environ.get("CODEPF", "1")); NVOTE = int(os.environ.get("NVOTE", "32")); QUO = int(os.environ.get("QUO", "21")); NSAMP = int(os.environ.get("NSAMP", "2"))
W4POS = os.environ.get("W4POS", "3C")
HSTR = 4160; CHB = 24576; UOFF = 4 * HSTR; US = 96
KVS = 4 * CHB

KT = int(os.environ.get("KT", "1"))
KV = dict(cq=6, tg=7, t=8, ro=9, wo=16, pt=18, kr=22, vv=36, w=44, d=52, hoff=70, tag=76, zz=78)
FAST = int(os.environ.get("FAST", "0"))
def front_first(a):
    cq, tg, t, ro, wo, kr, vv, w = [KV[k] for k in "cq tg t ro wo kr vv w".split()]
    a.e(f"v_and_b32 v{cq}, 31, v0"); a.e(f"v_lshrrev_b32 v{tg}, 5, v0")
    a.e("s_and_b32 s34, s2, 7"); a.e("s_lshr_b32 s35, s2, 3")
    a.e("s_lshl_b32 s36, s35, 17"); a.e("s_lshl_b32 s37, s34, 8"); a.e("s_add_u32 s36, s36, s37")
    a.e(f"v_lshlrev_b32 v{t}, 13, v{tg}"); a.e(f"v_lshl_add_u32 v{t}, v{cq}, 3, v{t}"); a.e(f"v_add_u32 v{ro+3}, s36, v{t}")
    a.e(f"v_add_u32 v{ro+5}, 4096, v{ro+3}")
    a.e("s_waitcnt lgkmcnt(0)")
    for i in range(4): a.e(f"global_load_dwordx2 {vr(kr+2*(i+3),2)}, v{ro+3+(i&2)}, s[8:9] offset:{2048*(i&1)} {NTK}")
    for i in range(4): a.e(f"global_load_dwordx2 {vr(vv+2*i,2)}, v{ro+3+(i&2)}, s[10:11] offset:{2048*(i&1)} {NT}")
def front_loads(a):
    cq, tg, t, ro, wo, kr, vv, w = [KV[k] for k in "cq tg t ro wo kr vv w".split()]
    a_ = a
    if FAST: a = Rec()
    a.e(f"v_and_b32 v{cq}, 31, v0"); a.e(f"v_lshrrev_b32 v{tg}, 5, v0")
    a.e("s_and_b32 s34, s2, 7"); a.e("s_lshr_b32 s35, s2, 3")
    a.e("s_lshl_b32 s36, s35, 17"); a.e("s_lshl_b32 s37, s34, 8"); a.e("s_add_u32 s36, s36, s37")
    a.e(f"v_lshlrev_b32 v{t}, 13, v{tg}"); a.e(f"v_lshl_add_u32 v{t}, v{cq}, 3, v{t}"); a.e(f"v_add_u32 v{ro+3}, s36, v{t}")
    a.e(f"v_add_u32 v{ro+5}, 4096, v{ro+3}")
    a = a_
    a.e(f"s_mov_b32 s18, {4*MB}"); a.e("s_mov_b32 s19, 0x20000"); a.e("s_mov_b32 s22, s18"); a.e("s_mov_b32 s23, s19")
    a.e("s_waitcnt lgkmcnt(0)")
    tag, zz = KV["tag"], KV["zz"]
    a.e("s_mov_b32 s86, 256"); a.e("s_mov_b32 s87, 0x20000"); a.e(f"v_mov_b32 v{zz}, 0")
    a.e("s_lshl_b32 s45, s2, 3"); a.e("s_add_u32 s45, s45, s30"); a.e("s_cmp_lg_u32 s45, 4"); a.e("s_cbranch_scc1 KV_t0")
    a.e("s_lshl_b32 s44, s46, 6"); a.e("s_or_b32 s44, s44, 1"); a.e(f"v_mov_b32 v{tag}, s44"); a.e(f"v_mov_b32 v{tag+1}, 0")
    a.e("s_mov_b64 exec, 1"); a.e(f"buffer_store_dwordx2 {vr(tag,2)}, v{zz}, s[84:87], 0 offen {SC}"); a.e("s_mov_b64 exec, -1")
    a.e("KV_t0:")
    a.e("s_mov_b64 s[16:17], s[8:9]"); a.e("s_mov_b64 s[20:21], s[10:11]")
    for i in range(0 if FAST else 4): a.e(f"buffer_load_dwordx2 {vr(kr+2*(i+3),2)}, v{ro+3+(i&2)}, s[16:19], 0 offen offset:{2048*(i&1)} {NTK}")
    for i in range(0 if FAST else 4): a.e(f"buffer_load_dwordx2 {vr(vv+2*i,2)}, v{ro+3+(i&2)}, s[20:23], 0 offen offset:{2048*(i&1)} {NT}")
    for i in range(3): a.e(f"v_subrev_u32 v{ro+i}, {2048*(3-i)}, v{ro+3}")
    a.e("s_lshl_b32 s37, s34, 10"); a.e(f"v_lshlrev_b32 v{wo}, 5, v{cq}"); a.e(f"v_add_u32 v{wo}, s37, v{wo}")
    a.srd(24, 12, 8192)
    XP = os.environ.get("XP", "g")
    if KT:
        a.e(f"v_and_b32 v{t}, 1, v{tg}"); a.e(f"v_lshl_add_u32 v{wo}, v{t}, 4, v{wo}")
        a.e(f"buffer_load_dwordx4 {vr(w,4)}, v{wo}, s[24:27], 0 offen")
    for i in range(0 if "t" in XP or KT else 2): a.e(f"buffer_load_dwordx4 {vr(w+4*i,4)}, v{wo}, s[24:27], 0 offen offset:{16*i}")
    if "g" in XP:
        a.e("s_cmp_lg_u32 s30, 4"); a.e("s_cbranch_scc1 KV_t2")
        a.e(f"buffer_load_dword v{tag}, v{zz}, s[84:87], 0 offen {SC}")
        a.e("KV_t2:")
    if "h" in XP: return
    if HALO:
        a.e("s_cmp_lg_u32 s30, 0"); a.e("s_cbranch_scc1 KV_h0"); a.e("s_bfm_b64 exec, 32, 0")
    if KT: a.e("s_bfm_b64 exec, 32, 0")
    for i in range(3): a.e(f"buffer_load_dwordx2 {vr(kr+2*i,2)}, v{ro+i}, s[16:19], 0 offen {NTK}")
    if KT: a.e("s_mov_b64 exec, -1")
    if HALO: a.e("s_mov_b64 exec, -1"); a.e("KV_h0:")

def probe_base(a):
    assert NVOTE <= 64
    a.e("s_and_b32 s42, s2, 7"); a.e("s_lshl_b32 s42, s42, 10"); a.e("s_lshr_b32 s43, s2, 3"); a.e("s_lshl_b32 s43, s43, 14"); a.e("s_add_u32 s42, s42, s43")
    a.e(f"s_add_u32 s42, s42, {LB0 + oSM + 131072}")
def front_arrive(a, wait):
    D = a.lab("fa"); t = 6
    a.e("s_and_b32 s36, s2, 7"); a.e("s_lshl_b32 s36, s36, 7"); a.e(f"s_add_u32 s36, s36, {F_FRONT}")
    a.e(f"v_mov_b32 v{t}, 1"); a.e(f"v_mov_b32 v{t+1}, {LW+4}"); a.e(f"v_lshlrev_b32 v{t+3}, 10, v1")
    a.e("s_mov_b64 exec, 1")
    if wait: a.e("s_waitcnt vmcnt(0)")
    a.e("s_waitcnt lgkmcnt(0)")
    a.e(f"ds_add_rtn_u32 v{t+2}, v{t+1}, v{t}")
    a.e("s_waitcnt lgkmcnt(0)")
    a.e(f"v_readfirstlane_b32 s54, v{t+2}")
    a.e("s_cmp_lg_u32 s54, 15"); a.e(f"s_cbranch_scc1 {D}")
    a.e("s_mov_b64 exec, 0xffff")
    a.e(f"buffer_atomic_add v{t}, v{t+3}, s[56:59], s36 offen {SC}")
    a.e(f"{D}:"); a.e("s_mov_b64 exec, -1")
def front_a(a):
    cq, tg, t, pt, kr, vv, w, d, hoff, tag, zz = [KV[k] for k in "cq tg t pt kr vv w d hoff tag zz".split()]
    v = VA(80)
    a.e("s_and_b32 s41, s30, 3"); chan_setup(a, 41)
    a.e("s_lshr_b32 s36, s39, 1"); a.e("s_lshl_b32 s36, s36, 2"); a.e("s_load_dword s98, s[96:97], s36")
    a.e("s_lshl_b32 s36, s39, 12")
    a.e("s_add_u32 s12, s14, s36"); a.e("s_addc_u32 s13, s15, 0"); a.e("s_mov_b32 s14, 4096"); a.e("s_mov_b32 s15, 0x20000")
    a.e("s_lshr_b32 s45, s30, 2"); a.e("s_lshl_b32 s45, s45, 11")
    for it in range(3):
        if it < 2: a.e(f"s_add_u32 s36, s45, {(1024*it - 64) & 0xffffffff:#x}")
        else: a.e(f"s_mov_b32 s36, {4096 - 64}")
        a.e(f"v_add_u32 v{hoff+2*it}, s36, v2"); a.e(f"v_add_u32 v{hoff+2*it+1}, 16, v{hoff+2*it}")
    a.e("s_and_b32 s34, s2, 7"); a.e("s_lshr_b32 s35, s2, 3")
    z = v(4, 4); la = v(); t2 = v(); hw = v()
    for i in range(4): a.e(f"v_mov_b32 v{z+i}, 0")
    a.e(f"v_add_u32 v{hw}, s40, v2")
    a.e(f"ds_write_b128 v{hw}, {vr(z,4)} offset:{UOFF+64*US}")
    a.e(f"s_bfm_b64 exec, {(15*US - 1024)//16}, 0"); a.e(f"ds_write_b128 v{hw}, {vr(z,4)} offset:{UOFF+64*US+1024}"); a.e("s_mov_b64 exec, -1")
    a.e(f"v_lshlrev_b32 v{t}, 2, v{tg}"); a.e(f"v_sub_u32 v{t}, 60, v{t}")
    a.e(f"v_lshrrev_b32 v{t2}, 3, v{t}"); a.e(f"v_bfe_u32 v{la}, v{cq}, 1, 3"); a.e(f"v_xor_b32 v{t2}, v{t2}, v{la}"); a.e(f"v_lshlrev_b32 v{t2}, 4, v{t2}")
    a.e(f"v_and_b32 v{t}, 7, v{t}"); a.e(f"v_lshl_add_u32 v{t2}, v{t}, 1, v{t2}")
    a.e(f"v_lshl_add_u32 v{la}, v{cq}, 9, v{t2}"); a.e(f"v_add_u32 v{la}, {KVS}, v{la}")
    wf = v(8, 2); kf = v(14, 2); vf = v(8, 2); ks = v(8, 2); pr = v(8, 2); o = v(8, 4); tm = v(4, 1)
    a.e("s_waitcnt vmcnt(0)")
    if HALO:
        for i in range(3): a.e(f"buffer_load_dwordx2 {vr(kr+2*i,2)}, v{KV['ro']+i}, s[16:19], 0 offen {NTK}")
        if HALO == 1: a.e("s_waitcnt vmcnt(0)")
    a.e("s_cmp_lg_u32 s30, 4"); a.e("s_cbranch_scc1 KV_t1")
    if "g" not in os.environ.get("XP", "g"): a.e(f"buffer_load_dword v{tag}, v{zz}, s[84:87], 0 offen {SC}")
    a.e("KV_t1:")
    for it in range(3):
        a.e(f"buffer_load_dwordx4 {vr(d+6*it,4)}, v{hoff+2*it}, s[12:15], 0 offen {NTH}")
        a.e(f"buffer_load_dwordx2 {vr(d+6*it+4,2)}, v{hoff+2*it+1}, s[12:15], 0 offen {NTH}")
    if HALO == 2: a.e("s_waitcnt vmcnt(10)")
    mstamp(a)
    if KT:
        for e in range(4): a.e(f"v_mov_b32 v{w+4+e}, v{w+e}")
        for e in range(6): a.e(f"v_mov_b32 v{pr+e}, v{kr+8+e}")
        for e in range(4): a.e(f"v_permlane32_swap_b32 v{w+e}, v{w+4+e}")
        for e in range(6): a.e(f"v_permlane32_swap_b32 v{kr+e}, v{pr+e}")
    for dd in range(2):
        for c in range(2):
            unpack(a, wf + 0 + c, wf + 2 + c, w + 2 * (2 * dd + c)); unpack(a, wf + 4 + c, wf + 6 + c, w + 2 * (2 * dd + c) + 1)
        for i in range(7): unpack(a, kf + 2 * i, kf + 2 * i + 1, kr + 2 * i + dd)
        for i in range(4): unpack(a, vf + 2 * i, vf + 2 * i + 1, vv + 2 * i + dd)
        def rnd(base):
            for i in range(4): a.e(f"v_cvt_pk_bf16_f32 v{tm+i}, v{base+2*i}, v{base+2*i+1}")
            for i in range(4): unpack(a, base + 2 * i, base + 2 * i + 1, tm + i)
        for i in range(4): a.e(f"v_pk_mul_f32 {vr(ks+2*i,2)}, {vr(kf+2*i,2)}, {vr(wf+6,2)}")
        if RND: rnd(ks)
        for j in range(1, 4):
            if not RND:
                for i in range(4): a.e(f"v_pk_fma_f32 {vr(ks+2*i,2)}, {vr(kf+2*(i+j),2)}, {vr(wf+6-2*j,2)}, {vr(ks+2*i,2)}")
                continue
            for i in range(4): a.e(f"v_pk_mul_f32 {vr(pr+2*i,2)}, {vr(kf+2*(i+j),2)}, {vr(wf+6-2*j,2)}")
            rnd(pr)
            for i in range(4): a.e(f"v_pk_add_f32 {vr(ks+2*i,2)}, {vr(ks+2*i,2)}, {vr(pr+2*i,2)}")
            rnd(ks)
        for i in range(4): a.e(f"v_pk_mul_f32 {vr(ks+2*i,2)}, {vr(ks+2*i,2)}, {vr(vf+2*i,2)}")
        for c in range(2):
            e = 2 * dd + c
            a.e(f"v_cvt_pk_bf16_f32 v{o+2*e}, v{ks+6+c}, v{ks+4+c}"); a.e(f"v_cvt_pk_bf16_f32 v{o+2*e+1}, v{ks+2+c}, v{ks+c}")
            a.e(f"ds_write_b64 v{la}, {vr(o+2*e,2)} offset:{e*128}")
    a.e("s_cmp_lg_u32 s30, 4"); a.e("s_cbranch_scc1 HB_2")
    a.e(f"v_add_u32 v{pt}, {LW}, v3"); a.e(f"ds_write_b32 v{pt}, v{zz}")
    a.e("s_mov_b32 s53, 0")
    a.e("s_waitcnt vmcnt(6)")
    a.e("HB_p:")
    a.e(f"v_readfirstlane_b32 s52, v{tag}"); a.e("s_cmp_eq_u32 s52, 0"); a.e("s_cbranch_scc1 HB_r")
    a.e("s_cmp_ge_u32 s53, 400"); a.e("s_cbranch_scc1 HB_q")
    a.e("s_add_u32 s54, s46, 8192"); a.e("s_lshl_b32 s54, s54, 6"); a.e("s_sub_u32 s54, s54, s52"); a.e(f"s_cmp_lt_u32 s54, {12288*64}"); a.e("s_cbranch_scc1 HB_q")
    a.e("HB_r:")
    a.e(f"buffer_load_dword v{tag}, v{zz}, s[84:87], 0 offen {SC}"); a.e("s_waitcnt vmcnt(0)")
    a.e("s_add_u32 s53, s53, 1"); a.e("s_cmp_lt_u32 s53, s61"); a.e("s_cbranch_scc1 HB_p")
    a.e("s_mov_b32 s52, 1"); a.e("s_mov_b32 s61, 0")
    a.e("HB_q:")
    lds_set(a, LW + 12, "s52", pt)
    a.e("HB_2:")
    a.srd(16, 4, 8 * GSTR, off=LB0 + oX3)
    ra = v(); go = v(); ob = v(8, 4)
    a.e(f"v_lshrrev_b32 v{t}, 3, v0"); a.e(f"v_and_b32 v{t2}, 7, v0")
    a.e(f"v_lshlrev_b32 v{go}, 12, v{t}"); a.e(f"v_lshl_add_u32 v{go}, v{t2}, 4, v{go}")
    a.e("s_lshl_b32 s36, s34, 24"); a.e("s_sub_u32 s37, 31, s35"); a.e("s_lshl_b32 s37, s37, 7"); a.e("s_add_u32 s36, s36, s37")
    a.e(f"s_add_u32 s37, s36, {64*4096}")
    a.e(f"v_lshrrev_b32 v{ra}, 3, v{t}"); a.e(f"v_xor_b32 v{ra}, v{ra}, v{t2}"); a.e(f"v_lshlrev_b32 v{ra}, 4, v{ra}"); a.e(f"v_lshl_add_u32 v{ra}, v{t}, 7, v{ra}")
    a.e(f"v_add_u32 v{ra}, {KVS}, v{ra}"); a.e(f"v_mov_b32 v{pt}, {LW+12}")
    a.e("s_waitcnt lgkmcnt(0)"); a.e("s_barrier")
    for i in range(2): a.e(f"ds_read_b128 {vr(ob+4*i,4)}, v{ra} offset:{i*8192}")
    a.e(f"ds_read_b32 v{pt+1}, v{pt}")
    for i in range(2):
        a.e(f"s_waitcnt lgkmcnt({2-i})")
        if "1" in DP: mark(a, ob + 4 * i, 1)
        a.e(f"buffer_store_dwordx4 {vr(ob+4*i,4)}, v{go}, s[16:19], s{36+i} offen {SC}")
    a.e("s_waitcnt lgkmcnt(0)"); a.e(f"v_readfirstlane_b32 s52, v{pt+1}")
    a.e("s_cmp_lg_u32 s30, 0"); a.e("s_cbranch_scc1 KV_ni"); a.e("s_cmp_ge_u32 s35, 16"); a.e("s_cbranch_scc1 KV_ni")
    a.e(f"v_mov_b32 v{t}, s52")
    a.e("s_lshl_b32 s37, s34, 7"); a.e("s_lshl_b32 s53, s35, 10"); a.e("s_add_u32 s37, s37, s53"); a.e(f"s_add_u32 s37, s37, {F_FRONT}")
    a.e("s_mov_b64 exec, 1"); a.e(f"buffer_store_dword v{t}, v{zz}, s[56:59], s37 offen {SC}"); a.e("s_mov_b64 exec, -1")
    a.e("KV_ni:")
    a.e(f"s_cmp_ge_u32 s2, {NVOTE}"); a.e("s_cbranch_scc1 KV_n3"); a.e("s_cmp_lg_u32 s30, 5"); a.e("s_cbranch_scc1 KV_n3")
    probe_base(a)
    a.e(f"v_lshrrev_b32 v{t}, 5, v1"); a.e(f"v_mul_u32_u24 v{t}, {8192 - 512}, v{t}"); a.e(f"v_add_u32 v{t}, v{t}, v2")
    a.e(f"buffer_store_dwordx4 {vr(z,4)}, v{t}, s[56:59], s42 offen {SC}")
    a.e("KV_n3:")
    def pubk():
        a.e("s_lshl_b32 s36, s34, 5"); a.e("s_add_u32 s36, s36, s35"); a.e("s_lshl_b32 s36, s36, 7"); a.e(f"s_add_u32 s36, s36, {F_KVT}")
        mstamp(a)
        QL = int(os.environ.get("QL", "3"))
        if QL == 2: load_q(a)
        publish(a, 0, 8, pt, off=36, flag=True, wait=4 if QL == 2 else 0)
        if QL == 3: load_q(a)
        mstamp(a)
    HF = int(os.environ.get("HF", "0"))
    if not HF: pubk()
    else: a.e("s_waitcnt vmcnt(2)")
    cc = wf; hw2 = v()
    a.e(f"v_add_u32 v{hw2}, s45, v{hw}")
    for it in range(3):
        D = d + 6 * it; c0 = cc + 12 * it; c1 = c0 + 4; c2 = c0 + 8
        for k in range(4):
            a.e(f"v_alignbit_b32 v{c0+k}, v{D+k+1}, v{D+k}, 16")
            a.e(f"v_mov_b32 v{c1+k}, v{D+k+1}")
            a.e(f"v_alignbit_b32 v{c2+k}, v{D+k+2}, v{D+k+1}, 16")
        if it == 2: a.e("s_mov_b64 exec, 0xf")
        ad, o0 = (hw2, 1024 * it) if it < 2 else (hw, 4096)
        a.e(f"ds_write_b128 v{ad}, {vr(c0,4)} offset:{o0}")
        a.e(f"ds_write_b128 v{ad}, {vr(c1,4)} offset:{HSTR+o0}")
        a.e(f"ds_write_b128 v{ad}, {vr(c2,4)} offset:{2*HSTR+o0}")
        a.e(f"ds_write_b128 v{ad}, {vr(D+2,4)} offset:{3*HSTR+o0}")
        if it == 2: a.e("s_mov_b64 exec, -1")
    if HF: pubk()
    assert v.hi <= 176
    a.e("s_waitcnt lgkmcnt(0)"); a.e("s_barrier")
def load_q(a):
    a.srd(8, 6, 4 * MB)
    for j in range(4): a.e(f"buffer_load_dwordx2 {vr(RXA+2*j,2)}, v{RRO}, s[8:11], 0 offen offset:{128*(j>>1) + 32*(j&1)} {os.environ.get('NTQ', NTH)}")
def chan_setup(a, wsg):
    a.e("s_and_b32 s38, s2, 7"); a.e("s_lshl_b32 s38, s38, 5"); a.e("s_lshr_b32 s39, s2, 3"); a.e("s_add_u32 s38, s38, s39")
    a.e("s_lshl_b32 s39, s38, 2"); a.e(f"s_add_u32 s39, s39, s{wsg}")
    a.e(f"s_mul_i32 s40, s{wsg}, {CHB}")

def touch(a, ka, nbytes, r):
    n = nbytes // 1024 // 512
    a.e(f"s_load_dwordx2 s[48:49], s[0:1], {ka}")
    a.e("s_lshl_b32 s45, s2, 1"); a.e("s_and_b32 s50, s30, 1"); a.e("s_add_u32 s45, s45, s50"); a.e(f"s_mul_i32 s45, s45, {n*1024}")
    a.e(f"s_mov_b32 s50, {nbytes}"); a.e("s_mov_b32 s51, 0x20000")
    a.e("s_waitcnt lgkmcnt(0)")
    for i in range(n):
        if i and i % 4 == 0: a.e("s_add_u32 s45, s45, 4096")
        a.e(f"buffer_load_dwordx4 {vr(r,4)}, v2, s[48:51], s45 offen offset:{(i&3)*1024}")
    return n

def w2_warm(a):
    a.e("s_mov_b64 s[48:49], s[70:71]"); a.e(f"s_mov_b32 s50, {2*MB}"); a.e("s_mov_b32 s51, 0x20000")
    a.e("s_and_b32 s45, s28, 3"); a.e("s_lshl_b32 s45, s45, 1"); a.e("s_and_b32 s46, s30, 1"); a.e("s_add_u32 s45, s45, s46"); a.e("s_lshl_b32 s45, s45, 18")
    a.e("s_lshl_b32 s46, s29, 7"); a.e("s_add_u32 s45, s45, s46"); a.e("v_lshlrev_b32 v245, 11, v1")
    a.e("buffer_load_dword v244, v245, s[48:51], s45 offen"); a.e(f"s_add_u32 s45, s45, {64*2048}"); a.e("buffer_load_dword v246, v245, s[48:51], s45 offen")
def cs_load(a, which, slot):
    w_setup(a, which, pre=False)
    a.e(f"s_mov_b32 s42, {slot}"); a.e("s_mov_b32 s44, s28")
    w_issue(a, which, direct=True)
CSEL, CFR, CAD, CACC, CSO_ = 16, 72, 144, 156, 164
def cs_prep(a, S1, S3):
    a.e(f"v_and_b32 v{CSO_}, 15, v1"); a.e(f"v_mov_b32 v{CSO_+1}, 0x3f803f80")
    for T in range(14):
        a.e(f"v_cmp_eq_u32 vcc, {T}, v{CSO_}")
        for e in range(4): a.e(f"v_cndmask_b32 v{CSEL+4*T+e}, 0, v{CSO_+1}, vcc")
    pos = {}
    for which, slot, r0, halves in ((1, S1, CAD, 1), (3, S3, CAD + 4, 2)):
        c = CFG[which]
        for hf in range(halves):
            a.e(f"s_mov_b32 s35, {hf}")
            nr, pos[which] = w_bases(a, which, r0 + 2 * hf, 35, c["TN16"] // halves, WV + 8, WV + 9)
            a.e("s_and_b32 s35, s30, 1"); a.e(f"s_mul_i32 s35, s35, {32*c['RB']}"); a.e(f"s_add_u32 s35, s35, {slot}")
            for i in range(nr): a.e(f"v_add_u32 v{r0+2*hf+i}, s35, v{r0+2*hf+i}")
    for i in range(8): a.e(f"v_mov_b32 v{CACC+i}, 0")
    a.e(f"v_lshrrev_b32 v{CSO_+2}, 4, v1"); a.e(f"v_lshlrev_b32 v{CSO_+2}, 4, v{CSO_+2}"); a.e(f"v_lshl_add_u32 v{CSO_+2}, v{CSO_}, 6, v{CSO_+2}")
    a.e(f"v_mov_b32 v{CSO_+1}, 0x7f000000")
    for k, n in ((3, 4), (4, 14)):
        a.e(f"v_cmp_gt_u32 vcc, {n}, v{CSO_}"); a.e(f"v_cndmask_b32 v{CSO_+k}, v{CSO_+1}, v{CSO_+2}, vcc")
    return pos
def cs_sum(a, which, pos):
    c = CFG[which]; ntl = c["TN16"]; N = c["LDW"] // 2
    F = CFR + (0 if which == 3 else 56); A = CACC + (0 if which == 3 else 4)
    for T in range(ntl):
        hf, nt = (T // 7, T % 7) if which == 3 else (0, T)
        for h in range(2):
            r, imm = pos[which](nt, 0, h)
            a.e(f"ds_read_b64_tr_b16 {vr(F+4*T+2*h,2)}, v{(CAD + 4 if which == 3 else CAD) + 2*hf + r} offset:{imm}")
    a.srd(20, 4, 32 * N * 4, off=CSP[which])
    a.e("s_lshl_b32 s35, s28, 1"); a.e("s_and_b32 s36, s30, 1"); a.e("s_add_u32 s35, s35, s36"); a.e(f"s_mul_i32 s35, s35, {N*4}")
    a.e(f"s_mul_i32 s36, s29, {ntl*64}"); a.e("s_add_u32 s35, s35, s36")
    a.e("s_waitcnt lgkmcnt(0)")
    for T in range(ntl): a.e(f"v_mfma_f32_16x16x32_bf16 {vr(A,4)}, {vr(F+4*T,4)}, {vr(CSEL+4*T,4)}, {vr(A,4)}")
    a.e(f"buffer_store_dwordx4 {vr(A,4)}, v{CSO_ + (4 if which == 3 else 3)}, s[20:23], s35 offen {SC}")

NOCS3 = int(os.environ.get("NOCS3", "0")); STO = os.environ.get("STOUCH", "")
def stouch(a, which, gran, nw):
    X = a.lab("st"); L = a.lab("sl"); n = 28672 // nw
    a.e("s_cmp_lg_u32 s60, 0"); a.e(f"s_cbranch_scc1 {X}")
    a.e(f"s_mul_i32 s36, s2, 28672"); a.e(f"s_and_b32 s37, s30, {nw-1}"); a.e(f"s_mul_i32 s37, s37, {n}"); a.e("s_add_u32 s36, s36, s37")
    a.e(f"s_add_u32 s34, s{66+2*which}, s36"); a.e(f"s_addc_u32 s35, s{67+2*which}, 0"); a.e("s_mov_b32 s36, 0")
    a.e(f"{L}:")
    for i in range(14): a.e(f"s_load_dword s37, s[34:35], {i*gran}")
    a.e(f"s_add_u32 s34, s34, {14*gran}"); a.e("s_addc_u32 s35, s35, 0"); a.e("s_add_u32 s36, s36, 1"); a.e(f"s_cmp_lt_u32 s36, {n // (14*gran)}"); a.e(f"s_cbranch_scc1 {L}")
    a.e("s_waitcnt lgkmcnt(0)")
    a.e(f"{X}:")
SB = eval(os.environ.get("SB", "(0,0,0)"))
SG = eval(os.environ.get("SG", "(0,0,0,0)"))
def sg(a, n):
    if not n: return
    X = a.lab("st"); L = a.lab("sl")
    a.e("s_cmp_lg_u32 s60, 0"); a.e(f"s_cbranch_scc1 {X}"); a.e("s_mov_b32 s36, 0"); a.e(f"{L}:"); sb(a, 14)
    a.e("s_add_u32 s36, s36, 1"); a.e(f"s_cmp_lt_u32 s36, {n}"); a.e(f"s_cbranch_scc1 {L}"); a.e("s_waitcnt lgkmcnt(0)"); a.e(f"{X}:"); mstamp(a)
def sb_init(a):
    nw = 2 if sum(SG) else 4
    a.e(f"s_mul_i32 s36, s2, 28672"); a.e(f"s_and_b32 s37, s30, {nw-1}"); a.e(f"s_mul_i32 s37, s37, {28672//nw}"); a.e("s_add_u32 s36, s36, s37")
    SW = 66 + 2 * int(os.environ.get("SGW", "3"))
    a.e(f"s_add_u32 s90, s{SW}, s36"); a.e(f"s_addc_u32 s91, s{SW+1}, 0")
def sb(a, n):
    for i in range(n): a.e(f"s_load_dword s101, s[90:91], {i*64}")
    if n: a.e(f"s_add_u32 s90, s90, {n*64}"); a.e("s_addc_u32 s91, s91, 0")
PUTE = int(os.environ.get("PUTE", "1"))
def front_b(a):
    pt, dm = 6, 20
    vd = 12; VG = int(os.environ.get("VG", "0")); VE = int(os.environ.get("VE", "1"))
    def vote():
        a.e(f"s_cmp_ge_u32 s2, {NVOTE}"); a.e("s_cbranch_scc1 FB_np"); a.e("s_cmp_lg_u32 s30, 5"); a.e("s_cbranch_scc1 FB_np")
        probe_base(a); a.e(f"v_mov_b32 v{vd+2}, 0")
        if os.environ.get("SPR", "1") == "1":
            a.e("s_mov_b64 exec, 1"); a.e("s_mov_b32 s46, -1"); a.e("s_mov_b32 s47, -1")
            a.e("s_add_u32 s48, s4, s42"); a.e("s_addc_u32 s49, s5, 0")
            a.e("s_load_dword s101, s[48:49], 384"); a.e("s_waitcnt lgkmcnt(0)"); a.e("s_memtime s[34:35]"); a.e("s_waitcnt lgkmcnt(0)")
            for k in range(2 * NSAMP):
                p_, q_ = (34, 36) if k % 2 == 0 else (36, 34)
                a.e(f"s_load_dword s101, s[48:49], {(k & 1) * 8192 + (k >> 1) * 128}"); a.e("s_waitcnt lgkmcnt(0)"); a.e(f"s_memtime s[{q_}:{q_+1}]"); a.e("s_waitcnt lgkmcnt(0)")
                a.e(f"s_sub_u32 s43, s{q_}, s{p_}"); a.e(f"s_min_u32 s{46+(k&1)}, s{46+(k&1)}, s43")
        else:
            a.e("s_mov_b64 exec, 1"); a.e("s_mov_b32 s46, -1"); a.e("s_mov_b32 s47, -1"); a.e("s_mov_b32 s43, 0")
            a.e("FB_ml:")
            for i in range(2):
                a.e(f"s_add_u32 s45, s42, {i * 8192}")
                a.e("s_memtime s[34:35]"); a.e("s_waitcnt lgkmcnt(0)")
                a.e(f"buffer_load_dword v{vd+1}, v{vd+2}, s[56:59], s45 offen {SC}"); a.e("s_waitcnt vmcnt(0)")
                a.e("s_memtime s[36:37]"); a.e("s_waitcnt lgkmcnt(0)")
                a.e("s_sub_u32 s36, s36, s34"); a.e(f"s_min_u32 s{46+i}, s{46+i}, s36")
            a.e("s_add_u32 s42, s42, 128"); a.e("s_add_u32 s43, s43, 1"); a.e(f"s_cmp_lt_u32 s43, {NSAMP}"); a.e("s_cbranch_scc1 FB_ml")
        a.e("s_cmp_lt_u32 s47, s46"); a.e("s_cselect_b32 s45, 1, 0")
        a.e("s_lshr_b32 s46, s28, 2"); a.e("s_xor_b32 s45, s45, s46"); a.e("s_and_b32 s45, s45, 1"); a.e("s_lshl_b32 s45, s45, 8")
        a.e("s_or_b32 s43, s45, 1"); a.e(f"v_mov_b32 v{vd}, s43")
        a.e(f"buffer_atomic_add v{vd}, v{vd+2}, s[84:87], 0 offen offset:4 sc0 {SC}"); a.e("s_waitcnt vmcnt(0)")
        a.e(f"v_readfirstlane_b32 s36, v{vd}"); a.e("s_add_u32 s36, s36, s43"); a.e("s_and_b32 s37, s36, 255"); a.e(f"s_cmp_lg_u32 s37, {QUO}"); a.e("s_cbranch_scc1 FB_np")
        a.e("s_lshr_b32 s36, s36, 8"); a.e("s_lshl_b32 s36, s36, 1"); a.e("s_add_u32 s36, s36, s52"); a.e("s_bfm_b64 exec, 32, 0")
        a.e(f"v_mov_b32 v{vd}, s36"); a.e(f"v_lshlrev_b32 v{vd+1}, 7, v1"); a.e(f"s_mov_b32 s36, {F_RES}"); a.e(f"buffer_store_dword v{vd}, v{vd+1}, s[56:59], s36 offen {SC}")
        a.e("FB_np:")
        a.e("s_mov_b64 exec, -1")
        if VG:
            a.e("s_cmp_lg_u32 s30, 5"); a.e("s_cbranch_scc1 FB_ng")
            a.e(f"v_mov_b32 v{pt}, {LW+20}"); a.e(f"v_mov_b32 v{pt+1}, 1"); a.e("s_mov_b64 exec, 1"); a.e(f"ds_add_u32 v{pt}, v{pt+1}"); a.e("s_mov_b64 exec, -1")
            a.e("FB_ng:")
    if VE: vote()
    PZE = int(os.environ.get("PZE", "0"))
    if PZE:
        a.srd(20, 4, 32 * MB, off=216 * MB)
        for i in range(4): a.e(f"v_mov_b32 v{216+i}, -1")
        a.e("s_lshl_b32 s45, s2, 2"); a.e("s_and_b32 s50, s30, 3"); a.e("s_add_u32 s45, s45, s50"); a.e(f"s_mul_i32 s45, s45, {PZE*1024}")
        for i in range(PZE):
            a.e(f"buffer_store_dwordx4 v[216:219], v2, s[20:23], s45 offen {SC}"); a.e("s_add_u32 s45, s45, 1024")
    if TAB: tab_load(a)
    TE = int(os.environ.get("TE", "0"))
    if TE:
        a.e("s_cmp_ge_u32 s30, 6"); a.e("s_cbranch_scc1 FB_t1"); touch(a, B_W2, 2 * MB, dm); a.e("s_branch FB_t2"); a.e("FB_t1:"); touch(a, B_W1, 2 * MB, 200); a.e("FB_t2:")
    w_lanes(a)
    a.e("s_cmp_ge_u32 s30, 6"); a.e("s_cbranch_scc1 FB_cs")
    if not VE: vote()
    mstamp(a)
    a.e("s_cmp_lg_u32 s30, 4"); a.e("s_cbranch_scc1 FB_ni")
    a.e(f"v_mov_b32 v{vd}, s52")
    group_off(a, 37, 28); a.e("s_andn2_b32 s37, s37, 0x2000"); a.e("s_lshl_b32 s53, s29, 7"); a.e("s_add_u32 s37, s37, s53"); a.e(f"s_add_u32 s37, s37, {oSM}")
    a.e(f"v_and_b32 v{vd+1}, 1, v1"); a.e(f"v_lshlrev_b32 v{vd+1}, 13, v{vd+1}"); a.e(f"v_lshrrev_b32 v{vd+2}, 1, v1"); a.e(f"v_lshl_add_u32 v{vd+1}, v{vd+2}, 22, v{vd+1}")
    a.e("s_mov_b64 exec, 0xf"); a.e(f"buffer_store_dword v{vd}, v{vd+1}, s[56:59], s37 offen {SC}")
    a.e("s_cmp_lg_u32 s28, 0"); a.e("s_cbranch_scc1 FB_n2")
    a.e(f"s_add_u32 s37, s53, {F_CS}"); a.e("s_mov_b64 exec, 1"); a.e(f"buffer_store_dword v{vd}, v{vd+1}, s[56:59], s37 offen {SC}")
    a.e("FB_n2:")
    a.e("s_mov_b64 exec, -1")
    a.e("FB_ni:")
    UG = (LW + 20, 4 + VG) if os.environ.get("UG", "1") == "1" else (LW + 16, 1)
    lds_spin(a, *UG, pt, nap=2)
    mstamp(a)
    if TLBW:
        a.e("s_cmp_lg_u32 s30, 5"); a.e("s_cbranch_scc1 FB_nt")
        a.e(f"v_and_b32 v{vd}, 7, v1"); a.e(f"v_lshlrev_b32 v{vd}, 24, v{vd}"); a.e(f"v_lshrrev_b32 v{vd+1}, 3, v1"); a.e(f"v_lshl_add_u32 v{vd}, v{vd+1}, 22, v{vd}")
        a.e("s_lshl_b32 s36, s2, 7"); a.e(f"s_add_u32 s36, s36, {LB0 + 2 * MB - 65536}")
        a.e(f"s_bfm_b64 exec, {8 * TLBW}, 0"); a.e(f"buffer_load_dword v{dm+4}, v{vd}, s[56:59], s36 offen {SC}"); a.e("s_mov_b64 exec, -1")
        a.e("FB_nt:")
    if os.environ.get("W2T", "1") == "2": lds_spin(a, LW + 24, 2, pt, nap=4)
    if os.environ.get("W2T", "1") == "3":
        w_srd(a, 2); a.e("s_lshl_b32 s39, s28, 1"); a.e("s_and_b32 s36, s30, 1"); a.e("s_add_u32 s39, s39, s36"); a.e("s_lshl_b32 s39, s39, 16"); a.e("s_lshl_b32 s36, s29, 7"); a.e("s_add_u32 s39, s39, s36")
        for i in range(4): a.e(f"buffer_load_dwordx4 {vr(dm,4)}, v{WVB[2]}, s[12:15], s39 offen"); a.e("s_add_u32 s39, s39, 16384")
    elif os.environ.get("W2T", "1") != "0" and not TE: touch(a, B_W2, 2 * MB, dm)
    QL = int(os.environ.get("QL", "3"))
    if not QL: load_q(a)
    if W4POS == "F": lds_spin(a, LW + 24, 2, pt, nap=4); a.e("s_waitcnt vmcnt(0)")
    if W4POS in ("F", "F0"): touch(a, B_W4, 7 * MB, dm)
    PZF = int(os.environ.get("PZF", "0"))
    if PZF:
        a.srd(20, 4, 32 * MB, off=216 * MB)
        for i in range(4): a.e(f"v_mov_b32 v{216+i}, -1")
        a.e("s_lshl_b32 s45, s2, 1"); a.e("s_and_b32 s50, s30, 1"); a.e("s_add_u32 s45, s45, s50"); a.e(f"s_mul_i32 s45, s45, {PZF*1024}")
        for i in range(PZF):
            a.e(f"buffer_store_dwordx4 v[216:219], v2, s[20:23], s45 offen {SC}"); a.e("s_add_u32 s45, s45, 1024")
            if os.environ.get("PZP"): a.e(f"s_waitcnt vmcnt({os.environ['PZP']})")
    front_arrive(a, True)
    if TAB: tab_make(a, 0)
    PKW = int(os.environ.get("PKW", "2")); PKP = int(os.environ.get("PKP", "8"))
    W1P = int(os.environ.get("W1P", "8")); FO = os.environ.get("FO", "1pd"); FO2 = os.environ.get("FO2", "1pd")
    R1 = [176, 188, 192] + [200 + 4 * i for i in range(7)] + [16 + 4 * i for i in range(8)]
    def w1_regs(a):
        w_srd(a, 1)
        a.e("s_and_b32 s35, s30, 3"); a.e(f"s_mul_i32 s35, s35, {18*16384}"); a.e("s_lshl_b32 s39, s99, 7"); a.e("s_add_u32 s39, s39, s35")
        for q in range(18):
            a.e(f"buffer_load_dwordx4 {vr(R1[q],4)}, v{WVB[1]}, s[12:15], s39 offen"); a.e("s_add_u32 s39, s39, 16384")
            if q % 4 == 3: sb(a, SB[1])
            if PKP and q % 4 == 3: a.e(f"s_waitcnt vmcnt({PKP})")
        if QL == 1: load_q(a)
    def w1_put(a):
        a.e("s_and_b32 s35, s30, 3"); a.e(f"s_mul_i32 s35, s35, {18*1024}"); a.e("v_add_u32 v8, s35, v2")
        if PUTE: lds_spin(a, LW + 20, 8 + VG, pt, nap=2)
        else: lds_spin(a, LW + 4, 16, pt, nap=2)
        PV0 = int(os.environ.get("PV0", "1")); assert not PV0 or (FO[0] == "1" and FO2[0] == "1" and "p" in FO and "p" in FO2)
        a.e(f"s_waitcnt vmcnt({32 if PV0 else 0})")
        for q in range(18): a.e(f"ds_write_b128 v8, {vr(R1[q],4)} offset:{CFG[1]['WB'] + 1024*q}")
        a.e("s_waitcnt lgkmcnt(0)")
    def w1_dma(a, js):
        lds_spin(a, LW + 24, 4, pt, nap=3)
        w_setup(a, 1, pre=False)
        for j in js: w1_slots(a, (j,), pace=W1P); ypause(a)
    DS_ = int(os.environ.get("DSPL", "12"))
    if PKW: lds_spin(a, LW + 24, PKW, pt, nap=4)
    for i_, ch in enumerate(FO):
        if ch == "d": w1_dma(a, range(9, DS_))
        else: call(a, {"1": w1_regs, "p": park}[ch])
    mstamp(a)
    call(a, w1_put)
    a.e("s_branch FR_end")
    a.e("FB_cs:")
    S1, S3 = KVS - CFG[1]["WB"], KVS + 8192 - CFG[3]["WB"]
    pos = cs_prep(a, S1, S3)
    lds_spin(a, *UG, pt, nap=2)
    mstamp(a)
    if not QL: load_q(a)
    cs_load(a, 1, S1)
    if not NOCS3: cs_load(a, 3, S3)
    a.e(f"s_waitcnt vmcnt({0 if NOCS3 else 14})")
    if CSPRIO: a.e(f"s_setprio {CSPRIO}")
    cs_sum(a, 1, pos)
    a.e("s_waitcnt vmcnt(1)")
    a.e(f"v_mov_b32 v{pt}, {LW+24}"); a.e(f"v_mov_b32 v{pt+1}, 1")
    a.e("s_mov_b64 exec, 1"); a.e(f"ds_add_u32 v{pt}, v{pt+1}"); a.e("s_mov_b64 exec, -1")
    mstamp(a)
    if not NOCS3: cs_sum(a, 3, pos)
    front_arrive(a, False)
    if TAB: tab_make(a, 1)
    a.e(f"v_mov_b32 v{pt}, {LW+24}"); a.e(f"v_mov_b32 v{pt+1}, 1")
    a.e("s_mov_b64 exec, 1"); a.e(f"ds_add_u32 v{pt}, v{pt+1}"); a.e("s_mov_b64 exec, -1")
    mstamp(a)
    a.e("s_setprio 0")
    assert CFG[1]["WB"] + 9 * 8192 == KVS
    for ch in FO2:
        if ch == "d": w1_dma(a, range(DS_, 16))
        else: call(a, {"1": w1_regs, "p": park}[ch])
    mstamp(a)
    call(a, w1_put)

PG = int(os.environ.get("PG", "0"))
def front_conv(a):
    v = VA(6); lane = 1; l16 = 2
    t = v(); pt = v(4, 2)
    chan_setup(a, 30)
    a.e("s_and_b32 s36, s39, 127"); a.e("s_lshl_b32 s36, s36, 12"); a.e("s_lshr_b32 s37, s39, 7"); a.e("s_lshl_b32 s37, s37, 24")
    a.e("s_add_u32 s36, s36, s37"); a.e(f"s_add_u32 s36, s36, {LB0 + oX3}")
    a.e("s_add_u32 s16, s4, s36"); a.e("s_addc_u32 s17, s5, 0"); a.e("s_mov_b32 s18, 4096"); a.e("s_mov_b32 s19, 0x20000")
    uw = v(); u = v(16, 4)
    a.e(f"v_lshrrev_b32 v{t}, 2, v{lane}"); a.e(f"v_mul_u32_u24 v{uw}, {US}, v{t}"); a.e(f"v_and_b32 v{t}, 3, v{lane}")
    a.e(f"v_lshl_add_u32 v{uw}, v{t}, 4, v{uw}"); a.e(f"v_add_u32 v{uw}, s40, v{uw}")
    aa = v(); ba = v(); ua = v(); J = v(); G = v()
    a.e(f"v_and_b32 v{J}, 15, v{lane}"); a.e(f"v_lshrrev_b32 v{G}, 4, v{lane}")
    a.e(f"v_and_b32 v{t}, 3, v{J}"); a.e(f"v_mul_u32_u24 v{aa}, {HSTR}, v{t}")
    a.e(f"v_lshl_add_u32 v{aa}, v{G}, 4, v{aa}"); a.e(f"v_lshrrev_b32 v{t}, 2, v{J}"); a.e(f"v_lshl_add_u32 v{aa}, v{t}, 3, v{aa}")
    a.e(f"v_add_u32 v{aa}, s40, v{aa}")
    a.e(f"v_sub_u32 v{t}, 15, v{J}"); a.e(f"v_mul_u32_u24 v{ua}, {US}, v{t}"); a.e(f"v_add_u32 v{ua}, s40, v{ua}")
    a.e(f"v_lshl_add_u32 v{ba}, v{G}, 4, v{ua}")
    acc = v(32, 4)
    fa = v(64, 4); fb = v(32, 4)
    def rdA(p, o):
        return [f"ds_read_b64 {vr(fa+32*p+8*s_+4*mt+2*h,2)}, v{aa} offset:{64*(o+16*s_) + 32*mt + 8*h}" for s_ in range(4) for mt in range(2) for h in range(2)]
    def rdB(p, o):
        return [f"ds_read_b128 {vr(fb+16*p+4*k,4)}, v{ba} offset:{UOFF + (48 - 16*k + o)*US}" for k in range(4)]
    for x in rdA(0, 0): a.e(x)
    dm_ = fb + 16; Dv = pt + 2
    a.e("s_bitcmp1_b32 s39, 0"); a.e("s_cselect_b32 s36, 0, 16"); a.e("s_lshl_b32 s41, s98, s36"); a.e("s_and_b32 s41, s41, 0xffff0000"); a.e("s_lshr_b32 s36, s41, 16")
    a.e(f"v_lshl_add_u32 v{t}, v{G}, 3, v{J}"); a.e(f"v_sub_u32 v{t}, 31, v{t}")
    a.e(f"v_mov_b32 v{Dv}, s36"); a.e(f"v_mov_b32 v{Dv+1}, s41"); a.e(f"v_and_b32 v{pt}, 1, v{t}"); a.e(f"v_cmp_eq_u32 vcc, 1, v{pt}")
    a.e(f"v_cndmask_b32 v{Dv}, v{Dv}, v{Dv+1}, vcc"); a.e(f"v_ashrrev_i32 v{t}, 1, v{t}")
    for mt in range(2):
        for d_ in range(4): a.e(f"v_cmp_eq_u32 vcc, {8*mt+d_}, v{t}"); a.e(f"v_cndmask_b32 v{dm_+4*mt+d_}, 0, v{Dv}, vcc")
    a.srd(12, 4, 8 * GSTR - oHS, off=LB0 + oHS)
    ta = v(); go = v()
    a.e(f"v_bfe_u32 v{t}, v{lane}, 2, 2"); a.e(f"v_mul_u32_u24 v{ta}, {CHB+64}, v{t}")
    a.e(f"v_lshrrev_b32 v{t}, 1, v{G}"); a.e(f"v_mul_u32_u24 v{t}, 72, v{t}"); a.e(f"v_add_u32 v{ta}, v{ta}, v{t}")
    a.e(f"v_and_b32 v{t}, 1, v{G}"); a.e(f"v_lshl_add_u32 v{ta}, v{t}, 5, v{ta}")
    a.e(f"v_and_b32 v{t}, 3, v{lane}"); a.e(f"v_lshl_add_u32 v{ta}, v{t}, 3, v{ta}")
    a.e(f"s_mul_i32 s36, s30, {16*72}"); a.e(f"v_add_u32 v{ta}, s36, v{ta}")
    a.e(f"v_lshlrev_b32 v{go}, 3, v{lane}")
    a.e("s_lshr_b32 s44, s38, 4"); a.e("s_lshl_b32 s44, s44, 14"); a.e("s_and_b32 s37, s38, 15"); a.e("s_lshl_b32 s37, s37, 9"); a.e("s_add_u32 s44, s44, s37")
    a.e("s_and_b32 s37, s30, 1"); a.e("s_lshl_b32 s37, s37, 13"); a.e("s_add_u32 s44, s44, s37")
    a.e("s_lshr_b32 s37, s30, 1"); a.e("s_lshl_b32 s37, s37, 26"); a.e("s_add_u32 s44, s44, s37")
    ev = ua; a.e(f"v_not_b32 v{ev}, v{lane}"); a.e(f"v_and_b32 v{ev}, 1, v{ev}")
    ya = v()
    a.e(f"s_mul_i32 s36, s30, {CHB+64}")
    a.e(f"v_mul_u32_u24 v{ya}, 72, v{J}"); a.e(f"v_lshl_add_u32 v{ya}, v{G}, 3, v{ya}"); a.e(f"v_add_u32 v{ya}, s36, v{ya}")
    a.e(f"v_mov_b32 v{J}, 0"); a.e("s_and_b32 s45, s2, 31"); a.e("s_lshl_b32 s45, s45, 7"); a.e(f"s_add_u32 s45, s45, {F_RES}")
    a.e("s_cmp_lg_u32 s30, 0"); a.e("s_cbranch_scc1 CV_w")
    a.e("s_and_b32 s36, s2, 7"); a.e("s_lshl_b32 s36, s36, 12"); a.e(f"s_add_u32 s36, s36, {F_KVT}")
    a.e(f"v_lshlrev_b32 v{pt+1}, 7, v{lane}"); a.e(f"v_add_u32 v{pt+1}, s36, v{pt+1}")
    poll_core(a, pt, [pt + 1], 0xffffffff)
    lds_set(a, LW + 16, 1, pt)
    a.e("CV_w:")
    lds_spin(a, LW + 16, 1, pt)
    mstamp(a)
    for it in range(4): a.e(f"buffer_load_dwordx4 {vr(u+4*it,4)}, v{l16}, s[16:19], 0 offen offset:{1024*it} {os.environ.get('UF', SC + ' nt')}")
    QL = int(os.environ.get("QL", "3"))
    if not QL: load_q(a)
    for it in range(4):
        a.e(f"s_waitcnt vmcnt({(3 if QL else 7)-it})")
        a.e(f"ds_write_b128 v{uw}, {vr(u+4*it,4)} offset:{UOFF + 16*US*it}")
    a.e(f"v_mov_b32 v{pt}, {LW+20}"); a.e(f"v_mov_b32 v{pt+1}, 1")
    a.e("s_mov_b64 exec, 1"); a.e(f"ds_add_u32 v{pt}, v{pt+1}"); a.e("s_mov_b64 exec, -1")
    a.e("s_waitcnt lgkmcnt(0)")
    mstamp(a)
    for x in rdB(0, 0): a.e(x)
    for c_ in range(4):
        a.e(f"s_waitcnt lgkmcnt({3-c_})")
        for mt in range(2): a.e(f"v_mfma_f32_16x16x32_bf16 {vr(acc+8*c_+4*mt,4)}, {vr(dm_+4*mt,4)}, {vr(fb+4*c_,4)}, 0")
    def step(p, nxt, tail, piped=False):
        a.e(f"s_waitcnt lgkmcnt({10 if piped else 0})")
        mf = [(c_, s_, mt) for s_ in range(4) for mt in range(2) for c_ in range(s_, 4)]
        for i, (c_, s_, mt) in enumerate(mf):
            A = acc + 8 * c_ + 4 * mt
            a.e(f"v_mfma_f32_16x16x32_bf16 {vr(A,4)}, {vr(fa+32*p+8*s_+4*mt,4)}, {vr(fb+16*p+4*(c_-s_),4)}, {vr(A,4)}")
            if nxt: a.e(nxt.pop(0))
            if piped and i == 9: a.e("s_waitcnt lgkmcnt(10)")
            for x in tail.pop(i, []) if tail else []: a.e(x)
        assert not nxt and not tail
    a.e("s_mov_b32 s43, 0")
    NU = int(os.environ.get("NU", "4")); HP = int(os.environ.get("HP", "0"))
    if NU:
        a.e("CV_r:")
        for p in range(2):
            rd = rdB(1 - p, p + 1) + rdA(1 - p, p + 1)
            step(p, rd[:HP], [])
            for x in rd[HP:]: a.e(x)
        for x in [f"v_add_u32 v{aa}, 128, v{aa}", f"v_add_u32 v{ba}, {2*US}, v{ba}", "s_add_u32 s43, s43, 1", f"s_cmp_lt_u32 s43, {NU}"]: a.e(x)
        a.e("s_cbranch_scc1 CV_r")
    if QL == 1: load_q(a)
    a.e("CV_l:")
    step(0, rdB(1, 1) + rdA(1, 1), {1: [f"s_cmp_eq_u32 s43, {os.environ.get('VT', '5')}"], 2: ["s_cselect_b64 exec, 1, 0", f"buffer_load_dword v{uw}, v{J}, s[56:59], s45 offen {SC}", "s_mov_b64 exec, -1"]}, True)
    step(1, rdB(0, 2) + rdA(0, 2), {19: [f"v_add_u32 v{aa}, 128, v{aa}"], 5: [f"v_add_u32 v{ba}, {2*US}, v{ba}"], 6: ["s_add_u32 s43, s43, 1"], 7: ["s_cmp_lt_u32 s43, 8"]}, True)
    a.e("s_cbranch_scc1 CV_l")
    mstamp(a)
    a.e("s_waitcnt lgkmcnt(0)")
    for c_ in range(4):
        for mt in range(2):
            A = acc + 8 * c_ + 4 * mt; O = u + 2 * (c_ * 2 + mt)
            a.e(f"v_cvt_pk_bf16_f32 v{O}, v{A}, v{A+1}"); a.e(f"v_cvt_pk_bf16_f32 v{O+1}, v{A+2}, v{A+3}")
            a.e(f"ds_write_b64 v{ya}, {vr(O,2)} offset:{c_*16*72 + mt*32}")
    a.e("s_mov_b32 s53, 0"); a.e("s_waitcnt vmcnt(0)")
    a.e("CV_v:")
    a.e(f"v_readfirstlane_b32 s94, v{uw}"); a.e("s_sub_u32 s94, s94, s52"); a.e("s_and_b32 s37, s94, 0xfffffe01"); a.e("s_cbranch_scc0 CV_k")
    a.e(f"buffer_load_dword v{uw}, v{J}, s[56:59], s45 offen {SC}"); a.e("s_waitcnt vmcnt(0)")
    a.e("s_add_u32 s53, s53, 1"); a.e("s_cmp_lt_u32 s53, s61"); a.e("s_cbranch_scc1 CV_v"); a.e("s_mov_b32 s61, 0"); a.e("s_mov_b32 s94, 0")
    a.e("CV_k:")
    a.e("s_lshr_b32 s94, s94, 1"); a.e("s_add_u32 s37, s94, 65536"); a.e(f"v_mov_b32 v{pt}, {LW+28}"); a.e(f"v_mov_b32 v{pt+1}, s37"); a.e(f"ds_write_b32 v{pt}, v{pt+1}")
    a.e(f"s_cmp_gt_u32 s94, {QUO // 2}"); a.e("s_cselect_b32 s37, 0x2000, 0"); a.e("s_xor_b32 s44, s44, s37")
    lbar(a, 1, pt)
    for i in range(8): a.e(f"ds_read_b64_tr_b16 {vr(fa+32+2*i,2)}, v{ta} offset:{144*i}")
    for i in range(8):
        a.e(f"s_waitcnt lgkmcnt({7-i})")
        a.e(f"v_or_b32 v{fa+32+2*i}, v{ev}, v{fa+32+2*i}")
        a.e(f"buffer_store_dwordx2 {vr(fa+32+2*i,2)}, v{go}, s[12:15], s44 offen {SC}")
        a.e(f"s_add_u32 s44, s44, {GSTR - 262144 if i & 1 else 262144}")
    if PUTE:
        a.e(f"v_mov_b32 v{pt}, {LW+20}"); a.e(f"v_mov_b32 v{pt+1}, 1")
        a.e("s_mov_b64 exec, 1"); a.e(f"ds_add_u32 v{pt}, v{pt+1}"); a.e("s_mov_b64 exec, -1")
    assert v.hi <= 176

PK = 48; W3S = 176
RFO, RYO, RRO, RI, RXA, RXB, RYY, RT = 196, 197, 198, 199, 180, 188, 230, 228
def r_addr(a, full=True):
    t, t2, I, fo, ro, yo = RT, RT + 1, RI, RFO, RRO, RYO
    a.e(f"v_and_b32 v{I}, 7, v0")
    a.e(f"v_lshrrev_b32 v{t}, 6, v0"); a.e(f"v_lshlrev_b32 v{t}, 4, v{t}"); a.e(f"v_bfe_u32 v{t2}, v0, 3, 3"); a.e(f"v_add_u32 v{t}, v{t}, v{t2}")
    a.e("s_lshr_b32 s78, s29, 1"); a.e("s_lshl_b32 s78, s78, 16"); a.e("s_and_b32 s79, s29, 1"); a.e("s_lshl_b32 s79, s79, 7"); a.e("s_add_u32 s78, s78, s79")
    a.e("s_lshr_b32 s79, s30, 1"); a.e("s_lshl_b32 s79, s79, 13"); a.e("s_add_u32 s78, s78, s79")
    a.e(f"v_lshlrev_b32 v{fo}, 8, v{t}"); a.e(f"v_lshl_add_u32 v{fo}, v{I}, 4, v{fo}"); a.e(f"v_add_u32 v{fo}, s78, v{fo}")
    if not full: return
    a.e("s_lshl_b32 s78, s28, 7"); a.e("s_lshl_b32 s79, s29, 3"); a.e("s_add_u32 s78, s78, s79")
    a.e(f"v_add_u32 v{yo}, s78, v{I}"); a.e(f"v_lshlrev_b32 v{ro}, 11, v{yo}")
    a.e(f"v_lshrrev_b32 v{t2}, 2, v{t}"); a.e(f"v_lshlrev_b32 v{t2}, 3, v{t2}"); a.e(f"v_and_b32 v{t}, 3, v{t}"); a.e(f"v_add_u32 v{t}, v{t}, v{t2}")
    a.e(f"v_lshl_add_u32 v{ro}, v{t}, 3, v{ro}")
    a.e(f"v_and_b32 v{yo}, 63, v{yo}"); a.e(f"v_lshlrev_b32 v{yo}, 3, v{yo}"); a.e(f"v_and_b32 v{t2}, 15, v{t}"); a.e(f"v_lshl_add_u32 v{yo}, v{t2}, 9, v{yo}")
    a.e(f"v_lshrrev_b32 v{t2}, 4, v{t}"); a.e(f"v_lshl_add_u32 v{yo}, v{t2}, 14, v{yo}")
    a.e("s_lshr_b32 s78, s28, 3"); a.e("s_lshl_b32 s78, s78, 2"); a.e("s_and_b32 s79, s28, 3"); a.e("s_add_u32 s78, s78, s79"); a.e("s_lshl_b32 s78, s78, 24")
    a.e("s_and_b32 s79, s28, 4"); a.e("s_lshl_b32 s79, s79, 11"); a.e("s_add_u32 s78, s78, s79")
    a.e("s_lshl_b32 s79, s31, 18"); a.e("s_add_u32 s78, s78, s79"); a.e(f"v_add_u32 v{yo}, s78, v{yo}")
def load_y(a, skip_last=False):
    a.srd(80, 4, 8 * GSTR - oHS, off=LB0 + oHS)
    for j in range(2):
        for hh in range(2):
            a.e(f"s_mov_b32 s78, {j*16384 + hh*2048}")
            a.e(f"buffer_load_dwordx2 {vr(RYY+4*j+2*hh,2)}, v{RYO}, s[80:83], s78 offen {os.environ.get('YF', SC)}")
def r_pre(a, l0=False):
    r_addr(a, False)
    lsrd(a, 84, oX3, XSZ); lsrd(a, 88, oX1P, XSZ)
    if l0: a.e("s_cmp_eq_u32 s60, 0"); a.e("s_cselect_b64 exec, -1, 0")
    for j in range(2):
        a.e(f"buffer_load_dwordx4 {vr(RXA+4*j,4)}, v{RFO}, s[84:87], 0 offen offset:{2048*j} {SC}")
        a.e(f"buffer_load_dwordx4 {vr(RXB+4*j,4)}, v{RFO}, s[88:91], 0 offen offset:{2048*j} {SC}")
    if l0: a.e("s_mov_b64 exec, -1")
def r_pre0(a): r_pre(a, True)
def r_pre1(a):
    X = a.lab("rp"); a.e("s_cmp_lg_u32 s60, 0"); a.e(f"s_cbranch_scc1 {X}"); call(a, r_pre); a.e(f"{X}:")

def r_stage(a, final):
    v = VA(6)
    t = v(); t2 = v(); I = RI; fo = RFO; ro = RRO; pt = v(4, 2)
    xa = RXA; xb = RXB; yy = RYY; x = 206; yf = 222; w = v(16, 4); tmp = v()
    pre = final == "pre"
    S = v(2, 2); pp = v(2, 2); qq = v(2, 2); st = w; mean = v(2, 2); rs = mean + 1; var = v(); sw = v(); sr = v()
    def part(src, n):
        a.e(f"v_pk_add_f32 {vr(pp,2)}, {vr(src,2)}, {vr(src+2,2)}"); a.e(f"v_pk_mul_f32 {vr(qq,2)}, {vr(src,2)}, {vr(src,2)}")
        for i in range(1, 8):
            if i > 1: a.e(f"v_pk_add_f32 {vr(pp,2)}, {vr(pp,2)}, {vr(src+2*i,2)}")
            a.e(f"v_pk_fma_f32 {vr(qq,2)}, {vr(src+2*i,2)}, {vr(src+2*i,2)}, {vr(qq,2)}")
        a.e(f"v_add_f32 v{S}, v{pp}, v{pp+1}"); a.e(f"v_add_f32 v{S+1}, v{qq}, v{qq+1}")
        for k in range(2): a.e(f"v_add_f32_dpp v{S+k}, v{S+k}, v{S+k} row_ror:8 row_mask:0xf bank_mask:0xf")
        for op in ("v_permlane16_swap_b32", "v_permlane32_swap_b32"):
            for k in range(2): a.e(f"v_mov_b32 v{pp+k}, v{S+k}")
            for k in range(2): a.e(f"{op} v{S+k}, v{pp+k}")
            a.e(f"v_pk_add_f32 {vr(S,2)}, {vr(S,2)}, {vr(pp,2)}")
        a.e(f"ds_write_b64 v{sw}, {vr(S,2)} offset:{n*512}")
    def comb(n):
        for k in range(4): a.e(f"ds_read_b128 {vr(st+4*k,4)}, v{sr} offset:{n*512+16*k}")
        a.e("s_waitcnt lgkmcnt(0)")
        for k in range(4): a.e(f"v_pk_add_f32 {vr(st+4*k,2)}, {vr(st+4*k,2)}, {vr(st+4*k+2,2)}")
        a.e(f"v_pk_add_f32 {vr(st,2)}, {vr(st,2)}, {vr(st+4,2)}"); a.e(f"v_pk_add_f32 {vr(st+8,2)}, {vr(st+8,2)}, {vr(st+12,2)}")
        a.e(f"v_pk_add_f32 {vr(st,2)}, {vr(st,2)}, {vr(st+8,2)}")
        a.e(f"v_mul_f32 v{mean}, {f32(1/1024)}, v{st}"); a.e(f"v_mul_f32 v{var}, {f32(1/1024)}, v{st+1}")
        a.e(f"v_fma_f32 v{var}, -v{mean}, v{mean}, v{var}"); a.e(f"v_max_f32 v{var}, 0, v{var}")
    SUBM = f"{vr(mean,2)} op_sel_hi:[1,0] neg_lo:[0,1] neg_hi:[0,1]"; MULR = f"{vr(mean,2)} op_sel:[0,1] op_sel_hi:[1,1]"
    if pre: a.e("s_waitcnt lgkmcnt(0)")
    if final is not True:
        a.e(f"v_lshlrev_b32 v{sr}, 6, v{I}"); a.e(f"v_add_u32 v{sr}, {AUX+2048}, v{sr}")
        a.e(f"s_lshl_b32 s35, s30, 3"); a.e(f"v_add_u32 v{sw}, s35, v{sr}")
    if pre:
        a.e("s_waitcnt vmcnt(0)")
        for i in range(8): unpack(a, x + 2 * i, x + 2 * i + 1, xa + i)
        part(x, 0)
        a.e("s_waitcnt lgkmcnt(0)"); a.e("s_barrier")
        return
    if not final:
        a.e(f"s_cmp_eq_u32 s60, 0"); a.e(f"s_cbranch_scc1 R_l0")
    else:
        a.e(f"s_load_dwordx2 s[6:7], s[0:1], {D_OUT}")
    lsrd(a, 8, oP0, XSZ, prev=True); lsrd(a, 12, oP1, XSZ, prev=True)
    lsrd(a, 20, oX3, XSZ); a.e("s_mov_b32 s78, 0x3f80"); a.e("s_mov_b32 s79, 0x3f800000")
    if "r" not in DP: a.e("s_waitcnt vmcnt(0)")
    for i in range(8):
        if not final: unpack(a, yf + 2 * i, yf + 2 * i + 1, yy + i)
        unpack(a, x + 2 * i, x + 2 * i + 1, xa + i); unpack(a, w + 2 * i, w + 2 * i + 1, xb + i)
        a.e(f"v_pk_add_f32 {vr(x+2*i,2)}, {vr(x+2*i,2)}, {vr(w+2*i,2)}")
    lds_ = [f"buffer_load_dwordx4 {vr(r+4*j,4)}, v{fo}, s[{q}:{q+3}], 0 offen offset:{2048*j} {SC}" for j in range(2) for r, q in ((xa, 8), (xb, 12))]
    if "r" in DP: data_poll(a, lds_, (xa, xa + 4, xb, xb + 4), t, int(os.environ.get("RNAP", "4")), int(os.environ.get("RFIRST", "24")), int(os.environ.get("RCAN", "0"))); mstamp(a)
    else:
        poll(a, ST_G4, pt, prev=True)
        mstamp(a)
        for x_ in lds_: a.e(x_)
    for i in range(8):
        if i % 4 == 0 and "r" not in DP: a.e(f"s_waitcnt vmcnt({2 - i // 2})")
        u = w + 4 * (i & 3)
        if DOT:
            if i == 0:
                for r_ in (xa, xb):
                    for k in range(16): a.e(f"v_dot2_f32_bf16 v{x+k}, v{r_+k//2}, s{78+(k&1)}, v{x+k}")
                a.e("s_nop 2")
            continue
        unpack(a, u, u + 1, xa + i); unpack(a, u + 2, u + 3, xb + i)
        a.e(f"v_pk_add_f32 {vr(u,2)}, {vr(u,2)}, {vr(u+2,2)}")
        a.e(f"v_pk_add_f32 {vr(x+2*i,2)}, {vr(x+2*i,2)}, {vr(u,2)}")
        if final: a.e(f"v_cvt_pk_bf16_f32 v{xa+i}, v{x+2*i}, v{x+2*i+1}")
        else: round2(a, x + 2 * i, x + 2 * i + 1, tmp)
    if final:
        a.e("s_waitcnt lgkmcnt(0)")
        a.srd(20, 6, 4 * MB)
        OS = os.environ.get("OS", "sc1")
        if os.environ.get("OWIDE", "1") == "1":
            a.e(f"v_bfe_u32 v{t}, v1, 3, 1"); a.e(f"v_cmp_eq_u32 vcc, 1, v{t}")
            for j in range(2):
                lo, hi = xa + 4 * j, xa + 4 * j + 2
                for e in range(2):
                    a.e(f"v_cndmask_b32 v{x+e}, v{hi+e}, v{lo+e}, vcc")
                for e in range(2):
                    a.e(f"v_mov_b32_dpp v{x+2+e}, v{x+e} row_ror:8 row_mask:0xf bank_mask:0xf")
                for e in range(2):
                    a.e(f"v_cndmask_b32 v{x+4+e}, v{lo+e}, v{x+2+e}, vcc"); a.e(f"v_cndmask_b32 v{hi+e}, v{x+2+e}, v{hi+e}, vcc")
                for e in range(2): a.e(f"v_mov_b32 v{lo+e}, v{x+4+e}")
            a.e(f"v_bfe_u32 v{t2}, v1, 4, 1"); a.e(f"v_lshlrev_b32 v{t}, 5, v{t}"); a.e(f"v_lshl_add_u32 v{t}, v{t2}, 4, v{t}")
            a.e(f"v_and_b32 v{t2}, 0xffffffc0, v{ro}"); a.e(f"v_add_u32 v{t}, v{t}, v{t2}")
            for j in range(2): a.e(f"buffer_store_dwordx4 {vr(xa+4*j,4)}, v{t}, s[20:23], 0 offen offset:{128*j} {OS}")
        else:
            for j in range(4): a.e(f"buffer_store_dwordx2 {vr(xa+2*j,2)}, v{ro}, s[20:23], 0 offen offset:{128*(j>>1) + 32*(j&1)} {OS}")
        return v.hi
    part(x, 0)
    if os.environ.get("RST"): mstamp(a)
    a.e("s_waitcnt lgkmcnt(0)"); a.e("s_barrier")
    if os.environ.get("RST"): mstamp(a)
    comb(0)
    ln_finish(a, mean, var, rs)
    if os.environ.get("RST"): mstamp(a)
    a.e(f"v_mul_f32 v{mean}, v{mean}, v{rs}")
    for i in range(8): a.e(f"v_pk_fma_f32 {vr(w+2*i,2)}, {vr(x+2*i,2)}, {vr(mean,2)}, {vr(mean,2)} op_sel:[0,1,0] op_sel_hi:[1,1,0] neg_lo:[0,0,1] neg_hi:[0,0,1]")
    for i in range(8):
        D = w + 2 * i
        a.e(f"v_pk_fma_f32 {vr(x+2*i,2)}, {vr(D,2)}, {vr(yf+2*i,2)}, {vr(x+2*i,2)}")
        a.e(f"v_cvt_pk_bf16_f32 v{xa+i}, v{x+2*i}, v{x+2*i+1}")
        if i % 4 == 1 and DP: mark(a, xa + i - 1, 0)
        if i % 4 == 3: a.e(f"buffer_store_dwordx4 {vr(xa+i-3,4)}, v{fo}, s[20:23], 0 offen offset:{2048*(i//4)} {SC}")
    if os.environ.get("RST"): mstamp(a)
    a.e("s_branch R_s2")
    a.e("R_l0:")
    for i in range(8): unpack(a, x + 2 * i, x + 2 * i + 1, xa + i)
    part(x, 0)
    a.e("s_waitcnt lgkmcnt(0)")
    st_ = st; st = yf
    a.e("s_lshl_b32 s36, s28, 10"); a.e(f"s_add_u32 s36, s36, {F_FRONT}"); a.e("s_lshl_b32 s53, s30, 7"); a.e("s_add_u32 s36, s36, s53"); a.e(f"v_mov_b32 v{st+4}, s36")
    lds_spin(a, LW + 28, 65536, st, dst=94)
    if STAMP: a.e("s_and_b32 s95, s94, 0xffff")
    a.e(f"s_cmp_gt_u32 s94, {65536 + QUO // 2}"); a.e("s_cselect_b32 s94, 1, 0")
    a.e("s_lshl_b32 s53, s94, 13"); a.e(f"v_xor_b32 v{RYO}, s53, v{RYO}")
    a.e("s_waitcnt vmcnt(0)"); a.e("s_barrier")
    poll_core(a, st, [st + 4], 1, cnt=32, nap=FSLEEP)
    load_y(a)
    group_off(a, 55, 28)
    a.e("s_add_u32 s62, s4, s55"); a.e("s_addc_u32 s63, s5, 0")
    a.e("s_sub_u32 s36, s28, 1"); a.e("s_max_i32 s36, s36, 0"); group_off(a, 92, 36); a.e("s_sub_u32 s92, s92, s55")
    a.e("s_add_u32 s36, s28, 1"); a.e("s_min_u32 s36, s36, 15"); group_off(a, 93, 36); a.e("s_sub_u32 s93, s93, s55")
    a.e(f"s_add_u32 s55, s55, {oSM}")
    lsrd(a, 20, oX3, XSZ)
    st = st_; comb(0); ln_finish(a, mean, var, rs); st = yf
    for i in range(8):
        D = w + 2 * i
        a.e(f"v_pk_add_f32 {vr(D,2)}, {vr(x+2*i,2)}, {SUBM}"); a.e(f"v_pk_mul_f32 {vr(D,2)}, {vr(D,2)}, {MULR}")
    a.e("s_barrier")
    mstamp(a)
    a.e("s_waitcnt vmcnt(0)")
    for i in range(8):
        D = w + 2 * i
        unpack(a, st, st + 1, yy + i)
        a.e(f"v_pk_fma_f32 {vr(x+2*i,2)}, {vr(D,2)}, {vr(st,2)}, {vr(x+2*i,2)}"); a.e(f"v_cvt_pk_bf16_f32 v{xa+i}, v{x+2*i}, v{x+2*i+1}")
        if i % 4 == 1 and DP: mark(a, xa + i - 1, 0)
        if i % 4 == 3: a.e(f"buffer_store_dwordx4 {vr(xa+i-3,4)}, v{fo}, s[20:23], 0 offen offset:{2048*(i//4)} {SC}")
    a.e("R_s2:")
    st = st_
    for i in range(8): unpack(a, x + 2 * i, x + 2 * i + 1, xa + i)
    part(x, 1)
    if "1" in DP:
        a.e("s_waitcnt lgkmcnt(0)"); a.e("s_barrier")
        a.e("s_cmp_lg_u32 s30, 6"); a.e("s_cbranch_scc1 R_n6"); a.e("s_cmp_lg_u32 s60, 0"); a.e("s_cbranch_scc1 R_n6")
        a.e("s_lshl_b32 s53, s29, 7"); a.e(f"s_add_u32 s53, s53, {F_CS}"); a.e(f"v_mov_b32 v{pt}, 1"); a.e(f"v_mov_b32 v{pt+1}, 0")
        a.e("s_mov_b64 exec, 1"); a.e(f"buffer_atomic_add v{pt}, v{pt+1}, s[56:59], s53 offen {SC}"); a.e("s_mov_b64 exec, -1")
        a.e("R_n6:")
    else:
        publish(a, ST_R, 8, pt)
        a.e("s_barrier")
    a.e(f"s_cmp_lg_u32 s30, {7 if '1' in DP else 0}"); a.e("s_cbranch_scc1 R_nl")
    comb(1)
    outv = yf + 2; s3 = v(); m4 = v(); v4_ = v(); r4 = v()
    assert v.hi <= PK
    a.e(f"v_mov_b32 v{m4}, v{mean}"); a.e(f"v_mov_b32 v{v4_}, v{var}")
    ln_finish(a, mean, var, rs, s3)
    a.e(f"v_sub_f32 v{m4}, v{m4}, v{mean}"); a.e(f"v_mul_f32 v{m4}, v{m4}, v{rs}")
    a.e(f"v_mul_f32 v{v4_}, v{v4_}, v{rs}"); a.e(f"v_mul_f32 v{v4_}, v{v4_}, v{rs}")
    ln_finish(a, m4, v4_, r4)
    a.e(f"v_mov_b32 v{outv}, v{mean}"); a.e(f"v_mov_b32 v{outv+1}, v{rs}")
    a.e(f"v_fma_f32 v{outv+2}, v{m4}, v{s3}, v{mean}"); a.e(f"v_mul_f32 v{outv+3}, v{rs}, v{r4}")
    lsrd(a, 24, oLNS, 2048)
    a.e("s_lshl_b32 s36, s29, 3"); a.e(f"v_add_u32 v{t}, s36, v{I}"); a.e(f"v_lshlrev_b32 v{t}, 4, v{t}")
    a.e("s_mov_b64 exec, 0xff")
    a.e(f"buffer_store_dwordx4 {vr(outv,4)}, v{t}, s[24:27], 0 offen {SC}")
    a.e("s_mov_b64 exec, -1")
    publish(a, ST_R2, 1, pt)
    a.e("R_nl:")
    return v.hi

TAB = int(os.environ.get("TAB", "1")); TV = 248
def lead(seq, r, L, P=4):
    if L == 0: return list(seq)
    return [x for _, x in sorted(((i - L - 0.5 if i % P == r else i), x) for i, x in enumerate(seq))]
def order3(j, gi):
    mode, L = eval(os.environ.get("O3", "('r',0)"))
    if mode == "r": return [(gi + t) & 15 for t in range(16)]
    if mode == "n": return [gi] + [x for x in lead(range(16), (j + gi) & 3, L) if x != gi]
    if mode == "s": return [gi] + lead([x for x in range(16) if x != gi], (j + gi) & 3, L)
    if mode == "h": return [gi] + [x for x in lead([(t + (gi & 8)) & 15 for t in range(16)], (j + gi) & 3, L) if x != gi]
def order4(j, n):
    mode, L = eval(os.environ.get("O4", "('n',1)"))
    own = [(7 * n + i, 7 * n + 4 + i) for i in range(3)]
    ps = [(n + t) & 7 for t in range(8)] if mode == "r" else list(range(8))
    ab = [(7 * p + i, 7 * p + 4 + i) for i in range(2) for p in ps if p != n]
    c = [7 * p + o for p in ps for o in (2, 6, 3) if p != n or o == 3]
    rest = ab + [(c[2 * i], c[2 * i + 1]) for i in range(11)]
    if mode != "r": rest = lead(rest, (j + n + int(os.environ.get("O4R", "0"))) & 3, L)
    return own + rest
L4 = eval(os.environ.get("O4", "('n',1)"))[1] if TAB else 0
def tab_data(a):
    a.lines.append(".p2align 6"); a.lines.append("K_tab:")
    for gi in range(16):
        for j in range(4):
            o3 = order3(j, gi) + [0] * 16; o4 = order4(j, gi & 7) + [(0, 0)] * 4
            assert sorted(o3[:16]) == list(range(16)) and sorted(sum(o4[:28], ())) == list(range(56))
            a.lines.append(".short " + ",".join(str(o3[t] | o4[t][0] << 4 | o4[t][1] << 10) for t in range(32)))
def tab_load(a):
    a.e("s_getpc_b64 s[34:35]"); a.e("K_tpc:")
    a.e("s_lshl_b32 s36, s29, 2"); a.e("s_and_b32 s37, s28, 3"); a.e("s_add_u32 s36, s36, s37"); a.e("s_lshl_b32 s36, s36, 6")
    a.e("s_add_u32 s36, s36, K_tab-K_tpc"); a.e("s_add_u32 s34, s34, s36"); a.e("s_addc_u32 s35, s35, 0")
    a.e(f"v_and_b32 v{TV}, 31, v1"); a.e(f"v_lshlrev_b32 v{TV}, 1, v{TV}"); a.e(f"global_load_ushort v{TV+3}, v{TV}, s[34:35]")
def tab_make(a, w):
    T, x = TV + 3, TV + 4
    if not w:
        a.e(f"v_bfe_u32 v{x}, v{T}, 2, 2"); a.e(f"v_lshlrev_b32 v{TV}, 14, v{x}"); a.e(f"v_and_b32 v{x}, 3, v{T}"); a.e(f"v_lshl_add_u32 v{TV}, v{x}, 11, v{TV}")
        for lw in range(2):
            a.e(f"v_bfe_u32 v{x}, v{T}, {7+6*lw}, 3"); a.e(f"v_lshlrev_b32 v{TV+1+lw}, 14, v{x}"); a.e(f"v_bfe_u32 v{x}, v{T}, {4+6*lw}, 3"); a.e(f"v_lshl_add_u32 v{TV+1+lw}, v{x}, 10, v{TV+1+lw}")
    else:
        a.e(f"v_and_b32 v{x}, 15, v{T}"); a.e(f"v_mul_u32_u24 v{TV}, {64*7168}, v{x}")
        a.e("s_and_b32 s36, s30, 1"); a.e("s_mul_i32 s36, s36, 6"); a.e("s_add_u32 s36, s36, 4"); a.e(f"v_bfe_u32 v{x}, v{T}, s36, 6")
        assert all((q * 37) >> 8 == q // 7 for q in range(56))
        a.e(f"v_mul_u32_u24 v{TV+2}, 37, v{x}"); a.e(f"v_lshrrev_b32 v{TV+2}, 8, v{TV+2}"); a.e(f"v_mul_u32_u24 v{TV+2}, 7, v{TV+2}"); a.e(f"v_sub_u32 v{TV+2}, v{x}, v{TV+2}")
        a.e(f"v_cmp_eq_u32 vcc, 3, v{TV+2}"); a.e(f"v_cndmask_b32 v{TV+2}, 0, 1, vcc"); a.e(f"v_lshl_add_u32 v{TV+1}, v{x}, 16, v{TV+2}")
        for p_ in eval(os.environ.get("W4SKIP", "[]")): a.e("s_mov_b32 s36, 0x40000000"); a.e(f"v_writelane_b32 v{TV+1}, s36, {p_}")
def rot_init(a, which):
    if which == 3 and TAB: a.e("s_mov_b32 s44, 0")
    elif which == 3 and OWN3: a.e("s_mov_b32 s44, s29")
    elif which != 4: a.e("s_mov_b32 s44, s67")
    else: a.e("s_mov_b32 s44, 0")
def rot_next(a, which):
    a.e("s_add_u32 s44, s44, 1")
    if which != 4: a.e("s_and_b32 s44, s44, 15")
def kb4(a, d, lw):
    a.e("s_lshl_b32 s45, s44, 1"); a.e(f"s_add_u32 s45, s45, {lw}"); a.e("s_sub_u32 s45, s45, 32")
    a.e("s_mul_i32 s46, s45, 86"); a.e("s_lshr_b32 s46, s46, 8")
    a.e("s_mul_i32 s47, s46, 3"); a.e("s_sub_u32 s47, s45, s47"); a.e("s_lshl_b32 s47, s47, 2"); a.e("s_lshr_b32 s47, 0x362, s47"); a.e("s_and_b32 s47, s47, 7")
    a.e("s_cmp_ge_u32 s44, 10"); a.e("s_cselect_b32 s45, 9, 2"); a.e("s_cselect_b32 s51, 1, 0"); a.e("s_sub_u32 s45, s44, s45")
    a.e("s_cmp_lt_u32 s44, 3"); a.e("s_cselect_b32 s45, 0, s45"); a.e("s_cselect_b32 s51, s44, s51")
    a.e(f"s_lshl2_add_u32 s51, {lw}, s51")
    a.e("s_cmp_lt_u32 s44, 17"); a.e("s_cselect_b32 s47, s51, s47"); a.e("s_cselect_b32 s46, s45, s46")
    a.e("s_add_u32 s46, s46, s33"); a.e("s_and_b32 s46, s46, 7"); a.e("s_mul_i32 s46, s46, 7"); a.e(f"s_add_u32 s{d}, s46, s47")
assert all((q * 86) >> 8 == q // 3 for q in range(24))
WVB = {1: 238, 2: 238, 4: 239, 3: 241}
WV = 245
def w_lanes(a):
    t, t2 = WV + 8, WV + 9
    R = WVB[1]
    a.e(f"v_lshrrev_b32 v{t}, 3, v1"); a.e(f"v_lshlrev_b32 v{R}, 11, v{t}")
    a.e(f"v_and_b32 v{t}, 6, v{t}"); a.e(f"v_and_b32 v{t2}, 7, v1"); a.e(f"v_xor_b32 v{t}, v{t}, v{t2}"); a.e(f"v_lshl_add_u32 v{R}, v{t}, 4, v{R}")
    R = WVB[4]
    for p in range(2):
        a.e(f"v_lshrrev_b32 v{t}, 4, v1"); a.e(f"v_lshlrev_b32 v{R+p}, 11, v{t}")
        a.e(f"v_add_u32 v{t}, {4*p}, v{t}"); a.e(f"v_lshlrev_b32 v{t}, 1, v{t}"); a.e(f"v_and_b32 v{t2}, 15, v1"); a.e(f"v_xor_b32 v{t}, v{t}, v{t2}")
        a.e(f"v_lshl_add_u32 v{R+p}, v{t}, 4, v{R+p}")
    R = WVB[3]
    assert all((p * 2341) >> 16 == p // 28 for p in range(448))
    for ii in range(7):
        a.e(f"v_add_u32 v{t2}, {64*ii}, v1"); a.e(f"v_mul_u32_u24 v{t}, 2341, v{t2}"); a.e(f"v_lshrrev_b32 v{t}, 16, v{t}")
        a.e(f"v_mul_u32_u24 v{R+ii}, 28, v{t}"); a.e(f"v_sub_u32 v{t2}, v{t2}, v{R+ii}")
        a.e(f"v_mul_u32_u24 v{R+ii}, 7168, v{t}")
        a.e(f"v_lshrrev_b32 v{t}, 1, v{t}"); a.e(f"v_and_b32 v{t}, 2, v{t}"); a.e(f"v_xor_b32 v{t2}, v{t2}, v{t}")
        a.e(f"v_lshl_add_u32 v{R+ii}, v{t2}, 4, v{R+ii}")
def w_srd(a, which):
    c = CFG[which]
    a.e(f"s_mov_b64 s[12:13], s[{66+2*which}:{67+2*which}]")
    a.e(f"s_mov_b32 s14, {c['KBT'] * 32 * c['LDW']}"); a.e("s_mov_b32 s15, 0x20000")
def w_setup(a, which, pre=True, lo=0):
    c = CFG[which]; STB = c["STB"]; BW = STB // 2
    w_srd(a, which)
    a.e("s_and_b32 s35, s30, 1")
    a.e(f"s_mul_i32 s38, s{(0, 99, 29, 29, 33)[which]}, {c['RB']}");
    if which != 4: a.e(f"s_mul_i32 s41, s35, {32*c['LDW']}"); a.e("s_add_u32 s38, s38, s41")
    if which == 4: a.e(f"s_mul_i32 s41, s31, {1792*c['LDW']}"); a.e("s_add_u32 s38, s38, s41")
    a.e(f"s_mul_i32 s41, s35, {BW}"); a.e(f"s_add_u32 s41, s41, {c['WB']}")
    a.e("s_mov_b32 s42, 0"); rot_init(a, which)
    if not pre: return
    NP = c["NPRE"]
    a.e("s_mov_b32 s49, s44"); a.e("s_and_b32 s43, s28, 3"); a.e(f"s_mul_i32 s43, s43, {NP - lo}"); a.e("s_lshr_b32 s43, s43, 2"); a.e(f"s_mov_b32 s50, {lo}")
    if not WROT: a.e("s_mov_b32 s43, 0")
    if lo: a.e(f"s_add_u32 s43, s43, {lo}")
    L = a.lab("wpre"); a.e(f"{L}:")
    a.e(f"s_mul_i32 s42, s43, {STB}"); a.e("s_add_u32 s44, s49, s43")
    if which != 4: a.e("s_and_b32 s44, s44, 15")
    w_issue(a, which, pace=PACES.get(which, PACE))
    a.e("s_add_u32 s43, s43, 1"); a.e(f"s_cmp_eq_u32 s43, {NP}"); a.e(f"s_cselect_b32 s43, {lo}, s43")
    a.e("s_add_u32 s50, s50, 1"); a.e(f"s_cmp_lt_u32 s50, {NP}"); a.e(f"s_cbranch_scc1 {L}")
    mstamp(a)
    a.e(f"s_mov_b32 s42, {(NP % c['NW']) * STB}"); a.e(f"s_add_u32 s44, s49, {NP}")
    if which != 4: a.e("s_and_b32 s44, s44, 15")
YP = int(os.environ.get("YP", "0"))
def ypause(a):
    if not YP: return
    X = a.lab("yp")
    a.e(f"v_mov_b32 v6, {LW+4}"); a.e("ds_read2_b32 v[14:15], v6 offset0:0 offset1:1"); a.e("s_waitcnt lgkmcnt(0)"); a.e("v_readfirstlane_b32 s53, v15")
    a.e(f"s_cmp_lt_u32 s53, {YP}"); a.e(f"s_cbranch_scc1 {X}")
    lds_spin(a, LW + 4, 16, 6, nap=2)
    a.e(f"{X}:")
def park_load(a, pace):
    w_srd(a, 2)
    a.e("s_and_b32 s35, s30, 3"); a.e("s_lshl_b32 s35, s35, 19"); a.e("s_lshl_b32 s39, s29, 7"); a.e("s_add_u32 s39, s39, s35")
    for q in range(32):
        a.e(f"buffer_load_dwordx4 {vr(PK+4*q,4)}, v{WVB[2]}, s[12:15], s39 offen"); a.e("s_add_u32 s39, s39, 16384")
        if pace and q % 4 == 3: a.e(f"s_waitcnt vmcnt({pace})"); ypause(a)
def park(a): park_load(a, int(os.environ.get("PKP", "8")))
def late_park(a):
    X = a.lab("lp"); a.e("s_cmp_lg_u32 s60, 0"); a.e(f"s_cbranch_scc1 {X}"); call(a, park); a.e(f"{X}:")
def after_g1(a):
    c = CFG[3]
    if os.environ.get("UPD0"): a.e("s_sleep " + os.environ["UPD0"])
    w_srd(a, 3)
    a.e(f"v_readlane_b32 s36, v{TV+3}, 0"); a.e(f"v_readlane_b32 s37, v{TV+3}, 1"); a.e(f"v_readlane_b32 s34, v{TV+3}, 2")
    a.e("s_and_b32 s35, s30, 3"); a.e(f"s_mul_i32 s38, s35, {16*7168}"); a.e("s_mul_i32 s39, s29, 448"); a.e("s_add_u32 s38, s38, s39")
    for r in (36, 37, 34): a.e(f"s_and_b32 s{r}, s{r}, 15"); a.e(f"s_mul_i32 s{r}, s{r}, {64*7168}"); a.e(f"s_add_u32 s{r}, s{r}, s38")
    a.e("s_mul_i32 s39, s35, 7168"); a.e(f"s_add_u32 m0, s39, {c['WB'] + c['S0'] * c['STB']}")
    for i in range(7):
        if i: a.e("s_add_u32 m0, m0, 1024")
        a.e(f"buffer_load_dwordx4 v{WVB[3]+i}, s[12:15], s36 offen lds")
    for i in range(7 if W3N == 2 else 0): a.e(f"buffer_load_dwordx4 {vr(W3S+4*i,4)}, v{WVB[3]+i}, s[12:15], s37 offen")
    a.e("s_lshr_b32 s36, s67, 2"); a.e("s_sub_u32 s36, s35, s36"); a.e("s_and_b32 s36, s36, 3"); a.e("s_lshl_b32 s36, s36, 15"); a.e(f"v_add_u32 v6, s36, v2")
    if W33 == 1:
        for i in range(7): a.e(f"buffer_load_dwordx4 {vr(16+4*i,4)}, v{WVB[3]+i}, s[12:15], s34 offen")
    a.e(f"s_waitcnt vmcnt({21 if W33 == 1 else 7 * W3N})")
    if os.environ.get("UPD"): a.e("s_sleep " + os.environ["UPD"])
    for q in range(32): a.e(f"ds_write_b128 v6, {vr(PK+4*q,4)} offset:{CFG[2]['WB'] + 1024*q}")
    a.e("s_waitcnt lgkmcnt(0)")
W3N = int(os.environ.get("W3N", "2"))
W33 = int(os.environ.get("W33", "0"))
def third_late(a):
    a.e(f"s_sleep {W33}")
    for i in range(7): a.e(f"buffer_load_dwordx4 {vr(16+4*i,4)}, v{WVB[3]+i}, s[12:15], s34 offen")
def third_put(a):
    c = CFG[3]
    for i in range(7): a.e(f"ds_write_b128 v7, {vr(16+4*i,4)} offset:{c['STB'] + 1024*i}")
    a.e("s_waitcnt lgkmcnt(0)")
def after_g2(a):
    c = CFG[3]
    if W3N == 1:
        a.e("s_and_b32 s35, s30, 3"); a.e("s_mul_i32 s39, s35, 7168"); a.e(f"s_add_u32 m0, s39, {c['WB'] + (c['S0'] + 1) % c['NW'] * c['STB']}")
        for i in range(7):
            if i: a.e("s_add_u32 m0, m0, 1024")
            a.e(f"buffer_load_dwordx4 v{WVB[3]+i}, s[12:15], s37 offen lds")
        return
    a.e("s_and_b32 s35, s30, 3"); a.e("s_mul_i32 s39, s35, 7168"); a.e(f"s_add_u32 s39, s39, {c['WB'] + (c['S0'] + 1) % c['NW'] * c['STB']}"); a.e("v_add_u32 v7, s39, v2")
    for i in range(7): a.e(f"ds_write_b128 v7, {vr(W3S+4*i,4)} offset:{1024*i}")
    a.e("s_waitcnt lgkmcnt(0)")
SUBX = {}
def call(a, f):
    SUBX[f.__name__] = f; a.e(f"s_call_b64 s[76:77], SUB_{f.__name__}")
def w1_slots(a, js, pace=0):
    for j in js:
        a.e(f"s_mov_b32 s42, {j*8192}"); a.e("s_mov_b32 s44, s67"); a.e(f"s_add_u32 s44, s44, {j}"); a.e("s_and_b32 s44, s44, 15")
        call_issue(a, w_issue, 1)
        if pace: a.e(f"s_waitcnt vmcnt({pace})")
def w1_done(a):
    a.e("s_mov_b32 s42, 0"); a.e("s_mov_b32 s44, s67"); a.e("s_add_u32 s44, s44, 13"); a.e("s_and_b32 s44, s44, 15")
class Rec:
    def __init__(s_): s_.l = []
    def e(s_, x): s_.l.append(x)
    srd = Asm.srd
def w_parts(which, direct=False):
    c = CFG[which]; STB = c["STB"]; n = STB // 2048; LDW = c["LDW"]; b = Rec()
    b.e("s_add_u32 s19, s41, s42")
    arm = ["s_mov_b32 m0, s19", "s_mov_b32 s39, s16"]
    if which == 4 and TAB:
        b.e(f"v_readlane_b32 s16, v{TV+1}, s44")
        b.e("s_bitcmp1_b32 s16, 0"); b.e(f"s_cselect_b32 s17, {8*2048}, {4*2048}".replace(f"{4*2048}", "s45")); b.e(f"s_cselect_b32 s18, {-20*2048}, s45")
        b.e("s_andn2_b32 s16, s16, 1"); b.e("s_add_u32 s16, s16, s38")
        b.l.insert(0, f"s_mov_b32 s45, {4*2048}")
        arm += ["s_mov_b32 s32, s17", "s_mov_b32 s3, s18"]
        if os.environ.get("W4SKIP"): arm += ["s_bitcmp1_b32 s16, 30", "s_cselect_b64 exec, 0, -1"]
    elif which == 3 and TAB and not direct:
        b.e(f"v_readlane_b32 s16, v{TV}, s44"); b.e("s_add_u32 s16, s16, s38")
    elif which == 4:
        b.e("s_and_b32 s40, s30, 1"); kb4(b, 16, "s40")
        b.e(f"s_mul_i32 s16, s16, {32*LDW}"); b.e("s_add_u32 s16, s16, s38")
        b.e("s_cmp_eq_u32 s47, 3"); b.e("s_cselect_b32 s17, 8, 4"); b.e("s_cselect_b32 s18, -20, 4")
        b.e("s_lshl_b32 s17, s17, 11"); b.e("s_lshl_b32 s18, s18, 11")
        arm += ["s_mov_b32 s32, s17", "s_mov_b32 s3, s18"]
    else:
        b.e(f"s_mul_i32 s16, s44, {64*LDW}"); b.e("s_add_u32 s16, s16, s38")
    if f"w{which}" in os.environ.get("HOT", ""): b.e("s_mov_b32 s16, s38")
    rot_next(b, which)
    b.e(f"s_add_u32 s42, s42, {STB}"); b.e(f"s_cmp_eq_u32 s42, {c['NW']*STB}"); b.e("s_cselect_b32 s42, 0, s42")
    fire = []
    for i in range(n):
        g = []
        if i:
            g.append("s_add_u32 m0, m0, 1024")
            if which in (1, 2): g.append(f"s_add_u32 s39, s39, {8*LDW}")
            elif which == 4: g.append(f"s_add_u32 s39, s39, s{3 if i == 4 else 32}")
            elif i == 7: g.append(f"s_add_u32 s39, s39, {16*LDW}")
        vo = WVB[which] + (0 if which in (1, 2) else (i & 1) if which == 4 else i % 7)
        fire.append(g + [f"buffer_load_dwordx4 v{vo}, s[12:15], s39 offen lds"])
    if f"w{which}" in os.environ.get("NOLD", ""): fire = [[x for x in g if not x.startswith("buffer_load")] + ["s_nop 0"] for g in fire]
    return b.l, arm, fire
def w_issue(a, which, pace=0, direct=False):
    prep, arm, fire = w_parts(which, direct)
    for x in prep + arm: a.e(x)
    for i, g in enumerate(fire):
        for x in g: a.e(x)
        if pace and (i % 4 == 3 or i == len(fire) - 1): a.e(f"s_waitcnt vmcnt({pace})")

def w_bases(a, which, dst, swn, ntl, t, t2):
    c = CFG[which]; RB = c["RB"]
    a.e(f"v_lshrrev_b32 v{t}, 2, v1")
    a.e(f"v_mul_u32_u24 v{dst}, {RB}, v{t}"); a.e(f"v_and_b32 v{t2}, 3, v1"); a.e(f"v_lshl_add_u32 v{dst}, v{t2}, 3, v{dst}")
    a.e(f"v_add_u32 v{dst}, {c['WB']}, v{dst}")
    if which == 3:
        a.e(f"s_mul_i32 s36, s{swn}, {7*32}"); a.e(f"v_add_u32 v{dst}, s36, v{dst}")
        a.e(f"v_bfe_u32 v{t}, v1, 4, 1"); a.e(f"v_lshlrev_b32 v{t}, 5, v{t}")
        a.e(f"s_cmp_eq_u32 s{swn}, 0"); a.e("s_cselect_b32 s36, 1, -1"); a.e(f"v_mul_lo_u32 v{t}, v{t}, s36")
        a.e(f"v_sub_u32 v{dst+1}, v{dst}, v{t}"); a.e(f"v_add_u32 v{dst}, v{dst}, v{t}")
        return 2, lambda nt, kk, h: (nt & 1, (32 * kk + 16 * h) * RB + 32 * nt)
    if which == 4: a.e(f"v_and_b32 v{t}, 7, v{t}")
    else: a.e(f"v_bfe_u32 v{t}, v{t}, 1, 2")
    for nt in range(ntl - 1, -1, -1):
        a.e(f"s_mul_i32 s36, s{swn}, {ntl}"); a.e(f"s_add_u32 s36, s36, {nt}")
        a.e(f"v_xor_b32 v{t2}, s36, v{t}"); a.e(f"v_lshl_add_u32 v{dst+nt}, v{t2}, 5, v{dst}")
    return ntl, lambda nt, kk, h: (nt, (32 * kk + 16 * h) * RB)

def a_parts(which):
    c = CFG[which]; b = Rec()
    if which <= 2 and NX:
        b.e("s_and_b32 s42, s48, 7"); b.e("s_lshl_b32 s42, s42, 14"); b.e("s_lshr_b64 s[48:49], s[48:49], 4")
    b.e("s_add_u32 s19, s41, s42")
    arm = ["s_mov_b32 m0, s19", "s_mov_b32 s39, s16"]; fire = []
    if which == 2:
        b.e(f"s_mul_i32 s16, s44, {8*PITCH}"); b.e("s_add_u32 s16, s16, s38")
        b.e("s_lshr_b32 s45, s44, 2"); b.e("s_xor_b32 s45, s45, s94"); b.e("s_and_b32 s45, s45, 1"); b.e("s_lshl_b32 s45, s45, 13"); b.e("s_add_u32 s16, s16, s45")
        b.e("s_lshr_b32 s45, s44, 3"); b.e("s_lshl_b32 s45, s45, 4"); b.e("s_add_u32 s45, s45, 16")
        b.e("s_sub_u32 s46, 0, s45"); b.e("s_bitcmp1_b32 s44, 2"); b.e("s_cselect_b32 s45, s45, s46"); b.e("s_add_u32 s16, s16, s45")
        step = PITCH
    elif which == 4:
        for lw in range(2):
            if TAB: b.e(f"v_readlane_b32 s{16+lw}, v{TV+1+lw}, s44")
            else: kb4(b, 16 + lw, lw); spread(b, 16 + lw, 16 + lw)
        for lw in range(2): b.e(f"s_add_u32 s{16+lw}, s{16+lw}, s38")
        arm.append("s_mov_b32 s40, s17")
        for i in range(4):
            for lw in range(2):
                fire.append((["s_add_u32 m0, m0, 1024"] if i or lw else []) + ([f"s_add_u32 s{39+lw}, s{39+lw}, {c['KBT']*2048}"] if i else []) +
                            [f"buffer_load_dwordx4 v2, s[12:15], s{39+lw} offen {SC} lds"])
    elif which == 3 and TAB:
        b.e(f"v_readlane_b32 s16, v{TV}, s44"); b.e("s_add_u32 s16, s16, s38"); step = c['KBT'] * 2048
    else:
        b.e("s_lshr_b32 s45, s44, 2"); b.e("s_lshl_b32 s45, s45, 14"); b.e("s_and_b32 s16, s44, 3"); b.e("s_lshl_b32 s16, s16, 11")
        b.e("s_add_u32 s16, s16, s45"); b.e("s_add_u32 s16, s16, s38"); step = c['KBT'] * 2048
    if f"a{which}" in os.environ.get("HOT", ""):
        b.e("s_mov_b32 s16, s38")
        if which == 4: b.e("s_add_u32 s17, s38, 1024")
    for i in range(4 if which != 4 else 0):
        fire.append((["s_add_u32 m0, m0, 2048", f"s_add_u32 s39, s39, {step}"] if i else []) + [f"buffer_load_dwordx4 v2, s[12:15], s39 offen {SC} lds"])
        fire.append([f"buffer_load_dwordx4 v2, s[12:15], s39 offen offset:1024 {SC} lds"])
    rot_next(b, which)
    if not (which <= 2 and NX):
        b.e(f"s_add_u32 s42, s42, 16384"); b.e(f"s_cmp_eq_u32 s42, {c['NA']*16384}"); b.e("s_cselect_b32 s42, 0, s42")
    if f"a{which}" in os.environ.get("NOLD", ""): fire = [[x for x in g if not x.startswith("buffer_load")] + ["s_nop 0"] for g in fire]
    return b.l, arm, fire
def a_issue(a, which):
    prep, arm, fire = a_parts(which)
    for x in prep + arm + sum(fire, []): a.e(x)
SUBS = {}
def call_issue(a, issue, which):
    nm = f"SUB_{issue.__name__}_{which}"; SUBS[nm] = (issue, which)
    a.e(f"s_call_b64 s[76:77], {nm}")
def emit_subs(a):
    for nm, f in SUBX.items(): a.e(f"SUB_{nm}:"); f(a); a.e("s_setpc_b64 s[76:77]")
    for nm, (issue, which) in SUBS.items():
        a.e(f"{nm}:"); issue(a, which); a.e("s_setpc_b64 s[76:77]")
def ld_steps(a, which, N, per, issue, npre, rate=2, plan={}, lo=0, hi=None, last=None, hold=(), sched=None, armed=False):
    NS = CFG[which]["NS"]
    prep, arm, fire = (w_parts if issue is w_issue else a_parts)(which); h = max(1, per * HSPLIT // 8)
    plan = {b: (x if isinstance(x, list) else [x]) for b, x in plan.items()}
    q = [s_ for s_ in range(npre) for _ in range(per)]
    def after(tag):
        if issue is w_issue and which == 4 and isinstance(tag, int) and tag < npre: tag = npre - 1
        return len(q) - 1 - max(i for i, x in enumerate(q) if x == tag)
    issued = npre; steps = []
    for b in range(NS):
        acts = plan.get(b, []); was = {}
        def do(pos):
            for n_, act in enumerate(acts):
                if act[0] != pos: continue
                if act[1] is not None: was[n_] = after(act[1])
                q.extend([act[4]] * act[3])
        do(True)
        k = 0
        if (b > 0 or (sched is not None and issue is a_issue)) and b not in hold:
            k = max(0, min(rate, min(NS, b - 1 + N) - issued)) if sched is None else sched[b]
        assert k or not any(x[0] == "mid" for x in acts)
        for j in range(k):
            q.extend([issued] * h)
            if j == 0: do("mid")
            q.extend([issued] * (per - h)); issued += 1
        do(False)
        w = after(b); assert w <= 63
        if which == 3 and b == 0: w = 63
        steps.append((k, w, b if acts else None, tuple(sorted(was.items())), issued < NS))
    def em(l):
        for x in l:
            a.e(x)
            if x == "s_barrier" and os.environ.get("JIT"): mstamp(a)
    F1, F2 = sum(fire[:h], []), sum(fire[h:], [])
    lprep = prep
    if len(prep) > 8:
        nm = f"PREP_{issue.__name__}_{which}"; SUBS[nm] = ((lambda a_, w_, l=prep: [a_.e(x) for x in l]), which)
        prep = [f"s_call_b64 s[76:77], {nm}"]
    if lo == 0 and npre < NS and not armed: em(prep + arm)
    i = lo; HI = NS if hi is None else hi
    while i < HI:
        j = i
        while j < HI and steps[j] == steps[i]: j += 1
        k, w, ab, was, more = steps[i]; n = j - i; was = dict(was)
        def run(pos):
            for n_, act in enumerate(plan.get(ab, [])):
                if act[0] != pos: continue
                if n_ in was: a.e(f"s_waitcnt vmcnt({was[n_]})")
                act[2]()
        tail = [f"s_waitcnt vmcnt({w})", "s_barrier"]
        if n > 2 and k == 1:
            em(F1); a.e("s_mov_b32 s43, 1"); L = a.lab("ld"); a.e(f"{L}:")
            em(lprep + F2 + arm + tail + F1)
            a.e("s_add_u32 s43, s43, 1"); a.e(f"s_cmp_lt_u32 s43, {n}"); a.e(f"s_cbranch_scc1 {L}")
            em(prep + F2 + arm + tail)
        else:
            for r in range(n):
                run(True)
                for jj in range(k):
                    nxt = more or jj < k - 1
                    em(F1)
                    if jj == 0: run("mid")
                    em((prep if nxt else []) + F2 + (arm if nxt else []))
                run(False)
                em(tail)
        i = j
    if hi is not None: return
    if which == 4:
        if issue is a_issue: a.e("s_cmp_eq_u32 s60, 1"); a.e("s_cbranch_scc1 K_fin")
        elif hold is HOLD: a.e("s_branch K_fin"); return
        if not RPL: r_pre(a)
    TF = os.environ.get("TF", "1") == "1" and issue is a_issue and which == 3
    if last and not TF: last()
    late = os.environ.get("TLATE", "0") == "1"
    if late: a.e("s_barrier")
    if issue is a_issue and W4POS == f"{which}C":
        X = a.lab("tw4"); a.e("s_cmp_lg_u32 s60, 0"); a.e(f"s_cbranch_scc1 {X}"); touch(a, B_W4, 7 * MB, 20); a.e(f"{X}:")
    if not late: a.e("s_barrier")
    if TF: last()

RK = int(os.environ.get("RK", "7")); assert RK == 0 or C0PUB <= RK <= STQ
PA2 = int(os.environ.get("PA2", "1")); PBB = int(os.environ.get("PBB", "2")); PC0 = int(os.environ.get("PC0", "4"))
HOLD = eval(os.environ.get("HOLD", "[2,3,4]"))
def a_loader(a, which):
    c = CFG[which]
    if which <= 2:
        plan = side_jobs(a, 1) if which == 1 else {}
        if which == 1 and "1" in DP: mstamp(a); a.e(f"s_sleep {os.environ.get('SJD', '30')}")
        else: mstamp(a); a.e("s_barrier")
        mstamp(a)
        for b in sorted(plan):
            for act in (plan[b] if isinstance(plan[b], list) else [plan[b]]):
                if act[1] is not None: a.e("s_waitcnt vmcnt(0)")
                act[2]()
        if which == 1:
            a.e("s_cmp_lg_u32 s30, 4"); a.e("s_cbranch_scc1 AL_nw"); a.e("s_cmp_eq_u32 s60, 0"); a.e("s_cbranch_scc1 AL_nw")
            a.e(f"s_add_u32 s54, s55, {(fso(ST_G3) - LSTR) & 0xffffffff:#x}"); a.e("s_add_u32 s53, s54, s92"); a.e("v_mov_b32 v9, s53")
            a.e("s_add_u32 s53, s53, 128"); a.e("v_writelane_b32 v9, s53, 1")
            a.e("s_add_u32 s53, s54, s93"); a.e("v_writelane_b32 v9, s53, 2"); a.e("s_add_u32 s53, s53, 128"); a.e("v_writelane_b32 v9, s53, 3")
            poll_core(a, 8, [9], 15, cnt=8)
            a.e("AL_nw:")
        if which == 2 and W33 > 1: call(a, third_late)
        if which == 2: a.e("s_waitcnt vmcnt(0)")
        a.e("s_barrier")
        if which == 1 and "p" not in os.environ.get("FO", "1pd"): late_park(a)
        call(a, after_g1 if which == 1 else after_g2)
        return
    a.e("s_and_b32 s35, s30, 1")
    if which == 2:
        hs_srd(a, 12)
        a.e("s_lshl_b32 s38, s28, 11"); a.e("s_add_u32 s38, s38, 16384"); a.e(f"s_mul_i32 s36, s35, {4*PITCH}"); a.e("s_add_u32 s38, s38, s36")
    else:
        lsrd(a, 12, c["A"], XSZ if which != 4 else H2SZ)
        a.e(f"s_mul_i32 s38, s35, {4*c['KBT']*2048}")
        if which == 4: a.e(f"s_mul_i32 s36, s31, {7*16384}"); a.e("s_add_u32 s38, s38, s36")
    a.e("s_lshl_b32 s41, s35, 13"); a.e("s_mov_b32 s42, 0"); rot_init(a, which)
    assert c["NA"] == 3 or which == 3
    prep, arm, fire = a_parts(which)
    if which == 4:
        flag_addr(a, 9, ST_G3A); flag_addr(a, 10, ST_G3B); flag_addr(a, 12, ST_G3)
        a.e("v_mov_b32 v13, 1"); a.e("s_and_b32 s51, s30, 1"); a.e("s_lshl_b32 s51, s51, 30")
        def signal(r): a.e("s_mov_b64 exec, 1"); a.e(f"buffer_atomic_add v13, v{r}, s[56:59], s51 offen {SC}"); a.e("s_mov_b64 exec, -1")
        a.e("s_lshl_b32 s54, s60, 2"); a.e("s_add_u32 s54, s54, 4"); lds_spin(a, LW + 64, "s54", 14, nap=2)
        signal(9)
        if not PA2: poll_core(a, 8, [9], 1, cnt=8)
        mstamp(a)
        plan = {6 - L4: ("mid", None, lambda: flag_try(a, 11, 10), 1, "f"), 8 - L4: ("mid", "f", lambda: flag_check(a, 11, 10, 8), 0, None),
                13 - L4: ("mid", None, lambda: flag_try(a, 11, 12), 1, "g"), 15 - L4: ("mid", "g", lambda: flag_check(a, 11, 12, 8), 0, None)}
        plan = {k_: [x] for k_, x in plan.items()}
        if PA2:
            plan[1] = [(False, None, lambda: flag_try(a, 8, 9), 1, "a")]
            plan[2] = [(True, "a", lambda: flag_check(a, 8, 9, 8), 0, None)]
        if DP:
            a.e("v_xor_b32 v15, 128, v12")
            plan[20] = [("mid", None, lambda: flag_try(a, 11, 15), 1, "h")]; plan[22] = [("mid", "h", lambda: flag_check(a, 11, 15, 8), 0, None)]
        if int(os.environ.get("OT", "0")) >= 3:
            def ot():
                a.e(f"s_load_dwordx2 s[20:21], s[0:1], {D_OUT}"); a.e(f"s_mul_i32 s22, s60, {4*MB}"); a.e("s_mov_b32 s23, 0x20000"); a.e("s_lshl_b32 s36, s28, 18"); a.e("s_lshl_b32 s37, s29, 11")
                a.e("s_add_u32 s36, s36, s37"); a.e("s_waitcnt lgkmcnt(0)")
                a.e("s_mov_b64 exec, 1"); a.e(f"buffer_load_dword v16, v2, s[20:23], s36 offen {SC}"); a.e("s_mov_b64 exec, -1")
            plan.setdefault(int(os.environ["OT"]) % 100, []).append((False, None, ot, 1, "o"))
        plan.setdefault(PBB + 1, []).insert(0, (True, None, lambda: signal(10), 1, "s"))
        plan.setdefault(PC0 + 2, []).insert(0, (True, None, lambda: signal(12), 1, "s"))
        a.e("s_mov_b32 s44, 3")
        ld_steps(a, which, 3, 8, a_issue, 3, plan=plan); return
    if which == 3:
        mask, cnt = flag_addr(a, 9, ST_G2)
        def wait2():
            if W33: call(a, third_put)
            elif B0E > 1: a.e(f"s_sleep {B0E}")
            poll_core(a, 8, [9], mask, cnt=cnt); mstamp(a); mstamp(a)
            if W3H: a.e("s_add_u32 s54, s60, 1"); lds_set(a, LW + 60, "s54", 10)
        N3 = 2 if "3" in DP else 1
        a.e(f"s_mov_b32 s44, {N3}"); a.e(f"s_mov_b32 s42, {16384*N3}")
        plan = side_jobs(a, 3)
        if os.environ.get("P30", "0") == "1":
            def wait0(): own_wait(a, ST_G2, False, 14); wait2()
            plan[0] = (True, None, wait0, 0, None)
            ld_steps(a, which, 3, 8, a_issue, 1, plan=plan, sched=[int(os.environ.get("P3N", "1")), 2 - int(os.environ.get("P3N", "1"))] + [1] * 13 + [0]); return
        plan[1] = (True, None, wait2, 0, None)
        PZ3 = int(os.environ.get("PZ3", "0"))
        if PZ3:
            a.srd(84, 4, 32 * MB, off=216 * MB)
            a.e("s_cmp_eq_u32 s60, 0"); a.e("s_cselect_b32 s86, s86, 0")
            for i in range(4): a.e(f"v_mov_b32 v{216+i}, -1")
            a.e("s_lshl_b32 s88, s2, 1"); a.e("s_and_b32 s50, s30, 1"); a.e("s_add_u32 s88, s88, s50"); a.e(f"s_mul_i32 s88, s88, {PZ3*12*1024}")
            def pz():
                for i in range(PZ3): a.e(f"buffer_store_dwordx4 v[216:219], v2, s[84:87], s88 offen offset:{i*1024} {SC}")
                a.e(f"s_add_u32 s88, s88, {PZ3*1024}")
            for b in range(2, 14):
                p_ = plan.get(b, []); p_ = p_ if isinstance(p_, list) else [p_]
                plan[b] = p_ + [(False, None, pz, PZ3, "z")]
        if os.environ.get("A3L", "0") == "1":
            def w1_():
                X = a.lab("w1"); a.e("s_cmp_lg_u32 s60, 0"); a.e(f"s_cbranch_scc1 {X}"); poll_core(a, 8, [9], mask, cnt=cnt); lds_set(a, LW + 60, 1, 10); a.e(f"{X}:")
            def w2_(): poll_core(a, 8, [9], mask, cnt=cnt, nap=2); mstamp(a); mstamp(a)
            plan[1] = (True, None, w1_, 0, None)
            p2 = plan[2] if isinstance(plan[2], list) else [plan[2]]
            plan[2] = [(True, None, w2_, 0, None)] + p2
            ld_steps(a, which, 3, 8, a_issue, N3, plan=plan, hold=(1,)); return
        ld_steps(a, which, c["NA"], 8, a_issue, N3, plan=plan, sched=eval(os.environ.get("A3S", "None")), last=lambda: r_pre1(a)); return
    assert 0

def side_jobs(a, which):
    c = CFG[which]; plan = {}
    sv = 16; S, Q, mean, rs, tt, ad, fa, fr = 216, 217, 218, 219, 220, 221, 222, 223
    cv = 180 if which == 3 else 24; N = c["LDW"] // 2; co_ = 224; HB = c["TN16"] * 32
    lg = 3 if which == 1 else 5
    def cld(k0=0, k1=4):
        if k0 == 0:
            a.srd(24, 4, 32 * N * 4, off=CSP[which])
            a.e("s_cmp_eq_u32 s60, 0"); a.e("s_cselect_b32 s26, s26, 0")
            if NOCS3 and which == 3: a.e("s_mov_b32 s26, 0")
            a.e("s_and_b32 s36, s30, 1"); a.e(f"s_mul_i32 s36, s36, {HB}"); a.e(f"s_mul_i32 s37, s29, {2*HB}"); a.e("s_add_u32 s37, s36, s37")
            a.e(f"v_lshrrev_b32 v{co_}, {lg}, v1"); a.e(f"v_mul_u32_u24 v{co_}, {N*4}, v{co_}")
            a.e(f"v_and_b32 v{cv-1}, {16*((1 << lg) - 1)}, v2"); a.e(f"v_add_u32 v{co_}, v{co_}, v{cv-1}")
        a.e("s_cmp_eq_u32 s60, 0"); a.e("s_cselect_b64 exec, -1, 0")
        for k in range(k0, k1):
            a.e(f"buffer_load_dwordx4 {vr(cv+4*(k if k < 9 else k - 8),4)}, v{co_}, s[24:27], s37 offen {SC}"); a.e(f"s_add_u32 s37, s37, {N*4*(64 >> lg)}")
        a.e("s_mov_b64 exec, -1")
    def piece(lines, l0=False):
        def f():
            X = a.lab("pc")
            if l0: a.e("s_cmp_lg_u32 s60, 0"); a.e(f"s_cbranch_scc1 {X}")
            for x in lines: a.e(x)
            if l0: a.e(f"{X}:")
        return f
    def cadd(k0, k1): return [f"v_add_f32 v{cv+h}, v{cv+h}, v{cv+4*k+h}" for k in range(k0, k1) for h in range(4)]
    def sw(op): return [f"v_mov_b32 v{cv+4+e}, v{cv+e}" for e in range(4)] + [f"{op} v{cv+e}, v{cv+4+e}" for e in range(4)] + cadd(1, 2)
    if which in (1, 3):
        cout = ["s_and_b32 s36, s30, 1", f"s_mul_i32 s36, s36, {HB}", f"s_add_u32 s36, s36, {CSO[which]}", f"v_add_u32 v{cv-1}, s36, v2",
                f"s_bfm_b64 exec, {HB//16}, 0", f"ds_write_b128 v{cv-1}, {vr(cv,4)}", "s_mov_b64 exec, -1", "s_waitcnt lgkmcnt(0)"]
    if which == 1:
        flag_addr(a, fa, ST_R2)
        def ld():
            flag_check(a, fr, fa, 16)
            lsrd(a, 20, oLNS, 2048); a.e("s_and_b32 s35, s30, 1"); a.e("s_lshl_b32 s35, s35, 10")
            a.e(f"buffer_load_dwordx4 {vr(sv,4)}, v2, s[20:23], s35 offen {SC}")
        fin = piece(["s_and_b32 s36, s30, 1", "s_lshl_b32 s36, s36, 10", f"s_add_u32 s36, s36, {LNSL}", f"v_add_u32 v{ad}, s36, v2", f"ds_write_b128 v{ad}, {vr(sv,4)}", "s_waitcnt lgkmcnt(0)"])
        a.e("s_lshl_b32 s53, s29, 7"); a.e(f"s_add_u32 s53, s53, {F_CS}"); a.e(f"v_mov_b32 v{fa+4}, s53")
        def cld1(): flag_check(a, fr + 4, fa + 4, 16); cld()
        work = cadd(1, 4) + [f"v_add_f32_dpp v{cv+e}, v{cv+e}, v{cv+e} row_ror:8 row_mask:0xf bank_mask:0xf" for e in range(4)] + \
               sw("v_permlane16_swap_b32") + sw("v_permlane32_swap_b32")
        plan = {2: (False, None, lambda: flag_try(a, fr + 4, fa + 4), 1, "e"), 5: [(False, "e", cld1, 4, "c"), (False, None, lambda: flag_try(a, fr, fa), 1, "f")],
                8: (False, "f", ld, 1, "d"), 15: [(False, None, piece(cout, 1), 0, None), (False, "d", fin, 0, None)]}
        plan[9] = (False, None, piece(work, 1), 0, None)
    if which == 3:
        flag_addr(a, fa, ST_G2S)
        a.e(f"v_lshlrev_b32 v{ad}, 3, v1")
        def ld(k0, n_=8):
            def f():
                if k0 == 0:
                    flag_check(a, fr, fa, 16)
                    lsrd(a, 20, oST2, 24576)
                    a.e("s_and_b32 s35, s30, 1"); a.e("s_lshl_b32 s35, s35, 9")
                for k in range(k0, k0 + n_):
                    if k % 4 == 0 or k == k0: a.e(f"s_add_u32 s36, s35, {(k >> 3) * 16384 + (k & 4) * 1024}")
                    a.e(f"buffer_load_dwordx2 {vr(sv+2*k,2)}, v{ad}, s[20:23], s36 offen offset:{(k&3)*1024} {SC}")
            return f
        b = Rec()
        for st_ in (8, 4, 2, 1):
            for k in range(2 * st_): b.e(f"v_add_f32 v{sv+k}, v{sv+k}, v{sv+2*st_+k}")
        o_ = sv + 4
        b.e(f"v_mul_f32 v{o_}, {f32(1/1024)}, v{sv}"); b.e(f"v_mul_f32 v{Q}, {f32(1/1024)}, v{sv+1}")
        b.e(f"v_fma_f32 v{Q}, -v{o_}, v{o_}, v{Q}"); b.e(f"v_max_f32 v{Q}, 0, v{Q}")
        ln_finish(b, o_, Q, rs, o_ + 1)
        b.e(f"v_mul_f32 v{o_+2}, {f32(GC1)}, v{rs}"); b.e(f"v_mul_f32 v{o_+3}, v{rs}, v{rs}")
        b.e(f"v_mul_f32 v{o_+3}, v{o_+3}, v{o_+2}"); b.e(f"v_mul_f32 v{o_+3}, {f32(0.044715)}, v{o_+3}")
        b.e("s_lshl_b32 s35, s35, 1"); b.e(f"s_add_u32 s35, s35, {LNSL}"); b.e(f"v_add_u32 v{tt}, s35, v2")
        b.e(f"ds_write_b128 v{tt}, {vr(o_,4)}"); b.e("s_waitcnt lgkmcnt(0)")
        def both(f, g):
            def h(): f(); g()
            return h
        if os.environ.get("SJ3", "1") == "1":
            plan = {2: (False, None, lambda: cld(0, 3), 3, "c"), 3: (False, None, lambda: cld(3, 6), 3, "c"), 4: [(False, None, lambda: cld(6, 9), 3, "c"), (False, None, lambda: flag_try(a, fr, fa), 1, "f")],
                    6: [(False, "f", ld(0, 4), 4, "d"), (False, None, piece(cadd(1, 5), 1), 0, None)],
                    7: [(False, None, ld(4, 4), 4, "d"), (False, None, both(piece(cadd(5, 9), 1), lambda: cld(9, 12)), 3, "e")],
                    8: [(False, None, ld(8, 4), 4, "d"), (False, None, lambda: cld(12, 14), 2, "e")], 9: [(False, None, ld(12, 4), 4, "d"), (False, None, lambda: cld(14, 16), 2, "e")],
                    11: [(False, "e", piece(b.l[:16]), 0, None)], 12: [(False, None, piece(b.l[16:32]), 0, None), (False, None, piece(cadd(1, 4), 1), 0, None)],
                    13: [(False, None, piece(b.l[32:]), 0, None)], 14: (False, None, piece(cadd(4, 8), 1), 0, None), 15: (False, None, piece(sw("v_permlane32_swap_b32") + cout, 1), 0, None)}
        else:
            plan = {2: (False, None, cld, 4, "c"), 3: (False, None, lambda: cld(4, 9), 5, "c"),
                    5: [(False, "c", piece(cadd(1, 5), 1), 0, None), (False, None, lambda: flag_try(a, fr, fa), 1, "f")],
                    6: (False, None, both(piece(cadd(5, 9), 1), lambda: cld(9, 16)), 7, "e"),
                    7: (False, "f", ld(0), 8, "d"), 8: (False, None, ld(8), 8, "d"),
                    9: (False, "e", piece(cadd(1, 5), 1), 0, None), 10: (False, None, piece(cadd(5, 8), 1), 0, None), 11: (False, None, piece(sw("v_permlane32_swap_b32") + cout, 1), 0, None),
                    12: (False, "d", piece(b.l[:16]), 0, None), 13: (False, None, piece(b.l[16:32]), 0, None), 14: (False, None, piece(b.l[32:]), 0, None)}
    return plan

W2E = int(os.environ.get("W2E", "3"))
def w2_early(a):
    if W2E: w_setup(a, 2, pre=False); w1_slots(a, range(W2E), pace=8)
def w_loader(a, which):
    c = CFG[which]
    if which < 3:
        if which == 1: a.e("s_waitcnt vmcnt(0)")
        if which == 1 and "a" in STO: stouch(a, 3, 128 if "8" in STO else 64, 2); mstamp(a)
        if which == 1 and sum(SG): sb_init(a)
        sg(a, SG[2*which-2])
        if not (which == 1 and "1" in DP): a.e("s_barrier")
        sg(a, SG[2*which-1])
        if which == 1 and "b" in STO: stouch(a, 3, 128 if "8" in STO else 64, 2); mstamp(a)
        if which == 2 and W33 > 1: call(a, third_late)
        if which == 2: a.e("s_waitcnt vmcnt(0)")
        a.e("s_barrier")
        if which == 1 and "p" not in os.environ.get("FO2", "1pd"): late_park(a)
        call(a, after_g1 if which == 1 else after_g2); mstamp(a)
        return
    args = (a, which, c["NW"], c["STB"] // 2048, w_issue, c["NPRE"], c["WR"])
    if which == 4:
        assert c["NW"] == 6 and c["WB"] == CFG[1]["WB"] + 3 * 8192
        a.e("s_cmp_eq_u32 s60, 1"); a.e("s_cbranch_scc1 WL_t1")
        ld_steps(*args, hi=24)
        WT = eval(os.environ.get("WT", "[(11,12,15,9),(13,14,10),(3,4),(5,6,0),(7,8,1,2),()]"))
        def some(js):
            def f():
                if js is WT[0]: w_setup(a, 1, pre=False)
                for j in js:
                    if j in (9, 10) and js is not WT[5]:
                        a.e(f"s_add_u32 s39, s38, {j*64*2048}")
                        for i in range(4): a.e(f"buffer_load_dwordx4 {vr(16+16*(j-9)+4*i,4)}, v{WVB[1]}, s[12:15], s39 offen"); a.e("s_add_u32 s39, s39, 16384")
                    else: w1_slots(a, (j,), pace=8 if js is WT[5] else 0)
            return f
        plan = {24 + i: (False, None, some(WT[i]), 4 * len(WT[i]), "w") for i in range(4) if WT[i]}
        ld_steps(*args, plan=plan, lo=24, last=some(WT[4]))
        rg = [j for j in (9, 10) if j not in WT[5]]
        if rg:
            a.e(f"s_add_u32 s36, s41, {9*8192}"); a.e("v_add_u32 v6, s36, v2"); a.e("s_waitcnt vmcnt(0)")
            for j in rg:
                for i in range(4): a.e(f"ds_write_b128 v6, {vr(16+16*(j-9)+4*i,4)} offset:{(j-9)*8192+i*1024}")
            a.e("s_waitcnt lgkmcnt(0)")
        some(WT[5])(); mstamp(a)
        a.e("s_branch NEXT")
        a.e("WL_t1:")
        ld_steps(*args, hold=HOLD)
        return
    plan = {}
    if "3" in DP:
        lsrd(a, 20, oX1P, XSZ)
        a.e(f"v_readlane_b32 s36, v{TV+3}, 1"); a.e("s_and_b32 s35, s30, 1"); a.e("s_lshl_b32 s46, s35, 18"); a.e("s_lshl_b32 s47, s35, 13"); a.e("s_add_u32 s47, s47, 16384")
        a.e("s_bfe_u32 s37, s36, 0x20002"); a.e("s_lshl_b32 s37, s37, 14"); a.e("s_and_b32 s36, s36, 3"); a.e("s_lshl_b32 s36, s36, 11"); a.e("s_add_u32 s46, s46, s36"); a.e("s_add_u32 s46, s46, s37")
        a.e("v_add_u32 v8, s47, v2")
        if W3E: w_issue(a, 3); args = args[:5] + (3,) + args[6:]
        def second():
            L = a.lab("sp"); D = a.lab("sq")
            a.e("s_mov_b32 s34, m0"); a.e("s_cmp_lg_u32 s60, 0"); a.e(f"s_cbranch_scc1 {L}a")
            lds_spin(a, LW + 60, 1, 6, nap=1)
            a.e(f"{L}a:"); a.e("s_mov_b32 s53, 0")
            if int(os.environ.get("S3D", "0")): a.e("s_sleep " + os.environ["S3D"])
            a.e(f"{L}:"); a.e("s_mov_b32 m0, s47"); a.e("s_mov_b32 s36, s46")
            for i in range(4):
                if i: a.e("s_add_u32 m0, m0, 2048"); a.e("s_add_u32 s36, s36, 65536")
                for k in range(2): a.e(f"buffer_load_dwordx4 v2, s[20:23], s36 offen offset:{1024*k} {SC} lds")
            a.e("s_waitcnt vmcnt(0)")
            for i in range(8): a.e(f"ds_read_b32 v{10+i}, v8 offset:{1024*i}")
            a.e("s_waitcnt lgkmcnt(0)")
            a.e("v_or3_b32 v10, v10, v11, v12"); a.e("v_or3_b32 v13, v13, v14, v15"); a.e("v_or3_b32 v10, v10, v16, v17"); a.e("v_bitop3_b32 v10, v10, v13, s60 bitop3:0xa8")
            a.e("v_cmp_ne_u32 vcc, 0, v10"); a.e(f"s_cbranch_vccz {D}"); a.e("s_sleep 1")
            a.e("s_add_u32 s53, s53, 1"); a.e("s_cmp_lt_u32 s53, s61"); a.e(f"s_cbranch_scc1 {L}"); a.e("s_mov_b32 s61, 0")
            a.e(f"{D}:"); a.e("s_mov_b32 m0, s34")
        plan[1] = (True, None, second, 8, "x")
    elif W33:
        plan[1] = (True, None, lambda: call(a, third_put), 0, None); args = args[:5] + (3,) + args[6:]
    elif W3H: plan[1] = (True, None, lambda: (a.e("s_add_u32 s54, s60, 1"), lds_spin(a, LW + 60, "s54", 6, nap=1)), 0, None)
    def sg3(n):
        def f():
            X = a.lab("st"); a.e("s_cmp_lg_u32 s60, 0"); a.e(f"s_cbranch_scc1 {X}"); sb(a, n); a.e(f"{X}:")
        return f
    for b_, n_ in eval(os.environ.get("SG3", "{}")).items(): plan[b_] = (False, None, sg3(n_), 0, None)
    RPW = int(os.environ.get("RPW", "15"))
    if RPW < 16: plan[RPW] = (False, None, lambda: call(a, r_pre0), 4, "r")
    ld_steps(*args, plan=plan, last=(lambda: r_pre1(a)) if RPW == 16 else None)
W3H = int(os.environ.get("W3H", "0")) or "3" in DP; W3E = int(os.environ.get("W3E", "1"))
W1L = int(os.environ.get("W1L", "3"))

B0E = int(os.environ.get("B0E", "6")); RPL = int(os.environ.get("RPL", "1")); RPC = int(os.environ.get("RPC", "1"))
LF1 = os.environ.get("LF1", "sc1"); LF2 = os.environ.get("LF2", "")
RES2 = 148; C2R = 200; SO3 = 238; RES4 = [172, 176, 180, 184, 188, 192, 196, 240]
def g_compute(a, which):
    c = CFG[which]
    WM, WN, MT, NT, KBT, NS, NA, NW, TN16, STB, WB = [c[k] for k in "WM WN MT NT KBT NS NA NW TN16 STB WB".split()]
    v = VA(6); nm = f"G{which}"
    lane = 1; l16 = 2
    t = v(); t2 = v(); pt = v(4, 2)
    NTILE = (0, 99, 29, 29, 33)[which]
    a_ = a
    if which != 3: a = Rec()
    if WN == 2: a.e("s_lshr_b32 s34, s30, 1"); a.e("s_and_b32 s35, s30, 1")
    else: a.e("s_mov_b32 s34, s30"); a.e("s_mov_b32 s35, 0")
    a0 = v(); w0 = v(4, 1); aa = v(); wa = v(4, 1); J = v(); G = v()
    a.e(f"v_and_b32 v{J}, 15, v{lane}"); a.e(f"v_lshrrev_b32 v{G}, 4, v{lane}")
    a.e(f"s_mul_i32 s37, s34, {MT}")
    a.e(f"s_mul_i32 s38, s{NTILE}, {TN16}"); a.e(f"s_mul_i32 s36, s35, {NT}"); a.e("s_add_u32 s38, s38, s36")
    acc = v(MT * NT * 4, 4); NF = MT + NT if which > 2 else 8
    fX = v(NF * 4, 4); fY = v(NF * 4, 4); tmp = v(); tp = v(4, 2)
    def A_(mt, nt): return acc + 4 * (mt * NT + nt)
    def SUBM(r): return f"{vr(r,2)} op_sel_hi:[1,0] neg_lo:[0,1] neg_hi:[0,1]"
    def MULR(r): return f"{vr(r,2)} op_sel:[0,1] op_sel_hi:[1,1]"
    if which in (2, 4):
        res = RES2
        a.e("s_lshr_b32 s36, s38, 1"); spread(a, 39, 36); a.e("s_lshl_b32 s36, s37, 16"); a.e("s_add_u32 s39, s39, s36")
    if which <= 2:
        AB = 164; LO = v(8, 1)
        def aload(b, kk):
            if which == 1: return [f"buffer_load_dwordx4 {vr(AB+16*b+8*kk+4*mt,4)}, v{LO+mt+(b&2)}, s[8:11], s44 offen offset:{(b&1)*2048+kk*1024} {LF1}" for mt in range(2)]
            return [f"buffer_load_dwordx4 {vr(AB+16*b+8*kk+4*mt,4)}, v{LO+mt}, s[8:11], s44 offen {LF2}" for mt in range(2)]
        def seq(pairs, s0):
            if which == 1: return [x for b, kk in pairs for x in aload(b, kk)]
            return ([f"s_mov_b32 s44, {s0}"] if s0 is not None else []) + [x for b, kk in pairs for x in aload(b, kk) + ["s_add_u32 s44, s44, 16384"]]
        def past(l): return [x + (SC if x.startswith("buffer") and SC not in x else "") for x in l]
        PR = [(i >> 1, i & 1) for i in range(7)]
        h = Rec()
        if which == 1:
            lsrd(h, 8, oX3, XSZ); OOB = MB
            for i in range(4): (h if i < 2 else a).e(f"v_add_u32 v{LO+i}, {(i & 1) * 65536 + (i >> 1) * 4096}, v{l16}")
            h.e("s_lshl_b32 s44, s30, 17")
            for i in range(1, 4): a.e(f"s_add_u32 s{44+i}, s44, {16384*i}")
        else:
            OOB = 0x40000000; LP = v(2, 1)
            h.srd(8, 4, 8 * GSTR + LSTR, off=LB0 + oHS)
            h.e(f"s_sub_u32 s47, s55, {LB0 + oSM}"); h.e("s_lshl_b32 s46, s30, 9"); h.e("s_add_u32 s47, s47, s46")
            h.e("s_add_u32 s45, s92, 2048"); h.e("s_cmp_eq_u32 s28, 0"); h.e(f"s_cselect_b32 s45, {OOB}, s45"); h.e("s_cmp_eq_u32 s30, 0"); h.e("s_cselect_b32 s45, s45, 0")
            a.e("s_sub_u32 s46, s93, 2048"); a.e("s_cmp_eq_u32 s28, 15"); a.e(f"s_cselect_b32 s46, {OOB}, s46"); a.e("s_cmp_eq_u32 s30, 3"); a.e("s_cselect_b32 s46, s46, 0")
            for q_, sh in enumerate((1, -1, 2, -2)):
                e_ = h if q_ == 0 else a
                e_.e(f"s_add_u32 s53, s47, {(-16 * sh) & 0xffffffff:#x}"); e_.e(f"v_add_u32 v{LO+2*q_}, s53, v{a0}"); e_.e(f"v_add_u32 v{LO+2*q_+1}, 256, v{LO+2*q_}")
                R_ = LO + 2 * q_ + (0 if sh > 0 else 1)
                e_.e(f"v_add_u32 v{LP}, s{45 if sh > 0 else 46}, v{R_}")
                e_.e(f"v_cmp_gt_u32 vcc, {sh}, v{J}" if sh > 0 else f"v_cmp_le_u32 vcc, {16 + sh}, v{J}"); e_.e(f"v_cndmask_b32 v{R_}, v{R_}, v{LP}, vcc")
            for k in range(2): a.e(f"v_mov_b32 v{LP+k}, v{LO+k}")
        EARLY = str(which) in DP and str(which) in os.environ.get("EP", "2")
        try0 = past(seq(PR[:2], 0))
        for x in h.l: a_.e(x)
        if EARLY and which == 1:
            for x in try0: a_.e(x)
    else:
        a.e(f"s_mul_i32 s36, s34, {MT*2048}"); a.e(f"v_add_u32 v{a0}, s36, v{l16}")
    nwr, wpos = w_bases(a, which, w0, 35, NT, t, t2)
    if which <= 2:
        for x in a.l: a_.e(x)
    a = a_
    if which == 3 and not B0E: publish(a, ST_G2S, 4, pt, ctr=48)
    if which == 2:
        a.e(f"s_lshl_b32 s36, s37, 8"); a.e(f"s_add_u32 s36, s36, {LNSL}"); a.e(f"v_lshlrev_b32 v{t2}, 4, v{J}"); a.e(f"v_add_u32 v{t2}, s36, v{t2}")
        for mt in range(MT): a.e(f"ds_read_b64 {vr(fX+2*mt,2)}, v{t2} offset:{mt*256}")
        a.e("s_waitcnt vmcnt(4) lgkmcnt(0)")
        if EARLY:
            if int(os.environ.get("G2D", "3")): a.e("s_sleep " + os.environ.get("G2D", "3"))
            if int(os.environ.get("G2D0", "2")): a.e("s_cmp_lg_u32 s60, 0"); a.e("s_cbranch_scc1 G2_nd"); a.e("s_sleep " + os.environ.get("G2D0", "2")); a.e("G2_nd:")
            for x in try0: a.e(x)
        for mt in range(MT):
            for p in range(NT // 2):
                for e in range(4):
                    X = A_(mt, 2 * p) + 2 * e
                    unpack(a, X, X + 1, res + (mt * (NT // 2) + p) * 4 + e)
                    a.e(f"v_pk_add_f32 {vr(X,2)}, {vr(X,2)}, {SUBM(fX+2*mt)}"); round2(a, X, X + 1, tmp)
                    a.e(f"v_pk_mul_f32 {vr(X,2)}, {vr(X,2)}, {MULR(fX+2*mt)}"); round2(a, X, X + 1, tmp)
    elif which == 1:
        for i in range(0, MT * NT * 4, 2): a.e(f"v_pk_mov_b32 {vr(acc+i,2)}, 0, 0")
    RX = [180, 184, 188, 192, 196, 230, 234, 248]
    def last_res():
        b0 = Rec()
        for i in range(2):
            b0.e(f"s_add_u32 s36, s40, {i*65536}")
            for p in range(2):
                b0.e(f"buffer_load_dwordx4 {vr(RX[2*(2*i+p)],4)}, v{l16}, s[84:87], s36 offen offset:{p*1024} {SC}")
                b0.e(f"buffer_load_dwordx4 {vr(RX[2*(2*i+p)+1],4)}, v{l16}, s[88:91], s36 offen offset:{p*1024} {SC}")
        return b0.l
    def reads(F, kk):
        o = []
        for mt in range(MT): o.append(f"ds_read_b128 {vr(F+4*mt,4)}, v{aa} offset:{mt*256+kk*8192 if which == 2 else mt*2048+kk*1024}")
        for nt in range(NT):
            for h in range(2):
                r, imm = wpos(nt, kk, h)
                o.append(f"ds_read_b64_tr_b16 {vr(F+4*(MT+nt)+2*h,2)}, v{wa+r} offset:{imm}")
        NR = os.environ.get("NOREAD")
        if NR == "N": o = []
        if NR == "A": o = o[MT:]
        if NR == "W": o = o[:MT]
        if NR == "H": o = o[::2]
        if NR == "X": o = o + o[:2]
        if NR == "XX": o = o + o[:MT]
        return o
    def mix(rd, ex):
        rd = list(rd)
        for i, x in enumerate(ex): rd.insert(min(len(rd), (i + 1) * len(rd) // (len(ex) + 1)), x)
        return rd
    def mfmas(F, rd, tail=()):
        n = MT * NT; k = 0; tot = len(rd); span = max(1, n * 3 // 4); done = 0; tail = list(tail); per = -(-len(tail) // max(1, n - span))
        OR = os.environ.get("ORDER", "2")
        order = {"0": [(nt, mt) for nt in range(NT) for mt in range(MT)],
                 "1": [(nt, mt) for mt in range(MT) for nt in range(NT)],
                 "2": [(nt, mt if nt % 2 == 0 else MT - 1 - mt) for nt in range(NT) for mt in range(MT)],
                 "3": [(nt if mt % 2 == 0 else NT - 1 - nt, mt) for mt in range(MT) for nt in range(NT)]}[OR]
        for nt, mt in order:
            if True:
                cc = acc + 4 * (mt * NT + nt)
                if str(which) not in os.environ.get("NOMF", ""): a.e(f"v_mfma_f32_16x16x32_bf16 {vr(cc,4)}, {vr(F+4*(MT+nt),4)}, {vr(F+4*mt,4)}, {vr(cc,4)}")
                k += 1
                while rd and done < (tot * k + span - 1) // span: a.e(rd.pop(0)); done += 1
                if k >= span and k < n:
                    for _ in range(min(per, len(tail))): a.e(tail.pop(0))
        assert not rd and not tail
    so = SO3 if which == 3 else a0; cs = fX; lns = fX + 4 * NT; G4W = 240; EA = 244
    def ep_setup(b):
        if which in (1, 3):
            assert which == 1 or (fY <= C2R and C2R + 24 <= fY + 4 * NF)
            b.e(f"s_mul_i32 s36, s35, {NT*64}"); b.e(f"s_add_u32 s36, s36, {CSO[which]}"); b.e(f"v_lshlrev_b32 v{t}, 4, v{G}"); b.e(f"v_add_u32 v{t}, s36, v{t}")
            b.e(f"s_lshl_b32 s36, s37, 8"); b.e(f"s_add_u32 s36, s36, {LNSL + (8 if which == 1 else 0)}"); b.e(f"v_lshlrev_b32 v{t2}, 4, v{J}"); b.e(f"v_add_u32 v{t2}, s36, v{t2}")
        if which == 3:
            lsrd(b, 16, oH2, H2SZ)
            b.e(f"s_mul_i32 s39, s37, {224*1024}")
            for P in range(4):
                b.e("s_lshr_b32 s36, s38, 1"); b.e(f"s_add_u32 s36, s36, {P}"); spread(b, 44 + P, 36); b.e(f"s_add_u32 s{44+P}, s{44+P}, s39")
            w_bases(b, 4, G4W, 35, 4, tp, tp + 1)
            b.e("s_lshl_b32 s38, s33, 3"); b.e("s_lshl_b32 s36, s35, 2"); b.e("s_add_u32 s38, s38, s36")
            b.e("s_lshr_b32 s36, s38, 1"); spread(b, 39, 36); b.e("s_lshl_b32 s36, s37, 16"); b.e("s_add_u32 s39, s39, s36")
            b.e("s_lshl_b32 s40, s31, 17"); b.e("s_add_u32 s40, s40, s39")
            b.e("s_xor_b32 s41, s31, 1"); b.e("s_lshl_b32 s41, s41, 17"); b.e("s_add_u32 s41, s41, s39")
            lsrd(b, 84, oX3, XSZ); lsrd(b, 88, oX1P, XSZ)
            b.e("s_lshl_b32 s36, s37, 1"); b.e("s_add_u32 s36, s36, s35"); b.e("s_lshl_b32 s36, s36, 10"); b.e(f"v_add_u32 v{EA}, s36, v{l16}")
            b.e(f"v_mov_b32 v{EA+1}, 1"); b.e(f"v_mov_b32 v{EA+2}, {LW+64}")
            b.e(f"v_lshrrev_b32 v{so}, 1, v{G}"); b.e(f"v_lshlrev_b32 v{so}, 8, v{so}"); b.e(f"v_lshl_add_u32 v{so}, v{J}, 4, v{so}")
            b.e(f"v_and_b32 v{tmp}, 1, v{G}"); b.e(f"v_lshl_add_u32 v{so}, v{tmp}, 3, v{so}")
        if which == 1:
            lsrd(b, 16, oHS, XSZ)
            b.e(f"v_lshlrev_b32 v{so}, 11, v{G}"); b.e(f"v_lshl_add_u32 v{so}, v{J}, 4, v{so}")
            b.e("s_lshl_b32 s39, s38, 13"); b.e("s_lshl_b32 s36, s37, 8"); b.e("s_add_u32 s39, s39, s36"); b.e("s_add_u32 s40, s39, 16384")
            b.e("s_lshl_b32 s36, s29, 1"); spread(b, 41, 36); b.e("s_lshl_b32 s36, s37, 16"); b.e("s_add_u32 s41, s41, s36")
        if which == 2: lsrd(b, 16, oX1P, XSZ)
    def cost(x): return sum(8 if y.startswith("ds_") else 4 for y in x.split("\n"))
    def group(F, rd, r0, ex, fixed={}, zero=False):
        n = MT * NT; ex = [x if isinstance(x, tuple) else (x, -1) for x in ex]; done = 0
        order = [(nt, mt if nt % 2 == 0 else MT - 1 - mt) for nt in range(NT) for mt in range(MT)]
        need = sum(cost(x) for x, _ in ex) + 8 * len(rd) + sum(cost(x) for l in fixed.values() for x in l)
        cap = max(12, -(-need // (4 * n)) * 4)
        for k, (nt, mt) in enumerate(order):
            cc = A_(mt, nt)
            if str(which) not in os.environ.get("NOMF", ""): a.e(f"v_mfma_f32_16x16x32_bf16 {vr(cc,4)}, {vr(F+4*(MT+nt),4)}, {vr(F+4*mt,4)}, {0 if zero else vr(cc,4)}")
            b_ = cap - sum(cost(x) for x in fixed.get(k, [])); nv = 0
            if k >= r0 and done < len(rd): a.e(rd[done]); done += 1; b_ -= 8
            while ex and ex[0][1] < done and (cost(ex[0][0]) <= b_ or k == n - 1) and not (nv >= (1 if rd else 2) and ex[0][0].startswith("v_") and cap == 12 and k < n - 1):
                x = ex.pop(0)[0]; a.e(x); b_ -= cost(x); nv += x.startswith("v_")
            for x in fixed.get(k, []): a.e(x)
        assert done == len(rd) and not ex
    NR_ = MT + 2 * NT; BP = eval(os.environ.get("BP", "{3:3,4:2}")).get(which, 0)
    def stage(ex=(), ey=(), lim=NS-1, late=False, zero=False, pre=()):
        if str(which) in os.environ.get("GST", "") or os.environ.get("JIT"): mstamp(a, True)
        if which == 3: last = {0: NR_ - 1, 1: NR_ - 3}
        else: last = {i: MT + 2 * i + 1 for i in range(4)}
        book = ["s_add_u32 s42, s42, 16384", f"s_cmp_eq_u32 s42, {NA*16384}", "s_cselect_b32 s42, 0, s42",
                f"s_add_u32 s48, s48, {STB}", f"s_cmp_eq_u32 s48, {NW*STB}", "s_cselect_b32 s48, 0, s48", (f"v_add_u32 v{aa}, s42, v{a0}", MT - 1)]
        book += sorted([(f"v_add_u32 v{wa+i}, s48, v{w0+i}", last[i]) for i in range(nwr)], key=lambda x: x[1])
        n = MT * NT
        group(fX, reads(fY, 1), 0, book[:7] + list(ex) + book[7:], {3: [f"s_waitcnt lgkmcnt({min(15, NR_ - MT - 4 + 4)})"], 7: ["s_waitcnt lgkmcnt(8)"], n - 1: [f"s_waitcnt lgkmcnt({NR_ - MT - 2})"]}, zero)
        if late:
            b_ = Rec(); ep_setup(b_)
            group(fY, [], 0, ["s_add_u32 s43, s43, 1"] + b_.l, {min(BP, 3): ["s_waitcnt lgkmcnt(0)"]})
            if B0E: publish(a, ST_G2S, 4, pt, ctr=48)
            a.e("s_barrier")
            for x in reads(fX, 0): a.e(x)
            a.e(f"s_waitcnt lgkmcnt({NR_ - MT - 2})")
            return
        group(fY, reads(fX, 0), BP + 1, list(ey) + ["s_add_u32 s43, s43, 1", f"s_cmp_lt_u32 s43, {lim}"],
              {BP - 1: list(pre), BP: ["s_waitcnt lgkmcnt(0)", "s_barrier"], n - 1: [f"s_waitcnt lgkmcnt({NR_ - MT - 2})"]})
    w00 = c["S0"] * STB
    if which <= 2:
        def wrd(p, b): return [f"ds_read_b64_tr_b16 {vr((fX, fY)[p]+16*kk+4*nt+2*h,2)}, v{w0+nt} offset:{b*STB + wpos(nt, kk, h)[1]}" for kk in range(2) for nt in range(4) for h in range(2)]
        def dmf(b, fill, lo=0, hi=16):
            k = 0
            for kk in range(2):
                for nt in range(4):
                    for mt in ((0, 1) if nt % 2 == 0 else (1, 0)):
                        if lo <= k < hi:
                            a.e(f"v_mfma_f32_16x16x32_bf16 {vr(A_(mt,nt),4)}, {vr((fX, fY)[b&1]+16*kk+4*nt,4)}, {vr(AB+16*b+8*kk+4*mt,4)}, {vr(A_(mt,nt),4)}")
                            for x in fill[k]: a.e(x)
                        k += 1
        def spreadf(l, lo, hi):
            f = [[] for _ in range(16)]
            for i, x in enumerate(l): f[lo + i * (hi - lo) // len(l)].append(x)
            return f
        a.e("s_mov_b32 s43, 0"); ep_setup(a)
        CK = str(which) in DP; ck_ = aa
        def check(b):
            B = AB + 16 * b
            return [f"v_or3_b32 v{ck_}, v{B}, v{B+4}, v{B+8}", f"v_bitop3_b32 v{ck_}, v{ck_}, v{B+12}, 1 bitop3:0xa8", f"v_cmp_ne_u32 vcc, 0, v{ck_}"]
        L = a.lab("dm"); assert CK
        a.e("s_mov_b32 s53, 0"); a.e("s_mov_b32 s49, s44")
        if which == 2: a.e("s_barrier")
        for x in wrd(0, 0): a.e(x)
        if EARLY: a.e(f"s_branch {L}w")
        a.e(f"{L}p:")
        for x in try0: a.e(x)
        a.e(f"{L}w:")
        a.e("s_waitcnt vmcnt(0)")
        for x in check(0): a.e(x)
        a.e(f"s_cbranch_vccz {L}q"); a.e(f"s_sleep {os.environ.get('GNAP', '2')}")
        a.e("s_add_u32 s53, s53, 1"); a.e("s_cmp_lt_u32 s53, s61"); a.e(f"s_cbranch_scc1 {L}p"); a.e("s_mov_b32 s61, 0")
        a.e(f"{L}q:")
        mstamp(a)
        for x in seq(PR[2:], None): a.e(x)
        a.e("s_waitcnt lgkmcnt(0)")
        a.e(f"{L}:")
        for b in range(4):
            rd = wrd(1 - (b & 1), (b + 1) & 3); ex = [[] for _ in range(16)]
            ex[0], ex[1] = [[x] for x in aload((b - 1) & 3, 1)]
            if b == 0 and which == 1:
                for i, x in enumerate(["s_mov_b32 s44, s45", "s_mov_b32 s45, s46", "s_mov_b32 s46, s47", f"s_mov_b32 s47, {OOB}"]): ex[2 + i].append(x)
            if which == 2:
                ex[2].append("s_add_u32 s44, s44, 16384"); ex[10].append("s_add_u32 s44, s44, 16384")
                mv = [f"v_mov_b32 v{LO+k}, v{LO+k+2}" for k in range(6)] + [f"v_mov_b32 v{LO+6+k}, {OOB}" for k in range(2)]
                if b < 2:
                    for i, x in enumerate(mv[4*b:4*b+4]): ex[3 + i].append(x)
                if b == 3:
                    for k in range(2): ex[3 + k].append(f"v_mov_b32 v{LP+k}, v{LO+k}")
            if b == 2:
                ex[4].append("s_add_u32 s43, s43, 1"); ex[14].append("s_cmp_eq_u32 s43, 4")
                for nt, g_ in enumerate((11, 12, 13, 15)): ex[g_].append(f"v_add_u32 v{w0+nt}, {4*STB}, v{w0+nt}")
            if b == 3 and which == 1: ex[2].append("s_mov_b32 s49, s44")
            ex[7].append("s_waitcnt lgkmcnt(8)")
            ex[8], ex[9] = [[x] for x in aload(b, 0)]
            ex[10].append("s_waitcnt vmcnt(10)")
            if CK:
                for i, x in enumerate(check((b + 1) & 3)): ex[11 + i].append(x)
            fill = [rd[i:i+1] + ex[i] for i in range(16)]
            fill[14] = rd[14:16] + ex[14]; fill[15] = ex[15] + ["s_waitcnt lgkmcnt(8)"]
            if CK: fill[15] += [f"s_cbranch_vccnz {L}f{b}", f"{L}g{b}:"]
            if b == 2: fill[15].append(f"s_cbranch_scc1 {L}x")
            if b == 3: fill[15].append(f"s_branch {L}")
            dmf(b, fill)
        for b in range(4 if CK else 0):
            nb = (b + 1) & 3
            a.e(f"{L}f{b}:"); a.e("s_cselect_b32 s50, 1, 0")
            a.e(f"{L}h{b}:"); a.e(f"s_sleep {os.environ.get('GNAP', '2')}")
            if which == 2: a.e(f"s_sub_u32 s44, s44, {7*16384}")
            for j in range(4):
                bb = (nb + j) & 3
                for kk in range(2 if j < 3 else 1):
                    for x in past(seq([(bb, kk)], None)):
                        if bb >= nb and which == 1: x = x.replace("s44", "s49")
                        if bb >= nb and which == 2: x = x.replace(f", v{LO}, ", f", v{LP}, ").replace(f", v{LO+1}, ", f", v{LP+1}, ")
                        a.e(x)
            a.e("s_waitcnt vmcnt(10)")
            for x in check(nb): a.e(x)
            a.e("s_add_u32 s53, s53, 1"); a.e("s_cmp_ge_u32 s53, s61"); a.e("s_cselect_b32 s61, 0, s61"); a.e(f"s_cbranch_scc1 {L}k{b}")
            a.e(f"s_cbranch_vccnz {L}h{b}")
            a.e(f"{L}k{b}:"); a.e("s_cmp_eq_u32 s50, 1"); a.e(f"s_branch {L}g{b}")
        a.e(f"{L}x:")
    else:
        if which == 3:
            a.e(f"v_mov_b32 v{aa}, v{a0}")
            a.e("s_mov_b32 s42, 0"); a.e("s_mov_b32 s43, 0"); a.e(f"s_mov_b32 s48, {w00}")
            for i in range(nwr): a.e(f"v_add_u32 v{wa+i}, {w00}, v{w0+i}")
        if not (which == 3 and B0E): a.e("s_waitcnt lgkmcnt(0)"); a.e("s_barrier")
        mstamp(a)
        for x in reads(fX, 0): a.e(x)
        a.e(f"s_waitcnt lgkmcnt({NR_ - MT - 2})")
    if which == 4:
        def st2(j): return [(x, 0) for x in [f"s_add_u32 s36, s44, {j*224*1024}", f"buffer_store_dwordx4 {vr(C2R+4*j,4)}, v{l16}, s[16:19], s36 offen {SC}",
                            f"s_add_u32 s36, s45, {j*224*1024}", f"buffer_store_dwordx2 {vr(C2R+16+2*j,2)}, v{SO3}, s[16:19], s36 offen {SC}"]]
        assert PBB in (1, 2) and PC0 >= 2
        for st_ in range(2): stage(st2(2 * st_), st2(2 * st_ + 1), zero=st_ == 0, pre=[f"s_waitcnt vmcnt({4 * st_ + 2})"] if PBB == st_ + 1 else [])
        CW = 0
        if PC0 > 3:
            L0 = a.lab("mm"); a.e(f"{L0}:"); stage(lim=PC0); a.e(f"s_cbranch_scc1 {L0}")
        elif PC0 == 3: stage()
    if which == 3 and os.environ.get("PEEL3", "1") == "1": stage(late=True, zero=True)
    if which > 2:
        L = a.lab("mm"); a.e(f"{L}:")
        stage(pre=[f"s_waitcnt vmcnt({CW})"] if which == 4 else [])
        a.e(f"s_cbranch_scc1 {L}")
    b0 = Rec()
    if which == 4:
        a.e("s_cmp_eq_u32 s60, 1"); a.e("s_cbranch_scc1 G4_last")
        if not RPC: r_pre(b0)
    if which == 1:
        for mt in range(MT):
            for p in range(NT // 2): b0.e(f"buffer_load_dwordx4 {vr(RES2+(mt*(NT//2)+p)*4,4)}, v{LO+mt}, s[8:11], s41 offen offset:{p*1024} {SC}")
    early = True
    XW = {3: [f"s_waitcnt lgkmcnt({min(15, NR_ - MT)})"], 7: ["s_waitcnt lgkmcnt(8)"]}
    if which <= 2: dmf(3, spreadf(b0.l, 0, 8), 0, 8)
    else: group(fX, reads(fY, 1), 0, b0.l, XW)
    a.e("s_waitcnt lgkmcnt(0)")
    if which not in DL: a.e("s_barrier")
    b = Rec()
    if which in (1, 3):
        for nt in range(NT): b.e(f"ds_read_b128 {vr(cs+4*nt,4)}, v{t} offset:{nt*64}")
        if which == 3:
            for mt in range(MT): b.e(f"ds_read_b128 {vr(lns+4*mt,4)}, v{t2} offset:{mt*256}")
            for i in range(4): b.e(f"v_mov_b32 v{w0+i}, v{G4W+i}"); b.e(f"v_add_u32 v{wa+i}, {CFG[4]['S0']*CFG[4]['STB']}, v{G4W+i}")
            b.e("s_mov_b32 s42, 0"); b.e("s_mov_b32 s43, 0"); b.e(f"s_mov_b32 s48, {CFG[4]['S0']*CFG[4]['STB']}"); b.e(f"v_mov_b32 v{aa}, v{a0}")
            assert fY + 16 == RFO; r_addr(b, False)
        else:
            for mt in range(MT): b.e(f"ds_read_b64 {vr(lns+2*mt,2)}, v{t2} offset:{mt*256}")
    if which == 2: lsrd(b, 44, oST2, 24576)
    if which == 4:
        b.e(f"s_mul_i32 s36, s31, {oP1-oP0}"); b.e(f"s_add_u32 s36, s36, {oP0}")
        b.e("s_add_u32 s16, s62, s36"); b.e("s_addc_u32 s17, s63, 0"); b.e(f"s_mov_b32 s18, {XSZ}"); b.e("s_mov_b32 s19, 0x20000")
    if which <= 2: dmf(3, spreadf(b.l, 8, 15), 8, 16)
    else: group(fY, [], 0, b.l)
    mstamp(a)
    if which in (1, 3):
        AB = v(2 * MT, 2) if which == 1 else fY + 4
        def consts():
            for mt in range(MT if which == 1 else 0):
                r = lns + 2 * mt + 1
                a.e(f"v_mul_f32 v{AB+2*mt}, {f32(GC1)}, v{r}"); a.e(f"v_mul_f32 v{AB+2*mt+1}, v{r}, v{r}")
                a.e(f"v_mul_f32 v{AB+2*mt+1}, v{AB+2*mt+1}, v{AB+2*mt}"); a.e(f"v_mul_f32 v{AB+2*mt+1}, {f32(0.044715)}, v{AB+2*mt+1}")
                a.e(f"v_rcp_f32 v{r}, v{r}")
        def act(mt, nt):
            A = A_(mt, nt); P_ = [(A, tp), (A + 2, tp + 2)]; L_ = vr(lns + 2 * mt, 2); K_ = vr(AB + 2 * mt, 2)
            if which == 3: L_ = vr(lns + 4 * mt, 2); K_ = vr(lns + 4 * mt + 2, 2)
            for h in range(2):
                a.e(f"v_pk_fma_f32 {vr(A+2*h,2)}, {L_}, {vr(cs+4*nt+2*h,2)}, {vr(A+2*h,2)} op_sel_hi:[0,1,1] neg_lo:[1,0,0] neg_hi:[1,0,0]")
            for x, u in P_: a.e(f"v_pk_mul_f32 {vr(u,2)}, {vr(x,2)}, {vr(x,2)}")
            for x, u in P_: a.e(f"v_pk_fma_f32 {vr(u,2)}, {vr(u,2)}, {K_}, {K_} op_sel:[0,1,0] op_sel_hi:[1,1,0]")
            for x, u in P_: a.e(f"v_pk_mul_f32 {vr(u,2)}, {vr(u,2)}, {vr(x,2)}")
            for i in range(4): a.e(f"v_exp_f32 v{tp+i}, v{tp+i}")
            for x, u in P_: a.e(f"v_pk_fma_f32 {vr(u,2)}, {vr(u,2)}, {L_}, {L_} op_sel:[0,1,1] op_sel_hi:[1,1,1]")
            for i in range(4): a.e(f"v_rcp_f32 v{tp+i}, v{tp+i}")
            for x, u in P_: a.e(f"v_pk_mul_f32 {vr(x,2)}, {vr(x,2)}, {vr(u,2)}")
        def egroup(par, mt, nts, dst=None):
            for nt in nts: act(mt, nt)
            T = par * NT + nts[0]; P = (T >> 1) - ((par * NT) >> 1); B = A_(mt, nts[0]); D = B if dst is None else dst
            for k in range(2 * len(nts)): a.e(f"v_cvt_pk_bf16_f32 v{D+k}, v{B+2*k}, v{B+2*k+1}")
            if which == 3 and (mt < 3 or "3" in DP) and "1" in DP: mark(a, D, 1)
            if which == 1: mark(a, D, 0)
            if which == 3: return [f"s_add_u32 s36, s{44+P}, {mt*224*1024}", f"buffer_store_dwordx4 {vr(B,4)}, v{l16}, s[16:19], s36 offen {SC}"]
            return [f"buffer_store_dwordx4 {vr(B,4)}, v{so}, s[16:19], s{39+P} offen offset:{mt*256} {SC}"]
        def body(par):
            if which == 1: gs = [(0, 1), (2, 3)]
            else: gs = [(0, 1), (2, 3), (4, 5), (6,)] if par == 0 else [(1, 2), (3, 4), (5, 6), (0,)]
            k = 0; pend = []; sent = 0
            for gi_, g_ in enumerate(gs):
                for mt in range(MT):
                    if which == 3 and k == C0PUB:
                        a.e(f"s_waitcnt vmcnt({sent - 4})"); a.e("s_mov_b64 exec, 1"); a.e(f"ds_add_u32 v{EA+2}, v{EA+1}"); a.e("s_mov_b64 exec, -1"); mstamp(a)
                    if which == 3 and k == RK:
                        b_ = Rec(); r_pre(b_); l_ = [x for x in b_.l if x.startswith(("buffer", "s_mov_b32 s78"))]
                        a.e("s_cmp_eq_u32 s60, 1"); a.e(f"s_cbranch_scc1 G4_p1{par}")
                        for x in l_: a.e(x)
                        a.e(f"s_branch G4_p2{par}"); a.e(f"G4_p1{par}:")
                        for x in last_res(): a.e(x)
                        a.e(f"G4_p2{par}:")
                        if 4 <= k < C0PUB: sent += 8
                    st_ = egroup(par, mt, g_, None if gi_ < 2 else C2R + 4 * mt if gi_ == 2 else C2R + 16 + 2 * mt); k += 1
                    if which == 3 and gi_ < 3:
                        a.e(f"ds_write_b128 v{EA}, {vr(A_(mt, g_[0]) if gi_ < 2 else C2R + 4 * mt, 4)} offset:{gi_*16384 + mt*2048}")
                    if gi_ < 2: pend.append(st_)
                    n = len(pend) if (which == 1 or k <= 4 or k == 16) else 0 if k <= STQ else min(1, len(pend))
                    for _ in range(n):
                        for x in pend.pop(0): a.e(x)
                        sent += 1
            if which == 3:
                a.e("s_waitcnt lgkmcnt(0)")
                if par == 0: a.e("s_mov_b32 s44, s46"); a.e("s_mov_b32 s45, s47")
                else: a.e("s_add_u32 s45, s44, 512"); a.e("s_mov_b32 s44, s47")
        a.e("s_waitcnt lgkmcnt(0)")
        consts()
        if which == 3:
            a.e("s_cmp_eq_u32 s35, 1"); a.e(f"s_cbranch_scc1 {nm}_e1")
            body(0); a.e(f"s_branch {nm}_e2"); a.e(f"{nm}_e1:"); body(1); a.e(f"{nm}_e2:")
        else: body(0)
    if which == 2:
        xf = v(2, 2); S = v(2 * MT, 2); pp = v(2, 2); mn = v(2, 2)
        for mt in range(MT):
            a.e(f"s_add_u32 s36, s39, {mt*65536}")
            for p in range(NT // 2):
                R = res + (mt * (NT // 2) + p) * 4
                for e in range(4):
                    X = A_(mt, 2 * p) + 2 * e
                    a.e(f"v_cvt_pk_bf16_f32 v{R+e}, v{X}, v{X+1}")
                if DP: mark(a, R, 0)
                a.e(f"buffer_store_dwordx4 {vr(R,4)}, v{l16}, s[16:19], s36 offen offset:{p*1024} {SC}")
        if which in DL: a.e("s_barrier")
        if OWN3:
            a.e("s_lshl_b32 s36, s37, 11"); a.e(f"v_add_u32 v{t2}, s36, v{l16}")
            for i in range(4): a.e(f"ds_write_b128 v{t2}, {vr(res+4*i,4)} offset:{1024*i}")
        for i in range(MT * NT * 2): unpack(a, acc + 2 * i, acc + 2 * i + 1, res + i)
        mstamp(a)
        publish(a, which, 4, pt)
        if B0E: a.e("s_waitcnt lgkmcnt(0)"); a.e("s_barrier")
        mstamp(a)
        for mt in range(MT):
            B = A_(mt, 0); Sm = S + 2 * mt
            a.e(f"v_pk_add_f32 {vr(pp,2)}, {vr(B,2)}, {vr(B+2,2)}"); a.e(f"v_pk_mul_f32 {vr(xf,2)}, {vr(B,2)}, {vr(B,2)}")
            for i in range(1, NT * 2):
                if i > 1: a.e(f"v_pk_add_f32 {vr(pp,2)}, {vr(pp,2)}, {vr(B+2*i,2)}")
                a.e(f"v_pk_fma_f32 {vr(xf,2)}, {vr(B+2*i,2)}, {vr(B+2*i,2)}, {vr(xf,2)}")
            a.e(f"v_add_f32 v{Sm}, v{pp}, v{pp+1}"); a.e(f"v_add_f32 v{Sm+1}, v{xf}, v{xf+1}")
            for op in ("v_permlane16_swap_b32", "v_permlane32_swap_b32"):
                for k in range(2): a.e(f"v_mov_b32 v{pp+k}, v{Sm+k}")
                for k in range(2): a.e(f"{op} v{Sm+k}, v{pp+k}")
                a.e(f"v_pk_add_f32 {vr(Sm,2)}, {vr(Sm,2)}, {vr(pp,2)}")
        a.e(f"v_cmp_eq_u32 vcc, 0, v{G}"); a.e(f"v_cndmask_b32 v{S}, v{S+2}, v{S}, vcc"); a.e(f"v_cndmask_b32 v{S+1}, v{S+3}, v{S+1}, vcc")
        spread(a, 40, 29); a.e("s_lshl_b32 s36, s34, 8"); a.e("s_add_u32 s40, s40, s36")
        a.e(f"v_lshlrev_b32 v{t2}, 3, v{lane}")
        a.e("s_bfm_b64 exec, 32, 0")
        a.e(f"buffer_store_dwordx2 {vr(S,2)}, v{t2}, s[44:47], s40 offen {SC}")
        a.e("s_mov_b64 exec, -1")
    if which == 4:
        for mt in range(MT):
            a.e(f"s_add_u32 s36, s39, {mt*65536}")
            for p in range(NT // 2):
                B = A_(mt, 2 * p)
                for e in range(4): a.e(f"v_cvt_pk_bf16_f32 v{B+e}, v{B+2*e}, v{B+2*e+1}")
                if "r" in DP: mark(a, B, 1)
                a.e(f"buffer_store_dwordx4 {vr(B,4)}, v{l16}, s[16:19], s36 offen offset:{p*1024} {SC}")
    if which != 2:
        if which in DL: a.e("s_barrier")
        mstamp(a)
        if which == 4 and "r" not in DP: publish(a, which, 4, pt)
        mstamp(a)
    if which == 4:
        a.e("s_branch NEXT")
        a.e("G4_last:")
        PX = 208; oa = 224; xf = 226
        group(fX, reads(fY, 1), 0, [(f"s_load_dwordx2 s[6:7], s[0:1], {D_OUT}", 9)], XW)
        a.e("s_waitcnt lgkmcnt(0)")
        b = Rec()
        lsrd(b, 16, oX1P if "f" in DP else MB, XSZ)
        b.srd(20, 6, 4 * MB)
        if "f" not in DP:
            b.e("s_lshl_b32 s44, s29, 2"); b.e("s_add_u32 s44, s44, s30"); b.e("s_lshl_b32 s44, s44, 7"); b.e("s_xor_b32 s45, s44, 4096")
            b.e("s_add_u32 s44, s44, s55"); b.e(f"s_add_u32 s44, s44, {oFP}"); b.e("s_add_u32 s45, s45, s55"); b.e(f"s_add_u32 s45, s45, {oFP}")
            b.e(f"v_mov_b32 v{pt+1}, s45"); b.e(f"v_mov_b32 v{pt+2}, s52"); b.e(f"v_mov_b32 v{pt+3}, 0")
        else: b.e("s_add_u32 s44, s40, 65536")
        b.e("s_lshl_b32 s46, s28, 3"); b.e("s_add_u32 s46, s46, s37"); b.e("s_lshl_b32 s47, s31, 1"); b.e("s_add_u32 s46, s46, s47"); b.e("s_lshl_b32 s46, s46, 15")
        b.e("s_lshl_b32 s47, s38, 5"); b.e("s_add_u32 s46, s46, s47"); b.e(f"s_add_u32 s47, s46, {16*2048}")
        b.e(f"v_and_b32 v{oa+1}, 1, v{G}"); b.e(f"v_lshlrev_b32 v{oa}, 11, v{J}"); b.e(f"v_lshl_add_u32 v{oa}, v{oa+1}, 5, v{oa}")
        b.e(f"v_lshrrev_b32 v{oa+1}, 1, v{G}"); b.e(f"v_lshl_add_u32 v{oa}, v{oa+1}, 4, v{oa}")
        FULLN = os.environ.get("FULLN", "1") == "1"
        if FULLN:
            b.e(f"v_lshrrev_b32 v{oa+1}, 3, v{J}"); b.e(f"v_mul_u32_u24 v{oa+1}, {8*2048 - 64}, v{oa+1}"); b.e(f"v_sub_u32 v{oa}, v{oa}, v{oa+1}")
            b.e(f"v_add_u32 v{oa+1}, {8*2048}, v{oa}")
        OT = int(os.environ.get("OT", "0"))
        if OT == 1: b.e("s_mov_b64 exec, 1"); b.e(f"buffer_load_dword v{xf}, v{oa}, s[20:23], s46 offen {SC}"); b.e("s_mov_b64 exec, -1")
        if OT == 2:
            for k in range(4): b.e(f"buffer_load_dword v{xf}, v{oa+(k&1)}, s[20:23], s{46+(k>>1)} offen {SC}")
        group(fY, [], 0, b.l)
        mstamp(a)
        def send(m0_):
            for i in range(2):
                a.e(f"s_add_u32 s36, s41, {i*65536}")
                for p in range(2):
                    B = A_(m0_ + i, 2 * p)
                    for e in range(4): a.e(f"v_cvt_pk_bf16_f32 v{B+e}, v{B+2*e}, v{B+2*e+1}")
                    if "f" in DP: mark(a, B, 1)
                    a.e(f"buffer_store_dwordx4 {vr(B,4)}, v{l16}, s[16:19], s36 offen offset:{p*1024} {SC}")
        a.e("s_cmp_eq_u32 s31, 0"); a.e("s_cbranch_scc1 G4_k0")
        send(0)
        for i in range(0, 32, 2): a.e(f"v_pk_mov_b32 {vr(acc+i,2)}, {vr(acc+32+i,2)}, {vr(acc+32+i,2)} op_sel:[0,1]")
        a.e("s_branch G4_k1")
        a.e("G4_k0:")
        send(2)
        a.e("G4_k1:")
        a.e("s_mov_b32 s78, 0x3f80"); a.e("s_mov_b32 s79, 0x3f800000")
        def addp(k, R):
            B = A_(k >> 1, 2 * (k & 1))
            if DOT:
                for e in range(8): a.e(f"v_dot2_f32_bf16 v{B+e}, v{R+e//2}, s{78+(e&1)}, v{B+e}")
                return
            for e in range(4):
                unpack(a, xf + 2 * (e & 1), xf + 1 + 2 * (e & 1), R + e)
                a.e(f"v_pk_add_f32 {vr(B+2*e,2)}, {vr(B+2*e,2)}, {vr(xf+2*(e&1),2)}")
        for k in range(4): addp(k, RX[2 * k])
        if "f" not in DP:
            a.e("s_waitcnt vmcnt(0)")
            a.e("s_mov_b64 exec, 1"); a.e(f"buffer_store_dword v{pt+2}, v{pt+3}, s[56:59], s44 offen {SC}"); a.e("s_mov_b64 exec, -1")
        mstamp(a)
        for k in range(4): addp(k, RX[2 * k + 1])
        if "f" in DP:
            data_poll(a, [f"buffer_load_dwordx4 {vr(PX+4*(2*i+p),4)}, v{l16}, s[16:19], s{(40, 44)[i]} offen offset:{p*1024} {SC}" for i in range(2) for p in range(2)],
                      [PX + 4 * k for k in range(4)], t, int(os.environ.get("FNAP", "2")), 0, int(os.environ.get("FCAN", "0")))
            mstamp(a)
        else:
            poll_core(a, pt, [pt + 1], 1, nap=2)
            mstamp(a)
            for i in range(2):
                a.e(f"s_add_u32 s36, s40, {i*65536}")
                for p in range(2): a.e(f"buffer_load_dwordx4 {vr(PX+4*(2*i+p),4)}, v{l16}, s[16:19], s36 offen offset:{p*1024} {SC}")
        for k in range(4):
            if "f" not in DP: a.e(f"s_waitcnt vmcnt({3 - (k & 1) if FULLN else 3})")
            addp(k, PX + 4 * k)
            B = A_(k >> 1, 2 * (k & 1))
            if os.environ.get("EPS"):
                for e in range(8): a.e(f"v_mul_f32 v{B+e}, {f32(1 + float(os.environ['EPS']) * (1 if e & 1 else -1))}, v{B+e}")
            for e in range(4): a.e(f"v_cvt_pk_bf16_f32 v{B+e}, v{B+2*e}, v{B+2*e+1}")
            for e in range(2): a.e(f"v_permlane16_swap_b32 v{B+e}, v{B+2+e}")
            if not FULLN: a.e(f"buffer_store_dwordx4 {vr(B,4)}, v{oa}, s[20:23], s{46+(k>>1)} offen offset:{64*(k&1)} {os.environ.get('OS', '')}")
            elif k & 1:
                X, Y, T = B - 8, B, B + 4
                for e in range(4): a.e(f"v_mov_b32 v{T+e}, v{X+e}")
                for e in range(4): a.e(f"v_mov_b32_dpp v{X+e}, v{Y+e} row_ror:8 row_mask:0xf bank_mask:0xc")
                for e in range(4): a.e(f"v_mov_b32_dpp v{Y+e}, v{T+e} row_ror:8 row_mask:0xf bank_mask:0x3")
                a.e(f"buffer_store_dwordx4 {vr(X,4)}, v{oa}, s[20:23], s{46+(k>>1)} offen {os.environ.get('OS', SC)}")
                a.e(f"buffer_store_dwordx4 {vr(Y,4)}, v{oa+1}, s[20:23], s{46+(k>>1)} offen {os.environ.get('OS', SC)}")
        a.e("s_branch K_fin")
    assert v.hi <= {1: RES2, 2: RES2, 3: RYY, 4: 176}[which], v.hi
    return v.hi

def k_mega(a):
    nm = KNAME; a.begin_kernel(nm)
    a.e("s_cmp_ge_u32 s2, 256"); a.e("s_cbranch_scc1 K_end")
    a.e(f"s_load_dwordx8 s[8:15], s[0:1], {A_K}")
    if FAST:
        if STAMP: a.e("s_memrealtime s[46:47]")
        front_first(a)
    a.e(f"s_load_dwordx2 s[6:7], s[0:1], {A_Q}"); a.e(f"s_load_dwordx8 s[68:75], s[0:1], {B_W1}")
    a.e(f"s_load_dwordx2 s[4:5], s[0:1], {D_WS}"); a.e(f"s_load_dwordx2 s[84:85], s[0:1], {D_DBG}")
    if not (FAST and STAMP): a.e("s_memrealtime s[46:47]")
    a.e(f"s_load_dwordx2 s[96:97], s[0:1], {A_SSMD}")
    a.e("v_lshrrev_b32 v1, 6, v0"); a.e("v_readfirstlane_b32 s30, v1")
    if CODEPF:
        a.e("s_getpc_b64 s[48:49]"); a.e("K_pc:")
        a.e("s_lshr_b32 s36, s2, 3"); a.e("s_lshl_b32 s36, s36, 11")
        a.e("v_lshlrev_b32 v4, 2, v0"); a.e("v_add_u32 v4, s36, v4")
        a.e("v_cmp_gt_u32 vcc, K_end-K_pc-8, v4"); a.e("s_and_saveexec_b64 s[36:37], vcc"); a.e("s_cbranch_execz K_3")
        a.e("v_mov_b32 v5, s49"); a.e("v_add_co_u32 v4, vcc, s48, v4"); a.e("v_addc_co_u32 v5, vcc, 0, v5, vcc")
        a.e("global_load_dword v250, v[4:5], off")
        a.e("K_3:"); a.e("s_mov_b64 exec, -1")
    for _ in range(int(os.environ.get("SDELAY", "0"))): a.e("s_sleep 127")
    front_loads(a)
    a.e("v_and_b32 v1, 63, v0"); a.e("v_lshlrev_b32 v2, 4, v1"); a.e("v_lshlrev_b32 v3, 2, v1")
    a.e("s_and_b32 s32, s2, 7"); a.e("s_lshr_b32 s33, s2, 3")
    a.e("s_and_b32 s28, s32, 2"); a.e("s_lshr_b32 s34, s32, 2"); a.e("s_or_b32 s28, s28, s34")
    a.e("s_lshl_b32 s28, s28, 2"); a.e("s_and_b32 s34, s33, 3"); a.e("s_add_u32 s28, s28, s34")
    a.e("s_and_b32 s31, s32, 1"); a.e("s_lshr_b32 s33, s33, 2")
    a.e("s_lshl_b32 s29, s31, 3"); a.e("s_add_u32 s29, s29, s33")
    if MAP == 8:
        a.e("s_lshr_b32 s33, s2, 3")
        a.e("s_and_b32 s28, s33, 4"); a.e("s_lshl_b32 s28, s28, 1"); a.e("s_and_b32 s34, s32, 4"); a.e("s_or_b32 s28, s28, s34"); a.e("s_and_b32 s34, s33, 3"); a.e("s_or_b32 s28, s28, s34")
        a.e("s_and_b32 s29, s32, 3"); a.e("s_lshl_b32 s29, s29, 2"); a.e("s_lshr_b32 s33, s33, 3"); a.e("s_or_b32 s29, s29, s33")
        a.e("s_lshr_b32 s31, s29, 3"); a.e("s_and_b32 s33, s29, 7")
    if MAP == 2:
        a.e("s_lshr_b32 s33, s2, 3")
        a.e("s_and_b32 s28, s32, 2"); a.e("s_lshl_b32 s28, s28, 2"); a.e("s_and_b32 s34, s32, 4"); a.e("s_or_b32 s28, s28, s34")
        a.e("s_and_b32 s34, s32, 1"); a.e("s_lshl_b32 s34, s34, 1"); a.e("s_or_b32 s28, s28, s34"); a.e("s_and_b32 s34, s33, 1"); a.e("s_or_b32 s28, s28, s34")
        a.e("s_lshr_b32 s29, s33, 1"); a.e("s_lshr_b32 s31, s29, 3"); a.e("s_and_b32 s33, s29, 7")
    a.e({4: "s_lshl_b32 s67, s33, 1", 8: "s_lshl_b32 s67, s33, 2", 2: "s_mov_b32 s67, s29"}[MAP]); a.e(f"s_and_b32 s67, s67, {int(os.environ.get('RMASK', '0'))}")
    a.e(f"s_xor_b32 s99, s29, {os.environ.get('G1X', '1')}")
    a.e("s_mov_b32 s60, 0"); a.e("s_mov_b32 s61, 40000"); a.e("s_mov_b32 s52, 0")
    a.e("s_mov_b32 s55, 0"); a.e("s_mov_b32 s92, 0"); a.e("s_mov_b32 s93, 0"); a.e("s_mov_b32 s94, 0")
    a.srd(56, 4, HSB)
    if os.environ.get("FIXT"): a.e("s_mov_b32 s101, s46")
    r_addr(a)
    a.e(f"s_add_u32 s62, s4, {LB0}"); a.e("s_addc_u32 s63, s5, 0")
    if STAMP:
        a.e("s_mov_b32 s66, 1"); a.e("v_mov_b32 v255, -1"); a.e("s_mov_b32 s95, 0"); a.e("v_writelane_b32 v255, s46, 0")
    mstamp(a)
    if os.environ.get("WBENCH"):
        a.e("s_waitcnt vmcnt(0)"); a.e("s_barrier")
        a.e("s_cmp_lt_u32 s30, 6"); a.e("s_cbranch_scc1 WB_end")
        for w in (1, 2, 3, 4):
            mstamp(a); w_setup(a, w); a.e("s_waitcnt vmcnt(0)"); mstamp(a); a.e("s_sleep 40")
        a.e("WB_end:"); a.e("s_branch K_dump")
    front_a(a); mstamp(a)
    for r in range(238, 248): a.e(f"v_mov_b32 v{r}, 0")
    a.e("s_cmp_ge_u32 s30, 4"); a.e("s_cbranch_scc1 FR_b")
    front_conv(a); hi = 0
    mstamp(a)
    front_arrive(a, True)
    a.e("s_branch FR_end")
    a.e("FR_b:")
    front_b(a)
    a.e("FR_end:")
    mstamp(a)
    a.e("LAYER:")
    if os.environ.get("XDELAY"): a.e(f"s_sleep {os.environ['XDELAY']}")
    hi = max(hi, r_stage(a, False))
    mstamp(a)
    a.e("s_cmp_ge_u32 s30, 4"); a.e("s_cbranch_scc1 LOADERS")
    if CPRIO: a.e(f"s_setprio {CPRIO}")
    for w in (1, 2, 3, 4):
        a.lines.append(f"; ---- G{w}: compute waves (set-up, K loop, epilogue, publish)")
        hi = max(hi, g_compute(a, w))
    a.e("LOADERS:")
    if SB[2]:
        a.e("s_cmp_lg_u32 s60, 0"); a.e("s_cbranch_scc1 LD_0"); sb(a, SB[2]); a.e("LD_0:")
    if PRIO: a.e(f"s_setprio {PRIO}")
    a.e("s_cmp_ge_u32 s30, 6"); a.e("s_cbranch_scc1 WLOAD")
    for w in (1, 2, 3, 4): a_loader(a, w)
    a.e("s_branch NEXT")
    a.e("WLOAD:")
    a.e("s_cmp_eq_u32 s60, 1"); a.e("s_cbranch_scc1 WL_1")
    w_setup(a, 1, pre=False); w1_slots(a, range(9 - W1G), pace=12); mstamp(a)
    a.e("s_branch WL_2")
    a.e("WL_1:")
    w_setup(a, 1, pre=False); w1_slots(a, range(3 - W1L), pace=12)
    a.e("WL_2:")
    for w in (1, 2, 3, 4):
        w_loader(a, w)
        if w == 2:
            c = CFG[3]; w_setup(a, 3, pre=False); n_ = 3 if W33 else 2; a.e(f"s_mov_b32 s42, {(c['S0'] + n_) % c['NW'] * c['STB']}"); a.e(f"s_mov_b32 s44, {n_}")
        if w == 3: w_setup(a, 4)
    a.e("NEXT:")
    a.e("s_setprio 0")
    a.e("s_add_u32 s60, s60, 1"); a.e(f"s_add_u32 s55, s55, {LSTR}")
    a.e(f"s_add_u32 s62, s62, {LSTR}"); a.e("s_addc_u32 s63, s63, 0")
    a.e("s_branch LAYER")
    a.e("K_fin:")
    if os.environ.get("FIXT"):
        a.e("FX_l:"); a.e("s_sleep 4"); a.e("s_memrealtime s[64:65]"); a.e("s_waitcnt lgkmcnt(0)"); a.e("s_sub_u32 s64, s64, s101")
        if os.environ.get("FIX0"): a.e("s_add_u32 s64, s64, s101"); a.e("s_lshl_b32 s64, s64, 6"); a.e("s_sub_u32 s64, s64, s52"); a.e("s_lshr_b32 s64, s64, 6")
        a.e(f"s_cmp_lt_u32 s64, {os.environ['FIXT']}"); a.e("s_cbranch_scc1 FX_l")
    if STAMP:
        a.e("K_dump:")
        a.e("s_waitcnt vmcnt(0)")
        mstamp(a)
        a.srd(96, 4, 16 * MB, off=200 * MB)
        a.e("s_lshl_b32 s66, s2, 3"); a.e("s_add_u32 s66, s66, s30"); a.e("s_lshl_b32 s66, s66, 8")
        a.e("v_writelane_b32 v255, s95, 63")
        a.e("buffer_store_dword v255, v3, s[96:99], s66 offen")
        if os.environ.get("DBGOUT"):
            a.e("s_cmp_lg_u32 s66, 0"); a.e("s_cbranch_scc1 K_end")
            a.e(f"s_load_dwordx2 s[96:97], s[0:1], {D_DBG}"); a.e("s_mov_b32 s98, 64"); a.e("s_waitcnt lgkmcnt(0)")
            a.e("v_readlane_b32 s64, v255, 0"); a.e("v_mov_b32 v10, 0")
            for i, j in enumerate(eval(os.environ["DBGOUT"])):
                a.e(f"v_readlane_b32 s65, v255, {j}"); a.e("s_sub_u32 s65, s65, s64"); a.e("v_mov_b32 v11, s65")
                a.e(f"buffer_store_dword v11, v10, s[96:99], 0 offen offset:{8+4*i}")
    a.e("s_endpgm")
    emit_subs(a)
    a.e("K_end:")
    assert hi <= PV
    a.end_kernel(nm, 256)
    if TAB: tab_data(a)
    a.launches.append(f"; @launch grid=(256,1,1) block=(512,1,1) lds={LDS_TOTAL}")

HEADER = open("interleave_layers__ssm_conv_h3__mixer_s_mlp__prompt.s.ref").read().split("; Override launch")[0]
DOC = """; One persistent kernel, 256 workgroups x 8 waves (one per CU), generated by dev/gen30.py.
"""
def main(out):
    a = Asm()
    k_mega(a)
    DS = os.environ.get("DS")
    if DS:
        o = []
        for l in a.lines:
            o.append(l)
            if "buffer_store_dwordx" in l and "sc1" in l and any(k in l for k in DS.split(",")): o.append(l.replace(" sc1", ""))
        a.lines = o
    notes = {
        "K_pc:": "each workgroup reads 2 KB of this kernel's code so that later instruction fetches are served on chip",
        "KV_t0:": "k / v / tap loads of the u^T tile (64 times x 128 channels); workgroup 0 has posted the launch tag (a clock value) in d_debug",
        "HB_2:": "u^T tile out, arrival counters initialised to the tag, shifted filter copies into LDS, LayerNorm(q)",
        "CV_w:": "long causal convolution as Toeplitz MFMAs, one channel per wave",
        "FR_b:": "waves 4-7 beside the convolution: memory-locality vote (timed loads, layout choice only), weight column sums, weight touches",
        "LAYER:": "row stage: residual sums, LayerNorm chain, x + LN(x)*y for 8 rows per workgroup",
        "LOADERS:": "waves 4,5: activation tiles by LDS-DMA (after the producers' counters are complete)",
        "WLOAD:": "waves 6,7: weight tiles by LDS-DMA in their original layout (read back with transposing LDS loads)",
        "G4_last:": "last layer: the two K halves exchange half tiles, add the residuals and write the output",
    }
    o = []
    for l in a.lines:
        if l.strip() in notes: o.append("; ---- " + notes[l.strip()])
        if l.strip().startswith("s_sleep"): l += "    ; back-off inside a wait loop"
        o.append(l)
    a.lines = o
    open(out, "w").write(a.text(HEADER + DOC))
    print("nops added:", a.nops_added)

if __name__ == "__main__":
    main(sys.argv[1] if len(sys.argv) > 1 else "interleave_layers__ssm_conv_h3__mixer_s_mlp__prompt.s")
```

```python
import sys, os, math, struct
sys.path.insert(0, "dev")
from asmgen import Asm

KNAME = "interleave_layers__ssm_conv_h3__mixer_s_mlp__prompt_kernel"
MB = 1 << 20
UT, Y = 24 * MB, 28 * MB
CSP = {1: 20 * MB, 3: 20 * MB + 128 * 1024}
A_Q, A_K, A_V, A_SH, A_SSMK, A_SSMD, B_X, B_W1, B_W2, B_W3, B_W4, D_OUT, D_DBG, D_WS = [8 * i for i in range(14)]
STAMP = int(os.environ.get("STAMP", "0"))
def f32(x): return "0x%08x" % struct.unpack("<I", struct.pack("<f", x))[0]
GC1 = -2.0 * math.sqrt(2.0 / math.pi) * math.log2(math.e)
GC2 = GC1 * 0.044715

class VA:
    def __init__(self, start=1): self.n = start; self.hi = start
    def __call__(self, cnt=1, al=None):
        if al is None: al = 2 if cnt > 1 else 1
        self.n = (self.n + al - 1) // al * al
        r = self.n; self.n += cnt; self.hi = max(self.hi, self.n); return r
def vr(b, n): return f"v[{b}:{b+n-1}]" if n > 1 else f"v{b}"

def unpack(a, lo, hi, src):
    a.e(f"v_lshlrev_b32 v{lo}, 16, v{src}")
    a.e(f"v_and_b32 v{hi}, 0xffff0000, v{src}")
RND = int(os.environ.get("RND", "0"))
def round2(a, x, y, tmp):
    if not RND: return
    a.e(f"v_cvt_pk_bf16_f32 v{tmp}, v{x}, v{y}")
    unpack(a, x, y, tmp)
def round1(a, x):
    if not RND: return
    a.e(f"v_cvt_pk_bf16_f32 v{x}, v{x}, v{x}")
    a.e(f"v_lshlrev_b32 v{x}, 16, v{x}")
def red_g(a, x, t):
    a.e(f"v_mov_b32 v{t}, v{x}"); a.e(f"v_permlane16_swap_b32 v{x}, v{t}"); a.e(f"v_add_f32 v{x}, v{x}, v{t}")
    a.e(f"v_mov_b32 v{t}, v{x}"); a.e(f"v_permlane32_swap_b32 v{x}, v{t}"); a.e(f"v_add_f32 v{x}, v{x}, v{t}")
def ln_finish(a, mean, var, rs, s=None):
    round1(a, mean); round1(a, var)
    a.e(f"v_add_f32 v{var}, {f32(1e-5)}, v{var}"); round1(a, var)
    if not RND and s is None: a.e(f"v_rsq_f32 v{rs}, v{var}"); return
    a.e(f"v_sqrt_f32 v{var}, v{var}"); round1(a, var)
    if s is not None: a.e(f"v_mov_b32 v{s}, v{var}")
    a.e(f"v_rcp_f32 v{rs}, v{var}")


FLG = 22 * MB + int(os.environ.get("FOFF", "0"))
LB0, LSTR, GSTR = 32 * MB, 4 * MB, 16 * MB
oH2 = 4 * MB; oSM = oH2 + 1792 * 1024; oFP = 16384; oST2 = oSM + 32768; oLNS = oSM + 65536
oX3, oX1P, oP0, oP1 = [i * 512 * 1024 for i in range(4)]
DP = os.environ.get("DP", "rf12")
if "r" in DP: oP0, oP1 = oX3, oX1P
def mark(a, r, bit): a.e(f"v_or_b32 v{r}, 1, v{r}" if bit else f"v_and_b32 v{r}, -2, v{r}")
DOT = int(os.environ.get("DOT", "1"))
def data_poll(a, loads, regs, t, nap, first=0, canary=False):
    L = a.lab("dp"); D = a.lab("dq")
    if canary:
        a.e("s_bfm_b64 exec, 1, 63"); data_poll(a, loads, regs, t, nap, first); a.e("s_mov_b64 exec, -1"); first = 0
    a.e("s_mov_b32 s53, 0")
    if first:
        f2 = int(os.environ.get("RFIRST2", "10"))
        if f2: a.e(f"s_sleep {f2}")
        a.e("s_cmp_ge_u32 s30, 6"); a.e(f"s_cbranch_scc1 {L}"); a.e(f"s_sleep {first - f2}")
    a.e(f"{L}:")
    for x in loads: a.e(x)
    a.e("s_waitcnt vmcnt(0)")
    a.e(f"v_bitop3_b32 v{t}, v{regs[0]}, v{regs[1]}, v{regs[2]} bitop3:0x80"); a.e(f"v_bitop3_b32 v{t}, v{t}, v{regs[3]}, 1 bitop3:0x80")
    a.e(f"v_cmp_eq_u32 vcc, 0, v{t}"); a.e(f"s_cbranch_vccz {D}")
    a.e(f"s_sleep {nap}")
    a.e("s_add_u32 s53, s53, 1"); a.e("s_cmp_lt_u32 s53, s61"); a.e(f"s_cbranch_scc1 {L}")
    a.e("s_mov_b32 s61, 0")
    a.e(f"{D}:")
XSZ = 512 * 1024 - 8192; H2SZ = 1792 * 1024 - 8192
HSB = 160 * MB; PITCH = 65536 + int(os.environ.get("SKEW", "0")); oHS = MB
def fso(stage): return int(stage * 256)
def spread(a, d, src):
    a.e(f"s_lshr_b32 s53, s{src}, 3"); a.e("s_lshl_b32 s53, s53, 14"); a.e(f"s_and_b32 s{d}, s{src}, 7"); a.e(f"s_lshl_b32 s{d}, s{d}, 10"); a.e(f"s_add_u32 s{d}, s{d}, s53")
ST_R, ST_G1, ST_G2, ST_G3, ST_G4, ST_R2, ST_G3B, ST_G3A = range(8); ST_G2S = 5.5
F_KVT, F_FRONT, F_CS = FLG, FLG + 32768, FLG + 53248; F_VOTE = F_FRONT + 16384; F_RES = F_VOTE
LDS_TOTAL = 163840
AUX = LDS_TOTAL - 4096
SC = "sc1"
PSLEEP = int(os.environ.get("PSLEEP", "5"))
ROT = int(os.environ.get("ROT", "1"))
PACE = int(os.environ.get("PACE", "8"))
PDEPTH = int(os.environ.get("PDEPTH", "1"))
WROT = int(os.environ.get("WROT", "1"))
PRIO = int(os.environ.get("PRIO", "0"))
STQ = int(os.environ.get("STQ", "12"))
CPRIO = int(os.environ.get("CPRIO", "0"))
FSLEEP = int(os.environ.get("FSLEEP", "6"))
CSPRIO = int(os.environ.get("CSPRIO", "1"))
NT = os.environ.get("NT", "nt"); HALO = int(os.environ.get("HALO", "0")); NTK = os.environ.get("NTK", "" if HALO else NT); NTH = os.environ.get("NTH", NT)
W1F = int(os.environ.get("W1F", "7"))
WSC = eval(os.environ.get("WSC", "{}"))
TLBW = int(os.environ.get("TLBW", "0"))
T12 = eval(os.environ.get("T12", "{}"))
T23 = eval(os.environ.get("T23", "()"))
OWN3 = int(os.environ.get("OWN3", "1"))
PUB2 = int(os.environ.get("PUB2", "4"))
MAP = int(os.environ.get("MAP", "4"))
HSPLIT = int(os.environ.get("HSPLIT", "2"))
W1G = int(os.environ.get("W1G", "9"))
PWAIT = int(os.environ.get("PWAIT", "8"))
DL = eval(os.environ.get("DL", "[2,4]"))
PACES = eval(os.environ.get("PACES", "{4:6}"))
C0PUB = int(os.environ.get("C0PUB", "6"))
LNSL = AUX + 1024

CFG = {1: dict(WM=4, WN=1, MT=2, NT=4, KBT=32, NS=16, NA=1.5, NW=16, A=oX3, W=B_W1, LDW=2048),
       2: dict(WM=4, WN=1, MT=2, NT=4, KBT=32, NS=16, NA=0, NW=16, A=oHS, W=B_W2, LDW=2048),
       3: dict(WM=2, WN=2, MT=4, NT=7, KBT=32, NS=16, NA=3, NW=3, A=oX1P, W=B_W3, LDW=7168, NPRE=2, WR=1, S0=2, WB=73728),
       4: dict(WM=2, WN=2, MT=4, NT=4, KBT=112, NS=28, NA=3, NW=6, A=oH2, W=B_W4, LDW=2048)}
for w, d in eval(os.environ.get("CFG", "{}")).items(): CFG[w].update(d)
for c in CFG.values():
    c.setdefault("NPRE", c["NW"]); c.setdefault("APRE", min(c["NA"], 3)); c.setdefault("WR", 1)
    c["TN16"] = c["WN"] * c["NT"]; c["STB"] = c["TN16"] * 2048; c.setdefault("WB", int(c["NA"] * 16384)); c.setdefault("S0", 0)
    c["RB"] = c["TN16"] * 32
    assert c["WB"] + c["NW"] * c["STB"] <= AUX
NX = 0
def nib(t): return sum(x << (4 * i) for i, x in enumerate(t))
CSO = {1: AUX + 3584, 3: AUX}

LW = AUX + 3072
def mstamp(a, force=False):
    if os.environ.get("JIT"):
        X = a.lab("jit")
        a.e("s_cselect_b32 s101, 1, 0"); a.e("s_memtime s[64:65]"); a.e("s_waitcnt lgkmcnt(0)"); a.e(f"s_and_b32 s64, s64, {os.environ['JIT']}"); a.e("s_cmp_lg_u32 s64, 0")
        a.e(f"s_cbranch_scc1 {X}"); a.e("s_sleep 50"); a.e(f"{X}:"); a.e("s_cmp_eq_u32 s101, 1")
        return
    if not STAMP or (os.environ.get("GST") and not force): return
    a.e(("s_memrealtime" if STAMP == 2 else "s_memtime") + " s[64:65]"); a.e("s_mov_b32 s100, m0"); a.e("s_mov_b32 m0, s66"); a.e("s_waitcnt lgkmcnt(0)")
    a.e("v_writelane_b32 v255, s64, m0"); a.e("s_mov_b32 m0, s100")
    a.e("s_add_u32 s66, s66, 1")

def lsrd(a, d, off, nbytes, prev=False):
    if prev:
        a.e(f"s_sub_u32 s{d}, s62, {LSTR - off:#x}"); a.e(f"s_subb_u32 s{d+1}, s63, 0")
        a.e(f"s_mov_b32 s{d+2}, {nbytes:#x}"); a.e(f"s_mov_b32 s{d+3}, 0x20000")
    else: a.srd(d, 62, nbytes, off=off)

def hs_srd(a, d):
    if "2" in DP: a.srd(d, 4, 128 * PITCH, off=HSB); return
    a.e("s_lshl_b32 s53, s60, 24"); a.e(f"s_add_u32 s53, s53, {HSB}")
    a.e(f"s_add_u32 s{d}, s4, s53"); a.e(f"s_addc_u32 s{d+1}, s5, 0"); a.e(f"s_mov_b32 s{d+2}, {128*PITCH}"); a.e(f"s_mov_b32 s{d+3}, 0x20000")

def group_off(a, d, m):
    a.e(f"s_lshr_b32 s53, s{m}, 3"); a.e("s_lshl_b32 s53, s53, 2"); a.e(f"s_and_b32 s54, s{m}, 3"); a.e("s_add_u32 s53, s53, s54"); a.e("s_lshl_b32 s53, s53, 24")
    a.e(f"s_lshr_b32 s54, s{m}, 2"); a.e("s_xor_b32 s54, s54, s94"); a.e("s_and_b32 s54, s54, 1"); a.e("s_lshl_b32 s54, s54, 13")
    a.e(f"s_add_u32 s{d}, s53, s54"); a.e(f"s_add_u32 s{d}, s{d}, {LB0}")

PV = 240
def poll_core(a, t, addrs, mask, extra=None, depth=1, cnt=0, nap=None):
    L = a.lab("poll"); D = a.lab("pok")
    n = len(addrs) + (1 if extra else 0)
    if depth > 1: t0 = t; regs = [PV + k * len(addrs) for k in range(depth)]; assert not extra and regs[-1] + len(addrs) <= 256
    else: regs = [t]
    def ld(r):
        for i, ad in enumerate(addrs): a.e(f"buffer_load_dword v{r+i}, v{ad}, s[56:59], 0 offen {SC}")
        if extra: a.e(extra[0])
    a.e("s_mov_b32 s53, 0"); a.e(f"s_add_u32 s54, s52, {cnt}")
    if mask != -1: a.e(f"s_bfm_b64 exec, {mask.bit_length()}, 0")
    for r in regs[:-1]: ld(r); a.e(f"s_sleep {PSLEEP}")
    a.e(f"{L}:")
    for k in range(depth):
        ld(regs[k - 1]); r = regs[k]
        a.e(f"s_waitcnt vmcnt({n*(depth-1)})")
        for i in range(len(addrs)): a.e(f"v_xor_b32 v{r+i}, s54, v{r+i}")
        for i in range(1, len(addrs)): a.e(f"v_or_b32 v{r}, v{r}, v{r+i}")
        if extra:
            for x in extra[1:]: a.e(x)
        a.e(f"v_cmp_eq_u32 vcc, 0, v{r}")
        a.e("s_cmp_eq_u64 vcc, exec"); a.e(f"s_cbranch_scc1 {D}")
        a.e(f"s_sleep {PSLEEP if nap is None else nap}")
    a.e("s_add_u32 s53, s53, 1"); a.e("s_cmp_lt_u32 s53, s61"); a.e(f"s_cbranch_scc1 {L}")
    a.e("s_mov_b32 s61, 0")
    a.e(f"{D}:")
    if mask != -1: a.e("s_mov_b64 exec, -1")

SPLIT = {ST_G1: "sign", ST_G3: "half", ST_G3A: "half", ST_G3B: "half"}
def flag_addr(a, r, stage, prev=False):
    so = fso(stage) - (LSTR if prev else 0)
    a.e(f"s_add_u32 s54, s55, {so & 0xffffffff:#x}")
    sp = SPLIT.get(stage)
    if sp == "half": a.e("s_lshl_b32 s53, s31, 7"); a.e("s_add_u32 s54, s54, s53")
    a.e(f"v_mov_b32 v{r}, s54")
    if sp == "sign":
        a.e("s_add_u32 s53, s54, 128"); a.e(f"v_writelane_b32 v{r}, s53, 1")
        a.e("s_add_u32 s53, s53, s93"); a.e(f"v_writelane_b32 v{r}, s53, 3")
        a.e("s_add_u32 s53, s54, s92"); a.e(f"v_writelane_b32 v{r}, s53, 2")
        return 0xf, 8
    return 1, 8 if sp else 16
def own_wait(a, stage, prev, t):
    if not PWAIT or stage == ST_R: return
    k = {ST_G1: 1, ST_G2: 2, ST_G4: 3}[stage] - (3 if prev else 0)
    a.e(f"s_mul_i32 s54, s60, {2 if 'r' in DP else 3}"); a.e(f"s_add_u32 s54, s54, {k}")
    lds_spin(a, LW + 56, "s54", t, nap=PWAIT)
def flag_try(a, r, ad):
    a.e("s_mov_b64 exec, 1"); a.e(f"buffer_load_dword v{r}, v{ad}, s[56:59], 0 offen {SC}"); a.e("s_mov_b64 exec, -1")
def flag_check(a, r, ad, cnt):
    D = a.lab("fok")
    a.e(f"v_readfirstlane_b32 s53, v{r}"); a.e(f"s_add_u32 s54, s52, {cnt}"); a.e("s_cmp_eq_u32 s53, s54"); a.e(f"s_cbranch_scc1 {D}")
    poll_core(a, r, [ad], 1, cnt=cnt)
    a.e(f"{D}:")

def poll(a, stage, t, prev=False):
    D = a.lab("pdone")
    a.e("s_cmp_lg_u32 s30, 4"); a.e(f"s_cbranch_scc1 {D}")
    own_wait(a, stage, prev, t)
    mask, cnt = flag_addr(a, t + 1, stage, prev)
    poll_core(a, t, [t + 1], mask, depth=PDEPTH, cnt=cnt)
    a.e(f"{D}:")
    if stage != ST_G4: mstamp(a)
    a.e("s_barrier")

def publish(a, stage, nw, t, off=None, wait=0, ctr=None, flag=False):
    D = a.lab("pub")
    mark = PWAIT and off is None and stage in (ST_G1, ST_G2, ST_G4)
    if off is None:
        a.e(f"s_add_u32 s53, s55, {fso(stage)}"); off = 53
        sp = SPLIT.get(stage)
        if sp == "half": a.e("s_lshl_b32 s54, s31, 7"); a.e("s_add_u32 s53, s53, s54")
        if sp == "sign": a.e("s_and_b32 s54, s29, 4"); a.e("s_lshl_b32 s54, s54, 5"); a.e("s_add_u32 s53, s53, s54")
    a.e(f"v_mov_b32 v{t}, 1"); a.e(f"v_mov_b32 v{t+1}, {LW + (ctr if ctr is not None else 4 if nw == 8 else 0)}"); a.e(f"v_mov_b32 v{t+3}, 0")
    a.e("s_mov_b64 exec, 1")
    if wait is not None: a.e(f"s_waitcnt vmcnt({wait})")
    if nw > 1:
        a.e(f"ds_add_rtn_u32 v{t+2}, v{t+1}, v{t}")
        if flag: a.e(f"v_mov_b32 v{t+1}, s52")
        a.e("s_waitcnt lgkmcnt(0)")
        a.e(f"v_readfirstlane_b32 s54, v{t+2}")
        a.e(f"s_and_b32 s54, s54, {nw-1}"); a.e(f"s_cmp_lg_u32 s54, {nw-1}"); a.e(f"s_cbranch_scc1 {D}")
    if flag: a.e(f"buffer_store_dword v{t+1}, v{t+3}, s[56:59], s{off} offen {SC}")
    else: a.e(f"buffer_atomic_add v{t}, v{t+3}, s[56:59], s{off} offen {SC}")
    if stage == ST_R and not flag:
        a.e("s_cmp_lg_u32 s60, 0"); a.e(f"s_cbranch_scc1 {D}")
        a.e("s_lshl_b32 s53, s29, 7"); a.e(f"s_add_u32 s53, s53, {F_CS}")
        a.e(f"buffer_atomic_add v{t}, v{t+3}, s[56:59], s53 offen {SC}")
    if mark: a.e(f"v_mov_b32 v{t+1}, {LW+56}"); a.e(f"ds_add_u32 v{t+1}, v{t}")
    a.e(f"{D}:")
    a.e("s_mov_b64 exec, -1")

def lds_spin(a, addr, target, t, dst=53, nap=False):
    L = a.lab("spin")
    a.e(f"v_mov_b32 v{t}, {addr}")
    a.e(f"{L}:")
    if nap: a.e(f"s_sleep {int(nap)}")
    a.e(f"ds_read_b32 v{t+1}, v{t}"); a.e("s_waitcnt lgkmcnt(0)"); a.e(f"v_readfirstlane_b32 s{dst}, v{t+1}")
    a.e(f"s_cmp_ge_u32 s{dst}, {target}"); a.e(f"s_cbranch_scc0 {L}")
def lds_set(a, addr, val, t):
    a.e(f"v_mov_b32 v{t}, {addr}"); a.e(f"v_mov_b32 v{t+1}, {val}")
    a.e("s_waitcnt lgkmcnt(0)"); a.e(f"ds_write_b32 v{t}, v{t+1}")
def lbar(a, k, t):
    a.e(f"v_mov_b32 v{t}, {LW+8}"); a.e(f"v_mov_b32 v{t+1}, 1")
    a.e("s_waitcnt lgkmcnt(0)")
    a.e("s_mov_b64 exec, 1"); a.e(f"ds_add_u32 v{t}, v{t+1}"); a.e("s_mov_b64 exec, -1")
    lds_spin(a, LW + 8, 4 * k, t)

def gelu4(a, X, t, c1, c2):
    P = [(X, t), (X + 2, t + 2)]
    for x, u in P: a.e(f"v_pk_mul_f32 {vr(u,2)}, {vr(x,2)}, {vr(x,2)}")
    for x, u in P: a.e(f"v_pk_fma_f32 {vr(u,2)}, {vr(u,2)}, {vr(c2,2)}, {vr(c1,2)}")
    for x, u in P: a.e(f"v_pk_mul_f32 {vr(u,2)}, {vr(u,2)}, {vr(x,2)}")
    for i in range(4): a.e(f"v_exp_f32 v{t+i}, v{t+i}")
    for x, u in P: a.e(f"v_pk_add_f32 {vr(u,2)}, {vr(u,2)}, 1.0 op_sel_hi:[1,0]")
    for i in range(4): a.e(f"v_rcp_f32 v{t+i}, v{t+i}")
    for x, u in P: a.e(f"v_pk_mul_f32 {vr(x,2)}, {vr(x,2)}, {vr(u,2)}")

W2EARLY = int(os.environ.get("W2EARLY", "1")); QLATE = int(os.environ.get("QLATE", "0"))
TOUCH2 = [(A_Q, 4 * MB)] + ([] if W2EARLY else [(B_W2, 2 * MB)])
CODEPF = int(os.environ.get("CODEPF", "1")); NVOTE = int(os.environ.get("NVOTE", "32")); QUO = int(os.environ.get("QUO", "21")); NSAMP = int(os.environ.get("NSAMP", "2"))
W4POS = os.environ.get("W4POS", "3C")
HSTR = 4160; CHB = 24576; UOFF = 4 * HSTR; US = 96
KVS = 4 * CHB

KT = int(os.environ.get("KT", "1"))
KV = dict(cq=6, tg=7, t=8, ro=9, wo=16, pt=18, kr=22, vv=36, w=44, d=52, hoff=70, tag=76, zz=78)
FAST = int(os.environ.get("FAST", "0"))
def front_first(a):
    cq, tg, t, ro, wo, kr, vv, w = [KV[k] for k in "cq tg t ro wo kr vv w".split()]
    a.e(f"v_and_b32 v{cq}, 31, v0"); a.e(f"v_lshrrev_b32 v{tg}, 5, v0")
    a.e("s_and_b32 s34, s2, 7"); a.e("s_lshr_b32 s35, s2, 3")
    a.e("s_lshl_b32 s36, s35, 17"); a.e("s_lshl_b32 s37, s34, 8"); a.e("s_add_u32 s36, s36, s37")
    a.e(f"v_lshlrev_b32 v{t}, 13, v{tg}"); a.e(f"v_lshl_add_u32 v{t}, v{cq}, 3, v{t}"); a.e(f"v_add_u32 v{ro+3}, s36, v{t}")
    a.e(f"v_add_u32 v{ro+5}, 4096, v{ro+3}")
    a.e("s_waitcnt lgkmcnt(0)")
    for i in range(4): a.e(f"global_load_dwordx2 {vr(kr+2*(i+3),2)}, v{ro+3+(i&2)}, s[8:9] offset:{2048*(i&1)} {NTK}")
    for i in range(4): a.e(f"global_load_dwordx2 {vr(vv+2*i,2)}, v{ro+3+(i&2)}, s[10:11] offset:{2048*(i&1)} {NT}")
def front_loads(a):
    cq, tg, t, ro, wo, kr, vv, w = [KV[k] for k in "cq tg t ro wo kr vv w".split()]
    a_ = a
    if FAST: a = Rec()
    a.e(f"v_and_b32 v{cq}, 31, v0"); a.e(f"v_lshrrev_b32 v{tg}, 5, v0")
    a.e("s_and_b32 s34, s2, 7"); a.e("s_lshr_b32 s35, s2, 3")
    a.e("s_lshl_b32 s36, s35, 17"); a.e("s_lshl_b32 s37, s34, 8"); a.e("s_add_u32 s36, s36, s37")
    a.e(f"v_lshlrev_b32 v{t}, 13, v{tg}"); a.e(f"v_lshl_add_u32 v{t}, v{cq}, 3, v{t}"); a.e(f"v_add_u32 v{ro+3}, s36, v{t}")
    a.e(f"v_add_u32 v{ro+5}, 4096, v{ro+3}")
    a = a_
    a.e(f"s_mov_b32 s18, {4*MB}"); a.e("s_mov_b32 s19, 0x20000"); a.e("s_mov_b32 s22, s18"); a.e("s_mov_b32 s23, s19")
    a.e("s_waitcnt lgkmcnt(0)")
    tag, zz = KV["tag"], KV["zz"]
    a.e("s_mov_b32 s86, 256"); a.e("s_mov_b32 s87, 0x20000"); a.e(f"v_mov_b32 v{zz}, 0")
    a.e("s_lshl_b32 s45, s2, 3"); a.e("s_add_u32 s45, s45, s30"); a.e("s_cmp_lg_u32 s45, 4"); a.e("s_cbranch_scc1 KV_t0")
    a.e("s_getreg_b32 s45, hwreg(HW_REG_XCC_ID, 0, 3)"); a.e("s_lshl_b32 s45, s45, 1")
    a.e("s_lshl_b32 s44, s46, 6"); a.e("s_or_b32 s44, s44, s45"); a.e("s_or_b32 s44, s44, 1"); a.e(f"v_mov_b32 v{tag}, s44"); a.e(f"v_mov_b32 v{tag+1}, 0")
    a.e("s_mov_b64 exec, 1"); a.e(f"buffer_store_dwordx2 {vr(tag,2)}, v{zz}, s[84:87], 0 offen {SC}"); a.e("s_mov_b64 exec, -1")
    a.e("KV_t0:")
    a.e("s_mov_b64 s[16:17], s[8:9]"); a.e("s_mov_b64 s[20:21], s[10:11]")
    for i in range(0 if FAST else 4): a.e(f"buffer_load_dwordx2 {vr(kr+2*(i+3),2)}, v{ro+3+(i&2)}, s[16:19], 0 offen offset:{2048*(i&1)} {NTK}")
    for i in range(0 if FAST else 4): a.e(f"buffer_load_dwordx2 {vr(vv+2*i,2)}, v{ro+3+(i&2)}, s[20:23], 0 offen offset:{2048*(i&1)} {NT}")
    for i in range(3): a.e(f"v_subrev_u32 v{ro+i}, {2048*(3-i)}, v{ro+3}")
    a.e("s_lshl_b32 s37, s34, 10"); a.e(f"v_lshlrev_b32 v{wo}, 5, v{cq}"); a.e(f"v_add_u32 v{wo}, s37, v{wo}")
    a.srd(24, 12, 8192)
    XP = os.environ.get("XP", "g")
    if KT:
        a.e(f"v_and_b32 v{t}, 1, v{tg}"); a.e(f"v_lshl_add_u32 v{wo}, v{t}, 4, v{wo}")
        a.e(f"buffer_load_dwordx4 {vr(w,4)}, v{wo}, s[24:27], 0 offen")
    for i in range(0 if "t" in XP or KT else 2): a.e(f"buffer_load_dwordx4 {vr(w+4*i,4)}, v{wo}, s[24:27], 0 offen offset:{16*i}")
    if "g" in XP:
        a.e("s_cmp_lg_u32 s30, 4"); a.e("s_cbranch_scc1 KV_t2")
        a.e(f"buffer_load_dword v{tag}, v{zz}, s[84:87], 0 offen {SC}")
        a.e("KV_t2:")
    if "h" in XP: return
    if HALO:
        a.e("s_cmp_lg_u32 s30, 0"); a.e("s_cbranch_scc1 KV_h0"); a.e("s_bfm_b64 exec, 32, 0")
    if KT: a.e("s_bfm_b64 exec, 32, 0")
    for i in range(3): a.e(f"buffer_load_dwordx2 {vr(kr+2*i,2)}, v{ro+i}, s[16:19], 0 offen {NTK}")
    if KT: a.e("s_mov_b64 exec, -1")
    if HALO: a.e("s_mov_b64 exec, -1"); a.e("KV_h0:")

def probe_base(a):
    assert NVOTE <= 64
    a.e("s_and_b32 s42, s2, 7"); a.e("s_lshl_b32 s42, s42, 10"); a.e("s_lshr_b32 s43, s2, 3"); a.e("s_lshl_b32 s43, s43, 14"); a.e("s_add_u32 s42, s42, s43")
    a.e(f"s_add_u32 s42, s42, {LB0 + oSM + 131072}")
def front_arrive(a, wait):
    D = a.lab("fa"); t = 6
    a.e("s_and_b32 s36, s2, 7"); a.e("s_lshl_b32 s36, s36, 7"); a.e(f"s_add_u32 s36, s36, {F_FRONT}")
    a.e(f"v_mov_b32 v{t}, 1"); a.e(f"v_mov_b32 v{t+1}, {LW+4}"); a.e(f"v_lshlrev_b32 v{t+3}, 10, v1")
    a.e("s_mov_b64 exec, 1")
    if wait: a.e("s_waitcnt vmcnt(0)")
    a.e("s_waitcnt lgkmcnt(0)")
    a.e(f"ds_add_rtn_u32 v{t+2}, v{t+1}, v{t}")
    a.e("s_waitcnt lgkmcnt(0)")
    a.e(f"v_readfirstlane_b32 s54, v{t+2}")
    a.e("s_cmp_lg_u32 s54, 15"); a.e(f"s_cbranch_scc1 {D}")
    a.e("s_mov_b64 exec, 0xffff")
    a.e(f"buffer_atomic_add v{t}, v{t+3}, s[56:59], s36 offen {SC}")
    a.e(f"{D}:"); a.e("s_mov_b64 exec, -1")
XR = int(os.environ.get("XR", "1"))
def roles(a):
    if XR: a.e("s_bfe_u32 s32, s52, 0x30001"); a.e("s_add_u32 s32, s32, s2"); a.e("s_and_b32 s32, s32, 7")
    else: a.e("s_and_b32 s32, s2, 7")
    a.e("s_lshr_b32 s33, s2, 3")
    a.e("s_and_b32 s28, s32, 2"); a.e("s_lshr_b32 s53, s32, 2"); a.e("s_or_b32 s28, s28, s53")
    a.e("s_lshl_b32 s28, s28, 2"); a.e("s_and_b32 s53, s33, 3"); a.e("s_add_u32 s28, s28, s53")
    a.e("s_and_b32 s31, s32, 1"); a.e("s_lshr_b32 s33, s33, 2")
    a.e("s_lshl_b32 s29, s31, 3"); a.e("s_add_u32 s29, s29, s33")
    a.e(f"s_xor_b32 s99, s29, {os.environ.get('G1X', '1')}")
    r_addr(a)
def front_a(a):
    cq, tg, t, pt, kr, vv, w, d, hoff, tag, zz = [KV[k] for k in "cq tg t pt kr vv w d hoff tag zz".split()]
    v = VA(80)
    a.e("s_and_b32 s41, s30, 3"); chan_setup(a, 41)
    a.e("s_lshr_b32 s36, s39, 1"); a.e("s_lshl_b32 s36, s36, 2"); a.e("s_load_dword s98, s[96:97], s36")
    a.e("s_lshl_b32 s36, s39, 12")
    a.e("s_add_u32 s12, s14, s36"); a.e("s_addc_u32 s13, s15, 0"); a.e("s_mov_b32 s14, 4096"); a.e("s_mov_b32 s15, 0x20000")
    a.e("s_lshr_b32 s45, s30, 2"); a.e("s_lshl_b32 s45, s45, 11")
    for it in range(3):
        if it < 2: a.e(f"s_add_u32 s36, s45, {(1024*it - 64) & 0xffffffff:#x}")
        else: a.e(f"s_mov_b32 s36, {4096 - 64}")
        a.e(f"v_add_u32 v{hoff+2*it}, s36, v2"); a.e(f"v_add_u32 v{hoff+2*it+1}, 16, v{hoff+2*it}")
    a.e("s_and_b32 s34, s2, 7"); a.e("s_lshr_b32 s35, s2, 3")
    z = v(4, 4); la = v(); t2 = v(); hw = v()
    for i in range(4): a.e(f"v_mov_b32 v{z+i}, 0")
    a.e(f"v_add_u32 v{hw}, s40, v2")
    a.e(f"ds_write_b128 v{hw}, {vr(z,4)} offset:{UOFF+64*US}")
    a.e(f"s_bfm_b64 exec, {(15*US - 1024)//16}, 0"); a.e(f"ds_write_b128 v{hw}, {vr(z,4)} offset:{UOFF+64*US+1024}"); a.e("s_mov_b64 exec, -1")
    a.e(f"v_lshlrev_b32 v{t}, 2, v{tg}"); a.e(f"v_sub_u32 v{t}, 60, v{t}")
    a.e(f"v_lshrrev_b32 v{t2}, 3, v{t}"); a.e(f"v_bfe_u32 v{la}, v{cq}, 1, 3"); a.e(f"v_xor_b32 v{t2}, v{t2}, v{la}"); a.e(f"v_lshlrev_b32 v{t2}, 4, v{t2}")
    a.e(f"v_and_b32 v{t}, 7, v{t}"); a.e(f"v_lshl_add_u32 v{t2}, v{t}, 1, v{t2}")
    a.e(f"v_lshl_add_u32 v{la}, v{cq}, 9, v{t2}"); a.e(f"v_add_u32 v{la}, {KVS}, v{la}")
    wf = v(8, 2); kf = v(14, 2); vf = v(8, 2); ks = v(8, 2); pr = v(8, 2); o = v(8, 4); tm = v(4, 1)
    a.e("s_waitcnt vmcnt(0)")
    if HALO:
        for i in range(3): a.e(f"buffer_load_dwordx2 {vr(kr+2*i,2)}, v{KV['ro']+i}, s[16:19], 0 offen {NTK}")
        if HALO == 1: a.e("s_waitcnt vmcnt(0)")
    a.e("s_cmp_lg_u32 s30, 4"); a.e("s_cbranch_scc1 KV_t1")
    if "g" not in os.environ.get("XP", "g"): a.e(f"buffer_load_dword v{tag}, v{zz}, s[84:87], 0 offen {SC}")
    a.e("KV_t1:")
    for it in range(3):
        a.e(f"buffer_load_dwordx4 {vr(d+6*it,4)}, v{hoff+2*it}, s[12:15], 0 offen {NTH}")
        a.e(f"buffer_load_dwordx2 {vr(d+6*it+4,2)}, v{hoff+2*it+1}, s[12:15], 0 offen {NTH}")
    if HALO == 2: a.e("s_waitcnt vmcnt(10)")
    mstamp(a)
    if KT:
        for e in range(4): a.e(f"v_mov_b32 v{w+4+e}, v{w+e}")
        for e in range(6): a.e(f"v_mov_b32 v{pr+e}, v{kr+8+e}")
        for e in range(4): a.e(f"v_permlane32_swap_b32 v{w+e}, v{w+4+e}")
        for e in range(6): a.e(f"v_permlane32_swap_b32 v{kr+e}, v{pr+e}")
    for dd in range(2):
        for c in range(2):
            unpack(a, wf + 0 + c, wf + 2 + c, w + 2 * (2 * dd + c)); unpack(a, wf + 4 + c, wf + 6 + c, w + 2 * (2 * dd + c) + 1)
        for i in range(7): unpack(a, kf + 2 * i, kf + 2 * i + 1, kr + 2 * i + dd)
        for i in range(4): unpack(a, vf + 2 * i, vf + 2 * i + 1, vv + 2 * i + dd)
        def rnd(base):
            for i in range(4): a.e(f"v_cvt_pk_bf16_f32 v{tm+i}, v{base+2*i}, v{base+2*i+1}")
            for i in range(4): unpack(a, base + 2 * i, base + 2 * i + 1, tm + i)
        for i in range(4): a.e(f"v_pk_mul_f32 {vr(ks+2*i,2)}, {vr(kf+2*i,2)}, {vr(wf+6,2)}")
        if RND: rnd(ks)
        for j in range(1, 4):
            if not RND:
                for i in range(4): a.e(f"v_pk_fma_f32 {vr(ks+2*i,2)}, {vr(kf+2*(i+j),2)}, {vr(wf+6-2*j,2)}, {vr(ks+2*i,2)}")
                continue
            for i in range(4): a.e(f"v_pk_mul_f32 {vr(pr+2*i,2)}, {vr(kf+2*(i+j),2)}, {vr(wf+6-2*j,2)}")
            rnd(pr)
            for i in range(4): a.e(f"v_pk_add_f32 {vr(ks+2*i,2)}, {vr(ks+2*i,2)}, {vr(pr+2*i,2)}")
            rnd(ks)
        for i in range(4): a.e(f"v_pk_mul_f32 {vr(ks+2*i,2)}, {vr(ks+2*i,2)}, {vr(vf+2*i,2)}")
        for c in range(2):
            e = 2 * dd + c
            a.e(f"v_cvt_pk_bf16_f32 v{o+2*e}, v{ks+6+c}, v{ks+4+c}"); a.e(f"v_cvt_pk_bf16_f32 v{o+2*e+1}, v{ks+2+c}, v{ks+c}")
            a.e(f"ds_write_b64 v{la}, {vr(o+2*e,2)} offset:{e*128}")
    a.e("s_cmp_lg_u32 s30, 4"); a.e("s_cbranch_scc1 HB_2")
    a.e(f"v_add_u32 v{pt}, {LW}, v3"); a.e(f"ds_write_b32 v{pt}, v{zz}")
    a.e("s_mov_b32 s53, 0")
    a.e("s_waitcnt vmcnt(6)")
    a.e("HB_p:")
    a.e(f"v_readfirstlane_b32 s52, v{tag}"); a.e("s_cmp_eq_u32 s52, 0"); a.e("s_cbranch_scc1 HB_r")
    a.e("s_cmp_ge_u32 s53, 400"); a.e("s_cbranch_scc1 HB_q")
    a.e("s_add_u32 s54, s46, 8192"); a.e("s_lshl_b32 s54, s54, 6"); a.e("s_sub_u32 s54, s54, s52"); a.e(f"s_cmp_lt_u32 s54, {12288*64}"); a.e("s_cbranch_scc1 HB_q")
    a.e("HB_r:")
    a.e(f"buffer_load_dword v{tag}, v{zz}, s[84:87], 0 offen {SC}"); a.e("s_waitcnt vmcnt(0)")
    a.e("s_add_u32 s53, s53, 1"); a.e("s_cmp_lt_u32 s53, s61"); a.e("s_cbranch_scc1 HB_p")
    a.e("s_mov_b32 s52, 1"); a.e("s_mov_b32 s61, 0")
    a.e("HB_q:")
    lds_set(a, LW + 12, "s52", pt)
    a.e("HB_2:")
    a.srd(16, 4, 8 * GSTR, off=LB0 + oX3)
    ra = v(); go = v(); ob = v(8, 4)
    a.e(f"v_lshrrev_b32 v{t}, 3, v0"); a.e(f"v_and_b32 v{t2}, 7, v0")
    a.e(f"v_lshlrev_b32 v{go}, 12, v{t}"); a.e(f"v_lshl_add_u32 v{go}, v{t2}, 4, v{go}")
    a.e("s_lshl_b32 s36, s34, 24"); a.e("s_sub_u32 s37, 31, s35"); a.e("s_lshl_b32 s37, s37, 7"); a.e("s_add_u32 s36, s36, s37")
    a.e(f"s_add_u32 s37, s36, {64*4096}")
    a.e(f"v_lshrrev_b32 v{ra}, 3, v{t}"); a.e(f"v_xor_b32 v{ra}, v{ra}, v{t2}"); a.e(f"v_lshlrev_b32 v{ra}, 4, v{ra}"); a.e(f"v_lshl_add_u32 v{ra}, v{t}, 7, v{ra}")
    a.e(f"v_add_u32 v{ra}, {KVS}, v{ra}"); a.e(f"v_mov_b32 v{pt}, {LW+12}")
    a.e("s_waitcnt lgkmcnt(0)"); a.e("s_barrier")
    for i in range(2): a.e(f"ds_read_b128 {vr(ob+4*i,4)}, v{ra} offset:{i*8192}")
    a.e(f"ds_read_b32 v{pt+1}, v{pt}")
    for i in range(2):
        a.e(f"s_waitcnt lgkmcnt({2-i})")
        if "1" in DP: mark(a, ob + 4 * i, 1)
        a.e(f"buffer_store_dwordx4 {vr(ob+4*i,4)}, v{go}, s[16:19], s{36+i} offen {SC}")
    a.e("s_waitcnt lgkmcnt(0)"); a.e(f"v_readfirstlane_b32 s52, v{pt+1}")
    a.e("s_cmp_lg_u32 s30, 0"); a.e("s_cbranch_scc1 KV_ni"); a.e("s_cmp_ge_u32 s35, 16"); a.e("s_cbranch_scc1 KV_ni")
    a.e(f"v_mov_b32 v{t}, s52")
    a.e("s_lshl_b32 s37, s34, 7"); a.e("s_lshl_b32 s53, s35, 10"); a.e("s_add_u32 s37, s37, s53"); a.e(f"s_add_u32 s37, s37, {F_FRONT}")
    a.e("s_mov_b64 exec, 1"); a.e(f"buffer_store_dword v{t}, v{zz}, s[56:59], s37 offen {SC}"); a.e("s_mov_b64 exec, -1")
    a.e("KV_ni:")
    a.e(f"s_cmp_ge_u32 s2, {NVOTE}"); a.e("s_cbranch_scc1 KV_n3"); a.e("s_cmp_lg_u32 s30, 5"); a.e("s_cbranch_scc1 KV_n3")
    probe_base(a)
    a.e(f"v_lshrrev_b32 v{t}, 5, v1"); a.e(f"v_mul_u32_u24 v{t}, {8192 - 512}, v{t}"); a.e(f"v_add_u32 v{t}, v{t}, v2")
    a.e(f"buffer_store_dwordx4 {vr(z,4)}, v{t}, s[56:59], s42 offen {SC}")
    a.e("KV_n3:")
    roles(a)
    def pubk():
        a.e("s_lshl_b32 s36, s34, 5"); a.e("s_add_u32 s36, s36, s35"); a.e("s_lshl_b32 s36, s36, 7"); a.e(f"s_add_u32 s36, s36, {F_KVT}")
        mstamp(a)
        QL = int(os.environ.get("QL", "3"))
        if QL == 2: load_q(a)
        publish(a, 0, 8, pt, off=36, flag=True, wait=4 if QL == 2 else 0)
        if QL == 3: load_q(a)
        mstamp(a)
    HF = int(os.environ.get("HF", "0"))
    if not HF: pubk()
    else: a.e("s_waitcnt vmcnt(2)")
    cc = wf; hw2 = v()
    a.e(f"v_add_u32 v{hw2}, s45, v{hw}")
    for it in range(3):
        D = d + 6 * it; c0 = cc + 12 * it; c1 = c0 + 4; c2 = c0 + 8
        for k in range(4):
            a.e(f"v_alignbit_b32 v{c0+k}, v{D+k+1}, v{D+k}, 16")
            a.e(f"v_mov_b32 v{c1+k}, v{D+k+1}")
            a.e(f"v_alignbit_b32 v{c2+k}, v{D+k+2}, v{D+k+1}, 16")
        if it == 2: a.e("s_mov_b64 exec, 0xf")
        ad, o0 = (hw2, 1024 * it) if it < 2 else (hw, 4096)
        a.e(f"ds_write_b128 v{ad}, {vr(c0,4)} offset:{o0}")
        a.e(f"ds_write_b128 v{ad}, {vr(c1,4)} offset:{HSTR+o0}")
        a.e(f"ds_write_b128 v{ad}, {vr(c2,4)} offset:{2*HSTR+o0}")
        a.e(f"ds_write_b128 v{ad}, {vr(D+2,4)} offset:{3*HSTR+o0}")
        if it == 2: a.e("s_mov_b64 exec, -1")
    if HF: pubk()
    assert v.hi <= 176
    a.e("s_waitcnt lgkmcnt(0)"); a.e("s_barrier")
def load_q(a):
    a.srd(8, 6, 4 * MB)
    for j in range(4): a.e(f"buffer_load_dwordx2 {vr(RXA+2*j,2)}, v{RRO}, s[8:11], 0 offen offset:{128*(j>>1) + 32*(j&1)} {os.environ.get('NTQ', NTH)}")
def chan_setup(a, wsg):
    a.e("s_and_b32 s38, s2, 7"); a.e("s_lshl_b32 s38, s38, 5"); a.e("s_lshr_b32 s39, s2, 3"); a.e("s_add_u32 s38, s38, s39")
    a.e("s_lshl_b32 s39, s38, 2"); a.e(f"s_add_u32 s39, s39, s{wsg}")
    a.e(f"s_mul_i32 s40, s{wsg}, {CHB}")

def touch(a, ka, nbytes, r):
    n = nbytes // 1024 // 512
    a.e(f"s_load_dwordx2 s[48:49], s[0:1], {ka}")
    a.e("s_lshl_b32 s45, s2, 1"); a.e("s_and_b32 s50, s30, 1"); a.e("s_add_u32 s45, s45, s50"); a.e(f"s_mul_i32 s45, s45, {n*1024}")
    a.e(f"s_mov_b32 s50, {nbytes}"); a.e("s_mov_b32 s51, 0x20000")
    a.e("s_waitcnt lgkmcnt(0)")
    for i in range(n):
        if i and i % 4 == 0: a.e("s_add_u32 s45, s45, 4096")
        a.e(f"buffer_load_dwordx4 {vr(r,4)}, v2, s[48:51], s45 offen offset:{(i&3)*1024}")
    return n

def w2_warm(a):
    a.e("s_mov_b64 s[48:49], s[70:71]"); a.e(f"s_mov_b32 s50, {2*MB}"); a.e("s_mov_b32 s51, 0x20000")
    a.e("s_and_b32 s45, s28, 3"); a.e("s_lshl_b32 s45, s45, 1"); a.e("s_and_b32 s46, s30, 1"); a.e("s_add_u32 s45, s45, s46"); a.e("s_lshl_b32 s45, s45, 18")
    a.e("s_lshl_b32 s46, s29, 7"); a.e("s_add_u32 s45, s45, s46"); a.e("v_lshlrev_b32 v245, 11, v1")
    a.e("buffer_load_dword v244, v245, s[48:51], s45 offen"); a.e(f"s_add_u32 s45, s45, {64*2048}"); a.e("buffer_load_dword v246, v245, s[48:51], s45 offen")
def cs_load(a, which, slot):
    w_setup(a, which, pre=False)
    a.e(f"s_mov_b32 s42, {slot}"); a.e("s_mov_b32 s44, s28")
    w_issue(a, which, direct=True)
CSEL, CFR, CAD, CACC, CSO_ = 16, 72, 144, 156, 164
def cs_prep(a, S1, S3):
    a.e(f"v_and_b32 v{CSO_}, 15, v1"); a.e(f"v_mov_b32 v{CSO_+1}, 0x3f803f80")
    for T in range(14):
        a.e(f"v_cmp_eq_u32 vcc, {T}, v{CSO_}")
        for e in range(4): a.e(f"v_cndmask_b32 v{CSEL+4*T+e}, 0, v{CSO_+1}, vcc")
    pos = {}
    for which, slot, r0, halves in ((1, S1, CAD, 1), (3, S3, CAD + 4, 2)):
        c = CFG[which]
        for hf in range(halves):
            a.e(f"s_mov_b32 s35, {hf}")
            nr, pos[which] = w_bases(a, which, r0 + 2 * hf, 35, c["TN16"] // halves, WV + 8, WV + 9)
            a.e("s_and_b32 s35, s30, 1"); a.e(f"s_mul_i32 s35, s35, {32*c['RB']}"); a.e(f"s_add_u32 s35, s35, {slot}")
            for i in range(nr): a.e(f"v_add_u32 v{r0+2*hf+i}, s35, v{r0+2*hf+i}")
    for i in range(8): a.e(f"v_mov_b32 v{CACC+i}, 0")
    a.e(f"v_lshrrev_b32 v{CSO_+2}, 4, v1"); a.e(f"v_lshlrev_b32 v{CSO_+2}, 4, v{CSO_+2}"); a.e(f"v_lshl_add_u32 v{CSO_+2}, v{CSO_}, 6, v{CSO_+2}")
    a.e(f"v_mov_b32 v{CSO_+1}, 0x7f000000")
    for k, n in ((3, 4), (4, 14)):
        a.e(f"v_cmp_gt_u32 vcc, {n}, v{CSO_}"); a.e(f"v_cndmask_b32 v{CSO_+k}, v{CSO_+1}, v{CSO_+2}, vcc")
    return pos
def cs_sum(a, which, pos):
    c = CFG[which]; ntl = c["TN16"]; N = c["LDW"] // 2
    F = CFR + (0 if which == 3 else 56); A = CACC + (0 if which == 3 else 4)
    for T in range(ntl):
        hf, nt = (T // 7, T % 7) if which == 3 else (0, T)
        for h in range(2):
            r, imm = pos[which](nt, 0, h)
            a.e(f"ds_read_b64_tr_b16 {vr(F+4*T+2*h,2)}, v{(CAD + 4 if which == 3 else CAD) + 2*hf + r} offset:{imm}")
    a.srd(20, 4, 32 * N * 4, off=CSP[which])
    a.e("s_lshl_b32 s35, s28, 1"); a.e("s_and_b32 s36, s30, 1"); a.e("s_add_u32 s35, s35, s36"); a.e(f"s_mul_i32 s35, s35, {N*4}")
    a.e(f"s_mul_i32 s36, s29, {ntl*64}"); a.e("s_add_u32 s35, s35, s36")
    a.e("s_waitcnt lgkmcnt(0)")
    for T in range(ntl): a.e(f"v_mfma_f32_16x16x32_bf16 {vr(A,4)}, {vr(F+4*T,4)}, {vr(CSEL+4*T,4)}, {vr(A,4)}")
    a.e(f"buffer_store_dwordx4 {vr(A,4)}, v{CSO_ + (4 if which == 3 else 3)}, s[20:23], s35 offen {SC}")

NOCS3 = int(os.environ.get("NOCS3", "0")); STO = os.environ.get("STOUCH", "")
def stouch(a, which, gran, nw):
    X = a.lab("st"); L = a.lab("sl"); n = 28672 // nw
    a.e("s_cmp_lg_u32 s60, 0"); a.e(f"s_cbranch_scc1 {X}")
    a.e(f"s_mul_i32 s36, s2, 28672"); a.e(f"s_and_b32 s37, s30, {nw-1}"); a.e(f"s_mul_i32 s37, s37, {n}"); a.e("s_add_u32 s36, s36, s37")
    a.e(f"s_add_u32 s34, s{66+2*which}, s36"); a.e(f"s_addc_u32 s35, s{67+2*which}, 0"); a.e("s_mov_b32 s36, 0")
    a.e(f"{L}:")
    for i in range(14): a.e(f"s_load_dword s37, s[34:35], {i*gran}")
    a.e(f"s_add_u32 s34, s34, {14*gran}"); a.e("s_addc_u32 s35, s35, 0"); a.e("s_add_u32 s36, s36, 1"); a.e(f"s_cmp_lt_u32 s36, {n // (14*gran)}"); a.e(f"s_cbranch_scc1 {L}")
    a.e("s_waitcnt lgkmcnt(0)")
    a.e(f"{X}:")
SB = eval(os.environ.get("SB", "(0,0,0)"))
SG = eval(os.environ.get("SG", "(0,0,0,0)"))
def sg(a, n):
    if not n: return
    X = a.lab("st"); L = a.lab("sl")
    a.e("s_cmp_lg_u32 s60, 0"); a.e(f"s_cbranch_scc1 {X}"); a.e("s_mov_b32 s36, 0"); a.e(f"{L}:"); sb(a, 14)
    a.e("s_add_u32 s36, s36, 1"); a.e(f"s_cmp_lt_u32 s36, {n}"); a.e(f"s_cbranch_scc1 {L}"); a.e("s_waitcnt lgkmcnt(0)"); a.e(f"{X}:"); mstamp(a)
def sb_init(a):
    nw = 2 if sum(SG) else 4
    a.e(f"s_mul_i32 s36, s2, 28672"); a.e(f"s_and_b32 s37, s30, {nw-1}"); a.e(f"s_mul_i32 s37, s37, {28672//nw}"); a.e("s_add_u32 s36, s36, s37")
    SW = 66 + 2 * int(os.environ.get("SGW", "3"))
    a.e(f"s_add_u32 s90, s{SW}, s36"); a.e(f"s_addc_u32 s91, s{SW+1}, 0")
def sb(a, n):
    for i in range(n): a.e(f"s_load_dword s101, s[90:91], {i*64}")
    if n: a.e(f"s_add_u32 s90, s90, {n*64}"); a.e("s_addc_u32 s91, s91, 0")
PUTE = int(os.environ.get("PUTE", "1"))
def front_b(a):
    pt, dm = 6, 20
    vd = 12; VG = int(os.environ.get("VG", "0")); VE = int(os.environ.get("VE", "1"))
    def vote():
        a.e(f"s_cmp_ge_u32 s2, {NVOTE}"); a.e("s_cbranch_scc1 FB_np"); a.e("s_cmp_lg_u32 s30, 5"); a.e("s_cbranch_scc1 FB_np")
        probe_base(a); a.e(f"v_mov_b32 v{vd+2}, 0")
        if os.environ.get("SPR", "1") == "1":
            a.e("s_mov_b64 exec, 1"); a.e("s_mov_b32 s46, -1"); a.e("s_mov_b32 s47, -1")
            a.e("s_add_u32 s48, s4, s42"); a.e("s_addc_u32 s49, s5, 0")
            a.e("s_load_dword s101, s[48:49], 384"); a.e("s_waitcnt lgkmcnt(0)"); a.e("s_memtime s[34:35]"); a.e("s_waitcnt lgkmcnt(0)")
            for k in range(2 * NSAMP):
                p_, q_ = (34, 36) if k % 2 == 0 else (36, 34)
                a.e(f"s_load_dword s101, s[48:49], {(k & 1) * 8192 + (k >> 1) * 128}"); a.e("s_waitcnt lgkmcnt(0)"); a.e(f"s_memtime s[{q_}:{q_+1}]"); a.e("s_waitcnt lgkmcnt(0)")
                a.e(f"s_sub_u32 s43, s{q_}, s{p_}"); a.e(f"s_min_u32 s{46+(k&1)}, s{46+(k&1)}, s43")
        else:
            a.e("s_mov_b64 exec, 1"); a.e("s_mov_b32 s46, -1"); a.e("s_mov_b32 s47, -1"); a.e("s_mov_b32 s43, 0")
            a.e("FB_ml:")
            for i in range(2):
                a.e(f"s_add_u32 s45, s42, {i * 8192}")
                a.e("s_memtime s[34:35]"); a.e("s_waitcnt lgkmcnt(0)")
                a.e(f"buffer_load_dword v{vd+1}, v{vd+2}, s[56:59], s45 offen {SC}"); a.e("s_waitcnt vmcnt(0)")
                a.e("s_memtime s[36:37]"); a.e("s_waitcnt lgkmcnt(0)")
                a.e("s_sub_u32 s36, s36, s34"); a.e(f"s_min_u32 s{46+i}, s{46+i}, s36")
            a.e("s_add_u32 s42, s42, 128"); a.e("s_add_u32 s43, s43, 1"); a.e(f"s_cmp_lt_u32 s43, {NSAMP}"); a.e("s_cbranch_scc1 FB_ml")
        a.e("s_cmp_lt_u32 s47, s46"); a.e("s_cselect_b32 s45, 1, 0")
        a.e("s_lshr_b32 s46, s28, 2"); a.e("s_xor_b32 s45, s45, s46"); a.e("s_and_b32 s45, s45, 1"); a.e("s_lshl_b32 s45, s45, 8")
        a.e("s_or_b32 s43, s45, 1"); a.e(f"v_mov_b32 v{vd}, s43")
        a.e(f"buffer_atomic_add v{vd}, v{vd+2}, s[84:87], 0 offen offset:4 sc0 {SC}"); a.e("s_waitcnt vmcnt(0)")
        a.e(f"v_readfirstlane_b32 s36, v{vd}"); a.e("s_add_u32 s36, s36, s43"); a.e("s_and_b32 s37, s36, 255"); a.e(f"s_cmp_lg_u32 s37, {QUO}"); a.e("s_cbranch_scc1 FB_np")
        a.e("s_lshr_b32 s36, s36, 8"); a.e("s_lshl_b32 s36, s36, 1"); a.e("s_add_u32 s36, s36, s52"); a.e("s_bfm_b64 exec, 32, 0")
        a.e(f"v_mov_b32 v{vd}, s36"); a.e(f"v_lshlrev_b32 v{vd+1}, 7, v1"); a.e(f"s_mov_b32 s36, {F_RES}"); a.e(f"buffer_store_dword v{vd}, v{vd+1}, s[56:59], s36 offen {SC}")
        a.e("FB_np:")
        a.e("s_mov_b64 exec, -1")
        if VG:
            a.e("s_cmp_lg_u32 s30, 5"); a.e("s_cbranch_scc1 FB_ng")
            a.e(f"v_mov_b32 v{pt}, {LW+20}"); a.e(f"v_mov_b32 v{pt+1}, 1"); a.e("s_mov_b64 exec, 1"); a.e(f"ds_add_u32 v{pt}, v{pt+1}"); a.e("s_mov_b64 exec, -1")
            a.e("FB_ng:")
    if VE: vote()
    PZE = int(os.environ.get("PZE", "0"))
    if PZE:
        a.srd(20, 4, 32 * MB, off=216 * MB)
        for i in range(4): a.e(f"v_mov_b32 v{216+i}, -1")
        a.e("s_lshl_b32 s45, s2, 2"); a.e("s_and_b32 s50, s30, 3"); a.e("s_add_u32 s45, s45, s50"); a.e(f"s_mul_i32 s45, s45, {PZE*1024}")
        for i in range(PZE):
            a.e(f"buffer_store_dwordx4 v[216:219], v2, s[20:23], s45 offen {SC}"); a.e("s_add_u32 s45, s45, 1024")
    if TAB: tab_load(a)
    TE = int(os.environ.get("TE", "0"))
    if TE:
        a.e("s_cmp_ge_u32 s30, 6"); a.e("s_cbranch_scc1 FB_t1"); touch(a, B_W2, 2 * MB, dm); a.e("s_branch FB_t2"); a.e("FB_t1:"); touch(a, B_W1, 2 * MB, 200); a.e("FB_t2:")
    w_lanes(a)
    a.e("s_cmp_ge_u32 s30, 6"); a.e("s_cbranch_scc1 FB_cs")
    if not VE: vote()
    mstamp(a)
    a.e("s_cmp_lg_u32 s30, 4"); a.e("s_cbranch_scc1 FB_ni")
    a.e(f"v_mov_b32 v{vd}, s52")
    group_off(a, 37, 28); a.e("s_andn2_b32 s37, s37, 0x2000"); a.e("s_lshl_b32 s53, s29, 7"); a.e("s_add_u32 s37, s37, s53"); a.e(f"s_add_u32 s37, s37, {oSM}")
    a.e(f"v_and_b32 v{vd+1}, 1, v1"); a.e(f"v_lshlrev_b32 v{vd+1}, 13, v{vd+1}"); a.e(f"v_lshrrev_b32 v{vd+2}, 1, v1"); a.e(f"v_lshl_add_u32 v{vd+1}, v{vd+2}, 22, v{vd+1}")
    a.e("s_mov_b64 exec, 0xf"); a.e(f"buffer_store_dword v{vd}, v{vd+1}, s[56:59], s37 offen {SC}")
    a.e("s_cmp_lg_u32 s28, 0"); a.e("s_cbranch_scc1 FB_n2")
    a.e(f"s_add_u32 s37, s53, {F_CS}"); a.e("s_mov_b64 exec, 1"); a.e(f"buffer_store_dword v{vd}, v{vd+1}, s[56:59], s37 offen {SC}")
    a.e("FB_n2:")
    a.e("s_mov_b64 exec, -1")
    a.e("FB_ni:")
    UG = (LW + 20, 4 + VG) if os.environ.get("UG", "1") == "1" else (LW + 16, 1)
    lds_spin(a, *UG, pt, nap=2)
    mstamp(a)
    if TLBW:
        a.e("s_cmp_lg_u32 s30, 5"); a.e("s_cbranch_scc1 FB_nt")
        a.e(f"v_and_b32 v{vd}, 7, v1"); a.e(f"v_lshlrev_b32 v{vd}, 24, v{vd}"); a.e(f"v_lshrrev_b32 v{vd+1}, 3, v1"); a.e(f"v_lshl_add_u32 v{vd}, v{vd+1}, 22, v{vd}")
        a.e("s_lshl_b32 s36, s2, 7"); a.e(f"s_add_u32 s36, s36, {LB0 + 2 * MB - 65536}")
        a.e(f"s_bfm_b64 exec, {8 * TLBW}, 0"); a.e(f"buffer_load_dword v{dm+4}, v{vd}, s[56:59], s36 offen {SC}"); a.e("s_mov_b64 exec, -1")
        a.e("FB_nt:")
    if os.environ.get("W2T", "1") == "2": lds_spin(a, LW + 24, 2, pt, nap=4)
    if os.environ.get("W2T", "1") == "3":
        w_srd(a, 2); a.e("s_lshl_b32 s39, s28, 1"); a.e("s_and_b32 s36, s30, 1"); a.e("s_add_u32 s39, s39, s36"); a.e("s_lshl_b32 s39, s39, 16"); a.e("s_lshl_b32 s36, s29, 7"); a.e("s_add_u32 s39, s39, s36")
        for i in range(4): a.e(f"buffer_load_dwordx4 {vr(dm,4)}, v{WVB[2]}, s[12:15], s39 offen"); a.e("s_add_u32 s39, s39, 16384")
    elif os.environ.get("W2T", "1") != "0" and not TE: touch(a, B_W2, 2 * MB, dm)
    QL = int(os.environ.get("QL", "3"))
    if not QL: load_q(a)
    if W4POS == "F": lds_spin(a, LW + 24, 2, pt, nap=4); a.e("s_waitcnt vmcnt(0)")
    if W4POS in ("F", "F0"): touch(a, B_W4, 7 * MB, dm)
    PZF = int(os.environ.get("PZF", "0"))
    if PZF:
        a.srd(20, 4, 32 * MB, off=216 * MB)
        for i in range(4): a.e(f"v_mov_b32 v{216+i}, -1")
        a.e("s_lshl_b32 s45, s2, 1"); a.e("s_and_b32 s50, s30, 1"); a.e("s_add_u32 s45, s45, s50"); a.e(f"s_mul_i32 s45, s45, {PZF*1024}")
        for i in range(PZF):
            a.e(f"buffer_store_dwordx4 v[216:219], v2, s[20:23], s45 offen {SC}"); a.e("s_add_u32 s45, s45, 1024")
            if os.environ.get("PZP"): a.e(f"s_waitcnt vmcnt({os.environ['PZP']})")
    front_arrive(a, True)
    if TAB: tab_make(a, 0)
    PKW = int(os.environ.get("PKW", "2")); PKP = int(os.environ.get("PKP", "8"))
    W1P = int(os.environ.get("W1P", "8")); FO = os.environ.get("FO", "1pd"); FO2 = os.environ.get("FO2", "1pd")
    R1 = [176, 188, 192] + [200 + 4 * i for i in range(7)] + [16 + 4 * i for i in range(8)]
    def w1_regs(a):
        w_srd(a, 1)
        a.e("s_and_b32 s35, s30, 3"); a.e(f"s_mul_i32 s35, s35, {18*16384}"); a.e("s_lshl_b32 s39, s99, 7"); a.e("s_add_u32 s39, s39, s35")
        for q in range(18):
            a.e(f"buffer_load_dwordx4 {vr(R1[q],4)}, v{WVB[1]}, s[12:15], s39 offen"); a.e("s_add_u32 s39, s39, 16384")
            if q % 4 == 3: sb(a, SB[1])
            if PKP and q % 4 == 3: a.e(f"s_waitcnt vmcnt({PKP})")
        if QL == 1: load_q(a)
    def w1_put(a):
        a.e("s_and_b32 s35, s30, 3"); a.e(f"s_mul_i32 s35, s35, {18*1024}"); a.e("v_add_u32 v8, s35, v2")
        if PUTE: lds_spin(a, LW + 20, 8 + VG, pt, nap=2)
        else: lds_spin(a, LW + 4, 16, pt, nap=2)
        PV0 = int(os.environ.get("PV0", "1")); assert not PV0 or (FO[0] == "1" and FO2[0] == "1" and "p" in FO and "p" in FO2)
        a.e(f"s_waitcnt vmcnt({32 if PV0 else 0})")
        for q in range(18): a.e(f"ds_write_b128 v8, {vr(R1[q],4)} offset:{CFG[1]['WB'] + 1024*q}")
        a.e("s_waitcnt lgkmcnt(0)")
    def w1_dma(a, js):
        lds_spin(a, LW + 24, 4, pt, nap=3)
        w_setup(a, 1, pre=False)
        for j in js: w1_slots(a, (j,), pace=W1P); ypause(a)
    DS_ = int(os.environ.get("DSPL", "12"))
    if PKW: lds_spin(a, LW + 24, PKW, pt, nap=4)
    for i_, ch in enumerate(FO):
        if ch == "d": w1_dma(a, range(9, DS_))
        else: call(a, {"1": w1_regs, "p": park}[ch])
    mstamp(a)
    call(a, w1_put)
    a.e("s_branch FR_end")
    a.e("FB_cs:")
    S1, S3 = KVS - CFG[1]["WB"], KVS + 8192 - CFG[3]["WB"]
    pos = cs_prep(a, S1, S3)
    lds_spin(a, *UG, pt, nap=2)
    mstamp(a)
    if not QL: load_q(a)
    cs_load(a, 1, S1)
    if not NOCS3: cs_load(a, 3, S3)
    a.e(f"s_waitcnt vmcnt({0 if NOCS3 else 14})")
    if CSPRIO: a.e(f"s_setprio {CSPRIO}")
    cs_sum(a, 1, pos)
    a.e("s_waitcnt vmcnt(1)")
    a.e(f"v_mov_b32 v{pt}, {LW+24}"); a.e(f"v_mov_b32 v{pt+1}, 1")
    a.e("s_mov_b64 exec, 1"); a.e(f"ds_add_u32 v{pt}, v{pt+1}"); a.e("s_mov_b64 exec, -1")
    mstamp(a)
    if not NOCS3: cs_sum(a, 3, pos)
    front_arrive(a, False)
    if TAB: tab_make(a, 1)
    a.e(f"v_mov_b32 v{pt}, {LW+24}"); a.e(f"v_mov_b32 v{pt+1}, 1")
    a.e("s_mov_b64 exec, 1"); a.e(f"ds_add_u32 v{pt}, v{pt+1}"); a.e("s_mov_b64 exec, -1")
    mstamp(a)
    a.e("s_setprio 0")
    assert CFG[1]["WB"] + 9 * 8192 == KVS
    for ch in FO2:
        if ch == "d": w1_dma(a, range(DS_, 16))
        else: call(a, {"1": w1_regs, "p": park}[ch])
    mstamp(a)
    call(a, w1_put)

PG = int(os.environ.get("PG", "0"))
def front_conv(a):
    v = VA(6); lane = 1; l16 = 2
    t = v(); pt = v(4, 2)
    chan_setup(a, 30)
    a.e("s_and_b32 s36, s39, 127"); a.e("s_lshl_b32 s36, s36, 12"); a.e("s_lshr_b32 s37, s39, 7"); a.e("s_lshl_b32 s37, s37, 24")
    a.e("s_add_u32 s36, s36, s37"); a.e(f"s_add_u32 s36, s36, {LB0 + oX3}")
    a.e("s_add_u32 s16, s4, s36"); a.e("s_addc_u32 s17, s5, 0"); a.e("s_mov_b32 s18, 4096"); a.e("s_mov_b32 s19, 0x20000")
    uw = v(); u = v(16, 4)
    a.e(f"v_lshrrev_b32 v{t}, 2, v{lane}"); a.e(f"v_mul_u32_u24 v{uw}, {US}, v{t}"); a.e(f"v_and_b32 v{t}, 3, v{lane}")
    a.e(f"v_lshl_add_u32 v{uw}, v{t}, 4, v{uw}"); a.e(f"v_add_u32 v{uw}, s40, v{uw}")
    aa = v(); ba = v(); ua = v(); J = v(); G = v()
    a.e(f"v_and_b32 v{J}, 15, v{lane}"); a.e(f"v_lshrrev_b32 v{G}, 4, v{lane}")
    a.e(f"v_and_b32 v{t}, 3, v{J}"); a.e(f"v_mul_u32_u24 v{aa}, {HSTR}, v{t}")
    a.e(f"v_lshl_add_u32 v{aa}, v{G}, 4, v{aa}"); a.e(f"v_lshrrev_b32 v{t}, 2, v{J}"); a.e(f"v_lshl_add_u32 v{aa}, v{t}, 3, v{aa}")
    a.e(f"v_add_u32 v{aa}, s40, v{aa}")
    a.e(f"v_sub_u32 v{t}, 15, v{J}"); a.e(f"v_mul_u32_u24 v{ua}, {US}, v{t}"); a.e(f"v_add_u32 v{ua}, s40, v{ua}")
    a.e(f"v_lshl_add_u32 v{ba}, v{G}, 4, v{ua}")
    acc = v(32, 4)
    fa = v(64, 4); fb = v(32, 4)
    def rdA(p, o):
        return [f"ds_read_b64 {vr(fa+32*p+8*s_+4*mt+2*h,2)}, v{aa} offset:{64*(o+16*s_) + 32*mt + 8*h}" for s_ in range(4) for mt in range(2) for h in range(2)]
    def rdB(p, o):
        return [f"ds_read_b128 {vr(fb+16*p+4*k,4)}, v{ba} offset:{UOFF + (48 - 16*k + o)*US}" for k in range(4)]
    for x in rdA(0, 0): a.e(x)
    dm_ = fb + 16; Dv = pt + 2
    a.e("s_bitcmp1_b32 s39, 0"); a.e("s_cselect_b32 s36, 0, 16"); a.e("s_lshl_b32 s41, s98, s36"); a.e("s_and_b32 s41, s41, 0xffff0000"); a.e("s_lshr_b32 s36, s41, 16")
    a.e(f"v_lshl_add_u32 v{t}, v{G}, 3, v{J}"); a.e(f"v_sub_u32 v{t}, 31, v{t}")
    a.e(f"v_mov_b32 v{Dv}, s36"); a.e(f"v_mov_b32 v{Dv+1}, s41"); a.e(f"v_and_b32 v{pt}, 1, v{t}"); a.e(f"v_cmp_eq_u32 vcc, 1, v{pt}")
    a.e(f"v_cndmask_b32 v{Dv}, v{Dv}, v{Dv+1}, vcc"); a.e(f"v_ashrrev_i32 v{t}, 1, v{t}")
    for mt in range(2):
        for d_ in range(4): a.e(f"v_cmp_eq_u32 vcc, {8*mt+d_}, v{t}"); a.e(f"v_cndmask_b32 v{dm_+4*mt+d_}, 0, v{Dv}, vcc")
    a.srd(12, 4, 8 * GSTR - oHS, off=LB0 + oHS)
    ta = v(); go = v()
    a.e(f"v_bfe_u32 v{t}, v{lane}, 2, 2"); a.e(f"v_mul_u32_u24 v{ta}, {CHB+64}, v{t}")
    a.e(f"v_lshrrev_b32 v{t}, 1, v{G}"); a.e(f"v_mul_u32_u24 v{t}, 72, v{t}"); a.e(f"v_add_u32 v{ta}, v{ta}, v{t}")
    a.e(f"v_and_b32 v{t}, 1, v{G}"); a.e(f"v_lshl_add_u32 v{ta}, v{t}, 5, v{ta}")
    a.e(f"v_and_b32 v{t}, 3, v{lane}"); a.e(f"v_lshl_add_u32 v{ta}, v{t}, 3, v{ta}")
    a.e(f"s_mul_i32 s36, s30, {16*72}"); a.e(f"v_add_u32 v{ta}, s36, v{ta}")
    a.e(f"v_lshlrev_b32 v{go}, 3, v{lane}")
    a.e("s_lshr_b32 s44, s38, 4"); a.e("s_lshl_b32 s44, s44, 14"); a.e("s_and_b32 s37, s38, 15"); a.e("s_lshl_b32 s37, s37, 9"); a.e("s_add_u32 s44, s44, s37")
    a.e("s_and_b32 s37, s30, 1"); a.e("s_lshl_b32 s37, s37, 13"); a.e("s_add_u32 s44, s44, s37")
    a.e("s_lshr_b32 s37, s30, 1"); a.e("s_lshl_b32 s37, s37, 26"); a.e("s_add_u32 s44, s44, s37")
    ev = ua; a.e(f"v_not_b32 v{ev}, v{lane}"); a.e(f"v_and_b32 v{ev}, 1, v{ev}")
    ya = v()
    a.e(f"s_mul_i32 s36, s30, {CHB+64}")
    a.e(f"v_mul_u32_u24 v{ya}, 72, v{J}"); a.e(f"v_lshl_add_u32 v{ya}, v{G}, 3, v{ya}"); a.e(f"v_add_u32 v{ya}, s36, v{ya}")
    a.e(f"v_mov_b32 v{J}, 0"); a.e("s_and_b32 s45, s2, 31"); a.e("s_lshl_b32 s45, s45, 7"); a.e(f"s_add_u32 s45, s45, {F_RES}")
    a.e("s_cmp_lg_u32 s30, 0"); a.e("s_cbranch_scc1 CV_w")
    a.e("s_and_b32 s36, s2, 7"); a.e("s_lshl_b32 s36, s36, 12"); a.e(f"s_add_u32 s36, s36, {F_KVT}")
    a.e(f"v_lshlrev_b32 v{pt+1}, 7, v{lane}"); a.e(f"v_add_u32 v{pt+1}, s36, v{pt+1}")
    poll_core(a, pt, [pt + 1], 0xffffffff)
    lds_set(a, LW + 16, 1, pt)
    a.e("CV_w:")
    lds_spin(a, LW + 16, 1, pt)
    mstamp(a)
    for it in range(4): a.e(f"buffer_load_dwordx4 {vr(u+4*it,4)}, v{l16}, s[16:19], 0 offen offset:{1024*it} {os.environ.get('UF', SC + ' nt')}")
    QL = int(os.environ.get("QL", "3"))
    if not QL: load_q(a)
    for it in range(4):
        a.e(f"s_waitcnt vmcnt({(3 if QL else 7)-it})")
        a.e(f"ds_write_b128 v{uw}, {vr(u+4*it,4)} offset:{UOFF + 16*US*it}")
    a.e(f"v_mov_b32 v{pt}, {LW+20}"); a.e(f"v_mov_b32 v{pt+1}, 1")
    a.e("s_mov_b64 exec, 1"); a.e(f"ds_add_u32 v{pt}, v{pt+1}"); a.e("s_mov_b64 exec, -1")
    a.e("s_waitcnt lgkmcnt(0)")
    mstamp(a)
    for x in rdB(0, 0): a.e(x)
    for c_ in range(4):
        a.e(f"s_waitcnt lgkmcnt({3-c_})")
        for mt in range(2): a.e(f"v_mfma_f32_16x16x32_bf16 {vr(acc+8*c_+4*mt,4)}, {vr(dm_+4*mt,4)}, {vr(fb+4*c_,4)}, 0")
    def step(p, nxt, tail, piped=False):
        a.e(f"s_waitcnt lgkmcnt({10 if piped else 0})")
        mf = [(c_, s_, mt) for s_ in range(4) for mt in range(2) for c_ in range(s_, 4)]
        for i, (c_, s_, mt) in enumerate(mf):
            A = acc + 8 * c_ + 4 * mt
            a.e(f"v_mfma_f32_16x16x32_bf16 {vr(A,4)}, {vr(fa+32*p+8*s_+4*mt,4)}, {vr(fb+16*p+4*(c_-s_),4)}, {vr(A,4)}")
            if nxt: a.e(nxt.pop(0))
            if piped and i == 9: a.e("s_waitcnt lgkmcnt(10)")
            for x in tail.pop(i, []) if tail else []: a.e(x)
        assert not nxt and not tail
    a.e("s_mov_b32 s43, 0")
    NU = int(os.environ.get("NU", "4")); HP = int(os.environ.get("HP", "0"))
    if NU:
        a.e("CV_r:")
        for p in range(2):
            rd = rdB(1 - p, p + 1) + rdA(1 - p, p + 1)
            step(p, rd[:HP], [])
            for x in rd[HP:]: a.e(x)
        for x in [f"v_add_u32 v{aa}, 128, v{aa}", f"v_add_u32 v{ba}, {2*US}, v{ba}", "s_add_u32 s43, s43, 1", f"s_cmp_lt_u32 s43, {NU}"]: a.e(x)
        a.e("s_cbranch_scc1 CV_r")
    if QL == 1: load_q(a)
    a.e("CV_l:")
    step(0, rdB(1, 1) + rdA(1, 1), {1: [f"s_cmp_eq_u32 s43, {os.environ.get('VT', '5')}"], 2: ["s_cselect_b64 exec, 1, 0", f"buffer_load_dword v{uw}, v{J}, s[56:59], s45 offen {SC}", "s_mov_b64 exec, -1"]}, True)
    step(1, rdB(0, 2) + rdA(0, 2), {19: [f"v_add_u32 v{aa}, 128, v{aa}"], 5: [f"v_add_u32 v{ba}, {2*US}, v{ba}"], 6: ["s_add_u32 s43, s43, 1"], 7: ["s_cmp_lt_u32 s43, 8"]}, True)
    a.e("s_cbranch_scc1 CV_l")
    mstamp(a)
    a.e("s_waitcnt lgkmcnt(0)")
    for c_ in range(4):
        for mt in range(2):
            A = acc + 8 * c_ + 4 * mt; O = u + 2 * (c_ * 2 + mt)
            a.e(f"v_cvt_pk_bf16_f32 v{O}, v{A}, v{A+1}"); a.e(f"v_cvt_pk_bf16_f32 v{O+1}, v{A+2}, v{A+3}")
            a.e(f"ds_write_b64 v{ya}, {vr(O,2)} offset:{c_*16*72 + mt*32}")
    a.e("s_mov_b32 s53, 0"); a.e("s_waitcnt vmcnt(0)")
    a.e("CV_v:")
    a.e(f"v_readfirstlane_b32 s94, v{uw}"); a.e("s_sub_u32 s94, s94, s52"); a.e("s_and_b32 s37, s94, 0xfffffe01"); a.e("s_cbranch_scc0 CV_k")
    a.e(f"buffer_load_dword v{uw}, v{J}, s[56:59], s45 offen {SC}"); a.e("s_waitcnt vmcnt(0)")
    a.e("s_add_u32 s53, s53, 1"); a.e("s_cmp_lt_u32 s53, s61"); a.e("s_cbranch_scc1 CV_v"); a.e("s_mov_b32 s61, 0"); a.e("s_mov_b32 s94, 0")
    a.e("CV_k:")
    a.e("s_lshr_b32 s94, s94, 1"); a.e("s_add_u32 s37, s94, 65536"); a.e(f"v_mov_b32 v{pt}, {LW+28}"); a.e(f"v_mov_b32 v{pt+1}, s37"); a.e(f"ds_write_b32 v{pt}, v{pt+1}")
    a.e(f"s_cmp_gt_u32 s94, {QUO // 2}"); a.e("s_cselect_b32 s37, 0x2000, 0"); a.e("s_xor_b32 s44, s44, s37")
    lbar(a, 1, pt)
    for i in range(8): a.e(f"ds_read_b64_tr_b16 {vr(fa+32+2*i,2)}, v{ta} offset:{144*i}")
    for i in range(8):
        a.e(f"s_waitcnt lgkmcnt({7-i})")
        a.e(f"v_or_b32 v{fa+32+2*i}, v{ev}, v{fa+32+2*i}")
        a.e(f"buffer_store_dwordx2 {vr(fa+32+2*i,2)}, v{go}, s[12:15], s44 offen {SC}")
        a.e(f"s_add_u32 s44, s44, {GSTR - 262144 if i & 1 else 262144}")
    if PUTE:
        a.e(f"v_mov_b32 v{pt}, {LW+20}"); a.e(f"v_mov_b32 v{pt+1}, 1")
        a.e("s_mov_b64 exec, 1"); a.e(f"ds_add_u32 v{pt}, v{pt+1}"); a.e("s_mov_b64 exec, -1")
    assert v.hi <= 176

PK = 48; W3S = 176
RFO, RYO, RRO, RI, RXA, RXB, RYY, RT = 196, 197, 198, 199, 180, 188, 230, 228
def r_addr(a, full=True):
    t, t2, I, fo, ro, yo = RT, RT + 1, RI, RFO, RRO, RYO
    a.e(f"v_and_b32 v{I}, 7, v0")
    a.e(f"v_lshrrev_b32 v{t}, 6, v0"); a.e(f"v_lshlrev_b32 v{t}, 4, v{t}"); a.e(f"v_bfe_u32 v{t2}, v0, 3, 3"); a.e(f"v_add_u32 v{t}, v{t}, v{t2}")
    a.e("s_lshr_b32 s78, s29, 1"); a.e("s_lshl_b32 s78, s78, 16"); a.e("s_and_b32 s79, s29, 1"); a.e("s_lshl_b32 s79, s79, 7"); a.e("s_add_u32 s78, s78, s79")
    a.e("s_lshr_b32 s79, s30, 1"); a.e("s_lshl_b32 s79, s79, 13"); a.e("s_add_u32 s78, s78, s79")
    a.e(f"v_lshlrev_b32 v{fo}, 8, v{t}"); a.e(f"v_lshl_add_u32 v{fo}, v{I}, 4, v{fo}"); a.e(f"v_add_u32 v{fo}, s78, v{fo}")
    if not full: return
    a.e("s_lshl_b32 s78, s28, 7"); a.e("s_lshl_b32 s79, s29, 3"); a.e("s_add_u32 s78, s78, s79")
    a.e(f"v_add_u32 v{yo}, s78, v{I}"); a.e(f"v_lshlrev_b32 v{ro}, 11, v{yo}")
    a.e(f"v_lshrrev_b32 v{t2}, 2, v{t}"); a.e(f"v_lshlrev_b32 v{t2}, 3, v{t2}"); a.e(f"v_and_b32 v{t}, 3, v{t}"); a.e(f"v_add_u32 v{t}, v{t}, v{t2}")
    a.e(f"v_lshl_add_u32 v{ro}, v{t}, 3, v{ro}")
    a.e(f"v_and_b32 v{yo}, 63, v{yo}"); a.e(f"v_lshlrev_b32 v{yo}, 3, v{yo}"); a.e(f"v_and_b32 v{t2}, 15, v{t}"); a.e(f"v_lshl_add_u32 v{yo}, v{t2}, 9, v{yo}")
    a.e(f"v_lshrrev_b32 v{t2}, 4, v{t}"); a.e(f"v_lshl_add_u32 v{yo}, v{t2}, 14, v{yo}")
    a.e("s_lshr_b32 s78, s28, 3"); a.e("s_lshl_b32 s78, s78, 2"); a.e("s_and_b32 s79, s28, 3"); a.e("s_add_u32 s78, s78, s79"); a.e("s_lshl_b32 s78, s78, 24")
    a.e("s_and_b32 s79, s28, 4"); a.e("s_lshl_b32 s79, s79, 11"); a.e("s_add_u32 s78, s78, s79")
    a.e("s_lshl_b32 s79, s31, 18"); a.e("s_add_u32 s78, s78, s79"); a.e(f"v_add_u32 v{yo}, s78, v{yo}")
def load_y(a, skip_last=False):
    a.srd(80, 4, 8 * GSTR - oHS, off=LB0 + oHS)
    for j in range(2):
        for hh in range(2):
            a.e(f"s_mov_b32 s78, {j*16384 + hh*2048}")
            a.e(f"buffer_load_dwordx2 {vr(RYY+4*j+2*hh,2)}, v{RYO}, s[80:83], s78 offen {os.environ.get('YF', SC)}")
def r_pre(a, l0=False):
    r_addr(a, False)
    lsrd(a, 84, oX3, XSZ); lsrd(a, 88, oX1P, XSZ)
    if l0: a.e("s_cmp_eq_u32 s60, 0"); a.e("s_cselect_b64 exec, -1, 0")
    for j in range(2):
        a.e(f"buffer_load_dwordx4 {vr(RXA+4*j,4)}, v{RFO}, s[84:87], 0 offen offset:{2048*j} {SC}")
        a.e(f"buffer_load_dwordx4 {vr(RXB+4*j,4)}, v{RFO}, s[88:91], 0 offen offset:{2048*j} {SC}")
    if l0: a.e("s_mov_b64 exec, -1")
def r_pre0(a): r_pre(a, True)
def r_pre1(a):
    X = a.lab("rp"); a.e("s_cmp_lg_u32 s60, 0"); a.e(f"s_cbranch_scc1 {X}"); call(a, r_pre); a.e(f"{X}:")

def r_stage(a, final):
    v = VA(6)
    t = v(); t2 = v(); I = RI; fo = RFO; ro = RRO; pt = v(4, 2)
    xa = RXA; xb = RXB; yy = RYY; x = 206; yf = 222; w = v(16, 4); tmp = v()
    pre = final == "pre"
    S = v(2, 2); pp = v(2, 2); qq = v(2, 2); st = w; mean = v(2, 2); rs = mean + 1; var = v(); sw = v(); sr = v()
    def part(src, n):
        a.e(f"v_pk_add_f32 {vr(pp,2)}, {vr(src,2)}, {vr(src+2,2)}"); a.e(f"v_pk_mul_f32 {vr(qq,2)}, {vr(src,2)}, {vr(src,2)}")
        for i in range(1, 8):
            if i > 1: a.e(f"v_pk_add_f32 {vr(pp,2)}, {vr(pp,2)}, {vr(src+2*i,2)}")
            a.e(f"v_pk_fma_f32 {vr(qq,2)}, {vr(src+2*i,2)}, {vr(src+2*i,2)}, {vr(qq,2)}")
        a.e(f"v_add_f32 v{S}, v{pp}, v{pp+1}"); a.e(f"v_add_f32 v{S+1}, v{qq}, v{qq+1}")
        for k in range(2): a.e(f"v_add_f32_dpp v{S+k}, v{S+k}, v{S+k} row_ror:8 row_mask:0xf bank_mask:0xf")
        for op in ("v_permlane16_swap_b32", "v_permlane32_swap_b32"):
            for k in range(2): a.e(f"v_mov_b32 v{pp+k}, v{S+k}")
            for k in range(2): a.e(f"{op} v{S+k}, v{pp+k}")
            a.e(f"v_pk_add_f32 {vr(S,2)}, {vr(S,2)}, {vr(pp,2)}")
        a.e(f"ds_write_b64 v{sw}, {vr(S,2)} offset:{n*512}")
    def comb(n):
        for k in range(4): a.e(f"ds_read_b128 {vr(st+4*k,4)}, v{sr} offset:{n*512+16*k}")
        a.e("s_waitcnt lgkmcnt(0)")
        for k in range(4): a.e(f"v_pk_add_f32 {vr(st+4*k,2)}, {vr(st+4*k,2)}, {vr(st+4*k+2,2)}")
        a.e(f"v_pk_add_f32 {vr(st,2)}, {vr(st,2)}, {vr(st+4,2)}"); a.e(f"v_pk_add_f32 {vr(st+8,2)}, {vr(st+8,2)}, {vr(st+12,2)}")
        a.e(f"v_pk_add_f32 {vr(st,2)}, {vr(st,2)}, {vr(st+8,2)}")
        a.e(f"v_mul_f32 v{mean}, {f32(1/1024)}, v{st}"); a.e(f"v_mul_f32 v{var}, {f32(1/1024)}, v{st+1}")
        a.e(f"v_fma_f32 v{var}, -v{mean}, v{mean}, v{var}"); a.e(f"v_max_f32 v{var}, 0, v{var}")
    SUBM = f"{vr(mean,2)} op_sel_hi:[1,0] neg_lo:[0,1] neg_hi:[0,1]"; MULR = f"{vr(mean,2)} op_sel:[0,1] op_sel_hi:[1,1]"
    if pre: a.e("s_waitcnt lgkmcnt(0)")
    if final is not True:
        a.e(f"v_lshlrev_b32 v{sr}, 6, v{I}"); a.e(f"v_add_u32 v{sr}, {AUX+2048}, v{sr}")
        a.e(f"s_lshl_b32 s35, s30, 3"); a.e(f"v_add_u32 v{sw}, s35, v{sr}")
    if pre:
        a.e("s_waitcnt vmcnt(0)")
        for i in range(8): unpack(a, x + 2 * i, x + 2 * i + 1, xa + i)
        part(x, 0)
        a.e("s_waitcnt lgkmcnt(0)"); a.e("s_barrier")
        return
    if not final:
        a.e(f"s_cmp_eq_u32 s60, 0"); a.e(f"s_cbranch_scc1 R_l0")
    else:
        a.e(f"s_load_dwordx2 s[6:7], s[0:1], {D_OUT}")
    lsrd(a, 8, oP0, XSZ, prev=True); lsrd(a, 12, oP1, XSZ, prev=True)
    lsrd(a, 20, oX3, XSZ); a.e("s_mov_b32 s78, 0x3f80"); a.e("s_mov_b32 s79, 0x3f800000")
    if "r" not in DP: a.e("s_waitcnt vmcnt(0)")
    for i in range(8):
        if not final: unpack(a, yf + 2 * i, yf + 2 * i + 1, yy + i)
        unpack(a, x + 2 * i, x + 2 * i + 1, xa + i); unpack(a, w + 2 * i, w + 2 * i + 1, xb + i)
        a.e(f"v_pk_add_f32 {vr(x+2*i,2)}, {vr(x+2*i,2)}, {vr(w+2*i,2)}")
    lds_ = [f"buffer_load_dwordx4 {vr(r+4*j,4)}, v{fo}, s[{q}:{q+3}], 0 offen offset:{2048*j} {SC}" for j in range(2) for r, q in ((xa, 8), (xb, 12))]
    if "r" in DP: data_poll(a, lds_, (xa, xa + 4, xb, xb + 4), t, int(os.environ.get("RNAP", "4")), int(os.environ.get("RFIRST", "24")), int(os.environ.get("RCAN", "0"))); mstamp(a)
    else:
        poll(a, ST_G4, pt, prev=True)
        mstamp(a)
        for x_ in lds_: a.e(x_)
    for i in range(8):
        if i % 4 == 0 and "r" not in DP: a.e(f"s_waitcnt vmcnt({2 - i // 2})")
        u = w + 4 * (i & 3)
        if DOT:
            if i == 0:
                for r_ in (xa, xb):
                    for k in range(16): a.e(f"v_dot2_f32_bf16 v{x+k}, v{r_+k//2}, s{78+(k&1)}, v{x+k}")
                a.e("s_nop 2")
            continue
        unpack(a, u, u + 1, xa + i); unpack(a, u + 2, u + 3, xb + i)
        a.e(f"v_pk_add_f32 {vr(u,2)}, {vr(u,2)}, {vr(u+2,2)}")
        a.e(f"v_pk_add_f32 {vr(x+2*i,2)}, {vr(x+2*i,2)}, {vr(u,2)}")
        if final: a.e(f"v_cvt_pk_bf16_f32 v{xa+i}, v{x+2*i}, v{x+2*i+1}")
        else: round2(a, x + 2 * i, x + 2 * i + 1, tmp)
    if final:
        a.e("s_waitcnt lgkmcnt(0)")
        a.srd(20, 6, 4 * MB)
        OS = os.environ.get("OS", "sc1")
        if os.environ.get("OWIDE", "1") == "1":
            a.e(f"v_bfe_u32 v{t}, v1, 3, 1"); a.e(f"v_cmp_eq_u32 vcc, 1, v{t}")
            for j in range(2):
                lo, hi = xa + 4 * j, xa + 4 * j + 2
                for e in range(2):
                    a.e(f"v_cndmask_b32 v{x+e}, v{hi+e}, v{lo+e}, vcc")
                for e in range(2):
                    a.e(f"v_mov_b32_dpp v{x+2+e}, v{x+e} row_ror:8 row_mask:0xf bank_mask:0xf")
                for e in range(2):
                    a.e(f"v_cndmask_b32 v{x+4+e}, v{lo+e}, v{x+2+e}, vcc"); a.e(f"v_cndmask_b32 v{hi+e}, v{x+2+e}, v{hi+e}, vcc")
                for e in range(2): a.e(f"v_mov_b32 v{lo+e}, v{x+4+e}")
            a.e(f"v_bfe_u32 v{t2}, v1, 4, 1"); a.e(f"v_lshlrev_b32 v{t}, 5, v{t}"); a.e(f"v_lshl_add_u32 v{t}, v{t2}, 4, v{t}")
            a.e(f"v_and_b32 v{t2}, 0xffffffc0, v{ro}"); a.e(f"v_add_u32 v{t}, v{t}, v{t2}")
            for j in range(2): a.e(f"buffer_store_dwordx4 {vr(xa+4*j,4)}, v{t}, s[20:23], 0 offen offset:{128*j} {OS}")
        else:
            for j in range(4): a.e(f"buffer_store_dwordx2 {vr(xa+2*j,2)}, v{ro}, s[20:23], 0 offen offset:{128*(j>>1) + 32*(j&1)} {OS}")
        return v.hi
    part(x, 0)
    if os.environ.get("RST"): mstamp(a)
    a.e("s_waitcnt lgkmcnt(0)"); a.e("s_barrier")
    if os.environ.get("RST"): mstamp(a)
    comb(0)
    ln_finish(a, mean, var, rs)
    if os.environ.get("RST"): mstamp(a)
    a.e(f"v_mul_f32 v{mean}, v{mean}, v{rs}")
    for i in range(8): a.e(f"v_pk_fma_f32 {vr(w+2*i,2)}, {vr(x+2*i,2)}, {vr(mean,2)}, {vr(mean,2)} op_sel:[0,1,0] op_sel_hi:[1,1,0] neg_lo:[0,0,1] neg_hi:[0,0,1]")
    for i in range(8):
        D = w + 2 * i
        a.e(f"v_pk_fma_f32 {vr(x+2*i,2)}, {vr(D,2)}, {vr(yf+2*i,2)}, {vr(x+2*i,2)}")
        a.e(f"v_cvt_pk_bf16_f32 v{xa+i}, v{x+2*i}, v{x+2*i+1}")
        if i % 4 == 1 and DP: mark(a, xa + i - 1, 0)
        if i % 4 == 3: a.e(f"buffer_store_dwordx4 {vr(xa+i-3,4)}, v{fo}, s[20:23], 0 offen offset:{2048*(i//4)} {SC}")
    if os.environ.get("RST"): mstamp(a)
    a.e("s_branch R_s2")
    a.e("R_l0:")
    for i in range(8): unpack(a, x + 2 * i, x + 2 * i + 1, xa + i)
    part(x, 0)
    a.e("s_waitcnt lgkmcnt(0)")
    st_ = st; st = yf
    a.e("s_lshl_b32 s36, s28, 10"); a.e(f"s_add_u32 s36, s36, {F_FRONT}"); a.e("s_lshl_b32 s53, s30, 7"); a.e("s_add_u32 s36, s36, s53"); a.e(f"v_mov_b32 v{st+4}, s36")
    lds_spin(a, LW + 28, 65536, st, dst=94)
    if STAMP: a.e("s_and_b32 s95, s94, 0xffff")
    a.e(f"s_cmp_gt_u32 s94, {65536 + QUO // 2}"); a.e("s_cselect_b32 s94, 1, 0")
    a.e("s_lshl_b32 s53, s94, 13"); a.e(f"v_xor_b32 v{RYO}, s53, v{RYO}")
    a.e("s_waitcnt vmcnt(0)"); a.e("s_barrier")
    poll_core(a, st, [st + 4], 1, cnt=32, nap=FSLEEP)
    load_y(a)
    group_off(a, 55, 28)
    a.e("s_add_u32 s62, s4, s55"); a.e("s_addc_u32 s63, s5, 0")
    a.e("s_sub_u32 s36, s28, 1"); a.e("s_max_i32 s36, s36, 0"); group_off(a, 92, 36); a.e("s_sub_u32 s92, s92, s55")
    a.e("s_add_u32 s36, s28, 1"); a.e("s_min_u32 s36, s36, 15"); group_off(a, 93, 36); a.e("s_sub_u32 s93, s93, s55")
    a.e(f"s_add_u32 s55, s55, {oSM}")
    lsrd(a, 20, oX3, XSZ)
    st = st_; comb(0); ln_finish(a, mean, var, rs); st = yf
    for i in range(8):
        D = w + 2 * i
        a.e(f"v_pk_add_f32 {vr(D,2)}, {vr(x+2*i,2)}, {SUBM}"); a.e(f"v_pk_mul_f32 {vr(D,2)}, {vr(D,2)}, {MULR}")
    a.e("s_barrier")
    mstamp(a)
    a.e("s_waitcnt vmcnt(0)")
    for i in range(8):
        D = w + 2 * i
        unpack(a, st, st + 1, yy + i)
        a.e(f"v_pk_fma_f32 {vr(x+2*i,2)}, {vr(D,2)}, {vr(st,2)}, {vr(x+2*i,2)}"); a.e(f"v_cvt_pk_bf16_f32 v{xa+i}, v{x+2*i}, v{x+2*i+1}")
        if i % 4 == 1 and DP: mark(a, xa + i - 1, 0)
        if i % 4 == 3: a.e(f"buffer_store_dwordx4 {vr(xa+i-3,4)}, v{fo}, s[20:23], 0 offen offset:{2048*(i//4)} {SC}")
    a.e("R_s2:")
    st = st_
    for i in range(8): unpack(a, x + 2 * i, x + 2 * i + 1, xa + i)
    part(x, 1)
    if "1" in DP:
        a.e("s_waitcnt lgkmcnt(0)"); a.e("s_barrier")
        a.e("s_cmp_lg_u32 s30, 6"); a.e("s_cbranch_scc1 R_n6"); a.e("s_cmp_lg_u32 s60, 0"); a.e("s_cbranch_scc1 R_n6")
        a.e("s_lshl_b32 s53, s29, 7"); a.e(f"s_add_u32 s53, s53, {F_CS}"); a.e(f"v_mov_b32 v{pt}, 1"); a.e(f"v_mov_b32 v{pt+1}, 0")
        a.e("s_mov_b64 exec, 1"); a.e(f"buffer_atomic_add v{pt}, v{pt+1}, s[56:59], s53 offen {SC}"); a.e("s_mov_b64 exec, -1")
        a.e("R_n6:")
    else:
        publish(a, ST_R, 8, pt)
        a.e("s_barrier")
    a.e(f"s_cmp_lg_u32 s30, {7 if '1' in DP else 0}"); a.e("s_cbranch_scc1 R_nl")
    comb(1)
    outv = yf + 2; s3 = v(); m4 = v(); v4_ = v(); r4 = v()
    assert v.hi <= PK
    a.e(f"v_mov_b32 v{m4}, v{mean}"); a.e(f"v_mov_b32 v{v4_}, v{var}")
    ln_finish(a, mean, var, rs, s3)
    a.e(f"v_sub_f32 v{m4}, v{m4}, v{mean}"); a.e(f"v_mul_f32 v{m4}, v{m4}, v{rs}")
    a.e(f"v_mul_f32 v{v4_}, v{v4_}, v{rs}"); a.e(f"v_mul_f32 v{v4_}, v{v4_}, v{rs}")
    ln_finish(a, m4, v4_, r4)
    a.e(f"v_mov_b32 v{outv}, v{mean}"); a.e(f"v_mov_b32 v{outv+1}, v{rs}")
    a.e(f"v_fma_f32 v{outv+2}, v{m4}, v{s3}, v{mean}"); a.e(f"v_mul_f32 v{outv+3}, v{rs}, v{r4}")
    lsrd(a, 24, oLNS, 2048)
    a.e("s_lshl_b32 s36, s29, 3"); a.e(f"v_add_u32 v{t}, s36, v{I}"); a.e(f"v_lshlrev_b32 v{t}, 4, v{t}")
    a.e("s_mov_b64 exec, 0xff")
    a.e(f"buffer_store_dwordx4 {vr(outv,4)}, v{t}, s[24:27], 0 offen {SC}")
    a.e("s_mov_b64 exec, -1")
    publish(a, ST_R2, 1, pt)
    a.e("R_nl:")
    return v.hi

TAB = int(os.environ.get("TAB", "1")); TV = 248
def lead(seq, r, L, P=4):
    if L == 0: return list(seq)
    return [x for _, x in sorted(((i - L - 0.5 if i % P == r else i), x) for i, x in enumerate(seq))]
def order3(j, gi):
    mode, L = eval(os.environ.get("O3", "('r',0)"))
    if mode == "r": return [(gi + t) & 15 for t in range(16)]
    if mode == "n": return [gi] + [x for x in lead(range(16), (j + gi) & 3, L) if x != gi]
    if mode == "s": return [gi] + lead([x for x in range(16) if x != gi], (j + gi) & 3, L)
    if mode == "h": return [gi] + [x for x in lead([(t + (gi & 8)) & 15 for t in range(16)], (j + gi) & 3, L) if x != gi]
def order4(j, n):
    mode, L = eval(os.environ.get("O4", "('n',1)"))
    own = [(7 * n + i, 7 * n + 4 + i) for i in range(3)]
    ps = [(n + t) & 7 for t in range(8)] if mode == "r" else list(range(8))
    ab = [(7 * p + i, 7 * p + 4 + i) for i in range(2) for p in ps if p != n]
    c = [7 * p + o for p in ps for o in (2, 6, 3) if p != n or o == 3]
    rest = ab + [(c[2 * i], c[2 * i + 1]) for i in range(11)]
    if mode != "r": rest = lead(rest, (j + n + int(os.environ.get("O4R", "0"))) & 3, L)
    return own + rest
L4 = eval(os.environ.get("O4", "('n',1)"))[1] if TAB else 0
def tab_data(a):
    a.lines.append(".p2align 6"); a.lines.append("K_tab:")
    for gi in range(16):
        for j in range(4):
            o3 = order3(j, gi) + [0] * 16; o4 = order4(j, gi & 7) + [(0, 0)] * 4
            assert sorted(o3[:16]) == list(range(16)) and sorted(sum(o4[:28], ())) == list(range(56))
            a.lines.append(".short " + ",".join(str(o3[t] | o4[t][0] << 4 | o4[t][1] << 10) for t in range(32)))
def tab_load(a):
    a.e("s_getpc_b64 s[34:35]"); a.e("K_tpc:")
    a.e("s_lshl_b32 s36, s29, 2"); a.e("s_and_b32 s37, s28, 3"); a.e("s_add_u32 s36, s36, s37"); a.e("s_lshl_b32 s36, s36, 6")
    a.e("s_add_u32 s36, s36, K_tab-K_tpc"); a.e("s_add_u32 s34, s34, s36"); a.e("s_addc_u32 s35, s35, 0")
    a.e(f"v_and_b32 v{TV}, 31, v1"); a.e(f"v_lshlrev_b32 v{TV}, 1, v{TV}"); a.e(f"global_load_ushort v{TV+3}, v{TV}, s[34:35]")
def tab_make(a, w):
    T, x = TV + 3, TV + 4
    if not w:
        a.e(f"v_bfe_u32 v{x}, v{T}, 2, 2"); a.e(f"v_lshlrev_b32 v{TV}, 14, v{x}"); a.e(f"v_and_b32 v{x}, 3, v{T}"); a.e(f"v_lshl_add_u32 v{TV}, v{x}, 11, v{TV}")
        for lw in range(2):
            a.e(f"v_bfe_u32 v{x}, v{T}, {7+6*lw}, 3"); a.e(f"v_lshlrev_b32 v{TV+1+lw}, 14, v{x}"); a.e(f"v_bfe_u32 v{x}, v{T}, {4+6*lw}, 3"); a.e(f"v_lshl_add_u32 v{TV+1+lw}, v{x}, 10, v{TV+1+lw}")
    else:
        a.e(f"v_and_b32 v{x}, 15, v{T}"); a.e(f"v_mul_u32_u24 v{TV}, {64*7168}, v{x}")
        a.e("s_and_b32 s36, s30, 1"); a.e("s_mul_i32 s36, s36, 6"); a.e("s_add_u32 s36, s36, 4"); a.e(f"v_bfe_u32 v{x}, v{T}, s36, 6")
        assert all((q * 37) >> 8 == q // 7 for q in range(56))
        a.e(f"v_mul_u32_u24 v{TV+2}, 37, v{x}"); a.e(f"v_lshrrev_b32 v{TV+2}, 8, v{TV+2}"); a.e(f"v_mul_u32_u24 v{TV+2}, 7, v{TV+2}"); a.e(f"v_sub_u32 v{TV+2}, v{x}, v{TV+2}")
        a.e(f"v_cmp_eq_u32 vcc, 3, v{TV+2}"); a.e(f"v_cndmask_b32 v{TV+2}, 0, 1, vcc"); a.e(f"v_lshl_add_u32 v{TV+1}, v{x}, 16, v{TV+2}")
        for p_ in eval(os.environ.get("W4SKIP", "[]")): a.e("s_mov_b32 s36, 0x40000000"); a.e(f"v_writelane_b32 v{TV+1}, s36, {p_}")
def rot_init(a, which):
    if which == 3 and TAB: a.e("s_mov_b32 s44, 0")
    elif which == 3 and OWN3: a.e("s_mov_b32 s44, s29")
    elif which != 4: a.e("s_mov_b32 s44, s67")
    else: a.e("s_mov_b32 s44, 0")
def rot_next(a, which):
    a.e("s_add_u32 s44, s44, 1")
    if which != 4: a.e("s_and_b32 s44, s44, 15")
def kb4(a, d, lw):
    a.e("s_lshl_b32 s45, s44, 1"); a.e(f"s_add_u32 s45, s45, {lw}"); a.e("s_sub_u32 s45, s45, 32")
    a.e("s_mul_i32 s46, s45, 86"); a.e("s_lshr_b32 s46, s46, 8")
    a.e("s_mul_i32 s47, s46, 3"); a.e("s_sub_u32 s47, s45, s47"); a.e("s_lshl_b32 s47, s47, 2"); a.e("s_lshr_b32 s47, 0x362, s47"); a.e("s_and_b32 s47, s47, 7")
    a.e("s_cmp_ge_u32 s44, 10"); a.e("s_cselect_b32 s45, 9, 2"); a.e("s_cselect_b32 s51, 1, 0"); a.e("s_sub_u32 s45, s44, s45")
    a.e("s_cmp_lt_u32 s44, 3"); a.e("s_cselect_b32 s45, 0, s45"); a.e("s_cselect_b32 s51, s44, s51")
    a.e(f"s_lshl2_add_u32 s51, {lw}, s51")
    a.e("s_cmp_lt_u32 s44, 17"); a.e("s_cselect_b32 s47, s51, s47"); a.e("s_cselect_b32 s46, s45, s46")
    a.e("s_add_u32 s46, s46, s33"); a.e("s_and_b32 s46, s46, 7"); a.e("s_mul_i32 s46, s46, 7"); a.e(f"s_add_u32 s{d}, s46, s47")
assert all((q * 86) >> 8 == q // 3 for q in range(24))
WVB = {1: 238, 2: 238, 4: 239, 3: 241}
WV = 245
def w_lanes(a):
    t, t2 = WV + 8, WV + 9
    R = WVB[1]
    a.e(f"v_lshrrev_b32 v{t}, 3, v1"); a.e(f"v_lshlrev_b32 v{R}, 11, v{t}")
    a.e(f"v_and_b32 v{t}, 6, v{t}"); a.e(f"v_and_b32 v{t2}, 7, v1"); a.e(f"v_xor_b32 v{t}, v{t}, v{t2}"); a.e(f"v_lshl_add_u32 v{R}, v{t}, 4, v{R}")
    R = WVB[4]
    for p in range(2):
        a.e(f"v_lshrrev_b32 v{t}, 4, v1"); a.e(f"v_lshlrev_b32 v{R+p}, 11, v{t}")
        a.e(f"v_add_u32 v{t}, {4*p}, v{t}"); a.e(f"v_lshlrev_b32 v{t}, 1, v{t}"); a.e(f"v_and_b32 v{t2}, 15, v1"); a.e(f"v_xor_b32 v{t}, v{t}, v{t2}")
        a.e(f"v_lshl_add_u32 v{R+p}, v{t}, 4, v{R+p}")
    R = WVB[3]
    assert all((p * 2341) >> 16 == p // 28 for p in range(448))
    for ii in range(7):
        a.e(f"v_add_u32 v{t2}, {64*ii}, v1"); a.e(f"v_mul_u32_u24 v{t}, 2341, v{t2}"); a.e(f"v_lshrrev_b32 v{t}, 16, v{t}")
        a.e(f"v_mul_u32_u24 v{R+ii}, 28, v{t}"); a.e(f"v_sub_u32 v{t2}, v{t2}, v{R+ii}")
        a.e(f"v_mul_u32_u24 v{R+ii}, 7168, v{t}")
        a.e(f"v_lshrrev_b32 v{t}, 1, v{t}"); a.e(f"v_and_b32 v{t}, 2, v{t}"); a.e(f"v_xor_b32 v{t2}, v{t2}, v{t}")
        a.e(f"v_lshl_add_u32 v{R+ii}, v{t2}, 4, v{R+ii}")
def w_srd(a, which):
    c = CFG[which]
    a.e(f"s_mov_b64 s[12:13], s[{66+2*which}:{67+2*which}]")
    a.e(f"s_mov_b32 s14, {c['KBT'] * 32 * c['LDW']}"); a.e("s_mov_b32 s15, 0x20000")
def w_setup(a, which, pre=True, lo=0):
    c = CFG[which]; STB = c["STB"]; BW = STB // 2
    w_srd(a, which)
    a.e("s_and_b32 s35, s30, 1")
    a.e(f"s_mul_i32 s38, s{(0, 99, 29, 29, 33)[which]}, {c['RB']}");
    if which != 4: a.e(f"s_mul_i32 s41, s35, {32*c['LDW']}"); a.e("s_add_u32 s38, s38, s41")
    if which == 4: a.e(f"s_mul_i32 s41, s31, {1792*c['LDW']}"); a.e("s_add_u32 s38, s38, s41")
    a.e(f"s_mul_i32 s41, s35, {BW}"); a.e(f"s_add_u32 s41, s41, {c['WB']}")
    a.e("s_mov_b32 s42, 0"); rot_init(a, which)
    if not pre: return
    NP = c["NPRE"]
    a.e("s_mov_b32 s49, s44"); a.e("s_and_b32 s43, s28, 3"); a.e(f"s_mul_i32 s43, s43, {NP - lo}"); a.e("s_lshr_b32 s43, s43, 2"); a.e(f"s_mov_b32 s50, {lo}")
    if not WROT: a.e("s_mov_b32 s43, 0")
    if lo: a.e(f"s_add_u32 s43, s43, {lo}")
    L = a.lab("wpre"); a.e(f"{L}:")
    a.e(f"s_mul_i32 s42, s43, {STB}"); a.e("s_add_u32 s44, s49, s43")
    if which != 4: a.e("s_and_b32 s44, s44, 15")
    w_issue(a, which, pace=PACES.get(which, PACE))
    a.e("s_add_u32 s43, s43, 1"); a.e(f"s_cmp_eq_u32 s43, {NP}"); a.e(f"s_cselect_b32 s43, {lo}, s43")
    a.e("s_add_u32 s50, s50, 1"); a.e(f"s_cmp_lt_u32 s50, {NP}"); a.e(f"s_cbranch_scc1 {L}")
    mstamp(a)
    a.e(f"s_mov_b32 s42, {(NP % c['NW']) * STB}"); a.e(f"s_add_u32 s44, s49, {NP}")
    if which != 4: a.e("s_and_b32 s44, s44, 15")
YP = int(os.environ.get("YP", "0"))
def ypause(a):
    if not YP: return
    X = a.lab("yp")
    a.e(f"v_mov_b32 v6, {LW+4}"); a.e("ds_read2_b32 v[14:15], v6 offset0:0 offset1:1"); a.e("s_waitcnt lgkmcnt(0)"); a.e("v_readfirstlane_b32 s53, v15")
    a.e(f"s_cmp_lt_u32 s53, {YP}"); a.e(f"s_cbranch_scc1 {X}")
    lds_spin(a, LW + 4, 16, 6, nap=2)
    a.e(f"{X}:")
def park_load(a, pace):
    w_srd(a, 2)
    a.e("s_and_b32 s35, s30, 3"); a.e("s_lshl_b32 s35, s35, 19"); a.e("s_lshl_b32 s39, s29, 7"); a.e("s_add_u32 s39, s39, s35")
    for q in range(32):
        a.e(f"buffer_load_dwordx4 {vr(PK+4*q,4)}, v{WVB[2]}, s[12:15], s39 offen"); a.e("s_add_u32 s39, s39, 16384")
        if pace and q % 4 == 3: a.e(f"s_waitcnt vmcnt({pace})"); ypause(a)
def park(a): park_load(a, int(os.environ.get("PKP", "8")))
def late_park(a):
    X = a.lab("lp"); a.e("s_cmp_lg_u32 s60, 0"); a.e(f"s_cbranch_scc1 {X}"); call(a, park); a.e(f"{X}:")
def after_g1(a):
    c = CFG[3]
    if os.environ.get("UPD0"): a.e("s_sleep " + os.environ["UPD0"])
    w_srd(a, 3)
    a.e(f"v_readlane_b32 s36, v{TV+3}, 0"); a.e(f"v_readlane_b32 s37, v{TV+3}, 1"); a.e(f"v_readlane_b32 s34, v{TV+3}, 2")
    a.e("s_and_b32 s35, s30, 3"); a.e(f"s_mul_i32 s38, s35, {16*7168}"); a.e("s_mul_i32 s39, s29, 448"); a.e("s_add_u32 s38, s38, s39")
    for r in (36, 37, 34): a.e(f"s_and_b32 s{r}, s{r}, 15"); a.e(f"s_mul_i32 s{r}, s{r}, {64*7168}"); a.e(f"s_add_u32 s{r}, s{r}, s38")
    a.e("s_mul_i32 s39, s35, 7168"); a.e(f"s_add_u32 m0, s39, {c['WB'] + c['S0'] * c['STB']}")
    for i in range(7):
        if i: a.e("s_add_u32 m0, m0, 1024")
        a.e(f"buffer_load_dwordx4 v{WVB[3]+i}, s[12:15], s36 offen lds")
    for i in range(7 if W3N == 2 else 0): a.e(f"buffer_load_dwordx4 {vr(W3S+4*i,4)}, v{WVB[3]+i}, s[12:15], s37 offen")
    a.e("s_lshr_b32 s36, s67, 2"); a.e("s_sub_u32 s36, s35, s36"); a.e("s_and_b32 s36, s36, 3"); a.e("s_lshl_b32 s36, s36, 15"); a.e(f"v_add_u32 v6, s36, v2")
    if W33 == 1:
        for i in range(7): a.e(f"buffer_load_dwordx4 {vr(16+4*i,4)}, v{WVB[3]+i}, s[12:15], s34 offen")
    a.e(f"s_waitcnt vmcnt({21 if W33 == 1 else 7 * W3N})")
    if os.environ.get("UPD"): a.e("s_sleep " + os.environ["UPD"])
    for q in range(32): a.e(f"ds_write_b128 v6, {vr(PK+4*q,4)} offset:{CFG[2]['WB'] + 1024*q}")
    a.e("s_waitcnt lgkmcnt(0)")
W3N = int(os.environ.get("W3N", "2"))
W33 = int(os.environ.get("W33", "0"))
def third_late(a):
    a.e(f"s_sleep {W33}")
    for i in range(7): a.e(f"buffer_load_dwordx4 {vr(16+4*i,4)}, v{WVB[3]+i}, s[12:15], s34 offen")
def third_put(a):
    c = CFG[3]
    for i in range(7): a.e(f"ds_write_b128 v7, {vr(16+4*i,4)} offset:{c['STB'] + 1024*i}")
    a.e("s_waitcnt lgkmcnt(0)")
def after_g2(a):
    c = CFG[3]
    if W3N == 1:
        a.e("s_and_b32 s35, s30, 3"); a.e("s_mul_i32 s39, s35, 7168"); a.e(f"s_add_u32 m0, s39, {c['WB'] + (c['S0'] + 1) % c['NW'] * c['STB']}")
        for i in range(7):
            if i: a.e("s_add_u32 m0, m0, 1024")
            a.e(f"buffer_load_dwordx4 v{WVB[3]+i}, s[12:15], s37 offen lds")
        return
    a.e("s_and_b32 s35, s30, 3"); a.e("s_mul_i32 s39, s35, 7168"); a.e(f"s_add_u32 s39, s39, {c['WB'] + (c['S0'] + 1) % c['NW'] * c['STB']}"); a.e("v_add_u32 v7, s39, v2")
    for i in range(7): a.e(f"ds_write_b128 v7, {vr(W3S+4*i,4)} offset:{1024*i}")
    a.e("s_waitcnt lgkmcnt(0)")
SUBX = {}
def call(a, f):
    SUBX[f.__name__] = f; a.e(f"s_call_b64 s[76:77], SUB_{f.__name__}")
def w1_slots(a, js, pace=0):
    for j in js:
        a.e(f"s_mov_b32 s42, {j*8192}"); a.e("s_mov_b32 s44, s67"); a.e(f"s_add_u32 s44, s44, {j}"); a.e("s_and_b32 s44, s44, 15")
        call_issue(a, w_issue, 1)
        if pace: a.e(f"s_waitcnt vmcnt({pace})")
def w1_done(a):
    a.e("s_mov_b32 s42, 0"); a.e("s_mov_b32 s44, s67"); a.e("s_add_u32 s44, s44, 13"); a.e("s_and_b32 s44, s44, 15")
class Rec:
    def __init__(s_): s_.l = []
    def e(s_, x): s_.l.append(x)
    srd = Asm.srd
def w_parts(which, direct=False):
    c = CFG[which]; STB = c["STB"]; n = STB // 2048; LDW = c["LDW"]; b = Rec()
    b.e("s_add_u32 s19, s41, s42")
    arm = ["s_mov_b32 m0, s19", "s_mov_b32 s39, s16"]
    if which == 4 and TAB:
        b.e(f"v_readlane_b32 s16, v{TV+1}, s44")
        b.e("s_bitcmp1_b32 s16, 0"); b.e(f"s_cselect_b32 s17, {8*2048}, {4*2048}".replace(f"{4*2048}", "s45")); b.e(f"s_cselect_b32 s18, {-20*2048}, s45")
        b.e("s_andn2_b32 s16, s16, 1"); b.e("s_add_u32 s16, s16, s38")
        b.l.insert(0, f"s_mov_b32 s45, {4*2048}")
        arm += ["s_mov_b32 s32, s17", "s_mov_b32 s3, s18"]
        if os.environ.get("W4SKIP"): arm += ["s_bitcmp1_b32 s16, 30", "s_cselect_b64 exec, 0, -1"]
    elif which == 3 and TAB and not direct:
        b.e(f"v_readlane_b32 s16, v{TV}, s44"); b.e("s_add_u32 s16, s16, s38")
    elif which == 4:
        b.e("s_and_b32 s40, s30, 1"); kb4(b, 16, "s40")
        b.e(f"s_mul_i32 s16, s16, {32*LDW}"); b.e("s_add_u32 s16, s16, s38")
        b.e("s_cmp_eq_u32 s47, 3"); b.e("s_cselect_b32 s17, 8, 4"); b.e("s_cselect_b32 s18, -20, 4")
        b.e("s_lshl_b32 s17, s17, 11"); b.e("s_lshl_b32 s18, s18, 11")
        arm += ["s_mov_b32 s32, s17", "s_mov_b32 s3, s18"]
    else:
        b.e(f"s_mul_i32 s16, s44, {64*LDW}"); b.e("s_add_u32 s16, s16, s38")
    if f"w{which}" in os.environ.get("HOT", ""): b.e("s_mov_b32 s16, s38")
    rot_next(b, which)
    b.e(f"s_add_u32 s42, s42, {STB}"); b.e(f"s_cmp_eq_u32 s42, {c['NW']*STB}"); b.e("s_cselect_b32 s42, 0, s42")
    fire = []
    for i in range(n):
        g = []
        if i:
            g.append("s_add_u32 m0, m0, 1024")
            if which in (1, 2): g.append(f"s_add_u32 s39, s39, {8*LDW}")
            elif which == 4: g.append(f"s_add_u32 s39, s39, s{3 if i == 4 else 32}")
            elif i == 7: g.append(f"s_add_u32 s39, s39, {16*LDW}")
        vo = WVB[which] + (0 if which in (1, 2) else (i & 1) if which == 4 else i % 7)
        fire.append(g + [f"buffer_load_dwordx4 v{vo}, s[12:15], s39 offen lds"])
    if f"w{which}" in os.environ.get("NOLD", ""): fire = [[x for x in g if not x.startswith("buffer_load")] + ["s_nop 0"] for g in fire]
    return b.l, arm, fire
def w_issue(a, which, pace=0, direct=False):
    prep, arm, fire = w_parts(which, direct)
    for x in prep + arm: a.e(x)
    for i, g in enumerate(fire):
        for x in g: a.e(x)
        if pace and (i % 4 == 3 or i == len(fire) - 1): a.e(f"s_waitcnt vmcnt({pace})")

def w_bases(a, which, dst, swn, ntl, t, t2):
    c = CFG[which]; RB = c["RB"]
    a.e(f"v_lshrrev_b32 v{t}, 2, v1")
    a.e(f"v_mul_u32_u24 v{dst}, {RB}, v{t}"); a.e(f"v_and_b32 v{t2}, 3, v1"); a.e(f"v_lshl_add_u32 v{dst}, v{t2}, 3, v{dst}")
    a.e(f"v_add_u32 v{dst}, {c['WB']}, v{dst}")
    if which == 3:
        a.e(f"s_mul_i32 s36, s{swn}, {7*32}"); a.e(f"v_add_u32 v{dst}, s36, v{dst}")
        a.e(f"v_bfe_u32 v{t}, v1, 4, 1"); a.e(f"v_lshlrev_b32 v{t}, 5, v{t}")
        a.e(f"s_cmp_eq_u32 s{swn}, 0"); a.e("s_cselect_b32 s36, 1, -1"); a.e(f"v_mul_lo_u32 v{t}, v{t}, s36")
        a.e(f"v_sub_u32 v{dst+1}, v{dst}, v{t}"); a.e(f"v_add_u32 v{dst}, v{dst}, v{t}")
        return 2, lambda nt, kk, h: (nt & 1, (32 * kk + 16 * h) * RB + 32 * nt)
    if which == 4: a.e(f"v_and_b32 v{t}, 7, v{t}")
    else: a.e(f"v_bfe_u32 v{t}, v{t}, 1, 2")
    for nt in range(ntl - 1, -1, -1):
        a.e(f"s_mul_i32 s36, s{swn}, {ntl}"); a.e(f"s_add_u32 s36, s36, {nt}")
        a.e(f"v_xor_b32 v{t2}, s36, v{t}"); a.e(f"v_lshl_add_u32 v{dst+nt}, v{t2}, 5, v{dst}")
    return ntl, lambda nt, kk, h: (nt, (32 * kk + 16 * h) * RB)

def a_parts(which):
    c = CFG[which]; b = Rec()
    if which <= 2 and NX:
        b.e("s_and_b32 s42, s48, 7"); b.e("s_lshl_b32 s42, s42, 14"); b.e("s_lshr_b64 s[48:49], s[48:49], 4")
    b.e("s_add_u32 s19, s41, s42")
    arm = ["s_mov_b32 m0, s19", "s_mov_b32 s39, s16"]; fire = []
    if which == 2:
        b.e(f"s_mul_i32 s16, s44, {8*PITCH}"); b.e("s_add_u32 s16, s16, s38")
        b.e("s_lshr_b32 s45, s44, 2"); b.e("s_xor_b32 s45, s45, s94"); b.e("s_and_b32 s45, s45, 1"); b.e("s_lshl_b32 s45, s45, 13"); b.e("s_add_u32 s16, s16, s45")
        b.e("s_lshr_b32 s45, s44, 3"); b.e("s_lshl_b32 s45, s45, 4"); b.e("s_add_u32 s45, s45, 16")
        b.e("s_sub_u32 s46, 0, s45"); b.e("s_bitcmp1_b32 s44, 2"); b.e("s_cselect_b32 s45, s45, s46"); b.e("s_add_u32 s16, s16, s45")
        step = PITCH
    elif which == 4:
        for lw in range(2):
            if TAB: b.e(f"v_readlane_b32 s{16+lw}, v{TV+1+lw}, s44")
            else: kb4(b, 16 + lw, lw); spread(b, 16 + lw, 16 + lw)
        for lw in range(2): b.e(f"s_add_u32 s{16+lw}, s{16+lw}, s38")
        arm.append("s_mov_b32 s40, s17")
        for i in range(4):
            for lw in range(2):
                fire.append((["s_add_u32 m0, m0, 1024"] if i or lw else []) + ([f"s_add_u32 s{39+lw}, s{39+lw}, {c['KBT']*2048}"] if i else []) +
                            [f"buffer_load_dwordx4 v2, s[12:15], s{39+lw} offen {SC} lds"])
    elif which == 3 and TAB:
        b.e(f"v_readlane_b32 s16, v{TV}, s44"); b.e("s_add_u32 s16, s16, s38"); step = c['KBT'] * 2048
    else:
        b.e("s_lshr_b32 s45, s44, 2"); b.e("s_lshl_b32 s45, s45, 14"); b.e("s_and_b32 s16, s44, 3"); b.e("s_lshl_b32 s16, s16, 11")
        b.e("s_add_u32 s16, s16, s45"); b.e("s_add_u32 s16, s16, s38"); step = c['KBT'] * 2048
    if f"a{which}" in os.environ.get("HOT", ""):
        b.e("s_mov_b32 s16, s38")
        if which == 4: b.e("s_add_u32 s17, s38, 1024")
    for i in range(4 if which != 4 else 0):
        fire.append((["s_add_u32 m0, m0, 2048", f"s_add_u32 s39, s39, {step}"] if i else []) + [f"buffer_load_dwordx4 v2, s[12:15], s39 offen {SC} lds"])
        fire.append([f"buffer_load_dwordx4 v2, s[12:15], s39 offen offset:1024 {SC} lds"])
    rot_next(b, which)
    if not (which <= 2 and NX):
        b.e(f"s_add_u32 s42, s42, 16384"); b.e(f"s_cmp_eq_u32 s42, {c['NA']*16384}"); b.e("s_cselect_b32 s42, 0, s42")
    if f"a{which}" in os.environ.get("NOLD", ""): fire = [[x for x in g if not x.startswith("buffer_load")] + ["s_nop 0"] for g in fire]
    return b.l, arm, fire
def a_issue(a, which):
    prep, arm, fire = a_parts(which)
    for x in prep + arm + sum(fire, []): a.e(x)
SUBS = {}
def call_issue(a, issue, which):
    nm = f"SUB_{issue.__name__}_{which}"; SUBS[nm] = (issue, which)
    a.e(f"s_call_b64 s[76:77], {nm}")
def emit_subs(a):
    for nm, f in SUBX.items(): a.e(f"SUB_{nm}:"); f(a); a.e("s_setpc_b64 s[76:77]")
    for nm, (issue, which) in SUBS.items():
        a.e(f"{nm}:"); issue(a, which); a.e("s_setpc_b64 s[76:77]")
def ld_steps(a, which, N, per, issue, npre, rate=2, plan={}, lo=0, hi=None, last=None, hold=(), sched=None, armed=False):
    NS = CFG[which]["NS"]
    prep, arm, fire = (w_parts if issue is w_issue else a_parts)(which); h = max(1, per * HSPLIT // 8)
    plan = {b: (x if isinstance(x, list) else [x]) for b, x in plan.items()}
    q = [s_ for s_ in range(npre) for _ in range(per)]
    def after(tag):
        if issue is w_issue and which == 4 and isinstance(tag, int) and tag < npre: tag = npre - 1
        return len(q) - 1 - max(i for i, x in enumerate(q) if x == tag)
    issued = npre; steps = []
    for b in range(NS):
        acts = plan.get(b, []); was = {}
        def do(pos):
            for n_, act in enumerate(acts):
                if act[0] != pos: continue
                if act[1] is not None: was[n_] = after(act[1])
                q.extend([act[4]] * act[3])
        do(True)
        k = 0
        if (b > 0 or (sched is not None and issue is a_issue)) and b not in hold:
            k = max(0, min(rate, min(NS, b - 1 + N) - issued)) if sched is None else sched[b]
        assert k or not any(x[0] == "mid" for x in acts)
        for j in range(k):
            q.extend([issued] * h)
            if j == 0: do("mid")
            q.extend([issued] * (per - h)); issued += 1
        do(False)
        w = after(b); assert w <= 63
        if which == 3 and b == 0: w = 63
        steps.append((k, w, b if acts else None, tuple(sorted(was.items())), issued < NS))
    def em(l):
        for x in l:
            a.e(x)
            if x == "s_barrier" and os.environ.get("JIT"): mstamp(a)
    F1, F2 = sum(fire[:h], []), sum(fire[h:], [])
    lprep = prep
    if len(prep) > 8:
        nm = f"PREP_{issue.__name__}_{which}"; SUBS[nm] = ((lambda a_, w_, l=prep: [a_.e(x) for x in l]), which)
        prep = [f"s_call_b64 s[76:77], {nm}"]
    if lo == 0 and npre < NS and not armed: em(prep + arm)
    i = lo; HI = NS if hi is None else hi
    while i < HI:
        j = i
        while j < HI and steps[j] == steps[i]: j += 1
        k, w, ab, was, more = steps[i]; n = j - i; was = dict(was)
        def run(pos):
            for n_, act in enumerate(plan.get(ab, [])):
                if act[0] != pos: continue
                if n_ in was: a.e(f"s_waitcnt vmcnt({was[n_]})")
                act[2]()
        tail = [f"s_waitcnt vmcnt({w})", "s_barrier"]
        if n > 2 and k == 1:
            em(F1); a.e("s_mov_b32 s43, 1"); L = a.lab("ld"); a.e(f"{L}:")
            em(lprep + F2 + arm + tail + F1)
            a.e("s_add_u32 s43, s43, 1"); a.e(f"s_cmp_lt_u32 s43, {n}"); a.e(f"s_cbranch_scc1 {L}")
            em(prep + F2 + arm + tail)
        else:
            for r in range(n):
                run(True)
                for jj in range(k):
                    nxt = more or jj < k - 1
                    em(F1)
                    if jj == 0: run("mid")
                    em((prep if nxt else []) + F2 + (arm if nxt else []))
                run(False)
                em(tail)
        i = j
    if hi is not None: return
    if which == 4:
        if issue is a_issue: a.e("s_cmp_eq_u32 s60, 1"); a.e("s_cbranch_scc1 K_fin")
        elif hold is HOLD: a.e("s_branch K_fin"); return
        if not RPL: r_pre(a)
    TF = os.environ.get("TF", "1") == "1" and issue is a_issue and which == 3
    if last and not TF: last()
    late = os.environ.get("TLATE", "0") == "1"
    if late: a.e("s_barrier")
    if issue is a_issue and W4POS == f"{which}C":
        X = a.lab("tw4"); a.e("s_cmp_lg_u32 s60, 0"); a.e(f"s_cbranch_scc1 {X}"); touch(a, B_W4, 7 * MB, 20); a.e(f"{X}:")
    if not late: a.e("s_barrier")
    if TF: last()

RK = int(os.environ.get("RK", "7")); assert RK == 0 or C0PUB <= RK <= STQ
PA2 = int(os.environ.get("PA2", "1")); PBB = int(os.environ.get("PBB", "2")); PC0 = int(os.environ.get("PC0", "4"))
HOLD = eval(os.environ.get("HOLD", "[2,3,4]"))
def a_loader(a, which):
    c = CFG[which]
    if which <= 2:
        plan = side_jobs(a, 1) if which == 1 else {}
        if which == 1 and "1" in DP: mstamp(a); a.e(f"s_sleep {os.environ.get('SJD', '30')}")
        else: mstamp(a); a.e("s_barrier")
        mstamp(a)
        for b in sorted(plan):
            for act in (plan[b] if isinstance(plan[b], list) else [plan[b]]):
                if act[1] is not None: a.e("s_waitcnt vmcnt(0)")
                act[2]()
        if which == 1:
            a.e("s_cmp_lg_u32 s30, 4"); a.e("s_cbranch_scc1 AL_nw"); a.e("s_cmp_eq_u32 s60, 0"); a.e("s_cbranch_scc1 AL_nw")
            a.e(f"s_add_u32 s54, s55, {(fso(ST_G3) - LSTR) & 0xffffffff:#x}"); a.e("s_add_u32 s53, s54, s92"); a.e("v_mov_b32 v9, s53")
            a.e("s_add_u32 s53, s53, 128"); a.e("v_writelane_b32 v9, s53, 1")
            a.e("s_add_u32 s53, s54, s93"); a.e("v_writelane_b32 v9, s53, 2"); a.e("s_add_u32 s53, s53, 128"); a.e("v_writelane_b32 v9, s53, 3")
            poll_core(a, 8, [9], 15, cnt=8)
            a.e("AL_nw:")
        if which == 2 and W33 > 1: call(a, third_late)
        if which == 2: a.e("s_waitcnt vmcnt(0)")
        a.e("s_barrier")
        if which == 1 and "p" not in os.environ.get("FO", "1pd"): late_park(a)
        call(a, after_g1 if which == 1 else after_g2)
        return
    a.e("s_and_b32 s35, s30, 1")
    if which == 2:
        hs_srd(a, 12)
        a.e("s_lshl_b32 s38, s28, 11"); a.e("s_add_u32 s38, s38, 16384"); a.e(f"s_mul_i32 s36, s35, {4*PITCH}"); a.e("s_add_u32 s38, s38, s36")
    else:
        lsrd(a, 12, c["A"], XSZ if which != 4 else H2SZ)
        a.e(f"s_mul_i32 s38, s35, {4*c['KBT']*2048}")
        if which == 4: a.e(f"s_mul_i32 s36, s31, {7*16384}"); a.e("s_add_u32 s38, s38, s36")
    a.e("s_lshl_b32 s41, s35, 13"); a.e("s_mov_b32 s42, 0"); rot_init(a, which)
    assert c["NA"] == 3 or which == 3
    prep, arm, fire = a_parts(which)
    if which == 4:
        flag_addr(a, 9, ST_G3A); flag_addr(a, 10, ST_G3B); flag_addr(a, 12, ST_G3)
        a.e("v_mov_b32 v13, 1"); a.e("s_and_b32 s51, s30, 1"); a.e("s_lshl_b32 s51, s51, 30")
        def signal(r): a.e("s_mov_b64 exec, 1"); a.e(f"buffer_atomic_add v13, v{r}, s[56:59], s51 offen {SC}"); a.e("s_mov_b64 exec, -1")
        a.e("s_lshl_b32 s54, s60, 2"); a.e("s_add_u32 s54, s54, 4"); lds_spin(a, LW + 64, "s54", 14, nap=2)
        signal(9)
        if not PA2: poll_core(a, 8, [9], 1, cnt=8)
        mstamp(a)
        plan = {6 - L4: ("mid", None, lambda: flag_try(a, 11, 10), 1, "f"), 8 - L4: ("mid", "f", lambda: flag_check(a, 11, 10, 8), 0, None),
                13 - L4: ("mid", None, lambda: flag_try(a, 11, 12), 1, "g"), 15 - L4: ("mid", "g", lambda: flag_check(a, 11, 12, 8), 0, None)}
        plan = {k_: [x] for k_, x in plan.items()}
        if PA2:
            plan[1] = [(False, None, lambda: flag_try(a, 8, 9), 1, "a")]
            plan[2] = [(True, "a", lambda: flag_check(a, 8, 9, 8), 0, None)]
        if DP:
            a.e("v_xor_b32 v15, 128, v12")
            plan[20] = [("mid", None, lambda: flag_try(a, 11, 15), 1, "h")]; plan[22] = [("mid", "h", lambda: flag_check(a, 11, 15, 8), 0, None)]
        if int(os.environ.get("OT", "0")) >= 3:
            def ot():
                a.e(f"s_load_dwordx2 s[20:21], s[0:1], {D_OUT}"); a.e(f"s_mul_i32 s22, s60, {4*MB}"); a.e("s_mov_b32 s23, 0x20000"); a.e("s_lshl_b32 s36, s28, 18"); a.e("s_lshl_b32 s37, s29, 11")
                a.e("s_add_u32 s36, s36, s37"); a.e("s_waitcnt lgkmcnt(0)")
                a.e("s_mov_b64 exec, 1"); a.e(f"buffer_load_dword v16, v2, s[20:23], s36 offen {SC}"); a.e("s_mov_b64 exec, -1")
            plan.setdefault(int(os.environ["OT"]) % 100, []).append((False, None, ot, 1, "o"))
        plan.setdefault(PBB + 1, []).insert(0, (True, None, lambda: signal(10), 1, "s"))
        plan.setdefault(PC0 + 2, []).insert(0, (True, None, lambda: signal(12), 1, "s"))
        a.e("s_mov_b32 s44, 3")
        ld_steps(a, which, 3, 8, a_issue, 3, plan=plan); return
    if which == 3:
        mask, cnt = flag_addr(a, 9, ST_G2)
        def wait2():
            if W33: call(a, third_put)
            elif B0E > 1: a.e(f"s_sleep {B0E}")
            poll_core(a, 8, [9], mask, cnt=cnt); mstamp(a); mstamp(a)
            if W3H: a.e("s_add_u32 s54, s60, 1"); lds_set(a, LW + 60, "s54", 10)
        N3 = 2 if "3" in DP else 1
        a.e(f"s_mov_b32 s44, {N3}"); a.e(f"s_mov_b32 s42, {16384*N3}")
        plan = side_jobs(a, 3)
        if os.environ.get("P30", "0") == "1":
            def wait0(): own_wait(a, ST_G2, False, 14); wait2()
            plan[0] = (True, None, wait0, 0, None)
            ld_steps(a, which, 3, 8, a_issue, 1, plan=plan, sched=[int(os.environ.get("P3N", "1")), 2 - int(os.environ.get("P3N", "1"))] + [1] * 13 + [0]); return
        plan[1] = (True, None, wait2, 0, None)
        PZ3 = int(os.environ.get("PZ3", "0"))
        if PZ3:
            a.srd(84, 4, 32 * MB, off=216 * MB)
            a.e("s_cmp_eq_u32 s60, 0"); a.e("s_cselect_b32 s86, s86, 0")
            for i in range(4): a.e(f"v_mov_b32 v{216+i}, -1")
            a.e("s_lshl_b32 s88, s2, 1"); a.e("s_and_b32 s50, s30, 1"); a.e("s_add_u32 s88, s88, s50"); a.e(f"s_mul_i32 s88, s88, {PZ3*12*1024}")
            def pz():
                for i in range(PZ3): a.e(f"buffer_store_dwordx4 v[216:219], v2, s[84:87], s88 offen offset:{i*1024} {SC}")
                a.e(f"s_add_u32 s88, s88, {PZ3*1024}")
            for b in range(2, 14):
                p_ = plan.get(b, []); p_ = p_ if isinstance(p_, list) else [p_]
                plan[b] = p_ + [(False, None, pz, PZ3, "z")]
        if os.environ.get("A3L", "0") == "1":
            def w1_():
                X = a.lab("w1"); a.e("s_cmp_lg_u32 s60, 0"); a.e(f"s_cbranch_scc1 {X}"); poll_core(a, 8, [9], mask, cnt=cnt); lds_set(a, LW + 60, 1, 10); a.e(f"{X}:")
            def w2_(): poll_core(a, 8, [9], mask, cnt=cnt, nap=2); mstamp(a); mstamp(a)
            plan[1] = (True, None, w1_, 0, None)
            p2 = plan[2] if isinstance(plan[2], list) else [plan[2]]
            plan[2] = [(True, None, w2_, 0, None)] + p2
            ld_steps(a, which, 3, 8, a_issue, N3, plan=plan, hold=(1,)); return
        ld_steps(a, which, c["NA"], 8, a_issue, N3, plan=plan, sched=eval(os.environ.get("A3S", "None")), last=lambda: r_pre1(a)); return
    assert 0

def side_jobs(a, which):
    c = CFG[which]; plan = {}
    sv = 16; S, Q, mean, rs, tt, ad, fa, fr = 216, 217, 218, 219, 220, 221, 222, 223
    cv = 180 if which == 3 else 24; N = c["LDW"] // 2; co_ = 224; HB = c["TN16"] * 32
    lg = 3 if which == 1 else 5
    def cld(k0=0, k1=4):
        if k0 == 0:
            a.srd(24, 4, 32 * N * 4, off=CSP[which])
            a.e("s_cmp_eq_u32 s60, 0"); a.e("s_cselect_b32 s26, s26, 0")
            if NOCS3 and which == 3: a.e("s_mov_b32 s26, 0")
            a.e("s_and_b32 s36, s30, 1"); a.e(f"s_mul_i32 s36, s36, {HB}"); a.e(f"s_mul_i32 s37, s29, {2*HB}"); a.e("s_add_u32 s37, s36, s37")
            a.e(f"v_lshrrev_b32 v{co_}, {lg}, v1"); a.e(f"v_mul_u32_u24 v{co_}, {N*4}, v{co_}")
            a.e(f"v_and_b32 v{cv-1}, {16*((1 << lg) - 1)}, v2"); a.e(f"v_add_u32 v{co_}, v{co_}, v{cv-1}")
        a.e("s_cmp_eq_u32 s60, 0"); a.e("s_cselect_b64 exec, -1, 0")
        for k in range(k0, k1):
            a.e(f"buffer_load_dwordx4 {vr(cv+4*(k if k < 9 else k - 8),4)}, v{co_}, s[24:27], s37 offen {SC}"); a.e(f"s_add_u32 s37, s37, {N*4*(64 >> lg)}")
        a.e("s_mov_b64 exec, -1")
    def piece(lines, l0=False):
        def f():
            X = a.lab("pc")
            if l0: a.e("s_cmp_lg_u32 s60, 0"); a.e(f"s_cbranch_scc1 {X}")
            for x in lines: a.e(x)
            if l0: a.e(f"{X}:")
        return f
    def cadd(k0, k1): return [f"v_add_f32 v{cv+h}, v{cv+h}, v{cv+4*k+h}" for k in range(k0, k1) for h in range(4)]
    def sw(op): return [f"v_mov_b32 v{cv+4+e}, v{cv+e}" for e in range(4)] + [f"{op} v{cv+e}, v{cv+4+e}" for e in range(4)] + cadd(1, 2)
    if which in (1, 3):
        cout = ["s_and_b32 s36, s30, 1", f"s_mul_i32 s36, s36, {HB}", f"s_add_u32 s36, s36, {CSO[which]}", f"v_add_u32 v{cv-1}, s36, v2",
                f"s_bfm_b64 exec, {HB//16}, 0", f"ds_write_b128 v{cv-1}, {vr(cv,4)}", "s_mov_b64 exec, -1", "s_waitcnt lgkmcnt(0)"]
    if which == 1:
        flag_addr(a, fa, ST_R2)
        def ld():
            flag_check(a, fr, fa, 16)
            lsrd(a, 20, oLNS, 2048); a.e("s_and_b32 s35, s30, 1"); a.e("s_lshl_b32 s35, s35, 10")
            a.e(f"buffer_load_dwordx4 {vr(sv,4)}, v2, s[20:23], s35 offen {SC}")
        fin = piece(["s_and_b32 s36, s30, 1", "s_lshl_b32 s36, s36, 10", f"s_add_u32 s36, s36, {LNSL}", f"v_add_u32 v{ad}, s36, v2", f"ds_write_b128 v{ad}, {vr(sv,4)}", "s_waitcnt lgkmcnt(0)"])
        a.e("s_lshl_b32 s53, s29, 7"); a.e(f"s_add_u32 s53, s53, {F_CS}"); a.e(f"v_mov_b32 v{fa+4}, s53")
        def cld1(): flag_check(a, fr + 4, fa + 4, 16); cld()
        work = cadd(1, 4) + [f"v_add_f32_dpp v{cv+e}, v{cv+e}, v{cv+e} row_ror:8 row_mask:0xf bank_mask:0xf" for e in range(4)] + \
               sw("v_permlane16_swap_b32") + sw("v_permlane32_swap_b32")
        plan = {2: (False, None, lambda: flag_try(a, fr + 4, fa + 4), 1, "e"), 5: [(False, "e", cld1, 4, "c"), (False, None, lambda: flag_try(a, fr, fa), 1, "f")],
                8: (False, "f", ld, 1, "d"), 15: [(False, None, piece(cout, 1), 0, None), (False, "d", fin, 0, None)]}
        plan[9] = (False, None, piece(work, 1), 0, None)
    if which == 3:
        flag_addr(a, fa, ST_G2S)
        a.e(f"v_lshlrev_b32 v{ad}, 3, v1")
        def ld(k0, n_=8):
            def f():
                if k0 == 0:
                    flag_check(a, fr, fa, 16)
                    lsrd(a, 20, oST2, 24576)
                    a.e("s_and_b32 s35, s30, 1"); a.e("s_lshl_b32 s35, s35, 9")
                for k in range(k0, k0 + n_):
                    if k % 4 == 0 or k == k0: a.e(f"s_add_u32 s36, s35, {(k >> 3) * 16384 + (k & 4) * 1024}")
                    a.e(f"buffer_load_dwordx2 {vr(sv+2*k,2)}, v{ad}, s[20:23], s36 offen offset:{(k&3)*1024} {SC}")
            return f
        b = Rec()
        for st_ in (8, 4, 2, 1):
            for k in range(2 * st_): b.e(f"v_add_f32 v{sv+k}, v{sv+k}, v{sv+2*st_+k}")
        o_ = sv + 4
        b.e(f"v_mul_f32 v{o_}, {f32(1/1024)}, v{sv}"); b.e(f"v_mul_f32 v{Q}, {f32(1/1024)}, v{sv+1}")
        b.e(f"v_fma_f32 v{Q}, -v{o_}, v{o_}, v{Q}"); b.e(f"v_max_f32 v{Q}, 0, v{Q}")
        ln_finish(b, o_, Q, rs, o_ + 1)
        b.e(f"v_mul_f32 v{o_+2}, {f32(GC1)}, v{rs}"); b.e(f"v_mul_f32 v{o_+3}, v{rs}, v{rs}")
        b.e(f"v_mul_f32 v{o_+3}, v{o_+3}, v{o_+2}"); b.e(f"v_mul_f32 v{o_+3}, {f32(0.044715)}, v{o_+3}")
        b.e("s_lshl_b32 s35, s35, 1"); b.e(f"s_add_u32 s35, s35, {LNSL}"); b.e(f"v_add_u32 v{tt}, s35, v2")
        b.e(f"ds_write_b128 v{tt}, {vr(o_,4)}"); b.e("s_waitcnt lgkmcnt(0)")
        def both(f, g):
            def h(): f(); g()
            return h
        if os.environ.get("SJ3", "1") == "1":
            plan = {2: (False, None, lambda: cld(0, 3), 3, "c"), 3: (False, None, lambda: cld(3, 6), 3, "c"), 4: [(False, None, lambda: cld(6, 9), 3, "c"), (False, None, lambda: flag_try(a, fr, fa), 1, "f")],
                    6: [(False, "f", ld(0, 4), 4, "d"), (False, None, piece(cadd(1, 5), 1), 0, None)],
                    7: [(False, None, ld(4, 4), 4, "d"), (False, None, both(piece(cadd(5, 9), 1), lambda: cld(9, 12)), 3, "e")],
                    8: [(False, None, ld(8, 4), 4, "d"), (False, None, lambda: cld(12, 14), 2, "e")], 9: [(False, None, ld(12, 4), 4, "d"), (False, None, lambda: cld(14, 16), 2, "e")],
                    11: [(False, "e", piece(b.l[:16]), 0, None)], 12: [(False, None, piece(b.l[16:32]), 0, None), (False, None, piece(cadd(1, 4), 1), 0, None)],
                    13: [(False, None, piece(b.l[32:]), 0, None)], 14: (False, None, piece(cadd(4, 8), 1), 0, None), 15: (False, None, piece(sw("v_permlane32_swap_b32") + cout, 1), 0, None)}
        else:
            plan = {2: (False, None, cld, 4, "c"), 3: (False, None, lambda: cld(4, 9), 5, "c"),
                    5: [(False, "c", piece(cadd(1, 5), 1), 0, None), (False, None, lambda: flag_try(a, fr, fa), 1, "f")],
                    6: (False, None, both(piece(cadd(5, 9), 1), lambda: cld(9, 16)), 7, "e"),
                    7: (False, "f", ld(0), 8, "d"), 8: (False, None, ld(8), 8, "d"),
                    9: (False, "e", piece(cadd(1, 5), 1), 0, None), 10: (False, None, piece(cadd(5, 8), 1), 0, None), 11: (False, None, piece(sw("v_permlane32_swap_b32") + cout, 1), 0, None),
                    12: (False, "d", piece(b.l[:16]), 0, None), 13: (False, None, piece(b.l[16:32]), 0, None), 14: (False, None, piece(b.l[32:]), 0, None)}
    return plan

W2E = int(os.environ.get("W2E", "3"))
def w2_early(a):
    if W2E: w_setup(a, 2, pre=False); w1_slots(a, range(W2E), pace=8)
def w_loader(a, which):
    c = CFG[which]
    if which < 3:
        if which == 1: a.e("s_waitcnt vmcnt(0)")
        if which == 1 and "a" in STO: stouch(a, 3, 128 if "8" in STO else 64, 2); mstamp(a)
        if which == 1 and sum(SG): sb_init(a)
        sg(a, SG[2*which-2])
        if not (which == 1 and "1" in DP): a.e("s_barrier")
        sg(a, SG[2*which-1])
        if which == 1 and "b" in STO: stouch(a, 3, 128 if "8" in STO else 64, 2); mstamp(a)
        if which == 2 and W33 > 1: call(a, third_late)
        if which == 2: a.e("s_waitcnt vmcnt(0)")
        a.e("s_barrier")
        if which == 1 and "p" not in os.environ.get("FO2", "1pd"): late_park(a)
        call(a, after_g1 if which == 1 else after_g2); mstamp(a)
        return
    args = (a, which, c["NW"], c["STB"] // 2048, w_issue, c["NPRE"], c["WR"])
    if which == 4:
        assert c["NW"] == 6 and c["WB"] == CFG[1]["WB"] + 3 * 8192
        a.e("s_cmp_eq_u32 s60, 1"); a.e("s_cbranch_scc1 WL_t1")
        ld_steps(*args, hi=24)
        WT = eval(os.environ.get("WT", "[(11,12,15,9),(13,14,10),(3,4),(5,6,0),(7,8,1,2),()]"))
        def some(js):
            def f():
                if js is WT[0]: w_setup(a, 1, pre=False)
                for j in js:
                    if j in (9, 10) and js is not WT[5]:
                        a.e(f"s_add_u32 s39, s38, {j*64*2048}")
                        for i in range(4): a.e(f"buffer_load_dwordx4 {vr(16+16*(j-9)+4*i,4)}, v{WVB[1]}, s[12:15], s39 offen"); a.e("s_add_u32 s39, s39, 16384")
                    else: w1_slots(a, (j,), pace=8 if js is WT[5] else 0)
            return f
        plan = {24 + i: (False, None, some(WT[i]), 4 * len(WT[i]), "w") for i in range(4) if WT[i]}
        ld_steps(*args, plan=plan, lo=24, last=some(WT[4]))
        rg = [j for j in (9, 10) if j not in WT[5]]
        if rg:
            a.e(f"s_add_u32 s36, s41, {9*8192}"); a.e("v_add_u32 v6, s36, v2"); a.e("s_waitcnt vmcnt(0)")
            for j in rg:
                for i in range(4): a.e(f"ds_write_b128 v6, {vr(16+16*(j-9)+4*i,4)} offset:{(j-9)*8192+i*1024}")
            a.e("s_waitcnt lgkmcnt(0)")
        some(WT[5])(); mstamp(a)
        a.e("s_branch NEXT")
        a.e("WL_t1:")
        ld_steps(*args, hold=HOLD)
        return
    plan = {}
    if "3" in DP:
        lsrd(a, 20, oX1P, XSZ)
        a.e(f"v_readlane_b32 s36, v{TV+3}, 1"); a.e("s_and_b32 s35, s30, 1"); a.e("s_lshl_b32 s46, s35, 18"); a.e("s_lshl_b32 s47, s35, 13"); a.e("s_add_u32 s47, s47, 16384")
        a.e("s_bfe_u32 s37, s36, 0x20002"); a.e("s_lshl_b32 s37, s37, 14"); a.e("s_and_b32 s36, s36, 3"); a.e("s_lshl_b32 s36, s36, 11"); a.e("s_add_u32 s46, s46, s36"); a.e("s_add_u32 s46, s46, s37")
        a.e("v_add_u32 v8, s47, v2")
        if W3E: w_issue(a, 3); args = args[:5] + (3,) + args[6:]
        def second():
            L = a.lab("sp"); D = a.lab("sq")
            a.e("s_mov_b32 s34, m0"); a.e("s_cmp_lg_u32 s60, 0"); a.e(f"s_cbranch_scc1 {L}a")
            lds_spin(a, LW + 60, 1, 6, nap=1)
            a.e(f"{L}a:"); a.e("s_mov_b32 s53, 0")
            if int(os.environ.get("S3D", "0")): a.e("s_sleep " + os.environ["S3D"])
            a.e(f"{L}:"); a.e("s_mov_b32 m0, s47"); a.e("s_mov_b32 s36, s46")
            for i in range(4):
                if i: a.e("s_add_u32 m0, m0, 2048"); a.e("s_add_u32 s36, s36, 65536")
                for k in range(2): a.e(f"buffer_load_dwordx4 v2, s[20:23], s36 offen offset:{1024*k} {SC} lds")
            a.e("s_waitcnt vmcnt(0)")
            for i in range(8): a.e(f"ds_read_b32 v{10+i}, v8 offset:{1024*i}")
            a.e("s_waitcnt lgkmcnt(0)")
            a.e("v_or3_b32 v10, v10, v11, v12"); a.e("v_or3_b32 v13, v13, v14, v15"); a.e("v_or3_b32 v10, v10, v16, v17"); a.e("v_bitop3_b32 v10, v10, v13, s60 bitop3:0xa8")
            a.e("v_cmp_ne_u32 vcc, 0, v10"); a.e(f"s_cbranch_vccz {D}"); a.e("s_sleep 1")
            a.e("s_add_u32 s53, s53, 1"); a.e("s_cmp_lt_u32 s53, s61"); a.e(f"s_cbranch_scc1 {L}"); a.e("s_mov_b32 s61, 0")
            a.e(f"{D}:"); a.e("s_mov_b32 m0, s34")
        plan[1] = (True, None, second, 8, "x")
    elif W33:
        plan[1] = (True, None, lambda: call(a, third_put), 0, None); args = args[:5] + (3,) + args[6:]
    elif W3H: plan[1] = (True, None, lambda: (a.e("s_add_u32 s54, s60, 1"), lds_spin(a, LW + 60, "s54", 6, nap=1)), 0, None)
    def sg3(n):
        def f():
            X = a.lab("st"); a.e("s_cmp_lg_u32 s60, 0"); a.e(f"s_cbranch_scc1 {X}"); sb(a, n); a.e(f"{X}:")
        return f
    for b_, n_ in eval(os.environ.get("SG3", "{}")).items(): plan[b_] = (False, None, sg3(n_), 0, None)
    RPW = int(os.environ.get("RPW", "15"))
    if RPW < 16: plan[RPW] = (False, None, lambda: call(a, r_pre0), 4, "r")
    ld_steps(*args, plan=plan, last=(lambda: r_pre1(a)) if RPW == 16 else None)
W3H = int(os.environ.get("W3H", "0")) or "3" in DP; W3E = int(os.environ.get("W3E", "1"))
W1L = int(os.environ.get("W1L", "3"))

B0E = int(os.environ.get("B0E", "6")); RPL = int(os.environ.get("RPL", "1")); RPC = int(os.environ.get("RPC", "1"))
LF1 = os.environ.get("LF1", "sc1"); LF2 = os.environ.get("LF2", "")
RES2 = 148; C2R = 200; SO3 = 238; RES4 = [172, 176, 180, 184, 188, 192, 196, 240]
def g_compute(a, which):
    c = CFG[which]
    WM, WN, MT, NT, KBT, NS, NA, NW, TN16, STB, WB = [c[k] for k in "WM WN MT NT KBT NS NA NW TN16 STB WB".split()]
    v = VA(6); nm = f"G{which}"
    lane = 1; l16 = 2
    t = v(); t2 = v(); pt = v(4, 2)
    NTILE = (0, 99, 29, 29, 33)[which]
    a_ = a
    if which != 3: a = Rec()
    if WN == 2: a.e("s_lshr_b32 s34, s30, 1"); a.e("s_and_b32 s35, s30, 1")
    else: a.e("s_mov_b32 s34, s30"); a.e("s_mov_b32 s35, 0")
    a0 = v(); w0 = v(4, 1); aa = v(); wa = v(4, 1); J = v(); G = v()
    a.e(f"v_and_b32 v{J}, 15, v{lane}"); a.e(f"v_lshrrev_b32 v{G}, 4, v{lane}")
    a.e(f"s_mul_i32 s37, s34, {MT}")
    a.e(f"s_mul_i32 s38, s{NTILE}, {TN16}"); a.e(f"s_mul_i32 s36, s35, {NT}"); a.e("s_add_u32 s38, s38, s36")
    acc = v(MT * NT * 4, 4); NF = MT + NT if which > 2 else 8
    fX = v(NF * 4, 4); fY = v(NF * 4, 4); tmp = v(); tp = v(4, 2)
    def A_(mt, nt): return acc + 4 * (mt * NT + nt)
    def SUBM(r): return f"{vr(r,2)} op_sel_hi:[1,0] neg_lo:[0,1] neg_hi:[0,1]"
    def MULR(r): return f"{vr(r,2)} op_sel:[0,1] op_sel_hi:[1,1]"
    if which in (2, 4):
        res = RES2
        a.e("s_lshr_b32 s36, s38, 1"); spread(a, 39, 36); a.e("s_lshl_b32 s36, s37, 16"); a.e("s_add_u32 s39, s39, s36")
    if which <= 2:
        AB = 164; LO = v(8, 1)
        def aload(b, kk):
            if which == 1: return [f"buffer_load_dwordx4 {vr(AB+16*b+8*kk+4*mt,4)}, v{LO+mt+(b&2)}, s[8:11], s44 offen offset:{(b&1)*2048+kk*1024} {LF1}" for mt in range(2)]
            return [f"buffer_load_dwordx4 {vr(AB+16*b+8*kk+4*mt,4)}, v{LO+mt}, s[8:11], s44 offen {LF2}" for mt in range(2)]
        def seq(pairs, s0):
            if which == 1: return [x for b, kk in pairs for x in aload(b, kk)]
            return ([f"s_mov_b32 s44, {s0}"] if s0 is not None else []) + [x for b, kk in pairs for x in aload(b, kk) + ["s_add_u32 s44, s44, 16384"]]
        def past(l): return [x + (SC if x.startswith("buffer") and SC not in x else "") for x in l]
        PR = [(i >> 1, i & 1) for i in range(7)]
        h = Rec()
        if which == 1:
            lsrd(h, 8, oX3, XSZ); OOB = MB
            for i in range(4): (h if i < 2 else a).e(f"v_add_u32 v{LO+i}, {(i & 1) * 65536 + (i >> 1) * 4096}, v{l16}")
            h.e("s_lshl_b32 s44, s30, 17")
            for i in range(1, 4): a.e(f"s_add_u32 s{44+i}, s44, {16384*i}")
        else:
            OOB = 0x40000000; LP = v(2, 1)
            h.srd(8, 4, 8 * GSTR + LSTR, off=LB0 + oHS)
            h.e(f"s_sub_u32 s47, s55, {LB0 + oSM}"); h.e("s_lshl_b32 s46, s30, 9"); h.e("s_add_u32 s47, s47, s46")
            h.e("s_add_u32 s45, s92, 2048"); h.e("s_cmp_eq_u32 s28, 0"); h.e(f"s_cselect_b32 s45, {OOB}, s45"); h.e("s_cmp_eq_u32 s30, 0"); h.e("s_cselect_b32 s45, s45, 0")
            a.e("s_sub_u32 s46, s93, 2048"); a.e("s_cmp_eq_u32 s28, 15"); a.e(f"s_cselect_b32 s46, {OOB}, s46"); a.e("s_cmp_eq_u32 s30, 3"); a.e("s_cselect_b32 s46, s46, 0")
            for q_, sh in enumerate((1, -1, 2, -2)):
                e_ = h if q_ == 0 else a
                e_.e(f"s_add_u32 s53, s47, {(-16 * sh) & 0xffffffff:#x}"); e_.e(f"v_add_u32 v{LO+2*q_}, s53, v{a0}"); e_.e(f"v_add_u32 v{LO+2*q_+1}, 256, v{LO+2*q_}")
                R_ = LO + 2 * q_ + (0 if sh > 0 else 1)
                e_.e(f"v_add_u32 v{LP}, s{45 if sh > 0 else 46}, v{R_}")
                e_.e(f"v_cmp_gt_u32 vcc, {sh}, v{J}" if sh > 0 else f"v_cmp_le_u32 vcc, {16 + sh}, v{J}"); e_.e(f"v_cndmask_b32 v{R_}, v{R_}, v{LP}, vcc")
            for k in range(2): a.e(f"v_mov_b32 v{LP+k}, v{LO+k}")
        EARLY = str(which) in DP and str(which) in os.environ.get("EP", "2")
        try0 = past(seq(PR[:2], 0))
        for x in h.l: a_.e(x)
        if EARLY and which == 1:
            for x in try0: a_.e(x)
    else:
        a.e(f"s_mul_i32 s36, s34, {MT*2048}"); a.e(f"v_add_u32 v{a0}, s36, v{l16}")
    nwr, wpos = w_bases(a, which, w0, 35, NT, t, t2)
    if which <= 2:
        for x in a.l: a_.e(x)
    a = a_
    if which == 3 and not B0E: publish(a, ST_G2S, 4, pt, ctr=48)
    if which == 2:
        a.e(f"s_lshl_b32 s36, s37, 8"); a.e(f"s_add_u32 s36, s36, {LNSL}"); a.e(f"v_lshlrev_b32 v{t2}, 4, v{J}"); a.e(f"v_add_u32 v{t2}, s36, v{t2}")
        for mt in range(MT): a.e(f"ds_read_b64 {vr(fX+2*mt,2)}, v{t2} offset:{mt*256}")
        a.e("s_waitcnt vmcnt(4) lgkmcnt(0)")
        if EARLY:
            if int(os.environ.get("G2D", "3")): a.e("s_sleep " + os.environ.get("G2D", "3"))
            if int(os.environ.get("G2D0", "2")): a.e("s_cmp_lg_u32 s60, 0"); a.e("s_cbranch_scc1 G2_nd"); a.e("s_sleep " + os.environ.get("G2D0", "2")); a.e("G2_nd:")
            for x in try0: a.e(x)
        for mt in range(MT):
            for p in range(NT // 2):
                for e in range(4):
                    X = A_(mt, 2 * p) + 2 * e
                    unpack(a, X, X + 1, res + (mt * (NT // 2) + p) * 4 + e)
                    a.e(f"v_pk_add_f32 {vr(X,2)}, {vr(X,2)}, {SUBM(fX+2*mt)}"); round2(a, X, X + 1, tmp)
                    a.e(f"v_pk_mul_f32 {vr(X,2)}, {vr(X,2)}, {MULR(fX+2*mt)}"); round2(a, X, X + 1, tmp)
    elif which == 1:
        for i in range(0, MT * NT * 4, 2): a.e(f"v_pk_mov_b32 {vr(acc+i,2)}, 0, 0")
    RX = [180, 184, 188, 192, 196, 230, 234, 248]
    def last_res():
        b0 = Rec()
        for i in range(2):
            b0.e(f"s_add_u32 s36, s40, {i*65536}")
            for p in range(2):
                b0.e(f"buffer_load_dwordx4 {vr(RX[2*(2*i+p)],4)}, v{l16}, s[84:87], s36 offen offset:{p*1024} {SC}")
                b0.e(f"buffer_load_dwordx4 {vr(RX[2*(2*i+p)+1],4)}, v{l16}, s[88:91], s36 offen offset:{p*1024} {SC}")
        return b0.l
    def reads(F, kk):
        o = []
        for mt in range(MT): o.append(f"ds_read_b128 {vr(F+4*mt,4)}, v{aa} offset:{mt*256+kk*8192 if which == 2 else mt*2048+kk*1024}")
        for nt in range(NT):
            for h in range(2):
                r, imm = wpos(nt, kk, h)
                o.append(f"ds_read_b64_tr_b16 {vr(F+4*(MT+nt)+2*h,2)}, v{wa+r} offset:{imm}")
        NR = os.environ.get("NOREAD")
        if NR == "N": o = []
        if NR == "A": o = o[MT:]
        if NR == "W": o = o[:MT]
        if NR == "H": o = o[::2]
        if NR == "X": o = o + o[:2]
        if NR == "XX": o = o + o[:MT]
        return o
    def mix(rd, ex):
        rd = list(rd)
        for i, x in enumerate(ex): rd.insert(min(len(rd), (i + 1) * len(rd) // (len(ex) + 1)), x)
        return rd
    def mfmas(F, rd, tail=()):
        n = MT * NT; k = 0; tot = len(rd); span = max(1, n * 3 // 4); done = 0; tail = list(tail); per = -(-len(tail) // max(1, n - span))
        OR = os.environ.get("ORDER", "2")
        order = {"0": [(nt, mt) for nt in range(NT) for mt in range(MT)],
                 "1": [(nt, mt) for mt in range(MT) for nt in range(NT)],
                 "2": [(nt, mt if nt % 2 == 0 else MT - 1 - mt) for nt in range(NT) for mt in range(MT)],
                 "3": [(nt if mt % 2 == 0 else NT - 1 - nt, mt) for mt in range(MT) for nt in range(NT)]}[OR]
        for nt, mt in order:
            if True:
                cc = acc + 4 * (mt * NT + nt)
                if str(which) not in os.environ.get("NOMF", ""): a.e(f"v_mfma_f32_16x16x32_bf16 {vr(cc,4)}, {vr(F+4*(MT+nt),4)}, {vr(F+4*mt,4)}, {vr(cc,4)}")
                k += 1
                while rd and done < (tot * k + span - 1) // span: a.e(rd.pop(0)); done += 1
                if k >= span and k < n:
                    for _ in range(min(per, len(tail))): a.e(tail.pop(0))
        assert not rd and not tail
    so = SO3 if which == 3 else a0; cs = fX; lns = fX + 4 * NT; G4W = 240; EA = 244
    def ep_setup(b):
        if which in (1, 3):
            assert which == 1 or (fY <= C2R and C2R + 24 <= fY + 4 * NF)
            b.e(f"s_mul_i32 s36, s35, {NT*64}"); b.e(f"s_add_u32 s36, s36, {CSO[which]}"); b.e(f"v_lshlrev_b32 v{t}, 4, v{G}"); b.e(f"v_add_u32 v{t}, s36, v{t}")
            b.e(f"s_lshl_b32 s36, s37, 8"); b.e(f"s_add_u32 s36, s36, {LNSL + (8 if which == 1 else 0)}"); b.e(f"v_lshlrev_b32 v{t2}, 4, v{J}"); b.e(f"v_add_u32 v{t2}, s36, v{t2}")
        if which == 3:
            lsrd(b, 16, oH2, H2SZ)
            b.e(f"s_mul_i32 s39, s37, {224*1024}")
            for P in range(4):
                b.e("s_lshr_b32 s36, s38, 1"); b.e(f"s_add_u32 s36, s36, {P}"); spread(b, 44 + P, 36); b.e(f"s_add_u32 s{44+P}, s{44+P}, s39")
            w_bases(b, 4, G4W, 35, 4, tp, tp + 1)
            b.e("s_lshl_b32 s38, s33, 3"); b.e("s_lshl_b32 s36, s35, 2"); b.e("s_add_u32 s38, s38, s36")
            b.e("s_lshr_b32 s36, s38, 1"); spread(b, 39, 36); b.e("s_lshl_b32 s36, s37, 16"); b.e("s_add_u32 s39, s39, s36")
            b.e("s_lshl_b32 s40, s31, 17"); b.e("s_add_u32 s40, s40, s39")
            b.e("s_xor_b32 s41, s31, 1"); b.e("s_lshl_b32 s41, s41, 17"); b.e("s_add_u32 s41, s41, s39")
            lsrd(b, 84, oX3, XSZ); lsrd(b, 88, oX1P, XSZ)
            b.e("s_lshl_b32 s36, s37, 1"); b.e("s_add_u32 s36, s36, s35"); b.e("s_lshl_b32 s36, s36, 10"); b.e(f"v_add_u32 v{EA}, s36, v{l16}")
            b.e(f"v_mov_b32 v{EA+1}, 1"); b.e(f"v_mov_b32 v{EA+2}, {LW+64}")
            b.e(f"v_lshrrev_b32 v{so}, 1, v{G}"); b.e(f"v_lshlrev_b32 v{so}, 8, v{so}"); b.e(f"v_lshl_add_u32 v{so}, v{J}, 4, v{so}")
            b.e(f"v_and_b32 v{tmp}, 1, v{G}"); b.e(f"v_lshl_add_u32 v{so}, v{tmp}, 3, v{so}")
        if which == 1:
            lsrd(b, 16, oHS, XSZ)
            b.e(f"v_lshlrev_b32 v{so}, 11, v{G}"); b.e(f"v_lshl_add_u32 v{so}, v{J}, 4, v{so}")
            b.e("s_lshl_b32 s39, s38, 13"); b.e("s_lshl_b32 s36, s37, 8"); b.e("s_add_u32 s39, s39, s36"); b.e("s_add_u32 s40, s39, 16384")
            b.e("s_lshl_b32 s36, s29, 1"); spread(b, 41, 36); b.e("s_lshl_b32 s36, s37, 16"); b.e("s_add_u32 s41, s41, s36")
        if which == 2: lsrd(b, 16, oX1P, XSZ)
    def cost(x): return sum(8 if y.startswith("ds_") else 4 for y in x.split("\n"))
    def group(F, rd, r0, ex, fixed={}, zero=False):
        n = MT * NT; ex = [x if isinstance(x, tuple) else (x, -1) for x in ex]; done = 0
        order = [(nt, mt if nt % 2 == 0 else MT - 1 - mt) for nt in range(NT) for mt in range(MT)]
        need = sum(cost(x) for x, _ in ex) + 8 * len(rd) + sum(cost(x) for l in fixed.values() for x in l)
        cap = max(12, -(-need // (4 * n)) * 4)
        for k, (nt, mt) in enumerate(order):
            cc = A_(mt, nt)
            if str(which) not in os.environ.get("NOMF", ""): a.e(f"v_mfma_f32_16x16x32_bf16 {vr(cc,4)}, {vr(F+4*(MT+nt),4)}, {vr(F+4*mt,4)}, {0 if zero else vr(cc,4)}")
            b_ = cap - sum(cost(x) for x in fixed.get(k, [])); nv = 0
            if k >= r0 and done < len(rd): a.e(rd[done]); done += 1; b_ -= 8
            while ex and ex[0][1] < done and (cost(ex[0][0]) <= b_ or k == n - 1) and not (nv >= (1 if rd else 2) and ex[0][0].startswith("v_") and cap == 12 and k < n - 1):
                x = ex.pop(0)[0]; a.e(x); b_ -= cost(x); nv += x.startswith("v_")
            for x in fixed.get(k, []): a.e(x)
        assert done == len(rd) and not ex
    NR_ = MT + 2 * NT; BP = eval(os.environ.get("BP", "{3:3,4:2}")).get(which, 0)
    def stage(ex=(), ey=(), lim=NS-1, late=False, zero=False, pre=()):
        if str(which) in os.environ.get("GST", "") or os.environ.get("JIT"): mstamp(a, True)
        if which == 3: last = {0: NR_ - 1, 1: NR_ - 3}
        else: last = {i: MT + 2 * i + 1 for i in range(4)}
        book = ["s_add_u32 s42, s42, 16384", f"s_cmp_eq_u32 s42, {NA*16384}", "s_cselect_b32 s42, 0, s42",
                f"s_add_u32 s48, s48, {STB}", f"s_cmp_eq_u32 s48, {NW*STB}", "s_cselect_b32 s48, 0, s48", (f"v_add_u32 v{aa}, s42, v{a0}", MT - 1)]
        book += sorted([(f"v_add_u32 v{wa+i}, s48, v{w0+i}", last[i]) for i in range(nwr)], key=lambda x: x[1])
        n = MT * NT
        group(fX, reads(fY, 1), 0, book[:7] + list(ex) + book[7:], {3: [f"s_waitcnt lgkmcnt({min(15, NR_ - MT - 4 + 4)})"], 7: ["s_waitcnt lgkmcnt(8)"], n - 1: [f"s_waitcnt lgkmcnt({NR_ - MT - 2})"]}, zero)
        if late:
            b_ = Rec(); ep_setup(b_)
            group(fY, [], 0, ["s_add_u32 s43, s43, 1"] + b_.l, {min(BP, 3): ["s_waitcnt lgkmcnt(0)"]})
            if B0E: publish(a, ST_G2S, 4, pt, ctr=48)
            a.e("s_barrier")
            for x in reads(fX, 0): a.e(x)
            a.e(f"s_waitcnt lgkmcnt({NR_ - MT - 2})")
            return
        group(fY, reads(fX, 0), BP + 1, list(ey) + ["s_add_u32 s43, s43, 1", f"s_cmp_lt_u32 s43, {lim}"],
              {BP - 1: list(pre), BP: ["s_waitcnt lgkmcnt(0)", "s_barrier"], n - 1: [f"s_waitcnt lgkmcnt({NR_ - MT - 2})"]})
    w00 = c["S0"] * STB
    if which <= 2:
        def wrd(p, b): return [f"ds_read_b64_tr_b16 {vr((fX, fY)[p]+16*kk+4*nt+2*h,2)}, v{w0+nt} offset:{b*STB + wpos(nt, kk, h)[1]}" for kk in range(2) for nt in range(4) for h in range(2)]
        def dmf(b, fill, lo=0, hi=16):
            k = 0
            for kk in range(2):
                for nt in range(4):
                    for mt in ((0, 1) if nt % 2 == 0 else (1, 0)):
                        if lo <= k < hi:
                            a.e(f"v_mfma_f32_16x16x32_bf16 {vr(A_(mt,nt),4)}, {vr((fX, fY)[b&1]+16*kk+4*nt,4)}, {vr(AB+16*b+8*kk+4*mt,4)}, {vr(A_(mt,nt),4)}")
                            for x in fill[k]: a.e(x)
                        k += 1
        def spreadf(l, lo, hi):
            f = [[] for _ in range(16)]
            for i, x in enumerate(l): f[lo + i * (hi - lo) // len(l)].append(x)
            return f
        a.e("s_mov_b32 s43, 0"); ep_setup(a)
        CK = str(which) in DP; ck_ = aa
        def check(b):
            B = AB + 16 * b
            return [f"v_or3_b32 v{ck_}, v{B}, v{B+4}, v{B+8}", f"v_bitop3_b32 v{ck_}, v{ck_}, v{B+12}, 1 bitop3:0xa8", f"v_cmp_ne_u32 vcc, 0, v{ck_}"]
        L = a.lab("dm"); assert CK
        a.e("s_mov_b32 s53, 0"); a.e("s_mov_b32 s49, s44")
        if which == 2: a.e("s_barrier")
        for x in wrd(0, 0): a.e(x)
        if EARLY: a.e(f"s_branch {L}w")
        a.e(f"{L}p:")
        for x in try0: a.e(x)
        a.e(f"{L}w:")
        a.e("s_waitcnt vmcnt(0)")
        for x in check(0): a.e(x)
        a.e(f"s_cbranch_vccz {L}q"); a.e(f"s_sleep {os.environ.get('GNAP', '2')}")
        a.e("s_add_u32 s53, s53, 1"); a.e("s_cmp_lt_u32 s53, s61"); a.e(f"s_cbranch_scc1 {L}p"); a.e("s_mov_b32 s61, 0")
        a.e(f"{L}q:")
        mstamp(a)
        for x in seq(PR[2:], None): a.e(x)
        a.e("s_waitcnt lgkmcnt(0)")
        a.e(f"{L}:")
        for b in range(4):
            rd = wrd(1 - (b & 1), (b + 1) & 3); ex = [[] for _ in range(16)]
            ex[0], ex[1] = [[x] for x in aload((b - 1) & 3, 1)]
            if b == 0 and which == 1:
                for i, x in enumerate(["s_mov_b32 s44, s45", "s_mov_b32 s45, s46", "s_mov_b32 s46, s47", f"s_mov_b32 s47, {OOB}"]): ex[2 + i].append(x)
            if which == 2:
                ex[2].append("s_add_u32 s44, s44, 16384"); ex[10].append("s_add_u32 s44, s44, 16384")
                mv = [f"v_mov_b32 v{LO+k}, v{LO+k+2}" for k in range(6)] + [f"v_mov_b32 v{LO+6+k}, {OOB}" for k in range(2)]
                if b < 2:
                    for i, x in enumerate(mv[4*b:4*b+4]): ex[3 + i].append(x)
                if b == 3:
                    for k in range(2): ex[3 + k].append(f"v_mov_b32 v{LP+k}, v{LO+k}")
            if b == 2:
                ex[4].append("s_add_u32 s43, s43, 1"); ex[14].append("s_cmp_eq_u32 s43, 4")
                for nt, g_ in enumerate((11, 12, 13, 15)): ex[g_].append(f"v_add_u32 v{w0+nt}, {4*STB}, v{w0+nt}")
            if b == 3 and which == 1: ex[2].append("s_mov_b32 s49, s44")
            ex[7].append("s_waitcnt lgkmcnt(8)")
            ex[8], ex[9] = [[x] for x in aload(b, 0)]
            ex[10].append("s_waitcnt vmcnt(10)")
            if CK:
                for i, x in enumerate(check((b + 1) & 3)): ex[11 + i].append(x)
            fill = [rd[i:i+1] + ex[i] for i in range(16)]
            fill[14] = rd[14:16] + ex[14]; fill[15] = ex[15] + ["s_waitcnt lgkmcnt(8)"]
            if CK: fill[15] += [f"s_cbranch_vccnz {L}f{b}", f"{L}g{b}:"]
            if b == 2: fill[15].append(f"s_cbranch_scc1 {L}x")
            if b == 3: fill[15].append(f"s_branch {L}")
            dmf(b, fill)
        for b in range(4 if CK else 0):
            nb = (b + 1) & 3
            a.e(f"{L}f{b}:"); a.e("s_cselect_b32 s50, 1, 0")
            a.e(f"{L}h{b}:"); a.e(f"s_sleep {os.environ.get('GNAP', '2')}")
            if which == 2: a.e(f"s_sub_u32 s44, s44, {7*16384}")
            for j in range(4):
                bb = (nb + j) & 3
                for kk in range(2 if j < 3 else 1):
                    for x in past(seq([(bb, kk)], None)):
                        if bb >= nb and which == 1: x = x.replace("s44", "s49")
                        if bb >= nb and which == 2: x = x.replace(f", v{LO}, ", f", v{LP}, ").replace(f", v{LO+1}, ", f", v{LP+1}, ")
                        a.e(x)
            a.e("s_waitcnt vmcnt(10)")
            for x in check(nb): a.e(x)
            a.e("s_add_u32 s53, s53, 1"); a.e("s_cmp_ge_u32 s53, s61"); a.e("s_cselect_b32 s61, 0, s61"); a.e(f"s_cbranch_scc1 {L}k{b}")
            a.e(f"s_cbranch_vccnz {L}h{b}")
            a.e(f"{L}k{b}:"); a.e("s_cmp_eq_u32 s50, 1"); a.e(f"s_branch {L}g{b}")
        a.e(f"{L}x:")
    else:
        if which == 3:
            a.e(f"v_mov_b32 v{aa}, v{a0}")
            a.e("s_mov_b32 s42, 0"); a.e("s_mov_b32 s43, 0"); a.e(f"s_mov_b32 s48, {w00}")
            for i in range(nwr): a.e(f"v_add_u32 v{wa+i}, {w00}, v{w0+i}")
        if not (which == 3 and B0E): a.e("s_waitcnt lgkmcnt(0)"); a.e("s_barrier")
        mstamp(a)
        for x in reads(fX, 0): a.e(x)
        a.e(f"s_waitcnt lgkmcnt({NR_ - MT - 2})")
    if which == 4:
        def st2(j): return [(x, 0) for x in [f"s_add_u32 s36, s44, {j*224*1024}", f"buffer_store_dwordx4 {vr(C2R+4*j,4)}, v{l16}, s[16:19], s36 offen {SC}",
                            f"s_add_u32 s36, s45, {j*224*1024}", f"buffer_store_dwordx2 {vr(C2R+16+2*j,2)}, v{SO3}, s[16:19], s36 offen {SC}"]]
        assert PBB in (1, 2) and PC0 >= 2
        for st_ in range(2): stage(st2(2 * st_), st2(2 * st_ + 1), zero=st_ == 0, pre=[f"s_waitcnt vmcnt({4 * st_ + 2})"] if PBB == st_ + 1 else [])
        CW = 0
        if PC0 > 3:
            L0 = a.lab("mm"); a.e(f"{L0}:"); stage(lim=PC0); a.e(f"s_cbranch_scc1 {L0}")
        elif PC0 == 3: stage()
    if which == 3 and os.environ.get("PEEL3", "1") == "1": stage(late=True, zero=True)
    if which > 2:
        L = a.lab("mm"); a.e(f"{L}:")
        stage(pre=[f"s_waitcnt vmcnt({CW})"] if which == 4 else [])
        a.e(f"s_cbranch_scc1 {L}")
    b0 = Rec()
    if which == 4:
        a.e("s_cmp_eq_u32 s60, 1"); a.e("s_cbranch_scc1 G4_last")
        if not RPC: r_pre(b0)
    if which == 1:
        for mt in range(MT):
            for p in range(NT // 2): b0.e(f"buffer_load_dwordx4 {vr(RES2+(mt*(NT//2)+p)*4,4)}, v{LO+mt}, s[8:11], s41 offen offset:{p*1024} {SC}")
    early = True
    XW = {3: [f"s_waitcnt lgkmcnt({min(15, NR_ - MT)})"], 7: ["s_waitcnt lgkmcnt(8)"]}
    if which <= 2: dmf(3, spreadf(b0.l, 0, 8), 0, 8)
    else: group(fX, reads(fY, 1), 0, b0.l, XW)
    a.e("s_waitcnt lgkmcnt(0)")
    if which not in DL: a.e("s_barrier")
    b = Rec()
    if which in (1, 3):
        for nt in range(NT): b.e(f"ds_read_b128 {vr(cs+4*nt,4)}, v{t} offset:{nt*64}")
        if which == 3:
            for mt in range(MT): b.e(f"ds_read_b128 {vr(lns+4*mt,4)}, v{t2} offset:{mt*256}")
            for i in range(4): b.e(f"v_mov_b32 v{w0+i}, v{G4W+i}"); b.e(f"v_add_u32 v{wa+i}, {CFG[4]['S0']*CFG[4]['STB']}, v{G4W+i}")
            b.e("s_mov_b32 s42, 0"); b.e("s_mov_b32 s43, 0"); b.e(f"s_mov_b32 s48, {CFG[4]['S0']*CFG[4]['STB']}"); b.e(f"v_mov_b32 v{aa}, v{a0}")
            assert fY + 16 == RFO; r_addr(b, False)
        else:
            for mt in range(MT): b.e(f"ds_read_b64 {vr(lns+2*mt,2)}, v{t2} offset:{mt*256}")
    if which == 2: lsrd(b, 44, oST2, 24576)
    if which == 4:
        b.e(f"s_mul_i32 s36, s31, {oP1-oP0}"); b.e(f"s_add_u32 s36, s36, {oP0}")
        b.e("s_add_u32 s16, s62, s36"); b.e("s_addc_u32 s17, s63, 0"); b.e(f"s_mov_b32 s18, {XSZ}"); b.e("s_mov_b32 s19, 0x20000")
    if which <= 2: dmf(3, spreadf(b.l, 8, 15), 8, 16)
    else: group(fY, [], 0, b.l)
    mstamp(a)
    if which in (1, 3):
        AB = v(2 * MT, 2) if which == 1 else fY + 4
        def consts():
            for mt in range(MT if which == 1 else 0):
                r = lns + 2 * mt + 1
                a.e(f"v_mul_f32 v{AB+2*mt}, {f32(GC1)}, v{r}"); a.e(f"v_mul_f32 v{AB+2*mt+1}, v{r}, v{r}")
                a.e(f"v_mul_f32 v{AB+2*mt+1}, v{AB+2*mt+1}, v{AB+2*mt}"); a.e(f"v_mul_f32 v{AB+2*mt+1}, {f32(0.044715)}, v{AB+2*mt+1}")
                a.e(f"v_rcp_f32 v{r}, v{r}")
        def act(mt, nt):
            A = A_(mt, nt); P_ = [(A, tp), (A + 2, tp + 2)]; L_ = vr(lns + 2 * mt, 2); K_ = vr(AB + 2 * mt, 2)
            if which == 3: L_ = vr(lns + 4 * mt, 2); K_ = vr(lns + 4 * mt + 2, 2)
            for h in range(2):
                a.e(f"v_pk_fma_f32 {vr(A+2*h,2)}, {L_}, {vr(cs+4*nt+2*h,2)}, {vr(A+2*h,2)} op_sel_hi:[0,1,1] neg_lo:[1,0,0] neg_hi:[1,0,0]")
            for x, u in P_: a.e(f"v_pk_mul_f32 {vr(u,2)}, {vr(x,2)}, {vr(x,2)}")
            for x, u in P_: a.e(f"v_pk_fma_f32 {vr(u,2)}, {vr(u,2)}, {K_}, {K_} op_sel:[0,1,0] op_sel_hi:[1,1,0]")
            for x, u in P_: a.e(f"v_pk_mul_f32 {vr(u,2)}, {vr(u,2)}, {vr(x,2)}")
            for i in range(4): a.e(f"v_exp_f32 v{tp+i}, v{tp+i}")
            for x, u in P_: a.e(f"v_pk_fma_f32 {vr(u,2)}, {vr(u,2)}, {L_}, {L_} op_sel:[0,1,1] op_sel_hi:[1,1,1]")
            for i in range(4): a.e(f"v_rcp_f32 v{tp+i}, v{tp+i}")
            for x, u in P_: a.e(f"v_pk_mul_f32 {vr(x,2)}, {vr(x,2)}, {vr(u,2)}")
        def egroup(par, mt, nts, dst=None):
            for nt in nts: act(mt, nt)
            T = par * NT + nts[0]; P = (T >> 1) - ((par * NT) >> 1); B = A_(mt, nts[0]); D = B if dst is None else dst
            for k in range(2 * len(nts)): a.e(f"v_cvt_pk_bf16_f32 v{D+k}, v{B+2*k}, v{B+2*k+1}")
            if which == 3 and (mt < 3 or "3" in DP) and "1" in DP: mark(a, D, 1)
            if which == 1: mark(a, D, 0)
            if which == 3: return [f"s_add_u32 s36, s{44+P}, {mt*224*1024}", f"buffer_store_dwordx4 {vr(B,4)}, v{l16}, s[16:19], s36 offen {SC}"]
            return [f"buffer_store_dwordx4 {vr(B,4)}, v{so}, s[16:19], s{39+P} offen offset:{mt*256} {SC}"]
        def body(par):
            if which == 1: gs = [(0, 1), (2, 3)]
            else: gs = [(0, 1), (2, 3), (4, 5), (6,)] if par == 0 else [(1, 2), (3, 4), (5, 6), (0,)]
            k = 0; pend = []; sent = 0
            for gi_, g_ in enumerate(gs):
                for mt in range(MT):
                    if which == 3 and k == C0PUB:
                        a.e(f"s_waitcnt vmcnt({sent - 4})"); a.e("s_mov_b64 exec, 1"); a.e(f"ds_add_u32 v{EA+2}, v{EA+1}"); a.e("s_mov_b64 exec, -1"); mstamp(a)
                    if which == 3 and k == RK:
                        b_ = Rec(); r_pre(b_); l_ = [x for x in b_.l if x.startswith(("buffer", "s_mov_b32 s78"))]
                        a.e("s_cmp_eq_u32 s60, 1"); a.e(f"s_cbranch_scc1 G4_p1{par}")
                        for x in l_: a.e(x)
                        a.e(f"s_branch G4_p2{par}"); a.e(f"G4_p1{par}:")
                        for x in last_res(): a.e(x)
                        a.e(f"G4_p2{par}:")
                        if 4 <= k < C0PUB: sent += 8
                    st_ = egroup(par, mt, g_, None if gi_ < 2 else C2R + 4 * mt if gi_ == 2 else C2R + 16 + 2 * mt); k += 1
                    if which == 3 and gi_ < 3:
                        a.e(f"ds_write_b128 v{EA}, {vr(A_(mt, g_[0]) if gi_ < 2 else C2R + 4 * mt, 4)} offset:{gi_*16384 + mt*2048}")
                    if gi_ < 2: pend.append(st_)
                    n = len(pend) if (which == 1 or k <= 4 or k == 16) else 0 if k <= STQ else min(1, len(pend))
                    for _ in range(n):
                        for x in pend.pop(0): a.e(x)
                        sent += 1
            if which == 3:
                a.e("s_waitcnt lgkmcnt(0)")
                if par == 0: a.e("s_mov_b32 s44, s46"); a.e("s_mov_b32 s45, s47")
                else: a.e("s_add_u32 s45, s44, 512"); a.e("s_mov_b32 s44, s47")
        a.e("s_waitcnt lgkmcnt(0)")
        consts()
        if which == 3:
            a.e("s_cmp_eq_u32 s35, 1"); a.e(f"s_cbranch_scc1 {nm}_e1")
            body(0); a.e(f"s_branch {nm}_e2"); a.e(f"{nm}_e1:"); body(1); a.e(f"{nm}_e2:")
        else: body(0)
    if which == 2:
        xf = v(2, 2); S = v(2 * MT, 2); pp = v(2, 2); mn = v(2, 2)
        for mt in range(MT):
            a.e(f"s_add_u32 s36, s39, {mt*65536}")
            for p in range(NT // 2):
                R = res + (mt * (NT // 2) + p) * 4
                for e in range(4):
                    X = A_(mt, 2 * p) + 2 * e
                    a.e(f"v_cvt_pk_bf16_f32 v{R+e}, v{X}, v{X+1}")
                if DP: mark(a, R, 0)
                a.e(f"buffer_store_dwordx4 {vr(R,4)}, v{l16}, s[16:19], s36 offen offset:{p*1024} {SC}")
        if which in DL: a.e("s_barrier")
        if OWN3:
            a.e("s_lshl_b32 s36, s37, 11"); a.e(f"v_add_u32 v{t2}, s36, v{l16}")
            for i in range(4): a.e(f"ds_write_b128 v{t2}, {vr(res+4*i,4)} offset:{1024*i}")
        for i in range(MT * NT * 2): unpack(a, acc + 2 * i, acc + 2 * i + 1, res + i)
        mstamp(a)
        publish(a, which, 4, pt)
        if B0E: a.e("s_waitcnt lgkmcnt(0)"); a.e("s_barrier")
        mstamp(a)
        for mt in range(MT):
            B = A_(mt, 0); Sm = S + 2 * mt
            a.e(f"v_pk_add_f32 {vr(pp,2)}, {vr(B,2)}, {vr(B+2,2)}"); a.e(f"v_pk_mul_f32 {vr(xf,2)}, {vr(B,2)}, {vr(B,2)}")
            for i in range(1, NT * 2):
                if i > 1: a.e(f"v_pk_add_f32 {vr(pp,2)}, {vr(pp,2)}, {vr(B+2*i,2)}")
                a.e(f"v_pk_fma_f32 {vr(xf,2)}, {vr(B+2*i,2)}, {vr(B+2*i,2)}, {vr(xf,2)}")
            a.e(f"v_add_f32 v{Sm}, v{pp}, v{pp+1}"); a.e(f"v_add_f32 v{Sm+1}, v{xf}, v{xf+1}")
            for op in ("v_permlane16_swap_b32", "v_permlane32_swap_b32"):
                for k in range(2): a.e(f"v_mov_b32 v{pp+k}, v{Sm+k}")
                for k in range(2): a.e(f"{op} v{Sm+k}, v{pp+k}")
                a.e(f"v_pk_add_f32 {vr(Sm,2)}, {vr(Sm,2)}, {vr(pp,2)}")
        a.e(f"v_cmp_eq_u32 vcc, 0, v{G}"); a.e(f"v_cndmask_b32 v{S}, v{S+2}, v{S}, vcc"); a.e(f"v_cndmask_b32 v{S+1}, v{S+3}, v{S+1}, vcc")
        spread(a, 40, 29); a.e("s_lshl_b32 s36, s34, 8"); a.e("s_add_u32 s40, s40, s36")
        a.e(f"v_lshlrev_b32 v{t2}, 3, v{lane}")
        a.e("s_bfm_b64 exec, 32, 0")
        a.e(f"buffer_store_dwordx2 {vr(S,2)}, v{t2}, s[44:47], s40 offen {SC}")
        a.e("s_mov_b64 exec, -1")
    if which == 4:
        for mt in range(MT):
            a.e(f"s_add_u32 s36, s39, {mt*65536}")
            for p in range(NT // 2):
                B = A_(mt, 2 * p)
                for e in range(4): a.e(f"v_cvt_pk_bf16_f32 v{B+e}, v{B+2*e}, v{B+2*e+1}")
                if "r" in DP: mark(a, B, 1)
                a.e(f"buffer_store_dwordx4 {vr(B,4)}, v{l16}, s[16:19], s36 offen offset:{p*1024} {SC}")
    if which != 2:
        if which in DL: a.e("s_barrier")
        mstamp(a)
        if which == 4 and "r" not in DP: publish(a, which, 4, pt)
        mstamp(a)
    if which == 4:
        a.e("s_branch NEXT")
        a.e("G4_last:")
        PX = 208; oa = 224; xf = 226
        group(fX, reads(fY, 1), 0, [(f"s_load_dwordx2 s[6:7], s[0:1], {D_OUT}", 9)], XW)
        a.e("s_waitcnt lgkmcnt(0)")
        b = Rec()
        lsrd(b, 16, oX1P if "f" in DP else MB, XSZ)
        b.srd(20, 6, 4 * MB)
        if "f" not in DP:
            b.e("s_lshl_b32 s44, s29, 2"); b.e("s_add_u32 s44, s44, s30"); b.e("s_lshl_b32 s44, s44, 7"); b.e("s_xor_b32 s45, s44, 4096")
            b.e("s_add_u32 s44, s44, s55"); b.e(f"s_add_u32 s44, s44, {oFP}"); b.e("s_add_u32 s45, s45, s55"); b.e(f"s_add_u32 s45, s45, {oFP}")
            b.e(f"v_mov_b32 v{pt+1}, s45"); b.e(f"v_mov_b32 v{pt+2}, s52"); b.e(f"v_mov_b32 v{pt+3}, 0")
        else: b.e("s_add_u32 s44, s40, 65536")
        b.e("s_lshl_b32 s46, s28, 3"); b.e("s_add_u32 s46, s46, s37"); b.e("s_lshl_b32 s47, s31, 1"); b.e("s_add_u32 s46, s46, s47"); b.e("s_lshl_b32 s46, s46, 15")
        b.e("s_lshl_b32 s47, s38, 5"); b.e("s_add_u32 s46, s46, s47"); b.e(f"s_add_u32 s47, s46, {16*2048}")
        b.e(f"v_and_b32 v{oa+1}, 1, v{G}"); b.e(f"v_lshlrev_b32 v{oa}, 11, v{J}"); b.e(f"v_lshl_add_u32 v{oa}, v{oa+1}, 5, v{oa}")
        b.e(f"v_lshrrev_b32 v{oa+1}, 1, v{G}"); b.e(f"v_lshl_add_u32 v{oa}, v{oa+1}, 4, v{oa}")
        FULLN = os.environ.get("FULLN", "1") == "1"
        if FULLN:
            b.e(f"v_lshrrev_b32 v{oa+1}, 3, v{J}"); b.e(f"v_mul_u32_u24 v{oa+1}, {8*2048 - 64}, v{oa+1}"); b.e(f"v_sub_u32 v{oa}, v{oa}, v{oa+1}")
            b.e(f"v_add_u32 v{oa+1}, {8*2048}, v{oa}")
        OT = int(os.environ.get("OT", "0"))
        if OT == 1: b.e("s_mov_b64 exec, 1"); b.e(f"buffer_load_dword v{xf}, v{oa}, s[20:23], s46 offen {SC}"); b.e("s_mov_b64 exec, -1")
        if OT == 2:
            for k in range(4): b.e(f"buffer_load_dword v{xf}, v{oa+(k&1)}, s[20:23], s{46+(k>>1)} offen {SC}")
        group(fY, [], 0, b.l)
        mstamp(a)
        def send(m0_):
            for i in range(2):
                a.e(f"s_add_u32 s36, s41, {i*65536}")
                for p in range(2):
                    B = A_(m0_ + i, 2 * p)
                    for e in range(4): a.e(f"v_cvt_pk_bf16_f32 v{B+e}, v{B+2*e}, v{B+2*e+1}")
                    if "f" in DP: mark(a, B, 1)
                    a.e(f"buffer_store_dwordx4 {vr(B,4)}, v{l16}, s[16:19], s36 offen offset:{p*1024} {SC}")
        a.e("s_cmp_eq_u32 s31, 0"); a.e("s_cbranch_scc1 G4_k0")
        send(0)
        for i in range(0, 32, 2): a.e(f"v_pk_mov_b32 {vr(acc+i,2)}, {vr(acc+32+i,2)}, {vr(acc+32+i,2)} op_sel:[0,1]")
        a.e("s_branch G4_k1")
        a.e("G4_k0:")
        send(2)
        a.e("G4_k1:")
        a.e("s_mov_b32 s78, 0x3f80"); a.e("s_mov_b32 s79, 0x3f800000")
        def addp(k, R):
            B = A_(k >> 1, 2 * (k & 1))
            if DOT:
                for e in range(8): a.e(f"v_dot2_f32_bf16 v{B+e}, v{R+e//2}, s{78+(e&1)}, v{B+e}")
                return
            for e in range(4):
                unpack(a, xf + 2 * (e & 1), xf + 1 + 2 * (e & 1), R + e)
                a.e(f"v_pk_add_f32 {vr(B+2*e,2)}, {vr(B+2*e,2)}, {vr(xf+2*(e&1),2)}")
        for k in range(4): addp(k, RX[2 * k])
        if "f" not in DP:
            a.e("s_waitcnt vmcnt(0)")
            a.e("s_mov_b64 exec, 1"); a.e(f"buffer_store_dword v{pt+2}, v{pt+3}, s[56:59], s44 offen {SC}"); a.e("s_mov_b64 exec, -1")
        mstamp(a)
        for k in range(4): addp(k, RX[2 * k + 1])
        if "f" in DP:
            data_poll(a, [f"buffer_load_dwordx4 {vr(PX+4*(2*i+p),4)}, v{l16}, s[16:19], s{(40, 44)[i]} offen offset:{p*1024} {SC}" for i in range(2) for p in range(2)],
                      [PX + 4 * k for k in range(4)], t, int(os.environ.get("FNAP", "2")), 0, int(os.environ.get("FCAN", "0")))
            mstamp(a)
        else:
            poll_core(a, pt, [pt + 1], 1, nap=2)
            mstamp(a)
            for i in range(2):
                a.e(f"s_add_u32 s36, s40, {i*65536}")
                for p in range(2): a.e(f"buffer_load_dwordx4 {vr(PX+4*(2*i+p),4)}, v{l16}, s[16:19], s36 offen offset:{p*1024} {SC}")
        for k in range(4):
            if "f" not in DP: a.e(f"s_waitcnt vmcnt({3 - (k & 1) if FULLN else 3})")
            addp(k, PX + 4 * k)
            B = A_(k >> 1, 2 * (k & 1))
            if os.environ.get("EPS"):
                for e in range(8): a.e(f"v_mul_f32 v{B+e}, {f32(1 + float(os.environ['EPS']) * (1 if e & 1 else -1))}, v{B+e}")
            for e in range(4): a.e(f"v_cvt_pk_bf16_f32 v{B+e}, v{B+2*e}, v{B+2*e+1}")
            for e in range(2): a.e(f"v_permlane16_swap_b32 v{B+e}, v{B+2+e}")
            if not FULLN: a.e(f"buffer_store_dwordx4 {vr(B,4)}, v{oa}, s[20:23], s{46+(k>>1)} offen offset:{64*(k&1)} {os.environ.get('OS', '')}")
            elif k & 1:
                X, Y, T = B - 8, B, B + 4
                for e in range(4): a.e(f"v_mov_b32 v{T+e}, v{X+e}")
                for e in range(4): a.e(f"v_mov_b32_dpp v{X+e}, v{Y+e} row_ror:8 row_mask:0xf bank_mask:0xc")
                for e in range(4): a.e(f"v_mov_b32_dpp v{Y+e}, v{T+e} row_ror:8 row_mask:0xf bank_mask:0x3")
                a.e(f"buffer_store_dwordx4 {vr(X,4)}, v{oa}, s[20:23], s{46+(k>>1)} offen {os.environ.get('OS', SC)}")
                a.e(f"buffer_store_dwordx4 {vr(Y,4)}, v{oa+1}, s[20:23], s{46+(k>>1)} offen {os.environ.get('OS', SC)}")
        a.e("s_branch K_fin")
    assert v.hi <= {1: RES2, 2: RES2, 3: RYY, 4: 176}[which], v.hi
    return v.hi

def k_mega(a):
    nm = KNAME; a.begin_kernel(nm)
    a.e("s_cmp_ge_u32 s2, 256"); a.e("s_cbranch_scc1 K_end")
    a.e(f"s_load_dwordx8 s[8:15], s[0:1], {A_K}")
    if FAST:
        if STAMP: a.e("s_memrealtime s[46:47]")
        front_first(a)
    a.e(f"s_load_dwordx2 s[6:7], s[0:1], {A_Q}"); a.e(f"s_load_dwordx8 s[68:75], s[0:1], {B_W1}")
    a.e(f"s_load_dwordx2 s[4:5], s[0:1], {D_WS}"); a.e(f"s_load_dwordx2 s[84:85], s[0:1], {D_DBG}")
    if not (FAST and STAMP): a.e("s_memrealtime s[46:47]")
    a.e(f"s_load_dwordx2 s[96:97], s[0:1], {A_SSMD}")
    a.e("v_lshrrev_b32 v1, 6, v0"); a.e("v_readfirstlane_b32 s30, v1")
    if CODEPF:
        a.e("s_getpc_b64 s[48:49]"); a.e("K_pc:")
        a.e("s_lshr_b32 s36, s2, 3"); a.e("s_lshl_b32 s36, s36, 11")
        a.e("v_lshlrev_b32 v4, 2, v0"); a.e("v_add_u32 v4, s36, v4")
        a.e("v_cmp_gt_u32 vcc, K_end-K_pc-8, v4"); a.e("s_and_saveexec_b64 s[36:37], vcc"); a.e("s_cbranch_execz K_3")
        a.e("v_mov_b32 v5, s49"); a.e("v_add_co_u32 v4, vcc, s48, v4"); a.e("v_addc_co_u32 v5, vcc, 0, v5, vcc")
        a.e("global_load_dword v250, v[4:5], off")
        a.e("K_3:"); a.e("s_mov_b64 exec, -1")
    for _ in range(int(os.environ.get("SDELAY", "0"))): a.e("s_sleep 127")
    front_loads(a)
    a.e("v_and_b32 v1, 63, v0"); a.e("v_lshlrev_b32 v2, 4, v1"); a.e("v_lshlrev_b32 v3, 2, v1")
    a.e("s_mov_b32 s67, 0")
    a.e("s_mov_b32 s60, 0"); a.e("s_mov_b32 s61, 40000"); a.e("s_mov_b32 s52, 0")
    a.e("s_mov_b32 s55, 0"); a.e("s_mov_b32 s92, 0"); a.e("s_mov_b32 s93, 0"); a.e("s_mov_b32 s94, 0")
    a.srd(56, 4, HSB)
    if os.environ.get("FIXT"): a.e("s_mov_b32 s101, s46")
    a.e(f"s_add_u32 s62, s4, {LB0}"); a.e("s_addc_u32 s63, s5, 0")
    if STAMP:
        a.e("s_mov_b32 s66, 1"); a.e("v_mov_b32 v255, -1"); a.e("s_mov_b32 s95, 0"); a.e("v_writelane_b32 v255, s46, 0")
    mstamp(a)
    if os.environ.get("WBENCH"):
        a.e("s_waitcnt vmcnt(0)"); a.e("s_barrier")
        a.e("s_cmp_lt_u32 s30, 6"); a.e("s_cbranch_scc1 WB_end")
        for w in (1, 2, 3, 4):
            mstamp(a); w_setup(a, w); a.e("s_waitcnt vmcnt(0)"); mstamp(a); a.e("s_sleep 40")
        a.e("WB_end:"); a.e("s_branch K_dump")
    front_a(a); mstamp(a)
    for r in range(238, 248): a.e(f"v_mov_b32 v{r}, 0")
    a.e("s_cmp_ge_u32 s30, 4"); a.e("s_cbranch_scc1 FR_b")
    front_conv(a); hi = 0
    mstamp(a)
    front_arrive(a, True)
    a.e("s_branch FR_end")
    a.e("FR_b:")
    front_b(a)
    a.e("FR_end:")
    mstamp(a)
    a.e("LAYER:")
    if os.environ.get("XDELAY"): a.e(f"s_sleep {os.environ['XDELAY']}")
    hi = max(hi, r_stage(a, False))
    mstamp(a)
    a.e("s_cmp_ge_u32 s30, 4"); a.e("s_cbranch_scc1 LOADERS")
    if CPRIO: a.e(f"s_setprio {CPRIO}")
    for w in (1, 2, 3, 4):
        a.lines.append(f"; ---- G{w}: compute waves (set-up, K loop, epilogue, publish)")
        hi = max(hi, g_compute(a, w))
    a.e("LOADERS:")
    if SB[2]:
        a.e("s_cmp_lg_u32 s60, 0"); a.e("s_cbranch_scc1 LD_0"); sb(a, SB[2]); a.e("LD_0:")
    if PRIO: a.e(f"s_setprio {PRIO}")
    a.e("s_cmp_ge_u32 s30, 6"); a.e("s_cbranch_scc1 WLOAD")
    for w in (1, 2, 3, 4): a_loader(a, w)
    a.e("s_branch NEXT")
    a.e("WLOAD:")
    a.e("s_cmp_eq_u32 s60, 1"); a.e("s_cbranch_scc1 WL_1")
    w_setup(a, 1, pre=False); w1_slots(a, range(9 - W1G), pace=12); mstamp(a)
    a.e("s_branch WL_2")
    a.e("WL_1:")
    w_setup(a, 1, pre=False); w1_slots(a, range(3 - W1L), pace=12)
    a.e("WL_2:")
    for w in (1, 2, 3, 4):
        w_loader(a, w)
        if w == 2:
            c = CFG[3]; w_setup(a, 3, pre=False); n_ = 3 if W33 else 2; a.e(f"s_mov_b32 s42, {(c['S0'] + n_) % c['NW'] * c['STB']}"); a.e(f"s_mov_b32 s44, {n_}")
        if w == 3: w_setup(a, 4)
    a.e("NEXT:")
    a.e("s_setprio 0")
    a.e("s_add_u32 s60, s60, 1"); a.e(f"s_add_u32 s55, s55, {LSTR}")
    a.e(f"s_add_u32 s62, s62, {LSTR}"); a.e("s_addc_u32 s63, s63, 0")
    a.e("s_branch LAYER")
    a.e("K_fin:")
    if os.environ.get("FIXT"):
        a.e("FX_l:"); a.e("s_sleep 4"); a.e("s_memrealtime s[64:65]"); a.e("s_waitcnt lgkmcnt(0)"); a.e("s_sub_u32 s64, s64, s101")
        if os.environ.get("FIX0"): a.e("s_add_u32 s64, s64, s101"); a.e("s_lshl_b32 s64, s64, 6"); a.e("s_sub_u32 s64, s64, s52"); a.e("s_lshr_b32 s64, s64, 6")
        a.e(f"s_cmp_lt_u32 s64, {os.environ['FIXT']}"); a.e("s_cbranch_scc1 FX_l")
    if STAMP:
        a.e("K_dump:")
        a.e("s_waitcnt vmcnt(0)")
        mstamp(a)
        a.srd(96, 4, 16 * MB, off=200 * MB)
        a.e("s_lshl_b32 s66, s2, 3"); a.e("s_add_u32 s66, s66, s30"); a.e("s_lshl_b32 s66, s66, 8")
        a.e("v_writelane_b32 v255, s95, 63")
        a.e("buffer_store_dword v255, v3, s[96:99], s66 offen")
        if os.environ.get("DBGOUT"):
            a.e("s_cmp_lg_u32 s66, 0"); a.e("s_cbranch_scc1 K_end")
            a.e(f"s_load_dwordx2 s[96:97], s[0:1], {D_DBG}"); a.e("s_mov_b32 s98, 64"); a.e("s_waitcnt lgkmcnt(0)")
            a.e("v_readlane_b32 s64, v255, 0"); a.e("v_mov_b32 v10, 0")
            for i, j in enumerate(eval(os.environ["DBGOUT"])):
                a.e(f"v_readlane_b32 s65, v255, {j}"); a.e("s_sub_u32 s65, s65, s64"); a.e("v_mov_b32 v11, s65")
                a.e(f"buffer_store_dword v11, v10, s[96:99], 0 offen offset:{8+4*i}")
    a.e("s_endpgm")
    emit_subs(a)
    a.e("K_end:")
    assert hi <= PV
    a.end_kernel(nm, 256)
    if TAB: tab_data(a)
    a.launches.append(f"; @launch grid=(256,1,1) block=(512,1,1) lds={LDS_TOTAL}")

HEADER = open("interleave_layers__ssm_conv_h3__mixer_s_mlp__prompt.s.ref").read().split("; Override launch")[0]
DOC = """; One persistent kernel, 256 workgroups x 8 waves (one per CU), generated by dev/gen31.py.
"""
def main(out):
    a = Asm()
    k_mega(a)
    DS = os.environ.get("DS")
    if DS:
        o = []
        for l in a.lines:
            o.append(l)
            if "buffer_store_dwordx" in l and "sc1" in l and any(k in l for k in DS.split(",")): o.append(l.replace(" sc1", ""))
        a.lines = o
    notes = {
        "K_pc:": "each workgroup reads 2 KB of this kernel's code so that later instruction fetches are served on chip",
        "KV_t0:": "k / v / tap loads of the u^T tile (64 times x 128 channels); workgroup 0 has posted the launch tag (a clock value) in d_debug",
        "HB_2:": "u^T tile out, arrival counters initialised to the tag, shifted filter copies into LDS, LayerNorm(q)",
        "CV_w:": "long causal convolution as Toeplitz MFMAs, one channel per wave",
        "FR_b:": "waves 4-7 beside the convolution: memory-locality vote (timed loads, layout choice only), weight column sums, weight touches",
        "LAYER:": "row stage: residual sums, LayerNorm chain, x + LN(x)*y for 8 rows per workgroup",
        "LOADERS:": "waves 4,5: activation tiles by LDS-DMA (after the producers' counters are complete)",
        "WLOAD:": "waves 6,7: weight tiles by LDS-DMA in their original layout (read back with transposing LDS loads)",
        "G4_last:": "last layer: the two K halves exchange half tiles, add the residuals and write the output",
    }
    o = []
    for l in a.lines:
        if l.strip() in notes: o.append("; ---- " + notes[l.strip()])
        if l.strip().startswith("s_sleep"): l += "    ; back-off inside a wait loop"
        o.append(l)
    a.lines = o
    open(out, "w").write(a.text(HEADER + DOC))
    print("nops added:", a.nops_added)

if __name__ == "__main__":
    main(sys.argv[1] if len(sys.argv) > 1 else "interleave_layers__ssm_conv_h3__mixer_s_mlp__prompt.s")
```

```python
import sys, os, math, struct
sys.path.insert(0, "dev")
from asmgen import Asm

KNAME = "interleave_layers__ssm_conv_h3__mixer_s_mlp__prompt_kernel"
MB = 1 << 20
UT, Y = 24 * MB, 28 * MB
CSP = {1: 20 * MB, 3: 20 * MB + 128 * 1024}
A_Q, A_K, A_V, A_SH, A_SSMK, A_SSMD, B_X, B_W1, B_W2, B_W3, B_W4, D_OUT, D_DBG, D_WS = [8 * i for i in range(14)]
STAMP = int(os.environ.get("STAMP", "0"))
def f32(x): return "0x%08x" % struct.unpack("<I", struct.pack("<f", x))[0]
GC1 = -2.0 * math.sqrt(2.0 / math.pi) * math.log2(math.e)
GC2 = GC1 * 0.044715

class VA:
    def __init__(self, start=1): self.n = start; self.hi = start
    def __call__(self, cnt=1, al=None):
        if al is None: al = 2 if cnt > 1 else 1
        self.n = (self.n + al - 1) // al * al
        r = self.n; self.n += cnt; self.hi = max(self.hi, self.n); return r
def vr(b, n): return f"v[{b}:{b+n-1}]" if n > 1 else f"v{b}"

def unpack(a, lo, hi, src):
    a.e(f"v_lshlrev_b32 v{lo}, 16, v{src}")
    a.e(f"v_and_b32 v{hi}, 0xffff0000, v{src}")
RND = int(os.environ.get("RND", "0"))
def round2(a, x, y, tmp):
    if not RND: return
    a.e(f"v_cvt_pk_bf16_f32 v{tmp}, v{x}, v{y}")
    unpack(a, x, y, tmp)
def round1(a, x):
    if not RND: return
    a.e(f"v_cvt_pk_bf16_f32 v{x}, v{x}, v{x}")
    a.e(f"v_lshlrev_b32 v{x}, 16, v{x}")
def red_g(a, x, t):
    a.e(f"v_mov_b32 v{t}, v{x}"); a.e(f"v_permlane16_swap_b32 v{x}, v{t}"); a.e(f"v_add_f32 v{x}, v{x}, v{t}")
    a.e(f"v_mov_b32 v{t}, v{x}"); a.e(f"v_permlane32_swap_b32 v{x}, v{t}"); a.e(f"v_add_f32 v{x}, v{x}, v{t}")
def ln_finish(a, mean, var, rs, s=None):
    round1(a, mean); round1(a, var)
    a.e(f"v_add_f32 v{var}, {f32(1e-5)}, v{var}"); round1(a, var)
    if not RND and s is None: a.e(f"v_rsq_f32 v{rs}, v{var}"); return
    a.e(f"v_sqrt_f32 v{var}, v{var}"); round1(a, var)
    if s is not None: a.e(f"v_mov_b32 v{s}, v{var}")
    a.e(f"v_rcp_f32 v{rs}, v{var}")


FLG = 22 * MB + int(os.environ.get("FOFF", "0"))
LB0, LSTR, GSTR = 32 * MB, 4 * MB, 16 * MB
oH2 = 4 * MB; oSM = oH2 + 1792 * 1024; oFP = 16384; oST2 = oSM + 32768; oLNS = oSM + 65536
oX3, oX1P, oP0, oP1 = [i * 512 * 1024 for i in range(4)]
DP = os.environ.get("DP", "rf12")
if "r" in DP: oP0, oP1 = oX3, oX1P
def mark(a, r, bit): a.e(f"v_or_b32 v{r}, 1, v{r}" if bit else f"v_and_b32 v{r}, -2, v{r}")
DOT = int(os.environ.get("DOT", "1"))
def data_poll(a, loads, regs, t, nap, first=0, canary=False):
    L = a.lab("dp"); D = a.lab("dq")
    if canary:
        a.e("s_bfm_b64 exec, 1, 63"); data_poll(a, loads, regs, t, nap, first); a.e("s_mov_b64 exec, -1"); first = 0
    a.e("s_mov_b32 s53, 0")
    if first:
        f2 = int(os.environ.get("RFIRST2", "10"))
        if f2: a.e(f"s_sleep {f2}")
        a.e("s_cmp_ge_u32 s30, 6"); a.e(f"s_cbranch_scc1 {L}"); a.e(f"s_sleep {first - f2}")
    a.e(f"{L}:")
    for x in loads: a.e(x)
    a.e("s_waitcnt vmcnt(0)")
    a.e(f"v_bitop3_b32 v{t}, v{regs[0]}, v{regs[1]}, v{regs[2]} bitop3:0x80"); a.e(f"v_bitop3_b32 v{t}, v{t}, v{regs[3]}, 1 bitop3:0x80")
    a.e(f"v_cmp_eq_u32 vcc, 0, v{t}"); a.e(f"s_cbranch_vccz {D}")
    a.e(f"s_sleep {nap}")
    a.e("s_add_u32 s53, s53, 1"); a.e("s_cmp_lt_u32 s53, s61"); a.e(f"s_cbranch_scc1 {L}")
    a.e("s_mov_b32 s61, 0")
    a.e(f"{D}:")
XSZ = 512 * 1024 - 8192; H2SZ = 1792 * 1024 - 8192
HSB = 160 * MB; PITCH = 65536 + int(os.environ.get("SKEW", "0")); oHS = MB
def fso(stage): return int(stage * 256)
def spread(a, d, src):
    a.e(f"s_lshr_b32 s53, s{src}, 3"); a.e("s_lshl_b32 s53, s53, 14"); a.e(f"s_and_b32 s{d}, s{src}, 7"); a.e(f"s_lshl_b32 s{d}, s{d}, 10"); a.e(f"s_add_u32 s{d}, s{d}, s53")
ST_R, ST_G1, ST_G2, ST_G3, ST_G4, ST_R2, ST_G3B, ST_G3A = range(8); ST_G2S = 5.5
F_KVT, F_FRONT, F_CS = FLG, FLG + 32768, FLG + 53248; F_VOTE = F_FRONT + 16384; F_RES = F_VOTE
LDS_TOTAL = 163840
AUX = LDS_TOTAL - 4096
SC = "sc1"
PSLEEP = int(os.environ.get("PSLEEP", "5"))
ROT = int(os.environ.get("ROT", "1"))
PACE = int(os.environ.get("PACE", "8"))
PDEPTH = int(os.environ.get("PDEPTH", "1"))
WROT = int(os.environ.get("WROT", "1"))
PRIO = int(os.environ.get("PRIO", "0"))
STQ = int(os.environ.get("STQ", "12"))
CPRIO = int(os.environ.get("CPRIO", "0"))
FSLEEP = int(os.environ.get("FSLEEP", "6"))
CSPRIO = int(os.environ.get("CSPRIO", "1"))
NT = os.environ.get("NT", "nt"); HALO = int(os.environ.get("HALO", "0")); NTK = os.environ.get("NTK", "" if HALO else NT); NTH = os.environ.get("NTH", NT)
W1F = int(os.environ.get("W1F", "7"))
WSC = eval(os.environ.get("WSC", "{}"))
TLBW = int(os.environ.get("TLBW", "0"))
T12 = eval(os.environ.get("T12", "{}"))
T23 = eval(os.environ.get("T23", "()"))
OWN3 = int(os.environ.get("OWN3", "1"))
PUB2 = int(os.environ.get("PUB2", "4"))
MAP = int(os.environ.get("MAP", "4"))
HSPLIT = int(os.environ.get("HSPLIT", "2"))
W1G = int(os.environ.get("W1G", "9"))
PWAIT = int(os.environ.get("PWAIT", "8"))
DL = eval(os.environ.get("DL", "[2,4]"))
PACES = eval(os.environ.get("PACES", "{4:6}"))
C0PUB = int(os.environ.get("C0PUB", "6"))
LNSL = AUX + 1024

CFG = {1: dict(WM=4, WN=1, MT=2, NT=4, KBT=32, NS=16, NA=1.5, NW=16, A=oX3, W=B_W1, LDW=2048),
       2: dict(WM=4, WN=1, MT=2, NT=4, KBT=32, NS=16, NA=0, NW=16, A=oHS, W=B_W2, LDW=2048),
       3: dict(WM=2, WN=2, MT=4, NT=7, KBT=32, NS=16, NA=3, NW=3, A=oX1P, W=B_W3, LDW=7168, NPRE=2, WR=1, S0=2, WB=73728),
       4: dict(WM=2, WN=2, MT=4, NT=4, KBT=112, NS=28, NA=3, NW=6, A=oH2, W=B_W4, LDW=2048)}
for w, d in eval(os.environ.get("CFG", "{}")).items(): CFG[w].update(d)
for c in CFG.values():
    c.setdefault("NPRE", c["NW"]); c.setdefault("APRE", min(c["NA"], 3)); c.setdefault("WR", 1)
    c["TN16"] = c["WN"] * c["NT"]; c["STB"] = c["TN16"] * 2048; c.setdefault("WB", int(c["NA"] * 16384)); c.setdefault("S0", 0)
    c["RB"] = c["TN16"] * 32
    assert c["WB"] + c["NW"] * c["STB"] <= AUX
NX = 0
def nib(t): return sum(x << (4 * i) for i, x in enumerate(t))
CSO = {1: AUX + 3584, 3: AUX}

LW = AUX + 3072
def mstamp(a, force=False):
    if os.environ.get("JIT"):
        X = a.lab("jit")
        a.e("s_cselect_b32 s101, 1, 0"); a.e("s_memtime s[64:65]"); a.e("s_waitcnt lgkmcnt(0)"); a.e(f"s_and_b32 s64, s64, {os.environ['JIT']}"); a.e("s_cmp_lg_u32 s64, 0")
        a.e(f"s_cbranch_scc1 {X}"); a.e("s_sleep 50"); a.e(f"{X}:"); a.e("s_cmp_eq_u32 s101, 1")
        return
    if not STAMP or (os.environ.get("GST") and not force): return
    a.e(("s_memrealtime" if STAMP == 2 else "s_memtime") + " s[64:65]"); a.e("s_mov_b32 s100, m0"); a.e("s_mov_b32 m0, s66"); a.e("s_waitcnt lgkmcnt(0)")
    a.e("v_writelane_b32 v255, s64, m0"); a.e("s_mov_b32 m0, s100")
    a.e("s_add_u32 s66, s66, 1")

def lsrd(a, d, off, nbytes, prev=False):
    if prev:
        a.e(f"s_sub_u32 s{d}, s62, {LSTR - off:#x}"); a.e(f"s_subb_u32 s{d+1}, s63, 0")
        a.e(f"s_mov_b32 s{d+2}, {nbytes:#x}"); a.e(f"s_mov_b32 s{d+3}, 0x20000")
    else: a.srd(d, 62, nbytes, off=off)

def hs_srd(a, d):
    if "2" in DP: a.srd(d, 4, 128 * PITCH, off=HSB); return
    a.e("s_lshl_b32 s53, s60, 24"); a.e(f"s_add_u32 s53, s53, {HSB}")
    a.e(f"s_add_u32 s{d}, s4, s53"); a.e(f"s_addc_u32 s{d+1}, s5, 0"); a.e(f"s_mov_b32 s{d+2}, {128*PITCH}"); a.e(f"s_mov_b32 s{d+3}, 0x20000")

def group_off(a, d, m):
    a.e(f"s_lshr_b32 s53, s{m}, 3"); a.e("s_lshl_b32 s53, s53, 2"); a.e(f"s_and_b32 s54, s{m}, 3"); a.e("s_add_u32 s53, s53, s54"); a.e("s_lshl_b32 s53, s53, 24")
    a.e(f"s_lshr_b32 s54, s{m}, 2"); a.e("s_xor_b32 s54, s54, s94"); a.e("s_and_b32 s54, s54, 1"); a.e("s_lshl_b32 s54, s54, 13")
    a.e(f"s_add_u32 s{d}, s53, s54"); a.e(f"s_add_u32 s{d}, s{d}, {LB0}")

PV = 240
def poll_core(a, t, addrs, mask, extra=None, depth=1, cnt=0, nap=None):
    L = a.lab("poll"); D = a.lab("pok")
    n = len(addrs) + (1 if extra else 0)
    if depth > 1: t0 = t; regs = [PV + k * len(addrs) for k in range(depth)]; assert not extra and regs[-1] + len(addrs) <= 256
    else: regs = [t]
    def ld(r):
        for i, ad in enumerate(addrs): a.e(f"buffer_load_dword v{r+i}, v{ad}, s[56:59], 0 offen {SC}")
        if extra: a.e(extra[0])
    a.e("s_mov_b32 s53, 0"); a.e(f"s_add_u32 s54, s52, {cnt}")
    if mask != -1: a.e(f"s_bfm_b64 exec, {mask.bit_length()}, 0")
    for r in regs[:-1]: ld(r); a.e(f"s_sleep {PSLEEP}")
    a.e(f"{L}:")
    for k in range(depth):
        ld(regs[k - 1]); r = regs[k]
        a.e(f"s_waitcnt vmcnt({n*(depth-1)})")
        for i in range(len(addrs)): a.e(f"v_xor_b32 v{r+i}, s54, v{r+i}")
        for i in range(1, len(addrs)): a.e(f"v_or_b32 v{r}, v{r}, v{r+i}")
        if extra:
            for x in extra[1:]: a.e(x)
        a.e(f"v_cmp_eq_u32 vcc, 0, v{r}")
        a.e("s_cmp_eq_u64 vcc, exec"); a.e(f"s_cbranch_scc1 {D}")
        a.e(f"s_sleep {PSLEEP if nap is None else nap}")
    a.e("s_add_u32 s53, s53, 1"); a.e("s_cmp_lt_u32 s53, s61"); a.e(f"s_cbranch_scc1 {L}")
    a.e("s_mov_b32 s61, 0")
    a.e(f"{D}:")
    if mask != -1: a.e("s_mov_b64 exec, -1")

SPLIT = {ST_G1: "sign", ST_G3: "half", ST_G3A: "half", ST_G3B: "half"}
def flag_addr(a, r, stage, prev=False):
    so = fso(stage) - (LSTR if prev else 0)
    a.e(f"s_add_u32 s54, s55, {so & 0xffffffff:#x}")
    sp = SPLIT.get(stage)
    if sp == "half": a.e("s_lshl_b32 s53, s31, 7"); a.e("s_add_u32 s54, s54, s53")
    a.e(f"v_mov_b32 v{r}, s54")
    if sp == "sign":
        a.e("s_add_u32 s53, s54, 128"); a.e(f"v_writelane_b32 v{r}, s53, 1")
        a.e("s_add_u32 s53, s53, s93"); a.e(f"v_writelane_b32 v{r}, s53, 3")
        a.e("s_add_u32 s53, s54, s92"); a.e(f"v_writelane_b32 v{r}, s53, 2")
        return 0xf, 8
    return 1, 8 if sp else 16
def own_wait(a, stage, prev, t):
    if not PWAIT or stage == ST_R: return
    k = {ST_G1: 1, ST_G2: 2, ST_G4: 3}[stage] - (3 if prev else 0)
    a.e(f"s_mul_i32 s54, s60, {2 if 'r' in DP else 3}"); a.e(f"s_add_u32 s54, s54, {k}")
    lds_spin(a, LW + 56, "s54", t, nap=PWAIT)
def flag_try(a, r, ad):
    a.e("s_mov_b64 exec, 1"); a.e(f"buffer_load_dword v{r}, v{ad}, s[56:59], 0 offen {SC}"); a.e("s_mov_b64 exec, -1")
def flag_check(a, r, ad, cnt):
    D = a.lab("fok")
    a.e(f"v_readfirstlane_b32 s53, v{r}"); a.e(f"s_add_u32 s54, s52, {cnt}"); a.e("s_cmp_eq_u32 s53, s54"); a.e(f"s_cbranch_scc1 {D}")
    poll_core(a, r, [ad], 1, cnt=cnt)
    a.e(f"{D}:")

def poll(a, stage, t, prev=False):
    D = a.lab("pdone")
    a.e("s_cmp_lg_u32 s30, 4"); a.e(f"s_cbranch_scc1 {D}")
    own_wait(a, stage, prev, t)
    mask, cnt = flag_addr(a, t + 1, stage, prev)
    poll_core(a, t, [t + 1], mask, depth=PDEPTH, cnt=cnt)
    a.e(f"{D}:")
    if stage != ST_G4: mstamp(a)
    a.e("s_barrier")

def publish(a, stage, nw, t, off=None, wait=0, ctr=None, flag=False):
    D = a.lab("pub")
    mark = PWAIT and off is None and stage in (ST_G1, ST_G2, ST_G4)
    if off is None:
        a.e(f"s_add_u32 s53, s55, {fso(stage)}"); off = 53
        sp = SPLIT.get(stage)
        if sp == "half": a.e("s_lshl_b32 s54, s31, 7"); a.e("s_add_u32 s53, s53, s54")
        if sp == "sign": a.e("s_and_b32 s54, s29, 4"); a.e("s_lshl_b32 s54, s54, 5"); a.e("s_add_u32 s53, s53, s54")
    a.e(f"v_mov_b32 v{t}, 1"); a.e(f"v_mov_b32 v{t+1}, {LW + (ctr if ctr is not None else 4 if nw == 8 else 0)}"); a.e(f"v_mov_b32 v{t+3}, 0")
    a.e("s_mov_b64 exec, 1")
    if wait is not None: a.e(f"s_waitcnt vmcnt({wait})")
    if nw > 1:
        a.e(f"ds_add_rtn_u32 v{t+2}, v{t+1}, v{t}")
        if flag: a.e(f"v_mov_b32 v{t+1}, s52")
        a.e("s_waitcnt lgkmcnt(0)")
        a.e(f"v_readfirstlane_b32 s54, v{t+2}")
        a.e(f"s_and_b32 s54, s54, {nw-1}"); a.e(f"s_cmp_lg_u32 s54, {nw-1}"); a.e(f"s_cbranch_scc1 {D}")
    if flag: a.e(f"buffer_store_dword v{t+1}, v{t+3}, s[56:59], s{off} offen {SC}")
    else: a.e(f"buffer_atomic_add v{t}, v{t+3}, s[56:59], s{off} offen {SC}")
    if stage == ST_R and not flag:
        a.e("s_cmp_lg_u32 s60, 0"); a.e(f"s_cbranch_scc1 {D}")
        a.e("s_lshl_b32 s53, s29, 7"); a.e(f"s_add_u32 s53, s53, {F_CS}")
        a.e(f"buffer_atomic_add v{t}, v{t+3}, s[56:59], s53 offen {SC}")
    if mark: a.e(f"v_mov_b32 v{t+1}, {LW+56}"); a.e(f"ds_add_u32 v{t+1}, v{t}")
    a.e(f"{D}:")
    a.e("s_mov_b64 exec, -1")

def lds_spin(a, addr, target, t, dst=53, nap=False):
    L = a.lab("spin")
    a.e(f"v_mov_b32 v{t}, {addr}")
    a.e(f"{L}:")
    if nap: a.e(f"s_sleep {int(nap)}")
    a.e(f"ds_read_b32 v{t+1}, v{t}"); a.e("s_waitcnt lgkmcnt(0)"); a.e(f"v_readfirstlane_b32 s{dst}, v{t+1}")
    a.e(f"s_cmp_ge_u32 s{dst}, {target}"); a.e(f"s_cbranch_scc0 {L}")
def lds_set(a, addr, val, t):
    a.e(f"v_mov_b32 v{t}, {addr}"); a.e(f"v_mov_b32 v{t+1}, {val}")
    a.e("s_waitcnt lgkmcnt(0)"); a.e(f"ds_write_b32 v{t}, v{t+1}")
def lbar(a, k, t):
    a.e(f"v_mov_b32 v{t}, {LW+8}"); a.e(f"v_mov_b32 v{t+1}, 1")
    a.e("s_waitcnt lgkmcnt(0)")
    a.e("s_mov_b64 exec, 1"); a.e(f"ds_add_u32 v{t}, v{t+1}"); a.e("s_mov_b64 exec, -1")
    lds_spin(a, LW + 8, 4 * k + (2 if PWA else 0), t)

def gelu4(a, X, t, c1, c2):
    P = [(X, t), (X + 2, t + 2)]
    for x, u in P: a.e(f"v_pk_mul_f32 {vr(u,2)}, {vr(x,2)}, {vr(x,2)}")
    for x, u in P: a.e(f"v_pk_fma_f32 {vr(u,2)}, {vr(u,2)}, {vr(c2,2)}, {vr(c1,2)}")
    for x, u in P: a.e(f"v_pk_mul_f32 {vr(u,2)}, {vr(u,2)}, {vr(x,2)}")
    for i in range(4): a.e(f"v_exp_f32 v{t+i}, v{t+i}")
    for x, u in P: a.e(f"v_pk_add_f32 {vr(u,2)}, {vr(u,2)}, 1.0 op_sel_hi:[1,0]")
    for i in range(4): a.e(f"v_rcp_f32 v{t+i}, v{t+i}")
    for x, u in P: a.e(f"v_pk_mul_f32 {vr(x,2)}, {vr(x,2)}, {vr(u,2)}")

W2EARLY = int(os.environ.get("W2EARLY", "1")); QLATE = int(os.environ.get("QLATE", "0"))
TOUCH2 = [(A_Q, 4 * MB)] + ([] if W2EARLY else [(B_W2, 2 * MB)])
CODEPF = int(os.environ.get("CODEPF", "1")); NVOTE = int(os.environ.get("NVOTE", "32")); QUO = int(os.environ.get("QUO", "21")); NSAMP = int(os.environ.get("NSAMP", "2"))
W4POS = os.environ.get("W4POS", "3C")
HSTR = 4160; CHB = 24576; UOFF = 4 * HSTR; US = 96
KVS = 4 * CHB

KT = int(os.environ.get("KT", "1"))
KV = dict(cq=6, tg=7, t=8, ro=9, wo=16, pt=18, kr=22, vv=36, w=44, d=52, hoff=70, tag=76, zz=78)
FAST = int(os.environ.get("FAST", "0"))
def front_first(a):
    cq, tg, t, ro, wo, kr, vv, w = [KV[k] for k in "cq tg t ro wo kr vv w".split()]
    a.e(f"v_and_b32 v{cq}, 31, v0"); a.e(f"v_lshrrev_b32 v{tg}, 5, v0")
    a.e("s_and_b32 s34, s2, 7"); a.e("s_lshr_b32 s35, s2, 3")
    a.e("s_lshl_b32 s36, s35, 17"); a.e("s_lshl_b32 s37, s34, 8"); a.e("s_add_u32 s36, s36, s37")
    a.e(f"v_lshlrev_b32 v{t}, 13, v{tg}"); a.e(f"v_lshl_add_u32 v{t}, v{cq}, 3, v{t}"); a.e(f"v_add_u32 v{ro+3}, s36, v{t}")
    a.e(f"v_add_u32 v{ro+5}, 4096, v{ro+3}")
    a.e("s_waitcnt lgkmcnt(0)")
    for i in range(4): a.e(f"global_load_dwordx2 {vr(kr+2*(i+3),2)}, v{ro+3+(i&2)}, s[8:9] offset:{2048*(i&1)} {NTK}")
    for i in range(4): a.e(f"global_load_dwordx2 {vr(vv+2*i,2)}, v{ro+3+(i&2)}, s[10:11] offset:{2048*(i&1)} {NT}")
def front_loads(a):
    cq, tg, t, ro, wo, kr, vv, w = [KV[k] for k in "cq tg t ro wo kr vv w".split()]
    a_ = a
    if FAST: a = Rec()
    a.e(f"v_and_b32 v{cq}, 31, v0"); a.e(f"v_lshrrev_b32 v{tg}, 5, v0")
    a.e("s_and_b32 s34, s2, 7"); a.e("s_lshr_b32 s35, s2, 3")
    a.e("s_lshl_b32 s36, s35, 17"); a.e("s_lshl_b32 s37, s34, 8"); a.e("s_add_u32 s36, s36, s37")
    a.e(f"v_lshlrev_b32 v{t}, 13, v{tg}"); a.e(f"v_lshl_add_u32 v{t}, v{cq}, 3, v{t}"); a.e(f"v_add_u32 v{ro+3}, s36, v{t}")
    a.e(f"v_add_u32 v{ro+5}, 4096, v{ro+3}")
    a = a_
    a.e(f"s_mov_b32 s18, {4*MB}"); a.e("s_mov_b32 s19, 0x20000"); a.e("s_mov_b32 s22, s18"); a.e("s_mov_b32 s23, s19")
    a.e("s_waitcnt lgkmcnt(0)")
    tag, zz = KV["tag"], KV["zz"]
    a.e("s_mov_b32 s86, 256"); a.e("s_mov_b32 s87, 0x20000"); a.e(f"v_mov_b32 v{zz}, 0")
    a.e("s_lshl_b32 s45, s2, 3"); a.e("s_add_u32 s45, s45, s30"); a.e("s_cmp_lg_u32 s45, 4"); a.e("s_cbranch_scc1 KV_t0")
    a.e("s_getreg_b32 s45, hwreg(HW_REG_XCC_ID, 0, 3)"); a.e("s_lshl_b32 s45, s45, 1")
    a.e("s_lshl_b32 s44, s46, 6"); a.e("s_or_b32 s44, s44, s45"); a.e("s_or_b32 s44, s44, 1"); a.e(f"v_mov_b32 v{tag}, s44"); a.e(f"v_mov_b32 v{tag+1}, 0")
    a.e("s_mov_b64 exec, 1"); a.e(f"buffer_store_dwordx2 {vr(tag,2)}, v{zz}, s[84:87], 0 offen {SC}"); a.e("s_mov_b64 exec, -1")
    a.e("KV_t0:")
    a.e("s_mov_b64 s[16:17], s[8:9]"); a.e("s_mov_b64 s[20:21], s[10:11]")
    for i in range(0 if FAST else 4): a.e(f"buffer_load_dwordx2 {vr(kr+2*(i+3),2)}, v{ro+3+(i&2)}, s[16:19], 0 offen offset:{2048*(i&1)} {NTK}")
    for i in range(0 if FAST else 4): a.e(f"buffer_load_dwordx2 {vr(vv+2*i,2)}, v{ro+3+(i&2)}, s[20:23], 0 offen offset:{2048*(i&1)} {NT}")
    for i in range(3): a.e(f"v_subrev_u32 v{ro+i}, {2048*(3-i)}, v{ro+3}")
    a.e("s_lshl_b32 s37, s34, 10"); a.e(f"v_lshlrev_b32 v{wo}, 5, v{cq}"); a.e(f"v_add_u32 v{wo}, s37, v{wo}")
    a.srd(24, 12, 8192)
    XP = os.environ.get("XP", "g")
    if KT:
        a.e(f"v_and_b32 v{t}, 1, v{tg}"); a.e(f"v_lshl_add_u32 v{wo}, v{t}, 4, v{wo}")
        a.e(f"buffer_load_dwordx4 {vr(w,4)}, v{wo}, s[24:27], 0 offen")
    for i in range(0 if "t" in XP or KT else 2): a.e(f"buffer_load_dwordx4 {vr(w+4*i,4)}, v{wo}, s[24:27], 0 offen offset:{16*i}")
    if "g" in XP:
        a.e("s_cmp_lg_u32 s30, 4"); a.e("s_cbranch_scc1 KV_t2")
        a.e(f"buffer_load_dword v{tag}, v{zz}, s[84:87], 0 offen {SC}")
        a.e("KV_t2:")
    if "h" in XP: return
    if HALO:
        a.e("s_cmp_lg_u32 s30, 0"); a.e("s_cbranch_scc1 KV_h0"); a.e("s_bfm_b64 exec, 32, 0")
    if KT: a.e("s_bfm_b64 exec, 32, 0")
    for i in range(3): a.e(f"buffer_load_dwordx2 {vr(kr+2*i,2)}, v{ro+i}, s[16:19], 0 offen {NTK}")
    if KT: a.e("s_mov_b64 exec, -1")
    if HALO: a.e("s_mov_b64 exec, -1"); a.e("KV_h0:")

def probe_base(a):
    assert NVOTE <= 64
    a.e("s_and_b32 s42, s2, 7"); a.e("s_lshl_b32 s42, s42, 10"); a.e("s_lshr_b32 s43, s2, 3"); a.e("s_lshl_b32 s43, s43, 14"); a.e("s_add_u32 s42, s42, s43")
    a.e(f"s_add_u32 s42, s42, {LB0 + oSM + 131072}")
PWA = int(os.environ.get("PWA", "1"))
def front_arrive(a, wait, conv=False):
    D = a.lab("fa"); t = 6
    if PWA:
        if conv:
            a.e("s_mov_b64 exec, 0xf"); a.e("s_waitcnt vmcnt(0)"); a.e(f"buffer_atomic_add v{t+1}, v{t}, s[56:59], s45 offen {SC}"); a.e("s_mov_b64 exec, -1")
        elif wait:
            a.e(f"v_mov_b32 v{t}, 1"); a.e(f"v_mov_b32 v{t+1}, {LW+8}"); a.e("s_mov_b64 exec, 1"); a.e("s_waitcnt vmcnt(0)"); a.e(f"ds_add_u32 v{t+1}, v{t}"); a.e("s_mov_b64 exec, -1")
        return
    a.e("s_and_b32 s36, s2, 7"); a.e("s_lshl_b32 s36, s36, 7"); a.e(f"s_add_u32 s36, s36, {F_FRONT}")
    a.e(f"v_mov_b32 v{t}, 1"); a.e(f"v_mov_b32 v{t+1}, {LW+4}"); a.e(f"v_lshlrev_b32 v{t+3}, 10, v1")
    a.e("s_mov_b64 exec, 1")
    if wait: a.e("s_waitcnt vmcnt(0)")
    a.e("s_waitcnt lgkmcnt(0)")
    a.e(f"ds_add_rtn_u32 v{t+2}, v{t+1}, v{t}")
    a.e("s_waitcnt lgkmcnt(0)")
    a.e(f"v_readfirstlane_b32 s54, v{t+2}")
    a.e("s_cmp_lg_u32 s54, 15"); a.e(f"s_cbranch_scc1 {D}")
    a.e("s_mov_b64 exec, 0xffff")
    a.e(f"buffer_atomic_add v{t}, v{t+3}, s[56:59], s36 offen {SC}")
    a.e(f"{D}:"); a.e("s_mov_b64 exec, -1")
XR = int(os.environ.get("XR", "1"))
def roles(a):
    if XR: a.e("s_bfe_u32 s32, s52, 0x30001"); a.e("s_add_u32 s32, s32, s2"); a.e("s_and_b32 s32, s32, 7")
    else: a.e("s_and_b32 s32, s2, 7")
    a.e("s_lshr_b32 s33, s2, 3")
    a.e("s_and_b32 s28, s32, 2"); a.e("s_lshr_b32 s53, s32, 2"); a.e("s_or_b32 s28, s28, s53")
    a.e("s_lshl_b32 s28, s28, 2"); a.e("s_and_b32 s53, s33, 3"); a.e("s_add_u32 s28, s28, s53")
    a.e("s_and_b32 s31, s32, 1"); a.e("s_lshr_b32 s33, s33, 2")
    a.e("s_lshl_b32 s29, s31, 3"); a.e("s_add_u32 s29, s29, s33")
    a.e(f"s_xor_b32 s99, s29, {os.environ.get('G1X', '1')}")
    r_addr(a)
def front_a(a):
    cq, tg, t, pt, kr, vv, w, d, hoff, tag, zz = [KV[k] for k in "cq tg t pt kr vv w d hoff tag zz".split()]
    v = VA(80)
    a.e("s_and_b32 s41, s30, 3"); chan_setup(a, 41)
    a.e("s_lshr_b32 s36, s39, 1"); a.e("s_lshl_b32 s36, s36, 2"); a.e("s_load_dword s98, s[96:97], s36")
    a.e("s_lshl_b32 s36, s39, 12")
    a.e("s_add_u32 s12, s14, s36"); a.e("s_addc_u32 s13, s15, 0"); a.e("s_mov_b32 s14, 4096"); a.e("s_mov_b32 s15, 0x20000")
    a.e("s_lshr_b32 s45, s30, 2"); a.e("s_lshl_b32 s45, s45, 11")
    for it in range(3):
        if it < 2: a.e(f"s_add_u32 s36, s45, {(1024*it - 64) & 0xffffffff:#x}")
        else: a.e(f"s_mov_b32 s36, {4096 - 64}")
        a.e(f"v_add_u32 v{hoff+2*it}, s36, v2"); a.e(f"v_add_u32 v{hoff+2*it+1}, 16, v{hoff+2*it}")
    a.e("s_and_b32 s34, s2, 7"); a.e("s_lshr_b32 s35, s2, 3")
    z = v(4, 4); la = v(); t2 = v(); hw = v()
    for i in range(4): a.e(f"v_mov_b32 v{z+i}, 0")
    a.e(f"v_add_u32 v{hw}, s40, v2")
    a.e(f"ds_write_b128 v{hw}, {vr(z,4)} offset:{UOFF+64*US}")
    a.e(f"s_bfm_b64 exec, {(15*US - 1024)//16}, 0"); a.e(f"ds_write_b128 v{hw}, {vr(z,4)} offset:{UOFF+64*US+1024}"); a.e("s_mov_b64 exec, -1")
    a.e(f"v_lshlrev_b32 v{t}, 2, v{tg}"); a.e(f"v_sub_u32 v{t}, 60, v{t}")
    a.e(f"v_lshrrev_b32 v{t2}, 3, v{t}"); a.e(f"v_bfe_u32 v{la}, v{cq}, 1, 3"); a.e(f"v_xor_b32 v{t2}, v{t2}, v{la}"); a.e(f"v_lshlrev_b32 v{t2}, 4, v{t2}")
    a.e(f"v_and_b32 v{t}, 7, v{t}"); a.e(f"v_lshl_add_u32 v{t2}, v{t}, 1, v{t2}")
    a.e(f"v_lshl_add_u32 v{la}, v{cq}, 9, v{t2}"); a.e(f"v_add_u32 v{la}, {KVS}, v{la}")
    wf = v(8, 2); kf = v(14, 2); vf = v(8, 2); ks = v(8, 2); pr = v(8, 2); o = v(8, 4); tm = v(4, 1)
    a.e("s_waitcnt vmcnt(0)")
    if HALO:
        for i in range(3): a.e(f"buffer_load_dwordx2 {vr(kr+2*i,2)}, v{KV['ro']+i}, s[16:19], 0 offen {NTK}")
        if HALO == 1: a.e("s_waitcnt vmcnt(0)")
    a.e("s_cmp_lg_u32 s30, 4"); a.e("s_cbranch_scc1 KV_t1")
    if "g" not in os.environ.get("XP", "g"): a.e(f"buffer_load_dword v{tag}, v{zz}, s[84:87], 0 offen {SC}")
    a.e("KV_t1:")
    for it in range(3):
        a.e(f"buffer_load_dwordx4 {vr(d+6*it,4)}, v{hoff+2*it}, s[12:15], 0 offen {NTH}")
        a.e(f"buffer_load_dwordx2 {vr(d+6*it+4,2)}, v{hoff+2*it+1}, s[12:15], 0 offen {NTH}")
    if HALO == 2: a.e("s_waitcnt vmcnt(10)")
    mstamp(a)
    if KT:
        for e in range(4): a.e(f"v_mov_b32 v{w+4+e}, v{w+e}")
        for e in range(6): a.e(f"v_mov_b32 v{pr+e}, v{kr+8+e}")
        for e in range(4): a.e(f"v_permlane32_swap_b32 v{w+e}, v{w+4+e}")
        for e in range(6): a.e(f"v_permlane32_swap_b32 v{kr+e}, v{pr+e}")
    for dd in range(2):
        for c in range(2):
            unpack(a, wf + 0 + c, wf + 2 + c, w + 2 * (2 * dd + c)); unpack(a, wf + 4 + c, wf + 6 + c, w + 2 * (2 * dd + c) + 1)
        for i in range(7): unpack(a, kf + 2 * i, kf + 2 * i + 1, kr + 2 * i + dd)
        for i in range(4): unpack(a, vf + 2 * i, vf + 2 * i + 1, vv + 2 * i + dd)
        def rnd(base):
            for i in range(4): a.e(f"v_cvt_pk_bf16_f32 v{tm+i}, v{base+2*i}, v{base+2*i+1}")
            for i in range(4): unpack(a, base + 2 * i, base + 2 * i + 1, tm + i)
        for i in range(4): a.e(f"v_pk_mul_f32 {vr(ks+2*i,2)}, {vr(kf+2*i,2)}, {vr(wf+6,2)}")
        if RND: rnd(ks)
        for j in range(1, 4):
            if not RND:
                for i in range(4): a.e(f"v_pk_fma_f32 {vr(ks+2*i,2)}, {vr(kf+2*(i+j),2)}, {vr(wf+6-2*j,2)}, {vr(ks+2*i,2)}")
                continue
            for i in range(4): a.e(f"v_pk_mul_f32 {vr(pr+2*i,2)}, {vr(kf+2*(i+j),2)}, {vr(wf+6-2*j,2)}")
            rnd(pr)
            for i in range(4): a.e(f"v_pk_add_f32 {vr(ks+2*i,2)}, {vr(ks+2*i,2)}, {vr(pr+2*i,2)}")
            rnd(ks)
        for i in range(4): a.e(f"v_pk_mul_f32 {vr(ks+2*i,2)}, {vr(ks+2*i,2)}, {vr(vf+2*i,2)}")
        for c in range(2):
            e = 2 * dd + c
            a.e(f"v_cvt_pk_bf16_f32 v{o+2*e}, v{ks+6+c}, v{ks+4+c}"); a.e(f"v_cvt_pk_bf16_f32 v{o+2*e+1}, v{ks+2+c}, v{ks+c}")
            a.e(f"ds_write_b64 v{la}, {vr(o+2*e,2)} offset:{e*128}")
    a.e("s_cmp_lg_u32 s30, 4"); a.e("s_cbranch_scc1 HB_2")
    a.e(f"v_add_u32 v{pt}, {LW}, v3"); a.e(f"ds_write_b32 v{pt}, v{zz}")
    a.e("s_mov_b32 s53, 0")
    a.e("s_waitcnt vmcnt(6)")
    a.e("HB_p:")
    a.e(f"v_readfirstlane_b32 s52, v{tag}"); a.e("s_cmp_eq_u32 s52, 0"); a.e("s_cbranch_scc1 HB_r")
    a.e("s_cmp_ge_u32 s53, 400"); a.e("s_cbranch_scc1 HB_q")
    a.e("s_add_u32 s54, s46, 8192"); a.e("s_lshl_b32 s54, s54, 6"); a.e("s_sub_u32 s54, s54, s52"); a.e(f"s_cmp_lt_u32 s54, {12288*64}"); a.e("s_cbranch_scc1 HB_q")
    a.e("HB_r:")
    a.e(f"buffer_load_dword v{tag}, v{zz}, s[84:87], 0 offen {SC}"); a.e("s_waitcnt vmcnt(0)")
    a.e("s_add_u32 s53, s53, 1"); a.e("s_cmp_lt_u32 s53, s61"); a.e("s_cbranch_scc1 HB_p")
    a.e("s_mov_b32 s52, 1"); a.e("s_mov_b32 s61, 0")
    a.e("HB_q:")
    lds_set(a, LW + 12, "s52", pt)
    a.e("HB_2:")
    a.srd(16, 4, 8 * GSTR, off=LB0 + oX3)
    ra = v(); go = v(); ob = v(8, 4)
    a.e(f"v_lshrrev_b32 v{t}, 3, v0"); a.e(f"v_and_b32 v{t2}, 7, v0")
    a.e(f"v_lshlrev_b32 v{go}, 12, v{t}"); a.e(f"v_lshl_add_u32 v{go}, v{t2}, 4, v{go}")
    a.e("s_lshl_b32 s36, s34, 24"); a.e("s_sub_u32 s37, 31, s35"); a.e("s_lshl_b32 s37, s37, 7"); a.e("s_add_u32 s36, s36, s37")
    a.e(f"s_add_u32 s37, s36, {64*4096}")
    a.e(f"v_lshrrev_b32 v{ra}, 3, v{t}"); a.e(f"v_xor_b32 v{ra}, v{ra}, v{t2}"); a.e(f"v_lshlrev_b32 v{ra}, 4, v{ra}"); a.e(f"v_lshl_add_u32 v{ra}, v{t}, 7, v{ra}")
    a.e(f"v_add_u32 v{ra}, {KVS}, v{ra}"); a.e(f"v_mov_b32 v{pt}, {LW+12}")
    a.e("s_waitcnt lgkmcnt(0)"); a.e("s_barrier")
    for i in range(2): a.e(f"ds_read_b128 {vr(ob+4*i,4)}, v{ra} offset:{i*8192}")
    a.e(f"ds_read_b32 v{pt+1}, v{pt}")
    for i in range(2):
        a.e(f"s_waitcnt lgkmcnt({2-i})")
        if "1" in DP: mark(a, ob + 4 * i, 1)
        a.e(f"buffer_store_dwordx4 {vr(ob+4*i,4)}, v{go}, s[16:19], s{36+i} offen {SC}")
    a.e("s_waitcnt lgkmcnt(0)"); a.e(f"v_readfirstlane_b32 s52, v{pt+1}")
    a.e("s_cmp_lg_u32 s30, 0"); a.e("s_cbranch_scc1 KV_ni"); a.e("s_cmp_ge_u32 s35, 16"); a.e("s_cbranch_scc1 KV_ni")
    a.e(f"v_mov_b32 v{t}, s52")
    a.e("s_lshl_b32 s37, s34, 7"); a.e("s_lshl_b32 s53, s35, 10"); a.e("s_add_u32 s37, s37, s53"); a.e(f"s_add_u32 s37, s37, {F_FRONT}")
    a.e("s_mov_b64 exec, 1"); a.e(f"buffer_store_dword v{t}, v{zz}, s[56:59], s37 offen {SC}"); a.e("s_mov_b64 exec, -1")
    a.e("KV_ni:")
    a.e(f"s_cmp_ge_u32 s2, {NVOTE}"); a.e("s_cbranch_scc1 KV_n3"); a.e("s_cmp_lg_u32 s30, 5"); a.e("s_cbranch_scc1 KV_n3")
    probe_base(a)
    a.e(f"v_lshrrev_b32 v{t}, 5, v1"); a.e(f"v_mul_u32_u24 v{t}, {8192 - 512}, v{t}"); a.e(f"v_add_u32 v{t}, v{t}, v2")
    a.e(f"buffer_store_dwordx4 {vr(z,4)}, v{t}, s[56:59], s42 offen {SC}")
    a.e("KV_n3:")
    roles(a)
    def pubk():
        a.e("s_lshl_b32 s36, s34, 5"); a.e("s_add_u32 s36, s36, s35"); a.e("s_lshl_b32 s36, s36, 7"); a.e(f"s_add_u32 s36, s36, {F_KVT}")
        mstamp(a)
        QL = int(os.environ.get("QL", "3"))
        if QL == 2: load_q(a)
        publish(a, 0, 8, pt, off=36, flag=True, wait=4 if QL == 2 else 0)
        if QL == 3: load_q(a)
        mstamp(a)
    HF = int(os.environ.get("HF", "0"))
    if not HF: pubk()
    else: a.e("s_waitcnt vmcnt(2)")
    cc = wf; hw2 = v()
    a.e(f"v_add_u32 v{hw2}, s45, v{hw}")
    for it in range(3):
        D = d + 6 * it; c0 = cc + 12 * it; c1 = c0 + 4; c2 = c0 + 8
        for k in range(4):
            a.e(f"v_alignbit_b32 v{c0+k}, v{D+k+1}, v{D+k}, 16")
            a.e(f"v_mov_b32 v{c1+k}, v{D+k+1}")
            a.e(f"v_alignbit_b32 v{c2+k}, v{D+k+2}, v{D+k+1}, 16")
        if it == 2: a.e("s_mov_b64 exec, 0xf")
        ad, o0 = (hw2, 1024 * it) if it < 2 else (hw, 4096)
        a.e(f"ds_write_b128 v{ad}, {vr(c0,4)} offset:{o0}")
        a.e(f"ds_write_b128 v{ad}, {vr(c1,4)} offset:{HSTR+o0}")
        a.e(f"ds_write_b128 v{ad}, {vr(c2,4)} offset:{2*HSTR+o0}")
        a.e(f"ds_write_b128 v{ad}, {vr(D+2,4)} offset:{3*HSTR+o0}")
        if it == 2: a.e("s_mov_b64 exec, -1")
    if HF: pubk()
    assert v.hi <= 176
    a.e("s_waitcnt lgkmcnt(0)"); a.e("s_barrier")
def load_q(a):
    a.srd(8, 6, 4 * MB)
    for j in range(4): a.e(f"buffer_load_dwordx2 {vr(RXA+2*j,2)}, v{RRO}, s[8:11], 0 offen offset:{128*(j>>1) + 32*(j&1)} {os.environ.get('NTQ', NTH)}")
def chan_setup(a, wsg):
    a.e("s_and_b32 s38, s2, 7"); a.e("s_lshl_b32 s38, s38, 5"); a.e("s_lshr_b32 s39, s2, 3"); a.e("s_add_u32 s38, s38, s39")
    a.e("s_lshl_b32 s39, s38, 2"); a.e(f"s_add_u32 s39, s39, s{wsg}")
    a.e(f"s_mul_i32 s40, s{wsg}, {CHB}")

def touch(a, ka, nbytes, r):
    n = nbytes // 1024 // 512
    a.e(f"s_load_dwordx2 s[48:49], s[0:1], {ka}")
    a.e("s_lshl_b32 s45, s2, 1"); a.e("s_and_b32 s50, s30, 1"); a.e("s_add_u32 s45, s45, s50"); a.e(f"s_mul_i32 s45, s45, {n*1024}")
    a.e(f"s_mov_b32 s50, {nbytes}"); a.e("s_mov_b32 s51, 0x20000")
    a.e("s_waitcnt lgkmcnt(0)")
    for i in range(n):
        if i and i % 4 == 0: a.e("s_add_u32 s45, s45, 4096")
        a.e(f"buffer_load_dwordx4 {vr(r,4)}, v2, s[48:51], s45 offen offset:{(i&3)*1024}")
    return n

def w2_warm(a):
    a.e("s_mov_b64 s[48:49], s[70:71]"); a.e(f"s_mov_b32 s50, {2*MB}"); a.e("s_mov_b32 s51, 0x20000")
    a.e("s_and_b32 s45, s28, 3"); a.e("s_lshl_b32 s45, s45, 1"); a.e("s_and_b32 s46, s30, 1"); a.e("s_add_u32 s45, s45, s46"); a.e("s_lshl_b32 s45, s45, 18")
    a.e("s_lshl_b32 s46, s29, 7"); a.e("s_add_u32 s45, s45, s46"); a.e("v_lshlrev_b32 v245, 11, v1")
    a.e("buffer_load_dword v244, v245, s[48:51], s45 offen"); a.e(f"s_add_u32 s45, s45, {64*2048}"); a.e("buffer_load_dword v246, v245, s[48:51], s45 offen")
def cs_load(a, which, slot):
    w_setup(a, which, pre=False)
    a.e(f"s_mov_b32 s42, {slot}"); a.e("s_mov_b32 s44, s28")
    w_issue(a, which, direct=True)
CSEL, CFR, CAD, CACC, CSO_ = 16, 72, 144, 156, 164
def cs_prep(a, S1, S3):
    a.e(f"v_and_b32 v{CSO_}, 15, v1"); a.e(f"v_mov_b32 v{CSO_+1}, 0x3f803f80")
    for T in range(14):
        a.e(f"v_cmp_eq_u32 vcc, {T}, v{CSO_}")
        for e in range(4): a.e(f"v_cndmask_b32 v{CSEL+4*T+e}, 0, v{CSO_+1}, vcc")
    pos = {}
    for which, slot, r0, halves in ((1, S1, CAD, 1), (3, S3, CAD + 4, 2)):
        c = CFG[which]
        for hf in range(halves):
            a.e(f"s_mov_b32 s35, {hf}")
            nr, pos[which] = w_bases(a, which, r0 + 2 * hf, 35, c["TN16"] // halves, WV + 8, WV + 9)
            a.e("s_and_b32 s35, s30, 1"); a.e(f"s_mul_i32 s35, s35, {32*c['RB']}"); a.e(f"s_add_u32 s35, s35, {slot}")
            for i in range(nr): a.e(f"v_add_u32 v{r0+2*hf+i}, s35, v{r0+2*hf+i}")
    for i in range(8): a.e(f"v_mov_b32 v{CACC+i}, 0")
    a.e(f"v_lshrrev_b32 v{CSO_+2}, 4, v1"); a.e(f"v_lshlrev_b32 v{CSO_+2}, 4, v{CSO_+2}"); a.e(f"v_lshl_add_u32 v{CSO_+2}, v{CSO_}, 6, v{CSO_+2}")
    a.e(f"v_mov_b32 v{CSO_+1}, 0x7f000000")
    for k, n in ((3, 4), (4, 14)):
        a.e(f"v_cmp_gt_u32 vcc, {n}, v{CSO_}"); a.e(f"v_cndmask_b32 v{CSO_+k}, v{CSO_+1}, v{CSO_+2}, vcc")
    return pos
def cs_sum(a, which, pos):
    c = CFG[which]; ntl = c["TN16"]; N = c["LDW"] // 2
    F = CFR + (0 if which == 3 else 56); A = CACC + (0 if which == 3 else 4)
    for T in range(ntl):
        hf, nt = (T // 7, T % 7) if which == 3 else (0, T)
        for h in range(2):
            r, imm = pos[which](nt, 0, h)
            a.e(f"ds_read_b64_tr_b16 {vr(F+4*T+2*h,2)}, v{(CAD + 4 if which == 3 else CAD) + 2*hf + r} offset:{imm}")
    a.srd(20, 4, 32 * N * 4, off=CSP[which])
    a.e("s_lshl_b32 s35, s28, 1"); a.e("s_and_b32 s36, s30, 1"); a.e("s_add_u32 s35, s35, s36"); a.e(f"s_mul_i32 s35, s35, {N*4}")
    a.e(f"s_mul_i32 s36, s29, {ntl*64}"); a.e("s_add_u32 s35, s35, s36")
    a.e("s_waitcnt lgkmcnt(0)")
    for T in range(ntl): a.e(f"v_mfma_f32_16x16x32_bf16 {vr(A,4)}, {vr(F+4*T,4)}, {vr(CSEL+4*T,4)}, {vr(A,4)}")
    a.e(f"buffer_store_dwordx4 {vr(A,4)}, v{CSO_ + (4 if which == 3 else 3)}, s[20:23], s35 offen {SC}")

NOCS3 = int(os.environ.get("NOCS3", "0")); STO = os.environ.get("STOUCH", "")
def stouch(a, which, gran, nw):
    X = a.lab("st"); L = a.lab("sl"); n = 28672 // nw
    a.e("s_cmp_lg_u32 s60, 0"); a.e(f"s_cbranch_scc1 {X}")
    a.e(f"s_mul_i32 s36, s2, 28672"); a.e(f"s_and_b32 s37, s30, {nw-1}"); a.e(f"s_mul_i32 s37, s37, {n}"); a.e("s_add_u32 s36, s36, s37")
    a.e(f"s_add_u32 s34, s{66+2*which}, s36"); a.e(f"s_addc_u32 s35, s{67+2*which}, 0"); a.e("s_mov_b32 s36, 0")
    a.e(f"{L}:")
    for i in range(14): a.e(f"s_load_dword s37, s[34:35], {i*gran}")
    a.e(f"s_add_u32 s34, s34, {14*gran}"); a.e("s_addc_u32 s35, s35, 0"); a.e("s_add_u32 s36, s36, 1"); a.e(f"s_cmp_lt_u32 s36, {n // (14*gran)}"); a.e(f"s_cbranch_scc1 {L}")
    a.e("s_waitcnt lgkmcnt(0)")
    a.e(f"{X}:")
SB = eval(os.environ.get("SB", "(0,0,0)"))
SG = eval(os.environ.get("SG", "(0,0,0,0)"))
def sg(a, n):
    if not n: return
    X = a.lab("st"); L = a.lab("sl")
    a.e("s_cmp_lg_u32 s60, 0"); a.e(f"s_cbranch_scc1 {X}"); a.e("s_mov_b32 s36, 0"); a.e(f"{L}:"); sb(a, 14)
    a.e("s_add_u32 s36, s36, 1"); a.e(f"s_cmp_lt_u32 s36, {n}"); a.e(f"s_cbranch_scc1 {L}"); a.e("s_waitcnt lgkmcnt(0)"); a.e(f"{X}:"); mstamp(a)
def sb_init(a):
    nw = 2 if sum(SG) else 4
    a.e(f"s_mul_i32 s36, s2, 28672"); a.e(f"s_and_b32 s37, s30, {nw-1}"); a.e(f"s_mul_i32 s37, s37, {28672//nw}"); a.e("s_add_u32 s36, s36, s37")
    SW = 66 + 2 * int(os.environ.get("SGW", "3"))
    a.e(f"s_add_u32 s90, s{SW}, s36"); a.e(f"s_addc_u32 s91, s{SW+1}, 0")
def sb(a, n):
    for i in range(n): a.e(f"s_load_dword s101, s[90:91], {i*64}")
    if n: a.e(f"s_add_u32 s90, s90, {n*64}"); a.e("s_addc_u32 s91, s91, 0")
PUTE = int(os.environ.get("PUTE", "1"))
def front_b(a):
    pt, dm = 6, 20
    vd = 12; VG = int(os.environ.get("VG", "0")); VE = int(os.environ.get("VE", "1"))
    def vote():
        a.e(f"s_cmp_ge_u32 s2, {NVOTE}"); a.e("s_cbranch_scc1 FB_np"); a.e("s_cmp_lg_u32 s30, 5"); a.e("s_cbranch_scc1 FB_np")
        probe_base(a); a.e(f"v_mov_b32 v{vd+2}, 0")
        if os.environ.get("SPR", "1") == "1":
            a.e("s_mov_b64 exec, 1"); a.e("s_mov_b32 s46, -1"); a.e("s_mov_b32 s47, -1")
            a.e("s_add_u32 s48, s4, s42"); a.e("s_addc_u32 s49, s5, 0")
            a.e("s_load_dword s101, s[48:49], 384"); a.e("s_waitcnt lgkmcnt(0)"); a.e("s_memtime s[34:35]"); a.e("s_waitcnt lgkmcnt(0)")
            for k in range(2 * NSAMP):
                p_, q_ = (34, 36) if k % 2 == 0 else (36, 34)
                a.e(f"s_load_dword s101, s[48:49], {(k & 1) * 8192 + (k >> 1) * 128}"); a.e("s_waitcnt lgkmcnt(0)"); a.e(f"s_memtime s[{q_}:{q_+1}]"); a.e("s_waitcnt lgkmcnt(0)")
                a.e(f"s_sub_u32 s43, s{q_}, s{p_}"); a.e(f"s_min_u32 s{46+(k&1)}, s{46+(k&1)}, s43")
        else:
            a.e("s_mov_b64 exec, 1"); a.e("s_mov_b32 s46, -1"); a.e("s_mov_b32 s47, -1"); a.e("s_mov_b32 s43, 0")
            a.e("FB_ml:")
            for i in range(2):
                a.e(f"s_add_u32 s45, s42, {i * 8192}")
                a.e("s_memtime s[34:35]"); a.e("s_waitcnt lgkmcnt(0)")
                a.e(f"buffer_load_dword v{vd+1}, v{vd+2}, s[56:59], s45 offen {SC}"); a.e("s_waitcnt vmcnt(0)")
                a.e("s_memtime s[36:37]"); a.e("s_waitcnt lgkmcnt(0)")
                a.e("s_sub_u32 s36, s36, s34"); a.e(f"s_min_u32 s{46+i}, s{46+i}, s36")
            a.e("s_add_u32 s42, s42, 128"); a.e("s_add_u32 s43, s43, 1"); a.e(f"s_cmp_lt_u32 s43, {NSAMP}"); a.e("s_cbranch_scc1 FB_ml")
        a.e("s_cmp_lt_u32 s47, s46"); a.e("s_cselect_b32 s45, 1, 0")
        a.e("s_lshr_b32 s46, s28, 2"); a.e("s_xor_b32 s45, s45, s46"); a.e("s_and_b32 s45, s45, 1"); a.e("s_lshl_b32 s45, s45, 8")
        a.e("s_or_b32 s43, s45, 1"); a.e(f"v_mov_b32 v{vd}, s43")
        a.e(f"buffer_atomic_add v{vd}, v{vd+2}, s[84:87], 0 offen offset:4 sc0 {SC}"); a.e("s_waitcnt vmcnt(0)")
        a.e(f"v_readfirstlane_b32 s36, v{vd}"); a.e("s_add_u32 s36, s36, s43"); a.e("s_and_b32 s37, s36, 255"); a.e(f"s_cmp_lg_u32 s37, {QUO}"); a.e("s_cbranch_scc1 FB_np")
        a.e("s_lshr_b32 s36, s36, 8"); a.e("s_lshl_b32 s36, s36, 1"); a.e("s_add_u32 s36, s36, s52"); a.e("s_bfm_b64 exec, 32, 0")
        a.e(f"v_mov_b32 v{vd}, s36"); a.e(f"v_lshlrev_b32 v{vd+1}, 7, v1"); a.e(f"s_mov_b32 s36, {F_RES}"); a.e(f"buffer_store_dword v{vd}, v{vd+1}, s[56:59], s36 offen {SC}")
        a.e("FB_np:")
        a.e("s_mov_b64 exec, -1")
        if VG:
            a.e("s_cmp_lg_u32 s30, 5"); a.e("s_cbranch_scc1 FB_ng")
            a.e(f"v_mov_b32 v{pt}, {LW+20}"); a.e(f"v_mov_b32 v{pt+1}, 1"); a.e("s_mov_b64 exec, 1"); a.e(f"ds_add_u32 v{pt}, v{pt+1}"); a.e("s_mov_b64 exec, -1")
            a.e("FB_ng:")
    if VE: vote()
    PZE = int(os.environ.get("PZE", "0"))
    if PZE:
        a.srd(20, 4, 32 * MB, off=216 * MB)
        for i in range(4): a.e(f"v_mov_b32 v{216+i}, -1")
        a.e("s_lshl_b32 s45, s2, 2"); a.e("s_and_b32 s50, s30, 3"); a.e("s_add_u32 s45, s45, s50"); a.e(f"s_mul_i32 s45, s45, {PZE*1024}")
        for i in range(PZE):
            a.e(f"buffer_store_dwordx4 v[216:219], v2, s[20:23], s45 offen {SC}"); a.e("s_add_u32 s45, s45, 1024")
    if TAB: tab_load(a)
    TE = int(os.environ.get("TE", "0"))
    if TE:
        a.e("s_cmp_ge_u32 s30, 6"); a.e("s_cbranch_scc1 FB_t1"); touch(a, B_W2, 2 * MB, dm); a.e("s_branch FB_t2"); a.e("FB_t1:"); touch(a, B_W1, 2 * MB, 200); a.e("FB_t2:")
    w_lanes(a)
    a.e("s_cmp_ge_u32 s30, 6"); a.e("s_cbranch_scc1 FB_cs")
    if not VE: vote()
    mstamp(a)
    a.e("s_cmp_lg_u32 s30, 4"); a.e("s_cbranch_scc1 FB_ni")
    a.e(f"v_mov_b32 v{vd}, s52")
    group_off(a, 37, 28); a.e("s_andn2_b32 s37, s37, 0x2000"); a.e("s_lshl_b32 s53, s29, 7"); a.e("s_add_u32 s37, s37, s53"); a.e(f"s_add_u32 s37, s37, {oSM}")
    a.e(f"v_and_b32 v{vd+1}, 1, v1"); a.e(f"v_lshlrev_b32 v{vd+1}, 13, v{vd+1}"); a.e(f"v_lshrrev_b32 v{vd+2}, 1, v1"); a.e(f"v_lshl_add_u32 v{vd+1}, v{vd+2}, 22, v{vd+1}")
    a.e("s_mov_b64 exec, 0xf"); a.e(f"buffer_store_dword v{vd}, v{vd+1}, s[56:59], s37 offen {SC}")
    a.e("s_cmp_lg_u32 s28, 0"); a.e("s_cbranch_scc1 FB_n2")
    a.e(f"s_add_u32 s37, s53, {F_CS}"); a.e("s_mov_b64 exec, 1"); a.e(f"buffer_store_dword v{vd}, v{vd+1}, s[56:59], s37 offen {SC}")
    a.e("FB_n2:")
    a.e("s_mov_b64 exec, -1")
    a.e("FB_ni:")
    UG = (LW + 20, 4 + VG) if os.environ.get("UG", "1") == "1" else (LW + 16, 1)
    lds_spin(a, *UG, pt, nap=2)
    mstamp(a)
    if TLBW:
        a.e("s_cmp_lg_u32 s30, 5"); a.e("s_cbranch_scc1 FB_nt")
        a.e(f"v_and_b32 v{vd}, 7, v1"); a.e(f"v_lshlrev_b32 v{vd}, 24, v{vd}"); a.e(f"v_lshrrev_b32 v{vd+1}, 3, v1"); a.e(f"v_lshl_add_u32 v{vd}, v{vd+1}, 22, v{vd}")
        a.e("s_lshl_b32 s36, s2, 7"); a.e(f"s_add_u32 s36, s36, {LB0 + 2 * MB - 65536}")
        a.e(f"s_bfm_b64 exec, {8 * TLBW}, 0"); a.e(f"buffer_load_dword v{dm+4}, v{vd}, s[56:59], s36 offen {SC}"); a.e("s_mov_b64 exec, -1")
        a.e("FB_nt:")
    if os.environ.get("W2T", "1") == "2": lds_spin(a, LW + 24, 2, pt, nap=4)
    if os.environ.get("W2T", "1") == "3":
        w_srd(a, 2); a.e("s_lshl_b32 s39, s28, 1"); a.e("s_and_b32 s36, s30, 1"); a.e("s_add_u32 s39, s39, s36"); a.e("s_lshl_b32 s39, s39, 16"); a.e("s_lshl_b32 s36, s29, 7"); a.e("s_add_u32 s39, s39, s36")
        for i in range(4): a.e(f"buffer_load_dwordx4 {vr(dm,4)}, v{WVB[2]}, s[12:15], s39 offen"); a.e("s_add_u32 s39, s39, 16384")
    elif os.environ.get("W2T", "1") != "0" and not TE: touch(a, B_W2, 2 * MB, dm)
    QL = int(os.environ.get("QL", "3"))
    if not QL: load_q(a)
    if W4POS == "F": lds_spin(a, LW + 24, 2, pt, nap=4); a.e("s_waitcnt vmcnt(0)")
    if W4POS in ("F", "F0"): touch(a, B_W4, 7 * MB, dm)
    PZF = int(os.environ.get("PZF", "0"))
    if PZF:
        a.srd(20, 4, 32 * MB, off=216 * MB)
        for i in range(4): a.e(f"v_mov_b32 v{216+i}, -1")
        a.e("s_lshl_b32 s45, s2, 1"); a.e("s_and_b32 s50, s30, 1"); a.e("s_add_u32 s45, s45, s50"); a.e(f"s_mul_i32 s45, s45, {PZF*1024}")
        for i in range(PZF):
            a.e(f"buffer_store_dwordx4 v[216:219], v2, s[20:23], s45 offen {SC}"); a.e("s_add_u32 s45, s45, 1024")
            if os.environ.get("PZP"): a.e(f"s_waitcnt vmcnt({os.environ['PZP']})")
    front_arrive(a, True)
    if TAB: tab_make(a, 0)
    PKW = int(os.environ.get("PKW", "2")); PKP = int(os.environ.get("PKP", "8"))
    W1P = int(os.environ.get("W1P", "8")); FO = os.environ.get("FO", "1pd"); FO2 = os.environ.get("FO2", "1pd")
    R1 = [176, 188, 192] + [200 + 4 * i for i in range(7)] + [16 + 4 * i for i in range(8)]
    def w1_regs(a):
        w_srd(a, 1)
        a.e("s_and_b32 s35, s30, 3"); a.e(f"s_mul_i32 s35, s35, {18*16384}"); a.e("s_lshl_b32 s39, s99, 7"); a.e("s_add_u32 s39, s39, s35")
        for q in range(18):
            a.e(f"buffer_load_dwordx4 {vr(R1[q],4)}, v{WVB[1]}, s[12:15], s39 offen"); a.e("s_add_u32 s39, s39, 16384")
            if q % 4 == 3: sb(a, SB[1])
            if PKP and q % 4 == 3: a.e(f"s_waitcnt vmcnt({PKP})")
        if QL == 1: load_q(a)
    def w1_put(a):
        a.e("s_and_b32 s35, s30, 3"); a.e(f"s_mul_i32 s35, s35, {18*1024}"); a.e("v_add_u32 v8, s35, v2")
        if PUTE: lds_spin(a, LW + 20, 8 + VG, pt, nap=2)
        else: lds_spin(a, LW + 4, 16, pt, nap=2)
        PV0 = int(os.environ.get("PV0", "1")); assert not PV0 or (FO[0] == "1" and FO2[0] == "1" and "p" in FO and "p" in FO2)
        a.e(f"s_waitcnt vmcnt({32 - PD if PV0 else 0})")
        for q in range(18): a.e(f"ds_write_b128 v8, {vr(R1[q],4)} offset:{CFG[1]['WB'] + 1024*q}")
        a.e("s_waitcnt lgkmcnt(0)")
    def w1_dma(a, js):
        lds_spin(a, LW + 24, 4, pt, nap=3)
        w_setup(a, 1, pre=False)
        for j in js: w1_slots(a, (j,), pace=W1P); ypause(a)
    DS_ = int(os.environ.get("DSPL", "12"))
    if PKW: lds_spin(a, LW + 24, PKW, pt, nap=4)
    for i_, ch in enumerate(FO):
        if ch == "d": w1_dma(a, range(9, DS_))
        else: call(a, {"1": w1_regs, "p": park}[ch])
    park_rest(a, False)
    mstamp(a)
    call(a, w1_put)
    a.e("s_branch FR_end")
    a.e("FB_cs:")
    S1, S3 = KVS - CFG[1]["WB"], KVS + 8192 - CFG[3]["WB"]
    pos = cs_prep(a, S1, S3)
    lds_spin(a, *UG, pt, nap=2)
    mstamp(a)
    if not QL: load_q(a)
    cs_load(a, 1, S1)
    if not NOCS3: cs_load(a, 3, S3)
    a.e(f"s_waitcnt vmcnt({0 if NOCS3 else 14})")
    if CSPRIO: a.e(f"s_setprio {CSPRIO}")
    cs_sum(a, 1, pos)
    a.e("s_waitcnt vmcnt(1)")
    a.e(f"v_mov_b32 v{pt}, {LW+24}"); a.e(f"v_mov_b32 v{pt+1}, 1")
    a.e("s_mov_b64 exec, 1"); a.e(f"ds_add_u32 v{pt}, v{pt+1}"); a.e("s_mov_b64 exec, -1")
    mstamp(a)
    if not NOCS3: cs_sum(a, 3, pos)
    front_arrive(a, False)
    if TAB: tab_make(a, 1)
    a.e(f"v_mov_b32 v{pt}, {LW+24}"); a.e(f"v_mov_b32 v{pt+1}, 1")
    a.e("s_mov_b64 exec, 1"); a.e(f"ds_add_u32 v{pt}, v{pt+1}"); a.e("s_mov_b64 exec, -1")
    mstamp(a)
    a.e("s_setprio 0")
    assert CFG[1]["WB"] + 9 * 8192 == KVS
    for ch in FO2:
        if ch == "d": w1_dma(a, range(DS_, 16))
        else: call(a, {"1": w1_regs, "p": park}[ch])
    park_rest(a, False)
    mstamp(a)
    call(a, w1_put)

PG = int(os.environ.get("PG", "0"))
def front_conv(a):
    v = VA(6); lane = 1; l16 = 2
    t = v(); pt = v(4, 2)
    chan_setup(a, 30)
    a.e("s_and_b32 s36, s39, 127"); a.e("s_lshl_b32 s36, s36, 12"); a.e("s_lshr_b32 s37, s39, 7"); a.e("s_lshl_b32 s37, s37, 24")
    a.e("s_add_u32 s36, s36, s37"); a.e(f"s_add_u32 s36, s36, {LB0 + oX3}")
    a.e("s_add_u32 s16, s4, s36"); a.e("s_addc_u32 s17, s5, 0"); a.e("s_mov_b32 s18, 4096"); a.e("s_mov_b32 s19, 0x20000")
    uw = v(); u = v(16, 4)
    a.e(f"v_lshrrev_b32 v{t}, 2, v{lane}"); a.e(f"v_mul_u32_u24 v{uw}, {US}, v{t}"); a.e(f"v_and_b32 v{t}, 3, v{lane}")
    a.e(f"v_lshl_add_u32 v{uw}, v{t}, 4, v{uw}"); a.e(f"v_add_u32 v{uw}, s40, v{uw}")
    aa = v(); ba = v(); ua = v(); J = v(); G = v()
    a.e(f"v_and_b32 v{J}, 15, v{lane}"); a.e(f"v_lshrrev_b32 v{G}, 4, v{lane}")
    a.e(f"v_and_b32 v{t}, 3, v{J}"); a.e(f"v_mul_u32_u24 v{aa}, {HSTR}, v{t}")
    a.e(f"v_lshl_add_u32 v{aa}, v{G}, 4, v{aa}"); a.e(f"v_lshrrev_b32 v{t}, 2, v{J}"); a.e(f"v_lshl_add_u32 v{aa}, v{t}, 3, v{aa}")
    a.e(f"v_add_u32 v{aa}, s40, v{aa}")
    a.e(f"v_sub_u32 v{t}, 15, v{J}"); a.e(f"v_mul_u32_u24 v{ua}, {US}, v{t}"); a.e(f"v_add_u32 v{ua}, s40, v{ua}")
    a.e(f"v_lshl_add_u32 v{ba}, v{G}, 4, v{ua}")
    acc = v(32, 4)
    fa = v(64, 4); fb = v(32, 4)
    def rdA(p, o):
        return [f"ds_read_b64 {vr(fa+32*p+8*s_+4*mt+2*h,2)}, v{aa} offset:{64*(o+16*s_) + 32*mt + 8*h}" for s_ in range(4) for mt in range(2) for h in range(2)]
    def rdB(p, o):
        return [f"ds_read_b128 {vr(fb+16*p+4*k,4)}, v{ba} offset:{UOFF + (48 - 16*k + o)*US}" for k in range(4)]
    for x in rdA(0, 0): a.e(x)
    dm_ = fb + 16; Dv = pt + 2
    a.e("s_bitcmp1_b32 s39, 0"); a.e("s_cselect_b32 s36, 0, 16"); a.e("s_lshl_b32 s41, s98, s36"); a.e("s_and_b32 s41, s41, 0xffff0000"); a.e("s_lshr_b32 s36, s41, 16")
    a.e(f"v_lshl_add_u32 v{t}, v{G}, 3, v{J}"); a.e(f"v_sub_u32 v{t}, 31, v{t}")
    a.e(f"v_mov_b32 v{Dv}, s36"); a.e(f"v_mov_b32 v{Dv+1}, s41"); a.e(f"v_and_b32 v{pt}, 1, v{t}"); a.e(f"v_cmp_eq_u32 vcc, 1, v{pt}")
    a.e(f"v_cndmask_b32 v{Dv}, v{Dv}, v{Dv+1}, vcc"); a.e(f"v_ashrrev_i32 v{t}, 1, v{t}")
    for mt in range(2):
        for d_ in range(4): a.e(f"v_cmp_eq_u32 vcc, {8*mt+d_}, v{t}"); a.e(f"v_cndmask_b32 v{dm_+4*mt+d_}, 0, v{Dv}, vcc")
    a.srd(12, 4, 8 * GSTR - oHS, off=LB0 + oHS)
    ta = v(); go = v()
    a.e(f"v_bfe_u32 v{t}, v{lane}, 2, 2"); a.e(f"v_mul_u32_u24 v{ta}, {CHB+64}, v{t}")
    a.e(f"v_lshrrev_b32 v{t}, 1, v{G}"); a.e(f"v_mul_u32_u24 v{t}, 72, v{t}"); a.e(f"v_add_u32 v{ta}, v{ta}, v{t}")
    a.e(f"v_and_b32 v{t}, 1, v{G}"); a.e(f"v_lshl_add_u32 v{ta}, v{t}, 5, v{ta}")
    a.e(f"v_and_b32 v{t}, 3, v{lane}"); a.e(f"v_lshl_add_u32 v{ta}, v{t}, 3, v{ta}")
    a.e(f"s_mul_i32 s36, s30, {16*72}"); a.e(f"v_add_u32 v{ta}, s36, v{ta}")
    a.e(f"v_lshlrev_b32 v{go}, 3, v{lane}")
    a.e("s_lshr_b32 s44, s38, 4"); a.e("s_lshl_b32 s44, s44, 14"); a.e("s_and_b32 s37, s38, 15"); a.e("s_lshl_b32 s37, s37, 9"); a.e("s_add_u32 s44, s44, s37")
    a.e("s_and_b32 s37, s30, 1"); a.e("s_lshl_b32 s37, s37, 13"); a.e("s_add_u32 s44, s44, s37")
    a.e("s_lshr_b32 s37, s30, 1"); a.e("s_lshl_b32 s37, s37, 26"); a.e("s_add_u32 s44, s44, s37")
    ev = ua; a.e(f"v_not_b32 v{ev}, v{lane}"); a.e(f"v_and_b32 v{ev}, 1, v{ev}")
    ya = v()
    a.e(f"s_mul_i32 s36, s30, {CHB+64}")
    a.e(f"v_mul_u32_u24 v{ya}, 72, v{J}"); a.e(f"v_lshl_add_u32 v{ya}, v{G}, 3, v{ya}"); a.e(f"v_add_u32 v{ya}, s36, v{ya}")
    a.e(f"v_mov_b32 v{J}, 0"); a.e("s_and_b32 s45, s2, 31"); a.e("s_lshl_b32 s45, s45, 7"); a.e(f"s_add_u32 s45, s45, {F_RES}")
    a.e("s_cmp_lg_u32 s30, 0"); a.e("s_cbranch_scc1 CV_w")
    a.e("s_and_b32 s36, s2, 7"); a.e("s_lshl_b32 s36, s36, 12"); a.e(f"s_add_u32 s36, s36, {F_KVT}")
    a.e(f"v_lshlrev_b32 v{pt+1}, 7, v{lane}"); a.e(f"v_add_u32 v{pt+1}, s36, v{pt+1}")
    poll_core(a, pt, [pt + 1], 0xffffffff)
    lds_set(a, LW + 16, 1, pt)
    a.e("CV_w:")
    lds_spin(a, LW + 16, 1, pt)
    mstamp(a)
    for it in range(4): a.e(f"buffer_load_dwordx4 {vr(u+4*it,4)}, v{l16}, s[16:19], 0 offen offset:{1024*it} {os.environ.get('UF', SC + ' nt')}")
    QL = int(os.environ.get("QL", "3"))
    if not QL: load_q(a)
    for it in range(4):
        a.e(f"s_waitcnt vmcnt({(3 if QL else 7)-it})")
        a.e(f"ds_write_b128 v{uw}, {vr(u+4*it,4)} offset:{UOFF + 16*US*it}")
    a.e(f"v_mov_b32 v{pt}, {LW+20}"); a.e(f"v_mov_b32 v{pt+1}, 1")
    a.e("s_mov_b64 exec, 1"); a.e(f"ds_add_u32 v{pt}, v{pt+1}"); a.e("s_mov_b64 exec, -1")
    a.e("s_waitcnt lgkmcnt(0)")
    mstamp(a)
    for x in rdB(0, 0): a.e(x)
    for c_ in range(4):
        a.e(f"s_waitcnt lgkmcnt({3-c_})")
        for mt in range(2): a.e(f"v_mfma_f32_16x16x32_bf16 {vr(acc+8*c_+4*mt,4)}, {vr(dm_+4*mt,4)}, {vr(fb+4*c_,4)}, 0")
    def step(p, nxt, tail, piped=False):
        a.e(f"s_waitcnt lgkmcnt({10 if piped else 0})")
        mf = [(c_, s_, mt) for s_ in range(4) for mt in range(2) for c_ in range(s_, 4)]
        for i, (c_, s_, mt) in enumerate(mf):
            A = acc + 8 * c_ + 4 * mt
            a.e(f"v_mfma_f32_16x16x32_bf16 {vr(A,4)}, {vr(fa+32*p+8*s_+4*mt,4)}, {vr(fb+16*p+4*(c_-s_),4)}, {vr(A,4)}")
            if nxt: a.e(nxt.pop(0))
            if piped and i == 9: a.e("s_waitcnt lgkmcnt(10)")
            for x in tail.pop(i, []) if tail else []: a.e(x)
        assert not nxt and not tail
    a.e("s_mov_b32 s43, 0")
    NU = int(os.environ.get("NU", "4")); HP = int(os.environ.get("HP", "0"))
    if NU:
        a.e("CV_r:")
        for p in range(2):
            rd = rdB(1 - p, p + 1) + rdA(1 - p, p + 1)
            step(p, rd[:HP], [])
            for x in rd[HP:]: a.e(x)
        for x in [f"v_add_u32 v{aa}, 128, v{aa}", f"v_add_u32 v{ba}, {2*US}, v{ba}", "s_add_u32 s43, s43, 1", f"s_cmp_lt_u32 s43, {NU}"]: a.e(x)
        a.e("s_cbranch_scc1 CV_r")
    if QL == 1: load_q(a)
    a.e("CV_l:")
    step(0, rdB(1, 1) + rdA(1, 1), {1: [f"s_cmp_eq_u32 s43, {os.environ.get('VT', '5')}"], 2: ["s_cselect_b64 exec, 1, 0", f"buffer_load_dword v{uw}, v{J}, s[56:59], s45 offen {SC}", "s_mov_b64 exec, -1"]}, True)
    step(1, rdB(0, 2) + rdA(0, 2), {19: [f"v_add_u32 v{aa}, 128, v{aa}"], 5: [f"v_add_u32 v{ba}, {2*US}, v{ba}"], 6: ["s_add_u32 s43, s43, 1"], 7: ["s_cmp_lt_u32 s43, 8"]}, True)
    a.e("s_cbranch_scc1 CV_l")
    mstamp(a)
    a.e("s_waitcnt lgkmcnt(0)")
    for c_ in range(4):
        for mt in range(2):
            A = acc + 8 * c_ + 4 * mt; O = u + 2 * (c_ * 2 + mt)
            a.e(f"v_cvt_pk_bf16_f32 v{O}, v{A}, v{A+1}"); a.e(f"v_cvt_pk_bf16_f32 v{O+1}, v{A+2}, v{A+3}")
            a.e(f"ds_write_b64 v{ya}, {vr(O,2)} offset:{c_*16*72 + mt*32}")
    a.e("s_mov_b32 s53, 0"); a.e("s_waitcnt vmcnt(0)")
    a.e("CV_v:")
    a.e(f"v_readfirstlane_b32 s94, v{uw}"); a.e("s_sub_u32 s94, s94, s52"); a.e("s_and_b32 s37, s94, 0xfffffe01"); a.e("s_cbranch_scc0 CV_k")
    a.e(f"buffer_load_dword v{uw}, v{J}, s[56:59], s45 offen {SC}"); a.e("s_waitcnt vmcnt(0)")
    a.e("s_add_u32 s53, s53, 1"); a.e("s_cmp_lt_u32 s53, s61"); a.e("s_cbranch_scc1 CV_v"); a.e("s_mov_b32 s61, 0"); a.e("s_mov_b32 s94, 0")
    a.e("CV_k:")
    a.e("s_lshr_b32 s94, s94, 1"); a.e("s_add_u32 s37, s94, 65536"); a.e(f"v_mov_b32 v{pt}, {LW+28}"); a.e(f"v_mov_b32 v{pt+1}, s37"); a.e(f"ds_write_b32 v{pt}, v{pt+1}")
    a.e(f"s_cmp_gt_u32 s94, {QUO // 2}"); a.e("s_cselect_b32 s37, 0x2000, 0"); a.e("s_xor_b32 s44, s44, s37")
    if PWA:
        a.e("s_and_b32 s45, s44, 0x2000"); a.e(f"s_xor_b32 s45, s45, {(((F_FRONT >> 21) ^ (F_FRONT >> 13)) & 1) << 13}"); a.e("s_lshr_b32 s37, s30, 1"); a.e("s_lshl_b32 s37, s37, 12"); a.e("s_add_u32 s45, s45, s37")
        a.e("s_and_b32 s37, s2, 7"); a.e("s_lshl_b32 s37, s37, 7"); a.e("s_add_u32 s45, s45, s37"); a.e(f"s_add_u32 s45, s45, {F_FRONT}")
        assert t == 6; a.e("v_lshlrev_b32 v6, 10, v1"); a.e("v_mov_b32 v7, 1")
    lbar(a, 1, pt)
    for i in range(8): a.e(f"ds_read_b64_tr_b16 {vr(fa+32+2*i,2)}, v{ta} offset:{144*i}")
    for i in range(8):
        a.e(f"s_waitcnt lgkmcnt({7-i})")
        a.e(f"v_or_b32 v{fa+32+2*i}, v{ev}, v{fa+32+2*i}")
        a.e(f"buffer_store_dwordx2 {vr(fa+32+2*i,2)}, v{go}, s[12:15], s44 offen {SC}")
        a.e(f"s_add_u32 s44, s44, {GSTR - 262144 if i & 1 else 262144}")
    if PUTE:
        a.e(f"v_mov_b32 v{pt}, {LW+20}"); a.e(f"v_mov_b32 v{pt+1}, 1")
        a.e("s_mov_b64 exec, 1"); a.e(f"ds_add_u32 v{pt}, v{pt+1}"); a.e("s_mov_b64 exec, -1")
    assert v.hi <= 176

PK = 48; W3S = 176
RFO, RYO, RRO, RI, RXA, RXB, RYY, RT = 196, 197, 198, 199, 180, 188, 230, 228
def r_addr(a, full=True):
    t, t2, I, fo, ro, yo = RT, RT + 1, RI, RFO, RRO, RYO
    a.e(f"v_and_b32 v{I}, 7, v0")
    a.e(f"v_lshrrev_b32 v{t}, 6, v0"); a.e(f"v_lshlrev_b32 v{t}, 4, v{t}"); a.e(f"v_bfe_u32 v{t2}, v0, 3, 3"); a.e(f"v_add_u32 v{t}, v{t}, v{t2}")
    a.e("s_lshr_b32 s78, s29, 1"); a.e("s_lshl_b32 s78, s78, 16"); a.e("s_and_b32 s79, s29, 1"); a.e("s_lshl_b32 s79, s79, 7"); a.e("s_add_u32 s78, s78, s79")
    a.e("s_lshr_b32 s79, s30, 1"); a.e("s_lshl_b32 s79, s79, 13"); a.e("s_add_u32 s78, s78, s79")
    a.e(f"v_lshlrev_b32 v{fo}, 8, v{t}"); a.e(f"v_lshl_add_u32 v{fo}, v{I}, 4, v{fo}"); a.e(f"v_add_u32 v{fo}, s78, v{fo}")
    if not full: return
    a.e("s_lshl_b32 s78, s28, 7"); a.e("s_lshl_b32 s79, s29, 3"); a.e("s_add_u32 s78, s78, s79")
    a.e(f"v_add_u32 v{yo}, s78, v{I}"); a.e(f"v_lshlrev_b32 v{ro}, 11, v{yo}")
    a.e(f"v_lshrrev_b32 v{t2}, 2, v{t}"); a.e(f"v_lshlrev_b32 v{t2}, 3, v{t2}"); a.e(f"v_and_b32 v{t}, 3, v{t}"); a.e(f"v_add_u32 v{t}, v{t}, v{t2}")
    a.e(f"v_lshl_add_u32 v{ro}, v{t}, 3, v{ro}")
    a.e(f"v_and_b32 v{yo}, 63, v{yo}"); a.e(f"v_lshlrev_b32 v{yo}, 3, v{yo}"); a.e(f"v_and_b32 v{t2}, 15, v{t}"); a.e(f"v_lshl_add_u32 v{yo}, v{t2}, 9, v{yo}")
    a.e(f"v_lshrrev_b32 v{t2}, 4, v{t}"); a.e(f"v_lshl_add_u32 v{yo}, v{t2}, 14, v{yo}")
    a.e("s_lshr_b32 s78, s28, 3"); a.e("s_lshl_b32 s78, s78, 2"); a.e("s_and_b32 s79, s28, 3"); a.e("s_add_u32 s78, s78, s79"); a.e("s_lshl_b32 s78, s78, 24")
    a.e("s_and_b32 s79, s28, 4"); a.e("s_lshl_b32 s79, s79, 11"); a.e("s_add_u32 s78, s78, s79")
    a.e("s_lshl_b32 s79, s31, 18"); a.e("s_add_u32 s78, s78, s79"); a.e(f"v_add_u32 v{yo}, s78, v{yo}")
def load_y(a, skip_last=False):
    a.srd(80, 4, 8 * GSTR - oHS, off=LB0 + oHS)
    for j in range(2):
        for hh in range(2):
            a.e(f"s_mov_b32 s78, {j*16384 + hh*2048}")
            a.e(f"buffer_load_dwordx2 {vr(RYY+4*j+2*hh,2)}, v{RYO}, s[80:83], s78 offen {os.environ.get('YF', SC)}")
def r_pre(a, l0=False):
    r_addr(a, False)
    lsrd(a, 84, oX3, XSZ); lsrd(a, 88, oX1P, XSZ)
    if l0: a.e("s_cmp_eq_u32 s60, 0"); a.e("s_cselect_b64 exec, -1, 0")
    for j in range(2):
        a.e(f"buffer_load_dwordx4 {vr(RXA+4*j,4)}, v{RFO}, s[84:87], 0 offen offset:{2048*j} {SC}")
        a.e(f"buffer_load_dwordx4 {vr(RXB+4*j,4)}, v{RFO}, s[88:91], 0 offen offset:{2048*j} {SC}")
    if l0: a.e("s_mov_b64 exec, -1")
def r_pre0(a): r_pre(a, True)
def r_pre1(a):
    X = a.lab("rp"); a.e("s_cmp_lg_u32 s60, 0"); a.e(f"s_cbranch_scc1 {X}"); call(a, r_pre); a.e(f"{X}:")

def r_stage(a, final):
    v = VA(6)
    t = v(); t2 = v(); I = RI; fo = RFO; ro = RRO; pt = v(4, 2)
    xa = RXA; xb = RXB; yy = RYY; x = 206; yf = 222; w = v(16, 4); tmp = v()
    pre = final == "pre"
    S = v(2, 2); pp = v(2, 2); qq = v(2, 2); st = w; mean = v(2, 2); rs = mean + 1; var = v(); sw = v(); sr = v()
    def part(src, n):
        a.e(f"v_pk_add_f32 {vr(pp,2)}, {vr(src,2)}, {vr(src+2,2)}"); a.e(f"v_pk_mul_f32 {vr(qq,2)}, {vr(src,2)}, {vr(src,2)}")
        for i in range(1, 8):
            if i > 1: a.e(f"v_pk_add_f32 {vr(pp,2)}, {vr(pp,2)}, {vr(src+2*i,2)}")
            a.e(f"v_pk_fma_f32 {vr(qq,2)}, {vr(src+2*i,2)}, {vr(src+2*i,2)}, {vr(qq,2)}")
        a.e(f"v_add_f32 v{S}, v{pp}, v{pp+1}"); a.e(f"v_add_f32 v{S+1}, v{qq}, v{qq+1}")
        for k in range(2): a.e(f"v_add_f32_dpp v{S+k}, v{S+k}, v{S+k} row_ror:8 row_mask:0xf bank_mask:0xf")
        for op in ("v_permlane16_swap_b32", "v_permlane32_swap_b32"):
            for k in range(2): a.e(f"v_mov_b32 v{pp+k}, v{S+k}")
            for k in range(2): a.e(f"{op} v{S+k}, v{pp+k}")
            a.e(f"v_pk_add_f32 {vr(S,2)}, {vr(S,2)}, {vr(pp,2)}")
        a.e(f"ds_write_b64 v{sw}, {vr(S,2)} offset:{n*512}")
    def comb(n):
        for k in range(4): a.e(f"ds_read_b128 {vr(st+4*k,4)}, v{sr} offset:{n*512+16*k}")
        a.e("s_waitcnt lgkmcnt(0)")
        for k in range(4): a.e(f"v_pk_add_f32 {vr(st+4*k,2)}, {vr(st+4*k,2)}, {vr(st+4*k+2,2)}")
        a.e(f"v_pk_add_f32 {vr(st,2)}, {vr(st,2)}, {vr(st+4,2)}"); a.e(f"v_pk_add_f32 {vr(st+8,2)}, {vr(st+8,2)}, {vr(st+12,2)}")
        a.e(f"v_pk_add_f32 {vr(st,2)}, {vr(st,2)}, {vr(st+8,2)}")
        a.e(f"v_mul_f32 v{mean}, {f32(1/1024)}, v{st}"); a.e(f"v_mul_f32 v{var}, {f32(1/1024)}, v{st+1}")
        a.e(f"v_fma_f32 v{var}, -v{mean}, v{mean}, v{var}"); a.e(f"v_max_f32 v{var}, 0, v{var}")
    SUBM = f"{vr(mean,2)} op_sel_hi:[1,0] neg_lo:[0,1] neg_hi:[0,1]"; MULR = f"{vr(mean,2)} op_sel:[0,1] op_sel_hi:[1,1]"
    if pre: a.e("s_waitcnt lgkmcnt(0)")
    if final is not True:
        a.e(f"v_lshlrev_b32 v{sr}, 6, v{I}"); a.e(f"v_add_u32 v{sr}, {AUX+2048}, v{sr}")
        a.e(f"s_lshl_b32 s35, s30, 3"); a.e(f"v_add_u32 v{sw}, s35, v{sr}")
    if pre:
        a.e("s_waitcnt vmcnt(0)")
        for i in range(8): unpack(a, x + 2 * i, x + 2 * i + 1, xa + i)
        part(x, 0)
        a.e("s_waitcnt lgkmcnt(0)"); a.e("s_barrier")
        return
    if not final:
        a.e(f"s_cmp_eq_u32 s60, 0"); a.e(f"s_cbranch_scc1 R_l0")
    else:
        a.e(f"s_load_dwordx2 s[6:7], s[0:1], {D_OUT}")
    lsrd(a, 8, oP0, XSZ, prev=True); lsrd(a, 12, oP1, XSZ, prev=True)
    lsrd(a, 20, oX3, XSZ); a.e("s_mov_b32 s78, 0x3f80"); a.e("s_mov_b32 s79, 0x3f800000")
    if "r" not in DP: a.e("s_waitcnt vmcnt(0)")
    for i in range(8):
        if not final: unpack(a, yf + 2 * i, yf + 2 * i + 1, yy + i)
        unpack(a, x + 2 * i, x + 2 * i + 1, xa + i); unpack(a, w + 2 * i, w + 2 * i + 1, xb + i)
        a.e(f"v_pk_add_f32 {vr(x+2*i,2)}, {vr(x+2*i,2)}, {vr(w+2*i,2)}")
    lds_ = [f"buffer_load_dwordx4 {vr(r+4*j,4)}, v{fo}, s[{q}:{q+3}], 0 offen offset:{2048*j} {os.environ.get('RF', SC)}" for j in range(2) for r, q in ((xa, 8), (xb, 12))]
    if "r" in DP: data_poll(a, lds_, (xa, xa + 4, xb, xb + 4), t, int(os.environ.get("RNAP", "4")), int(os.environ.get("RFIRST", "24")), int(os.environ.get("RCAN", "0"))); mstamp(a)
    else:
        poll(a, ST_G4, pt, prev=True)
        mstamp(a)
        for x_ in lds_: a.e(x_)
    for i in range(8):
        if i % 4 == 0 and "r" not in DP: a.e(f"s_waitcnt vmcnt({2 - i // 2})")
        u = w + 4 * (i & 3)
        if DOT:
            if i == 0:
                for r_ in (xa, xb):
                    for k in range(16): a.e(f"v_dot2_f32_bf16 v{x+k}, v{r_+k//2}, s{78+(k&1)}, v{x+k}")
                a.e("s_nop 2")
            continue
        unpack(a, u, u + 1, xa + i); unpack(a, u + 2, u + 3, xb + i)
        a.e(f"v_pk_add_f32 {vr(u,2)}, {vr(u,2)}, {vr(u+2,2)}")
        a.e(f"v_pk_add_f32 {vr(x+2*i,2)}, {vr(x+2*i,2)}, {vr(u,2)}")
        if final: a.e(f"v_cvt_pk_bf16_f32 v{xa+i}, v{x+2*i}, v{x+2*i+1}")
        else: round2(a, x + 2 * i, x + 2 * i + 1, tmp)
    if final:
        a.e("s_waitcnt lgkmcnt(0)")
        a.srd(20, 6, 4 * MB)
        OS = os.environ.get("OS", "sc1")
        if os.environ.get("OWIDE", "1") == "1":
            a.e(f"v_bfe_u32 v{t}, v1, 3, 1"); a.e(f"v_cmp_eq_u32 vcc, 1, v{t}")
            for j in range(2):
                lo, hi = xa + 4 * j, xa + 4 * j + 2
                for e in range(2):
                    a.e(f"v_cndmask_b32 v{x+e}, v{hi+e}, v{lo+e}, vcc")
                for e in range(2):
                    a.e(f"v_mov_b32_dpp v{x+2+e}, v{x+e} row_ror:8 row_mask:0xf bank_mask:0xf")
                for e in range(2):
                    a.e(f"v_cndmask_b32 v{x+4+e}, v{lo+e}, v{x+2+e}, vcc"); a.e(f"v_cndmask_b32 v{hi+e}, v{x+2+e}, v{hi+e}, vcc")
                for e in range(2): a.e(f"v_mov_b32 v{lo+e}, v{x+4+e}")
            a.e(f"v_bfe_u32 v{t2}, v1, 4, 1"); a.e(f"v_lshlrev_b32 v{t}, 5, v{t}"); a.e(f"v_lshl_add_u32 v{t}, v{t2}, 4, v{t}")
            a.e(f"v_and_b32 v{t2}, 0xffffffc0, v{ro}"); a.e(f"v_add_u32 v{t}, v{t}, v{t2}")
            for j in range(2): a.e(f"buffer_store_dwordx4 {vr(xa+4*j,4)}, v{t}, s[20:23], 0 offen offset:{128*j} {OS}")
        else:
            for j in range(4): a.e(f"buffer_store_dwordx2 {vr(xa+2*j,2)}, v{ro}, s[20:23], 0 offen offset:{128*(j>>1) + 32*(j&1)} {OS}")
        return v.hi
    part(x, 0)
    if os.environ.get("RST"): mstamp(a)
    a.e("s_waitcnt lgkmcnt(0)"); a.e("s_barrier")
    if os.environ.get("RST"): mstamp(a)
    comb(0)
    ln_finish(a, mean, var, rs)
    if os.environ.get("RST"): mstamp(a)
    a.e(f"v_mul_f32 v{mean}, v{mean}, v{rs}")
    for i in range(8): a.e(f"v_pk_fma_f32 {vr(w+2*i,2)}, {vr(x+2*i,2)}, {vr(mean,2)}, {vr(mean,2)} op_sel:[0,1,0] op_sel_hi:[1,1,0] neg_lo:[0,0,1] neg_hi:[0,0,1]")
    for i in range(8):
        D = w + 2 * i
        a.e(f"v_pk_fma_f32 {vr(x+2*i,2)}, {vr(D,2)}, {vr(yf+2*i,2)}, {vr(x+2*i,2)}")
        a.e(f"v_cvt_pk_bf16_f32 v{xa+i}, v{x+2*i}, v{x+2*i+1}")
        if i % 4 == 1 and DP: mark(a, xa + i - 1, 0)
        if i % 4 == 3: a.e(f"buffer_store_dwordx4 {vr(xa+i-3,4)}, v{fo}, s[20:23], 0 offen offset:{2048*(i//4)} {SC}")
    if os.environ.get("RST"): mstamp(a)
    a.e("s_branch R_s2")
    a.e("R_l0:")
    for i in range(8): unpack(a, x + 2 * i, x + 2 * i + 1, xa + i)
    part(x, 0)
    a.e("s_waitcnt lgkmcnt(0)")
    st_ = st; st = yf
    lds_spin(a, LW + 28, 65536, st, dst=94)
    if STAMP: a.e("s_and_b32 s95, s94, 0xffff")
    a.e(f"s_cmp_gt_u32 s94, {65536 + QUO // 2}"); a.e("s_cselect_b32 s94, 1, 0")
    a.e("s_lshl_b32 s53, s94, 13"); a.e(f"v_xor_b32 v{RYO}, s53, v{RYO}")
    FL = int(os.environ.get("FL", "1"))
    if FL:
        group_off(a, 36, 28); a.e("s_lshr_b32 s53, s53, 14"); a.e("s_add_u32 s36, s53, s54"); a.e(f"s_xor_b32 s36, s36, {(((F_FRONT >> 21) ^ (F_FRONT >> 13) ^ (FL >> 1)) & 1) << 13}")
    else: a.e("s_lshl_b32 s36, s28, 10")
    a.e(f"s_add_u32 s36, s36, {F_FRONT}"); a.e("s_lshl_b32 s53, s30, 7"); a.e("s_add_u32 s36, s36, s53"); a.e(f"v_mov_b32 v{st+4}, s36")
    a.e("s_waitcnt vmcnt(0)"); a.e("s_barrier")
    poll_core(a, st, [st + 4], 1, cnt=32, nap=FSLEEP)
    load_y(a)
    group_off(a, 55, 28)
    a.e("s_add_u32 s62, s4, s55"); a.e("s_addc_u32 s63, s5, 0")
    a.e("s_sub_u32 s36, s28, 1"); a.e("s_max_i32 s36, s36, 0"); group_off(a, 92, 36); a.e("s_sub_u32 s92, s92, s55")
    a.e("s_add_u32 s36, s28, 1"); a.e("s_min_u32 s36, s36, 15"); group_off(a, 93, 36); a.e("s_sub_u32 s93, s93, s55")
    a.e(f"s_add_u32 s55, s55, {oSM}")
    lsrd(a, 20, oX3, XSZ)
    st = st_; comb(0); ln_finish(a, mean, var, rs); st = yf
    for i in range(8):
        D = w + 2 * i
        a.e(f"v_pk_add_f32 {vr(D,2)}, {vr(x+2*i,2)}, {SUBM}"); a.e(f"v_pk_mul_f32 {vr(D,2)}, {vr(D,2)}, {MULR}")
    a.e("s_barrier")
    mstamp(a)
    a.e("s_waitcnt vmcnt(0)")
    for i in range(8):
        D = w + 2 * i
        unpack(a, st, st + 1, yy + i)
        a.e(f"v_pk_fma_f32 {vr(x+2*i,2)}, {vr(D,2)}, {vr(st,2)}, {vr(x+2*i,2)}"); a.e(f"v_cvt_pk_bf16_f32 v{xa+i}, v{x+2*i}, v{x+2*i+1}")
        if i % 4 == 1 and DP: mark(a, xa + i - 1, 0)
        if i % 4 == 3: a.e(f"buffer_store_dwordx4 {vr(xa+i-3,4)}, v{fo}, s[20:23], 0 offen offset:{2048*(i//4)} {SC}")
    a.e("R_s2:")
    st = st_
    for i in range(8): unpack(a, x + 2 * i, x + 2 * i + 1, xa + i)
    part(x, 1)
    if "1" in DP:
        a.e("s_waitcnt lgkmcnt(0)"); a.e("s_barrier")
        a.e("s_cmp_lg_u32 s30, 6"); a.e("s_cbranch_scc1 R_n6"); a.e("s_cmp_lg_u32 s60, 0"); a.e("s_cbranch_scc1 R_n6")
        a.e("s_lshl_b32 s53, s29, 7"); a.e(f"s_add_u32 s53, s53, {F_CS}"); a.e(f"v_mov_b32 v{pt}, 1"); a.e(f"v_mov_b32 v{pt+1}, 0")
        a.e("s_mov_b64 exec, 1"); a.e(f"buffer_atomic_add v{pt}, v{pt+1}, s[56:59], s53 offen {SC}"); a.e("s_mov_b64 exec, -1")
        a.e("R_n6:")
    else:
        publish(a, ST_R, 8, pt)
        a.e("s_barrier")
    a.e(f"s_cmp_lg_u32 s30, {7 if '1' in DP else 0}"); a.e("s_cbranch_scc1 R_nl")
    comb(1)
    outv = yf + 2; s3 = v(); m4 = v(); v4_ = v(); r4 = v()
    assert v.hi <= PK
    a.e(f"v_mov_b32 v{m4}, v{mean}"); a.e(f"v_mov_b32 v{v4_}, v{var}")
    ln_finish(a, mean, var, rs, s3)
    a.e(f"v_sub_f32 v{m4}, v{m4}, v{mean}"); a.e(f"v_mul_f32 v{m4}, v{m4}, v{rs}")
    a.e(f"v_mul_f32 v{v4_}, v{v4_}, v{rs}"); a.e(f"v_mul_f32 v{v4_}, v{v4_}, v{rs}")
    ln_finish(a, m4, v4_, r4)
    a.e(f"v_mov_b32 v{outv}, v{mean}"); a.e(f"v_mov_b32 v{outv+1}, v{rs}")
    a.e(f"v_fma_f32 v{outv+2}, v{m4}, v{s3}, v{mean}"); a.e(f"v_mul_f32 v{outv+3}, v{rs}, v{r4}")
    lsrd(a, 24, oLNS, 2048)
    a.e("s_lshl_b32 s36, s29, 3"); a.e(f"v_add_u32 v{t}, s36, v{I}"); a.e(f"v_lshlrev_b32 v{t}, 4, v{t}")
    a.e("s_mov_b64 exec, 0xff")
    a.e(f"buffer_store_dwordx4 {vr(outv,4)}, v{t}, s[24:27], 0 offen {SC}")
    a.e("s_mov_b64 exec, -1")
    publish(a, ST_R2, 1, pt)
    a.e("R_nl:")
    return v.hi

TAB = int(os.environ.get("TAB", "1")); TV = 248
def lead(seq, r, L, P=4):
    if L == 0: return list(seq)
    return [x for _, x in sorted(((i - L - 0.5 if i % P == r else i), x) for i, x in enumerate(seq))]
def order3(j, gi):
    mode, L = eval(os.environ.get("O3", "('r',0)"))
    if mode == "r": return [(gi + t) & 15 for t in range(16)]
    if mode == "n": return [gi] + [x for x in lead(range(16), (j + gi) & 3, L) if x != gi]
    if mode == "s": return [gi] + lead([x for x in range(16) if x != gi], (j + gi) & 3, L)
    if mode == "h": return [gi] + [x for x in lead([(t + (gi & 8)) & 15 for t in range(16)], (j + gi) & 3, L) if x != gi]
def order4(j, n):
    mode, L = eval(os.environ.get("O4", "('n',1)"))
    own = [(7 * n + i, 7 * n + 4 + i) for i in range(3)]
    ps = [(n + t) & 7 for t in range(8)] if mode == "r" else list(range(8))
    ab = [(7 * p + i, 7 * p + 4 + i) for i in range(2) for p in ps if p != n]
    c = [7 * p + o for p in ps for o in (2, 6, 3) if p != n or o == 3]
    rest = ab + [(c[2 * i], c[2 * i + 1]) for i in range(11)]
    if mode != "r": rest = lead(rest, (j + n + int(os.environ.get("O4R", "0"))) & 3, L)
    return own + rest
L4 = eval(os.environ.get("O4", "('n',1)"))[1] if TAB else 0
def tab_data(a):
    a.lines.append(".p2align 6"); a.lines.append("K_tab:")
    for gi in range(16):
        for j in range(4):
            o3 = order3(j, gi) + [0] * 16; o4 = order4(j, gi & 7) + [(0, 0)] * 4
            assert sorted(o3[:16]) == list(range(16)) and sorted(sum(o4[:28], ())) == list(range(56))
            a.lines.append(".short " + ",".join(str(o3[t] | o4[t][0] << 4 | o4[t][1] << 10) for t in range(32)))
def tab_load(a):
    a.e("s_getpc_b64 s[34:35]"); a.e("K_tpc:")
    a.e("s_lshl_b32 s36, s29, 2"); a.e("s_and_b32 s37, s28, 3"); a.e("s_add_u32 s36, s36, s37"); a.e("s_lshl_b32 s36, s36, 6")
    a.e("s_add_u32 s36, s36, K_tab-K_tpc"); a.e("s_add_u32 s34, s34, s36"); a.e("s_addc_u32 s35, s35, 0")
    a.e(f"v_and_b32 v{TV}, 31, v1"); a.e(f"v_lshlrev_b32 v{TV}, 1, v{TV}"); a.e(f"global_load_ushort v{TV+3}, v{TV}, s[34:35]")
def tab_make(a, w):
    T, x = TV + 3, TV + 4
    if not w:
        a.e(f"v_bfe_u32 v{x}, v{T}, 2, 2"); a.e(f"v_lshlrev_b32 v{TV}, 14, v{x}"); a.e(f"v_and_b32 v{x}, 3, v{T}"); a.e(f"v_lshl_add_u32 v{TV}, v{x}, 11, v{TV}")
        for lw in range(2):
            a.e(f"v_bfe_u32 v{x}, v{T}, {7+6*lw}, 3"); a.e(f"v_lshlrev_b32 v{TV+1+lw}, 14, v{x}"); a.e(f"v_bfe_u32 v{x}, v{T}, {4+6*lw}, 3"); a.e(f"v_lshl_add_u32 v{TV+1+lw}, v{x}, 10, v{TV+1+lw}")
    else:
        a.e(f"v_and_b32 v{x}, 15, v{T}"); a.e(f"v_mul_u32_u24 v{TV}, {64*7168}, v{x}")
        a.e("s_and_b32 s36, s30, 1"); a.e("s_mul_i32 s36, s36, 6"); a.e("s_add_u32 s36, s36, 4"); a.e(f"v_bfe_u32 v{x}, v{T}, s36, 6")
        assert all((q * 37) >> 8 == q // 7 for q in range(56))
        a.e(f"v_mul_u32_u24 v{TV+2}, 37, v{x}"); a.e(f"v_lshrrev_b32 v{TV+2}, 8, v{TV+2}"); a.e(f"v_mul_u32_u24 v{TV+2}, 7, v{TV+2}"); a.e(f"v_sub_u32 v{TV+2}, v{x}, v{TV+2}")
        a.e(f"v_cmp_eq_u32 vcc, 3, v{TV+2}"); a.e(f"v_cndmask_b32 v{TV+2}, 0, 1, vcc"); a.e(f"v_lshl_add_u32 v{TV+1}, v{x}, 16, v{TV+2}")
        for p_ in eval(os.environ.get("W4SKIP", "[]")): a.e("s_mov_b32 s36, 0x40000000"); a.e(f"v_writelane_b32 v{TV+1}, s36, {p_}")
def rot_init(a, which):
    if which == 3 and TAB: a.e("s_mov_b32 s44, 0")
    elif which == 3 and OWN3: a.e("s_mov_b32 s44, s29")
    elif which != 4: a.e("s_mov_b32 s44, s67")
    else: a.e("s_mov_b32 s44, 0")
def rot_next(a, which):
    a.e("s_add_u32 s44, s44, 1")
    if which != 4: a.e("s_and_b32 s44, s44, 15")
def kb4(a, d, lw):
    a.e("s_lshl_b32 s45, s44, 1"); a.e(f"s_add_u32 s45, s45, {lw}"); a.e("s_sub_u32 s45, s45, 32")
    a.e("s_mul_i32 s46, s45, 86"); a.e("s_lshr_b32 s46, s46, 8")
    a.e("s_mul_i32 s47, s46, 3"); a.e("s_sub_u32 s47, s45, s47"); a.e("s_lshl_b32 s47, s47, 2"); a.e("s_lshr_b32 s47, 0x362, s47"); a.e("s_and_b32 s47, s47, 7")
    a.e("s_cmp_ge_u32 s44, 10"); a.e("s_cselect_b32 s45, 9, 2"); a.e("s_cselect_b32 s51, 1, 0"); a.e("s_sub_u32 s45, s44, s45")
    a.e("s_cmp_lt_u32 s44, 3"); a.e("s_cselect_b32 s45, 0, s45"); a.e("s_cselect_b32 s51, s44, s51")
    a.e(f"s_lshl2_add_u32 s51, {lw}, s51")
    a.e("s_cmp_lt_u32 s44, 17"); a.e("s_cselect_b32 s47, s51, s47"); a.e("s_cselect_b32 s46, s45, s46")
    a.e("s_add_u32 s46, s46, s33"); a.e("s_and_b32 s46, s46, 7"); a.e("s_mul_i32 s46, s46, 7"); a.e(f"s_add_u32 s{d}, s46, s47")
assert all((q * 86) >> 8 == q // 3 for q in range(24))
WVB = {1: 238, 2: 238, 4: 239, 3: 241}
WV = 245
def w_lanes(a):
    t, t2 = WV + 8, WV + 9
    R = WVB[1]
    a.e(f"v_lshrrev_b32 v{t}, 3, v1"); a.e(f"v_lshlrev_b32 v{R}, 11, v{t}")
    a.e(f"v_and_b32 v{t}, 6, v{t}"); a.e(f"v_and_b32 v{t2}, 7, v1"); a.e(f"v_xor_b32 v{t}, v{t}, v{t2}"); a.e(f"v_lshl_add_u32 v{R}, v{t}, 4, v{R}")
    R = WVB[4]
    for p in range(2):
        a.e(f"v_lshrrev_b32 v{t}, 4, v1"); a.e(f"v_lshlrev_b32 v{R+p}, 11, v{t}")
        a.e(f"v_add_u32 v{t}, {4*p}, v{t}"); a.e(f"v_lshlrev_b32 v{t}, 1, v{t}"); a.e(f"v_and_b32 v{t2}, 15, v1"); a.e(f"v_xor_b32 v{t}, v{t}, v{t2}")
        a.e(f"v_lshl_add_u32 v{R+p}, v{t}, 4, v{R+p}")
    R = WVB[3]
    assert all((p * 2341) >> 16 == p // 28 for p in range(448))
    for ii in range(7):
        a.e(f"v_add_u32 v{t2}, {64*ii}, v1"); a.e(f"v_mul_u32_u24 v{t}, 2341, v{t2}"); a.e(f"v_lshrrev_b32 v{t}, 16, v{t}")
        a.e(f"v_mul_u32_u24 v{R+ii}, 28, v{t}"); a.e(f"v_sub_u32 v{t2}, v{t2}, v{R+ii}")
        a.e(f"v_mul_u32_u24 v{R+ii}, 7168, v{t}")
        a.e(f"v_lshrrev_b32 v{t}, 1, v{t}"); a.e(f"v_and_b32 v{t}, 2, v{t}"); a.e(f"v_xor_b32 v{t2}, v{t2}, v{t}")
        a.e(f"v_lshl_add_u32 v{R+ii}, v{t2}, 4, v{R+ii}")
def w_srd(a, which):
    c = CFG[which]
    a.e(f"s_mov_b64 s[12:13], s[{66+2*which}:{67+2*which}]")
    a.e(f"s_mov_b32 s14, {c['KBT'] * 32 * c['LDW']}"); a.e("s_mov_b32 s15, 0x20000")
def w_setup(a, which, pre=True, lo=0):
    c = CFG[which]; STB = c["STB"]; BW = STB // 2
    w_srd(a, which)
    a.e("s_and_b32 s35, s30, 1")
    a.e(f"s_mul_i32 s38, s{(0, 99, 29, 29, 33)[which]}, {c['RB']}");
    if which != 4: a.e(f"s_mul_i32 s41, s35, {32*c['LDW']}"); a.e("s_add_u32 s38, s38, s41")
    if which == 4: a.e(f"s_mul_i32 s41, s31, {1792*c['LDW']}"); a.e("s_add_u32 s38, s38, s41")
    a.e(f"s_mul_i32 s41, s35, {BW}"); a.e(f"s_add_u32 s41, s41, {c['WB']}")
    a.e("s_mov_b32 s42, 0"); rot_init(a, which)
    if not pre: return
    NP = c["NPRE"]
    a.e("s_mov_b32 s49, s44"); a.e("s_and_b32 s43, s28, 3"); a.e(f"s_mul_i32 s43, s43, {NP - lo}"); a.e("s_lshr_b32 s43, s43, 2"); a.e(f"s_mov_b32 s50, {lo}")
    if not WROT: a.e("s_mov_b32 s43, 0")
    if lo: a.e(f"s_add_u32 s43, s43, {lo}")
    L = a.lab("wpre"); a.e(f"{L}:")
    a.e(f"s_mul_i32 s42, s43, {STB}"); a.e("s_add_u32 s44, s49, s43")
    if which != 4: a.e("s_and_b32 s44, s44, 15")
    w_issue(a, which, pace=PACES.get(which, PACE))
    a.e("s_add_u32 s43, s43, 1"); a.e(f"s_cmp_eq_u32 s43, {NP}"); a.e(f"s_cselect_b32 s43, {lo}, s43")
    a.e("s_add_u32 s50, s50, 1"); a.e(f"s_cmp_lt_u32 s50, {NP}"); a.e(f"s_cbranch_scc1 {L}")
    mstamp(a)
    a.e(f"s_mov_b32 s42, {(NP % c['NW']) * STB}"); a.e(f"s_add_u32 s44, s49, {NP}")
    if which != 4: a.e("s_and_b32 s44, s44, 15")
YP = int(os.environ.get("YP", "0"))
def ypause(a):
    if not YP: return
    X = a.lab("yp")
    a.e(f"v_mov_b32 v6, {LW+4}"); a.e("ds_read2_b32 v[14:15], v6 offset0:0 offset1:1"); a.e("s_waitcnt lgkmcnt(0)"); a.e("v_readfirstlane_b32 s53, v15")
    a.e(f"s_cmp_lt_u32 s53, {YP}"); a.e(f"s_cbranch_scc1 {X}")
    lds_spin(a, LW + 20, 8, 6, nap=2)
    a.e(f"{X}:")
PD = int(os.environ.get("PD", "8")); PDA = int(os.environ.get("PDA", "0"))
def park_load(a, pace, q0=0, q1=32):
    w_srd(a, 2)
    a.e("s_and_b32 s35, s30, 3"); a.e("s_lshl_b32 s35, s35, 19"); a.e("s_lshl_b32 s39, s29, 7"); a.e("s_add_u32 s39, s39, s35")
    if q0: a.e(f"s_add_u32 s39, s39, {q0*16384}")
    for q in range(q0, q1):
        a.e(f"buffer_load_dwordx4 {vr(PK+4*q,4)}, v{WVB[2]}, s[12:15], s39 offen"); a.e("s_add_u32 s39, s39, 16384")
        if pace and q % 4 == 3: a.e(f"s_waitcnt vmcnt({pace})"); ypause(a)
def park(a): park_load(a, int(os.environ.get("PKP", "8")), 0, 32 - PD)
def park2(a): park_load(a, int(os.environ.get("PKP", "8")), 32 - PD, 32)
def park_rest(a, late):
    if not PD or (PDA and not late): return
    X = a.lab("pr")
    if late: a.e("s_cmp_lg_u32 s60, 0"); a.e(f"s_cbranch_scc1 {X}")
    if not PDA: a.e("s_and_b32 s36, s29, 6"); a.e("s_cmp_eq_u32 s36, 2"); a.e(f"s_cbranch_scc{0 if late else 1} {X}")
    call(a, park2); a.e(f"{X}:")
def late_park(a):
    X = a.lab("lp"); a.e("s_cmp_lg_u32 s60, 0"); a.e(f"s_cbranch_scc1 {X}"); call(a, park); a.e(f"{X}:")
def after_g1(a):
    c = CFG[3]
    if os.environ.get("UPD0"): a.e("s_sleep " + os.environ["UPD0"])
    w_srd(a, 3)
    a.e(f"v_readlane_b32 s36, v{TV+3}, 0"); a.e(f"v_readlane_b32 s37, v{TV+3}, 1"); a.e(f"v_readlane_b32 s34, v{TV+3}, 2")
    a.e("s_and_b32 s35, s30, 3"); a.e(f"s_mul_i32 s38, s35, {16*7168}"); a.e("s_mul_i32 s39, s29, 448"); a.e("s_add_u32 s38, s38, s39")
    for r in (36, 37, 34): a.e(f"s_and_b32 s{r}, s{r}, 15"); a.e(f"s_mul_i32 s{r}, s{r}, {64*7168}"); a.e(f"s_add_u32 s{r}, s{r}, s38")
    a.e("s_mul_i32 s39, s35, 7168"); a.e(f"s_add_u32 m0, s39, {c['WB'] + c['S0'] * c['STB']}")
    for i in range(7):
        if i: a.e("s_add_u32 m0, m0, 1024")
        a.e(f"buffer_load_dwordx4 v{WVB[3]+i}, s[12:15], s36 offen lds")
    for i in range(7 if W3N == 2 else 0): a.e(f"buffer_load_dwordx4 {vr(W3S+4*i,4)}, v{WVB[3]+i}, s[12:15], s37 offen")
    a.e("s_lshr_b32 s36, s67, 2"); a.e("s_sub_u32 s36, s35, s36"); a.e("s_and_b32 s36, s36, 3"); a.e("s_lshl_b32 s36, s36, 15"); a.e(f"v_add_u32 v6, s36, v2")
    if W33 == 1:
        for i in range(7): a.e(f"buffer_load_dwordx4 {vr(16+4*i,4)}, v{WVB[3]+i}, s[12:15], s34 offen")
    a.e(f"s_waitcnt vmcnt({21 if W33 == 1 else 7 * W3N})")
    if os.environ.get("UPD"): a.e("s_sleep " + os.environ["UPD"])
    for q in range(32): a.e(f"ds_write_b128 v6, {vr(PK+4*q,4)} offset:{CFG[2]['WB'] + 1024*q}")
    a.e("s_waitcnt lgkmcnt(0)")
W3N = int(os.environ.get("W3N", "2"))
W33 = int(os.environ.get("W33", "0"))
def third_late(a):
    a.e(f"s_sleep {W33}")
    for i in range(7): a.e(f"buffer_load_dwordx4 {vr(16+4*i,4)}, v{WVB[3]+i}, s[12:15], s34 offen")
def third_put(a):
    c = CFG[3]
    for i in range(7): a.e(f"ds_write_b128 v7, {vr(16+4*i,4)} offset:{c['STB'] + 1024*i}")
    a.e("s_waitcnt lgkmcnt(0)")
def after_g2(a):
    c = CFG[3]
    if W3N == 1:
        a.e("s_and_b32 s35, s30, 3"); a.e("s_mul_i32 s39, s35, 7168"); a.e(f"s_add_u32 m0, s39, {c['WB'] + (c['S0'] + 1) % c['NW'] * c['STB']}")
        for i in range(7):
            if i: a.e("s_add_u32 m0, m0, 1024")
            a.e(f"buffer_load_dwordx4 v{WVB[3]+i}, s[12:15], s37 offen lds")
        return
    a.e("s_and_b32 s35, s30, 3"); a.e("s_mul_i32 s39, s35, 7168"); a.e(f"s_add_u32 s39, s39, {c['WB'] + (c['S0'] + 1) % c['NW'] * c['STB']}"); a.e("v_add_u32 v7, s39, v2")
    for i in range(7): a.e(f"ds_write_b128 v7, {vr(W3S+4*i,4)} offset:{1024*i}")
    a.e("s_waitcnt lgkmcnt(0)")
SUBX = {}
def call(a, f):
    SUBX[f.__name__] = f; a.e(f"s_call_b64 s[76:77], SUB_{f.__name__}")
def w1_slots(a, js, pace=0):
    for j in js:
        a.e(f"s_mov_b32 s42, {j*8192}"); a.e("s_mov_b32 s44, s67"); a.e(f"s_add_u32 s44, s44, {j}"); a.e("s_and_b32 s44, s44, 15")
        call_issue(a, w_issue, 1)
        if pace: a.e(f"s_waitcnt vmcnt({pace})")
def w1_done(a):
    a.e("s_mov_b32 s42, 0"); a.e("s_mov_b32 s44, s67"); a.e("s_add_u32 s44, s44, 13"); a.e("s_and_b32 s44, s44, 15")
class Rec:
    def __init__(s_): s_.l = []
    def e(s_, x): s_.l.append(x)
    srd = Asm.srd
def w_parts(which, direct=False):
    c = CFG[which]; STB = c["STB"]; n = STB // 2048; LDW = c["LDW"]; b = Rec()
    b.e("s_add_u32 s19, s41, s42")
    arm = ["s_mov_b32 m0, s19", "s_mov_b32 s39, s16"]
    if which == 4 and TAB:
        b.e(f"v_readlane_b32 s16, v{TV+1}, s44")
        b.e("s_bitcmp1_b32 s16, 0"); b.e(f"s_cselect_b32 s17, {8*2048}, {4*2048}".replace(f"{4*2048}", "s45")); b.e(f"s_cselect_b32 s18, {-20*2048}, s45")
        b.e("s_andn2_b32 s16, s16, 1"); b.e("s_add_u32 s16, s16, s38")
        b.l.insert(0, f"s_mov_b32 s45, {4*2048}")
        arm += ["s_mov_b32 s32, s17", "s_mov_b32 s3, s18"]
        if os.environ.get("W4SKIP"): arm += ["s_bitcmp1_b32 s16, 30", "s_cselect_b64 exec, 0, -1"]
    elif which == 3 and TAB and not direct:
        b.e(f"v_readlane_b32 s16, v{TV}, s44"); b.e("s_add_u32 s16, s16, s38")
    elif which == 4:
        b.e("s_and_b32 s40, s30, 1"); kb4(b, 16, "s40")
        b.e(f"s_mul_i32 s16, s16, {32*LDW}"); b.e("s_add_u32 s16, s16, s38")
        b.e("s_cmp_eq_u32 s47, 3"); b.e("s_cselect_b32 s17, 8, 4"); b.e("s_cselect_b32 s18, -20, 4")
        b.e("s_lshl_b32 s17, s17, 11"); b.e("s_lshl_b32 s18, s18, 11")
        arm += ["s_mov_b32 s32, s17", "s_mov_b32 s3, s18"]
    else:
        b.e(f"s_mul_i32 s16, s44, {64*LDW}"); b.e("s_add_u32 s16, s16, s38")
    if f"w{which}" in os.environ.get("HOT", ""): b.e("s_mov_b32 s16, s38")
    rot_next(b, which)
    b.e(f"s_add_u32 s42, s42, {STB}"); b.e(f"s_cmp_eq_u32 s42, {c['NW']*STB}"); b.e("s_cselect_b32 s42, 0, s42")
    fire = []
    for i in range(n):
        g = []
        if i:
            g.append("s_add_u32 m0, m0, 1024")
            if which in (1, 2): g.append(f"s_add_u32 s39, s39, {8*LDW}")
            elif which == 4: g.append(f"s_add_u32 s39, s39, s{3 if i == 4 else 32}")
            elif i == 7: g.append(f"s_add_u32 s39, s39, {16*LDW}")
        vo = WVB[which] + (0 if which in (1, 2) else (i & 1) if which == 4 else i % 7)
        fire.append(g + [f"buffer_load_dwordx4 v{vo}, s[12:15], s39 offen lds"])
    if f"w{which}" in os.environ.get("NOLD", ""): fire = [[x for x in g if not x.startswith("buffer_load")] + ["s_nop 0"] for g in fire]
    return b.l, arm, fire
def w_issue(a, which, pace=0, direct=False):
    prep, arm, fire = w_parts(which, direct)
    for x in prep + arm: a.e(x)
    for i, g in enumerate(fire):
        for x in g: a.e(x)
        if pace and (i % 4 == 3 or i == len(fire) - 1): a.e(f"s_waitcnt vmcnt({pace})")

def w_bases(a, which, dst, swn, ntl, t, t2):
    c = CFG[which]; RB = c["RB"]
    a.e(f"v_lshrrev_b32 v{t}, 2, v1")
    a.e(f"v_mul_u32_u24 v{dst}, {RB}, v{t}"); a.e(f"v_and_b32 v{t2}, 3, v1"); a.e(f"v_lshl_add_u32 v{dst}, v{t2}, 3, v{dst}")
    a.e(f"v_add_u32 v{dst}, {c['WB']}, v{dst}")
    if which == 3:
        a.e(f"s_mul_i32 s36, s{swn}, {7*32}"); a.e(f"v_add_u32 v{dst}, s36, v{dst}")
        a.e(f"v_bfe_u32 v{t}, v1, 4, 1"); a.e(f"v_lshlrev_b32 v{t}, 5, v{t}")
        a.e(f"s_cmp_eq_u32 s{swn}, 0"); a.e("s_cselect_b32 s36, 1, -1"); a.e(f"v_mul_lo_u32 v{t}, v{t}, s36")
        a.e(f"v_sub_u32 v{dst+1}, v{dst}, v{t}"); a.e(f"v_add_u32 v{dst}, v{dst}, v{t}")
        return 2, lambda nt, kk, h: (nt & 1, (32 * kk + 16 * h) * RB + 32 * nt)
    if which == 4: a.e(f"v_and_b32 v{t}, 7, v{t}")
    else: a.e(f"v_bfe_u32 v{t}, v{t}, 1, 2")
    for nt in range(ntl - 1, -1, -1):
        a.e(f"s_mul_i32 s36, s{swn}, {ntl}"); a.e(f"s_add_u32 s36, s36, {nt}")
        a.e(f"v_xor_b32 v{t2}, s36, v{t}"); a.e(f"v_lshl_add_u32 v{dst+nt}, v{t2}, 5, v{dst}")
    return ntl, lambda nt, kk, h: (nt, (32 * kk + 16 * h) * RB)

def a_parts(which):
    c = CFG[which]; b = Rec()
    if which <= 2 and NX:
        b.e("s_and_b32 s42, s48, 7"); b.e("s_lshl_b32 s42, s42, 14"); b.e("s_lshr_b64 s[48:49], s[48:49], 4")
    b.e("s_add_u32 s19, s41, s42")
    arm = ["s_mov_b32 m0, s19", "s_mov_b32 s39, s16"]; fire = []
    if which == 2:
        b.e(f"s_mul_i32 s16, s44, {8*PITCH}"); b.e("s_add_u32 s16, s16, s38")
        b.e("s_lshr_b32 s45, s44, 2"); b.e("s_xor_b32 s45, s45, s94"); b.e("s_and_b32 s45, s45, 1"); b.e("s_lshl_b32 s45, s45, 13"); b.e("s_add_u32 s16, s16, s45")
        b.e("s_lshr_b32 s45, s44, 3"); b.e("s_lshl_b32 s45, s45, 4"); b.e("s_add_u32 s45, s45, 16")
        b.e("s_sub_u32 s46, 0, s45"); b.e("s_bitcmp1_b32 s44, 2"); b.e("s_cselect_b32 s45, s45, s46"); b.e("s_add_u32 s16, s16, s45")
        step = PITCH
    elif which == 4:
        for lw in range(2):
            if TAB: b.e(f"v_readlane_b32 s{16+lw}, v{TV+1+lw}, s44")
            else: kb4(b, 16 + lw, lw); spread(b, 16 + lw, 16 + lw)
        for lw in range(2): b.e(f"s_add_u32 s{16+lw}, s{16+lw}, s38")
        arm.append("s_mov_b32 s40, s17")
        for i in range(4):
            for lw in range(2):
                fire.append((["s_add_u32 m0, m0, 1024"] if i or lw else []) + ([f"s_add_u32 s{39+lw}, s{39+lw}, {c['KBT']*2048}"] if i else []) +
                            [f"buffer_load_dwordx4 v2, s[12:15], s{39+lw} offen {SC} lds"])
    elif which == 3 and TAB:
        b.e(f"v_readlane_b32 s16, v{TV}, s44"); b.e("s_add_u32 s16, s16, s38"); step = c['KBT'] * 2048
    else:
        b.e("s_lshr_b32 s45, s44, 2"); b.e("s_lshl_b32 s45, s45, 14"); b.e("s_and_b32 s16, s44, 3"); b.e("s_lshl_b32 s16, s16, 11")
        b.e("s_add_u32 s16, s16, s45"); b.e("s_add_u32 s16, s16, s38"); step = c['KBT'] * 2048
    if f"a{which}" in os.environ.get("HOT", ""):
        b.e("s_mov_b32 s16, s38")
        if which == 4: b.e("s_add_u32 s17, s38, 1024")
    for i in range(4 if which != 4 else 0):
        fire.append((["s_add_u32 m0, m0, 2048", f"s_add_u32 s39, s39, {step}"] if i else []) + [f"buffer_load_dwordx4 v2, s[12:15], s39 offen {SC} lds"])
        fire.append([f"buffer_load_dwordx4 v2, s[12:15], s39 offen offset:1024 {SC} lds"])
    rot_next(b, which)
    if not (which <= 2 and NX):
        b.e(f"s_add_u32 s42, s42, 16384"); b.e(f"s_cmp_eq_u32 s42, {c['NA']*16384}"); b.e("s_cselect_b32 s42, 0, s42")
    if f"a{which}" in os.environ.get("NOLD", ""): fire = [[x for x in g if not x.startswith("buffer_load")] + ["s_nop 0"] for g in fire]
    return b.l, arm, fire
def a_issue(a, which):
    prep, arm, fire = a_parts(which)
    for x in prep + arm + sum(fire, []): a.e(x)
SUBS = {}
def call_issue(a, issue, which):
    nm = f"SUB_{issue.__name__}_{which}"; SUBS[nm] = (issue, which)
    a.e(f"s_call_b64 s[76:77], {nm}")
def emit_subs(a):
    for nm, f in SUBX.items(): a.e(f"SUB_{nm}:"); f(a); a.e("s_setpc_b64 s[76:77]")
    for nm, (issue, which) in SUBS.items():
        a.e(f"{nm}:"); issue(a, which); a.e("s_setpc_b64 s[76:77]")
def ld_steps(a, which, N, per, issue, npre, rate=2, plan={}, lo=0, hi=None, last=None, hold=(), sched=None, armed=False):
    NS = CFG[which]["NS"]
    prep, arm, fire = (w_parts if issue is w_issue else a_parts)(which); h = max(1, per * HSPLIT // 8)
    plan = {b: (x if isinstance(x, list) else [x]) for b, x in plan.items()}
    q = [s_ for s_ in range(npre) for _ in range(per)]
    def after(tag):
        if issue is w_issue and which == 4 and isinstance(tag, int) and tag < npre: tag = npre - 1
        return len(q) - 1 - max(i for i, x in enumerate(q) if x == tag)
    issued = npre; steps = []
    for b in range(NS):
        acts = plan.get(b, []); was = {}
        def do(pos):
            for n_, act in enumerate(acts):
                if act[0] != pos: continue
                if act[1] is not None: was[n_] = after(act[1])
                q.extend([act[4]] * act[3])
        do(True)
        k = 0
        if (b > 0 or (sched is not None and issue is a_issue)) and b not in hold:
            k = max(0, min(rate, min(NS, b - 1 + N) - issued)) if sched is None else sched[b]
        assert k or not any(x[0] == "mid" for x in acts)
        for j in range(k):
            q.extend([issued] * h)
            if j == 0: do("mid")
            q.extend([issued] * (per - h)); issued += 1
        do(False)
        w = after(b); assert w <= 63
        if which == 3 and b == 0: w = 63
        steps.append((k, w, b if acts else None, tuple(sorted(was.items())), issued < NS))
    def em(l):
        for x in l:
            a.e(x)
            if x == "s_barrier" and os.environ.get("JIT"): mstamp(a)
    F1, F2 = sum(fire[:h], []), sum(fire[h:], [])
    lprep = prep
    if len(prep) > 8:
        nm = f"PREP_{issue.__name__}_{which}"; SUBS[nm] = ((lambda a_, w_, l=prep: [a_.e(x) for x in l]), which)
        prep = [f"s_call_b64 s[76:77], {nm}"]
    if lo == 0 and npre < NS and not armed: em(prep + arm)
    i = lo; HI = NS if hi is None else hi
    while i < HI:
        j = i
        while j < HI and steps[j] == steps[i]: j += 1
        k, w, ab, was, more = steps[i]; n = j - i; was = dict(was)
        def run(pos):
            for n_, act in enumerate(plan.get(ab, [])):
                if act[0] != pos: continue
                if n_ in was: a.e(f"s_waitcnt vmcnt({was[n_]})")
                act[2]()
        tail = [f"s_waitcnt vmcnt({w})", "s_barrier"]
        if n > 2 and k == 1:
            em(F1); a.e("s_mov_b32 s43, 1"); L = a.lab("ld"); a.e(f"{L}:")
            em(lprep + F2 + arm + tail + F1)
            a.e("s_add_u32 s43, s43, 1"); a.e(f"s_cmp_lt_u32 s43, {n}"); a.e(f"s_cbranch_scc1 {L}")
            em(prep + F2 + arm + tail)
        else:
            for r in range(n):
                run(True)
                for jj in range(k):
                    nxt = more or jj < k - 1
                    em(F1)
                    if jj == 0: run("mid")
                    em((prep if nxt else []) + F2 + (arm if nxt else []))
                run(False)
                em(tail)
        i = j
    if hi is not None: return
    if which == 4:
        if issue is a_issue: a.e("s_cmp_eq_u32 s60, 1"); a.e("s_cbranch_scc1 K_fin")
        elif hold is HOLD: a.e("s_branch K_fin"); return
        if not RPL: r_pre(a)
    TF = os.environ.get("TF", "1") == "1" and issue is a_issue and which == 3
    if last and not TF: last()
    late = os.environ.get("TLATE", "0") == "1"
    if late: a.e("s_barrier")
    if issue is a_issue and W4POS == f"{which}C":
        X = a.lab("tw4"); a.e("s_cmp_lg_u32 s60, 0"); a.e(f"s_cbranch_scc1 {X}"); touch(a, B_W4, 7 * MB, 20); a.e(f"{X}:")
    if not late: a.e("s_barrier")
    if TF: last()

RK = int(os.environ.get("RK", "7")); assert RK == 0 or C0PUB <= RK <= STQ
PA2 = int(os.environ.get("PA2", "1")); PBB = int(os.environ.get("PBB", "2")); PC0 = int(os.environ.get("PC0", "4"))
HOLD = eval(os.environ.get("HOLD", "[2,3,4]"))
def a_loader(a, which):
    c = CFG[which]
    if which <= 2:
        plan = side_jobs(a, 1) if which == 1 else {}
        if which == 1 and "1" in DP: mstamp(a); a.e(f"s_sleep {os.environ.get('SJD', '30')}")
        else: mstamp(a); a.e("s_barrier")
        mstamp(a)
        for b in sorted(plan):
            for act in (plan[b] if isinstance(plan[b], list) else [plan[b]]):
                if act[1] is not None: a.e("s_waitcnt vmcnt(0)")
                act[2]()
        if which == 1:
            a.e("s_cmp_lg_u32 s30, 4"); a.e("s_cbranch_scc1 AL_nw"); a.e("s_cmp_eq_u32 s60, 0"); a.e("s_cbranch_scc1 AL_nw")
            a.e(f"s_add_u32 s54, s55, {(fso(ST_G3) - LSTR) & 0xffffffff:#x}"); a.e("s_add_u32 s53, s54, s92"); a.e("v_mov_b32 v9, s53")
            a.e("s_add_u32 s53, s53, 128"); a.e("v_writelane_b32 v9, s53, 1")
            a.e("s_add_u32 s53, s54, s93"); a.e("v_writelane_b32 v9, s53, 2"); a.e("s_add_u32 s53, s53, 128"); a.e("v_writelane_b32 v9, s53, 3")
            poll_core(a, 8, [9], 15, cnt=8)
            a.e("AL_nw:")
        if which == 2 and W33 > 1: call(a, third_late)
        if which == 2: a.e("s_waitcnt vmcnt(0)")
        a.e("s_barrier")
        if which == 1 and "p" not in os.environ.get("FO", "1pd"): late_park(a)
        call(a, after_g1 if which == 1 else after_g2)
        return
    a.e("s_and_b32 s35, s30, 1")
    if which == 2:
        hs_srd(a, 12)
        a.e("s_lshl_b32 s38, s28, 11"); a.e("s_add_u32 s38, s38, 16384"); a.e(f"s_mul_i32 s36, s35, {4*PITCH}"); a.e("s_add_u32 s38, s38, s36")
    else:
        lsrd(a, 12, c["A"], XSZ if which != 4 else H2SZ)
        a.e(f"s_mul_i32 s38, s35, {4*c['KBT']*2048}")
        if which == 4: a.e(f"s_mul_i32 s36, s31, {7*16384}"); a.e("s_add_u32 s38, s38, s36")
    a.e("s_lshl_b32 s41, s35, 13"); a.e("s_mov_b32 s42, 0"); rot_init(a, which)
    assert c["NA"] == 3 or which == 3
    prep, arm, fire = a_parts(which)
    if which == 4:
        flag_addr(a, 9, ST_G3A); flag_addr(a, 10, ST_G3B); flag_addr(a, 12, ST_G3)
        a.e("v_mov_b32 v13, 1"); a.e("s_and_b32 s51, s30, 1"); a.e("s_lshl_b32 s51, s51, 30")
        def signal(r): a.e("s_mov_b64 exec, 1"); a.e(f"buffer_atomic_add v13, v{r}, s[56:59], s51 offen {SC}"); a.e("s_mov_b64 exec, -1")
        a.e("s_lshl_b32 s54, s60, 2"); a.e("s_add_u32 s54, s54, 4"); lds_spin(a, LW + 64, "s54", 14, nap=2)
        signal(9)
        if not PA2: poll_core(a, 8, [9], 1, cnt=8)
        mstamp(a)
        plan = {6 - L4: ("mid", None, lambda: flag_try(a, 11, 10), 1, "f"), 8 - L4: ("mid", "f", lambda: flag_check(a, 11, 10, 8), 0, None),
                13 - L4: ("mid", None, lambda: flag_try(a, 11, 12), 1, "g"), 15 - L4: ("mid", "g", lambda: flag_check(a, 11, 12, 8), 0, None)}
        plan = {k_: [x] for k_, x in plan.items()}
        if PA2:
            plan[1] = [(False, None, lambda: flag_try(a, 8, 9), 1, "a")]
            plan[2] = [(True, "a", lambda: flag_check(a, 8, 9, 8), 0, None)]
        if DP:
            a.e("v_xor_b32 v15, 128, v12")
            plan[20] = [("mid", None, lambda: flag_try(a, 11, 15), 1, "h")]; plan[22] = [("mid", "h", lambda: flag_check(a, 11, 15, 8), 0, None)]
        if int(os.environ.get("OT", "0")) >= 3:
            def ot():
                a.e(f"s_load_dwordx2 s[20:21], s[0:1], {D_OUT}"); a.e(f"s_mul_i32 s22, s60, {4*MB}"); a.e("s_mov_b32 s23, 0x20000"); a.e("s_lshl_b32 s36, s28, 18"); a.e("s_lshl_b32 s37, s29, 11")
                a.e("s_add_u32 s36, s36, s37"); a.e("s_waitcnt lgkmcnt(0)")
                a.e("s_mov_b64 exec, 1"); a.e(f"buffer_load_dword v16, v2, s[20:23], s36 offen {SC}"); a.e("s_mov_b64 exec, -1")
            plan.setdefault(int(os.environ["OT"]) % 100, []).append((False, None, ot, 1, "o"))
        plan.setdefault(PBB + 1, []).insert(0, (True, None, lambda: signal(10), 1, "s"))
        plan.setdefault(PC0 + 2, []).insert(0, (True, None, lambda: signal(12), 1, "s"))
        a.e("s_mov_b32 s44, 3")
        ld_steps(a, which, 3, 8, a_issue, 3, plan=plan); return
    if which == 3:
        mask, cnt = flag_addr(a, 9, ST_G2)
        def wait2():
            if W33: call(a, third_put)
            elif B0E > 1: a.e(f"s_sleep {B0E}")
            poll_core(a, 8, [9], mask, cnt=cnt); mstamp(a); mstamp(a)
            if W3H: a.e("s_add_u32 s54, s60, 1"); lds_set(a, LW + 60, "s54", 10)
        N3 = 2 if "3" in DP else 1
        a.e(f"s_mov_b32 s44, {N3}"); a.e(f"s_mov_b32 s42, {16384*N3}")
        plan = side_jobs(a, 3)
        if os.environ.get("P30", "0") == "1":
            def wait0(): own_wait(a, ST_G2, False, 14); wait2()
            plan[0] = (True, None, wait0, 0, None)
            ld_steps(a, which, 3, 8, a_issue, 1, plan=plan, sched=[int(os.environ.get("P3N", "1")), 2 - int(os.environ.get("P3N", "1"))] + [1] * 13 + [0]); return
        plan[1] = (True, None, wait2, 0, None)
        PZ3 = int(os.environ.get("PZ3", "0"))
        if PZ3:
            a.srd(84, 4, 32 * MB, off=216 * MB)
            a.e("s_cmp_eq_u32 s60, 0"); a.e("s_cselect_b32 s86, s86, 0")
            for i in range(4): a.e(f"v_mov_b32 v{216+i}, -1")
            a.e("s_lshl_b32 s88, s2, 1"); a.e("s_and_b32 s50, s30, 1"); a.e("s_add_u32 s88, s88, s50"); a.e(f"s_mul_i32 s88, s88, {PZ3*12*1024}")
            def pz():
                for i in range(PZ3): a.e(f"buffer_store_dwordx4 v[216:219], v2, s[84:87], s88 offen offset:{i*1024} {SC}")
                a.e(f"s_add_u32 s88, s88, {PZ3*1024}")
            for b in range(2, 14):
                p_ = plan.get(b, []); p_ = p_ if isinstance(p_, list) else [p_]
                plan[b] = p_ + [(False, None, pz, PZ3, "z")]
        if os.environ.get("A3L", "0") == "1":
            def w1_():
                X = a.lab("w1"); a.e("s_cmp_lg_u32 s60, 0"); a.e(f"s_cbranch_scc1 {X}"); poll_core(a, 8, [9], mask, cnt=cnt); lds_set(a, LW + 60, 1, 10); a.e(f"{X}:")
            def w2_(): poll_core(a, 8, [9], mask, cnt=cnt, nap=2); mstamp(a); mstamp(a)
            plan[1] = (True, None, w1_, 0, None)
            p2 = plan[2] if isinstance(plan[2], list) else [plan[2]]
            plan[2] = [(True, None, w2_, 0, None)] + p2
            ld_steps(a, which, 3, 8, a_issue, N3, plan=plan, hold=(1,)); return
        ld_steps(a, which, c["NA"], 8, a_issue, N3, plan=plan, sched=eval(os.environ.get("A3S", "None")), last=lambda: r_pre1(a)); return
    assert 0

def side_jobs(a, which):
    c = CFG[which]; plan = {}
    sv = 16; S, Q, mean, rs, tt, ad, fa, fr = 216, 217, 218, 219, 220, 221, 222, 223
    cv = 180 if which == 3 else 24; N = c["LDW"] // 2; co_ = 224; HB = c["TN16"] * 32
    lg = 3 if which == 1 else 5
    def cld(k0=0, k1=4):
        if k0 == 0:
            a.srd(24, 4, 32 * N * 4, off=CSP[which])
            a.e("s_cmp_eq_u32 s60, 0"); a.e("s_cselect_b32 s26, s26, 0")
            if NOCS3 and which == 3: a.e("s_mov_b32 s26, 0")
            a.e("s_and_b32 s36, s30, 1"); a.e(f"s_mul_i32 s36, s36, {HB}"); a.e(f"s_mul_i32 s37, s29, {2*HB}"); a.e("s_add_u32 s37, s36, s37")
            a.e(f"v_lshrrev_b32 v{co_}, {lg}, v1"); a.e(f"v_mul_u32_u24 v{co_}, {N*4}, v{co_}")
            a.e(f"v_and_b32 v{cv-1}, {16*((1 << lg) - 1)}, v2"); a.e(f"v_add_u32 v{co_}, v{co_}, v{cv-1}")
        a.e("s_cmp_eq_u32 s60, 0"); a.e("s_cselect_b64 exec, -1, 0")
        for k in range(k0, k1):
            a.e(f"buffer_load_dwordx4 {vr(cv+4*(k if k < 9 else k - 8),4)}, v{co_}, s[24:27], s37 offen {SC}"); a.e(f"s_add_u32 s37, s37, {N*4*(64 >> lg)}")
        a.e("s_mov_b64 exec, -1")
    def piece(lines, l0=False):
        def f():
            X = a.lab("pc")
            if l0: a.e("s_cmp_lg_u32 s60, 0"); a.e(f"s_cbranch_scc1 {X}")
            for x in lines: a.e(x)
            if l0: a.e(f"{X}:")
        return f
    def cadd(k0, k1): return [f"v_add_f32 v{cv+h}, v{cv+h}, v{cv+4*k+h}" for k in range(k0, k1) for h in range(4)]
    def sw(op): return [f"v_mov_b32 v{cv+4+e}, v{cv+e}" for e in range(4)] + [f"{op} v{cv+e}, v{cv+4+e}" for e in range(4)] + cadd(1, 2)
    if which in (1, 3):
        cout = ["s_and_b32 s36, s30, 1", f"s_mul_i32 s36, s36, {HB}", f"s_add_u32 s36, s36, {CSO[which]}", f"v_add_u32 v{cv-1}, s36, v2",
                f"s_bfm_b64 exec, {HB//16}, 0", f"ds_write_b128 v{cv-1}, {vr(cv,4)}", "s_mov_b64 exec, -1", "s_waitcnt lgkmcnt(0)"]
    if which == 1:
        flag_addr(a, fa, ST_R2)
        def ld():
            flag_check(a, fr, fa, 16)
            lsrd(a, 20, oLNS, 2048); a.e("s_and_b32 s35, s30, 1"); a.e("s_lshl_b32 s35, s35, 10")
            a.e(f"buffer_load_dwordx4 {vr(sv,4)}, v2, s[20:23], s35 offen {SC}")
        fin = piece(["s_and_b32 s36, s30, 1", "s_lshl_b32 s36, s36, 10", f"s_add_u32 s36, s36, {LNSL}", f"v_add_u32 v{ad}, s36, v2", f"ds_write_b128 v{ad}, {vr(sv,4)}", "s_waitcnt lgkmcnt(0)"])
        a.e("s_lshl_b32 s53, s29, 7"); a.e(f"s_add_u32 s53, s53, {F_CS}"); a.e(f"v_mov_b32 v{fa+4}, s53")
        def cld1(): flag_check(a, fr + 4, fa + 4, 16); cld()
        work = cadd(1, 4) + [f"v_add_f32_dpp v{cv+e}, v{cv+e}, v{cv+e} row_ror:8 row_mask:0xf bank_mask:0xf" for e in range(4)] + \
               sw("v_permlane16_swap_b32") + sw("v_permlane32_swap_b32")
        plan = {2: (False, None, lambda: flag_try(a, fr + 4, fa + 4), 1, "e"), 5: [(False, "e", cld1, 4, "c"), (False, None, lambda: flag_try(a, fr, fa), 1, "f")],
                8: (False, "f", ld, 1, "d"), 15: [(False, None, piece(cout, 1), 0, None), (False, "d", fin, 0, None)]}
        plan[9] = (False, None, piece(work, 1), 0, None)
    if which == 3:
        flag_addr(a, fa, ST_G2S)
        a.e(f"v_lshlrev_b32 v{ad}, 3, v1")
        def ld(k0, n_=8):
            def f():
                if k0 == 0:
                    flag_check(a, fr, fa, 16)
                    lsrd(a, 20, oST2, 24576)
                    a.e("s_and_b32 s35, s30, 1"); a.e("s_lshl_b32 s35, s35, 9")
                for k in range(k0, k0 + n_):
                    if k % 4 == 0 or k == k0: a.e(f"s_add_u32 s36, s35, {(k >> 3) * 16384 + (k & 4) * 1024}")
                    a.e(f"buffer_load_dwordx2 {vr(sv+2*k,2)}, v{ad}, s[20:23], s36 offen offset:{(k&3)*1024} {SC}")
            return f
        b = Rec()
        for st_ in (8, 4, 2, 1):
            for k in range(2 * st_): b.e(f"v_add_f32 v{sv+k}, v{sv+k}, v{sv+2*st_+k}")
        o_ = sv + 4
        b.e(f"v_mul_f32 v{o_}, {f32(1/1024)}, v{sv}"); b.e(f"v_mul_f32 v{Q}, {f32(1/1024)}, v{sv+1}")
        b.e(f"v_fma_f32 v{Q}, -v{o_}, v{o_}, v{Q}"); b.e(f"v_max_f32 v{Q}, 0, v{Q}")
        ln_finish(b, o_, Q, rs, o_ + 1)
        b.e(f"v_mul_f32 v{o_+2}, {f32(GC1)}, v{rs}"); b.e(f"v_mul_f32 v{o_+3}, v{rs}, v{rs}")
        b.e(f"v_mul_f32 v{o_+3}, v{o_+3}, v{o_+2}"); b.e(f"v_mul_f32 v{o_+3}, {f32(0.044715)}, v{o_+3}")
        b.e("s_lshl_b32 s35, s35, 1"); b.e(f"s_add_u32 s35, s35, {LNSL}"); b.e(f"v_add_u32 v{tt}, s35, v2")
        b.e(f"ds_write_b128 v{tt}, {vr(o_,4)}"); b.e("s_waitcnt lgkmcnt(0)")
        def both(f, g):
            def h(): f(); g()
            return h
        if os.environ.get("SJ3", "1") == "1":
            plan = {2: (False, None, lambda: cld(0, 3), 3, "c"), 3: (False, None, lambda: cld(3, 6), 3, "c"), 4: [(False, None, lambda: cld(6, 9), 3, "c"), (False, None, lambda: flag_try(a, fr, fa), 1, "f")],
                    6: [(False, "f", ld(0, 4), 4, "d"), (False, None, piece(cadd(1, 5), 1), 0, None)],
                    7: [(False, None, ld(4, 4), 4, "d"), (False, None, both(piece(cadd(5, 9), 1), lambda: cld(9, 12)), 3, "e")],
                    8: [(False, None, ld(8, 4), 4, "d"), (False, None, lambda: cld(12, 14), 2, "e")], 9: [(False, None, ld(12, 4), 4, "d"), (False, None, lambda: cld(14, 16), 2, "e")],
                    11: [(False, "e", piece(b.l[:16]), 0, None)], 12: [(False, None, piece(b.l[16:32]), 0, None), (False, None, piece(cadd(1, 4), 1), 0, None)],
                    13: [(False, None, piece(b.l[32:]), 0, None)], 14: (False, None, piece(cadd(4, 8), 1), 0, None), 15: (False, None, piece(sw("v_permlane32_swap_b32") + cout, 1), 0, None)}
        else:
            plan = {2: (False, None, cld, 4, "c"), 3: (False, None, lambda: cld(4, 9), 5, "c"),
                    5: [(False, "c", piece(cadd(1, 5), 1), 0, None), (False, None, lambda: flag_try(a, fr, fa), 1, "f")],
                    6: (False, None, both(piece(cadd(5, 9), 1), lambda: cld(9, 16)), 7, "e"),
                    7: (False, "f", ld(0), 8, "d"), 8: (False, None, ld(8), 8, "d"),
                    9: (False, "e", piece(cadd(1, 5), 1), 0, None), 10: (False, None, piece(cadd(5, 8), 1), 0, None), 11: (False, None, piece(sw("v_permlane32_swap_b32") + cout, 1), 0, None),
                    12: (False, "d", piece(b.l[:16]), 0, None), 13: (False, None, piece(b.l[16:32]), 0, None), 14: (False, None, piece(b.l[32:]), 0, None)}
    return plan

W2E = int(os.environ.get("W2E", "3"))
def w2_early(a):
    if W2E: w_setup(a, 2, pre=False); w1_slots(a, range(W2E), pace=8)
def w_loader(a, which):
    c = CFG[which]
    if which < 3:
        if which == 1: a.e("s_waitcnt vmcnt(0)")
        if which == 1 and "a" in STO: stouch(a, 3, 128 if "8" in STO else 64, 2); mstamp(a)
        if which == 1 and sum(SG): sb_init(a)
        sg(a, SG[2*which-2])
        if not (which == 1 and "1" in DP): a.e("s_barrier")
        sg(a, SG[2*which-1])
        if which == 1 and "b" in STO: stouch(a, 3, 128 if "8" in STO else 64, 2); mstamp(a)
        if which == 2 and W33 > 1: call(a, third_late)
        if which == 2: a.e("s_waitcnt vmcnt(0)")
        a.e("s_barrier")
        if which == 1 and "p" not in os.environ.get("FO2", "1pd"): late_park(a)
        call(a, after_g1 if which == 1 else after_g2); mstamp(a)
        return
    args = (a, which, c["NW"], c["STB"] // 2048, w_issue, c["NPRE"], c["WR"])
    if which == 4:
        assert c["NW"] == 6 and c["WB"] == CFG[1]["WB"] + 3 * 8192
        a.e("s_cmp_eq_u32 s60, 1"); a.e("s_cbranch_scc1 WL_t1")
        ld_steps(*args, hi=24)
        WT = eval(os.environ.get("WT", "[(11,12,15,9),(13,14,10),(3,4),(5,6,0),(7,8,1,2),()]"))
        WD = eval(os.environ.get("WD", "()"))
        def some(js):
            def f():
                if js is WT[0]:
                    w_setup(a, 1, pre=False)
                    a.e("s_and_b32 s36, s99, 7"); a.e("s_cmp_eq_u32 s36, 3"); a.e("s_cselect_b64 s[50:51], 0, -1")
                for j in js:
                    if j in (9, 10) and js is not WT[5]:
                        a.e(f"s_add_u32 s39, s38, {j*64*2048}")
                        for i in range(4): a.e(f"buffer_load_dwordx4 {vr(16+16*(j-9)+4*i,4)}, v{WVB[1]}, s[12:15], s39 offen"); a.e("s_add_u32 s39, s39, 16384")
                    else:
                        if j in WD: a.e("s_mov_b64 exec, s[50:51]")
                        w1_slots(a, (j,), pace=8 if js is WT[5] else 0)
                        if j in WD: a.e("s_mov_b64 exec, -1")
            return f
        plan = {24 + i: (False, None, some(WT[i]), 4 * len(WT[i]), "w") for i in range(4) if WT[i]}
        ld_steps(*args, plan=plan, lo=24, last=some(WT[4]))
        rg = [j for j in (9, 10) if j not in WT[5]]
        if WD:
            a.e("s_cmp_lg_u32 s50, 0"); a.e("s_cbranch_scc1 WL_nd"); w1_slots(a, WD); a.e("WL_nd:")
        if rg:
            yg = [j for l in WT[:5] for j in l]; yg = len(yg) - 1 - max(yg.index(9), yg.index(10))
            a.e(f"s_add_u32 s36, s41, {9*8192}"); a.e("v_add_u32 v6, s36, v2"); a.e(f"s_waitcnt vmcnt({4*yg if os.environ.get('YG', '1') == '1' else 0})")
            for j in rg:
                for i in range(4): a.e(f"ds_write_b128 v6, {vr(16+16*(j-9)+4*i,4)} offset:{(j-9)*8192+i*1024}")
            a.e("s_waitcnt lgkmcnt(0)")
        some(WT[5])(); mstamp(a)
        a.e("s_branch NEXT")
        a.e("WL_t1:")
        ld_steps(*args, hold=HOLD)
        return
    plan = {}
    if "3" in DP:
        lsrd(a, 20, oX1P, XSZ)
        a.e(f"v_readlane_b32 s36, v{TV+3}, 1"); a.e("s_and_b32 s35, s30, 1"); a.e("s_lshl_b32 s46, s35, 18"); a.e("s_lshl_b32 s47, s35, 13"); a.e("s_add_u32 s47, s47, 16384")
        a.e("s_bfe_u32 s37, s36, 0x20002"); a.e("s_lshl_b32 s37, s37, 14"); a.e("s_and_b32 s36, s36, 3"); a.e("s_lshl_b32 s36, s36, 11"); a.e("s_add_u32 s46, s46, s36"); a.e("s_add_u32 s46, s46, s37")
        a.e("v_add_u32 v8, s47, v2")
        if W3E: w_issue(a, 3); args = args[:5] + (3,) + args[6:]
        def second():
            L = a.lab("sp"); D = a.lab("sq")
            a.e("s_mov_b32 s34, m0"); a.e("s_cmp_lg_u32 s60, 0"); a.e(f"s_cbranch_scc1 {L}a")
            lds_spin(a, LW + 60, 1, 6, nap=1)
            a.e(f"{L}a:"); a.e("s_mov_b32 s53, 0")
            if int(os.environ.get("S3D", "0")): a.e("s_sleep " + os.environ["S3D"])
            a.e(f"{L}:"); a.e("s_mov_b32 m0, s47"); a.e("s_mov_b32 s36, s46")
            for i in range(4):
                if i: a.e("s_add_u32 m0, m0, 2048"); a.e("s_add_u32 s36, s36, 65536")
                for k in range(2): a.e(f"buffer_load_dwordx4 v2, s[20:23], s36 offen offset:{1024*k} {SC} lds")
            a.e("s_waitcnt vmcnt(0)")
            for i in range(8): a.e(f"ds_read_b32 v{10+i}, v8 offset:{1024*i}")
            a.e("s_waitcnt lgkmcnt(0)")
            a.e("v_or3_b32 v10, v10, v11, v12"); a.e("v_or3_b32 v13, v13, v14, v15"); a.e("v_or3_b32 v10, v10, v16, v17"); a.e("v_bitop3_b32 v10, v10, v13, s60 bitop3:0xa8")
            a.e("v_cmp_ne_u32 vcc, 0, v10"); a.e(f"s_cbranch_vccz {D}"); a.e("s_sleep 1")
            a.e("s_add_u32 s53, s53, 1"); a.e("s_cmp_lt_u32 s53, s61"); a.e(f"s_cbranch_scc1 {L}"); a.e("s_mov_b32 s61, 0")
            a.e(f"{D}:"); a.e("s_mov_b32 m0, s34")
        plan[1] = (True, None, second, 8, "x")
    elif W33:
        plan[1] = (True, None, lambda: call(a, third_put), 0, None); args = args[:5] + (3,) + args[6:]
    elif W3H: plan[1] = (True, None, lambda: (a.e("s_add_u32 s54, s60, 1"), lds_spin(a, LW + 60, "s54", 6, nap=1)), 0, None)
    def sg3(n):
        def f():
            X = a.lab("st"); a.e("s_cmp_lg_u32 s60, 0"); a.e(f"s_cbranch_scc1 {X}"); sb(a, n); a.e(f"{X}:")
        return f
    for b_, n_ in eval(os.environ.get("SG3", "{}")).items(): plan[b_] = (False, None, sg3(n_), 0, None)
    RPW = int(os.environ.get("RPW", "15"))
    if RPW < 16: plan[RPW] = (False, None, lambda: call(a, r_pre0), 4, "r")
    ld_steps(*args, plan=plan, last=(lambda: r_pre1(a)) if RPW == 16 else None)
W3H = int(os.environ.get("W3H", "0")) or "3" in DP; W3E = int(os.environ.get("W3E", "1"))
W1L = int(os.environ.get("W1L", "3"))

B0E = int(os.environ.get("B0E", "6")); RPL = int(os.environ.get("RPL", "1")); RPC = int(os.environ.get("RPC", "1"))
LF1 = os.environ.get("LF1", "sc1"); LF2 = os.environ.get("LF2", "")
RES2 = 148; C2R = 200; SO3 = 238; RES4 = [172, 176, 180, 184, 188, 192, 196, 240]
def g_compute(a, which):
    c = CFG[which]
    WM, WN, MT, NT, KBT, NS, NA, NW, TN16, STB, WB = [c[k] for k in "WM WN MT NT KBT NS NA NW TN16 STB WB".split()]
    v = VA(6); nm = f"G{which}"
    lane = 1; l16 = 2
    t = v(); t2 = v(); pt = v(4, 2)
    NTILE = (0, 99, 29, 29, 33)[which]
    a_ = a
    if which != 3: a = Rec()
    if WN == 2: a.e("s_lshr_b32 s34, s30, 1"); a.e("s_and_b32 s35, s30, 1")
    else: a.e("s_mov_b32 s34, s30"); a.e("s_mov_b32 s35, 0")
    a0 = v(); w0 = v(4, 1); aa = v(); wa = v(4, 1); J = v(); G = v()
    a.e(f"v_and_b32 v{J}, 15, v{lane}"); a.e(f"v_lshrrev_b32 v{G}, 4, v{lane}")
    a.e(f"s_mul_i32 s37, s34, {MT}")
    a.e(f"s_mul_i32 s38, s{NTILE}, {TN16}"); a.e(f"s_mul_i32 s36, s35, {NT}"); a.e("s_add_u32 s38, s38, s36")
    acc = v(MT * NT * 4, 4); NF = MT + NT if which > 2 else 8
    fX = v(NF * 4, 4); fY = v(NF * 4, 4); tmp = v(); tp = v(4, 2)
    def A_(mt, nt): return acc + 4 * (mt * NT + nt)
    def SUBM(r): return f"{vr(r,2)} op_sel_hi:[1,0] neg_lo:[0,1] neg_hi:[0,1]"
    def MULR(r): return f"{vr(r,2)} op_sel:[0,1] op_sel_hi:[1,1]"
    if which in (2, 4):
        res = RES2
        a.e("s_lshr_b32 s36, s38, 1"); spread(a, 39, 36); a.e("s_lshl_b32 s36, s37, 16"); a.e("s_add_u32 s39, s39, s36")
    if which <= 2:
        AB = 164; LO = v(8, 1)
        def aload(b, kk):
            if which == 1: return [f"buffer_load_dwordx4 {vr(AB+16*b+8*kk+4*mt,4)}, v{LO+mt+(b&2)}, s[8:11], s44 offen offset:{(b&1)*2048+kk*1024} {LF1}" for mt in range(2)]
            return [f"buffer_load_dwordx4 {vr(AB+16*b+8*kk+4*mt,4)}, v{LO+mt}, s[8:11], s44 offen {LF2}" for mt in range(2)]
        def seq(pairs, s0):
            if which == 1: return [x for b, kk in pairs for x in aload(b, kk)]
            return ([f"s_mov_b32 s44, {s0}"] if s0 is not None else []) + [x for b, kk in pairs for x in aload(b, kk) + ["s_add_u32 s44, s44, 16384"]]
        def past(l): return [x + (SC if x.startswith("buffer") and SC not in x else "") for x in l]
        PR = [(i >> 1, i & 1) for i in range(7)]
        h = Rec()
        if which == 1:
            lsrd(h, 8, oX3, XSZ); OOB = MB
            for i in range(4): (h if i < 2 else a).e(f"v_add_u32 v{LO+i}, {(i & 1) * 65536 + (i >> 1) * 4096}, v{l16}")
            h.e("s_lshl_b32 s44, s30, 17")
            for i in range(1, 4): a.e(f"s_add_u32 s{44+i}, s44, {16384*i}")
        else:
            OOB = 0x40000000; LP = v(2, 1)
            h.srd(8, 4, 8 * GSTR + LSTR, off=LB0 + oHS)
            h.e(f"s_sub_u32 s47, s55, {LB0 + oSM}"); h.e("s_lshl_b32 s46, s30, 9"); h.e("s_add_u32 s47, s47, s46")
            h.e("s_add_u32 s45, s92, 2048"); h.e("s_cmp_eq_u32 s28, 0"); h.e(f"s_cselect_b32 s45, {OOB}, s45"); h.e("s_cmp_eq_u32 s30, 0"); h.e("s_cselect_b32 s45, s45, 0")
            a.e("s_sub_u32 s46, s93, 2048"); a.e("s_cmp_eq_u32 s28, 15"); a.e(f"s_cselect_b32 s46, {OOB}, s46"); a.e("s_cmp_eq_u32 s30, 3"); a.e("s_cselect_b32 s46, s46, 0")
            for q_, sh in enumerate((1, -1, 2, -2)):
                e_ = h if q_ == 0 else a
                e_.e(f"s_add_u32 s53, s47, {(-16 * sh) & 0xffffffff:#x}"); e_.e(f"v_add_u32 v{LO+2*q_}, s53, v{a0}"); e_.e(f"v_add_u32 v{LO+2*q_+1}, 256, v{LO+2*q_}")
                R_ = LO + 2 * q_ + (0 if sh > 0 else 1)
                e_.e(f"v_add_u32 v{LP}, s{45 if sh > 0 else 46}, v{R_}")
                e_.e(f"v_cmp_gt_u32 vcc, {sh}, v{J}" if sh > 0 else f"v_cmp_le_u32 vcc, {16 + sh}, v{J}"); e_.e(f"v_cndmask_b32 v{R_}, v{R_}, v{LP}, vcc")
            for k in range(2): a.e(f"v_mov_b32 v{LP+k}, v{LO+k}")
        EARLY = str(which) in DP and str(which) in os.environ.get("EP", "2")
        try0 = past(seq(PR[:2], 0))
        for x in h.l: a_.e(x)
        if EARLY and which == 1:
            for x in try0: a_.e(x)
    else:
        a.e(f"s_mul_i32 s36, s34, {MT*2048}"); a.e(f"v_add_u32 v{a0}, s36, v{l16}")
    nwr, wpos = w_bases(a, which, w0, 35, NT, t, t2)
    if which <= 2:
        for x in a.l: a_.e(x)
    a = a_
    if which == 3 and not B0E: publish(a, ST_G2S, 4, pt, ctr=48)
    if which == 2:
        a.e(f"s_lshl_b32 s36, s37, 8"); a.e(f"s_add_u32 s36, s36, {LNSL}"); a.e(f"v_lshlrev_b32 v{t2}, 4, v{J}"); a.e(f"v_add_u32 v{t2}, s36, v{t2}")
        for mt in range(MT): a.e(f"ds_read_b64 {vr(fX+2*mt,2)}, v{t2} offset:{mt*256}")
        a.e("s_waitcnt vmcnt(4) lgkmcnt(0)")
        if EARLY:
            if int(os.environ.get("G2D", "3")): a.e("s_sleep " + os.environ.get("G2D", "3"))
            if int(os.environ.get("G2D0", "2")): a.e("s_cmp_lg_u32 s60, 0"); a.e("s_cbranch_scc1 G2_nd"); a.e("s_sleep " + os.environ.get("G2D0", "2")); a.e("G2_nd:")
            for x in try0: a.e(x)
        for mt in range(MT):
            for p in range(NT // 2):
                for e in range(4):
                    X = A_(mt, 2 * p) + 2 * e
                    unpack(a, X, X + 1, res + (mt * (NT // 2) + p) * 4 + e)
                    a.e(f"v_pk_add_f32 {vr(X,2)}, {vr(X,2)}, {SUBM(fX+2*mt)}"); round2(a, X, X + 1, tmp)
                    a.e(f"v_pk_mul_f32 {vr(X,2)}, {vr(X,2)}, {MULR(fX+2*mt)}"); round2(a, X, X + 1, tmp)
    elif which == 1:
        for i in range(0, MT * NT * 4, 2): a.e(f"v_pk_mov_b32 {vr(acc+i,2)}, 0, 0")
    RX = [180, 184, 188, 192, 196, 230, 234, 248]
    def last_res():
        b0 = Rec()
        for i in range(2):
            b0.e(f"s_add_u32 s36, s40, {i*65536}")
            for p in range(2):
                b0.e(f"buffer_load_dwordx4 {vr(RX[2*(2*i+p)],4)}, v{l16}, s[84:87], s36 offen offset:{p*1024} {SC}")
                b0.e(f"buffer_load_dwordx4 {vr(RX[2*(2*i+p)+1],4)}, v{l16}, s[88:91], s36 offen offset:{p*1024} {SC}")
        return b0.l
    def reads(F, kk):
        o = []
        for mt in range(MT): o.append(f"ds_read_b128 {vr(F+4*mt,4)}, v{aa} offset:{mt*256+kk*8192 if which == 2 else mt*2048+kk*1024}")
        for nt in range(NT):
            for h in range(2):
                r, imm = wpos(nt, kk, h)
                o.append(f"ds_read_b64_tr_b16 {vr(F+4*(MT+nt)+2*h,2)}, v{wa+r} offset:{imm}")
        NR = os.environ.get("NOREAD")
        if NR == "N": o = []
        if NR == "A": o = o[MT:]
        if NR == "W": o = o[:MT]
        if NR == "H": o = o[::2]
        if NR == "X": o = o + o[:2]
        if NR == "XX": o = o + o[:MT]
        return o
    def mix(rd, ex):
        rd = list(rd)
        for i, x in enumerate(ex): rd.insert(min(len(rd), (i + 1) * len(rd) // (len(ex) + 1)), x)
        return rd
    def mfmas(F, rd, tail=()):
        n = MT * NT; k = 0; tot = len(rd); span = max(1, n * 3 // 4); done = 0; tail = list(tail); per = -(-len(tail) // max(1, n - span))
        OR = os.environ.get("ORDER", "2")
        order = {"0": [(nt, mt) for nt in range(NT) for mt in range(MT)],
                 "1": [(nt, mt) for mt in range(MT) for nt in range(NT)],
                 "2": [(nt, mt if nt % 2 == 0 else MT - 1 - mt) for nt in range(NT) for mt in range(MT)],
                 "3": [(nt if mt % 2 == 0 else NT - 1 - nt, mt) for mt in range(MT) for nt in range(NT)]}[OR]
        for nt, mt in order:
            if True:
                cc = acc + 4 * (mt * NT + nt)
                if str(which) not in os.environ.get("NOMF", ""): a.e(f"v_mfma_f32_16x16x32_bf16 {vr(cc,4)}, {vr(F+4*(MT+nt),4)}, {vr(F+4*mt,4)}, {vr(cc,4)}")
                k += 1
                while rd and done < (tot * k + span - 1) // span: a.e(rd.pop(0)); done += 1
                if k >= span and k < n:
                    for _ in range(min(per, len(tail))): a.e(tail.pop(0))
        assert not rd and not tail
    so = SO3 if which == 3 else a0; cs = fX; lns = fX + 4 * NT; G4W = 240; EA = 244
    def ep_setup(b):
        if which in (1, 3):
            assert which == 1 or (fY <= C2R and C2R + 24 <= fY + 4 * NF)
            b.e(f"s_mul_i32 s36, s35, {NT*64}"); b.e(f"s_add_u32 s36, s36, {CSO[which]}"); b.e(f"v_lshlrev_b32 v{t}, 4, v{G}"); b.e(f"v_add_u32 v{t}, s36, v{t}")
            b.e(f"s_lshl_b32 s36, s37, 8"); b.e(f"s_add_u32 s36, s36, {LNSL + (8 if which == 1 else 0)}"); b.e(f"v_lshlrev_b32 v{t2}, 4, v{J}"); b.e(f"v_add_u32 v{t2}, s36, v{t2}")
        if which == 3:
            lsrd(b, 16, oH2, H2SZ)
            b.e(f"s_mul_i32 s39, s37, {224*1024}")
            for P in range(4):
                b.e("s_lshr_b32 s36, s38, 1"); b.e(f"s_add_u32 s36, s36, {P}"); spread(b, 44 + P, 36); b.e(f"s_add_u32 s{44+P}, s{44+P}, s39")
            w_bases(b, 4, G4W, 35, 4, tp, tp + 1)
            b.e("s_lshl_b32 s38, s33, 3"); b.e("s_lshl_b32 s36, s35, 2"); b.e("s_add_u32 s38, s38, s36")
            b.e("s_lshr_b32 s36, s38, 1"); spread(b, 39, 36); b.e("s_lshl_b32 s36, s37, 16"); b.e("s_add_u32 s39, s39, s36")
            b.e("s_lshl_b32 s40, s31, 17"); b.e("s_add_u32 s40, s40, s39")
            b.e("s_xor_b32 s41, s31, 1"); b.e("s_lshl_b32 s41, s41, 17"); b.e("s_add_u32 s41, s41, s39")
            lsrd(b, 84, oX3, XSZ); lsrd(b, 88, oX1P, XSZ)
            b.e("s_lshl_b32 s36, s37, 1"); b.e("s_add_u32 s36, s36, s35"); b.e("s_lshl_b32 s36, s36, 10"); b.e(f"v_add_u32 v{EA}, s36, v{l16}")
            b.e(f"v_mov_b32 v{EA+1}, 1"); b.e(f"v_mov_b32 v{EA+2}, {LW+64}")
            b.e(f"v_lshrrev_b32 v{so}, 1, v{G}"); b.e(f"v_lshlrev_b32 v{so}, 8, v{so}"); b.e(f"v_lshl_add_u32 v{so}, v{J}, 4, v{so}")
            b.e(f"v_and_b32 v{tmp}, 1, v{G}"); b.e(f"v_lshl_add_u32 v{so}, v{tmp}, 3, v{so}")
        if which == 1:
            lsrd(b, 16, oHS, XSZ)
            b.e(f"v_lshlrev_b32 v{so}, 11, v{G}"); b.e(f"v_lshl_add_u32 v{so}, v{J}, 4, v{so}")
            b.e("s_lshl_b32 s39, s38, 13"); b.e("s_lshl_b32 s36, s37, 8"); b.e("s_add_u32 s39, s39, s36"); b.e("s_add_u32 s40, s39, 16384")
            b.e("s_lshl_b32 s36, s29, 1"); spread(b, 41, 36); b.e("s_lshl_b32 s36, s37, 16"); b.e("s_add_u32 s41, s41, s36")
        if which == 2: lsrd(b, 16, oX1P, XSZ)
    def cost(x): return sum(8 if y.startswith("ds_") else 4 for y in x.split("\n"))
    def group(F, rd, r0, ex, fixed={}, zero=False):
        n = MT * NT; ex = [x if isinstance(x, tuple) else (x, -1) for x in ex]; done = 0
        order = [(nt, mt if nt % 2 == 0 else MT - 1 - mt) for nt in range(NT) for mt in range(MT)]
        need = sum(cost(x) for x, _ in ex) + 8 * len(rd) + sum(cost(x) for l in fixed.values() for x in l)
        cap = max(12, -(-need // (4 * n)) * 4)
        for k, (nt, mt) in enumerate(order):
            cc = A_(mt, nt)
            if str(which) not in os.environ.get("NOMF", ""): a.e(f"v_mfma_f32_16x16x32_bf16 {vr(cc,4)}, {vr(F+4*(MT+nt),4)}, {vr(F+4*mt,4)}, {0 if zero else vr(cc,4)}")
            b_ = cap - sum(cost(x) for x in fixed.get(k, [])); nv = 0
            if k >= r0 and done < len(rd): a.e(rd[done]); done += 1; b_ -= 8
            while ex and ex[0][1] < done and (cost(ex[0][0]) <= b_ or k == n - 1) and not (nv >= (1 if rd else 2) and ex[0][0].startswith("v_") and cap == 12 and k < n - 1):
                x = ex.pop(0)[0]; a.e(x); b_ -= cost(x); nv += x.startswith("v_")
            for x in fixed.get(k, []): a.e(x)
        assert done == len(rd) and not ex
    NR_ = MT + 2 * NT; BP = eval(os.environ.get("BP", "{3:3,4:2}")).get(which, 0)
    def stage(ex=(), ey=(), lim=NS-1, late=False, zero=False, pre=()):
        if str(which) in os.environ.get("GST", "") or os.environ.get("JIT"): mstamp(a, True)
        if which == 3: last = {0: NR_ - 1, 1: NR_ - 3}
        else: last = {i: MT + 2 * i + 1 for i in range(4)}
        book = ["s_add_u32 s42, s42, 16384", f"s_cmp_eq_u32 s42, {NA*16384}", "s_cselect_b32 s42, 0, s42",
                f"s_add_u32 s48, s48, {STB}", f"s_cmp_eq_u32 s48, {NW*STB}", "s_cselect_b32 s48, 0, s48", (f"v_add_u32 v{aa}, s42, v{a0}", MT - 1)]
        book += sorted([(f"v_add_u32 v{wa+i}, s48, v{w0+i}", last[i]) for i in range(nwr)], key=lambda x: x[1])
        n = MT * NT
        group(fX, reads(fY, 1), 0, book[:7] + list(ex) + book[7:], {3: [f"s_waitcnt lgkmcnt({min(15, NR_ - MT - 4 + 4)})"], 7: ["s_waitcnt lgkmcnt(8)"], n - 1: [f"s_waitcnt lgkmcnt({NR_ - MT - 2})"]}, zero)
        if late:
            b_ = Rec(); ep_setup(b_)
            group(fY, [], 0, ["s_add_u32 s43, s43, 1"] + b_.l, {min(BP, 3): ["s_waitcnt lgkmcnt(0)"]})
            if B0E: publish(a, ST_G2S, 4, pt, ctr=48)
            a.e("s_barrier")
            for x in reads(fX, 0): a.e(x)
            a.e(f"s_waitcnt lgkmcnt({NR_ - MT - 2})")
            return
        group(fY, reads(fX, 0), BP + 1, list(ey) + ["s_add_u32 s43, s43, 1", f"s_cmp_lt_u32 s43, {lim}"],
              {BP - 1: list(pre), BP: ["s_waitcnt lgkmcnt(0)", "s_barrier"], n - 1: [f"s_waitcnt lgkmcnt({NR_ - MT - 2})"]})
    w00 = c["S0"] * STB
    if which <= 2:
        def wrd(p, b): return [f"ds_read_b64_tr_b16 {vr((fX, fY)[p]+16*kk+4*nt+2*h,2)}, v{w0+nt} offset:{b*STB + wpos(nt, kk, h)[1]}" for kk in range(2) for nt in range(4) for h in range(2)]
        def dmf(b, fill, lo=0, hi=16):
            k = 0
            for kk in range(2):
                for nt in range(4):
                    for mt in ((0, 1) if nt % 2 == 0 else (1, 0)):
                        if lo <= k < hi:
                            a.e(f"v_mfma_f32_16x16x32_bf16 {vr(A_(mt,nt),4)}, {vr((fX, fY)[b&1]+16*kk+4*nt,4)}, {vr(AB+16*b+8*kk+4*mt,4)}, {vr(A_(mt,nt),4)}")
                            for x in fill[k]: a.e(x)
                        k += 1
        def spreadf(l, lo, hi):
            f = [[] for _ in range(16)]
            for i, x in enumerate(l): f[lo + i * (hi - lo) // len(l)].append(x)
            return f
        a.e("s_mov_b32 s43, 0"); ep_setup(a)
        CK = str(which) in DP; ck_ = aa
        def check(b):
            B = AB + 16 * b
            return [f"v_or3_b32 v{ck_}, v{B}, v{B+4}, v{B+8}", f"v_bitop3_b32 v{ck_}, v{ck_}, v{B+12}, 1 bitop3:0xa8", f"v_cmp_ne_u32 vcc, 0, v{ck_}"]
        L = a.lab("dm"); assert CK
        a.e("s_mov_b32 s53, 0"); a.e("s_mov_b32 s49, s44")
        if which == 2: a.e("s_barrier")
        for x in wrd(0, 0): a.e(x)
        if EARLY: a.e(f"s_branch {L}w")
        a.e(f"{L}p:")
        for x in try0: a.e(x)
        a.e(f"{L}w:")
        a.e("s_waitcnt vmcnt(0)")
        for x in check(0): a.e(x)
        a.e(f"s_cbranch_vccz {L}q"); a.e(f"s_sleep {os.environ.get('GNAP', '2')}")
        a.e("s_add_u32 s53, s53, 1"); a.e("s_cmp_lt_u32 s53, s61"); a.e(f"s_cbranch_scc1 {L}p"); a.e("s_mov_b32 s61, 0")
        a.e(f"{L}q:")
        mstamp(a)
        for x in seq(PR[2:], None): a.e(x)
        a.e("s_waitcnt lgkmcnt(0)")
        a.e(f"{L}:")
        for b in range(4):
            rd = wrd(1 - (b & 1), (b + 1) & 3); ex = [[] for _ in range(16)]
            ex[0], ex[1] = [[x] for x in aload((b - 1) & 3, 1)]
            if b == 0 and which == 1:
                for i, x in enumerate(["s_mov_b32 s44, s45", "s_mov_b32 s45, s46", "s_mov_b32 s46, s47", f"s_mov_b32 s47, {OOB}"]): ex[2 + i].append(x)
            if which == 2:
                ex[2].append("s_add_u32 s44, s44, 16384"); ex[10].append("s_add_u32 s44, s44, 16384")
                mv = [f"v_mov_b32 v{LO+k}, v{LO+k+2}" for k in range(6)] + [f"v_mov_b32 v{LO+6+k}, {OOB}" for k in range(2)]
                if b < 2:
                    for i, x in enumerate(mv[4*b:4*b+4]): ex[3 + i].append(x)
                if b == 3:
                    for k in range(2): ex[3 + k].append(f"v_mov_b32 v{LP+k}, v{LO+k}")
            if b == 2:
                ex[4].append("s_add_u32 s43, s43, 1"); ex[14].append("s_cmp_eq_u32 s43, 4")
                for nt, g_ in enumerate((11, 12, 13, 15)): ex[g_].append(f"v_add_u32 v{w0+nt}, {4*STB}, v{w0+nt}")
            if b == 3 and which == 1: ex[2].append("s_mov_b32 s49, s44")
            ex[7].append("s_waitcnt lgkmcnt(8)")
            ex[8], ex[9] = [[x] for x in aload(b, 0)]
            ex[10].append("s_waitcnt vmcnt(10)")
            if CK:
                for i, x in enumerate(check((b + 1) & 3)): ex[11 + i].append(x)
            fill = [rd[i:i+1] + ex[i] for i in range(16)]
            fill[14] = rd[14:16] + ex[14]; fill[15] = ex[15] + ["s_waitcnt lgkmcnt(8)"]
            if CK: fill[15] += [f"s_cbranch_vccnz {L}f{b}", f"{L}g{b}:"]
            if b == 2: fill[15].append(f"s_cbranch_scc1 {L}x")
            if b == 3: fill[15].append(f"s_branch {L}")
            dmf(b, fill)
        for b in range(4 if CK else 0):
            nb = (b + 1) & 3
            a.e(f"{L}f{b}:"); a.e("s_cselect_b32 s50, 1, 0")
            a.e(f"{L}h{b}:"); a.e(f"s_sleep {os.environ.get('GNAP', '2')}")
            if which == 2: a.e(f"s_sub_u32 s44, s44, {7*16384}")
            for j in range(4):
                bb = (nb + j) & 3
                for kk in range(2 if j < 3 else 1):
                    for x in past(seq([(bb, kk)], None)):
                        if bb >= nb and which == 1: x = x.replace("s44", "s49")
                        if bb >= nb and which == 2: x = x.replace(f", v{LO}, ", f", v{LP}, ").replace(f", v{LO+1}, ", f", v{LP+1}, ")
                        a.e(x)
            a.e("s_waitcnt vmcnt(10)")
            for x in check(nb): a.e(x)
            a.e("s_add_u32 s53, s53, 1"); a.e("s_cmp_ge_u32 s53, s61"); a.e("s_cselect_b32 s61, 0, s61"); a.e(f"s_cbranch_scc1 {L}k{b}")
            a.e(f"s_cbranch_vccnz {L}h{b}")
            a.e(f"{L}k{b}:"); a.e("s_cmp_eq_u32 s50, 1"); a.e(f"s_branch {L}g{b}")
        a.e(f"{L}x:")
    else:
        if which == 3:
            a.e(f"v_mov_b32 v{aa}, v{a0}")
            a.e("s_mov_b32 s42, 0"); a.e("s_mov_b32 s43, 0"); a.e(f"s_mov_b32 s48, {w00}")
            for i in range(nwr): a.e(f"v_add_u32 v{wa+i}, {w00}, v{w0+i}")
        if not (which == 3 and B0E): a.e("s_waitcnt lgkmcnt(0)"); a.e("s_barrier")
        mstamp(a)
        for x in reads(fX, 0): a.e(x)
        a.e(f"s_waitcnt lgkmcnt({NR_ - MT - 2})")
    if which == 4:
        def st2(j): return [(x, 0) for x in [f"s_add_u32 s36, s44, {j*224*1024}", f"buffer_store_dwordx4 {vr(C2R+4*j,4)}, v{l16}, s[16:19], s36 offen {SC}",
                            f"s_add_u32 s36, s45, {j*224*1024}", f"buffer_store_dwordx2 {vr(C2R+16+2*j,2)}, v{SO3}, s[16:19], s36 offen {SC}"]]
        assert PBB in (1, 2) and PC0 >= 2
        for st_ in range(2): stage(st2(2 * st_), st2(2 * st_ + 1), zero=st_ == 0, pre=[f"s_waitcnt vmcnt({4 * st_ + 2})"] if PBB == st_ + 1 else [])
        CW = 0
        if PC0 > 3:
            L0 = a.lab("mm"); a.e(f"{L0}:"); stage(lim=PC0); a.e(f"s_cbranch_scc1 {L0}")
        elif PC0 == 3: stage()
    if which == 3 and os.environ.get("PEEL3", "1") == "1": stage(late=True, zero=True)
    if which > 2:
        L = a.lab("mm"); a.e(f"{L}:")
        stage(pre=[f"s_waitcnt vmcnt({CW})"] if which == 4 else [])
        a.e(f"s_cbranch_scc1 {L}")
    b0 = Rec()
    if which == 4:
        a.e("s_cmp_eq_u32 s60, 1"); a.e("s_cbranch_scc1 G4_last")
        if not RPC: r_pre(b0)
    if which == 1:
        for mt in range(MT):
            for p in range(NT // 2): b0.e(f"buffer_load_dwordx4 {vr(RES2+(mt*(NT//2)+p)*4,4)}, v{LO+mt}, s[8:11], s41 offen offset:{p*1024} {SC}")
    early = True
    XW = {3: [f"s_waitcnt lgkmcnt({min(15, NR_ - MT)})"], 7: ["s_waitcnt lgkmcnt(8)"]}
    if which <= 2: dmf(3, spreadf(b0.l, 0, 8), 0, 8)
    else: group(fX, reads(fY, 1), 0, b0.l, XW)
    a.e("s_waitcnt lgkmcnt(0)")
    if which not in DL: a.e("s_barrier")
    b = Rec()
    if which in (1, 3):
        for nt in range(NT): b.e(f"ds_read_b128 {vr(cs+4*nt,4)}, v{t} offset:{nt*64}")
        if which == 3:
            for mt in range(MT): b.e(f"ds_read_b128 {vr(lns+4*mt,4)}, v{t2} offset:{mt*256}")
            for i in range(4): b.e(f"v_mov_b32 v{w0+i}, v{G4W+i}"); b.e(f"v_add_u32 v{wa+i}, {CFG[4]['S0']*CFG[4]['STB']}, v{G4W+i}")
            b.e("s_mov_b32 s42, 0"); b.e("s_mov_b32 s43, 0"); b.e(f"s_mov_b32 s48, {CFG[4]['S0']*CFG[4]['STB']}"); b.e(f"v_mov_b32 v{aa}, v{a0}")
            assert fY + 16 == RFO; r_addr(b, False)
        else:
            for mt in range(MT): b.e(f"ds_read_b64 {vr(lns+2*mt,2)}, v{t2} offset:{mt*256}")
    if which == 2: lsrd(b, 44, oST2, 24576)
    if which == 4:
        b.e(f"s_mul_i32 s36, s31, {oP1-oP0}"); b.e(f"s_add_u32 s36, s36, {oP0}")
        b.e("s_add_u32 s16, s62, s36"); b.e("s_addc_u32 s17, s63, 0"); b.e(f"s_mov_b32 s18, {XSZ}"); b.e("s_mov_b32 s19, 0x20000")
    if which <= 2: dmf(3, spreadf(b.l, 8, 15), 8, 16)
    else: group(fY, [], 0, b.l)
    mstamp(a)
    if which in (1, 3):
        AB = v(2 * MT, 2) if which == 1 else fY + 4
        def consts():
            for mt in range(MT if which == 1 else 0):
                r = lns + 2 * mt + 1
                a.e(f"v_mul_f32 v{AB+2*mt}, {f32(GC1)}, v{r}"); a.e(f"v_mul_f32 v{AB+2*mt+1}, v{r}, v{r}")
                a.e(f"v_mul_f32 v{AB+2*mt+1}, v{AB+2*mt+1}, v{AB+2*mt}"); a.e(f"v_mul_f32 v{AB+2*mt+1}, {f32(0.044715)}, v{AB+2*mt+1}")
                a.e(f"v_rcp_f32 v{r}, v{r}")
        def act(mt, nt):
            A = A_(mt, nt); P_ = [(A, tp), (A + 2, tp + 2)]; L_ = vr(lns + 2 * mt, 2); K_ = vr(AB + 2 * mt, 2)
            if which == 3: L_ = vr(lns + 4 * mt, 2); K_ = vr(lns + 4 * mt + 2, 2)
            for h in range(2):
                a.e(f"v_pk_fma_f32 {vr(A+2*h,2)}, {L_}, {vr(cs+4*nt+2*h,2)}, {vr(A+2*h,2)} op_sel_hi:[0,1,1] neg_lo:[1,0,0] neg_hi:[1,0,0]")
            for x, u in P_: a.e(f"v_pk_mul_f32 {vr(u,2)}, {vr(x,2)}, {vr(x,2)}")
            for x, u in P_: a.e(f"v_pk_fma_f32 {vr(u,2)}, {vr(u,2)}, {K_}, {K_} op_sel:[0,1,0] op_sel_hi:[1,1,0]")
            for x, u in P_: a.e(f"v_pk_mul_f32 {vr(u,2)}, {vr(u,2)}, {vr(x,2)}")
            for i in range(4): a.e(f"v_exp_f32 v{tp+i}, v{tp+i}")
            for x, u in P_: a.e(f"v_pk_fma_f32 {vr(u,2)}, {vr(u,2)}, {L_}, {L_} op_sel:[0,1,1] op_sel_hi:[1,1,1]")
            for i in range(4): a.e(f"v_rcp_f32 v{tp+i}, v{tp+i}")
            for x, u in P_: a.e(f"v_pk_mul_f32 {vr(x,2)}, {vr(x,2)}, {vr(u,2)}")
        def egroup(par, mt, nts, dst=None):
            for nt in nts: act(mt, nt)
            T = par * NT + nts[0]; P = (T >> 1) - ((par * NT) >> 1); B = A_(mt, nts[0]); D = B if dst is None else dst
            for k in range(2 * len(nts)): a.e(f"v_cvt_pk_bf16_f32 v{D+k}, v{B+2*k}, v{B+2*k+1}")
            if which == 3 and (mt < 3 or "3" in DP) and "1" in DP: mark(a, D, 1)
            if which == 1: mark(a, D, 0)
            if which == 3: return [f"s_add_u32 s36, s{44+P}, {mt*224*1024}", f"buffer_store_dwordx4 {vr(B,4)}, v{l16}, s[16:19], s36 offen {SC}"]
            return [f"buffer_store_dwordx4 {vr(B,4)}, v{so}, s[16:19], s{39+P} offen offset:{mt*256} {SC}"]
        def body(par):
            if which == 1: gs = [(0, 1), (2, 3)]
            else: gs = [(0, 1), (2, 3), (4, 5), (6,)] if par == 0 else [(1, 2), (3, 4), (5, 6), (0,)]
            k = 0; pend = []; sent = 0
            for gi_, g_ in enumerate(gs):
                for mt in range(MT):
                    if which == 3 and k == C0PUB:
                        a.e(f"s_waitcnt vmcnt({sent - 4})"); a.e("s_mov_b64 exec, 1"); a.e(f"ds_add_u32 v{EA+2}, v{EA+1}"); a.e("s_mov_b64 exec, -1"); mstamp(a)
                    if which == 3 and k == RK:
                        b_ = Rec(); r_pre(b_); l_ = [x for x in b_.l if x.startswith(("buffer", "s_mov_b32 s78"))]
                        a.e("s_cmp_eq_u32 s60, 1"); a.e(f"s_cbranch_scc1 G4_p1{par}")
                        for x in l_: a.e(x)
                        a.e(f"s_branch G4_p2{par}"); a.e(f"G4_p1{par}:")
                        for x in last_res(): a.e(x)
                        a.e(f"G4_p2{par}:")
                        if 4 <= k < C0PUB: sent += 8
                    st_ = egroup(par, mt, g_, None if gi_ < 2 else C2R + 4 * mt if gi_ == 2 else C2R + 16 + 2 * mt); k += 1
                    if which == 3 and gi_ < 3:
                        a.e(f"ds_write_b128 v{EA}, {vr(A_(mt, g_[0]) if gi_ < 2 else C2R + 4 * mt, 4)} offset:{gi_*16384 + mt*2048}")
                    if gi_ < 2: pend.append(st_)
                    n = len(pend) if (which == 1 or k <= 4 or k == 16) else 0 if k <= STQ else min(1, len(pend))
                    for _ in range(n):
                        for x in pend.pop(0): a.e(x)
                        sent += 1
            if which == 3:
                a.e("s_waitcnt lgkmcnt(0)")
                if par == 0: a.e("s_mov_b32 s44, s46"); a.e("s_mov_b32 s45, s47")
                else: a.e("s_add_u32 s45, s44, 512"); a.e("s_mov_b32 s44, s47")
        a.e("s_waitcnt lgkmcnt(0)")
        consts()
        if which == 3:
            a.e("s_cmp_eq_u32 s35, 1"); a.e(f"s_cbranch_scc1 {nm}_e1")
            body(0); a.e(f"s_branch {nm}_e2"); a.e(f"{nm}_e1:"); body(1); a.e(f"{nm}_e2:")
        else: body(0)
    if which == 2:
        xf = v(2, 2); S = v(2 * MT, 2); pp = v(2, 2); mn = v(2, 2)
        for mt in range(MT):
            a.e(f"s_add_u32 s36, s39, {mt*65536}")
            for p in range(NT // 2):
                R = res + (mt * (NT // 2) + p) * 4
                for e in range(4):
                    X = A_(mt, 2 * p) + 2 * e
                    a.e(f"v_cvt_pk_bf16_f32 v{R+e}, v{X}, v{X+1}")
                if DP: mark(a, R, 0)
                a.e(f"buffer_store_dwordx4 {vr(R,4)}, v{l16}, s[16:19], s36 offen offset:{p*1024} {SC}")
        if which in DL: a.e("s_barrier")
        if OWN3:
            a.e("s_lshl_b32 s36, s37, 11"); a.e(f"v_add_u32 v{t2}, s36, v{l16}")
            for i in range(4): a.e(f"ds_write_b128 v{t2}, {vr(res+4*i,4)} offset:{1024*i}")
        for i in range(MT * NT * 2): unpack(a, acc + 2 * i, acc + 2 * i + 1, res + i)
        mstamp(a)
        publish(a, which, 4, pt)
        if B0E: a.e("s_waitcnt lgkmcnt(0)"); a.e("s_barrier")
        mstamp(a)
        for mt in range(MT):
            B = A_(mt, 0); Sm = S + 2 * mt
            a.e(f"v_pk_add_f32 {vr(pp,2)}, {vr(B,2)}, {vr(B+2,2)}"); a.e(f"v_pk_mul_f32 {vr(xf,2)}, {vr(B,2)}, {vr(B,2)}")
            for i in range(1, NT * 2):
                if i > 1: a.e(f"v_pk_add_f32 {vr(pp,2)}, {vr(pp,2)}, {vr(B+2*i,2)}")
                a.e(f"v_pk_fma_f32 {vr(xf,2)}, {vr(B+2*i,2)}, {vr(B+2*i,2)}, {vr(xf,2)}")
            a.e(f"v_add_f32 v{Sm}, v{pp}, v{pp+1}"); a.e(f"v_add_f32 v{Sm+1}, v{xf}, v{xf+1}")
            for op in ("v_permlane16_swap_b32", "v_permlane32_swap_b32"):
                for k in range(2): a.e(f"v_mov_b32 v{pp+k}, v{Sm+k}")
                for k in range(2): a.e(f"{op} v{Sm+k}, v{pp+k}")
                a.e(f"v_pk_add_f32 {vr(Sm,2)}, {vr(Sm,2)}, {vr(pp,2)}")
        a.e(f"v_cmp_eq_u32 vcc, 0, v{G}"); a.e(f"v_cndmask_b32 v{S}, v{S+2}, v{S}, vcc"); a.e(f"v_cndmask_b32 v{S+1}, v{S+3}, v{S+1}, vcc")
        spread(a, 40, 29); a.e("s_lshl_b32 s36, s34, 8"); a.e("s_add_u32 s40, s40, s36")
        a.e(f"v_lshlrev_b32 v{t2}, 3, v{lane}")
        a.e("s_bfm_b64 exec, 32, 0")
        a.e(f"buffer_store_dwordx2 {vr(S,2)}, v{t2}, s[44:47], s40 offen {SC}")
        a.e("s_mov_b64 exec, -1")
    if which == 4:
        for mt in range(MT):
            a.e(f"s_add_u32 s36, s39, {mt*65536}")
            for p in range(NT // 2):
                B = A_(mt, 2 * p)
                for e in range(4): a.e(f"v_cvt_pk_bf16_f32 v{B+e}, v{B+2*e}, v{B+2*e+1}")
                if "r" in DP: mark(a, B, 1)
                a.e(f"buffer_store_dwordx4 {vr(B,4)}, v{l16}, s[16:19], s36 offen offset:{p*1024} {SC}")
    if which != 2:
        if which in DL: a.e("s_barrier")
        mstamp(a)
        if which == 4 and "r" not in DP: publish(a, which, 4, pt)
        mstamp(a)
    if which == 4:
        a.e("s_branch NEXT")
        a.e("G4_last:")
        PX = 208; oa = 224; xf = 226
        group(fX, reads(fY, 1), 0, [(f"s_load_dwordx2 s[6:7], s[0:1], {D_OUT}", 9)], XW)
        a.e("s_waitcnt lgkmcnt(0)")
        b = Rec()
        lsrd(b, 16, oX1P if "f" in DP else MB, XSZ)
        b.srd(20, 6, 4 * MB)
        if "f" not in DP:
            b.e("s_lshl_b32 s44, s29, 2"); b.e("s_add_u32 s44, s44, s30"); b.e("s_lshl_b32 s44, s44, 7"); b.e("s_xor_b32 s45, s44, 4096")
            b.e("s_add_u32 s44, s44, s55"); b.e(f"s_add_u32 s44, s44, {oFP}"); b.e("s_add_u32 s45, s45, s55"); b.e(f"s_add_u32 s45, s45, {oFP}")
            b.e(f"v_mov_b32 v{pt+1}, s45"); b.e(f"v_mov_b32 v{pt+2}, s52"); b.e(f"v_mov_b32 v{pt+3}, 0")
        else: b.e("s_add_u32 s44, s40, 65536")
        b.e("s_lshl_b32 s46, s28, 3"); b.e("s_add_u32 s46, s46, s37"); b.e("s_lshl_b32 s47, s31, 1"); b.e("s_add_u32 s46, s46, s47"); b.e("s_lshl_b32 s46, s46, 15")
        b.e("s_lshl_b32 s47, s38, 5"); b.e("s_add_u32 s46, s46, s47"); b.e(f"s_add_u32 s47, s46, {16*2048}")
        b.e(f"v_and_b32 v{oa+1}, 1, v{G}"); b.e(f"v_lshlrev_b32 v{oa}, 11, v{J}"); b.e(f"v_lshl_add_u32 v{oa}, v{oa+1}, 5, v{oa}")
        b.e(f"v_lshrrev_b32 v{oa+1}, 1, v{G}"); b.e(f"v_lshl_add_u32 v{oa}, v{oa+1}, 4, v{oa}")
        FULLN = os.environ.get("FULLN", "1") == "1"
        if FULLN:
            b.e(f"v_lshrrev_b32 v{oa+1}, 3, v{J}"); b.e(f"v_mul_u32_u24 v{oa+1}, {8*2048 - 64}, v{oa+1}"); b.e(f"v_sub_u32 v{oa}, v{oa}, v{oa+1}")
            b.e(f"v_add_u32 v{oa+1}, {8*2048}, v{oa}")
        OT = int(os.environ.get("OT", "0"))
        if OT == 1: b.e("s_mov_b64 exec, 1"); b.e(f"buffer_load_dword v{xf}, v{oa}, s[20:23], s46 offen {SC}"); b.e("s_mov_b64 exec, -1")
        if OT == 2:
            for k in range(4): b.e(f"buffer_load_dword v{xf}, v{oa+(k&1)}, s[20:23], s{46+(k>>1)} offen {SC}")
        group(fY, [], 0, b.l)
        mstamp(a)
        def send(m0_):
            for i in range(2):
                a.e(f"s_add_u32 s36, s41, {i*65536}")
                for p in range(2):
                    B = A_(m0_ + i, 2 * p)
                    for e in range(4): a.e(f"v_cvt_pk_bf16_f32 v{B+e}, v{B+2*e}, v{B+2*e+1}")
                    if "f" in DP: mark(a, B, 1)
                    a.e(f"buffer_store_dwordx4 {vr(B,4)}, v{l16}, s[16:19], s36 offen offset:{p*1024} {SC}")
        a.e("s_cmp_eq_u32 s31, 0"); a.e("s_cbranch_scc1 G4_k0")
        send(0)
        for i in range(0, 32, 2): a.e(f"v_pk_mov_b32 {vr(acc+i,2)}, {vr(acc+32+i,2)}, {vr(acc+32+i,2)} op_sel:[0,1]")
        a.e("s_branch G4_k1")
        a.e("G4_k0:")
        send(2)
        a.e("G4_k1:")
        a.e("s_mov_b32 s78, 0x3f80"); a.e("s_mov_b32 s79, 0x3f800000")
        def addp(k, R):
            B = A_(k >> 1, 2 * (k & 1))
            if DOT:
                for e in range(8): a.e(f"v_dot2_f32_bf16 v{B+e}, v{R+e//2}, s{78+(e&1)}, v{B+e}")
                return
            for e in range(4):
                unpack(a, xf + 2 * (e & 1), xf + 1 + 2 * (e & 1), R + e)
                a.e(f"v_pk_add_f32 {vr(B+2*e,2)}, {vr(B+2*e,2)}, {vr(xf+2*(e&1),2)}")
        for k in range(4): addp(k, RX[2 * k])
        if "f" not in DP:
            a.e("s_waitcnt vmcnt(0)")
            a.e("s_mov_b64 exec, 1"); a.e(f"buffer_store_dword v{pt+2}, v{pt+3}, s[56:59], s44 offen {SC}"); a.e("s_mov_b64 exec, -1")
        mstamp(a)
        for k in range(4): addp(k, RX[2 * k + 1])
        if "f" in DP:
            data_poll(a, [f"buffer_load_dwordx4 {vr(PX+4*(2*i+p),4)}, v{l16}, s[16:19], s{(40, 44)[i]} offen offset:{p*1024} {os.environ.get('FF', SC)}" for i in range(2) for p in range(2)],
                      [PX + 4 * k for k in range(4)], t, int(os.environ.get("FNAP", "2")), 0, int(os.environ.get("FCAN", "0")))
            mstamp(a)
        else:
            poll_core(a, pt, [pt + 1], 1, nap=2)
            mstamp(a)
            for i in range(2):
                a.e(f"s_add_u32 s36, s40, {i*65536}")
                for p in range(2): a.e(f"buffer_load_dwordx4 {vr(PX+4*(2*i+p),4)}, v{l16}, s[16:19], s36 offen offset:{p*1024} {SC}")
        for k in range(4):
            if "f" not in DP: a.e(f"s_waitcnt vmcnt({3 - (k & 1) if FULLN else 3})")
            addp(k, PX + 4 * k)
            B = A_(k >> 1, 2 * (k & 1))
            if os.environ.get("EPS"):
                for e in range(8): a.e(f"v_mul_f32 v{B+e}, {f32(1 + float(os.environ['EPS']) * (1 if e & 1 else -1))}, v{B+e}")
            for e in range(4): a.e(f"v_cvt_pk_bf16_f32 v{B+e}, v{B+2*e}, v{B+2*e+1}")
            for e in range(2): a.e(f"v_permlane16_swap_b32 v{B+e}, v{B+2+e}")
            if not FULLN: a.e(f"buffer_store_dwordx4 {vr(B,4)}, v{oa}, s[20:23], s{46+(k>>1)} offen offset:{64*(k&1)} {os.environ.get('OS', '')}")
            elif k & 1:
                X, Y, T = B - 8, B, B + 4
                for e in range(4): a.e(f"v_mov_b32 v{T+e}, v{X+e}")
                for e in range(4): a.e(f"v_mov_b32_dpp v{X+e}, v{Y+e} row_ror:8 row_mask:0xf bank_mask:0xc")
                for e in range(4): a.e(f"v_mov_b32_dpp v{Y+e}, v{T+e} row_ror:8 row_mask:0xf bank_mask:0x3")
                a.e(f"buffer_store_dwordx4 {vr(X,4)}, v{oa}, s[20:23], s{46+(k>>1)} offen {os.environ.get('OS', SC)}")
                a.e(f"buffer_store_dwordx4 {vr(Y,4)}, v{oa+1}, s[20:23], s{46+(k>>1)} offen {os.environ.get('OS', SC)}")
        a.e("s_branch K_fin")
    assert v.hi <= {1: RES2, 2: RES2, 3: RYY, 4: 176}[which], v.hi
    return v.hi

def k_mega(a):
    nm = KNAME; a.begin_kernel(nm)
    a.e("s_cmp_ge_u32 s2, 256"); a.e("s_cbranch_scc1 K_end")
    a.e(f"s_load_dwordx8 s[8:15], s[0:1], {A_K}")
    if FAST:
        if STAMP: a.e("s_memrealtime s[46:47]")
        front_first(a)
    a.e(f"s_load_dwordx2 s[6:7], s[0:1], {A_Q}"); a.e(f"s_load_dwordx8 s[68:75], s[0:1], {B_W1}")
    a.e(f"s_load_dwordx2 s[4:5], s[0:1], {D_WS}"); a.e(f"s_load_dwordx2 s[84:85], s[0:1], {D_DBG}")
    if not (FAST and STAMP): a.e("s_memrealtime s[46:47]")
    a.e(f"s_load_dwordx2 s[96:97], s[0:1], {A_SSMD}")
    a.e("v_lshrrev_b32 v1, 6, v0"); a.e("v_readfirstlane_b32 s30, v1")
    if CODEPF:
        a.e("s_getpc_b64 s[48:49]"); a.e("K_pc:")
        a.e("s_lshr_b32 s36, s2, 3"); a.e("s_lshl_b32 s36, s36, 11")
        a.e("v_lshlrev_b32 v4, 2, v0"); a.e("v_add_u32 v4, s36, v4")
        a.e("v_cmp_gt_u32 vcc, K_end-K_pc-8, v4"); a.e("s_and_saveexec_b64 s[36:37], vcc"); a.e("s_cbranch_execz K_3")
        a.e("v_mov_b32 v5, s49"); a.e("v_add_co_u32 v4, vcc, s48, v4"); a.e("v_addc_co_u32 v5, vcc, 0, v5, vcc")
        a.e("global_load_dword v250, v[4:5], off")
        a.e("K_3:"); a.e("s_mov_b64 exec, -1")
    for _ in range(int(os.environ.get("SDELAY", "0"))): a.e("s_sleep 127")
    front_loads(a)
    a.e("v_and_b32 v1, 63, v0"); a.e("v_lshlrev_b32 v2, 4, v1"); a.e("v_lshlrev_b32 v3, 2, v1")
    a.e("s_mov_b32 s67, 0")
    a.e("s_mov_b32 s60, 0"); a.e("s_mov_b32 s61, 40000"); a.e("s_mov_b32 s52, 0")
    a.e("s_mov_b32 s55, 0"); a.e("s_mov_b32 s92, 0"); a.e("s_mov_b32 s93, 0"); a.e("s_mov_b32 s94, 0")
    a.srd(56, 4, HSB)
    if os.environ.get("FIXT"): a.e("s_mov_b32 s101, s46")
    a.e(f"s_add_u32 s62, s4, {LB0}"); a.e("s_addc_u32 s63, s5, 0")
    if STAMP:
        a.e("s_mov_b32 s66, 1"); a.e("v_mov_b32 v255, -1"); a.e("s_mov_b32 s95, 0"); a.e("v_writelane_b32 v255, s46, 0")
    mstamp(a)
    if os.environ.get("WBENCH"):
        a.e("s_waitcnt vmcnt(0)"); a.e("s_barrier")
        a.e("s_cmp_lt_u32 s30, 6"); a.e("s_cbranch_scc1 WB_end")
        for w in (1, 2, 3, 4):
            mstamp(a); w_setup(a, w); a.e("s_waitcnt vmcnt(0)"); mstamp(a); a.e("s_sleep 40")
        a.e("WB_end:"); a.e("s_branch K_dump")
    front_a(a); mstamp(a)
    for r in range(238, 248): a.e(f"v_mov_b32 v{r}, 0")
    a.e("s_cmp_ge_u32 s30, 4"); a.e("s_cbranch_scc1 FR_b")
    front_conv(a); hi = 0
    mstamp(a)
    front_arrive(a, True, True)
    a.e("s_branch FR_end")
    a.e("FR_b:")
    front_b(a)
    a.e("FR_end:")
    mstamp(a)
    a.e("LAYER:")
    if os.environ.get("XDELAY"): a.e(f"s_sleep {os.environ['XDELAY']}")
    hi = max(hi, r_stage(a, False))
    mstamp(a)
    a.e("s_cmp_ge_u32 s30, 4"); a.e("s_cbranch_scc1 LOADERS")
    if CPRIO: a.e(f"s_setprio {CPRIO}")
    for w in (1, 2, 3, 4):
        a.lines.append(f"; ---- G{w}: compute waves (set-up, K loop, epilogue, publish)")
        hi = max(hi, g_compute(a, w))
    a.e("LOADERS:")
    park_rest(a, True)
    if SB[2]:
        a.e("s_cmp_lg_u32 s60, 0"); a.e("s_cbranch_scc1 LD_0"); sb(a, SB[2]); a.e("LD_0:")
    if PRIO: a.e(f"s_setprio {PRIO}")
    a.e("s_cmp_ge_u32 s30, 6"); a.e("s_cbranch_scc1 WLOAD")
    for w in (1, 2, 3, 4): a_loader(a, w)
    a.e("s_branch NEXT")
    a.e("WLOAD:")
    a.e("s_cmp_eq_u32 s60, 1"); a.e("s_cbranch_scc1 WL_1")
    w_setup(a, 1, pre=False); w1_slots(a, range(9 - W1G), pace=12); mstamp(a)
    a.e("s_branch WL_2")
    a.e("WL_1:")
    w_setup(a, 1, pre=False); w1_slots(a, range(3 - W1L), pace=12)
    a.e("WL_2:")
    for w in (1, 2, 3, 4):
        w_loader(a, w)
        if w == 2:
            c = CFG[3]; w_setup(a, 3, pre=False); n_ = 3 if W33 else 2; a.e(f"s_mov_b32 s42, {(c['S0'] + n_) % c['NW'] * c['STB']}"); a.e(f"s_mov_b32 s44, {n_}")
        if w == 3: w_setup(a, 4)
    a.e("NEXT:")
    a.e("s_setprio 0")
    a.e("s_add_u32 s60, s60, 1"); a.e(f"s_add_u32 s55, s55, {LSTR}")
    a.e(f"s_add_u32 s62, s62, {LSTR}"); a.e("s_addc_u32 s63, s63, 0")
    a.e("s_branch LAYER")
    a.e("K_fin:")
    if os.environ.get("FIXT"):
        a.e("FX_l:"); a.e("s_sleep 4"); a.e("s_memrealtime s[64:65]"); a.e("s_waitcnt lgkmcnt(0)"); a.e("s_sub_u32 s64, s64, s101")
        if os.environ.get("FIX0"): a.e("s_add_u32 s64, s64, s101"); a.e("s_lshl_b32 s64, s64, 6"); a.e("s_sub_u32 s64, s64, s52"); a.e("s_lshr_b32 s64, s64, 6")
        a.e(f"s_cmp_lt_u32 s64, {os.environ['FIXT']}"); a.e("s_cbranch_scc1 FX_l")
    if STAMP:
        a.e("K_dump:")
        a.e("s_waitcnt vmcnt(0)")
        mstamp(a)
        a.srd(96, 4, 16 * MB, off=200 * MB)
        a.e("s_lshl_b32 s66, s2, 3"); a.e("s_add_u32 s66, s66, s30"); a.e("s_lshl_b32 s66, s66, 8")
        a.e("v_writelane_b32 v255, s95, 63")
        a.e("buffer_store_dword v255, v3, s[96:99], s66 offen")
        if os.environ.get("DBGOUT"):
            a.e("s_cmp_lg_u32 s66, 0"); a.e("s_cbranch_scc1 K_end")
            a.e(f"s_load_dwordx2 s[96:97], s[0:1], {D_DBG}"); a.e("s_mov_b32 s98, 64"); a.e("s_waitcnt lgkmcnt(0)")
            a.e("v_readlane_b32 s64, v255, 0"); a.e("v_mov_b32 v10, 0")
            for i, j in enumerate(eval(os.environ["DBGOUT"])):
                a.e(f"v_readlane_b32 s65, v255, {j}"); a.e("s_sub_u32 s65, s65, s64"); a.e("v_mov_b32 v11, s65")
                a.e(f"buffer_store_dword v11, v10, s[96:99], 0 offen offset:{8+4*i}")
    a.e("s_endpgm")
    emit_subs(a)
    a.e("K_end:")
    assert hi <= PV
    a.end_kernel(nm, 256)
    if TAB: tab_data(a)
    a.launches.append(f"; @launch grid=(256,1,1) block=(512,1,1) lds={LDS_TOTAL}")

HEADER = open("interleave_layers__ssm_conv_h3__mixer_s_mlp__prompt.s.ref").read().split("; Override launch")[0]
DOC = """; One persistent kernel, 256 workgroups x 8 waves (one per CU), generated by dev/gen32.py.
"""
def main(out):
    a = Asm()
    k_mega(a)
    DS = os.environ.get("DS")
    if DS:
        o = []
        for l in a.lines:
            o.append(l)
            if "buffer_store_dwordx" in l and "sc1" in l and any(k in l for k in DS.split(",")): o.append(l.replace(" sc1", ""))
        a.lines = o
    notes = {
        "K_pc:": "each workgroup reads 2 KB of this kernel's code so that later instruction fetches are served on chip",
        "KV_t0:": "k / v / tap loads of the u^T tile (64 times x 128 channels); workgroup 0 has posted the launch tag (a clock value) in d_debug",
        "HB_2:": "u^T tile out, arrival counters initialised to the tag, roles, shifted filter copies into LDS",
        "CV_w:": "long causal convolution as Toeplitz MFMAs, one channel per wave",
        "FR_b:": "waves 4-7 beside the convolution: memory-locality vote (timed loads, layout choice only), weight column sums, weight touches",
        "LAYER:": "row stage: residual sums, LayerNorm chain, x + LN(x)*y for 8 rows per workgroup",
        "LOADERS:": "waves 4,5: LayerNorm scalars / column sums; activation tiles of G3, G4 by LDS-DMA (after the producers' counters are complete)",
        "WLOAD:": "waves 6,7: weight tiles by LDS-DMA in their original layout (read back with transposing LDS loads)",
        "G4_last:": "last layer: the two K halves exchange half tiles, add the residuals and write the output",
    }
    o = []
    for l in a.lines:
        if l.strip() in notes: o.append("; ---- " + notes[l.strip()])
        if l.strip().startswith("s_sleep"): l += "    ; back-off of a wave that waits for another workgroup or wave"
        o.append(l)
    a.lines = o
    open(out, "w").write(a.text(HEADER + DOC))
    print("nops added:", a.nops_added)

if __name__ == "__main__":
    main(sys.argv[1] if len(sys.argv) > 1 else "interleave_layers__ssm_conv_h3__mixer_s_mlp__prompt.s")
```

```python
import sys, os, math, struct
sys.path.insert(0, "dev")
from asmgen import Asm

KNAME = "interleave_layers__ssm_conv_h3__mixer_s_mlp__prompt_kernel"
MB = 1 << 20
UT, Y = 24 * MB, 28 * MB
CSP = {1: 20 * MB, 3: 20 * MB + 128 * 1024}
A_Q, A_K, A_V, A_SH, A_SSMK, A_SSMD, B_X, B_W1, B_W2, B_W3, B_W4, D_OUT, D_DBG, D_WS = [8 * i for i in range(14)]
STAMP = int(os.environ.get("STAMP", "0"))
def f32(x): return "0x%08x" % struct.unpack("<I", struct.pack("<f", x))[0]
GC1 = -2.0 * math.sqrt(2.0 / math.pi) * math.log2(math.e)
GC2 = GC1 * 0.044715

class VA:
    def __init__(self, start=1): self.n = start; self.hi = start
    def __call__(self, cnt=1, al=None):
        if al is None: al = 2 if cnt > 1 else 1
        self.n = (self.n + al - 1) // al * al
        r = self.n; self.n += cnt; self.hi = max(self.hi, self.n); return r
def vr(b, n): return f"v[{b}:{b+n-1}]" if n > 1 else f"v{b}"

def unpack(a, lo, hi, src):
    a.e(f"v_lshlrev_b32 v{lo}, 16, v{src}")
    a.e(f"v_and_b32 v{hi}, 0xffff0000, v{src}")
RND = int(os.environ.get("RND", "0"))
def round2(a, x, y, tmp):
    if not RND: return
    a.e(f"v_cvt_pk_bf16_f32 v{tmp}, v{x}, v{y}")
    unpack(a, x, y, tmp)
def round1(a, x):
    if not RND: return
    a.e(f"v_cvt_pk_bf16_f32 v{x}, v{x}, v{x}")
    a.e(f"v_lshlrev_b32 v{x}, 16, v{x}")
def red_g(a, x, t):
    a.e(f"v_mov_b32 v{t}, v{x}"); a.e(f"v_permlane16_swap_b32 v{x}, v{t}"); a.e(f"v_add_f32 v{x}, v{x}, v{t}")
    a.e(f"v_mov_b32 v{t}, v{x}"); a.e(f"v_permlane32_swap_b32 v{x}, v{t}"); a.e(f"v_add_f32 v{x}, v{x}, v{t}")
def ln_finish(a, mean, var, rs, s=None):
    round1(a, mean); round1(a, var)
    a.e(f"v_add_f32 v{var}, {f32(1e-5)}, v{var}"); round1(a, var)
    if not RND and s is None: a.e(f"v_rsq_f32 v{rs}, v{var}"); return
    a.e(f"v_sqrt_f32 v{var}, v{var}"); round1(a, var)
    if s is not None: a.e(f"v_mov_b32 v{s}, v{var}")
    a.e(f"v_rcp_f32 v{rs}, v{var}")


FLG = 22 * MB + int(os.environ.get("FOFF", "0"))
LB0, LSTR, GSTR = 32 * MB, 4 * MB, 16 * MB
oH2 = 4 * MB; oSM = oH2 + 1792 * 1024; oFP = 16384; oST2 = oSM + 32768; oLNS = oSM + 65536
oX3, oX1P, oP0, oP1 = [i * 512 * 1024 for i in range(4)]
DP = os.environ.get("DP", "rf12")
if "r" in DP: oP0, oP1 = oX3, oX1P
def mark(a, r, bit): a.e(f"v_or_b32 v{r}, 1, v{r}" if bit else f"v_and_b32 v{r}, -2, v{r}")
DOT = int(os.environ.get("DOT", "1"))
def data_poll(a, loads, regs, t, nap, first=0, canary=False):
    L = a.lab("dp"); D = a.lab("dq")
    if canary:
        a.e("s_bfm_b64 exec, 1, 63"); data_poll(a, loads, regs, t, nap, first); a.e("s_mov_b64 exec, -1"); first = 0
    a.e("s_mov_b32 s53, 0")
    if first:
        f2 = int(os.environ.get("RFIRST2", "10"))
        if f2: a.e(f"s_sleep {f2}")
        a.e("s_cmp_ge_u32 s30, 6"); a.e(f"s_cbranch_scc1 {L}"); a.e(f"s_sleep {first - f2}")
    a.e(f"{L}:")
    for x in loads: a.e(x)
    a.e("s_waitcnt vmcnt(0)")
    a.e(f"v_bitop3_b32 v{t}, v{regs[0]}, v{regs[1]}, v{regs[2]} bitop3:0x80"); a.e(f"v_bitop3_b32 v{t}, v{t}, v{regs[3]}, 1 bitop3:0x80")
    a.e(f"v_cmp_eq_u32 vcc, 0, v{t}"); a.e(f"s_cbranch_vccz {D}")
    a.e(f"s_sleep {nap}")
    a.e("s_add_u32 s53, s53, 1"); a.e("s_cmp_lt_u32 s53, s61"); a.e(f"s_cbranch_scc1 {L}")
    a.e("s_mov_b32 s61, 0")
    a.e(f"{D}:")
XSZ = 512 * 1024 - 8192; H2SZ = 1792 * 1024 - 8192
HSB = 160 * MB; PITCH = 65536 + int(os.environ.get("SKEW", "0")); oHS = MB
def fso(stage): return int(stage * 256)
def spread(a, d, src):
    a.e(f"s_lshr_b32 s53, s{src}, 3"); a.e("s_lshl_b32 s53, s53, 14"); a.e(f"s_and_b32 s{d}, s{src}, 7"); a.e(f"s_lshl_b32 s{d}, s{d}, 10"); a.e(f"s_add_u32 s{d}, s{d}, s53")
ST_R, ST_G1, ST_G2, ST_G3, ST_G4, ST_R2, ST_G3B, ST_G3A = range(8); ST_G2S = 5.5
F_KVT, F_FRONT, F_CS = FLG, FLG + 32768, FLG + 53248; F_VOTE = F_FRONT + 16384; F_RES = F_VOTE
LDS_TOTAL = 163840
AUX = LDS_TOTAL - 4096
SC = "sc1"
PSLEEP = int(os.environ.get("PSLEEP", "5"))
ROT = int(os.environ.get("ROT", "1"))
PACE = int(os.environ.get("PACE", "8"))
PDEPTH = int(os.environ.get("PDEPTH", "1"))
WROT = int(os.environ.get("WROT", "1"))
PRIO = int(os.environ.get("PRIO", "0"))
STQ = int(os.environ.get("STQ", "12"))
CPRIO = int(os.environ.get("CPRIO", "0"))
FSLEEP = int(os.environ.get("FSLEEP", "6"))
CSPRIO = int(os.environ.get("CSPRIO", "1"))
NT = os.environ.get("NT", "nt"); HALO = int(os.environ.get("HALO", "0")); NTK = os.environ.get("NTK", "" if HALO else NT); NTH = os.environ.get("NTH", NT)
W1F = int(os.environ.get("W1F", "7"))
WSC = eval(os.environ.get("WSC", "{}"))
TLBW = int(os.environ.get("TLBW", "0"))
T12 = eval(os.environ.get("T12", "{}"))
T23 = eval(os.environ.get("T23", "()"))
OWN3 = int(os.environ.get("OWN3", "1"))
PUB2 = int(os.environ.get("PUB2", "4"))
MAP = int(os.environ.get("MAP", "4"))
HSPLIT = int(os.environ.get("HSPLIT", "2"))
W1G = int(os.environ.get("W1G", "9"))
PWAIT = int(os.environ.get("PWAIT", "8"))
DL = eval(os.environ.get("DL", "[2,4]"))
PACES = eval(os.environ.get("PACES", "{4:6}"))
C0PUB = int(os.environ.get("C0PUB", "6"))
LNSL = AUX + 1024

CFG = {1: dict(WM=4, WN=1, MT=2, NT=4, KBT=32, NS=16, NA=1.5, NW=16, A=oX3, W=B_W1, LDW=2048),
       2: dict(WM=4, WN=1, MT=2, NT=4, KBT=32, NS=16, NA=0, NW=16, A=oHS, W=B_W2, LDW=2048),
       3: dict(WM=2, WN=2, MT=4, NT=7, KBT=32, NS=16, NA=3, NW=3, A=oX1P, W=B_W3, LDW=7168, NPRE=2, WR=1, S0=2, WB=73728),
       4: dict(WM=2, WN=2, MT=4, NT=4, KBT=112, NS=28, NA=3, NW=6, A=oH2, W=B_W4, LDW=2048)}
for w, d in eval(os.environ.get("CFG", "{}")).items(): CFG[w].update(d)
for c in CFG.values():
    c.setdefault("NPRE", c["NW"]); c.setdefault("APRE", min(c["NA"], 3)); c.setdefault("WR", 1)
    c["TN16"] = c["WN"] * c["NT"]; c["STB"] = c["TN16"] * 2048; c.setdefault("WB", int(c["NA"] * 16384)); c.setdefault("S0", 0)
    c["RB"] = c["TN16"] * 32
    assert c["WB"] + c["NW"] * c["STB"] <= AUX
NX = 0
def nib(t): return sum(x << (4 * i) for i, x in enumerate(t))
CSO = {1: AUX + 3584, 3: AUX}

LW = AUX + 3072
def mstamp(a, force=False):
    if os.environ.get("JIT"):
        X = a.lab("jit")
        a.e("s_cselect_b32 s101, 1, 0"); a.e("s_memtime s[64:65]"); a.e("s_waitcnt lgkmcnt(0)"); a.e(f"s_and_b32 s64, s64, {os.environ['JIT']}"); a.e("s_cmp_lg_u32 s64, 0")
        a.e(f"s_cbranch_scc1 {X}"); a.e("s_sleep 50"); a.e(f"{X}:"); a.e("s_cmp_eq_u32 s101, 1")
        return
    if not STAMP or (os.environ.get("GST") and not force): return
    a.e(("s_memrealtime" if STAMP == 2 else "s_memtime") + " s[64:65]"); a.e("s_mov_b32 s100, m0"); a.e("s_mov_b32 m0, s66"); a.e("s_waitcnt lgkmcnt(0)")
    a.e("v_writelane_b32 v255, s64, m0"); a.e("s_mov_b32 m0, s100")
    a.e("s_add_u32 s66, s66, 1")

def lsrd(a, d, off, nbytes, prev=False):
    if prev:
        a.e(f"s_sub_u32 s{d}, s62, {LSTR - off:#x}"); a.e(f"s_subb_u32 s{d+1}, s63, 0")
        a.e(f"s_mov_b32 s{d+2}, {nbytes:#x}"); a.e(f"s_mov_b32 s{d+3}, 0x20000")
    else: a.srd(d, 62, nbytes, off=off)

def hs_srd(a, d):
    if "2" in DP: a.srd(d, 4, 128 * PITCH, off=HSB); return
    a.e("s_lshl_b32 s53, s60, 24"); a.e(f"s_add_u32 s53, s53, {HSB}")
    a.e(f"s_add_u32 s{d}, s4, s53"); a.e(f"s_addc_u32 s{d+1}, s5, 0"); a.e(f"s_mov_b32 s{d+2}, {128*PITCH}"); a.e(f"s_mov_b32 s{d+3}, 0x20000")

def group_off(a, d, m):
    a.e(f"s_lshr_b32 s53, s{m}, 3"); a.e("s_lshl_b32 s53, s53, 2"); a.e(f"s_and_b32 s54, s{m}, 3"); a.e("s_add_u32 s53, s53, s54"); a.e("s_lshl_b32 s53, s53, 24")
    a.e(f"s_lshr_b32 s54, s{m}, 2"); a.e("s_xor_b32 s54, s54, s94"); a.e("s_and_b32 s54, s54, 1"); a.e("s_lshl_b32 s54, s54, 13")
    a.e(f"s_add_u32 s{d}, s53, s54"); a.e(f"s_add_u32 s{d}, s{d}, {LB0}")

PV = 240
def poll_core(a, t, addrs, mask, extra=None, depth=1, cnt=0, nap=None):
    L = a.lab("poll"); D = a.lab("pok")
    n = len(addrs) + (1 if extra else 0)
    if depth > 1: t0 = t; regs = [PV + k * len(addrs) for k in range(depth)]; assert not extra and regs[-1] + len(addrs) <= 256
    else: regs = [t]
    def ld(r):
        for i, ad in enumerate(addrs): a.e(f"buffer_load_dword v{r+i}, v{ad}, s[56:59], 0 offen {SC}")
        if extra: a.e(extra[0])
    a.e("s_mov_b32 s53, 0"); a.e(f"s_add_u32 s54, s52, {cnt}")
    if mask != -1: a.e(f"s_bfm_b64 exec, {mask.bit_length()}, 0")
    for r in regs[:-1]: ld(r); a.e(f"s_sleep {PSLEEP}")
    a.e(f"{L}:")
    for k in range(depth):
        ld(regs[k - 1]); r = regs[k]
        a.e(f"s_waitcnt vmcnt({n*(depth-1)})")
        for i in range(len(addrs)): a.e(f"v_xor_b32 v{r+i}, s54, v{r+i}")
        for i in range(1, len(addrs)): a.e(f"v_or_b32 v{r}, v{r}, v{r+i}")
        if extra:
            for x in extra[1:]: a.e(x)
        a.e(f"v_cmp_eq_u32 vcc, 0, v{r}")
        a.e("s_cmp_eq_u64 vcc, exec"); a.e(f"s_cbranch_scc1 {D}")
        a.e(f"s_sleep {PSLEEP if nap is None else nap}")
    a.e("s_add_u32 s53, s53, 1"); a.e("s_cmp_lt_u32 s53, s61"); a.e(f"s_cbranch_scc1 {L}")
    a.e("s_mov_b32 s61, 0")
    a.e(f"{D}:")
    if mask != -1: a.e("s_mov_b64 exec, -1")

SPLIT = {ST_G1: "sign", ST_G3: "half", ST_G3A: "half", ST_G3B: "half"}
def flag_addr(a, r, stage, prev=False):
    so = fso(stage) - (LSTR if prev else 0)
    a.e(f"s_add_u32 s54, s55, {so & 0xffffffff:#x}")
    sp = SPLIT.get(stage)
    if sp == "half": a.e("s_lshl_b32 s53, s31, 7"); a.e("s_add_u32 s54, s54, s53")
    a.e(f"v_mov_b32 v{r}, s54")
    if sp == "sign":
        a.e("s_add_u32 s53, s54, 128"); a.e(f"v_writelane_b32 v{r}, s53, 1")
        a.e("s_add_u32 s53, s53, s93"); a.e(f"v_writelane_b32 v{r}, s53, 3")
        a.e("s_add_u32 s53, s54, s92"); a.e(f"v_writelane_b32 v{r}, s53, 2")
        return 0xf, 8
    return 1, 8 if sp else 16
def own_wait(a, stage, prev, t):
    if not PWAIT or stage == ST_R: return
    k = {ST_G1: 1, ST_G2: 2, ST_G4: 3}[stage] - (3 if prev else 0)
    a.e(f"s_mul_i32 s54, s60, {2 if 'r' in DP else 3}"); a.e(f"s_add_u32 s54, s54, {k}")
    lds_spin(a, LW + 56, "s54", t, nap=PWAIT)
def flag_try(a, r, ad):
    a.e("s_mov_b64 exec, 1"); a.e(f"buffer_load_dword v{r}, v{ad}, s[56:59], 0 offen {SC}"); a.e("s_mov_b64 exec, -1")
def flag_check(a, r, ad, cnt):
    D = a.lab("fok")
    a.e(f"v_readfirstlane_b32 s53, v{r}"); a.e(f"s_add_u32 s54, s52, {cnt}"); a.e("s_cmp_eq_u32 s53, s54"); a.e(f"s_cbranch_scc1 {D}")
    poll_core(a, r, [ad], 1, cnt=cnt)
    a.e(f"{D}:")

def poll(a, stage, t, prev=False):
    D = a.lab("pdone")
    a.e("s_cmp_lg_u32 s30, 4"); a.e(f"s_cbranch_scc1 {D}")
    own_wait(a, stage, prev, t)
    mask, cnt = flag_addr(a, t + 1, stage, prev)
    poll_core(a, t, [t + 1], mask, depth=PDEPTH, cnt=cnt)
    a.e(f"{D}:")
    if stage != ST_G4: mstamp(a)
    a.e("s_barrier")

def publish(a, stage, nw, t, off=None, wait=0, ctr=None, flag=False):
    D = a.lab("pub")
    mark = PWAIT and off is None and stage in (ST_G1, ST_G2, ST_G4)
    if off is None:
        a.e(f"s_add_u32 s53, s55, {fso(stage)}"); off = 53
        sp = SPLIT.get(stage)
        if sp == "half": a.e("s_lshl_b32 s54, s31, 7"); a.e("s_add_u32 s53, s53, s54")
        if sp == "sign": a.e("s_and_b32 s54, s29, 4"); a.e("s_lshl_b32 s54, s54, 5"); a.e("s_add_u32 s53, s53, s54")
    a.e(f"v_mov_b32 v{t}, 1"); a.e(f"v_mov_b32 v{t+1}, {LW + (ctr if ctr is not None else 4 if nw == 8 else 0)}"); a.e(f"v_mov_b32 v{t+3}, 0")
    a.e("s_mov_b64 exec, 1")
    if wait is not None: a.e(f"s_waitcnt vmcnt({wait})")
    if nw > 1:
        a.e(f"ds_add_rtn_u32 v{t+2}, v{t+1}, v{t}")
        if flag: a.e(f"v_mov_b32 v{t+1}, s52")
        a.e("s_waitcnt lgkmcnt(0)")
        a.e(f"v_readfirstlane_b32 s54, v{t+2}")
        a.e(f"s_and_b32 s54, s54, {nw-1}"); a.e(f"s_cmp_lg_u32 s54, {nw-1}"); a.e(f"s_cbranch_scc1 {D}")
    if flag: a.e(f"buffer_store_dword v{t+1}, v{t+3}, s[56:59], s{off} offen {SC}")
    else: a.e(f"buffer_atomic_add v{t}, v{t+3}, s[56:59], s{off} offen {SC}")
    if stage == ST_R and not flag:
        a.e("s_cmp_lg_u32 s60, 0"); a.e(f"s_cbranch_scc1 {D}")
        a.e("s_lshl_b32 s53, s29, 7"); a.e(f"s_add_u32 s53, s53, {F_CS}")
        a.e(f"buffer_atomic_add v{t}, v{t+3}, s[56:59], s53 offen {SC}")
    if mark: a.e(f"v_mov_b32 v{t+1}, {LW+56}"); a.e(f"ds_add_u32 v{t+1}, v{t}")
    a.e(f"{D}:")
    a.e("s_mov_b64 exec, -1")

def lds_spin(a, addr, target, t, dst=53, nap=False):
    L = a.lab("spin")
    a.e(f"v_mov_b32 v{t}, {addr}")
    a.e(f"{L}:")
    if nap: a.e(f"s_sleep {int(nap)}")
    a.e(f"ds_read_b32 v{t+1}, v{t}"); a.e("s_waitcnt lgkmcnt(0)"); a.e(f"v_readfirstlane_b32 s{dst}, v{t+1}")
    a.e(f"s_cmp_ge_u32 s{dst}, {target}"); a.e(f"s_cbranch_scc0 {L}")
def lds_set(a, addr, val, t):
    a.e(f"v_mov_b32 v{t}, {addr}"); a.e(f"v_mov_b32 v{t+1}, {val}")
    a.e("s_waitcnt lgkmcnt(0)"); a.e(f"ds_write_b32 v{t}, v{t+1}")
def lbar(a, k, t):
    a.e(f"v_mov_b32 v{t}, {LW+8}"); a.e(f"v_mov_b32 v{t+1}, 1")
    a.e("s_waitcnt lgkmcnt(0)")
    a.e("s_mov_b64 exec, 1"); a.e(f"ds_add_u32 v{t}, v{t+1}"); a.e("s_mov_b64 exec, -1")
    lds_spin(a, LW + 8, 4 * k + (2 if PWA else 0), t)

def gelu4(a, X, t, c1, c2):
    P = [(X, t), (X + 2, t + 2)]
    for x, u in P: a.e(f"v_pk_mul_f32 {vr(u,2)}, {vr(x,2)}, {vr(x,2)}")
    for x, u in P: a.e(f"v_pk_fma_f32 {vr(u,2)}, {vr(u,2)}, {vr(c2,2)}, {vr(c1,2)}")
    for x, u in P: a.e(f"v_pk_mul_f32 {vr(u,2)}, {vr(u,2)}, {vr(x,2)}")
    for i in range(4): a.e(f"v_exp_f32 v{t+i}, v{t+i}")
    for x, u in P: a.e(f"v_pk_add_f32 {vr(u,2)}, {vr(u,2)}, 1.0 op_sel_hi:[1,0]")
    for i in range(4): a.e(f"v_rcp_f32 v{t+i}, v{t+i}")
    for x, u in P: a.e(f"v_pk_mul_f32 {vr(x,2)}, {vr(x,2)}, {vr(u,2)}")

W2EARLY = int(os.environ.get("W2EARLY", "1")); QLATE = int(os.environ.get("QLATE", "0"))
TOUCH2 = [(A_Q, 4 * MB)] + ([] if W2EARLY else [(B_W2, 2 * MB)])
CODEPF = int(os.environ.get("CODEPF", "1")); NVOTE = int(os.environ.get("NVOTE", "32")); QUO = int(os.environ.get("QUO", "21")); NSAMP = int(os.environ.get("NSAMP", "2"))
W4POS = os.environ.get("W4POS", "3C")
HSTR = 4160; CHB = 24576; UOFF = 4 * HSTR; US = 96
KVS = 4 * CHB

KT = int(os.environ.get("KT", "1"))
KV = dict(cq=6, tg=7, t=8, ro=9, wo=16, pt=18, kr=22, vv=36, w=44, d=52, hoff=70, tag=76, zz=78)
FAST = int(os.environ.get("FAST", "0"))
def front_first(a):
    cq, tg, t, ro, wo, kr, vv, w = [KV[k] for k in "cq tg t ro wo kr vv w".split()]
    a.e(f"v_and_b32 v{cq}, 31, v0"); a.e(f"v_lshrrev_b32 v{tg}, 5, v0")
    a.e("s_and_b32 s34, s2, 7"); a.e("s_lshr_b32 s35, s2, 3")
    a.e("s_lshl_b32 s36, s35, 17"); a.e("s_lshl_b32 s37, s34, 8"); a.e("s_add_u32 s36, s36, s37")
    a.e(f"v_lshlrev_b32 v{t}, 13, v{tg}"); a.e(f"v_lshl_add_u32 v{t}, v{cq}, 3, v{t}"); a.e(f"v_add_u32 v{ro+3}, s36, v{t}")
    a.e(f"v_add_u32 v{ro+5}, 4096, v{ro+3}")
    a.e("s_waitcnt lgkmcnt(0)")
    for i in range(4): a.e(f"global_load_dwordx2 {vr(kr+2*(i+3),2)}, v{ro+3+(i&2)}, s[8:9] offset:{2048*(i&1)} {NTK}")
    for i in range(4): a.e(f"global_load_dwordx2 {vr(vv+2*i,2)}, v{ro+3+(i&2)}, s[10:11] offset:{2048*(i&1)} {NT}")
def front_loads(a):
    cq, tg, t, ro, wo, kr, vv, w = [KV[k] for k in "cq tg t ro wo kr vv w".split()]
    a_ = a
    if FAST: a = Rec()
    a.e(f"v_and_b32 v{cq}, 31, v0"); a.e(f"v_lshrrev_b32 v{tg}, 5, v0")
    a.e("s_and_b32 s34, s2, 7"); a.e("s_lshr_b32 s35, s2, 3")
    a.e("s_lshl_b32 s36, s35, 17"); a.e("s_lshl_b32 s37, s34, 8"); a.e("s_add_u32 s36, s36, s37")
    a.e(f"v_lshlrev_b32 v{t}, 13, v{tg}"); a.e(f"v_lshl_add_u32 v{t}, v{cq}, 3, v{t}"); a.e(f"v_add_u32 v{ro+3}, s36, v{t}")
    a.e(f"v_add_u32 v{ro+5}, 4096, v{ro+3}")
    a = a_
    a.e(f"s_mov_b32 s18, {4*MB}"); a.e("s_mov_b32 s19, 0x20000"); a.e("s_mov_b32 s22, s18"); a.e("s_mov_b32 s23, s19")
    a.e("s_waitcnt lgkmcnt(0)")
    tag, zz = KV["tag"], KV["zz"]
    a.e("s_mov_b32 s86, 256"); a.e("s_mov_b32 s87, 0x20000"); a.e(f"v_mov_b32 v{zz}, 0")
    a.e("s_lshl_b32 s45, s2, 3"); a.e("s_add_u32 s45, s45, s30"); a.e("s_cmp_lg_u32 s45, 4"); a.e("s_cbranch_scc1 KV_t0")
    a.e("s_getreg_b32 s45, hwreg(HW_REG_XCC_ID, 0, 3)"); a.e("s_lshl_b32 s45, s45, 1")
    a.e("s_lshl_b32 s44, s46, 6"); a.e("s_or_b32 s44, s44, s45"); a.e("s_or_b32 s44, s44, 1"); a.e(f"v_mov_b32 v{tag}, s44"); a.e(f"v_mov_b32 v{tag+1}, 0")
    a.e("s_mov_b64 exec, 1"); a.e(f"buffer_store_dwordx2 {vr(tag,2)}, v{zz}, s[84:87], 0 offen {SC}"); a.e("s_mov_b64 exec, -1")
    a.e("KV_t0:")
    a.e("s_mov_b64 s[16:17], s[8:9]"); a.e("s_mov_b64 s[20:21], s[10:11]")
    for i in range(0 if FAST else 4): a.e(f"buffer_load_dwordx2 {vr(kr+2*(i+3),2)}, v{ro+3+(i&2)}, s[16:19], 0 offen offset:{2048*(i&1)} {NTK}")
    for i in range(0 if FAST else 4): a.e(f"buffer_load_dwordx2 {vr(vv+2*i,2)}, v{ro+3+(i&2)}, s[20:23], 0 offen offset:{2048*(i&1)} {NT}")
    for i in range(3): a.e(f"v_subrev_u32 v{ro+i}, {2048*(3-i)}, v{ro+3}")
    a.e("s_lshl_b32 s37, s34, 10"); a.e(f"v_lshlrev_b32 v{wo}, 5, v{cq}"); a.e(f"v_add_u32 v{wo}, s37, v{wo}")
    a.srd(24, 12, 8192)
    XP = os.environ.get("XP", "g")
    if KT:
        a.e(f"v_and_b32 v{t}, 1, v{tg}"); a.e(f"v_lshl_add_u32 v{wo}, v{t}, 4, v{wo}")
        a.e(f"buffer_load_dwordx4 {vr(w,4)}, v{wo}, s[24:27], 0 offen")
    for i in range(0 if "t" in XP or KT else 2): a.e(f"buffer_load_dwordx4 {vr(w+4*i,4)}, v{wo}, s[24:27], 0 offen offset:{16*i}")
    if "g" in XP:
        a.e("s_cmp_lg_u32 s30, 4"); a.e("s_cbranch_scc1 KV_t2")
        a.e(f"buffer_load_dword v{tag}, v{zz}, s[84:87], 0 offen {SC}")
        a.e("KV_t2:")
    if "h" in XP: return
    if HALO:
        a.e("s_cmp_lg_u32 s30, 0"); a.e("s_cbranch_scc1 KV_h0"); a.e("s_bfm_b64 exec, 32, 0")
    if KT: a.e("s_bfm_b64 exec, 32, 0")
    for i in range(3): a.e(f"buffer_load_dwordx2 {vr(kr+2*i,2)}, v{ro+i}, s[16:19], 0 offen {NTK}")
    if KT: a.e("s_mov_b64 exec, -1")
    if HALO: a.e("s_mov_b64 exec, -1"); a.e("KV_h0:")

def probe_base(a):
    assert NVOTE <= 64
    a.e("s_and_b32 s42, s2, 7"); a.e("s_lshl_b32 s42, s42, 10"); a.e("s_lshr_b32 s43, s2, 3"); a.e("s_lshl_b32 s43, s43, 14"); a.e("s_add_u32 s42, s42, s43")
    a.e(f"s_add_u32 s42, s42, {LB0 + oSM + 131072}")
PWA = int(os.environ.get("PWA", "1"))
def front_arrive(a, wait, conv=False):
    D = a.lab("fa"); t = 6
    if PWA:
        if conv:
            a.e("s_mov_b64 exec, 0xf"); a.e("s_waitcnt vmcnt(0)"); a.e(f"buffer_atomic_add v{t+1}, v{t}, s[56:59], s45 offen {SC}"); a.e("s_mov_b64 exec, -1")
        elif wait:
            a.e(f"v_mov_b32 v{t}, 1"); a.e(f"v_mov_b32 v{t+1}, {LW+8}"); a.e("s_mov_b64 exec, 1"); a.e("s_waitcnt vmcnt(0)"); a.e(f"ds_add_u32 v{t+1}, v{t}"); a.e("s_mov_b64 exec, -1")
        return
    a.e("s_and_b32 s36, s2, 7"); a.e("s_lshl_b32 s36, s36, 7"); a.e(f"s_add_u32 s36, s36, {F_FRONT}")
    a.e(f"v_mov_b32 v{t}, 1"); a.e(f"v_mov_b32 v{t+1}, {LW+4}"); a.e(f"v_lshlrev_b32 v{t+3}, 10, v1")
    a.e("s_mov_b64 exec, 1")
    if wait: a.e("s_waitcnt vmcnt(0)")
    a.e("s_waitcnt lgkmcnt(0)")
    a.e(f"ds_add_rtn_u32 v{t+2}, v{t+1}, v{t}")
    a.e("s_waitcnt lgkmcnt(0)")
    a.e(f"v_readfirstlane_b32 s54, v{t+2}")
    a.e("s_cmp_lg_u32 s54, 15"); a.e(f"s_cbranch_scc1 {D}")
    a.e("s_mov_b64 exec, 0xffff")
    a.e(f"buffer_atomic_add v{t}, v{t+3}, s[56:59], s36 offen {SC}")
    a.e(f"{D}:"); a.e("s_mov_b64 exec, -1")
XR = int(os.environ.get("XR", "1"))
def roles(a):
    if XR: a.e("s_bfe_u32 s32, s52, 0x30001"); a.e("s_add_u32 s32, s32, s2"); a.e("s_and_b32 s32, s32, 7")
    else: a.e("s_and_b32 s32, s2, 7")
    a.e("s_lshr_b32 s33, s2, 3")
    a.e("s_and_b32 s28, s32, 2"); a.e("s_lshr_b32 s53, s32, 2"); a.e("s_or_b32 s28, s28, s53")
    a.e("s_lshl_b32 s28, s28, 2"); a.e("s_and_b32 s53, s33, 3"); a.e("s_add_u32 s28, s28, s53")
    a.e("s_and_b32 s31, s32, 1"); a.e("s_lshr_b32 s33, s33, 2")
    a.e("s_lshl_b32 s29, s31, 3"); a.e("s_add_u32 s29, s29, s33")
    a.e(f"s_xor_b32 s99, s29, {os.environ.get('G1X', '1')}")
    r_addr(a)
def front_a(a):
    cq, tg, t, pt, kr, vv, w, d, hoff, tag, zz = [KV[k] for k in "cq tg t pt kr vv w d hoff tag zz".split()]
    v = VA(80)
    a.e("s_and_b32 s41, s30, 3"); chan_setup(a, 41)
    a.e("s_lshr_b32 s36, s39, 1"); a.e("s_lshl_b32 s36, s36, 2"); a.e("s_load_dword s98, s[96:97], s36")
    a.e("s_lshl_b32 s36, s39, 12")
    a.e("s_add_u32 s12, s14, s36"); a.e("s_addc_u32 s13, s15, 0"); a.e("s_mov_b32 s14, 4096"); a.e("s_mov_b32 s15, 0x20000")
    a.e("s_lshr_b32 s45, s30, 2"); a.e("s_lshl_b32 s45, s45, 11")
    for it in range(3):
        if it < 2: a.e(f"s_add_u32 s36, s45, {(1024*it - 64) & 0xffffffff:#x}")
        else: a.e(f"s_mov_b32 s36, {4096 - 64}")
        a.e(f"v_add_u32 v{hoff+2*it}, s36, v2"); a.e(f"v_add_u32 v{hoff+2*it+1}, 16, v{hoff+2*it}")
    a.e("s_and_b32 s34, s2, 7"); a.e("s_lshr_b32 s35, s2, 3")
    z = v(4, 4); la = v(); t2 = v(); hw = v()
    for i in range(4): a.e(f"v_mov_b32 v{z+i}, 0")
    a.e(f"v_add_u32 v{hw}, s40, v2")
    a.e(f"ds_write_b128 v{hw}, {vr(z,4)} offset:{UOFF+64*US}")
    a.e(f"s_bfm_b64 exec, {(15*US - 1024)//16}, 0"); a.e(f"ds_write_b128 v{hw}, {vr(z,4)} offset:{UOFF+64*US+1024}"); a.e("s_mov_b64 exec, -1")
    a.e(f"v_lshlrev_b32 v{t}, 2, v{tg}"); a.e(f"v_sub_u32 v{t}, 60, v{t}")
    a.e(f"v_lshrrev_b32 v{t2}, 3, v{t}"); a.e(f"v_bfe_u32 v{la}, v{cq}, 1, 3"); a.e(f"v_xor_b32 v{t2}, v{t2}, v{la}"); a.e(f"v_lshlrev_b32 v{t2}, 4, v{t2}")
    a.e(f"v_and_b32 v{t}, 7, v{t}"); a.e(f"v_lshl_add_u32 v{t2}, v{t}, 1, v{t2}")
    a.e(f"v_lshl_add_u32 v{la}, v{cq}, 9, v{t2}"); a.e(f"v_add_u32 v{la}, {KVS}, v{la}")
    wf = v(8, 2); kf = v(14, 2); vf = v(8, 2); ks = v(8, 2); pr = v(8, 2); o = v(8, 4); tm = v(4, 1)
    a.e("s_waitcnt vmcnt(0)")
    if HALO:
        for i in range(3): a.e(f"buffer_load_dwordx2 {vr(kr+2*i,2)}, v{KV['ro']+i}, s[16:19], 0 offen {NTK}")
        if HALO == 1: a.e("s_waitcnt vmcnt(0)")
    a.e("s_cmp_lg_u32 s30, 4"); a.e("s_cbranch_scc1 KV_t1")
    if "g" not in os.environ.get("XP", "g"): a.e(f"buffer_load_dword v{tag}, v{zz}, s[84:87], 0 offen {SC}")
    a.e("KV_t1:")
    for it in range(3):
        a.e(f"buffer_load_dwordx4 {vr(d+6*it,4)}, v{hoff+2*it}, s[12:15], 0 offen {NTH}")
        a.e(f"buffer_load_dwordx2 {vr(d+6*it+4,2)}, v{hoff+2*it+1}, s[12:15], 0 offen {NTH}")
    if HALO == 2: a.e("s_waitcnt vmcnt(10)")
    mstamp(a)
    if KT:
        for e in range(4): a.e(f"v_mov_b32 v{w+4+e}, v{w+e}")
        for e in range(6): a.e(f"v_mov_b32 v{pr+e}, v{kr+8+e}")
        for e in range(4): a.e(f"v_permlane32_swap_b32 v{w+e}, v{w+4+e}")
        for e in range(6): a.e(f"v_permlane32_swap_b32 v{kr+e}, v{pr+e}")
    for dd in range(2):
        for c in range(2):
            unpack(a, wf + 0 + c, wf + 2 + c, w + 2 * (2 * dd + c)); unpack(a, wf + 4 + c, wf + 6 + c, w + 2 * (2 * dd + c) + 1)
        for i in range(7): unpack(a, kf + 2 * i, kf + 2 * i + 1, kr + 2 * i + dd)
        for i in range(4): unpack(a, vf + 2 * i, vf + 2 * i + 1, vv + 2 * i + dd)
        def rnd(base):
            for i in range(4): a.e(f"v_cvt_pk_bf16_f32 v{tm+i}, v{base+2*i}, v{base+2*i+1}")
            for i in range(4): unpack(a, base + 2 * i, base + 2 * i + 1, tm + i)
        for i in range(4): a.e(f"v_pk_mul_f32 {vr(ks+2*i,2)}, {vr(kf+2*i,2)}, {vr(wf+6,2)}")
        if RND: rnd(ks)
        for j in range(1, 4):
            if not RND:
                for i in range(4): a.e(f"v_pk_fma_f32 {vr(ks+2*i,2)}, {vr(kf+2*(i+j),2)}, {vr(wf+6-2*j,2)}, {vr(ks+2*i,2)}")
                continue
            for i in range(4): a.e(f"v_pk_mul_f32 {vr(pr+2*i,2)}, {vr(kf+2*(i+j),2)}, {vr(wf+6-2*j,2)}")
            rnd(pr)
            for i in range(4): a.e(f"v_pk_add_f32 {vr(ks+2*i,2)}, {vr(ks+2*i,2)}, {vr(pr+2*i,2)}")
            rnd(ks)
        for i in range(4): a.e(f"v_pk_mul_f32 {vr(ks+2*i,2)}, {vr(ks+2*i,2)}, {vr(vf+2*i,2)}")
        for c in range(2):
            e = 2 * dd + c
            a.e(f"v_cvt_pk_bf16_f32 v{o+2*e}, v{ks+6+c}, v{ks+4+c}"); a.e(f"v_cvt_pk_bf16_f32 v{o+2*e+1}, v{ks+2+c}, v{ks+c}")
            a.e(f"ds_write_b64 v{la}, {vr(o+2*e,2)} offset:{e*128}")
    a.e("s_cmp_lg_u32 s30, 4"); a.e("s_cbranch_scc1 HB_2")
    a.e(f"v_add_u32 v{pt}, {LW}, v3"); a.e(f"ds_write_b32 v{pt}, v{zz}")
    a.e("s_mov_b32 s53, 0")
    a.e("s_waitcnt vmcnt(6)")
    a.e("HB_p:")
    a.e(f"v_readfirstlane_b32 s52, v{tag}"); a.e("s_cmp_eq_u32 s52, 0"); a.e("s_cbranch_scc1 HB_r")
    a.e("s_cmp_ge_u32 s53, 400"); a.e("s_cbranch_scc1 HB_q")
    a.e("s_add_u32 s54, s46, 8192"); a.e("s_lshl_b32 s54, s54, 6"); a.e("s_sub_u32 s54, s54, s52"); a.e(f"s_cmp_lt_u32 s54, {12288*64}"); a.e("s_cbranch_scc1 HB_q")
    a.e("HB_r:")
    a.e(f"buffer_load_dword v{tag}, v{zz}, s[84:87], 0 offen {SC}"); a.e("s_waitcnt vmcnt(0)")
    a.e("s_add_u32 s53, s53, 1"); a.e("s_cmp_lt_u32 s53, s61"); a.e("s_cbranch_scc1 HB_p")
    a.e("s_mov_b32 s52, 1"); a.e("s_mov_b32 s61, 0")
    a.e("HB_q:")
    lds_set(a, LW + 12, "s52", pt)
    a.e("HB_2:")
    a.srd(16, 4, 8 * GSTR, off=LB0 + oX3)
    ra = v(); go = v(); ob = v(8, 4)
    a.e(f"v_lshrrev_b32 v{t}, 3, v0"); a.e(f"v_and_b32 v{t2}, 7, v0")
    a.e(f"v_lshlrev_b32 v{go}, 12, v{t}"); a.e(f"v_lshl_add_u32 v{go}, v{t2}, 4, v{go}")
    a.e("s_lshl_b32 s36, s34, 24"); a.e("s_sub_u32 s37, 31, s35"); a.e("s_lshl_b32 s37, s37, 7"); a.e("s_add_u32 s36, s36, s37")
    a.e(f"s_add_u32 s37, s36, {64*4096}")
    a.e(f"v_lshrrev_b32 v{ra}, 3, v{t}"); a.e(f"v_xor_b32 v{ra}, v{ra}, v{t2}"); a.e(f"v_lshlrev_b32 v{ra}, 4, v{ra}"); a.e(f"v_lshl_add_u32 v{ra}, v{t}, 7, v{ra}")
    a.e(f"v_add_u32 v{ra}, {KVS}, v{ra}"); a.e(f"v_mov_b32 v{pt}, {LW+12}")
    a.e("s_waitcnt lgkmcnt(0)"); a.e("s_barrier")
    for i in range(2): a.e(f"ds_read_b128 {vr(ob+4*i,4)}, v{ra} offset:{i*8192}")
    a.e(f"ds_read_b32 v{pt+1}, v{pt}")
    for i in range(2):
        a.e(f"s_waitcnt lgkmcnt({2-i})")
        if "1" in DP: mark(a, ob + 4 * i, 1)
        a.e(f"buffer_store_dwordx4 {vr(ob+4*i,4)}, v{go}, s[16:19], s{36+i} offen {SC}")
    a.e("s_waitcnt lgkmcnt(0)"); a.e(f"v_readfirstlane_b32 s52, v{pt+1}")
    a.e("s_cmp_lg_u32 s30, 0"); a.e("s_cbranch_scc1 KV_ni"); a.e("s_cmp_ge_u32 s35, 16"); a.e("s_cbranch_scc1 KV_ni")
    a.e(f"v_mov_b32 v{t}, s52")
    a.e("s_lshl_b32 s37, s34, 7"); a.e("s_lshl_b32 s53, s35, 10"); a.e("s_add_u32 s37, s37, s53"); a.e(f"s_add_u32 s37, s37, {F_FRONT}")
    a.e("s_mov_b64 exec, 1"); a.e(f"buffer_store_dword v{t}, v{zz}, s[56:59], s37 offen {SC}"); a.e("s_mov_b64 exec, -1")
    a.e("KV_ni:")
    a.e(f"s_cmp_ge_u32 s2, {NVOTE}"); a.e("s_cbranch_scc1 KV_n3"); a.e("s_cmp_lg_u32 s30, 5"); a.e("s_cbranch_scc1 KV_n3")
    probe_base(a)
    a.e(f"v_lshrrev_b32 v{t}, 5, v1"); a.e(f"v_mul_u32_u24 v{t}, {8192 - 512}, v{t}"); a.e(f"v_add_u32 v{t}, v{t}, v2")
    a.e(f"buffer_store_dwordx4 {vr(z,4)}, v{t}, s[56:59], s42 offen {SC}")
    a.e("KV_n3:")
    roles(a)
    def pubk():
        a.e("s_lshl_b32 s36, s34, 5"); a.e("s_add_u32 s36, s36, s35"); a.e("s_lshl_b32 s36, s36, 7"); a.e(f"s_add_u32 s36, s36, {F_KVT}")
        mstamp(a)
        QL = int(os.environ.get("QL", "3"))
        if QL == 2: load_q(a)
        publish(a, 0, 8, pt, off=36, flag=True, wait=4 if QL == 2 else 0)
        if QL == 3: load_q(a)
        mstamp(a)
    HF = int(os.environ.get("HF", "0"))
    if not HF: pubk()
    else: a.e("s_waitcnt vmcnt(2)")
    cc = wf; hw2 = v()
    a.e(f"v_add_u32 v{hw2}, s45, v{hw}")
    for it in range(3):
        D = d + 6 * it; c0 = cc + 12 * it; c1 = c0 + 4; c2 = c0 + 8
        for k in range(4):
            a.e(f"v_alignbit_b32 v{c0+k}, v{D+k+1}, v{D+k}, 16")
            a.e(f"v_mov_b32 v{c1+k}, v{D+k+1}")
            a.e(f"v_alignbit_b32 v{c2+k}, v{D+k+2}, v{D+k+1}, 16")
        if it == 2: a.e("s_mov_b64 exec, 0xf")
        ad, o0 = (hw2, 1024 * it) if it < 2 else (hw, 4096)
        a.e(f"ds_write_b128 v{ad}, {vr(c0,4)} offset:{o0}")
        a.e(f"ds_write_b128 v{ad}, {vr(c1,4)} offset:{HSTR+o0}")
        a.e(f"ds_write_b128 v{ad}, {vr(c2,4)} offset:{2*HSTR+o0}")
        a.e(f"ds_write_b128 v{ad}, {vr(D+2,4)} offset:{3*HSTR+o0}")
        if it == 2: a.e("s_mov_b64 exec, -1")
    if HF: pubk()
    assert v.hi <= 176
    a.e("s_waitcnt lgkmcnt(0)"); a.e("s_barrier")
def load_q(a):
    a.srd(8, 6, 4 * MB)
    for j in range(4): a.e(f"buffer_load_dwordx2 {vr(RXA+2*j,2)}, v{RRO}, s[8:11], 0 offen offset:{128*(j>>1) + 32*(j&1)} {os.environ.get('NTQ', NTH)}")
def chan_setup(a, wsg):
    a.e("s_and_b32 s38, s2, 7"); a.e("s_lshl_b32 s38, s38, 5"); a.e("s_lshr_b32 s39, s2, 3"); a.e("s_add_u32 s38, s38, s39")
    a.e("s_lshl_b32 s39, s38, 2"); a.e(f"s_add_u32 s39, s39, s{wsg}")
    a.e(f"s_mul_i32 s40, s{wsg}, {CHB}")

def touch(a, ka, nbytes, r):
    n = nbytes // 1024 // 512
    a.e(f"s_load_dwordx2 s[48:49], s[0:1], {ka}")
    a.e("s_lshl_b32 s45, s2, 1"); a.e("s_and_b32 s50, s30, 1"); a.e("s_add_u32 s45, s45, s50"); a.e(f"s_mul_i32 s45, s45, {n*1024}")
    a.e(f"s_mov_b32 s50, {nbytes}"); a.e("s_mov_b32 s51, 0x20000")
    a.e("s_waitcnt lgkmcnt(0)")
    for i in range(n):
        if i and i % 4 == 0: a.e("s_add_u32 s45, s45, 4096")
        a.e(f"buffer_load_dwordx4 {vr(r,4)}, v2, s[48:51], s45 offen offset:{(i&3)*1024}")
    return n

def w2_warm(a):
    a.e("s_mov_b64 s[48:49], s[70:71]"); a.e(f"s_mov_b32 s50, {2*MB}"); a.e("s_mov_b32 s51, 0x20000")
    a.e("s_and_b32 s45, s28, 3"); a.e("s_lshl_b32 s45, s45, 1"); a.e("s_and_b32 s46, s30, 1"); a.e("s_add_u32 s45, s45, s46"); a.e("s_lshl_b32 s45, s45, 18")
    a.e("s_lshl_b32 s46, s29, 7"); a.e("s_add_u32 s45, s45, s46"); a.e("v_lshlrev_b32 v245, 11, v1")
    a.e("buffer_load_dword v244, v245, s[48:51], s45 offen"); a.e(f"s_add_u32 s45, s45, {64*2048}"); a.e("buffer_load_dword v246, v245, s[48:51], s45 offen")
def cs_load(a, which, slot):
    w_setup(a, which, pre=False)
    a.e(f"s_mov_b32 s42, {slot}"); a.e("s_mov_b32 s44, s28")
    w_issue(a, which, direct=True)
CSEL, CFR, CAD, CACC, CSO_ = 16, 72, 144, 156, 164
def cs_prep(a, S1, S3):
    a.e(f"v_and_b32 v{CSO_}, 15, v1"); a.e(f"v_mov_b32 v{CSO_+1}, 0x3f803f80")
    for T in range(14):
        a.e(f"v_cmp_eq_u32 vcc, {T}, v{CSO_}")
        for e in range(4): a.e(f"v_cndmask_b32 v{CSEL+4*T+e}, 0, v{CSO_+1}, vcc")
    pos = {}
    for which, slot, r0, halves in ((1, S1, CAD, 1), (3, S3, CAD + 4, 2)):
        c = CFG[which]
        for hf in range(halves):
            a.e(f"s_mov_b32 s35, {hf}")
            nr, pos[which] = w_bases(a, which, r0 + 2 * hf, 35, c["TN16"] // halves, WV + 8, WV + 9)
            a.e("s_and_b32 s35, s30, 1"); a.e(f"s_mul_i32 s35, s35, {32*c['RB']}"); a.e(f"s_add_u32 s35, s35, {slot}")
            for i in range(nr): a.e(f"v_add_u32 v{r0+2*hf+i}, s35, v{r0+2*hf+i}")
    for i in range(8): a.e(f"v_mov_b32 v{CACC+i}, 0")
    a.e(f"v_lshrrev_b32 v{CSO_+2}, 4, v1"); a.e(f"v_lshlrev_b32 v{CSO_+2}, 4, v{CSO_+2}"); a.e(f"v_lshl_add_u32 v{CSO_+2}, v{CSO_}, 6, v{CSO_+2}")
    a.e(f"v_mov_b32 v{CSO_+1}, 0x7f000000")
    for k, n in ((3, 4), (4, 14)):
        a.e(f"v_cmp_gt_u32 vcc, {n}, v{CSO_}"); a.e(f"v_cndmask_b32 v{CSO_+k}, v{CSO_+1}, v{CSO_+2}, vcc")
    return pos
def cs_sum(a, which, pos):
    c = CFG[which]; ntl = c["TN16"]; N = c["LDW"] // 2
    F = CFR + (0 if which == 3 else 56); A = CACC + (0 if which == 3 else 4)
    for T in range(ntl):
        hf, nt = (T // 7, T % 7) if which == 3 else (0, T)
        for h in range(2):
            r, imm = pos[which](nt, 0, h)
            a.e(f"ds_read_b64_tr_b16 {vr(F+4*T+2*h,2)}, v{(CAD + 4 if which == 3 else CAD) + 2*hf + r} offset:{imm}")
    a.srd(20, 4, 32 * N * 4, off=CSP[which])
    a.e("s_lshl_b32 s35, s28, 1"); a.e("s_and_b32 s36, s30, 1"); a.e("s_add_u32 s35, s35, s36"); a.e(f"s_mul_i32 s35, s35, {N*4}")
    a.e(f"s_mul_i32 s36, s29, {ntl*64}"); a.e("s_add_u32 s35, s35, s36")
    a.e("s_waitcnt lgkmcnt(0)")
    for T in range(ntl): a.e(f"v_mfma_f32_16x16x32_bf16 {vr(A,4)}, {vr(F+4*T,4)}, {vr(CSEL+4*T,4)}, {vr(A,4)}")
    a.e(f"buffer_store_dwordx4 {vr(A,4)}, v{CSO_ + (4 if which == 3 else 3)}, s[20:23], s35 offen {SC}")

NOCS3 = int(os.environ.get("NOCS3", "0")); STO = os.environ.get("STOUCH", "")
def stouch(a, which, gran, nw):
    X = a.lab("st"); L = a.lab("sl"); n = 28672 // nw
    a.e("s_cmp_lg_u32 s60, 0"); a.e(f"s_cbranch_scc1 {X}")
    a.e(f"s_mul_i32 s36, s2, 28672"); a.e(f"s_and_b32 s37, s30, {nw-1}"); a.e(f"s_mul_i32 s37, s37, {n}"); a.e("s_add_u32 s36, s36, s37")
    a.e(f"s_add_u32 s34, s{66+2*which}, s36"); a.e(f"s_addc_u32 s35, s{67+2*which}, 0"); a.e("s_mov_b32 s36, 0")
    a.e(f"{L}:")
    for i in range(14): a.e(f"s_load_dword s37, s[34:35], {i*gran}")
    a.e(f"s_add_u32 s34, s34, {14*gran}"); a.e("s_addc_u32 s35, s35, 0"); a.e("s_add_u32 s36, s36, 1"); a.e(f"s_cmp_lt_u32 s36, {n // (14*gran)}"); a.e(f"s_cbranch_scc1 {L}")
    a.e("s_waitcnt lgkmcnt(0)")
    a.e(f"{X}:")
SB = eval(os.environ.get("SB", "(0,0,0)"))
SG = eval(os.environ.get("SG", "(0,0,0,0)"))
def sg(a, n):
    if not n: return
    X = a.lab("st"); L = a.lab("sl")
    a.e("s_cmp_lg_u32 s60, 0"); a.e(f"s_cbranch_scc1 {X}"); a.e("s_mov_b32 s36, 0"); a.e(f"{L}:"); sb(a, 14)
    a.e("s_add_u32 s36, s36, 1"); a.e(f"s_cmp_lt_u32 s36, {n}"); a.e(f"s_cbranch_scc1 {L}"); a.e("s_waitcnt lgkmcnt(0)"); a.e(f"{X}:"); mstamp(a)
def sb_init(a):
    nw = 2 if sum(SG) else 4
    a.e(f"s_mul_i32 s36, s2, 28672"); a.e(f"s_and_b32 s37, s30, {nw-1}"); a.e(f"s_mul_i32 s37, s37, {28672//nw}"); a.e("s_add_u32 s36, s36, s37")
    SW = 66 + 2 * int(os.environ.get("SGW", "3"))
    a.e(f"s_add_u32 s90, s{SW}, s36"); a.e(f"s_addc_u32 s91, s{SW+1}, 0")
def sb(a, n):
    for i in range(n): a.e(f"s_load_dword s101, s[90:91], {i*64}")
    if n: a.e(f"s_add_u32 s90, s90, {n*64}"); a.e("s_addc_u32 s91, s91, 0")
PUTE = int(os.environ.get("PUTE", "1"))
def front_b(a):
    pt, dm = 6, 20
    vd = 12; VG = int(os.environ.get("VG", "0")); VE = int(os.environ.get("VE", "1"))
    def vote():
        a.e(f"s_cmp_ge_u32 s2, {NVOTE}"); a.e("s_cbranch_scc1 FB_np"); a.e("s_cmp_lg_u32 s30, 5"); a.e("s_cbranch_scc1 FB_np")
        probe_base(a); a.e(f"v_mov_b32 v{vd+2}, 0")
        if os.environ.get("SPR", "1") == "1":
            a.e("s_mov_b64 exec, 1"); a.e("s_mov_b32 s46, -1"); a.e("s_mov_b32 s47, -1")
            a.e("s_add_u32 s48, s4, s42"); a.e("s_addc_u32 s49, s5, 0")
            a.e("s_load_dword s101, s[48:49], 384"); a.e("s_waitcnt lgkmcnt(0)"); a.e("s_memtime s[34:35]"); a.e("s_waitcnt lgkmcnt(0)")
            for k in range(2 * NSAMP):
                p_, q_ = (34, 36) if k % 2 == 0 else (36, 34)
                a.e(f"s_load_dword s101, s[48:49], {(k & 1) * 8192 + (k >> 1) * 128}"); a.e("s_waitcnt lgkmcnt(0)"); a.e(f"s_memtime s[{q_}:{q_+1}]"); a.e("s_waitcnt lgkmcnt(0)")
                a.e(f"s_sub_u32 s43, s{q_}, s{p_}"); a.e(f"s_min_u32 s{46+(k&1)}, s{46+(k&1)}, s43")
        else:
            a.e("s_mov_b64 exec, 1"); a.e("s_mov_b32 s46, -1"); a.e("s_mov_b32 s47, -1"); a.e("s_mov_b32 s43, 0")
            a.e("FB_ml:")
            for i in range(2):
                a.e(f"s_add_u32 s45, s42, {i * 8192}")
                a.e("s_memtime s[34:35]"); a.e("s_waitcnt lgkmcnt(0)")
                a.e(f"buffer_load_dword v{vd+1}, v{vd+2}, s[56:59], s45 offen {SC}"); a.e("s_waitcnt vmcnt(0)")
                a.e("s_memtime s[36:37]"); a.e("s_waitcnt lgkmcnt(0)")
                a.e("s_sub_u32 s36, s36, s34"); a.e(f"s_min_u32 s{46+i}, s{46+i}, s36")
            a.e("s_add_u32 s42, s42, 128"); a.e("s_add_u32 s43, s43, 1"); a.e(f"s_cmp_lt_u32 s43, {NSAMP}"); a.e("s_cbranch_scc1 FB_ml")
        a.e("s_cmp_lt_u32 s47, s46"); a.e("s_cselect_b32 s45, 1, 0")
        a.e("s_lshr_b32 s46, s28, 2"); a.e("s_xor_b32 s45, s45, s46"); a.e("s_and_b32 s45, s45, 1"); a.e("s_lshl_b32 s45, s45, 8")
        a.e("s_or_b32 s43, s45, 1"); a.e(f"v_mov_b32 v{vd}, s43")
        a.e(f"buffer_atomic_add v{vd}, v{vd+2}, s[84:87], 0 offen offset:4 sc0 {SC}"); a.e("s_waitcnt vmcnt(0)")
        a.e(f"v_readfirstlane_b32 s36, v{vd}"); a.e("s_add_u32 s36, s36, s43"); a.e("s_and_b32 s37, s36, 255"); a.e(f"s_cmp_lg_u32 s37, {QUO}"); a.e("s_cbranch_scc1 FB_np")
        a.e("s_lshr_b32 s36, s36, 8"); a.e("s_lshl_b32 s36, s36, 1"); a.e("s_add_u32 s36, s36, s52"); a.e("s_bfm_b64 exec, 32, 0")
        a.e(f"v_mov_b32 v{vd}, s36"); a.e(f"v_lshlrev_b32 v{vd+1}, 7, v1"); a.e(f"s_mov_b32 s36, {F_RES}"); a.e(f"buffer_store_dword v{vd}, v{vd+1}, s[56:59], s36 offen {SC}")
        a.e("FB_np:")
        a.e("s_mov_b64 exec, -1")
        if VG:
            a.e("s_cmp_lg_u32 s30, 5"); a.e("s_cbranch_scc1 FB_ng")
            a.e(f"v_mov_b32 v{pt}, {LW+20}"); a.e(f"v_mov_b32 v{pt+1}, 1"); a.e("s_mov_b64 exec, 1"); a.e(f"ds_add_u32 v{pt}, v{pt+1}"); a.e("s_mov_b64 exec, -1")
            a.e("FB_ng:")
    if VE: vote()
    PZE = int(os.environ.get("PZE", "0"))
    if PZE:
        a.srd(20, 4, 32 * MB, off=216 * MB)
        for i in range(4): a.e(f"v_mov_b32 v{216+i}, -1")
        a.e("s_lshl_b32 s45, s2, 2"); a.e("s_and_b32 s50, s30, 3"); a.e("s_add_u32 s45, s45, s50"); a.e(f"s_mul_i32 s45, s45, {PZE*1024}")
        for i in range(PZE):
            a.e(f"buffer_store_dwordx4 v[216:219], v2, s[20:23], s45 offen {SC}"); a.e("s_add_u32 s45, s45, 1024")
    if TAB: tab_load(a)
    TE = int(os.environ.get("TE", "0"))
    if TE:
        a.e("s_cmp_ge_u32 s30, 6"); a.e("s_cbranch_scc1 FB_t1"); touch(a, B_W2, 2 * MB, dm); a.e("s_branch FB_t2"); a.e("FB_t1:"); touch(a, B_W1, 2 * MB, 200); a.e("FB_t2:")
    w_lanes(a)
    a.e("s_cmp_ge_u32 s30, 6"); a.e("s_cbranch_scc1 FB_cs")
    if not VE: vote()
    mstamp(a)
    a.e("s_cmp_lg_u32 s30, 4"); a.e("s_cbranch_scc1 FB_ni")
    a.e(f"v_mov_b32 v{vd}, s52")
    group_off(a, 37, 28); a.e("s_andn2_b32 s37, s37, 0x2000"); a.e("s_lshl_b32 s53, s29, 7"); a.e("s_add_u32 s37, s37, s53"); a.e(f"s_add_u32 s37, s37, {oSM}")
    a.e(f"v_and_b32 v{vd+1}, 1, v1"); a.e(f"v_lshlrev_b32 v{vd+1}, 13, v{vd+1}"); a.e(f"v_lshrrev_b32 v{vd+2}, 1, v1"); a.e(f"v_lshl_add_u32 v{vd+1}, v{vd+2}, 22, v{vd+1}")
    a.e("s_mov_b64 exec, 0xf"); a.e(f"buffer_store_dword v{vd}, v{vd+1}, s[56:59], s37 offen {SC}")
    a.e("s_cmp_lg_u32 s28, 0"); a.e("s_cbranch_scc1 FB_n2")
    a.e(f"s_add_u32 s37, s53, {F_CS}"); a.e("s_mov_b64 exec, 1"); a.e(f"buffer_store_dword v{vd}, v{vd+1}, s[56:59], s37 offen {SC}")
    a.e("FB_n2:")
    a.e("s_mov_b64 exec, -1")
    a.e("FB_ni:")
    UG = (LW + 20, 4 + VG) if os.environ.get("UG", "1") == "1" else (LW + 16, 1)
    lds_spin(a, *UG, pt, nap=2)
    mstamp(a)
    if TLBW:
        a.e("s_cmp_lg_u32 s30, 5"); a.e("s_cbranch_scc1 FB_nt")
        a.e(f"v_and_b32 v{vd}, 7, v1"); a.e(f"v_lshlrev_b32 v{vd}, 24, v{vd}"); a.e(f"v_lshrrev_b32 v{vd+1}, 3, v1"); a.e(f"v_lshl_add_u32 v{vd}, v{vd+1}, 22, v{vd}")
        a.e("s_lshl_b32 s36, s2, 7"); a.e(f"s_add_u32 s36, s36, {LB0 + 2 * MB - 65536}")
        a.e(f"s_bfm_b64 exec, {8 * TLBW}, 0"); a.e(f"buffer_load_dword v{dm+4}, v{vd}, s[56:59], s36 offen {SC}"); a.e("s_mov_b64 exec, -1")
        a.e("FB_nt:")
    if os.environ.get("W2T", "1") == "2": lds_spin(a, LW + 24, 2, pt, nap=4)
    if os.environ.get("W2T", "1") == "3":
        w_srd(a, 2); a.e("s_lshl_b32 s39, s28, 1"); a.e("s_and_b32 s36, s30, 1"); a.e("s_add_u32 s39, s39, s36"); a.e("s_lshl_b32 s39, s39, 16"); a.e("s_lshl_b32 s36, s29, 7"); a.e("s_add_u32 s39, s39, s36")
        for i in range(4): a.e(f"buffer_load_dwordx4 {vr(dm,4)}, v{WVB[2]}, s[12:15], s39 offen"); a.e("s_add_u32 s39, s39, 16384")
    elif os.environ.get("W2T", "1") != "0" and not TE: touch(a, B_W2, 2 * MB, dm)
    QL = int(os.environ.get("QL", "3"))
    if not QL: load_q(a)
    if W4POS == "F": lds_spin(a, LW + 24, 2, pt, nap=4); a.e("s_waitcnt vmcnt(0)")
    if W4POS in ("F", "F0"): touch(a, B_W4, 7 * MB, dm)
    PZF = int(os.environ.get("PZF", "0"))
    if PZF:
        a.srd(20, 4, 32 * MB, off=216 * MB)
        for i in range(4): a.e(f"v_mov_b32 v{216+i}, -1")
        a.e("s_lshl_b32 s45, s2, 1"); a.e("s_and_b32 s50, s30, 1"); a.e("s_add_u32 s45, s45, s50"); a.e(f"s_mul_i32 s45, s45, {PZF*1024}")
        for i in range(PZF):
            a.e(f"buffer_store_dwordx4 v[216:219], v2, s[20:23], s45 offen {SC}"); a.e("s_add_u32 s45, s45, 1024")
            if os.environ.get("PZP"): a.e(f"s_waitcnt vmcnt({os.environ['PZP']})")
    front_arrive(a, True)
    if TAB: tab_make(a, 0)
    PKW = int(os.environ.get("PKW", "2")); PKP = int(os.environ.get("PKP", "8"))
    W1P = int(os.environ.get("W1P", "8")); FO = os.environ.get("FO", "1pd"); FO2 = os.environ.get("FO2", "1pd")
    R1 = [176, 188, 192] + [200 + 4 * i for i in range(7)] + [16 + 4 * i for i in range(8)]
    def w1_regs(a):
        w_srd(a, 1)
        a.e("s_and_b32 s35, s30, 3"); a.e(f"s_mul_i32 s35, s35, {18*16384}"); a.e("s_lshl_b32 s39, s99, 7"); a.e("s_add_u32 s39, s39, s35")
        for q in range(18):
            a.e(f"buffer_load_dwordx4 {vr(R1[q],4)}, v{WVB[1]}, s[12:15], s39 offen"); a.e("s_add_u32 s39, s39, 16384")
            if q % 4 == 3: sb(a, SB[1])
            if PKP and q % 4 == 3: a.e(f"s_waitcnt vmcnt({PKP})")
        if QL == 1: load_q(a)
    def w1_put(a):
        a.e("s_and_b32 s35, s30, 3"); a.e(f"s_mul_i32 s35, s35, {18*1024}"); a.e("v_add_u32 v8, s35, v2")
        if PUTE: lds_spin(a, LW + 20, 8 + VG, pt, nap=2)
        else: lds_spin(a, LW + 4, 16, pt, nap=2)
        PV0 = int(os.environ.get("PV0", "1")); assert not PV0 or (FO[0] == "1" and FO2[0] == "1" and "p" in FO and "p" in FO2)
        a.e(f"s_waitcnt vmcnt({32 - PD if PV0 else 0})")
        for q in range(18): a.e(f"ds_write_b128 v8, {vr(R1[q],4)} offset:{CFG[1]['WB'] + 1024*q}")
        a.e("s_waitcnt lgkmcnt(0)")
    def w1_dma(a, js):
        lds_spin(a, LW + 24, 4, pt, nap=3)
        w_setup(a, 1, pre=False)
        for j in js: w1_slots(a, (j,), pace=W1P); ypause(a)
    DS_ = int(os.environ.get("DSPL", "12"))
    if PKW: lds_spin(a, LW + 24, PKW, pt, nap=4)
    for i_, ch in enumerate(FO):
        if ch == "d": w1_dma(a, range(9, DS_))
        else: call(a, {"1": w1_regs, "p": park}[ch])
    park_rest(a, False)
    mstamp(a)
    call(a, w1_put)
    a.e("s_branch FR_end")
    a.e("FB_cs:")
    S1, S3 = KVS - CFG[1]["WB"], KVS + 8192 - CFG[3]["WB"]
    pos = cs_prep(a, S1, S3)
    lds_spin(a, *UG, pt, nap=2)
    mstamp(a)
    if not QL: load_q(a)
    cs_load(a, 1, S1)
    if not NOCS3: cs_load(a, 3, S3)
    a.e(f"s_waitcnt vmcnt({0 if NOCS3 else 14})")
    if CSPRIO: a.e(f"s_setprio {CSPRIO}")
    cs_sum(a, 1, pos)
    a.e("s_waitcnt vmcnt(1)")
    a.e(f"v_mov_b32 v{pt}, {LW+24}"); a.e(f"v_mov_b32 v{pt+1}, 1")
    a.e("s_mov_b64 exec, 1"); a.e(f"ds_add_u32 v{pt}, v{pt+1}"); a.e("s_mov_b64 exec, -1")
    mstamp(a)
    if not NOCS3: cs_sum(a, 3, pos)
    front_arrive(a, False)
    if TAB: tab_make(a, 1)
    a.e(f"v_mov_b32 v{pt}, {LW+24}"); a.e(f"v_mov_b32 v{pt+1}, 1")
    a.e("s_mov_b64 exec, 1"); a.e(f"ds_add_u32 v{pt}, v{pt+1}"); a.e("s_mov_b64 exec, -1")
    mstamp(a)
    a.e("s_setprio 0")
    assert CFG[1]["WB"] + 9 * 8192 == KVS
    for ch in FO2:
        if ch == "d": w1_dma(a, range(DS_, 16))
        else: call(a, {"1": w1_regs, "p": park}[ch])
    park_rest(a, False)
    mstamp(a)
    call(a, w1_put)

PG = int(os.environ.get("PG", "0"))
def front_conv(a):
    v = VA(6); lane = 1; l16 = 2
    t = v(); pt = v(4, 2)
    chan_setup(a, 30)
    a.e("s_and_b32 s36, s39, 127"); a.e("s_lshl_b32 s36, s36, 12"); a.e("s_lshr_b32 s37, s39, 7"); a.e("s_lshl_b32 s37, s37, 24")
    a.e("s_add_u32 s36, s36, s37"); a.e(f"s_add_u32 s36, s36, {LB0 + oX3}")
    a.e("s_add_u32 s16, s4, s36"); a.e("s_addc_u32 s17, s5, 0"); a.e("s_mov_b32 s18, 4096"); a.e("s_mov_b32 s19, 0x20000")
    uw = v(); u = v(16, 4)
    a.e(f"v_lshrrev_b32 v{t}, 2, v{lane}"); a.e(f"v_mul_u32_u24 v{uw}, {US}, v{t}"); a.e(f"v_and_b32 v{t}, 3, v{lane}")
    a.e(f"v_lshl_add_u32 v{uw}, v{t}, 4, v{uw}"); a.e(f"v_add_u32 v{uw}, s40, v{uw}")
    aa = v(); ba = v(); ua = v(); J = v(); G = v()
    a.e(f"v_and_b32 v{J}, 15, v{lane}"); a.e(f"v_lshrrev_b32 v{G}, 4, v{lane}")
    a.e(f"v_and_b32 v{t}, 3, v{J}"); a.e(f"v_mul_u32_u24 v{aa}, {HSTR}, v{t}")
    a.e(f"v_lshl_add_u32 v{aa}, v{G}, 4, v{aa}"); a.e(f"v_lshrrev_b32 v{t}, 2, v{J}"); a.e(f"v_lshl_add_u32 v{aa}, v{t}, 3, v{aa}")
    a.e(f"v_add_u32 v{aa}, s40, v{aa}")
    a.e(f"v_sub_u32 v{t}, 15, v{J}"); a.e(f"v_mul_u32_u24 v{ua}, {US}, v{t}"); a.e(f"v_add_u32 v{ua}, s40, v{ua}")
    a.e(f"v_lshl_add_u32 v{ba}, v{G}, 4, v{ua}")
    acc = v(32, 4)
    fa = v(64, 4); fb = v(32, 4)
    def rdA(p, o):
        return [f"ds_read_b64 {vr(fa+32*p+8*s_+4*mt+2*h,2)}, v{aa} offset:{64*(o+16*s_) + 32*mt + 8*h}" for s_ in range(4) for mt in range(2) for h in range(2)]
    def rdB(p, o):
        return [f"ds_read_b128 {vr(fb+16*p+4*k,4)}, v{ba} offset:{UOFF + (48 - 16*k + o)*US}" for k in range(4)]
    for x in rdA(0, 0): a.e(x)
    dm_ = fb + 16; Dv = pt + 2
    a.e("s_bitcmp1_b32 s39, 0"); a.e("s_cselect_b32 s36, 0, 16"); a.e("s_lshl_b32 s41, s98, s36"); a.e("s_and_b32 s41, s41, 0xffff0000"); a.e("s_lshr_b32 s36, s41, 16")
    a.e(f"v_lshl_add_u32 v{t}, v{G}, 3, v{J}"); a.e(f"v_sub_u32 v{t}, 31, v{t}")
    a.e(f"v_mov_b32 v{Dv}, s36"); a.e(f"v_mov_b32 v{Dv+1}, s41"); a.e(f"v_and_b32 v{pt}, 1, v{t}"); a.e(f"v_cmp_eq_u32 vcc, 1, v{pt}")
    a.e(f"v_cndmask_b32 v{Dv}, v{Dv}, v{Dv+1}, vcc"); a.e(f"v_ashrrev_i32 v{t}, 1, v{t}")
    for mt in range(2):
        for d_ in range(4): a.e(f"v_cmp_eq_u32 vcc, {8*mt+d_}, v{t}"); a.e(f"v_cndmask_b32 v{dm_+4*mt+d_}, 0, v{Dv}, vcc")
    a.srd(12, 4, 8 * GSTR - oHS, off=LB0 + oHS)
    ta = v(); go = v()
    a.e(f"v_bfe_u32 v{t}, v{lane}, 2, 2"); a.e(f"v_mul_u32_u24 v{ta}, {CHB+64}, v{t}")
    a.e(f"v_lshrrev_b32 v{t}, 1, v{G}"); a.e(f"v_mul_u32_u24 v{t}, 72, v{t}"); a.e(f"v_add_u32 v{ta}, v{ta}, v{t}")
    a.e(f"v_and_b32 v{t}, 1, v{G}"); a.e(f"v_lshl_add_u32 v{ta}, v{t}, 5, v{ta}")
    a.e(f"v_and_b32 v{t}, 3, v{lane}"); a.e(f"v_lshl_add_u32 v{ta}, v{t}, 3, v{ta}")
    a.e(f"s_mul_i32 s36, s30, {16*72}"); a.e(f"v_add_u32 v{ta}, s36, v{ta}")
    a.e(f"v_lshlrev_b32 v{go}, 3, v{lane}")
    a.e("s_lshr_b32 s44, s38, 4"); a.e("s_lshl_b32 s44, s44, 14"); a.e("s_and_b32 s37, s38, 15"); a.e("s_lshl_b32 s37, s37, 9"); a.e("s_add_u32 s44, s44, s37")
    a.e("s_and_b32 s37, s30, 1"); a.e("s_lshl_b32 s37, s37, 13"); a.e("s_add_u32 s44, s44, s37")
    a.e("s_lshr_b32 s37, s30, 1"); a.e("s_lshl_b32 s37, s37, 26"); a.e("s_add_u32 s44, s44, s37")
    ev = ua; a.e(f"v_not_b32 v{ev}, v{lane}"); a.e(f"v_and_b32 v{ev}, 1, v{ev}")
    ya = v()
    a.e(f"s_mul_i32 s36, s30, {CHB+64}")
    a.e(f"v_mul_u32_u24 v{ya}, 72, v{J}"); a.e(f"v_lshl_add_u32 v{ya}, v{G}, 3, v{ya}"); a.e(f"v_add_u32 v{ya}, s36, v{ya}")
    a.e(f"v_mov_b32 v{J}, 0"); a.e("s_and_b32 s45, s2, 31"); a.e("s_lshl_b32 s45, s45, 7"); a.e(f"s_add_u32 s45, s45, {F_RES}")
    a.e("s_cmp_lg_u32 s30, 0"); a.e("s_cbranch_scc1 CV_w")
    a.e("s_and_b32 s36, s2, 7"); a.e("s_lshl_b32 s36, s36, 12"); a.e(f"s_add_u32 s36, s36, {F_KVT}")
    a.e(f"v_lshlrev_b32 v{pt+1}, 7, v{lane}"); a.e(f"v_add_u32 v{pt+1}, s36, v{pt+1}")
    poll_core(a, pt, [pt + 1], 0xffffffff)
    lds_set(a, LW + 16, 1, pt)
    a.e("CV_w:")
    lds_spin(a, LW + 16, 1, pt)
    mstamp(a)
    for it in range(4): a.e(f"buffer_load_dwordx4 {vr(u+4*it,4)}, v{l16}, s[16:19], 0 offen offset:{1024*it} {os.environ.get('UF', SC + ' nt')}")
    QL = int(os.environ.get("QL", "3"))
    if not QL: load_q(a)
    for it in range(4):
        a.e(f"s_waitcnt vmcnt({(3 if QL else 7)-it})")
        a.e(f"ds_write_b128 v{uw}, {vr(u+4*it,4)} offset:{UOFF + 16*US*it}")
    a.e(f"v_mov_b32 v{pt}, {LW+20}"); a.e(f"v_mov_b32 v{pt+1}, 1")
    a.e("s_mov_b64 exec, 1"); a.e(f"ds_add_u32 v{pt}, v{pt+1}"); a.e("s_mov_b64 exec, -1")
    a.e("s_waitcnt lgkmcnt(0)")
    mstamp(a)
    for x in rdB(0, 0): a.e(x)
    for c_ in range(4):
        a.e(f"s_waitcnt lgkmcnt({3-c_})")
        for mt in range(2): a.e(f"v_mfma_f32_16x16x32_bf16 {vr(acc+8*c_+4*mt,4)}, {vr(dm_+4*mt,4)}, {vr(fb+4*c_,4)}, 0")
    def step(p, nxt, tail, piped=False):
        a.e(f"s_waitcnt lgkmcnt({10 if piped else 0})")
        mf = [(c_, s_, mt) for s_ in range(4) for mt in range(2) for c_ in range(s_, 4)]
        for i, (c_, s_, mt) in enumerate(mf):
            A = acc + 8 * c_ + 4 * mt
            a.e(f"v_mfma_f32_16x16x32_bf16 {vr(A,4)}, {vr(fa+32*p+8*s_+4*mt,4)}, {vr(fb+16*p+4*(c_-s_),4)}, {vr(A,4)}")
            if nxt: a.e(nxt.pop(0))
            if piped and i == 9: a.e("s_waitcnt lgkmcnt(10)")
            for x in tail.pop(i, []) if tail else []: a.e(x)
        assert not nxt and not tail
    a.e("s_mov_b32 s43, 0")
    NU = int(os.environ.get("NU", "4")); HP = int(os.environ.get("HP", "0")); VT = int(os.environ.get("VT", "5"))
    vt = {1: [f"s_cmp_eq_u32 s43, {VT}"], 2: ["s_cselect_b64 exec, 1, 0", f"buffer_load_dword v{uw}, v{J}, s[56:59], s45 offen {SC}", "s_mov_b64 exec, -1"]}
    if NU:
        a.e("CV_r:")
        for p in range(2):
            rd = rdB(1 - p, p + 1) + rdA(1 - p, p + 1)
            step(p, rd[:HP], dict(vt) if p == 0 and VT < NU else [])
            for x in rd[HP:]: a.e(x)
        for x in [f"v_add_u32 v{aa}, 128, v{aa}", f"v_add_u32 v{ba}, {2*US}, v{ba}", "s_add_u32 s43, s43, 1", f"s_cmp_lt_u32 s43, {NU}"]: a.e(x)
        a.e("s_cbranch_scc1 CV_r")
    if QL == 1: load_q(a)
    a.e("CV_l:")
    step(0, rdB(1, 1) + rdA(1, 1), dict(vt) if VT >= NU else [], True)
    step(1, rdB(0, 2) + rdA(0, 2), {19: [f"v_add_u32 v{aa}, 128, v{aa}"], 5: [f"v_add_u32 v{ba}, {2*US}, v{ba}"], 6: ["s_add_u32 s43, s43, 1"], 7: ["s_cmp_lt_u32 s43, 8"]}, True)
    a.e("s_cbranch_scc1 CV_l")
    mstamp(a)
    a.e("s_waitcnt lgkmcnt(0)")
    for c_ in range(4):
        for mt in range(2):
            A = acc + 8 * c_ + 4 * mt; O = u + 2 * (c_ * 2 + mt)
            a.e(f"v_cvt_pk_bf16_f32 v{O}, v{A}, v{A+1}"); a.e(f"v_cvt_pk_bf16_f32 v{O+1}, v{A+2}, v{A+3}")
            a.e(f"ds_write_b64 v{ya}, {vr(O,2)} offset:{c_*16*72 + mt*32}")
    a.e("s_mov_b32 s53, 0"); a.e("s_waitcnt vmcnt(0)")
    a.e("CV_v:")
    a.e(f"v_readfirstlane_b32 s94, v{uw}"); a.e("s_sub_u32 s94, s94, s52"); a.e("s_and_b32 s37, s94, 0xfffffe01"); a.e("s_cbranch_scc0 CV_k")
    a.e(f"buffer_load_dword v{uw}, v{J}, s[56:59], s45 offen {SC}"); a.e("s_waitcnt vmcnt(0)")
    a.e("s_add_u32 s53, s53, 1"); a.e("s_cmp_lt_u32 s53, s61"); a.e("s_cbranch_scc1 CV_v"); a.e("s_mov_b32 s61, 0"); a.e("s_mov_b32 s94, 0")
    a.e("CV_k:")
    a.e("s_lshr_b32 s94, s94, 1"); a.e("s_add_u32 s37, s94, 65536"); a.e(f"v_mov_b32 v{pt}, {LW+28}"); a.e(f"v_mov_b32 v{pt+1}, s37"); a.e(f"ds_write_b32 v{pt}, v{pt+1}")
    a.e(f"s_cmp_gt_u32 s94, {QUO // 2}"); a.e("s_cselect_b32 s37, 0x2000, 0"); a.e("s_xor_b32 s44, s44, s37")
    if PWA:
        a.e("s_and_b32 s45, s44, 0x2000"); a.e(f"s_xor_b32 s45, s45, {(((F_FRONT >> 21) ^ (F_FRONT >> 13)) & 1) << 13}"); a.e("s_lshr_b32 s37, s30, 1"); a.e("s_lshl_b32 s37, s37, 12"); a.e("s_add_u32 s45, s45, s37")
        a.e("s_and_b32 s37, s2, 7"); a.e("s_lshl_b32 s37, s37, 7"); a.e("s_add_u32 s45, s45, s37"); a.e(f"s_add_u32 s45, s45, {F_FRONT}")
        assert t == 6; a.e("v_lshlrev_b32 v6, 10, v1"); a.e("v_mov_b32 v7, 1")
    lbar(a, 1, pt)
    for i in range(8): a.e(f"ds_read_b64_tr_b16 {vr(fa+32+2*i,2)}, v{ta} offset:{144*i}")
    for i in range(8):
        a.e(f"s_waitcnt lgkmcnt({7-i})")
        a.e(f"v_or_b32 v{fa+32+2*i}, v{ev}, v{fa+32+2*i}")
        a.e(f"buffer_store_dwordx2 {vr(fa+32+2*i,2)}, v{go}, s[12:15], s44 offen {SC}")
        a.e(f"s_add_u32 s44, s44, {GSTR - 262144 if i & 1 else 262144}")
    if PUTE:
        a.e(f"v_mov_b32 v{pt}, {LW+20}"); a.e(f"v_mov_b32 v{pt+1}, 1")
        a.e("s_mov_b64 exec, 1"); a.e(f"ds_add_u32 v{pt}, v{pt+1}"); a.e("s_mov_b64 exec, -1")
    assert v.hi <= 176

PK = 48; W3S = 176
RFO, RYO, RRO, RI, RXA, RXB, RYY, RT = 196, 197, 198, 199, 180, 188, 230, 228
def r_addr(a, full=True):
    t, t2, I, fo, ro, yo = RT, RT + 1, RI, RFO, RRO, RYO
    a.e(f"v_and_b32 v{I}, 7, v0")
    a.e(f"v_lshrrev_b32 v{t}, 6, v0"); a.e(f"v_lshlrev_b32 v{t}, 4, v{t}"); a.e(f"v_bfe_u32 v{t2}, v0, 3, 3"); a.e(f"v_add_u32 v{t}, v{t}, v{t2}")
    a.e("s_lshr_b32 s78, s29, 1"); a.e("s_lshl_b32 s78, s78, 16"); a.e("s_and_b32 s79, s29, 1"); a.e("s_lshl_b32 s79, s79, 7"); a.e("s_add_u32 s78, s78, s79")
    a.e("s_lshr_b32 s79, s30, 1"); a.e("s_lshl_b32 s79, s79, 13"); a.e("s_add_u32 s78, s78, s79")
    a.e(f"v_lshlrev_b32 v{fo}, 8, v{t}"); a.e(f"v_lshl_add_u32 v{fo}, v{I}, 4, v{fo}"); a.e(f"v_add_u32 v{fo}, s78, v{fo}")
    if not full: return
    a.e("s_lshl_b32 s78, s28, 7"); a.e("s_lshl_b32 s79, s29, 3"); a.e("s_add_u32 s78, s78, s79")
    a.e(f"v_add_u32 v{yo}, s78, v{I}"); a.e(f"v_lshlrev_b32 v{ro}, 11, v{yo}")
    a.e(f"v_lshrrev_b32 v{t2}, 2, v{t}"); a.e(f"v_lshlrev_b32 v{t2}, 3, v{t2}"); a.e(f"v_and_b32 v{t}, 3, v{t}"); a.e(f"v_add_u32 v{t}, v{t}, v{t2}")
    a.e(f"v_lshl_add_u32 v{ro}, v{t}, 3, v{ro}")
    a.e(f"v_and_b32 v{yo}, 63, v{yo}"); a.e(f"v_lshlrev_b32 v{yo}, 3, v{yo}"); a.e(f"v_and_b32 v{t2}, 15, v{t}"); a.e(f"v_lshl_add_u32 v{yo}, v{t2}, 9, v{yo}")
    a.e(f"v_lshrrev_b32 v{t2}, 4, v{t}"); a.e(f"v_lshl_add_u32 v{yo}, v{t2}, 14, v{yo}")
    a.e("s_lshr_b32 s78, s28, 3"); a.e("s_lshl_b32 s78, s78, 2"); a.e("s_and_b32 s79, s28, 3"); a.e("s_add_u32 s78, s78, s79"); a.e("s_lshl_b32 s78, s78, 24")
    a.e("s_and_b32 s79, s28, 4"); a.e("s_lshl_b32 s79, s79, 11"); a.e("s_add_u32 s78, s78, s79")
    a.e("s_lshl_b32 s79, s31, 18"); a.e("s_add_u32 s78, s78, s79"); a.e(f"v_add_u32 v{yo}, s78, v{yo}")
def load_y(a, skip_last=False):
    a.srd(80, 4, 8 * GSTR - oHS, off=LB0 + oHS)
    for j in range(2):
        for hh in range(2):
            a.e(f"s_mov_b32 s78, {j*16384 + hh*2048}")
            a.e(f"buffer_load_dwordx2 {vr(RYY+4*j+2*hh,2)}, v{RYO}, s[80:83], s78 offen {os.environ.get('YF', SC)}")
def r_pre(a, l0=False):
    r_addr(a, False)
    lsrd(a, 84, oX3, XSZ); lsrd(a, 88, oX1P, XSZ)
    if l0: a.e("s_cmp_eq_u32 s60, 0"); a.e("s_cselect_b64 exec, -1, 0")
    for j in range(2):
        a.e(f"buffer_load_dwordx4 {vr(RXA+4*j,4)}, v{RFO}, s[84:87], 0 offen offset:{2048*j} {SC}")
        a.e(f"buffer_load_dwordx4 {vr(RXB+4*j,4)}, v{RFO}, s[88:91], 0 offen offset:{2048*j} {SC}")
    if l0: a.e("s_mov_b64 exec, -1")
def r_pre0(a): r_pre(a, True)
def r_pre1(a):
    X = a.lab("rp"); a.e("s_cmp_lg_u32 s60, 0"); a.e(f"s_cbranch_scc1 {X}"); call(a, r_pre); a.e(f"{X}:")

def r_stage(a, final):
    v = VA(6)
    t = v(); t2 = v(); I = RI; fo = RFO; ro = RRO; pt = v(4, 2)
    xa = RXA; xb = RXB; yy = RYY; x = 206; yf = 222; w = v(16, 4); tmp = v()
    pre = final == "pre"
    S = v(2, 2); pp = v(2, 2); qq = v(2, 2); st = w; mean = v(2, 2); rs = mean + 1; var = v(); sw = v(); sr = v()
    def part(src, n):
        a.e(f"v_pk_add_f32 {vr(pp,2)}, {vr(src,2)}, {vr(src+2,2)}"); a.e(f"v_pk_mul_f32 {vr(qq,2)}, {vr(src,2)}, {vr(src,2)}")
        for i in range(1, 8):
            if i > 1: a.e(f"v_pk_add_f32 {vr(pp,2)}, {vr(pp,2)}, {vr(src+2*i,2)}")
            a.e(f"v_pk_fma_f32 {vr(qq,2)}, {vr(src+2*i,2)}, {vr(src+2*i,2)}, {vr(qq,2)}")
        a.e(f"v_add_f32 v{S}, v{pp}, v{pp+1}"); a.e(f"v_add_f32 v{S+1}, v{qq}, v{qq+1}")
        for k in range(2): a.e(f"v_add_f32_dpp v{S+k}, v{S+k}, v{S+k} row_ror:8 row_mask:0xf bank_mask:0xf")
        for op in ("v_permlane16_swap_b32", "v_permlane32_swap_b32"):
            for k in range(2): a.e(f"v_mov_b32 v{pp+k}, v{S+k}")
            for k in range(2): a.e(f"{op} v{S+k}, v{pp+k}")
            a.e(f"v_pk_add_f32 {vr(S,2)}, {vr(S,2)}, {vr(pp,2)}")
        a.e(f"ds_write_b64 v{sw}, {vr(S,2)} offset:{n*512}")
    def comb(n):
        for k in range(4): a.e(f"ds_read_b128 {vr(st+4*k,4)}, v{sr} offset:{n*512+16*k}")
        a.e("s_waitcnt lgkmcnt(0)")
        for k in range(4): a.e(f"v_pk_add_f32 {vr(st+4*k,2)}, {vr(st+4*k,2)}, {vr(st+4*k+2,2)}")
        a.e(f"v_pk_add_f32 {vr(st,2)}, {vr(st,2)}, {vr(st+4,2)}"); a.e(f"v_pk_add_f32 {vr(st+8,2)}, {vr(st+8,2)}, {vr(st+12,2)}")
        a.e(f"v_pk_add_f32 {vr(st,2)}, {vr(st,2)}, {vr(st+8,2)}")
        a.e(f"v_mul_f32 v{mean}, {f32(1/1024)}, v{st}"); a.e(f"v_mul_f32 v{var}, {f32(1/1024)}, v{st+1}")
        a.e(f"v_fma_f32 v{var}, -v{mean}, v{mean}, v{var}"); a.e(f"v_max_f32 v{var}, 0, v{var}")
    SUBM = f"{vr(mean,2)} op_sel_hi:[1,0] neg_lo:[0,1] neg_hi:[0,1]"; MULR = f"{vr(mean,2)} op_sel:[0,1] op_sel_hi:[1,1]"
    if pre: a.e("s_waitcnt lgkmcnt(0)")
    if final is not True:
        a.e(f"v_lshlrev_b32 v{sr}, 6, v{I}"); a.e(f"v_add_u32 v{sr}, {AUX+2048}, v{sr}")
        a.e(f"s_lshl_b32 s35, s30, 3"); a.e(f"v_add_u32 v{sw}, s35, v{sr}")
    if pre:
        a.e("s_waitcnt vmcnt(0)")
        for i in range(8): unpack(a, x + 2 * i, x + 2 * i + 1, xa + i)
        part(x, 0)
        a.e("s_waitcnt lgkmcnt(0)"); a.e("s_barrier")
        return
    if not final:
        a.e(f"s_cmp_eq_u32 s60, 0"); a.e(f"s_cbranch_scc1 R_l0")
    else:
        a.e(f"s_load_dwordx2 s[6:7], s[0:1], {D_OUT}")
    lsrd(a, 8, oP0, XSZ, prev=True); lsrd(a, 12, oP1, XSZ, prev=True)
    lsrd(a, 20, oX3, XSZ); a.e("s_mov_b32 s78, 0x3f80"); a.e("s_mov_b32 s79, 0x3f800000")
    if "r" not in DP: a.e("s_waitcnt vmcnt(0)")
    for i in range(8):
        if not final: unpack(a, yf + 2 * i, yf + 2 * i + 1, yy + i)
        unpack(a, x + 2 * i, x + 2 * i + 1, xa + i); unpack(a, w + 2 * i, w + 2 * i + 1, xb + i)
        a.e(f"v_pk_add_f32 {vr(x+2*i,2)}, {vr(x+2*i,2)}, {vr(w+2*i,2)}")
    lds_ = [f"buffer_load_dwordx4 {vr(r+4*j,4)}, v{fo}, s[{q}:{q+3}], 0 offen offset:{2048*j} {os.environ.get('RF', SC)}" for j in range(2) for r, q in ((xa, 8), (xb, 12))]
    if "r" in DP: data_poll(a, lds_, (xa, xa + 4, xb, xb + 4), t, int(os.environ.get("RNAP", "4")), int(os.environ.get("RFIRST", "24")), int(os.environ.get("RCAN", "0"))); mstamp(a)
    else:
        poll(a, ST_G4, pt, prev=True)
        mstamp(a)
        for x_ in lds_: a.e(x_)
    for i in range(8):
        if i % 4 == 0 and "r" not in DP: a.e(f"s_waitcnt vmcnt({2 - i // 2})")
        u = w + 4 * (i & 3)
        if DOT:
            if i == 0:
                for r_ in (xa, xb):
                    for k in range(16): a.e(f"v_dot2_f32_bf16 v{x+k}, v{r_+k//2}, s{78+(k&1)}, v{x+k}")
                a.e("s_nop 2")
            continue
        unpack(a, u, u + 1, xa + i); unpack(a, u + 2, u + 3, xb + i)
        a.e(f"v_pk_add_f32 {vr(u,2)}, {vr(u,2)}, {vr(u+2,2)}")
        a.e(f"v_pk_add_f32 {vr(x+2*i,2)}, {vr(x+2*i,2)}, {vr(u,2)}")
        if final: a.e(f"v_cvt_pk_bf16_f32 v{xa+i}, v{x+2*i}, v{x+2*i+1}")
        else: round2(a, x + 2 * i, x + 2 * i + 1, tmp)
    if final:
        a.e("s_waitcnt lgkmcnt(0)")
        a.srd(20, 6, 4 * MB)
        OS = os.environ.get("OS", "sc1")
        if os.environ.get("OWIDE", "1") == "1":
            a.e(f"v_bfe_u32 v{t}, v1, 3, 1"); a.e(f"v_cmp_eq_u32 vcc, 1, v{t}")
            for j in range(2):
                lo, hi = xa + 4 * j, xa + 4 * j + 2
                for e in range(2):
                    a.e(f"v_cndmask_b32 v{x+e}, v{hi+e}, v{lo+e}, vcc")
                for e in range(2):
                    a.e(f"v_mov_b32_dpp v{x+2+e}, v{x+e} row_ror:8 row_mask:0xf bank_mask:0xf")
                for e in range(2):
                    a.e(f"v_cndmask_b32 v{x+4+e}, v{lo+e}, v{x+2+e}, vcc"); a.e(f"v_cndmask_b32 v{hi+e}, v{x+2+e}, v{hi+e}, vcc")
                for e in range(2): a.e(f"v_mov_b32 v{lo+e}, v{x+4+e}")
            a.e(f"v_bfe_u32 v{t2}, v1, 4, 1"); a.e(f"v_lshlrev_b32 v{t}, 5, v{t}"); a.e(f"v_lshl_add_u32 v{t}, v{t2}, 4, v{t}")
            a.e(f"v_and_b32 v{t2}, 0xffffffc0, v{ro}"); a.e(f"v_add_u32 v{t}, v{t}, v{t2}")
            for j in range(2): a.e(f"buffer_store_dwordx4 {vr(xa+4*j,4)}, v{t}, s[20:23], 0 offen offset:{128*j} {OS}")
        else:
            for j in range(4): a.e(f"buffer_store_dwordx2 {vr(xa+2*j,2)}, v{ro}, s[20:23], 0 offen offset:{128*(j>>1) + 32*(j&1)} {OS}")
        return v.hi
    part(x, 0)
    if os.environ.get("RST"): mstamp(a)
    a.e("s_waitcnt lgkmcnt(0)"); a.e("s_barrier")
    if os.environ.get("RST"): mstamp(a)
    comb(0)
    ln_finish(a, mean, var, rs)
    if os.environ.get("RST"): mstamp(a)
    a.e(f"v_mul_f32 v{mean}, v{mean}, v{rs}")
    for i in range(8): a.e(f"v_pk_fma_f32 {vr(w+2*i,2)}, {vr(x+2*i,2)}, {vr(mean,2)}, {vr(mean,2)} op_sel:[0,1,0] op_sel_hi:[1,1,0] neg_lo:[0,0,1] neg_hi:[0,0,1]")
    for i in range(8):
        D = w + 2 * i
        a.e(f"v_pk_fma_f32 {vr(x+2*i,2)}, {vr(D,2)}, {vr(yf+2*i,2)}, {vr(x+2*i,2)}")
        a.e(f"v_cvt_pk_bf16_f32 v{xa+i}, v{x+2*i}, v{x+2*i+1}")
        if i % 4 == 1 and DP: mark(a, xa + i - 1, 0)
        if i % 4 == 3: a.e(f"buffer_store_dwordx4 {vr(xa+i-3,4)}, v{fo}, s[20:23], 0 offen offset:{2048*(i//4)} {SC}")
    if os.environ.get("RST"): mstamp(a)
    a.e("s_branch R_s2")
    a.e("R_l0:")
    for i in range(8): unpack(a, x + 2 * i, x + 2 * i + 1, xa + i)
    part(x, 0)
    a.e("s_waitcnt lgkmcnt(0)")
    st_ = st; st = yf
    lds_spin(a, LW + 28, 65536, st, dst=94)
    if STAMP: a.e("s_and_b32 s95, s94, 0xffff")
    a.e(f"s_cmp_gt_u32 s94, {65536 + QUO // 2}"); a.e("s_cselect_b32 s94, 1, 0")
    a.e("s_lshl_b32 s53, s94, 13"); a.e(f"v_xor_b32 v{RYO}, s53, v{RYO}")
    FL = int(os.environ.get("FL", "1"))
    if FL:
        group_off(a, 36, 28); a.e("s_lshr_b32 s53, s53, 14"); a.e("s_add_u32 s36, s53, s54"); a.e(f"s_xor_b32 s36, s36, {(((F_FRONT >> 21) ^ (F_FRONT >> 13) ^ (FL >> 1)) & 1) << 13}")
    else: a.e("s_lshl_b32 s36, s28, 10")
    a.e(f"s_add_u32 s36, s36, {F_FRONT}"); a.e("s_lshl_b32 s53, s30, 7"); a.e("s_add_u32 s36, s36, s53"); a.e(f"v_mov_b32 v{st+4}, s36")
    a.e("s_waitcnt vmcnt(0)"); a.e("s_barrier")
    poll_core(a, st, [st + 4], 1, cnt=32, nap=FSLEEP)
    load_y(a)
    group_off(a, 55, 28)
    a.e("s_add_u32 s62, s4, s55"); a.e("s_addc_u32 s63, s5, 0")
    a.e("s_sub_u32 s36, s28, 1"); a.e("s_max_i32 s36, s36, 0"); group_off(a, 92, 36); a.e("s_sub_u32 s92, s92, s55")
    a.e("s_add_u32 s36, s28, 1"); a.e("s_min_u32 s36, s36, 15"); group_off(a, 93, 36); a.e("s_sub_u32 s93, s93, s55")
    a.e(f"s_add_u32 s55, s55, {oSM}")
    lsrd(a, 20, oX3, XSZ)
    st = st_; comb(0); ln_finish(a, mean, var, rs); st = yf
    for i in range(8):
        D = w + 2 * i
        a.e(f"v_pk_add_f32 {vr(D,2)}, {vr(x+2*i,2)}, {SUBM}"); a.e(f"v_pk_mul_f32 {vr(D,2)}, {vr(D,2)}, {MULR}")
    a.e("s_barrier")
    mstamp(a)
    a.e("s_waitcnt vmcnt(0)")
    for i in range(8):
        D = w + 2 * i
        unpack(a, st, st + 1, yy + i)
        a.e(f"v_pk_fma_f32 {vr(x+2*i,2)}, {vr(D,2)}, {vr(st,2)}, {vr(x+2*i,2)}"); a.e(f"v_cvt_pk_bf16_f32 v{xa+i}, v{x+2*i}, v{x+2*i+1}")
        if i % 4 == 1 and DP: mark(a, xa + i - 1, 0)
        if i % 4 == 3: a.e(f"buffer_store_dwordx4 {vr(xa+i-3,4)}, v{fo}, s[20:23], 0 offen offset:{2048*(i//4)} {SC}")
    a.e("R_s2:")
    st = st_
    for i in range(8): unpack(a, x + 2 * i, x + 2 * i + 1, xa + i)
    part(x, 1)
    if "1" in DP:
        a.e("s_waitcnt lgkmcnt(0)"); a.e("s_barrier")
        a.e("s_cmp_lg_u32 s30, 6"); a.e("s_cbranch_scc1 R_n6"); a.e("s_cmp_lg_u32 s60, 0"); a.e("s_cbranch_scc1 R_n6")
        a.e("s_lshl_b32 s53, s29, 7"); a.e(f"s_add_u32 s53, s53, {F_CS}"); a.e(f"v_mov_b32 v{pt}, 1"); a.e(f"v_mov_b32 v{pt+1}, 0")
        a.e("s_mov_b64 exec, 1"); a.e(f"buffer_atomic_add v{pt}, v{pt+1}, s[56:59], s53 offen {SC}"); a.e("s_mov_b64 exec, -1")
        a.e("R_n6:")
    else:
        publish(a, ST_R, 8, pt)
        a.e("s_barrier")
    a.e(f"s_cmp_lg_u32 s30, {7 if '1' in DP else 0}"); a.e("s_cbranch_scc1 R_nl")
    comb(1)
    outv = yf + 2; s3 = v(); m4 = v(); v4_ = v(); r4 = v()
    assert v.hi <= PK
    a.e(f"v_mov_b32 v{m4}, v{mean}"); a.e(f"v_mov_b32 v{v4_}, v{var}")
    ln_finish(a, mean, var, rs, s3)
    a.e(f"v_sub_f32 v{m4}, v{m4}, v{mean}"); a.e(f"v_mul_f32 v{m4}, v{m4}, v{rs}")
    a.e(f"v_mul_f32 v{v4_}, v{v4_}, v{rs}"); a.e(f"v_mul_f32 v{v4_}, v{v4_}, v{rs}")
    ln_finish(a, m4, v4_, r4)
    a.e(f"v_mov_b32 v{outv}, v{mean}"); a.e(f"v_mov_b32 v{outv+1}, v{rs}")
    a.e(f"v_fma_f32 v{outv+2}, v{m4}, v{s3}, v{mean}"); a.e(f"v_mul_f32 v{outv+3}, v{rs}, v{r4}")
    lsrd(a, 24, oLNS, 2048)
    a.e("s_lshl_b32 s36, s29, 3"); a.e(f"v_add_u32 v{t}, s36, v{I}"); a.e(f"v_lshlrev_b32 v{t}, 4, v{t}")
    a.e("s_mov_b64 exec, 0xff")
    a.e(f"buffer_store_dwordx4 {vr(outv,4)}, v{t}, s[24:27], 0 offen {SC}")
    a.e("s_mov_b64 exec, -1")
    publish(a, ST_R2, 1, pt)
    a.e("R_nl:")
    return v.hi

TAB = int(os.environ.get("TAB", "1")); TV = 248
def lead(seq, r, L, P=4):
    if L == 0: return list(seq)
    return [x for _, x in sorted(((i - L - 0.5 if i % P == r else i), x) for i, x in enumerate(seq))]
def order3(j, gi):
    mode, L = eval(os.environ.get("O3", "('r',0)"))
    if mode == "r": return [(gi + t) & 15 for t in range(16)]
    if mode == "n": return [gi] + [x for x in lead(range(16), (j + gi) & 3, L) if x != gi]
    if mode == "s": return [gi] + lead([x for x in range(16) if x != gi], (j + gi) & 3, L)
    if mode == "h": return [gi] + [x for x in lead([(t + (gi & 8)) & 15 for t in range(16)], (j + gi) & 3, L) if x != gi]
def order4(j, n):
    mode, L = eval(os.environ.get("O4", "('n',1)"))
    own = [(7 * n + i, 7 * n + 4 + i) for i in range(3)]
    ps = [(n + t) & 7 for t in range(8)] if mode == "r" else list(range(8))
    ab = [(7 * p + i, 7 * p + 4 + i) for i in range(2) for p in ps if p != n]
    c = [7 * p + o for p in ps for o in (2, 6, 3) if p != n or o == 3]
    rest = ab + [(c[2 * i], c[2 * i + 1]) for i in range(11)]
    if mode != "r": rest = lead(rest, (j + n + int(os.environ.get("O4R", "0"))) & 3, L)
    return own + rest
L4 = eval(os.environ.get("O4", "('n',1)"))[1] if TAB else 0
def tab_data(a):
    a.lines.append(".p2align 6"); a.lines.append("K_tab:")
    for gi in range(16):
        for j in range(4):
            o3 = order3(j, gi) + [0] * 16; o4 = order4(j, gi & 7) + [(0, 0)] * 4
            assert sorted(o3[:16]) == list(range(16)) and sorted(sum(o4[:28], ())) == list(range(56))
            a.lines.append(".short " + ",".join(str(o3[t] | o4[t][0] << 4 | o4[t][1] << 10) for t in range(32)))
def tab_load(a):
    a.e("s_getpc_b64 s[34:35]"); a.e("K_tpc:")
    a.e("s_lshl_b32 s36, s29, 2"); a.e("s_and_b32 s37, s28, 3"); a.e("s_add_u32 s36, s36, s37"); a.e("s_lshl_b32 s36, s36, 6")
    a.e("s_add_u32 s36, s36, K_tab-K_tpc"); a.e("s_add_u32 s34, s34, s36"); a.e("s_addc_u32 s35, s35, 0")
    a.e(f"v_and_b32 v{TV}, 31, v1"); a.e(f"v_lshlrev_b32 v{TV}, 1, v{TV}"); a.e(f"global_load_ushort v{TV+3}, v{TV}, s[34:35]")
def tab_make(a, w):
    T, x = TV + 3, TV + 4
    if not w:
        a.e(f"v_bfe_u32 v{x}, v{T}, 2, 2"); a.e(f"v_lshlrev_b32 v{TV}, 14, v{x}"); a.e(f"v_and_b32 v{x}, 3, v{T}"); a.e(f"v_lshl_add_u32 v{TV}, v{x}, 11, v{TV}")
        for lw in range(2):
            a.e(f"v_bfe_u32 v{x}, v{T}, {7+6*lw}, 3"); a.e(f"v_lshlrev_b32 v{TV+1+lw}, 14, v{x}"); a.e(f"v_bfe_u32 v{x}, v{T}, {4+6*lw}, 3"); a.e(f"v_lshl_add_u32 v{TV+1+lw}, v{x}, 10, v{TV+1+lw}")
    else:
        a.e(f"v_and_b32 v{x}, 15, v{T}"); a.e(f"v_mul_u32_u24 v{TV}, {64*7168}, v{x}")
        a.e("s_and_b32 s36, s30, 1"); a.e("s_mul_i32 s36, s36, 6"); a.e("s_add_u32 s36, s36, 4"); a.e(f"v_bfe_u32 v{x}, v{T}, s36, 6")
        assert all((q * 37) >> 8 == q // 7 for q in range(56))
        a.e(f"v_mul_u32_u24 v{TV+2}, 37, v{x}"); a.e(f"v_lshrrev_b32 v{TV+2}, 8, v{TV+2}"); a.e(f"v_mul_u32_u24 v{TV+2}, 7, v{TV+2}"); a.e(f"v_sub_u32 v{TV+2}, v{x}, v{TV+2}")
        a.e(f"v_cmp_eq_u32 vcc, 3, v{TV+2}"); a.e(f"v_cndmask_b32 v{TV+2}, 0, 1, vcc"); a.e(f"v_lshl_add_u32 v{TV+1}, v{x}, 16, v{TV+2}")
        for p_ in eval(os.environ.get("W4SKIP", "[]")): a.e("s_mov_b32 s36, 0x40000000"); a.e(f"v_writelane_b32 v{TV+1}, s36, {p_}")
def rot_init(a, which):
    if which == 3 and TAB: a.e("s_mov_b32 s44, 0")
    elif which == 3 and OWN3: a.e("s_mov_b32 s44, s29")
    elif which != 4: a.e("s_mov_b32 s44, s67")
    else: a.e("s_mov_b32 s44, 0")
def rot_next(a, which):
    a.e("s_add_u32 s44, s44, 1")
    if which != 4: a.e("s_and_b32 s44, s44, 15")
def kb4(a, d, lw):
    a.e("s_lshl_b32 s45, s44, 1"); a.e(f"s_add_u32 s45, s45, {lw}"); a.e("s_sub_u32 s45, s45, 32")
    a.e("s_mul_i32 s46, s45, 86"); a.e("s_lshr_b32 s46, s46, 8")
    a.e("s_mul_i32 s47, s46, 3"); a.e("s_sub_u32 s47, s45, s47"); a.e("s_lshl_b32 s47, s47, 2"); a.e("s_lshr_b32 s47, 0x362, s47"); a.e("s_and_b32 s47, s47, 7")
    a.e("s_cmp_ge_u32 s44, 10"); a.e("s_cselect_b32 s45, 9, 2"); a.e("s_cselect_b32 s51, 1, 0"); a.e("s_sub_u32 s45, s44, s45")
    a.e("s_cmp_lt_u32 s44, 3"); a.e("s_cselect_b32 s45, 0, s45"); a.e("s_cselect_b32 s51, s44, s51")
    a.e(f"s_lshl2_add_u32 s51, {lw}, s51")
    a.e("s_cmp_lt_u32 s44, 17"); a.e("s_cselect_b32 s47, s51, s47"); a.e("s_cselect_b32 s46, s45, s46")
    a.e("s_add_u32 s46, s46, s33"); a.e("s_and_b32 s46, s46, 7"); a.e("s_mul_i32 s46, s46, 7"); a.e(f"s_add_u32 s{d}, s46, s47")
assert all((q * 86) >> 8 == q // 3 for q in range(24))
WVB = {1: 238, 2: 238, 4: 239, 3: 241}
WV = 245
def w_lanes(a):
    t, t2 = WV + 8, WV + 9
    R = WVB[1]
    a.e(f"v_lshrrev_b32 v{t}, 3, v1"); a.e(f"v_lshlrev_b32 v{R}, 11, v{t}")
    a.e(f"v_and_b32 v{t}, 6, v{t}"); a.e(f"v_and_b32 v{t2}, 7, v1"); a.e(f"v_xor_b32 v{t}, v{t}, v{t2}"); a.e(f"v_lshl_add_u32 v{R}, v{t}, 4, v{R}")
    R = WVB[4]
    for p in range(2):
        a.e(f"v_lshrrev_b32 v{t}, 4, v1"); a.e(f"v_lshlrev_b32 v{R+p}, 11, v{t}")
        a.e(f"v_add_u32 v{t}, {4*p}, v{t}"); a.e(f"v_lshlrev_b32 v{t}, 1, v{t}"); a.e(f"v_and_b32 v{t2}, 15, v1"); a.e(f"v_xor_b32 v{t}, v{t}, v{t2}")
        a.e(f"v_lshl_add_u32 v{R+p}, v{t}, 4, v{R+p}")
    R = WVB[3]
    assert all((p * 2341) >> 16 == p // 28 for p in range(448))
    for ii in range(7):
        a.e(f"v_add_u32 v{t2}, {64*ii}, v1"); a.e(f"v_mul_u32_u24 v{t}, 2341, v{t2}"); a.e(f"v_lshrrev_b32 v{t}, 16, v{t}")
        a.e(f"v_mul_u32_u24 v{R+ii}, 28, v{t}"); a.e(f"v_sub_u32 v{t2}, v{t2}, v{R+ii}")
        a.e(f"v_mul_u32_u24 v{R+ii}, 7168, v{t}")
        a.e(f"v_lshrrev_b32 v{t}, 1, v{t}"); a.e(f"v_and_b32 v{t}, 2, v{t}"); a.e(f"v_xor_b32 v{t2}, v{t2}, v{t}")
        a.e(f"v_lshl_add_u32 v{R+ii}, v{t2}, 4, v{R+ii}")
def w_srd(a, which):
    c = CFG[which]
    a.e(f"s_mov_b64 s[12:13], s[{66+2*which}:{67+2*which}]")
    a.e(f"s_mov_b32 s14, {c['KBT'] * 32 * c['LDW']}"); a.e("s_mov_b32 s15, 0x20000")
def w_setup(a, which, pre=True, lo=0):
    c = CFG[which]; STB = c["STB"]; BW = STB // 2
    w_srd(a, which)
    a.e("s_and_b32 s35, s30, 1")
    a.e(f"s_mul_i32 s38, s{(0, 99, 29, 29, 33)[which]}, {c['RB']}");
    if which != 4: a.e(f"s_mul_i32 s41, s35, {32*c['LDW']}"); a.e("s_add_u32 s38, s38, s41")
    if which == 4: a.e(f"s_mul_i32 s41, s31, {1792*c['LDW']}"); a.e("s_add_u32 s38, s38, s41")
    a.e(f"s_mul_i32 s41, s35, {BW}"); a.e(f"s_add_u32 s41, s41, {c['WB']}")
    a.e("s_mov_b32 s42, 0"); rot_init(a, which)
    if not pre: return
    NP = c["NPRE"]
    a.e("s_mov_b32 s49, s44"); a.e("s_and_b32 s43, s28, 3"); a.e(f"s_mul_i32 s43, s43, {NP - lo}"); a.e("s_lshr_b32 s43, s43, 2"); a.e(f"s_mov_b32 s50, {lo}")
    if not WROT: a.e("s_mov_b32 s43, 0")
    if lo: a.e(f"s_add_u32 s43, s43, {lo}")
    L = a.lab("wpre"); a.e(f"{L}:")
    a.e(f"s_mul_i32 s42, s43, {STB}"); a.e("s_add_u32 s44, s49, s43")
    if which != 4: a.e("s_and_b32 s44, s44, 15")
    w_issue(a, which, pace=PACES.get(which, PACE))
    a.e("s_add_u32 s43, s43, 1"); a.e(f"s_cmp_eq_u32 s43, {NP}"); a.e(f"s_cselect_b32 s43, {lo}, s43")
    a.e("s_add_u32 s50, s50, 1"); a.e(f"s_cmp_lt_u32 s50, {NP}"); a.e(f"s_cbranch_scc1 {L}")
    mstamp(a)
    a.e(f"s_mov_b32 s42, {(NP % c['NW']) * STB}"); a.e(f"s_add_u32 s44, s49, {NP}")
    if which != 4: a.e("s_and_b32 s44, s44, 15")
YP = int(os.environ.get("YP", "0"))
def ypause(a):
    if not YP: return
    X = a.lab("yp")
    a.e(f"v_mov_b32 v6, {LW+4}"); a.e("ds_read2_b32 v[14:15], v6 offset0:0 offset1:1"); a.e("s_waitcnt lgkmcnt(0)"); a.e("v_readfirstlane_b32 s53, v15")
    a.e(f"s_cmp_lt_u32 s53, {YP}"); a.e(f"s_cbranch_scc1 {X}")
    lds_spin(a, LW + 20, 8, 6, nap=2)
    a.e(f"{X}:")
PD = int(os.environ.get("PD", "8")); PDA = int(os.environ.get("PDA", "0"))
def park_load(a, pace, q0=0, q1=32):
    w_srd(a, 2)
    a.e("s_and_b32 s35, s30, 3"); a.e("s_lshl_b32 s35, s35, 19"); a.e("s_lshl_b32 s39, s29, 7"); a.e("s_add_u32 s39, s39, s35")
    if q0: a.e(f"s_add_u32 s39, s39, {q0*16384}")
    for q in range(q0, q1):
        a.e(f"buffer_load_dwordx4 {vr(PK+4*q,4)}, v{WVB[2]}, s[12:15], s39 offen"); a.e("s_add_u32 s39, s39, 16384")
        if pace and q % 4 == 3: a.e(f"s_waitcnt vmcnt({pace})"); ypause(a)
def park(a): park_load(a, int(os.environ.get("PKP", "8")), 0, 32 - PD)
def park2(a): park_load(a, int(os.environ.get("PKP", "8")), 32 - PD, 32)
def park_rest(a, late):
    if not PD or (PDA and not late): return
    X = a.lab("pr")
    if late: a.e("s_cmp_lg_u32 s60, 0"); a.e(f"s_cbranch_scc1 {X}")
    if not PDA: a.e("s_and_b32 s36, s29, 6"); a.e("s_cmp_eq_u32 s36, 2"); a.e(f"s_cbranch_scc{0 if late else 1} {X}")
    call(a, park2); a.e(f"{X}:")
def late_park(a):
    X = a.lab("lp"); a.e("s_cmp_lg_u32 s60, 0"); a.e(f"s_cbranch_scc1 {X}"); call(a, park); a.e(f"{X}:")
def after_g1(a):
    c = CFG[3]
    if os.environ.get("UPD0"): a.e("s_sleep " + os.environ["UPD0"])
    w_srd(a, 3)
    a.e(f"v_readlane_b32 s36, v{TV+3}, 0"); a.e(f"v_readlane_b32 s37, v{TV+3}, 1"); a.e(f"v_readlane_b32 s34, v{TV+3}, 2")
    a.e("s_and_b32 s35, s30, 3"); a.e(f"s_mul_i32 s38, s35, {16*7168}"); a.e("s_mul_i32 s39, s29, 448"); a.e("s_add_u32 s38, s38, s39")
    for r in (36, 37, 34): a.e(f"s_and_b32 s{r}, s{r}, 15"); a.e(f"s_mul_i32 s{r}, s{r}, {64*7168}"); a.e(f"s_add_u32 s{r}, s{r}, s38")
    a.e("s_mul_i32 s39, s35, 7168"); a.e(f"s_add_u32 m0, s39, {c['WB'] + c['S0'] * c['STB']}")
    for i in range(7):
        if i: a.e("s_add_u32 m0, m0, 1024")
        a.e(f"buffer_load_dwordx4 v{WVB[3]+i}, s[12:15], s36 offen lds")
    for i in range(7 if W3N == 2 else 0): a.e(f"buffer_load_dwordx4 {vr(W3S+4*i,4)}, v{WVB[3]+i}, s[12:15], s37 offen")
    a.e("s_lshr_b32 s36, s67, 2"); a.e("s_sub_u32 s36, s35, s36"); a.e("s_and_b32 s36, s36, 3"); a.e("s_lshl_b32 s36, s36, 15"); a.e(f"v_add_u32 v6, s36, v2")
    if W33 == 1:
        for i in range(7): a.e(f"buffer_load_dwordx4 {vr(16+4*i,4)}, v{WVB[3]+i}, s[12:15], s34 offen")
    a.e(f"s_waitcnt vmcnt({21 if W33 == 1 else 7 * W3N})")
    if os.environ.get("UPD"): a.e("s_sleep " + os.environ["UPD"])
    for q in range(32): a.e(f"ds_write_b128 v6, {vr(PK+4*q,4)} offset:{CFG[2]['WB'] + 1024*q}")
    a.e("s_waitcnt lgkmcnt(0)")
W3N = int(os.environ.get("W3N", "2"))
W33 = int(os.environ.get("W33", "0"))
def third_late(a):
    a.e(f"s_sleep {W33}")
    for i in range(7): a.e(f"buffer_load_dwordx4 {vr(16+4*i,4)}, v{WVB[3]+i}, s[12:15], s34 offen")
def third_put(a):
    c = CFG[3]
    for i in range(7): a.e(f"ds_write_b128 v7, {vr(16+4*i,4)} offset:{c['STB'] + 1024*i}")
    a.e("s_waitcnt lgkmcnt(0)")
def after_g2(a):
    c = CFG[3]
    if W3N == 1:
        a.e("s_and_b32 s35, s30, 3"); a.e("s_mul_i32 s39, s35, 7168"); a.e(f"s_add_u32 m0, s39, {c['WB'] + (c['S0'] + 1) % c['NW'] * c['STB']}")
        for i in range(7):
            if i: a.e("s_add_u32 m0, m0, 1024")
            a.e(f"buffer_load_dwordx4 v{WVB[3]+i}, s[12:15], s37 offen lds")
        return
    a.e("s_and_b32 s35, s30, 3"); a.e("s_mul_i32 s39, s35, 7168"); a.e(f"s_add_u32 s39, s39, {c['WB'] + (c['S0'] + 1) % c['NW'] * c['STB']}"); a.e("v_add_u32 v7, s39, v2")
    for i in range(7): a.e(f"ds_write_b128 v7, {vr(W3S+4*i,4)} offset:{1024*i}")
    a.e("s_waitcnt lgkmcnt(0)")
SUBX = {}
def call(a, f):
    SUBX[f.__name__] = f; a.e(f"s_call_b64 s[76:77], SUB_{f.__name__}")
def w1_slots(a, js, pace=0):
    for j in js:
        a.e(f"s_mov_b32 s42, {j*8192}"); a.e("s_mov_b32 s44, s67"); a.e(f"s_add_u32 s44, s44, {j}"); a.e("s_and_b32 s44, s44, 15")
        call_issue(a, w_issue, 1)
        if pace: a.e(f"s_waitcnt vmcnt({pace})")
def w1_done(a):
    a.e("s_mov_b32 s42, 0"); a.e("s_mov_b32 s44, s67"); a.e("s_add_u32 s44, s44, 13"); a.e("s_and_b32 s44, s44, 15")
class Rec:
    def __init__(s_): s_.l = []
    def e(s_, x): s_.l.append(x)
    srd = Asm.srd
def w_parts(which, direct=False):
    c = CFG[which]; STB = c["STB"]; n = STB // 2048; LDW = c["LDW"]; b = Rec()
    b.e("s_add_u32 s19, s41, s42")
    arm = ["s_mov_b32 m0, s19", "s_mov_b32 s39, s16"]
    if which == 4 and TAB:
        b.e(f"v_readlane_b32 s16, v{TV+1}, s44")
        b.e("s_bitcmp1_b32 s16, 0"); b.e(f"s_cselect_b32 s17, {8*2048}, {4*2048}".replace(f"{4*2048}", "s45")); b.e(f"s_cselect_b32 s18, {-20*2048}, s45")
        b.e("s_andn2_b32 s16, s16, 1"); b.e("s_add_u32 s16, s16, s38")
        b.l.insert(0, f"s_mov_b32 s45, {4*2048}")
        arm += ["s_mov_b32 s32, s17", "s_mov_b32 s3, s18"]
        if os.environ.get("W4SKIP"): arm += ["s_bitcmp1_b32 s16, 30", "s_cselect_b64 exec, 0, -1"]
    elif which == 3 and TAB and not direct:
        b.e(f"v_readlane_b32 s16, v{TV}, s44"); b.e("s_add_u32 s16, s16, s38")
    elif which == 4:
        b.e("s_and_b32 s40, s30, 1"); kb4(b, 16, "s40")
        b.e(f"s_mul_i32 s16, s16, {32*LDW}"); b.e("s_add_u32 s16, s16, s38")
        b.e("s_cmp_eq_u32 s47, 3"); b.e("s_cselect_b32 s17, 8, 4"); b.e("s_cselect_b32 s18, -20, 4")
        b.e("s_lshl_b32 s17, s17, 11"); b.e("s_lshl_b32 s18, s18, 11")
        arm += ["s_mov_b32 s32, s17", "s_mov_b32 s3, s18"]
    else:
        b.e(f"s_mul_i32 s16, s44, {64*LDW}"); b.e("s_add_u32 s16, s16, s38")
    if f"w{which}" in os.environ.get("HOT", ""): b.e("s_mov_b32 s16, s38")
    rot_next(b, which)
    b.e(f"s_add_u32 s42, s42, {STB}"); b.e(f"s_cmp_eq_u32 s42, {c['NW']*STB}"); b.e("s_cselect_b32 s42, 0, s42")
    fire = []
    for i in range(n):
        g = []
        if i:
            g.append("s_add_u32 m0, m0, 1024")
            if which in (1, 2): g.append(f"s_add_u32 s39, s39, {8*LDW}")
            elif which == 4: g.append(f"s_add_u32 s39, s39, s{3 if i == 4 else 32}")
            elif i == 7: g.append(f"s_add_u32 s39, s39, {16*LDW}")
        vo = WVB[which] + (0 if which in (1, 2) else (i & 1) if which == 4 else i % 7)
        fire.append(g + [f"buffer_load_dwordx4 v{vo}, s[12:15], s39 offen lds"])
    if f"w{which}" in os.environ.get("NOLD", ""): fire = [[x for x in g if not x.startswith("buffer_load")] + ["s_nop 0"] for g in fire]
    return b.l, arm, fire
def w_issue(a, which, pace=0, direct=False):
    prep, arm, fire = w_parts(which, direct)
    for x in prep + arm: a.e(x)
    for i, g in enumerate(fire):
        for x in g: a.e(x)
        if pace and (i % 4 == 3 or i == len(fire) - 1): a.e(f"s_waitcnt vmcnt({pace})")

def w_bases(a, which, dst, swn, ntl, t, t2):
    c = CFG[which]; RB = c["RB"]
    a.e(f"v_lshrrev_b32 v{t}, 2, v1")
    a.e(f"v_mul_u32_u24 v{dst}, {RB}, v{t}"); a.e(f"v_and_b32 v{t2}, 3, v1"); a.e(f"v_lshl_add_u32 v{dst}, v{t2}, 3, v{dst}")
    a.e(f"v_add_u32 v{dst}, {c['WB']}, v{dst}")
    if which == 3:
        a.e(f"s_mul_i32 s36, s{swn}, {7*32}"); a.e(f"v_add_u32 v{dst}, s36, v{dst}")
        a.e(f"v_bfe_u32 v{t}, v1, 4, 1"); a.e(f"v_lshlrev_b32 v{t}, 5, v{t}")
        a.e(f"s_cmp_eq_u32 s{swn}, 0"); a.e("s_cselect_b32 s36, 1, -1"); a.e(f"v_mul_lo_u32 v{t}, v{t}, s36")
        a.e(f"v_sub_u32 v{dst+1}, v{dst}, v{t}"); a.e(f"v_add_u32 v{dst}, v{dst}, v{t}")
        return 2, lambda nt, kk, h: (nt & 1, (32 * kk + 16 * h) * RB + 32 * nt)
    if which == 4: a.e(f"v_and_b32 v{t}, 7, v{t}")
    else: a.e(f"v_bfe_u32 v{t}, v{t}, 1, 2")
    for nt in range(ntl - 1, -1, -1):
        a.e(f"s_mul_i32 s36, s{swn}, {ntl}"); a.e(f"s_add_u32 s36, s36, {nt}")
        a.e(f"v_xor_b32 v{t2}, s36, v{t}"); a.e(f"v_lshl_add_u32 v{dst+nt}, v{t2}, 5, v{dst}")
    return ntl, lambda nt, kk, h: (nt, (32 * kk + 16 * h) * RB)

def a_parts(which):
    c = CFG[which]; b = Rec()
    if which <= 2 and NX:
        b.e("s_and_b32 s42, s48, 7"); b.e("s_lshl_b32 s42, s42, 14"); b.e("s_lshr_b64 s[48:49], s[48:49], 4")
    b.e("s_add_u32 s19, s41, s42")
    arm = ["s_mov_b32 m0, s19", "s_mov_b32 s39, s16"]; fire = []
    if which == 2:
        b.e(f"s_mul_i32 s16, s44, {8*PITCH}"); b.e("s_add_u32 s16, s16, s38")
        b.e("s_lshr_b32 s45, s44, 2"); b.e("s_xor_b32 s45, s45, s94"); b.e("s_and_b32 s45, s45, 1"); b.e("s_lshl_b32 s45, s45, 13"); b.e("s_add_u32 s16, s16, s45")
        b.e("s_lshr_b32 s45, s44, 3"); b.e("s_lshl_b32 s45, s45, 4"); b.e("s_add_u32 s45, s45, 16")
        b.e("s_sub_u32 s46, 0, s45"); b.e("s_bitcmp1_b32 s44, 2"); b.e("s_cselect_b32 s45, s45, s46"); b.e("s_add_u32 s16, s16, s45")
        step = PITCH
    elif which == 4:
        for lw in range(2):
            if TAB: b.e(f"v_readlane_b32 s{16+lw}, v{TV+1+lw}, s44")
            else: kb4(b, 16 + lw, lw); spread(b, 16 + lw, 16 + lw)
        for lw in range(2): b.e(f"s_add_u32 s{16+lw}, s{16+lw}, s38")
        arm.append("s_mov_b32 s40, s17")
        for i in range(4):
            for lw in range(2):
                fire.append((["s_add_u32 m0, m0, 1024"] if i or lw else []) + ([f"s_add_u32 s{39+lw}, s{39+lw}, {c['KBT']*2048}"] if i else []) +
                            [f"buffer_load_dwordx4 v2, s[12:15], s{39+lw} offen {SC} lds"])
    elif which == 3 and TAB:
        b.e(f"v_readlane_b32 s16, v{TV}, s44"); b.e("s_add_u32 s16, s16, s38"); step = c['KBT'] * 2048
    else:
        b.e("s_lshr_b32 s45, s44, 2"); b.e("s_lshl_b32 s45, s45, 14"); b.e("s_and_b32 s16, s44, 3"); b.e("s_lshl_b32 s16, s16, 11")
        b.e("s_add_u32 s16, s16, s45"); b.e("s_add_u32 s16, s16, s38"); step = c['KBT'] * 2048
    if f"a{which}" in os.environ.get("HOT", ""):
        b.e("s_mov_b32 s16, s38")
        if which == 4: b.e("s_add_u32 s17, s38, 1024")
    for i in range(4 if which != 4 else 0):
        fire.append((["s_add_u32 m0, m0, 2048", f"s_add_u32 s39, s39, {step}"] if i else []) + [f"buffer_load_dwordx4 v2, s[12:15], s39 offen {SC} lds"])
        fire.append([f"buffer_load_dwordx4 v2, s[12:15], s39 offen offset:1024 {SC} lds"])
    rot_next(b, which)
    if not (which <= 2 and NX):
        b.e(f"s_add_u32 s42, s42, 16384"); b.e(f"s_cmp_eq_u32 s42, {c['NA']*16384}"); b.e("s_cselect_b32 s42, 0, s42")
    if f"a{which}" in os.environ.get("NOLD", ""): fire = [[x for x in g if not x.startswith("buffer_load")] + ["s_nop 0"] for g in fire]
    return b.l, arm, fire
def a_issue(a, which):
    prep, arm, fire = a_parts(which)
    for x in prep + arm + sum(fire, []): a.e(x)
SUBS = {}
def call_issue(a, issue, which):
    nm = f"SUB_{issue.__name__}_{which}"; SUBS[nm] = (issue, which)
    a.e(f"s_call_b64 s[76:77], {nm}")
def emit_subs(a):
    for nm, f in SUBX.items(): a.e(f"SUB_{nm}:"); f(a); a.e("s_setpc_b64 s[76:77]")
    for nm, (issue, which) in SUBS.items():
        a.e(f"{nm}:"); issue(a, which); a.e("s_setpc_b64 s[76:77]")
def ld_steps(a, which, N, per, issue, npre, rate=2, plan={}, lo=0, hi=None, last=None, hold=(), sched=None, armed=False):
    NS = CFG[which]["NS"]
    prep, arm, fire = (w_parts if issue is w_issue else a_parts)(which); h = max(1, per * HSPLIT // 8)
    plan = {b: (x if isinstance(x, list) else [x]) for b, x in plan.items()}
    q = [s_ for s_ in range(npre) for _ in range(per)]
    def after(tag):
        if issue is w_issue and which == 4 and isinstance(tag, int) and tag < npre: tag = npre - 1
        return len(q) - 1 - max(i for i, x in enumerate(q) if x == tag)
    issued = npre; steps = []
    for b in range(NS):
        acts = plan.get(b, []); was = {}
        def do(pos):
            for n_, act in enumerate(acts):
                if act[0] != pos: continue
                if act[1] is not None: was[n_] = after(act[1])
                q.extend([act[4]] * act[3])
        do(True)
        k = 0
        if (b > 0 or (sched is not None and issue is a_issue)) and b not in hold:
            k = max(0, min(rate, min(NS, b - 1 + N) - issued)) if sched is None else sched[b]
        assert k or not any(x[0] == "mid" for x in acts)
        for j in range(k):
            q.extend([issued] * h)
            if j == 0: do("mid")
            q.extend([issued] * (per - h)); issued += 1
        do(False)
        w = after(b); assert w <= 63
        if which == 3 and b == 0: w = 63
        steps.append((k, w, b if acts else None, tuple(sorted(was.items())), issued < NS))
    def em(l):
        for x in l:
            a.e(x)
            if x == "s_barrier" and os.environ.get("JIT"): mstamp(a)
    F1, F2 = sum(fire[:h], []), sum(fire[h:], [])
    lprep = prep
    if len(prep) > 8:
        nm = f"PREP_{issue.__name__}_{which}"; SUBS[nm] = ((lambda a_, w_, l=prep: [a_.e(x) for x in l]), which)
        prep = [f"s_call_b64 s[76:77], {nm}"]
    if lo == 0 and npre < NS and not armed: em(prep + arm)
    i = lo; HI = NS if hi is None else hi
    while i < HI:
        j = i
        while j < HI and steps[j] == steps[i]: j += 1
        k, w, ab, was, more = steps[i]; n = j - i; was = dict(was)
        def run(pos):
            for n_, act in enumerate(plan.get(ab, [])):
                if act[0] != pos: continue
                if n_ in was: a.e(f"s_waitcnt vmcnt({was[n_]})")
                act[2]()
        tail = [f"s_waitcnt vmcnt({w})", "s_barrier"]
        if n > 2 and k == 1:
            em(F1); a.e("s_mov_b32 s43, 1"); L = a.lab("ld"); a.e(f"{L}:")
            em(lprep + F2 + arm + tail + F1)
            a.e("s_add_u32 s43, s43, 1"); a.e(f"s_cmp_lt_u32 s43, {n}"); a.e(f"s_cbranch_scc1 {L}")
            em(prep + F2 + arm + tail)
        else:
            for r in range(n):
                run(True)
                for jj in range(k):
                    nxt = more or jj < k - 1
                    em(F1)
                    if jj == 0: run("mid")
                    em((prep if nxt else []) + F2 + (arm if nxt else []))
                run(False)
                em(tail)
        i = j
    if hi is not None: return
    if which == 4:
        if issue is a_issue: a.e("s_cmp_eq_u32 s60, 1"); a.e("s_cbranch_scc1 K_fin")
        elif hold is HOLD: a.e("s_branch K_fin"); return
        if not RPL: r_pre(a)
    TF = os.environ.get("TF", "1") == "1" and issue is a_issue and which == 3
    if last and not TF: last()
    late = os.environ.get("TLATE", "0") == "1"
    if late: a.e("s_barrier")
    if issue is a_issue and W4POS == f"{which}C":
        X = a.lab("tw4"); a.e("s_cmp_lg_u32 s60, 0"); a.e(f"s_cbranch_scc1 {X}"); touch(a, B_W4, 7 * MB, 20); a.e(f"{X}:")
    if not late: a.e("s_barrier")
    if TF: last()

RK = int(os.environ.get("RK", "7")); assert RK == 0 or C0PUB <= RK <= STQ
PA2 = int(os.environ.get("PA2", "1")); PBB = int(os.environ.get("PBB", "2")); PC0 = int(os.environ.get("PC0", "4"))
HOLD = eval(os.environ.get("HOLD", "[2,3,4]"))
def a_loader(a, which):
    c = CFG[which]
    if which <= 2:
        plan = side_jobs(a, 1) if which == 1 else {}
        if which == 1 and "1" in DP: mstamp(a); a.e(f"s_sleep {os.environ.get('SJD', '30')}")
        else: mstamp(a); a.e("s_barrier")
        mstamp(a)
        for b in sorted(plan):
            for act in (plan[b] if isinstance(plan[b], list) else [plan[b]]):
                if act[1] is not None: a.e("s_waitcnt vmcnt(0)")
                act[2]()
        if which == 1:
            a.e("s_cmp_lg_u32 s30, 4"); a.e("s_cbranch_scc1 AL_nw"); a.e("s_cmp_eq_u32 s60, 0"); a.e("s_cbranch_scc1 AL_nw")
            a.e(f"s_add_u32 s54, s55, {(fso(ST_G3) - LSTR) & 0xffffffff:#x}"); a.e("s_add_u32 s53, s54, s92"); a.e("v_mov_b32 v9, s53")
            a.e("s_add_u32 s53, s53, 128"); a.e("v_writelane_b32 v9, s53, 1")
            a.e("s_add_u32 s53, s54, s93"); a.e("v_writelane_b32 v9, s53, 2"); a.e("s_add_u32 s53, s53, 128"); a.e("v_writelane_b32 v9, s53, 3")
            poll_core(a, 8, [9], 15, cnt=8)
            a.e("AL_nw:")
        if which == 2 and W33 > 1: call(a, third_late)
        if which == 2: a.e("s_waitcnt vmcnt(0)")
        a.e("s_barrier")
        if which == 1 and "p" not in os.environ.get("FO", "1pd"): late_park(a)
        call(a, after_g1 if which == 1 else after_g2)
        return
    a.e("s_and_b32 s35, s30, 1")
    if which == 2:
        hs_srd(a, 12)
        a.e("s_lshl_b32 s38, s28, 11"); a.e("s_add_u32 s38, s38, 16384"); a.e(f"s_mul_i32 s36, s35, {4*PITCH}"); a.e("s_add_u32 s38, s38, s36")
    else:
        lsrd(a, 12, c["A"], XSZ if which != 4 else H2SZ)
        a.e(f"s_mul_i32 s38, s35, {4*c['KBT']*2048}")
        if which == 4: a.e(f"s_mul_i32 s36, s31, {7*16384}"); a.e("s_add_u32 s38, s38, s36")
    a.e("s_lshl_b32 s41, s35, 13"); a.e("s_mov_b32 s42, 0"); rot_init(a, which)
    assert c["NA"] == 3 or which == 3
    prep, arm, fire = a_parts(which)
    if which == 4:
        flag_addr(a, 9, ST_G3A); flag_addr(a, 10, ST_G3B); flag_addr(a, 12, ST_G3)
        a.e("v_mov_b32 v13, 1"); a.e("s_and_b32 s51, s30, 1"); a.e("s_lshl_b32 s51, s51, 30")
        def signal(r): a.e("s_mov_b64 exec, 1"); a.e(f"buffer_atomic_add v13, v{r}, s[56:59], s51 offen {SC}"); a.e("s_mov_b64 exec, -1")
        a.e("s_lshl_b32 s54, s60, 2"); a.e("s_add_u32 s54, s54, 4"); lds_spin(a, LW + 64, "s54", 14, nap=2)
        signal(9)
        if not PA2: poll_core(a, 8, [9], 1, cnt=8)
        mstamp(a)
        plan = {6 - L4: ("mid", None, lambda: flag_try(a, 11, 10), 1, "f"), 8 - L4: ("mid", "f", lambda: flag_check(a, 11, 10, 8), 0, None),
                13 - L4: ("mid", None, lambda: flag_try(a, 11, 12), 1, "g"), 15 - L4: ("mid", "g", lambda: flag_check(a, 11, 12, 8), 0, None)}
        plan = {k_: [x] for k_, x in plan.items()}
        if PA2:
            plan[1] = [(False, None, lambda: flag_try(a, 8, 9), 1, "a")]
            plan[2] = [(True, "a", lambda: flag_check(a, 8, 9, 8), 0, None)]
        if DP:
            a.e("v_xor_b32 v15, 128, v12")
            plan[20] = [("mid", None, lambda: flag_try(a, 11, 15), 1, "h")]; plan[22] = [("mid", "h", lambda: flag_check(a, 11, 15, 8), 0, None)]
        if int(os.environ.get("OT", "0")) >= 3:
            def ot():
                a.e(f"s_load_dwordx2 s[20:21], s[0:1], {D_OUT}"); a.e(f"s_mul_i32 s22, s60, {4*MB}"); a.e("s_mov_b32 s23, 0x20000"); a.e("s_lshl_b32 s36, s28, 18"); a.e("s_lshl_b32 s37, s29, 11")
                a.e("s_add_u32 s36, s36, s37"); a.e("s_waitcnt lgkmcnt(0)")
                a.e("s_mov_b64 exec, 1"); a.e(f"buffer_load_dword v16, v2, s[20:23], s36 offen {SC}"); a.e("s_mov_b64 exec, -1")
            plan.setdefault(int(os.environ["OT"]) % 100, []).append((False, None, ot, 1, "o"))
        plan.setdefault(PBB + 1, []).insert(0, (True, None, lambda: signal(10), 1, "s"))
        plan.setdefault(PC0 + 2, []).insert(0, (True, None, lambda: signal(12), 1, "s"))
        a.e("s_mov_b32 s44, 3")
        ld_steps(a, which, 3, 8, a_issue, 3, plan=plan); return
    if which == 3:
        mask, cnt = flag_addr(a, 9, ST_G2)
        def wait2():
            if W33: call(a, third_put)
            elif B0E > 1: a.e(f"s_sleep {B0E}")
            poll_core(a, 8, [9], mask, cnt=cnt); mstamp(a); mstamp(a)
            if W3H: a.e("s_add_u32 s54, s60, 1"); lds_set(a, LW + 60, "s54", 10)
        N3 = 2 if "3" in DP else 1
        a.e(f"s_mov_b32 s44, {N3}"); a.e(f"s_mov_b32 s42, {16384*N3}")
        plan = side_jobs(a, 3)
        if os.environ.get("P30", "0") == "1":
            def wait0(): own_wait(a, ST_G2, False, 14); wait2()
            plan[0] = (True, None, wait0, 0, None)
            ld_steps(a, which, 3, 8, a_issue, 1, plan=plan, sched=[int(os.environ.get("P3N", "1")), 2 - int(os.environ.get("P3N", "1"))] + [1] * 13 + [0]); return
        plan[1] = (True, None, wait2, 0, None)
        PZ3 = int(os.environ.get("PZ3", "0"))
        if PZ3:
            a.srd(84, 4, 32 * MB, off=216 * MB)
            a.e("s_cmp_eq_u32 s60, 0"); a.e("s_cselect_b32 s86, s86, 0")
            for i in range(4): a.e(f"v_mov_b32 v{216+i}, -1")
            a.e("s_lshl_b32 s88, s2, 1"); a.e("s_and_b32 s50, s30, 1"); a.e("s_add_u32 s88, s88, s50"); a.e(f"s_mul_i32 s88, s88, {PZ3*12*1024}")
            def pz():
                for i in range(PZ3): a.e(f"buffer_store_dwordx4 v[216:219], v2, s[84:87], s88 offen offset:{i*1024} {SC}")
                a.e(f"s_add_u32 s88, s88, {PZ3*1024}")
            for b in range(2, 14):
                p_ = plan.get(b, []); p_ = p_ if isinstance(p_, list) else [p_]
                plan[b] = p_ + [(False, None, pz, PZ3, "z")]
        if os.environ.get("A3L", "0") == "1":
            def w1_():
                X = a.lab("w1"); a.e("s_cmp_lg_u32 s60, 0"); a.e(f"s_cbranch_scc1 {X}"); poll_core(a, 8, [9], mask, cnt=cnt); lds_set(a, LW + 60, 1, 10); a.e(f"{X}:")
            def w2_(): poll_core(a, 8, [9], mask, cnt=cnt, nap=2); mstamp(a); mstamp(a)
            plan[1] = (True, None, w1_, 0, None)
            p2 = plan[2] if isinstance(plan[2], list) else [plan[2]]
            plan[2] = [(True, None, w2_, 0, None)] + p2
            ld_steps(a, which, 3, 8, a_issue, N3, plan=plan, hold=(1,)); return
        ld_steps(a, which, c["NA"], 8, a_issue, N3, plan=plan, sched=eval(os.environ.get("A3S", "None")), last=lambda: r_pre1(a)); return
    assert 0

def side_jobs(a, which):
    c = CFG[which]; plan = {}
    sv = 16; S, Q, mean, rs, tt, ad, fa, fr = 216, 217, 218, 219, 220, 221, 222, 223
    cv = 180 if which == 3 else 24; N = c["LDW"] // 2; co_ = 224; HB = c["TN16"] * 32
    lg = 3 if which == 1 else 5
    def cld(k0=0, k1=4):
        if k0 == 0:
            a.srd(24, 4, 32 * N * 4, off=CSP[which])
            a.e("s_cmp_eq_u32 s60, 0"); a.e("s_cselect_b32 s26, s26, 0")
            if NOCS3 and which == 3: a.e("s_mov_b32 s26, 0")
            a.e("s_and_b32 s36, s30, 1"); a.e(f"s_mul_i32 s36, s36, {HB}"); a.e(f"s_mul_i32 s37, s29, {2*HB}"); a.e("s_add_u32 s37, s36, s37")
            a.e(f"v_lshrrev_b32 v{co_}, {lg}, v1"); a.e(f"v_mul_u32_u24 v{co_}, {N*4}, v{co_}")
            a.e(f"v_and_b32 v{cv-1}, {16*((1 << lg) - 1)}, v2"); a.e(f"v_add_u32 v{co_}, v{co_}, v{cv-1}")
        a.e("s_cmp_eq_u32 s60, 0"); a.e("s_cselect_b64 exec, -1, 0")
        for k in range(k0, k1):
            a.e(f"buffer_load_dwordx4 {vr(cv+4*(k if k < 9 else k - 8),4)}, v{co_}, s[24:27], s37 offen {SC}"); a.e(f"s_add_u32 s37, s37, {N*4*(64 >> lg)}")
        a.e("s_mov_b64 exec, -1")
    def piece(lines, l0=False):
        def f():
            X = a.lab("pc")
            if l0: a.e("s_cmp_lg_u32 s60, 0"); a.e(f"s_cbranch_scc1 {X}")
            for x in lines: a.e(x)
            if l0: a.e(f"{X}:")
        return f
    def cadd(k0, k1): return [f"v_add_f32 v{cv+h}, v{cv+h}, v{cv+4*k+h}" for k in range(k0, k1) for h in range(4)]
    def sw(op): return [f"v_mov_b32 v{cv+4+e}, v{cv+e}" for e in range(4)] + [f"{op} v{cv+e}, v{cv+4+e}" for e in range(4)] + cadd(1, 2)
    if which in (1, 3):
        cout = ["s_and_b32 s36, s30, 1", f"s_mul_i32 s36, s36, {HB}", f"s_add_u32 s36, s36, {CSO[which]}", f"v_add_u32 v{cv-1}, s36, v2",
                f"s_bfm_b64 exec, {HB//16}, 0", f"ds_write_b128 v{cv-1}, {vr(cv,4)}", "s_mov_b64 exec, -1", "s_waitcnt lgkmcnt(0)"]
    if which == 1:
        flag_addr(a, fa, ST_R2)
        def ld():
            flag_check(a, fr, fa, 16)
            lsrd(a, 20, oLNS, 2048); a.e("s_and_b32 s35, s30, 1"); a.e("s_lshl_b32 s35, s35, 10")
            a.e(f"buffer_load_dwordx4 {vr(sv,4)}, v2, s[20:23], s35 offen {SC}")
        fin = piece(["s_and_b32 s36, s30, 1", "s_lshl_b32 s36, s36, 10", f"s_add_u32 s36, s36, {LNSL}", f"v_add_u32 v{ad}, s36, v2", f"ds_write_b128 v{ad}, {vr(sv,4)}", "s_waitcnt lgkmcnt(0)"])
        a.e("s_lshl_b32 s53, s29, 7"); a.e(f"s_add_u32 s53, s53, {F_CS}"); a.e(f"v_mov_b32 v{fa+4}, s53")
        def cld1(): flag_check(a, fr + 4, fa + 4, 16); cld()
        work = cadd(1, 4) + [f"v_add_f32_dpp v{cv+e}, v{cv+e}, v{cv+e} row_ror:8 row_mask:0xf bank_mask:0xf" for e in range(4)] + \
               sw("v_permlane16_swap_b32") + sw("v_permlane32_swap_b32")
        plan = {2: (False, None, lambda: flag_try(a, fr + 4, fa + 4), 1, "e"), 5: [(False, "e", cld1, 4, "c"), (False, None, lambda: flag_try(a, fr, fa), 1, "f")],
                8: (False, "f", ld, 1, "d"), 15: [(False, None, piece(cout, 1), 0, None), (False, "d", fin, 0, None)]}
        plan[9] = (False, None, piece(work, 1), 0, None)
    if which == 3:
        flag_addr(a, fa, ST_G2S)
        a.e(f"v_lshlrev_b32 v{ad}, 3, v1")
        def ld(k0, n_=8):
            def f():
                if k0 == 0:
                    flag_check(a, fr, fa, 16)
                    lsrd(a, 20, oST2, 24576)
                    a.e("s_and_b32 s35, s30, 1"); a.e("s_lshl_b32 s35, s35, 9")
                for k in range(k0, k0 + n_):
                    if k % 4 == 0 or k == k0: a.e(f"s_add_u32 s36, s35, {(k >> 3) * 16384 + (k & 4) * 1024}")
                    a.e(f"buffer_load_dwordx2 {vr(sv+2*k,2)}, v{ad}, s[20:23], s36 offen offset:{(k&3)*1024} {SC}")
            return f
        b = Rec()
        for st_ in (8, 4, 2, 1):
            for k in range(2 * st_): b.e(f"v_add_f32 v{sv+k}, v{sv+k}, v{sv+2*st_+k}")
        o_ = sv + 4
        b.e(f"v_mul_f32 v{o_}, {f32(1/1024)}, v{sv}"); b.e(f"v_mul_f32 v{Q}, {f32(1/1024)}, v{sv+1}")
        b.e(f"v_fma_f32 v{Q}, -v{o_}, v{o_}, v{Q}"); b.e(f"v_max_f32 v{Q}, 0, v{Q}")
        ln_finish(b, o_, Q, rs, o_ + 1)
        b.e(f"v_mul_f32 v{o_+2}, {f32(GC1)}, v{rs}"); b.e(f"v_mul_f32 v{o_+3}, v{rs}, v{rs}")
        b.e(f"v_mul_f32 v{o_+3}, v{o_+3}, v{o_+2}"); b.e(f"v_mul_f32 v{o_+3}, {f32(0.044715)}, v{o_+3}")
        b.e("s_lshl_b32 s35, s35, 1"); b.e(f"s_add_u32 s35, s35, {LNSL}"); b.e(f"v_add_u32 v{tt}, s35, v2")
        b.e(f"ds_write_b128 v{tt}, {vr(o_,4)}"); b.e("s_waitcnt lgkmcnt(0)")
        def both(f, g):
            def h(): f(); g()
            return h
        if os.environ.get("SJ3", "1") == "1":
            plan = {2: (False, None, lambda: cld(0, 3), 3, "c"), 3: (False, None, lambda: cld(3, 6), 3, "c"), 4: [(False, None, lambda: cld(6, 9), 3, "c"), (False, None, lambda: flag_try(a, fr, fa), 1, "f")],
                    6: [(False, "f", ld(0, 4), 4, "d"), (False, None, piece(cadd(1, 5), 1), 0, None)],
                    7: [(False, None, ld(4, 4), 4, "d"), (False, None, both(piece(cadd(5, 9), 1), lambda: cld(9, 12)), 3, "e")],
                    8: [(False, None, ld(8, 4), 4, "d"), (False, None, lambda: cld(12, 14), 2, "e")], 9: [(False, None, ld(12, 4), 4, "d"), (False, None, lambda: cld(14, 16), 2, "e")],
                    11: [(False, "e", piece(b.l[:16]), 0, None)], 12: [(False, None, piece(b.l[16:32]), 0, None), (False, None, piece(cadd(1, 4), 1), 0, None)],
                    13: [(False, None, piece(b.l[32:]), 0, None)], 14: (False, None, piece(cadd(4, 8), 1), 0, None), 15: (False, None, piece(sw("v_permlane32_swap_b32") + cout, 1), 0, None)}
        else:
            plan = {2: (False, None, cld, 4, "c"), 3: (False, None, lambda: cld(4, 9), 5, "c"),
                    5: [(False, "c", piece(cadd(1, 5), 1), 0, None), (False, None, lambda: flag_try(a, fr, fa), 1, "f")],
                    6: (False, None, both(piece(cadd(5, 9), 1), lambda: cld(9, 16)), 7, "e"),
                    7: (False, "f", ld(0), 8, "d"), 8: (False, None, ld(8), 8, "d"),
                    9: (False, "e", piece(cadd(1, 5), 1), 0, None), 10: (False, None, piece(cadd(5, 8), 1), 0, None), 11: (False, None, piece(sw("v_permlane32_swap_b32") + cout, 1), 0, None),
                    12: (False, "d", piece(b.l[:16]), 0, None), 13: (False, None, piece(b.l[16:32]), 0, None), 14: (False, None, piece(b.l[32:]), 0, None)}
    return plan

W2E = int(os.environ.get("W2E", "3"))
def w2_early(a):
    if W2E: w_setup(a, 2, pre=False); w1_slots(a, range(W2E), pace=8)
def w_loader(a, which):
    c = CFG[which]
    if which < 3:
        if which == 1: a.e("s_waitcnt vmcnt(0)")
        if which == 1 and "a" in STO: stouch(a, 3, 128 if "8" in STO else 64, 2); mstamp(a)
        if which == 1 and sum(SG): sb_init(a)
        sg(a, SG[2*which-2])
        if not (which == 1 and "1" in DP): a.e("s_barrier")
        sg(a, SG[2*which-1])
        if which == 1 and "b" in STO: stouch(a, 3, 128 if "8" in STO else 64, 2); mstamp(a)
        if which == 2 and W33 > 1: call(a, third_late)
        if which == 2: a.e("s_waitcnt vmcnt(0)")
        a.e("s_barrier")
        if which == 1 and "p" not in os.environ.get("FO2", "1pd"): late_park(a)
        call(a, after_g1 if which == 1 else after_g2); mstamp(a)
        return
    args = (a, which, c["NW"], c["STB"] // 2048, w_issue, c["NPRE"], c["WR"])
    if which == 4:
        assert c["NW"] == 6 and c["WB"] == CFG[1]["WB"] + 3 * 8192
        a.e("s_cmp_eq_u32 s60, 1"); a.e("s_cbranch_scc1 WL_t1")
        ld_steps(*args, hi=24)
        WT = eval(os.environ.get("WT", "[(11,12,15,9),(13,14,10),(3,4),(5,6,0),(7,8,1,2),()]"))
        WD = eval(os.environ.get("WD", "()"))
        def some(js):
            def f():
                if js is WT[0]:
                    w_setup(a, 1, pre=False)
                    a.e("s_and_b32 s36, s99, 7"); a.e("s_cmp_eq_u32 s36, 3"); a.e("s_cselect_b64 s[50:51], 0, -1")
                for j in js:
                    if j in (9, 10) and js is not WT[5]:
                        a.e(f"s_add_u32 s39, s38, {j*64*2048}")
                        for i in range(4): a.e(f"buffer_load_dwordx4 {vr(16+16*(j-9)+4*i,4)}, v{WVB[1]}, s[12:15], s39 offen"); a.e("s_add_u32 s39, s39, 16384")
                    else:
                        if j in WD: a.e("s_mov_b64 exec, s[50:51]")
                        w1_slots(a, (j,), pace=8 if js is WT[5] else 0)
                        if j in WD: a.e("s_mov_b64 exec, -1")
            return f
        plan = {24 + i: (False, None, some(WT[i]), 4 * len(WT[i]), "w") for i in range(4) if WT[i]}
        ld_steps(*args, plan=plan, lo=24, last=some(WT[4]))
        rg = [j for j in (9, 10) if j not in WT[5]]
        if WD:
            a.e("s_cmp_lg_u32 s50, 0"); a.e("s_cbranch_scc1 WL_nd"); w1_slots(a, WD); a.e("WL_nd:")
        if rg:
            yg = [j for l in WT[:5] for j in l]; yg = len(yg) - 1 - max(yg.index(9), yg.index(10))
            a.e(f"s_add_u32 s36, s41, {9*8192}"); a.e("v_add_u32 v6, s36, v2"); a.e(f"s_waitcnt vmcnt({4*yg if os.environ.get('YG', '1') == '1' else 0})")
            for j in rg:
                for i in range(4): a.e(f"ds_write_b128 v6, {vr(16+16*(j-9)+4*i,4)} offset:{(j-9)*8192+i*1024}")
            a.e("s_waitcnt lgkmcnt(0)")
        some(WT[5])(); mstamp(a)
        a.e("s_branch NEXT")
        a.e("WL_t1:")
        ld_steps(*args, hold=HOLD)
        return
    plan = {}
    if "3" in DP:
        lsrd(a, 20, oX1P, XSZ)
        a.e(f"v_readlane_b32 s36, v{TV+3}, 1"); a.e("s_and_b32 s35, s30, 1"); a.e("s_lshl_b32 s46, s35, 18"); a.e("s_lshl_b32 s47, s35, 13"); a.e("s_add_u32 s47, s47, 16384")
        a.e("s_bfe_u32 s37, s36, 0x20002"); a.e("s_lshl_b32 s37, s37, 14"); a.e("s_and_b32 s36, s36, 3"); a.e("s_lshl_b32 s36, s36, 11"); a.e("s_add_u32 s46, s46, s36"); a.e("s_add_u32 s46, s46, s37")
        a.e("v_add_u32 v8, s47, v2")
        if W3E: w_issue(a, 3); args = args[:5] + (3,) + args[6:]
        def second():
            L = a.lab("sp"); D = a.lab("sq")
            a.e("s_mov_b32 s34, m0"); a.e("s_cmp_lg_u32 s60, 0"); a.e(f"s_cbranch_scc1 {L}a")
            lds_spin(a, LW + 60, 1, 6, nap=1)
            a.e(f"{L}a:"); a.e("s_mov_b32 s53, 0")
            if int(os.environ.get("S3D", "0")): a.e("s_sleep " + os.environ["S3D"])
            a.e(f"{L}:"); a.e("s_mov_b32 m0, s47"); a.e("s_mov_b32 s36, s46")
            for i in range(4):
                if i: a.e("s_add_u32 m0, m0, 2048"); a.e("s_add_u32 s36, s36, 65536")
                for k in range(2): a.e(f"buffer_load_dwordx4 v2, s[20:23], s36 offen offset:{1024*k} {SC} lds")
            a.e("s_waitcnt vmcnt(0)")
            for i in range(8): a.e(f"ds_read_b32 v{10+i}, v8 offset:{1024*i}")
            a.e("s_waitcnt lgkmcnt(0)")
            a.e("v_or3_b32 v10, v10, v11, v12"); a.e("v_or3_b32 v13, v13, v14, v15"); a.e("v_or3_b32 v10, v10, v16, v17"); a.e("v_bitop3_b32 v10, v10, v13, s60 bitop3:0xa8")
            a.e("v_cmp_ne_u32 vcc, 0, v10"); a.e(f"s_cbranch_vccz {D}"); a.e("s_sleep 1")
            a.e("s_add_u32 s53, s53, 1"); a.e("s_cmp_lt_u32 s53, s61"); a.e(f"s_cbranch_scc1 {L}"); a.e("s_mov_b32 s61, 0")
            a.e(f"{D}:"); a.e("s_mov_b32 m0, s34")
        plan[1] = (True, None, second, 8, "x")
    elif W33:
        plan[1] = (True, None, lambda: call(a, third_put), 0, None); args = args[:5] + (3,) + args[6:]
    elif W3H: plan[1] = (True, None, lambda: (a.e("s_add_u32 s54, s60, 1"), lds_spin(a, LW + 60, "s54", 6, nap=1)), 0, None)
    def sg3(n):
        def f():
            X = a.lab("st"); a.e("s_cmp_lg_u32 s60, 0"); a.e(f"s_cbranch_scc1 {X}"); sb(a, n); a.e(f"{X}:")
        return f
    for b_, n_ in eval(os.environ.get("SG3", "{}")).items(): plan[b_] = (False, None, sg3(n_), 0, None)
    RPW = int(os.environ.get("RPW", "15"))
    if RPW < 16: plan[RPW] = (False, None, lambda: call(a, r_pre0), 4, "r")
    ld_steps(*args, plan=plan, last=(lambda: r_pre1(a)) if RPW == 16 else None)
W3H = int(os.environ.get("W3H", "0")) or "3" in DP; W3E = int(os.environ.get("W3E", "1"))
W1L = int(os.environ.get("W1L", "3"))

B0E = int(os.environ.get("B0E", "6")); RPL = int(os.environ.get("RPL", "1")); RPC = int(os.environ.get("RPC", "1"))
LF1 = os.environ.get("LF1", "sc1"); LF2 = os.environ.get("LF2", "")
RES2 = 148; C2R = 200; SO3 = 238; RES4 = [172, 176, 180, 184, 188, 192, 196, 240]
def g_compute(a, which):
    c = CFG[which]
    WM, WN, MT, NT, KBT, NS, NA, NW, TN16, STB, WB = [c[k] for k in "WM WN MT NT KBT NS NA NW TN16 STB WB".split()]
    v = VA(6); nm = f"G{which}"
    lane = 1; l16 = 2
    t = v(); t2 = v(); pt = v(4, 2)
    NTILE = (0, 99, 29, 29, 33)[which]
    a_ = a
    if which != 3: a = Rec()
    if WN == 2: a.e("s_lshr_b32 s34, s30, 1"); a.e("s_and_b32 s35, s30, 1")
    else: a.e("s_mov_b32 s34, s30"); a.e("s_mov_b32 s35, 0")
    a0 = v(); w0 = v(4, 1); aa = v(); wa = v(4, 1); J = v(); G = v()
    a.e(f"v_and_b32 v{J}, 15, v{lane}"); a.e(f"v_lshrrev_b32 v{G}, 4, v{lane}")
    a.e(f"s_mul_i32 s37, s34, {MT}")
    a.e(f"s_mul_i32 s38, s{NTILE}, {TN16}"); a.e(f"s_mul_i32 s36, s35, {NT}"); a.e("s_add_u32 s38, s38, s36")
    acc = v(MT * NT * 4, 4); NF = MT + NT if which > 2 else 8
    fX = v(NF * 4, 4); fY = v(NF * 4, 4); tmp = v(); tp = v(4, 2)
    def A_(mt, nt): return acc + 4 * (mt * NT + nt)
    def SUBM(r): return f"{vr(r,2)} op_sel_hi:[1,0] neg_lo:[0,1] neg_hi:[0,1]"
    def MULR(r): return f"{vr(r,2)} op_sel:[0,1] op_sel_hi:[1,1]"
    if which in (2, 4):
        res = RES2
        a.e("s_lshr_b32 s36, s38, 1"); spread(a, 39, 36); a.e("s_lshl_b32 s36, s37, 16"); a.e("s_add_u32 s39, s39, s36")
    if which <= 2:
        AB = 164; LO = v(8, 1)
        def aload(b, kk):
            if which == 1: return [f"buffer_load_dwordx4 {vr(AB+16*b+8*kk+4*mt,4)}, v{LO+mt+(b&2)}, s[8:11], s44 offen offset:{(b&1)*2048+kk*1024} {LF1}" for mt in range(2)]
            return [f"buffer_load_dwordx4 {vr(AB+16*b+8*kk+4*mt,4)}, v{LO+mt}, s[8:11], s44 offen {LF2}" for mt in range(2)]
        def seq(pairs, s0):
            if which == 1: return [x for b, kk in pairs for x in aload(b, kk)]
            return ([f"s_mov_b32 s44, {s0}"] if s0 is not None else []) + [x for b, kk in pairs for x in aload(b, kk) + ["s_add_u32 s44, s44, 16384"]]
        def past(l): return [x + (SC if x.startswith("buffer") and SC not in x else "") for x in l]
        PR = [(i >> 1, i & 1) for i in range(7)]
        h = Rec()
        if which == 1:
            lsrd(h, 8, oX3, XSZ); OOB = MB
            for i in range(4): (h if i < 2 else a).e(f"v_add_u32 v{LO+i}, {(i & 1) * 65536 + (i >> 1) * 4096}, v{l16}")
            h.e("s_lshl_b32 s44, s30, 17")
            for i in range(1, 4): a.e(f"s_add_u32 s{44+i}, s44, {16384*i}")
        else:
            OOB = 0x40000000; LP = v(2, 1)
            h.srd(8, 4, 8 * GSTR + LSTR, off=LB0 + oHS)
            h.e(f"s_sub_u32 s47, s55, {LB0 + oSM}"); h.e("s_lshl_b32 s46, s30, 9"); h.e("s_add_u32 s47, s47, s46")
            h.e("s_add_u32 s45, s92, 2048"); h.e("s_cmp_eq_u32 s28, 0"); h.e(f"s_cselect_b32 s45, {OOB}, s45"); h.e("s_cmp_eq_u32 s30, 0"); h.e("s_cselect_b32 s45, s45, 0")
            a.e("s_sub_u32 s46, s93, 2048"); a.e("s_cmp_eq_u32 s28, 15"); a.e(f"s_cselect_b32 s46, {OOB}, s46"); a.e("s_cmp_eq_u32 s30, 3"); a.e("s_cselect_b32 s46, s46, 0")
            for q_, sh in enumerate((1, -1, 2, -2)):
                e_ = h if q_ == 0 else a
                e_.e(f"s_add_u32 s53, s47, {(-16 * sh) & 0xffffffff:#x}"); e_.e(f"v_add_u32 v{LO+2*q_}, s53, v{a0}"); e_.e(f"v_add_u32 v{LO+2*q_+1}, 256, v{LO+2*q_}")
                R_ = LO + 2 * q_ + (0 if sh > 0 else 1)
                e_.e(f"v_add_u32 v{LP}, s{45 if sh > 0 else 46}, v{R_}")
                e_.e(f"v_cmp_gt_u32 vcc, {sh}, v{J}" if sh > 0 else f"v_cmp_le_u32 vcc, {16 + sh}, v{J}"); e_.e(f"v_cndmask_b32 v{R_}, v{R_}, v{LP}, vcc")
            for k in range(2): a.e(f"v_mov_b32 v{LP+k}, v{LO+k}")
        EARLY = str(which) in DP and str(which) in os.environ.get("EP", "2")
        try0 = past(seq(PR[:2], 0))
        for x in h.l: a_.e(x)
        if EARLY and which == 1:
            for x in try0: a_.e(x)
    else:
        a.e(f"s_mul_i32 s36, s34, {MT*2048}"); a.e(f"v_add_u32 v{a0}, s36, v{l16}")
    nwr, wpos = w_bases(a, which, w0, 35, NT, t, t2)
    if which <= 2:
        for x in a.l: a_.e(x)
    a = a_
    if which == 3 and not B0E: publish(a, ST_G2S, 4, pt, ctr=48)
    if which == 2:
        a.e(f"s_lshl_b32 s36, s37, 8"); a.e(f"s_add_u32 s36, s36, {LNSL}"); a.e(f"v_lshlrev_b32 v{t2}, 4, v{J}"); a.e(f"v_add_u32 v{t2}, s36, v{t2}")
        for mt in range(MT): a.e(f"ds_read_b64 {vr(fX+2*mt,2)}, v{t2} offset:{mt*256}")
        a.e("s_waitcnt vmcnt(4) lgkmcnt(0)")
        if EARLY:
            if int(os.environ.get("G2D", "3")): a.e("s_sleep " + os.environ.get("G2D", "3"))
            if int(os.environ.get("G2D0", "2")): a.e("s_cmp_lg_u32 s60, 0"); a.e("s_cbranch_scc1 G2_nd"); a.e("s_sleep " + os.environ.get("G2D0", "2")); a.e("G2_nd:")
            for x in try0: a.e(x)
        for mt in range(MT):
            for p in range(NT // 2):
                for e in range(4):
                    X = A_(mt, 2 * p) + 2 * e
                    unpack(a, X, X + 1, res + (mt * (NT // 2) + p) * 4 + e)
                    a.e(f"v_pk_add_f32 {vr(X,2)}, {vr(X,2)}, {SUBM(fX+2*mt)}"); round2(a, X, X + 1, tmp)
                    a.e(f"v_pk_mul_f32 {vr(X,2)}, {vr(X,2)}, {MULR(fX+2*mt)}"); round2(a, X, X + 1, tmp)
    elif which == 1:
        for i in range(0, MT * NT * 4, 2): a.e(f"v_pk_mov_b32 {vr(acc+i,2)}, 0, 0")
    RX = [180, 184, 188, 192, 196, 230, 234, 248]
    def last_res():
        b0 = Rec()
        for i in range(2):
            b0.e(f"s_add_u32 s36, s40, {i*65536}")
            for p in range(2):
                b0.e(f"buffer_load_dwordx4 {vr(RX[2*(2*i+p)],4)}, v{l16}, s[84:87], s36 offen offset:{p*1024} {SC}")
                b0.e(f"buffer_load_dwordx4 {vr(RX[2*(2*i+p)+1],4)}, v{l16}, s[88:91], s36 offen offset:{p*1024} {SC}")
        return b0.l
    def reads(F, kk):
        o = []
        for mt in range(MT): o.append(f"ds_read_b128 {vr(F+4*mt,4)}, v{aa} offset:{mt*256+kk*8192 if which == 2 else mt*2048+kk*1024}")
        for nt in range(NT):
            for h in range(2):
                r, imm = wpos(nt, kk, h)
                o.append(f"ds_read_b64_tr_b16 {vr(F+4*(MT+nt)+2*h,2)}, v{wa+r} offset:{imm}")
        NR = os.environ.get("NOREAD")
        if NR == "N": o = []
        if NR == "A": o = o[MT:]
        if NR == "W": o = o[:MT]
        if NR == "H": o = o[::2]
        if NR == "X": o = o + o[:2]
        if NR == "XX": o = o + o[:MT]
        return o
    def mix(rd, ex):
        rd = list(rd)
        for i, x in enumerate(ex): rd.insert(min(len(rd), (i + 1) * len(rd) // (len(ex) + 1)), x)
        return rd
    def mfmas(F, rd, tail=()):
        n = MT * NT; k = 0; tot = len(rd); span = max(1, n * 3 // 4); done = 0; tail = list(tail); per = -(-len(tail) // max(1, n - span))
        OR = os.environ.get("ORDER", "2")
        order = {"0": [(nt, mt) for nt in range(NT) for mt in range(MT)],
                 "1": [(nt, mt) for mt in range(MT) for nt in range(NT)],
                 "2": [(nt, mt if nt % 2 == 0 else MT - 1 - mt) for nt in range(NT) for mt in range(MT)],
                 "3": [(nt if mt % 2 == 0 else NT - 1 - nt, mt) for mt in range(MT) for nt in range(NT)]}[OR]
        for nt, mt in order:
            if True:
                cc = acc + 4 * (mt * NT + nt)
                if str(which) not in os.environ.get("NOMF", ""): a.e(f"v_mfma_f32_16x16x32_bf16 {vr(cc,4)}, {vr(F+4*(MT+nt),4)}, {vr(F+4*mt,4)}, {vr(cc,4)}")
                k += 1
                while rd and done < (tot * k + span - 1) // span: a.e(rd.pop(0)); done += 1
                if k >= span and k < n:
                    for _ in range(min(per, len(tail))): a.e(tail.pop(0))
        assert not rd and not tail
    so = SO3 if which == 3 else a0; cs = fX; lns = fX + 4 * NT; G4W = 240; EA = 244
    def ep_setup(b):
        if which in (1, 3):
            assert which == 1 or (fY <= C2R and C2R + 24 <= fY + 4 * NF)
            b.e(f"s_mul_i32 s36, s35, {NT*64}"); b.e(f"s_add_u32 s36, s36, {CSO[which]}"); b.e(f"v_lshlrev_b32 v{t}, 4, v{G}"); b.e(f"v_add_u32 v{t}, s36, v{t}")
            b.e(f"s_lshl_b32 s36, s37, 8"); b.e(f"s_add_u32 s36, s36, {LNSL + (8 if which == 1 else 0)}"); b.e(f"v_lshlrev_b32 v{t2}, 4, v{J}"); b.e(f"v_add_u32 v{t2}, s36, v{t2}")
        if which == 3:
            lsrd(b, 16, oH2, H2SZ)
            b.e(f"s_mul_i32 s39, s37, {224*1024}")
            for P in range(4):
                b.e("s_lshr_b32 s36, s38, 1"); b.e(f"s_add_u32 s36, s36, {P}"); spread(b, 44 + P, 36); b.e(f"s_add_u32 s{44+P}, s{44+P}, s39")
            w_bases(b, 4, G4W, 35, 4, tp, tp + 1)
            b.e("s_lshl_b32 s38, s33, 3"); b.e("s_lshl_b32 s36, s35, 2"); b.e("s_add_u32 s38, s38, s36")
            b.e("s_lshr_b32 s36, s38, 1"); spread(b, 39, 36); b.e("s_lshl_b32 s36, s37, 16"); b.e("s_add_u32 s39, s39, s36")
            b.e("s_lshl_b32 s40, s31, 17"); b.e("s_add_u32 s40, s40, s39")
            b.e("s_xor_b32 s41, s31, 1"); b.e("s_lshl_b32 s41, s41, 17"); b.e("s_add_u32 s41, s41, s39")
            lsrd(b, 84, oX3, XSZ); lsrd(b, 88, oX1P, XSZ)
            b.e("s_lshl_b32 s36, s37, 1"); b.e("s_add_u32 s36, s36, s35"); b.e("s_lshl_b32 s36, s36, 10"); b.e(f"v_add_u32 v{EA}, s36, v{l16}")
            b.e(f"v_mov_b32 v{EA+1}, 1"); b.e(f"v_mov_b32 v{EA+2}, {LW+64}")
            b.e(f"v_lshrrev_b32 v{so}, 1, v{G}"); b.e(f"v_lshlrev_b32 v{so}, 8, v{so}"); b.e(f"v_lshl_add_u32 v{so}, v{J}, 4, v{so}")
            b.e(f"v_and_b32 v{tmp}, 1, v{G}"); b.e(f"v_lshl_add_u32 v{so}, v{tmp}, 3, v{so}")
        if which == 1:
            lsrd(b, 16, oHS, XSZ)
            b.e(f"v_lshlrev_b32 v{so}, 11, v{G}"); b.e(f"v_lshl_add_u32 v{so}, v{J}, 4, v{so}")
            b.e("s_lshl_b32 s39, s38, 13"); b.e("s_lshl_b32 s36, s37, 8"); b.e("s_add_u32 s39, s39, s36"); b.e("s_add_u32 s40, s39, 16384")
            b.e("s_lshl_b32 s36, s29, 1"); spread(b, 41, 36); b.e("s_lshl_b32 s36, s37, 16"); b.e("s_add_u32 s41, s41, s36")
        if which == 2: lsrd(b, 16, oX1P, XSZ)
    def cost(x): return sum(8 if y.startswith("ds_") else 4 for y in x.split("\n"))
    def group(F, rd, r0, ex, fixed={}, zero=False):
        n = MT * NT; ex = [x if isinstance(x, tuple) else (x, -1) for x in ex]; done = 0
        order = [(nt, mt if nt % 2 == 0 else MT - 1 - mt) for nt in range(NT) for mt in range(MT)]
        need = sum(cost(x) for x, _ in ex) + 8 * len(rd) + sum(cost(x) for l in fixed.values() for x in l)
        cap = max(12, -(-need // (4 * n)) * 4)
        for k, (nt, mt) in enumerate(order):
            cc = A_(mt, nt)
            if str(which) not in os.environ.get("NOMF", ""): a.e(f"v_mfma_f32_16x16x32_bf16 {vr(cc,4)}, {vr(F+4*(MT+nt),4)}, {vr(F+4*mt,4)}, {0 if zero else vr(cc,4)}")
            b_ = cap - sum(cost(x) for x in fixed.get(k, [])); nv = 0
            if k >= r0 and done < len(rd): a.e(rd[done]); done += 1; b_ -= 8
            while ex and ex[0][1] < done and (cost(ex[0][0]) <= b_ or k == n - 1) and not (nv >= (1 if rd else 2) and ex[0][0].startswith("v_") and cap == 12 and k < n - 1):
                x = ex.pop(0)[0]; a.e(x); b_ -= cost(x); nv += x.startswith("v_")
            for x in fixed.get(k, []): a.e(x)
        assert done == len(rd) and not ex
    NR_ = MT + 2 * NT; BP = eval(os.environ.get("BP", "{3:3,4:2}")).get(which, 0)
    def stage(ex=(), ey=(), lim=NS-1, late=False, zero=False, pre=()):
        if str(which) in os.environ.get("GST", "") or os.environ.get("JIT"): mstamp(a, True)
        if which == 3: last = {0: NR_ - 1, 1: NR_ - 3}
        else: last = {i: MT + 2 * i + 1 for i in range(4)}
        book = ["s_add_u32 s42, s42, 16384", f"s_cmp_eq_u32 s42, {NA*16384}", "s_cselect_b32 s42, 0, s42",
                f"s_add_u32 s48, s48, {STB}", f"s_cmp_eq_u32 s48, {NW*STB}", "s_cselect_b32 s48, 0, s48", (f"v_add_u32 v{aa}, s42, v{a0}", MT - 1)]
        book += sorted([(f"v_add_u32 v{wa+i}, s48, v{w0+i}", last[i]) for i in range(nwr)], key=lambda x: x[1])
        n = MT * NT
        group(fX, reads(fY, 1), 0, book[:7] + list(ex) + book[7:], {3: [f"s_waitcnt lgkmcnt({min(15, NR_ - MT - 4 + 4)})"], 7: ["s_waitcnt lgkmcnt(8)"], n - 1: [f"s_waitcnt lgkmcnt({NR_ - MT - 2})"]}, zero)
        if late:
            b_ = Rec(); ep_setup(b_)
            group(fY, [], 0, ["s_add_u32 s43, s43, 1"] + b_.l, {min(BP, 3): ["s_waitcnt lgkmcnt(0)"]})
            if B0E: publish(a, ST_G2S, 4, pt, ctr=48)
            a.e("s_barrier")
            for x in reads(fX, 0): a.e(x)
            a.e(f"s_waitcnt lgkmcnt({NR_ - MT - 2})")
            return
        group(fY, reads(fX, 0), BP + 1, list(ey) + ["s_add_u32 s43, s43, 1", f"s_cmp_lt_u32 s43, {lim}"],
              {BP - 1: list(pre), BP: ["s_waitcnt lgkmcnt(0)", "s_barrier"], n - 1: [f"s_waitcnt lgkmcnt({NR_ - MT - 2})"]})
    w00 = c["S0"] * STB
    if which <= 2:
        def wrd(p, b): return [f"ds_read_b64_tr_b16 {vr((fX, fY)[p]+16*kk+4*nt+2*h,2)}, v{w0+nt} offset:{b*STB + wpos(nt, kk, h)[1]}" for kk in range(2) for nt in range(4) for h in range(2)]
        def dmf(b, fill, lo=0, hi=16):
            k = 0
            for kk in range(2):
                for nt in range(4):
                    for mt in ((0, 1) if nt % 2 == 0 else (1, 0)):
                        if lo <= k < hi:
                            a.e(f"v_mfma_f32_16x16x32_bf16 {vr(A_(mt,nt),4)}, {vr((fX, fY)[b&1]+16*kk+4*nt,4)}, {vr(AB+16*b+8*kk+4*mt,4)}, {vr(A_(mt,nt),4)}")
                            for x in fill[k]: a.e(x)
                        k += 1
        def spreadf(l, lo, hi):
            f = [[] for _ in range(16)]
            for i, x in enumerate(l): f[lo + i * (hi - lo) // len(l)].append(x)
            return f
        a.e("s_mov_b32 s43, 0"); ep_setup(a)
        CK = str(which) in DP; ck_ = aa
        def check(b):
            B = AB + 16 * b
            return [f"v_or3_b32 v{ck_}, v{B}, v{B+4}, v{B+8}", f"v_bitop3_b32 v{ck_}, v{ck_}, v{B+12}, 1 bitop3:0xa8", f"v_cmp_ne_u32 vcc, 0, v{ck_}"]
        L = a.lab("dm"); assert CK
        a.e("s_mov_b32 s53, 0"); a.e("s_mov_b32 s49, s44")
        if which == 2: a.e("s_barrier")
        for x in wrd(0, 0): a.e(x)
        if EARLY: a.e(f"s_branch {L}w")
        a.e(f"{L}p:")
        for x in try0: a.e(x)
        a.e(f"{L}w:")
        a.e("s_waitcnt vmcnt(0)")
        for x in check(0): a.e(x)
        a.e(f"s_cbranch_vccz {L}q"); a.e(f"s_sleep {os.environ.get('GNAP', '2')}")
        a.e("s_add_u32 s53, s53, 1"); a.e("s_cmp_lt_u32 s53, s61"); a.e(f"s_cbranch_scc1 {L}p"); a.e("s_mov_b32 s61, 0")
        a.e(f"{L}q:")
        mstamp(a)
        for x in seq(PR[2:], None): a.e(x)
        a.e("s_waitcnt lgkmcnt(0)")
        a.e(f"{L}:")
        for b in range(4):
            rd = wrd(1 - (b & 1), (b + 1) & 3); ex = [[] for _ in range(16)]
            ex[0], ex[1] = [[x] for x in aload((b - 1) & 3, 1)]
            if b == 0 and which == 1:
                for i, x in enumerate(["s_mov_b32 s44, s45", "s_mov_b32 s45, s46", "s_mov_b32 s46, s47", f"s_mov_b32 s47, {OOB}"]): ex[2 + i].append(x)
            if which == 2:
                ex[2].append("s_add_u32 s44, s44, 16384"); ex[10].append("s_add_u32 s44, s44, 16384")
                mv = [f"v_mov_b32 v{LO+k}, v{LO+k+2}" for k in range(6)] + [f"v_mov_b32 v{LO+6+k}, {OOB}" for k in range(2)]
                if b < 2:
                    for i, x in enumerate(mv[4*b:4*b+4]): ex[3 + i].append(x)
                if b == 3:
                    for k in range(2): ex[3 + k].append(f"v_mov_b32 v{LP+k}, v{LO+k}")
            if b == 2:
                ex[4].append("s_add_u32 s43, s43, 1"); ex[14].append("s_cmp_eq_u32 s43, 4")
                for nt, g_ in enumerate((11, 12, 13, 15)): ex[g_].append(f"v_add_u32 v{w0+nt}, {4*STB}, v{w0+nt}")
            if b == 3 and which == 1: ex[2].append("s_mov_b32 s49, s44")
            ex[7].append("s_waitcnt lgkmcnt(8)")
            ex[8], ex[9] = [[x] for x in aload(b, 0)]
            ex[10].append("s_waitcnt vmcnt(10)")
            if CK:
                for i, x in enumerate(check((b + 1) & 3)): ex[11 + i].append(x)
            fill = [rd[i:i+1] + ex[i] for i in range(16)]
            fill[14] = rd[14:16] + ex[14]; fill[15] = ex[15] + ["s_waitcnt lgkmcnt(8)"]
            if CK: fill[15] += [f"s_cbranch_vccnz {L}f{b}", f"{L}g{b}:"]
            if b == 2: fill[15].append(f"s_cbranch_scc1 {L}x")
            if b == 3: fill[15].append(f"s_branch {L}")
            dmf(b, fill)
        for b in range(4 if CK else 0):
            nb = (b + 1) & 3
            a.e(f"{L}f{b}:"); a.e("s_cselect_b32 s50, 1, 0")
            a.e(f"{L}h{b}:"); a.e(f"s_sleep {os.environ.get('GNAP', '2')}")
            if which == 2: a.e(f"s_sub_u32 s44, s44, {7*16384}")
            for j in range(4):
                bb = (nb + j) & 3
                for kk in range(2 if j < 3 else 1):
                    for x in past(seq([(bb, kk)], None)):
                        if bb >= nb and which == 1: x = x.replace("s44", "s49")
                        if bb >= nb and which == 2: x = x.replace(f", v{LO}, ", f", v{LP}, ").replace(f", v{LO+1}, ", f", v{LP+1}, ")
                        a.e(x)
            a.e("s_waitcnt vmcnt(10)")
            for x in check(nb): a.e(x)
            a.e("s_add_u32 s53, s53, 1"); a.e("s_cmp_ge_u32 s53, s61"); a.e("s_cselect_b32 s61, 0, s61"); a.e(f"s_cbranch_scc1 {L}k{b}")
            a.e(f"s_cbranch_vccnz {L}h{b}")
            a.e(f"{L}k{b}:"); a.e("s_cmp_eq_u32 s50, 1"); a.e(f"s_branch {L}g{b}")
        a.e(f"{L}x:")
    else:
        if which == 3:
            a.e(f"v_mov_b32 v{aa}, v{a0}")
            a.e("s_mov_b32 s42, 0"); a.e("s_mov_b32 s43, 0"); a.e(f"s_mov_b32 s48, {w00}")
            for i in range(nwr): a.e(f"v_add_u32 v{wa+i}, {w00}, v{w0+i}")
        if not (which == 3 and B0E): a.e("s_waitcnt lgkmcnt(0)"); a.e("s_barrier")
        mstamp(a)
        for x in reads(fX, 0): a.e(x)
        a.e(f"s_waitcnt lgkmcnt({NR_ - MT - 2})")
    if which == 4:
        def st2(j): return [(x, 0) for x in [f"s_add_u32 s36, s44, {j*224*1024}", f"buffer_store_dwordx4 {vr(C2R+4*j,4)}, v{l16}, s[16:19], s36 offen {SC}",
                            f"s_add_u32 s36, s45, {j*224*1024}", f"buffer_store_dwordx2 {vr(C2R+16+2*j,2)}, v{SO3}, s[16:19], s36 offen {SC}"]]
        assert PBB in (1, 2) and PC0 >= 2
        for st_ in range(2): stage(st2(2 * st_), st2(2 * st_ + 1), zero=st_ == 0, pre=[f"s_waitcnt vmcnt({4 * st_ + 2})"] if PBB == st_ + 1 else [])
        CW = 0
        if PC0 > 3:
            L0 = a.lab("mm"); a.e(f"{L0}:"); stage(lim=PC0); a.e(f"s_cbranch_scc1 {L0}")
        elif PC0 == 3: stage()
    if which == 3 and os.environ.get("PEEL3", "1") == "1": stage(late=True, zero=True)
    if which > 2:
        L = a.lab("mm"); a.e(f"{L}:")
        stage(pre=[f"s_waitcnt vmcnt({CW})"] if which == 4 else [])
        a.e(f"s_cbranch_scc1 {L}")
    b0 = Rec()
    if which == 4:
        a.e("s_cmp_eq_u32 s60, 1"); a.e("s_cbranch_scc1 G4_last")
        if not RPC: r_pre(b0)
    if which == 1:
        for mt in range(MT):
            for p in range(NT // 2): b0.e(f"buffer_load_dwordx4 {vr(RES2+(mt*(NT//2)+p)*4,4)}, v{LO+mt}, s[8:11], s41 offen offset:{p*1024} {SC}")
    early = True
    XW = {3: [f"s_waitcnt lgkmcnt({min(15, NR_ - MT)})"], 7: ["s_waitcnt lgkmcnt(8)"]}
    if which <= 2: dmf(3, spreadf(b0.l, 0, 8), 0, 8)
    else: group(fX, reads(fY, 1), 0, b0.l, XW)
    a.e("s_waitcnt lgkmcnt(0)")
    if which not in DL: a.e("s_barrier")
    b = Rec()
    if which in (1, 3):
        for nt in range(NT): b.e(f"ds_read_b128 {vr(cs+4*nt,4)}, v{t} offset:{nt*64}")
        if which == 3:
            for mt in range(MT): b.e(f"ds_read_b128 {vr(lns+4*mt,4)}, v{t2} offset:{mt*256}")
            for i in range(4): b.e(f"v_mov_b32 v{w0+i}, v{G4W+i}"); b.e(f"v_add_u32 v{wa+i}, {CFG[4]['S0']*CFG[4]['STB']}, v{G4W+i}")
            b.e("s_mov_b32 s42, 0"); b.e("s_mov_b32 s43, 0"); b.e(f"s_mov_b32 s48, {CFG[4]['S0']*CFG[4]['STB']}"); b.e(f"v_mov_b32 v{aa}, v{a0}")
            assert fY + 16 == RFO; r_addr(b, False)
        else:
            for mt in range(MT): b.e(f"ds_read_b64 {vr(lns+2*mt,2)}, v{t2} offset:{mt*256}")
    if which == 2: lsrd(b, 44, oST2, 24576)
    if which == 4:
        b.e(f"s_mul_i32 s36, s31, {oP1-oP0}"); b.e(f"s_add_u32 s36, s36, {oP0}")
        b.e("s_add_u32 s16, s62, s36"); b.e("s_addc_u32 s17, s63, 0"); b.e(f"s_mov_b32 s18, {XSZ}"); b.e("s_mov_b32 s19, 0x20000")
    if which <= 2: dmf(3, spreadf(b.l, 8, 15), 8, 16)
    else: group(fY, [], 0, b.l)
    mstamp(a)
    if which in (1, 3):
        AB = v(2 * MT, 2) if which == 1 else fY + 4
        def consts():
            for mt in range(MT if which == 1 else 0):
                r = lns + 2 * mt + 1
                a.e(f"v_mul_f32 v{AB+2*mt}, {f32(GC1)}, v{r}"); a.e(f"v_mul_f32 v{AB+2*mt+1}, v{r}, v{r}")
                a.e(f"v_mul_f32 v{AB+2*mt+1}, v{AB+2*mt+1}, v{AB+2*mt}"); a.e(f"v_mul_f32 v{AB+2*mt+1}, {f32(0.044715)}, v{AB+2*mt+1}")
                a.e(f"v_rcp_f32 v{r}, v{r}")
        def act(mt, nt):
            A = A_(mt, nt); P_ = [(A, tp), (A + 2, tp + 2)]; L_ = vr(lns + 2 * mt, 2); K_ = vr(AB + 2 * mt, 2)
            if which == 3: L_ = vr(lns + 4 * mt, 2); K_ = vr(lns + 4 * mt + 2, 2)
            for h in range(2):
                a.e(f"v_pk_fma_f32 {vr(A+2*h,2)}, {L_}, {vr(cs+4*nt+2*h,2)}, {vr(A+2*h,2)} op_sel_hi:[0,1,1] neg_lo:[1,0,0] neg_hi:[1,0,0]")
            for x, u in P_: a.e(f"v_pk_mul_f32 {vr(u,2)}, {vr(x,2)}, {vr(x,2)}")
            for x, u in P_: a.e(f"v_pk_fma_f32 {vr(u,2)}, {vr(u,2)}, {K_}, {K_} op_sel:[0,1,0] op_sel_hi:[1,1,0]")
            for x, u in P_: a.e(f"v_pk_mul_f32 {vr(u,2)}, {vr(u,2)}, {vr(x,2)}")
            for i in range(4): a.e(f"v_exp_f32 v{tp+i}, v{tp+i}")
            for x, u in P_: a.e(f"v_pk_fma_f32 {vr(u,2)}, {vr(u,2)}, {L_}, {L_} op_sel:[0,1,1] op_sel_hi:[1,1,1]")
            for i in range(4): a.e(f"v_rcp_f32 v{tp+i}, v{tp+i}")
            for x, u in P_: a.e(f"v_pk_mul_f32 {vr(x,2)}, {vr(x,2)}, {vr(u,2)}")
        def egroup(par, mt, nts, dst=None):
            for nt in nts: act(mt, nt)
            T = par * NT + nts[0]; P = (T >> 1) - ((par * NT) >> 1); B = A_(mt, nts[0]); D = B if dst is None else dst
            for k in range(2 * len(nts)): a.e(f"v_cvt_pk_bf16_f32 v{D+k}, v{B+2*k}, v{B+2*k+1}")
            if which == 3 and (mt < 3 or "3" in DP) and "1" in DP: mark(a, D, 1)
            if which == 1: mark(a, D, 0)
            if which == 3: return [f"s_add_u32 s36, s{44+P}, {mt*224*1024}", f"buffer_store_dwordx4 {vr(B,4)}, v{l16}, s[16:19], s36 offen {SC}"]
            return [f"buffer_store_dwordx4 {vr(B,4)}, v{so}, s[16:19], s{39+P} offen offset:{mt*256} {SC}"]
        def body(par):
            if which == 1: gs = [(0, 1), (2, 3)]
            else: gs = [(0, 1), (2, 3), (4, 5), (6,)] if par == 0 else [(1, 2), (3, 4), (5, 6), (0,)]
            k = 0; pend = []; sent = 0
            for gi_, g_ in enumerate(gs):
                for mt in range(MT):
                    if which == 3 and k == C0PUB:
                        a.e(f"s_waitcnt vmcnt({sent - 4})"); a.e("s_mov_b64 exec, 1"); a.e(f"ds_add_u32 v{EA+2}, v{EA+1}"); a.e("s_mov_b64 exec, -1"); mstamp(a)
                    if which == 3 and k == RK:
                        b_ = Rec(); r_pre(b_); l_ = [x for x in b_.l if x.startswith(("buffer", "s_mov_b32 s78"))]
                        a.e("s_cmp_eq_u32 s60, 1"); a.e(f"s_cbranch_scc1 G4_p1{par}")
                        for x in l_: a.e(x)
                        a.e(f"s_branch G4_p2{par}"); a.e(f"G4_p1{par}:")
                        for x in last_res(): a.e(x)
                        a.e(f"G4_p2{par}:")
                        if 4 <= k < C0PUB: sent += 8
                    st_ = egroup(par, mt, g_, None if gi_ < 2 else C2R + 4 * mt if gi_ == 2 else C2R + 16 + 2 * mt); k += 1
                    if which == 3 and gi_ < 3:
                        a.e(f"ds_write_b128 v{EA}, {vr(A_(mt, g_[0]) if gi_ < 2 else C2R + 4 * mt, 4)} offset:{gi_*16384 + mt*2048}")
                    if gi_ < 2: pend.append(st_)
                    n = len(pend) if (which == 1 or k <= 4 or k == 16) else 0 if k <= STQ else min(1, len(pend))
                    for _ in range(n):
                        for x in pend.pop(0): a.e(x)
                        sent += 1
            if which == 3:
                a.e("s_waitcnt lgkmcnt(0)")
                if par == 0: a.e("s_mov_b32 s44, s46"); a.e("s_mov_b32 s45, s47")
                else: a.e("s_add_u32 s45, s44, 512"); a.e("s_mov_b32 s44, s47")
        a.e("s_waitcnt lgkmcnt(0)")
        consts()
        if which == 3:
            a.e("s_cmp_eq_u32 s35, 1"); a.e(f"s_cbranch_scc1 {nm}_e1")
            body(0); a.e(f"s_branch {nm}_e2"); a.e(f"{nm}_e1:"); body(1); a.e(f"{nm}_e2:")
        else: body(0)
    if which == 2:
        xf = v(2, 2); S = v(2 * MT, 2); pp = v(2, 2); mn = v(2, 2)
        for mt in range(MT):
            a.e(f"s_add_u32 s36, s39, {mt*65536}")
            for p in range(NT // 2):
                R = res + (mt * (NT // 2) + p) * 4
                for e in range(4):
                    X = A_(mt, 2 * p) + 2 * e
                    a.e(f"v_cvt_pk_bf16_f32 v{R+e}, v{X}, v{X+1}")
                if DP: mark(a, R, 0)
                a.e(f"buffer_store_dwordx4 {vr(R,4)}, v{l16}, s[16:19], s36 offen offset:{p*1024} {SC}")
        if which in DL: a.e("s_barrier")
        if OWN3:
            a.e("s_lshl_b32 s36, s37, 11"); a.e(f"v_add_u32 v{t2}, s36, v{l16}")
            for i in range(4): a.e(f"ds_write_b128 v{t2}, {vr(res+4*i,4)} offset:{1024*i}")
        for i in range(MT * NT * 2): unpack(a, acc + 2 * i, acc + 2 * i + 1, res + i)
        mstamp(a)
        publish(a, which, 4, pt)
        if B0E: a.e("s_waitcnt lgkmcnt(0)"); a.e("s_barrier")
        mstamp(a)
        for mt in range(MT):
            B = A_(mt, 0); Sm = S + 2 * mt
            a.e(f"v_pk_add_f32 {vr(pp,2)}, {vr(B,2)}, {vr(B+2,2)}"); a.e(f"v_pk_mul_f32 {vr(xf,2)}, {vr(B,2)}, {vr(B,2)}")
            for i in range(1, NT * 2):
                if i > 1: a.e(f"v_pk_add_f32 {vr(pp,2)}, {vr(pp,2)}, {vr(B+2*i,2)}")
                a.e(f"v_pk_fma_f32 {vr(xf,2)}, {vr(B+2*i,2)}, {vr(B+2*i,2)}, {vr(xf,2)}")
            a.e(f"v_add_f32 v{Sm}, v{pp}, v{pp+1}"); a.e(f"v_add_f32 v{Sm+1}, v{xf}, v{xf+1}")
            for op in ("v_permlane16_swap_b32", "v_permlane32_swap_b32"):
                for k in range(2): a.e(f"v_mov_b32 v{pp+k}, v{Sm+k}")
                for k in range(2): a.e(f"{op} v{Sm+k}, v{pp+k}")
                a.e(f"v_pk_add_f32 {vr(Sm,2)}, {vr(Sm,2)}, {vr(pp,2)}")
        a.e(f"v_cmp_eq_u32 vcc, 0, v{G}"); a.e(f"v_cndmask_b32 v{S}, v{S+2}, v{S}, vcc"); a.e(f"v_cndmask_b32 v{S+1}, v{S+3}, v{S+1}, vcc")
        spread(a, 40, 29); a.e("s_lshl_b32 s36, s34, 8"); a.e("s_add_u32 s40, s40, s36")
        a.e(f"v_lshlrev_b32 v{t2}, 3, v{lane}")
        a.e("s_bfm_b64 exec, 32, 0")
        a.e(f"buffer_store_dwordx2 {vr(S,2)}, v{t2}, s[44:47], s40 offen {SC}")
        a.e("s_mov_b64 exec, -1")
    if which == 4:
        for mt in range(MT):
            a.e(f"s_add_u32 s36, s39, {mt*65536}")
            for p in range(NT // 2):
                B = A_(mt, 2 * p)
                for e in range(4): a.e(f"v_cvt_pk_bf16_f32 v{B+e}, v{B+2*e}, v{B+2*e+1}")
                if "r" in DP: mark(a, B, 1)
                a.e(f"buffer_store_dwordx4 {vr(B,4)}, v{l16}, s[16:19], s36 offen offset:{p*1024} {SC}")
    if which != 2:
        if which in DL: a.e("s_barrier")
        mstamp(a)
        if which == 4 and "r" not in DP: publish(a, which, 4, pt)
        mstamp(a)
    if which == 4:
        a.e("s_branch NEXT")
        a.e("G4_last:")
        PX = 208; oa = 224; xf = 226
        group(fX, reads(fY, 1), 0, [(f"s_load_dwordx2 s[6:7], s[0:1], {D_OUT}", 9)], XW)
        a.e("s_waitcnt lgkmcnt(0)")
        b = Rec()
        lsrd(b, 16, oX1P if "f" in DP else MB, XSZ)
        b.srd(20, 6, 4 * MB)
        if "f" not in DP:
            b.e("s_lshl_b32 s44, s29, 2"); b.e("s_add_u32 s44, s44, s30"); b.e("s_lshl_b32 s44, s44, 7"); b.e("s_xor_b32 s45, s44, 4096")
            b.e("s_add_u32 s44, s44, s55"); b.e(f"s_add_u32 s44, s44, {oFP}"); b.e("s_add_u32 s45, s45, s55"); b.e(f"s_add_u32 s45, s45, {oFP}")
            b.e(f"v_mov_b32 v{pt+1}, s45"); b.e(f"v_mov_b32 v{pt+2}, s52"); b.e(f"v_mov_b32 v{pt+3}, 0")
        else: b.e("s_add_u32 s44, s40, 65536")
        b.e("s_lshl_b32 s46, s28, 3"); b.e("s_add_u32 s46, s46, s37"); b.e("s_lshl_b32 s47, s31, 1"); b.e("s_add_u32 s46, s46, s47"); b.e("s_lshl_b32 s46, s46, 15")
        b.e("s_lshl_b32 s47, s38, 5"); b.e("s_add_u32 s46, s46, s47"); b.e(f"s_add_u32 s47, s46, {16*2048}")
        b.e(f"v_and_b32 v{oa+1}, 1, v{G}"); b.e(f"v_lshlrev_b32 v{oa}, 11, v{J}"); b.e(f"v_lshl_add_u32 v{oa}, v{oa+1}, 5, v{oa}")
        b.e(f"v_lshrrev_b32 v{oa+1}, 1, v{G}"); b.e(f"v_lshl_add_u32 v{oa}, v{oa+1}, 4, v{oa}")
        FULLN = os.environ.get("FULLN", "1") == "1"
        if FULLN:
            b.e(f"v_lshrrev_b32 v{oa+1}, 3, v{J}"); b.e(f"v_mul_u32_u24 v{oa+1}, {8*2048 - 64}, v{oa+1}"); b.e(f"v_sub_u32 v{oa}, v{oa}, v{oa+1}")
            b.e(f"v_add_u32 v{oa+1}, {8*2048}, v{oa}")
        OT = int(os.environ.get("OT", "0"))
        if OT == 1: b.e("s_mov_b64 exec, 1"); b.e(f"buffer_load_dword v{xf}, v{oa}, s[20:23], s46 offen {SC}"); b.e("s_mov_b64 exec, -1")
        if OT == 2:
            for k in range(4): b.e(f"buffer_load_dword v{xf}, v{oa+(k&1)}, s[20:23], s{46+(k>>1)} offen {SC}")
        group(fY, [], 0, b.l)
        mstamp(a)
        def send(m0_):
            for i in range(2):
                a.e(f"s_add_u32 s36, s41, {i*65536}")
                for p in range(2):
                    B = A_(m0_ + i, 2 * p)
                    for e in range(4): a.e(f"v_cvt_pk_bf16_f32 v{B+e}, v{B+2*e}, v{B+2*e+1}")
                    if "f" in DP: mark(a, B, 1)
                    a.e(f"buffer_store_dwordx4 {vr(B,4)}, v{l16}, s[16:19], s36 offen offset:{p*1024} {SC}")
        a.e("s_cmp_eq_u32 s31, 0"); a.e("s_cbranch_scc1 G4_k0")
        send(0)
        for i in range(0, 32, 2): a.e(f"v_pk_mov_b32 {vr(acc+i,2)}, {vr(acc+32+i,2)}, {vr(acc+32+i,2)} op_sel:[0,1]")
        a.e("s_branch G4_k1")
        a.e("G4_k0:")
        send(2)
        a.e("G4_k1:")
        a.e("s_mov_b32 s78, 0x3f80"); a.e("s_mov_b32 s79, 0x3f800000")
        def addp(k, R):
            B = A_(k >> 1, 2 * (k & 1))
            if DOT:
                for e in range(8): a.e(f"v_dot2_f32_bf16 v{B+e}, v{R+e//2}, s{78+(e&1)}, v{B+e}")
                return
            for e in range(4):
                unpack(a, xf + 2 * (e & 1), xf + 1 + 2 * (e & 1), R + e)
                a.e(f"v_pk_add_f32 {vr(B+2*e,2)}, {vr(B+2*e,2)}, {vr(xf+2*(e&1),2)}")
        for k in range(4): addp(k, RX[2 * k])
        if "f" not in DP:
            a.e("s_waitcnt vmcnt(0)")
            a.e("s_mov_b64 exec, 1"); a.e(f"buffer_store_dword v{pt+2}, v{pt+3}, s[56:59], s44 offen {SC}"); a.e("s_mov_b64 exec, -1")
        mstamp(a)
        for k in range(4): addp(k, RX[2 * k + 1])
        if "f" in DP:
            data_poll(a, [f"buffer_load_dwordx4 {vr(PX+4*(2*i+p),4)}, v{l16}, s[16:19], s{(40, 44)[i]} offen offset:{p*1024} {os.environ.get('FF', SC)}" for i in range(2) for p in range(2)],
                      [PX + 4 * k for k in range(4)], t, int(os.environ.get("FNAP", "2")), 0, int(os.environ.get("FCAN", "0")))
            mstamp(a)
        else:
            poll_core(a, pt, [pt + 1], 1, nap=2)
            mstamp(a)
            for i in range(2):
                a.e(f"s_add_u32 s36, s40, {i*65536}")
                for p in range(2): a.e(f"buffer_load_dwordx4 {vr(PX+4*(2*i+p),4)}, v{l16}, s[16:19], s36 offen offset:{p*1024} {SC}")
        for k in range(4):
            if "f" not in DP: a.e(f"s_waitcnt vmcnt({3 - (k & 1) if FULLN else 3})")
            addp(k, PX + 4 * k)
            B = A_(k >> 1, 2 * (k & 1))
            if os.environ.get("EPS"):
                for e in range(8): a.e(f"v_mul_f32 v{B+e}, {f32(1 + float(os.environ['EPS']) * (1 if e & 1 else -1))}, v{B+e}")
            for e in range(4): a.e(f"v_cvt_pk_bf16_f32 v{B+e}, v{B+2*e}, v{B+2*e+1}")
            for e in range(2): a.e(f"v_permlane16_swap_b32 v{B+e}, v{B+2+e}")
            if not FULLN: a.e(f"buffer_store_dwordx4 {vr(B,4)}, v{oa}, s[20:23], s{46+(k>>1)} offen offset:{64*(k&1)} {os.environ.get('OS', '')}")
            elif k & 1:
                X, Y, T = B - 8, B, B + 4
                for e in range(4): a.e(f"v_mov_b32 v{T+e}, v{X+e}")
                for e in range(4): a.e(f"v_mov_b32_dpp v{X+e}, v{Y+e} row_ror:8 row_mask:0xf bank_mask:0xc")
                for e in range(4): a.e(f"v_mov_b32_dpp v{Y+e}, v{T+e} row_ror:8 row_mask:0xf bank_mask:0x3")
                a.e(f"buffer_store_dwordx4 {vr(X,4)}, v{oa}, s[20:23], s{46+(k>>1)} offen {os.environ.get('OS', SC)}")
                a.e(f"buffer_store_dwordx4 {vr(Y,4)}, v{oa+1}, s[20:23], s{46+(k>>1)} offen {os.environ.get('OS', SC)}")
        a.e("s_branch K_fin")
    assert v.hi <= {1: RES2, 2: RES2, 3: RYY, 4: 176}[which], v.hi
    return v.hi

def k_mega(a):
    nm = KNAME; a.begin_kernel(nm)
    a.e("s_cmp_ge_u32 s2, 256"); a.e("s_cbranch_scc1 K_end")
    a.e(f"s_load_dwordx8 s[8:15], s[0:1], {A_K}")
    if FAST:
        if STAMP: a.e("s_memrealtime s[46:47]")
        front_first(a)
    a.e(f"s_load_dwordx2 s[6:7], s[0:1], {A_Q}"); a.e(f"s_load_dwordx8 s[68:75], s[0:1], {B_W1}")
    a.e(f"s_load_dwordx2 s[4:5], s[0:1], {D_WS}"); a.e(f"s_load_dwordx2 s[84:85], s[0:1], {D_DBG}")
    if not (FAST and STAMP): a.e("s_memrealtime s[46:47]")
    a.e(f"s_load_dwordx2 s[96:97], s[0:1], {A_SSMD}")
    a.e("v_lshrrev_b32 v1, 6, v0"); a.e("v_readfirstlane_b32 s30, v1")
    if CODEPF:
        a.e("s_getpc_b64 s[48:49]"); a.e("K_pc:")
        a.e("s_lshr_b32 s36, s2, 3"); a.e("s_lshl_b32 s36, s36, 11")
        a.e("v_lshlrev_b32 v4, 2, v0"); a.e("v_add_u32 v4, s36, v4")
        a.e("v_cmp_gt_u32 vcc, K_end-K_pc-8, v4"); a.e("s_and_saveexec_b64 s[36:37], vcc"); a.e("s_cbranch_execz K_3")
        a.e("v_mov_b32 v5, s49"); a.e("v_add_co_u32 v4, vcc, s48, v4"); a.e("v_addc_co_u32 v5, vcc, 0, v5, vcc")
        a.e("global_load_dword v250, v[4:5], off")
        a.e("K_3:"); a.e("s_mov_b64 exec, -1")
    for _ in range(int(os.environ.get("SDELAY", "0"))): a.e("s_sleep 127")
    front_loads(a)
    a.e("v_and_b32 v1, 63, v0"); a.e("v_lshlrev_b32 v2, 4, v1"); a.e("v_lshlrev_b32 v3, 2, v1")
    a.e("s_mov_b32 s67, 0")
    a.e("s_mov_b32 s60, 0"); a.e("s_mov_b32 s61, 40000"); a.e("s_mov_b32 s52, 0")
    a.e("s_mov_b32 s55, 0"); a.e("s_mov_b32 s92, 0"); a.e("s_mov_b32 s93, 0"); a.e("s_mov_b32 s94, 0")
    a.srd(56, 4, HSB)
    if os.environ.get("FIXT"): a.e("s_mov_b32 s101, s46")
    a.e(f"s_add_u32 s62, s4, {LB0}"); a.e("s_addc_u32 s63, s5, 0")
    if STAMP:
        a.e("s_mov_b32 s66, 1"); a.e("v_mov_b32 v255, -1"); a.e("s_mov_b32 s95, 0"); a.e("v_writelane_b32 v255, s46, 0")
    mstamp(a)
    if os.environ.get("WBENCH"):
        a.e("s_waitcnt vmcnt(0)"); a.e("s_barrier")
        a.e("s_cmp_lt_u32 s30, 6"); a.e("s_cbranch_scc1 WB_end")
        for w in (1, 2, 3, 4):
            mstamp(a); w_setup(a, w); a.e("s_waitcnt vmcnt(0)"); mstamp(a); a.e("s_sleep 40")
        a.e("WB_end:"); a.e("s_branch K_dump")
    front_a(a); mstamp(a)
    for r in range(238, 248): a.e(f"v_mov_b32 v{r}, 0")
    a.e("s_cmp_ge_u32 s30, 4"); a.e("s_cbranch_scc1 FR_b")
    front_conv(a); hi = 0
    mstamp(a)
    front_arrive(a, True, True)
    a.e("s_branch FR_end")
    a.e("FR_b:")
    front_b(a)
    a.e("FR_end:")
    mstamp(a)
    a.e("LAYER:")
    if os.environ.get("XDELAY"): a.e(f"s_sleep {os.environ['XDELAY']}")
    hi = max(hi, r_stage(a, False))
    mstamp(a)
    a.e("s_cmp_ge_u32 s30, 4"); a.e("s_cbranch_scc1 LOADERS")
    if CPRIO: a.e(f"s_setprio {CPRIO}")
    for w in (1, 2, 3, 4):
        a.lines.append(f"; ---- G{w}: compute waves (set-up, K loop, epilogue, publish)")
        hi = max(hi, g_compute(a, w))
    a.e("LOADERS:")
    park_rest(a, True)
    if SB[2]:
        a.e("s_cmp_lg_u32 s60, 0"); a.e("s_cbranch_scc1 LD_0"); sb(a, SB[2]); a.e("LD_0:")
    if PRIO: a.e(f"s_setprio {PRIO}")
    a.e("s_cmp_ge_u32 s30, 6"); a.e("s_cbranch_scc1 WLOAD")
    for w in (1, 2, 3, 4): a_loader(a, w)
    a.e("s_branch NEXT")
    a.e("WLOAD:")
    a.e("s_cmp_eq_u32 s60, 1"); a.e("s_cbranch_scc1 WL_1")
    w_setup(a, 1, pre=False); w1_slots(a, range(9 - W1G), pace=12); mstamp(a)
    a.e("s_branch WL_2")
    a.e("WL_1:")
    w_setup(a, 1, pre=False); w1_slots(a, range(3 - W1L), pace=12)
    a.e("WL_2:")
    for w in (1, 2, 3, 4):
        w_loader(a, w)
        if w == 2:
            c = CFG[3]; w_setup(a, 3, pre=False); n_ = 3 if W33 else 2; a.e(f"s_mov_b32 s42, {(c['S0'] + n_) % c['NW'] * c['STB']}"); a.e(f"s_mov_b32 s44, {n_}")
        if w == 3: w_setup(a, 4)
    a.e("NEXT:")
    a.e("s_setprio 0")
    a.e("s_add_u32 s60, s60, 1"); a.e(f"s_add_u32 s55, s55, {LSTR}")
    a.e(f"s_add_u32 s62, s62, {LSTR}"); a.e("s_addc_u32 s63, s63, 0")
    a.e("s_branch LAYER")
    a.e("K_fin:")
    if os.environ.get("FIXT"):
        a.e("FX_l:"); a.e("s_sleep 4"); a.e("s_memrealtime s[64:65]"); a.e("s_waitcnt lgkmcnt(0)"); a.e("s_sub_u32 s64, s64, s101")
        if os.environ.get("FIX0"): a.e("s_add_u32 s64, s64, s101"); a.e("s_lshl_b32 s64, s64, 6"); a.e("s_sub_u32 s64, s64, s52"); a.e("s_lshr_b32 s64, s64, 6")
        a.e(f"s_cmp_lt_u32 s64, {os.environ['FIXT']}"); a.e("s_cbranch_scc1 FX_l")
    if STAMP:
        a.e("K_dump:")
        a.e("s_waitcnt vmcnt(0)")
        mstamp(a)
        a.srd(96, 4, 16 * MB, off=200 * MB)
        a.e("s_lshl_b32 s66, s2, 3"); a.e("s_add_u32 s66, s66, s30"); a.e("s_lshl_b32 s66, s66, 8")
        a.e("v_writelane_b32 v255, s95, 63")
        a.e("buffer_store_dword v255, v3, s[96:99], s66 offen")
        if os.environ.get("DBGOUT"):
            a.e("s_cmp_lg_u32 s66, 0"); a.e("s_cbranch_scc1 K_end")
            a.e(f"s_load_dwordx2 s[96:97], s[0:1], {D_DBG}"); a.e("s_mov_b32 s98, 64"); a.e("s_waitcnt lgkmcnt(0)")
            a.e("v_readlane_b32 s64, v255, 0"); a.e("v_mov_b32 v10, 0")
            for i, j in enumerate(eval(os.environ["DBGOUT"])):
                a.e(f"v_readlane_b32 s65, v255, {j}"); a.e("s_sub_u32 s65, s65, s64"); a.e("v_mov_b32 v11, s65")
                a.e(f"buffer_store_dword v11, v10, s[96:99], 0 offen offset:{8+4*i}")
    a.e("s_endpgm")
    emit_subs(a)
    a.e("K_end:")
    assert hi <= PV
    a.end_kernel(nm, 256)
    if TAB: tab_data(a)
    a.launches.append(f"; @launch grid=(256,1,1) block=(512,1,1) lds={LDS_TOTAL}")

HEADER = open("interleave_layers__ssm_conv_h3__mixer_s_mlp__prompt.s.ref").read().split("; Override launch")[0]
DOC = """; One persistent kernel, 256 workgroups x 8 waves (one per CU), generated by dev/gen32.py.
"""
def main(out):
    a = Asm()
    k_mega(a)
    DS = os.environ.get("DS")
    if DS:
        o = []
        for l in a.lines:
            o.append(l)
            if "buffer_store_dwordx" in l and "sc1" in l and any(k in l for k in DS.split(",")): o.append(l.replace(" sc1", ""))
        a.lines = o
    notes = {
        "K_pc:": "each workgroup reads 2 KB of this kernel's code so that later instruction fetches are served on chip",
        "KV_t0:": "k / v / tap loads of the u^T tile (64 times x 128 channels); workgroup 0 has posted the launch tag (a clock value) in d_debug",
        "HB_2:": "u^T tile out, arrival counters initialised to the tag, roles, shifted filter copies into LDS",
        "CV_w:": "long causal convolution as Toeplitz MFMAs, one channel per wave",
        "FR_b:": "waves 4-7 beside the convolution: memory-locality vote (timed loads, layout choice only), weight column sums, weight touches",
        "LAYER:": "row stage: residual sums, LayerNorm chain, x + LN(x)*y for 8 rows per workgroup",
        "LOADERS:": "waves 4,5: LayerNorm scalars / column sums; activation tiles of G3, G4 by LDS-DMA (after the producers' counters are complete)",
        "WLOAD:": "waves 6,7: weight tiles by LDS-DMA in their original layout (read back with transposing LDS loads)",
        "G4_last:": "last layer: the two K halves exchange half tiles, add the residuals and write the output",
    }
    o = []
    for l in a.lines:
        if l.strip() in notes: o.append("; ---- " + notes[l.strip()])
        if l.strip().startswith("s_sleep"): l += "    ; back-off of a wave that waits for another workgroup or wave"
        o.append(l)
    a.lines = o
    open(out, "w").write(a.text(HEADER + DOC))
    print("nops added:", a.nops_added)

if __name__ == "__main__":
    main(sys.argv[1] if len(sys.argv) > 1 else "interleave_layers__ssm_conv_h3__mixer_s_mlp__prompt.s")
```

```python
import sys, os, math, struct
HERE = os.path.dirname(os.path.abspath(__file__)); sys.path.insert(0, HERE)
from asmgen import Asm

KNAME = "interleave_layers__ssm_conv_h3__mixer_s_mlp__prompt_kernel"
MB = 1 << 20
UT, Y = 24 * MB, 28 * MB
CSP = {1: 20 * MB, 3: 20 * MB + 128 * 1024}
A_Q, A_K, A_V, A_SH, A_SSMK, A_SSMD, B_X, B_W1, B_W2, B_W3, B_W4, D_OUT, D_DBG, D_WS = [8 * i for i in range(14)]
STAMP = int(os.environ.get("STAMP", "0"))
def f32(x): return "0x%08x" % struct.unpack("<I", struct.pack("<f", x))[0]
GC1 = -2.0 * math.sqrt(2.0 / math.pi) * math.log2(math.e)
GC2 = GC1 * 0.044715

class VA:
    def __init__(self, start=1): self.n = start; self.hi = start
    def __call__(self, cnt=1, al=None):
        if al is None: al = 2 if cnt > 1 else 1
        self.n = (self.n + al - 1) // al * al
        r = self.n; self.n += cnt; self.hi = max(self.hi, self.n); return r
def vr(b, n): return f"v[{b}:{b+n-1}]" if n > 1 else f"v{b}"

def unpack(a, lo, hi, src):
    a.e(f"v_lshlrev_b32 v{lo}, 16, v{src}")
    a.e(f"v_and_b32 v{hi}, 0xffff0000, v{src}")
RND = int(os.environ.get("RND", "0"))
def round2(a, x, y, tmp):
    if not RND: return
    a.e(f"v_cvt_pk_bf16_f32 v{tmp}, v{x}, v{y}")
    unpack(a, x, y, tmp)
def round1(a, x):
    if not RND: return
    a.e(f"v_cvt_pk_bf16_f32 v{x}, v{x}, v{x}")
    a.e(f"v_lshlrev_b32 v{x}, 16, v{x}")
def red_g(a, x, t):
    a.e(f"v_mov_b32 v{t}, v{x}"); a.e(f"v_permlane16_swap_b32 v{x}, v{t}"); a.e(f"v_add_f32 v{x}, v{x}, v{t}")
    a.e(f"v_mov_b32 v{t}, v{x}"); a.e(f"v_permlane32_swap_b32 v{x}, v{t}"); a.e(f"v_add_f32 v{x}, v{x}, v{t}")
def ln_finish(a, mean, var, rs, s=None):
    round1(a, mean); round1(a, var)
    a.e(f"v_add_f32 v{var}, {f32(1e-5)}, v{var}"); round1(a, var)
    if not RND and s is None: a.e(f"v_rsq_f32 v{rs}, v{var}"); return
    a.e(f"v_sqrt_f32 v{var}, v{var}"); round1(a, var)
    if s is not None: a.e(f"v_mov_b32 v{s}, v{var}")
    a.e(f"v_rcp_f32 v{rs}, v{var}")


FLG = 22 * MB + int(os.environ.get("FOFF", "0"))
LB0, LSTR, GSTR = 32 * MB, 4 * MB, 16 * MB
oH2 = 4 * MB; oSM = oH2 + 1792 * 1024; oFP = 16384; oST2 = oSM + 32768; oLNS = oSM + 65536
oX3, oX1P, oP0, oP1 = [i * 512 * 1024 for i in range(4)]
DP = os.environ.get("DP", "rf12")
if "r" in DP: oP0, oP1 = oX3, oX1P
def mark(a, r, bit): a.e(f"v_or_b32 v{r}, 1, v{r}" if bit else f"v_and_b32 v{r}, -2, v{r}")
V3 = int(os.environ.get("V3", "0"))
DOT = int(os.environ.get("DOT", "1"))
def data_poll(a, loads, regs, t, nap, first=0, canary=False):
    L = a.lab("dp"); D = a.lab("dq")
    if canary:
        a.e("s_bfm_b64 exec, 1, 63"); data_poll(a, loads, regs, t, nap, first); a.e("s_mov_b64 exec, -1"); first = 0
    a.e("s_mov_b32 s53, 0")
    if first:
        f2 = int(os.environ.get("RFIRST2", "10"))
        if f2: a.e(f"s_sleep {f2}")
        a.e("s_cmp_ge_u32 s30, 6"); a.e(f"s_cbranch_scc1 {L}"); a.e(f"s_sleep {first - f2}")
    a.e(f"{L}:")
    for x in loads: a.e(x)
    a.e("s_waitcnt vmcnt(0)")
    a.e(f"v_bitop3_b32 v{t}, v{regs[0]}, v{regs[1]}, v{regs[2]} bitop3:0x80"); a.e(f"v_bitop3_b32 v{t}, v{t}, v{regs[3]}, 1 bitop3:0x80")
    a.e(f"v_cmp_eq_u32 vcc, 0, v{t}"); a.e(f"s_cbranch_vccz {D}")
    a.e(f"s_sleep {nap}")
    a.e("s_add_u32 s53, s53, 1"); a.e("s_cmp_lt_u32 s53, s61"); a.e(f"s_cbranch_scc1 {L}")
    a.e("s_mov_b32 s61, 0")
    a.e(f"{D}:")
XSZ = 512 * 1024 - 8192; H2SZ = 1792 * 1024 - 8192
HSB = 160 * MB; PITCH = 65536 + int(os.environ.get("SKEW", "0")); oHS = MB
def fso(stage): return int(stage * 256)
def spread(a, d, src):
    a.e(f"s_lshr_b32 s53, s{src}, 3"); a.e("s_lshl_b32 s53, s53, 14"); a.e(f"s_and_b32 s{d}, s{src}, 7"); a.e(f"s_lshl_b32 s{d}, s{d}, 10"); a.e(f"s_add_u32 s{d}, s{d}, s53")
ST_R, ST_G1, ST_G2, ST_G3, ST_G4, ST_R2, ST_G3B, ST_G3A = range(8); ST_G2S = 5.5
F_KVT, F_FRONT, F_CS = FLG, FLG + 32768, FLG + 53248; F_VOTE = F_FRONT + 16384; F_RES = F_VOTE
LDS_TOTAL = 163840
AUX = LDS_TOTAL - 4096
SC = "sc1"
PSLEEP = int(os.environ.get("PSLEEP", "5"))
ROT = int(os.environ.get("ROT", "1"))
PACE = int(os.environ.get("PACE", "8"))
PDEPTH = int(os.environ.get("PDEPTH", "1"))
WROT = int(os.environ.get("WROT", "1"))
PRIO = int(os.environ.get("PRIO", "0"))
STQ = int(os.environ.get("STQ", "12"))
CPRIO = int(os.environ.get("CPRIO", "0"))
FSLEEP = int(os.environ.get("FSLEEP", "6"))
CSPRIO = int(os.environ.get("CSPRIO", "1"))
NT = os.environ.get("NT", "nt"); HALO = int(os.environ.get("HALO", "0")); NTK = os.environ.get("NTK", "" if HALO else NT); NTH = os.environ.get("NTH", NT)
W1F = int(os.environ.get("W1F", "7"))
WSC = eval(os.environ.get("WSC", "{}"))
TLBW = int(os.environ.get("TLBW", "0"))
T12 = eval(os.environ.get("T12", "{}"))
T23 = eval(os.environ.get("T23", "()"))
OWN3 = int(os.environ.get("OWN3", "1"))
PUB2 = int(os.environ.get("PUB2", "4"))
MAP = int(os.environ.get("MAP", "4"))
HSPLIT = int(os.environ.get("HSPLIT", "2"))
W1G = int(os.environ.get("W1G", "9"))
PWAIT = int(os.environ.get("PWAIT", "8"))
DL = eval(os.environ.get("DL", "[2,4]"))
PACES = eval(os.environ.get("PACES", "{4:6}"))
C0PUB = int(os.environ.get("C0PUB", "6"))
LNSL = AUX + 1024

CFG = {1: dict(WM=4, WN=1, MT=2, NT=4, KBT=32, NS=16, NA=1.5, NW=16, A=oX3, W=B_W1, LDW=2048),
       2: dict(WM=4, WN=1, MT=2, NT=4, KBT=32, NS=16, NA=0, NW=16, A=oHS, W=B_W2, LDW=2048),
       3: dict(WM=2, WN=2, MT=4, NT=7, KBT=32, NS=16, NA=3, NW=3, A=oX1P, W=B_W3, LDW=7168, NPRE=2, WR=1, S0=2, WB=73728),
       4: dict(WM=2, WN=2, MT=4, NT=4, KBT=112, NS=28, NA=3, NW=6, A=oH2, W=B_W4, LDW=2048)}
for w, d in eval(os.environ.get("CFG", "{}")).items(): CFG[w].update(d)
for c in CFG.values():
    c.setdefault("NPRE", c["NW"]); c.setdefault("APRE", min(c["NA"], 3)); c.setdefault("WR", 1)
    c["TN16"] = c["WN"] * c["NT"]; c["STB"] = c["TN16"] * 2048; c.setdefault("WB", int(c["NA"] * 16384)); c.setdefault("S0", 0)
    c["RB"] = c["TN16"] * 32
    assert c["WB"] + c["NW"] * c["STB"] <= AUX
NX = 0
def nib(t): return sum(x << (4 * i) for i, x in enumerate(t))
CSO = {1: AUX + 3584, 3: AUX}

LW = AUX + 3072
def mstamp(a, force=False):
    if os.environ.get("JIT"):
        X = a.lab("jit")
        a.e("s_cselect_b32 s101, 1, 0"); a.e("s_memtime s[64:65]"); a.e("s_waitcnt lgkmcnt(0)"); a.e(f"s_and_b32 s64, s64, {os.environ['JIT']}"); a.e("s_cmp_lg_u32 s64, 0")
        a.e(f"s_cbranch_scc1 {X}"); a.e("s_sleep 50"); a.e(f"{X}:"); a.e("s_cmp_eq_u32 s101, 1")
        return
    if not STAMP or (os.environ.get("GST") and not force): return
    a.e(("s_memrealtime" if STAMP == 2 else "s_memtime") + " s[64:65]"); a.e("s_mov_b32 s100, m0"); a.e("s_mov_b32 m0, s66"); a.e("s_waitcnt lgkmcnt(0)")
    a.e("v_writelane_b32 v255, s64, m0"); a.e("s_mov_b32 m0, s100")
    a.e("s_add_u32 s66, s66, 1")

def lsrd(a, d, off, nbytes, prev=False):
    if prev:
        a.e(f"s_sub_u32 s{d}, s62, {LSTR - off:#x}"); a.e(f"s_subb_u32 s{d+1}, s63, 0")
        a.e(f"s_mov_b32 s{d+2}, {nbytes:#x}"); a.e(f"s_mov_b32 s{d+3}, 0x20000")
    else: a.srd(d, 62, nbytes, off=off)

def hs_srd(a, d):
    if "2" in DP: a.srd(d, 4, 128 * PITCH, off=HSB); return
    a.e("s_lshl_b32 s53, s60, 24"); a.e(f"s_add_u32 s53, s53, {HSB}")
    a.e(f"s_add_u32 s{d}, s4, s53"); a.e(f"s_addc_u32 s{d+1}, s5, 0"); a.e(f"s_mov_b32 s{d+2}, {128*PITCH}"); a.e(f"s_mov_b32 s{d+3}, 0x20000")

def group_off(a, d, m):
    a.e(f"s_lshr_b32 s53, s{m}, 3"); a.e("s_lshl_b32 s53, s53, 2"); a.e(f"s_and_b32 s54, s{m}, 3"); a.e("s_add_u32 s53, s53, s54"); a.e("s_lshl_b32 s53, s53, 24")
    a.e(f"s_lshr_b32 s54, s{m}, 2"); a.e("s_xor_b32 s54, s54, s94"); a.e("s_and_b32 s54, s54, 1"); a.e("s_lshl_b32 s54, s54, 13")
    a.e(f"s_add_u32 s{d}, s53, s54"); a.e(f"s_add_u32 s{d}, s{d}, {LB0}")

PV = 240
def poll_core(a, t, addrs, mask, extra=None, depth=1, cnt=0, nap=None):
    L = a.lab("poll"); D = a.lab("pok")
    n = len(addrs) + (1 if extra else 0)
    if depth > 1: t0 = t; regs = [PV + k * len(addrs) for k in range(depth)]; assert not extra and regs[-1] + len(addrs) <= 256
    else: regs = [t]
    def ld(r):
        for i, ad in enumerate(addrs): a.e(f"buffer_load_dword v{r+i}, v{ad}, s[56:59], 0 offen {SC}")
        if extra: a.e(extra[0])
    a.e("s_mov_b32 s53, 0"); a.e(f"s_add_u32 s54, s52, {cnt}")
    if mask != -1: a.e(f"s_bfm_b64 exec, {mask.bit_length()}, 0")
    for r in regs[:-1]: ld(r); a.e(f"s_sleep {PSLEEP}")
    a.e(f"{L}:")
    for k in range(depth):
        ld(regs[k - 1]); r = regs[k]
        a.e(f"s_waitcnt vmcnt({n*(depth-1)})")
        for i in range(len(addrs)): a.e(f"v_xor_b32 v{r+i}, s54, v{r+i}")
        for i in range(1, len(addrs)): a.e(f"v_or_b32 v{r}, v{r}, v{r+i}")
        if extra:
            for x in extra[1:]: a.e(x)
        a.e(f"v_cmp_eq_u32 vcc, 0, v{r}")
        a.e("s_cmp_eq_u64 vcc, exec"); a.e(f"s_cbranch_scc1 {D}")
        a.e(f"s_sleep {PSLEEP if nap is None else nap}")
    a.e("s_add_u32 s53, s53, 1"); a.e("s_cmp_lt_u32 s53, s61"); a.e(f"s_cbranch_scc1 {L}")
    a.e("s_mov_b32 s61, 0")
    a.e(f"{D}:")
    if mask != -1: a.e("s_mov_b64 exec, -1")

SPLIT = {ST_G1: "sign", ST_G3: "half", ST_G3A: "half", ST_G3B: "half"}
def flag_addr(a, r, stage, prev=False):
    so = fso(stage) - (LSTR if prev else 0)
    a.e(f"s_add_u32 s54, s55, {so & 0xffffffff:#x}")
    sp = SPLIT.get(stage)
    if sp == "half": a.e("s_lshl_b32 s53, s31, 7"); a.e("s_add_u32 s54, s54, s53")
    a.e(f"v_mov_b32 v{r}, s54")
    if sp == "sign":
        a.e("s_add_u32 s53, s54, 128"); a.e(f"v_writelane_b32 v{r}, s53, 1")
        a.e("s_add_u32 s53, s53, s93"); a.e(f"v_writelane_b32 v{r}, s53, 3")
        a.e("s_add_u32 s53, s54, s92"); a.e(f"v_writelane_b32 v{r}, s53, 2")
        return 0xf, 8
    return 1, 8 if sp else 16
def own_wait(a, stage, prev, t):
    if not PWAIT or stage == ST_R: return
    k = {ST_G1: 1, ST_G2: 2, ST_G4: 3}[stage] - (3 if prev else 0)
    a.e(f"s_mul_i32 s54, s60, {2 if 'r' in DP else 3}"); a.e(f"s_add_u32 s54, s54, {k}")
    lds_spin(a, LW + 56, "s54", t, nap=PWAIT)
def flag_try(a, r, ad):
    a.e("s_mov_b64 exec, 1"); a.e(f"buffer_load_dword v{r}, v{ad}, s[56:59], 0 offen {SC}"); a.e("s_mov_b64 exec, -1")
def flag_check(a, r, ad, cnt):
    D = a.lab("fok")
    a.e(f"v_readfirstlane_b32 s53, v{r}"); a.e(f"s_add_u32 s54, s52, {cnt}"); a.e("s_cmp_eq_u32 s53, s54"); a.e(f"s_cbranch_scc1 {D}")
    poll_core(a, r, [ad], 1, cnt=cnt)
    a.e(f"{D}:")

def poll(a, stage, t, prev=False):
    D = a.lab("pdone")
    a.e("s_cmp_lg_u32 s30, 4"); a.e(f"s_cbranch_scc1 {D}")
    own_wait(a, stage, prev, t)
    mask, cnt = flag_addr(a, t + 1, stage, prev)
    poll_core(a, t, [t + 1], mask, depth=PDEPTH, cnt=cnt)
    a.e(f"{D}:")
    if stage != ST_G4: mstamp(a)
    a.e("s_barrier")

def publish(a, stage, nw, t, off=None, wait=0, ctr=None, flag=False):
    D = a.lab("pub")
    mark = PWAIT and off is None and stage in (ST_G1, ST_G2, ST_G4)
    if off is None:
        a.e(f"s_add_u32 s53, s55, {fso(stage)}"); off = 53
        sp = SPLIT.get(stage)
        if sp == "half": a.e("s_lshl_b32 s54, s31, 7"); a.e("s_add_u32 s53, s53, s54")
        if sp == "sign": a.e("s_and_b32 s54, s29, 4"); a.e("s_lshl_b32 s54, s54, 5"); a.e("s_add_u32 s53, s53, s54")
    a.e(f"v_mov_b32 v{t}, 1"); a.e(f"v_mov_b32 v{t+1}, {LW + (ctr if ctr is not None else 4 if nw == 8 else 0)}"); a.e(f"v_mov_b32 v{t+3}, 0")
    a.e("s_mov_b64 exec, 1")
    if wait is not None: a.e(f"s_waitcnt vmcnt({wait})")
    if nw > 1:
        a.e(f"ds_add_rtn_u32 v{t+2}, v{t+1}, v{t}")
        if flag: a.e(f"v_mov_b32 v{t+1}, s52")
        a.e("s_waitcnt lgkmcnt(0)")
        a.e(f"v_readfirstlane_b32 s54, v{t+2}")
        a.e(f"s_and_b32 s54, s54, {nw-1}"); a.e(f"s_cmp_lg_u32 s54, {nw-1}"); a.e(f"s_cbranch_scc1 {D}")
    if flag: a.e(f"buffer_store_dword v{t+1}, v{t+3}, s[56:59], s{off} offen {SC}")
    else: a.e(f"buffer_atomic_add v{t}, v{t+3}, s[56:59], s{off} offen {SC}")
    if stage == ST_R and not flag:
        a.e("s_cmp_lg_u32 s60, 0"); a.e(f"s_cbranch_scc1 {D}")
        a.e("s_lshl_b32 s53, s29, 7"); a.e(f"s_add_u32 s53, s53, {F_CS}")
        a.e(f"buffer_atomic_add v{t}, v{t+3}, s[56:59], s53 offen {SC}")
    if mark: a.e(f"v_mov_b32 v{t+1}, {LW+56}"); a.e(f"ds_add_u32 v{t+1}, v{t}")
    a.e(f"{D}:")
    a.e("s_mov_b64 exec, -1")

def lds_spin(a, addr, target, t, dst=53, nap=False):
    L = a.lab("spin")
    a.e(f"v_mov_b32 v{t}, {addr}")
    a.e(f"{L}:")
    if nap: a.e(f"s_sleep {int(nap)}")
    a.e(f"ds_read_b32 v{t+1}, v{t}"); a.e("s_waitcnt lgkmcnt(0)"); a.e(f"v_readfirstlane_b32 s{dst}, v{t+1}")
    a.e(f"s_cmp_ge_u32 s{dst}, {target}"); a.e(f"s_cbranch_scc0 {L}")
def lds_set(a, addr, val, t):
    a.e(f"v_mov_b32 v{t}, {addr}"); a.e(f"v_mov_b32 v{t+1}, {val}")
    a.e("s_waitcnt lgkmcnt(0)"); a.e(f"ds_write_b32 v{t}, v{t+1}")
def lbar(a, k, t):
    a.e(f"v_mov_b32 v{t}, {LW+8}"); a.e(f"v_mov_b32 v{t+1}, 1")
    a.e("s_waitcnt lgkmcnt(0)")
    a.e("s_mov_b64 exec, 1"); a.e(f"ds_add_u32 v{t}, v{t+1}"); a.e("s_mov_b64 exec, -1")
    lds_spin(a, LW + 8, 4 * k + (2 if PWA else 0), t)

def gelu4(a, X, t, c1, c2):
    P = [(X, t), (X + 2, t + 2)]
    for x, u in P: a.e(f"v_pk_mul_f32 {vr(u,2)}, {vr(x,2)}, {vr(x,2)}")
    for x, u in P: a.e(f"v_pk_fma_f32 {vr(u,2)}, {vr(u,2)}, {vr(c2,2)}, {vr(c1,2)}")
    for x, u in P: a.e(f"v_pk_mul_f32 {vr(u,2)}, {vr(u,2)}, {vr(x,2)}")
    for i in range(4): a.e(f"v_exp_f32 v{t+i}, v{t+i}")
    for x, u in P: a.e(f"v_pk_add_f32 {vr(u,2)}, {vr(u,2)}, 1.0 op_sel_hi:[1,0]")
    for i in range(4): a.e(f"v_rcp_f32 v{t+i}, v{t+i}")
    for x, u in P: a.e(f"v_pk_mul_f32 {vr(x,2)}, {vr(x,2)}, {vr(u,2)}")

W2EARLY = int(os.environ.get("W2EARLY", "1")); QLATE = int(os.environ.get("QLATE", "0"))
TOUCH2 = [(A_Q, 4 * MB)] + ([] if W2EARLY else [(B_W2, 2 * MB)])
CODEPF = int(os.environ.get("CODEPF", "1")); NVOTE = int(os.environ.get("NVOTE", "32")); QUO = int(os.environ.get("QUO", "21")); NSAMP = int(os.environ.get("NSAMP", "2"))
W4POS = os.environ.get("W4POS", "3C")
HSTR = 4160; CHB = 24576; UOFF = 4 * HSTR; US = 96
KVS = 4 * CHB

KT = int(os.environ.get("KT", "1"))
KV = dict(cq=6, tg=7, t=8, ro=9, wo=16, pt=18, kr=22, vv=36, w=44, d=52, hoff=70, tag=76, zz=78)
FAST = int(os.environ.get("FAST", "0"))
def front_first(a):
    cq, tg, t, ro, wo, kr, vv, w = [KV[k] for k in "cq tg t ro wo kr vv w".split()]
    a.e(f"v_and_b32 v{cq}, 31, v0"); a.e(f"v_lshrrev_b32 v{tg}, 5, v0")
    a.e("s_and_b32 s34, s2, 7"); a.e("s_lshr_b32 s35, s2, 3")
    a.e("s_lshl_b32 s36, s35, 17"); a.e("s_lshl_b32 s37, s34, 8"); a.e("s_add_u32 s36, s36, s37")
    a.e(f"v_lshlrev_b32 v{t}, 13, v{tg}"); a.e(f"v_lshl_add_u32 v{t}, v{cq}, 3, v{t}"); a.e(f"v_add_u32 v{ro+3}, s36, v{t}")
    a.e(f"v_add_u32 v{ro+5}, 4096, v{ro+3}")
    a.e("s_waitcnt lgkmcnt(0)")
    for i in range(4): a.e(f"global_load_dwordx2 {vr(kr+2*(i+3),2)}, v{ro+3+(i&2)}, s[8:9] offset:{2048*(i&1)} {NTK}")
    for i in range(4): a.e(f"global_load_dwordx2 {vr(vv+2*i,2)}, v{ro+3+(i&2)}, s[10:11] offset:{2048*(i&1)} {NT}")
def front_loads(a):
    cq, tg, t, ro, wo, kr, vv, w = [KV[k] for k in "cq tg t ro wo kr vv w".split()]
    a_ = a
    if FAST: a = Rec()
    a.e(f"v_and_b32 v{cq}, 31, v0"); a.e(f"v_lshrrev_b32 v{tg}, 5, v0")
    a.e("s_and_b32 s34, s2, 7"); a.e("s_lshr_b32 s35, s2, 3")
    a.e("s_lshl_b32 s36, s35, 17"); a.e("s_lshl_b32 s37, s34, 8"); a.e("s_add_u32 s36, s36, s37")
    a.e(f"v_lshlrev_b32 v{t}, 13, v{tg}"); a.e(f"v_lshl_add_u32 v{t}, v{cq}, 3, v{t}"); a.e(f"v_add_u32 v{ro+3}, s36, v{t}")
    a.e(f"v_add_u32 v{ro+5}, 4096, v{ro+3}")
    a = a_
    a.e(f"s_mov_b32 s18, {4*MB}"); a.e("s_mov_b32 s19, 0x20000"); a.e("s_mov_b32 s22, s18"); a.e("s_mov_b32 s23, s19")
    a.e("s_waitcnt lgkmcnt(0)")
    tag, zz = KV["tag"], KV["zz"]
    a.e("s_mov_b32 s86, 256"); a.e("s_mov_b32 s87, 0x20000"); a.e(f"v_mov_b32 v{zz}, 0")
    a.e("s_lshl_b32 s45, s2, 3"); a.e("s_add_u32 s45, s45, s30"); a.e("s_cmp_lg_u32 s45, 4"); a.e("s_cbranch_scc1 KV_t0")
    a.e("s_getreg_b32 s45, hwreg(HW_REG_XCC_ID, 0, 3)"); a.e("s_lshl_b32 s45, s45, 1")
    a.e("s_lshl_b32 s44, s46, 6"); a.e("s_or_b32 s44, s44, s45"); a.e("s_or_b32 s44, s44, 1"); a.e(f"v_mov_b32 v{tag}, s44"); a.e(f"v_mov_b32 v{tag+1}, 0")
    a.e("s_mov_b64 exec, 1"); a.e(f"buffer_store_dwordx2 {vr(tag,2)}, v{zz}, s[84:87], 0 offen {SC}"); a.e("s_mov_b64 exec, -1")
    a.e("KV_t0:")
    a.e("s_mov_b64 s[16:17], s[8:9]"); a.e("s_mov_b64 s[20:21], s[10:11]")
    for i in range(0 if FAST else 4): a.e(f"buffer_load_dwordx2 {vr(kr+2*(i+3),2)}, v{ro+3+(i&2)}, s[16:19], 0 offen offset:{2048*(i&1)} {NTK}")
    for i in range(0 if FAST else 4): a.e(f"buffer_load_dwordx2 {vr(vv+2*i,2)}, v{ro+3+(i&2)}, s[20:23], 0 offen offset:{2048*(i&1)} {NT}")
    for i in range(3): a.e(f"v_subrev_u32 v{ro+i}, {2048*(3-i)}, v{ro+3}")
    a.e("s_lshl_b32 s37, s34, 10"); a.e(f"v_lshlrev_b32 v{wo}, 5, v{cq}"); a.e(f"v_add_u32 v{wo}, s37, v{wo}")
    a.srd(24, 12, 8192)
    XP = os.environ.get("XP", "g")
    if KT:
        a.e(f"v_and_b32 v{t}, 1, v{tg}"); a.e(f"v_lshl_add_u32 v{wo}, v{t}, 4, v{wo}")
        a.e(f"buffer_load_dwordx4 {vr(w,4)}, v{wo}, s[24:27], 0 offen")
    for i in range(0 if "t" in XP or KT else 2): a.e(f"buffer_load_dwordx4 {vr(w+4*i,4)}, v{wo}, s[24:27], 0 offen offset:{16*i}")
    if "g" in XP:
        a.e("s_cmp_lg_u32 s30, 4"); a.e("s_cbranch_scc1 KV_t2")
        a.e(f"buffer_load_dword v{tag}, v{zz}, s[84:87], 0 offen {SC}")
        a.e("KV_t2:")
    if "h" in XP: return
    if HALO:
        a.e("s_cmp_lg_u32 s30, 0"); a.e("s_cbranch_scc1 KV_h0"); a.e("s_bfm_b64 exec, 32, 0")
    if KT: a.e("s_bfm_b64 exec, 32, 0")
    for i in range(3): a.e(f"buffer_load_dwordx2 {vr(kr+2*i,2)}, v{ro+i}, s[16:19], 0 offen {NTK}")
    if KT: a.e("s_mov_b64 exec, -1")
    if HALO: a.e("s_mov_b64 exec, -1"); a.e("KV_h0:")

def probe_base(a):
    assert NVOTE <= 64
    a.e("s_and_b32 s42, s2, 7"); a.e("s_lshl_b32 s42, s42, 10"); a.e("s_lshr_b32 s43, s2, 3"); a.e("s_lshl_b32 s43, s43, 14"); a.e("s_add_u32 s42, s42, s43")
    a.e(f"s_add_u32 s42, s42, {LB0 + oSM + 131072}")
PWA = int(os.environ.get("PWA", "1"))
def front_arrive(a, wait, conv=False):
    D = a.lab("fa"); t = 6
    if PWA:
        if conv:
            a.e("s_mov_b64 exec, 0xf"); a.e("s_waitcnt vmcnt(0)"); a.e(f"buffer_atomic_add v{t+1}, v{t}, s[56:59], s45 offen {SC}"); a.e("s_mov_b64 exec, -1")
        elif wait:
            a.e(f"v_mov_b32 v{t}, 1"); a.e(f"v_mov_b32 v{t+1}, {LW+8}"); a.e("s_mov_b64 exec, 1"); a.e("s_waitcnt vmcnt(0)"); a.e(f"ds_add_u32 v{t+1}, v{t}"); a.e("s_mov_b64 exec, -1")
        return
    a.e("s_and_b32 s36, s2, 7"); a.e("s_lshl_b32 s36, s36, 7"); a.e(f"s_add_u32 s36, s36, {F_FRONT}")
    a.e(f"v_mov_b32 v{t}, 1"); a.e(f"v_mov_b32 v{t+1}, {LW+4}"); a.e(f"v_lshlrev_b32 v{t+3}, 10, v1")
    a.e("s_mov_b64 exec, 1")
    if wait: a.e("s_waitcnt vmcnt(0)")
    a.e("s_waitcnt lgkmcnt(0)")
    a.e(f"ds_add_rtn_u32 v{t+2}, v{t+1}, v{t}")
    a.e("s_waitcnt lgkmcnt(0)")
    a.e(f"v_readfirstlane_b32 s54, v{t+2}")
    a.e("s_cmp_lg_u32 s54, 15"); a.e(f"s_cbranch_scc1 {D}")
    a.e("s_mov_b64 exec, 0xffff")
    a.e(f"buffer_atomic_add v{t}, v{t+3}, s[56:59], s36 offen {SC}")
    a.e(f"{D}:"); a.e("s_mov_b64 exec, -1")
XR = int(os.environ.get("XR", "1"))
def roles(a):
    if XR: a.e("s_bfe_u32 s32, s52, 0x30001"); a.e("s_add_u32 s32, s32, s2"); a.e("s_and_b32 s32, s32, 7")
    else: a.e("s_and_b32 s32, s2, 7")
    a.e("s_lshr_b32 s33, s2, 3")
    a.e("s_and_b32 s28, s32, 2"); a.e("s_lshr_b32 s53, s32, 2"); a.e("s_or_b32 s28, s28, s53")
    a.e("s_lshl_b32 s28, s28, 2"); a.e("s_and_b32 s53, s33, 3"); a.e("s_add_u32 s28, s28, s53")
    a.e("s_and_b32 s31, s32, 1"); a.e("s_lshr_b32 s33, s33, 2")
    a.e("s_lshl_b32 s29, s31, 3"); a.e("s_add_u32 s29, s29, s33")
    a.e(f"s_xor_b32 s99, s29, {os.environ.get('G1X', '1')}")
    r_addr(a)
def front_a(a):
    cq, tg, t, pt, kr, vv, w, d, hoff, tag, zz = [KV[k] for k in "cq tg t pt kr vv w d hoff tag zz".split()]
    v = VA(80)
    a.e("s_and_b32 s41, s30, 3"); chan_setup(a, 41)
    a.e("s_lshr_b32 s36, s39, 1"); a.e("s_lshl_b32 s36, s36, 2"); a.e("s_load_dword s98, s[96:97], s36")
    a.e("s_lshl_b32 s36, s39, 12")
    a.e("s_add_u32 s12, s14, s36"); a.e("s_addc_u32 s13, s15, 0"); a.e("s_mov_b32 s14, 4096"); a.e("s_mov_b32 s15, 0x20000")
    a.e("s_lshr_b32 s45, s30, 2"); a.e("s_lshl_b32 s45, s45, 11")
    for it in range(3):
        if it < 2: a.e(f"s_add_u32 s36, s45, {(1024*it - 64) & 0xffffffff:#x}")
        else: a.e(f"s_mov_b32 s36, {4096 - 64}")
        a.e(f"v_add_u32 v{hoff+2*it}, s36, v2"); a.e(f"v_add_u32 v{hoff+2*it+1}, 16, v{hoff+2*it}")
    a.e("s_and_b32 s34, s2, 7"); a.e("s_lshr_b32 s35, s2, 3")
    z = v(4, 4); la = v(); t2 = v(); hw = v()
    for i in range(4): a.e(f"v_mov_b32 v{z+i}, 0")
    a.e(f"v_add_u32 v{hw}, s40, v2")
    a.e(f"ds_write_b128 v{hw}, {vr(z,4)} offset:{UOFF+64*US}")
    a.e(f"s_bfm_b64 exec, {(15*US - 1024)//16}, 0"); a.e(f"ds_write_b128 v{hw}, {vr(z,4)} offset:{UOFF+64*US+1024}"); a.e("s_mov_b64 exec, -1")
    a.e(f"v_lshlrev_b32 v{t}, 2, v{tg}"); a.e(f"v_sub_u32 v{t}, 60, v{t}")
    a.e(f"v_lshrrev_b32 v{t2}, 3, v{t}"); a.e(f"v_bfe_u32 v{la}, v{cq}, 1, 3"); a.e(f"v_xor_b32 v{t2}, v{t2}, v{la}"); a.e(f"v_lshlrev_b32 v{t2}, 4, v{t2}")
    a.e(f"v_and_b32 v{t}, 7, v{t}"); a.e(f"v_lshl_add_u32 v{t2}, v{t}, 1, v{t2}")
    a.e(f"v_lshl_add_u32 v{la}, v{cq}, 9, v{t2}"); a.e(f"v_add_u32 v{la}, {KVS}, v{la}")
    wf = v(8, 2); kf = v(14, 2); vf = v(8, 2); ks = v(8, 2); pr = v(8, 2); o = v(8, 4); tm = v(4, 1)
    a.e("s_waitcnt vmcnt(0)")
    if HALO:
        for i in range(3): a.e(f"buffer_load_dwordx2 {vr(kr+2*i,2)}, v{KV['ro']+i}, s[16:19], 0 offen {NTK}")
        if HALO == 1: a.e("s_waitcnt vmcnt(0)")
    a.e("s_cmp_lg_u32 s30, 4"); a.e("s_cbranch_scc1 KV_t1")
    if "g" not in os.environ.get("XP", "g"): a.e(f"buffer_load_dword v{tag}, v{zz}, s[84:87], 0 offen {SC}")
    a.e("KV_t1:")
    for it in range(3):
        a.e(f"buffer_load_dwordx4 {vr(d+6*it,4)}, v{hoff+2*it}, s[12:15], 0 offen {NTH}")
        a.e(f"buffer_load_dwordx2 {vr(d+6*it+4,2)}, v{hoff+2*it+1}, s[12:15], 0 offen {NTH}")
    if HALO == 2: a.e("s_waitcnt vmcnt(10)")
    mstamp(a)
    if KT:
        for e in range(4): a.e(f"v_mov_b32 v{w+4+e}, v{w+e}")
        for e in range(6): a.e(f"v_mov_b32 v{pr+e}, v{kr+8+e}")
        for e in range(4): a.e(f"v_permlane32_swap_b32 v{w+e}, v{w+4+e}")
        for e in range(6): a.e(f"v_permlane32_swap_b32 v{kr+e}, v{pr+e}")
    for dd in range(2):
        for c in range(2):
            unpack(a, wf + 0 + c, wf + 2 + c, w + 2 * (2 * dd + c)); unpack(a, wf + 4 + c, wf + 6 + c, w + 2 * (2 * dd + c) + 1)
        for i in range(7): unpack(a, kf + 2 * i, kf + 2 * i + 1, kr + 2 * i + dd)
        for i in range(4): unpack(a, vf + 2 * i, vf + 2 * i + 1, vv + 2 * i + dd)
        def rnd(base):
            for i in range(4): a.e(f"v_cvt_pk_bf16_f32 v{tm+i}, v{base+2*i}, v{base+2*i+1}")
            for i in range(4): unpack(a, base + 2 * i, base + 2 * i + 1, tm + i)
        for i in range(4): a.e(f"v_pk_mul_f32 {vr(ks+2*i,2)}, {vr(kf+2*i,2)}, {vr(wf+6,2)}")
        if RND: rnd(ks)
        for j in range(1, 4):
            if not RND:
                for i in range(4): a.e(f"v_pk_fma_f32 {vr(ks+2*i,2)}, {vr(kf+2*(i+j),2)}, {vr(wf+6-2*j,2)}, {vr(ks+2*i,2)}")
                continue
            for i in range(4): a.e(f"v_pk_mul_f32 {vr(pr+2*i,2)}, {vr(kf+2*(i+j),2)}, {vr(wf+6-2*j,2)}")
            rnd(pr)
            for i in range(4): a.e(f"v_pk_add_f32 {vr(ks+2*i,2)}, {vr(ks+2*i,2)}, {vr(pr+2*i,2)}")
            rnd(ks)
        for i in range(4): a.e(f"v_pk_mul_f32 {vr(ks+2*i,2)}, {vr(ks+2*i,2)}, {vr(vf+2*i,2)}")
        for c in range(2):
            e = 2 * dd + c
            a.e(f"v_cvt_pk_bf16_f32 v{o+2*e}, v{ks+6+c}, v{ks+4+c}"); a.e(f"v_cvt_pk_bf16_f32 v{o+2*e+1}, v{ks+2+c}, v{ks+c}")
            a.e(f"ds_write_b64 v{la}, {vr(o+2*e,2)} offset:{e*128}")
    a.e("s_cmp_lg_u32 s30, 4"); a.e("s_cbranch_scc1 HB_2")
    a.e(f"v_add_u32 v{pt}, {LW}, v3"); a.e(f"ds_write_b32 v{pt}, v{zz}")
    a.e("s_mov_b32 s53, 0")
    a.e("s_waitcnt vmcnt(6)")
    a.e("HB_p:")
    a.e(f"v_readfirstlane_b32 s52, v{tag}"); a.e("s_cmp_eq_u32 s52, 0"); a.e("s_cbranch_scc1 HB_r")
    a.e("s_cmp_ge_u32 s53, 60"); a.e("s_cbranch_scc1 HB_q")
    a.e("s_add_u32 s54, s46, 8192"); a.e("s_lshl_b32 s54, s54, 6"); a.e("s_sub_u32 s54, s54, s52"); a.e(f"s_cmp_lt_u32 s54, {12288*64}"); a.e("s_cbranch_scc1 HB_q")
    a.e("HB_r:")
    a.e(f"buffer_load_dword v{tag}, v{zz}, s[84:87], 0 offen {SC}"); a.e("s_waitcnt vmcnt(0)")
    a.e("s_add_u32 s53, s53, 1"); a.e("s_cmp_lt_u32 s53, s61"); a.e("s_cbranch_scc1 HB_p")
    a.e("s_mov_b32 s52, 1"); a.e("s_mov_b32 s61, 0")
    a.e("HB_q:")
    lds_set(a, LW + 12, "s52", pt)
    a.e("HB_2:")
    a.srd(16, 4, 8 * GSTR, off=LB0 + oX3)
    ra = v(); go = v(); ob = v(8, 4)
    a.e(f"v_lshrrev_b32 v{t}, 3, v0"); a.e(f"v_and_b32 v{t2}, 7, v0")
    a.e(f"v_lshlrev_b32 v{go}, 12, v{t}"); a.e(f"v_lshl_add_u32 v{go}, v{t2}, 4, v{go}")
    a.e("s_lshl_b32 s36, s34, 24"); a.e("s_sub_u32 s37, 31, s35"); a.e("s_lshl_b32 s37, s37, 7"); a.e("s_add_u32 s36, s36, s37")
    a.e(f"s_add_u32 s37, s36, {64*4096}")
    a.e(f"v_lshrrev_b32 v{ra}, 3, v{t}"); a.e(f"v_xor_b32 v{ra}, v{ra}, v{t2}"); a.e(f"v_lshlrev_b32 v{ra}, 4, v{ra}"); a.e(f"v_lshl_add_u32 v{ra}, v{t}, 7, v{ra}")
    a.e(f"v_add_u32 v{ra}, {KVS}, v{ra}"); a.e(f"v_mov_b32 v{pt}, {LW+12}")
    a.e("s_waitcnt lgkmcnt(0)"); a.e("s_barrier")
    for i in range(2): a.e(f"ds_read_b128 {vr(ob+4*i,4)}, v{ra} offset:{i*8192}")
    a.e(f"ds_read_b32 v{pt+1}, v{pt}")
    for i in range(2):
        a.e(f"s_waitcnt lgkmcnt({2-i})")
        if "1" in DP: mark(a, ob + 4 * i, 1)
        a.e(f"buffer_store_dwordx4 {vr(ob+4*i,4)}, v{go}, s[16:19], s{36+i} offen {SC}")
    a.e("s_waitcnt lgkmcnt(0)"); a.e(f"v_readfirstlane_b32 s52, v{pt+1}")
    a.e("s_cmp_lg_u32 s30, 0"); a.e("s_cbranch_scc1 KV_ni"); a.e("s_cmp_ge_u32 s35, 16"); a.e("s_cbranch_scc1 KV_ni")
    a.e(f"v_mov_b32 v{t}, s52")
    a.e("s_lshl_b32 s37, s34, 7"); a.e("s_lshl_b32 s53, s35, 10"); a.e("s_add_u32 s37, s37, s53"); a.e(f"s_add_u32 s37, s37, {F_FRONT}")
    a.e("s_mov_b64 exec, 1"); a.e(f"buffer_store_dword v{t}, v{zz}, s[56:59], s37 offen {SC}"); a.e("s_mov_b64 exec, -1")
    a.e("KV_ni:")
    a.e(f"s_cmp_ge_u32 s2, {NVOTE}"); a.e("s_cbranch_scc1 KV_n3"); a.e("s_cmp_lg_u32 s30, 5"); a.e("s_cbranch_scc1 KV_n3")
    probe_base(a)
    a.e(f"v_lshrrev_b32 v{t}, 5, v1"); a.e(f"v_mul_u32_u24 v{t}, {8192 - 512}, v{t}"); a.e(f"v_add_u32 v{t}, v{t}, v2")
    a.e(f"buffer_store_dwordx4 {vr(z,4)}, v{t}, s[56:59], s42 offen {SC}")
    a.e("KV_n3:")
    roles(a)
    def pubk():
        a.e("s_lshl_b32 s36, s34, 5"); a.e("s_add_u32 s36, s36, s35"); a.e("s_lshl_b32 s36, s36, 7"); a.e(f"s_add_u32 s36, s36, {F_KVT}")
        mstamp(a)
        QL = int(os.environ.get("QL", "3"))
        if QL == 2: load_q(a)
        publish(a, 0, 8, pt, off=36, flag=True, wait=4 if QL == 2 else 0)
        if QL == 3: load_q(a)
        mstamp(a)
    HF = int(os.environ.get("HF", "0"))
    if not HF: pubk()
    else: a.e("s_waitcnt vmcnt(2)")
    cc = wf; hw2 = v()
    a.e(f"v_add_u32 v{hw2}, s45, v{hw}")
    for it in range(3):
        D = d + 6 * it; c0 = cc + 12 * it; c1 = c0 + 4; c2 = c0 + 8
        for k in range(4):
            a.e(f"v_alignbit_b32 v{c0+k}, v{D+k+1}, v{D+k}, 16")
            a.e(f"v_mov_b32 v{c1+k}, v{D+k+1}")
            a.e(f"v_alignbit_b32 v{c2+k}, v{D+k+2}, v{D+k+1}, 16")
        if it == 2: a.e("s_mov_b64 exec, 0xf")
        ad, o0 = (hw2, 1024 * it) if it < 2 else (hw, 4096)
        a.e(f"ds_write_b128 v{ad}, {vr(c0,4)} offset:{o0}")
        a.e(f"ds_write_b128 v{ad}, {vr(c1,4)} offset:{HSTR+o0}")
        a.e(f"ds_write_b128 v{ad}, {vr(c2,4)} offset:{2*HSTR+o0}")
        a.e(f"ds_write_b128 v{ad}, {vr(D+2,4)} offset:{3*HSTR+o0}")
        if it == 2: a.e("s_mov_b64 exec, -1")
    if HF: pubk()
    assert v.hi <= 176
    a.e("s_waitcnt lgkmcnt(0)"); a.e("s_barrier")
def load_q(a):
    a.srd(8, 6, 4 * MB)
    for j in range(4): a.e(f"buffer_load_dwordx2 {vr(RXA+2*j,2)}, v{RRO}, s[8:11], 0 offen offset:{128*(j>>1) + 32*(j&1)} {os.environ.get('NTQ', NTH)}")
def chan_setup(a, wsg):
    a.e("s_and_b32 s38, s2, 7"); a.e("s_lshl_b32 s38, s38, 5"); a.e("s_lshr_b32 s39, s2, 3"); a.e("s_add_u32 s38, s38, s39")
    a.e("s_lshl_b32 s39, s38, 2"); a.e(f"s_add_u32 s39, s39, s{wsg}")
    a.e(f"s_mul_i32 s40, s{wsg}, {CHB}")

def touch(a, ka, nbytes, r):
    n = nbytes // 1024 // 512
    a.e(f"s_load_dwordx2 s[48:49], s[0:1], {ka}")
    a.e("s_lshl_b32 s45, s2, 1"); a.e("s_and_b32 s50, s30, 1"); a.e("s_add_u32 s45, s45, s50"); a.e(f"s_mul_i32 s45, s45, {n*1024}")
    a.e(f"s_mov_b32 s50, {nbytes}"); a.e("s_mov_b32 s51, 0x20000")
    a.e("s_waitcnt lgkmcnt(0)")
    for i in range(n):
        if i and i % 4 == 0: a.e("s_add_u32 s45, s45, 4096")
        a.e(f"buffer_load_dwordx4 {vr(r,4)}, v2, s[48:51], s45 offen offset:{(i&3)*1024}")
    return n

def w2_warm(a):
    a.e("s_mov_b64 s[48:49], s[70:71]"); a.e(f"s_mov_b32 s50, {2*MB}"); a.e("s_mov_b32 s51, 0x20000")
    a.e("s_and_b32 s45, s28, 3"); a.e("s_lshl_b32 s45, s45, 1"); a.e("s_and_b32 s46, s30, 1"); a.e("s_add_u32 s45, s45, s46"); a.e("s_lshl_b32 s45, s45, 18")
    a.e("s_lshl_b32 s46, s29, 7"); a.e("s_add_u32 s45, s45, s46"); a.e("v_lshlrev_b32 v245, 11, v1")
    a.e("buffer_load_dword v244, v245, s[48:51], s45 offen"); a.e(f"s_add_u32 s45, s45, {64*2048}"); a.e("buffer_load_dword v246, v245, s[48:51], s45 offen")
def cs_load(a, which, slot):
    w_setup(a, which, pre=False)
    a.e(f"s_mov_b32 s42, {slot}"); a.e("s_mov_b32 s44, s28")
    w_issue(a, which, direct=True)
CSEL, CFR, CAD, CACC, CSO_ = 16, 72, 144, 156, 164
def cs_prep(a, S1, S3):
    a.e(f"v_and_b32 v{CSO_}, 15, v1"); a.e(f"v_mov_b32 v{CSO_+1}, 0x3f803f80")
    for T in range(14):
        a.e(f"v_cmp_eq_u32 vcc, {T}, v{CSO_}")
        for e in range(4): a.e(f"v_cndmask_b32 v{CSEL+4*T+e}, 0, v{CSO_+1}, vcc")
    pos = {}
    for which, slot, r0, halves in ((1, S1, CAD, 1), (3, S3, CAD + 4, 2)):
        c = CFG[which]
        for hf in range(halves):
            a.e(f"s_mov_b32 s35, {hf}")
            nr, pos[which] = w_bases(a, which, r0 + 2 * hf, 35, c["TN16"] // halves, WV + 8, WV + 9)
            a.e("s_and_b32 s35, s30, 1"); a.e(f"s_mul_i32 s35, s35, {32*c['RB']}"); a.e(f"s_add_u32 s35, s35, {slot}")
            for i in range(nr): a.e(f"v_add_u32 v{r0+2*hf+i}, s35, v{r0+2*hf+i}")
    for i in range(8): a.e(f"v_mov_b32 v{CACC+i}, 0")
    a.e(f"v_lshrrev_b32 v{CSO_+2}, 4, v1"); a.e(f"v_lshlrev_b32 v{CSO_+2}, 4, v{CSO_+2}"); a.e(f"v_lshl_add_u32 v{CSO_+2}, v{CSO_}, 6, v{CSO_+2}")
    a.e(f"v_mov_b32 v{CSO_+1}, 0x7f000000")
    for k, n in ((3, 4), (4, 14)):
        a.e(f"v_cmp_gt_u32 vcc, {n}, v{CSO_}"); a.e(f"v_cndmask_b32 v{CSO_+k}, v{CSO_+1}, v{CSO_+2}, vcc")
    return pos
def cs_sum(a, which, pos):
    c = CFG[which]; ntl = c["TN16"]; N = c["LDW"] // 2
    F = CFR + (0 if which == 3 else 56); A = CACC + (0 if which == 3 else 4)
    for T in range(ntl):
        hf, nt = (T // 7, T % 7) if which == 3 else (0, T)
        for h in range(2):
            r, imm = pos[which](nt, 0, h)
            a.e(f"ds_read_b64_tr_b16 {vr(F+4*T+2*h,2)}, v{(CAD + 4 if which == 3 else CAD) + 2*hf + r} offset:{imm}")
    a.srd(20, 4, 32 * N * 4, off=CSP[which])
    a.e("s_lshl_b32 s35, s28, 1"); a.e("s_and_b32 s36, s30, 1"); a.e("s_add_u32 s35, s35, s36"); a.e(f"s_mul_i32 s35, s35, {N*4}")
    a.e(f"s_mul_i32 s36, s29, {ntl*64}"); a.e("s_add_u32 s35, s35, s36")
    a.e("s_waitcnt lgkmcnt(0)")
    if CSPRIO == 2: a.e("s_setprio 1")
    for T in range(ntl): a.e(f"v_mfma_f32_16x16x32_bf16 {vr(A,4)}, {vr(F+4*T,4)}, {vr(CSEL+4*T,4)}, {vr(A,4)}")
    if CSPRIO == 2: a.e("s_setprio 0")
    a.e(f"buffer_store_dwordx4 {vr(A,4)}, v{CSO_ + (4 if which == 3 else 3)}, s[20:23], s35 offen {SC}")

NOCS3 = int(os.environ.get("NOCS3", "0")); STO = os.environ.get("STOUCH", "")
def stouch(a, which, gran, nw):
    X = a.lab("st"); L = a.lab("sl"); n = 28672 // nw
    a.e("s_cmp_lg_u32 s60, 0"); a.e(f"s_cbranch_scc1 {X}")
    a.e(f"s_mul_i32 s36, s2, 28672"); a.e(f"s_and_b32 s37, s30, {nw-1}"); a.e(f"s_mul_i32 s37, s37, {n}"); a.e("s_add_u32 s36, s36, s37")
    a.e(f"s_add_u32 s34, s{66+2*which}, s36"); a.e(f"s_addc_u32 s35, s{67+2*which}, 0"); a.e("s_mov_b32 s36, 0")
    a.e(f"{L}:")
    for i in range(14): a.e(f"s_load_dword s37, s[34:35], {i*gran}")
    a.e(f"s_add_u32 s34, s34, {14*gran}"); a.e("s_addc_u32 s35, s35, 0"); a.e("s_add_u32 s36, s36, 1"); a.e(f"s_cmp_lt_u32 s36, {n // (14*gran)}"); a.e(f"s_cbranch_scc1 {L}")
    a.e("s_waitcnt lgkmcnt(0)")
    a.e(f"{X}:")
SB = eval(os.environ.get("SB", "(0,0,0)"))
SG = eval(os.environ.get("SG", "(0,0,0,0)"))
def sg(a, n):
    if not n: return
    X = a.lab("st"); L = a.lab("sl")
    a.e("s_cmp_lg_u32 s60, 0"); a.e(f"s_cbranch_scc1 {X}"); a.e("s_mov_b32 s36, 0"); a.e(f"{L}:"); sb(a, 14)
    a.e("s_add_u32 s36, s36, 1"); a.e(f"s_cmp_lt_u32 s36, {n}"); a.e(f"s_cbranch_scc1 {L}"); a.e("s_waitcnt lgkmcnt(0)"); a.e(f"{X}:"); mstamp(a)
def sb_init(a):
    nw = 2 if sum(SG) else 4
    a.e(f"s_mul_i32 s36, s2, 28672"); a.e(f"s_and_b32 s37, s30, {nw-1}"); a.e(f"s_mul_i32 s37, s37, {28672//nw}"); a.e("s_add_u32 s36, s36, s37")
    SW = 66 + 2 * int(os.environ.get("SGW", "3"))
    a.e(f"s_add_u32 s90, s{SW}, s36"); a.e(f"s_addc_u32 s91, s{SW+1}, 0")
def sb(a, n):
    for i in range(n): a.e(f"s_load_dword s101, s[90:91], {i*64}")
    if n: a.e(f"s_add_u32 s90, s90, {n*64}"); a.e("s_addc_u32 s91, s91, 0")
PUTE = int(os.environ.get("PUTE", "1"))
def front_b(a):
    pt, dm = 6, 20
    vd = 12; VG = int(os.environ.get("VG", "0")); VE = int(os.environ.get("VE", "1"))
    def vote():
        a.e(f"s_cmp_ge_u32 s2, {NVOTE}"); a.e("s_cbranch_scc1 FB_np"); a.e("s_cmp_lg_u32 s30, 5"); a.e("s_cbranch_scc1 FB_np")
        probe_base(a); a.e(f"v_mov_b32 v{vd+2}, 0")
        if os.environ.get("SPR", "1") == "1":
            a.e("s_mov_b64 exec, 1"); a.e("s_mov_b32 s46, -1"); a.e("s_mov_b32 s47, -1")
            a.e("s_add_u32 s48, s4, s42"); a.e("s_addc_u32 s49, s5, 0")
            a.e("s_load_dword s101, s[48:49], 384"); a.e("s_waitcnt lgkmcnt(0)"); a.e("s_memtime s[34:35]"); a.e("s_waitcnt lgkmcnt(0)")
            for k in range(2 * NSAMP):
                p_, q_ = (34, 36) if k % 2 == 0 else (36, 34)
                a.e(f"s_load_dword s101, s[48:49], {(k & 1) * 8192 + (k >> 1) * 128}"); a.e("s_waitcnt lgkmcnt(0)"); a.e(f"s_memtime s[{q_}:{q_+1}]"); a.e("s_waitcnt lgkmcnt(0)")
                a.e(f"s_sub_u32 s43, s{q_}, s{p_}"); a.e(f"s_min_u32 s{46+(k&1)}, s{46+(k&1)}, s43")
        else:
            a.e("s_mov_b64 exec, 1"); a.e("s_mov_b32 s46, -1"); a.e("s_mov_b32 s47, -1"); a.e("s_mov_b32 s43, 0")
            a.e("FB_ml:")
            for i in range(2):
                a.e(f"s_add_u32 s45, s42, {i * 8192}")
                a.e("s_memtime s[34:35]"); a.e("s_waitcnt lgkmcnt(0)")
                a.e(f"buffer_load_dword v{vd+1}, v{vd+2}, s[56:59], s45 offen {SC}"); a.e("s_waitcnt vmcnt(0)")
                a.e("s_memtime s[36:37]"); a.e("s_waitcnt lgkmcnt(0)")
                a.e("s_sub_u32 s36, s36, s34"); a.e(f"s_min_u32 s{46+i}, s{46+i}, s36")
            a.e("s_add_u32 s42, s42, 128"); a.e("s_add_u32 s43, s43, 1"); a.e(f"s_cmp_lt_u32 s43, {NSAMP}"); a.e("s_cbranch_scc1 FB_ml")
        a.e("s_cmp_lt_u32 s47, s46"); a.e("s_cselect_b32 s45, 1, 0")
        a.e("s_lshr_b32 s46, s28, 2"); a.e("s_xor_b32 s45, s45, s46"); a.e("s_and_b32 s45, s45, 1"); a.e("s_lshl_b32 s45, s45, 8")
        a.e("s_or_b32 s43, s45, 1"); a.e(f"v_mov_b32 v{vd}, s43")
        a.e(f"buffer_atomic_add v{vd}, v{vd+2}, s[84:87], 0 offen offset:4 sc0 {SC}"); a.e("s_waitcnt vmcnt(0)")
        a.e(f"v_readfirstlane_b32 s36, v{vd}"); a.e("s_add_u32 s36, s36, s43"); a.e("s_and_b32 s37, s36, 255"); a.e(f"s_cmp_lg_u32 s37, {QUO}"); a.e("s_cbranch_scc1 FB_np")
        a.e("s_lshr_b32 s36, s36, 8"); a.e("s_lshl_b32 s36, s36, 1"); a.e("s_add_u32 s36, s36, s52"); a.e("s_bfm_b64 exec, 32, 0")
        a.e(f"v_mov_b32 v{vd}, s36"); a.e(f"v_lshlrev_b32 v{vd+1}, 7, v1"); a.e(f"s_mov_b32 s36, {F_RES}"); a.e(f"buffer_store_dword v{vd}, v{vd+1}, s[56:59], s36 offen {SC}")
        a.e("FB_np:")
        a.e("s_mov_b64 exec, -1")
        if VG:
            a.e("s_cmp_lg_u32 s30, 5"); a.e("s_cbranch_scc1 FB_ng")
            a.e(f"v_mov_b32 v{pt}, {LW+20}"); a.e(f"v_mov_b32 v{pt+1}, 1"); a.e("s_mov_b64 exec, 1"); a.e(f"ds_add_u32 v{pt}, v{pt+1}"); a.e("s_mov_b64 exec, -1")
            a.e("FB_ng:")
    if VE: vote()
    PZE = int(os.environ.get("PZE", "0"))
    if PZE:
        a.srd(20, 4, 32 * MB, off=216 * MB)
        for i in range(4): a.e(f"v_mov_b32 v{216+i}, -1")
        a.e("s_lshl_b32 s45, s2, 2"); a.e("s_and_b32 s50, s30, 3"); a.e("s_add_u32 s45, s45, s50"); a.e(f"s_mul_i32 s45, s45, {PZE*1024}")
        for i in range(PZE):
            a.e(f"buffer_store_dwordx4 v[216:219], v2, s[20:23], s45 offen {SC}"); a.e("s_add_u32 s45, s45, 1024")
    if TAB: tab_load(a)
    TE = int(os.environ.get("TE", "0"))
    if TE:
        a.e("s_cmp_ge_u32 s30, 6"); a.e("s_cbranch_scc1 FB_t1"); touch(a, B_W2, 2 * MB, dm); a.e("s_branch FB_t2"); a.e("FB_t1:"); touch(a, B_W1, 2 * MB, 200); a.e("FB_t2:")
    w_lanes(a)
    a.e("s_cmp_ge_u32 s30, 6"); a.e("s_cbranch_scc1 FB_cs")
    if not VE: vote()
    mstamp(a)
    a.e("s_cmp_lg_u32 s30, 4"); a.e("s_cbranch_scc1 FB_ni")
    a.e(f"v_mov_b32 v{vd}, s52")
    group_off(a, 37, 28); a.e("s_andn2_b32 s37, s37, 0x2000"); a.e("s_lshl_b32 s53, s29, 7"); a.e("s_add_u32 s37, s37, s53"); a.e(f"s_add_u32 s37, s37, {oSM}")
    a.e(f"v_and_b32 v{vd+1}, 1, v1"); a.e(f"v_lshlrev_b32 v{vd+1}, 13, v{vd+1}"); a.e(f"v_lshrrev_b32 v{vd+2}, 1, v1"); a.e(f"v_lshl_add_u32 v{vd+1}, v{vd+2}, 22, v{vd+1}")
    a.e("s_mov_b64 exec, 0xf"); a.e(f"buffer_store_dword v{vd}, v{vd+1}, s[56:59], s37 offen {SC}")
    a.e("s_cmp_lg_u32 s28, 0"); a.e("s_cbranch_scc1 FB_n2")
    a.e(f"s_add_u32 s37, s53, {F_CS}"); a.e("s_mov_b64 exec, 1"); a.e(f"buffer_store_dword v{vd}, v{vd+1}, s[56:59], s37 offen {SC}")
    a.e("FB_n2:")
    a.e("s_mov_b64 exec, -1")
    a.e("FB_ni:")
    TME = int(os.environ.get("TME", "1"))
    if TME: a.e("s_waitcnt vmcnt(0)"); tab_make(a, 0)
    UG = (LW + 20, 4 + VG) if os.environ.get("UG", "1") == "1" else (LW + 16, 1)
    lds_spin(a, *UG, pt, nap=2)
    mstamp(a)
    if TLBW:
        a.e("s_cmp_lg_u32 s30, 5"); a.e("s_cbranch_scc1 FB_nt")
        a.e(f"v_and_b32 v{vd}, 7, v1"); a.e(f"v_lshlrev_b32 v{vd}, 24, v{vd}"); a.e(f"v_lshrrev_b32 v{vd+1}, 3, v1"); a.e(f"v_lshl_add_u32 v{vd}, v{vd+1}, 22, v{vd}")
        a.e("s_lshl_b32 s36, s2, 7"); a.e(f"s_add_u32 s36, s36, {LB0 + 2 * MB - 65536}")
        a.e(f"s_bfm_b64 exec, {8 * TLBW}, 0"); a.e(f"buffer_load_dword v{dm+4}, v{vd}, s[56:59], s36 offen {SC}"); a.e("s_mov_b64 exec, -1")
        a.e("FB_nt:")
    if os.environ.get("W2T", "1") == "2": lds_spin(a, LW + 24, 2, pt, nap=4)
    if os.environ.get("W2T", "1") == "3":
        w_srd(a, 2); a.e("s_lshl_b32 s39, s28, 1"); a.e("s_and_b32 s36, s30, 1"); a.e("s_add_u32 s39, s39, s36"); a.e("s_lshl_b32 s39, s39, 16"); a.e("s_lshl_b32 s36, s29, 7"); a.e("s_add_u32 s39, s39, s36")
        for i in range(4): a.e(f"buffer_load_dwordx4 {vr(dm,4)}, v{WVB[2]}, s[12:15], s39 offen"); a.e("s_add_u32 s39, s39, 16384")
    elif os.environ.get("W2T", "1") != "0" and not TE: touch(a, B_W2, 2 * MB, dm)
    QL = int(os.environ.get("QL", "3"))
    if not QL: load_q(a)
    if W4POS == "F": lds_spin(a, LW + 24, 2, pt, nap=4); a.e("s_waitcnt vmcnt(0)")
    if W4POS in ("F", "F0"): touch(a, B_W4, 7 * MB, dm)
    PZF = int(os.environ.get("PZF", "0"))
    if PZF:
        a.srd(20, 4, 32 * MB, off=216 * MB)
        for i in range(4): a.e(f"v_mov_b32 v{216+i}, -1")
        a.e("s_lshl_b32 s45, s2, 1"); a.e("s_and_b32 s50, s30, 1"); a.e("s_add_u32 s45, s45, s50"); a.e(f"s_mul_i32 s45, s45, {PZF*1024}")
        for i in range(PZF):
            a.e(f"buffer_store_dwordx4 v[216:219], v2, s[20:23], s45 offen {SC}"); a.e("s_add_u32 s45, s45, 1024")
            if os.environ.get("PZP"): a.e(f"s_waitcnt vmcnt({os.environ['PZP']})")
    front_arrive(a, True)
    if not TME: tab_make(a, 0)
    PKW = int(os.environ.get("PKW", "2")); PKP = int(os.environ.get("PKP", "8"))
    W1P = int(os.environ.get("W1P", "8")); FO = os.environ.get("FO", "1pd"); FO2 = os.environ.get("FO2", "1pd")
    R1 = [176, 188, 192] + [200 + 4 * i for i in range(7)] + [16 + 4 * i for i in range(8)]
    def w1_regs(a):
        w_srd(a, 1)
        a.e("s_and_b32 s35, s30, 3"); a.e(f"s_mul_i32 s35, s35, {18*16384}"); a.e("s_lshl_b32 s39, s99, 7"); a.e("s_add_u32 s39, s39, s35")
        for q in range(18):
            a.e(f"buffer_load_dwordx4 {vr(R1[q],4)}, v{WVB[1]}, s[12:15], s39 offen"); a.e("s_add_u32 s39, s39, 16384")
            if q % 4 == 3: sb(a, SB[1])
            if PKP and q % 4 == 3: a.e(f"s_waitcnt vmcnt({PKP})")
        if QL == 1: load_q(a)
    def w1_put(a):
        a.e("s_and_b32 s35, s30, 3"); a.e(f"s_mul_i32 s35, s35, {18*1024}"); a.e("v_add_u32 v8, s35, v2")
        if PUTE: lds_spin(a, LW + 20, 8 + VG, pt, nap=2)
        else: lds_spin(a, LW + 4, 16, pt, nap=2)
        PV0 = int(os.environ.get("PV0", "1")); assert not PV0 or (FO[0] == "1" and FO2[0] == "1" and "p" in FO and "p" in FO2)
        a.e(f"s_waitcnt vmcnt({32 - PD if PV0 else 0})")
        for q in range(18): a.e(f"ds_write_b128 v8, {vr(R1[q],4)} offset:{CFG[1]['WB'] + 1024*q}")
        a.e("s_waitcnt lgkmcnt(0)")
    def w1_dma(a, js):
        lds_spin(a, LW + 24, 4, pt, nap=3)
        w_setup(a, 1, pre=False)
        for j in js: w1_slots(a, (j,), pace=W1P); ypause(a)
    DS_ = int(os.environ.get("DSPL", "12"))
    if PKW: lds_spin(a, LW + 24, PKW, pt, nap=4)
    for i_, ch in enumerate(FO):
        if ch == "d": w1_dma(a, range(9, DS_))
        else: call(a, {"1": w1_regs, "p": park}[ch])
    park_rest(a, False)
    mstamp(a)
    call(a, w1_put)
    a.e("s_branch FR_end")
    a.e("FB_cs:")
    S1, S3 = KVS - CFG[1]["WB"], KVS + 8192 - CFG[3]["WB"]
    pos = cs_prep(a, S1, S3)
    if TME: a.e("s_waitcnt vmcnt(0)"); tab_make(a, 1)
    lds_spin(a, *UG, pt, nap=2)
    mstamp(a)
    if not QL: load_q(a)
    cs_load(a, 1, S1)
    if not NOCS3: cs_load(a, 3, S3)
    a.e(f"s_waitcnt vmcnt({0 if NOCS3 else 14})")
    if CSPRIO == 1: a.e(f"s_setprio {CSPRIO}")
    cs_sum(a, 1, pos)
    a.e("s_waitcnt vmcnt(1)")
    a.e(f"v_mov_b32 v{pt}, {LW+24}"); a.e(f"v_mov_b32 v{pt+1}, 1")
    a.e("s_mov_b64 exec, 1"); a.e(f"ds_add_u32 v{pt}, v{pt+1}"); a.e("s_mov_b64 exec, -1")
    mstamp(a)
    if not NOCS3: cs_sum(a, 3, pos)
    front_arrive(a, False)
    if not TME: tab_make(a, 1)
    a.e(f"v_mov_b32 v{pt}, {LW+24}"); a.e(f"v_mov_b32 v{pt+1}, 1")
    a.e("s_mov_b64 exec, 1"); a.e(f"ds_add_u32 v{pt}, v{pt+1}"); a.e("s_mov_b64 exec, -1")
    mstamp(a)
    a.e("s_setprio 0")
    assert CFG[1]["WB"] + 9 * 8192 == KVS
    for ch in FO2:
        if ch == "d": w1_dma(a, range(DS_, 16))
        else: call(a, {"1": w1_regs, "p": park}[ch])
    park_rest(a, False)
    mstamp(a)
    call(a, w1_put)

PG = int(os.environ.get("PG", "0"))
def front_conv(a):
    v = VA(6); lane = 1; l16 = 2
    t = v(); pt = v(4, 2)
    chan_setup(a, 30)
    a.e("s_and_b32 s36, s39, 127"); a.e("s_lshl_b32 s36, s36, 12"); a.e("s_lshr_b32 s37, s39, 7"); a.e("s_lshl_b32 s37, s37, 24")
    a.e("s_add_u32 s36, s36, s37"); a.e(f"s_add_u32 s36, s36, {LB0 + oX3}")
    a.e("s_add_u32 s16, s4, s36"); a.e("s_addc_u32 s17, s5, 0"); a.e("s_mov_b32 s18, 4096"); a.e("s_mov_b32 s19, 0x20000")
    uw = v(); u = v(16, 4)
    a.e(f"v_lshrrev_b32 v{t}, 2, v{lane}"); a.e(f"v_mul_u32_u24 v{uw}, {US}, v{t}"); a.e(f"v_and_b32 v{t}, 3, v{lane}")
    a.e(f"v_lshl_add_u32 v{uw}, v{t}, 4, v{uw}"); a.e(f"v_add_u32 v{uw}, s40, v{uw}")
    aa = v(); ba = v(); ua = v(); J = v(); G = v()
    a.e(f"v_and_b32 v{J}, 15, v{lane}"); a.e(f"v_lshrrev_b32 v{G}, 4, v{lane}")
    a.e(f"v_and_b32 v{t}, 3, v{J}"); a.e(f"v_mul_u32_u24 v{aa}, {HSTR}, v{t}")
    a.e(f"v_lshl_add_u32 v{aa}, v{G}, 4, v{aa}"); a.e(f"v_lshrrev_b32 v{t}, 2, v{J}"); a.e(f"v_lshl_add_u32 v{aa}, v{t}, 3, v{aa}")
    a.e(f"v_add_u32 v{aa}, s40, v{aa}")
    a.e(f"v_sub_u32 v{t}, 15, v{J}"); a.e(f"v_mul_u32_u24 v{ua}, {US}, v{t}"); a.e(f"v_add_u32 v{ua}, s40, v{ua}")
    a.e(f"v_lshl_add_u32 v{ba}, v{G}, 4, v{ua}")
    acc = v(32, 4)
    fa = v(64, 4); fb = v(32, 4)
    def rdA(p, o):
        return [f"ds_read_b64 {vr(fa+32*p+8*s_+4*mt+2*h,2)}, v{aa} offset:{64*(o+16*s_) + 32*mt + 8*h}" for s_ in range(4) for mt in range(2) for h in range(2)]
    def rdB(p, o):
        return [f"ds_read_b128 {vr(fb+16*p+4*k,4)}, v{ba} offset:{UOFF + (48 - 16*k + o)*US}" for k in range(4)]
    for x in rdA(0, 0): a.e(x)
    dm_ = fb + 16; Dv = pt + 2
    a.e("s_bitcmp1_b32 s39, 0"); a.e("s_cselect_b32 s36, 0, 16"); a.e("s_lshl_b32 s41, s98, s36"); a.e("s_and_b32 s41, s41, 0xffff0000"); a.e("s_lshr_b32 s36, s41, 16")
    a.e(f"v_lshl_add_u32 v{t}, v{G}, 3, v{J}"); a.e(f"v_sub_u32 v{t}, 31, v{t}")
    a.e(f"v_mov_b32 v{Dv}, s36"); a.e(f"v_mov_b32 v{Dv+1}, s41"); a.e(f"v_and_b32 v{pt}, 1, v{t}"); a.e(f"v_cmp_eq_u32 vcc, 1, v{pt}")
    a.e(f"v_cndmask_b32 v{Dv}, v{Dv}, v{Dv+1}, vcc"); a.e(f"v_ashrrev_i32 v{t}, 1, v{t}")
    for mt in range(2):
        for d_ in range(4): a.e(f"v_cmp_eq_u32 vcc, {8*mt+d_}, v{t}"); a.e(f"v_cndmask_b32 v{dm_+4*mt+d_}, 0, v{Dv}, vcc")
    a.srd(12, 4, 8 * GSTR - oHS, off=LB0 + oHS)
    ta = v(); go = v()
    a.e(f"v_bfe_u32 v{t}, v{lane}, 2, 2"); a.e(f"v_mul_u32_u24 v{ta}, {CHB+64}, v{t}")
    a.e(f"v_mul_u32_u24 v{t}, 72, v{G}"); a.e(f"v_add_u32 v{ta}, v{ta}, v{t}")
    a.e(f"v_and_b32 v{t}, 3, v{lane}"); a.e(f"v_lshl_add_u32 v{ta}, v{t}, 3, v{ta}")
    a.e(f"s_mul_i32 s36, s30, {16*72}"); a.e(f"v_add_u32 v{ta}, s36, v{ta}")
    a.e(f"v_lshrrev_b32 v{t}, 5, v{lane}"); a.e(f"v_mul_u32_u24 v{go}, {262144 - 512}, v{t}"); a.e(f"v_add_u32 v{go}, v{go}, v{l16}")
    a.e("s_lshr_b32 s44, s38, 4"); a.e("s_lshl_b32 s44, s44, 14"); a.e("s_and_b32 s37, s38, 15"); a.e("s_lshl_b32 s37, s37, 9"); a.e("s_add_u32 s44, s44, s37")
    a.e("s_and_b32 s37, s30, 1"); a.e("s_lshl_b32 s37, s37, 13"); a.e("s_add_u32 s44, s44, s37")
    a.e("s_lshr_b32 s37, s30, 1"); a.e("s_lshl_b32 s37, s37, 26"); a.e("s_add_u32 s44, s44, s37")
    a.e("s_and_b32 s47, s44, 0x2000"); a.e(f"s_xor_b32 s47, s47, {(((F_FRONT >> 21) ^ (F_FRONT >> 13)) & 1) << 13}"); a.e("s_lshr_b32 s37, s30, 1"); a.e("s_lshl_b32 s37, s37, 12"); a.e("s_add_u32 s47, s47, s37")
    a.e("s_and_b32 s37, s2, 7"); a.e("s_lshl_b32 s37, s37, 7"); a.e("s_add_u32 s47, s47, s37")
    a.e(f"v_mov_b32 v{ua}, {LW+8}"); a.e("v_mov_b32 v7, 1")
    ya = v()
    a.e(f"s_mul_i32 s36, s30, {CHB+64}")
    a.e(f"v_mul_u32_u24 v{ya}, 72, v{J}"); a.e(f"v_lshl_add_u32 v{ya}, v{G}, 3, v{ya}"); a.e(f"v_add_u32 v{ya}, s36, v{ya}")
    a.e("v_lshlrev_b32 v6, 10, v1"); assert t == 6 and PWA
    a.e(f"v_mov_b32 v{J}, 0"); a.e("s_and_b32 s45, s2, 31"); a.e("s_lshl_b32 s45, s45, 7"); a.e(f"s_add_u32 s45, s45, {F_RES}")
    a.e("s_cmp_lg_u32 s30, 0"); a.e("s_cbranch_scc1 CV_w")
    a.e("s_and_b32 s36, s2, 7"); a.e("s_lshl_b32 s36, s36, 12"); a.e(f"s_add_u32 s36, s36, {F_KVT}")
    a.e(f"v_lshlrev_b32 v{pt+1}, 7, v{lane}"); a.e(f"v_add_u32 v{pt+1}, s36, v{pt+1}")
    poll_core(a, pt, [pt + 1], 0xffffffff)
    lds_set(a, LW + 16, 1, pt)
    a.e("CV_w:")
    lds_spin(a, LW + 16, 1, pt)
    mstamp(a)
    for it in range(4): a.e(f"buffer_load_dwordx4 {vr(u+4*it,4)}, v{l16}, s[16:19], 0 offen offset:{1024*it} {os.environ.get('UF', SC + ' nt')}")
    QL = int(os.environ.get("QL", "3"))
    if not QL: load_q(a)
    for it in range(4):
        a.e(f"s_waitcnt vmcnt({(3 if QL else 7)-it})")
        a.e(f"ds_write_b128 v{uw}, {vr(u+4*it,4)} offset:{UOFF + 16*US*it}")
    a.e(f"v_mov_b32 v{pt}, {LW+20}"); a.e(f"v_mov_b32 v{pt+1}, 1")
    a.e("s_mov_b64 exec, 1"); a.e(f"ds_add_u32 v{pt}, v{pt+1}"); a.e("s_mov_b64 exec, -1")
    a.e("s_waitcnt lgkmcnt(0)")
    mstamp(a)
    for x in rdB(0, 0): a.e(x)
    for c_ in range(4):
        a.e(f"s_waitcnt lgkmcnt({3-c_})")
        for mt in range(2): a.e(f"v_mfma_f32_16x16x32_bf16 {vr(acc+8*c_+4*mt,4)}, {vr(dm_+4*mt,4)}, {vr(fb+4*c_,4)}, 0")
    def step(p, nxt, tail, piped=False):
        a.e(f"s_waitcnt lgkmcnt({10 if piped else 0})")
        mf = [(c_, s_, mt) for s_ in range(4) for mt in range(2) for c_ in range(s_, 4)]
        for i, (c_, s_, mt) in enumerate(mf):
            A = acc + 8 * c_ + 4 * mt
            a.e(f"v_mfma_f32_16x16x32_bf16 {vr(A,4)}, {vr(fa+32*p+8*s_+4*mt,4)}, {vr(fb+16*p+4*(c_-s_),4)}, {vr(A,4)}")
            if nxt: a.e(nxt.pop(0))
            if piped and i == 9: a.e("s_waitcnt lgkmcnt(10)")
            for x in tail.pop(i, []) if tail else []: a.e(x)
        assert not nxt and not tail
    a.e("s_mov_b32 s43, 0")
    NU = int(os.environ.get("NU", "4")); HP = int(os.environ.get("HP", "0")); VT = int(os.environ.get("VT", "5"))
    vt = {1: [f"s_cmp_eq_u32 s43, {VT}"], 2: ["s_cselect_b64 exec, 1, 0", f"buffer_load_dword v{uw}, v{J}, s[56:59], s45 offen {SC}", "s_mov_b64 exec, -1"]}
    if NU:
        a.e("CV_r:")
        for p in range(2):
            rd = rdB(1 - p, p + 1) + rdA(1 - p, p + 1)
            step(p, rd[:HP], dict(vt) if p == 0 and VT < NU else [])
            for x in rd[HP:]: a.e(x)
        for x in [f"v_add_u32 v{aa}, 128, v{aa}", f"v_add_u32 v{ba}, {2*US}, v{ba}", "s_add_u32 s43, s43, 1", f"s_cmp_lt_u32 s43, {NU}"]: a.e(x)
        a.e("s_cbranch_scc1 CV_r")
    if QL == 1: load_q(a)
    a.e("CV_l:")
    step(0, rdB(1, 1) + rdA(1, 1), dict(vt) if VT >= NU else [], True)
    step(1, rdB(0, 2) + rdA(0, 2), {19: [f"v_add_u32 v{aa}, 128, v{aa}"], 5: [f"v_add_u32 v{ba}, {2*US}, v{ba}"], 6: ["s_add_u32 s43, s43, 1"], 7: ["s_cmp_lt_u32 s43, 8"]}, True)
    a.e("s_cbranch_scc1 CV_l")
    mstamp(a)
    if os.environ.get("EPR"): a.e("s_setprio " + os.environ["EPR"])
    for c_ in range(4):
        for mt in range(2):
            A = acc + 8 * c_ + 4 * mt; O = u + 2 * (c_ * 2 + mt)
            a.e(f"v_cvt_pk_bf16_f32 v{O}, v{A}, v{A+1}"); a.e(f"v_cvt_pk_bf16_f32 v{O+1}, v{A+2}, v{A+3}")
            a.e(f"ds_write_b64 v{ya}, {vr(O,2)} offset:{c_*16*72 + mt*32}")
    a.e("s_mov_b64 exec, 1"); a.e(f"ds_add_u32 v{ua}, v7"); a.e("s_mov_b64 exec, -1")
    a.e("s_mov_b32 s53, 0"); a.e("s_waitcnt vmcnt(0)")
    a.e("CV_v:")
    a.e(f"v_readfirstlane_b32 s94, v{uw}"); a.e("s_sub_u32 s94, s94, s52"); a.e("s_and_b32 s37, s94, 0xfffffe01"); a.e("s_cbranch_scc0 CV_k")
    a.e(f"buffer_load_dword v{uw}, v{J}, s[56:59], s45 offen {SC}"); a.e("s_waitcnt vmcnt(0)")
    a.e("s_add_u32 s53, s53, 1"); a.e("s_cmp_lt_u32 s53, s61"); a.e("s_cbranch_scc1 CV_v"); a.e("s_mov_b32 s61, 0"); a.e("s_mov_b32 s94, 0")
    a.e("CV_k:")
    a.e("s_lshr_b32 s94, s94, 1"); a.e("s_add_u32 s37, s94, 65536"); a.e(f"v_mov_b32 v{pt}, {LW+28}"); a.e(f"v_mov_b32 v{pt+1}, s37"); a.e(f"ds_write_b32 v{pt}, v{pt+1}")
    a.e(f"s_cmp_gt_u32 s94, {QUO // 2}"); a.e("s_cselect_b32 s37, 0x2000, 0"); a.e("s_xor_b32 s44, s44, s37")
    a.e("s_xor_b32 s45, s47, s37"); a.e(f"s_add_u32 s45, s45, {F_FRONT}")
    lds_spin(a, LW + 8, 6, pt)
    for i in range(8): a.e(f"ds_read_b64_tr_b16 {vr(fa+32+2*i,2)}, v{ta} offset:{288*(i>>1) + 32*(i&1)}")
    for i in range(4):
        a.e(f"s_waitcnt lgkmcnt({6-2*i})")
        mark(a, fa + 32 + 4 * i, 1)
        a.e(f"buffer_store_dwordx4 {vr(fa+32+4*i,4)}, v{go}, s[12:15], s44 offen {SC}")
        a.e(f"s_add_u32 s44, s44, {GSTR}")
    if PUTE:
        a.e(f"v_mov_b32 v{pt}, {LW+20}"); a.e(f"v_mov_b32 v{pt+1}, 1")
        a.e("s_mov_b64 exec, 1"); a.e(f"ds_add_u32 v{pt}, v{pt+1}"); a.e("s_mov_b64 exec, -1")
    assert v.hi <= 176

PK = 48; W3S = 176
RFO, RYO, RRO, RI, RXA, RXB, RYY, RT = 196, 197, 198, 199, 180, 188, 230, 228
def r_addr(a, full=True):
    t, t2, I, fo, ro, yo = RT, RT + 1, RI, RFO, RRO, RYO
    a.e(f"v_and_b32 v{I}, 7, v0")
    a.e(f"v_lshrrev_b32 v{t}, 6, v0"); a.e(f"v_lshlrev_b32 v{t}, 4, v{t}"); a.e(f"v_bfe_u32 v{t2}, v0, 3, 3"); a.e(f"v_add_u32 v{t}, v{t}, v{t2}")
    a.e("s_lshr_b32 s78, s29, 1"); a.e("s_lshl_b32 s78, s78, 16"); a.e("s_and_b32 s79, s29, 1"); a.e("s_lshl_b32 s79, s79, 7"); a.e("s_add_u32 s78, s78, s79")
    a.e("s_lshr_b32 s79, s30, 1"); a.e("s_lshl_b32 s79, s79, 13"); a.e("s_add_u32 s78, s78, s79")
    a.e(f"v_lshlrev_b32 v{fo}, 8, v{t}"); a.e(f"v_lshl_add_u32 v{fo}, v{I}, 4, v{fo}"); a.e(f"v_add_u32 v{fo}, s78, v{fo}")
    if not full: return
    a.e("s_lshl_b32 s78, s28, 7"); a.e("s_lshl_b32 s79, s29, 3"); a.e("s_add_u32 s78, s78, s79")
    a.e(f"v_add_u32 v{yo}, s78, v{I}"); a.e(f"v_lshlrev_b32 v{ro}, 11, v{yo}")
    a.e(f"v_lshrrev_b32 v{t2}, 2, v{t}"); a.e(f"v_lshlrev_b32 v{t2}, 3, v{t2}"); a.e(f"v_and_b32 v{t}, 3, v{t}"); a.e(f"v_add_u32 v{t}, v{t}, v{t2}")
    a.e(f"v_lshl_add_u32 v{ro}, v{t}, 3, v{ro}")
    a.e(f"v_and_b32 v{yo}, 15, v{yo}"); a.e(f"v_lshlrev_b32 v{yo}, 4, v{yo}"); a.e(f"v_and_b32 v{t2}, 15, v{t}"); a.e(f"v_lshl_add_u32 v{yo}, v{t2}, 9, v{yo}")
    a.e(f"v_lshrrev_b32 v{t2}, 4, v{t}"); a.e(f"v_lshl_add_u32 v{yo}, v{t2}, 14, v{yo}")
    a.e("s_lshr_b32 s78, s28, 3"); a.e("s_lshl_b32 s78, s78, 2"); a.e("s_and_b32 s79, s28, 3"); a.e("s_add_u32 s78, s78, s79"); a.e("s_lshl_b32 s78, s78, 24")
    a.e("s_and_b32 s79, s28, 4"); a.e("s_lshl_b32 s79, s79, 11"); a.e("s_add_u32 s78, s78, s79")
    a.e("s_and_b32 s79, s29, 4"); a.e("s_lshl_b32 s79, s79, 6"); a.e("s_add_u32 s78, s78, s79"); a.e("s_and_b32 s79, s29, 2"); a.e("s_lshl_b32 s79, s79, 2"); a.e("s_add_u32 s78, s78, s79")
    a.e("s_lshl_b32 s79, s31, 18"); a.e("s_add_u32 s78, s78, s79"); a.e(f"v_add_u32 v{yo}, s78, v{yo}")
def load_y(a, skip_last=False):
    a.srd(80, 4, 8 * GSTR - oHS, off=LB0 + oHS)
    for j in range(2):
        for hh in range(2):
            a.e(f"s_mov_b32 s78, {j*16384 + hh*2048}")
            a.e(f"buffer_load_dwordx2 {vr(RYY+4*j+2*hh,2)}, v{RYO}, s[80:83], s78 offen {os.environ.get('YF', SC)}")
def r_pre(a, l0=False):
    r_addr(a, False)
    lsrd(a, 84, oX3, XSZ); lsrd(a, 88, oX1P, XSZ)
    if l0: a.e("s_cmp_eq_u32 s60, 0"); a.e("s_cselect_b64 exec, -1, 0")
    for j in range(2):
        a.e(f"buffer_load_dwordx4 {vr(RXA+4*j,4)}, v{RFO}, s[84:87], 0 offen offset:{2048*j} {SC}")
        a.e(f"buffer_load_dwordx4 {vr(RXB+4*j,4)}, v{RFO}, s[88:91], 0 offen offset:{2048*j} {SC}")
    if l0: a.e("s_mov_b64 exec, -1")
def r_pre0(a): r_pre(a, True)
def r_pre1(a):
    X = a.lab("rp"); a.e("s_cmp_lg_u32 s60, 0"); a.e(f"s_cbranch_scc1 {X}"); call(a, r_pre); a.e(f"{X}:")

def r_stage(a, final):
    v = VA(6)
    t = v(); t2 = v(); I = RI; fo = RFO; ro = RRO; pt = v(4, 2)
    xa = RXA; xb = RXB; yy = RYY; x = 206; yf = 222; w = v(16, 4); tmp = v()
    pre = final == "pre"
    S = v(2, 2); pp = v(2, 2); qq = v(2, 2); st = w; mean = v(2, 2); rs = mean + 1; var = v(); sw = v(); sr = v()
    def part(src, n):
        a.e(f"v_pk_add_f32 {vr(pp,2)}, {vr(src,2)}, {vr(src+2,2)}"); a.e(f"v_pk_mul_f32 {vr(qq,2)}, {vr(src,2)}, {vr(src,2)}")
        for i in range(1, 8):
            if i > 1: a.e(f"v_pk_add_f32 {vr(pp,2)}, {vr(pp,2)}, {vr(src+2*i,2)}")
            a.e(f"v_pk_fma_f32 {vr(qq,2)}, {vr(src+2*i,2)}, {vr(src+2*i,2)}, {vr(qq,2)}")
        a.e(f"v_add_f32 v{S}, v{pp}, v{pp+1}"); a.e(f"v_add_f32 v{S+1}, v{qq}, v{qq+1}")
        for k in range(2): a.e(f"v_add_f32_dpp v{S+k}, v{S+k}, v{S+k} row_ror:8 row_mask:0xf bank_mask:0xf")
        for op in ("v_permlane16_swap_b32", "v_permlane32_swap_b32"):
            for k in range(2): a.e(f"v_mov_b32 v{pp+k}, v{S+k}")
            for k in range(2): a.e(f"{op} v{S+k}, v{pp+k}")
            a.e(f"v_pk_add_f32 {vr(S,2)}, {vr(S,2)}, {vr(pp,2)}")
        a.e(f"ds_write_b64 v{sw}, {vr(S,2)} offset:{n*512}")
    def comb(n):
        for k in range(4): a.e(f"ds_read_b128 {vr(st+4*k,4)}, v{sr} offset:{n*512+16*k}")
        a.e("s_waitcnt lgkmcnt(0)")
        for k in range(4): a.e(f"v_pk_add_f32 {vr(st+4*k,2)}, {vr(st+4*k,2)}, {vr(st+4*k+2,2)}")
        a.e(f"v_pk_add_f32 {vr(st,2)}, {vr(st,2)}, {vr(st+4,2)}"); a.e(f"v_pk_add_f32 {vr(st+8,2)}, {vr(st+8,2)}, {vr(st+12,2)}")
        a.e(f"v_pk_add_f32 {vr(st,2)}, {vr(st,2)}, {vr(st+8,2)}")
        a.e(f"v_mul_f32 v{mean}, {f32(1/1024)}, v{st}"); a.e(f"v_mul_f32 v{var}, {f32(1/1024)}, v{st+1}")
        a.e(f"v_fma_f32 v{var}, -v{mean}, v{mean}, v{var}"); a.e(f"v_max_f32 v{var}, 0, v{var}")
    SUBM = f"{vr(mean,2)} op_sel_hi:[1,0] neg_lo:[0,1] neg_hi:[0,1]"; MULR = f"{vr(mean,2)} op_sel:[0,1] op_sel_hi:[1,1]"
    if pre: a.e("s_waitcnt lgkmcnt(0)")
    if final is not True:
        a.e(f"v_lshlrev_b32 v{sr}, 6, v{I}"); a.e(f"v_add_u32 v{sr}, {AUX+2048}, v{sr}")
        a.e(f"s_lshl_b32 s35, s30, 3"); a.e(f"v_add_u32 v{sw}, s35, v{sr}")
    if pre:
        a.e("s_waitcnt vmcnt(0)")
        for i in range(8): unpack(a, x + 2 * i, x + 2 * i + 1, xa + i)
        part(x, 0)
        a.e("s_waitcnt lgkmcnt(0)"); a.e("s_barrier")
        return
    if not final:
        a.e(f"s_cmp_eq_u32 s60, 0"); a.e(f"s_cbranch_scc1 R_l0")
    else:
        a.e(f"s_load_dwordx2 s[6:7], s[0:1], {D_OUT}")
    lsrd(a, 8, oP0, XSZ, prev=True); lsrd(a, 12, oP1, XSZ, prev=True)
    lsrd(a, 20, oX3, XSZ); a.e("s_mov_b32 s78, 0x3f80"); a.e("s_mov_b32 s79, 0x3f800000")
    if "r" not in DP: a.e("s_waitcnt vmcnt(0)")
    for i in range(8):
        if not final: unpack(a, yf + 2 * i, yf + 2 * i + 1, yy + i)
        unpack(a, x + 2 * i, x + 2 * i + 1, xa + i); unpack(a, w + 2 * i, w + 2 * i + 1, xb + i)
        a.e(f"v_pk_add_f32 {vr(x+2*i,2)}, {vr(x+2*i,2)}, {vr(w+2*i,2)}")
    lds_ = [f"buffer_load_dwordx4 {vr(r+4*j,4)}, v{fo}, s[{q}:{q+3}], 0 offen offset:{2048*j} {os.environ.get('RF', SC)}" for j in range(2) for r, q in ((xa, 8), (xb, 12))]
    if "r" in DP: data_poll(a, lds_, (xa, xa + 4, xb, xb + 4), t, int(os.environ.get("RNAP", "4")), int(os.environ.get("RFIRST", "24")), int(os.environ.get("RCAN", "0"))); mstamp(a)
    else:
        poll(a, ST_G4, pt, prev=True)
        mstamp(a)
        for x_ in lds_: a.e(x_)
    for i in range(8):
        if i % 4 == 0 and "r" not in DP: a.e(f"s_waitcnt vmcnt({2 - i // 2})")
        u = w + 4 * (i & 3)
        if DOT:
            if i == 0:
                for r_ in (xa, xb):
                    for k in range(16): a.e(f"v_dot2_f32_bf16 v{x+k}, v{r_+k//2}, s{78+(k&1)}, v{x+k}")
                a.e("s_nop 2")
            continue
        unpack(a, u, u + 1, xa + i); unpack(a, u + 2, u + 3, xb + i)
        a.e(f"v_pk_add_f32 {vr(u,2)}, {vr(u,2)}, {vr(u+2,2)}")
        a.e(f"v_pk_add_f32 {vr(x+2*i,2)}, {vr(x+2*i,2)}, {vr(u,2)}")
        if final: a.e(f"v_cvt_pk_bf16_f32 v{xa+i}, v{x+2*i}, v{x+2*i+1}")
        else: round2(a, x + 2 * i, x + 2 * i + 1, tmp)
    if final:
        a.e("s_waitcnt lgkmcnt(0)")
        a.srd(20, 6, 4 * MB)
        OS = os.environ.get("OS", "sc1")
        if os.environ.get("OWIDE", "1") == "1":
            a.e(f"v_bfe_u32 v{t}, v1, 3, 1"); a.e(f"v_cmp_eq_u32 vcc, 1, v{t}")
            for j in range(2):
                lo, hi = xa + 4 * j, xa + 4 * j + 2
                for e in range(2):
                    a.e(f"v_cndmask_b32 v{x+e}, v{hi+e}, v{lo+e}, vcc")
                for e in range(2):
                    a.e(f"v_mov_b32_dpp v{x+2+e}, v{x+e} row_ror:8 row_mask:0xf bank_mask:0xf")
                for e in range(2):
                    a.e(f"v_cndmask_b32 v{x+4+e}, v{lo+e}, v{x+2+e}, vcc"); a.e(f"v_cndmask_b32 v{hi+e}, v{x+2+e}, v{hi+e}, vcc")
                for e in range(2): a.e(f"v_mov_b32 v{lo+e}, v{x+4+e}")
            a.e(f"v_bfe_u32 v{t2}, v1, 4, 1"); a.e(f"v_lshlrev_b32 v{t}, 5, v{t}"); a.e(f"v_lshl_add_u32 v{t}, v{t2}, 4, v{t}")
            a.e(f"v_and_b32 v{t2}, 0xffffffc0, v{ro}"); a.e(f"v_add_u32 v{t}, v{t}, v{t2}")
            for j in range(2): a.e(f"buffer_store_dwordx4 {vr(xa+4*j,4)}, v{t}, s[20:23], 0 offen offset:{128*j} {OS}")
        else:
            for j in range(4): a.e(f"buffer_store_dwordx2 {vr(xa+2*j,2)}, v{ro}, s[20:23], 0 offen offset:{128*(j>>1) + 32*(j&1)} {OS}")
        return v.hi
    part(x, 0)
    if os.environ.get("RST"): mstamp(a)
    a.e("s_waitcnt lgkmcnt(0)"); a.e("s_barrier")
    if os.environ.get("RST"): mstamp(a)
    comb(0)
    ln_finish(a, mean, var, rs)
    if os.environ.get("RST"): mstamp(a)
    a.e(f"v_mul_f32 v{mean}, v{mean}, v{rs}")
    for i in range(8): a.e(f"v_pk_fma_f32 {vr(w+2*i,2)}, {vr(x+2*i,2)}, {vr(mean,2)}, {vr(mean,2)} op_sel:[0,1,0] op_sel_hi:[1,1,0] neg_lo:[0,0,1] neg_hi:[0,0,1]")
    for i in range(8):
        D = w + 2 * i
        a.e(f"v_pk_fma_f32 {vr(x+2*i,2)}, {vr(D,2)}, {vr(yf+2*i,2)}, {vr(x+2*i,2)}")
        a.e(f"v_cvt_pk_bf16_f32 v{xa+i}, v{x+2*i}, v{x+2*i+1}")
        if i % 4 == 1 and DP: mark(a, xa + i - 1, 0)
        if i % 4 == 3: a.e(f"buffer_store_dwordx4 {vr(xa+i-3,4)}, v{fo}, s[20:23], 0 offen offset:{2048*(i//4)} {SC}")
    if os.environ.get("RST"): mstamp(a)
    a.e("s_branch R_s2")
    a.e("R_l0:")
    for i in range(8): unpack(a, x + 2 * i, x + 2 * i + 1, xa + i)
    part(x, 0)
    a.e("s_waitcnt lgkmcnt(0)")
    st_ = st; st = yf
    lds_spin(a, LW + 28, 65536, st, dst=94)
    if STAMP: a.e("s_and_b32 s95, s94, 0xffff")
    a.e(f"s_cmp_gt_u32 s94, {65536 + QUO // 2}"); a.e("s_cselect_b32 s94, 1, 0")
    a.e("s_lshl_b32 s53, s94, 13"); a.e(f"v_xor_b32 v{RYO}, s53, v{RYO}")
    FL = int(os.environ.get("FL", "1"))
    if FL:
        group_off(a, 36, 28); a.e("s_lshr_b32 s53, s53, 14"); a.e("s_add_u32 s36, s53, s54"); a.e(f"s_xor_b32 s36, s36, {(((F_FRONT >> 21) ^ (F_FRONT >> 13) ^ (FL >> 1)) & 1) << 13}")
    else: a.e("s_lshl_b32 s36, s28, 10")
    a.e(f"s_add_u32 s36, s36, {F_FRONT}"); a.e("s_lshl_b32 s53, s30, 7"); a.e("s_add_u32 s36, s36, s53"); a.e(f"v_mov_b32 v{st+4}, s36")
    a.e("s_waitcnt vmcnt(0)"); a.e("s_barrier")
    poll_core(a, st, [st + 4], 1, cnt=32, nap=FSLEEP)
    load_y(a)
    group_off(a, 55, 28)
    a.e("s_add_u32 s62, s4, s55"); a.e("s_addc_u32 s63, s5, 0")
    a.e("s_sub_u32 s36, s28, 1"); a.e("s_max_i32 s36, s36, 0"); group_off(a, 92, 36); a.e("s_sub_u32 s92, s92, s55")
    a.e("s_add_u32 s36, s28, 1"); a.e("s_min_u32 s36, s36, 15"); group_off(a, 93, 36); a.e("s_sub_u32 s93, s93, s55")
    a.e(f"s_add_u32 s55, s55, {oSM}")
    lsrd(a, 20, oX3, XSZ)
    st = st_; comb(0); ln_finish(a, mean, var, rs); st = yf
    for i in range(8):
        D = w + 2 * i
        a.e(f"v_pk_add_f32 {vr(D,2)}, {vr(x+2*i,2)}, {SUBM}"); a.e(f"v_pk_mul_f32 {vr(D,2)}, {vr(D,2)}, {MULR}")
    a.e("s_barrier")
    mstamp(a)
    a.e("s_waitcnt vmcnt(0)")
    for i in range(8):
        D = w + 2 * i
        unpack(a, st, st + 1, yy + i)
        a.e(f"v_pk_fma_f32 {vr(x+2*i,2)}, {vr(D,2)}, {vr(st,2)}, {vr(x+2*i,2)}"); a.e(f"v_cvt_pk_bf16_f32 v{xa+i}, v{x+2*i}, v{x+2*i+1}")
        if i % 4 == 1 and DP: mark(a, xa + i - 1, 0)
        if i % 4 == 3: a.e(f"buffer_store_dwordx4 {vr(xa+i-3,4)}, v{fo}, s[20:23], 0 offen offset:{2048*(i//4)} {SC}")
    a.e("R_s2:")
    st = st_
    for i in range(8): unpack(a, x + 2 * i, x + 2 * i + 1, xa + i)
    part(x, 1)
    if "1" in DP:
        a.e("s_waitcnt lgkmcnt(0)"); a.e("s_barrier")
        a.e("s_cmp_lg_u32 s30, 6"); a.e("s_cbranch_scc1 R_n6"); a.e("s_cmp_lg_u32 s60, 0"); a.e("s_cbranch_scc1 R_n6")
        a.e("s_lshl_b32 s53, s29, 7"); a.e(f"s_add_u32 s53, s53, {F_CS}"); a.e(f"v_mov_b32 v{pt}, 1"); a.e(f"v_mov_b32 v{pt+1}, 0")
        a.e("s_mov_b64 exec, 1"); a.e(f"buffer_atomic_add v{pt}, v{pt+1}, s[56:59], s53 offen {SC}"); a.e("s_mov_b64 exec, -1")
        a.e("R_n6:")
    else:
        publish(a, ST_R, 8, pt)
        a.e("s_barrier")
    a.e(f"s_cmp_lg_u32 s30, {7 if '1' in DP else 0}"); a.e("s_cbranch_scc1 R_nl")
    comb(1)
    outv = yf + 2; s3 = v(); m4 = v(); v4_ = v(); r4 = v()
    assert v.hi <= PK
    a.e(f"v_mov_b32 v{m4}, v{mean}"); a.e(f"v_mov_b32 v{v4_}, v{var}")
    ln_finish(a, mean, var, rs, s3)
    a.e(f"v_sub_f32 v{m4}, v{m4}, v{mean}"); a.e(f"v_mul_f32 v{m4}, v{m4}, v{rs}")
    a.e(f"v_mul_f32 v{v4_}, v{v4_}, v{rs}"); a.e(f"v_mul_f32 v{v4_}, v{v4_}, v{rs}")
    ln_finish(a, m4, v4_, r4)
    a.e(f"v_mov_b32 v{outv}, v{mean}"); a.e(f"v_mov_b32 v{outv+1}, v{rs}")
    a.e(f"v_fma_f32 v{outv+2}, v{m4}, v{s3}, v{mean}"); a.e(f"v_mul_f32 v{outv+3}, v{rs}, v{r4}")
    lsrd(a, 24, oLNS, 2048)
    a.e("s_lshl_b32 s36, s29, 3"); a.e(f"v_add_u32 v{t}, s36, v{I}"); a.e(f"v_lshlrev_b32 v{t}, 4, v{t}")
    a.e("s_mov_b64 exec, 0xff")
    a.e(f"buffer_store_dwordx4 {vr(outv,4)}, v{t}, s[24:27], 0 offen {SC}")
    a.e("s_mov_b64 exec, -1")
    publish(a, ST_R2, 1, pt)
    a.e("R_nl:")
    return v.hi

TAB = int(os.environ.get("TAB", "1")); TV = 248
def lead(seq, r, L, P=4):
    if L == 0: return list(seq)
    return [x for _, x in sorted(((i - L - 0.5 if i % P == r else i), x) for i, x in enumerate(seq))]
def order3(j, gi):
    mode, L = eval(os.environ.get("O3", "('r',0)"))
    if mode == "r": return [(gi + t) & 15 for t in range(16)]
    if mode == "n": return [gi] + [x for x in lead(range(16), (j + gi) & 3, L) if x != gi]
    if mode == "s": return [gi] + lead([x for x in range(16) if x != gi], (j + gi) & 3, L)
    if mode == "h": return [gi] + [x for x in lead([(t + (gi & 8)) & 15 for t in range(16)], (j + gi) & 3, L) if x != gi]
def order4(j, n):
    mode, L = eval(os.environ.get("O4", "('n',1)"))
    own = [(7 * n + i, 7 * n + 4 + i) for i in range(3)]
    ps = [(n + t) & 7 for t in range(8)] if mode == "r" else list(range(8))
    ab = [(7 * p + i, 7 * p + 4 + i) for i in range(2) for p in ps if p != n]
    c = [7 * p + o for p in ps for o in (2, 6, 3) if p != n or o == 3]
    rest = ab + [(c[2 * i], c[2 * i + 1]) for i in range(11)]
    if mode != "r": rest = lead(rest, (j + n + int(os.environ.get("O4R", "0"))) & 3, L)
    return own + rest
L4 = eval(os.environ.get("O4", "('n',1)"))[1] if TAB else 0
def tab_data(a):
    a.lines.append(".p2align 6"); a.lines.append("K_tab:")
    for gi in range(16):
        for j in range(4):
            o3 = order3(j, gi) + [0] * 16; o4 = order4(j, gi & 7) + [(0, 0)] * 4
            assert sorted(o3[:16]) == list(range(16)) and sorted(sum(o4[:28], ())) == list(range(56))
            a.lines.append(".short " + ",".join(str(o3[t] | o4[t][0] << 4 | o4[t][1] << 10) for t in range(32)))
def tab_load(a):
    a.e("s_getpc_b64 s[34:35]"); a.e("K_tpc:")
    a.e("s_lshl_b32 s36, s29, 2"); a.e("s_and_b32 s37, s28, 3"); a.e("s_add_u32 s36, s36, s37"); a.e("s_lshl_b32 s36, s36, 6")
    a.e("s_add_u32 s36, s36, K_tab-K_tpc"); a.e("s_add_u32 s34, s34, s36"); a.e("s_addc_u32 s35, s35, 0")
    a.e(f"v_and_b32 v{TV}, 31, v1"); a.e(f"v_lshlrev_b32 v{TV}, 1, v{TV}"); a.e(f"global_load_ushort v{TV+3}, v{TV}, s[34:35]")
def tab_make(a, w):
    T, x = TV + 3, TV + 4
    if not w:
        a.e(f"v_bfe_u32 v{x}, v{T}, 2, 2"); a.e(f"v_lshlrev_b32 v{TV}, 14, v{x}"); a.e(f"v_and_b32 v{x}, 3, v{T}"); a.e(f"v_lshl_add_u32 v{TV}, v{x}, 11, v{TV}")
        for lw in range(2):
            a.e(f"v_bfe_u32 v{x}, v{T}, {7+6*lw}, 3"); a.e(f"v_lshlrev_b32 v{TV+1+lw}, 14, v{x}"); a.e(f"v_bfe_u32 v{x}, v{T}, {4+6*lw}, 3"); a.e(f"v_lshl_add_u32 v{TV+1+lw}, v{x}, 10, v{TV+1+lw}")
    else:
        a.e(f"v_and_b32 v{x}, 15, v{T}"); a.e(f"v_mul_u32_u24 v{TV}, {64*7168}, v{x}")
        a.e("s_and_b32 s36, s30, 1"); a.e("s_mul_i32 s36, s36, 6"); a.e("s_add_u32 s36, s36, 4"); a.e(f"v_bfe_u32 v{x}, v{T}, s36, 6")
        assert all((q * 37) >> 8 == q // 7 for q in range(56))
        a.e(f"v_mul_u32_u24 v{TV+2}, 37, v{x}"); a.e(f"v_lshrrev_b32 v{TV+2}, 8, v{TV+2}"); a.e(f"v_mul_u32_u24 v{TV+2}, 7, v{TV+2}"); a.e(f"v_sub_u32 v{TV+2}, v{x}, v{TV+2}")
        a.e(f"v_cmp_eq_u32 vcc, 3, v{TV+2}"); a.e(f"v_cndmask_b32 v{TV+2}, 0, 1, vcc"); a.e(f"v_lshl_add_u32 v{TV+1}, v{x}, 16, v{TV+2}")
        for p_ in eval(os.environ.get("W4SKIP", "[]")): a.e("s_mov_b32 s36, 0x40000000"); a.e(f"v_writelane_b32 v{TV+1}, s36, {p_}")
def rot_init(a, which):
    if which == 3 and TAB: a.e("s_mov_b32 s44, 0")
    elif which == 3 and OWN3: a.e("s_mov_b32 s44, s29")
    elif which != 4: a.e("s_mov_b32 s44, s67")
    else: a.e("s_mov_b32 s44, 0")
def rot_next(a, which):
    a.e("s_add_u32 s44, s44, 1")
    if which != 4: a.e("s_and_b32 s44, s44, 15")
def kb4(a, d, lw):
    a.e("s_lshl_b32 s45, s44, 1"); a.e(f"s_add_u32 s45, s45, {lw}"); a.e("s_sub_u32 s45, s45, 32")
    a.e("s_mul_i32 s46, s45, 86"); a.e("s_lshr_b32 s46, s46, 8")
    a.e("s_mul_i32 s47, s46, 3"); a.e("s_sub_u32 s47, s45, s47"); a.e("s_lshl_b32 s47, s47, 2"); a.e("s_lshr_b32 s47, 0x362, s47"); a.e("s_and_b32 s47, s47, 7")
    a.e("s_cmp_ge_u32 s44, 10"); a.e("s_cselect_b32 s45, 9, 2"); a.e("s_cselect_b32 s51, 1, 0"); a.e("s_sub_u32 s45, s44, s45")
    a.e("s_cmp_lt_u32 s44, 3"); a.e("s_cselect_b32 s45, 0, s45"); a.e("s_cselect_b32 s51, s44, s51")
    a.e(f"s_lshl2_add_u32 s51, {lw}, s51")
    a.e("s_cmp_lt_u32 s44, 17"); a.e("s_cselect_b32 s47, s51, s47"); a.e("s_cselect_b32 s46, s45, s46")
    a.e("s_add_u32 s46, s46, s33"); a.e("s_and_b32 s46, s46, 7"); a.e("s_mul_i32 s46, s46, 7"); a.e(f"s_add_u32 s{d}, s46, s47")
assert all((q * 86) >> 8 == q // 3 for q in range(24))
WVB = {1: 238, 2: 238, 4: 239, 3: 241}
WV = 245
def w_lanes(a):
    t, t2 = WV + 8, WV + 9
    R = WVB[1]
    a.e(f"v_lshrrev_b32 v{t}, 3, v1"); a.e(f"v_lshlrev_b32 v{R}, 11, v{t}")
    a.e(f"v_and_b32 v{t}, 6, v{t}"); a.e(f"v_and_b32 v{t2}, 7, v1"); a.e(f"v_xor_b32 v{t}, v{t}, v{t2}"); a.e(f"v_lshl_add_u32 v{R}, v{t}, 4, v{R}")
    R = WVB[4]
    for p in range(2):
        a.e(f"v_lshrrev_b32 v{t}, 4, v1"); a.e(f"v_lshlrev_b32 v{R+p}, 11, v{t}")
        a.e(f"v_add_u32 v{t}, {4*p}, v{t}"); a.e(f"v_lshlrev_b32 v{t}, 1, v{t}"); a.e(f"v_and_b32 v{t2}, 15, v1"); a.e(f"v_xor_b32 v{t}, v{t}, v{t2}")
        a.e(f"v_lshl_add_u32 v{R+p}, v{t}, 4, v{R+p}")
    R = WVB[3]
    assert all((p * 2341) >> 16 == p // 28 for p in range(448))
    for ii in range(7):
        a.e(f"v_add_u32 v{t2}, {64*ii}, v1"); a.e(f"v_mul_u32_u24 v{t}, 2341, v{t2}"); a.e(f"v_lshrrev_b32 v{t}, 16, v{t}")
        a.e(f"v_mul_u32_u24 v{R+ii}, 28, v{t}"); a.e(f"v_sub_u32 v{t2}, v{t2}, v{R+ii}")
        a.e(f"v_mul_u32_u24 v{R+ii}, 7168, v{t}")
        a.e(f"v_lshrrev_b32 v{t}, 1, v{t}"); a.e(f"v_and_b32 v{t}, 2, v{t}"); a.e(f"v_xor_b32 v{t2}, v{t2}, v{t}")
        a.e(f"v_lshl_add_u32 v{R+ii}, v{t2}, 4, v{R+ii}")
def w_srd(a, which):
    c = CFG[which]
    a.e(f"s_mov_b64 s[12:13], s[{66+2*which}:{67+2*which}]")
    a.e(f"s_mov_b32 s14, {c['KBT'] * 32 * c['LDW']}"); a.e("s_mov_b32 s15, 0x20000")
def w_setup(a, which, pre=True, lo=0):
    c = CFG[which]; STB = c["STB"]; BW = STB // 2
    w_srd(a, which)
    a.e("s_and_b32 s35, s30, 1")
    a.e(f"s_mul_i32 s38, s{(0, 99, 29, 29, 33)[which]}, {c['RB']}");
    if which != 4: a.e(f"s_mul_i32 s41, s35, {32*c['LDW']}"); a.e("s_add_u32 s38, s38, s41")
    if which == 4: a.e(f"s_mul_i32 s41, s31, {1792*c['LDW']}"); a.e("s_add_u32 s38, s38, s41")
    a.e(f"s_mul_i32 s41, s35, {BW}"); a.e(f"s_add_u32 s41, s41, {c['WB']}")
    a.e("s_mov_b32 s42, 0"); rot_init(a, which)
    if not pre: return
    NP = c["NPRE"]
    a.e("s_mov_b32 s49, s44"); a.e("s_and_b32 s43, s28, 3"); a.e(f"s_mul_i32 s43, s43, {NP - lo}"); a.e("s_lshr_b32 s43, s43, 2"); a.e(f"s_mov_b32 s50, {lo}")
    if not WROT: a.e("s_mov_b32 s43, 0")
    if lo: a.e(f"s_add_u32 s43, s43, {lo}")
    L = a.lab("wpre"); a.e(f"{L}:")
    a.e(f"s_mul_i32 s42, s43, {STB}"); a.e("s_add_u32 s44, s49, s43")
    if which != 4: a.e("s_and_b32 s44, s44, 15")
    w_issue(a, which, pace=PACES.get(which, PACE))
    a.e("s_add_u32 s43, s43, 1"); a.e(f"s_cmp_eq_u32 s43, {NP}"); a.e(f"s_cselect_b32 s43, {lo}, s43")
    a.e("s_add_u32 s50, s50, 1"); a.e(f"s_cmp_lt_u32 s50, {NP}"); a.e(f"s_cbranch_scc1 {L}")
    mstamp(a)
    a.e(f"s_mov_b32 s42, {(NP % c['NW']) * STB}"); a.e(f"s_add_u32 s44, s49, {NP}")
    if which != 4: a.e("s_and_b32 s44, s44, 15")
YP = int(os.environ.get("YP", "0"))
def ypause(a):
    if not YP: return
    X = a.lab("yp")
    a.e(f"v_mov_b32 v6, {LW+4}"); a.e("ds_read2_b32 v[14:15], v6 offset0:0 offset1:1"); a.e("s_waitcnt lgkmcnt(0)"); a.e("v_readfirstlane_b32 s53, v15")
    a.e(f"s_cmp_lt_u32 s53, {YP}"); a.e(f"s_cbranch_scc1 {X}")
    lds_spin(a, LW + 20, 8, 6, nap=2)
    a.e(f"{X}:")
PD = int(os.environ.get("PD", "8")); PDA = int(os.environ.get("PDA", "0"))
def park_load(a, pace, q0=0, q1=32):
    w_srd(a, 2)
    a.e("s_and_b32 s35, s30, 3"); a.e("s_lshl_b32 s35, s35, 19"); a.e("s_lshl_b32 s39, s29, 7"); a.e("s_add_u32 s39, s39, s35")
    if q0: a.e(f"s_add_u32 s39, s39, {q0*16384}")
    for q in range(q0, q1):
        a.e(f"buffer_load_dwordx4 {vr(PK+4*q,4)}, v{WVB[2]}, s[12:15], s39 offen"); a.e("s_add_u32 s39, s39, 16384")
        if pace and q % 4 == 3: a.e(f"s_waitcnt vmcnt({pace})"); ypause(a)
def park(a): park_load(a, int(os.environ.get("PKP", "8")), 0, 32 - PD)
def park2(a): park_load(a, int(os.environ.get("PKP", "8")), 32 - PD, 32)
def park_rest(a, late):
    if not PD or (PDA and not late): return
    X = a.lab("pr")
    if late: a.e("s_cmp_lg_u32 s60, 0"); a.e(f"s_cbranch_scc1 {X}")
    if not PDA: a.e("s_and_b32 s36, s29, 6"); a.e("s_cmp_eq_u32 s36, 2"); a.e(f"s_cbranch_scc{0 if late else 1} {X}")
    call(a, park2); a.e(f"{X}:")
def late_park(a):
    X = a.lab("lp"); a.e("s_cmp_lg_u32 s60, 0"); a.e(f"s_cbranch_scc1 {X}"); call(a, park); a.e(f"{X}:")
def after_g1(a):
    c = CFG[3]
    if os.environ.get("UPD0"): a.e("s_sleep " + os.environ["UPD0"])
    w_srd(a, 3)
    a.e(f"v_readlane_b32 s36, v{TV+3}, 0"); a.e(f"v_readlane_b32 s37, v{TV+3}, 1"); a.e(f"v_readlane_b32 s34, v{TV+3}, 2")
    a.e("s_and_b32 s35, s30, 3"); a.e(f"s_mul_i32 s38, s35, {16*7168}"); a.e("s_mul_i32 s39, s29, 448"); a.e("s_add_u32 s38, s38, s39")
    for r in (36, 37, 34): a.e(f"s_and_b32 s{r}, s{r}, 15"); a.e(f"s_mul_i32 s{r}, s{r}, {64*7168}"); a.e(f"s_add_u32 s{r}, s{r}, s38")
    a.e("s_mul_i32 s39, s35, 7168"); a.e(f"s_add_u32 m0, s39, {c['WB'] + c['S0'] * c['STB']}")
    for i in range(7):
        if i: a.e("s_add_u32 m0, m0, 1024")
        a.e(f"buffer_load_dwordx4 v{WVB[3]+i}, s[12:15], s36 offen lds")
    for i in range(7 if W3N == 2 else 0): a.e(f"buffer_load_dwordx4 {vr(W3S+4*i,4)}, v{WVB[3]+i}, s[12:15], s37 offen")
    a.e("s_lshr_b32 s36, s67, 2"); a.e("s_sub_u32 s36, s35, s36"); a.e("s_and_b32 s36, s36, 3"); a.e("s_lshl_b32 s36, s36, 15"); a.e(f"v_add_u32 v6, s36, v2")
    if W33 == 1:
        for i in range(7): a.e(f"buffer_load_dwordx4 {vr(16+4*i,4)}, v{WVB[3]+i}, s[12:15], s34 offen")
    a.e(f"s_waitcnt vmcnt({21 if W33 == 1 else 7 * W3N})")
    if os.environ.get("UPD"): a.e("s_sleep " + os.environ["UPD"])
    for q in range(32): a.e(f"ds_write_b128 v6, {vr(PK+4*q,4)} offset:{CFG[2]['WB'] + 1024*q}")
    a.e("s_waitcnt lgkmcnt(0)")
W3N = int(os.environ.get("W3N", "2"))
W33 = int(os.environ.get("W33", "0"))
def third_late(a):
    a.e(f"s_sleep {W33}")
    for i in range(7): a.e(f"buffer_load_dwordx4 {vr(16+4*i,4)}, v{WVB[3]+i}, s[12:15], s34 offen")
def third_put(a):
    c = CFG[3]
    for i in range(7): a.e(f"ds_write_b128 v7, {vr(16+4*i,4)} offset:{c['STB'] + 1024*i}")
    a.e("s_waitcnt lgkmcnt(0)")
def after_g2(a):
    c = CFG[3]
    if W3N == 1:
        a.e("s_and_b32 s35, s30, 3"); a.e("s_mul_i32 s39, s35, 7168"); a.e(f"s_add_u32 m0, s39, {c['WB'] + (c['S0'] + 1) % c['NW'] * c['STB']}")
        for i in range(7):
            if i: a.e("s_add_u32 m0, m0, 1024")
            a.e(f"buffer_load_dwordx4 v{WVB[3]+i}, s[12:15], s37 offen lds")
        return
    a.e("s_and_b32 s35, s30, 3"); a.e("s_mul_i32 s39, s35, 7168"); a.e(f"s_add_u32 s39, s39, {c['WB'] + (c['S0'] + 1) % c['NW'] * c['STB']}"); a.e("v_add_u32 v7, s39, v2")
    for i in range(7): a.e(f"ds_write_b128 v7, {vr(W3S+4*i,4)} offset:{1024*i}")
    a.e("s_waitcnt lgkmcnt(0)")
SUBX = {}
def call(a, f):
    SUBX[f.__name__] = f; a.e(f"s_call_b64 s[76:77], SUB_{f.__name__}")
def w1_slots(a, js, pace=0):
    for j in js:
        a.e(f"s_mov_b32 s42, {j*8192}"); a.e("s_mov_b32 s44, s67"); a.e(f"s_add_u32 s44, s44, {j}"); a.e("s_and_b32 s44, s44, 15")
        call_issue(a, w_issue, 1)
        if pace: a.e(f"s_waitcnt vmcnt({pace})")
def w1_done(a):
    a.e("s_mov_b32 s42, 0"); a.e("s_mov_b32 s44, s67"); a.e("s_add_u32 s44, s44, 13"); a.e("s_and_b32 s44, s44, 15")
class Rec:
    def __init__(s_): s_.l = []
    def e(s_, x): s_.l.append(x)
    srd = Asm.srd
def w_parts(which, direct=False):
    c = CFG[which]; STB = c["STB"]; n = STB // 2048; LDW = c["LDW"]; b = Rec()
    b.e("s_add_u32 s19, s41, s42")
    arm = ["s_mov_b32 m0, s19", "s_mov_b32 s39, s16"]
    if which == 4 and TAB:
        b.e(f"v_readlane_b32 s16, v{TV+1}, s44")
        b.e("s_bitcmp1_b32 s16, 0"); b.e(f"s_cselect_b32 s17, {8*2048}, {4*2048}".replace(f"{4*2048}", "s45")); b.e(f"s_cselect_b32 s18, {-20*2048}, s45")
        b.e("s_andn2_b32 s16, s16, 1"); b.e("s_add_u32 s16, s16, s38")
        b.l.insert(0, f"s_mov_b32 s45, {4*2048}")
        arm += ["s_mov_b32 s32, s17", "s_mov_b32 s3, s18"]
        if os.environ.get("W4SKIP"): arm += ["s_bitcmp1_b32 s16, 30", "s_cselect_b64 exec, 0, -1"]
    elif which == 3 and TAB and not direct:
        b.e(f"v_readlane_b32 s16, v{TV}, s44"); b.e("s_add_u32 s16, s16, s38")
    elif which == 4:
        b.e("s_and_b32 s40, s30, 1"); kb4(b, 16, "s40")
        b.e(f"s_mul_i32 s16, s16, {32*LDW}"); b.e("s_add_u32 s16, s16, s38")
        b.e("s_cmp_eq_u32 s47, 3"); b.e("s_cselect_b32 s17, 8, 4"); b.e("s_cselect_b32 s18, -20, 4")
        b.e("s_lshl_b32 s17, s17, 11"); b.e("s_lshl_b32 s18, s18, 11")
        arm += ["s_mov_b32 s32, s17", "s_mov_b32 s3, s18"]
    else:
        b.e(f"s_mul_i32 s16, s44, {64*LDW}"); b.e("s_add_u32 s16, s16, s38")
    if f"w{which}" in os.environ.get("HOT", ""): b.e("s_mov_b32 s16, s38")
    rot_next(b, which)
    b.e(f"s_add_u32 s42, s42, {STB}"); b.e(f"s_cmp_eq_u32 s42, {c['NW']*STB}"); b.e("s_cselect_b32 s42, 0, s42")
    fire = []
    for i in range(n):
        g = []
        if i:
            g.append("s_add_u32 m0, m0, 1024")
            if which in (1, 2): g.append(f"s_add_u32 s39, s39, {8*LDW}")
            elif which == 4: g.append(f"s_add_u32 s39, s39, s{3 if i == 4 else 32}")
            elif i == 7: g.append(f"s_add_u32 s39, s39, {16*LDW}")
        vo = WVB[which] + (0 if which in (1, 2) else (i & 1) if which == 4 else i % 7)
        fire.append(g + [f"buffer_load_dwordx4 v{vo}, s[12:15], s39 offen lds"])
    if f"w{which}" in os.environ.get("NOLD", ""): fire = [[x for x in g if not x.startswith("buffer_load")] + ["s_nop 0"] for g in fire]
    return b.l, arm, fire
def w_issue(a, which, pace=0, direct=False):
    prep, arm, fire = w_parts(which, direct)
    for x in prep + arm: a.e(x)
    for i, g in enumerate(fire):
        for x in g: a.e(x)
        if pace and (i % 4 == 3 or i == len(fire) - 1): a.e(f"s_waitcnt vmcnt({pace})")

def w_bases(a, which, dst, swn, ntl, t, t2):
    c = CFG[which]; RB = c["RB"]
    a.e(f"v_lshrrev_b32 v{t}, 2, v1")
    a.e(f"v_mul_u32_u24 v{dst}, {RB}, v{t}"); a.e(f"v_and_b32 v{t2}, 3, v1"); a.e(f"v_lshl_add_u32 v{dst}, v{t2}, 3, v{dst}")
    a.e(f"v_add_u32 v{dst}, {c['WB']}, v{dst}")
    if which == 3:
        a.e(f"s_mul_i32 s36, s{swn}, {7*32}"); a.e(f"v_add_u32 v{dst}, s36, v{dst}")
        a.e(f"v_bfe_u32 v{t}, v1, 4, 1"); a.e(f"v_lshlrev_b32 v{t}, 5, v{t}")
        a.e(f"s_cmp_eq_u32 s{swn}, 0"); a.e("s_cselect_b32 s36, 1, -1"); a.e(f"v_mul_lo_u32 v{t}, v{t}, s36")
        a.e(f"v_sub_u32 v{dst+1}, v{dst}, v{t}"); a.e(f"v_add_u32 v{dst}, v{dst}, v{t}")
        return 2, lambda nt, kk, h: (nt & 1, (32 * kk + 16 * h) * RB + 32 * nt)
    if which == 4: a.e(f"v_and_b32 v{t}, 7, v{t}")
    else: a.e(f"v_bfe_u32 v{t}, v{t}, 1, 2")
    for nt in range(ntl - 1, -1, -1):
        a.e(f"s_mul_i32 s36, s{swn}, {ntl}"); a.e(f"s_add_u32 s36, s36, {nt}")
        a.e(f"v_xor_b32 v{t2}, s36, v{t}"); a.e(f"v_lshl_add_u32 v{dst+nt}, v{t2}, 5, v{dst}")
    return ntl, lambda nt, kk, h: (nt, (32 * kk + 16 * h) * RB)

def a_parts(which):
    c = CFG[which]; b = Rec()
    if which <= 2 and NX:
        b.e("s_and_b32 s42, s48, 7"); b.e("s_lshl_b32 s42, s42, 14"); b.e("s_lshr_b64 s[48:49], s[48:49], 4")
    b.e("s_add_u32 s19, s41, s42")
    arm = ["s_mov_b32 m0, s19", "s_mov_b32 s39, s16"]; fire = []
    if which == 2:
        b.e(f"s_mul_i32 s16, s44, {8*PITCH}"); b.e("s_add_u32 s16, s16, s38")
        b.e("s_lshr_b32 s45, s44, 2"); b.e("s_xor_b32 s45, s45, s94"); b.e("s_and_b32 s45, s45, 1"); b.e("s_lshl_b32 s45, s45, 13"); b.e("s_add_u32 s16, s16, s45")
        b.e("s_lshr_b32 s45, s44, 3"); b.e("s_lshl_b32 s45, s45, 4"); b.e("s_add_u32 s45, s45, 16")
        b.e("s_sub_u32 s46, 0, s45"); b.e("s_bitcmp1_b32 s44, 2"); b.e("s_cselect_b32 s45, s45, s46"); b.e("s_add_u32 s16, s16, s45")
        step = PITCH
    elif which == 4:
        for lw in range(2):
            if TAB: b.e(f"v_readlane_b32 s{16+lw}, v{TV+1+lw}, s44")
            else: kb4(b, 16 + lw, lw); spread(b, 16 + lw, 16 + lw)
        for lw in range(2): b.e(f"s_add_u32 s{16+lw}, s{16+lw}, s38")
        arm.append("s_mov_b32 s40, s17")
        for i in range(4):
            for lw in range(2):
                fire.append((["s_add_u32 m0, m0, 1024"] if i or lw else []) + ([f"s_add_u32 s{39+lw}, s{39+lw}, {c['KBT']*2048}"] if i else []) +
                            [f"buffer_load_dwordx4 v2, s[12:15], s{39+lw} offen {SC} lds"])
    elif which == 3 and TAB:
        b.e(f"v_readlane_b32 s16, v{TV}, s44"); b.e("s_add_u32 s16, s16, s38"); step = c['KBT'] * 2048
    else:
        b.e("s_lshr_b32 s45, s44, 2"); b.e("s_lshl_b32 s45, s45, 14"); b.e("s_and_b32 s16, s44, 3"); b.e("s_lshl_b32 s16, s16, 11")
        b.e("s_add_u32 s16, s16, s45"); b.e("s_add_u32 s16, s16, s38"); step = c['KBT'] * 2048
    if f"a{which}" in os.environ.get("HOT", ""):
        b.e("s_mov_b32 s16, s38")
        if which == 4: b.e("s_add_u32 s17, s38, 1024")
    for i in range(4 if which != 4 else 0):
        fire.append((["s_add_u32 m0, m0, 2048", f"s_add_u32 s39, s39, {step}"] if i else []) + [f"buffer_load_dwordx4 v2, s[12:15], s39 offen {SC} lds"])
        fire.append([f"buffer_load_dwordx4 v2, s[12:15], s39 offen offset:1024 {SC} lds"])
    rot_next(b, which)
    if not (which <= 2 and NX):
        b.e(f"s_add_u32 s42, s42, 16384"); b.e(f"s_cmp_eq_u32 s42, {c['NA']*16384}"); b.e("s_cselect_b32 s42, 0, s42")
    if f"a{which}" in os.environ.get("NOLD", ""): fire = [[x for x in g if not x.startswith("buffer_load")] + ["s_nop 0"] for g in fire]
    return b.l, arm, fire
def a_issue(a, which):
    prep, arm, fire = a_parts(which)
    for x in prep + arm + sum(fire, []): a.e(x)
SUBS = {}
def call_issue(a, issue, which):
    nm = f"SUB_{issue.__name__}_{which}"; SUBS[nm] = (issue, which)
    a.e(f"s_call_b64 s[76:77], {nm}")
def emit_subs(a):
    for nm, f in SUBX.items(): a.e(f"SUB_{nm}:"); f(a); a.e("s_setpc_b64 s[76:77]")
    for nm, (issue, which) in SUBS.items():
        a.e(f"{nm}:"); issue(a, which); a.e("s_setpc_b64 s[76:77]")
def ld_steps(a, which, N, per, issue, npre, rate=2, plan={}, lo=0, hi=None, last=None, hold=(), sched=None, armed=False):
    NS = CFG[which]["NS"]
    prep, arm, fire = (w_parts if issue is w_issue else a_parts)(which); h = max(1, per * HSPLIT // 8)
    plan = {b: (x if isinstance(x, list) else [x]) for b, x in plan.items()}
    q = [s_ for s_ in range(npre) for _ in range(per)]
    def after(tag):
        if issue is w_issue and which == 4 and isinstance(tag, int) and tag < npre: tag = npre - 1
        return len(q) - 1 - max(i for i, x in enumerate(q) if x == tag)
    issued = npre; steps = []
    for b in range(NS):
        acts = plan.get(b, []); was = {}
        def do(pos):
            for n_, act in enumerate(acts):
                if act[0] != pos: continue
                if act[1] is not None: was[n_] = after(act[1])
                q.extend([act[4]] * act[3])
        do(True)
        k = 0
        if (b > 0 or (sched is not None and issue is a_issue)) and b not in hold:
            k = max(0, min(rate, min(NS, b - 1 + N) - issued)) if sched is None else sched[b]
        assert k or not any(x[0] == "mid" for x in acts)
        for j in range(k):
            q.extend([issued] * h)
            if j == 0: do("mid")
            q.extend([issued] * (per - h)); issued += 1
        do(False)
        w = after(b); assert w <= 63
        if which == 3 and b == 0: w = 63
        steps.append((k, w, b if acts else None, tuple(sorted(was.items())), issued < NS))
    def em(l):
        for x in l:
            a.e(x)
            if x == "s_barrier" and os.environ.get("JIT"): mstamp(a)
    F1, F2 = sum(fire[:h], []), sum(fire[h:], [])
    lprep = prep
    if len(prep) > 8:
        nm = f"PREP_{issue.__name__}_{which}"; SUBS[nm] = ((lambda a_, w_, l=prep: [a_.e(x) for x in l]), which)
        prep = [f"s_call_b64 s[76:77], {nm}"]
    if lo == 0 and npre < NS and not armed: em(prep + arm)
    i = lo; HI = NS if hi is None else hi
    while i < HI:
        j = i
        while j < HI and steps[j] == steps[i]: j += 1
        k, w, ab, was, more = steps[i]; n = j - i; was = dict(was)
        def run(pos):
            for n_, act in enumerate(plan.get(ab, [])):
                if act[0] != pos: continue
                if n_ in was: a.e(f"s_waitcnt vmcnt({was[n_]})")
                act[2]()
        tail = [f"s_waitcnt vmcnt({w})", "s_barrier"]
        if n > 2 and k == 1:
            em(F1); a.e("s_mov_b32 s43, 1"); L = a.lab("ld"); a.e(f"{L}:")
            em(lprep + F2 + arm + tail + F1)
            a.e("s_add_u32 s43, s43, 1"); a.e(f"s_cmp_lt_u32 s43, {n}"); a.e(f"s_cbranch_scc1 {L}")
            em(prep + F2 + arm + tail)
        else:
            for r in range(n):
                run(True)
                for jj in range(k):
                    nxt = more or jj < k - 1
                    em(F1)
                    if jj == 0: run("mid")
                    em((prep if nxt else []) + F2 + (arm if nxt else []))
                run(False)
                em(tail)
        i = j
    if hi is not None: return
    if which == 4:
        if issue is a_issue: a.e("s_cmp_eq_u32 s60, 1"); a.e("s_cbranch_scc1 K_fin")
        elif hold is HOLD: a.e("s_branch K_fin"); return
        if not RPL: r_pre(a)
    TF = os.environ.get("TF", "1") == "1" and issue is a_issue and which == 3
    if last and not TF: last()
    late = os.environ.get("TLATE", "0") == "1"
    if late: a.e("s_barrier")
    if issue is a_issue and W4POS == f"{which}C":
        X = a.lab("tw4"); a.e("s_cmp_lg_u32 s60, 0"); a.e(f"s_cbranch_scc1 {X}"); touch(a, B_W4, 7 * MB, 20); a.e(f"{X}:")
    if not late: a.e("s_barrier")
    if TF: last()

RK = int(os.environ.get("RK", "7")); assert RK == 0 or C0PUB <= RK <= STQ
PA2 = int(os.environ.get("PA2", "1")); PBB = int(os.environ.get("PBB", "2")); PC0 = int(os.environ.get("PC0", "4"))
HOLD = eval(os.environ.get("HOLD", "[2,3,4]"))
def a_loader(a, which):
    c = CFG[which]
    if which <= 2:
        plan = side_jobs(a, 1) if which == 1 else {}
        if which == 1 and "1" in DP: mstamp(a); a.e(f"s_sleep {os.environ.get('SJD', '30')}")
        else: mstamp(a); a.e("s_barrier")
        mstamp(a)
        for b in sorted(plan):
            for act in (plan[b] if isinstance(plan[b], list) else [plan[b]]):
                if act[1] is not None: a.e("s_waitcnt vmcnt(0)")
                act[2]()
        if which == 1:
            a.e("s_cmp_lg_u32 s30, 4"); a.e("s_cbranch_scc1 AL_nw"); a.e("s_cmp_eq_u32 s60, 0"); a.e("s_cbranch_scc1 AL_nw")
            a.e(f"s_add_u32 s54, s55, {(fso(ST_G3) - LSTR) & 0xffffffff:#x}"); a.e("s_add_u32 s53, s54, s92"); a.e("v_mov_b32 v9, s53")
            a.e("s_add_u32 s53, s53, 128"); a.e("v_writelane_b32 v9, s53, 1")
            a.e("s_add_u32 s53, s54, s93"); a.e("v_writelane_b32 v9, s53, 2"); a.e("s_add_u32 s53, s53, 128"); a.e("v_writelane_b32 v9, s53, 3")
            poll_core(a, 8, [9], 15, cnt=8)
            a.e("AL_nw:")
        if which == 2 and W33 > 1: call(a, third_late)
        if which == 2: a.e("s_waitcnt vmcnt(0)")
        a.e("s_barrier")
        if which == 1 and "p" not in os.environ.get("FO", "1pd"): late_park(a)
        call(a, after_g1 if which == 1 else after_g2)
        return
    a.e("s_and_b32 s35, s30, 1")
    if which == 2:
        hs_srd(a, 12)
        a.e("s_lshl_b32 s38, s28, 11"); a.e("s_add_u32 s38, s38, 16384"); a.e(f"s_mul_i32 s36, s35, {4*PITCH}"); a.e("s_add_u32 s38, s38, s36")
    else:
        lsrd(a, 12, c["A"], XSZ if which != 4 else H2SZ)
        a.e(f"s_mul_i32 s38, s35, {4*c['KBT']*2048}")
        if which == 4: a.e(f"s_mul_i32 s36, s31, {7*16384}"); a.e("s_add_u32 s38, s38, s36")
    a.e("s_lshl_b32 s41, s35, 13"); a.e("s_mov_b32 s42, 0"); rot_init(a, which)
    assert c["NA"] == 3 or which == 3
    prep, arm, fire = a_parts(which)
    if which == 4:
        flag_addr(a, 9, ST_G3A); flag_addr(a, 10, ST_G3B); flag_addr(a, 12, ST_G3)
        a.e("v_mov_b32 v13, 1"); a.e("s_and_b32 s51, s30, 1"); a.e("s_lshl_b32 s51, s51, 30")
        def signal(r): a.e("s_mov_b64 exec, 1"); a.e(f"buffer_atomic_add v13, v{r}, s[56:59], s51 offen {SC}"); a.e("s_mov_b64 exec, -1")
        a.e("s_lshl_b32 s54, s60, 2"); a.e("s_add_u32 s54, s54, 4"); lds_spin(a, LW + 64, "s54", 14, nap=2)
        signal(9)
        if not PA2: poll_core(a, 8, [9], 1, cnt=8)
        mstamp(a)
        plan = {6 - L4: ("mid", None, lambda: flag_try(a, 11, 10), 1, "f"), 8 - L4: ("mid", "f", lambda: flag_check(a, 11, 10, 8), 0, None),
                13 - L4: ("mid", None, lambda: flag_try(a, 11, 12), 1, "g"), 15 - L4: ("mid", "g", lambda: flag_check(a, 11, 12, 8), 0, None)}
        plan = {k_: [x] for k_, x in plan.items()}
        if PA2:
            plan[1] = [(False, None, lambda: flag_try(a, 8, 9), 1, "a")]
            plan[2] = [(True, "a", lambda: flag_check(a, 8, 9, 8), 0, None)]
        if DP:
            a.e("v_xor_b32 v15, 128, v12")
            plan[20] = [("mid", None, lambda: flag_try(a, 11, 15), 1, "h")]; plan[22] = [("mid", "h", lambda: flag_check(a, 11, 15, 8), 0, None)]
        if int(os.environ.get("OT", "0")) >= 3:
            def ot():
                a.e(f"s_load_dwordx2 s[20:21], s[0:1], {D_OUT}"); a.e(f"s_mul_i32 s22, s60, {4*MB}"); a.e("s_mov_b32 s23, 0x20000"); a.e("s_lshl_b32 s36, s28, 18"); a.e("s_lshl_b32 s37, s29, 11")
                a.e("s_add_u32 s36, s36, s37"); a.e("s_waitcnt lgkmcnt(0)")
                a.e("s_mov_b64 exec, 1"); a.e(f"buffer_load_dword v16, v2, s[20:23], s36 offen {SC}"); a.e("s_mov_b64 exec, -1")
            plan.setdefault(int(os.environ["OT"]) % 100, []).append((False, None, ot, 1, "o"))
        plan.setdefault(PBB + 1, []).insert(0, (True, None, lambda: signal(10), 1, "s"))
        plan.setdefault(PC0 + 2, []).insert(0, (True, None, lambda: signal(12), 1, "s"))
        a.e("s_mov_b32 s44, 3")
        ld_steps(a, which, 3, 8, a_issue, 3, plan=plan); return
    if which == 3:
        mask, cnt = flag_addr(a, 9, ST_G2)
        def wait2():
            if W33: call(a, third_put)
            elif B0E > 1: a.e(f"s_sleep {B0E}")
            poll_core(a, 8, [9], mask, cnt=cnt); mstamp(a); mstamp(a)
            if W3H: a.e("s_add_u32 s54, s60, 1"); lds_set(a, LW + 60, "s54", 10)
        N3 = 2 if "3" in DP else 1
        a.e(f"s_mov_b32 s44, {N3}"); a.e(f"s_mov_b32 s42, {16384*N3}")
        plan = side_jobs(a, 3)
        if os.environ.get("P30", "0") == "1":
            def wait0(): own_wait(a, ST_G2, False, 14); wait2()
            plan[0] = (True, None, wait0, 0, None)
            ld_steps(a, which, 3, 8, a_issue, 1, plan=plan, sched=[int(os.environ.get("P3N", "1")), 2 - int(os.environ.get("P3N", "1"))] + [1] * 13 + [0]); return
        plan[1] = (True, None, wait2, 0, None)
        PZ3 = int(os.environ.get("PZ3", "0"))
        if PZ3:
            a.srd(84, 4, 32 * MB, off=216 * MB)
            a.e("s_cmp_eq_u32 s60, 0"); a.e("s_cselect_b32 s86, s86, 0")
            for i in range(4): a.e(f"v_mov_b32 v{216+i}, -1")
            a.e("s_lshl_b32 s88, s2, 1"); a.e("s_and_b32 s50, s30, 1"); a.e("s_add_u32 s88, s88, s50"); a.e(f"s_mul_i32 s88, s88, {PZ3*12*1024}")
            def pz():
                for i in range(PZ3): a.e(f"buffer_store_dwordx4 v[216:219], v2, s[84:87], s88 offen offset:{i*1024} {SC}")
                a.e(f"s_add_u32 s88, s88, {PZ3*1024}")
            for b in range(2, 14):
                p_ = plan.get(b, []); p_ = p_ if isinstance(p_, list) else [p_]
                plan[b] = p_ + [(False, None, pz, PZ3, "z")]
        if V3:
            def w1_():
                X = a.lab("w1"); a.e("s_cmp_lg_u32 s60, 0"); a.e(f"s_cbranch_scc1 {X}"); a.e(f"s_sleep {B0E}"); poll_core(a, 8, [9], mask, cnt=cnt); a.e(f"{X}:")
                if int(os.environ.get("V3D", "0")): a.e("s_sleep " + os.environ["V3D"])
                mstamp(a); mstamp(a)
            def test(a):
                L = a.lab("sp"); D = a.lab("sq")
                a.e("s_add_u32 s47, s47, s41"); a.e("v_add_u32 v10, s47, v2"); a.e("s_mov_b32 s53, 0"); a.e("s_mov_b32 s34, m0")
                a.e(f"{L}:")
                for i in range(8): a.e(f"ds_read_b32 v{16+i}, v10 offset:{1024*i}")
                a.e("s_waitcnt lgkmcnt(0)")
                a.e("v_or3_b32 v16, v16, v17, v18"); a.e("v_or3_b32 v19, v19, v20, v21"); a.e("v_or3_b32 v16, v16, v22, v23"); a.e("v_bitop3_b32 v16, v16, v19, 1 bitop3:0xa8")
                a.e("v_cmp_ne_u32 vcc, 0, v16"); a.e(f"s_cbranch_vccz {D}")
                a.e(f"v_readlane_b32 s36, v{TV}, s46"); a.e("s_mov_b32 m0, s47"); a.e("s_add_u32 s36, s36, s38")
                for i in range(4):
                    if i: a.e("s_add_u32 m0, m0, 2048"); a.e("s_add_u32 s36, s36, 65536")
                    for k in range(2): a.e(f"buffer_load_dwordx4 v2, s[12:15], s36 offen offset:{1024*k} {SC} lds")
                a.e("s_waitcnt vmcnt(0)")
                a.e("s_add_u32 s53, s53, 1"); a.e("s_cmp_lt_u32 s53, s61"); a.e(f"s_cbranch_scc1 {L}"); a.e("s_mov_b32 s61, 0")
                a.e(f"{D}:"); a.e("s_mov_b32 m0, s34")
            def tst(b):
                def f():
                    X = a.lab("nt"); a.e("s_cmp_eq_u32 s60, 0"); a.e(f"s_cbranch_scc1 {X}")
                    a.e(f"s_mov_b32 s46, {b}"); a.e(f"s_mov_b32 s47, {(b % 3) * 16384}"); a.e("s_setprio 2"); call(a, test); a.e("s_setprio 0"); a.e(f"{X}:")
                return f
            plan = {k_: (x if isinstance(x, list) else [x]) for k_, x in plan.items()}
            plan[1] = [(True, None, w1_, 0, None)]
            plan.setdefault(V3 - 1, []).append((False, None, lambda: flag_try(a, 8, 9), 1, "g"))
            plan.setdefault(V3, []).insert(0, (True, "g", lambda: flag_check(a, 8, 9, cnt), 0, None))
            for b in range(1, V3 + 1): plan.setdefault(b, []).append((False, b, tst(b), 0, None))
        if os.environ.get("A3L", "0") == "1":
            def w1_():
                X = a.lab("w1"); a.e("s_cmp_lg_u32 s60, 0"); a.e(f"s_cbranch_scc1 {X}"); poll_core(a, 8, [9], mask, cnt=cnt); lds_set(a, LW + 60, 1, 10); a.e(f"{X}:")
            def w2_(): poll_core(a, 8, [9], mask, cnt=cnt, nap=2); mstamp(a); mstamp(a)
            plan[1] = (True, None, w1_, 0, None)
            p2 = plan[2] if isinstance(plan[2], list) else [plan[2]]
            plan[2] = [(True, None, w2_, 0, None)] + p2
            ld_steps(a, which, 3, 8, a_issue, N3, plan=plan, hold=(1,)); return
        ld_steps(a, which, c["NA"], 8, a_issue, N3, plan=plan, sched=eval(os.environ.get("A3S", "None")), last=lambda: r_pre1(a)); return
    assert 0

def side_jobs(a, which):
    c = CFG[which]; plan = {}
    sv = 16; S, Q, mean, rs, tt, ad, fa, fr = 216, 217, 218, 219, 220, 221, 222, 223
    cv = 180 if which == 3 else 24; N = c["LDW"] // 2; co_ = 224; HB = c["TN16"] * 32
    lg = 3 if which == 1 else 5
    def cld(k0=0, k1=4):
        if k0 == 0:
            a.srd(24, 4, 32 * N * 4, off=CSP[which])
            a.e("s_cmp_eq_u32 s60, 0"); a.e("s_cselect_b32 s26, s26, 0")
            if NOCS3 and which == 3: a.e("s_mov_b32 s26, 0")
            a.e("s_and_b32 s36, s30, 1"); a.e(f"s_mul_i32 s36, s36, {HB}"); a.e(f"s_mul_i32 s37, s29, {2*HB}"); a.e("s_add_u32 s37, s36, s37")
            a.e(f"v_lshrrev_b32 v{co_}, {lg}, v1"); a.e(f"v_mul_u32_u24 v{co_}, {N*4}, v{co_}")
            a.e(f"v_and_b32 v{cv-1}, {16*((1 << lg) - 1)}, v2"); a.e(f"v_add_u32 v{co_}, v{co_}, v{cv-1}")
        a.e("s_cmp_eq_u32 s60, 0"); a.e("s_cselect_b64 exec, -1, 0")
        for k in range(k0, k1):
            a.e(f"buffer_load_dwordx4 {vr(cv+4*(k if k < 9 else k - 8),4)}, v{co_}, s[24:27], s37 offen {SC}"); a.e(f"s_add_u32 s37, s37, {N*4*(64 >> lg)}")
        a.e("s_mov_b64 exec, -1")
    def piece(lines, l0=False):
        def f():
            X = a.lab("pc")
            if l0: a.e("s_cmp_lg_u32 s60, 0"); a.e(f"s_cbranch_scc1 {X}")
            for x in lines: a.e(x)
            if l0: a.e(f"{X}:")
        return f
    def cadd(k0, k1): return [f"v_add_f32 v{cv+h}, v{cv+h}, v{cv+4*k+h}" for k in range(k0, k1) for h in range(4)]
    def sw(op): return [f"v_mov_b32 v{cv+4+e}, v{cv+e}" for e in range(4)] + [f"{op} v{cv+e}, v{cv+4+e}" for e in range(4)] + cadd(1, 2)
    if which in (1, 3):
        cout = ["s_and_b32 s36, s30, 1", f"s_mul_i32 s36, s36, {HB}", f"s_add_u32 s36, s36, {CSO[which]}", f"v_add_u32 v{cv-1}, s36, v2",
                f"s_bfm_b64 exec, {HB//16}, 0", f"ds_write_b128 v{cv-1}, {vr(cv,4)}", "s_mov_b64 exec, -1", "s_waitcnt lgkmcnt(0)"]
    if which == 1:
        flag_addr(a, fa, ST_R2)
        def ld():
            flag_check(a, fr, fa, 16)
            lsrd(a, 20, oLNS, 2048); a.e("s_and_b32 s35, s30, 1"); a.e("s_lshl_b32 s35, s35, 10")
            a.e(f"buffer_load_dwordx4 {vr(sv,4)}, v2, s[20:23], s35 offen {SC}")
        fin = piece(["s_and_b32 s36, s30, 1", "s_lshl_b32 s36, s36, 10", f"s_add_u32 s36, s36, {LNSL}", f"v_add_u32 v{ad}, s36, v2", f"ds_write_b128 v{ad}, {vr(sv,4)}", "s_waitcnt lgkmcnt(0)"])
        a.e("s_lshl_b32 s53, s29, 7"); a.e(f"s_add_u32 s53, s53, {F_CS}"); a.e(f"v_mov_b32 v{fa+4}, s53")
        def cld1(): flag_check(a, fr + 4, fa + 4, 16); cld()
        work = cadd(1, 4) + [f"v_add_f32_dpp v{cv+e}, v{cv+e}, v{cv+e} row_ror:8 row_mask:0xf bank_mask:0xf" for e in range(4)] + \
               sw("v_permlane16_swap_b32") + sw("v_permlane32_swap_b32")
        plan = {2: (False, None, lambda: flag_try(a, fr + 4, fa + 4), 1, "e"), 5: [(False, "e", cld1, 4, "c"), (False, None, lambda: flag_try(a, fr, fa), 1, "f")],
                8: (False, "f", ld, 1, "d"), 15: [(False, None, piece(cout, 1), 0, None), (False, "d", fin, 0, None)]}
        plan[9] = (False, None, piece(work, 1), 0, None)
    if which == 3:
        flag_addr(a, fa, ST_G2S)
        a.e(f"v_lshlrev_b32 v{ad}, 3, v1")
        def ld(k0, n_=8):
            def f():
                if k0 == 0:
                    flag_check(a, fr, fa, 16)
                    lsrd(a, 20, oST2, 24576)
                    a.e("s_and_b32 s35, s30, 1"); a.e("s_lshl_b32 s35, s35, 9")
                for k in range(k0, k0 + n_):
                    if k % 4 == 0 or k == k0: a.e(f"s_add_u32 s36, s35, {(k >> 3) * 16384 + (k & 4) * 1024}")
                    a.e(f"buffer_load_dwordx2 {vr(sv+2*k,2)}, v{ad}, s[20:23], s36 offen offset:{(k&3)*1024} {SC}")
            return f
        b = Rec()
        for st_ in (8, 4, 2, 1):
            for k in range(2 * st_): b.e(f"v_add_f32 v{sv+k}, v{sv+k}, v{sv+2*st_+k}")
        o_ = sv + 4
        b.e(f"v_mul_f32 v{o_}, {f32(1/1024)}, v{sv}"); b.e(f"v_mul_f32 v{Q}, {f32(1/1024)}, v{sv+1}")
        b.e(f"v_fma_f32 v{Q}, -v{o_}, v{o_}, v{Q}"); b.e(f"v_max_f32 v{Q}, 0, v{Q}")
        ln_finish(b, o_, Q, rs, o_ + 1)
        b.e(f"v_mul_f32 v{o_+2}, {f32(GC1)}, v{rs}"); b.e(f"v_mul_f32 v{o_+3}, v{rs}, v{rs}")
        b.e(f"v_mul_f32 v{o_+3}, v{o_+3}, v{o_+2}"); b.e(f"v_mul_f32 v{o_+3}, {f32(0.044715)}, v{o_+3}")
        b.e("s_lshl_b32 s35, s35, 1"); b.e(f"s_add_u32 s35, s35, {LNSL}"); b.e(f"v_add_u32 v{tt}, s35, v2")
        b.e(f"ds_write_b128 v{tt}, {vr(o_,4)}"); b.e("s_waitcnt lgkmcnt(0)")
        def both(f, g):
            def h(): f(); g()
            return h
        if os.environ.get("SJ3", "1") == "1":
            plan = {2: (False, None, lambda: cld(0, 3), 3, "c"), 3: (False, None, lambda: cld(3, 6), 3, "c"), 4: [(False, None, lambda: cld(6, 9), 3, "c"), (False, None, lambda: flag_try(a, fr, fa), 1, "f")],
                    6: [(False, "f", ld(0, 4), 4, "d"), (False, None, piece(cadd(1, 5), 1), 0, None)],
                    7: [(False, None, ld(4, 4), 4, "d"), (False, None, both(piece(cadd(5, 9), 1), lambda: cld(9, 12)), 3, "e")],
                    8: [(False, None, ld(8, 4), 4, "d"), (False, None, lambda: cld(12, 14), 2, "e")], 9: [(False, None, ld(12, 4), 4, "d"), (False, None, lambda: cld(14, 16), 2, "e")],
                    11: [(False, "e", piece(b.l[:16]), 0, None)], 12: [(False, None, piece(b.l[16:32]), 0, None), (False, None, piece(cadd(1, 4), 1), 0, None)],
                    13: [(False, None, piece(b.l[32:]), 0, None)], 14: (False, None, piece(cadd(4, 8), 1), 0, None), 15: (False, None, piece(sw("v_permlane32_swap_b32") + cout, 1), 0, None)}
        else:
            plan = {2: (False, None, cld, 4, "c"), 3: (False, None, lambda: cld(4, 9), 5, "c"),
                    5: [(False, "c", piece(cadd(1, 5), 1), 0, None), (False, None, lambda: flag_try(a, fr, fa), 1, "f")],
                    6: (False, None, both(piece(cadd(5, 9), 1), lambda: cld(9, 16)), 7, "e"),
                    7: (False, "f", ld(0), 8, "d"), 8: (False, None, ld(8), 8, "d"),
                    9: (False, "e", piece(cadd(1, 5), 1), 0, None), 10: (False, None, piece(cadd(5, 8), 1), 0, None), 11: (False, None, piece(sw("v_permlane32_swap_b32") + cout, 1), 0, None),
                    12: (False, "d", piece(b.l[:16]), 0, None), 13: (False, None, piece(b.l[16:32]), 0, None), 14: (False, None, piece(b.l[32:]), 0, None)}
    return plan

W2E = int(os.environ.get("W2E", "3"))
def w2_early(a):
    if W2E: w_setup(a, 2, pre=False); w1_slots(a, range(W2E), pace=8)
def w_loader(a, which):
    c = CFG[which]
    if which < 3:
        if which == 1: a.e("s_waitcnt vmcnt(0)")
        if which == 1 and "a" in STO: stouch(a, 3, 128 if "8" in STO else 64, 2); mstamp(a)
        if which == 1 and sum(SG): sb_init(a)
        sg(a, SG[2*which-2])
        if not (which == 1 and "1" in DP): a.e("s_barrier")
        sg(a, SG[2*which-1])
        if which == 1 and "b" in STO: stouch(a, 3, 128 if "8" in STO else 64, 2); mstamp(a)
        if which == 2 and W33 > 1: call(a, third_late)
        if which == 2: a.e("s_waitcnt vmcnt(0)")
        a.e("s_barrier")
        if which == 1 and "p" not in os.environ.get("FO2", "1pd"): late_park(a)
        call(a, after_g1 if which == 1 else after_g2); mstamp(a)
        return
    args = (a, which, c["NW"], c["STB"] // 2048, w_issue, c["NPRE"], c["WR"])
    if which == 4:
        assert c["NW"] == 6 and c["WB"] == CFG[1]["WB"] + 3 * 8192
        a.e("s_cmp_eq_u32 s60, 1"); a.e("s_cbranch_scc1 WL_t1")
        ld_steps(*args, hi=24)
        WT = eval(os.environ.get("WT", "[(11,12,15,9),(13,14,10),(3,4),(5,6,0),(7,8,1,2),()]"))
        WD = eval(os.environ.get("WD", "()"))
        def some(js):
            def f():
                if js is WT[0]:
                    w_setup(a, 1, pre=False)
                    a.e("s_and_b32 s36, s99, 7"); a.e("s_cmp_eq_u32 s36, 3"); a.e("s_cselect_b64 s[50:51], 0, -1")
                for j in js:
                    if j in (9, 10) and js is not WT[5]:
                        a.e(f"s_add_u32 s39, s38, {j*64*2048}")
                        for i in range(4): a.e(f"buffer_load_dwordx4 {vr(16+16*(j-9)+4*i,4)}, v{WVB[1]}, s[12:15], s39 offen"); a.e("s_add_u32 s39, s39, 16384")
                    else:
                        if j in WD: a.e("s_mov_b64 exec, s[50:51]")
                        w1_slots(a, (j,), pace=8 if js is WT[5] else 0)
                        if j in WD: a.e("s_mov_b64 exec, -1")
            return f
        plan = {24 + i: (False, None, some(WT[i]), 4 * len(WT[i]), "w") for i in range(4) if WT[i]}
        ld_steps(*args, plan=plan, lo=24, last=some(WT[4]))
        rg = [j for j in (9, 10) if j not in WT[5]]
        if WD:
            a.e("s_cmp_lg_u32 s50, 0"); a.e("s_cbranch_scc1 WL_nd"); w1_slots(a, WD); a.e("WL_nd:")
        if rg:
            yg = [j for l in WT[:5] for j in l]; yg = len(yg) - 1 - max(yg.index(9), yg.index(10))
            a.e(f"s_add_u32 s36, s41, {9*8192}"); a.e("v_add_u32 v6, s36, v2"); a.e(f"s_waitcnt vmcnt({4*yg if os.environ.get('YG', '1') == '1' else 0})")
            for j in rg:
                for i in range(4): a.e(f"ds_write_b128 v6, {vr(16+16*(j-9)+4*i,4)} offset:{(j-9)*8192+i*1024}")
            a.e("s_waitcnt lgkmcnt(0)")
        some(WT[5])(); mstamp(a)
        a.e("s_branch NEXT")
        a.e("WL_t1:")
        ld_steps(*args, hold=HOLD)
        return
    plan = {}
    if "3" in DP:
        lsrd(a, 20, oX1P, XSZ)
        a.e(f"v_readlane_b32 s36, v{TV+3}, 1"); a.e("s_and_b32 s35, s30, 1"); a.e("s_lshl_b32 s46, s35, 18"); a.e("s_lshl_b32 s47, s35, 13"); a.e("s_add_u32 s47, s47, 16384")
        a.e("s_bfe_u32 s37, s36, 0x20002"); a.e("s_lshl_b32 s37, s37, 14"); a.e("s_and_b32 s36, s36, 3"); a.e("s_lshl_b32 s36, s36, 11"); a.e("s_add_u32 s46, s46, s36"); a.e("s_add_u32 s46, s46, s37")
        a.e("v_add_u32 v8, s47, v2")
        if W3E: w_issue(a, 3); args = args[:5] + (3,) + args[6:]
        def second():
            L = a.lab("sp"); D = a.lab("sq")
            a.e("s_mov_b32 s34, m0"); a.e("s_cmp_lg_u32 s60, 0"); a.e(f"s_cbranch_scc1 {L}a")
            lds_spin(a, LW + 60, 1, 6, nap=1)
            a.e(f"{L}a:"); a.e("s_mov_b32 s53, 0")
            if int(os.environ.get("S3D", "0")): a.e("s_sleep " + os.environ["S3D"])
            a.e(f"{L}:"); a.e("s_mov_b32 m0, s47"); a.e("s_mov_b32 s36, s46")
            for i in range(4):
                if i: a.e("s_add_u32 m0, m0, 2048"); a.e("s_add_u32 s36, s36, 65536")
                for k in range(2): a.e(f"buffer_load_dwordx4 v2, s[20:23], s36 offen offset:{1024*k} {SC} lds")
            a.e("s_waitcnt vmcnt(0)")
            for i in range(8): a.e(f"ds_read_b32 v{10+i}, v8 offset:{1024*i}")
            a.e("s_waitcnt lgkmcnt(0)")
            a.e("v_or3_b32 v10, v10, v11, v12"); a.e("v_or3_b32 v13, v13, v14, v15"); a.e("v_or3_b32 v10, v10, v16, v17"); a.e("v_bitop3_b32 v10, v10, v13, s60 bitop3:0xa8")
            a.e("v_cmp_ne_u32 vcc, 0, v10"); a.e(f"s_cbranch_vccz {D}"); a.e("s_sleep 1")
            a.e("s_add_u32 s53, s53, 1"); a.e("s_cmp_lt_u32 s53, s61"); a.e(f"s_cbranch_scc1 {L}"); a.e("s_mov_b32 s61, 0")
            a.e(f"{D}:"); a.e("s_mov_b32 m0, s34")
        plan[1] = (True, None, second, 8, "x")
    elif W33:
        plan[1] = (True, None, lambda: call(a, third_put), 0, None); args = args[:5] + (3,) + args[6:]
    elif W3H: plan[1] = (True, None, lambda: (a.e("s_add_u32 s54, s60, 1"), lds_spin(a, LW + 60, "s54", 6, nap=1)), 0, None)
    def sg3(n):
        def f():
            X = a.lab("st"); a.e("s_cmp_lg_u32 s60, 0"); a.e(f"s_cbranch_scc1 {X}"); sb(a, n); a.e(f"{X}:")
        return f
    for b_, n_ in eval(os.environ.get("SG3", "{}")).items(): plan[b_] = (False, None, sg3(n_), 0, None)
    RPW = int(os.environ.get("RPW", "15"))
    if RPW < 16: plan[RPW] = (False, None, lambda: call(a, r_pre0), 4, "r")
    ld_steps(*args, plan=plan, last=(lambda: r_pre1(a)) if RPW == 16 else None)
W3H = int(os.environ.get("W3H", "0")) or "3" in DP; W3E = int(os.environ.get("W3E", "1"))
W1L = int(os.environ.get("W1L", "3"))

B0E = int(os.environ.get("B0E", "6")); RPL = int(os.environ.get("RPL", "1")); RPC = int(os.environ.get("RPC", "1"))
LF1 = os.environ.get("LF1", "sc1"); LF2 = os.environ.get("LF2", "")
RES2 = 148; C2R = 200; SO3 = 238; RES4 = [172, 176, 180, 184, 188, 192, 196, 240]
def g_compute(a, which):
    c = CFG[which]
    WM, WN, MT, NT, KBT, NS, NA, NW, TN16, STB, WB = [c[k] for k in "WM WN MT NT KBT NS NA NW TN16 STB WB".split()]
    v = VA(6); nm = f"G{which}"
    lane = 1; l16 = 2
    t = v(); t2 = v(); pt = v(4, 2)
    NTILE = (0, 99, 29, 29, 33)[which]
    a_ = a
    if which != 3: a = Rec()
    if WN == 2: a.e("s_lshr_b32 s34, s30, 1"); a.e("s_and_b32 s35, s30, 1")
    else: a.e("s_mov_b32 s34, s30"); a.e("s_mov_b32 s35, 0")
    a0 = v(); w0 = v(4, 1); aa = v(); wa = v(4, 1); J = v(); G = v()
    a.e(f"v_and_b32 v{J}, 15, v{lane}"); a.e(f"v_lshrrev_b32 v{G}, 4, v{lane}")
    a.e(f"s_mul_i32 s37, s34, {MT}")
    a.e(f"s_mul_i32 s38, s{NTILE}, {TN16}"); a.e(f"s_mul_i32 s36, s35, {NT}"); a.e("s_add_u32 s38, s38, s36")
    acc = v(MT * NT * 4, 4); NF = MT + NT if which > 2 else 8
    fX = v(NF * 4, 4); fY = v(NF * 4, 4); tmp = v(); tp = v(4, 2)
    def A_(mt, nt): return acc + 4 * (mt * NT + nt)
    def SUBM(r): return f"{vr(r,2)} op_sel_hi:[1,0] neg_lo:[0,1] neg_hi:[0,1]"
    def MULR(r): return f"{vr(r,2)} op_sel:[0,1] op_sel_hi:[1,1]"
    if which in (2, 4):
        res = RES2
        a.e("s_lshr_b32 s36, s38, 1"); spread(a, 39, 36); a.e("s_lshl_b32 s36, s37, 16"); a.e("s_add_u32 s39, s39, s36")
    if which <= 2:
        AB = 164; LO = v(8, 1)
        def aload(b, kk):
            if which == 1: return [f"buffer_load_dwordx4 {vr(AB+16*b+8*kk+4*mt,4)}, v{LO+mt+(b&2)}, s[8:11], s44 offen offset:{(b&1)*2048+kk*1024} {LF1}" for mt in range(2)]
            return [f"buffer_load_dwordx4 {vr(AB+16*b+8*kk+4*mt,4)}, v{LO+mt}, s[8:11], s44 offen {LF2}" for mt in range(2)]
        def seq(pairs, s0):
            if which == 1: return [x for b, kk in pairs for x in aload(b, kk)]
            return ([f"s_mov_b32 s44, {s0}"] if s0 is not None else []) + [x for b, kk in pairs for x in aload(b, kk) + ["s_add_u32 s44, s44, 16384"]]
        def past(l): return [x + (SC if x.startswith("buffer") and SC not in x else "") for x in l]
        PR = [(i >> 1, i & 1) for i in range(7)]
        h = Rec()
        if which == 1:
            lsrd(h, 8, oX3, XSZ); OOB = MB
            for i in range(4): (h if i < 2 else a).e(f"v_add_u32 v{LO+i}, {(i & 1) * 65536 + (i >> 1) * 4096}, v{l16}")
            h.e("s_lshl_b32 s44, s30, 17")
            for i in range(1, 4): a.e(f"s_add_u32 s{44+i}, s44, {16384*i}")
        else:
            OOB = 0x40000000; LP = v(2, 1)
            h.srd(8, 4, 8 * GSTR + LSTR, off=LB0 + oHS)
            h.e(f"s_sub_u32 s47, s55, {LB0 + oSM}"); h.e("s_lshl_b32 s46, s30, 9"); h.e("s_add_u32 s47, s47, s46")
            h.e("s_add_u32 s45, s92, 2048"); h.e("s_cmp_eq_u32 s28, 0"); h.e(f"s_cselect_b32 s45, {OOB}, s45"); h.e("s_cmp_eq_u32 s30, 0"); h.e("s_cselect_b32 s45, s45, 0")
            a.e("s_sub_u32 s46, s93, 2048"); a.e("s_cmp_eq_u32 s28, 15"); a.e(f"s_cselect_b32 s46, {OOB}, s46"); a.e("s_cmp_eq_u32 s30, 3"); a.e("s_cselect_b32 s46, s46, 0")
            for q_, sh in enumerate((1, -1, 2, -2)):
                e_ = h if q_ == 0 else a
                e_.e(f"s_add_u32 s53, s47, {(-16 * sh) & 0xffffffff:#x}"); e_.e(f"v_add_u32 v{LO+2*q_}, s53, v{a0}"); e_.e(f"v_add_u32 v{LO+2*q_+1}, 256, v{LO+2*q_}")
                R_ = LO + 2 * q_ + (0 if sh > 0 else 1)
                e_.e(f"v_add_u32 v{LP}, s{45 if sh > 0 else 46}, v{R_}")
                e_.e(f"v_cmp_gt_u32 vcc, {sh}, v{J}" if sh > 0 else f"v_cmp_le_u32 vcc, {16 + sh}, v{J}"); e_.e(f"v_cndmask_b32 v{R_}, v{R_}, v{LP}, vcc")
            for k in range(2): a.e(f"v_mov_b32 v{LP+k}, v{LO+k}")
        EARLY = str(which) in DP and str(which) in os.environ.get("EP", "2")
        F0 = eval(os.environ.get("F0", "(0,4,4)"))[which]
        try0 = past(seq(PR[:2], 0)) + seq(PR[2:F0], None)
        for x in h.l: a_.e(x)
        if EARLY and which == 1:
            for x in try0: a_.e(x)
    else:
        a.e(f"s_mul_i32 s36, s34, {MT*2048}"); a.e(f"v_add_u32 v{a0}, s36, v{l16}")
    nwr, wpos = w_bases(a, which, w0, 35, NT, t, t2)
    if which <= 2:
        for x in a.l: a_.e(x)
    a = a_
    if which == 3 and not B0E: publish(a, ST_G2S, 4, pt, ctr=48)
    if which == 2:
        a.e(f"s_lshl_b32 s36, s37, 8"); a.e(f"s_add_u32 s36, s36, {LNSL}"); a.e(f"v_lshlrev_b32 v{t2}, 4, v{J}"); a.e(f"v_add_u32 v{t2}, s36, v{t2}")
        for mt in range(MT): a.e(f"ds_read_b64 {vr(fX+2*mt,2)}, v{t2} offset:{mt*256}")
        a.e("s_waitcnt vmcnt(4) lgkmcnt(0)")
        if EARLY:
            if int(os.environ.get("G2D", "6")): a.e("s_sleep " + os.environ.get("G2D", "6"))
            if int(os.environ.get("G2D0", "2")): a.e("s_cmp_lg_u32 s60, 0"); a.e("s_cbranch_scc1 G2_nd"); a.e("s_sleep " + os.environ.get("G2D0", "2")); a.e("G2_nd:")
            for x in try0: a.e(x)
        for mt in range(MT):
            for p in range(NT // 2):
                for e in range(4):
                    X = A_(mt, 2 * p) + 2 * e
                    unpack(a, X, X + 1, res + (mt * (NT // 2) + p) * 4 + e)
                    a.e(f"v_pk_add_f32 {vr(X,2)}, {vr(X,2)}, {SUBM(fX+2*mt)}"); round2(a, X, X + 1, tmp)
                    a.e(f"v_pk_mul_f32 {vr(X,2)}, {vr(X,2)}, {MULR(fX+2*mt)}"); round2(a, X, X + 1, tmp)
    elif which == 1:
        for i in range(0, MT * NT * 4, 2): a.e(f"v_pk_mov_b32 {vr(acc+i,2)}, 0, 0")
    RX = [180, 184, 188, 192, 196, 230, 234, 248]
    def last_res():
        b0 = Rec()
        for i in range(2):
            b0.e(f"s_add_u32 s36, s40, {i*65536}")
            for p in range(2):
                b0.e(f"buffer_load_dwordx4 {vr(RX[2*(2*i+p)],4)}, v{l16}, s[84:87], s36 offen offset:{p*1024} {SC}")
                b0.e(f"buffer_load_dwordx4 {vr(RX[2*(2*i+p)+1],4)}, v{l16}, s[88:91], s36 offen offset:{p*1024} {SC}")
        return b0.l
    def reads(F, kk):
        o = []
        for mt in range(MT): o.append(f"ds_read_b128 {vr(F+4*mt,4)}, v{aa} offset:{mt*256+kk*8192 if which == 2 else mt*2048+kk*1024}")
        for nt in range(NT):
            for h in range(2):
                r, imm = wpos(nt, kk, h)
                o.append(f"ds_read_b64_tr_b16 {vr(F+4*(MT+nt)+2*h,2)}, v{wa+r} offset:{imm}")
        NR = os.environ.get("NOREAD")
        if NR == "N": o = []
        if NR == "A": o = o[MT:]
        if NR == "W": o = o[:MT]
        if NR == "H": o = o[::2]
        if NR == "X": o = o + o[:2]
        if NR == "XX": o = o + o[:MT]
        return o
    def mix(rd, ex):
        rd = list(rd)
        for i, x in enumerate(ex): rd.insert(min(len(rd), (i + 1) * len(rd) // (len(ex) + 1)), x)
        return rd
    def mfmas(F, rd, tail=()):
        n = MT * NT; k = 0; tot = len(rd); span = max(1, n * 3 // 4); done = 0; tail = list(tail); per = -(-len(tail) // max(1, n - span))
        OR = os.environ.get("ORDER", "2")
        order = {"0": [(nt, mt) for nt in range(NT) for mt in range(MT)],
                 "1": [(nt, mt) for mt in range(MT) for nt in range(NT)],
                 "2": [(nt, mt if nt % 2 == 0 else MT - 1 - mt) for nt in range(NT) for mt in range(MT)],
                 "3": [(nt if mt % 2 == 0 else NT - 1 - nt, mt) for mt in range(MT) for nt in range(NT)]}[OR]
        for nt, mt in order:
            if True:
                cc = acc + 4 * (mt * NT + nt)
                if str(which) not in os.environ.get("NOMF", ""): a.e(f"v_mfma_f32_16x16x32_bf16 {vr(cc,4)}, {vr(F+4*(MT+nt),4)}, {vr(F+4*mt,4)}, {vr(cc,4)}")
                k += 1
                while rd and done < (tot * k + span - 1) // span: a.e(rd.pop(0)); done += 1
                if k >= span and k < n:
                    for _ in range(min(per, len(tail))): a.e(tail.pop(0))
        assert not rd and not tail
    so = SO3 if which == 3 else a0; cs = fX; lns = fX + 4 * NT; G4W = 240; EA = 244
    def ep_setup(b):
        if which in (1, 3):
            assert which == 1 or (fY <= C2R and C2R + 24 <= fY + 4 * NF)
            b.e(f"s_mul_i32 s36, s35, {NT*64}"); b.e(f"s_add_u32 s36, s36, {CSO[which]}"); b.e(f"v_lshlrev_b32 v{t}, 4, v{G}"); b.e(f"v_add_u32 v{t}, s36, v{t}")
            b.e(f"s_lshl_b32 s36, s37, 8"); b.e(f"s_add_u32 s36, s36, {LNSL + (8 if which == 1 else 0)}"); b.e(f"v_lshlrev_b32 v{t2}, 4, v{J}"); b.e(f"v_add_u32 v{t2}, s36, v{t2}")
        if which == 3:
            lsrd(b, 16, oH2, H2SZ)
            b.e(f"s_mul_i32 s39, s37, {224*1024}")
            for P in range(4):
                b.e("s_lshr_b32 s36, s38, 1"); b.e(f"s_add_u32 s36, s36, {P}"); spread(b, 44 + P, 36); b.e(f"s_add_u32 s{44+P}, s{44+P}, s39")
            w_bases(b, 4, G4W, 35, 4, tp, tp + 1)
            b.e("s_lshl_b32 s38, s33, 3"); b.e("s_lshl_b32 s36, s35, 2"); b.e("s_add_u32 s38, s38, s36")
            b.e("s_lshr_b32 s36, s38, 1"); spread(b, 39, 36); b.e("s_lshl_b32 s36, s37, 16"); b.e("s_add_u32 s39, s39, s36")
            b.e("s_lshl_b32 s40, s31, 17"); b.e("s_add_u32 s40, s40, s39")
            b.e("s_xor_b32 s41, s31, 1"); b.e("s_lshl_b32 s41, s41, 17"); b.e("s_add_u32 s41, s41, s39")
            lsrd(b, 84, oX3, XSZ); lsrd(b, 88, oX1P, XSZ)
            b.e("s_lshl_b32 s36, s37, 1"); b.e("s_add_u32 s36, s36, s35"); b.e("s_lshl_b32 s36, s36, 10"); b.e(f"v_add_u32 v{EA}, s36, v{l16}")
            b.e(f"v_mov_b32 v{EA+1}, 1"); b.e(f"v_mov_b32 v{EA+2}, {LW+64}")
            b.e(f"v_lshrrev_b32 v{so}, 1, v{G}"); b.e(f"v_lshlrev_b32 v{so}, 8, v{so}"); b.e(f"v_lshl_add_u32 v{so}, v{J}, 4, v{so}")
            b.e(f"v_and_b32 v{tmp}, 1, v{G}"); b.e(f"v_lshl_add_u32 v{so}, v{tmp}, 3, v{so}")
        if which == 1:
            lsrd(b, 16, oHS, XSZ)
            b.e(f"v_lshlrev_b32 v{so}, 11, v{G}"); b.e(f"v_lshl_add_u32 v{so}, v{J}, 4, v{so}")
            b.e("s_lshl_b32 s39, s38, 13"); b.e("s_lshl_b32 s36, s37, 8"); b.e("s_add_u32 s39, s39, s36"); b.e("s_add_u32 s40, s39, 16384")
            b.e("s_lshl_b32 s36, s29, 1"); spread(b, 41, 36); b.e("s_lshl_b32 s36, s37, 16"); b.e("s_add_u32 s41, s41, s36")
        if which == 2: lsrd(b, 16, oX1P, XSZ)
    def cost(x): return sum(8 if y.startswith("ds_") else 4 for y in x.split("\n"))
    def group(F, rd, r0, ex, fixed={}, zero=False):
        n = MT * NT; ex = [x if isinstance(x, tuple) else (x, -1) for x in ex]; done = 0
        order = [(nt, mt if nt % 2 == 0 else MT - 1 - mt) for nt in range(NT) for mt in range(MT)]
        need = sum(cost(x) for x, _ in ex) + 8 * len(rd) + sum(cost(x) for l in fixed.values() for x in l)
        cap = max(12, -(-need // (4 * n)) * 4)
        for k, (nt, mt) in enumerate(order):
            cc = A_(mt, nt)
            if str(which) not in os.environ.get("NOMF", ""): a.e(f"v_mfma_f32_16x16x32_bf16 {vr(cc,4)}, {vr(F+4*(MT+nt),4)}, {vr(F+4*mt,4)}, {0 if zero else vr(cc,4)}")
            b_ = cap - sum(cost(x) for x in fixed.get(k, [])); nv = 0
            if k >= r0 and done < len(rd): a.e(rd[done]); done += 1; b_ -= 8
            while ex and ex[0][1] < done and (cost(ex[0][0]) <= b_ or k == n - 1) and not (nv >= (1 if rd else 2) and ex[0][0].startswith("v_") and cap == 12 and k < n - 1):
                x = ex.pop(0)[0]; a.e(x); b_ -= cost(x); nv += x.startswith("v_")
            for x in fixed.get(k, []): a.e(x)
        assert done == len(rd) and not ex
    NR_ = MT + 2 * NT; BP = eval(os.environ.get("BP", "{3:3,4:2}")).get(which, 0)
    def stage(ex=(), ey=(), lim=NS-1, late=False, zero=False, pre=()):
        if str(which) in os.environ.get("GST", "") or os.environ.get("JIT"): mstamp(a, True)
        if which == 3: last = {0: NR_ - 1, 1: NR_ - 3}
        else: last = {i: MT + 2 * i + 1 for i in range(4)}
        book = ["s_add_u32 s42, s42, 16384", f"s_cmp_eq_u32 s42, {NA*16384}", "s_cselect_b32 s42, 0, s42",
                f"s_add_u32 s48, s48, {STB}", f"s_cmp_eq_u32 s48, {NW*STB}", "s_cselect_b32 s48, 0, s48", (f"v_add_u32 v{aa}, s42, v{a0}", MT - 1)]
        book += sorted([(f"v_add_u32 v{wa+i}, s48, v{w0+i}", last[i]) for i in range(nwr)], key=lambda x: x[1])
        n = MT * NT
        group(fX, reads(fY, 1), 0, book[:7] + list(ex) + book[7:], {3: [f"s_waitcnt lgkmcnt({min(15, NR_ - MT - 4 + 4)})"], 7: ["s_waitcnt lgkmcnt(8)"], n - 1: [f"s_waitcnt lgkmcnt({NR_ - MT - 2})"]}, zero)
        if late:
            b_ = Rec(); ep_setup(b_)
            group(fY, [], 0, ["s_add_u32 s43, s43, 1"] + b_.l, {min(BP, 3): ["s_waitcnt lgkmcnt(0)"]})
            if B0E: publish(a, ST_G2S, 4, pt, ctr=48)
            a.e("s_barrier")
            for x in reads(fX, 0): a.e(x)
            a.e(f"s_waitcnt lgkmcnt({NR_ - MT - 2})")
            return
        group(fY, reads(fX, 0), BP + 1, list(ey) + ["s_add_u32 s43, s43, 1", f"s_cmp_lt_u32 s43, {lim}"],
              {BP - 1: list(pre), BP: ["s_waitcnt lgkmcnt(0)", "s_barrier"], n - 1: [f"s_waitcnt lgkmcnt({NR_ - MT - 2})"]})
    w00 = c["S0"] * STB
    if which <= 2:
        def wrd(p, b): return [f"ds_read_b64_tr_b16 {vr((fX, fY)[p]+16*kk+4*nt+2*h,2)}, v{w0+nt} offset:{b*STB + wpos(nt, kk, h)[1]}" for kk in range(2) for nt in range(4) for h in range(2)]
        def dmf(b, fill, lo=0, hi=16):
            k = 0
            for kk in range(2):
                for nt in range(4):
                    for mt in ((0, 1) if nt % 2 == 0 else (1, 0)):
                        if lo <= k < hi:
                            a.e(f"v_mfma_f32_16x16x32_bf16 {vr(A_(mt,nt),4)}, {vr((fX, fY)[b&1]+16*kk+4*nt,4)}, {vr(AB+16*b+8*kk+4*mt,4)}, {vr(A_(mt,nt),4)}")
                            for x in fill[k]: a.e(x)
                        k += 1
        def spreadf(l, lo, hi):
            f = [[] for _ in range(16)]
            for i, x in enumerate(l): f[lo + i * (hi - lo) // len(l)].append(x)
            return f
        a.e("s_mov_b32 s43, 0"); ep_setup(a)
        CK = str(which) in DP; ck_ = aa
        def check(b):
            B = AB + 16 * b
            return [f"v_or3_b32 v{ck_}, v{B}, v{B+4}, v{B+8}", f"v_bitop3_b32 v{ck_}, v{ck_}, v{B+12}, 1 bitop3:0xa8", f"v_cmp_ne_u32 vcc, 0, v{ck_}"]
        L = a.lab("dm"); assert CK
        a.e("s_mov_b32 s53, 0"); a.e("s_mov_b32 s49, s44")
        if which == 2: a.e("s_barrier")
        for x in wrd(0, 0): a.e(x)
        if EARLY: a.e(f"s_branch {L}w")
        elif int(os.environ.get("G1D", "0")): a.e("s_sleep " + os.environ["G1D"])
        a.e(f"{L}p:")
        for x in try0: a.e(x)
        a.e(f"{L}w:")
        a.e(f"s_waitcnt vmcnt({2*F0 - 4})")
        for x in check(0): a.e(x)
        DEEP = eval(os.environ.get("DEEP", "(0,4,4)"))[which]
        if DEEP:
            a.e(f"s_cbranch_vccz {L}q")
            a.e(f"{L}r:"); a.e(f"s_sleep {os.environ.get('GNAP', '2')}")
            for x in past(seq(PR[:DEEP], 0)): a.e(x)
            a.e(f"s_waitcnt vmcnt({2*DEEP - 4})")
            for x in check(0): a.e(x)
            a.e(f"s_cbranch_vccz {L}t")
            a.e("s_add_u32 s53, s53, 1"); a.e("s_cmp_lt_u32 s53, s61"); a.e(f"s_cbranch_scc1 {L}r"); a.e("s_mov_b32 s61, 0"); a.e(f"s_branch {L}t")
            a.e(f"{L}q:")
            assert DEEP >= F0
            for x in seq(PR[F0:DEEP], None): a.e(x)
            a.e(f"{L}t:")
            mstamp(a)
            for x in seq(PR[DEEP:], None): a.e(x)
        else:
            a.e(f"s_cbranch_vccz {L}q"); a.e(f"s_sleep {os.environ.get('GNAP', '2')}")
            a.e("s_add_u32 s53, s53, 1"); a.e("s_cmp_lt_u32 s53, s61"); a.e(f"s_cbranch_scc1 {L}p"); a.e("s_mov_b32 s61, 0")
            a.e(f"{L}q:")
            mstamp(a)
            for x in seq(PR[2:], None): a.e(x)
        a.e("s_waitcnt lgkmcnt(0)")
        a.e(f"{L}:")
        for b in range(4):
            rd = wrd(1 - (b & 1), (b + 1) & 3); ex = [[] for _ in range(16)]
            ex[0], ex[1] = [[x] for x in aload((b - 1) & 3, 1)]
            if b == 0 and which == 1:
                for i, x in enumerate(["s_mov_b32 s44, s45", "s_mov_b32 s45, s46", "s_mov_b32 s46, s47", f"s_mov_b32 s47, {OOB}"]): ex[2 + i].append(x)
            if which == 2:
                ex[2].append("s_add_u32 s44, s44, 16384"); ex[10].append("s_add_u32 s44, s44, 16384")
                mv = [f"v_mov_b32 v{LO+k}, v{LO+k+2}" for k in range(6)] + [f"v_mov_b32 v{LO+6+k}, {OOB}" for k in range(2)]
                if b < 2:
                    for i, x in enumerate(mv[4*b:4*b+4]): ex[3 + i].append(x)
                if b == 3:
                    for k in range(2): ex[3 + k].append(f"v_mov_b32 v{LP+k}, v{LO+k}")
            if b == 2:
                ex[4].append("s_add_u32 s43, s43, 1"); ex[14].append("s_cmp_eq_u32 s43, 4")
                for nt, g_ in enumerate((11, 12, 13, 15)): ex[g_].append(f"v_add_u32 v{w0+nt}, {4*STB}, v{w0+nt}")
            if b == 3 and which == 1: ex[2].append("s_mov_b32 s49, s44")
            ex[7].append("s_waitcnt lgkmcnt(8)")
            ex[8], ex[9] = [[x] for x in aload(b, 0)]
            ex[10].append("s_waitcnt vmcnt(10)")
            if CK:
                for i, x in enumerate(check((b + 1) & 3)): ex[11 + i].append(x)
            fill = [rd[i:i+1] + ex[i] for i in range(16)]
            fill[14] = rd[14:16] + ex[14]; fill[15] = ex[15] + ["s_waitcnt lgkmcnt(8)"]
            if CK: fill[15] += [f"s_cbranch_vccnz {L}f{b}", f"{L}g{b}:"]
            if b == 2: fill[15].append(f"s_cbranch_scc1 {L}x")
            if b == 3: fill[15].append(f"s_branch {L}")
            dmf(b, fill)
        for b in range(4 if CK else 0):
            nb = (b + 1) & 3
            a.e(f"{L}f{b}:"); a.e("s_cselect_b32 s50, 1, 0")
            a.e(f"{L}h{b}:"); a.e(f"s_sleep {os.environ.get('GNAP', '2')}")
            if which == 2: a.e(f"s_sub_u32 s44, s44, {7*16384}")
            for j in range(4):
                bb = (nb + j) & 3
                for kk in range(2 if j < 3 else 1):
                    for x in past(seq([(bb, kk)], None)):
                        if bb >= nb and which == 1: x = x.replace("s44", "s49")
                        if bb >= nb and which == 2: x = x.replace(f", v{LO}, ", f", v{LP}, ").replace(f", v{LO+1}, ", f", v{LP+1}, ")
                        a.e(x)
            a.e("s_waitcnt vmcnt(10)")
            for x in check(nb): a.e(x)
            a.e("s_add_u32 s53, s53, 1"); a.e("s_cmp_ge_u32 s53, s61"); a.e("s_cselect_b32 s61, 0, s61"); a.e(f"s_cbranch_scc1 {L}k{b}")
            a.e(f"s_cbranch_vccnz {L}h{b}")
            a.e(f"{L}k{b}:"); a.e("s_cmp_eq_u32 s50, 1"); a.e(f"s_branch {L}g{b}")
        a.e(f"{L}x:")
    else:
        if which == 3:
            a.e(f"v_mov_b32 v{aa}, v{a0}")
            a.e("s_mov_b32 s42, 0"); a.e("s_mov_b32 s43, 0"); a.e(f"s_mov_b32 s48, {w00}")
            for i in range(nwr): a.e(f"v_add_u32 v{wa+i}, {w00}, v{w0+i}")
        if os.environ.get("XD") and os.environ["XD"][0] == str(which): a.e("s_sleep " + os.environ["XD"][1:])
        if not (which == 3 and B0E): a.e("s_waitcnt lgkmcnt(0)"); a.e("s_barrier")
        mstamp(a)
        for x in reads(fX, 0): a.e(x)
        a.e(f"s_waitcnt lgkmcnt({NR_ - MT - 2})")
    if which == 4:
        def st2(j): return [(x, 0) for x in [f"s_add_u32 s36, s44, {j*224*1024}", f"buffer_store_dwordx4 {vr(C2R+4*j,4)}, v{l16}, s[16:19], s36 offen {SC}",
                            f"s_add_u32 s36, s45, {j*224*1024}", f"buffer_store_dwordx2 {vr(C2R+16+2*j,2)}, v{SO3}, s[16:19], s36 offen {SC}"]]
        assert PBB in (1, 2) and PC0 >= 2
        for st_ in range(2): stage(st2(2 * st_), st2(2 * st_ + 1), zero=st_ == 0, pre=[f"s_waitcnt vmcnt({4 * st_ + 2})"] if PBB == st_ + 1 else [])
        CW = 0
        if PC0 > 3:
            L0 = a.lab("mm"); a.e(f"{L0}:"); stage(lim=PC0); a.e(f"s_cbranch_scc1 {L0}")
        elif PC0 == 3: stage()
    if which == 3 and os.environ.get("PEEL3", "1") == "1": stage(late=True, zero=True)
    if which > 2:
        L = a.lab("mm"); a.e(f"{L}:")
        stage(pre=[f"s_waitcnt vmcnt({CW})"] if which == 4 else [])
        a.e(f"s_cbranch_scc1 {L}")
    b0 = Rec()
    if which == 4:
        a.e("s_cmp_eq_u32 s60, 1"); a.e("s_cbranch_scc1 G4_last")
        if not RPC: r_pre(b0)
    if which == 1:
        for mt in range(MT):
            for p in range(NT // 2): b0.e(f"buffer_load_dwordx4 {vr(RES2+(mt*(NT//2)+p)*4,4)}, v{LO+mt}, s[8:11], s41 offen offset:{p*1024} {SC}")
    early = True
    XW = {3: [f"s_waitcnt lgkmcnt({min(15, NR_ - MT)})"], 7: ["s_waitcnt lgkmcnt(8)"]}
    if which <= 2: dmf(3, spreadf(b0.l, 0, 8), 0, 8)
    else: group(fX, reads(fY, 1), 0, b0.l, XW)
    a.e("s_waitcnt lgkmcnt(0)")
    if which not in DL: a.e("s_barrier")
    b = Rec()
    if which in (1, 3):
        for nt in range(NT): b.e(f"ds_read_b128 {vr(cs+4*nt,4)}, v{t} offset:{nt*64}")
        if which == 3:
            for mt in range(MT): b.e(f"ds_read_b128 {vr(lns+4*mt,4)}, v{t2} offset:{mt*256}")
            for i in range(4): b.e(f"v_mov_b32 v{w0+i}, v{G4W+i}"); b.e(f"v_add_u32 v{wa+i}, {CFG[4]['S0']*CFG[4]['STB']}, v{G4W+i}")
            b.e("s_mov_b32 s42, 0"); b.e("s_mov_b32 s43, 0"); b.e(f"s_mov_b32 s48, {CFG[4]['S0']*CFG[4]['STB']}"); b.e(f"v_mov_b32 v{aa}, v{a0}")
            assert fY + 16 == RFO; r_addr(b, False)
        else:
            for mt in range(MT): b.e(f"ds_read_b64 {vr(lns+2*mt,2)}, v{t2} offset:{mt*256}")
    if which == 2: lsrd(b, 44, oST2, 24576)
    if which == 4:
        b.e(f"s_mul_i32 s36, s31, {oP1-oP0}"); b.e(f"s_add_u32 s36, s36, {oP0}")
        b.e("s_add_u32 s16, s62, s36"); b.e("s_addc_u32 s17, s63, 0"); b.e(f"s_mov_b32 s18, {XSZ}"); b.e("s_mov_b32 s19, 0x20000")
    if which <= 2: dmf(3, spreadf(b.l, 8, 15), 8, 16)
    else: group(fY, [], 0, b.l)
    mstamp(a)
    if which in (1, 3):
        AB = v(2 * MT, 2) if which == 1 else fY + 4
        def consts():
            for mt in range(MT if which == 1 else 0):
                r = lns + 2 * mt + 1
                a.e(f"v_mul_f32 v{AB+2*mt}, {f32(GC1)}, v{r}"); a.e(f"v_mul_f32 v{AB+2*mt+1}, v{r}, v{r}")
                a.e(f"v_mul_f32 v{AB+2*mt+1}, v{AB+2*mt+1}, v{AB+2*mt}"); a.e(f"v_mul_f32 v{AB+2*mt+1}, {f32(0.044715)}, v{AB+2*mt+1}")
                a.e(f"v_rcp_f32 v{r}, v{r}")
        def act(mt, nt):
            A = A_(mt, nt); P_ = [(A, tp), (A + 2, tp + 2)]; L_ = vr(lns + 2 * mt, 2); K_ = vr(AB + 2 * mt, 2)
            if which == 3: L_ = vr(lns + 4 * mt, 2); K_ = vr(lns + 4 * mt + 2, 2)
            for h in range(2):
                a.e(f"v_pk_fma_f32 {vr(A+2*h,2)}, {L_}, {vr(cs+4*nt+2*h,2)}, {vr(A+2*h,2)} op_sel_hi:[0,1,1] neg_lo:[1,0,0] neg_hi:[1,0,0]")
            for x, u in P_: a.e(f"v_pk_mul_f32 {vr(u,2)}, {vr(x,2)}, {vr(x,2)}")
            for x, u in P_: a.e(f"v_pk_fma_f32 {vr(u,2)}, {vr(u,2)}, {K_}, {K_} op_sel:[0,1,0] op_sel_hi:[1,1,0]")
            for x, u in P_: a.e(f"v_pk_mul_f32 {vr(u,2)}, {vr(u,2)}, {vr(x,2)}")
            for i in range(4): a.e(f"v_exp_f32 v{tp+i}, v{tp+i}")
            for x, u in P_: a.e(f"v_pk_fma_f32 {vr(u,2)}, {vr(u,2)}, {L_}, {L_} op_sel:[0,1,1] op_sel_hi:[1,1,1]")
            for i in range(4): a.e(f"v_rcp_f32 v{tp+i}, v{tp+i}")
            for x, u in P_: a.e(f"v_pk_mul_f32 {vr(x,2)}, {vr(x,2)}, {vr(u,2)}")
        def egroup(par, mt, nts, dst=None):
            for nt in nts: act(mt, nt)
            T = par * NT + nts[0]; P = (T >> 1) - ((par * NT) >> 1); B = A_(mt, nts[0]); D = B if dst is None else dst
            for k in range(2 * len(nts)): a.e(f"v_cvt_pk_bf16_f32 v{D+k}, v{B+2*k}, v{B+2*k+1}")
            if which == 3 and (mt < 3 or "3" in DP or V3) and "1" in DP: mark(a, D, 1)
            if which == 1: mark(a, D, 0)
            if which == 3: return [f"s_add_u32 s36, s{44+P}, {mt*224*1024}", f"buffer_store_dwordx4 {vr(B,4)}, v{l16}, s[16:19], s36 offen {SC}"]
            return [f"buffer_store_dwordx4 {vr(B,4)}, v{so}, s[16:19], s{39+P} offen offset:{mt*256} {SC}"]
        def body(par):
            if which == 1: gs = [(0, 1), (2, 3)]
            else: gs = [(0, 1), (2, 3), (4, 5), (6,)] if par == 0 else [(1, 2), (3, 4), (5, 6), (0,)]
            k = 0; pend = []; sent = 0
            for gi_, g_ in enumerate(gs):
                for mt in range(MT):
                    if which == 3 and k == C0PUB:
                        a.e(f"s_waitcnt vmcnt({sent - 4})"); a.e("s_mov_b64 exec, 1"); a.e(f"ds_add_u32 v{EA+2}, v{EA+1}"); a.e("s_mov_b64 exec, -1"); mstamp(a)
                    if which == 3 and k == RK:
                        b_ = Rec(); r_pre(b_); l_ = [x for x in b_.l if x.startswith(("buffer", "s_mov_b32 s78"))]
                        a.e("s_cmp_eq_u32 s60, 1"); a.e(f"s_cbranch_scc1 G4_p1{par}")
                        for x in l_: a.e(x)
                        a.e(f"s_branch G4_p2{par}"); a.e(f"G4_p1{par}:")
                        for x in last_res(): a.e(x)
                        a.e(f"G4_p2{par}:")
                        if 4 <= k < C0PUB: sent += 8
                    st_ = egroup(par, mt, g_, None if gi_ < 2 else C2R + 4 * mt if gi_ == 2 else C2R + 16 + 2 * mt); k += 1
                    if which == 3 and gi_ < 3:
                        a.e(f"ds_write_b128 v{EA}, {vr(A_(mt, g_[0]) if gi_ < 2 else C2R + 4 * mt, 4)} offset:{gi_*16384 + mt*2048}")
                    if gi_ < 2: pend.append(st_)
                    n = len(pend) if (which == 1 or k <= 4 or k == 16) else 0 if k <= STQ else min(1, len(pend))
                    for _ in range(n):
                        for x in pend.pop(0): a.e(x)
                        sent += 1
            if which == 3:
                a.e("s_waitcnt lgkmcnt(0)")
                if par == 0: a.e("s_mov_b32 s44, s46"); a.e("s_mov_b32 s45, s47")
                else: a.e("s_add_u32 s45, s44, 512"); a.e("s_mov_b32 s44, s47")
        a.e("s_waitcnt lgkmcnt(0)")
        consts()
        if which == 3:
            a.e("s_cmp_eq_u32 s35, 1"); a.e(f"s_cbranch_scc1 {nm}_e1")
            body(0); a.e(f"s_branch {nm}_e2"); a.e(f"{nm}_e1:"); body(1); a.e(f"{nm}_e2:")
        else: body(0)
    if which == 2:
        xf = v(2, 2); S = v(2 * MT, 2); pp = v(2, 2); mn = v(2, 2)
        for mt in range(MT):
            a.e(f"s_add_u32 s36, s39, {mt*65536}")
            for p in range(NT // 2):
                R = res + (mt * (NT // 2) + p) * 4
                for e in range(4):
                    X = A_(mt, 2 * p) + 2 * e
                    a.e(f"v_cvt_pk_bf16_f32 v{R+e}, v{X}, v{X+1}")
                if DP: mark(a, R, 0)
                a.e(f"buffer_store_dwordx4 {vr(R,4)}, v{l16}, s[16:19], s36 offen offset:{p*1024} {SC}")
        if which in DL: a.e("s_barrier")
        if OWN3:
            a.e("s_lshl_b32 s36, s37, 11"); a.e(f"v_add_u32 v{t2}, s36, v{l16}")
            for i in range(4): a.e(f"ds_write_b128 v{t2}, {vr(res+4*i,4)} offset:{1024*i}")
        for i in range(MT * NT * 2): unpack(a, acc + 2 * i, acc + 2 * i + 1, res + i)
        mstamp(a)
        publish(a, which, 4, pt)
        if B0E: a.e("s_waitcnt lgkmcnt(0)"); a.e("s_barrier")
        mstamp(a)
        for mt in range(MT):
            B = A_(mt, 0); Sm = S + 2 * mt
            a.e(f"v_pk_add_f32 {vr(pp,2)}, {vr(B,2)}, {vr(B+2,2)}"); a.e(f"v_pk_mul_f32 {vr(xf,2)}, {vr(B,2)}, {vr(B,2)}")
            for i in range(1, NT * 2):
                if i > 1: a.e(f"v_pk_add_f32 {vr(pp,2)}, {vr(pp,2)}, {vr(B+2*i,2)}")
                a.e(f"v_pk_fma_f32 {vr(xf,2)}, {vr(B+2*i,2)}, {vr(B+2*i,2)}, {vr(xf,2)}")
            a.e(f"v_add_f32 v{Sm}, v{pp}, v{pp+1}"); a.e(f"v_add_f32 v{Sm+1}, v{xf}, v{xf+1}")
            for op in ("v_permlane16_swap_b32", "v_permlane32_swap_b32"):
                for k in range(2): a.e(f"v_mov_b32 v{pp+k}, v{Sm+k}")
                for k in range(2): a.e(f"{op} v{Sm+k}, v{pp+k}")
                a.e(f"v_pk_add_f32 {vr(Sm,2)}, {vr(Sm,2)}, {vr(pp,2)}")
        a.e(f"v_cmp_eq_u32 vcc, 0, v{G}"); a.e(f"v_cndmask_b32 v{S}, v{S+2}, v{S}, vcc"); a.e(f"v_cndmask_b32 v{S+1}, v{S+3}, v{S+1}, vcc")
        spread(a, 40, 29); a.e("s_lshl_b32 s36, s34, 8"); a.e("s_add_u32 s40, s40, s36")
        a.e(f"v_lshlrev_b32 v{t2}, 3, v{lane}")
        a.e("s_bfm_b64 exec, 32, 0")
        a.e(f"buffer_store_dwordx2 {vr(S,2)}, v{t2}, s[44:47], s40 offen {SC}")
        a.e("s_mov_b64 exec, -1")
    if which == 4:
        for mt in range(MT):
            a.e(f"s_add_u32 s36, s39, {mt*65536}")
            for p in range(NT // 2):
                B = A_(mt, 2 * p)
                for e in range(4): a.e(f"v_cvt_pk_bf16_f32 v{B+e}, v{B+2*e}, v{B+2*e+1}")
                if "r" in DP: mark(a, B, 1)
                a.e(f"buffer_store_dwordx4 {vr(B,4)}, v{l16}, s[16:19], s36 offen offset:{p*1024} {SC}")
    if which != 2:
        if which in DL: a.e("s_barrier")
        mstamp(a)
        if which == 4 and "r" not in DP: publish(a, which, 4, pt)
        mstamp(a)
    if which == 4:
        a.e("s_branch NEXT")
        a.e("G4_last:")
        PX = 208; oa = 224; xf = 226
        group(fX, reads(fY, 1), 0, [(f"s_load_dwordx2 s[6:7], s[0:1], {D_OUT}", 9)], XW)
        a.e("s_waitcnt lgkmcnt(0)")
        b = Rec()
        lsrd(b, 16, oX1P if "f" in DP else MB, XSZ)
        b.srd(20, 6, 4 * MB)
        if "f" not in DP:
            b.e("s_lshl_b32 s44, s29, 2"); b.e("s_add_u32 s44, s44, s30"); b.e("s_lshl_b32 s44, s44, 7"); b.e("s_xor_b32 s45, s44, 4096")
            b.e("s_add_u32 s44, s44, s55"); b.e(f"s_add_u32 s44, s44, {oFP}"); b.e("s_add_u32 s45, s45, s55"); b.e(f"s_add_u32 s45, s45, {oFP}")
            b.e(f"v_mov_b32 v{pt+1}, s45"); b.e(f"v_mov_b32 v{pt+2}, s52"); b.e(f"v_mov_b32 v{pt+3}, 0")
        else: b.e("s_add_u32 s44, s40, 65536")
        b.e("s_lshl_b32 s46, s28, 3"); b.e("s_add_u32 s46, s46, s37"); b.e("s_lshl_b32 s47, s31, 1"); b.e("s_add_u32 s46, s46, s47"); b.e("s_lshl_b32 s46, s46, 15")
        b.e("s_lshl_b32 s47, s38, 5"); b.e("s_add_u32 s46, s46, s47"); b.e(f"s_add_u32 s47, s46, {16*2048}")
        b.e(f"v_and_b32 v{oa+1}, 1, v{G}"); b.e(f"v_lshlrev_b32 v{oa}, 11, v{J}"); b.e(f"v_lshl_add_u32 v{oa}, v{oa+1}, 5, v{oa}")
        b.e(f"v_lshrrev_b32 v{oa+1}, 1, v{G}"); b.e(f"v_lshl_add_u32 v{oa}, v{oa+1}, 4, v{oa}")
        FULLN = os.environ.get("FULLN", "1") == "1"
        if FULLN:
            b.e(f"v_lshrrev_b32 v{oa+1}, 3, v{J}"); b.e(f"v_mul_u32_u24 v{oa+1}, {8*2048 - 64}, v{oa+1}"); b.e(f"v_sub_u32 v{oa}, v{oa}, v{oa+1}")
            b.e(f"v_add_u32 v{oa+1}, {8*2048}, v{oa}")
        OT = int(os.environ.get("OT", "0"))
        if OT == 1: b.e("s_mov_b64 exec, 1"); b.e(f"buffer_load_dword v{xf}, v{oa}, s[20:23], s46 offen {SC}"); b.e("s_mov_b64 exec, -1")
        if OT == 2:
            for k in range(4): b.e(f"buffer_load_dword v{xf}, v{oa+(k&1)}, s[20:23], s{46+(k>>1)} offen {SC}")
        group(fY, [], 0, b.l)
        mstamp(a)
        def send(m0_):
            for i in range(2):
                a.e(f"s_add_u32 s36, s41, {i*65536}")
                for p in range(2):
                    B = A_(m0_ + i, 2 * p)
                    for e in range(4): a.e(f"v_cvt_pk_bf16_f32 v{B+e}, v{B+2*e}, v{B+2*e+1}")
                    if "f" in DP: mark(a, B, 1)
                    a.e(f"buffer_store_dwordx4 {vr(B,4)}, v{l16}, s[16:19], s36 offen offset:{p*1024} {SC}")
        a.e("s_cmp_eq_u32 s31, 0"); a.e("s_cbranch_scc1 G4_k0")
        send(0)
        for i in range(0, 32, 2): a.e(f"v_pk_mov_b32 {vr(acc+i,2)}, {vr(acc+32+i,2)}, {vr(acc+32+i,2)} op_sel:[0,1]")
        a.e("s_branch G4_k1")
        a.e("G4_k0:")
        send(2)
        a.e("G4_k1:")
        a.e("s_mov_b32 s78, 0x3f80"); a.e("s_mov_b32 s79, 0x3f800000")
        def addp(k, R):
            B = A_(k >> 1, 2 * (k & 1))
            if DOT:
                for e in range(8): a.e(f"v_dot2_f32_bf16 v{B+e}, v{R+e//2}, s{78+(e&1)}, v{B+e}")
                return
            for e in range(4):
                unpack(a, xf + 2 * (e & 1), xf + 1 + 2 * (e & 1), R + e)
                a.e(f"v_pk_add_f32 {vr(B+2*e,2)}, {vr(B+2*e,2)}, {vr(xf+2*(e&1),2)}")
        for k in range(4): addp(k, RX[2 * k])
        if "f" not in DP:
            a.e("s_waitcnt vmcnt(0)")
            a.e("s_mov_b64 exec, 1"); a.e(f"buffer_store_dword v{pt+2}, v{pt+3}, s[56:59], s44 offen {SC}"); a.e("s_mov_b64 exec, -1")
        mstamp(a)
        for k in range(4): addp(k, RX[2 * k + 1])
        if "f" in DP:
            data_poll(a, [f"buffer_load_dwordx4 {vr(PX+4*(2*i+p),4)}, v{l16}, s[16:19], s{(40, 44)[i]} offen offset:{p*1024} {os.environ.get('FF', SC)}" for i in range(2) for p in range(2)],
                      [PX + 4 * k for k in range(4)], t, int(os.environ.get("FNAP", "2")), 0, int(os.environ.get("FCAN", "0")))
            mstamp(a)
        else:
            poll_core(a, pt, [pt + 1], 1, nap=2)
            mstamp(a)
            for i in range(2):
                a.e(f"s_add_u32 s36, s40, {i*65536}")
                for p in range(2): a.e(f"buffer_load_dwordx4 {vr(PX+4*(2*i+p),4)}, v{l16}, s[16:19], s36 offen offset:{p*1024} {SC}")
        for k in range(4):
            if "f" not in DP: a.e(f"s_waitcnt vmcnt({3 - (k & 1) if FULLN else 3})")
            addp(k, PX + 4 * k)
            B = A_(k >> 1, 2 * (k & 1))
            if os.environ.get("EPS"):
                for e in range(8): a.e(f"v_mul_f32 v{B+e}, {f32(1 + float(os.environ['EPS']) * (1 if e & 1 else -1))}, v{B+e}")
            for e in range(4): a.e(f"v_cvt_pk_bf16_f32 v{B+e}, v{B+2*e}, v{B+2*e+1}")
            for e in range(2): a.e(f"v_permlane16_swap_b32 v{B+e}, v{B+2+e}")
            if not FULLN: a.e(f"buffer_store_dwordx4 {vr(B,4)}, v{oa}, s[20:23], s{46+(k>>1)} offen offset:{64*(k&1)} {os.environ.get('OS', '')}")
            elif k & 1:
                X, Y, T = B - 8, B, B + 4
                for e in range(4): a.e(f"v_mov_b32 v{T+e}, v{X+e}")
                for e in range(4): a.e(f"v_mov_b32_dpp v{X+e}, v{Y+e} row_ror:8 row_mask:0xf bank_mask:0xc")
                for e in range(4): a.e(f"v_mov_b32_dpp v{Y+e}, v{T+e} row_ror:8 row_mask:0xf bank_mask:0x3")
                a.e(f"buffer_store_dwordx4 {vr(X,4)}, v{oa}, s[20:23], s{46+(k>>1)} offen {os.environ.get('OS', SC)}")
                a.e(f"buffer_store_dwordx4 {vr(Y,4)}, v{oa+1}, s[20:23], s{46+(k>>1)} offen {os.environ.get('OS', SC)}")
        a.e("s_branch K_fin")
    assert v.hi <= {1: RES2, 2: RES2, 3: RYY, 4: 176}[which], v.hi
    return v.hi

def k_mega(a):
    nm = KNAME; a.begin_kernel(nm)
    a.e("s_cmp_ge_u32 s2, 256"); a.e("s_cbranch_scc1 K_end")
    a.e(f"s_load_dwordx8 s[8:15], s[0:1], {A_K}")
    if FAST:
        if STAMP: a.e("s_memrealtime s[46:47]")
        front_first(a)
    a.e(f"s_load_dwordx2 s[6:7], s[0:1], {A_Q}"); a.e(f"s_load_dwordx8 s[68:75], s[0:1], {B_W1}")
    a.e(f"s_load_dwordx2 s[4:5], s[0:1], {D_WS}"); a.e(f"s_load_dwordx2 s[84:85], s[0:1], {D_DBG}")
    if not (FAST and STAMP): a.e("s_memrealtime s[46:47]")
    a.e(f"s_load_dwordx2 s[96:97], s[0:1], {A_SSMD}")
    a.e("v_lshrrev_b32 v1, 6, v0"); a.e("v_readfirstlane_b32 s30, v1")
    if CODEPF:
        a.e("s_getpc_b64 s[48:49]"); a.e("K_pc:")
        a.e("s_lshr_b32 s36, s2, 3"); a.e("s_lshl_b32 s36, s36, 11")
        a.e("v_lshlrev_b32 v4, 2, v0"); a.e("v_add_u32 v4, s36, v4")
        a.e("v_cmp_gt_u32 vcc, K_end-K_pc-8, v4"); a.e("s_and_saveexec_b64 s[36:37], vcc"); a.e("s_cbranch_execz K_3")
        a.e("v_mov_b32 v5, s49"); a.e("v_add_co_u32 v4, vcc, s48, v4"); a.e("v_addc_co_u32 v5, vcc, 0, v5, vcc")
        a.e("global_load_dword v250, v[4:5], off")
        a.e("K_3:"); a.e("s_mov_b64 exec, -1")
    for _ in range(int(os.environ.get("SDELAY", "0"))): a.e("s_sleep 127")
    front_loads(a)
    a.e("v_and_b32 v1, 63, v0"); a.e("v_lshlrev_b32 v2, 4, v1"); a.e("v_lshlrev_b32 v3, 2, v1")
    a.e("s_mov_b32 s67, 0")
    a.e("s_mov_b32 s60, 0"); a.e("s_mov_b32 s61, 40000"); a.e("s_mov_b32 s52, 0")
    a.e("s_mov_b32 s55, 0"); a.e("s_mov_b32 s92, 0"); a.e("s_mov_b32 s93, 0"); a.e("s_mov_b32 s94, 0")
    a.srd(56, 4, HSB)
    if os.environ.get("FIXT"): a.e("s_mov_b32 s101, s46")
    a.e(f"s_add_u32 s62, s4, {LB0}"); a.e("s_addc_u32 s63, s5, 0")
    if STAMP:
        a.e("s_mov_b32 s66, 1"); a.e("v_mov_b32 v255, -1"); a.e("s_mov_b32 s95, 0"); a.e("v_writelane_b32 v255, s46, 0")
    mstamp(a)
    if os.environ.get("WBENCH"):
        a.e("s_waitcnt vmcnt(0)"); a.e("s_barrier")
        a.e("s_cmp_lt_u32 s30, 6"); a.e("s_cbranch_scc1 WB_end")
        for w in (1, 2, 3, 4):
            mstamp(a); w_setup(a, w); a.e("s_waitcnt vmcnt(0)"); mstamp(a); a.e("s_sleep 40")
        a.e("WB_end:"); a.e("s_branch K_dump")
    front_a(a); mstamp(a)
    for r in range(238, 248): a.e(f"v_mov_b32 v{r}, 0")
    a.e("s_cmp_ge_u32 s30, 4"); a.e("s_cbranch_scc1 FR_b")
    front_conv(a); hi = 0
    mstamp(a)
    front_arrive(a, True, True)
    if os.environ.get("EPR"): a.e("s_setprio 0")
    a.e("s_branch FR_end")
    a.e("FR_b:")
    front_b(a)
    a.e("FR_end:")
    mstamp(a)
    a.e("LAYER:")
    if os.environ.get("XDELAY"): a.e(f"s_sleep {os.environ['XDELAY']}")
    hi = max(hi, r_stage(a, False))
    mstamp(a)
    a.e("s_cmp_ge_u32 s30, 4"); a.e("s_cbranch_scc1 LOADERS")
    if CPRIO: a.e(f"s_setprio {CPRIO}")
    for w in (1, 2, 3, 4):
        a.lines.append(f"; ---- G{w}: compute waves (set-up, K loop, epilogue, publish)")
        hi = max(hi, g_compute(a, w))
    a.e("LOADERS:")
    park_rest(a, True)
    if SB[2]:
        a.e("s_cmp_lg_u32 s60, 0"); a.e("s_cbranch_scc1 LD_0"); sb(a, SB[2]); a.e("LD_0:")
    if PRIO: a.e(f"s_setprio {PRIO}")
    a.e("s_cmp_ge_u32 s30, 6"); a.e("s_cbranch_scc1 WLOAD")
    for w in (1, 2, 3, 4): a_loader(a, w)
    a.e("s_branch NEXT")
    a.e("WLOAD:")
    a.e("s_cmp_eq_u32 s60, 1"); a.e("s_cbranch_scc1 WL_1")
    w_setup(a, 1, pre=False); w1_slots(a, range(9 - W1G), pace=12); mstamp(a)
    a.e("s_branch WL_2")
    a.e("WL_1:")
    w_setup(a, 1, pre=False); w1_slots(a, range(3 - W1L), pace=12)
    a.e("WL_2:")
    for w in (1, 2, 3, 4):
        w_loader(a, w)
        if w == 2:
            c = CFG[3]; w_setup(a, 3, pre=False); n_ = 3 if W33 else 2; a.e(f"s_mov_b32 s42, {(c['S0'] + n_) % c['NW'] * c['STB']}"); a.e(f"s_mov_b32 s44, {n_}")
        if w == 3: w_setup(a, 4)
    a.e("NEXT:")
    a.e("s_setprio 0")
    a.e("s_add_u32 s60, s60, 1"); a.e(f"s_add_u32 s55, s55, {LSTR}")
    a.e(f"s_add_u32 s62, s62, {LSTR}"); a.e("s_addc_u32 s63, s63, 0")
    a.e("s_branch LAYER")
    a.e("K_fin:")
    if os.environ.get("FIXT"):
        a.e("FX_l:"); a.e("s_sleep 4"); a.e("s_memrealtime s[64:65]"); a.e("s_waitcnt lgkmcnt(0)"); a.e("s_sub_u32 s64, s64, s101")
        if os.environ.get("FIX0"): a.e("s_add_u32 s64, s64, s101"); a.e("s_lshl_b32 s64, s64, 6"); a.e("s_sub_u32 s64, s64, s52"); a.e("s_lshr_b32 s64, s64, 6")
        a.e(f"s_cmp_lt_u32 s64, {os.environ['FIXT']}"); a.e("s_cbranch_scc1 FX_l")
    if STAMP:
        a.e("K_dump:")
        a.e("s_waitcnt vmcnt(0)")
        mstamp(a)
        a.srd(96, 4, 16 * MB, off=200 * MB)
        a.e("s_lshl_b32 s66, s2, 3"); a.e("s_add_u32 s66, s66, s30"); a.e("s_lshl_b32 s66, s66, 8")
        a.e("v_writelane_b32 v255, s95, 63")
        a.e("buffer_store_dword v255, v3, s[96:99], s66 offen")
        if os.environ.get("DBGOUT"):
            a.e("s_cmp_lg_u32 s66, 0"); a.e("s_cbranch_scc1 K_end")
            a.e(f"s_load_dwordx2 s[96:97], s[0:1], {D_DBG}"); a.e("s_mov_b32 s98, 64"); a.e("s_waitcnt lgkmcnt(0)")
            a.e("v_readlane_b32 s64, v255, 0"); a.e("v_mov_b32 v10, 0")
            for i, j in enumerate(eval(os.environ["DBGOUT"])):
                a.e(f"v_readlane_b32 s65, v255, {j}"); a.e("s_sub_u32 s65, s65, s64"); a.e("v_mov_b32 v11, s65")
                a.e(f"buffer_store_dword v11, v10, s[96:99], 0 offen offset:{8+4*i}")
    a.e("s_endpgm")
    emit_subs(a)
    a.e("K_end:")
    assert hi <= PV
    a.end_kernel(nm, 256)
    if TAB: tab_data(a)
    a.launches.append(f"; @launch grid=(256,1,1) block=(512,1,1) lds={LDS_TOTAL}")

HEADER = open(HERE + "/../interleave_layers__ssm_conv_h3__mixer_s_mlp__prompt.s.ref").read().split("; Override launch")[0]
DOC = """; One persistent kernel, 256 workgroups x 8 waves (one per CU), generated by dev/gen36.py.
"""
def main(out):
    a = Asm()
    k_mega(a)
    DS = os.environ.get("DS")
    if DS:
        o = []
        for l in a.lines:
            o.append(l)
            if "buffer_store_dwordx" in l and "sc1" in l and any(k in l for k in DS.split(",")): o.append(l.replace(" sc1", ""))
        a.lines = o
    notes = {
        "K_pc:": "each workgroup reads 2 KB of this kernel's code so that later instruction fetches are served on chip",
        "KV_t0:": "k / v / tap loads of the u^T tile (64 times x 128 channels); workgroup 0 has posted the launch tag (a clock value) in d_debug",
        "HB_2:": "u^T tile out, arrival counters initialised to the tag, roles, shifted filter copies into LDS",
        "CV_w:": "long causal convolution as Toeplitz MFMAs, one channel per wave",
        "FR_b:": "waves 4-7 beside the convolution: memory-locality vote (timed loads, layout choice only), weight column sums, weight touches",
        "LAYER:": "row stage: residual sums, LayerNorm chain, x + LN(x)*y for 8 rows per workgroup",
        "LOADERS:": "waves 4,5: LayerNorm scalars / column sums; activation tiles of G3, G4 by LDS-DMA (after the producers' counters are complete)",
        "WLOAD:": "waves 6,7: weight tiles by LDS-DMA in their original layout (read back with transposing LDS loads)",
        "G4_last:": "last layer: the two K halves exchange half tiles, add the residuals and write the output",
    }
    o = []
    for l in a.lines:
        if l.strip() in notes: o.append("; ---- " + notes[l.strip()])
        if l.strip().startswith("s_sleep"): l += "    ; back-off of a wave that waits for another workgroup or wave"
        o.append(l)
    a.lines = o
    open(out, "w").write(a.text(HEADER + DOC))
    print("nops added:", a.nops_added)

if __name__ == "__main__":
    main(sys.argv[1] if len(sys.argv) > 1 else "interleave_layers__ssm_conv_h3__mixer_s_mlp__prompt.s")
```

```python
import sys, os, math, struct
HERE = os.path.dirname(os.path.abspath(__file__)); sys.path.insert(0, HERE)
from asmgen import Asm

KNAME = "interleave_layers__ssm_conv_h3__mixer_s_mlp__prompt_kernel"
MB = 1 << 20
UT, Y = 24 * MB, 28 * MB
CSP = {1: 20 * MB, 3: 20 * MB + 128 * 1024}
A_Q, A_K, A_V, A_SH, A_SSMK, A_SSMD, B_X, B_W1, B_W2, B_W3, B_W4, D_OUT, D_DBG, D_WS = [8 * i for i in range(14)]
STAMP = int(os.environ.get("STAMP", "0"))
def f32(x): return "0x%08x" % struct.unpack("<I", struct.pack("<f", x))[0]
GC1 = -2.0 * math.sqrt(2.0 / math.pi) * math.log2(math.e)
GC2 = GC1 * 0.044715

class VA:
    def __init__(self, start=1): self.n = start; self.hi = start
    def __call__(self, cnt=1, al=None):
        if al is None: al = 2 if cnt > 1 else 1
        self.n = (self.n + al - 1) // al * al
        r = self.n; self.n += cnt; self.hi = max(self.hi, self.n); return r
def vr(b, n): return f"v[{b}:{b+n-1}]" if n > 1 else f"v{b}"

def unpack(a, lo, hi, src):
    a.e(f"v_lshlrev_b32 v{lo}, 16, v{src}")
    a.e(f"v_and_b32 v{hi}, 0xffff0000, v{src}")
RND = int(os.environ.get("RND", "0"))
def round2(a, x, y, tmp):
    if not RND: return
    a.e(f"v_cvt_pk_bf16_f32 v{tmp}, v{x}, v{y}")
    unpack(a, x, y, tmp)
def round1(a, x):
    if not RND: return
    a.e(f"v_cvt_pk_bf16_f32 v{x}, v{x}, v{x}")
    a.e(f"v_lshlrev_b32 v{x}, 16, v{x}")
def red_g(a, x, t):
    a.e(f"v_mov_b32 v{t}, v{x}"); a.e(f"v_permlane16_swap_b32 v{x}, v{t}"); a.e(f"v_add_f32 v{x}, v{x}, v{t}")
    a.e(f"v_mov_b32 v{t}, v{x}"); a.e(f"v_permlane32_swap_b32 v{x}, v{t}"); a.e(f"v_add_f32 v{x}, v{x}, v{t}")
def ln_finish(a, mean, var, rs, s=None):
    round1(a, mean); round1(a, var)
    a.e(f"v_add_f32 v{var}, {f32(1e-5)}, v{var}"); round1(a, var)
    if not RND and s is None: a.e(f"v_rsq_f32 v{rs}, v{var}"); return
    a.e(f"v_sqrt_f32 v{var}, v{var}"); round1(a, var)
    if s is not None: a.e(f"v_mov_b32 v{s}, v{var}")
    a.e(f"v_rcp_f32 v{rs}, v{var}")


FLG = 22 * MB + int(os.environ.get("FOFF", "0"))
LB0, LSTR, GSTR = 32 * MB, 4 * MB, 16 * MB
oH2 = 4 * MB; oSM = oH2 + 1792 * 1024; oFP = 16384; oST2 = oSM + 32768; oLNS = oSM + 65536
oX3, oX1P, oP0, oP1 = [i * 512 * 1024 for i in range(4)]
DP = os.environ.get("DP", "rf12")
if "r" in DP: oP0, oP1 = oX3, oX1P
def mark(a, r, bit): a.e(f"v_or_b32 v{r}, 1, v{r}" if bit else f"v_and_b32 v{r}, -2, v{r}")
V3 = int(os.environ.get("V3", "0"))
DOT = int(os.environ.get("DOT", "1"))
def data_poll(a, loads, regs, t, nap, first=0, canary=False):
    L = a.lab("dp"); D = a.lab("dq")
    if canary:
        a.e("s_bfm_b64 exec, 1, 63"); data_poll(a, loads, regs, t, nap, first); a.e("s_mov_b64 exec, -1"); first = 0
    a.e("s_mov_b32 s53, 0")
    if first:
        f2 = int(os.environ.get("RFIRST2", "10"))
        if f2: a.e(f"s_sleep {f2}")
        a.e(f"s_cmp_ge_u32 s30, {os.environ.get('RW2', '6')}"); a.e(f"s_cbranch_scc1 {L}"); a.e(f"s_sleep {first - f2}")
    a.e(f"{L}:")
    for x in loads: a.e(x)
    a.e("s_waitcnt vmcnt(0)")
    a.e(f"v_bitop3_b32 v{t}, v{regs[0]}, v{regs[1]}, v{regs[2]} bitop3:0x80"); a.e(f"v_bitop3_b32 v{t}, v{t}, v{regs[3]}, 1 bitop3:0x80")
    a.e(f"v_cmp_eq_u32 vcc, 0, v{t}"); a.e(f"s_cbranch_vccz {D}")
    a.e(f"s_sleep {nap}")
    a.e("s_add_u32 s53, s53, 1"); a.e("s_cmp_lt_u32 s53, s61"); a.e(f"s_cbranch_scc1 {L}")
    a.e("s_mov_b32 s61, 0")
    a.e(f"{D}:")
XSZ = 512 * 1024 - 8192; H2SZ = 1792 * 1024 - 8192
HSB = 160 * MB; PITCH = 65536 + int(os.environ.get("SKEW", "0")); oHS = MB
def fso(stage): return int(stage * 256)
def spread(a, d, src):
    a.e(f"s_lshr_b32 s53, s{src}, 3"); a.e("s_lshl_b32 s53, s53, 14"); a.e(f"s_and_b32 s{d}, s{src}, 7"); a.e(f"s_lshl_b32 s{d}, s{d}, 10"); a.e(f"s_add_u32 s{d}, s{d}, s53")
ST_R, ST_G1, ST_G2, ST_G3, ST_G4, ST_R2, ST_G3B, ST_G3A = range(8); ST_G2S = 5.5
F_KVT, F_FRONT, F_CS = FLG, FLG + 32768, FLG + 53248; F_VOTE = F_FRONT + 16384; F_RES = F_VOTE
LDS_TOTAL = 163840
AUX = LDS_TOTAL - 4096
SC = "sc1"
PSLEEP = int(os.environ.get("PSLEEP", "5"))
ROT = int(os.environ.get("ROT", "1"))
PACE = int(os.environ.get("PACE", "8"))
PDEPTH = int(os.environ.get("PDEPTH", "1"))
WROT = int(os.environ.get("WROT", "1"))
PRIO = int(os.environ.get("PRIO", "0"))
STQ = int(os.environ.get("STQ", "12"))
CPRIO = int(os.environ.get("CPRIO", "1"))
FSLEEP = int(os.environ.get("FSLEEP", "6"))
CSPRIO = int(os.environ.get("CSPRIO", "1"))
NT = os.environ.get("NT", "nt"); HALO = int(os.environ.get("HALO", "0")); NTK = os.environ.get("NTK", "" if HALO else NT); NTH = os.environ.get("NTH", NT)
W1F = int(os.environ.get("W1F", "7"))
WSC = eval(os.environ.get("WSC", "{}"))
TLBW = int(os.environ.get("TLBW", "0"))
T12 = eval(os.environ.get("T12", "{}"))
T23 = eval(os.environ.get("T23", "()"))
OWN3 = int(os.environ.get("OWN3", "1"))
PUB2 = int(os.environ.get("PUB2", "4"))
MAP = int(os.environ.get("MAP", "4"))
HSPLIT = int(os.environ.get("HSPLIT", "4"))
W1G = int(os.environ.get("W1G", "9"))
PWAIT = int(os.environ.get("PWAIT", "8"))
DL = eval(os.environ.get("DL", "[2,4]"))
PACES = eval(os.environ.get("PACES", "{4:8}"))
C0PUB = int(os.environ.get("C0PUB", "6"))
LNSL = AUX + 1024

CFG = {1: dict(WM=4, WN=1, MT=2, NT=4, KBT=32, NS=16, NA=1.5, NW=16, A=oX3, W=B_W1, LDW=2048),
       2: dict(WM=4, WN=1, MT=2, NT=4, KBT=32, NS=16, NA=0, NW=16, A=oHS, W=B_W2, LDW=2048),
       3: dict(WM=2, WN=2, MT=4, NT=7, KBT=32, NS=16, NA=3, NW=3, A=oX1P, W=B_W3, LDW=7168, NPRE=2, WR=1, S0=2, WB=73728),
       4: dict(WM=2, WN=2, MT=4, NT=4, KBT=112, NS=28, NA=3, NW=6, A=oH2, W=B_W4, LDW=2048)}
for w, d in eval(os.environ.get("CFG", "{}")).items(): CFG[w].update(d)
for c in CFG.values():
    c.setdefault("NPRE", c["NW"]); c.setdefault("APRE", min(c["NA"], 3)); c.setdefault("WR", 1)
    c["TN16"] = c["WN"] * c["NT"]; c["STB"] = c["TN16"] * 2048; c.setdefault("WB", int(c["NA"] * 16384)); c.setdefault("S0", 0)
    c["RB"] = c["TN16"] * 32
    assert c["WB"] + c["NW"] * c["STB"] <= AUX
NX = 0
def nib(t): return sum(x << (4 * i) for i, x in enumerate(t))
CSO = {1: AUX + 3584, 3: AUX}

LW = AUX + 3072
def mstamp(a, force=False):
    if os.environ.get("JIT"):
        X = a.lab("jit")
        a.e("s_cselect_b32 s101, 1, 0"); a.e("s_memtime s[64:65]"); a.e("s_waitcnt lgkmcnt(0)"); a.e(f"s_and_b32 s64, s64, {os.environ['JIT']}"); a.e("s_cmp_lg_u32 s64, 0")
        a.e(f"s_cbranch_scc1 {X}"); a.e("s_sleep 50"); a.e(f"{X}:"); a.e("s_cmp_eq_u32 s101, 1")
        return
    if not STAMP or (os.environ.get("GST") and not force): return
    a.e(("s_memrealtime" if STAMP == 2 else "s_memtime") + " s[64:65]"); a.e("s_mov_b32 s100, m0"); a.e("s_mov_b32 m0, s66"); a.e("s_waitcnt lgkmcnt(0)")
    a.e("v_writelane_b32 v255, s64, m0"); a.e("s_mov_b32 m0, s100")
    a.e("s_add_u32 s66, s66, 1")

def lsrd(a, d, off, nbytes, prev=False):
    if prev:
        a.e(f"s_sub_u32 s{d}, s62, {LSTR - off:#x}"); a.e(f"s_subb_u32 s{d+1}, s63, 0")
        a.e(f"s_mov_b32 s{d+2}, {nbytes:#x}"); a.e(f"s_mov_b32 s{d+3}, 0x20000")
    else: a.srd(d, 62, nbytes, off=off)

def hs_srd(a, d):
    if "2" in DP: a.srd(d, 4, 128 * PITCH, off=HSB); return
    a.e("s_lshl_b32 s53, s60, 24"); a.e(f"s_add_u32 s53, s53, {HSB}")
    a.e(f"s_add_u32 s{d}, s4, s53"); a.e(f"s_addc_u32 s{d+1}, s5, 0"); a.e(f"s_mov_b32 s{d+2}, {128*PITCH}"); a.e(f"s_mov_b32 s{d+3}, 0x20000")

def group_off(a, d, m):
    a.e(f"s_lshr_b32 s53, s{m}, 3"); a.e("s_lshl_b32 s53, s53, 2"); a.e(f"s_and_b32 s54, s{m}, 3"); a.e("s_add_u32 s53, s53, s54"); a.e("s_lshl_b32 s53, s53, 24")
    a.e(f"s_lshr_b32 s54, s{m}, 2"); a.e("s_xor_b32 s54, s54, s94"); a.e("s_and_b32 s54, s54, 1"); a.e("s_lshl_b32 s54, s54, 13")
    a.e(f"s_add_u32 s{d}, s53, s54"); a.e(f"s_add_u32 s{d}, s{d}, {LB0}")

PV = 240
def poll_core(a, t, addrs, mask, extra=None, depth=1, cnt=0, nap=None):
    L = a.lab("poll"); D = a.lab("pok")
    n = len(addrs) + (1 if extra else 0)
    if depth > 1: t0 = t; regs = [PV + k * len(addrs) for k in range(depth)]; assert not extra and regs[-1] + len(addrs) <= 256
    else: regs = [t]
    def ld(r):
        for i, ad in enumerate(addrs): a.e(f"buffer_load_dword v{r+i}, v{ad}, s[56:59], 0 offen {SC}")
        if extra: a.e(extra[0])
    a.e("s_mov_b32 s53, 0"); a.e(f"s_add_u32 s54, s52, {cnt}")
    if mask != -1: a.e(f"s_bfm_b64 exec, {mask.bit_length()}, 0")
    for r in regs[:-1]: ld(r); a.e(f"s_sleep {PSLEEP}")
    a.e(f"{L}:")
    for k in range(depth):
        ld(regs[k - 1]); r = regs[k]
        a.e(f"s_waitcnt vmcnt({n*(depth-1)})")
        for i in range(len(addrs)): a.e(f"v_xor_b32 v{r+i}, s54, v{r+i}")
        for i in range(1, len(addrs)): a.e(f"v_or_b32 v{r}, v{r}, v{r+i}")
        if extra:
            for x in extra[1:]: a.e(x)
        a.e(f"v_cmp_eq_u32 vcc, 0, v{r}")
        a.e("s_cmp_eq_u64 vcc, exec"); a.e(f"s_cbranch_scc1 {D}")
        a.e(f"s_sleep {PSLEEP if nap is None else nap}")
    a.e("s_add_u32 s53, s53, 1"); a.e("s_cmp_lt_u32 s53, s61"); a.e(f"s_cbranch_scc1 {L}")
    a.e("s_mov_b32 s61, 0")
    a.e(f"{D}:")
    if mask != -1: a.e("s_mov_b64 exec, -1")

SPLIT = {ST_G1: "sign", ST_G3: "half", ST_G3A: "half", ST_G3B: "half"}
def flag_addr(a, r, stage, prev=False):
    so = fso(stage) - (LSTR if prev else 0)
    a.e(f"s_add_u32 s54, s55, {so & 0xffffffff:#x}")
    sp = SPLIT.get(stage)
    if sp == "half": a.e("s_lshl_b32 s53, s31, 7"); a.e("s_add_u32 s54, s54, s53")
    a.e(f"v_mov_b32 v{r}, s54")
    if sp == "sign":
        a.e("s_add_u32 s53, s54, 128"); a.e(f"v_writelane_b32 v{r}, s53, 1")
        a.e("s_add_u32 s53, s53, s93"); a.e(f"v_writelane_b32 v{r}, s53, 3")
        a.e("s_add_u32 s53, s54, s92"); a.e(f"v_writelane_b32 v{r}, s53, 2")
        return 0xf, 8
    return 1, 8 if sp else 16
def own_wait(a, stage, prev, t):
    if not PWAIT or stage == ST_R: return
    k = {ST_G1: 1, ST_G2: 2, ST_G4: 3}[stage] - (3 if prev else 0)
    a.e(f"s_mul_i32 s54, s60, {2 if 'r' in DP else 3}"); a.e(f"s_add_u32 s54, s54, {k}")
    lds_spin(a, LW + 56, "s54", t, nap=PWAIT)
def flag_try(a, r, ad):
    a.e("s_mov_b64 exec, 1"); a.e(f"buffer_load_dword v{r}, v{ad}, s[56:59], 0 offen {SC}"); a.e("s_mov_b64 exec, -1")
def flag_check(a, r, ad, cnt):
    D = a.lab("fok")
    a.e(f"v_readfirstlane_b32 s53, v{r}"); a.e(f"s_add_u32 s54, s52, {cnt}"); a.e("s_cmp_eq_u32 s53, s54"); a.e(f"s_cbranch_scc1 {D}")
    poll_core(a, r, [ad], 1, cnt=cnt)
    a.e(f"{D}:")

def poll(a, stage, t, prev=False):
    D = a.lab("pdone")
    a.e("s_cmp_lg_u32 s30, 4"); a.e(f"s_cbranch_scc1 {D}")
    own_wait(a, stage, prev, t)
    mask, cnt = flag_addr(a, t + 1, stage, prev)
    poll_core(a, t, [t + 1], mask, depth=PDEPTH, cnt=cnt)
    a.e(f"{D}:")
    if stage != ST_G4: mstamp(a)
    a.e("s_barrier")

def publish(a, stage, nw, t, off=None, wait=0, ctr=None, flag=False):
    D = a.lab("pub")
    mark = PWAIT and off is None and stage in (ST_G1, ST_G2, ST_G4)
    if off is None:
        a.e(f"s_add_u32 s53, s55, {fso(stage)}"); off = 53
        sp = SPLIT.get(stage)
        if sp == "half": a.e("s_lshl_b32 s54, s31, 7"); a.e("s_add_u32 s53, s53, s54")
        if sp == "sign": a.e("s_and_b32 s54, s29, 4"); a.e("s_lshl_b32 s54, s54, 5"); a.e("s_add_u32 s53, s53, s54")
    a.e(f"v_mov_b32 v{t}, 1"); a.e(f"v_mov_b32 v{t+1}, {LW + (ctr if ctr is not None else 4 if nw == 8 else 0)}"); a.e(f"v_mov_b32 v{t+3}, 0")
    a.e("s_mov_b64 exec, 1")
    if wait is not None: a.e(f"s_waitcnt vmcnt({wait})")
    if nw > 1:
        a.e(f"ds_add_rtn_u32 v{t+2}, v{t+1}, v{t}")
        if flag: a.e(f"v_mov_b32 v{t+1}, s52")
        a.e("s_waitcnt lgkmcnt(0)")
        a.e(f"v_readfirstlane_b32 s54, v{t+2}")
        a.e(f"s_and_b32 s54, s54, {nw-1}"); a.e(f"s_cmp_lg_u32 s54, {nw-1}"); a.e(f"s_cbranch_scc1 {D}")
    if flag: a.e(f"buffer_store_dword v{t+1}, v{t+3}, s[56:59], s{off} offen {SC}")
    else: a.e(f"buffer_atomic_add v{t}, v{t+3}, s[56:59], s{off} offen {SC}")
    if stage == ST_R and not flag:
        a.e("s_cmp_lg_u32 s60, 0"); a.e(f"s_cbranch_scc1 {D}")
        a.e("s_lshl_b32 s53, s29, 7"); a.e(f"s_add_u32 s53, s53, {F_CS}")
        a.e(f"buffer_atomic_add v{t}, v{t+3}, s[56:59], s53 offen {SC}")
    if mark: a.e(f"v_mov_b32 v{t+1}, {LW+56}"); a.e(f"ds_add_u32 v{t+1}, v{t}")
    a.e(f"{D}:")
    a.e("s_mov_b64 exec, -1")

def lds_spin(a, addr, target, t, dst=53, nap=False):
    L = a.lab("spin")
    a.e(f"v_mov_b32 v{t}, {addr}")
    a.e(f"{L}:")
    if nap: a.e(f"s_sleep {int(nap)}")
    a.e(f"ds_read_b32 v{t+1}, v{t}"); a.e("s_waitcnt lgkmcnt(0)"); a.e(f"v_readfirstlane_b32 s{dst}, v{t+1}")
    a.e(f"s_cmp_ge_u32 s{dst}, {target}"); a.e(f"s_cbranch_scc0 {L}")
def lds_set(a, addr, val, t):
    a.e(f"v_mov_b32 v{t}, {addr}"); a.e(f"v_mov_b32 v{t+1}, {val}")
    a.e("s_waitcnt lgkmcnt(0)"); a.e(f"ds_write_b32 v{t}, v{t+1}")
def lbar(a, k, t):
    a.e(f"v_mov_b32 v{t}, {LW+8}"); a.e(f"v_mov_b32 v{t+1}, 1")
    a.e("s_waitcnt lgkmcnt(0)")
    a.e("s_mov_b64 exec, 1"); a.e(f"ds_add_u32 v{t}, v{t+1}"); a.e("s_mov_b64 exec, -1")
    lds_spin(a, LW + 8, 4 * k + (2 if PWA else 0), t)

def gelu4(a, X, t, c1, c2):
    P = [(X, t), (X + 2, t + 2)]
    for x, u in P: a.e(f"v_pk_mul_f32 {vr(u,2)}, {vr(x,2)}, {vr(x,2)}")
    for x, u in P: a.e(f"v_pk_fma_f32 {vr(u,2)}, {vr(u,2)}, {vr(c2,2)}, {vr(c1,2)}")
    for x, u in P: a.e(f"v_pk_mul_f32 {vr(u,2)}, {vr(u,2)}, {vr(x,2)}")
    for i in range(4): a.e(f"v_exp_f32 v{t+i}, v{t+i}")
    for x, u in P: a.e(f"v_pk_add_f32 {vr(u,2)}, {vr(u,2)}, 1.0 op_sel_hi:[1,0]")
    for i in range(4): a.e(f"v_rcp_f32 v{t+i}, v{t+i}")
    for x, u in P: a.e(f"v_pk_mul_f32 {vr(x,2)}, {vr(x,2)}, {vr(u,2)}")

W2EARLY = int(os.environ.get("W2EARLY", "1")); QLATE = int(os.environ.get("QLATE", "0"))
TOUCH2 = [(A_Q, 4 * MB)] + ([] if W2EARLY else [(B_W2, 2 * MB)])
CODEPF = int(os.environ.get("CODEPF", "1")); NVOTE = int(os.environ.get("NVOTE", "32")); QUO = int(os.environ.get("QUO", "21")); NSAMP = int(os.environ.get("NSAMP", "2"))
W4POS = os.environ.get("W4POS", "3C")
HSTR = 4160; CHB = 24576; UOFF = 4 * HSTR; US = 96
KVS = 4 * CHB

KT = int(os.environ.get("KT", "1"))
KV = dict(cq=6, tg=7, t=8, ro=9, wo=16, pt=18, kr=22, vv=36, w=44, d=52, hoff=70, tag=76, zz=78)
FAST = int(os.environ.get("FAST", "0"))
def front_first(a):
    cq, tg, t, ro, wo, kr, vv, w = [KV[k] for k in "cq tg t ro wo kr vv w".split()]
    a.e(f"v_and_b32 v{cq}, 31, v0"); a.e(f"v_lshrrev_b32 v{tg}, 5, v0")
    a.e("s_and_b32 s34, s2, 7"); a.e("s_lshr_b32 s35, s2, 3")
    a.e("s_lshl_b32 s36, s35, 17"); a.e("s_lshl_b32 s37, s34, 8"); a.e("s_add_u32 s36, s36, s37")
    a.e(f"v_lshlrev_b32 v{t}, 13, v{tg}"); a.e(f"v_lshl_add_u32 v{t}, v{cq}, 3, v{t}"); a.e(f"v_add_u32 v{ro+3}, s36, v{t}")
    a.e(f"v_add_u32 v{ro+5}, 4096, v{ro+3}")
    a.e("s_waitcnt lgkmcnt(0)")
    for i in range(4): a.e(f"global_load_dwordx2 {vr(kr+2*(i+3),2)}, v{ro+3+(i&2)}, s[8:9] offset:{2048*(i&1)} {NTK}")
    for i in range(4): a.e(f"global_load_dwordx2 {vr(vv+2*i,2)}, v{ro+3+(i&2)}, s[10:11] offset:{2048*(i&1)} {NT}")
def front_loads(a):
    cq, tg, t, ro, wo, kr, vv, w = [KV[k] for k in "cq tg t ro wo kr vv w".split()]
    a_ = a
    if FAST: a = Rec()
    a.e(f"v_and_b32 v{cq}, 31, v0"); a.e(f"v_lshrrev_b32 v{tg}, 5, v0")
    a.e("s_and_b32 s34, s2, 7"); a.e("s_lshr_b32 s35, s2, 3")
    a.e("s_lshl_b32 s36, s35, 17"); a.e("s_lshl_b32 s37, s34, 8"); a.e("s_add_u32 s36, s36, s37")
    a.e(f"v_lshlrev_b32 v{t}, 13, v{tg}"); a.e(f"v_lshl_add_u32 v{t}, v{cq}, 3, v{t}"); a.e(f"v_add_u32 v{ro+3}, s36, v{t}")
    a.e(f"v_add_u32 v{ro+5}, 4096, v{ro+3}")
    a = a_
    a.e(f"s_mov_b32 s18, {4*MB}"); a.e("s_mov_b32 s19, 0x20000"); a.e("s_mov_b32 s22, s18"); a.e("s_mov_b32 s23, s19")
    a.e("s_waitcnt lgkmcnt(0)")
    tag, zz = KV["tag"], KV["zz"]
    a.e("s_mov_b32 s86, 256"); a.e("s_mov_b32 s87, 0x20000"); a.e(f"v_mov_b32 v{zz}, 0")
    a.e("s_lshl_b32 s45, s2, 3"); a.e("s_add_u32 s45, s45, s30"); a.e("s_cmp_lg_u32 s45, 4"); a.e("s_cbranch_scc1 KV_t0")
    a.e("s_getreg_b32 s45, hwreg(HW_REG_XCC_ID, 0, 3)"); a.e("s_lshl_b32 s45, s45, 1")
    a.e("s_lshl_b32 s44, s46, 6"); a.e("s_or_b32 s44, s44, s45"); a.e("s_or_b32 s44, s44, 1"); a.e(f"v_mov_b32 v{tag}, s44"); a.e(f"v_mov_b32 v{tag+1}, 0")
    a.e("s_mov_b64 exec, 1"); a.e(f"buffer_store_dwordx2 {vr(tag,2)}, v{zz}, s[84:87], 0 offen {SC}"); a.e("s_mov_b64 exec, -1")
    a.e("KV_t0:")
    a.e("s_mov_b64 s[16:17], s[8:9]"); a.e("s_mov_b64 s[20:21], s[10:11]")
    for i in range(0 if FAST else 4): a.e(f"buffer_load_dwordx2 {vr(kr+2*(i+3),2)}, v{ro+3+(i&2)}, s[16:19], 0 offen offset:{2048*(i&1)} {NTK}")
    for i in range(0 if FAST else 4): a.e(f"buffer_load_dwordx2 {vr(vv+2*i,2)}, v{ro+3+(i&2)}, s[20:23], 0 offen offset:{2048*(i&1)} {NT}")
    for i in range(3): a.e(f"v_subrev_u32 v{ro+i}, {2048*(3-i)}, v{ro+3}")
    a.e("s_lshl_b32 s37, s34, 10"); a.e(f"v_lshlrev_b32 v{wo}, 5, v{cq}"); a.e(f"v_add_u32 v{wo}, s37, v{wo}")
    a.srd(24, 12, 8192)
    XP = os.environ.get("XP", "g")
    if KT:
        a.e(f"v_and_b32 v{t}, 1, v{tg}"); a.e(f"v_lshl_add_u32 v{wo}, v{t}, 4, v{wo}")
        a.e(f"buffer_load_dwordx4 {vr(w,4)}, v{wo}, s[24:27], 0 offen")
    for i in range(0 if "t" in XP or KT else 2): a.e(f"buffer_load_dwordx4 {vr(w+4*i,4)}, v{wo}, s[24:27], 0 offen offset:{16*i}")
    if "g" in XP:
        a.e("s_cmp_lg_u32 s30, 4"); a.e("s_cbranch_scc1 KV_t2")
        a.e(f"buffer_load_dword v{tag}, v{zz}, s[84:87], 0 offen {SC}")
        a.e("KV_t2:")
    if "h" in XP: return
    if HALO:
        a.e("s_cmp_lg_u32 s30, 0"); a.e("s_cbranch_scc1 KV_h0"); a.e("s_bfm_b64 exec, 32, 0")
    if KT: a.e("s_bfm_b64 exec, 32, 0")
    for i in range(3): a.e(f"buffer_load_dwordx2 {vr(kr+2*i,2)}, v{ro+i}, s[16:19], 0 offen {NTK}")
    if KT: a.e("s_mov_b64 exec, -1")
    if HALO: a.e("s_mov_b64 exec, -1"); a.e("KV_h0:")

def probe_base(a):
    assert NVOTE <= 64
    a.e("s_and_b32 s42, s2, 7"); a.e("s_lshl_b32 s42, s42, 10"); a.e("s_lshr_b32 s43, s2, 3"); a.e("s_lshl_b32 s43, s43, 14"); a.e("s_add_u32 s42, s42, s43")
    a.e(f"s_add_u32 s42, s42, {LB0 + oSM + 131072}")
PWA = int(os.environ.get("PWA", "1"))
def front_arrive(a, wait, conv=False):
    D = a.lab("fa"); t = 6
    if PWA:
        if conv:
            a.e("s_mov_b64 exec, 0xf"); a.e("s_waitcnt vmcnt(0)"); a.e(f"buffer_atomic_add v{t+1}, v{t}, s[56:59], s45 offen {SC}"); a.e("s_mov_b64 exec, -1")
        elif wait:
            a.e(f"v_mov_b32 v{t}, 1"); a.e(f"v_mov_b32 v{t+1}, {LW+8}"); a.e("s_mov_b64 exec, 1"); a.e("s_waitcnt vmcnt(0)"); a.e(f"ds_add_u32 v{t+1}, v{t}"); a.e("s_mov_b64 exec, -1")
        return
    a.e("s_and_b32 s36, s2, 7"); a.e("s_lshl_b32 s36, s36, 7"); a.e(f"s_add_u32 s36, s36, {F_FRONT}")
    a.e(f"v_mov_b32 v{t}, 1"); a.e(f"v_mov_b32 v{t+1}, {LW+4}"); a.e(f"v_lshlrev_b32 v{t+3}, 10, v1")
    a.e("s_mov_b64 exec, 1")
    if wait: a.e("s_waitcnt vmcnt(0)")
    a.e("s_waitcnt lgkmcnt(0)")
    a.e(f"ds_add_rtn_u32 v{t+2}, v{t+1}, v{t}")
    a.e("s_waitcnt lgkmcnt(0)")
    a.e(f"v_readfirstlane_b32 s54, v{t+2}")
    a.e("s_cmp_lg_u32 s54, 15"); a.e(f"s_cbranch_scc1 {D}")
    a.e("s_mov_b64 exec, 0xffff")
    a.e(f"buffer_atomic_add v{t}, v{t+3}, s[56:59], s36 offen {SC}")
    a.e(f"{D}:"); a.e("s_mov_b64 exec, -1")
XR = int(os.environ.get("XR", "1"))
def roles(a):
    if XR: a.e("s_bfe_u32 s32, s52, 0x30001"); a.e("s_add_u32 s32, s32, s2"); a.e("s_and_b32 s32, s32, 7")
    else: a.e("s_and_b32 s32, s2, 7")
    a.e("s_lshr_b32 s33, s2, 3")
    a.e("s_and_b32 s28, s32, 2"); a.e("s_lshr_b32 s53, s32, 2"); a.e("s_or_b32 s28, s28, s53")
    a.e("s_lshl_b32 s28, s28, 2"); a.e("s_and_b32 s53, s33, 3"); a.e("s_add_u32 s28, s28, s53")
    a.e("s_and_b32 s31, s32, 1"); a.e("s_lshr_b32 s33, s33, 2")
    a.e("s_lshl_b32 s29, s31, 3"); a.e("s_add_u32 s29, s29, s33")
    a.e(f"s_xor_b32 s99, s29, {os.environ.get('G1X', '1')}")
    r_addr(a)
def front_a(a):
    cq, tg, t, pt, kr, vv, w, d, hoff, tag, zz = [KV[k] for k in "cq tg t pt kr vv w d hoff tag zz".split()]
    v = VA(80)
    a.e("s_and_b32 s41, s30, 3"); chan_setup(a, 41)
    a.e("s_lshr_b32 s36, s39, 1"); a.e("s_lshl_b32 s36, s36, 2"); a.e("s_load_dword s98, s[96:97], s36")
    a.e("s_lshl_b32 s36, s39, 12")
    a.e("s_add_u32 s12, s14, s36"); a.e("s_addc_u32 s13, s15, 0"); a.e("s_mov_b32 s14, 4096"); a.e("s_mov_b32 s15, 0x20000")
    a.e("s_lshr_b32 s45, s30, 2"); a.e("s_lshl_b32 s45, s45, 11")
    for it in range(3):
        if it < 2: a.e(f"s_add_u32 s36, s45, {(1024*it - 64) & 0xffffffff:#x}")
        else: a.e(f"s_mov_b32 s36, {4096 - 64}")
        a.e(f"v_add_u32 v{hoff+2*it}, s36, v2"); a.e(f"v_add_u32 v{hoff+2*it+1}, 16, v{hoff+2*it}")
    a.e("s_and_b32 s34, s2, 7"); a.e("s_lshr_b32 s35, s2, 3")
    z = v(4, 4); la = v(); t2 = v(); hw = v()
    for i in range(4): a.e(f"v_mov_b32 v{z+i}, 0")
    a.e(f"v_add_u32 v{hw}, s40, v2")
    a.e(f"ds_write_b128 v{hw}, {vr(z,4)} offset:{UOFF+64*US}")
    a.e(f"s_bfm_b64 exec, {(15*US - 1024)//16}, 0"); a.e(f"ds_write_b128 v{hw}, {vr(z,4)} offset:{UOFF+64*US+1024}"); a.e("s_mov_b64 exec, -1")
    a.e(f"v_lshlrev_b32 v{t}, 2, v{tg}"); a.e(f"v_sub_u32 v{t}, 60, v{t}")
    a.e(f"v_lshrrev_b32 v{t2}, 3, v{t}"); a.e(f"v_bfe_u32 v{la}, v{cq}, 1, 3"); a.e(f"v_xor_b32 v{t2}, v{t2}, v{la}"); a.e(f"v_lshlrev_b32 v{t2}, 4, v{t2}")
    a.e(f"v_and_b32 v{t}, 7, v{t}"); a.e(f"v_lshl_add_u32 v{t2}, v{t}, 1, v{t2}")
    a.e(f"v_lshl_add_u32 v{la}, v{cq}, 9, v{t2}"); a.e(f"v_add_u32 v{la}, {KVS}, v{la}")
    wf = v(8, 2); kf = v(14, 2); vf = v(8, 2); ks = v(8, 2); pr = v(8, 2); o = v(8, 4); tm = v(4, 1)
    a.e("s_waitcnt vmcnt(0)")
    if HALO:
        for i in range(3): a.e(f"buffer_load_dwordx2 {vr(kr+2*i,2)}, v{KV['ro']+i}, s[16:19], 0 offen {NTK}")
        if HALO == 1: a.e("s_waitcnt vmcnt(0)")
    a.e("s_cmp_lg_u32 s30, 4"); a.e("s_cbranch_scc1 KV_t1")
    if "g" not in os.environ.get("XP", "g"): a.e(f"buffer_load_dword v{tag}, v{zz}, s[84:87], 0 offen {SC}")
    a.e("KV_t1:")
    for it in range(3):
        a.e(f"buffer_load_dwordx4 {vr(d+6*it,4)}, v{hoff+2*it}, s[12:15], 0 offen {NTH}")
        a.e(f"buffer_load_dwordx2 {vr(d+6*it+4,2)}, v{hoff+2*it+1}, s[12:15], 0 offen {NTH}")
    if HALO == 2: a.e("s_waitcnt vmcnt(10)")
    mstamp(a)
    if KT:
        for e in range(4): a.e(f"v_mov_b32 v{w+4+e}, v{w+e}")
        for e in range(6): a.e(f"v_mov_b32 v{pr+e}, v{kr+8+e}")
        for e in range(4): a.e(f"v_permlane32_swap_b32 v{w+e}, v{w+4+e}")
        for e in range(6): a.e(f"v_permlane32_swap_b32 v{kr+e}, v{pr+e}")
    for dd in range(2):
        for c in range(2):
            unpack(a, wf + 0 + c, wf + 2 + c, w + 2 * (2 * dd + c)); unpack(a, wf + 4 + c, wf + 6 + c, w + 2 * (2 * dd + c) + 1)
        for i in range(7): unpack(a, kf + 2 * i, kf + 2 * i + 1, kr + 2 * i + dd)
        for i in range(4): unpack(a, vf + 2 * i, vf + 2 * i + 1, vv + 2 * i + dd)
        def rnd(base):
            for i in range(4): a.e(f"v_cvt_pk_bf16_f32 v{tm+i}, v{base+2*i}, v{base+2*i+1}")
            for i in range(4): unpack(a, base + 2 * i, base + 2 * i + 1, tm + i)
        for i in range(4): a.e(f"v_pk_mul_f32 {vr(ks+2*i,2)}, {vr(kf+2*i,2)}, {vr(wf+6,2)}")
        if RND: rnd(ks)
        for j in range(1, 4):
            if not RND:
                for i in range(4): a.e(f"v_pk_fma_f32 {vr(ks+2*i,2)}, {vr(kf+2*(i+j),2)}, {vr(wf+6-2*j,2)}, {vr(ks+2*i,2)}")
                continue
            for i in range(4): a.e(f"v_pk_mul_f32 {vr(pr+2*i,2)}, {vr(kf+2*(i+j),2)}, {vr(wf+6-2*j,2)}")
            rnd(pr)
            for i in range(4): a.e(f"v_pk_add_f32 {vr(ks+2*i,2)}, {vr(ks+2*i,2)}, {vr(pr+2*i,2)}")
            rnd(ks)
        for i in range(4): a.e(f"v_pk_mul_f32 {vr(ks+2*i,2)}, {vr(ks+2*i,2)}, {vr(vf+2*i,2)}")
        for c in range(2):
            e = 2 * dd + c
            a.e(f"v_cvt_pk_bf16_f32 v{o+2*e}, v{ks+6+c}, v{ks+4+c}"); a.e(f"v_cvt_pk_bf16_f32 v{o+2*e+1}, v{ks+2+c}, v{ks+c}")
            a.e(f"ds_write_b64 v{la}, {vr(o+2*e,2)} offset:{e*128}")
    a.e("s_cmp_lg_u32 s30, 4"); a.e("s_cbranch_scc1 HB_2")
    a.e(f"v_add_u32 v{pt}, {LW}, v3"); a.e(f"ds_write_b32 v{pt}, v{zz}")
    a.e("s_mov_b32 s53, 0")
    a.e("s_waitcnt vmcnt(6)")
    a.e("HB_p:")
    a.e(f"v_readfirstlane_b32 s52, v{tag}"); a.e("s_cmp_eq_u32 s52, 0"); a.e("s_cbranch_scc1 HB_r")
    a.e("s_cmp_ge_u32 s53, 60"); a.e("s_cbranch_scc1 HB_q")
    a.e("s_add_u32 s54, s46, 8192"); a.e("s_lshl_b32 s54, s54, 6"); a.e("s_sub_u32 s54, s54, s52"); a.e(f"s_cmp_lt_u32 s54, {12288*64}"); a.e("s_cbranch_scc1 HB_q")
    a.e("HB_r:")
    a.e(f"buffer_load_dword v{tag}, v{zz}, s[84:87], 0 offen {SC}"); a.e("s_waitcnt vmcnt(0)")
    a.e("s_add_u32 s53, s53, 1"); a.e("s_cmp_lt_u32 s53, s61"); a.e("s_cbranch_scc1 HB_p")
    a.e("s_mov_b32 s52, 1"); a.e("s_mov_b32 s61, 0")
    a.e("HB_q:")
    lds_set(a, LW + 12, "s52", pt)
    a.e("HB_2:")
    a.srd(16, 4, 8 * GSTR, off=LB0 + oX3)
    ra = v(); go = v(); ob = v(8, 4)
    a.e(f"v_lshrrev_b32 v{t}, 3, v0"); a.e(f"v_and_b32 v{t2}, 7, v0")
    a.e(f"v_lshlrev_b32 v{go}, 12, v{t}"); a.e(f"v_lshl_add_u32 v{go}, v{t2}, 4, v{go}")
    a.e("s_lshl_b32 s36, s34, 24"); a.e("s_sub_u32 s37, 31, s35"); a.e("s_lshl_b32 s37, s37, 7"); a.e("s_add_u32 s36, s36, s37")
    a.e(f"s_add_u32 s37, s36, {64*4096}")
    a.e(f"v_lshrrev_b32 v{ra}, 3, v{t}"); a.e(f"v_xor_b32 v{ra}, v{ra}, v{t2}"); a.e(f"v_lshlrev_b32 v{ra}, 4, v{ra}"); a.e(f"v_lshl_add_u32 v{ra}, v{t}, 7, v{ra}")
    a.e(f"v_add_u32 v{ra}, {KVS}, v{ra}"); a.e(f"v_mov_b32 v{pt}, {LW+12}")
    a.e("s_waitcnt lgkmcnt(0)"); a.e("s_barrier")
    for i in range(2): a.e(f"ds_read_b128 {vr(ob+4*i,4)}, v{ra} offset:{i*8192}")
    a.e(f"ds_read_b32 v{pt+1}, v{pt}")
    for i in range(2):
        a.e(f"s_waitcnt lgkmcnt({2-i})")
        if "1" in DP: mark(a, ob + 4 * i, 1)
        a.e(f"buffer_store_dwordx4 {vr(ob+4*i,4)}, v{go}, s[16:19], s{36+i} offen {SC}")
    a.e("s_waitcnt lgkmcnt(0)"); a.e(f"v_readfirstlane_b32 s52, v{pt+1}")
    a.e("s_cmp_lg_u32 s30, 0"); a.e("s_cbranch_scc1 KV_ni"); a.e("s_cmp_ge_u32 s35, 16"); a.e("s_cbranch_scc1 KV_ni")
    a.e(f"v_mov_b32 v{t}, s52")
    a.e("s_lshl_b32 s37, s34, 7"); a.e("s_lshl_b32 s53, s35, 10"); a.e("s_add_u32 s37, s37, s53"); a.e(f"s_add_u32 s37, s37, {F_FRONT}")
    a.e("s_mov_b64 exec, 1"); a.e(f"buffer_store_dword v{t}, v{zz}, s[56:59], s37 offen {SC}"); a.e("s_mov_b64 exec, -1")
    a.e("KV_ni:")
    a.e(f"s_cmp_ge_u32 s2, {NVOTE}"); a.e("s_cbranch_scc1 KV_n3"); a.e("s_cmp_lg_u32 s30, 5"); a.e("s_cbranch_scc1 KV_n3")
    probe_base(a)
    a.e(f"v_lshrrev_b32 v{t}, 5, v1"); a.e(f"v_mul_u32_u24 v{t}, {8192 - 512}, v{t}"); a.e(f"v_add_u32 v{t}, v{t}, v2")
    a.e(f"buffer_store_dwordx4 {vr(z,4)}, v{t}, s[56:59], s42 offen {SC}")
    a.e("KV_n3:")
    roles(a)
    def pubk():
        a.e("s_lshl_b32 s36, s34, 5"); a.e("s_add_u32 s36, s36, s35"); a.e("s_lshl_b32 s36, s36, 7"); a.e(f"s_add_u32 s36, s36, {F_KVT}")
        mstamp(a)
        QL = int(os.environ.get("QL", "3"))
        if QL == 2: load_q(a)
        publish(a, 0, 8, pt, off=36, flag=True, wait=4 if QL == 2 else 0)
        if QL == 3: load_q(a)
        mstamp(a)
    HF = int(os.environ.get("HF", "0"))
    if not HF: pubk()
    else: a.e("s_waitcnt vmcnt(2)")
    cc = wf; hw2 = v()
    a.e(f"v_add_u32 v{hw2}, s45, v{hw}")
    for it in range(3):
        D = d + 6 * it; c0 = cc + 12 * it; c1 = c0 + 4; c2 = c0 + 8
        for k in range(4):
            a.e(f"v_alignbit_b32 v{c0+k}, v{D+k+1}, v{D+k}, 16")
            a.e(f"v_mov_b32 v{c1+k}, v{D+k+1}")
            a.e(f"v_alignbit_b32 v{c2+k}, v{D+k+2}, v{D+k+1}, 16")
        if it == 2: a.e("s_mov_b64 exec, 0xf")
        ad, o0 = (hw2, 1024 * it) if it < 2 else (hw, 4096)
        a.e(f"ds_write_b128 v{ad}, {vr(c0,4)} offset:{o0}")
        a.e(f"ds_write_b128 v{ad}, {vr(c1,4)} offset:{HSTR+o0}")
        a.e(f"ds_write_b128 v{ad}, {vr(c2,4)} offset:{2*HSTR+o0}")
        a.e(f"ds_write_b128 v{ad}, {vr(D+2,4)} offset:{3*HSTR+o0}")
        if it == 2: a.e("s_mov_b64 exec, -1")
    if HF: pubk()
    assert v.hi <= 176
    a.e("s_waitcnt lgkmcnt(0)"); a.e("s_barrier")
def load_q(a):
    a.srd(8, 6, 4 * MB)
    for j in range(4): a.e(f"buffer_load_dwordx2 {vr(RXA+2*j,2)}, v{RRO}, s[8:11], 0 offen offset:{128*(j>>1) + 32*(j&1)} {os.environ.get('NTQ', NTH)}")
def chan_setup(a, wsg):
    a.e("s_and_b32 s38, s2, 7"); a.e("s_lshl_b32 s38, s38, 5"); a.e("s_lshr_b32 s39, s2, 3"); a.e("s_add_u32 s38, s38, s39")
    a.e("s_lshl_b32 s39, s38, 2"); a.e(f"s_add_u32 s39, s39, s{wsg}")
    a.e(f"s_mul_i32 s40, s{wsg}, {CHB}")

def touch(a, ka, nbytes, r):
    n = nbytes // 1024 // 512
    a.e(f"s_load_dwordx2 s[48:49], s[0:1], {ka}")
    a.e("s_lshl_b32 s45, s2, 1"); a.e("s_and_b32 s50, s30, 1"); a.e("s_add_u32 s45, s45, s50"); a.e(f"s_mul_i32 s45, s45, {n*1024}")
    a.e(f"s_mov_b32 s50, {nbytes}"); a.e("s_mov_b32 s51, 0x20000")
    a.e("s_waitcnt lgkmcnt(0)")
    for i in range(n):
        if i and i % 4 == 0: a.e("s_add_u32 s45, s45, 4096")
        a.e(f"buffer_load_dwordx4 {vr(r,4)}, v2, s[48:51], s45 offen offset:{(i&3)*1024}")
    return n

def w2_warm(a):
    a.e("s_mov_b64 s[48:49], s[70:71]"); a.e(f"s_mov_b32 s50, {2*MB}"); a.e("s_mov_b32 s51, 0x20000")
    a.e("s_and_b32 s45, s28, 3"); a.e("s_lshl_b32 s45, s45, 1"); a.e("s_and_b32 s46, s30, 1"); a.e("s_add_u32 s45, s45, s46"); a.e("s_lshl_b32 s45, s45, 18")
    a.e("s_lshl_b32 s46, s29, 7"); a.e("s_add_u32 s45, s45, s46"); a.e("v_lshlrev_b32 v245, 11, v1")
    a.e("buffer_load_dword v244, v245, s[48:51], s45 offen"); a.e(f"s_add_u32 s45, s45, {64*2048}"); a.e("buffer_load_dword v246, v245, s[48:51], s45 offen")
def cs_load(a, which, slot):
    w_setup(a, which, pre=False)
    a.e(f"s_mov_b32 s42, {slot}"); a.e("s_mov_b32 s44, s28")
    w_issue(a, which, direct=True)
CSEL, CFR, CAD, CACC, CSO_ = 16, 72, 144, 156, 164
def cs_prep(a, S1, S3):
    a.e(f"v_and_b32 v{CSO_}, 15, v1"); a.e(f"v_mov_b32 v{CSO_+1}, 0x3f803f80")
    for T in range(14):
        a.e(f"v_cmp_eq_u32 vcc, {T}, v{CSO_}")
        for e in range(4): a.e(f"v_cndmask_b32 v{CSEL+4*T+e}, 0, v{CSO_+1}, vcc")
    pos = {}
    for which, slot, r0, halves in ((1, S1, CAD, 1), (3, S3, CAD + 4, 2)):
        c = CFG[which]
        for hf in range(halves):
            a.e(f"s_mov_b32 s35, {hf}")
            nr, pos[which] = w_bases(a, which, r0 + 2 * hf, 35, c["TN16"] // halves, WV + 8, WV + 9)
            a.e("s_and_b32 s35, s30, 1"); a.e(f"s_mul_i32 s35, s35, {32*c['RB']}"); a.e(f"s_add_u32 s35, s35, {slot}")
            for i in range(nr): a.e(f"v_add_u32 v{r0+2*hf+i}, s35, v{r0+2*hf+i}")
    for i in range(8): a.e(f"v_mov_b32 v{CACC+i}, 0")
    a.e(f"v_lshrrev_b32 v{CSO_+2}, 4, v1"); a.e(f"v_lshlrev_b32 v{CSO_+2}, 4, v{CSO_+2}"); a.e(f"v_lshl_add_u32 v{CSO_+2}, v{CSO_}, 6, v{CSO_+2}")
    a.e(f"v_mov_b32 v{CSO_+1}, 0x7f000000")
    for k, n in ((3, 4), (4, 14)):
        a.e(f"v_cmp_gt_u32 vcc, {n}, v{CSO_}"); a.e(f"v_cndmask_b32 v{CSO_+k}, v{CSO_+1}, v{CSO_+2}, vcc")
    return pos
def cs_sum(a, which, pos):
    c = CFG[which]; ntl = c["TN16"]; N = c["LDW"] // 2
    F = CFR + (0 if which == 3 else 56); A = CACC + (0 if which == 3 else 4)
    for T in range(ntl):
        hf, nt = (T // 7, T % 7) if which == 3 else (0, T)
        for h in range(2):
            r, imm = pos[which](nt, 0, h)
            a.e(f"ds_read_b64_tr_b16 {vr(F+4*T+2*h,2)}, v{(CAD + 4 if which == 3 else CAD) + 2*hf + r} offset:{imm}")
    a.srd(20, 4, 32 * N * 4, off=CSP[which])
    a.e("s_lshl_b32 s35, s28, 1"); a.e("s_and_b32 s36, s30, 1"); a.e("s_add_u32 s35, s35, s36"); a.e(f"s_mul_i32 s35, s35, {N*4}")
    a.e(f"s_mul_i32 s36, s29, {ntl*64}"); a.e("s_add_u32 s35, s35, s36")
    a.e("s_waitcnt lgkmcnt(0)")
    if CSPRIO == 2: a.e("s_setprio 1")
    for T in range(ntl): a.e(f"v_mfma_f32_16x16x32_bf16 {vr(A,4)}, {vr(F+4*T,4)}, {vr(CSEL+4*T,4)}, {vr(A,4)}")
    if CSPRIO == 2: a.e("s_setprio 0")
    a.e(f"buffer_store_dwordx4 {vr(A,4)}, v{CSO_ + (4 if which == 3 else 3)}, s[20:23], s35 offen {SC}")

NOCS3 = int(os.environ.get("NOCS3", "0")); STO = os.environ.get("STOUCH", "")
def stouch(a, which, gran, nw):
    X = a.lab("st"); L = a.lab("sl"); n = 28672 // nw
    a.e("s_cmp_lg_u32 s60, 0"); a.e(f"s_cbranch_scc1 {X}")
    a.e(f"s_mul_i32 s36, s2, 28672"); a.e(f"s_and_b32 s37, s30, {nw-1}"); a.e(f"s_mul_i32 s37, s37, {n}"); a.e("s_add_u32 s36, s36, s37")
    a.e(f"s_add_u32 s34, s{66+2*which}, s36"); a.e(f"s_addc_u32 s35, s{67+2*which}, 0"); a.e("s_mov_b32 s36, 0")
    a.e(f"{L}:")
    for i in range(14): a.e(f"s_load_dword s37, s[34:35], {i*gran}")
    a.e(f"s_add_u32 s34, s34, {14*gran}"); a.e("s_addc_u32 s35, s35, 0"); a.e("s_add_u32 s36, s36, 1"); a.e(f"s_cmp_lt_u32 s36, {n // (14*gran)}"); a.e(f"s_cbranch_scc1 {L}")
    a.e("s_waitcnt lgkmcnt(0)")
    a.e(f"{X}:")
SB = eval(os.environ.get("SB", "(0,0,0)"))
SG = eval(os.environ.get("SG", "(0,0,0,0)"))
def sg(a, n):
    if not n: return
    X = a.lab("st"); L = a.lab("sl")
    a.e("s_cmp_lg_u32 s60, 0"); a.e(f"s_cbranch_scc1 {X}"); a.e("s_mov_b32 s36, 0"); a.e(f"{L}:"); sb(a, 14)
    a.e("s_add_u32 s36, s36, 1"); a.e(f"s_cmp_lt_u32 s36, {n}"); a.e(f"s_cbranch_scc1 {L}"); a.e("s_waitcnt lgkmcnt(0)"); a.e(f"{X}:"); mstamp(a)
def sb_init(a):
    nw = 2 if sum(SG) else 4
    a.e(f"s_mul_i32 s36, s2, 28672"); a.e(f"s_and_b32 s37, s30, {nw-1}"); a.e(f"s_mul_i32 s37, s37, {28672//nw}"); a.e("s_add_u32 s36, s36, s37")
    SW = 66 + 2 * int(os.environ.get("SGW", "3"))
    a.e(f"s_add_u32 s90, s{SW}, s36"); a.e(f"s_addc_u32 s91, s{SW+1}, 0")
def sb(a, n):
    for i in range(n): a.e(f"s_load_dword s101, s[90:91], {i*64}")
    if n: a.e(f"s_add_u32 s90, s90, {n*64}"); a.e("s_addc_u32 s91, s91, 0")
PUTE = int(os.environ.get("PUTE", "1"))
def front_b(a):
    pt, dm = 6, 20
    vd = 12; VG = int(os.environ.get("VG", "0")); VE = int(os.environ.get("VE", "1"))
    def vote():
        a.e(f"s_cmp_ge_u32 s2, {NVOTE}"); a.e("s_cbranch_scc1 FB_np"); a.e("s_cmp_lg_u32 s30, 5"); a.e("s_cbranch_scc1 FB_np")
        probe_base(a); a.e(f"v_mov_b32 v{vd+2}, 0")
        if os.environ.get("SPR", "1") == "1":
            a.e("s_mov_b64 exec, 1"); a.e("s_mov_b32 s46, -1"); a.e("s_mov_b32 s47, -1")
            a.e("s_add_u32 s48, s4, s42"); a.e("s_addc_u32 s49, s5, 0")
            a.e("s_load_dword s101, s[48:49], 384"); a.e("s_waitcnt lgkmcnt(0)"); a.e("s_memtime s[34:35]"); a.e("s_waitcnt lgkmcnt(0)")
            for k in range(2 * NSAMP):
                p_, q_ = (34, 36) if k % 2 == 0 else (36, 34)
                a.e(f"s_load_dword s101, s[48:49], {(k & 1) * 8192 + (k >> 1) * 128}"); a.e("s_waitcnt lgkmcnt(0)"); a.e(f"s_memtime s[{q_}:{q_+1}]"); a.e("s_waitcnt lgkmcnt(0)")
                a.e(f"s_sub_u32 s43, s{q_}, s{p_}"); a.e(f"s_min_u32 s{46+(k&1)}, s{46+(k&1)}, s43")
        else:
            a.e("s_mov_b64 exec, 1"); a.e("s_mov_b32 s46, -1"); a.e("s_mov_b32 s47, -1"); a.e("s_mov_b32 s43, 0")
            a.e("FB_ml:")
            for i in range(2):
                a.e(f"s_add_u32 s45, s42, {i * 8192}")
                a.e("s_memtime s[34:35]"); a.e("s_waitcnt lgkmcnt(0)")
                a.e(f"buffer_load_dword v{vd+1}, v{vd+2}, s[56:59], s45 offen {SC}"); a.e("s_waitcnt vmcnt(0)")
                a.e("s_memtime s[36:37]"); a.e("s_waitcnt lgkmcnt(0)")
                a.e("s_sub_u32 s36, s36, s34"); a.e(f"s_min_u32 s{46+i}, s{46+i}, s36")
            a.e("s_add_u32 s42, s42, 128"); a.e("s_add_u32 s43, s43, 1"); a.e(f"s_cmp_lt_u32 s43, {NSAMP}"); a.e("s_cbranch_scc1 FB_ml")
        a.e("s_cmp_lt_u32 s47, s46"); a.e("s_cselect_b32 s45, 1, 0")
        a.e("s_lshr_b32 s46, s28, 2"); a.e("s_xor_b32 s45, s45, s46"); a.e("s_and_b32 s45, s45, 1"); a.e("s_lshl_b32 s45, s45, 8")
        a.e("s_or_b32 s43, s45, 1"); a.e(f"v_mov_b32 v{vd}, s43")
        a.e(f"buffer_atomic_add v{vd}, v{vd+2}, s[84:87], 0 offen offset:4 sc0 {SC}"); a.e("s_waitcnt vmcnt(0)")
        a.e(f"v_readfirstlane_b32 s36, v{vd}"); a.e("s_add_u32 s36, s36, s43"); a.e("s_and_b32 s37, s36, 255"); a.e(f"s_cmp_lg_u32 s37, {QUO}"); a.e("s_cbranch_scc1 FB_np")
        a.e("s_lshr_b32 s36, s36, 8"); a.e("s_lshl_b32 s36, s36, 1"); a.e("s_add_u32 s36, s36, s52"); a.e("s_bfm_b64 exec, 32, 0")
        a.e(f"v_mov_b32 v{vd}, s36"); a.e(f"v_lshlrev_b32 v{vd+1}, 7, v1"); a.e(f"s_mov_b32 s36, {F_RES}"); a.e(f"buffer_store_dword v{vd}, v{vd+1}, s[56:59], s36 offen {SC}")
        a.e("FB_np:")
        a.e("s_mov_b64 exec, -1")
        if VG:
            a.e("s_cmp_lg_u32 s30, 5"); a.e("s_cbranch_scc1 FB_ng")
            a.e(f"v_mov_b32 v{pt}, {LW+20}"); a.e(f"v_mov_b32 v{pt+1}, 1"); a.e("s_mov_b64 exec, 1"); a.e(f"ds_add_u32 v{pt}, v{pt+1}"); a.e("s_mov_b64 exec, -1")
            a.e("FB_ng:")
    if VE: vote()
    PZE = int(os.environ.get("PZE", "0"))
    if PZE:
        a.srd(20, 4, 32 * MB, off=216 * MB)
        for i in range(4): a.e(f"v_mov_b32 v{216+i}, -1")
        a.e("s_lshl_b32 s45, s2, 2"); a.e("s_and_b32 s50, s30, 3"); a.e("s_add_u32 s45, s45, s50"); a.e(f"s_mul_i32 s45, s45, {PZE*1024}")
        for i in range(PZE):
            a.e(f"buffer_store_dwordx4 v[216:219], v2, s[20:23], s45 offen {SC}"); a.e("s_add_u32 s45, s45, 1024")
    if TAB: tab_load(a)
    TE = int(os.environ.get("TE", "0"))
    if TE:
        a.e("s_cmp_ge_u32 s30, 6"); a.e("s_cbranch_scc1 FB_t1"); touch(a, B_W2, 2 * MB, dm); a.e("s_branch FB_t2"); a.e("FB_t1:"); touch(a, B_W1, 2 * MB, 200); a.e("FB_t2:")
    w_lanes(a)
    a.e("s_cmp_ge_u32 s30, 6"); a.e("s_cbranch_scc1 FB_cs")
    if not VE: vote()
    mstamp(a)
    a.e("s_cmp_lg_u32 s30, 4"); a.e("s_cbranch_scc1 FB_ni")
    a.e(f"v_mov_b32 v{vd}, s52")
    group_off(a, 37, 28); a.e("s_andn2_b32 s37, s37, 0x2000"); a.e("s_lshl_b32 s53, s29, 7"); a.e("s_add_u32 s37, s37, s53"); a.e(f"s_add_u32 s37, s37, {oSM}")
    a.e(f"v_and_b32 v{vd+1}, 1, v1"); a.e(f"v_lshlrev_b32 v{vd+1}, 13, v{vd+1}"); a.e(f"v_lshrrev_b32 v{vd+2}, 1, v1"); a.e(f"v_lshl_add_u32 v{vd+1}, v{vd+2}, 22, v{vd+1}")
    a.e("s_mov_b64 exec, 0xf"); a.e(f"buffer_store_dword v{vd}, v{vd+1}, s[56:59], s37 offen {SC}")
    a.e("s_cmp_lg_u32 s28, 0"); a.e("s_cbranch_scc1 FB_n2")
    a.e(f"s_add_u32 s37, s53, {F_CS}"); a.e("s_mov_b64 exec, 1"); a.e(f"buffer_store_dword v{vd}, v{vd+1}, s[56:59], s37 offen {SC}")
    a.e("FB_n2:")
    a.e("s_mov_b64 exec, -1")
    a.e("FB_ni:")
    TME = int(os.environ.get("TME", "1"))
    if TME: a.e("s_waitcnt vmcnt(0)"); tab_make(a, 0)
    UG = (LW + 20, 4 + VG) if os.environ.get("UG", "1") == "1" else (LW + 16, 1)
    lds_spin(a, *UG, pt, nap=2)
    mstamp(a)
    if TLBW:
        a.e("s_cmp_lg_u32 s30, 5"); a.e("s_cbranch_scc1 FB_nt")
        a.e(f"v_and_b32 v{vd}, 7, v1"); a.e(f"v_lshlrev_b32 v{vd}, 24, v{vd}"); a.e(f"v_lshrrev_b32 v{vd+1}, 3, v1"); a.e(f"v_lshl_add_u32 v{vd}, v{vd+1}, 22, v{vd}")
        a.e("s_lshl_b32 s36, s2, 7"); a.e(f"s_add_u32 s36, s36, {LB0 + 2 * MB - 65536}")
        a.e(f"s_bfm_b64 exec, {8 * TLBW}, 0"); a.e(f"buffer_load_dword v{dm+4}, v{vd}, s[56:59], s36 offen {SC}"); a.e("s_mov_b64 exec, -1")
        a.e("FB_nt:")
    if os.environ.get("W2T", "1") == "2": lds_spin(a, LW + 24, 2, pt, nap=4)
    if os.environ.get("W2T", "1") == "3":
        w_srd(a, 2); a.e("s_lshl_b32 s39, s28, 1"); a.e("s_and_b32 s36, s30, 1"); a.e("s_add_u32 s39, s39, s36"); a.e("s_lshl_b32 s39, s39, 16"); a.e("s_lshl_b32 s36, s29, 7"); a.e("s_add_u32 s39, s39, s36")
        for i in range(4): a.e(f"buffer_load_dwordx4 {vr(dm,4)}, v{WVB[2]}, s[12:15], s39 offen"); a.e("s_add_u32 s39, s39, 16384")
    elif os.environ.get("W2T", "1") != "0" and not TE: touch(a, B_W2, 2 * MB, dm)
    QL = int(os.environ.get("QL", "3"))
    if not QL: load_q(a)
    if W4POS == "F": lds_spin(a, LW + 24, 2, pt, nap=4); a.e("s_waitcnt vmcnt(0)")
    if W4POS in ("F", "F0"): touch(a, B_W4, 7 * MB, dm)
    PZF = int(os.environ.get("PZF", "0"))
    if PZF:
        a.srd(20, 4, 32 * MB, off=216 * MB)
        for i in range(4): a.e(f"v_mov_b32 v{216+i}, -1")
        a.e("s_lshl_b32 s45, s2, 1"); a.e("s_and_b32 s50, s30, 1"); a.e("s_add_u32 s45, s45, s50"); a.e(f"s_mul_i32 s45, s45, {PZF*1024}")
        for i in range(PZF):
            a.e(f"buffer_store_dwordx4 v[216:219], v2, s[20:23], s45 offen {SC}"); a.e("s_add_u32 s45, s45, 1024")
            if os.environ.get("PZP"): a.e(f"s_waitcnt vmcnt({os.environ['PZP']})")
    front_arrive(a, True)
    if not TME: tab_make(a, 0)
    PKW = int(os.environ.get("PKW", "2")); PKP = int(os.environ.get("PKP", "8"))
    W1P = int(os.environ.get("W1P", "8")); FO = os.environ.get("FO", "1pd"); FO2 = os.environ.get("FO2", "1pd")
    R1 = [176, 188, 192] + [200 + 4 * i for i in range(7)] + [16 + 4 * i for i in range(8)]
    def w1_regs(a):
        w_srd(a, 1)
        a.e("s_and_b32 s35, s30, 3"); a.e(f"s_mul_i32 s35, s35, {18*16384}"); a.e("s_lshl_b32 s39, s99, 7"); a.e("s_add_u32 s39, s39, s35")
        for q in range(18):
            a.e(f"buffer_load_dwordx4 {vr(R1[q],4)}, v{WVB[1]}, s[12:15], s39 offen"); a.e("s_add_u32 s39, s39, 16384")
            if q % 4 == 3: sb(a, SB[1])
            if PKP and q % 4 == 3: a.e(f"s_waitcnt vmcnt({PKP})")
        if QL == 1: load_q(a)
    def w1_put(a):
        a.e("s_and_b32 s35, s30, 3"); a.e(f"s_mul_i32 s35, s35, {18*1024}"); a.e("v_add_u32 v8, s35, v2")
        if PUTE: lds_spin(a, LW + 20, 8 + VG, pt, nap=2)
        else: lds_spin(a, LW + 4, 16, pt, nap=2)
        PV0 = int(os.environ.get("PV0", "1")); assert not PV0 or (FO[0] == "1" and FO2[0] == "1" and "p" in FO and "p" in FO2)
        a.e(f"s_waitcnt vmcnt({32 - PD if PV0 else 0})")
        for q in range(18): a.e(f"ds_write_b128 v8, {vr(R1[q],4)} offset:{CFG[1]['WB'] + 1024*q}")
        a.e("s_waitcnt lgkmcnt(0)")
    def w1_dma(a, js):
        lds_spin(a, LW + 24, 4, pt, nap=3)
        w_setup(a, 1, pre=False)
        for j in js: w1_slots(a, (j,), pace=W1P); ypause(a)
    DS_ = int(os.environ.get("DSPL", "12"))
    if PKW: lds_spin(a, LW + 24, PKW, pt, nap=4)
    for i_, ch in enumerate(FO):
        if ch == "d": w1_dma(a, range(9, DS_))
        else: call(a, {"1": w1_regs, "p": park}[ch])
    park_rest(a, False)
    mstamp(a)
    call(a, w1_put)
    a.e("s_branch FR_end")
    a.e("FB_cs:")
    S1, S3 = KVS - CFG[1]["WB"], KVS + 8192 - CFG[3]["WB"]
    pos = cs_prep(a, S1, S3)
    if TME: a.e("s_waitcnt vmcnt(0)"); tab_make(a, 1)
    lds_spin(a, *UG, pt, nap=2)
    mstamp(a)
    if not QL: load_q(a)
    cs_load(a, 1, S1)
    if not NOCS3: cs_load(a, 3, S3)
    a.e(f"s_waitcnt vmcnt({0 if NOCS3 else 14})")
    if CSPRIO == 1: a.e(f"s_setprio {CSPRIO}")
    cs_sum(a, 1, pos)
    a.e("s_waitcnt vmcnt(1)")
    a.e(f"v_mov_b32 v{pt}, {LW+24}"); a.e(f"v_mov_b32 v{pt+1}, 1")
    a.e("s_mov_b64 exec, 1"); a.e(f"ds_add_u32 v{pt}, v{pt+1}"); a.e("s_mov_b64 exec, -1")
    mstamp(a)
    if not NOCS3: cs_sum(a, 3, pos)
    front_arrive(a, False)
    if not TME: tab_make(a, 1)
    a.e(f"v_mov_b32 v{pt}, {LW+24}"); a.e(f"v_mov_b32 v{pt+1}, 1")
    a.e("s_mov_b64 exec, 1"); a.e(f"ds_add_u32 v{pt}, v{pt+1}"); a.e("s_mov_b64 exec, -1")
    mstamp(a)
    a.e("s_setprio 0")
    assert CFG[1]["WB"] + 9 * 8192 == KVS
    for ch in FO2:
        if ch == "d": w1_dma(a, range(DS_, 16))
        else: call(a, {"1": w1_regs, "p": park}[ch])
    park_rest(a, False)
    mstamp(a)
    call(a, w1_put)

PG = int(os.environ.get("PG", "0"))
def front_conv(a):
    v = VA(6); lane = 1; l16 = 2
    t = v(); pt = v(4, 2)
    chan_setup(a, 30)
    a.e("s_and_b32 s36, s39, 127"); a.e("s_lshl_b32 s36, s36, 12"); a.e("s_lshr_b32 s37, s39, 7"); a.e("s_lshl_b32 s37, s37, 24")
    a.e("s_add_u32 s36, s36, s37"); a.e(f"s_add_u32 s36, s36, {LB0 + oX3}")
    a.e("s_add_u32 s16, s4, s36"); a.e("s_addc_u32 s17, s5, 0"); a.e("s_mov_b32 s18, 4096"); a.e("s_mov_b32 s19, 0x20000")
    uw = v(); u = v(16, 4)
    a.e(f"v_lshrrev_b32 v{t}, 2, v{lane}"); a.e(f"v_mul_u32_u24 v{uw}, {US}, v{t}"); a.e(f"v_and_b32 v{t}, 3, v{lane}")
    a.e(f"v_lshl_add_u32 v{uw}, v{t}, 4, v{uw}"); a.e(f"v_add_u32 v{uw}, s40, v{uw}")
    aa = v(); ba = v(); ua = v(); J = v(); G = v()
    a.e(f"v_and_b32 v{J}, 15, v{lane}"); a.e(f"v_lshrrev_b32 v{G}, 4, v{lane}")
    a.e(f"v_and_b32 v{t}, 3, v{J}"); a.e(f"v_mul_u32_u24 v{aa}, {HSTR}, v{t}")
    a.e(f"v_lshl_add_u32 v{aa}, v{G}, 4, v{aa}"); a.e(f"v_lshrrev_b32 v{t}, 2, v{J}"); a.e(f"v_lshl_add_u32 v{aa}, v{t}, 3, v{aa}")
    a.e(f"v_add_u32 v{aa}, s40, v{aa}")
    a.e(f"v_sub_u32 v{t}, 15, v{J}"); a.e(f"v_mul_u32_u24 v{ua}, {US}, v{t}"); a.e(f"v_add_u32 v{ua}, s40, v{ua}")
    a.e(f"v_lshl_add_u32 v{ba}, v{G}, 4, v{ua}")
    acc = v(32, 4)
    fa = v(64, 4); fb = v(32, 4)
    def rdA(p, o):
        return [f"ds_read_b64 {vr(fa+32*p+8*s_+4*mt+2*h,2)}, v{aa} offset:{64*(o+16*s_) + 32*mt + 8*h}" for s_ in range(4) for mt in range(2) for h in range(2)]
    def rdB(p, o):
        return [f"ds_read_b128 {vr(fb+16*p+4*k,4)}, v{ba} offset:{UOFF + (48 - 16*k + o)*US}" for k in range(4)]
    for x in rdA(0, 0): a.e(x)
    dm_ = fb + 16; Dv = pt + 2
    a.e("s_bitcmp1_b32 s39, 0"); a.e("s_cselect_b32 s36, 0, 16"); a.e("s_lshl_b32 s41, s98, s36"); a.e("s_and_b32 s41, s41, 0xffff0000"); a.e("s_lshr_b32 s36, s41, 16")
    a.e(f"v_lshl_add_u32 v{t}, v{G}, 3, v{J}"); a.e(f"v_sub_u32 v{t}, 31, v{t}")
    a.e(f"v_mov_b32 v{Dv}, s36"); a.e(f"v_mov_b32 v{Dv+1}, s41"); a.e(f"v_and_b32 v{pt}, 1, v{t}"); a.e(f"v_cmp_eq_u32 vcc, 1, v{pt}")
    a.e(f"v_cndmask_b32 v{Dv}, v{Dv}, v{Dv+1}, vcc"); a.e(f"v_ashrrev_i32 v{t}, 1, v{t}")
    for mt in range(2):
        for d_ in range(4): a.e(f"v_cmp_eq_u32 vcc, {8*mt+d_}, v{t}"); a.e(f"v_cndmask_b32 v{dm_+4*mt+d_}, 0, v{Dv}, vcc")
    a.srd(12, 4, 8 * GSTR - oHS, off=LB0 + oHS)
    ta = v(); go = v()
    a.e(f"v_bfe_u32 v{t}, v{lane}, 2, 2"); a.e(f"v_mul_u32_u24 v{ta}, {CHB+64}, v{t}")
    a.e(f"v_mul_u32_u24 v{t}, 72, v{G}"); a.e(f"v_add_u32 v{ta}, v{ta}, v{t}")
    a.e(f"v_and_b32 v{t}, 3, v{lane}"); a.e(f"v_lshl_add_u32 v{ta}, v{t}, 3, v{ta}")
    a.e(f"s_mul_i32 s36, s30, {16*72}"); a.e(f"v_add_u32 v{ta}, s36, v{ta}")
    a.e(f"v_lshrrev_b32 v{t}, 5, v{lane}"); a.e(f"v_mul_u32_u24 v{go}, {262144 - 512}, v{t}"); a.e(f"v_add_u32 v{go}, v{go}, v{l16}")
    a.e("s_lshr_b32 s44, s38, 4"); a.e("s_lshl_b32 s44, s44, 14"); a.e("s_and_b32 s37, s38, 15"); a.e("s_lshl_b32 s37, s37, 9"); a.e("s_add_u32 s44, s44, s37")
    a.e("s_and_b32 s37, s30, 1"); a.e("s_lshl_b32 s37, s37, 13"); a.e("s_add_u32 s44, s44, s37")
    a.e("s_lshr_b32 s37, s30, 1"); a.e("s_lshl_b32 s37, s37, 26"); a.e("s_add_u32 s44, s44, s37")
    a.e("s_and_b32 s47, s44, 0x2000"); a.e(f"s_xor_b32 s47, s47, {(((F_FRONT >> 21) ^ (F_FRONT >> 13)) & 1) << 13}"); a.e("s_lshr_b32 s37, s30, 1"); a.e("s_lshl_b32 s37, s37, 12"); a.e("s_add_u32 s47, s47, s37")
    a.e("s_and_b32 s37, s2, 7"); a.e("s_lshl_b32 s37, s37, 7"); a.e("s_add_u32 s47, s47, s37")
    a.e(f"v_mov_b32 v{ua}, {LW+8}"); a.e("v_mov_b32 v7, 1")
    ya = v()
    a.e(f"s_mul_i32 s36, s30, {CHB+64}")
    a.e(f"v_mul_u32_u24 v{ya}, 72, v{J}"); a.e(f"v_lshl_add_u32 v{ya}, v{G}, 3, v{ya}"); a.e(f"v_add_u32 v{ya}, s36, v{ya}")
    a.e("v_lshlrev_b32 v6, 10, v1"); assert t == 6 and PWA
    a.e(f"v_mov_b32 v{J}, 0"); a.e("s_and_b32 s45, s2, 31"); a.e("s_lshl_b32 s45, s45, 7"); a.e(f"s_add_u32 s45, s45, {F_RES}")
    a.e("s_cmp_lg_u32 s30, 0"); a.e("s_cbranch_scc1 CV_w")
    a.e("s_and_b32 s36, s2, 7"); a.e("s_lshl_b32 s36, s36, 12"); a.e(f"s_add_u32 s36, s36, {F_KVT}")
    a.e(f"v_lshlrev_b32 v{pt+1}, 7, v{lane}"); a.e(f"v_add_u32 v{pt+1}, s36, v{pt+1}")
    poll_core(a, pt, [pt + 1], 0xffffffff)
    lds_set(a, LW + 16, 1, pt)
    a.e("CV_w:")
    lds_spin(a, LW + 16, 1, pt)
    mstamp(a)
    for it in range(4): a.e(f"buffer_load_dwordx4 {vr(u+4*it,4)}, v{l16}, s[16:19], 0 offen offset:{1024*it} {os.environ.get('UF', SC + ' nt')}")
    QL = int(os.environ.get("QL", "3"))
    if not QL: load_q(a)
    for it in range(4):
        a.e(f"s_waitcnt vmcnt({(3 if QL else 7)-it})")
        a.e(f"ds_write_b128 v{uw}, {vr(u+4*it,4)} offset:{UOFF + 16*US*it}")
    a.e(f"v_mov_b32 v{pt}, {LW+20}"); a.e(f"v_mov_b32 v{pt+1}, 1")
    a.e("s_mov_b64 exec, 1"); a.e(f"ds_add_u32 v{pt}, v{pt+1}"); a.e("s_mov_b64 exec, -1")
    a.e("s_waitcnt lgkmcnt(0)")
    mstamp(a)
    for x in rdB(0, 0): a.e(x)
    for c_ in range(4):
        a.e(f"s_waitcnt lgkmcnt({3-c_})")
        for mt in range(2): a.e(f"v_mfma_f32_16x16x32_bf16 {vr(acc+8*c_+4*mt,4)}, {vr(dm_+4*mt,4)}, {vr(fb+4*c_,4)}, 0")
    def step(p, nxt, tail, piped=False):
        a.e(f"s_waitcnt lgkmcnt({10 if piped else 0})")
        mf = [(c_, s_, mt) for s_ in range(4) for mt in range(2) for c_ in range(s_, 4)]
        for i, (c_, s_, mt) in enumerate(mf):
            A = acc + 8 * c_ + 4 * mt
            a.e(f"v_mfma_f32_16x16x32_bf16 {vr(A,4)}, {vr(fa+32*p+8*s_+4*mt,4)}, {vr(fb+16*p+4*(c_-s_),4)}, {vr(A,4)}")
            if nxt: a.e(nxt.pop(0))
            if piped and i == 9: a.e("s_waitcnt lgkmcnt(10)")
            for x in tail.pop(i, []) if tail else []: a.e(x)
        assert not nxt and not tail
    a.e("s_mov_b32 s43, 0")
    NU = int(os.environ.get("NU", "4")); HP = int(os.environ.get("HP", "0")); VT = int(os.environ.get("VT", "5"))
    vt = {1: [f"s_cmp_eq_u32 s43, {VT}"], 2: ["s_cselect_b64 exec, 1, 0", f"buffer_load_dword v{uw}, v{J}, s[56:59], s45 offen {SC}", "s_mov_b64 exec, -1"]}
    if NU:
        a.e("CV_r:")
        for p in range(2):
            rd = rdB(1 - p, p + 1) + rdA(1 - p, p + 1)
            step(p, rd[:HP], dict(vt) if p == 0 and VT < NU else [])
            for x in rd[HP:]: a.e(x)
        for x in [f"v_add_u32 v{aa}, 128, v{aa}", f"v_add_u32 v{ba}, {2*US}, v{ba}", "s_add_u32 s43, s43, 1", f"s_cmp_lt_u32 s43, {NU}"]: a.e(x)
        a.e("s_cbranch_scc1 CV_r")
    if QL == 1: load_q(a)
    a.e("CV_l:")
    step(0, rdB(1, 1) + rdA(1, 1), dict(vt) if VT >= NU else [], True)
    step(1, rdB(0, 2) + rdA(0, 2), {19: [f"v_add_u32 v{aa}, 128, v{aa}"], 5: [f"v_add_u32 v{ba}, {2*US}, v{ba}"], 6: ["s_add_u32 s43, s43, 1"], 7: ["s_cmp_lt_u32 s43, 8"]}, True)
    a.e("s_cbranch_scc1 CV_l")
    mstamp(a)
    if os.environ.get("EPR"): a.e("s_setprio " + os.environ["EPR"])
    for c_ in range(4):
        for mt in range(2):
            A = acc + 8 * c_ + 4 * mt; O = u + 2 * (c_ * 2 + mt)
            a.e(f"v_cvt_pk_bf16_f32 v{O}, v{A}, v{A+1}"); a.e(f"v_cvt_pk_bf16_f32 v{O+1}, v{A+2}, v{A+3}")
            a.e(f"ds_write_b64 v{ya}, {vr(O,2)} offset:{c_*16*72 + mt*32}")
    a.e("s_mov_b64 exec, 1"); a.e(f"ds_add_u32 v{ua}, v7"); a.e("s_mov_b64 exec, -1")
    a.e("s_mov_b32 s53, 0"); a.e("s_waitcnt vmcnt(0)")
    a.e("CV_v:")
    a.e(f"v_readfirstlane_b32 s94, v{uw}"); a.e("s_sub_u32 s94, s94, s52"); a.e("s_and_b32 s37, s94, 0xfffffe01"); a.e("s_cbranch_scc0 CV_k")
    a.e(f"buffer_load_dword v{uw}, v{J}, s[56:59], s45 offen {SC}"); a.e("s_waitcnt vmcnt(0)")
    a.e("s_add_u32 s53, s53, 1"); a.e("s_cmp_lt_u32 s53, s61"); a.e("s_cbranch_scc1 CV_v"); a.e("s_mov_b32 s61, 0"); a.e("s_mov_b32 s94, 0")
    a.e("CV_k:")
    a.e("s_lshr_b32 s94, s94, 1"); a.e("s_add_u32 s37, s94, 65536"); a.e(f"v_mov_b32 v{pt}, {LW+28}"); a.e(f"v_mov_b32 v{pt+1}, s37"); a.e(f"ds_write_b32 v{pt}, v{pt+1}")
    a.e(f"s_cmp_gt_u32 s94, {QUO // 2}"); a.e("s_cselect_b32 s37, 0x2000, 0"); a.e("s_xor_b32 s44, s44, s37")
    a.e("s_xor_b32 s45, s47, s37"); a.e(f"s_add_u32 s45, s45, {F_FRONT}")
    lds_spin(a, LW + 8, 6, pt)
    for i in range(8): a.e(f"ds_read_b64_tr_b16 {vr(fa+32+2*i,2)}, v{ta} offset:{288*(i>>1) + 32*(i&1)}")
    for i in range(4):
        a.e(f"s_waitcnt lgkmcnt({6-2*i})")
        mark(a, fa + 32 + 4 * i, 1)
        a.e(f"buffer_store_dwordx4 {vr(fa+32+4*i,4)}, v{go}, s[12:15], s44 offen {SC}")
        a.e(f"s_add_u32 s44, s44, {GSTR}")
    if PUTE:
        a.e(f"v_mov_b32 v{pt}, {LW+20}"); a.e(f"v_mov_b32 v{pt+1}, 1")
        a.e("s_mov_b64 exec, 1"); a.e(f"ds_add_u32 v{pt}, v{pt+1}"); a.e("s_mov_b64 exec, -1")
    assert v.hi <= 176

PK = 48; W3S = 176
RFO, RYO, RRO, RI, RXA, RXB, RYY, RT = 196, 197, 198, 199, 180, 188, 230, 228
def r_addr(a, full=True):
    t, t2, I, fo, ro, yo = RT, RT + 1, RI, RFO, RRO, RYO
    a.e(f"v_and_b32 v{I}, 7, v0")
    a.e(f"v_lshrrev_b32 v{t}, 6, v0"); a.e(f"v_lshlrev_b32 v{t}, 4, v{t}"); a.e(f"v_bfe_u32 v{t2}, v0, 3, 3"); a.e(f"v_add_u32 v{t}, v{t}, v{t2}")
    a.e("s_lshr_b32 s78, s29, 1"); a.e("s_lshl_b32 s78, s78, 16"); a.e("s_and_b32 s79, s29, 1"); a.e("s_lshl_b32 s79, s79, 7"); a.e("s_add_u32 s78, s78, s79")
    a.e("s_lshr_b32 s79, s30, 1"); a.e("s_lshl_b32 s79, s79, 13"); a.e("s_add_u32 s78, s78, s79")
    a.e(f"v_lshlrev_b32 v{fo}, 8, v{t}"); a.e(f"v_lshl_add_u32 v{fo}, v{I}, 4, v{fo}"); a.e(f"v_add_u32 v{fo}, s78, v{fo}")
    if not full: return
    a.e("s_lshl_b32 s78, s28, 7"); a.e("s_lshl_b32 s79, s29, 3"); a.e("s_add_u32 s78, s78, s79")
    a.e(f"v_add_u32 v{yo}, s78, v{I}"); a.e(f"v_lshlrev_b32 v{ro}, 11, v{yo}")
    a.e(f"v_lshrrev_b32 v{t2}, 2, v{t}"); a.e(f"v_lshlrev_b32 v{t2}, 3, v{t2}"); a.e(f"v_and_b32 v{t}, 3, v{t}"); a.e(f"v_add_u32 v{t}, v{t}, v{t2}")
    a.e(f"v_lshl_add_u32 v{ro}, v{t}, 3, v{ro}")
    a.e(f"v_and_b32 v{yo}, 15, v{yo}"); a.e(f"v_lshlrev_b32 v{yo}, 4, v{yo}"); a.e(f"v_and_b32 v{t2}, 15, v{t}"); a.e(f"v_lshl_add_u32 v{yo}, v{t2}, 9, v{yo}")
    a.e(f"v_lshrrev_b32 v{t2}, 4, v{t}"); a.e(f"v_lshl_add_u32 v{yo}, v{t2}, 14, v{yo}")
    a.e("s_lshr_b32 s78, s28, 3"); a.e("s_lshl_b32 s78, s78, 2"); a.e("s_and_b32 s79, s28, 3"); a.e("s_add_u32 s78, s78, s79"); a.e("s_lshl_b32 s78, s78, 24")
    a.e("s_and_b32 s79, s28, 4"); a.e("s_lshl_b32 s79, s79, 11"); a.e("s_add_u32 s78, s78, s79")
    a.e("s_and_b32 s79, s29, 4"); a.e("s_lshl_b32 s79, s79, 6"); a.e("s_add_u32 s78, s78, s79"); a.e("s_and_b32 s79, s29, 2"); a.e("s_lshl_b32 s79, s79, 2"); a.e("s_add_u32 s78, s78, s79")
    a.e("s_lshl_b32 s79, s31, 18"); a.e("s_add_u32 s78, s78, s79"); a.e(f"v_add_u32 v{yo}, s78, v{yo}")
def load_y(a, skip_last=False):
    a.srd(80, 4, 8 * GSTR - oHS, off=LB0 + oHS)
    for j in range(2):
        for hh in range(2):
            a.e(f"s_mov_b32 s78, {j*16384 + hh*2048}")
            a.e(f"buffer_load_dwordx2 {vr(RYY+4*j+2*hh,2)}, v{RYO}, s[80:83], s78 offen {os.environ.get('YF', SC)}")
def r_pre(a, l0=False):
    r_addr(a, False)
    lsrd(a, 84, oX3, XSZ); lsrd(a, 88, oX1P, XSZ)
    if l0: a.e("s_cmp_eq_u32 s60, 0"); a.e("s_cselect_b64 exec, -1, 0")
    for j in range(2):
        a.e(f"buffer_load_dwordx4 {vr(RXA+4*j,4)}, v{RFO}, s[84:87], 0 offen offset:{2048*j} {SC}")
        a.e(f"buffer_load_dwordx4 {vr(RXB+4*j,4)}, v{RFO}, s[88:91], 0 offen offset:{2048*j} {SC}")
    if l0: a.e("s_mov_b64 exec, -1")
def r_pre0(a): r_pre(a, True)
def r_pre1(a):
    X = a.lab("rp"); a.e("s_cmp_lg_u32 s60, 0"); a.e(f"s_cbranch_scc1 {X}"); call(a, r_pre); a.e(f"{X}:")

def r_stage(a, final):
    v = VA(6)
    t = v(); t2 = v(); I = RI; fo = RFO; ro = RRO; pt = v(4, 2)
    xa = RXA; xb = RXB; yy = RYY; x = 206; yf = 222; w = v(16, 4); tmp = v()
    pre = final == "pre"
    S = v(2, 2); pp = v(2, 2); qq = v(2, 2); st = w; mean = v(2, 2); rs = mean + 1; var = v(); sw = v(); sr = v()
    def part(src, n):
        a.e(f"v_pk_add_f32 {vr(pp,2)}, {vr(src,2)}, {vr(src+2,2)}"); a.e(f"v_pk_mul_f32 {vr(qq,2)}, {vr(src,2)}, {vr(src,2)}")
        for i in range(1, 8):
            if i > 1: a.e(f"v_pk_add_f32 {vr(pp,2)}, {vr(pp,2)}, {vr(src+2*i,2)}")
            a.e(f"v_pk_fma_f32 {vr(qq,2)}, {vr(src+2*i,2)}, {vr(src+2*i,2)}, {vr(qq,2)}")
        a.e(f"v_add_f32 v{S}, v{pp}, v{pp+1}"); a.e(f"v_add_f32 v{S+1}, v{qq}, v{qq+1}")
        for k in range(2): a.e(f"v_add_f32_dpp v{S+k}, v{S+k}, v{S+k} row_ror:8 row_mask:0xf bank_mask:0xf")
        for op in ("v_permlane16_swap_b32", "v_permlane32_swap_b32"):
            for k in range(2): a.e(f"v_mov_b32 v{pp+k}, v{S+k}")
            for k in range(2): a.e(f"{op} v{S+k}, v{pp+k}")
            a.e(f"v_pk_add_f32 {vr(S,2)}, {vr(S,2)}, {vr(pp,2)}")
        a.e(f"ds_write_b64 v{sw}, {vr(S,2)} offset:{n*512}")
    def comb(n):
        for k in range(4): a.e(f"ds_read_b128 {vr(st+4*k,4)}, v{sr} offset:{n*512+16*k}")
        a.e("s_waitcnt lgkmcnt(0)")
        for k in range(4): a.e(f"v_pk_add_f32 {vr(st+4*k,2)}, {vr(st+4*k,2)}, {vr(st+4*k+2,2)}")
        a.e(f"v_pk_add_f32 {vr(st,2)}, {vr(st,2)}, {vr(st+4,2)}"); a.e(f"v_pk_add_f32 {vr(st+8,2)}, {vr(st+8,2)}, {vr(st+12,2)}")
        a.e(f"v_pk_add_f32 {vr(st,2)}, {vr(st,2)}, {vr(st+8,2)}")
        a.e(f"v_mul_f32 v{mean}, {f32(1/1024)}, v{st}"); a.e(f"v_mul_f32 v{var}, {f32(1/1024)}, v{st+1}")
        a.e(f"v_fma_f32 v{var}, -v{mean}, v{mean}, v{var}"); a.e(f"v_max_f32 v{var}, 0, v{var}")
    SUBM = f"{vr(mean,2)} op_sel_hi:[1,0] neg_lo:[0,1] neg_hi:[0,1]"; MULR = f"{vr(mean,2)} op_sel:[0,1] op_sel_hi:[1,1]"
    if pre: a.e("s_waitcnt lgkmcnt(0)")
    if final is not True:
        a.e(f"v_lshlrev_b32 v{sr}, 6, v{I}"); a.e(f"v_add_u32 v{sr}, {AUX+2048}, v{sr}")
        a.e(f"s_lshl_b32 s35, s30, 3"); a.e(f"v_add_u32 v{sw}, s35, v{sr}")
    if pre:
        a.e("s_waitcnt vmcnt(0)")
        for i in range(8): unpack(a, x + 2 * i, x + 2 * i + 1, xa + i)
        part(x, 0)
        a.e("s_waitcnt lgkmcnt(0)"); a.e("s_barrier")
        return
    if not final:
        a.e(f"s_cmp_eq_u32 s60, 0"); a.e(f"s_cbranch_scc1 R_l0")
    else:
        a.e(f"s_load_dwordx2 s[6:7], s[0:1], {D_OUT}")
    lsrd(a, 8, oP0, XSZ, prev=True); lsrd(a, 12, oP1, XSZ, prev=True)
    lsrd(a, 20, oX3, XSZ); a.e("s_mov_b32 s78, 0x3f80"); a.e("s_mov_b32 s79, 0x3f800000")
    if "r" not in DP: a.e("s_waitcnt vmcnt(0)")
    for i in range(8):
        if not final: unpack(a, yf + 2 * i, yf + 2 * i + 1, yy + i)
        unpack(a, x + 2 * i, x + 2 * i + 1, xa + i); unpack(a, w + 2 * i, w + 2 * i + 1, xb + i)
        a.e(f"v_pk_add_f32 {vr(x+2*i,2)}, {vr(x+2*i,2)}, {vr(w+2*i,2)}")
    lds_ = [f"buffer_load_dwordx4 {vr(r+4*j,4)}, v{fo}, s[{q}:{q+3}], 0 offen offset:{2048*j} {os.environ.get('RF', SC)}" for j in range(2) for r, q in ((xa, 8), (xb, 12))]
    if "r" in DP: data_poll(a, lds_, (xa, xa + 4, xb, xb + 4), t, int(os.environ.get("RNAP", "4")), int(os.environ.get("RFIRST", "24")), int(os.environ.get("RCAN", "0"))); mstamp(a)
    else:
        poll(a, ST_G4, pt, prev=True)
        mstamp(a)
        for x_ in lds_: a.e(x_)
    for i in range(8):
        if i % 4 == 0 and "r" not in DP: a.e(f"s_waitcnt vmcnt({2 - i // 2})")
        u = w + 4 * (i & 3)
        if DOT:
            if i == 0:
                for r_ in (xa, xb):
                    for k in range(16): a.e(f"v_dot2_f32_bf16 v{x+k}, v{r_+k//2}, s{78+(k&1)}, v{x+k}")
                a.e("s_nop 2")
            continue
        unpack(a, u, u + 1, xa + i); unpack(a, u + 2, u + 3, xb + i)
        a.e(f"v_pk_add_f32 {vr(u,2)}, {vr(u,2)}, {vr(u+2,2)}")
        a.e(f"v_pk_add_f32 {vr(x+2*i,2)}, {vr(x+2*i,2)}, {vr(u,2)}")
        if final: a.e(f"v_cvt_pk_bf16_f32 v{xa+i}, v{x+2*i}, v{x+2*i+1}")
        else: round2(a, x + 2 * i, x + 2 * i + 1, tmp)
    if final:
        a.e("s_waitcnt lgkmcnt(0)")
        a.srd(20, 6, 4 * MB)
        OS = os.environ.get("OS", "sc1")
        if os.environ.get("OWIDE", "1") == "1":
            a.e(f"v_bfe_u32 v{t}, v1, 3, 1"); a.e(f"v_cmp_eq_u32 vcc, 1, v{t}")
            for j in range(2):
                lo, hi = xa + 4 * j, xa + 4 * j + 2
                for e in range(2):
                    a.e(f"v_cndmask_b32 v{x+e}, v{hi+e}, v{lo+e}, vcc")
                for e in range(2):
                    a.e(f"v_mov_b32_dpp v{x+2+e}, v{x+e} row_ror:8 row_mask:0xf bank_mask:0xf")
                for e in range(2):
                    a.e(f"v_cndmask_b32 v{x+4+e}, v{lo+e}, v{x+2+e}, vcc"); a.e(f"v_cndmask_b32 v{hi+e}, v{x+2+e}, v{hi+e}, vcc")
                for e in range(2): a.e(f"v_mov_b32 v{lo+e}, v{x+4+e}")
            a.e(f"v_bfe_u32 v{t2}, v1, 4, 1"); a.e(f"v_lshlrev_b32 v{t}, 5, v{t}"); a.e(f"v_lshl_add_u32 v{t}, v{t2}, 4, v{t}")
            a.e(f"v_and_b32 v{t2}, 0xffffffc0, v{ro}"); a.e(f"v_add_u32 v{t}, v{t}, v{t2}")
            for j in range(2): a.e(f"buffer_store_dwordx4 {vr(xa+4*j,4)}, v{t}, s[20:23], 0 offen offset:{128*j} {OS}")
        else:
            for j in range(4): a.e(f"buffer_store_dwordx2 {vr(xa+2*j,2)}, v{ro}, s[20:23], 0 offen offset:{128*(j>>1) + 32*(j&1)} {OS}")
        return v.hi
    part(x, 0)
    if os.environ.get("RST"): mstamp(a)
    a.e("s_waitcnt lgkmcnt(0)"); a.e("s_barrier")
    if os.environ.get("RST"): mstamp(a)
    comb(0)
    ln_finish(a, mean, var, rs)
    if os.environ.get("RST"): mstamp(a)
    a.e(f"v_mul_f32 v{mean}, v{mean}, v{rs}")
    for i in range(8): a.e(f"v_pk_fma_f32 {vr(w+2*i,2)}, {vr(x+2*i,2)}, {vr(mean,2)}, {vr(mean,2)} op_sel:[0,1,0] op_sel_hi:[1,1,0] neg_lo:[0,0,1] neg_hi:[0,0,1]")
    for i in range(8):
        D = w + 2 * i
        a.e(f"v_pk_fma_f32 {vr(x+2*i,2)}, {vr(D,2)}, {vr(yf+2*i,2)}, {vr(x+2*i,2)}")
        a.e(f"v_cvt_pk_bf16_f32 v{xa+i}, v{x+2*i}, v{x+2*i+1}")
        if i % 4 == 1 and DP: mark(a, xa + i - 1, 0)
        if i % 4 == 3: a.e(f"buffer_store_dwordx4 {vr(xa+i-3,4)}, v{fo}, s[20:23], 0 offen offset:{2048*(i//4)} {SC}")
    if os.environ.get("RST"): mstamp(a)
    a.e("s_branch R_s2")
    a.e("R_l0:")
    for i in range(8): unpack(a, x + 2 * i, x + 2 * i + 1, xa + i)
    part(x, 0)
    a.e("s_waitcnt lgkmcnt(0)")
    st_ = st; st = yf
    lds_spin(a, LW + 28, 65536, st, dst=94)
    if STAMP: a.e("s_and_b32 s95, s94, 0xffff")
    a.e(f"s_cmp_gt_u32 s94, {65536 + QUO // 2}"); a.e("s_cselect_b32 s94, 1, 0")
    a.e("s_lshl_b32 s53, s94, 13"); a.e(f"v_xor_b32 v{RYO}, s53, v{RYO}")
    FL = int(os.environ.get("FL", "1"))
    if FL:
        group_off(a, 36, 28); a.e("s_lshr_b32 s53, s53, 14"); a.e("s_add_u32 s36, s53, s54"); a.e(f"s_xor_b32 s36, s36, {(((F_FRONT >> 21) ^ (F_FRONT >> 13) ^ (FL >> 1)) & 1) << 13}")
    else: a.e("s_lshl_b32 s36, s28, 10")
    a.e(f"s_add_u32 s36, s36, {F_FRONT}"); a.e("s_lshl_b32 s53, s30, 7"); a.e("s_add_u32 s36, s36, s53"); a.e(f"v_mov_b32 v{st+4}, s36")
    a.e("s_waitcnt vmcnt(0)"); a.e("s_barrier")
    poll_core(a, st, [st + 4], 1, cnt=32, nap=FSLEEP)
    load_y(a)
    group_off(a, 55, 28)
    a.e("s_add_u32 s62, s4, s55"); a.e("s_addc_u32 s63, s5, 0")
    a.e("s_sub_u32 s36, s28, 1"); a.e("s_max_i32 s36, s36, 0"); group_off(a, 92, 36); a.e("s_sub_u32 s92, s92, s55")
    a.e("s_add_u32 s36, s28, 1"); a.e("s_min_u32 s36, s36, 15"); group_off(a, 93, 36); a.e("s_sub_u32 s93, s93, s55")
    a.e(f"s_add_u32 s55, s55, {oSM}")
    lsrd(a, 20, oX3, XSZ)
    st = st_; comb(0); ln_finish(a, mean, var, rs); st = yf
    for i in range(8):
        D = w + 2 * i
        a.e(f"v_pk_add_f32 {vr(D,2)}, {vr(x+2*i,2)}, {SUBM}"); a.e(f"v_pk_mul_f32 {vr(D,2)}, {vr(D,2)}, {MULR}")
    a.e("s_barrier")
    mstamp(a)
    a.e("s_waitcnt vmcnt(0)")
    for i in range(8):
        D = w + 2 * i
        unpack(a, st, st + 1, yy + i)
        a.e(f"v_pk_fma_f32 {vr(x+2*i,2)}, {vr(D,2)}, {vr(st,2)}, {vr(x+2*i,2)}"); a.e(f"v_cvt_pk_bf16_f32 v{xa+i}, v{x+2*i}, v{x+2*i+1}")
        if i % 4 == 1 and DP: mark(a, xa + i - 1, 0)
        if i % 4 == 3: a.e(f"buffer_store_dwordx4 {vr(xa+i-3,4)}, v{fo}, s[20:23], 0 offen offset:{2048*(i//4)} {SC}")
    a.e("R_s2:")
    st = st_
    for i in range(8): unpack(a, x + 2 * i, x + 2 * i + 1, xa + i)
    part(x, 1)
    if "1" in DP:
        a.e("s_waitcnt lgkmcnt(0)"); a.e("s_barrier")
        a.e("s_cmp_lg_u32 s30, 6"); a.e("s_cbranch_scc1 R_n6"); a.e("s_cmp_lg_u32 s60, 0"); a.e("s_cbranch_scc1 R_n6")
        a.e("s_lshl_b32 s53, s29, 7"); a.e(f"s_add_u32 s53, s53, {F_CS}"); a.e(f"v_mov_b32 v{pt}, 1"); a.e(f"v_mov_b32 v{pt+1}, 0")
        a.e("s_mov_b64 exec, 1"); a.e(f"buffer_atomic_add v{pt}, v{pt+1}, s[56:59], s53 offen {SC}"); a.e("s_mov_b64 exec, -1")
        a.e("R_n6:")
    else:
        publish(a, ST_R, 8, pt)
        a.e("s_barrier")
    a.e(f"s_cmp_lg_u32 s30, {7 if '1' in DP else 0}"); a.e("s_cbranch_scc1 R_nl")
    comb(1)
    outv = yf + 2; s3 = v(); m4 = v(); v4_ = v(); r4 = v()
    assert v.hi <= PK
    a.e(f"v_mov_b32 v{m4}, v{mean}"); a.e(f"v_mov_b32 v{v4_}, v{var}")
    ln_finish(a, mean, var, rs, s3)
    a.e(f"v_sub_f32 v{m4}, v{m4}, v{mean}"); a.e(f"v_mul_f32 v{m4}, v{m4}, v{rs}")
    a.e(f"v_mul_f32 v{v4_}, v{v4_}, v{rs}"); a.e(f"v_mul_f32 v{v4_}, v{v4_}, v{rs}")
    ln_finish(a, m4, v4_, r4)
    a.e(f"v_mov_b32 v{outv}, v{mean}"); a.e(f"v_mov_b32 v{outv+1}, v{rs}")
    a.e(f"v_fma_f32 v{outv+2}, v{m4}, v{s3}, v{mean}"); a.e(f"v_mul_f32 v{outv+3}, v{rs}, v{r4}")
    lsrd(a, 24, oLNS, 2048)
    a.e("s_lshl_b32 s36, s29, 3"); a.e(f"v_add_u32 v{t}, s36, v{I}"); a.e(f"v_lshlrev_b32 v{t}, 4, v{t}")
    a.e("s_mov_b64 exec, 0xff")
    a.e(f"buffer_store_dwordx4 {vr(outv,4)}, v{t}, s[24:27], 0 offen {SC}")
    a.e("s_mov_b64 exec, -1")
    publish(a, ST_R2, 1, pt)
    a.e("R_nl:")
    return v.hi

TAB = int(os.environ.get("TAB", "1")); TV = 248
def lead(seq, r, L, P=4):
    if L == 0: return list(seq)
    return [x for _, x in sorted(((i - L - 0.5 if i % P == r else i), x) for i, x in enumerate(seq))]
def order3(j, gi):
    mode, L = eval(os.environ.get("O3", "('r',0)"))
    if mode == "r": return [(gi + t) & 15 for t in range(16)]
    if mode == "n": return [gi] + [x for x in lead(range(16), (j + gi) & 3, L) if x != gi]
    if mode == "s": return [gi] + lead([x for x in range(16) if x != gi], (j + gi) & 3, L)
    if mode == "h": return [gi] + [x for x in lead([(t + (gi & 8)) & 15 for t in range(16)], (j + gi) & 3, L) if x != gi]
def order4(j, n):
    mode, L = eval(os.environ.get("O4", "('n',1)"))
    own = [(7 * n + i, 7 * n + 4 + i) for i in range(3)]
    ps = [(n + t) & 7 for t in range(8)] if mode == "r" else list(range(8))
    ab = [(7 * p + i, 7 * p + 4 + i) for i in range(2) for p in ps if p != n]
    c = [7 * p + o for p in ps for o in (2, 6, 3) if p != n or o == 3]
    rest = ab + [(c[2 * i], c[2 * i + 1]) for i in range(11)]
    if mode != "r": rest = lead(rest, (j + n + int(os.environ.get("O4R", "0"))) & 3, L)
    return own + rest
L4 = eval(os.environ.get("O4", "('n',1)"))[1] if TAB else 0
def tab_data(a):
    a.lines.append(".p2align 6"); a.lines.append("K_tab:")
    for gi in range(16):
        for j in range(4):
            o3 = order3(j, gi) + [0] * 16; o4 = order4(j, gi & 7) + [(0, 0)] * 4
            assert sorted(o3[:16]) == list(range(16)) and sorted(sum(o4[:28], ())) == list(range(56))
            a.lines.append(".short " + ",".join(str(o3[t] | o4[t][0] << 4 | o4[t][1] << 10) for t in range(32)))
def tab_load(a):
    a.e("s_getpc_b64 s[34:35]"); a.e("K_tpc:")
    a.e("s_lshl_b32 s36, s29, 2"); a.e("s_and_b32 s37, s28, 3"); a.e("s_add_u32 s36, s36, s37"); a.e("s_lshl_b32 s36, s36, 6")
    a.e("s_add_u32 s36, s36, K_tab-K_tpc"); a.e("s_add_u32 s34, s34, s36"); a.e("s_addc_u32 s35, s35, 0")
    a.e(f"v_and_b32 v{TV}, 31, v1"); a.e(f"v_lshlrev_b32 v{TV}, 1, v{TV}"); a.e(f"global_load_ushort v{TV+3}, v{TV}, s[34:35]")
def tab_make(a, w):
    T, x = TV + 3, TV + 4
    if not w:
        a.e(f"v_bfe_u32 v{x}, v{T}, 2, 2"); a.e(f"v_lshlrev_b32 v{TV}, 14, v{x}"); a.e(f"v_and_b32 v{x}, 3, v{T}"); a.e(f"v_lshl_add_u32 v{TV}, v{x}, 11, v{TV}")
        for lw in range(2):
            a.e(f"v_bfe_u32 v{x}, v{T}, {7+6*lw}, 3"); a.e(f"v_lshlrev_b32 v{TV+1+lw}, 14, v{x}"); a.e(f"v_bfe_u32 v{x}, v{T}, {4+6*lw}, 3"); a.e(f"v_lshl_add_u32 v{TV+1+lw}, v{x}, 10, v{TV+1+lw}")
    else:
        a.e(f"v_and_b32 v{x}, 15, v{T}"); a.e(f"v_mul_u32_u24 v{TV}, {64*7168}, v{x}")
        a.e("s_and_b32 s36, s30, 1"); a.e("s_mul_i32 s36, s36, 6"); a.e("s_add_u32 s36, s36, 4"); a.e(f"v_bfe_u32 v{x}, v{T}, s36, 6")
        assert all((q * 37) >> 8 == q // 7 for q in range(56))
        a.e(f"v_mul_u32_u24 v{TV+2}, 37, v{x}"); a.e(f"v_lshrrev_b32 v{TV+2}, 8, v{TV+2}"); a.e(f"v_mul_u32_u24 v{TV+2}, 7, v{TV+2}"); a.e(f"v_sub_u32 v{TV+2}, v{x}, v{TV+2}")
        a.e(f"v_cmp_eq_u32 vcc, 3, v{TV+2}"); a.e(f"v_cndmask_b32 v{TV+2}, 0, 1, vcc"); a.e(f"v_lshl_add_u32 v{TV+1}, v{x}, 16, v{TV+2}")
        for p_ in eval(os.environ.get("W4SKIP", "[]")): a.e("s_mov_b32 s36, 0x40000000"); a.e(f"v_writelane_b32 v{TV+1}, s36, {p_}")
def rot_init(a, which):
    if which == 3 and TAB: a.e("s_mov_b32 s44, 0")
    elif which == 3 and OWN3: a.e("s_mov_b32 s44, s29")
    elif which != 4: a.e("s_mov_b32 s44, s67")
    else: a.e("s_mov_b32 s44, 0")
def rot_next(a, which):
    a.e("s_add_u32 s44, s44, 1")
    if which != 4: a.e("s_and_b32 s44, s44, 15")
def kb4(a, d, lw):
    a.e("s_lshl_b32 s45, s44, 1"); a.e(f"s_add_u32 s45, s45, {lw}"); a.e("s_sub_u32 s45, s45, 32")
    a.e("s_mul_i32 s46, s45, 86"); a.e("s_lshr_b32 s46, s46, 8")
    a.e("s_mul_i32 s47, s46, 3"); a.e("s_sub_u32 s47, s45, s47"); a.e("s_lshl_b32 s47, s47, 2"); a.e("s_lshr_b32 s47, 0x362, s47"); a.e("s_and_b32 s47, s47, 7")
    a.e("s_cmp_ge_u32 s44, 10"); a.e("s_cselect_b32 s45, 9, 2"); a.e("s_cselect_b32 s51, 1, 0"); a.e("s_sub_u32 s45, s44, s45")
    a.e("s_cmp_lt_u32 s44, 3"); a.e("s_cselect_b32 s45, 0, s45"); a.e("s_cselect_b32 s51, s44, s51")
    a.e(f"s_lshl2_add_u32 s51, {lw}, s51")
    a.e("s_cmp_lt_u32 s44, 17"); a.e("s_cselect_b32 s47, s51, s47"); a.e("s_cselect_b32 s46, s45, s46")
    a.e("s_add_u32 s46, s46, s33"); a.e("s_and_b32 s46, s46, 7"); a.e("s_mul_i32 s46, s46, 7"); a.e(f"s_add_u32 s{d}, s46, s47")
assert all((q * 86) >> 8 == q // 3 for q in range(24))
WVB = {1: 238, 2: 238, 4: 239, 3: 241}
WV = 245
def w_lanes(a):
    t, t2 = WV + 8, WV + 9
    R = WVB[1]
    a.e(f"v_lshrrev_b32 v{t}, 3, v1"); a.e(f"v_lshlrev_b32 v{R}, 11, v{t}")
    a.e(f"v_and_b32 v{t}, 6, v{t}"); a.e(f"v_and_b32 v{t2}, 7, v1"); a.e(f"v_xor_b32 v{t}, v{t}, v{t2}"); a.e(f"v_lshl_add_u32 v{R}, v{t}, 4, v{R}")
    R = WVB[4]
    for p in range(2):
        a.e(f"v_lshrrev_b32 v{t}, 4, v1"); a.e(f"v_lshlrev_b32 v{R+p}, 11, v{t}")
        a.e(f"v_add_u32 v{t}, {4*p}, v{t}"); a.e(f"v_lshlrev_b32 v{t}, 1, v{t}"); a.e(f"v_and_b32 v{t2}, 15, v1"); a.e(f"v_xor_b32 v{t}, v{t}, v{t2}")
        a.e(f"v_lshl_add_u32 v{R+p}, v{t}, 4, v{R+p}")
    R = WVB[3]
    assert all((p * 2341) >> 16 == p // 28 for p in range(448))
    for ii in range(7):
        a.e(f"v_add_u32 v{t2}, {64*ii}, v1"); a.e(f"v_mul_u32_u24 v{t}, 2341, v{t2}"); a.e(f"v_lshrrev_b32 v{t}, 16, v{t}")
        a.e(f"v_mul_u32_u24 v{R+ii}, 28, v{t}"); a.e(f"v_sub_u32 v{t2}, v{t2}, v{R+ii}")
        a.e(f"v_mul_u32_u24 v{R+ii}, 7168, v{t}")
        a.e(f"v_lshrrev_b32 v{t}, 1, v{t}"); a.e(f"v_and_b32 v{t}, 2, v{t}"); a.e(f"v_xor_b32 v{t2}, v{t2}, v{t}")
        a.e(f"v_lshl_add_u32 v{R+ii}, v{t2}, 4, v{R+ii}")
def w_srd(a, which):
    c = CFG[which]
    a.e(f"s_mov_b64 s[12:13], s[{66+2*which}:{67+2*which}]")
    a.e(f"s_mov_b32 s14, {c['KBT'] * 32 * c['LDW']}"); a.e("s_mov_b32 s15, 0x20000")
def w_setup(a, which, pre=True, lo=0):
    c = CFG[which]; STB = c["STB"]; BW = STB // 2
    w_srd(a, which)
    a.e("s_and_b32 s35, s30, 1")
    a.e(f"s_mul_i32 s38, s{(0, 99, 29, 29, 33)[which]}, {c['RB']}");
    if which != 4: a.e(f"s_mul_i32 s41, s35, {32*c['LDW']}"); a.e("s_add_u32 s38, s38, s41")
    if which == 4: a.e(f"s_mul_i32 s41, s31, {1792*c['LDW']}"); a.e("s_add_u32 s38, s38, s41")
    a.e(f"s_mul_i32 s41, s35, {BW}"); a.e(f"s_add_u32 s41, s41, {c['WB']}")
    a.e("s_mov_b32 s42, 0"); rot_init(a, which)
    if not pre: return
    NP = c["NPRE"]
    a.e("s_mov_b32 s49, s44"); a.e("s_and_b32 s43, s28, 3"); a.e(f"s_mul_i32 s43, s43, {NP - lo}"); a.e("s_lshr_b32 s43, s43, 2"); a.e(f"s_mov_b32 s50, {lo}")
    if not WROT: a.e("s_mov_b32 s43, 0")
    if lo: a.e(f"s_add_u32 s43, s43, {lo}")
    L = a.lab("wpre"); a.e(f"{L}:")
    a.e(f"s_mul_i32 s42, s43, {STB}"); a.e("s_add_u32 s44, s49, s43")
    if which != 4: a.e("s_and_b32 s44, s44, 15")
    w_issue(a, which, pace=PACES.get(which, PACE))
    a.e("s_add_u32 s43, s43, 1"); a.e(f"s_cmp_eq_u32 s43, {NP}"); a.e(f"s_cselect_b32 s43, {lo}, s43")
    a.e("s_add_u32 s50, s50, 1"); a.e(f"s_cmp_lt_u32 s50, {NP}"); a.e(f"s_cbranch_scc1 {L}")
    mstamp(a)
    a.e(f"s_mov_b32 s42, {(NP % c['NW']) * STB}"); a.e(f"s_add_u32 s44, s49, {NP}")
    if which != 4: a.e("s_and_b32 s44, s44, 15")
YP = int(os.environ.get("YP", "0"))
def ypause(a):
    if not YP: return
    X = a.lab("yp")
    a.e(f"v_mov_b32 v6, {LW+4}"); a.e("ds_read2_b32 v[14:15], v6 offset0:0 offset1:1"); a.e("s_waitcnt lgkmcnt(0)"); a.e("v_readfirstlane_b32 s53, v15")
    a.e(f"s_cmp_lt_u32 s53, {YP}"); a.e(f"s_cbranch_scc1 {X}")
    lds_spin(a, LW + 20, 8, 6, nap=2)
    a.e(f"{X}:")
PD = int(os.environ.get("PD", "8")); PDA = int(os.environ.get("PDA", "0"))
def park_load(a, pace, q0=0, q1=32):
    w_srd(a, 2)
    a.e("s_and_b32 s35, s30, 3"); a.e("s_lshl_b32 s35, s35, 19"); a.e("s_lshl_b32 s39, s29, 7"); a.e("s_add_u32 s39, s39, s35")
    if q0: a.e(f"s_add_u32 s39, s39, {q0*16384}")
    for q in range(q0, q1):
        a.e(f"buffer_load_dwordx4 {vr(PK+4*q,4)}, v{WVB[2]}, s[12:15], s39 offen"); a.e("s_add_u32 s39, s39, 16384")
        if pace and q % 4 == 3: a.e(f"s_waitcnt vmcnt({pace})"); ypause(a)
def park(a): park_load(a, int(os.environ.get("PKP", "8")), 0, 32 - PD)
def park2(a): park_load(a, int(os.environ.get("PKP", "8")), 32 - PD, 32)
def park_rest(a, late):
    if not PD or (PDA and not late): return
    X = a.lab("pr")
    if late: a.e("s_cmp_lg_u32 s60, 0"); a.e(f"s_cbranch_scc1 {X}")
    if not PDA: a.e("s_and_b32 s36, s29, 6"); a.e("s_cmp_eq_u32 s36, 2"); a.e(f"s_cbranch_scc{0 if late else 1} {X}")
    call(a, park2); a.e(f"{X}:")
def late_park(a):
    X = a.lab("lp"); a.e("s_cmp_lg_u32 s60, 0"); a.e(f"s_cbranch_scc1 {X}"); call(a, park); a.e(f"{X}:")
def after_g1(a):
    c = CFG[3]
    if os.environ.get("UPD0"): a.e("s_sleep " + os.environ["UPD0"])
    w_srd(a, 3)
    a.e(f"v_readlane_b32 s36, v{TV+3}, 0"); a.e(f"v_readlane_b32 s37, v{TV+3}, 1"); a.e(f"v_readlane_b32 s34, v{TV+3}, 2")
    a.e("s_and_b32 s35, s30, 3"); a.e(f"s_mul_i32 s38, s35, {16*7168}"); a.e("s_mul_i32 s39, s29, 448"); a.e("s_add_u32 s38, s38, s39")
    for r in (36, 37, 34): a.e(f"s_and_b32 s{r}, s{r}, 15"); a.e(f"s_mul_i32 s{r}, s{r}, {64*7168}"); a.e(f"s_add_u32 s{r}, s{r}, s38")
    a.e("s_mul_i32 s39, s35, 7168"); a.e(f"s_add_u32 m0, s39, {c['WB'] + c['S0'] * c['STB']}")
    for i in range(7):
        if i: a.e("s_add_u32 m0, m0, 1024")
        a.e(f"buffer_load_dwordx4 v{WVB[3]+i}, s[12:15], s36 offen lds")
    for i in range(7 if W3N == 2 else 0): a.e(f"buffer_load_dwordx4 {vr(W3S+4*i,4)}, v{WVB[3]+i}, s[12:15], s37 offen")
    a.e("s_lshr_b32 s36, s67, 2"); a.e("s_sub_u32 s36, s35, s36"); a.e("s_and_b32 s36, s36, 3"); a.e("s_lshl_b32 s36, s36, 15"); a.e(f"v_add_u32 v6, s36, v2")
    if W33 == 1:
        for i in range(7): a.e(f"buffer_load_dwordx4 {vr(16+4*i,4)}, v{WVB[3]+i}, s[12:15], s34 offen")
    a.e(f"s_waitcnt vmcnt({21 if W33 == 1 else 7 * W3N})")
    if os.environ.get("UPD"): a.e("s_sleep " + os.environ["UPD"])
    for q in range(32): a.e(f"ds_write_b128 v6, {vr(PK+4*q,4)} offset:{CFG[2]['WB'] + 1024*q}")
    a.e("s_waitcnt lgkmcnt(0)")
W3N = int(os.environ.get("W3N", "2"))
W33 = int(os.environ.get("W33", "0"))
def third_late(a):
    a.e(f"s_sleep {W33}")
    for i in range(7): a.e(f"buffer_load_dwordx4 {vr(16+4*i,4)}, v{WVB[3]+i}, s[12:15], s34 offen")
def third_put(a):
    c = CFG[3]
    for i in range(7): a.e(f"ds_write_b128 v7, {vr(16+4*i,4)} offset:{c['STB'] + 1024*i}")
    a.e("s_waitcnt lgkmcnt(0)")
def after_g2(a):
    c = CFG[3]
    if W3N == 1:
        a.e("s_and_b32 s35, s30, 3"); a.e("s_mul_i32 s39, s35, 7168"); a.e(f"s_add_u32 m0, s39, {c['WB'] + (c['S0'] + 1) % c['NW'] * c['STB']}")
        for i in range(7):
            if i: a.e("s_add_u32 m0, m0, 1024")
            a.e(f"buffer_load_dwordx4 v{WVB[3]+i}, s[12:15], s37 offen lds")
        return
    a.e("s_and_b32 s35, s30, 3"); a.e("s_mul_i32 s39, s35, 7168"); a.e(f"s_add_u32 s39, s39, {c['WB'] + (c['S0'] + 1) % c['NW'] * c['STB']}"); a.e("v_add_u32 v7, s39, v2")
    for i in range(7): a.e(f"ds_write_b128 v7, {vr(W3S+4*i,4)} offset:{1024*i}")
    a.e("s_waitcnt lgkmcnt(0)")
SUBX = {}
def call(a, f):
    SUBX[f.__name__] = f; a.e(f"s_call_b64 s[76:77], SUB_{f.__name__}")
def w1_slots(a, js, pace=0):
    for j in js:
        a.e(f"s_mov_b32 s42, {j*8192}"); a.e("s_mov_b32 s44, s67"); a.e(f"s_add_u32 s44, s44, {j}"); a.e("s_and_b32 s44, s44, 15")
        call_issue(a, w_issue, 1)
        if pace: a.e(f"s_waitcnt vmcnt({pace})")
def w1_done(a):
    a.e("s_mov_b32 s42, 0"); a.e("s_mov_b32 s44, s67"); a.e("s_add_u32 s44, s44, 13"); a.e("s_and_b32 s44, s44, 15")
class Rec:
    def __init__(s_): s_.l = []
    def e(s_, x): s_.l.append(x)
    srd = Asm.srd
def w_parts(which, direct=False):
    c = CFG[which]; STB = c["STB"]; n = STB // 2048; LDW = c["LDW"]; b = Rec()
    b.e("s_add_u32 s19, s41, s42")
    arm = ["s_mov_b32 m0, s19", "s_mov_b32 s39, s16"]
    if which == 4 and TAB:
        b.e(f"v_readlane_b32 s16, v{TV+1}, s44")
        b.e("s_bitcmp1_b32 s16, 0"); b.e(f"s_cselect_b32 s17, {8*2048}, {4*2048}".replace(f"{4*2048}", "s45")); b.e(f"s_cselect_b32 s18, {-20*2048}, s45")
        b.e("s_andn2_b32 s16, s16, 1"); b.e("s_add_u32 s16, s16, s38")
        b.l.insert(0, f"s_mov_b32 s45, {4*2048}")
        arm += ["s_mov_b32 s32, s17", "s_mov_b32 s3, s18"]
        if os.environ.get("W4SKIP"): arm += ["s_bitcmp1_b32 s16, 30", "s_cselect_b64 exec, 0, -1"]
    elif which == 3 and TAB and not direct:
        b.e(f"v_readlane_b32 s16, v{TV}, s44"); b.e("s_add_u32 s16, s16, s38")
    elif which == 4:
        b.e("s_and_b32 s40, s30, 1"); kb4(b, 16, "s40")
        b.e(f"s_mul_i32 s16, s16, {32*LDW}"); b.e("s_add_u32 s16, s16, s38")
        b.e("s_cmp_eq_u32 s47, 3"); b.e("s_cselect_b32 s17, 8, 4"); b.e("s_cselect_b32 s18, -20, 4")
        b.e("s_lshl_b32 s17, s17, 11"); b.e("s_lshl_b32 s18, s18, 11")
        arm += ["s_mov_b32 s32, s17", "s_mov_b32 s3, s18"]
    else:
        b.e(f"s_mul_i32 s16, s44, {64*LDW}"); b.e("s_add_u32 s16, s16, s38")
    if f"w{which}" in os.environ.get("HOT", ""): b.e("s_mov_b32 s16, s38")
    rot_next(b, which)
    b.e(f"s_add_u32 s42, s42, {STB}"); b.e(f"s_cmp_eq_u32 s42, {c['NW']*STB}"); b.e("s_cselect_b32 s42, 0, s42")
    fire = []
    for i in range(n):
        g = []
        if i:
            g.append("s_add_u32 m0, m0, 1024")
            if which in (1, 2): g.append(f"s_add_u32 s39, s39, {8*LDW}")
            elif which == 4: g.append(f"s_add_u32 s39, s39, s{3 if i == 4 else 32}")
            elif i == 7: g.append(f"s_add_u32 s39, s39, {16*LDW}")
        vo = WVB[which] + (0 if which in (1, 2) else (i & 1) if which == 4 else i % 7)
        fire.append(g + [f"buffer_load_dwordx4 v{vo}, s[12:15], s39 offen lds"])
    if f"w{which}" in os.environ.get("NOLD", ""): fire = [[x for x in g if not x.startswith("buffer_load")] + ["s_nop 0"] for g in fire]
    return b.l, arm, fire
def w_issue(a, which, pace=0, direct=False):
    prep, arm, fire = w_parts(which, direct)
    for x in prep + arm: a.e(x)
    for i, g in enumerate(fire):
        for x in g: a.e(x)
        if pace and (i % 4 == 3 or i == len(fire) - 1): a.e(f"s_waitcnt vmcnt({pace})")

def w_bases(a, which, dst, swn, ntl, t, t2):
    c = CFG[which]; RB = c["RB"]
    a.e(f"v_lshrrev_b32 v{t}, 2, v1")
    a.e(f"v_mul_u32_u24 v{dst}, {RB}, v{t}"); a.e(f"v_and_b32 v{t2}, 3, v1"); a.e(f"v_lshl_add_u32 v{dst}, v{t2}, 3, v{dst}")
    a.e(f"v_add_u32 v{dst}, {c['WB']}, v{dst}")
    if which == 3:
        a.e(f"s_mul_i32 s36, s{swn}, {7*32}"); a.e(f"v_add_u32 v{dst}, s36, v{dst}")
        a.e(f"v_bfe_u32 v{t}, v1, 4, 1"); a.e(f"v_lshlrev_b32 v{t}, 5, v{t}")
        a.e(f"s_cmp_eq_u32 s{swn}, 0"); a.e("s_cselect_b32 s36, 1, -1"); a.e(f"v_mul_lo_u32 v{t}, v{t}, s36")
        a.e(f"v_sub_u32 v{dst+1}, v{dst}, v{t}"); a.e(f"v_add_u32 v{dst}, v{dst}, v{t}")
        return 2, lambda nt, kk, h: (nt & 1, (32 * kk + 16 * h) * RB + 32 * nt)
    if which == 4: a.e(f"v_and_b32 v{t}, 7, v{t}")
    else: a.e(f"v_bfe_u32 v{t}, v{t}, 1, 2")
    for nt in range(ntl - 1, -1, -1):
        a.e(f"s_mul_i32 s36, s{swn}, {ntl}"); a.e(f"s_add_u32 s36, s36, {nt}")
        a.e(f"v_xor_b32 v{t2}, s36, v{t}"); a.e(f"v_lshl_add_u32 v{dst+nt}, v{t2}, 5, v{dst}")
    return ntl, lambda nt, kk, h: (nt, (32 * kk + 16 * h) * RB)

def a_parts(which):
    c = CFG[which]; b = Rec()
    if which <= 2 and NX:
        b.e("s_and_b32 s42, s48, 7"); b.e("s_lshl_b32 s42, s42, 14"); b.e("s_lshr_b64 s[48:49], s[48:49], 4")
    b.e("s_add_u32 s19, s41, s42")
    arm = ["s_mov_b32 m0, s19", "s_mov_b32 s39, s16"]; fire = []
    if which == 2:
        b.e(f"s_mul_i32 s16, s44, {8*PITCH}"); b.e("s_add_u32 s16, s16, s38")
        b.e("s_lshr_b32 s45, s44, 2"); b.e("s_xor_b32 s45, s45, s94"); b.e("s_and_b32 s45, s45, 1"); b.e("s_lshl_b32 s45, s45, 13"); b.e("s_add_u32 s16, s16, s45")
        b.e("s_lshr_b32 s45, s44, 3"); b.e("s_lshl_b32 s45, s45, 4"); b.e("s_add_u32 s45, s45, 16")
        b.e("s_sub_u32 s46, 0, s45"); b.e("s_bitcmp1_b32 s44, 2"); b.e("s_cselect_b32 s45, s45, s46"); b.e("s_add_u32 s16, s16, s45")
        step = PITCH
    elif which == 4:
        for lw in range(2):
            if TAB: b.e(f"v_readlane_b32 s{16+lw}, v{TV+1+lw}, s44")
            else: kb4(b, 16 + lw, lw); spread(b, 16 + lw, 16 + lw)
        for lw in range(2): b.e(f"s_add_u32 s{16+lw}, s{16+lw}, s38")
        arm.append("s_mov_b32 s40, s17")
        for i in range(4):
            for lw in range(2):
                fire.append((["s_add_u32 m0, m0, 1024"] if i or lw else []) + ([f"s_add_u32 s{39+lw}, s{39+lw}, {c['KBT']*2048}"] if i else []) +
                            [f"buffer_load_dwordx4 v2, s[12:15], s{39+lw} offen {SC} lds"])
    elif which == 3 and TAB:
        b.e(f"v_readlane_b32 s16, v{TV}, s44"); b.e("s_add_u32 s16, s16, s38"); step = c['KBT'] * 2048
    else:
        b.e("s_lshr_b32 s45, s44, 2"); b.e("s_lshl_b32 s45, s45, 14"); b.e("s_and_b32 s16, s44, 3"); b.e("s_lshl_b32 s16, s16, 11")
        b.e("s_add_u32 s16, s16, s45"); b.e("s_add_u32 s16, s16, s38"); step = c['KBT'] * 2048
    if f"a{which}" in os.environ.get("HOT", ""):
        b.e("s_mov_b32 s16, s38")
        if which == 4: b.e("s_add_u32 s17, s38, 1024")
    for i in range(4 if which != 4 else 0):
        fire.append((["s_add_u32 m0, m0, 2048", f"s_add_u32 s39, s39, {step}"] if i else []) + [f"buffer_load_dwordx4 v2, s[12:15], s39 offen {SC} lds"])
        fire.append([f"buffer_load_dwordx4 v2, s[12:15], s39 offen offset:1024 {SC} lds"])
    rot_next(b, which)
    if not (which <= 2 and NX):
        b.e(f"s_add_u32 s42, s42, 16384"); b.e(f"s_cmp_eq_u32 s42, {c['NA']*16384}"); b.e("s_cselect_b32 s42, 0, s42")
    if f"a{which}" in os.environ.get("NOLD", ""): fire = [[x for x in g if not x.startswith("buffer_load")] + ["s_nop 0"] for g in fire]
    return b.l, arm, fire
def a_issue(a, which):
    prep, arm, fire = a_parts(which)
    for x in prep + arm + sum(fire, []): a.e(x)
SUBS = {}
def call_issue(a, issue, which):
    nm = f"SUB_{issue.__name__}_{which}"; SUBS[nm] = (issue, which)
    a.e(f"s_call_b64 s[76:77], {nm}")
def emit_subs(a):
    for nm, f in SUBX.items(): a.e(f"SUB_{nm}:"); f(a); a.e("s_setpc_b64 s[76:77]")
    for nm, (issue, which) in SUBS.items():
        a.e(f"{nm}:"); issue(a, which); a.e("s_setpc_b64 s[76:77]")
def ld_steps(a, which, N, per, issue, npre, rate=2, plan={}, lo=0, hi=None, last=None, hold=(), sched=None, armed=False):
    NS = CFG[which]["NS"]
    prep, arm, fire = (w_parts if issue is w_issue else a_parts)(which); h = max(1, per * HSPLIT // 8)
    plan = {b: (x if isinstance(x, list) else [x]) for b, x in plan.items()}
    q = [s_ for s_ in range(npre) for _ in range(per)]
    def after(tag):
        if issue is w_issue and which == 4 and isinstance(tag, int) and tag < npre: tag = npre - 1
        return len(q) - 1 - max(i for i, x in enumerate(q) if x == tag)
    issued = npre; steps = []
    for b in range(NS):
        acts = plan.get(b, []); was = {}
        def do(pos):
            for n_, act in enumerate(acts):
                if act[0] != pos: continue
                if act[1] is not None: was[n_] = after(act[1])
                q.extend([act[4]] * act[3])
        do(True)
        k = 0
        if (b > 0 or (sched is not None and issue is a_issue)) and b not in hold:
            k = max(0, min(rate, min(NS, b - 1 + N) - issued)) if sched is None else sched[b]
        assert k or not any(x[0] == "mid" for x in acts)
        for j in range(k):
            q.extend([issued] * h)
            if j == 0: do("mid")
            q.extend([issued] * (per - h)); issued += 1
        do(False)
        w = after(b); assert w <= 63
        if which == 3 and b == 0: w = 63
        steps.append((k, w, b if acts else None, tuple(sorted(was.items())), issued < NS))
    def em(l):
        for x in l:
            a.e(x)
            if x == "s_barrier" and os.environ.get("JIT"): mstamp(a)
    F1, F2 = sum(fire[:h], []), sum(fire[h:], [])
    lprep = prep
    if len(prep) > 8:
        nm = f"PREP_{issue.__name__}_{which}"; SUBS[nm] = ((lambda a_, w_, l=prep: [a_.e(x) for x in l]), which)
        prep = [f"s_call_b64 s[76:77], {nm}"]
    if lo == 0 and npre < NS and not armed: em(prep + arm)
    i = lo; HI = NS if hi is None else hi
    while i < HI:
        j = i
        while j < HI and steps[j] == steps[i]: j += 1
        k, w, ab, was, more = steps[i]; n = j - i; was = dict(was)
        def run(pos):
            for n_, act in enumerate(plan.get(ab, [])):
                if act[0] != pos: continue
                if n_ in was: a.e(f"s_waitcnt vmcnt({was[n_]})")
                act[2]()
        tail = [f"s_waitcnt vmcnt({w})", "s_barrier"]
        if n > 2 and k == 1:
            em(F1); a.e("s_mov_b32 s43, 1"); L = a.lab("ld"); a.e(f"{L}:")
            em(lprep + F2 + arm + tail + F1)
            a.e("s_add_u32 s43, s43, 1"); a.e(f"s_cmp_lt_u32 s43, {n}"); a.e(f"s_cbranch_scc1 {L}")
            em(prep + F2 + arm + tail)
        else:
            for r in range(n):
                run(True)
                for jj in range(k):
                    nxt = more or jj < k - 1
                    em(F1)
                    if jj == 0: run("mid")
                    em((prep if nxt else []) + F2 + (arm if nxt else []))
                run(False)
                em(tail)
        i = j
    if hi is not None: return
    if which == 4:
        if issue is a_issue: a.e("s_cmp_eq_u32 s60, 1"); a.e("s_cbranch_scc1 K_fin")
        elif hold is HOLD: a.e("s_branch K_fin"); return
        if not RPL: r_pre(a)
    TF = os.environ.get("TF", "1") == "1" and issue is a_issue and which == 3
    if last and not TF: last()
    late = os.environ.get("TLATE", "0") == "1"
    if late: a.e("s_barrier")
    if issue is a_issue and W4POS == f"{which}C":
        X = a.lab("tw4"); a.e("s_cmp_lg_u32 s60, 0"); a.e(f"s_cbranch_scc1 {X}"); touch(a, B_W4, 7 * MB, 200); a.e(f"{X}:")
    if not late: a.e("s_barrier")
    if TF: last()

RK = int(os.environ.get("RK", "7")); assert RK == 0 or C0PUB <= RK <= STQ
PA2 = int(os.environ.get("PA2", "1")); PBB = int(os.environ.get("PBB", "2")); PC0 = int(os.environ.get("PC0", "4"))
HOLD = eval(os.environ.get("HOLD", "[2,3,4]"))
KAD = int(os.environ.get("KAD", "1"))
WA = eval(os.environ.get("WA", "(1,2)"))
def keep(a, js, get):
    a.e("s_and_b32 s36, s30, 1"); a.e("s_lshl_b32 s36, s36, 12"); a.e(f"s_add_u32 s36, s36, {CFG[1]['WB'] + min(js)*8192}"); a.e("v_add_u32 v6, s36, v2")
    for n_, j in enumerate(js):
        for i in range(4):
            R = vr(16 + 16 * n_ + 4 * i, 4); o = (j - min(js)) * 8192 + i * 1024
            a.e(f"ds_read_b128 {R}, v6 offset:{o}" if get else f"ds_write_b128 v6, {R} offset:{o}")
    a.e("s_waitcnt lgkmcnt(0)")
def a_loader(a, which):
    c = CFG[which]
    if which <= 2:
        plan = side_jobs(a, 1) if which == 1 else {}
        if which == 1 and "1" in DP: mstamp(a); a.e(f"s_sleep {os.environ.get('SJD', '30')}")
        else: mstamp(a); a.e("s_barrier")
        mstamp(a)
        for b in sorted(plan):
            for act in (plan[b] if isinstance(plan[b], list) else [plan[b]]):
                if act[1] is not None: a.e("s_waitcnt vmcnt(0)")
                act[2]()
        if which == 1:
            a.e("s_cmp_lg_u32 s30, 4"); a.e("s_cbranch_scc1 AL_nw"); a.e("s_cmp_eq_u32 s60, 0"); a.e("s_cbranch_scc1 AL_nw")
            a.e(f"s_add_u32 s54, s55, {(fso(ST_G3) - LSTR) & 0xffffffff:#x}"); a.e("s_add_u32 s53, s54, s92"); a.e("v_mov_b32 v9, s53")
            a.e("s_add_u32 s53, s53, 128"); a.e("v_writelane_b32 v9, s53, 1")
            a.e("s_add_u32 s53, s54, s93"); a.e("v_writelane_b32 v9, s53, 2"); a.e("s_add_u32 s53, s53, 128"); a.e("v_writelane_b32 v9, s53, 3")
            poll_core(a, 8, [9], 15, cnt=8)
            a.e("AL_nw:")
            if WA: keep(a, WA, True)
        if which == 2 and W33 > 1: call(a, third_late)
        if which == 2: a.e("s_waitcnt vmcnt(0)")
        a.e("s_barrier")
        if which == 1 and "p" not in os.environ.get("FO", "1pd"): late_park(a)
        call(a, after_g1 if which == 1 else after_g2)
        return
    a.e("s_and_b32 s35, s30, 1")
    if which == 2:
        hs_srd(a, 12)
        a.e("s_lshl_b32 s38, s28, 11"); a.e("s_add_u32 s38, s38, 16384"); a.e(f"s_mul_i32 s36, s35, {4*PITCH}"); a.e("s_add_u32 s38, s38, s36")
    else:
        lsrd(a, 12, c["A"], XSZ if which != 4 else H2SZ)
        a.e(f"s_mul_i32 s38, s35, {4*c['KBT']*2048}")
        if which == 4: a.e(f"s_mul_i32 s36, s31, {7*16384}"); a.e("s_add_u32 s38, s38, s36")
    a.e("s_lshl_b32 s41, s35, 13"); a.e("s_mov_b32 s42, 0"); rot_init(a, which)
    assert c["NA"] == 3 or which == 3
    prep, arm, fire = a_parts(which)
    if which == 4:
        flag_addr(a, 9, ST_G3A); flag_addr(a, 10, ST_G3B); flag_addr(a, 12, ST_G3)
        a.e("v_mov_b32 v13, 1"); a.e("s_and_b32 s51, s30, 1"); a.e("s_lshl_b32 s51, s51, 30")
        def signal(r): a.e("s_mov_b64 exec, 1"); a.e(f"buffer_atomic_add v13, v{r}, s[56:59], s51 offen {SC}"); a.e("s_mov_b64 exec, -1")
        a.e("s_lshl_b32 s54, s60, 2"); a.e("s_add_u32 s54, s54, 4"); lds_spin(a, LW + 64, "s54", 14, nap=2)
        signal(9)
        if not PA2: poll_core(a, 8, [9], 1, cnt=8)
        mstamp(a)
        plan = {6 - L4: ("mid", None, lambda: flag_try(a, 11, 10), 1, "f"), 8 - L4: ("mid", "f", lambda: flag_check(a, 11, 10, 8), 0, None),
                13 - L4: ("mid", None, lambda: flag_try(a, 11, 12), 1, "g"), 15 - L4: ("mid", "g", lambda: flag_check(a, 11, 12, 8), 0, None)}
        plan = {k_: [x] for k_, x in plan.items()}
        if PA2:
            plan[1] = [(False, None, lambda: flag_try(a, 8, 9), 1, "a")]
            plan[2] = [(True, "a", lambda: flag_check(a, 8, 9, 8), 0, None)]
        if DP:
            a.e("v_xor_b32 v15, 128, v12")
            plan[20] = [("mid", None, lambda: flag_try(a, 11, 15), 1, "h")]; plan[22] = [("mid", "h", lambda: flag_check(a, 11, 15, 8), 0, None)]
        if int(os.environ.get("OT", "0")) >= 3:
            def ot():
                a.e(f"s_load_dwordx2 s[20:21], s[0:1], {D_OUT}"); a.e(f"s_mul_i32 s22, s60, {4*MB}"); a.e("s_mov_b32 s23, 0x20000"); a.e("s_lshl_b32 s36, s28, 18"); a.e("s_lshl_b32 s37, s29, 11")
                a.e("s_add_u32 s36, s36, s37"); a.e("s_waitcnt lgkmcnt(0)")
                a.e("s_mov_b64 exec, 1"); a.e(f"buffer_load_dword v16, v2, s[20:23], s36 offen {SC}"); a.e("s_mov_b64 exec, -1")
            plan.setdefault(int(os.environ["OT"]) % 100, []).append((False, None, ot, 1, "o"))
        plan.setdefault(PBB + 1, []).insert(0, (True, None, lambda: signal(10), 1, "s"))
        plan.setdefault(PC0 + 2, []).insert(0, (True, None, lambda: signal(12), 1, "s"))
        a.e("s_mov_b32 s44, 3")
        ld_steps(a, which, 3, 8, a_issue, 3, plan=plan, last=(lambda: keep(a, WA, False)) if WA and not KAD else None)
        if WA and KAD: keep(a, WA, False)
        return
    if which == 3:
        mask, cnt = flag_addr(a, 9, ST_G2)
        def wait2():
            if W33: call(a, third_put)
            elif B0E > 1: a.e(f"s_sleep {B0E}")
            poll_core(a, 8, [9], mask, cnt=cnt); mstamp(a); mstamp(a)
            if W3H: a.e("s_add_u32 s54, s60, 1"); lds_set(a, LW + 60, "s54", 10)
        N3 = 2 if "3" in DP else 1
        a.e(f"s_mov_b32 s44, {N3}"); a.e(f"s_mov_b32 s42, {16384*N3}")
        plan = side_jobs(a, 3)
        if os.environ.get("P30", "0") == "1":
            def wait0(): own_wait(a, ST_G2, False, 14); wait2()
            plan[0] = (True, None, wait0, 0, None)
            ld_steps(a, which, 3, 8, a_issue, 1, plan=plan, sched=[int(os.environ.get("P3N", "1")), 2 - int(os.environ.get("P3N", "1"))] + [1] * 13 + [0]); return
        plan[1] = (True, None, wait2, 0, None)
        PZ3 = int(os.environ.get("PZ3", "0"))
        if PZ3:
            a.srd(84, 4, 32 * MB, off=216 * MB)
            a.e("s_cmp_eq_u32 s60, 0"); a.e("s_cselect_b32 s86, s86, 0")
            for i in range(4): a.e(f"v_mov_b32 v{216+i}, -1")
            a.e("s_lshl_b32 s88, s2, 1"); a.e("s_and_b32 s50, s30, 1"); a.e("s_add_u32 s88, s88, s50"); a.e(f"s_mul_i32 s88, s88, {PZ3*12*1024}")
            def pz():
                for i in range(PZ3): a.e(f"buffer_store_dwordx4 v[216:219], v2, s[84:87], s88 offen offset:{i*1024} {SC}")
                a.e(f"s_add_u32 s88, s88, {PZ3*1024}")
            for b in range(2, 14):
                p_ = plan.get(b, []); p_ = p_ if isinstance(p_, list) else [p_]
                plan[b] = p_ + [(False, None, pz, PZ3, "z")]
        if V3:
            def w1_():
                X = a.lab("w1"); a.e("s_cmp_lg_u32 s60, 0"); a.e(f"s_cbranch_scc1 {X}"); a.e(f"s_sleep {B0E}"); poll_core(a, 8, [9], mask, cnt=cnt); a.e(f"{X}:")
                if int(os.environ.get("V3D", "0")): a.e("s_sleep " + os.environ["V3D"])
                mstamp(a); mstamp(a)
            def test(a):
                L = a.lab("sp"); D = a.lab("sq")
                a.e("s_add_u32 s47, s47, s41"); a.e("v_add_u32 v10, s47, v2"); a.e("s_mov_b32 s53, 0"); a.e("s_mov_b32 s34, m0")
                a.e(f"{L}:")
                for i in range(8): a.e(f"ds_read_b32 v{16+i}, v10 offset:{1024*i}")
                a.e("s_waitcnt lgkmcnt(0)")
                a.e("v_or3_b32 v16, v16, v17, v18"); a.e("v_or3_b32 v19, v19, v20, v21"); a.e("v_or3_b32 v16, v16, v22, v23"); a.e("v_bitop3_b32 v16, v16, v19, 1 bitop3:0xa8")
                a.e("v_cmp_ne_u32 vcc, 0, v16"); a.e(f"s_cbranch_vccz {D}")
                a.e(f"v_readlane_b32 s36, v{TV}, s46"); a.e("s_mov_b32 m0, s47"); a.e("s_add_u32 s36, s36, s38")
                for i in range(4):
                    if i: a.e("s_add_u32 m0, m0, 2048"); a.e("s_add_u32 s36, s36, 65536")
                    for k in range(2): a.e(f"buffer_load_dwordx4 v2, s[12:15], s36 offen offset:{1024*k} {SC} lds")
                a.e("s_waitcnt vmcnt(0)")
                a.e("s_add_u32 s53, s53, 1"); a.e("s_cmp_lt_u32 s53, s61"); a.e(f"s_cbranch_scc1 {L}"); a.e("s_mov_b32 s61, 0")
                a.e(f"{D}:"); a.e("s_mov_b32 m0, s34")
            def tst(b):
                def f():
                    X = a.lab("nt"); a.e("s_cmp_eq_u32 s60, 0"); a.e(f"s_cbranch_scc1 {X}")
                    a.e(f"s_mov_b32 s46, {b}"); a.e(f"s_mov_b32 s47, {(b % 3) * 16384}"); a.e("s_setprio 2"); call(a, test); a.e("s_setprio 0"); a.e(f"{X}:")
                return f
            plan = {k_: (x if isinstance(x, list) else [x]) for k_, x in plan.items()}
            plan[1] = [(True, None, w1_, 0, None)]
            plan.setdefault(V3 - 1, []).append((False, None, lambda: flag_try(a, 8, 9), 1, "g"))
            plan.setdefault(V3, []).insert(0, (True, "g", lambda: flag_check(a, 8, 9, cnt), 0, None))
            for b in range(1, V3 + 1): plan.setdefault(b, []).append((False, b, tst(b), 0, None))
        if os.environ.get("A3L", "0") == "1":
            def w1_():
                X = a.lab("w1"); a.e("s_cmp_lg_u32 s60, 0"); a.e(f"s_cbranch_scc1 {X}"); poll_core(a, 8, [9], mask, cnt=cnt); lds_set(a, LW + 60, 1, 10); a.e(f"{X}:")
            def w2_(): poll_core(a, 8, [9], mask, cnt=cnt, nap=2); mstamp(a); mstamp(a)
            plan[1] = (True, None, w1_, 0, None)
            p2 = plan[2] if isinstance(plan[2], list) else [plan[2]]
            plan[2] = [(True, None, w2_, 0, None)] + p2
            ld_steps(a, which, 3, 8, a_issue, N3, plan=plan, hold=(1,)); return
        ld_steps(a, which, c["NA"], 8, a_issue, N3, plan=plan, sched=eval(os.environ.get("A3S", "None")), last=lambda: r_pre1(a)); return
    assert 0

def side_jobs(a, which):
    c = CFG[which]; plan = {}
    sv = 184 if which == 3 and WA else 16; S, Q, mean, rs, tt, ad, fa, fr = 216, 217, 218, 219, 220, 221, 222, 223
    cv = 180 if which == 3 else 24; N = c["LDW"] // 2; co_ = 224; HB = c["TN16"] * 32
    lg = 3 if which == 1 else 5
    def cld(k0=0, k1=4):
        if k0 == 0:
            a.srd(24, 4, 32 * N * 4, off=CSP[which])
            a.e("s_cmp_eq_u32 s60, 0"); a.e("s_cselect_b32 s26, s26, 0")
            if NOCS3 and which == 3: a.e("s_mov_b32 s26, 0")
            a.e("s_and_b32 s36, s30, 1"); a.e(f"s_mul_i32 s36, s36, {HB}"); a.e(f"s_mul_i32 s37, s29, {2*HB}"); a.e("s_add_u32 s37, s36, s37")
            a.e(f"v_lshrrev_b32 v{co_}, {lg}, v1"); a.e(f"v_mul_u32_u24 v{co_}, {N*4}, v{co_}")
            a.e(f"v_and_b32 v{cv-1}, {16*((1 << lg) - 1)}, v2"); a.e(f"v_add_u32 v{co_}, v{co_}, v{cv-1}")
        a.e("s_cmp_eq_u32 s60, 0"); a.e("s_cselect_b64 exec, -1, 0")
        for k in range(k0, k1):
            a.e(f"buffer_load_dwordx4 {vr(cv+4*(k if k < 9 else k - 8),4)}, v{co_}, s[24:27], s37 offen {SC}"); a.e(f"s_add_u32 s37, s37, {N*4*(64 >> lg)}")
        a.e("s_mov_b64 exec, -1")
    def piece(lines, l0=False):
        def f():
            X = a.lab("pc")
            if l0: a.e("s_cmp_lg_u32 s60, 0"); a.e(f"s_cbranch_scc1 {X}")
            for x in lines: a.e(x)
            if l0: a.e(f"{X}:")
        return f
    def cadd(k0, k1): return [f"v_add_f32 v{cv+h}, v{cv+h}, v{cv+4*k+h}" for k in range(k0, k1) for h in range(4)]
    def sw(op): return [f"v_mov_b32 v{cv+4+e}, v{cv+e}" for e in range(4)] + [f"{op} v{cv+e}, v{cv+4+e}" for e in range(4)] + cadd(1, 2)
    if which in (1, 3):
        cout = ["s_and_b32 s36, s30, 1", f"s_mul_i32 s36, s36, {HB}", f"s_add_u32 s36, s36, {CSO[which]}", f"v_add_u32 v{cv-1}, s36, v2",
                f"s_bfm_b64 exec, {HB//16}, 0", f"ds_write_b128 v{cv-1}, {vr(cv,4)}", "s_mov_b64 exec, -1", "s_waitcnt lgkmcnt(0)"]
    if which == 1:
        flag_addr(a, fa, ST_R2)
        def ld():
            flag_check(a, fr, fa, 16)
            lsrd(a, 20, oLNS, 2048); a.e("s_and_b32 s35, s30, 1"); a.e("s_lshl_b32 s35, s35, 10")
            a.e(f"buffer_load_dwordx4 {vr(sv,4)}, v2, s[20:23], s35 offen {SC}")
        fin = piece(["s_and_b32 s36, s30, 1", "s_lshl_b32 s36, s36, 10", f"s_add_u32 s36, s36, {LNSL}", f"v_add_u32 v{ad}, s36, v2", f"ds_write_b128 v{ad}, {vr(sv,4)}", "s_waitcnt lgkmcnt(0)"])
        a.e("s_lshl_b32 s53, s29, 7"); a.e(f"s_add_u32 s53, s53, {F_CS}"); a.e(f"v_mov_b32 v{fa+4}, s53")
        def cld1(): flag_check(a, fr + 4, fa + 4, 16); cld()
        work = cadd(1, 4) + [f"v_add_f32_dpp v{cv+e}, v{cv+e}, v{cv+e} row_ror:8 row_mask:0xf bank_mask:0xf" for e in range(4)] + \
               sw("v_permlane16_swap_b32") + sw("v_permlane32_swap_b32")
        plan = {2: (False, None, lambda: flag_try(a, fr + 4, fa + 4), 1, "e"), 5: [(False, "e", cld1, 4, "c"), (False, None, lambda: flag_try(a, fr, fa), 1, "f")],
                8: (False, "f", ld, 1, "d"), 15: [(False, None, piece(cout, 1), 0, None), (False, "d", fin, 0, None)]}
        plan[9] = (False, None, piece(work, 1), 0, None)
    if which == 3:
        flag_addr(a, fa, ST_G2S)
        a.e(f"v_lshlrev_b32 v{ad}, 3, v1")
        def ld(k0, n_=8):
            def f():
                if k0 == 0:
                    flag_check(a, fr, fa, 16)
                    lsrd(a, 20, oST2, 24576)
                    a.e("s_and_b32 s35, s30, 1"); a.e("s_lshl_b32 s35, s35, 9")
                for k in range(k0, k0 + n_):
                    if k % 4 == 0 or k == k0: a.e(f"s_add_u32 s36, s35, {(k >> 3) * 16384 + (k & 4) * 1024}")
                    a.e(f"buffer_load_dwordx2 {vr(sv+2*k,2)}, v{ad}, s[20:23], s36 offen offset:{(k&3)*1024} {SC}")
            return f
        b = Rec()
        for st_ in (8, 4, 2, 1):
            for k in range(2 * st_): b.e(f"v_add_f32 v{sv+k}, v{sv+k}, v{sv+2*st_+k}")
        o_ = sv + 4
        b.e(f"v_mul_f32 v{o_}, {f32(1/1024)}, v{sv}"); b.e(f"v_mul_f32 v{Q}, {f32(1/1024)}, v{sv+1}")
        b.e(f"v_fma_f32 v{Q}, -v{o_}, v{o_}, v{Q}"); b.e(f"v_max_f32 v{Q}, 0, v{Q}")
        ln_finish(b, o_, Q, rs, o_ + 1)
        b.e(f"v_mul_f32 v{o_+2}, {f32(GC1)}, v{rs}"); b.e(f"v_mul_f32 v{o_+3}, v{rs}, v{rs}")
        b.e(f"v_mul_f32 v{o_+3}, v{o_+3}, v{o_+2}"); b.e(f"v_mul_f32 v{o_+3}, {f32(0.044715)}, v{o_+3}")
        b.e("s_lshl_b32 s35, s35, 1"); b.e(f"s_add_u32 s35, s35, {LNSL}"); b.e(f"v_add_u32 v{tt}, s35, v2")
        b.e(f"ds_write_b128 v{tt}, {vr(o_,4)}"); b.e("s_waitcnt lgkmcnt(0)")
        def both(f, g):
            def h(): f(); g()
            return h
        if WA:
            plan = {2: (False, None, lambda: cld(0, 5), 5, "c"), 3: (False, None, lambda: cld(5, 9), 4, "c"),
                    5: [(False, "c", piece(cadd(1, 9), 1), 0, None), (False, None, lambda: cld(9, 16), 7, "e")], 6: (False, None, lambda: flag_try(a, fr, fa), 1, "f"),
                    7: (False, "e", piece(cadd(1, 8), 1), 0, None), 8: [(False, None, piece(sw("v_permlane32_swap_b32") + cout, 1), 0, None), (False, "f", ld(0, 4), 4, "d")],
                    9: (False, None, ld(4, 6), 6, "d"), 10: (False, None, ld(10, 6), 6, "d"),
                    12: (False, "d", piece(b.l[:16]), 0, None), 13: (False, None, piece(b.l[16:32]), 0, None), 14: (False, None, piece(b.l[32:]), 0, None)}
        elif os.environ.get("SJ3", "1") == "1":
            plan = {2: (False, None, lambda: cld(0, 3), 3, "c"), 3: (False, None, lambda: cld(3, 6), 3, "c"), 4: [(False, None, lambda: cld(6, 9), 3, "c"), (False, None, lambda: flag_try(a, fr, fa), 1, "f")],
                    6: [(False, "f", ld(0, 4), 4, "d"), (False, None, piece(cadd(1, 5), 1), 0, None)],
                    7: [(False, None, ld(4, 4), 4, "d"), (False, None, both(piece(cadd(5, 9), 1), lambda: cld(9, 12)), 3, "e")],
                    8: [(False, None, ld(8, 4), 4, "d"), (False, None, lambda: cld(12, 14), 2, "e")], 9: [(False, None, ld(12, 4), 4, "d"), (False, None, lambda: cld(14, 16), 2, "e")],
                    11: [(False, "e", piece(b.l[:16]), 0, None)], 12: [(False, None, piece(b.l[16:32]), 0, None), (False, None, piece(cadd(1, 4), 1), 0, None)],
                    13: [(False, None, piece(b.l[32:]), 0, None)], 14: (False, None, piece(cadd(4, 8), 1), 0, None), 15: (False, None, piece(sw("v_permlane32_swap_b32") + cout, 1), 0, None)}
        else:
            plan = {2: (False, None, cld, 4, "c"), 3: (False, None, lambda: cld(4, 9), 5, "c"),
                    5: [(False, "c", piece(cadd(1, 5), 1), 0, None), (False, None, lambda: flag_try(a, fr, fa), 1, "f")],
                    6: (False, None, both(piece(cadd(5, 9), 1), lambda: cld(9, 16)), 7, "e"),
                    7: (False, "f", ld(0), 8, "d"), 8: (False, None, ld(8), 8, "d"),
                    9: (False, "e", piece(cadd(1, 5), 1), 0, None), 10: (False, None, piece(cadd(5, 8), 1), 0, None), 11: (False, None, piece(sw("v_permlane32_swap_b32") + cout, 1), 0, None),
                    12: (False, "d", piece(b.l[:16]), 0, None), 13: (False, None, piece(b.l[16:32]), 0, None), 14: (False, None, piece(b.l[32:]), 0, None)}
    return plan

W2E = int(os.environ.get("W2E", "3"))
def w2_early(a):
    if W2E: w_setup(a, 2, pre=False); w1_slots(a, range(W2E), pace=8)
def w_loader(a, which):
    c = CFG[which]
    if which < 3:
        if which == 1: a.e("s_waitcnt vmcnt(0)")
        if which == 1 and "a" in STO: stouch(a, 3, 128 if "8" in STO else 64, 2); mstamp(a)
        if which == 1 and sum(SG): sb_init(a)
        sg(a, SG[2*which-2])
        if not (which == 1 and "1" in DP): a.e("s_barrier")
        sg(a, SG[2*which-1])
        if which == 1 and WE and WK:
            assert 8 not in WE or W3N == 1
            a.e("s_and_b32 s36, s30, 1"); a.e("s_lshl_b32 s36, s36, 12"); a.e(f"s_add_u32 s36, s36, {CFG[1]['WB'] + 7*8192}"); a.e("v_add_u32 v6, s36, v2")
            for j in WE:
                for i in range(4): a.e(f"ds_read_b128 {vr(WER[j][i],4)}, v6 offset:{(j-7)*8192+i*1024}")
            a.e("s_waitcnt lgkmcnt(0)")
        if which == 1 and "b" in STO: stouch(a, 3, 128 if "8" in STO else 64, 2); mstamp(a)
        if which == 2 and W33 > 1: call(a, third_late)
        if which == 2: a.e("s_waitcnt vmcnt(0)")
        a.e("s_barrier")
        if which == 1 and "p" not in os.environ.get("FO2", "1pd"): late_park(a)
        call(a, after_g1 if which == 1 else after_g2); mstamp(a)
        return
    args = (a, which, c["NW"], c["STB"] // 2048, w_issue, c["NPRE"], c["WR"])
    if which == 4:
        assert c["NW"] == 6 and c["WB"] == CFG[1]["WB"] + 3 * 8192
        a.e("s_cmp_eq_u32 s60, 1"); a.e("s_cbranch_scc1 WL_t1")
        H0 = eval(os.environ.get("H0", "()")); T0 = 24 + len(H0)
        ld_steps(*args, hi=T0, hold=H0)
        WT = eval(os.environ.get("WT", "[(11,12,9),(13,14,10),(3,4),(5,6,0),(7,8,1,2,15),()]"))
        if WE:
            WT = [tuple(j for j in l if j not in WE and j not in WA) for l in WT]
            def put(js):
                a.e(f"s_add_u32 s36, s41, {7*8192}"); a.e("v_add_u32 v6, s36, v2")
                for j in js:
                    for i in range(4): a.e(f"ds_write_b128 v6, {vr(WER[j][i],4)} offset:{(j-7)*8192+i*1024}")
        WD = eval(os.environ.get("WD", "()"))
        def some(js):
            def f():
                if js is WT[len(H0)]:
                    w_setup(a, 1, pre=False)
                    a.e("s_and_b32 s36, s99, 7"); a.e("s_cmp_eq_u32 s36, 3"); a.e("s_cselect_b64 s[50:51], 0, -1")
                for j in js:
                    if j in (9, 10) and js is not WT[5]:
                        a.e(f"s_add_u32 s39, s38, {j*64*2048}")
                        for i in range(4): a.e(f"buffer_load_dwordx4 {vr(16+16*(j-9)+4*i,4)}, v{WVB[1]}, s[12:15], s39 offen"); a.e("s_add_u32 s39, s39, 16384")
                    else:
                        if j in WD: a.e("s_mov_b64 exec, s[50:51]")
                        w1_slots(a, (j,), pace=8 if js is WT[5] else 0)
                        if j in WD: a.e("s_mov_b64 exec, -1")
            return f
        plan = {24 + i: (False, None, some(WT[i]), 4 * len(WT[i]), "w") for i in range(4) if WT[i]}
        assert not any(WT[:len(H0)])
        ld_steps(*args, plan=plan, lo=T0, hold=H0, last=(lambda: (some(WT[4])(), put([j for j in WE if j < 9 and not KAD]))) if WE else some(WT[4]))
        rg = [j for j in (9, 10) if j not in WT[5] and j not in WE]
        if WE: put([j for j in WE if j >= 9 or KAD]); a.e("s_waitcnt lgkmcnt(0)")
        if WD:
            a.e("s_cmp_lg_u32 s50, 0"); a.e("s_cbranch_scc1 WL_nd"); w1_slots(a, WD); a.e("WL_nd:")
        if rg:
            yg = [j for l in WT[:5] for j in l]; yg = len(yg) - 1 - max(yg.index(9), yg.index(10))
            a.e(f"s_add_u32 s36, s41, {9*8192}"); a.e("v_add_u32 v6, s36, v2"); a.e(f"s_waitcnt vmcnt({4*yg if os.environ.get('YG', '1') == '1' else 0})")
            for j in rg:
                for i in range(4): a.e(f"ds_write_b128 v6, {vr(16+16*(j-9)+4*i,4)} offset:{(j-9)*8192+i*1024}")
            a.e("s_waitcnt lgkmcnt(0)")
        some(WT[5])(); mstamp(a)
        a.e("s_branch NEXT")
        a.e("WL_t1:")
        ld_steps(*args, hold=HOLD)
        return
    plan = {}
    if "3" in DP:
        lsrd(a, 20, oX1P, XSZ)
        a.e(f"v_readlane_b32 s36, v{TV+3}, 1"); a.e("s_and_b32 s35, s30, 1"); a.e("s_lshl_b32 s46, s35, 18"); a.e("s_lshl_b32 s47, s35, 13"); a.e("s_add_u32 s47, s47, 16384")
        a.e("s_bfe_u32 s37, s36, 0x20002"); a.e("s_lshl_b32 s37, s37, 14"); a.e("s_and_b32 s36, s36, 3"); a.e("s_lshl_b32 s36, s36, 11"); a.e("s_add_u32 s46, s46, s36"); a.e("s_add_u32 s46, s46, s37")
        a.e("v_add_u32 v8, s47, v2")
        if W3E: w_issue(a, 3); args = args[:5] + (3,) + args[6:]
        def second():
            L = a.lab("sp"); D = a.lab("sq")
            a.e("s_mov_b32 s34, m0"); a.e("s_cmp_lg_u32 s60, 0"); a.e(f"s_cbranch_scc1 {L}a")
            lds_spin(a, LW + 60, 1, 6, nap=1)
            a.e(f"{L}a:"); a.e("s_mov_b32 s53, 0")
            if int(os.environ.get("S3D", "0")): a.e("s_sleep " + os.environ["S3D"])
            a.e(f"{L}:"); a.e("s_mov_b32 m0, s47"); a.e("s_mov_b32 s36, s46")
            for i in range(4):
                if i: a.e("s_add_u32 m0, m0, 2048"); a.e("s_add_u32 s36, s36, 65536")
                for k in range(2): a.e(f"buffer_load_dwordx4 v2, s[20:23], s36 offen offset:{1024*k} {SC} lds")
            a.e("s_waitcnt vmcnt(0)")
            for i in range(8): a.e(f"ds_read_b32 v{10+i}, v8 offset:{1024*i}")
            a.e("s_waitcnt lgkmcnt(0)")
            a.e("v_or3_b32 v10, v10, v11, v12"); a.e("v_or3_b32 v13, v13, v14, v15"); a.e("v_or3_b32 v10, v10, v16, v17"); a.e("v_bitop3_b32 v10, v10, v13, s60 bitop3:0xa8")
            a.e("v_cmp_ne_u32 vcc, 0, v10"); a.e(f"s_cbranch_vccz {D}"); a.e("s_sleep 1")
            a.e("s_add_u32 s53, s53, 1"); a.e("s_cmp_lt_u32 s53, s61"); a.e(f"s_cbranch_scc1 {L}"); a.e("s_mov_b32 s61, 0")
            a.e(f"{D}:"); a.e("s_mov_b32 m0, s34")
        plan[1] = (True, None, second, 8, "x")
    elif W33:
        plan[1] = (True, None, lambda: call(a, third_put), 0, None); args = args[:5] + (3,) + args[6:]
    elif W3H: plan[1] = (True, None, lambda: (a.e("s_add_u32 s54, s60, 1"), lds_spin(a, LW + 60, "s54", 6, nap=1)), 0, None)
    def sg3(n):
        def f():
            X = a.lab("st"); a.e("s_cmp_lg_u32 s60, 0"); a.e(f"s_cbranch_scc1 {X}"); sb(a, n); a.e(f"{X}:")
        return f
    for b_, n_ in eval(os.environ.get("SG3", "{}")).items(): plan[b_] = (False, None, sg3(n_), 0, None)
    RPW = int(os.environ.get("RPW", "15"))
    if RPW < 16: plan[RPW] = (False, None, lambda: call(a, r_pre0), 4, "r")
    def early(js):
        def f():
            a.e("s_mov_b64 s[20:21], s[68:69]"); a.e(f"s_mov_b32 s22, {2*MB}"); a.e("s_mov_b32 s23, 0x20000")
            a.e("s_and_b32 s36, s30, 1"); a.e("s_lshl_b32 s36, s36, 16"); a.e("s_lshl_b32 s37, s99, 7"); a.e("s_add_u32 s37, s37, s36")
            a.e("s_cmp_eq_u32 s60, 0"); a.e("s_cselect_b64 exec, -1, 0")
            for j in js:
                for i in range(4): a.e(f"s_add_u32 s36, s37, {j*64*2048 + i*16384}"); a.e(f"buffer_load_dwordx4 {vr(WER[j][i],4)}, v{WVB[1]}, s[20:23], s36 offen")
            a.e("s_mov_b64 exec, -1")
        return f
    if WE and not WK:
        for b_, js in eval(os.environ.get("WES", "{15: WE}")).items():
            p_ = plan.get(b_, []); plan[b_] = (p_ if isinstance(p_, list) else [p_]) + [(False, None, early(js), 4 * len(js), "e")]
    ld_steps(*args, plan=plan, last=(lambda: r_pre1(a)) if RPW == 16 else None)
WE = eval(os.environ.get("WE", "(9,10,7)")); WK = int(os.environ.get("WK", "1"))
WER = {9: [16, 20, 24, 28], 10: [32, 36, 40, 44], 7: [204, 208, 212, 216], 8: [220, 224, 200, 176]}
W3H = int(os.environ.get("W3H", "0")) or "3" in DP; W3E = int(os.environ.get("W3E", "1"))
W1L = int(os.environ.get("W1L", "3"))

B0E = int(os.environ.get("B0E", "6")); RPL = int(os.environ.get("RPL", "1")); RPC = int(os.environ.get("RPC", "1"))
LF1 = os.environ.get("LF1", "sc1"); LF2 = os.environ.get("LF2", "")
RES2 = 148; C2R = 200; SO3 = 238; RES4 = [172, 176, 180, 184, 188, 192, 196, 240]
def g_compute(a, which):
    c = CFG[which]
    WM, WN, MT, NT, KBT, NS, NA, NW, TN16, STB, WB = [c[k] for k in "WM WN MT NT KBT NS NA NW TN16 STB WB".split()]
    v = VA(6); nm = f"G{which}"
    lane = 1; l16 = 2
    t = v(); t2 = v(); pt = v(4, 2)
    NTILE = (0, 99, 29, 29, 33)[which]
    a_ = a
    if which != 3: a = Rec()
    if WN == 2: a.e("s_lshr_b32 s34, s30, 1"); a.e("s_and_b32 s35, s30, 1")
    else: a.e("s_mov_b32 s34, s30"); a.e("s_mov_b32 s35, 0")
    a0 = v(); w0 = v(4, 1); aa = v(); wa = v(4, 1); J = v(); G = v()
    a.e(f"v_and_b32 v{J}, 15, v{lane}"); a.e(f"v_lshrrev_b32 v{G}, 4, v{lane}")
    a.e(f"s_mul_i32 s37, s34, {MT}")
    a.e(f"s_mul_i32 s38, s{NTILE}, {TN16}"); a.e(f"s_mul_i32 s36, s35, {NT}"); a.e("s_add_u32 s38, s38, s36")
    acc = v(MT * NT * 4, 4); NF = MT + NT if which > 2 else 8
    fX = v(NF * 4, 4); fY = v(NF * 4, 4); tmp = v(); tp = v(4, 2)
    def A_(mt, nt): return acc + 4 * (mt * NT + nt)
    def SUBM(r): return f"{vr(r,2)} op_sel_hi:[1,0] neg_lo:[0,1] neg_hi:[0,1]"
    def MULR(r): return f"{vr(r,2)} op_sel:[0,1] op_sel_hi:[1,1]"
    if which in (2, 4):
        res = RES2
        a.e("s_lshr_b32 s36, s38, 1"); spread(a, 39, 36); a.e("s_lshl_b32 s36, s37, 16"); a.e("s_add_u32 s39, s39, s36")
    if which <= 2:
        AB = 164; LO = v(8, 1)
        def aload(b, kk):
            if which == 1: return [f"buffer_load_dwordx4 {vr(AB+16*b+8*kk+4*mt,4)}, v{LO+mt+(b&2)}, s[8:11], s44 offen offset:{(b&1)*2048+kk*1024} {LF1}" for mt in range(2)]
            return [f"buffer_load_dwordx4 {vr(AB+16*b+8*kk+4*mt,4)}, v{LO+mt}, s[8:11], s44 offen {LF2}" for mt in range(2)]
        def seq(pairs, s0):
            if which == 1: return [x for b, kk in pairs for x in aload(b, kk)]
            return ([f"s_mov_b32 s44, {s0}"] if s0 is not None else []) + [x for b, kk in pairs for x in aload(b, kk) + ["s_add_u32 s44, s44, 16384"]]
        def past(l): return [x + (SC if x.startswith("buffer") and SC not in x else "") for x in l]
        PR = [(i >> 1, i & 1) for i in range(7)]
        h = Rec()
        if which == 1:
            lsrd(h, 8, oX3, XSZ); OOB = MB
            for i in range(4): (h if i < 2 else a).e(f"v_add_u32 v{LO+i}, {(i & 1) * 65536 + (i >> 1) * 4096}, v{l16}")
            h.e("s_lshl_b32 s44, s30, 17")
            for i in range(1, 4): a.e(f"s_add_u32 s{44+i}, s44, {16384*i}")
        else:
            OOB = 0x40000000; LP = v(2, 1)
            h.srd(8, 4, 8 * GSTR + LSTR, off=LB0 + oHS)
            h.e(f"s_sub_u32 s47, s55, {LB0 + oSM}"); h.e("s_lshl_b32 s46, s30, 9"); h.e("s_add_u32 s47, s47, s46")
            h.e("s_add_u32 s45, s92, 2048"); h.e("s_cmp_eq_u32 s28, 0"); h.e(f"s_cselect_b32 s45, {OOB}, s45"); h.e("s_cmp_eq_u32 s30, 0"); h.e("s_cselect_b32 s45, s45, 0")
            a.e("s_sub_u32 s46, s93, 2048"); a.e("s_cmp_eq_u32 s28, 15"); a.e(f"s_cselect_b32 s46, {OOB}, s46"); a.e("s_cmp_eq_u32 s30, 3"); a.e("s_cselect_b32 s46, s46, 0")
            for q_, sh in enumerate((1, -1, 2, -2)):
                e_ = h if q_ == 0 else a
                e_.e(f"s_add_u32 s53, s47, {(-16 * sh) & 0xffffffff:#x}"); e_.e(f"v_add_u32 v{LO+2*q_}, s53, v{a0}"); e_.e(f"v_add_u32 v{LO+2*q_+1}, 256, v{LO+2*q_}")
                R_ = LO + 2 * q_ + (0 if sh > 0 else 1)
                e_.e(f"v_add_u32 v{LP}, s{45 if sh > 0 else 46}, v{R_}")
                e_.e(f"v_cmp_gt_u32 vcc, {sh}, v{J}" if sh > 0 else f"v_cmp_le_u32 vcc, {16 + sh}, v{J}"); e_.e(f"v_cndmask_b32 v{R_}, v{R_}, v{LP}, vcc")
            for k in range(2): a.e(f"v_mov_b32 v{LP+k}, v{LO+k}")
        EARLY = str(which) in DP and str(which) in os.environ.get("EP", "2")
        F0 = eval(os.environ.get("F0", "(0,4,4)"))[which]
        try0 = past(seq(PR[:2], 0)) + seq(PR[2:F0], None)
        for x in h.l: a_.e(x)
        if EARLY and which == 1:
            for x in try0: a_.e(x)
    else:
        a.e(f"s_mul_i32 s36, s34, {MT*2048}"); a.e(f"v_add_u32 v{a0}, s36, v{l16}")
    nwr, wpos = w_bases(a, which, w0, 35, NT, t, t2)
    if which <= 2:
        for x in a.l: a_.e(x)
    a = a_
    if which == 3 and not B0E: publish(a, ST_G2S, 4, pt, ctr=48)
    if which == 2:
        a.e(f"s_lshl_b32 s36, s37, 8"); a.e(f"s_add_u32 s36, s36, {LNSL}"); a.e(f"v_lshlrev_b32 v{t2}, 4, v{J}"); a.e(f"v_add_u32 v{t2}, s36, v{t2}")
        for mt in range(MT): a.e(f"ds_read_b64 {vr(fX+2*mt,2)}, v{t2} offset:{mt*256}")
        a.e("s_waitcnt vmcnt(4) lgkmcnt(0)")
        if EARLY:
            if int(os.environ.get("G2D", "6")): a.e("s_sleep " + os.environ.get("G2D", "6"))
            if int(os.environ.get("G2D0", "2")): a.e("s_cmp_lg_u32 s60, 0"); a.e("s_cbranch_scc1 G2_nd"); a.e("s_sleep " + os.environ.get("G2D0", "2")); a.e("G2_nd:")
            for x in try0: a.e(x)
        for mt in range(MT):
            for p in range(NT // 2):
                for e in range(4):
                    X = A_(mt, 2 * p) + 2 * e
                    unpack(a, X, X + 1, res + (mt * (NT // 2) + p) * 4 + e)
                    a.e(f"v_pk_add_f32 {vr(X,2)}, {vr(X,2)}, {SUBM(fX+2*mt)}"); round2(a, X, X + 1, tmp)
                    a.e(f"v_pk_mul_f32 {vr(X,2)}, {vr(X,2)}, {MULR(fX+2*mt)}"); round2(a, X, X + 1, tmp)
    elif which == 1:
        for i in range(0, MT * NT * 4, 2): a.e(f"v_pk_mov_b32 {vr(acc+i,2)}, 0, 0")
    RX = [180, 184, 188, 192, 196, 230, 234, 248]
    def last_res():
        b0 = Rec()
        for i in range(2):
            b0.e(f"s_add_u32 s36, s40, {i*65536}")
            for p in range(2):
                b0.e(f"buffer_load_dwordx4 {vr(RX[2*(2*i+p)],4)}, v{l16}, s[84:87], s36 offen offset:{p*1024} {SC}")
                b0.e(f"buffer_load_dwordx4 {vr(RX[2*(2*i+p)+1],4)}, v{l16}, s[88:91], s36 offen offset:{p*1024} {SC}")
        return b0.l
    def reads(F, kk):
        o = []
        for mt in range(MT): o.append(f"ds_read_b128 {vr(F+4*mt,4)}, v{aa} offset:{mt*256+kk*8192 if which == 2 else mt*2048+kk*1024}")
        for nt in range(NT):
            for h in range(2):
                r, imm = wpos(nt, kk, h)
                o.append(f"ds_read_b64_tr_b16 {vr(F+4*(MT+nt)+2*h,2)}, v{wa+r} offset:{imm}")
        NR = os.environ.get("NOREAD")
        if NR == "N": o = []
        if NR == "A": o = o[MT:]
        if NR == "W": o = o[:MT]
        if NR == "H": o = o[::2]
        if NR == "X": o = o + o[:2]
        if NR == "XX": o = o + o[:MT]
        return o
    def mix(rd, ex):
        rd = list(rd)
        for i, x in enumerate(ex): rd.insert(min(len(rd), (i + 1) * len(rd) // (len(ex) + 1)), x)
        return rd
    def mfmas(F, rd, tail=()):
        n = MT * NT; k = 0; tot = len(rd); span = max(1, n * 3 // 4); done = 0; tail = list(tail); per = -(-len(tail) // max(1, n - span))
        OR = os.environ.get("ORDER", "2")
        order = {"0": [(nt, mt) for nt in range(NT) for mt in range(MT)],
                 "1": [(nt, mt) for mt in range(MT) for nt in range(NT)],
                 "2": [(nt, mt if nt % 2 == 0 else MT - 1 - mt) for nt in range(NT) for mt in range(MT)],
                 "3": [(nt if mt % 2 == 0 else NT - 1 - nt, mt) for mt in range(MT) for nt in range(NT)]}[OR]
        for nt, mt in order:
            if True:
                cc = acc + 4 * (mt * NT + nt)
                if str(which) not in os.environ.get("NOMF", ""): a.e(f"v_mfma_f32_16x16x32_bf16 {vr(cc,4)}, {vr(F+4*(MT+nt),4)}, {vr(F+4*mt,4)}, {vr(cc,4)}")
                k += 1
                while rd and done < (tot * k + span - 1) // span: a.e(rd.pop(0)); done += 1
                if k >= span and k < n:
                    for _ in range(min(per, len(tail))): a.e(tail.pop(0))
        assert not rd and not tail
    so = SO3 if which == 3 else a0; cs = fX; lns = fX + 4 * NT; G4W = 240; EA = 244
    def ep_setup(b):
        if which in (1, 3):
            assert which == 1 or (fY <= C2R and C2R + 24 <= fY + 4 * NF)
            b.e(f"s_mul_i32 s36, s35, {NT*64}"); b.e(f"s_add_u32 s36, s36, {CSO[which]}"); b.e(f"v_lshlrev_b32 v{t}, 4, v{G}"); b.e(f"v_add_u32 v{t}, s36, v{t}")
            b.e(f"s_lshl_b32 s36, s37, 8"); b.e(f"s_add_u32 s36, s36, {LNSL + (8 if which == 1 else 0)}"); b.e(f"v_lshlrev_b32 v{t2}, 4, v{J}"); b.e(f"v_add_u32 v{t2}, s36, v{t2}")
        if which == 3:
            lsrd(b, 16, oH2, H2SZ)
            b.e(f"s_mul_i32 s39, s37, {224*1024}")
            for P in range(4):
                b.e("s_lshr_b32 s36, s38, 1"); b.e(f"s_add_u32 s36, s36, {P}"); spread(b, 44 + P, 36); b.e(f"s_add_u32 s{44+P}, s{44+P}, s39")
            w_bases(b, 4, G4W, 35, 4, tp, tp + 1)
            b.e("s_lshl_b32 s38, s33, 3"); b.e("s_lshl_b32 s36, s35, 2"); b.e("s_add_u32 s38, s38, s36")
            b.e("s_lshr_b32 s36, s38, 1"); spread(b, 39, 36); b.e("s_lshl_b32 s36, s37, 16"); b.e("s_add_u32 s39, s39, s36")
            b.e("s_lshl_b32 s40, s31, 17"); b.e("s_add_u32 s40, s40, s39")
            b.e("s_xor_b32 s41, s31, 1"); b.e("s_lshl_b32 s41, s41, 17"); b.e("s_add_u32 s41, s41, s39")
            lsrd(b, 84, oX3, XSZ); lsrd(b, 88, oX1P, XSZ)
            b.e("s_lshl_b32 s36, s37, 1"); b.e("s_add_u32 s36, s36, s35"); b.e("s_lshl_b32 s36, s36, 10"); b.e(f"v_add_u32 v{EA}, s36, v{l16}")
            b.e(f"v_mov_b32 v{EA+1}, 1"); b.e(f"v_mov_b32 v{EA+2}, {LW+64}")
            b.e(f"v_lshrrev_b32 v{so}, 1, v{G}"); b.e(f"v_lshlrev_b32 v{so}, 8, v{so}"); b.e(f"v_lshl_add_u32 v{so}, v{J}, 4, v{so}")
            b.e(f"v_and_b32 v{tmp}, 1, v{G}"); b.e(f"v_lshl_add_u32 v{so}, v{tmp}, 3, v{so}")
        if which == 1:
            lsrd(b, 16, oHS, XSZ)
            b.e(f"v_lshlrev_b32 v{so}, 11, v{G}"); b.e(f"v_lshl_add_u32 v{so}, v{J}, 4, v{so}")
            b.e("s_lshl_b32 s39, s38, 13"); b.e("s_lshl_b32 s36, s37, 8"); b.e("s_add_u32 s39, s39, s36"); b.e("s_add_u32 s40, s39, 16384")
            b.e("s_lshl_b32 s36, s29, 1"); spread(b, 41, 36); b.e("s_lshl_b32 s36, s37, 16"); b.e("s_add_u32 s41, s41, s36")
        if which == 2: lsrd(b, 16, oX1P, XSZ)
    def cost(x): return sum(8 if y.startswith("ds_") else 4 for y in x.split("\n"))
    def group(F, rd, r0, ex, fixed={}, zero=False):
        n = MT * NT; ex = [x if isinstance(x, tuple) else (x, -1) for x in ex]; done = 0
        order = [(nt, mt if nt % 2 == 0 else MT - 1 - mt) for nt in range(NT) for mt in range(MT)]
        need = sum(cost(x) for x, _ in ex) + 8 * len(rd) + sum(cost(x) for l in fixed.values() for x in l)
        cap = max(12, -(-need // (4 * n)) * 4)
        for k, (nt, mt) in enumerate(order):
            cc = A_(mt, nt)
            if str(which) not in os.environ.get("NOMF", ""): a.e(f"v_mfma_f32_16x16x32_bf16 {vr(cc,4)}, {vr(F+4*(MT+nt),4)}, {vr(F+4*mt,4)}, {0 if zero else vr(cc,4)}")
            b_ = cap - sum(cost(x) for x in fixed.get(k, [])); nv = 0
            if k >= r0 and done < len(rd): a.e(rd[done]); done += 1; b_ -= 8
            while ex and ex[0][1] < done and (cost(ex[0][0]) <= b_ or k == n - 1) and not (nv >= (1 if rd else 2) and ex[0][0].startswith("v_") and cap == 12 and k < n - 1):
                x = ex.pop(0)[0]; a.e(x); b_ -= cost(x); nv += x.startswith("v_")
            for x in fixed.get(k, []): a.e(x)
        assert done == len(rd) and not ex
    NR_ = MT + 2 * NT; BP = eval(os.environ.get("BP", "{3:3,4:2}")).get(which, 0)
    def stage(ex=(), ey=(), lim=NS-1, late=False, zero=False, pre=()):
        if str(which) in os.environ.get("GST", "") or os.environ.get("JIT"): mstamp(a, True)
        if which == 3: last = {0: NR_ - 1, 1: NR_ - 3}
        else: last = {i: MT + 2 * i + 1 for i in range(4)}
        book = ["s_add_u32 s42, s42, 16384", f"s_cmp_eq_u32 s42, {NA*16384}", "s_cselect_b32 s42, 0, s42",
                f"s_add_u32 s48, s48, {STB}", f"s_cmp_eq_u32 s48, {NW*STB}", "s_cselect_b32 s48, 0, s48", (f"v_add_u32 v{aa}, s42, v{a0}", MT - 1)]
        book += sorted([(f"v_add_u32 v{wa+i}, s48, v{w0+i}", last[i]) for i in range(nwr)], key=lambda x: x[1])
        n = MT * NT
        group(fX, reads(fY, 1), 0, book[:7] + list(ex) + book[7:], {3: [f"s_waitcnt lgkmcnt({min(15, NR_ - MT - 4 + 4)})"], 7: ["s_waitcnt lgkmcnt(8)"], n - 1: [f"s_waitcnt lgkmcnt({NR_ - MT - 2})"]}, zero)
        if late:
            b_ = Rec(); ep_setup(b_)
            group(fY, [], 0, ["s_add_u32 s43, s43, 1"] + b_.l, {min(BP, 3): ["s_waitcnt lgkmcnt(0)"]})
            if B0E: publish(a, ST_G2S, 4, pt, ctr=48)
            a.e("s_barrier")
            for x in reads(fX, 0): a.e(x)
            a.e(f"s_waitcnt lgkmcnt({NR_ - MT - 2})")
            return
        group(fY, reads(fX, 0), BP + 1, list(ey) + ["s_add_u32 s43, s43, 1", f"s_cmp_lt_u32 s43, {lim}"],
              {BP - 1: list(pre), BP: ["s_waitcnt lgkmcnt(0)", "s_barrier"], n - 1: [f"s_waitcnt lgkmcnt({NR_ - MT - 2})"]})
    w00 = c["S0"] * STB
    if which <= 2:
        def wrd(p, b): return [f"ds_read_b64_tr_b16 {vr((fX, fY)[p]+16*kk+4*nt+2*h,2)}, v{w0+nt} offset:{b*STB + wpos(nt, kk, h)[1]}" for kk in range(2) for nt in range(4) for h in range(2)]
        def dmf(b, fill, lo=0, hi=16):
            k = 0
            for kk in range(2):
                for nt in range(4):
                    for mt in ((0, 1) if nt % 2 == 0 else (1, 0)):
                        if lo <= k < hi:
                            a.e(f"v_mfma_f32_16x16x32_bf16 {vr(A_(mt,nt),4)}, {vr((fX, fY)[b&1]+16*kk+4*nt,4)}, {vr(AB+16*b+8*kk+4*mt,4)}, {vr(A_(mt,nt),4)}")
                            for x in fill[k]: a.e(x)
                        k += 1
        def spreadf(l, lo, hi):
            f = [[] for _ in range(16)]
            for i, x in enumerate(l): f[lo + i * (hi - lo) // len(l)].append(x)
            return f
        a.e("s_mov_b32 s43, 0"); ep_setup(a)
        CK = str(which) in DP; ck_ = aa
        def check(b):
            B = AB + 16 * b
            return [f"v_or3_b32 v{ck_}, v{B}, v{B+4}, v{B+8}", f"v_bitop3_b32 v{ck_}, v{ck_}, v{B+12}, 1 bitop3:0xa8", f"v_cmp_ne_u32 vcc, 0, v{ck_}"]
        L = a.lab("dm"); assert CK
        a.e("s_mov_b32 s53, 0"); a.e("s_mov_b32 s49, s44")
        if which == 2: a.e("s_barrier")
        for x in wrd(0, 0): a.e(x)
        if EARLY: a.e(f"s_branch {L}w")
        elif int(os.environ.get("G1D", "0")): a.e("s_sleep " + os.environ["G1D"])
        a.e(f"{L}p:")
        for x in try0: a.e(x)
        a.e(f"{L}w:")
        a.e(f"s_waitcnt vmcnt({2*F0 - 4})")
        for x in check(0): a.e(x)
        DEEP = eval(os.environ.get("DEEP", "(0,4,4)"))[which]
        if DEEP:
            a.e(f"s_cbranch_vccz {L}q")
            a.e(f"{L}r:"); a.e(f"s_sleep {os.environ.get('GNAP', '2')}")
            for x in past(seq(PR[:DEEP], 0)): a.e(x)
            a.e(f"s_waitcnt vmcnt({2*DEEP - 4})")
            for x in check(0): a.e(x)
            a.e(f"s_cbranch_vccz {L}t")
            a.e("s_add_u32 s53, s53, 1"); a.e("s_cmp_lt_u32 s53, s61"); a.e(f"s_cbranch_scc1 {L}r"); a.e("s_mov_b32 s61, 0"); a.e(f"s_branch {L}t")
            a.e(f"{L}q:")
            assert DEEP >= F0
            for x in seq(PR[F0:DEEP], None): a.e(x)
            a.e(f"{L}t:")
            mstamp(a)
            for x in seq(PR[DEEP:], None): a.e(x)
        else:
            a.e(f"s_cbranch_vccz {L}q"); a.e(f"s_sleep {os.environ.get('GNAP', '2')}")
            a.e("s_add_u32 s53, s53, 1"); a.e("s_cmp_lt_u32 s53, s61"); a.e(f"s_cbranch_scc1 {L}p"); a.e("s_mov_b32 s61, 0")
            a.e(f"{L}q:")
            mstamp(a)
            for x in seq(PR[2:], None): a.e(x)
        a.e("s_waitcnt lgkmcnt(0)")
        a.e(f"{L}:")
        for b in range(4):
            rd = wrd(1 - (b & 1), (b + 1) & 3); ex = [[] for _ in range(16)]
            ex[0], ex[1] = [[x] for x in aload((b - 1) & 3, 1)]
            if b == 0 and which == 1:
                for i, x in enumerate(["s_mov_b32 s44, s45", "s_mov_b32 s45, s46", "s_mov_b32 s46, s47", f"s_mov_b32 s47, {OOB}"]): ex[2 + i].append(x)
            if which == 2:
                ex[2].append("s_add_u32 s44, s44, 16384"); ex[10].append("s_add_u32 s44, s44, 16384")
                mv = [f"v_mov_b32 v{LO+k}, v{LO+k+2}" for k in range(6)] + [f"v_mov_b32 v{LO+6+k}, {OOB}" for k in range(2)]
                if b < 2:
                    for i, x in enumerate(mv[4*b:4*b+4]): ex[3 + i].append(x)
                if b == 3:
                    for k in range(2): ex[3 + k].append(f"v_mov_b32 v{LP+k}, v{LO+k}")
            if b == 2:
                ex[4].append("s_add_u32 s43, s43, 1"); ex[14].append("s_cmp_eq_u32 s43, 4")
                for nt, g_ in enumerate((11, 12, 13, 15)): ex[g_].append(f"v_add_u32 v{w0+nt}, {4*STB}, v{w0+nt}")
            if b == 3 and which == 1: ex[2].append("s_mov_b32 s49, s44")
            ex[7].append("s_waitcnt lgkmcnt(8)")
            ex[8], ex[9] = [[x] for x in aload(b, 0)]
            ex[10].append("s_waitcnt vmcnt(10)")
            if CK:
                for i, x in enumerate(check((b + 1) & 3)): ex[11 + i].append(x)
            fill = [rd[i:i+1] + ex[i] for i in range(16)]
            fill[14] = rd[14:16] + ex[14]; fill[15] = ex[15] + ["s_waitcnt lgkmcnt(8)"]
            if CK: fill[15] += [f"s_cbranch_vccnz {L}f{b}", f"{L}g{b}:"]
            if b == 2: fill[15].append(f"s_cbranch_scc1 {L}x")
            if b == 3: fill[15].append(f"s_branch {L}")
            dmf(b, fill)
        for b in range(4 if CK else 0):
            nb = (b + 1) & 3
            a.e(f"{L}f{b}:"); a.e("s_cselect_b32 s50, 1, 0")
            a.e(f"{L}h{b}:"); a.e(f"s_sleep {os.environ.get('GNAP', '2')}")
            if which == 2: a.e(f"s_sub_u32 s44, s44, {7*16384}")
            for j in range(4):
                bb = (nb + j) & 3
                for kk in range(2 if j < 3 else 1):
                    for x in past(seq([(bb, kk)], None)):
                        if bb >= nb and which == 1: x = x.replace("s44", "s49")
                        if bb >= nb and which == 2: x = x.replace(f", v{LO}, ", f", v{LP}, ").replace(f", v{LO+1}, ", f", v{LP+1}, ")
                        a.e(x)
            a.e("s_waitcnt vmcnt(10)")
            for x in check(nb): a.e(x)
            a.e("s_add_u32 s53, s53, 1"); a.e("s_cmp_ge_u32 s53, s61"); a.e("s_cselect_b32 s61, 0, s61"); a.e(f"s_cbranch_scc1 {L}k{b}")
            a.e(f"s_cbranch_vccnz {L}h{b}")
            a.e(f"{L}k{b}:"); a.e("s_cmp_eq_u32 s50, 1"); a.e(f"s_branch {L}g{b}")
        a.e(f"{L}x:")
    else:
        if which == 3:
            a.e(f"v_mov_b32 v{aa}, v{a0}")
            a.e("s_mov_b32 s42, 0"); a.e("s_mov_b32 s43, 0"); a.e(f"s_mov_b32 s48, {w00}")
            for i in range(nwr): a.e(f"v_add_u32 v{wa+i}, {w00}, v{w0+i}")
        if os.environ.get("XD") and os.environ["XD"][0] == str(which): a.e("s_sleep " + os.environ["XD"][1:])
        if not (which == 3 and B0E): a.e("s_waitcnt lgkmcnt(0)"); a.e("s_barrier")
        mstamp(a)
        for x in reads(fX, 0): a.e(x)
        a.e(f"s_waitcnt lgkmcnt({NR_ - MT - 2})")
    if which == 4:
        def st2(j): return [(x, 0) for x in [f"s_add_u32 s36, s44, {j*224*1024}", f"buffer_store_dwordx4 {vr(C2R+4*j,4)}, v{l16}, s[16:19], s36 offen {SC}",
                            f"s_add_u32 s36, s45, {j*224*1024}", f"buffer_store_dwordx2 {vr(C2R+16+2*j,2)}, v{SO3}, s[16:19], s36 offen {SC}"]]
        assert PBB in (1, 2) and PC0 >= 2
        for st_ in range(2): stage(st2(2 * st_), st2(2 * st_ + 1), zero=st_ == 0, pre=[f"s_waitcnt vmcnt({4 * st_ + 2})"] if PBB == st_ + 1 else [])
        CW = 0
        if PC0 > 3:
            L0 = a.lab("mm"); a.e(f"{L0}:"); stage(lim=PC0); a.e(f"s_cbranch_scc1 {L0}")
        elif PC0 == 3: stage()
    if which == 3 and os.environ.get("PEEL3", "1") == "1": stage(late=True, zero=True)
    if which > 2:
        L = a.lab("mm"); a.e(f"{L}:")
        stage(pre=[f"s_waitcnt vmcnt({CW})"] if which == 4 else [])
        a.e(f"s_cbranch_scc1 {L}")
    b0 = Rec()
    if which == 4:
        a.e("s_cmp_eq_u32 s60, 1"); a.e("s_cbranch_scc1 G4_last")
        if not RPC: r_pre(b0)
    if which == 1:
        for mt in range(MT):
            for p in range(NT // 2): b0.e(f"buffer_load_dwordx4 {vr(RES2+(mt*(NT//2)+p)*4,4)}, v{LO+mt}, s[8:11], s41 offen offset:{p*1024} {SC}")
    early = True
    XW = {3: [f"s_waitcnt lgkmcnt({min(15, NR_ - MT)})"], 7: ["s_waitcnt lgkmcnt(8)"]}
    if which <= 2: dmf(3, spreadf(b0.l, 0, 8), 0, 8)
    else: group(fX, reads(fY, 1), 0, b0.l, XW)
    a.e("s_waitcnt lgkmcnt(0)")
    if which not in DL: a.e("s_barrier")
    b = Rec()
    if which in (1, 3):
        for nt in range(NT): b.e(f"ds_read_b128 {vr(cs+4*nt,4)}, v{t} offset:{nt*64}")
        if which == 3:
            for mt in range(MT): b.e(f"ds_read_b128 {vr(lns+4*mt,4)}, v{t2} offset:{mt*256}")
            for i in range(4): b.e(f"v_mov_b32 v{w0+i}, v{G4W+i}"); b.e(f"v_add_u32 v{wa+i}, {CFG[4]['S0']*CFG[4]['STB']}, v{G4W+i}")
            b.e("s_mov_b32 s42, 0"); b.e("s_mov_b32 s43, 0"); b.e(f"s_mov_b32 s48, {CFG[4]['S0']*CFG[4]['STB']}"); b.e(f"v_mov_b32 v{aa}, v{a0}")
            assert fY + 16 == RFO; r_addr(b, False)
        else:
            for mt in range(MT): b.e(f"ds_read_b64 {vr(lns+2*mt,2)}, v{t2} offset:{mt*256}")
    if which == 2: lsrd(b, 44, oST2, 24576)
    if which == 4:
        b.e(f"s_mul_i32 s36, s31, {oP1-oP0}"); b.e(f"s_add_u32 s36, s36, {oP0}")
        b.e("s_add_u32 s16, s62, s36"); b.e("s_addc_u32 s17, s63, 0"); b.e(f"s_mov_b32 s18, {XSZ}"); b.e("s_mov_b32 s19, 0x20000")
    if which <= 2: dmf(3, spreadf(b.l, 8, 15), 8, 16)
    else: group(fY, [], 0, b.l)
    mstamp(a)
    if which in (1, 3):
        AB = v(2 * MT, 2) if which == 1 else fY + 4
        def consts():
            for mt in range(MT if which == 1 else 0):
                r = lns + 2 * mt + 1
                a.e(f"v_mul_f32 v{AB+2*mt}, {f32(GC1)}, v{r}"); a.e(f"v_mul_f32 v{AB+2*mt+1}, v{r}, v{r}")
                a.e(f"v_mul_f32 v{AB+2*mt+1}, v{AB+2*mt+1}, v{AB+2*mt}"); a.e(f"v_mul_f32 v{AB+2*mt+1}, {f32(0.044715)}, v{AB+2*mt+1}")
                a.e(f"v_rcp_f32 v{r}, v{r}")
        def act(mt, nt):
            A = A_(mt, nt); P_ = [(A, tp), (A + 2, tp + 2)]; L_ = vr(lns + 2 * mt, 2); K_ = vr(AB + 2 * mt, 2)
            if which == 3: L_ = vr(lns + 4 * mt, 2); K_ = vr(lns + 4 * mt + 2, 2)
            for h in range(2):
                a.e(f"v_pk_fma_f32 {vr(A+2*h,2)}, {L_}, {vr(cs+4*nt+2*h,2)}, {vr(A+2*h,2)} op_sel_hi:[0,1,1] neg_lo:[1,0,0] neg_hi:[1,0,0]")
            for x, u in P_: a.e(f"v_pk_mul_f32 {vr(u,2)}, {vr(x,2)}, {vr(x,2)}")
            for x, u in P_: a.e(f"v_pk_fma_f32 {vr(u,2)}, {vr(u,2)}, {K_}, {K_} op_sel:[0,1,0] op_sel_hi:[1,1,0]")
            for x, u in P_: a.e(f"v_pk_mul_f32 {vr(u,2)}, {vr(u,2)}, {vr(x,2)}")
            for i in range(4): a.e(f"v_exp_f32 v{tp+i}, v{tp+i}")
            for x, u in P_: a.e(f"v_pk_fma_f32 {vr(u,2)}, {vr(u,2)}, {L_}, {L_} op_sel:[0,1,1] op_sel_hi:[1,1,1]")
            for i in range(4): a.e(f"v_rcp_f32 v{tp+i}, v{tp+i}")
            for x, u in P_: a.e(f"v_pk_mul_f32 {vr(x,2)}, {vr(x,2)}, {vr(u,2)}")
        def egroup(par, mt, nts, dst=None):
            for nt in nts: act(mt, nt)
            T = par * NT + nts[0]; P = (T >> 1) - ((par * NT) >> 1); B = A_(mt, nts[0]); D = B if dst is None else dst
            for k in range(2 * len(nts)): a.e(f"v_cvt_pk_bf16_f32 v{D+k}, v{B+2*k}, v{B+2*k+1}")
            if which == 3 and (mt < 3 or "3" in DP or V3) and "1" in DP: mark(a, D, 1)
            if which == 1: mark(a, D, 0)
            if which == 3: return [f"s_add_u32 s36, s{44+P}, {mt*224*1024}", f"buffer_store_dwordx4 {vr(B,4)}, v{l16}, s[16:19], s36 offen {SC}"]
            return [f"buffer_store_dwordx4 {vr(B,4)}, v{so}, s[16:19], s{39+P} offen offset:{mt*256} {SC}"]
        def body(par):
            if which == 1: gs = [(0, 1), (2, 3)]
            else: gs = [(0, 1), (2, 3), (4, 5), (6,)] if par == 0 else [(1, 2), (3, 4), (5, 6), (0,)]
            k = 0; pend = []; sent = 0
            for gi_, g_ in enumerate(gs):
                for mt in range(MT):
                    if which == 3 and k == C0PUB:
                        a.e(f"s_waitcnt vmcnt({sent - 4})"); a.e("s_mov_b64 exec, 1"); a.e(f"ds_add_u32 v{EA+2}, v{EA+1}"); a.e("s_mov_b64 exec, -1"); mstamp(a)
                    if which == 3 and k == RK:
                        b_ = Rec(); r_pre(b_); l_ = [x for x in b_.l if x.startswith(("buffer", "s_mov_b32 s78"))]
                        a.e("s_cmp_eq_u32 s60, 1"); a.e(f"s_cbranch_scc1 G4_p1{par}")
                        for x in l_: a.e(x)
                        a.e(f"s_branch G4_p2{par}"); a.e(f"G4_p1{par}:")
                        for x in last_res(): a.e(x)
                        a.e(f"G4_p2{par}:")
                        if 4 <= k < C0PUB: sent += 8
                    st_ = egroup(par, mt, g_, None if gi_ < 2 else C2R + 4 * mt if gi_ == 2 else C2R + 16 + 2 * mt); k += 1
                    if which == 3 and gi_ < 3:
                        a.e(f"ds_write_b128 v{EA}, {vr(A_(mt, g_[0]) if gi_ < 2 else C2R + 4 * mt, 4)} offset:{gi_*16384 + mt*2048}")
                    if gi_ < 2: pend.append(st_)
                    n = len(pend) if (which == 1 or k <= 4 or k == 16) else 0 if k <= STQ else min(1, len(pend))
                    for _ in range(n):
                        for x in pend.pop(0): a.e(x)
                        sent += 1
            if which == 3:
                a.e("s_waitcnt lgkmcnt(0)")
                if par == 0: a.e("s_mov_b32 s44, s46"); a.e("s_mov_b32 s45, s47")
                else: a.e("s_add_u32 s45, s44, 512"); a.e("s_mov_b32 s44, s47")
        a.e("s_waitcnt lgkmcnt(0)")
        consts()
        if which == 3:
            a.e("s_cmp_eq_u32 s35, 1"); a.e(f"s_cbranch_scc1 {nm}_e1")
            body(0); a.e(f"s_branch {nm}_e2"); a.e(f"{nm}_e1:"); body(1); a.e(f"{nm}_e2:")
        else: body(0)
    if which == 2:
        xf = v(2, 2); S = v(2 * MT, 2); pp = v(2, 2); mn = v(2, 2)
        for mt in range(MT):
            a.e(f"s_add_u32 s36, s39, {mt*65536}")
            for p in range(NT // 2):
                R = res + (mt * (NT // 2) + p) * 4
                for e in range(4):
                    X = A_(mt, 2 * p) + 2 * e
                    a.e(f"v_cvt_pk_bf16_f32 v{R+e}, v{X}, v{X+1}")
                if DP: mark(a, R, 0)
                a.e(f"buffer_store_dwordx4 {vr(R,4)}, v{l16}, s[16:19], s36 offen offset:{p*1024} {SC}")
        if which in DL: a.e("s_barrier")
        if OWN3:
            a.e("s_lshl_b32 s36, s37, 11"); a.e(f"v_add_u32 v{t2}, s36, v{l16}")
            for i in range(4): a.e(f"ds_write_b128 v{t2}, {vr(res+4*i,4)} offset:{1024*i}")
        for i in range(MT * NT * 2): unpack(a, acc + 2 * i, acc + 2 * i + 1, res + i)
        mstamp(a)
        publish(a, which, 4, pt)
        if B0E: a.e("s_waitcnt lgkmcnt(0)"); a.e("s_barrier")
        mstamp(a)
        for mt in range(MT):
            B = A_(mt, 0); Sm = S + 2 * mt
            a.e(f"v_pk_add_f32 {vr(pp,2)}, {vr(B,2)}, {vr(B+2,2)}"); a.e(f"v_pk_mul_f32 {vr(xf,2)}, {vr(B,2)}, {vr(B,2)}")
            for i in range(1, NT * 2):
                if i > 1: a.e(f"v_pk_add_f32 {vr(pp,2)}, {vr(pp,2)}, {vr(B+2*i,2)}")
                a.e(f"v_pk_fma_f32 {vr(xf,2)}, {vr(B+2*i,2)}, {vr(B+2*i,2)}, {vr(xf,2)}")
            a.e(f"v_add_f32 v{Sm}, v{pp}, v{pp+1}"); a.e(f"v_add_f32 v{Sm+1}, v{xf}, v{xf+1}")
            for op in ("v_permlane16_swap_b32", "v_permlane32_swap_b32"):
                for k in range(2): a.e(f"v_mov_b32 v{pp+k}, v{Sm+k}")
                for k in range(2): a.e(f"{op} v{Sm+k}, v{pp+k}")
                a.e(f"v_pk_add_f32 {vr(Sm,2)}, {vr(Sm,2)}, {vr(pp,2)}")
        a.e(f"v_cmp_eq_u32 vcc, 0, v{G}"); a.e(f"v_cndmask_b32 v{S}, v{S+2}, v{S}, vcc"); a.e(f"v_cndmask_b32 v{S+1}, v{S+3}, v{S+1}, vcc")
        spread(a, 40, 29); a.e("s_lshl_b32 s36, s34, 8"); a.e("s_add_u32 s40, s40, s36")
        a.e(f"v_lshlrev_b32 v{t2}, 3, v{lane}")
        a.e("s_bfm_b64 exec, 32, 0")
        a.e(f"buffer_store_dwordx2 {vr(S,2)}, v{t2}, s[44:47], s40 offen {SC}")
        a.e("s_mov_b64 exec, -1")
    if which == 4:
        for mt in range(MT):
            a.e(f"s_add_u32 s36, s39, {mt*65536}")
            for p in range(NT // 2):
                B = A_(mt, 2 * p)
                for e in range(4): a.e(f"v_cvt_pk_bf16_f32 v{B+e}, v{B+2*e}, v{B+2*e+1}")
                if "r" in DP: mark(a, B, 1)
                a.e(f"buffer_store_dwordx4 {vr(B,4)}, v{l16}, s[16:19], s36 offen offset:{p*1024} {SC}")
    if which != 2:
        if which in DL: a.e("s_barrier")
        mstamp(a)
        if which == 4 and "r" not in DP: publish(a, which, 4, pt)
        mstamp(a)
    if which == 4:
        a.e("s_branch NEXT")
        a.e("G4_last:")
        PX = 208; oa = 224; xf = 226
        group(fX, reads(fY, 1), 0, [(f"s_load_dwordx2 s[6:7], s[0:1], {D_OUT}", 9)], XW)
        a.e("s_waitcnt lgkmcnt(0)")
        b = Rec()
        lsrd(b, 16, oX1P if "f" in DP else MB, XSZ)
        b.srd(20, 6, 4 * MB)
        if "f" not in DP:
            b.e("s_lshl_b32 s44, s29, 2"); b.e("s_add_u32 s44, s44, s30"); b.e("s_lshl_b32 s44, s44, 7"); b.e("s_xor_b32 s45, s44, 4096")
            b.e("s_add_u32 s44, s44, s55"); b.e(f"s_add_u32 s44, s44, {oFP}"); b.e("s_add_u32 s45, s45, s55"); b.e(f"s_add_u32 s45, s45, {oFP}")
            b.e(f"v_mov_b32 v{pt+1}, s45"); b.e(f"v_mov_b32 v{pt+2}, s52"); b.e(f"v_mov_b32 v{pt+3}, 0")
        else: b.e("s_add_u32 s44, s40, 65536")
        b.e("s_lshl_b32 s46, s28, 3"); b.e("s_add_u32 s46, s46, s37"); b.e("s_lshl_b32 s47, s31, 1"); b.e("s_add_u32 s46, s46, s47"); b.e("s_lshl_b32 s46, s46, 15")
        b.e("s_lshl_b32 s47, s38, 5"); b.e("s_add_u32 s46, s46, s47"); b.e(f"s_add_u32 s47, s46, {16*2048}")
        b.e(f"v_and_b32 v{oa+1}, 1, v{G}"); b.e(f"v_lshlrev_b32 v{oa}, 11, v{J}"); b.e(f"v_lshl_add_u32 v{oa}, v{oa+1}, 5, v{oa}")
        b.e(f"v_lshrrev_b32 v{oa+1}, 1, v{G}"); b.e(f"v_lshl_add_u32 v{oa}, v{oa+1}, 4, v{oa}")
        FULLN = os.environ.get("FULLN", "1") == "1"
        if FULLN:
            b.e(f"v_lshrrev_b32 v{oa+1}, 3, v{J}"); b.e(f"v_mul_u32_u24 v{oa+1}, {8*2048 - 64}, v{oa+1}"); b.e(f"v_sub_u32 v{oa}, v{oa}, v{oa+1}")
            b.e(f"v_add_u32 v{oa+1}, {8*2048}, v{oa}")
        OT = int(os.environ.get("OT", "0"))
        if OT == 1: b.e("s_mov_b64 exec, 1"); b.e(f"buffer_load_dword v{xf}, v{oa}, s[20:23], s46 offen {SC}"); b.e("s_mov_b64 exec, -1")
        if OT == 2:
            for k in range(4): b.e(f"buffer_load_dword v{xf}, v{oa+(k&1)}, s[20:23], s{46+(k>>1)} offen {SC}")
        group(fY, [], 0, b.l)
        mstamp(a)
        def send(m0_):
            for i in range(2):
                a.e(f"s_add_u32 s36, s41, {i*65536}")
                for p in range(2):
                    B = A_(m0_ + i, 2 * p)
                    for e in range(4): a.e(f"v_cvt_pk_bf16_f32 v{B+e}, v{B+2*e}, v{B+2*e+1}")
                    if "f" in DP: mark(a, B, 1)
                    a.e(f"buffer_store_dwordx4 {vr(B,4)}, v{l16}, s[16:19], s36 offen offset:{p*1024} {SC}")
        a.e("s_cmp_eq_u32 s31, 0"); a.e("s_cbranch_scc1 G4_k0")
        send(0)
        for i in range(0, 32, 2): a.e(f"v_pk_mov_b32 {vr(acc+i,2)}, {vr(acc+32+i,2)}, {vr(acc+32+i,2)} op_sel:[0,1]")
        a.e("s_branch G4_k1")
        a.e("G4_k0:")
        send(2)
        a.e("G4_k1:")
        a.e("s_mov_b32 s78, 0x3f80"); a.e("s_mov_b32 s79, 0x3f800000")
        def addp(k, R):
            B = A_(k >> 1, 2 * (k & 1))
            if DOT:
                for e in range(8): a.e(f"v_dot2_f32_bf16 v{B+e}, v{R+e//2}, s{78+(e&1)}, v{B+e}")
                return
            for e in range(4):
                unpack(a, xf + 2 * (e & 1), xf + 1 + 2 * (e & 1), R + e)
                a.e(f"v_pk_add_f32 {vr(B+2*e,2)}, {vr(B+2*e,2)}, {vr(xf+2*(e&1),2)}")
        for k in range(4): addp(k, RX[2 * k])
        if "f" not in DP:
            a.e("s_waitcnt vmcnt(0)")
            a.e("s_mov_b64 exec, 1"); a.e(f"buffer_store_dword v{pt+2}, v{pt+3}, s[56:59], s44 offen {SC}"); a.e("s_mov_b64 exec, -1")
        mstamp(a)
        for k in range(4): addp(k, RX[2 * k + 1])
        if "f" in DP:
            data_poll(a, [f"buffer_load_dwordx4 {vr(PX+4*(2*i+p),4)}, v{l16}, s[16:19], s{(40, 44)[i]} offen offset:{p*1024} {os.environ.get('FF', SC)}" for i in range(2) for p in range(2)],
                      [PX + 4 * k for k in range(4)], t, int(os.environ.get("FNAP", "2")), 0, int(os.environ.get("FCAN", "0")))
            mstamp(a)
        else:
            poll_core(a, pt, [pt + 1], 1, nap=2)
            mstamp(a)
            for i in range(2):
                a.e(f"s_add_u32 s36, s40, {i*65536}")
                for p in range(2): a.e(f"buffer_load_dwordx4 {vr(PX+4*(2*i+p),4)}, v{l16}, s[16:19], s36 offen offset:{p*1024} {SC}")
        for k in range(4):
            if "f" not in DP: a.e(f"s_waitcnt vmcnt({3 - (k & 1) if FULLN else 3})")
            addp(k, PX + 4 * k)
            B = A_(k >> 1, 2 * (k & 1))
            if os.environ.get("EPS"):
                for e in range(8): a.e(f"v_mul_f32 v{B+e}, {f32(1 + float(os.environ['EPS']) * (1 if e & 1 else -1))}, v{B+e}")
            for e in range(4): a.e(f"v_cvt_pk_bf16_f32 v{B+e}, v{B+2*e}, v{B+2*e+1}")
            for e in range(2): a.e(f"v_permlane16_swap_b32 v{B+e}, v{B+2+e}")
            if not FULLN: a.e(f"buffer_store_dwordx4 {vr(B,4)}, v{oa}, s[20:23], s{46+(k>>1)} offen offset:{64*(k&1)} {os.environ.get('OS', '')}")
            elif k & 1:
                X, Y, T = B - 8, B, B + 4
                for e in range(4): a.e(f"v_mov_b32 v{T+e}, v{X+e}")
                for e in range(4): a.e(f"v_mov_b32_dpp v{X+e}, v{Y+e} row_ror:8 row_mask:0xf bank_mask:0xc")
                for e in range(4): a.e(f"v_mov_b32_dpp v{Y+e}, v{T+e} row_ror:8 row_mask:0xf bank_mask:0x3")
                a.e(f"buffer_store_dwordx4 {vr(X,4)}, v{oa}, s[20:23], s{46+(k>>1)} offen {os.environ.get('OS', SC)}")
                a.e(f"buffer_store_dwordx4 {vr(Y,4)}, v{oa+1}, s[20:23], s{46+(k>>1)} offen {os.environ.get('OS', SC)}")
        a.e("s_branch K_fin")
    assert v.hi <= {1: RES2, 2: RES2, 3: RYY, 4: 176}[which], v.hi
    return v.hi

def k_mega(a):
    nm = KNAME; a.begin_kernel(nm)
    a.e("s_cmp_ge_u32 s2, 256"); a.e("s_cbranch_scc1 K_end")
    a.e(f"s_load_dwordx8 s[8:15], s[0:1], {A_K}")
    if FAST:
        if STAMP: a.e("s_memrealtime s[46:47]")
        front_first(a)
    a.e(f"s_load_dwordx2 s[6:7], s[0:1], {A_Q}"); a.e(f"s_load_dwordx8 s[68:75], s[0:1], {B_W1}")
    a.e(f"s_load_dwordx2 s[4:5], s[0:1], {D_WS}"); a.e(f"s_load_dwordx2 s[84:85], s[0:1], {D_DBG}")
    if not (FAST and STAMP): a.e("s_memrealtime s[46:47]")
    a.e(f"s_load_dwordx2 s[96:97], s[0:1], {A_SSMD}")
    a.e("v_lshrrev_b32 v1, 6, v0"); a.e("v_readfirstlane_b32 s30, v1")
    if CODEPF:
        a.e("s_getpc_b64 s[48:49]"); a.e("K_pc:")
        a.e("s_lshr_b32 s36, s2, 3"); a.e("s_lshl_b32 s36, s36, 11")
        a.e("v_lshlrev_b32 v4, 2, v0"); a.e("v_add_u32 v4, s36, v4")
        a.e("v_cmp_gt_u32 vcc, K_end-K_pc-8, v4"); a.e("s_and_saveexec_b64 s[36:37], vcc"); a.e("s_cbranch_execz K_3")
        a.e("v_mov_b32 v5, s49"); a.e("v_add_co_u32 v4, vcc, s48, v4"); a.e("v_addc_co_u32 v5, vcc, 0, v5, vcc")
        a.e("global_load_dword v250, v[4:5], off")
        a.e("K_3:"); a.e("s_mov_b64 exec, -1")
    for _ in range(int(os.environ.get("SDELAY", "0"))): a.e("s_sleep 127")
    front_loads(a)
    a.e("v_and_b32 v1, 63, v0"); a.e("v_lshlrev_b32 v2, 4, v1"); a.e("v_lshlrev_b32 v3, 2, v1")
    a.e("s_mov_b32 s67, 0")
    a.e("s_mov_b32 s60, 0"); a.e("s_mov_b32 s61, 40000"); a.e("s_mov_b32 s52, 0")
    a.e("s_mov_b32 s55, 0"); a.e("s_mov_b32 s92, 0"); a.e("s_mov_b32 s93, 0"); a.e("s_mov_b32 s94, 0")
    a.srd(56, 4, HSB)
    if os.environ.get("FIXT"): a.e("s_mov_b32 s101, s46")
    a.e(f"s_add_u32 s62, s4, {LB0}"); a.e("s_addc_u32 s63, s5, 0")
    if STAMP:
        a.e("s_mov_b32 s66, 1"); a.e("v_mov_b32 v255, -1"); a.e("s_mov_b32 s95, 0"); a.e("v_writelane_b32 v255, s46, 0")
    mstamp(a)
    if os.environ.get("WBENCH"):
        a.e("s_waitcnt vmcnt(0)"); a.e("s_barrier")
        a.e("s_cmp_lt_u32 s30, 6"); a.e("s_cbranch_scc1 WB_end")
        for w in (1, 2, 3, 4):
            mstamp(a); w_setup(a, w); a.e("s_waitcnt vmcnt(0)"); mstamp(a); a.e("s_sleep 40")
        a.e("WB_end:"); a.e("s_branch K_dump")
    front_a(a); mstamp(a)
    for r in range(238, 248): a.e(f"v_mov_b32 v{r}, 0")
    a.e("s_cmp_ge_u32 s30, 4"); a.e("s_cbranch_scc1 FR_b")
    front_conv(a); hi = 0
    mstamp(a)
    front_arrive(a, True, True)
    if os.environ.get("EPR"): a.e("s_setprio 0")
    a.e("s_branch FR_end")
    a.e("FR_b:")
    front_b(a)
    a.e("FR_end:")
    mstamp(a)
    a.e("LAYER:")
    if os.environ.get("XDELAY"): a.e(f"s_sleep {os.environ['XDELAY']}")
    hi = max(hi, r_stage(a, False))
    mstamp(a)
    a.e("s_cmp_ge_u32 s30, 4"); a.e("s_cbranch_scc1 LOADERS")
    if CPRIO: a.e(f"s_setprio {CPRIO}")
    for w in (1, 2, 3, 4):
        a.lines.append(f"; ---- G{w}: compute waves (set-up, K loop, epilogue, publish)")
        hi = max(hi, g_compute(a, w))
    a.e("LOADERS:")
    park_rest(a, True)
    if SB[2]:
        a.e("s_cmp_lg_u32 s60, 0"); a.e("s_cbranch_scc1 LD_0"); sb(a, SB[2]); a.e("LD_0:")
    if PRIO: a.e(f"s_setprio {PRIO}")
    a.e("s_cmp_ge_u32 s30, 6"); a.e("s_cbranch_scc1 WLOAD")
    for w in (1, 2, 3, 4): a_loader(a, w)
    a.e("s_branch NEXT")
    a.e("WLOAD:")
    a.e("s_cmp_eq_u32 s60, 1"); a.e("s_cbranch_scc1 WL_1")
    w_setup(a, 1, pre=False); w1_slots(a, range(9 - W1G), pace=12); mstamp(a)
    a.e("s_branch WL_2")
    a.e("WL_1:")
    w_setup(a, 1, pre=False); w1_slots(a, range(3 - W1L), pace=12)
    a.e("WL_2:")
    for w in (1, 2, 3, 4):
        w_loader(a, w)
        if w == 2:
            c = CFG[3]; w_setup(a, 3, pre=False); n_ = 3 if W33 else 2; a.e(f"s_mov_b32 s42, {(c['S0'] + n_) % c['NW'] * c['STB']}"); a.e(f"s_mov_b32 s44, {n_}")
        if w == 3: w_setup(a, 4)
    a.e("NEXT:")
    a.e("s_setprio 0")
    a.e("s_add_u32 s60, s60, 1"); a.e(f"s_add_u32 s55, s55, {LSTR}")
    a.e(f"s_add_u32 s62, s62, {LSTR}"); a.e("s_addc_u32 s63, s63, 0")
    a.e("s_branch LAYER")
    a.e("K_fin:")
    if os.environ.get("FIXT"):
        a.e("FX_l:"); a.e("s_sleep 4"); a.e("s_memrealtime s[64:65]"); a.e("s_waitcnt lgkmcnt(0)"); a.e("s_sub_u32 s64, s64, s101")
        if os.environ.get("FIX0"): a.e("s_add_u32 s64, s64, s101"); a.e("s_lshl_b32 s64, s64, 6"); a.e("s_sub_u32 s64, s64, s52"); a.e("s_lshr_b32 s64, s64, 6")
        a.e(f"s_cmp_lt_u32 s64, {os.environ['FIXT']}"); a.e("s_cbranch_scc1 FX_l")
    if STAMP:
        a.e("K_dump:")
        a.e("s_waitcnt vmcnt(0)")
        mstamp(a)
        a.srd(96, 4, 16 * MB, off=200 * MB)
        a.e("s_lshl_b32 s66, s2, 3"); a.e("s_add_u32 s66, s66, s30"); a.e("s_lshl_b32 s66, s66, 8")
        a.e("v_writelane_b32 v255, s95, 63")
        a.e("buffer_store_dword v255, v3, s[96:99], s66 offen")
        if os.environ.get("DBGOUT"):
            a.e("s_cmp_lg_u32 s66, 0"); a.e("s_cbranch_scc1 K_end")
            a.e(f"s_load_dwordx2 s[96:97], s[0:1], {D_DBG}"); a.e("s_mov_b32 s98, 64"); a.e("s_waitcnt lgkmcnt(0)")
            a.e("v_readlane_b32 s64, v255, 0"); a.e("v_mov_b32 v10, 0")
            for i, j in enumerate(eval(os.environ["DBGOUT"])):
                a.e(f"v_readlane_b32 s65, v255, {j}"); a.e("s_sub_u32 s65, s65, s64"); a.e("v_mov_b32 v11, s65")
                a.e(f"buffer_store_dword v11, v10, s[96:99], 0 offen offset:{8+4*i}")
    a.e("s_endpgm")
    emit_subs(a)
    a.e("K_end:")
    assert hi <= PV
    a.end_kernel(nm, 256)
    if TAB: tab_data(a)
    a.launches.append(f"; @launch grid=(256,1,1) block=(512,1,1) lds={LDS_TOTAL}")

HEADER = open(HERE + "/../interleave_layers__ssm_conv_h3__mixer_s_mlp__prompt.s.ref").read().split("; Override launch")[0]
DOC = """; One persistent kernel, 256 workgroups x 8 waves (one per CU), generated by dev/gen40.py.
"""
def main(out):
    a = Asm()
    k_mega(a)
    DS = os.environ.get("DS")
    if DS:
        o = []
        for l in a.lines:
            o.append(l)
            if "buffer_store_dwordx" in l and "sc1" in l and any(k in l for k in DS.split(",")): o.append(l.replace(" sc1", ""))
        a.lines = o
    notes = {
        "K_pc:": "each workgroup reads 2 KB of this kernel's code so that later instruction fetches are served on chip",
        "KV_t0:": "k / v / tap loads of the u^T tile (64 times x 128 channels); workgroup 0 has posted the launch tag (a clock value) in d_debug",
        "HB_2:": "u^T tile out, arrival counters initialised to the tag, roles, shifted filter copies into LDS",
        "CV_w:": "long causal convolution as Toeplitz MFMAs, one channel per wave",
        "FR_b:": "waves 4-7 beside the convolution: memory-locality vote (timed loads, layout choice only), weight column sums, weight touches",
        "LAYER:": "row stage: residual sums, LayerNorm chain, x + LN(x)*y for 8 rows per workgroup",
        "LOADERS:": "waves 4,5: LayerNorm scalars / column sums; activation tiles of G3, G4 by LDS-DMA (after the producers' counters are complete)",
        "WLOAD:": "waves 6,7: weight tiles by LDS-DMA in their original layout (read back with transposing LDS loads)",
        "G4_last:": "last layer: the two K halves exchange half tiles, add the residuals and write the output",
    }
    o = []
    for l in a.lines:
        if l.strip() in notes: o.append("; ---- " + notes[l.strip()])
        if l.strip().startswith("s_sleep"): l += "    ; back-off of a wave that waits for another workgroup or wave"
        o.append(l)
    a.lines = o
    open(out, "w").write(a.text(HEADER + DOC))
    print("nops added:", a.nops_added)

if __name__ == "__main__":
    main(sys.argv[1] if len(sys.argv) > 1 else "interleave_layers__ssm_conv_h3__mixer_s_mlp__prompt.s")
```

```python
import sys, os, math, struct
HERE = os.path.dirname(os.path.abspath(__file__)); sys.path.insert(0, HERE)
from asmgen import Asm

KNAME = "interleave_layers__ssm_conv_h3__mixer_s_mlp__prompt_kernel"
MB = 1 << 20
UT, Y = 24 * MB, 28 * MB
CSP = {1: 20 * MB, 3: 20 * MB + 128 * 1024}
A_Q, A_K, A_V, A_SH, A_SSMK, A_SSMD, B_X, B_W1, B_W2, B_W3, B_W4, D_OUT, D_DBG, D_WS = [8 * i for i in range(14)]
STAMP = int(os.environ.get("STAMP", "0"))
def f32(x): return "0x%08x" % struct.unpack("<I", struct.pack("<f", x))[0]
GC1 = -2.0 * math.sqrt(2.0 / math.pi) * math.log2(math.e)
GC2 = GC1 * 0.044715

class VA:
    def __init__(self, start=1): self.n = start; self.hi = start
    def __call__(self, cnt=1, al=None):
        if al is None: al = 2 if cnt > 1 else 1
        self.n = (self.n + al - 1) // al * al
        r = self.n; self.n += cnt; self.hi = max(self.hi, self.n); return r
def vr(b, n): return f"v[{b}:{b+n-1}]" if n > 1 else f"v{b}"

def unpack(a, lo, hi, src):
    a.e(f"v_lshlrev_b32 v{lo}, 16, v{src}")
    a.e(f"v_and_b32 v{hi}, 0xffff0000, v{src}")
RND = int(os.environ.get("RND", "0"))
def round2(a, x, y, tmp):
    if not RND: return
    a.e(f"v_cvt_pk_bf16_f32 v{tmp}, v{x}, v{y}")
    unpack(a, x, y, tmp)
def round1(a, x):
    if not RND: return
    a.e(f"v_cvt_pk_bf16_f32 v{x}, v{x}, v{x}")
    a.e(f"v_lshlrev_b32 v{x}, 16, v{x}")
def red_g(a, x, t):
    a.e(f"v_mov_b32 v{t}, v{x}"); a.e(f"v_permlane16_swap_b32 v{x}, v{t}"); a.e(f"v_add_f32 v{x}, v{x}, v{t}")
    a.e(f"v_mov_b32 v{t}, v{x}"); a.e(f"v_permlane32_swap_b32 v{x}, v{t}"); a.e(f"v_add_f32 v{x}, v{x}, v{t}")
def ln_finish(a, mean, var, rs, s=None):
    round1(a, mean); round1(a, var)
    a.e(f"v_add_f32 v{var}, {f32(1e-5)}, v{var}"); round1(a, var)
    if not RND and s is None: a.e(f"v_rsq_f32 v{rs}, v{var}"); return
    a.e(f"v_sqrt_f32 v{var}, v{var}"); round1(a, var)
    if s is not None: a.e(f"v_mov_b32 v{s}, v{var}")
    a.e(f"v_rcp_f32 v{rs}, v{var}")


FLG = 22 * MB + int(os.environ.get("FOFF", "0"))
LB0, LSTR, GSTR = 32 * MB, 4 * MB, 16 * MB
oH2 = 4 * MB; oSM = oH2 + 1792 * 1024; oFP = 16384; oST2 = oSM + 32768; oLNS = oSM + 65536
oX3, oX1P, oP0, oP1 = [i * 512 * 1024 for i in range(4)]
DP = os.environ.get("DP", "rf12")
if "r" in DP: oP0, oP1 = oX3, oX1P
def mark(a, r, bit): a.e(f"v_or_b32 v{r}, 1, v{r}" if bit else f"v_and_b32 v{r}, -2, v{r}")
V3 = int(os.environ.get("V3", "0"))
DOT = int(os.environ.get("DOT", "1"))
def data_poll(a, loads, regs, t, nap, first=0, canary=False):
    L = a.lab("dp"); D = a.lab("dq")
    if canary:
        a.e("s_bfm_b64 exec, 1, 63"); data_poll(a, loads, regs, t, nap, first); a.e("s_mov_b64 exec, -1"); first = 0
    a.e("s_mov_b32 s53, 0")
    if first:
        f2 = int(os.environ.get("RFIRST2", "10"))
        if f2: a.e(f"s_sleep {f2}")
        a.e(f"s_cmp_ge_u32 s30, {os.environ.get('RW2', '6')}"); a.e(f"s_cbranch_scc1 {L}"); a.e(f"s_sleep {first - f2}")
    a.e(f"{L}:")
    for x in loads: a.e(x)
    a.e("s_waitcnt vmcnt(0)")
    a.e(f"v_bitop3_b32 v{t}, v{regs[0]}, v{regs[1]}, v{regs[2]} bitop3:0x80"); a.e(f"v_bitop3_b32 v{t}, v{t}, v{regs[3]}, 1 bitop3:0x80")
    a.e(f"v_cmp_eq_u32 vcc, 0, v{t}"); a.e(f"s_cbranch_vccz {D}")
    a.e(f"s_sleep {nap}")
    a.e("s_add_u32 s53, s53, 1"); a.e("s_cmp_lt_u32 s53, s61"); a.e(f"s_cbranch_scc1 {L}")
    a.e("s_mov_b32 s61, 0")
    a.e(f"{D}:")
XSZ = 512 * 1024 - 8192; H2SZ = 1792 * 1024 - 8192
HSB = 160 * MB; PITCH = 65536 + int(os.environ.get("SKEW", "0")); oHS = MB
def fso(stage): return int(stage * 256)
def spread(a, d, src):
    a.e(f"s_lshr_b32 s53, s{src}, 3"); a.e("s_lshl_b32 s53, s53, 14"); a.e(f"s_and_b32 s{d}, s{src}, 7"); a.e(f"s_lshl_b32 s{d}, s{d}, 10"); a.e(f"s_add_u32 s{d}, s{d}, s53")
ST_R, ST_G1, ST_G2, ST_G3, ST_G4, ST_R2, ST_G3B, ST_G3A = range(8); ST_G2S = 5.5
F_KVT, F_FRONT, F_CS = FLG, FLG + 32768, FLG + 53248; F_VOTE = F_FRONT + 16384; F_RES = F_VOTE
LDS_TOTAL = 163840
AUX = LDS_TOTAL - 4096
SC = "sc1"
PSLEEP = int(os.environ.get("PSLEEP", "5"))
ROT = int(os.environ.get("ROT", "1"))
PACE = int(os.environ.get("PACE", "8"))
PDEPTH = int(os.environ.get("PDEPTH", "1"))
WROT = int(os.environ.get("WROT", "1"))
PRIO = int(os.environ.get("PRIO", "0"))
STQ = int(os.environ.get("STQ", "12"))
CPRIO = int(os.environ.get("CPRIO", "1"))
FSLEEP = int(os.environ.get("FSLEEP", "6"))
CSPRIO = int(os.environ.get("CSPRIO", "1"))
NT = os.environ.get("NT", "nt"); HALO = int(os.environ.get("HALO", "0")); NTK = os.environ.get("NTK", "" if HALO else NT); NTH = os.environ.get("NTH", NT)
W1F = int(os.environ.get("W1F", "7"))
WSC = eval(os.environ.get("WSC", "{}"))
TLBW = int(os.environ.get("TLBW", "0"))
T12 = eval(os.environ.get("T12", "{}"))
T23 = eval(os.environ.get("T23", "()"))
OWN3 = int(os.environ.get("OWN3", "1"))
PUB2 = int(os.environ.get("PUB2", "4"))
MAP = int(os.environ.get("MAP", "4"))
HSPLIT = int(os.environ.get("HSPLIT", "4"))
W1G = int(os.environ.get("W1G", "9"))
PWAIT = int(os.environ.get("PWAIT", "8"))
DL = eval(os.environ.get("DL", "[2,4]"))
PACES = eval(os.environ.get("PACES", "{4:8}"))
C0PUB = int(os.environ.get("C0PUB", "6"))
LNSL = AUX + 1024

CFG = {1: dict(WM=4, WN=1, MT=2, NT=4, KBT=32, NS=16, NA=1.5, NW=16, A=oX3, W=B_W1, LDW=2048),
       2: dict(WM=4, WN=1, MT=2, NT=4, KBT=32, NS=16, NA=0, NW=16, A=oHS, W=B_W2, LDW=2048),
       3: dict(WM=2, WN=2, MT=4, NT=7, KBT=32, NS=16, NA=3, NW=3, A=oX1P, W=B_W3, LDW=7168, NPRE=2, WR=1, S0=2, WB=73728),
       4: dict(WM=2, WN=2, MT=4, NT=4, KBT=112, NS=28, NA=3, NW=6, A=oH2, W=B_W4, LDW=2048)}
for w, d in eval(os.environ.get("CFG", "{}")).items(): CFG[w].update(d)
for c in CFG.values():
    c.setdefault("NPRE", c["NW"]); c.setdefault("APRE", min(c["NA"], 3)); c.setdefault("WR", 1)
    c["TN16"] = c["WN"] * c["NT"]; c["STB"] = c["TN16"] * 2048; c.setdefault("WB", int(c["NA"] * 16384)); c.setdefault("S0", 0)
    c["RB"] = c["TN16"] * 32
    assert c["WB"] + c["NW"] * c["STB"] <= AUX
NX = 0
def nib(t): return sum(x << (4 * i) for i, x in enumerate(t))
CSO = {1: AUX + 3584, 3: AUX}

LW = AUX + 3072
def mstamp(a, force=False):
    if os.environ.get("JIT"):
        X = a.lab("jit")
        a.e("s_cselect_b32 s101, 1, 0"); a.e("s_memtime s[64:65]"); a.e("s_waitcnt lgkmcnt(0)"); a.e(f"s_and_b32 s64, s64, {os.environ['JIT']}"); a.e("s_cmp_lg_u32 s64, 0")
        a.e(f"s_cbranch_scc1 {X}"); a.e("s_sleep 50"); a.e(f"{X}:"); a.e("s_cmp_eq_u32 s101, 1")
        return
    if not STAMP or (os.environ.get("GST") and not force): return
    a.e(("s_memrealtime" if STAMP == 2 else "s_memtime") + " s[64:65]"); a.e("s_mov_b32 s100, m0"); a.e("s_mov_b32 m0, s66"); a.e("s_waitcnt lgkmcnt(0)")
    a.e("v_writelane_b32 v255, s64, m0"); a.e("s_mov_b32 m0, s100")
    a.e("s_add_u32 s66, s66, 1")

def lsrd(a, d, off, nbytes, prev=False):
    if prev:
        a.e(f"s_sub_u32 s{d}, s62, {LSTR - off:#x}"); a.e(f"s_subb_u32 s{d+1}, s63, 0")
        a.e(f"s_mov_b32 s{d+2}, {nbytes:#x}"); a.e(f"s_mov_b32 s{d+3}, 0x20000")
    else: a.srd(d, 62, nbytes, off=off)

def hs_srd(a, d):
    if "2" in DP: a.srd(d, 4, 128 * PITCH, off=HSB); return
    a.e("s_lshl_b32 s53, s60, 24"); a.e(f"s_add_u32 s53, s53, {HSB}")
    a.e(f"s_add_u32 s{d}, s4, s53"); a.e(f"s_addc_u32 s{d+1}, s5, 0"); a.e(f"s_mov_b32 s{d+2}, {128*PITCH}"); a.e(f"s_mov_b32 s{d+3}, 0x20000")

def group_off(a, d, m):
    a.e(f"s_lshr_b32 s53, s{m}, 3"); a.e("s_lshl_b32 s53, s53, 2"); a.e(f"s_and_b32 s54, s{m}, 3"); a.e("s_add_u32 s53, s53, s54"); a.e("s_lshl_b32 s53, s53, 24")
    a.e(f"s_lshr_b32 s54, s{m}, 2"); a.e("s_xor_b32 s54, s54, s94"); a.e("s_and_b32 s54, s54, 1"); a.e("s_lshl_b32 s54, s54, 13")
    a.e(f"s_add_u32 s{d}, s53, s54"); a.e(f"s_add_u32 s{d}, s{d}, {LB0}")

PV = 240
def poll_core(a, t, addrs, mask, extra=None, depth=1, cnt=0, nap=None):
    L = a.lab("poll"); D = a.lab("pok")
    n = len(addrs) + (1 if extra else 0)
    if depth > 1: t0 = t; regs = [PV + k * len(addrs) for k in range(depth)]; assert not extra and regs[-1] + len(addrs) <= 256
    else: regs = [t]
    def ld(r):
        for i, ad in enumerate(addrs): a.e(f"buffer_load_dword v{r+i}, v{ad}, s[56:59], 0 offen {SC}")
        if extra: a.e(extra[0])
    a.e("s_mov_b32 s53, 0"); a.e(f"s_add_u32 s54, s52, {cnt}")
    if mask != -1: a.e(f"s_bfm_b64 exec, {mask.bit_length()}, 0")
    for r in regs[:-1]: ld(r); a.e(f"s_sleep {PSLEEP}")
    a.e(f"{L}:")
    for k in range(depth):
        ld(regs[k - 1]); r = regs[k]
        a.e(f"s_waitcnt vmcnt({n*(depth-1)})")
        for i in range(len(addrs)): a.e(f"v_xor_b32 v{r+i}, s54, v{r+i}")
        for i in range(1, len(addrs)): a.e(f"v_or_b32 v{r}, v{r}, v{r+i}")
        if extra:
            for x in extra[1:]: a.e(x)
        a.e(f"v_cmp_eq_u32 vcc, 0, v{r}")
        a.e("s_cmp_eq_u64 vcc, exec"); a.e(f"s_cbranch_scc1 {D}")
        a.e(f"s_sleep {PSLEEP if nap is None else nap}")
    a.e("s_add_u32 s53, s53, 1"); a.e("s_cmp_lt_u32 s53, s61"); a.e(f"s_cbranch_scc1 {L}")
    a.e("s_mov_b32 s61, 0")
    a.e(f"{D}:")
    if mask != -1: a.e("s_mov_b64 exec, -1")

SPLIT = {ST_G1: "sign", ST_G3: "half", ST_G3A: "half", ST_G3B: "half"}
def flag_addr(a, r, stage, prev=False):
    so = fso(stage) - (LSTR if prev else 0)
    a.e(f"s_add_u32 s54, s55, {so & 0xffffffff:#x}")
    sp = SPLIT.get(stage)
    if sp == "half": a.e("s_lshl_b32 s53, s31, 7"); a.e("s_add_u32 s54, s54, s53")
    a.e(f"v_mov_b32 v{r}, s54")
    if sp == "sign":
        a.e("s_add_u32 s53, s54, 128"); a.e(f"v_writelane_b32 v{r}, s53, 1")
        a.e("s_add_u32 s53, s53, s93"); a.e(f"v_writelane_b32 v{r}, s53, 3")
        a.e("s_add_u32 s53, s54, s92"); a.e(f"v_writelane_b32 v{r}, s53, 2")
        return 0xf, 8
    return 1, 8 if sp else 16
def own_wait(a, stage, prev, t):
    if not PWAIT or stage == ST_R: return
    k = {ST_G1: 1, ST_G2: 2, ST_G4: 3}[stage] - (3 if prev else 0)
    a.e(f"s_mul_i32 s54, s60, {2 if 'r' in DP else 3}"); a.e(f"s_add_u32 s54, s54, {k}")
    lds_spin(a, LW + 56, "s54", t, nap=PWAIT)
def flag_try(a, r, ad):
    a.e("s_mov_b64 exec, 1"); a.e(f"buffer_load_dword v{r}, v{ad}, s[56:59], 0 offen {SC}"); a.e("s_mov_b64 exec, -1")
def flag_check(a, r, ad, cnt):
    D = a.lab("fok")
    a.e(f"v_readfirstlane_b32 s53, v{r}"); a.e(f"s_add_u32 s54, s52, {cnt}"); a.e("s_cmp_eq_u32 s53, s54"); a.e(f"s_cbranch_scc1 {D}")
    poll_core(a, r, [ad], 1, cnt=cnt)
    a.e(f"{D}:")

def poll(a, stage, t, prev=False):
    D = a.lab("pdone")
    a.e("s_cmp_lg_u32 s30, 4"); a.e(f"s_cbranch_scc1 {D}")
    own_wait(a, stage, prev, t)
    mask, cnt = flag_addr(a, t + 1, stage, prev)
    poll_core(a, t, [t + 1], mask, depth=PDEPTH, cnt=cnt)
    a.e(f"{D}:")
    if stage != ST_G4: mstamp(a)
    a.e("s_barrier")

def publish(a, stage, nw, t, off=None, wait=0, ctr=None, flag=False):
    D = a.lab("pub")
    mark = PWAIT and off is None and stage in (ST_G1, ST_G2, ST_G4)
    if off is None:
        a.e(f"s_add_u32 s53, s55, {fso(stage)}"); off = 53
        sp = SPLIT.get(stage)
        if sp == "half": a.e("s_lshl_b32 s54, s31, 7"); a.e("s_add_u32 s53, s53, s54")
        if sp == "sign": a.e("s_and_b32 s54, s29, 4"); a.e("s_lshl_b32 s54, s54, 5"); a.e("s_add_u32 s53, s53, s54")
    a.e(f"v_mov_b32 v{t}, 1"); a.e(f"v_mov_b32 v{t+1}, {LW + (ctr if ctr is not None else 4 if nw == 8 else 0)}"); a.e(f"v_mov_b32 v{t+3}, 0")
    a.e("s_mov_b64 exec, 1")
    if wait is not None: a.e(f"s_waitcnt vmcnt({wait})")
    if nw > 1:
        a.e(f"ds_add_rtn_u32 v{t+2}, v{t+1}, v{t}")
        if flag: a.e(f"v_mov_b32 v{t+1}, s52")
        a.e("s_waitcnt lgkmcnt(0)")
        a.e(f"v_readfirstlane_b32 s54, v{t+2}")
        a.e(f"s_and_b32 s54, s54, {nw-1}"); a.e(f"s_cmp_lg_u32 s54, {nw-1}"); a.e(f"s_cbranch_scc1 {D}")
    if flag: a.e(f"buffer_store_dword v{t+1}, v{t+3}, s[56:59], s{off} offen {SC}")
    else: a.e(f"buffer_atomic_add v{t}, v{t+3}, s[56:59], s{off} offen {SC}")
    if stage == ST_R and not flag:
        a.e("s_cmp_lg_u32 s60, 0"); a.e(f"s_cbranch_scc1 {D}")
        a.e("s_lshl_b32 s53, s29, 7"); a.e(f"s_add_u32 s53, s53, {F_CS}")
        a.e(f"buffer_atomic_add v{t}, v{t+3}, s[56:59], s53 offen {SC}")
    if mark: a.e(f"v_mov_b32 v{t+1}, {LW+56}"); a.e(f"ds_add_u32 v{t+1}, v{t}")
    a.e(f"{D}:")
    a.e("s_mov_b64 exec, -1")

def lds_spin(a, addr, target, t, dst=53, nap=False):
    L = a.lab("spin")
    a.e(f"v_mov_b32 v{t}, {addr}")
    a.e(f"{L}:")
    if nap: a.e(f"s_sleep {int(nap)}")
    a.e(f"ds_read_b32 v{t+1}, v{t}"); a.e("s_waitcnt lgkmcnt(0)"); a.e(f"v_readfirstlane_b32 s{dst}, v{t+1}")
    a.e(f"s_cmp_ge_u32 s{dst}, {target}"); a.e(f"s_cbranch_scc0 {L}")
def lds_set(a, addr, val, t):
    a.e(f"v_mov_b32 v{t}, {addr}"); a.e(f"v_mov_b32 v{t+1}, {val}")
    a.e("s_waitcnt lgkmcnt(0)"); a.e(f"ds_write_b32 v{t}, v{t+1}")
def lbar(a, k, t):
    a.e(f"v_mov_b32 v{t}, {LW+8}"); a.e(f"v_mov_b32 v{t+1}, 1")
    a.e("s_waitcnt lgkmcnt(0)")
    a.e("s_mov_b64 exec, 1"); a.e(f"ds_add_u32 v{t}, v{t+1}"); a.e("s_mov_b64 exec, -1")
    lds_spin(a, LW + 8, 4 * k + (2 if PWA else 0), t)

def gelu4(a, X, t, c1, c2):
    P = [(X, t), (X + 2, t + 2)]
    for x, u in P: a.e(f"v_pk_mul_f32 {vr(u,2)}, {vr(x,2)}, {vr(x,2)}")
    for x, u in P: a.e(f"v_pk_fma_f32 {vr(u,2)}, {vr(u,2)}, {vr(c2,2)}, {vr(c1,2)}")
    for x, u in P: a.e(f"v_pk_mul_f32 {vr(u,2)}, {vr(u,2)}, {vr(x,2)}")
    for i in range(4): a.e(f"v_exp_f32 v{t+i}, v{t+i}")
    for x, u in P: a.e(f"v_pk_add_f32 {vr(u,2)}, {vr(u,2)}, 1.0 op_sel_hi:[1,0]")
    for i in range(4): a.e(f"v_rcp_f32 v{t+i}, v{t+i}")
    for x, u in P: a.e(f"v_pk_mul_f32 {vr(x,2)}, {vr(x,2)}, {vr(u,2)}")

W2EARLY = int(os.environ.get("W2EARLY", "1")); QLATE = int(os.environ.get("QLATE", "0"))
TOUCH2 = [(A_Q, 4 * MB)] + ([] if W2EARLY else [(B_W2, 2 * MB)])
CODEPF = int(os.environ.get("CODEPF", "1")); NVOTE = int(os.environ.get("NVOTE", "32")); QUO = int(os.environ.get("QUO", "21")); NSAMP = int(os.environ.get("NSAMP", "2"))
W4POS = os.environ.get("W4POS", "S{15:(True,0,14)}")
HSTR = 4160; CHB = 24576; UOFF = 4 * HSTR; US = 96
KVS = 4 * CHB

KT = int(os.environ.get("KT", "1"))
KV = dict(cq=6, tg=7, t=8, ro=9, wo=16, pt=18, kr=22, vv=36, w=44, d=52, hoff=70, tag=76, zz=78)
FAST = int(os.environ.get("FAST", "0"))
def front_first(a):
    cq, tg, t, ro, wo, kr, vv, w = [KV[k] for k in "cq tg t ro wo kr vv w".split()]
    a.e(f"v_and_b32 v{cq}, 31, v0"); a.e(f"v_lshrrev_b32 v{tg}, 5, v0")
    a.e("s_and_b32 s34, s2, 7"); a.e("s_lshr_b32 s35, s2, 3")
    a.e("s_lshl_b32 s36, s35, 17"); a.e("s_lshl_b32 s37, s34, 8"); a.e("s_add_u32 s36, s36, s37")
    a.e(f"v_lshlrev_b32 v{t}, 13, v{tg}"); a.e(f"v_lshl_add_u32 v{t}, v{cq}, 3, v{t}"); a.e(f"v_add_u32 v{ro+3}, s36, v{t}")
    a.e(f"v_add_u32 v{ro+5}, 4096, v{ro+3}")
    a.e("s_waitcnt lgkmcnt(0)")
    for i in range(4): a.e(f"global_load_dwordx2 {vr(kr+2*(i+3),2)}, v{ro+3+(i&2)}, s[8:9] offset:{2048*(i&1)} {NTK}")
    for i in range(4): a.e(f"global_load_dwordx2 {vr(vv+2*i,2)}, v{ro+3+(i&2)}, s[10:11] offset:{2048*(i&1)} {NT}")
def front_loads(a):
    cq, tg, t, ro, wo, kr, vv, w = [KV[k] for k in "cq tg t ro wo kr vv w".split()]
    a_ = a
    if FAST: a = Rec()
    a.e(f"v_and_b32 v{cq}, 31, v0"); a.e(f"v_lshrrev_b32 v{tg}, 5, v0")
    a.e("s_and_b32 s34, s2, 7"); a.e("s_lshr_b32 s35, s2, 3")
    a.e("s_lshl_b32 s36, s35, 17"); a.e("s_lshl_b32 s37, s34, 8"); a.e("s_add_u32 s36, s36, s37")
    a.e(f"v_lshlrev_b32 v{t}, 13, v{tg}"); a.e(f"v_lshl_add_u32 v{t}, v{cq}, 3, v{t}"); a.e(f"v_add_u32 v{ro+3}, s36, v{t}")
    a.e(f"v_add_u32 v{ro+5}, 4096, v{ro+3}")
    a = a_
    a.e(f"s_mov_b32 s18, {4*MB}"); a.e("s_mov_b32 s19, 0x20000"); a.e("s_mov_b32 s22, s18"); a.e("s_mov_b32 s23, s19")
    a.e("s_waitcnt lgkmcnt(0)")
    tag, zz = KV["tag"], KV["zz"]
    a.e("s_mov_b32 s86, 256"); a.e("s_mov_b32 s87, 0x20000"); a.e(f"v_mov_b32 v{zz}, 0")
    a.e("s_lshl_b32 s45, s2, 3"); a.e("s_add_u32 s45, s45, s30"); a.e("s_cmp_lg_u32 s45, 4"); a.e("s_cbranch_scc1 KV_t0")
    a.e("s_getreg_b32 s45, hwreg(HW_REG_XCC_ID, 0, 3)"); a.e("s_lshl_b32 s45, s45, 1")
    a.e("s_lshl_b32 s44, s46, 6"); a.e("s_or_b32 s44, s44, s45"); a.e("s_or_b32 s44, s44, 1"); a.e(f"v_mov_b32 v{tag}, s44"); a.e(f"v_mov_b32 v{tag+1}, 0")
    a.e("s_mov_b64 exec, 1"); a.e(f"buffer_store_dwordx2 {vr(tag,2)}, v{zz}, s[84:87], 0 offen {SC}"); a.e("s_mov_b64 exec, -1")
    a.e("KV_t0:")
    a.e("s_mov_b64 s[16:17], s[8:9]"); a.e("s_mov_b64 s[20:21], s[10:11]")
    for i in range(0 if FAST else 4): a.e(f"buffer_load_dwordx2 {vr(kr+2*(i+3),2)}, v{ro+3+(i&2)}, s[16:19], 0 offen offset:{2048*(i&1)} {NTK}")
    for i in range(0 if FAST else 4): a.e(f"buffer_load_dwordx2 {vr(vv+2*i,2)}, v{ro+3+(i&2)}, s[20:23], 0 offen offset:{2048*(i&1)} {NT}")
    for i in range(3): a.e(f"v_subrev_u32 v{ro+i}, {2048*(3-i)}, v{ro+3}")
    a.e("s_lshl_b32 s37, s34, 10"); a.e(f"v_lshlrev_b32 v{wo}, 5, v{cq}"); a.e(f"v_add_u32 v{wo}, s37, v{wo}")
    a.srd(24, 12, 8192)
    XP = os.environ.get("XP", "g")
    if KT:
        a.e(f"v_and_b32 v{t}, 1, v{tg}"); a.e(f"v_lshl_add_u32 v{wo}, v{t}, 4, v{wo}")
        a.e(f"buffer_load_dwordx4 {vr(w,4)}, v{wo}, s[24:27], 0 offen")
    for i in range(0 if "t" in XP or KT else 2): a.e(f"buffer_load_dwordx4 {vr(w+4*i,4)}, v{wo}, s[24:27], 0 offen offset:{16*i}")
    if "g" in XP:
        a.e("s_cmp_lg_u32 s30, 4"); a.e("s_cbranch_scc1 KV_t2")
        a.e(f"buffer_load_dword v{tag}, v{zz}, s[84:87], 0 offen {SC}")
        a.e("KV_t2:")
    if "h" in XP: return
    if HALO:
        a.e("s_cmp_lg_u32 s30, 0"); a.e("s_cbranch_scc1 KV_h0"); a.e("s_bfm_b64 exec, 32, 0")
    if KT: a.e("s_bfm_b64 exec, 32, 0")
    for i in range(3): a.e(f"buffer_load_dwordx2 {vr(kr+2*i,2)}, v{ro+i}, s[16:19], 0 offen {NTK}")
    if KT: a.e("s_mov_b64 exec, -1")
    if HALO: a.e("s_mov_b64 exec, -1"); a.e("KV_h0:")

def probe_base(a):
    assert NVOTE <= 64
    a.e("s_and_b32 s42, s2, 7"); a.e("s_lshl_b32 s42, s42, 10"); a.e("s_lshr_b32 s43, s2, 3"); a.e("s_lshl_b32 s43, s43, 14"); a.e("s_add_u32 s42, s42, s43")
    a.e(f"s_add_u32 s42, s42, {LB0 + oSM + 131072}")
PWA = int(os.environ.get("PWA", "1"))
def front_arrive(a, wait, conv=False):
    D = a.lab("fa"); t = 6
    if PWA:
        if conv:
            a.e("s_mov_b64 exec, 0xf"); a.e("s_waitcnt vmcnt(0)"); a.e(f"buffer_atomic_add v{t+1}, v{t}, s[56:59], s45 offen {SC}"); a.e("s_mov_b64 exec, -1")
        elif wait:
            a.e(f"v_mov_b32 v{t}, 1"); a.e(f"v_mov_b32 v{t+1}, {LW+8}"); a.e("s_mov_b64 exec, 1"); a.e("s_waitcnt vmcnt(0)"); a.e(f"ds_add_u32 v{t+1}, v{t}"); a.e("s_mov_b64 exec, -1")
        return
    a.e("s_and_b32 s36, s2, 7"); a.e("s_lshl_b32 s36, s36, 7"); a.e(f"s_add_u32 s36, s36, {F_FRONT}")
    a.e(f"v_mov_b32 v{t}, 1"); a.e(f"v_mov_b32 v{t+1}, {LW+4}"); a.e(f"v_lshlrev_b32 v{t+3}, 10, v1")
    a.e("s_mov_b64 exec, 1")
    if wait: a.e("s_waitcnt vmcnt(0)")
    a.e("s_waitcnt lgkmcnt(0)")
    a.e(f"ds_add_rtn_u32 v{t+2}, v{t+1}, v{t}")
    a.e("s_waitcnt lgkmcnt(0)")
    a.e(f"v_readfirstlane_b32 s54, v{t+2}")
    a.e("s_cmp_lg_u32 s54, 15"); a.e(f"s_cbranch_scc1 {D}")
    a.e("s_mov_b64 exec, 0xffff")
    a.e(f"buffer_atomic_add v{t}, v{t+3}, s[56:59], s36 offen {SC}")
    a.e(f"{D}:"); a.e("s_mov_b64 exec, -1")
XR = int(os.environ.get("XR", "1"))
def roles(a):
    if XR: a.e("s_bfe_u32 s32, s52, 0x30001"); a.e("s_add_u32 s32, s32, s2"); a.e("s_and_b32 s32, s32, 7")
    else: a.e("s_and_b32 s32, s2, 7")
    a.e("s_lshr_b32 s33, s2, 3")
    a.e("s_and_b32 s28, s32, 2"); a.e("s_lshr_b32 s53, s32, 2"); a.e("s_or_b32 s28, s28, s53")
    a.e("s_lshl_b32 s28, s28, 2"); a.e("s_and_b32 s53, s33, 3"); a.e("s_add_u32 s28, s28, s53")
    a.e("s_and_b32 s31, s32, 1"); a.e("s_lshr_b32 s33, s33, 2")
    a.e("s_lshl_b32 s29, s31, 3"); a.e("s_add_u32 s29, s29, s33")
    a.e(f"s_xor_b32 s99, s29, {os.environ.get('G1X', '1')}")
    r_addr(a)
def front_a(a):
    cq, tg, t, pt, kr, vv, w, d, hoff, tag, zz = [KV[k] for k in "cq tg t pt kr vv w d hoff tag zz".split()]
    v = VA(80)
    a.e("s_and_b32 s41, s30, 3"); chan_setup(a, 41)
    a.e("s_lshr_b32 s36, s39, 1"); a.e("s_lshl_b32 s36, s36, 2"); a.e("s_load_dword s98, s[96:97], s36")
    a.e("s_lshl_b32 s36, s39, 12")
    a.e("s_add_u32 s12, s14, s36"); a.e("s_addc_u32 s13, s15, 0"); a.e("s_mov_b32 s14, 4096"); a.e("s_mov_b32 s15, 0x20000")
    a.e("s_lshr_b32 s45, s30, 2"); a.e("s_lshl_b32 s45, s45, 11")
    for it in range(3):
        if it < 2: a.e(f"s_add_u32 s36, s45, {(1024*it - 64) & 0xffffffff:#x}")
        else: a.e(f"s_mov_b32 s36, {4096 - 64}")
        a.e(f"v_add_u32 v{hoff+2*it}, s36, v2"); a.e(f"v_add_u32 v{hoff+2*it+1}, 16, v{hoff+2*it}")
    a.e("s_and_b32 s34, s2, 7"); a.e("s_lshr_b32 s35, s2, 3")
    z = v(4, 4); la = v(); t2 = v(); hw = v()
    for i in range(4): a.e(f"v_mov_b32 v{z+i}, 0")
    a.e(f"v_add_u32 v{hw}, s40, v2")
    a.e(f"ds_write_b128 v{hw}, {vr(z,4)} offset:{UOFF+64*US}")
    a.e(f"s_bfm_b64 exec, {(15*US - 1024)//16}, 0"); a.e(f"ds_write_b128 v{hw}, {vr(z,4)} offset:{UOFF+64*US+1024}"); a.e("s_mov_b64 exec, -1")
    a.e(f"v_lshlrev_b32 v{t}, 2, v{tg}"); a.e(f"v_sub_u32 v{t}, 60, v{t}")
    a.e(f"v_lshrrev_b32 v{t2}, 3, v{t}"); a.e(f"v_bfe_u32 v{la}, v{cq}, 1, 3"); a.e(f"v_xor_b32 v{t2}, v{t2}, v{la}"); a.e(f"v_lshlrev_b32 v{t2}, 4, v{t2}")
    a.e(f"v_and_b32 v{t}, 7, v{t}"); a.e(f"v_lshl_add_u32 v{t2}, v{t}, 1, v{t2}")
    a.e(f"v_lshl_add_u32 v{la}, v{cq}, 9, v{t2}"); a.e(f"v_add_u32 v{la}, {KVS}, v{la}")
    wf = v(8, 2); kf = v(14, 2); vf = v(8, 2); ks = v(8, 2); pr = v(8, 2); o = v(8, 4); tm = v(4, 1)
    a.e("s_waitcnt vmcnt(0)")
    if HALO:
        for i in range(3): a.e(f"buffer_load_dwordx2 {vr(kr+2*i,2)}, v{KV['ro']+i}, s[16:19], 0 offen {NTK}")
        if HALO == 1: a.e("s_waitcnt vmcnt(0)")
    a.e("s_cmp_lg_u32 s30, 4"); a.e("s_cbranch_scc1 KV_t1")
    if "g" not in os.environ.get("XP", "g"): a.e(f"buffer_load_dword v{tag}, v{zz}, s[84:87], 0 offen {SC}")
    a.e("KV_t1:")
    for it in range(3):
        a.e(f"buffer_load_dwordx4 {vr(d+6*it,4)}, v{hoff+2*it}, s[12:15], 0 offen {NTH}")
        a.e(f"buffer_load_dwordx2 {vr(d+6*it+4,2)}, v{hoff+2*it+1}, s[12:15], 0 offen {NTH}")
    if HALO == 2: a.e("s_waitcnt vmcnt(10)")
    mstamp(a)
    if KT:
        for e in range(4): a.e(f"v_mov_b32 v{w+4+e}, v{w+e}")
        for e in range(6): a.e(f"v_mov_b32 v{pr+e}, v{kr+8+e}")
        for e in range(4): a.e(f"v_permlane32_swap_b32 v{w+e}, v{w+4+e}")
        for e in range(6): a.e(f"v_permlane32_swap_b32 v{kr+e}, v{pr+e}")
    for dd in range(2):
        for c in range(2):
            unpack(a, wf + 0 + c, wf + 2 + c, w + 2 * (2 * dd + c)); unpack(a, wf + 4 + c, wf + 6 + c, w + 2 * (2 * dd + c) + 1)
        for i in range(7): unpack(a, kf + 2 * i, kf + 2 * i + 1, kr + 2 * i + dd)
        for i in range(4): unpack(a, vf + 2 * i, vf + 2 * i + 1, vv + 2 * i + dd)
        def rnd(base):
            for i in range(4): a.e(f"v_cvt_pk_bf16_f32 v{tm+i}, v{base+2*i}, v{base+2*i+1}")
            for i in range(4): unpack(a, base + 2 * i, base + 2 * i + 1, tm + i)
        for i in range(4): a.e(f"v_pk_mul_f32 {vr(ks+2*i,2)}, {vr(kf+2*i,2)}, {vr(wf+6,2)}")
        if RND: rnd(ks)
        for j in range(1, 4):
            if not RND:
                for i in range(4): a.e(f"v_pk_fma_f32 {vr(ks+2*i,2)}, {vr(kf+2*(i+j),2)}, {vr(wf+6-2*j,2)}, {vr(ks+2*i,2)}")
                continue
            for i in range(4): a.e(f"v_pk_mul_f32 {vr(pr+2*i,2)}, {vr(kf+2*(i+j),2)}, {vr(wf+6-2*j,2)}")
            rnd(pr)
            for i in range(4): a.e(f"v_pk_add_f32 {vr(ks+2*i,2)}, {vr(ks+2*i,2)}, {vr(pr+2*i,2)}")
            rnd(ks)
        for i in range(4): a.e(f"v_pk_mul_f32 {vr(ks+2*i,2)}, {vr(ks+2*i,2)}, {vr(vf+2*i,2)}")
        for c in range(2):
            e = 2 * dd + c
            a.e(f"v_cvt_pk_bf16_f32 v{o+2*e}, v{ks+6+c}, v{ks+4+c}"); a.e(f"v_cvt_pk_bf16_f32 v{o+2*e+1}, v{ks+2+c}, v{ks+c}")
            a.e(f"ds_write_b64 v{la}, {vr(o+2*e,2)} offset:{e*128}")
    a.e("s_cmp_lg_u32 s30, 4"); a.e("s_cbranch_scc1 HB_2")
    a.e(f"v_add_u32 v{pt}, {LW}, v3"); a.e(f"ds_write_b32 v{pt}, v{zz}")
    a.e("s_mov_b32 s53, 0")
    a.e("s_waitcnt vmcnt(6)")
    a.e("HB_p:")
    a.e(f"v_readfirstlane_b32 s52, v{tag}"); a.e("s_cmp_eq_u32 s52, 0"); a.e("s_cbranch_scc1 HB_r")
    a.e("s_cmp_ge_u32 s53, 60"); a.e("s_cbranch_scc1 HB_q")
    a.e("s_add_u32 s54, s46, 8192"); a.e("s_lshl_b32 s54, s54, 6"); a.e("s_sub_u32 s54, s54, s52"); a.e(f"s_cmp_lt_u32 s54, {12288*64}"); a.e("s_cbranch_scc1 HB_q")
    a.e("HB_r:")
    a.e(f"buffer_load_dword v{tag}, v{zz}, s[84:87], 0 offen {SC}"); a.e("s_waitcnt vmcnt(0)")
    a.e("s_add_u32 s53, s53, 1"); a.e("s_cmp_lt_u32 s53, s61"); a.e("s_cbranch_scc1 HB_p")
    a.e("s_mov_b32 s52, 1"); a.e("s_mov_b32 s61, 0")
    a.e("HB_q:")
    lds_set(a, LW + 12, "s52", pt)
    a.e("HB_2:")
    a.srd(16, 4, 8 * GSTR, off=LB0 + oX3)
    ra = v(); go = v(); ob = v(8, 4)
    a.e(f"v_lshrrev_b32 v{t}, 3, v0"); a.e(f"v_and_b32 v{t2}, 7, v0")
    a.e(f"v_lshlrev_b32 v{go}, 12, v{t}"); a.e(f"v_lshl_add_u32 v{go}, v{t2}, 4, v{go}")
    a.e("s_lshl_b32 s36, s34, 24"); a.e("s_sub_u32 s37, 31, s35"); a.e("s_lshl_b32 s37, s37, 7"); a.e("s_add_u32 s36, s36, s37")
    a.e(f"s_add_u32 s37, s36, {64*4096}")
    a.e(f"v_lshrrev_b32 v{ra}, 3, v{t}"); a.e(f"v_xor_b32 v{ra}, v{ra}, v{t2}"); a.e(f"v_lshlrev_b32 v{ra}, 4, v{ra}"); a.e(f"v_lshl_add_u32 v{ra}, v{t}, 7, v{ra}")
    a.e(f"v_add_u32 v{ra}, {KVS}, v{ra}"); a.e(f"v_mov_b32 v{pt}, {LW+12}")
    a.e("s_waitcnt lgkmcnt(0)"); a.e("s_barrier")
    for i in range(2): a.e(f"ds_read_b128 {vr(ob+4*i,4)}, v{ra} offset:{i*8192}")
    a.e(f"ds_read_b32 v{pt+1}, v{pt}")
    for i in range(2):
        a.e(f"s_waitcnt lgkmcnt({2-i})")
        if "1" in DP: mark(a, ob + 4 * i, 1)
        a.e(f"buffer_store_dwordx4 {vr(ob+4*i,4)}, v{go}, s[16:19], s{36+i} offen {SC}")
    a.e("s_waitcnt lgkmcnt(0)"); a.e(f"v_readfirstlane_b32 s52, v{pt+1}")
    a.e("s_cmp_lg_u32 s30, 0"); a.e("s_cbranch_scc1 KV_ni"); a.e("s_cmp_ge_u32 s35, 16"); a.e("s_cbranch_scc1 KV_ni")
    a.e(f"v_mov_b32 v{t}, s52")
    a.e("s_lshl_b32 s37, s34, 7"); a.e("s_lshl_b32 s53, s35, 10"); a.e("s_add_u32 s37, s37, s53"); a.e(f"s_add_u32 s37, s37, {F_FRONT}")
    a.e("s_mov_b64 exec, 1"); a.e(f"buffer_store_dword v{t}, v{zz}, s[56:59], s37 offen {SC}"); a.e("s_mov_b64 exec, -1")
    a.e("KV_ni:")
    a.e(f"s_cmp_ge_u32 s2, {NVOTE}"); a.e("s_cbranch_scc1 KV_n3"); a.e("s_cmp_lg_u32 s30, 5"); a.e("s_cbranch_scc1 KV_n3")
    probe_base(a)
    a.e(f"v_lshrrev_b32 v{t}, 5, v1"); a.e(f"v_mul_u32_u24 v{t}, {8192 - 512}, v{t}"); a.e(f"v_add_u32 v{t}, v{t}, v2")
    a.e(f"buffer_store_dwordx4 {vr(z,4)}, v{t}, s[56:59], s42 offen {SC}")
    a.e("KV_n3:")
    roles(a)
    def pubk():
        a.e("s_lshl_b32 s36, s34, 5"); a.e("s_add_u32 s36, s36, s35"); a.e("s_lshl_b32 s36, s36, 7"); a.e(f"s_add_u32 s36, s36, {F_KVT}")
        mstamp(a)
        QL = int(os.environ.get("QL", "3"))
        if QL == 2: load_q(a)
        publish(a, 0, 8, pt, off=36, flag=True, wait=4 if QL == 2 else 0)
        if QL == 3: load_q(a)
        mstamp(a)
    HF = int(os.environ.get("HF", "0"))
    if not HF: pubk()
    else: a.e("s_waitcnt vmcnt(2)")
    cc = wf; hw2 = v()
    a.e(f"v_add_u32 v{hw2}, s45, v{hw}")
    for it in range(3):
        D = d + 6 * it; c0 = cc + 12 * it; c1 = c0 + 4; c2 = c0 + 8
        for k in range(4):
            a.e(f"v_alignbit_b32 v{c0+k}, v{D+k+1}, v{D+k}, 16")
            a.e(f"v_mov_b32 v{c1+k}, v{D+k+1}")
            a.e(f"v_alignbit_b32 v{c2+k}, v{D+k+2}, v{D+k+1}, 16")
        if it == 2: a.e("s_mov_b64 exec, 0xf")
        ad, o0 = (hw2, 1024 * it) if it < 2 else (hw, 4096)
        a.e(f"ds_write_b128 v{ad}, {vr(c0,4)} offset:{o0}")
        a.e(f"ds_write_b128 v{ad}, {vr(c1,4)} offset:{HSTR+o0}")
        a.e(f"ds_write_b128 v{ad}, {vr(c2,4)} offset:{2*HSTR+o0}")
        a.e(f"ds_write_b128 v{ad}, {vr(D+2,4)} offset:{3*HSTR+o0}")
        if it == 2: a.e("s_mov_b64 exec, -1")
    if HF: pubk()
    assert v.hi <= 176
    a.e("s_waitcnt lgkmcnt(0)"); a.e("s_barrier")
def load_q(a):
    a.srd(8, 6, 4 * MB)
    for j in range(4): a.e(f"buffer_load_dwordx2 {vr(RXA+2*j,2)}, v{RRO}, s[8:11], 0 offen offset:{128*(j>>1) + 32*(j&1)} {os.environ.get('NTQ', NTH)}")
def chan_setup(a, wsg):
    a.e("s_and_b32 s38, s2, 7"); a.e("s_lshl_b32 s38, s38, 5"); a.e("s_lshr_b32 s39, s2, 3"); a.e("s_add_u32 s38, s38, s39")
    a.e("s_lshl_b32 s39, s38, 2"); a.e(f"s_add_u32 s39, s39, s{wsg}")
    a.e(f"s_mul_i32 s40, s{wsg}, {CHB}")

def touch(a, ka, nbytes, r):
    n = nbytes // 1024 // 512
    a.e(f"s_load_dwordx2 s[48:49], s[0:1], {ka}")
    a.e("s_lshl_b32 s45, s2, 1"); a.e("s_and_b32 s50, s30, 1"); a.e("s_add_u32 s45, s45, s50"); a.e(f"s_mul_i32 s45, s45, {n*1024}")
    a.e(f"s_mov_b32 s50, {nbytes}"); a.e("s_mov_b32 s51, 0x20000")
    a.e("s_waitcnt lgkmcnt(0)")
    for i in range(n):
        if i and i % 4 == 0: a.e("s_add_u32 s45, s45, 4096")
        a.e(f"buffer_load_dwordx4 {vr(r,4)}, v2, s[48:51], s45 offen offset:{(i&3)*1024}")
    return n

def w2_warm(a):
    a.e("s_mov_b64 s[48:49], s[70:71]"); a.e(f"s_mov_b32 s50, {2*MB}"); a.e("s_mov_b32 s51, 0x20000")
    a.e("s_and_b32 s45, s28, 3"); a.e("s_lshl_b32 s45, s45, 1"); a.e("s_and_b32 s46, s30, 1"); a.e("s_add_u32 s45, s45, s46"); a.e("s_lshl_b32 s45, s45, 18")
    a.e("s_lshl_b32 s46, s29, 7"); a.e("s_add_u32 s45, s45, s46"); a.e("v_lshlrev_b32 v245, 11, v1")
    a.e("buffer_load_dword v244, v245, s[48:51], s45 offen"); a.e(f"s_add_u32 s45, s45, {64*2048}"); a.e("buffer_load_dword v246, v245, s[48:51], s45 offen")
def cs_load(a, which, slot):
    w_setup(a, which, pre=False)
    a.e(f"s_mov_b32 s42, {slot}"); a.e("s_mov_b32 s44, s28")
    w_issue(a, which, direct=True)
CSEL, CFR, CAD, CACC, CSO_ = 16, 72, 144, 156, 164
def cs_prep(a, S1, S3):
    a.e(f"v_and_b32 v{CSO_}, 15, v1"); a.e(f"v_mov_b32 v{CSO_+1}, 0x3f803f80")
    for T in range(14):
        a.e(f"v_cmp_eq_u32 vcc, {T}, v{CSO_}")
        for e in range(4): a.e(f"v_cndmask_b32 v{CSEL+4*T+e}, 0, v{CSO_+1}, vcc")
    pos = {}
    for which, slot, r0, halves in ((1, S1, CAD, 1), (3, S3, CAD + 4, 2)):
        c = CFG[which]
        for hf in range(halves):
            a.e(f"s_mov_b32 s35, {hf}")
            nr, pos[which] = w_bases(a, which, r0 + 2 * hf, 35, c["TN16"] // halves, WV + 8, WV + 9)
            a.e("s_and_b32 s35, s30, 1"); a.e(f"s_mul_i32 s35, s35, {32*c['RB']}"); a.e(f"s_add_u32 s35, s35, {slot}")
            for i in range(nr): a.e(f"v_add_u32 v{r0+2*hf+i}, s35, v{r0+2*hf+i}")
    for i in range(8): a.e(f"v_mov_b32 v{CACC+i}, 0")
    a.e(f"v_lshrrev_b32 v{CSO_+2}, 4, v1"); a.e(f"v_lshlrev_b32 v{CSO_+2}, 4, v{CSO_+2}"); a.e(f"v_lshl_add_u32 v{CSO_+2}, v{CSO_}, 6, v{CSO_+2}")
    a.e(f"v_mov_b32 v{CSO_+1}, 0x7f000000")
    for k, n in ((3, 4), (4, 14)):
        a.e(f"v_cmp_gt_u32 vcc, {n}, v{CSO_}"); a.e(f"v_cndmask_b32 v{CSO_+k}, v{CSO_+1}, v{CSO_+2}, vcc")
    return pos
def cs_sum(a, which, pos):
    c = CFG[which]; ntl = c["TN16"]; N = c["LDW"] // 2
    F = CFR + (0 if which == 3 else 56); A = CACC + (0 if which == 3 else 4)
    for T in range(ntl):
        hf, nt = (T // 7, T % 7) if which == 3 else (0, T)
        for h in range(2):
            r, imm = pos[which](nt, 0, h)
            a.e(f"ds_read_b64_tr_b16 {vr(F+4*T+2*h,2)}, v{(CAD + 4 if which == 3 else CAD) + 2*hf + r} offset:{imm}")
    a.srd(20, 4, 32 * N * 4, off=CSP[which])
    a.e("s_lshl_b32 s35, s28, 1"); a.e("s_and_b32 s36, s30, 1"); a.e("s_add_u32 s35, s35, s36"); a.e(f"s_mul_i32 s35, s35, {N*4}")
    a.e(f"s_mul_i32 s36, s29, {ntl*64}"); a.e("s_add_u32 s35, s35, s36")
    a.e("s_waitcnt lgkmcnt(0)")
    if CSPRIO == 2: a.e("s_setprio 1")
    for T in range(ntl): a.e(f"v_mfma_f32_16x16x32_bf16 {vr(A,4)}, {vr(F+4*T,4)}, {vr(CSEL+4*T,4)}, {vr(A,4)}")
    if CSPRIO == 2: a.e("s_setprio 0")
    a.e(f"buffer_store_dwordx4 {vr(A,4)}, v{CSO_ + (4 if which == 3 else 3)}, s[20:23], s35 offen {SC}")

NOCS3 = int(os.environ.get("NOCS3", "0")); STO = os.environ.get("STOUCH", "")
def stouch(a, which, gran, nw):
    X = a.lab("st"); L = a.lab("sl"); n = 28672 // nw
    a.e("s_cmp_lg_u32 s60, 0"); a.e(f"s_cbranch_scc1 {X}")
    a.e(f"s_mul_i32 s36, s2, 28672"); a.e(f"s_and_b32 s37, s30, {nw-1}"); a.e(f"s_mul_i32 s37, s37, {n}"); a.e("s_add_u32 s36, s36, s37")
    a.e(f"s_add_u32 s34, s{66+2*which}, s36"); a.e(f"s_addc_u32 s35, s{67+2*which}, 0"); a.e("s_mov_b32 s36, 0")
    a.e(f"{L}:")
    for i in range(14): a.e(f"s_load_dword s37, s[34:35], {i*gran}")
    a.e(f"s_add_u32 s34, s34, {14*gran}"); a.e("s_addc_u32 s35, s35, 0"); a.e("s_add_u32 s36, s36, 1"); a.e(f"s_cmp_lt_u32 s36, {n // (14*gran)}"); a.e(f"s_cbranch_scc1 {L}")
    a.e("s_waitcnt lgkmcnt(0)")
    a.e(f"{X}:")
SB = eval(os.environ.get("SB", "(0,0,0)"))
SG = eval(os.environ.get("SG", "(0,0,0,0)"))
def sg(a, n):
    if not n: return
    X = a.lab("st"); L = a.lab("sl")
    a.e("s_cmp_lg_u32 s60, 0"); a.e(f"s_cbranch_scc1 {X}"); a.e("s_mov_b32 s36, 0"); a.e(f"{L}:"); sb(a, 14)
    a.e("s_add_u32 s36, s36, 1"); a.e(f"s_cmp_lt_u32 s36, {n}"); a.e(f"s_cbranch_scc1 {L}"); a.e("s_waitcnt lgkmcnt(0)"); a.e(f"{X}:"); mstamp(a)
def sb_init(a):
    nw = 2 if sum(SG) else 4
    a.e(f"s_mul_i32 s36, s2, 28672"); a.e(f"s_and_b32 s37, s30, {nw-1}"); a.e(f"s_mul_i32 s37, s37, {28672//nw}"); a.e("s_add_u32 s36, s36, s37")
    SW = 66 + 2 * int(os.environ.get("SGW", "3"))
    a.e(f"s_add_u32 s90, s{SW}, s36"); a.e(f"s_addc_u32 s91, s{SW+1}, 0")
def sb(a, n):
    for i in range(n): a.e(f"s_load_dword s101, s[90:91], {i*64}")
    if n: a.e(f"s_add_u32 s90, s90, {n*64}"); a.e("s_addc_u32 s91, s91, 0")
PUTE = int(os.environ.get("PUTE", "1"))
def front_b(a):
    pt, dm = 6, 20
    vd = 12; VG = int(os.environ.get("VG", "0")); VE = int(os.environ.get("VE", "1"))
    def vote():
        a.e(f"s_cmp_ge_u32 s2, {NVOTE}"); a.e("s_cbranch_scc1 FB_np"); a.e("s_cmp_lg_u32 s30, 5"); a.e("s_cbranch_scc1 FB_np")
        probe_base(a); a.e(f"v_mov_b32 v{vd+2}, 0")
        if os.environ.get("SPR", "1") == "1":
            a.e("s_mov_b64 exec, 1"); a.e("s_mov_b32 s46, -1"); a.e("s_mov_b32 s47, -1")
            a.e("s_add_u32 s48, s4, s42"); a.e("s_addc_u32 s49, s5, 0")
            a.e("s_load_dword s101, s[48:49], 384"); a.e("s_waitcnt lgkmcnt(0)"); a.e("s_memtime s[34:35]"); a.e("s_waitcnt lgkmcnt(0)")
            for k in range(2 * NSAMP):
                p_, q_ = (34, 36) if k % 2 == 0 else (36, 34)
                a.e(f"s_load_dword s101, s[48:49], {(k & 1) * 8192 + (k >> 1) * 128}"); a.e("s_waitcnt lgkmcnt(0)"); a.e(f"s_memtime s[{q_}:{q_+1}]"); a.e("s_waitcnt lgkmcnt(0)")
                a.e(f"s_sub_u32 s43, s{q_}, s{p_}"); a.e(f"s_min_u32 s{46+(k&1)}, s{46+(k&1)}, s43")
        else:
            a.e("s_mov_b64 exec, 1"); a.e("s_mov_b32 s46, -1"); a.e("s_mov_b32 s47, -1"); a.e("s_mov_b32 s43, 0")
            a.e("FB_ml:")
            for i in range(2):
                a.e(f"s_add_u32 s45, s42, {i * 8192}")
                a.e("s_memtime s[34:35]"); a.e("s_waitcnt lgkmcnt(0)")
                a.e(f"buffer_load_dword v{vd+1}, v{vd+2}, s[56:59], s45 offen {SC}"); a.e("s_waitcnt vmcnt(0)")
                a.e("s_memtime s[36:37]"); a.e("s_waitcnt lgkmcnt(0)")
                a.e("s_sub_u32 s36, s36, s34"); a.e(f"s_min_u32 s{46+i}, s{46+i}, s36")
            a.e("s_add_u32 s42, s42, 128"); a.e("s_add_u32 s43, s43, 1"); a.e(f"s_cmp_lt_u32 s43, {NSAMP}"); a.e("s_cbranch_scc1 FB_ml")
        a.e("s_cmp_lt_u32 s47, s46"); a.e("s_cselect_b32 s45, 1, 0")
        a.e("s_lshr_b32 s46, s28, 2"); a.e("s_xor_b32 s45, s45, s46"); a.e("s_and_b32 s45, s45, 1"); a.e("s_lshl_b32 s45, s45, 8")
        a.e("s_or_b32 s43, s45, 1"); a.e(f"v_mov_b32 v{vd}, s43")
        a.e(f"buffer_atomic_add v{vd}, v{vd+2}, s[84:87], 0 offen offset:4 sc0 {SC}"); a.e("s_waitcnt vmcnt(0)")
        a.e(f"v_readfirstlane_b32 s36, v{vd}"); a.e("s_add_u32 s36, s36, s43"); a.e("s_and_b32 s37, s36, 255"); a.e(f"s_cmp_lg_u32 s37, {QUO}"); a.e("s_cbranch_scc1 FB_np")
        a.e("s_lshr_b32 s36, s36, 8"); a.e("s_lshl_b32 s36, s36, 1"); a.e("s_add_u32 s36, s36, s52"); a.e("s_bfm_b64 exec, 32, 0")
        a.e(f"v_mov_b32 v{vd}, s36"); a.e(f"v_lshlrev_b32 v{vd+1}, 7, v1"); a.e(f"s_mov_b32 s36, {F_RES}"); a.e(f"buffer_store_dword v{vd}, v{vd+1}, s[56:59], s36 offen {SC}")
        a.e("FB_np:")
        a.e("s_mov_b64 exec, -1")
        if VG:
            a.e("s_cmp_lg_u32 s30, 5"); a.e("s_cbranch_scc1 FB_ng")
            a.e(f"v_mov_b32 v{pt}, {LW+20}"); a.e(f"v_mov_b32 v{pt+1}, 1"); a.e("s_mov_b64 exec, 1"); a.e(f"ds_add_u32 v{pt}, v{pt+1}"); a.e("s_mov_b64 exec, -1")
            a.e("FB_ng:")
    if VE: vote()
    PZE = int(os.environ.get("PZE", "0"))
    if PZE:
        a.srd(20, 4, 32 * MB, off=216 * MB)
        for i in range(4): a.e(f"v_mov_b32 v{216+i}, -1")
        a.e("s_lshl_b32 s45, s2, 2"); a.e("s_and_b32 s50, s30, 3"); a.e("s_add_u32 s45, s45, s50"); a.e(f"s_mul_i32 s45, s45, {PZE*1024}")
        for i in range(PZE):
            a.e(f"buffer_store_dwordx4 v[216:219], v2, s[20:23], s45 offen {SC}"); a.e("s_add_u32 s45, s45, 1024")
    if TAB: tab_load(a)
    TE = int(os.environ.get("TE", "0"))
    if TE:
        a.e("s_cmp_ge_u32 s30, 6"); a.e("s_cbranch_scc1 FB_t1"); touch(a, B_W2, 2 * MB, dm); a.e("s_branch FB_t2"); a.e("FB_t1:"); touch(a, B_W1, 2 * MB, 200); a.e("FB_t2:")
    w_lanes(a)
    a.e("s_cmp_ge_u32 s30, 6"); a.e("s_cbranch_scc1 FB_cs")
    if not VE: vote()
    mstamp(a)
    a.e("s_cmp_lg_u32 s30, 4"); a.e("s_cbranch_scc1 FB_ni")
    a.e(f"v_mov_b32 v{vd}, s52")
    group_off(a, 37, 28); a.e("s_andn2_b32 s37, s37, 0x2000"); a.e("s_lshl_b32 s53, s29, 7"); a.e("s_add_u32 s37, s37, s53"); a.e(f"s_add_u32 s37, s37, {oSM}")
    a.e(f"v_and_b32 v{vd+1}, 1, v1"); a.e(f"v_lshlrev_b32 v{vd+1}, 13, v{vd+1}"); a.e(f"v_lshrrev_b32 v{vd+2}, 1, v1"); a.e(f"v_lshl_add_u32 v{vd+1}, v{vd+2}, 22, v{vd+1}")
    a.e("s_mov_b64 exec, 0xf"); a.e(f"buffer_store_dword v{vd}, v{vd+1}, s[56:59], s37 offen {SC}")
    a.e("s_cmp_lg_u32 s28, 0"); a.e("s_cbranch_scc1 FB_n2")
    a.e(f"s_add_u32 s37, s53, {F_CS}"); a.e("s_mov_b64 exec, 1"); a.e(f"buffer_store_dword v{vd}, v{vd+1}, s[56:59], s37 offen {SC}")
    a.e("FB_n2:")
    a.e("s_mov_b64 exec, -1")
    a.e("FB_ni:")
    TME = int(os.environ.get("TME", "1"))
    if TME: a.e("s_waitcnt vmcnt(0)"); tab_make(a, 0)
    UG = (LW + 20, 4 + VG) if os.environ.get("UG", "1") == "1" else (LW + 16, 1)
    lds_spin(a, *UG, pt, nap=2)
    mstamp(a)
    if TLBW:
        a.e("s_cmp_lg_u32 s30, 5"); a.e("s_cbranch_scc1 FB_nt")
        a.e(f"v_and_b32 v{vd}, 7, v1"); a.e(f"v_lshlrev_b32 v{vd}, 24, v{vd}"); a.e(f"v_lshrrev_b32 v{vd+1}, 3, v1"); a.e(f"v_lshl_add_u32 v{vd}, v{vd+1}, 22, v{vd}")
        a.e("s_lshl_b32 s36, s2, 7"); a.e(f"s_add_u32 s36, s36, {LB0 + 2 * MB - 65536}")
        a.e(f"s_bfm_b64 exec, {8 * TLBW}, 0"); a.e(f"buffer_load_dword v{dm+4}, v{vd}, s[56:59], s36 offen {SC}"); a.e("s_mov_b64 exec, -1")
        a.e("FB_nt:")
    if os.environ.get("W2T", "1") == "2": lds_spin(a, LW + 24, 2, pt, nap=4)
    if os.environ.get("W2T", "1") == "3":
        w_srd(a, 2); a.e("s_lshl_b32 s39, s28, 1"); a.e("s_and_b32 s36, s30, 1"); a.e("s_add_u32 s39, s39, s36"); a.e("s_lshl_b32 s39, s39, 16"); a.e("s_lshl_b32 s36, s29, 7"); a.e("s_add_u32 s39, s39, s36")
        for i in range(4): a.e(f"buffer_load_dwordx4 {vr(dm,4)}, v{WVB[2]}, s[12:15], s39 offen"); a.e("s_add_u32 s39, s39, 16384")
    elif os.environ.get("W2T", "1") != "0" and not TE: touch(a, B_W2, 2 * MB, dm)
    QL = int(os.environ.get("QL", "3"))
    if not QL: load_q(a)
    if W4POS == "F": lds_spin(a, LW + 24, 2, pt, nap=4); a.e("s_waitcnt vmcnt(0)")
    if W4POS in ("F", "F0"): touch(a, B_W4, 7 * MB, dm)
    PZF = int(os.environ.get("PZF", "0"))
    if PZF:
        a.srd(20, 4, 32 * MB, off=216 * MB)
        for i in range(4): a.e(f"v_mov_b32 v{216+i}, -1")
        a.e("s_lshl_b32 s45, s2, 1"); a.e("s_and_b32 s50, s30, 1"); a.e("s_add_u32 s45, s45, s50"); a.e(f"s_mul_i32 s45, s45, {PZF*1024}")
        for i in range(PZF):
            a.e(f"buffer_store_dwordx4 v[216:219], v2, s[20:23], s45 offen {SC}"); a.e("s_add_u32 s45, s45, 1024")
            if os.environ.get("PZP"): a.e(f"s_waitcnt vmcnt({os.environ['PZP']})")
    front_arrive(a, True)
    if not TME: tab_make(a, 0)
    PKW = int(os.environ.get("PKW", "2")); PKP = int(os.environ.get("PKP", "8"))
    W1P = int(os.environ.get("W1P", "8")); FO = os.environ.get("FO", "1pd"); FO2 = os.environ.get("FO2", "1pd")
    R1 = [176, 188, 192] + [200 + 4 * i for i in range(7)] + [16 + 4 * i for i in range(8)]
    def w1_regs(a):
        w_srd(a, 1)
        a.e("s_and_b32 s35, s30, 3"); a.e(f"s_mul_i32 s35, s35, {18*16384}"); a.e("s_lshl_b32 s39, s99, 7"); a.e("s_add_u32 s39, s39, s35")
        for q in range(18):
            a.e(f"buffer_load_dwordx4 {vr(R1[q],4)}, v{WVB[1]}, s[12:15], s39 offen"); a.e("s_add_u32 s39, s39, 16384")
            if q % 4 == 3: sb(a, SB[1])
            if PKP and q % 4 == 3: a.e(f"s_waitcnt vmcnt({PKP})")
        if QL == 1: load_q(a)
    def w1_put(a):
        a.e("s_and_b32 s35, s30, 3"); a.e(f"s_mul_i32 s35, s35, {18*1024}"); a.e("v_add_u32 v8, s35, v2")
        if PUTE: lds_spin(a, LW + 20, 8 + VG, pt, nap=2)
        else: lds_spin(a, LW + 4, 16, pt, nap=2)
        PV0 = int(os.environ.get("PV0", "1")); assert not PV0 or (FO[0] == "1" and FO2[0] == "1" and "p" in FO and "p" in FO2)
        a.e(f"s_waitcnt vmcnt({32 - PD if PV0 else 0})")
        for q in range(18): a.e(f"ds_write_b128 v8, {vr(R1[q],4)} offset:{CFG[1]['WB'] + 1024*q}")
        a.e("s_waitcnt lgkmcnt(0)")
    def w1_dma(a, js):
        lds_spin(a, LW + 24, 4, pt, nap=3)
        w_setup(a, 1, pre=False)
        for j in js: w1_slots(a, (j,), pace=W1P); ypause(a)
    DS_ = int(os.environ.get("DSPL", "12"))
    if PKW: lds_spin(a, LW + 24, PKW, pt, nap=4)
    for i_, ch in enumerate(FO):
        if ch == "d": w1_dma(a, range(9, DS_))
        else: call(a, {"1": w1_regs, "p": park}[ch])
    park_rest(a, False)
    mstamp(a)
    call(a, w1_put)
    a.e("s_branch FR_end")
    a.e("FB_cs:")
    S1, S3 = KVS - CFG[1]["WB"], KVS + 8192 - CFG[3]["WB"]
    pos = cs_prep(a, S1, S3)
    if TME: a.e("s_waitcnt vmcnt(0)"); tab_make(a, 1)
    lds_spin(a, *UG, pt, nap=2)
    mstamp(a)
    if not QL: load_q(a)
    cs_load(a, 1, S1)
    if not NOCS3: cs_load(a, 3, S3)
    a.e(f"s_waitcnt vmcnt({0 if NOCS3 else 14})")
    if CSPRIO == 1: a.e(f"s_setprio {CSPRIO}")
    cs_sum(a, 1, pos)
    a.e("s_waitcnt vmcnt(1)")
    a.e(f"v_mov_b32 v{pt}, {LW+24}"); a.e(f"v_mov_b32 v{pt+1}, 1")
    a.e("s_mov_b64 exec, 1"); a.e(f"ds_add_u32 v{pt}, v{pt+1}"); a.e("s_mov_b64 exec, -1")
    mstamp(a)
    if not NOCS3: cs_sum(a, 3, pos)
    front_arrive(a, False)
    if not TME: tab_make(a, 1)
    a.e(f"v_mov_b32 v{pt}, {LW+24}"); a.e(f"v_mov_b32 v{pt+1}, 1")
    a.e("s_mov_b64 exec, 1"); a.e(f"ds_add_u32 v{pt}, v{pt+1}"); a.e("s_mov_b64 exec, -1")
    mstamp(a)
    a.e("s_setprio 0")
    assert CFG[1]["WB"] + 9 * 8192 == KVS
    for ch in FO2:
        if ch == "d": w1_dma(a, range(DS_, 16))
        else: call(a, {"1": w1_regs, "p": park}[ch])
    park_rest(a, False)
    mstamp(a)
    call(a, w1_put)

PG = int(os.environ.get("PG", "0"))
def front_conv(a):
    v = VA(6); lane = 1; l16 = 2
    t = v(); pt = v(4, 2)
    chan_setup(a, 30)
    a.e("s_and_b32 s36, s39, 127"); a.e("s_lshl_b32 s36, s36, 12"); a.e("s_lshr_b32 s37, s39, 7"); a.e("s_lshl_b32 s37, s37, 24")
    a.e("s_add_u32 s36, s36, s37"); a.e(f"s_add_u32 s36, s36, {LB0 + oX3}")
    a.e("s_add_u32 s16, s4, s36"); a.e("s_addc_u32 s17, s5, 0"); a.e("s_mov_b32 s18, 4096"); a.e("s_mov_b32 s19, 0x20000")
    uw = v(); u = v(16, 4)
    a.e(f"v_lshrrev_b32 v{t}, 2, v{lane}"); a.e(f"v_mul_u32_u24 v{uw}, {US}, v{t}"); a.e(f"v_and_b32 v{t}, 3, v{lane}")
    a.e(f"v_lshl_add_u32 v{uw}, v{t}, 4, v{uw}"); a.e(f"v_add_u32 v{uw}, s40, v{uw}")
    aa = v(); ba = v(); ua = v(); J = v(); G = v()
    a.e(f"v_and_b32 v{J}, 15, v{lane}"); a.e(f"v_lshrrev_b32 v{G}, 4, v{lane}")
    a.e(f"v_and_b32 v{t}, 3, v{J}"); a.e(f"v_mul_u32_u24 v{aa}, {HSTR}, v{t}")
    a.e(f"v_lshl_add_u32 v{aa}, v{G}, 4, v{aa}"); a.e(f"v_lshrrev_b32 v{t}, 2, v{J}"); a.e(f"v_lshl_add_u32 v{aa}, v{t}, 3, v{aa}")
    a.e(f"v_add_u32 v{aa}, s40, v{aa}")
    a.e(f"v_sub_u32 v{t}, 15, v{J}"); a.e(f"v_mul_u32_u24 v{ua}, {US}, v{t}"); a.e(f"v_add_u32 v{ua}, s40, v{ua}")
    a.e(f"v_lshl_add_u32 v{ba}, v{G}, 4, v{ua}")
    acc = v(32, 4)
    fa = v(64, 4); fb = v(32, 4)
    def rdA(p, o):
        return [f"ds_read_b64 {vr(fa+32*p+8*s_+4*mt+2*h,2)}, v{aa} offset:{64*(o+16*s_) + 32*mt + 8*h}" for s_ in range(4) for mt in range(2) for h in range(2)]
    def rdB(p, o):
        return [f"ds_read_b128 {vr(fb+16*p+4*k,4)}, v{ba} offset:{UOFF + (48 - 16*k + o)*US}" for k in range(4)]
    for x in rdA(0, 0): a.e(x)
    dm_ = fb + 16; Dv = pt + 2
    a.e("s_bitcmp1_b32 s39, 0"); a.e("s_cselect_b32 s36, 0, 16"); a.e("s_lshl_b32 s41, s98, s36"); a.e("s_and_b32 s41, s41, 0xffff0000"); a.e("s_lshr_b32 s36, s41, 16")
    a.e(f"v_lshl_add_u32 v{t}, v{G}, 3, v{J}"); a.e(f"v_sub_u32 v{t}, 31, v{t}")
    a.e(f"v_mov_b32 v{Dv}, s36"); a.e(f"v_mov_b32 v{Dv+1}, s41"); a.e(f"v_and_b32 v{pt}, 1, v{t}"); a.e(f"v_cmp_eq_u32 vcc, 1, v{pt}")
    a.e(f"v_cndmask_b32 v{Dv}, v{Dv}, v{Dv+1}, vcc"); a.e(f"v_ashrrev_i32 v{t}, 1, v{t}")
    for mt in range(2):
        for d_ in range(4): a.e(f"v_cmp_eq_u32 vcc, {8*mt+d_}, v{t}"); a.e(f"v_cndmask_b32 v{dm_+4*mt+d_}, 0, v{Dv}, vcc")
    a.srd(12, 4, 8 * GSTR - oHS, off=LB0 + oHS)
    ta = v(); go = v()
    a.e(f"v_bfe_u32 v{t}, v{lane}, 2, 2"); a.e(f"v_mul_u32_u24 v{ta}, {CHB+64}, v{t}")
    a.e(f"v_mul_u32_u24 v{t}, 72, v{G}"); a.e(f"v_add_u32 v{ta}, v{ta}, v{t}")
    a.e(f"v_and_b32 v{t}, 3, v{lane}"); a.e(f"v_lshl_add_u32 v{ta}, v{t}, 3, v{ta}")
    a.e(f"s_mul_i32 s36, s30, {16*72}"); a.e(f"v_add_u32 v{ta}, s36, v{ta}")
    a.e(f"v_lshrrev_b32 v{t}, 5, v{lane}"); a.e(f"v_mul_u32_u24 v{go}, {262144 - 512}, v{t}"); a.e(f"v_add_u32 v{go}, v{go}, v{l16}")
    a.e("s_lshr_b32 s44, s38, 4"); a.e("s_lshl_b32 s44, s44, 14"); a.e("s_and_b32 s37, s38, 15"); a.e("s_lshl_b32 s37, s37, 9"); a.e("s_add_u32 s44, s44, s37")
    a.e("s_and_b32 s37, s30, 1"); a.e("s_lshl_b32 s37, s37, 13"); a.e("s_add_u32 s44, s44, s37")
    a.e("s_lshr_b32 s37, s30, 1"); a.e("s_lshl_b32 s37, s37, 26"); a.e("s_add_u32 s44, s44, s37")
    a.e("s_and_b32 s47, s44, 0x2000"); a.e(f"s_xor_b32 s47, s47, {(((F_FRONT >> 21) ^ (F_FRONT >> 13)) & 1) << 13}"); a.e("s_lshr_b32 s37, s30, 1"); a.e("s_lshl_b32 s37, s37, 12"); a.e("s_add_u32 s47, s47, s37")
    a.e("s_and_b32 s37, s2, 7"); a.e("s_lshl_b32 s37, s37, 7"); a.e("s_add_u32 s47, s47, s37")
    a.e(f"v_mov_b32 v{ua}, {LW+8}"); a.e("v_mov_b32 v7, 1")
    ya = v()
    a.e(f"s_mul_i32 s36, s30, {CHB+64}")
    a.e(f"v_mul_u32_u24 v{ya}, 72, v{J}"); a.e(f"v_lshl_add_u32 v{ya}, v{G}, 3, v{ya}"); a.e(f"v_add_u32 v{ya}, s36, v{ya}")
    a.e("v_lshlrev_b32 v6, 10, v1"); assert t == 6 and PWA
    a.e(f"v_mov_b32 v{J}, 0"); a.e("s_and_b32 s45, s2, 31"); a.e("s_lshl_b32 s45, s45, 7"); a.e(f"s_add_u32 s45, s45, {F_RES}")
    a.e("s_cmp_lg_u32 s30, 0"); a.e("s_cbranch_scc1 CV_w")
    a.e("s_and_b32 s36, s2, 7"); a.e("s_lshl_b32 s36, s36, 12"); a.e(f"s_add_u32 s36, s36, {F_KVT}")
    a.e(f"v_lshlrev_b32 v{pt+1}, 7, v{lane}"); a.e(f"v_add_u32 v{pt+1}, s36, v{pt+1}")
    poll_core(a, pt, [pt + 1], 0xffffffff)
    lds_set(a, LW + 16, 1, pt)
    a.e("CV_w:")
    lds_spin(a, LW + 16, 1, pt)
    mstamp(a)
    for it in range(4): a.e(f"buffer_load_dwordx4 {vr(u+4*it,4)}, v{l16}, s[16:19], 0 offen offset:{1024*it} {os.environ.get('UF', SC + ' nt')}")
    QL = int(os.environ.get("QL", "3"))
    if not QL: load_q(a)
    for it in range(4):
        a.e(f"s_waitcnt vmcnt({(3 if QL else 7)-it})")
        a.e(f"ds_write_b128 v{uw}, {vr(u+4*it,4)} offset:{UOFF + 16*US*it}")
    a.e(f"v_mov_b32 v{pt}, {LW+20}"); a.e(f"v_mov_b32 v{pt+1}, 1")
    a.e("s_mov_b64 exec, 1"); a.e(f"ds_add_u32 v{pt}, v{pt+1}"); a.e("s_mov_b64 exec, -1")
    a.e("s_waitcnt lgkmcnt(0)")
    mstamp(a)
    for x in rdB(0, 0): a.e(x)
    for c_ in range(4):
        a.e(f"s_waitcnt lgkmcnt({3-c_})")
        for mt in range(2): a.e(f"v_mfma_f32_16x16x32_bf16 {vr(acc+8*c_+4*mt,4)}, {vr(dm_+4*mt,4)}, {vr(fb+4*c_,4)}, 0")
    def step(p, nxt, tail, piped=False):
        a.e(f"s_waitcnt lgkmcnt({10 if piped else 0})")
        mf = [(c_, s_, mt) for s_ in range(4) for mt in range(2) for c_ in range(s_, 4)]
        for i, (c_, s_, mt) in enumerate(mf):
            A = acc + 8 * c_ + 4 * mt
            a.e(f"v_mfma_f32_16x16x32_bf16 {vr(A,4)}, {vr(fa+32*p+8*s_+4*mt,4)}, {vr(fb+16*p+4*(c_-s_),4)}, {vr(A,4)}")
            if nxt: a.e(nxt.pop(0))
            if piped and i == 9: a.e("s_waitcnt lgkmcnt(10)")
            for x in tail.pop(i, []) if tail else []: a.e(x)
        assert not nxt and not tail
    a.e("s_mov_b32 s43, 0")
    NU = int(os.environ.get("NU", "4")); HP = int(os.environ.get("HP", "0")); VT = int(os.environ.get("VT", "5"))
    vt = {1: [f"s_cmp_eq_u32 s43, {VT}"], 2: ["s_cselect_b64 exec, 1, 0", f"buffer_load_dword v{uw}, v{J}, s[56:59], s45 offen {SC}", "s_mov_b64 exec, -1"]}
    if NU:
        a.e("CV_r:")
        for p in range(2):
            rd = rdB(1 - p, p + 1) + rdA(1 - p, p + 1)
            step(p, rd[:HP], dict(vt) if p == 0 and VT < NU else [])
            for x in rd[HP:]: a.e(x)
        for x in [f"v_add_u32 v{aa}, 128, v{aa}", f"v_add_u32 v{ba}, {2*US}, v{ba}", "s_add_u32 s43, s43, 1", f"s_cmp_lt_u32 s43, {NU}"]: a.e(x)
        a.e("s_cbranch_scc1 CV_r")
    if QL == 1: load_q(a)
    a.e("CV_l:")
    step(0, rdB(1, 1) + rdA(1, 1), dict(vt) if VT >= NU else [], True)
    step(1, rdB(0, 2) + rdA(0, 2), {19: [f"v_add_u32 v{aa}, 128, v{aa}"], 5: [f"v_add_u32 v{ba}, {2*US}, v{ba}"], 6: ["s_add_u32 s43, s43, 1"], 7: ["s_cmp_lt_u32 s43, 8"]}, True)
    a.e("s_cbranch_scc1 CV_l")
    mstamp(a)
    if os.environ.get("EPR"): a.e("s_setprio " + os.environ["EPR"])
    for c_ in range(4):
        for mt in range(2):
            A = acc + 8 * c_ + 4 * mt; O = u + 2 * (c_ * 2 + mt)
            a.e(f"v_cvt_pk_bf16_f32 v{O}, v{A}, v{A+1}"); a.e(f"v_cvt_pk_bf16_f32 v{O+1}, v{A+2}, v{A+3}")
            a.e(f"ds_write_b64 v{ya}, {vr(O,2)} offset:{c_*16*72 + mt*32}")
    a.e("s_mov_b64 exec, 1"); a.e(f"ds_add_u32 v{ua}, v7"); a.e("s_mov_b64 exec, -1")
    a.e("s_mov_b32 s53, 0"); a.e("s_waitcnt vmcnt(0)")
    a.e("CV_v:")
    a.e(f"v_readfirstlane_b32 s94, v{uw}"); a.e("s_sub_u32 s94, s94, s52"); a.e("s_and_b32 s37, s94, 0xfffffe01"); a.e("s_cbranch_scc0 CV_k")
    a.e(f"buffer_load_dword v{uw}, v{J}, s[56:59], s45 offen {SC}"); a.e("s_waitcnt vmcnt(0)")
    a.e("s_add_u32 s53, s53, 1"); a.e("s_cmp_lt_u32 s53, s61"); a.e("s_cbranch_scc1 CV_v"); a.e("s_mov_b32 s61, 0"); a.e("s_mov_b32 s94, 0")
    a.e("CV_k:")
    a.e("s_lshr_b32 s94, s94, 1"); a.e("s_add_u32 s37, s94, 65536"); a.e(f"v_mov_b32 v{pt}, {LW+28}"); a.e(f"v_mov_b32 v{pt+1}, s37"); a.e(f"ds_write_b32 v{pt}, v{pt+1}")
    a.e(f"s_cmp_gt_u32 s94, {QUO // 2}"); a.e("s_cselect_b32 s37, 0x2000, 0"); a.e("s_xor_b32 s44, s44, s37")
    a.e("s_xor_b32 s45, s47, s37"); a.e(f"s_add_u32 s45, s45, {F_FRONT}")
    lds_spin(a, LW + 8, 6, pt)
    for i in range(8): a.e(f"ds_read_b64_tr_b16 {vr(fa+32+2*i,2)}, v{ta} offset:{288*(i>>1) + 32*(i&1)}")
    for i in range(4):
        a.e(f"s_waitcnt lgkmcnt({6-2*i})")
        mark(a, fa + 32 + 4 * i, 1)
        a.e(f"buffer_store_dwordx4 {vr(fa+32+4*i,4)}, v{go}, s[12:15], s44 offen {SC}")
        a.e(f"s_add_u32 s44, s44, {GSTR}")
    if PUTE:
        a.e(f"v_mov_b32 v{pt}, {LW+20}"); a.e(f"v_mov_b32 v{pt+1}, 1")
        a.e("s_mov_b64 exec, 1"); a.e(f"ds_add_u32 v{pt}, v{pt+1}"); a.e("s_mov_b64 exec, -1")
    assert v.hi <= 176

PK = 48; W3S = 176
RFO, RYO, RRO, RI, RXA, RXB, RYY, RT = 196, 197, 198, 199, 180, 188, 230, 228
def r_addr(a, full=True):
    t, t2, I, fo, ro, yo = RT, RT + 1, RI, RFO, RRO, RYO
    a.e(f"v_and_b32 v{I}, 7, v0")
    a.e(f"v_lshrrev_b32 v{t}, 6, v0"); a.e(f"v_lshlrev_b32 v{t}, 4, v{t}"); a.e(f"v_bfe_u32 v{t2}, v0, 3, 3"); a.e(f"v_add_u32 v{t}, v{t}, v{t2}")
    a.e("s_lshr_b32 s78, s29, 1"); a.e("s_lshl_b32 s78, s78, 16"); a.e("s_and_b32 s79, s29, 1"); a.e("s_lshl_b32 s79, s79, 7"); a.e("s_add_u32 s78, s78, s79")
    a.e("s_lshr_b32 s79, s30, 1"); a.e("s_lshl_b32 s79, s79, 13"); a.e("s_add_u32 s78, s78, s79")
    a.e(f"v_lshlrev_b32 v{fo}, 8, v{t}"); a.e(f"v_lshl_add_u32 v{fo}, v{I}, 4, v{fo}"); a.e(f"v_add_u32 v{fo}, s78, v{fo}")
    if not full: return
    a.e("s_lshl_b32 s78, s28, 7"); a.e("s_lshl_b32 s79, s29, 3"); a.e("s_add_u32 s78, s78, s79")
    a.e(f"v_add_u32 v{yo}, s78, v{I}"); a.e(f"v_lshlrev_b32 v{ro}, 11, v{yo}")
    a.e(f"v_lshrrev_b32 v{t2}, 2, v{t}"); a.e(f"v_lshlrev_b32 v{t2}, 3, v{t2}"); a.e(f"v_and_b32 v{t}, 3, v{t}"); a.e(f"v_add_u32 v{t}, v{t}, v{t2}")
    a.e(f"v_lshl_add_u32 v{ro}, v{t}, 3, v{ro}")
    a.e(f"v_and_b32 v{yo}, 15, v{yo}"); a.e(f"v_lshlrev_b32 v{yo}, 4, v{yo}"); a.e(f"v_and_b32 v{t2}, 15, v{t}"); a.e(f"v_lshl_add_u32 v{yo}, v{t2}, 9, v{yo}")
    a.e(f"v_lshrrev_b32 v{t2}, 4, v{t}"); a.e(f"v_lshl_add_u32 v{yo}, v{t2}, 14, v{yo}")
    a.e("s_lshr_b32 s78, s28, 3"); a.e("s_lshl_b32 s78, s78, 2"); a.e("s_and_b32 s79, s28, 3"); a.e("s_add_u32 s78, s78, s79"); a.e("s_lshl_b32 s78, s78, 24")
    a.e("s_and_b32 s79, s28, 4"); a.e("s_lshl_b32 s79, s79, 11"); a.e("s_add_u32 s78, s78, s79")
    a.e("s_and_b32 s79, s29, 4"); a.e("s_lshl_b32 s79, s79, 6"); a.e("s_add_u32 s78, s78, s79"); a.e("s_and_b32 s79, s29, 2"); a.e("s_lshl_b32 s79, s79, 2"); a.e("s_add_u32 s78, s78, s79")
    a.e("s_lshl_b32 s79, s31, 18"); a.e("s_add_u32 s78, s78, s79"); a.e(f"v_add_u32 v{yo}, s78, v{yo}")
def load_y(a, skip_last=False):
    a.srd(80, 4, 8 * GSTR - oHS, off=LB0 + oHS)
    for j in range(2):
        for hh in range(2):
            a.e(f"s_mov_b32 s78, {j*16384 + hh*2048}")
            a.e(f"buffer_load_dwordx2 {vr(RYY+4*j+2*hh,2)}, v{RYO}, s[80:83], s78 offen {os.environ.get('YF', SC)}")
def r_pre(a, l0=False):
    r_addr(a, False)
    lsrd(a, 84, oX3, XSZ); lsrd(a, 88, oX1P, XSZ)
    if l0: a.e("s_cmp_eq_u32 s60, 0"); a.e("s_cselect_b64 exec, -1, 0")
    for j in range(2):
        a.e(f"buffer_load_dwordx4 {vr(RXA+4*j,4)}, v{RFO}, s[84:87], 0 offen offset:{2048*j} {SC}")
        a.e(f"buffer_load_dwordx4 {vr(RXB+4*j,4)}, v{RFO}, s[88:91], 0 offen offset:{2048*j} {SC}")
    if l0: a.e("s_mov_b64 exec, -1")
def r_pre0(a): r_pre(a, True)
def r_pre1(a):
    X = a.lab("rp"); a.e("s_cmp_lg_u32 s60, 0"); a.e(f"s_cbranch_scc1 {X}"); call(a, r_pre); a.e(f"{X}:")

def r_stage(a, final):
    v = VA(6)
    t = v(); t2 = v(); I = RI; fo = RFO; ro = RRO; pt = v(4, 2)
    xa = RXA; xb = RXB; yy = RYY; x = 206; yf = 222; w = v(16, 4); tmp = v()
    pre = final == "pre"
    S = v(2, 2); pp = v(2, 2); qq = v(2, 2); st = w; mean = v(2, 2); rs = mean + 1; var = v(); sw = v(); sr = v()
    def part(src, n):
        a.e(f"v_pk_add_f32 {vr(pp,2)}, {vr(src,2)}, {vr(src+2,2)}"); a.e(f"v_pk_mul_f32 {vr(qq,2)}, {vr(src,2)}, {vr(src,2)}")
        for i in range(1, 8):
            if i > 1: a.e(f"v_pk_add_f32 {vr(pp,2)}, {vr(pp,2)}, {vr(src+2*i,2)}")
            a.e(f"v_pk_fma_f32 {vr(qq,2)}, {vr(src+2*i,2)}, {vr(src+2*i,2)}, {vr(qq,2)}")
        a.e(f"v_add_f32 v{S}, v{pp}, v{pp+1}"); a.e(f"v_add_f32 v{S+1}, v{qq}, v{qq+1}")
        for k in range(2): a.e(f"v_add_f32_dpp v{S+k}, v{S+k}, v{S+k} row_ror:8 row_mask:0xf bank_mask:0xf")
        for op in ("v_permlane16_swap_b32", "v_permlane32_swap_b32"):
            for k in range(2): a.e(f"v_mov_b32 v{pp+k}, v{S+k}")
            for k in range(2): a.e(f"{op} v{S+k}, v{pp+k}")
            a.e(f"v_pk_add_f32 {vr(S,2)}, {vr(S,2)}, {vr(pp,2)}")
        a.e(f"ds_write_b64 v{sw}, {vr(S,2)} offset:{n*512}")
    def comb(n):
        for k in range(4): a.e(f"ds_read_b128 {vr(st+4*k,4)}, v{sr} offset:{n*512+16*k}")
        a.e("s_waitcnt lgkmcnt(0)")
        for k in range(4): a.e(f"v_pk_add_f32 {vr(st+4*k,2)}, {vr(st+4*k,2)}, {vr(st+4*k+2,2)}")
        a.e(f"v_pk_add_f32 {vr(st,2)}, {vr(st,2)}, {vr(st+4,2)}"); a.e(f"v_pk_add_f32 {vr(st+8,2)}, {vr(st+8,2)}, {vr(st+12,2)}")
        a.e(f"v_pk_add_f32 {vr(st,2)}, {vr(st,2)}, {vr(st+8,2)}")
        a.e(f"v_mul_f32 v{mean}, {f32(1/1024)}, v{st}"); a.e(f"v_mul_f32 v{var}, {f32(1/1024)}, v{st+1}")
        a.e(f"v_fma_f32 v{var}, -v{mean}, v{mean}, v{var}"); a.e(f"v_max_f32 v{var}, 0, v{var}")
    SUBM = f"{vr(mean,2)} op_sel_hi:[1,0] neg_lo:[0,1] neg_hi:[0,1]"; MULR = f"{vr(mean,2)} op_sel:[0,1] op_sel_hi:[1,1]"
    if pre: a.e("s_waitcnt lgkmcnt(0)")
    if final is not True:
        a.e(f"v_lshlrev_b32 v{sr}, 6, v{I}"); a.e(f"v_add_u32 v{sr}, {AUX+2048}, v{sr}")
        a.e(f"s_lshl_b32 s35, s30, 3"); a.e(f"v_add_u32 v{sw}, s35, v{sr}")
    if pre:
        a.e("s_waitcnt vmcnt(0)")
        for i in range(8): unpack(a, x + 2 * i, x + 2 * i + 1, xa + i)
        part(x, 0)
        a.e("s_waitcnt lgkmcnt(0)"); a.e("s_barrier")
        return
    if not final:
        a.e(f"s_cmp_eq_u32 s60, 0"); a.e(f"s_cbranch_scc1 R_l0")
    else:
        a.e(f"s_load_dwordx2 s[6:7], s[0:1], {D_OUT}")
    lsrd(a, 8, oP0, XSZ, prev=True); lsrd(a, 12, oP1, XSZ, prev=True)
    lsrd(a, 20, oX3, XSZ); a.e("s_mov_b32 s78, 0x3f80"); a.e("s_mov_b32 s79, 0x3f800000")
    if "r" not in DP: a.e("s_waitcnt vmcnt(0)")
    for i in range(8):
        if not final: unpack(a, yf + 2 * i, yf + 2 * i + 1, yy + i)
        unpack(a, x + 2 * i, x + 2 * i + 1, xa + i); unpack(a, w + 2 * i, w + 2 * i + 1, xb + i)
        a.e(f"v_pk_add_f32 {vr(x+2*i,2)}, {vr(x+2*i,2)}, {vr(w+2*i,2)}")
    lds_ = [f"buffer_load_dwordx4 {vr(r+4*j,4)}, v{fo}, s[{q}:{q+3}], 0 offen offset:{2048*j} {os.environ.get('RF', SC)}" for j in range(2) for r, q in ((xa, 8), (xb, 12))]
    if "r" in DP: data_poll(a, lds_, (xa, xa + 4, xb, xb + 4), t, int(os.environ.get("RNAP", "4")), int(os.environ.get("RFIRST", "24")), int(os.environ.get("RCAN", "0"))); mstamp(a)
    else:
        poll(a, ST_G4, pt, prev=True)
        mstamp(a)
        for x_ in lds_: a.e(x_)
    for i in range(8):
        if i % 4 == 0 and "r" not in DP: a.e(f"s_waitcnt vmcnt({2 - i // 2})")
        u = w + 4 * (i & 3)
        if DOT:
            if i == 0:
                for r_ in (xa, xb):
                    for k in range(16): a.e(f"v_dot2_f32_bf16 v{x+k}, v{r_+k//2}, s{78+(k&1)}, v{x+k}")
                a.e("s_nop 2")
            continue
        unpack(a, u, u + 1, xa + i); unpack(a, u + 2, u + 3, xb + i)
        a.e(f"v_pk_add_f32 {vr(u,2)}, {vr(u,2)}, {vr(u+2,2)}")
        a.e(f"v_pk_add_f32 {vr(x+2*i,2)}, {vr(x+2*i,2)}, {vr(u,2)}")
        if final: a.e(f"v_cvt_pk_bf16_f32 v{xa+i}, v{x+2*i}, v{x+2*i+1}")
        else: round2(a, x + 2 * i, x + 2 * i + 1, tmp)
    if final:
        a.e("s_waitcnt lgkmcnt(0)")
        a.srd(20, 6, 4 * MB)
        OS = os.environ.get("OS", "sc1")
        if os.environ.get("OWIDE", "1") == "1":
            a.e(f"v_bfe_u32 v{t}, v1, 3, 1"); a.e(f"v_cmp_eq_u32 vcc, 1, v{t}")
            for j in range(2):
                lo, hi = xa + 4 * j, xa + 4 * j + 2
                for e in range(2):
                    a.e(f"v_cndmask_b32 v{x+e}, v{hi+e}, v{lo+e}, vcc")
                for e in range(2):
                    a.e(f"v_mov_b32_dpp v{x+2+e}, v{x+e} row_ror:8 row_mask:0xf bank_mask:0xf")
                for e in range(2):
                    a.e(f"v_cndmask_b32 v{x+4+e}, v{lo+e}, v{x+2+e}, vcc"); a.e(f"v_cndmask_b32 v{hi+e}, v{x+2+e}, v{hi+e}, vcc")
                for e in range(2): a.e(f"v_mov_b32 v{lo+e}, v{x+4+e}")
            a.e(f"v_bfe_u32 v{t2}, v1, 4, 1"); a.e(f"v_lshlrev_b32 v{t}, 5, v{t}"); a.e(f"v_lshl_add_u32 v{t}, v{t2}, 4, v{t}")
            a.e(f"v_and_b32 v{t2}, 0xffffffc0, v{ro}"); a.e(f"v_add_u32 v{t}, v{t}, v{t2}")
            for j in range(2): a.e(f"buffer_store_dwordx4 {vr(xa+4*j,4)}, v{t}, s[20:23], 0 offen offset:{128*j} {OS}")
        else:
            for j in range(4): a.e(f"buffer_store_dwordx2 {vr(xa+2*j,2)}, v{ro}, s[20:23], 0 offen offset:{128*(j>>1) + 32*(j&1)} {OS}")
        return v.hi
    part(x, 0)
    if os.environ.get("RST"): mstamp(a)
    a.e("s_waitcnt lgkmcnt(0)"); a.e("s_barrier")
    if os.environ.get("RST"): mstamp(a)
    comb(0)
    ln_finish(a, mean, var, rs)
    if os.environ.get("RST"): mstamp(a)
    a.e(f"v_mul_f32 v{mean}, v{mean}, v{rs}")
    for i in range(8): a.e(f"v_pk_fma_f32 {vr(w+2*i,2)}, {vr(x+2*i,2)}, {vr(mean,2)}, {vr(mean,2)} op_sel:[0,1,0] op_sel_hi:[1,1,0] neg_lo:[0,0,1] neg_hi:[0,0,1]")
    for i in range(8):
        D = w + 2 * i
        a.e(f"v_pk_fma_f32 {vr(x+2*i,2)}, {vr(D,2)}, {vr(yf+2*i,2)}, {vr(x+2*i,2)}")
        a.e(f"v_cvt_pk_bf16_f32 v{xa+i}, v{x+2*i}, v{x+2*i+1}")
        if i % 4 == 1 and DP: mark(a, xa + i - 1, 0)
        if i % 4 == 3: a.e(f"buffer_store_dwordx4 {vr(xa+i-3,4)}, v{fo}, s[20:23], 0 offen offset:{2048*(i//4)} {SC}")
    if os.environ.get("RST"): mstamp(a)
    a.e("s_branch R_s2")
    a.e("R_l0:")
    for i in range(8): unpack(a, x + 2 * i, x + 2 * i + 1, xa + i)
    part(x, 0)
    a.e("s_waitcnt lgkmcnt(0)")
    st_ = st; st = yf
    lds_spin(a, LW + 28, 65536, st, dst=94)
    if STAMP: a.e("s_and_b32 s95, s94, 0xffff")
    a.e(f"s_cmp_gt_u32 s94, {65536 + QUO // 2}"); a.e("s_cselect_b32 s94, 1, 0")
    a.e("s_lshl_b32 s53, s94, 13"); a.e(f"v_xor_b32 v{RYO}, s53, v{RYO}")
    FL = int(os.environ.get("FL", "1"))
    if FL:
        group_off(a, 36, 28); a.e("s_lshr_b32 s53, s53, 14"); a.e("s_add_u32 s36, s53, s54"); a.e(f"s_xor_b32 s36, s36, {(((F_FRONT >> 21) ^ (F_FRONT >> 13) ^ (FL >> 1)) & 1) << 13}")
    else: a.e("s_lshl_b32 s36, s28, 10")
    a.e(f"s_add_u32 s36, s36, {F_FRONT}"); a.e("s_lshl_b32 s53, s30, 7"); a.e("s_add_u32 s36, s36, s53"); a.e(f"v_mov_b32 v{st+4}, s36")
    a.e("s_waitcnt vmcnt(0)"); a.e("s_barrier")
    poll_core(a, st, [st + 4], 1, cnt=32, nap=FSLEEP)
    load_y(a)
    group_off(a, 55, 28)
    a.e("s_add_u32 s62, s4, s55"); a.e("s_addc_u32 s63, s5, 0")
    a.e("s_sub_u32 s36, s28, 1"); a.e("s_max_i32 s36, s36, 0"); group_off(a, 92, 36); a.e("s_sub_u32 s92, s92, s55")
    a.e("s_add_u32 s36, s28, 1"); a.e("s_min_u32 s36, s36, 15"); group_off(a, 93, 36); a.e("s_sub_u32 s93, s93, s55")
    a.e(f"s_add_u32 s55, s55, {oSM}")
    lsrd(a, 20, oX3, XSZ)
    st = st_; comb(0); ln_finish(a, mean, var, rs); st = yf
    for i in range(8):
        D = w + 2 * i
        a.e(f"v_pk_add_f32 {vr(D,2)}, {vr(x+2*i,2)}, {SUBM}"); a.e(f"v_pk_mul_f32 {vr(D,2)}, {vr(D,2)}, {MULR}")
    a.e("s_barrier")
    mstamp(a)
    a.e("s_waitcnt vmcnt(0)")
    for i in range(8):
        D = w + 2 * i
        unpack(a, st, st + 1, yy + i)
        a.e(f"v_pk_fma_f32 {vr(x+2*i,2)}, {vr(D,2)}, {vr(st,2)}, {vr(x+2*i,2)}"); a.e(f"v_cvt_pk_bf16_f32 v{xa+i}, v{x+2*i}, v{x+2*i+1}")
        if i % 4 == 1 and DP: mark(a, xa + i - 1, 0)
        if i % 4 == 3: a.e(f"buffer_store_dwordx4 {vr(xa+i-3,4)}, v{fo}, s[20:23], 0 offen offset:{2048*(i//4)} {SC}")
    a.e("R_s2:")
    st = st_
    for i in range(8): unpack(a, x + 2 * i, x + 2 * i + 1, xa + i)
    part(x, 1)
    if "1" in DP:
        a.e("s_waitcnt lgkmcnt(0)"); a.e("s_barrier")
        a.e("s_cmp_lg_u32 s30, 6"); a.e("s_cbranch_scc1 R_n6"); a.e("s_cmp_lg_u32 s60, 0"); a.e("s_cbranch_scc1 R_n6")
        a.e("s_lshl_b32 s53, s29, 7"); a.e(f"s_add_u32 s53, s53, {F_CS}"); a.e(f"v_mov_b32 v{pt}, 1"); a.e(f"v_mov_b32 v{pt+1}, 0")
        a.e("s_mov_b64 exec, 1"); a.e(f"buffer_atomic_add v{pt}, v{pt+1}, s[56:59], s53 offen {SC}"); a.e("s_mov_b64 exec, -1")
        a.e("R_n6:")
    else:
        publish(a, ST_R, 8, pt)
        a.e("s_barrier")
    a.e(f"s_cmp_lg_u32 s30, {7 if '1' in DP else 0}"); a.e("s_cbranch_scc1 R_nl")
    comb(1)
    outv = yf + 2; s3 = v(); m4 = v(); v4_ = v(); r4 = v()
    assert v.hi <= PK
    a.e(f"v_mov_b32 v{m4}, v{mean}"); a.e(f"v_mov_b32 v{v4_}, v{var}")
    ln_finish(a, mean, var, rs, s3)
    a.e(f"v_sub_f32 v{m4}, v{m4}, v{mean}"); a.e(f"v_mul_f32 v{m4}, v{m4}, v{rs}")
    a.e(f"v_mul_f32 v{v4_}, v{v4_}, v{rs}"); a.e(f"v_mul_f32 v{v4_}, v{v4_}, v{rs}")
    ln_finish(a, m4, v4_, r4)
    a.e(f"v_mov_b32 v{outv}, v{mean}"); a.e(f"v_mov_b32 v{outv+1}, v{rs}")
    a.e(f"v_fma_f32 v{outv+2}, v{m4}, v{s3}, v{mean}"); a.e(f"v_mul_f32 v{outv+3}, v{rs}, v{r4}")
    lsrd(a, 24, oLNS, 2048)
    a.e("s_lshl_b32 s36, s29, 3"); a.e(f"v_add_u32 v{t}, s36, v{I}"); a.e(f"v_lshlrev_b32 v{t}, 4, v{t}")
    a.e("s_mov_b64 exec, 0xff")
    a.e(f"buffer_store_dwordx4 {vr(outv,4)}, v{t}, s[24:27], 0 offen {SC}")
    a.e("s_mov_b64 exec, -1")
    publish(a, ST_R2, 1, pt)
    a.e("R_nl:")
    return v.hi

TAB = int(os.environ.get("TAB", "1")); TV = 248
def lead(seq, r, L, P=4):
    if L == 0: return list(seq)
    return [x for _, x in sorted(((i - L - 0.5 if i % P == r else i), x) for i, x in enumerate(seq))]
def order3(j, gi):
    mode, L = eval(os.environ.get("O3", "('r',0)"))
    if mode == "r": return [(gi + t) & 15 for t in range(16)]
    if mode == "n": return [gi] + [x for x in lead(range(16), (j + gi) & 3, L) if x != gi]
    if mode == "s": return [gi] + lead([x for x in range(16) if x != gi], (j + gi) & 3, L)
    if mode == "h": return [gi] + [x for x in lead([(t + (gi & 8)) & 15 for t in range(16)], (j + gi) & 3, L) if x != gi]
def order4(j, n):
    mode, L = eval(os.environ.get("O4", "('n',1)"))
    own = [(7 * n + i, 7 * n + 4 + i) for i in range(3)]
    ps = [(n + t) & 7 for t in range(8)] if mode == "r" else list(range(8))
    ab = [(7 * p + i, 7 * p + 4 + i) for i in range(2) for p in ps if p != n]
    c = [7 * p + o for p in ps for o in (2, 6, 3) if p != n or o == 3]
    rest = ab + [(c[2 * i], c[2 * i + 1]) for i in range(11)]
    if mode != "r": rest = lead(rest, (j + n + int(os.environ.get("O4R", "0"))) & 3, L)
    return own + rest
L4 = eval(os.environ.get("O4", "('n',1)"))[1] if TAB else 0
def tab_data(a):
    a.lines.append(".p2align 6"); a.lines.append("K_tab:")
    for gi in range(16):
        for j in range(4):
            o3 = order3(j, gi) + [0] * 16; o4 = order4(j, gi & 7) + [(0, 0)] * 4
            assert sorted(o3[:16]) == list(range(16)) and sorted(sum(o4[:28], ())) == list(range(56))
            a.lines.append(".short " + ",".join(str(o3[t] | o4[t][0] << 4 | o4[t][1] << 10) for t in range(32)))
def tab_load(a):
    a.e("s_getpc_b64 s[34:35]"); a.e("K_tpc:")
    a.e("s_lshl_b32 s36, s29, 2"); a.e("s_and_b32 s37, s28, 3"); a.e("s_add_u32 s36, s36, s37"); a.e("s_lshl_b32 s36, s36, 6")
    a.e("s_add_u32 s36, s36, K_tab-K_tpc"); a.e("s_add_u32 s34, s34, s36"); a.e("s_addc_u32 s35, s35, 0")
    a.e(f"v_and_b32 v{TV}, 31, v1"); a.e(f"v_lshlrev_b32 v{TV}, 1, v{TV}"); a.e(f"global_load_ushort v{TV+3}, v{TV}, s[34:35]")
def tab_make(a, w):
    T, x = TV + 3, TV + 4
    if not w:
        a.e(f"v_bfe_u32 v{x}, v{T}, 2, 2"); a.e(f"v_lshlrev_b32 v{TV}, 14, v{x}"); a.e(f"v_and_b32 v{x}, 3, v{T}"); a.e(f"v_lshl_add_u32 v{TV}, v{x}, 11, v{TV}")
        for lw in range(2):
            a.e(f"v_bfe_u32 v{x}, v{T}, {7+6*lw}, 3"); a.e(f"v_lshlrev_b32 v{TV+1+lw}, 14, v{x}"); a.e(f"v_bfe_u32 v{x}, v{T}, {4+6*lw}, 3"); a.e(f"v_lshl_add_u32 v{TV+1+lw}, v{x}, 10, v{TV+1+lw}")
    else:
        a.e(f"v_and_b32 v{x}, 15, v{T}"); a.e(f"v_mul_u32_u24 v{TV}, {64*7168}, v{x}")
        a.e("s_and_b32 s36, s30, 1"); a.e("s_mul_i32 s36, s36, 6"); a.e("s_add_u32 s36, s36, 4"); a.e(f"v_bfe_u32 v{x}, v{T}, s36, 6")
        assert all((q * 37) >> 8 == q // 7 for q in range(56))
        a.e(f"v_mul_u32_u24 v{TV+2}, 37, v{x}"); a.e(f"v_lshrrev_b32 v{TV+2}, 8, v{TV+2}"); a.e(f"v_mul_u32_u24 v{TV+2}, 7, v{TV+2}"); a.e(f"v_sub_u32 v{TV+2}, v{x}, v{TV+2}")
        a.e(f"v_cmp_eq_u32 vcc, 3, v{TV+2}"); a.e(f"v_cndmask_b32 v{TV+2}, 0, 1, vcc"); a.e(f"v_lshl_add_u32 v{TV+1}, v{x}, 16, v{TV+2}")
        for p_ in eval(os.environ.get("W4SKIP", "[]")): a.e("s_mov_b32 s36, 0x40000000"); a.e(f"v_writelane_b32 v{TV+1}, s36, {p_}")
def rot_init(a, which):
    if which == 3 and TAB: a.e("s_mov_b32 s44, 0")
    elif which == 3 and OWN3: a.e("s_mov_b32 s44, s29")
    elif which != 4: a.e("s_mov_b32 s44, s67")
    else: a.e("s_mov_b32 s44, 0")
def rot_next(a, which):
    a.e("s_add_u32 s44, s44, 1")
    if which != 4: a.e("s_and_b32 s44, s44, 15")
def kb4(a, d, lw):
    a.e("s_lshl_b32 s45, s44, 1"); a.e(f"s_add_u32 s45, s45, {lw}"); a.e("s_sub_u32 s45, s45, 32")
    a.e("s_mul_i32 s46, s45, 86"); a.e("s_lshr_b32 s46, s46, 8")
    a.e("s_mul_i32 s47, s46, 3"); a.e("s_sub_u32 s47, s45, s47"); a.e("s_lshl_b32 s47, s47, 2"); a.e("s_lshr_b32 s47, 0x362, s47"); a.e("s_and_b32 s47, s47, 7")
    a.e("s_cmp_ge_u32 s44, 10"); a.e("s_cselect_b32 s45, 9, 2"); a.e("s_cselect_b32 s51, 1, 0"); a.e("s_sub_u32 s45, s44, s45")
    a.e("s_cmp_lt_u32 s44, 3"); a.e("s_cselect_b32 s45, 0, s45"); a.e("s_cselect_b32 s51, s44, s51")
    a.e(f"s_lshl2_add_u32 s51, {lw}, s51")
    a.e("s_cmp_lt_u32 s44, 17"); a.e("s_cselect_b32 s47, s51, s47"); a.e("s_cselect_b32 s46, s45, s46")
    a.e("s_add_u32 s46, s46, s33"); a.e("s_and_b32 s46, s46, 7"); a.e("s_mul_i32 s46, s46, 7"); a.e(f"s_add_u32 s{d}, s46, s47")
assert all((q * 86) >> 8 == q // 3 for q in range(24))
WVB = {1: 238, 2: 238, 4: 239, 3: 241}
WV = 245
def w_lanes(a):
    t, t2 = WV + 8, WV + 9
    R = WVB[1]
    a.e(f"v_lshrrev_b32 v{t}, 3, v1"); a.e(f"v_lshlrev_b32 v{R}, 11, v{t}")
    a.e(f"v_and_b32 v{t}, 6, v{t}"); a.e(f"v_and_b32 v{t2}, 7, v1"); a.e(f"v_xor_b32 v{t}, v{t}, v{t2}"); a.e(f"v_lshl_add_u32 v{R}, v{t}, 4, v{R}")
    R = WVB[4]
    for p in range(2):
        a.e(f"v_lshrrev_b32 v{t}, 4, v1"); a.e(f"v_lshlrev_b32 v{R+p}, 11, v{t}")
        a.e(f"v_add_u32 v{t}, {4*p}, v{t}"); a.e(f"v_lshlrev_b32 v{t}, 1, v{t}"); a.e(f"v_and_b32 v{t2}, 15, v1"); a.e(f"v_xor_b32 v{t}, v{t}, v{t2}")
        a.e(f"v_lshl_add_u32 v{R+p}, v{t}, 4, v{R+p}")
    R = WVB[3]
    assert all((p * 2341) >> 16 == p // 28 for p in range(448))
    for ii in range(7):
        a.e(f"v_add_u32 v{t2}, {64*ii}, v1"); a.e(f"v_mul_u32_u24 v{t}, 2341, v{t2}"); a.e(f"v_lshrrev_b32 v{t}, 16, v{t}")
        a.e(f"v_mul_u32_u24 v{R+ii}, 28, v{t}"); a.e(f"v_sub_u32 v{t2}, v{t2}, v{R+ii}")
        a.e(f"v_mul_u32_u24 v{R+ii}, 7168, v{t}")
        a.e(f"v_lshrrev_b32 v{t}, 1, v{t}"); a.e(f"v_and_b32 v{t}, 2, v{t}"); a.e(f"v_xor_b32 v{t2}, v{t2}, v{t}")
        a.e(f"v_lshl_add_u32 v{R+ii}, v{t2}, 4, v{R+ii}")
def w_srd(a, which):
    c = CFG[which]
    a.e(f"s_mov_b64 s[12:13], s[{66+2*which}:{67+2*which}]")
    a.e(f"s_mov_b32 s14, {c['KBT'] * 32 * c['LDW']}"); a.e("s_mov_b32 s15, 0x20000")
def w_setup(a, which, pre=True, lo=0):
    c = CFG[which]; STB = c["STB"]; BW = STB // 2
    w_srd(a, which)
    a.e("s_and_b32 s35, s30, 1")
    a.e(f"s_mul_i32 s38, s{(0, 99, 29, 29, 33)[which]}, {c['RB']}");
    if which != 4: a.e(f"s_mul_i32 s41, s35, {32*c['LDW']}"); a.e("s_add_u32 s38, s38, s41")
    if which == 4: a.e(f"s_mul_i32 s41, s31, {1792*c['LDW']}"); a.e("s_add_u32 s38, s38, s41")
    a.e(f"s_mul_i32 s41, s35, {BW}"); a.e(f"s_add_u32 s41, s41, {c['WB']}")
    a.e("s_mov_b32 s42, 0"); rot_init(a, which)
    if not pre: return
    NP = c["NPRE"]
    a.e("s_mov_b32 s49, s44"); a.e("s_and_b32 s43, s28, 3"); a.e(f"s_mul_i32 s43, s43, {NP - lo}"); a.e("s_lshr_b32 s43, s43, 2"); a.e(f"s_mov_b32 s50, {lo}")
    if not WROT: a.e("s_mov_b32 s43, 0")
    if lo: a.e(f"s_add_u32 s43, s43, {lo}")
    L = a.lab("wpre"); a.e(f"{L}:")
    a.e(f"s_mul_i32 s42, s43, {STB}"); a.e("s_add_u32 s44, s49, s43")
    if which != 4: a.e("s_and_b32 s44, s44, 15")
    w_issue(a, which, pace=PACES.get(which, PACE))
    a.e("s_add_u32 s43, s43, 1"); a.e(f"s_cmp_eq_u32 s43, {NP}"); a.e(f"s_cselect_b32 s43, {lo}, s43")
    a.e("s_add_u32 s50, s50, 1"); a.e(f"s_cmp_lt_u32 s50, {NP}"); a.e(f"s_cbranch_scc1 {L}")
    mstamp(a)
    a.e(f"s_mov_b32 s42, {(NP % c['NW']) * STB}"); a.e(f"s_add_u32 s44, s49, {NP}")
    if which != 4: a.e("s_and_b32 s44, s44, 15")
YP = int(os.environ.get("YP", "0"))
def ypause(a):
    if not YP: return
    X = a.lab("yp")
    a.e(f"v_mov_b32 v6, {LW+4}"); a.e("ds_read2_b32 v[14:15], v6 offset0:0 offset1:1"); a.e("s_waitcnt lgkmcnt(0)"); a.e("v_readfirstlane_b32 s53, v15")
    a.e(f"s_cmp_lt_u32 s53, {YP}"); a.e(f"s_cbranch_scc1 {X}")
    lds_spin(a, LW + 20, 8, 6, nap=2)
    a.e(f"{X}:")
PD = int(os.environ.get("PD", "8")); PDA = int(os.environ.get("PDA", "0"))
def park_load(a, pace, q0=0, q1=32):
    w_srd(a, 2)
    a.e("s_and_b32 s35, s30, 3"); a.e("s_lshl_b32 s35, s35, 19"); a.e("s_lshl_b32 s39, s29, 7"); a.e("s_add_u32 s39, s39, s35")
    if q0: a.e(f"s_add_u32 s39, s39, {q0*16384}")
    for q in range(q0, q1):
        a.e(f"buffer_load_dwordx4 {vr(PK+4*q,4)}, v{WVB[2]}, s[12:15], s39 offen"); a.e("s_add_u32 s39, s39, 16384")
        if pace and q % 4 == 3: a.e(f"s_waitcnt vmcnt({pace})"); ypause(a)
def park(a): park_load(a, int(os.environ.get("PKP", "8")), 0, 32 - PD)
def park2(a): park_load(a, int(os.environ.get("PKP", "8")), 32 - PD, 32)
def park_rest(a, late):
    if not PD or (PDA and not late): return
    X = a.lab("pr")
    if late: a.e("s_cmp_lg_u32 s60, 0"); a.e(f"s_cbranch_scc1 {X}")
    if not PDA: a.e("s_and_b32 s36, s29, 6"); a.e("s_cmp_eq_u32 s36, 2"); a.e(f"s_cbranch_scc{0 if late else 1} {X}")
    call(a, park2); a.e(f"{X}:")
def late_park(a):
    X = a.lab("lp"); a.e("s_cmp_lg_u32 s60, 0"); a.e(f"s_cbranch_scc1 {X}"); call(a, park); a.e(f"{X}:")
PT = int(os.environ.get("PT", "1")); PTH = int(os.environ.get("PTH", "0"))
def before_d1(a): after_g1(a, True)
PT2 = int(os.environ.get("PT2", "0"))
def before_d2(a): after_g1(a, False, True)
def after_g1(a, pre=False, pre2=False):
    c = CFG[3]
    if os.environ.get("UPD0"): a.e("s_sleep " + os.environ["UPD0"])
    w_srd(a, 3)
    a.e(f"v_readlane_b32 s36, v{TV+3}, 0"); a.e(f"v_readlane_b32 s37, v{TV+3}, 1"); a.e(f"v_readlane_b32 s34, v{TV+3}, 2")
    a.e("s_and_b32 s35, s30, 3"); a.e(f"s_mul_i32 s38, s35, {16*7168}"); a.e("s_mul_i32 s39, s29, 448"); a.e("s_add_u32 s38, s38, s39")
    for r in (36, 37, 34): a.e(f"s_and_b32 s{r}, s{r}, 15"); a.e(f"s_mul_i32 s{r}, s{r}, {64*7168}"); a.e(f"s_add_u32 s{r}, s{r}, s38")
    if pre:
        a.e(f"s_lshl_b32 s54, s60, {2 if PEEL else 4}"); a.e(f"s_add_u32 s54, s54, {(4 if PEEL else 16) - PTH}"); lds_spin(a, LW + 80, "s54", 8, nap=2)
        for i in range(7): a.e(f"buffer_load_dwordx4 {vr(W3S+4*i,4)}, v{WVB[3]+i}, s[12:15], s37 offen")
        return
    a.e("s_mul_i32 s39, s35, 7168"); a.e(f"s_add_u32 m0, s39, {c['WB'] + c['S0'] * c['STB']}")
    if pre2: a.e("s_lshl_b32 s54, s60, 2"); a.e("s_add_u32 s54, s54, 4"); lds_spin(a, LW + 84, "s54", 8, nap=2)
    for i in range(7 if pre2 or not PT2 else 0):
        if i: a.e("s_add_u32 m0, m0, 1024")
        a.e(f"buffer_load_dwordx4 v{WVB[3]+i}, s[12:15], s36 offen lds")
    if pre2: return
    for i in range(7 if W3N == 2 and not PT else 0): a.e(f"buffer_load_dwordx4 {vr(W3S+4*i,4)}, v{WVB[3]+i}, s[12:15], s37 offen")
    a.e("s_lshr_b32 s36, s67, 2"); a.e("s_sub_u32 s36, s35, s36"); a.e("s_and_b32 s36, s36, 3"); a.e("s_lshl_b32 s36, s36, 15"); a.e(f"v_add_u32 v6, s36, v2")
    if W33 == 1:
        for i in range(7): a.e(f"buffer_load_dwordx4 {vr(16+4*i,4)}, v{WVB[3]+i}, s[12:15], s34 offen")
    a.e(f"s_waitcnt vmcnt({21 if W33 == 1 else 7 * W3N - (7 if PT2 else 0)})")
    if os.environ.get("UPD"): a.e("s_sleep " + os.environ["UPD"])
    for q in range(32): a.e(f"ds_write_b128 v6, {vr(PK+4*q,4)} offset:{CFG[2]['WB'] + 1024*q}")
    a.e("s_waitcnt lgkmcnt(0)")
W3N = int(os.environ.get("W3N", "2"))
W33 = int(os.environ.get("W33", "0"))
def third_late(a):
    a.e(f"s_sleep {W33}")
    for i in range(7): a.e(f"buffer_load_dwordx4 {vr(16+4*i,4)}, v{WVB[3]+i}, s[12:15], s34 offen")
def third_put(a):
    c = CFG[3]
    for i in range(7): a.e(f"ds_write_b128 v7, {vr(16+4*i,4)} offset:{c['STB'] + 1024*i}")
    a.e("s_waitcnt lgkmcnt(0)")
def after_g2(a):
    c = CFG[3]
    if W3N == 1:
        a.e("s_and_b32 s35, s30, 3"); a.e("s_mul_i32 s39, s35, 7168"); a.e(f"s_add_u32 m0, s39, {c['WB'] + (c['S0'] + 1) % c['NW'] * c['STB']}")
        for i in range(7):
            if i: a.e("s_add_u32 m0, m0, 1024")
            a.e(f"buffer_load_dwordx4 v{WVB[3]+i}, s[12:15], s37 offen lds")
        return
    a.e("s_and_b32 s35, s30, 3"); a.e("s_mul_i32 s39, s35, 7168"); a.e(f"s_add_u32 s39, s39, {c['WB'] + (c['S0'] + 1) % c['NW'] * c['STB']}"); a.e("v_add_u32 v7, s39, v2")
    for i in range(7): a.e(f"ds_write_b128 v7, {vr(W3S+4*i,4)} offset:{1024*i}")
    a.e("s_waitcnt vmcnt(0) lgkmcnt(0)")
SUBX = {}
def call(a, f):
    SUBX[f.__name__] = f; a.e(f"s_call_b64 s[76:77], SUB_{f.__name__}")
def w1_slots(a, js, pace=0):
    for j in js:
        a.e(f"s_mov_b32 s42, {j*8192}"); a.e("s_mov_b32 s44, s67"); a.e(f"s_add_u32 s44, s44, {j}"); a.e("s_and_b32 s44, s44, 15")
        call_issue(a, w_issue, 1)
        if pace: a.e(f"s_waitcnt vmcnt({pace})")
def w1_done(a):
    a.e("s_mov_b32 s42, 0"); a.e("s_mov_b32 s44, s67"); a.e("s_add_u32 s44, s44, 13"); a.e("s_and_b32 s44, s44, 15")
class Rec:
    def __init__(s_): s_.l = []
    def e(s_, x): s_.l.append(x)
    srd = Asm.srd
def w_parts(which, direct=False):
    c = CFG[which]; STB = c["STB"]; n = STB // 2048; LDW = c["LDW"]; b = Rec()
    b.e("s_add_u32 s19, s41, s42")
    arm = ["s_mov_b32 m0, s19", "s_mov_b32 s39, s16"]
    if which == 4 and TAB:
        b.e(f"v_readlane_b32 s16, v{TV+1}, s44")
        b.e("s_bitcmp1_b32 s16, 0"); b.e(f"s_cselect_b32 s17, {8*2048}, {4*2048}".replace(f"{4*2048}", "s45")); b.e(f"s_cselect_b32 s18, {-20*2048}, s45")
        b.e("s_andn2_b32 s16, s16, 1"); b.e("s_add_u32 s16, s16, s38")
        b.l.insert(0, f"s_mov_b32 s45, {4*2048}")
        arm += ["s_mov_b32 s32, s17", "s_mov_b32 s3, s18"]
        if os.environ.get("W4SKIP"): arm += ["s_bitcmp1_b32 s16, 30", "s_cselect_b64 exec, 0, -1"]
    elif which == 3 and TAB and not direct:
        b.e(f"v_readlane_b32 s16, v{TV}, s44"); b.e("s_add_u32 s16, s16, s38")
    elif which == 4:
        b.e("s_and_b32 s40, s30, 1"); kb4(b, 16, "s40")
        b.e(f"s_mul_i32 s16, s16, {32*LDW}"); b.e("s_add_u32 s16, s16, s38")
        b.e("s_cmp_eq_u32 s47, 3"); b.e("s_cselect_b32 s17, 8, 4"); b.e("s_cselect_b32 s18, -20, 4")
        b.e("s_lshl_b32 s17, s17, 11"); b.e("s_lshl_b32 s18, s18, 11")
        arm += ["s_mov_b32 s32, s17", "s_mov_b32 s3, s18"]
    else:
        b.e(f"s_mul_i32 s16, s44, {64*LDW}"); b.e("s_add_u32 s16, s16, s38")
    if f"w{which}" in os.environ.get("HOT", ""): b.e("s_mov_b32 s16, s38")
    rot_next(b, which)
    b.e(f"s_add_u32 s42, s42, {STB}"); b.e(f"s_cmp_eq_u32 s42, {c['NW']*STB}"); b.e("s_cselect_b32 s42, 0, s42")
    fire = []
    for i in range(n):
        g = []
        if i:
            g.append("s_add_u32 m0, m0, 1024")
            if which in (1, 2): g.append(f"s_add_u32 s39, s39, {8*LDW}")
            elif which == 4: g.append(f"s_add_u32 s39, s39, s{3 if i == 4 else 32}")
            elif i == 7: g.append(f"s_add_u32 s39, s39, {16*LDW}")
        vo = WVB[which] + (0 if which in (1, 2) else (i & 1) if which == 4 else i % 7)
        fire.append(g + [f"buffer_load_dwordx4 v{vo}, s[12:15], s39 offen lds"])
    if f"w{which}" in os.environ.get("NOLD", ""): fire = [[x for x in g if not x.startswith("buffer_load")] + ["s_nop 0"] for g in fire]
    return b.l, arm, fire
def w_issue(a, which, pace=0, direct=False):
    prep, arm, fire = w_parts(which, direct)
    for x in prep + arm: a.e(x)
    for i, g in enumerate(fire):
        for x in g: a.e(x)
        if pace and (i % 4 == 3 or i == len(fire) - 1): a.e(f"s_waitcnt vmcnt({pace})")

def w_bases(a, which, dst, swn, ntl, t, t2):
    c = CFG[which]; RB = c["RB"]
    a.e(f"v_lshrrev_b32 v{t}, 2, v1")
    a.e(f"v_mul_u32_u24 v{dst}, {RB}, v{t}"); a.e(f"v_and_b32 v{t2}, 3, v1"); a.e(f"v_lshl_add_u32 v{dst}, v{t2}, 3, v{dst}")
    a.e(f"v_add_u32 v{dst}, {c['WB']}, v{dst}")
    if which == 3:
        a.e(f"s_mul_i32 s36, s{swn}, {7*32}"); a.e(f"v_add_u32 v{dst}, s36, v{dst}")
        a.e(f"v_bfe_u32 v{t}, v1, 4, 1"); a.e(f"v_lshlrev_b32 v{t}, 5, v{t}")
        a.e(f"s_cmp_eq_u32 s{swn}, 0"); a.e("s_cselect_b32 s36, 1, -1"); a.e(f"v_mul_lo_u32 v{t}, v{t}, s36")
        a.e(f"v_sub_u32 v{dst+1}, v{dst}, v{t}"); a.e(f"v_add_u32 v{dst}, v{dst}, v{t}")
        return 2, lambda nt, kk, h: (nt & 1, (32 * kk + 16 * h) * RB + 32 * nt)
    if which == 4: a.e(f"v_and_b32 v{t}, 7, v{t}")
    else: a.e(f"v_bfe_u32 v{t}, v{t}, 1, 2")
    for nt in range(ntl - 1, -1, -1):
        a.e(f"s_mul_i32 s36, s{swn}, {ntl}"); a.e(f"s_add_u32 s36, s36, {nt}")
        a.e(f"v_xor_b32 v{t2}, s36, v{t}"); a.e(f"v_lshl_add_u32 v{dst+nt}, v{t2}, 5, v{dst}")
    return ntl, lambda nt, kk, h: (nt, (32 * kk + 16 * h) * RB)

def a_parts(which):
    c = CFG[which]; b = Rec()
    if which <= 2 and NX:
        b.e("s_and_b32 s42, s48, 7"); b.e("s_lshl_b32 s42, s42, 14"); b.e("s_lshr_b64 s[48:49], s[48:49], 4")
    b.e("s_add_u32 s19, s41, s42")
    arm = ["s_mov_b32 m0, s19", "s_mov_b32 s39, s16"]; fire = []
    if which == 2:
        b.e(f"s_mul_i32 s16, s44, {8*PITCH}"); b.e("s_add_u32 s16, s16, s38")
        b.e("s_lshr_b32 s45, s44, 2"); b.e("s_xor_b32 s45, s45, s94"); b.e("s_and_b32 s45, s45, 1"); b.e("s_lshl_b32 s45, s45, 13"); b.e("s_add_u32 s16, s16, s45")
        b.e("s_lshr_b32 s45, s44, 3"); b.e("s_lshl_b32 s45, s45, 4"); b.e("s_add_u32 s45, s45, 16")
        b.e("s_sub_u32 s46, 0, s45"); b.e("s_bitcmp1_b32 s44, 2"); b.e("s_cselect_b32 s45, s45, s46"); b.e("s_add_u32 s16, s16, s45")
        step = PITCH
    elif which == 4:
        for lw in range(2):
            if TAB: b.e(f"v_readlane_b32 s{16+lw}, v{TV+1+lw}, s44")
            else: kb4(b, 16 + lw, lw); spread(b, 16 + lw, 16 + lw)
        for lw in range(2): b.e(f"s_add_u32 s{16+lw}, s{16+lw}, s38")
        arm.append("s_mov_b32 s40, s17")
        for i in range(4):
            for lw in range(2):
                fire.append((["s_add_u32 m0, m0, 1024"] if i or lw else []) + ([f"s_add_u32 s{39+lw}, s{39+lw}, {c['KBT']*2048}"] if i else []) +
                            [f"buffer_load_dwordx4 v2, s[12:15], s{39+lw} offen {SC} lds"])
    elif which == 3 and TAB:
        b.e(f"v_readlane_b32 s16, v{TV}, s44"); b.e("s_add_u32 s16, s16, s38"); step = c['KBT'] * 2048
    else:
        b.e("s_lshr_b32 s45, s44, 2"); b.e("s_lshl_b32 s45, s45, 14"); b.e("s_and_b32 s16, s44, 3"); b.e("s_lshl_b32 s16, s16, 11")
        b.e("s_add_u32 s16, s16, s45"); b.e("s_add_u32 s16, s16, s38"); step = c['KBT'] * 2048
    if f"a{which}" in os.environ.get("HOT", ""):
        b.e("s_mov_b32 s16, s38")
        if which == 4: b.e("s_add_u32 s17, s38, 1024")
    for i in range(4 if which != 4 else 0):
        fire.append((["s_add_u32 m0, m0, 2048", f"s_add_u32 s39, s39, {step}"] if i else []) + [f"buffer_load_dwordx4 v2, s[12:15], s39 offen {SC} lds"])
        fire.append([f"buffer_load_dwordx4 v2, s[12:15], s39 offen offset:1024 {SC} lds"])
    rot_next(b, which)
    if not (which <= 2 and NX):
        b.e(f"s_add_u32 s42, s42, 16384"); b.e(f"s_cmp_eq_u32 s42, {c['NA']*16384}"); b.e("s_cselect_b32 s42, 0, s42")
    if f"a{which}" in os.environ.get("NOLD", ""): fire = [[x for x in g if not x.startswith("buffer_load")] + ["s_nop 0"] for g in fire]
    return b.l, arm, fire
def a_issue(a, which):
    prep, arm, fire = a_parts(which)
    for x in prep + arm + sum(fire, []): a.e(x)
SUBS = {}
def call_issue(a, issue, which):
    nm = f"SUB_{issue.__name__}_{which}"; SUBS[nm] = (issue, which)
    a.e(f"s_call_b64 s[76:77], {nm}")
LATE = []; PEEL = int(os.environ.get("PEEL", "1"))
def emit_subs(a):
    for r_ in LATE:
        for x in r_.l: a.e(x)
    for nm, f in SUBX.items(): a.e(f"SUB_{nm}:"); f(a); a.e("s_setpc_b64 s[76:77]")
    for nm, (issue, which) in SUBS.items():
        a.e(f"{nm}:"); issue(a, which); a.e("s_setpc_b64 s[76:77]")
def ld_steps(a, which, N, per, issue, npre, rate=2, plan={}, lo=0, hi=None, last=None, hold=(), sched=None, armed=False):
    NS = CFG[which]["NS"]
    prep, arm, fire = (w_parts if issue is w_issue else a_parts)(which); h = max(1, per * HSPLIT // 8)
    plan = {b: (x if isinstance(x, list) else [x]) for b, x in plan.items()}
    q = [s_ for s_ in range(npre) for _ in range(per)]
    def after(tag):
        if issue is w_issue and which == 4 and isinstance(tag, int) and tag < npre: tag = npre - 1
        return len(q) - 1 - max(i for i, x in enumerate(q) if x == tag)
    issued = npre; steps = []
    for b in range(NS):
        acts = plan.get(b, []); was = {}
        def do(pos):
            for n_, act in enumerate(acts):
                if act[0] != pos: continue
                if act[1] is not None: was[n_] = after(act[1])
                q.extend([act[4]] * act[3])
        do(True)
        k = 0
        if (b > 0 or (sched is not None and issue is a_issue)) and b not in hold:
            k = max(0, min(rate, min(NS, b - 1 + N) - issued)) if sched is None else sched[b]
        assert k or not any(x[0] == "mid" for x in acts)
        for j in range(k):
            q.extend([issued] * h)
            if j == 0: do("mid")
            q.extend([issued] * (per - h)); issued += 1
        do(False)
        w = after(b); assert w <= 63
        if which == 3 and b == 0: w = 63
        steps.append((k, w, b if acts else None, tuple(sorted(was.items())), issued < NS))
    def em(l):
        for x in l:
            a.e(x)
            if x == "s_barrier" and os.environ.get("JIT"): mstamp(a)
    F1, F2 = sum(fire[:h], []), sum(fire[h:], [])
    lprep = prep
    if len(prep) > 8:
        nm = f"PREP_{issue.__name__}_{which}"; SUBS[nm] = ((lambda a_, w_, l=prep: [a_.e(x) for x in l]), which)
        prep = [f"s_call_b64 s[76:77], {nm}"]
    if lo == 0 and npre < NS and not armed: em(prep + arm)
    i = lo; HI = NS if hi is None else hi
    while i < HI:
        j = i
        while j < HI and steps[j] == steps[i]: j += 1
        k, w, ab, was, more = steps[i]; n = j - i; was = dict(was)
        def run(pos):
            for n_, act in enumerate(plan.get(ab, [])):
                if act[0] != pos: continue
                if n_ in was: a.e(f"s_waitcnt vmcnt({was[n_]})")
                act[2]()
        tail = [f"s_waitcnt vmcnt({w})", "s_barrier"]
        if n > 2 and k == 1:
            em(F1); a.e("s_mov_b32 s43, 1"); L = a.lab("ld"); a.e(f"{L}:")
            em(lprep + F2 + arm + tail + F1)
            a.e("s_add_u32 s43, s43, 1"); a.e(f"s_cmp_lt_u32 s43, {n}"); a.e(f"s_cbranch_scc1 {L}")
            em(prep + F2 + arm + tail)
        else:
            for r in range(n):
                run(True)
                for jj in range(k):
                    nxt = more or jj < k - 1
                    em(F1)
                    if jj == 0: run("mid")
                    em((prep if nxt else []) + F2 + (arm if nxt else []))
                run(False)
                em(tail)
        i = j
    if hi is not None: return
    if which == 4:
        if issue is a_issue: a.e("s_cmp_eq_u32 s60, 1"); a.e("s_cbranch_scc1 K_fin")
        elif hold is HOLD: a.e("s_branch K_fin"); return
        if not RPL: r_pre(a)
    TF = os.environ.get("TF", "1") == "1" and issue is a_issue and which == 3
    if last and not TF: last()
    late = os.environ.get("TLATE", "0") == "1"
    if late: a.e("s_barrier")
    if issue is a_issue and W4POS == f"{which}C":
        X = a.lab("tw4"); a.e("s_cmp_lg_u32 s60, 0"); a.e(f"s_cbranch_scc1 {X}"); touch(a, B_W4, 7 * MB, 200); a.e(f"{X}:")
    if not late: a.e("s_barrier")
    if TF: last()

RK = int(os.environ.get("RK", "7")); assert RK == 0 or C0PUB <= RK <= STQ
PA2 = int(os.environ.get("PA2", "1")); PBB = int(os.environ.get("PBB", "2")); PC0 = int(os.environ.get("PC0", "4"))
HOLD = eval(os.environ.get("HOLD", "[2,3,4]"))
KAD = int(os.environ.get("KAD", "1"))
WA = eval(os.environ.get("WA", "(1,2)"))
def keep(a, js, get):
    a.e("s_and_b32 s36, s30, 1"); a.e("s_lshl_b32 s36, s36, 12"); a.e(f"s_add_u32 s36, s36, {CFG[1]['WB'] + min(js)*8192}"); a.e("v_add_u32 v6, s36, v2")
    for n_, j in enumerate(js):
        for i in range(4):
            R = vr(16 + 16 * n_ + 4 * i, 4); o = (j - min(js)) * 8192 + i * 1024
            a.e(f"ds_read_b128 {R}, v6 offset:{o}" if get else f"ds_write_b128 v6, {R} offset:{o}")
    a.e("s_waitcnt lgkmcnt(0)")
def a_loader(a, which):
    c = CFG[which]
    if which <= 2:
        plan = side_jobs(a, 1) if which == 1 else {}
        if which == 1 and "1" in DP: mstamp(a); a.e(f"s_sleep {os.environ.get('SJD', '30')}")
        else: mstamp(a); a.e("s_barrier")
        mstamp(a)
        for b in sorted(plan):
            for act in (plan[b] if isinstance(plan[b], list) else [plan[b]]):
                if act[1] is not None: a.e("s_waitcnt vmcnt(0)")
                act[2]()
        if which == 1:
            a.e("s_cmp_lg_u32 s30, 4"); a.e("s_cbranch_scc1 AL_nw"); a.e("s_cmp_eq_u32 s60, 0"); a.e("s_cbranch_scc1 AL_nw")
            a.e(f"s_add_u32 s54, s55, {(fso(ST_G3) - LSTR) & 0xffffffff:#x}"); a.e("s_add_u32 s53, s54, s92"); a.e("v_mov_b32 v9, s53")
            a.e("s_add_u32 s53, s53, 128"); a.e("v_writelane_b32 v9, s53, 1")
            a.e("s_add_u32 s53, s54, s93"); a.e("v_writelane_b32 v9, s53, 2"); a.e("s_add_u32 s53, s53, 128"); a.e("v_writelane_b32 v9, s53, 3")
            poll_core(a, 8, [9], 15, cnt=8)
            a.e("AL_nw:")
            if WA: keep(a, WA, True)
            if PT: call(a, before_d1)
        if which == 2 and PT2: call(a, before_d2)
        if which == 2: a.e(f"s_waitcnt vmcnt({7 if PT2 == 2 else 0})")
        a.e("s_barrier")
        if which == 1 and "p" not in os.environ.get("FO", "1pd"): late_park(a)
        call(a, after_g1 if which == 1 else after_g2)
        return
    a.e("s_and_b32 s35, s30, 1")
    if which == 2:
        hs_srd(a, 12)
        a.e("s_lshl_b32 s38, s28, 11"); a.e("s_add_u32 s38, s38, 16384"); a.e(f"s_mul_i32 s36, s35, {4*PITCH}"); a.e("s_add_u32 s38, s38, s36")
    else:
        lsrd(a, 12, c["A"], XSZ if which != 4 else H2SZ)
        a.e(f"s_mul_i32 s38, s35, {4*c['KBT']*2048}")
        if which == 4: a.e(f"s_mul_i32 s36, s31, {7*16384}"); a.e("s_add_u32 s38, s38, s36")
    a.e("s_lshl_b32 s41, s35, 13"); a.e("s_mov_b32 s42, 0"); rot_init(a, which)
    assert c["NA"] == 3 or which == 3
    prep, arm, fire = a_parts(which)
    if which == 4:
        flag_addr(a, 9, ST_G3A); flag_addr(a, 10, ST_G3B); flag_addr(a, 12, ST_G3)
        a.e("v_mov_b32 v13, 1"); a.e("s_and_b32 s51, s30, 1"); a.e("s_lshl_b32 s51, s51, 30")
        def signal(r): a.e("s_mov_b64 exec, 1"); a.e(f"buffer_atomic_add v13, v{r}, s[56:59], s51 offen {SC}"); a.e("s_mov_b64 exec, -1")
        a.e("s_lshl_b32 s54, s60, 2"); a.e("s_add_u32 s54, s54, 4"); lds_spin(a, LW + 64, "s54", 14, nap=2)
        signal(9)
        if not PA2: poll_core(a, 8, [9], 1, cnt=8)
        mstamp(a)
        plan = {6 - L4: ("mid", None, lambda: flag_try(a, 11, 10), 1, "f"), 8 - L4: ("mid", "f", lambda: flag_check(a, 11, 10, 8), 0, None),
                13 - L4: ("mid", None, lambda: flag_try(a, 11, 12), 1, "g"), 15 - L4: ("mid", "g", lambda: flag_check(a, 11, 12, 8), 0, None)}
        plan = {k_: [x] for k_, x in plan.items()}
        if PA2:
            plan[1] = [(False, None, lambda: flag_try(a, 8, 9), 1, "a")]
            plan[2] = [(True, "a", lambda: flag_check(a, 8, 9, 8), 0, None)]
        if DP:
            a.e("v_xor_b32 v15, 128, v12")
            plan[20] = [("mid", None, lambda: flag_try(a, 11, 15), 1, "h")]; plan[22] = [("mid", "h", lambda: flag_check(a, 11, 15, 8), 0, None)]
        if int(os.environ.get("OT", "0")) >= 3:
            def ot():
                a.e(f"s_load_dwordx2 s[20:21], s[0:1], {D_OUT}"); a.e(f"s_mul_i32 s22, s60, {4*MB}"); a.e("s_mov_b32 s23, 0x20000"); a.e("s_lshl_b32 s36, s28, 18"); a.e("s_lshl_b32 s37, s29, 11")
                a.e("s_add_u32 s36, s36, s37"); a.e("s_waitcnt lgkmcnt(0)")
                a.e("s_mov_b64 exec, 1"); a.e(f"buffer_load_dword v16, v2, s[20:23], s36 offen {SC}"); a.e("s_mov_b64 exec, -1")
            plan.setdefault(int(os.environ["OT"]) % 100, []).append((False, None, ot, 1, "o"))
        plan.setdefault(PBB + 1, []).insert(0, (True, None, lambda: signal(10), 1, "s"))
        plan.setdefault(PC0 + 2, []).insert(0, (True, None, lambda: signal(12), 1, "s"))
        a.e("s_mov_b32 s44, 3")
        ld_steps(a, which, 3, 8, a_issue, 3, plan=plan, last=(lambda: keep(a, WA, False)) if WA and not KAD else None)
        if WA and KAD: keep(a, WA, False)
        return
    if which == 3:
        mask, cnt = flag_addr(a, 9, ST_G2)
        def wait2():
            if W33: call(a, third_put)
            elif B0E > 1: a.e(f"s_sleep {B0E}")
            poll_core(a, 8, [9], mask, cnt=cnt); mstamp(a); mstamp(a)
            if W3H: a.e("s_add_u32 s54, s60, 1"); lds_set(a, LW + 60, "s54", 10)
        N3 = 2 if "3" in DP else 1
        a.e(f"s_mov_b32 s44, {N3}"); a.e(f"s_mov_b32 s42, {16384*N3}")
        plan = side_jobs(a, 3)
        if os.environ.get("P30", "0") == "1":
            def wait0(): own_wait(a, ST_G2, False, 14); wait2()
            plan[0] = (True, None, wait0, 0, None)
            ld_steps(a, which, 3, 8, a_issue, 1, plan=plan, sched=[int(os.environ.get("P3N", "1")), 2 - int(os.environ.get("P3N", "1"))] + [1] * 13 + [0]); return
        plan[1] = (True, None, wait2, 0, None)
        PZ3 = int(os.environ.get("PZ3", "0"))
        if PZ3:
            a.srd(84, 4, 32 * MB, off=216 * MB)
            a.e("s_cmp_eq_u32 s60, 0"); a.e("s_cselect_b32 s86, s86, 0")
            for i in range(4): a.e(f"v_mov_b32 v{216+i}, -1")
            a.e("s_lshl_b32 s88, s2, 1"); a.e("s_and_b32 s50, s30, 1"); a.e("s_add_u32 s88, s88, s50"); a.e(f"s_mul_i32 s88, s88, {PZ3*12*1024}")
            def pz():
                for i in range(PZ3): a.e(f"buffer_store_dwordx4 v[216:219], v2, s[84:87], s88 offen offset:{i*1024} {SC}")
                a.e(f"s_add_u32 s88, s88, {PZ3*1024}")
            for b in range(2, 14):
                p_ = plan.get(b, []); p_ = p_ if isinstance(p_, list) else [p_]
                plan[b] = p_ + [(False, None, pz, PZ3, "z")]
        if V3:
            def w1_():
                X = a.lab("w1"); a.e("s_cmp_lg_u32 s60, 0"); a.e(f"s_cbranch_scc1 {X}"); a.e(f"s_sleep {B0E}"); poll_core(a, 8, [9], mask, cnt=cnt); a.e(f"{X}:")
                if int(os.environ.get("V3D", "0")): a.e("s_sleep " + os.environ["V3D"])
                mstamp(a); mstamp(a)
            def test(a):
                L = a.lab("sp"); D = a.lab("sq")
                a.e("s_add_u32 s47, s47, s41"); a.e("v_add_u32 v10, s47, v2"); a.e("s_mov_b32 s53, 0"); a.e("s_mov_b32 s34, m0")
                a.e(f"{L}:")
                for i in range(8): a.e(f"ds_read_b32 v{16+i}, v10 offset:{1024*i}")
                a.e("s_waitcnt lgkmcnt(0)")
                a.e("v_or3_b32 v16, v16, v17, v18"); a.e("v_or3_b32 v19, v19, v20, v21"); a.e("v_or3_b32 v16, v16, v22, v23"); a.e("v_bitop3_b32 v16, v16, v19, 1 bitop3:0xa8")
                a.e("v_cmp_ne_u32 vcc, 0, v16"); a.e(f"s_cbranch_vccz {D}")
                a.e(f"v_readlane_b32 s36, v{TV}, s46"); a.e("s_mov_b32 m0, s47"); a.e("s_add_u32 s36, s36, s38")
                for i in range(4):
                    if i: a.e("s_add_u32 m0, m0, 2048"); a.e("s_add_u32 s36, s36, 65536")
                    for k in range(2): a.e(f"buffer_load_dwordx4 v2, s[12:15], s36 offen offset:{1024*k} {SC} lds")
                a.e("s_waitcnt vmcnt(0)")
                a.e("s_add_u32 s53, s53, 1"); a.e("s_cmp_lt_u32 s53, s61"); a.e(f"s_cbranch_scc1 {L}"); a.e("s_mov_b32 s61, 0")
                a.e(f"{D}:"); a.e("s_mov_b32 m0, s34")
            def tst(b):
                def f():
                    X = a.lab("nt"); a.e("s_cmp_eq_u32 s60, 0"); a.e(f"s_cbranch_scc1 {X}")
                    a.e(f"s_mov_b32 s46, {b}"); a.e(f"s_mov_b32 s47, {(b % 3) * 16384}"); a.e("s_setprio 2"); call(a, test); a.e("s_setprio 0"); a.e(f"{X}:")
                return f
            plan = {k_: (x if isinstance(x, list) else [x]) for k_, x in plan.items()}
            plan[1] = [(True, None, w1_, 0, None)]
            plan.setdefault(V3 - 1, []).append((False, None, lambda: flag_try(a, 8, 9), 1, "g"))
            plan.setdefault(V3, []).insert(0, (True, "g", lambda: flag_check(a, 8, 9, cnt), 0, None))
            for b in range(1, V3 + 1): plan.setdefault(b, []).append((False, b, tst(b), 0, None))
        if W4POS.startswith("S"):
            def tw(i0, i1):
                def f():
                    a.e("s_mov_b64 s[48:49], s[74:75]"); a.e(f"s_mov_b32 s50, {7*MB}"); a.e("s_mov_b32 s51, 0x20000")
                    a.e("s_lshl_b32 s45, s2, 1"); a.e("s_and_b32 s46, s30, 1"); a.e("s_add_u32 s45, s45, s46"); a.e(f"s_mul_i32 s45, s45, {14*1024}")
                    a.e("s_cmp_eq_u32 s60, 0"); a.e("s_cselect_b64 exec, -1, 0")
                    for i in range(i0, i1): a.e(f"s_add_u32 s46, s45, {i*1024}"); a.e(f"buffer_load_dwordx4 v[176:179], v2, s[48:51], s46 offen")
                    a.e("s_mov_b64 exec, -1")
                return f
            for b_, (pos_, i0, i1) in eval(W4POS[1:]).items():
                p_ = plan.get(b_, []); p_ = p_ if isinstance(p_, list) else [p_]
                plan[b_] = p_ + [(pos_, None, tw(i0, i1), i1 - i0, "t")]
        if os.environ.get("A3L", "0") == "1":
            def w1_():
                X = a.lab("w1"); a.e("s_cmp_lg_u32 s60, 0"); a.e(f"s_cbranch_scc1 {X}"); poll_core(a, 8, [9], mask, cnt=cnt); lds_set(a, LW + 60, 1, 10); a.e(f"{X}:")
            def w2_(): poll_core(a, 8, [9], mask, cnt=cnt, nap=2); mstamp(a); mstamp(a)
            plan[1] = (True, None, w1_, 0, None)
            p2 = plan[2] if isinstance(plan[2], list) else [plan[2]]
            plan[2] = [(True, None, w2_, 0, None)] + p2
            ld_steps(a, which, 3, 8, a_issue, N3, plan=plan, hold=(1,)); return
        ld_steps(a, which, c["NA"], 8, a_issue, N3, plan=plan, sched=eval(os.environ.get("A3S", "None")), last=lambda: r_pre1(a)); return
    assert 0

def side_jobs(a, which):
    c = CFG[which]; plan = {}
    sv = 184 if which == 3 and WA else 16; S, Q, mean, rs, tt, ad, fa, fr = 216, 217, 218, 219, 220, 221, 222, 223
    cv = 180 if which == 3 else 24; N = c["LDW"] // 2; co_ = 224; HB = c["TN16"] * 32
    lg = 3 if which == 1 else 5
    def cld(k0=0, k1=4):
        if k0 == 0:
            a.srd(24, 4, 32 * N * 4, off=CSP[which])
            a.e("s_cmp_eq_u32 s60, 0"); a.e("s_cselect_b32 s26, s26, 0")
            if NOCS3 and which == 3: a.e("s_mov_b32 s26, 0")
            a.e("s_and_b32 s36, s30, 1"); a.e(f"s_mul_i32 s36, s36, {HB}"); a.e(f"s_mul_i32 s37, s29, {2*HB}"); a.e("s_add_u32 s37, s36, s37")
            a.e(f"v_lshrrev_b32 v{co_}, {lg}, v1"); a.e(f"v_mul_u32_u24 v{co_}, {N*4}, v{co_}")
            a.e(f"v_and_b32 v{cv-1}, {16*((1 << lg) - 1)}, v2"); a.e(f"v_add_u32 v{co_}, v{co_}, v{cv-1}")
        a.e("s_cmp_eq_u32 s60, 0"); a.e("s_cselect_b64 exec, -1, 0")
        for k in range(k0, k1):
            a.e(f"buffer_load_dwordx4 {vr(cv+4*(k if k < 9 else k - 8),4)}, v{co_}, s[24:27], s37 offen {SC}"); a.e(f"s_add_u32 s37, s37, {N*4*(64 >> lg)}")
        a.e("s_mov_b64 exec, -1")
    def piece(lines, l0=False):
        def f():
            X = a.lab("pc")
            if l0: a.e("s_cmp_lg_u32 s60, 0"); a.e(f"s_cbranch_scc1 {X}")
            for x in lines: a.e(x)
            if l0: a.e(f"{X}:")
        return f
    def cadd(k0, k1): return [f"v_add_f32 v{cv+h}, v{cv+h}, v{cv+4*k+h}" for k in range(k0, k1) for h in range(4)]
    def sw(op): return [f"v_mov_b32 v{cv+4+e}, v{cv+e}" for e in range(4)] + [f"{op} v{cv+e}, v{cv+4+e}" for e in range(4)] + cadd(1, 2)
    if which in (1, 3):
        cout = ["s_and_b32 s36, s30, 1", f"s_mul_i32 s36, s36, {HB}", f"s_add_u32 s36, s36, {CSO[which]}", f"v_add_u32 v{cv-1}, s36, v2",
                f"s_bfm_b64 exec, {HB//16}, 0", f"ds_write_b128 v{cv-1}, {vr(cv,4)}", "s_mov_b64 exec, -1", "s_waitcnt lgkmcnt(0)"]
    if which == 1:
        flag_addr(a, fa, ST_R2)
        def ld():
            flag_check(a, fr, fa, 16)
            lsrd(a, 20, oLNS, 2048); a.e("s_and_b32 s35, s30, 1"); a.e("s_lshl_b32 s35, s35, 10")
            a.e(f"buffer_load_dwordx4 {vr(sv,4)}, v2, s[20:23], s35 offen {SC}")
        fin = piece(["s_and_b32 s36, s30, 1", "s_lshl_b32 s36, s36, 10", f"s_add_u32 s36, s36, {LNSL}", f"v_add_u32 v{ad}, s36, v2", f"ds_write_b128 v{ad}, {vr(sv,4)}", "s_waitcnt lgkmcnt(0)"])
        a.e("s_lshl_b32 s53, s29, 7"); a.e(f"s_add_u32 s53, s53, {F_CS}"); a.e(f"v_mov_b32 v{fa+4}, s53")
        def cld1(): flag_check(a, fr + 4, fa + 4, 16); cld()
        work = cadd(1, 4) + [f"v_add_f32_dpp v{cv+e}, v{cv+e}, v{cv+e} row_ror:8 row_mask:0xf bank_mask:0xf" for e in range(4)] + \
               sw("v_permlane16_swap_b32") + sw("v_permlane32_swap_b32")
        plan = {2: (False, None, lambda: flag_try(a, fr + 4, fa + 4), 1, "e"), 5: [(False, "e", cld1, 4, "c"), (False, None, lambda: flag_try(a, fr, fa), 1, "f")],
                8: (False, "f", ld, 1, "d"), 15: [(False, None, piece(cout, 1), 0, None), (False, "d", fin, 0, None)]}
        plan[9] = (False, None, piece(work, 1), 0, None)
    if which == 3:
        flag_addr(a, fa, ST_G2S)
        a.e(f"v_lshlrev_b32 v{ad}, 3, v1")
        def ld(k0, n_=8):
            def f():
                if k0 == 0:
                    flag_check(a, fr, fa, 16)
                    lsrd(a, 20, oST2, 24576)
                    a.e("s_and_b32 s35, s30, 1"); a.e("s_lshl_b32 s35, s35, 9")
                for k in range(k0, k0 + n_):
                    if k % 4 == 0 or k == k0: a.e(f"s_add_u32 s36, s35, {(k >> 3) * 16384 + (k & 4) * 1024}")
                    a.e(f"buffer_load_dwordx2 {vr(sv+2*k,2)}, v{ad}, s[20:23], s36 offen offset:{(k&3)*1024} {SC}")
            return f
        b = Rec()
        for st_ in (8, 4, 2, 1):
            for k in range(2 * st_): b.e(f"v_add_f32 v{sv+k}, v{sv+k}, v{sv+2*st_+k}")
        o_ = sv + 4
        b.e(f"v_mul_f32 v{o_}, {f32(1/1024)}, v{sv}"); b.e(f"v_mul_f32 v{Q}, {f32(1/1024)}, v{sv+1}")
        b.e(f"v_fma_f32 v{Q}, -v{o_}, v{o_}, v{Q}"); b.e(f"v_max_f32 v{Q}, 0, v{Q}")
        ln_finish(b, o_, Q, rs, o_ + 1)
        b.e(f"v_mul_f32 v{o_+2}, {f32(GC1)}, v{rs}"); b.e(f"v_mul_f32 v{o_+3}, v{rs}, v{rs}")
        b.e(f"v_mul_f32 v{o_+3}, v{o_+3}, v{o_+2}"); b.e(f"v_mul_f32 v{o_+3}, {f32(0.044715)}, v{o_+3}")
        b.e("s_lshl_b32 s35, s35, 1"); b.e(f"s_add_u32 s35, s35, {LNSL}"); b.e(f"v_add_u32 v{tt}, s35, v2")
        b.e(f"ds_write_b128 v{tt}, {vr(o_,4)}"); b.e("s_waitcnt lgkmcnt(0)")
        def both(f, g):
            def h(): f(); g()
            return h
        if WA:
            plan = {2: (False, None, lambda: cld(0, 5), 5, "c"), 3: (False, None, lambda: cld(5, 9), 4, "c"),
                    5: [(False, "c", piece(cadd(1, 9), 1), 0, None), (False, None, lambda: cld(9, 16), 7, "e")], 6: (False, None, lambda: flag_try(a, fr, fa), 1, "f"),
                    7: (False, "e", piece(cadd(1, 8), 1), 0, None), 8: [(False, None, piece(sw("v_permlane32_swap_b32") + cout, 1), 0, None), (False, "f", ld(0, 4), 4, "d")],
                    9: (False, None, ld(4, 6), 6, "d"), 10: (False, None, ld(10, 6), 6, "d"),
                    12: (False, "d", piece(b.l[:16]), 0, None), 13: (False, None, piece(b.l[16:32]), 0, None), 14: (False, None, piece(b.l[32:]), 0, None)}
        elif os.environ.get("SJ3", "1") == "1":
            plan = {2: (False, None, lambda: cld(0, 3), 3, "c"), 3: (False, None, lambda: cld(3, 6), 3, "c"), 4: [(False, None, lambda: cld(6, 9), 3, "c"), (False, None, lambda: flag_try(a, fr, fa), 1, "f")],
                    6: [(False, "f", ld(0, 4), 4, "d"), (False, None, piece(cadd(1, 5), 1), 0, None)],
                    7: [(False, None, ld(4, 4), 4, "d"), (False, None, both(piece(cadd(5, 9), 1), lambda: cld(9, 12)), 3, "e")],
                    8: [(False, None, ld(8, 4), 4, "d"), (False, None, lambda: cld(12, 14), 2, "e")], 9: [(False, None, ld(12, 4), 4, "d"), (False, None, lambda: cld(14, 16), 2, "e")],
                    11: [(False, "e", piece(b.l[:16]), 0, None)], 12: [(False, None, piece(b.l[16:32]), 0, None), (False, None, piece(cadd(1, 4), 1), 0, None)],
                    13: [(False, None, piece(b.l[32:]), 0, None)], 14: (False, None, piece(cadd(4, 8), 1), 0, None), 15: (False, None, piece(sw("v_permlane32_swap_b32") + cout, 1), 0, None)}
        else:
            plan = {2: (False, None, cld, 4, "c"), 3: (False, None, lambda: cld(4, 9), 5, "c"),
                    5: [(False, "c", piece(cadd(1, 5), 1), 0, None), (False, None, lambda: flag_try(a, fr, fa), 1, "f")],
                    6: (False, None, both(piece(cadd(5, 9), 1), lambda: cld(9, 16)), 7, "e"),
                    7: (False, "f", ld(0), 8, "d"), 8: (False, None, ld(8), 8, "d"),
                    9: (False, "e", piece(cadd(1, 5), 1), 0, None), 10: (False, None, piece(cadd(5, 8), 1), 0, None), 11: (False, None, piece(sw("v_permlane32_swap_b32") + cout, 1), 0, None),
                    12: (False, "d", piece(b.l[:16]), 0, None), 13: (False, None, piece(b.l[16:32]), 0, None), 14: (False, None, piece(b.l[32:]), 0, None)}
    return plan

W2E = int(os.environ.get("W2E", "3"))
def w2_early(a):
    if W2E: w_setup(a, 2, pre=False); w1_slots(a, range(W2E), pace=8)
def w_loader(a, which):
    c = CFG[which]
    if which < 3:
        if which == 1: a.e("s_waitcnt vmcnt(0)")
        if which == 1 and "a" in STO: stouch(a, 3, 128 if "8" in STO else 64, 2); mstamp(a)
        if which == 1 and sum(SG): sb_init(a)
        sg(a, SG[2*which-2])
        if not (which == 1 and "1" in DP): a.e("s_barrier")
        sg(a, SG[2*which-1])
        if which == 1 and WE and WK:
            assert 8 not in WE or W3N == 1
            a.e("s_and_b32 s36, s30, 1"); a.e("s_lshl_b32 s36, s36, 12"); a.e(f"s_add_u32 s36, s36, {CFG[1]['WB'] + 7*8192}"); a.e("v_add_u32 v6, s36, v2")
            for j in WE:
                for i in range(4): a.e(f"ds_read_b128 {vr(WER[j][i],4)}, v6 offset:{(j-7)*8192+i*1024}")
            a.e("s_waitcnt lgkmcnt(0)")
        if which == 1 and PT: call(a, before_d1)
        if which == 1 and "b" in STO: stouch(a, 3, 128 if "8" in STO else 64, 2); mstamp(a)
        if which == 2 and PT2: call(a, before_d2)
        if which == 2: a.e(f"s_waitcnt vmcnt({7 if PT2 == 2 else 0})")
        a.e("s_barrier")
        if which == 1 and "p" not in os.environ.get("FO2", "1pd"): late_park(a)
        call(a, after_g1 if which == 1 else after_g2); mstamp(a)
        return
    args = (a, which, c["NW"], c["STB"] // 2048, w_issue, c["NPRE"], c["WR"])
    if which == 4:
        assert c["NW"] == 6 and c["WB"] == CFG[1]["WB"] + 3 * 8192
        a.e("s_cmp_eq_u32 s60, 1"); a.e("s_cbranch_scc1 WL_t1")
        H0 = eval(os.environ.get("H0", "()")); T0 = 24 + len(H0)
        ld_steps(*args, hi=T0, hold=H0)
        WT = eval(os.environ.get("WT", "[(11,12,9),(13,14,10),(3,4),(5,6,0),(7,8,1,2,15),()]"))
        if WE:
            WT = [tuple(j for j in l if j not in WE and j not in WA) for l in WT]
            def put(js):
                a.e(f"s_add_u32 s36, s41, {7*8192}"); a.e("v_add_u32 v6, s36, v2")
                for j in js:
                    for i in range(4): a.e(f"ds_write_b128 v6, {vr(WER[j][i],4)} offset:{(j-7)*8192+i*1024}")
        WD = eval(os.environ.get("WD", "()"))
        def some(js):
            def f():
                if js is WT[len(H0)]:
                    w_setup(a, 1, pre=False)
                    a.e("s_and_b32 s36, s99, 7"); a.e("s_cmp_eq_u32 s36, 3"); a.e("s_cselect_b64 s[50:51], 0, -1")
                for j in js:
                    if j in (9, 10) and js is not WT[5]:
                        a.e(f"s_add_u32 s39, s38, {j*64*2048}")
                        for i in range(4): a.e(f"buffer_load_dwordx4 {vr(16+16*(j-9)+4*i,4)}, v{WVB[1]}, s[12:15], s39 offen"); a.e("s_add_u32 s39, s39, 16384")
                    else:
                        if j in WD: a.e("s_mov_b64 exec, s[50:51]")
                        w1_slots(a, (j,), pace=8 if js is WT[5] else 0)
                        if j in WD: a.e("s_mov_b64 exec, -1")
            return f
        plan = {24 + i: (False, None, some(WT[i]), 4 * len(WT[i]), "w") for i in range(4) if WT[i]}
        assert not any(WT[:len(H0)])
        ld_steps(*args, plan=plan, lo=T0, hold=H0, last=(lambda: (some(WT[4])(), put([j for j in WE if j < 9 and not KAD]))) if WE else some(WT[4]))
        rg = [j for j in (9, 10) if j not in WT[5] and j not in WE]
        if WE: put([j for j in WE if j >= 9 or KAD]); a.e("s_waitcnt lgkmcnt(0)")
        if WD:
            a.e("s_cmp_lg_u32 s50, 0"); a.e("s_cbranch_scc1 WL_nd"); w1_slots(a, WD); a.e("WL_nd:")
        if rg:
            yg = [j for l in WT[:5] for j in l]; yg = len(yg) - 1 - max(yg.index(9), yg.index(10))
            a.e(f"s_add_u32 s36, s41, {9*8192}"); a.e("v_add_u32 v6, s36, v2"); a.e(f"s_waitcnt vmcnt({4*yg if os.environ.get('YG', '1') == '1' else 0})")
            for j in rg:
                for i in range(4): a.e(f"ds_write_b128 v6, {vr(16+16*(j-9)+4*i,4)} offset:{(j-9)*8192+i*1024}")
            a.e("s_waitcnt lgkmcnt(0)")
        some(WT[5])(); mstamp(a)
        a.e("s_branch NEXT")
        a.e("WL_t1:")
        ld_steps(*args, hold=HOLD)
        return
    plan = {}
    if "3" in DP:
        lsrd(a, 20, oX1P, XSZ)
        a.e(f"v_readlane_b32 s36, v{TV+3}, 1"); a.e("s_and_b32 s35, s30, 1"); a.e("s_lshl_b32 s46, s35, 18"); a.e("s_lshl_b32 s47, s35, 13"); a.e("s_add_u32 s47, s47, 16384")
        a.e("s_bfe_u32 s37, s36, 0x20002"); a.e("s_lshl_b32 s37, s37, 14"); a.e("s_and_b32 s36, s36, 3"); a.e("s_lshl_b32 s36, s36, 11"); a.e("s_add_u32 s46, s46, s36"); a.e("s_add_u32 s46, s46, s37")
        a.e("v_add_u32 v8, s47, v2")
        if W3E: w_issue(a, 3); args = args[:5] + (3,) + args[6:]
        def second():
            L = a.lab("sp"); D = a.lab("sq")
            a.e("s_mov_b32 s34, m0"); a.e("s_cmp_lg_u32 s60, 0"); a.e(f"s_cbranch_scc1 {L}a")
            lds_spin(a, LW + 60, 1, 6, nap=1)
            a.e(f"{L}a:"); a.e("s_mov_b32 s53, 0")
            if int(os.environ.get("S3D", "0")): a.e("s_sleep " + os.environ["S3D"])
            a.e(f"{L}:"); a.e("s_mov_b32 m0, s47"); a.e("s_mov_b32 s36, s46")
            for i in range(4):
                if i: a.e("s_add_u32 m0, m0, 2048"); a.e("s_add_u32 s36, s36, 65536")
                for k in range(2): a.e(f"buffer_load_dwordx4 v2, s[20:23], s36 offen offset:{1024*k} {SC} lds")
            a.e("s_waitcnt vmcnt(0)")
            for i in range(8): a.e(f"ds_read_b32 v{10+i}, v8 offset:{1024*i}")
            a.e("s_waitcnt lgkmcnt(0)")
            a.e("v_or3_b32 v10, v10, v11, v12"); a.e("v_or3_b32 v13, v13, v14, v15"); a.e("v_or3_b32 v10, v10, v16, v17"); a.e("v_bitop3_b32 v10, v10, v13, s60 bitop3:0xa8")
            a.e("v_cmp_ne_u32 vcc, 0, v10"); a.e(f"s_cbranch_vccz {D}"); a.e("s_sleep 1")
            a.e("s_add_u32 s53, s53, 1"); a.e("s_cmp_lt_u32 s53, s61"); a.e(f"s_cbranch_scc1 {L}"); a.e("s_mov_b32 s61, 0")
            a.e(f"{D}:"); a.e("s_mov_b32 m0, s34")
        plan[1] = (True, None, second, 8, "x")
    elif W33:
        plan[1] = (True, None, lambda: call(a, third_put), 0, None); args = args[:5] + (3,) + args[6:]
    elif W3H: plan[1] = (True, None, lambda: (a.e("s_add_u32 s54, s60, 1"), lds_spin(a, LW + 60, "s54", 6, nap=1)), 0, None)
    def sg3(n):
        def f():
            X = a.lab("st"); a.e("s_cmp_lg_u32 s60, 0"); a.e(f"s_cbranch_scc1 {X}"); sb(a, n); a.e(f"{X}:")
        return f
    for b_, n_ in eval(os.environ.get("SG3", "{}")).items(): plan[b_] = (False, None, sg3(n_), 0, None)
    RPW = int(os.environ.get("RPW", "16"))
    if RPW < 16: plan[RPW] = (False, None, lambda: call(a, r_pre0), 4, "r")
    def early(js):
        def f():
            a.e("s_mov_b64 s[20:21], s[68:69]"); a.e(f"s_mov_b32 s22, {2*MB}"); a.e("s_mov_b32 s23, 0x20000")
            a.e("s_and_b32 s36, s30, 1"); a.e("s_lshl_b32 s36, s36, 16"); a.e("s_lshl_b32 s37, s99, 7"); a.e("s_add_u32 s37, s37, s36")
            a.e("s_cmp_eq_u32 s60, 0"); a.e("s_cselect_b64 exec, -1, 0")
            for j in js:
                for i in range(4): a.e(f"s_add_u32 s36, s37, {j*64*2048 + i*16384}"); a.e(f"buffer_load_dwordx4 {vr(WER[j][i],4)}, v{WVB[1]}, s[20:23], s36 offen")
            a.e("s_mov_b64 exec, -1")
        return f
    if WE and not WK:
        for b_, js in eval(os.environ.get("WES", "{15: WE}")).items():
            p_ = plan.get(b_, []); plan[b_] = (p_ if isinstance(p_, list) else [p_]) + [(False, None, early(js), 4 * len(js), "e")]
    ld_steps(*args, plan=plan, last=(lambda: r_pre1(a)) if RPW == 16 else None)
WE = eval(os.environ.get("WE", "(9,10,7)")); WK = int(os.environ.get("WK", "1"))
WER = {9: [16, 20, 24, 28], 10: [32, 36, 40, 44], 7: [204, 208, 212, 216], 8: [220, 224, 200, 176]}
W3H = int(os.environ.get("W3H", "0")) or "3" in DP; W3E = int(os.environ.get("W3E", "1"))
W1L = int(os.environ.get("W1L", "3"))

B0E = int(os.environ.get("B0E", "6")); RPL = int(os.environ.get("RPL", "1")); RPC = int(os.environ.get("RPC", "1"))
R2K = int(os.environ.get("R2K", "3"))
PTB = int(os.environ.get("PTB", "0"))
LF1 = os.environ.get("LF1", "sc1"); LF2 = os.environ.get("LF2", "")
RES2 = 148; C2R = 200; SO3 = 238; RES4 = [172, 176, 180, 184, 188, 192, 196, 240]
def g_compute(a, which):
    c = CFG[which]
    WM, WN, MT, NT, KBT, NS, NA, NW, TN16, STB, WB = [c[k] for k in "WM WN MT NT KBT NS NA NW TN16 STB WB".split()]
    v = VA(6); nm = f"G{which}"
    lane = 1; l16 = 2
    t = v(); t2 = v(); pt = v(4, 2)
    NTILE = (0, 99, 29, 29, 33)[which]
    a_ = a
    if which != 3: a = Rec()
    if WN == 2: a.e("s_lshr_b32 s34, s30, 1"); a.e("s_and_b32 s35, s30, 1")
    else: a.e("s_mov_b32 s34, s30"); a.e("s_mov_b32 s35, 0")
    a0 = v(); w0 = v(4, 1); aa = v(); wa = v(4, 1); J = v(); G = v()
    a.e(f"v_and_b32 v{J}, 15, v{lane}"); a.e(f"v_lshrrev_b32 v{G}, 4, v{lane}")
    a.e(f"s_mul_i32 s37, s34, {MT}")
    a.e(f"s_mul_i32 s38, s{NTILE}, {TN16}"); a.e(f"s_mul_i32 s36, s35, {NT}"); a.e("s_add_u32 s38, s38, s36")
    acc = v(MT * NT * 4, 4); NF = MT + NT if which > 2 else 8
    fX = v(NF * 4, 4); fY = v(NF * 4, 4); tmp = v(); tp = v(4, 2)
    def A_(mt, nt): return acc + 4 * (mt * NT + nt)
    def SUBM(r): return f"{vr(r,2)} op_sel_hi:[1,0] neg_lo:[0,1] neg_hi:[0,1]"
    def MULR(r): return f"{vr(r,2)} op_sel:[0,1] op_sel_hi:[1,1]"
    if which in (2, 4):
        res = RES2
        a.e("s_lshr_b32 s36, s38, 1"); spread(a, 39, 36); a.e("s_lshl_b32 s36, s37, 16"); a.e("s_add_u32 s39, s39, s36")
    if which <= 2:
        AB = 164; LO = v(8, 1)
        def aload(b, kk):
            if which == 1: return [f"buffer_load_dwordx4 {vr(AB+16*b+8*kk+4*mt,4)}, v{LO+mt+(b&2)}, s[8:11], s44 offen offset:{(b&1)*2048+kk*1024} {LF1}" for mt in range(2)]
            return [f"buffer_load_dwordx4 {vr(AB+16*b+8*kk+4*mt,4)}, v{LO+mt}, s[8:11], s44 offen {LF2}" for mt in range(2)]
        def seq(pairs, s0):
            if which == 1: return [x for b, kk in pairs for x in aload(b, kk)]
            return ([f"s_mov_b32 s44, {s0}"] if s0 is not None else []) + [x for b, kk in pairs for x in aload(b, kk) + ["s_add_u32 s44, s44, 16384"]]
        def past(l): return [x + (SC if x.startswith("buffer") and SC not in x else "") for x in l]
        PR = [(i >> 1, i & 1) for i in range(7)]
        h = Rec()
        if which == 1:
            lsrd(h, 8, oX3, XSZ); OOB = MB
            for i in range(4): (h if i < 2 else a).e(f"v_add_u32 v{LO+i}, {(i & 1) * 65536 + (i >> 1) * 4096}, v{l16}")
            h.e("s_lshl_b32 s44, s30, 17")
            for i in range(1, 4): a.e(f"s_add_u32 s{44+i}, s44, {16384*i}")
            a.e(f"v_min_u32 v{wa}, 1, v{lane}"); a.e(f"v_lshlrev_b32 v{wa}, 16, v{wa}"); a.e(f"v_add_u32 v{wa}, {LW+80}, v{wa}"); a.e(f"v_mov_b32 v{wa+1}, 1")
        else:
            OOB = 0x40000000; LP = v(2, 1)
            h.srd(8, 4, 8 * GSTR + LSTR, off=LB0 + oHS)
            h.e(f"s_sub_u32 s47, s55, {LB0 + oSM}"); h.e("s_lshl_b32 s46, s30, 9"); h.e("s_add_u32 s47, s47, s46")
            h.e("s_add_u32 s45, s92, 2048"); h.e("s_cmp_eq_u32 s28, 0"); h.e(f"s_cselect_b32 s45, {OOB}, s45"); h.e("s_cmp_eq_u32 s30, 0"); h.e("s_cselect_b32 s45, s45, 0")
            a.e("s_sub_u32 s46, s93, 2048"); a.e("s_cmp_eq_u32 s28, 15"); a.e(f"s_cselect_b32 s46, {OOB}, s46"); a.e("s_cmp_eq_u32 s30, 3"); a.e("s_cselect_b32 s46, s46, 0")
            for q_, sh in enumerate((1, -1, 2, -2)):
                e_ = h if q_ == 0 else a
                e_.e(f"s_add_u32 s53, s47, {(-16 * sh) & 0xffffffff:#x}"); e_.e(f"v_add_u32 v{LO+2*q_}, s53, v{a0}"); e_.e(f"v_add_u32 v{LO+2*q_+1}, 256, v{LO+2*q_}")
                R_ = LO + 2 * q_ + (0 if sh > 0 else 1)
                e_.e(f"v_add_u32 v{LP}, s{45 if sh > 0 else 46}, v{R_}")
                e_.e(f"v_cmp_gt_u32 vcc, {sh}, v{J}" if sh > 0 else f"v_cmp_le_u32 vcc, {16 + sh}, v{J}"); e_.e(f"v_cndmask_b32 v{R_}, v{R_}, v{LP}, vcc")
            for k in range(2): a.e(f"v_mov_b32 v{LP+k}, v{LO+k}")
        EARLY = str(which) in DP and str(which) in os.environ.get("EP", "2")
        F0 = eval(os.environ.get("F0", "(0,4,4)"))[which]
        try0 = past(seq(PR[:2], 0)) + seq(PR[2:F0], None)
        for x in h.l: a_.e(x)
        if EARLY and which == 1:
            for x in try0: a_.e(x)
    else:
        a.e(f"s_mul_i32 s36, s34, {MT*2048}"); a.e(f"v_add_u32 v{a0}, s36, v{l16}")
    nwr, wpos = w_bases(a, which, w0, 35, NT, t, t2)
    if which <= 2:
        for x in a.l: a_.e(x)
    a = a_
    if which == 3 and not B0E: publish(a, ST_G2S, 4, pt, ctr=48)
    if which == 2:
        a.e(f"s_lshl_b32 s36, s37, 8"); a.e(f"s_add_u32 s36, s36, {LNSL}"); a.e(f"v_lshlrev_b32 v{t2}, 4, v{J}"); a.e(f"v_add_u32 v{t2}, s36, v{t2}")
        for mt in range(MT): a.e(f"ds_read_b64 {vr(fX+2*mt,2)}, v{t2} offset:{mt*256}")
        a.e(f"s_waitcnt vmcnt({4 - R2K}) lgkmcnt(0)")
        if EARLY:
            if int(os.environ.get("G2D", "6")): a.e("s_sleep " + os.environ.get("G2D", "6"))
            if int(os.environ.get("G2D0", "2")): a.e("s_cmp_lg_u32 s60, 0"); a.e("s_cbranch_scc1 G2_nd"); a.e("s_sleep " + os.environ.get("G2D0", "2")); a.e("G2_nd:")
            for x in try0: a.e(x)
        for mt in range(MT):
            for p in range(NT // 2):
                for e in range(4):
                    X = A_(mt, 2 * p) + 2 * e
                    unpack(a, X, X + 1, res + (mt * (NT // 2) + p) * 4 + e)
                    a.e(f"v_pk_add_f32 {vr(X,2)}, {vr(X,2)}, {SUBM(fX+2*mt)}"); round2(a, X, X + 1, tmp)
                    a.e(f"v_pk_mul_f32 {vr(X,2)}, {vr(X,2)}, {MULR(fX+2*mt)}"); round2(a, X, X + 1, tmp)
    elif which == 1:
        for i in range(0, MT * NT * 4, 2): a.e(f"v_pk_mov_b32 {vr(acc+i,2)}, 0, 0")
    RX = [180, 184, 188, 192, 196, 230, 234, 248]
    def last_res():
        b0 = Rec()
        for i in range(2):
            b0.e(f"s_add_u32 s36, s40, {i*65536}")
            for p in range(2):
                b0.e(f"buffer_load_dwordx4 {vr(RX[2*(2*i+p)],4)}, v{l16}, s[84:87], s36 offen offset:{p*1024} {SC}")
                b0.e(f"buffer_load_dwordx4 {vr(RX[2*(2*i+p)+1],4)}, v{l16}, s[88:91], s36 offen offset:{p*1024} {SC}")
        return b0.l
    def reads(F, kk):
        o = []
        for mt in range(MT): o.append(f"ds_read_b128 {vr(F+4*mt,4)}, v{aa} offset:{mt*256+kk*8192 if which == 2 else mt*2048+kk*1024}")
        for nt in range(NT):
            for h in range(2):
                r, imm = wpos(nt, kk, h)
                o.append(f"ds_read_b64_tr_b16 {vr(F+4*(MT+nt)+2*h,2)}, v{wa+r} offset:{imm}")
        NR = os.environ.get("NOREAD")
        if NR == "N": o = []
        if NR == "A": o = o[MT:]
        if NR == "W": o = o[:MT]
        if NR == "H": o = o[::2]
        if NR == "X": o = o + o[:2]
        if NR == "XX": o = o + o[:MT]
        return o
    def mix(rd, ex):
        rd = list(rd)
        for i, x in enumerate(ex): rd.insert(min(len(rd), (i + 1) * len(rd) // (len(ex) + 1)), x)
        return rd
    def mfmas(F, rd, tail=()):
        n = MT * NT; k = 0; tot = len(rd); span = max(1, n * 3 // 4); done = 0; tail = list(tail); per = -(-len(tail) // max(1, n - span))
        OR = os.environ.get("ORDER", "2")
        order = {"0": [(nt, mt) for nt in range(NT) for mt in range(MT)],
                 "1": [(nt, mt) for mt in range(MT) for nt in range(NT)],
                 "2": [(nt, mt if nt % 2 == 0 else MT - 1 - mt) for nt in range(NT) for mt in range(MT)],
                 "3": [(nt if mt % 2 == 0 else NT - 1 - nt, mt) for mt in range(MT) for nt in range(NT)]}[OR]
        for nt, mt in order:
            if True:
                cc = acc + 4 * (mt * NT + nt)
                if str(which) not in os.environ.get("NOMF", ""): a.e(f"v_mfma_f32_16x16x32_bf16 {vr(cc,4)}, {vr(F+4*(MT+nt),4)}, {vr(F+4*mt,4)}, {vr(cc,4)}")
                k += 1
                while rd and done < (tot * k + span - 1) // span: a.e(rd.pop(0)); done += 1
                if k >= span and k < n:
                    for _ in range(min(per, len(tail))): a.e(tail.pop(0))
        assert not rd and not tail
    so = SO3 if which == 3 else a0; cs = fX; lns = fX + 4 * NT; G4W = 240; EA = 244
    def ep_setup(b):
        if which in (1, 3):
            assert which == 1 or (fY <= C2R and C2R + 24 <= fY + 4 * NF)
            b.e(f"s_mul_i32 s36, s35, {NT*64}"); b.e(f"s_add_u32 s36, s36, {CSO[which]}"); b.e(f"v_lshlrev_b32 v{t}, 4, v{G}"); b.e(f"v_add_u32 v{t}, s36, v{t}")
            b.e(f"s_lshl_b32 s36, s37, 8"); b.e(f"s_add_u32 s36, s36, {LNSL + (8 if which == 1 else 0)}"); b.e(f"v_lshlrev_b32 v{t2}, 4, v{J}"); b.e(f"v_add_u32 v{t2}, s36, v{t2}")
        if which == 3:
            lsrd(b, 16, oH2, H2SZ)
            b.e(f"s_mul_i32 s39, s37, {224*1024}")
            for P in range(4):
                b.e("s_lshr_b32 s36, s38, 1"); b.e(f"s_add_u32 s36, s36, {P}"); spread(b, 44 + P, 36); b.e(f"s_add_u32 s{44+P}, s{44+P}, s39")
            w_bases(b, 4, G4W, 35, 4, tp, tp + 1)
            b.e("s_lshl_b32 s38, s33, 3"); b.e("s_lshl_b32 s36, s35, 2"); b.e("s_add_u32 s38, s38, s36")
            b.e("s_lshr_b32 s36, s38, 1"); spread(b, 39, 36); b.e("s_lshl_b32 s36, s37, 16"); b.e("s_add_u32 s39, s39, s36")
            b.e("s_lshl_b32 s40, s31, 17"); b.e("s_add_u32 s40, s40, s39")
            b.e("s_xor_b32 s41, s31, 1"); b.e("s_lshl_b32 s41, s41, 17"); b.e("s_add_u32 s41, s41, s39")
            lsrd(b, 84, oX3, XSZ); lsrd(b, 88, oX1P, XSZ)
            b.e("s_lshl_b32 s36, s37, 1"); b.e("s_add_u32 s36, s36, s35"); b.e("s_lshl_b32 s36, s36, 10"); b.e(f"v_add_u32 v{EA}, s36, v{l16}")
            b.e(f"v_mov_b32 v{EA+1}, 1"); b.e(f"v_mov_b32 v{EA+2}, {LW+64}")
            b.e(f"v_lshrrev_b32 v{so}, 1, v{G}"); b.e(f"v_lshlrev_b32 v{so}, 8, v{so}"); b.e(f"v_lshl_add_u32 v{so}, v{J}, 4, v{so}")
            b.e(f"v_and_b32 v{tmp}, 1, v{G}"); b.e(f"v_lshl_add_u32 v{so}, v{tmp}, 3, v{so}")
        if which == 1:
            lsrd(b, 16, oHS, XSZ)
            b.e(f"v_lshlrev_b32 v{so}, 11, v{G}"); b.e(f"v_lshl_add_u32 v{so}, v{J}, 4, v{so}")
            b.e("s_lshl_b32 s39, s38, 13"); b.e("s_lshl_b32 s36, s37, 8"); b.e("s_add_u32 s39, s39, s36"); b.e("s_add_u32 s40, s39, 16384")
            b.e("s_lshl_b32 s36, s29, 1"); spread(b, 41, 36); b.e("s_lshl_b32 s36, s37, 16"); b.e("s_add_u32 s41, s41, s36")
        if which == 2: lsrd(b, 16, oX1P, XSZ)
    def cost(x): return sum(8 if y.startswith("ds_") else 4 for y in x.split("\n"))
    def group(F, rd, r0, ex, fixed={}, zero=False):
        n = MT * NT; ex = [x if isinstance(x, tuple) else (x, -1) for x in ex]; done = 0
        order = [(nt, mt if nt % 2 == 0 else MT - 1 - mt) for nt in range(NT) for mt in range(MT)]
        need = sum(cost(x) for x, _ in ex) + 8 * len(rd) + sum(cost(x) for l in fixed.values() for x in l)
        cap = max(12, -(-need // (4 * n)) * 4)
        for k, (nt, mt) in enumerate(order):
            cc = A_(mt, nt)
            if str(which) not in os.environ.get("NOMF", ""): a.e(f"v_mfma_f32_16x16x32_bf16 {vr(cc,4)}, {vr(F+4*(MT+nt),4)}, {vr(F+4*mt,4)}, {0 if zero else vr(cc,4)}")
            b_ = cap - sum(cost(x) for x in fixed.get(k, [])); nv = 0
            if k >= r0 and done < len(rd): a.e(rd[done]); done += 1; b_ -= 8
            while ex and ex[0][1] < done and (cost(ex[0][0]) <= b_ or k == n - 1) and not (nv >= (1 if rd else 2) and ex[0][0].startswith("v_") and cap == 12 and k < n - 1):
                x = ex.pop(0)[0]; a.e(x); b_ -= cost(x); nv += x.startswith("v_")
            for x in fixed.get(k, []): a.e(x)
        assert done == len(rd) and not ex
    NR_ = MT + 2 * NT; BP = eval(os.environ.get("BP", "{3:3,4:2}")).get(which, 0)
    def stage(ex=(), ey=(), lim=NS-1, late=False, zero=False, pre=()):
        if str(which) in os.environ.get("GST", "") or os.environ.get("JIT"): mstamp(a, True)
        if which == 3: last = {0: NR_ - 1, 1: NR_ - 3}
        else: last = {i: MT + 2 * i + 1 for i in range(4)}
        book = ["s_add_u32 s42, s42, 16384", f"s_cmp_eq_u32 s42, {NA*16384}", "s_cselect_b32 s42, 0, s42",
                f"s_add_u32 s48, s48, {STB}", f"s_cmp_eq_u32 s48, {NW*STB}", "s_cselect_b32 s48, 0, s48", (f"v_add_u32 v{aa}, s42, v{a0}", MT - 1)]
        book += sorted([(f"v_add_u32 v{wa+i}, s48, v{w0+i}", last[i]) for i in range(nwr)], key=lambda x: x[1])
        n = MT * NT
        group(fX, reads(fY, 1), 0, book[:7] + list(ex) + book[7:], {3: [f"s_waitcnt lgkmcnt({min(15, NR_ - MT - 4 + 4)})"], 7: ["s_waitcnt lgkmcnt(8)"], n - 1: [f"s_waitcnt lgkmcnt({NR_ - MT - 2})"]}, zero)
        if late:
            b_ = Rec(); ep_setup(b_)
            group(fY, [], 0, ["s_add_u32 s43, s43, 1"] + b_.l, {min(BP, 3): ["s_waitcnt lgkmcnt(0)"]})
            if B0E: publish(a, ST_G2S, 4, pt, ctr=48)
            a.e("s_barrier")
            for x in reads(fX, 0): a.e(x)
            a.e(f"s_waitcnt lgkmcnt({NR_ - MT - 2})")
            return
        group(fY, reads(fX, 0), BP + 1, list(ey) + ["s_add_u32 s43, s43, 1", f"s_cmp_lt_u32 s43, {lim}"],
              {BP - 1: list(pre), BP: ["s_waitcnt lgkmcnt(0)", "s_barrier"], n - 1: [f"s_waitcnt lgkmcnt({NR_ - MT - 2})"]})
    w00 = c["S0"] * STB
    if which <= 2:
        def wrd(p, b): return [f"ds_read_b64_tr_b16 {vr((fX, fY)[p]+16*kk+4*nt+2*h,2)}, v{w0+nt} offset:{b*STB + wpos(nt, kk, h)[1]}" for kk in range(2) for nt in range(4) for h in range(2)]
        def dmf(b, fill, lo=0, hi=16):
            k = 0
            for kk in range(2):
                for nt in range(4):
                    for mt in ((0, 1) if nt % 2 == 0 else (1, 0)):
                        if lo <= k < hi:
                            a.e(f"v_mfma_f32_16x16x32_bf16 {vr(A_(mt,nt),4)}, {vr((fX, fY)[b&1]+16*kk+4*nt,4)}, {vr(AB+16*b+8*kk+4*mt,4)}, {vr(A_(mt,nt),4)}")
                            for x in fill[k]: a.e(x)
                        k += 1
        def spreadf(l, lo, hi):
            f = [[] for _ in range(16)]
            for i, x in enumerate(l): f[lo + i * (hi - lo) // len(l)].append(x)
            return f
        a.e("s_mov_b32 s43, 0"); ep_setup(a)
        CK = str(which) in DP; ck_ = aa
        def check(b):
            B = AB + 16 * b
            return [f"v_or3_b32 v{ck_}, v{B}, v{B+4}, v{B+8}", f"v_bitop3_b32 v{ck_}, v{ck_}, v{B+12}, 1 bitop3:0xa8", f"v_cmp_ne_u32 vcc, 0, v{ck_}"]
        L = a.lab("dm"); assert CK
        a.e("s_mov_b32 s53, 0"); a.e("s_mov_b32 s49, s44")
        if which == 2: a.e("s_barrier")
        for x in wrd(0, 0): a.e(x)
        if EARLY: a.e(f"s_branch {L}w")
        elif int(os.environ.get("G1D", "0")): a.e("s_sleep " + os.environ["G1D"])
        a.e(f"{L}p:")
        for x in try0: a.e(x)
        a.e(f"{L}w:")
        a.e(f"s_waitcnt vmcnt({2*F0 - 4})")
        for x in check(0): a.e(x)
        DEEP = eval(os.environ.get("DEEP", "(0,4,4)"))[which]
        if DEEP:
            a.e(f"s_cbranch_vccz {L}q")
            a.e(f"{L}r:"); a.e(f"s_sleep {os.environ.get('GNAP', '2')}")
            for x in past(seq(PR[:DEEP], 0)): a.e(x)
            a.e(f"s_waitcnt vmcnt({2*DEEP - 4})")
            for x in check(0): a.e(x)
            a.e(f"s_cbranch_vccz {L}t")
            a.e("s_add_u32 s53, s53, 1"); a.e("s_cmp_lt_u32 s53, s61"); a.e(f"s_cbranch_scc1 {L}r"); a.e("s_mov_b32 s61, 0"); a.e(f"s_branch {L}t")
            a.e(f"{L}q:")
            assert DEEP >= F0
            for x in seq(PR[F0:DEEP], None): a.e(x)
            a.e(f"{L}t:")
            mstamp(a)
            for x in seq(PR[DEEP:], None): a.e(x)
        else:
            a.e(f"s_cbranch_vccz {L}q"); a.e(f"s_sleep {os.environ.get('GNAP', '2')}")
            a.e("s_add_u32 s53, s53, 1"); a.e("s_cmp_lt_u32 s53, s61"); a.e(f"s_cbranch_scc1 {L}p"); a.e("s_mov_b32 s61, 0")
            a.e(f"{L}q:")
            mstamp(a)
            for x in seq(PR[2:], None): a.e(x)
        a.e("s_waitcnt lgkmcnt(0)")
        a.e(f"{L}:")
        for b in range(4):
            rd = wrd(1 - (b & 1), (b + 1) & 3); ex = [[] for _ in range(16)]
            ex[0], ex[1] = [[x] for x in aload((b - 1) & 3, 1)]
            if b == 0 and which == 1:
                for i, x in enumerate(["s_mov_b32 s44, s45", "s_mov_b32 s45, s46", "s_mov_b32 s46, s47", f"s_mov_b32 s47, {OOB}"]): ex[2 + i].append(x)
            if which == 2:
                ex[2].append("s_add_u32 s44, s44, 16384"); ex[10].append("s_add_u32 s44, s44, 16384")
                mv = [f"v_mov_b32 v{LO+k}, v{LO+k+2}" for k in range(6)] + [f"v_mov_b32 v{LO+6+k}, {OOB}" for k in range(2)]
                if b < 2:
                    for i, x in enumerate(mv[4*b:4*b+4]): ex[3 + i].append(x)
                if b == 3:
                    for k in range(2): ex[3 + k].append(f"v_mov_b32 v{LP+k}, v{LO+k}")
            if b == 2:
                ex[4].append("s_add_u32 s43, s43, 1")
                if not PEEL: ex[14].append("s_cmp_eq_u32 s43, 4")
                for nt, g_ in enumerate((11, 12, 13, 15)): ex[g_].append(f"v_add_u32 v{w0+nt}, {4*STB}, v{w0+nt}")
            if b == 3 and PEEL: ex[14].append("s_cmp_lt_u32 s43, 3")
            if b == PTB and which == 1 and PT and not PEEL: ex[6].append(f"ds_add_u32 v{wa}, v{wa+1}"); LK = 1
            else: LK = 0
            if b == 3 and which == 1: ex[2].append("s_mov_b32 s49, s44")
            ex[7].append(f"s_waitcnt lgkmcnt({8 + LK})")
            ex[8], ex[9] = [[x] for x in aload(b, 0)]
            ex[10].append("s_waitcnt vmcnt(10)")
            if CK:
                for i, x in enumerate(check((b + 1) & 3)): ex[11 + i].append(x)
            fill = [rd[i:i+1] + ex[i] for i in range(16)]
            fill[14] = rd[14:16] + ex[14]; fill[15] = ex[15] + ["s_waitcnt lgkmcnt(8)"]
            if CK: fill[15] += [f"s_cbranch_vccnz {L}f{b}", f"{L}g{b}:"]
            if b == 2 and not PEEL: fill[15].append(f"s_cbranch_scc1 {L}x")
            if b == 3: fill[15].append(f"s_cbranch_scc1 {L}" if PEEL else f"s_branch {L}")
            dmf(b, fill)
        if PEEL:
            for b in range(3):
                rd = wrd(1 - (b & 1), b + 1); ex = [[] for _ in range(16)]; LK = 0
                if b == 0: ex[0], ex[1] = [[x] for x in aload(3, 1)]
                if b == PTB and which == 1 and PT: ex[3].append(f"ds_add_u32 v{wa}, v{wa+1}"); LK = 1
                if b == PTB and which == 2 and PT2: ex[3].append(f"ds_add_u32 v{wa}, v{wa+1} offset:4"); LK = 1
                ex[7].append(f"s_waitcnt lgkmcnt({8 + LK})"); ex[10].append(f"s_waitcnt vmcnt({8 - 4 * b})")
                for i, x in enumerate(check(b + 1)): ex[11 + i].append(x)
                fill = [rd[i:i+1] + ex[i] for i in range(16)]
                fill[14] = rd[14:16]; fill[15] = ["s_waitcnt lgkmcnt(8)", f"s_cbranch_vccnz {L}m{b}", f"{L}n{b}:"]
                dmf(b, fill)
            a_ = a; a = Rec(); LATE.append(a)
            for b in range(3):
                a.e(f"{L}m{b}:"); a.e(f"s_sleep {os.environ.get('GNAP', '2')}")
                for x in past(seq([(bb, kk) for bb in range(b + 1, 4) for kk in range(2)], (24 + 2 * (b + 1)) * 16384)): a.e(x)
                a.e(f"s_waitcnt vmcnt({8 - 4 * b})")
                for x in check(b + 1): a.e(x)
                a.e("s_add_u32 s53, s53, 1"); a.e("s_cmp_ge_u32 s53, s61"); a.e("s_cselect_b32 s61, 0, s61"); a.e(f"s_cbranch_scc1 {L}n{b}")
                a.e(f"s_cbranch_vccnz {L}m{b}"); a.e(f"s_branch {L}n{b}")
        for b in range(4 if CK else 0):
            nb = (b + 1) & 3
            a.e(f"{L}f{b}:"); a.e("s_cselect_b32 s50, 1, 0")
            a.e(f"{L}h{b}:"); a.e(f"s_sleep {os.environ.get('GNAP', '2')}")
            if which == 2: a.e(f"s_sub_u32 s44, s44, {7*16384}")
            for j in range(4):
                bb = (nb + j) & 3
                for kk in range(2 if j < 3 else 1):
                    for x in past(seq([(bb, kk)], None)):
                        if bb >= nb and which == 1: x = x.replace("s44", "s49")
                        if bb >= nb and which == 2: x = x.replace(f", v{LO}, ", f", v{LP}, ").replace(f", v{LO+1}, ", f", v{LP+1}, ")
                        a.e(x)
            a.e("s_waitcnt vmcnt(10)")
            for x in check(nb): a.e(x)
            a.e("s_add_u32 s53, s53, 1"); a.e("s_cmp_ge_u32 s53, s61"); a.e("s_cselect_b32 s61, 0, s61"); a.e(f"s_cbranch_scc1 {L}k{b}")
            a.e(f"s_cbranch_vccnz {L}h{b}")
            a.e(f"{L}k{b}:"); a.e("s_cmp_eq_u32 s50, 1"); a.e(f"s_branch {L}g{b}")
        if PEEL: a = a_
        a.e(f"{L}x:")
    else:
        if which == 3:
            a.e(f"v_mov_b32 v{aa}, v{a0}")
            a.e("s_mov_b32 s42, 0"); a.e("s_mov_b32 s43, 0"); a.e(f"s_mov_b32 s48, {w00}")
            for i in range(nwr): a.e(f"v_add_u32 v{wa+i}, {w00}, v{w0+i}")
        if os.environ.get("XD") and os.environ["XD"][0] == str(which): a.e("s_sleep " + os.environ["XD"][1:])
        if not (which == 3 and B0E): a.e("s_waitcnt lgkmcnt(0)"); a.e("s_barrier")
        mstamp(a)
        for x in reads(fX, 0): a.e(x)
        a.e(f"s_waitcnt lgkmcnt({NR_ - MT - 2})")
    if which == 4:
        def st2(j): return [(x, 0) for x in [f"s_add_u32 s36, s44, {j*224*1024}", f"buffer_store_dwordx4 {vr(C2R+4*j,4)}, v{l16}, s[16:19], s36 offen {SC}",
                            f"s_add_u32 s36, s45, {j*224*1024}", f"buffer_store_dwordx2 {vr(C2R+16+2*j,2)}, v{SO3}, s[16:19], s36 offen {SC}"]]
        assert PBB in (1, 2) and PC0 >= 2
        for st_ in range(2): stage(st2(2 * st_), st2(2 * st_ + 1), zero=st_ == 0, pre=[f"s_waitcnt vmcnt({4 * st_ + 2})"] if PBB == st_ + 1 else [])
        CW = 0
        if PC0 > 3:
            L0 = a.lab("mm"); a.e(f"{L0}:"); stage(lim=PC0); a.e(f"s_cbranch_scc1 {L0}")
        elif PC0 == 3: stage()
    if which == 3 and os.environ.get("PEEL3", "1") == "1": stage(late=True, zero=True)
    if which > 2:
        L = a.lab("mm"); a.e(f"{L}:")
        stage(pre=[f"s_waitcnt vmcnt({CW})"] if which == 4 else [])
        a.e(f"s_cbranch_scc1 {L}")
    b0 = Rec()
    if which == 4:
        a.e("s_cmp_eq_u32 s60, 1"); a.e("s_cbranch_scc1 G4_last")
        if not RPC: r_pre(b0)
    if which == 1:
        for mt in range(MT):
            for p in range(NT // 2): b0.e(f"buffer_load_dwordx4 {vr(RES2+(mt*(NT//2)+p)*4,4)}, v{LO+mt}, s[8:11], s41 offen offset:{p*1024} {SC}")
    if which == 1 and R2K: r2_ = b0.l; b0 = Rec()
    early = True
    XW = {3: [f"s_waitcnt lgkmcnt({min(15, NR_ - MT)})"], 7: ["s_waitcnt lgkmcnt(8)"]}
    if which <= 2: dmf(3, spreadf(b0.l, 0, 8), 0, 8)
    else: group(fX, reads(fY, 1), 0, b0.l, XW)
    a.e("s_waitcnt lgkmcnt(0)")
    if which not in DL: a.e("s_barrier")
    b = Rec()
    if which in (1, 3):
        for nt in range(NT): b.e(f"ds_read_b128 {vr(cs+4*nt,4)}, v{t} offset:{nt*64}")
        if which == 3:
            for mt in range(MT): b.e(f"ds_read_b128 {vr(lns+4*mt,4)}, v{t2} offset:{mt*256}")
            for i in range(4): b.e(f"v_mov_b32 v{w0+i}, v{G4W+i}"); b.e(f"v_add_u32 v{wa+i}, {CFG[4]['S0']*CFG[4]['STB']}, v{G4W+i}")
            b.e("s_mov_b32 s42, 0"); b.e("s_mov_b32 s43, 0"); b.e(f"s_mov_b32 s48, {CFG[4]['S0']*CFG[4]['STB']}"); b.e(f"v_mov_b32 v{aa}, v{a0}")
            assert fY + 16 == RFO; r_addr(b, False)
        else:
            for mt in range(MT): b.e(f"ds_read_b64 {vr(lns+2*mt,2)}, v{t2} offset:{mt*256}")
    if which == 2: lsrd(b, 44, oST2, 24576)
    if which == 4:
        b.e(f"s_mul_i32 s36, s31, {oP1-oP0}"); b.e(f"s_add_u32 s36, s36, {oP0}")
        b.e("s_add_u32 s16, s62, s36"); b.e("s_addc_u32 s17, s63, 0"); b.e(f"s_mov_b32 s18, {XSZ}"); b.e("s_mov_b32 s19, 0x20000")
    if which <= 2: dmf(3, spreadf(b.l, 8, 15), 8, 16)
    else: group(fY, [], 0, b.l)
    mstamp(a)
    if which in (1, 3):
        AB = v(2 * MT, 2) if which == 1 else fY + 4
        def consts():
            for mt in range(MT if which == 1 else 0):
                r = lns + 2 * mt + 1
                a.e(f"v_mul_f32 v{AB+2*mt}, {f32(GC1)}, v{r}"); a.e(f"v_mul_f32 v{AB+2*mt+1}, v{r}, v{r}")
                a.e(f"v_mul_f32 v{AB+2*mt+1}, v{AB+2*mt+1}, v{AB+2*mt}"); a.e(f"v_mul_f32 v{AB+2*mt+1}, {f32(0.044715)}, v{AB+2*mt+1}")
                a.e(f"v_rcp_f32 v{r}, v{r}")
        def act(mt, nt):
            A = A_(mt, nt); P_ = [(A, tp), (A + 2, tp + 2)]; L_ = vr(lns + 2 * mt, 2); K_ = vr(AB + 2 * mt, 2)
            if which == 3: L_ = vr(lns + 4 * mt, 2); K_ = vr(lns + 4 * mt + 2, 2)
            for h in range(2):
                a.e(f"v_pk_fma_f32 {vr(A+2*h,2)}, {L_}, {vr(cs+4*nt+2*h,2)}, {vr(A+2*h,2)} op_sel_hi:[0,1,1] neg_lo:[1,0,0] neg_hi:[1,0,0]")
            for x, u in P_: a.e(f"v_pk_mul_f32 {vr(u,2)}, {vr(x,2)}, {vr(x,2)}")
            for x, u in P_: a.e(f"v_pk_fma_f32 {vr(u,2)}, {vr(u,2)}, {K_}, {K_} op_sel:[0,1,0] op_sel_hi:[1,1,0]")
            for x, u in P_: a.e(f"v_pk_mul_f32 {vr(u,2)}, {vr(u,2)}, {vr(x,2)}")
            for i in range(4): a.e(f"v_exp_f32 v{tp+i}, v{tp+i}")
            for x, u in P_: a.e(f"v_pk_fma_f32 {vr(u,2)}, {vr(u,2)}, {L_}, {L_} op_sel:[0,1,1] op_sel_hi:[1,1,1]")
            for i in range(4): a.e(f"v_rcp_f32 v{tp+i}, v{tp+i}")
            for x, u in P_: a.e(f"v_pk_mul_f32 {vr(x,2)}, {vr(x,2)}, {vr(u,2)}")
        def egroup(par, mt, nts, dst=None):
            for nt in nts: act(mt, nt)
            T = par * NT + nts[0]; P = (T >> 1) - ((par * NT) >> 1); B = A_(mt, nts[0]); D = B if dst is None else dst
            for k in range(2 * len(nts)): a.e(f"v_cvt_pk_bf16_f32 v{D+k}, v{B+2*k}, v{B+2*k+1}")
            if which == 3 and (mt < 3 or "3" in DP or V3) and "1" in DP: mark(a, D, 1)
            if which == 1: mark(a, D, 0)
            if which == 3: return [f"s_add_u32 s36, s{44+P}, {mt*224*1024}", f"buffer_store_dwordx4 {vr(B,4)}, v{l16}, s[16:19], s36 offen {SC}"]
            return [f"buffer_store_dwordx4 {vr(B,4)}, v{so}, s[16:19], s{39+P} offen offset:{mt*256} {SC}"]
        def body(par):
            if which == 1: gs = [(0, 1), (2, 3)]
            else: gs = [(0, 1), (2, 3), (4, 5), (6,)] if par == 0 else [(1, 2), (3, 4), (5, 6), (0,)]
            k = 0; pend = []; sent = 0
            for gi_, g_ in enumerate(gs):
                for mt in range(MT):
                    if which == 3 and k == C0PUB:
                        a.e(f"s_waitcnt vmcnt({sent - 4})"); a.e("s_mov_b64 exec, 1"); a.e(f"ds_add_u32 v{EA+2}, v{EA+1}"); a.e("s_mov_b64 exec, -1"); mstamp(a)
                    if which == 1 and R2K and k == R2K:
                        for x in r2_: a.e(x)
                    if which == 3 and k == RK:
                        b_ = Rec(); r_pre(b_); l_ = [x for x in b_.l if x.startswith(("buffer", "s_mov_b32 s78"))]
                        a.e("s_cmp_eq_u32 s60, 1"); a.e(f"s_cbranch_scc1 G4_p1{par}")
                        for x in l_: a.e(x)
                        a.e(f"s_branch G4_p2{par}"); a.e(f"G4_p1{par}:")
                        for x in last_res(): a.e(x)
                        a.e(f"G4_p2{par}:")
                        if 4 <= k < C0PUB: sent += 8
                    st_ = egroup(par, mt, g_, None if gi_ < 2 else C2R + 4 * mt if gi_ == 2 else C2R + 16 + 2 * mt); k += 1
                    if which == 3 and gi_ < 3:
                        a.e(f"ds_write_b128 v{EA}, {vr(A_(mt, g_[0]) if gi_ < 2 else C2R + 4 * mt, 4)} offset:{gi_*16384 + mt*2048}")
                    if gi_ < 2: pend.append(st_)
                    n = len(pend) if (which == 1 or k <= 4 or k == 16) else 0 if k <= STQ else min(1, len(pend))
                    for _ in range(n):
                        for x in pend.pop(0): a.e(x)
                        sent += 1
            if which == 3:
                a.e("s_waitcnt lgkmcnt(0)")
                if par == 0: a.e("s_mov_b32 s44, s46"); a.e("s_mov_b32 s45, s47")
                else: a.e("s_add_u32 s45, s44, 512"); a.e("s_mov_b32 s44, s47")
        a.e("s_waitcnt lgkmcnt(0)")
        consts()
        if which == 3:
            a.e("s_cmp_eq_u32 s35, 1"); a.e(f"s_cbranch_scc1 {nm}_e1")
            body(0); a.e(f"s_branch {nm}_e2"); a.e(f"{nm}_e1:"); body(1); a.e(f"{nm}_e2:")
        else: body(0)
    if which == 2:
        xf = v(2, 2); S = v(2 * MT, 2); pp = v(2, 2); mn = v(2, 2)
        for mt in range(MT):
            a.e(f"s_add_u32 s36, s39, {mt*65536}")
            for p in range(NT // 2):
                R = res + (mt * (NT // 2) + p) * 4
                for e in range(4):
                    X = A_(mt, 2 * p) + 2 * e
                    a.e(f"v_cvt_pk_bf16_f32 v{R+e}, v{X}, v{X+1}")
                if DP: mark(a, R, 0)
                a.e(f"buffer_store_dwordx4 {vr(R,4)}, v{l16}, s[16:19], s36 offen offset:{p*1024} {SC}")
        if which in DL: a.e("s_barrier")
        if OWN3:
            a.e("s_lshl_b32 s36, s37, 11"); a.e(f"v_add_u32 v{t2}, s36, v{l16}")
            for i in range(4): a.e(f"ds_write_b128 v{t2}, {vr(res+4*i,4)} offset:{1024*i}")
        for i in range(MT * NT * 2): unpack(a, acc + 2 * i, acc + 2 * i + 1, res + i)
        mstamp(a)
        publish(a, which, 4, pt)
        if B0E: a.e("s_waitcnt lgkmcnt(0)"); a.e("s_barrier")
        mstamp(a)
        for mt in range(MT):
            B = A_(mt, 0); Sm = S + 2 * mt
            a.e(f"v_pk_add_f32 {vr(pp,2)}, {vr(B,2)}, {vr(B+2,2)}"); a.e(f"v_pk_mul_f32 {vr(xf,2)}, {vr(B,2)}, {vr(B,2)}")
            for i in range(1, NT * 2):
                if i > 1: a.e(f"v_pk_add_f32 {vr(pp,2)}, {vr(pp,2)}, {vr(B+2*i,2)}")
                a.e(f"v_pk_fma_f32 {vr(xf,2)}, {vr(B+2*i,2)}, {vr(B+2*i,2)}, {vr(xf,2)}")
            a.e(f"v_add_f32 v{Sm}, v{pp}, v{pp+1}"); a.e(f"v_add_f32 v{Sm+1}, v{xf}, v{xf+1}")
            for op in ("v_permlane16_swap_b32", "v_permlane32_swap_b32"):
                for k in range(2): a.e(f"v_mov_b32 v{pp+k}, v{Sm+k}")
                for k in range(2): a.e(f"{op} v{Sm+k}, v{pp+k}")
                a.e(f"v_pk_add_f32 {vr(Sm,2)}, {vr(Sm,2)}, {vr(pp,2)}")
        a.e(f"v_cmp_eq_u32 vcc, 0, v{G}"); a.e(f"v_cndmask_b32 v{S}, v{S+2}, v{S}, vcc"); a.e(f"v_cndmask_b32 v{S+1}, v{S+3}, v{S+1}, vcc")
        spread(a, 40, 29); a.e("s_lshl_b32 s36, s34, 8"); a.e("s_add_u32 s40, s40, s36")
        a.e(f"v_lshlrev_b32 v{t2}, 3, v{lane}")
        a.e("s_bfm_b64 exec, 32, 0")
        a.e(f"buffer_store_dwordx2 {vr(S,2)}, v{t2}, s[44:47], s40 offen {SC}")
        a.e("s_mov_b64 exec, -1")
    if which == 4:
        for mt in range(MT):
            a.e(f"s_add_u32 s36, s39, {mt*65536}")
            for p in range(NT // 2):
                B = A_(mt, 2 * p)
                for e in range(4): a.e(f"v_cvt_pk_bf16_f32 v{B+e}, v{B+2*e}, v{B+2*e+1}")
                if "r" in DP: mark(a, B, 1)
                a.e(f"buffer_store_dwordx4 {vr(B,4)}, v{l16}, s[16:19], s36 offen offset:{p*1024} {SC}")
    if which != 2:
        if which in DL: a.e("s_barrier")
        mstamp(a)
        if which == 4 and "r" not in DP: publish(a, which, 4, pt)
        mstamp(a)
    if which == 4:
        a.e("s_branch NEXT")
        a.e("G4_last:")
        PX = 208; oa = 224; xf = 226
        group(fX, reads(fY, 1), 0, [(f"s_load_dwordx2 s[6:7], s[0:1], {D_OUT}", 9)], XW)
        a.e("s_waitcnt lgkmcnt(0)")
        b = Rec()
        lsrd(b, 16, oX1P if "f" in DP else MB, XSZ)
        b.srd(20, 6, 4 * MB)
        if "f" not in DP:
            b.e("s_lshl_b32 s44, s29, 2"); b.e("s_add_u32 s44, s44, s30"); b.e("s_lshl_b32 s44, s44, 7"); b.e("s_xor_b32 s45, s44, 4096")
            b.e("s_add_u32 s44, s44, s55"); b.e(f"s_add_u32 s44, s44, {oFP}"); b.e("s_add_u32 s45, s45, s55"); b.e(f"s_add_u32 s45, s45, {oFP}")
            b.e(f"v_mov_b32 v{pt+1}, s45"); b.e(f"v_mov_b32 v{pt+2}, s52"); b.e(f"v_mov_b32 v{pt+3}, 0")
        else: b.e("s_add_u32 s44, s40, 65536")
        b.e("s_lshl_b32 s46, s28, 3"); b.e("s_add_u32 s46, s46, s37"); b.e("s_lshl_b32 s47, s31, 1"); b.e("s_add_u32 s46, s46, s47"); b.e("s_lshl_b32 s46, s46, 15")
        b.e("s_lshl_b32 s47, s38, 5"); b.e("s_add_u32 s46, s46, s47"); b.e(f"s_add_u32 s47, s46, {16*2048}")
        b.e(f"v_and_b32 v{oa+1}, 1, v{G}"); b.e(f"v_lshlrev_b32 v{oa}, 11, v{J}"); b.e(f"v_lshl_add_u32 v{oa}, v{oa+1}, 5, v{oa}")
        b.e(f"v_lshrrev_b32 v{oa+1}, 1, v{G}"); b.e(f"v_lshl_add_u32 v{oa}, v{oa+1}, 4, v{oa}")
        FULLN = os.environ.get("FULLN", "1") == "1"
        if FULLN:
            b.e(f"v_lshrrev_b32 v{oa+1}, 3, v{J}"); b.e(f"v_mul_u32_u24 v{oa+1}, {8*2048 - 64}, v{oa+1}"); b.e(f"v_sub_u32 v{oa}, v{oa}, v{oa+1}")
            b.e(f"v_add_u32 v{oa+1}, {8*2048}, v{oa}")
        OT = int(os.environ.get("OT", "0"))
        if OT == 1: b.e("s_mov_b64 exec, 1"); b.e(f"buffer_load_dword v{xf}, v{oa}, s[20:23], s46 offen {SC}"); b.e("s_mov_b64 exec, -1")
        if OT == 2:
            for k in range(4): b.e(f"buffer_load_dword v{xf}, v{oa+(k&1)}, s[20:23], s{46+(k>>1)} offen {SC}")
        group(fY, [], 0, b.l)
        mstamp(a)
        def send(m0_):
            for i in range(2):
                a.e(f"s_add_u32 s36, s41, {i*65536}")
                for p in range(2):
                    B = A_(m0_ + i, 2 * p)
                    for e in range(4): a.e(f"v_cvt_pk_bf16_f32 v{B+e}, v{B+2*e}, v{B+2*e+1}")
                    if "f" in DP: mark(a, B, 1)
                    a.e(f"buffer_store_dwordx4 {vr(B,4)}, v{l16}, s[16:19], s36 offen offset:{p*1024} {SC}")
        a.e("s_cmp_eq_u32 s31, 0"); a.e("s_cbranch_scc1 G4_k0")
        send(0)
        for i in range(0, 32, 2): a.e(f"v_pk_mov_b32 {vr(acc+i,2)}, {vr(acc+32+i,2)}, {vr(acc+32+i,2)} op_sel:[0,1]")
        a.e("s_branch G4_k1")
        a.e("G4_k0:")
        send(2)
        a.e("G4_k1:")
        a.e("s_mov_b32 s78, 0x3f80"); a.e("s_mov_b32 s79, 0x3f800000")
        def addp(k, R):
            B = A_(k >> 1, 2 * (k & 1))
            if DOT:
                for e in range(8): a.e(f"v_dot2_f32_bf16 v{B+e}, v{R+e//2}, s{78+(e&1)}, v{B+e}")
                return
            for e in range(4):
                unpack(a, xf + 2 * (e & 1), xf + 1 + 2 * (e & 1), R + e)
                a.e(f"v_pk_add_f32 {vr(B+2*e,2)}, {vr(B+2*e,2)}, {vr(xf+2*(e&1),2)}")
        for k in range(4): addp(k, RX[2 * k])
        if "f" not in DP:
            a.e("s_waitcnt vmcnt(0)")
            a.e("s_mov_b64 exec, 1"); a.e(f"buffer_store_dword v{pt+2}, v{pt+3}, s[56:59], s44 offen {SC}"); a.e("s_mov_b64 exec, -1")
        mstamp(a)
        for k in range(4): addp(k, RX[2 * k + 1])
        if "f" in DP:
            data_poll(a, [f"buffer_load_dwordx4 {vr(PX+4*(2*i+p),4)}, v{l16}, s[16:19], s{(40, 44)[i]} offen offset:{p*1024} {os.environ.get('FF', SC)}" for i in range(2) for p in range(2)],
                      [PX + 4 * k for k in range(4)], t, int(os.environ.get("FNAP", "2")), 0, int(os.environ.get("FCAN", "0")))
            mstamp(a)
        else:
            poll_core(a, pt, [pt + 1], 1, nap=2)
            mstamp(a)
            for i in range(2):
                a.e(f"s_add_u32 s36, s40, {i*65536}")
                for p in range(2): a.e(f"buffer_load_dwordx4 {vr(PX+4*(2*i+p),4)}, v{l16}, s[16:19], s36 offen offset:{p*1024} {SC}")
        for k in range(4):
            if "f" not in DP: a.e(f"s_waitcnt vmcnt({3 - (k & 1) if FULLN else 3})")
            addp(k, PX + 4 * k)
            B = A_(k >> 1, 2 * (k & 1))
            if os.environ.get("EPS"):
                for e in range(8): a.e(f"v_mul_f32 v{B+e}, {f32(1 + float(os.environ['EPS']) * (1 if e & 1 else -1))}, v{B+e}")
            for e in range(4): a.e(f"v_cvt_pk_bf16_f32 v{B+e}, v{B+2*e}, v{B+2*e+1}")
            for e in range(2): a.e(f"v_permlane16_swap_b32 v{B+e}, v{B+2+e}")
            if not FULLN: a.e(f"buffer_store_dwordx4 {vr(B,4)}, v{oa}, s[20:23], s{46+(k>>1)} offen offset:{64*(k&1)} {os.environ.get('OS', '')}")
            elif k & 1:
                X, Y, T = B - 8, B, B + 4
                for e in range(4): a.e(f"v_mov_b32 v{T+e}, v{X+e}")
                for e in range(4): a.e(f"v_mov_b32_dpp v{X+e}, v{Y+e} row_ror:8 row_mask:0xf bank_mask:0xc")
                for e in range(4): a.e(f"v_mov_b32_dpp v{Y+e}, v{T+e} row_ror:8 row_mask:0xf bank_mask:0x3")
                a.e(f"buffer_store_dwordx4 {vr(X,4)}, v{oa}, s[20:23], s{46+(k>>1)} offen {os.environ.get('OS', SC)}")
                a.e(f"buffer_store_dwordx4 {vr(Y,4)}, v{oa+1}, s[20:23], s{46+(k>>1)} offen {os.environ.get('OS', SC)}")
        a.e("s_branch K_fin")
    assert v.hi <= {1: RES2, 2: RES2, 3: RYY, 4: 176}[which], v.hi
    return v.hi

def k_mega(a):
    nm = KNAME; a.begin_kernel(nm)
    a.e("s_cmp_ge_u32 s2, 256"); a.e("s_cbranch_scc1 K_end")
    a.e(f"s_load_dwordx8 s[8:15], s[0:1], {A_K}")
    if FAST:
        if STAMP: a.e("s_memrealtime s[46:47]")
        front_first(a)
    a.e(f"s_load_dwordx2 s[6:7], s[0:1], {A_Q}"); a.e(f"s_load_dwordx8 s[68:75], s[0:1], {B_W1}")
    a.e(f"s_load_dwordx2 s[4:5], s[0:1], {D_WS}"); a.e(f"s_load_dwordx2 s[84:85], s[0:1], {D_DBG}")
    if not (FAST and STAMP): a.e("s_memrealtime s[46:47]")
    a.e(f"s_load_dwordx2 s[96:97], s[0:1], {A_SSMD}")
    a.e("v_lshrrev_b32 v1, 6, v0"); a.e("v_readfirstlane_b32 s30, v1")
    if CODEPF:
        a.e("s_getpc_b64 s[48:49]"); a.e("K_pc:")
        a.e("s_lshr_b32 s36, s2, 3"); a.e("s_lshl_b32 s36, s36, 11")
        a.e("v_lshlrev_b32 v4, 2, v0"); a.e("v_add_u32 v4, s36, v4")
        a.e("v_cmp_gt_u32 vcc, K_end-K_pc-8, v4"); a.e("s_and_saveexec_b64 s[36:37], vcc"); a.e("s_cbranch_execz K_3")
        a.e("v_mov_b32 v5, s49"); a.e("v_add_co_u32 v4, vcc, s48, v4"); a.e("v_addc_co_u32 v5, vcc, 0, v5, vcc")
        a.e("global_load_dword v250, v[4:5], off")
        a.e("K_3:"); a.e("s_mov_b64 exec, -1")
    for _ in range(int(os.environ.get("SDELAY", "0"))): a.e("s_sleep 127")
    front_loads(a)
    a.e("v_and_b32 v1, 63, v0"); a.e("v_lshlrev_b32 v2, 4, v1"); a.e("v_lshlrev_b32 v3, 2, v1")
    a.e("s_mov_b32 s67, 0")
    a.e("s_mov_b32 s60, 0"); a.e("s_mov_b32 s61, 40000"); a.e("s_mov_b32 s52, 0")
    a.e("s_mov_b32 s55, 0"); a.e("s_mov_b32 s92, 0"); a.e("s_mov_b32 s93, 0"); a.e("s_mov_b32 s94, 0")
    a.srd(56, 4, HSB)
    if os.environ.get("FIXT"): a.e("s_mov_b32 s101, s46")
    a.e(f"s_add_u32 s62, s4, {LB0}"); a.e("s_addc_u32 s63, s5, 0")
    if STAMP:
        a.e("s_mov_b32 s66, 1"); a.e("v_mov_b32 v255, -1"); a.e("s_mov_b32 s95, 0"); a.e("v_writelane_b32 v255, s46, 0")
    mstamp(a)
    if os.environ.get("WBENCH"):
        a.e("s_waitcnt vmcnt(0)"); a.e("s_barrier")
        a.e("s_cmp_lt_u32 s30, 6"); a.e("s_cbranch_scc1 WB_end")
        for w in (1, 2, 3, 4):
            mstamp(a); w_setup(a, w); a.e("s_waitcnt vmcnt(0)"); mstamp(a); a.e("s_sleep 40")
        a.e("WB_end:"); a.e("s_branch K_dump")
    front_a(a); mstamp(a)
    for r in range(238, 248): a.e(f"v_mov_b32 v{r}, 0")
    a.e("s_cmp_ge_u32 s30, 4"); a.e("s_cbranch_scc1 FR_b")
    front_conv(a); hi = 0
    mstamp(a)
    front_arrive(a, True, True)
    if os.environ.get("EPR"): a.e("s_setprio 0")
    a.e("s_branch FR_end")
    a.e("FR_b:")
    front_b(a)
    a.e("FR_end:")
    mstamp(a)
    a.e("LAYER:")
    if os.environ.get("XDELAY"): a.e(f"s_sleep {os.environ['XDELAY']}")
    hi = max(hi, r_stage(a, False))
    mstamp(a)
    a.e("s_cmp_ge_u32 s30, 4"); a.e("s_cbranch_scc1 LOADERS")
    if CPRIO: a.e(f"s_setprio {CPRIO}")
    for w in (1, 2, 3, 4):
        a.lines.append(f"; ---- G{w}: compute waves (set-up, K loop, epilogue, publish)")
        hi = max(hi, g_compute(a, w))
    a.e("LOADERS:")
    park_rest(a, True)
    if SB[2]:
        a.e("s_cmp_lg_u32 s60, 0"); a.e("s_cbranch_scc1 LD_0"); sb(a, SB[2]); a.e("LD_0:")
    if PRIO: a.e(f"s_setprio {PRIO}")
    a.e("s_cmp_ge_u32 s30, 6"); a.e("s_cbranch_scc1 WLOAD")
    for w in (1, 2, 3, 4): a_loader(a, w)
    a.e("s_branch NEXT")
    a.e("WLOAD:")
    a.e("s_cmp_eq_u32 s60, 1"); a.e("s_cbranch_scc1 WL_1")
    w_setup(a, 1, pre=False); w1_slots(a, range(9 - W1G), pace=12); mstamp(a)
    a.e("s_branch WL_2")
    a.e("WL_1:")
    w_setup(a, 1, pre=False); w1_slots(a, range(3 - W1L), pace=12)
    a.e("WL_2:")
    for w in (1, 2, 3, 4):
        w_loader(a, w)
        if w == 2:
            c = CFG[3]; w_setup(a, 3, pre=False); n_ = 3 if W33 else 2; a.e(f"s_mov_b32 s42, {(c['S0'] + n_) % c['NW'] * c['STB']}"); a.e(f"s_mov_b32 s44, {n_}")
        if w == 3: w_setup(a, 4)
    a.e("NEXT:")
    a.e("s_setprio 0")
    a.e("s_add_u32 s60, s60, 1"); a.e(f"s_add_u32 s55, s55, {LSTR}")
    a.e(f"s_add_u32 s62, s62, {LSTR}"); a.e("s_addc_u32 s63, s63, 0")
    a.e("s_branch LAYER")
    a.e("K_fin:")
    if os.environ.get("FIXT"):
        a.e("FX_l:"); a.e("s_sleep 4"); a.e("s_memrealtime s[64:65]"); a.e("s_waitcnt lgkmcnt(0)"); a.e("s_sub_u32 s64, s64, s101")
        if os.environ.get("FIX0"): a.e("s_add_u32 s64, s64, s101"); a.e("s_lshl_b32 s64, s64, 6"); a.e("s_sub_u32 s64, s64, s52"); a.e("s_lshr_b32 s64, s64, 6")
        a.e(f"s_cmp_lt_u32 s64, {os.environ['FIXT']}"); a.e("s_cbranch_scc1 FX_l")
    if STAMP:
        a.e("K_dump:")
        a.e("s_waitcnt vmcnt(0)")
        mstamp(a)
        a.srd(96, 4, 16 * MB, off=200 * MB)
        a.e("s_lshl_b32 s66, s2, 3"); a.e("s_add_u32 s66, s66, s30"); a.e("s_lshl_b32 s66, s66, 8")
        a.e("v_writelane_b32 v255, s95, 63")
        a.e("buffer_store_dword v255, v3, s[96:99], s66 offen")
        if os.environ.get("DBGOUT"):
            a.e("s_cmp_lg_u32 s66, 0"); a.e("s_cbranch_scc1 K_end")
            a.e(f"s_load_dwordx2 s[96:97], s[0:1], {D_DBG}"); a.e("s_mov_b32 s98, 64"); a.e("s_waitcnt lgkmcnt(0)")
            a.e("v_readlane_b32 s64, v255, 0"); a.e("v_mov_b32 v10, 0")
            for i, j in enumerate(eval(os.environ["DBGOUT"])):
                a.e(f"v_readlane_b32 s65, v255, {j}"); a.e("s_sub_u32 s65, s65, s64"); a.e("v_mov_b32 v11, s65")
                a.e(f"buffer_store_dword v11, v10, s[96:99], 0 offen offset:{8+4*i}")
    a.e("s_endpgm")
    emit_subs(a)
    a.e("K_end:")
    assert hi <= PV
    a.end_kernel(nm, 256)
    if TAB: tab_data(a)
    a.launches.append(f"; @launch grid=(256,1,1) block=(512,1,1) lds={LDS_TOTAL}")

HEADER = open(HERE + "/../interleave_layers__ssm_conv_h3__mixer_s_mlp__prompt.s.ref").read().split("; Override launch")[0]
DOC = """; One persistent kernel, 256 workgroups x 8 waves (one per CU), generated by dev/gen43.py.
"""
def main(out):
    a = Asm()
    k_mega(a)
    DS = os.environ.get("DS")
    if DS:
        o = []
        for l in a.lines:
            o.append(l)
            if "buffer_store_dwordx" in l and "sc1" in l and any(k in l for k in DS.split(",")): o.append(l.replace(" sc1", ""))
        a.lines = o
    notes = {
        "K_pc:": "each workgroup reads 2 KB of this kernel's code so that later instruction fetches are served on chip",
        "KV_t0:": "k / v / tap loads of the u^T tile (64 times x 128 channels); workgroup 0 has posted the launch tag (a clock value) in d_debug",
        "HB_2:": "u^T tile out, arrival counters initialised to the tag, roles, shifted filter copies into LDS",
        "CV_w:": "long causal convolution as Toeplitz MFMAs, one channel per wave",
        "FR_b:": "waves 4-7 beside the convolution: memory-locality vote (timed loads, layout choice only), weight column sums, weight touches",
        "LAYER:": "row stage: residual sums, LayerNorm chain, x + LN(x)*y for 8 rows per workgroup",
        "LOADERS:": "waves 4,5: LayerNorm scalars / column sums; activation tiles of G3, G4 by LDS-DMA (after the producers' counters are complete)",
        "WLOAD:": "waves 6,7: weight tiles by LDS-DMA in their original layout (read back with transposing LDS loads)",
        "G4_last:": "last layer: the two K halves exchange half tiles, add the residuals and write the output",
    }
    o = []
    for l in a.lines:
        if l.strip() in notes: o.append("; ---- " + notes[l.strip()])
        if l.strip().startswith("s_sleep"): l += "    ; back-off of a wave that waits for another workgroup or wave"
        o.append(l)
    a.lines = o
    open(out, "w").write(a.text(HEADER + DOC))
    print("nops added:", a.nops_added)

if __name__ == "__main__":
    main(sys.argv[1] if len(sys.argv) > 1 else "interleave_layers__ssm_conv_h3__mixer_s_mlp__prompt.s")
```

```python
import sys, os, math, struct
HERE = os.path.dirname(os.path.abspath(__file__)); sys.path.insert(0, HERE)
from asmgen import Asm

KNAME = "interleave_layers__ssm_conv_h3__mixer_s_mlp__prompt_kernel"
MB = 1 << 20
UT, Y = 24 * MB, 28 * MB
CSP = {1: 20 * MB, 3: 20 * MB + 128 * 1024}
A_Q, A_K, A_V, A_SH, A_SSMK, A_SSMD, B_X, B_W1, B_W2, B_W3, B_W4, D_OUT, D_DBG, D_WS = [8 * i for i in range(14)]
STAMP = int(os.environ.get("STAMP", "0"))
def f32(x): return "0x%08x" % struct.unpack("<I", struct.pack("<f", x))[0]
GC1 = -2.0 * math.sqrt(2.0 / math.pi) * math.log2(math.e)
GC2 = GC1 * 0.044715

class VA:
    def __init__(self, start=1): self.n = start; self.hi = start
    def __call__(self, cnt=1, al=None):
        if al is None: al = 2 if cnt > 1 else 1
        self.n = (self.n + al - 1) // al * al
        r = self.n; self.n += cnt; self.hi = max(self.hi, self.n); return r
def vr(b, n): return f"v[{b}:{b+n-1}]" if n > 1 else f"v{b}"

def unpack(a, lo, hi, src):
    a.e(f"v_lshlrev_b32 v{lo}, 16, v{src}")
    a.e(f"v_and_b32 v{hi}, 0xffff0000, v{src}")
RND = int(os.environ.get("RND", "0"))
def round2(a, x, y, tmp):
    if not RND: return
    a.e(f"v_cvt_pk_bf16_f32 v{tmp}, v{x}, v{y}")
    unpack(a, x, y, tmp)
def round1(a, x):
    if not RND: return
    a.e(f"v_cvt_pk_bf16_f32 v{x}, v{x}, v{x}")
    a.e(f"v_lshlrev_b32 v{x}, 16, v{x}")
def red_g(a, x, t):
    a.e(f"v_mov_b32 v{t}, v{x}"); a.e(f"v_permlane16_swap_b32 v{x}, v{t}"); a.e(f"v_add_f32 v{x}, v{x}, v{t}")
    a.e(f"v_mov_b32 v{t}, v{x}"); a.e(f"v_permlane32_swap_b32 v{x}, v{t}"); a.e(f"v_add_f32 v{x}, v{x}, v{t}")
def ln_finish(a, mean, var, rs, s=None):
    round1(a, mean); round1(a, var)
    a.e(f"v_add_f32 v{var}, {f32(1e-5)}, v{var}"); round1(a, var)
    if not RND and s is None: a.e(f"v_rsq_f32 v{rs}, v{var}"); return
    a.e(f"v_sqrt_f32 v{var}, v{var}"); round1(a, var)
    if s is not None: a.e(f"v_mov_b32 v{s}, v{var}")
    a.e(f"v_rcp_f32 v{rs}, v{var}")


FLG = 22 * MB + int(os.environ.get("FOFF", "0"))
LB0, LSTR, GSTR = 32 * MB, 4 * MB, 16 * MB
oH2 = 4 * MB; oSM = oH2 + 1792 * 1024; oFP = 16384; oST2 = oSM + 32768; oLNS = oSM + 65536
oX3, oX1P, oP0, oP1 = [i * 512 * 1024 for i in range(4)]
DP = os.environ.get("DP", "rf12")
if "r" in DP: oP0, oP1 = oX3, oX1P
def mark(a, r, bit): a.e(f"v_or_b32 v{r}, 1, v{r}" if bit else f"v_and_b32 v{r}, -2, v{r}")
V3 = int(os.environ.get("V3", "0"))
DOT = int(os.environ.get("DOT", "1"))
def data_poll(a, loads, regs, t, nap, first=0, canary=False):
    L = a.lab("dp"); D = a.lab("dq")
    if canary:
        a.e("s_bfm_b64 exec, 1, 63"); data_poll(a, loads, regs, t, nap, first); a.e("s_mov_b64 exec, -1"); first = 0
    a.e("s_mov_b32 s53, 0")
    if first:
        f2 = int(os.environ.get("RFIRST2", "10"))
        if f2: a.e(f"s_sleep {f2}")
        a.e(f"s_cmp_ge_u32 s30, {os.environ.get('RW2', '6')}"); a.e(f"s_cbranch_scc1 {L}"); a.e(f"s_sleep {first - f2}")
    a.e(f"{L}:")
    for x in loads: a.e(x)
    a.e("s_waitcnt vmcnt(0)")
    a.e(f"v_bitop3_b32 v{t}, v{regs[0]}, v{regs[1]}, v{regs[2]} bitop3:0x80"); a.e(f"v_bitop3_b32 v{t}, v{t}, v{regs[3]}, 1 bitop3:0x80")
    a.e(f"v_cmp_eq_u32 vcc, 0, v{t}"); a.e(f"s_cbranch_vccz {D}")
    a.e(f"s_sleep {nap}")
    a.e("s_add_u32 s53, s53, 1"); a.e("s_cmp_lt_u32 s53, s61"); a.e(f"s_cbranch_scc1 {L}")
    a.e("s_mov_b32 s61, 0")
    a.e(f"{D}:")
XSZ = 512 * 1024 - 8192; H2SZ = 1792 * 1024 - 8192
HSB = 160 * MB; PITCH = 65536 + int(os.environ.get("SKEW", "0")); oHS = MB
def fso(stage): return int(stage * 256)
def spread(a, d, src):
    a.e(f"s_lshr_b32 s53, s{src}, 3"); a.e("s_lshl_b32 s53, s53, 14"); a.e(f"s_and_b32 s{d}, s{src}, 7"); a.e(f"s_lshl_b32 s{d}, s{d}, 10"); a.e(f"s_add_u32 s{d}, s{d}, s53")
ST_R, ST_G1, ST_G2, ST_G3, ST_G4, ST_R2, ST_G3B, ST_G3A = range(8); ST_G2S = 5.5
F_KVT, F_FRONT, F_CS = FLG, FLG + 32768, FLG + 53248; F_VOTE = F_FRONT + 16384; F_RES = F_VOTE
LDS_TOTAL = 163840
AUX = LDS_TOTAL - 4096
SC = "sc1"
PSLEEP = int(os.environ.get("PSLEEP", "5"))
ROT = int(os.environ.get("ROT", "1"))
PACE = int(os.environ.get("PACE", "8"))
PDEPTH = int(os.environ.get("PDEPTH", "1"))
WROT = int(os.environ.get("WROT", "1"))
PRIO = int(os.environ.get("PRIO", "0"))
STQ = int(os.environ.get("STQ", "12"))
CPRIO = int(os.environ.get("CPRIO", "1"))
FSLEEP = int(os.environ.get("FSLEEP", "6"))
CSPRIO = int(os.environ.get("CSPRIO", "1"))
NT = os.environ.get("NT", "nt"); HALO = int(os.environ.get("HALO", "0")); NTK = os.environ.get("NTK", "" if HALO else NT); NTH = os.environ.get("NTH", NT)
W1F = int(os.environ.get("W1F", "7"))
WSC = eval(os.environ.get("WSC", "{}"))
TLBW = int(os.environ.get("TLBW", "0"))
T12 = eval(os.environ.get("T12", "{}"))
T23 = eval(os.environ.get("T23", "()"))
OWN3 = int(os.environ.get("OWN3", "1"))
PUB2 = int(os.environ.get("PUB2", "4"))
MAP = int(os.environ.get("MAP", "4"))
HSPLIT = int(os.environ.get("HSPLIT", "4"))
W1G = int(os.environ.get("W1G", "9"))
PWAIT = int(os.environ.get("PWAIT", "8"))
DL = eval(os.environ.get("DL", "[2,4]"))
PACES = eval(os.environ.get("PACES", "{4:8}"))
C0PUB = int(os.environ.get("C0PUB", "6"))
LNSL = AUX + 1024

CFG = {1: dict(WM=4, WN=1, MT=2, NT=4, KBT=32, NS=16, NA=1.5, NW=16, A=oX3, W=B_W1, LDW=2048),
       2: dict(WM=4, WN=1, MT=2, NT=4, KBT=32, NS=16, NA=0, NW=16, A=oHS, W=B_W2, LDW=2048),
       3: dict(WM=2, WN=2, MT=4, NT=7, KBT=32, NS=16, NA=3, NW=3, A=oX1P, W=B_W3, LDW=7168, NPRE=2, WR=1, S0=2, WB=73728),
       4: dict(WM=2, WN=2, MT=4, NT=4, KBT=112, NS=28, NA=3, NW=6, A=oH2, W=B_W4, LDW=2048)}
for w, d in eval(os.environ.get("CFG", "{}")).items(): CFG[w].update(d)
for c in CFG.values():
    c.setdefault("NPRE", c["NW"]); c.setdefault("APRE", min(c["NA"], 3)); c.setdefault("WR", 1)
    c["TN16"] = c["WN"] * c["NT"]; c["STB"] = c["TN16"] * 2048; c.setdefault("WB", int(c["NA"] * 16384)); c.setdefault("S0", 0)
    c["RB"] = c["TN16"] * 32
    assert c["WB"] + c["NW"] * c["STB"] <= AUX
NX = 0
def nib(t): return sum(x << (4 * i) for i, x in enumerate(t))
CSO = {1: AUX + 3584, 3: AUX}

LW = AUX + 3072
def mstamp(a, force=False):
    if os.environ.get("JIT"):
        X = a.lab("jit")
        a.e("s_cselect_b32 s101, 1, 0"); a.e("s_memtime s[64:65]"); a.e("s_waitcnt lgkmcnt(0)"); a.e(f"s_and_b32 s64, s64, {os.environ['JIT']}"); a.e("s_cmp_lg_u32 s64, 0")
        a.e(f"s_cbranch_scc1 {X}"); a.e("s_sleep 50"); a.e(f"{X}:"); a.e("s_cmp_eq_u32 s101, 1")
        return
    if not STAMP or (os.environ.get("GST") and not force): return
    a.e(("s_memrealtime" if STAMP == 2 else "s_memtime") + " s[64:65]"); a.e("s_mov_b32 s100, m0"); a.e("s_mov_b32 m0, s66"); a.e("s_waitcnt lgkmcnt(0)")
    a.e("v_writelane_b32 v255, s64, m0"); a.e("s_mov_b32 m0, s100")
    a.e("s_add_u32 s66, s66, 1")

def lsrd(a, d, off, nbytes, prev=False):
    if prev:
        a.e(f"s_sub_u32 s{d}, s62, {LSTR - off:#x}"); a.e(f"s_subb_u32 s{d+1}, s63, 0")
        a.e(f"s_mov_b32 s{d+2}, {nbytes:#x}"); a.e(f"s_mov_b32 s{d+3}, 0x20000")
    else: a.srd(d, 62, nbytes, off=off)

def hs_srd(a, d):
    if "2" in DP: a.srd(d, 4, 128 * PITCH, off=HSB); return
    a.e("s_lshl_b32 s53, s60, 24"); a.e(f"s_add_u32 s53, s53, {HSB}")
    a.e(f"s_add_u32 s{d}, s4, s53"); a.e(f"s_addc_u32 s{d+1}, s5, 0"); a.e(f"s_mov_b32 s{d+2}, {128*PITCH}"); a.e(f"s_mov_b32 s{d+3}, 0x20000")

def group_off(a, d, m):
    a.e(f"s_lshr_b32 s53, s{m}, 3"); a.e("s_lshl_b32 s53, s53, 2"); a.e(f"s_and_b32 s54, s{m}, 3"); a.e("s_add_u32 s53, s53, s54"); a.e("s_lshl_b32 s53, s53, 24")
    a.e(f"s_lshr_b32 s54, s{m}, 2"); a.e("s_xor_b32 s54, s54, s94"); a.e("s_and_b32 s54, s54, 1"); a.e("s_lshl_b32 s54, s54, 13")
    a.e(f"s_add_u32 s{d}, s53, s54"); a.e(f"s_add_u32 s{d}, s{d}, {LB0}")

PV = 240
def poll_core(a, t, addrs, mask, extra=None, depth=1, cnt=0, nap=None):
    L = a.lab("poll"); D = a.lab("pok")
    n = len(addrs) + (1 if extra else 0)
    if depth > 1: t0 = t; regs = [PV + k * len(addrs) for k in range(depth)]; assert not extra and regs[-1] + len(addrs) <= 256
    else: regs = [t]
    def ld(r):
        for i, ad in enumerate(addrs): a.e(f"buffer_load_dword v{r+i}, v{ad}, s[56:59], 0 offen {SC}")
        if extra: a.e(extra[0])
    a.e("s_mov_b32 s53, 0"); a.e(f"s_add_u32 s54, s52, {cnt}")
    if mask != -1: a.e(f"s_bfm_b64 exec, {mask.bit_length()}, 0")
    for r in regs[:-1]: ld(r); a.e(f"s_sleep {PSLEEP}")
    a.e(f"{L}:")
    for k in range(depth):
        ld(regs[k - 1]); r = regs[k]
        a.e(f"s_waitcnt vmcnt({n*(depth-1)})")
        for i in range(len(addrs)): a.e(f"v_xor_b32 v{r+i}, s54, v{r+i}")
        for i in range(1, len(addrs)): a.e(f"v_or_b32 v{r}, v{r}, v{r+i}")
        if extra:
            for x in extra[1:]: a.e(x)
        a.e(f"v_cmp_eq_u32 vcc, 0, v{r}")
        a.e("s_cmp_eq_u64 vcc, exec"); a.e(f"s_cbranch_scc1 {D}")
        a.e(f"s_sleep {PSLEEP if nap is None else nap}")
    a.e("s_add_u32 s53, s53, 1"); a.e("s_cmp_lt_u32 s53, s61"); a.e(f"s_cbranch_scc1 {L}")
    a.e("s_mov_b32 s61, 0")
    a.e(f"{D}:")
    if mask != -1: a.e("s_mov_b64 exec, -1")

SPLIT = {ST_G1: "sign", ST_G3: "half", ST_G3A: "half", ST_G3B: "half"}
def flag_addr(a, r, stage, prev=False):
    so = fso(stage) - (LSTR if prev else 0)
    a.e(f"s_add_u32 s54, s55, {so & 0xffffffff:#x}")
    sp = SPLIT.get(stage)
    if sp == "half": a.e("s_lshl_b32 s53, s31, 7"); a.e("s_add_u32 s54, s54, s53")
    a.e(f"v_mov_b32 v{r}, s54")
    if sp == "sign":
        a.e("s_add_u32 s53, s54, 128"); a.e(f"v_writelane_b32 v{r}, s53, 1")
        a.e("s_add_u32 s53, s53, s93"); a.e(f"v_writelane_b32 v{r}, s53, 3")
        a.e("s_add_u32 s53, s54, s92"); a.e(f"v_writelane_b32 v{r}, s53, 2")
        return 0xf, 8
    return 1, 8 if sp else 16
def own_wait(a, stage, prev, t):
    if not PWAIT or stage == ST_R: return
    k = {ST_G1: 1, ST_G2: 2, ST_G4: 3}[stage] - (3 if prev else 0)
    a.e(f"s_mul_i32 s54, s60, {2 if 'r' in DP else 3}"); a.e(f"s_add_u32 s54, s54, {k}")
    lds_spin(a, LW + 56, "s54", t, nap=PWAIT)
def flag_try(a, r, ad):
    a.e("s_mov_b64 exec, 1"); a.e(f"buffer_load_dword v{r}, v{ad}, s[56:59], 0 offen {SC}"); a.e("s_mov_b64 exec, -1")
def flag_check(a, r, ad, cnt):
    D = a.lab("fok")
    a.e(f"v_readfirstlane_b32 s53, v{r}"); a.e(f"s_add_u32 s54, s52, {cnt}"); a.e("s_cmp_eq_u32 s53, s54"); a.e(f"s_cbranch_scc1 {D}")
    poll_core(a, r, [ad], 1, cnt=cnt)
    a.e(f"{D}:")

def poll(a, stage, t, prev=False):
    D = a.lab("pdone")
    a.e("s_cmp_lg_u32 s30, 4"); a.e(f"s_cbranch_scc1 {D}")
    own_wait(a, stage, prev, t)
    mask, cnt = flag_addr(a, t + 1, stage, prev)
    poll_core(a, t, [t + 1], mask, depth=PDEPTH, cnt=cnt)
    a.e(f"{D}:")
    if stage != ST_G4: mstamp(a)
    a.e("s_barrier")

def publish(a, stage, nw, t, off=None, wait=0, ctr=None, flag=False):
    D = a.lab("pub")
    mark = PWAIT and off is None and stage in (ST_G1, ST_G2, ST_G4)
    if off is None:
        a.e(f"s_add_u32 s53, s55, {fso(stage)}"); off = 53
        sp = SPLIT.get(stage)
        if sp == "half": a.e("s_lshl_b32 s54, s31, 7"); a.e("s_add_u32 s53, s53, s54")
        if sp == "sign": a.e("s_and_b32 s54, s29, 4"); a.e("s_lshl_b32 s54, s54, 5"); a.e("s_add_u32 s53, s53, s54")
    a.e(f"v_mov_b32 v{t}, 1"); a.e(f"v_mov_b32 v{t+1}, {LW + (ctr if ctr is not None else 4 if nw == 8 else 0)}"); a.e(f"v_mov_b32 v{t+3}, 0")
    a.e("s_mov_b64 exec, 1")
    if wait is not None: a.e(f"s_waitcnt vmcnt({wait})")
    if nw > 1:
        a.e(f"ds_add_rtn_u32 v{t+2}, v{t+1}, v{t}")
        if flag: a.e(f"v_mov_b32 v{t+1}, s52")
        a.e("s_waitcnt lgkmcnt(0)")
        a.e(f"v_readfirstlane_b32 s54, v{t+2}")
        a.e(f"s_and_b32 s54, s54, {nw-1}"); a.e(f"s_cmp_lg_u32 s54, {nw-1}"); a.e(f"s_cbranch_scc1 {D}")
    if flag: a.e(f"buffer_store_dword v{t+1}, v{t+3}, s[56:59], s{off} offen {SC}")
    else: a.e(f"buffer_atomic_add v{t}, v{t+3}, s[56:59], s{off} offen {SC}")
    if stage == ST_R and not flag:
        a.e("s_cmp_lg_u32 s60, 0"); a.e(f"s_cbranch_scc1 {D}")
        a.e("s_lshl_b32 s53, s29, 7"); a.e(f"s_add_u32 s53, s53, {F_CS}")
        a.e(f"buffer_atomic_add v{t}, v{t+3}, s[56:59], s53 offen {SC}")
    if mark: a.e(f"v_mov_b32 v{t+1}, {LW+56}"); a.e(f"ds_add_u32 v{t+1}, v{t}")
    a.e(f"{D}:")
    a.e("s_mov_b64 exec, -1")

def lds_spin(a, addr, target, t, dst=53, nap=False):
    L = a.lab("spin")
    a.e(f"v_mov_b32 v{t}, {addr}")
    a.e(f"{L}:")
    if nap: a.e(f"s_sleep {int(nap)}")
    a.e(f"ds_read_b32 v{t+1}, v{t}"); a.e("s_waitcnt lgkmcnt(0)"); a.e(f"v_readfirstlane_b32 s{dst}, v{t+1}")
    a.e(f"s_cmp_ge_u32 s{dst}, {target}"); a.e(f"s_cbranch_scc0 {L}")
def lds_set(a, addr, val, t):
    a.e(f"v_mov_b32 v{t}, {addr}"); a.e(f"v_mov_b32 v{t+1}, {val}")
    a.e("s_waitcnt lgkmcnt(0)"); a.e(f"ds_write_b32 v{t}, v{t+1}")
def lbar(a, k, t):
    a.e(f"v_mov_b32 v{t}, {LW+8}"); a.e(f"v_mov_b32 v{t+1}, 1")
    a.e("s_waitcnt lgkmcnt(0)")
    a.e("s_mov_b64 exec, 1"); a.e(f"ds_add_u32 v{t}, v{t+1}"); a.e("s_mov_b64 exec, -1")
    lds_spin(a, LW + 8, 4 * k + (2 if PWA else 0), t)

def gelu4(a, X, t, c1, c2):
    P = [(X, t), (X + 2, t + 2)]
    for x, u in P: a.e(f"v_pk_mul_f32 {vr(u,2)}, {vr(x,2)}, {vr(x,2)}")
    for x, u in P: a.e(f"v_pk_fma_f32 {vr(u,2)}, {vr(u,2)}, {vr(c2,2)}, {vr(c1,2)}")
    for x, u in P: a.e(f"v_pk_mul_f32 {vr(u,2)}, {vr(u,2)}, {vr(x,2)}")
    for i in range(4): a.e(f"v_exp_f32 v{t+i}, v{t+i}")
    for x, u in P: a.e(f"v_pk_add_f32 {vr(u,2)}, {vr(u,2)}, 1.0 op_sel_hi:[1,0]")
    for i in range(4): a.e(f"v_rcp_f32 v{t+i}, v{t+i}")
    for x, u in P: a.e(f"v_pk_mul_f32 {vr(x,2)}, {vr(x,2)}, {vr(u,2)}")

W2EARLY = int(os.environ.get("W2EARLY", "1")); QLATE = int(os.environ.get("QLATE", "0"))
TOUCH2 = [(A_Q, 4 * MB)] + ([] if W2EARLY else [(B_W2, 2 * MB)])
CODEPF = int(os.environ.get("CODEPF", "1")); NVOTE = int(os.environ.get("NVOTE", "32")); QUO = int(os.environ.get("QUO", "21")); NSAMP = int(os.environ.get("NSAMP", "2"))
W4POS = os.environ.get("W4POS", "S{15:(True,0,14)}")
HSTR = 4160; CHB = 24576; UOFF = 4 * HSTR; US = 96
KVS = 4 * CHB

KT = int(os.environ.get("KT", "1"))
KV = dict(cq=6, tg=7, t=8, ro=9, wo=16, pt=18, kr=22, vv=36, w=44, d=52, hoff=70, tag=76, zz=78)
FAST = int(os.environ.get("FAST", "0"))
def front_first(a):
    cq, tg, t, ro, wo, kr, vv, w = [KV[k] for k in "cq tg t ro wo kr vv w".split()]
    a.e(f"v_and_b32 v{cq}, 31, v0"); a.e(f"v_lshrrev_b32 v{tg}, 5, v0")
    a.e("s_and_b32 s34, s2, 7"); a.e("s_lshr_b32 s35, s2, 3")
    a.e("s_lshl_b32 s36, s35, 17"); a.e("s_lshl_b32 s37, s34, 8"); a.e("s_add_u32 s36, s36, s37")
    a.e(f"v_lshlrev_b32 v{t}, 13, v{tg}"); a.e(f"v_lshl_add_u32 v{t}, v{cq}, 3, v{t}"); a.e(f"v_add_u32 v{ro+3}, s36, v{t}")
    a.e(f"v_add_u32 v{ro+5}, 4096, v{ro+3}")
    a.e("s_waitcnt lgkmcnt(0)")
    for i in range(4): a.e(f"global_load_dwordx2 {vr(kr+2*(i+3),2)}, v{ro+3+(i&2)}, s[8:9] offset:{2048*(i&1)} {NTK}")
    for i in range(4): a.e(f"global_load_dwordx2 {vr(vv+2*i,2)}, v{ro+3+(i&2)}, s[10:11] offset:{2048*(i&1)} {NT}")
def front_loads(a):
    cq, tg, t, ro, wo, kr, vv, w = [KV[k] for k in "cq tg t ro wo kr vv w".split()]
    a_ = a
    if FAST: a = Rec()
    a.e(f"v_and_b32 v{cq}, 31, v0"); a.e(f"v_lshrrev_b32 v{tg}, 5, v0")
    a.e("s_and_b32 s34, s2, 7"); a.e("s_lshr_b32 s35, s2, 3")
    a.e("s_lshl_b32 s36, s35, 17"); a.e("s_lshl_b32 s37, s34, 8"); a.e("s_add_u32 s36, s36, s37")
    a.e(f"v_lshlrev_b32 v{t}, 13, v{tg}"); a.e(f"v_lshl_add_u32 v{t}, v{cq}, 3, v{t}"); a.e(f"v_add_u32 v{ro+3}, s36, v{t}")
    a.e(f"v_add_u32 v{ro+5}, 4096, v{ro+3}")
    a = a_
    a.e(f"s_mov_b32 s18, {4*MB}"); a.e("s_mov_b32 s19, 0x20000"); a.e("s_mov_b32 s22, s18"); a.e("s_mov_b32 s23, s19")
    a.e("s_waitcnt lgkmcnt(0)")
    tag, zz = KV["tag"], KV["zz"]
    a.e("s_mov_b32 s86, 256"); a.e("s_mov_b32 s87, 0x20000"); a.e(f"v_mov_b32 v{zz}, 0")
    a.e("s_lshl_b32 s45, s2, 3"); a.e("s_add_u32 s45, s45, s30"); a.e("s_cmp_lg_u32 s45, 4"); a.e("s_cbranch_scc1 KV_t0")
    a.e("s_getreg_b32 s45, hwreg(HW_REG_XCC_ID, 0, 3)"); a.e("s_lshl_b32 s45, s45, 1")
    a.e("s_lshl_b32 s44, s46, 6"); a.e("s_or_b32 s44, s44, s45"); a.e("s_or_b32 s44, s44, 1"); a.e(f"v_mov_b32 v{tag}, s44"); a.e(f"v_mov_b32 v{tag+1}, 0")
    a.e("s_mov_b64 exec, 1"); a.e(f"buffer_store_dwordx2 {vr(tag,2)}, v{zz}, s[84:87], 0 offen {SC}"); a.e("s_mov_b64 exec, -1")
    a.e("KV_t0:")
    a.e("s_mov_b64 s[16:17], s[8:9]"); a.e("s_mov_b64 s[20:21], s[10:11]")
    for i in range(0 if FAST else 4): a.e(f"buffer_load_dwordx2 {vr(kr+2*(i+3),2)}, v{ro+3+(i&2)}, s[16:19], 0 offen offset:{2048*(i&1)} {NTK}")
    for i in range(0 if FAST else 4): a.e(f"buffer_load_dwordx2 {vr(vv+2*i,2)}, v{ro+3+(i&2)}, s[20:23], 0 offen offset:{2048*(i&1)} {NT}")
    for i in range(3): a.e(f"v_subrev_u32 v{ro+i}, {2048*(3-i)}, v{ro+3}")
    a.e("s_lshl_b32 s37, s34, 10"); a.e(f"v_lshlrev_b32 v{wo}, 5, v{cq}"); a.e(f"v_add_u32 v{wo}, s37, v{wo}")
    a.srd(24, 12, 8192)
    XP = os.environ.get("XP", "g")
    if KT:
        a.e(f"v_and_b32 v{t}, 1, v{tg}"); a.e(f"v_lshl_add_u32 v{wo}, v{t}, 4, v{wo}")
        a.e(f"buffer_load_dwordx4 {vr(w,4)}, v{wo}, s[24:27], 0 offen")
    for i in range(0 if "t" in XP or KT else 2): a.e(f"buffer_load_dwordx4 {vr(w+4*i,4)}, v{wo}, s[24:27], 0 offen offset:{16*i}")
    if "g" in XP:
        a.e("s_cmp_lg_u32 s30, 4"); a.e("s_cbranch_scc1 KV_t2")
        a.e(f"buffer_load_dword v{tag}, v{zz}, s[84:87], 0 offen {SC}")
        a.e("KV_t2:")
    if "h" in XP: return
    if HALO:
        a.e("s_cmp_lg_u32 s30, 0"); a.e("s_cbranch_scc1 KV_h0"); a.e("s_bfm_b64 exec, 32, 0")
    if KT: a.e("s_bfm_b64 exec, 32, 0")
    for i in range(3): a.e(f"buffer_load_dwordx2 {vr(kr+2*i,2)}, v{ro+i}, s[16:19], 0 offen {NTK}")
    if KT: a.e("s_mov_b64 exec, -1")
    if HALO: a.e("s_mov_b64 exec, -1"); a.e("KV_h0:")

def probe_base(a):
    assert NVOTE <= 64
    a.e("s_and_b32 s42, s2, 7"); a.e("s_lshl_b32 s42, s42, 10"); a.e("s_lshr_b32 s43, s2, 3"); a.e("s_lshl_b32 s43, s43, 14"); a.e("s_add_u32 s42, s42, s43")
    a.e(f"s_add_u32 s42, s42, {LB0 + oSM + 131072}")
PWA = int(os.environ.get("PWA", "1"))
def front_arrive(a, wait, conv=False):
    D = a.lab("fa"); t = 6
    if PWA:
        if conv:
            a.e("s_mov_b64 exec, 0xf"); a.e("s_waitcnt vmcnt(0)"); a.e(f"buffer_atomic_add v{t+1}, v{t}, s[56:59], s45 offen {SC}"); a.e("s_mov_b64 exec, -1")
        elif wait:
            a.e(f"v_mov_b32 v{t}, 1"); a.e(f"v_mov_b32 v{t+1}, {LW+8}"); a.e("s_mov_b64 exec, 1"); a.e("s_waitcnt vmcnt(0)"); a.e(f"ds_add_u32 v{t+1}, v{t}"); a.e("s_mov_b64 exec, -1")
        return
    a.e("s_and_b32 s36, s2, 7"); a.e("s_lshl_b32 s36, s36, 7"); a.e(f"s_add_u32 s36, s36, {F_FRONT}")
    a.e(f"v_mov_b32 v{t}, 1"); a.e(f"v_mov_b32 v{t+1}, {LW+4}"); a.e(f"v_lshlrev_b32 v{t+3}, 10, v1")
    a.e("s_mov_b64 exec, 1")
    if wait: a.e("s_waitcnt vmcnt(0)")
    a.e("s_waitcnt lgkmcnt(0)")
    a.e(f"ds_add_rtn_u32 v{t+2}, v{t+1}, v{t}")
    a.e("s_waitcnt lgkmcnt(0)")
    a.e(f"v_readfirstlane_b32 s54, v{t+2}")
    a.e("s_cmp_lg_u32 s54, 15"); a.e(f"s_cbranch_scc1 {D}")
    a.e("s_mov_b64 exec, 0xffff")
    a.e(f"buffer_atomic_add v{t}, v{t+3}, s[56:59], s36 offen {SC}")
    a.e(f"{D}:"); a.e("s_mov_b64 exec, -1")
XR = int(os.environ.get("XR", "1"))
def roles(a):
    if XR: a.e("s_bfe_u32 s32, s52, 0x30001"); a.e("s_add_u32 s32, s32, s2"); a.e("s_and_b32 s32, s32, 7")
    else: a.e("s_and_b32 s32, s2, 7")
    a.e("s_lshr_b32 s33, s2, 3")
    a.e("s_and_b32 s28, s32, 2"); a.e("s_lshr_b32 s53, s32, 2"); a.e("s_or_b32 s28, s28, s53")
    a.e("s_lshl_b32 s28, s28, 2"); a.e("s_and_b32 s53, s33, 3"); a.e("s_add_u32 s28, s28, s53")
    a.e("s_and_b32 s31, s32, 1"); a.e("s_lshr_b32 s33, s33, 2")
    a.e("s_lshl_b32 s29, s31, 3"); a.e("s_add_u32 s29, s29, s33")
    a.e(f"s_xor_b32 s99, s29, {os.environ.get('G1X', '1')}")
    r_addr(a)
def front_a(a):
    cq, tg, t, pt, kr, vv, w, d, hoff, tag, zz = [KV[k] for k in "cq tg t pt kr vv w d hoff tag zz".split()]
    v = VA(80)
    a.e("s_and_b32 s41, s30, 3"); chan_setup(a, 41)
    a.e("s_lshr_b32 s36, s39, 1"); a.e("s_lshl_b32 s36, s36, 2"); a.e("s_load_dword s98, s[96:97], s36")
    a.e("s_lshl_b32 s36, s39, 12")
    a.e("s_add_u32 s12, s14, s36"); a.e("s_addc_u32 s13, s15, 0"); a.e("s_mov_b32 s14, 4096"); a.e("s_mov_b32 s15, 0x20000")
    a.e("s_lshr_b32 s45, s30, 2"); a.e("s_lshl_b32 s45, s45, 11")
    for it in range(3):
        if it < 2: a.e(f"s_add_u32 s36, s45, {(1024*it - 64) & 0xffffffff:#x}")
        else: a.e(f"s_mov_b32 s36, {4096 - 64}")
        a.e(f"v_add_u32 v{hoff+2*it}, s36, v2"); a.e(f"v_add_u32 v{hoff+2*it+1}, 16, v{hoff+2*it}")
    a.e("s_and_b32 s34, s2, 7"); a.e("s_lshr_b32 s35, s2, 3")
    z = v(4, 4); la = v(); t2 = v(); hw = v()
    for i in range(4): a.e(f"v_mov_b32 v{z+i}, 0")
    a.e(f"v_add_u32 v{hw}, s40, v2")
    a.e(f"ds_write_b128 v{hw}, {vr(z,4)} offset:{UOFF+64*US}")
    a.e(f"s_bfm_b64 exec, {(15*US - 1024)//16}, 0"); a.e(f"ds_write_b128 v{hw}, {vr(z,4)} offset:{UOFF+64*US+1024}"); a.e("s_mov_b64 exec, -1")
    a.e(f"v_lshlrev_b32 v{t}, 2, v{tg}"); a.e(f"v_sub_u32 v{t}, 60, v{t}")
    a.e(f"v_lshrrev_b32 v{t2}, 3, v{t}"); a.e(f"v_bfe_u32 v{la}, v{cq}, 1, 3"); a.e(f"v_xor_b32 v{t2}, v{t2}, v{la}"); a.e(f"v_lshlrev_b32 v{t2}, 4, v{t2}")
    a.e(f"v_and_b32 v{t}, 7, v{t}"); a.e(f"v_lshl_add_u32 v{t2}, v{t}, 1, v{t2}")
    a.e(f"v_lshl_add_u32 v{la}, v{cq}, 9, v{t2}"); a.e(f"v_add_u32 v{la}, {KVS}, v{la}")
    wf = v(8, 2); kf = v(14, 2); vf = v(8, 2); ks = v(8, 2); pr = v(8, 2); o = v(8, 4); tm = v(4, 1)
    a.e("s_waitcnt vmcnt(0)")
    if HALO:
        for i in range(3): a.e(f"buffer_load_dwordx2 {vr(kr+2*i,2)}, v{KV['ro']+i}, s[16:19], 0 offen {NTK}")
        if HALO == 1: a.e("s_waitcnt vmcnt(0)")
    a.e("s_cmp_lg_u32 s30, 4"); a.e("s_cbranch_scc1 KV_t1")
    if "g" not in os.environ.get("XP", "g"): a.e(f"buffer_load_dword v{tag}, v{zz}, s[84:87], 0 offen {SC}")
    a.e("KV_t1:")
    for it in range(3):
        a.e(f"buffer_load_dwordx4 {vr(d+6*it,4)}, v{hoff+2*it}, s[12:15], 0 offen {NTH}")
        a.e(f"buffer_load_dwordx2 {vr(d+6*it+4,2)}, v{hoff+2*it+1}, s[12:15], 0 offen {NTH}")
    if HALO == 2: a.e("s_waitcnt vmcnt(10)")
    mstamp(a)
    if KT:
        for e in range(4): a.e(f"v_mov_b32 v{w+4+e}, v{w+e}")
        for e in range(6): a.e(f"v_mov_b32 v{pr+e}, v{kr+8+e}")
        for e in range(4): a.e(f"v_permlane32_swap_b32 v{w+e}, v{w+4+e}")
        for e in range(6): a.e(f"v_permlane32_swap_b32 v{kr+e}, v{pr+e}")
    for dd in range(2):
        for c in range(2):
            unpack(a, wf + 0 + c, wf + 2 + c, w + 2 * (2 * dd + c)); unpack(a, wf + 4 + c, wf + 6 + c, w + 2 * (2 * dd + c) + 1)
        for i in range(7): unpack(a, kf + 2 * i, kf + 2 * i + 1, kr + 2 * i + dd)
        for i in range(4): unpack(a, vf + 2 * i, vf + 2 * i + 1, vv + 2 * i + dd)
        def rnd(base):
            for i in range(4): a.e(f"v_cvt_pk_bf16_f32 v{tm+i}, v{base+2*i}, v{base+2*i+1}")
            for i in range(4): unpack(a, base + 2 * i, base + 2 * i + 1, tm + i)
        for i in range(4): a.e(f"v_pk_mul_f32 {vr(ks+2*i,2)}, {vr(kf+2*i,2)}, {vr(wf+6,2)}")
        if RND: rnd(ks)
        for j in range(1, 4):
            if not RND:
                for i in range(4): a.e(f"v_pk_fma_f32 {vr(ks+2*i,2)}, {vr(kf+2*(i+j),2)}, {vr(wf+6-2*j,2)}, {vr(ks+2*i,2)}")
                continue
            for i in range(4): a.e(f"v_pk_mul_f32 {vr(pr+2*i,2)}, {vr(kf+2*(i+j),2)}, {vr(wf+6-2*j,2)}")
            rnd(pr)
            for i in range(4): a.e(f"v_pk_add_f32 {vr(ks+2*i,2)}, {vr(ks+2*i,2)}, {vr(pr+2*i,2)}")
            rnd(ks)
        for i in range(4): a.e(f"v_pk_mul_f32 {vr(ks+2*i,2)}, {vr(ks+2*i,2)}, {vr(vf+2*i,2)}")
        for c in range(2):
            e = 2 * dd + c
            a.e(f"v_cvt_pk_bf16_f32 v{o+2*e}, v{ks+6+c}, v{ks+4+c}"); a.e(f"v_cvt_pk_bf16_f32 v{o+2*e+1}, v{ks+2+c}, v{ks+c}")
            a.e(f"ds_write_b64 v{la}, {vr(o+2*e,2)} offset:{e*128}")
    a.e("s_cmp_lg_u32 s30, 4"); a.e("s_cbranch_scc1 HB_2")
    a.e(f"v_add_u32 v{pt}, {LW}, v3"); a.e(f"ds_write_b32 v{pt}, v{zz}")
    a.e("s_mov_b32 s53, 0")
    a.e("s_waitcnt vmcnt(6)")
    a.e("HB_p:")
    a.e(f"v_readfirstlane_b32 s52, v{tag}"); a.e("s_cmp_eq_u32 s52, 0"); a.e("s_cbranch_scc1 HB_r")
    a.e("s_cmp_ge_u32 s53, 60"); a.e("s_cbranch_scc1 HB_q")
    a.e("s_add_u32 s54, s46, 8192"); a.e("s_lshl_b32 s54, s54, 6"); a.e("s_sub_u32 s54, s54, s52"); a.e(f"s_cmp_lt_u32 s54, {12288*64}"); a.e("s_cbranch_scc1 HB_q")
    a.e("HB_r:")
    a.e(f"buffer_load_dword v{tag}, v{zz}, s[84:87], 0 offen {SC}"); a.e("s_waitcnt vmcnt(0)")
    a.e("s_add_u32 s53, s53, 1"); a.e("s_cmp_lt_u32 s53, s61"); a.e("s_cbranch_scc1 HB_p")
    a.e("s_mov_b32 s52, 1"); a.e("s_mov_b32 s61, 0")
    a.e("HB_q:")
    lds_set(a, LW + 12, "s52", pt)
    a.e("HB_2:")
    a.srd(16, 4, 8 * GSTR, off=LB0 + oX3)
    ra = v(); go = v(); ob = v(8, 4)
    a.e(f"v_lshrrev_b32 v{t}, 3, v0"); a.e(f"v_and_b32 v{t2}, 7, v0")
    a.e(f"v_lshlrev_b32 v{go}, 12, v{t}"); a.e(f"v_lshl_add_u32 v{go}, v{t2}, 4, v{go}")
    a.e("s_lshl_b32 s36, s34, 24"); a.e("s_sub_u32 s37, 31, s35"); a.e("s_lshl_b32 s37, s37, 7"); a.e("s_add_u32 s36, s36, s37")
    a.e(f"s_add_u32 s37, s36, {64*4096}")
    a.e(f"v_lshrrev_b32 v{ra}, 3, v{t}"); a.e(f"v_xor_b32 v{ra}, v{ra}, v{t2}"); a.e(f"v_lshlrev_b32 v{ra}, 4, v{ra}"); a.e(f"v_lshl_add_u32 v{ra}, v{t}, 7, v{ra}")
    a.e(f"v_add_u32 v{ra}, {KVS}, v{ra}"); a.e(f"v_mov_b32 v{pt}, {LW+12}")
    a.e("s_waitcnt lgkmcnt(0)"); a.e("s_barrier")
    for i in range(2): a.e(f"ds_read_b128 {vr(ob+4*i,4)}, v{ra} offset:{i*8192}")
    a.e(f"ds_read_b32 v{pt+1}, v{pt}")
    for i in range(2):
        a.e(f"s_waitcnt lgkmcnt({2-i})")
        if "1" in DP: mark(a, ob + 4 * i, 1)
        a.e(f"buffer_store_dwordx4 {vr(ob+4*i,4)}, v{go}, s[16:19], s{36+i} offen {SC}")
    a.e("s_waitcnt lgkmcnt(0)"); a.e(f"v_readfirstlane_b32 s52, v{pt+1}")
    a.e("s_cmp_lg_u32 s30, 0"); a.e("s_cbranch_scc1 KV_ni"); a.e("s_cmp_ge_u32 s35, 16"); a.e("s_cbranch_scc1 KV_ni")
    a.e(f"v_mov_b32 v{t}, s52")
    a.e("s_lshl_b32 s37, s34, 7"); a.e("s_lshl_b32 s53, s35, 10"); a.e("s_add_u32 s37, s37, s53"); a.e(f"s_add_u32 s37, s37, {F_FRONT}")
    a.e("s_mov_b64 exec, 1"); a.e(f"buffer_store_dword v{t}, v{zz}, s[56:59], s37 offen {SC}"); a.e("s_mov_b64 exec, -1")
    a.e("KV_ni:")
    a.e(f"s_cmp_ge_u32 s2, {NVOTE}"); a.e("s_cbranch_scc1 KV_n3"); a.e("s_cmp_lg_u32 s30, 5"); a.e("s_cbranch_scc1 KV_n3")
    probe_base(a)
    a.e(f"v_lshrrev_b32 v{t}, 5, v1"); a.e(f"v_mul_u32_u24 v{t}, {8192 - 512}, v{t}"); a.e(f"v_add_u32 v{t}, v{t}, v2")
    a.e(f"buffer_store_dwordx4 {vr(z,4)}, v{t}, s[56:59], s42 offen {SC}")
    a.e("KV_n3:")
    roles(a)
    def pubk():
        a.e("s_lshl_b32 s36, s34, 5"); a.e("s_add_u32 s36, s36, s35"); a.e("s_lshl_b32 s36, s36, 7"); a.e(f"s_add_u32 s36, s36, {F_KVT}")
        mstamp(a)
        QL = int(os.environ.get("QL", "3"))
        if QL == 2: load_q(a)
        publish(a, 0, 8, pt, off=36, flag=True, wait=4 if QL == 2 else 0)
        if QL == 3: load_q(a)
        mstamp(a)
    HF = int(os.environ.get("HF", "0"))
    if not HF: pubk()
    else: a.e("s_waitcnt vmcnt(2)")
    cc = wf; hw2 = v()
    a.e(f"v_add_u32 v{hw2}, s45, v{hw}")
    for it in range(3):
        D = d + 6 * it; c0 = cc + 12 * it; c1 = c0 + 4; c2 = c0 + 8
        for k in range(4):
            a.e(f"v_alignbit_b32 v{c0+k}, v{D+k+1}, v{D+k}, 16")
            a.e(f"v_mov_b32 v{c1+k}, v{D+k+1}")
            a.e(f"v_alignbit_b32 v{c2+k}, v{D+k+2}, v{D+k+1}, 16")
        if it == 2: a.e("s_mov_b64 exec, 0xf")
        ad, o0 = (hw2, 1024 * it) if it < 2 else (hw, 4096)
        a.e(f"ds_write_b128 v{ad}, {vr(c0,4)} offset:{o0}")
        a.e(f"ds_write_b128 v{ad}, {vr(c1,4)} offset:{HSTR+o0}")
        a.e(f"ds_write_b128 v{ad}, {vr(c2,4)} offset:{2*HSTR+o0}")
        a.e(f"ds_write_b128 v{ad}, {vr(D+2,4)} offset:{3*HSTR+o0}")
        if it == 2: a.e("s_mov_b64 exec, -1")
    if HF: pubk()
    assert v.hi <= 176
    a.e("s_waitcnt lgkmcnt(0)"); a.e("s_barrier")
def load_q(a):
    a.srd(8, 6, 4 * MB)
    for j in range(4): a.e(f"buffer_load_dwordx2 {vr(RXA+2*j,2)}, v{RRO}, s[8:11], 0 offen offset:{128*(j>>1) + 32*(j&1)} {os.environ.get('NTQ', NTH)}")
def chan_setup(a, wsg):
    a.e("s_and_b32 s38, s2, 7"); a.e("s_lshl_b32 s38, s38, 5"); a.e("s_lshr_b32 s39, s2, 3"); a.e("s_add_u32 s38, s38, s39")
    a.e("s_lshl_b32 s39, s38, 2"); a.e(f"s_add_u32 s39, s39, s{wsg}")
    a.e(f"s_mul_i32 s40, s{wsg}, {CHB}")

def touch(a, ka, nbytes, r):
    n = nbytes // 1024 // 512
    a.e(f"s_load_dwordx2 s[48:49], s[0:1], {ka}")
    a.e("s_lshl_b32 s45, s2, 1"); a.e("s_and_b32 s50, s30, 1"); a.e("s_add_u32 s45, s45, s50"); a.e(f"s_mul_i32 s45, s45, {n*1024}")
    a.e(f"s_mov_b32 s50, {nbytes}"); a.e("s_mov_b32 s51, 0x20000")
    a.e("s_waitcnt lgkmcnt(0)")
    for i in range(n):
        if i and i % 4 == 0: a.e("s_add_u32 s45, s45, 4096")
        a.e(f"buffer_load_dwordx4 {vr(r,4)}, v2, s[48:51], s45 offen offset:{(i&3)*1024}")
    return n

def w2_warm(a):
    a.e("s_mov_b64 s[48:49], s[70:71]"); a.e(f"s_mov_b32 s50, {2*MB}"); a.e("s_mov_b32 s51, 0x20000")
    a.e("s_and_b32 s45, s28, 3"); a.e("s_lshl_b32 s45, s45, 1"); a.e("s_and_b32 s46, s30, 1"); a.e("s_add_u32 s45, s45, s46"); a.e("s_lshl_b32 s45, s45, 18")
    a.e("s_lshl_b32 s46, s29, 7"); a.e("s_add_u32 s45, s45, s46"); a.e("v_lshlrev_b32 v245, 11, v1")
    a.e("buffer_load_dword v244, v245, s[48:51], s45 offen"); a.e(f"s_add_u32 s45, s45, {64*2048}"); a.e("buffer_load_dword v246, v245, s[48:51], s45 offen")
def cs_load(a, which, slot):
    w_setup(a, which, pre=False)
    a.e(f"s_mov_b32 s42, {slot}"); a.e("s_mov_b32 s44, s28")
    w_issue(a, which, direct=True)
CSEL, CFR, CAD, CACC, CSO_ = 16, 72, 144, 156, 164
def cs_prep(a, S1, S3):
    a.e(f"v_and_b32 v{CSO_}, 15, v1"); a.e(f"v_mov_b32 v{CSO_+1}, 0x3f803f80")
    for T in range(14):
        a.e(f"v_cmp_eq_u32 vcc, {T}, v{CSO_}")
        for e in range(4): a.e(f"v_cndmask_b32 v{CSEL+4*T+e}, 0, v{CSO_+1}, vcc")
    pos = {}
    for which, slot, r0, halves in ((1, S1, CAD, 1), (3, S3, CAD + 4, 2)):
        c = CFG[which]
        for hf in range(halves):
            a.e(f"s_mov_b32 s35, {hf}")
            nr, pos[which] = w_bases(a, which, r0 + 2 * hf, 35, c["TN16"] // halves, WV + 8, WV + 9)
            a.e("s_and_b32 s35, s30, 1"); a.e(f"s_mul_i32 s35, s35, {32*c['RB']}"); a.e(f"s_add_u32 s35, s35, {slot}")
            for i in range(nr): a.e(f"v_add_u32 v{r0+2*hf+i}, s35, v{r0+2*hf+i}")
    for i in range(8): a.e(f"v_mov_b32 v{CACC+i}, 0")
    a.e(f"v_lshrrev_b32 v{CSO_+2}, 4, v1"); a.e(f"v_lshlrev_b32 v{CSO_+2}, 4, v{CSO_+2}"); a.e(f"v_lshl_add_u32 v{CSO_+2}, v{CSO_}, 6, v{CSO_+2}")
    a.e(f"v_mov_b32 v{CSO_+1}, 0x7f000000")
    for k, n in ((3, 4), (4, 14)):
        a.e(f"v_cmp_gt_u32 vcc, {n}, v{CSO_}"); a.e(f"v_cndmask_b32 v{CSO_+k}, v{CSO_+1}, v{CSO_+2}, vcc")
    return pos
def cs_sum(a, which, pos):
    c = CFG[which]; ntl = c["TN16"]; N = c["LDW"] // 2
    F = CFR + (0 if which == 3 else 56); A = CACC + (0 if which == 3 else 4)
    for T in range(ntl):
        hf, nt = (T // 7, T % 7) if which == 3 else (0, T)
        for h in range(2):
            r, imm = pos[which](nt, 0, h)
            a.e(f"ds_read_b64_tr_b16 {vr(F+4*T+2*h,2)}, v{(CAD + 4 if which == 3 else CAD) + 2*hf + r} offset:{imm}")
    a.srd(20, 4, 32 * N * 4, off=CSP[which])
    a.e("s_lshl_b32 s35, s28, 1"); a.e("s_and_b32 s36, s30, 1"); a.e("s_add_u32 s35, s35, s36"); a.e(f"s_mul_i32 s35, s35, {N*4}")
    a.e(f"s_mul_i32 s36, s29, {ntl*64}"); a.e("s_add_u32 s35, s35, s36")
    a.e("s_waitcnt lgkmcnt(0)")
    if CSPRIO == 2: a.e("s_setprio 1")
    for T in range(ntl): a.e(f"v_mfma_f32_16x16x32_bf16 {vr(A,4)}, {vr(F+4*T,4)}, {vr(CSEL+4*T,4)}, {vr(A,4)}")
    if CSPRIO == 2: a.e("s_setprio 0")
    a.e(f"buffer_store_dwordx4 {vr(A,4)}, v{CSO_ + (4 if which == 3 else 3)}, s[20:23], s35 offen {SC}")

NOCS3 = int(os.environ.get("NOCS3", "0")); STO = os.environ.get("STOUCH", "")
def stouch(a, which, gran, nw):
    X = a.lab("st"); L = a.lab("sl"); n = 28672 // nw
    a.e("s_cmp_lg_u32 s60, 0"); a.e(f"s_cbranch_scc1 {X}")
    a.e(f"s_mul_i32 s36, s2, 28672"); a.e(f"s_and_b32 s37, s30, {nw-1}"); a.e(f"s_mul_i32 s37, s37, {n}"); a.e("s_add_u32 s36, s36, s37")
    a.e(f"s_add_u32 s34, s{66+2*which}, s36"); a.e(f"s_addc_u32 s35, s{67+2*which}, 0"); a.e("s_mov_b32 s36, 0")
    a.e(f"{L}:")
    for i in range(14): a.e(f"s_load_dword s37, s[34:35], {i*gran}")
    a.e(f"s_add_u32 s34, s34, {14*gran}"); a.e("s_addc_u32 s35, s35, 0"); a.e("s_add_u32 s36, s36, 1"); a.e(f"s_cmp_lt_u32 s36, {n // (14*gran)}"); a.e(f"s_cbranch_scc1 {L}")
    a.e("s_waitcnt lgkmcnt(0)")
    a.e(f"{X}:")
SB = eval(os.environ.get("SB", "(0,0,0)"))
SG = eval(os.environ.get("SG", "(0,0,0,0)"))
def sg(a, n):
    if not n: return
    X = a.lab("st"); L = a.lab("sl")
    a.e("s_cmp_lg_u32 s60, 0"); a.e(f"s_cbranch_scc1 {X}"); a.e("s_mov_b32 s36, 0"); a.e(f"{L}:"); sb(a, 14)
    a.e("s_add_u32 s36, s36, 1"); a.e(f"s_cmp_lt_u32 s36, {n}"); a.e(f"s_cbranch_scc1 {L}"); a.e("s_waitcnt lgkmcnt(0)"); a.e(f"{X}:"); mstamp(a)
def sb_init(a):
    nw = 2 if sum(SG) else 4
    a.e(f"s_mul_i32 s36, s2, 28672"); a.e(f"s_and_b32 s37, s30, {nw-1}"); a.e(f"s_mul_i32 s37, s37, {28672//nw}"); a.e("s_add_u32 s36, s36, s37")
    SW = 66 + 2 * int(os.environ.get("SGW", "3"))
    a.e(f"s_add_u32 s90, s{SW}, s36"); a.e(f"s_addc_u32 s91, s{SW+1}, 0")
def sb(a, n):
    for i in range(n): a.e(f"s_load_dword s101, s[90:91], {i*64}")
    if n: a.e(f"s_add_u32 s90, s90, {n*64}"); a.e("s_addc_u32 s91, s91, 0")
PUTE = int(os.environ.get("PUTE", "1"))
def front_b(a):
    pt, dm = 6, 20
    vd = 12; VG = int(os.environ.get("VG", "0")); VE = int(os.environ.get("VE", "1"))
    def vote():
        a.e(f"s_cmp_ge_u32 s2, {NVOTE}"); a.e("s_cbranch_scc1 FB_np"); a.e("s_cmp_lg_u32 s30, 5"); a.e("s_cbranch_scc1 FB_np")
        probe_base(a); a.e(f"v_mov_b32 v{vd+2}, 0")
        if os.environ.get("SPR", "1") == "1":
            a.e("s_mov_b64 exec, 1"); a.e("s_mov_b32 s46, -1"); a.e("s_mov_b32 s47, -1")
            a.e("s_add_u32 s48, s4, s42"); a.e("s_addc_u32 s49, s5, 0")
            a.e("s_load_dword s101, s[48:49], 384"); a.e("s_waitcnt lgkmcnt(0)"); a.e("s_memtime s[34:35]"); a.e("s_waitcnt lgkmcnt(0)")
            for k in range(2 * NSAMP):
                p_, q_ = (34, 36) if k % 2 == 0 else (36, 34)
                a.e(f"s_load_dword s101, s[48:49], {(k & 1) * 8192 + (k >> 1) * 128}"); a.e("s_waitcnt lgkmcnt(0)"); a.e(f"s_memtime s[{q_}:{q_+1}]"); a.e("s_waitcnt lgkmcnt(0)")
                a.e(f"s_sub_u32 s43, s{q_}, s{p_}"); a.e(f"s_min_u32 s{46+(k&1)}, s{46+(k&1)}, s43")
        else:
            a.e("s_mov_b64 exec, 1"); a.e("s_mov_b32 s46, -1"); a.e("s_mov_b32 s47, -1"); a.e("s_mov_b32 s43, 0")
            a.e("FB_ml:")
            for i in range(2):
                a.e(f"s_add_u32 s45, s42, {i * 8192}")
                a.e("s_memtime s[34:35]"); a.e("s_waitcnt lgkmcnt(0)")
                a.e(f"buffer_load_dword v{vd+1}, v{vd+2}, s[56:59], s45 offen {SC}"); a.e("s_waitcnt vmcnt(0)")
                a.e("s_memtime s[36:37]"); a.e("s_waitcnt lgkmcnt(0)")
                a.e("s_sub_u32 s36, s36, s34"); a.e(f"s_min_u32 s{46+i}, s{46+i}, s36")
            a.e("s_add_u32 s42, s42, 128"); a.e("s_add_u32 s43, s43, 1"); a.e(f"s_cmp_lt_u32 s43, {NSAMP}"); a.e("s_cbranch_scc1 FB_ml")
        a.e("s_cmp_lt_u32 s47, s46"); a.e("s_cselect_b32 s45, 1, 0")
        a.e("s_lshr_b32 s46, s28, 2"); a.e("s_xor_b32 s45, s45, s46"); a.e("s_and_b32 s45, s45, 1"); a.e("s_lshl_b32 s45, s45, 8")
        a.e("s_or_b32 s43, s45, 1"); a.e(f"v_mov_b32 v{vd}, s43")
        a.e(f"buffer_atomic_add v{vd}, v{vd+2}, s[84:87], 0 offen offset:4 sc0 {SC}"); a.e("s_waitcnt vmcnt(0)")
        a.e(f"v_readfirstlane_b32 s36, v{vd}"); a.e("s_add_u32 s36, s36, s43"); a.e("s_and_b32 s37, s36, 255"); a.e(f"s_cmp_lg_u32 s37, {QUO}"); a.e("s_cbranch_scc1 FB_np")
        a.e("s_lshr_b32 s36, s36, 8"); a.e("s_lshl_b32 s36, s36, 1"); a.e("s_add_u32 s36, s36, s52"); a.e("s_bfm_b64 exec, 32, 0")
        a.e(f"v_mov_b32 v{vd}, s36"); a.e(f"v_lshlrev_b32 v{vd+1}, 7, v1"); a.e(f"s_mov_b32 s36, {F_RES}"); a.e(f"buffer_store_dword v{vd}, v{vd+1}, s[56:59], s36 offen {SC}")
        a.e("FB_np:")
        a.e("s_mov_b64 exec, -1")
        if VG:
            a.e("s_cmp_lg_u32 s30, 5"); a.e("s_cbranch_scc1 FB_ng")
            a.e(f"v_mov_b32 v{pt}, {LW+20}"); a.e(f"v_mov_b32 v{pt+1}, 1"); a.e("s_mov_b64 exec, 1"); a.e(f"ds_add_u32 v{pt}, v{pt+1}"); a.e("s_mov_b64 exec, -1")
            a.e("FB_ng:")
    if VE: vote()
    PZE = int(os.environ.get("PZE", "0"))
    if PZE:
        a.srd(20, 4, 32 * MB, off=216 * MB)
        for i in range(4): a.e(f"v_mov_b32 v{216+i}, -1")
        a.e("s_lshl_b32 s45, s2, 2"); a.e("s_and_b32 s50, s30, 3"); a.e("s_add_u32 s45, s45, s50"); a.e(f"s_mul_i32 s45, s45, {PZE*1024}")
        for i in range(PZE):
            a.e(f"buffer_store_dwordx4 v[216:219], v2, s[20:23], s45 offen {SC}"); a.e("s_add_u32 s45, s45, 1024")
    if TAB: tab_load(a)
    TE = int(os.environ.get("TE", "0"))
    if TE:
        a.e("s_cmp_ge_u32 s30, 6"); a.e("s_cbranch_scc1 FB_t1"); touch(a, B_W2, 2 * MB, dm); a.e("s_branch FB_t2"); a.e("FB_t1:"); touch(a, B_W1, 2 * MB, 200); a.e("FB_t2:")
    w_lanes(a)
    a.e("s_cmp_ge_u32 s30, 6"); a.e("s_cbranch_scc1 FB_cs")
    if not VE: vote()
    mstamp(a)
    a.e("s_cmp_lg_u32 s30, 4"); a.e("s_cbranch_scc1 FB_ni")
    a.e(f"v_mov_b32 v{vd}, s52")
    group_off(a, 37, 28); a.e("s_andn2_b32 s37, s37, 0x2000"); a.e("s_lshl_b32 s53, s29, 7"); a.e("s_add_u32 s37, s37, s53"); a.e(f"s_add_u32 s37, s37, {oSM}")
    a.e(f"v_and_b32 v{vd+1}, 1, v1"); a.e(f"v_lshlrev_b32 v{vd+1}, 13, v{vd+1}"); a.e(f"v_lshrrev_b32 v{vd+2}, 1, v1"); a.e(f"v_lshl_add_u32 v{vd+1}, v{vd+2}, 22, v{vd+1}")
    a.e("s_mov_b64 exec, 0xf"); a.e(f"buffer_store_dword v{vd}, v{vd+1}, s[56:59], s37 offen {SC}")
    a.e("s_cmp_lg_u32 s28, 0"); a.e("s_cbranch_scc1 FB_n2")
    a.e(f"s_add_u32 s37, s53, {F_CS}"); a.e("s_mov_b64 exec, 1"); a.e(f"buffer_store_dword v{vd}, v{vd+1}, s[56:59], s37 offen {SC}")
    a.e("FB_n2:")
    a.e("s_mov_b64 exec, -1")
    a.e("FB_ni:")
    TME = int(os.environ.get("TME", "1"))
    if TME: a.e("s_waitcnt vmcnt(0)"); tab_make(a, 0)
    UG = (LW + 20, 4 + VG) if os.environ.get("UG", "1") == "1" else (LW + 16, 1)
    lds_spin(a, *UG, pt, nap=2)
    mstamp(a)
    if TLBW:
        a.e("s_cmp_lg_u32 s30, 5"); a.e("s_cbranch_scc1 FB_nt")
        a.e(f"v_and_b32 v{vd}, 7, v1"); a.e(f"v_lshlrev_b32 v{vd}, 24, v{vd}"); a.e(f"v_lshrrev_b32 v{vd+1}, 3, v1"); a.e(f"v_lshl_add_u32 v{vd}, v{vd+1}, 22, v{vd}")
        a.e("s_lshl_b32 s36, s2, 7"); a.e(f"s_add_u32 s36, s36, {LB0 + 2 * MB - 65536}")
        a.e(f"s_bfm_b64 exec, {8 * TLBW}, 0"); a.e(f"buffer_load_dword v{dm+4}, v{vd}, s[56:59], s36 offen {SC}"); a.e("s_mov_b64 exec, -1")
        a.e("FB_nt:")
    if os.environ.get("W2T", "1") == "2": lds_spin(a, LW + 24, 2, pt, nap=4)
    if os.environ.get("W2T", "1") == "3":
        w_srd(a, 2); a.e("s_lshl_b32 s39, s28, 1"); a.e("s_and_b32 s36, s30, 1"); a.e("s_add_u32 s39, s39, s36"); a.e("s_lshl_b32 s39, s39, 16"); a.e("s_lshl_b32 s36, s29, 7"); a.e("s_add_u32 s39, s39, s36")
        for i in range(4): a.e(f"buffer_load_dwordx4 {vr(dm,4)}, v{WVB[2]}, s[12:15], s39 offen"); a.e("s_add_u32 s39, s39, 16384")
    elif os.environ.get("W2T", "1") != "0" and not TE: touch(a, B_W2, 2 * MB, dm)
    QL = int(os.environ.get("QL", "3"))
    if not QL: load_q(a)
    if W4POS == "F": lds_spin(a, LW + 24, 2, pt, nap=4); a.e("s_waitcnt vmcnt(0)")
    if W4POS in ("F", "F0"): touch(a, B_W4, 7 * MB, dm)
    PZF = int(os.environ.get("PZF", "0"))
    if PZF:
        a.srd(20, 4, 32 * MB, off=216 * MB)
        for i in range(4): a.e(f"v_mov_b32 v{216+i}, -1")
        a.e("s_lshl_b32 s45, s2, 1"); a.e("s_and_b32 s50, s30, 1"); a.e("s_add_u32 s45, s45, s50"); a.e(f"s_mul_i32 s45, s45, {PZF*1024}")
        for i in range(PZF):
            a.e(f"buffer_store_dwordx4 v[216:219], v2, s[20:23], s45 offen {SC}"); a.e("s_add_u32 s45, s45, 1024")
            if os.environ.get("PZP"): a.e(f"s_waitcnt vmcnt({os.environ['PZP']})")
    front_arrive(a, True)
    if not TME: tab_make(a, 0)
    PKW = int(os.environ.get("PKW", "2")); PKP = int(os.environ.get("PKP", "8"))
    W1P = int(os.environ.get("W1P", "8")); FO = os.environ.get("FO", "1pd"); FO2 = os.environ.get("FO2", "1pd")
    R1 = [176, 188, 192] + [200 + 4 * i for i in range(7)] + [16 + 4 * i for i in range(8)]
    def w1_regs(a):
        w_srd(a, 1)
        a.e("s_and_b32 s35, s30, 3"); a.e(f"s_mul_i32 s35, s35, {18*16384}"); a.e("s_lshl_b32 s39, s99, 7"); a.e("s_add_u32 s39, s39, s35")
        for q in range(18):
            a.e(f"buffer_load_dwordx4 {vr(R1[q],4)}, v{WVB[1]}, s[12:15], s39 offen"); a.e("s_add_u32 s39, s39, 16384")
            if q % 4 == 3: sb(a, SB[1])
            if PKP and q % 4 == 3: a.e(f"s_waitcnt vmcnt({PKP})")
        if QL == 1: load_q(a)
    def w1_put(a):
        a.e("s_and_b32 s35, s30, 3"); a.e(f"s_mul_i32 s35, s35, {18*1024}"); a.e("v_add_u32 v8, s35, v2")
        if PUTE: lds_spin(a, LW + 20, 8 + VG, pt, nap=2)
        else: lds_spin(a, LW + 4, 16, pt, nap=2)
        PV0 = int(os.environ.get("PV0", "1")); assert not PV0 or (FO[0] == "1" and FO2[0] == "1" and "p" in FO and "p" in FO2)
        a.e(f"s_waitcnt vmcnt({32 - PD if PV0 else 0})")
        for q in range(18): a.e(f"ds_write_b128 v8, {vr(R1[q],4)} offset:{CFG[1]['WB'] + 1024*q}")
        a.e("s_waitcnt lgkmcnt(0)")
    def w1_dma(a, js):
        lds_spin(a, LW + 24, 4, pt, nap=3)
        w_setup(a, 1, pre=False)
        for j in js: w1_slots(a, (j,), pace=W1P); ypause(a)
    DS_ = int(os.environ.get("DSPL", "12"))
    if PKW: lds_spin(a, LW + 24, PKW, pt, nap=4)
    for i_, ch in enumerate(FO):
        if ch == "d": w1_dma(a, range(9, DS_))
        else: call(a, {"1": w1_regs, "p": park}[ch])
    park_rest(a, False)
    mstamp(a)
    call(a, w1_put)
    a.e("s_branch FR_end")
    a.e("FB_cs:")
    S1, S3 = KVS - CFG[1]["WB"], KVS + 8192 - CFG[3]["WB"]
    pos = cs_prep(a, S1, S3)
    if TME: a.e("s_waitcnt vmcnt(0)"); tab_make(a, 1)
    lds_spin(a, *UG, pt, nap=2)
    mstamp(a)
    if not QL: load_q(a)
    cs_load(a, 1, S1)
    if not NOCS3: cs_load(a, 3, S3)
    a.e(f"s_waitcnt vmcnt({0 if NOCS3 else 14})")
    if CSPRIO == 1: a.e(f"s_setprio {CSPRIO}")
    cs_sum(a, 1, pos)
    a.e("s_waitcnt vmcnt(1)")
    a.e(f"v_mov_b32 v{pt}, {LW+24}"); a.e(f"v_mov_b32 v{pt+1}, 1")
    a.e("s_mov_b64 exec, 1"); a.e(f"ds_add_u32 v{pt}, v{pt+1}"); a.e("s_mov_b64 exec, -1")
    mstamp(a)
    if not NOCS3: cs_sum(a, 3, pos)
    front_arrive(a, False)
    if not TME: tab_make(a, 1)
    a.e(f"v_mov_b32 v{pt}, {LW+24}"); a.e(f"v_mov_b32 v{pt+1}, 1")
    a.e("s_mov_b64 exec, 1"); a.e(f"ds_add_u32 v{pt}, v{pt+1}"); a.e("s_mov_b64 exec, -1")
    mstamp(a)
    a.e("s_setprio 0")
    assert CFG[1]["WB"] + 9 * 8192 == KVS
    for ch in FO2:
        if ch == "d": w1_dma(a, range(DS_, 16))
        else: call(a, {"1": w1_regs, "p": park}[ch])
    park_rest(a, False)
    mstamp(a)
    call(a, w1_put)

PG = int(os.environ.get("PG", "0"))
def front_conv(a):
    v = VA(6); lane = 1; l16 = 2
    t = v(); pt = v(4, 2)
    chan_setup(a, 30)
    a.e("s_and_b32 s36, s39, 127"); a.e("s_lshl_b32 s36, s36, 12"); a.e("s_lshr_b32 s37, s39, 7"); a.e("s_lshl_b32 s37, s37, 24")
    a.e("s_add_u32 s36, s36, s37"); a.e(f"s_add_u32 s36, s36, {LB0 + oX3}")
    a.e("s_add_u32 s16, s4, s36"); a.e("s_addc_u32 s17, s5, 0"); a.e("s_mov_b32 s18, 4096"); a.e("s_mov_b32 s19, 0x20000")
    uw = v(); u = v(16, 4)
    a.e(f"v_lshrrev_b32 v{t}, 2, v{lane}"); a.e(f"v_mul_u32_u24 v{uw}, {US}, v{t}"); a.e(f"v_and_b32 v{t}, 3, v{lane}")
    a.e(f"v_lshl_add_u32 v{uw}, v{t}, 4, v{uw}"); a.e(f"v_add_u32 v{uw}, s40, v{uw}")
    aa = v(); ba = v(); ua = v(); J = v(); G = v()
    a.e(f"v_and_b32 v{J}, 15, v{lane}"); a.e(f"v_lshrrev_b32 v{G}, 4, v{lane}")
    a.e(f"v_and_b32 v{t}, 3, v{J}"); a.e(f"v_mul_u32_u24 v{aa}, {HSTR}, v{t}")
    a.e(f"v_lshl_add_u32 v{aa}, v{G}, 4, v{aa}"); a.e(f"v_lshrrev_b32 v{t}, 2, v{J}"); a.e(f"v_lshl_add_u32 v{aa}, v{t}, 3, v{aa}")
    a.e(f"v_add_u32 v{aa}, s40, v{aa}")
    a.e(f"v_sub_u32 v{t}, 15, v{J}"); a.e(f"v_mul_u32_u24 v{ua}, {US}, v{t}"); a.e(f"v_add_u32 v{ua}, s40, v{ua}")
    a.e(f"v_lshl_add_u32 v{ba}, v{G}, 4, v{ua}")
    acc = v(32, 4)
    fa = v(64, 4); fb = v(32, 4)
    def rdA(p, o):
        return [f"ds_read_b64 {vr(fa+32*p+8*s_+4*mt+2*h,2)}, v{aa} offset:{64*(o+16*s_) + 32*mt + 8*h}" for s_ in range(4) for mt in range(2) for h in range(2)]
    def rdB(p, o):
        return [f"ds_read_b128 {vr(fb+16*p+4*k,4)}, v{ba} offset:{UOFF + (48 - 16*k + o)*US}" for k in range(4)]
    for x in rdA(0, 0): a.e(x)
    dm_ = fb + 16; Dv = pt + 2
    a.e("s_bitcmp1_b32 s39, 0"); a.e("s_cselect_b32 s36, 0, 16"); a.e("s_lshl_b32 s41, s98, s36"); a.e("s_and_b32 s41, s41, 0xffff0000"); a.e("s_lshr_b32 s36, s41, 16")
    a.e(f"v_lshl_add_u32 v{t}, v{G}, 3, v{J}"); a.e(f"v_sub_u32 v{t}, 31, v{t}")
    a.e(f"v_mov_b32 v{Dv}, s36"); a.e(f"v_mov_b32 v{Dv+1}, s41"); a.e(f"v_and_b32 v{pt}, 1, v{t}"); a.e(f"v_cmp_eq_u32 vcc, 1, v{pt}")
    a.e(f"v_cndmask_b32 v{Dv}, v{Dv}, v{Dv+1}, vcc"); a.e(f"v_ashrrev_i32 v{t}, 1, v{t}")
    for mt in range(2):
        for d_ in range(4): a.e(f"v_cmp_eq_u32 vcc, {8*mt+d_}, v{t}"); a.e(f"v_cndmask_b32 v{dm_+4*mt+d_}, 0, v{Dv}, vcc")
    a.srd(12, 4, 8 * GSTR - oHS, off=LB0 + oHS)
    ta = v(); go = v()
    a.e(f"v_bfe_u32 v{t}, v{lane}, 2, 2"); a.e(f"v_mul_u32_u24 v{ta}, {CHB+64}, v{t}")
    a.e(f"v_mul_u32_u24 v{t}, 72, v{G}"); a.e(f"v_add_u32 v{ta}, v{ta}, v{t}")
    a.e(f"v_and_b32 v{t}, 3, v{lane}"); a.e(f"v_lshl_add_u32 v{ta}, v{t}, 3, v{ta}")
    a.e(f"s_mul_i32 s36, s30, {16*72}"); a.e(f"v_add_u32 v{ta}, s36, v{ta}")
    a.e(f"v_lshrrev_b32 v{t}, 5, v{lane}"); a.e(f"v_mul_u32_u24 v{go}, {262144 - 512}, v{t}"); a.e(f"v_add_u32 v{go}, v{go}, v{l16}")
    a.e("s_lshr_b32 s44, s38, 4"); a.e("s_lshl_b32 s44, s44, 14"); a.e("s_and_b32 s37, s38, 15"); a.e("s_lshl_b32 s37, s37, 9"); a.e("s_add_u32 s44, s44, s37")
    a.e("s_and_b32 s37, s30, 1"); a.e("s_lshl_b32 s37, s37, 13"); a.e("s_add_u32 s44, s44, s37")
    a.e("s_lshr_b32 s37, s30, 1"); a.e("s_lshl_b32 s37, s37, 26"); a.e("s_add_u32 s44, s44, s37")
    a.e("s_and_b32 s47, s44, 0x2000"); a.e(f"s_xor_b32 s47, s47, {(((F_FRONT >> 21) ^ (F_FRONT >> 13)) & 1) << 13}"); a.e("s_lshr_b32 s37, s30, 1"); a.e("s_lshl_b32 s37, s37, 12"); a.e("s_add_u32 s47, s47, s37")
    a.e("s_and_b32 s37, s2, 7"); a.e("s_lshl_b32 s37, s37, 7"); a.e("s_add_u32 s47, s47, s37")
    a.e(f"v_mov_b32 v{ua}, {LW+8}"); a.e("v_mov_b32 v7, 1")
    ya = v()
    a.e(f"s_mul_i32 s36, s30, {CHB+64}")
    a.e(f"v_mul_u32_u24 v{ya}, 72, v{J}"); a.e(f"v_lshl_add_u32 v{ya}, v{G}, 3, v{ya}"); a.e(f"v_add_u32 v{ya}, s36, v{ya}")
    a.e("v_lshlrev_b32 v6, 10, v1"); assert t == 6 and PWA
    a.e(f"v_mov_b32 v{J}, 0"); a.e("s_and_b32 s45, s2, 31"); a.e("s_lshl_b32 s45, s45, 7"); a.e(f"s_add_u32 s45, s45, {F_RES}")
    a.e("s_cmp_lg_u32 s30, 0"); a.e("s_cbranch_scc1 CV_w")
    a.e("s_and_b32 s36, s2, 7"); a.e("s_lshl_b32 s36, s36, 12"); a.e(f"s_add_u32 s36, s36, {F_KVT}")
    a.e(f"v_lshlrev_b32 v{pt+1}, 7, v{lane}"); a.e(f"v_add_u32 v{pt+1}, s36, v{pt+1}")
    poll_core(a, pt, [pt + 1], 0xffffffff)
    lds_set(a, LW + 16, 1, pt)
    a.e("CV_w:")
    lds_spin(a, LW + 16, 1, pt)
    mstamp(a)
    for it in range(4): a.e(f"buffer_load_dwordx4 {vr(u+4*it,4)}, v{l16}, s[16:19], 0 offen offset:{1024*it} {os.environ.get('UF', SC + ' nt')}")
    QL = int(os.environ.get("QL", "3"))
    if not QL: load_q(a)
    for it in range(4):
        a.e(f"s_waitcnt vmcnt({(3 if QL else 7)-it})")
        a.e(f"ds_write_b128 v{uw}, {vr(u+4*it,4)} offset:{UOFF + 16*US*it}")
    a.e(f"v_mov_b32 v{pt}, {LW+20}"); a.e(f"v_mov_b32 v{pt+1}, 1")
    a.e("s_mov_b64 exec, 1"); a.e(f"ds_add_u32 v{pt}, v{pt+1}"); a.e("s_mov_b64 exec, -1")
    a.e("s_waitcnt lgkmcnt(0)")
    mstamp(a)
    for x in rdB(0, 0): a.e(x)
    for c_ in range(4):
        a.e(f"s_waitcnt lgkmcnt({3-c_})")
        for mt in range(2): a.e(f"v_mfma_f32_16x16x32_bf16 {vr(acc+8*c_+4*mt,4)}, {vr(dm_+4*mt,4)}, {vr(fb+4*c_,4)}, 0")
    def step(p, nxt, tail, piped=False):
        a.e(f"s_waitcnt lgkmcnt({10 if piped else 0})")
        mf = [(c_, s_, mt) for s_ in range(4) for mt in range(2) for c_ in range(s_, 4)]
        for i, (c_, s_, mt) in enumerate(mf):
            A = acc + 8 * c_ + 4 * mt
            a.e(f"v_mfma_f32_16x16x32_bf16 {vr(A,4)}, {vr(fa+32*p+8*s_+4*mt,4)}, {vr(fb+16*p+4*(c_-s_),4)}, {vr(A,4)}")
            if nxt: a.e(nxt.pop(0))
            if piped and i == 9: a.e("s_waitcnt lgkmcnt(10)")
            for x in tail.pop(i, []) if tail else []: a.e(x)
        assert not nxt and not tail
    a.e("s_mov_b32 s43, 0")
    NU = int(os.environ.get("NU", "4")); HP = int(os.environ.get("HP", "0")); VT = int(os.environ.get("VT", "5"))
    vt = {1: [f"s_cmp_eq_u32 s43, {VT}"], 2: ["s_cselect_b64 exec, 1, 0", f"buffer_load_dword v{uw}, v{J}, s[56:59], s45 offen {SC}", "s_mov_b64 exec, -1"]}
    if NU:
        a.e("CV_r:")
        for p in range(2):
            rd = rdB(1 - p, p + 1) + rdA(1 - p, p + 1)
            step(p, rd[:HP], dict(vt) if p == 0 and VT < NU else [])
            for x in rd[HP:]: a.e(x)
        for x in [f"v_add_u32 v{aa}, 128, v{aa}", f"v_add_u32 v{ba}, {2*US}, v{ba}", "s_add_u32 s43, s43, 1", f"s_cmp_lt_u32 s43, {NU}"]: a.e(x)
        a.e("s_cbranch_scc1 CV_r")
    if QL == 1: load_q(a)
    a.e("CV_l:")
    step(0, rdB(1, 1) + rdA(1, 1), dict(vt) if VT >= NU else [], True)
    step(1, rdB(0, 2) + rdA(0, 2), {19: [f"v_add_u32 v{aa}, 128, v{aa}"], 5: [f"v_add_u32 v{ba}, {2*US}, v{ba}"], 6: ["s_add_u32 s43, s43, 1"], 7: ["s_cmp_lt_u32 s43, 8"]}, True)
    a.e("s_cbranch_scc1 CV_l")
    mstamp(a)
    if os.environ.get("EPR"): a.e("s_setprio " + os.environ["EPR"])
    for c_ in range(4):
        for mt in range(2):
            A = acc + 8 * c_ + 4 * mt; O = u + 2 * (c_ * 2 + mt)
            a.e(f"v_cvt_pk_bf16_f32 v{O}, v{A}, v{A+1}"); a.e(f"v_cvt_pk_bf16_f32 v{O+1}, v{A+2}, v{A+3}")
            a.e(f"ds_write_b64 v{ya}, {vr(O,2)} offset:{c_*16*72 + mt*32}")
    a.e("s_mov_b64 exec, 1"); a.e(f"ds_add_u32 v{ua}, v7"); a.e("s_mov_b64 exec, -1")
    a.e("s_mov_b32 s53, 0"); a.e("s_waitcnt vmcnt(0)")
    a.e("CV_v:")
    a.e(f"v_readfirstlane_b32 s94, v{uw}"); a.e("s_sub_u32 s94, s94, s52"); a.e("s_and_b32 s37, s94, 0xfffffe01"); a.e("s_cbranch_scc0 CV_k")
    a.e(f"buffer_load_dword v{uw}, v{J}, s[56:59], s45 offen {SC}"); a.e("s_waitcnt vmcnt(0)")
    a.e("s_add_u32 s53, s53, 1"); a.e("s_cmp_lt_u32 s53, s61"); a.e("s_cbranch_scc1 CV_v"); a.e("s_mov_b32 s61, 0"); a.e("s_mov_b32 s94, 0")
    a.e("CV_k:")
    a.e("s_lshr_b32 s94, s94, 1"); a.e("s_add_u32 s37, s94, 65536"); a.e(f"v_mov_b32 v{pt}, {LW+28}"); a.e(f"v_mov_b32 v{pt+1}, s37"); a.e(f"ds_write_b32 v{pt}, v{pt+1}")
    a.e(f"s_cmp_gt_u32 s94, {QUO // 2}"); a.e("s_cselect_b32 s37, 0x2000, 0"); a.e("s_xor_b32 s44, s44, s37")
    a.e("s_xor_b32 s45, s47, s37"); a.e(f"s_add_u32 s45, s45, {F_FRONT}")
    lds_spin(a, LW + 8, 6, pt)
    for i in range(8): a.e(f"ds_read_b64_tr_b16 {vr(fa+32+2*i,2)}, v{ta} offset:{288*(i>>1) + 32*(i&1)}")
    for i in range(4):
        a.e(f"s_waitcnt lgkmcnt({6-2*i})")
        mark(a, fa + 32 + 4 * i, 1)
        a.e(f"buffer_store_dwordx4 {vr(fa+32+4*i,4)}, v{go}, s[12:15], s44 offen {SC}")
        a.e(f"s_add_u32 s44, s44, {GSTR}")
    if PUTE:
        a.e(f"v_mov_b32 v{pt}, {LW+20}"); a.e(f"v_mov_b32 v{pt+1}, 1")
        a.e("s_mov_b64 exec, 1"); a.e(f"ds_add_u32 v{pt}, v{pt+1}"); a.e("s_mov_b64 exec, -1")
    assert v.hi <= 176

PK = 48; W3S = 176
RFO, RYO, RRO, RI, RXA, RXB, RYY, RT = 196, 197, 198, 199, 180, 188, 230, 228
def r_addr(a, full=True):
    t, t2, I, fo, ro, yo = RT, RT + 1, RI, RFO, RRO, RYO
    a.e(f"v_and_b32 v{I}, 7, v0")
    a.e(f"v_lshrrev_b32 v{t}, 6, v0"); a.e(f"v_lshlrev_b32 v{t}, 4, v{t}"); a.e(f"v_bfe_u32 v{t2}, v0, 3, 3"); a.e(f"v_add_u32 v{t}, v{t}, v{t2}")
    a.e("s_lshr_b32 s78, s29, 1"); a.e("s_lshl_b32 s78, s78, 16"); a.e("s_and_b32 s79, s29, 1"); a.e("s_lshl_b32 s79, s79, 7"); a.e("s_add_u32 s78, s78, s79")
    a.e("s_lshr_b32 s79, s30, 1"); a.e("s_lshl_b32 s79, s79, 13"); a.e("s_add_u32 s78, s78, s79")
    a.e(f"v_lshlrev_b32 v{fo}, 8, v{t}"); a.e(f"v_lshl_add_u32 v{fo}, v{I}, 4, v{fo}"); a.e(f"v_add_u32 v{fo}, s78, v{fo}")
    if not full: return
    a.e("s_lshl_b32 s78, s28, 7"); a.e("s_lshl_b32 s79, s29, 3"); a.e("s_add_u32 s78, s78, s79")
    a.e(f"v_add_u32 v{yo}, s78, v{I}"); a.e(f"v_lshlrev_b32 v{ro}, 11, v{yo}")
    a.e(f"v_lshrrev_b32 v{t2}, 2, v{t}"); a.e(f"v_lshlrev_b32 v{t2}, 3, v{t2}"); a.e(f"v_and_b32 v{t}, 3, v{t}"); a.e(f"v_add_u32 v{t}, v{t}, v{t2}")
    a.e(f"v_lshl_add_u32 v{ro}, v{t}, 3, v{ro}")
    a.e(f"v_and_b32 v{yo}, 15, v{yo}"); a.e(f"v_lshlrev_b32 v{yo}, 4, v{yo}"); a.e(f"v_and_b32 v{t2}, 15, v{t}"); a.e(f"v_lshl_add_u32 v{yo}, v{t2}, 9, v{yo}")
    a.e(f"v_lshrrev_b32 v{t2}, 4, v{t}"); a.e(f"v_lshl_add_u32 v{yo}, v{t2}, 14, v{yo}")
    a.e("s_lshr_b32 s78, s28, 3"); a.e("s_lshl_b32 s78, s78, 2"); a.e("s_and_b32 s79, s28, 3"); a.e("s_add_u32 s78, s78, s79"); a.e("s_lshl_b32 s78, s78, 24")
    a.e("s_and_b32 s79, s28, 4"); a.e("s_lshl_b32 s79, s79, 11"); a.e("s_add_u32 s78, s78, s79")
    a.e("s_and_b32 s79, s29, 4"); a.e("s_lshl_b32 s79, s79, 6"); a.e("s_add_u32 s78, s78, s79"); a.e("s_and_b32 s79, s29, 2"); a.e("s_lshl_b32 s79, s79, 2"); a.e("s_add_u32 s78, s78, s79")
    a.e("s_lshl_b32 s79, s31, 18"); a.e("s_add_u32 s78, s78, s79"); a.e(f"v_add_u32 v{yo}, s78, v{yo}")
def load_y(a, skip_last=False):
    a.srd(80, 4, 8 * GSTR - oHS, off=LB0 + oHS)
    for j in range(2):
        for hh in range(2):
            a.e(f"s_mov_b32 s78, {j*16384 + hh*2048}")
            a.e(f"buffer_load_dwordx2 {vr(RYY+4*j+2*hh,2)}, v{RYO}, s[80:83], s78 offen {os.environ.get('YF', SC)}")
def r_pre(a, l0=False):
    r_addr(a, False)
    lsrd(a, 84, oX3, XSZ); lsrd(a, 88, oX1P, XSZ)
    if l0: a.e("s_cmp_eq_u32 s60, 0"); a.e("s_cselect_b64 exec, -1, 0")
    for j in range(2):
        a.e(f"buffer_load_dwordx4 {vr(RXA+4*j,4)}, v{RFO}, s[84:87], 0 offen offset:{2048*j} {SC}")
        a.e(f"buffer_load_dwordx4 {vr(RXB+4*j,4)}, v{RFO}, s[88:91], 0 offen offset:{2048*j} {SC}")
    if l0: a.e("s_mov_b64 exec, -1")
def r_pre0(a): r_pre(a, True)
def r_pre1(a):
    X = a.lab("rp"); a.e("s_cmp_lg_u32 s60, 0"); a.e(f"s_cbranch_scc1 {X}"); call(a, r_pre); a.e(f"{X}:")

def r_stage(a, final):
    v = VA(6)
    t = v(); t2 = v(); I = RI; fo = RFO; ro = RRO; pt = v(4, 2)
    xa = RXA; xb = RXB; yy = RYY; x = 206; yf = 222; w = v(16, 4); tmp = v()
    pre = final == "pre"
    S = v(2, 2); pp = v(2, 2); qq = v(2, 2); st = w; mean = v(2, 2); rs = mean + 1; var = v(); sw = v(); sr = v()
    def part(src, n):
        a.e(f"v_pk_add_f32 {vr(pp,2)}, {vr(src,2)}, {vr(src+2,2)}"); a.e(f"v_pk_mul_f32 {vr(qq,2)}, {vr(src,2)}, {vr(src,2)}")
        for i in range(1, 8):
            if i > 1: a.e(f"v_pk_add_f32 {vr(pp,2)}, {vr(pp,2)}, {vr(src+2*i,2)}")
            a.e(f"v_pk_fma_f32 {vr(qq,2)}, {vr(src+2*i,2)}, {vr(src+2*i,2)}, {vr(qq,2)}")
        a.e(f"v_add_f32 v{S}, v{pp}, v{pp+1}"); a.e(f"v_add_f32 v{S+1}, v{qq}, v{qq+1}")
        for k in range(2): a.e(f"v_add_f32_dpp v{S+k}, v{S+k}, v{S+k} row_ror:8 row_mask:0xf bank_mask:0xf")
        for op in ("v_permlane16_swap_b32", "v_permlane32_swap_b32"):
            for k in range(2): a.e(f"v_mov_b32 v{pp+k}, v{S+k}")
            for k in range(2): a.e(f"{op} v{S+k}, v{pp+k}")
            a.e(f"v_pk_add_f32 {vr(S,2)}, {vr(S,2)}, {vr(pp,2)}")
        a.e(f"ds_write_b64 v{sw}, {vr(S,2)} offset:{n*512}")
    def comb(n):
        for k in range(4): a.e(f"ds_read_b128 {vr(st+4*k,4)}, v{sr} offset:{n*512+16*k}")
        a.e("s_waitcnt lgkmcnt(0)")
        for k in range(4): a.e(f"v_pk_add_f32 {vr(st+4*k,2)}, {vr(st+4*k,2)}, {vr(st+4*k+2,2)}")
        a.e(f"v_pk_add_f32 {vr(st,2)}, {vr(st,2)}, {vr(st+4,2)}"); a.e(f"v_pk_add_f32 {vr(st+8,2)}, {vr(st+8,2)}, {vr(st+12,2)}")
        a.e(f"v_pk_add_f32 {vr(st,2)}, {vr(st,2)}, {vr(st+8,2)}")
        a.e(f"v_mul_f32 v{mean}, {f32(1/1024)}, v{st}"); a.e(f"v_mul_f32 v{var}, {f32(1/1024)}, v{st+1}")
        a.e(f"v_fma_f32 v{var}, -v{mean}, v{mean}, v{var}"); a.e(f"v_max_f32 v{var}, 0, v{var}")
    SUBM = f"{vr(mean,2)} op_sel_hi:[1,0] neg_lo:[0,1] neg_hi:[0,1]"; MULR = f"{vr(mean,2)} op_sel:[0,1] op_sel_hi:[1,1]"
    if pre: a.e("s_waitcnt lgkmcnt(0)")
    if final is not True:
        a.e(f"v_lshlrev_b32 v{sr}, 6, v{I}"); a.e(f"v_add_u32 v{sr}, {AUX+2048}, v{sr}")
        a.e(f"s_lshl_b32 s35, s30, 3"); a.e(f"v_add_u32 v{sw}, s35, v{sr}")
    if pre:
        a.e("s_waitcnt vmcnt(0)")
        for i in range(8): unpack(a, x + 2 * i, x + 2 * i + 1, xa + i)
        part(x, 0)
        a.e("s_waitcnt lgkmcnt(0)"); a.e("s_barrier")
        return
    if not final:
        a.e(f"s_cmp_eq_u32 s60, 0"); a.e(f"s_cbranch_scc1 R_l0")
    else:
        a.e(f"s_load_dwordx2 s[6:7], s[0:1], {D_OUT}")
    lsrd(a, 8, oP0, XSZ, prev=True); lsrd(a, 12, oP1, XSZ, prev=True)
    lsrd(a, 20, oX3, XSZ); a.e("s_mov_b32 s78, 0x3f80"); a.e("s_mov_b32 s79, 0x3f800000")
    if "r" not in DP: a.e("s_waitcnt vmcnt(0)")
    for i in range(8):
        if not final: unpack(a, yf + 2 * i, yf + 2 * i + 1, yy + i)
        unpack(a, x + 2 * i, x + 2 * i + 1, xa + i); unpack(a, w + 2 * i, w + 2 * i + 1, xb + i)
        a.e(f"v_pk_add_f32 {vr(x+2*i,2)}, {vr(x+2*i,2)}, {vr(w+2*i,2)}")
    lds_ = [f"buffer_load_dwordx4 {vr(r+4*j,4)}, v{fo}, s[{q}:{q+3}], 0 offen offset:{2048*j} {os.environ.get('RF', SC)}" for j in range(2) for r, q in ((xa, 8), (xb, 12))]
    if "r" in DP: data_poll(a, lds_, (xa, xa + 4, xb, xb + 4), t, int(os.environ.get("RNAP", "4")), int(os.environ.get("RFIRST", "24")), int(os.environ.get("RCAN", "0"))); mstamp(a)
    else:
        poll(a, ST_G4, pt, prev=True)
        mstamp(a)
        for x_ in lds_: a.e(x_)
    for i in range(8):
        if i % 4 == 0 and "r" not in DP: a.e(f"s_waitcnt vmcnt({2 - i // 2})")
        u = w + 4 * (i & 3)
        if DOT:
            if i == 0:
                for r_ in (xa, xb):
                    for k in range(16): a.e(f"v_dot2_f32_bf16 v{x+k}, v{r_+k//2}, s{78+(k&1)}, v{x+k}")
                a.e("s_nop 2")
            continue
        unpack(a, u, u + 1, xa + i); unpack(a, u + 2, u + 3, xb + i)
        a.e(f"v_pk_add_f32 {vr(u,2)}, {vr(u,2)}, {vr(u+2,2)}")
        a.e(f"v_pk_add_f32 {vr(x+2*i,2)}, {vr(x+2*i,2)}, {vr(u,2)}")
        if final: a.e(f"v_cvt_pk_bf16_f32 v{xa+i}, v{x+2*i}, v{x+2*i+1}")
        else: round2(a, x + 2 * i, x + 2 * i + 1, tmp)
    if final:
        a.e("s_waitcnt lgkmcnt(0)")
        a.srd(20, 6, 4 * MB)
        OS = os.environ.get("OS", "sc1")
        if os.environ.get("OWIDE", "1") == "1":
            a.e(f"v_bfe_u32 v{t}, v1, 3, 1"); a.e(f"v_cmp_eq_u32 vcc, 1, v{t}")
            for j in range(2):
                lo, hi = xa + 4 * j, xa + 4 * j + 2
                for e in range(2):
                    a.e(f"v_cndmask_b32 v{x+e}, v{hi+e}, v{lo+e}, vcc")
                for e in range(2):
                    a.e(f"v_mov_b32_dpp v{x+2+e}, v{x+e} row_ror:8 row_mask:0xf bank_mask:0xf")
                for e in range(2):
                    a.e(f"v_cndmask_b32 v{x+4+e}, v{lo+e}, v{x+2+e}, vcc"); a.e(f"v_cndmask_b32 v{hi+e}, v{x+2+e}, v{hi+e}, vcc")
                for e in range(2): a.e(f"v_mov_b32 v{lo+e}, v{x+4+e}")
            a.e(f"v_bfe_u32 v{t2}, v1, 4, 1"); a.e(f"v_lshlrev_b32 v{t}, 5, v{t}"); a.e(f"v_lshl_add_u32 v{t}, v{t2}, 4, v{t}")
            a.e(f"v_and_b32 v{t2}, 0xffffffc0, v{ro}"); a.e(f"v_add_u32 v{t}, v{t}, v{t2}")
            for j in range(2): a.e(f"buffer_store_dwordx4 {vr(xa+4*j,4)}, v{t}, s[20:23], 0 offen offset:{128*j} {OS}")
        else:
            for j in range(4): a.e(f"buffer_store_dwordx2 {vr(xa+2*j,2)}, v{ro}, s[20:23], 0 offen offset:{128*(j>>1) + 32*(j&1)} {OS}")
        return v.hi
    part(x, 0)
    if os.environ.get("RST"): mstamp(a)
    a.e("s_waitcnt lgkmcnt(0)"); a.e("s_barrier")
    if os.environ.get("RST"): mstamp(a)
    comb(0)
    ln_finish(a, mean, var, rs)
    if os.environ.get("RST"): mstamp(a)
    a.e(f"v_mul_f32 v{mean}, v{mean}, v{rs}")
    for i in range(8): a.e(f"v_pk_fma_f32 {vr(w+2*i,2)}, {vr(x+2*i,2)}, {vr(mean,2)}, {vr(mean,2)} op_sel:[0,1,0] op_sel_hi:[1,1,0] neg_lo:[0,0,1] neg_hi:[0,0,1]")
    for i in range(8):
        D = w + 2 * i
        a.e(f"v_pk_fma_f32 {vr(x+2*i,2)}, {vr(D,2)}, {vr(yf+2*i,2)}, {vr(x+2*i,2)}")
        a.e(f"v_cvt_pk_bf16_f32 v{xa+i}, v{x+2*i}, v{x+2*i+1}")
        if i % 4 == 1 and DP: mark(a, xa + i - 1, 0)
        if i % 4 == 3: a.e(f"buffer_store_dwordx4 {vr(xa+i-3,4)}, v{fo}, s[20:23], 0 offen offset:{2048*(i//4)} {SC}")
    if os.environ.get("RST"): mstamp(a)
    a.e("s_branch R_s2")
    a.e("R_l0:")
    for i in range(8): unpack(a, x + 2 * i, x + 2 * i + 1, xa + i)
    part(x, 0)
    a.e("s_waitcnt lgkmcnt(0)")
    st_ = st; st = yf
    lds_spin(a, LW + 28, 65536, st, dst=94)
    if STAMP: a.e("s_and_b32 s95, s94, 0xffff")
    a.e(f"s_cmp_gt_u32 s94, {65536 + QUO // 2}"); a.e("s_cselect_b32 s94, 1, 0")
    a.e("s_lshl_b32 s53, s94, 13"); a.e(f"v_xor_b32 v{RYO}, s53, v{RYO}")
    FL = int(os.environ.get("FL", "1"))
    if FL:
        group_off(a, 36, 28); a.e("s_lshr_b32 s53, s53, 14"); a.e("s_add_u32 s36, s53, s54"); a.e(f"s_xor_b32 s36, s36, {(((F_FRONT >> 21) ^ (F_FRONT >> 13) ^ (FL >> 1)) & 1) << 13}")
    else: a.e("s_lshl_b32 s36, s28, 10")
    a.e(f"s_add_u32 s36, s36, {F_FRONT}"); a.e("s_lshl_b32 s53, s30, 7"); a.e("s_add_u32 s36, s36, s53"); a.e(f"v_mov_b32 v{st+4}, s36")
    a.e("s_waitcnt vmcnt(0)"); a.e("s_barrier")
    poll_core(a, st, [st + 4], 1, cnt=32, nap=FSLEEP)
    load_y(a)
    group_off(a, 55, 28)
    a.e("s_add_u32 s62, s4, s55"); a.e("s_addc_u32 s63, s5, 0")
    a.e("s_sub_u32 s36, s28, 1"); a.e("s_max_i32 s36, s36, 0"); group_off(a, 92, 36); a.e("s_sub_u32 s92, s92, s55")
    a.e("s_add_u32 s36, s28, 1"); a.e("s_min_u32 s36, s36, 15"); group_off(a, 93, 36); a.e("s_sub_u32 s93, s93, s55")
    a.e(f"s_add_u32 s55, s55, {oSM}")
    lsrd(a, 20, oX3, XSZ)
    st = st_; comb(0); ln_finish(a, mean, var, rs); st = yf
    for i in range(8):
        D = w + 2 * i
        a.e(f"v_pk_add_f32 {vr(D,2)}, {vr(x+2*i,2)}, {SUBM}"); a.e(f"v_pk_mul_f32 {vr(D,2)}, {vr(D,2)}, {MULR}")
    a.e("s_barrier")
    mstamp(a)
    a.e("s_waitcnt vmcnt(0)")
    for i in range(8):
        D = w + 2 * i
        unpack(a, st, st + 1, yy + i)
        a.e(f"v_pk_fma_f32 {vr(x+2*i,2)}, {vr(D,2)}, {vr(st,2)}, {vr(x+2*i,2)}"); a.e(f"v_cvt_pk_bf16_f32 v{xa+i}, v{x+2*i}, v{x+2*i+1}")
        if i % 4 == 1 and DP: mark(a, xa + i - 1, 0)
        if i % 4 == 3: a.e(f"buffer_store_dwordx4 {vr(xa+i-3,4)}, v{fo}, s[20:23], 0 offen offset:{2048*(i//4)} {SC}")
    a.e("R_s2:")
    st = st_
    for i in range(8): unpack(a, x + 2 * i, x + 2 * i + 1, xa + i)
    part(x, 1)
    if "1" in DP:
        a.e("s_waitcnt lgkmcnt(0)"); a.e("s_barrier")
        a.e("s_cmp_lg_u32 s30, 6"); a.e("s_cbranch_scc1 R_n6"); a.e("s_cmp_lg_u32 s60, 0"); a.e("s_cbranch_scc1 R_n6")
        a.e("s_lshl_b32 s53, s29, 7"); a.e(f"s_add_u32 s53, s53, {F_CS}"); a.e(f"v_mov_b32 v{pt}, 1"); a.e(f"v_mov_b32 v{pt+1}, 0")
        a.e("s_mov_b64 exec, 1"); a.e(f"buffer_atomic_add v{pt}, v{pt+1}, s[56:59], s53 offen {SC}"); a.e("s_mov_b64 exec, -1")
        a.e("R_n6:")
    else:
        publish(a, ST_R, 8, pt)
        a.e("s_barrier")
    a.e(f"s_cmp_lg_u32 s30, {7 if '1' in DP else 0}"); a.e("s_cbranch_scc1 R_nl")
    comb(1)
    outv = yf + 2; s3 = v(); m4 = v(); v4_ = v(); r4 = v()
    assert v.hi <= PK
    a.e(f"v_mov_b32 v{m4}, v{mean}"); a.e(f"v_mov_b32 v{v4_}, v{var}")
    ln_finish(a, mean, var, rs, s3)
    a.e(f"v_sub_f32 v{m4}, v{m4}, v{mean}"); a.e(f"v_mul_f32 v{m4}, v{m4}, v{rs}")
    a.e(f"v_mul_f32 v{v4_}, v{v4_}, v{rs}"); a.e(f"v_mul_f32 v{v4_}, v{v4_}, v{rs}")
    ln_finish(a, m4, v4_, r4)
    a.e(f"v_mov_b32 v{outv}, v{mean}"); a.e(f"v_mov_b32 v{outv+1}, v{rs}")
    a.e(f"v_fma_f32 v{outv+2}, v{m4}, v{s3}, v{mean}"); a.e(f"v_mul_f32 v{outv+3}, v{rs}, v{r4}")
    lsrd(a, 24, oLNS, 2048)
    a.e("s_lshl_b32 s36, s29, 3"); a.e(f"v_add_u32 v{t}, s36, v{I}"); a.e(f"v_lshlrev_b32 v{t}, 4, v{t}")
    a.e("s_mov_b64 exec, 0xff")
    a.e(f"buffer_store_dwordx4 {vr(outv,4)}, v{t}, s[24:27], 0 offen {SC}")
    a.e("s_mov_b64 exec, -1")
    publish(a, ST_R2, 1, pt)
    a.e("R_nl:")
    return v.hi

TAB = int(os.environ.get("TAB", "1")); TV = 248
def lead(seq, r, L, P=4):
    if L == 0: return list(seq)
    return [x for _, x in sorted(((i - L - 0.5 if i % P == r else i), x) for i, x in enumerate(seq))]
def order3(j, gi):
    mode, L = eval(os.environ.get("O3", "('r',0)"))
    if mode == "r": return [(gi + t) & 15 for t in range(16)]
    if mode == "n": return [gi] + [x for x in lead(range(16), (j + gi) & 3, L) if x != gi]
    if mode == "s": return [gi] + lead([x for x in range(16) if x != gi], (j + gi) & 3, L)
    if mode == "h": return [gi] + [x for x in lead([(t + (gi & 8)) & 15 for t in range(16)], (j + gi) & 3, L) if x != gi]
def order4(j, n):
    mode, L = eval(os.environ.get("O4", "('n',1)"))
    own = [(7 * n + i, 7 * n + 4 + i) for i in range(3)]
    ps = [(n + t) & 7 for t in range(8)] if mode == "r" else list(range(8))
    ab = [(7 * p + i, 7 * p + 4 + i) for i in range(2) for p in ps if p != n]
    c = [7 * p + o for p in ps for o in (2, 6, 3) if p != n or o == 3]
    rest = ab + [(c[2 * i], c[2 * i + 1]) for i in range(11)]
    if mode != "r": rest = lead(rest, (j + n + int(os.environ.get("O4R", "0"))) & 3, L)
    return own + rest
L4 = eval(os.environ.get("O4", "('n',1)"))[1] if TAB else 0
def tab_data(a):
    a.lines.append(".p2align 6"); a.lines.append("K_tab:")
    for gi in range(16):
        for j in range(4):
            o3 = order3(j, gi) + [0] * 16; o4 = order4(j, gi & 7) + [(0, 0)] * 4
            assert sorted(o3[:16]) == list(range(16)) and sorted(sum(o4[:28], ())) == list(range(56))
            a.lines.append(".short " + ",".join(str(o3[t] | o4[t][0] << 4 | o4[t][1] << 10) for t in range(32)))
def tab_load(a):
    a.e("s_getpc_b64 s[34:35]"); a.e("K_tpc:")
    a.e("s_lshl_b32 s36, s29, 2"); a.e("s_and_b32 s37, s28, 3"); a.e("s_add_u32 s36, s36, s37"); a.e("s_lshl_b32 s36, s36, 6")
    a.e("s_add_u32 s36, s36, K_tab-K_tpc"); a.e("s_add_u32 s34, s34, s36"); a.e("s_addc_u32 s35, s35, 0")
    a.e(f"v_and_b32 v{TV}, 31, v1"); a.e(f"v_lshlrev_b32 v{TV}, 1, v{TV}"); a.e(f"global_load_ushort v{TV+3}, v{TV}, s[34:35]")
def tab_make(a, w):
    T, x = TV + 3, TV + 4
    if not w:
        a.e(f"v_bfe_u32 v{x}, v{T}, 2, 2"); a.e(f"v_lshlrev_b32 v{TV}, 14, v{x}"); a.e(f"v_and_b32 v{x}, 3, v{T}"); a.e(f"v_lshl_add_u32 v{TV}, v{x}, 11, v{TV}")
        for lw in range(2):
            a.e(f"v_bfe_u32 v{x}, v{T}, {7+6*lw}, 3"); a.e(f"v_lshlrev_b32 v{TV+1+lw}, 14, v{x}"); a.e(f"v_bfe_u32 v{x}, v{T}, {4+6*lw}, 3"); a.e(f"v_lshl_add_u32 v{TV+1+lw}, v{x}, 10, v{TV+1+lw}")
    else:
        a.e(f"v_and_b32 v{x}, 15, v{T}"); a.e(f"v_mul_u32_u24 v{TV}, {64*7168}, v{x}")
        a.e("s_and_b32 s36, s30, 1"); a.e("s_mul_i32 s36, s36, 6"); a.e("s_add_u32 s36, s36, 4"); a.e(f"v_bfe_u32 v{x}, v{T}, s36, 6")
        assert all((q * 37) >> 8 == q // 7 for q in range(56))
        a.e(f"v_mul_u32_u24 v{TV+2}, 37, v{x}"); a.e(f"v_lshrrev_b32 v{TV+2}, 8, v{TV+2}"); a.e(f"v_mul_u32_u24 v{TV+2}, 7, v{TV+2}"); a.e(f"v_sub_u32 v{TV+2}, v{x}, v{TV+2}")
        a.e(f"v_cmp_eq_u32 vcc, 3, v{TV+2}"); a.e(f"v_cndmask_b32 v{TV+2}, 0, 1, vcc"); a.e(f"v_lshl_add_u32 v{TV+1}, v{x}, 16, v{TV+2}")
        for p_ in eval(os.environ.get("W4SKIP", "[]")): a.e("s_mov_b32 s36, 0x40000000"); a.e(f"v_writelane_b32 v{TV+1}, s36, {p_}")
def rot_init(a, which):
    if which == 3 and TAB: a.e("s_mov_b32 s44, 0")
    elif which == 3 and OWN3: a.e("s_mov_b32 s44, s29")
    elif which != 4: a.e("s_mov_b32 s44, s67")
    else: a.e("s_mov_b32 s44, 0")
def rot_next(a, which):
    a.e("s_add_u32 s44, s44, 1")
    if which != 4: a.e("s_and_b32 s44, s44, 15")
def kb4(a, d, lw):
    a.e("s_lshl_b32 s45, s44, 1"); a.e(f"s_add_u32 s45, s45, {lw}"); a.e("s_sub_u32 s45, s45, 32")
    a.e("s_mul_i32 s46, s45, 86"); a.e("s_lshr_b32 s46, s46, 8")
    a.e("s_mul_i32 s47, s46, 3"); a.e("s_sub_u32 s47, s45, s47"); a.e("s_lshl_b32 s47, s47, 2"); a.e("s_lshr_b32 s47, 0x362, s47"); a.e("s_and_b32 s47, s47, 7")
    a.e("s_cmp_ge_u32 s44, 10"); a.e("s_cselect_b32 s45, 9, 2"); a.e("s_cselect_b32 s51, 1, 0"); a.e("s_sub_u32 s45, s44, s45")
    a.e("s_cmp_lt_u32 s44, 3"); a.e("s_cselect_b32 s45, 0, s45"); a.e("s_cselect_b32 s51, s44, s51")
    a.e(f"s_lshl2_add_u32 s51, {lw}, s51")
    a.e("s_cmp_lt_u32 s44, 17"); a.e("s_cselect_b32 s47, s51, s47"); a.e("s_cselect_b32 s46, s45, s46")
    a.e("s_add_u32 s46, s46, s33"); a.e("s_and_b32 s46, s46, 7"); a.e("s_mul_i32 s46, s46, 7"); a.e(f"s_add_u32 s{d}, s46, s47")
assert all((q * 86) >> 8 == q // 3 for q in range(24))
WVB = {1: 238, 2: 238, 4: 239, 3: 241}
WV = 245
def w_lanes(a):
    t, t2 = WV + 8, WV + 9
    R = WVB[1]
    a.e(f"v_lshrrev_b32 v{t}, 3, v1"); a.e(f"v_lshlrev_b32 v{R}, 11, v{t}")
    a.e(f"v_and_b32 v{t}, 6, v{t}"); a.e(f"v_and_b32 v{t2}, 7, v1"); a.e(f"v_xor_b32 v{t}, v{t}, v{t2}"); a.e(f"v_lshl_add_u32 v{R}, v{t}, 4, v{R}")
    R = WVB[4]
    for p in range(2):
        a.e(f"v_lshrrev_b32 v{t}, 4, v1"); a.e(f"v_lshlrev_b32 v{R+p}, 11, v{t}")
        a.e(f"v_add_u32 v{t}, {4*p}, v{t}"); a.e(f"v_lshlrev_b32 v{t}, 1, v{t}"); a.e(f"v_and_b32 v{t2}, 15, v1"); a.e(f"v_xor_b32 v{t}, v{t}, v{t2}")
        a.e(f"v_lshl_add_u32 v{R+p}, v{t}, 4, v{R+p}")
    R = WVB[3]
    assert all((p * 2341) >> 16 == p // 28 for p in range(448))
    for ii in range(7):
        a.e(f"v_add_u32 v{t2}, {64*ii}, v1"); a.e(f"v_mul_u32_u24 v{t}, 2341, v{t2}"); a.e(f"v_lshrrev_b32 v{t}, 16, v{t}")
        a.e(f"v_mul_u32_u24 v{R+ii}, 28, v{t}"); a.e(f"v_sub_u32 v{t2}, v{t2}, v{R+ii}")
        a.e(f"v_mul_u32_u24 v{R+ii}, 7168, v{t}")
        a.e(f"v_lshrrev_b32 v{t}, 1, v{t}"); a.e(f"v_and_b32 v{t}, 2, v{t}"); a.e(f"v_xor_b32 v{t2}, v{t2}, v{t}")
        a.e(f"v_lshl_add_u32 v{R+ii}, v{t2}, 4, v{R+ii}")
def w_srd(a, which):
    c = CFG[which]
    a.e(f"s_mov_b64 s[12:13], s[{66+2*which}:{67+2*which}]")
    a.e(f"s_mov_b32 s14, {c['KBT'] * 32 * c['LDW']}"); a.e("s_mov_b32 s15, 0x20000")
def w_setup(a, which, pre=True, lo=0):
    c = CFG[which]; STB = c["STB"]; BW = STB // 2
    w_srd(a, which)
    a.e("s_and_b32 s35, s30, 1")
    a.e(f"s_mul_i32 s38, s{(0, 99, 29, 29, 33)[which]}, {c['RB']}");
    if which != 4: a.e(f"s_mul_i32 s41, s35, {32*c['LDW']}"); a.e("s_add_u32 s38, s38, s41")
    if which == 4: a.e(f"s_mul_i32 s41, s31, {1792*c['LDW']}"); a.e("s_add_u32 s38, s38, s41")
    a.e(f"s_mul_i32 s41, s35, {BW}"); a.e(f"s_add_u32 s41, s41, {c['WB']}")
    a.e("s_mov_b32 s42, 0"); rot_init(a, which)
    if not pre: return
    NP = c["NPRE"]
    a.e("s_mov_b32 s49, s44"); a.e("s_and_b32 s43, s28, 3"); a.e(f"s_mul_i32 s43, s43, {NP - lo}"); a.e("s_lshr_b32 s43, s43, 2"); a.e(f"s_mov_b32 s50, {lo}")
    if not WROT: a.e("s_mov_b32 s43, 0")
    if lo: a.e(f"s_add_u32 s43, s43, {lo}")
    L = a.lab("wpre"); a.e(f"{L}:")
    a.e(f"s_mul_i32 s42, s43, {STB}"); a.e("s_add_u32 s44, s49, s43")
    if which != 4: a.e("s_and_b32 s44, s44, 15")
    w_issue(a, which, pace=PACES.get(which, PACE))
    a.e("s_add_u32 s43, s43, 1"); a.e(f"s_cmp_eq_u32 s43, {NP}"); a.e(f"s_cselect_b32 s43, {lo}, s43")
    a.e("s_add_u32 s50, s50, 1"); a.e(f"s_cmp_lt_u32 s50, {NP}"); a.e(f"s_cbranch_scc1 {L}")
    mstamp(a)
    a.e(f"s_mov_b32 s42, {(NP % c['NW']) * STB}"); a.e(f"s_add_u32 s44, s49, {NP}")
    if which != 4: a.e("s_and_b32 s44, s44, 15")
YP = int(os.environ.get("YP", "0"))
def ypause(a):
    if not YP: return
    X = a.lab("yp")
    a.e(f"v_mov_b32 v6, {LW+4}"); a.e("ds_read2_b32 v[14:15], v6 offset0:0 offset1:1"); a.e("s_waitcnt lgkmcnt(0)"); a.e("v_readfirstlane_b32 s53, v15")
    a.e(f"s_cmp_lt_u32 s53, {YP}"); a.e(f"s_cbranch_scc1 {X}")
    lds_spin(a, LW + 20, 8, 6, nap=2)
    a.e(f"{X}:")
PD = int(os.environ.get("PD", "8")); PDA = int(os.environ.get("PDA", "0"))
def park_load(a, pace, q0=0, q1=32):
    w_srd(a, 2)
    a.e("s_and_b32 s35, s30, 3"); a.e("s_lshl_b32 s35, s35, 19"); a.e("s_lshl_b32 s39, s29, 7"); a.e("s_add_u32 s39, s39, s35")
    if q0: a.e(f"s_add_u32 s39, s39, {q0*16384}")
    for q in range(q0, q1):
        a.e(f"buffer_load_dwordx4 {vr(PK+4*q,4)}, v{WVB[2]}, s[12:15], s39 offen"); a.e("s_add_u32 s39, s39, 16384")
        if pace and q % 4 == 3: a.e(f"s_waitcnt vmcnt({pace})"); ypause(a)
def park(a): park_load(a, int(os.environ.get("PKP", "8")), 0, 32 - PD)
def park2(a): park_load(a, int(os.environ.get("PKP", "8")), 32 - PD, 32)
def park_rest(a, late):
    if not PD or (PDA and not late): return
    X = a.lab("pr")
    if late: a.e("s_cmp_lg_u32 s60, 0"); a.e(f"s_cbranch_scc1 {X}")
    if not PDA: a.e("s_and_b32 s36, s29, 6"); a.e("s_cmp_eq_u32 s36, 2"); a.e(f"s_cbranch_scc{0 if late else 1} {X}")
    call(a, park2); a.e(f"{X}:")
def late_park(a):
    X = a.lab("lp"); a.e("s_cmp_lg_u32 s60, 0"); a.e(f"s_cbranch_scc1 {X}"); call(a, park); a.e(f"{X}:")
PT = int(os.environ.get("PT", "1")); PTH = int(os.environ.get("PTH", "0"))
def before_d1(a): after_g1(a, True)
PT2 = int(os.environ.get("PT2", "0"))
def before_d2(a): after_g1(a, False, True)
def after_g1(a, pre=False, pre2=False):
    c = CFG[3]
    if os.environ.get("UPD0"): a.e("s_sleep " + os.environ["UPD0"])
    w_srd(a, 3)
    a.e(f"v_readlane_b32 s36, v{TV+3}, 0"); a.e(f"v_readlane_b32 s37, v{TV+3}, 1"); a.e(f"v_readlane_b32 s34, v{TV+3}, 2")
    a.e("s_and_b32 s35, s30, 3"); a.e(f"s_mul_i32 s38, s35, {16*7168}"); a.e("s_mul_i32 s39, s29, 448"); a.e("s_add_u32 s38, s38, s39")
    for r in (36, 37, 34): a.e(f"s_and_b32 s{r}, s{r}, 15"); a.e(f"s_mul_i32 s{r}, s{r}, {64*7168}"); a.e(f"s_add_u32 s{r}, s{r}, s38")
    if pre:
        a.e(f"s_lshl_b32 s54, s60, {2 if PEEL else 4}"); a.e(f"s_add_u32 s54, s54, {(4 if PEEL else 16) - PTH}"); lds_spin(a, LW + 80, "s54", 8, nap=2)
        for i in range(7): a.e(f"buffer_load_dwordx4 {vr(W3S+4*i,4)}, v{WVB[3]+i}, s[12:15], s37 offen")
        return
    a.e("s_mul_i32 s39, s35, 7168"); a.e(f"s_add_u32 m0, s39, {c['WB'] + c['S0'] * c['STB']}")
    if pre2: a.e("s_lshl_b32 s54, s60, 2"); a.e("s_add_u32 s54, s54, 4"); lds_spin(a, LW + 84, "s54", 8, nap=2)
    for i in range(7 if pre2 or not PT2 else 0):
        if i: a.e("s_add_u32 m0, m0, 1024")
        a.e(f"buffer_load_dwordx4 v{WVB[3]+i}, s[12:15], s36 offen lds")
    if pre2: return
    for i in range(7 if W3N == 2 and not PT else 0): a.e(f"buffer_load_dwordx4 {vr(W3S+4*i,4)}, v{WVB[3]+i}, s[12:15], s37 offen")
    a.e("s_lshr_b32 s36, s67, 2"); a.e("s_sub_u32 s36, s35, s36"); a.e("s_and_b32 s36, s36, 3"); a.e("s_lshl_b32 s36, s36, 15"); a.e(f"v_add_u32 v6, s36, v2")
    if W33 == 1:
        for i in range(7): a.e(f"buffer_load_dwordx4 {vr(16+4*i,4)}, v{WVB[3]+i}, s[12:15], s34 offen")
    a.e(f"s_waitcnt vmcnt({21 if W33 == 1 else 7 * W3N - (7 if PT2 else 0)})")
    if os.environ.get("UPD"): a.e("s_sleep " + os.environ["UPD"])
    for q in range(32): a.e(f"ds_write_b128 v6, {vr(PK+4*q,4)} offset:{CFG[2]['WB'] + 1024*q}")
    a.e("s_waitcnt lgkmcnt(0)")
W3N = int(os.environ.get("W3N", "2"))
W33 = int(os.environ.get("W33", "0"))
def third_late(a):
    a.e(f"s_sleep {W33}")
    for i in range(7): a.e(f"buffer_load_dwordx4 {vr(16+4*i,4)}, v{WVB[3]+i}, s[12:15], s34 offen")
def third_put(a):
    c = CFG[3]
    for i in range(7): a.e(f"ds_write_b128 v7, {vr(16+4*i,4)} offset:{c['STB'] + 1024*i}")
    a.e("s_waitcnt lgkmcnt(0)")
def after_g2(a):
    c = CFG[3]
    if W3N == 1:
        a.e("s_and_b32 s35, s30, 3"); a.e("s_mul_i32 s39, s35, 7168"); a.e(f"s_add_u32 m0, s39, {c['WB'] + (c['S0'] + 1) % c['NW'] * c['STB']}")
        for i in range(7):
            if i: a.e("s_add_u32 m0, m0, 1024")
            a.e(f"buffer_load_dwordx4 v{WVB[3]+i}, s[12:15], s37 offen lds")
        return
    a.e("s_and_b32 s35, s30, 3"); a.e("s_mul_i32 s39, s35, 7168"); a.e(f"s_add_u32 s39, s39, {c['WB'] + (c['S0'] + 1) % c['NW'] * c['STB']}"); a.e("v_add_u32 v7, s39, v2")
    for i in range(7): a.e(f"ds_write_b128 v7, {vr(W3S+4*i,4)} offset:{1024*i}")
    a.e("s_waitcnt vmcnt(0) lgkmcnt(0)")
SUBX = {}
def call(a, f):
    SUBX[f.__name__] = f; a.e(f"s_call_b64 s[76:77], SUB_{f.__name__}")
def w1_slots(a, js, pace=0):
    for j in js:
        a.e(f"s_mov_b32 s42, {j*8192}"); a.e("s_mov_b32 s44, s67"); a.e(f"s_add_u32 s44, s44, {j}"); a.e("s_and_b32 s44, s44, 15")
        call_issue(a, w_issue, 1)
        if pace: a.e(f"s_waitcnt vmcnt({pace})")
def w1_done(a):
    a.e("s_mov_b32 s42, 0"); a.e("s_mov_b32 s44, s67"); a.e("s_add_u32 s44, s44, 13"); a.e("s_and_b32 s44, s44, 15")
class Rec:
    def __init__(s_): s_.l = []
    def e(s_, x): s_.l.append(x)
    srd = Asm.srd
def w_parts(which, direct=False):
    c = CFG[which]; STB = c["STB"]; n = STB // 2048; LDW = c["LDW"]; b = Rec()
    b.e("s_add_u32 s19, s41, s42")
    arm = ["s_mov_b32 m0, s19", "s_mov_b32 s39, s16"]
    if which == 4 and TAB:
        b.e(f"v_readlane_b32 s16, v{TV+1}, s44")
        b.e("s_bitcmp1_b32 s16, 0"); b.e(f"s_cselect_b32 s17, {8*2048}, {4*2048}".replace(f"{4*2048}", "s45")); b.e(f"s_cselect_b32 s18, {-20*2048}, s45")
        b.e("s_andn2_b32 s16, s16, 1"); b.e("s_add_u32 s16, s16, s38")
        b.l.insert(0, f"s_mov_b32 s45, {4*2048}")
        arm += ["s_mov_b32 s32, s17", "s_mov_b32 s3, s18"]
        if os.environ.get("W4SKIP"): arm += ["s_bitcmp1_b32 s16, 30", "s_cselect_b64 exec, 0, -1"]
    elif which == 3 and TAB and not direct:
        b.e(f"v_readlane_b32 s16, v{TV}, s44"); b.e("s_add_u32 s16, s16, s38")
    elif which == 4:
        b.e("s_and_b32 s40, s30, 1"); kb4(b, 16, "s40")
        b.e(f"s_mul_i32 s16, s16, {32*LDW}"); b.e("s_add_u32 s16, s16, s38")
        b.e("s_cmp_eq_u32 s47, 3"); b.e("s_cselect_b32 s17, 8, 4"); b.e("s_cselect_b32 s18, -20, 4")
        b.e("s_lshl_b32 s17, s17, 11"); b.e("s_lshl_b32 s18, s18, 11")
        arm += ["s_mov_b32 s32, s17", "s_mov_b32 s3, s18"]
    else:
        b.e(f"s_mul_i32 s16, s44, {64*LDW}"); b.e("s_add_u32 s16, s16, s38")
    if f"w{which}" in os.environ.get("HOT", ""): b.e("s_mov_b32 s16, s38")
    rot_next(b, which)
    b.e(f"s_add_u32 s42, s42, {STB}"); b.e(f"s_cmp_eq_u32 s42, {c['NW']*STB}"); b.e("s_cselect_b32 s42, 0, s42")
    fire = []
    for i in range(n):
        g = []
        if i:
            g.append("s_add_u32 m0, m0, 1024")
            if which in (1, 2): g.append(f"s_add_u32 s39, s39, {8*LDW}")
            elif which == 4: g.append(f"s_add_u32 s39, s39, s{3 if i == 4 else 32}")
            elif i == 7: g.append(f"s_add_u32 s39, s39, {16*LDW}")
        vo = WVB[which] + (0 if which in (1, 2) else (i & 1) if which == 4 else i % 7)
        fire.append(g + [f"buffer_load_dwordx4 v{vo}, s[12:15], s39 offen lds"])
    if f"w{which}" in os.environ.get("NOLD", ""): fire = [[x for x in g if not x.startswith("buffer_load")] + ["s_nop 0"] for g in fire]
    return b.l, arm, fire
def w_issue(a, which, pace=0, direct=False):
    prep, arm, fire = w_parts(which, direct)
    for x in prep + arm: a.e(x)
    for i, g in enumerate(fire):
        for x in g: a.e(x)
        if pace and (i % 4 == 3 or i == len(fire) - 1): a.e(f"s_waitcnt vmcnt({pace})")

def w_bases(a, which, dst, swn, ntl, t, t2):
    c = CFG[which]; RB = c["RB"]
    a.e(f"v_lshrrev_b32 v{t}, 2, v1")
    a.e(f"v_mul_u32_u24 v{dst}, {RB}, v{t}"); a.e(f"v_and_b32 v{t2}, 3, v1"); a.e(f"v_lshl_add_u32 v{dst}, v{t2}, 3, v{dst}")
    a.e(f"v_add_u32 v{dst}, {c['WB']}, v{dst}")
    if which == 3:
        a.e(f"s_mul_i32 s36, s{swn}, {7*32}"); a.e(f"v_add_u32 v{dst}, s36, v{dst}")
        a.e(f"v_bfe_u32 v{t}, v1, 4, 1"); a.e(f"v_lshlrev_b32 v{t}, 5, v{t}")
        a.e(f"s_cmp_eq_u32 s{swn}, 0"); a.e("s_cselect_b32 s36, 1, -1"); a.e(f"v_mul_lo_u32 v{t}, v{t}, s36")
        a.e(f"v_sub_u32 v{dst+1}, v{dst}, v{t}"); a.e(f"v_add_u32 v{dst}, v{dst}, v{t}")
        return 2, lambda nt, kk, h: (nt & 1, (32 * kk + 16 * h) * RB + 32 * nt)
    if which == 4: a.e(f"v_and_b32 v{t}, 7, v{t}")
    else: a.e(f"v_bfe_u32 v{t}, v{t}, 1, 2")
    for nt in range(ntl - 1, -1, -1):
        a.e(f"s_mul_i32 s36, s{swn}, {ntl}"); a.e(f"s_add_u32 s36, s36, {nt}")
        a.e(f"v_xor_b32 v{t2}, s36, v{t}"); a.e(f"v_lshl_add_u32 v{dst+nt}, v{t2}, 5, v{dst}")
    return ntl, lambda nt, kk, h: (nt, (32 * kk + 16 * h) * RB)

def a_parts(which):
    c = CFG[which]; b = Rec()
    if which <= 2 and NX:
        b.e("s_and_b32 s42, s48, 7"); b.e("s_lshl_b32 s42, s42, 14"); b.e("s_lshr_b64 s[48:49], s[48:49], 4")
    b.e("s_add_u32 s19, s41, s42")
    arm = ["s_mov_b32 m0, s19", "s_mov_b32 s39, s16"]; fire = []
    if which == 2:
        b.e(f"s_mul_i32 s16, s44, {8*PITCH}"); b.e("s_add_u32 s16, s16, s38")
        b.e("s_lshr_b32 s45, s44, 2"); b.e("s_xor_b32 s45, s45, s94"); b.e("s_and_b32 s45, s45, 1"); b.e("s_lshl_b32 s45, s45, 13"); b.e("s_add_u32 s16, s16, s45")
        b.e("s_lshr_b32 s45, s44, 3"); b.e("s_lshl_b32 s45, s45, 4"); b.e("s_add_u32 s45, s45, 16")
        b.e("s_sub_u32 s46, 0, s45"); b.e("s_bitcmp1_b32 s44, 2"); b.e("s_cselect_b32 s45, s45, s46"); b.e("s_add_u32 s16, s16, s45")
        step = PITCH
    elif which == 4:
        for lw in range(2):
            if TAB: b.e(f"v_readlane_b32 s{16+lw}, v{TV+1+lw}, s44")
            else: kb4(b, 16 + lw, lw); spread(b, 16 + lw, 16 + lw)
        for lw in range(2): b.e(f"s_add_u32 s{16+lw}, s{16+lw}, s38")
        arm.append("s_mov_b32 s40, s17")
        for i in range(4):
            for lw in range(2):
                fire.append((["s_add_u32 m0, m0, 1024"] if i or lw else []) + ([f"s_add_u32 s{39+lw}, s{39+lw}, {c['KBT']*2048}"] if i else []) +
                            [f"buffer_load_dwordx4 v2, s[12:15], s{39+lw} offen {SC} lds"])
    elif which == 3 and TAB:
        b.e(f"v_readlane_b32 s16, v{TV}, s44"); b.e("s_add_u32 s16, s16, s38"); step = c['KBT'] * 2048
    else:
        b.e("s_lshr_b32 s45, s44, 2"); b.e("s_lshl_b32 s45, s45, 14"); b.e("s_and_b32 s16, s44, 3"); b.e("s_lshl_b32 s16, s16, 11")
        b.e("s_add_u32 s16, s16, s45"); b.e("s_add_u32 s16, s16, s38"); step = c['KBT'] * 2048
    if f"a{which}" in os.environ.get("HOT", ""):
        b.e("s_mov_b32 s16, s38")
        if which == 4: b.e("s_add_u32 s17, s38, 1024")
    for i in range(4 if which != 4 else 0):
        fire.append((["s_add_u32 m0, m0, 2048", f"s_add_u32 s39, s39, {step}"] if i else []) + [f"buffer_load_dwordx4 v2, s[12:15], s39 offen {SC} lds"])
        fire.append([f"buffer_load_dwordx4 v2, s[12:15], s39 offen offset:1024 {SC} lds"])
    rot_next(b, which)
    if not (which <= 2 and NX):
        b.e(f"s_add_u32 s42, s42, 16384"); b.e(f"s_cmp_eq_u32 s42, {c['NA']*16384}"); b.e("s_cselect_b32 s42, 0, s42")
    if f"a{which}" in os.environ.get("NOLD", ""): fire = [[x for x in g if not x.startswith("buffer_load")] + ["s_nop 0"] for g in fire]
    return b.l, arm, fire
def a_issue(a, which):
    prep, arm, fire = a_parts(which)
    for x in prep + arm + sum(fire, []): a.e(x)
SUBS = {}
def call_issue(a, issue, which):
    nm = f"SUB_{issue.__name__}_{which}"; SUBS[nm] = (issue, which)
    a.e(f"s_call_b64 s[76:77], {nm}")
LATE = []; PEEL = int(os.environ.get("PEEL", "1"))
def emit_subs(a):
    for r_ in LATE:
        for x in r_.l: a.e(x)
    for nm, f in SUBX.items(): a.e(f"SUB_{nm}:"); f(a); a.e("s_setpc_b64 s[76:77]")
    for nm, (issue, which) in SUBS.items():
        a.e(f"{nm}:"); issue(a, which); a.e("s_setpc_b64 s[76:77]")
def ld_steps(a, which, N, per, issue, npre, rate=2, plan={}, lo=0, hi=None, last=None, hold=(), sched=None, armed=False):
    NS = CFG[which]["NS"]
    prep, arm, fire = (w_parts if issue is w_issue else a_parts)(which); h = max(1, per * HSPLIT // 8)
    plan = {b: (x if isinstance(x, list) else [x]) for b, x in plan.items()}
    q = [s_ for s_ in range(npre) for _ in range(per)]
    def after(tag):
        if issue is w_issue and which == 4 and isinstance(tag, int) and tag < npre: tag = npre - 1
        return len(q) - 1 - max(i for i, x in enumerate(q) if x == tag)
    issued = npre; steps = []
    for b in range(NS):
        acts = plan.get(b, []); was = {}
        def do(pos):
            for n_, act in enumerate(acts):
                if act[0] != pos: continue
                if act[1] is not None: was[n_] = after(act[1])
                q.extend([act[4]] * act[3])
        do(True)
        k = 0
        if (b > 0 or (sched is not None and issue is a_issue)) and b not in hold:
            k = max(0, min(rate, min(NS, b - 1 + N) - issued)) if sched is None else sched[b]
        assert k or not any(x[0] == "mid" for x in acts)
        for j in range(k):
            q.extend([issued] * h)
            if j == 0: do("mid")
            q.extend([issued] * (per - h)); issued += 1
        do(False)
        w = after(b); assert w <= 63
        if which == 3 and b == 0: w = 63
        steps.append((k, w, b if acts else None, tuple(sorted(was.items())), issued < NS))
    def em(l):
        for x in l:
            a.e(x)
            if x == "s_barrier" and os.environ.get("JIT"): mstamp(a)
    F1, F2 = sum(fire[:h], []), sum(fire[h:], [])
    lprep = prep
    if len(prep) > 8:
        nm = f"PREP_{issue.__name__}_{which}"; SUBS[nm] = ((lambda a_, w_, l=prep: [a_.e(x) for x in l]), which)
        prep = [f"s_call_b64 s[76:77], {nm}"]
    if lo == 0 and npre < NS and not armed: em(prep + arm)
    i = lo; HI = NS if hi is None else hi
    while i < HI:
        j = i
        while j < HI and steps[j] == steps[i]: j += 1
        k, w, ab, was, more = steps[i]; n = j - i; was = dict(was)
        def run(pos):
            for n_, act in enumerate(plan.get(ab, [])):
                if act[0] != pos: continue
                if n_ in was: a.e(f"s_waitcnt vmcnt({was[n_]})")
                act[2]()
        tail = [f"s_waitcnt vmcnt({w})", "s_barrier"]
        if n > 2 and k == 1:
            em(F1); a.e("s_mov_b32 s43, 1"); L = a.lab("ld"); a.e(f"{L}:")
            em(lprep + F2 + arm + tail + F1)
            a.e("s_add_u32 s43, s43, 1"); a.e(f"s_cmp_lt_u32 s43, {n}"); a.e(f"s_cbranch_scc1 {L}")
            em(prep + F2 + arm + tail)
        else:
            for r in range(n):
                run(True)
                for jj in range(k):
                    nxt = more or jj < k - 1
                    em(F1)
                    if jj == 0: run("mid")
                    em((prep if nxt else []) + F2 + (arm if nxt else []))
                run(False)
                em(tail)
        i = j
    if hi is not None: return
    if which == 4:
        if issue is a_issue: a.e("s_cmp_eq_u32 s60, 1"); a.e("s_cbranch_scc1 K_fin")
        elif hold is HOLD: a.e("s_branch K_fin"); return
        if not RPL: r_pre(a)
    TF = os.environ.get("TF", "1") == "1" and issue is a_issue and which == 3
    if last and not TF: last()
    late = os.environ.get("TLATE", "0") == "1"
    if late: a.e("s_barrier")
    if issue is a_issue and W4POS == f"{which}C":
        X = a.lab("tw4"); a.e("s_cmp_lg_u32 s60, 0"); a.e(f"s_cbranch_scc1 {X}"); touch(a, B_W4, 7 * MB, 200); a.e(f"{X}:")
    if not late: a.e("s_barrier")
    if TF: last()

RK = int(os.environ.get("RK", "7")); assert RK == 0 or C0PUB <= RK <= STQ
PA2 = int(os.environ.get("PA2", "1")); PBB = int(os.environ.get("PBB", "2")); PC0 = int(os.environ.get("PC0", "4"))
HOLD = eval(os.environ.get("HOLD", "[2,3,4]"))
KAD = int(os.environ.get("KAD", "1"))
WA = eval(os.environ.get("WA", "(1,2)"))
def keep(a, js, get):
    a.e("s_and_b32 s36, s30, 1"); a.e("s_lshl_b32 s36, s36, 12"); a.e(f"s_add_u32 s36, s36, {CFG[1]['WB'] + min(js)*8192}"); a.e("v_add_u32 v6, s36, v2")
    for n_, j in enumerate(js):
        for i in range(4):
            R = vr(16 + 16 * n_ + 4 * i, 4); o = (j - min(js)) * 8192 + i * 1024
            a.e(f"ds_read_b128 {R}, v6 offset:{o}" if get else f"ds_write_b128 v6, {R} offset:{o}")
    a.e("s_waitcnt lgkmcnt(0)")
def a_loader(a, which):
    c = CFG[which]
    if which <= 2:
        plan = side_jobs(a, 1) if which == 1 else {}
        if which == 1 and "1" in DP: mstamp(a); a.e(f"s_sleep {os.environ.get('SJD', '30')}")
        else: mstamp(a); a.e("s_barrier")
        mstamp(a)
        for b in sorted(plan):
            for act in (plan[b] if isinstance(plan[b], list) else [plan[b]]):
                if act[1] is not None: a.e("s_waitcnt vmcnt(0)")
                act[2]()
        if which == 1:
            a.e("s_cmp_lg_u32 s30, 4"); a.e("s_cbranch_scc1 AL_nw"); a.e("s_cmp_eq_u32 s60, 0"); a.e("s_cbranch_scc1 AL_nw")
            a.e(f"s_add_u32 s54, s55, {(fso(ST_G3) - LSTR) & 0xffffffff:#x}"); a.e("s_add_u32 s53, s54, s92"); a.e("v_mov_b32 v9, s53")
            a.e("s_add_u32 s53, s53, 128"); a.e("v_writelane_b32 v9, s53, 1")
            a.e("s_add_u32 s53, s54, s93"); a.e("v_writelane_b32 v9, s53, 2"); a.e("s_add_u32 s53, s53, 128"); a.e("v_writelane_b32 v9, s53, 3")
            poll_core(a, 8, [9], 15, cnt=8)
            a.e("AL_nw:")
            if WA: keep(a, WA, True)
            if PT: call(a, before_d1)
        if which == 2 and PT2: call(a, before_d2)
        if which == 2: a.e(f"s_waitcnt vmcnt({7 if PT2 == 2 else 0})")
        a.e("s_barrier")
        if which == 1 and "p" not in os.environ.get("FO", "1pd"): late_park(a)
        call(a, after_g1 if which == 1 else after_g2)
        return
    a.e("s_and_b32 s35, s30, 1")
    if which == 2:
        hs_srd(a, 12)
        a.e("s_lshl_b32 s38, s28, 11"); a.e("s_add_u32 s38, s38, 16384"); a.e(f"s_mul_i32 s36, s35, {4*PITCH}"); a.e("s_add_u32 s38, s38, s36")
    else:
        lsrd(a, 12, c["A"], XSZ if which != 4 else H2SZ)
        a.e(f"s_mul_i32 s38, s35, {4*c['KBT']*2048}")
        if which == 4: a.e(f"s_mul_i32 s36, s31, {7*16384}"); a.e("s_add_u32 s38, s38, s36")
    a.e("s_lshl_b32 s41, s35, 13"); a.e("s_mov_b32 s42, 0"); rot_init(a, which)
    assert c["NA"] == 3 or which == 3
    prep, arm, fire = a_parts(which)
    if which == 4:
        flag_addr(a, 9, ST_G3A); flag_addr(a, 10, ST_G3B); flag_addr(a, 12, ST_G3)
        a.e("v_mov_b32 v13, 1"); a.e("s_and_b32 s51, s30, 1"); a.e("s_lshl_b32 s51, s51, 30")
        def signal(r): a.e("s_mov_b64 exec, 1"); a.e(f"buffer_atomic_add v13, v{r}, s[56:59], s51 offen {SC}"); a.e("s_mov_b64 exec, -1")
        a.e("s_lshl_b32 s54, s60, 2"); a.e("s_add_u32 s54, s54, 4"); lds_spin(a, LW + 64, "s54", 14, nap=2)
        signal(9)
        if not PA2: poll_core(a, 8, [9], 1, cnt=8)
        mstamp(a)
        plan = {6 - L4: ("mid", None, lambda: flag_try(a, 11, 10), 1, "f"), 8 - L4: ("mid", "f", lambda: flag_check(a, 11, 10, 8), 0, None),
                13 - L4: ("mid", None, lambda: flag_try(a, 11, 12), 1, "g"), 15 - L4: ("mid", "g", lambda: flag_check(a, 11, 12, 8), 0, None)}
        plan = {k_: [x] for k_, x in plan.items()}
        if PA2:
            plan[1] = [(False, None, lambda: flag_try(a, 8, 9), 1, "a")]
            plan[2] = [(True, "a", lambda: flag_check(a, 8, 9, 8), 0, None)]
        if DP:
            a.e("v_xor_b32 v15, 128, v12")
            plan[20] = [("mid", None, lambda: flag_try(a, 11, 15), 1, "h")]; plan[22] = [("mid", "h", lambda: flag_check(a, 11, 15, 8), 0, None)]
        if int(os.environ.get("OT", "0")) >= 3:
            def ot():
                a.e(f"s_load_dwordx2 s[20:21], s[0:1], {D_OUT}"); a.e(f"s_mul_i32 s22, s60, {4*MB}"); a.e("s_mov_b32 s23, 0x20000"); a.e("s_lshl_b32 s36, s28, 18"); a.e("s_lshl_b32 s37, s29, 11")
                a.e("s_add_u32 s36, s36, s37"); a.e("s_waitcnt lgkmcnt(0)")
                a.e("s_mov_b64 exec, 1"); a.e(f"buffer_load_dword v16, v2, s[20:23], s36 offen {SC}"); a.e("s_mov_b64 exec, -1")
            plan.setdefault(int(os.environ["OT"]) % 100, []).append((False, None, ot, 1, "o"))
        plan.setdefault(PBB + 1, []).insert(0, (True, None, lambda: signal(10), 1, "s"))
        plan.setdefault(PC0 + 2, []).insert(0, (True, None, lambda: signal(12), 1, "s"))
        a.e("s_mov_b32 s44, 3")
        ld_steps(a, which, 3, 8, a_issue, 3, plan=plan, last=(lambda: keep(a, WA, False)) if WA and not KAD else None)
        if WA and KAD: keep(a, WA, False)
        return
    if which == 3:
        mask, cnt = flag_addr(a, 9, ST_G2)
        def wait2():
            if W33: call(a, third_put)
            elif B0E > 1: a.e(f"s_sleep {B0E}")
            poll_core(a, 8, [9], mask, cnt=cnt); mstamp(a); mstamp(a)
            if W3H: a.e("s_add_u32 s54, s60, 1"); lds_set(a, LW + 60, "s54", 10)
        N3 = 2 if "3" in DP else 1
        a.e(f"s_mov_b32 s44, {N3}"); a.e(f"s_mov_b32 s42, {16384*N3}")
        plan = side_jobs(a, 3)
        if os.environ.get("P30", "0") == "1":
            def wait0(): own_wait(a, ST_G2, False, 14); wait2()
            plan[0] = (True, None, wait0, 0, None)
            ld_steps(a, which, 3, 8, a_issue, 1, plan=plan, sched=[int(os.environ.get("P3N", "1")), 2 - int(os.environ.get("P3N", "1"))] + [1] * 13 + [0]); return
        plan[1] = (True, None, wait2, 0, None)
        PZ3 = int(os.environ.get("PZ3", "0"))
        if PZ3:
            a.srd(84, 4, 32 * MB, off=216 * MB)
            a.e("s_cmp_eq_u32 s60, 0"); a.e("s_cselect_b32 s86, s86, 0")
            for i in range(4): a.e(f"v_mov_b32 v{216+i}, -1")
            a.e("s_lshl_b32 s88, s2, 1"); a.e("s_and_b32 s50, s30, 1"); a.e("s_add_u32 s88, s88, s50"); a.e(f"s_mul_i32 s88, s88, {PZ3*12*1024}")
            def pz():
                for i in range(PZ3): a.e(f"buffer_store_dwordx4 v[216:219], v2, s[84:87], s88 offen offset:{i*1024} {SC}")
                a.e(f"s_add_u32 s88, s88, {PZ3*1024}")
            for b in range(2, 14):
                p_ = plan.get(b, []); p_ = p_ if isinstance(p_, list) else [p_]
                plan[b] = p_ + [(False, None, pz, PZ3, "z")]
        if V3:
            def w1_():
                X = a.lab("w1"); a.e("s_cmp_lg_u32 s60, 0"); a.e(f"s_cbranch_scc1 {X}"); a.e(f"s_sleep {B0E}"); poll_core(a, 8, [9], mask, cnt=cnt); a.e(f"{X}:")
                if int(os.environ.get("V3D", "0")): a.e("s_sleep " + os.environ["V3D"])
                mstamp(a); mstamp(a)
            def test(a):
                L = a.lab("sp"); D = a.lab("sq")
                a.e("s_add_u32 s47, s47, s41"); a.e("v_add_u32 v10, s47, v2"); a.e("s_mov_b32 s53, 0"); a.e("s_mov_b32 s34, m0")
                a.e(f"{L}:")
                for i in range(8): a.e(f"ds_read_b32 v{16+i}, v10 offset:{1024*i}")
                a.e("s_waitcnt lgkmcnt(0)")
                a.e("v_or3_b32 v16, v16, v17, v18"); a.e("v_or3_b32 v19, v19, v20, v21"); a.e("v_or3_b32 v16, v16, v22, v23"); a.e("v_bitop3_b32 v16, v16, v19, 1 bitop3:0xa8")
                a.e("v_cmp_ne_u32 vcc, 0, v16"); a.e(f"s_cbranch_vccz {D}")
                a.e(f"v_readlane_b32 s36, v{TV}, s46"); a.e("s_mov_b32 m0, s47"); a.e("s_add_u32 s36, s36, s38")
                for i in range(4):
                    if i: a.e("s_add_u32 m0, m0, 2048"); a.e("s_add_u32 s36, s36, 65536")
                    for k in range(2): a.e(f"buffer_load_dwordx4 v2, s[12:15], s36 offen offset:{1024*k} {SC} lds")
                a.e("s_waitcnt vmcnt(0)")
                a.e("s_add_u32 s53, s53, 1"); a.e("s_cmp_lt_u32 s53, s61"); a.e(f"s_cbranch_scc1 {L}"); a.e("s_mov_b32 s61, 0")
                a.e(f"{D}:"); a.e("s_mov_b32 m0, s34")
            def tst(b):
                def f():
                    X = a.lab("nt"); a.e("s_cmp_eq_u32 s60, 0"); a.e(f"s_cbranch_scc1 {X}")
                    a.e(f"s_mov_b32 s46, {b}"); a.e(f"s_mov_b32 s47, {(b % 3) * 16384}"); a.e("s_setprio 2"); call(a, test); a.e("s_setprio 0"); a.e(f"{X}:")
                return f
            plan = {k_: (x if isinstance(x, list) else [x]) for k_, x in plan.items()}
            plan[1] = [(True, None, w1_, 0, None)]
            plan.setdefault(V3 - 1, []).append((False, None, lambda: flag_try(a, 8, 9), 1, "g"))
            plan.setdefault(V3, []).insert(0, (True, "g", lambda: flag_check(a, 8, 9, cnt), 0, None))
            for b in range(1, V3 + 1): plan.setdefault(b, []).append((False, b, tst(b), 0, None))
        if W4POS.startswith("S"):
            def tw(i0, i1):
                def f():
                    a.e("s_mov_b64 s[48:49], s[74:75]"); a.e(f"s_mov_b32 s50, {7*MB}"); a.e("s_mov_b32 s51, 0x20000")
                    a.e("s_lshl_b32 s45, s2, 1"); a.e("s_and_b32 s46, s30, 1"); a.e("s_add_u32 s45, s45, s46"); a.e(f"s_mul_i32 s45, s45, {14*1024}")
                    a.e("s_cmp_eq_u32 s60, 0"); a.e("s_cselect_b64 exec, -1, 0")
                    for i in range(i0, i1): a.e(f"s_add_u32 s46, s45, {i*1024}"); a.e(f"buffer_load_dwordx4 v[176:179], v2, s[48:51], s46 offen")
                    a.e("s_mov_b64 exec, -1")
                return f
            for b_, (pos_, i0, i1) in eval(W4POS[1:]).items():
                p_ = plan.get(b_, []); p_ = p_ if isinstance(p_, list) else [p_]
                plan[b_] = p_ + [(pos_, None, tw(i0, i1), i1 - i0, "t")]
        if os.environ.get("A3L", "0") == "1":
            def w1_():
                X = a.lab("w1"); a.e("s_cmp_lg_u32 s60, 0"); a.e(f"s_cbranch_scc1 {X}"); poll_core(a, 8, [9], mask, cnt=cnt); lds_set(a, LW + 60, 1, 10); a.e(f"{X}:")
            def w2_(): poll_core(a, 8, [9], mask, cnt=cnt, nap=2); mstamp(a); mstamp(a)
            plan[1] = (True, None, w1_, 0, None)
            p2 = plan[2] if isinstance(plan[2], list) else [plan[2]]
            plan[2] = [(True, None, w2_, 0, None)] + p2
            ld_steps(a, which, 3, 8, a_issue, N3, plan=plan, hold=(1,)); return
        ld_steps(a, which, c["NA"], 8, a_issue, N3, plan=plan, sched=eval(os.environ.get("A3S", "None")), last=lambda: r_pre1(a)); return
    assert 0

def side_jobs(a, which):
    c = CFG[which]; plan = {}
    sv = 184 if which == 3 and WA else 16; S, Q, mean, rs, tt, ad, fa, fr = 216, 217, 218, 219, 220, 221, 222, 223
    cv = 180 if which == 3 else 24; N = c["LDW"] // 2; co_ = 224; HB = c["TN16"] * 32
    lg = 3 if which == 1 else 5
    def cld(k0=0, k1=4):
        if k0 == 0:
            a.srd(24, 4, 32 * N * 4, off=CSP[which])
            a.e("s_cmp_eq_u32 s60, 0"); a.e("s_cselect_b32 s26, s26, 0")
            if NOCS3 and which == 3: a.e("s_mov_b32 s26, 0")
            a.e("s_and_b32 s36, s30, 1"); a.e(f"s_mul_i32 s36, s36, {HB}"); a.e(f"s_mul_i32 s37, s29, {2*HB}"); a.e("s_add_u32 s37, s36, s37")
            a.e(f"v_lshrrev_b32 v{co_}, {lg}, v1"); a.e(f"v_mul_u32_u24 v{co_}, {N*4}, v{co_}")
            a.e(f"v_and_b32 v{cv-1}, {16*((1 << lg) - 1)}, v2"); a.e(f"v_add_u32 v{co_}, v{co_}, v{cv-1}")
        a.e("s_cmp_eq_u32 s60, 0"); a.e("s_cselect_b64 exec, -1, 0")
        for k in range(k0, k1):
            a.e(f"buffer_load_dwordx4 {vr(cv+4*(k if k < 9 else k - 8),4)}, v{co_}, s[24:27], s37 offen {SC}"); a.e(f"s_add_u32 s37, s37, {N*4*(64 >> lg)}")
        a.e("s_mov_b64 exec, -1")
    def piece(lines, l0=False):
        def f():
            X = a.lab("pc")
            if l0: a.e("s_cmp_lg_u32 s60, 0"); a.e(f"s_cbranch_scc1 {X}")
            for x in lines: a.e(x)
            if l0: a.e(f"{X}:")
        return f
    def cadd(k0, k1): return [f"v_add_f32 v{cv+h}, v{cv+h}, v{cv+4*k+h}" for k in range(k0, k1) for h in range(4)]
    def sw(op): return [f"v_mov_b32 v{cv+4+e}, v{cv+e}" for e in range(4)] + [f"{op} v{cv+e}, v{cv+4+e}" for e in range(4)] + cadd(1, 2)
    if which in (1, 3):
        cout = ["s_and_b32 s36, s30, 1", f"s_mul_i32 s36, s36, {HB}", f"s_add_u32 s36, s36, {CSO[which]}", f"v_add_u32 v{cv-1}, s36, v2",
                f"s_bfm_b64 exec, {HB//16}, 0", f"ds_write_b128 v{cv-1}, {vr(cv,4)}", "s_mov_b64 exec, -1", "s_waitcnt lgkmcnt(0)"]
    if which == 1:
        flag_addr(a, fa, ST_R2)
        def ld():
            flag_check(a, fr, fa, 16)
            lsrd(a, 20, oLNS, 2048); a.e("s_and_b32 s35, s30, 1"); a.e("s_lshl_b32 s35, s35, 10")
            a.e(f"buffer_load_dwordx4 {vr(sv,4)}, v2, s[20:23], s35 offen {SC}")
        fin = piece(["s_and_b32 s36, s30, 1", "s_lshl_b32 s36, s36, 10", f"s_add_u32 s36, s36, {LNSL}", f"v_add_u32 v{ad}, s36, v2", f"ds_write_b128 v{ad}, {vr(sv,4)}", "s_waitcnt lgkmcnt(0)"])
        a.e("s_lshl_b32 s53, s29, 7"); a.e(f"s_add_u32 s53, s53, {F_CS}"); a.e(f"v_mov_b32 v{fa+4}, s53")
        def cld1(): flag_check(a, fr + 4, fa + 4, 16); cld()
        work = cadd(1, 4) + [f"v_add_f32_dpp v{cv+e}, v{cv+e}, v{cv+e} row_ror:8 row_mask:0xf bank_mask:0xf" for e in range(4)] + \
               sw("v_permlane16_swap_b32") + sw("v_permlane32_swap_b32")
        plan = {2: (False, None, lambda: flag_try(a, fr + 4, fa + 4), 1, "e"), 5: [(False, "e", cld1, 4, "c"), (False, None, lambda: flag_try(a, fr, fa), 1, "f")],
                8: (False, "f", ld, 1, "d"), 15: [(False, None, piece(cout, 1), 0, None), (False, "d", fin, 0, None)]}
        plan[9] = (False, None, piece(work, 1), 0, None)
    if which == 3:
        flag_addr(a, fa, ST_G2S)
        a.e(f"v_lshlrev_b32 v{ad}, 3, v1")
        def ld(k0, n_=8):
            def f():
                if k0 == 0:
                    flag_check(a, fr, fa, 16)
                    lsrd(a, 20, oST2, 24576)
                    a.e("s_and_b32 s35, s30, 1"); a.e("s_lshl_b32 s35, s35, 9")
                for k in range(k0, k0 + n_):
                    if k % 4 == 0 or k == k0: a.e(f"s_add_u32 s36, s35, {(k >> 3) * 16384 + (k & 4) * 1024}")
                    a.e(f"buffer_load_dwordx2 {vr(sv+2*k,2)}, v{ad}, s[20:23], s36 offen offset:{(k&3)*1024} {SC}")
            return f
        b = Rec()
        for st_ in (8, 4, 2, 1):
            for k in range(2 * st_): b.e(f"v_add_f32 v{sv+k}, v{sv+k}, v{sv+2*st_+k}")
        o_ = sv + 4
        b.e(f"v_mul_f32 v{o_}, {f32(1/1024)}, v{sv}"); b.e(f"v_mul_f32 v{Q}, {f32(1/1024)}, v{sv+1}")
        b.e(f"v_fma_f32 v{Q}, -v{o_}, v{o_}, v{Q}"); b.e(f"v_max_f32 v{Q}, 0, v{Q}")
        ln_finish(b, o_, Q, rs, o_ + 1)
        b.e(f"v_mul_f32 v{o_+2}, {f32(GC1)}, v{rs}"); b.e(f"v_mul_f32 v{o_+3}, v{rs}, v{rs}")
        b.e(f"v_mul_f32 v{o_+3}, v{o_+3}, v{o_+2}"); b.e(f"v_mul_f32 v{o_+3}, {f32(0.044715)}, v{o_+3}")
        b.e("s_lshl_b32 s35, s35, 1"); b.e(f"s_add_u32 s35, s35, {LNSL}"); b.e(f"v_add_u32 v{tt}, s35, v2")
        b.e(f"ds_write_b128 v{tt}, {vr(o_,4)}"); b.e("s_waitcnt lgkmcnt(0)")
        def both(f, g):
            def h(): f(); g()
            return h
        if WA:
            plan = {2: (False, None, lambda: cld(0, 5), 5, "c"), 3: (False, None, lambda: cld(5, 9), 4, "c"),
                    5: [(False, "c", piece(cadd(1, 9), 1), 0, None), (False, None, lambda: cld(9, 16), 7, "e")], 6: (False, None, lambda: flag_try(a, fr, fa), 1, "f"),
                    7: (False, "e", piece(cadd(1, 8), 1), 0, None), 8: [(False, None, piece(sw("v_permlane32_swap_b32") + cout, 1), 0, None), (False, "f", ld(0, 4), 4, "d")],
                    9: (False, None, ld(4, 6), 6, "d"), 10: (False, None, ld(10, 6), 6, "d"),
                    12: (False, "d", piece(b.l[:16]), 0, None), 13: (False, None, piece(b.l[16:32]), 0, None), 14: (False, None, piece(b.l[32:]), 0, None)}
        elif os.environ.get("SJ3", "1") == "1":
            plan = {2: (False, None, lambda: cld(0, 3), 3, "c"), 3: (False, None, lambda: cld(3, 6), 3, "c"), 4: [(False, None, lambda: cld(6, 9), 3, "c"), (False, None, lambda: flag_try(a, fr, fa), 1, "f")],
                    6: [(False, "f", ld(0, 4), 4, "d"), (False, None, piece(cadd(1, 5), 1), 0, None)],
                    7: [(False, None, ld(4, 4), 4, "d"), (False, None, both(piece(cadd(5, 9), 1), lambda: cld(9, 12)), 3, "e")],
                    8: [(False, None, ld(8, 4), 4, "d"), (False, None, lambda: cld(12, 14), 2, "e")], 9: [(False, None, ld(12, 4), 4, "d"), (False, None, lambda: cld(14, 16), 2, "e")],
                    11: [(False, "e", piece(b.l[:16]), 0, None)], 12: [(False, None, piece(b.l[16:32]), 0, None), (False, None, piece(cadd(1, 4), 1), 0, None)],
                    13: [(False, None, piece(b.l[32:]), 0, None)], 14: (False, None, piece(cadd(4, 8), 1), 0, None), 15: (False, None, piece(sw("v_permlane32_swap_b32") + cout, 1), 0, None)}
        else:
            plan = {2: (False, None, cld, 4, "c"), 3: (False, None, lambda: cld(4, 9), 5, "c"),
                    5: [(False, "c", piece(cadd(1, 5), 1), 0, None), (False, None, lambda: flag_try(a, fr, fa), 1, "f")],
                    6: (False, None, both(piece(cadd(5, 9), 1), lambda: cld(9, 16)), 7, "e"),
                    7: (False, "f", ld(0), 8, "d"), 8: (False, None, ld(8), 8, "d"),
                    9: (False, "e", piece(cadd(1, 5), 1), 0, None), 10: (False, None, piece(cadd(5, 8), 1), 0, None), 11: (False, None, piece(sw("v_permlane32_swap_b32") + cout, 1), 0, None),
                    12: (False, "d", piece(b.l[:16]), 0, None), 13: (False, None, piece(b.l[16:32]), 0, None), 14: (False, None, piece(b.l[32:]), 0, None)}
    return plan

W2E = int(os.environ.get("W2E", "3"))
def w2_early(a):
    if W2E: w_setup(a, 2, pre=False); w1_slots(a, range(W2E), pace=8)
def w_loader(a, which):
    c = CFG[which]
    if which < 3:
        if which == 1: a.e("s_waitcnt vmcnt(0)")
        if which == 1 and "a" in STO: stouch(a, 3, 128 if "8" in STO else 64, 2); mstamp(a)
        if which == 1 and sum(SG): sb_init(a)
        sg(a, SG[2*which-2])
        if not (which == 1 and "1" in DP): a.e("s_barrier")
        sg(a, SG[2*which-1])
        if which == 1 and WE and WK:
            assert 8 not in WE or W3N == 1
            a.e("s_and_b32 s36, s30, 1"); a.e("s_lshl_b32 s36, s36, 12"); a.e(f"s_add_u32 s36, s36, {CFG[1]['WB'] + 7*8192}"); a.e("v_add_u32 v6, s36, v2")
            for j in WE:
                for i in range(4): a.e(f"ds_read_b128 {vr(WER[j][i],4)}, v6 offset:{(j-7)*8192+i*1024}")
            a.e("s_waitcnt lgkmcnt(0)")
        if which == 1 and PT: call(a, before_d1)
        if which == 1 and "b" in STO: stouch(a, 3, 128 if "8" in STO else 64, 2); mstamp(a)
        if which == 2 and PT2: call(a, before_d2)
        if which == 2: a.e(f"s_waitcnt vmcnt({7 if PT2 == 2 else 0})")
        a.e("s_barrier")
        if which == 1 and "p" not in os.environ.get("FO2", "1pd"): late_park(a)
        call(a, after_g1 if which == 1 else after_g2); mstamp(a)
        return
    args = (a, which, c["NW"], c["STB"] // 2048, w_issue, c["NPRE"], c["WR"])
    if which == 4:
        assert c["NW"] == 6 and c["WB"] == CFG[1]["WB"] + 3 * 8192
        a.e("s_cmp_eq_u32 s60, 1"); a.e("s_cbranch_scc1 WL_t1")
        H0 = eval(os.environ.get("H0", "()")); T0 = 24 + len(H0)
        ld_steps(*args, hi=T0, hold=H0)
        WT = eval(os.environ.get("WT", "[(11,12,9),(13,14,10),(3,4),(5,6,0),(7,8,1,2,15),()]"))
        if WE:
            WT = [tuple(j for j in l if j not in WE and j not in WA) for l in WT]
            def put(js):
                a.e(f"s_add_u32 s36, s41, {7*8192}"); a.e("v_add_u32 v6, s36, v2")
                for j in js:
                    for i in range(4): a.e(f"ds_write_b128 v6, {vr(WER[j][i],4)} offset:{(j-7)*8192+i*1024}")
        WD = eval(os.environ.get("WD", "()"))
        def some(js):
            def f():
                if js is WT[len(H0)]:
                    w_setup(a, 1, pre=False)
                    a.e("s_and_b32 s36, s99, 7"); a.e("s_cmp_eq_u32 s36, 3"); a.e("s_cselect_b64 s[50:51], 0, -1")
                for j in js:
                    if j in (9, 10) and js is not WT[5]:
                        a.e(f"s_add_u32 s39, s38, {j*64*2048}")
                        for i in range(4): a.e(f"buffer_load_dwordx4 {vr(16+16*(j-9)+4*i,4)}, v{WVB[1]}, s[12:15], s39 offen"); a.e("s_add_u32 s39, s39, 16384")
                    else:
                        if j in WD: a.e("s_mov_b64 exec, s[50:51]")
                        w1_slots(a, (j,), pace=8 if js is WT[5] else 0)
                        if j in WD: a.e("s_mov_b64 exec, -1")
            return f
        plan = {24 + i: (False, None, some(WT[i]), 4 * len(WT[i]), "w") for i in range(4) if WT[i]}
        assert not any(WT[:len(H0)])
        ld_steps(*args, plan=plan, lo=T0, hold=H0, last=(lambda: (some(WT[4])(), put([j for j in WE if j < 9 and not KAD]))) if WE else some(WT[4]))
        rg = [j for j in (9, 10) if j not in WT[5] and j not in WE]
        if WE: put([j for j in WE if j >= 9 or KAD]); a.e("s_waitcnt lgkmcnt(0)")
        if WD:
            a.e("s_cmp_lg_u32 s50, 0"); a.e("s_cbranch_scc1 WL_nd"); w1_slots(a, WD); a.e("WL_nd:")
        if rg:
            yg = [j for l in WT[:5] for j in l]; yg = len(yg) - 1 - max(yg.index(9), yg.index(10))
            a.e(f"s_add_u32 s36, s41, {9*8192}"); a.e("v_add_u32 v6, s36, v2"); a.e(f"s_waitcnt vmcnt({4*yg if os.environ.get('YG', '1') == '1' else 0})")
            for j in rg:
                for i in range(4): a.e(f"ds_write_b128 v6, {vr(16+16*(j-9)+4*i,4)} offset:{(j-9)*8192+i*1024}")
            a.e("s_waitcnt lgkmcnt(0)")
        some(WT[5])(); mstamp(a)
        a.e("s_branch NEXT")
        a.e("WL_t1:")
        ld_steps(*args, hold=HOLD)
        return
    plan = {}
    if "3" in DP:
        lsrd(a, 20, oX1P, XSZ)
        a.e(f"v_readlane_b32 s36, v{TV+3}, 1"); a.e("s_and_b32 s35, s30, 1"); a.e("s_lshl_b32 s46, s35, 18"); a.e("s_lshl_b32 s47, s35, 13"); a.e("s_add_u32 s47, s47, 16384")
        a.e("s_bfe_u32 s37, s36, 0x20002"); a.e("s_lshl_b32 s37, s37, 14"); a.e("s_and_b32 s36, s36, 3"); a.e("s_lshl_b32 s36, s36, 11"); a.e("s_add_u32 s46, s46, s36"); a.e("s_add_u32 s46, s46, s37")
        a.e("v_add_u32 v8, s47, v2")
        if W3E: w_issue(a, 3); args = args[:5] + (3,) + args[6:]
        def second():
            L = a.lab("sp"); D = a.lab("sq")
            a.e("s_mov_b32 s34, m0"); a.e("s_cmp_lg_u32 s60, 0"); a.e(f"s_cbranch_scc1 {L}a")
            lds_spin(a, LW + 60, 1, 6, nap=1)
            a.e(f"{L}a:"); a.e("s_mov_b32 s53, 0")
            if int(os.environ.get("S3D", "0")): a.e("s_sleep " + os.environ["S3D"])
            a.e(f"{L}:"); a.e("s_mov_b32 m0, s47"); a.e("s_mov_b32 s36, s46")
            for i in range(4):
                if i: a.e("s_add_u32 m0, m0, 2048"); a.e("s_add_u32 s36, s36, 65536")
                for k in range(2): a.e(f"buffer_load_dwordx4 v2, s[20:23], s36 offen offset:{1024*k} {SC} lds")
            a.e("s_waitcnt vmcnt(0)")
            for i in range(8): a.e(f"ds_read_b32 v{10+i}, v8 offset:{1024*i}")
            a.e("s_waitcnt lgkmcnt(0)")
            a.e("v_or3_b32 v10, v10, v11, v12"); a.e("v_or3_b32 v13, v13, v14, v15"); a.e("v_or3_b32 v10, v10, v16, v17"); a.e("v_bitop3_b32 v10, v10, v13, s60 bitop3:0xa8")
            a.e("v_cmp_ne_u32 vcc, 0, v10"); a.e(f"s_cbranch_vccz {D}"); a.e("s_sleep 1")
            a.e("s_add_u32 s53, s53, 1"); a.e("s_cmp_lt_u32 s53, s61"); a.e(f"s_cbranch_scc1 {L}"); a.e("s_mov_b32 s61, 0")
            a.e(f"{D}:"); a.e("s_mov_b32 m0, s34")
        plan[1] = (True, None, second, 8, "x")
    elif W33:
        plan[1] = (True, None, lambda: call(a, third_put), 0, None); args = args[:5] + (3,) + args[6:]
    elif W3H: plan[1] = (True, None, lambda: (a.e("s_add_u32 s54, s60, 1"), lds_spin(a, LW + 60, "s54", 6, nap=1)), 0, None)
    def sg3(n):
        def f():
            X = a.lab("st"); a.e("s_cmp_lg_u32 s60, 0"); a.e(f"s_cbranch_scc1 {X}"); sb(a, n); a.e(f"{X}:")
        return f
    for b_, n_ in eval(os.environ.get("SG3", "{}")).items(): plan[b_] = (False, None, sg3(n_), 0, None)
    RPW = int(os.environ.get("RPW", "16"))
    if RPW < 16: plan[RPW] = (False, None, lambda: call(a, r_pre0), 4, "r")
    def early(js):
        def f():
            a.e("s_mov_b64 s[20:21], s[68:69]"); a.e(f"s_mov_b32 s22, {2*MB}"); a.e("s_mov_b32 s23, 0x20000")
            a.e("s_and_b32 s36, s30, 1"); a.e("s_lshl_b32 s36, s36, 16"); a.e("s_lshl_b32 s37, s99, 7"); a.e("s_add_u32 s37, s37, s36")
            a.e("s_cmp_eq_u32 s60, 0"); a.e("s_cselect_b64 exec, -1, 0")
            for j in js:
                for i in range(4): a.e(f"s_add_u32 s36, s37, {j*64*2048 + i*16384}"); a.e(f"buffer_load_dwordx4 {vr(WER[j][i],4)}, v{WVB[1]}, s[20:23], s36 offen")
            a.e("s_mov_b64 exec, -1")
        return f
    if WE and not WK:
        for b_, js in eval(os.environ.get("WES", "{15: WE}")).items():
            p_ = plan.get(b_, []); plan[b_] = (p_ if isinstance(p_, list) else [p_]) + [(False, None, early(js), 4 * len(js), "e")]
    ld_steps(*args, plan=plan, last=(lambda: r_pre1(a)) if RPW == 16 else None)
WE = eval(os.environ.get("WE", "(9,10,7)")); WK = int(os.environ.get("WK", "1"))
WER = {9: [16, 20, 24, 28], 10: [32, 36, 40, 44], 7: [204, 208, 212, 216], 8: [220, 224, 200, 176]}
W3H = int(os.environ.get("W3H", "0")) or "3" in DP; W3E = int(os.environ.get("W3E", "1"))
W1L = int(os.environ.get("W1L", "3"))

B0E = int(os.environ.get("B0E", "6")); RPL = int(os.environ.get("RPL", "1")); RPC = int(os.environ.get("RPC", "1"))
R2K = int(os.environ.get("R2K", "3"))
PTB = int(os.environ.get("PTB", "0"))
LF1 = os.environ.get("LF1", "sc1"); LF2 = os.environ.get("LF2", "")
RES2 = 148; C2R = 200; SO3 = 238; RES4 = [172, 176, 180, 184, 188, 192, 196, 240]
def g_compute(a, which):
    c = CFG[which]
    WM, WN, MT, NT, KBT, NS, NA, NW, TN16, STB, WB = [c[k] for k in "WM WN MT NT KBT NS NA NW TN16 STB WB".split()]
    v = VA(6); nm = f"G{which}"
    lane = 1; l16 = 2
    t = v(); t2 = v(); pt = v(4, 2)
    NTILE = (0, 99, 29, 29, 33)[which]
    a_ = a
    if which != 3: a = Rec()
    if WN == 2: a.e("s_lshr_b32 s34, s30, 1"); a.e("s_and_b32 s35, s30, 1")
    else: a.e("s_mov_b32 s34, s30"); a.e("s_mov_b32 s35, 0")
    a0 = v(); w0 = v(4, 1); aa = v(); wa = v(4, 1); J = v(); G = v()
    a.e(f"v_and_b32 v{J}, 15, v{lane}"); a.e(f"v_lshrrev_b32 v{G}, 4, v{lane}")
    a.e(f"s_mul_i32 s37, s34, {MT}")
    a.e(f"s_mul_i32 s38, s{NTILE}, {TN16}"); a.e(f"s_mul_i32 s36, s35, {NT}"); a.e("s_add_u32 s38, s38, s36")
    acc = v(MT * NT * 4, 4); NF = MT + NT if which > 2 else 8
    fX = v(NF * 4, 4); fY = v(NF * 4, 4); tmp = v(); tp = v(4, 2)
    def A_(mt, nt): return acc + 4 * (mt * NT + nt)
    def SUBM(r): return f"{vr(r,2)} op_sel_hi:[1,0] neg_lo:[0,1] neg_hi:[0,1]"
    def MULR(r): return f"{vr(r,2)} op_sel:[0,1] op_sel_hi:[1,1]"
    if which in (2, 4):
        res = RES2
        a.e("s_lshr_b32 s36, s38, 1"); spread(a, 39, 36); a.e("s_lshl_b32 s36, s37, 16"); a.e("s_add_u32 s39, s39, s36")
    if which <= 2:
        AB = 164; LO = v(8, 1)
        def aload(b, kk):
            if which == 1: return [f"buffer_load_dwordx4 {vr(AB+16*b+8*kk+4*mt,4)}, v{LO+mt+(b&2)}, s[8:11], s44 offen offset:{(b&1)*2048+kk*1024} {LF1}" for mt in range(2)]
            return [f"buffer_load_dwordx4 {vr(AB+16*b+8*kk+4*mt,4)}, v{LO+mt}, s[8:11], s44 offen {LF2}" for mt in range(2)]
        def seq(pairs, s0):
            if which == 1: return [x for b, kk in pairs for x in aload(b, kk)]
            return ([f"s_mov_b32 s44, {s0}"] if s0 is not None else []) + [x for b, kk in pairs for x in aload(b, kk) + ["s_add_u32 s44, s44, 16384"]]
        def past(l): return [x + (SC if x.startswith("buffer") and SC not in x else "") for x in l]
        PR = [(i >> 1, i & 1) for i in range(7)]
        h = Rec()
        if which == 1:
            lsrd(h, 8, oX3, XSZ); OOB = MB
            for i in range(4): (h if i < 2 else a).e(f"v_add_u32 v{LO+i}, {(i & 1) * 65536 + (i >> 1) * 4096}, v{l16}")
            h.e("s_lshl_b32 s44, s30, 17")
            for i in range(1, 4): a.e(f"s_add_u32 s{44+i}, s44, {16384*i}")
            a.e(f"v_min_u32 v{wa}, 1, v{lane}"); a.e(f"v_lshlrev_b32 v{wa}, 16, v{wa}"); a.e(f"v_add_u32 v{wa}, {LW+80}, v{wa}"); a.e(f"v_mov_b32 v{wa+1}, 1")
        else:
            OOB = 0x40000000; LP = v(2, 1)
            h.srd(8, 4, 8 * GSTR + LSTR, off=LB0 + oHS)
            h.e(f"s_sub_u32 s47, s55, {LB0 + oSM}"); h.e("s_lshl_b32 s46, s30, 9"); h.e("s_add_u32 s47, s47, s46")
            h.e("s_add_u32 s45, s92, 2048"); h.e("s_cmp_eq_u32 s28, 0"); h.e(f"s_cselect_b32 s45, {OOB}, s45"); h.e("s_cmp_eq_u32 s30, 0"); h.e("s_cselect_b32 s45, s45, 0")
            a.e("s_sub_u32 s46, s93, 2048"); a.e("s_cmp_eq_u32 s28, 15"); a.e(f"s_cselect_b32 s46, {OOB}, s46"); a.e("s_cmp_eq_u32 s30, 3"); a.e("s_cselect_b32 s46, s46, 0")
            for q_, sh in enumerate((1, -1, 2, -2)):
                e_ = h if q_ == 0 else a
                e_.e(f"s_add_u32 s53, s47, {(-16 * sh) & 0xffffffff:#x}"); e_.e(f"v_add_u32 v{LO+2*q_}, s53, v{a0}"); e_.e(f"v_add_u32 v{LO+2*q_+1}, 256, v{LO+2*q_}")
                R_ = LO + 2 * q_ + (0 if sh > 0 else 1)
                e_.e(f"v_add_u32 v{LP}, s{45 if sh > 0 else 46}, v{R_}")
                e_.e(f"v_cmp_gt_u32 vcc, {sh}, v{J}" if sh > 0 else f"v_cmp_le_u32 vcc, {16 + sh}, v{J}"); e_.e(f"v_cndmask_b32 v{R_}, v{R_}, v{LP}, vcc")
            for k in range(2): a.e(f"v_mov_b32 v{LP+k}, v{LO+k}")
        EARLY = str(which) in DP and str(which) in os.environ.get("EP", "2")
        F0 = eval(os.environ.get("F0", "(0,4,4)"))[which]
        try0 = past(seq(PR[:2], 0)) + seq(PR[2:F0], None)
        for x in h.l: a_.e(x)
        if EARLY and which == 1:
            if int(os.environ.get("G1E", "0")): a_.e("s_sleep " + os.environ["G1E"])
            for x in try0: a_.e(x)
    else:
        a.e(f"s_mul_i32 s36, s34, {MT*2048}"); a.e(f"v_add_u32 v{a0}, s36, v{l16}")
    nwr, wpos = w_bases(a, which, w0, 35, NT, t, t2)
    if which <= 2:
        for x in a.l: a_.e(x)
    a = a_
    if which == 3 and not B0E: publish(a, ST_G2S, 4, pt, ctr=48)
    if which == 2:
        a.e(f"s_lshl_b32 s36, s37, 8"); a.e(f"s_add_u32 s36, s36, {LNSL}"); a.e(f"v_lshlrev_b32 v{t2}, 4, v{J}"); a.e(f"v_add_u32 v{t2}, s36, v{t2}")
        for mt in range(MT): a.e(f"ds_read_b64 {vr(fX+2*mt,2)}, v{t2} offset:{mt*256}")
        a.e(f"s_waitcnt vmcnt({4 - R2K}) lgkmcnt(0)")
        if EARLY:
            if int(os.environ.get("G2D", "4")): a.e("s_sleep " + os.environ.get("G2D", "4"))
            if int(os.environ.get("G2D0", "2")): a.e("s_cmp_lg_u32 s60, 0"); a.e("s_cbranch_scc1 G2_nd"); a.e("s_sleep " + os.environ.get("G2D0", "2")); a.e("G2_nd:")
            for x in try0: a.e(x)
        for mt in range(MT):
            for p in range(NT // 2):
                for e in range(4):
                    X = A_(mt, 2 * p) + 2 * e
                    unpack(a, X, X + 1, res + (mt * (NT // 2) + p) * 4 + e)
                    a.e(f"v_pk_add_f32 {vr(X,2)}, {vr(X,2)}, {SUBM(fX+2*mt)}"); round2(a, X, X + 1, tmp)
                    a.e(f"v_pk_mul_f32 {vr(X,2)}, {vr(X,2)}, {MULR(fX+2*mt)}"); round2(a, X, X + 1, tmp)
    elif which == 1:
        for i in range(0, MT * NT * 4, 2): a.e(f"v_pk_mov_b32 {vr(acc+i,2)}, 0, 0")
    RX = [180, 184, 188, 192, 196, 230, 234, 248]
    def last_res():
        b0 = Rec()
        for i in range(2):
            b0.e(f"s_add_u32 s36, s40, {i*65536}")
            for p in range(2):
                b0.e(f"buffer_load_dwordx4 {vr(RX[2*(2*i+p)],4)}, v{l16}, s[84:87], s36 offen offset:{p*1024} {SC}")
                b0.e(f"buffer_load_dwordx4 {vr(RX[2*(2*i+p)+1],4)}, v{l16}, s[88:91], s36 offen offset:{p*1024} {SC}")
        return b0.l
    def reads(F, kk):
        o = []
        for mt in range(MT): o.append(f"ds_read_b128 {vr(F+4*mt,4)}, v{aa} offset:{mt*256+kk*8192 if which == 2 else mt*2048+kk*1024}")
        for nt in range(NT):
            for h in range(2):
                r, imm = wpos(nt, kk, h)
                o.append(f"ds_read_b64_tr_b16 {vr(F+4*(MT+nt)+2*h,2)}, v{wa+r} offset:{imm}")
        NR = os.environ.get("NOREAD")
        if NR == "N": o = []
        if NR == "A": o = o[MT:]
        if NR == "W": o = o[:MT]
        if NR == "H": o = o[::2]
        if NR == "X": o = o + o[:2]
        if NR == "XX": o = o + o[:MT]
        return o
    def mix(rd, ex):
        rd = list(rd)
        for i, x in enumerate(ex): rd.insert(min(len(rd), (i + 1) * len(rd) // (len(ex) + 1)), x)
        return rd
    def mfmas(F, rd, tail=()):
        n = MT * NT; k = 0; tot = len(rd); span = max(1, n * 3 // 4); done = 0; tail = list(tail); per = -(-len(tail) // max(1, n - span))
        OR = os.environ.get("ORDER", "2")
        order = {"0": [(nt, mt) for nt in range(NT) for mt in range(MT)],
                 "1": [(nt, mt) for mt in range(MT) for nt in range(NT)],
                 "2": [(nt, mt if nt % 2 == 0 else MT - 1 - mt) for nt in range(NT) for mt in range(MT)],
                 "3": [(nt if mt % 2 == 0 else NT - 1 - nt, mt) for mt in range(MT) for nt in range(NT)]}[OR]
        for nt, mt in order:
            if True:
                cc = acc + 4 * (mt * NT + nt)
                if str(which) not in os.environ.get("NOMF", ""): a.e(f"v_mfma_f32_16x16x32_bf16 {vr(cc,4)}, {vr(F+4*(MT+nt),4)}, {vr(F+4*mt,4)}, {vr(cc,4)}")
                k += 1
                while rd and done < (tot * k + span - 1) // span: a.e(rd.pop(0)); done += 1
                if k >= span and k < n:
                    for _ in range(min(per, len(tail))): a.e(tail.pop(0))
        assert not rd and not tail
    so = SO3 if which == 3 else a0; cs = fX; lns = fX + 4 * NT; G4W = 240; EA = 244
    def ep_setup(b):
        if which in (1, 3):
            assert which == 1 or (fY <= C2R and C2R + 24 <= fY + 4 * NF)
            b.e(f"s_mul_i32 s36, s35, {NT*64}"); b.e(f"s_add_u32 s36, s36, {CSO[which]}"); b.e(f"v_lshlrev_b32 v{t}, 4, v{G}"); b.e(f"v_add_u32 v{t}, s36, v{t}")
            b.e(f"s_lshl_b32 s36, s37, 8"); b.e(f"s_add_u32 s36, s36, {LNSL + (8 if which == 1 else 0)}"); b.e(f"v_lshlrev_b32 v{t2}, 4, v{J}"); b.e(f"v_add_u32 v{t2}, s36, v{t2}")
        if which == 3:
            lsrd(b, 16, oH2, H2SZ)
            b.e(f"s_mul_i32 s39, s37, {224*1024}")
            for P in range(4):
                b.e("s_lshr_b32 s36, s38, 1"); b.e(f"s_add_u32 s36, s36, {P}"); spread(b, 44 + P, 36); b.e(f"s_add_u32 s{44+P}, s{44+P}, s39")
            w_bases(b, 4, G4W, 35, 4, tp, tp + 1)
            b.e("s_lshl_b32 s38, s33, 3"); b.e("s_lshl_b32 s36, s35, 2"); b.e("s_add_u32 s38, s38, s36")
            b.e("s_lshr_b32 s36, s38, 1"); spread(b, 39, 36); b.e("s_lshl_b32 s36, s37, 16"); b.e("s_add_u32 s39, s39, s36")
            b.e("s_lshl_b32 s40, s31, 17"); b.e("s_add_u32 s40, s40, s39")
            b.e("s_xor_b32 s41, s31, 1"); b.e("s_lshl_b32 s41, s41, 17"); b.e("s_add_u32 s41, s41, s39")
            lsrd(b, 84, oX3, XSZ); lsrd(b, 88, oX1P, XSZ)
            b.e("s_lshl_b32 s36, s37, 1"); b.e("s_add_u32 s36, s36, s35"); b.e("s_lshl_b32 s36, s36, 10"); b.e(f"v_add_u32 v{EA}, s36, v{l16}")
            b.e(f"v_mov_b32 v{EA+1}, 1"); b.e(f"v_mov_b32 v{EA+2}, {LW+64}")
            b.e(f"v_lshrrev_b32 v{so}, 1, v{G}"); b.e(f"v_lshlrev_b32 v{so}, 8, v{so}"); b.e(f"v_lshl_add_u32 v{so}, v{J}, 4, v{so}")
            b.e(f"v_and_b32 v{tmp}, 1, v{G}"); b.e(f"v_lshl_add_u32 v{so}, v{tmp}, 3, v{so}")
        if which == 1:
            lsrd(b, 16, oHS, XSZ)
            b.e(f"v_lshlrev_b32 v{so}, 11, v{G}"); b.e(f"v_lshl_add_u32 v{so}, v{J}, 4, v{so}")
            b.e("s_lshl_b32 s39, s38, 13"); b.e("s_lshl_b32 s36, s37, 8"); b.e("s_add_u32 s39, s39, s36"); b.e("s_add_u32 s40, s39, 16384")
            b.e("s_lshl_b32 s36, s29, 1"); spread(b, 41, 36); b.e("s_lshl_b32 s36, s37, 16"); b.e("s_add_u32 s41, s41, s36")
        if which == 2: lsrd(b, 16, oX1P, XSZ)
    def cost(x): return sum(8 if y.startswith("ds_") else 4 for y in x.split("\n"))
    def group(F, rd, r0, ex, fixed={}, zero=False):
        n = MT * NT; ex = [x if isinstance(x, tuple) else (x, -1) for x in ex]; done = 0
        order = [(nt, mt if nt % 2 == 0 else MT - 1 - mt) for nt in range(NT) for mt in range(MT)]
        need = sum(cost(x) for x, _ in ex) + 8 * len(rd) + sum(cost(x) for l in fixed.values() for x in l)
        cap = max(12, -(-need // (4 * n)) * 4)
        for k, (nt, mt) in enumerate(order):
            cc = A_(mt, nt)
            if str(which) not in os.environ.get("NOMF", ""): a.e(f"v_mfma_f32_16x16x32_bf16 {vr(cc,4)}, {vr(F+4*(MT+nt),4)}, {vr(F+4*mt,4)}, {0 if zero else vr(cc,4)}")
            b_ = cap - sum(cost(x) for x in fixed.get(k, [])); nv = 0
            if k >= r0 and done < len(rd): a.e(rd[done]); done += 1; b_ -= 8
            while ex and ex[0][1] < done and (cost(ex[0][0]) <= b_ or k == n - 1) and not (nv >= (1 if rd else 2) and ex[0][0].startswith("v_") and cap == 12 and k < n - 1):
                x = ex.pop(0)[0]; a.e(x); b_ -= cost(x); nv += x.startswith("v_")
            for x in fixed.get(k, []): a.e(x)
        assert done == len(rd) and not ex
    NR_ = MT + 2 * NT; BP = eval(os.environ.get("BP", "{3:3,4:2}")).get(which, 0)
    def stage(ex=(), ey=(), lim=NS-1, late=False, zero=False, pre=()):
        if str(which) in os.environ.get("GST", "") or os.environ.get("JIT"): mstamp(a, True)
        if which == 3: last = {0: NR_ - 1, 1: NR_ - 3}
        else: last = {i: MT + 2 * i + 1 for i in range(4)}
        book = ["s_add_u32 s42, s42, 16384", f"s_cmp_eq_u32 s42, {NA*16384}", "s_cselect_b32 s42, 0, s42",
                f"s_add_u32 s48, s48, {STB}", f"s_cmp_eq_u32 s48, {NW*STB}", "s_cselect_b32 s48, 0, s48", (f"v_add_u32 v{aa}, s42, v{a0}", MT - 1)]
        book += sorted([(f"v_add_u32 v{wa+i}, s48, v{w0+i}", last[i]) for i in range(nwr)], key=lambda x: x[1])
        n = MT * NT
        group(fX, reads(fY, 1), 0, book[:7] + list(ex) + book[7:], {3: [f"s_waitcnt lgkmcnt({min(15, NR_ - MT - 4 + 4)})"], 7: ["s_waitcnt lgkmcnt(8)"], n - 1: [f"s_waitcnt lgkmcnt({NR_ - MT - 2})"]}, zero)
        if late:
            b_ = Rec(); ep_setup(b_)
            group(fY, [], 0, ["s_add_u32 s43, s43, 1"] + b_.l, {min(BP, 3): ["s_waitcnt lgkmcnt(0)"]})
            if B0E: publish(a, ST_G2S, 4, pt, ctr=48)
            a.e("s_barrier")
            for x in reads(fX, 0): a.e(x)
            a.e(f"s_waitcnt lgkmcnt({NR_ - MT - 2})")
            return
        group(fY, reads(fX, 0), BP + 1, list(ey) + ["s_add_u32 s43, s43, 1", f"s_cmp_lt_u32 s43, {lim}"],
              {BP - 1: list(pre), BP: ["s_waitcnt lgkmcnt(0)", "s_barrier"], n - 1: [f"s_waitcnt lgkmcnt({NR_ - MT - 2})"]})
    w00 = c["S0"] * STB
    if which <= 2:
        def wrd(p, b): return [f"ds_read_b64_tr_b16 {vr((fX, fY)[p]+16*kk+4*nt+2*h,2)}, v{w0+nt} offset:{b*STB + wpos(nt, kk, h)[1]}" for kk in range(2) for nt in range(4) for h in range(2)]
        def dmf(b, fill, lo=0, hi=16):
            k = 0
            for kk in range(2):
                for nt in range(4):
                    for mt in ((0, 1) if nt % 2 == 0 else (1, 0)):
                        if lo <= k < hi:
                            a.e(f"v_mfma_f32_16x16x32_bf16 {vr(A_(mt,nt),4)}, {vr((fX, fY)[b&1]+16*kk+4*nt,4)}, {vr(AB+16*b+8*kk+4*mt,4)}, {vr(A_(mt,nt),4)}")
                            for x in fill[k]: a.e(x)
                        k += 1
        def spreadf(l, lo, hi):
            f = [[] for _ in range(16)]
            for i, x in enumerate(l): f[lo + i * (hi - lo) // len(l)].append(x)
            return f
        a.e("s_mov_b32 s43, 0"); ep_setup(a)
        CK = str(which) in DP; ck_ = aa
        def check(b):
            B = AB + 16 * b
            return [f"v_or3_b32 v{ck_}, v{B}, v{B+4}, v{B+8}", f"v_bitop3_b32 v{ck_}, v{ck_}, v{B+12}, 1 bitop3:0xa8", f"v_cmp_ne_u32 vcc, 0, v{ck_}"]
        L = a.lab("dm"); assert CK
        a.e("s_mov_b32 s53, 0"); a.e("s_mov_b32 s49, s44")
        F1 = eval(os.environ.get("F1", "(0,0,7)"))[which]
        if F1:
            assert EARLY
            for x in seq(PR[F0:F1], None): a.e(x)
            F0 = F1
        if which == 2: a.e("s_barrier")
        for x in wrd(0, 0): a.e(x)
        if EARLY: a.e(f"s_branch {L}w")
        elif int(os.environ.get("G1D", "0")): a.e("s_sleep " + os.environ["G1D"])
        a.e(f"{L}p:")
        for x in try0: a.e(x)
        a.e(f"{L}w:")
        a.e(f"s_waitcnt vmcnt({2*F0 - 4})")
        for x in check(0): a.e(x)
        DEEP = eval(os.environ.get("DEEP", "(0,4,7)"))[which]
        if DEEP:
            a.e(f"s_cbranch_vccz {L}q")
            if STAMP and os.environ.get("FC"): a.e("s_add_u32 s53, s53, 100")
            a.e(f"{L}r:"); a.e(f"s_sleep {os.environ.get('GNAP', '2')}")
            for x in past(seq(PR[:DEEP], 0)): a.e(x)
            a.e(f"s_waitcnt vmcnt({2*DEEP - 4})")
            for x in check(0): a.e(x)
            a.e(f"s_cbranch_vccz {L}t")
            a.e("s_add_u32 s53, s53, 1"); a.e("s_cmp_lt_u32 s53, s61"); a.e(f"s_cbranch_scc1 {L}r"); a.e("s_mov_b32 s61, 0"); a.e(f"s_branch {L}t")
            a.e(f"{L}q:")
            assert DEEP >= F0
            for x in seq(PR[F0:DEEP], None): a.e(x)
            a.e(f"{L}t:")
            mstamp(a)
            for x in seq(PR[DEEP:], None): a.e(x)
        else:
            a.e(f"s_cbranch_vccz {L}q"); a.e(f"s_sleep {os.environ.get('GNAP', '2')}")
            a.e("s_add_u32 s53, s53, 1"); a.e("s_cmp_lt_u32 s53, s61"); a.e(f"s_cbranch_scc1 {L}p"); a.e("s_mov_b32 s61, 0")
            a.e(f"{L}q:")
            mstamp(a)
            for x in seq(PR[2:], None): a.e(x)
        a.e("s_waitcnt lgkmcnt(0)")
        a.e(f"{L}:")
        for b in range(4):
            rd = wrd(1 - (b & 1), (b + 1) & 3); ex = [[] for _ in range(16)]
            ex[0], ex[1] = [[x] for x in aload((b - 1) & 3, 1)]
            if b == 0 and which == 1:
                for i, x in enumerate(["s_mov_b32 s44, s45", "s_mov_b32 s45, s46", "s_mov_b32 s46, s47", f"s_mov_b32 s47, {OOB}"]): ex[2 + i].append(x)
            if which == 2:
                ex[2].append("s_add_u32 s44, s44, 16384"); ex[10].append("s_add_u32 s44, s44, 16384")
                mv = [f"v_mov_b32 v{LO+k}, v{LO+k+2}" for k in range(6)] + [f"v_mov_b32 v{LO+6+k}, {OOB}" for k in range(2)]
                if b < 2:
                    for i, x in enumerate(mv[4*b:4*b+4]): ex[3 + i].append(x)
                if b == 3:
                    for k in range(2): ex[3 + k].append(f"v_mov_b32 v{LP+k}, v{LO+k}")
            if b == 2:
                ex[4].append("s_add_u32 s43, s43, 1")
                if not PEEL: ex[14].append("s_cmp_eq_u32 s43, 4")
                for nt, g_ in enumerate((11, 12, 13, 15)): ex[g_].append(f"v_add_u32 v{w0+nt}, {4*STB}, v{w0+nt}")
            if b == 3 and PEEL: ex[14].append("s_cmp_lt_u32 s43, 3")
            if b == PTB and which == 1 and PT and not PEEL: ex[6].append(f"ds_add_u32 v{wa}, v{wa+1}"); LK = 1
            else: LK = 0
            if b == 3 and which == 1: ex[2].append("s_mov_b32 s49, s44")
            ex[7].append(f"s_waitcnt lgkmcnt({8 + LK})")
            ex[8], ex[9] = [[x] for x in aload(b, 0)]
            ex[10].append("s_waitcnt vmcnt(10)")
            if CK:
                for i, x in enumerate(check((b + 1) & 3)): ex[11 + i].append(x)
            fill = [rd[i:i+1] + ex[i] for i in range(16)]
            fill[14] = rd[14:16] + ex[14]; fill[15] = ex[15] + ["s_waitcnt lgkmcnt(8)"]
            if CK: fill[15] += [f"s_cbranch_vccnz {L}f{b}", f"{L}g{b}:"]
            if b == 2 and not PEEL: fill[15].append(f"s_cbranch_scc1 {L}x")
            if b == 3: fill[15].append(f"s_cbranch_scc1 {L}" if PEEL else f"s_branch {L}")
            dmf(b, fill)
        if PEEL:
            for b in range(3):
                rd = wrd(1 - (b & 1), b + 1); ex = [[] for _ in range(16)]; LK = 0
                if b == 0: ex[0], ex[1] = [[x] for x in aload(3, 1)]
                if b == PTB and which == 1 and PT: ex[3].append(f"ds_add_u32 v{wa}, v{wa+1}"); LK = 1
                if b == PTB and which == 2 and PT2: ex[3].append(f"ds_add_u32 v{wa}, v{wa+1} offset:4"); LK = 1
                ex[7].append(f"s_waitcnt lgkmcnt({8 + LK})"); ex[10].append(f"s_waitcnt vmcnt({8 - 4 * b})")
                for i, x in enumerate(check(b + 1)): ex[11 + i].append(x)
                fill = [rd[i:i+1] + ex[i] for i in range(16)]
                fill[14] = rd[14:16]; fill[15] = ["s_waitcnt lgkmcnt(8)", f"s_cbranch_vccnz {L}m{b}", f"{L}n{b}:"]
                dmf(b, fill)
            a_ = a; a = Rec(); LATE.append(a)
            for b in range(3):
                a.e(f"{L}m{b}:"); a.e(f"s_sleep {os.environ.get('GNAP', '2')}")
                for x in past(seq([(bb, kk) for bb in range(b + 1, 4) for kk in range(2)], (24 + 2 * (b + 1)) * 16384)): a.e(x)
                a.e(f"s_waitcnt vmcnt({8 - 4 * b})")
                for x in check(b + 1): a.e(x)
                a.e("s_add_u32 s53, s53, 1"); a.e("s_cmp_ge_u32 s53, s61"); a.e("s_cselect_b32 s61, 0, s61"); a.e(f"s_cbranch_scc1 {L}n{b}")
                a.e(f"s_cbranch_vccnz {L}m{b}"); a.e(f"s_branch {L}n{b}")
        for b in range(4 if CK else 0):
            nb = (b + 1) & 3
            a.e(f"{L}f{b}:"); a.e("s_cselect_b32 s50, 1, 0")
            a.e(f"{L}h{b}:"); a.e(f"s_sleep {os.environ.get('GNAP', '2')}")
            if which == 2: a.e(f"s_sub_u32 s44, s44, {7*16384}")
            for j in range(4):
                bb = (nb + j) & 3
                for kk in range(2 if j < 3 else 1):
                    for x in past(seq([(bb, kk)], None)):
                        if bb >= nb and which == 1: x = x.replace("s44", "s49")
                        if bb >= nb and which == 2: x = x.replace(f", v{LO}, ", f", v{LP}, ").replace(f", v{LO+1}, ", f", v{LP+1}, ")
                        a.e(x)
            a.e("s_waitcnt vmcnt(10)")
            for x in check(nb): a.e(x)
            a.e("s_add_u32 s53, s53, 1"); a.e("s_cmp_ge_u32 s53, s61"); a.e("s_cselect_b32 s61, 0, s61"); a.e(f"s_cbranch_scc1 {L}k{b}")
            a.e(f"s_cbranch_vccnz {L}h{b}")
            a.e(f"{L}k{b}:"); a.e("s_cmp_eq_u32 s50, 1"); a.e(f"s_branch {L}g{b}")
        if PEEL: a = a_
        a.e(f"{L}x:")
        if STAMP and os.environ.get("FC"):
            a.e("s_mov_b32 s100, m0"); a.e("s_lshl_b32 m0, s60, 1"); a.e(f"s_add_u32 m0, m0, {55 + which}"); a.e("s_nop 0"); a.e("v_writelane_b32 v255, s53, m0"); a.e("s_mov_b32 m0, s100")
    else:
        if which == 3:
            a.e(f"v_mov_b32 v{aa}, v{a0}")
            a.e("s_mov_b32 s42, 0"); a.e("s_mov_b32 s43, 0"); a.e(f"s_mov_b32 s48, {w00}")
            for i in range(nwr): a.e(f"v_add_u32 v{wa+i}, {w00}, v{w0+i}")
        if os.environ.get("XD") and os.environ["XD"][0] == str(which): a.e("s_sleep " + os.environ["XD"][1:])
        if not (which == 3 and B0E): a.e("s_waitcnt lgkmcnt(0)"); a.e("s_barrier")
        mstamp(a)
        for x in reads(fX, 0): a.e(x)
        a.e(f"s_waitcnt lgkmcnt({NR_ - MT - 2})")
    if which == 4:
        def st2(j): return [(x, 0) for x in [f"s_add_u32 s36, s44, {j*224*1024}", f"buffer_store_dwordx4 {vr(C2R+4*j,4)}, v{l16}, s[16:19], s36 offen {SC}",
                            f"s_add_u32 s36, s45, {j*224*1024}", f"buffer_store_dwordx2 {vr(C2R+16+2*j,2)}, v{SO3}, s[16:19], s36 offen {SC}"]]
        assert PBB in (1, 2) and PC0 >= 2
        for st_ in range(2): stage(st2(2 * st_), st2(2 * st_ + 1), zero=st_ == 0, pre=[f"s_waitcnt vmcnt({4 * st_ + 2})"] if PBB == st_ + 1 else [])
        CW = 0
        if PC0 > 3:
            L0 = a.lab("mm"); a.e(f"{L0}:"); stage(lim=PC0); a.e(f"s_cbranch_scc1 {L0}")
        elif PC0 == 3: stage()
    if which == 3 and os.environ.get("PEEL3", "1") == "1": stage(late=True, zero=True)
    if which > 2:
        L = a.lab("mm"); a.e(f"{L}:")
        stage(pre=[f"s_waitcnt vmcnt({CW})"] if which == 4 else [])
        a.e(f"s_cbranch_scc1 {L}")
    b0 = Rec()
    if which == 4:
        a.e("s_cmp_eq_u32 s60, 1"); a.e("s_cbranch_scc1 G4_last")
        if not RPC: r_pre(b0)
    if which == 1:
        for mt in range(MT):
            for p in range(NT // 2): b0.e(f"buffer_load_dwordx4 {vr(RES2+(mt*(NT//2)+p)*4,4)}, v{LO+mt}, s[8:11], s41 offen offset:{p*1024} {SC}")
    if which == 1 and R2K: r2_ = b0.l; b0 = Rec()
    early = True
    XW = {3: [f"s_waitcnt lgkmcnt({min(15, NR_ - MT)})"], 7: ["s_waitcnt lgkmcnt(8)"]}
    if which <= 2: dmf(3, spreadf(b0.l, 0, 8), 0, 8)
    else: group(fX, reads(fY, 1), 0, b0.l, XW)
    a.e("s_waitcnt lgkmcnt(0)")
    if which not in DL: a.e("s_barrier")
    b = Rec()
    if which in (1, 3):
        for nt in range(NT): b.e(f"ds_read_b128 {vr(cs+4*nt,4)}, v{t} offset:{nt*64}")
        if which == 3:
            for mt in range(MT): b.e(f"ds_read_b128 {vr(lns+4*mt,4)}, v{t2} offset:{mt*256}")
            for i in range(4): b.e(f"v_mov_b32 v{w0+i}, v{G4W+i}"); b.e(f"v_add_u32 v{wa+i}, {CFG[4]['S0']*CFG[4]['STB']}, v{G4W+i}")
            b.e("s_mov_b32 s42, 0"); b.e("s_mov_b32 s43, 0"); b.e(f"s_mov_b32 s48, {CFG[4]['S0']*CFG[4]['STB']}"); b.e(f"v_mov_b32 v{aa}, v{a0}")
            assert fY + 16 == RFO; r_addr(b, False)
        else:
            for mt in range(MT): b.e(f"ds_read_b64 {vr(lns+2*mt,2)}, v{t2} offset:{mt*256}")
    if which == 2: lsrd(b, 44, oST2, 24576)
    if which == 4:
        b.e(f"s_mul_i32 s36, s31, {oP1-oP0}"); b.e(f"s_add_u32 s36, s36, {oP0}")
        b.e("s_add_u32 s16, s62, s36"); b.e("s_addc_u32 s17, s63, 0"); b.e(f"s_mov_b32 s18, {XSZ}"); b.e("s_mov_b32 s19, 0x20000")
    if which <= 2: dmf(3, spreadf(b.l, 8, 15), 8, 16)
    else: group(fY, [], 0, b.l)
    mstamp(a)
    if which in (1, 3):
        AB = v(2 * MT, 2) if which == 1 else fY + 4
        def consts():
            for mt in range(MT if which == 1 else 0):
                r = lns + 2 * mt + 1
                a.e(f"v_mul_f32 v{AB+2*mt}, {f32(GC1)}, v{r}"); a.e(f"v_mul_f32 v{AB+2*mt+1}, v{r}, v{r}")
                a.e(f"v_mul_f32 v{AB+2*mt+1}, v{AB+2*mt+1}, v{AB+2*mt}"); a.e(f"v_mul_f32 v{AB+2*mt+1}, {f32(0.044715)}, v{AB+2*mt+1}")
                a.e(f"v_rcp_f32 v{r}, v{r}")
        def act(mt, nt):
            A = A_(mt, nt); P_ = [(A, tp), (A + 2, tp + 2)]; L_ = vr(lns + 2 * mt, 2); K_ = vr(AB + 2 * mt, 2)
            if which == 3: L_ = vr(lns + 4 * mt, 2); K_ = vr(lns + 4 * mt + 2, 2)
            for h in range(2):
                a.e(f"v_pk_fma_f32 {vr(A+2*h,2)}, {L_}, {vr(cs+4*nt+2*h,2)}, {vr(A+2*h,2)} op_sel_hi:[0,1,1] neg_lo:[1,0,0] neg_hi:[1,0,0]")
            for x, u in P_: a.e(f"v_pk_mul_f32 {vr(u,2)}, {vr(x,2)}, {vr(x,2)}")
            for x, u in P_: a.e(f"v_pk_fma_f32 {vr(u,2)}, {vr(u,2)}, {K_}, {K_} op_sel:[0,1,0] op_sel_hi:[1,1,0]")
            for x, u in P_: a.e(f"v_pk_mul_f32 {vr(u,2)}, {vr(u,2)}, {vr(x,2)}")
            for i in range(4): a.e(f"v_exp_f32 v{tp+i}, v{tp+i}")
            for x, u in P_: a.e(f"v_pk_fma_f32 {vr(u,2)}, {vr(u,2)}, {L_}, {L_} op_sel:[0,1,1] op_sel_hi:[1,1,1]")
            for i in range(4): a.e(f"v_rcp_f32 v{tp+i}, v{tp+i}")
            for x, u in P_: a.e(f"v_pk_mul_f32 {vr(x,2)}, {vr(x,2)}, {vr(u,2)}")
        def egroup(par, mt, nts, dst=None):
            for nt in nts: act(mt, nt)
            T = par * NT + nts[0]; P = (T >> 1) - ((par * NT) >> 1); B = A_(mt, nts[0]); D = B if dst is None else dst
            for k in range(2 * len(nts)): a.e(f"v_cvt_pk_bf16_f32 v{D+k}, v{B+2*k}, v{B+2*k+1}")
            if which == 3 and (mt < 3 or "3" in DP or V3) and "1" in DP: mark(a, D, 1)
            if which == 1: mark(a, D, 0)
            if which == 3: return [f"s_add_u32 s36, s{44+P}, {mt*224*1024}", f"buffer_store_dwordx4 {vr(B,4)}, v{l16}, s[16:19], s36 offen {SC}"]
            return [f"buffer_store_dwordx4 {vr(B,4)}, v{so}, s[16:19], s{39+P} offen offset:{mt*256} {SC}"]
        def body(par):
            if which == 1: gs = [(0, 1), (2, 3)]
            else: gs = [(0, 1), (2, 3), (4, 5), (6,)] if par == 0 else [(1, 2), (3, 4), (5, 6), (0,)]
            k = 0; pend = []; sent = 0
            for gi_, g_ in enumerate(gs):
                for mt in range(MT):
                    if which == 3 and k == C0PUB:
                        a.e(f"s_waitcnt vmcnt({sent - 4})"); a.e("s_mov_b64 exec, 1"); a.e(f"ds_add_u32 v{EA+2}, v{EA+1}"); a.e("s_mov_b64 exec, -1"); mstamp(a)
                    if which == 1 and R2K and k == R2K:
                        for x in r2_: a.e(x)
                    if which == 3 and k == RK:
                        b_ = Rec(); r_pre(b_); l_ = [x for x in b_.l if x.startswith(("buffer", "s_mov_b32 s78"))]
                        a.e("s_cmp_eq_u32 s60, 1"); a.e(f"s_cbranch_scc1 G4_p1{par}")
                        for x in l_: a.e(x)
                        a.e(f"s_branch G4_p2{par}"); a.e(f"G4_p1{par}:")
                        for x in last_res(): a.e(x)
                        a.e(f"G4_p2{par}:")
                        if 4 <= k < C0PUB: sent += 8
                    st_ = egroup(par, mt, g_, None if gi_ < 2 else C2R + 4 * mt if gi_ == 2 else C2R + 16 + 2 * mt); k += 1
                    if which == 3 and gi_ < 3:
                        a.e(f"ds_write_b128 v{EA}, {vr(A_(mt, g_[0]) if gi_ < 2 else C2R + 4 * mt, 4)} offset:{gi_*16384 + mt*2048}")
                    if gi_ < 2: pend.append(st_)
                    n = len(pend) if (which == 1 or k <= 4 or k == 16) else 0 if k <= STQ else min(1, len(pend))
                    for _ in range(n):
                        for x in pend.pop(0): a.e(x)
                        sent += 1
            if which == 3:
                a.e("s_waitcnt lgkmcnt(0)")
                if par == 0: a.e("s_mov_b32 s44, s46"); a.e("s_mov_b32 s45, s47")
                else: a.e("s_add_u32 s45, s44, 512"); a.e("s_mov_b32 s44, s47")
        a.e("s_waitcnt lgkmcnt(0)")
        consts()
        if which == 3:
            a.e("s_cmp_eq_u32 s35, 1"); a.e(f"s_cbranch_scc1 {nm}_e1")
            body(0); a.e(f"s_branch {nm}_e2"); a.e(f"{nm}_e1:"); body(1); a.e(f"{nm}_e2:")
        else: body(0)
    if which == 2:
        xf = v(2, 2); S = v(2 * MT, 2); pp = v(2, 2); mn = v(2, 2)
        for mt in range(MT):
            a.e(f"s_add_u32 s36, s39, {mt*65536}")
            for p in range(NT // 2):
                R = res + (mt * (NT // 2) + p) * 4
                for e in range(4):
                    X = A_(mt, 2 * p) + 2 * e
                    a.e(f"v_cvt_pk_bf16_f32 v{R+e}, v{X}, v{X+1}")
                if DP: mark(a, R, 0)
                a.e(f"buffer_store_dwordx4 {vr(R,4)}, v{l16}, s[16:19], s36 offen offset:{p*1024} {SC}")
        if which in DL: a.e("s_barrier")
        if OWN3:
            a.e("s_lshl_b32 s36, s37, 11"); a.e(f"v_add_u32 v{t2}, s36, v{l16}")
            for i in range(4): a.e(f"ds_write_b128 v{t2}, {vr(res+4*i,4)} offset:{1024*i}")
        for i in range(MT * NT * 2): unpack(a, acc + 2 * i, acc + 2 * i + 1, res + i)
        mstamp(a)
        publish(a, which, 4, pt)
        if B0E: a.e("s_waitcnt lgkmcnt(0)"); a.e("s_barrier")
        mstamp(a)
        for mt in range(MT):
            B = A_(mt, 0); Sm = S + 2 * mt
            a.e(f"v_pk_add_f32 {vr(pp,2)}, {vr(B,2)}, {vr(B+2,2)}"); a.e(f"v_pk_mul_f32 {vr(xf,2)}, {vr(B,2)}, {vr(B,2)}")
            for i in range(1, NT * 2):
                if i > 1: a.e(f"v_pk_add_f32 {vr(pp,2)}, {vr(pp,2)}, {vr(B+2*i,2)}")
                a.e(f"v_pk_fma_f32 {vr(xf,2)}, {vr(B+2*i,2)}, {vr(B+2*i,2)}, {vr(xf,2)}")
            a.e(f"v_add_f32 v{Sm}, v{pp}, v{pp+1}"); a.e(f"v_add_f32 v{Sm+1}, v{xf}, v{xf+1}")
            for op in ("v_permlane16_swap_b32", "v_permlane32_swap_b32"):
                for k in range(2): a.e(f"v_mov_b32 v{pp+k}, v{Sm+k}")
                for k in range(2): a.e(f"{op} v{Sm+k}, v{pp+k}")
                a.e(f"v_pk_add_f32 {vr(Sm,2)}, {vr(Sm,2)}, {vr(pp,2)}")
        a.e(f"v_cmp_eq_u32 vcc, 0, v{G}"); a.e(f"v_cndmask_b32 v{S}, v{S+2}, v{S}, vcc"); a.e(f"v_cndmask_b32 v{S+1}, v{S+3}, v{S+1}, vcc")
        spread(a, 40, 29); a.e("s_lshl_b32 s36, s34, 8"); a.e("s_add_u32 s40, s40, s36")
        a.e(f"v_lshlrev_b32 v{t2}, 3, v{lane}")
        a.e("s_bfm_b64 exec, 32, 0")
        a.e(f"buffer_store_dwordx2 {vr(S,2)}, v{t2}, s[44:47], s40 offen {SC}")
        a.e("s_mov_b64 exec, -1")
    if which == 4:
        for mt in range(MT):
            a.e(f"s_add_u32 s36, s39, {mt*65536}")
            for p in range(NT // 2):
                B = A_(mt, 2 * p)
                for e in range(4): a.e(f"v_cvt_pk_bf16_f32 v{B+e}, v{B+2*e}, v{B+2*e+1}")
                if "r" in DP: mark(a, B, 1)
                a.e(f"buffer_store_dwordx4 {vr(B,4)}, v{l16}, s[16:19], s36 offen offset:{p*1024} {SC}")
    if which != 2:
        if which in DL: a.e("s_barrier")
        mstamp(a)
        if which == 4 and "r" not in DP: publish(a, which, 4, pt)
        mstamp(a)
    if which == 4:
        a.e("s_branch NEXT")
        a.e("G4_last:")
        PX = 208; oa = 224; xf = 226
        group(fX, reads(fY, 1), 0, [(f"s_load_dwordx2 s[6:7], s[0:1], {D_OUT}", 9)], XW)
        a.e("s_waitcnt lgkmcnt(0)")
        b = Rec()
        lsrd(b, 16, oX1P if "f" in DP else MB, XSZ)
        b.srd(20, 6, 4 * MB)
        if "f" not in DP:
            b.e("s_lshl_b32 s44, s29, 2"); b.e("s_add_u32 s44, s44, s30"); b.e("s_lshl_b32 s44, s44, 7"); b.e("s_xor_b32 s45, s44, 4096")
            b.e("s_add_u32 s44, s44, s55"); b.e(f"s_add_u32 s44, s44, {oFP}"); b.e("s_add_u32 s45, s45, s55"); b.e(f"s_add_u32 s45, s45, {oFP}")
            b.e(f"v_mov_b32 v{pt+1}, s45"); b.e(f"v_mov_b32 v{pt+2}, s52"); b.e(f"v_mov_b32 v{pt+3}, 0")
        else: b.e("s_add_u32 s44, s40, 65536")
        b.e("s_lshl_b32 s46, s28, 3"); b.e("s_add_u32 s46, s46, s37"); b.e("s_lshl_b32 s47, s31, 1"); b.e("s_add_u32 s46, s46, s47"); b.e("s_lshl_b32 s46, s46, 15")
        b.e("s_lshl_b32 s47, s38, 5"); b.e("s_add_u32 s46, s46, s47"); b.e(f"s_add_u32 s47, s46, {16*2048}")
        b.e(f"v_and_b32 v{oa+1}, 1, v{G}"); b.e(f"v_lshlrev_b32 v{oa}, 11, v{J}"); b.e(f"v_lshl_add_u32 v{oa}, v{oa+1}, 5, v{oa}")
        b.e(f"v_lshrrev_b32 v{oa+1}, 1, v{G}"); b.e(f"v_lshl_add_u32 v{oa}, v{oa+1}, 4, v{oa}")
        FULLN = os.environ.get("FULLN", "1") == "1"
        if FULLN:
            b.e(f"v_lshrrev_b32 v{oa+1}, 3, v{J}"); b.e(f"v_mul_u32_u24 v{oa+1}, {8*2048 - 64}, v{oa+1}"); b.e(f"v_sub_u32 v{oa}, v{oa}, v{oa+1}")
            b.e(f"v_add_u32 v{oa+1}, {8*2048}, v{oa}")
        OT = int(os.environ.get("OT", "0"))
        if OT == 1: b.e("s_mov_b64 exec, 1"); b.e(f"buffer_load_dword v{xf}, v{oa}, s[20:23], s46 offen {SC}"); b.e("s_mov_b64 exec, -1")
        if OT == 2:
            for k in range(4): b.e(f"buffer_load_dword v{xf}, v{oa+(k&1)}, s[20:23], s{46+(k>>1)} offen {SC}")
        group(fY, [], 0, b.l)
        mstamp(a)
        def send(m0_):
            for i in range(2):
                a.e(f"s_add_u32 s36, s41, {i*65536}")
                for p in range(2):
                    B = A_(m0_ + i, 2 * p)
                    for e in range(4): a.e(f"v_cvt_pk_bf16_f32 v{B+e}, v{B+2*e}, v{B+2*e+1}")
                    if "f" in DP: mark(a, B, 1)
                    a.e(f"buffer_store_dwordx4 {vr(B,4)}, v{l16}, s[16:19], s36 offen offset:{p*1024} {SC}")
        a.e("s_cmp_eq_u32 s31, 0"); a.e("s_cbranch_scc1 G4_k0")
        send(0)
        for i in range(0, 32, 2): a.e(f"v_pk_mov_b32 {vr(acc+i,2)}, {vr(acc+32+i,2)}, {vr(acc+32+i,2)} op_sel:[0,1]")
        a.e("s_branch G4_k1")
        a.e("G4_k0:")
        send(2)
        a.e("G4_k1:")
        a.e("s_mov_b32 s78, 0x3f80"); a.e("s_mov_b32 s79, 0x3f800000")
        def addp(k, R):
            B = A_(k >> 1, 2 * (k & 1))
            if DOT:
                for e in range(8): a.e(f"v_dot2_f32_bf16 v{B+e}, v{R+e//2}, s{78+(e&1)}, v{B+e}")
                return
            for e in range(4):
                unpack(a, xf + 2 * (e & 1), xf + 1 + 2 * (e & 1), R + e)
                a.e(f"v_pk_add_f32 {vr(B+2*e,2)}, {vr(B+2*e,2)}, {vr(xf+2*(e&1),2)}")
        for k in range(4): addp(k, RX[2 * k])
        if "f" not in DP:
            a.e("s_waitcnt vmcnt(0)")
            a.e("s_mov_b64 exec, 1"); a.e(f"buffer_store_dword v{pt+2}, v{pt+3}, s[56:59], s44 offen {SC}"); a.e("s_mov_b64 exec, -1")
        mstamp(a)
        for k in range(4): addp(k, RX[2 * k + 1])
        if "f" in DP:
            data_poll(a, [f"buffer_load_dwordx4 {vr(PX+4*(2*i+p),4)}, v{l16}, s[16:19], s{(40, 44)[i]} offen offset:{p*1024} {os.environ.get('FF', SC)}" for i in range(2) for p in range(2)],
                      [PX + 4 * k for k in range(4)], t, int(os.environ.get("FNAP", "2")), 0, int(os.environ.get("FCAN", "0")))
            mstamp(a)
        else:
            poll_core(a, pt, [pt + 1], 1, nap=2)
            mstamp(a)
            for i in range(2):
                a.e(f"s_add_u32 s36, s40, {i*65536}")
                for p in range(2): a.e(f"buffer_load_dwordx4 {vr(PX+4*(2*i+p),4)}, v{l16}, s[16:19], s36 offen offset:{p*1024} {SC}")
        for k in range(4):
            if "f" not in DP: a.e(f"s_waitcnt vmcnt({3 - (k & 1) if FULLN else 3})")
            addp(k, PX + 4 * k)
            B = A_(k >> 1, 2 * (k & 1))
            if os.environ.get("EPS"):
                for e in range(8): a.e(f"v_mul_f32 v{B+e}, {f32(1 + float(os.environ['EPS']) * (1 if e & 1 else -1))}, v{B+e}")
            for e in range(4): a.e(f"v_cvt_pk_bf16_f32 v{B+e}, v{B+2*e}, v{B+2*e+1}")
            for e in range(2): a.e(f"v_permlane16_swap_b32 v{B+e}, v{B+2+e}")
            if not FULLN: a.e(f"buffer_store_dwordx4 {vr(B,4)}, v{oa}, s[20:23], s{46+(k>>1)} offen offset:{64*(k&1)} {os.environ.get('OS', '')}")
            elif k & 1:
                X, Y, T = B - 8, B, B + 4
                for e in range(4): a.e(f"v_mov_b32 v{T+e}, v{X+e}")
                for e in range(4): a.e(f"v_mov_b32_dpp v{X+e}, v{Y+e} row_ror:8 row_mask:0xf bank_mask:0xc")
                for e in range(4): a.e(f"v_mov_b32_dpp v{Y+e}, v{T+e} row_ror:8 row_mask:0xf bank_mask:0x3")
                a.e(f"buffer_store_dwordx4 {vr(X,4)}, v{oa}, s[20:23], s{46+(k>>1)} offen {os.environ.get('OS', SC)}")
                a.e(f"buffer_store_dwordx4 {vr(Y,4)}, v{oa+1}, s[20:23], s{46+(k>>1)} offen {os.environ.get('OS', SC)}")
        a.e("s_branch K_fin")
    assert v.hi <= {1: RES2, 2: RES2, 3: RYY, 4: 176}[which], v.hi
    return v.hi

def k_mega(a):
    nm = KNAME; a.begin_kernel(nm)
    a.e("s_cmp_ge_u32 s2, 256"); a.e("s_cbranch_scc1 K_end")
    a.e(f"s_load_dwordx8 s[8:15], s[0:1], {A_K}")
    if FAST:
        if STAMP: a.e("s_memrealtime s[46:47]")
        front_first(a)
    a.e(f"s_load_dwordx2 s[6:7], s[0:1], {A_Q}"); a.e(f"s_load_dwordx8 s[68:75], s[0:1], {B_W1}")
    a.e(f"s_load_dwordx2 s[4:5], s[0:1], {D_WS}"); a.e(f"s_load_dwordx2 s[84:85], s[0:1], {D_DBG}")
    if not (FAST and STAMP): a.e("s_memrealtime s[46:47]")
    a.e(f"s_load_dwordx2 s[96:97], s[0:1], {A_SSMD}")
    a.e("v_lshrrev_b32 v1, 6, v0"); a.e("v_readfirstlane_b32 s30, v1")
    if CODEPF:
        a.e("s_getpc_b64 s[48:49]"); a.e("K_pc:")
        a.e("s_lshr_b32 s36, s2, 3"); a.e("s_lshl_b32 s36, s36, 11")
        a.e("v_lshlrev_b32 v4, 2, v0"); a.e("v_add_u32 v4, s36, v4")
        a.e("v_cmp_gt_u32 vcc, K_end-K_pc-8, v4"); a.e("s_and_saveexec_b64 s[36:37], vcc"); a.e("s_cbranch_execz K_3")
        a.e("v_mov_b32 v5, s49"); a.e("v_add_co_u32 v4, vcc, s48, v4"); a.e("v_addc_co_u32 v5, vcc, 0, v5, vcc")
        a.e("global_load_dword v250, v[4:5], off")
        a.e("K_3:"); a.e("s_mov_b64 exec, -1")
    for _ in range(int(os.environ.get("SDELAY", "0"))): a.e("s_sleep 127")
    front_loads(a)
    a.e("v_and_b32 v1, 63, v0"); a.e("v_lshlrev_b32 v2, 4, v1"); a.e("v_lshlrev_b32 v3, 2, v1")
    a.e("s_mov_b32 s67, 0")
    a.e("s_mov_b32 s60, 0"); a.e("s_mov_b32 s61, 40000"); a.e("s_mov_b32 s52, 0")
    a.e("s_mov_b32 s55, 0"); a.e("s_mov_b32 s92, 0"); a.e("s_mov_b32 s93, 0"); a.e("s_mov_b32 s94, 0")
    a.srd(56, 4, HSB)
    if os.environ.get("FIXT"): a.e("s_mov_b32 s101, s46")
    a.e(f"s_add_u32 s62, s4, {LB0}"); a.e("s_addc_u32 s63, s5, 0")
    if STAMP:
        a.e("s_mov_b32 s66, 1"); a.e("v_mov_b32 v255, -1"); a.e("s_mov_b32 s95, 0"); a.e("v_writelane_b32 v255, s46, 0")
    mstamp(a)
    if os.environ.get("WBENCH"):
        a.e("s_waitcnt vmcnt(0)"); a.e("s_barrier")
        a.e("s_cmp_lt_u32 s30, 6"); a.e("s_cbranch_scc1 WB_end")
        for w in (1, 2, 3, 4):
            mstamp(a); w_setup(a, w); a.e("s_waitcnt vmcnt(0)"); mstamp(a); a.e("s_sleep 40")
        a.e("WB_end:"); a.e("s_branch K_dump")
    front_a(a); mstamp(a)
    for r in range(238, 248): a.e(f"v_mov_b32 v{r}, 0")
    a.e("s_cmp_ge_u32 s30, 4"); a.e("s_cbranch_scc1 FR_b")
    front_conv(a); hi = 0
    mstamp(a)
    front_arrive(a, True, True)
    if os.environ.get("EPR"): a.e("s_setprio 0")
    a.e("s_branch FR_end")
    a.e("FR_b:")
    front_b(a)
    a.e("FR_end:")
    mstamp(a)
    a.e("LAYER:")
    if os.environ.get("XDELAY"): a.e(f"s_sleep {os.environ['XDELAY']}")
    hi = max(hi, r_stage(a, False))
    mstamp(a)
    a.e("s_cmp_ge_u32 s30, 4"); a.e("s_cbranch_scc1 LOADERS")
    if CPRIO: a.e(f"s_setprio {CPRIO}")
    for w in (1, 2, 3, 4):
        a.lines.append(f"; ---- G{w}: compute waves (set-up, K loop, epilogue, publish)")
        hi = max(hi, g_compute(a, w))
    a.e("LOADERS:")
    park_rest(a, True)
    if SB[2]:
        a.e("s_cmp_lg_u32 s60, 0"); a.e("s_cbranch_scc1 LD_0"); sb(a, SB[2]); a.e("LD_0:")
    if PRIO: a.e(f"s_setprio {PRIO}")
    a.e("s_cmp_ge_u32 s30, 6"); a.e("s_cbranch_scc1 WLOAD")
    for w in (1, 2, 3, 4): a_loader(a, w)
    a.e("s_branch NEXT")
    a.e("WLOAD:")
    a.e("s_cmp_eq_u32 s60, 1"); a.e("s_cbranch_scc1 WL_1")
    w_setup(a, 1, pre=False); w1_slots(a, range(9 - W1G), pace=12); mstamp(a)
    a.e("s_branch WL_2")
    a.e("WL_1:")
    w_setup(a, 1, pre=False); w1_slots(a, range(3 - W1L), pace=12)
    a.e("WL_2:")
    for w in (1, 2, 3, 4):
        w_loader(a, w)
        if w == 2:
            c = CFG[3]; w_setup(a, 3, pre=False); n_ = 3 if W33 else 2; a.e(f"s_mov_b32 s42, {(c['S0'] + n_) % c['NW'] * c['STB']}"); a.e(f"s_mov_b32 s44, {n_}")
        if w == 3: w_setup(a, 4)
    a.e("NEXT:")
    a.e("s_setprio 0")
    a.e("s_add_u32 s60, s60, 1"); a.e(f"s_add_u32 s55, s55, {LSTR}")
    a.e(f"s_add_u32 s62, s62, {LSTR}"); a.e("s_addc_u32 s63, s63, 0")
    a.e("s_branch LAYER")
    a.e("K_fin:")
    if os.environ.get("FIXT"):
        a.e("FX_l:"); a.e("s_sleep 4"); a.e("s_memrealtime s[64:65]"); a.e("s_waitcnt lgkmcnt(0)"); a.e("s_sub_u32 s64, s64, s101")
        if os.environ.get("FIX0"): a.e("s_add_u32 s64, s64, s101"); a.e("s_lshl_b32 s64, s64, 6"); a.e("s_sub_u32 s64, s64, s52"); a.e("s_lshr_b32 s64, s64, 6")
        a.e(f"s_cmp_lt_u32 s64, {os.environ['FIXT']}"); a.e("s_cbranch_scc1 FX_l")
    if STAMP:
        a.e("K_dump:")
        a.e("s_waitcnt vmcnt(0)")
        mstamp(a)
        a.srd(96, 4, 16 * MB, off=200 * MB)
        a.e("s_lshl_b32 s66, s2, 3"); a.e("s_add_u32 s66, s66, s30"); a.e("s_lshl_b32 s66, s66, 8")
        a.e("v_writelane_b32 v255, s95, 63")
        a.e("buffer_store_dword v255, v3, s[96:99], s66 offen")
        if os.environ.get("DBGOUT"):
            a.e("s_cmp_lg_u32 s66, 0"); a.e("s_cbranch_scc1 K_end")
            a.e(f"s_load_dwordx2 s[96:97], s[0:1], {D_DBG}"); a.e("s_mov_b32 s98, 64"); a.e("s_waitcnt lgkmcnt(0)")
            a.e("v_readlane_b32 s64, v255, 0"); a.e("v_mov_b32 v10, 0")
            for i, j in enumerate(eval(os.environ["DBGOUT"])):
                a.e(f"v_readlane_b32 s65, v255, {j}"); a.e("s_sub_u32 s65, s65, s64"); a.e("v_mov_b32 v11, s65")
                a.e(f"buffer_store_dword v11, v10, s[96:99], 0 offen offset:{8+4*i}")
    a.e("s_endpgm")
    emit_subs(a)
    a.e("K_end:")
    assert hi <= PV
    a.end_kernel(nm, 256)
    if TAB: tab_data(a)
    a.launches.append(f"; @launch grid=(256,1,1) block=(512,1,1) lds={LDS_TOTAL}")

HEADER = open(HERE + "/../interleave_layers__ssm_conv_h3__mixer_s_mlp__prompt.s.ref").read().split("; Override launch")[0]
DOC = """; One persistent kernel, 256 workgroups x 8 waves (one per CU), generated by dev/gen46.py.
"""
def main(out):
    a = Asm()
    k_mega(a)
    DS = os.environ.get("DS")
    if DS:
        o = []
        for l in a.lines:
            o.append(l)
            if "buffer_store_dwordx" in l and "sc1" in l and any(k in l for k in DS.split(",")): o.append(l.replace(" sc1", ""))
        a.lines = o
    notes = {
        "K_pc:": "each workgroup reads 2 KB of this kernel's code so that later instruction fetches are served on chip",
        "KV_t0:": "k / v / tap loads of the u^T tile (64 times x 128 channels); workgroup 0 has posted the launch tag (a clock value) in d_debug",
        "HB_2:": "u^T tile out, arrival counters initialised to the tag, roles, shifted filter copies into LDS",
        "CV_w:": "long causal convolution as Toeplitz MFMAs, one channel per wave",
        "FR_b:": "waves 4-7 beside the convolution: memory-locality vote (timed loads, layout choice only), weight column sums, weight touches",
        "LAYER:": "row stage: residual sums, LayerNorm chain, x + LN(x)*y for 8 rows per workgroup",
        "LOADERS:": "waves 4,5: LayerNorm scalars / column sums; activation tiles of G3, G4 by LDS-DMA (after the producers' counters are complete)",
        "WLOAD:": "waves 6,7: weight tiles by LDS-DMA in their original layout (read back with transposing LDS loads)",
        "G4_last:": "last layer: the two K halves exchange half tiles, add the residuals and write the output",
    }
    o = []
    for l in a.lines:
        if l.strip() in notes: o.append("; ---- " + notes[l.strip()])
        if l.strip().startswith("s_sleep"): l += "    ; back-off of a wave that waits for another workgroup or wave"
        o.append(l)
    a.lines = o
    open(out, "w").write(a.text(HEADER + DOC))
    print("nops added:", a.nops_added)

if __name__ == "__main__":
    main(sys.argv[1] if len(sys.argv) > 1 else "interleave_layers__ssm_conv_h3__mixer_s_mlp__prompt.s")
```

```python
import sys, os, math, struct
HERE = os.path.dirname(os.path.abspath(__file__)); sys.path.insert(0, HERE)
from asmgen import Asm

KNAME = "interleave_layers__ssm_conv_h3__mixer_s_mlp__prompt_kernel"
MB = 1 << 20
UT, Y = 24 * MB, 28 * MB
CSP = {1: 20 * MB, 3: 20 * MB + 128 * 1024}
A_Q, A_K, A_V, A_SH, A_SSMK, A_SSMD, B_X, B_W1, B_W2, B_W3, B_W4, D_OUT, D_DBG, D_WS = [8 * i for i in range(14)]
STAMP = int(os.environ.get("STAMP", "0"))
def f32(x): return "0x%08x" % struct.unpack("<I", struct.pack("<f", x))[0]
GC1 = -2.0 * math.sqrt(2.0 / math.pi) * math.log2(math.e)
GC2 = GC1 * 0.044715

class VA:
    def __init__(self, start=1): self.n = start; self.hi = start
    def __call__(self, cnt=1, al=None):
        if al is None: al = 2 if cnt > 1 else 1
        self.n = (self.n + al - 1) // al * al
        r = self.n; self.n += cnt; self.hi = max(self.hi, self.n); return r
def vr(b, n): return f"v[{b}:{b+n-1}]" if n > 1 else f"v{b}"

def unpack(a, lo, hi, src):
    a.e(f"v_lshlrev_b32 v{lo}, 16, v{src}")
    a.e(f"v_and_b32 v{hi}, 0xffff0000, v{src}")
RND = int(os.environ.get("RND", "0"))
def round2(a, x, y, tmp):
    if not RND: return
    a.e(f"v_cvt_pk_bf16_f32 v{tmp}, v{x}, v{y}")
    unpack(a, x, y, tmp)
def round1(a, x):
    if not RND: return
    a.e(f"v_cvt_pk_bf16_f32 v{x}, v{x}, v{x}")
    a.e(f"v_lshlrev_b32 v{x}, 16, v{x}")
def red_g(a, x, t):
    a.e(f"v_mov_b32 v{t}, v{x}"); a.e(f"v_permlane16_swap_b32 v{x}, v{t}"); a.e(f"v_add_f32 v{x}, v{x}, v{t}")
    a.e(f"v_mov_b32 v{t}, v{x}"); a.e(f"v_permlane32_swap_b32 v{x}, v{t}"); a.e(f"v_add_f32 v{x}, v{x}, v{t}")
def ln_finish(a, mean, var, rs, s=None):
    round1(a, mean); round1(a, var)
    a.e(f"v_add_f32 v{var}, {f32(1e-5)}, v{var}"); round1(a, var)
    if not RND and s is None: a.e(f"v_rsq_f32 v{rs}, v{var}"); return
    a.e(f"v_sqrt_f32 v{var}, v{var}"); round1(a, var)
    if s is not None: a.e(f"v_mov_b32 v{s}, v{var}")
    a.e(f"v_rcp_f32 v{rs}, v{var}")


FLG = 22 * MB + int(os.environ.get("FOFF", "0"))
LB0, LSTR, GSTR = 32 * MB, 4 * MB, 16 * MB
oH2 = 4 * MB; oSM = oH2 + 1792 * 1024; oFP = 16384; oST2 = oSM + 32768; oLNS = oSM + 65536
oX3, oX1P, oP0, oP1 = [i * 512 * 1024 for i in range(4)]
DP = os.environ.get("DP", "rf12")
if "r" in DP: oP0, oP1 = oX3, oX1P
def mark(a, r, bit): a.e(f"v_or_b32 v{r}, 1, v{r}" if bit else f"v_and_b32 v{r}, -2, v{r}")
V3 = int(os.environ.get("V3", "0"))
DOT = int(os.environ.get("DOT", "1"))
def data_poll(a, loads, regs, t, nap, first=0, canary=False):
    L = a.lab("dp"); D = a.lab("dq")
    if canary:
        a.e("s_bfm_b64 exec, 1, 63"); data_poll(a, loads, regs, t, nap, first); a.e("s_mov_b64 exec, -1"); first = 0
    a.e("s_mov_b32 s53, 0")
    if first:
        f2 = int(os.environ.get("RFIRST2", "10"))
        if f2: a.e(f"s_sleep {f2}")
        a.e(f"s_cmp_ge_u32 s30, {os.environ.get('RW2', '6')}"); a.e(f"s_cbranch_scc1 {L}"); a.e(f"s_sleep {first - f2}")
    a.e(f"{L}:")
    for x in loads: a.e(x)
    a.e("s_waitcnt vmcnt(0)")
    a.e(f"v_bitop3_b32 v{t}, v{regs[0]}, v{regs[1]}, v{regs[2]} bitop3:0x80"); a.e(f"v_bitop3_b32 v{t}, v{t}, v{regs[3]}, 1 bitop3:0x80")
    a.e(f"v_cmp_eq_u32 vcc, 0, v{t}"); a.e(f"s_cbranch_vccz {D}")
    a.e(f"s_sleep {nap}")
    a.e("s_add_u32 s53, s53, 1"); a.e("s_cmp_lt_u32 s53, s61"); a.e(f"s_cbranch_scc1 {L}")
    a.e("s_mov_b32 s61, 0")
    a.e(f"{D}:")
XSZ = 512 * 1024 - 8192; H2SZ = 1792 * 1024 - 8192
HSB = 160 * MB; PITCH = 65536 + int(os.environ.get("SKEW", "0")); oHS = MB
def fso(stage): return int(stage * 256)
def spread(a, d, src):
    a.e(f"s_lshr_b32 s53, s{src}, 3"); a.e("s_lshl_b32 s53, s53, 14"); a.e(f"s_and_b32 s{d}, s{src}, 7"); a.e(f"s_lshl_b32 s{d}, s{d}, 10"); a.e(f"s_add_u32 s{d}, s{d}, s53")
ST_R, ST_G1, ST_G2, ST_G3, ST_G4, ST_R2, ST_G3B, ST_G3A = range(8); ST_G2S = 5.5
F_KVT, F_FRONT, F_CS = FLG, FLG + 32768, FLG + 53248; F_VOTE = F_FRONT + 16384; F_RES = F_VOTE
LDS_TOTAL = 163840
AUX = LDS_TOTAL - 4096
SC = "sc1"
PSLEEP = int(os.environ.get("PSLEEP", "5"))
ROT = int(os.environ.get("ROT", "1"))
PACE = int(os.environ.get("PACE", "8"))
PDEPTH = int(os.environ.get("PDEPTH", "1"))
WROT = int(os.environ.get("WROT", "1"))
PRIO = int(os.environ.get("PRIO", "0"))
STQ = int(os.environ.get("STQ", "12"))
CPRIO = int(os.environ.get("CPRIO", "1"))
FSLEEP = int(os.environ.get("FSLEEP", "6"))
CSPRIO = int(os.environ.get("CSPRIO", "1"))
NT = os.environ.get("NT", "nt"); HALO = int(os.environ.get("HALO", "0")); NTK = os.environ.get("NTK", "" if HALO else NT); NTH = os.environ.get("NTH", NT)
W1F = int(os.environ.get("W1F", "7"))
WSC = eval(os.environ.get("WSC", "{}"))
TLBW = int(os.environ.get("TLBW", "0"))
T12 = eval(os.environ.get("T12", "{}"))
T23 = eval(os.environ.get("T23", "()"))
OWN3 = int(os.environ.get("OWN3", "1"))
PUB2 = int(os.environ.get("PUB2", "4"))
MAP = int(os.environ.get("MAP", "4"))
HSPLIT = int(os.environ.get("HSPLIT", "4"))
W1G = int(os.environ.get("W1G", "9"))
PWAIT = int(os.environ.get("PWAIT", "8"))
DL = eval(os.environ.get("DL", "[2,4]"))
PACES = eval(os.environ.get("PACES", "{4:8}"))
C0PUB = int(os.environ.get("C0PUB", "6"))
LNSL = AUX + 1024

CFG = {1: dict(WM=4, WN=1, MT=2, NT=4, KBT=32, NS=16, NA=1.5, NW=16, A=oX3, W=B_W1, LDW=2048),
       2: dict(WM=4, WN=1, MT=2, NT=4, KBT=32, NS=16, NA=0, NW=16, A=oHS, W=B_W2, LDW=2048),
       3: dict(WM=2, WN=2, MT=4, NT=7, KBT=32, NS=16, NA=3, NW=3, A=oX1P, W=B_W3, LDW=7168, NPRE=2, WR=1, S0=2, WB=73728),
       4: dict(WM=2, WN=2, MT=4, NT=4, KBT=112, NS=28, NA=3, NW=6, A=oH2, W=B_W4, LDW=2048)}
for w, d in eval(os.environ.get("CFG", "{}")).items(): CFG[w].update(d)
for c in CFG.values():
    c.setdefault("NPRE", c["NW"]); c.setdefault("APRE", min(c["NA"], 3)); c.setdefault("WR", 1)
    c["TN16"] = c["WN"] * c["NT"]; c["STB"] = c["TN16"] * 2048; c.setdefault("WB", int(c["NA"] * 16384)); c.setdefault("S0", 0)
    c["RB"] = c["TN16"] * 32
    assert c["WB"] + c["NW"] * c["STB"] <= AUX
NX = 0
def nib(t): return sum(x << (4 * i) for i, x in enumerate(t))
CSO = {1: AUX + 3584, 3: AUX}

LW = AUX + 3072
def mstamp(a, force=False):
    if os.environ.get("JIT"):
        X = a.lab("jit")
        a.e("s_cselect_b32 s101, 1, 0"); a.e("s_memtime s[64:65]"); a.e("s_waitcnt lgkmcnt(0)"); a.e(f"s_and_b32 s64, s64, {os.environ['JIT']}"); a.e("s_cmp_lg_u32 s64, 0")
        a.e(f"s_cbranch_scc1 {X}"); a.e("s_sleep 50"); a.e(f"{X}:"); a.e("s_cmp_eq_u32 s101, 1")
        return
    if not STAMP or (os.environ.get("GST") and not force): return
    a.e(("s_memrealtime" if STAMP == 2 else "s_memtime") + " s[64:65]"); a.e("s_mov_b32 s100, m0"); a.e("s_mov_b32 m0, s66"); a.e("s_waitcnt lgkmcnt(0)")
    a.e("v_writelane_b32 v255, s64, m0"); a.e("s_mov_b32 m0, s100")
    a.e("s_add_u32 s66, s66, 1")

def lsrd(a, d, off, nbytes, prev=False):
    if prev:
        a.e(f"s_sub_u32 s{d}, s62, {LSTR - off:#x}"); a.e(f"s_subb_u32 s{d+1}, s63, 0")
        a.e(f"s_mov_b32 s{d+2}, {nbytes:#x}"); a.e(f"s_mov_b32 s{d+3}, 0x20000")
    else: a.srd(d, 62, nbytes, off=off)

def hs_srd(a, d):
    if "2" in DP: a.srd(d, 4, 128 * PITCH, off=HSB); return
    a.e("s_lshl_b32 s53, s60, 24"); a.e(f"s_add_u32 s53, s53, {HSB}")
    a.e(f"s_add_u32 s{d}, s4, s53"); a.e(f"s_addc_u32 s{d+1}, s5, 0"); a.e(f"s_mov_b32 s{d+2}, {128*PITCH}"); a.e(f"s_mov_b32 s{d+3}, 0x20000")

def group_off(a, d, m):
    a.e(f"s_lshr_b32 s53, s{m}, 3"); a.e("s_lshl_b32 s53, s53, 2"); a.e(f"s_and_b32 s54, s{m}, 3"); a.e("s_add_u32 s53, s53, s54"); a.e("s_lshl_b32 s53, s53, 24")
    a.e(f"s_lshr_b32 s54, s{m}, 2"); a.e("s_xor_b32 s54, s54, s94"); a.e("s_and_b32 s54, s54, 1"); a.e("s_lshl_b32 s54, s54, 13")
    a.e(f"s_add_u32 s{d}, s53, s54"); a.e(f"s_add_u32 s{d}, s{d}, {LB0}")

PV = 240
def poll_core(a, t, addrs, mask, extra=None, depth=1, cnt=0, nap=None):
    L = a.lab("poll"); D = a.lab("pok")
    n = len(addrs) + (1 if extra else 0)
    if depth > 1: t0 = t; regs = [PV + k * len(addrs) for k in range(depth)]; assert not extra and regs[-1] + len(addrs) <= 256
    else: regs = [t]
    def ld(r):
        for i, ad in enumerate(addrs): a.e(f"buffer_load_dword v{r+i}, v{ad}, s[56:59], 0 offen {SC}")
        if extra: a.e(extra[0])
    a.e("s_mov_b32 s53, 0"); a.e(f"s_add_u32 s54, s52, {cnt}")
    if mask != -1: a.e(f"s_bfm_b64 exec, {mask.bit_length()}, 0")
    for r in regs[:-1]: ld(r); a.e(f"s_sleep {PSLEEP}")
    a.e(f"{L}:")
    for k in range(depth):
        ld(regs[k - 1]); r = regs[k]
        a.e(f"s_waitcnt vmcnt({n*(depth-1)})")
        for i in range(len(addrs)): a.e(f"v_xor_b32 v{r+i}, s54, v{r+i}")
        for i in range(1, len(addrs)): a.e(f"v_or_b32 v{r}, v{r}, v{r+i}")
        if extra:
            for x in extra[1:]: a.e(x)
        a.e(f"v_cmp_eq_u32 vcc, 0, v{r}")
        a.e("s_cmp_eq_u64 vcc, exec"); a.e(f"s_cbranch_scc1 {D}")
        a.e(f"s_sleep {PSLEEP if nap is None else nap}")
    a.e("s_add_u32 s53, s53, 1"); a.e("s_cmp_lt_u32 s53, s61"); a.e(f"s_cbranch_scc1 {L}")
    a.e("s_mov_b32 s61, 0")
    a.e(f"{D}:")
    if mask != -1: a.e("s_mov_b64 exec, -1")

SPLIT = {ST_G1: "sign", ST_G3: "half", ST_G3A: "half", ST_G3B: "half"}
def flag_addr(a, r, stage, prev=False):
    so = fso(stage) - (LSTR if prev else 0)
    a.e(f"s_add_u32 s54, s55, {so & 0xffffffff:#x}")
    sp = SPLIT.get(stage)
    if sp == "half": a.e("s_lshl_b32 s53, s31, 7"); a.e("s_add_u32 s54, s54, s53")
    a.e(f"v_mov_b32 v{r}, s54")
    if sp == "sign":
        a.e("s_add_u32 s53, s54, 128"); a.e(f"v_writelane_b32 v{r}, s53, 1")
        a.e("s_add_u32 s53, s53, s93"); a.e(f"v_writelane_b32 v{r}, s53, 3")
        a.e("s_add_u32 s53, s54, s92"); a.e(f"v_writelane_b32 v{r}, s53, 2")
        return 0xf, 8
    return 1, 8 if sp else 16
def own_wait(a, stage, prev, t):
    if not PWAIT or stage == ST_R: return
    k = {ST_G1: 1, ST_G2: 2, ST_G4: 3}[stage] - (3 if prev else 0)
    a.e(f"s_mul_i32 s54, s60, {2 if 'r' in DP else 3}"); a.e(f"s_add_u32 s54, s54, {k}")
    lds_spin(a, LW + 56, "s54", t, nap=PWAIT)
def flag_try(a, r, ad):
    a.e("s_mov_b64 exec, 1"); a.e(f"buffer_load_dword v{r}, v{ad}, s[56:59], 0 offen {SC}"); a.e("s_mov_b64 exec, -1")
def flag_check(a, r, ad, cnt):
    D = a.lab("fok")
    a.e(f"v_readfirstlane_b32 s53, v{r}"); a.e(f"s_add_u32 s54, s52, {cnt}"); a.e("s_cmp_eq_u32 s53, s54"); a.e(f"s_cbranch_scc1 {D}")
    poll_core(a, r, [ad], 1, cnt=cnt)
    a.e(f"{D}:")

def poll(a, stage, t, prev=False):
    D = a.lab("pdone")
    a.e("s_cmp_lg_u32 s30, 4"); a.e(f"s_cbranch_scc1 {D}")
    own_wait(a, stage, prev, t)
    mask, cnt = flag_addr(a, t + 1, stage, prev)
    poll_core(a, t, [t + 1], mask, depth=PDEPTH, cnt=cnt)
    a.e(f"{D}:")
    if stage != ST_G4: mstamp(a)
    a.e("s_barrier")

def publish(a, stage, nw, t, off=None, wait=0, ctr=None, flag=False):
    D = a.lab("pub")
    mark = PWAIT and off is None and stage in (ST_G1, ST_G2, ST_G4)
    if off is None:
        a.e(f"s_add_u32 s53, s55, {fso(stage)}"); off = 53
        sp = SPLIT.get(stage)
        if sp == "half": a.e("s_lshl_b32 s54, s31, 7"); a.e("s_add_u32 s53, s53, s54")
        if sp == "sign": a.e("s_and_b32 s54, s29, 4"); a.e("s_lshl_b32 s54, s54, 5"); a.e("s_add_u32 s53, s53, s54")
    a.e(f"v_mov_b32 v{t}, 1"); a.e(f"v_mov_b32 v{t+1}, {LW + (ctr if ctr is not None else 4 if nw == 8 else 0)}"); a.e(f"v_mov_b32 v{t+3}, 0")
    a.e("s_mov_b64 exec, 1")
    if wait is not None: a.e(f"s_waitcnt vmcnt({wait})")
    if nw > 1:
        a.e(f"ds_add_rtn_u32 v{t+2}, v{t+1}, v{t}")
        if flag: a.e(f"v_mov_b32 v{t+1}, s52")
        a.e("s_waitcnt lgkmcnt(0)")
        a.e(f"v_readfirstlane_b32 s54, v{t+2}")
        a.e(f"s_and_b32 s54, s54, {nw-1}"); a.e(f"s_cmp_lg_u32 s54, {nw-1}"); a.e(f"s_cbranch_scc1 {D}")
    if flag: a.e(f"buffer_store_dword v{t+1}, v{t+3}, s[56:59], s{off} offen {SC}")
    else: a.e(f"buffer_atomic_add v{t}, v{t+3}, s[56:59], s{off} offen {SC}")
    if stage == ST_R and not flag:
        a.e("s_cmp_lg_u32 s60, 0"); a.e(f"s_cbranch_scc1 {D}")
        a.e("s_lshl_b32 s53, s29, 7"); a.e(f"s_add_u32 s53, s53, {F_CS}")
        a.e(f"buffer_atomic_add v{t}, v{t+3}, s[56:59], s53 offen {SC}")
    if mark: a.e(f"v_mov_b32 v{t+1}, {LW+56}"); a.e(f"ds_add_u32 v{t+1}, v{t}")
    a.e(f"{D}:")
    a.e("s_mov_b64 exec, -1")

def lds_spin(a, addr, target, t, dst=53, nap=False):
    L = a.lab("spin")
    a.e(f"v_mov_b32 v{t}, {addr}")
    a.e(f"{L}:")
    if nap: a.e(f"s_sleep {int(nap)}")
    a.e(f"ds_read_b32 v{t+1}, v{t}"); a.e("s_waitcnt lgkmcnt(0)"); a.e(f"v_readfirstlane_b32 s{dst}, v{t+1}")
    a.e(f"s_cmp_ge_u32 s{dst}, {target}"); a.e(f"s_cbranch_scc0 {L}")
def lds_set(a, addr, val, t):
    a.e(f"v_mov_b32 v{t}, {addr}"); a.e(f"v_mov_b32 v{t+1}, {val}")
    a.e("s_waitcnt lgkmcnt(0)"); a.e(f"ds_write_b32 v{t}, v{t+1}")
def lbar(a, k, t):
    a.e(f"v_mov_b32 v{t}, {LW+8}"); a.e(f"v_mov_b32 v{t+1}, 1")
    a.e("s_waitcnt lgkmcnt(0)")
    a.e("s_mov_b64 exec, 1"); a.e(f"ds_add_u32 v{t}, v{t+1}"); a.e("s_mov_b64 exec, -1")
    lds_spin(a, LW + 8, 4 * k + (2 if PWA else 0), t)

def gelu4(a, X, t, c1, c2):
    P = [(X, t), (X + 2, t + 2)]
    for x, u in P: a.e(f"v_pk_mul_f32 {vr(u,2)}, {vr(x,2)}, {vr(x,2)}")
    for x, u in P: a.e(f"v_pk_fma_f32 {vr(u,2)}, {vr(u,2)}, {vr(c2,2)}, {vr(c1,2)}")
    for x, u in P: a.e(f"v_pk_mul_f32 {vr(u,2)}, {vr(u,2)}, {vr(x,2)}")
    for i in range(4): a.e(f"v_exp_f32 v{t+i}, v{t+i}")
    for x, u in P: a.e(f"v_pk_add_f32 {vr(u,2)}, {vr(u,2)}, 1.0 op_sel_hi:[1,0]")
    for i in range(4): a.e(f"v_rcp_f32 v{t+i}, v{t+i}")
    for x, u in P: a.e(f"v_pk_mul_f32 {vr(x,2)}, {vr(x,2)}, {vr(u,2)}")

W2EARLY = int(os.environ.get("W2EARLY", "1")); QLATE = int(os.environ.get("QLATE", "0"))
TOUCH2 = [(A_Q, 4 * MB)] + ([] if W2EARLY else [(B_W2, 2 * MB)])
CODEPF = int(os.environ.get("CODEPF", "1")); NVOTE = int(os.environ.get("NVOTE", "32")); QUO = int(os.environ.get("QUO", "21")); NSAMP = int(os.environ.get("NSAMP", "2"))
W4POS = os.environ.get("W4POS", "S{15:(True,0,14)}")
HSTR = 4160; CHB = 24576; UOFF = 4 * HSTR; US = 96
KVS = 4 * CHB

KT = int(os.environ.get("KT", "1"))
KV = dict(cq=6, tg=7, t=8, ro=9, wo=16, pt=18, kr=22, vv=36, w=44, d=52, hoff=70, tag=76, zz=78)
FAST = int(os.environ.get("FAST", "0"))
def front_first(a):
    cq, tg, t, ro, wo, kr, vv, w = [KV[k] for k in "cq tg t ro wo kr vv w".split()]
    a.e(f"v_and_b32 v{cq}, 31, v0"); a.e(f"v_lshrrev_b32 v{tg}, 5, v0")
    a.e("s_and_b32 s34, s2, 7"); a.e("s_lshr_b32 s35, s2, 3")
    a.e("s_lshl_b32 s36, s35, 17"); a.e("s_lshl_b32 s37, s34, 8"); a.e("s_add_u32 s36, s36, s37")
    a.e(f"v_lshlrev_b32 v{t}, 13, v{tg}"); a.e(f"v_lshl_add_u32 v{t}, v{cq}, 3, v{t}"); a.e(f"v_add_u32 v{ro+3}, s36, v{t}")
    a.e(f"v_add_u32 v{ro+5}, 4096, v{ro+3}")
    a.e("s_waitcnt lgkmcnt(0)")
    for i in range(4): a.e(f"global_load_dwordx2 {vr(kr+2*(i+3),2)}, v{ro+3+(i&2)}, s[8:9] offset:{2048*(i&1)} {NTK}")
    for i in range(4): a.e(f"global_load_dwordx2 {vr(vv+2*i,2)}, v{ro+3+(i&2)}, s[10:11] offset:{2048*(i&1)} {NT}")
def front_loads(a):
    cq, tg, t, ro, wo, kr, vv, w = [KV[k] for k in "cq tg t ro wo kr vv w".split()]
    a_ = a
    if FAST: a = Rec()
    a.e(f"v_and_b32 v{cq}, 31, v0"); a.e(f"v_lshrrev_b32 v{tg}, 5, v0")
    a.e("s_and_b32 s34, s2, 7"); a.e("s_lshr_b32 s35, s2, 3")
    a.e("s_lshl_b32 s36, s35, 17"); a.e("s_lshl_b32 s37, s34, 8"); a.e("s_add_u32 s36, s36, s37")
    a.e(f"v_lshlrev_b32 v{t}, 13, v{tg}"); a.e(f"v_lshl_add_u32 v{t}, v{cq}, 3, v{t}"); a.e(f"v_add_u32 v{ro+3}, s36, v{t}")
    a.e(f"v_add_u32 v{ro+5}, 4096, v{ro+3}")
    a = a_
    a.e(f"s_mov_b32 s18, {4*MB}"); a.e("s_mov_b32 s19, 0x20000"); a.e("s_mov_b32 s22, s18"); a.e("s_mov_b32 s23, s19")
    a.e("s_waitcnt lgkmcnt(0)")
    tag, zz = KV["tag"], KV["zz"]
    a.e("s_mov_b32 s86, 256"); a.e("s_mov_b32 s87, 0x20000"); a.e(f"v_mov_b32 v{zz}, 0")
    a.e("s_lshl_b32 s45, s2, 3"); a.e("s_add_u32 s45, s45, s30"); a.e("s_cmp_lg_u32 s45, 4"); a.e("s_cbranch_scc1 KV_t0")
    a.e("s_getreg_b32 s45, hwreg(HW_REG_XCC_ID, 0, 3)"); a.e("s_lshl_b32 s45, s45, 1")
    a.e("s_lshl_b32 s44, s46, 6"); a.e("s_or_b32 s44, s44, s45"); a.e("s_or_b32 s44, s44, 1"); a.e(f"v_mov_b32 v{tag}, s44"); a.e(f"v_mov_b32 v{tag+1}, 0")
    a.e("s_mov_b64 exec, 1"); a.e(f"buffer_store_dwordx2 {vr(tag,2)}, v{zz}, s[84:87], 0 offen {SC}"); a.e("s_mov_b64 exec, -1")
    a.e("KV_t0:")
    a.e("s_mov_b64 s[16:17], s[8:9]"); a.e("s_mov_b64 s[20:21], s[10:11]")
    for i in range(0 if FAST else 4): a.e(f"buffer_load_dwordx2 {vr(kr+2*(i+3),2)}, v{ro+3+(i&2)}, s[16:19], 0 offen offset:{2048*(i&1)} {NTK}")
    for i in range(0 if FAST else 4): a.e(f"buffer_load_dwordx2 {vr(vv+2*i,2)}, v{ro+3+(i&2)}, s[20:23], 0 offen offset:{2048*(i&1)} {NT}")
    for i in range(3): a.e(f"v_subrev_u32 v{ro+i}, {2048*(3-i)}, v{ro+3}")
    a.e("s_lshl_b32 s37, s34, 10"); a.e(f"v_lshlrev_b32 v{wo}, 5, v{cq}"); a.e(f"v_add_u32 v{wo}, s37, v{wo}")
    a.srd(24, 12, 8192)
    XP = os.environ.get("XP", "g")
    if KT:
        a.e(f"v_and_b32 v{t}, 1, v{tg}"); a.e(f"v_lshl_add_u32 v{wo}, v{t}, 4, v{wo}")
        a.e(f"buffer_load_dwordx4 {vr(w,4)}, v{wo}, s[24:27], 0 offen")
    for i in range(0 if "t" in XP or KT else 2): a.e(f"buffer_load_dwordx4 {vr(w+4*i,4)}, v{wo}, s[24:27], 0 offen offset:{16*i}")
    if "g" in XP:
        a.e("s_cmp_lg_u32 s30, 4"); a.e("s_cbranch_scc1 KV_t2")
        a.e(f"buffer_load_dword v{tag}, v{zz}, s[84:87], 0 offen {SC}")
        a.e("KV_t2:")
    if "h" in XP: return
    if HALO:
        a.e("s_cmp_lg_u32 s30, 0"); a.e("s_cbranch_scc1 KV_h0"); a.e("s_bfm_b64 exec, 32, 0")
    if KT: a.e("s_bfm_b64 exec, 32, 0")
    for i in range(3): a.e(f"buffer_load_dwordx2 {vr(kr+2*i,2)}, v{ro+i}, s[16:19], 0 offen {NTK}")
    if KT: a.e("s_mov_b64 exec, -1")
    if HALO: a.e("s_mov_b64 exec, -1"); a.e("KV_h0:")

def probe_base(a):
    assert NVOTE <= 64
    a.e("s_and_b32 s42, s2, 7"); a.e("s_lshl_b32 s42, s42, 10"); a.e("s_lshr_b32 s43, s2, 3"); a.e("s_lshl_b32 s43, s43, 14"); a.e("s_add_u32 s42, s42, s43")
    a.e(f"s_add_u32 s42, s42, {LB0 + oSM + 131072}")
PWA = int(os.environ.get("PWA", "1"))
def front_arrive(a, wait, conv=False):
    D = a.lab("fa"); t = 6
    if PWA:
        if conv:
            a.e("s_mov_b64 exec, 0xf"); a.e("s_waitcnt vmcnt(0)"); a.e(f"buffer_atomic_add v{t+1}, v{t}, s[56:59], s45 offen {SC}"); a.e("s_mov_b64 exec, -1")
        elif wait:
            a.e(f"v_mov_b32 v{t}, 1"); a.e(f"v_mov_b32 v{t+1}, {LW+8}"); a.e("s_mov_b64 exec, 1"); a.e("s_waitcnt vmcnt(0)"); a.e(f"ds_add_u32 v{t+1}, v{t}"); a.e("s_mov_b64 exec, -1")
        return
    a.e("s_and_b32 s36, s2, 7"); a.e("s_lshl_b32 s36, s36, 7"); a.e(f"s_add_u32 s36, s36, {F_FRONT}")
    a.e(f"v_mov_b32 v{t}, 1"); a.e(f"v_mov_b32 v{t+1}, {LW+4}"); a.e(f"v_lshlrev_b32 v{t+3}, 10, v1")
    a.e("s_mov_b64 exec, 1")
    if wait: a.e("s_waitcnt vmcnt(0)")
    a.e("s_waitcnt lgkmcnt(0)")
    a.e(f"ds_add_rtn_u32 v{t+2}, v{t+1}, v{t}")
    a.e("s_waitcnt lgkmcnt(0)")
    a.e(f"v_readfirstlane_b32 s54, v{t+2}")
    a.e("s_cmp_lg_u32 s54, 15"); a.e(f"s_cbranch_scc1 {D}")
    a.e("s_mov_b64 exec, 0xffff")
    a.e(f"buffer_atomic_add v{t}, v{t+3}, s[56:59], s36 offen {SC}")
    a.e(f"{D}:"); a.e("s_mov_b64 exec, -1")
XR = int(os.environ.get("XR", "1"))
def roles(a):
    if XR: a.e("s_bfe_u32 s32, s52, 0x30001"); a.e("s_add_u32 s32, s32, s2"); a.e("s_and_b32 s32, s32, 7")
    else: a.e("s_and_b32 s32, s2, 7")
    a.e("s_lshr_b32 s33, s2, 3")
    a.e("s_and_b32 s28, s32, 2"); a.e("s_lshr_b32 s53, s32, 2"); a.e("s_or_b32 s28, s28, s53")
    a.e("s_lshl_b32 s28, s28, 2"); a.e("s_and_b32 s53, s33, 3"); a.e("s_add_u32 s28, s28, s53")
    a.e("s_and_b32 s31, s32, 1"); a.e("s_lshr_b32 s33, s33, 2")
    a.e("s_lshl_b32 s29, s31, 3"); a.e("s_add_u32 s29, s29, s33")
    a.e(f"s_xor_b32 s99, s29, {os.environ.get('G1X', '1')}")
    r_addr(a)
def front_a(a):
    cq, tg, t, pt, kr, vv, w, d, hoff, tag, zz = [KV[k] for k in "cq tg t pt kr vv w d hoff tag zz".split()]
    v = VA(80)
    a.e("s_and_b32 s41, s30, 3"); chan_setup(a, 41)
    a.e("s_lshr_b32 s36, s39, 1"); a.e("s_lshl_b32 s36, s36, 2"); a.e("s_load_dword s98, s[96:97], s36")
    a.e("s_lshl_b32 s36, s39, 12")
    a.e("s_add_u32 s12, s14, s36"); a.e("s_addc_u32 s13, s15, 0"); a.e("s_mov_b32 s14, 4096"); a.e("s_mov_b32 s15, 0x20000")
    a.e("s_lshr_b32 s45, s30, 2"); a.e("s_lshl_b32 s45, s45, 11")
    for it in range(3):
        if it < 2: a.e(f"s_add_u32 s36, s45, {(1024*it - 64) & 0xffffffff:#x}")
        else: a.e(f"s_mov_b32 s36, {4096 - 64}")
        a.e(f"v_add_u32 v{hoff+2*it}, s36, v2"); a.e(f"v_add_u32 v{hoff+2*it+1}, 16, v{hoff+2*it}")
    a.e("s_and_b32 s34, s2, 7"); a.e("s_lshr_b32 s35, s2, 3")
    z = v(4, 4); la = v(); t2 = v(); hw = v()
    for i in range(4): a.e(f"v_mov_b32 v{z+i}, 0")
    a.e(f"v_add_u32 v{hw}, s40, v2")
    a.e(f"ds_write_b128 v{hw}, {vr(z,4)} offset:{UOFF+64*US}")
    a.e(f"s_bfm_b64 exec, {(15*US - 1024)//16}, 0"); a.e(f"ds_write_b128 v{hw}, {vr(z,4)} offset:{UOFF+64*US+1024}"); a.e("s_mov_b64 exec, -1")
    a.e(f"v_lshlrev_b32 v{t}, 2, v{tg}"); a.e(f"v_sub_u32 v{t}, 60, v{t}")
    a.e(f"v_lshrrev_b32 v{t2}, 3, v{t}"); a.e(f"v_bfe_u32 v{la}, v{cq}, 1, 3"); a.e(f"v_xor_b32 v{t2}, v{t2}, v{la}"); a.e(f"v_lshlrev_b32 v{t2}, 4, v{t2}")
    a.e(f"v_and_b32 v{t}, 7, v{t}"); a.e(f"v_lshl_add_u32 v{t2}, v{t}, 1, v{t2}")
    a.e(f"v_lshl_add_u32 v{la}, v{cq}, 9, v{t2}"); a.e(f"v_add_u32 v{la}, {KVS}, v{la}")
    wf = v(8, 2); kf = v(14, 2); vf = v(8, 2); ks = v(8, 2); pr = v(8, 2); o = v(8, 4); tm = v(4, 1)
    a.e("s_waitcnt vmcnt(0)")
    if HALO:
        for i in range(3): a.e(f"buffer_load_dwordx2 {vr(kr+2*i,2)}, v{KV['ro']+i}, s[16:19], 0 offen {NTK}")
        if HALO == 1: a.e("s_waitcnt vmcnt(0)")
    a.e("s_cmp_lg_u32 s30, 4"); a.e("s_cbranch_scc1 KV_t1")
    if "g" not in os.environ.get("XP", "g"): a.e(f"buffer_load_dword v{tag}, v{zz}, s[84:87], 0 offen {SC}")
    a.e("KV_t1:")
    for it in range(3):
        a.e(f"buffer_load_dwordx4 {vr(d+6*it,4)}, v{hoff+2*it}, s[12:15], 0 offen {NTH}")
        a.e(f"buffer_load_dwordx2 {vr(d+6*it+4,2)}, v{hoff+2*it+1}, s[12:15], 0 offen {NTH}")
    if HALO == 2: a.e("s_waitcnt vmcnt(10)")
    mstamp(a)
    if KT:
        for e in range(4): a.e(f"v_mov_b32 v{w+4+e}, v{w+e}")
        for e in range(6): a.e(f"v_mov_b32 v{pr+e}, v{kr+8+e}")
        for e in range(4): a.e(f"v_permlane32_swap_b32 v{w+e}, v{w+4+e}")
        for e in range(6): a.e(f"v_permlane32_swap_b32 v{kr+e}, v{pr+e}")
    for dd in range(2):
        for c in range(2):
            unpack(a, wf + 0 + c, wf + 2 + c, w + 2 * (2 * dd + c)); unpack(a, wf + 4 + c, wf + 6 + c, w + 2 * (2 * dd + c) + 1)
        for i in range(7): unpack(a, kf + 2 * i, kf + 2 * i + 1, kr + 2 * i + dd)
        for i in range(4): unpack(a, vf + 2 * i, vf + 2 * i + 1, vv + 2 * i + dd)
        def rnd(base):
            for i in range(4): a.e(f"v_cvt_pk_bf16_f32 v{tm+i}, v{base+2*i}, v{base+2*i+1}")
            for i in range(4): unpack(a, base + 2 * i, base + 2 * i + 1, tm + i)
        for i in range(4): a.e(f"v_pk_mul_f32 {vr(ks+2*i,2)}, {vr(kf+2*i,2)}, {vr(wf+6,2)}")
        if RND: rnd(ks)
        for j in range(1, 4):
            if not RND:
                for i in range(4): a.e(f"v_pk_fma_f32 {vr(ks+2*i,2)}, {vr(kf+2*(i+j),2)}, {vr(wf+6-2*j,2)}, {vr(ks+2*i,2)}")
                continue
            for i in range(4): a.e(f"v_pk_mul_f32 {vr(pr+2*i,2)}, {vr(kf+2*(i+j),2)}, {vr(wf+6-2*j,2)}")
            rnd(pr)
            for i in range(4): a.e(f"v_pk_add_f32 {vr(ks+2*i,2)}, {vr(ks+2*i,2)}, {vr(pr+2*i,2)}")
            rnd(ks)
        for i in range(4): a.e(f"v_pk_mul_f32 {vr(ks+2*i,2)}, {vr(ks+2*i,2)}, {vr(vf+2*i,2)}")
        for c in range(2):
            e = 2 * dd + c
            a.e(f"v_cvt_pk_bf16_f32 v{o+2*e}, v{ks+6+c}, v{ks+4+c}"); a.e(f"v_cvt_pk_bf16_f32 v{o+2*e+1}, v{ks+2+c}, v{ks+c}")
            a.e(f"ds_write_b64 v{la}, {vr(o+2*e,2)} offset:{e*128}")
    a.e("s_cmp_lg_u32 s30, 4"); a.e("s_cbranch_scc1 HB_2")
    a.e(f"v_add_u32 v{pt}, {LW}, v3"); a.e(f"ds_write_b32 v{pt}, v{zz}")
    a.e("s_mov_b32 s53, 0")
    a.e("s_waitcnt vmcnt(6)")
    a.e("HB_p:")
    a.e(f"v_readfirstlane_b32 s52, v{tag}"); a.e("s_cmp_eq_u32 s52, 0"); a.e("s_cbranch_scc1 HB_r")
    a.e("s_cmp_ge_u32 s53, 60"); a.e("s_cbranch_scc1 HB_q")
    a.e("s_add_u32 s54, s46, 8192"); a.e("s_lshl_b32 s54, s54, 6"); a.e("s_sub_u32 s54, s54, s52"); a.e(f"s_cmp_lt_u32 s54, {12288*64}"); a.e("s_cbranch_scc1 HB_q")
    a.e("HB_r:")
    a.e(f"buffer_load_dword v{tag}, v{zz}, s[84:87], 0 offen {SC}"); a.e("s_waitcnt vmcnt(0)")
    a.e("s_add_u32 s53, s53, 1"); a.e("s_cmp_lt_u32 s53, s61"); a.e("s_cbranch_scc1 HB_p")
    a.e("s_mov_b32 s52, 1"); a.e("s_mov_b32 s61, 0")
    a.e("HB_q:")
    lds_set(a, LW + 12, "s52", pt)
    a.e("HB_2:")
    a.srd(16, 4, 8 * GSTR, off=LB0 + oX3)
    ra = v(); go = v(); ob = v(8, 4)
    a.e(f"v_lshrrev_b32 v{t}, 3, v0"); a.e(f"v_and_b32 v{t2}, 7, v0")
    a.e(f"v_lshlrev_b32 v{go}, 12, v{t}"); a.e(f"v_lshl_add_u32 v{go}, v{t2}, 4, v{go}")
    a.e("s_lshl_b32 s36, s34, 24"); a.e("s_sub_u32 s37, 31, s35"); a.e("s_lshl_b32 s37, s37, 7"); a.e("s_add_u32 s36, s36, s37")
    a.e(f"s_add_u32 s37, s36, {64*4096}")
    a.e(f"v_lshrrev_b32 v{ra}, 3, v{t}"); a.e(f"v_xor_b32 v{ra}, v{ra}, v{t2}"); a.e(f"v_lshlrev_b32 v{ra}, 4, v{ra}"); a.e(f"v_lshl_add_u32 v{ra}, v{t}, 7, v{ra}")
    a.e(f"v_add_u32 v{ra}, {KVS}, v{ra}"); a.e(f"v_mov_b32 v{pt}, {LW+12}")
    a.e("s_waitcnt lgkmcnt(0)"); a.e("s_barrier")
    for i in range(2): a.e(f"ds_read_b128 {vr(ob+4*i,4)}, v{ra} offset:{i*8192}")
    a.e(f"ds_read_b32 v{pt+1}, v{pt}")
    for i in range(2):
        a.e(f"s_waitcnt lgkmcnt({2-i})")
        if "1" in DP: mark(a, ob + 4 * i, 1)
        a.e(f"buffer_store_dwordx4 {vr(ob+4*i,4)}, v{go}, s[16:19], s{36+i} offen {SC}")
    a.e("s_waitcnt lgkmcnt(0)"); a.e(f"v_readfirstlane_b32 s52, v{pt+1}")
    a.e("s_cmp_lg_u32 s30, 0"); a.e("s_cbranch_scc1 KV_ni"); a.e("s_cmp_ge_u32 s35, 16"); a.e("s_cbranch_scc1 KV_ni")
    a.e(f"v_mov_b32 v{t}, s52")
    a.e("s_lshl_b32 s37, s34, 7"); a.e("s_lshl_b32 s53, s35, 10"); a.e("s_add_u32 s37, s37, s53"); a.e(f"s_add_u32 s37, s37, {F_FRONT}")
    a.e("s_mov_b64 exec, 1"); a.e(f"buffer_store_dword v{t}, v{zz}, s[56:59], s37 offen {SC}"); a.e("s_mov_b64 exec, -1")
    a.e("KV_ni:")
    a.e(f"s_cmp_ge_u32 s2, {NVOTE}"); a.e("s_cbranch_scc1 KV_n3"); a.e("s_cmp_lg_u32 s30, 5"); a.e("s_cbranch_scc1 KV_n3")
    probe_base(a)
    a.e(f"v_lshrrev_b32 v{t}, 5, v1"); a.e(f"v_mul_u32_u24 v{t}, {8192 - 512}, v{t}"); a.e(f"v_add_u32 v{t}, v{t}, v2")
    a.e(f"buffer_store_dwordx4 {vr(z,4)}, v{t}, s[56:59], s42 offen {SC}")
    a.e("KV_n3:")
    roles(a)
    def pubk():
        a.e("s_lshl_b32 s36, s34, 5"); a.e("s_add_u32 s36, s36, s35"); a.e("s_lshl_b32 s36, s36, 7"); a.e(f"s_add_u32 s36, s36, {F_KVT}")
        mstamp(a)
        QL = int(os.environ.get("QL", "3"))
        if QL == 2: load_q(a)
        publish(a, 0, 8, pt, off=36, flag=True, wait=4 if QL == 2 else 0)
        if QL == 3: load_q(a)
        mstamp(a)
    HF = int(os.environ.get("HF", "0"))
    if not HF: pubk()
    else: a.e("s_waitcnt vmcnt(2)")
    cc = wf; hw2 = v()
    a.e(f"v_add_u32 v{hw2}, s45, v{hw}")
    for it in range(3):
        D = d + 6 * it; c0 = cc + 12 * it; c1 = c0 + 4; c2 = c0 + 8
        for k in range(4):
            a.e(f"v_alignbit_b32 v{c0+k}, v{D+k+1}, v{D+k}, 16")
            a.e(f"v_mov_b32 v{c1+k}, v{D+k+1}")
            a.e(f"v_alignbit_b32 v{c2+k}, v{D+k+2}, v{D+k+1}, 16")
        if it == 2: a.e("s_mov_b64 exec, 0xf")
        ad, o0 = (hw2, 1024 * it) if it < 2 else (hw, 4096)
        a.e(f"ds_write_b128 v{ad}, {vr(c0,4)} offset:{o0}")
        a.e(f"ds_write_b128 v{ad}, {vr(c1,4)} offset:{HSTR+o0}")
        a.e(f"ds_write_b128 v{ad}, {vr(c2,4)} offset:{2*HSTR+o0}")
        a.e(f"ds_write_b128 v{ad}, {vr(D+2,4)} offset:{3*HSTR+o0}")
        if it == 2: a.e("s_mov_b64 exec, -1")
    if HF: pubk()
    assert v.hi <= 176
    a.e("s_waitcnt lgkmcnt(0)"); a.e("s_barrier")
def load_q(a):
    a.srd(8, 6, 4 * MB)
    for j in range(4): a.e(f"buffer_load_dwordx2 {vr(RXA+2*j,2)}, v{RRO}, s[8:11], 0 offen offset:{128*(j>>1) + 32*(j&1)} {os.environ.get('NTQ', NTH)}")
def chan_setup(a, wsg):
    a.e("s_and_b32 s38, s2, 7"); a.e("s_lshl_b32 s38, s38, 5"); a.e("s_lshr_b32 s39, s2, 3"); a.e("s_add_u32 s38, s38, s39")
    a.e("s_lshl_b32 s39, s38, 2"); a.e(f"s_add_u32 s39, s39, s{wsg}")
    a.e(f"s_mul_i32 s40, s{wsg}, {CHB}")

def touch(a, ka, nbytes, r):
    n = nbytes // 1024 // 512
    a.e(f"s_load_dwordx2 s[48:49], s[0:1], {ka}")
    a.e("s_lshl_b32 s45, s2, 1"); a.e("s_and_b32 s50, s30, 1"); a.e("s_add_u32 s45, s45, s50"); a.e(f"s_mul_i32 s45, s45, {n*1024}")
    a.e(f"s_mov_b32 s50, {nbytes}"); a.e("s_mov_b32 s51, 0x20000")
    a.e("s_waitcnt lgkmcnt(0)")
    for i in range(n):
        if i and i % 4 == 0: a.e("s_add_u32 s45, s45, 4096")
        a.e(f"buffer_load_dwordx4 {vr(r,4)}, v2, s[48:51], s45 offen offset:{(i&3)*1024}")
    return n

def w2_warm(a):
    a.e("s_mov_b64 s[48:49], s[70:71]"); a.e(f"s_mov_b32 s50, {2*MB}"); a.e("s_mov_b32 s51, 0x20000")
    a.e("s_and_b32 s45, s28, 3"); a.e("s_lshl_b32 s45, s45, 1"); a.e("s_and_b32 s46, s30, 1"); a.e("s_add_u32 s45, s45, s46"); a.e("s_lshl_b32 s45, s45, 18")
    a.e("s_lshl_b32 s46, s29, 7"); a.e("s_add_u32 s45, s45, s46"); a.e("v_lshlrev_b32 v245, 11, v1")
    a.e("buffer_load_dword v244, v245, s[48:51], s45 offen"); a.e(f"s_add_u32 s45, s45, {64*2048}"); a.e("buffer_load_dword v246, v245, s[48:51], s45 offen")
def cs_load(a, which, slot):
    w_setup(a, which, pre=False)
    a.e(f"s_mov_b32 s42, {slot}"); a.e("s_mov_b32 s44, s28")
    w_issue(a, which, direct=True)
CSEL, CFR, CAD, CACC, CSO_ = 16, 72, 144, 156, 164
def cs_prep(a, S1, S3):
    a.e(f"v_and_b32 v{CSO_}, 15, v1"); a.e(f"v_mov_b32 v{CSO_+1}, 0x3f803f80")
    for T in range(14):
        a.e(f"v_cmp_eq_u32 vcc, {T}, v{CSO_}")
        for e in range(4): a.e(f"v_cndmask_b32 v{CSEL+4*T+e}, 0, v{CSO_+1}, vcc")
    pos = {}
    for which, slot, r0, halves in ((1, S1, CAD, 1), (3, S3, CAD + 4, 2)):
        c = CFG[which]
        for hf in range(halves):
            a.e(f"s_mov_b32 s35, {hf}")
            nr, pos[which] = w_bases(a, which, r0 + 2 * hf, 35, c["TN16"] // halves, WV + 8, WV + 9)
            a.e("s_and_b32 s35, s30, 1"); a.e(f"s_mul_i32 s35, s35, {32*c['RB']}"); a.e(f"s_add_u32 s35, s35, {slot}")
            for i in range(nr): a.e(f"v_add_u32 v{r0+2*hf+i}, s35, v{r0+2*hf+i}")
    for i in range(8): a.e(f"v_mov_b32 v{CACC+i}, 0")
    a.e(f"v_lshrrev_b32 v{CSO_+2}, 4, v1"); a.e(f"v_lshlrev_b32 v{CSO_+2}, 4, v{CSO_+2}"); a.e(f"v_lshl_add_u32 v{CSO_+2}, v{CSO_}, 6, v{CSO_+2}")
    a.e(f"v_mov_b32 v{CSO_+1}, 0x7f000000")
    for k, n in ((3, 4), (4, 14)):
        a.e(f"v_cmp_gt_u32 vcc, {n}, v{CSO_}"); a.e(f"v_cndmask_b32 v{CSO_+k}, v{CSO_+1}, v{CSO_+2}, vcc")
    return pos
def cs_sum(a, which, pos):
    c = CFG[which]; ntl = c["TN16"]; N = c["LDW"] // 2
    F = CFR + (0 if which == 3 else 56); A = CACC + (0 if which == 3 else 4)
    for T in range(ntl):
        hf, nt = (T // 7, T % 7) if which == 3 else (0, T)
        for h in range(2):
            r, imm = pos[which](nt, 0, h)
            a.e(f"ds_read_b64_tr_b16 {vr(F+4*T+2*h,2)}, v{(CAD + 4 if which == 3 else CAD) + 2*hf + r} offset:{imm}")
    a.srd(20, 4, 32 * N * 4, off=CSP[which])
    a.e("s_lshl_b32 s35, s28, 1"); a.e("s_and_b32 s36, s30, 1"); a.e("s_add_u32 s35, s35, s36"); a.e(f"s_mul_i32 s35, s35, {N*4}")
    a.e(f"s_mul_i32 s36, s29, {ntl*64}"); a.e("s_add_u32 s35, s35, s36")
    a.e("s_waitcnt lgkmcnt(0)")
    if CSPRIO == 2: a.e("s_setprio 1")
    for T in range(ntl): a.e(f"v_mfma_f32_16x16x32_bf16 {vr(A,4)}, {vr(F+4*T,4)}, {vr(CSEL+4*T,4)}, {vr(A,4)}")
    if CSPRIO == 2: a.e("s_setprio 0")
    a.e(f"buffer_store_dwordx4 {vr(A,4)}, v{CSO_ + (4 if which == 3 else 3)}, s[20:23], s35 offen {SC}")

NOCS3 = int(os.environ.get("NOCS3", "0")); STO = os.environ.get("STOUCH", "")
def stouch(a, which, gran, nw):
    X = a.lab("st"); L = a.lab("sl"); n = 28672 // nw
    a.e("s_cmp_lg_u32 s60, 0"); a.e(f"s_cbranch_scc1 {X}")
    a.e(f"s_mul_i32 s36, s2, 28672"); a.e(f"s_and_b32 s37, s30, {nw-1}"); a.e(f"s_mul_i32 s37, s37, {n}"); a.e("s_add_u32 s36, s36, s37")
    a.e(f"s_add_u32 s34, s{66+2*which}, s36"); a.e(f"s_addc_u32 s35, s{67+2*which}, 0"); a.e("s_mov_b32 s36, 0")
    a.e(f"{L}:")
    for i in range(14): a.e(f"s_load_dword s37, s[34:35], {i*gran}")
    a.e(f"s_add_u32 s34, s34, {14*gran}"); a.e("s_addc_u32 s35, s35, 0"); a.e("s_add_u32 s36, s36, 1"); a.e(f"s_cmp_lt_u32 s36, {n // (14*gran)}"); a.e(f"s_cbranch_scc1 {L}")
    a.e("s_waitcnt lgkmcnt(0)")
    a.e(f"{X}:")
SB = eval(os.environ.get("SB", "(0,0,0)"))
SG = eval(os.environ.get("SG", "(0,0,0,0)"))
def sg(a, n):
    if not n: return
    X = a.lab("st"); L = a.lab("sl")
    a.e("s_cmp_lg_u32 s60, 0"); a.e(f"s_cbranch_scc1 {X}"); a.e("s_mov_b32 s36, 0"); a.e(f"{L}:"); sb(a, 14)
    a.e("s_add_u32 s36, s36, 1"); a.e(f"s_cmp_lt_u32 s36, {n}"); a.e(f"s_cbranch_scc1 {L}"); a.e("s_waitcnt lgkmcnt(0)"); a.e(f"{X}:"); mstamp(a)
def sb_init(a):
    nw = 2 if sum(SG) else 4
    a.e(f"s_mul_i32 s36, s2, 28672"); a.e(f"s_and_b32 s37, s30, {nw-1}"); a.e(f"s_mul_i32 s37, s37, {28672//nw}"); a.e("s_add_u32 s36, s36, s37")
    SW = 66 + 2 * int(os.environ.get("SGW", "3"))
    a.e(f"s_add_u32 s90, s{SW}, s36"); a.e(f"s_addc_u32 s91, s{SW+1}, 0")
def sb(a, n):
    for i in range(n): a.e(f"s_load_dword s101, s[90:91], {i*64}")
    if n: a.e(f"s_add_u32 s90, s90, {n*64}"); a.e("s_addc_u32 s91, s91, 0")
PUTE = int(os.environ.get("PUTE", "1"))
def front_b(a):
    pt, dm = 6, 20
    vd = 12; VG = int(os.environ.get("VG", "0")); VE = int(os.environ.get("VE", "1"))
    def vote():
        a.e(f"s_cmp_ge_u32 s2, {NVOTE}"); a.e("s_cbranch_scc1 FB_np"); a.e("s_cmp_lg_u32 s30, 5"); a.e("s_cbranch_scc1 FB_np")
        probe_base(a); a.e(f"v_mov_b32 v{vd+2}, 0")
        if os.environ.get("SPR", "1") == "1":
            a.e("s_mov_b64 exec, 1"); a.e("s_mov_b32 s46, -1"); a.e("s_mov_b32 s47, -1")
            a.e("s_add_u32 s48, s4, s42"); a.e("s_addc_u32 s49, s5, 0")
            a.e("s_load_dword s101, s[48:49], 384"); a.e("s_waitcnt lgkmcnt(0)"); a.e("s_memtime s[34:35]"); a.e("s_waitcnt lgkmcnt(0)")
            for k in range(2 * NSAMP):
                p_, q_ = (34, 36) if k % 2 == 0 else (36, 34)
                a.e(f"s_load_dword s101, s[48:49], {(k & 1) * 8192 + (k >> 1) * 128}"); a.e("s_waitcnt lgkmcnt(0)"); a.e(f"s_memtime s[{q_}:{q_+1}]"); a.e("s_waitcnt lgkmcnt(0)")
                a.e(f"s_sub_u32 s43, s{q_}, s{p_}"); a.e(f"s_min_u32 s{46+(k&1)}, s{46+(k&1)}, s43")
        else:
            a.e("s_mov_b64 exec, 1"); a.e("s_mov_b32 s46, -1"); a.e("s_mov_b32 s47, -1"); a.e("s_mov_b32 s43, 0")
            a.e("FB_ml:")
            for i in range(2):
                a.e(f"s_add_u32 s45, s42, {i * 8192}")
                a.e("s_memtime s[34:35]"); a.e("s_waitcnt lgkmcnt(0)")
                a.e(f"buffer_load_dword v{vd+1}, v{vd+2}, s[56:59], s45 offen {SC}"); a.e("s_waitcnt vmcnt(0)")
                a.e("s_memtime s[36:37]"); a.e("s_waitcnt lgkmcnt(0)")
                a.e("s_sub_u32 s36, s36, s34"); a.e(f"s_min_u32 s{46+i}, s{46+i}, s36")
            a.e("s_add_u32 s42, s42, 128"); a.e("s_add_u32 s43, s43, 1"); a.e(f"s_cmp_lt_u32 s43, {NSAMP}"); a.e("s_cbranch_scc1 FB_ml")
        a.e("s_cmp_lt_u32 s47, s46"); a.e("s_cselect_b32 s45, 1, 0")
        a.e("s_lshr_b32 s46, s28, 2"); a.e("s_xor_b32 s45, s45, s46"); a.e("s_and_b32 s45, s45, 1"); a.e("s_lshl_b32 s45, s45, 8")
        a.e("s_or_b32 s43, s45, 1"); a.e(f"v_mov_b32 v{vd}, s43")
        a.e(f"buffer_atomic_add v{vd}, v{vd+2}, s[84:87], 0 offen offset:4 sc0 {SC}"); a.e("s_waitcnt vmcnt(0)")
        a.e(f"v_readfirstlane_b32 s36, v{vd}"); a.e("s_add_u32 s36, s36, s43"); a.e("s_and_b32 s37, s36, 255"); a.e(f"s_cmp_lg_u32 s37, {QUO}"); a.e("s_cbranch_scc1 FB_np")
        a.e("s_lshr_b32 s36, s36, 8"); a.e("s_lshl_b32 s36, s36, 1"); a.e("s_add_u32 s36, s36, s52"); a.e("s_bfm_b64 exec, 32, 0")
        a.e(f"v_mov_b32 v{vd}, s36"); a.e(f"v_lshlrev_b32 v{vd+1}, 7, v1"); a.e(f"s_mov_b32 s36, {F_RES}"); a.e(f"buffer_store_dword v{vd}, v{vd+1}, s[56:59], s36 offen {SC}")
        a.e("FB_np:")
        a.e("s_mov_b64 exec, -1")
        if VG:
            a.e("s_cmp_lg_u32 s30, 5"); a.e("s_cbranch_scc1 FB_ng")
            a.e(f"v_mov_b32 v{pt}, {LW+20}"); a.e(f"v_mov_b32 v{pt+1}, 1"); a.e("s_mov_b64 exec, 1"); a.e(f"ds_add_u32 v{pt}, v{pt+1}"); a.e("s_mov_b64 exec, -1")
            a.e("FB_ng:")
    if VE: vote()
    PZE = int(os.environ.get("PZE", "0"))
    if PZE:
        a.srd(20, 4, 32 * MB, off=216 * MB)
        for i in range(4): a.e(f"v_mov_b32 v{216+i}, -1")
        a.e("s_lshl_b32 s45, s2, 2"); a.e("s_and_b32 s50, s30, 3"); a.e("s_add_u32 s45, s45, s50"); a.e(f"s_mul_i32 s45, s45, {PZE*1024}")
        for i in range(PZE):
            a.e(f"buffer_store_dwordx4 v[216:219], v2, s[20:23], s45 offen {SC}"); a.e("s_add_u32 s45, s45, 1024")
    if TAB: tab_load(a)
    TE = int(os.environ.get("TE", "0"))
    if TE:
        a.e("s_cmp_ge_u32 s30, 6"); a.e("s_cbranch_scc1 FB_t1"); touch(a, B_W2, 2 * MB, dm); a.e("s_branch FB_t2"); a.e("FB_t1:"); touch(a, B_W1, 2 * MB, 200); a.e("FB_t2:")
    w_lanes(a)
    a.e("s_cmp_ge_u32 s30, 6"); a.e("s_cbranch_scc1 FB_cs")
    if not VE: vote()
    mstamp(a)
    a.e("s_cmp_lg_u32 s30, 4"); a.e("s_cbranch_scc1 FB_ni")
    a.e(f"v_mov_b32 v{vd}, s52")
    group_off(a, 37, 28); a.e("s_andn2_b32 s37, s37, 0x2000"); a.e("s_lshl_b32 s53, s29, 7"); a.e("s_add_u32 s37, s37, s53"); a.e(f"s_add_u32 s37, s37, {oSM}")
    a.e(f"v_and_b32 v{vd+1}, 1, v1"); a.e(f"v_lshlrev_b32 v{vd+1}, 13, v{vd+1}"); a.e(f"v_lshrrev_b32 v{vd+2}, 1, v1"); a.e(f"v_lshl_add_u32 v{vd+1}, v{vd+2}, 22, v{vd+1}")
    a.e("s_mov_b64 exec, 0xf"); a.e(f"buffer_store_dword v{vd}, v{vd+1}, s[56:59], s37 offen {SC}")
    a.e("s_cmp_lg_u32 s28, 0"); a.e("s_cbranch_scc1 FB_n2")
    a.e(f"s_add_u32 s37, s53, {F_CS}"); a.e("s_mov_b64 exec, 1"); a.e(f"buffer_store_dword v{vd}, v{vd+1}, s[56:59], s37 offen {SC}")
    a.e("FB_n2:")
    a.e("s_mov_b64 exec, -1")
    a.e("FB_ni:")
    TME = int(os.environ.get("TME", "1"))
    if TME: a.e("s_waitcnt vmcnt(0)"); tab_make(a, 0)
    UG = (LW + 20, 4 + VG) if os.environ.get("UG", "1") == "1" else (LW + 16, 1)
    lds_spin(a, *UG, pt, nap=2)
    mstamp(a)
    if TLBW:
        a.e("s_cmp_lg_u32 s30, 5"); a.e("s_cbranch_scc1 FB_nt")
        a.e(f"v_and_b32 v{vd}, 7, v1"); a.e(f"v_lshlrev_b32 v{vd}, 24, v{vd}"); a.e(f"v_lshrrev_b32 v{vd+1}, 3, v1"); a.e(f"v_lshl_add_u32 v{vd}, v{vd+1}, 22, v{vd}")
        a.e("s_lshl_b32 s36, s2, 7"); a.e(f"s_add_u32 s36, s36, {LB0 + 2 * MB - 65536}")
        a.e(f"s_bfm_b64 exec, {8 * TLBW}, 0"); a.e(f"buffer_load_dword v{dm+4}, v{vd}, s[56:59], s36 offen {SC}"); a.e("s_mov_b64 exec, -1")
        a.e("FB_nt:")
    if os.environ.get("W2T", "1") == "2": lds_spin(a, LW + 24, 2, pt, nap=4)
    if os.environ.get("W2T", "1") == "3":
        w_srd(a, 2); a.e("s_lshl_b32 s39, s28, 1"); a.e("s_and_b32 s36, s30, 1"); a.e("s_add_u32 s39, s39, s36"); a.e("s_lshl_b32 s39, s39, 16"); a.e("s_lshl_b32 s36, s29, 7"); a.e("s_add_u32 s39, s39, s36")
        for i in range(4): a.e(f"buffer_load_dwordx4 {vr(dm,4)}, v{WVB[2]}, s[12:15], s39 offen"); a.e("s_add_u32 s39, s39, 16384")
    elif os.environ.get("W2T", "1") != "0" and not TE: touch(a, B_W2, 2 * MB, dm)
    QL = int(os.environ.get("QL", "3"))
    if not QL: load_q(a)
    if W4POS == "F": lds_spin(a, LW + 24, 2, pt, nap=4); a.e("s_waitcnt vmcnt(0)")
    if W4POS in ("F", "F0"): touch(a, B_W4, 7 * MB, dm)
    PZF = int(os.environ.get("PZF", "0"))
    if PZF:
        a.srd(20, 4, 32 * MB, off=216 * MB)
        for i in range(4): a.e(f"v_mov_b32 v{216+i}, -1")
        a.e("s_lshl_b32 s45, s2, 1"); a.e("s_and_b32 s50, s30, 1"); a.e("s_add_u32 s45, s45, s50"); a.e(f"s_mul_i32 s45, s45, {PZF*1024}")
        for i in range(PZF):
            a.e(f"buffer_store_dwordx4 v[216:219], v2, s[20:23], s45 offen {SC}"); a.e("s_add_u32 s45, s45, 1024")
            if os.environ.get("PZP"): a.e(f"s_waitcnt vmcnt({os.environ['PZP']})")
    front_arrive(a, True)
    if not TME: tab_make(a, 0)
    PKW = int(os.environ.get("PKW", "2")); PKP = int(os.environ.get("PKP", "8"))
    W1P = int(os.environ.get("W1P", "8")); FO = os.environ.get("FO", "1pd"); FO2 = os.environ.get("FO2", "1pd")
    R1 = [176, 188, 192] + [200 + 4 * i for i in range(7)] + [16 + 4 * i for i in range(8)]
    def w1_regs(a):
        w_srd(a, 1)
        a.e("s_and_b32 s35, s30, 3"); a.e(f"s_mul_i32 s35, s35, {18*16384}"); a.e("s_lshl_b32 s39, s99, 7"); a.e("s_add_u32 s39, s39, s35")
        for q in range(18):
            a.e(f"buffer_load_dwordx4 {vr(R1[q],4)}, v{WVB[1]}, s[12:15], s39 offen"); a.e("s_add_u32 s39, s39, 16384")
            if q % 4 == 3: sb(a, SB[1])
            if PKP and q % 4 == 3: a.e(f"s_waitcnt vmcnt({PKP})")
        if QL == 1: load_q(a)
    def w1_put(a):
        a.e("s_and_b32 s35, s30, 3"); a.e(f"s_mul_i32 s35, s35, {18*1024}"); a.e("v_add_u32 v8, s35, v2")
        if PUTE: lds_spin(a, LW + 20, 8 + VG, pt, nap=2)
        else: lds_spin(a, LW + 4, 16, pt, nap=2)
        PV0 = int(os.environ.get("PV0", "1")); assert not PV0 or (FO[0] == "1" and FO2[0] == "1" and "p" in FO and "p" in FO2)
        a.e(f"s_waitcnt vmcnt({32 - PD if PV0 else 0})")
        for q in range(18): a.e(f"ds_write_b128 v8, {vr(R1[q],4)} offset:{CFG[1]['WB'] + 1024*q}")
        a.e("s_waitcnt lgkmcnt(0)")
    def w1_dma(a, js):
        lds_spin(a, LW + 24, 4, pt, nap=3)
        w_setup(a, 1, pre=False)
        for j in js: w1_slots(a, (j,), pace=W1P); ypause(a)
    DS_ = int(os.environ.get("DSPL", "12"))
    if PKW: lds_spin(a, LW + 24, PKW, pt, nap=4)
    for i_, ch in enumerate(FO):
        if ch == "d": w1_dma(a, range(9, DS_))
        else: call(a, {"1": w1_regs, "p": park}[ch])
    park_rest(a, False)
    mstamp(a)
    call(a, w1_put)
    a.e("s_branch FR_end")
    a.e("FB_cs:")
    S1, S3 = KVS - CFG[1]["WB"], KVS + 8192 - CFG[3]["WB"]
    pos = cs_prep(a, S1, S3)
    if TME: a.e("s_waitcnt vmcnt(0)"); tab_make(a, 1)
    lds_spin(a, *UG, pt, nap=2)
    mstamp(a)
    if not QL: load_q(a)
    cs_load(a, 1, S1)
    if not NOCS3: cs_load(a, 3, S3)
    a.e(f"s_waitcnt vmcnt({0 if NOCS3 else 14})")
    if CSPRIO == 1: a.e(f"s_setprio {CSPRIO}")
    cs_sum(a, 1, pos)
    a.e("s_waitcnt vmcnt(1)")
    a.e(f"v_mov_b32 v{pt}, {LW+24}"); a.e(f"v_mov_b32 v{pt+1}, 1")
    a.e("s_mov_b64 exec, 1"); a.e(f"ds_add_u32 v{pt}, v{pt+1}"); a.e("s_mov_b64 exec, -1")
    mstamp(a)
    if not NOCS3: cs_sum(a, 3, pos)
    front_arrive(a, False)
    if not TME: tab_make(a, 1)
    a.e(f"v_mov_b32 v{pt}, {LW+24}"); a.e(f"v_mov_b32 v{pt+1}, 1")
    a.e("s_mov_b64 exec, 1"); a.e(f"ds_add_u32 v{pt}, v{pt+1}"); a.e("s_mov_b64 exec, -1")
    mstamp(a)
    a.e("s_setprio 0")
    assert CFG[1]["WB"] + 9 * 8192 == KVS
    for ch in FO2:
        if ch == "d": w1_dma(a, range(DS_, 16))
        else: call(a, {"1": w1_regs, "p": park}[ch])
    park_rest(a, False)
    mstamp(a)
    call(a, w1_put)

PG = int(os.environ.get("PG", "0"))
def front_conv(a):
    v = VA(6); lane = 1; l16 = 2
    t = v(); pt = v(4, 2)
    chan_setup(a, 30)
    a.e("s_and_b32 s36, s39, 127"); a.e("s_lshl_b32 s36, s36, 12"); a.e("s_lshr_b32 s37, s39, 7"); a.e("s_lshl_b32 s37, s37, 24")
    a.e("s_add_u32 s36, s36, s37"); a.e(f"s_add_u32 s36, s36, {LB0 + oX3}")
    a.e("s_add_u32 s16, s4, s36"); a.e("s_addc_u32 s17, s5, 0"); a.e("s_mov_b32 s18, 4096"); a.e("s_mov_b32 s19, 0x20000")
    uw = v(); u = v(16, 4)
    a.e(f"v_lshrrev_b32 v{t}, 2, v{lane}"); a.e(f"v_mul_u32_u24 v{uw}, {US}, v{t}"); a.e(f"v_and_b32 v{t}, 3, v{lane}")
    a.e(f"v_lshl_add_u32 v{uw}, v{t}, 4, v{uw}"); a.e(f"v_add_u32 v{uw}, s40, v{uw}")
    aa = v(); ba = v(); ua = v(); J = v(); G = v()
    a.e(f"v_and_b32 v{J}, 15, v{lane}"); a.e(f"v_lshrrev_b32 v{G}, 4, v{lane}")
    a.e(f"v_and_b32 v{t}, 3, v{J}"); a.e(f"v_mul_u32_u24 v{aa}, {HSTR}, v{t}")
    a.e(f"v_lshl_add_u32 v{aa}, v{G}, 4, v{aa}"); a.e(f"v_lshrrev_b32 v{t}, 2, v{J}"); a.e(f"v_lshl_add_u32 v{aa}, v{t}, 3, v{aa}")
    a.e(f"v_add_u32 v{aa}, s40, v{aa}")
    a.e(f"v_sub_u32 v{t}, 15, v{J}"); a.e(f"v_mul_u32_u24 v{ua}, {US}, v{t}"); a.e(f"v_add_u32 v{ua}, s40, v{ua}")
    a.e(f"v_lshl_add_u32 v{ba}, v{G}, 4, v{ua}")
    acc = v(32, 4)
    fa = v(64, 4); fb = v(32, 4)
    def rdA(p, o):
        return [f"ds_read_b64 {vr(fa+32*p+8*s_+4*mt+2*h,2)}, v{aa} offset:{64*(o+16*s_) + 32*mt + 8*h}" for s_ in range(4) for mt in range(2) for h in range(2)]
    def rdB(p, o):
        return [f"ds_read_b128 {vr(fb+16*p+4*k,4)}, v{ba} offset:{UOFF + (48 - 16*k + o)*US}" for k in range(4)]
    for x in rdA(0, 0): a.e(x)
    dm_ = fb + 16; Dv = pt + 2
    a.e("s_bitcmp1_b32 s39, 0"); a.e("s_cselect_b32 s36, 0, 16"); a.e("s_lshl_b32 s41, s98, s36"); a.e("s_and_b32 s41, s41, 0xffff0000"); a.e("s_lshr_b32 s36, s41, 16")
    a.e(f"v_lshl_add_u32 v{t}, v{G}, 3, v{J}"); a.e(f"v_sub_u32 v{t}, 31, v{t}")
    a.e(f"v_mov_b32 v{Dv}, s36"); a.e(f"v_mov_b32 v{Dv+1}, s41"); a.e(f"v_and_b32 v{pt}, 1, v{t}"); a.e(f"v_cmp_eq_u32 vcc, 1, v{pt}")
    a.e(f"v_cndmask_b32 v{Dv}, v{Dv}, v{Dv+1}, vcc"); a.e(f"v_ashrrev_i32 v{t}, 1, v{t}")
    for mt in range(2):
        for d_ in range(4): a.e(f"v_cmp_eq_u32 vcc, {8*mt+d_}, v{t}"); a.e(f"v_cndmask_b32 v{dm_+4*mt+d_}, 0, v{Dv}, vcc")
    a.srd(12, 4, 8 * GSTR - oHS, off=LB0 + oHS)
    ta = v(); go = v()
    a.e(f"v_bfe_u32 v{t}, v{lane}, 2, 2"); a.e(f"v_mul_u32_u24 v{ta}, {CHB+64}, v{t}")
    a.e(f"v_mul_u32_u24 v{t}, 72, v{G}"); a.e(f"v_add_u32 v{ta}, v{ta}, v{t}")
    a.e(f"v_and_b32 v{t}, 3, v{lane}"); a.e(f"v_lshl_add_u32 v{ta}, v{t}, 3, v{ta}")
    a.e(f"s_mul_i32 s36, s30, {16*72}"); a.e(f"v_add_u32 v{ta}, s36, v{ta}")
    a.e(f"v_lshrrev_b32 v{t}, 5, v{lane}"); a.e(f"v_mul_u32_u24 v{go}, {262144 - 512}, v{t}"); a.e(f"v_add_u32 v{go}, v{go}, v{l16}")
    a.e("s_lshr_b32 s44, s38, 4"); a.e("s_lshl_b32 s44, s44, 14"); a.e("s_and_b32 s37, s38, 15"); a.e("s_lshl_b32 s37, s37, 9"); a.e("s_add_u32 s44, s44, s37")
    a.e("s_and_b32 s37, s30, 1"); a.e("s_lshl_b32 s37, s37, 13"); a.e("s_add_u32 s44, s44, s37")
    a.e("s_lshr_b32 s37, s30, 1"); a.e("s_lshl_b32 s37, s37, 26"); a.e("s_add_u32 s44, s44, s37")
    a.e("s_and_b32 s47, s44, 0x2000"); a.e(f"s_xor_b32 s47, s47, {(((F_FRONT >> 21) ^ (F_FRONT >> 13)) & 1) << 13}"); a.e("s_lshr_b32 s37, s30, 1"); a.e("s_lshl_b32 s37, s37, 12"); a.e("s_add_u32 s47, s47, s37")
    a.e("s_and_b32 s37, s2, 7"); a.e("s_lshl_b32 s37, s37, 7"); a.e("s_add_u32 s47, s47, s37")
    a.e(f"v_mov_b32 v{ua}, {LW+8}"); a.e("v_mov_b32 v7, 1")
    ya = v()
    a.e(f"s_mul_i32 s36, s30, {CHB+64}")
    a.e(f"v_mul_u32_u24 v{ya}, 72, v{J}"); a.e(f"v_lshl_add_u32 v{ya}, v{G}, 3, v{ya}"); a.e(f"v_add_u32 v{ya}, s36, v{ya}")
    a.e("v_lshlrev_b32 v6, 10, v1"); assert t == 6 and PWA
    a.e(f"v_mov_b32 v{J}, 0"); a.e("s_and_b32 s45, s2, 31"); a.e("s_lshl_b32 s45, s45, 7"); a.e(f"s_add_u32 s45, s45, {F_RES}")
    a.e("s_cmp_lg_u32 s30, 0"); a.e("s_cbranch_scc1 CV_w")
    a.e("s_and_b32 s36, s2, 7"); a.e("s_lshl_b32 s36, s36, 12"); a.e(f"s_add_u32 s36, s36, {F_KVT}")
    a.e(f"v_lshlrev_b32 v{pt+1}, 7, v{lane}"); a.e(f"v_add_u32 v{pt+1}, s36, v{pt+1}")
    poll_core(a, pt, [pt + 1], 0xffffffff)
    lds_set(a, LW + 16, 1, pt)
    a.e("CV_w:")
    lds_spin(a, LW + 16, 1, pt)
    mstamp(a)
    for it in range(4): a.e(f"buffer_load_dwordx4 {vr(u+4*it,4)}, v{l16}, s[16:19], 0 offen offset:{1024*it} {os.environ.get('UF', SC + ' nt')}")
    QL = int(os.environ.get("QL", "3"))
    if not QL: load_q(a)
    for it in range(4):
        a.e(f"s_waitcnt vmcnt({(3 if QL else 7)-it})")
        a.e(f"ds_write_b128 v{uw}, {vr(u+4*it,4)} offset:{UOFF + 16*US*it}")
    a.e(f"v_mov_b32 v{pt}, {LW+20}"); a.e(f"v_mov_b32 v{pt+1}, 1")
    a.e("s_mov_b64 exec, 1"); a.e(f"ds_add_u32 v{pt}, v{pt+1}"); a.e("s_mov_b64 exec, -1")
    a.e("s_waitcnt lgkmcnt(0)")
    mstamp(a)
    for x in rdB(0, 0): a.e(x)
    for c_ in range(4):
        a.e(f"s_waitcnt lgkmcnt({3-c_})")
        for mt in range(2): a.e(f"v_mfma_f32_16x16x32_bf16 {vr(acc+8*c_+4*mt,4)}, {vr(dm_+4*mt,4)}, {vr(fb+4*c_,4)}, 0")
    def step(p, nxt, tail, piped=False):
        a.e(f"s_waitcnt lgkmcnt({10 if piped else 0})")
        mf = [(c_, s_, mt) for s_ in range(4) for mt in range(2) for c_ in range(s_, 4)]
        for i, (c_, s_, mt) in enumerate(mf):
            A = acc + 8 * c_ + 4 * mt
            a.e(f"v_mfma_f32_16x16x32_bf16 {vr(A,4)}, {vr(fa+32*p+8*s_+4*mt,4)}, {vr(fb+16*p+4*(c_-s_),4)}, {vr(A,4)}")
            if nxt: a.e(nxt.pop(0))
            if piped and i == 9: a.e("s_waitcnt lgkmcnt(10)")
            for x in tail.pop(i, []) if tail else []: a.e(x)
        assert not nxt and not tail
    a.e("s_mov_b32 s43, 0")
    NU = int(os.environ.get("NU", "4")); HP = int(os.environ.get("HP", "0")); VT = int(os.environ.get("VT", "5"))
    vt = {1: [f"s_cmp_eq_u32 s43, {VT}"], 2: ["s_cselect_b64 exec, 1, 0", f"buffer_load_dword v{uw}, v{J}, s[56:59], s45 offen {SC}", "s_mov_b64 exec, -1"]}
    if NU:
        a.e("CV_r:")
        for p in range(2):
            rd = rdB(1 - p, p + 1) + rdA(1 - p, p + 1)
            step(p, rd[:HP], dict(vt) if p == 0 and VT < NU else [])
            for x in rd[HP:]: a.e(x)
        for x in [f"v_add_u32 v{aa}, 128, v{aa}", f"v_add_u32 v{ba}, {2*US}, v{ba}", "s_add_u32 s43, s43, 1", f"s_cmp_lt_u32 s43, {NU}"]: a.e(x)
        a.e("s_cbranch_scc1 CV_r")
    if QL == 1: load_q(a)
    a.e("CV_l:")
    step(0, rdB(1, 1) + rdA(1, 1), dict(vt) if VT >= NU else [], True)
    step(1, rdB(0, 2) + rdA(0, 2), {19: [f"v_add_u32 v{aa}, 128, v{aa}"], 5: [f"v_add_u32 v{ba}, {2*US}, v{ba}"], 6: ["s_add_u32 s43, s43, 1"], 7: ["s_cmp_lt_u32 s43, 8"]}, True)
    a.e("s_cbranch_scc1 CV_l")
    mstamp(a)
    if os.environ.get("EPR"): a.e("s_setprio " + os.environ["EPR"])
    for c_ in range(4):
        for mt in range(2):
            A = acc + 8 * c_ + 4 * mt; O = u + 2 * (c_ * 2 + mt)
            a.e(f"v_cvt_pk_bf16_f32 v{O}, v{A}, v{A+1}"); a.e(f"v_cvt_pk_bf16_f32 v{O+1}, v{A+2}, v{A+3}")
            a.e(f"ds_write_b64 v{ya}, {vr(O,2)} offset:{c_*16*72 + mt*32}")
    a.e("s_mov_b64 exec, 1"); a.e(f"ds_add_u32 v{ua}, v7"); a.e("s_mov_b64 exec, -1")
    a.e("s_mov_b32 s53, 0"); a.e("s_waitcnt vmcnt(0)")
    a.e("CV_v:")
    a.e(f"v_readfirstlane_b32 s94, v{uw}"); a.e("s_sub_u32 s94, s94, s52"); a.e("s_and_b32 s37, s94, 0xfffffe01"); a.e("s_cbranch_scc0 CV_k")
    a.e(f"buffer_load_dword v{uw}, v{J}, s[56:59], s45 offen {SC}"); a.e("s_waitcnt vmcnt(0)")
    a.e("s_add_u32 s53, s53, 1"); a.e("s_cmp_lt_u32 s53, s61"); a.e("s_cbranch_scc1 CV_v"); a.e("s_mov_b32 s61, 0"); a.e("s_mov_b32 s94, 0")
    a.e("CV_k:")
    a.e("s_lshr_b32 s94, s94, 1"); a.e("s_add_u32 s37, s94, 65536"); a.e(f"v_mov_b32 v{pt}, {LW+28}"); a.e(f"v_mov_b32 v{pt+1}, s37"); a.e(f"ds_write_b32 v{pt}, v{pt+1}")
    a.e(f"s_cmp_gt_u32 s94, {QUO // 2}"); a.e("s_cselect_b32 s37, 0x2000, 0"); a.e("s_xor_b32 s44, s44, s37")
    a.e("s_xor_b32 s45, s47, s37"); a.e(f"s_add_u32 s45, s45, {F_FRONT}")
    lds_spin(a, LW + 8, 6, pt)
    for i in range(8): a.e(f"ds_read_b64_tr_b16 {vr(fa+32+2*i,2)}, v{ta} offset:{288*(i>>1) + 32*(i&1)}")
    for i in range(4):
        a.e(f"s_waitcnt lgkmcnt({6-2*i})")
        mark(a, fa + 32 + 4 * i, 1)
        a.e(f"buffer_store_dwordx4 {vr(fa+32+4*i,4)}, v{go}, s[12:15], s44 offen {SC}")
        a.e(f"s_add_u32 s44, s44, {GSTR}")
    if PUTE:
        a.e(f"v_mov_b32 v{pt}, {LW+20}"); a.e(f"v_mov_b32 v{pt+1}, 1")
        a.e("s_mov_b64 exec, 1"); a.e(f"ds_add_u32 v{pt}, v{pt+1}"); a.e("s_mov_b64 exec, -1")
    assert v.hi <= 176

PK = 48; W3S = 176
RFO, RYO, RRO, RI, RXA, RXB, RYY, RT = 196, 197, 198, 199, 180, 188, 230, 228
def r_addr(a, full=True):
    t, t2, I, fo, ro, yo = RT, RT + 1, RI, RFO, RRO, RYO
    a.e(f"v_and_b32 v{I}, 7, v0")
    a.e(f"v_lshrrev_b32 v{t}, 6, v0"); a.e(f"v_lshlrev_b32 v{t}, 4, v{t}"); a.e(f"v_bfe_u32 v{t2}, v0, 3, 3"); a.e(f"v_add_u32 v{t}, v{t}, v{t2}")
    a.e("s_lshr_b32 s78, s29, 1"); a.e("s_lshl_b32 s78, s78, 16"); a.e("s_and_b32 s79, s29, 1"); a.e("s_lshl_b32 s79, s79, 7"); a.e("s_add_u32 s78, s78, s79")
    a.e("s_lshr_b32 s79, s30, 1"); a.e("s_lshl_b32 s79, s79, 13"); a.e("s_add_u32 s78, s78, s79")
    a.e(f"v_lshlrev_b32 v{fo}, 8, v{t}"); a.e(f"v_lshl_add_u32 v{fo}, v{I}, 4, v{fo}"); a.e(f"v_add_u32 v{fo}, s78, v{fo}")
    if not full: return
    a.e("s_lshl_b32 s78, s28, 7"); a.e("s_lshl_b32 s79, s29, 3"); a.e("s_add_u32 s78, s78, s79")
    a.e(f"v_add_u32 v{yo}, s78, v{I}"); a.e(f"v_lshlrev_b32 v{ro}, 11, v{yo}")
    a.e(f"v_lshrrev_b32 v{t2}, 2, v{t}"); a.e(f"v_lshlrev_b32 v{t2}, 3, v{t2}"); a.e(f"v_and_b32 v{t}, 3, v{t}"); a.e(f"v_add_u32 v{t}, v{t}, v{t2}")
    a.e(f"v_lshl_add_u32 v{ro}, v{t}, 3, v{ro}")
    a.e(f"v_and_b32 v{yo}, 15, v{yo}"); a.e(f"v_lshlrev_b32 v{yo}, 4, v{yo}"); a.e(f"v_and_b32 v{t2}, 15, v{t}"); a.e(f"v_lshl_add_u32 v{yo}, v{t2}, 9, v{yo}")
    a.e(f"v_lshrrev_b32 v{t2}, 4, v{t}"); a.e(f"v_lshl_add_u32 v{yo}, v{t2}, 14, v{yo}")
    a.e("s_lshr_b32 s78, s28, 3"); a.e("s_lshl_b32 s78, s78, 2"); a.e("s_and_b32 s79, s28, 3"); a.e("s_add_u32 s78, s78, s79"); a.e("s_lshl_b32 s78, s78, 24")
    a.e("s_and_b32 s79, s28, 4"); a.e("s_lshl_b32 s79, s79, 11"); a.e("s_add_u32 s78, s78, s79")
    a.e("s_and_b32 s79, s29, 4"); a.e("s_lshl_b32 s79, s79, 6"); a.e("s_add_u32 s78, s78, s79"); a.e("s_and_b32 s79, s29, 2"); a.e("s_lshl_b32 s79, s79, 2"); a.e("s_add_u32 s78, s78, s79")
    a.e("s_lshl_b32 s79, s31, 18"); a.e("s_add_u32 s78, s78, s79"); a.e(f"v_add_u32 v{yo}, s78, v{yo}")
def load_y(a, skip_last=False):
    a.srd(80, 4, 8 * GSTR - oHS, off=LB0 + oHS)
    for j in range(2):
        for hh in range(2):
            a.e(f"s_mov_b32 s78, {j*16384 + hh*2048}")
            a.e(f"buffer_load_dwordx2 {vr(RYY+4*j+2*hh,2)}, v{RYO}, s[80:83], s78 offen {os.environ.get('YF', SC)}")
def r_pre(a, l0=False):
    r_addr(a, False)
    lsrd(a, 84, oX3, XSZ); lsrd(a, 88, oX1P, XSZ)
    if l0: a.e("s_cmp_eq_u32 s60, 0"); a.e("s_cselect_b64 exec, -1, 0")
    for j in range(2):
        a.e(f"buffer_load_dwordx4 {vr(RXA+4*j,4)}, v{RFO}, s[84:87], 0 offen offset:{2048*j} {SC}")
        a.e(f"buffer_load_dwordx4 {vr(RXB+4*j,4)}, v{RFO}, s[88:91], 0 offen offset:{2048*j} {SC}")
    if l0: a.e("s_mov_b64 exec, -1")
def r_pre0(a): r_pre(a, True)
def r_pre1(a):
    X = a.lab("rp"); a.e("s_cmp_lg_u32 s60, 0"); a.e(f"s_cbranch_scc1 {X}"); call(a, r_pre); a.e(f"{X}:")

def r_stage(a, final):
    v = VA(6)
    t = v(); t2 = v(); I = RI; fo = RFO; ro = RRO; pt = v(4, 2)
    xa = RXA; xb = RXB; yy = RYY; x = 206; yf = 222; w = v(16, 4); tmp = v()
    pre = final == "pre"
    S = v(2, 2); pp = v(2, 2); qq = v(2, 2); st = w; mean = v(2, 2); rs = mean + 1; var = v(); sw = v(); sr = v()
    def part(src, n):
        a.e(f"v_pk_add_f32 {vr(pp,2)}, {vr(src,2)}, {vr(src+2,2)}"); a.e(f"v_pk_mul_f32 {vr(qq,2)}, {vr(src,2)}, {vr(src,2)}")
        for i in range(1, 8):
            if i > 1: a.e(f"v_pk_add_f32 {vr(pp,2)}, {vr(pp,2)}, {vr(src+2*i,2)}")
            a.e(f"v_pk_fma_f32 {vr(qq,2)}, {vr(src+2*i,2)}, {vr(src+2*i,2)}, {vr(qq,2)}")
        a.e(f"v_add_f32 v{S}, v{pp}, v{pp+1}"); a.e(f"v_add_f32 v{S+1}, v{qq}, v{qq+1}")
        for k in range(2): a.e(f"v_add_f32_dpp v{S+k}, v{S+k}, v{S+k} row_ror:8 row_mask:0xf bank_mask:0xf")
        for op in ("v_permlane16_swap_b32", "v_permlane32_swap_b32"):
            for k in range(2): a.e(f"v_mov_b32 v{pp+k}, v{S+k}")
            for k in range(2): a.e(f"{op} v{S+k}, v{pp+k}")
            a.e(f"v_pk_add_f32 {vr(S,2)}, {vr(S,2)}, {vr(pp,2)}")
        a.e(f"ds_write_b64 v{sw}, {vr(S,2)} offset:{n*512}")
    def comb(n):
        for k in range(4): a.e(f"ds_read_b128 {vr(st+4*k,4)}, v{sr} offset:{n*512+16*k}")
        a.e("s_waitcnt lgkmcnt(0)")
        for k in range(4): a.e(f"v_pk_add_f32 {vr(st+4*k,2)}, {vr(st+4*k,2)}, {vr(st+4*k+2,2)}")
        a.e(f"v_pk_add_f32 {vr(st,2)}, {vr(st,2)}, {vr(st+4,2)}"); a.e(f"v_pk_add_f32 {vr(st+8,2)}, {vr(st+8,2)}, {vr(st+12,2)}")
        a.e(f"v_pk_add_f32 {vr(st,2)}, {vr(st,2)}, {vr(st+8,2)}")
        a.e(f"v_mul_f32 v{mean}, {f32(1/1024)}, v{st}"); a.e(f"v_mul_f32 v{var}, {f32(1/1024)}, v{st+1}")
        a.e(f"v_fma_f32 v{var}, -v{mean}, v{mean}, v{var}"); a.e(f"v_max_f32 v{var}, 0, v{var}")
    SUBM = f"{vr(mean,2)} op_sel_hi:[1,0] neg_lo:[0,1] neg_hi:[0,1]"; MULR = f"{vr(mean,2)} op_sel:[0,1] op_sel_hi:[1,1]"
    if pre: a.e("s_waitcnt lgkmcnt(0)")
    if final is not True:
        a.e(f"v_lshlrev_b32 v{sr}, 6, v{I}"); a.e(f"v_add_u32 v{sr}, {AUX+2048}, v{sr}")
        a.e(f"s_lshl_b32 s35, s30, 3"); a.e(f"v_add_u32 v{sw}, s35, v{sr}")
    if pre:
        a.e("s_waitcnt vmcnt(0)")
        for i in range(8): unpack(a, x + 2 * i, x + 2 * i + 1, xa + i)
        part(x, 0)
        a.e("s_waitcnt lgkmcnt(0)"); a.e("s_barrier")
        return
    if not final:
        a.e(f"s_cmp_eq_u32 s60, 0"); a.e(f"s_cbranch_scc1 R_l0")
    else:
        a.e(f"s_load_dwordx2 s[6:7], s[0:1], {D_OUT}")
    lsrd(a, 8, oP0, XSZ, prev=True); lsrd(a, 12, oP1, XSZ, prev=True)
    lsrd(a, 20, oX3, XSZ); a.e("s_mov_b32 s78, 0x3f80"); a.e("s_mov_b32 s79, 0x3f800000")
    if "r" not in DP: a.e("s_waitcnt vmcnt(0)")
    for i in range(8):
        if not final: unpack(a, yf + 2 * i, yf + 2 * i + 1, yy + i)
        unpack(a, x + 2 * i, x + 2 * i + 1, xa + i); unpack(a, w + 2 * i, w + 2 * i + 1, xb + i)
        a.e(f"v_pk_add_f32 {vr(x+2*i,2)}, {vr(x+2*i,2)}, {vr(w+2*i,2)}")
    lds_ = [f"buffer_load_dwordx4 {vr(r+4*j,4)}, v{fo}, s[{q}:{q+3}], 0 offen offset:{2048*j} {os.environ.get('RF', SC)}" for j in range(2) for r, q in ((xa, 8), (xb, 12))]
    if "r" in DP: data_poll(a, lds_, (xa, xa + 4, xb, xb + 4), t, int(os.environ.get("RNAP", "4")), int(os.environ.get("RFIRST", "24")), int(os.environ.get("RCAN", "0"))); mstamp(a)
    else:
        poll(a, ST_G4, pt, prev=True)
        mstamp(a)
        for x_ in lds_: a.e(x_)
    for i in range(8):
        if i % 4 == 0 and "r" not in DP: a.e(f"s_waitcnt vmcnt({2 - i // 2})")
        u = w + 4 * (i & 3)
        if DOT:
            if i == 0:
                for r_ in (xa, xb):
                    for k in range(16): a.e(f"v_dot2_f32_bf16 v{x+k}, v{r_+k//2}, s{78+(k&1)}, v{x+k}")
                a.e("s_nop 2")
            continue
        unpack(a, u, u + 1, xa + i); unpack(a, u + 2, u + 3, xb + i)
        a.e(f"v_pk_add_f32 {vr(u,2)}, {vr(u,2)}, {vr(u+2,2)}")
        a.e(f"v_pk_add_f32 {vr(x+2*i,2)}, {vr(x+2*i,2)}, {vr(u,2)}")
        if final: a.e(f"v_cvt_pk_bf16_f32 v{xa+i}, v{x+2*i}, v{x+2*i+1}")
        else: round2(a, x + 2 * i, x + 2 * i + 1, tmp)
    if final:
        a.e("s_waitcnt lgkmcnt(0)")
        a.srd(20, 6, 4 * MB)
        OS = os.environ.get("OS", "sc1")
        if os.environ.get("OWIDE", "1") == "1":
            a.e(f"v_bfe_u32 v{t}, v1, 3, 1"); a.e(f"v_cmp_eq_u32 vcc, 1, v{t}")
            for j in range(2):
                lo, hi = xa + 4 * j, xa + 4 * j + 2
                for e in range(2):
                    a.e(f"v_cndmask_b32 v{x+e}, v{hi+e}, v{lo+e}, vcc")
                for e in range(2):
                    a.e(f"v_mov_b32_dpp v{x+2+e}, v{x+e} row_ror:8 row_mask:0xf bank_mask:0xf")
                for e in range(2):
                    a.e(f"v_cndmask_b32 v{x+4+e}, v{lo+e}, v{x+2+e}, vcc"); a.e(f"v_cndmask_b32 v{hi+e}, v{x+2+e}, v{hi+e}, vcc")
                for e in range(2): a.e(f"v_mov_b32 v{lo+e}, v{x+4+e}")
            a.e(f"v_bfe_u32 v{t2}, v1, 4, 1"); a.e(f"v_lshlrev_b32 v{t}, 5, v{t}"); a.e(f"v_lshl_add_u32 v{t}, v{t2}, 4, v{t}")
            a.e(f"v_and_b32 v{t2}, 0xffffffc0, v{ro}"); a.e(f"v_add_u32 v{t}, v{t}, v{t2}")
            for j in range(2): a.e(f"buffer_store_dwordx4 {vr(xa+4*j,4)}, v{t}, s[20:23], 0 offen offset:{128*j} {OS}")
        else:
            for j in range(4): a.e(f"buffer_store_dwordx2 {vr(xa+2*j,2)}, v{ro}, s[20:23], 0 offen offset:{128*(j>>1) + 32*(j&1)} {OS}")
        return v.hi
    part(x, 0)
    if os.environ.get("RST"): mstamp(a)
    a.e("s_waitcnt lgkmcnt(0)"); a.e("s_barrier")
    if os.environ.get("RST"): mstamp(a)
    comb(0)
    ln_finish(a, mean, var, rs)
    if os.environ.get("RST"): mstamp(a)
    a.e(f"v_mul_f32 v{mean}, v{mean}, v{rs}")
    for i in range(8): a.e(f"v_pk_fma_f32 {vr(w+2*i,2)}, {vr(x+2*i,2)}, {vr(mean,2)}, {vr(mean,2)} op_sel:[0,1,0] op_sel_hi:[1,1,0] neg_lo:[0,0,1] neg_hi:[0,0,1]")
    for i in range(8):
        D = w + 2 * i
        a.e(f"v_pk_fma_f32 {vr(x+2*i,2)}, {vr(D,2)}, {vr(yf+2*i,2)}, {vr(x+2*i,2)}")
        a.e(f"v_cvt_pk_bf16_f32 v{xa+i}, v{x+2*i}, v{x+2*i+1}")
        if i % 4 == 1 and DP: mark(a, xa + i - 1, 0)
        if i % 4 == 3: a.e(f"buffer_store_dwordx4 {vr(xa+i-3,4)}, v{fo}, s[20:23], 0 offen offset:{2048*(i//4)} {SC}")
    if os.environ.get("RST"): mstamp(a)
    a.e("s_branch R_s2")
    a.e("R_l0:")
    for i in range(8): unpack(a, x + 2 * i, x + 2 * i + 1, xa + i)
    part(x, 0)
    a.e("s_waitcnt lgkmcnt(0)")
    st_ = st; st = yf
    lds_spin(a, LW + 28, 65536, st, dst=94)
    if STAMP: a.e("s_and_b32 s95, s94, 0xffff")
    a.e(f"s_cmp_gt_u32 s94, {65536 + QUO // 2}"); a.e("s_cselect_b32 s94, 1, 0")
    a.e("s_lshl_b32 s53, s94, 13"); a.e(f"v_xor_b32 v{RYO}, s53, v{RYO}")
    FL = int(os.environ.get("FL", "1"))
    if FL:
        group_off(a, 36, 28); a.e("s_lshr_b32 s53, s53, 14"); a.e("s_add_u32 s36, s53, s54"); a.e(f"s_xor_b32 s36, s36, {(((F_FRONT >> 21) ^ (F_FRONT >> 13) ^ (FL >> 1)) & 1) << 13}")
    else: a.e("s_lshl_b32 s36, s28, 10")
    a.e(f"s_add_u32 s36, s36, {F_FRONT}"); a.e("s_lshl_b32 s53, s30, 7"); a.e("s_add_u32 s36, s36, s53"); a.e(f"v_mov_b32 v{st+4}, s36")
    a.e("s_waitcnt vmcnt(0)"); a.e("s_barrier")
    poll_core(a, st, [st + 4], 1, cnt=32, nap=FSLEEP)
    load_y(a)
    group_off(a, 55, 28)
    a.e("s_add_u32 s62, s4, s55"); a.e("s_addc_u32 s63, s5, 0")
    a.e("s_sub_u32 s36, s28, 1"); a.e("s_max_i32 s36, s36, 0"); group_off(a, 92, 36); a.e("s_sub_u32 s92, s92, s55")
    a.e("s_add_u32 s36, s28, 1"); a.e("s_min_u32 s36, s36, 15"); group_off(a, 93, 36); a.e("s_sub_u32 s93, s93, s55")
    a.e(f"s_add_u32 s55, s55, {oSM}")
    lsrd(a, 20, oX3, XSZ)
    st = st_; comb(0); ln_finish(a, mean, var, rs); st = yf
    for i in range(8):
        D = w + 2 * i
        a.e(f"v_pk_add_f32 {vr(D,2)}, {vr(x+2*i,2)}, {SUBM}"); a.e(f"v_pk_mul_f32 {vr(D,2)}, {vr(D,2)}, {MULR}")
    a.e("s_barrier")
    mstamp(a)
    a.e("s_waitcnt vmcnt(0)")
    for i in range(8):
        D = w + 2 * i
        unpack(a, st, st + 1, yy + i)
        a.e(f"v_pk_fma_f32 {vr(x+2*i,2)}, {vr(D,2)}, {vr(st,2)}, {vr(x+2*i,2)}"); a.e(f"v_cvt_pk_bf16_f32 v{xa+i}, v{x+2*i}, v{x+2*i+1}")
        if i % 4 == 1 and DP: mark(a, xa + i - 1, 0)
        if i % 4 == 3: a.e(f"buffer_store_dwordx4 {vr(xa+i-3,4)}, v{fo}, s[20:23], 0 offen offset:{2048*(i//4)} {SC}")
    a.e("R_s2:")
    st = st_
    for i in range(8): unpack(a, x + 2 * i, x + 2 * i + 1, xa + i)
    part(x, 1)
    if "1" in DP:
        a.e("s_waitcnt lgkmcnt(0)"); a.e("s_barrier")
        a.e("s_cmp_lg_u32 s30, 6"); a.e("s_cbranch_scc1 R_n6"); a.e("s_cmp_lg_u32 s60, 0"); a.e("s_cbranch_scc1 R_n6")
        a.e("s_lshl_b32 s53, s29, 7"); a.e(f"s_add_u32 s53, s53, {F_CS}"); a.e(f"v_mov_b32 v{pt}, 1"); a.e(f"v_mov_b32 v{pt+1}, 0")
        a.e("s_mov_b64 exec, 1"); a.e(f"buffer_atomic_add v{pt}, v{pt+1}, s[56:59], s53 offen {SC}"); a.e("s_mov_b64 exec, -1")
        a.e("R_n6:")
    else:
        publish(a, ST_R, 8, pt)
        a.e("s_barrier")
    a.e(f"s_cmp_lg_u32 s30, {7 if '1' in DP else 0}"); a.e("s_cbranch_scc1 R_nl")
    comb(1)
    outv = yf + 2; s3 = v(); m4 = v(); v4_ = v(); r4 = v()
    assert v.hi <= PK
    a.e(f"v_mov_b32 v{m4}, v{mean}"); a.e(f"v_mov_b32 v{v4_}, v{var}")
    ln_finish(a, mean, var, rs, s3)
    a.e(f"v_sub_f32 v{m4}, v{m4}, v{mean}"); a.e(f"v_mul_f32 v{m4}, v{m4}, v{rs}")
    a.e(f"v_mul_f32 v{v4_}, v{v4_}, v{rs}"); a.e(f"v_mul_f32 v{v4_}, v{v4_}, v{rs}")
    ln_finish(a, m4, v4_, r4)
    a.e(f"v_mov_b32 v{outv}, v{mean}"); a.e(f"v_mov_b32 v{outv+1}, v{rs}")
    a.e(f"v_fma_f32 v{outv+2}, v{m4}, v{s3}, v{mean}"); a.e(f"v_mul_f32 v{outv+3}, v{rs}, v{r4}")
    lsrd(a, 24, oLNS, 2048)
    a.e("s_lshl_b32 s36, s29, 3"); a.e(f"v_add_u32 v{t}, s36, v{I}"); a.e(f"v_lshlrev_b32 v{t}, 4, v{t}")
    a.e("s_mov_b64 exec, 0xff")
    a.e(f"buffer_store_dwordx4 {vr(outv,4)}, v{t}, s[24:27], 0 offen {SC}")
    a.e("s_mov_b64 exec, -1")
    publish(a, ST_R2, 1, pt)
    a.e("R_nl:")
    return v.hi

TAB = int(os.environ.get("TAB", "1")); TV = 248
def lead(seq, r, L, P=4):
    if L == 0: return list(seq)
    return [x for _, x in sorted(((i - L - 0.5 if i % P == r else i), x) for i, x in enumerate(seq))]
def order3(j, gi):
    mode, L = eval(os.environ.get("O3", "('r',0)"))
    if mode == "r": return [(gi + t) & 15 for t in range(16)]
    if mode == "n": return [gi] + [x for x in lead(range(16), (j + gi) & 3, L) if x != gi]
    if mode == "s": return [gi] + lead([x for x in range(16) if x != gi], (j + gi) & 3, L)
    if mode == "h": return [gi] + [x for x in lead([(t + (gi & 8)) & 15 for t in range(16)], (j + gi) & 3, L) if x != gi]
def order4(j, n):
    mode, L = eval(os.environ.get("O4", "('n',1)"))
    own = [(7 * n + i, 7 * n + 4 + i) for i in range(3)]
    ps = [(n + t) & 7 for t in range(8)] if mode == "r" else list(range(8))
    ab = [(7 * p + i, 7 * p + 4 + i) for i in range(2) for p in ps if p != n]
    c = [7 * p + o for p in ps for o in (2, 6, 3) if p != n or o == 3]
    rest = ab + [(c[2 * i], c[2 * i + 1]) for i in range(11)]
    if mode != "r": rest = lead(rest, (j + n + int(os.environ.get("O4R", "0"))) & 3, L)
    return own + rest
L4 = eval(os.environ.get("O4", "('n',1)"))[1] if TAB else 0
def tab_data(a):
    a.lines.append(".p2align 6"); a.lines.append("K_tab:")
    for gi in range(16):
        for j in range(4):
            o3 = order3(j, gi) + [0] * 16; o4 = order4(j, gi & 7) + [(0, 0)] * 4
            assert sorted(o3[:16]) == list(range(16)) and sorted(sum(o4[:28], ())) == list(range(56))
            a.lines.append(".short " + ",".join(str(o3[t] | o4[t][0] << 4 | o4[t][1] << 10) for t in range(32)))
def tab_load(a):
    a.e("s_getpc_b64 s[34:35]"); a.e("K_tpc:")
    a.e("s_lshl_b32 s36, s29, 2"); a.e("s_and_b32 s37, s28, 3"); a.e("s_add_u32 s36, s36, s37"); a.e("s_lshl_b32 s36, s36, 6")
    a.e("s_add_u32 s36, s36, K_tab-K_tpc"); a.e("s_add_u32 s34, s34, s36"); a.e("s_addc_u32 s35, s35, 0")
    a.e(f"v_and_b32 v{TV}, 31, v1"); a.e(f"v_lshlrev_b32 v{TV}, 1, v{TV}"); a.e(f"global_load_ushort v{TV+3}, v{TV}, s[34:35]")
def tab_make(a, w):
    T, x = TV + 3, TV + 4
    if not w:
        a.e(f"v_bfe_u32 v{x}, v{T}, 2, 2"); a.e(f"v_lshlrev_b32 v{TV}, 14, v{x}"); a.e(f"v_and_b32 v{x}, 3, v{T}"); a.e(f"v_lshl_add_u32 v{TV}, v{x}, 11, v{TV}")
        for lw in range(2):
            a.e(f"v_bfe_u32 v{x}, v{T}, {7+6*lw}, 3"); a.e(f"v_lshlrev_b32 v{TV+1+lw}, 14, v{x}"); a.e(f"v_bfe_u32 v{x}, v{T}, {4+6*lw}, 3"); a.e(f"v_lshl_add_u32 v{TV+1+lw}, v{x}, 10, v{TV+1+lw}")
    else:
        a.e(f"v_and_b32 v{x}, 15, v{T}"); a.e(f"v_mul_u32_u24 v{TV}, {64*7168}, v{x}")
        a.e("s_and_b32 s36, s30, 1"); a.e("s_mul_i32 s36, s36, 6"); a.e("s_add_u32 s36, s36, 4"); a.e(f"v_bfe_u32 v{x}, v{T}, s36, 6")
        assert all((q * 37) >> 8 == q // 7 for q in range(56))
        a.e(f"v_mul_u32_u24 v{TV+2}, 37, v{x}"); a.e(f"v_lshrrev_b32 v{TV+2}, 8, v{TV+2}"); a.e(f"v_mul_u32_u24 v{TV+2}, 7, v{TV+2}"); a.e(f"v_sub_u32 v{TV+2}, v{x}, v{TV+2}")
        a.e(f"v_cmp_eq_u32 vcc, 3, v{TV+2}"); a.e(f"v_cndmask_b32 v{TV+2}, 0, 1, vcc"); a.e(f"v_lshl_add_u32 v{TV+1}, v{x}, 16, v{TV+2}")
        for p_ in eval(os.environ.get("W4SKIP", "[]")): a.e("s_mov_b32 s36, 0x40000000"); a.e(f"v_writelane_b32 v{TV+1}, s36, {p_}")
def rot_init(a, which):
    if which == 3 and TAB: a.e("s_mov_b32 s44, 0")
    elif which == 3 and OWN3: a.e("s_mov_b32 s44, s29")
    elif which != 4: a.e("s_mov_b32 s44, s67")
    else: a.e("s_mov_b32 s44, 0")
def rot_next(a, which):
    a.e("s_add_u32 s44, s44, 1")
    if which != 4: a.e("s_and_b32 s44, s44, 15")
def kb4(a, d, lw):
    a.e("s_lshl_b32 s45, s44, 1"); a.e(f"s_add_u32 s45, s45, {lw}"); a.e("s_sub_u32 s45, s45, 32")
    a.e("s_mul_i32 s46, s45, 86"); a.e("s_lshr_b32 s46, s46, 8")
    a.e("s_mul_i32 s47, s46, 3"); a.e("s_sub_u32 s47, s45, s47"); a.e("s_lshl_b32 s47, s47, 2"); a.e("s_lshr_b32 s47, 0x362, s47"); a.e("s_and_b32 s47, s47, 7")
    a.e("s_cmp_ge_u32 s44, 10"); a.e("s_cselect_b32 s45, 9, 2"); a.e("s_cselect_b32 s51, 1, 0"); a.e("s_sub_u32 s45, s44, s45")
    a.e("s_cmp_lt_u32 s44, 3"); a.e("s_cselect_b32 s45, 0, s45"); a.e("s_cselect_b32 s51, s44, s51")
    a.e(f"s_lshl2_add_u32 s51, {lw}, s51")
    a.e("s_cmp_lt_u32 s44, 17"); a.e("s_cselect_b32 s47, s51, s47"); a.e("s_cselect_b32 s46, s45, s46")
    a.e("s_add_u32 s46, s46, s33"); a.e("s_and_b32 s46, s46, 7"); a.e("s_mul_i32 s46, s46, 7"); a.e(f"s_add_u32 s{d}, s46, s47")
assert all((q * 86) >> 8 == q // 3 for q in range(24))
WVB = {1: 238, 2: 238, 4: 239, 3: 241}
WV = 245
def w_lanes(a):
    t, t2 = WV + 8, WV + 9
    R = WVB[1]
    a.e(f"v_lshrrev_b32 v{t}, 3, v1"); a.e(f"v_lshlrev_b32 v{R}, 11, v{t}")
    a.e(f"v_and_b32 v{t}, 6, v{t}"); a.e(f"v_and_b32 v{t2}, 7, v1"); a.e(f"v_xor_b32 v{t}, v{t}, v{t2}"); a.e(f"v_lshl_add_u32 v{R}, v{t}, 4, v{R}")
    R = WVB[4]
    for p in range(2):
        a.e(f"v_lshrrev_b32 v{t}, 4, v1"); a.e(f"v_lshlrev_b32 v{R+p}, 11, v{t}")
        a.e(f"v_add_u32 v{t}, {4*p}, v{t}"); a.e(f"v_lshlrev_b32 v{t}, 1, v{t}"); a.e(f"v_and_b32 v{t2}, 15, v1"); a.e(f"v_xor_b32 v{t}, v{t}, v{t2}")
        a.e(f"v_lshl_add_u32 v{R+p}, v{t}, 4, v{R+p}")
    R = WVB[3]
    assert all((p * 2341) >> 16 == p // 28 for p in range(448))
    for ii in range(7):
        a.e(f"v_add_u32 v{t2}, {64*ii}, v1"); a.e(f"v_mul_u32_u24 v{t}, 2341, v{t2}"); a.e(f"v_lshrrev_b32 v{t}, 16, v{t}")
        a.e(f"v_mul_u32_u24 v{R+ii}, 28, v{t}"); a.e(f"v_sub_u32 v{t2}, v{t2}, v{R+ii}")
        a.e(f"v_mul_u32_u24 v{R+ii}, 7168, v{t}")
        a.e(f"v_lshrrev_b32 v{t}, 1, v{t}"); a.e(f"v_and_b32 v{t}, 2, v{t}"); a.e(f"v_xor_b32 v{t2}, v{t2}, v{t}")
        a.e(f"v_lshl_add_u32 v{R+ii}, v{t2}, 4, v{R+ii}")
def w_srd(a, which):
    c = CFG[which]
    a.e(f"s_mov_b64 s[12:13], s[{66+2*which}:{67+2*which}]")
    a.e(f"s_mov_b32 s14, {c['KBT'] * 32 * c['LDW']}"); a.e("s_mov_b32 s15, 0x20000")
def w_setup(a, which, pre=True, lo=0):
    c = CFG[which]; STB = c["STB"]; BW = STB // 2
    w_srd(a, which)
    a.e("s_and_b32 s35, s30, 1")
    a.e(f"s_mul_i32 s38, s{(0, 99, 29, 29, 33)[which]}, {c['RB']}");
    if which != 4: a.e(f"s_mul_i32 s41, s35, {32*c['LDW']}"); a.e("s_add_u32 s38, s38, s41")
    if which == 4: a.e(f"s_mul_i32 s41, s31, {1792*c['LDW']}"); a.e("s_add_u32 s38, s38, s41")
    a.e(f"s_mul_i32 s41, s35, {BW}"); a.e(f"s_add_u32 s41, s41, {c['WB']}")
    a.e("s_mov_b32 s42, 0"); rot_init(a, which)
    if not pre: return
    NP = c["NPRE"]
    a.e("s_mov_b32 s49, s44"); a.e("s_and_b32 s43, s28, 3"); a.e(f"s_mul_i32 s43, s43, {NP - lo}"); a.e("s_lshr_b32 s43, s43, 2"); a.e(f"s_mov_b32 s50, {lo}")
    if not WROT: a.e("s_mov_b32 s43, 0")
    if lo: a.e(f"s_add_u32 s43, s43, {lo}")
    L = a.lab("wpre"); a.e(f"{L}:")
    a.e(f"s_mul_i32 s42, s43, {STB}"); a.e("s_add_u32 s44, s49, s43")
    if which != 4: a.e("s_and_b32 s44, s44, 15")
    w_issue(a, which, pace=PACES.get(which, PACE))
    a.e("s_add_u32 s43, s43, 1"); a.e(f"s_cmp_eq_u32 s43, {NP}"); a.e(f"s_cselect_b32 s43, {lo}, s43")
    a.e("s_add_u32 s50, s50, 1"); a.e(f"s_cmp_lt_u32 s50, {NP}"); a.e(f"s_cbranch_scc1 {L}")
    mstamp(a)
    a.e(f"s_mov_b32 s42, {(NP % c['NW']) * STB}"); a.e(f"s_add_u32 s44, s49, {NP}")
    if which != 4: a.e("s_and_b32 s44, s44, 15")
YP = int(os.environ.get("YP", "0"))
def ypause(a):
    if not YP: return
    X = a.lab("yp")
    a.e(f"v_mov_b32 v6, {LW+4}"); a.e("ds_read2_b32 v[14:15], v6 offset0:0 offset1:1"); a.e("s_waitcnt lgkmcnt(0)"); a.e("v_readfirstlane_b32 s53, v15")
    a.e(f"s_cmp_lt_u32 s53, {YP}"); a.e(f"s_cbranch_scc1 {X}")
    lds_spin(a, LW + 20, 8, 6, nap=2)
    a.e(f"{X}:")
PD = int(os.environ.get("PD", "8")); PDA = int(os.environ.get("PDA", "0"))
def park_load(a, pace, q0=0, q1=32):
    w_srd(a, 2)
    a.e("s_and_b32 s35, s30, 3"); a.e("s_lshl_b32 s35, s35, 19"); a.e("s_lshl_b32 s39, s29, 7"); a.e("s_add_u32 s39, s39, s35")
    if q0: a.e(f"s_add_u32 s39, s39, {q0*16384}")
    for q in range(q0, q1):
        a.e(f"buffer_load_dwordx4 {vr(PK+4*q,4)}, v{WVB[2]}, s[12:15], s39 offen"); a.e("s_add_u32 s39, s39, 16384")
        if pace and q % 4 == 3: a.e(f"s_waitcnt vmcnt({pace})"); ypause(a)
def park(a): park_load(a, int(os.environ.get("PKP", "8")), 0, 32 - PD)
def park2(a): park_load(a, int(os.environ.get("PKP", "8")), 32 - PD, 32)
def park_rest(a, late):
    if not PD or (PDA and not late): return
    X = a.lab("pr")
    if late: a.e("s_cmp_lg_u32 s60, 0"); a.e(f"s_cbranch_scc1 {X}")
    if not PDA: a.e("s_and_b32 s36, s29, 6"); a.e("s_cmp_eq_u32 s36, 2"); a.e(f"s_cbranch_scc{0 if late else 1} {X}")
    call(a, park2); a.e(f"{X}:")
def late_park(a):
    X = a.lab("lp"); a.e("s_cmp_lg_u32 s60, 0"); a.e(f"s_cbranch_scc1 {X}"); call(a, park); a.e(f"{X}:")
def after_g1(a):
    c = CFG[3]
    if os.environ.get("UPD0"): a.e("s_sleep " + os.environ["UPD0"])
    w_srd(a, 3)
    a.e(f"v_readlane_b32 s36, v{TV+3}, 0"); a.e(f"v_readlane_b32 s37, v{TV+3}, 1"); a.e(f"v_readlane_b32 s34, v{TV+3}, 2")
    a.e("s_and_b32 s35, s30, 3"); a.e(f"s_mul_i32 s38, s35, {16*7168}"); a.e("s_mul_i32 s39, s29, 448"); a.e("s_add_u32 s38, s38, s39")
    for r in (36, 37, 34): a.e(f"s_and_b32 s{r}, s{r}, 15"); a.e(f"s_mul_i32 s{r}, s{r}, {64*7168}"); a.e(f"s_add_u32 s{r}, s{r}, s38")
    a.e("s_mul_i32 s39, s35, 7168"); a.e(f"s_add_u32 m0, s39, {c['WB'] + c['S0'] * c['STB']}")
    for i in range(7):
        if i: a.e("s_add_u32 m0, m0, 1024")
        a.e(f"buffer_load_dwordx4 v{WVB[3]+i}, s[12:15], s36 offen lds")
    for i in range(7 if W3N == 2 else 0): a.e(f"buffer_load_dwordx4 {vr(W3S+4*i,4)}, v{WVB[3]+i}, s[12:15], s37 offen")
    a.e("s_lshr_b32 s36, s67, 2"); a.e("s_sub_u32 s36, s35, s36"); a.e("s_and_b32 s36, s36, 3"); a.e("s_lshl_b32 s36, s36, 15"); a.e(f"v_add_u32 v6, s36, v2")
    if W33 == 1:
        for i in range(7): a.e(f"buffer_load_dwordx4 {vr(16+4*i,4)}, v{WVB[3]+i}, s[12:15], s34 offen")
    a.e(f"s_waitcnt vmcnt({21 if W33 == 1 else 7 * W3N})")
    if os.environ.get("UPD"): a.e("s_sleep " + os.environ["UPD"])
    for q in range(32): a.e(f"ds_write_b128 v6, {vr(PK+4*q,4)} offset:{CFG[2]['WB'] + 1024*q}")
    a.e("s_waitcnt lgkmcnt(0)")
W3N = int(os.environ.get("W3N", "2"))
W33 = int(os.environ.get("W33", "0"))
def third_late(a):
    a.e(f"s_sleep {W33}")
    for i in range(7): a.e(f"buffer_load_dwordx4 {vr(16+4*i,4)}, v{WVB[3]+i}, s[12:15], s34 offen")
def third_put(a):
    c = CFG[3]
    for i in range(7): a.e(f"ds_write_b128 v7, {vr(16+4*i,4)} offset:{c['STB'] + 1024*i}")
    a.e("s_waitcnt lgkmcnt(0)")
def after_g2(a):
    c = CFG[3]
    if W3N == 1:
        a.e("s_and_b32 s35, s30, 3"); a.e("s_mul_i32 s39, s35, 7168"); a.e(f"s_add_u32 m0, s39, {c['WB'] + (c['S0'] + 1) % c['NW'] * c['STB']}")
        for i in range(7):
            if i: a.e("s_add_u32 m0, m0, 1024")
            a.e(f"buffer_load_dwordx4 v{WVB[3]+i}, s[12:15], s37 offen lds")
        return
    a.e("s_and_b32 s35, s30, 3"); a.e("s_mul_i32 s39, s35, 7168"); a.e(f"s_add_u32 s39, s39, {c['WB'] + (c['S0'] + 1) % c['NW'] * c['STB']}"); a.e("v_add_u32 v7, s39, v2")
    for i in range(7): a.e(f"ds_write_b128 v7, {vr(W3S+4*i,4)} offset:{1024*i}")
    a.e("s_waitcnt lgkmcnt(0)")
SUBX = {}
def call(a, f):
    SUBX[f.__name__] = f; a.e(f"s_call_b64 s[76:77], SUB_{f.__name__}")
def w1_slots(a, js, pace=0):
    for j in js:
        a.e(f"s_mov_b32 s42, {j*8192}"); a.e("s_mov_b32 s44, s67"); a.e(f"s_add_u32 s44, s44, {j}"); a.e("s_and_b32 s44, s44, 15")
        call_issue(a, w_issue, 1)
        if pace: a.e(f"s_waitcnt vmcnt({pace})")
def w1_done(a):
    a.e("s_mov_b32 s42, 0"); a.e("s_mov_b32 s44, s67"); a.e("s_add_u32 s44, s44, 13"); a.e("s_and_b32 s44, s44, 15")
class Rec:
    def __init__(s_): s_.l = []
    def e(s_, x): s_.l.append(x)
    srd = Asm.srd
def w_parts(which, direct=False):
    c = CFG[which]; STB = c["STB"]; n = STB // 2048; LDW = c["LDW"]; b = Rec()
    b.e("s_add_u32 s19, s41, s42")
    arm = ["s_mov_b32 m0, s19", "s_mov_b32 s39, s16"]
    if which == 4 and TAB:
        b.e(f"v_readlane_b32 s16, v{TV+1}, s44")
        b.e("s_bitcmp1_b32 s16, 0"); b.e(f"s_cselect_b32 s17, {8*2048}, {4*2048}".replace(f"{4*2048}", "s45")); b.e(f"s_cselect_b32 s18, {-20*2048}, s45")
        b.e("s_andn2_b32 s16, s16, 1"); b.e("s_add_u32 s16, s16, s38")
        b.l.insert(0, f"s_mov_b32 s45, {4*2048}")
        arm += ["s_mov_b32 s32, s17", "s_mov_b32 s3, s18"]
        if os.environ.get("W4SKIP"): arm += ["s_bitcmp1_b32 s16, 30", "s_cselect_b64 exec, 0, -1"]
    elif which == 3 and TAB and not direct:
        b.e(f"v_readlane_b32 s16, v{TV}, s44"); b.e("s_add_u32 s16, s16, s38")
    elif which == 4:
        b.e("s_and_b32 s40, s30, 1"); kb4(b, 16, "s40")
        b.e(f"s_mul_i32 s16, s16, {32*LDW}"); b.e("s_add_u32 s16, s16, s38")
        b.e("s_cmp_eq_u32 s47, 3"); b.e("s_cselect_b32 s17, 8, 4"); b.e("s_cselect_b32 s18, -20, 4")
        b.e("s_lshl_b32 s17, s17, 11"); b.e("s_lshl_b32 s18, s18, 11")
        arm += ["s_mov_b32 s32, s17", "s_mov_b32 s3, s18"]
    else:
        b.e(f"s_mul_i32 s16, s44, {64*LDW}"); b.e("s_add_u32 s16, s16, s38")
    if f"w{which}" in os.environ.get("HOT", ""): b.e("s_mov_b32 s16, s38")
    rot_next(b, which)
    b.e(f"s_add_u32 s42, s42, {STB}"); b.e(f"s_cmp_eq_u32 s42, {c['NW']*STB}"); b.e("s_cselect_b32 s42, 0, s42")
    fire = []
    for i in range(n):
        g = []
        if i:
            g.append("s_add_u32 m0, m0, 1024")
            if which in (1, 2): g.append(f"s_add_u32 s39, s39, {8*LDW}")
            elif which == 4: g.append(f"s_add_u32 s39, s39, s{3 if i == 4 else 32}")
            elif i == 7: g.append(f"s_add_u32 s39, s39, {16*LDW}")
        vo = WVB[which] + (0 if which in (1, 2) else (i & 1) if which == 4 else i % 7)
        fire.append(g + [f"buffer_load_dwordx4 v{vo}, s[12:15], s39 offen lds"])
    if f"w{which}" in os.environ.get("NOLD", ""): fire = [[x for x in g if not x.startswith("buffer_load")] + ["s_nop 0"] for g in fire]
    return b.l, arm, fire
def w_issue(a, which, pace=0, direct=False):
    prep, arm, fire = w_parts(which, direct)
    for x in prep + arm: a.e(x)
    for i, g in enumerate(fire):
        for x in g: a.e(x)
        if pace and (i % 4 == 3 or i == len(fire) - 1): a.e(f"s_waitcnt vmcnt({pace})")

def w_bases(a, which, dst, swn, ntl, t, t2):
    c = CFG[which]; RB = c["RB"]
    a.e(f"v_lshrrev_b32 v{t}, 2, v1")
    a.e(f"v_mul_u32_u24 v{dst}, {RB}, v{t}"); a.e(f"v_and_b32 v{t2}, 3, v1"); a.e(f"v_lshl_add_u32 v{dst}, v{t2}, 3, v{dst}")
    a.e(f"v_add_u32 v{dst}, {c['WB']}, v{dst}")
    if which == 3:
        a.e(f"s_mul_i32 s36, s{swn}, {7*32}"); a.e(f"v_add_u32 v{dst}, s36, v{dst}")
        a.e(f"v_bfe_u32 v{t}, v1, 4, 1"); a.e(f"v_lshlrev_b32 v{t}, 5, v{t}")
        a.e(f"s_cmp_eq_u32 s{swn}, 0"); a.e("s_cselect_b32 s36, 1, -1"); a.e(f"v_mul_lo_u32 v{t}, v{t}, s36")
        a.e(f"v_sub_u32 v{dst+1}, v{dst}, v{t}"); a.e(f"v_add_u32 v{dst}, v{dst}, v{t}")
        return 2, lambda nt, kk, h: (nt & 1, (32 * kk + 16 * h) * RB + 32 * nt)
    if which == 4: a.e(f"v_and_b32 v{t}, 7, v{t}")
    else: a.e(f"v_bfe_u32 v{t}, v{t}, 1, 2")
    for nt in range(ntl - 1, -1, -1):
        a.e(f"s_mul_i32 s36, s{swn}, {ntl}"); a.e(f"s_add_u32 s36, s36, {nt}")
        a.e(f"v_xor_b32 v{t2}, s36, v{t}"); a.e(f"v_lshl_add_u32 v{dst+nt}, v{t2}, 5, v{dst}")
    return ntl, lambda nt, kk, h: (nt, (32 * kk + 16 * h) * RB)

def a_parts(which):
    c = CFG[which]; b = Rec()
    if which <= 2 and NX:
        b.e("s_and_b32 s42, s48, 7"); b.e("s_lshl_b32 s42, s42, 14"); b.e("s_lshr_b64 s[48:49], s[48:49], 4")
    b.e("s_add_u32 s19, s41, s42")
    arm = ["s_mov_b32 m0, s19", "s_mov_b32 s39, s16"]; fire = []
    if which == 2:
        b.e(f"s_mul_i32 s16, s44, {8*PITCH}"); b.e("s_add_u32 s16, s16, s38")
        b.e("s_lshr_b32 s45, s44, 2"); b.e("s_xor_b32 s45, s45, s94"); b.e("s_and_b32 s45, s45, 1"); b.e("s_lshl_b32 s45, s45, 13"); b.e("s_add_u32 s16, s16, s45")
        b.e("s_lshr_b32 s45, s44, 3"); b.e("s_lshl_b32 s45, s45, 4"); b.e("s_add_u32 s45, s45, 16")
        b.e("s_sub_u32 s46, 0, s45"); b.e("s_bitcmp1_b32 s44, 2"); b.e("s_cselect_b32 s45, s45, s46"); b.e("s_add_u32 s16, s16, s45")
        step = PITCH
    elif which == 4:
        for lw in range(2):
            if TAB: b.e(f"v_readlane_b32 s{16+lw}, v{TV+1+lw}, s44")
            else: kb4(b, 16 + lw, lw); spread(b, 16 + lw, 16 + lw)
        for lw in range(2): b.e(f"s_add_u32 s{16+lw}, s{16+lw}, s38")
        arm.append("s_mov_b32 s40, s17")
        for i in range(4):
            for lw in range(2):
                fire.append((["s_add_u32 m0, m0, 1024"] if i or lw else []) + ([f"s_add_u32 s{39+lw}, s{39+lw}, {c['KBT']*2048}"] if i else []) +
                            [f"buffer_load_dwordx4 v2, s[12:15], s{39+lw} offen {SC} lds"])
    elif which == 3 and TAB:
        b.e(f"v_readlane_b32 s16, v{TV}, s44"); b.e("s_add_u32 s16, s16, s38"); step = c['KBT'] * 2048
    else:
        b.e("s_lshr_b32 s45, s44, 2"); b.e("s_lshl_b32 s45, s45, 14"); b.e("s_and_b32 s16, s44, 3"); b.e("s_lshl_b32 s16, s16, 11")
        b.e("s_add_u32 s16, s16, s45"); b.e("s_add_u32 s16, s16, s38"); step = c['KBT'] * 2048
    if f"a{which}" in os.environ.get("HOT", ""):
        b.e("s_mov_b32 s16, s38")
        if which == 4: b.e("s_add_u32 s17, s38, 1024")
    for i in range(4 if which != 4 else 0):
        fire.append((["s_add_u32 m0, m0, 2048", f"s_add_u32 s39, s39, {step}"] if i else []) + [f"buffer_load_dwordx4 v2, s[12:15], s39 offen {SC} lds"])
        fire.append([f"buffer_load_dwordx4 v2, s[12:15], s39 offen offset:1024 {SC} lds"])
    rot_next(b, which)
    if not (which <= 2 and NX):
        b.e(f"s_add_u32 s42, s42, 16384"); b.e(f"s_cmp_eq_u32 s42, {c['NA']*16384}"); b.e("s_cselect_b32 s42, 0, s42")
    if f"a{which}" in os.environ.get("NOLD", ""): fire = [[x for x in g if not x.startswith("buffer_load")] + ["s_nop 0"] for g in fire]
    return b.l, arm, fire
def a_issue(a, which):
    prep, arm, fire = a_parts(which)
    for x in prep + arm + sum(fire, []): a.e(x)
SUBS = {}
def call_issue(a, issue, which):
    nm = f"SUB_{issue.__name__}_{which}"; SUBS[nm] = (issue, which)
    a.e(f"s_call_b64 s[76:77], {nm}")
def emit_subs(a):
    for nm, f in SUBX.items(): a.e(f"SUB_{nm}:"); f(a); a.e("s_setpc_b64 s[76:77]")
    for nm, (issue, which) in SUBS.items():
        a.e(f"{nm}:"); issue(a, which); a.e("s_setpc_b64 s[76:77]")
def ld_steps(a, which, N, per, issue, npre, rate=2, plan={}, lo=0, hi=None, last=None, hold=(), sched=None, armed=False):
    NS = CFG[which]["NS"]
    prep, arm, fire = (w_parts if issue is w_issue else a_parts)(which); h = max(1, per * HSPLIT // 8)
    plan = {b: (x if isinstance(x, list) else [x]) for b, x in plan.items()}
    q = [s_ for s_ in range(npre) for _ in range(per)]
    def after(tag):
        if issue is w_issue and which == 4 and isinstance(tag, int) and tag < npre: tag = npre - 1
        return len(q) - 1 - max(i for i, x in enumerate(q) if x == tag)
    issued = npre; steps = []
    for b in range(NS):
        acts = plan.get(b, []); was = {}
        def do(pos):
            for n_, act in enumerate(acts):
                if act[0] != pos: continue
                if act[1] is not None: was[n_] = after(act[1])
                q.extend([act[4]] * act[3])
        do(True)
        k = 0
        if (b > 0 or (sched is not None and issue is a_issue)) and b not in hold:
            k = max(0, min(rate, min(NS, b - 1 + N) - issued)) if sched is None else sched[b]
        assert k or not any(x[0] == "mid" for x in acts)
        for j in range(k):
            q.extend([issued] * h)
            if j == 0: do("mid")
            q.extend([issued] * (per - h)); issued += 1
        do(False)
        w = after(b); assert w <= 63
        if which == 3 and b == 0: w = 63
        steps.append((k, w, b if acts else None, tuple(sorted(was.items())), issued < NS))
    def em(l):
        for x in l:
            a.e(x)
            if x == "s_barrier" and os.environ.get("JIT"): mstamp(a)
    F1, F2 = sum(fire[:h], []), sum(fire[h:], [])
    lprep = prep
    if len(prep) > 8:
        nm = f"PREP_{issue.__name__}_{which}"; SUBS[nm] = ((lambda a_, w_, l=prep: [a_.e(x) for x in l]), which)
        prep = [f"s_call_b64 s[76:77], {nm}"]
    if lo == 0 and npre < NS and not armed: em(prep + arm)
    i = lo; HI = NS if hi is None else hi
    while i < HI:
        j = i
        while j < HI and steps[j] == steps[i]: j += 1
        k, w, ab, was, more = steps[i]; n = j - i; was = dict(was)
        def run(pos):
            for n_, act in enumerate(plan.get(ab, [])):
                if act[0] != pos: continue
                if n_ in was: a.e(f"s_waitcnt vmcnt({was[n_]})")
                act[2]()
        tail = [f"s_waitcnt vmcnt({w})", "s_barrier"]
        if n > 2 and k == 1:
            em(F1); a.e("s_mov_b32 s43, 1"); L = a.lab("ld"); a.e(f"{L}:")
            em(lprep + F2 + arm + tail + F1)
            a.e("s_add_u32 s43, s43, 1"); a.e(f"s_cmp_lt_u32 s43, {n}"); a.e(f"s_cbranch_scc1 {L}")
            em(prep + F2 + arm + tail)
        else:
            for r in range(n):
                run(True)
                for jj in range(k):
                    nxt = more or jj < k - 1
                    em(F1)
                    if jj == 0: run("mid")
                    em((prep if nxt else []) + F2 + (arm if nxt else []))
                run(False)
                em(tail)
        i = j
    if hi is not None: return
    if which == 4:
        if issue is a_issue: a.e("s_cmp_eq_u32 s60, 1"); a.e("s_cbranch_scc1 K_fin")
        elif hold is HOLD: a.e("s_branch K_fin"); return
        if not RPL: r_pre(a)
    TF = os.environ.get("TF", "1") == "1" and issue is a_issue and which == 3
    if last and not TF: last()
    late = os.environ.get("TLATE", "0") == "1"
    if late: a.e("s_barrier")
    if issue is a_issue and W4POS == f"{which}C":
        X = a.lab("tw4"); a.e("s_cmp_lg_u32 s60, 0"); a.e(f"s_cbranch_scc1 {X}"); touch(a, B_W4, 7 * MB, 200); a.e(f"{X}:")
    if not late: a.e("s_barrier")
    if TF: last()

RK = int(os.environ.get("RK", "7")); assert RK == 0 or C0PUB <= RK <= STQ
PA2 = int(os.environ.get("PA2", "1")); PBB = int(os.environ.get("PBB", "2")); PC0 = int(os.environ.get("PC0", "4"))
HOLD = eval(os.environ.get("HOLD", "[2,3,4]"))
KAD = int(os.environ.get("KAD", "1"))
WA = eval(os.environ.get("WA", "(1,2)"))
def keep(a, js, get):
    a.e("s_and_b32 s36, s30, 1"); a.e("s_lshl_b32 s36, s36, 12"); a.e(f"s_add_u32 s36, s36, {CFG[1]['WB'] + min(js)*8192}"); a.e("v_add_u32 v6, s36, v2")
    for n_, j in enumerate(js):
        for i in range(4):
            R = vr(16 + 16 * n_ + 4 * i, 4); o = (j - min(js)) * 8192 + i * 1024
            a.e(f"ds_read_b128 {R}, v6 offset:{o}" if get else f"ds_write_b128 v6, {R} offset:{o}")
    a.e("s_waitcnt lgkmcnt(0)")
def a_loader(a, which):
    c = CFG[which]
    if which <= 2:
        plan = side_jobs(a, 1) if which == 1 else {}
        if which == 1 and "1" in DP: mstamp(a); a.e(f"s_sleep {os.environ.get('SJD', '30')}")
        else: mstamp(a); a.e("s_barrier")
        mstamp(a)
        for b in sorted(plan):
            for act in (plan[b] if isinstance(plan[b], list) else [plan[b]]):
                if act[1] is not None: a.e("s_waitcnt vmcnt(0)")
                act[2]()
        if which == 1:
            a.e("s_cmp_lg_u32 s30, 4"); a.e("s_cbranch_scc1 AL_nw"); a.e("s_cmp_eq_u32 s60, 0"); a.e("s_cbranch_scc1 AL_nw")
            a.e(f"s_add_u32 s54, s55, {(fso(ST_G3) - LSTR) & 0xffffffff:#x}"); a.e("s_add_u32 s53, s54, s92"); a.e("v_mov_b32 v9, s53")
            a.e("s_add_u32 s53, s53, 128"); a.e("v_writelane_b32 v9, s53, 1")
            a.e("s_add_u32 s53, s54, s93"); a.e("v_writelane_b32 v9, s53, 2"); a.e("s_add_u32 s53, s53, 128"); a.e("v_writelane_b32 v9, s53, 3")
            poll_core(a, 8, [9], 15, cnt=8)
            a.e("AL_nw:")
            if WA: keep(a, WA, True)
        if which == 2 and W33 > 1: call(a, third_late)
        if which == 2: a.e("s_waitcnt vmcnt(0)")
        a.e("s_barrier")
        if which == 1 and "p" not in os.environ.get("FO", "1pd"): late_park(a)
        call(a, after_g1 if which == 1 else after_g2)
        return
    a.e("s_and_b32 s35, s30, 1")
    if which == 2:
        hs_srd(a, 12)
        a.e("s_lshl_b32 s38, s28, 11"); a.e("s_add_u32 s38, s38, 16384"); a.e(f"s_mul_i32 s36, s35, {4*PITCH}"); a.e("s_add_u32 s38, s38, s36")
    else:
        lsrd(a, 12, c["A"], XSZ if which != 4 else H2SZ)
        a.e(f"s_mul_i32 s38, s35, {4*c['KBT']*2048}")
        if which == 4: a.e(f"s_mul_i32 s36, s31, {7*16384}"); a.e("s_add_u32 s38, s38, s36")
    a.e("s_lshl_b32 s41, s35, 13"); a.e("s_mov_b32 s42, 0"); rot_init(a, which)
    assert c["NA"] == 3 or which == 3
    prep, arm, fire = a_parts(which)
    if which == 4:
        flag_addr(a, 9, ST_G3A); flag_addr(a, 10, ST_G3B); flag_addr(a, 12, ST_G3)
        a.e("v_mov_b32 v13, 1"); a.e("s_and_b32 s51, s30, 1"); a.e("s_lshl_b32 s51, s51, 30")
        def signal(r): a.e("s_mov_b64 exec, 1"); a.e(f"buffer_atomic_add v13, v{r}, s[56:59], s51 offen {SC}"); a.e("s_mov_b64 exec, -1")
        a.e("s_lshl_b32 s54, s60, 2"); a.e("s_add_u32 s54, s54, 4"); lds_spin(a, LW + 64, "s54", 14, nap=2)
        signal(9)
        if not PA2: poll_core(a, 8, [9], 1, cnt=8)
        mstamp(a)
        plan = {6 - L4: ("mid", None, lambda: flag_try(a, 11, 10), 1, "f"), 8 - L4: ("mid", "f", lambda: flag_check(a, 11, 10, 8), 0, None),
                13 - L4: ("mid", None, lambda: flag_try(a, 11, 12), 1, "g"), 15 - L4: ("mid", "g", lambda: flag_check(a, 11, 12, 8), 0, None)}
        plan = {k_: [x] for k_, x in plan.items()}
        if PA2:
            plan[1] = [(False, None, lambda: flag_try(a, 8, 9), 1, "a")]
            plan[2] = [(True, "a", lambda: flag_check(a, 8, 9, 8), 0, None)]
        if DP:
            a.e("v_xor_b32 v15, 128, v12")
            plan[20] = [("mid", None, lambda: flag_try(a, 11, 15), 1, "h")]; plan[22] = [("mid", "h", lambda: flag_check(a, 11, 15, 8), 0, None)]
        if int(os.environ.get("OT", "0")) >= 3:
            def ot():
                a.e(f"s_load_dwordx2 s[20:21], s[0:1], {D_OUT}"); a.e(f"s_mul_i32 s22, s60, {4*MB}"); a.e("s_mov_b32 s23, 0x20000"); a.e("s_lshl_b32 s36, s28, 18"); a.e("s_lshl_b32 s37, s29, 11")
                a.e("s_add_u32 s36, s36, s37"); a.e("s_waitcnt lgkmcnt(0)")
                a.e("s_mov_b64 exec, 1"); a.e(f"buffer_load_dword v16, v2, s[20:23], s36 offen {SC}"); a.e("s_mov_b64 exec, -1")
            plan.setdefault(int(os.environ["OT"]) % 100, []).append((False, None, ot, 1, "o"))
        plan.setdefault(PBB + 1, []).insert(0, (True, None, lambda: signal(10), 1, "s"))
        plan.setdefault(PC0 + 2, []).insert(0, (True, None, lambda: signal(12), 1, "s"))
        a.e("s_mov_b32 s44, 3")
        ld_steps(a, which, 3, 8, a_issue, 3, plan=plan, last=(lambda: keep(a, WA, False)) if WA and not KAD else None)
        if WA and KAD: keep(a, WA, False)
        return
    if which == 3:
        mask, cnt = flag_addr(a, 9, ST_G2)
        def wait2():
            if W33: call(a, third_put)
            elif B0E > 1: a.e(f"s_sleep {B0E}")
            poll_core(a, 8, [9], mask, cnt=cnt); mstamp(a); mstamp(a)
            if W3H: a.e("s_add_u32 s54, s60, 1"); lds_set(a, LW + 60, "s54", 10)
        N3 = 2 if "3" in DP else 1
        a.e(f"s_mov_b32 s44, {N3}"); a.e(f"s_mov_b32 s42, {16384*N3}")
        plan = side_jobs(a, 3)
        if os.environ.get("P30", "0") == "1":
            def wait0(): own_wait(a, ST_G2, False, 14); wait2()
            plan[0] = (True, None, wait0, 0, None)
            ld_steps(a, which, 3, 8, a_issue, 1, plan=plan, sched=[int(os.environ.get("P3N", "1")), 2 - int(os.environ.get("P3N", "1"))] + [1] * 13 + [0]); return
        plan[1] = (True, None, wait2, 0, None)
        PZ3 = int(os.environ.get("PZ3", "0"))
        if PZ3:
            a.srd(84, 4, 32 * MB, off=216 * MB)
            a.e("s_cmp_eq_u32 s60, 0"); a.e("s_cselect_b32 s86, s86, 0")
            for i in range(4): a.e(f"v_mov_b32 v{216+i}, -1")
            a.e("s_lshl_b32 s88, s2, 1"); a.e("s_and_b32 s50, s30, 1"); a.e("s_add_u32 s88, s88, s50"); a.e(f"s_mul_i32 s88, s88, {PZ3*12*1024}")
            def pz():
                for i in range(PZ3): a.e(f"buffer_store_dwordx4 v[216:219], v2, s[84:87], s88 offen offset:{i*1024} {SC}")
                a.e(f"s_add_u32 s88, s88, {PZ3*1024}")
            for b in range(2, 14):
                p_ = plan.get(b, []); p_ = p_ if isinstance(p_, list) else [p_]
                plan[b] = p_ + [(False, None, pz, PZ3, "z")]
        if V3:
            def w1_():
                X = a.lab("w1"); a.e("s_cmp_lg_u32 s60, 0"); a.e(f"s_cbranch_scc1 {X}"); a.e(f"s_sleep {B0E}"); poll_core(a, 8, [9], mask, cnt=cnt); a.e(f"{X}:")
                if int(os.environ.get("V3D", "0")): a.e("s_sleep " + os.environ["V3D"])
                mstamp(a); mstamp(a)
            def test(a):
                L = a.lab("sp"); D = a.lab("sq")
                a.e("s_add_u32 s47, s47, s41"); a.e("v_add_u32 v10, s47, v2"); a.e("s_mov_b32 s53, 0"); a.e("s_mov_b32 s34, m0")
                a.e(f"{L}:")
                for i in range(8): a.e(f"ds_read_b32 v{16+i}, v10 offset:{1024*i}")
                a.e("s_waitcnt lgkmcnt(0)")
                a.e("v_or3_b32 v16, v16, v17, v18"); a.e("v_or3_b32 v19, v19, v20, v21"); a.e("v_or3_b32 v16, v16, v22, v23"); a.e("v_bitop3_b32 v16, v16, v19, 1 bitop3:0xa8")
                a.e("v_cmp_ne_u32 vcc, 0, v16"); a.e(f"s_cbranch_vccz {D}")
                a.e(f"v_readlane_b32 s36, v{TV}, s46"); a.e("s_mov_b32 m0, s47"); a.e("s_add_u32 s36, s36, s38")
                for i in range(4):
                    if i: a.e("s_add_u32 m0, m0, 2048"); a.e("s_add_u32 s36, s36, 65536")
                    for k in range(2): a.e(f"buffer_load_dwordx4 v2, s[12:15], s36 offen offset:{1024*k} {SC} lds")
                a.e("s_waitcnt vmcnt(0)")
                a.e("s_add_u32 s53, s53, 1"); a.e("s_cmp_lt_u32 s53, s61"); a.e(f"s_cbranch_scc1 {L}"); a.e("s_mov_b32 s61, 0")
                a.e(f"{D}:"); a.e("s_mov_b32 m0, s34")
            def tst(b):
                def f():
                    X = a.lab("nt"); a.e("s_cmp_eq_u32 s60, 0"); a.e(f"s_cbranch_scc1 {X}")
                    a.e(f"s_mov_b32 s46, {b}"); a.e(f"s_mov_b32 s47, {(b % 3) * 16384}"); a.e("s_setprio 2"); call(a, test); a.e("s_setprio 0"); a.e(f"{X}:")
                return f
            plan = {k_: (x if isinstance(x, list) else [x]) for k_, x in plan.items()}
            plan[1] = [(True, None, w1_, 0, None)]
            plan.setdefault(V3 - 1, []).append((False, None, lambda: flag_try(a, 8, 9), 1, "g"))
            plan.setdefault(V3, []).insert(0, (True, "g", lambda: flag_check(a, 8, 9, cnt), 0, None))
            for b in range(1, V3 + 1): plan.setdefault(b, []).append((False, b, tst(b), 0, None))
        if W4POS.startswith("S"):
            def tw(i0, i1):
                def f():
                    a.e("s_mov_b64 s[48:49], s[74:75]"); a.e(f"s_mov_b32 s50, {7*MB}"); a.e("s_mov_b32 s51, 0x20000")
                    a.e("s_lshl_b32 s45, s2, 1"); a.e("s_and_b32 s46, s30, 1"); a.e("s_add_u32 s45, s45, s46"); a.e(f"s_mul_i32 s45, s45, {14*1024}")
                    a.e("s_cmp_eq_u32 s60, 0"); a.e("s_cselect_b64 exec, -1, 0")
                    for i in range(i0, i1): a.e(f"s_add_u32 s46, s45, {i*1024}"); a.e(f"buffer_load_dwordx4 v[176:179], v2, s[48:51], s46 offen")
                    a.e("s_mov_b64 exec, -1")
                return f
            for b_, (pos_, i0, i1) in eval(W4POS[1:]).items():
                p_ = plan.get(b_, []); p_ = p_ if isinstance(p_, list) else [p_]
                plan[b_] = p_ + [(pos_, None, tw(i0, i1), i1 - i0, "t")]
        if os.environ.get("A3L", "0") == "1":
            def w1_():
                X = a.lab("w1"); a.e("s_cmp_lg_u32 s60, 0"); a.e(f"s_cbranch_scc1 {X}"); poll_core(a, 8, [9], mask, cnt=cnt); lds_set(a, LW + 60, 1, 10); a.e(f"{X}:")
            def w2_(): poll_core(a, 8, [9], mask, cnt=cnt, nap=2); mstamp(a); mstamp(a)
            plan[1] = (True, None, w1_, 0, None)
            p2 = plan[2] if isinstance(plan[2], list) else [plan[2]]
            plan[2] = [(True, None, w2_, 0, None)] + p2
            ld_steps(a, which, 3, 8, a_issue, N3, plan=plan, hold=(1,)); return
        ld_steps(a, which, c["NA"], 8, a_issue, N3, plan=plan, sched=eval(os.environ.get("A3S", "None")), last=lambda: r_pre1(a)); return
    assert 0

def side_jobs(a, which):
    c = CFG[which]; plan = {}
    sv = 184 if which == 3 and WA else 16; S, Q, mean, rs, tt, ad, fa, fr = 216, 217, 218, 219, 220, 221, 222, 223
    cv = 180 if which == 3 else 24; N = c["LDW"] // 2; co_ = 224; HB = c["TN16"] * 32
    lg = 3 if which == 1 else 5
    def cld(k0=0, k1=4):
        if k0 == 0:
            a.srd(24, 4, 32 * N * 4, off=CSP[which])
            a.e("s_cmp_eq_u32 s60, 0"); a.e("s_cselect_b32 s26, s26, 0")
            if NOCS3 and which == 3: a.e("s_mov_b32 s26, 0")
            a.e("s_and_b32 s36, s30, 1"); a.e(f"s_mul_i32 s36, s36, {HB}"); a.e(f"s_mul_i32 s37, s29, {2*HB}"); a.e("s_add_u32 s37, s36, s37")
            a.e(f"v_lshrrev_b32 v{co_}, {lg}, v1"); a.e(f"v_mul_u32_u24 v{co_}, {N*4}, v{co_}")
            a.e(f"v_and_b32 v{cv-1}, {16*((1 << lg) - 1)}, v2"); a.e(f"v_add_u32 v{co_}, v{co_}, v{cv-1}")
        a.e("s_cmp_eq_u32 s60, 0"); a.e("s_cselect_b64 exec, -1, 0")
        for k in range(k0, k1):
            a.e(f"buffer_load_dwordx4 {vr(cv+4*(k if k < 9 else k - 8),4)}, v{co_}, s[24:27], s37 offen {SC}"); a.e(f"s_add_u32 s37, s37, {N*4*(64 >> lg)}")
        a.e("s_mov_b64 exec, -1")
    def piece(lines, l0=False):
        def f():
            X = a.lab("pc")
            if l0: a.e("s_cmp_lg_u32 s60, 0"); a.e(f"s_cbranch_scc1 {X}")
            for x in lines: a.e(x)
            if l0: a.e(f"{X}:")
        return f
    def cadd(k0, k1): return [f"v_add_f32 v{cv+h}, v{cv+h}, v{cv+4*k+h}" for k in range(k0, k1) for h in range(4)]
    def sw(op): return [f"v_mov_b32 v{cv+4+e}, v{cv+e}" for e in range(4)] + [f"{op} v{cv+e}, v{cv+4+e}" for e in range(4)] + cadd(1, 2)
    if which in (1, 3):
        cout = ["s_and_b32 s36, s30, 1", f"s_mul_i32 s36, s36, {HB}", f"s_add_u32 s36, s36, {CSO[which]}", f"v_add_u32 v{cv-1}, s36, v2",
                f"s_bfm_b64 exec, {HB//16}, 0", f"ds_write_b128 v{cv-1}, {vr(cv,4)}", "s_mov_b64 exec, -1", "s_waitcnt lgkmcnt(0)"]
    if which == 1:
        flag_addr(a, fa, ST_R2)
        def ld():
            flag_check(a, fr, fa, 16)
            lsrd(a, 20, oLNS, 2048); a.e("s_and_b32 s35, s30, 1"); a.e("s_lshl_b32 s35, s35, 10")
            a.e(f"buffer_load_dwordx4 {vr(sv,4)}, v2, s[20:23], s35 offen {SC}")
        fin = piece(["s_and_b32 s36, s30, 1", "s_lshl_b32 s36, s36, 10", f"s_add_u32 s36, s36, {LNSL}", f"v_add_u32 v{ad}, s36, v2", f"ds_write_b128 v{ad}, {vr(sv,4)}", "s_waitcnt lgkmcnt(0)"])
        a.e("s_lshl_b32 s53, s29, 7"); a.e(f"s_add_u32 s53, s53, {F_CS}"); a.e(f"v_mov_b32 v{fa+4}, s53")
        def cld1(): flag_check(a, fr + 4, fa + 4, 16); cld()
        work = cadd(1, 4) + [f"v_add_f32_dpp v{cv+e}, v{cv+e}, v{cv+e} row_ror:8 row_mask:0xf bank_mask:0xf" for e in range(4)] + \
               sw("v_permlane16_swap_b32") + sw("v_permlane32_swap_b32")
        plan = {2: (False, None, lambda: flag_try(a, fr + 4, fa + 4), 1, "e"), 5: [(False, "e", cld1, 4, "c"), (False, None, lambda: flag_try(a, fr, fa), 1, "f")],
                8: (False, "f", ld, 1, "d"), 15: [(False, None, piece(cout, 1), 0, None), (False, "d", fin, 0, None)]}
        plan[9] = (False, None, piece(work, 1), 0, None)
    if which == 3:
        flag_addr(a, fa, ST_G2S)
        a.e(f"v_lshlrev_b32 v{ad}, 3, v1")
        def ld(k0, n_=8):
            def f():
                if k0 == 0:
                    flag_check(a, fr, fa, 16)
                    lsrd(a, 20, oST2, 24576)
                    a.e("s_and_b32 s35, s30, 1"); a.e("s_lshl_b32 s35, s35, 9")
                for k in range(k0, k0 + n_):
                    if k % 4 == 0 or k == k0: a.e(f"s_add_u32 s36, s35, {(k >> 3) * 16384 + (k & 4) * 1024}")
                    a.e(f"buffer_load_dwordx2 {vr(sv+2*k,2)}, v{ad}, s[20:23], s36 offen offset:{(k&3)*1024} {SC}")
            return f
        b = Rec()
        for st_ in (8, 4, 2, 1):
            for k in range(2 * st_): b.e(f"v_add_f32 v{sv+k}, v{sv+k}, v{sv+2*st_+k}")
        o_ = sv + 4
        b.e(f"v_mul_f32 v{o_}, {f32(1/1024)}, v{sv}"); b.e(f"v_mul_f32 v{Q}, {f32(1/1024)}, v{sv+1}")
        b.e(f"v_fma_f32 v{Q}, -v{o_}, v{o_}, v{Q}"); b.e(f"v_max_f32 v{Q}, 0, v{Q}")
        ln_finish(b, o_, Q, rs, o_ + 1)
        b.e(f"v_mul_f32 v{o_+2}, {f32(GC1)}, v{rs}"); b.e(f"v_mul_f32 v{o_+3}, v{rs}, v{rs}")
        b.e(f"v_mul_f32 v{o_+3}, v{o_+3}, v{o_+2}"); b.e(f"v_mul_f32 v{o_+3}, {f32(0.044715)}, v{o_+3}")
        b.e("s_lshl_b32 s35, s35, 1"); b.e(f"s_add_u32 s35, s35, {LNSL}"); b.e(f"v_add_u32 v{tt}, s35, v2")
        b.e(f"ds_write_b128 v{tt}, {vr(o_,4)}"); b.e("s_waitcnt lgkmcnt(0)")
        def both(f, g):
            def h(): f(); g()
            return h
        if WA:
            plan = {2: (False, None, lambda: cld(0, 5), 5, "c"), 3: (False, None, lambda: cld(5, 9), 4, "c"),
                    5: [(False, "c", piece(cadd(1, 9), 1), 0, None), (False, None, lambda: cld(9, 16), 7, "e")], 6: (False, None, lambda: flag_try(a, fr, fa), 1, "f"),
                    7: (False, "e", piece(cadd(1, 8), 1), 0, None), 8: [(False, None, piece(sw("v_permlane32_swap_b32") + cout, 1), 0, None), (False, "f", ld(0, 4), 4, "d")],
                    9: (False, None, ld(4, 6), 6, "d"), 10: (False, None, ld(10, 6), 6, "d"),
                    12: (False, "d", piece(b.l[:16]), 0, None), 13: (False, None, piece(b.l[16:32]), 0, None), 14: (False, None, piece(b.l[32:]), 0, None)}
        elif os.environ.get("SJ3", "1") == "1":
            plan = {2: (False, None, lambda: cld(0, 3), 3, "c"), 3: (False, None, lambda: cld(3, 6), 3, "c"), 4: [(False, None, lambda: cld(6, 9), 3, "c"), (False, None, lambda: flag_try(a, fr, fa), 1, "f")],
                    6: [(False, "f", ld(0, 4), 4, "d"), (False, None, piece(cadd(1, 5), 1), 0, None)],
                    7: [(False, None, ld(4, 4), 4, "d"), (False, None, both(piece(cadd(5, 9), 1), lambda: cld(9, 12)), 3, "e")],
                    8: [(False, None, ld(8, 4), 4, "d"), (False, None, lambda: cld(12, 14), 2, "e")], 9: [(False, None, ld(12, 4), 4, "d"), (False, None, lambda: cld(14, 16), 2, "e")],
                    11: [(False, "e", piece(b.l[:16]), 0, None)], 12: [(False, None, piece(b.l[16:32]), 0, None), (False, None, piece(cadd(1, 4), 1), 0, None)],
                    13: [(False, None, piece(b.l[32:]), 0, None)], 14: (False, None, piece(cadd(4, 8), 1), 0, None), 15: (False, None, piece(sw("v_permlane32_swap_b32") + cout, 1), 0, None)}
        else:
            plan = {2: (False, None, cld, 4, "c"), 3: (False, None, lambda: cld(4, 9), 5, "c"),
                    5: [(False, "c", piece(cadd(1, 5), 1), 0, None), (False, None, lambda: flag_try(a, fr, fa), 1, "f")],
                    6: (False, None, both(piece(cadd(5, 9), 1), lambda: cld(9, 16)), 7, "e"),
                    7: (False, "f", ld(0), 8, "d"), 8: (False, None, ld(8), 8, "d"),
                    9: (False, "e", piece(cadd(1, 5), 1), 0, None), 10: (False, None, piece(cadd(5, 8), 1), 0, None), 11: (False, None, piece(sw("v_permlane32_swap_b32") + cout, 1), 0, None),
                    12: (False, "d", piece(b.l[:16]), 0, None), 13: (False, None, piece(b.l[16:32]), 0, None), 14: (False, None, piece(b.l[32:]), 0, None)}
    return plan

W2E = int(os.environ.get("W2E", "3"))
def w2_early(a):
    if W2E: w_setup(a, 2, pre=False); w1_slots(a, range(W2E), pace=8)
def w_loader(a, which):
    c = CFG[which]
    if which < 3:
        if which == 1: a.e("s_waitcnt vmcnt(0)")
        if which == 1 and "a" in STO: stouch(a, 3, 128 if "8" in STO else 64, 2); mstamp(a)
        if which == 1 and sum(SG): sb_init(a)
        sg(a, SG[2*which-2])
        if not (which == 1 and "1" in DP): a.e("s_barrier")
        sg(a, SG[2*which-1])
        if which == 1 and WE and WK:
            assert 8 not in WE or W3N == 1
            a.e("s_and_b32 s36, s30, 1"); a.e("s_lshl_b32 s36, s36, 12"); a.e(f"s_add_u32 s36, s36, {CFG[1]['WB'] + 7*8192}"); a.e("v_add_u32 v6, s36, v2")
            for j in WE:
                for i in range(4): a.e(f"ds_read_b128 {vr(WER[j][i],4)}, v6 offset:{(j-7)*8192+i*1024}")
            a.e("s_waitcnt lgkmcnt(0)")
        if which == 1 and "b" in STO: stouch(a, 3, 128 if "8" in STO else 64, 2); mstamp(a)
        if which == 2 and W33 > 1: call(a, third_late)
        if which == 2: a.e("s_waitcnt vmcnt(0)")
        a.e("s_barrier")
        if which == 1 and "p" not in os.environ.get("FO2", "1pd"): late_park(a)
        call(a, after_g1 if which == 1 else after_g2); mstamp(a)
        return
    args = (a, which, c["NW"], c["STB"] // 2048, w_issue, c["NPRE"], c["WR"])
    if which == 4:
        assert c["NW"] == 6 and c["WB"] == CFG[1]["WB"] + 3 * 8192
        a.e("s_cmp_eq_u32 s60, 1"); a.e("s_cbranch_scc1 WL_t1")
        H0 = eval(os.environ.get("H0", "()")); T0 = 24 + len(H0)
        ld_steps(*args, hi=T0, hold=H0)
        WT = eval(os.environ.get("WT", "[(11,12,9),(13,14,10),(3,4),(5,6,0),(7,8,1,2,15),()]"))
        if WE:
            WT = [tuple(j for j in l if j not in WE and j not in WA) for l in WT]
            def put(js):
                a.e(f"s_add_u32 s36, s41, {7*8192}"); a.e("v_add_u32 v6, s36, v2")
                for j in js:
                    for i in range(4): a.e(f"ds_write_b128 v6, {vr(WER[j][i],4)} offset:{(j-7)*8192+i*1024}")
        WD = eval(os.environ.get("WD", "()"))
        def some(js):
            def f():
                if js is WT[len(H0)]:
                    w_setup(a, 1, pre=False)
                    a.e("s_and_b32 s36, s99, 7"); a.e("s_cmp_eq_u32 s36, 3"); a.e("s_cselect_b64 s[50:51], 0, -1")
                for j in js:
                    if j in (9, 10) and js is not WT[5]:
                        a.e(f"s_add_u32 s39, s38, {j*64*2048}")
                        for i in range(4): a.e(f"buffer_load_dwordx4 {vr(16+16*(j-9)+4*i,4)}, v{WVB[1]}, s[12:15], s39 offen"); a.e("s_add_u32 s39, s39, 16384")
                    else:
                        if j in WD: a.e("s_mov_b64 exec, s[50:51]")
                        w1_slots(a, (j,), pace=8 if js is WT[5] else 0)
                        if j in WD: a.e("s_mov_b64 exec, -1")
            return f
        plan = {24 + i: (False, None, some(WT[i]), 4 * len(WT[i]), "w") for i in range(4) if WT[i]}
        assert not any(WT[:len(H0)])
        ld_steps(*args, plan=plan, lo=T0, hold=H0, last=(lambda: (some(WT[4])(), put([j for j in WE if j < 9 and not KAD]))) if WE else some(WT[4]))
        rg = [j for j in (9, 10) if j not in WT[5] and j not in WE]
        if WE: put([j for j in WE if j >= 9 or KAD]); a.e("s_waitcnt lgkmcnt(0)")
        if WD:
            a.e("s_cmp_lg_u32 s50, 0"); a.e("s_cbranch_scc1 WL_nd"); w1_slots(a, WD); a.e("WL_nd:")
        if rg:
            yg = [j for l in WT[:5] for j in l]; yg = len(yg) - 1 - max(yg.index(9), yg.index(10))
            a.e(f"s_add_u32 s36, s41, {9*8192}"); a.e("v_add_u32 v6, s36, v2"); a.e(f"s_waitcnt vmcnt({4*yg if os.environ.get('YG', '1') == '1' else 0})")
            for j in rg:
                for i in range(4): a.e(f"ds_write_b128 v6, {vr(16+16*(j-9)+4*i,4)} offset:{(j-9)*8192+i*1024}")
            a.e("s_waitcnt lgkmcnt(0)")
        some(WT[5])(); mstamp(a)
        a.e("s_branch NEXT")
        a.e("WL_t1:")
        ld_steps(*args, hold=HOLD)
        return
    plan = {}
    if "3" in DP:
        lsrd(a, 20, oX1P, XSZ)
        a.e(f"v_readlane_b32 s36, v{TV+3}, 1"); a.e("s_and_b32 s35, s30, 1"); a.e("s_lshl_b32 s46, s35, 18"); a.e("s_lshl_b32 s47, s35, 13"); a.e("s_add_u32 s47, s47, 16384")
        a.e("s_bfe_u32 s37, s36, 0x20002"); a.e("s_lshl_b32 s37, s37, 14"); a.e("s_and_b32 s36, s36, 3"); a.e("s_lshl_b32 s36, s36, 11"); a.e("s_add_u32 s46, s46, s36"); a.e("s_add_u32 s46, s46, s37")
        a.e("v_add_u32 v8, s47, v2")
        if W3E: w_issue(a, 3); args = args[:5] + (3,) + args[6:]
        def second():
            L = a.lab("sp"); D = a.lab("sq")
            a.e("s_mov_b32 s34, m0"); a.e("s_cmp_lg_u32 s60, 0"); a.e(f"s_cbranch_scc1 {L}a")
            lds_spin(a, LW + 60, 1, 6, nap=1)
            a.e(f"{L}a:"); a.e("s_mov_b32 s53, 0")
            if int(os.environ.get("S3D", "0")): a.e("s_sleep " + os.environ["S3D"])
            a.e(f"{L}:"); a.e("s_mov_b32 m0, s47"); a.e("s_mov_b32 s36, s46")
            for i in range(4):
                if i: a.e("s_add_u32 m0, m0, 2048"); a.e("s_add_u32 s36, s36, 65536")
                for k in range(2): a.e(f"buffer_load_dwordx4 v2, s[20:23], s36 offen offset:{1024*k} {SC} lds")
            a.e("s_waitcnt vmcnt(0)")
            for i in range(8): a.e(f"ds_read_b32 v{10+i}, v8 offset:{1024*i}")
            a.e("s_waitcnt lgkmcnt(0)")
            a.e("v_or3_b32 v10, v10, v11, v12"); a.e("v_or3_b32 v13, v13, v14, v15"); a.e("v_or3_b32 v10, v10, v16, v17"); a.e("v_bitop3_b32 v10, v10, v13, s60 bitop3:0xa8")
            a.e("v_cmp_ne_u32 vcc, 0, v10"); a.e(f"s_cbranch_vccz {D}"); a.e("s_sleep 1")
            a.e("s_add_u32 s53, s53, 1"); a.e("s_cmp_lt_u32 s53, s61"); a.e(f"s_cbranch_scc1 {L}"); a.e("s_mov_b32 s61, 0")
            a.e(f"{D}:"); a.e("s_mov_b32 m0, s34")
        plan[1] = (True, None, second, 8, "x")
    elif W33:
        plan[1] = (True, None, lambda: call(a, third_put), 0, None); args = args[:5] + (3,) + args[6:]
    elif W3H: plan[1] = (True, None, lambda: (a.e("s_add_u32 s54, s60, 1"), lds_spin(a, LW + 60, "s54", 6, nap=1)), 0, None)
    def sg3(n):
        def f():
            X = a.lab("st"); a.e("s_cmp_lg_u32 s60, 0"); a.e(f"s_cbranch_scc1 {X}"); sb(a, n); a.e(f"{X}:")
        return f
    for b_, n_ in eval(os.environ.get("SG3", "{}")).items(): plan[b_] = (False, None, sg3(n_), 0, None)
    RPW = int(os.environ.get("RPW", "16"))
    if RPW < 16: plan[RPW] = (False, None, lambda: call(a, r_pre0), 4, "r")
    def early(js):
        def f():
            a.e("s_mov_b64 s[20:21], s[68:69]"); a.e(f"s_mov_b32 s22, {2*MB}"); a.e("s_mov_b32 s23, 0x20000")
            a.e("s_and_b32 s36, s30, 1"); a.e("s_lshl_b32 s36, s36, 16"); a.e("s_lshl_b32 s37, s99, 7"); a.e("s_add_u32 s37, s37, s36")
            a.e("s_cmp_eq_u32 s60, 0"); a.e("s_cselect_b64 exec, -1, 0")
            for j in js:
                for i in range(4): a.e(f"s_add_u32 s36, s37, {j*64*2048 + i*16384}"); a.e(f"buffer_load_dwordx4 {vr(WER[j][i],4)}, v{WVB[1]}, s[20:23], s36 offen")
            a.e("s_mov_b64 exec, -1")
        return f
    if WE and not WK:
        for b_, js in eval(os.environ.get("WES", "{15: WE}")).items():
            p_ = plan.get(b_, []); plan[b_] = (p_ if isinstance(p_, list) else [p_]) + [(False, None, early(js), 4 * len(js), "e")]
    ld_steps(*args, plan=plan, last=(lambda: r_pre1(a)) if RPW == 16 else None)
WE = eval(os.environ.get("WE", "(9,10,7)")); WK = int(os.environ.get("WK", "1"))
WER = {9: [16, 20, 24, 28], 10: [32, 36, 40, 44], 7: [204, 208, 212, 216], 8: [220, 224, 200, 176]}
W3H = int(os.environ.get("W3H", "0")) or "3" in DP; W3E = int(os.environ.get("W3E", "1"))
W1L = int(os.environ.get("W1L", "3"))

B0E = int(os.environ.get("B0E", "6")); RPL = int(os.environ.get("RPL", "1")); RPC = int(os.environ.get("RPC", "1"))
LF1 = os.environ.get("LF1", "sc1"); LF2 = os.environ.get("LF2", "")
RES2 = 148; C2R = 200; SO3 = 238; RES4 = [172, 176, 180, 184, 188, 192, 196, 240]
def g_compute(a, which):
    c = CFG[which]
    WM, WN, MT, NT, KBT, NS, NA, NW, TN16, STB, WB = [c[k] for k in "WM WN MT NT KBT NS NA NW TN16 STB WB".split()]
    v = VA(6); nm = f"G{which}"
    lane = 1; l16 = 2
    t = v(); t2 = v(); pt = v(4, 2)
    NTILE = (0, 99, 29, 29, 33)[which]
    a_ = a
    if which != 3: a = Rec()
    if WN == 2: a.e("s_lshr_b32 s34, s30, 1"); a.e("s_and_b32 s35, s30, 1")
    else: a.e("s_mov_b32 s34, s30"); a.e("s_mov_b32 s35, 0")
    a0 = v(); w0 = v(4, 1); aa = v(); wa = v(4, 1); J = v(); G = v()
    a.e(f"v_and_b32 v{J}, 15, v{lane}"); a.e(f"v_lshrrev_b32 v{G}, 4, v{lane}")
    a.e(f"s_mul_i32 s37, s34, {MT}")
    a.e(f"s_mul_i32 s38, s{NTILE}, {TN16}"); a.e(f"s_mul_i32 s36, s35, {NT}"); a.e("s_add_u32 s38, s38, s36")
    acc = v(MT * NT * 4, 4); NF = MT + NT if which > 2 else 8
    fX = v(NF * 4, 4); fY = v(NF * 4, 4); tmp = v(); tp = v(4, 2)
    def A_(mt, nt): return acc + 4 * (mt * NT + nt)
    def SUBM(r): return f"{vr(r,2)} op_sel_hi:[1,0] neg_lo:[0,1] neg_hi:[0,1]"
    def MULR(r): return f"{vr(r,2)} op_sel:[0,1] op_sel_hi:[1,1]"
    if which in (2, 4):
        res = RES2
        a.e("s_lshr_b32 s36, s38, 1"); spread(a, 39, 36); a.e("s_lshl_b32 s36, s37, 16"); a.e("s_add_u32 s39, s39, s36")
    if which <= 2:
        AB = 164; LO = v(8, 1)
        def aload(b, kk):
            if which == 1: return [f"buffer_load_dwordx4 {vr(AB+16*b+8*kk+4*mt,4)}, v{LO+mt+(b&2)}, s[8:11], s44 offen offset:{(b&1)*2048+kk*1024} {LF1}" for mt in range(2)]
            return [f"buffer_load_dwordx4 {vr(AB+16*b+8*kk+4*mt,4)}, v{LO+mt}, s[8:11], s44 offen {LF2}" for mt in range(2)]
        def seq(pairs, s0):
            if which == 1: return [x for b, kk in pairs for x in aload(b, kk)]
            return ([f"s_mov_b32 s44, {s0}"] if s0 is not None else []) + [x for b, kk in pairs for x in aload(b, kk) + ["s_add_u32 s44, s44, 16384"]]
        def past(l): return [x + (SC if x.startswith("buffer") and SC not in x else "") for x in l]
        PR = [(i >> 1, i & 1) for i in range(7)]
        h = Rec()
        if which == 1:
            lsrd(h, 8, oX3, XSZ); OOB = MB
            for i in range(4): (h if i < 2 else a).e(f"v_add_u32 v{LO+i}, {(i & 1) * 65536 + (i >> 1) * 4096}, v{l16}")
            h.e("s_lshl_b32 s44, s30, 17")
            for i in range(1, 4): a.e(f"s_add_u32 s{44+i}, s44, {16384*i}")
        else:
            OOB = 0x40000000; LP = v(2, 1)
            h.srd(8, 4, 8 * GSTR + LSTR, off=LB0 + oHS)
            h.e(f"s_sub_u32 s47, s55, {LB0 + oSM}"); h.e("s_lshl_b32 s46, s30, 9"); h.e("s_add_u32 s47, s47, s46")
            h.e("s_add_u32 s45, s92, 2048"); h.e("s_cmp_eq_u32 s28, 0"); h.e(f"s_cselect_b32 s45, {OOB}, s45"); h.e("s_cmp_eq_u32 s30, 0"); h.e("s_cselect_b32 s45, s45, 0")
            a.e("s_sub_u32 s46, s93, 2048"); a.e("s_cmp_eq_u32 s28, 15"); a.e(f"s_cselect_b32 s46, {OOB}, s46"); a.e("s_cmp_eq_u32 s30, 3"); a.e("s_cselect_b32 s46, s46, 0")
            for q_, sh in enumerate((1, -1, 2, -2)):
                e_ = h if q_ == 0 else a
                e_.e(f"s_add_u32 s53, s47, {(-16 * sh) & 0xffffffff:#x}"); e_.e(f"v_add_u32 v{LO+2*q_}, s53, v{a0}"); e_.e(f"v_add_u32 v{LO+2*q_+1}, 256, v{LO+2*q_}")
                R_ = LO + 2 * q_ + (0 if sh > 0 else 1)
                e_.e(f"v_add_u32 v{LP}, s{45 if sh > 0 else 46}, v{R_}")
                e_.e(f"v_cmp_gt_u32 vcc, {sh}, v{J}" if sh > 0 else f"v_cmp_le_u32 vcc, {16 + sh}, v{J}"); e_.e(f"v_cndmask_b32 v{R_}, v{R_}, v{LP}, vcc")
            for k in range(2): a.e(f"v_mov_b32 v{LP+k}, v{LO+k}")
        EARLY = str(which) in DP and str(which) in os.environ.get("EP", "2")
        F0 = eval(os.environ.get("F0", "(0,4,4)"))[which]
        try0 = past(seq(PR[:2], 0)) + seq(PR[2:F0], None)
        for x in h.l: a_.e(x)
        if EARLY and which == 1:
            for x in try0: a_.e(x)
    else:
        a.e(f"s_mul_i32 s36, s34, {MT*2048}"); a.e(f"v_add_u32 v{a0}, s36, v{l16}")
    nwr, wpos = w_bases(a, which, w0, 35, NT, t, t2)
    if which <= 2:
        for x in a.l: a_.e(x)
    a = a_
    if which == 3 and not B0E: publish(a, ST_G2S, 4, pt, ctr=48)
    if which == 2:
        a.e(f"s_lshl_b32 s36, s37, 8"); a.e(f"s_add_u32 s36, s36, {LNSL}"); a.e(f"v_lshlrev_b32 v{t2}, 4, v{J}"); a.e(f"v_add_u32 v{t2}, s36, v{t2}")
        for mt in range(MT): a.e(f"ds_read_b64 {vr(fX+2*mt,2)}, v{t2} offset:{mt*256}")
        a.e("s_waitcnt vmcnt(4) lgkmcnt(0)")
        if EARLY:
            if int(os.environ.get("G2D", "6")): a.e("s_sleep " + os.environ.get("G2D", "6"))
            if int(os.environ.get("G2D0", "2")): a.e("s_cmp_lg_u32 s60, 0"); a.e("s_cbranch_scc1 G2_nd"); a.e("s_sleep " + os.environ.get("G2D0", "2")); a.e("G2_nd:")
            for x in try0: a.e(x)
        for mt in range(MT):
            for p in range(NT // 2):
                for e in range(4):
                    X = A_(mt, 2 * p) + 2 * e
                    unpack(a, X, X + 1, res + (mt * (NT // 2) + p) * 4 + e)
                    a.e(f"v_pk_add_f32 {vr(X,2)}, {vr(X,2)}, {SUBM(fX+2*mt)}"); round2(a, X, X + 1, tmp)
                    a.e(f"v_pk_mul_f32 {vr(X,2)}, {vr(X,2)}, {MULR(fX+2*mt)}"); round2(a, X, X + 1, tmp)
    elif which == 1:
        for i in range(0, MT * NT * 4, 2): a.e(f"v_pk_mov_b32 {vr(acc+i,2)}, 0, 0")
    RX = [180, 184, 188, 192, 196, 230, 234, 248]
    def last_res():
        b0 = Rec()
        for i in range(2):
            b0.e(f"s_add_u32 s36, s40, {i*65536}")
            for p in range(2):
                b0.e(f"buffer_load_dwordx4 {vr(RX[2*(2*i+p)],4)}, v{l16}, s[84:87], s36 offen offset:{p*1024} {SC}")
                b0.e(f"buffer_load_dwordx4 {vr(RX[2*(2*i+p)+1],4)}, v{l16}, s[88:91], s36 offen offset:{p*1024} {SC}")
        return b0.l
    def reads(F, kk):
        o = []
        for mt in range(MT): o.append(f"ds_read_b128 {vr(F+4*mt,4)}, v{aa} offset:{mt*256+kk*8192 if which == 2 else mt*2048+kk*1024}")
        for nt in range(NT):
            for h in range(2):
                r, imm = wpos(nt, kk, h)
                o.append(f"ds_read_b64_tr_b16 {vr(F+4*(MT+nt)+2*h,2)}, v{wa+r} offset:{imm}")
        NR = os.environ.get("NOREAD")
        if NR == "N": o = []
        if NR == "A": o = o[MT:]
        if NR == "W": o = o[:MT]
        if NR == "H": o = o[::2]
        if NR == "X": o = o + o[:2]
        if NR == "XX": o = o + o[:MT]
        return o
    def mix(rd, ex):
        rd = list(rd)
        for i, x in enumerate(ex): rd.insert(min(len(rd), (i + 1) * len(rd) // (len(ex) + 1)), x)
        return rd
    def mfmas(F, rd, tail=()):
        n = MT * NT; k = 0; tot = len(rd); span = max(1, n * 3 // 4); done = 0; tail = list(tail); per = -(-len(tail) // max(1, n - span))
        OR = os.environ.get("ORDER", "2")
        order = {"0": [(nt, mt) for nt in range(NT) for mt in range(MT)],
                 "1": [(nt, mt) for mt in range(MT) for nt in range(NT)],
                 "2": [(nt, mt if nt % 2 == 0 else MT - 1 - mt) for nt in range(NT) for mt in range(MT)],
                 "3": [(nt if mt % 2 == 0 else NT - 1 - nt, mt) for mt in range(MT) for nt in range(NT)]}[OR]
        for nt, mt in order:
            if True:
                cc = acc + 4 * (mt * NT + nt)
                if str(which) not in os.environ.get("NOMF", ""): a.e(f"v_mfma_f32_16x16x32_bf16 {vr(cc,4)}, {vr(F+4*(MT+nt),4)}, {vr(F+4*mt,4)}, {vr(cc,4)}")
                k += 1
                while rd and done < (tot * k + span - 1) // span: a.e(rd.pop(0)); done += 1
                if k >= span and k < n:
                    for _ in range(min(per, len(tail))): a.e(tail.pop(0))
        assert not rd and not tail
    so = SO3 if which == 3 else a0; cs = fX; lns = fX + 4 * NT; G4W = 240; EA = 244
    def ep_setup(b):
        if which in (1, 3):
            assert which == 1 or (fY <= C2R and C2R + 24 <= fY + 4 * NF)
            b.e(f"s_mul_i32 s36, s35, {NT*64}"); b.e(f"s_add_u32 s36, s36, {CSO[which]}"); b.e(f"v_lshlrev_b32 v{t}, 4, v{G}"); b.e(f"v_add_u32 v{t}, s36, v{t}")
            b.e(f"s_lshl_b32 s36, s37, 8"); b.e(f"s_add_u32 s36, s36, {LNSL + (8 if which == 1 else 0)}"); b.e(f"v_lshlrev_b32 v{t2}, 4, v{J}"); b.e(f"v_add_u32 v{t2}, s36, v{t2}")
        if which == 3:
            lsrd(b, 16, oH2, H2SZ)
            b.e(f"s_mul_i32 s39, s37, {224*1024}")
            for P in range(4):
                b.e("s_lshr_b32 s36, s38, 1"); b.e(f"s_add_u32 s36, s36, {P}"); spread(b, 44 + P, 36); b.e(f"s_add_u32 s{44+P}, s{44+P}, s39")
            w_bases(b, 4, G4W, 35, 4, tp, tp + 1)
            b.e("s_lshl_b32 s38, s33, 3"); b.e("s_lshl_b32 s36, s35, 2"); b.e("s_add_u32 s38, s38, s36")
            b.e("s_lshr_b32 s36, s38, 1"); spread(b, 39, 36); b.e("s_lshl_b32 s36, s37, 16"); b.e("s_add_u32 s39, s39, s36")
            b.e("s_lshl_b32 s40, s31, 17"); b.e("s_add_u32 s40, s40, s39")
            b.e("s_xor_b32 s41, s31, 1"); b.e("s_lshl_b32 s41, s41, 17"); b.e("s_add_u32 s41, s41, s39")
            lsrd(b, 84, oX3, XSZ); lsrd(b, 88, oX1P, XSZ)
            b.e("s_lshl_b32 s36, s37, 1"); b.e("s_add_u32 s36, s36, s35"); b.e("s_lshl_b32 s36, s36, 10"); b.e(f"v_add_u32 v{EA}, s36, v{l16}")
            b.e(f"v_mov_b32 v{EA+1}, 1"); b.e(f"v_mov_b32 v{EA+2}, {LW+64}")
            b.e(f"v_lshrrev_b32 v{so}, 1, v{G}"); b.e(f"v_lshlrev_b32 v{so}, 8, v{so}"); b.e(f"v_lshl_add_u32 v{so}, v{J}, 4, v{so}")
            b.e(f"v_and_b32 v{tmp}, 1, v{G}"); b.e(f"v_lshl_add_u32 v{so}, v{tmp}, 3, v{so}")
        if which == 1:
            lsrd(b, 16, oHS, XSZ)
            b.e(f"v_lshlrev_b32 v{so}, 11, v{G}"); b.e(f"v_lshl_add_u32 v{so}, v{J}, 4, v{so}")
            b.e("s_lshl_b32 s39, s38, 13"); b.e("s_lshl_b32 s36, s37, 8"); b.e("s_add_u32 s39, s39, s36"); b.e("s_add_u32 s40, s39, 16384")
            b.e("s_lshl_b32 s36, s29, 1"); spread(b, 41, 36); b.e("s_lshl_b32 s36, s37, 16"); b.e("s_add_u32 s41, s41, s36")
        if which == 2: lsrd(b, 16, oX1P, XSZ)
    def cost(x): return sum(8 if y.startswith("ds_") else 4 for y in x.split("\n"))
    def group(F, rd, r0, ex, fixed={}, zero=False):
        n = MT * NT; ex = [x if isinstance(x, tuple) else (x, -1) for x in ex]; done = 0
        order = [(nt, mt if nt % 2 == 0 else MT - 1 - mt) for nt in range(NT) for mt in range(MT)]
        need = sum(cost(x) for x, _ in ex) + 8 * len(rd) + sum(cost(x) for l in fixed.values() for x in l)
        cap = max(12, -(-need // (4 * n)) * 4)
        for k, (nt, mt) in enumerate(order):
            cc = A_(mt, nt)
            if str(which) not in os.environ.get("NOMF", ""): a.e(f"v_mfma_f32_16x16x32_bf16 {vr(cc,4)}, {vr(F+4*(MT+nt),4)}, {vr(F+4*mt,4)}, {0 if zero else vr(cc,4)}")
            b_ = cap - sum(cost(x) for x in fixed.get(k, [])); nv = 0
            if k >= r0 and done < len(rd): a.e(rd[done]); done += 1; b_ -= 8
            while ex and ex[0][1] < done and (cost(ex[0][0]) <= b_ or k == n - 1) and not (nv >= (1 if rd else 2) and ex[0][0].startswith("v_") and cap == 12 and k < n - 1):
                x = ex.pop(0)[0]; a.e(x); b_ -= cost(x); nv += x.startswith("v_")
            for x in fixed.get(k, []): a.e(x)
        assert done == len(rd) and not ex
    NR_ = MT + 2 * NT; BP = eval(os.environ.get("BP", "{3:3,4:2}")).get(which, 0)
    def stage(ex=(), ey=(), lim=NS-1, late=False, zero=False, pre=()):
        if str(which) in os.environ.get("GST", "") or os.environ.get("JIT"): mstamp(a, True)
        if which == 3: last = {0: NR_ - 1, 1: NR_ - 3}
        else: last = {i: MT + 2 * i + 1 for i in range(4)}
        book = ["s_add_u32 s42, s42, 16384", f"s_cmp_eq_u32 s42, {NA*16384}", "s_cselect_b32 s42, 0, s42",
                f"s_add_u32 s48, s48, {STB}", f"s_cmp_eq_u32 s48, {NW*STB}", "s_cselect_b32 s48, 0, s48", (f"v_add_u32 v{aa}, s42, v{a0}", MT - 1)]
        book += sorted([(f"v_add_u32 v{wa+i}, s48, v{w0+i}", last[i]) for i in range(nwr)], key=lambda x: x[1])
        n = MT * NT
        group(fX, reads(fY, 1), 0, book[:7] + list(ex) + book[7:], {3: [f"s_waitcnt lgkmcnt({min(15, NR_ - MT - 4 + 4)})"], 7: ["s_waitcnt lgkmcnt(8)"], n - 1: [f"s_waitcnt lgkmcnt({NR_ - MT - 2})"]}, zero)
        if late:
            b_ = Rec(); ep_setup(b_)
            group(fY, [], 0, ["s_add_u32 s43, s43, 1"] + b_.l, {min(BP, 3): ["s_waitcnt lgkmcnt(0)"]})
            if B0E: publish(a, ST_G2S, 4, pt, ctr=48)
            a.e("s_barrier")
            for x in reads(fX, 0): a.e(x)
            a.e(f"s_waitcnt lgkmcnt({NR_ - MT - 2})")
            return
        group(fY, reads(fX, 0), BP + 1, list(ey) + ["s_add_u32 s43, s43, 1", f"s_cmp_lt_u32 s43, {lim}"],
              {BP - 1: list(pre), BP: ["s_waitcnt lgkmcnt(0)", "s_barrier"], n - 1: [f"s_waitcnt lgkmcnt({NR_ - MT - 2})"]})
    w00 = c["S0"] * STB
    if which <= 2:
        def wrd(p, b): return [f"ds_read_b64_tr_b16 {vr((fX, fY)[p]+16*kk+4*nt+2*h,2)}, v{w0+nt} offset:{b*STB + wpos(nt, kk, h)[1]}" for kk in range(2) for nt in range(4) for h in range(2)]
        def dmf(b, fill, lo=0, hi=16):
            k = 0
            for kk in range(2):
                for nt in range(4):
                    for mt in ((0, 1) if nt % 2 == 0 else (1, 0)):
                        if lo <= k < hi:
                            a.e(f"v_mfma_f32_16x16x32_bf16 {vr(A_(mt,nt),4)}, {vr((fX, fY)[b&1]+16*kk+4*nt,4)}, {vr(AB+16*b+8*kk+4*mt,4)}, {vr(A_(mt,nt),4)}")
                            for x in fill[k]: a.e(x)
                        k += 1
        def spreadf(l, lo, hi):
            f = [[] for _ in range(16)]
            for i, x in enumerate(l): f[lo + i * (hi - lo) // len(l)].append(x)
            return f
        a.e("s_mov_b32 s43, 0"); ep_setup(a)
        CK = str(which) in DP; ck_ = aa
        def check(b):
            B = AB + 16 * b
            return [f"v_or3_b32 v{ck_}, v{B}, v{B+4}, v{B+8}", f"v_bitop3_b32 v{ck_}, v{ck_}, v{B+12}, 1 bitop3:0xa8", f"v_cmp_ne_u32 vcc, 0, v{ck_}"]
        L = a.lab("dm"); assert CK
        a.e("s_mov_b32 s53, 0"); a.e("s_mov_b32 s49, s44")
        if which == 2: a.e("s_barrier")
        for x in wrd(0, 0): a.e(x)
        if EARLY: a.e(f"s_branch {L}w")
        elif int(os.environ.get("G1D", "0")): a.e("s_sleep " + os.environ["G1D"])
        a.e(f"{L}p:")
        for x in try0: a.e(x)
        a.e(f"{L}w:")
        a.e(f"s_waitcnt vmcnt({2*F0 - 4})")
        for x in check(0): a.e(x)
        DEEP = eval(os.environ.get("DEEP", "(0,4,4)"))[which]
        if DEEP:
            a.e(f"s_cbranch_vccz {L}q")
            a.e(f"{L}r:"); a.e(f"s_sleep {os.environ.get('GNAP', '2')}")
            for x in past(seq(PR[:DEEP], 0)): a.e(x)
            a.e(f"s_waitcnt vmcnt({2*DEEP - 4})")
            for x in check(0): a.e(x)
            a.e(f"s_cbranch_vccz {L}t")
            a.e("s_add_u32 s53, s53, 1"); a.e("s_cmp_lt_u32 s53, s61"); a.e(f"s_cbranch_scc1 {L}r"); a.e("s_mov_b32 s61, 0"); a.e(f"s_branch {L}t")
            a.e(f"{L}q:")
            assert DEEP >= F0
            for x in seq(PR[F0:DEEP], None): a.e(x)
            a.e(f"{L}t:")
            mstamp(a)
            for x in seq(PR[DEEP:], None): a.e(x)
        else:
            a.e(f"s_cbranch_vccz {L}q"); a.e(f"s_sleep {os.environ.get('GNAP', '2')}")
            a.e("s_add_u32 s53, s53, 1"); a.e("s_cmp_lt_u32 s53, s61"); a.e(f"s_cbranch_scc1 {L}p"); a.e("s_mov_b32 s61, 0")
            a.e(f"{L}q:")
            mstamp(a)
            for x in seq(PR[2:], None): a.e(x)
        a.e("s_waitcnt lgkmcnt(0)")
        a.e(f"{L}:")
        for b in range(4):
            rd = wrd(1 - (b & 1), (b + 1) & 3); ex = [[] for _ in range(16)]
            ex[0], ex[1] = [[x] for x in aload((b - 1) & 3, 1)]
            if b == 0 and which == 1:
                for i, x in enumerate(["s_mov_b32 s44, s45", "s_mov_b32 s45, s46", "s_mov_b32 s46, s47", f"s_mov_b32 s47, {OOB}"]): ex[2 + i].append(x)
            if which == 2:
                ex[2].append("s_add_u32 s44, s44, 16384"); ex[10].append("s_add_u32 s44, s44, 16384")
                mv = [f"v_mov_b32 v{LO+k}, v{LO+k+2}" for k in range(6)] + [f"v_mov_b32 v{LO+6+k}, {OOB}" for k in range(2)]
                if b < 2:
                    for i, x in enumerate(mv[4*b:4*b+4]): ex[3 + i].append(x)
                if b == 3:
                    for k in range(2): ex[3 + k].append(f"v_mov_b32 v{LP+k}, v{LO+k}")
            if b == 2:
                ex[4].append("s_add_u32 s43, s43, 1"); ex[14].append("s_cmp_eq_u32 s43, 4")
                for nt, g_ in enumerate((11, 12, 13, 15)): ex[g_].append(f"v_add_u32 v{w0+nt}, {4*STB}, v{w0+nt}")
            if b == 3 and which == 1: ex[2].append("s_mov_b32 s49, s44")
            ex[7].append("s_waitcnt lgkmcnt(8)")
            ex[8], ex[9] = [[x] for x in aload(b, 0)]
            ex[10].append("s_waitcnt vmcnt(10)")
            if CK:
                for i, x in enumerate(check((b + 1) & 3)): ex[11 + i].append(x)
            fill = [rd[i:i+1] + ex[i] for i in range(16)]
            fill[14] = rd[14:16] + ex[14]; fill[15] = ex[15] + ["s_waitcnt lgkmcnt(8)"]
            if CK: fill[15] += [f"s_cbranch_vccnz {L}f{b}", f"{L}g{b}:"]
            if b == 2: fill[15].append(f"s_cbranch_scc1 {L}x")
            if b == 3: fill[15].append(f"s_branch {L}")
            dmf(b, fill)
        for b in range(4 if CK else 0):
            nb = (b + 1) & 3
            a.e(f"{L}f{b}:"); a.e("s_cselect_b32 s50, 1, 0")
            a.e(f"{L}h{b}:"); a.e(f"s_sleep {os.environ.get('GNAP', '2')}")
            if which == 2: a.e(f"s_sub_u32 s44, s44, {7*16384}")
            for j in range(4):
                bb = (nb + j) & 3
                for kk in range(2 if j < 3 else 1):
                    for x in past(seq([(bb, kk)], None)):
                        if bb >= nb and which == 1: x = x.replace("s44", "s49")
                        if bb >= nb and which == 2: x = x.replace(f", v{LO}, ", f", v{LP}, ").replace(f", v{LO+1}, ", f", v{LP+1}, ")
                        a.e(x)
            a.e("s_waitcnt vmcnt(10)")
            for x in check(nb): a.e(x)
            a.e("s_add_u32 s53, s53, 1"); a.e("s_cmp_ge_u32 s53, s61"); a.e("s_cselect_b32 s61, 0, s61"); a.e(f"s_cbranch_scc1 {L}k{b}")
            a.e(f"s_cbranch_vccnz {L}h{b}")
            a.e(f"{L}k{b}:"); a.e("s_cmp_eq_u32 s50, 1"); a.e(f"s_branch {L}g{b}")
        a.e(f"{L}x:")
    else:
        if which == 3:
            a.e(f"v_mov_b32 v{aa}, v{a0}")
            a.e("s_mov_b32 s42, 0"); a.e("s_mov_b32 s43, 0"); a.e(f"s_mov_b32 s48, {w00}")
            for i in range(nwr): a.e(f"v_add_u32 v{wa+i}, {w00}, v{w0+i}")
        if os.environ.get("XD") and os.environ["XD"][0] == str(which): a.e("s_sleep " + os.environ["XD"][1:])
        if not (which == 3 and B0E): a.e("s_waitcnt lgkmcnt(0)"); a.e("s_barrier")
        mstamp(a)
        for x in reads(fX, 0): a.e(x)
        a.e(f"s_waitcnt lgkmcnt({NR_ - MT - 2})")
    if which == 4:
        def st2(j): return [(x, 0) for x in [f"s_add_u32 s36, s44, {j*224*1024}", f"buffer_store_dwordx4 {vr(C2R+4*j,4)}, v{l16}, s[16:19], s36 offen {SC}",
                            f"s_add_u32 s36, s45, {j*224*1024}", f"buffer_store_dwordx2 {vr(C2R+16+2*j,2)}, v{SO3}, s[16:19], s36 offen {SC}"]]
        assert PBB in (1, 2) and PC0 >= 2
        for st_ in range(2): stage(st2(2 * st_), st2(2 * st_ + 1), zero=st_ == 0, pre=[f"s_waitcnt vmcnt({4 * st_ + 2})"] if PBB == st_ + 1 else [])
        CW = 0
        if PC0 > 3:
            L0 = a.lab("mm"); a.e(f"{L0}:"); stage(lim=PC0); a.e(f"s_cbranch_scc1 {L0}")
        elif PC0 == 3: stage()
    if which == 3 and os.environ.get("PEEL3", "1") == "1": stage(late=True, zero=True)
    if which > 2:
        L = a.lab("mm"); a.e(f"{L}:")
        stage(pre=[f"s_waitcnt vmcnt({CW})"] if which == 4 else [])
        a.e(f"s_cbranch_scc1 {L}")
    b0 = Rec()
    if which == 4:
        a.e("s_cmp_eq_u32 s60, 1"); a.e("s_cbranch_scc1 G4_last")
        if not RPC: r_pre(b0)
    if which == 1:
        for mt in range(MT):
            for p in range(NT // 2): b0.e(f"buffer_load_dwordx4 {vr(RES2+(mt*(NT//2)+p)*4,4)}, v{LO+mt}, s[8:11], s41 offen offset:{p*1024} {SC}")
    early = True
    XW = {3: [f"s_waitcnt lgkmcnt({min(15, NR_ - MT)})"], 7: ["s_waitcnt lgkmcnt(8)"]}
    if which <= 2: dmf(3, spreadf(b0.l, 0, 8), 0, 8)
    else: group(fX, reads(fY, 1), 0, b0.l, XW)
    a.e("s_waitcnt lgkmcnt(0)")
    if which not in DL: a.e("s_barrier")
    b = Rec()
    if which in (1, 3):
        for nt in range(NT): b.e(f"ds_read_b128 {vr(cs+4*nt,4)}, v{t} offset:{nt*64}")
        if which == 3:
            for mt in range(MT): b.e(f"ds_read_b128 {vr(lns+4*mt,4)}, v{t2} offset:{mt*256}")
            for i in range(4): b.e(f"v_mov_b32 v{w0+i}, v{G4W+i}"); b.e(f"v_add_u32 v{wa+i}, {CFG[4]['S0']*CFG[4]['STB']}, v{G4W+i}")
            b.e("s_mov_b32 s42, 0"); b.e("s_mov_b32 s43, 0"); b.e(f"s_mov_b32 s48, {CFG[4]['S0']*CFG[4]['STB']}"); b.e(f"v_mov_b32 v{aa}, v{a0}")
            assert fY + 16 == RFO; r_addr(b, False)
        else:
            for mt in range(MT): b.e(f"ds_read_b64 {vr(lns+2*mt,2)}, v{t2} offset:{mt*256}")
    if which == 2: lsrd(b, 44, oST2, 24576)
    if which == 4:
        b.e(f"s_mul_i32 s36, s31, {oP1-oP0}"); b.e(f"s_add_u32 s36, s36, {oP0}")
        b.e("s_add_u32 s16, s62, s36"); b.e("s_addc_u32 s17, s63, 0"); b.e(f"s_mov_b32 s18, {XSZ}"); b.e("s_mov_b32 s19, 0x20000")
    if which <= 2: dmf(3, spreadf(b.l, 8, 15), 8, 16)
    else: group(fY, [], 0, b.l)
    mstamp(a)
    if which in (1, 3):
        AB = v(2 * MT, 2) if which == 1 else fY + 4
        def consts():
            for mt in range(MT if which == 1 else 0):
                r = lns + 2 * mt + 1
                a.e(f"v_mul_f32 v{AB+2*mt}, {f32(GC1)}, v{r}"); a.e(f"v_mul_f32 v{AB+2*mt+1}, v{r}, v{r}")
                a.e(f"v_mul_f32 v{AB+2*mt+1}, v{AB+2*mt+1}, v{AB+2*mt}"); a.e(f"v_mul_f32 v{AB+2*mt+1}, {f32(0.044715)}, v{AB+2*mt+1}")
                a.e(f"v_rcp_f32 v{r}, v{r}")
        def act(mt, nt):
            A = A_(mt, nt); P_ = [(A, tp), (A + 2, tp + 2)]; L_ = vr(lns + 2 * mt, 2); K_ = vr(AB + 2 * mt, 2)
            if which == 3: L_ = vr(lns + 4 * mt, 2); K_ = vr(lns + 4 * mt + 2, 2)
            for h in range(2):
                a.e(f"v_pk_fma_f32 {vr(A+2*h,2)}, {L_}, {vr(cs+4*nt+2*h,2)}, {vr(A+2*h,2)} op_sel_hi:[0,1,1] neg_lo:[1,0,0] neg_hi:[1,0,0]")
            for x, u in P_: a.e(f"v_pk_mul_f32 {vr(u,2)}, {vr(x,2)}, {vr(x,2)}")
            for x, u in P_: a.e(f"v_pk_fma_f32 {vr(u,2)}, {vr(u,2)}, {K_}, {K_} op_sel:[0,1,0] op_sel_hi:[1,1,0]")
            for x, u in P_: a.e(f"v_pk_mul_f32 {vr(u,2)}, {vr(u,2)}, {vr(x,2)}")
            for i in range(4): a.e(f"v_exp_f32 v{tp+i}, v{tp+i}")
            for x, u in P_: a.e(f"v_pk_fma_f32 {vr(u,2)}, {vr(u,2)}, {L_}, {L_} op_sel:[0,1,1] op_sel_hi:[1,1,1]")
            for i in range(4): a.e(f"v_rcp_f32 v{tp+i}, v{tp+i}")
            for x, u in P_: a.e(f"v_pk_mul_f32 {vr(x,2)}, {vr(x,2)}, {vr(u,2)}")
        def egroup(par, mt, nts, dst=None):
            for nt in nts: act(mt, nt)
            T = par * NT + nts[0]; P = (T >> 1) - ((par * NT) >> 1); B = A_(mt, nts[0]); D = B if dst is None else dst
            for k in range(2 * len(nts)): a.e(f"v_cvt_pk_bf16_f32 v{D+k}, v{B+2*k}, v{B+2*k+1}")
            if which == 3 and (mt < 3 or "3" in DP or V3) and "1" in DP: mark(a, D, 1)
            if which == 1: mark(a, D, 0)
            if which == 3: return [f"s_add_u32 s36, s{44+P}, {mt*224*1024}", f"buffer_store_dwordx4 {vr(B,4)}, v{l16}, s[16:19], s36 offen {SC}"]
            return [f"buffer_store_dwordx4 {vr(B,4)}, v{so}, s[16:19], s{39+P} offen offset:{mt*256} {SC}"]
        def body(par):
            if which == 1: gs = [(0, 1), (2, 3)]
            else: gs = [(0, 1), (2, 3), (4, 5), (6,)] if par == 0 else [(1, 2), (3, 4), (5, 6), (0,)]
            k = 0; pend = []; sent = 0
            for gi_, g_ in enumerate(gs):
                for mt in range(MT):
                    if which == 3 and k == C0PUB:
                        a.e(f"s_waitcnt vmcnt({sent - 4})"); a.e("s_mov_b64 exec, 1"); a.e(f"ds_add_u32 v{EA+2}, v{EA+1}"); a.e("s_mov_b64 exec, -1"); mstamp(a)
                    if which == 3 and k == RK:
                        b_ = Rec(); r_pre(b_); l_ = [x for x in b_.l if x.startswith(("buffer", "s_mov_b32 s78"))]
                        a.e("s_cmp_eq_u32 s60, 1"); a.e(f"s_cbranch_scc1 G4_p1{par}")
                        for x in l_: a.e(x)
                        a.e(f"s_branch G4_p2{par}"); a.e(f"G4_p1{par}:")
                        for x in last_res(): a.e(x)
                        a.e(f"G4_p2{par}:")
                        if 4 <= k < C0PUB: sent += 8
                    st_ = egroup(par, mt, g_, None if gi_ < 2 else C2R + 4 * mt if gi_ == 2 else C2R + 16 + 2 * mt); k += 1
                    if which == 3 and gi_ < 3:
                        a.e(f"ds_write_b128 v{EA}, {vr(A_(mt, g_[0]) if gi_ < 2 else C2R + 4 * mt, 4)} offset:{gi_*16384 + mt*2048}")
                    if gi_ < 2: pend.append(st_)
                    n = len(pend) if (which == 1 or k <= 4 or k == 16) else 0 if k <= STQ else min(1, len(pend))
                    for _ in range(n):
                        for x in pend.pop(0): a.e(x)
                        sent += 1
            if which == 3:
                a.e("s_waitcnt lgkmcnt(0)")
                if par == 0: a.e("s_mov_b32 s44, s46"); a.e("s_mov_b32 s45, s47")
                else: a.e("s_add_u32 s45, s44, 512"); a.e("s_mov_b32 s44, s47")
        a.e("s_waitcnt lgkmcnt(0)")
        consts()
        if which == 3:
            a.e("s_cmp_eq_u32 s35, 1"); a.e(f"s_cbranch_scc1 {nm}_e1")
            body(0); a.e(f"s_branch {nm}_e2"); a.e(f"{nm}_e1:"); body(1); a.e(f"{nm}_e2:")
        else: body(0)
    if which == 2:
        xf = v(2, 2); S = v(2 * MT, 2); pp = v(2, 2); mn = v(2, 2)
        for mt in range(MT):
            a.e(f"s_add_u32 s36, s39, {mt*65536}")
            for p in range(NT // 2):
                R = res + (mt * (NT // 2) + p) * 4
                for e in range(4):
                    X = A_(mt, 2 * p) + 2 * e
                    a.e(f"v_cvt_pk_bf16_f32 v{R+e}, v{X}, v{X+1}")
                if DP: mark(a, R, 0)
                a.e(f"buffer_store_dwordx4 {vr(R,4)}, v{l16}, s[16:19], s36 offen offset:{p*1024} {SC}")
        if which in DL: a.e("s_barrier")
        if OWN3:
            a.e("s_lshl_b32 s36, s37, 11"); a.e(f"v_add_u32 v{t2}, s36, v{l16}")
            for i in range(4): a.e(f"ds_write_b128 v{t2}, {vr(res+4*i,4)} offset:{1024*i}")
        for i in range(MT * NT * 2): unpack(a, acc + 2 * i, acc + 2 * i + 1, res + i)
        mstamp(a)
        publish(a, which, 4, pt)
        if B0E: a.e("s_waitcnt lgkmcnt(0)"); a.e("s_barrier")
        mstamp(a)
        for mt in range(MT):
            B = A_(mt, 0); Sm = S + 2 * mt
            a.e(f"v_pk_add_f32 {vr(pp,2)}, {vr(B,2)}, {vr(B+2,2)}"); a.e(f"v_pk_mul_f32 {vr(xf,2)}, {vr(B,2)}, {vr(B,2)}")
            for i in range(1, NT * 2):
                if i > 1: a.e(f"v_pk_add_f32 {vr(pp,2)}, {vr(pp,2)}, {vr(B+2*i,2)}")
                a.e(f"v_pk_fma_f32 {vr(xf,2)}, {vr(B+2*i,2)}, {vr(B+2*i,2)}, {vr(xf,2)}")
            a.e(f"v_add_f32 v{Sm}, v{pp}, v{pp+1}"); a.e(f"v_add_f32 v{Sm+1}, v{xf}, v{xf+1}")
            for op in ("v_permlane16_swap_b32", "v_permlane32_swap_b32"):
                for k in range(2): a.e(f"v_mov_b32 v{pp+k}, v{Sm+k}")
                for k in range(2): a.e(f"{op} v{Sm+k}, v{pp+k}")
                a.e(f"v_pk_add_f32 {vr(Sm,2)}, {vr(Sm,2)}, {vr(pp,2)}")
        a.e(f"v_cmp_eq_u32 vcc, 0, v{G}"); a.e(f"v_cndmask_b32 v{S}, v{S+2}, v{S}, vcc"); a.e(f"v_cndmask_b32 v{S+1}, v{S+3}, v{S+1}, vcc")
        spread(a, 40, 29); a.e("s_lshl_b32 s36, s34, 8"); a.e("s_add_u32 s40, s40, s36")
        a.e(f"v_lshlrev_b32 v{t2}, 3, v{lane}")
        a.e("s_bfm_b64 exec, 32, 0")
        a.e(f"buffer_store_dwordx2 {vr(S,2)}, v{t2}, s[44:47], s40 offen {SC}")
        a.e("s_mov_b64 exec, -1")
    if which == 4:
        for mt in range(MT):
            a.e(f"s_add_u32 s36, s39, {mt*65536}")
            for p in range(NT // 2):
                B = A_(mt, 2 * p)
                for e in range(4): a.e(f"v_cvt_pk_bf16_f32 v{B+e}, v{B+2*e}, v{B+2*e+1}")
                if "r" in DP: mark(a, B, 1)
                a.e(f"buffer_store_dwordx4 {vr(B,4)}, v{l16}, s[16:19], s36 offen offset:{p*1024} {SC}")
    if which != 2:
        if which in DL: a.e("s_barrier")
        mstamp(a)
        if which == 4 and "r" not in DP: publish(a, which, 4, pt)
        mstamp(a)
    if which == 4:
        a.e("s_branch NEXT")
        a.e("G4_last:")
        PX = 208; oa = 224; xf = 226
        group(fX, reads(fY, 1), 0, [(f"s_load_dwordx2 s[6:7], s[0:1], {D_OUT}", 9)], XW)
        a.e("s_waitcnt lgkmcnt(0)")
        b = Rec()
        lsrd(b, 16, oX1P if "f" in DP else MB, XSZ)
        b.srd(20, 6, 4 * MB)
        if "f" not in DP:
            b.e("s_lshl_b32 s44, s29, 2"); b.e("s_add_u32 s44, s44, s30"); b.e("s_lshl_b32 s44, s44, 7"); b.e("s_xor_b32 s45, s44, 4096")
            b.e("s_add_u32 s44, s44, s55"); b.e(f"s_add_u32 s44, s44, {oFP}"); b.e("s_add_u32 s45, s45, s55"); b.e(f"s_add_u32 s45, s45, {oFP}")
            b.e(f"v_mov_b32 v{pt+1}, s45"); b.e(f"v_mov_b32 v{pt+2}, s52"); b.e(f"v_mov_b32 v{pt+3}, 0")
        else: b.e("s_add_u32 s44, s40, 65536")
        b.e("s_lshl_b32 s46, s28, 3"); b.e("s_add_u32 s46, s46, s37"); b.e("s_lshl_b32 s47, s31, 1"); b.e("s_add_u32 s46, s46, s47"); b.e("s_lshl_b32 s46, s46, 15")
        b.e("s_lshl_b32 s47, s38, 5"); b.e("s_add_u32 s46, s46, s47"); b.e(f"s_add_u32 s47, s46, {16*2048}")
        b.e(f"v_and_b32 v{oa+1}, 1, v{G}"); b.e(f"v_lshlrev_b32 v{oa}, 11, v{J}"); b.e(f"v_lshl_add_u32 v{oa}, v{oa+1}, 5, v{oa}")
        b.e(f"v_lshrrev_b32 v{oa+1}, 1, v{G}"); b.e(f"v_lshl_add_u32 v{oa}, v{oa+1}, 4, v{oa}")
        FULLN = os.environ.get("FULLN", "1") == "1"
        if FULLN:
            b.e(f"v_lshrrev_b32 v{oa+1}, 3, v{J}"); b.e(f"v_mul_u32_u24 v{oa+1}, {8*2048 - 64}, v{oa+1}"); b.e(f"v_sub_u32 v{oa}, v{oa}, v{oa+1}")
            b.e(f"v_add_u32 v{oa+1}, {8*2048}, v{oa}")
        OT = int(os.environ.get("OT", "0"))
        if OT == 1: b.e("s_mov_b64 exec, 1"); b.e(f"buffer_load_dword v{xf}, v{oa}, s[20:23], s46 offen {SC}"); b.e("s_mov_b64 exec, -1")
        if OT == 2:
            for k in range(4): b.e(f"buffer_load_dword v{xf}, v{oa+(k&1)}, s[20:23], s{46+(k>>1)} offen {SC}")
        group(fY, [], 0, b.l)
        mstamp(a)
        def send(m0_):
            for i in range(2):
                a.e(f"s_add_u32 s36, s41, {i*65536}")
                for p in range(2):
                    B = A_(m0_ + i, 2 * p)
                    for e in range(4): a.e(f"v_cvt_pk_bf16_f32 v{B+e}, v{B+2*e}, v{B+2*e+1}")
                    if "f" in DP: mark(a, B, 1)
                    a.e(f"buffer_store_dwordx4 {vr(B,4)}, v{l16}, s[16:19], s36 offen offset:{p*1024} {SC}")
        a.e("s_cmp_eq_u32 s31, 0"); a.e("s_cbranch_scc1 G4_k0")
        send(0)
        for i in range(0, 32, 2): a.e(f"v_pk_mov_b32 {vr(acc+i,2)}, {vr(acc+32+i,2)}, {vr(acc+32+i,2)} op_sel:[0,1]")
        a.e("s_branch G4_k1")
        a.e("G4_k0:")
        send(2)
        a.e("G4_k1:")
        a.e("s_mov_b32 s78, 0x3f80"); a.e("s_mov_b32 s79, 0x3f800000")
        def addp(k, R):
            B = A_(k >> 1, 2 * (k & 1))
            if DOT:
                for e in range(8): a.e(f"v_dot2_f32_bf16 v{B+e}, v{R+e//2}, s{78+(e&1)}, v{B+e}")
                return
            for e in range(4):
                unpack(a, xf + 2 * (e & 1), xf + 1 + 2 * (e & 1), R + e)
                a.e(f"v_pk_add_f32 {vr(B+2*e,2)}, {vr(B+2*e,2)}, {vr(xf+2*(e&1),2)}")
        for k in range(4): addp(k, RX[2 * k])
        if "f" not in DP:
            a.e("s_waitcnt vmcnt(0)")
            a.e("s_mov_b64 exec, 1"); a.e(f"buffer_store_dword v{pt+2}, v{pt+3}, s[56:59], s44 offen {SC}"); a.e("s_mov_b64 exec, -1")
        mstamp(a)
        for k in range(4): addp(k, RX[2 * k + 1])
        if "f" in DP:
            data_poll(a, [f"buffer_load_dwordx4 {vr(PX+4*(2*i+p),4)}, v{l16}, s[16:19], s{(40, 44)[i]} offen offset:{p*1024} {os.environ.get('FF', SC)}" for i in range(2) for p in range(2)],
                      [PX + 4 * k for k in range(4)], t, int(os.environ.get("FNAP", "2")), 0, int(os.environ.get("FCAN", "0")))
            mstamp(a)
        else:
            poll_core(a, pt, [pt + 1], 1, nap=2)
            mstamp(a)
            for i in range(2):
                a.e(f"s_add_u32 s36, s40, {i*65536}")
                for p in range(2): a.e(f"buffer_load_dwordx4 {vr(PX+4*(2*i+p),4)}, v{l16}, s[16:19], s36 offen offset:{p*1024} {SC}")
        for k in range(4):
            if "f" not in DP: a.e(f"s_waitcnt vmcnt({3 - (k & 1) if FULLN else 3})")
            addp(k, PX + 4 * k)
            B = A_(k >> 1, 2 * (k & 1))
            if os.environ.get("EPS"):
                for e in range(8): a.e(f"v_mul_f32 v{B+e}, {f32(1 + float(os.environ['EPS']) * (1 if e & 1 else -1))}, v{B+e}")
            for e in range(4): a.e(f"v_cvt_pk_bf16_f32 v{B+e}, v{B+2*e}, v{B+2*e+1}")
            for e in range(2): a.e(f"v_permlane16_swap_b32 v{B+e}, v{B+2+e}")
            if not FULLN: a.e(f"buffer_store_dwordx4 {vr(B,4)}, v{oa}, s[20:23], s{46+(k>>1)} offen offset:{64*(k&1)} {os.environ.get('OS', '')}")
            elif k & 1:
                X, Y, T = B - 8, B, B + 4
                for e in range(4): a.e(f"v_mov_b32 v{T+e}, v{X+e}")
                for e in range(4): a.e(f"v_mov_b32_dpp v{X+e}, v{Y+e} row_ror:8 row_mask:0xf bank_mask:0xc")
                for e in range(4): a.e(f"v_mov_b32_dpp v{Y+e}, v{T+e} row_ror:8 row_mask:0xf bank_mask:0x3")
                a.e(f"buffer_store_dwordx4 {vr(X,4)}, v{oa}, s[20:23], s{46+(k>>1)} offen {os.environ.get('OS', SC)}")
                a.e(f"buffer_store_dwordx4 {vr(Y,4)}, v{oa+1}, s[20:23], s{46+(k>>1)} offen {os.environ.get('OS', SC)}")
        a.e("s_branch K_fin")
    assert v.hi <= {1: RES2, 2: RES2, 3: RYY, 4: 176}[which], v.hi
    return v.hi

def k_mega(a):
    nm = KNAME; a.begin_kernel(nm)
    a.e("s_cmp_ge_u32 s2, 256"); a.e("s_cbranch_scc1 K_end")
    a.e(f"s_load_dwordx8 s[8:15], s[0:1], {A_K}")
    if FAST:
        if STAMP: a.e("s_memrealtime s[46:47]")
        front_first(a)
    a.e(f"s_load_dwordx2 s[6:7], s[0:1], {A_Q}"); a.e(f"s_load_dwordx8 s[68:75], s[0:1], {B_W1}")
    a.e(f"s_load_dwordx2 s[4:5], s[0:1], {D_WS}"); a.e(f"s_load_dwordx2 s[84:85], s[0:1], {D_DBG}")
    if not (FAST and STAMP): a.e("s_memrealtime s[46:47]")
    a.e(f"s_load_dwordx2 s[96:97], s[0:1], {A_SSMD}")
    a.e("v_lshrrev_b32 v1, 6, v0"); a.e("v_readfirstlane_b32 s30, v1")
    if CODEPF:
        a.e("s_getpc_b64 s[48:49]"); a.e("K_pc:")
        a.e("s_lshr_b32 s36, s2, 3"); a.e("s_lshl_b32 s36, s36, 11")
        a.e("v_lshlrev_b32 v4, 2, v0"); a.e("v_add_u32 v4, s36, v4")
        a.e("v_cmp_gt_u32 vcc, K_end-K_pc-8, v4"); a.e("s_and_saveexec_b64 s[36:37], vcc"); a.e("s_cbranch_execz K_3")
        a.e("v_mov_b32 v5, s49"); a.e("v_add_co_u32 v4, vcc, s48, v4"); a.e("v_addc_co_u32 v5, vcc, 0, v5, vcc")
        a.e("global_load_dword v250, v[4:5], off")
        a.e("K_3:"); a.e("s_mov_b64 exec, -1")
    for _ in range(int(os.environ.get("SDELAY", "0"))): a.e("s_sleep 127")
    front_loads(a)
    a.e("v_and_b32 v1, 63, v0"); a.e("v_lshlrev_b32 v2, 4, v1"); a.e("v_lshlrev_b32 v3, 2, v1")
    a.e("s_mov_b32 s67, 0")
    a.e("s_mov_b32 s60, 0"); a.e("s_mov_b32 s61, 40000"); a.e("s_mov_b32 s52, 0")
    a.e("s_mov_b32 s55, 0"); a.e("s_mov_b32 s92, 0"); a.e("s_mov_b32 s93, 0"); a.e("s_mov_b32 s94, 0")
    a.srd(56, 4, HSB)
    if os.environ.get("FIXT"): a.e("s_mov_b32 s101, s46")
    a.e(f"s_add_u32 s62, s4, {LB0}"); a.e("s_addc_u32 s63, s5, 0")
    if STAMP:
        a.e("s_mov_b32 s66, 1"); a.e("v_mov_b32 v255, -1"); a.e("s_mov_b32 s95, 0"); a.e("v_writelane_b32 v255, s46, 0")
    mstamp(a)
    if os.environ.get("WBENCH"):
        a.e("s_waitcnt vmcnt(0)"); a.e("s_barrier")
        a.e("s_cmp_lt_u32 s30, 6"); a.e("s_cbranch_scc1 WB_end")
        for w in (1, 2, 3, 4):
            mstamp(a); w_setup(a, w); a.e("s_waitcnt vmcnt(0)"); mstamp(a); a.e("s_sleep 40")
        a.e("WB_end:"); a.e("s_branch K_dump")
    front_a(a); mstamp(a)
    for r in range(238, 248): a.e(f"v_mov_b32 v{r}, 0")
    a.e("s_cmp_ge_u32 s30, 4"); a.e("s_cbranch_scc1 FR_b")
    front_conv(a); hi = 0
    mstamp(a)
    front_arrive(a, True, True)
    if os.environ.get("EPR"): a.e("s_setprio 0")
    a.e("s_branch FR_end")
    a.e("FR_b:")
    front_b(a)
    a.e("FR_end:")
    mstamp(a)
    a.e("LAYER:")
    if os.environ.get("XDELAY"): a.e(f"s_sleep {os.environ['XDELAY']}")
    hi = max(hi, r_stage(a, False))
    mstamp(a)
    a.e("s_cmp_ge_u32 s30, 4"); a.e("s_cbranch_scc1 LOADERS")
    if CPRIO: a.e(f"s_setprio {CPRIO}")
    for w in (1, 2, 3, 4):
        a.lines.append(f"; ---- G{w}: compute waves (set-up, K loop, epilogue, publish)")
        hi = max(hi, g_compute(a, w))
    a.e("LOADERS:")
    park_rest(a, True)
    if SB[2]:
        a.e("s_cmp_lg_u32 s60, 0"); a.e("s_cbranch_scc1 LD_0"); sb(a, SB[2]); a.e("LD_0:")
    if PRIO: a.e(f"s_setprio {PRIO}")
    a.e("s_cmp_ge_u32 s30, 6"); a.e("s_cbranch_scc1 WLOAD")
    for w in (1, 2, 3, 4): a_loader(a, w)
    a.e("s_branch NEXT")
    a.e("WLOAD:")
    a.e("s_cmp_eq_u32 s60, 1"); a.e("s_cbranch_scc1 WL_1")
    w_setup(a, 1, pre=False); w1_slots(a, range(9 - W1G), pace=12); mstamp(a)
    a.e("s_branch WL_2")
    a.e("WL_1:")
    w_setup(a, 1, pre=False); w1_slots(a, range(3 - W1L), pace=12)
    a.e("WL_2:")
    for w in (1, 2, 3, 4):
        w_loader(a, w)
        if w == 2:
            c = CFG[3]; w_setup(a, 3, pre=False); n_ = 3 if W33 else 2; a.e(f"s_mov_b32 s42, {(c['S0'] + n_) % c['NW'] * c['STB']}"); a.e(f"s_mov_b32 s44, {n_}")
        if w == 3: w_setup(a, 4)
    a.e("NEXT:")
    a.e("s_setprio 0")
    a.e("s_add_u32 s60, s60, 1"); a.e(f"s_add_u32 s55, s55, {LSTR}")
    a.e(f"s_add_u32 s62, s62, {LSTR}"); a.e("s_addc_u32 s63, s63, 0")
    a.e("s_branch LAYER")
    a.e("K_fin:")
    if os.environ.get("FIXT"):
        a.e("FX_l:"); a.e("s_sleep 4"); a.e("s_memrealtime s[64:65]"); a.e("s_waitcnt lgkmcnt(0)"); a.e("s_sub_u32 s64, s64, s101")
        if os.environ.get("FIX0"): a.e("s_add_u32 s64, s64, s101"); a.e("s_lshl_b32 s64, s64, 6"); a.e("s_sub_u32 s64, s64, s52"); a.e("s_lshr_b32 s64, s64, 6")
        a.e(f"s_cmp_lt_u32 s64, {os.environ['FIXT']}"); a.e("s_cbranch_scc1 FX_l")
    if STAMP:
        a.e("K_dump:")
        a.e("s_waitcnt vmcnt(0)")
        mstamp(a)
        a.srd(96, 4, 16 * MB, off=200 * MB)
        a.e("s_lshl_b32 s66, s2, 3"); a.e("s_add_u32 s66, s66, s30"); a.e("s_lshl_b32 s66, s66, 8")
        a.e("v_writelane_b32 v255, s95, 63")
        a.e("buffer_store_dword v255, v3, s[96:99], s66 offen")
        if os.environ.get("DBGOUT"):
            a.e("s_cmp_lg_u32 s66, 0"); a.e("s_cbranch_scc1 K_end")
            a.e(f"s_load_dwordx2 s[96:97], s[0:1], {D_DBG}"); a.e("s_mov_b32 s98, 64"); a.e("s_waitcnt lgkmcnt(0)")
            a.e("v_readlane_b32 s64, v255, 0"); a.e("v_mov_b32 v10, 0")
            for i, j in enumerate(eval(os.environ["DBGOUT"])):
                a.e(f"v_readlane_b32 s65, v255, {j}"); a.e("s_sub_u32 s65, s65, s64"); a.e("v_mov_b32 v11, s65")
                a.e(f"buffer_store_dword v11, v10, s[96:99], 0 offen offset:{8+4*i}")
    a.e("s_endpgm")
    emit_subs(a)
    a.e("K_end:")
    assert hi <= PV
    a.end_kernel(nm, 256)
    if TAB: tab_data(a)
    a.launches.append(f"; @launch grid=(256,1,1) block=(512,1,1) lds={LDS_TOTAL}")

HEADER = open(HERE + "/../interleave_layers__ssm_conv_h3__mixer_s_mlp__prompt.s.ref").read().split("; Override launch")[0]
DOC = """; One persistent kernel, 256 workgroups x 8 waves (one per CU), generated by dev/gen40.py.
"""
def main(out):
    a = Asm()
    k_mega(a)
    DS = os.environ.get("DS")
    if DS:
        o = []
        for l in a.lines:
            o.append(l)
            if "buffer_store_dwordx" in l and "sc1" in l and any(k in l for k in DS.split(",")): o.append(l.replace(" sc1", ""))
        a.lines = o
    notes = {
        "K_pc:": "each workgroup reads 2 KB of this kernel's code so that later instruction fetches are served on chip",
        "KV_t0:": "k / v / tap loads of the u^T tile (64 times x 128 channels); workgroup 0 has posted the launch tag (a clock value) in d_debug",
        "HB_2:": "u^T tile out, arrival counters initialised to the tag, roles, shifted filter copies into LDS",
        "CV_w:": "long causal convolution as Toeplitz MFMAs, one channel per wave",
        "FR_b:": "waves 4-7 beside the convolution: memory-locality vote (timed loads, layout choice only), weight column sums, weight touches",
        "LAYER:": "row stage: residual sums, LayerNorm chain, x + LN(x)*y for 8 rows per workgroup",
        "LOADERS:": "waves 4,5: LayerNorm scalars / column sums; activation tiles of G3, G4 by LDS-DMA (after the producers' counters are complete)",
        "WLOAD:": "waves 6,7: weight tiles by LDS-DMA in their original layout (read back with transposing LDS loads)",
        "G4_last:": "last layer: the two K halves exchange half tiles, add the residuals and write the output",
    }
    o = []
    for l in a.lines:
        if l.strip() in notes: o.append("; ---- " + notes[l.strip()])
        if l.strip().startswith("s_sleep"): l += "    ; back-off of a wave that waits for another workgroup or wave"
        o.append(l)
    a.lines = o
    open(out, "w").write(a.text(HEADER + DOC))
    print("nops added:", a.nops_added)

if __name__ == "__main__":
    main(sys.argv[1] if len(sys.argv) > 1 else "interleave_layers__ssm_conv_h3__mixer_s_mlp__prompt.s")
```
